```python
import torch

def _softmax(x, axis=-1):
    return torch.softmax(x, dim=axis)

def _gelu(x):
    return torch.nn.functional.gelu(x, approximate='tanh')

def _silu(x):
    return torch.nn.functional.silu(x)

def _sigmoid(x):
    return torch.sigmoid(x)

def _layernorm(x, axis=-1, eps=1e-05):
    m = x.mean(dim=axis, keepdim=True)
    v = x.var(dim=axis, keepdim=True, unbiased=False)
    return (x - m) / torch.sqrt(v + eps)

def _scatter_add(tgt, idx, src, axis=0):
    return tgt.clone().index_add_(axis, idx, src)

def _segment_sum(src, seg, n):
    out = torch.zeros((n,) + src.shape[1:], dtype=src.dtype)
    return out.index_add_(0, seg, src)

def _pad(x, pw):
    flat = tuple((v for pair in reversed(pw) for v in pair))
    return torch.nn.functional.pad(x, flat)
kernel_name = 'standalone__conformer_family_branchformer__speech'

def setup_inputs():

    _w = lambda a: (lambda t: t.to(torch.bfloat16) if t.is_floating_point() else t)(torch.as_tensor(a))
    B, T, D, K = (2, 4000, 144, 3)
    s = float(D) ** (-0.5)
    return {'x': _w((lambda *s: torch.randn(*s, dtype=torch.bfloat16) * 0.05)(B, T, D)), 'w_q': _w((lambda *s: torch.randn(*s, dtype=torch.bfloat16) * 1.6)(D, D) * s), 'w_k': _w((lambda *s: torch.randn(*s, dtype=torch.bfloat16) * 1.6)(D, D) * s), 'w_v': _w((lambda *s: torch.randn(*s, dtype=torch.bfloat16) * 0.4)(D, D) * s), 'w_ao': _w((lambda *s: torch.randn(*s, dtype=torch.bfloat16) * 0.4)(D, D) * s), 'w_up': _w((lambda *s: torch.randn(*s, dtype=torch.bfloat16) * 0.8)(D, 2 * D) * s), 'dw': _w((lambda *s: torch.randn(*s, dtype=torch.bfloat16) * 0.8)(K, D) * (1.0 / K)), 'w_dn': _w((lambda *s: torch.randn(*s, dtype=torch.bfloat16) * 0.4)(D, D) * s), 'w_merge': _w((lambda *s: torch.randn(*s, dtype=torch.bfloat16) * 0.4)(2 * D, D) * s)}

def reference(x, w_q, w_k, w_v, w_ao, w_up, dw, w_dn, w_merge):
    B, T, D = x.shape
    K = dw.shape[0]
    xa = _layernorm(x, axis=-1)
    q = torch.einsum('btd,de->bte', xa, w_q)
    k = torch.einsum('btd,de->bte', xa, w_k)
    v = torch.einsum('btd,de->bte', xa, w_v)
    logits = torch.einsum('btd,bsd->bts', q, k) * float(D) ** (-0.5)
    attn = _softmax(logits, axis=-1)
    ya = torch.einsum('bts,bsd->btd', attn, v)
    ya = torch.einsum('btd,de->bte', ya, w_ao)
    xc = _layernorm(x, axis=-1)
    h = _gelu(torch.einsum('btd,de->bte', xc, w_up))
    u = h[..., :D].clone()
    g = _layernorm(h[..., D:], axis=-1)
    pad = K // 2
    gp = _pad(g, ((0, 0), (pad, pad), (0, 0)))
    conv = torch.zeros_like(g)
    for i in range(K):
        conv = conv + gp[:, i:i + T, :] * dw[i][None, None, :]
    yc = torch.einsum('btd,de->bte', u * conv, w_dn)
    merged = torch.concatenate([ya, yc], axis=-1)
    out = torch.einsum('btf,fd->btd', merged, w_merge)
    return x + out
```

```python
B, T, D = 2, 4000, 144
NT = 125
TILE = 9216
WS_XA = 0
WS_QP = WS_XA + 2 * NT * TILE
WS_MQ = WS_QP + 2 * NT * TILE
WS_PO = WS_MQ + 32768
WS_PL = WS_PO + 4 * NT * TILE
WS_PM = WS_PL + 65536
WS_UC = WS_PM + 65536
WS_WF = WS_UC + 2 * NT * TILE
WS_DBG = WS_WF + 131072
WS_END = WS_DBG + (1 << 20)


class Asm:
    def __init__(self):
        self.lines = []

    def __call__(self, s):
        for l in s.split("\n"):
            l = l.strip()
            if l:
                self.lines.append("    " + l)

    def label(self, l):
        self.lines.append(l + ":")

    def raw(self, s):
        self.lines.append(s)

    def comment(self, s):
        self.lines.append("    ; " + s)

    def text(self):
        return "\n".join(self.lines) + "\n"


def vr(base, n=1):
    return f"v{base}" if n == 1 else f"v[{base}:{base + n - 1}]"


def ar(base, n=1):
    return f"a{base}" if n == 1 else f"a[{base}:{base + n - 1}]"


def sr(base, n=1):
    return f"s{base}" if n == 1 else f"s[{base}:{base + n - 1}]"


def sigma(c, r):
    if c < 16:
        return r ^ (4 * (c & 3))
    q0, q1, q2 = (r >> 2) & 1, (r >> 3) & 1, (r >> 4) & 1
    return 16 * q0 + 8 * q2 + 4 * (q1 ^ (c & 1)) + (r & 3)


def kernel_header(a, name):
    a.raw(".p2align 8")
    a.raw(f".type {name},@function")
    a.label(name)


def kernel_desc(name, vgpr, sgpr, accum):
    return f""".amdhsa_kernel {name}
  .amdhsa_next_free_vgpr {vgpr}
  .amdhsa_next_free_sgpr {sgpr}
  .amdhsa_accum_offset {accum}
  .amdhsa_group_segment_fixed_size 0
  .amdhsa_kernarg_size 96
  .amdhsa_user_sgpr_count 2
  .amdhsa_user_sgpr_kernarg_segment_ptr 1
  .amdhsa_system_sgpr_workgroup_id_x 1
.end_amdhsa_kernel
"""
```

```python
NT = 125
TILE = 9216
BLK = 4608
WS_XA = 0
WS_U = WS_XA + 250 * TILE
WS_G = WS_U + 250 * TILE
WS_IB = WS_G + 250 * TILE
IB = 10240
WS_WF = WS_IB + 252 * IB
WS_DWF = WS_WF + 2 * 9 * BLK
WS_DBG = WS_DWF + 1024
WS_DBG = (WS_DBG + 4095) // 4096 * 4096
WS_END = WS_DBG + (8 << 20)
DB_CA = lambda b, h: 64 * (2 * b + h)
DB_CB = 32
DB_CW = 40
```

```python
import sys, json, math
from common import Asm, vr, ar, sr, kernel_header, kernel_desc
from lay import *

NAME = "standalone__conformer_family_branchformer__speech_kernel"
NWG = 254
RING = 4
LDS_RING = RING * TILE
LDS_TOTAL = 163840
SLOT = 4 * TILE
L_WU, L_WQ, L_WK = 0, 41984, 83968
L_XX, L_XR = 128000, 144384
L_QX, L_QR = 146432, 79872
L_MX = 162816
L_PC = 163836 - 0
L_DUMP = 123904
L_SP = 147456

S_X, S_WS, S_XA, S_DB, S_W1, S_W2, S_OUT, S_DW = 8, 12, 16, 20, 24, 28, 32, 36
S_W, S_B, S_H, S_QB, S_TOFF, S_CNT, S_DUM, S_LB, S_TOWN, S_TSND, S_VAL, S_REDO = range(40, 52)
S_T = 52
S_ST = 76

V_KA, V_VA, V_VR, V_DMA, V_L, V_T = 1, 3, 5, 6, 9, 13
V_S, V_CI, V_P, V_K, V_V = 16, 80, 96, 128, 164
V_HI = 200
V_X = 208
A_O, A_Q, A_F = 0, 144, 216

LOG2E = 1.4426950408889634
import struct
def f32(x): return "0x%08x" % struct.unpack("<I", struct.pack("<f", x))[0]


class BAsm(Asm):
    def __init__(self):
        super().__init__()
        self.bg, self.every, self.cnt, self.skip = [], 0, 0, 0

    def __call__(self, s):
        for l in s.split("\n"):
            l = l.strip()
            if not l: continue
            self.lines.append("    " + l)
            if self.bg and self.every and not l.startswith(("s_nop", "v_mov_b32", "v_exp", "v_rcp", "v_rsq", "v_sqrt", "s_add_u32 m0")):
                self.cnt += 1
                if self.cnt >= self.every:
                    self.cnt = 0
                    self.pop()

    def pop(self):
        for x in self.bg.pop(0).split("\n"): self.lines.append("    " + x)

    def flush(self):
        while self.bg: self.pop()
        self.every = 0


class G:
    def __init__(self, opt):
        self.o = opt
        self.a = BAsm()
        self.nst = 0
        self.fill = []

    def stamp(self, name):
        if self.o.get("stamps"):
            if name in self.o.get("skipst", []): return
            assert self.nst < 13
            self.a(f"{'s_memtime' if self.o.get('cyc') else 's_memrealtime'} {sr(S_ST + 2*self.nst, 2)}")
            self.stnames.append(name)
            self.nst += 1

    def srd(self, dst, lo, hi, n):
        self.a(f"s_mov_b32 {sr(dst)}, {sr(lo)}\ns_mov_b32 {sr(dst+1)}, {sr(hi)}\ns_mov_b32 {sr(dst+2)}, {n}\ns_mov_b32 {sr(dst+3)}, 0x20000")

    def greduce(self, regs, tmp, op="v_add_f32"):
        a = self.a
        for sw in ("32", "16"):
            for i, r in enumerate(regs): a(f"v_mov_b32 {vr(tmp+i)}, {vr(r)}")
            if len(regs) < 3: a("s_nop 1" if len(regs) == 1 else "s_nop 0")
            for i, r in enumerate(regs): a(f"v_permlane{sw}_swap_b32 {vr(r)}, {vr(tmp+i)}")
            for i, r in enumerate(regs): a(f"{op} {vr(r)}, {vr(r)}, {vr(tmp+i)}")

    def rbf(self, r):
        self.a(f"v_cvt_pk_bf16_f32 {vr(r)}, {vr(r)}, {vr(r)}\nv_lshlrev_b32 {vr(r)}, 16, {vr(r)}")

    def ln_tail(self, F, out, t, mimic):
        a = self.a
        p = lambda r: vr(r, 2)
        self.greduce([t, t + 1], t + 2)
        a(f"v_mul_f32 {vr(t+2)}, {f32(1.0/144)}, {vr(t)}")
        a(f"v_mul_f32 {vr(t+3)}, {vr(t+2)}, {vr(t+2)}")
        a(f"v_mov_b32 {vr(t+4)}, {f32(1.0/144)}")
        a(f"v_fma_f32 {vr(t)}, {vr(t+1)}, {vr(t+4)}, -{vr(t+3)}")
        a(f"v_max_f32 {vr(t)}, 0, {vr(t)}")
        if mimic:
            self.rbf(t)
            self.rbf(t + 2)
            a(f"v_add_f32 {vr(t)}, {f32(1e-5)}, {vr(t)}")
            self.rbf(t)
            a(f"v_sqrt_f32 {vr(t)}, {vr(t)}\ns_nop 0")
            self.rbf(t)
            a(f"v_rcp_f32 {vr(t)}, {vr(t)}\ns_nop 0")
        else:
            a(f"v_add_f32 {vr(t)}, {f32(1e-5)}, {vr(t)}")
            a(f"v_rsq_f32 {vr(t)}, {vr(t)}\ns_nop 0")
        a(f"v_mul_f32 {vr(t+2)}, -{vr(t+2)}, {vr(t)}")
        for i in range(18):
            a(f"v_pk_fma_f32 {p(F+2*i)}, {p(F+2*i)}, {p(t)}, {p(t+2)} op_sel_hi:[1,0,0]")
        for i in range(18):
            a(f"v_cvt_pk_bf16_f32 {vr(out+i)}, {vr(F+2*i)}, {vr(F+2*i+1)}")

    def ln_packed(self, X, F, out, t):
        a = self.a
        a(f"v_mov_b32 {vr(t+6)}, 0x3f803f80")
        for k in range(4): a(f"v_mov_b32 {vr(t+k)}, 0")
        for i in range(18):
            a(f"v_dot2_f32_bf16 {vr(t+2*(i&1))}, {vr(X+i)}, {vr(t+6)}, {vr(t+2*(i&1))}")
            a(f"v_dot2_f32_bf16 {vr(t+1+2*(i&1))}, {vr(X+i)}, {vr(X+i)}, {vr(t+1+2*(i&1))}")
        for i in range(2):
            a(f"v_lshlrev_b32 {vr(F+2*i)}, 16, {vr(X+i)}\nv_and_b32 {vr(F+2*i+1)}, 0xffff0000, {vr(X+i)}")
        a(f"v_pk_add_f32 {vr(t,2)}, {vr(t,2)}, {vr(t+2,2)}")
        un = []
        for i in range(2, 18):
            un.append(f"v_lshlrev_b32 {vr(F+2*i)}, 16, {vr(X+i)}\nv_and_b32 {vr(F+2*i+1)}, 0xffff0000, {vr(X+i)}")
        sv = (a.bg, a.every, a.cnt, a.skip)
        n0 = len(a.lines)
        a.bg, a.every = [], 0
        self.ln_tail(F, out, t, True)
        tail = a.lines[n0:]
        del a.lines[n0:]
        a.bg, a.every, a.cnt, a.skip = sv
        k = next(i for i, l in enumerate(tail) if "v_pk_fma" in l)
        for i, l in enumerate(tail[:k]):
            if "s_nop" in l and un: continue_nop = True
            a(l)
            if un and not l.strip().startswith("s_nop"): a(un.pop(0))
        while un: a(un.pop(0))
        for l in tail[k:]: a(l)

    def ln_f32(self, F, out, t):
        a = self.a
        p = lambda r: vr(r, 2)
        a(f"v_pk_add_f32 {p(t)}, {p(F)}, {p(F+2)}\nv_pk_add_f32 {p(t+2)}, {p(F+4)}, {p(F+6)}")
        a(f"v_pk_mul_f32 {p(t+4)}, {p(F)}, {p(F)}\nv_pk_mul_f32 {p(t+6)}, {p(F+2)}, {p(F+2)}")
        for i in range(2, 18):
            if i >= 4: a(f"v_pk_add_f32 {p(t+2*(i&1))}, {p(t+2*(i&1))}, {p(F+2*i)}")
            a(f"v_pk_fma_f32 {p(t+4+2*(i&1))}, {p(F+2*i)}, {p(F+2*i)}, {p(t+4+2*(i&1))}")
        a(f"v_pk_add_f32 {p(t)}, {p(t)}, {p(t+2)}\nv_pk_add_f32 {p(t+4)}, {p(t+4)}, {p(t+6)}")
        a(f"v_add_f32 {vr(t)}, {vr(t)}, {vr(t+1)}\nv_add_f32 {vr(t+1)}, {vr(t+4)}, {vr(t+5)}")
        self.ln_tail(F, out, t, False)

    def gemm_m(self, areads, breads, AF, B4, ACC, pre_a=False, rf=vr, extra=()):
        a = self.a
        units = [(0, j) for j in range(4)] + [(1, j) for j in range(4)] + [(2, 0)]
        rd = [([] if pre_a else areads(s)) + breads(s) for s in range(5)]
        extra = list(extra)
        for x in rd[0] + rd[1]: a(x)
        younger = len(rd[1])
        for s in range(5):
            nxt = list(rd[s + 2]) if s + 2 < 5 else []
            a(f"s_waitcnt lgkmcnt({min(15, younger)})")
            k = min(len(extra), 9 - len(nxt))
            nxt, extra = extra[:k] + nxt, extra[k:]
            younger = len(rd[s + 2]) if s + 2 < 5 else (k if s + 1 < 5 else 0)
            for u, (t, j) in enumerate(units):
                d = vr(ACC + 4 * u, 4)
                if s < 4:
                    a(f"v_mfma_f32_16x16x32_bf16 {d}, {rf(AF+18*t+4*s,4)}, {vr(B4+18*j+4*s,4)}, {'0' if s == 0 else d}")
                else:
                    a(f"v_mfma_f32_16x16x16_bf16 {d}, {rf(AF+18*t+16,2)}, {vr(B4+18*j+16,2)}, {d}")
                n = 0
                if nxt: a(nxt.pop(0)); n += 1
                if len(nxt) > 8 - u: a(nxt.pop(0)); n += 1
                for _ in range(2 - n):
                    if self.fill: a(self.fill.pop(0))
            while nxt: a(nxt.pop(0))
        for x in extra: a(x)
        a("s_nop 7")

    def gemm(self, reads, B, ACC, AF):
        a = self.a
        buf = lambda T: AF + 18 * (T % 3)
        for s in reads(0, buf(0)): a(s)
        for s in reads(1, buf(1)): a(s)
        for T in range(9):
            nx = reads(T + 2, buf(T + 2)) if T + 2 < 9 else []
            a(f"s_waitcnt lgkmcnt({9 if T + 1 < 9 else 0})")
            d = vr(ACC + 4 * T, 4)
            seq = []
            for s in range(4):
                seq.append(f"v_mfma_f32_16x16x32_bf16 {d}, {vr(buf(T)+4*s,4)}, {vr(B+4*s,4)}, {'0' if s == 0 else d}")
                if s == 1 and T > 0:
                    dp = vr(ACC + 4 * (T - 1), 4)
                    seq.append(f"v_mfma_f32_16x16x16_bf16 {dp}, {vr(buf(T-1)+16,2)}, {vr(B+16,2)}, {dp}")
            k = 0
            for i, m in enumerate(seq):
                a(m)
                for _ in range(2):
                    if k < len(nx): a(nx[k]); k += 1
                for _ in range(self.o.get("zper", 1)):
                    if self.fill: a(self.fill.pop(0))
            while k < len(nx): a(nx[k]); k += 1
        dp = vr(ACC + 32, 4)
        a("s_nop 5")
        a(f"v_mfma_f32_16x16x16_bf16 {dp}, {vr(buf(8)+16,2)}, {vr(B+16,2)}, {dp}")
        a("s_nop 7")

    def tr_reads(self, ad):
        def f(T, dst):
            out = []
            for s in range(4):
                for u in range(2):
                    out.append(f"ds_read_b64_tr_b16 {vr(dst+4*s+2*u,2)}, {vr(ad+u)} offset:{9216*s + 32*T}")
            out.append(f"ds_read_b64_tr_b16 {vr(dst+16,2)}, {vr(ad+2)} offset:{36864 + 32*T}")
            return out
        return f

    def row_reads(self, ad, sw=None):
        def f(T, dst):
            r = ad if sw is None or T == 8 else sw[T & 1]
            out = []
            for s in range(4):
                for u in range(2):
                    out.append(f"ds_read_b64 {vr(dst+4*s+2*u,2)}, {vr(r)} offset:{4864*T + 64*s + 32*u}")
            out.append(f"ds_read_b64 {vr(dst+16,2)}, {vr(r)} offset:{4864*T + 256}")
            return out
        return f

    def dma_rows(self, jobs, cpr, rstride, vo, vc, n_first, first_waves, lab):
        a = self.a
        mul = {18: 3641, 19: 3450}[cpr]
        dr, dc = 256 // cpr, 256 % cpr
        a(f"s_lshl_b32 {sr(S_T)}, {sr(S_W)}, 6")
        a(f"v_add_u32 {vr(vc)}, {sr(S_T)}, v0")
        a(f"v_mul_u32_u24 {vr(vo)}, {mul}, {vr(vc)}")
        a(f"v_lshrrev_b32 {vr(vo)}, 16, {vr(vo)}")
        a(f"v_mul_u32_u24 {vr(vc+1)}, {cpr}, {vr(vo)}")
        a(f"v_sub_u32 {vr(vc)}, {vr(vc)}, {vr(vc+1)}")
        a(f"v_mul_u32_u24 {vr(vo)}, {rstride}, {vr(vo)}")
        a(f"v_lshl_add_u32 {vr(vo)}, {vr(vc)}, 4, {vr(vo)}")
        a(f"s_lshl_b32 {sr(S_T)}, {sr(S_W)}, 10")
        a(f"v_mov_b32 {vr(vc+1)}, {rstride - 16*cpr}")
        for k in range(n_first):
            if k == n_first - 1:
                a(f"s_cmp_ge_u32 {sr(S_W)}, {first_waves}\ns_cbranch_scc1 {lab}")
            for srd, so, lb in jobs:
                a(f"s_add_u32 m0, {sr(S_T)}, {lb + 4096*k}")
                a("s_nop 0")
                a(f"buffer_load_dwordx4 {vr(vo)}, {sr(srd,4)}, {so} offen lds")
            if k < n_first - 1:
                a(f"v_add_u32 {vr(vc)}, {dc}, {vr(vc)}")
                a(f"v_cmp_le_u32 vcc, {cpr}, {vr(vc)}")
                a(f"v_add_u32 {vr(vo)}, {dr*rstride + 16*dc}, {vr(vo)}")
                a(f"v_subrev_u32 {vr(vc+2)}, {cpr}, {vr(vc)}")
                a(f"v_cndmask_b32 {vr(vc)}, {vr(vc)}, {vr(vc+2)}, vcc")
                a(f"v_cndmask_b32 {vr(vc+2)}, 0, {vr(vc+1)}, vcc")
                a(f"v_add_u32 {vr(vo)}, {vr(vo)}, {vr(vc+2)}")
        a.label(lab)

    def voff_table(self, dst, cpr, rstride, vc):
        a = self.a
        mul = {18: 29128, 19: 27595}[cpr]
        a(f"s_mov_b32 {sr(S_T)}, {rstride - 16*cpr}")
        a(f"v_mul_u32_u24 {vr(dst)}, {mul}, {vr(vc)}")
        for k in range(1, 11): a(f"v_add_u32 {vr(dst+k)}, {(256*k % cpr)*mul}, {vr(dst)}")
        for k in range(11): a(f"v_lshrrev_b32 {vr(dst+k)}, 19, {vr(dst+k)}")
        for k in range(11): a(f"v_mad_i32_i24 {vr(dst+k)}, {vr(dst+k)}, {sr(S_T)}, {vr(vc+1)}")

    def dma_lin(self, srd, soff, lb, v16, lab):
        a = self.a
        a(f"s_lshl_b32 {sr(S_T)}, {sr(S_W)}, 10")
        for k in range(11):
            if k == 10:
                a(f"s_cmp_ge_u32 {sr(S_W)}, 1\ns_cbranch_scc1 {lab}")
            a(f"s_add_u32 m0, {sr(S_T)}, {lb + 4096*k}")
            a(f"s_add_u32 {sr(S_T+1)}, {sr(S_T)}, {soff + 4096*k}")
            a(f"buffer_load_dwordx4 {vr(v16)}, {sr(srd,4)}, {sr(S_T+1)} offen lds")
        a.label(lab)

    def tr_addr(self, ad, base, swapped, t):
        a = self.a
        a(f"v_lshrrev_b32 {vr(t)}, 2, v0")
        a(f"v_mul_u32_u24 {vr(t)}, 288, {vr(t)}")
        a(f"v_and_b32 {vr(t+1)}, 3, v0")
        a(f"v_lshl_add_u32 {vr(t)}, {vr(t+1)}, 3, {vr(t)}")
        a(f"v_add_u32 {vr(ad+2)}, {base}, {vr(t)}")
        if swapped:
            a(f"v_bfe_u32 {vr(t)}, v0, 4, 1")
            a(f"v_mul_u32_u24 {vr(t)}, {16*288}, {vr(t)}")
            a(f"v_add_u32 {vr(ad)}, {vr(ad+2)}, {vr(t)}")
            a(f"v_sub_u32 {vr(ad+1)}, {vr(ad+2)}, {vr(t)}")
            a(f"v_add_u32 {vr(ad+1)}, {16*288}, {vr(ad+1)}")
        else:
            a(f"v_mov_b32 {vr(ad)}, {vr(ad+2)}")
            a(f"v_add_u32 {vr(ad+1)}, {16*288}, {vr(ad+2)}")

    def row_addr(self, ad, base, t):
        a = self.a
        a(f"v_and_b32 {vr(t)}, 15, v0")
        a(f"v_mul_u32_u24 {vr(t)}, 304, {vr(t)}")
        a(f"v_lshrrev_b32 {vr(t+1)}, 4, v0")
        a(f"v_lshl_add_u32 {vr(t)}, {vr(t+1)}, 3, {vr(t)}")
        a(f"v_add_u32 {vr(ad)}, {base}, {vr(t)}")

    def store_block(self, src, v16, v8, srd, soff, soff2, flags=""):
        a = self.a
        for s in range(4):
            a(f"buffer_store_dwordx4 {vr(src+4*s,4)}, {vr(v16)}, {sr(srd,4)}, {sr(soff)} offen offset:{1024*s} {flags}")
        a(f"buffer_store_dwordx2 {vr(src+16,2)}, {vr(v8)}, {sr(srd,4)}, {sr(soff2)} offen {flags}")

    def entry(self):
        a = self.a
        kernel_header(a, NAME)
        a(f"s_load_dwordx4 s[56:59], s[0:1], 0")
        a(f"s_getpc_b64 {sr(S_W1,2)}")
        a.label("L_pf")
        a(f"""s_mov_b32 {sr(S_W1+2)}, L_fallback-L_pf
        s_mov_b32 {sr(S_W1+3)}, 0x20000
        v_lshlrev_b32 v1, 4, v0
        s_bfe_u32 {sr(S_T)}, s2, 0x30003
        s_lshl_b32 {sr(S_T)}, {sr(S_T)}, 12
        buffer_load_dwordx4 v[252:255], v1, {sr(S_W1,4)}, 0 offen
        buffer_load_dwordx4 v[252:255], v1, {sr(S_W1,4)}, {sr(S_T)} offen""")
        a(f"s_cmp_ge_u32 s2, {NWG}\ns_cbranch_scc1 L_end")
        self.stamp("start")
        a(f"s_load_dwordx4 s[60:63], s[0:1], 80")
        a(f"s_load_dwordx4 s[64:67], s[0:1], 40")
        a(f"s_load_dwordx4 s[68:71], s[0:1], 16")
        a(f"s_load_dwordx4 s[72:75], s[0:1], 64")
        a(f"v_lshrrev_b32 v1, 6, v0")
        a(f"s_and_b32 {sr(S_H)}, s2, 1")
        a(f"v_readfirstlane_b32 {sr(S_W)}, v1")
        a(f"s_bfe_u32 {sr(S_B)}, s2, 0x10001")
        a(f"s_lshr_b32 {sr(S_QB)}, s2, 2")
        a(f"v_and_b32 v0, 63, v0")
        a(f"v_lshlrev_b32 {vr(V_DMA)}, 4, v0")
        a(f"s_cmp_ge_u32 s2, 252\ns_cbranch_scc1 L_wfuse")

    def phase_a(self):
        a, o = self.a, self.o
        XR, XF, XA, BF, ACC, AF, TM = 16, 34, 70, 88, 112, 148, 208
        B4, XD = 16, 88
        VK, VQ8, VS = 224, 235, 202
        VU = 88
        AD = 240
        VR4 = 106
        T = S_T
        WV = S_T + 20
        a(f"""s_lshl_b32 {sr(T)}, {sr(S_QB)}, 1
        s_add_u32 {sr(S_TOWN)}, {sr(T)}, {sr(S_H)}
        s_xor_b32 {sr(S_TSND)}, {sr(S_TOWN)}, 1
        s_cmp_lt_u32 {sr(S_TOWN)}, {NT}
        s_cselect_b32 {sr(S_VAL)}, 1, 0
        s_cmp_lt_u32 {sr(S_W)}, 2
        s_cselect_b32 {sr(T+3)}, {sr(S_TSND)}, {sr(S_TOWN)}
        s_mul_i32 {sr(T)}, {sr(S_B)}, {NT}
        s_add_u32 {sr(S_TOWN)}, {sr(S_TOWN)}, {sr(T)}
        s_add_u32 {sr(S_TSND)}, {sr(S_TSND)}, {sr(T)}
        s_add_u32 {sr(T+1)}, {sr(T+3)}, {sr(T)}
        s_lshl_b32 {sr(T+1)}, {sr(T+1)}, 1
        s_and_b32 {sr(T+2)}, {sr(S_W)}, 1
        s_add_u32 {sr(T+2)}, {sr(T+1)}, {sr(T+2)}
        s_mul_i32 {sr(T+1)}, {sr(T+2)}, {16*288}
        s_mul_i32 {sr(S_LB)}, {sr(S_W)}, 5120
        s_add_u32 {sr(S_LB)}, {sr(S_LB)}, {L_WK}
        s_mov_b32 m0, {sr(S_LB)}
        s_mov_b32 {sr(S_X+2)}, 2304000
        s_mov_b32 {sr(S_X+3)}, 0x20000
        s_add_u32 {sr(S_CNT)}, {sr(T+1)}, 4096
        s_waitcnt lgkmcnt(0)
        s_mov_b32 {sr(S_X)}, s56
        s_mov_b32 {sr(S_X+1)}, s57""")
        for k in range(4): a(f"buffer_load_dwordx4 {vr(V_DMA)}, {sr(S_X,4)}, {sr(T+1)} offen offset:{1024*k} lds")
        a(f"s_add_u32 m0, {sr(S_LB)}, 4096\ns_mov_b32 exec_hi, 0\nbuffer_load_dwordx4 {vr(V_DMA)}, {sr(S_X,4)}, {sr(S_CNT)} offen lds\ns_mov_b32 exec_hi, -1")
        self.stamp("xiss")
        self.srd(S_OUT, 74, 75, 2304000)
        a(f"s_cmp_lt_u32 {sr(T+3)}, {NT}\ns_cselect_b32 {sr(WV)}, 1, 0\ns_mov_b32 {sr(WV+1)}, {sr(T+2)}")
        SQ, SK, SU = S_W2, S_W1, S_XA
        self.srd(SU, 64, 65, 82944)
        self.srd(SQ, 58, 59, 41472)
        self.srd(SK, 68, 69, 41472)
        a(f"s_lshr_b32 {sr(T+2)}, s2, 3\ns_lshl_b32 {sr(T+2)}, {sr(T+2)}, 2\ns_add_u32 {sr(T+2)}, {sr(T+2)}, {sr(S_W)}")
        npf = 3
        for srd_, rot in ((SU, 46), (SQ, 0), (SK, 87)):
            a(f"s_add_u32 {sr(T+3)}, {sr(T+2)}, {rot}\ns_and_b32 {sr(T+3)}, {sr(T+3)}, 127\ns_lshl_b32 {sr(T+3)}, {sr(T+3)}, 10")
            a(f"buffer_load_dwordx4 v[252:255], {vr(V_DMA)}, {sr(srd_,4)}, {sr(T+3)} offen")
        W10, UOFF, M1, M3 = S_T + 22, S_T + 23, S_T + 18, S_T + 19
        a(f"""s_lshl_b32 {sr(W10)}, {sr(S_W)}, 10
        s_mul_i32 {sr(UOFF)}, {sr(S_H)}, 288
        s_cmp_eq_u32 {sr(S_W)}, 0
        s_cselect_b32 {sr(M1)}, 0, {L_DUMP}
        s_cmp_lt_u32 {sr(S_W)}, 3
        s_cselect_b32 {sr(M3)}, {sr(W10)}, {L_DUMP}""")
        gq = [f"s_add_u32 m0, {sr(W10 if k < 10 else M1)}, {L_WQ + 4096*k}\ns_add_u32 {sr(S_CNT)}, {sr(W10)}, {4096*k}\nbuffer_load_dwordx4 {vr(V_DMA)}, {sr(SQ,4)}, {sr(S_CNT)} offen lds" for k in range(11)]
        gk = [f"s_add_u32 m0, {sr(W10 if k < 10 else M3)}, {L_WK + 4096*k}\ns_mov_b32 {sr(S_CNT)}, {4096*k - 16*(256*k//19)}\nbuffer_load_dwordx4 {vr(VK+k)}, {sr(SK,4)}, {sr(S_CNT)} offen lds" for k in range(11)]
        gu = [f"s_add_u32 m0, {sr(W10 if k < 10 else M1)}, {L_WU + 4096*k}\ns_add_u32 {sr(S_CNT)}, {sr(UOFF)}, {4096*k + 288*(256*k//18)}\nbuffer_load_dwordx4 {vr(VU+k)}, {sr(SU,4)}, {sr(S_CNT)} offen lds" for k in range(11)]
        allg = gu + gq + gk
        a(f"s_lshl_b32 {sr(T)}, {sr(S_W)}, 6\nv_add_u32 {vr(TM+14)}, {sr(T)}, v0\nv_lshlrev_b32 {vr(TM+15)}, 4, {vr(TM+14)}")
        self.voff_table(VU, 18, 576, TM + 14)
        self.srd(S_WS, 62, 63, WS_END)
        t0, t1, t2 = TM + 10, TM + 11, TM + 12
        a(f"""v_and_b32 {vr(t0)}, 15, v0
        v_lshrrev_b32 {vr(t1)}, 5, v0
        v_lshlrev_b32 {vr(t1)}, 3, {vr(t1)}
        v_xor_b32 {vr(t1)}, {vr(t0)}, {vr(t1)}
        v_lshlrev_b32 {vr(t1)}, 4, {vr(t1)}
        v_lshrrev_b32 {vr(t2)}, 4, v0
        v_lshl_add_u32 {vr(V_KA)}, {vr(t2)}, 9, {vr(t1)}
        v_lshrrev_b32 {vr(t1)}, 3, {vr(t0)}
        v_lshlrev_b32 {vr(t1)}, 1, {vr(t1)}
        v_xor_b32 {vr(t1)}, {vr(t2)}, {vr(t1)}
        v_lshl_add_u32 {vr(t1)}, {vr(t0)}, 2, {vr(t1)}
        v_lshlrev_b32 {vr(V_KA+1)}, 3, {vr(t1)}
        v_lshlrev_b32 {vr(AD+6)}, 3, v0""")
        a(f"""v_and_b32 v3, 15, v0
        v_mul_u32_u24 v3, 288, v3
        v_lshrrev_b32 v4, 4, v0
        v_lshl_add_u32 v3, v4, 3, v3
        v_add_u32 v5, {sr(S_LB)}, v3
        v_and_b32 v4, 1, v4
        v_lshlrev_b32 v4, 5, v4
        v_add_u32 v3, v5, v4
        v_xor_b32 v4, 32, v4
        v_add_u32 v4, v5, v4""")
        self.tr_addr(AD, L_WU, True, t0)
        for j in range(4):
            a(f"s_add_u32 {sr(T)}, {sr(S_W)}, {j}\ns_and_b32 {sr(T)}, {sr(T)}, 3\ns_lshl_b32 {sr(T+1)}, {sr(T)}, 12\ns_add_u32 {sr(T+1)}, {sr(T+1)}, {L_XX}")
            a(f"s_lshl_b32 {sr(T)}, {sr(T)}, 9\ns_add_u32 {sr(T)}, {sr(T)}, {L_QR}")
            a(f"v_add_u32 {vr(VS+j)}, {sr(T+1)}, {vr(V_DMA)}\nv_add_u32 {vr(VR4+j)}, {sr(T)}, {vr(AD+6)}")
        npre = o.get("npre", 11)
        self.stamp("pre")
        for g_ in allg[:npre]: a(g_)
        self.voff_table(VK, 19, 288, TM + 14)
        self.srd(S_DB, 60, 61, 256)
        self.srd(S_DW, 66, 67, 864)
        self.stamp("wiss")
        a(f"s_waitcnt vmcnt({npf + npre})")
        self.stamp("xarr")
        for s in range(4):
            a(f"ds_read_b64 {vr(XR+4*s,2)}, v3 offset:{64*s}\nds_read_b64 {vr(XR+4*s+2,2)}, v4 offset:{64*s}")
        a(f"ds_read_b64 {vr(XR+16,2)}, v5 offset:256")
        for g_ in allg[npre:npre + o.get("nmid", 2)]: a(g_)
        npre += o.get("nmid", 2)
        a("s_waitcnt lgkmcnt(0)")
        nis = npre + o.get("nln", 7)
        assert nis >= 11
        a.bg, a.every, a.cnt = allg[npre:nis], o.get("evln", 18), 0
        self.ln_packed(XR, XF, XA, TM)
        a.flush()
        a(f"""s_cmp_lt_u32 {sr(S_W)}, 2
        s_cbranch_scc1 L_nopub
        s_cmp_eq_u32 {sr(S_VAL)}, 0
        s_cbranch_scc1 L_nopub
        s_and_b32 {sr(T)}, {sr(S_W)}, 1
        s_mul_i32 {sr(T+2)}, {sr(S_TOWN)}, {TILE}
        s_lshl_b32 {sr(T+3)}, {sr(T)}, 8
        s_add_u32 {sr(T+3)}, {sr(T+3)}, {sr(T+2)}
        s_add_u32 {sr(T+4)}, {sr(T+3)}, 4096
        s_lshl_b32 {sr(T+5)}, {sr(T)}, 9
        s_add_u32 {sr(T+5)}, {sr(T+5)}, {sr(T+2)}
        s_add_u32 {sr(T+5)}, {sr(T+5)}, 8192""")
        for s in range(4):
            a(f"buffer_store_dwordx4 {vr(XA+4*s,4)}, {vr(V_KA)}, {sr(S_WS,4)}, {sr(T+3+(s>>1))} offen offset:{2048*(s&1)} sc1")
        a(f"buffer_store_dwordx2 {vr(XA+16,2)}, {vr(V_KA+1)}, {sr(S_WS,4)}, {sr(T+5)} offen sc1")
        a("s_branch L_bar1")
        a.label("L_nopub")
        a(f"""s_mul_i32 {sr(T)}, s2, {IB}
        s_and_b32 {sr(T+1)}, {sr(S_W)}, 1
        s_mul_i32 {sr(T+1)}, {sr(T+1)}, 5120
        s_add_u32 {sr(T)}, {sr(T)}, {sr(T+1)}
        s_add_u32 {sr(T)}, {sr(T)}, {WS_IB}
        s_add_u32 {sr(T+1)}, {sr(T)}, 4096""")
        for i in range(4): a(f"v_mov_b32 {vr(XR+i)}, -1")
        for i in range(4): a(f"buffer_store_dwordx4 {vr(XR,4)}, {vr(V_DMA)}, {sr(S_WS,4)}, {sr(T)} offen offset:{1024*i} sc1")
        a(f"buffer_store_dwordx4 {vr(XR,4)}, {vr(V_DMA)}, {sr(S_WS,4)}, {sr(T+1)} offen sc1")
        a.label("L_bar1")
        self.stamp("pub")
        for s in range(4): a(f"ds_write_b128 {vr(VS)}, {vr(XA+4*s,4)} offset:{1024*s}")
        a(f"ds_write_b64 {vr(VR4)}, {vr(XA+16,2)} offset:{L_XR - L_QR}")
        a(f"v_mov_b32 {vr(t0)}, {L_MX}\nv_mov_b32 {vr(t1)}, 0\nds_write_b32 {vr(t0)}, {vr(t1)}")
        a(f"s_waitcnt vmcnt({nis - 11 + 5}) lgkmcnt(0)\ns_barrier")
        self.stamp("bar1")
        self.fill = [f"v_accvgpr_write_b32 {ar(A_O+i)}, 0" for i in range(144)]
        zf, self.fill = self.fill, []
        nu = min(33, nis + o.get("nu", 8))
        a.bg, a.every, a.cnt = allg[nis:nu], o.get("evu", 15), 0
        self.gemm(self.tr_reads(AD), XA, ACC, AF)
        a.flush()
        self.stamp("up")
        a(f"""s_cmp_lt_u32 {sr(S_W)}, 2
        s_cbranch_scc1 L_sig
        s_cmp_eq_u32 {sr(S_VAL)}, 0
        s_cbranch_scc1 L_sig
        s_waitcnt vmcnt({nu - nis})
        v_mov_b32 {vr(t0)}, {L_MX}
        v_mov_b32 {vr(t1)}, 1
        s_mov_b64 exec, 1
        ds_add_rtn_u32 {vr(t2)}, {vr(t0)}, {vr(t1)}
        s_sub_u32 {sr(T)}, {sr(S_TOWN)}, 63
        s_mul_i32 {sr(T+1)}, {sr(S_B)}, {NT}
        s_cmp_ge_i32 {sr(T)}, {sr(T+1)}
        s_cselect_b32 {sr(T)}, 64, 0
        s_lshl_b32 {sr(T+1)}, {sr(S_B)}, 7
        s_add_u32 {sr(T)}, {sr(T)}, {sr(T+1)}
        s_waitcnt lgkmcnt(0)
        v_readfirstlane_b32 {sr(T+1)}, {vr(t2)}
        v_mov_b32 {vr(t0)}, {sr(T)}
        s_cmp_eq_u32 {sr(T+1)}, 1
        s_cbranch_scc0 L_sig0
        buffer_atomic_add {vr(t1)}, {vr(t0)}, {sr(S_DB,4)}, 0 offen sc1""")
        a.label("L_sig0")
        a("s_mov_b64 exec, -1")
        a.label("L_sig")
        self.stamp("sig")
        for j in range(4):
            for s in range(4): a(f"ds_read_b128 {vr(B4+18*j+4*s,4)}, {vr(VS+j)} offset:{1024*s}")
            a(f"ds_read_b64 {vr(B4+18*j+16,2)}, {vr(VR4+j)} offset:{L_XR - L_QR}")
        for j in range(4): a(f"v_add_u32 {vr(VS+j)}, {sr(W10)}, {vr(VS+j)}")
        p = lambda r: vr(r, 2)
        CC = TM
        c1 = -2.0 * math.sqrt(2.0 / math.pi) * LOG2E
        c2 = c1 * 0.044715
        a(f"v_mov_b32 {vr(CC)}, {f32(c1)}\nv_mov_b32 {vr(CC+2)}, {f32(c2)}\nv_mov_b32 {vr(CC+4)}, 1.0")
        G_ = AF
        a.bg, a.every, a.cnt = allg[nu:], o.get("evg", 8), 0
        for i in range(18): a(f"v_pk_mul_f32 {p(G_+2*i)}, {p(ACC+2*i)}, {p(ACC+2*i)}")
        for i in range(18): a(f"v_pk_fma_f32 {p(G_+2*i)}, {p(G_+2*i)}, {p(CC+2)}, {p(CC)} op_sel_hi:[1,0,0]")
        for i in range(18): a(f"v_pk_mul_f32 {p(G_+2*i)}, {p(G_+2*i)}, {p(ACC+2*i)}")
        for i in range(36): a(f"v_exp_f32 {vr(G_+i)}, {vr(G_+i)}")
        for i in range(18): a(f"v_pk_add_f32 {p(G_+2*i)}, {p(G_+2*i)}, {p(CC+4)} op_sel_hi:[1,0]")
        a.flush()
        for i in range(36): a(f"v_rcp_f32 {vr(G_+i)}, {vr(G_+i)}")
        for i in range(18): a(f"v_pk_mul_f32 {p(ACC+2*i)}, {p(G_+2*i)}, {p(ACC+2*i)}")
        UG = AF
        a(f"""s_mul_i32 {sr(T)}, {sr(WV+1)}, {BLK}
        s_cmp_eq_u32 {sr(S_H)}, 1
        s_cbranch_scc1 L_ln2
        s_add_u32 {sr(T)}, {sr(T)}, {WS_U}""")
        for i in range(18): a(f"v_cvt_pk_bf16_f32 {vr(UG+i)}, {vr(ACC+2*i)}, {vr(ACC+2*i+1)}")
        a("s_branch L_ug")
        a.label("L_ln2")
        a(f"s_add_u32 {sr(T)}, {sr(T)}, {WS_G}")
        self.ln_f32(ACC, UG, TM)
        a.label("L_ug")
        a(f"s_cmp_eq_u32 {sr(WV)}, 1\ns_cselect_b32 {sr(T)}, {sr(T)}, 0x40000000\ns_add_u32 {sr(T+1)}, {sr(T)}, 4096")
        self.store_block(UG, V_DMA, AD + 6, S_WS, T, T + 1, "sc1")
        self.stamp("ug")
        a("s_waitcnt lgkmcnt(0)")
        for j in range(4): a(f"ds_read_b128 {vr(XD+4*j,4)}, {vr(VS+j)}")
        a(f"v_mov_b32 {vr(XD+16)}, {vr(B4+16)}\nv_mov_b32 {vr(XD+17)}, {vr(B4+17)}")
        a(f"s_lshl_b32 {sr(T)}, {sr(S_W)}, 6\ns_add_u32 {sr(T)}, {sr(T)}, {L_WQ - L_WU}")
        for k in range(3):
            a(f"v_add_u32 {vr(AD+3+k)}, {sr(T)}, {vr(AD+k)}\nv_add_u32 {vr(VQ8+k)}, {L_WQ - L_WU + 256}, {vr(AD+k)}")
        self.row_addr(AD + 9, L_WK + 8 * 4864, t0)
        a(f"""s_mul_i32 {sr(T)}, {sr(S_W)}, {2*4864}
        s_sub_u32 {sr(T)}, {sr(T)}, {8*4864}
        v_add_u32 {vr(t1)}, {sr(T)}, {vr(AD+9)}
        v_bfe_u32 {vr(t0)}, v0, 2, 1
        v_mul_u32_u24 {vr(t0)}, 4864, {vr(t0)}
        v_add_u32 {vr(AD+7)}, {vr(t1)}, {vr(t0)}
        v_sub_u32 {vr(AD+8)}, {vr(t1)}, {vr(t0)}
        s_waitcnt vmcnt(5) lgkmcnt(0)
        s_barrier""")
        self.stamp("bar2")

        def a_tr(s):
            out = []
            for t in range(3):
                ad, off = (AD + 3, 32 * t) if t < 2 else (VQ8, 0)
                if s < 4:
                    for u in range(2): out.append(f"ds_read_b64_tr_b16 {vr(AF+18*t+4*s+2*u,2)}, {vr(ad+u)} offset:{9216*s + off}")
                else: out.append(f"ds_read_b64_tr_b16 {vr(AF+18*t+16,2)}, {vr(ad+2)} offset:{36864 + off}")
            return out

        def a_row(s):
            out = []
            for t in range(3):
                ad, off = (AD + 7 + t, 4864 * t) if t < 2 else (AD + 9, 0)
                if s < 4:
                    for u in range(2): out.append(f"ds_read_b64 {ar(A_Q+18*t+4*s+2*u,2)}, {vr(ad)} offset:{off + 64*s + 32*u}")
                else: out.append(f"ds_read_b64 {ar(A_Q+18*t+16,2)}, {vr(ad)} offset:{off + 256}")
            return out

        def pack_units(dst):
            for j in range(4):
                for t in range(2):
                    for h in range(2):
                        r = ACC + 16 * t + 4 * j + 2 * h
                        a(f"v_cvt_pk_bf16_f32 {vr(dst+4*j+2*t+h)}, {vr(r)}, {vr(r+1)}")
            for h in range(2): a(f"v_cvt_pk_bf16_f32 {vr(dst+16+h)}, {vr(ACC+32+2*h)}, {vr(ACC+33+2*h)}")
        self.fill = zf[:72]
        a(f"""s_lshl_b32 {sr(T)}, s2, 6
        s_and_b32 {sr(T)}, {sr(T)}, 0xff
        v_mov_b32 {vr(TM)}, {sr(T)}
        buffer_load_dword {vr(TM+1)}, {vr(TM)}, {sr(S_DB,4)}, 0 offen sc1""")
        self.gemm_m(a_tr, lambda s: [], AF, B4, ACC, extra=[x for s in range(5) for x in a_row(s)])
        PK = TM - 6 + 0
        PK = 184
        pack_units(B4)
        for j in range(4): a(f"ds_write_b128 {vr(VS+j)}, {vr(B4+4*j,4)}")
        a(f"ds_write_b64 {vr(VR4)}, {vr(B4+16,2)} offset:{L_XR - L_QR}")
        for j in range(4): a(f"v_subrev_u32 {vr(VS+j)}, {sr(W10)}, {vr(VS+j)}")
        self.stamp("q")
        a(f"""s_cmp_lg_u32 {sr(S_W)}, 0
        s_cbranch_scc1 L_bar3
        s_sub_u32 {sr(T+1)}, 63, {sr(S_H)}
        s_mov_b32 {sr(T+2)}, 0
        s_branch L_pollc""")
        a.label("L_poll")
        a(f"buffer_load_dword {vr(TM+1)}, {vr(TM)}, {sr(S_DB,4)}, 0 offen sc1")
        a.label("L_pollc")
        a(f"""s_add_u32 {sr(T+2)}, {sr(T+2)}, 1
        s_waitcnt vmcnt(0)
        v_readfirstlane_b32 {sr(T+3)}, {vr(TM+1)}
        s_cmp_ge_u32 {sr(T+3)}, {sr(T+1)}
        s_cbranch_scc1 L_bar3
        s_cmp_lt_u32 {sr(T+2)}, 0x40000
        s_cbranch_scc1 L_poll""")
        a.label("L_bar3")
        a(f"""s_mul_i32 {sr(T)}, {sr(S_B)}, {NT}
        s_mul_i32 {sr(T+1)}, {sr(S_H)}, 63
        s_add_u32 {sr(T+1)}, {sr(T+1)}, {sr(T)}
        s_mul_i32 {sr(T+1)}, {sr(T+1)}, {TILE}
        s_add_u32 {sr(S_XA)}, {sr(S_WS)}, {sr(T+1)}
        s_addc_u32 {sr(S_XA+1)}, {sr(S_WS+1)}, 0
        s_sub_u32 {sr(T+2)}, 63, {sr(S_H)}
        s_mul_i32 {sr(S_XA+2)}, {sr(T+2)}, {TILE}
        s_mov_b32 {sr(S_XA+3)}, 0x20000
        s_mul_i32 {sr(S_LB)}, {sr(S_W)}, {TILE}
        s_mov_b32 {sr(S_TOFF)}, {sr(S_LB)}
        s_add_u32 {sr(T+3)}, {sr(S_W)}, 60
        s_cmp_ge_u32 {sr(T+3)}, {sr(T+2)}
        s_cselect_b32 {sr(S_DUM)}, 4, 99
        s_mov_b32 {sr(S_REDO)}, 0
        v_add_u32 {vr(V_DMA+1)}, 4096, {vr(V_DMA)}
        v_add_u32 {vr(V_DMA+2)}, 8192, {vr(V_DMA)}
        s_waitcnt lgkmcnt(0)
        s_barrier""")
        self.stamp("bar3")

        def b_q(s):
            if s < 4: return [f"ds_read_b128 {vr(B4+18*j+4*s,4)}, {vr(VS+j)} offset:{1024*s}" for j in range(4)]
            return [f"ds_read_b64 {vr(B4+18*j+16,2)}, {vr(VR4+j)} offset:{L_XR - L_QR}" for j in range(4)]
        self.fill = self.fill + zf[72:]
        if o.get("t0", 1): a.bg, a.every, a.cnt = self.tile_groups(0), o.get("evt", 3), 0
        self.gemm_m(None, b_q, A_Q, B4, ACC, pre_a=True, rf=ar)
        a.flush()
        self.stamp("g2")
        if o.get("t1", 1): a.bg, a.every, a.cnt = self.tile_groups(1), o.get("evt1", 6), 0
        while self.fill: a(self.fill.pop(0))
        a(f"v_mov_b32 {vr(CC)}, {f32(LOG2E / 12.0)}")
        for j in range(4): a(f"v_add_u32 {vr(VS+j)}, {sr(W10)}, {vr(VS+j)}")
        for i in range(18): a(f"v_pk_mul_f32 {p(ACC+2*i)}, {p(ACC+2*i)}, {p(CC)} op_sel_hi:[1,0]")
        pack_units(B4)
        for j in range(4): a(f"ds_write_b128 {vr(VS+j)}, {vr(B4+4*j,4)} offset:{L_QX - L_XX}")
        a(f"ds_write_b64 {vr(VR4)}, {vr(B4+16,2)}")
        for j in range(4): a(f"v_dot2_f32_bf16 {vr(CC+j)}, {vr(B4+4*j)}, {vr(XD+4*j)}, 0")
        for i in range(1, 4):
            for j in range(4): a(f"v_dot2_f32_bf16 {vr(CC+j)}, {vr(B4+4*j+i)}, {vr(XD+4*j+i)}, {vr(CC+j)}")
        for i in range(2): a(f"v_dot2_f32_bf16 {vr(CC)}, {vr(B4+16+i)}, {vr(XD+16+i)}, {vr(CC)}")
        a(f"""v_and_b32 {vr(t0)}, 15, v0
        v_lshlrev_b32 {vr(t0)}, 4, {vr(t0)}
        v_add_u32 {vr(t0)}, {L_MX}, {vr(t0)}
        s_lshl_b32 {sr(T+1)}, {sr(S_W)}, 2""")
        self.greduce([CC + j for j in range(4)], CC + 4)
        for j in range(4):
            a(f"s_add_u32 {sr(T)}, {sr(S_W)}, {j}\ns_and_b32 {sr(T)}, {sr(T)}, 3\ns_lshl_b32 {sr(T)}, {sr(T)}, 8\ns_add_u32 {sr(T)}, {sr(T)}, {sr(T+1)}")
            a(f"v_add_u32 {vr(CC+4+j)}, {sr(T)}, {vr(t0)}")
        for j in range(4): a(f"ds_write_b32 {vr(CC+4+j)}, {vr(CC+j)}")
        a.flush()
        a("s_waitcnt lgkmcnt(0)\ns_barrier")
        self.stamp("bar4")
        a(f"v_add_u32 {vr(t1)}, {L_QX}, {vr(V_DMA)}\nv_add_u32 {vr(t2)}, {L_QR}, {vr(AD+6)}")
        MS = 184
        for qb in range(4): a(f"ds_read_b128 {vr(MS+4*qb,4)}, {vr(t0)} offset:{256*qb}")
        for qb in range(4):
            for s in range(4):
                a(f"ds_read_b128 {ar(A_Q+18*qb+4*s,4)}, {vr(t1)} offset:{4096*qb + 1024*s}")
            a(f"ds_read_b64 {ar(A_Q+18*qb+16,2)}, {vr(t2)} offset:{512*qb}")
        a(f"""v_add_u32 {vr(V_KA)}, {sr(S_LB)}, {vr(V_KA)}
        v_add_u32 {vr(V_KA+1)}, {sr(S_LB)}, {vr(V_KA+1)}
        v_lshrrev_b32 {vr(t0)}, 2, v0
        v_bfe_u32 {vr(t1)}, v0, 1, 1
        v_lshlrev_b32 {vr(t1)}, 3, {vr(t1)}
        v_xor_b32 {vr(t1)}, {vr(t0)}, {vr(t1)}
        v_lshlrev_b32 {vr(t1)}, 4, {vr(t1)}
        v_and_b32 {vr(t2)}, 3, v0
        v_lshl_add_u32 {vr(t1)}, {vr(t2)}, 9, {vr(t1)}
        v_and_b32 {vr(V_VA)}, 1, v0
        v_lshl_add_u32 {vr(t1)}, {vr(V_VA)}, 3, {vr(t1)}
        v_add_u32 {vr(V_VA)}, {sr(S_LB)}, {vr(t1)}
        v_xor_b32 {vr(V_VA+1)}, 8, {vr(V_VA)}
        v_lshrrev_b32 {vr(t1)}, 5, v0
        v_lshlrev_b32 {vr(t1)}, 1, {vr(t1)}
        v_xor_b32 {vr(t1)}, {vr(t2)}, {vr(t1)}
        v_lshl_add_u32 {vr(t1)}, {vr(t0)}, 2, {vr(t1)}
        v_lshlrev_b32 {vr(t1)}, 3, {vr(t1)}
        v_add_u32 {vr(V_VR)}, {sr(S_LB)}, {vr(t1)}""")
        a("s_waitcnt lgkmcnt(15)")
        for qb in range(4):
            m = MS + 4 * qb
            a(f"v_add_f32 {vr(m)}, {vr(m)}, {vr(m+1)}\nv_add_f32 {vr(m+2)}, {vr(m+2)}, {vr(m+3)}")
        for qb in range(4):
            m = MS + 4 * qb
            a(f"v_add_f32 {vr(m)}, {vr(m)}, {vr(m+2)}")
        for qb in range(4):
            for i in range(4): a(f"v_sub_f32 {vr(V_CI+4*qb+i)}, 0, {vr(MS+4*qb)}")
        for k in range(5): a(f"v_add_u32 {vr(V_HI+k)}, {2*SLOT}, {vr(V_KA+k)}")
        a("s_waitcnt vmcnt(9) lgkmcnt(0)\ns_barrier")
        self.stamp("bar5")

    def tile_groups(self, slot):
        out = []
        for j in range(9):
            g = ""
            if j % 4 == 0: g = f"s_add_u32 m0, {sr(S_LB)}, {slot*SLOT + 4096*(j//4)}\ns_nop 0\n"
            g += f"buffer_load_dwordx4 {vr(V_DMA + j//4)}, {sr(S_XA,4)}, {sr(S_TOFF)} offen offset:{1024*(j%4)} lds"
            if j == 8: g += f"\ns_add_u32 {sr(S_TOFF)}, {sr(S_TOFF)}, {4*TILE}"
            out.append(g)
        return out

    def first_tiles(self):
        pass

    def wfuse(self):
        a = self.a
        BF, ACC, AF, TM, AD = 88, 108, 144, 208, 240
        LA, LB_, LM = 0, 44032, 88064
        T = S_T
        a.label("L_wfuse")
        a(f"s_load_dwordx2 s[4:5], s[0:1], 32\ns_load_dwordx2 s[6:7], s[0:1], 56\ns_waitcnt lgkmcnt(0)")
        self.srd(S_WS, 62, 63, WS_END)
        self.srd(S_DB, 60, 61, 256)
        self.srd(S_X, 72, 73, 82944)
        self.srd(S_W2, 70, 71, 41472)
        a(f"""s_cmp_eq_u32 s2, 252
        s_cselect_b32 {sr(S_W1)}, s4, s6
        s_cselect_b32 {sr(S_W1+1)}, s5, s7
        s_mov_b32 {sr(S_W1+2)}, 41472
        s_mov_b32 {sr(S_W1+3)}, 0x20000
        s_cselect_b32 {sr(T+4)}, 0, 41472""")
        self.dma_rows([(S_W1, "0", LA), (S_W2, "0", LB_)], 19, 288, TM + 4, TM + 5, 11, 3, "L_wf1")
        a(f"s_lshl_b32 {sr(T)}, {sr(S_W)}, 10\ns_add_u32 {sr(T+2)}, {sr(T)}, {sr(T+4)}")
        for k in range(11):
            if k == 10: a(f"s_cmp_ge_u32 {sr(S_W)}, 1\ns_cbranch_scc1 L_wf2")
            a(f"s_add_u32 m0, {sr(T)}, {LM + 4096*k}\ns_add_u32 {sr(T+1)}, {sr(T+2)}, {4096*k}")
            a(f"buffer_load_dwordx4 {vr(V_DMA)}, {sr(S_X,4)}, {sr(T+1)} offen lds")
        a.label("L_wf2")
        self.tr_addr(AD, LM, False, TM + 8)
        self.row_addr(AD + 3, LA, TM + 8)
        a(f"v_add_u32 {vr(AD+5)}, {LB_}, {vr(AD+3)}")
        a(f"v_lshlrev_b32 {vr(AD+4)}, 3, v0")
        a(f"s_lshl_b32 {sr(T)}, {sr(S_W)}, 5")
        for k in range(3): a(f"v_add_u32 {vr(AD+k)}, {sr(T)}, {vr(AD+k)}")
        a(f"s_mov_b32 {sr(S_CNT)}, {sr(S_W)}")
        a("s_waitcnt vmcnt(0)\ns_barrier")
        a.label("L_wfl")
        for s in self.tr_reads(AD)(0, BF): a(s)
        a("s_waitcnt lgkmcnt(0)")
        self.gemm(self.row_reads(AD + 3), BF, ACC, AF)
        for i in range(18): a(f"v_cvt_pk_bf16_f32 {vr(BF+i)}, {vr(ACC+2*i)}, {vr(ACC+2*i+1)}")
        a("s_cmp_eq_u32 s2, 252\ns_cbranch_scc0 L_wf3")
        self.gemm(self.row_reads(AD + 5), BF, ACC, AF)
        for i in range(18): a(f"v_cvt_pk_bf16_f32 {vr(BF+i)}, {vr(ACC+2*i)}, {vr(ACC+2*i+1)}")
        a.label("L_wf3")
        a(f"""s_mul_i32 {sr(T)}, {sr(S_CNT)}, {BLK}
        s_add_u32 {sr(T)}, {sr(T)}, {sr(T+4)}
        s_add_u32 {sr(T)}, {sr(T)}, {WS_WF}
        s_add_u32 {sr(T+1)}, {sr(T)}, 4096""")
        self.store_block(BF, V_DMA, AD + 4, S_WS, T, T + 1, "sc1")
        for k in range(3): a(f"v_add_u32 {vr(AD+k)}, 128, {vr(AD+k)}")
        a(f"s_add_u32 {sr(S_CNT)}, {sr(S_CNT)}, 4\ns_cmp_lt_u32 {sr(S_CNT)}, 9\ns_cbranch_scc1 L_wfl")
        a(f"""s_waitcnt vmcnt(0)
        s_barrier
        s_cmp_lg_u32 {sr(S_W)}, 0
        s_cbranch_scc1 L_end
        s_mov_b64 exec, 1
        v_mov_b32 {vr(TM)}, 1
        v_mov_b32 {vr(TM+1)}, {DB_CW}
        buffer_atomic_add {vr(TM)}, {vr(TM+1)}, {sr(S_DB,4)}, 0 offen sc1
        v_mov_b32 {vr(TM+1)}, {DB_CW + 128}
        buffer_atomic_add {vr(TM)}, {vr(TM+1)}, {sr(S_DB,4)}, 0 offen sc1
        s_endpgm""")

    def dump_stamps(self):
        a = self.a
        if not self.o.get("stamps"): return
        T = S_T
        a(f"""s_waitcnt lgkmcnt(0)
        s_lshl_b32 {sr(T)}, s2, 2
        s_add_u32 {sr(T)}, {sr(T)}, {sr(S_W)}
        s_lshl_b32 {sr(T)}, {sr(T)}, 7
        s_add_u32 {sr(T)}, {sr(T)}, {WS_DBG}
        v_mov_b32 v1, 0""")
        for i in range(26): a(f"v_mov_b32 {vr(16+i)}, {sr(S_ST+i)}")
        for i in range(7): a(f"buffer_store_dwordx4 {vr(16+4*i,4)}, v1, {sr(S_WS,4)}, {sr(T)} offen offset:{16*i}")

    def build(self):
        a = self.a
        self.stnames = []
        a.raw(f"; @launch grid=({NWG},1,1) block=(256,1,1) lds={LDS_TOTAL}")
        a.raw('.amdgcn_target "amdgcn-amd-amdhsa--gfx950"')
        a.raw(".text")
        a.raw(f".globl {NAME}")
        self.entry()
        self.phase_a()
        self.rest()
        a.label("L_fin")
        self.dump_stamps()
        a.label("L_end")
        a("s_endpgm")
        self.fallback()
        self.wfuse()
        a.raw('.section .rodata,"a"')
        a.raw(".p2align 6")
        a.raw(kernel_desc(NAME, 512, 102, 256))
        return a.text()

    def S(self, buf, qb, i=0): return V_S + buf * 32 + qb * 8 + i
    def P(self, buf, qb, i=0): return V_P + buf * 16 + qb * 4 + i

    def k_reads(self, slot):
        ka, so = (V_KA, slot * SLOT) if slot < 2 else (V_HI, (slot - 2) * SLOT)
        out = [f"ds_read_b128 {vr(V_K+8*s+4*kb,4)}, {vr(ka)} offset:{so + 2048*s + 256*kb}" for s in range(4) for kb in range(2)]
        out += [f"ds_read_b64 {vr(V_K+32+2*kb,2)}, {vr(ka+1)} offset:{so + 8192 + 512*kb}" for kb in range(2)]
        return out

    def v_reads(self, slot):
        ka, so = (V_KA, slot * SLOT) if slot < 2 else (V_HI, (slot - 2) * SLOT)
        out = []
        for T in range(9):
            for u in range(2):
                if T < 8: out.append(f"ds_read_b64_tr_b16 {vr(V_V+4*T+2*u,2)}, {vr(ka+2+(T&1))} offset:{so + 2048*(T>>1) + 256*u}")
                else: out.append(f"ds_read_b64_tr_b16 {vr(V_V+4*T+2*u,2)}, {vr(ka+4)} offset:{so + 8192 + 512*u}")
        return out

    def qk_mfmas(self, buf, czero=False):
        out = []
        for s in range(5):
            for kb in range(2):
                for qb in range(4):
                    d = vr(self.S(buf, qb, 4 * kb), 4)
                    c = ("0" if czero else vr(V_CI + 4 * qb, 4)) if s == 0 else d
                    if s < 4: out.append(f"v_mfma_f32_16x16x32_bf16 {d}, {vr(V_K+8*s+4*kb,4)}, {ar(A_Q+18*qb+4*s,4)}, {c}")
                    else: out.append(f"v_mfma_f32_16x16x16_bf16 {d}, {vr(V_K+32+2*kb,2)}, {ar(A_Q+18*qb+16,2)}, {c}")
        return out

    def pv_mfmas(self, buf):
        out = []
        for T in range(9):
            for qb in range(4):
                o = ar(A_O + 36 * qb + 4 * T, 4)
                out.append(f"v_mfma_f32_16x16x32_bf16 {o}, {vr(V_V+4*T,4)}, {vr(self.P(buf,qb),4)}, {o}")
        return out

    def plan(self):
        o = self.o
        n = 76
        fixed = [None] * n
        for i, g in enumerate(range(1, 36, 2)): fixed[g] = ("V", i)
        for i, g in enumerate([41, 44, 47, 50, 53, 56, 59, 62, 65, 68]): fixed[g] = ("K", i)
        for i, g in enumerate([42, 46, 49, 52, 55, 58, 61, 64, 67]): fixed[g] = ("D", i)
        exps = [(qb, j) for qb in range(4) for j in range(8)]
        start = 40
        order = [(start + k) % n for k in range(n)]
        free_idx = [k for k, g in enumerate(order) if fixed[g] is None]
        nsm = len(free_idx) - 32
        cand = free_idx[6:-2]
        sm_set = set(free_idx[-2:]) | {cand[int((i + 0.5) * len(cand) / (nsm - 2))] for i in range(nsm - 2)}
        nds = sum(1 for f in fixed if f is not None and f[0] != "D")
        over = 48 - nds - 2 * nsm
        ocand = [k for k, g in enumerate(order) if k >= 20 and (fixed[g] is None or fixed[g][0] != "D")]
        o_set = {ocand[int((i + 0.5) * len(ocand) / over)] for i in range(over)}
        gaps = [[] for _ in range(n)]
        small, pend, ei = [], [], 0
        for k, g in enumerate(order):
            new = (start + k) < n
            small.extend(pend); pend = []
            small.sort(key=lambda t: 0 if t[0] == "c" else 1)
            f = fixed[g]
            want = 0
            if f is not None:
                gaps[g].append((f[0], f[1], None))
                if f[0] == "D": continue
                want = 1
            elif k in sm_set: want = 2
            else:
                qb, j = exps[ei]; ei += 1
                gaps[g].append(("E", ("e", qb, j), new))
                if j & 1: pend.append(("c", qb, j // 2))
                pend.append(("a", qb, j))
            if k in o_set: want += 1
            if k == n - 1: want = 99
            for _ in range(want):
                if small: gaps[g].append(("E", small.pop(0), new))
        assert not small and not pend and ei == 32
        self.gaps = gaps

    def etext(self, buf, it):
        kind, qb, j = it
        s = self.S(buf, qb)
        if kind == "e": return f"v_exp_f32 {vr(s+j)}, {vr(s+j)}"
        if kind == "a": return f"v_add_f32 {vr(V_L+qb)}, {vr(V_L+qb)}, {vr(s+j)}"
        return f"v_cvt_pk_bf16_f32 {vr(self.P(buf, qb, j))}, {vr(s+2*j)}, {vr(s+2*j+1)}"

    def period(self, p, qk=True, pv=True, e_old=True, e_new=True, kread=True, vread=True, dma=True, extra={}):
        a = self.a
        bn, bo = (p + 1) & 1, p & 1
        mf = self.qk_mfmas(bn) + self.pv_mfmas(bo)
        kr, vrd = self.k_reads((p + 2) % RING), self.v_reads(p % RING)
        slot = p % RING
        n = 76
        sc = [[] for _ in range(n)]
        dgs = [g for g in range(n) if any(e[0] == "D" for e in self.gaps[g])]
        if dma:
            for j, g in enumerate(dgs):
                if j % 4 == 0: sc[g - 1].append(f"s_add_u32 m0, {sr(S_LB)}, {slot*SLOT + 4096*(j//4)}")
            sc[dgs[-1] + 1].append(f"s_add_u32 {sr(S_TOFF)}, {sr(S_TOFF)}, {4*TILE}")
        w = []
        if kread: w.append("vmcnt(9)")
        if pv: w.append("lgkmcnt(0)")
        if w: sc[39].append("s_waitcnt " + " ".join(w))
        if kread: sc[75].append("s_waitcnt lgkmcnt(0)")
        for g in range(n):
            on = qk if g < 40 else pv
            if on: a(mf[g])
            if g == 40 and not pv and e_new: a("s_nop 7")
            for s in sc[g]: a(s)
            if g in extra: a(extra[g])
            for kind, d, new in self.gaps[g]:
                if kind == "V":
                    if vread: a(vrd[d])
                elif kind == "K":
                    if kread: a(kr[d])
                elif kind == "D":
                    if dma: a(f"buffer_load_dwordx4 {vr(V_DMA + d//4)}, {sr(S_XA,4)}, {sr(S_TOFF)} offen offset:{1024*(d%4)} lds")
                elif (new and e_new) or (not new and e_old):
                    a(self.etext(bn if new else bo, d))
                    if d[0] == "e" and not on: a("s_nop 0")
            if g == 39 and not qk: a("s_nop 1")

    def rest(self):
        a, o = self.a, self.o
        T = S_T
        VPL = 248
        self.plan()
        a.label("L_go")
        for i in range(4): a(f"v_mov_b32 {vr(V_L+i)}, 0")
        for x in self.k_reads(0): a(x)
        a(f"""s_mov_b32 {sr(S_CNT)}, 0
        s_lshl_b32 {sr(T)}, {sr(S_B)}, 7
        s_add_u32 {sr(T)}, {sr(T)}, {DB_CB}
        v_mov_b32 {vr(VPL)}, {sr(T)}
        s_waitcnt lgkmcnt(0)""")
        t2 = self.tile_groups(2)
        ex = {1 + 4 * i: t2[i] for i in range(9)}
        ex[41] = (f"s_or_b32 {sr(T)}, {sr(S_W)}, {sr(S_REDO)}\ns_cmp_lg_u32 {sr(T)}, 0\ns_cbranch_scc1 L_nocb\ns_mov_b64 exec, 1\nv_mov_b32 {vr(VPL+1)}, 1\n"
                  f"buffer_atomic_add {vr(VPL+1)}, {vr(VPL)}, {sr(S_DB,4)}, 0 offen sc1\ns_mov_b64 exec, -1\nL_nocb:")
        self.period(-1, pv=False, e_old=False, vread=False, extra=ex)
        self.stamp("loop")
        a.raw(".p2align 6")
        a.label("L_loop")
        for p in range(4):
            ex = {}
            if p == 2:
                a(f"s_add_u32 {sr(S_CNT)}, {sr(S_CNT)}, 1\ns_cmp_eq_u32 {sr(S_CNT)}, {sr(S_DUM)}\ns_cbranch_scc0 L_nodummy")
                for i in range(16): a(f"v_mov_b32 {vr(V_X+i)}, {vr(V_CI+i)}\nv_mov_b32 {vr(V_CI+i)}, 0xff800000" if i % 4 == 0 else f"v_mov_b32 {vr(V_CI+i)}, 0xff800000")
                a("s_nop 1")
                a.label("L_nodummy")
                ex = {70: f"buffer_load_dwordx4 v[252:255], {vr(VPL)}, {sr(S_DB,4)}, 0 offen sc1"}
            self.period(p, extra=ex)
            if p == 2: a(f"s_cmp_eq_u32 {sr(S_CNT)}, 4\ns_cbranch_scc1 L_tail")
        a("s_branch L_loop")
        a.label("L_tail")
        self.period(15, qk=False, e_new=False, kread=False, dma=False)
        self.stamp("end")
        self.epilogue()

    def epilogue(self):
        a, o = self.a, self.o
        T = S_T
        p = lambda r: vr(r, 2)
        L_L, L_FL = L_SP, L_SP + 1024
        NB, PT = S_T + 20, S_T + 21
        a(f"s_cmp_eq_u32 {sr(S_DUM)}, 4\ns_cbranch_scc0 L_e0")
        for qb in range(4): a(f"v_mov_b32 {vr(V_CI+4*qb)}, {vr(V_X+4*qb)}")
        a.label("L_e0")
        t = 16
        self.greduce([V_L + i for i in range(4)], t)
        a(f"""v_max_f32 {vr(t)}, {vr(V_L)}, {vr(V_L+1)}
        v_max3_f32 {vr(t)}, {vr(t)}, {vr(V_L+2)}, {vr(V_L+3)}
        v_add_f32 {vr(t+1)}, {vr(V_L)}, {vr(V_L+1)}
        v_add_f32 {vr(t+2)}, {vr(V_L+2)}, {vr(V_L+3)}
        v_add_f32 {vr(t+1)}, {vr(t+1)}, {vr(t+2)}
        v_mov_b32 {vr(t+2)}, {f32(2.0**100)}
        v_cmp_nle_f32 vcc, {vr(t+1)}, {vr(t+2)}
        s_lshr_b32 {sr(NB)}, {sr(S_W)}, 1
        s_and_b32 {sr(PT)}, {sr(S_W)}, 1
        v_and_b32 {vr(t+3)}, 15, v0
        v_lshlrev_b32 {vr(t+3)}, 4, {vr(t+3)}
        s_lshl_b32 {sr(T)}, {sr(S_W)}, 2
        s_add_u32 {sr(T)}, {sr(T)}, {L_L}
        v_add_u32 {vr(t+4)}, {sr(T)}, {vr(t+3)}
        s_cmp_lg_u64 vcc, 0
        s_cselect_b32 {sr(T+1)}, 1, 0
        v_mov_b32 {vr(t+5)}, {sr(T+1)}
        v_mov_b32 {vr(t+6)}, {sr(T)}
        v_add_u32 {vr(t+7)}, {sr(S_LB)}, {vr(V_DMA)}
        v_add_u32 {vr(t+8)}, {2*SLOT}, {vr(t+7)}
        s_waitcnt vmcnt(0)""")
        VROW16, VST0, VST1 = t + 3, t + 7, t + 8
        for qb in range(2):
            for i in range(9): a(f"ds_write_b128 {vr(VST0)}, {ar(A_O+36*qb+4*i,4)} offset:{SLOT*qb + 1024*i}")
        for qb in range(4): a(f"ds_write_b32 {vr(t+4)}, {vr(V_L+qb)} offset:{256*qb}")
        a(f"ds_write_b32 {vr(t+6)}, {vr(t+5)} offset:1024")
        a(f"v_readfirstlane_b32 {sr(T)}, v252\nv_readfirstlane_b32 {sr(T+1)}, v254\ns_mov_b32 {sr(T+2)}, 0")
        a.label("L_late")
        a(f"""s_cmp_ge_u32 {sr(T)}, 126
        s_cselect_b32 {sr(T+3)}, 1, 0
        s_cmp_ge_u32 {sr(T+1)}, 2
        s_cselect_b32 {sr(T+3)}, {sr(T+3)}, 0
        s_cmp_eq_u32 {sr(T+3)}, 1
        s_cbranch_scc1 L_late0
        buffer_load_dwordx4 v[252:255], v248, {sr(S_DB,4)}, 0 offen sc1
        s_add_u32 {sr(T+2)}, {sr(T+2)}, 1
        s_waitcnt vmcnt(0)
        v_readfirstlane_b32 {sr(T)}, v252
        v_readfirstlane_b32 {sr(T+1)}, v254
        s_cmp_lt_u32 {sr(T+2)}, 0x40000
        s_cbranch_scc1 L_late""")
        a.label("L_late0")
        U, GM, G0, GP, DW, XR = 128, 138, 148, 158, 168, 198
        ad = 28
        a(f"""s_lshl_b32 {sr(T)}, {sr(S_TOWN)}, 1
        s_add_u32 {sr(T)}, {sr(T)}, {sr(NB)}
        s_lshl_b32 {sr(T+1)}, {sr(T)}, 4
        v_and_b32 {vr(ad)}, 15, v0
        v_add_u32 {vr(ad)}, {sr(T+1)}, {vr(ad)}
        s_mul_i32 {sr(T+2)}, {sr(S_B)}, 4000
        s_add_u32 {sr(T+3)}, {sr(T+2)}, 3999
        v_lshrrev_b32 {vr(ad+1)}, 4, v0
        s_mov_b32 {sr(T+4)}, {BLK}
        s_lshl_b32 {sr(T+5)}, {sr(PT)}, 11
        s_add_u32 {sr(T+6)}, {sr(T+5)}, {WS_U}
        s_add_u32 {sr(T+7)}, {sr(T+5)}, {WS_G}
        s_mov_b32 {sr(T+8)}, {WS_U + 4096}
        s_mov_b32 {sr(T+9)}, {WS_G + 4096}
        v_mov_b32 {vr(ad+11)}, 0x40000000""")
        for k, (dst, dr) in enumerate(((G0, 0), (GM, -1), (GP, 1))):
            m, r = ad + 2 + 2 * k, ad + 3 + 2 * k
            if dr: a(f"v_add_u32 {vr(ad+8)}, {dr}, {vr(ad)}")
            src = ad + 8 if dr else ad
            a(f"""v_lshrrev_b32 {vr(ad+9)}, 4, {vr(src)}
            v_mul_lo_u32 {vr(ad+9)}, {vr(ad+9)}, {sr(T+4)}
            v_and_b32 {vr(ad+10)}, 15, {vr(src)}
            v_lshl_add_u32 {vr(ad+10)}, {vr(ad+1)}, 4, {vr(ad+10)}
            v_lshl_add_u32 {vr(m)}, {vr(ad+10)}, 4, {vr(ad+9)}
            v_lshl_add_u32 {vr(r)}, {vr(ad+10)}, 3, {vr(ad+9)}""")
            if dr:
                a(f"v_cmp_eq_u32 vcc, {sr(T+2 if dr < 0 else T+3)}, {vr(ad)}\ns_nop 1")
                a(f"v_cndmask_b32 {vr(m)}, {vr(m)}, {vr(ad+11)}, vcc\nv_cndmask_b32 {vr(r)}, {vr(r)}, {vr(ad+11)}, vcc")
        for dst, m, so in ((U, ad + 2, 0), (G0, ad + 2, 1), (GM, ad + 4, 1), (GP, ad + 6, 1)):
            for k in range(2): a(f"buffer_load_dwordx4 {vr(dst+4*k,4)}, {vr(m)}, {sr(S_WS,4)}, {sr(T+6+so)} offen offset:{1024*k} sc1")
            a(f"buffer_load_dwordx2 {vr(dst+8,2)}, {vr(m+1)}, {sr(S_WS,4)}, {sr(T+8+so)} offen sc1")
        a(f"v_lshlrev_b32 {vr(ad+8)}, 3, {vr(ad+1)}\ns_lshl_b32 {sr(T+5)}, {sr(PT)}, 7")
        for k in range(3):
            for i in range(4): a(f"buffer_load_dwordx2 {vr(DW+10*k+2*i,2)}, {vr(ad+8)}, {sr(S_DW,4)}, {sr(T+5)} offen offset:{288*k + 32*i}")
            a(f"buffer_load_dwordx2 {vr(DW+10*k+8,2)}, {vr(ad+8)}, {sr(S_DW,4)}, 0 offen offset:{288*k + 256}")
        VO = 208
        a(f"""v_and_b32 {vr(ad+9)}, 15, v0
        v_mul_u32_u24 {vr(ad+9)}, 288, {vr(ad+9)}
        v_add_u32 {vr(ad+9)}, {vr(ad+9)}, {vr(ad+8)}
        s_mul_i32 {sr(T)}, {sr(S_TOWN)}, {TILE}
        s_mul_i32 {sr(T+1)}, {sr(PT)}, {BLK}
        s_add_u32 {sr(T+2)}, {sr(T)}, {sr(T+1)}
        s_sub_u32 {sr(T+3)}, {BLK}, {sr(T+1)}
        s_add_u32 {sr(T+3)}, {sr(T+3)}, {sr(T)}
        v_add_u32 {vr(VO)}, {sr(T+2)}, {vr(ad+9)}
        v_add_u32 {vr(VO+1)}, {sr(T+3)}, {vr(ad+9)}
        s_lshl_b32 {sr(S_TOFF)}, {sr(S_W)}, 6""")
        units = [(0, 0), (0, 1), (1, 0), (1, 1), (2, 0)]
        for u, (tt, j) in enumerate(units):
            so = (sr(S_TOFF), 32 * tt) if tt < 2 else ("0", 256)
            a(f"buffer_load_dwordx2 {vr(XR+2*u,2)}, {vr(VO+j)}, {sr(S_X,4)}, {so[0]} offen offset:{so[1]}")
        a("s_waitcnt lgkmcnt(0)")
        WD = [0, 18, 36]
        WO = [54, 216, 234]
        a(f"""s_mul_i32 {sr(T)}, {sr(S_W)}, {2*BLK}
        s_add_u32 {sr(T)}, {sr(T)}, {WS_WF}
        v_lshlrev_b32 {vr(ad+10)}, 3, v0
        v_add_u32 {vr(ad+10)}, 4096, {vr(ad+10)}""")
        for mat, regs in ((1, WD), (0, WO)):
            for tt in range(3):
                if tt < 2: a(f"s_add_u32 {sr(T+1)}, {sr(T)}, {mat*9*BLK + tt*BLK}")
                else: a(f"s_mov_b32 {sr(T+1)}, {WS_WF + mat*9*BLK + 8*BLK}")
                for s in range(4): a(f"buffer_load_dwordx4 {ar(regs[tt]+4*s,4)}, {vr(V_DMA)}, {sr(S_WS,4)}, {sr(T+1)} offen offset:{1024*s} sc1")
                a(f"buffer_load_dwordx2 {ar(regs[tt]+16,2)}, {vr(ad+10)}, {sr(S_WS,4)}, {sr(T+1)} offen sc1")
        a("s_barrier")
        self.stamp("B1")
        R = 40
        a(f"""s_mul_i32 {sr(T)}, {sr(NB)}, {SLOT}
        s_lshl_b32 {sr(T+1)}, {sr(PT)}, 12
        s_add_u32 {sr(T)}, {sr(T)}, {sr(T+1)}
        v_add_u32 {vr(ad)}, {sr(T)}, {vr(V_DMA)}
        s_lshl_b32 {sr(T+1)}, {sr(NB)}, 8
        s_add_u32 {sr(T+1)}, {sr(T+1)}, {L_L}
        v_add_u32 {vr(ad+1)}, {sr(T+1)}, {vr(VROW16)}
        v_mov_b32 {vr(ad+2)}, {L_FL}
        ds_read_b128 v[120:123], {vr(ad+2)}
        ds_read_b128 v[124:127], {vr(ad+1)}""")
        MK = 210
        for qb in range(4): a(f"v_mov_b32 {vr(MK+qb)}, {vr(V_CI+4*qb)}")

        def reduce4(base):
            for w in range(4):
                for i in range(5): a(f"ds_read_b128 {vr(R+20*w+4*i,4)}, {vr(base)} offset:{TILE*w + 1024*i}")
                if w == 1: yield
            for w in range(1, 4):
                a(f"s_waitcnt lgkmcnt({5*(3-w)})")
                for i in range(10): a(f"v_pk_add_f32 {p(R+2*i)}, {p(R+2*i)}, {p(R+20*w+2*i)}")
            for i in range(10): a(f"v_cvt_pk_bf16_f32 {vr(R+20+i)}, {vr(R+2*i)}, {vr(R+2*i+1)}")
        g = reduce4(ad); next(g)
        a(f"""s_waitcnt lgkmcnt(10)
        v_or_b32 v120, v120, v121
        v_or3_b32 v120, v120, v122, v123
        v_add_f32 v124, v124, v125
        v_add_f32 v126, v126, v127
        v_readfirstlane_b32 {sr(T+2)}, v120
        v_add_f32 v124, v124, v126
        s_andn2_b32 {sr(T+2)}, {sr(T+2)}, {sr(S_REDO)}
        s_cbranch_scc1 L_fallback""")
        for _ in g: pass
        a(f"""s_cmp_eq_u32 {sr(NB)}, 1
        s_cselect_b64 vcc, -1, 0
        v_mov_b32 {vr(R+30)}, v124
        s_xor_b32 {sr(T)}, s2, 1
        v_cndmask_b32 {vr(R+31)}, {vr(MK)}, {vr(MK+1)}, vcc
        s_mul_i32 {sr(T)}, {sr(T)}, {IB}
        s_mul_i32 {sr(T+1)}, {sr(NB)}, 5120
        s_add_u32 {sr(T)}, {sr(T)}, {sr(T+1)}
        s_add_u32 {sr(T)}, {sr(T)}, {WS_IB}
        s_lshl_b32 {sr(T+1)}, {sr(PT)}, 11
        s_add_u32 {sr(T+1)}, {sr(T+1)}, {sr(T)}
        s_add_u32 {sr(T)}, {sr(T)}, 4096
        s_cmp_eq_u32 {sr(PT)}, 0
        s_cselect_b32 {sr(T)}, 0x40000000, {sr(T)}
        buffer_store_dwordx4 {vr(R+20,4)}, {vr(V_DMA)}, {sr(S_WS,4)}, {sr(T+1)} offen sc1
        buffer_store_dwordx4 {vr(R+24,4)}, {vr(V_DMA)}, {sr(S_WS,4)}, {sr(T+1)} offen offset:1024 sc1
        buffer_store_dwordx4 {vr(R+28,4)}, {vr(V_DMA)}, {sr(S_WS,4)}, {sr(T)} offen sc1""")
        self.stamp("sent")
        a(f"s_cmp_eq_u32 {sr(S_VAL)}, 0\ns_cbranch_scc1 L_fin")
        for qb in range(2):
            for i in range(9): a(f"ds_write_b128 {vr(VST1)}, {ar(A_O+36*(2+qb)+4*i,4)} offset:{SLOT*qb + 1024*i}")
        a(f"v_add_u32 {vr(ad)}, {2*SLOT}, {vr(ad)}")
        a("s_waitcnt lgkmcnt(0)\ns_barrier")
        self.stamp("B2")
        for _ in reduce4(ad): pass
        a(f"""s_lshl_b32 {sr(T)}, {sr(NB)}, 12
        s_lshl_b32 {sr(T+1)}, {sr(PT)}, 11
        s_add_u32 {sr(T)}, {sr(T)}, {sr(T+1)}
        v_add_u32 {vr(ad)}, {sr(T)}, {vr(V_DMA)}
        s_lshl_b32 {sr(T)}, {sr(NB)}, 9
        s_add_u32 {sr(T)}, {sr(T)}, 4096
        v_add_u32 {vr(ad+1)}, {sr(T)}, {vr(ad+10)}
        ds_write_b128 {vr(ad)}, {vr(R+20,4)}
        ds_write_b128 {vr(ad)}, {vr(R+24,4)} offset:1024
        s_cmp_eq_u32 {sr(PT)}, 0
        s_cbranch_scc1 L_e2
        ds_write_b64 {vr(ad+1)}, {vr(R+28,2)}""")
        a.label("L_e2")
        nyoung = 5 + 30 + 3
        a(f"s_waitcnt vmcnt({nyoung})")
        C = 40
        for i in range(10):
            for k in range(3):
                a(f"v_and_b32 {vr(102+2*k)}, 0xffff, {vr(DW+10*k+i)}\nv_and_b32 {vr(103+2*k)}, 0xffff0000, {vr(DW+10*k+i)}")
            for h in range(2): a(f"v_dot2_f32_bf16 {vr(C+2*i+h)}, {vr(GM+i)}, {vr(102+h)}, 0")
            for h in range(2): a(f"v_dot2_f32_bf16 {vr(C+2*i+h)}, {vr(G0+i)}, {vr(104+h)}, {vr(C+2*i+h)}")
            for h in range(2): a(f"v_dot2_f32_bf16 {vr(C+2*i+h)}, {vr(GP+i)}, {vr(106+h)}, {vr(C+2*i+h)}")
        for i in range(10):
            a(f"v_lshlrev_b32 {vr(70+2*i)}, 16, {vr(U+i)}\nv_and_b32 {vr(71+2*i)}, 0xffff0000, {vr(U+i)}")
        for i in range(10): a(f"v_pk_mul_f32 {p(C+2*i)}, {p(C+2*i)}, {p(70+2*i)}")
        for i in range(10): a(f"v_cvt_pk_bf16_f32 {vr(92+i)}, {vr(C+2*i)}, {vr(C+2*i+1)}")
        a(f"""ds_write_b128 {vr(ad)}, v[92:95] offset:16384
        ds_write_b128 {vr(ad)}, v[96:99] offset:17408
        s_cmp_eq_u32 {sr(PT)}, 0
        s_cbranch_scc1 L_e3
        ds_write_b64 {vr(ad+1)}, v[100:101] offset:16384""")
        a.label("L_e3")
        IN = 128
        a(f"""s_mul_i32 {sr(T+4)}, s2, {IB}
        s_add_u32 {sr(T+4)}, {sr(T+4)}, {WS_IB}
        s_mul_i32 {sr(T)}, {sr(PT)}, 5120
        s_add_u32 {sr(T+5)}, {sr(T+4)}, 5120
        s_sub_u32 {sr(T+5)}, {sr(T+5)}, {sr(T)}
        s_add_u32 {sr(T+4)}, {sr(T+4)}, {sr(T)}""")

        def inbox():
            for j in range(2):
                for s in range(4): a(f"buffer_load_dwordx4 {vr(IN+20*j+4*s,4)}, {vr(V_DMA)}, {sr(S_WS,4)}, {sr(T+4+j)} offen offset:{1024*s} sc1")
                a(f"buffer_load_dwordx4 {vr(IN+20*j+16,4)}, {vr(V_DMA+1)}, {sr(S_WS,4)}, {sr(T+4+j)} offen sc1")
        inbox()
        a(f"""s_lshl_b32 {sr(T)}, {sr(PT)}, 12
        v_add_u32 {vr(ad)}, {sr(T)}, {vr(V_DMA)}
        v_xor_b32 {vr(ad+1)}, 4096, {vr(ad)}
        s_lshl_b32 {sr(T)}, {sr(PT)}, 9
        s_add_u32 {sr(T)}, {sr(T)}, 4096
        v_add_u32 {vr(ad+2)}, {sr(T)}, {vr(ad+10)}
        v_xor_b32 {vr(ad+3)}, 512, {vr(ad+2)}
        s_lshl_b32 {sr(T)}, {sr(PT)}, 8
        s_add_u32 {sr(T)}, {sr(T)}, {L_L + 512}
        v_add_u32 {vr(ad+4)}, {sr(T)}, {vr(VROW16)}
        v_xor_b32 {vr(ad+5)}, 256, {vr(ad+4)}
        s_waitcnt lgkmcnt(0)
        s_barrier""")
        self.stamp("B3")
        BO, BU, LO = 40, 76, 112
        for dst, off in ((BU, 16384), (BO, 0)):
            for j in range(2):
                for s in range(4): a(f"ds_read_b128 {vr(dst+18*j+4*s,4)}, {vr(ad+j)} offset:{off + 1024*s}")
                a(f"ds_read_b64 {vr(dst+18*j+16,2)}, {vr(ad+2+j)} offset:{off}")
        for j in range(2): a(f"ds_read_b128 {vr(LO+4*j,4)}, {vr(ad+4+j)}")
        AB, AO, AP = 168, 216, 16
        AP = 188 - 0
        AB, AO, AP = 168, 216, 236

        def fgemm(acc, W, Bf, stride):
            for s in range(5):
                for u, (tt, j) in enumerate(units):
                    d = vr(acc + 4 * u, 4)
                    if s < 4: a(f"v_mfma_f32_16x16x32_bf16 {d}, {ar(W[tt]+4*s,4)}, {vr(Bf+stride*j+4*s,4)}, {'0' if s == 0 else d}")
                    else:
                        if u == 0: a("s_nop 1")
                        a(f"v_mfma_f32_16x16x16_bf16 {d}, {ar(W[tt]+16,2)}, {vr(Bf+stride*j+16,2)}, {d}")
        a("s_waitcnt vmcnt(13) lgkmcnt(12)")
        fgemm(AB, WD, BU, 18)
        a("s_waitcnt lgkmcnt(0)")
        fgemm(AO, WO, BO, 18)
        for j in range(2):
            a(f"v_add_f32 {vr(LO+4*j)}, {vr(LO+4*j)}, {vr(LO+4*j+1)}\nv_add_f32 {vr(LO+4*j+2)}, {vr(LO+4*j+2)}, {vr(LO+4*j+3)}\nv_add_f32 {vr(LO+4*j)}, {vr(LO+4*j)}, {vr(LO+4*j+2)}")
        a(f"""s_cmp_eq_u32 {sr(PT)}, 1
        s_cselect_b64 vcc, -1, 0
        s_mov_b32 {sr(T+2)}, 0
        v_cndmask_b32 {vr(LO+1)}, {vr(MK+2)}, {vr(MK+3)}, vcc
        v_cndmask_b32 {vr(LO+5)}, {vr(MK+3)}, {vr(MK+2)}, vcc""")
        for u in range(5):
            for h in range(2):
                a(f"v_lshlrev_b32 {vr(120+2*h)}, 16, {vr(XR+2*u+h)}\nv_and_b32 {vr(121+2*h)}, 0xffff0000, {vr(XR+2*u+h)}")
            for h in range(2): a(f"v_pk_add_f32 {p(AB+4*u+2*h)}, {p(AB+4*u+2*h)}, {p(120+2*h)}")
        self.stamp("own")
        a("s_branch L_inc")
        a.label("L_in")
        inbox()
        a.label("L_inc")
        a(f"s_waitcnt vmcnt(0)\ns_add_u32 {sr(T+2)}, {sr(T+2)}, 1")
        a(f"v_max3_u32 v120, {vr(IN)}, {vr(IN+1)}, {vr(IN+2)}\nv_max3_u32 v121, {vr(IN+3)}, {vr(IN+4)}, {vr(IN+5)}")
        rest_ = list(range(IN + 6, IN + 40))
        k = 0
        while rest_:
            x, y = rest_[0], rest_[1]; rest_ = rest_[2:]
            a(f"v_max3_u32 v{120+k}, v{120+k}, {vr(x)}, {vr(y)}"); k ^= 1
        a(f"""v_max_u32 v120, v120, v121
        v_cmp_eq_u32 vcc, -1, v120
        s_nop 1
        s_cmp_eq_u64 vcc, 0
        s_cbranch_scc1 L_got
        s_cmp_lt_u32 {sr(T+2)}, 0x10000
        s_cbranch_scc1 L_in""")
        a.label("L_got")
        self.stamp("got")
        fgemm(AP, WO, IN, 20)
        for j in range(2):
            lo, mo, lp, mp, w = LO + 4 * j, LO + 4 * j + 1, IN + 20 * j + 18, IN + 20 * j + 19, 120 + 4 * j
            a(f"""v_min_f32 {vr(w)}, {vr(mo)}, {vr(mp)}
            v_sub_f32 {vr(w+1)}, {vr(w)}, {vr(mp)}
            v_sub_f32 {vr(w)}, {vr(w)}, {vr(mo)}
            v_exp_f32 {vr(w+1)}, {vr(w+1)}
            v_exp_f32 {vr(w)}, {vr(w)}
            v_mul_f32 {vr(w+2)}, {vr(w+1)}, {vr(lp)}
            v_fmac_f32 {vr(w+2)}, {vr(w)}, {vr(lo)}
            v_rcp_f32 {vr(w+2)}, {vr(w+2)}
            s_nop 0
            v_mul_f32 {vr(w)}, {vr(w)}, {vr(w+2)}
            v_mul_f32 {vr(w+2)}, {vr(w+1)}, {vr(w+2)}""")
        for u, (tt, j) in enumerate(units):
            for h in range(2):
                r = 4 * u + 2 * h
                a(f"v_pk_fma_f32 {p(AB+r)}, {p(AO+r)}, {p(120+4*j)}, {p(AB+r)} op_sel_hi:[1,0,1]")
        for u, (tt, j) in enumerate(units):
            for h in range(2):
                r = 4 * u + 2 * h
                a(f"v_pk_fma_f32 {p(AB+r)}, {p(AP+r)}, {p(122+4*j)}, {p(AB+r)} op_sel_hi:[1,0,1]")
            for h in range(2): a(f"v_cvt_pk_bf16_f32 {vr(40+2*u+h)}, {vr(AB+4*u+2*h)}, {vr(AB+4*u+2*h+1)}")
            so = (sr(S_TOFF), 32 * tt) if tt < 2 else ("0", 256)
            a(f"buffer_store_dwordx2 {vr(40+2*u,2)}, {vr(VO+j)}, {sr(S_OUT,4)}, {so[0]} offen offset:{so[1]}")
        self.stamp("fin")

    def fallback(self):
        a = self.a
        T = S_T
        MXR = 208
        a.label("L_fallback")
        a(f"""s_waitcnt vmcnt(0) lgkmcnt(0)
        s_barrier
        s_mov_b32 {sr(S_REDO)}, 1
        s_mov_b32 {sr(S_TOFF)}, {sr(S_LB)}
        s_cmp_eq_u32 {sr(S_DUM)}, 4
        s_cselect_b32 {sr(S_CNT)}, 15, 16""")
        for i in range(4): a(f"v_mov_b32 {vr(MXR+i)}, 0xff800000")
        a.label("L_fb1")
        for g in self.tile_groups(0): a(g)
        a("s_waitcnt vmcnt(0)")
        for x in self.k_reads(0): a(x)
        a("s_waitcnt lgkmcnt(0)")
        for m in self.qk_mfmas(0, czero=True): a(m)
        a("s_nop 7")
        for qb in range(4):
            for i in range(0, 8, 2): a(f"v_max3_f32 {vr(MXR+qb)}, {vr(MXR+qb)}, {vr(self.S(0,qb,i))}, {vr(self.S(0,qb,i+1))}")
        a(f"s_sub_u32 {sr(S_CNT)}, {sr(S_CNT)}, 1\ns_cmp_lg_u32 {sr(S_CNT)}, 0\ns_cbranch_scc1 L_fb1")
        self.greduce([MXR + i for i in range(4)], MXR + 4, "v_max_f32")
        a(f"""v_and_b32 {vr(MXR+4)}, 15, v0
        v_lshlrev_b32 {vr(MXR+4)}, 4, {vr(MXR+4)}
        v_add_u32 {vr(MXR+4)}, {L_SP}, {vr(MXR+4)}
        s_lshl_b32 {sr(T)}, {sr(S_W)}, 2
        v_add_u32 {vr(MXR+5)}, {sr(T)}, {vr(MXR+4)}""")
        for qb in range(4): a(f"ds_write_b32 {vr(MXR+5)}, {vr(MXR+qb)} offset:{256*qb}")
        a("s_waitcnt lgkmcnt(0)\ns_barrier")
        for qb in range(4): a(f"ds_read_b128 {vr(16+4*qb,4)}, {vr(MXR+4)} offset:{256*qb}")
        a(f"s_mov_b32 {sr(S_TOFF)}, {sr(S_LB)}")
        for g in self.tile_groups(0) + self.tile_groups(1): a(g)
        for i in range(144): a(f"v_accvgpr_write_b32 {ar(A_O+i)}, 0")
        a("s_waitcnt lgkmcnt(0)")
        for qb in range(4):
            r = 16 + 4 * qb
            a(f"v_max_f32 {vr(r)}, {vr(r)}, {vr(r+1)}\nv_max3_f32 {vr(r)}, {vr(r)}, {vr(r+2)}, {vr(r+3)}")
            for i in range(4): a(f"v_sub_f32 {vr(V_CI+4*qb+i)}, 0, {vr(r)}")
        for k in range(5): a(f"v_add_u32 {vr(V_HI+k)}, {2*SLOT}, {vr(V_KA+k)}")
        a("s_waitcnt vmcnt(9)\ns_barrier\ns_branch L_go")


if __name__ == "__main__":
    opt = json.loads(sys.argv[2]) if len(sys.argv) > 2 else {}
    g = G(opt)
    txt = g.build()
    if opt.get("align", 1):
        from align import align
        txt, st = align(txt)
        print("align: promoted %d, padded %d, left %d" % st)
    txt = txt.replace("\n", "\n; stamps " + json.dumps(g.stnames) + "\n", 1)
    open(sys.argv[1], "w").write(txt)
```

```python
import sys, json, math
from common import Asm, vr, ar, sr, kernel_header, kernel_desc
from lay import *

NAME = "standalone__conformer_family_branchformer__speech_kernel"
NWG = 254
RING = 4
LDS_RING = RING * TILE
LDS_TOTAL = 163840
SLOT = 4 * TILE
L_WU, L_WQ, L_WK = 0, 41984, 83968
L_XX, L_XR = 128000, 144384
L_QX, L_QR = 146432, 79872
L_MX = 162816
L_PC = 163836 - 0
L_DUMP = 123904
L_SP = 147456

S_X, S_WS, S_XA, S_DB, S_W1, S_W2, S_OUT, S_DW = 8, 12, 16, 20, 24, 28, 32, 36
S_W, S_B, S_H, S_QB, S_TOFF, S_CNT, S_DUM, S_LB, S_TOWN, S_TSND, S_VAL, S_REDO = range(40, 52)
S_T = 52
S_ST = 76

V_KA, V_VA, V_VR, V_DMA, V_L, V_T = 1, 3, 5, 6, 9, 13
V_S, V_CI, V_P, V_K, V_V = 16, 80, 96, 128, 164
V_HI = 200
V_X = 208
A_O, A_Q, A_F = 0, 144, 216

LOG2E = 1.4426950408889634
import struct
def f32(x): return "0x%08x" % struct.unpack("<I", struct.pack("<f", x))[0]


class BAsm(Asm):
    def __init__(self):
        super().__init__()
        self.bg, self.every, self.cnt, self.skip = [], 0, 0, 0

    def __call__(self, s):
        for l in s.split("\n"):
            l = l.strip()
            if not l: continue
            self.lines.append("    " + l)
            if self.bg and self.every and not l.startswith(("s_nop", "v_mov_b32", "v_exp", "v_rcp", "v_rsq", "v_sqrt", "s_add_u32 m0")):
                self.cnt += 1
                if self.cnt >= self.every:
                    self.cnt = 0
                    self.pop()

    def pop(self):
        for x in self.bg.pop(0).split("\n"): self.lines.append("    " + x)

    def flush(self):
        while self.bg: self.pop()
        self.every = 0


class G:
    def __init__(self, opt):
        self.o = opt
        self.a = BAsm()
        self.nst = 0
        self.fill = []

    def stamp(self, name):
        if self.o.get("stamps"):
            if name in self.o.get("skipst", []): return
            assert self.nst < 13
            self.a(f"{'s_memtime' if self.o.get('cyc') else 's_memrealtime'} {sr(S_ST + 2*self.nst, 2)}")
            self.stnames.append(name)
            self.nst += 1

    def srd(self, dst, lo, hi, n):
        self.a(f"s_mov_b32 {sr(dst)}, {sr(lo)}\ns_mov_b32 {sr(dst+1)}, {sr(hi)}\ns_mov_b32 {sr(dst+2)}, {n}\ns_mov_b32 {sr(dst+3)}, 0x20000")

    def greduce(self, regs, tmp, op="v_add_f32"):
        a = self.a
        for sw in ("32", "16"):
            for i, r in enumerate(regs): a(f"v_mov_b32 {vr(tmp+i)}, {vr(r)}")
            if len(regs) < 3: a("s_nop 1" if len(regs) == 1 else "s_nop 0")
            for i, r in enumerate(regs): a(f"v_permlane{sw}_swap_b32 {vr(r)}, {vr(tmp+i)}")
            for i, r in enumerate(regs): a(f"{op} {vr(r)}, {vr(r)}, {vr(tmp+i)}")

    def rbf(self, r):
        self.a(f"v_cvt_pk_bf16_f32 {vr(r)}, {vr(r)}, {vr(r)}\nv_lshlrev_b32 {vr(r)}, 16, {vr(r)}")

    def ln_tail(self, F, out, t, mimic):
        a = self.a
        p = lambda r: vr(r, 2)
        self.greduce([t, t + 1], t + 2)
        a(f"v_mul_f32 {vr(t+2)}, {f32(1.0/144)}, {vr(t)}")
        a(f"v_mul_f32 {vr(t+3)}, {vr(t+2)}, {vr(t+2)}")
        a(f"v_mov_b32 {vr(t+4)}, {f32(1.0/144)}")
        a(f"v_fma_f32 {vr(t)}, {vr(t+1)}, {vr(t+4)}, -{vr(t+3)}")
        a(f"v_max_f32 {vr(t)}, 0, {vr(t)}")
        if mimic:
            self.rbf(t)
            self.rbf(t + 2)
            a(f"v_add_f32 {vr(t)}, {f32(1e-5)}, {vr(t)}")
            self.rbf(t)
            a(f"v_sqrt_f32 {vr(t)}, {vr(t)}\ns_nop 0")
            self.rbf(t)
            a(f"v_rcp_f32 {vr(t)}, {vr(t)}\ns_nop 0")
        else:
            a(f"v_add_f32 {vr(t)}, {f32(1e-5)}, {vr(t)}")
            a(f"v_rsq_f32 {vr(t)}, {vr(t)}\ns_nop 0")
        a(f"v_mul_f32 {vr(t+2)}, -{vr(t+2)}, {vr(t)}")
        for i in range(18):
            a(f"v_pk_fma_f32 {p(F+2*i)}, {p(F+2*i)}, {p(t)}, {p(t+2)} op_sel_hi:[1,0,0]")
        for i in range(18):
            a(f"v_cvt_pk_bf16_f32 {vr(out+i)}, {vr(F+2*i)}, {vr(F+2*i+1)}")

    def ln_packed(self, X, F, out, t):
        a = self.a
        a(f"v_mov_b32 {vr(t+6)}, 0x3f803f80")
        for k in range(4): a(f"v_mov_b32 {vr(t+k)}, 0")
        for i in range(18):
            a(f"v_dot2_f32_bf16 {vr(t+2*(i&1))}, {vr(X+i)}, {vr(t+6)}, {vr(t+2*(i&1))}")
            a(f"v_dot2_f32_bf16 {vr(t+1+2*(i&1))}, {vr(X+i)}, {vr(X+i)}, {vr(t+1+2*(i&1))}")
        for i in range(2):
            a(f"v_lshlrev_b32 {vr(F+2*i)}, 16, {vr(X+i)}\nv_and_b32 {vr(F+2*i+1)}, 0xffff0000, {vr(X+i)}")
        a(f"v_pk_add_f32 {vr(t,2)}, {vr(t,2)}, {vr(t+2,2)}")
        un = []
        for i in range(2, 18):
            un.append(f"v_lshlrev_b32 {vr(F+2*i)}, 16, {vr(X+i)}\nv_and_b32 {vr(F+2*i+1)}, 0xffff0000, {vr(X+i)}")
        sv = (a.bg, a.every, a.cnt, a.skip)
        n0 = len(a.lines)
        a.bg, a.every = [], 0
        self.ln_tail(F, out, t, True)
        tail = a.lines[n0:]
        del a.lines[n0:]
        a.bg, a.every, a.cnt, a.skip = sv
        k = next(i for i, l in enumerate(tail) if "v_pk_fma" in l)
        for i, l in enumerate(tail[:k]):
            if "s_nop" in l and un: continue_nop = True
            a(l)
            if un and not l.strip().startswith("s_nop"): a(un.pop(0))
        while un: a(un.pop(0))
        for l in tail[k:]: a(l)

    def ln_f32(self, F, out, t):
        a = self.a
        p = lambda r: vr(r, 2)
        a(f"v_pk_add_f32 {p(t)}, {p(F)}, {p(F+2)}\nv_pk_add_f32 {p(t+2)}, {p(F+4)}, {p(F+6)}")
        a(f"v_pk_mul_f32 {p(t+4)}, {p(F)}, {p(F)}\nv_pk_mul_f32 {p(t+6)}, {p(F+2)}, {p(F+2)}")
        for i in range(2, 18):
            if i >= 4: a(f"v_pk_add_f32 {p(t+2*(i&1))}, {p(t+2*(i&1))}, {p(F+2*i)}")
            a(f"v_pk_fma_f32 {p(t+4+2*(i&1))}, {p(F+2*i)}, {p(F+2*i)}, {p(t+4+2*(i&1))}")
        a(f"v_pk_add_f32 {p(t)}, {p(t)}, {p(t+2)}\nv_pk_add_f32 {p(t+4)}, {p(t+4)}, {p(t+6)}")
        a(f"v_add_f32 {vr(t)}, {vr(t)}, {vr(t+1)}\nv_add_f32 {vr(t+1)}, {vr(t+4)}, {vr(t+5)}")
        self.ln_tail(F, out, t, False)

    def gemm_m(self, areads, breads, AF, B4, ACC, pre_a=False, rf=vr, extra=()):
        a = self.a
        units = [(0, j) for j in range(4)] + [(1, j) for j in range(4)] + [(2, 0)]
        rd = [([] if pre_a else areads(s)) + breads(s) for s in range(5)]
        extra = list(extra)
        for x in rd[0] + rd[1]: a(x)
        younger = len(rd[1])
        for s in range(5):
            nxt = list(rd[s + 2]) if s + 2 < 5 else []
            a(f"s_waitcnt lgkmcnt({min(15, younger)})")
            k = min(len(extra), 9 - len(nxt))
            nxt, extra = extra[:k] + nxt, extra[k:]
            younger = len(rd[s + 2]) if s + 2 < 5 else (k if s + 1 < 5 else 0)
            for u, (t, j) in enumerate(units):
                d = vr(ACC + 4 * u, 4)
                if s < 4:
                    a(f"v_mfma_f32_16x16x32_bf16 {d}, {rf(AF+18*t+4*s,4)}, {vr(B4+18*j+4*s,4)}, {'0' if s == 0 else d}")
                else:
                    a(f"v_mfma_f32_16x16x16_bf16 {d}, {rf(AF+18*t+16,2)}, {vr(B4+18*j+16,2)}, {d}")
                n = 0
                if nxt: a(nxt.pop(0)); n += 1
                if len(nxt) > 8 - u: a(nxt.pop(0)); n += 1
                for _ in range(2 - n):
                    if self.fill: a(self.fill.pop(0))
            while nxt: a(nxt.pop(0))
        for x in extra: a(x)
        a("s_nop 7")

    def gemm(self, reads, B, ACC, AF):
        a = self.a
        buf = lambda T: AF + 18 * (T % 3)
        for s in reads(0, buf(0)): a(s)
        for s in reads(1, buf(1)): a(s)
        for T in range(9):
            nx = reads(T + 2, buf(T + 2)) if T + 2 < 9 else []
            a(f"s_waitcnt lgkmcnt({9 if T + 1 < 9 else 0})")
            d = vr(ACC + 4 * T, 4)
            seq = []
            for s in range(4):
                seq.append(f"v_mfma_f32_16x16x32_bf16 {d}, {vr(buf(T)+4*s,4)}, {vr(B+4*s,4)}, {'0' if s == 0 else d}")
                if s == 1 and T > 0:
                    dp = vr(ACC + 4 * (T - 1), 4)
                    seq.append(f"v_mfma_f32_16x16x16_bf16 {dp}, {vr(buf(T-1)+16,2)}, {vr(B+16,2)}, {dp}")
            k = 0
            for i, m in enumerate(seq):
                a(m)
                for _ in range(2):
                    if k < len(nx): a(nx[k]); k += 1
                for _ in range(self.o.get("zper", 1)):
                    if self.fill: a(self.fill.pop(0))
            while k < len(nx): a(nx[k]); k += 1
        dp = vr(ACC + 32, 4)
        a("s_nop 5")
        a(f"v_mfma_f32_16x16x16_bf16 {dp}, {vr(buf(8)+16,2)}, {vr(B+16,2)}, {dp}")
        a("s_nop 7")

    def tr_reads(self, ad):
        def f(T, dst):
            out = []
            for s in range(4):
                for u in range(2):
                    out.append(f"ds_read_b64_tr_b16 {vr(dst+4*s+2*u,2)}, {vr(ad+u)} offset:{9216*s + 32*T}")
            out.append(f"ds_read_b64_tr_b16 {vr(dst+16,2)}, {vr(ad+2)} offset:{36864 + 32*T}")
            return out
        return f

    def row_reads(self, ad, sw=None):
        def f(T, dst):
            r = ad if sw is None or T == 8 else sw[T & 1]
            out = []
            for s in range(4):
                for u in range(2):
                    out.append(f"ds_read_b64 {vr(dst+4*s+2*u,2)}, {vr(r)} offset:{4864*T + 64*s + 32*u}")
            out.append(f"ds_read_b64 {vr(dst+16,2)}, {vr(r)} offset:{4864*T + 256}")
            return out
        return f

    def dma_rows(self, jobs, cpr, rstride, vo, vc, n_first, first_waves, lab):
        a = self.a
        mul = {18: 3641, 19: 3450}[cpr]
        dr, dc = 256 // cpr, 256 % cpr
        a(f"s_lshl_b32 {sr(S_T)}, {sr(S_W)}, 6")
        a(f"v_add_u32 {vr(vc)}, {sr(S_T)}, v0")
        a(f"v_mul_u32_u24 {vr(vo)}, {mul}, {vr(vc)}")
        a(f"v_lshrrev_b32 {vr(vo)}, 16, {vr(vo)}")
        a(f"v_mul_u32_u24 {vr(vc+1)}, {cpr}, {vr(vo)}")
        a(f"v_sub_u32 {vr(vc)}, {vr(vc)}, {vr(vc+1)}")
        a(f"v_mul_u32_u24 {vr(vo)}, {rstride}, {vr(vo)}")
        a(f"v_lshl_add_u32 {vr(vo)}, {vr(vc)}, 4, {vr(vo)}")
        a(f"s_lshl_b32 {sr(S_T)}, {sr(S_W)}, 10")
        a(f"v_mov_b32 {vr(vc+1)}, {rstride - 16*cpr}")
        for k in range(n_first):
            if k == n_first - 1:
                a(f"s_cmp_ge_u32 {sr(S_W)}, {first_waves}\ns_cbranch_scc1 {lab}")
            for srd, so, lb in jobs:
                a(f"s_add_u32 m0, {sr(S_T)}, {lb + 4096*k}")
                a("s_nop 0")
                a(f"buffer_load_dwordx4 {vr(vo)}, {sr(srd,4)}, {so} offen lds")
            if k < n_first - 1:
                a(f"v_add_u32 {vr(vc)}, {dc}, {vr(vc)}")
                a(f"v_cmp_le_u32 vcc, {cpr}, {vr(vc)}")
                a(f"v_add_u32 {vr(vo)}, {dr*rstride + 16*dc}, {vr(vo)}")
                a(f"v_subrev_u32 {vr(vc+2)}, {cpr}, {vr(vc)}")
                a(f"v_cndmask_b32 {vr(vc)}, {vr(vc)}, {vr(vc+2)}, vcc")
                a(f"v_cndmask_b32 {vr(vc+2)}, 0, {vr(vc+1)}, vcc")
                a(f"v_add_u32 {vr(vo)}, {vr(vo)}, {vr(vc+2)}")
        a.label(lab)

    def voff_table(self, dst, cpr, rstride, vc):
        a = self.a
        mul = {18: 29128, 19: 27595}[cpr]
        a(f"s_mov_b32 {sr(S_T)}, {rstride - 16*cpr}")
        a(f"v_mul_u32_u24 {vr(dst)}, {mul}, {vr(vc)}")
        for k in range(1, 11): a(f"v_add_u32 {vr(dst+k)}, {(256*k % cpr)*mul}, {vr(dst)}")
        for k in range(11): a(f"v_lshrrev_b32 {vr(dst+k)}, 19, {vr(dst+k)}")
        for k in range(11): a(f"v_mad_i32_i24 {vr(dst+k)}, {vr(dst+k)}, {sr(S_T)}, {vr(vc+1)}")

    def dma_lin(self, srd, soff, lb, v16, lab):
        a = self.a
        a(f"s_lshl_b32 {sr(S_T)}, {sr(S_W)}, 10")
        for k in range(11):
            if k == 10:
                a(f"s_cmp_ge_u32 {sr(S_W)}, 1\ns_cbranch_scc1 {lab}")
            a(f"s_add_u32 m0, {sr(S_T)}, {lb + 4096*k}")
            a(f"s_add_u32 {sr(S_T+1)}, {sr(S_T)}, {soff + 4096*k}")
            a(f"buffer_load_dwordx4 {vr(v16)}, {sr(srd,4)}, {sr(S_T+1)} offen lds")
        a.label(lab)

    def tr_addr(self, ad, base, swapped, t):
        a = self.a
        a(f"v_lshrrev_b32 {vr(t)}, 2, v0")
        a(f"v_mul_u32_u24 {vr(t)}, 288, {vr(t)}")
        a(f"v_and_b32 {vr(t+1)}, 3, v0")
        a(f"v_lshl_add_u32 {vr(t)}, {vr(t+1)}, 3, {vr(t)}")
        a(f"v_add_u32 {vr(ad+2)}, {base}, {vr(t)}")
        if swapped:
            a(f"v_bfe_u32 {vr(t)}, v0, 4, 1")
            a(f"v_mul_u32_u24 {vr(t)}, {16*288}, {vr(t)}")
            a(f"v_add_u32 {vr(ad)}, {vr(ad+2)}, {vr(t)}")
            a(f"v_sub_u32 {vr(ad+1)}, {vr(ad+2)}, {vr(t)}")
            a(f"v_add_u32 {vr(ad+1)}, {16*288}, {vr(ad+1)}")
        else:
            a(f"v_mov_b32 {vr(ad)}, {vr(ad+2)}")
            a(f"v_add_u32 {vr(ad+1)}, {16*288}, {vr(ad+2)}")

    def row_addr(self, ad, base, t):
        a = self.a
        a(f"v_and_b32 {vr(t)}, 15, v0")
        a(f"v_mul_u32_u24 {vr(t)}, 304, {vr(t)}")
        a(f"v_lshrrev_b32 {vr(t+1)}, 4, v0")
        a(f"v_lshl_add_u32 {vr(t)}, {vr(t+1)}, 3, {vr(t)}")
        a(f"v_add_u32 {vr(ad)}, {base}, {vr(t)}")

    def store_block(self, src, v16, v8, srd, soff, soff2, flags=""):
        a = self.a
        for s in range(4):
            a(f"buffer_store_dwordx4 {vr(src+4*s,4)}, {vr(v16)}, {sr(srd,4)}, {sr(soff)} offen offset:{1024*s} {flags}")
        a(f"buffer_store_dwordx2 {vr(src+16,2)}, {vr(v8)}, {sr(srd,4)}, {sr(soff2)} offen {flags}")

    def entry(self):
        a = self.a
        kernel_header(a, NAME)
        a(f"s_load_dwordx4 s[56:59], s[0:1], 0")
        a(f"s_getpc_b64 {sr(S_W1,2)}")
        a.label("L_pf")
        a(f"""s_mov_b32 {sr(S_W1+2)}, L_fallback-L_pf
        s_mov_b32 {sr(S_W1+3)}, 0x20000
        v_lshlrev_b32 v1, 4, v0
        s_bfe_u32 {sr(S_T)}, s2, 0x30003
        s_lshl_b32 {sr(S_T)}, {sr(S_T)}, 12
        buffer_load_dwordx4 v[252:255], v1, {sr(S_W1,4)}, 0 offen
        buffer_load_dwordx4 v[252:255], v1, {sr(S_W1,4)}, {sr(S_T)} offen""")
        a(f"s_cmp_ge_u32 s2, {NWG}\ns_cbranch_scc1 L_end")
        self.stamp("start")
        a(f"s_load_dwordx4 s[60:63], s[0:1], 80")
        a(f"s_load_dwordx4 s[64:67], s[0:1], 40")
        a(f"s_load_dwordx4 s[68:71], s[0:1], 16")
        a(f"s_load_dwordx4 s[72:75], s[0:1], 64")
        a(f"v_lshrrev_b32 v1, 6, v0")
        a(f"s_and_b32 {sr(S_H)}, s2, 1")
        a(f"v_readfirstlane_b32 {sr(S_W)}, v1")
        a(f"s_bfe_u32 {sr(S_B)}, s2, 0x10001")
        a(f"s_lshr_b32 {sr(S_QB)}, s2, 2")
        a(f"v_and_b32 v0, 63, v0")
        a(f"v_lshlrev_b32 {vr(V_DMA)}, 4, v0")
        a(f"s_cmp_ge_u32 s2, 252\ns_cbranch_scc1 L_wfuse")

    def phase_a(self):
        a, o = self.a, self.o
        XR, XF, XA, BF, ACC, AF, TM = 16, 34, 70, 88, 112, 148, 208
        B4, XD = 16, 88
        VK, VQ8, VS = 224, 235, 202
        VU = 88
        AD = 240
        VR4 = 106
        T = S_T
        WV = S_T + 20
        a(f"""s_lshl_b32 {sr(T)}, {sr(S_QB)}, 1
        s_add_u32 {sr(S_TOWN)}, {sr(T)}, {sr(S_H)}
        s_xor_b32 {sr(S_TSND)}, {sr(S_TOWN)}, 1
        s_cmp_lt_u32 {sr(S_TOWN)}, {NT}
        s_cselect_b32 {sr(S_VAL)}, 1, 0
        s_cmp_lt_u32 {sr(S_W)}, 2
        s_cselect_b32 {sr(T+3)}, {sr(S_TSND)}, {sr(S_TOWN)}
        s_mul_i32 {sr(T)}, {sr(S_B)}, {NT}
        s_add_u32 {sr(S_TOWN)}, {sr(S_TOWN)}, {sr(T)}
        s_add_u32 {sr(S_TSND)}, {sr(S_TSND)}, {sr(T)}
        s_add_u32 {sr(T+1)}, {sr(T+3)}, {sr(T)}
        s_lshl_b32 {sr(T+1)}, {sr(T+1)}, 1
        s_and_b32 {sr(T+2)}, {sr(S_W)}, 1
        s_add_u32 {sr(T+2)}, {sr(T+1)}, {sr(T+2)}
        s_mul_i32 {sr(T+1)}, {sr(T+2)}, {16*288}
        s_mul_i32 {sr(S_LB)}, {sr(S_W)}, 5120
        s_add_u32 {sr(S_LB)}, {sr(S_LB)}, {L_WK}
        s_mov_b32 m0, {sr(S_LB)}
        s_mov_b32 {sr(S_X+2)}, 2304000
        s_mov_b32 {sr(S_X+3)}, 0x20000
        s_add_u32 {sr(S_CNT)}, {sr(T+1)}, 4096
        s_waitcnt lgkmcnt(0)
        s_mov_b32 {sr(S_X)}, s56
        s_mov_b32 {sr(S_X+1)}, s57""")
        for k in range(4): a(f"buffer_load_dwordx4 {vr(V_DMA)}, {sr(S_X,4)}, {sr(T+1)} offen offset:{1024*k} lds")
        a(f"s_add_u32 m0, {sr(S_LB)}, 4096\ns_mov_b32 exec_hi, 0\nbuffer_load_dwordx4 {vr(V_DMA)}, {sr(S_X,4)}, {sr(S_CNT)} offen lds\ns_mov_b32 exec_hi, -1")
        self.stamp("xiss")
        self.srd(S_OUT, 74, 75, 2304000)
        a(f"s_cmp_lt_u32 {sr(T+3)}, {NT}\ns_cselect_b32 {sr(WV)}, 1, 0\ns_mov_b32 {sr(WV+1)}, {sr(T+2)}")
        SQ, SK, SU = S_W2, S_W1, S_XA
        self.srd(SU, 64, 65, 82944)
        self.srd(SQ, 58, 59, 41472)
        self.srd(SK, 68, 69, 41472)
        a(f"s_lshr_b32 {sr(T+2)}, s2, 3\ns_lshl_b32 {sr(T+2)}, {sr(T+2)}, 2\ns_add_u32 {sr(T+2)}, {sr(T+2)}, {sr(S_W)}")
        npf = 3
        for srd_, rot in ((SU, 46), (SQ, 0), (SK, 87)):
            a(f"s_add_u32 {sr(T+3)}, {sr(T+2)}, {rot}\ns_and_b32 {sr(T+3)}, {sr(T+3)}, 127\ns_lshl_b32 {sr(T+3)}, {sr(T+3)}, 10")
            a(f"buffer_load_dwordx4 v[252:255], {vr(V_DMA)}, {sr(srd_,4)}, {sr(T+3)} offen")
        W10, UOFF, M1, M3 = S_T + 22, S_T + 23, S_T + 18, S_T + 19
        a(f"""s_lshl_b32 {sr(W10)}, {sr(S_W)}, 10
        s_mul_i32 {sr(UOFF)}, {sr(S_H)}, 288
        s_cmp_eq_u32 {sr(S_W)}, 0
        s_cselect_b32 {sr(M1)}, 0, {L_DUMP}
        s_cmp_lt_u32 {sr(S_W)}, 3
        s_cselect_b32 {sr(M3)}, {sr(W10)}, {L_DUMP}""")
        gq = [f"s_add_u32 m0, {sr(W10 if k < 10 else M1)}, {L_WQ + 4096*k}\ns_add_u32 {sr(S_CNT)}, {sr(W10)}, {4096*k}\nbuffer_load_dwordx4 {vr(V_DMA)}, {sr(SQ,4)}, {sr(S_CNT)} offen lds" for k in range(11)]
        gk = [f"s_add_u32 m0, {sr(W10 if k < 10 else M3)}, {L_WK + 4096*k}\ns_mov_b32 {sr(S_CNT)}, {4096*k - 16*(256*k//19)}\nbuffer_load_dwordx4 {vr(VK+k)}, {sr(SK,4)}, {sr(S_CNT)} offen lds" for k in range(11)]
        gu = [f"s_add_u32 m0, {sr(W10 if k < 10 else M1)}, {L_WU + 4096*k}\ns_add_u32 {sr(S_CNT)}, {sr(UOFF)}, {4096*k + 288*(256*k//18)}\nbuffer_load_dwordx4 {vr(VU+k)}, {sr(SU,4)}, {sr(S_CNT)} offen lds" for k in range(11)]
        allg = gu + gq + gk
        a(f"s_lshl_b32 {sr(T)}, {sr(S_W)}, 6\nv_add_u32 {vr(TM+14)}, {sr(T)}, v0\nv_lshlrev_b32 {vr(TM+15)}, 4, {vr(TM+14)}")
        self.voff_table(VU, 18, 576, TM + 14)
        self.srd(S_WS, 62, 63, WS_END)
        t0, t1, t2 = TM + 10, TM + 11, TM + 12
        a(f"""v_and_b32 {vr(t0)}, 15, v0
        v_lshrrev_b32 {vr(t1)}, 5, v0
        v_lshlrev_b32 {vr(t1)}, 3, {vr(t1)}
        v_xor_b32 {vr(t1)}, {vr(t0)}, {vr(t1)}
        v_lshlrev_b32 {vr(t1)}, 4, {vr(t1)}
        v_lshrrev_b32 {vr(t2)}, 4, v0
        v_lshl_add_u32 {vr(V_KA)}, {vr(t2)}, 9, {vr(t1)}
        v_lshrrev_b32 {vr(t1)}, 3, {vr(t0)}
        v_lshlrev_b32 {vr(t1)}, 1, {vr(t1)}
        v_xor_b32 {vr(t1)}, {vr(t2)}, {vr(t1)}
        v_lshl_add_u32 {vr(t1)}, {vr(t0)}, 2, {vr(t1)}
        v_lshlrev_b32 {vr(V_KA+1)}, 3, {vr(t1)}
        v_lshlrev_b32 {vr(AD+6)}, 3, v0""")
        a(f"""v_and_b32 v3, 15, v0
        v_mul_u32_u24 v3, 288, v3
        v_lshrrev_b32 v4, 4, v0
        v_lshl_add_u32 v3, v4, 3, v3
        v_add_u32 v5, {sr(S_LB)}, v3
        v_and_b32 v4, 1, v4
        v_lshlrev_b32 v4, 5, v4
        v_add_u32 v3, v5, v4
        v_xor_b32 v4, 32, v4
        v_add_u32 v4, v5, v4""")
        self.tr_addr(AD, L_WU, True, t0)
        for j in range(4):
            a(f"s_add_u32 {sr(T)}, {sr(S_W)}, {j}\ns_and_b32 {sr(T)}, {sr(T)}, 3\ns_lshl_b32 {sr(T+1)}, {sr(T)}, 12\ns_add_u32 {sr(T+1)}, {sr(T+1)}, {L_XX}")
            a(f"s_lshl_b32 {sr(T)}, {sr(T)}, 9\ns_add_u32 {sr(T)}, {sr(T)}, {L_QR}")
            a(f"v_add_u32 {vr(VS+j)}, {sr(T+1)}, {vr(V_DMA)}\nv_add_u32 {vr(VR4+j)}, {sr(T)}, {vr(AD+6)}")
        npre = o.get("npre", 11)
        self.stamp("pre")
        for g_ in allg[:npre]: a(g_)
        self.voff_table(VK, 19, 288, TM + 14)
        self.srd(S_DB, 60, 61, 256)
        self.srd(S_DW, 66, 67, 864)
        self.stamp("wiss")
        a(f"s_waitcnt vmcnt({npf + npre})")
        self.stamp("xarr")
        for s in range(4):
            a(f"ds_read_b64 {vr(XR+4*s,2)}, v3 offset:{64*s}\nds_read_b64 {vr(XR+4*s+2,2)}, v4 offset:{64*s}")
        a(f"ds_read_b64 {vr(XR+16,2)}, v5 offset:256")
        for g_ in allg[npre:npre + o.get("nmid", 2)]: a(g_)
        npre += o.get("nmid", 2)
        a("s_waitcnt lgkmcnt(0)")
        nis = npre + o.get("nln", 7)
        assert nis >= 11
        a.bg, a.every, a.cnt = allg[npre:nis], o.get("evln", 18), 0
        self.ln_packed(XR, XF, XA, TM)
        a.flush()
        a(f"""s_cmp_lt_u32 {sr(S_W)}, 2
        s_cbranch_scc1 L_nopub
        s_cmp_eq_u32 {sr(S_VAL)}, 0
        s_cbranch_scc1 L_nopub
        s_and_b32 {sr(T)}, {sr(S_W)}, 1
        s_mul_i32 {sr(T+2)}, {sr(S_TOWN)}, {TILE}
        s_lshl_b32 {sr(T+3)}, {sr(T)}, 8
        s_add_u32 {sr(T+3)}, {sr(T+3)}, {sr(T+2)}
        s_add_u32 {sr(T+4)}, {sr(T+3)}, 4096
        s_lshl_b32 {sr(T+5)}, {sr(T)}, 9
        s_add_u32 {sr(T+5)}, {sr(T+5)}, {sr(T+2)}
        s_add_u32 {sr(T+5)}, {sr(T+5)}, 8192""")
        for s in range(4):
            a(f"buffer_store_dwordx4 {vr(XA+4*s,4)}, {vr(V_KA)}, {sr(S_WS,4)}, {sr(T+3+(s>>1))} offen offset:{2048*(s&1)} sc1")
        a(f"buffer_store_dwordx2 {vr(XA+16,2)}, {vr(V_KA+1)}, {sr(S_WS,4)}, {sr(T+5)} offen sc1")
        a("s_branch L_bar1")
        a.label("L_nopub")
        a(f"""s_mul_i32 {sr(T)}, s2, {IB}
        s_and_b32 {sr(T+1)}, {sr(S_W)}, 1
        s_mul_i32 {sr(T+1)}, {sr(T+1)}, 5120
        s_add_u32 {sr(T)}, {sr(T)}, {sr(T+1)}
        s_add_u32 {sr(T)}, {sr(T)}, {WS_IB}
        s_add_u32 {sr(T+1)}, {sr(T)}, 4096""")
        for i in range(4): a(f"v_mov_b32 {vr(XR+i)}, -1")
        for i in range(4): a(f"buffer_store_dwordx4 {vr(XR,4)}, {vr(V_DMA)}, {sr(S_WS,4)}, {sr(T)} offen offset:{1024*i} sc1")
        a(f"buffer_store_dwordx4 {vr(XR,4)}, {vr(V_DMA)}, {sr(S_WS,4)}, {sr(T+1)} offen sc1")
        a.label("L_bar1")
        self.stamp("pub")
        for s in range(4): a(f"ds_write_b128 {vr(VS)}, {vr(XA+4*s,4)} offset:{1024*s}")
        a(f"ds_write_b64 {vr(VR4)}, {vr(XA+16,2)} offset:{L_XR - L_QR}")
        a(f"v_mov_b32 {vr(t0)}, {L_MX}\nv_mov_b32 {vr(t1)}, 0\nds_write_b32 {vr(t0)}, {vr(t1)}")
        a(f"s_waitcnt vmcnt({nis - 11 + 5}) lgkmcnt(0)\ns_barrier")
        self.stamp("bar1")
        self.fill = [f"v_accvgpr_write_b32 {ar(A_O+i)}, 0" for i in range(144)]
        zf, self.fill = self.fill, []
        nu = min(33, nis + o.get("nu", 8))
        a.bg, a.every, a.cnt = allg[nis:nu], o.get("evu", 15), 0
        self.gemm(self.tr_reads(AD), XA, ACC, AF)
        a.flush()
        self.stamp("up")
        a(f"""s_cmp_lt_u32 {sr(S_W)}, 2
        s_cbranch_scc1 L_sig
        s_cmp_eq_u32 {sr(S_VAL)}, 0
        s_cbranch_scc1 L_sig
        s_waitcnt vmcnt({nu - nis})
        v_mov_b32 {vr(t0)}, {L_MX}
        v_mov_b32 {vr(t1)}, 1
        s_mov_b64 exec, 1
        ds_add_rtn_u32 {vr(t2)}, {vr(t0)}, {vr(t1)}
        s_sub_u32 {sr(T)}, {sr(S_TOWN)}, 63
        s_mul_i32 {sr(T+1)}, {sr(S_B)}, {NT}
        s_cmp_ge_i32 {sr(T)}, {sr(T+1)}
        s_cselect_b32 {sr(T)}, 64, 0
        s_lshl_b32 {sr(T+1)}, {sr(S_B)}, 7
        s_add_u32 {sr(T)}, {sr(T)}, {sr(T+1)}
        s_waitcnt lgkmcnt(0)
        v_readfirstlane_b32 {sr(T+1)}, {vr(t2)}
        v_mov_b32 {vr(t0)}, {sr(T)}
        s_cmp_eq_u32 {sr(T+1)}, 1
        s_cbranch_scc0 L_sig0
        buffer_atomic_add {vr(t1)}, {vr(t0)}, {sr(S_DB,4)}, 0 offen sc1""")
        a.label("L_sig0")
        a("s_mov_b64 exec, -1")
        a.label("L_sig")
        self.stamp("sig")
        for j in range(4):
            for s in range(4): a(f"ds_read_b128 {vr(B4+18*j+4*s,4)}, {vr(VS+j)} offset:{1024*s}")
            a(f"ds_read_b64 {vr(B4+18*j+16,2)}, {vr(VR4+j)} offset:{L_XR - L_QR}")
        for j in range(4): a(f"v_add_u32 {vr(VS+j)}, {sr(W10)}, {vr(VS+j)}")
        p = lambda r: vr(r, 2)
        CC = TM
        c1 = -2.0 * math.sqrt(2.0 / math.pi) * LOG2E
        c2 = c1 * 0.044715
        a(f"v_mov_b32 {vr(CC)}, {f32(c1)}\nv_mov_b32 {vr(CC+2)}, {f32(c2)}\nv_mov_b32 {vr(CC+4)}, 1.0")
        G_ = AF
        a.bg, a.every, a.cnt = allg[nu:], o.get("evg", 8), 0
        for i in range(18): a(f"v_pk_mul_f32 {p(G_+2*i)}, {p(ACC+2*i)}, {p(ACC+2*i)}")
        for i in range(18): a(f"v_pk_fma_f32 {p(G_+2*i)}, {p(G_+2*i)}, {p(CC+2)}, {p(CC)} op_sel_hi:[1,0,0]")
        for i in range(18): a(f"v_pk_mul_f32 {p(G_+2*i)}, {p(G_+2*i)}, {p(ACC+2*i)}")
        for i in range(36): a(f"v_exp_f32 {vr(G_+i)}, {vr(G_+i)}")
        for i in range(18): a(f"v_pk_add_f32 {p(G_+2*i)}, {p(G_+2*i)}, {p(CC+4)} op_sel_hi:[1,0]")
        a.flush()
        for i in range(36): a(f"v_rcp_f32 {vr(G_+i)}, {vr(G_+i)}")
        for i in range(18): a(f"v_pk_mul_f32 {p(ACC+2*i)}, {p(G_+2*i)}, {p(ACC+2*i)}")
        UG = AF
        a(f"""s_mul_i32 {sr(T)}, {sr(WV+1)}, {BLK}
        s_cmp_eq_u32 {sr(S_H)}, 1
        s_cbranch_scc1 L_ln2
        s_add_u32 {sr(T)}, {sr(T)}, {WS_U}""")
        for i in range(18): a(f"v_cvt_pk_bf16_f32 {vr(UG+i)}, {vr(ACC+2*i)}, {vr(ACC+2*i+1)}")
        a("s_branch L_ug")
        a.label("L_ln2")
        a(f"s_add_u32 {sr(T)}, {sr(T)}, {WS_G}")
        self.ln_f32(ACC, UG, TM)
        a.label("L_ug")
        a(f"s_cmp_eq_u32 {sr(WV)}, 1\ns_cselect_b32 {sr(T)}, {sr(T)}, 0x40000000\ns_add_u32 {sr(T+1)}, {sr(T)}, 4096")
        self.store_block(UG, V_DMA, AD + 6, S_WS, T, T + 1, "sc1")
        self.stamp("ug")
        a("s_waitcnt lgkmcnt(0)")
        for j in range(4): a(f"ds_read_b128 {vr(XD+4*j,4)}, {vr(VS+j)}")
        a(f"v_mov_b32 {vr(XD+16)}, {vr(B4+16)}\nv_mov_b32 {vr(XD+17)}, {vr(B4+17)}")
        a(f"s_lshl_b32 {sr(T)}, {sr(S_W)}, 6\ns_add_u32 {sr(T)}, {sr(T)}, {L_WQ - L_WU}")
        for k in range(3):
            a(f"v_add_u32 {vr(AD+3+k)}, {sr(T)}, {vr(AD+k)}\nv_add_u32 {vr(VQ8+k)}, {L_WQ - L_WU + 256}, {vr(AD+k)}")
        self.row_addr(AD + 9, L_WK + 8 * 4864, t0)
        a(f"""s_mul_i32 {sr(T)}, {sr(S_W)}, {2*4864}
        s_sub_u32 {sr(T)}, {sr(T)}, {8*4864}
        v_add_u32 {vr(t1)}, {sr(T)}, {vr(AD+9)}
        v_bfe_u32 {vr(t0)}, v0, 2, 1
        v_mul_u32_u24 {vr(t0)}, 4864, {vr(t0)}
        v_add_u32 {vr(AD+7)}, {vr(t1)}, {vr(t0)}
        v_sub_u32 {vr(AD+8)}, {vr(t1)}, {vr(t0)}
        s_waitcnt vmcnt(5) lgkmcnt(0)
        s_barrier""")
        self.stamp("bar2")

        def a_tr(s):
            out = []
            for t in range(3):
                ad, off = (AD + 3, 32 * t) if t < 2 else (VQ8, 0)
                if s < 4:
                    for u in range(2): out.append(f"ds_read_b64_tr_b16 {vr(AF+18*t+4*s+2*u,2)}, {vr(ad+u)} offset:{9216*s + off}")
                else: out.append(f"ds_read_b64_tr_b16 {vr(AF+18*t+16,2)}, {vr(ad+2)} offset:{36864 + off}")
            return out

        def a_row(s):
            out = []
            for t in range(3):
                ad, off = (AD + 7 + t, 4864 * t) if t < 2 else (AD + 9, 0)
                if s < 4:
                    for u in range(2): out.append(f"ds_read_b64 {ar(A_Q+18*t+4*s+2*u,2)}, {vr(ad)} offset:{off + 64*s + 32*u}")
                else: out.append(f"ds_read_b64 {ar(A_Q+18*t+16,2)}, {vr(ad)} offset:{off + 256}")
            return out

        def pack_units(dst):
            for j in range(4):
                for t in range(2):
                    for h in range(2):
                        r = ACC + 16 * t + 4 * j + 2 * h
                        a(f"v_cvt_pk_bf16_f32 {vr(dst+4*j+2*t+h)}, {vr(r)}, {vr(r+1)}")
            for h in range(2): a(f"v_cvt_pk_bf16_f32 {vr(dst+16+h)}, {vr(ACC+32+2*h)}, {vr(ACC+33+2*h)}")
        self.fill = zf[:72]
        a(f"""s_lshl_b32 {sr(T)}, s2, 6
        s_and_b32 {sr(T)}, {sr(T)}, 0xff
        v_mov_b32 {vr(TM)}, {sr(T)}
        buffer_load_dword {vr(TM+1)}, {vr(TM)}, {sr(S_DB,4)}, 0 offen sc1""")
        self.gemm_m(a_tr, lambda s: [], AF, B4, ACC, extra=[x for s in range(5) for x in a_row(s)])
        PK = TM - 6 + 0
        PK = 184
        pack_units(B4)
        for j in range(4): a(f"ds_write_b128 {vr(VS+j)}, {vr(B4+4*j,4)}")
        a(f"ds_write_b64 {vr(VR4)}, {vr(B4+16,2)} offset:{L_XR - L_QR}")
        for j in range(4): a(f"v_subrev_u32 {vr(VS+j)}, {sr(W10)}, {vr(VS+j)}")
        self.stamp("q")
        a(f"""s_cmp_lg_u32 {sr(S_W)}, 0
        s_cbranch_scc1 L_bar3
        s_sub_u32 {sr(T+1)}, 63, {sr(S_H)}
        s_mov_b32 {sr(T+2)}, 0
        s_branch L_pollc""")
        a.label("L_poll")
        a(f"buffer_load_dword {vr(TM+1)}, {vr(TM)}, {sr(S_DB,4)}, 0 offen sc1")
        a.label("L_pollc")
        a(f"""s_add_u32 {sr(T+2)}, {sr(T+2)}, 1
        s_waitcnt vmcnt(0)
        v_readfirstlane_b32 {sr(T+3)}, {vr(TM+1)}
        s_cmp_ge_u32 {sr(T+3)}, {sr(T+1)}
        s_cbranch_scc1 L_bar3
        s_cmp_lt_u32 {sr(T+2)}, 0x40000
        s_cbranch_scc1 L_poll""")
        a.label("L_bar3")
        a(f"""s_mul_i32 {sr(T)}, {sr(S_B)}, {NT}
        s_mul_i32 {sr(T+1)}, {sr(S_H)}, 63
        s_add_u32 {sr(T+1)}, {sr(T+1)}, {sr(T)}
        s_mul_i32 {sr(T+1)}, {sr(T+1)}, {TILE}
        s_add_u32 {sr(S_XA)}, {sr(S_WS)}, {sr(T+1)}
        s_addc_u32 {sr(S_XA+1)}, {sr(S_WS+1)}, 0
        s_sub_u32 {sr(T+2)}, 63, {sr(S_H)}
        s_mul_i32 {sr(S_XA+2)}, {sr(T+2)}, {TILE}
        s_mov_b32 {sr(S_XA+3)}, 0x20000
        s_mul_i32 {sr(S_LB)}, {sr(S_W)}, {TILE}
        s_mov_b32 {sr(S_TOFF)}, {sr(S_LB)}
        s_add_u32 {sr(T+3)}, {sr(S_W)}, 60
        s_cmp_ge_u32 {sr(T+3)}, {sr(T+2)}
        s_cselect_b32 {sr(S_DUM)}, 4, 99
        s_mov_b32 {sr(S_REDO)}, 0
        v_add_u32 {vr(V_DMA+1)}, 4096, {vr(V_DMA)}
        v_add_u32 {vr(V_DMA+2)}, 8192, {vr(V_DMA)}
        s_waitcnt lgkmcnt(0)
        s_barrier""")
        self.stamp("bar3")

        def b_q(s):
            if s < 4: return [f"ds_read_b128 {vr(B4+18*j+4*s,4)}, {vr(VS+j)} offset:{1024*s}" for j in range(4)]
            return [f"ds_read_b64 {vr(B4+18*j+16,2)}, {vr(VR4+j)} offset:{L_XR - L_QR}" for j in range(4)]
        self.fill = self.fill + zf[72:]
        if o.get("t0", 1): a.bg, a.every, a.cnt = self.tile_groups(0), o.get("evt", 3), 0
        self.gemm_m(None, b_q, A_Q, B4, ACC, pre_a=True, rf=ar)
        a.flush()
        self.stamp("g2")
        if o.get("t1", 1): a.bg, a.every, a.cnt = self.tile_groups(1), o.get("evt1", 6), 0
        while self.fill: a(self.fill.pop(0))
        a(f"v_mov_b32 {vr(CC)}, {f32(LOG2E / 12.0)}")
        for j in range(4): a(f"v_add_u32 {vr(VS+j)}, {sr(W10)}, {vr(VS+j)}")
        for i in range(18): a(f"v_pk_mul_f32 {p(ACC+2*i)}, {p(ACC+2*i)}, {p(CC)} op_sel_hi:[1,0]")
        pack_units(B4)
        for j in range(4): a(f"ds_write_b128 {vr(VS+j)}, {vr(B4+4*j,4)} offset:{L_QX - L_XX}")
        a(f"ds_write_b64 {vr(VR4)}, {vr(B4+16,2)}")
        for j in range(4): a(f"v_dot2_f32_bf16 {vr(CC+j)}, {vr(B4+4*j)}, {vr(XD+4*j)}, 0")
        for i in range(1, 4):
            for j in range(4): a(f"v_dot2_f32_bf16 {vr(CC+j)}, {vr(B4+4*j+i)}, {vr(XD+4*j+i)}, {vr(CC+j)}")
        for i in range(2): a(f"v_dot2_f32_bf16 {vr(CC)}, {vr(B4+16+i)}, {vr(XD+16+i)}, {vr(CC)}")
        a(f"""v_and_b32 {vr(t0)}, 15, v0
        v_lshlrev_b32 {vr(t0)}, 4, {vr(t0)}
        v_add_u32 {vr(t0)}, {L_MX}, {vr(t0)}
        s_lshl_b32 {sr(T+1)}, {sr(S_W)}, 2""")
        self.greduce([CC + j for j in range(4)], CC + 4)
        for j in range(4):
            a(f"s_add_u32 {sr(T)}, {sr(S_W)}, {j}\ns_and_b32 {sr(T)}, {sr(T)}, 3\ns_lshl_b32 {sr(T)}, {sr(T)}, 8\ns_add_u32 {sr(T)}, {sr(T)}, {sr(T+1)}")
            a(f"v_add_u32 {vr(CC+4+j)}, {sr(T)}, {vr(t0)}")
        for j in range(4): a(f"ds_write_b32 {vr(CC+4+j)}, {vr(CC+j)}")
        a.flush()
        a("s_waitcnt lgkmcnt(0)\ns_barrier")
        self.stamp("bar4")
        a(f"v_add_u32 {vr(t1)}, {L_QX}, {vr(V_DMA)}\nv_add_u32 {vr(t2)}, {L_QR}, {vr(AD+6)}")
        MS = 184
        for qb in range(4): a(f"ds_read_b128 {vr(MS+4*qb,4)}, {vr(t0)} offset:{256*qb}")
        for qb in range(4):
            for s in range(4):
                a(f"ds_read_b128 {ar(A_Q+18*qb+4*s,4)}, {vr(t1)} offset:{4096*qb + 1024*s}")
            a(f"ds_read_b64 {ar(A_Q+18*qb+16,2)}, {vr(t2)} offset:{512*qb}")
        a(f"""v_add_u32 {vr(V_KA)}, {sr(S_LB)}, {vr(V_KA)}
        v_add_u32 {vr(V_KA+1)}, {sr(S_LB)}, {vr(V_KA+1)}
        v_lshrrev_b32 {vr(t0)}, 2, v0
        v_bfe_u32 {vr(t1)}, v0, 1, 1
        v_lshlrev_b32 {vr(t1)}, 3, {vr(t1)}
        v_xor_b32 {vr(t1)}, {vr(t0)}, {vr(t1)}
        v_lshlrev_b32 {vr(t1)}, 4, {vr(t1)}
        v_and_b32 {vr(t2)}, 3, v0
        v_lshl_add_u32 {vr(t1)}, {vr(t2)}, 9, {vr(t1)}
        v_and_b32 {vr(V_VA)}, 1, v0
        v_lshl_add_u32 {vr(t1)}, {vr(V_VA)}, 3, {vr(t1)}
        v_add_u32 {vr(V_VA)}, {sr(S_LB)}, {vr(t1)}
        v_xor_b32 {vr(V_VA+1)}, 8, {vr(V_VA)}
        v_lshrrev_b32 {vr(t1)}, 5, v0
        v_lshlrev_b32 {vr(t1)}, 1, {vr(t1)}
        v_xor_b32 {vr(t1)}, {vr(t2)}, {vr(t1)}
        v_lshl_add_u32 {vr(t1)}, {vr(t0)}, 2, {vr(t1)}
        v_lshlrev_b32 {vr(t1)}, 3, {vr(t1)}
        v_add_u32 {vr(V_VR)}, {sr(S_LB)}, {vr(t1)}""")
        a("s_waitcnt lgkmcnt(15)")
        for qb in range(4):
            m = MS + 4 * qb
            a(f"v_add_f32 {vr(m)}, {vr(m)}, {vr(m+1)}\nv_add_f32 {vr(m+2)}, {vr(m+2)}, {vr(m+3)}")
        for qb in range(4):
            m = MS + 4 * qb
            a(f"v_add_f32 {vr(m)}, {vr(m)}, {vr(m+2)}")
        for qb in range(4):
            for i in range(4): a(f"v_sub_f32 {vr(V_CI+4*qb+i)}, 0, {vr(MS+4*qb)}")
        for k in range(5): a(f"v_add_u32 {vr(V_HI+k)}, {2*SLOT}, {vr(V_KA+k)}")
        a("s_waitcnt vmcnt(9) lgkmcnt(0)\ns_barrier")
        self.stamp("bar5")

    def tile_groups(self, slot):
        out = []
        for j in range(9):
            g = ""
            if j % 4 == 0: g = f"s_add_u32 m0, {sr(S_LB)}, {slot*SLOT + 4096*(j//4)}\ns_nop 0\n"
            g += f"buffer_load_dwordx4 {vr(V_DMA + j//4)}, {sr(S_XA,4)}, {sr(S_TOFF)} offen offset:{1024*(j%4)} lds"
            if j == 8: g += f"\ns_add_u32 {sr(S_TOFF)}, {sr(S_TOFF)}, {4*TILE}"
            out.append(g)
        return out

    def first_tiles(self):
        pass

    def wfuse(self):
        a = self.a
        BF, ACC, AF, TM, AD = 88, 108, 144, 208, 240
        LA, LB_, LM = 0, 44032, 88064
        T = S_T
        a.label("L_wfuse")
        a(f"s_load_dwordx2 s[4:5], s[0:1], 32\ns_load_dwordx2 s[6:7], s[0:1], 56\ns_waitcnt lgkmcnt(0)")
        self.srd(S_WS, 62, 63, WS_END)
        self.srd(S_DB, 60, 61, 256)
        self.srd(S_X, 72, 73, 82944)
        self.srd(S_W2, 70, 71, 41472)
        a(f"""s_cmp_eq_u32 s2, 252
        s_cselect_b32 {sr(S_W1)}, s4, s6
        s_cselect_b32 {sr(S_W1+1)}, s5, s7
        s_mov_b32 {sr(S_W1+2)}, 41472
        s_mov_b32 {sr(S_W1+3)}, 0x20000
        s_cselect_b32 {sr(T+4)}, 0, 41472""")
        self.dma_rows([(S_W1, "0", LA), (S_W2, "0", LB_)], 19, 288, TM + 4, TM + 5, 11, 3, "L_wf1")
        a(f"s_lshl_b32 {sr(T)}, {sr(S_W)}, 10\ns_add_u32 {sr(T+2)}, {sr(T)}, {sr(T+4)}")
        for k in range(11):
            if k == 10: a(f"s_cmp_ge_u32 {sr(S_W)}, 1\ns_cbranch_scc1 L_wf2")
            a(f"s_add_u32 m0, {sr(T)}, {LM + 4096*k}\ns_add_u32 {sr(T+1)}, {sr(T+2)}, {4096*k}")
            a(f"buffer_load_dwordx4 {vr(V_DMA)}, {sr(S_X,4)}, {sr(T+1)} offen lds")
        a.label("L_wf2")
        self.tr_addr(AD, LM, False, TM + 8)
        self.row_addr(AD + 3, LA, TM + 8)
        a(f"v_add_u32 {vr(AD+5)}, {LB_}, {vr(AD+3)}")
        a(f"v_lshlrev_b32 {vr(AD+4)}, 3, v0")
        a(f"s_lshl_b32 {sr(T)}, {sr(S_W)}, 5")
        for k in range(3): a(f"v_add_u32 {vr(AD+k)}, {sr(T)}, {vr(AD+k)}")
        a(f"s_mov_b32 {sr(S_CNT)}, {sr(S_W)}")
        a("s_waitcnt vmcnt(0)\ns_barrier")
        a.label("L_wfl")
        for s in self.tr_reads(AD)(0, BF): a(s)
        a("s_waitcnt lgkmcnt(0)")
        self.gemm(self.row_reads(AD + 3), BF, ACC, AF)
        for i in range(18): a(f"v_cvt_pk_bf16_f32 {vr(BF+i)}, {vr(ACC+2*i)}, {vr(ACC+2*i+1)}")
        a("s_cmp_eq_u32 s2, 252\ns_cbranch_scc0 L_wf3")
        self.gemm(self.row_reads(AD + 5), BF, ACC, AF)
        for i in range(18): a(f"v_cvt_pk_bf16_f32 {vr(BF+i)}, {vr(ACC+2*i)}, {vr(ACC+2*i+1)}")
        a.label("L_wf3")
        a(f"""s_mul_i32 {sr(T)}, {sr(S_CNT)}, {BLK}
        s_add_u32 {sr(T)}, {sr(T)}, {sr(T+4)}
        s_add_u32 {sr(T)}, {sr(T)}, {WS_WF}
        s_add_u32 {sr(T+1)}, {sr(T)}, 4096""")
        self.store_block(BF, V_DMA, AD + 4, S_WS, T, T + 1, "sc1")
        for k in range(3): a(f"v_add_u32 {vr(AD+k)}, 128, {vr(AD+k)}")
        a(f"s_add_u32 {sr(S_CNT)}, {sr(S_CNT)}, 4\ns_cmp_lt_u32 {sr(S_CNT)}, 9\ns_cbranch_scc1 L_wfl")
        a(f"""s_waitcnt vmcnt(0)
        s_barrier
        s_cmp_lg_u32 {sr(S_W)}, 0
        s_cbranch_scc1 L_end
        s_mov_b64 exec, 1
        v_mov_b32 {vr(TM)}, 1
        v_mov_b32 {vr(TM+1)}, {DB_CW}
        buffer_atomic_add {vr(TM)}, {vr(TM+1)}, {sr(S_DB,4)}, 0 offen sc1
        v_mov_b32 {vr(TM+1)}, {DB_CW + 128}
        buffer_atomic_add {vr(TM)}, {vr(TM+1)}, {sr(S_DB,4)}, 0 offen sc1
        s_endpgm""")

    def dump_stamps(self):
        a = self.a
        if self.o.get("dbgst"):
            a("s_waitcnt vmcnt(0)")
            self.stamp("done")
            a("s_waitcnt lgkmcnt(0)\ns_mov_b64 exec, 1")
            slots = [1, 2, 3, 4, 5, 6, 7, 9, 11, 12, 13, 14, 15]
            a(f"s_not_b32 {sr(S_T)}, {sr(S_ST)}\nv_mov_b32 v16, {sr(S_T)}\nv_mov_b32 v17, 4\nbuffer_atomic_umax v16, v17, {sr(S_DB,4)}, 0 offen sc1")
            for i in range(min(self.nst, 12)):
                a(f"v_mov_b32 v{18+2*i}, {sr(S_ST+2*i)}\nv_mov_b32 v{19+2*i}, {4*slots[i+1]}\nbuffer_atomic_umax v{18+2*i}, v{19+2*i}, {sr(S_DB,4)}, 0 offen sc1")
            return
        if not self.o.get("stamps"): return
        T = S_T
        a(f"""s_waitcnt lgkmcnt(0)
        s_lshl_b32 {sr(T)}, s2, 2
        s_add_u32 {sr(T)}, {sr(T)}, {sr(S_W)}
        s_lshl_b32 {sr(T)}, {sr(T)}, 7
        s_add_u32 {sr(T)}, {sr(T)}, {WS_DBG}
        v_mov_b32 v1, 0""")
        for i in range(26): a(f"v_mov_b32 {vr(16+i)}, {sr(S_ST+i)}")
        for i in range(7): a(f"buffer_store_dwordx4 {vr(16+4*i,4)}, v1, {sr(S_WS,4)}, {sr(T)} offen offset:{16*i}")

    def build(self):
        a = self.a
        self.stnames = []
        a.raw(f"; @launch grid=({NWG},1,1) block=(256,1,1) lds={LDS_TOTAL}")
        a.raw('.amdgcn_target "amdgcn-amd-amdhsa--gfx950"')
        a.raw(".text")
        a.raw(f".globl {NAME}")
        self.entry()
        self.phase_a()
        self.rest()
        a.label("L_fin")
        self.dump_stamps()
        a.label("L_end")
        a("s_endpgm")
        self.fallback()
        self.wfuse()
        a.raw('.section .rodata,"a"')
        a.raw(".p2align 6")
        a.raw(kernel_desc(NAME, 512, 102, 256))
        return a.text()

    def S(self, buf, qb, i=0): return V_S + buf * 32 + qb * 8 + i
    def P(self, buf, qb, i=0): return V_P + buf * 16 + qb * 4 + i

    def k_reads(self, slot):
        ka, so = (V_KA, slot * SLOT) if slot < 2 else (V_HI, (slot - 2) * SLOT)
        out = [f"ds_read_b128 {vr(V_K+8*s+4*kb,4)}, {vr(ka)} offset:{so + 2048*s + 256*kb}" for s in range(4) for kb in range(2)]
        out += [f"ds_read_b64 {vr(V_K+32+2*kb,2)}, {vr(ka+1)} offset:{so + 8192 + 512*kb}" for kb in range(2)]
        return out

    def v_reads(self, slot):
        ka, so = (V_KA, slot * SLOT) if slot < 2 else (V_HI, (slot - 2) * SLOT)
        out = []
        for T in range(9):
            for u in range(2):
                if T < 8: out.append(f"ds_read_b64_tr_b16 {vr(V_V+4*T+2*u,2)}, {vr(ka+2+(T&1))} offset:{so + 2048*(T>>1) + 256*u}")
                else: out.append(f"ds_read_b64_tr_b16 {vr(V_V+4*T+2*u,2)}, {vr(ka+4)} offset:{so + 8192 + 512*u}")
        return out

    def qk_mfmas(self, buf, czero=False):
        out = []
        for s in range(5):
            for kb in range(2):
                for qb in range(4):
                    d = vr(self.S(buf, qb, 4 * kb), 4)
                    c = ("0" if czero else vr(V_CI + 4 * qb, 4)) if s == 0 else d
                    if s < 4: out.append(f"v_mfma_f32_16x16x32_bf16 {d}, {vr(V_K+8*s+4*kb,4)}, {ar(A_Q+18*qb+4*s,4)}, {c}")
                    else: out.append(f"v_mfma_f32_16x16x16_bf16 {d}, {vr(V_K+32+2*kb,2)}, {ar(A_Q+18*qb+16,2)}, {c}")
        return out

    def pv_mfmas(self, buf):
        out = []
        for T in range(9):
            for qb in range(4):
                o = ar(A_O + 36 * qb + 4 * T, 4)
                out.append(f"v_mfma_f32_16x16x32_bf16 {o}, {vr(V_V+4*T,4)}, {vr(self.P(buf,qb),4)}, {o}")
        return out

    def plan(self):
        o = self.o
        n = 76
        fixed = [None] * n
        for i, g in enumerate(range(1, 36, 2)): fixed[g] = ("V", i)
        for i, g in enumerate([41, 44, 47, 50, 53, 56, 59, 62, 65, 68]): fixed[g] = ("K", i)
        for i, g in enumerate([42, 46, 49, 52, 55, 58, 61, 64, 67]): fixed[g] = ("D", i)
        exps = [(qb, j) for qb in range(4) for j in range(8)]
        start = 40
        order = [(start + k) % n for k in range(n)]
        free_idx = [k for k, g in enumerate(order) if fixed[g] is None]
        nsm = len(free_idx) - 32
        cand = free_idx[6:-2]
        sm_set = set(free_idx[-2:]) | {cand[int((i + 0.5) * len(cand) / (nsm - 2))] for i in range(nsm - 2)}
        nds = sum(1 for f in fixed if f is not None and f[0] != "D")
        over = 48 - nds - 2 * nsm
        ocand = [k for k, g in enumerate(order) if k >= 20 and (fixed[g] is None or fixed[g][0] != "D")]
        o_set = {ocand[int((i + 0.5) * len(ocand) / over)] for i in range(over)}
        gaps = [[] for _ in range(n)]
        small, pend, ei = [], [], 0
        for k, g in enumerate(order):
            new = (start + k) < n
            small.extend(pend); pend = []
            small.sort(key=lambda t: 0 if t[0] == "c" else 1)
            f = fixed[g]
            want = 0
            if f is not None:
                gaps[g].append((f[0], f[1], None))
                if f[0] == "D": continue
                want = 1
            elif k in sm_set: want = 2
            else:
                qb, j = exps[ei]; ei += 1
                gaps[g].append(("E", ("e", qb, j), new))
                if j & 1: pend.append(("c", qb, j // 2))
                pend.append(("a", qb, j))
            if k in o_set: want += 1
            if k == n - 1: want = 99
            for _ in range(want):
                if small: gaps[g].append(("E", small.pop(0), new))
        assert not small and not pend and ei == 32
        self.gaps = gaps

    def etext(self, buf, it):
        kind, qb, j = it
        s = self.S(buf, qb)
        if kind == "e": return f"v_exp_f32 {vr(s+j)}, {vr(s+j)}"
        if kind == "a": return f"v_add_f32 {vr(V_L+qb)}, {vr(V_L+qb)}, {vr(s+j)}"
        return f"v_cvt_pk_bf16_f32 {vr(self.P(buf, qb, j))}, {vr(s+2*j)}, {vr(s+2*j+1)}"

    def period(self, p, qk=True, pv=True, e_old=True, e_new=True, kread=True, vread=True, dma=True, extra={}):
        a = self.a
        bn, bo = (p + 1) & 1, p & 1
        mf = self.qk_mfmas(bn) + self.pv_mfmas(bo)
        kr, vrd = self.k_reads((p + 2) % RING), self.v_reads(p % RING)
        slot = p % RING
        n = 76
        sc = [[] for _ in range(n)]
        dgs = [g for g in range(n) if any(e[0] == "D" for e in self.gaps[g])]
        if dma:
            for j, g in enumerate(dgs):
                if j % 4 == 0: sc[g - 1].append(f"s_add_u32 m0, {sr(S_LB)}, {slot*SLOT + 4096*(j//4)}")
            sc[dgs[-1] + 1].append(f"s_add_u32 {sr(S_TOFF)}, {sr(S_TOFF)}, {4*TILE}")
        w = []
        if kread: w.append("vmcnt(9)")
        if pv: w.append("lgkmcnt(0)")
        if w: sc[39].append("s_waitcnt " + " ".join(w))
        if kread: sc[75].append("s_waitcnt lgkmcnt(0)")
        for g in range(n):
            on = qk if g < 40 else pv
            if on: a(mf[g])
            if g == 40 and not pv and e_new: a("s_nop 7")
            for s in sc[g]: a(s)
            if g in extra: a(extra[g])
            for kind, d, new in self.gaps[g]:
                if kind == "V":
                    if vread: a(vrd[d])
                elif kind == "K":
                    if kread: a(kr[d])
                elif kind == "D":
                    if dma: a(f"buffer_load_dwordx4 {vr(V_DMA + d//4)}, {sr(S_XA,4)}, {sr(S_TOFF)} offen offset:{1024*(d%4)} lds")
                elif (new and e_new) or (not new and e_old):
                    a(self.etext(bn if new else bo, d))
                    if d[0] == "e" and not on: a("s_nop 0")
            if g == 39 and not qk: a("s_nop 1")

    def rest(self):
        a, o = self.a, self.o
        T = S_T
        VPL = 248
        self.plan()
        a.label("L_go")
        for i in range(4): a(f"v_mov_b32 {vr(V_L+i)}, 0")
        for x in self.k_reads(0): a(x)
        a(f"""s_mov_b32 {sr(S_CNT)}, 0
        s_lshl_b32 {sr(T)}, {sr(S_B)}, 7
        s_add_u32 {sr(T)}, {sr(T)}, {DB_CB}
        v_mov_b32 {vr(VPL)}, {sr(T)}
        s_waitcnt lgkmcnt(0)""")
        t2 = self.tile_groups(2)
        ex = {1 + 4 * i: t2[i] for i in range(9)}
        ex[41] = (f"s_or_b32 {sr(T)}, {sr(S_W)}, {sr(S_REDO)}\ns_cmp_lg_u32 {sr(T)}, 0\ns_cbranch_scc1 L_nocb\ns_mov_b64 exec, 1\nv_mov_b32 {vr(VPL+1)}, 1\n"
                  f"buffer_atomic_add {vr(VPL+1)}, {vr(VPL)}, {sr(S_DB,4)}, 0 offen sc1\ns_mov_b64 exec, -1\nL_nocb:")
        self.period(-1, pv=False, e_old=False, vread=False, extra=ex)
        self.stamp("loop")
        a.raw(".p2align 6")
        a.label("L_loop")
        for p in range(4):
            ex = {}
            if p == 2:
                a(f"s_add_u32 {sr(S_CNT)}, {sr(S_CNT)}, 1\ns_cmp_eq_u32 {sr(S_CNT)}, {sr(S_DUM)}\ns_cbranch_scc0 L_nodummy")
                for i in range(16): a(f"v_mov_b32 {vr(V_X+i)}, {vr(V_CI+i)}\nv_mov_b32 {vr(V_CI+i)}, 0xff800000" if i % 4 == 0 else f"v_mov_b32 {vr(V_CI+i)}, 0xff800000")
                a("s_nop 1")
                a.label("L_nodummy")
                ex = {70: f"buffer_load_dwordx4 v[252:255], {vr(VPL)}, {sr(S_DB,4)}, 0 offen sc1"}
            self.period(p, extra=ex)
            if p == 2: a(f"s_cmp_eq_u32 {sr(S_CNT)}, 4\ns_cbranch_scc1 L_tail")
        a("s_branch L_loop")
        a.label("L_tail")
        self.period(15, qk=False, e_new=False, kread=False, dma=False)
        self.stamp("end")
        self.epilogue()

    def epilogue(self):
        a, o = self.a, self.o
        T = S_T
        p = lambda r: vr(r, 2)
        L_L, L_FL = L_SP, L_SP + 1024
        NB, PT = S_T + 20, S_T + 21
        a(f"s_cmp_eq_u32 {sr(S_DUM)}, 4\ns_cbranch_scc0 L_e0")
        for qb in range(4): a(f"v_mov_b32 {vr(V_CI+4*qb)}, {vr(V_X+4*qb)}")
        a.label("L_e0")
        t = 16
        self.greduce([V_L + i for i in range(4)], t)
        a(f"""v_max_f32 {vr(t)}, {vr(V_L)}, {vr(V_L+1)}
        v_max3_f32 {vr(t)}, {vr(t)}, {vr(V_L+2)}, {vr(V_L+3)}
        v_add_f32 {vr(t+1)}, {vr(V_L)}, {vr(V_L+1)}
        v_add_f32 {vr(t+2)}, {vr(V_L+2)}, {vr(V_L+3)}
        v_add_f32 {vr(t+1)}, {vr(t+1)}, {vr(t+2)}
        v_mov_b32 {vr(t+2)}, {f32(2.0**100)}
        v_cmp_nle_f32 vcc, {vr(t+1)}, {vr(t+2)}
        s_lshr_b32 {sr(NB)}, {sr(S_W)}, 1
        s_and_b32 {sr(PT)}, {sr(S_W)}, 1
        v_and_b32 {vr(t+3)}, 15, v0
        v_lshlrev_b32 {vr(t+3)}, 4, {vr(t+3)}
        s_lshl_b32 {sr(T)}, {sr(S_W)}, 2
        s_add_u32 {sr(T)}, {sr(T)}, {L_L}
        v_add_u32 {vr(t+4)}, {sr(T)}, {vr(t+3)}
        s_cmp_lg_u64 vcc, 0
        s_cselect_b32 {sr(T+1)}, 1, 0
        v_mov_b32 {vr(t+5)}, {sr(T+1)}
        v_mov_b32 {vr(t+6)}, {sr(T)}
        v_add_u32 {vr(t+7)}, {sr(S_LB)}, {vr(V_DMA)}
        v_add_u32 {vr(t+8)}, {2*SLOT}, {vr(t+7)}
        s_waitcnt vmcnt(0)""")
        VROW16, VST0, VST1 = t + 3, t + 7, t + 8
        for qb in range(2):
            for i in range(9): a(f"ds_write_b128 {vr(VST0)}, {ar(A_O+36*qb+4*i,4)} offset:{SLOT*qb + 1024*i}")
        for qb in range(4): a(f"ds_write_b32 {vr(t+4)}, {vr(V_L+qb)} offset:{256*qb}")
        a(f"ds_write_b32 {vr(t+6)}, {vr(t+5)} offset:1024")
        a(f"v_readfirstlane_b32 {sr(T)}, v252\nv_readfirstlane_b32 {sr(T+1)}, v254\ns_mov_b32 {sr(T+2)}, 0")
        a.label("L_late")
        a(f"""s_cmp_ge_u32 {sr(T)}, 126
        s_cselect_b32 {sr(T+3)}, 1, 0
        s_cmp_ge_u32 {sr(T+1)}, 2
        s_cselect_b32 {sr(T+3)}, {sr(T+3)}, 0
        s_cmp_eq_u32 {sr(T+3)}, 1
        s_cbranch_scc1 L_late0
        buffer_load_dwordx4 v[252:255], v248, {sr(S_DB,4)}, 0 offen sc1
        s_add_u32 {sr(T+2)}, {sr(T+2)}, 1
        s_waitcnt vmcnt(0)
        v_readfirstlane_b32 {sr(T)}, v252
        v_readfirstlane_b32 {sr(T+1)}, v254
        s_cmp_lt_u32 {sr(T+2)}, 0x40000
        s_cbranch_scc1 L_late""")
        a.label("L_late0")
        U, GM, G0, GP, DW, XR = 128, 138, 148, 158, 168, 198
        ad = 28
        a(f"""s_lshl_b32 {sr(T)}, {sr(S_TOWN)}, 1
        s_add_u32 {sr(T)}, {sr(T)}, {sr(NB)}
        s_lshl_b32 {sr(T+1)}, {sr(T)}, 4
        v_and_b32 {vr(ad)}, 15, v0
        v_add_u32 {vr(ad)}, {sr(T+1)}, {vr(ad)}
        s_mul_i32 {sr(T+2)}, {sr(S_B)}, 4000
        s_add_u32 {sr(T+3)}, {sr(T+2)}, 3999
        v_lshrrev_b32 {vr(ad+1)}, 4, v0
        s_mov_b32 {sr(T+4)}, {BLK}
        s_lshl_b32 {sr(T+5)}, {sr(PT)}, 11
        s_add_u32 {sr(T+6)}, {sr(T+5)}, {WS_U}
        s_add_u32 {sr(T+7)}, {sr(T+5)}, {WS_G}
        s_mov_b32 {sr(T+8)}, {WS_U + 4096}
        s_mov_b32 {sr(T+9)}, {WS_G + 4096}
        v_mov_b32 {vr(ad+11)}, 0x40000000""")
        for k, (dst, dr) in enumerate(((G0, 0), (GM, -1), (GP, 1))):
            m, r = ad + 2 + 2 * k, ad + 3 + 2 * k
            if dr: a(f"v_add_u32 {vr(ad+8)}, {dr}, {vr(ad)}")
            src = ad + 8 if dr else ad
            a(f"""v_lshrrev_b32 {vr(ad+9)}, 4, {vr(src)}
            v_mul_lo_u32 {vr(ad+9)}, {vr(ad+9)}, {sr(T+4)}
            v_and_b32 {vr(ad+10)}, 15, {vr(src)}
            v_lshl_add_u32 {vr(ad+10)}, {vr(ad+1)}, 4, {vr(ad+10)}
            v_lshl_add_u32 {vr(m)}, {vr(ad+10)}, 4, {vr(ad+9)}
            v_lshl_add_u32 {vr(r)}, {vr(ad+10)}, 3, {vr(ad+9)}""")
            if dr:
                a(f"v_cmp_eq_u32 vcc, {sr(T+2 if dr < 0 else T+3)}, {vr(ad)}\ns_nop 1")
                a(f"v_cndmask_b32 {vr(m)}, {vr(m)}, {vr(ad+11)}, vcc\nv_cndmask_b32 {vr(r)}, {vr(r)}, {vr(ad+11)}, vcc")
        for dst, m, so in ((U, ad + 2, 0), (G0, ad + 2, 1), (GM, ad + 4, 1), (GP, ad + 6, 1)):
            for k in range(2): a(f"buffer_load_dwordx4 {vr(dst+4*k,4)}, {vr(m)}, {sr(S_WS,4)}, {sr(T+6+so)} offen offset:{1024*k} sc1")
            a(f"buffer_load_dwordx2 {vr(dst+8,2)}, {vr(m+1)}, {sr(S_WS,4)}, {sr(T+8+so)} offen sc1")
        a(f"v_lshlrev_b32 {vr(ad+8)}, 3, {vr(ad+1)}\ns_lshl_b32 {sr(T+5)}, {sr(PT)}, 7")
        for k in range(3):
            for i in range(4): a(f"buffer_load_dwordx2 {vr(DW+10*k+2*i,2)}, {vr(ad+8)}, {sr(S_DW,4)}, {sr(T+5)} offen offset:{288*k + 32*i}")
            a(f"buffer_load_dwordx2 {vr(DW+10*k+8,2)}, {vr(ad+8)}, {sr(S_DW,4)}, 0 offen offset:{288*k + 256}")
        VO = 208
        a(f"""v_and_b32 {vr(ad+9)}, 15, v0
        v_mul_u32_u24 {vr(ad+9)}, 288, {vr(ad+9)}
        v_add_u32 {vr(ad+9)}, {vr(ad+9)}, {vr(ad+8)}
        s_mul_i32 {sr(T)}, {sr(S_TOWN)}, {TILE}
        s_mul_i32 {sr(T+1)}, {sr(PT)}, {BLK}
        s_add_u32 {sr(T+2)}, {sr(T)}, {sr(T+1)}
        s_sub_u32 {sr(T+3)}, {BLK}, {sr(T+1)}
        s_add_u32 {sr(T+3)}, {sr(T+3)}, {sr(T)}
        v_add_u32 {vr(VO)}, {sr(T+2)}, {vr(ad+9)}
        v_add_u32 {vr(VO+1)}, {sr(T+3)}, {vr(ad+9)}
        s_lshl_b32 {sr(S_TOFF)}, {sr(S_W)}, 6""")
        units = [(0, 0), (0, 1), (1, 0), (1, 1), (2, 0)]
        for u, (tt, j) in enumerate(units):
            so = (sr(S_TOFF), 32 * tt) if tt < 2 else ("0", 256)
            a(f"buffer_load_dwordx2 {vr(XR+2*u,2)}, {vr(VO+j)}, {sr(S_X,4)}, {so[0]} offen offset:{so[1]}")
        a("s_waitcnt lgkmcnt(0)")
        WD = [0, 18, 36]
        WO = [54, 216, 234]
        a(f"""s_mul_i32 {sr(T)}, {sr(S_W)}, {2*BLK}
        s_add_u32 {sr(T)}, {sr(T)}, {WS_WF}
        v_lshlrev_b32 {vr(ad+10)}, 3, v0
        v_add_u32 {vr(ad+10)}, 4096, {vr(ad+10)}""")
        for mat, regs in ((1, WD), (0, WO)):
            for tt in range(3):
                if tt < 2: a(f"s_add_u32 {sr(T+1)}, {sr(T)}, {mat*9*BLK + tt*BLK}")
                else: a(f"s_mov_b32 {sr(T+1)}, {WS_WF + mat*9*BLK + 8*BLK}")
                for s in range(4): a(f"buffer_load_dwordx4 {ar(regs[tt]+4*s,4)}, {vr(V_DMA)}, {sr(S_WS,4)}, {sr(T+1)} offen offset:{1024*s} sc1")
                a(f"buffer_load_dwordx2 {ar(regs[tt]+16,2)}, {vr(ad+10)}, {sr(S_WS,4)}, {sr(T+1)} offen sc1")
        a("s_barrier")
        self.stamp("B1")
        R = 40
        a(f"""s_mul_i32 {sr(T)}, {sr(NB)}, {SLOT}
        s_lshl_b32 {sr(T+1)}, {sr(PT)}, 12
        s_add_u32 {sr(T)}, {sr(T)}, {sr(T+1)}
        v_add_u32 {vr(ad)}, {sr(T)}, {vr(V_DMA)}
        s_lshl_b32 {sr(T+1)}, {sr(NB)}, 8
        s_add_u32 {sr(T+1)}, {sr(T+1)}, {L_L}
        v_add_u32 {vr(ad+1)}, {sr(T+1)}, {vr(VROW16)}
        v_mov_b32 {vr(ad+2)}, {L_FL}
        ds_read_b128 v[120:123], {vr(ad+2)}
        ds_read_b128 v[124:127], {vr(ad+1)}""")
        MK = 210
        for qb in range(4): a(f"v_mov_b32 {vr(MK+qb)}, {vr(V_CI+4*qb)}")

        def reduce4(base):
            for w in range(4):
                for i in range(5): a(f"ds_read_b128 {vr(R+20*w+4*i,4)}, {vr(base)} offset:{TILE*w + 1024*i}")
                if w == 1: yield
            for w in range(1, 4):
                a(f"s_waitcnt lgkmcnt({5*(3-w)})")
                for i in range(10): a(f"v_pk_add_f32 {p(R+2*i)}, {p(R+2*i)}, {p(R+20*w+2*i)}")
            for i in range(10): a(f"v_cvt_pk_bf16_f32 {vr(R+20+i)}, {vr(R+2*i)}, {vr(R+2*i+1)}")
        g = reduce4(ad); next(g)
        a(f"""s_waitcnt lgkmcnt(10)
        v_or_b32 v120, v120, v121
        v_or3_b32 v120, v120, v122, v123
        v_add_f32 v124, v124, v125
        v_add_f32 v126, v126, v127
        v_readfirstlane_b32 {sr(T+2)}, v120
        v_add_f32 v124, v124, v126
        s_andn2_b32 {sr(T+2)}, {sr(T+2)}, {sr(S_REDO)}
        s_cbranch_scc1 L_fallback""")
        for _ in g: pass
        a(f"""s_cmp_eq_u32 {sr(NB)}, 1
        s_cselect_b64 vcc, -1, 0
        v_mov_b32 {vr(R+30)}, v124
        s_xor_b32 {sr(T)}, s2, 1
        v_cndmask_b32 {vr(R+31)}, {vr(MK)}, {vr(MK+1)}, vcc
        s_mul_i32 {sr(T)}, {sr(T)}, {IB}
        s_mul_i32 {sr(T+1)}, {sr(NB)}, 5120
        s_add_u32 {sr(T)}, {sr(T)}, {sr(T+1)}
        s_add_u32 {sr(T)}, {sr(T)}, {WS_IB}
        s_lshl_b32 {sr(T+1)}, {sr(PT)}, 11
        s_add_u32 {sr(T+1)}, {sr(T+1)}, {sr(T)}
        s_add_u32 {sr(T)}, {sr(T)}, 4096
        s_cmp_eq_u32 {sr(PT)}, 0
        s_cselect_b32 {sr(T)}, 0x40000000, {sr(T)}
        buffer_store_dwordx4 {vr(R+20,4)}, {vr(V_DMA)}, {sr(S_WS,4)}, {sr(T+1)} offen sc1
        buffer_store_dwordx4 {vr(R+24,4)}, {vr(V_DMA)}, {sr(S_WS,4)}, {sr(T+1)} offen offset:1024 sc1
        buffer_store_dwordx4 {vr(R+28,4)}, {vr(V_DMA)}, {sr(S_WS,4)}, {sr(T)} offen sc1""")
        self.stamp("sent")
        a(f"s_cmp_eq_u32 {sr(S_VAL)}, 0\ns_cbranch_scc1 L_fin")
        for qb in range(2):
            for i in range(9): a(f"ds_write_b128 {vr(VST1)}, {ar(A_O+36*(2+qb)+4*i,4)} offset:{SLOT*qb + 1024*i}")
        a(f"v_add_u32 {vr(ad)}, {2*SLOT}, {vr(ad)}")
        a("s_waitcnt lgkmcnt(0)\ns_barrier")
        self.stamp("B2")
        for _ in reduce4(ad): pass
        a(f"""s_lshl_b32 {sr(T)}, {sr(NB)}, 12
        s_lshl_b32 {sr(T+1)}, {sr(PT)}, 11
        s_add_u32 {sr(T)}, {sr(T)}, {sr(T+1)}
        v_add_u32 {vr(ad)}, {sr(T)}, {vr(V_DMA)}
        s_lshl_b32 {sr(T)}, {sr(NB)}, 9
        s_add_u32 {sr(T)}, {sr(T)}, 4096
        v_add_u32 {vr(ad+1)}, {sr(T)}, {vr(ad+10)}
        ds_write_b128 {vr(ad)}, {vr(R+20,4)}
        ds_write_b128 {vr(ad)}, {vr(R+24,4)} offset:1024
        s_cmp_eq_u32 {sr(PT)}, 0
        s_cbranch_scc1 L_e2
        ds_write_b64 {vr(ad+1)}, {vr(R+28,2)}""")
        a.label("L_e2")
        nyoung = 5 + 30 + 3
        a(f"s_waitcnt vmcnt({nyoung})")
        C = 40
        for i in range(10):
            for k in range(3):
                a(f"v_and_b32 {vr(102+2*k)}, 0xffff, {vr(DW+10*k+i)}\nv_and_b32 {vr(103+2*k)}, 0xffff0000, {vr(DW+10*k+i)}")
            for h in range(2): a(f"v_dot2_f32_bf16 {vr(C+2*i+h)}, {vr(GM+i)}, {vr(102+h)}, 0")
            for h in range(2): a(f"v_dot2_f32_bf16 {vr(C+2*i+h)}, {vr(G0+i)}, {vr(104+h)}, {vr(C+2*i+h)}")
            for h in range(2): a(f"v_dot2_f32_bf16 {vr(C+2*i+h)}, {vr(GP+i)}, {vr(106+h)}, {vr(C+2*i+h)}")
        for i in range(10):
            a(f"v_lshlrev_b32 {vr(70+2*i)}, 16, {vr(U+i)}\nv_and_b32 {vr(71+2*i)}, 0xffff0000, {vr(U+i)}")
        for i in range(10): a(f"v_pk_mul_f32 {p(C+2*i)}, {p(C+2*i)}, {p(70+2*i)}")
        for i in range(10): a(f"v_cvt_pk_bf16_f32 {vr(92+i)}, {vr(C+2*i)}, {vr(C+2*i+1)}")
        a(f"""ds_write_b128 {vr(ad)}, v[92:95] offset:16384
        ds_write_b128 {vr(ad)}, v[96:99] offset:17408
        s_cmp_eq_u32 {sr(PT)}, 0
        s_cbranch_scc1 L_e3
        ds_write_b64 {vr(ad+1)}, v[100:101] offset:16384""")
        a.label("L_e3")
        IN = 128
        a(f"""s_mul_i32 {sr(T+4)}, s2, {IB}
        s_add_u32 {sr(T+4)}, {sr(T+4)}, {WS_IB}
        s_mul_i32 {sr(T)}, {sr(PT)}, 5120
        s_add_u32 {sr(T+5)}, {sr(T+4)}, 5120
        s_sub_u32 {sr(T+5)}, {sr(T+5)}, {sr(T)}
        s_add_u32 {sr(T+4)}, {sr(T+4)}, {sr(T)}""")

        def inbox():
            for j in range(2):
                for s in range(4): a(f"buffer_load_dwordx4 {vr(IN+20*j+4*s,4)}, {vr(V_DMA)}, {sr(S_WS,4)}, {sr(T+4+j)} offen offset:{1024*s} sc1")
                a(f"buffer_load_dwordx4 {vr(IN+20*j+16,4)}, {vr(V_DMA+1)}, {sr(S_WS,4)}, {sr(T+4+j)} offen sc1")
        inbox()
        a(f"""s_lshl_b32 {sr(T)}, {sr(PT)}, 12
        v_add_u32 {vr(ad)}, {sr(T)}, {vr(V_DMA)}
        v_xor_b32 {vr(ad+1)}, 4096, {vr(ad)}
        s_lshl_b32 {sr(T)}, {sr(PT)}, 9
        s_add_u32 {sr(T)}, {sr(T)}, 4096
        v_add_u32 {vr(ad+2)}, {sr(T)}, {vr(ad+10)}
        v_xor_b32 {vr(ad+3)}, 512, {vr(ad+2)}
        s_lshl_b32 {sr(T)}, {sr(PT)}, 8
        s_add_u32 {sr(T)}, {sr(T)}, {L_L + 512}
        v_add_u32 {vr(ad+4)}, {sr(T)}, {vr(VROW16)}
        v_xor_b32 {vr(ad+5)}, 256, {vr(ad+4)}
        s_waitcnt lgkmcnt(0)
        s_barrier""")
        self.stamp("B3")
        BO, BU, LO = 40, 76, 112
        for dst, off in ((BU, 16384), (BO, 0)):
            for j in range(2):
                for s in range(4): a(f"ds_read_b128 {vr(dst+18*j+4*s,4)}, {vr(ad+j)} offset:{off + 1024*s}")
                a(f"ds_read_b64 {vr(dst+18*j+16,2)}, {vr(ad+2+j)} offset:{off}")
        for j in range(2): a(f"ds_read_b128 {vr(LO+4*j,4)}, {vr(ad+4+j)}")
        AB, AO, AP = 168, 216, 16
        AP = 188 - 0
        AB, AO, AP = 168, 216, 236

        def fgemm(acc, W, Bf, stride):
            for s in range(5):
                for u, (tt, j) in enumerate(units):
                    d = vr(acc + 4 * u, 4)
                    if s < 4: a(f"v_mfma_f32_16x16x32_bf16 {d}, {ar(W[tt]+4*s,4)}, {vr(Bf+stride*j+4*s,4)}, {'0' if s == 0 else d}")
                    else:
                        if u == 0: a("s_nop 1")
                        a(f"v_mfma_f32_16x16x16_bf16 {d}, {ar(W[tt]+16,2)}, {vr(Bf+stride*j+16,2)}, {d}")
        a("s_waitcnt vmcnt(13) lgkmcnt(12)")
        fgemm(AB, WD, BU, 18)
        a("s_waitcnt lgkmcnt(0)")
        fgemm(AO, WO, BO, 18)
        for j in range(2):
            a(f"v_add_f32 {vr(LO+4*j)}, {vr(LO+4*j)}, {vr(LO+4*j+1)}\nv_add_f32 {vr(LO+4*j+2)}, {vr(LO+4*j+2)}, {vr(LO+4*j+3)}\nv_add_f32 {vr(LO+4*j)}, {vr(LO+4*j)}, {vr(LO+4*j+2)}")
        a(f"""s_cmp_eq_u32 {sr(PT)}, 1
        s_cselect_b64 vcc, -1, 0
        s_mov_b32 {sr(T+2)}, 0
        v_cndmask_b32 {vr(LO+1)}, {vr(MK+2)}, {vr(MK+3)}, vcc
        v_cndmask_b32 {vr(LO+5)}, {vr(MK+3)}, {vr(MK+2)}, vcc""")
        for u in range(5):
            for h in range(2):
                a(f"v_lshlrev_b32 {vr(120+2*h)}, 16, {vr(XR+2*u+h)}\nv_and_b32 {vr(121+2*h)}, 0xffff0000, {vr(XR+2*u+h)}")
            for h in range(2): a(f"v_pk_add_f32 {p(AB+4*u+2*h)}, {p(AB+4*u+2*h)}, {p(120+2*h)}")
        self.stamp("own")
        a("s_branch L_inc")
        a.label("L_in")
        inbox()
        a.label("L_inc")
        a(f"s_waitcnt vmcnt(0)\ns_add_u32 {sr(T+2)}, {sr(T+2)}, 1")
        a(f"v_max3_u32 v120, {vr(IN)}, {vr(IN+1)}, {vr(IN+2)}\nv_max3_u32 v121, {vr(IN+3)}, {vr(IN+4)}, {vr(IN+5)}")
        rest_ = list(range(IN + 6, IN + 40))
        k = 0
        while rest_:
            x, y = rest_[0], rest_[1]; rest_ = rest_[2:]
            a(f"v_max3_u32 v{120+k}, v{120+k}, {vr(x)}, {vr(y)}"); k ^= 1
        a(f"""v_max_u32 v120, v120, v121
        v_cmp_eq_u32 vcc, -1, v120
        s_nop 1
        s_cmp_eq_u64 vcc, 0
        s_cbranch_scc1 L_got
        s_cmp_lt_u32 {sr(T+2)}, 0x10000
        s_cbranch_scc1 L_in""")
        a.label("L_got")
        self.stamp("got")
        fgemm(AP, WO, IN, 20)
        for j in range(2):
            lo, mo, lp, mp, w = LO + 4 * j, LO + 4 * j + 1, IN + 20 * j + 18, IN + 20 * j + 19, 120 + 4 * j
            a(f"""v_min_f32 {vr(w)}, {vr(mo)}, {vr(mp)}
            v_sub_f32 {vr(w+1)}, {vr(w)}, {vr(mp)}
            v_sub_f32 {vr(w)}, {vr(w)}, {vr(mo)}
            v_exp_f32 {vr(w+1)}, {vr(w+1)}
            v_exp_f32 {vr(w)}, {vr(w)}
            v_mul_f32 {vr(w+2)}, {vr(w+1)}, {vr(lp)}
            v_fmac_f32 {vr(w+2)}, {vr(w)}, {vr(lo)}
            v_rcp_f32 {vr(w+2)}, {vr(w+2)}
            s_nop 0
            v_mul_f32 {vr(w)}, {vr(w)}, {vr(w+2)}
            v_mul_f32 {vr(w+2)}, {vr(w+1)}, {vr(w+2)}""")
        for u, (tt, j) in enumerate(units):
            for h in range(2):
                r = 4 * u + 2 * h
                a(f"v_pk_fma_f32 {p(AB+r)}, {p(AO+r)}, {p(120+4*j)}, {p(AB+r)} op_sel_hi:[1,0,1]")
        for u, (tt, j) in enumerate(units):
            for h in range(2):
                r = 4 * u + 2 * h
                a(f"v_pk_fma_f32 {p(AB+r)}, {p(AP+r)}, {p(122+4*j)}, {p(AB+r)} op_sel_hi:[1,0,1]")
            for h in range(2): a(f"v_cvt_pk_bf16_f32 {vr(40+2*u+h)}, {vr(AB+4*u+2*h)}, {vr(AB+4*u+2*h+1)}")
            so = (sr(S_TOFF), 32 * tt) if tt < 2 else ("0", 256)
            a(f"buffer_store_dwordx2 {vr(40+2*u,2)}, {vr(VO+j)}, {sr(S_OUT,4)}, {so[0]} offen offset:{so[1]}")
        self.stamp("fin")

    def fallback(self):
        a = self.a
        T = S_T
        MXR = 208
        a.label("L_fallback")
        a(f"""s_waitcnt vmcnt(0) lgkmcnt(0)
        s_barrier
        s_mov_b32 {sr(S_REDO)}, 1
        s_mov_b32 {sr(S_TOFF)}, {sr(S_LB)}
        s_cmp_eq_u32 {sr(S_DUM)}, 4
        s_cselect_b32 {sr(S_CNT)}, 15, 16""")
        for i in range(4): a(f"v_mov_b32 {vr(MXR+i)}, 0xff800000")
        a.label("L_fb1")
        for g in self.tile_groups(0): a(g)
        a("s_waitcnt vmcnt(0)")
        for x in self.k_reads(0): a(x)
        a("s_waitcnt lgkmcnt(0)")
        for m in self.qk_mfmas(0, czero=True): a(m)
        a("s_nop 7")
        for qb in range(4):
            for i in range(0, 8, 2): a(f"v_max3_f32 {vr(MXR+qb)}, {vr(MXR+qb)}, {vr(self.S(0,qb,i))}, {vr(self.S(0,qb,i+1))}")
        a(f"s_sub_u32 {sr(S_CNT)}, {sr(S_CNT)}, 1\ns_cmp_lg_u32 {sr(S_CNT)}, 0\ns_cbranch_scc1 L_fb1")
        self.greduce([MXR + i for i in range(4)], MXR + 4, "v_max_f32")
        a(f"""v_and_b32 {vr(MXR+4)}, 15, v0
        v_lshlrev_b32 {vr(MXR+4)}, 4, {vr(MXR+4)}
        v_add_u32 {vr(MXR+4)}, {L_SP}, {vr(MXR+4)}
        s_lshl_b32 {sr(T)}, {sr(S_W)}, 2
        v_add_u32 {vr(MXR+5)}, {sr(T)}, {vr(MXR+4)}""")
        for qb in range(4): a(f"ds_write_b32 {vr(MXR+5)}, {vr(MXR+qb)} offset:{256*qb}")
        a("s_waitcnt lgkmcnt(0)\ns_barrier")
        for qb in range(4): a(f"ds_read_b128 {vr(16+4*qb,4)}, {vr(MXR+4)} offset:{256*qb}")
        a(f"s_mov_b32 {sr(S_TOFF)}, {sr(S_LB)}")
        for g in self.tile_groups(0) + self.tile_groups(1): a(g)
        for i in range(144): a(f"v_accvgpr_write_b32 {ar(A_O+i)}, 0")
        a("s_waitcnt lgkmcnt(0)")
        for qb in range(4):
            r = 16 + 4 * qb
            a(f"v_max_f32 {vr(r)}, {vr(r)}, {vr(r+1)}\nv_max3_f32 {vr(r)}, {vr(r)}, {vr(r+2)}, {vr(r+3)}")
            for i in range(4): a(f"v_sub_f32 {vr(V_CI+4*qb+i)}, 0, {vr(r)}")
        for k in range(5): a(f"v_add_u32 {vr(V_HI+k)}, {2*SLOT}, {vr(V_KA+k)}")
        a("s_waitcnt vmcnt(9)\ns_barrier\ns_branch L_go")


if __name__ == "__main__":
    opt = json.loads(sys.argv[2]) if len(sys.argv) > 2 else {}
    g = G(opt)
    txt = g.build()
    if opt.get("align", 1):
        from align import align
        txt, st = align(txt)
        print("align: promoted %d, padded %d, left %d" % st)
    txt = txt.replace("\n", "\n; stamps " + json.dumps(g.stnames) + "\n", 1)
    open(sys.argv[1], "w").write(txt)
```

```python
import sys, json, math
from common import Asm, vr, ar, sr, kernel_header, kernel_desc
from lay import *

NAME = "standalone__conformer_family_branchformer__speech_kernel"
NWG = 254
RING = 4
LDS_RING = RING * TILE
LDS_TOTAL = 163840
SLOT = 4 * TILE
L_WU, L_WQ, L_WK = 0, 41984, 83968
L_XX, L_XR = 128000, 144384
L_QX, L_QR = 146432, 79872
L_MX = 162816
L_PC = 163836 - 0
L_DUMP = 123904
L_SP = 147456

S_X, S_WS, S_XA, S_DB, S_W1, S_W2, S_OUT, S_DW = 8, 12, 16, 20, 24, 28, 32, 36
S_W, S_B, S_H, S_QB, S_TOFF, S_CNT, S_DUM, S_LB, S_TOWN, S_TSND, S_VAL, S_REDO = range(40, 52)
S_T = 52
S_ST = 76

V_KA, V_VA, V_VR, V_DMA, V_L, V_T = 1, 3, 5, 6, 9, 13
V_S, V_CI, V_P, V_K, V_V = 16, 80, 96, 128, 164
V_HI = 200
V_X = 208
A_O, A_Q, A_F = 0, 144, 216

LOG2E = 1.4426950408889634
import struct
def f32(x): return "0x%08x" % struct.unpack("<I", struct.pack("<f", x))[0]


class BAsm(Asm):
    def __init__(self):
        super().__init__()
        self.bg, self.every, self.cnt, self.skip = [], 0, 0, 0

    def __call__(self, s):
        for l in s.split("\n"):
            l = l.strip()
            if not l: continue
            self.lines.append("    " + l)
            if self.bg and self.every and not l.startswith(("s_nop", "v_mov_b32", "v_exp", "v_rcp", "v_rsq", "v_sqrt", "s_add_u32 m0")):
                self.cnt += 1
                if self.cnt >= self.every:
                    self.cnt = 0
                    self.pop()

    def pop(self):
        for x in self.bg.pop(0).split("\n"): self.lines.append("    " + x)

    def flush(self):
        while self.bg: self.pop()
        self.every = 0


class G:
    def __init__(self, opt):
        self.o = opt
        self.a = BAsm()
        self.nst = 0
        self.fill = []

    def stamp(self, name):
        if self.o.get("stamps"):
            if name in self.o.get("skipst", []): return
            assert self.nst < 13
            self.a(f"{'s_memtime' if self.o.get('cyc') else 's_memrealtime'} {sr(S_ST + 2*self.nst, 2)}")
            self.stnames.append(name)
            self.nst += 1

    def srd(self, dst, lo, hi, n):
        self.a(f"s_mov_b32 {sr(dst)}, {sr(lo)}\ns_mov_b32 {sr(dst+1)}, {sr(hi)}\ns_mov_b32 {sr(dst+2)}, {n}\ns_mov_b32 {sr(dst+3)}, 0x20000")

    def greduce(self, regs, tmp, op="v_add_f32"):
        a = self.a
        for sw in ("32", "16"):
            for i, r in enumerate(regs): a(f"v_mov_b32 {vr(tmp+i)}, {vr(r)}")
            if len(regs) < 3: a("s_nop 1" if len(regs) == 1 else "s_nop 0")
            for i, r in enumerate(regs): a(f"v_permlane{sw}_swap_b32 {vr(r)}, {vr(tmp+i)}")
            for i, r in enumerate(regs): a(f"{op} {vr(r)}, {vr(r)}, {vr(tmp+i)}")

    def rbf(self, r):
        self.a(f"v_cvt_pk_bf16_f32 {vr(r)}, {vr(r)}, {vr(r)}\nv_lshlrev_b32 {vr(r)}, 16, {vr(r)}")

    def ln_tail(self, F, out, t, mimic):
        a = self.a
        p = lambda r: vr(r, 2)
        self.greduce([t, t + 1], t + 2)
        a(f"v_mul_f32 {vr(t+2)}, {f32(1.0/144)}, {vr(t)}")
        a(f"v_mul_f32 {vr(t+3)}, {vr(t+2)}, {vr(t+2)}")
        a(f"v_mov_b32 {vr(t+4)}, {f32(1.0/144)}")
        a(f"v_fma_f32 {vr(t)}, {vr(t+1)}, {vr(t+4)}, -{vr(t+3)}")
        a(f"v_max_f32 {vr(t)}, 0, {vr(t)}")
        if mimic:
            self.rbf(t)
            self.rbf(t + 2)
            a(f"v_add_f32 {vr(t)}, {f32(1e-5)}, {vr(t)}")
            self.rbf(t)
            a(f"v_sqrt_f32 {vr(t)}, {vr(t)}\ns_nop 0")
            self.rbf(t)
            a(f"v_rcp_f32 {vr(t)}, {vr(t)}\ns_nop 0")
        else:
            a(f"v_add_f32 {vr(t)}, {f32(1e-5)}, {vr(t)}")
            a(f"v_rsq_f32 {vr(t)}, {vr(t)}\ns_nop 0")
        a(f"v_mul_f32 {vr(t+2)}, -{vr(t+2)}, {vr(t)}")
        for i in range(18):
            a(f"v_pk_fma_f32 {p(F+2*i)}, {p(F+2*i)}, {p(t)}, {p(t+2)} op_sel_hi:[1,0,0]")
        for i in range(18):
            a(f"v_cvt_pk_bf16_f32 {vr(out+i)}, {vr(F+2*i)}, {vr(F+2*i+1)}")

    def ln_packed(self, X, F, out, t):
        a = self.a
        a(f"v_mov_b32 {vr(t+6)}, 0x3f803f80")
        for k in range(4): a(f"v_mov_b32 {vr(t+k)}, 0")
        for i in range(18):
            a(f"v_dot2_f32_bf16 {vr(t+2*(i&1))}, {vr(X+i)}, {vr(t+6)}, {vr(t+2*(i&1))}")
            a(f"v_dot2_f32_bf16 {vr(t+1+2*(i&1))}, {vr(X+i)}, {vr(X+i)}, {vr(t+1+2*(i&1))}")
        for i in range(2):
            a(f"v_lshlrev_b32 {vr(F+2*i)}, 16, {vr(X+i)}\nv_and_b32 {vr(F+2*i+1)}, 0xffff0000, {vr(X+i)}")
        a(f"v_pk_add_f32 {vr(t,2)}, {vr(t,2)}, {vr(t+2,2)}")
        un = []
        for i in range(2, 18):
            un.append(f"v_lshlrev_b32 {vr(F+2*i)}, 16, {vr(X+i)}\nv_and_b32 {vr(F+2*i+1)}, 0xffff0000, {vr(X+i)}")
        sv = (a.bg, a.every, a.cnt, a.skip)
        n0 = len(a.lines)
        a.bg, a.every = [], 0
        self.ln_tail(F, out, t, True)
        tail = a.lines[n0:]
        del a.lines[n0:]
        a.bg, a.every, a.cnt, a.skip = sv
        k = next(i for i, l in enumerate(tail) if "v_pk_fma" in l)
        for i, l in enumerate(tail[:k]):
            if "s_nop" in l and un: continue_nop = True
            a(l)
            if un and not l.strip().startswith("s_nop"): a(un.pop(0))
        while un: a(un.pop(0))
        for l in tail[k:]: a(l)

    def ln_f32(self, F, out, t):
        a = self.a
        p = lambda r: vr(r, 2)
        a(f"v_pk_add_f32 {p(t)}, {p(F)}, {p(F+2)}\nv_pk_add_f32 {p(t+2)}, {p(F+4)}, {p(F+6)}")
        a(f"v_pk_mul_f32 {p(t+4)}, {p(F)}, {p(F)}\nv_pk_mul_f32 {p(t+6)}, {p(F+2)}, {p(F+2)}")
        for i in range(2, 18):
            if i >= 4: a(f"v_pk_add_f32 {p(t+2*(i&1))}, {p(t+2*(i&1))}, {p(F+2*i)}")
            a(f"v_pk_fma_f32 {p(t+4+2*(i&1))}, {p(F+2*i)}, {p(F+2*i)}, {p(t+4+2*(i&1))}")
        a(f"v_pk_add_f32 {p(t)}, {p(t)}, {p(t+2)}\nv_pk_add_f32 {p(t+4)}, {p(t+4)}, {p(t+6)}")
        a(f"v_add_f32 {vr(t)}, {vr(t)}, {vr(t+1)}\nv_add_f32 {vr(t+1)}, {vr(t+4)}, {vr(t+5)}")
        self.ln_tail(F, out, t, False)

    def gemm_m(self, areads, breads, AF, B4, ACC, pre_a=False, rf=vr, extra=()):
        a = self.a
        units = [(0, j) for j in range(4)] + [(1, j) for j in range(4)] + [(2, 0)]
        rd = [([] if pre_a else areads(s)) + breads(s) for s in range(5)]
        extra = list(extra)
        for x in rd[0] + rd[1]: a(x)
        younger = len(rd[1])
        for s in range(5):
            nxt = list(rd[s + 2]) if s + 2 < 5 else []
            a(f"s_waitcnt lgkmcnt({min(15, younger)})")
            k = min(len(extra), 9 - len(nxt))
            nxt, extra = extra[:k] + nxt, extra[k:]
            younger = len(rd[s + 2]) if s + 2 < 5 else (k if s + 1 < 5 else 0)
            for u, (t, j) in enumerate(units):
                d = vr(ACC + 4 * u, 4)
                if s < 4:
                    a(f"v_mfma_f32_16x16x32_bf16 {d}, {rf(AF+18*t+4*s,4)}, {vr(B4+18*j+4*s,4)}, {'0' if s == 0 else d}")
                else:
                    a(f"v_mfma_f32_16x16x16_bf16 {d}, {rf(AF+18*t+16,2)}, {vr(B4+18*j+16,2)}, {d}")
                n = 0
                if nxt: a(nxt.pop(0)); n += 1
                if len(nxt) > 8 - u: a(nxt.pop(0)); n += 1
                for _ in range(2 - n):
                    if self.fill: a(self.fill.pop(0))
            while nxt: a(nxt.pop(0))
        for x in extra: a(x)
        a("s_nop 7")

    def gemm(self, reads, B, ACC, AF):
        a = self.a
        buf = lambda T: AF + 18 * (T % 3)
        for s in reads(0, buf(0)): a(s)
        for s in reads(1, buf(1)): a(s)
        for T in range(9):
            nx = reads(T + 2, buf(T + 2)) if T + 2 < 9 else []
            a(f"s_waitcnt lgkmcnt({9 if T + 1 < 9 else 0})")
            d = vr(ACC + 4 * T, 4)
            seq = []
            for s in range(4):
                seq.append(f"v_mfma_f32_16x16x32_bf16 {d}, {vr(buf(T)+4*s,4)}, {vr(B+4*s,4)}, {'0' if s == 0 else d}")
                if s == 1 and T > 0:
                    dp = vr(ACC + 4 * (T - 1), 4)
                    seq.append(f"v_mfma_f32_16x16x16_bf16 {dp}, {vr(buf(T-1)+16,2)}, {vr(B+16,2)}, {dp}")
            k = 0
            for i, m in enumerate(seq):
                a(m)
                for _ in range(2):
                    if k < len(nx): a(nx[k]); k += 1
                for _ in range(self.o.get("zper", 1)):
                    if self.fill: a(self.fill.pop(0))
            while k < len(nx): a(nx[k]); k += 1
        dp = vr(ACC + 32, 4)
        a("s_nop 5")
        a(f"v_mfma_f32_16x16x16_bf16 {dp}, {vr(buf(8)+16,2)}, {vr(B+16,2)}, {dp}")
        a("s_nop 7")

    def tr_reads(self, ad):
        def f(T, dst):
            out = []
            for s in range(4):
                for u in range(2):
                    out.append(f"ds_read_b64_tr_b16 {vr(dst+4*s+2*u,2)}, {vr(ad+u)} offset:{9216*s + 32*T}")
            out.append(f"ds_read_b64_tr_b16 {vr(dst+16,2)}, {vr(ad+2)} offset:{36864 + 32*T}")
            return out
        return f

    def row_reads(self, ad, sw=None):
        def f(T, dst):
            r = ad if sw is None or T == 8 else sw[T & 1]
            out = []
            for s in range(4):
                for u in range(2):
                    out.append(f"ds_read_b64 {vr(dst+4*s+2*u,2)}, {vr(r)} offset:{4864*T + 64*s + 32*u}")
            out.append(f"ds_read_b64 {vr(dst+16,2)}, {vr(r)} offset:{4864*T + 256}")
            return out
        return f

    def dma_rows(self, jobs, cpr, rstride, vo, vc, n_first, first_waves, lab):
        a = self.a
        mul = {18: 3641, 19: 3450}[cpr]
        dr, dc = 256 // cpr, 256 % cpr
        a(f"s_lshl_b32 {sr(S_T)}, {sr(S_W)}, 6")
        a(f"v_add_u32 {vr(vc)}, {sr(S_T)}, v0")
        a(f"v_mul_u32_u24 {vr(vo)}, {mul}, {vr(vc)}")
        a(f"v_lshrrev_b32 {vr(vo)}, 16, {vr(vo)}")
        a(f"v_mul_u32_u24 {vr(vc+1)}, {cpr}, {vr(vo)}")
        a(f"v_sub_u32 {vr(vc)}, {vr(vc)}, {vr(vc+1)}")
        a(f"v_mul_u32_u24 {vr(vo)}, {rstride}, {vr(vo)}")
        a(f"v_lshl_add_u32 {vr(vo)}, {vr(vc)}, 4, {vr(vo)}")
        a(f"s_lshl_b32 {sr(S_T)}, {sr(S_W)}, 10")
        a(f"v_mov_b32 {vr(vc+1)}, {rstride - 16*cpr}")
        for k in range(n_first):
            if k == n_first - 1:
                a(f"s_cmp_ge_u32 {sr(S_W)}, {first_waves}\ns_cbranch_scc1 {lab}")
            for srd, so, lb in jobs:
                a(f"s_add_u32 m0, {sr(S_T)}, {lb + 4096*k}")
                a("s_nop 0")
                a(f"buffer_load_dwordx4 {vr(vo)}, {sr(srd,4)}, {so} offen lds")
            if k < n_first - 1:
                a(f"v_add_u32 {vr(vc)}, {dc}, {vr(vc)}")
                a(f"v_cmp_le_u32 vcc, {cpr}, {vr(vc)}")
                a(f"v_add_u32 {vr(vo)}, {dr*rstride + 16*dc}, {vr(vo)}")
                a(f"v_subrev_u32 {vr(vc+2)}, {cpr}, {vr(vc)}")
                a(f"v_cndmask_b32 {vr(vc)}, {vr(vc)}, {vr(vc+2)}, vcc")
                a(f"v_cndmask_b32 {vr(vc+2)}, 0, {vr(vc+1)}, vcc")
                a(f"v_add_u32 {vr(vo)}, {vr(vo)}, {vr(vc+2)}")
        a.label(lab)

    def voff_table(self, dst, cpr, rstride, vc):
        a = self.a
        mul = {18: 29128, 19: 27595}[cpr]
        a(f"s_mov_b32 {sr(S_T)}, {rstride - 16*cpr}")
        a(f"v_mul_u32_u24 {vr(dst)}, {mul}, {vr(vc)}")
        for k in range(1, 11): a(f"v_add_u32 {vr(dst+k)}, {(256*k % cpr)*mul}, {vr(dst)}")
        for k in range(11): a(f"v_lshrrev_b32 {vr(dst+k)}, 19, {vr(dst+k)}")
        for k in range(11): a(f"v_mad_i32_i24 {vr(dst+k)}, {vr(dst+k)}, {sr(S_T)}, {vr(vc+1)}")

    def dma_lin(self, srd, soff, lb, v16, lab):
        a = self.a
        a(f"s_lshl_b32 {sr(S_T)}, {sr(S_W)}, 10")
        for k in range(11):
            if k == 10:
                a(f"s_cmp_ge_u32 {sr(S_W)}, 1\ns_cbranch_scc1 {lab}")
            a(f"s_add_u32 m0, {sr(S_T)}, {lb + 4096*k}")
            a(f"s_add_u32 {sr(S_T+1)}, {sr(S_T)}, {soff + 4096*k}")
            a(f"buffer_load_dwordx4 {vr(v16)}, {sr(srd,4)}, {sr(S_T+1)} offen lds")
        a.label(lab)

    def tr_addr(self, ad, base, swapped, t):
        a = self.a
        a(f"v_lshrrev_b32 {vr(t)}, 2, v0")
        a(f"v_mul_u32_u24 {vr(t)}, 288, {vr(t)}")
        a(f"v_and_b32 {vr(t+1)}, 3, v0")
        a(f"v_lshl_add_u32 {vr(t)}, {vr(t+1)}, 3, {vr(t)}")
        a(f"v_add_u32 {vr(ad+2)}, {base}, {vr(t)}")
        if swapped:
            a(f"v_bfe_u32 {vr(t)}, v0, 4, 1")
            a(f"v_mul_u32_u24 {vr(t)}, {16*288}, {vr(t)}")
            a(f"v_add_u32 {vr(ad)}, {vr(ad+2)}, {vr(t)}")
            a(f"v_sub_u32 {vr(ad+1)}, {vr(ad+2)}, {vr(t)}")
            a(f"v_add_u32 {vr(ad+1)}, {16*288}, {vr(ad+1)}")
        else:
            a(f"v_mov_b32 {vr(ad)}, {vr(ad+2)}")
            a(f"v_add_u32 {vr(ad+1)}, {16*288}, {vr(ad+2)}")

    def row_addr(self, ad, base, t):
        a = self.a
        a(f"v_and_b32 {vr(t)}, 15, v0")
        a(f"v_mul_u32_u24 {vr(t)}, 304, {vr(t)}")
        a(f"v_lshrrev_b32 {vr(t+1)}, 4, v0")
        a(f"v_lshl_add_u32 {vr(t)}, {vr(t+1)}, 3, {vr(t)}")
        a(f"v_add_u32 {vr(ad)}, {base}, {vr(t)}")

    def store_block(self, src, v16, v8, srd, soff, soff2, flags=""):
        a = self.a
        for s in range(4):
            a(f"buffer_store_dwordx4 {vr(src+4*s,4)}, {vr(v16)}, {sr(srd,4)}, {sr(soff)} offen offset:{1024*s} {flags}")
        a(f"buffer_store_dwordx2 {vr(src+16,2)}, {vr(v8)}, {sr(srd,4)}, {sr(soff2)} offen {flags}")

    def entry(self):
        a = self.a
        kernel_header(a, NAME)
        a(f"s_load_dwordx4 s[56:59], s[0:1], 0")
        a(f"s_getpc_b64 {sr(S_W1,2)}")
        a.label("L_pf")
        a(f"""s_mov_b32 {sr(S_W1+2)}, L_fallback-L_pf
        s_mov_b32 {sr(S_W1+3)}, 0x20000
        v_lshlrev_b32 v1, 4, v0
        s_bfe_u32 {sr(S_T)}, s2, 0x30003
        s_lshl_b32 {sr(S_T)}, {sr(S_T)}, 12
        buffer_load_dwordx4 v[252:255], v1, {sr(S_W1,4)}, 0 offen
        buffer_load_dwordx4 v[252:255], v1, {sr(S_W1,4)}, {sr(S_T)} offen""")
        a(f"s_cmp_ge_u32 s2, {NWG}\ns_cbranch_scc1 L_end")
        self.stamp("start")
        a(f"s_load_dwordx4 s[60:63], s[0:1], 80")
        a(f"s_load_dwordx4 s[64:67], s[0:1], 40")
        a(f"s_load_dwordx4 s[68:71], s[0:1], 16")
        a(f"s_load_dwordx4 s[72:75], s[0:1], 64")
        a(f"v_lshrrev_b32 v1, 6, v0")
        a(f"s_and_b32 {sr(S_H)}, s2, 1")
        a(f"v_readfirstlane_b32 {sr(S_W)}, v1")
        a(f"s_bfe_u32 {sr(S_B)}, s2, 0x10001")
        a(f"s_lshr_b32 {sr(S_QB)}, s2, 2")
        a(f"v_and_b32 v0, 63, v0")
        a(f"v_lshlrev_b32 {vr(V_DMA)}, 4, v0")
        a(f"s_cmp_ge_u32 s2, 252\ns_cbranch_scc1 L_wfuse")

    def phase_a(self):
        a, o = self.a, self.o
        XR, XF, XA, BF, ACC, AF, TM = 16, 34, 70, 88, 112, 148, 208
        B4, XD = 16, 88
        VK, VQ8, VS = 224, 235, 202
        VU = 88
        AD = 240
        VR4 = 106
        T = S_T
        WV = S_T + 20
        a(f"""s_lshl_b32 {sr(T)}, {sr(S_QB)}, 1
        s_add_u32 {sr(S_TOWN)}, {sr(T)}, {sr(S_H)}
        s_xor_b32 {sr(S_TSND)}, {sr(S_TOWN)}, 1
        s_cmp_lt_u32 {sr(S_TOWN)}, {NT}
        s_cselect_b32 {sr(S_VAL)}, 1, 0
        s_cmp_lt_u32 {sr(S_W)}, 2
        s_cselect_b32 {sr(T+3)}, {sr(S_TSND)}, {sr(S_TOWN)}
        s_mul_i32 {sr(T)}, {sr(S_B)}, {NT}
        s_add_u32 {sr(S_TOWN)}, {sr(S_TOWN)}, {sr(T)}
        s_add_u32 {sr(S_TSND)}, {sr(S_TSND)}, {sr(T)}
        s_add_u32 {sr(T+1)}, {sr(T+3)}, {sr(T)}
        s_lshl_b32 {sr(T+1)}, {sr(T+1)}, 1
        s_and_b32 {sr(T+2)}, {sr(S_W)}, 1
        s_add_u32 {sr(T+2)}, {sr(T+1)}, {sr(T+2)}
        s_mul_i32 {sr(T+1)}, {sr(T+2)}, {16*288}
        s_mul_i32 {sr(S_LB)}, {sr(S_W)}, 5120
        s_add_u32 {sr(S_LB)}, {sr(S_LB)}, {L_WK}
        s_mov_b32 m0, {sr(S_LB)}
        s_mov_b32 {sr(S_X+2)}, 2304000
        s_mov_b32 {sr(S_X+3)}, 0x20000
        s_add_u32 {sr(S_CNT)}, {sr(T+1)}, 4096
        s_waitcnt lgkmcnt(0)
        s_mov_b32 {sr(S_X)}, s56
        s_mov_b32 {sr(S_X+1)}, s57""")
        for k in range(4): a(f"buffer_load_dwordx4 {vr(V_DMA)}, {sr(S_X,4)}, {sr(T+1)} offen offset:{1024*k} lds")
        a(f"s_add_u32 m0, {sr(S_LB)}, 4096\ns_mov_b32 exec_hi, 0\nbuffer_load_dwordx4 {vr(V_DMA)}, {sr(S_X,4)}, {sr(S_CNT)} offen lds\ns_mov_b32 exec_hi, -1")
        self.stamp("xiss")
        self.srd(S_OUT, 74, 75, 2304000)
        a(f"s_cmp_lt_u32 {sr(T+3)}, {NT}\ns_cselect_b32 {sr(WV)}, 1, 0\ns_mov_b32 {sr(WV+1)}, {sr(T+2)}")
        SQ, SK, SU = S_W2, S_W1, S_XA
        self.srd(SU, 64, 65, 82944)
        self.srd(SQ, 58, 59, 41472)
        self.srd(SK, 68, 69, 41472)
        a(f"s_lshr_b32 {sr(T+2)}, s2, 3\ns_lshl_b32 {sr(T+2)}, {sr(T+2)}, 2\ns_add_u32 {sr(T+2)}, {sr(T+2)}, {sr(S_W)}")
        npf = 3
        for srd_, rot in ((SU, 46), (SQ, 0), (SK, 87)):
            a(f"s_add_u32 {sr(T+3)}, {sr(T+2)}, {rot}\ns_and_b32 {sr(T+3)}, {sr(T+3)}, 127\ns_lshl_b32 {sr(T+3)}, {sr(T+3)}, 10")
            a(f"buffer_load_dwordx4 v[252:255], {vr(V_DMA)}, {sr(srd_,4)}, {sr(T+3)} offen")
        W10, UOFF, M1, M3 = S_T + 22, S_T + 23, S_T + 18, S_T + 19
        a(f"""s_lshl_b32 {sr(W10)}, {sr(S_W)}, 10
        s_mul_i32 {sr(UOFF)}, {sr(S_H)}, 288
        s_cmp_eq_u32 {sr(S_W)}, 0
        s_cselect_b32 {sr(M1)}, 0, {L_DUMP}
        s_cmp_lt_u32 {sr(S_W)}, 3
        s_cselect_b32 {sr(M3)}, {sr(W10)}, {L_DUMP}""")
        gq = [f"s_add_u32 m0, {sr(W10 if k < 10 else M1)}, {L_WQ + 4096*k}\ns_add_u32 {sr(S_CNT)}, {sr(W10)}, {4096*k}\nbuffer_load_dwordx4 {vr(V_DMA)}, {sr(SQ,4)}, {sr(S_CNT)} offen lds" for k in range(11)]
        gk = [f"s_add_u32 m0, {sr(W10 if k < 10 else M3)}, {L_WK + 4096*k}\ns_mov_b32 {sr(S_CNT)}, {4096*k - 16*(256*k//19)}\nbuffer_load_dwordx4 {vr(VK+k)}, {sr(SK,4)}, {sr(S_CNT)} offen lds" for k in range(11)]
        gu = [f"s_add_u32 m0, {sr(W10 if k < 10 else M1)}, {L_WU + 4096*k}\ns_add_u32 {sr(S_CNT)}, {sr(UOFF)}, {4096*k + 288*(256*k//18)}\nbuffer_load_dwordx4 {vr(VU+k)}, {sr(SU,4)}, {sr(S_CNT)} offen lds" for k in range(11)]
        allg = gu + gq + gk
        a(f"s_lshl_b32 {sr(T)}, {sr(S_W)}, 6\nv_add_u32 {vr(TM+14)}, {sr(T)}, v0\nv_lshlrev_b32 {vr(TM+15)}, 4, {vr(TM+14)}")
        self.voff_table(VU, 18, 576, TM + 14)
        self.srd(S_WS, 62, 63, WS_END)
        t0, t1, t2 = TM + 10, TM + 11, TM + 12
        a(f"""v_and_b32 {vr(t0)}, 15, v0
        v_lshrrev_b32 {vr(t1)}, 5, v0
        v_lshlrev_b32 {vr(t1)}, 3, {vr(t1)}
        v_xor_b32 {vr(t1)}, {vr(t0)}, {vr(t1)}
        v_lshlrev_b32 {vr(t1)}, 4, {vr(t1)}
        v_lshrrev_b32 {vr(t2)}, 4, v0
        v_lshl_add_u32 {vr(V_KA)}, {vr(t2)}, 9, {vr(t1)}
        v_lshrrev_b32 {vr(t1)}, 3, {vr(t0)}
        v_lshlrev_b32 {vr(t1)}, 1, {vr(t1)}
        v_xor_b32 {vr(t1)}, {vr(t2)}, {vr(t1)}
        v_lshl_add_u32 {vr(t1)}, {vr(t0)}, 2, {vr(t1)}
        v_lshlrev_b32 {vr(V_KA+1)}, 3, {vr(t1)}
        v_lshlrev_b32 {vr(AD+6)}, 3, v0""")
        a(f"""v_and_b32 v3, 15, v0
        v_mul_u32_u24 v3, 288, v3
        v_lshrrev_b32 v4, 4, v0
        v_lshl_add_u32 v3, v4, 3, v3
        v_add_u32 v5, {sr(S_LB)}, v3
        v_and_b32 v4, 1, v4
        v_lshlrev_b32 v4, 5, v4
        v_add_u32 v3, v5, v4
        v_xor_b32 v4, 32, v4
        v_add_u32 v4, v5, v4""")
        self.tr_addr(AD, L_WU, True, t0)
        for j in range(4):
            a(f"s_add_u32 {sr(T)}, {sr(S_W)}, {j}\ns_and_b32 {sr(T)}, {sr(T)}, 3\ns_lshl_b32 {sr(T+1)}, {sr(T)}, 12\ns_add_u32 {sr(T+1)}, {sr(T+1)}, {L_XX}")
            a(f"s_lshl_b32 {sr(T)}, {sr(T)}, 9\ns_add_u32 {sr(T)}, {sr(T)}, {L_QR}")
            a(f"v_add_u32 {vr(VS+j)}, {sr(T+1)}, {vr(V_DMA)}\nv_add_u32 {vr(VR4+j)}, {sr(T)}, {vr(AD+6)}")
        npre = o.get("npre", 11)
        self.stamp("pre")
        for g_ in allg[:npre]: a(g_)
        self.voff_table(VK, 19, 288, TM + 14)
        self.srd(S_DB, 60, 61, 256)
        self.srd(S_DW, 66, 67, 864)
        self.stamp("wiss")
        a(f"s_waitcnt vmcnt({npf + npre})")
        self.stamp("xarr")
        for s in range(4):
            a(f"ds_read_b64 {vr(XR+4*s,2)}, v3 offset:{64*s}\nds_read_b64 {vr(XR+4*s+2,2)}, v4 offset:{64*s}")
        a(f"ds_read_b64 {vr(XR+16,2)}, v5 offset:256")
        for g_ in allg[npre:npre + o.get("nmid", 2)]: a(g_)
        npre += o.get("nmid", 2)
        a("s_waitcnt lgkmcnt(0)")
        nis = npre + o.get("nln", 7)
        assert nis >= 11
        a.bg, a.every, a.cnt = allg[npre:nis], o.get("evln", 18), 0
        self.ln_packed(XR, XF, XA, TM)
        a.flush()
        a(f"""s_cmp_lt_u32 {sr(S_W)}, 2
        s_cbranch_scc1 L_nopub
        s_cmp_eq_u32 {sr(S_VAL)}, 0
        s_cbranch_scc1 L_nopub
        s_and_b32 {sr(T)}, {sr(S_W)}, 1
        s_mul_i32 {sr(T+2)}, {sr(S_TOWN)}, {TILE}
        s_lshl_b32 {sr(T+3)}, {sr(T)}, 8
        s_add_u32 {sr(T+3)}, {sr(T+3)}, {sr(T+2)}
        s_add_u32 {sr(T+4)}, {sr(T+3)}, 4096
        s_lshl_b32 {sr(T+5)}, {sr(T)}, 9
        s_add_u32 {sr(T+5)}, {sr(T+5)}, {sr(T+2)}
        s_add_u32 {sr(T+5)}, {sr(T+5)}, 8192""")
        for s in range(4):
            a(f"buffer_store_dwordx4 {vr(XA+4*s,4)}, {vr(V_KA)}, {sr(S_WS,4)}, {sr(T+3+(s>>1))} offen offset:{2048*(s&1)} sc1")
        a(f"buffer_store_dwordx2 {vr(XA+16,2)}, {vr(V_KA+1)}, {sr(S_WS,4)}, {sr(T+5)} offen sc1")
        a("s_branch L_bar1")
        a.label("L_nopub")
        a(f"""s_mul_i32 {sr(T)}, s2, {IB}
        s_and_b32 {sr(T+1)}, {sr(S_W)}, 1
        s_mul_i32 {sr(T+1)}, {sr(T+1)}, 5120
        s_add_u32 {sr(T)}, {sr(T)}, {sr(T+1)}
        s_add_u32 {sr(T)}, {sr(T)}, {WS_IB}
        s_add_u32 {sr(T+1)}, {sr(T)}, 4096""")
        for i in range(4): a(f"v_mov_b32 {vr(XR+i)}, -1")
        for i in range(4): a(f"buffer_store_dwordx4 {vr(XR,4)}, {vr(V_DMA)}, {sr(S_WS,4)}, {sr(T)} offen offset:{1024*i} sc1")
        a(f"buffer_store_dwordx4 {vr(XR,4)}, {vr(V_DMA)}, {sr(S_WS,4)}, {sr(T+1)} offen sc1")
        a.label("L_bar1")
        self.stamp("pub")
        for s in range(4): a(f"ds_write_b128 {vr(VS)}, {vr(XA+4*s,4)} offset:{1024*s}")
        a(f"ds_write_b64 {vr(VR4)}, {vr(XA+16,2)} offset:{L_XR - L_QR}")
        a(f"v_mov_b32 {vr(t0)}, {L_MX}\nv_mov_b32 {vr(t1)}, 0\nds_write_b32 {vr(t0)}, {vr(t1)}")
        a(f"s_waitcnt vmcnt({nis - 11 + 5}) lgkmcnt(0)\ns_barrier")
        self.stamp("bar1")
        self.fill = [f"v_accvgpr_write_b32 {ar(A_O+i)}, 0" for i in range(144)]
        zf, self.fill = self.fill, []
        nu = min(33, nis + o.get("nu", 8))
        a.bg, a.every, a.cnt = allg[nis:nu], o.get("evu", 15), 0
        self.gemm(self.tr_reads(AD), XA, ACC, AF)
        a.flush()
        self.stamp("up")
        a(f"""s_cmp_lt_u32 {sr(S_W)}, 2
        s_cbranch_scc1 L_sig
        s_cmp_eq_u32 {sr(S_VAL)}, 0
        s_cbranch_scc1 L_sig
        s_waitcnt vmcnt({nu - nis})
        v_mov_b32 {vr(t0)}, {L_MX}
        v_mov_b32 {vr(t1)}, 1
        s_mov_b64 exec, 1
        ds_add_rtn_u32 {vr(t2)}, {vr(t0)}, {vr(t1)}
        s_sub_u32 {sr(T)}, {sr(S_TOWN)}, 63
        s_mul_i32 {sr(T+1)}, {sr(S_B)}, {NT}
        s_cmp_ge_i32 {sr(T)}, {sr(T+1)}
        s_cselect_b32 {sr(T)}, 64, 0
        s_lshl_b32 {sr(T+1)}, {sr(S_B)}, 7
        s_add_u32 {sr(T)}, {sr(T)}, {sr(T+1)}
        s_waitcnt lgkmcnt(0)
        v_readfirstlane_b32 {sr(T+1)}, {vr(t2)}
        v_mov_b32 {vr(t0)}, {sr(T)}
        s_cmp_eq_u32 {sr(T+1)}, 1
        s_cbranch_scc0 L_sig0
        buffer_atomic_add {vr(t1)}, {vr(t0)}, {sr(S_DB,4)}, 0 offen sc1""")
        a.label("L_sig0")
        a("s_mov_b64 exec, -1")
        a.label("L_sig")
        self.stamp("sig")
        for j in range(4):
            for s in range(4): a(f"ds_read_b128 {vr(B4+18*j+4*s,4)}, {vr(VS+j)} offset:{1024*s}")
            a(f"ds_read_b64 {vr(B4+18*j+16,2)}, {vr(VR4+j)} offset:{L_XR - L_QR}")
        for j in range(4): a(f"v_add_u32 {vr(VS+j)}, {sr(W10)}, {vr(VS+j)}")
        p = lambda r: vr(r, 2)
        CC = TM
        c1 = -2.0 * math.sqrt(2.0 / math.pi) * LOG2E
        c2 = c1 * 0.044715
        a(f"v_mov_b32 {vr(CC)}, {f32(c1)}\nv_mov_b32 {vr(CC+2)}, {f32(c2)}\nv_mov_b32 {vr(CC+4)}, 1.0")
        G_ = AF
        a.bg, a.every, a.cnt = allg[nu:], o.get("evg", 8), 0
        for i in range(18): a(f"v_pk_mul_f32 {p(G_+2*i)}, {p(ACC+2*i)}, {p(ACC+2*i)}")
        for i in range(18): a(f"v_pk_fma_f32 {p(G_+2*i)}, {p(G_+2*i)}, {p(CC+2)}, {p(CC)} op_sel_hi:[1,0,0]")
        for i in range(18): a(f"v_pk_mul_f32 {p(G_+2*i)}, {p(G_+2*i)}, {p(ACC+2*i)}")
        for i in range(36): a(f"v_exp_f32 {vr(G_+i)}, {vr(G_+i)}")
        for i in range(18): a(f"v_pk_add_f32 {p(G_+2*i)}, {p(G_+2*i)}, {p(CC+4)} op_sel_hi:[1,0]")
        a.flush()
        for i in range(36): a(f"v_rcp_f32 {vr(G_+i)}, {vr(G_+i)}")
        for i in range(18): a(f"v_pk_mul_f32 {p(ACC+2*i)}, {p(G_+2*i)}, {p(ACC+2*i)}")
        UG = AF
        a(f"""s_mul_i32 {sr(T)}, {sr(WV+1)}, {BLK}
        s_cmp_eq_u32 {sr(S_H)}, 1
        s_cbranch_scc1 L_ln2
        s_add_u32 {sr(T)}, {sr(T)}, {WS_U}""")
        for i in range(18): a(f"v_cvt_pk_bf16_f32 {vr(UG+i)}, {vr(ACC+2*i)}, {vr(ACC+2*i+1)}")
        a("s_branch L_ug")
        a.label("L_ln2")
        a(f"s_add_u32 {sr(T)}, {sr(T)}, {WS_G}")
        self.ln_f32(ACC, UG, TM)
        a.label("L_ug")
        a(f"s_cmp_eq_u32 {sr(WV)}, 1\ns_cselect_b32 {sr(T)}, {sr(T)}, 0x40000000\ns_add_u32 {sr(T+1)}, {sr(T)}, 4096")
        self.store_block(UG, V_DMA, AD + 6, S_WS, T, T + 1, "sc1")
        self.stamp("ug")
        a("s_waitcnt lgkmcnt(0)")
        for j in range(4): a(f"ds_read_b128 {vr(XD+4*j,4)}, {vr(VS+j)}")
        a(f"v_mov_b32 {vr(XD+16)}, {vr(B4+16)}\nv_mov_b32 {vr(XD+17)}, {vr(B4+17)}")
        a(f"s_lshl_b32 {sr(T)}, {sr(S_W)}, 6\ns_add_u32 {sr(T)}, {sr(T)}, {L_WQ - L_WU}")
        for k in range(3):
            a(f"v_add_u32 {vr(AD+3+k)}, {sr(T)}, {vr(AD+k)}\nv_add_u32 {vr(VQ8+k)}, {L_WQ - L_WU + 256}, {vr(AD+k)}")
        self.row_addr(AD + 9, L_WK + 8 * 4864, t0)
        a(f"""s_mul_i32 {sr(T)}, {sr(S_W)}, {2*4864}
        s_sub_u32 {sr(T)}, {sr(T)}, {8*4864}
        v_add_u32 {vr(t1)}, {sr(T)}, {vr(AD+9)}
        v_bfe_u32 {vr(t0)}, v0, 2, 1
        v_mul_u32_u24 {vr(t0)}, 4864, {vr(t0)}
        v_add_u32 {vr(AD+7)}, {vr(t1)}, {vr(t0)}
        v_sub_u32 {vr(AD+8)}, {vr(t1)}, {vr(t0)}
        s_waitcnt vmcnt(5) lgkmcnt(0)
        s_barrier""")
        self.stamp("bar2")

        def a_tr(s):
            out = []
            for t in range(3):
                ad, off = (AD + 3, 32 * t) if t < 2 else (VQ8, 0)
                if s < 4:
                    for u in range(2): out.append(f"ds_read_b64_tr_b16 {vr(AF+18*t+4*s+2*u,2)}, {vr(ad+u)} offset:{9216*s + off}")
                else: out.append(f"ds_read_b64_tr_b16 {vr(AF+18*t+16,2)}, {vr(ad+2)} offset:{36864 + off}")
            return out

        def a_row(s):
            out = []
            for t in range(3):
                ad, off = (AD + 7 + t, 4864 * t) if t < 2 else (AD + 9, 0)
                if s < 4:
                    for u in range(2): out.append(f"ds_read_b64 {ar(A_Q+18*t+4*s+2*u,2)}, {vr(ad)} offset:{off + 64*s + 32*u}")
                else: out.append(f"ds_read_b64 {ar(A_Q+18*t+16,2)}, {vr(ad)} offset:{off + 256}")
            return out

        def pack_units(dst):
            for j in range(4):
                for t in range(2):
                    for h in range(2):
                        r = ACC + 16 * t + 4 * j + 2 * h
                        a(f"v_cvt_pk_bf16_f32 {vr(dst+4*j+2*t+h)}, {vr(r)}, {vr(r+1)}")
            for h in range(2): a(f"v_cvt_pk_bf16_f32 {vr(dst+16+h)}, {vr(ACC+32+2*h)}, {vr(ACC+33+2*h)}")
        self.fill = zf[:72]
        a(f"""s_lshl_b32 {sr(T)}, s2, 6
        s_and_b32 {sr(T)}, {sr(T)}, 0xff
        v_mov_b32 {vr(TM)}, {sr(T)}
        buffer_load_dword {vr(TM+1)}, {vr(TM)}, {sr(S_DB,4)}, 0 offen sc1""")
        self.gemm_m(a_tr, lambda s: [], AF, B4, ACC, extra=[x for s in range(5) for x in a_row(s)])
        PK = TM - 6 + 0
        PK = 184
        pack_units(B4)
        for j in range(4): a(f"ds_write_b128 {vr(VS+j)}, {vr(B4+4*j,4)}")
        a(f"ds_write_b64 {vr(VR4)}, {vr(B4+16,2)} offset:{L_XR - L_QR}")
        for j in range(4): a(f"v_subrev_u32 {vr(VS+j)}, {sr(W10)}, {vr(VS+j)}")
        self.stamp("q")
        a(f"""s_cmp_lg_u32 {sr(S_W)}, 0
        s_cbranch_scc1 L_bar3
        s_sub_u32 {sr(T+1)}, 63, {sr(S_H)}
        s_mov_b32 {sr(T+2)}, 0
        s_branch L_pollc""")
        a.label("L_poll")
        a(f"buffer_load_dword {vr(TM+1)}, {vr(TM)}, {sr(S_DB,4)}, 0 offen sc1")
        a.label("L_pollc")
        a(f"""s_add_u32 {sr(T+2)}, {sr(T+2)}, 1
        s_waitcnt vmcnt(0)
        v_readfirstlane_b32 {sr(T+3)}, {vr(TM+1)}
        s_cmp_ge_u32 {sr(T+3)}, {sr(T+1)}
        s_cbranch_scc1 L_bar3
        s_cmp_lt_u32 {sr(T+2)}, 0x40000
        s_cbranch_scc1 L_poll""")
        a.label("L_bar3")
        a(f"""s_mul_i32 {sr(T)}, {sr(S_B)}, {NT}
        s_mul_i32 {sr(T+1)}, {sr(S_H)}, 63
        s_add_u32 {sr(T+1)}, {sr(T+1)}, {sr(T)}
        s_mul_i32 {sr(T+1)}, {sr(T+1)}, {TILE}
        s_add_u32 {sr(S_XA)}, {sr(S_WS)}, {sr(T+1)}
        s_addc_u32 {sr(S_XA+1)}, {sr(S_WS+1)}, 0
        s_sub_u32 {sr(T+2)}, 63, {sr(S_H)}
        s_mul_i32 {sr(S_XA+2)}, {sr(T+2)}, {TILE}
        s_mov_b32 {sr(S_XA+3)}, 0x20000
        s_mul_i32 {sr(S_LB)}, {sr(S_W)}, {TILE}
        s_mov_b32 {sr(S_TOFF)}, {sr(S_LB)}
        s_add_u32 {sr(T+3)}, {sr(S_W)}, 60
        s_cmp_ge_u32 {sr(T+3)}, {sr(T+2)}
        s_cselect_b32 {sr(S_DUM)}, 4, 99
        s_mov_b32 {sr(S_REDO)}, 0
        v_add_u32 {vr(V_DMA+1)}, 4096, {vr(V_DMA)}
        v_add_u32 {vr(V_DMA+2)}, 8192, {vr(V_DMA)}
        s_waitcnt lgkmcnt(0)
        s_barrier""")
        self.stamp("bar3")

        def b_q(s):
            if s < 4: return [f"ds_read_b128 {vr(B4+18*j+4*s,4)}, {vr(VS+j)} offset:{1024*s}" for j in range(4)]
            return [f"ds_read_b64 {vr(B4+18*j+16,2)}, {vr(VR4+j)} offset:{L_XR - L_QR}" for j in range(4)]
        self.fill = self.fill + zf[72:]
        if o.get("t0", 1): a.bg, a.every, a.cnt = self.tile_groups(0), o.get("evt", 3), 0
        self.gemm_m(None, b_q, A_Q, B4, ACC, pre_a=True, rf=ar)
        a.flush()
        self.stamp("g2")
        if o.get("t1", 1): a.bg, a.every, a.cnt = self.tile_groups(1), o.get("evt1", 6), 0
        while self.fill: a(self.fill.pop(0))
        a(f"v_mov_b32 {vr(CC)}, {f32(LOG2E / 12.0)}")
        for j in range(4): a(f"v_add_u32 {vr(VS+j)}, {sr(W10)}, {vr(VS+j)}")
        for i in range(18): a(f"v_pk_mul_f32 {p(ACC+2*i)}, {p(ACC+2*i)}, {p(CC)} op_sel_hi:[1,0]")
        pack_units(B4)
        for j in range(4): a(f"ds_write_b128 {vr(VS+j)}, {vr(B4+4*j,4)} offset:{L_QX - L_XX}")
        a(f"ds_write_b64 {vr(VR4)}, {vr(B4+16,2)}")
        for j in range(4): a(f"v_dot2_f32_bf16 {vr(CC+j)}, {vr(B4+4*j)}, {vr(XD+4*j)}, 0")
        for i in range(1, 4):
            for j in range(4): a(f"v_dot2_f32_bf16 {vr(CC+j)}, {vr(B4+4*j+i)}, {vr(XD+4*j+i)}, {vr(CC+j)}")
        for i in range(2): a(f"v_dot2_f32_bf16 {vr(CC)}, {vr(B4+16+i)}, {vr(XD+16+i)}, {vr(CC)}")
        a(f"""v_and_b32 {vr(t0)}, 15, v0
        v_lshlrev_b32 {vr(t0)}, 4, {vr(t0)}
        v_add_u32 {vr(t0)}, {L_MX}, {vr(t0)}
        s_lshl_b32 {sr(T+1)}, {sr(S_W)}, 2""")
        self.greduce([CC + j for j in range(4)], CC + 4)
        for j in range(4):
            a(f"s_add_u32 {sr(T)}, {sr(S_W)}, {j}\ns_and_b32 {sr(T)}, {sr(T)}, 3\ns_lshl_b32 {sr(T)}, {sr(T)}, 8\ns_add_u32 {sr(T)}, {sr(T)}, {sr(T+1)}")
            a(f"v_add_u32 {vr(CC+4+j)}, {sr(T)}, {vr(t0)}")
        for j in range(4): a(f"ds_write_b32 {vr(CC+4+j)}, {vr(CC+j)}")
        a.flush()
        a("s_waitcnt lgkmcnt(0)\ns_barrier")
        self.stamp("bar4")
        a(f"v_add_u32 {vr(t1)}, {L_QX}, {vr(V_DMA)}\nv_add_u32 {vr(t2)}, {L_QR}, {vr(AD+6)}")
        MS = 184
        for qb in range(4): a(f"ds_read_b128 {vr(MS+4*qb,4)}, {vr(t0)} offset:{256*qb}")
        for qb in range(4):
            for s in range(4):
                a(f"ds_read_b128 {ar(A_Q+18*qb+4*s,4)}, {vr(t1)} offset:{4096*qb + 1024*s}")
            a(f"ds_read_b64 {ar(A_Q+18*qb+16,2)}, {vr(t2)} offset:{512*qb}")
        a(f"""v_add_u32 {vr(V_KA)}, {sr(S_LB)}, {vr(V_KA)}
        v_add_u32 {vr(V_KA+1)}, {sr(S_LB)}, {vr(V_KA+1)}
        v_lshrrev_b32 {vr(t0)}, 2, v0
        v_bfe_u32 {vr(t1)}, v0, 1, 1
        v_lshlrev_b32 {vr(t1)}, 3, {vr(t1)}
        v_xor_b32 {vr(t1)}, {vr(t0)}, {vr(t1)}
        v_lshlrev_b32 {vr(t1)}, 4, {vr(t1)}
        v_and_b32 {vr(t2)}, 3, v0
        v_lshl_add_u32 {vr(t1)}, {vr(t2)}, 9, {vr(t1)}
        v_and_b32 {vr(V_VA)}, 1, v0
        v_lshl_add_u32 {vr(t1)}, {vr(V_VA)}, 3, {vr(t1)}
        v_add_u32 {vr(V_VA)}, {sr(S_LB)}, {vr(t1)}
        v_xor_b32 {vr(V_VA+1)}, 8, {vr(V_VA)}
        v_lshrrev_b32 {vr(t1)}, 5, v0
        v_lshlrev_b32 {vr(t1)}, 1, {vr(t1)}
        v_xor_b32 {vr(t1)}, {vr(t2)}, {vr(t1)}
        v_lshl_add_u32 {vr(t1)}, {vr(t0)}, 2, {vr(t1)}
        v_lshlrev_b32 {vr(t1)}, 3, {vr(t1)}
        v_add_u32 {vr(V_VR)}, {sr(S_LB)}, {vr(t1)}""")
        a("s_waitcnt lgkmcnt(15)")
        for qb in range(4):
            m = MS + 4 * qb
            a(f"v_add_f32 {vr(m)}, {vr(m)}, {vr(m+1)}\nv_add_f32 {vr(m+2)}, {vr(m+2)}, {vr(m+3)}")
        for qb in range(4):
            m = MS + 4 * qb
            a(f"v_add_f32 {vr(m)}, {vr(m)}, {vr(m+2)}")
        for qb in range(4):
            for i in range(4): a(f"v_sub_f32 {vr(V_CI+4*qb+i)}, 0, {vr(MS+4*qb)}")
        for k in range(5): a(f"v_add_u32 {vr(V_HI+k)}, {2*SLOT}, {vr(V_KA+k)}")
        a("s_waitcnt vmcnt(9) lgkmcnt(0)\ns_barrier")
        self.stamp("bar5")

    def tile_groups(self, slot):
        out = []
        for j in range(9):
            g = ""
            if j % 4 == 0: g = f"s_add_u32 m0, {sr(S_LB)}, {slot*SLOT + 4096*(j//4)}\ns_nop 0\n"
            g += f"buffer_load_dwordx4 {vr(V_DMA + j//4)}, {sr(S_XA,4)}, {sr(S_TOFF)} offen offset:{1024*(j%4)} lds"
            if j == 8: g += f"\ns_add_u32 {sr(S_TOFF)}, {sr(S_TOFF)}, {4*TILE}"
            out.append(g)
        return out

    def first_tiles(self):
        pass

    def wfuse(self):
        a = self.a
        BF, ACC, AF, TM, AD = 88, 108, 144, 208, 240
        LA, LB_, LM = 0, 44032, 88064
        T = S_T
        a.label("L_wfuse")
        a(f"s_load_dwordx2 s[4:5], s[0:1], 32\ns_load_dwordx2 s[6:7], s[0:1], 56\ns_waitcnt lgkmcnt(0)")
        self.srd(S_WS, 62, 63, WS_END)
        self.srd(S_DB, 60, 61, 256)
        self.srd(S_X, 72, 73, 82944)
        self.srd(S_W2, 70, 71, 41472)
        a(f"""s_cmp_eq_u32 s2, 252
        s_cselect_b32 {sr(S_W1)}, s4, s6
        s_cselect_b32 {sr(S_W1+1)}, s5, s7
        s_mov_b32 {sr(S_W1+2)}, 41472
        s_mov_b32 {sr(S_W1+3)}, 0x20000
        s_cselect_b32 {sr(T+4)}, 0, 41472""")
        self.dma_rows([(S_W1, "0", LA), (S_W2, "0", LB_)], 19, 288, TM + 4, TM + 5, 11, 3, "L_wf1")
        a(f"s_lshl_b32 {sr(T)}, {sr(S_W)}, 10\ns_add_u32 {sr(T+2)}, {sr(T)}, {sr(T+4)}")
        for k in range(11):
            if k == 10: a(f"s_cmp_ge_u32 {sr(S_W)}, 1\ns_cbranch_scc1 L_wf2")
            a(f"s_add_u32 m0, {sr(T)}, {LM + 4096*k}\ns_add_u32 {sr(T+1)}, {sr(T+2)}, {4096*k}")
            a(f"buffer_load_dwordx4 {vr(V_DMA)}, {sr(S_X,4)}, {sr(T+1)} offen lds")
        a.label("L_wf2")
        self.tr_addr(AD, LM, False, TM + 8)
        self.row_addr(AD + 3, LA, TM + 8)
        a(f"v_add_u32 {vr(AD+5)}, {LB_}, {vr(AD+3)}")
        a(f"v_lshlrev_b32 {vr(AD+4)}, 3, v0")
        a(f"s_lshl_b32 {sr(T)}, {sr(S_W)}, 5")
        for k in range(3): a(f"v_add_u32 {vr(AD+k)}, {sr(T)}, {vr(AD+k)}")
        a(f"s_mov_b32 {sr(S_CNT)}, {sr(S_W)}")
        a("s_waitcnt vmcnt(0)\ns_barrier")
        a.label("L_wfl")
        for s in self.tr_reads(AD)(0, BF): a(s)
        a("s_waitcnt lgkmcnt(0)")
        self.gemm(self.row_reads(AD + 3), BF, ACC, AF)
        for i in range(18): a(f"v_cvt_pk_bf16_f32 {vr(BF+i)}, {vr(ACC+2*i)}, {vr(ACC+2*i+1)}")
        a("s_cmp_eq_u32 s2, 252\ns_cbranch_scc0 L_wf3")
        self.gemm(self.row_reads(AD + 5), BF, ACC, AF)
        for i in range(18): a(f"v_cvt_pk_bf16_f32 {vr(BF+i)}, {vr(ACC+2*i)}, {vr(ACC+2*i+1)}")
        a.label("L_wf3")
        a(f"""s_mul_i32 {sr(T)}, {sr(S_CNT)}, {BLK}
        s_add_u32 {sr(T)}, {sr(T)}, {sr(T+4)}
        s_add_u32 {sr(T)}, {sr(T)}, {WS_WF}
        s_add_u32 {sr(T+1)}, {sr(T)}, 4096""")
        self.store_block(BF, V_DMA, AD + 4, S_WS, T, T + 1, "sc1")
        for k in range(3): a(f"v_add_u32 {vr(AD+k)}, 128, {vr(AD+k)}")
        a(f"s_add_u32 {sr(S_CNT)}, {sr(S_CNT)}, 4\ns_cmp_lt_u32 {sr(S_CNT)}, 9\ns_cbranch_scc1 L_wfl")
        a(f"""s_waitcnt vmcnt(0)
        s_barrier
        s_cmp_lg_u32 {sr(S_W)}, 0
        s_cbranch_scc1 L_end
        s_mov_b64 exec, 1
        v_mov_b32 {vr(TM)}, 1
        v_mov_b32 {vr(TM+1)}, {DB_CW}
        buffer_atomic_add {vr(TM)}, {vr(TM+1)}, {sr(S_DB,4)}, 0 offen sc1
        v_mov_b32 {vr(TM+1)}, {DB_CW + 128}
        buffer_atomic_add {vr(TM)}, {vr(TM+1)}, {sr(S_DB,4)}, 0 offen sc1
        s_endpgm""")

    def dump_stamps(self):
        a = self.a
        if self.o.get("dbgst"):
            a("s_waitcnt vmcnt(0)")
            self.stamp("done")
            a("s_waitcnt lgkmcnt(0)\ns_mov_b64 exec, 1")
            slots = [1, 2, 3, 4, 5, 6, 7, 9, 11, 12, 13, 14, 15]
            a(f"s_not_b32 {sr(S_T)}, {sr(S_ST)}\nv_mov_b32 v16, {sr(S_T)}\nv_mov_b32 v17, 4\nbuffer_atomic_umax v16, v17, {sr(S_DB,4)}, 0 offen sc1")
            for i in range(min(self.nst, 12)):
                a(f"v_mov_b32 v{18+2*i}, {sr(S_ST+2*i)}\nv_mov_b32 v{19+2*i}, {4*slots[i+1]}\nbuffer_atomic_umax v{18+2*i}, v{19+2*i}, {sr(S_DB,4)}, 0 offen sc1")
            return
        if not self.o.get("stamps"): return
        T = S_T
        a(f"""s_waitcnt lgkmcnt(0)
        s_lshl_b32 {sr(T)}, s2, 2
        s_add_u32 {sr(T)}, {sr(T)}, {sr(S_W)}
        s_lshl_b32 {sr(T)}, {sr(T)}, 7
        s_add_u32 {sr(T)}, {sr(T)}, {WS_DBG}
        v_mov_b32 v1, 0""")
        for i in range(26): a(f"v_mov_b32 {vr(16+i)}, {sr(S_ST+i)}")
        for i in range(7): a(f"buffer_store_dwordx4 {vr(16+4*i,4)}, v1, {sr(S_WS,4)}, {sr(T)} offen offset:{16*i}")

    def build(self):
        a = self.a
        self.stnames = []
        a.raw(f"; @launch grid=({NWG},1,1) block=(256,1,1) lds={LDS_TOTAL}")
        a.raw('.amdgcn_target "amdgcn-amd-amdhsa--gfx950"')
        a.raw(".text")
        a.raw(f".globl {NAME}")
        self.entry()
        self.phase_a()
        self.rest()
        a.label("L_fin")
        self.dump_stamps()
        a.label("L_end")
        a("s_endpgm")
        self.fallback()
        self.wfuse()
        a.raw('.section .rodata,"a"')
        a.raw(".p2align 6")
        a.raw(kernel_desc(NAME, 512, 102, 256))
        return a.text()

    def S(self, buf, qb, i=0): return V_S + buf * 32 + qb * 8 + i
    def P(self, buf, qb, i=0): return V_P + buf * 16 + qb * 4 + i

    def k_reads(self, slot):
        ka, so = (V_KA, slot * SLOT) if slot < 2 else (V_HI, (slot - 2) * SLOT)
        out = [f"ds_read_b128 {vr(V_K+8*s+4*kb,4)}, {vr(ka)} offset:{so + 2048*s + 256*kb}" for s in range(4) for kb in range(2)]
        out += [f"ds_read_b64 {vr(V_K+32+2*kb,2)}, {vr(ka+1)} offset:{so + 8192 + 512*kb}" for kb in range(2)]
        return out

    def v_reads(self, slot):
        ka, so = (V_KA, slot * SLOT) if slot < 2 else (V_HI, (slot - 2) * SLOT)
        out = []
        for T in range(9):
            for u in range(2):
                if T < 8: out.append(f"ds_read_b64_tr_b16 {vr(V_V+4*T+2*u,2)}, {vr(ka+2+(T&1))} offset:{so + 2048*(T>>1) + 256*u}")
                else: out.append(f"ds_read_b64_tr_b16 {vr(V_V+4*T+2*u,2)}, {vr(ka+4)} offset:{so + 8192 + 512*u}")
        return out

    def qk_mfmas(self, buf, czero=False):
        out = []
        for s in range(5):
            for kb in range(2):
                for qb in range(4):
                    d = vr(self.S(buf, qb, 4 * kb), 4)
                    c = ("0" if czero else vr(V_CI + 4 * qb, 4)) if s == 0 else d
                    if s < 4: out.append(f"v_mfma_f32_16x16x32_bf16 {d}, {vr(V_K+8*s+4*kb,4)}, {ar(A_Q+18*qb+4*s,4)}, {c}")
                    else: out.append(f"v_mfma_f32_16x16x16_bf16 {d}, {vr(V_K+32+2*kb,2)}, {ar(A_Q+18*qb+16,2)}, {c}")
        return out

    def pv_mfmas(self, buf):
        out = []
        for T in range(9):
            for qb in range(4):
                o = ar(A_O + 36 * qb + 4 * T, 4)
                out.append(f"v_mfma_f32_16x16x32_bf16 {o}, {vr(V_V+4*T,4)}, {vr(self.P(buf,qb),4)}, {o}")
        return out

    def plan(self):
        o = self.o
        n = 76
        fixed = [None] * n
        for i, g in enumerate(range(1, 36, 2)): fixed[g] = ("V", i)
        for i, g in enumerate([41, 44, 47, 50, 53, 56, 59, 62, 65, 68]): fixed[g] = ("K", i)
        for i, g in enumerate([42, 46, 49, 52, 55, 58, 61, 64, 67]): fixed[g] = ("D", i)
        exps = [(qb, j) for qb in range(4) for j in range(8)]
        start = 40
        order = [(start + k) % n for k in range(n)]
        free_idx = [k for k, g in enumerate(order) if fixed[g] is None]
        nsm = len(free_idx) - 32
        cand = free_idx[6:-2]
        sm_set = set(free_idx[-2:]) | {cand[int((i + 0.5) * len(cand) / (nsm - 2))] for i in range(nsm - 2)}
        nds = sum(1 for f in fixed if f is not None and f[0] != "D")
        over = 48 - nds - 2 * nsm
        ocand = [k for k, g in enumerate(order) if k >= 20 and (fixed[g] is None or fixed[g][0] != "D")]
        o_set = {ocand[int((i + 0.5) * len(ocand) / over)] for i in range(over)}
        gaps = [[] for _ in range(n)]
        small, pend, ei = [], [], 0
        for k, g in enumerate(order):
            new = (start + k) < n
            small.extend(pend); pend = []
            small.sort(key=lambda t: 0 if t[0] == "c" else 1)
            f = fixed[g]
            want = 0
            if f is not None:
                gaps[g].append((f[0], f[1], None))
                if f[0] == "D": continue
                want = 1
            elif k in sm_set: want = 2
            else:
                qb, j = exps[ei]; ei += 1
                gaps[g].append(("E", ("e", qb, j), new))
                if j & 1: pend.append(("c", qb, j // 2))
                pend.append(("a", qb, j))
            if k in o_set: want += 1
            if k == n - 1: want = 99
            for _ in range(want):
                if small: gaps[g].append(("E", small.pop(0), new))
        assert not small and not pend and ei == 32
        self.gaps = gaps

    def etext(self, buf, it):
        kind, qb, j = it
        s = self.S(buf, qb)
        if kind == "e": return f"v_exp_f32 {vr(s+j)}, {vr(s+j)}"
        if kind == "a": return f"v_add_f32 {vr(V_L+qb)}, {vr(V_L+qb)}, {vr(s+j)}"
        return f"v_cvt_pk_bf16_f32 {vr(self.P(buf, qb, j))}, {vr(s+2*j)}, {vr(s+2*j+1)}"

    def period(self, p, qk=True, pv=True, e_old=True, e_new=True, kread=True, vread=True, dma=True, extra={}):
        a = self.a
        bn, bo = (p + 1) & 1, p & 1
        mf = self.qk_mfmas(bn) + self.pv_mfmas(bo)
        kr, vrd = self.k_reads((p + 2) % RING), self.v_reads(p % RING)
        slot = p % RING
        n = 76
        sc = [[] for _ in range(n)]
        dgs = [g for g in range(n) if any(e[0] == "D" for e in self.gaps[g])]
        if dma:
            for j, g in enumerate(dgs):
                if j % 4 == 0: sc[g - 1].append(f"s_add_u32 m0, {sr(S_LB)}, {slot*SLOT + 4096*(j//4)}")
            sc[dgs[-1] + 1].append(f"s_add_u32 {sr(S_TOFF)}, {sr(S_TOFF)}, {4*TILE}")
        w = []
        if kread: w.append("vmcnt(9)")
        if pv: w.append("lgkmcnt(0)")
        if w: sc[39].append("s_waitcnt " + " ".join(w))
        if kread: sc[75].append("s_waitcnt lgkmcnt(0)")
        for g in range(n):
            on = qk if g < 40 else pv
            if on: a(mf[g])
            if g == 40 and not pv and e_new: a("s_nop 7")
            for s in sc[g]: a(s)
            if g in extra: a(extra[g])
            for kind, d, new in self.gaps[g]:
                if kind == "V":
                    if vread: a(vrd[d])
                elif kind == "K":
                    if kread: a(kr[d])
                elif kind == "D":
                    if dma: a(f"buffer_load_dwordx4 {vr(V_DMA + d//4)}, {sr(S_XA,4)}, {sr(S_TOFF)} offen offset:{1024*(d%4)} lds")
                elif (new and e_new) or (not new and e_old):
                    a(self.etext(bn if new else bo, d))
                    if d[0] == "e" and not on: a("s_nop 0")
            if g == 39 and not qk: a("s_nop 1")

    MK, VO, GA, DWA, VPL = 232, 236, 238, 244, 248
    NB, PT, E_U, E_G, E_U2, E_G2, E_DW, E_COL = 56, 57, 58, 59, 60, 61, 62, 63
    U, GM, G0, GP, DW = 128, 138, 148, 208, 16

    def epi_setup(self):
        T = S_T
        NB, PT, VO, GA, DWA = self.NB, self.PT, self.VO, self.GA, self.DWA
        r, g4, x, y, big = 208, 209, 210, 211, 212
        L = [f"s_lshr_b32 {sr(NB)}, {sr(S_W)}, 1\nv_and_b32 {vr(r)}, 15, v0\nv_lshrrev_b32 {vr(g4)}, 4, v0",
             f"s_and_b32 {sr(PT)}, {sr(S_W)}, 1\nv_mul_u32_u24 {vr(x)}, 288, {vr(r)}\nv_lshlrev_b32 {vr(DWA)}, 3, {vr(g4)}",
             f"s_lshl_b32 {sr(T)}, {sr(S_TOWN)}, 1\nv_add_u32 {vr(x)}, {vr(x)}, {vr(DWA)}\nv_mov_b32 {vr(big)}, 0x40000000",
             f"s_add_u32 {sr(T)}, {sr(T)}, {sr(NB)}\ns_lshl_b32 {sr(T)}, {sr(T)}, 4\ns_mul_i32 {sr(T+1)}, {sr(S_TOWN)}, {TILE}",
             f"s_mul_i32 {sr(T+2)}, {sr(PT)}, {BLK}\nv_add_u32 {vr(r)}, {sr(T)}, {vr(r)}\nv_add_u32 {vr(x)}, {sr(T+1)}, {vr(x)}",
             f"s_sub_u32 {sr(T+3)}, {BLK}, {sr(T+2)}\nv_add_u32 {vr(VO)}, {sr(T+2)}, {vr(x)}",
             f"s_mul_i32 {sr(T)}, {sr(S_B)}, 4000\nv_add_u32 {vr(VO+1)}, {sr(T+3)}, {vr(x)}",
             f"s_add_u32 {sr(T+1)}, {sr(T)}, 3999\ns_mov_b32 {sr(T+2)}, {BLK}\ns_lshl_b32 {sr(T+3)}, {sr(PT)}, 11",
             f"s_add_u32 {sr(self.E_U)}, {sr(T+3)}, {WS_U}\ns_add_u32 {sr(self.E_G)}, {sr(T+3)}, {WS_G}\ns_mov_b32 {sr(self.E_U2)}, {WS_U + 4096}",
             f"s_mov_b32 {sr(self.E_G2)}, {WS_G + 4096}\ns_lshl_b32 {sr(self.E_DW)}, {sr(PT)}, 7\ns_lshl_b32 {sr(self.E_COL)}, {sr(S_W)}, 6"]
        for k, dr in enumerate((0, -1, 1)):
            m = GA + 2 * k
            src = r
            if dr:
                L.append(f"v_add_u32 {vr(m)}, {dr}, {vr(r)}\nv_cmp_eq_u32 vcc, {sr(T if dr < 0 else T+1)}, {vr(r)}")
                src = m
            L.append(f"v_lshrrev_b32 {vr(x)}, 4, {vr(src)}\nv_and_b32 {vr(y)}, 15, {vr(src)}")
            L.append(f"v_mul_lo_u32 {vr(x)}, {vr(x)}, {sr(T+2)}\nv_lshl_add_u32 {vr(y)}, {vr(g4)}, 4, {vr(y)}")
            L.append(f"v_lshl_add_u32 {vr(m)}, {vr(y)}, 4, {vr(x)}\nv_lshl_add_u32 {vr(m+1)}, {vr(y)}, 3, {vr(x)}")
            if dr: L.append(f"v_cndmask_b32 {vr(m)}, {vr(m)}, {vr(big)}, vcc\nv_cndmask_b32 {vr(m+1)}, {vr(m+1)}, {vr(big)}, vcc")
        return L

    def conv_loads(self):
        GA = self.GA
        L = []
        for dst, m, so in ((self.GM, GA + 2, 1), (self.G0, GA, 1), (self.GP, GA + 4, 1), (self.U, GA, 0)):
            for k in range(2): L.append(f"buffer_load_dwordx4 {vr(dst+4*k,4)}, {vr(m)}, {sr(S_WS,4)}, {sr(self.E_U+so)} offen offset:{1024*k} sc1")
            L.append(f"buffer_load_dwordx2 {vr(dst+8,2)}, {vr(m+1)}, {sr(S_WS,4)}, {sr(self.E_U2+so)} offen sc1")
        for k in range(3):
            for i in range(4): L.append(f"buffer_load_dwordx2 {vr(self.DW+10*k+2*i,2)}, {vr(self.DWA)}, {sr(S_DW,4)}, {sr(self.E_DW)} offen offset:{288*k + 32*i}")
            L.append(f"buffer_load_dwordx2 {vr(self.DW+10*k+8,2)}, {vr(self.DWA)}, {sr(S_DW,4)}, 0 offen offset:{288*k + 256}")
        return L

    def xa_srd(self):
        T = S_T
        return f"""s_mul_i32 {sr(T)}, {sr(S_B)}, {NT}
        s_mul_i32 {sr(T+1)}, {sr(S_H)}, 63
        s_add_u32 {sr(T+1)}, {sr(T+1)}, {sr(T)}
        s_mul_i32 {sr(T+1)}, {sr(T+1)}, {TILE}
        s_add_u32 {sr(S_XA)}, {sr(S_WS)}, {sr(T+1)}
        s_addc_u32 {sr(S_XA+1)}, {sr(S_WS+1)}, 0
        s_sub_u32 {sr(T+2)}, 63, {sr(S_H)}
        s_mul_i32 {sr(S_XA+2)}, {sr(T+2)}, {TILE}
        s_mov_b32 {sr(S_XA+3)}, 0x20000"""

    def rest(self):
        a, o = self.a, self.o
        T = S_T
        VPL = self.VPL
        self.plan()
        a.label("L_go")
        for x in self.k_reads(0): a(x)
        for i in range(4): a(f"v_mov_b32 {vr(V_L+i)}, 0")
        for i in range(4): a(f"v_mov_b32 {vr(self.MK+i)}, {vr(V_CI+4*i)}")
        a(f"""s_mov_b32 {sr(S_CNT)}, 0
        s_lshl_b32 {sr(T)}, {sr(S_B)}, 7
        s_add_u32 {sr(T)}, {sr(T)}, {DB_CB}
        v_mov_b32 {vr(VPL)}, {sr(T)}
        s_waitcnt lgkmcnt(0)""")
        t2 = self.tile_groups(2)
        ex = {1 + 4 * i: t2[i] for i in range(9)}
        es = self.epi_setup()
        for g in range(40):
            if g not in ex and es: ex[g] = es.pop(0)
        assert not es
        ex[41] = (f"s_or_b32 {sr(T)}, {sr(S_W)}, {sr(S_REDO)}\ns_cmp_lg_u32 {sr(T)}, 0\ns_cbranch_scc1 L_nocb\ns_mov_b64 exec, 1\nv_mov_b32 {vr(VPL+1)}, 1\n"
                  f"buffer_atomic_add {vr(VPL+1)}, {vr(VPL)}, {sr(S_DB,4)}, 0 offen sc1\ns_mov_b64 exec, -1\nL_nocb:")
        self.period(-1, pv=False, e_old=False, vread=False, extra=ex)
        self.stamp("loop")
        a.raw(".p2align 6")
        a.label("L_loop")
        for p in range(4):
            ex = {}
            if p == 0:
                a(f"s_cmp_eq_u32 {sr(S_CNT)}, 3\ns_cbranch_scc1 L_last")
                a.label("L_lastb")
            if p == 2:
                a(f"s_add_u32 {sr(S_CNT)}, {sr(S_CNT)}, 1\ns_cmp_eq_u32 {sr(S_CNT)}, {sr(S_DUM)}\ns_cbranch_scc1 L_dummy")
                a.label("L_dummyb")
                ex = {70: f"buffer_load_dwordx4 v[252:255], {vr(VPL)}, {sr(S_DB,4)}, 0 offen sc1"}
            self.period(p, extra=ex)
            if p == 2: a(f"s_cmp_eq_u32 {sr(S_CNT)}, 4\ns_cbranch_scc1 L_tail")
        a("s_branch L_loop")
        a.label("L_dummy")
        for i in range(16): a(f"v_mov_b32 {vr(V_CI+i)}, 0xff800000")
        a("s_nop 1\ns_branch L_dummyb")
        a.label("L_last")
        a(f"s_waitcnt vmcnt(9)\ns_mov_b32 {sr(T+2)}, 0")
        a.label("L_late")
        a(f"""v_readfirstlane_b32 {sr(T)}, v252
        v_readfirstlane_b32 {sr(T+1)}, v254
        s_cmp_ge_u32 {sr(T)}, 126
        s_cselect_b32 {sr(T+3)}, 1, 0
        s_cmp_ge_u32 {sr(T+1)}, 2
        s_cselect_b32 {sr(T+3)}, {sr(T+3)}, 0
        s_cmp_eq_u32 {sr(T+3)}, 1
        s_cbranch_scc1 L_late0
        buffer_load_dwordx4 v[252:255], {vr(VPL)}, {sr(S_DB,4)}, 0 offen sc1
        s_add_u32 {sr(T+2)}, {sr(T+2)}, 1
        s_waitcnt vmcnt(0)
        s_cmp_lt_u32 {sr(T+2)}, 0x40000
        s_cbranch_scc1 L_late""")
        a.label("L_late0")
        a(f"""s_add_u32 {sr(S_XA)}, {sr(S_WS)}, {WS_WF}
        s_addc_u32 {sr(S_XA+1)}, {sr(S_WS+1)}, 0
        s_mov_b32 {sr(S_XA+2)}, {18*BLK}
        s_mov_b32 {sr(S_TOFF)}, {sr(S_LB)}
        s_branch L_lastb""")
        a.label("L_tail")
        self.tail()
        self.stamp("end")
        self.epilogue()

    L_S0 = L_SP
    L_L = L_SP + TILE

    def tail(self):
        a = self.a
        T = S_T
        cl = self.conv_loads()
        VST0, VST1 = 218, 219
        ex = {2 + 4 * i: cl[i] for i in range(9)}
        ex[0] = (f"s_add_u32 {sr(T)}, {sr(S_LB)}, {2*SLOT}\ns_cmp_eq_u32 {sr(S_W)}, 0\ns_cselect_b32 {sr(T)}, {self.L_S0}, {sr(T)}\n"
                 f"v_add_u32 {vr(VST0)}, {sr(T)}, {vr(V_DMA)}\ns_add_u32 {sr(T)}, {sr(S_LB)}, {3*SLOT}\nv_add_u32 {vr(VST1)}, {sr(T)}, {vr(V_DMA)}")
        n0 = len(a.lines)
        self.period(15, qk=False, e_new=False, kread=False, dma=False, extra=ex)
        k = next(i for i in range(n0, len(a.lines)) if "v_mfma" in a.lines[i])
        del a.lines[k:]
        cl = cl[9:]
        wr = [f"ds_write_b128 {vr(VST0+qb)}, {ar(A_O+36*qb+4*i,4)} offset:{1024*i}" for qb in range(2) for i in range(9)]
        n = 0
        for qb in range(4):
            for Tt in range(9):
                o_ = ar(A_O + 36 * qb + 4 * Tt, 4)
                a(f"v_mfma_f32_16x16x32_bf16 {o_}, {vr(V_V+4*Tt,4)}, {vr(self.P(1,qb),4)}, {o_}")
                if n < 18: a(cl[n])
                else:
                    if n == 18: a("s_waitcnt vmcnt(28)")
                    if n % 2 == 0: a(wr.pop(0))
                n += 1
        self.wr_left = wr

    def epilogue(self):
        a, o = self.a, self.o
        T = S_T
        p = lambda r: vr(r, 2)
        L_L, L_FL = self.L_L, self.L_L + 1024
        NB, PT, MK, VO = self.NB, self.PT, self.MK, self.VO
        U, GM, G0, GP, DW = self.U, self.GM, self.G0, self.GP, self.DW
        VST0, VST1 = 218, 219
        t = 220
        wr = self.wr_left
        n0 = len(a.lines)
        self.greduce([V_L + i for i in range(4)], t)
        a(f"""v_add_f32 {vr(t+1)}, {vr(V_L)}, {vr(V_L+1)}
        v_add_f32 {vr(t+2)}, {vr(V_L+2)}, {vr(V_L+3)}
        v_add_f32 {vr(t+1)}, {vr(t+1)}, {vr(t+2)}
        v_mov_b32 {vr(t+2)}, {f32(2.0**100)}
        v_cmp_nle_f32 vcc, {vr(t+1)}, {vr(t+2)}
        v_and_b32 {vr(t+3)}, 15, v0
        v_lshlrev_b32 {vr(t+3)}, 4, {vr(t+3)}
        s_lshl_b32 {sr(T)}, {sr(S_W)}, 2
        s_add_u32 {sr(T)}, {sr(T)}, {L_L}
        v_add_u32 {vr(t+4)}, {sr(T)}, {vr(t+3)}
        s_cmp_lg_u64 vcc, 0
        s_cselect_b32 {sr(T+1)}, 1, 0
        v_mov_b32 {vr(t+5)}, {sr(T+1)}
        v_mov_b32 {vr(t+6)}, {sr(T)}
        s_mul_i32 {sr(T)}, {sr(NB)}, {SLOT}
        s_lshl_b32 {sr(T+1)}, {sr(PT)}, 12
        s_add_u32 {sr(T)}, {sr(T)}, {sr(T+1)}
        s_add_u32 {sr(T)}, {sr(T)}, {2*SLOT}
        v_add_u32 {vr(t+7)}, {sr(T)}, {vr(V_DMA)}
        s_add_u32 {sr(T+1)}, {sr(T+1)}, {self.L_S0}
        s_cmp_eq_u32 {sr(NB)}, 0
        s_cselect_b32 {sr(T)}, {sr(T+1)}, {sr(T)}
        v_add_u32 {vr(t+8)}, {sr(T)}, {vr(V_DMA)}
        s_lshl_b32 {sr(T+1)}, {sr(NB)}, 8
        s_add_u32 {sr(T+1)}, {sr(T+1)}, {L_L}
        v_add_u32 {vr(t+9)}, {sr(T+1)}, {vr(t+3)}
        v_mov_b32 {vr(t+10)}, {L_FL}
        v_lshlrev_b32 {vr(t+11)}, 3, v0""")
        body = a.lines[n0:]; del a.lines[n0:]
        for i, l in enumerate(body):
            if i % 5 == 0 and wr: a(wr.pop(0))
            a.lines.append(l)
        for x in wr: a(x)
        VROW16, VRD, VRD0, VL8 = t + 3, t + 7, t + 8, t + 11
        for qb in range(4): a(f"ds_write_b32 {vr(t+4)}, {vr(V_L+qb)} offset:{256*qb}")
        a(f"ds_write_b32 {vr(t+6)}, {vr(t+5)} offset:1024")
        a("s_waitcnt lgkmcnt(0)\ns_barrier")
        self.stamp("B1")
        R = 48
        F = 164
        a(f"ds_read_b128 {vr(F,4)}, {vr(t+10)}\nds_read_b128 {vr(F+4,4)}, {vr(t+9)}")

        def reduce4():
            for w in range(4):
                for i in range(5): a(f"ds_read_b128 {vr(R+20*w+4*i,4)}, {vr(VRD0 if w == 0 else VRD)} offset:{TILE*w + 1024*i}")
                if w == 1: yield
            yield
            for w in range(1, 4):
                a(f"s_waitcnt lgkmcnt({5*(3-w)})")
                for i in range(10): a(f"v_pk_add_f32 {p(R+2*i)}, {p(R+2*i)}, {p(R+20*w+2*i)}")
            for i in range(10): a(f"v_cvt_pk_bf16_f32 {vr(R+20+i)}, {vr(R+2*i)}, {vr(R+2*i+1)}")
        g = reduce4(); next(g)
        a(f"""s_xor_b32 {sr(T)}, s2, 1
        s_mul_i32 {sr(T)}, {sr(T)}, {IB}
        s_mul_i32 {sr(T+1)}, {sr(NB)}, 5120
        s_add_u32 {sr(T)}, {sr(T)}, {sr(T+1)}
        s_add_u32 {sr(T)}, {sr(T)}, {WS_IB}
        s_lshl_b32 {sr(T+1)}, {sr(PT)}, 11
        s_add_u32 {sr(T+1)}, {sr(T+1)}, {sr(T)}
        s_add_u32 {sr(T)}, {sr(T)}, 4096
        s_cmp_eq_u32 {sr(PT)}, 0
        s_cselect_b32 {sr(T)}, 0x40000000, {sr(T)}""")
        next(g)
        a(f"""s_waitcnt lgkmcnt(15)
        v_or_b32 {vr(F)}, {vr(F)}, {vr(F+1)}
        v_or3_b32 {vr(F)}, {vr(F)}, {vr(F+2)}, {vr(F+3)}
        v_add_f32 {vr(F+4)}, {vr(F+4)}, {vr(F+5)}
        v_add_f32 {vr(F+6)}, {vr(F+6)}, {vr(F+7)}
        v_readfirstlane_b32 {sr(T+2)}, {vr(F)}
        v_add_f32 {vr(F+4)}, {vr(F+4)}, {vr(F+6)}
        s_andn2_b32 {sr(T+2)}, {sr(T+2)}, {sr(S_REDO)}
        s_cbranch_scc1 L_fallback
        s_cmp_eq_u32 {sr(NB)}, 1
        s_cselect_b64 vcc, -1, 0""")
        for _ in g: pass
        a(f"""v_mov_b32 {vr(R+30)}, {vr(F+4)}
        v_cndmask_b32 {vr(R+31)}, {vr(MK)}, {vr(MK+1)}, vcc
        buffer_store_dwordx4 {vr(R+20,4)}, {vr(V_DMA)}, {sr(S_WS,4)}, {sr(T+1)} offen sc1
        buffer_store_dwordx4 {vr(R+24,4)}, {vr(V_DMA)}, {sr(S_WS,4)}, {sr(T+1)} offen offset:1024 sc1
        buffer_store_dwordx4 {vr(R+28,4)}, {vr(V_DMA)}, {sr(S_WS,4)}, {sr(T)} offen sc1""")
        self.stamp("sent")
        a(f"s_cmp_eq_u32 {sr(S_VAL)}, 0\ns_cbranch_scc1 L_fin")
        WD, WO = [0, 18, 36], [54, 216, 234]
        a(f"""v_lshl_add_u32 {vr(F)}, {sr(S_LB)}, 0, {vr(V_DMA)}
        v_add_u32 {vr(F+1)}, {sr(S_LB)}, {vr(VL8)}
        v_add_u32 {vr(F+2)}, {8*BLK}, {vr(V_DMA)}
        v_add_u32 {vr(F+3)}, {8*BLK}, {vr(VL8)}""")
        for mat, regs in ((1, WD), (0, WO)):
            for tt in range(3):
                b, off = (F, mat * 9 * BLK + tt * BLK) if tt < 2 else (F + 2, mat * 9 * BLK)
                for s in range(4): a(f"ds_read_b128 {ar(regs[tt]+4*s,4)}, {vr(b)} offset:{off + 1024*s}")
                a(f"ds_read_b64 {ar(regs[tt]+16,2)}, {vr(b+1)} offset:{off + 4096}")
        XR = 198
        units = [(0, 0), (0, 1), (1, 0), (1, 1), (2, 0)]
        for u, (tt, j) in enumerate(units):
            so = (sr(self.E_COL), 32 * tt) if tt < 2 else ("0", 256)
            a(f"buffer_load_dwordx2 {vr(XR+2*u,2)}, {vr(VO+j)}, {sr(S_X,4)}, {so[0]} offen offset:{so[1]}")
        ad = 172
        a(f"""s_lshl_b32 {sr(T)}, {sr(NB)}, 12
        s_lshl_b32 {sr(T+1)}, {sr(PT)}, 11
        s_add_u32 {sr(T)}, {sr(T)}, {sr(T+1)}
        v_add_u32 {vr(ad)}, {sr(T)}, {vr(V_DMA)}
        s_lshl_b32 {sr(T)}, {sr(NB)}, 9
        s_add_u32 {sr(T)}, {sr(T)}, 8192
        v_add_u32 {vr(ad+1)}, {sr(T)}, {vr(VL8)}
        s_lshl_b32 {sr(T)}, {sr(PT)}, 12
        v_add_u32 {vr(ad+2)}, {sr(T)}, {vr(V_DMA)}
        v_xor_b32 {vr(ad+3)}, 4096, {vr(ad+2)}
        s_lshl_b32 {sr(T)}, {sr(PT)}, 9
        s_add_u32 {sr(T)}, {sr(T)}, 8192
        v_add_u32 {vr(ad+4)}, {sr(T)}, {vr(VL8)}
        v_xor_b32 {vr(ad+5)}, 512, {vr(ad+4)}
        s_lshl_b32 {sr(T)}, {sr(PT)}, 8
        s_add_u32 {sr(T)}, {sr(T)}, {L_L + 512}
        v_add_u32 {vr(ad+6)}, {sr(T)}, {vr(VROW16)}
        v_xor_b32 {vr(ad+7)}, 256, {vr(ad+6)}
        s_waitcnt vmcnt(8) lgkmcnt(0)
        s_barrier""")
        self.stamp("B1b")
        wr = [f"ds_write_b128 {vr(VST0+qb)}, {ar(A_O+36*(2+qb)+4*i,4)} offset:{1024*i}" for qb in range(2) for i in range(9)]
        C, MSK, UU, PKD = 48, 68, 80, 100
        n0 = len(a.lines)
        for i in range(10):
            mk = MSK + 6 * (i & 1)
            for k in range(3):
                a(f"v_and_b32 {vr(mk+2*k)}, 0xffff, {vr(DW+10*k+i)}\nv_and_b32 {vr(mk+1+2*k)}, 0xffff0000, {vr(DW+10*k+i)}")
            for h in range(2): a(f"v_dot2_f32_bf16 {vr(C+2*i+h)}, {vr(GM+i)}, {vr(mk+h)}, 0")
            for h in range(2): a(f"v_dot2_f32_bf16 {vr(C+2*i+h)}, {vr(G0+i)}, {vr(mk+2+h)}, {vr(C+2*i+h)}")
            for h in range(2): a(f"v_dot2_f32_bf16 {vr(C+2*i+h)}, {vr(GP+i)}, {vr(mk+4+h)}, {vr(C+2*i+h)}")
        for i in range(10):
            a(f"v_lshlrev_b32 {vr(UU+2*i)}, 16, {vr(U+i)}\nv_and_b32 {vr(UU+1+2*i)}, 0xffff0000, {vr(U+i)}")
        for i in range(10): a(f"v_pk_mul_f32 {p(C+2*i)}, {p(C+2*i)}, {p(UU+2*i)}")
        for i in range(10): a(f"v_cvt_pk_bf16_f32 {vr(PKD+i)}, {vr(C+2*i)}, {vr(C+2*i+1)}")
        body = a.lines[n0:]; del a.lines[n0:]
        for i, l in enumerate(body):
            if i % 8 == 0 and wr: a(wr.pop(0))
            a.lines.append(l)
        for x in wr: a(x)
        a(f"""ds_write_b128 {vr(ad)}, {vr(PKD,4)} offset:16384
        ds_write_b128 {vr(ad)}, {vr(PKD+4,4)} offset:17408
        s_cmp_eq_u32 {sr(PT)}, 0
        s_cbranch_scc1 L_e3
        ds_write_b64 {vr(ad+1)}, {vr(PKD+8,2)} offset:16384""")
        a.label("L_e3")
        IN = 128
        a(f"""s_mul_i32 {sr(T+12)}, s2, {IB}
        s_add_u32 {sr(T+12)}, {sr(T+12)}, {WS_IB}
        s_mul_i32 {sr(T)}, {sr(PT)}, 5120
        s_add_u32 {sr(T+13)}, {sr(T+12)}, 5120
        s_sub_u32 {sr(T+13)}, {sr(T+13)}, {sr(T)}
        s_add_u32 {sr(T+12)}, {sr(T+12)}, {sr(T)}
        s_waitcnt lgkmcnt(0)
        s_barrier""")
        self.stamp("B2")

        def inbox():
            for j in range(2):
                for s in range(4): a(f"buffer_load_dwordx4 {vr(IN+20*j+4*s,4)}, {vr(V_DMA)}, {sr(S_WS,4)}, {sr(T+12+j)} offen offset:{1024*s} sc1")
                a(f"buffer_load_dwordx4 {vr(IN+20*j+16,4)}, {vr(V_DMA+1)}, {sr(S_WS,4)}, {sr(T+12+j)} offen sc1")

        def bfrags(dst, off):
            for j in range(2):
                for s in range(4): a(f"ds_read_b128 {vr(dst[j]+4*s,4)}, {vr(ad+2+j)} offset:{off + 1024*s}")
                a(f"ds_read_b64 {vr(dst[j]+16,2)}, {vr(ad+4+j)} offset:{off}")

        def fgemm(acc, W, Bf, fill=()):
            fill = list(fill)
            for s in range(5):
                for u, (tt, j) in enumerate(units):
                    d = vr(acc + 4 * u, 4)
                    if s < 4: a(f"v_mfma_f32_16x16x32_bf16 {d}, {ar(W[tt]+4*s,4)}, {vr(Bf[j]+4*s,4)}, {'0' if s == 0 else d}")
                    else:
                        if u == 0: a("s_nop 1")
                        a(f"v_mfma_f32_16x16x16_bf16 {d}, {ar(W[tt]+16,2)}, {vr(Bf[j]+16,2)}, {d}")
                    if fill: a(fill.pop(0))
            for x in fill: a(x)
        BU = [16, 180]
        AB, AO, AP = 208, 64, 236 - 0
        AB, AO, AP = 208, 84, 104
        LO = 34
        bfrags(BU, 16384)
        g = reduce4(); next(g); next(g)
        a("s_waitcnt lgkmcnt(15)\ns_waitcnt lgkmcnt(15)")
        fgemm(AB, WD, BU)
        for _ in g: pass
        a(f"""ds_write_b128 {vr(ad)}, {vr(R+20,4)}
        ds_write_b128 {vr(ad)}, {vr(R+24,4)} offset:1024
        s_cmp_eq_u32 {sr(PT)}, 0
        s_cbranch_scc1 L_e2
        ds_write_b64 {vr(ad+1)}, {vr(R+28,2)}""")
        a.label("L_e2")
        inbox()
        for j in range(2): a(f"ds_read_b128 {vr(LO+4*j,4)}, {vr(ad+6+j)}")
        a("s_waitcnt lgkmcnt(0)\ns_barrier")
        self.stamp("B3")
        BO = [16, 48]
        bfrags(BO, 0)
        for j in range(2):
            a(f"v_add_f32 {vr(LO+4*j)}, {vr(LO+4*j)}, {vr(LO+4*j+1)}\nv_add_f32 {vr(LO+4*j+2)}, {vr(LO+4*j+2)}, {vr(LO+4*j+3)}\nv_add_f32 {vr(LO+4*j)}, {vr(LO+4*j)}, {vr(LO+4*j+2)}")
        a(f"""s_cmp_eq_u32 {sr(PT)}, 1
        s_cselect_b64 vcc, -1, 0
        s_mov_b32 {sr(T+2)}, 0
        v_cndmask_b32 {vr(LO+1)}, {vr(MK+2)}, {vr(MK+3)}, vcc
        v_cndmask_b32 {vr(LO+5)}, {vr(MK+3)}, {vr(MK+2)}, vcc
        s_waitcnt vmcnt(10)""")
        W2 = 168
        for u in range(5):
            for h in range(2):
                a(f"v_lshlrev_b32 {vr(180+2*h)}, 16, {vr(XR+2*u+h)}\nv_and_b32 {vr(181+2*h)}, 0xffff0000, {vr(XR+2*u+h)}")
            for h in range(2): a(f"v_pk_add_f32 {p(AB+4*u+2*h)}, {p(AB+4*u+2*h)}, {p(180+2*h)}")
        a("s_waitcnt lgkmcnt(0)")
        fgemm(AO, WO, BO)
        self.stamp("own")
        a("s_branch L_inc")
        a.label("L_in")
        inbox()
        a.label("L_inc")
        a(f"s_waitcnt vmcnt(0)\ns_add_u32 {sr(T+2)}, {sr(T+2)}, 1")
        chk = [f"v_max3_u32 v180, {vr(IN)}, {vr(IN+1)}, {vr(IN+2)}", f"v_max3_u32 v181, {vr(IN+3)}, {vr(IN+4)}, {vr(IN+5)}"]
        for k, x in enumerate(range(IN + 6, IN + 40, 2)): chk.append(f"v_max3_u32 v{180+(k&1)}, v{180+(k&1)}, {vr(x)}, {vr(x+1)}")
        chk += ["v_max_u32 v180, v180, v181", "v_cmp_eq_u32 vcc, -1, v180"]
        fgemm(AP, WO, [IN, IN + 20], fill=chk)
        a(f"""s_cmp_eq_u64 vcc, 0
        s_cbranch_scc1 L_got
        s_cmp_lt_u32 {sr(T+2)}, 0x10000
        s_cbranch_scc1 L_in""")
        a.label("L_got")
        self.stamp("got")
        for j in range(2):
            lo, mo, lp, mp, w = LO + 4 * j, LO + 4 * j + 1, IN + 20 * j + 18, IN + 20 * j + 19, 184 + 4 * j
            a(f"""v_min_f32 {vr(w)}, {vr(mo)}, {vr(mp)}
            v_sub_f32 {vr(w+1)}, {vr(w)}, {vr(mp)}
            v_sub_f32 {vr(w)}, {vr(w)}, {vr(mo)}
            v_exp_f32 {vr(w+1)}, {vr(w+1)}
            v_exp_f32 {vr(w)}, {vr(w)}
            v_mul_f32 {vr(w+2)}, {vr(w+1)}, {vr(lp)}
            v_fmac_f32 {vr(w+2)}, {vr(w)}, {vr(lo)}
            v_rcp_f32 {vr(w+2)}, {vr(w+2)}
            s_nop 0
            v_mul_f32 {vr(w)}, {vr(w)}, {vr(w+2)}
            v_mul_f32 {vr(w+2)}, {vr(w+1)}, {vr(w+2)}""")
        for u, (tt, j) in enumerate(units):
            for h in range(2):
                r = 4 * u + 2 * h
                a(f"v_pk_fma_f32 {p(AB+r)}, {p(AO+r)}, {p(184+4*j)}, {p(AB+r)} op_sel_hi:[1,0,1]")
            for h in range(2):
                r = 4 * u + 2 * h
                a(f"v_pk_fma_f32 {p(AB+r)}, {p(AP+r)}, {p(186+4*j)}, {p(AB+r)} op_sel_hi:[1,0,1]")
            for h in range(2): a(f"v_cvt_pk_bf16_f32 {vr(16+2*u+h)}, {vr(AB+4*u+2*h)}, {vr(AB+4*u+2*h+1)}")
            so = (sr(self.E_COL), 32 * tt) if tt < 2 else ("0", 256)
            a(f"buffer_store_dwordx2 {vr(16+2*u,2)}, {vr(VO+j)}, {sr(S_OUT,4)}, {so[0]} offen offset:{so[1]}")
        self.stamp("fin")

    def fallback(self):
        a = self.a
        T = S_T
        MXR = 208
        a.label("L_fallback")
        a(f"""s_waitcnt vmcnt(0) lgkmcnt(0)
        s_barrier
        s_mov_b32 {sr(S_REDO)}, 1
        {self.xa_srd()}
        s_mov_b32 {sr(S_TOFF)}, {sr(S_LB)}
        s_cmp_eq_u32 {sr(S_DUM)}, 4
        s_cselect_b32 {sr(S_CNT)}, 15, 16""")
        for i in range(4): a(f"v_mov_b32 {vr(MXR+i)}, 0xff800000")
        a.label("L_fb1")
        for g in self.tile_groups(0): a(g)
        a("s_waitcnt vmcnt(0)")
        for x in self.k_reads(0): a(x)
        a("s_waitcnt lgkmcnt(0)")
        for m in self.qk_mfmas(0, czero=True): a(m)
        a("s_nop 7")
        for qb in range(4):
            for i in range(0, 8, 2): a(f"v_max3_f32 {vr(MXR+qb)}, {vr(MXR+qb)}, {vr(self.S(0,qb,i))}, {vr(self.S(0,qb,i+1))}")
        a(f"s_sub_u32 {sr(S_CNT)}, {sr(S_CNT)}, 1\ns_cmp_lg_u32 {sr(S_CNT)}, 0\ns_cbranch_scc1 L_fb1")
        self.greduce([MXR + i for i in range(4)], MXR + 4, "v_max_f32")
        a(f"""v_and_b32 {vr(MXR+4)}, 15, v0
        v_lshlrev_b32 {vr(MXR+4)}, 4, {vr(MXR+4)}
        v_add_u32 {vr(MXR+4)}, {L_SP}, {vr(MXR+4)}
        s_lshl_b32 {sr(T)}, {sr(S_W)}, 2
        v_add_u32 {vr(MXR+5)}, {sr(T)}, {vr(MXR+4)}""")
        for qb in range(4): a(f"ds_write_b32 {vr(MXR+5)}, {vr(MXR+qb)} offset:{256*qb}")
        a("s_waitcnt lgkmcnt(0)\ns_barrier")
        for qb in range(4): a(f"ds_read_b128 {vr(16+4*qb,4)}, {vr(MXR+4)} offset:{256*qb}")
        a(f"s_mov_b32 {sr(S_TOFF)}, {sr(S_LB)}")
        for g in self.tile_groups(0) + self.tile_groups(1): a(g)
        for i in range(144): a(f"v_accvgpr_write_b32 {ar(A_O+i)}, 0")
        a("s_waitcnt lgkmcnt(0)")
        for qb in range(4):
            r = 16 + 4 * qb
            a(f"v_max_f32 {vr(r)}, {vr(r)}, {vr(r+1)}\nv_max3_f32 {vr(r)}, {vr(r)}, {vr(r+2)}, {vr(r+3)}")
            for i in range(4): a(f"v_sub_f32 {vr(V_CI+4*qb+i)}, 0, {vr(r)}")
        for k in range(5): a(f"v_add_u32 {vr(V_HI+k)}, {2*SLOT}, {vr(V_KA+k)}")
        a("s_waitcnt vmcnt(9)\ns_barrier\ns_branch L_go")


if __name__ == "__main__":
    opt = json.loads(sys.argv[2]) if len(sys.argv) > 2 else {}
    g = G(opt)
    txt = g.build()
    if opt.get("align", 1):
        from align import align
        txt, st = align(txt)
        print("align: promoted %d, padded %d, left %d" % st)
    txt = txt.replace("\n", "\n; stamps " + json.dumps(g.stnames) + "\n", 1)
    open(sys.argv[1], "w").write(txt)
```

```python
import sys, json, math
from common import Asm, vr, ar, sr, kernel_header, kernel_desc
from lay import *

NAME = "standalone__conformer_family_branchformer__speech_kernel"
NWG = 254
RING = 4
LDS_RING = RING * TILE
LDS_TOTAL = 163840
SLOT = 4 * TILE
L_WU, L_WQ, L_WK = 0, 41984, 83968
L_XX, L_XR = 128000, 144384
L_QX, L_QR = 146432, 79872
L_MX = 162816
L_PC = 163836 - 0
L_DUMP = 123904
L_SP = 147456

S_X, S_WS, S_XA, S_DB, S_W1, S_W2, S_OUT, S_DW = 8, 12, 16, 20, 24, 28, 32, 36
S_W, S_B, S_H, S_QB, S_TOFF, S_CNT, S_DUM, S_LB, S_TOWN, S_TSND, S_VAL, S_REDO = range(40, 52)
S_T = 52
S_ST = 76

V_KA, V_VA, V_VR, V_DMA, V_L, V_T = 1, 3, 5, 6, 9, 13
V_S, V_CI, V_P, V_K, V_V = 16, 80, 96, 128, 164
V_HI = 200
V_X = 208
A_O, A_Q, A_F = 0, 144, 216

LOG2E = 1.4426950408889634
import struct
def f32(x): return "0x%08x" % struct.unpack("<I", struct.pack("<f", x))[0]


class BAsm(Asm):
    def __init__(self):
        super().__init__()
        self.bg, self.every, self.cnt, self.skip = [], 0, 0, 0

    def __call__(self, s):
        for l in s.split("\n"):
            l = l.strip()
            if not l: continue
            self.lines.append("    " + l)
            if self.bg and self.every and not l.startswith(("s_nop", "v_mov_b32", "v_exp", "v_rcp", "v_rsq", "v_sqrt", "s_add_u32 m0")):
                self.cnt += 1
                if self.cnt >= self.every:
                    self.cnt = 0
                    self.pop()

    def pop(self):
        for x in self.bg.pop(0).split("\n"): self.lines.append("    " + x)

    def flush(self):
        while self.bg: self.pop()
        self.every = 0


class G:
    def __init__(self, opt):
        self.o = opt
        self.a = BAsm()
        self.nst = 0
        self.fill = []

    def stamp(self, name):
        if self.o.get("stamps"):
            if name in self.o.get("skipst", []): return
            assert self.nst < 13
            self.a(f"{'s_memtime' if self.o.get('cyc') else 's_memrealtime'} {sr(S_ST + 2*self.nst, 2)}")
            self.stnames.append(name)
            self.nst += 1

    def srd(self, dst, lo, hi, n):
        self.a(f"s_mov_b32 {sr(dst)}, {sr(lo)}\ns_mov_b32 {sr(dst+1)}, {sr(hi)}\ns_mov_b32 {sr(dst+2)}, {n}\ns_mov_b32 {sr(dst+3)}, 0x20000")

    def greduce(self, regs, tmp, op="v_add_f32"):
        a = self.a
        for sw in ("32", "16"):
            for i, r in enumerate(regs): a(f"v_mov_b32 {vr(tmp+i)}, {vr(r)}")
            if len(regs) < 3: a("s_nop 1" if len(regs) == 1 else "s_nop 0")
            for i, r in enumerate(regs): a(f"v_permlane{sw}_swap_b32 {vr(r)}, {vr(tmp+i)}")
            for i, r in enumerate(regs): a(f"{op} {vr(r)}, {vr(r)}, {vr(tmp+i)}")

    def rbf(self, r):
        self.a(f"v_cvt_pk_bf16_f32 {vr(r)}, {vr(r)}, {vr(r)}\nv_lshlrev_b32 {vr(r)}, 16, {vr(r)}")

    def ln_tail(self, F, out, t, mimic):
        a = self.a
        p = lambda r: vr(r, 2)
        self.greduce([t, t + 1], t + 2)
        a(f"v_mul_f32 {vr(t+2)}, {f32(1.0/144)}, {vr(t)}")
        a(f"v_mul_f32 {vr(t+3)}, {vr(t+2)}, {vr(t+2)}")
        a(f"v_mov_b32 {vr(t+4)}, {f32(1.0/144)}")
        a(f"v_fma_f32 {vr(t)}, {vr(t+1)}, {vr(t+4)}, -{vr(t+3)}")
        a(f"v_max_f32 {vr(t)}, 0, {vr(t)}")
        if mimic:
            self.rbf(t)
            self.rbf(t + 2)
            a(f"v_add_f32 {vr(t)}, {f32(1e-5)}, {vr(t)}")
            self.rbf(t)
            a(f"v_sqrt_f32 {vr(t)}, {vr(t)}\ns_nop 0")
            self.rbf(t)
            a(f"v_rcp_f32 {vr(t)}, {vr(t)}\ns_nop 0")
        else:
            a(f"v_add_f32 {vr(t)}, {f32(1e-5)}, {vr(t)}")
            a(f"v_rsq_f32 {vr(t)}, {vr(t)}\ns_nop 0")
        a(f"v_mul_f32 {vr(t+2)}, -{vr(t+2)}, {vr(t)}")
        for i in range(18):
            a(f"v_pk_fma_f32 {p(F+2*i)}, {p(F+2*i)}, {p(t)}, {p(t+2)} op_sel_hi:[1,0,0]")
        for i in range(18):
            a(f"v_cvt_pk_bf16_f32 {vr(out+i)}, {vr(F+2*i)}, {vr(F+2*i+1)}")

    def ln_packed(self, X, F, out, t):
        a = self.a
        a(f"v_mov_b32 {vr(t+6)}, 0x3f803f80")
        for k in range(4): a(f"v_mov_b32 {vr(t+k)}, 0")
        for i in range(18):
            a(f"v_dot2_f32_bf16 {vr(t+2*(i&1))}, {vr(X+i)}, {vr(t+6)}, {vr(t+2*(i&1))}")
            a(f"v_dot2_f32_bf16 {vr(t+1+2*(i&1))}, {vr(X+i)}, {vr(X+i)}, {vr(t+1+2*(i&1))}")
        for i in range(2):
            a(f"v_lshlrev_b32 {vr(F+2*i)}, 16, {vr(X+i)}\nv_and_b32 {vr(F+2*i+1)}, 0xffff0000, {vr(X+i)}")
        a(f"v_pk_add_f32 {vr(t,2)}, {vr(t,2)}, {vr(t+2,2)}")
        un = []
        for i in range(2, 18):
            un.append(f"v_lshlrev_b32 {vr(F+2*i)}, 16, {vr(X+i)}\nv_and_b32 {vr(F+2*i+1)}, 0xffff0000, {vr(X+i)}")
        sv = (a.bg, a.every, a.cnt, a.skip)
        n0 = len(a.lines)
        a.bg, a.every = [], 0
        self.ln_tail(F, out, t, True)
        tail = a.lines[n0:]
        del a.lines[n0:]
        a.bg, a.every, a.cnt, a.skip = sv
        k = next(i for i, l in enumerate(tail) if "v_pk_fma" in l)
        for i, l in enumerate(tail[:k]):
            if "s_nop" in l and un: continue_nop = True
            a(l)
            if un and not l.strip().startswith("s_nop"): a(un.pop(0))
        while un: a(un.pop(0))
        for l in tail[k:]: a(l)

    def ln_f32(self, F, out, t):
        a = self.a
        p = lambda r: vr(r, 2)
        a(f"v_pk_add_f32 {p(t)}, {p(F)}, {p(F+2)}\nv_pk_add_f32 {p(t+2)}, {p(F+4)}, {p(F+6)}")
        a(f"v_pk_mul_f32 {p(t+4)}, {p(F)}, {p(F)}\nv_pk_mul_f32 {p(t+6)}, {p(F+2)}, {p(F+2)}")
        for i in range(2, 18):
            if i >= 4: a(f"v_pk_add_f32 {p(t+2*(i&1))}, {p(t+2*(i&1))}, {p(F+2*i)}")
            a(f"v_pk_fma_f32 {p(t+4+2*(i&1))}, {p(F+2*i)}, {p(F+2*i)}, {p(t+4+2*(i&1))}")
        a(f"v_pk_add_f32 {p(t)}, {p(t)}, {p(t+2)}\nv_pk_add_f32 {p(t+4)}, {p(t+4)}, {p(t+6)}")
        a(f"v_add_f32 {vr(t)}, {vr(t)}, {vr(t+1)}\nv_add_f32 {vr(t+1)}, {vr(t+4)}, {vr(t+5)}")
        self.ln_tail(F, out, t, False)

    def gemm_m(self, areads, breads, AF, B4, ACC, pre_a=False, rf=vr, extra=()):
        a = self.a
        units = [(0, j) for j in range(4)] + [(1, j) for j in range(4)] + [(2, 0)]
        rd = [([] if pre_a else areads(s)) + breads(s) for s in range(5)]
        extra = list(extra)
        for x in rd[0] + rd[1]: a(x)
        younger = len(rd[1])
        for s in range(5):
            nxt = list(rd[s + 2]) if s + 2 < 5 else []
            a(f"s_waitcnt lgkmcnt({min(15, younger)})")
            k = min(len(extra), 9 - len(nxt))
            nxt, extra = extra[:k] + nxt, extra[k:]
            younger = len(rd[s + 2]) if s + 2 < 5 else (k if s + 1 < 5 else 0)
            for u, (t, j) in enumerate(units):
                d = vr(ACC + 4 * u, 4)
                if s < 4:
                    a(f"v_mfma_f32_16x16x32_bf16 {d}, {rf(AF+18*t+4*s,4)}, {vr(B4+18*j+4*s,4)}, {'0' if s == 0 else d}")
                else:
                    a(f"v_mfma_f32_16x16x16_bf16 {d}, {rf(AF+18*t+16,2)}, {vr(B4+18*j+16,2)}, {d}")
                n = 0
                if nxt: a(nxt.pop(0)); n += 1
                if len(nxt) > 8 - u: a(nxt.pop(0)); n += 1
                for _ in range(2 - n):
                    if self.fill: a(self.fill.pop(0))
            while nxt: a(nxt.pop(0))
        for x in extra: a(x)
        a("s_nop 7")

    def gemm(self, reads, B, ACC, AF):
        a = self.a
        buf = lambda T: AF + 18 * (T % 3)
        for s in reads(0, buf(0)): a(s)
        for s in reads(1, buf(1)): a(s)
        for T in range(9):
            nx = reads(T + 2, buf(T + 2)) if T + 2 < 9 else []
            a(f"s_waitcnt lgkmcnt({9 if T + 1 < 9 else 0})")
            d = vr(ACC + 4 * T, 4)
            seq = []
            for s in range(4):
                seq.append(f"v_mfma_f32_16x16x32_bf16 {d}, {vr(buf(T)+4*s,4)}, {vr(B+4*s,4)}, {'0' if s == 0 else d}")
                if s == 1 and T > 0:
                    dp = vr(ACC + 4 * (T - 1), 4)
                    seq.append(f"v_mfma_f32_16x16x16_bf16 {dp}, {vr(buf(T-1)+16,2)}, {vr(B+16,2)}, {dp}")
            k = 0
            for i, m in enumerate(seq):
                a(m)
                for _ in range(2):
                    if k < len(nx): a(nx[k]); k += 1
                for _ in range(self.o.get("zper", 1)):
                    if self.fill: a(self.fill.pop(0))
            while k < len(nx): a(nx[k]); k += 1
        dp = vr(ACC + 32, 4)
        a("s_nop 5")
        a(f"v_mfma_f32_16x16x16_bf16 {dp}, {vr(buf(8)+16,2)}, {vr(B+16,2)}, {dp}")
        a("s_nop 7")

    def tr_reads(self, ad):
        def f(T, dst):
            out = []
            for s in range(4):
                for u in range(2):
                    out.append(f"ds_read_b64_tr_b16 {vr(dst+4*s+2*u,2)}, {vr(ad+u)} offset:{9216*s + 32*T}")
            out.append(f"ds_read_b64_tr_b16 {vr(dst+16,2)}, {vr(ad+2)} offset:{36864 + 32*T}")
            return out
        return f

    def row_reads(self, ad, sw=None):
        def f(T, dst):
            r = ad if sw is None or T == 8 else sw[T & 1]
            out = []
            for s in range(4):
                for u in range(2):
                    out.append(f"ds_read_b64 {vr(dst+4*s+2*u,2)}, {vr(r)} offset:{4864*T + 64*s + 32*u}")
            out.append(f"ds_read_b64 {vr(dst+16,2)}, {vr(r)} offset:{4864*T + 256}")
            return out
        return f

    def dma_rows(self, jobs, cpr, rstride, vo, vc, n_first, first_waves, lab):
        a = self.a
        mul = {18: 3641, 19: 3450}[cpr]
        dr, dc = 256 // cpr, 256 % cpr
        a(f"s_lshl_b32 {sr(S_T)}, {sr(S_W)}, 6")
        a(f"v_add_u32 {vr(vc)}, {sr(S_T)}, v0")
        a(f"v_mul_u32_u24 {vr(vo)}, {mul}, {vr(vc)}")
        a(f"v_lshrrev_b32 {vr(vo)}, 16, {vr(vo)}")
        a(f"v_mul_u32_u24 {vr(vc+1)}, {cpr}, {vr(vo)}")
        a(f"v_sub_u32 {vr(vc)}, {vr(vc)}, {vr(vc+1)}")
        a(f"v_mul_u32_u24 {vr(vo)}, {rstride}, {vr(vo)}")
        a(f"v_lshl_add_u32 {vr(vo)}, {vr(vc)}, 4, {vr(vo)}")
        a(f"s_lshl_b32 {sr(S_T)}, {sr(S_W)}, 10")
        a(f"v_mov_b32 {vr(vc+1)}, {rstride - 16*cpr}")
        for k in range(n_first):
            if k == n_first - 1:
                a(f"s_cmp_ge_u32 {sr(S_W)}, {first_waves}\ns_cbranch_scc1 {lab}")
            for srd, so, lb in jobs:
                a(f"s_add_u32 m0, {sr(S_T)}, {lb + 4096*k}")
                a("s_nop 0")
                a(f"buffer_load_dwordx4 {vr(vo)}, {sr(srd,4)}, {so} offen lds")
            if k < n_first - 1:
                a(f"v_add_u32 {vr(vc)}, {dc}, {vr(vc)}")
                a(f"v_cmp_le_u32 vcc, {cpr}, {vr(vc)}")
                a(f"v_add_u32 {vr(vo)}, {dr*rstride + 16*dc}, {vr(vo)}")
                a(f"v_subrev_u32 {vr(vc+2)}, {cpr}, {vr(vc)}")
                a(f"v_cndmask_b32 {vr(vc)}, {vr(vc)}, {vr(vc+2)}, vcc")
                a(f"v_cndmask_b32 {vr(vc+2)}, 0, {vr(vc+1)}, vcc")
                a(f"v_add_u32 {vr(vo)}, {vr(vo)}, {vr(vc+2)}")
        a.label(lab)

    def voff_table(self, dst, cpr, rstride, vc):
        a = self.a
        mul = {18: 29128, 19: 27595}[cpr]
        a(f"s_mov_b32 {sr(S_T)}, {rstride - 16*cpr}")
        a(f"v_mul_u32_u24 {vr(dst)}, {mul}, {vr(vc)}")
        for k in range(1, 11): a(f"v_add_u32 {vr(dst+k)}, {(256*k % cpr)*mul}, {vr(dst)}")
        for k in range(11): a(f"v_lshrrev_b32 {vr(dst+k)}, 19, {vr(dst+k)}")
        for k in range(11): a(f"v_mad_i32_i24 {vr(dst+k)}, {vr(dst+k)}, {sr(S_T)}, {vr(vc+1)}")

    def dma_lin(self, srd, soff, lb, v16, lab):
        a = self.a
        a(f"s_lshl_b32 {sr(S_T)}, {sr(S_W)}, 10")
        for k in range(11):
            if k == 10:
                a(f"s_cmp_ge_u32 {sr(S_W)}, 1\ns_cbranch_scc1 {lab}")
            a(f"s_add_u32 m0, {sr(S_T)}, {lb + 4096*k}")
            a(f"s_add_u32 {sr(S_T+1)}, {sr(S_T)}, {soff + 4096*k}")
            a(f"buffer_load_dwordx4 {vr(v16)}, {sr(srd,4)}, {sr(S_T+1)} offen lds")
        a.label(lab)

    def tr_addr(self, ad, base, swapped, t):
        a = self.a
        a(f"v_lshrrev_b32 {vr(t)}, 2, v0")
        a(f"v_mul_u32_u24 {vr(t)}, 288, {vr(t)}")
        a(f"v_and_b32 {vr(t+1)}, 3, v0")
        a(f"v_lshl_add_u32 {vr(t)}, {vr(t+1)}, 3, {vr(t)}")
        a(f"v_add_u32 {vr(ad+2)}, {base}, {vr(t)}")
        if swapped:
            a(f"v_bfe_u32 {vr(t)}, v0, 4, 1")
            a(f"v_mul_u32_u24 {vr(t)}, {16*288}, {vr(t)}")
            a(f"v_add_u32 {vr(ad)}, {vr(ad+2)}, {vr(t)}")
            a(f"v_sub_u32 {vr(ad+1)}, {vr(ad+2)}, {vr(t)}")
            a(f"v_add_u32 {vr(ad+1)}, {16*288}, {vr(ad+1)}")
        else:
            a(f"v_mov_b32 {vr(ad)}, {vr(ad+2)}")
            a(f"v_add_u32 {vr(ad+1)}, {16*288}, {vr(ad+2)}")

    def row_addr(self, ad, base, t):
        a = self.a
        a(f"v_and_b32 {vr(t)}, 15, v0")
        a(f"v_mul_u32_u24 {vr(t)}, 304, {vr(t)}")
        a(f"v_lshrrev_b32 {vr(t+1)}, 4, v0")
        a(f"v_lshl_add_u32 {vr(t)}, {vr(t+1)}, 3, {vr(t)}")
        a(f"v_add_u32 {vr(ad)}, {base}, {vr(t)}")

    def store_block(self, src, v16, v8, srd, soff, soff2, flags=""):
        a = self.a
        for s in range(4):
            a(f"buffer_store_dwordx4 {vr(src+4*s,4)}, {vr(v16)}, {sr(srd,4)}, {sr(soff)} offen offset:{1024*s} {flags}")
        a(f"buffer_store_dwordx2 {vr(src+16,2)}, {vr(v8)}, {sr(srd,4)}, {sr(soff2)} offen {flags}")

    def entry(self):
        a = self.a
        kernel_header(a, NAME)
        a(f"s_load_dwordx4 s[56:59], s[0:1], 0")
        a(f"s_getpc_b64 {sr(S_W1,2)}")
        a.label("L_pf")
        a(f"""s_mov_b32 {sr(S_W1+2)}, L_dummy-L_pf
        s_mov_b32 {sr(S_W1+3)}, 0x20000
        v_lshlrev_b32 v1, 4, v0
        s_bfe_u32 {sr(S_T)}, s2, 0x30003
        s_lshl_b32 {sr(S_T)}, {sr(S_T)}, 12
        buffer_load_dwordx4 v[252:255], v1, {sr(S_W1,4)}, 0 offen
        buffer_load_dwordx4 v[252:255], v1, {sr(S_W1,4)}, {sr(S_T)} offen""")
        a(f"s_cmp_ge_u32 s2, {NWG}\ns_cbranch_scc1 L_end")
        self.stamp("start")
        a(f"s_load_dwordx4 s[60:63], s[0:1], 80")
        a(f"s_load_dwordx4 s[64:67], s[0:1], 40")
        a(f"s_load_dwordx4 s[68:71], s[0:1], 16")
        a(f"s_load_dwordx4 s[72:75], s[0:1], 64")
        a(f"v_lshrrev_b32 v1, 6, v0")
        a(f"s_and_b32 {sr(S_H)}, s2, 1")
        a(f"v_readfirstlane_b32 {sr(S_W)}, v1")
        a(f"s_bfe_u32 {sr(S_B)}, s2, 0x10001")
        a(f"s_lshr_b32 {sr(S_QB)}, s2, 2")
        a(f"v_and_b32 v0, 63, v0")
        a(f"v_lshlrev_b32 {vr(V_DMA)}, 4, v0")
        a(f"s_cmp_ge_u32 s2, 252\ns_cbranch_scc1 L_wfuse")

    def phase_a(self):
        a, o = self.a, self.o
        XR, XF, XA, BF, ACC, AF, TM = 16, 34, 70, 88, 112, 148, 208
        B4, XD = 16, 88
        VK, VQ8, VS = 224, 235, 202
        VU = 88
        AD = 240
        VR4 = 106
        T = S_T
        WV = S_T + 20
        a(f"""s_lshl_b32 {sr(T)}, {sr(S_QB)}, 1
        s_add_u32 {sr(S_TOWN)}, {sr(T)}, {sr(S_H)}
        s_xor_b32 {sr(S_TSND)}, {sr(S_TOWN)}, 1
        s_cmp_lt_u32 {sr(S_TOWN)}, {NT}
        s_cselect_b32 {sr(S_VAL)}, 1, 0
        s_cmp_lt_u32 {sr(S_W)}, 2
        s_cselect_b32 {sr(T+3)}, {sr(S_TSND)}, {sr(S_TOWN)}
        s_mul_i32 {sr(T)}, {sr(S_B)}, {NT}
        s_add_u32 {sr(S_TOWN)}, {sr(S_TOWN)}, {sr(T)}
        s_add_u32 {sr(S_TSND)}, {sr(S_TSND)}, {sr(T)}
        s_add_u32 {sr(T+1)}, {sr(T+3)}, {sr(T)}
        s_lshl_b32 {sr(T+1)}, {sr(T+1)}, 1
        s_and_b32 {sr(T+2)}, {sr(S_W)}, 1
        s_add_u32 {sr(T+2)}, {sr(T+1)}, {sr(T+2)}
        s_mul_i32 {sr(T+1)}, {sr(T+2)}, {16*288}
        s_mul_i32 {sr(S_LB)}, {sr(S_W)}, 5120
        s_add_u32 {sr(S_LB)}, {sr(S_LB)}, {L_WK}
        s_mov_b32 m0, {sr(S_LB)}
        s_mov_b32 {sr(S_X+2)}, 2304000
        s_mov_b32 {sr(S_X+3)}, 0x20000
        s_add_u32 {sr(S_CNT)}, {sr(T+1)}, 4096
        s_waitcnt lgkmcnt(0)
        s_mov_b32 {sr(S_X)}, s56
        s_mov_b32 {sr(S_X+1)}, s57""")
        for k in range(4): a(f"buffer_load_dwordx4 {vr(V_DMA)}, {sr(S_X,4)}, {sr(T+1)} offen offset:{1024*k} lds")
        a(f"s_add_u32 m0, {sr(S_LB)}, 4096\ns_mov_b32 exec_hi, 0\nbuffer_load_dwordx4 {vr(V_DMA)}, {sr(S_X,4)}, {sr(S_CNT)} offen lds\ns_mov_b32 exec_hi, -1")
        self.stamp("xiss")
        self.srd(S_OUT, 74, 75, 2304000)
        a(f"s_cmp_lt_u32 {sr(T+3)}, {NT}\ns_cselect_b32 {sr(WV)}, 1, 0\ns_mov_b32 {sr(WV+1)}, {sr(T+2)}")
        SQ, SK, SU = S_W2, S_W1, S_XA
        self.srd(SU, 64, 65, 82944)
        self.srd(SQ, 58, 59, 41472)
        self.srd(SK, 68, 69, 41472)
        a(f"s_lshr_b32 {sr(T+2)}, s2, 3\ns_lshl_b32 {sr(T+2)}, {sr(T+2)}, 2\ns_add_u32 {sr(T+2)}, {sr(T+2)}, {sr(S_W)}")
        npf = 3
        for srd_, rot in ((SU, 46), (SQ, 0), (SK, 87)):
            a(f"s_add_u32 {sr(T+3)}, {sr(T+2)}, {rot}\ns_and_b32 {sr(T+3)}, {sr(T+3)}, 127\ns_lshl_b32 {sr(T+3)}, {sr(T+3)}, 10")
            a(f"buffer_load_dwordx4 v[252:255], {vr(V_DMA)}, {sr(srd_,4)}, {sr(T+3)} offen")
        W10, UOFF, M1, M3 = S_T + 22, S_T + 23, S_T + 18, S_T + 19
        a(f"""s_lshl_b32 {sr(W10)}, {sr(S_W)}, 10
        s_mul_i32 {sr(UOFF)}, {sr(S_H)}, 288
        s_cmp_eq_u32 {sr(S_W)}, 0
        s_cselect_b32 {sr(M1)}, 0, {L_DUMP}
        s_cmp_lt_u32 {sr(S_W)}, 3
        s_cselect_b32 {sr(M3)}, {sr(W10)}, {L_DUMP}""")
        gq = [f"s_add_u32 m0, {sr(W10 if k < 10 else M1)}, {L_WQ + 4096*k}\ns_add_u32 {sr(S_CNT)}, {sr(W10)}, {4096*k}\nbuffer_load_dwordx4 {vr(V_DMA)}, {sr(SQ,4)}, {sr(S_CNT)} offen lds" for k in range(11)]
        gk = [f"s_add_u32 m0, {sr(W10 if k < 10 else M3)}, {L_WK + 4096*k}\ns_mov_b32 {sr(S_CNT)}, {4096*k - 16*(256*k//19)}\nbuffer_load_dwordx4 {vr(VK+k)}, {sr(SK,4)}, {sr(S_CNT)} offen lds" for k in range(11)]
        gu = [f"s_add_u32 m0, {sr(W10 if k < 10 else M1)}, {L_WU + 4096*k}\ns_add_u32 {sr(S_CNT)}, {sr(UOFF)}, {4096*k + 288*(256*k//18)}\nbuffer_load_dwordx4 {vr(VU+k)}, {sr(SU,4)}, {sr(S_CNT)} offen lds" for k in range(11)]
        allg = gu + gq + gk
        a(f"s_lshl_b32 {sr(T)}, {sr(S_W)}, 6\nv_add_u32 {vr(TM+14)}, {sr(T)}, v0\nv_lshlrev_b32 {vr(TM+15)}, 4, {vr(TM+14)}")
        self.voff_table(VU, 18, 576, TM + 14)
        self.srd(S_WS, 62, 63, WS_END)
        t0, t1, t2 = TM + 10, TM + 11, TM + 12
        a(f"""v_and_b32 {vr(t0)}, 15, v0
        v_lshrrev_b32 {vr(t1)}, 5, v0
        v_lshlrev_b32 {vr(t1)}, 3, {vr(t1)}
        v_xor_b32 {vr(t1)}, {vr(t0)}, {vr(t1)}
        v_lshlrev_b32 {vr(t1)}, 4, {vr(t1)}
        v_lshrrev_b32 {vr(t2)}, 4, v0
        v_lshl_add_u32 {vr(V_KA)}, {vr(t2)}, 9, {vr(t1)}
        v_lshrrev_b32 {vr(t1)}, 3, {vr(t0)}
        v_lshlrev_b32 {vr(t1)}, 1, {vr(t1)}
        v_xor_b32 {vr(t1)}, {vr(t2)}, {vr(t1)}
        v_lshl_add_u32 {vr(t1)}, {vr(t0)}, 2, {vr(t1)}
        v_lshlrev_b32 {vr(V_KA+1)}, 3, {vr(t1)}
        v_lshlrev_b32 {vr(AD+6)}, 3, v0""")
        a(f"""v_and_b32 v3, 15, v0
        v_mul_u32_u24 v3, 288, v3
        v_lshrrev_b32 v4, 4, v0
        v_lshl_add_u32 v3, v4, 3, v3
        v_add_u32 v5, {sr(S_LB)}, v3
        v_and_b32 v4, 1, v4
        v_lshlrev_b32 v4, 5, v4
        v_add_u32 v3, v5, v4
        v_xor_b32 v4, 32, v4
        v_add_u32 v4, v5, v4""")
        self.tr_addr(AD, L_WU, True, t0)
        for j in range(4):
            a(f"s_add_u32 {sr(T)}, {sr(S_W)}, {j}\ns_and_b32 {sr(T)}, {sr(T)}, 3\ns_lshl_b32 {sr(T+1)}, {sr(T)}, 12\ns_add_u32 {sr(T+1)}, {sr(T+1)}, {L_XX}")
            a(f"s_lshl_b32 {sr(T)}, {sr(T)}, 9\ns_add_u32 {sr(T)}, {sr(T)}, {L_QR}")
            a(f"v_add_u32 {vr(VS+j)}, {sr(T+1)}, {vr(V_DMA)}\nv_add_u32 {vr(VR4+j)}, {sr(T)}, {vr(AD+6)}")
        npre = o.get("npre", 11)
        self.stamp("pre")
        for g_ in allg[:npre]: a(g_)
        self.voff_table(VK, 19, 288, TM + 14)
        self.srd(S_DB, 60, 61, 256)
        self.srd(S_DW, 66, 67, 864)
        self.stamp("wiss")
        a(f"s_waitcnt vmcnt({npf + npre})")
        self.stamp("xarr")
        for s in range(4):
            a(f"ds_read_b64 {vr(XR+4*s,2)}, v3 offset:{64*s}\nds_read_b64 {vr(XR+4*s+2,2)}, v4 offset:{64*s}")
        a(f"ds_read_b64 {vr(XR+16,2)}, v5 offset:256")
        for g_ in allg[npre:npre + o.get("nmid", 2)]: a(g_)
        npre += o.get("nmid", 2)
        a("s_waitcnt lgkmcnt(0)")
        nis = npre + o.get("nln", 7)
        assert nis >= 11
        a.bg, a.every, a.cnt = allg[npre:nis], o.get("evln", 18), 0
        self.ln_packed(XR, XF, XA, TM)
        a.flush()
        a(f"""s_cmp_lt_u32 {sr(S_W)}, 2
        s_cbranch_scc1 L_nopub
        s_cmp_eq_u32 {sr(S_VAL)}, 0
        s_cbranch_scc1 L_nopub
        s_and_b32 {sr(T)}, {sr(S_W)}, 1
        s_mul_i32 {sr(T+2)}, {sr(S_TOWN)}, {TILE}
        s_lshl_b32 {sr(T+3)}, {sr(T)}, 8
        s_add_u32 {sr(T+3)}, {sr(T+3)}, {sr(T+2)}
        s_add_u32 {sr(T+4)}, {sr(T+3)}, 4096
        s_lshl_b32 {sr(T+5)}, {sr(T)}, 9
        s_add_u32 {sr(T+5)}, {sr(T+5)}, {sr(T+2)}
        s_add_u32 {sr(T+5)}, {sr(T+5)}, 8192""")
        for s in range(4):
            a(f"buffer_store_dwordx4 {vr(XA+4*s,4)}, {vr(V_KA)}, {sr(S_WS,4)}, {sr(T+3+(s>>1))} offen offset:{2048*(s&1)} sc1")
        a(f"buffer_store_dwordx2 {vr(XA+16,2)}, {vr(V_KA+1)}, {sr(S_WS,4)}, {sr(T+5)} offen sc1")
        a("s_branch L_bar1")
        a.label("L_nopub")
        a(f"""s_mul_i32 {sr(T)}, s2, {IB}
        s_and_b32 {sr(T+1)}, {sr(S_W)}, 1
        s_mul_i32 {sr(T+1)}, {sr(T+1)}, 5120
        s_add_u32 {sr(T)}, {sr(T)}, {sr(T+1)}
        s_add_u32 {sr(T)}, {sr(T)}, {WS_IB}
        s_add_u32 {sr(T+1)}, {sr(T)}, 4096""")
        for i in range(4): a(f"v_mov_b32 {vr(XR+i)}, -1")
        for i in range(4): a(f"buffer_store_dwordx4 {vr(XR,4)}, {vr(V_DMA)}, {sr(S_WS,4)}, {sr(T)} offen offset:{1024*i} sc1")
        a(f"buffer_store_dwordx4 {vr(XR,4)}, {vr(V_DMA)}, {sr(S_WS,4)}, {sr(T+1)} offen sc1")
        a.label("L_bar1")
        self.stamp("pub")
        for s in range(4): a(f"ds_write_b128 {vr(VS)}, {vr(XA+4*s,4)} offset:{1024*s}")
        a(f"ds_write_b64 {vr(VR4)}, {vr(XA+16,2)} offset:{L_XR - L_QR}")
        a(f"v_mov_b32 {vr(t0)}, {L_MX}\nv_mov_b32 {vr(t1)}, 0\nds_write_b32 {vr(t0)}, {vr(t1)}")
        a(f"s_waitcnt vmcnt({nis - 11 + 5}) lgkmcnt(0)\ns_barrier")
        self.stamp("bar1")
        self.fill = [f"v_accvgpr_write_b32 {ar(A_O+i)}, 0" for i in range(144)]
        zf, self.fill = self.fill, []
        nu = min(33, nis + o.get("nu", 8))
        a.bg, a.every, a.cnt = allg[nis:nu], o.get("evu", 15), 0
        self.gemm(self.tr_reads(AD), XA, ACC, AF)
        a.flush()
        self.stamp("up")
        a(f"""s_cmp_lt_u32 {sr(S_W)}, 2
        s_cbranch_scc1 L_sig
        s_cmp_eq_u32 {sr(S_VAL)}, 0
        s_cbranch_scc1 L_sig
        s_waitcnt vmcnt({nu - nis})
        v_mov_b32 {vr(t0)}, {L_MX}
        v_mov_b32 {vr(t1)}, 1
        s_mov_b64 exec, 1
        ds_add_rtn_u32 {vr(t2)}, {vr(t0)}, {vr(t1)}
        s_sub_u32 {sr(T)}, {sr(S_TOWN)}, 63
        s_mul_i32 {sr(T+1)}, {sr(S_B)}, {NT}
        s_cmp_ge_i32 {sr(T)}, {sr(T+1)}
        s_cselect_b32 {sr(T)}, 64, 0
        s_lshl_b32 {sr(T+1)}, {sr(S_B)}, 7
        s_add_u32 {sr(T)}, {sr(T)}, {sr(T+1)}
        s_waitcnt lgkmcnt(0)
        v_readfirstlane_b32 {sr(T+1)}, {vr(t2)}
        v_mov_b32 {vr(t0)}, {sr(T)}
        s_cmp_eq_u32 {sr(T+1)}, 1
        s_cbranch_scc0 L_sig0
        buffer_atomic_add {vr(t1)}, {vr(t0)}, {sr(S_DB,4)}, 0 offen sc1""")
        a.label("L_sig0")
        a("s_mov_b64 exec, -1")
        a.label("L_sig")
        self.stamp("sig")
        for j in range(4):
            for s in range(4): a(f"ds_read_b128 {vr(B4+18*j+4*s,4)}, {vr(VS+j)} offset:{1024*s}")
            a(f"ds_read_b64 {vr(B4+18*j+16,2)}, {vr(VR4+j)} offset:{L_XR - L_QR}")
        for j in range(4): a(f"v_add_u32 {vr(VS+j)}, {sr(W10)}, {vr(VS+j)}")
        p = lambda r: vr(r, 2)
        CC = TM
        c1 = -2.0 * math.sqrt(2.0 / math.pi) * LOG2E
        c2 = c1 * 0.044715
        a(f"v_mov_b32 {vr(CC)}, {f32(c1)}\nv_mov_b32 {vr(CC+2)}, {f32(c2)}\nv_mov_b32 {vr(CC+4)}, 1.0")
        G_ = AF
        a.bg, a.every, a.cnt = allg[nu:], o.get("evg", 8), 0
        for i in range(18): a(f"v_pk_mul_f32 {p(G_+2*i)}, {p(ACC+2*i)}, {p(ACC+2*i)}")
        for i in range(18): a(f"v_pk_fma_f32 {p(G_+2*i)}, {p(G_+2*i)}, {p(CC+2)}, {p(CC)} op_sel_hi:[1,0,0]")
        for i in range(18): a(f"v_pk_mul_f32 {p(G_+2*i)}, {p(G_+2*i)}, {p(ACC+2*i)}")
        for i in range(36): a(f"v_exp_f32 {vr(G_+i)}, {vr(G_+i)}")
        for i in range(18): a(f"v_pk_add_f32 {p(G_+2*i)}, {p(G_+2*i)}, {p(CC+4)} op_sel_hi:[1,0]")
        a.flush()
        for i in range(36): a(f"v_rcp_f32 {vr(G_+i)}, {vr(G_+i)}")
        for i in range(18): a(f"v_pk_mul_f32 {p(ACC+2*i)}, {p(G_+2*i)}, {p(ACC+2*i)}")
        UG = AF
        a(f"""s_mul_i32 {sr(T)}, {sr(WV+1)}, {BLK}
        s_cmp_eq_u32 {sr(S_H)}, 1
        s_cbranch_scc1 L_ln2
        s_add_u32 {sr(T)}, {sr(T)}, {WS_U}""")
        for i in range(18): a(f"v_cvt_pk_bf16_f32 {vr(UG+i)}, {vr(ACC+2*i)}, {vr(ACC+2*i+1)}")
        a("s_branch L_ug")
        a.label("L_ln2")
        a(f"s_add_u32 {sr(T)}, {sr(T)}, {WS_G}")
        self.ln_f32(ACC, UG, TM)
        a.label("L_ug")
        a(f"s_cmp_eq_u32 {sr(WV)}, 1\ns_cselect_b32 {sr(T)}, {sr(T)}, 0x40000000\ns_add_u32 {sr(T+1)}, {sr(T)}, 4096")
        self.store_block(UG, V_DMA, AD + 6, S_WS, T, T + 1, "sc1")
        self.stamp("ug")
        a("s_waitcnt lgkmcnt(0)")
        for j in range(4): a(f"ds_read_b128 {vr(XD+4*j,4)}, {vr(VS+j)}")
        a(f"v_mov_b32 {vr(XD+16)}, {vr(B4+16)}\nv_mov_b32 {vr(XD+17)}, {vr(B4+17)}")
        a(f"s_lshl_b32 {sr(T)}, {sr(S_W)}, 6\ns_add_u32 {sr(T)}, {sr(T)}, {L_WQ - L_WU}")
        for k in range(3):
            a(f"v_add_u32 {vr(AD+3+k)}, {sr(T)}, {vr(AD+k)}\nv_add_u32 {vr(VQ8+k)}, {L_WQ - L_WU + 256}, {vr(AD+k)}")
        self.row_addr(AD + 9, L_WK + 8 * 4864, t0)
        a(f"""s_mul_i32 {sr(T)}, {sr(S_W)}, {2*4864}
        s_sub_u32 {sr(T)}, {sr(T)}, {8*4864}
        v_add_u32 {vr(t1)}, {sr(T)}, {vr(AD+9)}
        v_bfe_u32 {vr(t0)}, v0, 2, 1
        v_mul_u32_u24 {vr(t0)}, 4864, {vr(t0)}
        v_add_u32 {vr(AD+7)}, {vr(t1)}, {vr(t0)}
        v_sub_u32 {vr(AD+8)}, {vr(t1)}, {vr(t0)}
        s_waitcnt vmcnt(5) lgkmcnt(0)
        s_barrier""")
        self.stamp("bar2")

        def a_tr(s):
            out = []
            for t in range(3):
                ad, off = (AD + 3, 32 * t) if t < 2 else (VQ8, 0)
                if s < 4:
                    for u in range(2): out.append(f"ds_read_b64_tr_b16 {vr(AF+18*t+4*s+2*u,2)}, {vr(ad+u)} offset:{9216*s + off}")
                else: out.append(f"ds_read_b64_tr_b16 {vr(AF+18*t+16,2)}, {vr(ad+2)} offset:{36864 + off}")
            return out

        def a_row(s):
            out = []
            for t in range(3):
                ad, off = (AD + 7 + t, 4864 * t) if t < 2 else (AD + 9, 0)
                if s < 4:
                    for u in range(2): out.append(f"ds_read_b64 {ar(A_Q+18*t+4*s+2*u,2)}, {vr(ad)} offset:{off + 64*s + 32*u}")
                else: out.append(f"ds_read_b64 {ar(A_Q+18*t+16,2)}, {vr(ad)} offset:{off + 256}")
            return out

        def pack_units(dst):
            for j in range(4):
                for t in range(2):
                    for h in range(2):
                        r = ACC + 16 * t + 4 * j + 2 * h
                        a(f"v_cvt_pk_bf16_f32 {vr(dst+4*j+2*t+h)}, {vr(r)}, {vr(r+1)}")
            for h in range(2): a(f"v_cvt_pk_bf16_f32 {vr(dst+16+h)}, {vr(ACC+32+2*h)}, {vr(ACC+33+2*h)}")
        self.fill = zf[:72]
        a(f"""s_lshl_b32 {sr(T)}, s2, 6
        s_and_b32 {sr(T)}, {sr(T)}, 0xff
        v_mov_b32 {vr(TM)}, {sr(T)}
        buffer_load_dword {vr(TM+1)}, {vr(TM)}, {sr(S_DB,4)}, 0 offen sc1""")
        self.gemm_m(a_tr, lambda s: [], AF, B4, ACC, extra=[x for s in range(5) for x in a_row(s)])
        PK = TM - 6 + 0
        PK = 184
        pack_units(B4)
        for j in range(4): a(f"ds_write_b128 {vr(VS+j)}, {vr(B4+4*j,4)}")
        a(f"ds_write_b64 {vr(VR4)}, {vr(B4+16,2)} offset:{L_XR - L_QR}")
        for j in range(4): a(f"v_subrev_u32 {vr(VS+j)}, {sr(W10)}, {vr(VS+j)}")
        self.stamp("q")
        a(f"""s_cmp_lg_u32 {sr(S_W)}, 0
        s_cbranch_scc1 L_bar3
        s_sub_u32 {sr(T+1)}, 63, {sr(S_H)}
        s_mov_b32 {sr(T+2)}, 0
        s_branch L_pollc""")
        a.label("L_poll")
        a(f"buffer_load_dword {vr(TM+1)}, {vr(TM)}, {sr(S_DB,4)}, 0 offen sc1")
        a.label("L_pollc")
        a(f"""s_add_u32 {sr(T+2)}, {sr(T+2)}, 1
        s_waitcnt vmcnt(0)
        v_readfirstlane_b32 {sr(T+3)}, {vr(TM+1)}
        s_cmp_ge_u32 {sr(T+3)}, {sr(T+1)}
        s_cbranch_scc1 L_bar3
        s_cmp_lt_u32 {sr(T+2)}, 0x40000
        s_cbranch_scc1 L_poll""")
        a.label("L_bar3")
        a(f"""s_mul_i32 {sr(T)}, {sr(S_B)}, {NT}
        s_mul_i32 {sr(T+1)}, {sr(S_H)}, 63
        s_add_u32 {sr(T+1)}, {sr(T+1)}, {sr(T)}
        s_mul_i32 {sr(T+1)}, {sr(T+1)}, {TILE}
        s_add_u32 {sr(S_XA)}, {sr(S_WS)}, {sr(T+1)}
        s_addc_u32 {sr(S_XA+1)}, {sr(S_WS+1)}, 0
        s_sub_u32 {sr(T+2)}, 63, {sr(S_H)}
        s_mul_i32 {sr(S_XA+2)}, {sr(T+2)}, {TILE}
        s_mov_b32 {sr(S_XA+3)}, 0x20000
        s_mul_i32 {sr(S_LB)}, {sr(S_W)}, {TILE}
        s_mov_b32 {sr(S_TOFF)}, {sr(S_LB)}
        s_add_u32 {sr(T+3)}, {sr(S_W)}, 60
        s_cmp_ge_u32 {sr(T+3)}, {sr(T+2)}
        s_cselect_b32 {sr(S_DUM)}, 4, 99
        s_mov_b32 {sr(S_REDO)}, 0
        v_add_u32 {vr(V_DMA+1)}, 4096, {vr(V_DMA)}
        v_add_u32 {vr(V_DMA+2)}, 8192, {vr(V_DMA)}
        s_waitcnt lgkmcnt(0)
        s_barrier""")
        self.stamp("bar3")

        def b_q(s):
            if s < 4: return [f"ds_read_b128 {vr(B4+18*j+4*s,4)}, {vr(VS+j)} offset:{1024*s}" for j in range(4)]
            return [f"ds_read_b64 {vr(B4+18*j+16,2)}, {vr(VR4+j)} offset:{L_XR - L_QR}" for j in range(4)]
        self.fill = self.fill + zf[72:]
        if o.get("t0", 1): a.bg, a.every, a.cnt = self.tile_groups(0), o.get("evt", 3), 0
        self.gemm_m(None, b_q, A_Q, B4, ACC, pre_a=True, rf=ar)
        a.flush()
        self.stamp("g2")
        if o.get("t1", 1): a.bg, a.every, a.cnt = self.tile_groups(1), o.get("evt1", 6), 0
        while self.fill: a(self.fill.pop(0))
        a(f"v_mov_b32 {vr(CC)}, {f32(LOG2E / 12.0)}")
        for j in range(4): a(f"v_add_u32 {vr(VS+j)}, {sr(W10)}, {vr(VS+j)}")
        for i in range(18): a(f"v_pk_mul_f32 {p(ACC+2*i)}, {p(ACC+2*i)}, {p(CC)} op_sel_hi:[1,0]")
        pack_units(B4)
        for j in range(4): a(f"ds_write_b128 {vr(VS+j)}, {vr(B4+4*j,4)} offset:{L_QX - L_XX}")
        a(f"ds_write_b64 {vr(VR4)}, {vr(B4+16,2)}")
        for j in range(4): a(f"v_dot2_f32_bf16 {vr(CC+j)}, {vr(B4+4*j)}, {vr(XD+4*j)}, 0")
        for i in range(1, 4):
            for j in range(4): a(f"v_dot2_f32_bf16 {vr(CC+j)}, {vr(B4+4*j+i)}, {vr(XD+4*j+i)}, {vr(CC+j)}")
        for i in range(2): a(f"v_dot2_f32_bf16 {vr(CC)}, {vr(B4+16+i)}, {vr(XD+16+i)}, {vr(CC)}")
        a(f"""v_and_b32 {vr(t0)}, 15, v0
        v_lshlrev_b32 {vr(t0)}, 4, {vr(t0)}
        v_add_u32 {vr(t0)}, {L_MX}, {vr(t0)}
        s_lshl_b32 {sr(T+1)}, {sr(S_W)}, 2""")
        self.greduce([CC + j for j in range(4)], CC + 4)
        for j in range(4):
            a(f"s_add_u32 {sr(T)}, {sr(S_W)}, {j}\ns_and_b32 {sr(T)}, {sr(T)}, 3\ns_lshl_b32 {sr(T)}, {sr(T)}, 8\ns_add_u32 {sr(T)}, {sr(T)}, {sr(T+1)}")
            a(f"v_add_u32 {vr(CC+4+j)}, {sr(T)}, {vr(t0)}")
        for j in range(4): a(f"ds_write_b32 {vr(CC+4+j)}, {vr(CC+j)}")
        a.flush()
        a("s_waitcnt lgkmcnt(0)\ns_barrier")
        self.stamp("bar4")
        a(f"v_add_u32 {vr(t1)}, {L_QX}, {vr(V_DMA)}\nv_add_u32 {vr(t2)}, {L_QR}, {vr(AD+6)}")
        MS = 184
        for qb in range(4): a(f"ds_read_b128 {vr(MS+4*qb,4)}, {vr(t0)} offset:{256*qb}")
        for qb in range(4):
            for s in range(4):
                a(f"ds_read_b128 {ar(A_Q+18*qb+4*s,4)}, {vr(t1)} offset:{4096*qb + 1024*s}")
            a(f"ds_read_b64 {ar(A_Q+18*qb+16,2)}, {vr(t2)} offset:{512*qb}")
        a(f"""v_add_u32 {vr(V_KA)}, {sr(S_LB)}, {vr(V_KA)}
        v_add_u32 {vr(V_KA+1)}, {sr(S_LB)}, {vr(V_KA+1)}
        v_lshrrev_b32 {vr(t0)}, 2, v0
        v_bfe_u32 {vr(t1)}, v0, 1, 1
        v_lshlrev_b32 {vr(t1)}, 3, {vr(t1)}
        v_xor_b32 {vr(t1)}, {vr(t0)}, {vr(t1)}
        v_lshlrev_b32 {vr(t1)}, 4, {vr(t1)}
        v_and_b32 {vr(t2)}, 3, v0
        v_lshl_add_u32 {vr(t1)}, {vr(t2)}, 9, {vr(t1)}
        v_and_b32 {vr(V_VA)}, 1, v0
        v_lshl_add_u32 {vr(t1)}, {vr(V_VA)}, 3, {vr(t1)}
        v_add_u32 {vr(V_VA)}, {sr(S_LB)}, {vr(t1)}
        v_xor_b32 {vr(V_VA+1)}, 8, {vr(V_VA)}
        v_lshrrev_b32 {vr(t1)}, 5, v0
        v_lshlrev_b32 {vr(t1)}, 1, {vr(t1)}
        v_xor_b32 {vr(t1)}, {vr(t2)}, {vr(t1)}
        v_lshl_add_u32 {vr(t1)}, {vr(t0)}, 2, {vr(t1)}
        v_lshlrev_b32 {vr(t1)}, 3, {vr(t1)}
        v_add_u32 {vr(V_VR)}, {sr(S_LB)}, {vr(t1)}""")
        a("s_waitcnt lgkmcnt(15)")
        for qb in range(4):
            m = MS + 4 * qb
            a(f"v_add_f32 {vr(m)}, {vr(m)}, {vr(m+1)}\nv_add_f32 {vr(m+2)}, {vr(m+2)}, {vr(m+3)}")
        for qb in range(4):
            m = MS + 4 * qb
            a(f"v_add_f32 {vr(m)}, {vr(m)}, {vr(m+2)}")
        for qb in range(4):
            for i in range(4): a(f"v_sub_f32 {vr(V_CI+4*qb+i)}, 0, {vr(MS+4*qb)}")
        for k in range(5): a(f"v_add_u32 {vr(V_HI+k)}, {2*SLOT}, {vr(V_KA+k)}")
        a("s_waitcnt vmcnt(9) lgkmcnt(0)\ns_barrier")
        self.stamp("bar5")

    def tile_groups(self, slot):
        out = []
        for j in range(9):
            g = ""
            if j % 4 == 0: g = f"s_add_u32 m0, {sr(S_LB)}, {slot*SLOT + 4096*(j//4)}\ns_nop 0\n"
            g += f"buffer_load_dwordx4 {vr(V_DMA + j//4)}, {sr(S_XA,4)}, {sr(S_TOFF)} offen offset:{1024*(j%4)} lds"
            if j == 8: g += f"\ns_add_u32 {sr(S_TOFF)}, {sr(S_TOFF)}, {4*TILE}"
            out.append(g)
        return out

    def first_tiles(self):
        pass

    def wfuse(self):
        a = self.a
        BF, ACC, AF, TM, AD = 88, 108, 144, 208, 240
        LA, LB_, LM = 0, 44032, 88064
        T = S_T
        a.label("L_wfuse")
        a(f"s_load_dwordx2 s[4:5], s[0:1], 32\ns_load_dwordx2 s[6:7], s[0:1], 56\ns_waitcnt lgkmcnt(0)")
        self.srd(S_WS, 62, 63, WS_END)
        self.srd(S_DB, 60, 61, 256)
        self.srd(S_X, 72, 73, 82944)
        self.srd(S_W2, 70, 71, 41472)
        a(f"""s_cmp_eq_u32 s2, 252
        s_cselect_b32 {sr(S_W1)}, s4, s6
        s_cselect_b32 {sr(S_W1+1)}, s5, s7
        s_mov_b32 {sr(S_W1+2)}, 41472
        s_mov_b32 {sr(S_W1+3)}, 0x20000
        s_cselect_b32 {sr(T+4)}, 0, 41472""")
        self.dma_rows([(S_W1, "0", LA), (S_W2, "0", LB_)], 19, 288, TM + 4, TM + 5, 11, 3, "L_wf1")
        a(f"s_lshl_b32 {sr(T)}, {sr(S_W)}, 10\ns_add_u32 {sr(T+2)}, {sr(T)}, {sr(T+4)}")
        for k in range(11):
            if k == 10: a(f"s_cmp_ge_u32 {sr(S_W)}, 1\ns_cbranch_scc1 L_wf2")
            a(f"s_add_u32 m0, {sr(T)}, {LM + 4096*k}\ns_add_u32 {sr(T+1)}, {sr(T+2)}, {4096*k}")
            a(f"buffer_load_dwordx4 {vr(V_DMA)}, {sr(S_X,4)}, {sr(T+1)} offen lds")
        a.label("L_wf2")
        self.srd(S_DW, 66, 67, 864)
        a(f"""v_lshrrev_b32 {vr(TM)}, 4, v0
        v_mul_u32_u24 {vr(TM)}, 288, {vr(TM)}
        v_bfe_u32 {vr(TM+1)}, v0, 2, 2
        v_lshl_add_u32 {vr(TM)}, {vr(TM+1)}, 6, {vr(TM)}
        v_and_b32 {vr(TM+1)}, 3, v0
        v_lshl_add_u32 {vr(TM)}, {vr(TM+1)}, 3, {vr(TM)}
        buffer_load_dwordx2 v[16:17], {vr(TM)}, {sr(S_DW,4)}, 0 offen
        buffer_load_dwordx2 v[18:19], {vr(TM)}, {sr(S_DW,4)}, 0 offen offset:32
        s_mov_b32 {sr(T+1)}, {WS_DWF}
        s_waitcnt vmcnt(0)
        buffer_store_dwordx4 v[16:19], {vr(V_DMA)}, {sr(S_WS,4)}, {sr(T+1)} offen sc1""")
        self.tr_addr(AD, LM, False, TM + 8)
        self.row_addr(AD + 3, LA, TM + 8)
        a(f"v_add_u32 {vr(AD+5)}, {LB_}, {vr(AD+3)}")
        a(f"v_lshlrev_b32 {vr(AD+4)}, 3, v0")
        a(f"s_lshl_b32 {sr(T)}, {sr(S_W)}, 5")
        for k in range(3): a(f"v_add_u32 {vr(AD+k)}, {sr(T)}, {vr(AD+k)}")
        a(f"s_mov_b32 {sr(S_CNT)}, {sr(S_W)}")
        a("s_waitcnt vmcnt(0)\ns_barrier")
        a.label("L_wfl")
        for s in self.tr_reads(AD)(0, BF): a(s)
        a("s_waitcnt lgkmcnt(0)")
        self.gemm(self.row_reads(AD + 3), BF, ACC, AF)
        for i in range(18): a(f"v_cvt_pk_bf16_f32 {vr(BF+i)}, {vr(ACC+2*i)}, {vr(ACC+2*i+1)}")
        a("s_cmp_eq_u32 s2, 252\ns_cbranch_scc0 L_wf3")
        self.gemm(self.row_reads(AD + 5), BF, ACC, AF)
        for i in range(18): a(f"v_cvt_pk_bf16_f32 {vr(BF+i)}, {vr(ACC+2*i)}, {vr(ACC+2*i+1)}")
        a.label("L_wf3")
        a(f"""s_mul_i32 {sr(T)}, {sr(S_CNT)}, {BLK}
        s_add_u32 {sr(T)}, {sr(T)}, {sr(T+4)}
        s_add_u32 {sr(T)}, {sr(T)}, {WS_WF}
        s_add_u32 {sr(T+1)}, {sr(T)}, 4096""")
        self.store_block(BF, V_DMA, AD + 4, S_WS, T, T + 1, "sc1")
        for k in range(3): a(f"v_add_u32 {vr(AD+k)}, 128, {vr(AD+k)}")
        a(f"s_add_u32 {sr(S_CNT)}, {sr(S_CNT)}, 4\ns_cmp_lt_u32 {sr(S_CNT)}, 9\ns_cbranch_scc1 L_wfl")
        a(f"""s_waitcnt vmcnt(0)
        s_barrier
        s_cmp_lg_u32 {sr(S_W)}, 0
        s_cbranch_scc1 L_end
        s_mov_b64 exec, 1
        v_mov_b32 {vr(TM)}, 1
        v_mov_b32 {vr(TM+1)}, {DB_CW}
        buffer_atomic_add {vr(TM)}, {vr(TM+1)}, {sr(S_DB,4)}, 0 offen sc1
        v_mov_b32 {vr(TM+1)}, {DB_CW + 128}
        buffer_atomic_add {vr(TM)}, {vr(TM+1)}, {sr(S_DB,4)}, 0 offen sc1
        s_endpgm""")

    def dump_stamps(self):
        a = self.a
        if self.o.get("dbgst"):
            a("s_waitcnt vmcnt(0)")
            self.stamp("done")
            a("s_waitcnt lgkmcnt(0)\ns_mov_b64 exec, 1")
            slots = [1, 2, 3, 4, 5, 6, 7, 9, 11, 12, 13, 14, 15]
            a(f"s_not_b32 {sr(S_T)}, {sr(S_ST)}\nv_mov_b32 v16, {sr(S_T)}\nv_mov_b32 v17, 4\nbuffer_atomic_umax v16, v17, {sr(S_DB,4)}, 0 offen sc1")
            for i in range(min(self.nst, 12)):
                a(f"v_mov_b32 v{18+2*i}, {sr(S_ST+2*i)}\nv_mov_b32 v{19+2*i}, {4*slots[i+1]}\nbuffer_atomic_umax v{18+2*i}, v{19+2*i}, {sr(S_DB,4)}, 0 offen sc1")
            return
        if not self.o.get("stamps"): return
        T = S_T
        a(f"""s_waitcnt lgkmcnt(0)
        s_lshl_b32 {sr(T)}, s2, 2
        s_add_u32 {sr(T)}, {sr(T)}, {sr(S_W)}
        s_lshl_b32 {sr(T)}, {sr(T)}, 7
        s_add_u32 {sr(T)}, {sr(T)}, {WS_DBG}
        v_mov_b32 v1, 0""")
        for i in range(26): a(f"v_mov_b32 {vr(16+i)}, {sr(S_ST+i)}")
        for i in range(7): a(f"buffer_store_dwordx4 {vr(16+4*i,4)}, v1, {sr(S_WS,4)}, {sr(T)} offen offset:{16*i}")

    def build(self):
        a = self.a
        self.stnames = []
        a.raw(f"; @launch grid=({NWG},1,1) block=(256,1,1) lds={LDS_TOTAL}")
        a.raw('.amdgcn_target "amdgcn-amd-amdhsa--gfx950"')
        a.raw(".text")
        a.raw(f".globl {NAME}")
        self.entry()
        self.phase_a()
        self.rest()
        a.label("L_fin")
        self.dump_stamps()
        a.label("L_end")
        a("s_endpgm")
        self.rare()
        self.fallback()
        self.wfuse()
        a.raw('.section .rodata,"a"')
        a.raw(".p2align 6")
        a.raw(kernel_desc(NAME, 512, 102, 256))
        return a.text()

    def S(self, buf, qb, i=0): return V_S + buf * 32 + qb * 8 + i
    def P(self, buf, qb, i=0): return V_P + buf * 16 + qb * 4 + i

    def k_reads(self, slot):
        ka, so = (V_KA, slot * SLOT) if slot < 2 else (V_HI, (slot - 2) * SLOT)
        out = [f"ds_read_b128 {vr(V_K+8*s+4*kb,4)}, {vr(ka)} offset:{so + 2048*s + 256*kb}" for s in range(4) for kb in range(2)]
        out += [f"ds_read_b64 {vr(V_K+32+2*kb,2)}, {vr(ka+1)} offset:{so + 8192 + 512*kb}" for kb in range(2)]
        return out

    def v_reads(self, slot):
        ka, so = (V_KA, slot * SLOT) if slot < 2 else (V_HI, (slot - 2) * SLOT)
        out = []
        for T in range(9):
            for u in range(2):
                if T < 8: out.append(f"ds_read_b64_tr_b16 {vr(V_V+4*T+2*u,2)}, {vr(ka+2+(T&1))} offset:{so + 2048*(T>>1) + 256*u}")
                else: out.append(f"ds_read_b64_tr_b16 {vr(V_V+4*T+2*u,2)}, {vr(ka+4)} offset:{so + 8192 + 512*u}")
        return out

    def qk_mfmas(self, buf, czero=False):
        out = []
        for s in range(5):
            for kb in range(2):
                for qb in range(4):
                    d = vr(self.S(buf, qb, 4 * kb), 4)
                    c = ("0" if czero else vr(V_CI + 4 * qb, 4)) if s == 0 else d
                    if s < 4: out.append(f"v_mfma_f32_16x16x32_bf16 {d}, {vr(V_K+8*s+4*kb,4)}, {ar(A_Q+18*qb+4*s,4)}, {c}")
                    else: out.append(f"v_mfma_f32_16x16x16_bf16 {d}, {vr(V_K+32+2*kb,2)}, {ar(A_Q+18*qb+16,2)}, {c}")
        return out

    def pv_mfmas(self, buf):
        out = []
        for T in range(9):
            for qb in range(4):
                o = ar(A_O + 36 * qb + 4 * T, 4)
                out.append(f"v_mfma_f32_16x16x32_bf16 {o}, {vr(V_V+4*T,4)}, {vr(self.P(buf,qb),4)}, {o}")
        return out

    def plan(self):
        o = self.o
        n = 76
        fixed = [None] * n
        for i, g in enumerate(range(1, 36, 2)): fixed[g] = ("V", i)
        for i, g in enumerate([41, 44, 47, 50, 53, 56, 59, 62, 65, 68]): fixed[g] = ("K", i)
        for i, g in enumerate([42, 46, 49, 52, 55, 58, 61, 64, 67]): fixed[g] = ("D", i)
        exps = [(qb, j) for qb in range(4) for j in range(8)]
        start = 40
        order = [(start + k) % n for k in range(n)]
        free_idx = [k for k, g in enumerate(order) if fixed[g] is None]
        nsm = len(free_idx) - 32
        cand = free_idx[6:-2]
        sm_set = set(free_idx[-2:]) | {cand[int((i + 0.5) * len(cand) / (nsm - 2))] for i in range(nsm - 2)}
        nds = sum(1 for f in fixed if f is not None and f[0] != "D")
        over = 48 - nds - 2 * nsm
        ocand = [k for k, g in enumerate(order) if k >= 20 and (fixed[g] is None or fixed[g][0] != "D")]
        o_set = {ocand[int((i + 0.5) * len(ocand) / over)] for i in range(over)}
        gaps = [[] for _ in range(n)]
        small, pend, ei = [], [], 0
        for k, g in enumerate(order):
            new = (start + k) < n
            small.extend(pend); pend = []
            small.sort(key=lambda t: 0 if t[0] == "c" else 1)
            f = fixed[g]
            want = 0
            if f is not None:
                gaps[g].append((f[0], f[1], None))
                if f[0] == "D": continue
                want = 1
            elif k in sm_set: want = 2
            else:
                qb, j = exps[ei]; ei += 1
                gaps[g].append(("E", ("e", qb, j), new))
                if j & 1: pend.append(("c", qb, j // 2))
                pend.append(("a", qb, j))
            if k in o_set: want += 1
            if k == n - 1: want = 99
            for _ in range(want):
                if small: gaps[g].append(("E", small.pop(0), new))
        assert not small and not pend and ei == 32
        self.gaps = gaps

    def etext(self, buf, it):
        kind, qb, j = it
        s = self.S(buf, qb)
        if kind == "e": return f"v_exp_f32 {vr(s+j)}, {vr(s+j)}"
        if kind == "a": return f"v_add_f32 {vr(V_L+qb)}, {vr(V_L+qb)}, {vr(s+j)}"
        return f"v_cvt_pk_bf16_f32 {vr(self.P(buf, qb, j))}, {vr(s+2*j)}, {vr(s+2*j+1)}"

    def period(self, p, qk=True, pv=True, e_old=True, e_new=True, kread=True, vread=True, dma=True, extra={}, dsub=None, ksub=None, vm=9):
        a = self.a
        bn, bo = (p + 1) & 1, p & 1
        mf = self.qk_mfmas(bn) + self.pv_mfmas(bo)
        kr, vrd = self.k_reads((p + 2) % RING), self.v_reads(p % RING)
        slot = p % RING
        n = 76
        sc = [[] for _ in range(n)]
        dgs = [g for g in range(n) if any(e[0] == "D" for e in self.gaps[g])]
        if dma:
            for j, g in enumerate(dgs):
                if j % 4 == 0: sc[g - 1].append(f"s_add_u32 m0, {sr(S_LB)}, {slot*SLOT + 4096*(j//4)}")
            sc[dgs[-1] + 1].append(f"s_add_u32 {sr(S_TOFF)}, {sr(S_TOFF)}, {4*TILE}")
        w = []
        if kread: w.append(f"vmcnt({vm})")
        if pv: w.append("lgkmcnt(0)")
        if w: sc[39].append("s_waitcnt " + " ".join(w))
        if kread: sc[75].append("s_waitcnt lgkmcnt(0)")
        for half in range(2):
            rng = range(0, 40) if half == 0 else range(40, 76)
            on = qk if half == 0 else pv
            if not on:
                ds, mem, val, post = [], [], [], []
                for g in rng:
                    for s_ in sc[g]:
                        (post if s_.startswith("s_waitcnt") else mem).append(s_)
                    if g in extra: mem.append(extra[g])
                    for kind, d, new in self.gaps[g]:
                        if kind == "V" and vread: ds.append(vrd[d])
                        elif kind == "K" and kread: ds.append(kr[d])
                        elif kind == "D" and dma: mem.append(f"buffer_load_dwordx4 {vr(V_DMA + d//4)}, {sr(S_XA,4)}, {sr(S_TOFF)} offen offset:{1024*(d%4)} lds")
                        elif kind == "E" and ((new and e_new) or (not new and e_old)): val.append((d, self.etext(bn if new else bo, d)))
                if half == 1: a("s_nop 3")
                seq, pend = [], list(val)
                while pend:
                    k = 0
                    if seq and seq[-1][0][0] == "e":
                        le = seq[-1][0]
                        dep = lambda it: it[0][1] == le[1] and ((it[0][0] == "a" and it[0][2] == le[2]) or (it[0][0] == "c" and it[0][2] == le[2] // 2))
                        have = {x[0] for x in seq}
                        ok = lambda it: it[0][0] == "e" or (("e", it[0][1], it[0][2]) in have if it[0][0] == "a" else (("e", it[0][1], 2*it[0][2]+1) in have)) or not any(x[0][0] == "e" and x[0][1] == it[0][1] and (x[0][2] == it[0][2] if it[0][0] == "a" else x[0][2] // 2 == it[0][2]) for x in pend)
                        while k < len(pend) and (dep(pend[k]) or not ok(pend[k])): k += 1
                        if k == len(pend): seq.append((("n", 0, 0), "s_nop 0")); k = 0
                    seq.append(pend.pop(k))
                step = max(1, len(seq) // (len(mem) + len(ds) + 1))
                allm = ds + mem
                for x in allm[:6]: a(x)
                allm = allm[6:]
                for i_, (d, t_) in enumerate(seq):
                    a(t_)
                    if allm and i_ % step == step - 1:
                        x = allm.pop(0); a(x)
                        if x.startswith("s_add_u32 m0"): a("s_nop 0")
                for x in allm:
                    a(x)
                    if x.startswith("s_add_u32 m0"): a("s_nop 0")
                for x in post: a(x)
                if half == 0: a("s_nop 1")
                continue
            for g in rng:
                a(mf[g])
                for s_ in sc[g]: a(s_)
                if g in extra: a(extra[g])
                for kind, d, new in self.gaps[g]:
                    if kind == "V":
                        if vread: a(vrd[d])
                    elif kind == "K":
                        if kread: a(kr[d])
                        elif ksub: a(ksub.pop(0))
                    elif kind == "D":
                        if dma: a(f"buffer_load_dwordx4 {vr(V_DMA + d//4)}, {sr(S_XA,4)}, {sr(S_TOFF)} offen offset:{1024*(d%4)} lds")
                        elif dsub: a(dsub.pop(0))
                    elif (new and e_new) or (not new and e_old):
                        a(self.etext(bn if new else bo, d))

    MK, VO, GA, DWA, VPL = 232, 236, 238, 244, 248
    NB, PT, E_U, E_G, E_U2, E_G2, E_DW, E_COL = 56, 57, 58, 59, 60, 61, 62, 63
    U, GM, G0, GP, DW = 128, 138, 148, 16, 26
    WD = [("a", 216), ("a", 234), ("v", 208)]
    WO = [("a", 0), ("a", 18), ("a", 36)]

    def epi_setup(self):
        T = S_T
        NB, PT, VO, GA, DWA = self.NB, self.PT, self.VO, self.GA, self.DWA
        r, g4, x, y, big = 208, 209, 210, 211, 212
        L = [f"s_lshr_b32 {sr(NB)}, {sr(S_W)}, 1\nv_and_b32 {vr(r)}, 15, v0\nv_lshrrev_b32 {vr(g4)}, 4, v0",
             f"s_and_b32 {sr(PT)}, {sr(S_W)}, 1\nv_mul_u32_u24 {vr(x)}, 288, {vr(r)}\nv_lshlrev_b32 {vr(DWA)}, 3, {vr(g4)}",
             f"s_lshl_b32 {sr(T)}, {sr(S_TOWN)}, 1\nv_add_u32 {vr(x)}, {vr(x)}, {vr(DWA)}\nv_mov_b32 {vr(big)}, 0x40000000",
             f"s_add_u32 {sr(T)}, {sr(T)}, {sr(NB)}\ns_lshl_b32 {sr(T)}, {sr(T)}, 4\ns_mul_i32 {sr(T+1)}, {sr(S_TOWN)}, {TILE}",
             f"s_mul_i32 {sr(T+2)}, {sr(PT)}, {BLK}\nv_add_u32 {vr(r)}, {sr(T)}, {vr(r)}\nv_add_u32 {vr(x)}, {sr(T+1)}, {vr(x)}",
             f"s_sub_u32 {sr(T+3)}, {BLK}, {sr(T+2)}\nv_add_u32 {vr(VO)}, {sr(T+2)}, {vr(x)}",
             f"s_mul_i32 {sr(T)}, {sr(S_B)}, 4000\nv_add_u32 {vr(VO+1)}, {sr(T+3)}, {vr(x)}",
             f"s_add_u32 {sr(T+1)}, {sr(T)}, 3999\ns_mov_b32 {sr(T+2)}, {BLK}\ns_lshl_b32 {sr(T+3)}, {sr(PT)}, 11",
             f"s_add_u32 {sr(self.E_U)}, {sr(T+3)}, {WS_U}\ns_add_u32 {sr(self.E_G)}, {sr(T+3)}, {WS_G}\ns_mov_b32 {sr(self.E_U2)}, {WS_U + 4096}",
             f"s_mov_b32 {sr(self.E_G2)}, {WS_G + 4096}\ns_lshl_b32 {sr(self.E_DW)}, {sr(PT)}, 7\ns_lshl_b32 {sr(self.E_COL)}, {sr(S_W)}, 6",
             f"s_add_u32 {sr(self.E_DW)}, {sr(self.E_DW)}, {WS_DWF}\nv_lshlrev_b32 {vr(DWA+1)}, 4, {vr(g4)}\nv_lshlrev_b32 {vr(DWA+2)}, 3, v0",
             f"v_add_u32 {vr(DWA+2)}, 4096, {vr(DWA+2)}"]
        for k, dr in enumerate((0, -1, 1)):
            m = GA + 2 * k
            src = r
            if dr:
                L.append(f"v_add_u32 {vr(m)}, {dr}, {vr(r)}\nv_cmp_eq_u32 vcc, {sr(T if dr < 0 else T+1)}, {vr(r)}")
                src = m
            L.append(f"v_lshrrev_b32 {vr(x)}, 4, {vr(src)}\nv_and_b32 {vr(y)}, 15, {vr(src)}")
            L.append(f"v_mul_lo_u32 {vr(x)}, {vr(x)}, {sr(T+2)}\nv_lshl_add_u32 {vr(y)}, {vr(g4)}, 4, {vr(y)}")
            L.append(f"v_lshl_add_u32 {vr(m)}, {vr(y)}, 4, {vr(x)}\nv_lshl_add_u32 {vr(m+1)}, {vr(y)}, 3, {vr(x)}")
            if dr: L.append(f"v_cndmask_b32 {vr(m)}, {vr(m)}, {vr(big)}, vcc\nv_cndmask_b32 {vr(m+1)}, {vr(m+1)}, {vr(big)}, vcc")
        return L

    def dwreg(self, k): return [26, 36, 96][k]

    def conv_loads(self):
        GA = self.GA
        L = []
        for dst, m, so in ((self.GM, GA + 2, 1), (self.G0, GA, 1), (self.GP, GA + 4, 1), (self.U, GA, 0)):
            for k in range(2): L.append(f"buffer_load_dwordx4 {vr(dst+4*k,4)}, {vr(m)}, {sr(S_WS,4)}, {sr(self.E_U+so)} offen offset:{1024*k} sc1")
            L.append(f"buffer_load_dwordx2 {vr(dst+8,2)}, {vr(m+1)}, {sr(S_WS,4)}, {sr(self.E_U2+so)} offen sc1")
        for k in range(3):
            for i in range(2): L.append(f"buffer_load_dwordx4 {vr(self.dwreg(k)+4*i,4)}, {vr(self.DWA+1)}, {sr(S_WS,4)}, {sr(self.E_DW)} offen offset:{256*k + 64*i} sc1")
            L.append(f"buffer_load_dwordx2 {vr(self.dwreg(k)+8,2)}, {vr(self.DWA)}, {sr(S_DW,4)}, 0 offen offset:{288*k + 256}")
        return L

    def w_loads(self, mat, regs, sb):
        L = []
        for tt in range(3):
            rf = ar if regs[tt][0] == "a" else vr
            for s in range(4): L.append(f"buffer_load_dwordx4 {rf(regs[tt][1]+4*s,4)}, {vr(V_DMA)}, {sr(S_WS,4)}, {sr(sb+tt)} offen offset:{1024*s} sc1")
            L.append(f"buffer_load_dwordx2 {rf(regs[tt][1]+16,2)}, {vr(self.DWA+2)}, {sr(S_WS,4)}, {sr(sb+tt)} offen sc1")
        return L

    def xa_srd(self):
        T = S_T
        return f"""s_mul_i32 {sr(T)}, {sr(S_B)}, {NT}
        s_mul_i32 {sr(T+1)}, {sr(S_H)}, 63
        s_add_u32 {sr(T+1)}, {sr(T+1)}, {sr(T)}
        s_mul_i32 {sr(T+1)}, {sr(T+1)}, {TILE}
        s_add_u32 {sr(S_XA)}, {sr(S_WS)}, {sr(T+1)}
        s_addc_u32 {sr(S_XA+1)}, {sr(S_WS+1)}, 0
        s_sub_u32 {sr(T+2)}, 63, {sr(S_H)}
        s_mul_i32 {sr(S_XA+2)}, {sr(T+2)}, {TILE}
        s_mov_b32 {sr(S_XA+3)}, 0x20000"""

    def rest(self):
        a, o = self.a, self.o
        T = S_T
        VPL = self.VPL
        self.plan()
        a.label("L_go")
        for x in self.k_reads(0): a(x)
        for i in range(4): a(f"v_mov_b32 {vr(V_L+i)}, 0")
        for i in range(4): a(f"v_mov_b32 {vr(self.MK+i)}, {vr(V_CI+4*i)}")
        a(f"""s_mov_b32 {sr(S_CNT)}, 0
        s_lshl_b32 {sr(T)}, {sr(S_B)}, 7
        s_add_u32 {sr(T)}, {sr(T)}, {DB_CB}
        v_mov_b32 {vr(VPL)}, {sr(T)}
        s_waitcnt lgkmcnt(0)""")
        t2 = self.tile_groups(2)
        ex = {1 + 4 * i: t2[i] for i in range(9)}
        es = self.epi_setup()
        for g in range(40):
            if g not in ex and es: ex[g] = es.pop(0)
        assert not es
        ex[41] = (f"s_or_b32 {sr(T)}, {sr(S_W)}, {sr(S_REDO)}\ns_cmp_lg_u32 {sr(T)}, 0\ns_cbranch_scc1 L_nocb\ns_mov_b64 exec, 1\nv_mov_b32 {vr(VPL+1)}, 1\n"
                  f"buffer_atomic_add {vr(VPL+1)}, {vr(VPL)}, {sr(S_DB,4)}, 0 offen sc1\ns_mov_b64 exec, -1\nL_nocb:")
        self.period(-1, pv=False, e_old=False, vread=False, extra=ex)
        self.stamp("loop")
        a.raw(".p2align 6")
        a.label("L_loop")
        for p in range(4):
            ex = {}
            if p == 2: ex = {70: f"buffer_load_dwordx4 v[252:255], {vr(VPL)}, {sr(S_DB,4)}, 0 offen sc1"}
            if p == 3: ex = {72: f"s_add_u32 {sr(S_CNT)}, {sr(S_CNT)}, 1", 73: f"s_cmp_lt_u32 {sr(S_CNT)}, 3"}
            self.period(p, extra=ex)
        a("s_cbranch_scc1 L_loop")
        self.stamp("p12")
        SW = 66
        a(f"s_waitcnt vmcnt(9)\ns_mov_b32 {sr(T+2)}, 0")
        a.label("L_late")
        a(f"""v_readfirstlane_b32 {sr(T)}, v252
        v_readfirstlane_b32 {sr(T+1)}, v254
        s_add_u32 {sr(SW+3)}, {sr(S_LB)}, {WS_WF}
        s_add_u32 {sr(SW+4)}, {sr(S_LB)}, {WS_WF + BLK}
        s_mov_b32 {sr(SW+5)}, {WS_WF + 8*BLK}
        s_add_u32 {sr(SW)}, {sr(S_LB)}, {WS_WF + 9*BLK}
        s_add_u32 {sr(SW+1)}, {sr(S_LB)}, {WS_WF + 10*BLK}
        s_mov_b32 {sr(SW+2)}, {WS_WF + 17*BLK}
        s_cmp_ge_u32 {sr(T)}, 126
        s_cselect_b32 {sr(T+3)}, {sr(T+1)}, 0
        s_cmp_ge_u32 {sr(T+3)}, 2
        s_cbranch_scc0 L_late1""")
        a.label("L_late0")
        wd = self.w_loads(1, self.WD, SW)
        pf = (f"s_lshr_b32 {sr(T)}, s2, 3\ns_lshl_b32 {sr(T)}, {sr(T)}, 2\ns_add_u32 {sr(T)}, {sr(T)}, {sr(S_W)}\ns_and_b32 {sr(T)}, {sr(T)}, 63\ns_min_u32 {sr(T)}, {sr(T)}, 40\n"
              f"s_lshl_b32 {sr(T)}, {sr(T)}, 10\ns_add_u32 {sr(T)}, {sr(T)}, {WS_WF}\nbuffer_load_dwordx4 v[252:255], {vr(V_DMA)}, {sr(S_WS,4)}, {sr(T)} offen")
        self.period(12, dma=False, dsub=wd[:9], vm=9)
        self.period(13, dma=False, dsub=wd[9:] + [pf], vm=9)
        a(f"s_cmp_eq_u32 {sr(S_DUM)}, 4\ns_cbranch_scc1 L_dummy")
        a.label("L_dummyb")
        cl = self.conv_loads()
        self.period(14, dma=False, kread=False, dsub=cl[:9], ksub=cl[9:18])
        self.stamp("tail")
        self.tail(cl[18:])
        self.stamp("end")
        self.epilogue(SW)

    def rare(self):
        a = self.a
        T = S_T
        a.label("L_dummy")
        for i in range(16): a(f"v_mov_b32 {vr(V_CI+i)}, 0xff800000")
        a("s_nop 1\ns_branch L_dummyb")
        a.label("L_late1")
        a(f"""buffer_load_dwordx4 v[252:255], {vr(self.VPL)}, {sr(S_DB,4)}, 0 offen sc1
        s_add_u32 {sr(T+2)}, {sr(T+2)}, 1
        s_waitcnt vmcnt(0)
        s_cmp_lt_u32 {sr(T+2)}, 0x40000
        s_cbranch_scc1 L_late
        s_branch L_late0""")

    L_X2 = L_SP
    L_L = L_SP + 9216
    units = [(0, 0), (0, 1), (1, 0), (1, 1), (2, 0)]
    XR = 158
    def mreg(self, k, i, h):
        n = (k * 10 + i) * 2 + h
        return 48 + n if n < 48 else (106 + n - 48 if n < 54 else 226 + n - 54)

    def tail(self, cl):
        a = self.a
        T = S_T
        VST = 247
        ex = {i: x for i, x in enumerate(cl)}
        ex[5] = f"v_add_u32 {vr(VST)}, {sr(S_LB)}, {vr(V_DMA)}"
        n0 = len(a.lines)
        self.period(15, qk=False, e_new=False, kread=False, dma=False, extra=ex)
        k = next(i for i in range(n0, len(a.lines)) if "v_mfma" in a.lines[i])
        del a.lines[k:]
        wr = [f"ds_write_b128 {vr(VST)}, {ar(A_O+36*qb+4*i,4)} offset:{SLOT*qb + 1024*i}" for qb in range(2) for i in range(9)]
        va = []
        for i in range(10):
            for k_ in range(3):
                va.append(f"v_and_b32 {vr(self.mreg(k_,i,0))}, 0xffff, {vr(self.dwreg(k_)+i)}")
                va.append(f"v_and_b32 {vr(self.mreg(k_,i,1))}, 0xffff0000, {vr(self.dwreg(k_)+i)}")
        n = 0
        for qb in range(4):
            for Tt in range(9):
                o_ = ar(A_O + 36 * qb + 4 * Tt, 4)
                a(f"v_mfma_f32_16x16x32_bf16 {o_}, {vr(V_V+4*Tt,4)}, {vr(self.P(1,qb),4)}, {o_}")
                if n == 3: a("s_waitcnt vmcnt(0)")
                k_ = 2
                if n >= 12 and n % 2 == 0 and (len(wr) > 9 or n >= 22): a(wr.pop(0)); k_ = 1
                if n >= 3:
                    for _ in range(k_):
                        if va: a(va.pop(0))
                n += 1
        for x in va: a(x)
        self.wr_left = wr

    def epilogue(self, SW):
        a, o = self.a, self.o
        T = S_T
        p = lambda r: vr(r, 2)
        L_L, L_FL, L_X2 = self.L_L, self.L_L + 1024, self.L_X2
        NB, PT, MK, VO, units = self.NB, self.PT, self.MK, self.VO, self.units
        U, GM, G0, GP = self.U, self.GM, self.G0, self.GP
        VST, VL8 = 247, self.DWA + 2
        t = 164
        C, UU, PKD = 180, 112, 26
        wr = self.wr_left
        n0 = len(a.lines)
        self.greduce([V_L + i for i in range(4)], t)
        a(f"""v_add_f32 {vr(t+1)}, {vr(V_L)}, {vr(V_L+1)}
        v_add_f32 {vr(t+2)}, {vr(V_L+2)}, {vr(V_L+3)}
        v_add_f32 {vr(t+1)}, {vr(t+1)}, {vr(t+2)}
        v_mov_b32 {vr(t+2)}, {f32(2.0**100)}
        v_cmp_nle_f32 vcc, {vr(t+1)}, {vr(t+2)}
        v_and_b32 {vr(t+3)}, 15, v0
        v_lshlrev_b32 {vr(t+3)}, 4, {vr(t+3)}
        s_lshl_b32 {sr(T)}, {sr(S_W)}, 2
        s_add_u32 {sr(T)}, {sr(T)}, {L_L}
        v_add_u32 {vr(t+4)}, {sr(T)}, {vr(t+3)}
        s_cmp_lg_u64 vcc, 0
        s_cselect_b32 {sr(T+1)}, 1, 0
        v_mov_b32 {vr(t+5)}, {sr(T+1)}
        v_mov_b32 {vr(t+6)}, {sr(T)}""")
        for k_, src in enumerate((GM, G0, GP)):
            for i in range(10):
                for h in range(2):
                    a(f"v_dot2_f32_bf16 {vr(C+2*i+h)}, {vr(src+i)}, {vr(self.mreg(k_,i,h))}, {'0' if k_ == 0 else vr(C+2*i+h)}")
        UUr = 48
        for i in range(10):
            a(f"v_lshlrev_b32 {vr(UUr+2*i)}, 16, {vr(U+i)}\nv_and_b32 {vr(UUr+1+2*i)}, 0xffff0000, {vr(U+i)}")
        for i in range(10): a(f"v_pk_mul_f32 {p(C+2*i)}, {p(C+2*i)}, {p(UUr+2*i)}")
        for i in range(10): a(f"v_cvt_pk_bf16_f32 {vr(PKD+i)}, {vr(C+2*i)}, {vr(C+2*i+1)}")
        a(f"""s_mul_i32 {sr(T)}, {sr(NB)}, {SLOT}
        s_lshl_b32 {sr(T+1)}, {sr(PT)}, 12
        s_add_u32 {sr(T)}, {sr(T)}, {sr(T+1)}
        v_add_u32 {vr(t+7)}, {sr(T)}, {vr(V_DMA)}
        s_lshl_b32 {sr(T+1)}, {sr(NB)}, 8
        s_add_u32 {sr(T+1)}, {sr(T+1)}, {L_L}
        v_add_u32 {vr(t+9)}, {sr(T+1)}, {vr(t+3)}
        v_mov_b32 {vr(t+10)}, {L_FL}
        s_lshl_b32 {sr(T)}, {sr(NB)}, 12
        s_lshl_b32 {sr(T+1)}, {sr(PT)}, 11
        s_add_u32 {sr(T)}, {sr(T)}, {sr(T+1)}
        v_add_u32 {vr(t+11)}, {sr(T)}, {vr(V_DMA)}
        s_lshl_b32 {sr(T)}, {sr(NB)}, 9
        s_add_u32 {sr(T)}, {sr(T)}, 4096
        v_add_u32 {vr(t+12)}, {sr(T)}, {vr(VL8)}
        v_add_u32 {vr(t+13)}, {L_X2}, {vr(t+11)}
        v_add_u32 {vr(t+14)}, {L_X2}, {vr(t+12)}""")
        body = a.lines[n0:]; del a.lines[n0:]
        for i, l in enumerate(body):
            if i % 12 == 0 and wr: a(wr.pop(0))
            a.lines.append(l)
        for x in wr: a(x)
        VROW16, VRD, VX1, VX1R = t + 3, t + 7, t + 11, t + 12
        for qb in range(4): a(f"ds_write_b32 {vr(t+4)}, {vr(V_L+qb)} offset:{256*qb}")
        a(f"""ds_write_b32 {vr(t+6)}, {vr(t+5)} offset:1024
        ds_write_b128 {vr(t+13)}, {vr(PKD,4)}
        ds_write_b128 {vr(t+13)}, {vr(PKD+4,4)} offset:1024
        s_cmp_eq_u32 {sr(PT)}, 0
        s_cbranch_scc1 L_e3
        ds_write_b64 {vr(t+14)}, {vr(PKD+8,2)}""")
        a.label("L_e3")
        a("s_waitcnt lgkmcnt(0)\ns_barrier")
        self.stamp("B1")
        R = 48
        F = 180
        a(f"ds_read_b128 {vr(F,4)}, {vr(t+10)}\nds_read_b128 {vr(F+4,4)}, {vr(t+9)}")

        def reduce4():
            for w in range(4):
                for i in range(5): a(f"ds_read_b128 {vr(R+20*w+4*i,4)}, {vr(VRD)} offset:{TILE*w + 1024*i}")
                if w == 1: yield
            yield
            for w in range(1, 4):
                a(f"s_waitcnt lgkmcnt({5*(3-w)})")
                for i in range(10): a(f"v_pk_add_f32 {p(R+2*i)}, {p(R+2*i)}, {p(R+20*w+2*i)}")
            for i in range(10): a(f"v_cvt_pk_bf16_f32 {vr(R+20+i)}, {vr(R+2*i)}, {vr(R+2*i+1)}")
        g = reduce4(); next(g)
        a(f"""s_xor_b32 {sr(T)}, s2, 1
        s_mul_i32 {sr(T)}, {sr(T)}, {IB}
        s_mul_i32 {sr(T+1)}, {sr(NB)}, 5120
        s_add_u32 {sr(T)}, {sr(T)}, {sr(T+1)}
        s_add_u32 {sr(T)}, {sr(T)}, {WS_IB}
        s_lshl_b32 {sr(T+1)}, {sr(PT)}, 11
        s_add_u32 {sr(T+1)}, {sr(T+1)}, {sr(T)}
        s_add_u32 {sr(T)}, {sr(T)}, 4096
        s_cmp_eq_u32 {sr(PT)}, 0
        s_cselect_b32 {sr(T)}, 0x40000000, {sr(T)}""")
        next(g)
        a(f"""s_waitcnt lgkmcnt(15)
        v_or_b32 {vr(F)}, {vr(F)}, {vr(F+1)}
        v_or3_b32 {vr(F)}, {vr(F)}, {vr(F+2)}, {vr(F+3)}
        v_add_f32 {vr(F+4)}, {vr(F+4)}, {vr(F+5)}
        v_add_f32 {vr(F+6)}, {vr(F+6)}, {vr(F+7)}
        v_readfirstlane_b32 {sr(T+2)}, {vr(F)}
        v_add_f32 {vr(F+4)}, {vr(F+4)}, {vr(F+6)}
        s_andn2_b32 {sr(T+2)}, {sr(T+2)}, {sr(S_REDO)}
        s_cbranch_scc1 L_fallback
        s_cmp_eq_u32 {sr(NB)}, 1
        s_cselect_b64 vcc, -1, 0""")
        for _ in g: pass
        a(f"""v_mov_b32 {vr(R+30)}, {vr(F+4)}
        v_cndmask_b32 {vr(R+31)}, {vr(MK)}, {vr(MK+1)}, vcc
        buffer_store_dwordx4 {vr(R+20,4)}, {vr(V_DMA)}, {sr(S_WS,4)}, {sr(T+1)} offen sc1
        buffer_store_dwordx4 {vr(R+24,4)}, {vr(V_DMA)}, {sr(S_WS,4)}, {sr(T+1)} offen offset:1024 sc1
        buffer_store_dwordx4 {vr(R+28,4)}, {vr(V_DMA)}, {sr(S_WS,4)}, {sr(T)} offen sc1""")
        self.stamp("sent")
        a(f"s_cmp_eq_u32 {sr(S_VAL)}, 0\ns_cbranch_scc1 L_fin")
        ad = 188
        a(f"""s_lshl_b32 {sr(T)}, {sr(PT)}, 12
        v_add_u32 {vr(ad)}, {sr(T)}, {vr(V_DMA)}
        v_xor_b32 {vr(ad+1)}, 4096, {vr(ad)}
        s_lshl_b32 {sr(T)}, {sr(PT)}, 9
        s_add_u32 {sr(T)}, {sr(T)}, 4096
        v_add_u32 {vr(ad+2)}, {sr(T)}, {vr(VL8)}
        v_xor_b32 {vr(ad+3)}, 512, {vr(ad+2)}""")
        for k_ in range(4): a(f"v_add_u32 {vr(ad+4+k_)}, {L_X2}, {vr(ad+k_)}")
        a(f"v_add_u32 {vr(VST)}, {2*SLOT}, {vr(VST)}")

        def bfrags(dst, b):
            for j in range(2):
                for s in range(4): a(f"ds_read_b128 {vr(dst[j]+4*s,4)}, {vr(b+j)} offset:{1024*s}")
                a(f"ds_read_b64 {vr(dst[j]+16,2)}, {vr(b+2+j)}")

        def fgemm(acc, W, Bf, fill=()):
            fill = list(fill)
            for s in range(5):
                for u, (tt, j) in enumerate(units):
                    d = vr(acc + 4 * u, 4)
                    rf = ar if W[tt][0] == "a" else vr
                    if s < 4: a(f"v_mfma_f32_16x16x32_bf16 {d}, {rf(W[tt][1]+4*s,4)}, {vr(Bf[j]+4*s,4)}, {'0' if s == 0 else d}")
                    else:
                        if u == 0: a("s_nop 1")
                        a(f"v_mfma_f32_16x16x16_bf16 {d}, {rf(W[tt][1]+16,2)}, {vr(Bf[j]+16,2)}, {d}")
                    if fill: a(fill.pop(0))
            for x in fill: a(x)
        BU = [16, 128]
        AB, AO, AP = 84, 104, 208
        XR, LO, IN = 36, 196, 128
        bfrags(BU, ad + 4)
        wr = [f"ds_write_b128 {vr(VST)}, {ar(A_O+36*(2+qb)+4*i,4)} offset:{SLOT*qb + 1024*i}" for qb in range(2) for i in range(9)]
        for x in wr[:4]: a(x)
        wl = self.w_loads(0, self.WO, SW + 3)
        for u, (tt, j) in enumerate(units):
            so = (sr(self.E_COL), 32 * tt) if tt < 2 else ("0", 256)
            wl.append(f"buffer_load_dwordx2 {vr(XR+2*u,2)}, {vr(VO+j)}, {sr(S_X,4)}, {so[0]} offen offset:{so[1]}")
        for x in wl[:6]: a(x)
        a("s_waitcnt lgkmcnt(4)")
        fl = []
        for k_ in range(14): fl += [wr[4 + k_], wl[6 + k_]]
        fgemm(AB, self.WD, BU, fill=fl)
        a(f"""v_add_u32 {vr(VRD)}, {2*SLOT}, {vr(VRD)}
        s_lshl_b32 {sr(T)}, {sr(PT)}, 8
        s_add_u32 {sr(T)}, {sr(T)}, {L_L + 512}
        v_add_u32 {vr(ad+4)}, {sr(T)}, {vr(VROW16)}
        v_xor_b32 {vr(ad+5)}, 256, {vr(ad+4)}
        s_mul_i32 {sr(T+12)}, s2, {IB}
        s_add_u32 {sr(T+12)}, {sr(T+12)}, {WS_IB}
        s_mul_i32 {sr(T)}, {sr(PT)}, 5120
        s_add_u32 {sr(T+13)}, {sr(T+12)}, 5120
        s_sub_u32 {sr(T+13)}, {sr(T+13)}, {sr(T)}
        s_add_u32 {sr(T+12)}, {sr(T+12)}, {sr(T)}
        s_waitcnt lgkmcnt(0)
        s_barrier""")
        self.stamp("B2")
        R2 = R
        PR = [48, 104, 128, 148]
        for w in range(4):
            for i in range(5): a(f"ds_read_b128 {vr(PR[w]+4*i,4)}, {vr(VRD)} offset:{TILE*w + 1024*i}")
        for w in range(1, 4):
            a(f"s_waitcnt lgkmcnt({5*(3-w)})")
            for i in range(10): a(f"v_pk_add_f32 {p(48+2*i)}, {p(48+2*i)}, {p(PR[w]+2*i)}")
        for i in range(10): a(f"v_cvt_pk_bf16_f32 {vr(68+i)}, {vr(48+2*i)}, {vr(48+2*i+1)}")
        a(f"""ds_write_b128 {vr(VX1)}, v[68:71]
        ds_write_b128 {vr(VX1)}, v[72:75] offset:1024
        s_cmp_eq_u32 {sr(PT)}, 0
        s_cbranch_scc1 L_e2
        ds_write_b64 {vr(VX1R)}, v[76:77]""")
        a.label("L_e2")
        for j in range(2): a(f"ds_read_b128 {vr(LO+4*j,4)}, {vr(ad+4+j)}")

        def inbox():
            for j in range(2):
                for s in range(4): a(f"buffer_load_dwordx4 {vr(IN+20*j+4*s,4)}, {vr(V_DMA)}, {sr(S_WS,4)}, {sr(T+12+j)} offen offset:{1024*s} sc1")
                a(f"buffer_load_dwordx4 {vr(IN+20*j+16,4)}, {vr(V_DMA+1)}, {sr(S_WS,4)}, {sr(T+12+j)} offen sc1")
        a("s_waitcnt lgkmcnt(0)\ns_barrier")
        self.stamp("B3")
        BO = [16, 48]
        bfrags(BO, ad)
        inbox()
        for j in range(2):
            a(f"v_add_f32 {vr(LO+4*j)}, {vr(LO+4*j)}, {vr(LO+4*j+1)}\nv_add_f32 {vr(LO+4*j+2)}, {vr(LO+4*j+2)}, {vr(LO+4*j+3)}\nv_add_f32 {vr(LO+4*j)}, {vr(LO+4*j)}, {vr(LO+4*j+2)}")
        a(f"""s_cmp_eq_u32 {sr(PT)}, 1
        s_cselect_b64 vcc, -1, 0
        s_mov_b32 {sr(T+2)}, 0
        v_cndmask_b32 {vr(LO+1)}, {vr(MK+2)}, {vr(MK+3)}, vcc
        v_cndmask_b32 {vr(LO+5)}, {vr(MK+3)}, {vr(MK+2)}, vcc
        s_waitcnt vmcnt(10) lgkmcnt(0)""")
        xa_ = []
        for u in range(5):
            for h in range(2):
                xa_.append(f"v_lshlrev_b32 {vr(168+4*u+2*h)}, 16, {vr(XR+2*u+h)}\nv_and_b32 {vr(169+4*u+2*h)}, 0xffff0000, {vr(XR+2*u+h)}")
        for u in range(5):
            for h in range(2):
                r = 4 * u + 2 * h
                xa_.append(f"v_add_f32 {vr(AB+r)}, {vr(AB+r)}, {vr(168+r)}\nv_add_f32 {vr(AB+r+1)}, {vr(AB+r+1)}, {vr(169+r)}")
        fgemm(AO, self.WO, BO, fill=xa_)
        self.stamp("own")
        a("s_branch L_inc")
        a.label("L_in")
        inbox()
        a.label("L_inc")
        a(f"s_waitcnt vmcnt(0)\ns_add_u32 {sr(T+2)}, {sr(T+2)}, 1")
        chk = [f"v_max3_u32 v168, {vr(IN)}, {vr(IN+1)}, {vr(IN+2)}", f"v_max3_u32 v169, {vr(IN+3)}, {vr(IN+4)}, {vr(IN+5)}"]
        for k, x in enumerate(range(IN + 6, IN + 40, 2)): chk.append(f"v_max3_u32 v{168+(k&1)}, v{168+(k&1)}, {vr(x)}, {vr(x+1)}")
        chk += ["v_max_u32 v168, v168, v169", "v_cmp_eq_u32 vcc, -1, v168"]
        wt = []
        for j in range(2):
            lo, mo, lp, mp, w = LO + 4 * j, LO + 4 * j + 1, IN + 20 * j + 18, IN + 20 * j + 19, 172 + 4 * j
            wt.append([f"v_min_f32 {vr(w)}, {vr(mo)}, {vr(mp)}", f"v_sub_f32 {vr(w+1)}, {vr(w)}, {vr(mp)}", f"v_sub_f32 {vr(w)}, {vr(w)}, {vr(mo)}",
                       f"v_exp_f32 {vr(w+1)}, {vr(w+1)}", f"v_exp_f32 {vr(w)}, {vr(w)}", f"v_mul_f32 {vr(w+2)}, {vr(w+1)}, {vr(lp)}",
                       f"v_fmac_f32 {vr(w+2)}, {vr(w)}, {vr(lo)}", f"v_rcp_f32 {vr(w+2)}, {vr(w+2)}", f"v_mul_f32 {vr(w)}, {vr(w)}, {vr(w+2)}",
                       f"v_mul_f32 {vr(w+2)}, {vr(w+1)}, {vr(w+2)}"])
        wl_ = [x for pair in zip(*wt) for x in pair]
        fill = [c + "\n" + wl_[i] if i < len(wl_) else c for i, c in enumerate(chk)]
        fgemm(AP, self.WO, [IN, IN + 20], fill=fill)
        a(f"""s_cmp_eq_u64 vcc, 0
        s_cbranch_scc1 L_got
        s_cmp_lt_u32 {sr(T+2)}, 0x10000
        s_cbranch_scc1 L_in""")
        a.label("L_got")
        self.stamp("got")
        for u, (tt, j) in enumerate(units):
            for h in range(2):
                r = 4 * u + 2 * h
                a(f"v_pk_fma_f32 {p(AB+r)}, {p(AO+r)}, {p(172+4*j)}, {p(AB+r)} op_sel_hi:[1,0,1]")
        for u, (tt, j) in enumerate(units):
            for h in range(2):
                r = 4 * u + 2 * h
                a(f"v_pk_fma_f32 {p(AB+r)}, {p(AP+r)}, {p(174+4*j)}, {p(AB+r)} op_sel_hi:[1,0,1]")
            for h in range(2): a(f"v_cvt_pk_bf16_f32 {vr(16+2*u+h)}, {vr(AB+4*u+2*h)}, {vr(AB+4*u+2*h+1)}")
            so = (sr(self.E_COL), 32 * tt) if tt < 2 else ("0", 256)
            a(f"buffer_store_dwordx2 {vr(16+2*u,2)}, {vr(VO+j)}, {sr(S_OUT,4)}, {so[0]} offen offset:{so[1]}")
        self.stamp("fin")

    def fallback(self):
        a = self.a
        T = S_T
        MXR = 208
        a.label("L_fallback")
        a(f"""s_waitcnt vmcnt(0) lgkmcnt(0)
        s_barrier
        s_mov_b32 {sr(S_REDO)}, 1
        s_mov_b32 {sr(S_TOFF)}, {sr(S_LB)}
        s_cmp_eq_u32 {sr(S_DUM)}, 4
        s_cselect_b32 {sr(S_CNT)}, 15, 16""")
        for i in range(4): a(f"v_mov_b32 {vr(MXR+i)}, 0xff800000")
        a.label("L_fb1")
        for g in self.tile_groups(0): a(g)
        a("s_waitcnt vmcnt(0)")
        for x in self.k_reads(0): a(x)
        a("s_waitcnt lgkmcnt(0)")
        for m in self.qk_mfmas(0, czero=True): a(m)
        a("s_nop 7")
        for qb in range(4):
            for i in range(0, 8, 2): a(f"v_max3_f32 {vr(MXR+qb)}, {vr(MXR+qb)}, {vr(self.S(0,qb,i))}, {vr(self.S(0,qb,i+1))}")
        a(f"s_sub_u32 {sr(S_CNT)}, {sr(S_CNT)}, 1\ns_cmp_lg_u32 {sr(S_CNT)}, 0\ns_cbranch_scc1 L_fb1")
        self.greduce([MXR + i for i in range(4)], MXR + 4, "v_max_f32")
        a(f"""v_and_b32 {vr(MXR+4)}, 15, v0
        v_lshlrev_b32 {vr(MXR+4)}, 4, {vr(MXR+4)}
        v_add_u32 {vr(MXR+4)}, {L_SP}, {vr(MXR+4)}
        s_lshl_b32 {sr(T)}, {sr(S_W)}, 2
        v_add_u32 {vr(MXR+5)}, {sr(T)}, {vr(MXR+4)}""")
        for qb in range(4): a(f"ds_write_b32 {vr(MXR+5)}, {vr(MXR+qb)} offset:{256*qb}")
        a("s_waitcnt lgkmcnt(0)\ns_barrier")
        for qb in range(4): a(f"ds_read_b128 {vr(16+4*qb,4)}, {vr(MXR+4)} offset:{256*qb}")
        a(f"s_mov_b32 {sr(S_TOFF)}, {sr(S_LB)}")
        for g in self.tile_groups(0) + self.tile_groups(1): a(g)
        for i in range(144): a(f"v_accvgpr_write_b32 {ar(A_O+i)}, 0")
        a("s_waitcnt lgkmcnt(0)")
        for qb in range(4):
            r = 16 + 4 * qb
            a(f"v_max_f32 {vr(r)}, {vr(r)}, {vr(r+1)}\nv_max3_f32 {vr(r)}, {vr(r)}, {vr(r+2)}, {vr(r+3)}")
            for i in range(4): a(f"v_sub_f32 {vr(V_CI+4*qb+i)}, 0, {vr(r)}")
        for k in range(5): a(f"v_add_u32 {vr(V_HI+k)}, {2*SLOT}, {vr(V_KA+k)}")
        a("s_waitcnt vmcnt(9)\ns_barrier\ns_branch L_go")


if __name__ == "__main__":
    opt = json.loads(sys.argv[2]) if len(sys.argv) > 2 else {}
    g = G(opt)
    txt = g.build()
    if opt.get("align", 1):
        from align import align
        txt, st = align(txt)
        print("align: promoted %d, padded %d, left %d" % st)
    txt = txt.replace("\n", "\n; stamps " + json.dumps(g.stnames) + "\n", 1)
    open(sys.argv[1], "w").write(txt)
```

```python
import sys, json, math
from common import Asm, vr, ar, sr, kernel_header, kernel_desc
from lay import *

NAME = "standalone__conformer_family_branchformer__speech_kernel"
NWG = 254
RING = 4
LDS_RING = RING * TILE
LDS_TOTAL = 163840
SLOT = 4 * TILE
L_WQ, L_WK, L_WU = 0, 41984, 86016
L_XX, L_XR = 128000, 144384
L_QX, L_QR = 146432, 0
L_MX = 162816
L_PC = 163836 - 0
L_DUMP = 123904
L_SP = 147456

S_X, S_WS, S_XA, S_DB, S_W1, S_W2, S_OUT, S_DW = 8, 12, 16, 20, 24, 28, 32, 36
S_W, S_B, S_H, S_QB, S_TOFF, S_CNT, S_DUM, S_LB, S_TOWN, S_TSND, S_VAL, S_REDO = range(40, 52)
S_T = 52
S_ST = 76

V_KA, V_VA, V_VR, V_DMA, V_L, V_T = 1, 3, 5, 6, 9, 13
V_S, V_CI, V_P, V_K, V_V = 16, 80, 96, 128, 164
V_HI = 200
V_X = 208
A_O, A_Q, A_F = 0, 144, 216

LOG2E = 1.4426950408889634
import struct
def f32(x): return "0x%08x" % struct.unpack("<I", struct.pack("<f", x))[0]


class BAsm(Asm):
    def __init__(self):
        super().__init__()
        self.bg, self.every, self.cnt, self.skip = [], 0, 0, 0

    def __call__(self, s):
        for l in s.split("\n"):
            l = l.strip()
            if not l: continue
            self.lines.append("    " + l)
            if self.bg and self.every and not l.startswith(("s_nop", "v_mov_b32", "v_exp", "v_rcp", "v_rsq", "v_sqrt", "s_add_u32 m0")):
                self.cnt += 1
                if self.cnt >= self.every:
                    self.cnt = 0
                    self.pop()

    def pop(self):
        for x in self.bg.pop(0).split("\n"): self.lines.append("    " + x)

    def flush(self):
        while self.bg: self.pop()
        self.every = 0


class G:
    def __init__(self, opt):
        self.o = opt
        self.a = BAsm()
        self.nst = 0
        self.fill = []

    def stamp(self, name):
        if self.o.get("stamps"):
            if name in self.o.get("skipst", []): return
            if self.nst >= 13: return
            self.a(f"{'s_memtime' if self.o.get('cyc') else 's_memrealtime'} {sr(S_ST + 2*self.nst, 2)}")
            self.stnames.append(name)
            self.nst += 1

    def srd(self, dst, lo, hi, n):
        self.a(f"s_mov_b32 {sr(dst)}, {sr(lo)}\ns_mov_b32 {sr(dst+1)}, {sr(hi)}\ns_mov_b32 {sr(dst+2)}, {n}\ns_mov_b32 {sr(dst+3)}, 0x20000")

    def greduce(self, regs, tmp, op="v_add_f32"):
        a = self.a
        for sw in ("32", "16"):
            for i, r in enumerate(regs): a(f"v_mov_b32 {vr(tmp+i)}, {vr(r)}")
            if len(regs) < 3: a("s_nop 1" if len(regs) == 1 else "s_nop 0")
            for i, r in enumerate(regs): a(f"v_permlane{sw}_swap_b32 {vr(r)}, {vr(tmp+i)}")
            for i, r in enumerate(regs): a(f"{op} {vr(r)}, {vr(r)}, {vr(tmp+i)}")

    def treduce(self, r, op="v_add_f32"):
        a = self.a
        a(f"v_permlane32_swap_b32 {vr(r)}, {vr(r+2)}\nv_permlane32_swap_b32 {vr(r+1)}, {vr(r+3)}")
        a(f"{op} {vr(r)}, {vr(r)}, {vr(r+2)}\n{op} {vr(r+1)}, {vr(r+1)}, {vr(r+3)}\ns_nop 1")
        a(f"v_permlane16_swap_b32 {vr(r)}, {vr(r+1)}\n{op} {vr(r)}, {vr(r)}, {vr(r+1)}")

    def rbf(self, r):
        self.a(f"v_cvt_pk_bf16_f32 {vr(r)}, {vr(r)}, {vr(r)}\nv_lshlrev_b32 {vr(r)}, 16, {vr(r)}")

    def ln_tail(self, F, out, t, mimic):
        a = self.a
        p = lambda r: vr(r, 2)
        self.greduce([t, t + 1], t + 2)
        a(f"v_mul_f32 {vr(t+2)}, {f32(1.0/144)}, {vr(t)}")
        a(f"v_mul_f32 {vr(t+3)}, {vr(t+2)}, {vr(t+2)}")
        a(f"v_mov_b32 {vr(t+4)}, {f32(1.0/144)}")
        a(f"v_fma_f32 {vr(t)}, {vr(t+1)}, {vr(t+4)}, -{vr(t+3)}")
        a(f"v_max_f32 {vr(t)}, 0, {vr(t)}")
        if mimic:
            self.rbf(t)
            self.rbf(t + 2)
            a(f"v_add_f32 {vr(t)}, {f32(1e-5)}, {vr(t)}")
            self.rbf(t)
            a(f"v_sqrt_f32 {vr(t)}, {vr(t)}\ns_nop 0")
            self.rbf(t)
            a(f"v_rcp_f32 {vr(t)}, {vr(t)}\ns_nop 0")
        else:
            a(f"v_add_f32 {vr(t)}, {f32(1e-5)}, {vr(t)}")
            a(f"v_rsq_f32 {vr(t)}, {vr(t)}\ns_nop 0")
        a(f"v_mul_f32 {vr(t+2)}, -{vr(t+2)}, {vr(t)}")
        for i in range(18):
            a(f"v_pk_fma_f32 {p(F+2*i)}, {p(F+2*i)}, {p(t)}, {p(t+2)} op_sel_hi:[1,0,0]")
        for i in range(18):
            a(f"v_cvt_pk_bf16_f32 {vr(out+i)}, {vr(F+2*i)}, {vr(F+2*i+1)}")

    def ln_packed(self, X, F, out, t):
        a = self.a
        a(f"v_mov_b32 {vr(t+6)}, 0x3f803f80")
        for k in range(4): a(f"v_mov_b32 {vr(t+k)}, 0")
        for i in range(18):
            a(f"v_dot2_f32_bf16 {vr(t+2*(i&1))}, {vr(X+i)}, {vr(t+6)}, {vr(t+2*(i&1))}")
            a(f"v_dot2_f32_bf16 {vr(t+1+2*(i&1))}, {vr(X+i)}, {vr(X+i)}, {vr(t+1+2*(i&1))}")
        for i in range(2):
            a(f"v_lshlrev_b32 {vr(F+2*i)}, 16, {vr(X+i)}\nv_and_b32 {vr(F+2*i+1)}, 0xffff0000, {vr(X+i)}")
        a(f"v_pk_add_f32 {vr(t,2)}, {vr(t,2)}, {vr(t+2,2)}")
        un = []
        for i in range(2, 18):
            un.append(f"v_lshlrev_b32 {vr(F+2*i)}, 16, {vr(X+i)}\nv_and_b32 {vr(F+2*i+1)}, 0xffff0000, {vr(X+i)}")
        sv = (a.bg, a.every, a.cnt, a.skip)
        n0 = len(a.lines)
        a.bg, a.every = [], 0
        self.ln_tail(F, out, t, True)
        tail = a.lines[n0:]
        del a.lines[n0:]
        a.bg, a.every, a.cnt, a.skip = sv
        k = next(i for i, l in enumerate(tail) if "v_pk_fma" in l)
        for i, l in enumerate(tail[:k]):
            if "s_nop" in l and un: continue_nop = True
            a(l)
            if un and not l.strip().startswith("s_nop"): a(un.pop(0))
        while un: a(un.pop(0))
        for l in tail[k:]: a(l)

    def ln_f32(self, F, out, t):
        a = self.a
        p = lambda r: vr(r, 2)
        a(f"v_pk_add_f32 {p(t)}, {p(F)}, {p(F+2)}\nv_pk_add_f32 {p(t+2)}, {p(F+4)}, {p(F+6)}")
        a(f"v_pk_mul_f32 {p(t+4)}, {p(F)}, {p(F)}\nv_pk_mul_f32 {p(t+6)}, {p(F+2)}, {p(F+2)}")
        for i in range(2, 18):
            if i >= 4: a(f"v_pk_add_f32 {p(t+2*(i&1))}, {p(t+2*(i&1))}, {p(F+2*i)}")
            a(f"v_pk_fma_f32 {p(t+4+2*(i&1))}, {p(F+2*i)}, {p(F+2*i)}, {p(t+4+2*(i&1))}")
        a(f"v_pk_add_f32 {p(t)}, {p(t)}, {p(t+2)}\nv_pk_add_f32 {p(t+4)}, {p(t+4)}, {p(t+6)}")
        a(f"v_add_f32 {vr(t)}, {vr(t)}, {vr(t+1)}\nv_add_f32 {vr(t+1)}, {vr(t+4)}, {vr(t+5)}")
        self.ln_tail(F, out, t, False)

    def gemm_u(self, AF, rf, Bs, ACC, afr, bfr, post, vm_items=(), other=(), lead=7):
        a = self.a
        units = [(0, j) for j in range(4)] + [(1, j) for j in range(4)] + [(2, 0)]
        seq, dl = [], {}
        rem = lambda u: (f"v_mfma_f32_16x16x16_bf16 {vr(ACC+4*u,4)}, {rf(AF+18*units[u][0]+16,2)}, {vr(Bs[units[u][1]]+16,2)}, {vr(ACC+4*u,4)}", u)
        A = [afr(t) for t in range(3)]
        Bf = [bfr(j) for j in range(4)]

        def use(t, j, s, k):
            for x in (A[t][2 * s:2 * s + 2] if s < 4 else A[t][8:]) + ([Bf[j][s]] if Bf[j] else []): dl.setdefault(x, k)
        for g in range(4):
            for s in range(4):
                for u in range(3 * g, 3 * g + 3) if g < 3 else []:
                    t, j = units[u]
                    d = vr(ACC + 4 * u, 4)
                    use(t, j, s, len(seq))
                    seq.append((f"v_mfma_f32_16x16x32_bf16 {d}, {rf(AF+18*t+4*s,4)}, {vr(Bs[j]+4*s,4)}, {'0' if s == 0 else d}", None))
                if s == 0 and g > 0:
                    for u in range(3 * g - 3, 3 * g):
                        use(units[u][0], units[u][1], 4, len(seq)); seq.append(rem(u))
        last = seq[-3:]; seq = seq[:-3]
        ds = sorted(dl.items(), key=lambda e: e[1]) + [(x, 99) for x in other]
        vm_items = list(vm_items)
        order, ready, q, done = [], [], [], 0

        def issue():
            x, k_ = ds.pop(0); a(x); order.append(k_)

        def wait(k):
            nonlocal done
            idx = [i_ for i_, k_ in enumerate(order) if k_ <= k]
            if idx and max(idx) + 1 > done:
                a(f"s_waitcnt lgkmcnt({min(15, len(order) - 1 - max(idx))})"); done = max(idx) + 1
        while ds and ds[0][1] < 6: issue()
        for k, (m, fin) in enumerate(seq):
            assert not ds or ds[0][1] > k, (k, ds[0])
            wait(k)
            a(m)
            for u_, kk in list(ready):
                if k - kk >= 4: q += post(u_); ready.remove((u_, kk))
            if fin is not None: ready.append((fin, k))
            due = sum(1 for x, k_ in ds if k_ <= k + lead)
            if due == 0 and vm_items and k % 2 == 1:
                a(vm_items.pop(0)); continue
            cap = 2
            for _ in range(min(due, 3)): issue(); cap -= 1
            if cap == 2:
                if q and q[0].startswith("ds_"): a(q.pop(0)); order.append(99); cap -= 1
                elif ds: issue(); cap -= 1
            while cap > 0 and q and not q[0].startswith("ds_"):
                a(q.pop(0)); cap -= 1
        assert not ready
        while ds: issue()
        wait(98)
        for x in vm_items: a(x)
        for x in q[:4]: a(x)
        a(f"s_nop {max(0, 4 - len(q[:4]))}")
        for m, _ in last: a(m)
        for x in q[4:]: a(x)
        a(f"s_nop {max(0, 6 - len(q[4:]))}")
        for u in range(6, 9):
            for x in post(u): a(x)

    def gemm(self, reads, B, ACC, AF, late=()):
        a = self.a
        buf = lambda T: 18 * (T % 6)

        def grp(g):
            r = [reads(T, buf(T)) for T in range(3 * g, 3 * g + 3)]
            return [r[t][2 * s + u] for s in range(4) for t in range(3) for u in range(2)] + [r[t][8] for t in range(3)]
        rem = lambda T: f"v_mfma_f32_16x16x16_bf16 {vr(ACC+4*T,4)}, {ar(buf(T)+16,2)}, {vr(B+16,2)}, {vr(ACC+4*T,4)}"
        pend = grp(0) + grp(1) + grp(2) + list(late)
        issued = 0

        def issue(n):
            nonlocal issued
            for _ in range(n):
                if issued < len(pend): a(pend[issued]); issued += 1
        issue(self.o.get('look', 12))
        for g in range(3):
            for s in range(4):
                need = 27 * g + 6 * (s + 1)
                a(f"s_waitcnt lgkmcnt({min(15, issued - need)})")
                for T in range(3 * g, 3 * g + 3):
                    d = vr(ACC + 4 * T, 4)
                    a(f"v_mfma_f32_16x16x32_bf16 {d}, {ar(buf(T)+4*s,4)}, {vr(B+4*s,4)}, {'0' if s == 0 else d}")
                    issue(2)
                if s == 0 and g > 0:
                    for T in range(3 * g - 3, 3 * g):
                        a(rem(T)); issue(2)
        issue(99)
        a(f"s_waitcnt lgkmcnt({len(late)})\ns_nop 2")
        for T in range(6, 9): a(rem(T))
        a("s_nop 7")

    def tr_reads(self, ad, rf=ar):
        def f(T, dst):
            out = []
            for s in range(4):
                for u in range(2):
                    out.append(f"ds_read_b64_tr_b16 {rf(dst+4*s+2*u,2)}, {vr(ad+u)} offset:{9216*s + 32*T}")
            out.append(f"ds_read_b64_tr_b16 {rf(dst+16,2)}, {vr(ad+2)} offset:{36864 + 32*T}")
            return out
        return f

    def row_reads(self, ad, sw=None):
        def f(T, dst):
            r = ad if sw is None or T == 8 else sw[T & 1]
            out = []
            for s in range(4):
                for u in range(2):
                    out.append(f"ds_read_b64 {ar(dst+4*s+2*u,2)}, {vr(r)} offset:{4864*T + 64*s + 32*u}")
            out.append(f"ds_read_b64 {ar(dst+16,2)}, {vr(r)} offset:{4864*T + 256}")
            return out
        return f

    def dma_rows(self, jobs, cpr, rstride, vo, vc, n_first, first_waves, lab):
        a = self.a
        mul = {18: 3641, 19: 3450}[cpr]
        dr, dc = 256 // cpr, 256 % cpr
        a(f"s_lshl_b32 {sr(S_T)}, {sr(S_W)}, 6")
        a(f"v_add_u32 {vr(vc)}, {sr(S_T)}, v0")
        a(f"v_mul_u32_u24 {vr(vo)}, {mul}, {vr(vc)}")
        a(f"v_lshrrev_b32 {vr(vo)}, 16, {vr(vo)}")
        a(f"v_mul_u32_u24 {vr(vc+1)}, {cpr}, {vr(vo)}")
        a(f"v_sub_u32 {vr(vc)}, {vr(vc)}, {vr(vc+1)}")
        a(f"v_mul_u32_u24 {vr(vo)}, {rstride}, {vr(vo)}")
        a(f"v_lshl_add_u32 {vr(vo)}, {vr(vc)}, 4, {vr(vo)}")
        a(f"s_lshl_b32 {sr(S_T)}, {sr(S_W)}, 10")
        a(f"v_mov_b32 {vr(vc+1)}, {rstride - 16*cpr}")
        for k in range(n_first):
            if k == n_first - 1:
                a(f"s_cmp_ge_u32 {sr(S_W)}, {first_waves}\ns_cbranch_scc1 {lab}")
            for srd, so, lb in jobs:
                a(f"s_add_u32 m0, {sr(S_T)}, {lb + 4096*k}")
                a("s_nop 0")
                a(f"buffer_load_dwordx4 {vr(vo)}, {sr(srd,4)}, {so} offen lds")
            if k < n_first - 1:
                a(f"v_add_u32 {vr(vc)}, {dc}, {vr(vc)}")
                a(f"v_cmp_le_u32 vcc, {cpr}, {vr(vc)}")
                a(f"v_add_u32 {vr(vo)}, {dr*rstride + 16*dc}, {vr(vo)}")
                a(f"v_subrev_u32 {vr(vc+2)}, {cpr}, {vr(vc)}")
                a(f"v_cndmask_b32 {vr(vc)}, {vr(vc)}, {vr(vc+2)}, vcc")
                a(f"v_cndmask_b32 {vr(vc+2)}, 0, {vr(vc+1)}, vcc")
                a(f"v_add_u32 {vr(vo)}, {vr(vo)}, {vr(vc+2)}")
        a.label(lab)

    def voff_table(self, dst, cpr, rstride, vc):
        a = self.a
        mul = {18: 29128, 19: 27595}[cpr]
        a(f"s_mov_b32 {sr(S_T)}, {rstride - 16*cpr}")
        a(f"v_mul_u32_u24 {vr(dst)}, {mul}, {vr(vc)}")
        for k in range(1, 11): a(f"v_add_u32 {vr(dst+k)}, {(256*k % cpr)*mul}, {vr(dst)}")
        for k in range(11): a(f"v_lshrrev_b32 {vr(dst+k)}, 19, {vr(dst+k)}")
        for k in range(11): a(f"v_mad_i32_i24 {vr(dst+k)}, {vr(dst+k)}, {sr(S_T)}, {vr(vc+1)}")

    def dma_lin(self, srd, soff, lb, v16, lab):
        a = self.a
        a(f"s_lshl_b32 {sr(S_T)}, {sr(S_W)}, 10")
        for k in range(11):
            if k == 10:
                a(f"s_cmp_ge_u32 {sr(S_W)}, 1\ns_cbranch_scc1 {lab}")
            a(f"s_add_u32 m0, {sr(S_T)}, {lb + 4096*k}")
            a(f"s_add_u32 {sr(S_T+1)}, {sr(S_T)}, {soff + 4096*k}")
            a(f"buffer_load_dwordx4 {vr(v16)}, {sr(srd,4)}, {sr(S_T+1)} offen lds")
        a.label(lab)

    def tr_addr(self, ad, base, swapped, t):
        a = self.a
        a(f"v_lshrrev_b32 {vr(t)}, 2, v0")
        a(f"v_mul_u32_u24 {vr(t)}, 288, {vr(t)}")
        a(f"v_and_b32 {vr(t+1)}, 3, v0")
        a(f"v_lshl_add_u32 {vr(t)}, {vr(t+1)}, 3, {vr(t)}")
        a(f"v_add_u32 {vr(ad+2)}, {base}, {vr(t)}")
        if swapped:
            a(f"v_bfe_u32 {vr(t)}, v0, 4, 1")
            a(f"v_mul_u32_u24 {vr(t)}, {16*288}, {vr(t)}")
            a(f"v_add_u32 {vr(ad)}, {vr(ad+2)}, {vr(t)}")
            a(f"v_sub_u32 {vr(ad+1)}, {vr(ad+2)}, {vr(t)}")
            a(f"v_add_u32 {vr(ad+1)}, {16*288}, {vr(ad+1)}")
        else:
            a(f"v_mov_b32 {vr(ad)}, {vr(ad+2)}")
            a(f"v_add_u32 {vr(ad+1)}, {16*288}, {vr(ad+2)}")

    def row_addr(self, ad, base, t):
        a = self.a
        a(f"v_and_b32 {vr(t)}, 15, v0")
        a(f"v_mul_u32_u24 {vr(t)}, 304, {vr(t)}")
        a(f"v_lshrrev_b32 {vr(t+1)}, 4, v0")
        a(f"v_lshl_add_u32 {vr(t)}, {vr(t+1)}, 3, {vr(t)}")
        a(f"v_add_u32 {vr(ad)}, {base}, {vr(t)}")

    def store_block(self, src, v16, v8, srd, soff, soff2, flags=""):
        a = self.a
        for s in range(4):
            a(f"buffer_store_dwordx4 {vr(src+4*s,4)}, {vr(v16)}, {sr(srd,4)}, {sr(soff)} offen offset:{1024*s} {flags}")
        a(f"buffer_store_dwordx2 {vr(src+16,2)}, {vr(v8)}, {sr(srd,4)}, {sr(soff2)} offen {flags}")

    def entry(self):
        a = self.a
        kernel_header(a, NAME)
        a(f"s_load_dwordx4 s[56:59], s[0:1], 0")
        a(f"s_getpc_b64 {sr(S_W1,2)}")
        a.label("L_pf")
        a(f"""s_mov_b32 {sr(S_W1+2)}, L_dummy-L_pf
        s_mov_b32 {sr(S_W1+3)}, 0x20000
        v_lshlrev_b32 v1, 4, v0
        s_bfe_u32 {sr(S_T)}, s2, 0x30003
        s_lshl_b32 {sr(S_T)}, {sr(S_T)}, 12
        buffer_load_dwordx4 v[252:255], v1, {sr(S_W1,4)}, 0 offen
        buffer_load_dwordx4 v[252:255], v1, {sr(S_W1,4)}, {sr(S_T)} offen""")
        a(f"s_cmp_ge_u32 s2, {NWG}\ns_cbranch_scc1 L_end")
        self.stamp("start")
        a(f"s_load_dwordx4 s[60:63], s[0:1], 80")
        a(f"s_load_dwordx4 s[64:67], s[0:1], 40")
        a(f"s_load_dwordx4 s[68:71], s[0:1], 16")
        a(f"s_load_dwordx4 s[72:75], s[0:1], 64")
        a(f"v_lshrrev_b32 v1, 6, v0")
        a(f"s_and_b32 {sr(S_H)}, s2, 1")
        a(f"v_readfirstlane_b32 {sr(S_W)}, v1")
        a(f"s_bfe_u32 {sr(S_B)}, s2, 0x10001")
        a(f"s_lshr_b32 {sr(S_QB)}, s2, 2")
        a(f"v_and_b32 v0, 63, v0")
        a(f"v_lshlrev_b32 {vr(V_DMA)}, 4, v0")
        a(f"s_cmp_ge_u32 s2, 252\ns_cbranch_scc1 L_wfuse")

    def phase_a(self):
        a, o = self.a, self.o
        XR, XF, XA, ACC = 16, 34, 146, 110
        B4, XD, G_ = 16, 88, 16
        VS, VSW, VR4, MXA, MXR, L8, TRU, TRQ, TRQ8, RK, TM = 200, 204, 208, 212, 213, 214, 215, 218, 221, 224, 242
        VK, VU = 182, 228
        t0, t1, t2 = 250, 251, 241
        AQ1 = 200
        L_QR2 = L_XR + 0
        T = S_T
        WV = S_T + 20
        L_XS = L_WU
        a(f"""s_lshl_b32 {sr(T)}, {sr(S_QB)}, 1
        s_add_u32 {sr(S_TOWN)}, {sr(T)}, {sr(S_H)}
        s_xor_b32 {sr(S_TSND)}, {sr(S_TOWN)}, 1
        s_cmp_lt_u32 {sr(S_TOWN)}, {NT}
        s_cselect_b32 {sr(S_VAL)}, 1, 0
        s_cmp_lt_u32 {sr(S_W)}, 2
        s_cselect_b32 {sr(T+3)}, {sr(S_TSND)}, {sr(S_TOWN)}
        s_mul_i32 {sr(T)}, {sr(S_B)}, {NT}
        s_add_u32 {sr(S_TOWN)}, {sr(S_TOWN)}, {sr(T)}
        s_add_u32 {sr(S_TSND)}, {sr(S_TSND)}, {sr(T)}
        s_add_u32 {sr(T+1)}, {sr(T+3)}, {sr(T)}
        s_lshl_b32 {sr(T+1)}, {sr(T+1)}, 1
        s_and_b32 {sr(T+2)}, {sr(S_W)}, 1
        s_add_u32 {sr(T+2)}, {sr(T+1)}, {sr(T+2)}
        s_mul_i32 {sr(T+1)}, {sr(T+2)}, {16*288}
        s_mul_i32 {sr(S_LB)}, {sr(S_W)}, 5120
        s_add_u32 {sr(S_LB)}, {sr(S_LB)}, {L_XS}
        s_mov_b32 m0, {sr(S_LB)}
        s_mov_b32 {sr(S_X+2)}, 2304000
        s_mov_b32 {sr(S_X+3)}, 0x20000
        s_add_u32 {sr(S_CNT)}, {sr(T+1)}, 4096
        s_waitcnt lgkmcnt(0)
        s_mov_b32 {sr(S_X)}, s56
        s_mov_b32 {sr(S_X+1)}, s57""")
        for k in range(4): a(f"buffer_load_dwordx4 {vr(V_DMA)}, {sr(S_X,4)}, {sr(T+1)} offen offset:{1024*k} lds")
        a(f"s_add_u32 m0, {sr(S_LB)}, 4096\ns_mov_b32 exec_hi, 0\nbuffer_load_dwordx4 {vr(V_DMA)}, {sr(S_X,4)}, {sr(S_CNT)} offen lds\ns_mov_b32 exec_hi, -1")
        self.stamp("xiss")
        SQ, SK, SU = S_W2, S_W1, S_XA
        self.srd(SQ, 58, 59, 41472)
        self.srd(SK, 68, 69, 41472)
        self.srd(SU, 64, 65, 82944)
        a(f"s_lshr_b32 {sr(T)}, s2, 3\ns_lshl_b32 {sr(T)}, {sr(T)}, 2\ns_add_u32 {sr(T)}, {sr(T)}, {sr(S_W)}")
        npf = 3
        for srd_, rot in ((SQ, 0), (SK, 87), (SU, 46)):
            a(f"s_add_u32 {sr(T+1)}, {sr(T)}, {rot}\ns_and_b32 {sr(T+1)}, {sr(T+1)}, 127\ns_lshl_b32 {sr(T+1)}, {sr(T+1)}, 10")
            a(f"buffer_load_dwordx4 v[252:255], {vr(V_DMA)}, {sr(srd_,4)}, {sr(T+1)} offen")
        self.srd(S_OUT, 74, 75, 2304000)
        if o.get("touch"):
            self.srd(S_WS, 62, 63, WS_END)
            self.srd(S_DB, 60, 61, 256)
            step = o["touch"]
            a(f"v_mul_u32_u24 v250, {step}, v0\nv_mov_b32 v251, 0")
            a(f"buffer_load_dword v252, v250, {sr(S_WS,4)}, 0 offen sc1")
            a(f"buffer_load_dword v252, v250, {sr(S_OUT,4)}, 0 offen sc1")
            a(f"buffer_load_dword v252, v251, {sr(S_DB,4)}, 0 offen offset:252 sc1")
            npf += 3
        a(f"s_cmp_lt_u32 {sr(T+3)}, {NT}\ns_cselect_b32 {sr(WV)}, 1, 0\ns_mov_b32 {sr(WV+1)}, {sr(T+2)}")
        W10, UOFF, M1, M3, PUB, W12 = S_T + 22, S_T + 23, S_T + 18, S_T + 19, S_T + 6, S_T + 7
        a(f"""s_lshl_b32 {sr(W10)}, {sr(S_W)}, 10
        s_mul_i32 {sr(UOFF)}, {sr(S_H)}, 288
        s_cmp_eq_u32 {sr(S_W)}, 0
        s_cselect_b32 {sr(M1)}, 0, {L_DUMP}
        s_cmp_lt_u32 {sr(S_W)}, 3
        s_cselect_b32 {sr(M3)}, {sr(W10)}, {L_DUMP}
        s_lshl_b32 {sr(W12)}, {sr(S_W)}, 12""")
        gq = []
        for c in range(6):
            for k in range(4 if c < 5 else 1):
                g_ = f"buffer_load_dwordx4 {vr(V_DMA)}, {sr(SQ,4)}, {sr(S_CNT)} offen offset:{1024*k} lds"
                if k == 0: g_ = f"s_add_u32 m0, {sr(W12 if c < 5 else M1)}, {L_WQ + 8192*c}\ns_add_u32 {sr(S_CNT)}, {sr(W12)}, {8192*c}\n" + g_
                gq.append(g_)
        gk = [f"s_add_u32 m0, {sr(W10 if k < 10 else M3)}, {L_WK + 4096*k}\ns_mov_b32 {sr(S_CNT)}, {4096*k - 16*(256*k//19)}\nbuffer_load_dwordx4 {vr(VK+k)}, {sr(SK,4)}, {sr(S_CNT)} offen lds" for k in range(11)]
        gu = [f"s_add_u32 m0, {sr(W10 if k < 10 else M1)}, {L_WU + 4096*k}\ns_add_u32 {sr(S_CNT)}, {sr(UOFF)}, {4096*k + 288*(256*k//18)}\nbuffer_load_dwordx4 {vr(VU+k)}, {sr(SU,4)}, {sr(S_CNT)} offen lds" for k in range(11)]
        npre = o.get("npre", 8)
        a(f"s_cmp_ge_u32 {sr(S_W)}, 2\ns_cbranch_scc1 L_pre1")
        for g_ in gq[:npre]: a(g_)
        a.label("L_pre1")
        a(f"s_lshl_b32 {sr(T)}, {sr(S_W)}, 6\nv_add_u32 {vr(t0)}, {sr(T)}, v0\nv_lshlrev_b32 {vr(t1)}, 4, {vr(t0)}")
        self.voff_table(VK, 19, 288, t0)
        self.voff_table(VU, 18, 576, t0)
        self.srd(S_WS, 62, 63, WS_END)
        self.srd(S_DB, 60, 61, 256)
        self.srd(S_DW, 66, 67, 864)
        xa0, xa1, xa2 = TM, TM + 1, TM + 2
        a(f"""v_and_b32 {vr(t0)}, 15, v0
        v_lshrrev_b32 {vr(t1)}, 5, v0
        v_lshlrev_b32 {vr(t1)}, 3, {vr(t1)}
        v_xor_b32 {vr(t1)}, {vr(t0)}, {vr(t1)}
        v_lshlrev_b32 {vr(t1)}, 4, {vr(t1)}
        v_lshrrev_b32 {vr(t2)}, 4, v0
        v_lshl_add_u32 {vr(V_KA)}, {vr(t2)}, 9, {vr(t1)}
        v_lshrrev_b32 {vr(t1)}, 3, {vr(t0)}
        v_lshlrev_b32 {vr(t1)}, 1, {vr(t1)}
        v_xor_b32 {vr(t1)}, {vr(t2)}, {vr(t1)}
        v_lshl_add_u32 {vr(t1)}, {vr(t0)}, 2, {vr(t1)}
        v_lshlrev_b32 {vr(V_KA+1)}, 3, {vr(t1)}
        v_lshlrev_b32 {vr(L8)}, 3, v0
        v_lshlrev_b32 {vr(MXR)}, 4, {vr(t0)}
        v_add_u32 {vr(MXR)}, {L_MX}, {vr(MXR)}
        v_add_u32 {vr(MXA)}, {sr(S_W)}, {vr(t2)}
        v_and_b32 {vr(MXA)}, 3, {vr(MXA)}
        v_lshl_add_u32 {vr(MXA)}, {vr(MXA)}, 8, {vr(MXR)}
        s_lshl_b32 {sr(T)}, {sr(S_W)}, 2
        v_add_u32 {vr(MXA)}, {sr(T)}, {vr(MXA)}
        v_mul_u32_u24 {vr(xa2)}, 288, {vr(t0)}
        v_lshl_add_u32 {vr(xa2)}, {vr(t2)}, 3, {vr(xa2)}
        v_add_u32 {vr(xa2)}, {sr(S_LB)}, {vr(xa2)}
        v_and_b32 {vr(t1)}, 1, {vr(t2)}
        v_lshlrev_b32 {vr(t1)}, 5, {vr(t1)}
        v_add_u32 {vr(xa0)}, {vr(xa2)}, {vr(t1)}
        v_xor_b32 {vr(t1)}, 32, {vr(t1)}
        v_add_u32 {vr(xa1)}, {vr(xa2)}, {vr(t1)}
        s_mul_i32 {sr(S_LB)}, {sr(S_W)}, {TILE}
        v_lshrrev_b32 {vr(t0)}, 2, v0
        v_bfe_u32 {vr(t1)}, v0, 1, 1
        v_lshlrev_b32 {vr(t1)}, 3, {vr(t1)}
        v_xor_b32 {vr(t1)}, {vr(t0)}, {vr(t1)}
        v_lshlrev_b32 {vr(t1)}, 4, {vr(t1)}
        v_and_b32 {vr(t2)}, 3, v0
        v_lshl_add_u32 {vr(t1)}, {vr(t2)}, 9, {vr(t1)}
        v_and_b32 {vr(V_VA)}, 1, v0
        v_lshl_add_u32 {vr(t1)}, {vr(V_VA)}, 3, {vr(t1)}
        v_add_u32 {vr(V_VA)}, {sr(S_LB)}, {vr(t1)}
        v_xor_b32 {vr(V_VA+1)}, 8, {vr(V_VA)}
        v_lshrrev_b32 {vr(t1)}, 5, v0
        v_lshlrev_b32 {vr(t1)}, 1, {vr(t1)}
        v_xor_b32 {vr(t1)}, {vr(t2)}, {vr(t1)}
        v_lshl_add_u32 {vr(t1)}, {vr(t0)}, 2, {vr(t1)}
        v_lshlrev_b32 {vr(t1)}, 3, {vr(t1)}
        v_add_u32 {vr(V_VR)}, {sr(S_LB)}, {vr(t1)}
        v_add_u32 {vr(V_DMA+1)}, 4096, {vr(V_DMA)}
        v_add_u32 {vr(V_DMA+2)}, 8192, {vr(V_DMA)}""")
        self.tr_addr(TRU, L_WU, True, t0)
        a(f"s_lshl_b32 {sr(T)}, {sr(S_W)}, 6\ns_sub_u32 {sr(T)}, {sr(T)}, {L_WU - L_WQ}")
        for k in range(3):
            a(f"v_add_u32 {vr(TRQ+k)}, {sr(T)}, {vr(TRU+k)}\nv_subrev_u32 {vr(TRQ8+k)}, {L_WU - L_WQ - 256}, {vr(TRU+k)}")
        self.row_addr(RK + 2, L_WK + 8 * 4864, t0)
        a(f"""s_mul_i32 {sr(T)}, {sr(S_W)}, {2*4864}
        s_sub_u32 {sr(T)}, {sr(T)}, {8*4864}
        v_add_u32 {vr(t1)}, {sr(T)}, {vr(RK+2)}
        v_bfe_u32 {vr(t0)}, v0, 2, 1
        v_mul_u32_u24 {vr(t0)}, 4864, {vr(t0)}
        v_add_u32 {vr(RK)}, {vr(t1)}, {vr(t0)}
        v_sub_u32 {vr(RK+1)}, {vr(t1)}, {vr(t0)}""")
        for j in range(4):
            a(f"""s_add_u32 {sr(T)}, {sr(S_W)}, {j}
            s_and_b32 {sr(T)}, {sr(T)}, 3
            s_lshl_b32 {sr(T+1)}, {sr(T)}, 12
            s_add_u32 {sr(T+1)}, {sr(T+1)}, {L_XX}
            v_add_u32 {vr(VS+j)}, {sr(T+1)}, {vr(V_DMA)}
            s_lshl_b32 {sr(T+1)}, {sr(T)}, 9
            s_add_u32 {sr(T+1)}, {sr(T+1)}, {L_XR}
            v_add_u32 {vr(VR4+j)}, {sr(T+1)}, {vr(L8)}
            v_add_u32 {vr(VSW+j)}, {sr(W10)}, {vr(VS+j)}""")
        a(f"""s_sub_u32 {sr(T+2)}, 63, {sr(S_H)}
        s_add_u32 {sr(T+3)}, {sr(S_W)}, 60
        s_cmp_ge_u32 {sr(T+3)}, {sr(T+2)}
        s_cselect_b32 {sr(S_DUM)}, 4, 99
        s_mov_b32 {sr(S_REDO)}, 0
        s_mov_b32 {sr(S_TOFF)}, {sr(S_LB)}
        v_mov_b32 {vr(t0)}, {L_MX}
        v_mov_b32 {vr(t1)}, 0
        ds_write_b32 {vr(t0)}, {vr(t1)}
        s_sub_u32 {sr(T)}, {sr(S_TOWN)}, 63
        s_mul_i32 {sr(T+1)}, {sr(S_B)}, {NT}
        s_cmp_ge_i32 {sr(T)}, {sr(T+1)}
        s_cselect_b32 {sr(T)}, 64, 0
        s_lshl_b32 {sr(T+1)}, {sr(S_B)}, 7
        s_add_u32 {sr(PUB)}, {sr(T)}, {sr(T+1)}""")
        self.stamp("pre")

        def xread():
            for s in range(4):
                a(f"ds_read_b64 {vr(XR+4*s,2)}, {vr(xa0)} offset:{64*s}\nds_read_b64 {vr(XR+4*s+2,2)}, {vr(xa1)} offset:{64*s}")
            a(f"ds_read_b64 {vr(XR+16,2)}, {vr(xa2)} offset:256")
        xw = [f"ds_write_b128 {vr(VS)}, {vr(XA+4*s,4)} offset:{1024*s}" for s in range(4)] + [f"ds_write_b64 {vr(VR4)}, {vr(XA+16,2)}"]
        a(f"s_cmp_lt_u32 {sr(S_W)}, 2\ns_cbranch_scc1 L_lnB")
        a(f"s_waitcnt vmcnt({npf})")
        self.stamp("xarr")
        xread()
        a(f"""s_and_b32 {sr(T)}, {sr(S_W)}, 1
        s_mul_i32 {sr(T+2)}, {sr(S_TOWN)}, {TILE}
        s_cmp_eq_u32 {sr(S_VAL)}, 1
        s_cselect_b32 {sr(T+2)}, {sr(T+2)}, 0x40000000
        s_lshl_b32 {sr(T+3)}, {sr(T)}, 8
        s_add_u32 {sr(T+3)}, {sr(T+3)}, {sr(T+2)}
        s_add_u32 {sr(T+4)}, {sr(T+3)}, 4096
        s_lshl_b32 {sr(T+5)}, {sr(T)}, 9
        s_add_u32 {sr(T+5)}, {sr(T+5)}, {sr(T+2)}
        s_add_u32 {sr(T+5)}, {sr(T+5)}, 8192
        s_waitcnt lgkmcnt(0)""")
        self.ln_packed(XR, XF, XA, TM)
        for s in range(4):
            a(f"buffer_store_dwordx4 {vr(XA+4*s,4)}, {vr(V_KA)}, {sr(S_WS,4)}, {sr(T+3+(s>>1))} offen offset:{2048*(s&1)} sc1")
        a(f"buffer_store_dwordx2 {vr(XA+16,2)}, {vr(V_KA+1)}, {sr(S_WS,4)}, {sr(T+5)} offen sc1")
        for x in xw: a(x)
        a("s_branch L_bar1")
        a.label("L_lnB")
        a(f"s_waitcnt vmcnt({npf + npre})")
        xread()
        nmid = o.get("nmid", 3)
        for g_ in gq[npre:npre + nmid]: a(g_)
        a("s_waitcnt lgkmcnt(0)")
        a.bg, a.every, a.cnt = gq[npre + nmid:], o.get("evln", 8), 0
        self.ln_packed(XR, XF, XA, TM)
        a.flush()
        for x in xw: a(x)
        a(f"""s_mul_i32 {sr(T)}, s2, {IB}
        s_mul_i32 {sr(T+1)}, {sr(S_W)}, 5120
        s_add_u32 {sr(T)}, {sr(T)}, {sr(T+1)}
        s_add_u32 {sr(T)}, {sr(T)}, {WS_IB}
        s_add_u32 {sr(T+1)}, {sr(T)}, 4096""")
        for i in range(4): a(f"v_mov_b32 {vr(XR+i)}, -1")
        for i in range(4): a(f"buffer_store_dwordx4 {vr(XR,4)}, {vr(V_DMA)}, {sr(S_WS,4)}, {sr(T)} offen offset:{1024*i} sc1")
        a(f"buffer_store_dwordx4 {vr(XR,4)}, {vr(V_DMA)}, {sr(S_WS,4)}, {sr(T+1)} offen sc1")
        a.label("L_bar1")
        self.stamp("pub")
        n1 = o.get("n1", 4)
        for g_ in gk[:n1]: a(g_)
        a(f"v_add_u32 {vr(V_KA)}, {sr(S_LB)}, {vr(V_KA)}\nv_add_u32 {vr(V_KA+1)}, {sr(S_LB)}, {vr(V_KA+1)}")
        a(f"s_waitcnt vmcnt({5 + n1}) lgkmcnt(0)\ns_barrier")
        self.stamp("bar1")

        def a_tr(t):
            ad, off = (TRQ, 32 * t) if t < 2 else (TRQ8, 0)
            return [f"ds_read_b64_tr_b16 {ar(AQ1+18*t+4*s+2*u,2)}, {vr(ad+u)} offset:{9216*s + off}" for s in range(4) for u in range(2)] + \
                   [f"ds_read_b64_tr_b16 {ar(AQ1+18*t+16,2)}, {vr(ad+2)} offset:{36864 + off}"]

        def a_row(t):
            off = 4864 * t if t < 2 else 0
            return [f"ds_read_b64 {ar(A_Q+18*t+4*s+2*u,2)}, {vr(RK+t)} offset:{off + 64*s + 32*u}" for s in range(4) for u in range(2)] + \
                   [f"ds_read_b64 {ar(A_Q+18*t+16,2)}, {vr(RK+t)} offset:{off + 256}"]
        bq = lambda j: [f"ds_read_b128 {vr(B4+18*j+4*s,4)}, {vr(VS+j)} offset:{1024*s}" for s in range(4)] + [f"ds_read_b64 {vr(B4+18*j+16,2)}, {vr(VR4+j)}"]

        PK = 164

        def post1(u):
            L = [f"v_cvt_pk_bf16_f32 {vr(PK + (4*(u&3) + 2*(u>>2) if u < 8 else 16) + h)}, {vr(ACC+4*u+2*h)}, {vr(ACC+4*u+2*h+1)}" for h in range(2)]
            return L
        xd = [f"ds_read_b128 {vr(XD+4*j,4)}, {vr(VSW+j)}" for j in range(4)]
        self.gemm_u(AQ1, ar, [XA, B4 + 18, B4 + 36, B4 + 54], ACC, a_tr, lambda j: bq(j) if j else None, post1, vm_items=gk[n1:], other=xd)
        a(f"""v_mov_b32 {vr(t0)}, 0x40000000
        v_mov_b32 {vr(t1)}, 1
        s_mov_b64 exec, 1
        s_cmp_lt_u32 {sr(S_W)}, 2
        s_cbranch_scc1 L_sig
        s_cmp_eq_u32 {sr(S_VAL)}, 0
        s_cbranch_scc1 L_sig
        s_waitcnt vmcnt(11)
        v_mov_b32 {vr(t2)}, {L_MX}
        ds_add_rtn_u32 {vr(t2)}, {vr(t2)}, {vr(t1)}
        s_waitcnt lgkmcnt(0)
        v_readfirstlane_b32 {sr(T+1)}, {vr(t2)}
        s_cmp_eq_u32 {sr(T+1)}, 1
        s_cselect_b32 {sr(T)}, {sr(PUB)}, 0x40000000
        v_mov_b32 {vr(t0)}, {sr(T)}""")
        a.label("L_sig")
        a(f"buffer_atomic_add {vr(t1)}, {vr(t0)}, {sr(S_DB,4)}, 0 offen sc1\ns_mov_b64 exec, -1")
        self.stamp("sig")
        a("s_waitcnt lgkmcnt(0)\ns_barrier")
        for j in range(4): a(f"ds_write_b128 {vr(VSW+j)}, {vr(PK+4*j,4)}")
        a(f"ds_write_b64 {vr(VR4)}, {vr(PK+16,2)}")
        n2 = o.get("n2", 3)
        for g_ in gu[:n2]: a(g_)
        a(f"s_mov_b32 {sr(T+4)}, {f32(LOG2E / 12.0)}\ns_waitcnt vmcnt({1 + n2}) lgkmcnt(0)\ns_barrier")
        self.stamp("bar2")

        def post2(u):
            L = [f"v_mul_f32 {vr(ACC+4*u+i)}, {sr(T+4)}, {vr(ACC+4*u+i)}" for i in range(4)]
            L += [f"v_cvt_pk_bf16_f32 {vr(PK + (4*(u&3) + 2*(u>>2) if u < 8 else 16) + h)}, {vr(ACC+4*u+2*h)}, {vr(ACC+4*u+2*h+1)}" for h in range(2)]
            if 4 <= u < 8: L.append(f"ds_write_b128 {vr(VSW+u-4)}, {vr(PK+4*(u-4),4)} offset:{L_QX - L_XX}")
            if u == 8: L.append(f"ds_write_b64 {vr(t2)}, {vr(PK+16,2)}")
            return L
        a(f"v_subrev_u32 {vr(t2)}, {L_XR - L_QR}, {vr(VR4)}")
        self.gemm_u(A_Q, ar, [B4 + 18 * j for j in range(4)], ACC, a_row, bq, post2, vm_items=gu[n2:])
        self.stamp("g2")
        CC = TM
        for j in range(4): a(f"v_dot2_f32_bf16 {vr(CC+j)}, {vr(PK+4*j)}, {vr(XD+4*j)}, 0")
        for i in range(2): a(f"v_dot2_f32_bf16 {vr(CC)}, {vr(PK+16+i)}, {vr(XA+16+i)}, {vr(CC)}")
        for i in range(1, 4):
            for j in range(4): a(f"v_dot2_f32_bf16 {vr(CC+j)}, {vr(PK+4*j+i)}, {vr(XD+4*j+i)}, {vr(CC+j)}")
        a(f"""s_lshl_b32 {sr(T)}, s2, 6
        s_and_b32 {sr(T)}, {sr(T)}, 0xff
        v_mov_b32 {vr(t0)}, {sr(T)}
        v_add_u32 {vr(VS)}, {L_QX}, {vr(V_DMA)}
        v_add_u32 {vr(VS+1)}, {L_QR}, {vr(L8)}""")
        self.treduce(CC)
        a(f"ds_write_b32 {vr(MXA)}, {vr(CC)}")
        a(self.xa_srd())
        a("s_waitcnt vmcnt(0) lgkmcnt(0)\ns_barrier")
        self.stamp("bar3")
        a(f"buffer_load_dword {vr(t1)}, {vr(t0)}, {sr(S_DB,4)}, 0 offen sc1")
        MS = 88
        qrd = [f"ds_read_b128 {vr(MS+4*qb,4)}, {vr(MXR)} offset:{256*qb}" for qb in range(4)]
        qrd += [f"ds_read_b64 {ar(A_Q+18*qb+16,2)}, {vr(VS+1)} offset:{512*qb}" for qb in range(4)]
        for qb in range(4):
            qrd += [f"ds_read_b128 {ar(A_Q+18*qb+4*s,4)}, {vr(VS)} offset:{4096*qb + 1024*s}" for s in range(4)]
        self.gemm(self.tr_reads(TRU), XA, ACC, None, late=qrd[:9])
        self.stamp("up")
        a(f"""s_cmp_lg_u32 {sr(S_W)}, 0
        s_cbranch_scc1 L_bar4
        s_sub_u32 {sr(T+1)}, 63, {sr(S_H)}
        s_mov_b32 {sr(T+2)}, 0
        s_branch L_pollc""")
        a.label("L_poll")
        a(f"buffer_load_dword {vr(t1)}, {vr(t0)}, {sr(S_DB,4)}, 0 offen sc1")
        a.label("L_pollc")
        a(f"""s_add_u32 {sr(T+2)}, {sr(T+2)}, 1
        s_waitcnt vmcnt(0)
        v_readfirstlane_b32 {sr(T+3)}, {vr(t1)}
        s_cmp_ge_u32 {sr(T+3)}, {sr(T+1)}
        s_cbranch_scc1 L_bar4
        s_cmp_lt_u32 {sr(T+2)}, 0x40000
        s_cbranch_scc1 L_poll""")
        a.label("L_bar4")
        a("s_waitcnt lgkmcnt(0)\ns_barrier")
        self.stamp("bar4")
        p = lambda r: vr(r, 2)
        c1 = -2.0 * math.sqrt(2.0 / math.pi) * LOG2E
        c2 = c1 * 0.044715
        tg = self.tile_groups(0) + self.tile_groups(1)
        for x in tg[:5]: a(x)
        a(f"v_mov_b32 {vr(CC)}, {f32(c1)}\nv_mov_b32 {vr(CC+2)}, {f32(c2)}\nv_mov_b32 {vr(CC+4)}, 1.0")
        a.bg, a.every, a.cnt = tg[5:9] + [qrd[i] + "\n" + qrd[i + 1] for i in range(9, 23, 2)] + [qrd[23]], 4, 0
        for i in range(18): a(f"v_pk_mul_f32 {p(G_+2*i)}, {p(ACC+2*i)}, {p(ACC+2*i)}")
        for i in range(18): a(f"v_pk_fma_f32 {p(G_+2*i)}, {p(G_+2*i)}, {p(CC+2)}, {p(CC)} op_sel_hi:[1,0,0]")
        for i in range(18): a(f"v_pk_mul_f32 {p(G_+2*i)}, {p(G_+2*i)}, {p(ACC+2*i)}")
        a.flush()
        self.stamp("ge1")
        t1g = tg[9:]
        for i in range(36):
            a(f"v_exp_f32 {vr(G_+i)}, {vr(G_+i)}")
            if i % 4 == 3 and t1g: a(t1g.pop(0))
        self.stamp("ge2")
        for i in range(18): a(f"v_pk_add_f32 {p(G_+2*i)}, {p(G_+2*i)}, {p(CC+4)} op_sel_hi:[1,0]")
        for i in range(36): a(f"v_rcp_f32 {vr(G_+i)}, {vr(G_+i)}")
        for i in range(18): a(f"v_pk_mul_f32 {p(ACC+2*i)}, {p(G_+2*i)}, {p(ACC+2*i)}")
        UG = 164
        a(f"""s_mul_i32 {sr(T)}, {sr(WV+1)}, {BLK}
        s_cmp_eq_u32 {sr(S_H)}, 1
        s_cbranch_scc1 L_ln2
        s_add_u32 {sr(T)}, {sr(T)}, {WS_U}""")
        for i in range(18): a(f"v_cvt_pk_bf16_f32 {vr(UG+i)}, {vr(ACC+2*i)}, {vr(ACC+2*i+1)}")
        a("s_branch L_ug")
        a.label("L_ln2")
        a(f"s_add_u32 {sr(T)}, {sr(T)}, {WS_G}")
        self.ln_f32(ACC, UG, TM)
        a.label("L_ug")
        self.stamp("ge3")
        a(f"s_cmp_eq_u32 {sr(WV)}, 1\ns_cselect_b32 {sr(T)}, {sr(T)}, 0x40000000\ns_add_u32 {sr(T+1)}, {sr(T)}, 4096\ns_waitcnt vmcnt(9) lgkmcnt(0)")
        for x in self.k_reads(0): a(x)
        self.store_block(UG, V_DMA, L8, S_WS, T, T + 1, "sc1")
        for qb in range(4):
            m = MS + 4 * qb
            a(f"v_add_f32 {vr(m)}, {vr(m)}, {vr(m+1)}\nv_add_f32 {vr(m+2)}, {vr(m+2)}, {vr(m+3)}")
        for qb in range(4): a(f"v_add_f32 {vr(self.MK+qb)}, {vr(MS+4*qb)}, {vr(MS+4*qb+2)}")
        for qb in range(4): a(f"v_sub_f32 {vr(self.MK+qb)}, 0, {vr(self.MK+qb)}")
        self.stamp("ug")

    def tile_groups(self, slot):
        out = []
        for j in range(9):
            g = ""
            if j % 4 == 0: g = f"s_add_u32 m0, {sr(S_LB)}, {slot*SLOT + 4096*(j//4)}\ns_nop 0\n"
            g += f"buffer_load_dwordx4 {vr(V_DMA + j//4)}, {sr(S_XA,4)}, {sr(S_TOFF)} offen offset:{1024*(j%4)} lds"
            if j == 8: g += f"\ns_add_u32 {sr(S_TOFF)}, {sr(S_TOFF)}, {4*TILE}"
            out.append(g)
        return out

    def first_tiles(self):
        pass

    def wfuse(self):
        a = self.a
        BF, ACC, AF, TM, AD = 88, 108, 144, 208, 240
        LA, LB_, LM = 0, 44032, 88064
        T = S_T
        a.label("L_wfuse")
        a(f"s_load_dwordx2 s[4:5], s[0:1], 32\ns_load_dwordx2 s[6:7], s[0:1], 56\ns_waitcnt lgkmcnt(0)")
        self.srd(S_WS, 62, 63, WS_END)
        self.srd(S_DB, 60, 61, 256)
        self.srd(S_X, 72, 73, 82944)
        self.srd(S_W2, 70, 71, 41472)
        a(f"""s_cmp_eq_u32 s2, 252
        s_cselect_b32 {sr(S_W1)}, s4, s6
        s_cselect_b32 {sr(S_W1+1)}, s5, s7
        s_mov_b32 {sr(S_W1+2)}, 41472
        s_mov_b32 {sr(S_W1+3)}, 0x20000
        s_cselect_b32 {sr(T+4)}, 0, 41472""")
        self.dma_rows([(S_W1, "0", LA), (S_W2, "0", LB_)], 19, 288, TM + 4, TM + 5, 11, 3, "L_wf1")
        a(f"s_lshl_b32 {sr(T)}, {sr(S_W)}, 10\ns_add_u32 {sr(T+2)}, {sr(T)}, {sr(T+4)}")
        for k in range(11):
            if k == 10: a(f"s_cmp_ge_u32 {sr(S_W)}, 1\ns_cbranch_scc1 L_wf2")
            a(f"s_add_u32 m0, {sr(T)}, {LM + 4096*k}\ns_add_u32 {sr(T+1)}, {sr(T+2)}, {4096*k}")
            a(f"buffer_load_dwordx4 {vr(V_DMA)}, {sr(S_X,4)}, {sr(T+1)} offen lds")
        a.label("L_wf2")
        self.srd(S_DW, 66, 67, 864)
        a(f"""v_lshrrev_b32 {vr(TM)}, 4, v0
        v_mul_u32_u24 {vr(TM)}, 288, {vr(TM)}
        v_bfe_u32 {vr(TM+1)}, v0, 2, 2
        v_lshl_add_u32 {vr(TM)}, {vr(TM+1)}, 6, {vr(TM)}
        v_and_b32 {vr(TM+1)}, 3, v0
        v_lshl_add_u32 {vr(TM)}, {vr(TM+1)}, 3, {vr(TM)}
        buffer_load_dwordx2 v[16:17], {vr(TM)}, {sr(S_DW,4)}, 0 offen
        buffer_load_dwordx2 v[18:19], {vr(TM)}, {sr(S_DW,4)}, 0 offen offset:32
        s_mov_b32 {sr(T+1)}, {WS_DWF}
        s_waitcnt vmcnt(0)
        buffer_store_dwordx4 v[16:19], {vr(V_DMA)}, {sr(S_WS,4)}, {sr(T+1)} offen sc1""")
        self.tr_addr(AD, LM, False, TM + 8)
        self.row_addr(AD + 3, LA, TM + 8)
        a(f"v_add_u32 {vr(AD+5)}, {LB_}, {vr(AD+3)}")
        a(f"v_lshlrev_b32 {vr(AD+4)}, 3, v0")
        a(f"s_lshl_b32 {sr(T)}, {sr(S_W)}, 5")
        for k in range(3): a(f"v_add_u32 {vr(AD+k)}, {sr(T)}, {vr(AD+k)}")
        a(f"s_mov_b32 {sr(S_CNT)}, {sr(S_W)}")
        a("s_waitcnt vmcnt(0)\ns_barrier")
        a.label("L_wfl")
        for s in self.tr_reads(AD, vr)(0, BF): a(s)
        a("s_waitcnt lgkmcnt(0)")
        self.gemm(self.row_reads(AD + 3), BF, ACC, AF)
        for i in range(18): a(f"v_cvt_pk_bf16_f32 {vr(BF+i)}, {vr(ACC+2*i)}, {vr(ACC+2*i+1)}")
        a("s_cmp_eq_u32 s2, 252\ns_cbranch_scc0 L_wf3")
        self.gemm(self.row_reads(AD + 5), BF, ACC, AF)
        for i in range(18): a(f"v_cvt_pk_bf16_f32 {vr(BF+i)}, {vr(ACC+2*i)}, {vr(ACC+2*i+1)}")
        a.label("L_wf3")
        a(f"""s_mul_i32 {sr(T)}, {sr(S_CNT)}, {BLK}
        s_add_u32 {sr(T)}, {sr(T)}, {sr(T+4)}
        s_add_u32 {sr(T)}, {sr(T)}, {WS_WF}
        s_add_u32 {sr(T+1)}, {sr(T)}, 4096""")
        self.store_block(BF, V_DMA, AD + 4, S_WS, T, T + 1, "sc1")
        for k in range(3): a(f"v_add_u32 {vr(AD+k)}, 128, {vr(AD+k)}")
        a(f"s_add_u32 {sr(S_CNT)}, {sr(S_CNT)}, 4\ns_cmp_lt_u32 {sr(S_CNT)}, 9\ns_cbranch_scc1 L_wfl")
        a(f"""s_waitcnt vmcnt(0)
        s_barrier
        s_cmp_lg_u32 {sr(S_W)}, 0
        s_cbranch_scc1 L_end
        s_mov_b64 exec, 1
        v_mov_b32 {vr(TM)}, 1
        v_mov_b32 {vr(TM+1)}, {DB_CW}
        buffer_atomic_add {vr(TM)}, {vr(TM+1)}, {sr(S_DB,4)}, 0 offen sc1
        v_mov_b32 {vr(TM+1)}, {DB_CW + 128}
        buffer_atomic_add {vr(TM)}, {vr(TM+1)}, {sr(S_DB,4)}, 0 offen sc1
        s_endpgm""")

    def dump_stamps(self):
        a = self.a
        if self.o.get("echo"):
            if self.o["echo"][0] == "skew":
                a(f"v_mov_b32 v16, 4\nbuffer_load_dword v17, v16, {sr(S_DB,4)}, 0 offen sc1\ns_waitcnt vmcnt(0)\nv_readfirstlane_b32 s98, v17\ns_not_b32 s98, s98")
                x, y = 98, S_ST + 2 * self.stnames.index(self.o["echo"][1])
            else:
                x, y = [S_ST + 2 * self.stnames.index(n) for n in self.o["echo"]]
            a(f"""s_cmp_eq_u32 {sr(S_VAL)}, 0
            s_cbranch_scc1 L_end
            s_memrealtime s[4:5]
            s_waitcnt lgkmcnt(0)
            s_sub_u32 s6, {sr(y)}, {sr(x)}
            s_add_u32 s6, s6, s4""")
            a.label("L_echo")
            a("s_memrealtime s[4:5]\ns_waitcnt lgkmcnt(0)\ns_sub_u32 s7, s6, s4\ns_cmp_gt_i32 s7, 0\ns_cbranch_scc1 L_echo")
            return
        if self.o.get("dbgst"):
            a("s_waitcnt vmcnt(0)")
            self.stamp("done")
            a("s_waitcnt lgkmcnt(0)\ns_mov_b64 exec, 1")
            slots = [1, 2, 3, 4, 5, 6, 7, 9, 11, 12, 13, 14, 15]
            a(f"s_not_b32 {sr(S_T)}, {sr(S_ST)}\nv_mov_b32 v16, {sr(S_T)}\nv_mov_b32 v17, 4\nbuffer_atomic_umax v16, v17, {sr(S_DB,4)}, 0 offen sc1")
            for i in range(min(self.nst, 12)):
                a(f"v_mov_b32 v{18+2*i}, {sr(S_ST+2*i)}\nv_mov_b32 v{19+2*i}, {4*slots[i+1]}\nbuffer_atomic_umax v{18+2*i}, v{19+2*i}, {sr(S_DB,4)}, 0 offen sc1")
            return
        if not self.o.get("stamps"): return
        T = S_T
        a(f"""s_waitcnt lgkmcnt(0)
        s_lshl_b32 {sr(T)}, s2, 2
        s_add_u32 {sr(T)}, {sr(T)}, {sr(S_W)}
        s_lshl_b32 {sr(T)}, {sr(T)}, 7
        s_add_u32 {sr(T)}, {sr(T)}, {WS_DBG}
        v_mov_b32 v1, 0""")
        for i in range(26): a(f"v_mov_b32 {vr(16+i)}, {sr(S_ST+i)}")
        for i in range(7): a(f"buffer_store_dwordx4 {vr(16+4*i,4)}, v1, {sr(S_WS,4)}, {sr(T)} offen offset:{16*i}")

    def build(self):
        a = self.a
        self.stnames = []
        a.raw(f"; @launch grid=({NWG},1,1) block=(256,1,1) lds={LDS_TOTAL}")
        a.raw('.amdgcn_target "amdgcn-amd-amdhsa--gfx950"')
        a.raw(".text")
        a.raw(f".globl {NAME}")
        self.entry()
        self.phase_a()
        self.rest()
        a.label("L_fin")
        self.dump_stamps()
        a.label("L_end")
        a("s_endpgm")
        self.rare()
        self.fallback()
        self.wfuse()
        a.raw('.section .rodata,"a"')
        a.raw(".p2align 6")
        a.raw(kernel_desc(NAME, 512, 102, 256))
        return a.text()

    def S(self, buf, qb, i=0): return V_S + buf * 32 + qb * 8 + i
    def P(self, buf, qb, i=0): return V_P + buf * 16 + qb * 4 + i

    def k_reads(self, slot):
        ka, so = (V_KA, slot * SLOT) if slot < 2 else (V_HI, (slot - 2) * SLOT)
        out = [f"ds_read_b128 {vr(V_K+8*s+4*kb,4)}, {vr(ka)} offset:{so + 2048*s + 256*kb}" for s in range(4) for kb in range(2)]
        out += [f"ds_read_b64 {vr(V_K+32+2*kb,2)}, {vr(ka+1)} offset:{so + 8192 + 512*kb}" for kb in range(2)]
        return out

    def v_reads(self, slot):
        ka, so = (V_KA, slot * SLOT) if slot < 2 else (V_HI, (slot - 2) * SLOT)
        out = []
        for T in range(9):
            for u in range(2):
                if T < 8: out.append(f"ds_read_b64_tr_b16 {vr(V_V+4*T+2*u,2)}, {vr(ka+2+(T&1))} offset:{so + 2048*(T>>1) + 256*u}")
                else: out.append(f"ds_read_b64_tr_b16 {vr(V_V+4*T+2*u,2)}, {vr(ka+4)} offset:{so + 8192 + 512*u}")
        return out

    def qk_mfmas(self, buf, czero=False):
        out = []
        for s in range(5):
            for kb in range(2):
                for qb in range(4):
                    d = vr(self.S(buf, qb, 4 * kb), 4)
                    c = ("0" if czero else vr(V_CI + 4 * qb, 4)) if s == 0 else d
                    if s < 4: out.append(f"v_mfma_f32_16x16x32_bf16 {d}, {vr(V_K+8*s+4*kb,4)}, {ar(A_Q+18*qb+4*s,4)}, {c}")
                    else: out.append(f"v_mfma_f32_16x16x16_bf16 {d}, {vr(V_K+32+2*kb,2)}, {ar(A_Q+18*qb+16,2)}, {c}")
        return out

    def pv_mfmas(self, buf, czero=False):
        out = []
        for T in range(9):
            for qb in range(4):
                o = ar(A_O + 36 * qb + 4 * T, 4)
                out.append(f"v_mfma_f32_16x16x32_bf16 {o}, {vr(V_V+4*T,4)}, {vr(self.P(buf,qb),4)}, {'0' if czero else o}")
        return out

    def plan(self):
        o = self.o
        n = 76
        fixed = [None] * n
        for i, g in enumerate(range(1, 36, 2)): fixed[g] = ("V", i)
        for i, g in enumerate([41, 44, 47, 50, 53, 56, 59, 62, 65, 68]): fixed[g] = ("K", i)
        for i, g in enumerate([42, 46, 49, 52, 55, 58, 61, 64, 67]): fixed[g] = ("D", i)
        exps = [(qb, j) for qb in range(4) for j in range(8)]
        start = 40
        order = [(start + k) % n for k in range(n)]
        free_idx = [k for k, g in enumerate(order) if fixed[g] is None]
        nsm = len(free_idx) - 32
        cand = free_idx[6:-2]
        sm_set = set(free_idx[-2:]) | {cand[int((i + 0.5) * len(cand) / (nsm - 2))] for i in range(nsm - 2)}
        nds = sum(1 for f in fixed if f is not None and f[0] != "D")
        over = 48 - nds - 2 * nsm
        ocand = [k for k, g in enumerate(order) if k >= 20 and (fixed[g] is None or fixed[g][0] != "D")]
        o_set = {ocand[int((i + 0.5) * len(ocand) / over)] for i in range(over)}
        gaps = [[] for _ in range(n)]
        small, pend, ei = [], [], 0
        for k, g in enumerate(order):
            new = (start + k) < n
            small.extend(pend); pend = []
            small.sort(key=lambda t: 0 if t[0] == "c" else 1)
            f = fixed[g]
            want = 0
            if f is not None:
                gaps[g].append((f[0], f[1], None))
                if f[0] == "D": continue
                want = 1
            elif k in sm_set: want = 2
            else:
                qb, j = exps[ei]; ei += 1
                gaps[g].append(("E", ("e", qb, j), new))
                if j & 1: pend.append(("c", qb, j // 2))
                pend.append(("a", qb, j))
            if k in o_set: want += 1
            if k == n - 1: want = 99
            for _ in range(want):
                if small: gaps[g].append(("E", small.pop(0), new))
        assert not small and not pend and ei == 32
        self.gaps = gaps

    def etext(self, buf, it):
        kind, qb, j = it
        s = self.S(buf, qb)
        if kind == "e": return f"v_exp_f32 {vr(s+j)}, {vr(s+j)}"
        if kind == "a": return f"v_add_f32 {vr(V_L+qb)}, {vr(V_L+qb)}, {vr(s+j)}"
        return f"v_cvt_pk_bf16_f32 {vr(self.P(buf, qb, j))}, {vr(s+2*j)}, {vr(s+2*j+1)}"

    def period(self, p, qk=True, pv=True, e_old=True, e_new=True, kread=True, vread=True, dma=True, extra={}, dsub=None, ksub=None, vm=9):
        a = self.a
        bn, bo = (p + 1) & 1, p & 1
        mf = self.qk_mfmas(bn) + self.pv_mfmas(bo, czero=(p == 0))
        kr, vrd = self.k_reads((p + 2) % RING), self.v_reads(p % RING)
        slot = p % RING
        n = 76
        sc = [[] for _ in range(n)]
        dgs = [g for g in range(n) if any(e[0] == "D" for e in self.gaps[g])]
        if dma:
            for j, g in enumerate(dgs):
                if j % 4 == 0: sc[g - 1].append(f"s_add_u32 m0, {sr(S_LB)}, {slot*SLOT + 4096*(j//4)}")
            sc[dgs[-1] + 1].append(f"s_add_u32 {sr(S_TOFF)}, {sr(S_TOFF)}, {4*TILE}")
        w = []
        if kread: w.append(f"vmcnt({vm})")
        if pv: w.append("lgkmcnt(0)")
        if w: sc[39].append("s_waitcnt " + " ".join(w))
        if kread: sc[75].append("s_waitcnt lgkmcnt(0)")
        for half in range(2):
            rng = range(0, 40) if half == 0 else range(40, 76)
            on = qk if half == 0 else pv
            if not on:
                ds, mem, val, post = [], [], [], []
                for g in rng:
                    for s_ in sc[g]:
                        (post if s_.startswith("s_waitcnt") else mem).append(s_)
                    if g in extra: mem.append(extra[g])
                    for kind, d, new in self.gaps[g]:
                        if kind == "V" and vread: ds.append(vrd[d])
                        elif kind == "K" and kread: ds.append(kr[d])
                        elif kind == "D" and dma: mem.append(f"buffer_load_dwordx4 {vr(V_DMA + d//4)}, {sr(S_XA,4)}, {sr(S_TOFF)} offen offset:{1024*(d%4)} lds")
                        elif kind == "E" and ((new and e_new) or (not new and e_old)): val.append((d, self.etext(bn if new else bo, d)))
                if half == 1: a("s_nop 3")
                seq, pend = [], list(val)
                while pend:
                    k = 0
                    if seq and seq[-1][0][0] == "e":
                        le = seq[-1][0]
                        dep = lambda it: it[0][1] == le[1] and ((it[0][0] == "a" and it[0][2] == le[2]) or (it[0][0] == "c" and it[0][2] == le[2] // 2))
                        have = {x[0] for x in seq}
                        ok = lambda it: it[0][0] == "e" or (("e", it[0][1], it[0][2]) in have if it[0][0] == "a" else (("e", it[0][1], 2*it[0][2]+1) in have)) or not any(x[0][0] == "e" and x[0][1] == it[0][1] and (x[0][2] == it[0][2] if it[0][0] == "a" else x[0][2] // 2 == it[0][2]) for x in pend)
                        while k < len(pend) and (dep(pend[k]) or not ok(pend[k])): k += 1
                        if k == len(pend): seq.append((("n", 0, 0), "s_nop 0")); k = 0
                    seq.append(pend.pop(k))
                step = max(1, len(seq) // (len(mem) + len(ds) + 1))
                allm = ds + mem
                for x in allm[:6]: a(x)
                allm = allm[6:]
                for i_, (d, t_) in enumerate(seq):
                    a(t_)
                    if allm and i_ % step == step - 1:
                        x = allm.pop(0); a(x)
                        if x.startswith("s_add_u32 m0"): a("s_nop 0")
                for x in allm:
                    a(x)
                    if x.startswith("s_add_u32 m0"): a("s_nop 0")
                for x in post: a(x)
                if half == 0: a("s_nop 1")
                continue
            for g in rng:
                a(mf[g])
                for s_ in sc[g]: a(s_)
                if g in extra: a(extra[g])
                for kind, d, new in self.gaps[g]:
                    if kind == "V":
                        if vread: a(vrd[d])
                    elif kind == "K":
                        if kread: a(kr[d])
                        elif ksub: a(ksub.pop(0))
                    elif kind == "D":
                        if dma: a(f"buffer_load_dwordx4 {vr(V_DMA + d//4)}, {sr(S_XA,4)}, {sr(S_TOFF)} offen offset:{1024*(d%4)} lds")
                        elif dsub: a(dsub.pop(0))
                    elif (new and e_new) or (not new and e_old):
                        a(self.etext(bn if new else bo, d))

    MK, VO, GA, DWA, VPL = 232, 236, 238, 244, 248
    NB, PT, E_U, E_G, E_U2, E_G2, E_DW, E_COL = 56, 57, 58, 59, 60, 61, 62, 63
    U, GM, G0, GP, DW = 128, 138, 148, 16, 26
    WD = [("a", 216), ("a", 234), ("v", 208)]
    WO = [("a", 0), ("a", 18), ("a", 36)]

    def epi_setup(self):
        T = S_T
        NB, PT, VO, GA, DWA = self.NB, self.PT, self.VO, self.GA, self.DWA
        r, g4, x, y, big = 208, 209, 210, 211, 212
        L = [f"s_lshr_b32 {sr(NB)}, {sr(S_W)}, 1\nv_and_b32 {vr(r)}, 15, v0\nv_lshrrev_b32 {vr(g4)}, 4, v0",
             f"s_and_b32 {sr(PT)}, {sr(S_W)}, 1\nv_mul_u32_u24 {vr(x)}, 288, {vr(r)}\nv_lshlrev_b32 {vr(DWA)}, 3, {vr(g4)}",
             f"s_lshl_b32 {sr(T)}, {sr(S_TOWN)}, 1\nv_add_u32 {vr(x)}, {vr(x)}, {vr(DWA)}\nv_mov_b32 {vr(big)}, 0x40000000",
             f"s_add_u32 {sr(T)}, {sr(T)}, {sr(NB)}\ns_lshl_b32 {sr(T)}, {sr(T)}, 4\ns_mul_i32 {sr(T+1)}, {sr(S_TOWN)}, {TILE}",
             f"s_mul_i32 {sr(T+2)}, {sr(PT)}, {BLK}\nv_add_u32 {vr(r)}, {sr(T)}, {vr(r)}\nv_add_u32 {vr(x)}, {sr(T+1)}, {vr(x)}",
             f"s_sub_u32 {sr(T+3)}, {BLK}, {sr(T+2)}\nv_add_u32 {vr(VO)}, {sr(T+2)}, {vr(x)}",
             f"s_mul_i32 {sr(T)}, {sr(S_B)}, 4000\nv_add_u32 {vr(VO+1)}, {sr(T+3)}, {vr(x)}",
             f"s_add_u32 {sr(T+1)}, {sr(T)}, 3999\ns_mov_b32 {sr(T+2)}, {BLK}\ns_lshl_b32 {sr(T+3)}, {sr(PT)}, 11",
             f"s_add_u32 {sr(self.E_U)}, {sr(T+3)}, {WS_U}\ns_add_u32 {sr(self.E_G)}, {sr(T+3)}, {WS_G}\ns_mov_b32 {sr(self.E_U2)}, {WS_U + 4096}",
             f"s_mov_b32 {sr(self.E_G2)}, {WS_G + 4096}\ns_lshl_b32 {sr(self.E_DW)}, {sr(PT)}, 7\ns_lshl_b32 {sr(self.E_COL)}, {sr(S_W)}, 6",
             f"s_add_u32 {sr(self.E_DW)}, {sr(self.E_DW)}, {WS_DWF}\nv_lshlrev_b32 {vr(DWA+1)}, 4, {vr(g4)}\nv_lshlrev_b32 {vr(DWA+2)}, 3, v0",
             f"v_add_u32 {vr(DWA+2)}, 4096, {vr(DWA+2)}"]
        for k, dr in enumerate((0, -1, 1)):
            m = GA + 2 * k
            src = r
            if dr:
                L.append(f"v_add_u32 {vr(m)}, {dr}, {vr(r)}\nv_cmp_eq_u32 vcc, {sr(T if dr < 0 else T+1)}, {vr(r)}")
                src = m
            L.append(f"v_lshrrev_b32 {vr(x)}, 4, {vr(src)}\nv_and_b32 {vr(y)}, 15, {vr(src)}")
            L.append(f"v_mul_lo_u32 {vr(x)}, {vr(x)}, {sr(T+2)}\nv_lshl_add_u32 {vr(y)}, {vr(g4)}, 4, {vr(y)}")
            L.append(f"v_lshl_add_u32 {vr(m)}, {vr(y)}, 4, {vr(x)}\nv_lshl_add_u32 {vr(m+1)}, {vr(y)}, 3, {vr(x)}")
            if dr: L.append(f"v_cndmask_b32 {vr(m)}, {vr(m)}, {vr(big)}, vcc\nv_cndmask_b32 {vr(m+1)}, {vr(m+1)}, {vr(big)}, vcc")
        return L

    def dwreg(self, k): return [26, 36, 96][k]

    def conv_loads(self):
        GA = self.GA
        L = []
        for dst, m, so in ((self.GM, GA + 2, 1), (self.G0, GA, 1), (self.GP, GA + 4, 1), (self.U, GA, 0)):
            for k in range(2): L.append(f"buffer_load_dwordx4 {vr(dst+4*k,4)}, {vr(m)}, {sr(S_WS,4)}, {sr(self.E_U+so)} offen offset:{1024*k} sc1")
            L.append(f"buffer_load_dwordx2 {vr(dst+8,2)}, {vr(m+1)}, {sr(S_WS,4)}, {sr(self.E_U2+so)} offen sc1")
        for k in range(3):
            for i in range(2): L.append(f"buffer_load_dwordx4 {vr(self.dwreg(k)+4*i,4)}, {vr(self.DWA+1)}, {sr(S_WS,4)}, {sr(self.E_DW)} offen offset:{256*k + 64*i} sc1")
            L.append(f"buffer_load_dwordx2 {vr(self.dwreg(k)+8,2)}, {vr(self.DWA)}, {sr(S_DW,4)}, 0 offen offset:{288*k + 256}")
        return L

    def w_loads(self, mat, regs, sb):
        L = []
        for tt in range(3):
            rf = ar if regs[tt][0] == "a" else vr
            for s in range(4): L.append(f"buffer_load_dwordx4 {rf(regs[tt][1]+4*s,4)}, {vr(V_DMA)}, {sr(S_WS,4)}, {sr(sb+tt)} offen offset:{1024*s} sc1")
            L.append(f"buffer_load_dwordx2 {rf(regs[tt][1]+16,2)}, {vr(self.DWA+2)}, {sr(S_WS,4)}, {sr(sb+tt)} offen sc1")
        return L

    def xa_srd(self):
        T = S_T
        return f"""s_mul_i32 {sr(T)}, {sr(S_B)}, {NT}
        s_mul_i32 {sr(T+1)}, {sr(S_H)}, 63
        s_add_u32 {sr(T+1)}, {sr(T+1)}, {sr(T)}
        s_mul_i32 {sr(T+1)}, {sr(T+1)}, {TILE}
        s_add_u32 {sr(S_XA)}, {sr(S_WS)}, {sr(T+1)}
        s_addc_u32 {sr(S_XA+1)}, {sr(S_WS+1)}, 0
        s_sub_u32 {sr(T+2)}, 63, {sr(S_H)}
        s_mul_i32 {sr(S_XA+2)}, {sr(T+2)}, {TILE}
        s_mov_b32 {sr(S_XA+3)}, 0x20000"""

    def rest(self):
        a, o = self.a, self.o
        T = S_T
        VPL = self.VPL
        self.plan()
        a.label("L_go")
        for qb in range(4):
            for i in range(4): a(f"v_mov_b32 {vr(V_CI+4*qb+i)}, {vr(self.MK+qb)}")
        for k in range(5): a(f"v_add_u32 {vr(V_HI+k)}, {2*SLOT}, {vr(V_KA+k)}")
        for i in range(4): a(f"v_mov_b32 {vr(V_L+i)}, 0")
        a(f"""s_mov_b32 {sr(S_CNT)}, 0
        s_lshl_b32 {sr(T)}, {sr(S_B)}, 7
        s_add_u32 {sr(T)}, {sr(T)}, {DB_CB}
        v_mov_b32 {vr(VPL)}, {sr(T)}
        s_waitcnt lgkmcnt(0)
        s_barrier""")
        self.stamp("bar5")
        t2 = self.tile_groups(2)
        ex = {1 + 4 * i: t2[i] for i in range(9)}
        es = self.epi_setup()
        for g in range(40):
            if g not in ex and es: ex[g] = es.pop(0)
        assert not es
        self.period(-1, pv=False, e_old=False, vread=False, extra=ex, vm=14)
        self.stamp("loop")
        if o.get("echo") and o["echo"][0] == "skew":
            a(f"s_waitcnt lgkmcnt(0)\ns_mov_b64 exec, 1\ns_not_b32 s98, {sr(S_ST)}\nv_mov_b32 v250, s98\nv_mov_b32 v251, 4\ns_cmp_lg_u32 {sr(S_W)}, 0\ns_cbranch_scc1 L_sk\nbuffer_atomic_umax v250, v251, {sr(S_DB,4)}, 0 offen sc1\ns_waitcnt vmcnt(0)\nL_sk:\ns_mov_b64 exec, -1\ns_nop 3")
        ex = {43: "s_barrier",
              45: (f"s_or_b32 {sr(T)}, {sr(S_W)}, {sr(S_REDO)}\ns_cmp_lg_u32 {sr(T)}, 0\ns_cbranch_scc1 L_nocb\ns_mov_b64 exec, 1\nv_mov_b32 {vr(VPL+1)}, 1\n"
                   f"buffer_atomic_add {vr(VPL+1)}, {vr(VPL)}, {sr(S_DB,4)}, 0 offen sc1\ns_mov_b64 exec, -1\ns_nop 3\nL_nocb:")}
        self.period(0, extra=ex)
        a.raw(".p2align 6")
        a.label("L_loop")
        for p in range(1, 5):
            ex = {}
            if p == 3: ex = {70: f"buffer_load_dwordx4 v[252:255], {vr(VPL)}, {sr(S_DB,4)}, 0 offen sc1"}
            if p == 4: ex = {72: f"s_add_u32 {sr(S_CNT)}, {sr(S_CNT)}, 1", 73: f"s_cmp_lt_u32 {sr(S_CNT)}, 3"}
            self.period(p, extra=ex)
        a("s_cbranch_scc1 L_loop")
        self.stamp("p13")
        SW = 66
        a(f"s_waitcnt vmcnt(9)\ns_mov_b32 {sr(T+2)}, 0")
        a.label("L_late")
        a(f"""v_readfirstlane_b32 {sr(T)}, v252
        v_readfirstlane_b32 {sr(T+1)}, v254
        s_add_u32 {sr(SW+3)}, {sr(S_LB)}, {WS_WF}
        s_add_u32 {sr(SW+4)}, {sr(S_LB)}, {WS_WF + BLK}
        s_mov_b32 {sr(SW+5)}, {WS_WF + 8*BLK}
        s_add_u32 {sr(SW)}, {sr(S_LB)}, {WS_WF + 9*BLK}
        s_add_u32 {sr(SW+1)}, {sr(S_LB)}, {WS_WF + 10*BLK}
        s_mov_b32 {sr(SW+2)}, {WS_WF + 17*BLK}
        s_cmp_ge_u32 {sr(T)}, 126
        s_cselect_b32 {sr(T+3)}, {sr(T+1)}, 0
        s_cmp_ge_u32 {sr(T+3)}, 2
        s_cbranch_scc0 L_late1""")
        a.label("L_late0")
        wd = self.w_loads(1, self.WD, SW)
        pf = (f"s_lshr_b32 {sr(T)}, s2, 3\ns_lshl_b32 {sr(T)}, {sr(T)}, 2\ns_add_u32 {sr(T)}, {sr(T)}, {sr(S_W)}\ns_and_b32 {sr(T)}, {sr(T)}, 63\ns_min_u32 {sr(T)}, {sr(T)}, 40\n"
              f"s_lshl_b32 {sr(T)}, {sr(T)}, 10\ns_add_u32 {sr(T)}, {sr(T)}, {WS_WF}\nbuffer_load_dwordx4 v[252:255], {vr(V_DMA)}, {sr(S_WS,4)}, {sr(T)} offen")
        self.period(13, dma=False, dsub=wd[:8] + [pf], vm=9)
        a(f"s_cmp_eq_u32 {sr(S_DUM)}, 4\ns_cbranch_scc1 L_dummy")
        a.label("L_dummyb")
        cl = self.conv_loads()
        self.period(14, dma=False, kread=False, dsub=cl[:9], ksub=cl[9:18])
        self.stamp("tail")
        self.tail(cl[18:], wd[8:])
        self.stamp("end")
        self.epilogue(SW)

    def rare(self):
        a = self.a
        T = S_T
        a.label("L_dummy")
        for i in range(16): a(f"v_mov_b32 {vr(V_CI+i)}, 0xff800000")
        a("s_nop 1\ns_branch L_dummyb")
        a.label("L_late1")
        a(f"""buffer_load_dwordx4 v[252:255], {vr(self.VPL)}, {sr(S_DB,4)}, 0 offen sc1
        s_add_u32 {sr(T+2)}, {sr(T+2)}, 1
        s_waitcnt vmcnt(0)
        s_cmp_lt_u32 {sr(T+2)}, 0x40000
        s_cbranch_scc1 L_late
        s_branch L_late0""")

    L_X2 = L_SP
    L_L = L_SP + 9216
    units = [(0, 0), (0, 1), (1, 0), (1, 1), (2, 0)]
    XR = 158
    def mreg(self, k, i, h):
        n = (k * 10 + i) * 2 + h
        return 48 + n if n < 48 else (106 + n - 48 if n < 54 else 226 + n - 54)

    def tail(self, cl, wd):
        a = self.a
        T = S_T
        VST = 247
        ex = {i: x for i, x in enumerate(cl)}
        ex[5] = f"v_add_u32 {vr(VST)}, {sr(S_LB)}, {vr(V_DMA)}"
        n0 = len(a.lines)
        self.period(15, qk=False, e_new=False, kread=False, dma=False, extra=ex)
        k = next(i for i in range(n0, len(a.lines)) if "v_mfma" in a.lines[i])
        del a.lines[k:]
        wr = [f"ds_write_b128 {vr(VST)}, {ar(A_O+36*qb+4*i,4)} offset:{SLOT*qb + 1024*i}" for qb in range(2) for i in range(9)]
        va = []
        for i in range(10):
            for k_ in range(3):
                va.append(f"v_and_b32 {vr(self.mreg(k_,i,0))}, 0xffff, {vr(self.dwreg(k_)+i)}")
                va.append(f"v_and_b32 {vr(self.mreg(k_,i,1))}, 0xffff0000, {vr(self.dwreg(k_)+i)}")
        n = 0
        for qb in range(4):
            for Tt in range(9):
                o_ = ar(A_O + 36 * qb + 4 * Tt, 4)
                a(f"v_mfma_f32_16x16x32_bf16 {o_}, {vr(V_V+4*Tt,4)}, {vr(self.P(1,qb),4)}, {o_}")
                if n == 3: a("s_waitcnt vmcnt(0)")
                if n > 3 and n % 2 == 1 and wd:
                    a(wd.pop(0)); n += 1; continue
                k_ = 2
                if n >= 12 and n % 2 == 0 and (len(wr) > 9 or n >= 22): a(wr.pop(0)); k_ = 1
                if n >= 3:
                    for _ in range(k_):
                        if va: a(va.pop(0))
                n += 1
        for x in va: a(x)
        self.wr_left = wr

    def epilogue(self, SW):
        a, o = self.a, self.o
        T = S_T
        p = lambda r: vr(r, 2)
        L_L, L_FL, L_X2 = self.L_L, self.L_L + 1024, self.L_X2
        NB, PT, MK, VO, units = self.NB, self.PT, self.MK, self.VO, self.units
        U, GM, G0, GP = self.U, self.GM, self.G0, self.GP
        VST, VL8 = 247, self.DWA + 2
        t = 164
        C, UU, PKD = 180, 112, 26
        wr = self.wr_left
        n0 = len(a.lines)
        self.greduce([V_L + i for i in range(4)], t)
        a(f"""v_add_f32 {vr(t+1)}, {vr(V_L)}, {vr(V_L+1)}
        v_add_f32 {vr(t+2)}, {vr(V_L+2)}, {vr(V_L+3)}
        v_add_f32 {vr(t+1)}, {vr(t+1)}, {vr(t+2)}
        v_mov_b32 {vr(t+2)}, {f32(2.0**100)}
        v_cmp_nle_f32 vcc, {vr(t+1)}, {vr(t+2)}
        v_and_b32 {vr(t+3)}, 15, v0
        v_lshlrev_b32 {vr(t+3)}, 4, {vr(t+3)}
        s_lshl_b32 {sr(T)}, {sr(S_W)}, 2
        s_add_u32 {sr(T)}, {sr(T)}, {L_L}
        v_add_u32 {vr(t+4)}, {sr(T)}, {vr(t+3)}
        s_cmp_lg_u64 vcc, 0
        s_cselect_b32 {sr(T+1)}, 1, 0
        v_mov_b32 {vr(t+5)}, {sr(T+1)}
        v_mov_b32 {vr(t+6)}, {sr(T)}""")
        for k_, src in enumerate((GM, G0, GP)):
            for i in range(10):
                for h in range(2):
                    a(f"v_dot2_f32_bf16 {vr(C+2*i+h)}, {vr(src+i)}, {vr(self.mreg(k_,i,h))}, {'0' if k_ == 0 else vr(C+2*i+h)}")
        UUr = 48
        for i in range(10):
            a(f"v_lshlrev_b32 {vr(UUr+2*i)}, 16, {vr(U+i)}\nv_and_b32 {vr(UUr+1+2*i)}, 0xffff0000, {vr(U+i)}")
        for i in range(10): a(f"v_pk_mul_f32 {p(C+2*i)}, {p(C+2*i)}, {p(UUr+2*i)}")
        for i in range(10): a(f"v_cvt_pk_bf16_f32 {vr(PKD+i)}, {vr(C+2*i)}, {vr(C+2*i+1)}")
        a(f"""s_mul_i32 {sr(T)}, {sr(NB)}, {SLOT}
        s_lshl_b32 {sr(T+1)}, {sr(PT)}, 12
        s_add_u32 {sr(T)}, {sr(T)}, {sr(T+1)}
        v_add_u32 {vr(t+7)}, {sr(T)}, {vr(V_DMA)}
        s_lshl_b32 {sr(T+1)}, {sr(NB)}, 8
        s_add_u32 {sr(T+1)}, {sr(T+1)}, {L_L}
        v_add_u32 {vr(t+9)}, {sr(T+1)}, {vr(t+3)}
        v_mov_b32 {vr(t+10)}, {L_FL}
        s_lshl_b32 {sr(T)}, {sr(NB)}, 12
        s_lshl_b32 {sr(T+1)}, {sr(PT)}, 11
        s_add_u32 {sr(T)}, {sr(T)}, {sr(T+1)}
        v_add_u32 {vr(t+11)}, {sr(T)}, {vr(V_DMA)}
        s_lshl_b32 {sr(T)}, {sr(NB)}, 9
        s_add_u32 {sr(T)}, {sr(T)}, 4096
        v_add_u32 {vr(t+12)}, {sr(T)}, {vr(VL8)}
        v_add_u32 {vr(t+13)}, {L_X2}, {vr(t+11)}
        v_add_u32 {vr(t+14)}, {L_X2}, {vr(t+12)}""")
        body = a.lines[n0:]; del a.lines[n0:]
        for i, l in enumerate(body):
            if i % 12 == 0 and wr: a(wr.pop(0))
            a.lines.append(l)
        for x in wr: a(x)
        VROW16, VRD, VX1, VX1R = t + 3, t + 7, t + 11, t + 12
        for qb in range(4): a(f"ds_write_b32 {vr(t+4)}, {vr(V_L+qb)} offset:{256*qb}")
        a(f"""ds_write_b32 {vr(t+6)}, {vr(t+5)} offset:1024
        ds_write_b128 {vr(t+13)}, {vr(PKD,4)}
        ds_write_b128 {vr(t+13)}, {vr(PKD+4,4)} offset:1024
        s_cmp_eq_u32 {sr(PT)}, 0
        s_cbranch_scc1 L_e3
        ds_write_b64 {vr(t+14)}, {vr(PKD+8,2)}""")
        a.label("L_e3")
        a("s_waitcnt lgkmcnt(0)\ns_barrier")
        self.stamp("B1")
        R = 48
        F = 180
        a(f"ds_read_b128 {vr(F,4)}, {vr(t+10)}\nds_read_b128 {vr(F+4,4)}, {vr(t+9)}")

        def reduce4():
            for w in range(4):
                for i in range(5): a(f"ds_read_b128 {vr(R+20*w+4*i,4)}, {vr(VRD)} offset:{TILE*w + 1024*i}")
                if w == 1: yield
            yield
            for w in range(1, 4):
                a(f"s_waitcnt lgkmcnt({5*(3-w)})")
                for i in range(10): a(f"v_pk_add_f32 {p(R+2*i)}, {p(R+2*i)}, {p(R+20*w+2*i)}")
            for i in range(10): a(f"v_cvt_pk_bf16_f32 {vr(R+20+i)}, {vr(R+2*i)}, {vr(R+2*i+1)}")
        g = reduce4(); next(g)
        a(f"""s_xor_b32 {sr(T)}, s2, 1
        s_mul_i32 {sr(T)}, {sr(T)}, {IB}
        s_mul_i32 {sr(T+1)}, {sr(NB)}, 5120
        s_add_u32 {sr(T)}, {sr(T)}, {sr(T+1)}
        s_add_u32 {sr(T)}, {sr(T)}, {WS_IB}
        s_lshl_b32 {sr(T+1)}, {sr(PT)}, 11
        s_add_u32 {sr(T+1)}, {sr(T+1)}, {sr(T)}
        s_add_u32 {sr(T)}, {sr(T)}, 4096
        s_cmp_eq_u32 {sr(PT)}, 0
        s_cselect_b32 {sr(T)}, 0x40000000, {sr(T)}""")
        next(g)
        a(f"""s_waitcnt lgkmcnt(15)
        v_or_b32 {vr(F)}, {vr(F)}, {vr(F+1)}
        v_or3_b32 {vr(F)}, {vr(F)}, {vr(F+2)}, {vr(F+3)}
        v_add_f32 {vr(F+4)}, {vr(F+4)}, {vr(F+5)}
        v_add_f32 {vr(F+6)}, {vr(F+6)}, {vr(F+7)}
        v_readfirstlane_b32 {sr(T+2)}, {vr(F)}
        v_add_f32 {vr(F+4)}, {vr(F+4)}, {vr(F+6)}
        s_andn2_b32 {sr(T+2)}, {sr(T+2)}, {sr(S_REDO)}
        s_cbranch_scc1 L_fallback
        s_cmp_eq_u32 {sr(NB)}, 1
        s_cselect_b64 vcc, -1, 0""")
        for _ in g: pass
        a(f"""v_mov_b32 {vr(R+30)}, {vr(F+4)}
        v_cndmask_b32 {vr(R+31)}, {vr(MK)}, {vr(MK+1)}, vcc
        buffer_store_dwordx4 {vr(R+20,4)}, {vr(V_DMA)}, {sr(S_WS,4)}, {sr(T+1)} offen sc1
        buffer_store_dwordx4 {vr(R+24,4)}, {vr(V_DMA)}, {sr(S_WS,4)}, {sr(T+1)} offen offset:1024 sc1
        buffer_store_dwordx4 {vr(R+28,4)}, {vr(V_DMA)}, {sr(S_WS,4)}, {sr(T)} offen sc1""")
        self.stamp("sent")
        a(f"s_cmp_eq_u32 {sr(S_VAL)}, 0\ns_cbranch_scc1 L_fin")
        ad = 188
        a(f"""s_lshl_b32 {sr(T)}, {sr(PT)}, 12
        v_add_u32 {vr(ad)}, {sr(T)}, {vr(V_DMA)}
        v_xor_b32 {vr(ad+1)}, 4096, {vr(ad)}
        s_lshl_b32 {sr(T)}, {sr(PT)}, 9
        s_add_u32 {sr(T)}, {sr(T)}, 4096
        v_add_u32 {vr(ad+2)}, {sr(T)}, {vr(VL8)}
        v_xor_b32 {vr(ad+3)}, 512, {vr(ad+2)}""")
        for k_ in range(4): a(f"v_add_u32 {vr(ad+4+k_)}, {L_X2}, {vr(ad+k_)}")
        a(f"v_add_u32 {vr(VST)}, {2*SLOT}, {vr(VST)}")

        def bfrags(dst, b):
            for j in range(2):
                for s in range(4): a(f"ds_read_b128 {vr(dst[j]+4*s,4)}, {vr(b+j)} offset:{1024*s}")
                a(f"ds_read_b64 {vr(dst[j]+16,2)}, {vr(b+2+j)}")

        def fgemm(acc, W, Bf, fill=()):
            fill = list(fill)
            for s in range(5):
                for u, (tt, j) in enumerate(units):
                    d = vr(acc + 4 * u, 4)
                    rf = ar if W[tt][0] == "a" else vr
                    if s < 4: a(f"v_mfma_f32_16x16x32_bf16 {d}, {rf(W[tt][1]+4*s,4)}, {vr(Bf[j]+4*s,4)}, {'0' if s == 0 else d}")
                    else:
                        if u == 0: a("s_nop 1")
                        a(f"v_mfma_f32_16x16x16_bf16 {d}, {rf(W[tt][1]+16,2)}, {vr(Bf[j]+16,2)}, {d}")
                    if fill: a(fill.pop(0))
            for x in fill: a(x)
        BU = [16, 128]
        AB, AO, AP = 84, 104, 208
        XR, LO, IN = 36, 196, 128
        bfrags(BU, ad + 4)
        wr = [f"ds_write_b128 {vr(VST)}, {ar(A_O+36*(2+qb)+4*i,4)} offset:{SLOT*qb + 1024*i}" for qb in range(2) for i in range(9)]
        for x in wr[:4]: a(x)
        wl = self.w_loads(0, self.WO, SW + 3)
        for u, (tt, j) in enumerate(units):
            so = (sr(self.E_COL), 32 * tt) if tt < 2 else ("0", 256)
            wl.append(f"buffer_load_dwordx2 {vr(XR+2*u,2)}, {vr(VO+j)}, {sr(S_X,4)}, {so[0]} offen offset:{so[1]}")
        for x in wl[:6]: a(x)
        a("s_waitcnt vmcnt(9) lgkmcnt(4)")
        fl = []
        for k_ in range(14): fl += [wr[4 + k_], wl[6 + k_]]
        fgemm(AB, self.WD, BU, fill=fl)
        a(f"""v_add_u32 {vr(VRD)}, {2*SLOT}, {vr(VRD)}
        s_lshl_b32 {sr(T)}, {sr(PT)}, 8
        s_add_u32 {sr(T)}, {sr(T)}, {L_L + 512}
        v_add_u32 {vr(ad+4)}, {sr(T)}, {vr(VROW16)}
        v_xor_b32 {vr(ad+5)}, 256, {vr(ad+4)}
        s_mul_i32 {sr(T+12)}, s2, {IB}
        s_add_u32 {sr(T+12)}, {sr(T+12)}, {WS_IB}
        s_mul_i32 {sr(T)}, {sr(PT)}, 5120
        s_add_u32 {sr(T+13)}, {sr(T+12)}, 5120
        s_sub_u32 {sr(T+13)}, {sr(T+13)}, {sr(T)}
        s_add_u32 {sr(T+12)}, {sr(T+12)}, {sr(T)}
        s_waitcnt lgkmcnt(0)
        s_barrier""")
        self.stamp("B2")
        R2 = R
        PR = [48, 104, 128, 148]
        for w in range(4):
            for i in range(5): a(f"ds_read_b128 {vr(PR[w]+4*i,4)}, {vr(VRD)} offset:{TILE*w + 1024*i}")
        for w in range(1, 4):
            a(f"s_waitcnt lgkmcnt({5*(3-w)})")
            for i in range(10): a(f"v_pk_add_f32 {p(48+2*i)}, {p(48+2*i)}, {p(PR[w]+2*i)}")
        for i in range(10): a(f"v_cvt_pk_bf16_f32 {vr(68+i)}, {vr(48+2*i)}, {vr(48+2*i+1)}")
        a(f"""ds_write_b128 {vr(VX1)}, v[68:71]
        ds_write_b128 {vr(VX1)}, v[72:75] offset:1024
        s_cmp_eq_u32 {sr(PT)}, 0
        s_cbranch_scc1 L_e2
        ds_write_b64 {vr(VX1R)}, v[76:77]""")
        a.label("L_e2")
        for j in range(2): a(f"ds_read_b128 {vr(LO+4*j,4)}, {vr(ad+4+j)}")

        def inbox():
            for j in range(2):
                for s in range(4): a(f"buffer_load_dwordx4 {vr(IN+20*j+4*s,4)}, {vr(V_DMA)}, {sr(S_WS,4)}, {sr(T+12+j)} offen offset:{1024*s} sc1")
                a(f"buffer_load_dwordx4 {vr(IN+20*j+16,4)}, {vr(V_DMA+1)}, {sr(S_WS,4)}, {sr(T+12+j)} offen sc1")
        a("s_waitcnt lgkmcnt(0)\ns_barrier")
        self.stamp("B3")
        BO = [16, 48]
        bfrags(BO, ad)
        inbox()
        for j in range(2):
            a(f"v_add_f32 {vr(LO+4*j)}, {vr(LO+4*j)}, {vr(LO+4*j+1)}\nv_add_f32 {vr(LO+4*j+2)}, {vr(LO+4*j+2)}, {vr(LO+4*j+3)}\nv_add_f32 {vr(LO+4*j)}, {vr(LO+4*j)}, {vr(LO+4*j+2)}")
        a(f"""s_cmp_eq_u32 {sr(PT)}, 1
        s_cselect_b64 vcc, -1, 0
        s_mov_b32 {sr(T+2)}, 0
        v_cndmask_b32 {vr(LO+1)}, {vr(MK+2)}, {vr(MK+3)}, vcc
        v_cndmask_b32 {vr(LO+5)}, {vr(MK+3)}, {vr(MK+2)}, vcc
        s_waitcnt vmcnt(10) lgkmcnt(0)""")
        xa_ = []
        for u in range(5):
            for h in range(2):
                xa_.append(f"v_lshlrev_b32 {vr(168+4*u+2*h)}, 16, {vr(XR+2*u+h)}\nv_and_b32 {vr(169+4*u+2*h)}, 0xffff0000, {vr(XR+2*u+h)}")
        for u in range(5):
            for h in range(2):
                r = 4 * u + 2 * h
                xa_.append(f"v_add_f32 {vr(AB+r)}, {vr(AB+r)}, {vr(168+r)}\nv_add_f32 {vr(AB+r+1)}, {vr(AB+r+1)}, {vr(169+r)}")
        fgemm(AO, self.WO, BO, fill=xa_)
        self.stamp("own")
        a("s_branch L_inc")
        a.label("L_in")
        inbox()
        a.label("L_inc")
        a(f"s_waitcnt vmcnt(0)\ns_add_u32 {sr(T+2)}, {sr(T+2)}, 1")
        chk = [f"v_max3_u32 v168, {vr(IN)}, {vr(IN+1)}, {vr(IN+2)}", f"v_max3_u32 v169, {vr(IN+3)}, {vr(IN+4)}, {vr(IN+5)}"]
        for k, x in enumerate(range(IN + 6, IN + 40, 2)): chk.append(f"v_max3_u32 v{168+(k&1)}, v{168+(k&1)}, {vr(x)}, {vr(x+1)}")
        chk += ["v_max_u32 v168, v168, v169", "v_cmp_eq_u32 vcc, -1, v168"]
        wt = []
        for j in range(2):
            lo, mo, lp, mp, w = LO + 4 * j, LO + 4 * j + 1, IN + 20 * j + 18, IN + 20 * j + 19, 172 + 4 * j
            wt.append([f"v_min_f32 {vr(w)}, {vr(mo)}, {vr(mp)}", f"v_sub_f32 {vr(w+1)}, {vr(w)}, {vr(mp)}", f"v_sub_f32 {vr(w)}, {vr(w)}, {vr(mo)}",
                       f"v_exp_f32 {vr(w+1)}, {vr(w+1)}", f"v_exp_f32 {vr(w)}, {vr(w)}", f"v_mul_f32 {vr(w+2)}, {vr(w+1)}, {vr(lp)}",
                       f"v_fmac_f32 {vr(w+2)}, {vr(w)}, {vr(lo)}", f"v_rcp_f32 {vr(w+2)}, {vr(w+2)}", f"v_mul_f32 {vr(w)}, {vr(w)}, {vr(w+2)}",
                       f"v_mul_f32 {vr(w+2)}, {vr(w+1)}, {vr(w+2)}"])
        wl_ = [x for pair in zip(*wt) for x in pair]
        fill = [c + "\n" + wl_[i] if i < len(wl_) else c for i, c in enumerate(chk)]
        fgemm(AP, self.WO, [IN, IN + 20], fill=fill)
        a(f"""s_cmp_eq_u64 vcc, 0
        s_cbranch_scc1 L_got
        s_cmp_lt_u32 {sr(T+2)}, 0x10000
        s_cbranch_scc1 L_in""")
        a.label("L_got")
        self.stamp("got")
        for u, (tt, j) in enumerate(units):
            for h in range(2):
                r = 4 * u + 2 * h
                a(f"v_pk_fma_f32 {p(AB+r)}, {p(AO+r)}, {p(172+4*j)}, {p(AB+r)} op_sel_hi:[1,0,1]")
        for u, (tt, j) in enumerate(units):
            for h in range(2):
                r = 4 * u + 2 * h
                a(f"v_pk_fma_f32 {p(AB+r)}, {p(AP+r)}, {p(174+4*j)}, {p(AB+r)} op_sel_hi:[1,0,1]")
            for h in range(2): a(f"v_cvt_pk_bf16_f32 {vr(16+2*u+h)}, {vr(AB+4*u+2*h)}, {vr(AB+4*u+2*h+1)}")
            so = (sr(self.E_COL), 32 * tt) if tt < 2 else ("0", 256)
            a(f"buffer_store_dwordx2 {vr(16+2*u,2)}, {vr(VO+j)}, {sr(S_OUT,4)}, {so[0]} offen offset:{so[1]}")
        self.stamp("fin")

    def fallback(self):
        a = self.a
        T = S_T
        MXR = 208
        a.label("L_fallback")
        a(f"""s_waitcnt vmcnt(0) lgkmcnt(0)
        s_barrier
        s_mov_b32 {sr(S_REDO)}, 1
        s_mov_b32 {sr(S_TOFF)}, {sr(S_LB)}
        s_cmp_eq_u32 {sr(S_DUM)}, 4
        s_cselect_b32 {sr(S_CNT)}, 15, 16""")
        for i in range(4): a(f"v_mov_b32 {vr(MXR+i)}, 0xff800000")
        a.label("L_fb1")
        for g in self.tile_groups(0): a(g)
        a("s_waitcnt vmcnt(0)")
        for x in self.k_reads(0): a(x)
        a("s_waitcnt lgkmcnt(0)")
        for m in self.qk_mfmas(0, czero=True): a(m)
        a("s_nop 7")
        for qb in range(4):
            for i in range(0, 8, 2): a(f"v_max3_f32 {vr(MXR+qb)}, {vr(MXR+qb)}, {vr(self.S(0,qb,i))}, {vr(self.S(0,qb,i+1))}")
        a(f"s_sub_u32 {sr(S_CNT)}, {sr(S_CNT)}, 1\ns_cmp_lg_u32 {sr(S_CNT)}, 0\ns_cbranch_scc1 L_fb1")
        self.greduce([MXR + i for i in range(4)], MXR + 4, "v_max_f32")
        a(f"""v_and_b32 {vr(MXR+4)}, 15, v0
        v_lshlrev_b32 {vr(MXR+4)}, 4, {vr(MXR+4)}
        v_add_u32 {vr(MXR+4)}, {L_SP}, {vr(MXR+4)}
        s_lshl_b32 {sr(T)}, {sr(S_W)}, 2
        v_add_u32 {vr(MXR+5)}, {sr(T)}, {vr(MXR+4)}""")
        for qb in range(4): a(f"ds_write_b32 {vr(MXR+5)}, {vr(MXR+qb)} offset:{256*qb}")
        a("s_waitcnt lgkmcnt(0)\ns_barrier")
        for qb in range(4): a(f"ds_read_b128 {vr(16+4*qb,4)}, {vr(MXR+4)} offset:{256*qb}")
        a(f"s_mov_b32 {sr(S_TOFF)}, {sr(S_LB)}")
        for g in self.tile_groups(0) + self.tile_groups(1): a(g)
        a("s_waitcnt lgkmcnt(0)")
        for qb in range(4):
            r = 16 + 4 * qb
            a(f"v_max_f32 {vr(r)}, {vr(r)}, {vr(r+1)}\nv_max3_f32 {vr(r)}, {vr(r)}, {vr(r+2)}, {vr(r+3)}")
            a(f"v_sub_f32 {vr(self.MK+qb)}, 0, {vr(r)}")
        a("s_waitcnt vmcnt(0)")
        for x in self.k_reads(0): a(x)
        a("s_branch L_go")


if __name__ == "__main__":
    opt = json.loads(sys.argv[2]) if len(sys.argv) > 2 else {}
    g = G(opt)
    txt = g.build()
    if opt.get("align", 1):
        from align import align
        txt, st = align(txt)
        print("align: promoted %d, padded %d, left %d" % st)
    txt = txt.replace("\n", "\n; stamps " + json.dumps(g.stnames) + "\n", 1)
    open(sys.argv[1], "w").write(txt)
```

```python
import sys, json, math
from common import Asm, vr, ar, sr, kernel_header, kernel_desc
from lay import *

NAME = "standalone__conformer_family_branchformer__speech_kernel"
NWG = 254
RING = 4
LDS_RING = RING * TILE
LDS_TOTAL = 163840
SLOT = 4 * TILE
L_WQ, L_WK, L_WU = 0, 41984, 86016
L_XX, L_XR = 128000, 144384
L_QX, L_QR = 146432, 0
L_MX = 162816
L_PC = 163836 - 0
L_DUMP = 123904
L_SP = 147456

S_X, S_WS, S_XA, S_DB, S_W1, S_W2, S_OUT, S_DW = 8, 12, 16, 20, 24, 28, 32, 36
S_W, S_B, S_H, S_QB, S_TOFF, S_CNT, S_DUM, S_LB, S_TOWN, S_TSND, S_VAL, S_REDO = range(40, 52)
S_T = 52
S_ST = 76

V_KA, V_VA, V_VR, V_DMA, V_L, V_T = 1, 3, 5, 6, 9, 13
V_S, V_CI, V_P, V_K, V_V = 16, 80, 96, 128, 164
V_HI = 200
V_X = 208
A_O, A_Q, A_F = 0, 144, 216

LOG2E = 1.4426950408889634
import struct
def f32(x): return "0x%08x" % struct.unpack("<I", struct.pack("<f", x))[0]


class BAsm(Asm):
    def __init__(self):
        super().__init__()
        self.bg, self.every, self.cnt, self.skip = [], 0, 0, 0

    def __call__(self, s):
        for l in s.split("\n"):
            l = l.strip()
            if not l: continue
            self.lines.append("    " + l)
            if self.bg and self.every and not l.startswith(("s_nop", "v_mov_b32", "v_exp", "v_rcp", "v_rsq", "v_sqrt", "s_add_u32 m0")):
                self.cnt += 1
                if self.cnt >= self.every:
                    self.cnt = 0
                    self.pop()

    def pop(self):
        for x in self.bg.pop(0).split("\n"): self.lines.append("    " + x)

    def flush(self):
        while self.bg: self.pop()
        self.every = 0


class G:
    def __init__(self, opt):
        self.o = opt
        self.a = BAsm()
        self.nst = 0
        self.fill = []

    def stamp(self, name):
        if self.o.get("stamps"):
            if name in self.o.get("skipst", []): return
            if self.nst >= 13: return
            self.a(f"{'s_memtime' if self.o.get('cyc') else 's_memrealtime'} {sr(S_ST + 2*self.nst, 2)}")
            self.stnames.append(name)
            self.nst += 1

    def srd(self, dst, lo, hi, n):
        self.a(f"s_mov_b32 {sr(dst)}, {sr(lo)}\ns_mov_b32 {sr(dst+1)}, {sr(hi)}\ns_mov_b32 {sr(dst+2)}, {n}\ns_mov_b32 {sr(dst+3)}, 0x20000")

    def greduce(self, regs, tmp, op="v_add_f32"):
        a = self.a
        for sw in ("32", "16"):
            for i, r in enumerate(regs): a(f"v_mov_b32 {vr(tmp+i)}, {vr(r)}")
            if len(regs) < 3: a("s_nop 1" if len(regs) == 1 else "s_nop 0")
            for i, r in enumerate(regs): a(f"v_permlane{sw}_swap_b32 {vr(r)}, {vr(tmp+i)}")
            for i, r in enumerate(regs): a(f"{op} {vr(r)}, {vr(r)}, {vr(tmp+i)}")

    def treduce(self, r, op="v_add_f32"):
        a = self.a
        a(f"v_permlane32_swap_b32 {vr(r)}, {vr(r+2)}\nv_permlane32_swap_b32 {vr(r+1)}, {vr(r+3)}")
        a(f"{op} {vr(r)}, {vr(r)}, {vr(r+2)}\n{op} {vr(r+1)}, {vr(r+1)}, {vr(r+3)}\ns_nop 1")
        a(f"v_permlane16_swap_b32 {vr(r)}, {vr(r+1)}\n{op} {vr(r)}, {vr(r)}, {vr(r+1)}")

    def rbf(self, r):
        self.a(f"v_cvt_pk_bf16_f32 {vr(r)}, {vr(r)}, {vr(r)}\nv_lshlrev_b32 {vr(r)}, 16, {vr(r)}")

    def ln_tail(self, F, out, t, mimic):
        a = self.a
        p = lambda r: vr(r, 2)
        self.greduce([t, t + 1], t + 2)
        a(f"v_mul_f32 {vr(t+2)}, {f32(1.0/144)}, {vr(t)}")
        a(f"v_mul_f32 {vr(t+3)}, {vr(t+2)}, {vr(t+2)}")
        a(f"v_mov_b32 {vr(t+4)}, {f32(1.0/144)}")
        a(f"v_fma_f32 {vr(t)}, {vr(t+1)}, {vr(t+4)}, -{vr(t+3)}")
        a(f"v_max_f32 {vr(t)}, 0, {vr(t)}")
        if mimic:
            self.rbf(t)
            self.rbf(t + 2)
            a(f"v_add_f32 {vr(t)}, {f32(1e-5)}, {vr(t)}")
            self.rbf(t)
            a(f"v_sqrt_f32 {vr(t)}, {vr(t)}\ns_nop 0")
            self.rbf(t)
            a(f"v_rcp_f32 {vr(t)}, {vr(t)}\ns_nop 0")
        else:
            a(f"v_add_f32 {vr(t)}, {f32(1e-5)}, {vr(t)}")
            a(f"v_rsq_f32 {vr(t)}, {vr(t)}\ns_nop 0")
        a(f"v_mul_f32 {vr(t+2)}, -{vr(t+2)}, {vr(t)}")
        for i in range(18):
            a(f"v_pk_fma_f32 {p(F+2*i)}, {p(F+2*i)}, {p(t)}, {p(t+2)} op_sel_hi:[1,0,0]")
        for i in range(18):
            a(f"v_cvt_pk_bf16_f32 {vr(out+i)}, {vr(F+2*i)}, {vr(F+2*i+1)}")

    def ln_packed(self, X, F, out, t):
        a = self.a
        a(f"v_mov_b32 {vr(t+6)}, 0x3f803f80")
        for k in range(4): a(f"v_mov_b32 {vr(t+k)}, 0")
        for i in range(18):
            a(f"v_dot2_f32_bf16 {vr(t+2*(i&1))}, {vr(X+i)}, {vr(t+6)}, {vr(t+2*(i&1))}")
            a(f"v_dot2_f32_bf16 {vr(t+1+2*(i&1))}, {vr(X+i)}, {vr(X+i)}, {vr(t+1+2*(i&1))}")
        for i in range(2):
            a(f"v_lshlrev_b32 {vr(F+2*i)}, 16, {vr(X+i)}\nv_and_b32 {vr(F+2*i+1)}, 0xffff0000, {vr(X+i)}")
        a(f"v_pk_add_f32 {vr(t,2)}, {vr(t,2)}, {vr(t+2,2)}")
        un = []
        for i in range(2, 18):
            un.append(f"v_lshlrev_b32 {vr(F+2*i)}, 16, {vr(X+i)}\nv_and_b32 {vr(F+2*i+1)}, 0xffff0000, {vr(X+i)}")
        sv = (a.bg, a.every, a.cnt, a.skip)
        n0 = len(a.lines)
        a.bg, a.every = [], 0
        self.ln_tail(F, out, t, True)
        tail = a.lines[n0:]
        del a.lines[n0:]
        a.bg, a.every, a.cnt, a.skip = sv
        k = next(i for i, l in enumerate(tail) if "v_pk_fma" in l)
        for i, l in enumerate(tail[:k]):
            if "s_nop" in l and un: continue_nop = True
            a(l)
            if un and not l.strip().startswith("s_nop"): a(un.pop(0))
        while un: a(un.pop(0))
        for l in tail[k:]: a(l)

    def ln_f32(self, F, out, t):
        a = self.a
        p = lambda r: vr(r, 2)
        a(f"v_pk_add_f32 {p(t)}, {p(F)}, {p(F+2)}\nv_pk_add_f32 {p(t+2)}, {p(F+4)}, {p(F+6)}")
        a(f"v_pk_mul_f32 {p(t+4)}, {p(F)}, {p(F)}\nv_pk_mul_f32 {p(t+6)}, {p(F+2)}, {p(F+2)}")
        for i in range(2, 18):
            if i >= 4: a(f"v_pk_add_f32 {p(t+2*(i&1))}, {p(t+2*(i&1))}, {p(F+2*i)}")
            a(f"v_pk_fma_f32 {p(t+4+2*(i&1))}, {p(F+2*i)}, {p(F+2*i)}, {p(t+4+2*(i&1))}")
        a(f"v_pk_add_f32 {p(t)}, {p(t)}, {p(t+2)}\nv_pk_add_f32 {p(t+4)}, {p(t+4)}, {p(t+6)}")
        a(f"v_add_f32 {vr(t)}, {vr(t)}, {vr(t+1)}\nv_add_f32 {vr(t+1)}, {vr(t+4)}, {vr(t+5)}")
        self.ln_tail(F, out, t, False)

    def gemm_u(self, AF, rf, Bs, ACC, afr, bfr, post, vm_items=(), other=(), lead=7):
        a = self.a
        units = [(0, j) for j in range(4)] + [(1, j) for j in range(4)] + [(2, 0)]
        seq, dl = [], {}
        rem = lambda u: (f"v_mfma_f32_16x16x16_bf16 {vr(ACC+4*u,4)}, {rf(AF+18*units[u][0]+16,2)}, {vr(Bs[units[u][1]]+16,2)}, {vr(ACC+4*u,4)}", u)
        A = [afr(t) for t in range(3)]
        Bf = [bfr(j) for j in range(4)]

        def use(t, j, s, k):
            for x in (A[t][2 * s:2 * s + 2] if s < 4 else A[t][8:]) + ([Bf[j][s]] if Bf[j] else []): dl.setdefault(x, k)
        for g in range(4):
            for s in range(4):
                for u in range(3 * g, 3 * g + 3) if g < 3 else []:
                    t, j = units[u]
                    d = vr(ACC + 4 * u, 4)
                    use(t, j, s, len(seq))
                    seq.append((f"v_mfma_f32_16x16x32_bf16 {d}, {rf(AF+18*t+4*s,4)}, {vr(Bs[j]+4*s,4)}, {'0' if s == 0 else d}", None))
                if s == 0 and g > 0:
                    for u in range(3 * g - 3, 3 * g):
                        use(units[u][0], units[u][1], 4, len(seq)); seq.append(rem(u))
        last = seq[-3:]; seq = seq[:-3]
        ds = sorted(dl.items(), key=lambda e: e[1]) + [(x, 99) for x in other]
        vm_items = list(vm_items)
        order, ready, q, done = [], [], [], 0

        def issue():
            x, k_ = ds.pop(0); a(x); order.append(k_)

        def wait(k):
            nonlocal done
            idx = [i_ for i_, k_ in enumerate(order) if k_ <= k]
            if idx and max(idx) + 1 > done:
                a(f"s_waitcnt lgkmcnt({min(15, len(order) - 1 - max(idx))})"); done = max(idx) + 1
        while ds and ds[0][1] < 6: issue()
        for k, (m, fin) in enumerate(seq):
            assert not ds or ds[0][1] > k, (k, ds[0])
            wait(k)
            a(m)
            for u_, kk in list(ready):
                if k - kk >= 4: q += post(u_); ready.remove((u_, kk))
            if fin is not None: ready.append((fin, k))
            due = sum(1 for x, k_ in ds if k_ <= k + lead)
            if due == 0 and vm_items and k % 2 == 1:
                a(vm_items.pop(0)); continue
            cap = 2
            for _ in range(min(due, 3)): issue(); cap -= 1
            if cap == 2:
                if q and q[0].startswith("ds_"): a(q.pop(0)); order.append(99); cap -= 1
                elif ds: issue(); cap -= 1
            while cap > 0 and q and not q[0].startswith("ds_"):
                a(q.pop(0)); cap -= 1
        assert not ready
        while ds: issue()
        wait(98)
        for x in vm_items: a(x)
        for x in q[:4]: a(x)
        a(f"s_nop {max(0, 4 - len(q[:4]))}")
        for m, _ in last: a(m)
        for x in q[4:]: a(x)
        a(f"s_nop {max(0, 6 - len(q[4:]))}")
        for u in range(6, 9):
            for x in post(u): a(x)

    def gemm(self, reads, B, ACC, AF, late=()):
        a = self.a
        buf = lambda T: 18 * (T % 6)

        def grp(g):
            r = [reads(T, buf(T)) for T in range(3 * g, 3 * g + 3)]
            return [r[t][2 * s + u] for s in range(4) for t in range(3) for u in range(2)] + [r[t][8] for t in range(3)]
        rem = lambda T: f"v_mfma_f32_16x16x16_bf16 {vr(ACC+4*T,4)}, {ar(buf(T)+16,2)}, {vr(B+16,2)}, {vr(ACC+4*T,4)}"
        pend = grp(0) + grp(1) + grp(2) + list(late)
        issued = 0

        def issue(n):
            nonlocal issued
            for _ in range(n):
                if issued < len(pend): a(pend[issued]); issued += 1
        issue(self.o.get('look', 12))
        for g in range(3):
            for s in range(4):
                need = 27 * g + 6 * (s + 1)
                a(f"s_waitcnt lgkmcnt({min(15, issued - need)})")
                for T in range(3 * g, 3 * g + 3):
                    d = vr(ACC + 4 * T, 4)
                    a(f"v_mfma_f32_16x16x32_bf16 {d}, {ar(buf(T)+4*s,4)}, {vr(B+4*s,4)}, {'0' if s == 0 else d}")
                    issue(2)
                if s == 0 and g > 0:
                    for T in range(3 * g - 3, 3 * g):
                        a(rem(T)); issue(2)
        issue(99)
        a(f"s_waitcnt lgkmcnt({len(late)})\ns_nop 2")
        for T in range(6, 9): a(rem(T))
        a("s_nop 7")

    def tr_reads(self, ad, rf=ar):
        def f(T, dst):
            out = []
            for s in range(4):
                for u in range(2):
                    out.append(f"ds_read_b64_tr_b16 {rf(dst+4*s+2*u,2)}, {vr(ad+u)} offset:{9216*s + 32*T}")
            out.append(f"ds_read_b64_tr_b16 {rf(dst+16,2)}, {vr(ad+2)} offset:{36864 + 32*T}")
            return out
        return f

    def row_reads(self, ad, sw=None):
        def f(T, dst):
            r = ad if sw is None or T == 8 else sw[T & 1]
            out = []
            for s in range(4):
                for u in range(2):
                    out.append(f"ds_read_b64 {ar(dst+4*s+2*u,2)}, {vr(r)} offset:{4864*T + 64*s + 32*u}")
            out.append(f"ds_read_b64 {ar(dst+16,2)}, {vr(r)} offset:{4864*T + 256}")
            return out
        return f

    def dma_rows(self, jobs, cpr, rstride, vo, vc, n_first, first_waves, lab):
        a = self.a
        mul = {18: 3641, 19: 3450}[cpr]
        dr, dc = 256 // cpr, 256 % cpr
        a(f"s_lshl_b32 {sr(S_T)}, {sr(S_W)}, 6")
        a(f"v_add_u32 {vr(vc)}, {sr(S_T)}, v0")
        a(f"v_mul_u32_u24 {vr(vo)}, {mul}, {vr(vc)}")
        a(f"v_lshrrev_b32 {vr(vo)}, 16, {vr(vo)}")
        a(f"v_mul_u32_u24 {vr(vc+1)}, {cpr}, {vr(vo)}")
        a(f"v_sub_u32 {vr(vc)}, {vr(vc)}, {vr(vc+1)}")
        a(f"v_mul_u32_u24 {vr(vo)}, {rstride}, {vr(vo)}")
        a(f"v_lshl_add_u32 {vr(vo)}, {vr(vc)}, 4, {vr(vo)}")
        a(f"s_lshl_b32 {sr(S_T)}, {sr(S_W)}, 10")
        a(f"v_mov_b32 {vr(vc+1)}, {rstride - 16*cpr}")
        for k in range(n_first):
            if k == n_first - 1:
                a(f"s_cmp_ge_u32 {sr(S_W)}, {first_waves}\ns_cbranch_scc1 {lab}")
            for srd, so, lb in jobs:
                a(f"s_add_u32 m0, {sr(S_T)}, {lb + 4096*k}")
                a("s_nop 0")
                a(f"buffer_load_dwordx4 {vr(vo)}, {sr(srd,4)}, {so} offen lds")
            if k < n_first - 1:
                a(f"v_add_u32 {vr(vc)}, {dc}, {vr(vc)}")
                a(f"v_cmp_le_u32 vcc, {cpr}, {vr(vc)}")
                a(f"v_add_u32 {vr(vo)}, {dr*rstride + 16*dc}, {vr(vo)}")
                a(f"v_subrev_u32 {vr(vc+2)}, {cpr}, {vr(vc)}")
                a(f"v_cndmask_b32 {vr(vc)}, {vr(vc)}, {vr(vc+2)}, vcc")
                a(f"v_cndmask_b32 {vr(vc+2)}, 0, {vr(vc+1)}, vcc")
                a(f"v_add_u32 {vr(vo)}, {vr(vo)}, {vr(vc+2)}")
        a.label(lab)

    def voff_table(self, dst, cpr, rstride, vc):
        a = self.a
        mul = {18: 29128, 19: 27595}[cpr]
        a(f"s_mov_b32 {sr(S_T)}, {rstride - 16*cpr}")
        a(f"v_mul_u32_u24 {vr(dst)}, {mul}, {vr(vc)}")
        for k in range(1, 11): a(f"v_add_u32 {vr(dst+k)}, {(256*k % cpr)*mul}, {vr(dst)}")
        for k in range(11): a(f"v_lshrrev_b32 {vr(dst+k)}, 19, {vr(dst+k)}")
        for k in range(11): a(f"v_mad_i32_i24 {vr(dst+k)}, {vr(dst+k)}, {sr(S_T)}, {vr(vc+1)}")

    def dma_lin(self, srd, soff, lb, v16, lab):
        a = self.a
        a(f"s_lshl_b32 {sr(S_T)}, {sr(S_W)}, 10")
        for k in range(11):
            if k == 10:
                a(f"s_cmp_ge_u32 {sr(S_W)}, 1\ns_cbranch_scc1 {lab}")
            a(f"s_add_u32 m0, {sr(S_T)}, {lb + 4096*k}")
            a(f"s_add_u32 {sr(S_T+1)}, {sr(S_T)}, {soff + 4096*k}")
            a(f"buffer_load_dwordx4 {vr(v16)}, {sr(srd,4)}, {sr(S_T+1)} offen lds")
        a.label(lab)

    def tr_addr(self, ad, base, swapped, t):
        a = self.a
        a(f"v_lshrrev_b32 {vr(t)}, 2, v0")
        a(f"v_mul_u32_u24 {vr(t)}, 288, {vr(t)}")
        a(f"v_and_b32 {vr(t+1)}, 3, v0")
        a(f"v_lshl_add_u32 {vr(t)}, {vr(t+1)}, 3, {vr(t)}")
        a(f"v_add_u32 {vr(ad+2)}, {base}, {vr(t)}")
        if swapped:
            a(f"v_bfe_u32 {vr(t)}, v0, 4, 1")
            a(f"v_mul_u32_u24 {vr(t)}, {16*288}, {vr(t)}")
            a(f"v_add_u32 {vr(ad)}, {vr(ad+2)}, {vr(t)}")
            a(f"v_sub_u32 {vr(ad+1)}, {vr(ad+2)}, {vr(t)}")
            a(f"v_add_u32 {vr(ad+1)}, {16*288}, {vr(ad+1)}")
        else:
            a(f"v_mov_b32 {vr(ad)}, {vr(ad+2)}")
            a(f"v_add_u32 {vr(ad+1)}, {16*288}, {vr(ad+2)}")

    def row_addr(self, ad, base, t):
        a = self.a
        a(f"v_and_b32 {vr(t)}, 15, v0")
        a(f"v_mul_u32_u24 {vr(t)}, 304, {vr(t)}")
        a(f"v_lshrrev_b32 {vr(t+1)}, 4, v0")
        a(f"v_lshl_add_u32 {vr(t)}, {vr(t+1)}, 3, {vr(t)}")
        a(f"v_add_u32 {vr(ad)}, {base}, {vr(t)}")

    def store_block(self, src, v16, v8, srd, soff, soff2, flags=""):
        a = self.a
        for s in range(4):
            a(f"buffer_store_dwordx4 {vr(src+4*s,4)}, {vr(v16)}, {sr(srd,4)}, {sr(soff)} offen offset:{1024*s} {flags}")
        a(f"buffer_store_dwordx2 {vr(src+16,2)}, {vr(v8)}, {sr(srd,4)}, {sr(soff2)} offen {flags}")

    def entry(self):
        a = self.a
        kernel_header(a, NAME)
        a(f"s_load_dwordx4 s[56:59], s[0:1], 0")
        a(f"s_getpc_b64 {sr(S_W1,2)}")
        a.label("L_pf")
        a(f"""s_mov_b32 {sr(S_W1+2)}, L_dummy-L_pf
        s_mov_b32 {sr(S_W1+3)}, 0x20000
        v_lshlrev_b32 v1, 4, v0
        s_bfe_u32 {sr(S_T)}, s2, 0x30003
        s_lshl_b32 {sr(S_T)}, {sr(S_T)}, 12
        buffer_load_dwordx4 v[252:255], v1, {sr(S_W1,4)}, 0 offen
        buffer_load_dwordx4 v[252:255], v1, {sr(S_W1,4)}, {sr(S_T)} offen""")
        a(f"s_cmp_ge_u32 s2, {NWG}\ns_cbranch_scc1 L_end")
        self.stamp("start")
        a(f"s_load_dwordx4 s[60:63], s[0:1], 80")
        a(f"s_load_dwordx4 s[64:67], s[0:1], 40")
        a(f"s_load_dwordx4 s[68:71], s[0:1], 16")
        a(f"s_load_dwordx4 s[72:75], s[0:1], 64")
        a(f"v_lshrrev_b32 v1, 6, v0")
        a(f"s_and_b32 {sr(S_H)}, s2, 1")
        a(f"v_readfirstlane_b32 {sr(S_W)}, v1")
        a(f"s_bfe_u32 {sr(S_B)}, s2, 0x10001")
        a(f"s_lshr_b32 {sr(S_QB)}, s2, 2")
        a(f"v_and_b32 v0, 63, v0")
        a(f"v_lshlrev_b32 {vr(V_DMA)}, 4, v0")
        a(f"s_cmp_ge_u32 s2, 252\ns_cbranch_scc1 L_wfuse")

    def phase_a(self):
        a, o = self.a, self.o
        XR, XF, XA, ACC = 16, 34, 146, 110
        B4, XD, G_ = 16, 88, 16
        VS, VSW, VR4, MXA, MXR, L8, TRU, TRQ, TRQ8, RK, TM = 200, 204, 208, 212, 213, 214, 215, 218, 221, 224, 242
        VK, VU = 182, 228
        t0, t1, t2 = 250, 251, 241
        AQ1 = 200
        L_QR2 = L_XR + 0
        T = S_T
        WV = S_T + 20
        L_XS = L_WU
        a(f"""s_lshl_b32 {sr(T)}, {sr(S_QB)}, 1
        s_add_u32 {sr(S_TOWN)}, {sr(T)}, {sr(S_H)}
        s_xor_b32 {sr(S_TSND)}, {sr(S_TOWN)}, 1
        s_cmp_lt_u32 {sr(S_TOWN)}, {NT}
        s_cselect_b32 {sr(S_VAL)}, 1, 0
        s_cmp_lt_u32 {sr(S_W)}, 2
        s_cselect_b32 {sr(T+3)}, {sr(S_TSND)}, {sr(S_TOWN)}
        s_mul_i32 {sr(T)}, {sr(S_B)}, {NT}
        s_add_u32 {sr(S_TOWN)}, {sr(S_TOWN)}, {sr(T)}
        s_add_u32 {sr(S_TSND)}, {sr(S_TSND)}, {sr(T)}
        s_add_u32 {sr(T+1)}, {sr(T+3)}, {sr(T)}
        s_lshl_b32 {sr(T+1)}, {sr(T+1)}, 1
        s_and_b32 {sr(T+2)}, {sr(S_W)}, 1
        s_add_u32 {sr(T+2)}, {sr(T+1)}, {sr(T+2)}
        s_mul_i32 {sr(T+1)}, {sr(T+2)}, {16*288}
        s_mul_i32 {sr(S_LB)}, {sr(S_W)}, 5120
        s_add_u32 {sr(S_LB)}, {sr(S_LB)}, {L_XS}
        s_mov_b32 m0, {sr(S_LB)}
        s_mov_b32 {sr(S_X+2)}, 2304000
        s_mov_b32 {sr(S_X+3)}, 0x20000
        s_add_u32 {sr(S_CNT)}, {sr(T+1)}, 4096
        s_waitcnt lgkmcnt(0)
        s_mov_b32 {sr(S_X)}, s56
        s_mov_b32 {sr(S_X+1)}, s57""")
        for k in range(4): a(f"buffer_load_dwordx4 {vr(V_DMA)}, {sr(S_X,4)}, {sr(T+1)} offen offset:{1024*k} lds")
        a(f"s_add_u32 m0, {sr(S_LB)}, 4096\ns_mov_b32 exec_hi, 0\nbuffer_load_dwordx4 {vr(V_DMA)}, {sr(S_X,4)}, {sr(S_CNT)} offen lds\ns_mov_b32 exec_hi, -1")
        self.stamp("xiss")
        SQ, SK, SU = S_W2, S_W1, S_XA
        self.srd(SQ, 58, 59, 41472)
        self.srd(SK, 68, 69, 41472)
        self.srd(SU, 64, 65, 82944)
        a(f"s_lshr_b32 {sr(T)}, s2, 3\ns_lshl_b32 {sr(T)}, {sr(T)}, 2\ns_add_u32 {sr(T)}, {sr(T)}, {sr(S_W)}")
        npf = 3
        for srd_, rot in ((SQ, 0), (SK, 87), (SU, 46)):
            a(f"s_add_u32 {sr(T+1)}, {sr(T)}, {rot}\ns_and_b32 {sr(T+1)}, {sr(T+1)}, 127\ns_lshl_b32 {sr(T+1)}, {sr(T+1)}, 10")
            a(f"buffer_load_dwordx4 v[252:255], {vr(V_DMA)}, {sr(srd_,4)}, {sr(T+1)} offen")
        self.srd(S_OUT, 74, 75, 2304000)
        if o.get("touch"):
            self.srd(S_WS, 62, 63, WS_END)
            self.srd(S_DB, 60, 61, 256)
            step = o["touch"]
            a(f"v_mul_u32_u24 v250, {step}, v0\nv_mov_b32 v251, 0")
            a(f"buffer_load_dword v252, v250, {sr(S_WS,4)}, 0 offen sc1")
            a(f"buffer_load_dword v252, v250, {sr(S_OUT,4)}, 0 offen sc1")
            a(f"buffer_load_dword v252, v251, {sr(S_DB,4)}, 0 offen offset:252 sc1")
            npf += 3
        a(f"s_cmp_lt_u32 {sr(T+3)}, {NT}\ns_cselect_b32 {sr(WV)}, 1, 0\ns_mov_b32 {sr(WV+1)}, {sr(T+2)}")
        W10, UOFF, M1, M3, PUB, W12 = S_T + 22, S_T + 23, S_T + 18, S_T + 19, S_T + 6, S_T + 7
        a(f"""s_lshl_b32 {sr(W10)}, {sr(S_W)}, 10
        s_mul_i32 {sr(UOFF)}, {sr(S_H)}, 288
        s_cmp_eq_u32 {sr(S_W)}, 0
        s_cselect_b32 {sr(M1)}, 0, {L_DUMP}
        s_cmp_lt_u32 {sr(S_W)}, 3
        s_cselect_b32 {sr(M3)}, {sr(W10)}, {L_DUMP}
        s_lshl_b32 {sr(W12)}, {sr(S_W)}, 12""")
        gq = []
        for c in range(6):
            for k in range(4 if c < 5 else 1):
                g_ = f"buffer_load_dwordx4 {vr(V_DMA)}, {sr(SQ,4)}, {sr(S_CNT)} offen offset:{1024*k} lds"
                if k == 0: g_ = f"s_add_u32 m0, {sr(W12 if c < 5 else M1)}, {L_WQ + 8192*c}\ns_add_u32 {sr(S_CNT)}, {sr(W12)}, {8192*c}\n" + g_
                gq.append(g_)
        gk = [f"s_add_u32 m0, {sr(W10 if k < 10 else M3)}, {L_WK + 4096*k}\ns_mov_b32 {sr(S_CNT)}, {4096*k - 16*(256*k//19)}\nbuffer_load_dwordx4 {vr(VK+k)}, {sr(SK,4)}, {sr(S_CNT)} offen lds" for k in range(11)]
        gu = [f"s_add_u32 m0, {sr(W10 if k < 10 else M1)}, {L_WU + 4096*k}\ns_add_u32 {sr(S_CNT)}, {sr(UOFF)}, {4096*k + 288*(256*k//18)}\nbuffer_load_dwordx4 {vr(VU+k)}, {sr(SU,4)}, {sr(S_CNT)} offen lds" for k in range(11)]
        npre = o.get("npre", 8)
        a(f"s_cmp_ge_u32 {sr(S_W)}, 2\ns_cbranch_scc1 L_pre1")
        for g_ in gq[:npre]: a(g_)
        a.label("L_pre1")
        a(f"s_lshl_b32 {sr(T)}, {sr(S_W)}, 6\nv_add_u32 {vr(t0)}, {sr(T)}, v0\nv_lshlrev_b32 {vr(t1)}, 4, {vr(t0)}")
        self.voff_table(VK, 19, 288, t0)
        self.voff_table(VU, 18, 576, t0)
        self.srd(S_WS, 62, 63, WS_END)
        self.srd(S_DB, 60, 61, 256)
        self.srd(S_DW, 66, 67, 864)
        xa0, xa1, xa2 = TM, TM + 1, TM + 2
        a(f"""v_and_b32 {vr(t0)}, 15, v0
        v_lshrrev_b32 {vr(t1)}, 5, v0
        v_lshlrev_b32 {vr(t1)}, 3, {vr(t1)}
        v_xor_b32 {vr(t1)}, {vr(t0)}, {vr(t1)}
        v_lshlrev_b32 {vr(t1)}, 4, {vr(t1)}
        v_lshrrev_b32 {vr(t2)}, 4, v0
        v_lshl_add_u32 {vr(V_KA)}, {vr(t2)}, 9, {vr(t1)}
        v_lshrrev_b32 {vr(t1)}, 3, {vr(t0)}
        v_lshlrev_b32 {vr(t1)}, 1, {vr(t1)}
        v_xor_b32 {vr(t1)}, {vr(t2)}, {vr(t1)}
        v_lshl_add_u32 {vr(t1)}, {vr(t0)}, 2, {vr(t1)}
        v_lshlrev_b32 {vr(V_KA+1)}, 3, {vr(t1)}
        v_lshlrev_b32 {vr(L8)}, 3, v0
        v_lshlrev_b32 {vr(MXR)}, 4, {vr(t0)}
        v_add_u32 {vr(MXR)}, {L_MX}, {vr(MXR)}
        v_add_u32 {vr(MXA)}, {sr(S_W)}, {vr(t2)}
        v_and_b32 {vr(MXA)}, 3, {vr(MXA)}
        v_lshl_add_u32 {vr(MXA)}, {vr(MXA)}, 8, {vr(MXR)}
        s_lshl_b32 {sr(T)}, {sr(S_W)}, 2
        v_add_u32 {vr(MXA)}, {sr(T)}, {vr(MXA)}
        v_mul_u32_u24 {vr(xa2)}, 288, {vr(t0)}
        v_lshl_add_u32 {vr(xa2)}, {vr(t2)}, 3, {vr(xa2)}
        v_add_u32 {vr(xa2)}, {sr(S_LB)}, {vr(xa2)}
        v_and_b32 {vr(t1)}, 1, {vr(t2)}
        v_lshlrev_b32 {vr(t1)}, 5, {vr(t1)}
        v_add_u32 {vr(xa0)}, {vr(xa2)}, {vr(t1)}
        v_xor_b32 {vr(t1)}, 32, {vr(t1)}
        v_add_u32 {vr(xa1)}, {vr(xa2)}, {vr(t1)}
        s_mul_i32 {sr(S_LB)}, {sr(S_W)}, {TILE}
        v_lshrrev_b32 {vr(t0)}, 2, v0
        v_bfe_u32 {vr(t1)}, v0, 1, 1
        v_lshlrev_b32 {vr(t1)}, 3, {vr(t1)}
        v_xor_b32 {vr(t1)}, {vr(t0)}, {vr(t1)}
        v_lshlrev_b32 {vr(t1)}, 4, {vr(t1)}
        v_and_b32 {vr(t2)}, 3, v0
        v_lshl_add_u32 {vr(t1)}, {vr(t2)}, 9, {vr(t1)}
        v_and_b32 {vr(V_VA)}, 1, v0
        v_lshl_add_u32 {vr(t1)}, {vr(V_VA)}, 3, {vr(t1)}
        v_add_u32 {vr(V_VA)}, {sr(S_LB)}, {vr(t1)}
        v_xor_b32 {vr(V_VA+1)}, 8, {vr(V_VA)}
        v_lshrrev_b32 {vr(t1)}, 5, v0
        v_lshlrev_b32 {vr(t1)}, 1, {vr(t1)}
        v_xor_b32 {vr(t1)}, {vr(t2)}, {vr(t1)}
        v_lshl_add_u32 {vr(t1)}, {vr(t0)}, 2, {vr(t1)}
        v_lshlrev_b32 {vr(t1)}, 3, {vr(t1)}
        v_add_u32 {vr(V_VR)}, {sr(S_LB)}, {vr(t1)}
        v_add_u32 {vr(V_DMA+1)}, 4096, {vr(V_DMA)}
        v_add_u32 {vr(V_DMA+2)}, 8192, {vr(V_DMA)}""")
        self.tr_addr(TRU, L_WU, True, t0)
        a(f"s_lshl_b32 {sr(T)}, {sr(S_W)}, 6\ns_sub_u32 {sr(T)}, {sr(T)}, {L_WU - L_WQ}")
        for k in range(3):
            a(f"v_add_u32 {vr(TRQ+k)}, {sr(T)}, {vr(TRU+k)}\nv_subrev_u32 {vr(TRQ8+k)}, {L_WU - L_WQ - 256}, {vr(TRU+k)}")
        self.row_addr(RK + 2, L_WK + 8 * 4864, t0)
        a(f"""s_mul_i32 {sr(T)}, {sr(S_W)}, {2*4864}
        s_sub_u32 {sr(T)}, {sr(T)}, {8*4864}
        v_add_u32 {vr(t1)}, {sr(T)}, {vr(RK+2)}
        v_bfe_u32 {vr(t0)}, v0, 2, 1
        v_mul_u32_u24 {vr(t0)}, 4864, {vr(t0)}
        v_add_u32 {vr(RK)}, {vr(t1)}, {vr(t0)}
        v_sub_u32 {vr(RK+1)}, {vr(t1)}, {vr(t0)}""")
        for j in range(4):
            a(f"""s_add_u32 {sr(T)}, {sr(S_W)}, {j}
            s_and_b32 {sr(T)}, {sr(T)}, 3
            s_lshl_b32 {sr(T+1)}, {sr(T)}, 12
            s_add_u32 {sr(T+1)}, {sr(T+1)}, {L_XX}
            v_add_u32 {vr(VS+j)}, {sr(T+1)}, {vr(V_DMA)}
            s_lshl_b32 {sr(T+1)}, {sr(T)}, 9
            s_add_u32 {sr(T+1)}, {sr(T+1)}, {L_XR}
            v_add_u32 {vr(VR4+j)}, {sr(T+1)}, {vr(L8)}
            v_add_u32 {vr(VSW+j)}, {sr(W10)}, {vr(VS+j)}""")
        a(f"""s_sub_u32 {sr(T+2)}, 63, {sr(S_H)}
        s_add_u32 {sr(T+3)}, {sr(S_W)}, 60
        s_cmp_ge_u32 {sr(T+3)}, {sr(T+2)}
        s_cselect_b32 {sr(S_DUM)}, 4, 99
        s_mov_b32 {sr(S_REDO)}, 0
        s_mov_b32 {sr(S_TOFF)}, {sr(S_LB)}
        v_mov_b32 {vr(t0)}, {L_MX}
        v_mov_b32 {vr(t1)}, 0
        ds_write_b32 {vr(t0)}, {vr(t1)}
        s_sub_u32 {sr(T)}, {sr(S_TOWN)}, 63
        s_mul_i32 {sr(T+1)}, {sr(S_B)}, {NT}
        s_cmp_ge_i32 {sr(T)}, {sr(T+1)}
        s_cselect_b32 {sr(T)}, 64, 0
        s_lshl_b32 {sr(T+1)}, {sr(S_B)}, 7
        s_add_u32 {sr(PUB)}, {sr(T)}, {sr(T+1)}""")
        self.stamp("pre")

        def xread():
            for s in range(4):
                a(f"ds_read_b64 {vr(XR+4*s,2)}, {vr(xa0)} offset:{64*s}\nds_read_b64 {vr(XR+4*s+2,2)}, {vr(xa1)} offset:{64*s}")
            a(f"ds_read_b64 {vr(XR+16,2)}, {vr(xa2)} offset:256")
        xw = [f"ds_write_b128 {vr(VS)}, {vr(XA+4*s,4)} offset:{1024*s}" for s in range(4)] + [f"ds_write_b64 {vr(VR4)}, {vr(XA+16,2)}"]
        a(f"s_cmp_lt_u32 {sr(S_W)}, 2\ns_cbranch_scc1 L_lnB")
        a(f"s_waitcnt vmcnt({npf})")
        self.stamp("xarr")
        xread()
        a(f"""s_and_b32 {sr(T)}, {sr(S_W)}, 1
        s_mul_i32 {sr(T+2)}, {sr(S_TOWN)}, {TILE}
        s_cmp_eq_u32 {sr(S_VAL)}, 1
        s_cselect_b32 {sr(T+2)}, {sr(T+2)}, 0x40000000
        s_lshl_b32 {sr(T+3)}, {sr(T)}, 8
        s_add_u32 {sr(T+3)}, {sr(T+3)}, {sr(T+2)}
        s_add_u32 {sr(T+4)}, {sr(T+3)}, 4096
        s_lshl_b32 {sr(T+5)}, {sr(T)}, 9
        s_add_u32 {sr(T+5)}, {sr(T+5)}, {sr(T+2)}
        s_add_u32 {sr(T+5)}, {sr(T+5)}, 8192
        s_waitcnt lgkmcnt(0)""")
        self.ln_packed(XR, XF, XA, TM)
        for s in range(4):
            a(f"buffer_store_dwordx4 {vr(XA+4*s,4)}, {vr(V_KA)}, {sr(S_WS,4)}, {sr(T+3+(s>>1))} offen offset:{2048*(s&1)} sc1")
        a(f"buffer_store_dwordx2 {vr(XA+16,2)}, {vr(V_KA+1)}, {sr(S_WS,4)}, {sr(T+5)} offen sc1")
        for x in xw: a(x)
        a("s_branch L_bar1")
        a.label("L_lnB")
        a(f"s_waitcnt vmcnt({npf + npre})")
        xread()
        nmid = o.get("nmid", 3)
        for g_ in gq[npre:npre + nmid]: a(g_)
        a("s_waitcnt lgkmcnt(0)")
        a.bg, a.every, a.cnt = gq[npre + nmid:], o.get("evln", 8), 0
        self.ln_packed(XR, XF, XA, TM)
        a.flush()
        for x in xw: a(x)
        a(f"""s_mul_i32 {sr(T)}, s2, {IB}
        s_mul_i32 {sr(T+1)}, {sr(S_W)}, 5120
        s_add_u32 {sr(T)}, {sr(T)}, {sr(T+1)}
        s_add_u32 {sr(T)}, {sr(T)}, {WS_IB}
        s_add_u32 {sr(T+1)}, {sr(T)}, 4096""")
        for i in range(4): a(f"v_mov_b32 {vr(XR+i)}, -1")
        for i in range(4): a(f"buffer_store_dwordx4 {vr(XR,4)}, {vr(V_DMA)}, {sr(S_WS,4)}, {sr(T)} offen offset:{1024*i} sc1")
        a(f"buffer_store_dwordx4 {vr(XR,4)}, {vr(V_DMA)}, {sr(S_WS,4)}, {sr(T+1)} offen sc1")
        a.label("L_bar1")
        self.stamp("pub")
        n1 = o.get("n1", 4)
        for g_ in gk[:n1]: a(g_)
        a(f"v_add_u32 {vr(V_KA)}, {sr(S_LB)}, {vr(V_KA)}\nv_add_u32 {vr(V_KA+1)}, {sr(S_LB)}, {vr(V_KA+1)}")
        a(f"s_waitcnt vmcnt({5 + n1}) lgkmcnt(0)\ns_barrier")
        self.stamp("bar1")

        def a_tr(t):
            ad, off = (TRQ, 32 * t) if t < 2 else (TRQ8, 0)
            return [f"ds_read_b64_tr_b16 {ar(AQ1+18*t+4*s+2*u,2)}, {vr(ad+u)} offset:{9216*s + off}" for s in range(4) for u in range(2)] + \
                   [f"ds_read_b64_tr_b16 {ar(AQ1+18*t+16,2)}, {vr(ad+2)} offset:{36864 + off}"]

        def a_row(t):
            off = 4864 * t if t < 2 else 0
            return [f"ds_read_b64 {ar(A_Q+18*t+4*s+2*u,2)}, {vr(RK+t)} offset:{off + 64*s + 32*u}" for s in range(4) for u in range(2)] + \
                   [f"ds_read_b64 {ar(A_Q+18*t+16,2)}, {vr(RK+t)} offset:{off + 256}"]
        bq = lambda j: [f"ds_read_b128 {vr(B4+18*j+4*s,4)}, {vr(VS+j)} offset:{1024*s}" for s in range(4)] + [f"ds_read_b64 {vr(B4+18*j+16,2)}, {vr(VR4+j)}"]

        PK = 164

        def post1(u):
            L = [f"v_cvt_pk_bf16_f32 {vr(PK + (4*(u&3) + 2*(u>>2) if u < 8 else 16) + h)}, {vr(ACC+4*u+2*h)}, {vr(ACC+4*u+2*h+1)}" for h in range(2)]
            return L
        xd = [f"ds_read_b128 {vr(XD+4*j,4)}, {vr(VSW+j)}" for j in range(4)]
        self.gemm_u(AQ1, ar, [XA, B4 + 18, B4 + 36, B4 + 54], ACC, a_tr, lambda j: bq(j) if j else None, post1, vm_items=gk[n1:], other=xd)
        a(f"""v_mov_b32 {vr(t0)}, 0x40000000
        v_mov_b32 {vr(t1)}, 1
        s_mov_b64 exec, 1
        s_cmp_lt_u32 {sr(S_W)}, 2
        s_cbranch_scc1 L_sig
        s_cmp_eq_u32 {sr(S_VAL)}, 0
        s_cbranch_scc1 L_sig
        s_waitcnt vmcnt(11)
        v_mov_b32 {vr(t2)}, {L_MX}
        ds_add_rtn_u32 {vr(t2)}, {vr(t2)}, {vr(t1)}
        s_waitcnt lgkmcnt(0)
        v_readfirstlane_b32 {sr(T+1)}, {vr(t2)}
        s_cmp_eq_u32 {sr(T+1)}, 1
        s_cselect_b32 {sr(T)}, {sr(PUB)}, 0x40000000
        v_mov_b32 {vr(t0)}, {sr(T)}""")
        a.label("L_sig")
        a(f"buffer_atomic_add {vr(t1)}, {vr(t0)}, {sr(S_DB,4)}, 0 offen sc1\ns_mov_b64 exec, -1")
        self.stamp("sig")
        a("s_waitcnt lgkmcnt(0)\ns_barrier")
        for j in range(4): a(f"ds_write_b128 {vr(VSW+j)}, {vr(PK+4*j,4)}")
        a(f"ds_write_b64 {vr(VR4)}, {vr(PK+16,2)}")
        n2 = o.get("n2", 3)
        for g_ in gu[:n2]: a(g_)
        a(f"s_mov_b32 {sr(T+4)}, {f32(LOG2E / 12.0)}\ns_waitcnt vmcnt({1 + n2}) lgkmcnt(0)\ns_barrier")
        self.stamp("bar2")

        def post2(u):
            L = [f"v_mul_f32 {vr(ACC+4*u+i)}, {sr(T+4)}, {vr(ACC+4*u+i)}" for i in range(4)]
            L += [f"v_cvt_pk_bf16_f32 {vr(PK + (4*(u&3) + 2*(u>>2) if u < 8 else 16) + h)}, {vr(ACC+4*u+2*h)}, {vr(ACC+4*u+2*h+1)}" for h in range(2)]
            if 4 <= u < 8: L.append(f"ds_write_b128 {vr(VSW+u-4)}, {vr(PK+4*(u-4),4)} offset:{L_QX - L_XX}")
            if u == 8: L.append(f"ds_write_b64 {vr(t2)}, {vr(PK+16,2)}")
            return L
        a(f"v_subrev_u32 {vr(t2)}, {L_XR - L_QR}, {vr(VR4)}")
        self.gemm_u(A_Q, ar, [B4 + 18 * j for j in range(4)], ACC, a_row, bq, post2, vm_items=gu[n2:])
        self.stamp("g2")
        CC = TM
        for j in range(4): a(f"v_dot2_f32_bf16 {vr(CC+j)}, {vr(PK+4*j)}, {vr(XD+4*j)}, 0")
        for i in range(2): a(f"v_dot2_f32_bf16 {vr(CC)}, {vr(PK+16+i)}, {vr(XA+16+i)}, {vr(CC)}")
        for i in range(1, 4):
            for j in range(4): a(f"v_dot2_f32_bf16 {vr(CC+j)}, {vr(PK+4*j+i)}, {vr(XD+4*j+i)}, {vr(CC+j)}")
        a(f"""s_lshl_b32 {sr(T)}, s2, 6
        s_and_b32 {sr(T)}, {sr(T)}, 0xff
        v_mov_b32 {vr(t0)}, {sr(T)}
        v_add_u32 {vr(VS)}, {L_QX}, {vr(V_DMA)}
        v_add_u32 {vr(VS+1)}, {L_QR}, {vr(L8)}""")
        self.treduce(CC)
        a(f"ds_write_b32 {vr(MXA)}, {vr(CC)}")
        a(self.xa_srd())
        a("s_waitcnt vmcnt(0) lgkmcnt(0)\ns_barrier")
        self.stamp("bar3")
        a(f"buffer_load_dword {vr(t1)}, {vr(t0)}, {sr(S_DB,4)}, 0 offen sc1")
        MS = 88
        qrd = [f"ds_read_b128 {vr(MS+4*qb,4)}, {vr(MXR)} offset:{256*qb}" for qb in range(4)]
        qrd += [f"ds_read_b64 {ar(A_Q+18*qb+16,2)}, {vr(VS+1)} offset:{512*qb}" for qb in range(4)]
        for qb in range(4):
            qrd += [f"ds_read_b128 {ar(A_Q+18*qb+4*s,4)}, {vr(VS)} offset:{4096*qb + 1024*s}" for s in range(4)]
        self.gemm(self.tr_reads(TRU), XA, ACC, None, late=qrd[:9])
        self.stamp("up")
        a(f"""s_cmp_lg_u32 {sr(S_W)}, 0
        s_cbranch_scc1 L_bar4
        s_sub_u32 {sr(T+1)}, 63, {sr(S_H)}
        s_mov_b32 {sr(T+2)}, 0
        s_branch L_pollc""")
        a.label("L_poll")
        a(f"buffer_load_dword {vr(t1)}, {vr(t0)}, {sr(S_DB,4)}, 0 offen sc1")
        a.label("L_pollc")
        a(f"""s_add_u32 {sr(T+2)}, {sr(T+2)}, 1
        s_waitcnt vmcnt(0)
        v_readfirstlane_b32 {sr(T+3)}, {vr(t1)}
        s_cmp_ge_u32 {sr(T+3)}, {sr(T+1)}
        s_cbranch_scc1 L_bar4
        s_cmp_lt_u32 {sr(T+2)}, 0x40000
        s_cbranch_scc1 L_poll""")
        a.label("L_bar4")
        a("s_waitcnt lgkmcnt(0)\ns_barrier")
        self.stamp("bar4")
        p = lambda r: vr(r, 2)
        c1 = -2.0 * math.sqrt(2.0 / math.pi) * LOG2E
        c2 = c1 * 0.044715
        tg = self.tile_groups(0) + self.tile_groups(1)
        if o.get("latedma"): tg_late, tg = tg, [""] * 18
        for x in tg[:5]: a(x)
        if o.get("dma1"): self.stamp("d5")
        a(f"v_mov_b32 {vr(CC)}, {f32(c1)}\nv_mov_b32 {vr(CC+2)}, {f32(c2)}\nv_mov_b32 {vr(CC+4)}, 1.0")
        a.bg, a.every, a.cnt = [x for x in tg[5:9] if x] + [qrd[i] + "\n" + qrd[i + 1] for i in range(9, 23, 2)] + [qrd[23]], 4, 0
        for i in range(18): a(f"v_pk_mul_f32 {p(G_+2*i)}, {p(ACC+2*i)}, {p(ACC+2*i)}")
        for i in range(18): a(f"v_pk_fma_f32 {p(G_+2*i)}, {p(G_+2*i)}, {p(CC+2)}, {p(CC)} op_sel_hi:[1,0,0]")
        for i in range(18): a(f"v_pk_mul_f32 {p(G_+2*i)}, {p(G_+2*i)}, {p(ACC+2*i)}")
        a.flush()
        self.stamp("ge1")
        t1g = tg[9:]
        for i in range(36):
            a(f"v_exp_f32 {vr(G_+i)}, {vr(G_+i)}")
            if i % 4 == 3 and t1g: a(t1g.pop(0))
        self.stamp("ge2")
        if o.get("latedma"):
            for x in tg_late: a(x)
        for i in range(18): a(f"v_pk_add_f32 {p(G_+2*i)}, {p(G_+2*i)}, {p(CC+4)} op_sel_hi:[1,0]")
        for i in range(36): a(f"v_rcp_f32 {vr(G_+i)}, {vr(G_+i)}")
        for i in range(18): a(f"v_pk_mul_f32 {p(ACC+2*i)}, {p(G_+2*i)}, {p(ACC+2*i)}")
        UG = 164
        a(f"""s_mul_i32 {sr(T)}, {sr(WV+1)}, {BLK}
        s_cmp_eq_u32 {sr(S_H)}, 1
        s_cbranch_scc1 L_ln2
        s_add_u32 {sr(T)}, {sr(T)}, {WS_U}""")
        for i in range(18): a(f"v_cvt_pk_bf16_f32 {vr(UG+i)}, {vr(ACC+2*i)}, {vr(ACC+2*i+1)}")
        a("s_branch L_ug")
        a.label("L_ln2")
        a(f"s_add_u32 {sr(T)}, {sr(T)}, {WS_G}")
        self.ln_f32(ACC, UG, TM)
        a.label("L_ug")
        self.stamp("ge3")
        a(f"s_cmp_eq_u32 {sr(WV)}, 1\ns_cselect_b32 {sr(T)}, {sr(T)}, 0x40000000\ns_add_u32 {sr(T+1)}, {sr(T)}, 4096\ns_waitcnt vmcnt(9) lgkmcnt(0)")
        for x in self.k_reads(0): a(x)
        self.store_block(UG, V_DMA, L8, S_WS, T, T + 1, "sc1")
        for qb in range(4):
            m = MS + 4 * qb
            a(f"v_add_f32 {vr(m)}, {vr(m)}, {vr(m+1)}\nv_add_f32 {vr(m+2)}, {vr(m+2)}, {vr(m+3)}")
        for qb in range(4): a(f"v_add_f32 {vr(self.MK+qb)}, {vr(MS+4*qb)}, {vr(MS+4*qb+2)}")
        for qb in range(4): a(f"v_sub_f32 {vr(self.MK+qb)}, 0, {vr(self.MK+qb)}")
        self.stamp("ug")

    def tile_groups(self, slot):
        out = []
        for j in range(9):
            g = ""
            if j % 4 == 0: g = f"s_add_u32 m0, {sr(S_LB)}, {slot*SLOT + 4096*(j//4)}\ns_nop 0\n"
            g += f"buffer_load_dwordx4 {vr(V_DMA + j//4)}, {sr(S_XA,4)}, {sr(S_TOFF)} offen offset:{1024*(j%4)} lds"
            if j == 8: g += f"\ns_add_u32 {sr(S_TOFF)}, {sr(S_TOFF)}, {4*TILE}"
            out.append(g)
        return out

    def first_tiles(self):
        pass

    def wfuse(self):
        a = self.a
        BF, ACC, AF, TM, AD = 88, 108, 144, 208, 240
        LA, LB_, LM = 0, 44032, 88064
        T = S_T
        a.label("L_wfuse")
        a(f"s_load_dwordx2 s[4:5], s[0:1], 32\ns_load_dwordx2 s[6:7], s[0:1], 56\ns_waitcnt lgkmcnt(0)")
        self.srd(S_WS, 62, 63, WS_END)
        self.srd(S_DB, 60, 61, 256)
        self.srd(S_X, 72, 73, 82944)
        self.srd(S_W2, 70, 71, 41472)
        a(f"""s_cmp_eq_u32 s2, 252
        s_cselect_b32 {sr(S_W1)}, s4, s6
        s_cselect_b32 {sr(S_W1+1)}, s5, s7
        s_mov_b32 {sr(S_W1+2)}, 41472
        s_mov_b32 {sr(S_W1+3)}, 0x20000
        s_cselect_b32 {sr(T+4)}, 0, 41472""")
        self.dma_rows([(S_W1, "0", LA), (S_W2, "0", LB_)], 19, 288, TM + 4, TM + 5, 11, 3, "L_wf1")
        a(f"s_lshl_b32 {sr(T)}, {sr(S_W)}, 10\ns_add_u32 {sr(T+2)}, {sr(T)}, {sr(T+4)}")
        for k in range(11):
            if k == 10: a(f"s_cmp_ge_u32 {sr(S_W)}, 1\ns_cbranch_scc1 L_wf2")
            a(f"s_add_u32 m0, {sr(T)}, {LM + 4096*k}\ns_add_u32 {sr(T+1)}, {sr(T+2)}, {4096*k}")
            a(f"buffer_load_dwordx4 {vr(V_DMA)}, {sr(S_X,4)}, {sr(T+1)} offen lds")
        a.label("L_wf2")
        self.srd(S_DW, 66, 67, 864)
        a(f"""v_lshrrev_b32 {vr(TM)}, 4, v0
        v_mul_u32_u24 {vr(TM)}, 288, {vr(TM)}
        v_bfe_u32 {vr(TM+1)}, v0, 2, 2
        v_lshl_add_u32 {vr(TM)}, {vr(TM+1)}, 6, {vr(TM)}
        v_and_b32 {vr(TM+1)}, 3, v0
        v_lshl_add_u32 {vr(TM)}, {vr(TM+1)}, 3, {vr(TM)}
        buffer_load_dwordx2 v[16:17], {vr(TM)}, {sr(S_DW,4)}, 0 offen
        buffer_load_dwordx2 v[18:19], {vr(TM)}, {sr(S_DW,4)}, 0 offen offset:32
        s_mov_b32 {sr(T+1)}, {WS_DWF}
        s_waitcnt vmcnt(0)
        buffer_store_dwordx4 v[16:19], {vr(V_DMA)}, {sr(S_WS,4)}, {sr(T+1)} offen sc1""")
        self.tr_addr(AD, LM, False, TM + 8)
        self.row_addr(AD + 3, LA, TM + 8)
        a(f"v_add_u32 {vr(AD+5)}, {LB_}, {vr(AD+3)}")
        a(f"v_lshlrev_b32 {vr(AD+4)}, 3, v0")
        a(f"s_lshl_b32 {sr(T)}, {sr(S_W)}, 5")
        for k in range(3): a(f"v_add_u32 {vr(AD+k)}, {sr(T)}, {vr(AD+k)}")
        a(f"s_mov_b32 {sr(S_CNT)}, {sr(S_W)}")
        a("s_waitcnt vmcnt(0)\ns_barrier")
        a.label("L_wfl")
        for s in self.tr_reads(AD, vr)(0, BF): a(s)
        a("s_waitcnt lgkmcnt(0)")
        self.gemm(self.row_reads(AD + 3), BF, ACC, AF)
        for i in range(18): a(f"v_cvt_pk_bf16_f32 {vr(BF+i)}, {vr(ACC+2*i)}, {vr(ACC+2*i+1)}")
        a("s_cmp_eq_u32 s2, 252\ns_cbranch_scc0 L_wf3")
        self.gemm(self.row_reads(AD + 5), BF, ACC, AF)
        for i in range(18): a(f"v_cvt_pk_bf16_f32 {vr(BF+i)}, {vr(ACC+2*i)}, {vr(ACC+2*i+1)}")
        a.label("L_wf3")
        a(f"""s_mul_i32 {sr(T)}, {sr(S_CNT)}, {BLK}
        s_add_u32 {sr(T)}, {sr(T)}, {sr(T+4)}
        s_add_u32 {sr(T)}, {sr(T)}, {WS_WF}
        s_add_u32 {sr(T+1)}, {sr(T)}, 4096""")
        self.store_block(BF, V_DMA, AD + 4, S_WS, T, T + 1, "sc1")
        for k in range(3): a(f"v_add_u32 {vr(AD+k)}, 128, {vr(AD+k)}")
        a(f"s_add_u32 {sr(S_CNT)}, {sr(S_CNT)}, 4\ns_cmp_lt_u32 {sr(S_CNT)}, 9\ns_cbranch_scc1 L_wfl")
        a(f"""s_waitcnt vmcnt(0)
        s_barrier
        s_cmp_lg_u32 {sr(S_W)}, 0
        s_cbranch_scc1 L_end
        s_mov_b64 exec, 1
        v_mov_b32 {vr(TM)}, 1
        v_mov_b32 {vr(TM+1)}, {DB_CW}
        buffer_atomic_add {vr(TM)}, {vr(TM+1)}, {sr(S_DB,4)}, 0 offen sc1
        v_mov_b32 {vr(TM+1)}, {DB_CW + 128}
        buffer_atomic_add {vr(TM)}, {vr(TM+1)}, {sr(S_DB,4)}, 0 offen sc1
        s_endpgm""")

    def dump_stamps(self):
        a = self.a
        if self.o.get("echo"):
            if self.o["echo"][0] == "skew":
                a(f"v_mov_b32 v16, 4\nbuffer_load_dword v17, v16, {sr(S_DB,4)}, 0 offen sc1\ns_waitcnt vmcnt(0)\nv_readfirstlane_b32 s98, v17\ns_not_b32 s98, s98")
                x, y = 98, S_ST + 2 * self.stnames.index(self.o["echo"][1])
            else:
                x, y = [S_ST + 2 * self.stnames.index(n) for n in self.o["echo"]]
            a(f"""s_cmp_eq_u32 {sr(S_VAL)}, 0
            s_cbranch_scc1 L_end
            s_memrealtime s[4:5]
            s_waitcnt lgkmcnt(0)
            s_sub_u32 s6, {sr(y)}, {sr(x)}
            s_add_u32 s6, s6, s4""")
            a.label("L_echo")
            a("s_memrealtime s[4:5]\ns_waitcnt lgkmcnt(0)\ns_sub_u32 s7, s6, s4\ns_cmp_gt_i32 s7, 0\ns_cbranch_scc1 L_echo")
            return
        if self.o.get("dbgst"):
            a("s_waitcnt vmcnt(0)")
            self.stamp("done")
            a("s_waitcnt lgkmcnt(0)\ns_mov_b64 exec, 1")
            slots = [1, 2, 3, 4, 5, 6, 7, 9, 11, 12, 13, 14, 15]
            a(f"s_not_b32 {sr(S_T)}, {sr(S_ST)}\nv_mov_b32 v16, {sr(S_T)}\nv_mov_b32 v17, 4\nbuffer_atomic_umax v16, v17, {sr(S_DB,4)}, 0 offen sc1")
            for i in range(min(self.nst, 12)):
                a(f"v_mov_b32 v{18+2*i}, {sr(S_ST+2*i)}\nv_mov_b32 v{19+2*i}, {4*slots[i+1]}\nbuffer_atomic_umax v{18+2*i}, v{19+2*i}, {sr(S_DB,4)}, 0 offen sc1")
            return
        if not self.o.get("stamps"): return
        T = S_T
        a(f"""s_waitcnt lgkmcnt(0)
        s_lshl_b32 {sr(T)}, s2, 2
        s_add_u32 {sr(T)}, {sr(T)}, {sr(S_W)}
        s_lshl_b32 {sr(T)}, {sr(T)}, 7
        s_add_u32 {sr(T)}, {sr(T)}, {WS_DBG}
        v_mov_b32 v1, 0""")
        for i in range(26): a(f"v_mov_b32 {vr(16+i)}, {sr(S_ST+i)}")
        for i in range(7): a(f"buffer_store_dwordx4 {vr(16+4*i,4)}, v1, {sr(S_WS,4)}, {sr(T)} offen offset:{16*i}")

    def build(self):
        a = self.a
        self.stnames = []
        a.raw(f"; @launch grid=({NWG},1,1) block=(256,1,1) lds={LDS_TOTAL}")
        a.raw('.amdgcn_target "amdgcn-amd-amdhsa--gfx950"')
        a.raw(".text")
        a.raw(f".globl {NAME}")
        self.entry()
        self.phase_a()
        self.rest()
        a.label("L_fin")
        self.dump_stamps()
        a.label("L_end")
        a("s_endpgm")
        self.rare()
        self.fallback()
        self.wfuse()
        a.raw('.section .rodata,"a"')
        a.raw(".p2align 6")
        a.raw(kernel_desc(NAME, 512, 102, 256))
        return a.text()

    def S(self, buf, qb, i=0): return V_S + buf * 32 + qb * 8 + i
    def P(self, buf, qb, i=0): return V_P + buf * 16 + qb * 4 + i

    def k_reads(self, slot):
        ka, so = (V_KA, slot * SLOT) if slot < 2 else (V_HI, (slot - 2) * SLOT)
        out = [f"ds_read_b128 {vr(V_K+8*s+4*kb,4)}, {vr(ka)} offset:{so + 2048*s + 256*kb}" for s in range(4) for kb in range(2)]
        out += [f"ds_read_b64 {vr(V_K+32+2*kb,2)}, {vr(ka+1)} offset:{so + 8192 + 512*kb}" for kb in range(2)]
        return out

    def v_reads(self, slot):
        ka, so = (V_KA, slot * SLOT) if slot < 2 else (V_HI, (slot - 2) * SLOT)
        out = []
        for T in range(9):
            for u in range(2):
                if T < 8: out.append(f"ds_read_b64_tr_b16 {vr(V_V+4*T+2*u,2)}, {vr(ka+2+(T&1))} offset:{so + 2048*(T>>1) + 256*u}")
                else: out.append(f"ds_read_b64_tr_b16 {vr(V_V+4*T+2*u,2)}, {vr(ka+4)} offset:{so + 8192 + 512*u}")
        return out

    def qk_mfmas(self, buf, czero=False):
        out = []
        for s in range(5):
            for kb in range(2):
                for qb in range(4):
                    d = vr(self.S(buf, qb, 4 * kb), 4)
                    c = ("0" if czero else vr(V_CI + 4 * qb, 4)) if s == 0 else d
                    if s < 4: out.append(f"v_mfma_f32_16x16x32_bf16 {d}, {vr(V_K+8*s+4*kb,4)}, {ar(A_Q+18*qb+4*s,4)}, {c}")
                    else: out.append(f"v_mfma_f32_16x16x16_bf16 {d}, {vr(V_K+32+2*kb,2)}, {ar(A_Q+18*qb+16,2)}, {c}")
        return out

    def pv_mfmas(self, buf, czero=False):
        out = []
        for T in range(9):
            for qb in range(4):
                o = ar(A_O + 36 * qb + 4 * T, 4)
                out.append(f"v_mfma_f32_16x16x32_bf16 {o}, {vr(V_V+4*T,4)}, {vr(self.P(buf,qb),4)}, {'0' if czero else o}")
        return out

    def plan(self):
        o = self.o
        n = 76
        fixed = [None] * n
        for i, g in enumerate(range(1, 36, 2)): fixed[g] = ("V", i)
        for i, g in enumerate([41, 44, 47, 50, 53, 56, 59, 62, 65, 68]): fixed[g] = ("K", i)
        for i, g in enumerate([42, 46, 49, 52, 55, 58, 61, 64, 67]): fixed[g] = ("D", i)
        exps = [(qb, j) for qb in range(4) for j in range(8)]
        start = 40
        order = [(start + k) % n for k in range(n)]
        free_idx = [k for k, g in enumerate(order) if fixed[g] is None]
        nsm = len(free_idx) - 32
        cand = free_idx[6:-2]
        sm_set = set(free_idx[-2:]) | {cand[int((i + 0.5) * len(cand) / (nsm - 2))] for i in range(nsm - 2)}
        nds = sum(1 for f in fixed if f is not None and f[0] != "D")
        over = 48 - nds - 2 * nsm
        ocand = [k for k, g in enumerate(order) if k >= 20 and (fixed[g] is None or fixed[g][0] != "D")]
        o_set = {ocand[int((i + 0.5) * len(ocand) / over)] for i in range(over)}
        gaps = [[] for _ in range(n)]
        small, pend, ei = [], [], 0
        for k, g in enumerate(order):
            new = (start + k) < n
            small.extend(pend); pend = []
            small.sort(key=lambda t: 0 if t[0] == "c" else 1)
            f = fixed[g]
            want = 0
            if f is not None:
                gaps[g].append((f[0], f[1], None))
                if f[0] == "D": continue
                want = 1
            elif k in sm_set: want = 2
            else:
                qb, j = exps[ei]; ei += 1
                gaps[g].append(("E", ("e", qb, j), new))
                if j & 1: pend.append(("c", qb, j // 2))
                pend.append(("a", qb, j))
            if k in o_set: want += 1
            if k == n - 1: want = 99
            for _ in range(want):
                if small: gaps[g].append(("E", small.pop(0), new))
        assert not small and not pend and ei == 32
        self.gaps = gaps

    def etext(self, buf, it):
        kind, qb, j = it
        s = self.S(buf, qb)
        if kind == "e": return f"v_exp_f32 {vr(s+j)}, {vr(s+j)}"
        if kind == "a": return f"v_add_f32 {vr(V_L+qb)}, {vr(V_L+qb)}, {vr(s+j)}"
        return f"v_cvt_pk_bf16_f32 {vr(self.P(buf, qb, j))}, {vr(s+2*j)}, {vr(s+2*j+1)}"

    def period(self, p, qk=True, pv=True, e_old=True, e_new=True, kread=True, vread=True, dma=True, extra={}, dsub=None, ksub=None, vm=9):
        a = self.a
        bn, bo = (p + 1) & 1, p & 1
        mf = self.qk_mfmas(bn) + self.pv_mfmas(bo, czero=(p == 0))
        kr, vrd = self.k_reads((p + 2) % RING), self.v_reads(p % RING)
        slot = p % RING
        n = 76
        sc = [[] for _ in range(n)]
        dgs = [g for g in range(n) if any(e[0] == "D" for e in self.gaps[g])]
        if dma:
            for j, g in enumerate(dgs):
                if j % 4 == 0: sc[g - 1].append(f"s_add_u32 m0, {sr(S_LB)}, {slot*SLOT + 4096*(j//4)}")
            sc[dgs[-1] + 1].append(f"s_add_u32 {sr(S_TOFF)}, {sr(S_TOFF)}, {4*TILE}")
        w = []
        if kread: w.append(f"vmcnt({vm})")
        if pv: w.append("lgkmcnt(0)")
        if w: sc[39].append("s_waitcnt " + " ".join(w))
        if kread: sc[75].append("s_waitcnt lgkmcnt(0)")
        for half in range(2):
            rng = range(0, 40) if half == 0 else range(40, 76)
            on = qk if half == 0 else pv
            if not on:
                ds, mem, val, post = [], [], [], []
                for g in rng:
                    for s_ in sc[g]:
                        (post if s_.startswith("s_waitcnt") else mem).append(s_)
                    if g in extra: mem.append(extra[g])
                    for kind, d, new in self.gaps[g]:
                        if kind == "V" and vread: ds.append(vrd[d])
                        elif kind == "K" and kread: ds.append(kr[d])
                        elif kind == "D" and dma: mem.append(f"buffer_load_dwordx4 {vr(V_DMA + d//4)}, {sr(S_XA,4)}, {sr(S_TOFF)} offen offset:{1024*(d%4)} lds")
                        elif kind == "E" and ((new and e_new) or (not new and e_old)): val.append((d, self.etext(bn if new else bo, d)))
                if half == 1: a("s_nop 3")
                seq, pend = [], list(val)
                while pend:
                    k = 0
                    if seq and seq[-1][0][0] == "e":
                        le = seq[-1][0]
                        dep = lambda it: it[0][1] == le[1] and ((it[0][0] == "a" and it[0][2] == le[2]) or (it[0][0] == "c" and it[0][2] == le[2] // 2))
                        have = {x[0] for x in seq}
                        ok = lambda it: it[0][0] == "e" or (("e", it[0][1], it[0][2]) in have if it[0][0] == "a" else (("e", it[0][1], 2*it[0][2]+1) in have)) or not any(x[0][0] == "e" and x[0][1] == it[0][1] and (x[0][2] == it[0][2] if it[0][0] == "a" else x[0][2] // 2 == it[0][2]) for x in pend)
                        while k < len(pend) and (dep(pend[k]) or not ok(pend[k])): k += 1
                        if k == len(pend): seq.append((("n", 0, 0), "s_nop 0")); k = 0
                    seq.append(pend.pop(k))
                step = max(1, len(seq) // (len(mem) + len(ds) + 1))
                allm = ds + mem
                for x in allm[:6]: a(x)
                allm = allm[6:]
                for i_, (d, t_) in enumerate(seq):
                    a(t_)
                    if allm and i_ % step == step - 1:
                        x = allm.pop(0); a(x)
                        if x.startswith("s_add_u32 m0"): a("s_nop 0")
                for x in allm:
                    a(x)
                    if x.startswith("s_add_u32 m0"): a("s_nop 0")
                for x in post: a(x)
                if half == 0: a("s_nop 1")
                continue
            for g in rng:
                a(mf[g])
                for s_ in sc[g]: a(s_)
                if g in extra: a(extra[g])
                for kind, d, new in self.gaps[g]:
                    if kind == "V":
                        if vread: a(vrd[d])
                    elif kind == "K":
                        if kread: a(kr[d])
                        elif ksub: a(ksub.pop(0))
                    elif kind == "D":
                        if dma: a(f"buffer_load_dwordx4 {vr(V_DMA + d//4)}, {sr(S_XA,4)}, {sr(S_TOFF)} offen offset:{1024*(d%4)} lds")
                        elif dsub: a(dsub.pop(0))
                    elif (new and e_new) or (not new and e_old):
                        a(self.etext(bn if new else bo, d))

    MK, VO, GA, DWA, VPL = 232, 236, 238, 244, 248
    NB, PT, E_U, E_G, E_U2, E_G2, E_DW, E_COL = 56, 57, 58, 59, 60, 61, 62, 63
    U, GM, G0, GP, DW = 128, 138, 148, 16, 26
    WD = [("a", 216), ("a", 234), ("v", 208)]
    WO = [("a", 0), ("a", 18), ("a", 36)]

    def epi_setup(self):
        T = S_T
        NB, PT, VO, GA, DWA = self.NB, self.PT, self.VO, self.GA, self.DWA
        r, g4, x, y, big = 208, 209, 210, 211, 212
        L = [f"s_lshr_b32 {sr(NB)}, {sr(S_W)}, 1\nv_and_b32 {vr(r)}, 15, v0\nv_lshrrev_b32 {vr(g4)}, 4, v0",
             f"s_and_b32 {sr(PT)}, {sr(S_W)}, 1\nv_mul_u32_u24 {vr(x)}, 288, {vr(r)}\nv_lshlrev_b32 {vr(DWA)}, 3, {vr(g4)}",
             f"s_lshl_b32 {sr(T)}, {sr(S_TOWN)}, 1\nv_add_u32 {vr(x)}, {vr(x)}, {vr(DWA)}\nv_mov_b32 {vr(big)}, 0x40000000",
             f"s_add_u32 {sr(T)}, {sr(T)}, {sr(NB)}\ns_lshl_b32 {sr(T)}, {sr(T)}, 4\ns_mul_i32 {sr(T+1)}, {sr(S_TOWN)}, {TILE}",
             f"s_mul_i32 {sr(T+2)}, {sr(PT)}, {BLK}\nv_add_u32 {vr(r)}, {sr(T)}, {vr(r)}\nv_add_u32 {vr(x)}, {sr(T+1)}, {vr(x)}",
             f"s_sub_u32 {sr(T+3)}, {BLK}, {sr(T+2)}\nv_add_u32 {vr(VO)}, {sr(T+2)}, {vr(x)}",
             f"s_mul_i32 {sr(T)}, {sr(S_B)}, 4000\nv_add_u32 {vr(VO+1)}, {sr(T+3)}, {vr(x)}",
             f"s_add_u32 {sr(T+1)}, {sr(T)}, 3999\ns_mov_b32 {sr(T+2)}, {BLK}\ns_lshl_b32 {sr(T+3)}, {sr(PT)}, 11",
             f"s_add_u32 {sr(self.E_U)}, {sr(T+3)}, {WS_U}\ns_add_u32 {sr(self.E_G)}, {sr(T+3)}, {WS_G}\ns_mov_b32 {sr(self.E_U2)}, {WS_U + 4096}",
             f"s_mov_b32 {sr(self.E_G2)}, {WS_G + 4096}\ns_lshl_b32 {sr(self.E_DW)}, {sr(PT)}, 7\ns_lshl_b32 {sr(self.E_COL)}, {sr(S_W)}, 6",
             f"s_add_u32 {sr(self.E_DW)}, {sr(self.E_DW)}, {WS_DWF}\nv_lshlrev_b32 {vr(DWA+1)}, 4, {vr(g4)}\nv_lshlrev_b32 {vr(DWA+2)}, 3, v0",
             f"v_add_u32 {vr(DWA+2)}, 4096, {vr(DWA+2)}"]
        for k, dr in enumerate((0, -1, 1)):
            m = GA + 2 * k
            src = r
            if dr:
                L.append(f"v_add_u32 {vr(m)}, {dr}, {vr(r)}\nv_cmp_eq_u32 vcc, {sr(T if dr < 0 else T+1)}, {vr(r)}")
                src = m
            L.append(f"v_lshrrev_b32 {vr(x)}, 4, {vr(src)}\nv_and_b32 {vr(y)}, 15, {vr(src)}")
            L.append(f"v_mul_lo_u32 {vr(x)}, {vr(x)}, {sr(T+2)}\nv_lshl_add_u32 {vr(y)}, {vr(g4)}, 4, {vr(y)}")
            L.append(f"v_lshl_add_u32 {vr(m)}, {vr(y)}, 4, {vr(x)}\nv_lshl_add_u32 {vr(m+1)}, {vr(y)}, 3, {vr(x)}")
            if dr: L.append(f"v_cndmask_b32 {vr(m)}, {vr(m)}, {vr(big)}, vcc\nv_cndmask_b32 {vr(m+1)}, {vr(m+1)}, {vr(big)}, vcc")
        return L

    def dwreg(self, k): return [26, 36, 96][k]

    def conv_loads(self):
        GA = self.GA
        L = []
        for dst, m, so in ((self.GM, GA + 2, 1), (self.G0, GA, 1), (self.GP, GA + 4, 1), (self.U, GA, 0)):
            for k in range(2): L.append(f"buffer_load_dwordx4 {vr(dst+4*k,4)}, {vr(m)}, {sr(S_WS,4)}, {sr(self.E_U+so)} offen offset:{1024*k} sc1")
            L.append(f"buffer_load_dwordx2 {vr(dst+8,2)}, {vr(m+1)}, {sr(S_WS,4)}, {sr(self.E_U2+so)} offen sc1")
        for k in range(3):
            for i in range(2): L.append(f"buffer_load_dwordx4 {vr(self.dwreg(k)+4*i,4)}, {vr(self.DWA+1)}, {sr(S_WS,4)}, {sr(self.E_DW)} offen offset:{256*k + 64*i} sc1")
            L.append(f"buffer_load_dwordx2 {vr(self.dwreg(k)+8,2)}, {vr(self.DWA)}, {sr(S_DW,4)}, 0 offen offset:{288*k + 256}")
        return L

    def w_loads(self, mat, regs, sb):
        L = []
        for tt in range(3):
            rf = ar if regs[tt][0] == "a" else vr
            for s in range(4): L.append(f"buffer_load_dwordx4 {rf(regs[tt][1]+4*s,4)}, {vr(V_DMA)}, {sr(S_WS,4)}, {sr(sb+tt)} offen offset:{1024*s} sc1")
            L.append(f"buffer_load_dwordx2 {rf(regs[tt][1]+16,2)}, {vr(self.DWA+2)}, {sr(S_WS,4)}, {sr(sb+tt)} offen sc1")
        return L

    def xa_srd(self):
        T = S_T
        return f"""s_mul_i32 {sr(T)}, {sr(S_B)}, {NT}
        s_mul_i32 {sr(T+1)}, {sr(S_H)}, 63
        s_add_u32 {sr(T+1)}, {sr(T+1)}, {sr(T)}
        s_mul_i32 {sr(T+1)}, {sr(T+1)}, {TILE}
        s_add_u32 {sr(S_XA)}, {sr(S_WS)}, {sr(T+1)}
        s_addc_u32 {sr(S_XA+1)}, {sr(S_WS+1)}, 0
        s_sub_u32 {sr(T+2)}, 63, {sr(S_H)}
        s_mul_i32 {sr(S_XA+2)}, {sr(T+2)}, {TILE}
        s_mov_b32 {sr(S_XA+3)}, 0x20000"""

    def rest(self):
        a, o = self.a, self.o
        T = S_T
        VPL = self.VPL
        self.plan()
        a.label("L_go")
        for qb in range(4):
            for i in range(4): a(f"v_mov_b32 {vr(V_CI+4*qb+i)}, {vr(self.MK+qb)}")
        for k in range(5): a(f"v_add_u32 {vr(V_HI+k)}, {2*SLOT}, {vr(V_KA+k)}")
        for i in range(4): a(f"v_mov_b32 {vr(V_L+i)}, 0")
        a(f"""s_mov_b32 {sr(S_CNT)}, 0
        s_lshl_b32 {sr(T)}, {sr(S_B)}, 7
        s_add_u32 {sr(T)}, {sr(T)}, {DB_CB}
        v_mov_b32 {vr(VPL)}, {sr(T)}
        s_waitcnt lgkmcnt(0)
        s_barrier""")
        self.stamp("bar5")
        t2 = self.tile_groups(2)
        ex = {1 + 4 * i: t2[i] for i in range(9)}
        es = self.epi_setup()
        for g in range(40):
            if g not in ex and es: ex[g] = es.pop(0)
        assert not es
        self.period(-1, pv=False, e_old=False, vread=False, extra=ex, vm=14)
        self.stamp("loop")
        if o.get("echo") and o["echo"][0] == "skew":
            a(f"s_waitcnt lgkmcnt(0)\ns_mov_b64 exec, 1\ns_not_b32 s98, {sr(S_ST)}\nv_mov_b32 v250, s98\nv_mov_b32 v251, 4\ns_cmp_lg_u32 {sr(S_W)}, 0\ns_cbranch_scc1 L_sk\nbuffer_atomic_umax v250, v251, {sr(S_DB,4)}, 0 offen sc1\ns_waitcnt vmcnt(0)\nL_sk:\ns_mov_b64 exec, -1\ns_nop 3")
        ex = {43: "s_barrier",
              45: (f"s_or_b32 {sr(T)}, {sr(S_W)}, {sr(S_REDO)}\ns_cmp_lg_u32 {sr(T)}, 0\ns_cbranch_scc1 L_nocb\ns_mov_b64 exec, 1\nv_mov_b32 {vr(VPL+1)}, 1\n"
                   f"buffer_atomic_add {vr(VPL+1)}, {vr(VPL)}, {sr(S_DB,4)}, 0 offen sc1\ns_mov_b64 exec, -1\ns_nop 3\nL_nocb:")}
        self.period(0, extra=ex)
        a.raw(".p2align 6")
        a.label("L_loop")
        for p in range(1, 5):
            ex = {}
            if p == 3: ex = {70: f"buffer_load_dwordx4 v[252:255], {vr(VPL)}, {sr(S_DB,4)}, 0 offen sc1"}
            if p == 4: ex = {72: f"s_add_u32 {sr(S_CNT)}, {sr(S_CNT)}, 1", 73: f"s_cmp_lt_u32 {sr(S_CNT)}, 3"}
            self.period(p, extra=ex)
        a("s_cbranch_scc1 L_loop")
        self.stamp("p13")
        SW = 66
        a(f"s_waitcnt vmcnt(9)\ns_mov_b32 {sr(T+2)}, 0")
        a.label("L_late")
        a(f"""v_readfirstlane_b32 {sr(T)}, v252
        v_readfirstlane_b32 {sr(T+1)}, v254
        s_add_u32 {sr(SW+3)}, {sr(S_LB)}, {WS_WF}
        s_add_u32 {sr(SW+4)}, {sr(S_LB)}, {WS_WF + BLK}
        s_mov_b32 {sr(SW+5)}, {WS_WF + 8*BLK}
        s_add_u32 {sr(SW)}, {sr(S_LB)}, {WS_WF + 9*BLK}
        s_add_u32 {sr(SW+1)}, {sr(S_LB)}, {WS_WF + 10*BLK}
        s_mov_b32 {sr(SW+2)}, {WS_WF + 17*BLK}
        s_cmp_ge_u32 {sr(T)}, 126
        s_cselect_b32 {sr(T+3)}, {sr(T+1)}, 0
        s_cmp_ge_u32 {sr(T+3)}, 2
        s_cbranch_scc0 L_late1""")
        a.label("L_late0")
        wd = self.w_loads(1, self.WD, SW)
        pf = (f"s_lshr_b32 {sr(T)}, s2, 3\ns_lshl_b32 {sr(T)}, {sr(T)}, 2\ns_add_u32 {sr(T)}, {sr(T)}, {sr(S_W)}\ns_and_b32 {sr(T)}, {sr(T)}, 63\ns_min_u32 {sr(T)}, {sr(T)}, 40\n"
              f"s_lshl_b32 {sr(T)}, {sr(T)}, 10\ns_add_u32 {sr(T)}, {sr(T)}, {WS_WF}\nbuffer_load_dwordx4 v[252:255], {vr(V_DMA)}, {sr(S_WS,4)}, {sr(T)} offen")
        self.period(13, dma=False, dsub=wd[:8] + [pf], vm=9)
        a(f"s_cmp_eq_u32 {sr(S_DUM)}, 4\ns_cbranch_scc1 L_dummy")
        a.label("L_dummyb")
        cl = self.conv_loads()
        self.period(14, dma=False, kread=False, dsub=cl[:9], ksub=cl[9:18])
        self.stamp("tail")
        self.tail(cl[18:], wd[8:])
        self.stamp("end")
        self.epilogue(SW)

    def rare(self):
        a = self.a
        T = S_T
        a.label("L_dummy")
        for i in range(16): a(f"v_mov_b32 {vr(V_CI+i)}, 0xff800000")
        a("s_nop 1\ns_branch L_dummyb")
        a.label("L_late1")
        a(f"""buffer_load_dwordx4 v[252:255], {vr(self.VPL)}, {sr(S_DB,4)}, 0 offen sc1
        s_add_u32 {sr(T+2)}, {sr(T+2)}, 1
        s_waitcnt vmcnt(0)
        s_cmp_lt_u32 {sr(T+2)}, 0x40000
        s_cbranch_scc1 L_late
        s_branch L_late0""")

    L_X2 = L_SP
    L_L = L_SP + 9216
    units = [(0, 0), (0, 1), (1, 0), (1, 1), (2, 0)]
    XR = 158
    def mreg(self, k, i, h):
        n = (k * 10 + i) * 2 + h
        return 48 + n if n < 48 else (106 + n - 48 if n < 54 else 226 + n - 54)

    def tail(self, cl, wd):
        a = self.a
        T = S_T
        VST = 247
        ex = {i: x for i, x in enumerate(cl)}
        ex[5] = f"v_add_u32 {vr(VST)}, {sr(S_LB)}, {vr(V_DMA)}"
        n0 = len(a.lines)
        self.period(15, qk=False, e_new=False, kread=False, dma=False, extra=ex)
        k = next(i for i in range(n0, len(a.lines)) if "v_mfma" in a.lines[i])
        del a.lines[k:]
        wr = [f"ds_write_b128 {vr(VST)}, {ar(A_O+36*qb+4*i,4)} offset:{SLOT*qb + 1024*i}" for qb in range(2) for i in range(9)]
        va = []
        for i in range(10):
            for k_ in range(3):
                va.append(f"v_and_b32 {vr(self.mreg(k_,i,0))}, 0xffff, {vr(self.dwreg(k_)+i)}")
                va.append(f"v_and_b32 {vr(self.mreg(k_,i,1))}, 0xffff0000, {vr(self.dwreg(k_)+i)}")
        n = 0
        for qb in range(4):
            for Tt in range(9):
                o_ = ar(A_O + 36 * qb + 4 * Tt, 4)
                a(f"v_mfma_f32_16x16x32_bf16 {o_}, {vr(V_V+4*Tt,4)}, {vr(self.P(1,qb),4)}, {o_}")
                if n == 3: a("s_waitcnt vmcnt(0)")
                if n > 3 and n % 2 == 1 and wd:
                    a(wd.pop(0)); n += 1; continue
                k_ = 2
                if n >= 12 and n % 2 == 0 and (len(wr) > 9 or n >= 22): a(wr.pop(0)); k_ = 1
                if n >= 3:
                    for _ in range(k_):
                        if va: a(va.pop(0))
                n += 1
        for x in va: a(x)
        self.wr_left = wr

    def epilogue(self, SW):
        a, o = self.a, self.o
        T = S_T
        p = lambda r: vr(r, 2)
        L_L, L_FL, L_X2 = self.L_L, self.L_L + 1024, self.L_X2
        NB, PT, MK, VO, units = self.NB, self.PT, self.MK, self.VO, self.units
        U, GM, G0, GP = self.U, self.GM, self.G0, self.GP
        VST, VL8 = 247, self.DWA + 2
        t = 164
        C, UU, PKD = 180, 112, 26
        wr = self.wr_left
        n0 = len(a.lines)
        self.greduce([V_L + i for i in range(4)], t)
        a(f"""v_add_f32 {vr(t+1)}, {vr(V_L)}, {vr(V_L+1)}
        v_add_f32 {vr(t+2)}, {vr(V_L+2)}, {vr(V_L+3)}
        v_add_f32 {vr(t+1)}, {vr(t+1)}, {vr(t+2)}
        v_mov_b32 {vr(t+2)}, {f32(2.0**100)}
        v_cmp_nle_f32 vcc, {vr(t+1)}, {vr(t+2)}
        v_and_b32 {vr(t+3)}, 15, v0
        v_lshlrev_b32 {vr(t+3)}, 4, {vr(t+3)}
        s_lshl_b32 {sr(T)}, {sr(S_W)}, 2
        s_add_u32 {sr(T)}, {sr(T)}, {L_L}
        v_add_u32 {vr(t+4)}, {sr(T)}, {vr(t+3)}
        s_cmp_lg_u64 vcc, 0
        s_cselect_b32 {sr(T+1)}, 1, 0
        v_mov_b32 {vr(t+5)}, {sr(T+1)}
        v_mov_b32 {vr(t+6)}, {sr(T)}""")
        for k_, src in enumerate((GM, G0, GP)):
            for i in range(10):
                for h in range(2):
                    a(f"v_dot2_f32_bf16 {vr(C+2*i+h)}, {vr(src+i)}, {vr(self.mreg(k_,i,h))}, {'0' if k_ == 0 else vr(C+2*i+h)}")
        UUr = 48
        for i in range(10):
            a(f"v_lshlrev_b32 {vr(UUr+2*i)}, 16, {vr(U+i)}\nv_and_b32 {vr(UUr+1+2*i)}, 0xffff0000, {vr(U+i)}")
        for i in range(10): a(f"v_pk_mul_f32 {p(C+2*i)}, {p(C+2*i)}, {p(UUr+2*i)}")
        for i in range(10): a(f"v_cvt_pk_bf16_f32 {vr(PKD+i)}, {vr(C+2*i)}, {vr(C+2*i+1)}")
        a(f"""s_mul_i32 {sr(T)}, {sr(NB)}, {SLOT}
        s_lshl_b32 {sr(T+1)}, {sr(PT)}, 12
        s_add_u32 {sr(T)}, {sr(T)}, {sr(T+1)}
        v_add_u32 {vr(t+7)}, {sr(T)}, {vr(V_DMA)}
        s_lshl_b32 {sr(T+1)}, {sr(NB)}, 8
        s_add_u32 {sr(T+1)}, {sr(T+1)}, {L_L}
        v_add_u32 {vr(t+9)}, {sr(T+1)}, {vr(t+3)}
        v_mov_b32 {vr(t+10)}, {L_FL}
        s_lshl_b32 {sr(T)}, {sr(NB)}, 12
        s_lshl_b32 {sr(T+1)}, {sr(PT)}, 11
        s_add_u32 {sr(T)}, {sr(T)}, {sr(T+1)}
        v_add_u32 {vr(t+11)}, {sr(T)}, {vr(V_DMA)}
        s_lshl_b32 {sr(T)}, {sr(NB)}, 9
        s_add_u32 {sr(T)}, {sr(T)}, 4096
        v_add_u32 {vr(t+12)}, {sr(T)}, {vr(VL8)}
        v_add_u32 {vr(t+13)}, {L_X2}, {vr(t+11)}
        v_add_u32 {vr(t+14)}, {L_X2}, {vr(t+12)}""")
        body = a.lines[n0:]; del a.lines[n0:]
        for i, l in enumerate(body):
            if i % 12 == 0 and wr: a(wr.pop(0))
            a.lines.append(l)
        for x in wr: a(x)
        VROW16, VRD, VX1, VX1R = t + 3, t + 7, t + 11, t + 12
        for qb in range(4): a(f"ds_write_b32 {vr(t+4)}, {vr(V_L+qb)} offset:{256*qb}")
        a(f"""ds_write_b32 {vr(t+6)}, {vr(t+5)} offset:1024
        ds_write_b128 {vr(t+13)}, {vr(PKD,4)}
        ds_write_b128 {vr(t+13)}, {vr(PKD+4,4)} offset:1024
        s_cmp_eq_u32 {sr(PT)}, 0
        s_cbranch_scc1 L_e3
        ds_write_b64 {vr(t+14)}, {vr(PKD+8,2)}""")
        a.label("L_e3")
        a("s_waitcnt lgkmcnt(0)\ns_barrier")
        self.stamp("B1")
        R = 48
        F = 180
        a(f"ds_read_b128 {vr(F,4)}, {vr(t+10)}\nds_read_b128 {vr(F+4,4)}, {vr(t+9)}")

        def reduce4():
            for w in range(4):
                for i in range(5): a(f"ds_read_b128 {vr(R+20*w+4*i,4)}, {vr(VRD)} offset:{TILE*w + 1024*i}")
                if w == 1: yield
            yield
            for w in range(1, 4):
                a(f"s_waitcnt lgkmcnt({5*(3-w)})")
                for i in range(10): a(f"v_pk_add_f32 {p(R+2*i)}, {p(R+2*i)}, {p(R+20*w+2*i)}")
            for i in range(10): a(f"v_cvt_pk_bf16_f32 {vr(R+20+i)}, {vr(R+2*i)}, {vr(R+2*i+1)}")
        g = reduce4(); next(g)
        a(f"""s_xor_b32 {sr(T)}, s2, 1
        s_mul_i32 {sr(T)}, {sr(T)}, {IB}
        s_mul_i32 {sr(T+1)}, {sr(NB)}, 5120
        s_add_u32 {sr(T)}, {sr(T)}, {sr(T+1)}
        s_add_u32 {sr(T)}, {sr(T)}, {WS_IB}
        s_lshl_b32 {sr(T+1)}, {sr(PT)}, 11
        s_add_u32 {sr(T+1)}, {sr(T+1)}, {sr(T)}
        s_add_u32 {sr(T)}, {sr(T)}, 4096
        s_cmp_eq_u32 {sr(PT)}, 0
        s_cselect_b32 {sr(T)}, 0x40000000, {sr(T)}""")
        next(g)
        a(f"""s_waitcnt lgkmcnt(15)
        v_or_b32 {vr(F)}, {vr(F)}, {vr(F+1)}
        v_or3_b32 {vr(F)}, {vr(F)}, {vr(F+2)}, {vr(F+3)}
        v_add_f32 {vr(F+4)}, {vr(F+4)}, {vr(F+5)}
        v_add_f32 {vr(F+6)}, {vr(F+6)}, {vr(F+7)}
        v_readfirstlane_b32 {sr(T+2)}, {vr(F)}
        v_add_f32 {vr(F+4)}, {vr(F+4)}, {vr(F+6)}
        s_andn2_b32 {sr(T+2)}, {sr(T+2)}, {sr(S_REDO)}
        s_cbranch_scc1 L_fallback
        s_cmp_eq_u32 {sr(NB)}, 1
        s_cselect_b64 vcc, -1, 0""")
        for _ in g: pass
        a(f"""v_mov_b32 {vr(R+30)}, {vr(F+4)}
        v_cndmask_b32 {vr(R+31)}, {vr(MK)}, {vr(MK+1)}, vcc
        buffer_store_dwordx4 {vr(R+20,4)}, {vr(V_DMA)}, {sr(S_WS,4)}, {sr(T+1)} offen sc1
        buffer_store_dwordx4 {vr(R+24,4)}, {vr(V_DMA)}, {sr(S_WS,4)}, {sr(T+1)} offen offset:1024 sc1
        buffer_store_dwordx4 {vr(R+28,4)}, {vr(V_DMA)}, {sr(S_WS,4)}, {sr(T)} offen sc1""")
        self.stamp("sent")
        a(f"s_cmp_eq_u32 {sr(S_VAL)}, 0\ns_cbranch_scc1 L_fin")
        ad = 188
        a(f"""s_lshl_b32 {sr(T)}, {sr(PT)}, 12
        v_add_u32 {vr(ad)}, {sr(T)}, {vr(V_DMA)}
        v_xor_b32 {vr(ad+1)}, 4096, {vr(ad)}
        s_lshl_b32 {sr(T)}, {sr(PT)}, 9
        s_add_u32 {sr(T)}, {sr(T)}, 4096
        v_add_u32 {vr(ad+2)}, {sr(T)}, {vr(VL8)}
        v_xor_b32 {vr(ad+3)}, 512, {vr(ad+2)}""")
        for k_ in range(4): a(f"v_add_u32 {vr(ad+4+k_)}, {L_X2}, {vr(ad+k_)}")
        a(f"v_add_u32 {vr(VST)}, {2*SLOT}, {vr(VST)}")

        def bfrags(dst, b):
            for j in range(2):
                for s in range(4): a(f"ds_read_b128 {vr(dst[j]+4*s,4)}, {vr(b+j)} offset:{1024*s}")
                a(f"ds_read_b64 {vr(dst[j]+16,2)}, {vr(b+2+j)}")

        def fgemm(acc, W, Bf, fill=()):
            fill = list(fill)
            for s in range(5):
                for u, (tt, j) in enumerate(units):
                    d = vr(acc + 4 * u, 4)
                    rf = ar if W[tt][0] == "a" else vr
                    if s < 4: a(f"v_mfma_f32_16x16x32_bf16 {d}, {rf(W[tt][1]+4*s,4)}, {vr(Bf[j]+4*s,4)}, {'0' if s == 0 else d}")
                    else:
                        if u == 0: a("s_nop 1")
                        a(f"v_mfma_f32_16x16x16_bf16 {d}, {rf(W[tt][1]+16,2)}, {vr(Bf[j]+16,2)}, {d}")
                    if fill: a(fill.pop(0))
            for x in fill: a(x)
        BU = [16, 128]
        AB, AO, AP = 84, 104, 208
        XR, LO, IN = 36, 196, 128
        bfrags(BU, ad + 4)
        wr = [f"ds_write_b128 {vr(VST)}, {ar(A_O+36*(2+qb)+4*i,4)} offset:{SLOT*qb + 1024*i}" for qb in range(2) for i in range(9)]
        for x in wr[:4]: a(x)
        wl = self.w_loads(0, self.WO, SW + 3)
        for u, (tt, j) in enumerate(units):
            so = (sr(self.E_COL), 32 * tt) if tt < 2 else ("0", 256)
            wl.append(f"buffer_load_dwordx2 {vr(XR+2*u,2)}, {vr(VO+j)}, {sr(S_X,4)}, {so[0]} offen offset:{so[1]}")
        for x in wl[:6]: a(x)
        a("s_waitcnt vmcnt(9) lgkmcnt(4)")
        fl = []
        for k_ in range(14): fl += [wr[4 + k_], wl[6 + k_]]
        fgemm(AB, self.WD, BU, fill=fl)
        a(f"""v_add_u32 {vr(VRD)}, {2*SLOT}, {vr(VRD)}
        s_lshl_b32 {sr(T)}, {sr(PT)}, 8
        s_add_u32 {sr(T)}, {sr(T)}, {L_L + 512}
        v_add_u32 {vr(ad+4)}, {sr(T)}, {vr(VROW16)}
        v_xor_b32 {vr(ad+5)}, 256, {vr(ad+4)}
        s_mul_i32 {sr(T+12)}, s2, {IB}
        s_add_u32 {sr(T+12)}, {sr(T+12)}, {WS_IB}
        s_mul_i32 {sr(T)}, {sr(PT)}, 5120
        s_add_u32 {sr(T+13)}, {sr(T+12)}, 5120
        s_sub_u32 {sr(T+13)}, {sr(T+13)}, {sr(T)}
        s_add_u32 {sr(T+12)}, {sr(T+12)}, {sr(T)}
        s_waitcnt lgkmcnt(0)
        s_barrier""")
        self.stamp("B2")
        R2 = R
        PR = [48, 104, 128, 148]
        for w in range(4):
            for i in range(5): a(f"ds_read_b128 {vr(PR[w]+4*i,4)}, {vr(VRD)} offset:{TILE*w + 1024*i}")
        for w in range(1, 4):
            a(f"s_waitcnt lgkmcnt({5*(3-w)})")
            for i in range(10): a(f"v_pk_add_f32 {p(48+2*i)}, {p(48+2*i)}, {p(PR[w]+2*i)}")
        for i in range(10): a(f"v_cvt_pk_bf16_f32 {vr(68+i)}, {vr(48+2*i)}, {vr(48+2*i+1)}")
        a(f"""ds_write_b128 {vr(VX1)}, v[68:71]
        ds_write_b128 {vr(VX1)}, v[72:75] offset:1024
        s_cmp_eq_u32 {sr(PT)}, 0
        s_cbranch_scc1 L_e2
        ds_write_b64 {vr(VX1R)}, v[76:77]""")
        a.label("L_e2")
        for j in range(2): a(f"ds_read_b128 {vr(LO+4*j,4)}, {vr(ad+4+j)}")

        def inbox():
            for j in range(2):
                for s in range(4): a(f"buffer_load_dwordx4 {vr(IN+20*j+4*s,4)}, {vr(V_DMA)}, {sr(S_WS,4)}, {sr(T+12+j)} offen offset:{1024*s} sc1")
                a(f"buffer_load_dwordx4 {vr(IN+20*j+16,4)}, {vr(V_DMA+1)}, {sr(S_WS,4)}, {sr(T+12+j)} offen sc1")
        a("s_waitcnt lgkmcnt(0)\ns_barrier")
        self.stamp("B3")
        BO = [16, 48]
        bfrags(BO, ad)
        inbox()
        for j in range(2):
            a(f"v_add_f32 {vr(LO+4*j)}, {vr(LO+4*j)}, {vr(LO+4*j+1)}\nv_add_f32 {vr(LO+4*j+2)}, {vr(LO+4*j+2)}, {vr(LO+4*j+3)}\nv_add_f32 {vr(LO+4*j)}, {vr(LO+4*j)}, {vr(LO+4*j+2)}")
        a(f"""s_cmp_eq_u32 {sr(PT)}, 1
        s_cselect_b64 vcc, -1, 0
        s_mov_b32 {sr(T+2)}, 0
        v_cndmask_b32 {vr(LO+1)}, {vr(MK+2)}, {vr(MK+3)}, vcc
        v_cndmask_b32 {vr(LO+5)}, {vr(MK+3)}, {vr(MK+2)}, vcc
        s_waitcnt vmcnt(10) lgkmcnt(0)""")
        xa_ = []
        for u in range(5):
            for h in range(2):
                xa_.append(f"v_lshlrev_b32 {vr(168+4*u+2*h)}, 16, {vr(XR+2*u+h)}\nv_and_b32 {vr(169+4*u+2*h)}, 0xffff0000, {vr(XR+2*u+h)}")
        for u in range(5):
            for h in range(2):
                r = 4 * u + 2 * h
                xa_.append(f"v_add_f32 {vr(AB+r)}, {vr(AB+r)}, {vr(168+r)}\nv_add_f32 {vr(AB+r+1)}, {vr(AB+r+1)}, {vr(169+r)}")
        fgemm(AO, self.WO, BO, fill=xa_)
        self.stamp("own")
        a("s_branch L_inc")
        a.label("L_in")
        inbox()
        a.label("L_inc")
        a(f"s_waitcnt vmcnt(0)\ns_add_u32 {sr(T+2)}, {sr(T+2)}, 1")
        chk = [f"v_max3_u32 v168, {vr(IN)}, {vr(IN+1)}, {vr(IN+2)}", f"v_max3_u32 v169, {vr(IN+3)}, {vr(IN+4)}, {vr(IN+5)}"]
        for k, x in enumerate(range(IN + 6, IN + 40, 2)): chk.append(f"v_max3_u32 v{168+(k&1)}, v{168+(k&1)}, {vr(x)}, {vr(x+1)}")
        chk += ["v_max_u32 v168, v168, v169", "v_cmp_eq_u32 vcc, -1, v168"]
        wt = []
        for j in range(2):
            lo, mo, lp, mp, w = LO + 4 * j, LO + 4 * j + 1, IN + 20 * j + 18, IN + 20 * j + 19, 172 + 4 * j
            wt.append([f"v_min_f32 {vr(w)}, {vr(mo)}, {vr(mp)}", f"v_sub_f32 {vr(w+1)}, {vr(w)}, {vr(mp)}", f"v_sub_f32 {vr(w)}, {vr(w)}, {vr(mo)}",
                       f"v_exp_f32 {vr(w+1)}, {vr(w+1)}", f"v_exp_f32 {vr(w)}, {vr(w)}", f"v_mul_f32 {vr(w+2)}, {vr(w+1)}, {vr(lp)}",
                       f"v_fmac_f32 {vr(w+2)}, {vr(w)}, {vr(lo)}", f"v_rcp_f32 {vr(w+2)}, {vr(w+2)}", f"v_mul_f32 {vr(w)}, {vr(w)}, {vr(w+2)}",
                       f"v_mul_f32 {vr(w+2)}, {vr(w+1)}, {vr(w+2)}"])
        wl_ = [x for pair in zip(*wt) for x in pair]
        fill = [c + "\n" + wl_[i] if i < len(wl_) else c for i, c in enumerate(chk)]
        fgemm(AP, self.WO, [IN, IN + 20], fill=fill)
        a(f"""s_cmp_eq_u64 vcc, 0
        s_cbranch_scc1 L_got
        s_cmp_lt_u32 {sr(T+2)}, 0x10000
        s_cbranch_scc1 L_in""")
        a.label("L_got")
        self.stamp("got")
        for u, (tt, j) in enumerate(units):
            for h in range(2):
                r = 4 * u + 2 * h
                a(f"v_pk_fma_f32 {p(AB+r)}, {p(AO+r)}, {p(172+4*j)}, {p(AB+r)} op_sel_hi:[1,0,1]")
        for u, (tt, j) in enumerate(units):
            for h in range(2):
                r = 4 * u + 2 * h
                a(f"v_pk_fma_f32 {p(AB+r)}, {p(AP+r)}, {p(174+4*j)}, {p(AB+r)} op_sel_hi:[1,0,1]")
            for h in range(2): a(f"v_cvt_pk_bf16_f32 {vr(16+2*u+h)}, {vr(AB+4*u+2*h)}, {vr(AB+4*u+2*h+1)}")
            so = (sr(self.E_COL), 32 * tt) if tt < 2 else ("0", 256)
            a(f"buffer_store_dwordx2 {vr(16+2*u,2)}, {vr(VO+j)}, {sr(S_OUT,4)}, {so[0]} offen offset:{so[1]}")
        self.stamp("fin")

    def fallback(self):
        a = self.a
        T = S_T
        MXR = 208
        a.label("L_fallback")
        a(f"""s_waitcnt vmcnt(0) lgkmcnt(0)
        s_barrier
        s_mov_b32 {sr(S_REDO)}, 1
        s_mov_b32 {sr(S_TOFF)}, {sr(S_LB)}
        s_cmp_eq_u32 {sr(S_DUM)}, 4
        s_cselect_b32 {sr(S_CNT)}, 15, 16""")
        for i in range(4): a(f"v_mov_b32 {vr(MXR+i)}, 0xff800000")
        a.label("L_fb1")
        for g in self.tile_groups(0): a(g)
        a("s_waitcnt vmcnt(0)")
        for x in self.k_reads(0): a(x)
        a("s_waitcnt lgkmcnt(0)")
        for m in self.qk_mfmas(0, czero=True): a(m)
        a("s_nop 7")
        for qb in range(4):
            for i in range(0, 8, 2): a(f"v_max3_f32 {vr(MXR+qb)}, {vr(MXR+qb)}, {vr(self.S(0,qb,i))}, {vr(self.S(0,qb,i+1))}")
        a(f"s_sub_u32 {sr(S_CNT)}, {sr(S_CNT)}, 1\ns_cmp_lg_u32 {sr(S_CNT)}, 0\ns_cbranch_scc1 L_fb1")
        self.greduce([MXR + i for i in range(4)], MXR + 4, "v_max_f32")
        a(f"""v_and_b32 {vr(MXR+4)}, 15, v0
        v_lshlrev_b32 {vr(MXR+4)}, 4, {vr(MXR+4)}
        v_add_u32 {vr(MXR+4)}, {L_SP}, {vr(MXR+4)}
        s_lshl_b32 {sr(T)}, {sr(S_W)}, 2
        v_add_u32 {vr(MXR+5)}, {sr(T)}, {vr(MXR+4)}""")
        for qb in range(4): a(f"ds_write_b32 {vr(MXR+5)}, {vr(MXR+qb)} offset:{256*qb}")
        a("s_waitcnt lgkmcnt(0)\ns_barrier")
        for qb in range(4): a(f"ds_read_b128 {vr(16+4*qb,4)}, {vr(MXR+4)} offset:{256*qb}")
        a(f"s_mov_b32 {sr(S_TOFF)}, {sr(S_LB)}")
        for g in self.tile_groups(0) + self.tile_groups(1): a(g)
        a("s_waitcnt lgkmcnt(0)")
        for qb in range(4):
            r = 16 + 4 * qb
            a(f"v_max_f32 {vr(r)}, {vr(r)}, {vr(r+1)}\nv_max3_f32 {vr(r)}, {vr(r)}, {vr(r+2)}, {vr(r+3)}")
            a(f"v_sub_f32 {vr(self.MK+qb)}, 0, {vr(r)}")
        a("s_waitcnt vmcnt(0)")
        for x in self.k_reads(0): a(x)
        a("s_branch L_go")


if __name__ == "__main__":
    opt = json.loads(sys.argv[2]) if len(sys.argv) > 2 else {}
    g = G(opt)
    txt = g.build()
    if opt.get("align", 1):
        from align import align
        txt, st = align(txt)
        print("align: promoted %d, padded %d, left %d" % st)
    txt = txt.replace("\n", "\n; stamps " + json.dumps(g.stnames) + "\n", 1)
    open(sys.argv[1], "w").write(txt)
```

```python
import sys, json, math
from common import Asm, vr, ar, sr, kernel_header, kernel_desc
from lay import *

NAME = "standalone__conformer_family_branchformer__speech_kernel"
NWG = 254
RING = 4
LDS_RING = RING * TILE
LDS_TOTAL = 163840
SLOT = 4 * TILE
L_WQ, L_WK, L_WU = 0, 41984, 86016
L_XX, L_XR = 128000, 144384
L_QX, L_QR = 146432, 0
L_MX = 162816
L_PC = 163836 - 0
L_DUMP = 123904
L_SP = 147456

S_X, S_WS, S_XA, S_DB, S_W1, S_W2, S_OUT, S_DW = 8, 12, 16, 20, 24, 28, 32, 36
S_W, S_B, S_H, S_QB, S_TOFF, S_CNT, S_DUM, S_LB, S_TOWN, S_TSND, S_VAL, S_REDO = range(40, 52)
S_T = 52
S_ST = 76

V_KA, V_VA, V_VR, V_DMA, V_L, V_T = 1, 3, 5, 6, 9, 13
V_S, V_CI, V_P, V_K, V_V = 16, 80, 96, 128, 164
V_HI = 200
V_X = 208
A_O, A_Q, A_F = 0, 144, 216

LOG2E = 1.4426950408889634
import struct
def f32(x): return "0x%08x" % struct.unpack("<I", struct.pack("<f", x))[0]


class BAsm(Asm):
    def __init__(self):
        super().__init__()
        self.bg, self.every, self.cnt, self.skip = [], 0, 0, 0

    def __call__(self, s):
        for l in s.split("\n"):
            l = l.strip()
            if not l: continue
            self.lines.append("    " + l)
            if self.bg and self.every and not l.startswith(("s_nop", "v_mov_b32", "v_exp", "v_rcp", "v_rsq", "v_sqrt", "s_add_u32 m0")):
                self.cnt += 1
                if self.cnt >= self.every:
                    self.cnt = 0
                    self.pop()

    def pop(self):
        for x in self.bg.pop(0).split("\n"): self.lines.append("    " + x)

    def flush(self):
        while self.bg: self.pop()
        self.every = 0


class G:
    def __init__(self, opt):
        self.o = opt
        self.a = BAsm()
        self.nst = 0
        self.fill = []

    def stamp(self, name):
        if self.o.get("stamps"):
            if name in self.o.get("skipst", []): return
            if self.nst >= 13: return
            self.a(f"{'s_memtime' if self.o.get('cyc') else 's_memrealtime'} {sr(S_ST + 2*self.nst, 2)}")
            self.stnames.append(name)
            self.nst += 1

    def srd(self, dst, lo, hi, n):
        self.a(f"s_mov_b32 {sr(dst)}, {sr(lo)}\ns_mov_b32 {sr(dst+1)}, {sr(hi)}\ns_mov_b32 {sr(dst+2)}, {n}\ns_mov_b32 {sr(dst+3)}, 0x20000")

    def greduce(self, regs, tmp, op="v_add_f32"):
        a = self.a
        for sw in ("32", "16"):
            for i, r in enumerate(regs): a(f"v_mov_b32 {vr(tmp+i)}, {vr(r)}")
            if len(regs) < 3: a("s_nop 1" if len(regs) == 1 else "s_nop 0")
            for i, r in enumerate(regs): a(f"v_permlane{sw}_swap_b32 {vr(r)}, {vr(tmp+i)}")
            for i, r in enumerate(regs): a(f"{op} {vr(r)}, {vr(r)}, {vr(tmp+i)}")

    def treduce(self, r, op="v_add_f32"):
        a = self.a
        a(f"v_permlane32_swap_b32 {vr(r)}, {vr(r+2)}\nv_permlane32_swap_b32 {vr(r+1)}, {vr(r+3)}")
        a(f"{op} {vr(r)}, {vr(r)}, {vr(r+2)}\n{op} {vr(r+1)}, {vr(r+1)}, {vr(r+3)}\ns_nop 1")
        a(f"v_permlane16_swap_b32 {vr(r)}, {vr(r+1)}\n{op} {vr(r)}, {vr(r)}, {vr(r+1)}")

    def rbf(self, r):
        self.a(f"v_cvt_pk_bf16_f32 {vr(r)}, {vr(r)}, {vr(r)}\nv_lshlrev_b32 {vr(r)}, 16, {vr(r)}")

    def ln_tail(self, F, out, t, mimic):
        a = self.a
        p = lambda r: vr(r, 2)
        self.greduce([t, t + 1], t + 2)
        a(f"v_mul_f32 {vr(t+2)}, {f32(1.0/144)}, {vr(t)}")
        a(f"v_mul_f32 {vr(t+3)}, {vr(t+2)}, {vr(t+2)}")
        a(f"v_mov_b32 {vr(t+4)}, {f32(1.0/144)}")
        a(f"v_fma_f32 {vr(t)}, {vr(t+1)}, {vr(t+4)}, -{vr(t+3)}")
        a(f"v_max_f32 {vr(t)}, 0, {vr(t)}")
        if mimic:
            self.rbf(t)
            self.rbf(t + 2)
            a(f"v_add_f32 {vr(t)}, {f32(1e-5)}, {vr(t)}")
            self.rbf(t)
            a(f"v_sqrt_f32 {vr(t)}, {vr(t)}\ns_nop 0")
            self.rbf(t)
            a(f"v_rcp_f32 {vr(t)}, {vr(t)}\ns_nop 0")
        else:
            a(f"v_add_f32 {vr(t)}, {f32(1e-5)}, {vr(t)}")
            a(f"v_rsq_f32 {vr(t)}, {vr(t)}\ns_nop 0")
        a(f"v_mul_f32 {vr(t+2)}, -{vr(t+2)}, {vr(t)}")
        for i in range(18):
            a(f"v_pk_fma_f32 {p(F+2*i)}, {p(F+2*i)}, {p(t)}, {p(t+2)} op_sel_hi:[1,0,0]")
        for i in range(18):
            a(f"v_cvt_pk_bf16_f32 {vr(out+i)}, {vr(F+2*i)}, {vr(F+2*i+1)}")

    def ln_packed(self, X, F, out, t):
        a = self.a
        a(f"v_mov_b32 {vr(t+6)}, 0x3f803f80")
        for k in range(4): a(f"v_mov_b32 {vr(t+k)}, 0")
        for i in range(18):
            a(f"v_dot2_f32_bf16 {vr(t+2*(i&1))}, {vr(X+i)}, {vr(t+6)}, {vr(t+2*(i&1))}")
            a(f"v_dot2_f32_bf16 {vr(t+1+2*(i&1))}, {vr(X+i)}, {vr(X+i)}, {vr(t+1+2*(i&1))}")
        for i in range(2):
            a(f"v_lshlrev_b32 {vr(F+2*i)}, 16, {vr(X+i)}\nv_and_b32 {vr(F+2*i+1)}, 0xffff0000, {vr(X+i)}")
        a(f"v_pk_add_f32 {vr(t,2)}, {vr(t,2)}, {vr(t+2,2)}")
        un = []
        for i in range(2, 18):
            un.append(f"v_lshlrev_b32 {vr(F+2*i)}, 16, {vr(X+i)}\nv_and_b32 {vr(F+2*i+1)}, 0xffff0000, {vr(X+i)}")
        sv = (a.bg, a.every, a.cnt, a.skip)
        n0 = len(a.lines)
        a.bg, a.every = [], 0
        self.ln_tail(F, out, t, True)
        tail = a.lines[n0:]
        del a.lines[n0:]
        a.bg, a.every, a.cnt, a.skip = sv
        k = next(i for i, l in enumerate(tail) if "v_pk_fma" in l)
        for i, l in enumerate(tail[:k]):
            if "s_nop" in l and un: continue_nop = True
            a(l)
            if un and not l.strip().startswith("s_nop"): a(un.pop(0))
        while un: a(un.pop(0))
        for l in tail[k:]: a(l)

    def ln_f32(self, F, out, t):
        a = self.a
        p = lambda r: vr(r, 2)
        a(f"v_pk_add_f32 {p(t)}, {p(F)}, {p(F+2)}\nv_pk_add_f32 {p(t+2)}, {p(F+4)}, {p(F+6)}")
        a(f"v_pk_mul_f32 {p(t+4)}, {p(F)}, {p(F)}\nv_pk_mul_f32 {p(t+6)}, {p(F+2)}, {p(F+2)}")
        for i in range(2, 18):
            if i >= 4: a(f"v_pk_add_f32 {p(t+2*(i&1))}, {p(t+2*(i&1))}, {p(F+2*i)}")
            a(f"v_pk_fma_f32 {p(t+4+2*(i&1))}, {p(F+2*i)}, {p(F+2*i)}, {p(t+4+2*(i&1))}")
        a(f"v_pk_add_f32 {p(t)}, {p(t)}, {p(t+2)}\nv_pk_add_f32 {p(t+4)}, {p(t+4)}, {p(t+6)}")
        a(f"v_add_f32 {vr(t)}, {vr(t)}, {vr(t+1)}\nv_add_f32 {vr(t+1)}, {vr(t+4)}, {vr(t+5)}")
        self.ln_tail(F, out, t, False)

    def gemm_u(self, AF, rf, Bs, ACC, afr, bfr, post, vm_items=(), other=(), lead=7):
        a = self.a
        units = [(0, j) for j in range(4)] + [(1, j) for j in range(4)] + [(2, 0)]
        seq, dl = [], {}
        rem = lambda u: (f"v_mfma_f32_16x16x16_bf16 {vr(ACC+4*u,4)}, {rf(AF+18*units[u][0]+16,2)}, {vr(Bs[units[u][1]]+16,2)}, {vr(ACC+4*u,4)}", u)
        A = [afr(t) for t in range(3)]
        Bf = [bfr(j) for j in range(4)]

        def use(t, j, s, k):
            for x in (A[t][2 * s:2 * s + 2] if s < 4 else A[t][8:]) + ([Bf[j][s]] if Bf[j] else []): dl.setdefault(x, k)
        for g in range(4):
            for s in range(4):
                for u in range(3 * g, 3 * g + 3) if g < 3 else []:
                    t, j = units[u]
                    d = vr(ACC + 4 * u, 4)
                    use(t, j, s, len(seq))
                    seq.append((f"v_mfma_f32_16x16x32_bf16 {d}, {rf(AF+18*t+4*s,4)}, {vr(Bs[j]+4*s,4)}, {'0' if s == 0 else d}", None))
                if s == 0 and g > 0:
                    for u in range(3 * g - 3, 3 * g):
                        use(units[u][0], units[u][1], 4, len(seq)); seq.append(rem(u))
        last = seq[-3:]; seq = seq[:-3]
        ds = sorted(dl.items(), key=lambda e: e[1]) + [(x, 99) for x in other]
        vm_items = list(vm_items)
        order, ready, q, done = [], [], [], 0

        def issue():
            x, k_ = ds.pop(0); a(x); order.append(k_)

        def wait(k):
            nonlocal done
            idx = [i_ for i_, k_ in enumerate(order) if k_ <= k]
            if idx and max(idx) + 1 > done:
                a(f"s_waitcnt lgkmcnt({min(15, len(order) - 1 - max(idx))})"); done = max(idx) + 1
        while ds and ds[0][1] < 6: issue()
        for k, (m, fin) in enumerate(seq):
            assert not ds or ds[0][1] > k, (k, ds[0])
            wait(k)
            a(m)
            for u_, kk in list(ready):
                if k - kk >= 4: q += post(u_); ready.remove((u_, kk))
            if fin is not None: ready.append((fin, k))
            due = sum(1 for x, k_ in ds if k_ <= k + lead)
            if due == 0 and vm_items and k % 2 == 1:
                a(vm_items.pop(0)); continue
            cap = 2
            for _ in range(min(due, 3)): issue(); cap -= 1
            if cap == 2:
                if q and q[0].startswith("ds_"): a(q.pop(0)); order.append(99); cap -= 1
                elif ds: issue(); cap -= 1
            while cap > 0 and q and not q[0].startswith("ds_"):
                a(q.pop(0)); cap -= 1
        assert not ready
        while ds: issue()
        wait(98)
        for x in vm_items: a(x)
        for x in q[:4]: a(x)
        a(f"s_nop {max(0, 4 - len(q[:4]))}")
        for m, _ in last: a(m)
        for x in q[4:]: a(x)
        a(f"s_nop {max(0, 6 - len(q[4:]))}")
        for u in range(6, 9):
            for x in post(u): a(x)

    def gemm(self, reads, B, ACC, AF, late=()):
        a = self.a
        buf = lambda T: 18 * (T % 6)

        def grp(g):
            r = [reads(T, buf(T)) for T in range(3 * g, 3 * g + 3)]
            return [r[t][2 * s + u] for s in range(4) for t in range(3) for u in range(2)] + [r[t][8] for t in range(3)]
        rem = lambda T: f"v_mfma_f32_16x16x16_bf16 {vr(ACC+4*T,4)}, {ar(buf(T)+16,2)}, {vr(B+16,2)}, {vr(ACC+4*T,4)}"
        pend = grp(0) + grp(1) + grp(2) + list(late)
        issued = 0

        def issue(n):
            nonlocal issued
            for _ in range(n):
                if issued < len(pend): a(pend[issued]); issued += 1
        issue(self.o.get('look', 12))
        for g in range(3):
            for s in range(4):
                need = 27 * g + 6 * (s + 1)
                a(f"s_waitcnt lgkmcnt({min(15, issued - need)})")
                for T in range(3 * g, 3 * g + 3):
                    d = vr(ACC + 4 * T, 4)
                    a(f"v_mfma_f32_16x16x32_bf16 {d}, {ar(buf(T)+4*s,4)}, {vr(B+4*s,4)}, {'0' if s == 0 else d}")
                    issue(2)
                if s == 0 and g > 0:
                    for T in range(3 * g - 3, 3 * g):
                        a(rem(T)); issue(2)
        issue(99)
        a(f"s_waitcnt lgkmcnt({len(late)})\ns_nop 2")
        for T in range(6, 9): a(rem(T))
        a("s_nop 7")

    def tr_reads(self, ad, rf=ar):
        def f(T, dst):
            out = []
            for s in range(4):
                for u in range(2):
                    out.append(f"ds_read_b64_tr_b16 {rf(dst+4*s+2*u,2)}, {vr(ad+u)} offset:{9216*s + 32*T}")
            out.append(f"ds_read_b64_tr_b16 {rf(dst+16,2)}, {vr(ad+2)} offset:{36864 + 32*T}")
            return out
        return f

    def row_reads(self, ad, sw=None):
        def f(T, dst):
            r = ad if sw is None or T == 8 else sw[T & 1]
            out = []
            for s in range(4):
                for u in range(2):
                    out.append(f"ds_read_b64 {ar(dst+4*s+2*u,2)}, {vr(r)} offset:{4864*T + 64*s + 32*u}")
            out.append(f"ds_read_b64 {ar(dst+16,2)}, {vr(r)} offset:{4864*T + 256}")
            return out
        return f

    def dma_rows(self, jobs, cpr, rstride, vo, vc, n_first, first_waves, lab):
        a = self.a
        mul = {18: 3641, 19: 3450}[cpr]
        dr, dc = 256 // cpr, 256 % cpr
        a(f"s_lshl_b32 {sr(S_T)}, {sr(S_W)}, 6")
        a(f"v_add_u32 {vr(vc)}, {sr(S_T)}, v0")
        a(f"v_mul_u32_u24 {vr(vo)}, {mul}, {vr(vc)}")
        a(f"v_lshrrev_b32 {vr(vo)}, 16, {vr(vo)}")
        a(f"v_mul_u32_u24 {vr(vc+1)}, {cpr}, {vr(vo)}")
        a(f"v_sub_u32 {vr(vc)}, {vr(vc)}, {vr(vc+1)}")
        a(f"v_mul_u32_u24 {vr(vo)}, {rstride}, {vr(vo)}")
        a(f"v_lshl_add_u32 {vr(vo)}, {vr(vc)}, 4, {vr(vo)}")
        a(f"s_lshl_b32 {sr(S_T)}, {sr(S_W)}, 10")
        a(f"v_mov_b32 {vr(vc+1)}, {rstride - 16*cpr}")
        for k in range(n_first):
            if k == n_first - 1:
                a(f"s_cmp_ge_u32 {sr(S_W)}, {first_waves}\ns_cbranch_scc1 {lab}")
            for srd, so, lb in jobs:
                a(f"s_add_u32 m0, {sr(S_T)}, {lb + 4096*k}")
                a("s_nop 0")
                a(f"buffer_load_dwordx4 {vr(vo)}, {sr(srd,4)}, {so} offen lds")
            if k < n_first - 1:
                a(f"v_add_u32 {vr(vc)}, {dc}, {vr(vc)}")
                a(f"v_cmp_le_u32 vcc, {cpr}, {vr(vc)}")
                a(f"v_add_u32 {vr(vo)}, {dr*rstride + 16*dc}, {vr(vo)}")
                a(f"v_subrev_u32 {vr(vc+2)}, {cpr}, {vr(vc)}")
                a(f"v_cndmask_b32 {vr(vc)}, {vr(vc)}, {vr(vc+2)}, vcc")
                a(f"v_cndmask_b32 {vr(vc+2)}, 0, {vr(vc+1)}, vcc")
                a(f"v_add_u32 {vr(vo)}, {vr(vo)}, {vr(vc+2)}")
        a.label(lab)

    def voff_table(self, dst, cpr, rstride, vc):
        a = self.a
        mul = {18: 29128, 19: 27595}[cpr]
        a(f"s_mov_b32 {sr(S_T)}, {rstride - 16*cpr}")
        a(f"v_mul_u32_u24 {vr(dst)}, {mul}, {vr(vc)}")
        for k in range(1, 11): a(f"v_add_u32 {vr(dst+k)}, {(256*k % cpr)*mul}, {vr(dst)}")
        for k in range(11): a(f"v_lshrrev_b32 {vr(dst+k)}, 19, {vr(dst+k)}")
        for k in range(11): a(f"v_mad_i32_i24 {vr(dst+k)}, {vr(dst+k)}, {sr(S_T)}, {vr(vc+1)}")

    def dma_lin(self, srd, soff, lb, v16, lab):
        a = self.a
        a(f"s_lshl_b32 {sr(S_T)}, {sr(S_W)}, 10")
        for k in range(11):
            if k == 10:
                a(f"s_cmp_ge_u32 {sr(S_W)}, 1\ns_cbranch_scc1 {lab}")
            a(f"s_add_u32 m0, {sr(S_T)}, {lb + 4096*k}")
            a(f"s_add_u32 {sr(S_T+1)}, {sr(S_T)}, {soff + 4096*k}")
            a(f"buffer_load_dwordx4 {vr(v16)}, {sr(srd,4)}, {sr(S_T+1)} offen lds")
        a.label(lab)

    def tr_addr(self, ad, base, swapped, t):
        a = self.a
        a(f"v_lshrrev_b32 {vr(t)}, 2, v0")
        a(f"v_mul_u32_u24 {vr(t)}, 288, {vr(t)}")
        a(f"v_and_b32 {vr(t+1)}, 3, v0")
        a(f"v_lshl_add_u32 {vr(t)}, {vr(t+1)}, 3, {vr(t)}")
        a(f"v_add_u32 {vr(ad+2)}, {base}, {vr(t)}")
        if swapped:
            a(f"v_bfe_u32 {vr(t)}, v0, 4, 1")
            a(f"v_mul_u32_u24 {vr(t)}, {16*288}, {vr(t)}")
            a(f"v_add_u32 {vr(ad)}, {vr(ad+2)}, {vr(t)}")
            a(f"v_sub_u32 {vr(ad+1)}, {vr(ad+2)}, {vr(t)}")
            a(f"v_add_u32 {vr(ad+1)}, {16*288}, {vr(ad+1)}")
        else:
            a(f"v_mov_b32 {vr(ad)}, {vr(ad+2)}")
            a(f"v_add_u32 {vr(ad+1)}, {16*288}, {vr(ad+2)}")

    def row_addr(self, ad, base, t):
        a = self.a
        a(f"v_and_b32 {vr(t)}, 15, v0")
        a(f"v_mul_u32_u24 {vr(t)}, 304, {vr(t)}")
        a(f"v_lshrrev_b32 {vr(t+1)}, 4, v0")
        a(f"v_lshl_add_u32 {vr(t)}, {vr(t+1)}, 3, {vr(t)}")
        a(f"v_add_u32 {vr(ad)}, {base}, {vr(t)}")

    def store_block(self, src, v16, v8, srd, soff, soff2, flags=""):
        a = self.a
        for s in range(4):
            a(f"buffer_store_dwordx4 {vr(src+4*s,4)}, {vr(v16)}, {sr(srd,4)}, {sr(soff)} offen offset:{1024*s} {flags}")
        a(f"buffer_store_dwordx2 {vr(src+16,2)}, {vr(v8)}, {sr(srd,4)}, {sr(soff2)} offen {flags}")

    def entry(self):
        a = self.a
        kernel_header(a, NAME)
        a(f"s_load_dwordx4 s[56:59], s[0:1], 0")
        a(f"s_getpc_b64 {sr(S_W1,2)}")
        a.label("L_pf")
        a(f"""s_mov_b32 {sr(S_W1+2)}, L_dummy-L_pf
        s_mov_b32 {sr(S_W1+3)}, 0x20000
        v_lshlrev_b32 v1, 4, v0
        s_bfe_u32 {sr(S_T)}, s2, 0x30003
        s_lshl_b32 {sr(S_T)}, {sr(S_T)}, 12
""")
        cpf = self.o.get("cpf", 1)
        if cpf >= 1:
            a(f"""buffer_load_dwordx4 v[252:255], v1, {sr(S_W1,4)}, 0 offen
            buffer_load_dwordx4 v[252:255], v1, {sr(S_W1,4)}, {sr(S_T)} offen""")
        if cpf == 2:
            for k in range(1, 8): a(f"s_mov_b32 {sr(S_T)}, {4096*k}\nbuffer_load_dwordx4 v[252:255], v1, {sr(S_W1,4)}, {sr(S_T)} offen")
        a(f"s_cmp_ge_u32 s2, {NWG}\ns_cbranch_scc1 L_end")
        self.stamp("start")
        a(f"s_load_dwordx4 s[60:63], s[0:1], 80")
        a(f"s_load_dwordx4 s[64:67], s[0:1], 40")
        a(f"s_load_dwordx4 s[68:71], s[0:1], 16")
        a(f"s_load_dwordx4 s[72:75], s[0:1], 64")
        a(f"v_lshrrev_b32 v1, 6, v0")
        a(f"s_and_b32 {sr(S_H)}, s2, 1")
        a(f"v_readfirstlane_b32 {sr(S_W)}, v1")
        a(f"s_bfe_u32 {sr(S_B)}, s2, 0x10001")
        a(f"s_lshr_b32 {sr(S_QB)}, s2, 2")
        a(f"v_and_b32 v0, 63, v0")
        a(f"v_lshlrev_b32 {vr(V_DMA)}, 4, v0")
        a(f"s_cmp_ge_u32 s2, 252\ns_cbranch_scc1 L_wfuse")

    def phase_a(self):
        a, o = self.a, self.o
        XR, XF, XA, ACC = 16, 34, 146, 110
        B4, XD, G_ = 16, 88, 16
        VS, VSW, VR4, MXA, MXR, L8, TRU, TRQ, TRQ8, RK, TM = 200, 204, 208, 212, 213, 214, 215, 218, 221, 224, 242
        VK, VU = 182, 228
        t0, t1, t2 = 250, 251, 241
        AQ1 = 200
        L_QR2 = L_XR + 0
        T = S_T
        WV = S_T + 20
        L_XS = L_WU
        a(f"""s_lshl_b32 {sr(T)}, {sr(S_QB)}, 1
        s_add_u32 {sr(S_TOWN)}, {sr(T)}, {sr(S_H)}
        s_xor_b32 {sr(S_TSND)}, {sr(S_TOWN)}, 1
        s_cmp_lt_u32 {sr(S_TOWN)}, {NT}
        s_cselect_b32 {sr(S_VAL)}, 1, 0
        s_cmp_lt_u32 {sr(S_W)}, 2
        s_cselect_b32 {sr(T+3)}, {sr(S_TSND)}, {sr(S_TOWN)}
        s_mul_i32 {sr(T)}, {sr(S_B)}, {NT}
        s_add_u32 {sr(S_TOWN)}, {sr(S_TOWN)}, {sr(T)}
        s_add_u32 {sr(S_TSND)}, {sr(S_TSND)}, {sr(T)}
        s_add_u32 {sr(T+1)}, {sr(T+3)}, {sr(T)}
        s_lshl_b32 {sr(T+1)}, {sr(T+1)}, 1
        s_and_b32 {sr(T+2)}, {sr(S_W)}, 1
        s_add_u32 {sr(T+2)}, {sr(T+1)}, {sr(T+2)}
        s_mul_i32 {sr(T+1)}, {sr(T+2)}, {16*288}
        s_mul_i32 {sr(S_LB)}, {sr(S_W)}, 5120
        s_add_u32 {sr(S_LB)}, {sr(S_LB)}, {L_XS}
        s_mov_b32 m0, {sr(S_LB)}
        s_mov_b32 {sr(S_X+2)}, 2304000
        s_mov_b32 {sr(S_X+3)}, 0x20000
        s_add_u32 {sr(S_CNT)}, {sr(T+1)}, 4096
        s_waitcnt lgkmcnt(0)
        s_mov_b32 {sr(S_X)}, s56
        s_mov_b32 {sr(S_X+1)}, s57""")
        for k in range(4): a(f"buffer_load_dwordx4 {vr(V_DMA)}, {sr(S_X,4)}, {sr(T+1)} offen offset:{1024*k} lds")
        a(f"s_add_u32 m0, {sr(S_LB)}, 4096\ns_mov_b32 exec_hi, 0\nbuffer_load_dwordx4 {vr(V_DMA)}, {sr(S_X,4)}, {sr(S_CNT)} offen lds\ns_mov_b32 exec_hi, -1")
        self.stamp("xiss")
        SQ, SK, SU = S_W2, S_W1, S_XA
        self.srd(SQ, 58, 59, 41472)
        self.srd(SK, 68, 69, 41472)
        self.srd(SU, 64, 65, 82944)
        a(f"s_lshr_b32 {sr(T)}, s2, 3\ns_lshl_b32 {sr(T)}, {sr(T)}, 2\ns_add_u32 {sr(T)}, {sr(T)}, {sr(S_W)}")
        npf = 3
        for srd_, rot in ((SQ, 0), (SK, 87), (SU, 46)):
            a(f"s_add_u32 {sr(T+1)}, {sr(T)}, {rot}\ns_and_b32 {sr(T+1)}, {sr(T+1)}, 127\ns_lshl_b32 {sr(T+1)}, {sr(T+1)}, 10")
            a(f"buffer_load_dwordx4 v[252:255], {vr(V_DMA)}, {sr(srd_,4)}, {sr(T+1)} offen")
        self.srd(S_OUT, 74, 75, 2304000)
        if o.get("touch"):
            self.srd(S_WS, 62, 63, WS_END)
            self.srd(S_DB, 60, 61, 256)
            step = o["touch"]
            a(f"v_mul_u32_u24 v250, {step}, v0\nv_mov_b32 v251, 0")
            a(f"buffer_load_dword v252, v250, {sr(S_WS,4)}, 0 offen sc1")
            a(f"buffer_load_dword v252, v250, {sr(S_OUT,4)}, 0 offen sc1")
            a(f"buffer_load_dword v252, v251, {sr(S_DB,4)}, 0 offen offset:252 sc1")
            npf += 3
        a(f"s_cmp_lt_u32 {sr(T+3)}, {NT}\ns_cselect_b32 {sr(WV)}, 1, 0\ns_mov_b32 {sr(WV+1)}, {sr(T+2)}")
        W10, UOFF, M1, M3, PUB, W12 = S_T + 22, S_T + 23, S_T + 18, S_T + 19, S_T + 6, S_T + 7
        a(f"""s_lshl_b32 {sr(W10)}, {sr(S_W)}, 10
        s_mul_i32 {sr(UOFF)}, {sr(S_H)}, 288
        s_cmp_eq_u32 {sr(S_W)}, 0
        s_cselect_b32 {sr(M1)}, 0, {L_DUMP}
        s_cmp_lt_u32 {sr(S_W)}, 3
        s_cselect_b32 {sr(M3)}, {sr(W10)}, {L_DUMP}
        s_lshl_b32 {sr(W12)}, {sr(S_W)}, 12""")
        gq = []
        for c in range(6):
            for k in range(4 if c < 5 else 1):
                g_ = f"buffer_load_dwordx4 {vr(V_DMA)}, {sr(SQ,4)}, {sr(S_CNT)} offen offset:{1024*k} lds"
                if k == 0: g_ = f"s_add_u32 m0, {sr(W12 if c < 5 else M1)}, {L_WQ + 8192*c}\ns_add_u32 {sr(S_CNT)}, {sr(W12)}, {8192*c}\n" + g_
                gq.append(g_)
        gk = [f"s_add_u32 m0, {sr(W10 if k < 10 else M3)}, {L_WK + 4096*k}\ns_mov_b32 {sr(S_CNT)}, {4096*k - 16*(256*k//19)}\nbuffer_load_dwordx4 {vr(VK+k)}, {sr(SK,4)}, {sr(S_CNT)} offen lds" for k in range(11)]
        gu = [f"s_add_u32 m0, {sr(W10 if k < 10 else M1)}, {L_WU + 4096*k}\ns_add_u32 {sr(S_CNT)}, {sr(UOFF)}, {4096*k + 288*(256*k//18)}\nbuffer_load_dwordx4 {vr(VU+k)}, {sr(SU,4)}, {sr(S_CNT)} offen lds" for k in range(11)]
        npre = o.get("npre", 8)
        a(f"s_cmp_ge_u32 {sr(S_W)}, 2\ns_cbranch_scc1 L_pre1")
        for g_ in gq[:npre]: a(g_)
        a.label("L_pre1")
        a(f"s_lshl_b32 {sr(T)}, {sr(S_W)}, 6\nv_add_u32 {vr(t0)}, {sr(T)}, v0\nv_lshlrev_b32 {vr(t1)}, 4, {vr(t0)}")
        self.voff_table(VK, 19, 288, t0)
        self.voff_table(VU, 18, 576, t0)
        self.srd(S_WS, 62, 63, WS_END)
        self.srd(S_DB, 60, 61, 256)
        self.srd(S_DW, 66, 67, 864)
        xa0, xa1, xa2 = TM, TM + 1, TM + 2
        a(f"""v_and_b32 {vr(t0)}, 15, v0
        v_lshrrev_b32 {vr(t1)}, 5, v0
        v_lshlrev_b32 {vr(t1)}, 3, {vr(t1)}
        v_xor_b32 {vr(t1)}, {vr(t0)}, {vr(t1)}
        v_lshlrev_b32 {vr(t1)}, 4, {vr(t1)}
        v_lshrrev_b32 {vr(t2)}, 4, v0
        v_lshl_add_u32 {vr(V_KA)}, {vr(t2)}, 9, {vr(t1)}
        v_lshrrev_b32 {vr(t1)}, 3, {vr(t0)}
        v_lshlrev_b32 {vr(t1)}, 1, {vr(t1)}
        v_xor_b32 {vr(t1)}, {vr(t2)}, {vr(t1)}
        v_lshl_add_u32 {vr(t1)}, {vr(t0)}, 2, {vr(t1)}
        v_lshlrev_b32 {vr(V_KA+1)}, 3, {vr(t1)}
        v_lshlrev_b32 {vr(L8)}, 3, v0
        v_lshlrev_b32 {vr(MXR)}, 4, {vr(t0)}
        v_add_u32 {vr(MXR)}, {L_MX}, {vr(MXR)}
        v_add_u32 {vr(MXA)}, {sr(S_W)}, {vr(t2)}
        v_and_b32 {vr(MXA)}, 3, {vr(MXA)}
        v_lshl_add_u32 {vr(MXA)}, {vr(MXA)}, 8, {vr(MXR)}
        s_lshl_b32 {sr(T)}, {sr(S_W)}, 2
        v_add_u32 {vr(MXA)}, {sr(T)}, {vr(MXA)}
        v_mul_u32_u24 {vr(xa2)}, 288, {vr(t0)}
        v_lshl_add_u32 {vr(xa2)}, {vr(t2)}, 3, {vr(xa2)}
        v_add_u32 {vr(xa2)}, {sr(S_LB)}, {vr(xa2)}
        v_and_b32 {vr(t1)}, 1, {vr(t2)}
        v_lshlrev_b32 {vr(t1)}, 5, {vr(t1)}
        v_add_u32 {vr(xa0)}, {vr(xa2)}, {vr(t1)}
        v_xor_b32 {vr(t1)}, 32, {vr(t1)}
        v_add_u32 {vr(xa1)}, {vr(xa2)}, {vr(t1)}
        s_mul_i32 {sr(S_LB)}, {sr(S_W)}, {TILE}
        v_lshrrev_b32 {vr(t0)}, 2, v0
        v_bfe_u32 {vr(t1)}, v0, 1, 1
        v_lshlrev_b32 {vr(t1)}, 3, {vr(t1)}
        v_xor_b32 {vr(t1)}, {vr(t0)}, {vr(t1)}
        v_lshlrev_b32 {vr(t1)}, 4, {vr(t1)}
        v_and_b32 {vr(t2)}, 3, v0
        v_lshl_add_u32 {vr(t1)}, {vr(t2)}, 9, {vr(t1)}
        v_and_b32 {vr(V_VA)}, 1, v0
        v_lshl_add_u32 {vr(t1)}, {vr(V_VA)}, 3, {vr(t1)}
        v_add_u32 {vr(V_VA)}, {sr(S_LB)}, {vr(t1)}
        v_xor_b32 {vr(V_VA+1)}, 8, {vr(V_VA)}
        v_lshrrev_b32 {vr(t1)}, 5, v0
        v_lshlrev_b32 {vr(t1)}, 1, {vr(t1)}
        v_xor_b32 {vr(t1)}, {vr(t2)}, {vr(t1)}
        v_lshl_add_u32 {vr(t1)}, {vr(t0)}, 2, {vr(t1)}
        v_lshlrev_b32 {vr(t1)}, 3, {vr(t1)}
        v_add_u32 {vr(V_VR)}, {sr(S_LB)}, {vr(t1)}
        v_add_u32 {vr(V_DMA+1)}, 4096, {vr(V_DMA)}
        v_add_u32 {vr(V_DMA+2)}, 8192, {vr(V_DMA)}""")
        self.tr_addr(TRU, L_WU, True, t0)
        a(f"s_lshl_b32 {sr(T)}, {sr(S_W)}, 6\ns_sub_u32 {sr(T)}, {sr(T)}, {L_WU - L_WQ}")
        for k in range(3):
            a(f"v_add_u32 {vr(TRQ+k)}, {sr(T)}, {vr(TRU+k)}\nv_subrev_u32 {vr(TRQ8+k)}, {L_WU - L_WQ - 256}, {vr(TRU+k)}")
        self.row_addr(RK + 2, L_WK + 8 * 4864, t0)
        a(f"""s_mul_i32 {sr(T)}, {sr(S_W)}, {2*4864}
        s_sub_u32 {sr(T)}, {sr(T)}, {8*4864}
        v_add_u32 {vr(t1)}, {sr(T)}, {vr(RK+2)}
        v_bfe_u32 {vr(t0)}, v0, 2, 1
        v_mul_u32_u24 {vr(t0)}, 4864, {vr(t0)}
        v_add_u32 {vr(RK)}, {vr(t1)}, {vr(t0)}
        v_sub_u32 {vr(RK+1)}, {vr(t1)}, {vr(t0)}""")
        for j in range(4):
            a(f"""s_add_u32 {sr(T)}, {sr(S_W)}, {j}
            s_and_b32 {sr(T)}, {sr(T)}, 3
            s_lshl_b32 {sr(T+1)}, {sr(T)}, 12
            s_add_u32 {sr(T+1)}, {sr(T+1)}, {L_XX}
            v_add_u32 {vr(VS+j)}, {sr(T+1)}, {vr(V_DMA)}
            s_lshl_b32 {sr(T+1)}, {sr(T)}, 9
            s_add_u32 {sr(T+1)}, {sr(T+1)}, {L_XR}
            v_add_u32 {vr(VR4+j)}, {sr(T+1)}, {vr(L8)}
            v_add_u32 {vr(VSW+j)}, {sr(W10)}, {vr(VS+j)}""")
        a(f"""s_sub_u32 {sr(T+2)}, 63, {sr(S_H)}
        s_add_u32 {sr(T+3)}, {sr(S_W)}, 60
        s_cmp_ge_u32 {sr(T+3)}, {sr(T+2)}
        s_cselect_b32 {sr(S_DUM)}, 4, 99
        s_mov_b32 {sr(S_REDO)}, 0
        s_mov_b32 {sr(S_TOFF)}, {sr(S_LB)}
        v_mov_b32 {vr(t0)}, {L_MX}
        v_mov_b32 {vr(t1)}, 0
        ds_write_b32 {vr(t0)}, {vr(t1)}
        s_sub_u32 {sr(T)}, {sr(S_TOWN)}, 63
        s_mul_i32 {sr(T+1)}, {sr(S_B)}, {NT}
        s_cmp_ge_i32 {sr(T)}, {sr(T+1)}
        s_cselect_b32 {sr(T)}, 64, 0
        s_lshl_b32 {sr(T+1)}, {sr(S_B)}, 7
        s_add_u32 {sr(PUB)}, {sr(T)}, {sr(T+1)}""")
        self.stamp("pre")

        def xread():
            for s in range(4):
                a(f"ds_read_b64 {vr(XR+4*s,2)}, {vr(xa0)} offset:{64*s}\nds_read_b64 {vr(XR+4*s+2,2)}, {vr(xa1)} offset:{64*s}")
            a(f"ds_read_b64 {vr(XR+16,2)}, {vr(xa2)} offset:256")
        xw = [f"ds_write_b128 {vr(VS)}, {vr(XA+4*s,4)} offset:{1024*s}" for s in range(4)] + [f"ds_write_b64 {vr(VR4)}, {vr(XA+16,2)}"]
        a(f"s_cmp_lt_u32 {sr(S_W)}, 2\ns_cbranch_scc1 L_lnB")
        a(f"s_waitcnt vmcnt({npf})")
        self.stamp("xarr")
        xread()
        a(f"""s_and_b32 {sr(T)}, {sr(S_W)}, 1
        s_mul_i32 {sr(T+2)}, {sr(S_TOWN)}, {TILE}
        s_cmp_eq_u32 {sr(S_VAL)}, 1
        s_cselect_b32 {sr(T+2)}, {sr(T+2)}, 0x40000000
        s_lshl_b32 {sr(T+3)}, {sr(T)}, 8
        s_add_u32 {sr(T+3)}, {sr(T+3)}, {sr(T+2)}
        s_add_u32 {sr(T+4)}, {sr(T+3)}, 4096
        s_lshl_b32 {sr(T+5)}, {sr(T)}, 9
        s_add_u32 {sr(T+5)}, {sr(T+5)}, {sr(T+2)}
        s_add_u32 {sr(T+5)}, {sr(T+5)}, 8192
        s_waitcnt lgkmcnt(0)""")
        self.ln_packed(XR, XF, XA, TM)
        for s in range(4):
            a(f"buffer_store_dwordx4 {vr(XA+4*s,4)}, {vr(V_KA)}, {sr(S_WS,4)}, {sr(T+3+(s>>1))} offen offset:{2048*(s&1)} sc1")
        a(f"buffer_store_dwordx2 {vr(XA+16,2)}, {vr(V_KA+1)}, {sr(S_WS,4)}, {sr(T+5)} offen sc1")
        for x in xw: a(x)
        a("s_branch L_bar1")
        a.label("L_lnB")
        a(f"s_waitcnt vmcnt({npf + npre})")
        xread()
        nmid = o.get("nmid", 3)
        for g_ in gq[npre:npre + nmid]: a(g_)
        a("s_waitcnt lgkmcnt(0)")
        a.bg, a.every, a.cnt = gq[npre + nmid:], o.get("evln", 8), 0
        self.ln_packed(XR, XF, XA, TM)
        a.flush()
        for x in xw: a(x)
        a(f"""s_mul_i32 {sr(T)}, s2, {IB}
        s_mul_i32 {sr(T+1)}, {sr(S_W)}, 5120
        s_add_u32 {sr(T)}, {sr(T)}, {sr(T+1)}
        s_add_u32 {sr(T)}, {sr(T)}, {WS_IB}
        s_add_u32 {sr(T+1)}, {sr(T)}, 4096""")
        for i in range(4): a(f"v_mov_b32 {vr(XR+i)}, -1")
        for i in range(4): a(f"buffer_store_dwordx4 {vr(XR,4)}, {vr(V_DMA)}, {sr(S_WS,4)}, {sr(T)} offen offset:{1024*i} sc1")
        a(f"buffer_store_dwordx4 {vr(XR,4)}, {vr(V_DMA)}, {sr(S_WS,4)}, {sr(T+1)} offen sc1")
        a.label("L_bar1")
        self.stamp("pub")
        n1 = o.get("n1", 4)
        for g_ in gk[:n1]: a(g_)
        a(f"v_add_u32 {vr(V_KA)}, {sr(S_LB)}, {vr(V_KA)}\nv_add_u32 {vr(V_KA+1)}, {sr(S_LB)}, {vr(V_KA+1)}")
        a(f"s_waitcnt vmcnt({5 + n1}) lgkmcnt(0)\ns_barrier")
        self.stamp("bar1")

        def a_tr(t):
            ad, off = (TRQ, 32 * t) if t < 2 else (TRQ8, 0)
            return [f"ds_read_b64_tr_b16 {ar(AQ1+18*t+4*s+2*u,2)}, {vr(ad+u)} offset:{9216*s + off}" for s in range(4) for u in range(2)] + \
                   [f"ds_read_b64_tr_b16 {ar(AQ1+18*t+16,2)}, {vr(ad+2)} offset:{36864 + off}"]

        def a_row(t):
            off = 4864 * t if t < 2 else 0
            return [f"ds_read_b64 {ar(A_Q+18*t+4*s+2*u,2)}, {vr(RK+t)} offset:{off + 64*s + 32*u}" for s in range(4) for u in range(2)] + \
                   [f"ds_read_b64 {ar(A_Q+18*t+16,2)}, {vr(RK+t)} offset:{off + 256}"]
        bq = lambda j: [f"ds_read_b128 {vr(B4+18*j+4*s,4)}, {vr(VS+j)} offset:{1024*s}" for s in range(4)] + [f"ds_read_b64 {vr(B4+18*j+16,2)}, {vr(VR4+j)}"]

        PK = 164

        def post1(u):
            L = [f"v_cvt_pk_bf16_f32 {vr(PK + (4*(u&3) + 2*(u>>2) if u < 8 else 16) + h)}, {vr(ACC+4*u+2*h)}, {vr(ACC+4*u+2*h+1)}" for h in range(2)]
            return L
        xd = [f"ds_read_b128 {vr(XD+4*j,4)}, {vr(VSW+j)}" for j in range(4)]
        self.gemm_u(AQ1, ar, [XA, B4 + 18, B4 + 36, B4 + 54], ACC, a_tr, lambda j: bq(j) if j else None, post1, vm_items=gk[n1:], other=xd)
        a(f"""v_mov_b32 {vr(t0)}, 0x40000000
        v_mov_b32 {vr(t1)}, 1
        s_mov_b64 exec, 1
        s_cmp_lt_u32 {sr(S_W)}, 2
        s_cbranch_scc1 L_sig
        s_cmp_eq_u32 {sr(S_VAL)}, 0
        s_cbranch_scc1 L_sig
        s_waitcnt vmcnt(11)
        v_mov_b32 {vr(t2)}, {L_MX}
        ds_add_rtn_u32 {vr(t2)}, {vr(t2)}, {vr(t1)}
        s_waitcnt lgkmcnt(0)
        v_readfirstlane_b32 {sr(T+1)}, {vr(t2)}
        s_cmp_eq_u32 {sr(T+1)}, 1
        s_cselect_b32 {sr(T)}, {sr(PUB)}, 0x40000000
        v_mov_b32 {vr(t0)}, {sr(T)}""")
        a.label("L_sig")
        a(f"buffer_atomic_add {vr(t1)}, {vr(t0)}, {sr(S_DB,4)}, 0 offen sc1\ns_mov_b64 exec, -1")
        self.stamp("sig")
        a("s_waitcnt lgkmcnt(0)\ns_barrier")
        for j in range(4): a(f"ds_write_b128 {vr(VSW+j)}, {vr(PK+4*j,4)}")
        a(f"ds_write_b64 {vr(VR4)}, {vr(PK+16,2)}")
        n2 = o.get("n2", 3)
        for g_ in gu[:n2]: a(g_)
        a(f"s_mov_b32 {sr(T+4)}, {f32(LOG2E / 12.0)}\ns_waitcnt vmcnt({1 + n2}) lgkmcnt(0)\ns_barrier")
        self.stamp("bar2")

        def post2(u):
            L = [f"v_mul_f32 {vr(ACC+4*u+i)}, {sr(T+4)}, {vr(ACC+4*u+i)}" for i in range(4)]
            L += [f"v_cvt_pk_bf16_f32 {vr(PK + (4*(u&3) + 2*(u>>2) if u < 8 else 16) + h)}, {vr(ACC+4*u+2*h)}, {vr(ACC+4*u+2*h+1)}" for h in range(2)]
            if 4 <= u < 8: L.append(f"ds_write_b128 {vr(VSW+u-4)}, {vr(PK+4*(u-4),4)} offset:{L_QX - L_XX}")
            if u == 8: L.append(f"ds_write_b64 {vr(t2)}, {vr(PK+16,2)}")
            return L
        a(f"v_subrev_u32 {vr(t2)}, {L_XR - L_QR}, {vr(VR4)}")
        self.gemm_u(A_Q, ar, [B4 + 18 * j for j in range(4)], ACC, a_row, bq, post2, vm_items=gu[n2:])
        self.stamp("g2")
        CC = TM
        for j in range(4): a(f"v_dot2_f32_bf16 {vr(CC+j)}, {vr(PK+4*j)}, {vr(XD+4*j)}, 0")
        for i in range(2): a(f"v_dot2_f32_bf16 {vr(CC)}, {vr(PK+16+i)}, {vr(XA+16+i)}, {vr(CC)}")
        for i in range(1, 4):
            for j in range(4): a(f"v_dot2_f32_bf16 {vr(CC+j)}, {vr(PK+4*j+i)}, {vr(XD+4*j+i)}, {vr(CC+j)}")
        a(f"""s_lshl_b32 {sr(T)}, s2, 6
        s_and_b32 {sr(T)}, {sr(T)}, 0xff
        v_mov_b32 {vr(t0)}, {sr(T)}
        v_add_u32 {vr(VS)}, {L_QX}, {vr(V_DMA)}
        v_add_u32 {vr(VS+1)}, {L_QR}, {vr(L8)}""")
        self.treduce(CC)
        a(f"ds_write_b32 {vr(MXA)}, {vr(CC)}")
        a(self.xa_srd())
        a("s_waitcnt vmcnt(0) lgkmcnt(0)\ns_barrier")
        self.stamp("bar3")
        a(f"buffer_load_dword {vr(t1)}, {vr(t0)}, {sr(S_DB,4)}, 0 offen sc1")
        MS = 88
        qrd = [f"ds_read_b128 {vr(MS+4*qb,4)}, {vr(MXR)} offset:{256*qb}" for qb in range(4)]
        qrd += [f"ds_read_b64 {ar(A_Q+18*qb+16,2)}, {vr(VS+1)} offset:{512*qb}" for qb in range(4)]
        for qb in range(4):
            qrd += [f"ds_read_b128 {ar(A_Q+18*qb+4*s,4)}, {vr(VS)} offset:{4096*qb + 1024*s}" for s in range(4)]
        self.gemm(self.tr_reads(TRU), XA, ACC, None, late=qrd[:9])
        self.stamp("up")
        a(f"""s_cmp_lg_u32 {sr(S_W)}, 0
        s_cbranch_scc1 L_bar4
        s_sub_u32 {sr(T+1)}, 63, {sr(S_H)}
        s_mov_b32 {sr(T+2)}, 0
        s_branch L_pollc""")
        a.label("L_poll")
        a(f"buffer_load_dword {vr(t1)}, {vr(t0)}, {sr(S_DB,4)}, 0 offen sc1")
        a.label("L_pollc")
        a(f"""s_add_u32 {sr(T+2)}, {sr(T+2)}, 1
        s_waitcnt vmcnt(0)
        v_readfirstlane_b32 {sr(T+3)}, {vr(t1)}
        s_cmp_ge_u32 {sr(T+3)}, {sr(T+1)}
        s_cbranch_scc1 L_bar4
        s_cmp_lt_u32 {sr(T+2)}, 0x40000
        s_cbranch_scc1 L_poll""")
        a.label("L_bar4")
        a("s_waitcnt lgkmcnt(0)\ns_barrier")
        self.stamp("bar4")
        p = lambda r: vr(r, 2)
        c1 = -2.0 * math.sqrt(2.0 / math.pi) * LOG2E
        c2 = c1 * 0.044715
        tg = self.tile_groups(0) + self.tile_groups(1)
        if o.get("latedma"): tg_late, tg = tg, [""] * 18
        for x in tg[:5]: a(x)
        if o.get("dma1"): self.stamp("d5")
        a(f"v_mov_b32 {vr(CC)}, {f32(c1)}\nv_mov_b32 {vr(CC+2)}, {f32(c2)}\nv_mov_b32 {vr(CC+4)}, 1.0")
        a.bg, a.every, a.cnt = [x for x in tg[5:9] if x] + [qrd[i] + "\n" + qrd[i + 1] for i in range(9, 23, 2)] + [qrd[23]], 4, 0
        for i in range(18): a(f"v_pk_mul_f32 {p(G_+2*i)}, {p(ACC+2*i)}, {p(ACC+2*i)}")
        for i in range(18): a(f"v_pk_fma_f32 {p(G_+2*i)}, {p(G_+2*i)}, {p(CC+2)}, {p(CC)} op_sel_hi:[1,0,0]")
        for i in range(18): a(f"v_pk_mul_f32 {p(G_+2*i)}, {p(G_+2*i)}, {p(ACC+2*i)}")
        a.flush()
        self.stamp("ge1")
        t1g = tg[9:]
        for i in range(36):
            a(f"v_exp_f32 {vr(G_+i)}, {vr(G_+i)}")
            if i % 4 == 3 and t1g: a(t1g.pop(0))
        self.stamp("ge2")
        if o.get("latedma"):
            for x in tg_late: a(x)
        for i in range(18): a(f"v_pk_add_f32 {p(G_+2*i)}, {p(G_+2*i)}, {p(CC+4)} op_sel_hi:[1,0]")
        for i in range(36): a(f"v_rcp_f32 {vr(G_+i)}, {vr(G_+i)}")
        for i in range(18): a(f"v_pk_mul_f32 {p(ACC+2*i)}, {p(G_+2*i)}, {p(ACC+2*i)}")
        UG = 164
        a(f"""s_mul_i32 {sr(T)}, {sr(WV+1)}, {BLK}
        s_cmp_eq_u32 {sr(S_H)}, 1
        s_cbranch_scc1 L_ln2
        s_add_u32 {sr(T)}, {sr(T)}, {WS_U}""")
        for i in range(18): a(f"v_cvt_pk_bf16_f32 {vr(UG+i)}, {vr(ACC+2*i)}, {vr(ACC+2*i+1)}")
        a("s_branch L_ug")
        a.label("L_ln2")
        a(f"s_add_u32 {sr(T)}, {sr(T)}, {WS_G}")
        self.ln_f32(ACC, UG, TM)
        a.label("L_ug")
        self.stamp("ge3")
        a(f"s_cmp_eq_u32 {sr(WV)}, 1\ns_cselect_b32 {sr(T)}, {sr(T)}, 0x40000000\ns_add_u32 {sr(T+1)}, {sr(T)}, 4096\ns_waitcnt vmcnt(9) lgkmcnt(0)")
        for x in self.k_reads(0): a(x)
        self.store_block(UG, V_DMA, L8, S_WS, T, T + 1, "sc1")
        for qb in range(4):
            m = MS + 4 * qb
            a(f"v_add_f32 {vr(m)}, {vr(m)}, {vr(m+1)}\nv_add_f32 {vr(m+2)}, {vr(m+2)}, {vr(m+3)}")
        for qb in range(4): a(f"v_add_f32 {vr(self.MK+qb)}, {vr(MS+4*qb)}, {vr(MS+4*qb+2)}")
        for qb in range(4): a(f"v_sub_f32 {vr(self.MK+qb)}, 0, {vr(self.MK+qb)}")
        self.stamp("ug")

    def tile_groups(self, slot):
        out = []
        for j in range(9):
            g = ""
            if j % 4 == 0: g = f"s_add_u32 m0, {sr(S_LB)}, {slot*SLOT + 4096*(j//4)}\ns_nop 0\n"
            g += f"buffer_load_dwordx4 {vr(V_DMA + j//4)}, {sr(S_XA,4)}, {sr(S_TOFF)} offen offset:{1024*(j%4)} lds"
            if j == 8: g += f"\ns_add_u32 {sr(S_TOFF)}, {sr(S_TOFF)}, {4*TILE}"
            out.append(g)
        return out

    def first_tiles(self):
        pass

    def wfuse(self):
        a = self.a
        BF, ACC, AF, TM, AD = 88, 108, 144, 208, 240
        LA, LB_, LM = 0, 44032, 88064
        T = S_T
        a.label("L_wfuse")
        a(f"s_load_dwordx2 s[4:5], s[0:1], 32\ns_load_dwordx2 s[6:7], s[0:1], 56\ns_waitcnt lgkmcnt(0)")
        self.srd(S_WS, 62, 63, WS_END)
        self.srd(S_DB, 60, 61, 256)
        self.srd(S_X, 72, 73, 82944)
        self.srd(S_W2, 70, 71, 41472)
        a(f"""s_cmp_eq_u32 s2, 252
        s_cselect_b32 {sr(S_W1)}, s4, s6
        s_cselect_b32 {sr(S_W1+1)}, s5, s7
        s_mov_b32 {sr(S_W1+2)}, 41472
        s_mov_b32 {sr(S_W1+3)}, 0x20000
        s_cselect_b32 {sr(T+4)}, 0, 41472""")
        self.dma_rows([(S_W1, "0", LA), (S_W2, "0", LB_)], 19, 288, TM + 4, TM + 5, 11, 3, "L_wf1")
        a(f"s_lshl_b32 {sr(T)}, {sr(S_W)}, 10\ns_add_u32 {sr(T+2)}, {sr(T)}, {sr(T+4)}")
        for k in range(11):
            if k == 10: a(f"s_cmp_ge_u32 {sr(S_W)}, 1\ns_cbranch_scc1 L_wf2")
            a(f"s_add_u32 m0, {sr(T)}, {LM + 4096*k}\ns_add_u32 {sr(T+1)}, {sr(T+2)}, {4096*k}")
            a(f"buffer_load_dwordx4 {vr(V_DMA)}, {sr(S_X,4)}, {sr(T+1)} offen lds")
        a.label("L_wf2")
        self.srd(S_DW, 66, 67, 864)
        a(f"""v_lshrrev_b32 {vr(TM)}, 4, v0
        v_mul_u32_u24 {vr(TM)}, 288, {vr(TM)}
        v_bfe_u32 {vr(TM+1)}, v0, 2, 2
        v_lshl_add_u32 {vr(TM)}, {vr(TM+1)}, 6, {vr(TM)}
        v_and_b32 {vr(TM+1)}, 3, v0
        v_lshl_add_u32 {vr(TM)}, {vr(TM+1)}, 3, {vr(TM)}
        buffer_load_dwordx2 v[16:17], {vr(TM)}, {sr(S_DW,4)}, 0 offen
        buffer_load_dwordx2 v[18:19], {vr(TM)}, {sr(S_DW,4)}, 0 offen offset:32
        s_mov_b32 {sr(T+1)}, {WS_DWF}
        s_waitcnt vmcnt(0)
        buffer_store_dwordx4 v[16:19], {vr(V_DMA)}, {sr(S_WS,4)}, {sr(T+1)} offen sc1""")
        self.tr_addr(AD, LM, False, TM + 8)
        self.row_addr(AD + 3, LA, TM + 8)
        a(f"v_add_u32 {vr(AD+5)}, {LB_}, {vr(AD+3)}")
        a(f"v_lshlrev_b32 {vr(AD+4)}, 3, v0")
        a(f"s_lshl_b32 {sr(T)}, {sr(S_W)}, 5")
        for k in range(3): a(f"v_add_u32 {vr(AD+k)}, {sr(T)}, {vr(AD+k)}")
        a(f"s_mov_b32 {sr(S_CNT)}, {sr(S_W)}")
        a("s_waitcnt vmcnt(0)\ns_barrier")
        a.label("L_wfl")
        for s in self.tr_reads(AD, vr)(0, BF): a(s)
        a("s_waitcnt lgkmcnt(0)")
        self.gemm(self.row_reads(AD + 3), BF, ACC, AF)
        for i in range(18): a(f"v_cvt_pk_bf16_f32 {vr(BF+i)}, {vr(ACC+2*i)}, {vr(ACC+2*i+1)}")
        a("s_cmp_eq_u32 s2, 252\ns_cbranch_scc0 L_wf3")
        self.gemm(self.row_reads(AD + 5), BF, ACC, AF)
        for i in range(18): a(f"v_cvt_pk_bf16_f32 {vr(BF+i)}, {vr(ACC+2*i)}, {vr(ACC+2*i+1)}")
        a.label("L_wf3")
        a(f"""s_mul_i32 {sr(T)}, {sr(S_CNT)}, {BLK}
        s_add_u32 {sr(T)}, {sr(T)}, {sr(T+4)}
        s_add_u32 {sr(T)}, {sr(T)}, {WS_WF}
        s_add_u32 {sr(T+1)}, {sr(T)}, 4096""")
        self.store_block(BF, V_DMA, AD + 4, S_WS, T, T + 1, "sc1")
        for k in range(3): a(f"v_add_u32 {vr(AD+k)}, 128, {vr(AD+k)}")
        a(f"s_add_u32 {sr(S_CNT)}, {sr(S_CNT)}, 4\ns_cmp_lt_u32 {sr(S_CNT)}, 9\ns_cbranch_scc1 L_wfl")
        a(f"""s_waitcnt vmcnt(0)
        s_barrier
        s_cmp_lg_u32 {sr(S_W)}, 0
        s_cbranch_scc1 L_end
        s_mov_b64 exec, 1
        v_mov_b32 {vr(TM)}, 1
        v_mov_b32 {vr(TM+1)}, {DB_CW}
        buffer_atomic_add {vr(TM)}, {vr(TM+1)}, {sr(S_DB,4)}, 0 offen sc1
        v_mov_b32 {vr(TM+1)}, {DB_CW + 128}
        buffer_atomic_add {vr(TM)}, {vr(TM+1)}, {sr(S_DB,4)}, 0 offen sc1
        s_endpgm""")

    def dump_stamps(self):
        a = self.a
        if self.o.get("echo"):
            if self.o["echo"][0] == "skew":
                a(f"v_mov_b32 v16, 4\nbuffer_load_dword v17, v16, {sr(S_DB,4)}, 0 offen sc1\ns_waitcnt vmcnt(0)\nv_readfirstlane_b32 s98, v17\ns_not_b32 s98, s98")
                x, y = 98, S_ST + 2 * self.stnames.index(self.o["echo"][1])
            else:
                x, y = [S_ST + 2 * self.stnames.index(n) for n in self.o["echo"]]
            a(f"""s_cmp_eq_u32 {sr(S_VAL)}, 0
            s_cbranch_scc1 L_end
            s_memrealtime s[4:5]
            s_waitcnt lgkmcnt(0)
            s_sub_u32 s6, {sr(y)}, {sr(x)}
            s_add_u32 s6, s6, s4""")
            a.label("L_echo")
            a("s_memrealtime s[4:5]\ns_waitcnt lgkmcnt(0)\ns_sub_u32 s7, s6, s4\ns_cmp_gt_i32 s7, 0\ns_cbranch_scc1 L_echo")
            return
        if self.o.get("dbgst"):
            a("s_waitcnt vmcnt(0)")
            self.stamp("done")
            a("s_waitcnt lgkmcnt(0)\ns_mov_b64 exec, 1")
            slots = [1, 2, 3, 4, 5, 6, 7, 9, 11, 12, 13, 14, 15]
            a(f"s_not_b32 {sr(S_T)}, {sr(S_ST)}\nv_mov_b32 v16, {sr(S_T)}\nv_mov_b32 v17, 4\nbuffer_atomic_umax v16, v17, {sr(S_DB,4)}, 0 offen sc1")
            for i in range(min(self.nst, 12)):
                a(f"v_mov_b32 v{18+2*i}, {sr(S_ST+2*i)}\nv_mov_b32 v{19+2*i}, {4*slots[i+1]}\nbuffer_atomic_umax v{18+2*i}, v{19+2*i}, {sr(S_DB,4)}, 0 offen sc1")
            return
        if not self.o.get("stamps"): return
        T = S_T
        a(f"""s_waitcnt lgkmcnt(0)
        s_lshl_b32 {sr(T)}, s2, 2
        s_add_u32 {sr(T)}, {sr(T)}, {sr(S_W)}
        s_lshl_b32 {sr(T)}, {sr(T)}, 7
        s_add_u32 {sr(T)}, {sr(T)}, {WS_DBG}
        v_mov_b32 v1, 0""")
        for i in range(26): a(f"v_mov_b32 {vr(16+i)}, {sr(S_ST+i)}")
        for i in range(7): a(f"buffer_store_dwordx4 {vr(16+4*i,4)}, v1, {sr(S_WS,4)}, {sr(T)} offen offset:{16*i}")

    def build(self):
        a = self.a
        self.stnames = []
        a.raw(f"; @launch grid=({NWG},1,1) block=(256,1,1) lds={LDS_TOTAL}")
        a.raw('.amdgcn_target "amdgcn-amd-amdhsa--gfx950"')
        a.raw(".text")
        a.raw(f".globl {NAME}")
        self.entry()
        self.phase_a()
        self.rest()
        a.label("L_fin")
        self.dump_stamps()
        a.label("L_end")
        a("s_endpgm")
        self.rare()
        self.fallback()
        self.wfuse()
        a.raw('.section .rodata,"a"')
        a.raw(".p2align 6")
        a.raw(kernel_desc(NAME, 512, 102, 256))
        return a.text()

    def S(self, buf, qb, i=0): return V_S + buf * 32 + qb * 8 + i
    def P(self, buf, qb, i=0): return V_P + buf * 16 + qb * 4 + i

    def k_reads(self, slot):
        ka, so = (V_KA, slot * SLOT) if slot < 2 else (V_HI, (slot - 2) * SLOT)
        out = [f"ds_read_b128 {vr(V_K+8*s+4*kb,4)}, {vr(ka)} offset:{so + 2048*s + 256*kb}" for s in range(4) for kb in range(2)]
        out += [f"ds_read_b64 {vr(V_K+32+2*kb,2)}, {vr(ka+1)} offset:{so + 8192 + 512*kb}" for kb in range(2)]
        return out

    def v_reads(self, slot):
        ka, so = (V_KA, slot * SLOT) if slot < 2 else (V_HI, (slot - 2) * SLOT)
        out = []
        for T in range(9):
            for u in range(2):
                if T < 8: out.append(f"ds_read_b64_tr_b16 {vr(V_V+4*T+2*u,2)}, {vr(ka+2+(T&1))} offset:{so + 2048*(T>>1) + 256*u}")
                else: out.append(f"ds_read_b64_tr_b16 {vr(V_V+4*T+2*u,2)}, {vr(ka+4)} offset:{so + 8192 + 512*u}")
        return out

    def qk_mfmas(self, buf, czero=False):
        out = []
        for s in range(5):
            for kb in range(2):
                for qb in range(4):
                    d = vr(self.S(buf, qb, 4 * kb), 4)
                    c = ("0" if czero else vr(V_CI + 4 * qb, 4)) if s == 0 else d
                    if s < 4: out.append(f"v_mfma_f32_16x16x32_bf16 {d}, {vr(V_K+8*s+4*kb,4)}, {ar(A_Q+18*qb+4*s,4)}, {c}")
                    else: out.append(f"v_mfma_f32_16x16x16_bf16 {d}, {vr(V_K+32+2*kb,2)}, {ar(A_Q+18*qb+16,2)}, {c}")
        return out

    def pv_mfmas(self, buf, czero=False):
        out = []
        for T in range(9):
            for qb in range(4):
                o = ar(A_O + 36 * qb + 4 * T, 4)
                out.append(f"v_mfma_f32_16x16x32_bf16 {o}, {vr(V_V+4*T,4)}, {vr(self.P(buf,qb),4)}, {'0' if czero else o}")
        return out

    def plan(self):
        o = self.o
        n = 76
        fixed = [None] * n
        for i, g in enumerate(range(1, 36, 2)): fixed[g] = ("V", i)
        for i, g in enumerate([41, 44, 47, 50, 53, 56, 59, 62, 65, 68]): fixed[g] = ("K", i)
        for i, g in enumerate([42, 46, 49, 52, 55, 58, 61, 64, 67]): fixed[g] = ("D", i)
        exps = [(qb, j) for qb in range(4) for j in range(8)]
        start = 40
        order = [(start + k) % n for k in range(n)]
        free_idx = [k for k, g in enumerate(order) if fixed[g] is None]
        nsm = len(free_idx) - 32
        cand = free_idx[6:-2]
        sm_set = set(free_idx[-2:]) | {cand[int((i + 0.5) * len(cand) / (nsm - 2))] for i in range(nsm - 2)}
        nds = sum(1 for f in fixed if f is not None and f[0] != "D")
        over = 48 - nds - 2 * nsm
        ocand = [k for k, g in enumerate(order) if k >= 20 and (fixed[g] is None or fixed[g][0] != "D")]
        o_set = {ocand[int((i + 0.5) * len(ocand) / over)] for i in range(over)}
        gaps = [[] for _ in range(n)]
        small, pend, ei = [], [], 0
        for k, g in enumerate(order):
            new = (start + k) < n
            small.extend(pend); pend = []
            small.sort(key=lambda t: 0 if t[0] == "c" else 1)
            f = fixed[g]
            want = 0
            if f is not None:
                gaps[g].append((f[0], f[1], None))
                if f[0] == "D": continue
                want = 1
            elif k in sm_set: want = 2
            else:
                qb, j = exps[ei]; ei += 1
                gaps[g].append(("E", ("e", qb, j), new))
                if j & 1: pend.append(("c", qb, j // 2))
                pend.append(("a", qb, j))
            if k in o_set: want += 1
            if k == n - 1: want = 99
            for _ in range(want):
                if small: gaps[g].append(("E", small.pop(0), new))
        assert not small and not pend and ei == 32
        self.gaps = gaps

    def etext(self, buf, it):
        kind, qb, j = it
        s = self.S(buf, qb)
        if kind == "e": return f"v_exp_f32 {vr(s+j)}, {vr(s+j)}"
        if kind == "a": return f"v_add_f32 {vr(V_L+qb)}, {vr(V_L+qb)}, {vr(s+j)}"
        return f"v_cvt_pk_bf16_f32 {vr(self.P(buf, qb, j))}, {vr(s+2*j)}, {vr(s+2*j+1)}"

    def period(self, p, qk=True, pv=True, e_old=True, e_new=True, kread=True, vread=True, dma=True, extra={}, dsub=None, ksub=None, vm=9):
        a = self.a
        bn, bo = (p + 1) & 1, p & 1
        mf = self.qk_mfmas(bn) + self.pv_mfmas(bo, czero=(p == 0))
        kr, vrd = self.k_reads((p + 2) % RING), self.v_reads(p % RING)
        slot = p % RING
        n = 76
        sc = [[] for _ in range(n)]
        dgs = [g for g in range(n) if any(e[0] == "D" for e in self.gaps[g])]
        if dma:
            for j, g in enumerate(dgs):
                if j % 4 == 0: sc[g - 1].append(f"s_add_u32 m0, {sr(S_LB)}, {slot*SLOT + 4096*(j//4)}")
            sc[dgs[-1] + 1].append(f"s_add_u32 {sr(S_TOFF)}, {sr(S_TOFF)}, {4*TILE}")
        w = []
        if kread: w.append(f"vmcnt({vm})")
        if pv: w.append("lgkmcnt(0)")
        if w: sc[39].append("s_waitcnt " + " ".join(w))
        if kread: sc[75].append("s_waitcnt lgkmcnt(0)")
        for half in range(2):
            rng = range(0, 40) if half == 0 else range(40, 76)
            on = qk if half == 0 else pv
            if not on:
                ds, mem, val, post = [], [], [], []
                for g in rng:
                    for s_ in sc[g]:
                        (post if s_.startswith("s_waitcnt") else mem).append(s_)
                    if g in extra: mem.append(extra[g])
                    for kind, d, new in self.gaps[g]:
                        if kind == "V" and vread: ds.append(vrd[d])
                        elif kind == "K" and kread: ds.append(kr[d])
                        elif kind == "D" and dma: mem.append(f"buffer_load_dwordx4 {vr(V_DMA + d//4)}, {sr(S_XA,4)}, {sr(S_TOFF)} offen offset:{1024*(d%4)} lds")
                        elif kind == "E" and ((new and e_new) or (not new and e_old)): val.append((d, self.etext(bn if new else bo, d)))
                if half == 1: a("s_nop 3")
                seq, pend = [], list(val)
                while pend:
                    k = 0
                    if seq and seq[-1][0][0] == "e":
                        le = seq[-1][0]
                        dep = lambda it: it[0][1] == le[1] and ((it[0][0] == "a" and it[0][2] == le[2]) or (it[0][0] == "c" and it[0][2] == le[2] // 2))
                        have = {x[0] for x in seq}
                        ok = lambda it: it[0][0] == "e" or (("e", it[0][1], it[0][2]) in have if it[0][0] == "a" else (("e", it[0][1], 2*it[0][2]+1) in have)) or not any(x[0][0] == "e" and x[0][1] == it[0][1] and (x[0][2] == it[0][2] if it[0][0] == "a" else x[0][2] // 2 == it[0][2]) for x in pend)
                        while k < len(pend) and (dep(pend[k]) or not ok(pend[k])): k += 1
                        if k == len(pend): seq.append((("n", 0, 0), "s_nop 0")); k = 0
                    seq.append(pend.pop(k))
                step = max(1, len(seq) // (len(mem) + len(ds) + 1))
                allm = ds + mem
                for x in allm[:6]: a(x)
                allm = allm[6:]
                for i_, (d, t_) in enumerate(seq):
                    a(t_)
                    if allm and i_ % step == step - 1:
                        x = allm.pop(0); a(x)
                        if x.startswith("s_add_u32 m0"): a("s_nop 0")
                for x in allm:
                    a(x)
                    if x.startswith("s_add_u32 m0"): a("s_nop 0")
                for x in post: a(x)
                if half == 0: a("s_nop 1")
                continue
            for g in rng:
                a(mf[g])
                for s_ in sc[g]: a(s_)
                if g in extra: a(extra[g])
                for kind, d, new in self.gaps[g]:
                    if kind == "V":
                        if vread: a(vrd[d])
                    elif kind == "K":
                        if kread: a(kr[d])
                        elif ksub: a(ksub.pop(0))
                    elif kind == "D":
                        if dma: a(f"buffer_load_dwordx4 {vr(V_DMA + d//4)}, {sr(S_XA,4)}, {sr(S_TOFF)} offen offset:{1024*(d%4)} lds")
                        elif dsub: a(dsub.pop(0))
                    elif (new and e_new) or (not new and e_old):
                        a(self.etext(bn if new else bo, d))

    MK, VO, GA, DWA, VPL = 232, 236, 238, 244, 248
    NB, PT, E_U, E_G, E_U2, E_G2, E_DW, E_COL = 56, 57, 58, 59, 60, 61, 62, 63
    U, GM, G0, GP, DW = 128, 138, 148, 16, 26
    WD = [("a", 216), ("a", 234), ("v", 208)]
    WO = [("a", 0), ("a", 18), ("a", 36)]

    def epi_setup(self):
        T = S_T
        NB, PT, VO, GA, DWA = self.NB, self.PT, self.VO, self.GA, self.DWA
        r, g4, x, y, big = 208, 209, 210, 211, 212
        L = [f"s_lshr_b32 {sr(NB)}, {sr(S_W)}, 1\nv_and_b32 {vr(r)}, 15, v0\nv_lshrrev_b32 {vr(g4)}, 4, v0",
             f"s_and_b32 {sr(PT)}, {sr(S_W)}, 1\nv_mul_u32_u24 {vr(x)}, 288, {vr(r)}\nv_lshlrev_b32 {vr(DWA)}, 3, {vr(g4)}",
             f"s_lshl_b32 {sr(T)}, {sr(S_TOWN)}, 1\nv_add_u32 {vr(x)}, {vr(x)}, {vr(DWA)}\nv_mov_b32 {vr(big)}, 0x40000000",
             f"s_add_u32 {sr(T)}, {sr(T)}, {sr(NB)}\ns_lshl_b32 {sr(T)}, {sr(T)}, 4\ns_mul_i32 {sr(T+1)}, {sr(S_TOWN)}, {TILE}",
             f"s_mul_i32 {sr(T+2)}, {sr(PT)}, {BLK}\nv_add_u32 {vr(r)}, {sr(T)}, {vr(r)}\nv_add_u32 {vr(x)}, {sr(T+1)}, {vr(x)}",
             f"s_sub_u32 {sr(T+3)}, {BLK}, {sr(T+2)}\nv_add_u32 {vr(VO)}, {sr(T+2)}, {vr(x)}",
             f"s_mul_i32 {sr(T)}, {sr(S_B)}, 4000\nv_add_u32 {vr(VO+1)}, {sr(T+3)}, {vr(x)}",
             f"s_add_u32 {sr(T+1)}, {sr(T)}, 3999\ns_mov_b32 {sr(T+2)}, {BLK}\ns_lshl_b32 {sr(T+3)}, {sr(PT)}, 11",
             f"s_add_u32 {sr(self.E_U)}, {sr(T+3)}, {WS_U}\ns_add_u32 {sr(self.E_G)}, {sr(T+3)}, {WS_G}\ns_mov_b32 {sr(self.E_U2)}, {WS_U + 4096}",
             f"s_mov_b32 {sr(self.E_G2)}, {WS_G + 4096}\ns_lshl_b32 {sr(self.E_DW)}, {sr(PT)}, 7\ns_lshl_b32 {sr(self.E_COL)}, {sr(S_W)}, 6",
             f"s_add_u32 {sr(self.E_DW)}, {sr(self.E_DW)}, {WS_DWF}\nv_lshlrev_b32 {vr(DWA+1)}, 4, {vr(g4)}\nv_lshlrev_b32 {vr(DWA+2)}, 3, v0",
             f"v_add_u32 {vr(DWA+2)}, 4096, {vr(DWA+2)}"]
        for k, dr in enumerate((0, -1, 1)):
            m = GA + 2 * k
            src = r
            if dr:
                L.append(f"v_add_u32 {vr(m)}, {dr}, {vr(r)}\nv_cmp_eq_u32 vcc, {sr(T if dr < 0 else T+1)}, {vr(r)}")
                src = m
            L.append(f"v_lshrrev_b32 {vr(x)}, 4, {vr(src)}\nv_and_b32 {vr(y)}, 15, {vr(src)}")
            L.append(f"v_mul_lo_u32 {vr(x)}, {vr(x)}, {sr(T+2)}\nv_lshl_add_u32 {vr(y)}, {vr(g4)}, 4, {vr(y)}")
            L.append(f"v_lshl_add_u32 {vr(m)}, {vr(y)}, 4, {vr(x)}\nv_lshl_add_u32 {vr(m+1)}, {vr(y)}, 3, {vr(x)}")
            if dr: L.append(f"v_cndmask_b32 {vr(m)}, {vr(m)}, {vr(big)}, vcc\nv_cndmask_b32 {vr(m+1)}, {vr(m+1)}, {vr(big)}, vcc")
        return L

    def dwreg(self, k): return [26, 36, 96][k]

    def conv_loads(self):
        GA = self.GA
        L = []
        for dst, m, so in ((self.GM, GA + 2, 1), (self.G0, GA, 1), (self.GP, GA + 4, 1), (self.U, GA, 0)):
            for k in range(2): L.append(f"buffer_load_dwordx4 {vr(dst+4*k,4)}, {vr(m)}, {sr(S_WS,4)}, {sr(self.E_U+so)} offen offset:{1024*k} sc1")
            L.append(f"buffer_load_dwordx2 {vr(dst+8,2)}, {vr(m+1)}, {sr(S_WS,4)}, {sr(self.E_U2+so)} offen sc1")
        for k in range(3):
            for i in range(2): L.append(f"buffer_load_dwordx4 {vr(self.dwreg(k)+4*i,4)}, {vr(self.DWA+1)}, {sr(S_WS,4)}, {sr(self.E_DW)} offen offset:{256*k + 64*i} sc1")
            L.append(f"buffer_load_dwordx2 {vr(self.dwreg(k)+8,2)}, {vr(self.DWA)}, {sr(S_DW,4)}, 0 offen offset:{288*k + 256}")
        return L

    def w_loads(self, mat, regs, sb):
        L = []
        for tt in range(3):
            rf = ar if regs[tt][0] == "a" else vr
            for s in range(4): L.append(f"buffer_load_dwordx4 {rf(regs[tt][1]+4*s,4)}, {vr(V_DMA)}, {sr(S_WS,4)}, {sr(sb+tt)} offen offset:{1024*s} sc1")
            L.append(f"buffer_load_dwordx2 {rf(regs[tt][1]+16,2)}, {vr(self.DWA+2)}, {sr(S_WS,4)}, {sr(sb+tt)} offen sc1")
        return L

    def xa_srd(self):
        T = S_T
        return f"""s_mul_i32 {sr(T)}, {sr(S_B)}, {NT}
        s_mul_i32 {sr(T+1)}, {sr(S_H)}, 63
        s_add_u32 {sr(T+1)}, {sr(T+1)}, {sr(T)}
        s_mul_i32 {sr(T+1)}, {sr(T+1)}, {TILE}
        s_add_u32 {sr(S_XA)}, {sr(S_WS)}, {sr(T+1)}
        s_addc_u32 {sr(S_XA+1)}, {sr(S_WS+1)}, 0
        s_sub_u32 {sr(T+2)}, 63, {sr(S_H)}
        s_mul_i32 {sr(S_XA+2)}, {sr(T+2)}, {TILE}
        s_mov_b32 {sr(S_XA+3)}, 0x20000"""

    def rest(self):
        a, o = self.a, self.o
        T = S_T
        VPL = self.VPL
        self.plan()
        a.label("L_go")
        for qb in range(4):
            for i in range(4): a(f"v_mov_b32 {vr(V_CI+4*qb+i)}, {vr(self.MK+qb)}")
        for k in range(5): a(f"v_add_u32 {vr(V_HI+k)}, {2*SLOT}, {vr(V_KA+k)}")
        for i in range(4): a(f"v_mov_b32 {vr(V_L+i)}, 0")
        a(f"""s_mov_b32 {sr(S_CNT)}, 0
        s_lshl_b32 {sr(T)}, {sr(S_B)}, 7
        s_add_u32 {sr(T)}, {sr(T)}, {DB_CB}
        v_mov_b32 {vr(VPL)}, {sr(T)}
        s_waitcnt lgkmcnt(0)
        s_barrier""")
        self.stamp("bar5")
        t2 = self.tile_groups(2)
        ex = {1 + 4 * i: t2[i] for i in range(9)}
        es = self.epi_setup()
        for g in range(40):
            if g not in ex and es: ex[g] = es.pop(0)
        assert not es
        self.period(-1, pv=False, e_old=False, vread=False, extra=ex, vm=14)
        self.stamp("loop")
        if o.get("echo") and o["echo"][0] == "skew":
            a(f"s_waitcnt lgkmcnt(0)\ns_mov_b64 exec, 1\ns_not_b32 s98, {sr(S_ST)}\nv_mov_b32 v250, s98\nv_mov_b32 v251, 4\ns_cmp_lg_u32 {sr(S_W)}, 0\ns_cbranch_scc1 L_sk\nbuffer_atomic_umax v250, v251, {sr(S_DB,4)}, 0 offen sc1\ns_waitcnt vmcnt(0)\nL_sk:\ns_mov_b64 exec, -1\ns_nop 3")
        ex = {43: "s_barrier",
              45: (f"s_or_b32 {sr(T)}, {sr(S_W)}, {sr(S_REDO)}\ns_cmp_lg_u32 {sr(T)}, 0\ns_cbranch_scc1 L_nocb\ns_mov_b64 exec, 1\nv_mov_b32 {vr(VPL+1)}, 1\n"
                   f"buffer_atomic_add {vr(VPL+1)}, {vr(VPL)}, {sr(S_DB,4)}, 0 offen sc1\ns_mov_b64 exec, -1\ns_nop 3\nL_nocb:")}
        self.period(0, extra=ex)
        a.raw(".p2align 6")
        a.label("L_loop")
        for p in range(1, 5):
            ex = {}
            if p == 3: ex = {70: f"buffer_load_dwordx4 v[252:255], {vr(VPL)}, {sr(S_DB,4)}, 0 offen sc1"}
            if p == 4: ex = {72: f"s_add_u32 {sr(S_CNT)}, {sr(S_CNT)}, 1", 73: f"s_cmp_lt_u32 {sr(S_CNT)}, 3"}
            self.period(p, extra=ex)
        a("s_cbranch_scc1 L_loop")
        self.stamp("p13")
        SW = 66
        a(f"s_waitcnt vmcnt(9)\ns_mov_b32 {sr(T+2)}, 0")
        a.label("L_late")
        a(f"""v_readfirstlane_b32 {sr(T)}, v252
        v_readfirstlane_b32 {sr(T+1)}, v254
        s_add_u32 {sr(SW+3)}, {sr(S_LB)}, {WS_WF}
        s_add_u32 {sr(SW+4)}, {sr(S_LB)}, {WS_WF + BLK}
        s_mov_b32 {sr(SW+5)}, {WS_WF + 8*BLK}
        s_add_u32 {sr(SW)}, {sr(S_LB)}, {WS_WF + 9*BLK}
        s_add_u32 {sr(SW+1)}, {sr(S_LB)}, {WS_WF + 10*BLK}
        s_mov_b32 {sr(SW+2)}, {WS_WF + 17*BLK}
        s_cmp_ge_u32 {sr(T)}, 126
        s_cselect_b32 {sr(T+3)}, {sr(T+1)}, 0
        s_cmp_ge_u32 {sr(T+3)}, 2
        s_cbranch_scc0 L_late1""")
        a.label("L_late0")
        wd = self.w_loads(1, self.WD, SW)
        pf = (f"s_lshr_b32 {sr(T)}, s2, 3\ns_lshl_b32 {sr(T)}, {sr(T)}, 2\ns_add_u32 {sr(T)}, {sr(T)}, {sr(S_W)}\ns_and_b32 {sr(T)}, {sr(T)}, 63\ns_min_u32 {sr(T)}, {sr(T)}, 40\n"
              f"s_lshl_b32 {sr(T)}, {sr(T)}, 10\ns_add_u32 {sr(T)}, {sr(T)}, {WS_WF}\nbuffer_load_dwordx4 v[252:255], {vr(V_DMA)}, {sr(S_WS,4)}, {sr(T)} offen")
        self.period(13, dma=False, dsub=wd[:8] + [pf], vm=9)
        a(f"s_cmp_eq_u32 {sr(S_DUM)}, 4\ns_cbranch_scc1 L_dummy")
        a.label("L_dummyb")
        cl = self.conv_loads()
        self.period(14, dma=False, kread=False, dsub=cl[:9], ksub=cl[9:18])
        self.stamp("tail")
        self.tail(cl[18:], wd[8:])
        self.stamp("end")
        self.epilogue(SW)

    def rare(self):
        a = self.a
        T = S_T
        a.label("L_dummy")
        for i in range(16): a(f"v_mov_b32 {vr(V_CI+i)}, 0xff800000")
        a("s_nop 1\ns_branch L_dummyb")
        a.label("L_late1")
        a(f"""buffer_load_dwordx4 v[252:255], {vr(self.VPL)}, {sr(S_DB,4)}, 0 offen sc1
        s_add_u32 {sr(T+2)}, {sr(T+2)}, 1
        s_waitcnt vmcnt(0)
        s_cmp_lt_u32 {sr(T+2)}, 0x40000
        s_cbranch_scc1 L_late
        s_branch L_late0""")

    L_X2 = L_SP
    L_L = L_SP + 9216
    units = [(0, 0), (0, 1), (1, 0), (1, 1), (2, 0)]
    XR = 158
    def mreg(self, k, i, h):
        n = (k * 10 + i) * 2 + h
        return 48 + n if n < 48 else (106 + n - 48 if n < 54 else 226 + n - 54)

    def tail(self, cl, wd):
        a = self.a
        T = S_T
        VST = 247
        ex = {i: x for i, x in enumerate(cl)}
        ex[5] = f"v_add_u32 {vr(VST)}, {sr(S_LB)}, {vr(V_DMA)}"
        n0 = len(a.lines)
        self.period(15, qk=False, e_new=False, kread=False, dma=False, extra=ex)
        k = next(i for i in range(n0, len(a.lines)) if "v_mfma" in a.lines[i])
        del a.lines[k:]
        wr = [f"ds_write_b128 {vr(VST)}, {ar(A_O+36*qb+4*i,4)} offset:{SLOT*qb + 1024*i}" for qb in range(2) for i in range(9)]
        va = []
        for i in range(10):
            for k_ in range(3):
                va.append(f"v_and_b32 {vr(self.mreg(k_,i,0))}, 0xffff, {vr(self.dwreg(k_)+i)}")
                va.append(f"v_and_b32 {vr(self.mreg(k_,i,1))}, 0xffff0000, {vr(self.dwreg(k_)+i)}")
        n = 0
        for qb in range(4):
            for Tt in range(9):
                o_ = ar(A_O + 36 * qb + 4 * Tt, 4)
                a(f"v_mfma_f32_16x16x32_bf16 {o_}, {vr(V_V+4*Tt,4)}, {vr(self.P(1,qb),4)}, {o_}")
                if n == 3: a("s_waitcnt vmcnt(0)")
                if n > 3 and n % 2 == 1 and wd:
                    a(wd.pop(0)); n += 1; continue
                k_ = 2
                if n >= 12 and n % 2 == 0 and (len(wr) > 9 or n >= 22): a(wr.pop(0)); k_ = 1
                if n >= 3:
                    for _ in range(k_):
                        if va: a(va.pop(0))
                n += 1
        for x in va: a(x)
        self.wr_left = wr

    def epilogue(self, SW):
        a, o = self.a, self.o
        T = S_T
        p = lambda r: vr(r, 2)
        L_L, L_FL, L_X2 = self.L_L, self.L_L + 1024, self.L_X2
        NB, PT, MK, VO, units = self.NB, self.PT, self.MK, self.VO, self.units
        U, GM, G0, GP = self.U, self.GM, self.G0, self.GP
        VST, VL8 = 247, self.DWA + 2
        t = 164
        C, UU, PKD = 180, 112, 26
        wr = self.wr_left
        n0 = len(a.lines)
        self.greduce([V_L + i for i in range(4)], t)
        a(f"""v_add_f32 {vr(t+1)}, {vr(V_L)}, {vr(V_L+1)}
        v_add_f32 {vr(t+2)}, {vr(V_L+2)}, {vr(V_L+3)}
        v_add_f32 {vr(t+1)}, {vr(t+1)}, {vr(t+2)}
        v_mov_b32 {vr(t+2)}, {f32(2.0**100)}
        v_cmp_nle_f32 vcc, {vr(t+1)}, {vr(t+2)}
        v_and_b32 {vr(t+3)}, 15, v0
        v_lshlrev_b32 {vr(t+3)}, 4, {vr(t+3)}
        s_lshl_b32 {sr(T)}, {sr(S_W)}, 2
        s_add_u32 {sr(T)}, {sr(T)}, {L_L}
        v_add_u32 {vr(t+4)}, {sr(T)}, {vr(t+3)}
        s_cmp_lg_u64 vcc, 0
        s_cselect_b32 {sr(T+1)}, 1, 0
        v_mov_b32 {vr(t+5)}, {sr(T+1)}
        v_mov_b32 {vr(t+6)}, {sr(T)}""")
        for k_, src in enumerate((GM, G0, GP)):
            for i in range(10):
                for h in range(2):
                    a(f"v_dot2_f32_bf16 {vr(C+2*i+h)}, {vr(src+i)}, {vr(self.mreg(k_,i,h))}, {'0' if k_ == 0 else vr(C+2*i+h)}")
        UUr = 48
        for i in range(10):
            a(f"v_lshlrev_b32 {vr(UUr+2*i)}, 16, {vr(U+i)}\nv_and_b32 {vr(UUr+1+2*i)}, 0xffff0000, {vr(U+i)}")
        for i in range(10): a(f"v_pk_mul_f32 {p(C+2*i)}, {p(C+2*i)}, {p(UUr+2*i)}")
        for i in range(10): a(f"v_cvt_pk_bf16_f32 {vr(PKD+i)}, {vr(C+2*i)}, {vr(C+2*i+1)}")
        a(f"""s_mul_i32 {sr(T)}, {sr(NB)}, {SLOT}
        s_lshl_b32 {sr(T+1)}, {sr(PT)}, 12
        s_add_u32 {sr(T)}, {sr(T)}, {sr(T+1)}
        v_add_u32 {vr(t+7)}, {sr(T)}, {vr(V_DMA)}
        s_lshl_b32 {sr(T+1)}, {sr(NB)}, 8
        s_add_u32 {sr(T+1)}, {sr(T+1)}, {L_L}
        v_add_u32 {vr(t+9)}, {sr(T+1)}, {vr(t+3)}
        v_mov_b32 {vr(t+10)}, {L_FL}
        s_lshl_b32 {sr(T)}, {sr(NB)}, 12
        s_lshl_b32 {sr(T+1)}, {sr(PT)}, 11
        s_add_u32 {sr(T)}, {sr(T)}, {sr(T+1)}
        v_add_u32 {vr(t+11)}, {sr(T)}, {vr(V_DMA)}
        s_lshl_b32 {sr(T)}, {sr(NB)}, 9
        s_add_u32 {sr(T)}, {sr(T)}, 4096
        v_add_u32 {vr(t+12)}, {sr(T)}, {vr(VL8)}
        v_add_u32 {vr(t+13)}, {L_X2}, {vr(t+11)}
        v_add_u32 {vr(t+14)}, {L_X2}, {vr(t+12)}""")
        body = a.lines[n0:]; del a.lines[n0:]
        for i, l in enumerate(body):
            if i % 12 == 0 and wr: a(wr.pop(0))
            a.lines.append(l)
        for x in wr: a(x)
        VROW16, VRD, VX1, VX1R = t + 3, t + 7, t + 11, t + 12
        for qb in range(4): a(f"ds_write_b32 {vr(t+4)}, {vr(V_L+qb)} offset:{256*qb}")
        a(f"""ds_write_b32 {vr(t+6)}, {vr(t+5)} offset:1024
        ds_write_b128 {vr(t+13)}, {vr(PKD,4)}
        ds_write_b128 {vr(t+13)}, {vr(PKD+4,4)} offset:1024
        s_cmp_eq_u32 {sr(PT)}, 0
        s_cbranch_scc1 L_e3
        ds_write_b64 {vr(t+14)}, {vr(PKD+8,2)}""")
        a.label("L_e3")
        a("s_waitcnt lgkmcnt(0)\ns_barrier")
        self.stamp("B1")
        R = 48
        F = 180
        a(f"ds_read_b128 {vr(F,4)}, {vr(t+10)}\nds_read_b128 {vr(F+4,4)}, {vr(t+9)}")

        def reduce4():
            for w in range(4):
                for i in range(5): a(f"ds_read_b128 {vr(R+20*w+4*i,4)}, {vr(VRD)} offset:{TILE*w + 1024*i}")
                if w == 1: yield
            yield
            for w in range(1, 4):
                a(f"s_waitcnt lgkmcnt({5*(3-w)})")
                for i in range(10): a(f"v_pk_add_f32 {p(R+2*i)}, {p(R+2*i)}, {p(R+20*w+2*i)}")
            for i in range(10): a(f"v_cvt_pk_bf16_f32 {vr(R+20+i)}, {vr(R+2*i)}, {vr(R+2*i+1)}")
        g = reduce4(); next(g)
        a(f"""s_xor_b32 {sr(T)}, s2, 1
        s_mul_i32 {sr(T)}, {sr(T)}, {IB}
        s_mul_i32 {sr(T+1)}, {sr(NB)}, 5120
        s_add_u32 {sr(T)}, {sr(T)}, {sr(T+1)}
        s_add_u32 {sr(T)}, {sr(T)}, {WS_IB}
        s_lshl_b32 {sr(T+1)}, {sr(PT)}, 11
        s_add_u32 {sr(T+1)}, {sr(T+1)}, {sr(T)}
        s_add_u32 {sr(T)}, {sr(T)}, 4096
        s_cmp_eq_u32 {sr(PT)}, 0
        s_cselect_b32 {sr(T)}, 0x40000000, {sr(T)}""")
        next(g)
        a(f"""s_waitcnt lgkmcnt(15)
        v_or_b32 {vr(F)}, {vr(F)}, {vr(F+1)}
        v_or3_b32 {vr(F)}, {vr(F)}, {vr(F+2)}, {vr(F+3)}
        v_add_f32 {vr(F+4)}, {vr(F+4)}, {vr(F+5)}
        v_add_f32 {vr(F+6)}, {vr(F+6)}, {vr(F+7)}
        v_readfirstlane_b32 {sr(T+2)}, {vr(F)}
        v_add_f32 {vr(F+4)}, {vr(F+4)}, {vr(F+6)}
        s_andn2_b32 {sr(T+2)}, {sr(T+2)}, {sr(S_REDO)}
        s_cbranch_scc1 L_fallback
        s_cmp_eq_u32 {sr(NB)}, 1
        s_cselect_b64 vcc, -1, 0""")
        for _ in g: pass
        a(f"""v_mov_b32 {vr(R+30)}, {vr(F+4)}
        v_cndmask_b32 {vr(R+31)}, {vr(MK)}, {vr(MK+1)}, vcc
        buffer_store_dwordx4 {vr(R+20,4)}, {vr(V_DMA)}, {sr(S_WS,4)}, {sr(T+1)} offen sc1
        buffer_store_dwordx4 {vr(R+24,4)}, {vr(V_DMA)}, {sr(S_WS,4)}, {sr(T+1)} offen offset:1024 sc1
        buffer_store_dwordx4 {vr(R+28,4)}, {vr(V_DMA)}, {sr(S_WS,4)}, {sr(T)} offen sc1""")
        self.stamp("sent")
        a(f"s_cmp_eq_u32 {sr(S_VAL)}, 0\ns_cbranch_scc1 L_fin")
        ad = 188
        a(f"""s_lshl_b32 {sr(T)}, {sr(PT)}, 12
        v_add_u32 {vr(ad)}, {sr(T)}, {vr(V_DMA)}
        v_xor_b32 {vr(ad+1)}, 4096, {vr(ad)}
        s_lshl_b32 {sr(T)}, {sr(PT)}, 9
        s_add_u32 {sr(T)}, {sr(T)}, 4096
        v_add_u32 {vr(ad+2)}, {sr(T)}, {vr(VL8)}
        v_xor_b32 {vr(ad+3)}, 512, {vr(ad+2)}""")
        for k_ in range(4): a(f"v_add_u32 {vr(ad+4+k_)}, {L_X2}, {vr(ad+k_)}")
        a(f"v_add_u32 {vr(VST)}, {2*SLOT}, {vr(VST)}")

        def bfrags(dst, b):
            for j in range(2):
                for s in range(4): a(f"ds_read_b128 {vr(dst[j]+4*s,4)}, {vr(b+j)} offset:{1024*s}")
                a(f"ds_read_b64 {vr(dst[j]+16,2)}, {vr(b+2+j)}")

        def fgemm(acc, W, Bf, fill=()):
            fill = list(fill)
            for s in range(5):
                for u, (tt, j) in enumerate(units):
                    d = vr(acc + 4 * u, 4)
                    rf = ar if W[tt][0] == "a" else vr
                    if s < 4: a(f"v_mfma_f32_16x16x32_bf16 {d}, {rf(W[tt][1]+4*s,4)}, {vr(Bf[j]+4*s,4)}, {'0' if s == 0 else d}")
                    else:
                        if u == 0: a("s_nop 1")
                        a(f"v_mfma_f32_16x16x16_bf16 {d}, {rf(W[tt][1]+16,2)}, {vr(Bf[j]+16,2)}, {d}")
                    if fill: a(fill.pop(0))
            for x in fill: a(x)
        BU = [16, 128]
        AB, AO, AP = 84, 104, 208
        XR, LO, IN = 36, 196, 128
        bfrags(BU, ad + 4)
        wr = [f"ds_write_b128 {vr(VST)}, {ar(A_O+36*(2+qb)+4*i,4)} offset:{SLOT*qb + 1024*i}" for qb in range(2) for i in range(9)]
        for x in wr[:4]: a(x)
        wl = self.w_loads(0, self.WO, SW + 3)
        for u, (tt, j) in enumerate(units):
            so = (sr(self.E_COL), 32 * tt) if tt < 2 else ("0", 256)
            wl.append(f"buffer_load_dwordx2 {vr(XR+2*u,2)}, {vr(VO+j)}, {sr(S_X,4)}, {so[0]} offen offset:{so[1]}")
        for x in wl[:6]: a(x)
        a("s_waitcnt vmcnt(9) lgkmcnt(4)")
        fl = []
        for k_ in range(14): fl += [wr[4 + k_], wl[6 + k_]]
        fgemm(AB, self.WD, BU, fill=fl)
        a(f"""v_add_u32 {vr(VRD)}, {2*SLOT}, {vr(VRD)}
        s_lshl_b32 {sr(T)}, {sr(PT)}, 8
        s_add_u32 {sr(T)}, {sr(T)}, {L_L + 512}
        v_add_u32 {vr(ad+4)}, {sr(T)}, {vr(VROW16)}
        v_xor_b32 {vr(ad+5)}, 256, {vr(ad+4)}
        s_mul_i32 {sr(T+12)}, s2, {IB}
        s_add_u32 {sr(T+12)}, {sr(T+12)}, {WS_IB}
        s_mul_i32 {sr(T)}, {sr(PT)}, 5120
        s_add_u32 {sr(T+13)}, {sr(T+12)}, 5120
        s_sub_u32 {sr(T+13)}, {sr(T+13)}, {sr(T)}
        s_add_u32 {sr(T+12)}, {sr(T+12)}, {sr(T)}
        s_waitcnt lgkmcnt(0)
        s_barrier""")
        self.stamp("B2")
        R2 = R
        PR = [48, 104, 128, 148]
        for w in range(4):
            for i in range(5): a(f"ds_read_b128 {vr(PR[w]+4*i,4)}, {vr(VRD)} offset:{TILE*w + 1024*i}")
        for w in range(1, 4):
            a(f"s_waitcnt lgkmcnt({5*(3-w)})")
            for i in range(10): a(f"v_pk_add_f32 {p(48+2*i)}, {p(48+2*i)}, {p(PR[w]+2*i)}")
        for i in range(10): a(f"v_cvt_pk_bf16_f32 {vr(68+i)}, {vr(48+2*i)}, {vr(48+2*i+1)}")
        a(f"""ds_write_b128 {vr(VX1)}, v[68:71]
        ds_write_b128 {vr(VX1)}, v[72:75] offset:1024
        s_cmp_eq_u32 {sr(PT)}, 0
        s_cbranch_scc1 L_e2
        ds_write_b64 {vr(VX1R)}, v[76:77]""")
        a.label("L_e2")
        for j in range(2): a(f"ds_read_b128 {vr(LO+4*j,4)}, {vr(ad+4+j)}")

        def inbox():
            for j in range(2):
                for s in range(4): a(f"buffer_load_dwordx4 {vr(IN+20*j+4*s,4)}, {vr(V_DMA)}, {sr(S_WS,4)}, {sr(T+12+j)} offen offset:{1024*s} sc1")
                a(f"buffer_load_dwordx4 {vr(IN+20*j+16,4)}, {vr(V_DMA+1)}, {sr(S_WS,4)}, {sr(T+12+j)} offen sc1")
        a("s_waitcnt lgkmcnt(0)\ns_barrier")
        self.stamp("B3")
        BO = [16, 48]
        bfrags(BO, ad)
        inbox()
        for j in range(2):
            a(f"v_add_f32 {vr(LO+4*j)}, {vr(LO+4*j)}, {vr(LO+4*j+1)}\nv_add_f32 {vr(LO+4*j+2)}, {vr(LO+4*j+2)}, {vr(LO+4*j+3)}\nv_add_f32 {vr(LO+4*j)}, {vr(LO+4*j)}, {vr(LO+4*j+2)}")
        a(f"""s_cmp_eq_u32 {sr(PT)}, 1
        s_cselect_b64 vcc, -1, 0
        s_mov_b32 {sr(T+2)}, 0
        v_cndmask_b32 {vr(LO+1)}, {vr(MK+2)}, {vr(MK+3)}, vcc
        v_cndmask_b32 {vr(LO+5)}, {vr(MK+3)}, {vr(MK+2)}, vcc
        s_waitcnt vmcnt(10) lgkmcnt(0)""")
        xa_ = []
        for u in range(5):
            for h in range(2):
                xa_.append(f"v_lshlrev_b32 {vr(168+4*u+2*h)}, 16, {vr(XR+2*u+h)}\nv_and_b32 {vr(169+4*u+2*h)}, 0xffff0000, {vr(XR+2*u+h)}")
        for u in range(5):
            for h in range(2):
                r = 4 * u + 2 * h
                xa_.append(f"v_add_f32 {vr(AB+r)}, {vr(AB+r)}, {vr(168+r)}\nv_add_f32 {vr(AB+r+1)}, {vr(AB+r+1)}, {vr(169+r)}")
        fgemm(AO, self.WO, BO, fill=xa_)
        self.stamp("own")
        a("s_branch L_inc")
        a.label("L_in")
        inbox()
        a.label("L_inc")
        a(f"s_waitcnt vmcnt(0)\ns_add_u32 {sr(T+2)}, {sr(T+2)}, 1")
        chk = [f"v_max3_u32 v168, {vr(IN)}, {vr(IN+1)}, {vr(IN+2)}", f"v_max3_u32 v169, {vr(IN+3)}, {vr(IN+4)}, {vr(IN+5)}"]
        for k, x in enumerate(range(IN + 6, IN + 40, 2)): chk.append(f"v_max3_u32 v{168+(k&1)}, v{168+(k&1)}, {vr(x)}, {vr(x+1)}")
        chk += ["v_max_u32 v168, v168, v169", "v_cmp_eq_u32 vcc, -1, v168"]
        wt = []
        for j in range(2):
            lo, mo, lp, mp, w = LO + 4 * j, LO + 4 * j + 1, IN + 20 * j + 18, IN + 20 * j + 19, 172 + 4 * j
            wt.append([f"v_min_f32 {vr(w)}, {vr(mo)}, {vr(mp)}", f"v_sub_f32 {vr(w+1)}, {vr(w)}, {vr(mp)}", f"v_sub_f32 {vr(w)}, {vr(w)}, {vr(mo)}",
                       f"v_exp_f32 {vr(w+1)}, {vr(w+1)}", f"v_exp_f32 {vr(w)}, {vr(w)}", f"v_mul_f32 {vr(w+2)}, {vr(w+1)}, {vr(lp)}",
                       f"v_fmac_f32 {vr(w+2)}, {vr(w)}, {vr(lo)}", f"v_rcp_f32 {vr(w+2)}, {vr(w+2)}", f"v_mul_f32 {vr(w)}, {vr(w)}, {vr(w+2)}",
                       f"v_mul_f32 {vr(w+2)}, {vr(w+1)}, {vr(w+2)}"])
        wl_ = [x for pair in zip(*wt) for x in pair]
        fill = [c + "\n" + wl_[i] if i < len(wl_) else c for i, c in enumerate(chk)]
        fgemm(AP, self.WO, [IN, IN + 20], fill=fill)
        a(f"""s_cmp_eq_u64 vcc, 0
        s_cbranch_scc1 L_got
        s_cmp_lt_u32 {sr(T+2)}, 0x10000
        s_cbranch_scc1 L_in""")
        a.label("L_got")
        self.stamp("got")
        for u, (tt, j) in enumerate(units):
            for h in range(2):
                r = 4 * u + 2 * h
                a(f"v_pk_fma_f32 {p(AB+r)}, {p(AO+r)}, {p(172+4*j)}, {p(AB+r)} op_sel_hi:[1,0,1]")
        for u, (tt, j) in enumerate(units):
            for h in range(2):
                r = 4 * u + 2 * h
                a(f"v_pk_fma_f32 {p(AB+r)}, {p(AP+r)}, {p(174+4*j)}, {p(AB+r)} op_sel_hi:[1,0,1]")
            for h in range(2): a(f"v_cvt_pk_bf16_f32 {vr(16+2*u+h)}, {vr(AB+4*u+2*h)}, {vr(AB+4*u+2*h+1)}")
            so = (sr(self.E_COL), 32 * tt) if tt < 2 else ("0", 256)
            a(f"buffer_store_dwordx2 {vr(16+2*u,2)}, {vr(VO+j)}, {sr(S_OUT,4)}, {so[0]} offen offset:{so[1]}")
        self.stamp("fin")

    def fallback(self):
        a = self.a
        T = S_T
        MXR = 208
        a.label("L_fallback")
        a(f"""s_waitcnt vmcnt(0) lgkmcnt(0)
        s_barrier
        s_mov_b32 {sr(S_REDO)}, 1
        s_mov_b32 {sr(S_TOFF)}, {sr(S_LB)}
        s_cmp_eq_u32 {sr(S_DUM)}, 4
        s_cselect_b32 {sr(S_CNT)}, 15, 16""")
        for i in range(4): a(f"v_mov_b32 {vr(MXR+i)}, 0xff800000")
        a.label("L_fb1")
        for g in self.tile_groups(0): a(g)
        a("s_waitcnt vmcnt(0)")
        for x in self.k_reads(0): a(x)
        a("s_waitcnt lgkmcnt(0)")
        for m in self.qk_mfmas(0, czero=True): a(m)
        a("s_nop 7")
        for qb in range(4):
            for i in range(0, 8, 2): a(f"v_max3_f32 {vr(MXR+qb)}, {vr(MXR+qb)}, {vr(self.S(0,qb,i))}, {vr(self.S(0,qb,i+1))}")
        a(f"s_sub_u32 {sr(S_CNT)}, {sr(S_CNT)}, 1\ns_cmp_lg_u32 {sr(S_CNT)}, 0\ns_cbranch_scc1 L_fb1")
        self.greduce([MXR + i for i in range(4)], MXR + 4, "v_max_f32")
        a(f"""v_and_b32 {vr(MXR+4)}, 15, v0
        v_lshlrev_b32 {vr(MXR+4)}, 4, {vr(MXR+4)}
        v_add_u32 {vr(MXR+4)}, {L_SP}, {vr(MXR+4)}
        s_lshl_b32 {sr(T)}, {sr(S_W)}, 2
        v_add_u32 {vr(MXR+5)}, {sr(T)}, {vr(MXR+4)}""")
        for qb in range(4): a(f"ds_write_b32 {vr(MXR+5)}, {vr(MXR+qb)} offset:{256*qb}")
        a("s_waitcnt lgkmcnt(0)\ns_barrier")
        for qb in range(4): a(f"ds_read_b128 {vr(16+4*qb,4)}, {vr(MXR+4)} offset:{256*qb}")
        a(f"s_mov_b32 {sr(S_TOFF)}, {sr(S_LB)}")
        for g in self.tile_groups(0) + self.tile_groups(1): a(g)
        a("s_waitcnt lgkmcnt(0)")
        for qb in range(4):
            r = 16 + 4 * qb
            a(f"v_max_f32 {vr(r)}, {vr(r)}, {vr(r+1)}\nv_max3_f32 {vr(r)}, {vr(r)}, {vr(r+2)}, {vr(r+3)}")
            a(f"v_sub_f32 {vr(self.MK+qb)}, 0, {vr(r)}")
        a("s_waitcnt vmcnt(0)")
        for x in self.k_reads(0): a(x)
        a("s_branch L_go")


if __name__ == "__main__":
    opt = json.loads(sys.argv[2]) if len(sys.argv) > 2 else {}
    g = G(opt)
    txt = g.build()
    if opt.get("align", 1):
        from align import align
        txt, st = align(txt)
        print("align: promoted %d, padded %d, left %d" % st)
    txt = txt.replace("\n", "\n; stamps " + json.dumps(g.stnames) + "\n", 1)
    open(sys.argv[1], "w").write(txt)
```

```python
NT = 125
TILE = 9216
BLK = 4608
WS_XA = 32768
WS_U = WS_XA + 250 * TILE
WS_G = WS_U + 250 * TILE
WS_IB = WS_G + 250 * TILE
IB = 10240
WS_WF = WS_IB + 256 * IB
WS_DWF = WS_WF + 2 * 9 * BLK
WS_F = WS_DWF + 4096
WS_DBG = WS_F + 512 * 256
WS_DBG = (WS_DBG + 4095) // 4096 * 4096
WS_END = WS_DBG + (8 << 20)
DB_CA = lambda b, h: 64 * (2 * b + h)
DB_CB = 32
DB_CW = 40
```

```python
import sys, json, math
from common import Asm, vr, ar, sr, kernel_header, kernel_desc
from lay import *

NAME = "standalone__conformer_family_branchformer__speech_kernel"
NH = 2
NWG = 252 + NH
CHAINS = (3, 3)
RING = 4
LDS_RING = RING * TILE
LDS_TOTAL = 163840
SLOT = 4 * TILE
L_WU, L_WQ, L_WK = 0, 41472, 82944
L_XX, L_XR = 126976, 143360
L_QD = 18432
L_XS = L_XX + L_QD
L_MX = 81920
L_PC = LDS_TOTAL - 256
L_DUMP = 123904
L_SP = 147456

S_X, S_WS, S_XA, S_DB, S_W1, S_W2, S_OUT, S_DW = 8, 12, 16, 20, 24, 28, 32, 36
S_W, S_B, S_H, S_QB, S_TOFF, S_CNT, S_DUM, S_LB, S_TOWN, S_TSND, S_VAL, S_REDO = range(40, 52)
S_UG = 25
S_INC = 24
S_T = 52
S_ST = 76

V_KA, V_VA, V_VR, V_DMA, V_L, V_VB = 1, 3, 5, 6, 10, 14
V_S, V_CI, V_P, V_K, V_V = 16, 80, 96, 128, 164
V_HI = 200
V_X = 208
A_O, A_Q, A_F = 0, 144, 216

LOG2E = 1.4426950408889634
import struct
def f32(x): return "0x%08x" % struct.unpack("<I", struct.pack("<f", x))[0]


class BAsm(Asm):
    def __init__(self):
        super().__init__()
        self.bg, self.every, self.cnt, self.skip = [], 0, 0, 0

    def __call__(self, s):
        for l in s.split("\n"):
            l = l.strip()
            if not l: continue
            self.lines.append("    " + l)
            if self.bg and self.every and not l.startswith(("s_nop", "v_mov_b32", "v_exp", "v_rcp", "v_rsq", "v_sqrt", "s_add_u32 m0")):
                self.cnt += 1
                if self.cnt >= self.every:
                    self.cnt = 0
                    self.pop()

    def pop(self):
        for x in self.bg.pop(0).split("\n"): self.lines.append("    " + x)

    def flush(self):
        while self.bg: self.pop()
        self.every = 0


class G:
    def __init__(self, opt):
        self.o = opt
        self.a = BAsm()
        self.nst = 0
        self.fill = []

    def stamp(self, name):
        if self.o.get("stamps"):
            if name in self.o.get("skipst", []): return
            if "only" in self.o and name not in self.o["only"]: return
            if self.nst >= 11: return
            self.a(f"{'s_memtime' if self.o.get('cyc') else 's_memrealtime'} {sr(S_ST + 2*self.nst, 2)}")
            self.stnames.append(name)
            self.nst += 1

    def srd(self, dst, lo, hi, n):
        self.a(f"s_mov_b32 {sr(dst)}, {sr(lo)}\ns_mov_b32 {sr(dst+1)}, {sr(hi)}\ns_mov_b32 {sr(dst+2)}, {n}\ns_mov_b32 {sr(dst+3)}, 0x20000")

    def greduce(self, regs, tmp, op="v_add_f32"):
        a = self.a
        for sw in ("32", "16"):
            for i, r in enumerate(regs): a(f"v_mov_b32 {vr(tmp+i)}, {vr(r)}")
            if len(regs) < 3: a("s_nop 1" if len(regs) == 1 else "s_nop 0")
            for i, r in enumerate(regs): a(f"v_permlane{sw}_swap_b32 {vr(r)}, {vr(tmp+i)}")
            for i, r in enumerate(regs): a(f"{op} {vr(r)}, {vr(r)}, {vr(tmp+i)}")

    def treduce(self, r, op="v_add_f32"):
        a = self.a
        a(f"v_permlane32_swap_b32 {vr(r)}, {vr(r+2)}\nv_permlane32_swap_b32 {vr(r+1)}, {vr(r+3)}")
        a(f"{op} {vr(r)}, {vr(r)}, {vr(r+2)}\n{op} {vr(r+1)}, {vr(r+1)}, {vr(r+3)}\ns_nop 1")
        a(f"v_permlane16_swap_b32 {vr(r)}, {vr(r+1)}\n{op} {vr(r)}, {vr(r)}, {vr(r+1)}")

    def rbf(self, r):
        self.a(f"v_cvt_pk_bf16_f32 {vr(r)}, {vr(r)}, {vr(r)}\nv_lshlrev_b32 {vr(r)}, 16, {vr(r)}")

    def ln_tail(self, F, out, t, mimic):
        a = self.a
        p = lambda r: vr(r, 2)
        self.greduce([t, t + 1], t + 2)
        a(f"v_mul_f32 {vr(t+2)}, {f32(1.0/144)}, {vr(t)}")
        a(f"v_mul_f32 {vr(t+3)}, {vr(t+2)}, {vr(t+2)}")
        a(f"v_mov_b32 {vr(t+4)}, {f32(1.0/144)}")
        a(f"v_fma_f32 {vr(t)}, {vr(t+1)}, {vr(t+4)}, -{vr(t+3)}")
        a(f"v_max_f32 {vr(t)}, 0, {vr(t)}")
        if mimic:
            self.rbf(t)
            self.rbf(t + 2)
            a(f"v_add_f32 {vr(t)}, {f32(1e-5)}, {vr(t)}")
            self.rbf(t)
            a(f"v_sqrt_f32 {vr(t)}, {vr(t)}\ns_nop 0")
            self.rbf(t)
            a(f"v_rcp_f32 {vr(t)}, {vr(t)}\ns_nop 0")
        else:
            a(f"v_add_f32 {vr(t)}, {f32(1e-5)}, {vr(t)}")
            a(f"v_rsq_f32 {vr(t)}, {vr(t)}\ns_nop 0")
        a(f"v_mul_f32 {vr(t+2)}, -{vr(t+2)}, {vr(t)}")
        for i in range(18):
            a(f"v_pk_fma_f32 {p(F+2*i)}, {p(F+2*i)}, {p(t)}, {p(t+2)} op_sel_hi:[1,0,0]")
        for i in range(18):
            a(f"v_cvt_pk_bf16_f32 {vr(out+i)}, {vr(F+2*i)}, {vr(F+2*i+1)}")

    def ln_packed(self, X, F, out, t):
        a = self.a
        a(f"v_mov_b32 {vr(t+6)}, 0x3f803f80")
        for k in range(4): a(f"v_mov_b32 {vr(t+k)}, 0")
        for i in range(18):
            a(f"v_dot2_f32_bf16 {vr(t+2*(i&1))}, {vr(X+i)}, {vr(t+6)}, {vr(t+2*(i&1))}")
            a(f"v_dot2_f32_bf16 {vr(t+1+2*(i&1))}, {vr(X+i)}, {vr(X+i)}, {vr(t+1+2*(i&1))}")
        for i in range(2):
            a(f"v_lshlrev_b32 {vr(F+2*i)}, 16, {vr(X+i)}\nv_and_b32 {vr(F+2*i+1)}, 0xffff0000, {vr(X+i)}")
        a(f"v_pk_add_f32 {vr(t,2)}, {vr(t,2)}, {vr(t+2,2)}")
        un = []
        for i in range(2, 18):
            un.append(f"v_lshlrev_b32 {vr(F+2*i)}, 16, {vr(X+i)}\nv_and_b32 {vr(F+2*i+1)}, 0xffff0000, {vr(X+i)}")
        sv = (a.bg, a.every, a.cnt, a.skip)
        n0 = len(a.lines)
        a.bg, a.every = [], 0
        self.ln_tail(F, out, t, True)
        tail = a.lines[n0:]
        del a.lines[n0:]
        a.bg, a.every, a.cnt, a.skip = sv
        k = next(i for i, l in enumerate(tail) if "v_pk_fma" in l)
        for i, l in enumerate(tail[:k]):
            if "s_nop" in l and un: continue_nop = True
            a(l)
            if un and not l.strip().startswith("s_nop"): a(un.pop(0))
        while un: a(un.pop(0))
        for l in tail[k:]: a(l)

    def ln_f32(self, F, out, t):
        a = self.a
        p = lambda r: vr(r, 2)
        a(f"v_pk_add_f32 {p(t)}, {p(F)}, {p(F+2)}\nv_pk_add_f32 {p(t+2)}, {p(F+4)}, {p(F+6)}")
        a(f"v_pk_mul_f32 {p(t+4)}, {p(F)}, {p(F)}\nv_pk_mul_f32 {p(t+6)}, {p(F+2)}, {p(F+2)}")
        for i in range(2, 18):
            if i >= 4: a(f"v_pk_add_f32 {p(t+2*(i&1))}, {p(t+2*(i&1))}, {p(F+2*i)}")
            a(f"v_pk_fma_f32 {p(t+4+2*(i&1))}, {p(F+2*i)}, {p(F+2*i)}, {p(t+4+2*(i&1))}")
        a(f"v_pk_add_f32 {p(t)}, {p(t)}, {p(t+2)}\nv_pk_add_f32 {p(t+4)}, {p(t+4)}, {p(t+6)}")
        a(f"v_add_f32 {vr(t)}, {vr(t)}, {vr(t+1)}\nv_add_f32 {vr(t+1)}, {vr(t+4)}, {vr(t+5)}")
        self.ln_tail(F, out, t, False)

    def gemm_u(self, AF, rf, Bs, ACC, afr, bfr, post, vm_items=(), other=(), lead=7, vm0=0, vmsp=4):
        a = self.a
        units = [(0, j) for j in range(4)] + [(1, j) for j in range(4)] + [(2, 0)]
        seq, dl = [], {}
        bs = lambda j, o_, n: self.rg((Bs[j][0], Bs[j][1] + o_), n)
        rem = lambda u: (f"v_mfma_f32_16x16x16_bf16 {vr(ACC+4*u,4)}, {rf(AF+18*units[u][0]+16,2)}, {bs(units[u][1],16,2)}, {vr(ACC+4*u,4)}", u)
        A = [afr(t) for t in range(3)]
        Bf = [bfr(j) for j in range(4)]

        def use(t, j, s, k):
            for x in (A[t][2 * s:2 * s + 2] if s < 4 else A[t][8:]) + ([Bf[j][s]] if Bf[j] else []): dl.setdefault(x, k)
        for g in range(4):
            for s in range(4):
                for u in range(3 * g, 3 * g + 3) if g < 3 else []:
                    t, j = units[u]
                    d = vr(ACC + 4 * u, 4)
                    use(t, j, s, len(seq))
                    seq.append((f"v_mfma_f32_16x16x32_bf16 {d}, {rf(AF+18*t+4*s,4)}, {bs(j,4*s,4)}, {'0' if s == 0 else d}", None))
                if s == 0 and g > 0:
                    for u in range(3 * g - 3, 3 * g):
                        use(units[u][0], units[u][1], 4, len(seq)); seq.append(rem(u))
        last = seq[-3:]; seq = seq[:-3]
        ds = sorted(dl.items(), key=lambda e: e[1]) + [(x, 99) for x in other]
        vm_items = list(vm_items)
        lastvm = vm0 - vmsp
        order, ready, q, done = [], [], [], 0

        def issue():
            x, k_ = ds.pop(0); a(x); order.append(k_)

        def wait(k):
            nonlocal done
            idx = [i_ for i_, k_ in enumerate(order) if k_ <= k]
            if idx and max(idx) + 1 > done:
                a(f"s_waitcnt lgkmcnt({min(15, len(order) - 1 - max(idx))})"); done = max(idx) + 1
        while ds and ds[0][1] < 6: issue()
        for k, (m, fin) in enumerate(seq):
            assert not ds or ds[0][1] > k, (k, ds[0])
            wait(k)
            a(m)
            for u_, kk in list(ready):
                if k - kk >= 4: q += post(u_); ready.remove((u_, kk))
            if fin is not None: ready.append((fin, k))
            due = sum(1 for x, k_ in ds if k_ <= k + lead)
            if due == 0 and vm_items and k >= lastvm + vmsp:
                a(vm_items.pop(0)); lastvm = k; continue
            cap = 2
            for _ in range(min(due, 3)): issue(); cap -= 1
            if cap == 2:
                if q and q[0].startswith("ds_"): a(q.pop(0)); order.append(99); cap -= 1
                elif ds: issue(); cap -= 1
            while cap > 0 and q and not q[0].startswith("ds_"):
                a(q.pop(0)); cap -= 1
        assert not ready
        while ds: issue()
        wait(98)
        for x in vm_items: a(x)
        for x in q[:4]: a(x)
        a(f"s_nop {max(0, 4 - len(q[:4]))}")
        for m, _ in last: a(m)
        for x in q[4:]: a(x)
        a(f"s_nop {max(0, 6 - len(q[4:]))}")
        for u in range(6, 9):
            for x in post(u): a(x)

    def gemm(self, reads, B, ACC, AF, late=(), at={}, per=2):
        a = self.a
        buf = lambda T: 18 * (T % 6)
        ng = 3 * (4 * per + 1)

        def grp(g):
            r = [reads(T, buf(T)) for T in range(3 * g, 3 * g + 3)]
            return [r[t][per * s + u] for s in range(4) for t in range(3) for u in range(per)] + [r[t][4 * per] for t in range(3)]
        rem = lambda T: f"v_mfma_f32_16x16x16_bf16 {vr(ACC+4*T,4)}, {ar(buf(T)+16,2)}, {vr(B+16,2)}, {vr(ACC+4*T,4)}"
        pend = grp(0) + grp(1) + grp(2) + list(late)
        issued = k = 0

        def issue(n):
            nonlocal issued
            for _ in range(n):
                if issued < len(pend): a(pend[issued]); issued += 1

        def mf(x):
            nonlocal k
            a(x); issue(per if per == 2 else (2 if k % 4 == 0 else 1))
            if k in at: a(at[k])
            k += 1
        issue(self.o.get('look', 12) if per == 2 else self.o.get('look1', 8))
        for g in range(3):
            for s in range(4):
                need = ng * g + 3 * per * (s + 1)
                a(f"s_waitcnt lgkmcnt({min(15, issued - need)})")
                for T in range(3 * g, 3 * g + 3):
                    d = vr(ACC + 4 * T, 4)
                    mf(f"v_mfma_f32_16x16x32_bf16 {d}, {ar(buf(T)+4*s,4)}, {vr(B+4*s,4)}, {'0' if s == 0 else d}")
                if s == 0 and g > 0:
                    for T in range(3 * g - 3, 3 * g): mf(rem(T))
                if g == 1 and s == 0: assert issued <= 2 * ng + 6 * per, "group 2 overwrites group 0 too early"
        issue(99)
        a(f"s_waitcnt lgkmcnt({len(late)})\ns_nop 2")
        for T in range(6, 9): a(rem(T))
        a("s_nop 7")

    def tr_reads(self, ad, rf=ar):
        def f(T, dst):
            out = []
            for s in range(4):
                for u in range(2):
                    out.append(f"ds_read_b64_tr_b16 {rf(dst+4*s+2*u,2)}, {vr(ad+u)} offset:{9216*s + 32*T}")
            out.append(f"ds_read_b64_tr_b16 {rf(dst+16,2)}, {vr(ad+2)} offset:{36864 + 32*T}")
            return out
        return f

    def row_reads(self, ad, sw=None):
        def f(T, dst):
            r = ad if sw is None or T == 8 else sw[T & 1]
            out = []
            for s in range(4):
                for u in range(2):
                    out.append(f"ds_read_b64 {ar(dst+4*s+2*u,2)}, {vr(r)} offset:{4864*T + 64*s + 32*u}")
            out.append(f"ds_read_b64 {ar(dst+16,2)}, {vr(r)} offset:{4864*T + 256}")
            return out
        return f

    def dma_rows(self, jobs, cpr, rstride, vo, vc, n_first, first_waves, lab):
        a = self.a
        mul = {18: 3641, 19: 3450}[cpr]
        dr, dc = 256 // cpr, 256 % cpr
        a(f"s_lshl_b32 {sr(S_T)}, {sr(S_W)}, 6")
        a(f"v_add_u32 {vr(vc)}, {sr(S_T)}, v0")
        a(f"v_mul_u32_u24 {vr(vo)}, {mul}, {vr(vc)}")
        a(f"v_lshrrev_b32 {vr(vo)}, 16, {vr(vo)}")
        a(f"v_mul_u32_u24 {vr(vc+1)}, {cpr}, {vr(vo)}")
        a(f"v_sub_u32 {vr(vc)}, {vr(vc)}, {vr(vc+1)}")
        a(f"v_mul_u32_u24 {vr(vo)}, {rstride}, {vr(vo)}")
        a(f"v_lshl_add_u32 {vr(vo)}, {vr(vc)}, 4, {vr(vo)}")
        a(f"s_lshl_b32 {sr(S_T)}, {sr(S_W)}, 10")
        a(f"v_mov_b32 {vr(vc+1)}, {rstride - 16*cpr}")
        for k in range(n_first):
            if k == n_first - 1:
                a(f"s_cmp_ge_u32 {sr(S_W)}, {first_waves}\ns_cbranch_scc1 {lab}")
            for srd, so, lb in jobs:
                a(f"s_add_u32 m0, {sr(S_T)}, {lb + 4096*k}")
                a("s_nop 0")
                a(f"buffer_load_dwordx4 {vr(vo)}, {sr(srd,4)}, {so} offen lds")
            if k < n_first - 1:
                a(f"v_add_u32 {vr(vc)}, {dc}, {vr(vc)}")
                a(f"v_cmp_le_u32 vcc, {cpr}, {vr(vc)}")
                a(f"v_add_u32 {vr(vo)}, {dr*rstride + 16*dc}, {vr(vo)}")
                a(f"v_subrev_u32 {vr(vc+2)}, {cpr}, {vr(vc)}")
                a(f"v_cndmask_b32 {vr(vc)}, {vr(vc)}, {vr(vc+2)}, vcc")
                a(f"v_cndmask_b32 {vr(vc+2)}, 0, {vr(vc+1)}, vcc")
                a(f"v_add_u32 {vr(vo)}, {vr(vo)}, {vr(vc+2)}")
        a.label(lab)

    def voff_table(self, dst, cpr, rstride, vc, step=256):
        a = self.a
        mul = {18: 29128, 19: 27595}[cpr]
        n = len(dst)
        a(f"s_mov_b32 {sr(S_T)}, {rstride - 16*cpr}")
        a(f"v_mul_u32_u24 {vr(dst[0])}, {mul}, {vr(vc)}")
        for k in range(1, n): a(f"v_add_u32 {vr(dst[k])}, {(step*k % cpr)*mul}, {vr(dst[0])}")
        for k in range(n): a(f"v_lshrrev_b32 {vr(dst[k])}, 19, {vr(dst[k])}")
        for k in range(n): a(f"v_mad_i32_i24 {vr(dst[k])}, {vr(dst[k])}, {sr(S_T)}, {vr(vc+1)}")

    def dma_lin(self, srd, soff, lb, v16, lab):
        a = self.a
        a(f"s_lshl_b32 {sr(S_T)}, {sr(S_W)}, 10")
        for k in range(11):
            if k == 10:
                a(f"s_cmp_ge_u32 {sr(S_W)}, 1\ns_cbranch_scc1 {lab}")
            a(f"s_add_u32 m0, {sr(S_T)}, {lb + 4096*k}")
            a(f"s_add_u32 {sr(S_T+1)}, {sr(S_T)}, {soff + 4096*k}")
            a(f"buffer_load_dwordx4 {vr(v16)}, {sr(srd,4)}, {sr(S_T+1)} offen lds")
        a.label(lab)

    def tr_addr(self, ad, base, swapped, t):
        a = self.a
        a(f"v_lshrrev_b32 {vr(t)}, 2, v0")
        a(f"v_mul_u32_u24 {vr(t)}, 288, {vr(t)}")
        a(f"v_and_b32 {vr(t+1)}, 3, v0")
        a(f"v_lshl_add_u32 {vr(t)}, {vr(t+1)}, 3, {vr(t)}")
        a(f"v_add_u32 {vr(ad+2)}, {base}, {vr(t)}")
        if swapped:
            a(f"v_bfe_u32 {vr(t)}, v0, 4, 1")
            a(f"v_mul_u32_u24 {vr(t)}, {16*288}, {vr(t)}")
            a(f"v_add_u32 {vr(ad)}, {vr(ad+2)}, {vr(t)}")
            a(f"v_sub_u32 {vr(ad+1)}, {vr(ad+2)}, {vr(t)}")
            a(f"v_add_u32 {vr(ad+1)}, {16*288}, {vr(ad+1)}")
        else:
            a(f"v_mov_b32 {vr(ad)}, {vr(ad+2)}")
            a(f"v_add_u32 {vr(ad+1)}, {16*288}, {vr(ad+2)}")

    def row_addr(self, ad, base, t):
        a = self.a
        a(f"v_and_b32 {vr(t)}, 15, v0")
        a(f"v_mul_u32_u24 {vr(t)}, 304, {vr(t)}")
        a(f"v_lshrrev_b32 {vr(t+1)}, 4, v0")
        a(f"v_lshl_add_u32 {vr(t)}, {vr(t+1)}, 3, {vr(t)}")
        a(f"v_add_u32 {vr(ad)}, {base}, {vr(t)}")

    def store_block(self, src, v16, v8, srd, soff, soff2, flags=""):
        a = self.a
        for s in range(4):
            a(f"buffer_store_dwordx4 {vr(src+4*s,4)}, {vr(v16)}, {sr(srd,4)}, {sr(soff)} offen offset:{1024*s} {flags}")
        a(f"buffer_store_dwordx2 {vr(src+16,2)}, {vr(v8)}, {sr(srd,4)}, {sr(soff2)} offen {flags}")

    def entry(self):
        a = self.a
        kernel_header(a, NAME)
        a(f"s_load_dwordx16 s[56:71], s[0:1], 0")
        a(f"s_load_dwordx8 s[72:79], s[0:1], 64")
        a(f"s_getpc_b64 {sr(S_W1,2)}")
        a.label("L_pf")
        a(f"s_cmp_lt_u32 s2, {NH}\ns_cbranch_scc1 L_wfuse")
        a(f"""s_mov_b32 {sr(S_W1+2)}, L_dummy-L_pf
        s_mov_b32 {sr(S_W1+3)}, 0x20000
        v_lshlrev_b32 v1, 4, v0
        s_bfe_u32 {sr(S_T)}, s2, 0x30003
        s_lshl_b32 {sr(S_T)}, {sr(S_T)}, 12
        buffer_load_dwordx4 v[252:255], v1, {sr(S_W1,4)}, 0 offen
        buffer_load_dwordx4 v[252:255], v1, {sr(S_W1,4)}, {sr(S_T)} offen
        s_cmp_ge_u32 s2, {NWG}
        s_cbranch_scc1 L_end""")
        if self.o.get("stamps"):
            a("s_memrealtime s[100:101]" if not self.o.get("cyc") else "s_memtime s[100:101]")
        self.mp = 2
        a(f"""v_lshrrev_b32 v1, 6, v0
        s_sub_u32 s2, s2, {NH}
        v_readfirstlane_b32 {sr(S_W)}, v1
        s_and_b32 {sr(S_H)}, s2, 1
        s_bfe_u32 {sr(S_B)}, s2, 0x10001
        s_lshr_b32 {sr(S_QB)}, s2, 2
        v_and_b32 v0, 63, v0
        v_lshlrev_b32 {vr(V_DMA)}, 4, v0""")

    def vm_since(self, mark):
        return sum(1 for l in self.a.lines[mark:] if l.strip().startswith("buffer_"))

    def phase_a(self):
        a, o = self.a, self.o
        XR, XF, XA, ACC, G_, PK = 16, 34, 146, 110, 16, 164
        B4, XD = 16, 88
        VS, VSW, VR4, MXA, MXR, L8, TRU, TRQ, TRQ8, RK, TM = 200, 204, 208, 212, 213, 214, 215, 218, 221, 224, 228
        VK, VU = list(range(182, 193)), list(range(193, 200)) + list(range(104, 108))
        AQ1 = 200
        t0, t1, t2 = 250, 251, 227
        T = S_T
        WV, W10, UOFF, M1, PUB, M3 = 72, 70, 71, 69, 68, 65
        a(f"""s_lshl_b32 {sr(T)}, {sr(S_QB)}, 1
        s_add_u32 {sr(S_TOWN)}, {sr(T)}, {sr(S_H)}
        s_xor_b32 {sr(S_TSND)}, {sr(S_TOWN)}, 1
        s_cmp_lt_u32 {sr(S_TOWN)}, {NT}
        s_cselect_b32 {sr(S_VAL)}, 1, 0
        s_cmp_lt_u32 {sr(S_W)}, 2
        s_cselect_b32 {sr(T+3)}, {sr(S_TSND)}, {sr(S_TOWN)}
        s_mul_i32 {sr(T)}, {sr(S_B)}, {NT}
        s_add_u32 {sr(S_TOWN)}, {sr(S_TOWN)}, {sr(T)}
        s_add_u32 {sr(S_TSND)}, {sr(S_TSND)}, {sr(T)}
        s_add_u32 {sr(T+1)}, {sr(T+3)}, {sr(T)}
        s_lshl_b32 {sr(T+1)}, {sr(T+1)}, 1
        s_and_b32 {sr(T+2)}, {sr(S_W)}, 1
        s_add_u32 {sr(T+2)}, {sr(T+1)}, {sr(T+2)}
        s_mul_i32 {sr(T+1)}, {sr(T+2)}, {16*288}
        s_mul_i32 {sr(S_LB)}, {sr(S_W)}, {BLK}
        s_add_u32 {sr(S_LB)}, {sr(S_LB)}, {L_XS}
        s_mov_b32 m0, {sr(S_LB)}
        s_mov_b32 {sr(S_X+2)}, 2304000
        s_mov_b32 {sr(S_X+3)}, 0x20000
        s_add_u32 {sr(S_CNT)}, {sr(T+1)}, 4096
        s_waitcnt lgkmcnt(0)
        s_mov_b32 {sr(S_X)}, s56
        s_mov_b32 {sr(S_X+1)}, s57""")
        for k in range(4): a(f"buffer_load_dwordx4 {vr(V_DMA)}, {sr(S_X,4)}, {sr(T+1)} offen offset:{1024*k} lds")
        a(f"s_add_u32 m0, {sr(S_LB)}, 4096\ns_mov_b32 exec_hi, 0\nbuffer_load_dwordx4 {vr(V_DMA)}, {sr(S_X,4)}, {sr(S_CNT)} offen lds\ns_mov_b32 exec_hi, -1")
        mx = len(a.lines)
        SQ, SK, SU = S_W2, S_W1, S_XA
        self.srd(SU, 66, 67, 82944)
        self.srd(SQ, 58, 59, 41472)
        self.srd(SK, 60, 61, 41472)
        a(f"s_lshr_b32 {sr(T)}, s2, 3\ns_lshl_b32 {sr(T)}, {sr(T)}, 12\ns_lshl_b32 {sr(W10)}, {sr(S_W)}, 10\ns_add_u32 {sr(T)}, {sr(T)}, {sr(W10)}")
        a(f"buffer_load_dwordx4 v[252:255], {vr(V_DMA)}, {sr(SU,4)}, {sr(T)} offen")
        for srd_, rot in ((SQ, 82), (SK, 41)):
            a(f"s_add_u32 {sr(T+1)}, {sr(T)}, {(128 - rot) * 1024}\ns_and_b32 {sr(T+1)}, {sr(T+1)}, {127 * 1024}")
            a(f"buffer_load_dwordx4 v[252:255], {vr(V_DMA)}, {sr(srd_,4)}, {sr(T+1)} offen")
        self.srd(S_OUT, 74, 75, 2304000)
        self.srd(S_DB, 76, 77, 256)
        self.srd(S_WS, 78, 79, WS_END)
        if o.get("stamps"): a(f"s_mov_b64 {sr(S_ST,2)}, s[100:101]"); self.stnames.append("start"); self.nst = 1
        self.stamp("xiss")
        a(f"""s_cmp_lt_u32 {sr(T+3)}, {NT}
        s_cselect_b32 {sr(WV)}, 1, 0
        s_mov_b32 {sr(WV+1)}, {sr(T+2)}
        s_mul_i32 {sr(UOFF)}, {sr(S_H)}, 288
        s_cmp_eq_u32 {sr(S_W)}, 0
        s_cselect_b32 {sr(M1)}, 0, {L_DUMP}
        s_cmp_lt_u32 {sr(S_W)}, 3
        s_cselect_b32 {sr(M3)}, {sr(W10)}, {L_DUMP}""")
        half = lambda g_: "s_mov_b32 exec_hi, 0\n" + g_ + "\ns_mov_b32 exec_hi, -1"
        gu = [f"s_add_u32 m0, {sr(W10 if k < 10 else M1)}, {L_WU + 4096*k}\ns_add_u32 {sr(S_CNT)}, {sr(UOFF)}, {4096*k + 288*(256*k//18)}\nbuffer_load_dwordx4 {vr(VU[k])}, {sr(SU,4)}, {sr(S_CNT)} offen lds" for k in range(11)]
        gu[10] = half(gu[10])
        gq = [f"s_add_u32 m0, {sr(W10 if k < 10 else M1)}, {L_WQ + 4096*k}\ns_add_u32 {sr(S_CNT)}, {sr(W10)}, {4096*k}\nbuffer_load_dwordx4 {vr(V_DMA)}, {sr(SQ,4)}, {sr(S_CNT)} offen lds" for k in range(11)]
        gq[10] = half(gq[10])
        gk = [f"s_add_u32 m0, {sr(W10 if k < 10 else M3)}, {L_WK + 4096*k}\ns_mov_b32 {sr(S_CNT)}, {4096*k - 16*(256*k//19)}\nbuffer_load_dwordx4 {vr(VK[k])}, {sr(SK,4)}, {sr(S_CNT)} offen lds" for k in range(11)]
        a(f"s_lshl_b32 {sr(T)}, {sr(S_W)}, 6\nv_add_u32 {vr(t0)}, {sr(T)}, v0\nv_lshlrev_b32 {vr(t1)}, 4, {vr(t0)}")
        self.voff_table(VU, 18, 576, t0)
        npre = o.get("npre", 6)
        a.bg, a.every, a.cnt = gu[:npre], o.get("evpre", 14), 0
        self.voff_table(VK, 19, 288, t0)
        xa0, xa1, xa2 = TM, TM + 1, TM + 2
        a(f"""v_and_b32 {vr(t0)}, 15, v0
        v_lshrrev_b32 {vr(t1)}, 5, v0
        v_lshlrev_b32 {vr(t1)}, 3, {vr(t1)}
        v_xor_b32 {vr(t1)}, {vr(t0)}, {vr(t1)}
        v_lshlrev_b32 {vr(t1)}, 4, {vr(t1)}
        v_lshrrev_b32 {vr(t2)}, 4, v0
        v_lshl_add_u32 {vr(V_KA)}, {vr(t2)}, 9, {vr(t1)}
        v_lshrrev_b32 {vr(t1)}, 3, {vr(t0)}
        v_lshlrev_b32 {vr(t1)}, 1, {vr(t1)}
        v_xor_b32 {vr(t1)}, {vr(t2)}, {vr(t1)}
        v_lshl_add_u32 {vr(t1)}, {vr(t0)}, 2, {vr(t1)}
        v_lshlrev_b32 {vr(V_KA+1)}, 3, {vr(t1)}
        v_lshlrev_b32 {vr(L8)}, 3, v0
        v_lshlrev_b32 {vr(MXR)}, 4, {vr(t0)}
        v_add_u32 {vr(MXR)}, {L_MX}, {vr(MXR)}
        v_add_u32 {vr(MXA)}, {sr(S_W)}, {vr(t2)}
        v_and_b32 {vr(MXA)}, 3, {vr(MXA)}
        v_lshl_add_u32 {vr(MXA)}, {vr(MXA)}, 8, {vr(MXR)}
        s_lshl_b32 {sr(T)}, {sr(S_W)}, 2
        v_add_u32 {vr(MXA)}, {sr(T)}, {vr(MXA)}
        v_mul_u32_u24 {vr(xa2)}, 288, {vr(t0)}
        v_lshl_add_u32 {vr(xa2)}, {vr(t2)}, 3, {vr(xa2)}
        v_add_u32 {vr(xa2)}, {sr(S_LB)}, {vr(xa2)}
        v_and_b32 {vr(t1)}, 1, {vr(t2)}
        v_lshlrev_b32 {vr(t1)}, 5, {vr(t1)}
        v_add_u32 {vr(xa0)}, {vr(xa2)}, {vr(t1)}
        v_xor_b32 {vr(t1)}, 32, {vr(t1)}
        v_add_u32 {vr(xa1)}, {vr(xa2)}, {vr(t1)}
        s_mul_i32 {sr(S_LB)}, {sr(S_W)}, {TILE}
        v_lshrrev_b32 {vr(t0)}, 2, v0
        v_bfe_u32 {vr(t1)}, v0, 1, 1
        v_lshlrev_b32 {vr(t1)}, 3, {vr(t1)}
        v_xor_b32 {vr(t1)}, {vr(t0)}, {vr(t1)}
        v_lshlrev_b32 {vr(t1)}, 4, {vr(t1)}
        v_and_b32 {vr(t2)}, 3, v0
        v_lshl_add_u32 {vr(t1)}, {vr(t2)}, 9, {vr(t1)}
        v_and_b32 {vr(V_VA)}, 1, v0
        v_lshl_add_u32 {vr(t1)}, {vr(V_VA)}, 3, {vr(t1)}
        s_and_b32 {sr(T)}, {sr(S_W)}, 1
        s_lshl_b32 {sr(T)}, {sr(T)}, 12
        s_add_u32 {sr(T+1)}, {sr(T)}, {sr(S_LB)}
        s_xor_b32 {sr(T)}, {sr(T)}, 4096
        s_add_u32 {sr(T)}, {sr(T)}, {sr(S_LB)}
        v_add_u32 {vr(V_VA)}, {sr(T)}, {vr(t1)}
        v_add_u32 {vr(V_VB)}, {sr(T+1)}, {vr(t1)}
        v_xor_b32 {vr(V_VA+1)}, 8, {vr(V_VA)}
        v_xor_b32 {vr(V_VB+1)}, 8, {vr(V_VB)}
        v_lshrrev_b32 {vr(t1)}, 5, v0
        v_lshlrev_b32 {vr(t1)}, 1, {vr(t1)}
        v_xor_b32 {vr(t1)}, {vr(t2)}, {vr(t1)}
        v_lshl_add_u32 {vr(t1)}, {vr(t0)}, 2, {vr(t1)}
        v_lshlrev_b32 {vr(t1)}, 3, {vr(t1)}
        v_add_u32 {vr(V_VR)}, {sr(S_LB)}, {vr(t1)}
        v_add_u32 {vr(V_DMA+1)}, 4096, {vr(V_DMA)}
        v_add_u32 {vr(V_DMA+2)}, 8192, {vr(V_DMA)}""")
        self.tr_addr(TRU, L_WU, True, t0)
        a(f"s_lshl_b32 {sr(T)}, {sr(S_W)}, 6\ns_add_u32 {sr(T)}, {sr(T)}, {L_WQ - L_WU}")
        for k in range(3):
            a(f"v_add_u32 {vr(TRQ+k)}, {sr(T)}, {vr(TRU+k)}\nv_add_u32 {vr(TRQ8+k)}, {L_WQ - L_WU + 256}, {vr(TRU+k)}")
        self.row_addr(RK + 2, L_WK + 8 * 4864, t0)
        a(f"""s_mul_i32 {sr(T)}, {sr(S_W)}, {2*4864}
        s_sub_u32 {sr(T)}, {sr(T)}, {8*4864}
        v_add_u32 {vr(t1)}, {sr(T)}, {vr(RK+2)}
        v_bfe_u32 {vr(t0)}, v0, 2, 1
        v_mul_u32_u24 {vr(t0)}, 4864, {vr(t0)}
        v_add_u32 {vr(RK)}, {vr(t1)}, {vr(t0)}
        v_sub_u32 {vr(RK+1)}, {vr(t1)}, {vr(t0)}""")
        for j in range(4):
            a(f"""s_add_u32 {sr(T)}, {sr(S_W)}, {j}
            s_and_b32 {sr(T)}, {sr(T)}, 3
            s_lshl_b32 {sr(T+1)}, {sr(T)}, 12
            s_add_u32 {sr(T+1)}, {sr(T+1)}, {L_XX}
            v_add_u32 {vr(VS+j)}, {sr(T+1)}, {vr(V_DMA)}
            s_lshl_b32 {sr(T+1)}, {sr(T)}, 9
            s_add_u32 {sr(T+1)}, {sr(T+1)}, {L_XR}
            v_add_u32 {vr(VR4+j)}, {sr(T+1)}, {vr(L8)}
            v_add_u32 {vr(VSW+j)}, {sr(W10)}, {vr(VS+j)}""")
        a(f"""s_sub_u32 {sr(T+2)}, 63, {sr(S_H)}
        s_add_u32 {sr(T+3)}, {sr(S_W)}, 60
        s_cmp_ge_u32 {sr(T+3)}, {sr(T+2)}
        s_cselect_b32 {sr(S_DUM)}, 4, 99
        s_mov_b32 {sr(S_REDO)}, 0
        s_mov_b32 {sr(S_TOFF)}, {sr(S_LB)}
        s_sub_u32 {sr(T)}, {sr(S_TOWN)}, 63
        s_mul_i32 {sr(T+1)}, {sr(S_B)}, {NT}
        s_cmp_ge_i32 {sr(T)}, {sr(T+1)}
        s_cselect_b32 {sr(T)}, 64, 0
        s_lshl_b32 {sr(T+1)}, {sr(S_B)}, 7
        s_add_u32 {sr(PUB)}, {sr(T)}, {sr(T+1)}
        s_cmp_eq_u32 {sr(S_W)}, 2
        s_cselect_b32 {sr(T)}, {sr(S_VAL)}, 0
        s_cmp_eq_u32 {sr(T)}, 1
        s_cselect_b32 {sr(PUB)}, {sr(PUB)}, 0x40000000
        s_add_u32 {sr(T+1)}, {sr(T+1)}, {DB_CB}
        v_mov_b32 {vr(self.VPL)}, {sr(T+1)}""")
        a.flush()
        self.stamp("pre")
        if o.get("es", 0) == 0: self.epi_setup()
        self.stamp("es")
        nx = self.vm_since(mx)
        if o.get("touch", 1):
            a(f"""s_mov_b64 exec, 0
            s_cmp_eq_u32 {sr(S_W)}, 0
            s_cbranch_scc1 L_tr
            s_cmp_eq_u32 {sr(S_W)}, 1
            s_cbranch_scc1 L_t0
            s_cmp_eq_u32 {sr(S_W)}, 2
            s_cbranch_scc1 L_t1
            s_branch L_t2""")
            self.rare()
            a.raw(".p2align 12")
            a.label("L_tr")
            a("s_mov_b64 exec, -1")
        nlate = o.get("nlate", 0)
        for g_ in gu[npre:npre + nlate]: a(g_)
        a(f"s_waitcnt vmcnt({nx + nlate})")
        self.stamp("xarr")
        for s in range(4):
            a(f"ds_read_b64 {vr(XR+4*s,2)}, {vr(xa0)} offset:{64*s}\nds_read_b64 {vr(XR+4*s+2,2)}, {vr(xa1)} offset:{64*s}")
        a(f"ds_read_b64 {vr(XR+16,2)}, {vr(xa2)} offset:256")
        a(f"""s_and_b32 {sr(T)}, {sr(S_W)}, 1
        s_mul_i32 {sr(T+2)}, {sr(S_TOWN)}, {TILE}
        s_cmp_eq_u32 {sr(S_VAL)}, 1
        s_cselect_b32 {sr(T+2)}, {sr(T+2)}, 0x40000000
        s_lshl_b32 {sr(T+3)}, {sr(T)}, 8
        s_add_u32 {sr(T+3)}, {sr(T+3)}, {sr(T+2)}
        s_add_u32 {sr(T+4)}, {sr(T+3)}, 4096
        s_lshl_b32 {sr(T+5)}, {sr(T)}, 9
        s_add_u32 {sr(T+5)}, {sr(T+5)}, {sr(T+2)}
        s_add_u32 {sr(T+5)}, {sr(T+5)}, 8192
        s_waitcnt lgkmcnt(0)""")
        wl = gq + gk
        a.bg, a.every, a.cnt = gu[npre + nlate:] + [wl.pop(0) for _ in range(o.get("nql", 4))], o.get("evln", 10), 0
        self.ln_packed(XR, XF, XA, TM)
        a.flush()
        self.stamp("ln")
        a(f"s_cmp_lt_u32 {sr(S_W)}, 2\ns_cbranch_scc1 L_nop")
        for s in range(4):
            a(f"buffer_store_dwordx4 {vr(XA+4*s,4)}, {vr(V_KA)}, {sr(S_WS,4)}, {sr(T+3+(s>>1))} offen offset:{2048*(s&1)} sc1")
        a(f"buffer_store_dwordx2 {vr(XA+16,2)}, {vr(V_KA+1)}, {sr(S_WS,4)}, {sr(T+5)} offen sc1\ns_waitcnt vmcnt({5 + o.get('nql', 4)})\ns_branch L_bar1")
        a.label("L_nop")
        if o.get("touch", 1):
            a(f"s_mov_b64 exec, 0\ns_cmp_eq_u32 {sr(S_W)}, 0\ns_cbranch_scc1 L_t3\ns_branch L_t4")
            a.label("L_tr2")
            a("s_mov_b64 exec, -1")
        a(f"s_waitcnt vmcnt({o.get('nql', 4)})")
        a.label("L_bar1")
        self.stamp("pub")
        xw = [f"ds_write_b128 {vr(VS)}, {vr(XA+4*s,4)} offset:{1024*s}" for s in range(4)] + [f"ds_write_b64 {vr(VR4)}, {vr(XA+16,2)}"]
        self.stamp("tch")
        PA = 249
        a(f"""v_add_u32 {vr(V_KA)}, {sr(S_LB)}, {vr(V_KA)}
        v_add_u32 {vr(V_KA+1)}, {sr(S_LB)}, {vr(V_KA+1)}
        s_lshl1_add_u32 {sr(T)}, {sr(S_B)}, {sr(S_H)}
        s_lshl_b32 {sr(T)}, {sr(T)}, 6
        s_cmp_eq_u32 {sr(S_W)}, 0
        s_cselect_b32 {sr(T)}, {sr(T)}, 0x40000000
        v_mov_b32 {vr(PA)}, {sr(T)}
        {self.xa_srd()}
        s_waitcnt lgkmcnt(0)""")
        self.stamp("w1")
        a("s_barrier")
        self.stamp("bar1")
        poll = lambda r: f"buffer_load_dword {vr(r)}, {vr(PA)}, {sr(S_DB,4)}, 0 offen sc1"

        def gate(lab, r, word, need, younger):
            a(f"s_mov_b32 {sr(T+2)}, 0\ns_waitcnt vmcnt({younger})")
            a.label(lab)
            a(f"""v_readfirstlane_b32 {sr(T+3)}, {vr(r+word)}
            s_add_u32 {sr(T+2)}, {sr(T+2)}, 1
            s_cmp_ge_u32 {sr(T+3)}, {need}
            s_cbranch_scc1 {lab}_ok
            {poll(r)}
            s_waitcnt vmcnt(0)
            s_cmp_lt_u32 {sr(T+2)}, 0x40000
            s_cbranch_scc1 {lab}""")
            a.label(lab + "_ok")

        H, G_, UG, MS, CL = 16, 52, 208, 110, 104
        nup = o.get("nup", 12)
        at = {o.get("u0", 6) + o.get("usp", 3) * i: wl.pop(0) for i in range(nup)}
        for i in range(5): at[i] = xw[i]
        if o.get("es", 0) == 1:
            n_ = len(a.lines); self.epi_setup()
            el = [l.strip() for l in a.lines[n_:]]; del a.lines[n_:]
            for k in range(5, 42):
                if k in at: continue
                c_ = 0
                while el and c_ < o.get("esn", 2):
                    x = el.pop(0); at[k] = at.get(k, "") + x + "\n"; c_ += 1 if x.startswith("v_") else 0.5
            self.es_left = el
        self.gemm(self.tr_reads(TRU), XA, H, None, at=at)
        if o.get("es", 0) == 1:
            for x in self.es_left: a(x)
        self.stamp("up")
        last = lambda srd: max(i for i, l in enumerate(a.lines) if l.strip().startswith("buffer_load") and sr(srd, 4) in l) + 1
        assert not any(sr(SQ, 4) in x for x in wl)
        a(f"v_mov_b32 {vr(t0)}, {sr(PUB)}\nv_mov_b32 {vr(t1)}, 1\ns_waitcnt vmcnt({self.vm_since(last(SQ))}) lgkmcnt(0)\ns_barrier")
        a(f"s_mov_b64 exec, 1\nbuffer_atomic_add {vr(t1)}, {vr(t0)}, {sr(S_DB,4)}, 0 offen sc1\ns_mov_b64 exec, -1")
        self.stamp("barG")

        def a_tr(t):
            ad, off = (TRQ, 32 * t) if t < 2 else (TRQ8, 0)
            return [f"ds_read_b64_tr_b16 {ar(AQ1+18*t+4*s+2*u,2)}, {vr(ad+u)} offset:{9216*s + off}" for s in range(4) for u in range(2)] + \
                   [f"ds_read_b64_tr_b16 {ar(AQ1+18*t+16,2)}, {vr(ad+2)} offset:{36864 + off}"]

        def a_row(t):
            off = 4864 * t if t < 2 else 0
            return [f"ds_read_b64 {ar(A_Q+18*t+4*s+2*u,2)}, {vr(RK+t)} offset:{off + 64*s + 32*u}" for s in range(4) for u in range(2)] + \
                   [f"ds_read_b64 {ar(A_Q+18*t+16,2)}, {vr(RK+t)} offset:{off + 256}"]
        bq = lambda j, d=0: [f"ds_read_b128 {ar(18*j+4*s,4)}, {vr(VS+j)} offset:{d + 1024*s}" for s in range(4)] + [f"ds_read_b64 {ar(18*j+16,2)}, {vr(VR4+j)} offset:{d}"]

        def post(u, scale, d):
            L = [f"v_mul_f32 {vr(ACC+4*u+i)}, {sr(T+4)}, {vr(ACC+4*u+i)}" for i in range(4)] if scale else []
            L += [f"v_cvt_pk_bf16_f32 {vr(PK + (4*(u&3) + 2*(u>>2) if u < 8 else 16) + h)}, {vr(ACC+4*u+2*h)}, {vr(ACC+4*u+2*h+1)}" for h in range(2)]
            if 4 <= u < 8: L.append(f"ds_write_b128 {vr(VSW+u-4)}, {vr(PK+4*(u-4),4)} offset:{d}")
            if u == 8: L.append(f"ds_write_b64 {vr(VR4)}, {vr(PK+16,2)} offset:{d}")
            return L
        xd = [f"ds_read_b128 {vr(XD+4*j,4)}, {vr(VSW+j)}" for j in range(4)]
        self.gemm_u(AQ1, ar, [("v", XA), ("a", 18), ("a", 36), ("a", 54)], ACC, a_tr, lambda j: bq(j) if j else None, lambda u: post(u, False, L_QD),
                    vm_items=wl, other=xd, vmsp=o.get("vmsp", 3))
        self.stamp("g1")
        for i in range(4): a(f"v_mov_b32 {vr(CL+i)}, -1")
        a(f"s_lshl2_add_u32 {sr(T+2)}, s2, {sr(S_W)}\ns_mul_i32 {sr(T+2)}, {sr(T+2)}, 2560\ns_add_u32 {sr(T+2)}, {sr(T+2)}, {WS_IB}")
        a(f"s_mov_b32 {sr(T+4)}, {f32(LOG2E / 12.0)}\ns_waitcnt vmcnt({self.vm_since(last(SK))}) lgkmcnt(0)\ns_barrier")
        clr = [f"buffer_store_dwordx4 {vr(CL,4)}, {vr(V_DMA)}, {sr(S_WS,4)}, {sr(T+2)} offen sc1",
               f"buffer_store_dwordx4 {vr(CL,4)}, {vr(V_DMA)}, {sr(S_WS,4)}, {sr(T+2)} offen offset:1024 sc1",
               f"buffer_store_dwordx2 {vr(CL,2)}, {vr(L8)}, {sr(S_WS,4)}, {sr(T+2)} offen offset:2048 sc1"]
        self.stamp("bar2")
        self.gemm_u(A_Q, ar, [("a", 18 * j) for j in range(4)], ACC, a_row, lambda j: bq(j, L_QD), lambda u: post(u, True, 0), vm_items=[poll(252)] + clr, vm0=o.get("pg", 4), vmsp=o.get("csp", 8))
        self.stamp("g2")
        p = lambda r: vr(r, 2)
        CC = TM
        for j in range(4): a(f"v_dot2_f32_bf16 {vr(CC+j)}, {vr(PK+4*j)}, {vr(XD+4*j)}, 0")
        for i in range(2): a(f"v_dot2_f32_bf16 {vr(CC)}, {vr(PK+16+i)}, {vr(XA+16+i)}, {vr(CC)}")
        for i in range(1, 4):
            for j in range(4): a(f"v_dot2_f32_bf16 {vr(CC+j)}, {vr(PK+4*j+i)}, {vr(XD+4*j+i)}, {vr(CC+j)}")
        QE = TRQ
        a(f"""s_xor_b32 {sr(T+1)}, {sr(self.NB)}, 1
        v_add_u32 {vr(t0)}, {L_XX}, {vr(V_DMA)}
        v_lshl_add_u32 {vr(QE)}, {sr(T+1)}, 12, {vr(t0)}
        v_lshl_add_u32 {vr(QE+1)}, {sr(self.NB)}, 12, {vr(t0)}""")
        self.treduce(CC)
        a(f"""ds_write_b32 {vr(MXA)}, {vr(CC)}
        v_add_u32 {vr(t0)}, {L_XR}, {vr(L8)}
        v_lshl_add_u32 {vr(QE+2)}, {sr(T+1)}, 9, {vr(t0)}
        v_lshl_add_u32 {vr(QE+3)}, {sr(self.NB)}, 9, {vr(t0)}
        v_lshl_add_u32 {vr(QE+4)}, {sr(T+1)}, 8, {vr(MXR)}
        v_lshl_add_u32 {vr(QE+5)}, {sr(self.NB)}, 8, {vr(MXR)}
        s_sub_u32 {sr(T+5)}, 63, {sr(S_H)}
        s_lshr_b32 {sr(T+6)}, s2, 3
        s_lshl_b32 {sr(T+6)}, {sr(T+6)}, 12
        s_add_u32 {sr(T+6)}, {sr(T+6)}, {sr(W10)}
        s_cmp_lg_u32 {sr(S_W)}, 0
        s_cbranch_scc1 L_ga_ok""")
        gate("L_ga", 252, 0, sr(T + 5), 3)
        a("s_waitcnt lgkmcnt(0)\ns_barrier")
        self.stamp("bar3")
        c1 = -2.0 * math.sqrt(2.0 / math.pi) * LOG2E
        c2 = c1 * 0.044715
        qrd = [f"ds_read_b128 {vr(MS+4*qb,4)}, {vr(QE+4+(qb&1))} offset:{512*(qb>>1)}" for qb in range(4)]
        for qb in range(4):
            qrd += [f"ds_read_b128 {ar(A_Q+18*qb+4*s,4)}, {vr(QE+(qb&1))} offset:{8192*(qb>>1) + 1024*s}" for s in range(4)]
            qrd.append(f"ds_read_b64 {ar(A_Q+18*qb+16,2)}, {vr(QE+2+(qb&1))} offset:{1024*(qb>>1)}")
        tg = self.tile_groups(0) + self.tile_groups(1) + self.tile_groups(2)[:8]
        n0 = o.get("n0", 3)
        for k in range(o.get("tpf", 0)):
            a(f"s_add_u32 {sr(T+7)}, {sr(T+6)}, {o.get('tpf0', 4*TILE) + 131072*k}\nbuffer_load_dwordx4 v[252:255], {vr(V_DMA)}, {sr(S_XA,4)}, {sr(T+7)} offen")
        for x in tg[:n0]: a(x)
        a(f"v_mov_b32 {vr(CC)}, {f32(c1)}\nv_mov_b32 {vr(CC+2)}, {f32(c2)}\nv_mov_b32 {vr(CC+4)}, 1.0")
        nq1, nt1 = o.get("nq1", 8), o.get("nt1", 5)
        bgl = []
        for i in range(max(nq1 // 2, nt1)):
            if 2 * i < nq1: bgl.append(qrd[2 * i] + "\n" + qrd[2 * i + 1])
            if i < nt1: bgl.append(tg[n0 + i])
        tg, qrd = tg[n0 + nt1:], qrd[nq1:]
        a.bg, a.every, a.cnt = bgl, 54 // (len(bgl) + 1), 0
        for i in range(18): a(f"v_pk_mul_f32 {p(G_+2*i)}, {p(H+2*i)}, {p(H+2*i)}")
        for i in range(18): a(f"v_pk_fma_f32 {p(G_+2*i)}, {p(G_+2*i)}, {p(CC+2)}, {p(CC)} op_sel_hi:[1,0,0]")
        for i in range(18): a(f"v_pk_mul_f32 {p(G_+2*i)}, {p(G_+2*i)}, {p(H+2*i)}")
        a.flush()
        self.stamp("ge1")
        esp = o.get("esp", 4)
        for i in range(36):
            a(f"v_exp_f32 {vr(G_+i)}, {vr(G_+i)}")
            if i % esp == 1 and tg: a(tg.pop(0))
            if i % 8 == 3 and qrd: a(qrd.pop(0)); a(qrd.pop(0))
        self.stamp("ge2")
        for i in range(18): a(f"v_pk_add_f32 {p(G_+2*i)}, {p(G_+2*i)}, {p(CC+4)} op_sel_hi:[1,0]")
        for i in range(36):
            a(f"v_rcp_f32 {vr(G_+i)}, {vr(G_+i)}")
            if i % esp == 1 and tg: a(tg.pop(0))
            if i % 8 == 3 and qrd: a(qrd.pop(0)); a(qrd.pop(0))
        assert not tg and not qrd
        idx = [i for i, l in enumerate(a.lines) if l.strip().startswith("buffer_load") and l.rstrip().endswith("lds")]
        m_t0, m_t1 = idx[-18] + 1, idx[-9] + 1
        for i in range(18): a(f"v_pk_mul_f32 {p(H+2*i)}, {p(G_+2*i)}, {p(H+2*i)}")
        a(f"""s_mul_i32 {sr(T)}, {sr(WV+1)}, {BLK}
        s_cmp_eq_u32 {sr(S_H)}, 1
        s_cbranch_scc1 L_ln2
        s_add_u32 {sr(T)}, {sr(T)}, {WS_U}""")
        for i in range(18): a(f"v_cvt_pk_bf16_f32 {vr(UG+i)}, {vr(H+2*i)}, {vr(H+2*i+1)}")
        a("s_branch L_ug")
        a.label("L_ln2")
        a(f"s_add_u32 {sr(T)}, {sr(T)}, {WS_G}")
        self.ln_f32(H, UG, TM)
        a.label("L_ug")
        self.stamp("ge3")
        a(f"""s_cmp_eq_u32 {sr(WV)}, 1
        s_cselect_b32 {sr(S_UG)}, {sr(T)}, 0x40000000
        s_waitcnt vmcnt({self.vm_since(m_t0)}) lgkmcnt(0)""")
        for x in self.k_reads(0, V_V): a(x)
        self.ugs = [f"buffer_store_dwordx4 {vr(UG+4*s,4)}, {vr(V_DMA)}, {sr(S_WS,4)}, {sr(S_UG)} offen offset:{1024*s} sc1" for s in range(4)]
        self.ugs.append(f"buffer_store_dwordx2 {vr(UG+16,2)}, {vr(self.VL8)}, {sr(S_WS,4)}, {sr(S_UG)} offen sc1")
        for qb in range(4): a(f"v_pk_add_f32 {p(MS+4*qb)}, {p(MS+4*qb)}, {p(MS+4*qb+2)} neg_lo:[1,1] neg_hi:[1,1]")
        for qb in range(4): a(f"v_add_f32 {vr(self.MK+qb)}, {vr(MS+4*qb)}, {vr(MS+4*qb+1)}")
        a(f"v_lshlrev_b32 {vr(t1)}, 8, v0\nv_lshlrev_b32 v231, 2, v0\nv_add_u32 v231, {L_PC}, v231\nds_write_b32 v231, {vr(t1)}")
        self.loop_init(False)
        self.n_t1 = self.vm_since(m_t1)
        self.stamp("ug")

    def loop_init(self, part):
        a = self.a
        if part:
            for qb in range(4):
                for i in range(4): a(f"v_mov_b32 {vr(V_CI+4*qb+i)}, {vr(self.MK+qb)}")
            return
        for k in range(7): a(f"v_add_u32 {vr(V_HI+k)}, {2*SLOT}, {vr(V_KA+k if k < 5 else V_VB+k-5)}")
        a(f"v_add_u32 {vr(self.VS0)}, {sr(S_LB)}, {vr(V_DMA)}\nv_add_u32 {vr(self.VS0R)}, {sr(S_LB)}, {vr(self.VL8)}\ns_mov_b32 {sr(S_CNT)}, 0\ns_mov_b32 {sr(S_INC)}, {4*TILE}")
        for i in range(4): a(f"v_mov_b32 {vr(V_L+i)}, 0")
        a(f"v_mov_b32 {vr(self.VPL+1)}, 1\nv_lshlrev_b32 v231, 2, v0\nv_add_u32 v231, {L_PC}, v231")

    def head(self):
        a, o = self.a, self.o
        a.label("L_go")
        self.loop_init(True)
        a("s_waitcnt lgkmcnt(0)\ns_barrier")
        self.stamp("bar5")
        base = self.qk_mfmas(0)
        pick = lambda s_, kb, qb: base[8 * s_ + 4 * kb + qb].replace(vr(V_K + 8 * s_ + 4 * kb, 4) + ",", vr(V_V + 8 * s_ + 4 * kb, 4) + ",").replace(vr(V_K + 32 + 2 * kb, 2) + ",", vr(V_V + 32 + 2 * kb, 2) + ",")
        mf, fin = [], {}
        for qb, s_ in [(0, 0), (0, 1), (0, 2), (0, 3), (1, 0), (1, 1), (0, 4), (1, 2), (1, 3), (2, 0), (2, 1), (1, 4), (2, 2), (2, 3), (3, 0), (3, 1), (2, 4),
                       (3, 2), (3, 3), (3, 4)]:
            for kb in range(2):
                fin[qb, kb] = len(mf)
                mf.append(("s_nop 3\n" if (qb, s_, kb) == (3, 4, 0) else "") + pick(s_, kb, qb))
        enew = [e[1] for g in range(40, 76) for e in self.gaps[g] if e[0] == "E"]
        items = self.e_items(0, enew, lambda qb, j: 0, lambda qb: 999)
        for it, e in zip(items, enew):
            if e[0] == "e": it["am"] = fin[e[1], e[2] // 4]
        dm = []
        for k, (slot, j) in enumerate([(2, 8)] + [(3, j) for j in range(9)]):
            g_ = 1 + o.get("hsp", 4) * k
            if j % 4 == 0: dm.append(dict(t=f"s_add_u32 m0, {sr(S_LB)}, {slot*SLOT + 4096*(j//4)}", c=0, lo=g_ - 1, hi=g_ - 1))
            dm.append(dict(t=f"buffer_load_dwordx4 {vr(V_DMA + j//4)}, {sr(S_XA,4)}, {sr(S_TOFF)} offen offset:{1024*(j%4)} lds", c=8, lo=g_, hi=g_))
            if j == 8: dm.append(dict(t=f"s_add_u32 {sr(S_TOFF)}, {sr(S_TOFF)}, {4*TILE}", c=0, lo=g_ + 1, hi=g_ + 1))
        nh = o.get("ugh", 2)
        for k in range(nh): dm.append(dict(t=self.ugs[k], c=8, lo=3 + 16 * k, hi=3 + 16 * k))
        a(f"s_waitcnt vmcnt({self.n_t1})")
        left = self.pack(mf, items + dm + [dict(t=x, c=4, lo=i // 2, nds=2) for i, x in enumerate(self.k_reads(1))])
        print("head overflow", self.over, "left", len(left))
        left.sort(key=lambda x: not x.startswith("v_exp"))
        last = a.lines[-1].strip()
        for x in left:
            if last.startswith("v_exp") and not x.startswith("v_exp") and (last.split()[1].rstrip(",") + ",") in (x + ","): a("s_nop 0")
            a(x); last = x
        a("s_waitcnt lgkmcnt(0)")

    def tile_groups(self, slot):
        out = []
        for j in range(9):
            g = ""
            if j % 4 == 0: g = f"s_add_u32 m0, {sr(S_LB)}, {slot*SLOT + 4096*(j//4)}\ns_nop 0\n"
            g += f"buffer_load_dwordx4 {vr(V_DMA + j//4)}, {sr(S_XA,4)}, {sr(S_TOFF)} offen offset:{1024*(j%4)} lds"
            if j == 8: g += f"\ns_add_u32 {sr(S_TOFF)}, {sr(S_TOFF)}, {4*TILE}"
            out.append(g)
        return out

    def first_tiles(self):
        pass

    def wfuse(self):
        a = self.a
        BF, ACC, AF, TM, AD = 88, 108, 144, 208, 240
        LA, LB_, LM = 0, 44032, 88064
        T = S_T
        a.label("L_wfuse")
        a(f"v_lshrrev_b32 v1, 6, v0\nv_and_b32 v0, 63, v0\nv_readfirstlane_b32 {sr(S_W)}, v1\nv_lshlrev_b32 {vr(V_DMA)}, 4, v0\ns_waitcnt lgkmcnt(0)")
        self.srd(S_DB, 76, 77, 256)
        self.srd(S_WS, 78, 79, WS_END)
        self.wf0 = 0
        self.srd(S_X, 72, 73, 82944)
        self.srd(S_W2, 62, 63, 41472)
        a(f"""s_cmp_eq_u32 s2, {self.wf0}
        s_cselect_b32 {sr(S_W1)}, s64, s70
        s_cselect_b32 {sr(S_W1+1)}, s65, s71
        s_mov_b32 {sr(S_W1+2)}, 41472
        s_mov_b32 {sr(S_W1+3)}, 0x20000
        s_cselect_b32 {sr(T+4)}, 0, 41472""")
        self.dma_rows([(S_W1, "0", LA), (S_W2, "0", LB_)], 19, 288, TM + 4, TM + 5, 11, 3, "L_wf1")
        a(f"s_lshl_b32 {sr(T)}, {sr(S_W)}, 10\ns_add_u32 {sr(T+2)}, {sr(T)}, {sr(T+4)}")
        for k in range(11):
            if k == 10: a(f"s_cmp_ge_u32 {sr(S_W)}, 1\ns_cbranch_scc1 L_wf2")
            a(f"s_add_u32 m0, {sr(T)}, {LM + 4096*k}\ns_add_u32 {sr(T+1)}, {sr(T+2)}, {4096*k}")
            a(f"buffer_load_dwordx4 {vr(V_DMA)}, {sr(S_X,4)}, {sr(T+1)} offen lds")
        a.label("L_wf2")
        self.srd(S_DW, 68, 69, 864)
        a(f"""v_and_b32 {vr(TM)}, 15, v0
        v_lshlrev_b32 {vr(TM+2)}, 4, {vr(TM)}
        v_lshlrev_b32 {vr(TM)}, 1, {vr(TM)}
        v_bfe_u32 {vr(TM+3)}, v0, 4, 1
        v_lshl_add_u32 {vr(TM+1)}, {vr(TM+3)}, 7, {vr(TM)}
        v_lshl_add_u32 {vr(TM+2)}, {vr(TM+3)}, 11, {vr(TM+2)}
        v_and_b32 {vr(TM+3)}, 1, v0
        v_lshlrev_b32 {vr(TM+3)}, 4, {vr(TM+3)}
        v_bfe_i32 {vr(TM+4)}, v0, 1, 1
        v_not_b32 {vr(TM+5)}, {vr(TM+4)}""")
        for k in range(3):
            for i in range(5): a(f"buffer_load_ushort {vr(16+5*k+i)}, {vr(TM+1 if i < 4 else TM)}, {sr(S_DW,4)}, 0 offen offset:{288*k + (32*i if i < 4 else 256)}")
        a(f"s_mov_b32 {sr(T+1)}, {WS_DWF}\ns_waitcnt vmcnt(0)")
        for f in range(15):
            a(f"v_lshlrev_b32 {vr(16+f)}, {vr(TM+3)}, {vr(16+f)}\nv_and_b32 {vr(32+2*f)}, {vr(TM+5)}, {vr(16+f)}\nv_and_b32 {vr(33+2*f)}, {vr(TM+4)}, {vr(16+f)}")
        for r_ in range(8): a(f"buffer_store_dwordx{4 if r_ < 7 else 2} {vr(32+4*r_, 4 if r_ < 7 else 2)}, {vr(TM+2)}, {sr(S_WS,4)}, {sr(T+1)} offen offset:{256*r_} sc1")
        self.tr_addr(AD, LM, False, TM + 8)
        self.row_addr(AD + 3, LA, TM + 8)
        a(f"v_add_u32 {vr(AD+5)}, {LB_}, {vr(AD+3)}")
        a(f"v_lshlrev_b32 {vr(AD+4)}, 3, v0")
        a(f"""s_lshr_b32 {sr(T)}, {sr(S_W)}, 1
        s_lshl_b32 {sr(T)}, {sr(T)}, 6
        s_and_b32 {sr(T+1)}, {sr(S_W)}, 1
        s_lshl_b32 {sr(T+1)}, {sr(T+1)}, 3
        s_add_u32 {sr(T)}, {sr(T)}, {sr(T+1)}
        v_and_b32 {vr(AD+6)}, 3, v0
        v_lshlrev_b32 {vr(AD+6)}, 3, {vr(AD+6)}
        v_add_u32 {vr(AD+7)}, {sr(T)}, {vr(AD+6)}""")
        for k in range(3): a(f"v_add_u32 {vr(AD+k)}, {vr(AD+7)}, {vr(AD+k)}")
        a(f"s_mov_b32 {sr(S_CNT)}, {sr(S_W)}")
        a("s_waitcnt vmcnt(0)\ns_barrier")
        a.label("L_wfl")
        for s in self.tr_reads(AD, vr)(0, BF): a(s)
        a("s_waitcnt lgkmcnt(0)")
        self.gemm(self.row_reads(AD + 3), BF, ACC, AF)
        for i in range(18): a(f"v_cvt_pk_bf16_f32 {vr(BF+i)}, {vr(ACC+2*i)}, {vr(ACC+2*i+1)}")
        a(f"s_cmp_eq_u32 s2, {self.wf0}\ns_cbranch_scc0 L_wf3")
        self.gemm(self.row_reads(AD + 5), BF, ACC, AF)
        for i in range(18): a(f"v_cvt_pk_bf16_f32 {vr(BF+i)}, {vr(ACC+2*i)}, {vr(ACC+2*i+1)}")
        a.label("L_wf3")
        a(f"""s_mul_i32 {sr(T)}, {sr(S_CNT)}, {BLK}
        s_add_u32 {sr(T)}, {sr(T)}, {sr(T+4)}
        s_add_u32 {sr(T)}, {sr(T)}, {WS_WF}
        s_add_u32 {sr(T+1)}, {sr(T)}, 4096""")
        self.store_block(BF, V_DMA, AD + 4, S_WS, T, T + 1, "sc1")
        for k in range(3): a(f"v_add_u32 {vr(AD+k)}, 128, {vr(AD+k)}")
        a(f"s_add_u32 {sr(S_CNT)}, {sr(S_CNT)}, 4\ns_cmp_lt_u32 {sr(S_CNT)}, 8\ns_cbranch_scc1 L_wfl")
        for k in range(3): a(f"v_sub_u32 {vr(AD+k)}, {vr(AD+k)}, {vr(AD+6)}")
        a(f"s_cmp_eq_u32 {sr(S_CNT)}, 8\ns_cbranch_scc1 L_wfl")
        a(f"""s_waitcnt vmcnt(0)
        s_barrier
        s_cmp_lg_u32 {sr(S_W)}, 0
        s_cbranch_scc1 L_end
        s_mov_b64 exec, 1
        v_mov_b32 {vr(TM)}, 1
        v_mov_b32 {vr(TM+1)}, {DB_CW}
        buffer_atomic_add {vr(TM)}, {vr(TM+1)}, {sr(S_DB,4)}, 0 offen sc1
        v_mov_b32 {vr(TM+1)}, {DB_CW + 128}
        buffer_atomic_add {vr(TM)}, {vr(TM+1)}, {sr(S_DB,4)}, 0 offen sc1
        s_endpgm""")

    def dump_stamps(self):
        a = self.a
        if self.o.get("echo"):
            if self.o["echo"][0] == "skew":
                a(f"v_mov_b32 v16, 4\nbuffer_load_dword v17, v16, {sr(S_DB,4)}, 0 offen sc1\ns_waitcnt vmcnt(0)\nv_readfirstlane_b32 s98, v17\ns_not_b32 s98, s98")
                x, y = 98, S_ST + 2 * self.stnames.index(self.o["echo"][1])
            else:
                x, y = [S_ST + 2 * self.stnames.index(n) for n in self.o["echo"]]
            a(f"""s_cmp_eq_u32 {sr(S_VAL)}, 0
            s_cbranch_scc1 L_end
            s_memrealtime s[4:5]
            s_waitcnt lgkmcnt(0)
            s_sub_u32 s6, {sr(y)}, {sr(x)}
            s_add_u32 s6, s6, s4""")
            a.label("L_echo")
            a("s_memrealtime s[4:5]\ns_waitcnt lgkmcnt(0)\ns_sub_u32 s7, s6, s4\ns_cmp_gt_i32 s7, 0\ns_cbranch_scc1 L_echo")
            return
        if self.o.get("dbgst"):
            a("s_waitcnt vmcnt(0)")
            self.stamp("done")
            a("s_waitcnt lgkmcnt(0)\ns_mov_b64 exec, 1")
            slots = [1, 2, 3, 4, 5, 6, 7, 9, 11, 12, 13, 14, 15]
            a(f"s_not_b32 {sr(S_T)}, {sr(S_ST)}\nv_mov_b32 v16, {sr(S_T)}\nv_mov_b32 v17, 4\nbuffer_atomic_umax v16, v17, {sr(S_DB,4)}, 0 offen sc1")
            for i in range(min(self.nst, 12)):
                a(f"v_mov_b32 v{18+2*i}, {sr(S_ST+2*i)}\nv_mov_b32 v{19+2*i}, {4*slots[i+1]}\nbuffer_atomic_umax v{18+2*i}, v{19+2*i}, {sr(S_DB,4)}, 0 offen sc1")
            return
        if not self.o.get("stamps"): return
        T = S_T
        a(f"""s_waitcnt lgkmcnt(0)
        s_lshl_b32 {sr(T)}, s2, 2
        s_add_u32 {sr(T)}, {sr(T)}, {sr(S_W)}
        s_lshl_b32 {sr(T)}, {sr(T)}, 7
        s_add_u32 {sr(T)}, {sr(T)}, {WS_DBG}
        v_mov_b32 v1, 0""")
        for i in range(26): a(f"v_mov_b32 {vr(16+i)}, {sr(S_ST+i)}")
        for i in range(7): a(f"buffer_store_dwordx4 {vr(16+4*i,4)}, v1, {sr(S_WS,4)}, {sr(T)} offen offset:{16*i}")

    def build(self):
        a = self.a
        self.stnames = []
        a.raw(f"; @launch grid=({NWG},1,1) block=(256,1,1) lds={LDS_TOTAL}")
        a.raw('.amdgcn_target "amdgcn-amd-amdhsa--gfx950"')
        a.raw(".text")
        a.raw(f".globl {NAME}")
        a.raw(".p2align 12")
        self.entry()
        self.phase_a()
        self.rest()
        a.label("L_fin")
        self.dump_stamps()
        a.label("L_end")
        a("s_endpgm")
        self.poll2()
        if not self.o.get("touch", 1): self.rare()
        a.label("L_dummy")
        self.fallback()
        self.wfuse()
        a.raw('.section .rodata,"a"')
        a.raw(".p2align 6")
        a.raw(kernel_desc(NAME, 512, 102, 256))
        return a.text()

    def S(self, buf, qb, i=0): return V_S + buf * 32 + qb * 8 + i
    def P(self, buf, qb, i=0): return V_P + buf * 16 + qb * 4 + i

    def k_reads(self, slot, V_K=V_K):
        ka, so = (V_KA, slot * SLOT) if slot < 2 else (V_HI, (slot - 2) * SLOT)
        out = [f"ds_read_b128 {vr(V_K+8*s+4*kb,4)}, {vr(ka)} offset:{so + 2048*s + 256*kb}" for s in range(4) for kb in range(2)]
        out += [f"ds_read_b64 {vr(V_K+32+2*kb,2)}, {vr(ka+1)} offset:{so + 8192 + 512*kb}" for kb in range(2)]
        return out

    def v_reads(self, slot, dst=V_V):
        (va, vr_, vb), so = ((V_VA, V_VR, V_VB), slot * SLOT) if slot < 2 else ((V_HI + 2, V_HI + 4, V_HI + 5), (slot - 2) * SLOT)
        out = []
        for T in range(9):
            for u in range(2):
                if T < 8: out.append(f"ds_read_b64_tr_b16 {vr(dst+4*T+2*u,2)}, {vr((va if T < 4 else vb)+(T&1))} offset:{so + 2048*((T>>1)&1) + 256*u}")
                else: out.append(f"ds_read_b64_tr_b16 {vr(dst+4*T+2*u,2)}, {vr(vr_)} offset:{so + 8192 + 512*u}")
        return out

    def qk_mfmas(self, buf, czero=False):
        out = []
        for s in range(5):
            for kb in range(2):
                for qb in range(4):
                    d = vr(self.S(buf, qb, 4 * kb), 4)
                    c = ("0" if czero else vr(V_CI + 4 * qb, 4)) if s == 0 else d
                    if s < 4: out.append(f"v_mfma_f32_16x16x32_bf16 {d}, {vr(V_K+8*s+4*kb,4)}, {ar(A_Q+18*qb+4*s,4)}, {c}")
                    else: out.append(f"v_mfma_f32_16x16x16_bf16 {d}, {vr(V_K+32+2*kb,2)}, {ar(A_Q+18*qb+16,2)}, {c}")
        return out

    def pv_mfmas(self, buf, czero=False):
        out = []
        for T in range(9):
            for qb in range(4):
                o = ar(A_O + 36 * qb + 4 * T, 4)
                out.append(f"v_mfma_f32_16x16x32_bf16 {o}, {vr(V_V+4*T,4)}, {vr(self.P(buf,qb),4)}, {'0' if czero else o}")
        return out

    def plan(self):
        o = self.o
        n = 76
        fixed = [None] * n
        for i, g in enumerate(range(1, 36, 2)): fixed[g] = ("V", i)
        for i, g in enumerate([41, 44, 47, 50, 53, 56, 59, 62, 65, 68]): fixed[g] = ("K", i)
        for i, g in enumerate([42, 46, 49, 52, 55, 58, 61, 64, 67]): fixed[g] = ("D", i)
        exps = [(qb, j) for qb in range(4) for j in range(8)]
        start = 40
        order = [(start + k) % n for k in range(n)]
        free_idx = [k for k, g in enumerate(order) if fixed[g] is None]
        nsm = len(free_idx) - 32
        cand = free_idx[6:-2]
        sm_set = set(free_idx[-2:]) | {cand[int((i + 0.5) * len(cand) / (nsm - 2))] for i in range(nsm - 2)}
        nds = sum(1 for f in fixed if f is not None and f[0] != "D")
        over = 48 - nds - 2 * nsm
        ocand = [k for k, g in enumerate(order) if k >= 20 and (fixed[g] is None or fixed[g][0] != "D")]
        o_set = {ocand[int((i + 0.5) * len(ocand) / over)] for i in range(over)}
        gaps = [[] for _ in range(n)]
        small, pend, ei = [], [], 0
        for k, g in enumerate(order):
            new = (start + k) < n
            small.extend(pend); pend = []
            small.sort(key=lambda t: 0 if t[0] == "c" else 1)
            f = fixed[g]
            want = 0
            if f is not None:
                gaps[g].append((f[0], f[1], None))
                if f[0] == "D": continue
                want = 1
            elif k in sm_set: want = 2
            else:
                qb, j = exps[ei]; ei += 1
                gaps[g].append(("E", ("e", qb, j), new))
                if j & 1: pend.append(("c", qb, j // 2))
                pend.append(("a", qb, j))
            if k in o_set: want += 1
            if k == n - 1: want = 99
            for _ in range(want):
                if small: gaps[g].append(("E", small.pop(0), new))
        assert not small and not pend and ei == 32
        self.gaps = gaps

    def pack(self, mf, items):
        a = self.a
        where, order, done, nvm, mpos = {}, [], 0, 0, []
        isds = lambda it: "ds_" in it["t"]
        self.over = 0
        for g, m in enumerate(mf):
            assert not any(it.get("need", 999) <= g and i not in where for i, it in enumerate(items)), g
            idx = [k for k, n_ in enumerate(order) if n_ <= g]
            if idx and max(idx) + 1 > done:
                a(f"s_waitcnt lgkmcnt({min(15, len(order) - 1 - max(idx))})"); done = max(idx) + 1
            if m.startswith("@W"):
                w_, m = m.split("\n", 1)
                a(f"s_waitcnt lgkmcnt({min(15, int(w_[2:]) + len(order))})")
            a(m)
            mpos.append(len(a.lines))
            cap, pick = 8, []
            for phase in (0, 1):
                for i, it in enumerate(items):
                    if i in where or it.get("lo", 0) > g: continue
                    if "am" in it and (it["am"] >= g or len(a.lines) - mpos[it["am"]] < 8): continue
                    d = it.get("dep")
                    if d is not None and not all(where.get(x, 999) < g for x in d): continue
                    if (phase == 0 and it.get("hi", 999) <= g) or (phase == 1 and it["c"] <= cap):
                        if it["t"].startswith("buffer") and pick and any(items[x]["c"] for x in pick) and phase == 1: continue
                        if isds(it) and sum(isds(items[x]) for x in pick) >= it.get("nds", 1) and phase == 1: continue
                        pick.append(i); where[i] = g; cap -= it["c"]
            key = lambda i: 0 if items[i]["c"] == 0 else 1 if isds(items[i]) else 2 if items[i]["t"].startswith("buffer") else 3
            for i in sorted(pick, key=key):
                a(items[i]["t"].replace("@VM", f"s_waitcnt vmcnt({nvm})"))
                nvm += items[i]["t"].startswith("buffer")
                if isds(items[i]): order.append(items[i].get("need", 999))
            self.over += max(0, -cap)
        return [it["t"] for i, it in enumerate(items) if i not in where]

    def e_items(self, buf, lst, lo, hi):
        items, idx = [], {}
        for it in lst:
            kind, qb, j = it
            d = dict(t=self.etext(buf, it), c=8 if kind == "e" else 4)
            if kind == "e": d["lo"] = lo(qb, j); d["hi"] = hi(qb) - 2 - (7 - j)
            else:
                need = [("e", qb, j)] if kind == "a" else [("e", qb, 2 * j), ("e", qb, 2 * j + 1)]
                d["dep"] = [idx[x] for x in need if x in idx]
                if kind == "c": d["hi"] = hi(qb) - (3 - j) // 2
            idx[it] = len(items); items.append(d)
        return items

    def etext(self, buf, it):
        kind, qb, j = it
        s = self.S(buf, qb)
        if kind == "e": return f"v_exp_f32 {vr(s+j)}, {vr(s+j)}"
        if kind == "a": return f"v_add_f32 {vr(V_L+qb)}, {vr(V_L+qb)}, {vr(s+j)}"
        return f"v_cvt_pk_bf16_f32 {vr(self.P(buf, qb, j))}, {vr(s+2*j)}, {vr(s+2*j+1)}"

    def period(self, p, qk=True, pv=True, e_old=True, e_new=True, kread=True, vread=True, dma=True, extra={}, dsub=None, ksub=None, vm=9, halves=(0, 1), inc=None):
        a = self.a
        bn, bo = (p + 1) & 1, p & 1
        mf = self.qk_mfmas(bn) + self.pv_mfmas(bo, czero=(p == 0))
        kr, vrd = self.k_reads((p + 2) % RING), self.v_reads(p % RING)
        slot = p % RING
        n = 76
        sc = [[] for _ in range(n)]
        dgs = [g for g in range(n) if any(e[0] == "D" for e in self.gaps[g])]
        if dma:
            for j, g in enumerate(dgs):
                if j % 4 == 0: sc[g - 1].append(f"s_add_u32 m0, {sr(S_LB)}, {slot*SLOT + 4096*(j//4)}")
            sc[dgs[-1] + 1].append(f"s_add_u32 {sr(S_TOFF)}, {sr(S_TOFF)}, {inc or 4*TILE}")
        w = []
        if kread: w.append(f"vmcnt({vm})")
        if pv: w.append("lgkmcnt(0)")
        if w: sc[39].append("s_waitcnt " + " ".join(w))
        if kread: sc[75].append("s_waitcnt lgkmcnt(0)")
        for half in halves:
            rng = range(0, 40) if half == 0 else range(40, 76)
            on = qk if half == 0 else pv
            if not on:
                ds, mem, val, post = [], [], [], []
                for g in rng:
                    for s_ in sc[g]:
                        (post if s_.startswith("s_waitcnt") else mem).append(s_)
                    if g in extra: mem.append(extra[g])
                    for kind, d, new in self.gaps[g]:
                        if kind == "V" and vread: ds.append(vrd[d])
                        elif kind == "K" and kread: ds.append(kr[d])
                        elif kind == "D" and dma: mem.append(f"buffer_load_dwordx4 {vr(V_DMA + d//4)}, {sr(S_XA,4)}, {sr(S_TOFF)} offen offset:{1024*(d%4)} lds")
                        elif kind == "E" and ((new and e_new) or (not new and e_old)): val.append((d, self.etext(bn if new else bo, d)))
                if half == 1: a("s_nop 3")
                seq, pend = [], list(val)
                while pend:
                    k = 0
                    if seq and seq[-1][0][0] == "e":
                        le = seq[-1][0]
                        dep = lambda it: it[0][1] == le[1] and ((it[0][0] == "a" and it[0][2] == le[2]) or (it[0][0] == "c" and it[0][2] == le[2] // 2))
                        have = {x[0] for x in seq}
                        ok = lambda it: it[0][0] == "e" or (("e", it[0][1], it[0][2]) in have if it[0][0] == "a" else (("e", it[0][1], 2*it[0][2]+1) in have)) or not any(x[0][0] == "e" and x[0][1] == it[0][1] and (x[0][2] == it[0][2] if it[0][0] == "a" else x[0][2] // 2 == it[0][2]) for x in pend)
                        while k < len(pend) and (dep(pend[k]) or not ok(pend[k])): k += 1
                        if k == len(pend): seq.append((("n", 0, 0), "s_nop 0")); k = 0
                    seq.append(pend.pop(k))
                step = max(1, len(seq) // (len(mem) + len(ds) + 1))
                allm = ds + mem
                for x in allm[:6]: a(x)
                allm = allm[6:]
                for i_, (d, t_) in enumerate(seq):
                    a(t_)
                    if allm and i_ % step == step - 1:
                        x = allm.pop(0); a(x)
                        if x.startswith("s_add_u32 m0"): a("s_nop 0")
                for x in allm:
                    a(x)
                    if x.startswith("s_add_u32 m0"): a("s_nop 0")
                for x in post: a(x)
                if half == 0: a("s_nop 1")
                continue
            for g in rng:
                a(mf[g])
                for s_ in sc[g]: a(s_)
                if g in extra: a(extra[g])
                for kind, d, new in self.gaps[g]:
                    if kind == "V":
                        if vread: a(vrd[d])
                    elif kind == "K":
                        if kread: a(kr[d])
                        elif ksub: a(ksub.pop(0))
                    elif kind == "D":
                        if dma: a(f"buffer_load_dwordx4 {vr(V_DMA + d//4)}, {sr(S_XA,4)}, {sr(S_TOFF)} offen offset:{1024*(d%4)} lds")
                        elif dsub: a(dsub.pop(0))
                    elif (new and e_new) or (not new and e_old):
                        a(self.etext(bn if new else bo, d))

    MK, VO, VO8, GA, VS0, VS0R, VDW, VLW, VL8, VST, VPL = 232, 236, 9, 238, 250, 251, 244, 245, 246, 247, 248
    NB, PT, E_U, E_G, RS3, E_COL, RS1, RS2, MP1 = 3, 4, 5, 6, 7, 43, 36, 37, 38
    G0, GM, GP, U, DWT = 16, 26, 36, 80, (90, 252, 96, 100, 112, 116, 104, 94)
    XRS = (192, 196, 46)
    frag = staticmethod(lambda f, b: [(f, b + 4 * s) for s in range(5)])
    WD = [[("a", 216 + 4 * s) for s in range(5)], [("a", 234 + 4 * s) for s in range(5)], [("v", 208 + 4 * s) for s in range(5)]]
    WO = [[("a", 4 * s) for s in range(5)], [("a", 18 + 4 * s) for s in range(5)], [("a", 36), ("a", 40), ("a", 44), ("a", 48), ("a", 252)]]
    X1B = 98304
    X2O = L_SP - X1B
    L_L = L_SP + 9216

    def epi_setup(self):
        a = self.a
        T = S_T
        NB, PT, VO, GA = self.NB, self.PT, self.VO, self.GA
        r, g4, x, y, big, r0 = 52, 53, 54, 55, 56, 57
        a(f"""s_lshr_b32 {sr(NB)}, {sr(S_W)}, 1
        s_and_b32 {sr(PT)}, {sr(S_W)}, 1
        v_and_b32 {vr(r0)}, 15, v0
        v_lshrrev_b32 {vr(g4)}, 4, v0
        v_mul_u32_u24 {vr(x)}, 288, {vr(r0)}
        v_mov_b32 {vr(big)}, 0x40000000
        s_lshl_b32 {sr(T)}, {sr(S_TOWN)}, 1
        s_add_u32 {sr(T)}, {sr(T)}, {sr(NB)}
        s_lshl_b32 {sr(T)}, {sr(T)}, 4
        v_add_u32 {vr(r)}, {sr(T)}, {vr(r0)}
        s_mul_i32 {sr(T+1)}, {sr(S_TOWN)}, {TILE}
        s_mul_i32 {sr(T+2)}, {sr(PT)}, {BLK}
        v_add_u32 {vr(x)}, {sr(T+1)}, {vr(x)}
        s_sub_u32 {sr(T+3)}, {BLK}, {sr(T+2)}
        v_add_u32 {vr(y)}, {sr(T+3)}, {vr(x)}
        v_add_u32 {vr(x)}, {sr(T+2)}, {vr(x)}
        v_lshl_add_u32 {vr(VO)}, {vr(g4)}, 4, {vr(x)}
        v_lshl_add_u32 {vr(VO+1)}, {vr(g4)}, 4, {vr(y)}
        v_lshl_add_u32 {vr(self.VO8)}, {vr(g4)}, 3, {vr(x)}
        s_lshl_b32 {sr(T+3)}, {sr(PT)}, 11
        s_add_u32 {sr(self.E_U)}, {sr(T+3)}, {WS_U}
        s_add_u32 {sr(self.E_G)}, {sr(T+3)}, {WS_G}
        s_sub_u32 {sr(T+3)}, 4096, {sr(T+3)}
        s_lshl_b32 {sr(T)}, {sr(PT)}, 11
        s_add_u32 {sr(T)}, {sr(T)}, {WS_DWF}
        v_lshrrev_b32 {vr(x)}, 2, {vr(r0)}
        v_cmp_eq_u32 vcc, {vr(x)}, {vr(g4)}
        v_lshl_add_u32 {vr(self.VDW)}, {vr(r0)}, 4, {sr(T)}
        s_nop 0
        v_cndmask_b32 {vr(self.VDW)}, {vr(big)}, {vr(self.VDW)}, vcc
        s_lshl_b32 {sr(self.E_COL)}, {sr(S_W)}, 6
        v_lshlrev_b32 {vr(self.VL8)}, 3, v0
        v_add_u32 {vr(self.VL8)}, 4096, {vr(self.VL8)}
        v_add_u32 {vr(self.VST)}, {sr(S_LB)}, {vr(V_DMA)}
        v_add_u32 {vr(self.VST)}, {2*SLOT}, {vr(self.VST)}
        s_xor_b32 {sr(T)}, {sr(NB)}, 1
        v_xor_b32 {vr(x)}, {sr(T)}, {vr(g4)}
        v_lshl_add_u32 {vr(x)}, {vr(x)}, 4, {vr(r0)}
        s_lshl_b32 {sr(T)}, {sr(S_W)}, 2
        s_add_u32 {sr(T)}, {sr(T)}, {self.L_L}
        v_lshl_add_u32 {vr(self.VLW)}, {vr(x)}, 4, {sr(T)}
        s_sub_u32 {sr(self.MP1)}, 0, {sr(PT)}
        s_mov_b32 {sr(self.MP1+1)}, {sr(self.MP1)}""")
        for k, (d, base) in enumerate(((self.RS1, 3 * SLOT), (self.RS2, 2 * SLOT), (self.RS3, 2 * SLOT))):
            a(f"s_xor_b32 {sr(T)}, {sr(S_W)}, {k+1}\ns_mul_i32 {sr(T)}, {sr(T)}, {TILE}\ns_add_u32 {sr(d)}, {sr(T)}, {base}")
        a(f"""s_mul_i32 {sr(T)}, {sr(S_B)}, 4000
        s_add_u32 {sr(T+1)}, {sr(T)}, 3999
        s_mov_b32 {sr(T+2)}, {BLK}""")
        for k, dr in enumerate((0, -1, 1)):
            m = GA + 2 * k
            if dr: a(f"v_add_u32 {vr(m)}, {dr}, {vr(r)}\nv_cmp_eq_u32 vcc, {sr(T if dr < 0 else T+1)}, {vr(r)}")
            src = m if dr else r
            a(f"""v_lshrrev_b32 {vr(x)}, 4, {vr(src)}
            v_and_b32 {vr(y)}, 15, {vr(src)}
            v_mul_lo_u32 {vr(x)}, {vr(x)}, {sr(T+2)}
            v_lshl_add_u32 {vr(y)}, {vr(g4)}, 4, {vr(y)}
            v_lshl_add_u32 {vr(m)}, {vr(y)}, 4, {vr(x)}
            v_lshl_add_u32 {vr(m+1)}, {vr(y)}, 3, {vr(x)}
            v_add_u32 {vr(m+1)}, {sr(T+3)}, {vr(m+1)}""")
            if dr: a(f"v_cndmask_b32 {vr(m)}, {vr(m)}, {vr(big)}, vcc\nv_cndmask_b32 {vr(m+1)}, {vr(m+1)}, {vr(big)}, vcc")

    def conv_loads(self):
        GA = self.GA
        L = []
        for dst, m, so in ((self.GM, GA + 2, 1), (self.G0, GA, 1), (self.GP, GA + 4, 1), (self.U, GA, 0)):
            for k in range(2): L.append(f"buffer_load_dwordx4 {vr(dst+4*k,4)}, {vr(m)}, {sr(S_WS,4)}, {sr(self.E_U+so)} offen offset:{1024*k}")
            L.append(f"buffer_load_dwordx2 {vr(dst+8,2)}, {vr(m+1)}, {sr(S_WS,4)}, {sr(self.E_U+so)} offen")
        return L

    def rg(self, e, n): return (ar if e[0] == "a" else vr)(e[1], n)

    def w8_loads(self, regs, so):
        return [f"buffer_load_dwordx4 {self.rg(regs[s],4)}, {vr(V_DMA)}, {sr(S_WS,4)}, {sr(so)} offen offset:{1024*s}" for s in range(4)] + \
               [f"buffer_load_dwordx2 {self.rg(regs[4],2)}, {vr(self.VL8)}, {sr(S_WS,4)}, {sr(so)} offen"]

    def w_reads(self, regs, off):
        L = []
        for tt in range(2):
            L += [f"ds_read_b128 {self.rg(regs[tt][s],4)}, {vr(self.VS0)} offset:{off + BLK*tt + 1024*s}" for s in range(4)]
            L.append(f"ds_read_b64 {self.rg(regs[tt][4],2)}, {vr(self.VS0R)} offset:{off + BLK*tt}")
        return L

    def xa_srd(self):
        T = S_T
        return f"""s_mul_i32 {sr(T)}, {sr(S_B)}, {NT}
        s_mul_i32 {sr(T+1)}, {sr(S_H)}, 63
        s_add_u32 {sr(T+1)}, {sr(T+1)}, {sr(T)}
        s_mul_i32 {sr(T+1)}, {sr(T+1)}, {TILE}
        s_add_u32 {sr(S_XA)}, {sr(S_WS)}, {sr(T+1)}
        s_addc_u32 {sr(S_XA+1)}, {sr(S_WS+1)}, 0
        s_sub_u32 {sr(T+2)}, 63, {sr(S_H)}
        s_mul_i32 {sr(S_XA+2)}, {sr(T+2)}, {TILE}
        s_mov_b32 {sr(S_XA+3)}, 0x20000"""

    def rest(self):
        a, o = self.a, self.o
        T = S_T
        VPL = self.VPL
        self.plan()
        self.head()
        self.stamp("loop")
        if o.get("echo") and o["echo"][0] == "skew":
            a(f"s_waitcnt lgkmcnt(0)\ns_mov_b64 exec, 1\ns_not_b32 s98, {sr(S_ST)}\nv_mov_b32 v226, s98\nv_mov_b32 v227, 4\ns_cmp_lg_u32 {sr(S_W)}, 0\ns_cbranch_scc1 L_sk\nbuffer_atomic_umax v226, v227, {sr(S_DB,4)}, 0 offen sc1\ns_waitcnt vmcnt(0)\nL_sk:\ns_mov_b64 exec, -1\ns_nop 3")
        nh = o.get("ugh", 2)
        ex = {2 + 12 * k: x for k, x in enumerate(self.ugs[nh:])}
        self.period(0, vm=9 + 5, extra=ex)
        self.stamp("l0")
        a.raw(".p2align 6")
        a.label("L_loop")
        self.stamp("q1")
        for p in range(1, 5):
            ex = {}
            vm = 9
            if p == 1: ex = {73: f"s_cmp_eq_u32 {sr(S_CNT)}, 3"}
            if p == 2: ex = {70: f"buffer_load_dwordx4 v[252:255], {vr(VPL)}, {sr(S_DB,4)}, 0 offen sc1"}
            if p == 3:
                ex = {73: f"s_cmp_eq_u32 {sr(S_CNT)}, 2", 45: f"ds_add_rtn_u32 v230, v231, {vr(VPL+1)}"}
            if p == 4:
                self.stamp("la0")
                a(f"s_cbranch_scc1 L_last")
                a.label("L_lastb")
                self.stamp("la1")
                ex = {72: f"s_add_u32 {sr(S_CNT)}, {sr(S_CNT)}, 1", 1: "v_cmp_eq_u32 vcc, 3, v230", 3: f"v_cndmask_b32 v230, v231, {vr(VPL)}, vcc",
                      6: f"buffer_atomic_add {vr(VPL+1)}, v230, {sr(S_DB,4)}, 0 offen sc1"}
            self.period(p, extra=ex, inc=sr(S_INC) if p == 4 else None)
            if p == 1: a("s_cbranch_scc1 L_p14")
        a("s_branch L_loop")
        a.label("L_p14")
        SW = 66
        self.stamp("p14")
        a(f"s_cmp_eq_u32 {sr(S_DUM)}, 4\ns_cbranch_scc0 L_dummyb")
        for i in range(16): a(f"v_mov_b32 {vr(V_CI+i)}, 0xff800000")
        a("s_nop 1")
        a.label("L_dummyb")
        ex = dict(zip([2, 6, 8, 12, 14, 18, 20, 24, 26, 30], self.w_reads(self.WD, 0)))
        ex[0] = "s_waitcnt vmcnt(9)"
        ex.update(dict(zip([4, 10, 16, 22, 28], self.w8_loads(self.WD[2], SW))))
        self.period(14, dma=False, kread=False, extra=ex, halves=(0,))
        self.stamp("tail")
        self.tail(SW)
        self.stamp("end")
        self.epilogue(SW)

    def rare(self):
        a = self.a
        T = S_T
        SW = 66
        a.label("L_last")
        a(f"s_waitcnt vmcnt(9)\ns_mov_b32 {sr(T+2)}, 0")
        a.label("L_late")
        a(f"""v_readfirstlane_b32 {sr(T)}, v252
        v_readfirstlane_b32 {sr(T+1)}, v254
        s_add_u32 {sr(S_XA)}, {sr(S_WS)}, {WS_WF}
        s_addc_u32 {sr(S_XA+1)}, {sr(S_WS+1)}, 0
        s_mov_b32 {sr(S_XA+2)}, {18*BLK}
        s_add_u32 {sr(S_TOFF)}, {sr(S_LB)}, {9*BLK}
        s_mov_b32 {sr(S_INC)}, {-9*BLK}
        s_lshr_b32 {sr(SW)}, {sr(S_W)}, 1
        s_lshl_b32 {sr(SW)}, {sr(SW)}, 30
        s_add_u32 {sr(SW+1)}, {sr(SW)}, {WS_WF + 8*BLK}
        s_add_u32 {sr(SW)}, {sr(SW)}, {WS_WF + 17*BLK}
        s_cmp_ge_u32 {sr(T)}, 126
        s_cselect_b32 {sr(T+3)}, {sr(T+1)}, 0
        s_cmp_ge_u32 {sr(T+3)}, 2
        s_cbranch_scc1 L_lastb
        buffer_load_dwordx4 v[252:255], {vr(self.VPL)}, {sr(S_DB,4)}, 0 offen sc1
        s_add_u32 {sr(T+2)}, {sr(T+2)}, 1
        s_waitcnt vmcnt(0)
        s_cmp_lt_u32 {sr(T+2)}, 0x40000
        s_cbranch_scc1 L_late
        s_branch L_lastb""")

    units = [(0, 0), (0, 1), (1, 0), (1, 1), (2, 0)]
    V15 = V_K

    def stage(self, slot, T):
        src = ar(A_O + 36 * slot + 4 * T, 4)
        if slot == 0: return f"ds_write_b128 {vr(self.VST)}, {src} offset:{1024*T}"
        if slot == 2: return f"ds_write_b128 {vr(self.VS0)}, {src} offset:{1024*T}"
        if T < 4: return f"ds_write_b128 {vr(self.VST)}, {src} offset:{SLOT + 1024*T + (4096 if slot == 3 else 0)}"
        return f"{'s_not_b64' if slot == 1 else 's_mov_b64'} exec, {sr(self.MP1,2)}\nds_write_b128 {vr(self.VST)}, {src} offset:{SLOT + 8192}\ns_mov_b64 exec, -1"

    def dwf(self, k, i):
        f = 5 * k + i
        return self.DWT[f >> 1] + 2 * (f & 1)

    def tail(self, SW):
        a, o = self.a, self.o
        mf, pos, start = [], {}, {}
        for t_, qb in ((14, 0), (14, 1), (15, 0), (15, 1), (14, 2), (15, 2), (14, 3), (15, 3)):
            start[t_, qb] = len(mf)
            for Tt in ([0, 1, 2, 3, 8, 4, 5, 6, 7] if qb & 1 else range(9)):
                o_ = ar(A_O + 36 * qb + 4 * Tt, 4)
                pos[t_, qb, Tt] = len(mf)
                mf.append(f"v_mfma_f32_16x16x32_bf16 {o_}, {vr((V_V if t_ == 14 else self.V15)+4*Tt,4)}, {vr(self.P(t_ & 1,qb),4)}, {o_}")
        lst = []
        for qb in range(4):
            for j in range(8):
                lst.append(("e", qb, j))
                if j & 1: lst.append(("c", qb, j // 2))
        lst += [("a", qb, j) for qb in range(4) for j in range(8)]
        items = self.e_items(1, lst, lambda qb, j: 0 if j < 4 else 1, lambda qb: start[15, qb] - 2)
        for it in items[48:]: it["lo"] = o.get("alo", 26)
        v15 = [dict(t=x, c=4, need=pos[15, 0, i // 2], hi=pos[15, 0, i // 2] - o.get("vlead", 7), lo=0 if i < 16 else 2) for i, x in enumerate(self.v_reads(3, self.V15))]
        wr = []
        nown = o.get("nown", 4)
        self.own = [(2, T_) for T_ in range(nown, 9)] + [(3, T_) for T_ in (0, 1, 2, 3, 8)]
        g = o.get("w0", 23)
        for k, (sl, Tt) in enumerate([(0, T_) for T_ in range(9)] + [(1, T_) for T_ in (0, 1, 2, 3, 8)] + [(2, T_) for T_ in range(nown)]):
            g = max(pos[15, sl, Tt] + 5, g)
            wr.append(dict(t=self.stage(sl, Tt), c=o.get("wc", 20), lo=int(g), hi=int(g)) if g < 72 else dict(t=self.stage(sl, Tt), c=4, lo=999))
            g += o.get("wsp", 2.7)
        n0 = len(items) + len(v15)
        wo = []
        for i, x in enumerate(self.w_reads(self.WO, SLOT)):
            r0 = self.WO[i // 5][i % 5][1]
            wo.append(dict(t=("@VM\n" if i == 0 else "") + x, c=4, dep=sorted({n0 + r0 // 4, n0 + (r0 + 3) // 4 if (r0 + 3) // 4 < 9 else n0 + 8}), lo=o.get("wo0", 40) + 3 * i, hi=o.get("wo0", 40) + 3 * i + 2))
        cl = self.conv_loads()
        dl = [f"buffer_load_dwordx4 {vr(self.DWT[r],4)}, {vr(self.VDW)}, {sr(S_WS,4)}, 0 offen offset:{256*r}" for r in range(7)]
        dl.append(f"buffer_load_dwordx2 {vr(self.DWT[7],2)}, {vr(self.VDW)}, {sr(S_WS,4)}, 0 offen offset:{256*7}")
        fr = {96: 9, 100: 18, 104: 45, 112: 27, 116: 36}
        vm = [(x, 0) for x in cl] + [(x, fr.get(self.DWT[r], 0)) for r, x in enumerate(dl)]
        used = {w["lo"] for w in wr}
        vi, g = [], o.get("m0", 24)
        for x, lo in vm:
            g = max(g, lo)
            while int(g) in used: g += 1
            vi.append(dict(t=x, c=8, lo=int(g), hi=int(g)) if g < 72 else dict(t=x, c=8, lo=999))
            g += o.get("msp", 2.2)
        left = self.pack(mf, items + v15 + wr + wo + vi)
        self.done_a = {(qb, j) for qb in range(4) for j in range(8) if self.etext(1, ("a", qb, j)) not in left}
        left = [x for x in left if not x.startswith("v_add_f32")]
        print("tail overflow", self.over, "left", len(left), "adds done", len(self.done_a))
        self.left = left

    def epilogue(self, SW):
        a, o = self.a, self.o
        T = S_T
        p = lambda r: vr(r, 2)
        NB, PT, MK, VO, units, MP1 = self.NB, self.PT, self.MK, self.VO, self.units, self.MP1
        U, GM, G0, GP = self.U, self.GM, self.G0, self.GP
        X2O = self.X2O
        R1, R2, R3 = 230, 231, 249
        LA, LS, M = 10, 226, 48

        def weave(main, fill, per):
            fill = list(fill)
            for x in main:
                a(x)
                for _ in range(per):
                    if fill: a(fill.pop(0))
            return fill
        for x in self.left:
            if not x.startswith("buffer"): a(x)
        lv = [x for x in self.left if x.startswith("buffer")]
        lv += [f"buffer_load_dwordx4 {vr(self.XRS[j],4)}, {vr(VO+j)}, {sr(S_X,4)}, {sr(self.E_COL)} offen" for j in range(2)]
        lv.append(f"buffer_load_dwordx2 {vr(self.XRS[2],2)}, {vr(self.VO8)}, {sr(S_X,4)}, 0 offen offset:256")
        S1 = lambda qb, j: self.S(1, qb, j)
        rounds = [[] for _ in range(6)]
        for qb in range(4):
            rem = [j for j in range(8) if (qb, j) not in self.done_a]
            prs = [j for j in rem if j % 2 == 0 and j + 1 in rem]
            sing = [j for j in rem if (j & ~1) not in prs]
            r_ = 0
            while len(prs) > 1:
                for x, y in zip(prs[0::2], prs[1::2]): rounds[r_].append(f"v_pk_add_f32 {p(S1(qb,x))}, {p(S1(qb,x))}, {p(S1(qb,y))}")
                prs = prs[0::2]; r_ += 1
            for k_, j in enumerate(sing + ([prs[0], prs[0] + 1] if prs else [])): rounds[min(5, max(r_, 2) + k_)].append(f"v_add_f32 {vr(V_L+qb)}, {vr(V_L+qb)}, {vr(S1(qb,j))}")
        for r_ in rounds:
            for x in r_: a(x)
        a(f"v_add_u32 {vr(R1)}, {sr(self.RS1)}, {vr(V_DMA)}\nv_add_u32 {vr(R2)}, {sr(self.RS2)}, {vr(V_DMA)}")
        self.treduce(V_L)
        a(f"ds_write_b32 {vr(self.VLW)}, {vr(V_L)}")
        acc = lambda slot: [f"v_accvgpr_read_b32 {vr(M+i)}, {ar(A_O+36*slot+16+i)}" for i in range(20)]
        a(f"""v_add_u32 {vr(R3)}, {sr(self.RS3)}, {vr(V_DMA)}
        v_add_u32 {vr(LA+1)}, {self.L_L}, {vr(V_DMA)}
        v_and_b32 {vr(LS+1)}, 0xf0, {vr(V_DMA)}
        s_lshl_b32 {sr(T)}, {sr(NB)}, 8
        s_add_u32 {sr(T+8)}, {sr(T)}, {self.L_L}
        v_add_u32 {vr(LS)}, {sr(T+8)}, {vr(LS+1)}""")
        for x in lv: a(x)
        a(f"""s_xor_b32 {sr(T)}, s2, 1
        s_mul_i32 {sr(T)}, {sr(T)}, {IB}
        s_mul_i32 {sr(T+9)}, {sr(NB)}, 5120
        s_add_u32 {sr(T+9)}, {sr(T+9)}, {WS_IB}
        s_add_u32 {sr(T)}, {sr(T)}, {sr(T+9)}
        s_lshl_b32 {sr(T+10)}, {sr(PT)}, 11
        s_add_u32 {sr(T+1)}, {sr(T+10)}, {sr(T)}
        s_add_u32 {sr(T)}, {sr(T)}, 4096
        s_cmp_eq_u32 {sr(PT)}, 0
        s_cselect_b32 {sr(T)}, 0x40000000, {sr(T)}
        s_mov_b32 {sr(T+2)}, {f32(2.0**100)}
        s_mul_i32 {sr(T+12)}, s2, {IB}
        s_add_u32 {sr(T+12)}, {sr(T+12)}, {sr(T+9)}
        s_add_u32 {sr(T+13)}, {sr(T+12)}, {sr(T+10)}
        s_waitcnt lgkmcnt(0)
        s_barrier""")
        self.stamp("B1")

        def rd(X, offs):
            L = [[f"ds_read_b128 {vr(X[k][i],4)}, {vr((R1, R2, R3)[k])} offset:{offs[k] + 1024*i}" for i in range(4)] for k in range(3)]
            L8 = [f"ds_read_b128 {vr(X[k][4],4)}, {vr((R1, R2, R3)[k])} offset:8192" for k in range(3)]
            return L, L8

        def adds(X, k, rng):
            return [f"v_pk_add_f32 {p(M+4*i+2*h)}, {p(M+4*i+2*h)}, {p(X[k][i]+2*h)}" for i in rng for h in range(2)]
        X = [[128, 132, 136, 140, 144], [148, 152, 156, 160, 68], [72, 76, 200, 204, 108]]
        PK = 128
        L, L8 = rd(X, (0, 4096, 0))
        a(f"ds_read_b128 {vr(LA,4)}, {vr(LA+1)}\nds_read_b128 {vr(LS,4)}, {vr(LS)}")
        rest = weave(L[0] + L[1] + L[2], acc(1), 2)
        assert not rest
        a(f"s_mov_b64 exec, {sr(MP1,2)}")
        for x in L8: a(x)
        a(f"""s_mov_b64 exec, -1
        s_waitcnt lgkmcnt(11)
        v_add_f32 {vr(LA)}, {vr(LA)}, {vr(LA+1)}
        v_add_f32 {vr(LA+2)}, {vr(LA+2)}, {vr(LA+3)}
        v_add_f32 {vr(LS)}, {vr(LS)}, {vr(LS+1)}
        v_add_f32 {vr(LA)}, {vr(LA)}, {vr(LA+2)}
        v_add_f32 {vr(LS+2)}, {vr(LS+2)}, {vr(LS+3)}
        v_cmp_nge_f32 vcc, {sr(T+2)}, {vr(LA)}""")
        for x in adds(X, 0, range(4)): a(x)
        a(f"""s_cmp_lg_u64 vcc, 0
        s_cselect_b32 {sr(T+2)}, 1, 0
        s_andn2_b32 {sr(T+2)}, {sr(T+2)}, {sr(S_REDO)}
        s_cbranch_scc1 L_fallback
        v_add_f32 {vr(PK+10)}, {vr(LS)}, {vr(LS+2)}
        v_mov_b32 {vr(PK+11)}, {vr(MK+1)}
        s_waitcnt lgkmcnt(7)""")
        for x in adds(X, 1, range(4)): a(x)
        a("s_waitcnt lgkmcnt(3)")
        a3 = adds(X, 2, range(4))
        cv = [f"v_cvt_pk_bf16_f32 {vr(PK+i)}, {vr(M+2*i)}, {vr(M+2*i+1)}" for i in range(10)]
        for x in a3[:4] + a3[4:6] + cv[:4]: a(x)
        a(f"buffer_store_dwordx4 {vr(PK,4)}, {vr(V_DMA)}, {sr(S_WS,4)}, {sr(T+1)} offen sc1")
        for x in a3[6:] + cv[4:8]: a(x)
        a(f"buffer_store_dwordx4 {vr(PK+4,4)}, {vr(V_DMA)}, {sr(S_WS,4)}, {sr(T+1)} offen offset:1024 sc1")
        a("s_waitcnt lgkmcnt(0)")
        for kk in range(3):
            for x in adds(X, kk, [4]): a(x)
        for x in cv[8:]: a(x)
        a(f"buffer_store_dwordx4 {vr(PK+8,4)}, {vr(V_DMA)}, {sr(S_WS,4)}, {sr(T)} offen sc1")
        self.stamp("sent")
        a(f"s_cmp_eq_u32 {sr(S_VAL)}, 0\ns_cbranch_scc1 L_fin")
        C, UP = 140, 68
        IN = [(200, 204, 226), (164, 168, 252), (192, 196, 172)]
        VXW, VXR, VF, LO = 78, 79, 10, 36
        wr = [self.stage(*e) for e in self.own]

        def inbox(k):
            return [f"buffer_load_dwordx4 {vr(IN[k][0],4)}, {vr(V_DMA)}, {sr(S_WS,4)}, {sr(T+13)} offen sc1",
                    f"buffer_load_dwordx4 {vr(IN[k][1],4)}, {vr(V_DMA)}, {sr(S_WS,4)}, {sr(T+13)} offen offset:1024 sc1",
                    f"buffer_load_dwordx4 {vr(IN[k][2],4)}, {vr(V_DMA+1)}, {sr(S_WS,4)}, {sr(T+12)} offen sc1"]
        for x in inbox(0): a(x)
        n0 = len(a.lines)
        a(f"""s_lshl_b32 {sr(T)}, {sr(NB)}, 12
        s_add_u32 {sr(T)}, {sr(T)}, {sr(T+10)}
        s_add_u32 {sr(T)}, {sr(T)}, {self.X1B}
        v_add_u32 {vr(VXW)}, {sr(T)}, {vr(V_DMA)}
        s_lshl_b32 {sr(T)}, {sr(NB)}, 9
        s_add_u32 {sr(T)}, {sr(T)}, {self.X1B + 4096}
        v_add_u32 {vr(VXR)}, {sr(T)}, {vr(self.VL8)}
        s_lshl_b32 {sr(T)}, {sr(PT)}, 12
        s_add_u32 {sr(T)}, {sr(T)}, {self.X1B}
        v_add_u32 {vr(VF)}, {sr(T)}, {vr(V_DMA)}
        v_xor_b32 {vr(VF+1)}, 4096, {vr(VF)}
        s_lshl_b32 {sr(T)}, {sr(PT)}, 9
        s_add_u32 {sr(T)}, {sr(T)}, {self.X1B + 4096}
        v_add_u32 {vr(VF+2)}, {sr(T)}, {vr(self.VL8)}
        v_xor_b32 {vr(VF+3)}, 512, {vr(VF+2)}
        v_subrev_u32 {vr(R2)}, {2*SLOT}, {vr(R2)}
        v_subrev_u32 {vr(R3)}, {2*SLOT}, {vr(R3)}
        s_waitcnt vmcnt(9)""")
        self.stamp("cv0")
        un = [f"v_lshlrev_b32 {vr(M+2*i)}, 16, {vr(U+i)}\nv_and_b32 {vr(M+1+2*i)}, 0xffff0000, {vr(U+i)}" for i in range(10)]
        w8 = self.w8_loads(self.WO[2], SW + 1)
        for k, src in enumerate((GM, G0, GP)):
            for i in range(5):
                d = vr(C + 4 * i, 4)
                a(f"v_mfma_f32_16x16x16_bf16 {d}, {vr(self.dwf(k, i),2)}, {vr(src+2*i,2)}, {'0' if k == 0 else d}")
                a(w8.pop(0) if i in (0, 3) and w8 else un.pop(0))
        self.stamp("cv1")
        a(f"v_and_b32 {vr(LO+1)}, 0xf0, {vr(V_DMA)}\nv_add_u32 {vr(LO)}, {sr(T+8)}, {vr(LO+1)}\ns_nop 1")
        for i in range(10): a(f"v_pk_mul_f32 {p(C+2*i)}, {p(C+2*i)}, {p(M+2*i)}")
        for i in range(10):
            a(f"v_cvt_pk_bf16_f32 {vr(UP+i)}, {vr(C+2*i)}, {vr(C+2*i+1)}")
        body = a.lines[n0:]; del a.lines[n0:]
        step = max(1, len(body) // len(wr))
        for i, l in enumerate(body):
            if i % o.get("wstep", step) == 0 and wr: a(wr.pop(0))
            a.lines.append(l)
        for x in wr: a(x)
        ac = acc(3)
        a(f"ds_write_b128 {vr(VXW)}, {vr(UP,4)} offset:{X2O}")
        for x in ac[:6]: a(x)
        a(f"ds_write_b128 {vr(VXW)}, {vr(UP+4,4)} offset:{X2O + 1024}")
        for x in ac[6:12]: a(x)
        a(f"""s_mov_b64 exec, {sr(MP1,2)}
        ds_write_b64 {vr(VXR)}, {vr(UP+8,2)} offset:{X2O}
        s_mov_b64 exec, -1""")
        self.stamp("x2")
        for x in inbox(1): a(x)
        for x in ac[12:]: a(x)
        a("s_waitcnt lgkmcnt(0)\ns_barrier")
        self.stamp("B2")
        X = [[128, 132, 136, 140, 144], [148, 152, 156, 160, 188], [16, 20, 24, 28, 32]]
        L, L8 = rd(X, (4096, 4096, 0))
        BU = [[("v", r) for r in (100, 104, 108, 112, 116)], [("v", r) for r in (118, 122, 180, 184, 126)]]
        BO = [self.frag("v", 128), self.frag("v", 146)]
        AB = 80

        def bfrags(dst, off):
            out = []
            for s in range(5):
                for j in range(2):
                    out.append(f"ds_read_b128 {self.rg(dst[j][s],4)}, {vr(VF+j)} offset:{off + 1024*s}" if s < 4 else f"ds_read_b64 {self.rg(dst[j][4],2)}, {vr(VF+2+j)} offset:{off}")
            return out

        def fg(W, Bf):
            out = []
            for s in range(5):
                for u, (tt, j) in enumerate(units):
                    d = vr(AB + 4 * u, 4)
                    if s < 4: out.append(f"v_mfma_f32_16x16x32_bf16 {d}, {self.rg(W[tt][s],4)}, {self.rg(Bf[j][s],4)}, {d}")
                    else: out.append(f"v_mfma_f32_16x16x16_bf16 {d}, {self.rg(W[tt][4],2)}, {self.rg(Bf[j][4],2)}, {d}")
            return out
        xu = []
        for u, (tt, j) in enumerate(units):
            for h in range(2):
                x = self.XRS[j] + 2 * tt + h if tt < 2 else self.XRS[2] + h
                xu += [f"v_lshlrev_b32 {vr(AB+4*u+2*h)}, 16, {vr(x)}", f"v_and_b32 {vr(AB+1+4*u+2*h)}, 0xffff0000, {vr(x)}"]
        a("s_waitcnt vmcnt(14)")
        weave(bfrags(BU, X2O), xu, 2)
        pl = lambda k, i, e: f"v_add_f32 {vr(M+4*i+e)}, {vr(M+4*i+e)}, {vr(X[k][i]+e)}"
        ds = L[0] + L[1] + L[2] + [f"s_not_b64 exec, {sr(MP1,2)}\n" + "\n".join(L8) + "\ns_mov_b64 exec, -1", f"ds_read_b128 {vr(LO,4)}, {vr(LO)} offset:512"]
        nis = [1] * 12 + [3, 1]
        gap = [[] for _ in range(25)]
        tot = [10]
        for g in range(25): tot.append(tot[-1] + (nis[g] if g < 14 else 0))
        A0 = [pl(0, i, e) for i in range(4) for e in range(4)]
        A1 = [pl(1, i, e) for i in range(4) for e in range(4)]
        ib = inbox(2)
        for g, m in enumerate(fg(self.WD, BU)):
            if g % 5 == 0: a(f"s_waitcnt lgkmcnt({min(15, tot[g] - 2 * (g // 5 + 1))})")
            a(m)
            if g == 8: a(f"s_waitcnt lgkmcnt({tot[g] - 14})")
            if g == 16: a(f"s_waitcnt lgkmcnt({tot[g] - 18})")
            if g < 14: a(ds[g])
            if 8 <= g < 14: a(A0.pop(0))
            elif g in (14, 18, 22): a(ib.pop(0))
            elif g >= 14:
                for _ in range(2): a(A0.pop(0) if A0 else A1.pop(0))
        assert not A0 and len(A1) % 2 == 0
        n1 = 16 - len(A1)
        for e in range(n1, 16, 2): a(f"v_pk_add_f32 {p(M+e)}, {p(M+e)}, {p(X[1][e//4]+e%4)}")
        a("s_waitcnt lgkmcnt(0)")
        for x in adds(X, 2, range(4)): a(x)
        a(f"v_add_f32 {vr(LO)}, {vr(LO)}, {vr(LO+1)}\nv_add_f32 {vr(LO+2)}, {vr(LO+2)}, {vr(LO+3)}")
        for kk in range(3):
            for x in adds(X, kk, [4]): a(x)
        a(f"s_mov_b32 {sr(T+2)}, 0\nv_add_f32 {vr(LO)}, {vr(LO)}, {vr(LO+2)}")
        self.stamp("own")
        w, PU = 40, 128
        mo = MK + 3

        def chk(k):
            r = [IN[k][q] + i for q in range(3) for i in range(4)]
            c = [f"v_max3_u32 v46, {vr(r[0])}, {vr(r[1])}, {vr(r[2])}", f"v_max3_u32 v47, {vr(r[3])}, {vr(r[4])}, {vr(r[5])}"]
            for q in range(3): c.append(f"v_max3_u32 v{46+(q&1)}, v{46+(q&1)}, {vr(r[6+2*q])}, {vr(r[7+2*q])}")
            return c + ["v_max_u32 v46, v46, v47", "v_cmp_eq_u32 vcc, -1, v46"]

        def take(k, with_chk):
            r = [IN[k][q] + i for q in range(3) for i in range(4)]
            lp_, mp = r[10], r[11]
            wt = [f"v_min_f32 {vr(w)}, {vr(mo)}, {vr(mp)}", f"v_sub_f32 {vr(w+2)}, {vr(w)}, {vr(mp)}", f"v_sub_f32 {vr(w)}, {vr(w)}, {vr(mo)}",
                  f"v_exp_f32 {vr(w+2)}, {vr(w+2)}", f"v_exp_f32 {vr(w)}, {vr(w)}", f"v_mul_f32 {vr(w+4)}, {vr(w+2)}, {vr(lp_)}",
                  f"v_fmac_f32 {vr(w+4)}, {vr(w)}, {vr(LO)}", f"v_rcp_f32 {vr(w+4)}, {vr(w+4)}", f"v_mul_f32 {vr(w)}, {vr(w)}, {vr(w+4)}",
                  f"v_mul_f32 {vr(w+2)}, {vr(w+2)}, {vr(w+4)}"]
            un = []
            for i in range(10): un += [f"v_lshlrev_b32 {vr(PU+2*i)}, 16, {vr(r[i])}", f"v_and_b32 {vr(PU+1+2*i)}, 0xffff0000, {vr(r[i])}"]
            c = chk(k) if with_chk else []
            for i in range(10):
                a(wt[i])
                if c: a(c.pop(0))
                a(un.pop(0)); a(un.pop(0))
        a("s_waitcnt vmcnt(6)")
        take(0, True)
        a("s_cmp_eq_u64 vcc, 0\ns_cbranch_scc0 L_poll2")
        a.label("L_got")
        self.stamp("got")
        for i in range(10): a(f"v_pk_mul_f32 {p(M+2*i)}, {p(M+2*i)}, {p(w)} op_sel_hi:[1,0]")
        for i in range(10): a(f"v_pk_fma_f32 {p(M+2*i)}, {p(PU+2*i)}, {p(w+2)}, {p(M+2*i)} op_sel_hi:[1,0,1]")
        for i in range(10):
            a(f"v_cvt_pk_bf16_f32 {vr(UP+i)}, {vr(M+2*i)}, {vr(M+2*i+1)}")
            if i == 3: a(f"ds_write_b128 {vr(VXW)}, {vr(UP,4)}")
            if i == 7: a(f"ds_write_b128 {vr(VXW)}, {vr(UP+4,4)} offset:1024")
        a(f"""s_not_b64 exec, {sr(MP1,2)}
        ds_write_b64 {vr(VXR)}, {vr(UP+8,2)}
        s_mov_b64 exec, -1
        s_waitcnt lgkmcnt(0)
        s_barrier""")
        self.stamp("B3")
        for x in bfrags(BO, 0): a(x)
        for g, m in enumerate(fg(self.WO, BO)):
            if g % 5 == 0: a(f"s_waitcnt lgkmcnt({8 - 2 * (g // 5)})" + ("\ns_nop 0" if g == 20 else ""))
            a(m)
        self.stamp("gem")
        a("s_nop 3")
        for j in range(2):
            for tt in range(2):
                u = 2 * tt + j
                for h in range(2): a(f"v_cvt_pk_bf16_f32 {vr(16+4*j+2*tt+h)}, {vr(AB+4*u+2*h)}, {vr(AB+4*u+2*h+1)}")
            a(f"buffer_store_dwordx4 {vr(16+4*j,4)}, {vr(VO+j)}, {sr(S_OUT,4)}, {sr(self.E_COL)} offen")
        a(f"s_cmp_ge_u32 {sr(S_W)}, 2\ns_cbranch_scc1 L_fin")
        for h in range(2): a(f"v_cvt_pk_bf16_f32 {vr(24+h)}, {vr(AB+16+2*h)}, {vr(AB+16+2*h+1)}")
        a(f"buffer_store_dwordx2 v[24:25], {vr(self.VO8)}, {sr(S_OUT,4)}, 0 offen offset:256")
        self.stamp("fin")

        def poll2():
            a.label("L_poll2")
            for k in (1, 2, 0):
                for x in inbox((k + 2) % 3): a(x)
                a("s_waitcnt vmcnt(6)")
                for x in chk(k): a(x)
                a(f"s_add_u32 {sr(T+2)}, {sr(T+2)}, 1\ns_cmp_eq_u64 vcc, 0\ns_cbranch_scc1 L_take{k}")
            a(f"s_cmp_lt_u32 {sr(T+2)}, 0x10000\ns_cbranch_scc1 L_poll2")
            for k in (0, 1, 2):
                a.label(f"L_take{k}")
                take(k, False)
                a("s_branch L_got")
        self.poll2 = poll2

    def fallback(self):
        a = self.a
        T = S_T
        MXR = 208
        a.label("L_fallback")
        a(f"""s_waitcnt vmcnt(0) lgkmcnt(0)
        s_barrier
        s_mov_b32 {sr(S_REDO)}, 1
        s_mov_b32 {sr(S_UG)}, 0x40000000
        {self.xa_srd()}
        s_mov_b32 {sr(S_TOFF)}, {sr(S_LB)}
        s_cmp_eq_u32 {sr(S_DUM)}, 4
        s_cselect_b32 {sr(S_CNT)}, 15, 16""")
        for i in range(4): a(f"v_mov_b32 {vr(MXR+i)}, 0xff800000")
        a.label("L_fb1")
        for g in self.tile_groups(0): a(g)
        a("s_waitcnt vmcnt(0)")
        for x in self.k_reads(0): a(x)
        a("s_waitcnt lgkmcnt(0)")
        for m in self.qk_mfmas(0, czero=True): a(m)
        a("s_nop 7")
        for qb in range(4):
            for i in range(0, 8, 2): a(f"v_max3_f32 {vr(MXR+qb)}, {vr(MXR+qb)}, {vr(self.S(0,qb,i))}, {vr(self.S(0,qb,i+1))}")
        a(f"s_sub_u32 {sr(S_CNT)}, {sr(S_CNT)}, 1\ns_cmp_lg_u32 {sr(S_CNT)}, 0\ns_cbranch_scc1 L_fb1")
        self.greduce([MXR + i for i in range(4)], MXR + 4, "v_max_f32")
        a(f"""v_and_b32 {vr(MXR+4)}, 15, v0
        v_lshlrev_b32 {vr(MXR+4)}, 4, {vr(MXR+4)}
        v_add_u32 {vr(MXR+4)}, {L_SP}, {vr(MXR+4)}
        s_lshl_b32 {sr(T)}, {sr(S_W)}, 2
        s_xor_b32 {sr(T+1)}, {sr(self.NB)}, 1
        v_lshl_add_u32 {vr(MXR+5)}, {sr(self.NB)}, 8, {vr(MXR+4)}
        v_lshl_add_u32 {vr(MXR+4)}, {sr(T+1)}, 8, {vr(MXR+4)}
        v_add_u32 {vr(MXR+6)}, {sr(T)}, {vr(MXR+4)}
        v_add_u32 {vr(MXR+7)}, {sr(T)}, {vr(MXR+5)}""")
        for qb in range(4): a(f"ds_write_b32 {vr(MXR+6+(qb&1))}, {vr(MXR+qb)} offset:{512*(qb>>1)}")
        a("s_waitcnt lgkmcnt(0)\ns_barrier")
        for qb in range(4): a(f"ds_read_b128 {vr(16+4*qb,4)}, {vr(MXR+4+(qb&1))} offset:{512*(qb>>1)}")
        a(f"s_mov_b32 {sr(S_TOFF)}, {sr(S_LB)}")
        for g in self.tile_groups(0) + self.tile_groups(1) + self.tile_groups(2)[:8]: a(g)
        a("s_waitcnt lgkmcnt(0)")
        for qb in range(4):
            r = 16 + 4 * qb
            a(f"v_max_f32 {vr(r)}, {vr(r)}, {vr(r+1)}\nv_max3_f32 {vr(r)}, {vr(r)}, {vr(r+2)}, {vr(r+3)}")
            a(f"v_sub_f32 {vr(self.MK+qb)}, 0, {vr(r)}")
        a("s_waitcnt vmcnt(0)")
        for x in self.k_reads(0, V_V): a(x)
        self.loop_init(False)
        a("s_branch L_go")


if __name__ == "__main__":
    opt = json.loads(sys.argv[2]) if len(sys.argv) > 2 else {}
    g = G(opt)
    txt = g.build()
    if opt.get("align", 1):
        from align import align
        for n2 in (1, 2):
            try:
                txt, st = align(txt, chains=[(1, "L_tr")] * 3 + [(1, "L_tr2"), (n2, "L_tr2")] if opt.get("touch", 1) else None)
                break
            except AssertionError as e:
                if n2 == 2: raise
        print("align: promoted %d, padded %d, left %d" % st)
    txt = txt.replace("\n", "\n; stamps " + json.dumps(g.stnames) + "\n; map %d\n" % g.mp, 1)
    open(sys.argv[1], "w").write(txt)
```

```python
import sys, json, math
from common import Asm, vr, ar, sr, kernel_header, kernel_desc
from lay import *

NAME = "standalone__conformer_family_branchformer__speech_kernel"
NWG = 254
RING = 4
LDS_RING = RING * TILE
LDS_TOTAL = 163840
SLOT = 4 * TILE
L_WQ, L_WK, L_WU = 0, 41984, 86016
L_XX, L_XR = 128000, 144384
L_QX, L_QR = 146432, 0
L_MX = 162816
L_PC = 163836 - 0
L_DUMP = 123904
L_SP = 147456

S_X, S_WS, S_XA, S_DB, S_W1, S_W2, S_OUT, S_DW = 8, 12, 16, 20, 24, 28, 32, 36
S_W, S_B, S_H, S_QB, S_TOFF, S_CNT, S_DUM, S_LB, S_TOWN, S_TSND, S_VAL, S_REDO = range(40, 52)
S_T = 52
S_ST = 76

V_KA, V_VA, V_VR, V_DMA, V_L, V_T = 1, 3, 5, 6, 9, 13
V_S, V_CI, V_P, V_K, V_V = 16, 80, 96, 128, 164
V_HI = 200
V_X = 208
A_O, A_Q, A_F = 0, 144, 216

LOG2E = 1.4426950408889634
import struct
def f32(x): return "0x%08x" % struct.unpack("<I", struct.pack("<f", x))[0]


class BAsm(Asm):
    def __init__(self):
        super().__init__()
        self.bg, self.every, self.cnt, self.skip = [], 0, 0, 0

    def __call__(self, s):
        for l in s.split("\n"):
            l = l.strip()
            if not l: continue
            self.lines.append("    " + l)
            if self.bg and self.every and not l.startswith(("s_nop", "v_mov_b32", "v_exp", "v_rcp", "v_rsq", "v_sqrt", "s_add_u32 m0")):
                self.cnt += 1
                if self.cnt >= self.every:
                    self.cnt = 0
                    self.pop()

    def pop(self):
        for x in self.bg.pop(0).split("\n"): self.lines.append("    " + x)

    def flush(self):
        while self.bg: self.pop()
        self.every = 0


class G:
    def __init__(self, opt):
        self.o = opt
        self.a = BAsm()
        self.nst = 0
        self.fill = []

    def stamp(self, name):
        if self.o.get("stamps"):
            if name in self.o.get("skipst", []): return
            if self.nst >= 13: return
            self.a(f"{'s_memtime' if self.o.get('cyc') else 's_memrealtime'} {sr(S_ST + 2*self.nst, 2)}")
            self.stnames.append(name)
            self.nst += 1

    def srd(self, dst, lo, hi, n):
        self.a(f"s_mov_b32 {sr(dst)}, {sr(lo)}\ns_mov_b32 {sr(dst+1)}, {sr(hi)}\ns_mov_b32 {sr(dst+2)}, {n}\ns_mov_b32 {sr(dst+3)}, 0x20000")

    def greduce(self, regs, tmp, op="v_add_f32"):
        a = self.a
        for sw in ("32", "16"):
            for i, r in enumerate(regs): a(f"v_mov_b32 {vr(tmp+i)}, {vr(r)}")
            if len(regs) < 3: a("s_nop 1" if len(regs) == 1 else "s_nop 0")
            for i, r in enumerate(regs): a(f"v_permlane{sw}_swap_b32 {vr(r)}, {vr(tmp+i)}")
            for i, r in enumerate(regs): a(f"{op} {vr(r)}, {vr(r)}, {vr(tmp+i)}")

    def treduce(self, r, op="v_add_f32"):
        a = self.a
        a(f"v_permlane32_swap_b32 {vr(r)}, {vr(r+2)}\nv_permlane32_swap_b32 {vr(r+1)}, {vr(r+3)}")
        a(f"{op} {vr(r)}, {vr(r)}, {vr(r+2)}\n{op} {vr(r+1)}, {vr(r+1)}, {vr(r+3)}\ns_nop 1")
        a(f"v_permlane16_swap_b32 {vr(r)}, {vr(r+1)}\n{op} {vr(r)}, {vr(r)}, {vr(r+1)}")

    def rbf(self, r):
        self.a(f"v_cvt_pk_bf16_f32 {vr(r)}, {vr(r)}, {vr(r)}\nv_lshlrev_b32 {vr(r)}, 16, {vr(r)}")

    def ln_tail(self, F, out, t, mimic):
        a = self.a
        p = lambda r: vr(r, 2)
        self.greduce([t, t + 1], t + 2)
        a(f"v_mul_f32 {vr(t+2)}, {f32(1.0/144)}, {vr(t)}")
        a(f"v_mul_f32 {vr(t+3)}, {vr(t+2)}, {vr(t+2)}")
        a(f"v_mov_b32 {vr(t+4)}, {f32(1.0/144)}")
        a(f"v_fma_f32 {vr(t)}, {vr(t+1)}, {vr(t+4)}, -{vr(t+3)}")
        a(f"v_max_f32 {vr(t)}, 0, {vr(t)}")
        if mimic:
            self.rbf(t)
            self.rbf(t + 2)
            a(f"v_add_f32 {vr(t)}, {f32(1e-5)}, {vr(t)}")
            self.rbf(t)
            a(f"v_sqrt_f32 {vr(t)}, {vr(t)}\ns_nop 0")
            self.rbf(t)
            a(f"v_rcp_f32 {vr(t)}, {vr(t)}\ns_nop 0")
        else:
            a(f"v_add_f32 {vr(t)}, {f32(1e-5)}, {vr(t)}")
            a(f"v_rsq_f32 {vr(t)}, {vr(t)}\ns_nop 0")
        a(f"v_mul_f32 {vr(t+2)}, -{vr(t+2)}, {vr(t)}")
        for i in range(18):
            a(f"v_pk_fma_f32 {p(F+2*i)}, {p(F+2*i)}, {p(t)}, {p(t+2)} op_sel_hi:[1,0,0]")
        for i in range(18):
            a(f"v_cvt_pk_bf16_f32 {vr(out+i)}, {vr(F+2*i)}, {vr(F+2*i+1)}")

    def ln_packed(self, X, F, out, t):
        a = self.a
        a(f"v_mov_b32 {vr(t+6)}, 0x3f803f80")
        for k in range(4): a(f"v_mov_b32 {vr(t+k)}, 0")
        for i in range(18):
            a(f"v_dot2_f32_bf16 {vr(t+2*(i&1))}, {vr(X+i)}, {vr(t+6)}, {vr(t+2*(i&1))}")
            a(f"v_dot2_f32_bf16 {vr(t+1+2*(i&1))}, {vr(X+i)}, {vr(X+i)}, {vr(t+1+2*(i&1))}")
        for i in range(2):
            a(f"v_lshlrev_b32 {vr(F+2*i)}, 16, {vr(X+i)}\nv_and_b32 {vr(F+2*i+1)}, 0xffff0000, {vr(X+i)}")
        a(f"v_pk_add_f32 {vr(t,2)}, {vr(t,2)}, {vr(t+2,2)}")
        un = []
        for i in range(2, 18):
            un.append(f"v_lshlrev_b32 {vr(F+2*i)}, 16, {vr(X+i)}\nv_and_b32 {vr(F+2*i+1)}, 0xffff0000, {vr(X+i)}")
        sv = (a.bg, a.every, a.cnt, a.skip)
        n0 = len(a.lines)
        a.bg, a.every = [], 0
        self.ln_tail(F, out, t, True)
        tail = a.lines[n0:]
        del a.lines[n0:]
        a.bg, a.every, a.cnt, a.skip = sv
        k = next(i for i, l in enumerate(tail) if "v_pk_fma" in l)
        for i, l in enumerate(tail[:k]):
            if "s_nop" in l and un: continue_nop = True
            a(l)
            if un and not l.strip().startswith("s_nop"): a(un.pop(0))
        while un: a(un.pop(0))
        for l in tail[k:]: a(l)

    def ln_f32(self, F, out, t):
        a = self.a
        p = lambda r: vr(r, 2)
        a(f"v_pk_add_f32 {p(t)}, {p(F)}, {p(F+2)}\nv_pk_add_f32 {p(t+2)}, {p(F+4)}, {p(F+6)}")
        a(f"v_pk_mul_f32 {p(t+4)}, {p(F)}, {p(F)}\nv_pk_mul_f32 {p(t+6)}, {p(F+2)}, {p(F+2)}")
        for i in range(2, 18):
            if i >= 4: a(f"v_pk_add_f32 {p(t+2*(i&1))}, {p(t+2*(i&1))}, {p(F+2*i)}")
            a(f"v_pk_fma_f32 {p(t+4+2*(i&1))}, {p(F+2*i)}, {p(F+2*i)}, {p(t+4+2*(i&1))}")
        a(f"v_pk_add_f32 {p(t)}, {p(t)}, {p(t+2)}\nv_pk_add_f32 {p(t+4)}, {p(t+4)}, {p(t+6)}")
        a(f"v_add_f32 {vr(t)}, {vr(t)}, {vr(t+1)}\nv_add_f32 {vr(t+1)}, {vr(t+4)}, {vr(t+5)}")
        self.ln_tail(F, out, t, False)

    def gemm_u(self, AF, rf, Bs, ACC, afr, bfr, post, vm_items=(), other=(), lead=7):
        a = self.a
        units = [(0, j) for j in range(4)] + [(1, j) for j in range(4)] + [(2, 0)]
        seq, dl = [], {}
        rem = lambda u: (f"v_mfma_f32_16x16x16_bf16 {vr(ACC+4*u,4)}, {rf(AF+18*units[u][0]+16,2)}, {vr(Bs[units[u][1]]+16,2)}, {vr(ACC+4*u,4)}", u)
        A = [afr(t) for t in range(3)]
        Bf = [bfr(j) for j in range(4)]

        def use(t, j, s, k):
            for x in (A[t][2 * s:2 * s + 2] if s < 4 else A[t][8:]) + ([Bf[j][s]] if Bf[j] else []): dl.setdefault(x, k)
        for g in range(4):
            for s in range(4):
                for u in range(3 * g, 3 * g + 3) if g < 3 else []:
                    t, j = units[u]
                    d = vr(ACC + 4 * u, 4)
                    use(t, j, s, len(seq))
                    seq.append((f"v_mfma_f32_16x16x32_bf16 {d}, {rf(AF+18*t+4*s,4)}, {vr(Bs[j]+4*s,4)}, {'0' if s == 0 else d}", None))
                if s == 0 and g > 0:
                    for u in range(3 * g - 3, 3 * g):
                        use(units[u][0], units[u][1], 4, len(seq)); seq.append(rem(u))
        last = seq[-3:]; seq = seq[:-3]
        ds = sorted(dl.items(), key=lambda e: e[1]) + [(x, 99) for x in other]
        vm_items = list(vm_items)
        order, ready, q, done = [], [], [], 0

        def issue():
            x, k_ = ds.pop(0); a(x); order.append(k_)

        def wait(k):
            nonlocal done
            idx = [i_ for i_, k_ in enumerate(order) if k_ <= k]
            if idx and max(idx) + 1 > done:
                a(f"s_waitcnt lgkmcnt({min(15, len(order) - 1 - max(idx))})"); done = max(idx) + 1
        while ds and ds[0][1] < 6: issue()
        for k, (m, fin) in enumerate(seq):
            assert not ds or ds[0][1] > k, (k, ds[0])
            wait(k)
            a(m)
            for u_, kk in list(ready):
                if k - kk >= 4: q += post(u_); ready.remove((u_, kk))
            if fin is not None: ready.append((fin, k))
            due = sum(1 for x, k_ in ds if k_ <= k + lead)
            if due == 0 and vm_items and k % 2 == 1:
                a(vm_items.pop(0)); continue
            cap = 2
            for _ in range(min(due, 3)): issue(); cap -= 1
            if cap == 2:
                if q and q[0].startswith("ds_"): a(q.pop(0)); order.append(99); cap -= 1
                elif ds: issue(); cap -= 1
            while cap > 0 and q and not q[0].startswith("ds_"):
                a(q.pop(0)); cap -= 1
        assert not ready
        while ds: issue()
        wait(98)
        for x in vm_items: a(x)
        for x in q[:4]: a(x)
        a(f"s_nop {max(0, 4 - len(q[:4]))}")
        for m, _ in last: a(m)
        for x in q[4:]: a(x)
        a(f"s_nop {max(0, 6 - len(q[4:]))}")
        for u in range(6, 9):
            for x in post(u): a(x)

    def gemm(self, reads, B, ACC, AF, late=()):
        a = self.a
        buf = lambda T: 18 * (T % 6)

        def grp(g):
            r = [reads(T, buf(T)) for T in range(3 * g, 3 * g + 3)]
            return [r[t][2 * s + u] for s in range(4) for t in range(3) for u in range(2)] + [r[t][8] for t in range(3)]
        rem = lambda T: f"v_mfma_f32_16x16x16_bf16 {vr(ACC+4*T,4)}, {ar(buf(T)+16,2)}, {vr(B+16,2)}, {vr(ACC+4*T,4)}"
        pend = grp(0) + grp(1) + grp(2) + list(late)
        issued = 0

        def issue(n):
            nonlocal issued
            for _ in range(n):
                if issued < len(pend): a(pend[issued]); issued += 1
        issue(self.o.get('look', 12))
        for g in range(3):
            for s in range(4):
                need = 27 * g + 6 * (s + 1)
                a(f"s_waitcnt lgkmcnt({min(15, issued - need)})")
                for T in range(3 * g, 3 * g + 3):
                    d = vr(ACC + 4 * T, 4)
                    a(f"v_mfma_f32_16x16x32_bf16 {d}, {ar(buf(T)+4*s,4)}, {vr(B+4*s,4)}, {'0' if s == 0 else d}")
                    issue(2)
                if s == 0 and g > 0:
                    for T in range(3 * g - 3, 3 * g):
                        a(rem(T)); issue(2)
        issue(99)
        a(f"s_waitcnt lgkmcnt({len(late)})\ns_nop 2")
        for T in range(6, 9): a(rem(T))
        a("s_nop 7")

    def tr_reads(self, ad, rf=ar):
        def f(T, dst):
            out = []
            for s in range(4):
                for u in range(2):
                    out.append(f"ds_read_b64_tr_b16 {rf(dst+4*s+2*u,2)}, {vr(ad+u)} offset:{9216*s + 32*T}")
            out.append(f"ds_read_b64_tr_b16 {rf(dst+16,2)}, {vr(ad+2)} offset:{36864 + 32*T}")
            return out
        return f

    def row_reads(self, ad, sw=None):
        def f(T, dst):
            r = ad if sw is None or T == 8 else sw[T & 1]
            out = []
            for s in range(4):
                for u in range(2):
                    out.append(f"ds_read_b64 {ar(dst+4*s+2*u,2)}, {vr(r)} offset:{4864*T + 64*s + 32*u}")
            out.append(f"ds_read_b64 {ar(dst+16,2)}, {vr(r)} offset:{4864*T + 256}")
            return out
        return f

    def dma_rows(self, jobs, cpr, rstride, vo, vc, n_first, first_waves, lab):
        a = self.a
        mul = {18: 3641, 19: 3450}[cpr]
        dr, dc = 256 // cpr, 256 % cpr
        a(f"s_lshl_b32 {sr(S_T)}, {sr(S_W)}, 6")
        a(f"v_add_u32 {vr(vc)}, {sr(S_T)}, v0")
        a(f"v_mul_u32_u24 {vr(vo)}, {mul}, {vr(vc)}")
        a(f"v_lshrrev_b32 {vr(vo)}, 16, {vr(vo)}")
        a(f"v_mul_u32_u24 {vr(vc+1)}, {cpr}, {vr(vo)}")
        a(f"v_sub_u32 {vr(vc)}, {vr(vc)}, {vr(vc+1)}")
        a(f"v_mul_u32_u24 {vr(vo)}, {rstride}, {vr(vo)}")
        a(f"v_lshl_add_u32 {vr(vo)}, {vr(vc)}, 4, {vr(vo)}")
        a(f"s_lshl_b32 {sr(S_T)}, {sr(S_W)}, 10")
        a(f"v_mov_b32 {vr(vc+1)}, {rstride - 16*cpr}")
        for k in range(n_first):
            if k == n_first - 1:
                a(f"s_cmp_ge_u32 {sr(S_W)}, {first_waves}\ns_cbranch_scc1 {lab}")
            for srd, so, lb in jobs:
                a(f"s_add_u32 m0, {sr(S_T)}, {lb + 4096*k}")
                a("s_nop 0")
                a(f"buffer_load_dwordx4 {vr(vo)}, {sr(srd,4)}, {so} offen lds")
            if k < n_first - 1:
                a(f"v_add_u32 {vr(vc)}, {dc}, {vr(vc)}")
                a(f"v_cmp_le_u32 vcc, {cpr}, {vr(vc)}")
                a(f"v_add_u32 {vr(vo)}, {dr*rstride + 16*dc}, {vr(vo)}")
                a(f"v_subrev_u32 {vr(vc+2)}, {cpr}, {vr(vc)}")
                a(f"v_cndmask_b32 {vr(vc)}, {vr(vc)}, {vr(vc+2)}, vcc")
                a(f"v_cndmask_b32 {vr(vc+2)}, 0, {vr(vc+1)}, vcc")
                a(f"v_add_u32 {vr(vo)}, {vr(vo)}, {vr(vc+2)}")
        a.label(lab)

    def voff_table(self, dst, cpr, rstride, vc):
        a = self.a
        mul = {18: 29128, 19: 27595}[cpr]
        a(f"s_mov_b32 {sr(S_T)}, {rstride - 16*cpr}")
        a(f"v_mul_u32_u24 {vr(dst)}, {mul}, {vr(vc)}")
        for k in range(1, 11): a(f"v_add_u32 {vr(dst+k)}, {(256*k % cpr)*mul}, {vr(dst)}")
        for k in range(11): a(f"v_lshrrev_b32 {vr(dst+k)}, 19, {vr(dst+k)}")
        for k in range(11): a(f"v_mad_i32_i24 {vr(dst+k)}, {vr(dst+k)}, {sr(S_T)}, {vr(vc+1)}")

    def dma_lin(self, srd, soff, lb, v16, lab):
        a = self.a
        a(f"s_lshl_b32 {sr(S_T)}, {sr(S_W)}, 10")
        for k in range(11):
            if k == 10:
                a(f"s_cmp_ge_u32 {sr(S_W)}, 1\ns_cbranch_scc1 {lab}")
            a(f"s_add_u32 m0, {sr(S_T)}, {lb + 4096*k}")
            a(f"s_add_u32 {sr(S_T+1)}, {sr(S_T)}, {soff + 4096*k}")
            a(f"buffer_load_dwordx4 {vr(v16)}, {sr(srd,4)}, {sr(S_T+1)} offen lds")
        a.label(lab)

    def tr_addr(self, ad, base, swapped, t):
        a = self.a
        a(f"v_lshrrev_b32 {vr(t)}, 2, v0")
        a(f"v_mul_u32_u24 {vr(t)}, 288, {vr(t)}")
        a(f"v_and_b32 {vr(t+1)}, 3, v0")
        a(f"v_lshl_add_u32 {vr(t)}, {vr(t+1)}, 3, {vr(t)}")
        a(f"v_add_u32 {vr(ad+2)}, {base}, {vr(t)}")
        if swapped:
            a(f"v_bfe_u32 {vr(t)}, v0, 4, 1")
            a(f"v_mul_u32_u24 {vr(t)}, {16*288}, {vr(t)}")
            a(f"v_add_u32 {vr(ad)}, {vr(ad+2)}, {vr(t)}")
            a(f"v_sub_u32 {vr(ad+1)}, {vr(ad+2)}, {vr(t)}")
            a(f"v_add_u32 {vr(ad+1)}, {16*288}, {vr(ad+1)}")
        else:
            a(f"v_mov_b32 {vr(ad)}, {vr(ad+2)}")
            a(f"v_add_u32 {vr(ad+1)}, {16*288}, {vr(ad+2)}")

    def row_addr(self, ad, base, t):
        a = self.a
        a(f"v_and_b32 {vr(t)}, 15, v0")
        a(f"v_mul_u32_u24 {vr(t)}, 304, {vr(t)}")
        a(f"v_lshrrev_b32 {vr(t+1)}, 4, v0")
        a(f"v_lshl_add_u32 {vr(t)}, {vr(t+1)}, 3, {vr(t)}")
        a(f"v_add_u32 {vr(ad)}, {base}, {vr(t)}")

    def store_block(self, src, v16, v8, srd, soff, soff2, flags=""):
        a = self.a
        for s in range(4):
            a(f"buffer_store_dwordx4 {vr(src+4*s,4)}, {vr(v16)}, {sr(srd,4)}, {sr(soff)} offen offset:{1024*s} {flags}")
        a(f"buffer_store_dwordx2 {vr(src+16,2)}, {vr(v8)}, {sr(srd,4)}, {sr(soff2)} offen {flags}")

    def entry(self):
        a = self.a
        kernel_header(a, NAME)
        a(f"s_load_dwordx4 s[56:59], s[0:1], 0")
        a(f"s_getpc_b64 {sr(S_W1,2)}")
        a.label("L_pf")
        a(f"""s_mov_b32 {sr(S_W1+2)}, L_dummy-L_pf
        s_mov_b32 {sr(S_W1+3)}, 0x20000
        v_lshlrev_b32 v1, 4, v0
        s_bfe_u32 {sr(S_T)}, s2, 0x30003
        s_lshl_b32 {sr(S_T)}, {sr(S_T)}, 12
""")
        cpf = self.o.get("cpf", 1)
        if cpf >= 1:
            a(f"""buffer_load_dwordx4 v[252:255], v1, {sr(S_W1,4)}, 0 offen
            buffer_load_dwordx4 v[252:255], v1, {sr(S_W1,4)}, {sr(S_T)} offen""")
        if cpf == 2:
            for k in range(1, 8): a(f"s_mov_b32 {sr(S_T)}, {4096*k}\nbuffer_load_dwordx4 v[252:255], v1, {sr(S_W1,4)}, {sr(S_T)} offen")
        a(f"s_cmp_ge_u32 s2, {NWG}\ns_cbranch_scc1 L_end")
        self.stamp("start")
        a(f"s_load_dwordx4 s[60:63], s[0:1], 80")
        a(f"s_load_dwordx4 s[64:67], s[0:1], 40")
        a(f"s_load_dwordx4 s[68:71], s[0:1], 16")
        a(f"s_load_dwordx4 s[72:75], s[0:1], 64")
        a(f"v_lshrrev_b32 v1, 6, v0")
        a(f"s_and_b32 {sr(S_H)}, s2, 1")
        a(f"v_readfirstlane_b32 {sr(S_W)}, v1")
        a(f"s_bfe_u32 {sr(S_B)}, s2, 0x10001")
        a(f"s_lshr_b32 {sr(S_QB)}, s2, 2")
        a(f"v_and_b32 v0, 63, v0")
        a(f"v_lshlrev_b32 {vr(V_DMA)}, 4, v0")
        a(f"s_cmp_ge_u32 s2, 252\ns_cbranch_scc1 L_wfuse")

    def phase_a(self):
        a, o = self.a, self.o
        XR, XF, XA, ACC = 16, 34, 146, 110
        B4, XD, G_ = 16, 88, 16
        VS, VSW, VR4, MXA, MXR, L8, TRU, TRQ, TRQ8, RK, TM = 200, 204, 208, 212, 213, 214, 215, 218, 221, 224, 242
        VK, VU = 182, 228
        t0, t1, t2 = 250, 251, 241
        AQ1 = 200
        L_QR2 = L_XR + 0
        T = S_T
        WV = S_T + 20
        L_XS = L_WU
        a(f"""s_lshl_b32 {sr(T)}, {sr(S_QB)}, 1
        s_add_u32 {sr(S_TOWN)}, {sr(T)}, {sr(S_H)}
        s_xor_b32 {sr(S_TSND)}, {sr(S_TOWN)}, 1
        s_cmp_lt_u32 {sr(S_TOWN)}, {NT}
        s_cselect_b32 {sr(S_VAL)}, 1, 0
        s_cmp_lt_u32 {sr(S_W)}, 2
        s_cselect_b32 {sr(T+3)}, {sr(S_TSND)}, {sr(S_TOWN)}
        s_mul_i32 {sr(T)}, {sr(S_B)}, {NT}
        s_add_u32 {sr(S_TOWN)}, {sr(S_TOWN)}, {sr(T)}
        s_add_u32 {sr(S_TSND)}, {sr(S_TSND)}, {sr(T)}
        s_add_u32 {sr(T+1)}, {sr(T+3)}, {sr(T)}
        s_lshl_b32 {sr(T+1)}, {sr(T+1)}, 1
        s_and_b32 {sr(T+2)}, {sr(S_W)}, 1
        s_add_u32 {sr(T+2)}, {sr(T+1)}, {sr(T+2)}
        s_mul_i32 {sr(T+1)}, {sr(T+2)}, {16*288}
        s_mul_i32 {sr(S_LB)}, {sr(S_W)}, 5120
        s_add_u32 {sr(S_LB)}, {sr(S_LB)}, {L_XS}
        s_mov_b32 m0, {sr(S_LB)}
        s_mov_b32 {sr(S_X+2)}, 2304000
        s_mov_b32 {sr(S_X+3)}, 0x20000
        s_add_u32 {sr(S_CNT)}, {sr(T+1)}, 4096
        s_waitcnt lgkmcnt(0)
        s_mov_b32 {sr(S_X)}, s56
        s_mov_b32 {sr(S_X+1)}, s57""")
        for k in range(4): a(f"buffer_load_dwordx4 {vr(V_DMA)}, {sr(S_X,4)}, {sr(T+1)} offen offset:{1024*k} lds")
        a(f"s_add_u32 m0, {sr(S_LB)}, 4096\ns_mov_b32 exec_hi, 0\nbuffer_load_dwordx4 {vr(V_DMA)}, {sr(S_X,4)}, {sr(S_CNT)} offen lds\ns_mov_b32 exec_hi, -1")
        self.stamp("xiss")
        SQ, SK, SU = S_W2, S_W1, S_XA
        self.srd(SQ, 58, 59, 41472)
        self.srd(SK, 68, 69, 41472)
        self.srd(SU, 64, 65, 82944)
        a(f"s_lshr_b32 {sr(T)}, s2, 3\ns_lshl_b32 {sr(T)}, {sr(T)}, 2\ns_add_u32 {sr(T)}, {sr(T)}, {sr(S_W)}")
        npf = 3
        for srd_, rot in ((SQ, 0), (SK, 87), (SU, 46)):
            a(f"s_add_u32 {sr(T+1)}, {sr(T)}, {rot}\ns_and_b32 {sr(T+1)}, {sr(T+1)}, 127\ns_lshl_b32 {sr(T+1)}, {sr(T+1)}, 10")
            a(f"buffer_load_dwordx4 v[252:255], {vr(V_DMA)}, {sr(srd_,4)}, {sr(T+1)} offen")
        self.srd(S_OUT, 74, 75, 2304000)
        if o.get("touch"):
            self.srd(S_WS, 62, 63, WS_END)
            self.srd(S_DB, 60, 61, 256)
            step = o["touch"]
            a(f"v_mul_u32_u24 v250, {step}, v0\nv_mov_b32 v251, 0")
            a(f"buffer_load_dword v252, v250, {sr(S_WS,4)}, 0 offen sc1")
            a(f"buffer_load_dword v252, v250, {sr(S_OUT,4)}, 0 offen sc1")
            a(f"buffer_load_dword v252, v251, {sr(S_DB,4)}, 0 offen offset:252 sc1")
            npf += 3
        a(f"s_cmp_lt_u32 {sr(T+3)}, {NT}\ns_cselect_b32 {sr(WV)}, 1, 0\ns_mov_b32 {sr(WV+1)}, {sr(T+2)}")
        W10, UOFF, M1, M3, PUB, W12 = S_T + 22, S_T + 23, S_T + 18, S_T + 19, S_T + 6, S_T + 7
        a(f"""s_lshl_b32 {sr(W10)}, {sr(S_W)}, 10
        s_mul_i32 {sr(UOFF)}, {sr(S_H)}, 288
        s_cmp_eq_u32 {sr(S_W)}, 0
        s_cselect_b32 {sr(M1)}, 0, {L_DUMP}
        s_cmp_lt_u32 {sr(S_W)}, 3
        s_cselect_b32 {sr(M3)}, {sr(W10)}, {L_DUMP}
        s_lshl_b32 {sr(W12)}, {sr(S_W)}, 12""")
        gq = []
        for c in range(6):
            for k in range(4 if c < 5 else 1):
                g_ = f"buffer_load_dwordx4 {vr(V_DMA)}, {sr(SQ,4)}, {sr(S_CNT)} offen offset:{1024*k} lds"
                if k == 0: g_ = f"s_add_u32 m0, {sr(W12 if c < 5 else M1)}, {L_WQ + 8192*c}\ns_add_u32 {sr(S_CNT)}, {sr(W12)}, {8192*c}\n" + g_
                gq.append(g_)
        gk = [f"s_add_u32 m0, {sr(W10 if k < 10 else M3)}, {L_WK + 4096*k}\ns_mov_b32 {sr(S_CNT)}, {4096*k - 16*(256*k//19)}\nbuffer_load_dwordx4 {vr(VK+k)}, {sr(SK,4)}, {sr(S_CNT)} offen lds" for k in range(11)]
        gu = [f"s_add_u32 m0, {sr(W10 if k < 10 else M1)}, {L_WU + 4096*k}\ns_add_u32 {sr(S_CNT)}, {sr(UOFF)}, {4096*k + 288*(256*k//18)}\nbuffer_load_dwordx4 {vr(VU+k)}, {sr(SU,4)}, {sr(S_CNT)} offen lds" for k in range(11)]
        npre = o.get("npre", 12)
        a(f"s_cmp_ge_u32 {sr(S_W)}, 2\ns_cbranch_scc1 L_pre1")
        for g_ in gq[:npre]: a(g_)
        a.label("L_pre1")
        a(f"s_lshl_b32 {sr(T)}, {sr(S_W)}, 6\nv_add_u32 {vr(t0)}, {sr(T)}, v0\nv_lshlrev_b32 {vr(t1)}, 4, {vr(t0)}")
        self.voff_table(VK, 19, 288, t0)
        self.voff_table(VU, 18, 576, t0)
        self.srd(S_WS, 62, 63, WS_END)
        self.srd(S_DB, 60, 61, 256)
        self.srd(S_DW, 66, 67, 864)
        xa0, xa1, xa2 = TM, TM + 1, TM + 2
        a(f"""v_and_b32 {vr(t0)}, 15, v0
        v_lshrrev_b32 {vr(t1)}, 5, v0
        v_lshlrev_b32 {vr(t1)}, 3, {vr(t1)}
        v_xor_b32 {vr(t1)}, {vr(t0)}, {vr(t1)}
        v_lshlrev_b32 {vr(t1)}, 4, {vr(t1)}
        v_lshrrev_b32 {vr(t2)}, 4, v0
        v_lshl_add_u32 {vr(V_KA)}, {vr(t2)}, 9, {vr(t1)}
        v_lshrrev_b32 {vr(t1)}, 3, {vr(t0)}
        v_lshlrev_b32 {vr(t1)}, 1, {vr(t1)}
        v_xor_b32 {vr(t1)}, {vr(t2)}, {vr(t1)}
        v_lshl_add_u32 {vr(t1)}, {vr(t0)}, 2, {vr(t1)}
        v_lshlrev_b32 {vr(V_KA+1)}, 3, {vr(t1)}
        v_lshlrev_b32 {vr(L8)}, 3, v0
        v_lshlrev_b32 {vr(MXR)}, 4, {vr(t0)}
        v_add_u32 {vr(MXR)}, {L_MX}, {vr(MXR)}
        v_add_u32 {vr(MXA)}, {sr(S_W)}, {vr(t2)}
        v_and_b32 {vr(MXA)}, 3, {vr(MXA)}
        v_lshl_add_u32 {vr(MXA)}, {vr(MXA)}, 8, {vr(MXR)}
        s_lshl_b32 {sr(T)}, {sr(S_W)}, 2
        v_add_u32 {vr(MXA)}, {sr(T)}, {vr(MXA)}
        v_mul_u32_u24 {vr(xa2)}, 288, {vr(t0)}
        v_lshl_add_u32 {vr(xa2)}, {vr(t2)}, 3, {vr(xa2)}
        v_add_u32 {vr(xa2)}, {sr(S_LB)}, {vr(xa2)}
        v_and_b32 {vr(t1)}, 1, {vr(t2)}
        v_lshlrev_b32 {vr(t1)}, 5, {vr(t1)}
        v_add_u32 {vr(xa0)}, {vr(xa2)}, {vr(t1)}
        v_xor_b32 {vr(t1)}, 32, {vr(t1)}
        v_add_u32 {vr(xa1)}, {vr(xa2)}, {vr(t1)}
        s_mul_i32 {sr(S_LB)}, {sr(S_W)}, {TILE}
        v_lshrrev_b32 {vr(t0)}, 2, v0
        v_bfe_u32 {vr(t1)}, v0, 1, 1
        v_lshlrev_b32 {vr(t1)}, 3, {vr(t1)}
        v_xor_b32 {vr(t1)}, {vr(t0)}, {vr(t1)}
        v_lshlrev_b32 {vr(t1)}, 4, {vr(t1)}
        v_and_b32 {vr(t2)}, 3, v0
        v_lshl_add_u32 {vr(t1)}, {vr(t2)}, 9, {vr(t1)}
        v_and_b32 {vr(V_VA)}, 1, v0
        v_lshl_add_u32 {vr(t1)}, {vr(V_VA)}, 3, {vr(t1)}
        v_add_u32 {vr(V_VA)}, {sr(S_LB)}, {vr(t1)}
        v_xor_b32 {vr(V_VA+1)}, 8, {vr(V_VA)}
        v_lshrrev_b32 {vr(t1)}, 5, v0
        v_lshlrev_b32 {vr(t1)}, 1, {vr(t1)}
        v_xor_b32 {vr(t1)}, {vr(t2)}, {vr(t1)}
        v_lshl_add_u32 {vr(t1)}, {vr(t0)}, 2, {vr(t1)}
        v_lshlrev_b32 {vr(t1)}, 3, {vr(t1)}
        v_add_u32 {vr(V_VR)}, {sr(S_LB)}, {vr(t1)}
        v_add_u32 {vr(V_DMA+1)}, 4096, {vr(V_DMA)}
        v_add_u32 {vr(V_DMA+2)}, 8192, {vr(V_DMA)}""")
        self.tr_addr(TRU, L_WU, True, t0)
        a(f"s_lshl_b32 {sr(T)}, {sr(S_W)}, 6\ns_sub_u32 {sr(T)}, {sr(T)}, {L_WU - L_WQ}")
        for k in range(3):
            a(f"v_add_u32 {vr(TRQ+k)}, {sr(T)}, {vr(TRU+k)}\nv_subrev_u32 {vr(TRQ8+k)}, {L_WU - L_WQ - 256}, {vr(TRU+k)}")
        self.row_addr(RK + 2, L_WK + 8 * 4864, t0)
        a(f"""s_mul_i32 {sr(T)}, {sr(S_W)}, {2*4864}
        s_sub_u32 {sr(T)}, {sr(T)}, {8*4864}
        v_add_u32 {vr(t1)}, {sr(T)}, {vr(RK+2)}
        v_bfe_u32 {vr(t0)}, v0, 2, 1
        v_mul_u32_u24 {vr(t0)}, 4864, {vr(t0)}
        v_add_u32 {vr(RK)}, {vr(t1)}, {vr(t0)}
        v_sub_u32 {vr(RK+1)}, {vr(t1)}, {vr(t0)}""")
        for j in range(4):
            a(f"""s_add_u32 {sr(T)}, {sr(S_W)}, {j}
            s_and_b32 {sr(T)}, {sr(T)}, 3
            s_lshl_b32 {sr(T+1)}, {sr(T)}, 12
            s_add_u32 {sr(T+1)}, {sr(T+1)}, {L_XX}
            v_add_u32 {vr(VS+j)}, {sr(T+1)}, {vr(V_DMA)}
            s_lshl_b32 {sr(T+1)}, {sr(T)}, 9
            s_add_u32 {sr(T+1)}, {sr(T+1)}, {L_XR}
            v_add_u32 {vr(VR4+j)}, {sr(T+1)}, {vr(L8)}
            v_add_u32 {vr(VSW+j)}, {sr(W10)}, {vr(VS+j)}""")
        a(f"""s_sub_u32 {sr(T+2)}, 63, {sr(S_H)}
        s_add_u32 {sr(T+3)}, {sr(S_W)}, 60
        s_cmp_ge_u32 {sr(T+3)}, {sr(T+2)}
        s_cselect_b32 {sr(S_DUM)}, 4, 99
        s_mov_b32 {sr(S_REDO)}, 0
        s_mov_b32 {sr(S_TOFF)}, {sr(S_LB)}
        v_mov_b32 {vr(t0)}, {L_MX}
        v_mov_b32 {vr(t1)}, 0
        ds_write_b32 {vr(t0)}, {vr(t1)}
        s_sub_u32 {sr(T)}, {sr(S_TOWN)}, 63
        s_mul_i32 {sr(T+1)}, {sr(S_B)}, {NT}
        s_cmp_ge_i32 {sr(T)}, {sr(T+1)}
        s_cselect_b32 {sr(T)}, 64, 0
        s_lshl_b32 {sr(T+1)}, {sr(S_B)}, 7
        s_add_u32 {sr(PUB)}, {sr(T)}, {sr(T+1)}""")
        self.stamp("pre")

        def xread():
            for s in range(4):
                a(f"ds_read_b64 {vr(XR+4*s,2)}, {vr(xa0)} offset:{64*s}\nds_read_b64 {vr(XR+4*s+2,2)}, {vr(xa1)} offset:{64*s}")
            a(f"ds_read_b64 {vr(XR+16,2)}, {vr(xa2)} offset:256")
        xw = [f"ds_write_b128 {vr(VS)}, {vr(XA+4*s,4)} offset:{1024*s}" for s in range(4)] + [f"ds_write_b64 {vr(VR4)}, {vr(XA+16,2)}"]
        a(f"s_cmp_lt_u32 {sr(S_W)}, 2\ns_cbranch_scc1 L_lnB")
        a(f"s_waitcnt vmcnt({npf})")
        self.stamp("xarr")
        xread()
        a(f"""s_and_b32 {sr(T)}, {sr(S_W)}, 1
        s_mul_i32 {sr(T+2)}, {sr(S_TOWN)}, {TILE}
        s_cmp_eq_u32 {sr(S_VAL)}, 1
        s_cselect_b32 {sr(T+2)}, {sr(T+2)}, 0x40000000
        s_lshl_b32 {sr(T+3)}, {sr(T)}, 8
        s_add_u32 {sr(T+3)}, {sr(T+3)}, {sr(T+2)}
        s_add_u32 {sr(T+4)}, {sr(T+3)}, 4096
        s_lshl_b32 {sr(T+5)}, {sr(T)}, 9
        s_add_u32 {sr(T+5)}, {sr(T+5)}, {sr(T+2)}
        s_add_u32 {sr(T+5)}, {sr(T+5)}, 8192
        s_waitcnt lgkmcnt(0)""")
        self.ln_packed(XR, XF, XA, TM)
        for s in range(4):
            a(f"buffer_store_dwordx4 {vr(XA+4*s,4)}, {vr(V_KA)}, {sr(S_WS,4)}, {sr(T+3+(s>>1))} offen offset:{2048*(s&1)} sc1")
        a(f"buffer_store_dwordx2 {vr(XA+16,2)}, {vr(V_KA+1)}, {sr(S_WS,4)}, {sr(T+5)} offen sc1")
        for x in xw: a(x)
        a("s_branch L_bar1")
        a.label("L_lnB")
        a(f"s_waitcnt vmcnt({npf + npre})")
        xread()
        nmid = o.get("nmid", 3)
        for g_ in gq[npre:npre + nmid]: a(g_)
        a("s_waitcnt lgkmcnt(0)")
        a.bg, a.every, a.cnt = gq[npre + nmid:], o.get("evln", 12), 0
        self.ln_packed(XR, XF, XA, TM)
        a.flush()
        for x in xw: a(x)
        a(f"""s_mul_i32 {sr(T)}, s2, {IB}
        s_mul_i32 {sr(T+1)}, {sr(S_W)}, 5120
        s_add_u32 {sr(T)}, {sr(T)}, {sr(T+1)}
        s_add_u32 {sr(T)}, {sr(T)}, {WS_IB}
        s_add_u32 {sr(T+1)}, {sr(T)}, 4096""")
        for i in range(4): a(f"v_mov_b32 {vr(XR+i)}, -1")
        for i in range(4): a(f"buffer_store_dwordx4 {vr(XR,4)}, {vr(V_DMA)}, {sr(S_WS,4)}, {sr(T)} offen offset:{1024*i} sc1")
        a(f"buffer_store_dwordx4 {vr(XR,4)}, {vr(V_DMA)}, {sr(S_WS,4)}, {sr(T+1)} offen sc1")
        a.label("L_bar1")
        self.stamp("pub")
        n1 = o.get("n1", 6)
        for g_ in gk[:n1]: a(g_)
        a(f"v_add_u32 {vr(V_KA)}, {sr(S_LB)}, {vr(V_KA)}\nv_add_u32 {vr(V_KA+1)}, {sr(S_LB)}, {vr(V_KA+1)}")
        a(f"s_waitcnt vmcnt({5 + n1}) lgkmcnt(0)\ns_barrier")
        self.stamp("bar1")

        def a_tr(t):
            ad, off = (TRQ, 32 * t) if t < 2 else (TRQ8, 0)
            return [f"ds_read_b64_tr_b16 {ar(AQ1+18*t+4*s+2*u,2)}, {vr(ad+u)} offset:{9216*s + off}" for s in range(4) for u in range(2)] + \
                   [f"ds_read_b64_tr_b16 {ar(AQ1+18*t+16,2)}, {vr(ad+2)} offset:{36864 + off}"]

        def a_row(t):
            off = 4864 * t if t < 2 else 0
            return [f"ds_read_b64 {ar(A_Q+18*t+4*s+2*u,2)}, {vr(RK+t)} offset:{off + 64*s + 32*u}" for s in range(4) for u in range(2)] + \
                   [f"ds_read_b64 {ar(A_Q+18*t+16,2)}, {vr(RK+t)} offset:{off + 256}"]
        bq = lambda j: [f"ds_read_b128 {vr(B4+18*j+4*s,4)}, {vr(VS+j)} offset:{1024*s}" for s in range(4)] + [f"ds_read_b64 {vr(B4+18*j+16,2)}, {vr(VR4+j)}"]

        PK = 164

        def post1(u):
            L = [f"v_cvt_pk_bf16_f32 {vr(PK + (4*(u&3) + 2*(u>>2) if u < 8 else 16) + h)}, {vr(ACC+4*u+2*h)}, {vr(ACC+4*u+2*h+1)}" for h in range(2)]
            return L
        xd = [f"ds_read_b128 {vr(XD+4*j,4)}, {vr(VSW+j)}" for j in range(4)]
        self.gemm_u(AQ1, ar, [XA, B4 + 18, B4 + 36, B4 + 54], ACC, a_tr, lambda j: bq(j) if j else None, post1, vm_items=gk[n1:], other=xd)
        a(f"""v_mov_b32 {vr(t0)}, 0x40000000
        v_mov_b32 {vr(t1)}, 1
        s_mov_b64 exec, 1
        s_cmp_lt_u32 {sr(S_W)}, 2
        s_cbranch_scc1 L_sig
        s_cmp_eq_u32 {sr(S_VAL)}, 0
        s_cbranch_scc1 L_sig
        s_waitcnt vmcnt(11)
        v_mov_b32 {vr(t2)}, {L_MX}
        ds_add_rtn_u32 {vr(t2)}, {vr(t2)}, {vr(t1)}
        s_waitcnt lgkmcnt(0)
        v_readfirstlane_b32 {sr(T+1)}, {vr(t2)}
        s_cmp_eq_u32 {sr(T+1)}, 1
        s_cselect_b32 {sr(T)}, {sr(PUB)}, 0x40000000
        v_mov_b32 {vr(t0)}, {sr(T)}""")
        a.label("L_sig")
        a(f"buffer_atomic_add {vr(t1)}, {vr(t0)}, {sr(S_DB,4)}, 0 offen sc1\ns_mov_b64 exec, -1")
        self.stamp("sig")
        a("s_waitcnt lgkmcnt(0)\ns_barrier")
        for j in range(4): a(f"ds_write_b128 {vr(VSW+j)}, {vr(PK+4*j,4)}")
        a(f"ds_write_b64 {vr(VR4)}, {vr(PK+16,2)}")
        n2 = o.get("n2", 5)
        for g_ in gu[:n2]: a(g_)
        a(f"s_mov_b32 {sr(T+4)}, {f32(LOG2E / 12.0)}\ns_waitcnt vmcnt({1 + n2}) lgkmcnt(0)\ns_barrier")
        self.stamp("bar2")

        def post2(u):
            L = [f"v_mul_f32 {vr(ACC+4*u+i)}, {sr(T+4)}, {vr(ACC+4*u+i)}" for i in range(4)]
            L += [f"v_cvt_pk_bf16_f32 {vr(PK + (4*(u&3) + 2*(u>>2) if u < 8 else 16) + h)}, {vr(ACC+4*u+2*h)}, {vr(ACC+4*u+2*h+1)}" for h in range(2)]
            if 4 <= u < 8: L.append(f"ds_write_b128 {vr(VSW+u-4)}, {vr(PK+4*(u-4),4)} offset:{L_QX - L_XX}")
            if u == 8: L.append(f"ds_write_b64 {vr(t2)}, {vr(PK+16,2)}")
            return L
        a(f"v_subrev_u32 {vr(t2)}, {L_XR - L_QR}, {vr(VR4)}")
        self.gemm_u(A_Q, ar, [B4 + 18 * j for j in range(4)], ACC, a_row, bq, post2, vm_items=gu[n2:])
        self.stamp("g2")
        CC = TM
        for j in range(4): a(f"v_dot2_f32_bf16 {vr(CC+j)}, {vr(PK+4*j)}, {vr(XD+4*j)}, 0")
        for i in range(2): a(f"v_dot2_f32_bf16 {vr(CC)}, {vr(PK+16+i)}, {vr(XA+16+i)}, {vr(CC)}")
        for i in range(1, 4):
            for j in range(4): a(f"v_dot2_f32_bf16 {vr(CC+j)}, {vr(PK+4*j+i)}, {vr(XD+4*j+i)}, {vr(CC+j)}")
        a(f"""s_lshl_b32 {sr(T)}, s2, 6
        s_and_b32 {sr(T)}, {sr(T)}, 0xff
        v_mov_b32 {vr(t0)}, {sr(T)}
        v_add_u32 {vr(VS)}, {L_QX}, {vr(V_DMA)}
        v_add_u32 {vr(VS+1)}, {L_QR}, {vr(L8)}""")
        self.treduce(CC)
        a(f"ds_write_b32 {vr(MXA)}, {vr(CC)}")
        a(self.xa_srd())
        a("s_waitcnt vmcnt(0) lgkmcnt(0)\ns_barrier")
        self.stamp("bar3")
        a(f"buffer_load_dword {vr(t1)}, {vr(t0)}, {sr(S_DB,4)}, 0 offen sc1")
        MS = 88
        qrd = [f"ds_read_b128 {vr(MS+4*qb,4)}, {vr(MXR)} offset:{256*qb}" for qb in range(4)]
        qrd += [f"ds_read_b64 {ar(A_Q+18*qb+16,2)}, {vr(VS+1)} offset:{512*qb}" for qb in range(4)]
        for qb in range(4):
            qrd += [f"ds_read_b128 {ar(A_Q+18*qb+4*s,4)}, {vr(VS)} offset:{4096*qb + 1024*s}" for s in range(4)]
        self.gemm(self.tr_reads(TRU), XA, ACC, None, late=qrd[:9])
        self.stamp("up")
        a(f"""s_cmp_lg_u32 {sr(S_W)}, 0
        s_cbranch_scc1 L_bar4
        s_sub_u32 {sr(T+1)}, 63, {sr(S_H)}
        s_mov_b32 {sr(T+2)}, 0
        s_branch L_pollc""")
        a.label("L_poll")
        a(f"buffer_load_dword {vr(t1)}, {vr(t0)}, {sr(S_DB,4)}, 0 offen sc1")
        a.label("L_pollc")
        a(f"""s_add_u32 {sr(T+2)}, {sr(T+2)}, 1
        s_waitcnt vmcnt(0)
        v_readfirstlane_b32 {sr(T+3)}, {vr(t1)}
        s_cmp_ge_u32 {sr(T+3)}, {sr(T+1)}
        s_cbranch_scc1 L_bar4
        s_cmp_lt_u32 {sr(T+2)}, 0x40000
        s_cbranch_scc1 L_poll""")
        a.label("L_bar4")
        a("s_waitcnt lgkmcnt(0)\ns_barrier")
        self.stamp("bar4")
        p = lambda r: vr(r, 2)
        c1 = -2.0 * math.sqrt(2.0 / math.pi) * LOG2E
        c2 = c1 * 0.044715
        tg = self.tile_groups(0) + self.tile_groups(1)
        if o.get("latedma"): tg_late, tg = tg, [""] * 18
        for x in tg[:5]: a(x)
        if o.get("dma1"): self.stamp("d5")
        a(f"v_mov_b32 {vr(CC)}, {f32(c1)}\nv_mov_b32 {vr(CC+2)}, {f32(c2)}\nv_mov_b32 {vr(CC+4)}, 1.0")
        a.bg, a.every, a.cnt = [x for x in tg[5:9] if x] + [qrd[i] + "\n" + qrd[i + 1] for i in range(9, 23, 2)] + [qrd[23]], 4, 0
        for i in range(18): a(f"v_pk_mul_f32 {p(G_+2*i)}, {p(ACC+2*i)}, {p(ACC+2*i)}")
        for i in range(18): a(f"v_pk_fma_f32 {p(G_+2*i)}, {p(G_+2*i)}, {p(CC+2)}, {p(CC)} op_sel_hi:[1,0,0]")
        for i in range(18): a(f"v_pk_mul_f32 {p(G_+2*i)}, {p(G_+2*i)}, {p(ACC+2*i)}")
        a.flush()
        self.stamp("ge1")
        t1g = tg[9:]
        for i in range(36):
            a(f"v_exp_f32 {vr(G_+i)}, {vr(G_+i)}")
            if i % 4 == 3 and t1g: a(t1g.pop(0))
        self.stamp("ge2")
        if o.get("latedma"):
            for x in tg_late: a(x)
        for i in range(18): a(f"v_pk_add_f32 {p(G_+2*i)}, {p(G_+2*i)}, {p(CC+4)} op_sel_hi:[1,0]")
        for i in range(36): a(f"v_rcp_f32 {vr(G_+i)}, {vr(G_+i)}")
        for i in range(18): a(f"v_pk_mul_f32 {p(ACC+2*i)}, {p(G_+2*i)}, {p(ACC+2*i)}")
        UG = 164
        a(f"""s_mul_i32 {sr(T)}, {sr(WV+1)}, {BLK}
        s_cmp_eq_u32 {sr(S_H)}, 1
        s_cbranch_scc1 L_ln2
        s_add_u32 {sr(T)}, {sr(T)}, {WS_U}""")
        for i in range(18): a(f"v_cvt_pk_bf16_f32 {vr(UG+i)}, {vr(ACC+2*i)}, {vr(ACC+2*i+1)}")
        a("s_branch L_ug")
        a.label("L_ln2")
        a(f"s_add_u32 {sr(T)}, {sr(T)}, {WS_G}")
        self.ln_f32(ACC, UG, TM)
        a.label("L_ug")
        self.stamp("ge3")
        a(f"s_cmp_eq_u32 {sr(WV)}, 1\ns_cselect_b32 {sr(T)}, {sr(T)}, 0x40000000\ns_add_u32 {sr(T+1)}, {sr(T)}, 4096\ns_waitcnt vmcnt(9) lgkmcnt(0)")
        for x in self.k_reads(0): a(x)
        self.store_block(UG, V_DMA, L8, S_WS, T, T + 1, "sc1")
        for qb in range(4):
            m = MS + 4 * qb
            a(f"v_add_f32 {vr(m)}, {vr(m)}, {vr(m+1)}\nv_add_f32 {vr(m+2)}, {vr(m+2)}, {vr(m+3)}")
        for qb in range(4): a(f"v_add_f32 {vr(self.MK+qb)}, {vr(MS+4*qb)}, {vr(MS+4*qb+2)}")
        for qb in range(4): a(f"v_sub_f32 {vr(self.MK+qb)}, 0, {vr(self.MK+qb)}")
        self.stamp("ug")

    def tile_groups(self, slot):
        out = []
        for j in range(9):
            g = ""
            if j % 4 == 0: g = f"s_add_u32 m0, {sr(S_LB)}, {slot*SLOT + 4096*(j//4)}\ns_nop 0\n"
            g += f"buffer_load_dwordx4 {vr(V_DMA + j//4)}, {sr(S_XA,4)}, {sr(S_TOFF)} offen offset:{1024*(j%4)} lds"
            if j == 8: g += f"\ns_add_u32 {sr(S_TOFF)}, {sr(S_TOFF)}, {4*TILE}"
            out.append(g)
        return out

    def first_tiles(self):
        pass

    def wfuse(self):
        a = self.a
        BF, ACC, AF, TM, AD = 88, 108, 144, 208, 240
        LA, LB_, LM = 0, 44032, 88064
        T = S_T
        a.label("L_wfuse")
        a(f"s_load_dwordx2 s[4:5], s[0:1], 32\ns_load_dwordx2 s[6:7], s[0:1], 56\ns_waitcnt lgkmcnt(0)")
        self.srd(S_WS, 62, 63, WS_END)
        self.srd(S_DB, 60, 61, 256)
        self.srd(S_X, 72, 73, 82944)
        self.srd(S_W2, 70, 71, 41472)
        a(f"""s_cmp_eq_u32 s2, 252
        s_cselect_b32 {sr(S_W1)}, s4, s6
        s_cselect_b32 {sr(S_W1+1)}, s5, s7
        s_mov_b32 {sr(S_W1+2)}, 41472
        s_mov_b32 {sr(S_W1+3)}, 0x20000
        s_cselect_b32 {sr(T+4)}, 0, 41472""")
        self.dma_rows([(S_W1, "0", LA), (S_W2, "0", LB_)], 19, 288, TM + 4, TM + 5, 11, 3, "L_wf1")
        a(f"s_lshl_b32 {sr(T)}, {sr(S_W)}, 10\ns_add_u32 {sr(T+2)}, {sr(T)}, {sr(T+4)}")
        for k in range(11):
            if k == 10: a(f"s_cmp_ge_u32 {sr(S_W)}, 1\ns_cbranch_scc1 L_wf2")
            a(f"s_add_u32 m0, {sr(T)}, {LM + 4096*k}\ns_add_u32 {sr(T+1)}, {sr(T+2)}, {4096*k}")
            a(f"buffer_load_dwordx4 {vr(V_DMA)}, {sr(S_X,4)}, {sr(T+1)} offen lds")
        a.label("L_wf2")
        self.srd(S_DW, 66, 67, 864)
        a(f"""v_lshrrev_b32 {vr(TM)}, 4, v0
        v_mul_u32_u24 {vr(TM)}, 288, {vr(TM)}
        v_bfe_u32 {vr(TM+1)}, v0, 2, 2
        v_lshl_add_u32 {vr(TM)}, {vr(TM+1)}, 6, {vr(TM)}
        v_and_b32 {vr(TM+1)}, 3, v0
        v_lshl_add_u32 {vr(TM)}, {vr(TM+1)}, 3, {vr(TM)}
        buffer_load_dwordx2 v[16:17], {vr(TM)}, {sr(S_DW,4)}, 0 offen
        buffer_load_dwordx2 v[18:19], {vr(TM)}, {sr(S_DW,4)}, 0 offen offset:32
        s_mov_b32 {sr(T+1)}, {WS_DWF}
        s_waitcnt vmcnt(0)
        buffer_store_dwordx4 v[16:19], {vr(V_DMA)}, {sr(S_WS,4)}, {sr(T+1)} offen sc1""")
        self.tr_addr(AD, LM, False, TM + 8)
        self.row_addr(AD + 3, LA, TM + 8)
        a(f"v_add_u32 {vr(AD+5)}, {LB_}, {vr(AD+3)}")
        a(f"v_lshlrev_b32 {vr(AD+4)}, 3, v0")
        a(f"s_lshl_b32 {sr(T)}, {sr(S_W)}, 5")
        for k in range(3): a(f"v_add_u32 {vr(AD+k)}, {sr(T)}, {vr(AD+k)}")
        a(f"s_mov_b32 {sr(S_CNT)}, {sr(S_W)}")
        a("s_waitcnt vmcnt(0)\ns_barrier")
        a.label("L_wfl")
        for s in self.tr_reads(AD, vr)(0, BF): a(s)
        a("s_waitcnt lgkmcnt(0)")
        self.gemm(self.row_reads(AD + 3), BF, ACC, AF)
        for i in range(18): a(f"v_cvt_pk_bf16_f32 {vr(BF+i)}, {vr(ACC+2*i)}, {vr(ACC+2*i+1)}")
        a("s_cmp_eq_u32 s2, 252\ns_cbranch_scc0 L_wf3")
        self.gemm(self.row_reads(AD + 5), BF, ACC, AF)
        for i in range(18): a(f"v_cvt_pk_bf16_f32 {vr(BF+i)}, {vr(ACC+2*i)}, {vr(ACC+2*i+1)}")
        a.label("L_wf3")
        a(f"""s_mul_i32 {sr(T)}, {sr(S_CNT)}, {BLK}
        s_add_u32 {sr(T)}, {sr(T)}, {sr(T+4)}
        s_add_u32 {sr(T)}, {sr(T)}, {WS_WF}
        s_add_u32 {sr(T+1)}, {sr(T)}, 4096""")
        self.store_block(BF, V_DMA, AD + 4, S_WS, T, T + 1, "sc1")
        for k in range(3): a(f"v_add_u32 {vr(AD+k)}, 128, {vr(AD+k)}")
        a(f"s_add_u32 {sr(S_CNT)}, {sr(S_CNT)}, 4\ns_cmp_lt_u32 {sr(S_CNT)}, 9\ns_cbranch_scc1 L_wfl")
        a(f"""s_waitcnt vmcnt(0)
        s_barrier
        s_cmp_lg_u32 {sr(S_W)}, 0
        s_cbranch_scc1 L_end
        s_mov_b64 exec, 1
        v_mov_b32 {vr(TM)}, 1
        v_mov_b32 {vr(TM+1)}, {DB_CW}
        buffer_atomic_add {vr(TM)}, {vr(TM+1)}, {sr(S_DB,4)}, 0 offen sc1
        v_mov_b32 {vr(TM+1)}, {DB_CW + 128}
        buffer_atomic_add {vr(TM)}, {vr(TM+1)}, {sr(S_DB,4)}, 0 offen sc1
        s_endpgm""")

    def dump_stamps(self):
        a = self.a
        if self.o.get("echo"):
            if self.o["echo"][0] == "skew":
                a(f"v_mov_b32 v16, 4\nbuffer_load_dword v17, v16, {sr(S_DB,4)}, 0 offen sc1\ns_waitcnt vmcnt(0)\nv_readfirstlane_b32 s98, v17\ns_not_b32 s98, s98")
                x, y = 98, S_ST + 2 * self.stnames.index(self.o["echo"][1])
            else:
                x, y = [S_ST + 2 * self.stnames.index(n) for n in self.o["echo"]]
            a(f"""s_cmp_eq_u32 {sr(S_VAL)}, 0
            s_cbranch_scc1 L_end
            s_memrealtime s[4:5]
            s_waitcnt lgkmcnt(0)
            s_sub_u32 s6, {sr(y)}, {sr(x)}
            s_add_u32 s6, s6, s4""")
            a.label("L_echo")
            a("s_memrealtime s[4:5]\ns_waitcnt lgkmcnt(0)\ns_sub_u32 s7, s6, s4\ns_cmp_gt_i32 s7, 0\ns_cbranch_scc1 L_echo")
            return
        if self.o.get("dbgst"):
            a("s_waitcnt vmcnt(0)")
            self.stamp("done")
            a("s_waitcnt lgkmcnt(0)\ns_mov_b64 exec, 1")
            slots = [1, 2, 3, 4, 5, 6, 7, 9, 11, 12, 13, 14, 15]
            a(f"s_not_b32 {sr(S_T)}, {sr(S_ST)}\nv_mov_b32 v16, {sr(S_T)}\nv_mov_b32 v17, 4\nbuffer_atomic_umax v16, v17, {sr(S_DB,4)}, 0 offen sc1")
            for i in range(min(self.nst, 12)):
                a(f"v_mov_b32 v{18+2*i}, {sr(S_ST+2*i)}\nv_mov_b32 v{19+2*i}, {4*slots[i+1]}\nbuffer_atomic_umax v{18+2*i}, v{19+2*i}, {sr(S_DB,4)}, 0 offen sc1")
            return
        if not self.o.get("stamps"): return
        T = S_T
        a(f"""s_waitcnt lgkmcnt(0)
        s_lshl_b32 {sr(T)}, s2, 2
        s_add_u32 {sr(T)}, {sr(T)}, {sr(S_W)}
        s_lshl_b32 {sr(T)}, {sr(T)}, 7
        s_add_u32 {sr(T)}, {sr(T)}, {WS_DBG}
        v_mov_b32 v1, 0""")
        for i in range(26): a(f"v_mov_b32 {vr(16+i)}, {sr(S_ST+i)}")
        for i in range(7): a(f"buffer_store_dwordx4 {vr(16+4*i,4)}, v1, {sr(S_WS,4)}, {sr(T)} offen offset:{16*i}")

    def build(self):
        a = self.a
        self.stnames = []
        a.raw(f"; @launch grid=({NWG},1,1) block=(256,1,1) lds={LDS_TOTAL}")
        a.raw('.amdgcn_target "amdgcn-amd-amdhsa--gfx950"')
        a.raw(".text")
        a.raw(f".globl {NAME}")
        self.entry()
        self.phase_a()
        self.rest()
        a.label("L_fin")
        self.dump_stamps()
        a.label("L_end")
        a("s_endpgm")
        self.rare()
        self.fallback()
        self.wfuse()
        a.raw('.section .rodata,"a"')
        a.raw(".p2align 6")
        a.raw(kernel_desc(NAME, 512, 102, 256))
        return a.text()

    def S(self, buf, qb, i=0): return V_S + buf * 32 + qb * 8 + i
    def P(self, buf, qb, i=0): return V_P + buf * 16 + qb * 4 + i

    def k_reads(self, slot):
        ka, so = (V_KA, slot * SLOT) if slot < 2 else (V_HI, (slot - 2) * SLOT)
        out = [f"ds_read_b128 {vr(V_K+8*s+4*kb,4)}, {vr(ka)} offset:{so + 2048*s + 256*kb}" for s in range(4) for kb in range(2)]
        out += [f"ds_read_b64 {vr(V_K+32+2*kb,2)}, {vr(ka+1)} offset:{so + 8192 + 512*kb}" for kb in range(2)]
        return out

    def v_reads(self, slot):
        ka, so = (V_KA, slot * SLOT) if slot < 2 else (V_HI, (slot - 2) * SLOT)
        out = []
        for T in range(9):
            for u in range(2):
                if T < 8: out.append(f"ds_read_b64_tr_b16 {vr(V_V+4*T+2*u,2)}, {vr(ka+2+(T&1))} offset:{so + 2048*(T>>1) + 256*u}")
                else: out.append(f"ds_read_b64_tr_b16 {vr(V_V+4*T+2*u,2)}, {vr(ka+4)} offset:{so + 8192 + 512*u}")
        return out

    def qk_mfmas(self, buf, czero=False):
        out = []
        for s in range(5):
            for kb in range(2):
                for qb in range(4):
                    d = vr(self.S(buf, qb, 4 * kb), 4)
                    c = ("0" if czero else vr(V_CI + 4 * qb, 4)) if s == 0 else d
                    if s < 4: out.append(f"v_mfma_f32_16x16x32_bf16 {d}, {vr(V_K+8*s+4*kb,4)}, {ar(A_Q+18*qb+4*s,4)}, {c}")
                    else: out.append(f"v_mfma_f32_16x16x16_bf16 {d}, {vr(V_K+32+2*kb,2)}, {ar(A_Q+18*qb+16,2)}, {c}")
        return out

    def pv_mfmas(self, buf, czero=False):
        out = []
        for T in range(9):
            for qb in range(4):
                o = ar(A_O + 36 * qb + 4 * T, 4)
                out.append(f"v_mfma_f32_16x16x32_bf16 {o}, {vr(V_V+4*T,4)}, {vr(self.P(buf,qb),4)}, {'0' if czero else o}")
        return out

    def plan(self):
        o = self.o
        n = 76
        fixed = [None] * n
        for i, g in enumerate(range(1, 36, 2)): fixed[g] = ("V", i)
        for i, g in enumerate([41, 44, 47, 50, 53, 56, 59, 62, 65, 68]): fixed[g] = ("K", i)
        for i, g in enumerate([42, 46, 49, 52, 55, 58, 61, 64, 67]): fixed[g] = ("D", i)
        exps = [(qb, j) for qb in range(4) for j in range(8)]
        start = 40
        order = [(start + k) % n for k in range(n)]
        free_idx = [k for k, g in enumerate(order) if fixed[g] is None]
        nsm = len(free_idx) - 32
        cand = free_idx[6:-2]
        sm_set = set(free_idx[-2:]) | {cand[int((i + 0.5) * len(cand) / (nsm - 2))] for i in range(nsm - 2)}
        nds = sum(1 for f in fixed if f is not None and f[0] != "D")
        over = 48 - nds - 2 * nsm
        ocand = [k for k, g in enumerate(order) if k >= 20 and (fixed[g] is None or fixed[g][0] != "D")]
        o_set = {ocand[int((i + 0.5) * len(ocand) / over)] for i in range(over)}
        gaps = [[] for _ in range(n)]
        small, pend, ei = [], [], 0
        for k, g in enumerate(order):
            new = (start + k) < n
            small.extend(pend); pend = []
            small.sort(key=lambda t: 0 if t[0] == "c" else 1)
            f = fixed[g]
            want = 0
            if f is not None:
                gaps[g].append((f[0], f[1], None))
                if f[0] == "D": continue
                want = 1
            elif k in sm_set: want = 2
            else:
                qb, j = exps[ei]; ei += 1
                gaps[g].append(("E", ("e", qb, j), new))
                if j & 1: pend.append(("c", qb, j // 2))
                pend.append(("a", qb, j))
            if k in o_set: want += 1
            if k == n - 1: want = 99
            for _ in range(want):
                if small: gaps[g].append(("E", small.pop(0), new))
        assert not small and not pend and ei == 32
        self.gaps = gaps

    def etext(self, buf, it):
        kind, qb, j = it
        s = self.S(buf, qb)
        if kind == "e": return f"v_exp_f32 {vr(s+j)}, {vr(s+j)}"
        if kind == "a": return f"v_add_f32 {vr(V_L+qb)}, {vr(V_L+qb)}, {vr(s+j)}"
        return f"v_cvt_pk_bf16_f32 {vr(self.P(buf, qb, j))}, {vr(s+2*j)}, {vr(s+2*j+1)}"

    def period(self, p, qk=True, pv=True, e_old=True, e_new=True, kread=True, vread=True, dma=True, extra={}, dsub=None, ksub=None, vm=9):
        a = self.a
        bn, bo = (p + 1) & 1, p & 1
        mf = self.qk_mfmas(bn) + self.pv_mfmas(bo, czero=(p == 0))
        kr, vrd = self.k_reads((p + 2) % RING), self.v_reads(p % RING)
        slot = p % RING
        n = 76
        sc = [[] for _ in range(n)]
        dgs = [g for g in range(n) if any(e[0] == "D" for e in self.gaps[g])]
        if dma:
            for j, g in enumerate(dgs):
                if j % 4 == 0: sc[g - 1].append(f"s_add_u32 m0, {sr(S_LB)}, {slot*SLOT + 4096*(j//4)}")
            sc[dgs[-1] + 1].append(f"s_add_u32 {sr(S_TOFF)}, {sr(S_TOFF)}, {4*TILE}")
        w = []
        if kread: w.append(f"vmcnt({vm})")
        if pv: w.append("lgkmcnt(0)")
        if w: sc[39].append("s_waitcnt " + " ".join(w))
        if kread: sc[75].append("s_waitcnt lgkmcnt(0)")
        for half in range(2):
            rng = range(0, 40) if half == 0 else range(40, 76)
            on = qk if half == 0 else pv
            if not on:
                ds, mem, val, post = [], [], [], []
                for g in rng:
                    for s_ in sc[g]:
                        (post if s_.startswith("s_waitcnt") else mem).append(s_)
                    if g in extra: mem.append(extra[g])
                    for kind, d, new in self.gaps[g]:
                        if kind == "V" and vread: ds.append(vrd[d])
                        elif kind == "K" and kread: ds.append(kr[d])
                        elif kind == "D" and dma: mem.append(f"buffer_load_dwordx4 {vr(V_DMA + d//4)}, {sr(S_XA,4)}, {sr(S_TOFF)} offen offset:{1024*(d%4)} lds")
                        elif kind == "E" and ((new and e_new) or (not new and e_old)): val.append((d, self.etext(bn if new else bo, d)))
                if half == 1: a("s_nop 3")
                seq, pend = [], list(val)
                while pend:
                    k = 0
                    if seq and seq[-1][0][0] == "e":
                        le = seq[-1][0]
                        dep = lambda it: it[0][1] == le[1] and ((it[0][0] == "a" and it[0][2] == le[2]) or (it[0][0] == "c" and it[0][2] == le[2] // 2))
                        have = {x[0] for x in seq}
                        ok = lambda it: it[0][0] == "e" or (("e", it[0][1], it[0][2]) in have if it[0][0] == "a" else (("e", it[0][1], 2*it[0][2]+1) in have)) or not any(x[0][0] == "e" and x[0][1] == it[0][1] and (x[0][2] == it[0][2] if it[0][0] == "a" else x[0][2] // 2 == it[0][2]) for x in pend)
                        while k < len(pend) and (dep(pend[k]) or not ok(pend[k])): k += 1
                        if k == len(pend): seq.append((("n", 0, 0), "s_nop 0")); k = 0
                    seq.append(pend.pop(k))
                step = max(1, len(seq) // (len(mem) + len(ds) + 1))
                allm = ds + mem
                for x in allm[:6]: a(x)
                allm = allm[6:]
                for i_, (d, t_) in enumerate(seq):
                    a(t_)
                    if allm and i_ % step == step - 1:
                        x = allm.pop(0); a(x)
                        if x.startswith("s_add_u32 m0"): a("s_nop 0")
                for x in allm:
                    a(x)
                    if x.startswith("s_add_u32 m0"): a("s_nop 0")
                for x in post: a(x)
                if half == 0: a("s_nop 1")
                continue
            for g in rng:
                a(mf[g])
                for s_ in sc[g]: a(s_)
                if g in extra: a(extra[g])
                for kind, d, new in self.gaps[g]:
                    if kind == "V":
                        if vread: a(vrd[d])
                    elif kind == "K":
                        if kread: a(kr[d])
                        elif ksub: a(ksub.pop(0))
                    elif kind == "D":
                        if dma: a(f"buffer_load_dwordx4 {vr(V_DMA + d//4)}, {sr(S_XA,4)}, {sr(S_TOFF)} offen offset:{1024*(d%4)} lds")
                        elif dsub: a(dsub.pop(0))
                    elif (new and e_new) or (not new and e_old):
                        a(self.etext(bn if new else bo, d))

    MK, VO, GA, DWA, VPL = 232, 236, 238, 244, 248
    NB, PT, E_U, E_G, E_U2, E_G2, E_DW, E_COL = 56, 57, 58, 59, 60, 61, 62, 63
    U, GM, G0, GP, DW = 128, 138, 148, 16, 26
    WD = [("a", 216), ("a", 234), ("v", 208)]
    WO = [("a", 0), ("a", 18), ("a", 36)]

    def epi_setup(self):
        T = S_T
        NB, PT, VO, GA, DWA = self.NB, self.PT, self.VO, self.GA, self.DWA
        r, g4, x, y, big = 208, 209, 210, 211, 212
        L = [f"s_lshr_b32 {sr(NB)}, {sr(S_W)}, 1\nv_and_b32 {vr(r)}, 15, v0\nv_lshrrev_b32 {vr(g4)}, 4, v0",
             f"s_and_b32 {sr(PT)}, {sr(S_W)}, 1\nv_mul_u32_u24 {vr(x)}, 288, {vr(r)}\nv_lshlrev_b32 {vr(DWA)}, 3, {vr(g4)}",
             f"s_lshl_b32 {sr(T)}, {sr(S_TOWN)}, 1\nv_add_u32 {vr(x)}, {vr(x)}, {vr(DWA)}\nv_mov_b32 {vr(big)}, 0x40000000",
             f"s_add_u32 {sr(T)}, {sr(T)}, {sr(NB)}\ns_lshl_b32 {sr(T)}, {sr(T)}, 4\ns_mul_i32 {sr(T+1)}, {sr(S_TOWN)}, {TILE}",
             f"s_mul_i32 {sr(T+2)}, {sr(PT)}, {BLK}\nv_add_u32 {vr(r)}, {sr(T)}, {vr(r)}\nv_add_u32 {vr(x)}, {sr(T+1)}, {vr(x)}",
             f"s_sub_u32 {sr(T+3)}, {BLK}, {sr(T+2)}\nv_add_u32 {vr(VO)}, {sr(T+2)}, {vr(x)}",
             f"s_mul_i32 {sr(T)}, {sr(S_B)}, 4000\nv_add_u32 {vr(VO+1)}, {sr(T+3)}, {vr(x)}",
             f"s_add_u32 {sr(T+1)}, {sr(T)}, 3999\ns_mov_b32 {sr(T+2)}, {BLK}\ns_lshl_b32 {sr(T+3)}, {sr(PT)}, 11",
             f"s_add_u32 {sr(self.E_U)}, {sr(T+3)}, {WS_U}\ns_add_u32 {sr(self.E_G)}, {sr(T+3)}, {WS_G}\ns_mov_b32 {sr(self.E_U2)}, {WS_U + 4096}",
             f"s_mov_b32 {sr(self.E_G2)}, {WS_G + 4096}\ns_lshl_b32 {sr(self.E_DW)}, {sr(PT)}, 7\ns_lshl_b32 {sr(self.E_COL)}, {sr(S_W)}, 6",
             f"s_add_u32 {sr(self.E_DW)}, {sr(self.E_DW)}, {WS_DWF}\nv_lshlrev_b32 {vr(DWA+1)}, 4, {vr(g4)}\nv_lshlrev_b32 {vr(DWA+2)}, 3, v0",
             f"v_add_u32 {vr(DWA+2)}, 4096, {vr(DWA+2)}"]
        for k, dr in enumerate((0, -1, 1)):
            m = GA + 2 * k
            src = r
            if dr:
                L.append(f"v_add_u32 {vr(m)}, {dr}, {vr(r)}\nv_cmp_eq_u32 vcc, {sr(T if dr < 0 else T+1)}, {vr(r)}")
                src = m
            L.append(f"v_lshrrev_b32 {vr(x)}, 4, {vr(src)}\nv_and_b32 {vr(y)}, 15, {vr(src)}")
            L.append(f"v_mul_lo_u32 {vr(x)}, {vr(x)}, {sr(T+2)}\nv_lshl_add_u32 {vr(y)}, {vr(g4)}, 4, {vr(y)}")
            L.append(f"v_lshl_add_u32 {vr(m)}, {vr(y)}, 4, {vr(x)}\nv_lshl_add_u32 {vr(m+1)}, {vr(y)}, 3, {vr(x)}")
            if dr: L.append(f"v_cndmask_b32 {vr(m)}, {vr(m)}, {vr(big)}, vcc\nv_cndmask_b32 {vr(m+1)}, {vr(m+1)}, {vr(big)}, vcc")
        return L

    def dwreg(self, k): return [26, 36, 96][k]

    def conv_loads(self):
        GA = self.GA
        L = []
        for dst, m, so in ((self.GM, GA + 2, 1), (self.G0, GA, 1), (self.GP, GA + 4, 1), (self.U, GA, 0)):
            for k in range(2): L.append(f"buffer_load_dwordx4 {vr(dst+4*k,4)}, {vr(m)}, {sr(S_WS,4)}, {sr(self.E_U+so)} offen offset:{1024*k} sc1")
            L.append(f"buffer_load_dwordx2 {vr(dst+8,2)}, {vr(m+1)}, {sr(S_WS,4)}, {sr(self.E_U2+so)} offen sc1")
        for k in range(3):
            for i in range(2): L.append(f"buffer_load_dwordx4 {vr(self.dwreg(k)+4*i,4)}, {vr(self.DWA+1)}, {sr(S_WS,4)}, {sr(self.E_DW)} offen offset:{256*k + 64*i} sc1")
            L.append(f"buffer_load_dwordx2 {vr(self.dwreg(k)+8,2)}, {vr(self.DWA)}, {sr(S_DW,4)}, 0 offen offset:{288*k + 256}")
        return L

    def w_loads(self, mat, regs, sb):
        L = []
        for tt in range(3):
            rf = ar if regs[tt][0] == "a" else vr
            for s in range(4): L.append(f"buffer_load_dwordx4 {rf(regs[tt][1]+4*s,4)}, {vr(V_DMA)}, {sr(S_WS,4)}, {sr(sb+tt)} offen offset:{1024*s} sc1")
            L.append(f"buffer_load_dwordx2 {rf(regs[tt][1]+16,2)}, {vr(self.DWA+2)}, {sr(S_WS,4)}, {sr(sb+tt)} offen sc1")
        return L

    def xa_srd(self):
        T = S_T
        return f"""s_mul_i32 {sr(T)}, {sr(S_B)}, {NT}
        s_mul_i32 {sr(T+1)}, {sr(S_H)}, 63
        s_add_u32 {sr(T+1)}, {sr(T+1)}, {sr(T)}
        s_mul_i32 {sr(T+1)}, {sr(T+1)}, {TILE}
        s_add_u32 {sr(S_XA)}, {sr(S_WS)}, {sr(T+1)}
        s_addc_u32 {sr(S_XA+1)}, {sr(S_WS+1)}, 0
        s_sub_u32 {sr(T+2)}, 63, {sr(S_H)}
        s_mul_i32 {sr(S_XA+2)}, {sr(T+2)}, {TILE}
        s_mov_b32 {sr(S_XA+3)}, 0x20000"""

    def rest(self):
        a, o = self.a, self.o
        T = S_T
        VPL = self.VPL
        self.plan()
        a.label("L_go")
        for qb in range(4):
            for i in range(4): a(f"v_mov_b32 {vr(V_CI+4*qb+i)}, {vr(self.MK+qb)}")
        for k in range(5): a(f"v_add_u32 {vr(V_HI+k)}, {2*SLOT}, {vr(V_KA+k)}")
        for i in range(4): a(f"v_mov_b32 {vr(V_L+i)}, 0")
        a(f"""s_mov_b32 {sr(S_CNT)}, 0
        s_lshl_b32 {sr(T)}, {sr(S_B)}, 7
        s_add_u32 {sr(T)}, {sr(T)}, {DB_CB}
        v_mov_b32 {vr(VPL)}, {sr(T)}
        s_waitcnt lgkmcnt(0)
        s_barrier""")
        self.stamp("bar5")
        t2 = self.tile_groups(2)
        ex = {1 + 4 * i: t2[i] for i in range(9)}
        es = self.epi_setup()
        for g in range(40):
            if g not in ex and es: ex[g] = es.pop(0)
        assert not es
        self.period(-1, pv=False, e_old=False, vread=False, extra=ex, vm=14)
        self.stamp("loop")
        if o.get("echo") and o["echo"][0] == "skew":
            a(f"s_waitcnt lgkmcnt(0)\ns_mov_b64 exec, 1\ns_not_b32 s98, {sr(S_ST)}\nv_mov_b32 v250, s98\nv_mov_b32 v251, 4\ns_cmp_lg_u32 {sr(S_W)}, 0\ns_cbranch_scc1 L_sk\nbuffer_atomic_umax v250, v251, {sr(S_DB,4)}, 0 offen sc1\ns_waitcnt vmcnt(0)\nL_sk:\ns_mov_b64 exec, -1\ns_nop 3")
        ex = {43: "s_barrier",
              45: (f"s_or_b32 {sr(T)}, {sr(S_W)}, {sr(S_REDO)}\ns_cmp_lg_u32 {sr(T)}, 0\ns_cbranch_scc1 L_nocb\ns_mov_b64 exec, 1\nv_mov_b32 {vr(VPL+1)}, 1\n"
                   f"buffer_atomic_add {vr(VPL+1)}, {vr(VPL)}, {sr(S_DB,4)}, 0 offen sc1\ns_mov_b64 exec, -1\ns_nop 3\nL_nocb:")}
        self.period(0, extra=ex)
        a.raw(".p2align 6")
        a.label("L_loop")
        for p in range(1, 5):
            ex = {}
            if p == 3: ex = {70: f"buffer_load_dwordx4 v[252:255], {vr(VPL)}, {sr(S_DB,4)}, 0 offen sc1"}
            if p == 4: ex = {72: f"s_add_u32 {sr(S_CNT)}, {sr(S_CNT)}, 1", 73: f"s_cmp_lt_u32 {sr(S_CNT)}, 3"}
            self.period(p, extra=ex)
        a("s_cbranch_scc1 L_loop")
        self.stamp("p13")
        SW = 66
        a(f"s_waitcnt vmcnt(9)\ns_mov_b32 {sr(T+2)}, 0")
        a.label("L_late")
        a(f"""v_readfirstlane_b32 {sr(T)}, v252
        v_readfirstlane_b32 {sr(T+1)}, v254
        s_add_u32 {sr(SW+3)}, {sr(S_LB)}, {WS_WF}
        s_add_u32 {sr(SW+4)}, {sr(S_LB)}, {WS_WF + BLK}
        s_mov_b32 {sr(SW+5)}, {WS_WF + 8*BLK}
        s_add_u32 {sr(SW)}, {sr(S_LB)}, {WS_WF + 9*BLK}
        s_add_u32 {sr(SW+1)}, {sr(S_LB)}, {WS_WF + 10*BLK}
        s_mov_b32 {sr(SW+2)}, {WS_WF + 17*BLK}
        s_cmp_ge_u32 {sr(T)}, 126
        s_cselect_b32 {sr(T+3)}, {sr(T+1)}, 0
        s_cmp_ge_u32 {sr(T+3)}, 2
        s_cbranch_scc0 L_late1""")
        a.label("L_late0")
        wd = self.w_loads(1, self.WD, SW)
        pf = (f"s_lshr_b32 {sr(T)}, s2, 3\ns_lshl_b32 {sr(T)}, {sr(T)}, 2\ns_add_u32 {sr(T)}, {sr(T)}, {sr(S_W)}\ns_and_b32 {sr(T)}, {sr(T)}, 63\ns_min_u32 {sr(T)}, {sr(T)}, 40\n"
              f"s_lshl_b32 {sr(T)}, {sr(T)}, 10\ns_add_u32 {sr(T)}, {sr(T)}, {WS_WF}\nbuffer_load_dwordx4 v[252:255], {vr(V_DMA)}, {sr(S_WS,4)}, {sr(T)} offen")
        self.period(13, dma=False, dsub=wd[:8] + [pf], vm=9)
        a(f"s_cmp_eq_u32 {sr(S_DUM)}, 4\ns_cbranch_scc1 L_dummy")
        a.label("L_dummyb")
        cl = self.conv_loads()
        self.period(14, dma=False, kread=False, dsub=cl[:9], ksub=cl[9:18])
        self.stamp("tail")
        self.tail(cl[18:], wd[8:])
        self.stamp("end")
        self.epilogue(SW)

    def rare(self):
        a = self.a
        T = S_T
        a.label("L_dummy")
        for i in range(16): a(f"v_mov_b32 {vr(V_CI+i)}, 0xff800000")
        a("s_nop 1\ns_branch L_dummyb")
        a.label("L_late1")
        a(f"""buffer_load_dwordx4 v[252:255], {vr(self.VPL)}, {sr(S_DB,4)}, 0 offen sc1
        s_add_u32 {sr(T+2)}, {sr(T+2)}, 1
        s_waitcnt vmcnt(0)
        s_cmp_lt_u32 {sr(T+2)}, 0x40000
        s_cbranch_scc1 L_late
        s_branch L_late0""")

    L_X2 = L_SP
    L_L = L_SP + 9216
    units = [(0, 0), (0, 1), (1, 0), (1, 1), (2, 0)]
    XR = 158
    def mreg(self, k, i, h):
        n = (k * 10 + i) * 2 + h
        return 48 + n if n < 48 else (106 + n - 48 if n < 54 else 226 + n - 54)

    def tail(self, cl, wd):
        a = self.a
        T = S_T
        VST = 247
        ex = {i: x for i, x in enumerate(cl)}
        ex[5] = f"v_add_u32 {vr(VST)}, {sr(S_LB)}, {vr(V_DMA)}"
        n0 = len(a.lines)
        self.period(15, qk=False, e_new=False, kread=False, dma=False, extra=ex)
        k = next(i for i in range(n0, len(a.lines)) if "v_mfma" in a.lines[i])
        del a.lines[k:]
        wr = [f"ds_write_b128 {vr(VST)}, {ar(A_O+36*qb+4*i,4)} offset:{SLOT*qb + 1024*i}" for qb in range(2) for i in range(9)]
        va = []
        for i in range(10):
            for k_ in range(3):
                va.append(f"v_and_b32 {vr(self.mreg(k_,i,0))}, 0xffff, {vr(self.dwreg(k_)+i)}")
                va.append(f"v_and_b32 {vr(self.mreg(k_,i,1))}, 0xffff0000, {vr(self.dwreg(k_)+i)}")
        n = 0
        for qb in range(4):
            for Tt in range(9):
                o_ = ar(A_O + 36 * qb + 4 * Tt, 4)
                a(f"v_mfma_f32_16x16x32_bf16 {o_}, {vr(V_V+4*Tt,4)}, {vr(self.P(1,qb),4)}, {o_}")
                if n == 3: a("s_waitcnt vmcnt(0)")
                if n > 3 and n % 2 == 1 and wd:
                    a(wd.pop(0)); n += 1; continue
                k_ = 2
                if n >= 12 and n % 2 == 0 and (len(wr) > 9 or n >= 22): a(wr.pop(0)); k_ = 1
                if n >= 3:
                    for _ in range(k_):
                        if va: a(va.pop(0))
                n += 1
        for x in va: a(x)
        self.wr_left = wr

    def epilogue(self, SW):
        a, o = self.a, self.o
        T = S_T
        p = lambda r: vr(r, 2)
        L_L, L_FL, L_X2 = self.L_L, self.L_L + 1024, self.L_X2
        NB, PT, MK, VO, units = self.NB, self.PT, self.MK, self.VO, self.units
        U, GM, G0, GP = self.U, self.GM, self.G0, self.GP
        VST, VL8 = 247, self.DWA + 2
        t = 164
        C, UU, PKD = 180, 112, 26
        wr = self.wr_left
        n0 = len(a.lines)
        self.greduce([V_L + i for i in range(4)], t)
        a(f"""v_add_f32 {vr(t+1)}, {vr(V_L)}, {vr(V_L+1)}
        v_add_f32 {vr(t+2)}, {vr(V_L+2)}, {vr(V_L+3)}
        v_add_f32 {vr(t+1)}, {vr(t+1)}, {vr(t+2)}
        v_mov_b32 {vr(t+2)}, {f32(2.0**100)}
        v_cmp_nle_f32 vcc, {vr(t+1)}, {vr(t+2)}
        v_and_b32 {vr(t+3)}, 15, v0
        v_lshlrev_b32 {vr(t+3)}, 4, {vr(t+3)}
        s_lshl_b32 {sr(T)}, {sr(S_W)}, 2
        s_add_u32 {sr(T)}, {sr(T)}, {L_L}
        v_add_u32 {vr(t+4)}, {sr(T)}, {vr(t+3)}
        s_cmp_lg_u64 vcc, 0
        s_cselect_b32 {sr(T+1)}, 1, 0
        v_mov_b32 {vr(t+5)}, {sr(T+1)}
        v_mov_b32 {vr(t+6)}, {sr(T)}""")
        for k_, src in enumerate((GM, G0, GP)):
            for i in range(10):
                for h in range(2):
                    a(f"v_dot2_f32_bf16 {vr(C+2*i+h)}, {vr(src+i)}, {vr(self.mreg(k_,i,h))}, {'0' if k_ == 0 else vr(C+2*i+h)}")
        UUr = 48
        for i in range(10):
            a(f"v_lshlrev_b32 {vr(UUr+2*i)}, 16, {vr(U+i)}\nv_and_b32 {vr(UUr+1+2*i)}, 0xffff0000, {vr(U+i)}")
        for i in range(10): a(f"v_pk_mul_f32 {p(C+2*i)}, {p(C+2*i)}, {p(UUr+2*i)}")
        for i in range(10): a(f"v_cvt_pk_bf16_f32 {vr(PKD+i)}, {vr(C+2*i)}, {vr(C+2*i+1)}")
        a(f"""s_mul_i32 {sr(T)}, {sr(NB)}, {SLOT}
        s_lshl_b32 {sr(T+1)}, {sr(PT)}, 12
        s_add_u32 {sr(T)}, {sr(T)}, {sr(T+1)}
        v_add_u32 {vr(t+7)}, {sr(T)}, {vr(V_DMA)}
        s_lshl_b32 {sr(T+1)}, {sr(NB)}, 8
        s_add_u32 {sr(T+1)}, {sr(T+1)}, {L_L}
        v_add_u32 {vr(t+9)}, {sr(T+1)}, {vr(t+3)}
        v_mov_b32 {vr(t+10)}, {L_FL}
        s_lshl_b32 {sr(T)}, {sr(NB)}, 12
        s_lshl_b32 {sr(T+1)}, {sr(PT)}, 11
        s_add_u32 {sr(T)}, {sr(T)}, {sr(T+1)}
        v_add_u32 {vr(t+11)}, {sr(T)}, {vr(V_DMA)}
        s_lshl_b32 {sr(T)}, {sr(NB)}, 9
        s_add_u32 {sr(T)}, {sr(T)}, 4096
        v_add_u32 {vr(t+12)}, {sr(T)}, {vr(VL8)}
        v_add_u32 {vr(t+13)}, {L_X2}, {vr(t+11)}
        v_add_u32 {vr(t+14)}, {L_X2}, {vr(t+12)}""")
        body = a.lines[n0:]; del a.lines[n0:]
        for i, l in enumerate(body):
            if i % 12 == 0 and wr: a(wr.pop(0))
            a.lines.append(l)
        for x in wr: a(x)
        VROW16, VRD, VX1, VX1R = t + 3, t + 7, t + 11, t + 12
        for qb in range(4): a(f"ds_write_b32 {vr(t+4)}, {vr(V_L+qb)} offset:{256*qb}")
        a(f"""ds_write_b32 {vr(t+6)}, {vr(t+5)} offset:1024
        ds_write_b128 {vr(t+13)}, {vr(PKD,4)}
        ds_write_b128 {vr(t+13)}, {vr(PKD+4,4)} offset:1024
        s_cmp_eq_u32 {sr(PT)}, 0
        s_cbranch_scc1 L_e3
        ds_write_b64 {vr(t+14)}, {vr(PKD+8,2)}""")
        a.label("L_e3")
        a("s_waitcnt lgkmcnt(0)\ns_barrier")
        self.stamp("B1")
        R = 48
        F = 180
        a(f"ds_read_b128 {vr(F,4)}, {vr(t+10)}\nds_read_b128 {vr(F+4,4)}, {vr(t+9)}")

        def reduce4():
            for w in range(4):
                for i in range(5): a(f"ds_read_b128 {vr(R+20*w+4*i,4)}, {vr(VRD)} offset:{TILE*w + 1024*i}")
                if w == 1: yield
            yield
            for w in range(1, 4):
                a(f"s_waitcnt lgkmcnt({5*(3-w)})")
                for i in range(10): a(f"v_pk_add_f32 {p(R+2*i)}, {p(R+2*i)}, {p(R+20*w+2*i)}")
            for i in range(10): a(f"v_cvt_pk_bf16_f32 {vr(R+20+i)}, {vr(R+2*i)}, {vr(R+2*i+1)}")
        g = reduce4(); next(g)
        a(f"""s_xor_b32 {sr(T)}, s2, 1
        s_mul_i32 {sr(T)}, {sr(T)}, {IB}
        s_mul_i32 {sr(T+1)}, {sr(NB)}, 5120
        s_add_u32 {sr(T)}, {sr(T)}, {sr(T+1)}
        s_add_u32 {sr(T)}, {sr(T)}, {WS_IB}
        s_lshl_b32 {sr(T+1)}, {sr(PT)}, 11
        s_add_u32 {sr(T+1)}, {sr(T+1)}, {sr(T)}
        s_add_u32 {sr(T)}, {sr(T)}, 4096
        s_cmp_eq_u32 {sr(PT)}, 0
        s_cselect_b32 {sr(T)}, 0x40000000, {sr(T)}""")
        next(g)
        a(f"""s_waitcnt lgkmcnt(15)
        v_or_b32 {vr(F)}, {vr(F)}, {vr(F+1)}
        v_or3_b32 {vr(F)}, {vr(F)}, {vr(F+2)}, {vr(F+3)}
        v_add_f32 {vr(F+4)}, {vr(F+4)}, {vr(F+5)}
        v_add_f32 {vr(F+6)}, {vr(F+6)}, {vr(F+7)}
        v_readfirstlane_b32 {sr(T+2)}, {vr(F)}
        v_add_f32 {vr(F+4)}, {vr(F+4)}, {vr(F+6)}
        s_andn2_b32 {sr(T+2)}, {sr(T+2)}, {sr(S_REDO)}
        s_cbranch_scc1 L_fallback
        s_cmp_eq_u32 {sr(NB)}, 1
        s_cselect_b64 vcc, -1, 0""")
        for _ in g: pass
        a(f"""v_mov_b32 {vr(R+30)}, {vr(F+4)}
        v_cndmask_b32 {vr(R+31)}, {vr(MK)}, {vr(MK+1)}, vcc
        buffer_store_dwordx4 {vr(R+20,4)}, {vr(V_DMA)}, {sr(S_WS,4)}, {sr(T+1)} offen sc1
        buffer_store_dwordx4 {vr(R+24,4)}, {vr(V_DMA)}, {sr(S_WS,4)}, {sr(T+1)} offen offset:1024 sc1
        buffer_store_dwordx4 {vr(R+28,4)}, {vr(V_DMA)}, {sr(S_WS,4)}, {sr(T)} offen sc1""")
        self.stamp("sent")
        a(f"s_cmp_eq_u32 {sr(S_VAL)}, 0\ns_cbranch_scc1 L_fin")
        ad = 188
        a(f"""s_lshl_b32 {sr(T)}, {sr(PT)}, 12
        v_add_u32 {vr(ad)}, {sr(T)}, {vr(V_DMA)}
        v_xor_b32 {vr(ad+1)}, 4096, {vr(ad)}
        s_lshl_b32 {sr(T)}, {sr(PT)}, 9
        s_add_u32 {sr(T)}, {sr(T)}, 4096
        v_add_u32 {vr(ad+2)}, {sr(T)}, {vr(VL8)}
        v_xor_b32 {vr(ad+3)}, 512, {vr(ad+2)}""")
        for k_ in range(4): a(f"v_add_u32 {vr(ad+4+k_)}, {L_X2}, {vr(ad+k_)}")
        a(f"v_add_u32 {vr(VST)}, {2*SLOT}, {vr(VST)}")

        def bfrags(dst, b):
            for j in range(2):
                for s in range(4): a(f"ds_read_b128 {vr(dst[j]+4*s,4)}, {vr(b+j)} offset:{1024*s}")
                a(f"ds_read_b64 {vr(dst[j]+16,2)}, {vr(b+2+j)}")

        def fgemm(acc, W, Bf, fill=()):
            fill = list(fill)
            for s in range(5):
                for u, (tt, j) in enumerate(units):
                    d = vr(acc + 4 * u, 4)
                    rf = ar if W[tt][0] == "a" else vr
                    if s < 4: a(f"v_mfma_f32_16x16x32_bf16 {d}, {rf(W[tt][1]+4*s,4)}, {vr(Bf[j]+4*s,4)}, {'0' if s == 0 else d}")
                    else:
                        if u == 0: a("s_nop 1")
                        a(f"v_mfma_f32_16x16x16_bf16 {d}, {rf(W[tt][1]+16,2)}, {vr(Bf[j]+16,2)}, {d}")
                    if fill: a(fill.pop(0))
            for x in fill: a(x)
        BU = [16, 128]
        AB, AO, AP = 84, 104, 208
        XR, LO, IN = 36, 196, 128
        bfrags(BU, ad + 4)
        wr = [f"ds_write_b128 {vr(VST)}, {ar(A_O+36*(2+qb)+4*i,4)} offset:{SLOT*qb + 1024*i}" for qb in range(2) for i in range(9)]
        for x in wr[:4]: a(x)
        wl = self.w_loads(0, self.WO, SW + 3)
        for u, (tt, j) in enumerate(units):
            so = (sr(self.E_COL), 32 * tt) if tt < 2 else ("0", 256)
            wl.append(f"buffer_load_dwordx2 {vr(XR+2*u,2)}, {vr(VO+j)}, {sr(S_X,4)}, {so[0]} offen offset:{so[1]}")
        for x in wl[:6]: a(x)
        a("s_waitcnt vmcnt(9) lgkmcnt(4)")
        fl = []
        for k_ in range(14): fl += [wr[4 + k_], wl[6 + k_]]
        fgemm(AB, self.WD, BU, fill=fl)
        a(f"""v_add_u32 {vr(VRD)}, {2*SLOT}, {vr(VRD)}
        s_lshl_b32 {sr(T)}, {sr(PT)}, 8
        s_add_u32 {sr(T)}, {sr(T)}, {L_L + 512}
        v_add_u32 {vr(ad+4)}, {sr(T)}, {vr(VROW16)}
        v_xor_b32 {vr(ad+5)}, 256, {vr(ad+4)}
        s_mul_i32 {sr(T+12)}, s2, {IB}
        s_add_u32 {sr(T+12)}, {sr(T+12)}, {WS_IB}
        s_mul_i32 {sr(T)}, {sr(PT)}, 5120
        s_add_u32 {sr(T+13)}, {sr(T+12)}, 5120
        s_sub_u32 {sr(T+13)}, {sr(T+13)}, {sr(T)}
        s_add_u32 {sr(T+12)}, {sr(T+12)}, {sr(T)}
        s_waitcnt lgkmcnt(0)
        s_barrier""")
        self.stamp("B2")
        R2 = R
        PR = [48, 104, 128, 148]
        for w in range(4):
            for i in range(5): a(f"ds_read_b128 {vr(PR[w]+4*i,4)}, {vr(VRD)} offset:{TILE*w + 1024*i}")
        for w in range(1, 4):
            a(f"s_waitcnt lgkmcnt({5*(3-w)})")
            for i in range(10): a(f"v_pk_add_f32 {p(48+2*i)}, {p(48+2*i)}, {p(PR[w]+2*i)}")
        for i in range(10): a(f"v_cvt_pk_bf16_f32 {vr(68+i)}, {vr(48+2*i)}, {vr(48+2*i+1)}")
        a(f"""ds_write_b128 {vr(VX1)}, v[68:71]
        ds_write_b128 {vr(VX1)}, v[72:75] offset:1024
        s_cmp_eq_u32 {sr(PT)}, 0
        s_cbranch_scc1 L_e2
        ds_write_b64 {vr(VX1R)}, v[76:77]""")
        a.label("L_e2")
        for j in range(2): a(f"ds_read_b128 {vr(LO+4*j,4)}, {vr(ad+4+j)}")

        def inbox():
            for j in range(2):
                for s in range(4): a(f"buffer_load_dwordx4 {vr(IN+20*j+4*s,4)}, {vr(V_DMA)}, {sr(S_WS,4)}, {sr(T+12+j)} offen offset:{1024*s} sc1")
                a(f"buffer_load_dwordx4 {vr(IN+20*j+16,4)}, {vr(V_DMA+1)}, {sr(S_WS,4)}, {sr(T+12+j)} offen sc1")
        a("s_waitcnt lgkmcnt(0)\ns_barrier")
        self.stamp("B3")
        BO = [16, 48]
        bfrags(BO, ad)
        inbox()
        for j in range(2):
            a(f"v_add_f32 {vr(LO+4*j)}, {vr(LO+4*j)}, {vr(LO+4*j+1)}\nv_add_f32 {vr(LO+4*j+2)}, {vr(LO+4*j+2)}, {vr(LO+4*j+3)}\nv_add_f32 {vr(LO+4*j)}, {vr(LO+4*j)}, {vr(LO+4*j+2)}")
        a(f"""s_cmp_eq_u32 {sr(PT)}, 1
        s_cselect_b64 vcc, -1, 0
        s_mov_b32 {sr(T+2)}, 0
        v_cndmask_b32 {vr(LO+1)}, {vr(MK+2)}, {vr(MK+3)}, vcc
        v_cndmask_b32 {vr(LO+5)}, {vr(MK+3)}, {vr(MK+2)}, vcc
        s_waitcnt vmcnt(10) lgkmcnt(0)""")
        xa_ = []
        for u in range(5):
            for h in range(2):
                xa_.append(f"v_lshlrev_b32 {vr(168+4*u+2*h)}, 16, {vr(XR+2*u+h)}\nv_and_b32 {vr(169+4*u+2*h)}, 0xffff0000, {vr(XR+2*u+h)}")
        for u in range(5):
            for h in range(2):
                r = 4 * u + 2 * h
                xa_.append(f"v_add_f32 {vr(AB+r)}, {vr(AB+r)}, {vr(168+r)}\nv_add_f32 {vr(AB+r+1)}, {vr(AB+r+1)}, {vr(169+r)}")
        fgemm(AO, self.WO, BO, fill=xa_)
        self.stamp("own")
        a("s_branch L_inc")
        a.label("L_in")
        inbox()
        a.label("L_inc")
        a(f"s_waitcnt vmcnt(0)\ns_add_u32 {sr(T+2)}, {sr(T+2)}, 1")
        chk = [f"v_max3_u32 v168, {vr(IN)}, {vr(IN+1)}, {vr(IN+2)}", f"v_max3_u32 v169, {vr(IN+3)}, {vr(IN+4)}, {vr(IN+5)}"]
        for k, x in enumerate(range(IN + 6, IN + 40, 2)): chk.append(f"v_max3_u32 v{168+(k&1)}, v{168+(k&1)}, {vr(x)}, {vr(x+1)}")
        chk += ["v_max_u32 v168, v168, v169", "v_cmp_eq_u32 vcc, -1, v168"]
        wt = []
        for j in range(2):
            lo, mo, lp, mp, w = LO + 4 * j, LO + 4 * j + 1, IN + 20 * j + 18, IN + 20 * j + 19, 172 + 4 * j
            wt.append([f"v_min_f32 {vr(w)}, {vr(mo)}, {vr(mp)}", f"v_sub_f32 {vr(w+1)}, {vr(w)}, {vr(mp)}", f"v_sub_f32 {vr(w)}, {vr(w)}, {vr(mo)}",
                       f"v_exp_f32 {vr(w+1)}, {vr(w+1)}", f"v_exp_f32 {vr(w)}, {vr(w)}", f"v_mul_f32 {vr(w+2)}, {vr(w+1)}, {vr(lp)}",
                       f"v_fmac_f32 {vr(w+2)}, {vr(w)}, {vr(lo)}", f"v_rcp_f32 {vr(w+2)}, {vr(w+2)}", f"v_mul_f32 {vr(w)}, {vr(w)}, {vr(w+2)}",
                       f"v_mul_f32 {vr(w+2)}, {vr(w+1)}, {vr(w+2)}"])
        wl_ = [x for pair in zip(*wt) for x in pair]
        fill = [c + "\n" + wl_[i] if i < len(wl_) else c for i, c in enumerate(chk)]
        fgemm(AP, self.WO, [IN, IN + 20], fill=fill)
        a(f"""s_cmp_eq_u64 vcc, 0
        s_cbranch_scc1 L_got
        s_cmp_lt_u32 {sr(T+2)}, 0x10000
        s_cbranch_scc1 L_in""")
        a.label("L_got")
        self.stamp("got")
        for u, (tt, j) in enumerate(units):
            for h in range(2):
                r = 4 * u + 2 * h
                a(f"v_pk_fma_f32 {p(AB+r)}, {p(AO+r)}, {p(172+4*j)}, {p(AB+r)} op_sel_hi:[1,0,1]")
        for u, (tt, j) in enumerate(units):
            for h in range(2):
                r = 4 * u + 2 * h
                a(f"v_pk_fma_f32 {p(AB+r)}, {p(AP+r)}, {p(174+4*j)}, {p(AB+r)} op_sel_hi:[1,0,1]")
            for h in range(2): a(f"v_cvt_pk_bf16_f32 {vr(16+2*u+h)}, {vr(AB+4*u+2*h)}, {vr(AB+4*u+2*h+1)}")
            so = (sr(self.E_COL), 32 * tt) if tt < 2 else ("0", 256)
            a(f"buffer_store_dwordx2 {vr(16+2*u,2)}, {vr(VO+j)}, {sr(S_OUT,4)}, {so[0]} offen offset:{so[1]}")
        self.stamp("fin")

    def fallback(self):
        a = self.a
        T = S_T
        MXR = 208
        a.label("L_fallback")
        a(f"""s_waitcnt vmcnt(0) lgkmcnt(0)
        s_barrier
        s_mov_b32 {sr(S_REDO)}, 1
        s_mov_b32 {sr(S_TOFF)}, {sr(S_LB)}
        s_cmp_eq_u32 {sr(S_DUM)}, 4
        s_cselect_b32 {sr(S_CNT)}, 15, 16""")
        for i in range(4): a(f"v_mov_b32 {vr(MXR+i)}, 0xff800000")
        a.label("L_fb1")
        for g in self.tile_groups(0): a(g)
        a("s_waitcnt vmcnt(0)")
        for x in self.k_reads(0): a(x)
        a("s_waitcnt lgkmcnt(0)")
        for m in self.qk_mfmas(0, czero=True): a(m)
        a("s_nop 7")
        for qb in range(4):
            for i in range(0, 8, 2): a(f"v_max3_f32 {vr(MXR+qb)}, {vr(MXR+qb)}, {vr(self.S(0,qb,i))}, {vr(self.S(0,qb,i+1))}")
        a(f"s_sub_u32 {sr(S_CNT)}, {sr(S_CNT)}, 1\ns_cmp_lg_u32 {sr(S_CNT)}, 0\ns_cbranch_scc1 L_fb1")
        self.greduce([MXR + i for i in range(4)], MXR + 4, "v_max_f32")
        a(f"""v_and_b32 {vr(MXR+4)}, 15, v0
        v_lshlrev_b32 {vr(MXR+4)}, 4, {vr(MXR+4)}
        v_add_u32 {vr(MXR+4)}, {L_SP}, {vr(MXR+4)}
        s_lshl_b32 {sr(T)}, {sr(S_W)}, 2
        v_add_u32 {vr(MXR+5)}, {sr(T)}, {vr(MXR+4)}""")
        for qb in range(4): a(f"ds_write_b32 {vr(MXR+5)}, {vr(MXR+qb)} offset:{256*qb}")
        a("s_waitcnt lgkmcnt(0)\ns_barrier")
        for qb in range(4): a(f"ds_read_b128 {vr(16+4*qb,4)}, {vr(MXR+4)} offset:{256*qb}")
        a(f"s_mov_b32 {sr(S_TOFF)}, {sr(S_LB)}")
        for g in self.tile_groups(0) + self.tile_groups(1): a(g)
        a("s_waitcnt lgkmcnt(0)")
        for qb in range(4):
            r = 16 + 4 * qb
            a(f"v_max_f32 {vr(r)}, {vr(r)}, {vr(r+1)}\nv_max3_f32 {vr(r)}, {vr(r)}, {vr(r+2)}, {vr(r+3)}")
            a(f"v_sub_f32 {vr(self.MK+qb)}, 0, {vr(r)}")
        a("s_waitcnt vmcnt(0)")
        for x in self.k_reads(0): a(x)
        a("s_branch L_go")


if __name__ == "__main__":
    opt = json.loads(sys.argv[2]) if len(sys.argv) > 2 else {}
    g = G(opt)
    txt = g.build()
    if opt.get("align", 1):
        from align import align
        txt, st = align(txt)
        print("align: promoted %d, padded %d, left %d" % st)
    txt = txt.replace("\n", "\n; stamps " + json.dumps(g.stnames) + "\n", 1)
    open(sys.argv[1], "w").write(txt)
```

```python
import sys, json, math
from common import Asm, vr, ar, sr, kernel_header, kernel_desc
from lay import *

NAME = "standalone__conformer_family_branchformer__speech_kernel"
NH = 2
NWG = 252 + NH
CHAINS = (3, 3)
RING = 4
LDS_RING = RING * TILE
LDS_TOTAL = 163840
SLOT = 4 * TILE
L_WU, L_WQ, L_WK = 0, 41472, 82944
L_XX, L_XR = 126976, 143360
L_QD = 18432
L_XS = L_XX + L_QD
L_MX = 81920
L_PC = LDS_TOTAL - 256
L_DUMP = 123904
L_SP = 147456

S_X, S_WS, S_XA, S_DB, S_W1, S_W2, S_OUT, S_DW = 8, 12, 16, 20, 24, 28, 32, 36
S_W, S_B, S_H, S_QB, S_TOFF, S_CNT, S_DUM, S_LB, S_TOWN, S_TSND, S_VAL, S_REDO = range(40, 52)
S_UG = 25
S_INC = 24
S_T = 52
S_ST = 76

V_KA, V_VA, V_VR, V_DMA, V_L, V_VB = 1, 3, 5, 6, 10, 14
V_S, V_CI, V_P, V_K, V_V = 16, 80, 96, 128, 164
V_HI = 200
V_X = 208
A_O, A_Q, A_F = 0, 144, 216

LOG2E = 1.4426950408889634
import struct
def f32(x): return "0x%08x" % struct.unpack("<I", struct.pack("<f", x))[0]


class BAsm(Asm):
    def __init__(self):
        super().__init__()
        self.bg, self.every, self.cnt, self.skip = [], 0, 0, 0

    def __call__(self, s):
        for l in s.split("\n"):
            l = l.strip()
            if not l: continue
            self.lines.append("    " + l)
            if self.bg and self.every and not l.startswith(("s_nop", "v_mov_b32", "v_exp", "v_rcp", "v_rsq", "v_sqrt", "s_add_u32 m0")):
                self.cnt += 1
                if self.cnt >= self.every:
                    self.cnt = 0
                    self.pop()

    def pop(self):
        for x in self.bg.pop(0).split("\n"): self.lines.append("    " + x)

    def flush(self):
        while self.bg: self.pop()
        self.every = 0


class G:
    def __init__(self, opt):
        self.o = opt
        self.a = BAsm()
        self.nst = 0
        self.fill = []

    def stamp(self, name):
        if self.o.get("stamps"):
            if name in self.o.get("skipst", []): return
            if "only" in self.o and name not in self.o["only"]: return
            if self.nst >= 11: return
            self.a(f"{'s_memtime' if self.o.get('cyc') else 's_memrealtime'} {sr(S_ST + 2*self.nst, 2)}")
            self.stnames.append(name)
            self.nst += 1

    def srd(self, dst, lo, hi, n):
        self.a(f"s_mov_b32 {sr(dst)}, {sr(lo)}\ns_mov_b32 {sr(dst+1)}, {sr(hi)}\ns_mov_b32 {sr(dst+2)}, {n}\ns_mov_b32 {sr(dst+3)}, 0x20000")

    def greduce(self, regs, tmp, op="v_add_f32"):
        a = self.a
        for sw in ("32", "16"):
            for i, r in enumerate(regs): a(f"v_mov_b32 {vr(tmp+i)}, {vr(r)}")
            if len(regs) < 3: a("s_nop 1" if len(regs) == 1 else "s_nop 0")
            for i, r in enumerate(regs): a(f"v_permlane{sw}_swap_b32 {vr(r)}, {vr(tmp+i)}")
            for i, r in enumerate(regs): a(f"{op} {vr(r)}, {vr(r)}, {vr(tmp+i)}")

    def treduce(self, r, op="v_add_f32"):
        a = self.a
        a(f"v_permlane32_swap_b32 {vr(r)}, {vr(r+2)}\nv_permlane32_swap_b32 {vr(r+1)}, {vr(r+3)}")
        a(f"{op} {vr(r)}, {vr(r)}, {vr(r+2)}\n{op} {vr(r+1)}, {vr(r+1)}, {vr(r+3)}\ns_nop 1")
        a(f"v_permlane16_swap_b32 {vr(r)}, {vr(r+1)}\n{op} {vr(r)}, {vr(r)}, {vr(r+1)}")

    def rbf(self, r):
        self.a(f"v_cvt_pk_bf16_f32 {vr(r)}, {vr(r)}, {vr(r)}\nv_lshlrev_b32 {vr(r)}, 16, {vr(r)}")

    def ln_tail(self, F, out, t, mimic):
        a = self.a
        p = lambda r: vr(r, 2)
        self.greduce([t, t + 1], t + 2)
        a(f"v_mul_f32 {vr(t+2)}, {f32(1.0/144)}, {vr(t)}")
        a(f"v_mul_f32 {vr(t+3)}, {vr(t+2)}, {vr(t+2)}")
        a(f"v_mov_b32 {vr(t+4)}, {f32(1.0/144)}")
        a(f"v_fma_f32 {vr(t)}, {vr(t+1)}, {vr(t+4)}, -{vr(t+3)}")
        a(f"v_max_f32 {vr(t)}, 0, {vr(t)}")
        if mimic:
            self.rbf(t)
            self.rbf(t + 2)
            a(f"v_add_f32 {vr(t)}, {f32(1e-5)}, {vr(t)}")
            self.rbf(t)
            a(f"v_sqrt_f32 {vr(t)}, {vr(t)}\ns_nop 0")
            self.rbf(t)
            a(f"v_rcp_f32 {vr(t)}, {vr(t)}\ns_nop 0")
        else:
            a(f"v_add_f32 {vr(t)}, {f32(1e-5)}, {vr(t)}")
            a(f"v_rsq_f32 {vr(t)}, {vr(t)}\ns_nop 0")
        a(f"v_mul_f32 {vr(t+2)}, -{vr(t+2)}, {vr(t)}")
        for i in range(18):
            a(f"v_pk_fma_f32 {p(F+2*i)}, {p(F+2*i)}, {p(t)}, {p(t+2)} op_sel_hi:[1,0,0]")
        for i in range(18):
            a(f"v_cvt_pk_bf16_f32 {vr(out+i)}, {vr(F+2*i)}, {vr(F+2*i+1)}")

    def ln_packed(self, X, F, out, t):
        a = self.a
        a(f"v_mov_b32 {vr(t+6)}, 0x3f803f80")
        for k in range(4): a(f"v_mov_b32 {vr(t+k)}, 0")
        for i in range(18):
            a(f"v_dot2_f32_bf16 {vr(t+2*(i&1))}, {vr(X+i)}, {vr(t+6)}, {vr(t+2*(i&1))}")
            a(f"v_dot2_f32_bf16 {vr(t+1+2*(i&1))}, {vr(X+i)}, {vr(X+i)}, {vr(t+1+2*(i&1))}")
        for i in range(2):
            a(f"v_lshlrev_b32 {vr(F+2*i)}, 16, {vr(X+i)}\nv_and_b32 {vr(F+2*i+1)}, 0xffff0000, {vr(X+i)}")
        a(f"v_pk_add_f32 {vr(t,2)}, {vr(t,2)}, {vr(t+2,2)}")
        un = []
        for i in range(2, 18):
            un.append(f"v_lshlrev_b32 {vr(F+2*i)}, 16, {vr(X+i)}\nv_and_b32 {vr(F+2*i+1)}, 0xffff0000, {vr(X+i)}")
        sv = (a.bg, a.every, a.cnt, a.skip)
        n0 = len(a.lines)
        a.bg, a.every = [], 0
        self.ln_tail(F, out, t, True)
        tail = a.lines[n0:]
        del a.lines[n0:]
        a.bg, a.every, a.cnt, a.skip = sv
        k = next(i for i, l in enumerate(tail) if "v_pk_fma" in l)
        for i, l in enumerate(tail[:k]):
            if "s_nop" in l and un: continue_nop = True
            a(l)
            if un and not l.strip().startswith("s_nop"): a(un.pop(0))
        while un: a(un.pop(0))
        for l in tail[k:]: a(l)

    def ln_f32(self, F, out, t):
        a = self.a
        p = lambda r: vr(r, 2)
        a(f"v_pk_add_f32 {p(t)}, {p(F)}, {p(F+2)}\nv_pk_add_f32 {p(t+2)}, {p(F+4)}, {p(F+6)}")
        a(f"v_pk_mul_f32 {p(t+4)}, {p(F)}, {p(F)}\nv_pk_mul_f32 {p(t+6)}, {p(F+2)}, {p(F+2)}")
        for i in range(2, 18):
            if i >= 4: a(f"v_pk_add_f32 {p(t+2*(i&1))}, {p(t+2*(i&1))}, {p(F+2*i)}")
            a(f"v_pk_fma_f32 {p(t+4+2*(i&1))}, {p(F+2*i)}, {p(F+2*i)}, {p(t+4+2*(i&1))}")
        a(f"v_pk_add_f32 {p(t)}, {p(t)}, {p(t+2)}\nv_pk_add_f32 {p(t+4)}, {p(t+4)}, {p(t+6)}")
        a(f"v_add_f32 {vr(t)}, {vr(t)}, {vr(t+1)}\nv_add_f32 {vr(t+1)}, {vr(t+4)}, {vr(t+5)}")
        self.ln_tail(F, out, t, False)

    def gemm_u(self, AF, rf, Bs, ACC, afr, bfr, post, vm_items=(), other=(), lead=7, vm0=0, vmsp=4):
        a = self.a
        units = [(0, j) for j in range(4)] + [(1, j) for j in range(4)] + [(2, 0)]
        seq, dl = [], {}
        bs = lambda j, o_, n: self.rg((Bs[j][0], Bs[j][1] + o_), n)
        rem = lambda u: (f"v_mfma_f32_16x16x16_bf16 {vr(ACC+4*u,4)}, {rf(AF+18*units[u][0]+16,2)}, {bs(units[u][1],16,2)}, {vr(ACC+4*u,4)}", u)
        A = [afr(t) for t in range(3)]
        Bf = [bfr(j) for j in range(4)]

        def use(t, j, s, k):
            for x in (A[t][2 * s:2 * s + 2] if s < 4 else A[t][8:]) + ([Bf[j][s]] if Bf[j] else []): dl.setdefault(x, k)
        for g in range(4):
            for s in range(4):
                for u in range(3 * g, 3 * g + 3) if g < 3 else []:
                    t, j = units[u]
                    d = vr(ACC + 4 * u, 4)
                    use(t, j, s, len(seq))
                    seq.append((f"v_mfma_f32_16x16x32_bf16 {d}, {rf(AF+18*t+4*s,4)}, {bs(j,4*s,4)}, {'0' if s == 0 else d}", None))
                if s == 0 and g > 0:
                    for u in range(3 * g - 3, 3 * g):
                        use(units[u][0], units[u][1], 4, len(seq)); seq.append(rem(u))
        last = seq[-3:]; seq = seq[:-3]
        ds = sorted(dl.items(), key=lambda e: e[1]) + [(x, 99) for x in other]
        vm_items = list(vm_items)
        lastvm = vm0 - vmsp
        order, ready, q, done = [], [], [], 0

        def issue():
            x, k_ = ds.pop(0); a(x); order.append(k_)

        def wait(k):
            nonlocal done
            idx = [i_ for i_, k_ in enumerate(order) if k_ <= k]
            if idx and max(idx) + 1 > done:
                a(f"s_waitcnt lgkmcnt({min(15, len(order) - 1 - max(idx))})"); done = max(idx) + 1
        while ds and ds[0][1] < 6: issue()
        for k, (m, fin) in enumerate(seq):
            assert not ds or ds[0][1] > k, (k, ds[0])
            wait(k)
            a(m)
            for u_, kk in list(ready):
                if k - kk >= 4: q += post(u_); ready.remove((u_, kk))
            if fin is not None: ready.append((fin, k))
            due = sum(1 for x, k_ in ds if k_ <= k + lead)
            if due == 0 and vm_items and k >= lastvm + vmsp:
                a(vm_items.pop(0)); lastvm = k; continue
            cap = 2
            for _ in range(min(due, 3)): issue(); cap -= 1
            if cap == 2:
                if q and q[0].startswith("ds_"): a(q.pop(0)); order.append(99); cap -= 1
                elif ds: issue(); cap -= 1
            while cap > 0 and q and not q[0].startswith("ds_"):
                a(q.pop(0)); cap -= 1
        assert not ready
        while ds: issue()
        wait(98)
        for x in vm_items: a(x)
        for x in q[:4]: a(x)
        a(f"s_nop {max(0, 4 - len(q[:4]))}")
        for m, _ in last: a(m)
        for x in q[4:]: a(x)
        a(f"s_nop {max(0, 6 - len(q[4:]))}")
        for u in range(6, 9):
            for x in post(u): a(x)

    def gemm(self, reads, B, ACC, AF, late=(), at={}, per=2):
        a = self.a
        buf = lambda T: 18 * (T % 6)
        ng = 3 * (4 * per + 1)

        def grp(g):
            r = [reads(T, buf(T)) for T in range(3 * g, 3 * g + 3)]
            return [r[t][per * s + u] for s in range(4) for t in range(3) for u in range(per)] + [r[t][4 * per] for t in range(3)]
        rem = lambda T: f"v_mfma_f32_16x16x16_bf16 {vr(ACC+4*T,4)}, {ar(buf(T)+16,2)}, {vr(B+16,2)}, {vr(ACC+4*T,4)}"
        pend = grp(0) + grp(1) + grp(2) + list(late)
        issued = k = 0

        def issue(n):
            nonlocal issued
            for _ in range(n):
                if issued < len(pend): a(pend[issued]); issued += 1

        def mf(x):
            nonlocal k
            a(x); issue(per if per == 2 else (2 if k % 4 == 0 else 1))
            if k in at: a(at[k])
            k += 1
        issue(self.o.get('look', 12) if per == 2 else self.o.get('look1', 8))
        for g in range(3):
            for s in range(4):
                need = ng * g + 3 * per * (s + 1)
                a(f"s_waitcnt lgkmcnt({min(15, issued - need)})")
                for T in range(3 * g, 3 * g + 3):
                    d = vr(ACC + 4 * T, 4)
                    mf(f"v_mfma_f32_16x16x32_bf16 {d}, {ar(buf(T)+4*s,4)}, {vr(B+4*s,4)}, {'0' if s == 0 else d}")
                if s == 0 and g > 0:
                    for T in range(3 * g - 3, 3 * g): mf(rem(T))
                if g == 1 and s == 0: assert issued <= 2 * ng + 6 * per, "group 2 overwrites group 0 too early"
        issue(99)
        a(f"s_waitcnt lgkmcnt({len(late)})\ns_nop 2")
        for T in range(6, 9): a(rem(T))
        a("s_nop 7")

    def tr_reads(self, ad, rf=ar):
        def f(T, dst):
            out = []
            for s in range(4):
                for u in range(2):
                    out.append(f"ds_read_b64_tr_b16 {rf(dst+4*s+2*u,2)}, {vr(ad+u)} offset:{9216*s + 32*T}")
            out.append(f"ds_read_b64_tr_b16 {rf(dst+16,2)}, {vr(ad+2)} offset:{36864 + 32*T}")
            return out
        return f

    def row_reads(self, ad, sw=None):
        def f(T, dst):
            r = ad if sw is None or T == 8 else sw[T & 1]
            out = []
            for s in range(4):
                for u in range(2):
                    out.append(f"ds_read_b64 {ar(dst+4*s+2*u,2)}, {vr(r)} offset:{4864*T + 64*s + 32*u}")
            out.append(f"ds_read_b64 {ar(dst+16,2)}, {vr(r)} offset:{4864*T + 256}")
            return out
        return f

    def dma_rows(self, jobs, cpr, rstride, vo, vc, n_first, first_waves, lab):
        a = self.a
        mul = {18: 3641, 19: 3450}[cpr]
        dr, dc = 256 // cpr, 256 % cpr
        a(f"s_lshl_b32 {sr(S_T)}, {sr(S_W)}, 6")
        a(f"v_add_u32 {vr(vc)}, {sr(S_T)}, v0")
        a(f"v_mul_u32_u24 {vr(vo)}, {mul}, {vr(vc)}")
        a(f"v_lshrrev_b32 {vr(vo)}, 16, {vr(vo)}")
        a(f"v_mul_u32_u24 {vr(vc+1)}, {cpr}, {vr(vo)}")
        a(f"v_sub_u32 {vr(vc)}, {vr(vc)}, {vr(vc+1)}")
        a(f"v_mul_u32_u24 {vr(vo)}, {rstride}, {vr(vo)}")
        a(f"v_lshl_add_u32 {vr(vo)}, {vr(vc)}, 4, {vr(vo)}")
        a(f"s_lshl_b32 {sr(S_T)}, {sr(S_W)}, 10")
        a(f"v_mov_b32 {vr(vc+1)}, {rstride - 16*cpr}")
        for k in range(n_first):
            if k == n_first - 1:
                a(f"s_cmp_ge_u32 {sr(S_W)}, {first_waves}\ns_cbranch_scc1 {lab}")
            for srd, so, lb in jobs:
                a(f"s_add_u32 m0, {sr(S_T)}, {lb + 4096*k}")
                a("s_nop 0")
                a(f"buffer_load_dwordx4 {vr(vo)}, {sr(srd,4)}, {so} offen lds")
            if k < n_first - 1:
                a(f"v_add_u32 {vr(vc)}, {dc}, {vr(vc)}")
                a(f"v_cmp_le_u32 vcc, {cpr}, {vr(vc)}")
                a(f"v_add_u32 {vr(vo)}, {dr*rstride + 16*dc}, {vr(vo)}")
                a(f"v_subrev_u32 {vr(vc+2)}, {cpr}, {vr(vc)}")
                a(f"v_cndmask_b32 {vr(vc)}, {vr(vc)}, {vr(vc+2)}, vcc")
                a(f"v_cndmask_b32 {vr(vc+2)}, 0, {vr(vc+1)}, vcc")
                a(f"v_add_u32 {vr(vo)}, {vr(vo)}, {vr(vc+2)}")
        a.label(lab)

    def voff_table(self, dst, cpr, rstride, vc, step=256):
        a = self.a
        mul = {18: 29128, 19: 27595}[cpr]
        n = len(dst)
        a(f"s_mov_b32 {sr(S_T)}, {rstride - 16*cpr}")
        a(f"v_mul_u32_u24 {vr(dst[0])}, {mul}, {vr(vc)}")
        for k in range(1, n): a(f"v_add_u32 {vr(dst[k])}, {(step*k % cpr)*mul}, {vr(dst[0])}")
        for k in range(n): a(f"v_lshrrev_b32 {vr(dst[k])}, 19, {vr(dst[k])}")
        for k in range(n): a(f"v_mad_i32_i24 {vr(dst[k])}, {vr(dst[k])}, {sr(S_T)}, {vr(vc+1)}")

    def dma_lin(self, srd, soff, lb, v16, lab):
        a = self.a
        a(f"s_lshl_b32 {sr(S_T)}, {sr(S_W)}, 10")
        for k in range(11):
            if k == 10:
                a(f"s_cmp_ge_u32 {sr(S_W)}, 1\ns_cbranch_scc1 {lab}")
            a(f"s_add_u32 m0, {sr(S_T)}, {lb + 4096*k}")
            a(f"s_add_u32 {sr(S_T+1)}, {sr(S_T)}, {soff + 4096*k}")
            a(f"buffer_load_dwordx4 {vr(v16)}, {sr(srd,4)}, {sr(S_T+1)} offen lds")
        a.label(lab)

    def tr_addr(self, ad, base, swapped, t):
        a = self.a
        a(f"v_lshrrev_b32 {vr(t)}, 2, v0")
        a(f"v_mul_u32_u24 {vr(t)}, 288, {vr(t)}")
        a(f"v_and_b32 {vr(t+1)}, 3, v0")
        a(f"v_lshl_add_u32 {vr(t)}, {vr(t+1)}, 3, {vr(t)}")
        a(f"v_add_u32 {vr(ad+2)}, {base}, {vr(t)}")
        if swapped:
            a(f"v_bfe_u32 {vr(t)}, v0, 4, 1")
            a(f"v_mul_u32_u24 {vr(t)}, {16*288}, {vr(t)}")
            a(f"v_add_u32 {vr(ad)}, {vr(ad+2)}, {vr(t)}")
            a(f"v_sub_u32 {vr(ad+1)}, {vr(ad+2)}, {vr(t)}")
            a(f"v_add_u32 {vr(ad+1)}, {16*288}, {vr(ad+1)}")
        else:
            a(f"v_mov_b32 {vr(ad)}, {vr(ad+2)}")
            a(f"v_add_u32 {vr(ad+1)}, {16*288}, {vr(ad+2)}")

    def row_addr(self, ad, base, t):
        a = self.a
        a(f"v_and_b32 {vr(t)}, 15, v0")
        a(f"v_mul_u32_u24 {vr(t)}, 304, {vr(t)}")
        a(f"v_lshrrev_b32 {vr(t+1)}, 4, v0")
        a(f"v_lshl_add_u32 {vr(t)}, {vr(t+1)}, 3, {vr(t)}")
        a(f"v_add_u32 {vr(ad)}, {base}, {vr(t)}")

    def store_block(self, src, v16, v8, srd, soff, soff2, flags=""):
        a = self.a
        for s in range(4):
            a(f"buffer_store_dwordx4 {vr(src+4*s,4)}, {vr(v16)}, {sr(srd,4)}, {sr(soff)} offen offset:{1024*s} {flags}")
        a(f"buffer_store_dwordx2 {vr(src+16,2)}, {vr(v8)}, {sr(srd,4)}, {sr(soff2)} offen {flags}")

    def entry(self):
        a = self.a
        kernel_header(a, NAME)
        a(f"s_load_dwordx16 s[56:71], s[0:1], 0")
        a(f"s_load_dwordx8 s[72:79], s[0:1], 64")
        a(f"s_getpc_b64 {sr(S_W1,2)}")
        a.label("L_pf")
        a(f"s_cmp_lt_u32 s2, {NH}\ns_cbranch_scc1 L_wfuse")
        a(f"""s_mov_b32 {sr(S_W1+2)}, L_dummy-L_pf
        s_mov_b32 {sr(S_W1+3)}, 0x20000
        v_lshlrev_b32 v1, 4, v0
        s_bfe_u32 {sr(S_T)}, s2, 0x30003
        s_lshl_b32 {sr(S_T)}, {sr(S_T)}, 12
        buffer_load_dwordx4 v[252:255], v1, {sr(S_W1,4)}, 0 offen
        buffer_load_dwordx4 v[252:255], v1, {sr(S_W1,4)}, {sr(S_T)} offen
        s_cmp_ge_u32 s2, {NWG}
        s_cbranch_scc1 L_end""")
        if self.o.get("stamps"):
            a("s_memrealtime s[100:101]" if not self.o.get("cyc") else "s_memtime s[100:101]")
        self.mp = 2
        a(f"""v_lshrrev_b32 v1, 6, v0
        s_sub_u32 s2, s2, {NH}
        v_readfirstlane_b32 {sr(S_W)}, v1
        s_and_b32 {sr(S_H)}, s2, 1
        s_bfe_u32 {sr(S_B)}, s2, 0x10001
        s_lshr_b32 {sr(S_QB)}, s2, 2
        v_and_b32 v0, 63, v0
        v_lshlrev_b32 {vr(V_DMA)}, 4, v0""")

    def vm_since(self, mark):
        return sum(1 for l in self.a.lines[mark:] if l.strip().startswith("buffer_"))

    def phase_a(self):
        a, o = self.a, self.o
        XR, XF, XA, ACC, G_, PK = 16, 34, 146, 110, 16, 164
        B4, XD = 16, 88
        VS, VSW, VR4, MXA, MXR, L8, TRU, TRQ, TRQ8, RK, TM = 200, 204, 208, 212, 213, 214, 215, 218, 221, 224, 228
        VK, VU = list(range(182, 193)), list(range(193, 200)) + list(range(104, 108))
        AQ1 = 200
        t0, t1, t2 = 250, 251, 227
        T = S_T
        WV, W10, UOFF, M1, PUB, M3 = 72, 70, 71, 69, 68, 65
        a(f"""s_lshl_b32 {sr(T)}, {sr(S_QB)}, 1
        s_add_u32 {sr(S_TOWN)}, {sr(T)}, {sr(S_H)}
        s_xor_b32 {sr(S_TSND)}, {sr(S_TOWN)}, 1
        s_cmp_lt_u32 {sr(S_TOWN)}, {NT}
        s_cselect_b32 {sr(S_VAL)}, 1, 0
        s_cmp_lt_u32 {sr(S_W)}, 2
        s_cselect_b32 {sr(T+3)}, {sr(S_TSND)}, {sr(S_TOWN)}
        s_mul_i32 {sr(T)}, {sr(S_B)}, {NT}
        s_add_u32 {sr(S_TOWN)}, {sr(S_TOWN)}, {sr(T)}
        s_add_u32 {sr(S_TSND)}, {sr(S_TSND)}, {sr(T)}
        s_add_u32 {sr(T+1)}, {sr(T+3)}, {sr(T)}
        s_lshl_b32 {sr(T+1)}, {sr(T+1)}, 1
        s_and_b32 {sr(T+2)}, {sr(S_W)}, 1
        s_add_u32 {sr(T+2)}, {sr(T+1)}, {sr(T+2)}
        s_mul_i32 {sr(T+1)}, {sr(T+2)}, {16*288}
        s_mul_i32 {sr(S_LB)}, {sr(S_W)}, {BLK}
        s_add_u32 {sr(S_LB)}, {sr(S_LB)}, {L_XS}
        s_mov_b32 m0, {sr(S_LB)}
        s_mov_b32 {sr(S_X+2)}, 2304000
        s_mov_b32 {sr(S_X+3)}, 0x20000
        s_add_u32 {sr(S_CNT)}, {sr(T+1)}, 4096
        s_waitcnt lgkmcnt(0)
        s_mov_b32 {sr(S_X)}, s56
        s_mov_b32 {sr(S_X+1)}, s57""")
        for k in range(4): a(f"buffer_load_dwordx4 {vr(V_DMA)}, {sr(S_X,4)}, {sr(T+1)} offen offset:{1024*k} lds")
        a(f"s_add_u32 m0, {sr(S_LB)}, 4096\ns_mov_b32 exec_hi, 0\nbuffer_load_dwordx4 {vr(V_DMA)}, {sr(S_X,4)}, {sr(S_CNT)} offen lds\ns_mov_b32 exec_hi, -1")
        mx = len(a.lines)
        SQ, SK, SU = S_W2, S_W1, S_XA
        self.srd(SU, 66, 67, 82944)
        self.srd(SQ, 58, 59, 41472)
        self.srd(SK, 60, 61, 41472)
        a(f"s_lshr_b32 {sr(T)}, s2, 3\ns_lshl_b32 {sr(T)}, {sr(T)}, 12\ns_lshl_b32 {sr(W10)}, {sr(S_W)}, 10\ns_add_u32 {sr(T)}, {sr(T)}, {sr(W10)}")
        a(f"buffer_load_dwordx4 v[252:255], {vr(V_DMA)}, {sr(SU,4)}, {sr(T)} offen")
        for srd_, rot in ((SQ, 82), (SK, 41)):
            a(f"s_add_u32 {sr(T+1)}, {sr(T)}, {(128 - rot) * 1024}\ns_and_b32 {sr(T+1)}, {sr(T+1)}, {127 * 1024}")
            a(f"buffer_load_dwordx4 v[252:255], {vr(V_DMA)}, {sr(srd_,4)}, {sr(T+1)} offen")
        self.srd(S_OUT, 74, 75, 2304000)
        self.srd(S_DB, 76, 77, 256)
        self.srd(S_WS, 78, 79, WS_END)
        if o.get("stamps"): a(f"s_mov_b64 {sr(S_ST,2)}, s[100:101]"); self.stnames.append("start"); self.nst = 1
        self.stamp("xiss")
        a(f"""s_cmp_lt_u32 {sr(T+3)}, {NT}
        s_cselect_b32 {sr(WV)}, 1, 0
        s_mov_b32 {sr(WV+1)}, {sr(T+2)}
        s_mul_i32 {sr(UOFF)}, {sr(S_H)}, 288
        s_cmp_eq_u32 {sr(S_W)}, 0
        s_cselect_b32 {sr(M1)}, 0, {L_DUMP}
        s_cmp_lt_u32 {sr(S_W)}, 3
        s_cselect_b32 {sr(M3)}, {sr(W10)}, {L_DUMP}""")
        half = lambda g_: "s_mov_b32 exec_hi, 0\n" + g_ + "\ns_mov_b32 exec_hi, -1"
        gu = [f"s_add_u32 m0, {sr(W10 if k < 10 else M1)}, {L_WU + 4096*k}\ns_add_u32 {sr(S_CNT)}, {sr(UOFF)}, {4096*k + 288*(256*k//18)}\nbuffer_load_dwordx4 {vr(VU[k])}, {sr(SU,4)}, {sr(S_CNT)} offen lds" for k in range(11)]
        gu[10] = half(gu[10])
        gq = [f"s_add_u32 m0, {sr(W10 if k < 10 else M1)}, {L_WQ + 4096*k}\ns_add_u32 {sr(S_CNT)}, {sr(W10)}, {4096*k}\nbuffer_load_dwordx4 {vr(V_DMA)}, {sr(SQ,4)}, {sr(S_CNT)} offen lds" for k in range(11)]
        gq[10] = half(gq[10])
        gk = [f"s_add_u32 m0, {sr(W10 if k < 10 else M3)}, {L_WK + 4096*k}\ns_mov_b32 {sr(S_CNT)}, {4096*k - 16*(256*k//19)}\nbuffer_load_dwordx4 {vr(VK[k])}, {sr(SK,4)}, {sr(S_CNT)} offen lds" for k in range(11)]
        a(f"s_lshl_b32 {sr(T)}, {sr(S_W)}, 6\nv_add_u32 {vr(t0)}, {sr(T)}, v0\nv_lshlrev_b32 {vr(t1)}, 4, {vr(t0)}")
        self.voff_table(VU, 18, 576, t0)
        npre = o.get("npre", 6)
        a.bg, a.every, a.cnt = gu[:npre], o.get("evpre", 14), 0
        self.voff_table(VK, 19, 288, t0)
        xa0, xa1, xa2 = TM, TM + 1, TM + 2
        a(f"""v_and_b32 {vr(t0)}, 15, v0
        v_lshrrev_b32 {vr(t1)}, 5, v0
        v_lshlrev_b32 {vr(t1)}, 3, {vr(t1)}
        v_xor_b32 {vr(t1)}, {vr(t0)}, {vr(t1)}
        v_lshlrev_b32 {vr(t1)}, 4, {vr(t1)}
        v_lshrrev_b32 {vr(t2)}, 4, v0
        v_lshl_add_u32 {vr(V_KA)}, {vr(t2)}, 9, {vr(t1)}
        v_lshrrev_b32 {vr(t1)}, 3, {vr(t0)}
        v_lshlrev_b32 {vr(t1)}, 1, {vr(t1)}
        v_xor_b32 {vr(t1)}, {vr(t2)}, {vr(t1)}
        v_lshl_add_u32 {vr(t1)}, {vr(t0)}, 2, {vr(t1)}
        v_lshlrev_b32 {vr(V_KA+1)}, 3, {vr(t1)}
        v_lshlrev_b32 {vr(L8)}, 3, v0
        v_lshlrev_b32 {vr(MXR)}, 4, {vr(t0)}
        v_add_u32 {vr(MXR)}, {L_MX}, {vr(MXR)}
        v_add_u32 {vr(MXA)}, {sr(S_W)}, {vr(t2)}
        v_and_b32 {vr(MXA)}, 3, {vr(MXA)}
        v_lshl_add_u32 {vr(MXA)}, {vr(MXA)}, 8, {vr(MXR)}
        s_lshl_b32 {sr(T)}, {sr(S_W)}, 2
        v_add_u32 {vr(MXA)}, {sr(T)}, {vr(MXA)}
        v_mul_u32_u24 {vr(xa2)}, 288, {vr(t0)}
        v_lshl_add_u32 {vr(xa2)}, {vr(t2)}, 3, {vr(xa2)}
        v_add_u32 {vr(xa2)}, {sr(S_LB)}, {vr(xa2)}
        v_and_b32 {vr(t1)}, 1, {vr(t2)}
        v_lshlrev_b32 {vr(t1)}, 5, {vr(t1)}
        v_add_u32 {vr(xa0)}, {vr(xa2)}, {vr(t1)}
        v_xor_b32 {vr(t1)}, 32, {vr(t1)}
        v_add_u32 {vr(xa1)}, {vr(xa2)}, {vr(t1)}
        s_mul_i32 {sr(S_LB)}, {sr(S_W)}, {TILE}
        v_lshrrev_b32 {vr(t0)}, 2, v0
        v_bfe_u32 {vr(t1)}, v0, 1, 1
        v_lshlrev_b32 {vr(t1)}, 3, {vr(t1)}
        v_xor_b32 {vr(t1)}, {vr(t0)}, {vr(t1)}
        v_lshlrev_b32 {vr(t1)}, 4, {vr(t1)}
        v_and_b32 {vr(t2)}, 3, v0
        v_lshl_add_u32 {vr(t1)}, {vr(t2)}, 9, {vr(t1)}
        v_and_b32 {vr(V_VA)}, 1, v0
        v_lshl_add_u32 {vr(t1)}, {vr(V_VA)}, 3, {vr(t1)}
        s_and_b32 {sr(T)}, {sr(S_W)}, 1
        s_lshl_b32 {sr(T)}, {sr(T)}, 12
        s_add_u32 {sr(T+1)}, {sr(T)}, {sr(S_LB)}
        s_xor_b32 {sr(T)}, {sr(T)}, 4096
        s_add_u32 {sr(T)}, {sr(T)}, {sr(S_LB)}
        v_add_u32 {vr(V_VA)}, {sr(T)}, {vr(t1)}
        v_add_u32 {vr(V_VB)}, {sr(T+1)}, {vr(t1)}
        v_xor_b32 {vr(V_VA+1)}, 8, {vr(V_VA)}
        v_xor_b32 {vr(V_VB+1)}, 8, {vr(V_VB)}
        v_lshrrev_b32 {vr(t1)}, 5, v0
        v_lshlrev_b32 {vr(t1)}, 1, {vr(t1)}
        v_xor_b32 {vr(t1)}, {vr(t2)}, {vr(t1)}
        v_lshl_add_u32 {vr(t1)}, {vr(t0)}, 2, {vr(t1)}
        v_lshlrev_b32 {vr(t1)}, 3, {vr(t1)}
        v_add_u32 {vr(V_VR)}, {sr(S_LB)}, {vr(t1)}
        v_add_u32 {vr(V_DMA+1)}, 4096, {vr(V_DMA)}
        v_add_u32 {vr(V_DMA+2)}, 8192, {vr(V_DMA)}""")
        self.tr_addr(TRU, L_WU, True, t0)
        a(f"s_lshl_b32 {sr(T)}, {sr(S_W)}, 6\ns_add_u32 {sr(T)}, {sr(T)}, {L_WQ - L_WU}")
        for k in range(3):
            a(f"v_add_u32 {vr(TRQ+k)}, {sr(T)}, {vr(TRU+k)}\nv_add_u32 {vr(TRQ8+k)}, {L_WQ - L_WU + 256}, {vr(TRU+k)}")
        self.row_addr(RK + 2, L_WK + 8 * 4864, t0)
        a(f"""s_mul_i32 {sr(T)}, {sr(S_W)}, {2*4864}
        s_sub_u32 {sr(T)}, {sr(T)}, {8*4864}
        v_add_u32 {vr(t1)}, {sr(T)}, {vr(RK+2)}
        v_bfe_u32 {vr(t0)}, v0, 2, 1
        v_mul_u32_u24 {vr(t0)}, 4864, {vr(t0)}
        v_add_u32 {vr(RK)}, {vr(t1)}, {vr(t0)}
        v_sub_u32 {vr(RK+1)}, {vr(t1)}, {vr(t0)}""")
        for j in range(4):
            a(f"""s_add_u32 {sr(T)}, {sr(S_W)}, {j}
            s_and_b32 {sr(T)}, {sr(T)}, 3
            s_lshl_b32 {sr(T+1)}, {sr(T)}, 12
            s_add_u32 {sr(T+1)}, {sr(T+1)}, {L_XX}
            v_add_u32 {vr(VS+j)}, {sr(T+1)}, {vr(V_DMA)}
            s_lshl_b32 {sr(T+1)}, {sr(T)}, 9
            s_add_u32 {sr(T+1)}, {sr(T+1)}, {L_XR}
            v_add_u32 {vr(VR4+j)}, {sr(T+1)}, {vr(L8)}
            v_add_u32 {vr(VSW+j)}, {sr(W10)}, {vr(VS+j)}""")
        a(f"""s_sub_u32 {sr(T+2)}, 63, {sr(S_H)}
        s_add_u32 {sr(T+3)}, {sr(S_W)}, 60
        s_cmp_ge_u32 {sr(T+3)}, {sr(T+2)}
        s_cselect_b32 {sr(S_DUM)}, 4, 99
        s_mov_b32 {sr(S_REDO)}, 0
        s_mov_b32 {sr(S_TOFF)}, {sr(S_LB)}
        s_sub_u32 {sr(T)}, {sr(S_TOWN)}, 63
        s_mul_i32 {sr(T+1)}, {sr(S_B)}, {NT}
        s_cmp_ge_i32 {sr(T)}, {sr(T+1)}
        s_cselect_b32 {sr(T)}, 64, 0
        s_lshl_b32 {sr(T+1)}, {sr(S_B)}, 7
        s_add_u32 {sr(PUB)}, {sr(T)}, {sr(T+1)}
        s_cmp_eq_u32 {sr(S_W)}, 2
        s_cselect_b32 {sr(T)}, {sr(S_VAL)}, 0
        s_cmp_eq_u32 {sr(T)}, 1
        s_cselect_b32 {sr(PUB)}, {sr(PUB)}, 0x40000000
        s_add_u32 {sr(T+1)}, {sr(T+1)}, {DB_CB}
        v_mov_b32 {vr(self.VPL)}, {sr(T+1)}""")
        a.flush()
        self.stamp("pre")
        if o.get("es", 0) == 0: self.epi_setup()
        self.stamp("es")
        nx = self.vm_since(mx)
        if o.get("touch", 1):
            a(f"""s_mov_b64 exec, 0
            s_cmp_eq_u32 {sr(S_W)}, 0
            s_cbranch_scc1 L_tr
            s_cmp_eq_u32 {sr(S_W)}, 1
            s_cbranch_scc1 L_t0
            s_cmp_eq_u32 {sr(S_W)}, 2
            s_cbranch_scc1 L_t1
            s_branch L_t2""")
            self.rare()
            a.raw(".p2align 12")
            a.label("L_tr")
            a("s_mov_b64 exec, -1")
        nlate = o.get("nlate", 0)
        for g_ in gu[npre:npre + nlate]: a(g_)
        a(f"s_waitcnt vmcnt({nx + nlate})")
        self.stamp("xarr")
        for s in range(4):
            a(f"ds_read_b64 {vr(XR+4*s,2)}, {vr(xa0)} offset:{64*s}\nds_read_b64 {vr(XR+4*s+2,2)}, {vr(xa1)} offset:{64*s}")
        a(f"ds_read_b64 {vr(XR+16,2)}, {vr(xa2)} offset:256")
        a(f"""s_and_b32 {sr(T)}, {sr(S_W)}, 1
        s_mul_i32 {sr(T+2)}, {sr(S_TOWN)}, {TILE}
        s_cmp_eq_u32 {sr(S_VAL)}, 1
        s_cselect_b32 {sr(T+2)}, {sr(T+2)}, 0x40000000
        s_lshl_b32 {sr(T+3)}, {sr(T)}, 8
        s_add_u32 {sr(T+3)}, {sr(T+3)}, {sr(T+2)}
        s_add_u32 {sr(T+4)}, {sr(T+3)}, 4096
        s_lshl_b32 {sr(T+5)}, {sr(T)}, 9
        s_add_u32 {sr(T+5)}, {sr(T+5)}, {sr(T+2)}
        s_add_u32 {sr(T+5)}, {sr(T+5)}, 8192
        s_waitcnt lgkmcnt(0)""")
        wl = gq + gk
        a.bg, a.every, a.cnt = gu[npre + nlate:] + [wl.pop(0) for _ in range(o.get("nql", 4))], o.get("evln", 10), 0
        self.ln_packed(XR, XF, XA, TM)
        a.flush()
        self.stamp("ln")
        a(f"s_cmp_lt_u32 {sr(S_W)}, 2\ns_cbranch_scc1 L_nop")
        for s in range(4):
            a(f"buffer_store_dwordx4 {vr(XA+4*s,4)}, {vr(V_KA)}, {sr(S_WS,4)}, {sr(T+3+(s>>1))} offen offset:{2048*(s&1)} sc1")
        a(f"buffer_store_dwordx2 {vr(XA+16,2)}, {vr(V_KA+1)}, {sr(S_WS,4)}, {sr(T+5)} offen sc1\ns_waitcnt vmcnt({5 + o.get('nql', 4)})\ns_branch L_bar1")
        a.label("L_nop")
        if o.get("touch", 1):
            a(f"s_mov_b64 exec, 0\ns_cmp_eq_u32 {sr(S_W)}, 0\ns_cbranch_scc1 L_t3\ns_branch L_t4")
            a.label("L_tr2")
            a("s_mov_b64 exec, -1")
        a(f"s_waitcnt vmcnt({o.get('nql', 4)})")
        a.label("L_bar1")
        self.stamp("pub")
        xw = [f"ds_write_b128 {vr(VS)}, {vr(XA+4*s,4)} offset:{1024*s}" for s in range(4)] + [f"ds_write_b64 {vr(VR4)}, {vr(XA+16,2)}"]
        self.stamp("tch")
        PA = 249
        a(f"""v_add_u32 {vr(V_KA)}, {sr(S_LB)}, {vr(V_KA)}
        v_add_u32 {vr(V_KA+1)}, {sr(S_LB)}, {vr(V_KA+1)}
        s_lshl1_add_u32 {sr(T)}, {sr(S_B)}, {sr(S_H)}
        s_lshl_b32 {sr(T)}, {sr(T)}, 6
        s_cmp_eq_u32 {sr(S_W)}, 0
        s_cselect_b32 {sr(T)}, {sr(T)}, 0x40000000
        v_mov_b32 {vr(PA)}, {sr(T)}
        {self.xa_srd()}
        s_waitcnt lgkmcnt(0)""")
        self.stamp("w1")
        a("s_barrier")
        self.stamp("bar1")
        poll = lambda r: f"buffer_load_dword {vr(r)}, {vr(PA)}, {sr(S_DB,4)}, 0 offen sc1"

        def gate(lab, r, word, need, younger):
            a(f"s_mov_b32 {sr(T+2)}, 0\ns_waitcnt vmcnt({younger})")
            a.label(lab)
            a(f"""v_readfirstlane_b32 {sr(T+3)}, {vr(r+word)}
            s_add_u32 {sr(T+2)}, {sr(T+2)}, 1
            s_cmp_ge_u32 {sr(T+3)}, {need}
            s_cbranch_scc1 {lab}_ok
            {poll(r)}
            s_waitcnt vmcnt(0)
            s_cmp_lt_u32 {sr(T+2)}, 0x40000
            s_cbranch_scc1 {lab}""")
            a.label(lab + "_ok")

        H, G_, UG, MS, CL = 16, 52, 208, 110, 104
        nup = o.get("nup", 12)
        at = {o.get("u0", 6) + o.get("usp", 3) * i: wl.pop(0) for i in range(nup)}
        for i in range(5): at[i] = xw[i]
        if o.get("es", 0) == 1:
            n_ = len(a.lines); self.epi_setup()
            el = [l.strip() for l in a.lines[n_:]]; del a.lines[n_:]
            for k in range(5, 42):
                if k in at: continue
                c_ = 0
                while el and c_ < o.get("esn", 2):
                    x = el.pop(0); at[k] = at.get(k, "") + x + "\n"; c_ += 1 if x.startswith("v_") else 0.5
            self.es_left = el
        self.gemm(self.tr_reads(TRU), XA, H, None, at=at)
        if o.get("es", 0) == 1:
            for x in self.es_left: a(x)
        self.stamp("up")
        last = lambda srd: max(i for i, l in enumerate(a.lines) if l.strip().startswith("buffer_load") and sr(srd, 4) in l) + 1
        assert not any(sr(SQ, 4) in x for x in wl)
        a(f"v_mov_b32 {vr(t0)}, {sr(PUB)}\nv_mov_b32 {vr(t1)}, 1\ns_waitcnt vmcnt({self.vm_since(last(SQ))}) lgkmcnt(0)\ns_barrier")
        a(f"s_mov_b64 exec, 1\nbuffer_atomic_add {vr(t1)}, {vr(t0)}, {sr(S_DB,4)}, 0 offen sc1\ns_mov_b64 exec, -1")
        self.stamp("barG")

        def a_tr(t):
            ad, off = (TRQ, 32 * t) if t < 2 else (TRQ8, 0)
            return [f"ds_read_b64_tr_b16 {ar(AQ1+18*t+4*s+2*u,2)}, {vr(ad+u)} offset:{9216*s + off}" for s in range(4) for u in range(2)] + \
                   [f"ds_read_b64_tr_b16 {ar(AQ1+18*t+16,2)}, {vr(ad+2)} offset:{36864 + off}"]

        def a_row(t):
            off = 4864 * t if t < 2 else 0
            return [f"ds_read_b64 {ar(A_Q+18*t+4*s+2*u,2)}, {vr(RK+t)} offset:{off + 64*s + 32*u}" for s in range(4) for u in range(2)] + \
                   [f"ds_read_b64 {ar(A_Q+18*t+16,2)}, {vr(RK+t)} offset:{off + 256}"]
        bq = lambda j, d=0: [f"ds_read_b128 {ar(18*j+4*s,4)}, {vr(VS+j)} offset:{d + 1024*s}" for s in range(4)] + [f"ds_read_b64 {ar(18*j+16,2)}, {vr(VR4+j)} offset:{d}"]

        def post(u, scale, d):
            L = [f"v_mul_f32 {vr(ACC+4*u+i)}, {sr(T+4)}, {vr(ACC+4*u+i)}" for i in range(4)] if scale else []
            L += [f"v_cvt_pk_bf16_f32 {vr(PK + (4*(u&3) + 2*(u>>2) if u < 8 else 16) + h)}, {vr(ACC+4*u+2*h)}, {vr(ACC+4*u+2*h+1)}" for h in range(2)]
            if 4 <= u < 8: L.append(f"ds_write_b128 {vr(VSW+u-4)}, {vr(PK+4*(u-4),4)} offset:{d}")
            if u == 8: L.append(f"ds_write_b64 {vr(VR4)}, {vr(PK+16,2)} offset:{d}")
            return L
        xd = [f"ds_read_b128 {vr(XD+4*j,4)}, {vr(VSW+j)}" for j in range(4)]
        self.gemm_u(AQ1, ar, [("v", XA), ("a", 18), ("a", 36), ("a", 54)], ACC, a_tr, lambda j: bq(j) if j else None, lambda u: post(u, False, L_QD),
                    vm_items=wl, other=xd, vmsp=o.get("vmsp", 3))
        self.stamp("g1")
        for i in range(4): a(f"v_mov_b32 {vr(CL+i)}, -1")
        a(f"s_lshl2_add_u32 {sr(T+2)}, s2, {sr(S_W)}\ns_mul_i32 {sr(T+2)}, {sr(T+2)}, 2560\ns_add_u32 {sr(T+2)}, {sr(T+2)}, {WS_IB}")
        a(f"s_mov_b32 {sr(T+4)}, {f32(LOG2E / 12.0)}\ns_waitcnt vmcnt({self.vm_since(last(SK))}) lgkmcnt(0)\ns_barrier")
        clr = [f"buffer_store_dwordx4 {vr(CL,4)}, {vr(V_DMA)}, {sr(S_WS,4)}, {sr(T+2)} offen sc1",
               f"buffer_store_dwordx4 {vr(CL,4)}, {vr(V_DMA)}, {sr(S_WS,4)}, {sr(T+2)} offen offset:1024 sc1",
               f"buffer_store_dwordx2 {vr(CL,2)}, {vr(L8)}, {sr(S_WS,4)}, {sr(T+2)} offen offset:2048 sc1"]
        self.stamp("bar2")
        self.gemm_u(A_Q, ar, [("a", 18 * j) for j in range(4)], ACC, a_row, lambda j: bq(j, L_QD), lambda u: post(u, True, 0), vm_items=[poll(252)] + clr, vm0=o.get("pg", 4), vmsp=o.get("csp", 8))
        self.stamp("g2")
        p = lambda r: vr(r, 2)
        CC = TM
        for j in range(4): a(f"v_dot2_f32_bf16 {vr(CC+j)}, {vr(PK+4*j)}, {vr(XD+4*j)}, 0")
        for i in range(2): a(f"v_dot2_f32_bf16 {vr(CC)}, {vr(PK+16+i)}, {vr(XA+16+i)}, {vr(CC)}")
        for i in range(1, 4):
            for j in range(4): a(f"v_dot2_f32_bf16 {vr(CC+j)}, {vr(PK+4*j+i)}, {vr(XD+4*j+i)}, {vr(CC+j)}")
        QE = TRQ
        a(f"""s_xor_b32 {sr(T+1)}, {sr(self.NB)}, 1
        v_add_u32 {vr(t0)}, {L_XX}, {vr(V_DMA)}
        v_lshl_add_u32 {vr(QE)}, {sr(T+1)}, 12, {vr(t0)}
        v_lshl_add_u32 {vr(QE+1)}, {sr(self.NB)}, 12, {vr(t0)}""")
        self.treduce(CC)
        a(f"""ds_write_b32 {vr(MXA)}, {vr(CC)}
        v_add_u32 {vr(t0)}, {L_XR}, {vr(L8)}
        v_lshl_add_u32 {vr(QE+2)}, {sr(T+1)}, 9, {vr(t0)}
        v_lshl_add_u32 {vr(QE+3)}, {sr(self.NB)}, 9, {vr(t0)}
        v_lshl_add_u32 {vr(QE+4)}, {sr(T+1)}, 8, {vr(MXR)}
        v_lshl_add_u32 {vr(QE+5)}, {sr(self.NB)}, 8, {vr(MXR)}
        s_sub_u32 {sr(T+5)}, 63, {sr(S_H)}
        s_lshr_b32 {sr(T+6)}, s2, 3
        s_lshl_b32 {sr(T+6)}, {sr(T+6)}, 12
        s_add_u32 {sr(T+6)}, {sr(T+6)}, {sr(W10)}
        s_cmp_lg_u32 {sr(S_W)}, 0
        s_cbranch_scc1 L_ga_ok""")
        gate("L_ga", 252, 0, sr(T + 5), 3)
        a("s_waitcnt lgkmcnt(0)\ns_barrier")
        self.stamp("bar3")
        c1 = -2.0 * math.sqrt(2.0 / math.pi) * LOG2E
        c2 = c1 * 0.044715
        qrd = [f"ds_read_b128 {vr(MS+4*qb,4)}, {vr(QE+4+(qb&1))} offset:{512*(qb>>1)}" for qb in range(4)]
        for qb in range(4):
            qrd += [f"ds_read_b128 {ar(A_Q+18*qb+4*s,4)}, {vr(QE+(qb&1))} offset:{8192*(qb>>1) + 1024*s}" for s in range(4)]
            qrd.append(f"ds_read_b64 {ar(A_Q+18*qb+16,2)}, {vr(QE+2+(qb&1))} offset:{1024*(qb>>1)}")
        tg = self.tile_groups(0) + self.tile_groups(1) + self.tile_groups(2)[:8]
        n0 = o.get("n0", 3)
        for k in range(o.get("tpf", 0)):
            a(f"s_add_u32 {sr(T+7)}, {sr(T+6)}, {o.get('tpf0', 4*TILE) + 131072*k}\nbuffer_load_dwordx4 v[252:255], {vr(V_DMA)}, {sr(S_XA,4)}, {sr(T+7)} offen")
        for x in tg[:n0]: a(x)
        a(f"v_mov_b32 {vr(CC)}, {f32(c1)}\nv_mov_b32 {vr(CC+2)}, {f32(c2)}\nv_mov_b32 {vr(CC+4)}, 1.0")
        nq1, nt1 = o.get("nq1", 8), o.get("nt1", 5)
        bgl = []
        for i in range(max(nq1 // 2, nt1)):
            if 2 * i < nq1: bgl.append(qrd[2 * i] + "\n" + qrd[2 * i + 1])
            if i < nt1: bgl.append(tg[n0 + i])
        tg, qrd = tg[n0 + nt1:], qrd[nq1:]
        a.bg, a.every, a.cnt = bgl, 54 // (len(bgl) + 1), 0
        for i in range(18): a(f"v_pk_mul_f32 {p(G_+2*i)}, {p(H+2*i)}, {p(H+2*i)}")
        for i in range(18): a(f"v_pk_fma_f32 {p(G_+2*i)}, {p(G_+2*i)}, {p(CC+2)}, {p(CC)} op_sel_hi:[1,0,0]")
        for i in range(18): a(f"v_pk_mul_f32 {p(G_+2*i)}, {p(G_+2*i)}, {p(H+2*i)}")
        a.flush()
        self.stamp("ge1")
        esp = o.get("esp", 4)
        for i in range(36):
            a(f"v_exp_f32 {vr(G_+i)}, {vr(G_+i)}")
            if i % esp == 1 and tg: a(tg.pop(0))
            if i % 8 == 3 and qrd: a(qrd.pop(0)); a(qrd.pop(0))
        self.stamp("ge2")
        for i in range(18): a(f"v_pk_add_f32 {p(G_+2*i)}, {p(G_+2*i)}, {p(CC+4)} op_sel_hi:[1,0]")
        for i in range(36):
            a(f"v_rcp_f32 {vr(G_+i)}, {vr(G_+i)}")
            if i % esp == 1 and tg: a(tg.pop(0))
            if i % 8 == 3 and qrd: a(qrd.pop(0)); a(qrd.pop(0))
        assert not tg and not qrd
        idx = [i for i, l in enumerate(a.lines) if l.strip().startswith("buffer_load") and l.rstrip().endswith("lds")]
        m_t0, m_t1 = idx[-18] + 1, idx[-9] + 1
        for i in range(18): a(f"v_pk_mul_f32 {p(H+2*i)}, {p(G_+2*i)}, {p(H+2*i)}")
        a(f"""s_mul_i32 {sr(T)}, {sr(WV+1)}, {BLK}
        s_cmp_eq_u32 {sr(S_H)}, 1
        s_cbranch_scc1 L_ln2
        s_add_u32 {sr(T)}, {sr(T)}, {WS_U}""")
        for i in range(18): a(f"v_cvt_pk_bf16_f32 {vr(UG+i)}, {vr(H+2*i)}, {vr(H+2*i+1)}")
        a("s_branch L_ug")
        a.label("L_ln2")
        a(f"s_add_u32 {sr(T)}, {sr(T)}, {WS_G}")
        self.ln_f32(H, UG, TM)
        a.label("L_ug")
        self.stamp("ge3")
        a(f"""s_cmp_eq_u32 {sr(WV)}, 1
        s_cselect_b32 {sr(S_UG)}, {sr(T)}, 0x40000000
        s_waitcnt vmcnt({self.vm_since(m_t0)}) lgkmcnt(0)""")
        for x in self.k_reads(0, V_V): a(x)
        self.ugs = [f"buffer_store_dwordx4 {vr(UG+4*s,4)}, {vr(V_DMA)}, {sr(S_WS,4)}, {sr(S_UG)} offen offset:{1024*s} sc1" for s in range(4)]
        self.ugs.append(f"buffer_store_dwordx2 {vr(UG+16,2)}, {vr(self.VL8)}, {sr(S_WS,4)}, {sr(S_UG)} offen sc1")
        for qb in range(4): a(f"v_pk_add_f32 {p(MS+4*qb)}, {p(MS+4*qb)}, {p(MS+4*qb+2)} neg_lo:[1,1] neg_hi:[1,1]")
        for qb in range(4): a(f"v_add_f32 {vr(self.MK+qb)}, {vr(MS+4*qb)}, {vr(MS+4*qb+1)}")
        a(f"v_lshlrev_b32 {vr(t1)}, 8, v0\nv_lshlrev_b32 v231, 2, v0\nv_add_u32 v231, {L_PC}, v231\nds_write_b32 v231, {vr(t1)}")
        self.loop_init(False)
        self.n_t1 = self.vm_since(m_t1)
        self.stamp("ug")

    def loop_init(self, part):
        a = self.a
        if part:
            for qb in range(4):
                for i in range(4): a(f"v_mov_b32 {vr(V_CI+4*qb+i)}, {vr(self.MK+qb)}")
            return
        for k in range(7): a(f"v_add_u32 {vr(V_HI+k)}, {2*SLOT}, {vr(V_KA+k if k < 5 else V_VB+k-5)}")
        a(f"v_add_u32 {vr(self.VS0)}, {sr(S_LB)}, {vr(V_DMA)}\nv_add_u32 {vr(self.VS0R)}, {sr(S_LB)}, {vr(self.VL8)}\ns_mov_b32 {sr(S_CNT)}, 0\ns_mov_b32 {sr(S_INC)}, {4*TILE}")
        for i in range(4): a(f"v_mov_b32 {vr(V_L+i)}, 0")
        a(f"v_mov_b32 {vr(self.VPL+1)}, 1\nv_lshlrev_b32 v231, 2, v0\nv_add_u32 v231, {L_PC}, v231")

    def head(self):
        a, o = self.a, self.o
        a.label("L_go")
        self.loop_init(True)
        a("s_waitcnt lgkmcnt(0)\ns_barrier")
        self.stamp("bar5")
        base = self.qk_mfmas(0)
        pick = lambda s_, kb, qb: base[8 * s_ + 4 * kb + qb].replace(vr(V_K + 8 * s_ + 4 * kb, 4) + ",", vr(V_V + 8 * s_ + 4 * kb, 4) + ",").replace(vr(V_K + 32 + 2 * kb, 2) + ",", vr(V_V + 32 + 2 * kb, 2) + ",")
        mf, fin = [], {}
        for qb, s_ in [(0, 0), (0, 1), (0, 2), (0, 3), (1, 0), (1, 1), (0, 4), (1, 2), (1, 3), (2, 0), (2, 1), (1, 4), (2, 2), (2, 3), (3, 0), (3, 1), (2, 4),
                       (3, 2), (3, 3), (3, 4)]:
            for kb in range(2):
                fin[qb, kb] = len(mf)
                mf.append(("s_nop 3\n" if (qb, s_, kb) == (3, 4, 0) else "") + pick(s_, kb, qb))
        enew = [e[1] for g in range(40, 76) for e in self.gaps[g] if e[0] == "E"]
        items = self.e_items(0, enew, lambda qb, j: 0, lambda qb: 999)
        for it, e in zip(items, enew):
            if e[0] == "e": it["am"] = fin[e[1], e[2] // 4]
        dm = []
        for k, (slot, j) in enumerate([(2, 8)] + [(3, j) for j in range(9)]):
            g_ = 1 + o.get("hsp", 4) * k
            if j % 4 == 0: dm.append(dict(t=f"s_add_u32 m0, {sr(S_LB)}, {slot*SLOT + 4096*(j//4)}", c=0, lo=g_ - 1, hi=g_ - 1))
            dm.append(dict(t=f"buffer_load_dwordx4 {vr(V_DMA + j//4)}, {sr(S_XA,4)}, {sr(S_TOFF)} offen offset:{1024*(j%4)} lds", c=8, lo=g_, hi=g_))
            if j == 8: dm.append(dict(t=f"s_add_u32 {sr(S_TOFF)}, {sr(S_TOFF)}, {4*TILE}", c=0, lo=g_ + 1, hi=g_ + 1))
        nh = o.get("ugh", 2)
        for k in range(nh): dm.append(dict(t=self.ugs[k], c=8, lo=3 + 16 * k, hi=3 + 16 * k))
        a(f"s_waitcnt vmcnt({self.n_t1})")
        left = self.pack(mf, items + dm + [dict(t=x, c=4, lo=i // 2, nds=2) for i, x in enumerate(self.k_reads(1))])
        print("head overflow", self.over, "left", len(left))
        left.sort(key=lambda x: not x.startswith("v_exp"))
        last = a.lines[-1].strip()
        for x in left:
            if last.startswith("v_exp") and not x.startswith("v_exp") and (last.split()[1].rstrip(",") + ",") in (x + ","): a("s_nop 0")
            a(x); last = x
        a("s_waitcnt lgkmcnt(0)")

    def tile_groups(self, slot):
        out = []
        for j in range(9):
            g = ""
            if j % 4 == 0: g = f"s_add_u32 m0, {sr(S_LB)}, {slot*SLOT + 4096*(j//4)}\ns_nop 0\n"
            g += f"buffer_load_dwordx4 {vr(V_DMA + j//4)}, {sr(S_XA,4)}, {sr(S_TOFF)} offen offset:{1024*(j%4)} lds"
            if j == 8: g += f"\ns_add_u32 {sr(S_TOFF)}, {sr(S_TOFF)}, {4*TILE}"
            out.append(g)
        return out

    def first_tiles(self):
        pass

    def wfuse(self):
        a = self.a
        BF, ACC, AF, TM, AD = 88, 108, 144, 208, 240
        LA, LB_, LM = 0, 44032, 88064
        T = S_T
        a.label("L_wfuse")
        a(f"v_lshrrev_b32 v1, 6, v0\nv_and_b32 v0, 63, v0\nv_readfirstlane_b32 {sr(S_W)}, v1\nv_lshlrev_b32 {vr(V_DMA)}, 4, v0\ns_waitcnt lgkmcnt(0)")
        self.srd(S_DB, 76, 77, 256)
        self.srd(S_WS, 78, 79, WS_END)
        self.wf0 = 0
        self.srd(S_X, 72, 73, 82944)
        self.srd(S_W2, 62, 63, 41472)
        a(f"""s_cmp_eq_u32 s2, {self.wf0}
        s_cselect_b32 {sr(S_W1)}, s64, s70
        s_cselect_b32 {sr(S_W1+1)}, s65, s71
        s_mov_b32 {sr(S_W1+2)}, 41472
        s_mov_b32 {sr(S_W1+3)}, 0x20000
        s_cselect_b32 {sr(T+4)}, 0, 41472""")
        self.dma_rows([(S_W1, "0", LA), (S_W2, "0", LB_)], 19, 288, TM + 4, TM + 5, 11, 3, "L_wf1")
        a(f"s_lshl_b32 {sr(T)}, {sr(S_W)}, 10\ns_add_u32 {sr(T+2)}, {sr(T)}, {sr(T+4)}")
        for k in range(11):
            if k == 10: a(f"s_cmp_ge_u32 {sr(S_W)}, 1\ns_cbranch_scc1 L_wf2")
            a(f"s_add_u32 m0, {sr(T)}, {LM + 4096*k}\ns_add_u32 {sr(T+1)}, {sr(T+2)}, {4096*k}")
            a(f"buffer_load_dwordx4 {vr(V_DMA)}, {sr(S_X,4)}, {sr(T+1)} offen lds")
        a.label("L_wf2")
        self.srd(S_DW, 68, 69, 864)
        a(f"""v_and_b32 {vr(TM)}, 15, v0
        v_lshlrev_b32 {vr(TM+2)}, 4, {vr(TM)}
        v_lshlrev_b32 {vr(TM)}, 1, {vr(TM)}
        v_bfe_u32 {vr(TM+3)}, v0, 4, 1
        v_lshl_add_u32 {vr(TM+1)}, {vr(TM+3)}, 7, {vr(TM)}
        v_lshl_add_u32 {vr(TM+2)}, {vr(TM+3)}, 11, {vr(TM+2)}
        v_and_b32 {vr(TM+3)}, 1, v0
        v_lshlrev_b32 {vr(TM+3)}, 4, {vr(TM+3)}
        v_bfe_i32 {vr(TM+4)}, v0, 1, 1
        v_not_b32 {vr(TM+5)}, {vr(TM+4)}""")
        for k in range(3):
            for i in range(5): a(f"buffer_load_ushort {vr(16+5*k+i)}, {vr(TM+1 if i < 4 else TM)}, {sr(S_DW,4)}, 0 offen offset:{288*k + (32*i if i < 4 else 256)}")
        a(f"s_mov_b32 {sr(T+1)}, {WS_DWF}\ns_waitcnt vmcnt(0)")
        for f in range(15):
            a(f"v_lshlrev_b32 {vr(16+f)}, {vr(TM+3)}, {vr(16+f)}\nv_and_b32 {vr(32+2*f)}, {vr(TM+5)}, {vr(16+f)}\nv_and_b32 {vr(33+2*f)}, {vr(TM+4)}, {vr(16+f)}")
        for r_ in range(8): a(f"buffer_store_dwordx{4 if r_ < 7 else 2} {vr(32+4*r_, 4 if r_ < 7 else 2)}, {vr(TM+2)}, {sr(S_WS,4)}, {sr(T+1)} offen offset:{256*r_} sc1")
        self.tr_addr(AD, LM, False, TM + 8)
        self.row_addr(AD + 3, LA, TM + 8)
        a(f"v_add_u32 {vr(AD+5)}, {LB_}, {vr(AD+3)}")
        a(f"v_lshlrev_b32 {vr(AD+4)}, 3, v0")
        a(f"""s_lshr_b32 {sr(T)}, {sr(S_W)}, 1
        s_lshl_b32 {sr(T)}, {sr(T)}, 6
        s_and_b32 {sr(T+1)}, {sr(S_W)}, 1
        s_lshl_b32 {sr(T+1)}, {sr(T+1)}, 3
        s_add_u32 {sr(T)}, {sr(T)}, {sr(T+1)}
        v_and_b32 {vr(AD+6)}, 3, v0
        v_lshlrev_b32 {vr(AD+6)}, 3, {vr(AD+6)}
        v_add_u32 {vr(AD+7)}, {sr(T)}, {vr(AD+6)}""")
        for k in range(3): a(f"v_add_u32 {vr(AD+k)}, {vr(AD+7)}, {vr(AD+k)}")
        a(f"s_mov_b32 {sr(S_CNT)}, {sr(S_W)}")
        a("s_waitcnt vmcnt(0)\ns_barrier")
        a.label("L_wfl")
        for s in self.tr_reads(AD, vr)(0, BF): a(s)
        a("s_waitcnt lgkmcnt(0)")
        self.gemm(self.row_reads(AD + 3), BF, ACC, AF)
        for i in range(18): a(f"v_cvt_pk_bf16_f32 {vr(BF+i)}, {vr(ACC+2*i)}, {vr(ACC+2*i+1)}")
        a(f"s_cmp_eq_u32 s2, {self.wf0}\ns_cbranch_scc0 L_wf3")
        self.gemm(self.row_reads(AD + 5), BF, ACC, AF)
        for i in range(18): a(f"v_cvt_pk_bf16_f32 {vr(BF+i)}, {vr(ACC+2*i)}, {vr(ACC+2*i+1)}")
        a.label("L_wf3")
        a(f"""s_mul_i32 {sr(T)}, {sr(S_CNT)}, {BLK}
        s_add_u32 {sr(T)}, {sr(T)}, {sr(T+4)}
        s_add_u32 {sr(T)}, {sr(T)}, {WS_WF}
        s_add_u32 {sr(T+1)}, {sr(T)}, 4096""")
        self.store_block(BF, V_DMA, AD + 4, S_WS, T, T + 1, "sc1")
        for k in range(3): a(f"v_add_u32 {vr(AD+k)}, 128, {vr(AD+k)}")
        a(f"s_add_u32 {sr(S_CNT)}, {sr(S_CNT)}, 4\ns_cmp_lt_u32 {sr(S_CNT)}, 8\ns_cbranch_scc1 L_wfl")
        for k in range(3): a(f"v_sub_u32 {vr(AD+k)}, {vr(AD+k)}, {vr(AD+6)}")
        a(f"s_cmp_eq_u32 {sr(S_CNT)}, 8\ns_cbranch_scc1 L_wfl")
        a(f"""s_waitcnt vmcnt(0)
        s_barrier
        s_cmp_lg_u32 {sr(S_W)}, 0
        s_cbranch_scc1 L_end
        s_mov_b64 exec, 1
        v_mov_b32 {vr(TM)}, 1
        v_mov_b32 {vr(TM+1)}, {DB_CW}
        buffer_atomic_add {vr(TM)}, {vr(TM+1)}, {sr(S_DB,4)}, 0 offen sc1
        v_mov_b32 {vr(TM+1)}, {DB_CW + 128}
        buffer_atomic_add {vr(TM)}, {vr(TM+1)}, {sr(S_DB,4)}, 0 offen sc1
        s_endpgm""")

    def dump_stamps(self):
        a = self.a
        if self.o.get("echo"):
            if self.o["echo"][0] == "skew":
                a(f"v_mov_b32 v16, 4\nbuffer_load_dword v17, v16, {sr(S_DB,4)}, 0 offen sc1\ns_waitcnt vmcnt(0)\nv_readfirstlane_b32 s98, v17\ns_not_b32 s98, s98")
                x, y = 98, S_ST + 2 * self.stnames.index(self.o["echo"][1])
            else:
                x, y = [S_ST + 2 * self.stnames.index(n) for n in self.o["echo"]]
            lo, hi = self.o.get("echo_ids", (0, 999))
            a(f"""s_cmp_eq_u32 {sr(S_VAL)}, 0
            s_cbranch_scc1 L_end
            s_cmp_lt_u32 s2, {lo}
            s_cbranch_scc1 L_end
            s_cmp_ge_u32 s2, {hi}
            s_cbranch_scc1 L_end
            s_memrealtime s[4:5]
            s_waitcnt lgkmcnt(0)
            s_sub_u32 s6, {sr(y)}, {sr(x)}
            s_mul_i32 s6, s6, {self.o.get("echo_mul", 1)}
            s_lshr_b32 s6, s6, {self.o.get("echo_shr", 0)}
            s_add_u32 s6, s6, s4""")
            a.label("L_echo")
            a("s_memrealtime s[4:5]\ns_waitcnt lgkmcnt(0)\ns_sub_u32 s7, s6, s4\ns_cmp_gt_i32 s7, 0\ns_cbranch_scc1 L_echo")
            return
        if self.o.get("dbgst"):
            a("s_waitcnt vmcnt(0)")
            self.stamp("done")
            a("s_waitcnt lgkmcnt(0)\ns_mov_b64 exec, 1")
            slots = [1, 2, 3, 4, 5, 6, 7, 9, 11, 12, 13, 14, 15]
            a(f"s_not_b32 {sr(S_T)}, {sr(S_ST)}\nv_mov_b32 v16, {sr(S_T)}\nv_mov_b32 v17, 4\nbuffer_atomic_umax v16, v17, {sr(S_DB,4)}, 0 offen sc1")
            for i in range(min(self.nst, 12)):
                a(f"v_mov_b32 v{18+2*i}, {sr(S_ST+2*i)}\nv_mov_b32 v{19+2*i}, {4*slots[i+1]}\nbuffer_atomic_umax v{18+2*i}, v{19+2*i}, {sr(S_DB,4)}, 0 offen sc1")
            return
        if not self.o.get("stamps"): return
        T = S_T
        a(f"""s_waitcnt lgkmcnt(0)
        s_lshl_b32 {sr(T)}, s2, 2
        s_add_u32 {sr(T)}, {sr(T)}, {sr(S_W)}
        s_lshl_b32 {sr(T)}, {sr(T)}, 7
        s_add_u32 {sr(T)}, {sr(T)}, {WS_DBG}
        v_mov_b32 v1, 0""")
        for i in range(26): a(f"v_mov_b32 {vr(16+i)}, {sr(S_ST+i)}")
        for i in range(7): a(f"buffer_store_dwordx4 {vr(16+4*i,4)}, v1, {sr(S_WS,4)}, {sr(T)} offen offset:{16*i}")

    def build(self):
        a = self.a
        self.stnames = []
        a.raw(f"; @launch grid=({NWG},1,1) block=(256,1,1) lds={LDS_TOTAL}")
        a.raw('.amdgcn_target "amdgcn-amd-amdhsa--gfx950"')
        a.raw(".text")
        a.raw(f".globl {NAME}")
        a.raw(".p2align 12")
        self.entry()
        self.phase_a()
        self.rest()
        a.label("L_fin")
        self.dump_stamps()
        a.label("L_end")
        a("s_endpgm")
        self.poll2()
        if not self.o.get("touch", 1): self.rare()
        a.label("L_dummy")
        self.fallback()
        self.wfuse()
        a.raw('.section .rodata,"a"')
        a.raw(".p2align 6")
        a.raw(kernel_desc(NAME, 512, 102, 256))
        return a.text()

    def S(self, buf, qb, i=0): return V_S + buf * 32 + qb * 8 + i
    def P(self, buf, qb, i=0): return V_P + buf * 16 + qb * 4 + i

    def k_reads(self, slot, V_K=V_K):
        ka, so = (V_KA, slot * SLOT) if slot < 2 else (V_HI, (slot - 2) * SLOT)
        out = [f"ds_read_b128 {vr(V_K+8*s+4*kb,4)}, {vr(ka)} offset:{so + 2048*s + 256*kb}" for s in range(4) for kb in range(2)]
        out += [f"ds_read_b64 {vr(V_K+32+2*kb,2)}, {vr(ka+1)} offset:{so + 8192 + 512*kb}" for kb in range(2)]
        return out

    def v_reads(self, slot, dst=V_V):
        (va, vr_, vb), so = ((V_VA, V_VR, V_VB), slot * SLOT) if slot < 2 else ((V_HI + 2, V_HI + 4, V_HI + 5), (slot - 2) * SLOT)
        out = []
        for T in range(9):
            for u in range(2):
                if T < 8: out.append(f"ds_read_b64_tr_b16 {vr(dst+4*T+2*u,2)}, {vr((va if T < 4 else vb)+(T&1))} offset:{so + 2048*((T>>1)&1) + 256*u}")
                else: out.append(f"ds_read_b64_tr_b16 {vr(dst+4*T+2*u,2)}, {vr(vr_)} offset:{so + 8192 + 512*u}")
        return out

    def qk_mfmas(self, buf, czero=False):
        out = []
        for s in range(5):
            for kb in range(2):
                for qb in range(4):
                    d = vr(self.S(buf, qb, 4 * kb), 4)
                    c = ("0" if czero else vr(V_CI + 4 * qb, 4)) if s == 0 else d
                    if s < 4: out.append(f"v_mfma_f32_16x16x32_bf16 {d}, {vr(V_K+8*s+4*kb,4)}, {ar(A_Q+18*qb+4*s,4)}, {c}")
                    else: out.append(f"v_mfma_f32_16x16x16_bf16 {d}, {vr(V_K+32+2*kb,2)}, {ar(A_Q+18*qb+16,2)}, {c}")
        return out

    def pv_mfmas(self, buf, czero=False):
        out = []
        for T in range(9):
            for qb in range(4):
                o = ar(A_O + 36 * qb + 4 * T, 4)
                out.append(f"v_mfma_f32_16x16x32_bf16 {o}, {vr(V_V+4*T,4)}, {vr(self.P(buf,qb),4)}, {'0' if czero else o}")
        return out

    def plan(self):
        o = self.o
        n = 76
        fixed = [None] * n
        for i, g in enumerate(range(1, 36, 2)): fixed[g] = ("V", i)
        for i, g in enumerate([41, 44, 47, 50, 53, 56, 59, 62, 65, 68]): fixed[g] = ("K", i)
        for i, g in enumerate([42, 46, 49, 52, 55, 58, 61, 64, 67]): fixed[g] = ("D", i)
        exps = [(qb, j) for qb in range(4) for j in range(8)]
        start = 40
        order = [(start + k) % n for k in range(n)]
        free_idx = [k for k, g in enumerate(order) if fixed[g] is None]
        nsm = len(free_idx) - 32
        cand = free_idx[6:-2]
        sm_set = set(free_idx[-2:]) | {cand[int((i + 0.5) * len(cand) / (nsm - 2))] for i in range(nsm - 2)}
        nds = sum(1 for f in fixed if f is not None and f[0] != "D")
        over = 48 - nds - 2 * nsm
        ocand = [k for k, g in enumerate(order) if k >= 20 and (fixed[g] is None or fixed[g][0] != "D")]
        o_set = {ocand[int((i + 0.5) * len(ocand) / over)] for i in range(over)}
        gaps = [[] for _ in range(n)]
        small, pend, ei = [], [], 0
        for k, g in enumerate(order):
            new = (start + k) < n
            small.extend(pend); pend = []
            small.sort(key=lambda t: 0 if t[0] == "c" else 1)
            f = fixed[g]
            want = 0
            if f is not None:
                gaps[g].append((f[0], f[1], None))
                if f[0] == "D": continue
                want = 1
            elif k in sm_set: want = 2
            else:
                qb, j = exps[ei]; ei += 1
                gaps[g].append(("E", ("e", qb, j), new))
                if j & 1: pend.append(("c", qb, j // 2))
                pend.append(("a", qb, j))
            if k in o_set: want += 1
            if k == n - 1: want = 99
            for _ in range(want):
                if small: gaps[g].append(("E", small.pop(0), new))
        assert not small and not pend and ei == 32
        self.gaps = gaps

    def pack(self, mf, items):
        a = self.a
        where, order, done, nvm, mpos = {}, [], 0, 0, []
        isds = lambda it: "ds_" in it["t"]
        self.over = 0
        for g, m in enumerate(mf):
            assert not any(it.get("need", 999) <= g and i not in where for i, it in enumerate(items)), g
            idx = [k for k, n_ in enumerate(order) if n_ <= g]
            if idx and max(idx) + 1 > done:
                a(f"s_waitcnt lgkmcnt({min(15, len(order) - 1 - max(idx))})"); done = max(idx) + 1
            if m.startswith("@W"):
                w_, m = m.split("\n", 1)
                a(f"s_waitcnt lgkmcnt({min(15, int(w_[2:]) + len(order))})")
            a(m)
            mpos.append(len(a.lines))
            cap, pick = 8, []
            for phase in (0, 1):
                for i, it in enumerate(items):
                    if i in where or it.get("lo", 0) > g: continue
                    if "am" in it and (it["am"] >= g or len(a.lines) - mpos[it["am"]] < 8): continue
                    d = it.get("dep")
                    if d is not None and not all(where.get(x, 999) < g for x in d): continue
                    if (phase == 0 and it.get("hi", 999) <= g) or (phase == 1 and it["c"] <= cap):
                        if it["t"].startswith("buffer") and pick and any(items[x]["c"] for x in pick) and phase == 1: continue
                        if isds(it) and sum(isds(items[x]) for x in pick) >= it.get("nds", 1) and phase == 1: continue
                        pick.append(i); where[i] = g; cap -= it["c"]
            key = lambda i: 0 if items[i]["c"] == 0 else 1 if isds(items[i]) else 2 if items[i]["t"].startswith("buffer") else 3
            for i in sorted(pick, key=key):
                a(items[i]["t"].replace("@VM", f"s_waitcnt vmcnt({nvm})"))
                nvm += items[i]["t"].startswith("buffer")
                if isds(items[i]): order.append(items[i].get("need", 999))
            self.over += max(0, -cap)
        return [it["t"] for i, it in enumerate(items) if i not in where]

    def e_items(self, buf, lst, lo, hi):
        items, idx = [], {}
        for it in lst:
            kind, qb, j = it
            d = dict(t=self.etext(buf, it), c=8 if kind == "e" else 4)
            if kind == "e": d["lo"] = lo(qb, j); d["hi"] = hi(qb) - 2 - (7 - j)
            else:
                need = [("e", qb, j)] if kind == "a" else [("e", qb, 2 * j), ("e", qb, 2 * j + 1)]
                d["dep"] = [idx[x] for x in need if x in idx]
                if kind == "c": d["hi"] = hi(qb) - (3 - j) // 2
            idx[it] = len(items); items.append(d)
        return items

    def etext(self, buf, it):
        kind, qb, j = it
        s = self.S(buf, qb)
        if kind == "e": return f"v_exp_f32 {vr(s+j)}, {vr(s+j)}"
        if kind == "a": return f"v_add_f32 {vr(V_L+qb)}, {vr(V_L+qb)}, {vr(s+j)}"
        return f"v_cvt_pk_bf16_f32 {vr(self.P(buf, qb, j))}, {vr(s+2*j)}, {vr(s+2*j+1)}"

    def period(self, p, qk=True, pv=True, e_old=True, e_new=True, kread=True, vread=True, dma=True, extra={}, dsub=None, ksub=None, vm=9, halves=(0, 1), inc=None):
        a = self.a
        bn, bo = (p + 1) & 1, p & 1
        mf = self.qk_mfmas(bn) + self.pv_mfmas(bo, czero=(p == 0))
        kr, vrd = self.k_reads((p + 2) % RING), self.v_reads(p % RING)
        slot = p % RING
        n = 76
        sc = [[] for _ in range(n)]
        dgs = [g for g in range(n) if any(e[0] == "D" for e in self.gaps[g])]
        if dma:
            for j, g in enumerate(dgs):
                if j % 4 == 0: sc[g - 1].append(f"s_add_u32 m0, {sr(S_LB)}, {slot*SLOT + 4096*(j//4)}")
            sc[dgs[-1] + 1].append(f"s_add_u32 {sr(S_TOFF)}, {sr(S_TOFF)}, {inc or 4*TILE}")
        w = []
        if kread: w.append(f"vmcnt({vm})")
        if pv: w.append("lgkmcnt(0)")
        if w: sc[39].append("s_waitcnt " + " ".join(w))
        if kread: sc[75].append("s_waitcnt lgkmcnt(0)")
        for half in halves:
            rng = range(0, 40) if half == 0 else range(40, 76)
            on = qk if half == 0 else pv
            if not on:
                ds, mem, val, post = [], [], [], []
                for g in rng:
                    for s_ in sc[g]:
                        (post if s_.startswith("s_waitcnt") else mem).append(s_)
                    if g in extra: mem.append(extra[g])
                    for kind, d, new in self.gaps[g]:
                        if kind == "V" and vread: ds.append(vrd[d])
                        elif kind == "K" and kread: ds.append(kr[d])
                        elif kind == "D" and dma: mem.append(f"buffer_load_dwordx4 {vr(V_DMA + d//4)}, {sr(S_XA,4)}, {sr(S_TOFF)} offen offset:{1024*(d%4)} lds")
                        elif kind == "E" and ((new and e_new) or (not new and e_old)): val.append((d, self.etext(bn if new else bo, d)))
                if half == 1: a("s_nop 3")
                seq, pend = [], list(val)
                while pend:
                    k = 0
                    if seq and seq[-1][0][0] == "e":
                        le = seq[-1][0]
                        dep = lambda it: it[0][1] == le[1] and ((it[0][0] == "a" and it[0][2] == le[2]) or (it[0][0] == "c" and it[0][2] == le[2] // 2))
                        have = {x[0] for x in seq}
                        ok = lambda it: it[0][0] == "e" or (("e", it[0][1], it[0][2]) in have if it[0][0] == "a" else (("e", it[0][1], 2*it[0][2]+1) in have)) or not any(x[0][0] == "e" and x[0][1] == it[0][1] and (x[0][2] == it[0][2] if it[0][0] == "a" else x[0][2] // 2 == it[0][2]) for x in pend)
                        while k < len(pend) and (dep(pend[k]) or not ok(pend[k])): k += 1
                        if k == len(pend): seq.append((("n", 0, 0), "s_nop 0")); k = 0
                    seq.append(pend.pop(k))
                step = max(1, len(seq) // (len(mem) + len(ds) + 1))
                allm = ds + mem
                for x in allm[:6]: a(x)
                allm = allm[6:]
                for i_, (d, t_) in enumerate(seq):
                    a(t_)
                    if allm and i_ % step == step - 1:
                        x = allm.pop(0); a(x)
                        if x.startswith("s_add_u32 m0"): a("s_nop 0")
                for x in allm:
                    a(x)
                    if x.startswith("s_add_u32 m0"): a("s_nop 0")
                for x in post: a(x)
                if half == 0: a("s_nop 1")
                continue
            for g in rng:
                a(mf[g])
                for s_ in sc[g]: a(s_)
                if g in extra: a(extra[g])
                for kind, d, new in self.gaps[g]:
                    if kind == "V":
                        if vread: a(vrd[d])
                    elif kind == "K":
                        if kread: a(kr[d])
                        elif ksub: a(ksub.pop(0))
                    elif kind == "D":
                        if dma: a(f"buffer_load_dwordx4 {vr(V_DMA + d//4)}, {sr(S_XA,4)}, {sr(S_TOFF)} offen offset:{1024*(d%4)} lds")
                        elif dsub: a(dsub.pop(0))
                    elif (new and e_new) or (not new and e_old):
                        a(self.etext(bn if new else bo, d))

    MK, VO, VO8, GA, VS0, VS0R, VDW, VLW, VL8, VST, VPL = 232, 236, 9, 238, 250, 251, 244, 245, 246, 247, 248
    NB, PT, E_U, E_G, RS3, E_COL, RS1, RS2, MP1 = 3, 4, 5, 6, 7, 43, 36, 37, 38
    G0, GM, GP, U, DWT = 16, 26, 36, 80, (90, 252, 96, 100, 112, 116, 104, 94)
    XRS = (192, 196, 46)
    frag = staticmethod(lambda f, b: [(f, b + 4 * s) for s in range(5)])
    WD = [[("a", 216 + 4 * s) for s in range(5)], [("a", 234 + 4 * s) for s in range(5)], [("v", 208 + 4 * s) for s in range(5)]]
    WO = [[("a", 4 * s) for s in range(5)], [("a", 18 + 4 * s) for s in range(5)], [("a", 36), ("a", 40), ("a", 44), ("a", 48), ("a", 252)]]
    X1B = 98304
    X2O = L_SP - X1B
    L_L = L_SP + 9216

    def epi_setup(self):
        a = self.a
        T = S_T
        NB, PT, VO, GA = self.NB, self.PT, self.VO, self.GA
        r, g4, x, y, big, r0 = 52, 53, 54, 55, 56, 57
        a(f"""s_lshr_b32 {sr(NB)}, {sr(S_W)}, 1
        s_and_b32 {sr(PT)}, {sr(S_W)}, 1
        v_and_b32 {vr(r0)}, 15, v0
        v_lshrrev_b32 {vr(g4)}, 4, v0
        v_mul_u32_u24 {vr(x)}, 288, {vr(r0)}
        v_mov_b32 {vr(big)}, 0x40000000
        s_lshl_b32 {sr(T)}, {sr(S_TOWN)}, 1
        s_add_u32 {sr(T)}, {sr(T)}, {sr(NB)}
        s_lshl_b32 {sr(T)}, {sr(T)}, 4
        v_add_u32 {vr(r)}, {sr(T)}, {vr(r0)}
        s_mul_i32 {sr(T+1)}, {sr(S_TOWN)}, {TILE}
        s_mul_i32 {sr(T+2)}, {sr(PT)}, {BLK}
        v_add_u32 {vr(x)}, {sr(T+1)}, {vr(x)}
        s_sub_u32 {sr(T+3)}, {BLK}, {sr(T+2)}
        v_add_u32 {vr(y)}, {sr(T+3)}, {vr(x)}
        v_add_u32 {vr(x)}, {sr(T+2)}, {vr(x)}
        v_lshl_add_u32 {vr(VO)}, {vr(g4)}, 4, {vr(x)}
        v_lshl_add_u32 {vr(VO+1)}, {vr(g4)}, 4, {vr(y)}
        v_lshl_add_u32 {vr(self.VO8)}, {vr(g4)}, 3, {vr(x)}
        s_lshl_b32 {sr(T+3)}, {sr(PT)}, 11
        s_add_u32 {sr(self.E_U)}, {sr(T+3)}, {WS_U}
        s_add_u32 {sr(self.E_G)}, {sr(T+3)}, {WS_G}
        s_sub_u32 {sr(T+3)}, 4096, {sr(T+3)}
        s_lshl_b32 {sr(T)}, {sr(PT)}, 11
        s_add_u32 {sr(T)}, {sr(T)}, {WS_DWF}
        v_lshrrev_b32 {vr(x)}, 2, {vr(r0)}
        v_cmp_eq_u32 vcc, {vr(x)}, {vr(g4)}
        v_lshl_add_u32 {vr(self.VDW)}, {vr(r0)}, 4, {sr(T)}
        s_nop 0
        v_cndmask_b32 {vr(self.VDW)}, {vr(big)}, {vr(self.VDW)}, vcc
        s_lshl_b32 {sr(self.E_COL)}, {sr(S_W)}, 6
        v_lshlrev_b32 {vr(self.VL8)}, 3, v0
        v_add_u32 {vr(self.VL8)}, 4096, {vr(self.VL8)}
        v_add_u32 {vr(self.VST)}, {sr(S_LB)}, {vr(V_DMA)}
        v_add_u32 {vr(self.VST)}, {2*SLOT}, {vr(self.VST)}
        s_xor_b32 {sr(T)}, {sr(NB)}, 1
        v_xor_b32 {vr(x)}, {sr(T)}, {vr(g4)}
        v_lshl_add_u32 {vr(x)}, {vr(x)}, 4, {vr(r0)}
        s_lshl_b32 {sr(T)}, {sr(S_W)}, 2
        s_add_u32 {sr(T)}, {sr(T)}, {self.L_L}
        v_lshl_add_u32 {vr(self.VLW)}, {vr(x)}, 4, {sr(T)}
        s_sub_u32 {sr(self.MP1)}, 0, {sr(PT)}
        s_mov_b32 {sr(self.MP1+1)}, {sr(self.MP1)}""")
        for k, (d, base) in enumerate(((self.RS1, 3 * SLOT), (self.RS2, 2 * SLOT), (self.RS3, 2 * SLOT))):
            a(f"s_xor_b32 {sr(T)}, {sr(S_W)}, {k+1}\ns_mul_i32 {sr(T)}, {sr(T)}, {TILE}\ns_add_u32 {sr(d)}, {sr(T)}, {base}")
        a(f"""s_mul_i32 {sr(T)}, {sr(S_B)}, 4000
        s_add_u32 {sr(T+1)}, {sr(T)}, 3999
        s_mov_b32 {sr(T+2)}, {BLK}""")
        for k, dr in enumerate((0, -1, 1)):
            m = GA + 2 * k
            if dr: a(f"v_add_u32 {vr(m)}, {dr}, {vr(r)}\nv_cmp_eq_u32 vcc, {sr(T if dr < 0 else T+1)}, {vr(r)}")
            src = m if dr else r
            a(f"""v_lshrrev_b32 {vr(x)}, 4, {vr(src)}
            v_and_b32 {vr(y)}, 15, {vr(src)}
            v_mul_lo_u32 {vr(x)}, {vr(x)}, {sr(T+2)}
            v_lshl_add_u32 {vr(y)}, {vr(g4)}, 4, {vr(y)}
            v_lshl_add_u32 {vr(m)}, {vr(y)}, 4, {vr(x)}
            v_lshl_add_u32 {vr(m+1)}, {vr(y)}, 3, {vr(x)}
            v_add_u32 {vr(m+1)}, {sr(T+3)}, {vr(m+1)}""")
            if dr: a(f"v_cndmask_b32 {vr(m)}, {vr(m)}, {vr(big)}, vcc\nv_cndmask_b32 {vr(m+1)}, {vr(m+1)}, {vr(big)}, vcc")

    def conv_loads(self):
        GA = self.GA
        L = []
        for dst, m, so in ((self.GM, GA + 2, 1), (self.G0, GA, 1), (self.GP, GA + 4, 1), (self.U, GA, 0)):
            for k in range(2): L.append(f"buffer_load_dwordx4 {vr(dst+4*k,4)}, {vr(m)}, {sr(S_WS,4)}, {sr(self.E_U+so)} offen offset:{1024*k}")
            L.append(f"buffer_load_dwordx2 {vr(dst+8,2)}, {vr(m+1)}, {sr(S_WS,4)}, {sr(self.E_U+so)} offen")
        return L

    def rg(self, e, n): return (ar if e[0] == "a" else vr)(e[1], n)

    def w8_loads(self, regs, so):
        return [f"buffer_load_dwordx4 {self.rg(regs[s],4)}, {vr(V_DMA)}, {sr(S_WS,4)}, {sr(so)} offen offset:{1024*s}" for s in range(4)] + \
               [f"buffer_load_dwordx2 {self.rg(regs[4],2)}, {vr(self.VL8)}, {sr(S_WS,4)}, {sr(so)} offen"]

    def w_reads(self, regs, off):
        L = []
        for tt in range(2):
            L += [f"ds_read_b128 {self.rg(regs[tt][s],4)}, {vr(self.VS0)} offset:{off + BLK*tt + 1024*s}" for s in range(4)]
            L.append(f"ds_read_b64 {self.rg(regs[tt][4],2)}, {vr(self.VS0R)} offset:{off + BLK*tt}")
        return L

    def xa_srd(self):
        T = S_T
        return f"""s_mul_i32 {sr(T)}, {sr(S_B)}, {NT}
        s_mul_i32 {sr(T+1)}, {sr(S_H)}, 63
        s_add_u32 {sr(T+1)}, {sr(T+1)}, {sr(T)}
        s_mul_i32 {sr(T+1)}, {sr(T+1)}, {TILE}
        s_add_u32 {sr(S_XA)}, {sr(S_WS)}, {sr(T+1)}
        s_addc_u32 {sr(S_XA+1)}, {sr(S_WS+1)}, 0
        s_sub_u32 {sr(T+2)}, 63, {sr(S_H)}
        s_mul_i32 {sr(S_XA+2)}, {sr(T+2)}, {TILE}
        s_mov_b32 {sr(S_XA+3)}, 0x20000"""

    def rest(self):
        a, o = self.a, self.o
        T = S_T
        VPL = self.VPL
        self.plan()
        self.head()
        self.stamp("loop")
        if o.get("echo") and o["echo"][0] == "skew":
            a(f"s_waitcnt lgkmcnt(0)\ns_mov_b64 exec, 1\ns_not_b32 s98, {sr(S_ST)}\nv_mov_b32 v226, s98\nv_mov_b32 v227, 4\ns_cmp_lg_u32 {sr(S_W)}, 0\ns_cbranch_scc1 L_sk\nbuffer_atomic_umax v226, v227, {sr(S_DB,4)}, 0 offen sc1\ns_waitcnt vmcnt(0)\nL_sk:\ns_mov_b64 exec, -1\ns_nop 3")
        nh = o.get("ugh", 2)
        ex = {2 + 12 * k: x for k, x in enumerate(self.ugs[nh:])}
        self.period(0, vm=9 + 5, extra=ex)
        self.stamp("l0")
        a.raw(".p2align 6")
        a.label("L_loop")
        self.stamp("q1")
        for p in range(1, 5):
            ex = {}
            vm = 9
            if p == 1: ex = {73: f"s_cmp_eq_u32 {sr(S_CNT)}, 3"}
            if p == 2: ex = {70: f"buffer_load_dwordx4 v[252:255], {vr(VPL)}, {sr(S_DB,4)}, 0 offen sc1"}
            if p == 3:
                ex = {73: f"s_cmp_eq_u32 {sr(S_CNT)}, 2", 45: f"ds_add_rtn_u32 v230, v231, {vr(VPL+1)}"}
            if p == 4:
                self.stamp("la0")
                a(f"s_cbranch_scc1 L_last")
                a.label("L_lastb")
                self.stamp("la1")
                ex = {72: f"s_add_u32 {sr(S_CNT)}, {sr(S_CNT)}, 1", 1: "v_cmp_eq_u32 vcc, 3, v230", 3: f"v_cndmask_b32 v230, v231, {vr(VPL)}, vcc",
                      6: f"buffer_atomic_add {vr(VPL+1)}, v230, {sr(S_DB,4)}, 0 offen sc1"}
            self.period(p, extra=ex, inc=sr(S_INC) if p == 4 else None)
            if p == 1: a("s_cbranch_scc1 L_p14")
        a("s_branch L_loop")
        a.label("L_p14")
        SW = 66
        self.stamp("p14")
        a(f"s_cmp_eq_u32 {sr(S_DUM)}, 4\ns_cbranch_scc0 L_dummyb")
        for i in range(16): a(f"v_mov_b32 {vr(V_CI+i)}, 0xff800000")
        a("s_nop 1")
        a.label("L_dummyb")
        ex = dict(zip([2, 6, 8, 12, 14, 18, 20, 24, 26, 30], self.w_reads(self.WD, 0)))
        ex[0] = "s_waitcnt vmcnt(9)"
        ex.update(dict(zip([4, 10, 16, 22, 28], self.w8_loads(self.WD[2], SW))))
        self.period(14, dma=False, kread=False, extra=ex, halves=(0,))
        self.stamp("tail")
        self.tail(SW)
        self.stamp("end")
        self.epilogue(SW)

    def rare(self):
        a = self.a
        T = S_T
        SW = 66
        a.label("L_last")
        a(f"s_waitcnt vmcnt(9)\ns_mov_b32 {sr(T+2)}, 0")
        a.label("L_late")
        a(f"""v_readfirstlane_b32 {sr(T)}, v252
        v_readfirstlane_b32 {sr(T+1)}, v254
        s_add_u32 {sr(S_XA)}, {sr(S_WS)}, {WS_WF}
        s_addc_u32 {sr(S_XA+1)}, {sr(S_WS+1)}, 0
        s_mov_b32 {sr(S_XA+2)}, {18*BLK}
        s_add_u32 {sr(S_TOFF)}, {sr(S_LB)}, {9*BLK}
        s_mov_b32 {sr(S_INC)}, {-9*BLK}
        s_lshr_b32 {sr(SW)}, {sr(S_W)}, 1
        s_lshl_b32 {sr(SW)}, {sr(SW)}, 30
        s_add_u32 {sr(SW+1)}, {sr(SW)}, {WS_WF + 8*BLK}
        s_add_u32 {sr(SW)}, {sr(SW)}, {WS_WF + 17*BLK}
        s_cmp_ge_u32 {sr(T)}, 126
        s_cselect_b32 {sr(T+3)}, {sr(T+1)}, 0
        s_cmp_ge_u32 {sr(T+3)}, 2
        s_cbranch_scc1 L_lastb
        buffer_load_dwordx4 v[252:255], {vr(self.VPL)}, {sr(S_DB,4)}, 0 offen sc1
        s_add_u32 {sr(T+2)}, {sr(T+2)}, 1
        s_waitcnt vmcnt(0)
        s_cmp_lt_u32 {sr(T+2)}, 0x40000
        s_cbranch_scc1 L_late
        s_branch L_lastb""")

    units = [(0, 0), (0, 1), (1, 0), (1, 1), (2, 0)]
    V15 = V_K

    def stage(self, slot, T):
        src = ar(A_O + 36 * slot + 4 * T, 4)
        if slot == 0: return f"ds_write_b128 {vr(self.VST)}, {src} offset:{1024*T}"
        if slot == 2: return f"ds_write_b128 {vr(self.VS0)}, {src} offset:{1024*T}"
        if T < 4: return f"ds_write_b128 {vr(self.VST)}, {src} offset:{SLOT + 1024*T + (4096 if slot == 3 else 0)}"
        return f"{'s_not_b64' if slot == 1 else 's_mov_b64'} exec, {sr(self.MP1,2)}\nds_write_b128 {vr(self.VST)}, {src} offset:{SLOT + 8192}\ns_mov_b64 exec, -1"

    def dwf(self, k, i):
        f = 5 * k + i
        return self.DWT[f >> 1] + 2 * (f & 1)

    def tail(self, SW):
        a, o = self.a, self.o
        mf, pos, start = [], {}, {}
        for t_, qb in ((14, 0), (14, 1), (15, 0), (15, 1), (14, 2), (15, 2), (14, 3), (15, 3)):
            start[t_, qb] = len(mf)
            for Tt in ([0, 1, 2, 3, 8, 4, 5, 6, 7] if qb & 1 else range(9)):
                o_ = ar(A_O + 36 * qb + 4 * Tt, 4)
                pos[t_, qb, Tt] = len(mf)
                mf.append(f"v_mfma_f32_16x16x32_bf16 {o_}, {vr((V_V if t_ == 14 else self.V15)+4*Tt,4)}, {vr(self.P(t_ & 1,qb),4)}, {o_}")
        lst = []
        for qb in range(4):
            for j in range(8):
                lst.append(("e", qb, j))
                if j & 1: lst.append(("c", qb, j // 2))
        lst += [("a", qb, j) for qb in range(4) for j in range(8)]
        items = self.e_items(1, lst, lambda qb, j: 0 if j < 4 else 1, lambda qb: start[15, qb] - 2)
        for it in items[48:]: it["lo"] = o.get("alo", 26)
        v15 = [dict(t=x, c=4, need=pos[15, 0, i // 2], hi=pos[15, 0, i // 2] - o.get("vlead", 7), lo=0 if i < 16 else 2) for i, x in enumerate(self.v_reads(3, self.V15))]
        wr = []
        nown = o.get("nown", 4)
        self.own = [(2, T_) for T_ in range(nown, 9)] + [(3, T_) for T_ in (0, 1, 2, 3, 8)]
        g = o.get("w0", 23)
        for k, (sl, Tt) in enumerate([(0, T_) for T_ in range(9)] + [(1, T_) for T_ in (0, 1, 2, 3, 8)] + [(2, T_) for T_ in range(nown)]):
            g = max(pos[15, sl, Tt] + 5, g)
            wr.append(dict(t=self.stage(sl, Tt), c=o.get("wc", 20), lo=int(g), hi=int(g)) if g < 72 else dict(t=self.stage(sl, Tt), c=4, lo=999))
            g += o.get("wsp", 2.7)
        n0 = len(items) + len(v15)
        wo = []
        for i, x in enumerate(self.w_reads(self.WO, SLOT)):
            r0 = self.WO[i // 5][i % 5][1]
            wo.append(dict(t=("@VM\n" if i == 0 else "") + x, c=4, dep=sorted({n0 + r0 // 4, n0 + (r0 + 3) // 4 if (r0 + 3) // 4 < 9 else n0 + 8}), lo=o.get("wo0", 40) + 3 * i, hi=o.get("wo0", 40) + 3 * i + 2))
        cl = self.conv_loads()
        dl = [f"buffer_load_dwordx4 {vr(self.DWT[r],4)}, {vr(self.VDW)}, {sr(S_WS,4)}, 0 offen offset:{256*r}" for r in range(7)]
        dl.append(f"buffer_load_dwordx2 {vr(self.DWT[7],2)}, {vr(self.VDW)}, {sr(S_WS,4)}, 0 offen offset:{256*7}")
        fr = {96: 9, 100: 18, 104: 45, 112: 27, 116: 36}
        vm = [(x, 0) for x in cl] + [(x, fr.get(self.DWT[r], 0)) for r, x in enumerate(dl)]
        used = {w["lo"] for w in wr}
        vi, g = [], o.get("m0", 24)
        for x, lo in vm:
            g = max(g, lo)
            while int(g) in used: g += 1
            vi.append(dict(t=x, c=8, lo=int(g), hi=int(g)) if g < 72 else dict(t=x, c=8, lo=999))
            g += o.get("msp", 2.2)
        left = self.pack(mf, items + v15 + wr + wo + vi)
        self.done_a = {(qb, j) for qb in range(4) for j in range(8) if self.etext(1, ("a", qb, j)) not in left}
        left = [x for x in left if not x.startswith("v_add_f32")]
        print("tail overflow", self.over, "left", len(left), "adds done", len(self.done_a))
        self.left = left

    def epilogue(self, SW):
        a, o = self.a, self.o
        T = S_T
        p = lambda r: vr(r, 2)
        NB, PT, MK, VO, units, MP1 = self.NB, self.PT, self.MK, self.VO, self.units, self.MP1
        U, GM, G0, GP = self.U, self.GM, self.G0, self.GP
        X2O = self.X2O
        R1, R2, R3 = 230, 231, 249
        LA, LS, M = 10, 226, 48

        def weave(main, fill, per):
            fill = list(fill)
            for x in main:
                a(x)
                for _ in range(per):
                    if fill: a(fill.pop(0))
            return fill
        for x in self.left:
            if not x.startswith("buffer"): a(x)
        lv = [x for x in self.left if x.startswith("buffer")]
        lv += [f"buffer_load_dwordx4 {vr(self.XRS[j],4)}, {vr(VO+j)}, {sr(S_X,4)}, {sr(self.E_COL)} offen" for j in range(2)]
        lv.append(f"buffer_load_dwordx2 {vr(self.XRS[2],2)}, {vr(self.VO8)}, {sr(S_X,4)}, 0 offen offset:256")
        S1 = lambda qb, j: self.S(1, qb, j)
        rounds = [[] for _ in range(6)]
        for qb in range(4):
            rem = [j for j in range(8) if (qb, j) not in self.done_a]
            prs = [j for j in rem if j % 2 == 0 and j + 1 in rem]
            sing = [j for j in rem if (j & ~1) not in prs]
            r_ = 0
            while len(prs) > 1:
                for x, y in zip(prs[0::2], prs[1::2]): rounds[r_].append(f"v_pk_add_f32 {p(S1(qb,x))}, {p(S1(qb,x))}, {p(S1(qb,y))}")
                prs = prs[0::2]; r_ += 1
            for k_, j in enumerate(sing + ([prs[0], prs[0] + 1] if prs else [])): rounds[min(5, max(r_, 2) + k_)].append(f"v_add_f32 {vr(V_L+qb)}, {vr(V_L+qb)}, {vr(S1(qb,j))}")
        for r_ in rounds:
            for x in r_: a(x)
        a(f"v_add_u32 {vr(R1)}, {sr(self.RS1)}, {vr(V_DMA)}\nv_add_u32 {vr(R2)}, {sr(self.RS2)}, {vr(V_DMA)}")
        self.treduce(V_L)
        a(f"ds_write_b32 {vr(self.VLW)}, {vr(V_L)}")
        acc = lambda slot: [f"v_accvgpr_read_b32 {vr(M+i)}, {ar(A_O+36*slot+16+i)}" for i in range(20)]
        a(f"""v_add_u32 {vr(R3)}, {sr(self.RS3)}, {vr(V_DMA)}
        v_add_u32 {vr(LA+1)}, {self.L_L}, {vr(V_DMA)}
        v_and_b32 {vr(LS+1)}, 0xf0, {vr(V_DMA)}
        s_lshl_b32 {sr(T)}, {sr(NB)}, 8
        s_add_u32 {sr(T+8)}, {sr(T)}, {self.L_L}
        v_add_u32 {vr(LS)}, {sr(T+8)}, {vr(LS+1)}""")
        for x in lv: a(x)
        a(f"""s_xor_b32 {sr(T)}, s2, 1
        s_mul_i32 {sr(T)}, {sr(T)}, {IB}
        s_mul_i32 {sr(T+9)}, {sr(NB)}, 5120
        s_add_u32 {sr(T+9)}, {sr(T+9)}, {WS_IB}
        s_add_u32 {sr(T)}, {sr(T)}, {sr(T+9)}
        s_lshl_b32 {sr(T+10)}, {sr(PT)}, 11
        s_add_u32 {sr(T+1)}, {sr(T+10)}, {sr(T)}
        s_add_u32 {sr(T)}, {sr(T)}, 4096
        s_cmp_eq_u32 {sr(PT)}, 0
        s_cselect_b32 {sr(T)}, 0x40000000, {sr(T)}
        s_mov_b32 {sr(T+2)}, {f32(2.0**100)}
        s_mul_i32 {sr(T+12)}, s2, {IB}
        s_add_u32 {sr(T+12)}, {sr(T+12)}, {sr(T+9)}
        s_add_u32 {sr(T+13)}, {sr(T+12)}, {sr(T+10)}
        s_waitcnt lgkmcnt(0)
        s_barrier""")
        self.stamp("B1")

        def rd(X, offs):
            L = [[f"ds_read_b128 {vr(X[k][i],4)}, {vr((R1, R2, R3)[k])} offset:{offs[k] + 1024*i}" for i in range(4)] for k in range(3)]
            L8 = [f"ds_read_b128 {vr(X[k][4],4)}, {vr((R1, R2, R3)[k])} offset:8192" for k in range(3)]
            return L, L8

        def adds(X, k, rng):
            return [f"v_pk_add_f32 {p(M+4*i+2*h)}, {p(M+4*i+2*h)}, {p(X[k][i]+2*h)}" for i in rng for h in range(2)]
        X = [[128, 132, 136, 140, 144], [148, 152, 156, 160, 68], [72, 76, 200, 204, 108]]
        PK = 128
        L, L8 = rd(X, (0, 4096, 0))
        a(f"ds_read_b128 {vr(LA,4)}, {vr(LA+1)}\nds_read_b128 {vr(LS,4)}, {vr(LS)}")
        rest = weave(L[0] + L[1] + L[2], acc(1), 2)
        assert not rest
        a(f"s_mov_b64 exec, {sr(MP1,2)}")
        for x in L8: a(x)
        a(f"""s_mov_b64 exec, -1
        s_waitcnt lgkmcnt(11)
        v_add_f32 {vr(LA)}, {vr(LA)}, {vr(LA+1)}
        v_add_f32 {vr(LA+2)}, {vr(LA+2)}, {vr(LA+3)}
        v_add_f32 {vr(LS)}, {vr(LS)}, {vr(LS+1)}
        v_add_f32 {vr(LA)}, {vr(LA)}, {vr(LA+2)}
        v_add_f32 {vr(LS+2)}, {vr(LS+2)}, {vr(LS+3)}
        v_cmp_nge_f32 vcc, {sr(T+2)}, {vr(LA)}""")
        for x in adds(X, 0, range(4)): a(x)
        a(f"""s_cmp_lg_u64 vcc, 0
        s_cselect_b32 {sr(T+2)}, 1, 0
        s_andn2_b32 {sr(T+2)}, {sr(T+2)}, {sr(S_REDO)}
        s_cbranch_scc1 L_fallback
        v_add_f32 {vr(PK+10)}, {vr(LS)}, {vr(LS+2)}
        v_mov_b32 {vr(PK+11)}, {vr(MK+1)}
        s_waitcnt lgkmcnt(7)""")
        for x in adds(X, 1, range(4)): a(x)
        a("s_waitcnt lgkmcnt(3)")
        a3 = adds(X, 2, range(4))
        cv = [f"v_cvt_pk_bf16_f32 {vr(PK+i)}, {vr(M+2*i)}, {vr(M+2*i+1)}" for i in range(10)]
        for x in a3[:4] + a3[4:6] + cv[:4]: a(x)
        a(f"buffer_store_dwordx4 {vr(PK,4)}, {vr(V_DMA)}, {sr(S_WS,4)}, {sr(T+1)} offen sc1")
        for x in a3[6:] + cv[4:8]: a(x)
        a(f"buffer_store_dwordx4 {vr(PK+4,4)}, {vr(V_DMA)}, {sr(S_WS,4)}, {sr(T+1)} offen offset:1024 sc1")
        a("s_waitcnt lgkmcnt(0)")
        for kk in range(3):
            for x in adds(X, kk, [4]): a(x)
        for x in cv[8:]: a(x)
        a(f"buffer_store_dwordx4 {vr(PK+8,4)}, {vr(V_DMA)}, {sr(S_WS,4)}, {sr(T)} offen sc1")
        self.stamp("sent")
        a(f"s_cmp_eq_u32 {sr(S_VAL)}, 0\ns_cbranch_scc1 L_fin")
        C, UP = 140, 68
        IN = [(200, 204, 226), (164, 168, 252), (192, 196, 172)]
        VXW, VXR, VF, LO = 78, 79, 10, 36
        wr = [self.stage(*e) for e in self.own]

        def inbox(k):
            return [f"buffer_load_dwordx4 {vr(IN[k][0],4)}, {vr(V_DMA)}, {sr(S_WS,4)}, {sr(T+13)} offen sc1",
                    f"buffer_load_dwordx4 {vr(IN[k][1],4)}, {vr(V_DMA)}, {sr(S_WS,4)}, {sr(T+13)} offen offset:1024 sc1",
                    f"buffer_load_dwordx4 {vr(IN[k][2],4)}, {vr(V_DMA+1)}, {sr(S_WS,4)}, {sr(T+12)} offen sc1"]
        for x in inbox(0): a(x)
        n0 = len(a.lines)
        a(f"""s_lshl_b32 {sr(T)}, {sr(NB)}, 12
        s_add_u32 {sr(T)}, {sr(T)}, {sr(T+10)}
        s_add_u32 {sr(T)}, {sr(T)}, {self.X1B}
        v_add_u32 {vr(VXW)}, {sr(T)}, {vr(V_DMA)}
        s_lshl_b32 {sr(T)}, {sr(NB)}, 9
        s_add_u32 {sr(T)}, {sr(T)}, {self.X1B + 4096}
        v_add_u32 {vr(VXR)}, {sr(T)}, {vr(self.VL8)}
        s_lshl_b32 {sr(T)}, {sr(PT)}, 12
        s_add_u32 {sr(T)}, {sr(T)}, {self.X1B}
        v_add_u32 {vr(VF)}, {sr(T)}, {vr(V_DMA)}
        v_xor_b32 {vr(VF+1)}, 4096, {vr(VF)}
        s_lshl_b32 {sr(T)}, {sr(PT)}, 9
        s_add_u32 {sr(T)}, {sr(T)}, {self.X1B + 4096}
        v_add_u32 {vr(VF+2)}, {sr(T)}, {vr(self.VL8)}
        v_xor_b32 {vr(VF+3)}, 512, {vr(VF+2)}
        v_subrev_u32 {vr(R2)}, {2*SLOT}, {vr(R2)}
        v_subrev_u32 {vr(R3)}, {2*SLOT}, {vr(R3)}
        s_waitcnt vmcnt(9)""")
        self.stamp("cv0")
        un = [f"v_lshlrev_b32 {vr(M+2*i)}, 16, {vr(U+i)}\nv_and_b32 {vr(M+1+2*i)}, 0xffff0000, {vr(U+i)}" for i in range(10)]
        w8 = self.w8_loads(self.WO[2], SW + 1)
        for k, src in enumerate((GM, G0, GP)):
            for i in range(5):
                d = vr(C + 4 * i, 4)
                a(f"v_mfma_f32_16x16x16_bf16 {d}, {vr(self.dwf(k, i),2)}, {vr(src+2*i,2)}, {'0' if k == 0 else d}")
                a(w8.pop(0) if i in (0, 3) and w8 else un.pop(0))
        self.stamp("cv1")
        a(f"v_and_b32 {vr(LO+1)}, 0xf0, {vr(V_DMA)}\nv_add_u32 {vr(LO)}, {sr(T+8)}, {vr(LO+1)}\ns_nop 1")
        for i in range(10): a(f"v_pk_mul_f32 {p(C+2*i)}, {p(C+2*i)}, {p(M+2*i)}")
        for i in range(10):
            a(f"v_cvt_pk_bf16_f32 {vr(UP+i)}, {vr(C+2*i)}, {vr(C+2*i+1)}")
        body = a.lines[n0:]; del a.lines[n0:]
        step = max(1, len(body) // len(wr))
        for i, l in enumerate(body):
            if i % o.get("wstep", step) == 0 and wr: a(wr.pop(0))
            a.lines.append(l)
        for x in wr: a(x)
        ac = acc(3)
        a(f"ds_write_b128 {vr(VXW)}, {vr(UP,4)} offset:{X2O}")
        for x in ac[:6]: a(x)
        a(f"ds_write_b128 {vr(VXW)}, {vr(UP+4,4)} offset:{X2O + 1024}")
        for x in ac[6:12]: a(x)
        a(f"""s_mov_b64 exec, {sr(MP1,2)}
        ds_write_b64 {vr(VXR)}, {vr(UP+8,2)} offset:{X2O}
        s_mov_b64 exec, -1""")
        self.stamp("x2")
        for x in inbox(1): a(x)
        for x in ac[12:]: a(x)
        a("s_waitcnt lgkmcnt(0)\ns_barrier")
        self.stamp("B2")
        X = [[128, 132, 136, 140, 144], [148, 152, 156, 160, 188], [16, 20, 24, 28, 32]]
        L, L8 = rd(X, (4096, 4096, 0))
        BU = [[("v", r) for r in (100, 104, 108, 112, 116)], [("v", r) for r in (118, 122, 180, 184, 126)]]
        BO = [self.frag("v", 128), self.frag("v", 146)]
        AB = 80

        def bfrags(dst, off):
            out = []
            for s in range(5):
                for j in range(2):
                    out.append(f"ds_read_b128 {self.rg(dst[j][s],4)}, {vr(VF+j)} offset:{off + 1024*s}" if s < 4 else f"ds_read_b64 {self.rg(dst[j][4],2)}, {vr(VF+2+j)} offset:{off}")
            return out

        def fg(W, Bf):
            out = []
            for s in range(5):
                for u, (tt, j) in enumerate(units):
                    d = vr(AB + 4 * u, 4)
                    if s < 4: out.append(f"v_mfma_f32_16x16x32_bf16 {d}, {self.rg(W[tt][s],4)}, {self.rg(Bf[j][s],4)}, {d}")
                    else: out.append(f"v_mfma_f32_16x16x16_bf16 {d}, {self.rg(W[tt][4],2)}, {self.rg(Bf[j][4],2)}, {d}")
            return out
        xu = []
        for u, (tt, j) in enumerate(units):
            for h in range(2):
                x = self.XRS[j] + 2 * tt + h if tt < 2 else self.XRS[2] + h
                xu += [f"v_lshlrev_b32 {vr(AB+4*u+2*h)}, 16, {vr(x)}", f"v_and_b32 {vr(AB+1+4*u+2*h)}, 0xffff0000, {vr(x)}"]
        a("s_waitcnt vmcnt(14)")
        weave(bfrags(BU, X2O), xu, 2)
        pl = lambda k, i, e: f"v_add_f32 {vr(M+4*i+e)}, {vr(M+4*i+e)}, {vr(X[k][i]+e)}"
        ds = L[0] + L[1] + L[2] + [f"s_not_b64 exec, {sr(MP1,2)}\n" + "\n".join(L8) + "\ns_mov_b64 exec, -1", f"ds_read_b128 {vr(LO,4)}, {vr(LO)} offset:512"]
        nis = [1] * 12 + [3, 1]
        gap = [[] for _ in range(25)]
        tot = [10]
        for g in range(25): tot.append(tot[-1] + (nis[g] if g < 14 else 0))
        A0 = [pl(0, i, e) for i in range(4) for e in range(4)]
        A1 = [pl(1, i, e) for i in range(4) for e in range(4)]
        ib = inbox(2)
        for g, m in enumerate(fg(self.WD, BU)):
            if g % 5 == 0: a(f"s_waitcnt lgkmcnt({min(15, tot[g] - 2 * (g // 5 + 1))})")
            a(m)
            if g == 8: a(f"s_waitcnt lgkmcnt({tot[g] - 14})")
            if g == 16: a(f"s_waitcnt lgkmcnt({tot[g] - 18})")
            if g < 14: a(ds[g])
            if 8 <= g < 14: a(A0.pop(0))
            elif g in (14, 18, 22): a(ib.pop(0))
            elif g >= 14:
                for _ in range(2): a(A0.pop(0) if A0 else A1.pop(0))
        assert not A0 and len(A1) % 2 == 0
        n1 = 16 - len(A1)
        for e in range(n1, 16, 2): a(f"v_pk_add_f32 {p(M+e)}, {p(M+e)}, {p(X[1][e//4]+e%4)}")
        a("s_waitcnt lgkmcnt(0)")
        for x in adds(X, 2, range(4)): a(x)
        a(f"v_add_f32 {vr(LO)}, {vr(LO)}, {vr(LO+1)}\nv_add_f32 {vr(LO+2)}, {vr(LO+2)}, {vr(LO+3)}")
        for kk in range(3):
            for x in adds(X, kk, [4]): a(x)
        a(f"s_mov_b32 {sr(T+2)}, 0\nv_add_f32 {vr(LO)}, {vr(LO)}, {vr(LO+2)}")
        self.stamp("own")
        w, PU = 40, 128
        mo = MK + 3

        def chk(k):
            r = [IN[k][q] + i for q in range(3) for i in range(4)]
            c = [f"v_max3_u32 v46, {vr(r[0])}, {vr(r[1])}, {vr(r[2])}", f"v_max3_u32 v47, {vr(r[3])}, {vr(r[4])}, {vr(r[5])}"]
            for q in range(3): c.append(f"v_max3_u32 v{46+(q&1)}, v{46+(q&1)}, {vr(r[6+2*q])}, {vr(r[7+2*q])}")
            return c + ["v_max_u32 v46, v46, v47", "v_cmp_eq_u32 vcc, -1, v46"]

        def take(k, with_chk):
            r = [IN[k][q] + i for q in range(3) for i in range(4)]
            lp_, mp = r[10], r[11]
            wt = [f"v_min_f32 {vr(w)}, {vr(mo)}, {vr(mp)}", f"v_sub_f32 {vr(w+2)}, {vr(w)}, {vr(mp)}", f"v_sub_f32 {vr(w)}, {vr(w)}, {vr(mo)}",
                  f"v_exp_f32 {vr(w+2)}, {vr(w+2)}", f"v_exp_f32 {vr(w)}, {vr(w)}", f"v_mul_f32 {vr(w+4)}, {vr(w+2)}, {vr(lp_)}",
                  f"v_fmac_f32 {vr(w+4)}, {vr(w)}, {vr(LO)}", f"v_rcp_f32 {vr(w+4)}, {vr(w+4)}", f"v_mul_f32 {vr(w)}, {vr(w)}, {vr(w+4)}",
                  f"v_mul_f32 {vr(w+2)}, {vr(w+2)}, {vr(w+4)}"]
            un = []
            for i in range(10): un += [f"v_lshlrev_b32 {vr(PU+2*i)}, 16, {vr(r[i])}", f"v_and_b32 {vr(PU+1+2*i)}, 0xffff0000, {vr(r[i])}"]
            c = chk(k) if with_chk else []
            for i in range(10):
                a(wt[i])
                if c: a(c.pop(0))
                a(un.pop(0)); a(un.pop(0))
        a("s_waitcnt vmcnt(6)")
        take(0, True)
        a("s_cmp_eq_u64 vcc, 0\ns_cbranch_scc0 L_poll2")
        a.label("L_got")
        self.stamp("got")
        for i in range(10): a(f"v_pk_mul_f32 {p(M+2*i)}, {p(M+2*i)}, {p(w)} op_sel_hi:[1,0]")
        for i in range(10): a(f"v_pk_fma_f32 {p(M+2*i)}, {p(PU+2*i)}, {p(w+2)}, {p(M+2*i)} op_sel_hi:[1,0,1]")
        for i in range(10):
            a(f"v_cvt_pk_bf16_f32 {vr(UP+i)}, {vr(M+2*i)}, {vr(M+2*i+1)}")
            if i == 3: a(f"ds_write_b128 {vr(VXW)}, {vr(UP,4)}")
            if i == 7: a(f"ds_write_b128 {vr(VXW)}, {vr(UP+4,4)} offset:1024")
        a(f"""s_not_b64 exec, {sr(MP1,2)}
        ds_write_b64 {vr(VXR)}, {vr(UP+8,2)}
        s_mov_b64 exec, -1
        s_waitcnt lgkmcnt(0)
        s_barrier""")
        self.stamp("B3")
        for x in bfrags(BO, 0): a(x)
        for g, m in enumerate(fg(self.WO, BO)):
            if g % 5 == 0: a(f"s_waitcnt lgkmcnt({8 - 2 * (g // 5)})" + ("\ns_nop 0" if g == 20 else ""))
            a(m)
        self.stamp("gem")
        a("s_nop 3")
        for j in range(2):
            for tt in range(2):
                u = 2 * tt + j
                for h in range(2): a(f"v_cvt_pk_bf16_f32 {vr(16+4*j+2*tt+h)}, {vr(AB+4*u+2*h)}, {vr(AB+4*u+2*h+1)}")
            a(f"buffer_store_dwordx4 {vr(16+4*j,4)}, {vr(VO+j)}, {sr(S_OUT,4)}, {sr(self.E_COL)} offen")
        a(f"s_cmp_ge_u32 {sr(S_W)}, 2\ns_cbranch_scc1 L_fin")
        for h in range(2): a(f"v_cvt_pk_bf16_f32 {vr(24+h)}, {vr(AB+16+2*h)}, {vr(AB+16+2*h+1)}")
        a(f"buffer_store_dwordx2 v[24:25], {vr(self.VO8)}, {sr(S_OUT,4)}, 0 offen offset:256")
        self.stamp("fin")

        def poll2():
            a.label("L_poll2")
            for k in (1, 2, 0):
                for x in inbox((k + 2) % 3): a(x)
                a("s_waitcnt vmcnt(6)")
                for x in chk(k): a(x)
                a(f"s_add_u32 {sr(T+2)}, {sr(T+2)}, 1\ns_cmp_eq_u64 vcc, 0\ns_cbranch_scc1 L_take{k}")
            a(f"s_cmp_lt_u32 {sr(T+2)}, 0x10000\ns_cbranch_scc1 L_poll2")
            for k in (0, 1, 2):
                a.label(f"L_take{k}")
                take(k, False)
                a("s_branch L_got")
        self.poll2 = poll2

    def fallback(self):
        a = self.a
        T = S_T
        MXR = 208
        a.label("L_fallback")
        a(f"""s_waitcnt vmcnt(0) lgkmcnt(0)
        s_barrier
        s_mov_b32 {sr(S_REDO)}, 1
        s_mov_b32 {sr(S_UG)}, 0x40000000
        {self.xa_srd()}
        s_mov_b32 {sr(S_TOFF)}, {sr(S_LB)}
        s_cmp_eq_u32 {sr(S_DUM)}, 4
        s_cselect_b32 {sr(S_CNT)}, 15, 16""")
        for i in range(4): a(f"v_mov_b32 {vr(MXR+i)}, 0xff800000")
        a.label("L_fb1")
        for g in self.tile_groups(0): a(g)
        a("s_waitcnt vmcnt(0)")
        for x in self.k_reads(0): a(x)
        a("s_waitcnt lgkmcnt(0)")
        for m in self.qk_mfmas(0, czero=True): a(m)
        a("s_nop 7")
        for qb in range(4):
            for i in range(0, 8, 2): a(f"v_max3_f32 {vr(MXR+qb)}, {vr(MXR+qb)}, {vr(self.S(0,qb,i))}, {vr(self.S(0,qb,i+1))}")
        a(f"s_sub_u32 {sr(S_CNT)}, {sr(S_CNT)}, 1\ns_cmp_lg_u32 {sr(S_CNT)}, 0\ns_cbranch_scc1 L_fb1")
        self.greduce([MXR + i for i in range(4)], MXR + 4, "v_max_f32")
        a(f"""v_and_b32 {vr(MXR+4)}, 15, v0
        v_lshlrev_b32 {vr(MXR+4)}, 4, {vr(MXR+4)}
        v_add_u32 {vr(MXR+4)}, {L_SP}, {vr(MXR+4)}
        s_lshl_b32 {sr(T)}, {sr(S_W)}, 2
        s_xor_b32 {sr(T+1)}, {sr(self.NB)}, 1
        v_lshl_add_u32 {vr(MXR+5)}, {sr(self.NB)}, 8, {vr(MXR+4)}
        v_lshl_add_u32 {vr(MXR+4)}, {sr(T+1)}, 8, {vr(MXR+4)}
        v_add_u32 {vr(MXR+6)}, {sr(T)}, {vr(MXR+4)}
        v_add_u32 {vr(MXR+7)}, {sr(T)}, {vr(MXR+5)}""")
        for qb in range(4): a(f"ds_write_b32 {vr(MXR+6+(qb&1))}, {vr(MXR+qb)} offset:{512*(qb>>1)}")
        a("s_waitcnt lgkmcnt(0)\ns_barrier")
        for qb in range(4): a(f"ds_read_b128 {vr(16+4*qb,4)}, {vr(MXR+4+(qb&1))} offset:{512*(qb>>1)}")
        a(f"s_mov_b32 {sr(S_TOFF)}, {sr(S_LB)}")
        for g in self.tile_groups(0) + self.tile_groups(1) + self.tile_groups(2)[:8]: a(g)
        a("s_waitcnt lgkmcnt(0)")
        for qb in range(4):
            r = 16 + 4 * qb
            a(f"v_max_f32 {vr(r)}, {vr(r)}, {vr(r+1)}\nv_max3_f32 {vr(r)}, {vr(r)}, {vr(r+2)}, {vr(r+3)}")
            a(f"v_sub_f32 {vr(self.MK+qb)}, 0, {vr(r)}")
        a("s_waitcnt vmcnt(0)")
        for x in self.k_reads(0, V_V): a(x)
        self.loop_init(False)
        a("s_branch L_go")


if __name__ == "__main__":
    opt = json.loads(sys.argv[2]) if len(sys.argv) > 2 else {}
    g = G(opt)
    txt = g.build()
    if opt.get("align", 1):
        from align import align
        for n2 in (1, 2):
            try:
                txt, st = align(txt, chains=[(1, "L_tr")] * 3 + [(1, "L_tr2"), (n2, "L_tr2")] if opt.get("touch", 1) else None)
                break
            except AssertionError as e:
                if n2 == 2: raise
        print("align: promoted %d, padded %d, left %d" % st)
    txt = txt.replace("\n", "\n; stamps " + json.dumps(g.stnames) + "\n; map %d\n" % g.mp, 1)
    open(sys.argv[1], "w").write(txt)
```

```python
import sys, json, math
from common import Asm, vr, ar, sr, kernel_header, kernel_desc
from lay import *

NAME = "standalone__conformer_family_branchformer__speech_kernel"
NH = 2
NWG = 252 + NH
CHAINS = (3, 3)
RING = 4
LDS_RING = RING * TILE
LDS_TOTAL = 163840
SLOT = 4 * TILE
L_WU, L_WQ, L_WK = 0, 41472, 82944
L_XX, L_XR = 126976, 143360
L_QD = 18432
L_XS = L_XX + L_QD
L_MX = 81920
L_PC = LDS_TOTAL - 256
L_DUMP = 123904
L_SP = 147456

S_X, S_WS, S_XA, S_DB, S_W1, S_W2, S_OUT, S_DW = 8, 12, 16, 20, 24, 28, 32, 36
S_W, S_B, S_H, S_QB, S_TOFF, S_CNT, S_DUM, S_LB, S_TOWN, S_TSND, S_VAL, S_REDO = range(40, 52)
S_UG = 25
S_INC = 24
S_T = 52
S_ST = 76

V_KA, V_VA, V_VR, V_DMA, V_L, V_VB = 1, 3, 5, 6, 10, 14
V_S, V_CI, V_P, V_K, V_V = 16, 80, 96, 128, 164
V_HI = 200
V_X = 208
A_O, A_Q, A_F = 0, 144, 216

LOG2E = 1.4426950408889634
import struct
def f32(x): return "0x%08x" % struct.unpack("<I", struct.pack("<f", x))[0]


class BAsm(Asm):
    def __init__(self):
        super().__init__()
        self.bg, self.every, self.cnt, self.skip = [], 0, 0, 0

    def __call__(self, s):
        for l in s.split("\n"):
            l = l.strip()
            if not l: continue
            self.lines.append("    " + l)
            if self.bg and self.every and not l.startswith(("s_nop", "v_mov_b32", "v_exp", "v_rcp", "v_rsq", "v_sqrt", "s_add_u32 m0")):
                self.cnt += 1
                if self.cnt >= self.every:
                    self.cnt = 0
                    self.pop()

    def pop(self):
        for x in self.bg.pop(0).split("\n"): self.lines.append("    " + x)

    def flush(self):
        while self.bg: self.pop()
        self.every = 0


class G:
    def __init__(self, opt):
        self.o = opt
        self.a = BAsm()
        self.nst = 0
        self.fill = []

    def stamp(self, name):
        if self.o.get("stamps"):
            if name in self.o.get("skipst", []): return
            if "only" in self.o and name not in self.o["only"]: return
            if self.nst >= 11: return
            self.a(f"{'s_memtime' if self.o.get('cyc') else 's_memrealtime'} {sr(S_ST + 2*self.nst, 2)}")
            self.stnames.append(name)
            self.nst += 1

    def srd(self, dst, lo, hi, n):
        self.a(f"s_mov_b32 {sr(dst)}, {sr(lo)}\ns_mov_b32 {sr(dst+1)}, {sr(hi)}\ns_mov_b32 {sr(dst+2)}, {n}\ns_mov_b32 {sr(dst+3)}, 0x20000")

    def greduce(self, regs, tmp, op="v_add_f32"):
        a = self.a
        for sw in ("32", "16"):
            for i, r in enumerate(regs): a(f"v_mov_b32 {vr(tmp+i)}, {vr(r)}")
            if len(regs) < 3: a("s_nop 1" if len(regs) == 1 else "s_nop 0")
            for i, r in enumerate(regs): a(f"v_permlane{sw}_swap_b32 {vr(r)}, {vr(tmp+i)}")
            for i, r in enumerate(regs): a(f"{op} {vr(r)}, {vr(r)}, {vr(tmp+i)}")

    def treduce(self, r, op="v_add_f32"):
        a = self.a
        a(f"v_permlane32_swap_b32 {vr(r)}, {vr(r+2)}\nv_permlane32_swap_b32 {vr(r+1)}, {vr(r+3)}")
        a(f"{op} {vr(r)}, {vr(r)}, {vr(r+2)}\n{op} {vr(r+1)}, {vr(r+1)}, {vr(r+3)}\ns_nop 1")
        a(f"v_permlane16_swap_b32 {vr(r)}, {vr(r+1)}\n{op} {vr(r)}, {vr(r)}, {vr(r+1)}")

    def rbf(self, r):
        self.a(f"v_cvt_pk_bf16_f32 {vr(r)}, {vr(r)}, {vr(r)}\nv_lshlrev_b32 {vr(r)}, 16, {vr(r)}")

    def ln_tail(self, F, out, t, mimic):
        a = self.a
        p = lambda r: vr(r, 2)
        self.greduce([t, t + 1], t + 2)
        a(f"v_mul_f32 {vr(t+2)}, {f32(1.0/144)}, {vr(t)}")
        a(f"v_mul_f32 {vr(t+3)}, {vr(t+2)}, {vr(t+2)}")
        a(f"v_mov_b32 {vr(t+4)}, {f32(1.0/144)}")
        a(f"v_fma_f32 {vr(t)}, {vr(t+1)}, {vr(t+4)}, -{vr(t+3)}")
        a(f"v_max_f32 {vr(t)}, 0, {vr(t)}")
        if mimic:
            self.rbf(t)
            self.rbf(t + 2)
            a(f"v_add_f32 {vr(t)}, {f32(1e-5)}, {vr(t)}")
            self.rbf(t)
            a(f"v_sqrt_f32 {vr(t)}, {vr(t)}\ns_nop 0")
            self.rbf(t)
            a(f"v_rcp_f32 {vr(t)}, {vr(t)}\ns_nop 0")
        else:
            a(f"v_add_f32 {vr(t)}, {f32(1e-5)}, {vr(t)}")
            a(f"v_rsq_f32 {vr(t)}, {vr(t)}\ns_nop 0")
        a(f"v_mul_f32 {vr(t+2)}, -{vr(t+2)}, {vr(t)}")
        for i in range(18):
            a(f"v_pk_fma_f32 {p(F+2*i)}, {p(F+2*i)}, {p(t)}, {p(t+2)} op_sel_hi:[1,0,0]")
        for i in range(18):
            a(f"v_cvt_pk_bf16_f32 {vr(out+i)}, {vr(F+2*i)}, {vr(F+2*i+1)}")

    def ln_packed(self, X, F, out, t):
        a = self.a
        a(f"v_mov_b32 {vr(t+6)}, 0x3f803f80")
        for k in range(4): a(f"v_mov_b32 {vr(t+k)}, 0")
        for i in range(18):
            a(f"v_dot2_f32_bf16 {vr(t+2*(i&1))}, {vr(X+i)}, {vr(t+6)}, {vr(t+2*(i&1))}")
            a(f"v_dot2_f32_bf16 {vr(t+1+2*(i&1))}, {vr(X+i)}, {vr(X+i)}, {vr(t+1+2*(i&1))}")
        for i in range(2):
            a(f"v_lshlrev_b32 {vr(F+2*i)}, 16, {vr(X+i)}\nv_and_b32 {vr(F+2*i+1)}, 0xffff0000, {vr(X+i)}")
        a(f"v_pk_add_f32 {vr(t,2)}, {vr(t,2)}, {vr(t+2,2)}")
        un = []
        for i in range(2, 18):
            un.append(f"v_lshlrev_b32 {vr(F+2*i)}, 16, {vr(X+i)}\nv_and_b32 {vr(F+2*i+1)}, 0xffff0000, {vr(X+i)}")
        sv = (a.bg, a.every, a.cnt, a.skip)
        n0 = len(a.lines)
        a.bg, a.every = [], 0
        self.ln_tail(F, out, t, True)
        tail = a.lines[n0:]
        del a.lines[n0:]
        a.bg, a.every, a.cnt, a.skip = sv
        k = next(i for i, l in enumerate(tail) if "v_pk_fma" in l)
        for i, l in enumerate(tail[:k]):
            if "s_nop" in l and un: continue_nop = True
            a(l)
            if un and not l.strip().startswith("s_nop"): a(un.pop(0))
        while un: a(un.pop(0))
        for l in tail[k:]: a(l)

    def ln_f32(self, F, out, t):
        a = self.a
        p = lambda r: vr(r, 2)
        a(f"v_pk_add_f32 {p(t)}, {p(F)}, {p(F+2)}\nv_pk_add_f32 {p(t+2)}, {p(F+4)}, {p(F+6)}")
        a(f"v_pk_mul_f32 {p(t+4)}, {p(F)}, {p(F)}\nv_pk_mul_f32 {p(t+6)}, {p(F+2)}, {p(F+2)}")
        for i in range(2, 18):
            if i >= 4: a(f"v_pk_add_f32 {p(t+2*(i&1))}, {p(t+2*(i&1))}, {p(F+2*i)}")
            a(f"v_pk_fma_f32 {p(t+4+2*(i&1))}, {p(F+2*i)}, {p(F+2*i)}, {p(t+4+2*(i&1))}")
        a(f"v_pk_add_f32 {p(t)}, {p(t)}, {p(t+2)}\nv_pk_add_f32 {p(t+4)}, {p(t+4)}, {p(t+6)}")
        a(f"v_add_f32 {vr(t)}, {vr(t)}, {vr(t+1)}\nv_add_f32 {vr(t+1)}, {vr(t+4)}, {vr(t+5)}")
        self.ln_tail(F, out, t, False)

    def gemm_u(self, AF, rf, Bs, ACC, afr, bfr, post, vm_items=(), other=(), lead=7, vm0=0, vmsp=4):
        a = self.a
        units = [(0, j) for j in range(4)] + [(1, j) for j in range(4)] + [(2, 0)]
        seq, dl = [], {}
        bs = lambda j, o_, n: self.rg((Bs[j][0], Bs[j][1] + o_), n)
        rem = lambda u: (f"v_mfma_f32_16x16x16_bf16 {vr(ACC+4*u,4)}, {rf(AF+18*units[u][0]+16,2)}, {bs(units[u][1],16,2)}, {vr(ACC+4*u,4)}", u)
        A = [afr(t) for t in range(3)]
        Bf = [bfr(j) for j in range(4)]

        def use(t, j, s, k):
            for x in (A[t][2 * s:2 * s + 2] if s < 4 else A[t][8:]) + ([Bf[j][s]] if Bf[j] else []): dl.setdefault(x, k)
        for g in range(4):
            for s in range(4):
                for u in range(3 * g, 3 * g + 3) if g < 3 else []:
                    t, j = units[u]
                    d = vr(ACC + 4 * u, 4)
                    use(t, j, s, len(seq))
                    seq.append((f"v_mfma_f32_16x16x32_bf16 {d}, {rf(AF+18*t+4*s,4)}, {bs(j,4*s,4)}, {'0' if s == 0 else d}", None))
                if s == 0 and g > 0:
                    for u in range(3 * g - 3, 3 * g):
                        use(units[u][0], units[u][1], 4, len(seq)); seq.append(rem(u))
        last = seq[-3:]; seq = seq[:-3]
        ds = sorted(dl.items(), key=lambda e: e[1]) + [(x, 99) for x in other]
        vm_items = list(vm_items)
        lastvm = vm0 - vmsp
        order, ready, q, done = [], [], [], 0

        def issue():
            x, k_ = ds.pop(0); a(x); order.append(k_)

        def wait(k):
            nonlocal done
            idx = [i_ for i_, k_ in enumerate(order) if k_ <= k]
            if idx and max(idx) + 1 > done:
                a(f"s_waitcnt lgkmcnt({min(15, len(order) - 1 - max(idx))})"); done = max(idx) + 1
        while ds and ds[0][1] < 6: issue()
        for k, (m, fin) in enumerate(seq):
            assert not ds or ds[0][1] > k, (k, ds[0])
            wait(k)
            a(m)
            for u_, kk in list(ready):
                if k - kk >= 4: q += post(u_); ready.remove((u_, kk))
            if fin is not None: ready.append((fin, k))
            due = sum(1 for x, k_ in ds if k_ <= k + lead)
            if due == 0 and vm_items and k >= lastvm + vmsp:
                a(vm_items.pop(0)); lastvm = k; continue
            cap = 2
            for _ in range(min(due, 3)): issue(); cap -= 1
            if cap == 2:
                if q and q[0].startswith("ds_"): a(q.pop(0)); order.append(99); cap -= 1
                elif ds: issue(); cap -= 1
            while cap > 0 and q and not q[0].startswith("ds_"):
                a(q.pop(0)); cap -= 1
        assert not ready
        while ds: issue()
        wait(98)
        for x in vm_items: a(x)
        for x in q[:4]: a(x)
        a(f"s_nop {max(0, 4 - len(q[:4]))}")
        for m, _ in last: a(m)
        for x in q[4:]: a(x)
        a(f"s_nop {max(0, 6 - len(q[4:]))}")
        for u in range(6, 9):
            for x in post(u): a(x)

    def gemm(self, reads, B, ACC, AF, late=(), at={}, per=2):
        a = self.a
        buf = lambda T: 18 * (T % 6)
        ng = 3 * (4 * per + 1)

        def grp(g):
            r = [reads(T, buf(T)) for T in range(3 * g, 3 * g + 3)]
            return [r[t][per * s + u] for s in range(4) for t in range(3) for u in range(per)] + [r[t][4 * per] for t in range(3)]
        rem = lambda T: f"v_mfma_f32_16x16x16_bf16 {vr(ACC+4*T,4)}, {ar(buf(T)+16,2)}, {vr(B+16,2)}, {vr(ACC+4*T,4)}"
        pend = grp(0) + grp(1) + grp(2) + list(late)
        issued = k = 0

        def issue(n):
            nonlocal issued
            for _ in range(n):
                if issued < len(pend): a(pend[issued]); issued += 1

        def mf(x):
            nonlocal k
            a(x); issue(per if per == 2 else (2 if k % 4 == 0 else 1))
            if k in at: a(at[k])
            k += 1
        issue(self.o.get('look', 12) if per == 2 else self.o.get('look1', 8))
        for g in range(3):
            for s in range(4):
                need = ng * g + 3 * per * (s + 1)
                a(f"s_waitcnt lgkmcnt({min(15, issued - need)})")
                for T in range(3 * g, 3 * g + 3):
                    d = vr(ACC + 4 * T, 4)
                    mf(f"v_mfma_f32_16x16x32_bf16 {d}, {ar(buf(T)+4*s,4)}, {vr(B+4*s,4)}, {'0' if s == 0 else d}")
                if s == 0 and g > 0:
                    for T in range(3 * g - 3, 3 * g): mf(rem(T))
                if g == 1 and s == 0: assert issued <= 2 * ng + 6 * per, "group 2 overwrites group 0 too early"
        issue(99)
        a(f"s_waitcnt lgkmcnt({len(late)})\ns_nop 2")
        for T in range(6, 9): a(rem(T))
        a("s_nop 7")

    def tr_reads(self, ad, rf=ar):
        def f(T, dst):
            out = []
            for s in range(4):
                for u in range(2):
                    out.append(f"ds_read_b64_tr_b16 {rf(dst+4*s+2*u,2)}, {vr(ad+u)} offset:{9216*s + 32*T}")
            out.append(f"ds_read_b64_tr_b16 {rf(dst+16,2)}, {vr(ad+2)} offset:{36864 + 32*T}")
            return out
        return f

    def row_reads(self, ad, sw=None):
        def f(T, dst):
            r = ad if sw is None or T == 8 else sw[T & 1]
            out = []
            for s in range(4):
                for u in range(2):
                    out.append(f"ds_read_b64 {ar(dst+4*s+2*u,2)}, {vr(r)} offset:{4864*T + 64*s + 32*u}")
            out.append(f"ds_read_b64 {ar(dst+16,2)}, {vr(r)} offset:{4864*T + 256}")
            return out
        return f

    def dma_rows(self, jobs, cpr, rstride, vo, vc, n_first, first_waves, lab):
        a = self.a
        mul = {18: 3641, 19: 3450}[cpr]
        dr, dc = 256 // cpr, 256 % cpr
        a(f"s_lshl_b32 {sr(S_T)}, {sr(S_W)}, 6")
        a(f"v_add_u32 {vr(vc)}, {sr(S_T)}, v0")
        a(f"v_mul_u32_u24 {vr(vo)}, {mul}, {vr(vc)}")
        a(f"v_lshrrev_b32 {vr(vo)}, 16, {vr(vo)}")
        a(f"v_mul_u32_u24 {vr(vc+1)}, {cpr}, {vr(vo)}")
        a(f"v_sub_u32 {vr(vc)}, {vr(vc)}, {vr(vc+1)}")
        a(f"v_mul_u32_u24 {vr(vo)}, {rstride}, {vr(vo)}")
        a(f"v_lshl_add_u32 {vr(vo)}, {vr(vc)}, 4, {vr(vo)}")
        a(f"s_lshl_b32 {sr(S_T)}, {sr(S_W)}, 10")
        a(f"v_mov_b32 {vr(vc+1)}, {rstride - 16*cpr}")
        for k in range(n_first):
            if k == n_first - 1:
                a(f"s_cmp_ge_u32 {sr(S_W)}, {first_waves}\ns_cbranch_scc1 {lab}")
            for srd, so, lb in jobs:
                a(f"s_add_u32 m0, {sr(S_T)}, {lb + 4096*k}")
                a("s_nop 0")
                a(f"buffer_load_dwordx4 {vr(vo)}, {sr(srd,4)}, {so} offen lds")
            if k < n_first - 1:
                a(f"v_add_u32 {vr(vc)}, {dc}, {vr(vc)}")
                a(f"v_cmp_le_u32 vcc, {cpr}, {vr(vc)}")
                a(f"v_add_u32 {vr(vo)}, {dr*rstride + 16*dc}, {vr(vo)}")
                a(f"v_subrev_u32 {vr(vc+2)}, {cpr}, {vr(vc)}")
                a(f"v_cndmask_b32 {vr(vc)}, {vr(vc)}, {vr(vc+2)}, vcc")
                a(f"v_cndmask_b32 {vr(vc+2)}, 0, {vr(vc+1)}, vcc")
                a(f"v_add_u32 {vr(vo)}, {vr(vo)}, {vr(vc+2)}")
        a.label(lab)

    def voff_table(self, dst, cpr, rstride, vc, step=256):
        a = self.a
        mul = {18: 29128, 19: 27595}[cpr]
        n = len(dst)
        a(f"s_mov_b32 {sr(S_T)}, {rstride - 16*cpr}")
        a(f"v_mul_u32_u24 {vr(dst[0])}, {mul}, {vr(vc)}")
        for k in range(1, n): a(f"v_add_u32 {vr(dst[k])}, {(step*k % cpr)*mul}, {vr(dst[0])}")
        for k in range(n): a(f"v_lshrrev_b32 {vr(dst[k])}, 19, {vr(dst[k])}")
        for k in range(n): a(f"v_mad_i32_i24 {vr(dst[k])}, {vr(dst[k])}, {sr(S_T)}, {vr(vc+1)}")

    def dma_lin(self, srd, soff, lb, v16, lab):
        a = self.a
        a(f"s_lshl_b32 {sr(S_T)}, {sr(S_W)}, 10")
        for k in range(11):
            if k == 10:
                a(f"s_cmp_ge_u32 {sr(S_W)}, 1\ns_cbranch_scc1 {lab}")
            a(f"s_add_u32 m0, {sr(S_T)}, {lb + 4096*k}")
            a(f"s_add_u32 {sr(S_T+1)}, {sr(S_T)}, {soff + 4096*k}")
            a(f"buffer_load_dwordx4 {vr(v16)}, {sr(srd,4)}, {sr(S_T+1)} offen lds")
        a.label(lab)

    def tr_addr(self, ad, base, swapped, t):
        a = self.a
        a(f"v_lshrrev_b32 {vr(t)}, 2, v0")
        a(f"v_mul_u32_u24 {vr(t)}, 288, {vr(t)}")
        a(f"v_and_b32 {vr(t+1)}, 3, v0")
        a(f"v_lshl_add_u32 {vr(t)}, {vr(t+1)}, 3, {vr(t)}")
        a(f"v_add_u32 {vr(ad+2)}, {base}, {vr(t)}")
        if swapped:
            a(f"v_bfe_u32 {vr(t)}, v0, 4, 1")
            a(f"v_mul_u32_u24 {vr(t)}, {16*288}, {vr(t)}")
            a(f"v_add_u32 {vr(ad)}, {vr(ad+2)}, {vr(t)}")
            a(f"v_sub_u32 {vr(ad+1)}, {vr(ad+2)}, {vr(t)}")
            a(f"v_add_u32 {vr(ad+1)}, {16*288}, {vr(ad+1)}")
        else:
            a(f"v_mov_b32 {vr(ad)}, {vr(ad+2)}")
            a(f"v_add_u32 {vr(ad+1)}, {16*288}, {vr(ad+2)}")

    def row_addr(self, ad, base, t):
        a = self.a
        a(f"v_and_b32 {vr(t)}, 15, v0")
        a(f"v_mul_u32_u24 {vr(t)}, 304, {vr(t)}")
        a(f"v_lshrrev_b32 {vr(t+1)}, 4, v0")
        a(f"v_lshl_add_u32 {vr(t)}, {vr(t+1)}, 3, {vr(t)}")
        a(f"v_add_u32 {vr(ad)}, {base}, {vr(t)}")

    def store_block(self, src, v16, v8, srd, soff, soff2, flags=""):
        a = self.a
        for s in range(4):
            a(f"buffer_store_dwordx4 {vr(src+4*s,4)}, {vr(v16)}, {sr(srd,4)}, {sr(soff)} offen offset:{1024*s} {flags}")
        a(f"buffer_store_dwordx2 {vr(src+16,2)}, {vr(v8)}, {sr(srd,4)}, {sr(soff2)} offen {flags}")

    def entry(self):
        a = self.a
        kernel_header(a, NAME)
        a(f"s_load_dwordx16 s[56:71], s[0:1], 0")
        a(f"s_load_dwordx8 s[72:79], s[0:1], 64")
        a(f"s_getpc_b64 {sr(S_W1,2)}")
        a.label("L_pf")
        a(f"s_cmp_lt_u32 s2, {NH}\ns_cbranch_scc1 L_wfuse")
        a(f"""s_mov_b32 {sr(S_W1+2)}, L_dummy-L_pf
        s_mov_b32 {sr(S_W1+3)}, 0x20000
        v_lshlrev_b32 v1, 4, v0
        s_bfe_u32 {sr(S_T)}, s2, 0x30003
        s_lshl_b32 {sr(S_T)}, {sr(S_T)}, 12
        buffer_load_dwordx4 v[252:255], v1, {sr(S_W1,4)}, 0 offen
        buffer_load_dwordx4 v[252:255], v1, {sr(S_W1,4)}, {sr(S_T)} offen
        s_cmp_ge_u32 s2, {NWG}
        s_cbranch_scc1 L_end""")
        if self.o.get("stamps"):
            a("s_memrealtime s[100:101]" if not self.o.get("cyc") else "s_memtime s[100:101]")
        self.mp = 2
        a(f"""v_lshrrev_b32 v1, 6, v0
        s_sub_u32 s2, s2, {NH}
        v_readfirstlane_b32 {sr(S_W)}, v1
        s_and_b32 {sr(S_H)}, s2, 1
        s_bfe_u32 {sr(S_B)}, s2, 0x10001
        s_lshr_b32 {sr(S_QB)}, s2, 2
        v_and_b32 v0, 63, v0
        v_lshlrev_b32 {vr(V_DMA)}, 4, v0""")

    def vm_since(self, mark):
        return sum(1 for l in self.a.lines[mark:] if l.strip().startswith("buffer_"))

    def phase_a(self):
        a, o = self.a, self.o
        XR, XF, XA, ACC, G_, PK = 16, 34, 146, 110, 16, 164
        B4, XD = 16, 88
        VS, VSW, VR4, MXA, MXR, L8, TRU, TRQ, TRQ8, RK, TM = 200, 204, 208, 212, 213, 214, 215, 218, 221, 224, 228
        VK, VU = list(range(182, 193)), list(range(193, 200)) + list(range(104, 108))
        AQ1 = 200
        t0, t1, t2 = 250, 251, 227
        T = S_T
        WV, W10, UOFF, M1, PUB, M3 = 72, 70, 71, 69, 68, 65
        a(f"""s_lshl_b32 {sr(T)}, {sr(S_QB)}, 1
        s_add_u32 {sr(S_TOWN)}, {sr(T)}, {sr(S_H)}
        s_xor_b32 {sr(S_TSND)}, {sr(S_TOWN)}, 1
        s_cmp_lt_u32 {sr(S_TOWN)}, {NT}
        s_cselect_b32 {sr(S_VAL)}, 1, 0
        s_cmp_lt_u32 {sr(S_W)}, 2
        s_cselect_b32 {sr(T+3)}, {sr(S_TSND)}, {sr(S_TOWN)}
        s_mul_i32 {sr(T)}, {sr(S_B)}, {NT}
        s_add_u32 {sr(S_TOWN)}, {sr(S_TOWN)}, {sr(T)}
        s_add_u32 {sr(S_TSND)}, {sr(S_TSND)}, {sr(T)}
        s_add_u32 {sr(T+1)}, {sr(T+3)}, {sr(T)}
        s_lshl_b32 {sr(T+1)}, {sr(T+1)}, 1
        s_and_b32 {sr(T+2)}, {sr(S_W)}, 1
        s_add_u32 {sr(T+2)}, {sr(T+1)}, {sr(T+2)}
        s_mul_i32 {sr(T+1)}, {sr(T+2)}, {16*288}
        s_mul_i32 {sr(S_LB)}, {sr(S_W)}, {BLK}
        s_add_u32 {sr(S_LB)}, {sr(S_LB)}, {L_XS}
        s_mov_b32 m0, {sr(S_LB)}
        s_mov_b32 {sr(S_X+2)}, 2304000
        s_mov_b32 {sr(S_X+3)}, 0x20000
        s_add_u32 {sr(S_CNT)}, {sr(T+1)}, 4096
        s_waitcnt lgkmcnt(0)
        s_mov_b32 {sr(S_X)}, s56
        s_mov_b32 {sr(S_X+1)}, s57""")
        for k in range(4): a(f"buffer_load_dwordx4 {vr(V_DMA)}, {sr(S_X,4)}, {sr(T+1)} offen offset:{1024*k} lds")
        a(f"s_add_u32 m0, {sr(S_LB)}, 4096\ns_mov_b32 exec_hi, 0\nbuffer_load_dwordx4 {vr(V_DMA)}, {sr(S_X,4)}, {sr(S_CNT)} offen lds\ns_mov_b32 exec_hi, -1")
        mx = len(a.lines)
        SQ, SK, SU = S_W2, S_W1, S_XA
        self.srd(SU, 66, 67, 82944)
        self.srd(SQ, 58, 59, 41472)
        self.srd(SK, 60, 61, 41472)
        a(f"s_lshr_b32 {sr(T)}, s2, 3\ns_lshl_b32 {sr(T)}, {sr(T)}, 12\ns_lshl_b32 {sr(W10)}, {sr(S_W)}, 10\ns_add_u32 {sr(T)}, {sr(T)}, {sr(W10)}")
        a(f"buffer_load_dwordx4 v[252:255], {vr(V_DMA)}, {sr(SU,4)}, {sr(T)} offen")
        for srd_, rot in ((SQ, 82), (SK, 41)):
            a(f"s_add_u32 {sr(T+1)}, {sr(T)}, {(128 - rot) * 1024}\ns_and_b32 {sr(T+1)}, {sr(T+1)}, {127 * 1024}")
            a(f"buffer_load_dwordx4 v[252:255], {vr(V_DMA)}, {sr(srd_,4)}, {sr(T+1)} offen")
        self.srd(S_OUT, 74, 75, 2304000)
        self.srd(S_DB, 76, 77, 256)
        self.srd(S_WS, 78, 79, WS_END)
        if o.get("tlb", 0):
            a(f"""v_lshlrev_b32 {vr(t0)}, {o.get("tlbs", 21)}, v0
            buffer_load_dword v252, {vr(t0)}, {sr(S_WS,4)}, 0 offen
            buffer_load_dword v252, {vr(t0)}, {sr(S_DB,4)}, 0 offen
            buffer_load_dword v252, {vr(t0)}, {sr(S_OUT,4)}, 0 offen""")
        if o.get("stamps"): a(f"s_mov_b64 {sr(S_ST,2)}, s[100:101]"); self.stnames.append("start"); self.nst = 1
        self.stamp("xiss")
        a(f"""s_cmp_lt_u32 {sr(T+3)}, {NT}
        s_cselect_b32 {sr(WV)}, 1, 0
        s_mov_b32 {sr(WV+1)}, {sr(T+2)}
        s_mul_i32 {sr(UOFF)}, {sr(S_H)}, 288
        s_cmp_eq_u32 {sr(S_W)}, 0
        s_cselect_b32 {sr(M1)}, 0, {L_DUMP}
        s_cmp_lt_u32 {sr(S_W)}, 3
        s_cselect_b32 {sr(M3)}, {sr(W10)}, {L_DUMP}""")
        half = lambda g_: "s_mov_b32 exec_hi, 0\n" + g_ + "\ns_mov_b32 exec_hi, -1"
        gu = [f"s_add_u32 m0, {sr(W10 if k < 10 else M1)}, {L_WU + 4096*k}\ns_add_u32 {sr(S_CNT)}, {sr(UOFF)}, {4096*k + 288*(256*k//18)}\nbuffer_load_dwordx4 {vr(VU[k])}, {sr(SU,4)}, {sr(S_CNT)} offen lds" for k in range(11)]
        gu[10] = half(gu[10])
        gq = [f"s_add_u32 m0, {sr(W10 if k < 10 else M1)}, {L_WQ + 4096*k}\ns_add_u32 {sr(S_CNT)}, {sr(W10)}, {4096*k}\nbuffer_load_dwordx4 {vr(V_DMA)}, {sr(SQ,4)}, {sr(S_CNT)} offen lds" for k in range(11)]
        gq[10] = half(gq[10])
        gk = [f"s_add_u32 m0, {sr(W10 if k < 10 else M3)}, {L_WK + 4096*k}\ns_mov_b32 {sr(S_CNT)}, {4096*k - 16*(256*k//19)}\nbuffer_load_dwordx4 {vr(VK[k])}, {sr(SK,4)}, {sr(S_CNT)} offen lds" for k in range(11)]
        a(f"s_lshl_b32 {sr(T)}, {sr(S_W)}, 6\nv_add_u32 {vr(t0)}, {sr(T)}, v0\nv_lshlrev_b32 {vr(t1)}, 4, {vr(t0)}")
        self.voff_table(VU, 18, 576, t0)
        npre = o.get("npre", 6)
        a.bg, a.every, a.cnt = gu[:npre], o.get("evpre", 14), 0
        self.voff_table(VK, 19, 288, t0)
        xa0, xa1, xa2 = TM, TM + 1, TM + 2
        a(f"""v_and_b32 {vr(t0)}, 15, v0
        v_lshrrev_b32 {vr(t1)}, 5, v0
        v_lshlrev_b32 {vr(t1)}, 3, {vr(t1)}
        v_xor_b32 {vr(t1)}, {vr(t0)}, {vr(t1)}
        v_lshlrev_b32 {vr(t1)}, 4, {vr(t1)}
        v_lshrrev_b32 {vr(t2)}, 4, v0
        v_lshl_add_u32 {vr(V_KA)}, {vr(t2)}, 9, {vr(t1)}
        v_lshrrev_b32 {vr(t1)}, 3, {vr(t0)}
        v_lshlrev_b32 {vr(t1)}, 1, {vr(t1)}
        v_xor_b32 {vr(t1)}, {vr(t2)}, {vr(t1)}
        v_lshl_add_u32 {vr(t1)}, {vr(t0)}, 2, {vr(t1)}
        v_lshlrev_b32 {vr(V_KA+1)}, 3, {vr(t1)}
        v_lshlrev_b32 {vr(L8)}, 3, v0
        v_lshlrev_b32 {vr(MXR)}, 4, {vr(t0)}
        v_add_u32 {vr(MXR)}, {L_MX}, {vr(MXR)}
        v_add_u32 {vr(MXA)}, {sr(S_W)}, {vr(t2)}
        v_and_b32 {vr(MXA)}, 3, {vr(MXA)}
        v_lshl_add_u32 {vr(MXA)}, {vr(MXA)}, 8, {vr(MXR)}
        s_lshl_b32 {sr(T)}, {sr(S_W)}, 2
        v_add_u32 {vr(MXA)}, {sr(T)}, {vr(MXA)}
        v_mul_u32_u24 {vr(xa2)}, 288, {vr(t0)}
        v_lshl_add_u32 {vr(xa2)}, {vr(t2)}, 3, {vr(xa2)}
        v_add_u32 {vr(xa2)}, {sr(S_LB)}, {vr(xa2)}
        v_and_b32 {vr(t1)}, 1, {vr(t2)}
        v_lshlrev_b32 {vr(t1)}, 5, {vr(t1)}
        v_add_u32 {vr(xa0)}, {vr(xa2)}, {vr(t1)}
        v_xor_b32 {vr(t1)}, 32, {vr(t1)}
        v_add_u32 {vr(xa1)}, {vr(xa2)}, {vr(t1)}
        s_mul_i32 {sr(S_LB)}, {sr(S_W)}, {TILE}
        v_lshrrev_b32 {vr(t0)}, 2, v0
        v_bfe_u32 {vr(t1)}, v0, 1, 1
        v_lshlrev_b32 {vr(t1)}, 3, {vr(t1)}
        v_xor_b32 {vr(t1)}, {vr(t0)}, {vr(t1)}
        v_lshlrev_b32 {vr(t1)}, 4, {vr(t1)}
        v_and_b32 {vr(t2)}, 3, v0
        v_lshl_add_u32 {vr(t1)}, {vr(t2)}, 9, {vr(t1)}
        v_and_b32 {vr(V_VA)}, 1, v0
        v_lshl_add_u32 {vr(t1)}, {vr(V_VA)}, 3, {vr(t1)}
        s_and_b32 {sr(T)}, {sr(S_W)}, 1
        s_lshl_b32 {sr(T)}, {sr(T)}, 12
        s_add_u32 {sr(T+1)}, {sr(T)}, {sr(S_LB)}
        s_xor_b32 {sr(T)}, {sr(T)}, 4096
        s_add_u32 {sr(T)}, {sr(T)}, {sr(S_LB)}
        v_add_u32 {vr(V_VA)}, {sr(T)}, {vr(t1)}
        v_add_u32 {vr(V_VB)}, {sr(T+1)}, {vr(t1)}
        v_xor_b32 {vr(V_VA+1)}, 8, {vr(V_VA)}
        v_xor_b32 {vr(V_VB+1)}, 8, {vr(V_VB)}
        v_lshrrev_b32 {vr(t1)}, 5, v0
        v_lshlrev_b32 {vr(t1)}, 1, {vr(t1)}
        v_xor_b32 {vr(t1)}, {vr(t2)}, {vr(t1)}
        v_lshl_add_u32 {vr(t1)}, {vr(t0)}, 2, {vr(t1)}
        v_lshlrev_b32 {vr(t1)}, 3, {vr(t1)}
        v_add_u32 {vr(V_VR)}, {sr(S_LB)}, {vr(t1)}
        v_add_u32 {vr(V_DMA+1)}, 4096, {vr(V_DMA)}
        v_add_u32 {vr(V_DMA+2)}, 8192, {vr(V_DMA)}""")
        self.tr_addr(TRU, L_WU, True, t0)
        a(f"s_lshl_b32 {sr(T)}, {sr(S_W)}, 6\ns_add_u32 {sr(T)}, {sr(T)}, {L_WQ - L_WU}")
        for k in range(3):
            a(f"v_add_u32 {vr(TRQ+k)}, {sr(T)}, {vr(TRU+k)}\nv_add_u32 {vr(TRQ8+k)}, {L_WQ - L_WU + 256}, {vr(TRU+k)}")
        self.row_addr(RK + 2, L_WK + 8 * 4864, t0)
        a(f"""s_mul_i32 {sr(T)}, {sr(S_W)}, {2*4864}
        s_sub_u32 {sr(T)}, {sr(T)}, {8*4864}
        v_add_u32 {vr(t1)}, {sr(T)}, {vr(RK+2)}
        v_bfe_u32 {vr(t0)}, v0, 2, 1
        v_mul_u32_u24 {vr(t0)}, 4864, {vr(t0)}
        v_add_u32 {vr(RK)}, {vr(t1)}, {vr(t0)}
        v_sub_u32 {vr(RK+1)}, {vr(t1)}, {vr(t0)}""")
        for j in range(4):
            a(f"""s_add_u32 {sr(T)}, {sr(S_W)}, {j}
            s_and_b32 {sr(T)}, {sr(T)}, 3
            s_lshl_b32 {sr(T+1)}, {sr(T)}, 12
            s_add_u32 {sr(T+1)}, {sr(T+1)}, {L_XX}
            v_add_u32 {vr(VS+j)}, {sr(T+1)}, {vr(V_DMA)}
            s_lshl_b32 {sr(T+1)}, {sr(T)}, 9
            s_add_u32 {sr(T+1)}, {sr(T+1)}, {L_XR}
            v_add_u32 {vr(VR4+j)}, {sr(T+1)}, {vr(L8)}
            v_add_u32 {vr(VSW+j)}, {sr(W10)}, {vr(VS+j)}""")
        a(f"""s_sub_u32 {sr(T+2)}, 63, {sr(S_H)}
        s_add_u32 {sr(T+3)}, {sr(S_W)}, 60
        s_cmp_ge_u32 {sr(T+3)}, {sr(T+2)}
        s_cselect_b32 {sr(S_DUM)}, 4, 99
        s_mov_b32 {sr(S_REDO)}, 0
        s_mov_b32 {sr(S_TOFF)}, {sr(S_LB)}
        s_sub_u32 {sr(T)}, {sr(S_TOWN)}, 63
        s_mul_i32 {sr(T+1)}, {sr(S_B)}, {NT}
        s_cmp_ge_i32 {sr(T)}, {sr(T+1)}
        s_cselect_b32 {sr(T)}, 64, 0
        s_lshl_b32 {sr(T+1)}, {sr(S_B)}, 7
        s_add_u32 {sr(PUB)}, {sr(T)}, {sr(T+1)}
        s_cmp_eq_u32 {sr(S_W)}, 2
        s_cselect_b32 {sr(T)}, {sr(S_VAL)}, 0
        s_cmp_eq_u32 {sr(T)}, 1
        s_cselect_b32 {sr(PUB)}, {sr(PUB)}, 0x40000000
        s_add_u32 {sr(T+1)}, {sr(T+1)}, {DB_CB}
        v_mov_b32 {vr(self.VPL)}, {sr(T+1)}""")
        a.flush()
        self.stamp("pre")
        if o.get("es", 0) == 0: self.epi_setup()
        self.stamp("es")
        nx = self.vm_since(mx)
        if o.get("touch", 1):
            a(f"""s_mov_b64 exec, 0
            s_cmp_eq_u32 {sr(S_W)}, 0
            s_cbranch_scc1 L_tr
            s_cmp_eq_u32 {sr(S_W)}, 1
            s_cbranch_scc1 L_t0
            s_cmp_eq_u32 {sr(S_W)}, 2
            s_cbranch_scc1 L_t1
            s_branch L_t2""")
            self.rare()
            a.raw(".p2align 12")
            a.label("L_tr")
            a("s_mov_b64 exec, -1")
        nlate = o.get("nlate", 0)
        for g_ in gu[npre:npre + nlate]: a(g_)
        a(f"s_waitcnt vmcnt({nx + nlate})")
        self.stamp("xarr")
        for s in range(4):
            a(f"ds_read_b64 {vr(XR+4*s,2)}, {vr(xa0)} offset:{64*s}\nds_read_b64 {vr(XR+4*s+2,2)}, {vr(xa1)} offset:{64*s}")
        a(f"ds_read_b64 {vr(XR+16,2)}, {vr(xa2)} offset:256")
        a(f"""s_and_b32 {sr(T)}, {sr(S_W)}, 1
        s_mul_i32 {sr(T+2)}, {sr(S_TOWN)}, {TILE}
        s_cmp_eq_u32 {sr(S_VAL)}, 1
        s_cselect_b32 {sr(T+2)}, {sr(T+2)}, 0x40000000
        s_lshl_b32 {sr(T+3)}, {sr(T)}, 8
        s_add_u32 {sr(T+3)}, {sr(T+3)}, {sr(T+2)}
        s_add_u32 {sr(T+4)}, {sr(T+3)}, 4096
        s_lshl_b32 {sr(T+5)}, {sr(T)}, 9
        s_add_u32 {sr(T+5)}, {sr(T+5)}, {sr(T+2)}
        s_add_u32 {sr(T+5)}, {sr(T+5)}, 8192
        s_waitcnt lgkmcnt(0)""")
        wl = gq + gk
        a.bg, a.every, a.cnt = gu[npre + nlate:] + [wl.pop(0) for _ in range(o.get("nql", 4))], o.get("evln", 10), 0
        self.ln_packed(XR, XF, XA, TM)
        a.flush()
        self.stamp("ln")
        a(f"s_cmp_lt_u32 {sr(S_W)}, 2\ns_cbranch_scc1 L_nop")
        for s in range(4):
            a(f"buffer_store_dwordx4 {vr(XA+4*s,4)}, {vr(V_KA)}, {sr(S_WS,4)}, {sr(T+3+(s>>1))} offen offset:{2048*(s&1)} sc1")
        a(f"buffer_store_dwordx2 {vr(XA+16,2)}, {vr(V_KA+1)}, {sr(S_WS,4)}, {sr(T+5)} offen sc1\ns_waitcnt vmcnt({5 + o.get('nql', 4)})\ns_branch L_bar1")
        a.label("L_nop")
        if o.get("touch", 1):
            a(f"s_mov_b64 exec, 0\ns_cmp_eq_u32 {sr(S_W)}, 0\ns_cbranch_scc1 L_t3\ns_branch L_t4")
            a.label("L_tr2")
            a("s_mov_b64 exec, -1")
        a(f"s_waitcnt vmcnt({o.get('nql', 4)})")
        a.label("L_bar1")
        self.stamp("pub")
        xw = [f"ds_write_b128 {vr(VS)}, {vr(XA+4*s,4)} offset:{1024*s}" for s in range(4)] + [f"ds_write_b64 {vr(VR4)}, {vr(XA+16,2)}"]
        self.stamp("tch")
        PA = 249
        a(f"""v_add_u32 {vr(V_KA)}, {sr(S_LB)}, {vr(V_KA)}
        v_add_u32 {vr(V_KA+1)}, {sr(S_LB)}, {vr(V_KA+1)}
        s_lshl1_add_u32 {sr(T)}, {sr(S_B)}, {sr(S_H)}
        s_lshl_b32 {sr(T)}, {sr(T)}, 6
        s_cmp_eq_u32 {sr(S_W)}, 0
        s_cselect_b32 {sr(T)}, {sr(T)}, 0x40000000
        v_mov_b32 {vr(PA)}, {sr(T)}
        {self.xa_srd()}
        s_waitcnt lgkmcnt(0)""")
        self.stamp("w1")
        a("s_barrier")
        self.stamp("bar1")
        poll = lambda r: f"buffer_load_dword {vr(r)}, {vr(PA)}, {sr(S_DB,4)}, 0 offen sc1"

        def gate(lab, r, word, need, younger):
            a(f"s_mov_b32 {sr(T+2)}, 0\ns_waitcnt vmcnt({younger})")
            a.label(lab)
            a(f"""v_readfirstlane_b32 {sr(T+3)}, {vr(r+word)}
            s_add_u32 {sr(T+2)}, {sr(T+2)}, 1
            s_cmp_ge_u32 {sr(T+3)}, {need}
            s_cbranch_scc1 {lab}_ok
            {poll(r)}
            s_waitcnt vmcnt(0)
            s_cmp_lt_u32 {sr(T+2)}, 0x40000
            s_cbranch_scc1 {lab}""")
            a.label(lab + "_ok")

        H, G_, UG, MS, CL = 16, 52, 208, 110, 104
        nup = o.get("nup", 12)
        at = {o.get("u0", 6) + o.get("usp", 3) * i: wl.pop(0) for i in range(nup)}
        for i in range(5): at[i] = xw[i]
        if o.get("es", 0) == 1:
            n_ = len(a.lines); self.epi_setup()
            el = [l.strip() for l in a.lines[n_:]]; del a.lines[n_:]
            for k in range(5, 42):
                if k in at: continue
                c_ = 0
                while el and c_ < o.get("esn", 2):
                    x = el.pop(0); at[k] = at.get(k, "") + x + "\n"; c_ += 1 if x.startswith("v_") else 0.5
            self.es_left = el
        self.gemm(self.tr_reads(TRU), XA, H, None, at=at)
        if o.get("es", 0) == 1:
            for x in self.es_left: a(x)
        self.stamp("up")
        last = lambda srd: max(i for i, l in enumerate(a.lines) if l.strip().startswith("buffer_load") and sr(srd, 4) in l) + 1
        assert not any(sr(SQ, 4) in x for x in wl)
        a(f"v_mov_b32 {vr(t0)}, {sr(PUB)}\nv_mov_b32 {vr(t1)}, 1\ns_waitcnt vmcnt({self.vm_since(last(SQ))}) lgkmcnt(0)\ns_barrier")
        a(f"s_mov_b64 exec, 1\nbuffer_atomic_add {vr(t1)}, {vr(t0)}, {sr(S_DB,4)}, 0 offen sc1\ns_mov_b64 exec, -1")
        self.stamp("barG")

        def a_tr(t):
            ad, off = (TRQ, 32 * t) if t < 2 else (TRQ8, 0)
            return [f"ds_read_b64_tr_b16 {ar(AQ1+18*t+4*s+2*u,2)}, {vr(ad+u)} offset:{9216*s + off}" for s in range(4) for u in range(2)] + \
                   [f"ds_read_b64_tr_b16 {ar(AQ1+18*t+16,2)}, {vr(ad+2)} offset:{36864 + off}"]

        def a_row(t):
            off = 4864 * t if t < 2 else 0
            return [f"ds_read_b64 {ar(A_Q+18*t+4*s+2*u,2)}, {vr(RK+t)} offset:{off + 64*s + 32*u}" for s in range(4) for u in range(2)] + \
                   [f"ds_read_b64 {ar(A_Q+18*t+16,2)}, {vr(RK+t)} offset:{off + 256}"]
        bq = lambda j, d=0: [f"ds_read_b128 {ar(18*j+4*s,4)}, {vr(VS+j)} offset:{d + 1024*s}" for s in range(4)] + [f"ds_read_b64 {ar(18*j+16,2)}, {vr(VR4+j)} offset:{d}"]

        def post(u, scale, d):
            L = [f"v_mul_f32 {vr(ACC+4*u+i)}, {sr(T+4)}, {vr(ACC+4*u+i)}" for i in range(4)] if scale else []
            L += [f"v_cvt_pk_bf16_f32 {vr(PK + (4*(u&3) + 2*(u>>2) if u < 8 else 16) + h)}, {vr(ACC+4*u+2*h)}, {vr(ACC+4*u+2*h+1)}" for h in range(2)]
            if 4 <= u < 8: L.append(f"ds_write_b128 {vr(VSW+u-4)}, {vr(PK+4*(u-4),4)} offset:{d}")
            if u == 8: L.append(f"ds_write_b64 {vr(VR4)}, {vr(PK+16,2)} offset:{d}")
            return L
        xd = [f"ds_read_b128 {vr(XD+4*j,4)}, {vr(VSW+j)}" for j in range(4)]
        self.gemm_u(AQ1, ar, [("v", XA), ("a", 18), ("a", 36), ("a", 54)], ACC, a_tr, lambda j: bq(j) if j else None, lambda u: post(u, False, L_QD),
                    vm_items=wl, other=xd, vmsp=o.get("vmsp", 3))
        self.stamp("g1")
        for i in range(4): a(f"v_mov_b32 {vr(CL+i)}, -1")
        a(f"s_lshl2_add_u32 {sr(T+2)}, s2, {sr(S_W)}\ns_mul_i32 {sr(T+2)}, {sr(T+2)}, 2560\ns_add_u32 {sr(T+2)}, {sr(T+2)}, {WS_IB}")
        a(f"s_mov_b32 {sr(T+4)}, {f32(LOG2E / 12.0)}\ns_waitcnt vmcnt({self.vm_since(last(SK))}) lgkmcnt(0)\ns_barrier")
        clr = [f"buffer_store_dwordx4 {vr(CL,4)}, {vr(V_DMA)}, {sr(S_WS,4)}, {sr(T+2)} offen sc1",
               f"buffer_store_dwordx4 {vr(CL,4)}, {vr(V_DMA)}, {sr(S_WS,4)}, {sr(T+2)} offen offset:1024 sc1",
               f"buffer_store_dwordx2 {vr(CL,2)}, {vr(L8)}, {sr(S_WS,4)}, {sr(T+2)} offen offset:2048 sc1"]
        self.stamp("bar2")
        self.gemm_u(A_Q, ar, [("a", 18 * j) for j in range(4)], ACC, a_row, lambda j: bq(j, L_QD), lambda u: post(u, True, 0), vm_items=[poll(252)] + clr, vm0=o.get("pg", 4), vmsp=o.get("csp", 8))
        self.stamp("g2")
        p = lambda r: vr(r, 2)
        CC = TM
        for j in range(4): a(f"v_dot2_f32_bf16 {vr(CC+j)}, {vr(PK+4*j)}, {vr(XD+4*j)}, 0")
        for i in range(2): a(f"v_dot2_f32_bf16 {vr(CC)}, {vr(PK+16+i)}, {vr(XA+16+i)}, {vr(CC)}")
        for i in range(1, 4):
            for j in range(4): a(f"v_dot2_f32_bf16 {vr(CC+j)}, {vr(PK+4*j+i)}, {vr(XD+4*j+i)}, {vr(CC+j)}")
        QE = TRQ
        a(f"""s_xor_b32 {sr(T+1)}, {sr(self.NB)}, 1
        v_add_u32 {vr(t0)}, {L_XX}, {vr(V_DMA)}
        v_lshl_add_u32 {vr(QE)}, {sr(T+1)}, 12, {vr(t0)}
        v_lshl_add_u32 {vr(QE+1)}, {sr(self.NB)}, 12, {vr(t0)}""")
        self.treduce(CC)
        a(f"""ds_write_b32 {vr(MXA)}, {vr(CC)}
        v_add_u32 {vr(t0)}, {L_XR}, {vr(L8)}
        v_lshl_add_u32 {vr(QE+2)}, {sr(T+1)}, 9, {vr(t0)}
        v_lshl_add_u32 {vr(QE+3)}, {sr(self.NB)}, 9, {vr(t0)}
        v_lshl_add_u32 {vr(QE+4)}, {sr(T+1)}, 8, {vr(MXR)}
        v_lshl_add_u32 {vr(QE+5)}, {sr(self.NB)}, 8, {vr(MXR)}
        s_sub_u32 {sr(T+5)}, 63, {sr(S_H)}
        s_lshr_b32 {sr(T+6)}, s2, 3
        s_lshl_b32 {sr(T+6)}, {sr(T+6)}, 12
        s_add_u32 {sr(T+6)}, {sr(T+6)}, {sr(W10)}
        s_cmp_lg_u32 {sr(S_W)}, 0
        s_cbranch_scc1 L_ga_ok""")
        gate("L_ga", 252, 0, sr(T + 5), 3)
        a("s_waitcnt lgkmcnt(0)\ns_barrier")
        self.stamp("bar3")
        c1 = -2.0 * math.sqrt(2.0 / math.pi) * LOG2E
        c2 = c1 * 0.044715
        qrd = [f"ds_read_b128 {vr(MS+4*qb,4)}, {vr(QE+4+(qb&1))} offset:{512*(qb>>1)}" for qb in range(4)]
        for qb in range(4):
            qrd += [f"ds_read_b128 {ar(A_Q+18*qb+4*s,4)}, {vr(QE+(qb&1))} offset:{8192*(qb>>1) + 1024*s}" for s in range(4)]
            qrd.append(f"ds_read_b64 {ar(A_Q+18*qb+16,2)}, {vr(QE+2+(qb&1))} offset:{1024*(qb>>1)}")
        tg = self.tile_groups(0) + self.tile_groups(1) + self.tile_groups(2)[:8]
        n0 = o.get("n0", 3)
        for k in range(o.get("tpf", 0)):
            a(f"s_add_u32 {sr(T+7)}, {sr(T+6)}, {o.get('tpf0', 4*TILE) + 131072*k}\nbuffer_load_dwordx4 v[252:255], {vr(V_DMA)}, {sr(S_XA,4)}, {sr(T+7)} offen")
        for x in tg[:n0]: a(x)
        a(f"v_mov_b32 {vr(CC)}, {f32(c1)}\nv_mov_b32 {vr(CC+2)}, {f32(c2)}\nv_mov_b32 {vr(CC+4)}, 1.0")
        nq1, nt1 = o.get("nq1", 8), o.get("nt1", 5)
        bgl = []
        for i in range(max(nq1 // 2, nt1)):
            if 2 * i < nq1: bgl.append(qrd[2 * i] + "\n" + qrd[2 * i + 1])
            if i < nt1: bgl.append(tg[n0 + i])
        tg, qrd = tg[n0 + nt1:], qrd[nq1:]
        a.bg, a.every, a.cnt = bgl, 54 // (len(bgl) + 1), 0
        for i in range(18): a(f"v_pk_mul_f32 {p(G_+2*i)}, {p(H+2*i)}, {p(H+2*i)}")
        for i in range(18): a(f"v_pk_fma_f32 {p(G_+2*i)}, {p(G_+2*i)}, {p(CC+2)}, {p(CC)} op_sel_hi:[1,0,0]")
        for i in range(18): a(f"v_pk_mul_f32 {p(G_+2*i)}, {p(G_+2*i)}, {p(H+2*i)}")
        a.flush()
        self.stamp("ge1")
        esp = o.get("esp", 4)
        for i in range(36):
            a(f"v_exp_f32 {vr(G_+i)}, {vr(G_+i)}")
            if i % esp == 1 and tg: a(tg.pop(0))
            if i % 8 == 3 and qrd: a(qrd.pop(0)); a(qrd.pop(0))
        self.stamp("ge2")
        for i in range(18): a(f"v_pk_add_f32 {p(G_+2*i)}, {p(G_+2*i)}, {p(CC+4)} op_sel_hi:[1,0]")
        for i in range(36):
            a(f"v_rcp_f32 {vr(G_+i)}, {vr(G_+i)}")
            if i % esp == 1 and tg: a(tg.pop(0))
            if i % 8 == 3 and qrd: a(qrd.pop(0)); a(qrd.pop(0))
        assert not tg and not qrd
        idx = [i for i, l in enumerate(a.lines) if l.strip().startswith("buffer_load") and l.rstrip().endswith("lds")]
        m_t0, m_t1 = idx[-18] + 1, idx[-9] + 1
        for i in range(18): a(f"v_pk_mul_f32 {p(H+2*i)}, {p(G_+2*i)}, {p(H+2*i)}")
        a(f"""s_mul_i32 {sr(T)}, {sr(WV+1)}, {BLK}
        s_cmp_eq_u32 {sr(S_H)}, 1
        s_cbranch_scc1 L_ln2
        s_add_u32 {sr(T)}, {sr(T)}, {WS_U}""")
        for i in range(18): a(f"v_cvt_pk_bf16_f32 {vr(UG+i)}, {vr(H+2*i)}, {vr(H+2*i+1)}")
        a("s_branch L_ug")
        a.label("L_ln2")
        a(f"s_add_u32 {sr(T)}, {sr(T)}, {WS_G}")
        self.ln_f32(H, UG, TM)
        a.label("L_ug")
        self.stamp("ge3")
        a(f"""s_cmp_eq_u32 {sr(WV)}, 1
        s_cselect_b32 {sr(S_UG)}, {sr(T)}, 0x40000000
        s_waitcnt vmcnt({self.vm_since(m_t0)}) lgkmcnt(0)""")
        for x in self.k_reads(0, V_V): a(x)
        self.ugs = [f"buffer_store_dwordx4 {vr(UG+4*s,4)}, {vr(V_DMA)}, {sr(S_WS,4)}, {sr(S_UG)} offen offset:{1024*s} sc1" for s in range(4)]
        self.ugs.append(f"buffer_store_dwordx2 {vr(UG+16,2)}, {vr(self.VL8)}, {sr(S_WS,4)}, {sr(S_UG)} offen sc1")
        for qb in range(4): a(f"v_pk_add_f32 {p(MS+4*qb)}, {p(MS+4*qb)}, {p(MS+4*qb+2)} neg_lo:[1,1] neg_hi:[1,1]")
        for qb in range(4): a(f"v_add_f32 {vr(self.MK+qb)}, {vr(MS+4*qb)}, {vr(MS+4*qb+1)}")
        a(f"v_lshlrev_b32 {vr(t1)}, 8, v0\nv_lshlrev_b32 v231, 2, v0\nv_add_u32 v231, {L_PC}, v231\nds_write_b32 v231, {vr(t1)}")
        self.loop_init(False)
        self.n_t1 = self.vm_since(m_t1)
        self.stamp("ug")

    def loop_init(self, part):
        a = self.a
        if part:
            for qb in range(4):
                for i in range(4): a(f"v_mov_b32 {vr(V_CI+4*qb+i)}, {vr(self.MK+qb)}")
            return
        for k in range(7): a(f"v_add_u32 {vr(V_HI+k)}, {2*SLOT}, {vr(V_KA+k if k < 5 else V_VB+k-5)}")
        a(f"v_add_u32 {vr(self.VS0)}, {sr(S_LB)}, {vr(V_DMA)}\nv_add_u32 {vr(self.VS0R)}, {sr(S_LB)}, {vr(self.VL8)}\ns_mov_b32 {sr(S_CNT)}, 0\ns_mov_b32 {sr(S_INC)}, {4*TILE}")
        for i in range(4): a(f"v_mov_b32 {vr(V_L+i)}, 0")
        a(f"v_mov_b32 {vr(self.VPL+1)}, 1\nv_lshlrev_b32 v231, 2, v0\nv_add_u32 v231, {L_PC}, v231")

    def head(self):
        a, o = self.a, self.o
        a.label("L_go")
        self.loop_init(True)
        a("s_waitcnt lgkmcnt(0)\ns_barrier")
        self.stamp("bar5")
        base = self.qk_mfmas(0)
        pick = lambda s_, kb, qb: base[8 * s_ + 4 * kb + qb].replace(vr(V_K + 8 * s_ + 4 * kb, 4) + ",", vr(V_V + 8 * s_ + 4 * kb, 4) + ",").replace(vr(V_K + 32 + 2 * kb, 2) + ",", vr(V_V + 32 + 2 * kb, 2) + ",")
        mf, fin = [], {}
        for qb, s_ in [(0, 0), (0, 1), (0, 2), (0, 3), (1, 0), (1, 1), (0, 4), (1, 2), (1, 3), (2, 0), (2, 1), (1, 4), (2, 2), (2, 3), (3, 0), (3, 1), (2, 4),
                       (3, 2), (3, 3), (3, 4)]:
            for kb in range(2):
                fin[qb, kb] = len(mf)
                mf.append(("s_nop 3\n" if (qb, s_, kb) == (3, 4, 0) else "") + pick(s_, kb, qb))
        enew = [e[1] for g in range(40, 76) for e in self.gaps[g] if e[0] == "E"]
        items = self.e_items(0, enew, lambda qb, j: 0, lambda qb: 999)
        for it, e in zip(items, enew):
            if e[0] == "e": it["am"] = fin[e[1], e[2] // 4]
        dm = []
        for k, (slot, j) in enumerate([(2, 8)] + [(3, j) for j in range(9)]):
            g_ = 1 + o.get("hsp", 4) * k
            if j % 4 == 0: dm.append(dict(t=f"s_add_u32 m0, {sr(S_LB)}, {slot*SLOT + 4096*(j//4)}", c=0, lo=g_ - 1, hi=g_ - 1))
            dm.append(dict(t=f"buffer_load_dwordx4 {vr(V_DMA + j//4)}, {sr(S_XA,4)}, {sr(S_TOFF)} offen offset:{1024*(j%4)} lds", c=8, lo=g_, hi=g_))
            if j == 8: dm.append(dict(t=f"s_add_u32 {sr(S_TOFF)}, {sr(S_TOFF)}, {4*TILE}", c=0, lo=g_ + 1, hi=g_ + 1))
        nh = o.get("ugh", 2)
        for k in range(nh): dm.append(dict(t=self.ugs[k], c=8, lo=3 + 16 * k, hi=3 + 16 * k))
        a(f"s_waitcnt vmcnt({self.n_t1})")
        left = self.pack(mf, items + dm + [dict(t=x, c=4, lo=i // 2, nds=2) for i, x in enumerate(self.k_reads(1))])
        print("head overflow", self.over, "left", len(left))
        left.sort(key=lambda x: not x.startswith("v_exp"))
        last = a.lines[-1].strip()
        for x in left:
            if last.startswith("v_exp") and not x.startswith("v_exp") and (last.split()[1].rstrip(",") + ",") in (x + ","): a("s_nop 0")
            a(x); last = x
        a("s_waitcnt lgkmcnt(0)")

    def tile_groups(self, slot):
        out = []
        for j in range(9):
            g = ""
            if j % 4 == 0: g = f"s_add_u32 m0, {sr(S_LB)}, {slot*SLOT + 4096*(j//4)}\ns_nop 0\n"
            g += f"buffer_load_dwordx4 {vr(V_DMA + j//4)}, {sr(S_XA,4)}, {sr(S_TOFF)} offen offset:{1024*(j%4)} lds"
            if j == 8: g += f"\ns_add_u32 {sr(S_TOFF)}, {sr(S_TOFF)}, {4*TILE}"
            out.append(g)
        return out

    def first_tiles(self):
        pass

    def wfuse(self):
        a = self.a
        BF, ACC, AF, TM, AD = 88, 108, 144, 208, 240
        LA, LB_, LM = 0, 44032, 88064
        T = S_T
        a.label("L_wfuse")
        a(f"v_lshrrev_b32 v1, 6, v0\nv_and_b32 v0, 63, v0\nv_readfirstlane_b32 {sr(S_W)}, v1\nv_lshlrev_b32 {vr(V_DMA)}, 4, v0\ns_waitcnt lgkmcnt(0)")
        self.srd(S_DB, 76, 77, 256)
        self.srd(S_WS, 78, 79, WS_END)
        self.wf0 = 0
        self.srd(S_X, 72, 73, 82944)
        self.srd(S_W2, 62, 63, 41472)
        a(f"""s_cmp_eq_u32 s2, {self.wf0}
        s_cselect_b32 {sr(S_W1)}, s64, s70
        s_cselect_b32 {sr(S_W1+1)}, s65, s71
        s_mov_b32 {sr(S_W1+2)}, 41472
        s_mov_b32 {sr(S_W1+3)}, 0x20000
        s_cselect_b32 {sr(T+4)}, 0, 41472""")
        self.dma_rows([(S_W1, "0", LA), (S_W2, "0", LB_)], 19, 288, TM + 4, TM + 5, 11, 3, "L_wf1")
        a(f"s_lshl_b32 {sr(T)}, {sr(S_W)}, 10\ns_add_u32 {sr(T+2)}, {sr(T)}, {sr(T+4)}")
        for k in range(11):
            if k == 10: a(f"s_cmp_ge_u32 {sr(S_W)}, 1\ns_cbranch_scc1 L_wf2")
            a(f"s_add_u32 m0, {sr(T)}, {LM + 4096*k}\ns_add_u32 {sr(T+1)}, {sr(T+2)}, {4096*k}")
            a(f"buffer_load_dwordx4 {vr(V_DMA)}, {sr(S_X,4)}, {sr(T+1)} offen lds")
        a.label("L_wf2")
        self.srd(S_DW, 68, 69, 864)
        a(f"""v_and_b32 {vr(TM)}, 15, v0
        v_lshlrev_b32 {vr(TM+2)}, 4, {vr(TM)}
        v_lshlrev_b32 {vr(TM)}, 1, {vr(TM)}
        v_bfe_u32 {vr(TM+3)}, v0, 4, 1
        v_lshl_add_u32 {vr(TM+1)}, {vr(TM+3)}, 7, {vr(TM)}
        v_lshl_add_u32 {vr(TM+2)}, {vr(TM+3)}, 11, {vr(TM+2)}
        v_and_b32 {vr(TM+3)}, 1, v0
        v_lshlrev_b32 {vr(TM+3)}, 4, {vr(TM+3)}
        v_bfe_i32 {vr(TM+4)}, v0, 1, 1
        v_not_b32 {vr(TM+5)}, {vr(TM+4)}""")
        for k in range(3):
            for i in range(5): a(f"buffer_load_ushort {vr(16+5*k+i)}, {vr(TM+1 if i < 4 else TM)}, {sr(S_DW,4)}, 0 offen offset:{288*k + (32*i if i < 4 else 256)}")
        a(f"s_mov_b32 {sr(T+1)}, {WS_DWF}\ns_waitcnt vmcnt(0)")
        for f in range(15):
            a(f"v_lshlrev_b32 {vr(16+f)}, {vr(TM+3)}, {vr(16+f)}\nv_and_b32 {vr(32+2*f)}, {vr(TM+5)}, {vr(16+f)}\nv_and_b32 {vr(33+2*f)}, {vr(TM+4)}, {vr(16+f)}")
        for r_ in range(8): a(f"buffer_store_dwordx{4 if r_ < 7 else 2} {vr(32+4*r_, 4 if r_ < 7 else 2)}, {vr(TM+2)}, {sr(S_WS,4)}, {sr(T+1)} offen offset:{256*r_} sc1")
        self.tr_addr(AD, LM, False, TM + 8)
        self.row_addr(AD + 3, LA, TM + 8)
        a(f"v_add_u32 {vr(AD+5)}, {LB_}, {vr(AD+3)}")
        a(f"v_lshlrev_b32 {vr(AD+4)}, 3, v0")
        a(f"""s_lshr_b32 {sr(T)}, {sr(S_W)}, 1
        s_lshl_b32 {sr(T)}, {sr(T)}, 6
        s_and_b32 {sr(T+1)}, {sr(S_W)}, 1
        s_lshl_b32 {sr(T+1)}, {sr(T+1)}, 3
        s_add_u32 {sr(T)}, {sr(T)}, {sr(T+1)}
        v_and_b32 {vr(AD+6)}, 3, v0
        v_lshlrev_b32 {vr(AD+6)}, 3, {vr(AD+6)}
        v_add_u32 {vr(AD+7)}, {sr(T)}, {vr(AD+6)}""")
        for k in range(3): a(f"v_add_u32 {vr(AD+k)}, {vr(AD+7)}, {vr(AD+k)}")
        a(f"s_mov_b32 {sr(S_CNT)}, {sr(S_W)}")
        a("s_waitcnt vmcnt(0)\ns_barrier")
        a.label("L_wfl")
        for s in self.tr_reads(AD, vr)(0, BF): a(s)
        a("s_waitcnt lgkmcnt(0)")
        self.gemm(self.row_reads(AD + 3), BF, ACC, AF)
        for i in range(18): a(f"v_cvt_pk_bf16_f32 {vr(BF+i)}, {vr(ACC+2*i)}, {vr(ACC+2*i+1)}")
        a(f"s_cmp_eq_u32 s2, {self.wf0}\ns_cbranch_scc0 L_wf3")
        self.gemm(self.row_reads(AD + 5), BF, ACC, AF)
        for i in range(18): a(f"v_cvt_pk_bf16_f32 {vr(BF+i)}, {vr(ACC+2*i)}, {vr(ACC+2*i+1)}")
        a.label("L_wf3")
        a(f"""s_mul_i32 {sr(T)}, {sr(S_CNT)}, {BLK}
        s_add_u32 {sr(T)}, {sr(T)}, {sr(T+4)}
        s_add_u32 {sr(T)}, {sr(T)}, {WS_WF}
        s_add_u32 {sr(T+1)}, {sr(T)}, 4096""")
        self.store_block(BF, V_DMA, AD + 4, S_WS, T, T + 1, "sc1")
        for k in range(3): a(f"v_add_u32 {vr(AD+k)}, 128, {vr(AD+k)}")
        a(f"s_add_u32 {sr(S_CNT)}, {sr(S_CNT)}, 4\ns_cmp_lt_u32 {sr(S_CNT)}, 8\ns_cbranch_scc1 L_wfl")
        for k in range(3): a(f"v_sub_u32 {vr(AD+k)}, {vr(AD+k)}, {vr(AD+6)}")
        a(f"s_cmp_eq_u32 {sr(S_CNT)}, 8\ns_cbranch_scc1 L_wfl")
        a(f"""s_waitcnt vmcnt(0)
        s_barrier
        s_cmp_lg_u32 {sr(S_W)}, 0
        s_cbranch_scc1 L_end
        s_mov_b64 exec, 1
        v_mov_b32 {vr(TM)}, 1
        v_mov_b32 {vr(TM+1)}, {DB_CW}
        buffer_atomic_add {vr(TM)}, {vr(TM+1)}, {sr(S_DB,4)}, 0 offen sc1
        v_mov_b32 {vr(TM+1)}, {DB_CW + 128}
        buffer_atomic_add {vr(TM)}, {vr(TM+1)}, {sr(S_DB,4)}, 0 offen sc1
        s_endpgm""")

    def dump_stamps(self):
        a = self.a
        if self.o.get("echo"):
            if self.o["echo"][0] == "skew":
                a(f"v_mov_b32 v16, 4\nbuffer_load_dword v17, v16, {sr(S_DB,4)}, 0 offen sc1\ns_waitcnt vmcnt(0)\nv_readfirstlane_b32 s98, v17\ns_not_b32 s98, s98")
                x, y = 98, S_ST + 2 * self.stnames.index(self.o["echo"][1])
            else:
                x, y = [S_ST + 2 * self.stnames.index(n) for n in self.o["echo"]]
            lo, hi = self.o.get("echo_ids", (0, 999))
            a(f"""s_cmp_eq_u32 {sr(S_VAL)}, 0
            s_cbranch_scc1 L_end
            s_cmp_lt_u32 s2, {lo}
            s_cbranch_scc1 L_end
            s_cmp_ge_u32 s2, {hi}
            s_cbranch_scc1 L_end
            s_memrealtime s[4:5]
            s_waitcnt lgkmcnt(0)
            s_sub_u32 s6, {sr(y)}, {sr(x)}
            s_mul_i32 s6, s6, {self.o.get("echo_mul", 1)}
            s_lshr_b32 s6, s6, {self.o.get("echo_shr", 0)}
            s_add_u32 s6, s6, s4""")
            a.label("L_echo")
            a("s_memrealtime s[4:5]\ns_waitcnt lgkmcnt(0)\ns_sub_u32 s7, s6, s4\ns_cmp_gt_i32 s7, 0\ns_cbranch_scc1 L_echo")
            return
        if self.o.get("dbgst"):
            a("s_waitcnt vmcnt(0)")
            self.stamp("done")
            a("s_waitcnt lgkmcnt(0)\ns_mov_b64 exec, 1")
            slots = [1, 2, 3, 4, 5, 6, 7, 9, 11, 12, 13, 14, 15]
            a(f"s_not_b32 {sr(S_T)}, {sr(S_ST)}\nv_mov_b32 v16, {sr(S_T)}\nv_mov_b32 v17, 4\nbuffer_atomic_umax v16, v17, {sr(S_DB,4)}, 0 offen sc1")
            for i in range(min(self.nst, 12)):
                a(f"v_mov_b32 v{18+2*i}, {sr(S_ST+2*i)}\nv_mov_b32 v{19+2*i}, {4*slots[i+1]}\nbuffer_atomic_umax v{18+2*i}, v{19+2*i}, {sr(S_DB,4)}, 0 offen sc1")
            return
        if not self.o.get("stamps"): return
        T = S_T
        a(f"""s_waitcnt lgkmcnt(0)
        s_lshl_b32 {sr(T)}, s2, 2
        s_add_u32 {sr(T)}, {sr(T)}, {sr(S_W)}
        s_lshl_b32 {sr(T)}, {sr(T)}, 7
        s_add_u32 {sr(T)}, {sr(T)}, {WS_DBG}
        v_mov_b32 v1, 0""")
        for i in range(26): a(f"v_mov_b32 {vr(16+i)}, {sr(S_ST+i)}")
        for i in range(7): a(f"buffer_store_dwordx4 {vr(16+4*i,4)}, v1, {sr(S_WS,4)}, {sr(T)} offen offset:{16*i}")

    def build(self):
        a = self.a
        self.stnames = []
        a.raw(f"; @launch grid=({NWG},1,1) block=(256,1,1) lds={LDS_TOTAL}")
        a.raw('.amdgcn_target "amdgcn-amd-amdhsa--gfx950"')
        a.raw(".text")
        a.raw(f".globl {NAME}")
        a.raw(".p2align 12")
        self.entry()
        self.phase_a()
        self.rest()
        a.label("L_fin")
        self.dump_stamps()
        a.label("L_end")
        a("s_endpgm")
        self.poll2()
        if not self.o.get("touch", 1): self.rare()
        a.label("L_dummy")
        self.fallback()
        self.wfuse()
        a.raw('.section .rodata,"a"')
        a.raw(".p2align 6")
        a.raw(kernel_desc(NAME, 512, 102, 256))
        return a.text()

    def S(self, buf, qb, i=0): return V_S + buf * 32 + qb * 8 + i
    def P(self, buf, qb, i=0): return V_P + buf * 16 + qb * 4 + i

    def k_reads(self, slot, V_K=V_K):
        ka, so = (V_KA, slot * SLOT) if slot < 2 else (V_HI, (slot - 2) * SLOT)
        out = [f"ds_read_b128 {vr(V_K+8*s+4*kb,4)}, {vr(ka)} offset:{so + 2048*s + 256*kb}" for s in range(4) for kb in range(2)]
        out += [f"ds_read_b64 {vr(V_K+32+2*kb,2)}, {vr(ka+1)} offset:{so + 8192 + 512*kb}" for kb in range(2)]
        return out

    def v_reads(self, slot, dst=V_V):
        (va, vr_, vb), so = ((V_VA, V_VR, V_VB), slot * SLOT) if slot < 2 else ((V_HI + 2, V_HI + 4, V_HI + 5), (slot - 2) * SLOT)
        out = []
        for T in range(9):
            for u in range(2):
                if T < 8: out.append(f"ds_read_b64_tr_b16 {vr(dst+4*T+2*u,2)}, {vr((va if T < 4 else vb)+(T&1))} offset:{so + 2048*((T>>1)&1) + 256*u}")
                else: out.append(f"ds_read_b64_tr_b16 {vr(dst+4*T+2*u,2)}, {vr(vr_)} offset:{so + 8192 + 512*u}")
        return out

    def qk_mfmas(self, buf, czero=False):
        out = []
        for s in range(5):
            for kb in range(2):
                for qb in range(4):
                    d = vr(self.S(buf, qb, 4 * kb), 4)
                    c = ("0" if czero else vr(V_CI + 4 * qb, 4)) if s == 0 else d
                    if s < 4: out.append(f"v_mfma_f32_16x16x32_bf16 {d}, {vr(V_K+8*s+4*kb,4)}, {ar(A_Q+18*qb+4*s,4)}, {c}")
                    else: out.append(f"v_mfma_f32_16x16x16_bf16 {d}, {vr(V_K+32+2*kb,2)}, {ar(A_Q+18*qb+16,2)}, {c}")
        return out

    def pv_mfmas(self, buf, czero=False):
        out = []
        for T in range(9):
            for qb in range(4):
                o = ar(A_O + 36 * qb + 4 * T, 4)
                out.append(f"v_mfma_f32_16x16x32_bf16 {o}, {vr(V_V+4*T,4)}, {vr(self.P(buf,qb),4)}, {'0' if czero else o}")
        return out

    def plan(self):
        o = self.o
        n = 76
        fixed = [None] * n
        for i, g in enumerate(range(1, 36, 2)): fixed[g] = ("V", i)
        for i, g in enumerate([41, 44, 47, 50, 53, 56, 59, 62, 65, 68]): fixed[g] = ("K", i)
        for i, g in enumerate([42, 46, 49, 52, 55, 58, 61, 64, 67]): fixed[g] = ("D", i)
        exps = [(qb, j) for qb in range(4) for j in range(8)]
        start = 40
        order = [(start + k) % n for k in range(n)]
        free_idx = [k for k, g in enumerate(order) if fixed[g] is None]
        nsm = len(free_idx) - 32
        cand = free_idx[6:-2]
        sm_set = set(free_idx[-2:]) | {cand[int((i + 0.5) * len(cand) / (nsm - 2))] for i in range(nsm - 2)}
        nds = sum(1 for f in fixed if f is not None and f[0] != "D")
        over = 48 - nds - 2 * nsm
        ocand = [k for k, g in enumerate(order) if k >= 20 and (fixed[g] is None or fixed[g][0] != "D")]
        o_set = {ocand[int((i + 0.5) * len(ocand) / over)] for i in range(over)}
        gaps = [[] for _ in range(n)]
        small, pend, ei = [], [], 0
        for k, g in enumerate(order):
            new = (start + k) < n
            small.extend(pend); pend = []
            small.sort(key=lambda t: 0 if t[0] == "c" else 1)
            f = fixed[g]
            want = 0
            if f is not None:
                gaps[g].append((f[0], f[1], None))
                if f[0] == "D": continue
                want = 1
            elif k in sm_set: want = 2
            else:
                qb, j = exps[ei]; ei += 1
                gaps[g].append(("E", ("e", qb, j), new))
                if j & 1: pend.append(("c", qb, j // 2))
                pend.append(("a", qb, j))
            if k in o_set: want += 1
            if k == n - 1: want = 99
            for _ in range(want):
                if small: gaps[g].append(("E", small.pop(0), new))
        assert not small and not pend and ei == 32
        self.gaps = gaps

    def pack(self, mf, items):
        a = self.a
        where, order, done, nvm, mpos = {}, [], 0, 0, []
        isds = lambda it: "ds_" in it["t"]
        self.over = 0
        for g, m in enumerate(mf):
            assert not any(it.get("need", 999) <= g and i not in where for i, it in enumerate(items)), g
            idx = [k for k, n_ in enumerate(order) if n_ <= g]
            if idx and max(idx) + 1 > done:
                a(f"s_waitcnt lgkmcnt({min(15, len(order) - 1 - max(idx))})"); done = max(idx) + 1
            if m.startswith("@W"):
                w_, m = m.split("\n", 1)
                a(f"s_waitcnt lgkmcnt({min(15, int(w_[2:]) + len(order))})")
            a(m)
            mpos.append(len(a.lines))
            cap, pick = 8, []
            for phase in (0, 1):
                for i, it in enumerate(items):
                    if i in where or it.get("lo", 0) > g: continue
                    if "am" in it and (it["am"] >= g or len(a.lines) - mpos[it["am"]] < 8): continue
                    d = it.get("dep")
                    if d is not None and not all(where.get(x, 999) < g for x in d): continue
                    if (phase == 0 and it.get("hi", 999) <= g) or (phase == 1 and it["c"] <= cap):
                        if it["t"].startswith("buffer") and pick and any(items[x]["c"] for x in pick) and phase == 1: continue
                        if isds(it) and sum(isds(items[x]) for x in pick) >= it.get("nds", 1) and phase == 1: continue
                        pick.append(i); where[i] = g; cap -= it["c"]
            key = lambda i: 0 if items[i]["c"] == 0 else 1 if isds(items[i]) else 2 if items[i]["t"].startswith("buffer") else 3
            for i in sorted(pick, key=key):
                a(items[i]["t"].replace("@VM", f"s_waitcnt vmcnt({nvm})"))
                nvm += items[i]["t"].startswith("buffer")
                if isds(items[i]): order.append(items[i].get("need", 999))
            self.over += max(0, -cap)
        return [it["t"] for i, it in enumerate(items) if i not in where]

    def e_items(self, buf, lst, lo, hi):
        items, idx = [], {}
        for it in lst:
            kind, qb, j = it
            d = dict(t=self.etext(buf, it), c=8 if kind == "e" else 4)
            if kind == "e": d["lo"] = lo(qb, j); d["hi"] = hi(qb) - 2 - (7 - j)
            else:
                need = [("e", qb, j)] if kind == "a" else [("e", qb, 2 * j), ("e", qb, 2 * j + 1)]
                d["dep"] = [idx[x] for x in need if x in idx]
                if kind == "c": d["hi"] = hi(qb) - (3 - j) // 2
            idx[it] = len(items); items.append(d)
        return items

    def etext(self, buf, it):
        kind, qb, j = it
        s = self.S(buf, qb)
        if kind == "e": return f"v_exp_f32 {vr(s+j)}, {vr(s+j)}"
        if kind == "a": return f"v_add_f32 {vr(V_L+qb)}, {vr(V_L+qb)}, {vr(s+j)}"
        return f"v_cvt_pk_bf16_f32 {vr(self.P(buf, qb, j))}, {vr(s+2*j)}, {vr(s+2*j+1)}"

    def period(self, p, qk=True, pv=True, e_old=True, e_new=True, kread=True, vread=True, dma=True, extra={}, dsub=None, ksub=None, vm=9, halves=(0, 1), inc=None):
        a = self.a
        bn, bo = (p + 1) & 1, p & 1
        mf = self.qk_mfmas(bn) + self.pv_mfmas(bo, czero=(p == 0))
        kr, vrd = self.k_reads((p + 2) % RING), self.v_reads(p % RING)
        slot = p % RING
        n = 76
        sc = [[] for _ in range(n)]
        dgs = [g for g in range(n) if any(e[0] == "D" for e in self.gaps[g])]
        if dma:
            for j, g in enumerate(dgs):
                if j % 4 == 0: sc[g - 1].append(f"s_add_u32 m0, {sr(S_LB)}, {slot*SLOT + 4096*(j//4)}")
            sc[dgs[-1] + 1].append(f"s_add_u32 {sr(S_TOFF)}, {sr(S_TOFF)}, {inc or 4*TILE}")
        w = []
        if kread: w.append(f"vmcnt({vm})")
        if pv: w.append("lgkmcnt(0)")
        if w: sc[39].append("s_waitcnt " + " ".join(w))
        if kread: sc[75].append("s_waitcnt lgkmcnt(0)")
        for half in halves:
            rng = range(0, 40) if half == 0 else range(40, 76)
            on = qk if half == 0 else pv
            if not on:
                ds, mem, val, post = [], [], [], []
                for g in rng:
                    for s_ in sc[g]:
                        (post if s_.startswith("s_waitcnt") else mem).append(s_)
                    if g in extra: mem.append(extra[g])
                    for kind, d, new in self.gaps[g]:
                        if kind == "V" and vread: ds.append(vrd[d])
                        elif kind == "K" and kread: ds.append(kr[d])
                        elif kind == "D" and dma: mem.append(f"buffer_load_dwordx4 {vr(V_DMA + d//4)}, {sr(S_XA,4)}, {sr(S_TOFF)} offen offset:{1024*(d%4)} lds")
                        elif kind == "E" and ((new and e_new) or (not new and e_old)): val.append((d, self.etext(bn if new else bo, d)))
                if half == 1: a("s_nop 3")
                seq, pend = [], list(val)
                while pend:
                    k = 0
                    if seq and seq[-1][0][0] == "e":
                        le = seq[-1][0]
                        dep = lambda it: it[0][1] == le[1] and ((it[0][0] == "a" and it[0][2] == le[2]) or (it[0][0] == "c" and it[0][2] == le[2] // 2))
                        have = {x[0] for x in seq}
                        ok = lambda it: it[0][0] == "e" or (("e", it[0][1], it[0][2]) in have if it[0][0] == "a" else (("e", it[0][1], 2*it[0][2]+1) in have)) or not any(x[0][0] == "e" and x[0][1] == it[0][1] and (x[0][2] == it[0][2] if it[0][0] == "a" else x[0][2] // 2 == it[0][2]) for x in pend)
                        while k < len(pend) and (dep(pend[k]) or not ok(pend[k])): k += 1
                        if k == len(pend): seq.append((("n", 0, 0), "s_nop 0")); k = 0
                    seq.append(pend.pop(k))
                step = max(1, len(seq) // (len(mem) + len(ds) + 1))
                allm = ds + mem
                for x in allm[:6]: a(x)
                allm = allm[6:]
                for i_, (d, t_) in enumerate(seq):
                    a(t_)
                    if allm and i_ % step == step - 1:
                        x = allm.pop(0); a(x)
                        if x.startswith("s_add_u32 m0"): a("s_nop 0")
                for x in allm:
                    a(x)
                    if x.startswith("s_add_u32 m0"): a("s_nop 0")
                for x in post: a(x)
                if half == 0: a("s_nop 1")
                continue
            for g in rng:
                a(mf[g])
                for s_ in sc[g]: a(s_)
                if g in extra: a(extra[g])
                for kind, d, new in self.gaps[g]:
                    if kind == "V":
                        if vread: a(vrd[d])
                    elif kind == "K":
                        if kread: a(kr[d])
                        elif ksub: a(ksub.pop(0))
                    elif kind == "D":
                        if dma: a(f"buffer_load_dwordx4 {vr(V_DMA + d//4)}, {sr(S_XA,4)}, {sr(S_TOFF)} offen offset:{1024*(d%4)} lds")
                        elif dsub: a(dsub.pop(0))
                    elif (new and e_new) or (not new and e_old):
                        a(self.etext(bn if new else bo, d))

    MK, VO, VO8, GA, VS0, VS0R, VDW, VLW, VL8, VST, VPL = 232, 236, 9, 238, 250, 251, 244, 245, 246, 247, 248
    NB, PT, E_U, E_G, RS3, E_COL, RS1, RS2, MP1 = 3, 4, 5, 6, 7, 43, 36, 37, 38
    G0, GM, GP, U, DWT = 16, 26, 36, 80, (90, 252, 96, 100, 112, 116, 104, 94)
    XRS = (192, 196, 46)
    frag = staticmethod(lambda f, b: [(f, b + 4 * s) for s in range(5)])
    WD = [[("a", 216 + 4 * s) for s in range(5)], [("a", 234 + 4 * s) for s in range(5)], [("v", 208 + 4 * s) for s in range(5)]]
    WO = [[("a", 4 * s) for s in range(5)], [("a", 18 + 4 * s) for s in range(5)], [("a", 36), ("a", 40), ("a", 44), ("a", 48), ("a", 252)]]
    X1B = 98304
    X2O = L_SP - X1B
    L_L = L_SP + 9216

    def epi_setup(self):
        a = self.a
        T = S_T
        NB, PT, VO, GA = self.NB, self.PT, self.VO, self.GA
        r, g4, x, y, big, r0 = 52, 53, 54, 55, 56, 57
        a(f"""s_lshr_b32 {sr(NB)}, {sr(S_W)}, 1
        s_and_b32 {sr(PT)}, {sr(S_W)}, 1
        v_and_b32 {vr(r0)}, 15, v0
        v_lshrrev_b32 {vr(g4)}, 4, v0
        v_mul_u32_u24 {vr(x)}, 288, {vr(r0)}
        v_mov_b32 {vr(big)}, 0x40000000
        s_lshl_b32 {sr(T)}, {sr(S_TOWN)}, 1
        s_add_u32 {sr(T)}, {sr(T)}, {sr(NB)}
        s_lshl_b32 {sr(T)}, {sr(T)}, 4
        v_add_u32 {vr(r)}, {sr(T)}, {vr(r0)}
        s_mul_i32 {sr(T+1)}, {sr(S_TOWN)}, {TILE}
        s_mul_i32 {sr(T+2)}, {sr(PT)}, {BLK}
        v_add_u32 {vr(x)}, {sr(T+1)}, {vr(x)}
        s_sub_u32 {sr(T+3)}, {BLK}, {sr(T+2)}
        v_add_u32 {vr(y)}, {sr(T+3)}, {vr(x)}
        v_add_u32 {vr(x)}, {sr(T+2)}, {vr(x)}
        v_lshl_add_u32 {vr(VO)}, {vr(g4)}, 4, {vr(x)}
        v_lshl_add_u32 {vr(VO+1)}, {vr(g4)}, 4, {vr(y)}
        v_lshl_add_u32 {vr(self.VO8)}, {vr(g4)}, 3, {vr(x)}
        s_lshl_b32 {sr(T+3)}, {sr(PT)}, 11
        s_add_u32 {sr(self.E_U)}, {sr(T+3)}, {WS_U}
        s_add_u32 {sr(self.E_G)}, {sr(T+3)}, {WS_G}
        s_sub_u32 {sr(T+3)}, 4096, {sr(T+3)}
        s_lshl_b32 {sr(T)}, {sr(PT)}, 11
        s_add_u32 {sr(T)}, {sr(T)}, {WS_DWF}
        v_lshrrev_b32 {vr(x)}, 2, {vr(r0)}
        v_cmp_eq_u32 vcc, {vr(x)}, {vr(g4)}
        v_lshl_add_u32 {vr(self.VDW)}, {vr(r0)}, 4, {sr(T)}
        s_nop 0
        v_cndmask_b32 {vr(self.VDW)}, {vr(big)}, {vr(self.VDW)}, vcc
        s_lshl_b32 {sr(self.E_COL)}, {sr(S_W)}, 6
        v_lshlrev_b32 {vr(self.VL8)}, 3, v0
        v_add_u32 {vr(self.VL8)}, 4096, {vr(self.VL8)}
        v_add_u32 {vr(self.VST)}, {sr(S_LB)}, {vr(V_DMA)}
        v_add_u32 {vr(self.VST)}, {2*SLOT}, {vr(self.VST)}
        s_xor_b32 {sr(T)}, {sr(NB)}, 1
        v_xor_b32 {vr(x)}, {sr(T)}, {vr(g4)}
        v_lshl_add_u32 {vr(x)}, {vr(x)}, 4, {vr(r0)}
        s_lshl_b32 {sr(T)}, {sr(S_W)}, 2
        s_add_u32 {sr(T)}, {sr(T)}, {self.L_L}
        v_lshl_add_u32 {vr(self.VLW)}, {vr(x)}, 4, {sr(T)}
        s_sub_u32 {sr(self.MP1)}, 0, {sr(PT)}
        s_mov_b32 {sr(self.MP1+1)}, {sr(self.MP1)}""")
        for k, (d, base) in enumerate(((self.RS1, 3 * SLOT), (self.RS2, 2 * SLOT), (self.RS3, 2 * SLOT))):
            a(f"s_xor_b32 {sr(T)}, {sr(S_W)}, {k+1}\ns_mul_i32 {sr(T)}, {sr(T)}, {TILE}\ns_add_u32 {sr(d)}, {sr(T)}, {base}")
        a(f"""s_mul_i32 {sr(T)}, {sr(S_B)}, 4000
        s_add_u32 {sr(T+1)}, {sr(T)}, 3999
        s_mov_b32 {sr(T+2)}, {BLK}""")
        for k, dr in enumerate((0, -1, 1)):
            m = GA + 2 * k
            if dr: a(f"v_add_u32 {vr(m)}, {dr}, {vr(r)}\nv_cmp_eq_u32 vcc, {sr(T if dr < 0 else T+1)}, {vr(r)}")
            src = m if dr else r
            a(f"""v_lshrrev_b32 {vr(x)}, 4, {vr(src)}
            v_and_b32 {vr(y)}, 15, {vr(src)}
            v_mul_lo_u32 {vr(x)}, {vr(x)}, {sr(T+2)}
            v_lshl_add_u32 {vr(y)}, {vr(g4)}, 4, {vr(y)}
            v_lshl_add_u32 {vr(m)}, {vr(y)}, 4, {vr(x)}
            v_lshl_add_u32 {vr(m+1)}, {vr(y)}, 3, {vr(x)}
            v_add_u32 {vr(m+1)}, {sr(T+3)}, {vr(m+1)}""")
            if dr: a(f"v_cndmask_b32 {vr(m)}, {vr(m)}, {vr(big)}, vcc\nv_cndmask_b32 {vr(m+1)}, {vr(m+1)}, {vr(big)}, vcc")

    def conv_loads(self):
        GA = self.GA
        L = []
        for dst, m, so in ((self.GM, GA + 2, 1), (self.G0, GA, 1), (self.GP, GA + 4, 1), (self.U, GA, 0)):
            for k in range(2): L.append(f"buffer_load_dwordx4 {vr(dst+4*k,4)}, {vr(m)}, {sr(S_WS,4)}, {sr(self.E_U+so)} offen offset:{1024*k}")
            L.append(f"buffer_load_dwordx2 {vr(dst+8,2)}, {vr(m+1)}, {sr(S_WS,4)}, {sr(self.E_U+so)} offen")
        return L

    def rg(self, e, n): return (ar if e[0] == "a" else vr)(e[1], n)

    def w8_loads(self, regs, so):
        return [f"buffer_load_dwordx4 {self.rg(regs[s],4)}, {vr(V_DMA)}, {sr(S_WS,4)}, {sr(so)} offen offset:{1024*s}" for s in range(4)] + \
               [f"buffer_load_dwordx2 {self.rg(regs[4],2)}, {vr(self.VL8)}, {sr(S_WS,4)}, {sr(so)} offen"]

    def w_reads(self, regs, off):
        L = []
        for tt in range(2):
            L += [f"ds_read_b128 {self.rg(regs[tt][s],4)}, {vr(self.VS0)} offset:{off + BLK*tt + 1024*s}" for s in range(4)]
            L.append(f"ds_read_b64 {self.rg(regs[tt][4],2)}, {vr(self.VS0R)} offset:{off + BLK*tt}")
        return L

    def xa_srd(self):
        T = S_T
        return f"""s_mul_i32 {sr(T)}, {sr(S_B)}, {NT}
        s_mul_i32 {sr(T+1)}, {sr(S_H)}, 63
        s_add_u32 {sr(T+1)}, {sr(T+1)}, {sr(T)}
        s_mul_i32 {sr(T+1)}, {sr(T+1)}, {TILE}
        s_add_u32 {sr(S_XA)}, {sr(S_WS)}, {sr(T+1)}
        s_addc_u32 {sr(S_XA+1)}, {sr(S_WS+1)}, 0
        s_sub_u32 {sr(T+2)}, 63, {sr(S_H)}
        s_mul_i32 {sr(S_XA+2)}, {sr(T+2)}, {TILE}
        s_mov_b32 {sr(S_XA+3)}, 0x20000"""

    def rest(self):
        a, o = self.a, self.o
        T = S_T
        VPL = self.VPL
        self.plan()
        self.head()
        self.stamp("loop")
        if o.get("echo") and o["echo"][0] == "skew":
            a(f"s_waitcnt lgkmcnt(0)\ns_mov_b64 exec, 1\ns_not_b32 s98, {sr(S_ST)}\nv_mov_b32 v226, s98\nv_mov_b32 v227, 4\ns_cmp_lg_u32 {sr(S_W)}, 0\ns_cbranch_scc1 L_sk\nbuffer_atomic_umax v226, v227, {sr(S_DB,4)}, 0 offen sc1\ns_waitcnt vmcnt(0)\nL_sk:\ns_mov_b64 exec, -1\ns_nop 3")
        nh = o.get("ugh", 2)
        ex = {2 + 12 * k: x for k, x in enumerate(self.ugs[nh:])}
        self.period(0, vm=9 + 5, extra=ex)
        self.stamp("l0")
        a.raw(".p2align 6")
        a.label("L_loop")
        self.stamp("q1")
        for p in range(1, 5):
            ex = {}
            vm = 9
            if p == 1: ex = {73: f"s_cmp_eq_u32 {sr(S_CNT)}, 3"}
            if p == 2: ex = {70: f"buffer_load_dwordx4 v[252:255], {vr(VPL)}, {sr(S_DB,4)}, 0 offen sc1"}
            if p == 3:
                ex = {73: f"s_cmp_eq_u32 {sr(S_CNT)}, 2", 45: f"ds_add_rtn_u32 v230, v231, {vr(VPL+1)}"}
            if p == 4:
                self.stamp("la0")
                a(f"s_cbranch_scc1 L_last")
                a.label("L_lastb")
                self.stamp("la1")
                ex = {72: f"s_add_u32 {sr(S_CNT)}, {sr(S_CNT)}, 1", 1: "v_cmp_eq_u32 vcc, 3, v230", 3: f"v_cndmask_b32 v230, v231, {vr(VPL)}, vcc",
                      6: f"buffer_atomic_add {vr(VPL+1)}, v230, {sr(S_DB,4)}, 0 offen sc1"}
            self.period(p, extra=ex, inc=sr(S_INC) if p == 4 else None)
            if p == 1: a("s_cbranch_scc1 L_p14")
        a("s_branch L_loop")
        a.label("L_p14")
        SW = 66
        self.stamp("p14")
        a(f"s_cmp_eq_u32 {sr(S_DUM)}, 4\ns_cbranch_scc0 L_dummyb")
        for i in range(16): a(f"v_mov_b32 {vr(V_CI+i)}, 0xff800000")
        a("s_nop 1")
        a.label("L_dummyb")
        ex = dict(zip([2, 6, 8, 12, 14, 18, 20, 24, 26, 30], self.w_reads(self.WD, 0)))
        ex[0] = "s_waitcnt vmcnt(9)"
        ex.update(dict(zip([4, 10, 16, 22, 28], self.w8_loads(self.WD[2], SW))))
        self.period(14, dma=False, kread=False, extra=ex, halves=(0,))
        self.stamp("tail")
        self.tail(SW)
        self.stamp("end")
        self.epilogue(SW)

    def rare(self):
        a = self.a
        T = S_T
        SW = 66
        a.label("L_last")
        a(f"s_waitcnt vmcnt(9)\ns_mov_b32 {sr(T+2)}, 0")
        a.label("L_late")
        a(f"""v_readfirstlane_b32 {sr(T)}, v252
        v_readfirstlane_b32 {sr(T+1)}, v254
        s_add_u32 {sr(S_XA)}, {sr(S_WS)}, {WS_WF}
        s_addc_u32 {sr(S_XA+1)}, {sr(S_WS+1)}, 0
        s_mov_b32 {sr(S_XA+2)}, {18*BLK}
        s_add_u32 {sr(S_TOFF)}, {sr(S_LB)}, {9*BLK}
        s_mov_b32 {sr(S_INC)}, {-9*BLK}
        s_lshr_b32 {sr(SW)}, {sr(S_W)}, 1
        s_lshl_b32 {sr(SW)}, {sr(SW)}, 30
        s_add_u32 {sr(SW+1)}, {sr(SW)}, {WS_WF + 8*BLK}
        s_add_u32 {sr(SW)}, {sr(SW)}, {WS_WF + 17*BLK}
        s_cmp_ge_u32 {sr(T)}, 126
        s_cselect_b32 {sr(T+3)}, {sr(T+1)}, 0
        s_cmp_ge_u32 {sr(T+3)}, 2
        s_cbranch_scc1 L_lastb
        buffer_load_dwordx4 v[252:255], {vr(self.VPL)}, {sr(S_DB,4)}, 0 offen sc1
        s_add_u32 {sr(T+2)}, {sr(T+2)}, 1
        s_waitcnt vmcnt(0)
        s_cmp_lt_u32 {sr(T+2)}, 0x40000
        s_cbranch_scc1 L_late
        s_branch L_lastb""")

    units = [(0, 0), (0, 1), (1, 0), (1, 1), (2, 0)]
    V15 = V_K

    def stage(self, slot, T):
        src = ar(A_O + 36 * slot + 4 * T, 4)
        if slot == 0: return f"ds_write_b128 {vr(self.VST)}, {src} offset:{1024*T}"
        if slot == 2: return f"ds_write_b128 {vr(self.VS0)}, {src} offset:{1024*T}"
        if T < 4: return f"ds_write_b128 {vr(self.VST)}, {src} offset:{SLOT + 1024*T + (4096 if slot == 3 else 0)}"
        return f"{'s_not_b64' if slot == 1 else 's_mov_b64'} exec, {sr(self.MP1,2)}\nds_write_b128 {vr(self.VST)}, {src} offset:{SLOT + 8192}\ns_mov_b64 exec, -1"

    def dwf(self, k, i):
        f = 5 * k + i
        return self.DWT[f >> 1] + 2 * (f & 1)

    def tail(self, SW):
        a, o = self.a, self.o
        mf, pos, start = [], {}, {}
        for t_, qb in ((14, 0), (14, 1), (15, 0), (15, 1), (14, 2), (15, 2), (14, 3), (15, 3)):
            start[t_, qb] = len(mf)
            for Tt in ([0, 1, 2, 3, 8, 4, 5, 6, 7] if qb & 1 else range(9)):
                o_ = ar(A_O + 36 * qb + 4 * Tt, 4)
                pos[t_, qb, Tt] = len(mf)
                mf.append(f"v_mfma_f32_16x16x32_bf16 {o_}, {vr((V_V if t_ == 14 else self.V15)+4*Tt,4)}, {vr(self.P(t_ & 1,qb),4)}, {o_}")
        lst = []
        for qb in range(4):
            for j in range(8):
                lst.append(("e", qb, j))
                if j & 1: lst.append(("c", qb, j // 2))
        lst += [("a", qb, j) for qb in range(4) for j in range(8)]
        items = self.e_items(1, lst, lambda qb, j: 0 if j < 4 else 1, lambda qb: start[15, qb] - 2)
        for it in items[48:]: it["lo"] = o.get("alo", 26)
        v15 = [dict(t=x, c=4, need=pos[15, 0, i // 2], hi=pos[15, 0, i // 2] - o.get("vlead", 7), lo=0 if i < 16 else 2) for i, x in enumerate(self.v_reads(3, self.V15))]
        wr = []
        nown = o.get("nown", 4)
        self.own = [(2, T_) for T_ in range(nown, 9)] + [(3, T_) for T_ in (0, 1, 2, 3, 8)]
        g = o.get("w0", 23)
        for k, (sl, Tt) in enumerate([(0, T_) for T_ in range(9)] + [(1, T_) for T_ in (0, 1, 2, 3, 8)] + [(2, T_) for T_ in range(nown)]):
            g = max(pos[15, sl, Tt] + 5, g)
            wr.append(dict(t=self.stage(sl, Tt), c=o.get("wc", 20), lo=int(g), hi=int(g)) if g < 72 else dict(t=self.stage(sl, Tt), c=4, lo=999))
            g += o.get("wsp", 2.7)
        n0 = len(items) + len(v15)
        wo = []
        for i, x in enumerate(self.w_reads(self.WO, SLOT)):
            r0 = self.WO[i // 5][i % 5][1]
            wo.append(dict(t=("@VM\n" if i == 0 else "") + x, c=4, dep=sorted({n0 + r0 // 4, n0 + (r0 + 3) // 4 if (r0 + 3) // 4 < 9 else n0 + 8}), lo=o.get("wo0", 40) + 3 * i, hi=o.get("wo0", 40) + 3 * i + 2))
        cl = self.conv_loads()
        dl = [f"buffer_load_dwordx4 {vr(self.DWT[r],4)}, {vr(self.VDW)}, {sr(S_WS,4)}, 0 offen offset:{256*r}" for r in range(7)]
        dl.append(f"buffer_load_dwordx2 {vr(self.DWT[7],2)}, {vr(self.VDW)}, {sr(S_WS,4)}, 0 offen offset:{256*7}")
        fr = {96: 9, 100: 18, 104: 45, 112: 27, 116: 36}
        vm = [(x, 0) for x in cl] + [(x, fr.get(self.DWT[r], 0)) for r, x in enumerate(dl)]
        used = {w["lo"] for w in wr}
        vi, g = [], o.get("m0", 24)
        for x, lo in vm:
            g = max(g, lo)
            while int(g) in used: g += 1
            vi.append(dict(t=x, c=8, lo=int(g), hi=int(g)) if g < 72 else dict(t=x, c=8, lo=999))
            g += o.get("msp", 2.2)
        left = self.pack(mf, items + v15 + wr + wo + vi)
        self.done_a = {(qb, j) for qb in range(4) for j in range(8) if self.etext(1, ("a", qb, j)) not in left}
        left = [x for x in left if not x.startswith("v_add_f32")]
        print("tail overflow", self.over, "left", len(left), "adds done", len(self.done_a))
        self.left = left

    def epilogue(self, SW):
        a, o = self.a, self.o
        T = S_T
        p = lambda r: vr(r, 2)
        NB, PT, MK, VO, units, MP1 = self.NB, self.PT, self.MK, self.VO, self.units, self.MP1
        U, GM, G0, GP = self.U, self.GM, self.G0, self.GP
        X2O = self.X2O
        R1, R2, R3 = 230, 231, 249
        LA, LS, M = 10, 226, 48

        def weave(main, fill, per):
            fill = list(fill)
            for x in main:
                a(x)
                for _ in range(per):
                    if fill: a(fill.pop(0))
            return fill
        for x in self.left:
            if not x.startswith("buffer"): a(x)
        lv = [x for x in self.left if x.startswith("buffer")]
        lv += [f"buffer_load_dwordx4 {vr(self.XRS[j],4)}, {vr(VO+j)}, {sr(S_X,4)}, {sr(self.E_COL)} offen" for j in range(2)]
        lv.append(f"buffer_load_dwordx2 {vr(self.XRS[2],2)}, {vr(self.VO8)}, {sr(S_X,4)}, 0 offen offset:256")
        S1 = lambda qb, j: self.S(1, qb, j)
        rounds = [[] for _ in range(6)]
        for qb in range(4):
            rem = [j for j in range(8) if (qb, j) not in self.done_a]
            prs = [j for j in rem if j % 2 == 0 and j + 1 in rem]
            sing = [j for j in rem if (j & ~1) not in prs]
            r_ = 0
            while len(prs) > 1:
                for x, y in zip(prs[0::2], prs[1::2]): rounds[r_].append(f"v_pk_add_f32 {p(S1(qb,x))}, {p(S1(qb,x))}, {p(S1(qb,y))}")
                prs = prs[0::2]; r_ += 1
            for k_, j in enumerate(sing + ([prs[0], prs[0] + 1] if prs else [])): rounds[min(5, max(r_, 2) + k_)].append(f"v_add_f32 {vr(V_L+qb)}, {vr(V_L+qb)}, {vr(S1(qb,j))}")
        for r_ in rounds:
            for x in r_: a(x)
        a(f"v_add_u32 {vr(R1)}, {sr(self.RS1)}, {vr(V_DMA)}\nv_add_u32 {vr(R2)}, {sr(self.RS2)}, {vr(V_DMA)}")
        self.treduce(V_L)
        a(f"ds_write_b32 {vr(self.VLW)}, {vr(V_L)}")
        acc = lambda slot: [f"v_accvgpr_read_b32 {vr(M+i)}, {ar(A_O+36*slot+16+i)}" for i in range(20)]
        a(f"""v_add_u32 {vr(R3)}, {sr(self.RS3)}, {vr(V_DMA)}
        v_add_u32 {vr(LA+1)}, {self.L_L}, {vr(V_DMA)}
        v_and_b32 {vr(LS+1)}, 0xf0, {vr(V_DMA)}
        s_lshl_b32 {sr(T)}, {sr(NB)}, 8
        s_add_u32 {sr(T+8)}, {sr(T)}, {self.L_L}
        v_add_u32 {vr(LS)}, {sr(T+8)}, {vr(LS+1)}""")
        for x in lv: a(x)
        a(f"""s_xor_b32 {sr(T)}, s2, 1
        s_mul_i32 {sr(T)}, {sr(T)}, {IB}
        s_mul_i32 {sr(T+9)}, {sr(NB)}, 5120
        s_add_u32 {sr(T+9)}, {sr(T+9)}, {WS_IB}
        s_add_u32 {sr(T)}, {sr(T)}, {sr(T+9)}
        s_lshl_b32 {sr(T+10)}, {sr(PT)}, 11
        s_add_u32 {sr(T+1)}, {sr(T+10)}, {sr(T)}
        s_add_u32 {sr(T)}, {sr(T)}, 4096
        s_cmp_eq_u32 {sr(PT)}, 0
        s_cselect_b32 {sr(T)}, 0x40000000, {sr(T)}
        s_mov_b32 {sr(T+2)}, {f32(2.0**100)}
        s_mul_i32 {sr(T+12)}, s2, {IB}
        s_add_u32 {sr(T+12)}, {sr(T+12)}, {sr(T+9)}
        s_add_u32 {sr(T+13)}, {sr(T+12)}, {sr(T+10)}
        s_waitcnt lgkmcnt(0)
        s_barrier""")
        self.stamp("B1")

        def rd(X, offs):
            L = [[f"ds_read_b128 {vr(X[k][i],4)}, {vr((R1, R2, R3)[k])} offset:{offs[k] + 1024*i}" for i in range(4)] for k in range(3)]
            L8 = [f"ds_read_b128 {vr(X[k][4],4)}, {vr((R1, R2, R3)[k])} offset:8192" for k in range(3)]
            return L, L8

        def adds(X, k, rng):
            return [f"v_pk_add_f32 {p(M+4*i+2*h)}, {p(M+4*i+2*h)}, {p(X[k][i]+2*h)}" for i in rng for h in range(2)]
        X = [[128, 132, 136, 140, 144], [148, 152, 156, 160, 68], [72, 76, 200, 204, 108]]
        PK = 128
        L, L8 = rd(X, (0, 4096, 0))
        a(f"ds_read_b128 {vr(LA,4)}, {vr(LA+1)}\nds_read_b128 {vr(LS,4)}, {vr(LS)}")
        rest = weave(L[0] + L[1] + L[2], acc(1), 2)
        assert not rest
        a(f"s_mov_b64 exec, {sr(MP1,2)}")
        for x in L8: a(x)
        a(f"""s_mov_b64 exec, -1
        s_waitcnt lgkmcnt(11)
        v_add_f32 {vr(LA)}, {vr(LA)}, {vr(LA+1)}
        v_add_f32 {vr(LA+2)}, {vr(LA+2)}, {vr(LA+3)}
        v_add_f32 {vr(LS)}, {vr(LS)}, {vr(LS+1)}
        v_add_f32 {vr(LA)}, {vr(LA)}, {vr(LA+2)}
        v_add_f32 {vr(LS+2)}, {vr(LS+2)}, {vr(LS+3)}
        v_cmp_nge_f32 vcc, {sr(T+2)}, {vr(LA)}""")
        for x in adds(X, 0, range(4)): a(x)
        a(f"""s_cmp_lg_u64 vcc, 0
        s_cselect_b32 {sr(T+2)}, 1, 0
        s_andn2_b32 {sr(T+2)}, {sr(T+2)}, {sr(S_REDO)}
        s_cbranch_scc1 L_fallback
        v_add_f32 {vr(PK+10)}, {vr(LS)}, {vr(LS+2)}
        v_mov_b32 {vr(PK+11)}, {vr(MK+1)}
        s_waitcnt lgkmcnt(7)""")
        for x in adds(X, 1, range(4)): a(x)
        a("s_waitcnt lgkmcnt(3)")
        a3 = adds(X, 2, range(4))
        cv = [f"v_cvt_pk_bf16_f32 {vr(PK+i)}, {vr(M+2*i)}, {vr(M+2*i+1)}" for i in range(10)]
        for x in a3[:4] + a3[4:6] + cv[:4]: a(x)
        a(f"buffer_store_dwordx4 {vr(PK,4)}, {vr(V_DMA)}, {sr(S_WS,4)}, {sr(T+1)} offen sc1")
        for x in a3[6:] + cv[4:8]: a(x)
        a(f"buffer_store_dwordx4 {vr(PK+4,4)}, {vr(V_DMA)}, {sr(S_WS,4)}, {sr(T+1)} offen offset:1024 sc1")
        a("s_waitcnt lgkmcnt(0)")
        for kk in range(3):
            for x in adds(X, kk, [4]): a(x)
        for x in cv[8:]: a(x)
        a(f"buffer_store_dwordx4 {vr(PK+8,4)}, {vr(V_DMA)}, {sr(S_WS,4)}, {sr(T)} offen sc1")
        self.stamp("sent")
        a(f"s_cmp_eq_u32 {sr(S_VAL)}, 0\ns_cbranch_scc1 L_fin")
        C, UP = 140, 68
        IN = [(200, 204, 226), (164, 168, 252), (192, 196, 172)]
        VXW, VXR, VF, LO = 78, 79, 10, 36
        wr = [self.stage(*e) for e in self.own]

        def inbox(k):
            return [f"buffer_load_dwordx4 {vr(IN[k][0],4)}, {vr(V_DMA)}, {sr(S_WS,4)}, {sr(T+13)} offen sc1",
                    f"buffer_load_dwordx4 {vr(IN[k][1],4)}, {vr(V_DMA)}, {sr(S_WS,4)}, {sr(T+13)} offen offset:1024 sc1",
                    f"buffer_load_dwordx4 {vr(IN[k][2],4)}, {vr(V_DMA+1)}, {sr(S_WS,4)}, {sr(T+12)} offen sc1"]
        for x in inbox(0): a(x)
        n0 = len(a.lines)
        a(f"""s_lshl_b32 {sr(T)}, {sr(NB)}, 12
        s_add_u32 {sr(T)}, {sr(T)}, {sr(T+10)}
        s_add_u32 {sr(T)}, {sr(T)}, {self.X1B}
        v_add_u32 {vr(VXW)}, {sr(T)}, {vr(V_DMA)}
        s_lshl_b32 {sr(T)}, {sr(NB)}, 9
        s_add_u32 {sr(T)}, {sr(T)}, {self.X1B + 4096}
        v_add_u32 {vr(VXR)}, {sr(T)}, {vr(self.VL8)}
        s_lshl_b32 {sr(T)}, {sr(PT)}, 12
        s_add_u32 {sr(T)}, {sr(T)}, {self.X1B}
        v_add_u32 {vr(VF)}, {sr(T)}, {vr(V_DMA)}
        v_xor_b32 {vr(VF+1)}, 4096, {vr(VF)}
        s_lshl_b32 {sr(T)}, {sr(PT)}, 9
        s_add_u32 {sr(T)}, {sr(T)}, {self.X1B + 4096}
        v_add_u32 {vr(VF+2)}, {sr(T)}, {vr(self.VL8)}
        v_xor_b32 {vr(VF+3)}, 512, {vr(VF+2)}
        v_subrev_u32 {vr(R2)}, {2*SLOT}, {vr(R2)}
        v_subrev_u32 {vr(R3)}, {2*SLOT}, {vr(R3)}
        s_waitcnt vmcnt(9)""")
        self.stamp("cv0")
        un = [f"v_lshlrev_b32 {vr(M+2*i)}, 16, {vr(U+i)}\nv_and_b32 {vr(M+1+2*i)}, 0xffff0000, {vr(U+i)}" for i in range(10)]
        w8 = self.w8_loads(self.WO[2], SW + 1)
        for k, src in enumerate((GM, G0, GP)):
            for i in range(5):
                d = vr(C + 4 * i, 4)
                a(f"v_mfma_f32_16x16x16_bf16 {d}, {vr(self.dwf(k, i),2)}, {vr(src+2*i,2)}, {'0' if k == 0 else d}")
                a(w8.pop(0) if i in (0, 3) and w8 else un.pop(0))
        self.stamp("cv1")
        a(f"v_and_b32 {vr(LO+1)}, 0xf0, {vr(V_DMA)}\nv_add_u32 {vr(LO)}, {sr(T+8)}, {vr(LO+1)}\ns_nop 1")
        for i in range(10): a(f"v_pk_mul_f32 {p(C+2*i)}, {p(C+2*i)}, {p(M+2*i)}")
        for i in range(10):
            a(f"v_cvt_pk_bf16_f32 {vr(UP+i)}, {vr(C+2*i)}, {vr(C+2*i+1)}")
        body = a.lines[n0:]; del a.lines[n0:]
        step = max(1, len(body) // len(wr))
        for i, l in enumerate(body):
            if i % o.get("wstep", step) == 0 and wr: a(wr.pop(0))
            a.lines.append(l)
        for x in wr: a(x)
        ac = acc(3)
        a(f"ds_write_b128 {vr(VXW)}, {vr(UP,4)} offset:{X2O}")
        for x in ac[:6]: a(x)
        a(f"ds_write_b128 {vr(VXW)}, {vr(UP+4,4)} offset:{X2O + 1024}")
        for x in ac[6:12]: a(x)
        a(f"""s_mov_b64 exec, {sr(MP1,2)}
        ds_write_b64 {vr(VXR)}, {vr(UP+8,2)} offset:{X2O}
        s_mov_b64 exec, -1""")
        self.stamp("x2")
        for x in inbox(1): a(x)
        for x in ac[12:]: a(x)
        a("s_waitcnt lgkmcnt(0)\ns_barrier")
        self.stamp("B2")
        X = [[128, 132, 136, 140, 144], [148, 152, 156, 160, 188], [16, 20, 24, 28, 32]]
        L, L8 = rd(X, (4096, 4096, 0))
        BU = [[("v", r) for r in (100, 104, 108, 112, 116)], [("v", r) for r in (118, 122, 180, 184, 126)]]
        BO = [self.frag("v", 128), self.frag("v", 146)]
        AB = 80

        def bfrags(dst, off):
            out = []
            for s in range(5):
                for j in range(2):
                    out.append(f"ds_read_b128 {self.rg(dst[j][s],4)}, {vr(VF+j)} offset:{off + 1024*s}" if s < 4 else f"ds_read_b64 {self.rg(dst[j][4],2)}, {vr(VF+2+j)} offset:{off}")
            return out

        def fg(W, Bf):
            out = []
            for s in range(5):
                for u, (tt, j) in enumerate(units):
                    d = vr(AB + 4 * u, 4)
                    if s < 4: out.append(f"v_mfma_f32_16x16x32_bf16 {d}, {self.rg(W[tt][s],4)}, {self.rg(Bf[j][s],4)}, {d}")
                    else: out.append(f"v_mfma_f32_16x16x16_bf16 {d}, {self.rg(W[tt][4],2)}, {self.rg(Bf[j][4],2)}, {d}")
            return out
        xu = []
        for u, (tt, j) in enumerate(units):
            for h in range(2):
                x = self.XRS[j] + 2 * tt + h if tt < 2 else self.XRS[2] + h
                xu += [f"v_lshlrev_b32 {vr(AB+4*u+2*h)}, 16, {vr(x)}", f"v_and_b32 {vr(AB+1+4*u+2*h)}, 0xffff0000, {vr(x)}"]
        a("s_waitcnt vmcnt(14)")
        weave(bfrags(BU, X2O), xu, 2)
        pl = lambda k, i, e: f"v_add_f32 {vr(M+4*i+e)}, {vr(M+4*i+e)}, {vr(X[k][i]+e)}"
        ds = L[0] + L[1] + L[2] + [f"s_not_b64 exec, {sr(MP1,2)}\n" + "\n".join(L8) + "\ns_mov_b64 exec, -1", f"ds_read_b128 {vr(LO,4)}, {vr(LO)} offset:512"]
        nis = [1] * 12 + [3, 1]
        gap = [[] for _ in range(25)]
        tot = [10]
        for g in range(25): tot.append(tot[-1] + (nis[g] if g < 14 else 0))
        A0 = [pl(0, i, e) for i in range(4) for e in range(4)]
        A1 = [pl(1, i, e) for i in range(4) for e in range(4)]
        ib = inbox(2)
        for g, m in enumerate(fg(self.WD, BU)):
            if g % 5 == 0: a(f"s_waitcnt lgkmcnt({min(15, tot[g] - 2 * (g // 5 + 1))})")
            a(m)
            if g == 8: a(f"s_waitcnt lgkmcnt({tot[g] - 14})")
            if g == 16: a(f"s_waitcnt lgkmcnt({tot[g] - 18})")
            if g < 14: a(ds[g])
            if 8 <= g < 14: a(A0.pop(0))
            elif g in (14, 18, 22): a(ib.pop(0))
            elif g >= 14:
                for _ in range(2): a(A0.pop(0) if A0 else A1.pop(0))
        assert not A0 and len(A1) % 2 == 0
        n1 = 16 - len(A1)
        for e in range(n1, 16, 2): a(f"v_pk_add_f32 {p(M+e)}, {p(M+e)}, {p(X[1][e//4]+e%4)}")
        a("s_waitcnt lgkmcnt(0)")
        for x in adds(X, 2, range(4)): a(x)
        a(f"v_add_f32 {vr(LO)}, {vr(LO)}, {vr(LO+1)}\nv_add_f32 {vr(LO+2)}, {vr(LO+2)}, {vr(LO+3)}")
        for kk in range(3):
            for x in adds(X, kk, [4]): a(x)
        a(f"s_mov_b32 {sr(T+2)}, 0\nv_add_f32 {vr(LO)}, {vr(LO)}, {vr(LO+2)}")
        self.stamp("own")
        w, PU = 40, 128
        mo = MK + 3

        def chk(k):
            r = [IN[k][q] + i for q in range(3) for i in range(4)]
            c = [f"v_max3_u32 v46, {vr(r[0])}, {vr(r[1])}, {vr(r[2])}", f"v_max3_u32 v47, {vr(r[3])}, {vr(r[4])}, {vr(r[5])}"]
            for q in range(3): c.append(f"v_max3_u32 v{46+(q&1)}, v{46+(q&1)}, {vr(r[6+2*q])}, {vr(r[7+2*q])}")
            return c + ["v_max_u32 v46, v46, v47", "v_cmp_eq_u32 vcc, -1, v46"]

        def take(k, with_chk):
            r = [IN[k][q] + i for q in range(3) for i in range(4)]
            lp_, mp = r[10], r[11]
            wt = [f"v_min_f32 {vr(w)}, {vr(mo)}, {vr(mp)}", f"v_sub_f32 {vr(w+2)}, {vr(w)}, {vr(mp)}", f"v_sub_f32 {vr(w)}, {vr(w)}, {vr(mo)}",
                  f"v_exp_f32 {vr(w+2)}, {vr(w+2)}", f"v_exp_f32 {vr(w)}, {vr(w)}", f"v_mul_f32 {vr(w+4)}, {vr(w+2)}, {vr(lp_)}",
                  f"v_fmac_f32 {vr(w+4)}, {vr(w)}, {vr(LO)}", f"v_rcp_f32 {vr(w+4)}, {vr(w+4)}", f"v_mul_f32 {vr(w)}, {vr(w)}, {vr(w+4)}",
                  f"v_mul_f32 {vr(w+2)}, {vr(w+2)}, {vr(w+4)}"]
            un = []
            for i in range(10): un += [f"v_lshlrev_b32 {vr(PU+2*i)}, 16, {vr(r[i])}", f"v_and_b32 {vr(PU+1+2*i)}, 0xffff0000, {vr(r[i])}"]
            c = chk(k) if with_chk else []
            for i in range(10):
                a(wt[i])
                if c: a(c.pop(0))
                a(un.pop(0)); a(un.pop(0))
        a("s_waitcnt vmcnt(6)")
        take(0, True)
        a("s_cmp_eq_u64 vcc, 0\ns_cbranch_scc0 L_poll2")
        a.label("L_got")
        self.stamp("got")
        for i in range(10): a(f"v_pk_mul_f32 {p(M+2*i)}, {p(M+2*i)}, {p(w)} op_sel_hi:[1,0]")
        for i in range(10): a(f"v_pk_fma_f32 {p(M+2*i)}, {p(PU+2*i)}, {p(w+2)}, {p(M+2*i)} op_sel_hi:[1,0,1]")
        for i in range(10):
            a(f"v_cvt_pk_bf16_f32 {vr(UP+i)}, {vr(M+2*i)}, {vr(M+2*i+1)}")
            if i == 3: a(f"ds_write_b128 {vr(VXW)}, {vr(UP,4)}")
            if i == 7: a(f"ds_write_b128 {vr(VXW)}, {vr(UP+4,4)} offset:1024")
        a(f"""s_not_b64 exec, {sr(MP1,2)}
        ds_write_b64 {vr(VXR)}, {vr(UP+8,2)}
        s_mov_b64 exec, -1
        s_waitcnt lgkmcnt(0)
        s_barrier""")
        self.stamp("B3")
        for x in bfrags(BO, 0): a(x)
        for g, m in enumerate(fg(self.WO, BO)):
            if g % 5 == 0: a(f"s_waitcnt lgkmcnt({8 - 2 * (g // 5)})" + ("\ns_nop 0" if g == 20 else ""))
            a(m)
        self.stamp("gem")
        a("s_nop 3")
        for j in range(2):
            for tt in range(2):
                u = 2 * tt + j
                for h in range(2): a(f"v_cvt_pk_bf16_f32 {vr(16+4*j+2*tt+h)}, {vr(AB+4*u+2*h)}, {vr(AB+4*u+2*h+1)}")
            a(f"buffer_store_dwordx4 {vr(16+4*j,4)}, {vr(VO+j)}, {sr(S_OUT,4)}, {sr(self.E_COL)} offen")
        a(f"s_cmp_ge_u32 {sr(S_W)}, 2\ns_cbranch_scc1 L_fin")
        for h in range(2): a(f"v_cvt_pk_bf16_f32 {vr(24+h)}, {vr(AB+16+2*h)}, {vr(AB+16+2*h+1)}")
        a(f"buffer_store_dwordx2 v[24:25], {vr(self.VO8)}, {sr(S_OUT,4)}, 0 offen offset:256")
        self.stamp("fin")

        def poll2():
            a.label("L_poll2")
            for k in (1, 2, 0):
                for x in inbox((k + 2) % 3): a(x)
                a("s_waitcnt vmcnt(6)")
                for x in chk(k): a(x)
                a(f"s_add_u32 {sr(T+2)}, {sr(T+2)}, 1\ns_cmp_eq_u64 vcc, 0\ns_cbranch_scc1 L_take{k}")
            a(f"s_cmp_lt_u32 {sr(T+2)}, 0x10000\ns_cbranch_scc1 L_poll2")
            for k in (0, 1, 2):
                a.label(f"L_take{k}")
                take(k, False)
                a("s_branch L_got")
        self.poll2 = poll2

    def fallback(self):
        a = self.a
        T = S_T
        MXR = 208
        a.label("L_fallback")
        a(f"""s_waitcnt vmcnt(0) lgkmcnt(0)
        s_barrier
        s_mov_b32 {sr(S_REDO)}, 1
        s_mov_b32 {sr(S_UG)}, 0x40000000
        {self.xa_srd()}
        s_mov_b32 {sr(S_TOFF)}, {sr(S_LB)}
        s_cmp_eq_u32 {sr(S_DUM)}, 4
        s_cselect_b32 {sr(S_CNT)}, 15, 16""")
        for i in range(4): a(f"v_mov_b32 {vr(MXR+i)}, 0xff800000")
        a.label("L_fb1")
        for g in self.tile_groups(0): a(g)
        a("s_waitcnt vmcnt(0)")
        for x in self.k_reads(0): a(x)
        a("s_waitcnt lgkmcnt(0)")
        for m in self.qk_mfmas(0, czero=True): a(m)
        a("s_nop 7")
        for qb in range(4):
            for i in range(0, 8, 2): a(f"v_max3_f32 {vr(MXR+qb)}, {vr(MXR+qb)}, {vr(self.S(0,qb,i))}, {vr(self.S(0,qb,i+1))}")
        a(f"s_sub_u32 {sr(S_CNT)}, {sr(S_CNT)}, 1\ns_cmp_lg_u32 {sr(S_CNT)}, 0\ns_cbranch_scc1 L_fb1")
        self.greduce([MXR + i for i in range(4)], MXR + 4, "v_max_f32")
        a(f"""v_and_b32 {vr(MXR+4)}, 15, v0
        v_lshlrev_b32 {vr(MXR+4)}, 4, {vr(MXR+4)}
        v_add_u32 {vr(MXR+4)}, {L_SP}, {vr(MXR+4)}
        s_lshl_b32 {sr(T)}, {sr(S_W)}, 2
        s_xor_b32 {sr(T+1)}, {sr(self.NB)}, 1
        v_lshl_add_u32 {vr(MXR+5)}, {sr(self.NB)}, 8, {vr(MXR+4)}
        v_lshl_add_u32 {vr(MXR+4)}, {sr(T+1)}, 8, {vr(MXR+4)}
        v_add_u32 {vr(MXR+6)}, {sr(T)}, {vr(MXR+4)}
        v_add_u32 {vr(MXR+7)}, {sr(T)}, {vr(MXR+5)}""")
        for qb in range(4): a(f"ds_write_b32 {vr(MXR+6+(qb&1))}, {vr(MXR+qb)} offset:{512*(qb>>1)}")
        a("s_waitcnt lgkmcnt(0)\ns_barrier")
        for qb in range(4): a(f"ds_read_b128 {vr(16+4*qb,4)}, {vr(MXR+4+(qb&1))} offset:{512*(qb>>1)}")
        a(f"s_mov_b32 {sr(S_TOFF)}, {sr(S_LB)}")
        for g in self.tile_groups(0) + self.tile_groups(1) + self.tile_groups(2)[:8]: a(g)
        a("s_waitcnt lgkmcnt(0)")
        for qb in range(4):
            r = 16 + 4 * qb
            a(f"v_max_f32 {vr(r)}, {vr(r)}, {vr(r+1)}\nv_max3_f32 {vr(r)}, {vr(r)}, {vr(r+2)}, {vr(r+3)}")
            a(f"v_sub_f32 {vr(self.MK+qb)}, 0, {vr(r)}")
        a("s_waitcnt vmcnt(0)")
        for x in self.k_reads(0, V_V): a(x)
        self.loop_init(False)
        a("s_branch L_go")


if __name__ == "__main__":
    opt = json.loads(sys.argv[2]) if len(sys.argv) > 2 else {}
    g = G(opt)
    txt = g.build()
    if opt.get("align", 1):
        from align import align
        for n2 in (1, 2):
            try:
                txt, st = align(txt, chains=[(1, "L_tr")] * 3 + [(1, "L_tr2"), (n2, "L_tr2")] if opt.get("touch", 1) else None)
                break
            except AssertionError as e:
                if n2 == 2: raise
        print("align: promoted %d, padded %d, left %d" % st)
    txt = txt.replace("\n", "\n; stamps " + json.dumps(g.stnames) + "\n; map %d\n" % g.mp, 1)
    open(sys.argv[1], "w").write(txt)
```

```python
import sys, json, math
from common import Asm, vr, ar, sr, kernel_header, kernel_desc
from lay import *

NAME = "standalone__conformer_family_branchformer__speech_kernel"
NH = 2
NWG = 252 + NH
CHAINS = (3, 3)
RING = 4
LDS_RING = RING * TILE
LDS_TOTAL = 163840
SLOT = 4 * TILE
L_WU, L_WQ, L_WK = 0, 41472, 82944
L_XX, L_XR = 126976, 143360
L_QD = 18432
L_XS = L_XX + L_QD
L_MX = 81920
L_PC = LDS_TOTAL - 256
L_DUMP = 123904
L_SP = 147456

S_X, S_WS, S_XA, S_DB, S_W1, S_W2, S_OUT, S_DW = 8, 12, 16, 20, 24, 28, 32, 36
S_W, S_B, S_H, S_QB, S_TOFF, S_CNT, S_DUM, S_LB, S_TOWN, S_TSND, S_VAL, S_REDO = range(40, 52)
S_UG = 25
S_INC = 24
S_T = 52
S_ST = 76

V_KA, V_VA, V_VR, V_DMA, V_L, V_VB = 1, 3, 5, 6, 10, 14
V_S, V_CI, V_P, V_K, V_V = 16, 80, 96, 128, 164
V_HI = 200
V_X = 208
A_O, A_Q, A_F = 0, 144, 216

LOG2E = 1.4426950408889634
import struct
def f32(x): return "0x%08x" % struct.unpack("<I", struct.pack("<f", x))[0]


class BAsm(Asm):
    def __init__(self):
        super().__init__()
        self.bg, self.every, self.cnt, self.skip = [], 0, 0, 0

    def __call__(self, s):
        for l in s.split("\n"):
            l = l.strip()
            if not l: continue
            self.lines.append("    " + l)
            if self.bg and self.every and not l.startswith(("s_nop", "v_mov_b32", "v_exp", "v_rcp", "v_rsq", "v_sqrt", "s_add_u32 m0")):
                self.cnt += 1
                if self.cnt >= self.every:
                    self.cnt = 0
                    self.pop()

    def pop(self):
        for x in self.bg.pop(0).split("\n"): self.lines.append("    " + x)

    def flush(self):
        while self.bg: self.pop()
        self.every = 0


class G:
    def __init__(self, opt):
        self.o = opt
        self.a = BAsm()
        self.nst = 0
        self.fill = []

    def stamp(self, name):
        if self.o.get("stamps"):
            if name in self.o.get("skipst", []): return
            if "only" in self.o and name not in self.o["only"]: return
            if self.nst >= 11: return
            self.a(f"{'s_memtime' if self.o.get('cyc') else 's_memrealtime'} {sr(S_ST + 2*self.nst, 2)}")
            self.stnames.append(name)
            self.nst += 1

    def srd(self, dst, lo, hi, n):
        if dst == S_WS and self.o.get("wsoff"):
            self.a(f"s_add_u32 {sr(dst)}, {sr(lo)}, {self.o['wsoff']}\ns_addc_u32 {sr(dst+1)}, {sr(hi)}, 0\ns_mov_b32 {sr(dst+2)}, {n}\ns_mov_b32 {sr(dst+3)}, 0x20000")
            return
        self.a(f"s_mov_b32 {sr(dst)}, {sr(lo)}\ns_mov_b32 {sr(dst+1)}, {sr(hi)}\ns_mov_b32 {sr(dst+2)}, {n}\ns_mov_b32 {sr(dst+3)}, 0x20000")

    def greduce(self, regs, tmp, op="v_add_f32"):
        a = self.a
        for sw in ("32", "16"):
            for i, r in enumerate(regs): a(f"v_mov_b32 {vr(tmp+i)}, {vr(r)}")
            if len(regs) < 3: a("s_nop 1" if len(regs) == 1 else "s_nop 0")
            for i, r in enumerate(regs): a(f"v_permlane{sw}_swap_b32 {vr(r)}, {vr(tmp+i)}")
            for i, r in enumerate(regs): a(f"{op} {vr(r)}, {vr(r)}, {vr(tmp+i)}")

    def treduce(self, r, op="v_add_f32"):
        a = self.a
        a(f"v_permlane32_swap_b32 {vr(r)}, {vr(r+2)}\nv_permlane32_swap_b32 {vr(r+1)}, {vr(r+3)}")
        a(f"{op} {vr(r)}, {vr(r)}, {vr(r+2)}\n{op} {vr(r+1)}, {vr(r+1)}, {vr(r+3)}\ns_nop 1")
        a(f"v_permlane16_swap_b32 {vr(r)}, {vr(r+1)}\n{op} {vr(r)}, {vr(r)}, {vr(r+1)}")

    def rbf(self, r):
        self.a(f"v_cvt_pk_bf16_f32 {vr(r)}, {vr(r)}, {vr(r)}\nv_lshlrev_b32 {vr(r)}, 16, {vr(r)}")

    def ln_tail(self, F, out, t, mimic):
        a = self.a
        p = lambda r: vr(r, 2)
        self.greduce([t, t + 1], t + 2)
        a(f"v_mul_f32 {vr(t+2)}, {f32(1.0/144)}, {vr(t)}")
        a(f"v_mul_f32 {vr(t+3)}, {vr(t+2)}, {vr(t+2)}")
        a(f"v_mov_b32 {vr(t+4)}, {f32(1.0/144)}")
        a(f"v_fma_f32 {vr(t)}, {vr(t+1)}, {vr(t+4)}, -{vr(t+3)}")
        a(f"v_max_f32 {vr(t)}, 0, {vr(t)}")
        if mimic:
            self.rbf(t)
            self.rbf(t + 2)
            a(f"v_add_f32 {vr(t)}, {f32(1e-5)}, {vr(t)}")
            self.rbf(t)
            a(f"v_sqrt_f32 {vr(t)}, {vr(t)}\ns_nop 0")
            self.rbf(t)
            a(f"v_rcp_f32 {vr(t)}, {vr(t)}\ns_nop 0")
        else:
            a(f"v_add_f32 {vr(t)}, {f32(1e-5)}, {vr(t)}")
            a(f"v_rsq_f32 {vr(t)}, {vr(t)}\ns_nop 0")
        a(f"v_mul_f32 {vr(t+2)}, -{vr(t+2)}, {vr(t)}")
        for i in range(18):
            a(f"v_pk_fma_f32 {p(F+2*i)}, {p(F+2*i)}, {p(t)}, {p(t+2)} op_sel_hi:[1,0,0]")
        for i in range(18):
            a(f"v_cvt_pk_bf16_f32 {vr(out+i)}, {vr(F+2*i)}, {vr(F+2*i+1)}")

    def ln_packed(self, X, F, out, t):
        a = self.a
        a(f"v_mov_b32 {vr(t+6)}, 0x3f803f80")
        for k in range(4): a(f"v_mov_b32 {vr(t+k)}, 0")
        for i in range(18):
            a(f"v_dot2_f32_bf16 {vr(t+2*(i&1))}, {vr(X+i)}, {vr(t+6)}, {vr(t+2*(i&1))}")
            a(f"v_dot2_f32_bf16 {vr(t+1+2*(i&1))}, {vr(X+i)}, {vr(X+i)}, {vr(t+1+2*(i&1))}")
        for i in range(2):
            a(f"v_lshlrev_b32 {vr(F+2*i)}, 16, {vr(X+i)}\nv_and_b32 {vr(F+2*i+1)}, 0xffff0000, {vr(X+i)}")
        a(f"v_pk_add_f32 {vr(t,2)}, {vr(t,2)}, {vr(t+2,2)}")
        un = []
        for i in range(2, 18):
            un.append(f"v_lshlrev_b32 {vr(F+2*i)}, 16, {vr(X+i)}\nv_and_b32 {vr(F+2*i+1)}, 0xffff0000, {vr(X+i)}")
        sv = (a.bg, a.every, a.cnt, a.skip)
        n0 = len(a.lines)
        a.bg, a.every = [], 0
        self.ln_tail(F, out, t, True)
        tail = a.lines[n0:]
        del a.lines[n0:]
        a.bg, a.every, a.cnt, a.skip = sv
        k = next(i for i, l in enumerate(tail) if "v_pk_fma" in l)
        for i, l in enumerate(tail[:k]):
            if "s_nop" in l and un: continue_nop = True
            a(l)
            if un and not l.strip().startswith("s_nop"): a(un.pop(0))
        while un: a(un.pop(0))
        for l in tail[k:]: a(l)

    def ln_f32(self, F, out, t):
        a = self.a
        p = lambda r: vr(r, 2)
        a(f"v_pk_add_f32 {p(t)}, {p(F)}, {p(F+2)}\nv_pk_add_f32 {p(t+2)}, {p(F+4)}, {p(F+6)}")
        a(f"v_pk_mul_f32 {p(t+4)}, {p(F)}, {p(F)}\nv_pk_mul_f32 {p(t+6)}, {p(F+2)}, {p(F+2)}")
        for i in range(2, 18):
            if i >= 4: a(f"v_pk_add_f32 {p(t+2*(i&1))}, {p(t+2*(i&1))}, {p(F+2*i)}")
            a(f"v_pk_fma_f32 {p(t+4+2*(i&1))}, {p(F+2*i)}, {p(F+2*i)}, {p(t+4+2*(i&1))}")
        a(f"v_pk_add_f32 {p(t)}, {p(t)}, {p(t+2)}\nv_pk_add_f32 {p(t+4)}, {p(t+4)}, {p(t+6)}")
        a(f"v_add_f32 {vr(t)}, {vr(t)}, {vr(t+1)}\nv_add_f32 {vr(t+1)}, {vr(t+4)}, {vr(t+5)}")
        self.ln_tail(F, out, t, False)

    def gemm_u(self, AF, rf, Bs, ACC, afr, bfr, post, vm_items=(), other=(), lead=7, vm0=0, vmsp=4):
        a = self.a
        units = [(0, j) for j in range(4)] + [(1, j) for j in range(4)] + [(2, 0)]
        seq, dl = [], {}
        bs = lambda j, o_, n: self.rg((Bs[j][0], Bs[j][1] + o_), n)
        rem = lambda u: (f"v_mfma_f32_16x16x16_bf16 {vr(ACC+4*u,4)}, {rf(AF+18*units[u][0]+16,2)}, {bs(units[u][1],16,2)}, {vr(ACC+4*u,4)}", u)
        A = [afr(t) for t in range(3)]
        Bf = [bfr(j) for j in range(4)]

        def use(t, j, s, k):
            for x in (A[t][2 * s:2 * s + 2] if s < 4 else A[t][8:]) + ([Bf[j][s]] if Bf[j] else []): dl.setdefault(x, k)
        for g in range(4):
            for s in range(4):
                for u in range(3 * g, 3 * g + 3) if g < 3 else []:
                    t, j = units[u]
                    d = vr(ACC + 4 * u, 4)
                    use(t, j, s, len(seq))
                    seq.append((f"v_mfma_f32_16x16x32_bf16 {d}, {rf(AF+18*t+4*s,4)}, {bs(j,4*s,4)}, {'0' if s == 0 else d}", None))
                if s == 0 and g > 0:
                    for u in range(3 * g - 3, 3 * g):
                        use(units[u][0], units[u][1], 4, len(seq)); seq.append(rem(u))
        last = seq[-3:]; seq = seq[:-3]
        ds = sorted(dl.items(), key=lambda e: e[1]) + [(x, 99) for x in other]
        vm_items = list(vm_items)
        lastvm = vm0 - vmsp
        order, ready, q, done = [], [], [], 0

        def issue():
            x, k_ = ds.pop(0); a(x); order.append(k_)

        def wait(k):
            nonlocal done
            idx = [i_ for i_, k_ in enumerate(order) if k_ <= k]
            if idx and max(idx) + 1 > done:
                a(f"s_waitcnt lgkmcnt({min(15, len(order) - 1 - max(idx))})"); done = max(idx) + 1
        while ds and ds[0][1] < 6: issue()
        for k, (m, fin) in enumerate(seq):
            assert not ds or ds[0][1] > k, (k, ds[0])
            wait(k)
            a(m)
            for u_, kk in list(ready):
                if k - kk >= 4: q += post(u_); ready.remove((u_, kk))
            if fin is not None: ready.append((fin, k))
            due = sum(1 for x, k_ in ds if k_ <= k + lead)
            if due == 0 and vm_items and k >= lastvm + vmsp:
                a(vm_items.pop(0)); lastvm = k; continue
            cap = 2
            for _ in range(min(due, 3)): issue(); cap -= 1
            if cap == 2:
                if q and q[0].startswith("ds_"): a(q.pop(0)); order.append(99); cap -= 1
                elif ds: issue(); cap -= 1
            while cap > 0 and q and not q[0].startswith("ds_"):
                a(q.pop(0)); cap -= 1
        assert not ready
        while ds: issue()
        wait(98)
        for x in vm_items: a(x)
        for x in q[:4]: a(x)
        a(f"s_nop {max(0, 4 - len(q[:4]))}")
        for m, _ in last: a(m)
        for x in q[4:]: a(x)
        a(f"s_nop {max(0, 6 - len(q[4:]))}")
        for u in range(6, 9):
            for x in post(u): a(x)

    def gemm(self, reads, B, ACC, AF, late=(), at={}, per=2):
        a = self.a
        buf = lambda T: 18 * (T % 6)
        ng = 3 * (4 * per + 1)

        def grp(g):
            r = [reads(T, buf(T)) for T in range(3 * g, 3 * g + 3)]
            return [r[t][per * s + u] for s in range(4) for t in range(3) for u in range(per)] + [r[t][4 * per] for t in range(3)]
        rem = lambda T: f"v_mfma_f32_16x16x16_bf16 {vr(ACC+4*T,4)}, {ar(buf(T)+16,2)}, {vr(B+16,2)}, {vr(ACC+4*T,4)}"
        pend = grp(0) + grp(1) + grp(2) + list(late)
        issued = k = 0

        def issue(n):
            nonlocal issued
            for _ in range(n):
                if issued < len(pend): a(pend[issued]); issued += 1

        def mf(x):
            nonlocal k
            a(x); issue(per if per == 2 else (2 if k % 4 == 0 else 1))
            if k in at: a(at[k])
            k += 1
        issue(self.o.get('look', 12) if per == 2 else self.o.get('look1', 8))
        for g in range(3):
            for s in range(4):
                need = ng * g + 3 * per * (s + 1)
                a(f"s_waitcnt lgkmcnt({min(15, issued - need)})")
                for T in range(3 * g, 3 * g + 3):
                    d = vr(ACC + 4 * T, 4)
                    mf(f"v_mfma_f32_16x16x32_bf16 {d}, {ar(buf(T)+4*s,4)}, {vr(B+4*s,4)}, {'0' if s == 0 else d}")
                if s == 0 and g > 0:
                    for T in range(3 * g - 3, 3 * g): mf(rem(T))
                if g == 1 and s == 0: assert issued <= 2 * ng + 6 * per, "group 2 overwrites group 0 too early"
        issue(99)
        a(f"s_waitcnt lgkmcnt({len(late)})\ns_nop 2")
        for T in range(6, 9): a(rem(T))
        a("s_nop 7")

    def tr_reads(self, ad, rf=ar):
        def f(T, dst):
            out = []
            for s in range(4):
                for u in range(2):
                    out.append(f"ds_read_b64_tr_b16 {rf(dst+4*s+2*u,2)}, {vr(ad+u)} offset:{9216*s + 32*T}")
            out.append(f"ds_read_b64_tr_b16 {rf(dst+16,2)}, {vr(ad+2)} offset:{36864 + 32*T}")
            return out
        return f

    def row_reads(self, ad, sw=None):
        def f(T, dst):
            r = ad if sw is None or T == 8 else sw[T & 1]
            out = []
            for s in range(4):
                for u in range(2):
                    out.append(f"ds_read_b64 {ar(dst+4*s+2*u,2)}, {vr(r)} offset:{4864*T + 64*s + 32*u}")
            out.append(f"ds_read_b64 {ar(dst+16,2)}, {vr(r)} offset:{4864*T + 256}")
            return out
        return f

    def dma_rows(self, jobs, cpr, rstride, vo, vc, n_first, first_waves, lab):
        a = self.a
        mul = {18: 3641, 19: 3450}[cpr]
        dr, dc = 256 // cpr, 256 % cpr
        a(f"s_lshl_b32 {sr(S_T)}, {sr(S_W)}, 6")
        a(f"v_add_u32 {vr(vc)}, {sr(S_T)}, v0")
        a(f"v_mul_u32_u24 {vr(vo)}, {mul}, {vr(vc)}")
        a(f"v_lshrrev_b32 {vr(vo)}, 16, {vr(vo)}")
        a(f"v_mul_u32_u24 {vr(vc+1)}, {cpr}, {vr(vo)}")
        a(f"v_sub_u32 {vr(vc)}, {vr(vc)}, {vr(vc+1)}")
        a(f"v_mul_u32_u24 {vr(vo)}, {rstride}, {vr(vo)}")
        a(f"v_lshl_add_u32 {vr(vo)}, {vr(vc)}, 4, {vr(vo)}")
        a(f"s_lshl_b32 {sr(S_T)}, {sr(S_W)}, 10")
        a(f"v_mov_b32 {vr(vc+1)}, {rstride - 16*cpr}")
        for k in range(n_first):
            if k == n_first - 1:
                a(f"s_cmp_ge_u32 {sr(S_W)}, {first_waves}\ns_cbranch_scc1 {lab}")
            for srd, so, lb in jobs:
                a(f"s_add_u32 m0, {sr(S_T)}, {lb + 4096*k}")
                a("s_nop 0")
                a(f"buffer_load_dwordx4 {vr(vo)}, {sr(srd,4)}, {so} offen lds")
            if k < n_first - 1:
                a(f"v_add_u32 {vr(vc)}, {dc}, {vr(vc)}")
                a(f"v_cmp_le_u32 vcc, {cpr}, {vr(vc)}")
                a(f"v_add_u32 {vr(vo)}, {dr*rstride + 16*dc}, {vr(vo)}")
                a(f"v_subrev_u32 {vr(vc+2)}, {cpr}, {vr(vc)}")
                a(f"v_cndmask_b32 {vr(vc)}, {vr(vc)}, {vr(vc+2)}, vcc")
                a(f"v_cndmask_b32 {vr(vc+2)}, 0, {vr(vc+1)}, vcc")
                a(f"v_add_u32 {vr(vo)}, {vr(vo)}, {vr(vc+2)}")
        a.label(lab)

    def voff_table(self, dst, cpr, rstride, vc, step=256):
        a = self.a
        mul = {18: 29128, 19: 27595}[cpr]
        n = len(dst)
        a(f"s_mov_b32 {sr(S_T)}, {rstride - 16*cpr}")
        a(f"v_mul_u32_u24 {vr(dst[0])}, {mul}, {vr(vc)}")
        for k in range(1, n): a(f"v_add_u32 {vr(dst[k])}, {(step*k % cpr)*mul}, {vr(dst[0])}")
        for k in range(n): a(f"v_lshrrev_b32 {vr(dst[k])}, 19, {vr(dst[k])}")
        for k in range(n): a(f"v_mad_i32_i24 {vr(dst[k])}, {vr(dst[k])}, {sr(S_T)}, {vr(vc+1)}")

    def dma_lin(self, srd, soff, lb, v16, lab):
        a = self.a
        a(f"s_lshl_b32 {sr(S_T)}, {sr(S_W)}, 10")
        for k in range(11):
            if k == 10:
                a(f"s_cmp_ge_u32 {sr(S_W)}, 1\ns_cbranch_scc1 {lab}")
            a(f"s_add_u32 m0, {sr(S_T)}, {lb + 4096*k}")
            a(f"s_add_u32 {sr(S_T+1)}, {sr(S_T)}, {soff + 4096*k}")
            a(f"buffer_load_dwordx4 {vr(v16)}, {sr(srd,4)}, {sr(S_T+1)} offen lds")
        a.label(lab)

    def tr_addr(self, ad, base, swapped, t):
        a = self.a
        a(f"v_lshrrev_b32 {vr(t)}, 2, v0")
        a(f"v_mul_u32_u24 {vr(t)}, 288, {vr(t)}")
        a(f"v_and_b32 {vr(t+1)}, 3, v0")
        a(f"v_lshl_add_u32 {vr(t)}, {vr(t+1)}, 3, {vr(t)}")
        a(f"v_add_u32 {vr(ad+2)}, {base}, {vr(t)}")
        if swapped:
            a(f"v_bfe_u32 {vr(t)}, v0, 4, 1")
            a(f"v_mul_u32_u24 {vr(t)}, {16*288}, {vr(t)}")
            a(f"v_add_u32 {vr(ad)}, {vr(ad+2)}, {vr(t)}")
            a(f"v_sub_u32 {vr(ad+1)}, {vr(ad+2)}, {vr(t)}")
            a(f"v_add_u32 {vr(ad+1)}, {16*288}, {vr(ad+1)}")
        else:
            a(f"v_mov_b32 {vr(ad)}, {vr(ad+2)}")
            a(f"v_add_u32 {vr(ad+1)}, {16*288}, {vr(ad+2)}")

    def row_addr(self, ad, base, t):
        a = self.a
        a(f"v_and_b32 {vr(t)}, 15, v0")
        a(f"v_mul_u32_u24 {vr(t)}, 304, {vr(t)}")
        a(f"v_lshrrev_b32 {vr(t+1)}, 4, v0")
        a(f"v_lshl_add_u32 {vr(t)}, {vr(t+1)}, 3, {vr(t)}")
        a(f"v_add_u32 {vr(ad)}, {base}, {vr(t)}")

    def store_block(self, src, v16, v8, srd, soff, soff2, flags=""):
        a = self.a
        for s in range(4):
            a(f"buffer_store_dwordx4 {vr(src+4*s,4)}, {vr(v16)}, {sr(srd,4)}, {sr(soff)} offen offset:{1024*s} {flags}")
        a(f"buffer_store_dwordx2 {vr(src+16,2)}, {vr(v8)}, {sr(srd,4)}, {sr(soff2)} offen {flags}")

    def entry(self):
        a = self.a
        kernel_header(a, NAME)
        a(f"s_load_dwordx16 s[56:71], s[0:1], 0")
        a(f"s_load_dwordx8 s[72:79], s[0:1], 64")
        a(f"s_getpc_b64 {sr(S_W1,2)}")
        a.label("L_pf")
        a(f"s_cmp_lt_u32 s2, {NH}\ns_cbranch_scc1 L_wfuse")
        a(f"""s_mov_b32 {sr(S_W1+2)}, L_dummy-L_pf
        s_mov_b32 {sr(S_W1+3)}, 0x20000
        v_lshlrev_b32 v1, 4, v0
        s_bfe_u32 {sr(S_T)}, s2, 0x30003
        s_lshl_b32 {sr(S_T)}, {sr(S_T)}, 12
        buffer_load_dwordx4 v[252:255], v1, {sr(S_W1,4)}, 0 offen
        buffer_load_dwordx4 v[252:255], v1, {sr(S_W1,4)}, {sr(S_T)} offen
        s_cmp_ge_u32 s2, {NWG}
        s_cbranch_scc1 L_end""")
        if self.o.get("stamps"):
            a("s_memrealtime s[100:101]" if not self.o.get("cyc") else "s_memtime s[100:101]")
        self.mp = 2
        a(f"""v_lshrrev_b32 v1, 6, v0
        s_sub_u32 s2, s2, {NH}
        v_readfirstlane_b32 {sr(S_W)}, v1
        s_and_b32 {sr(S_H)}, s2, 1
        s_bfe_u32 {sr(S_B)}, s2, 0x10001
        s_lshr_b32 {sr(S_QB)}, s2, 2
        v_and_b32 v0, 63, v0
        v_lshlrev_b32 {vr(V_DMA)}, 4, v0""")

    def vm_since(self, mark):
        return sum(1 for l in self.a.lines[mark:] if l.strip().startswith("buffer_"))

    def phase_a(self):
        a, o = self.a, self.o
        XR, XF, XA, ACC, G_, PK = 16, 34, 146, 110, 16, 164
        B4, XD = 16, 88
        VS, VSW, VR4, MXA, MXR, L8, TRU, TRQ, TRQ8, RK, TM = 200, 204, 208, 212, 213, 214, 215, 218, 221, 224, 228
        VK, VU = list(range(182, 193)), list(range(193, 200)) + list(range(104, 108))
        AQ1 = 200
        t0, t1, t2 = 250, 251, 227
        T = S_T
        WV, W10, UOFF, M1, PUB, M3 = 72, 70, 71, 69, 68, 65
        a(f"""s_lshl_b32 {sr(T)}, {sr(S_QB)}, 1
        s_add_u32 {sr(S_TOWN)}, {sr(T)}, {sr(S_H)}
        s_xor_b32 {sr(S_TSND)}, {sr(S_TOWN)}, 1
        s_cmp_lt_u32 {sr(S_TOWN)}, {NT}
        s_cselect_b32 {sr(S_VAL)}, 1, 0
        s_cmp_lt_u32 {sr(S_W)}, 2
        s_cselect_b32 {sr(T+3)}, {sr(S_TSND)}, {sr(S_TOWN)}
        s_mul_i32 {sr(T)}, {sr(S_B)}, {NT}
        s_add_u32 {sr(S_TOWN)}, {sr(S_TOWN)}, {sr(T)}
        s_add_u32 {sr(S_TSND)}, {sr(S_TSND)}, {sr(T)}
        s_add_u32 {sr(T+1)}, {sr(T+3)}, {sr(T)}
        s_lshl_b32 {sr(T+1)}, {sr(T+1)}, 1
        s_and_b32 {sr(T+2)}, {sr(S_W)}, 1
        s_add_u32 {sr(T+2)}, {sr(T+1)}, {sr(T+2)}
        s_mul_i32 {sr(T+1)}, {sr(T+2)}, {16*288}
        s_mul_i32 {sr(S_LB)}, {sr(S_W)}, {BLK}
        s_add_u32 {sr(S_LB)}, {sr(S_LB)}, {L_XS}
        s_mov_b32 m0, {sr(S_LB)}
        s_mov_b32 {sr(S_X+2)}, 2304000
        s_mov_b32 {sr(S_X+3)}, 0x20000
        s_add_u32 {sr(S_CNT)}, {sr(T+1)}, 4096
        s_waitcnt lgkmcnt(0)
        s_mov_b32 {sr(S_X)}, s56
        s_mov_b32 {sr(S_X+1)}, s57""")
        for k in range(4): a(f"buffer_load_dwordx4 {vr(V_DMA)}, {sr(S_X,4)}, {sr(T+1)} offen offset:{1024*k} lds")
        a(f"s_add_u32 m0, {sr(S_LB)}, 4096\ns_mov_b32 exec_hi, 0\nbuffer_load_dwordx4 {vr(V_DMA)}, {sr(S_X,4)}, {sr(S_CNT)} offen lds\ns_mov_b32 exec_hi, -1")
        mx = len(a.lines)
        SQ, SK, SU = S_W2, S_W1, S_XA
        self.srd(SU, 66, 67, 82944)
        self.srd(SQ, 58, 59, 41472)
        self.srd(SK, 60, 61, 41472)
        a(f"s_lshr_b32 {sr(T)}, s2, 3\ns_lshl_b32 {sr(T)}, {sr(T)}, 12\ns_lshl_b32 {sr(W10)}, {sr(S_W)}, 10\ns_add_u32 {sr(T)}, {sr(T)}, {sr(W10)}")
        a(f"buffer_load_dwordx4 v[252:255], {vr(V_DMA)}, {sr(SU,4)}, {sr(T)} offen")
        for srd_, rot in ((SQ, 82), (SK, 41)):
            a(f"s_add_u32 {sr(T+1)}, {sr(T)}, {(128 - rot) * 1024}\ns_and_b32 {sr(T+1)}, {sr(T+1)}, {127 * 1024}")
            a(f"buffer_load_dwordx4 v[252:255], {vr(V_DMA)}, {sr(srd_,4)}, {sr(T+1)} offen")
        self.srd(S_OUT, 74, 75, 2304000)
        self.srd(S_DB, 76, 77, 256)
        self.srd(S_WS, 78, 79, WS_END)
        def tlb():
            a(f"v_lshlrev_b32 v249, 21, v0")
            for ch in o.get("tlbw", "wdo"): a(f"buffer_load_dword v252, v249, {sr(dict(w=S_WS, d=S_DB, o=S_OUT)[ch],4)}, 0 offen")
        if o.get("tlb", 1) == 1: tlb()
        if o.get("stamps"): a(f"s_mov_b64 {sr(S_ST,2)}, s[100:101]"); self.stnames.append("start"); self.nst = 1
        self.stamp("xiss")
        a(f"""s_cmp_lt_u32 {sr(T+3)}, {NT}
        s_cselect_b32 {sr(WV)}, 1, 0
        s_mov_b32 {sr(WV+1)}, {sr(T+2)}
        s_mul_i32 {sr(UOFF)}, {sr(S_H)}, 288
        s_cmp_eq_u32 {sr(S_W)}, 0
        s_cselect_b32 {sr(M1)}, 0, {L_DUMP}
        s_cmp_lt_u32 {sr(S_W)}, 3
        s_cselect_b32 {sr(M3)}, {sr(W10)}, {L_DUMP}""")
        half = lambda g_: "s_mov_b32 exec_hi, 0\n" + g_ + "\ns_mov_b32 exec_hi, -1"
        gu = [f"s_add_u32 m0, {sr(W10 if k < 10 else M1)}, {L_WU + 4096*k}\ns_add_u32 {sr(S_CNT)}, {sr(UOFF)}, {4096*k + 288*(256*k//18)}\nbuffer_load_dwordx4 {vr(VU[k])}, {sr(SU,4)}, {sr(S_CNT)} offen lds" for k in range(11)]
        gu[10] = half(gu[10])
        gq = [f"s_add_u32 m0, {sr(W10 if k < 10 else M1)}, {L_WQ + 4096*k}\ns_add_u32 {sr(S_CNT)}, {sr(W10)}, {4096*k}\nbuffer_load_dwordx4 {vr(V_DMA)}, {sr(SQ,4)}, {sr(S_CNT)} offen lds" for k in range(11)]
        gq[10] = half(gq[10])
        gk = [f"s_add_u32 m0, {sr(W10 if k < 10 else M3)}, {L_WK + 4096*k}\ns_mov_b32 {sr(S_CNT)}, {4096*k - 16*(256*k//19)}\nbuffer_load_dwordx4 {vr(VK[k])}, {sr(SK,4)}, {sr(S_CNT)} offen lds" for k in range(11)]
        a(f"s_lshl_b32 {sr(T)}, {sr(S_W)}, 6\nv_add_u32 {vr(t0)}, {sr(T)}, v0\nv_lshlrev_b32 {vr(t1)}, 4, {vr(t0)}")
        self.voff_table(VU, 18, 576, t0)
        npre = o.get("npre", 6)
        a.bg, a.every, a.cnt = gu[:npre], o.get("evpre", 14), 0
        self.voff_table(VK, 19, 288, t0)
        xa0, xa1, xa2 = TM, TM + 1, TM + 2
        a(f"""v_and_b32 {vr(t0)}, 15, v0
        v_lshrrev_b32 {vr(t1)}, 5, v0
        v_lshlrev_b32 {vr(t1)}, 3, {vr(t1)}
        v_xor_b32 {vr(t1)}, {vr(t0)}, {vr(t1)}
        v_lshlrev_b32 {vr(t1)}, 4, {vr(t1)}
        v_lshrrev_b32 {vr(t2)}, 4, v0
        v_lshl_add_u32 {vr(V_KA)}, {vr(t2)}, 9, {vr(t1)}
        v_lshrrev_b32 {vr(t1)}, 3, {vr(t0)}
        v_lshlrev_b32 {vr(t1)}, 1, {vr(t1)}
        v_xor_b32 {vr(t1)}, {vr(t2)}, {vr(t1)}
        v_lshl_add_u32 {vr(t1)}, {vr(t0)}, 2, {vr(t1)}
        v_lshlrev_b32 {vr(V_KA+1)}, 3, {vr(t1)}
        v_lshlrev_b32 {vr(L8)}, 3, v0
        v_lshlrev_b32 {vr(MXR)}, 4, {vr(t0)}
        v_add_u32 {vr(MXR)}, {L_MX}, {vr(MXR)}
        v_add_u32 {vr(MXA)}, {sr(S_W)}, {vr(t2)}
        v_and_b32 {vr(MXA)}, 3, {vr(MXA)}
        v_lshl_add_u32 {vr(MXA)}, {vr(MXA)}, 8, {vr(MXR)}
        s_lshl_b32 {sr(T)}, {sr(S_W)}, 2
        v_add_u32 {vr(MXA)}, {sr(T)}, {vr(MXA)}
        v_mul_u32_u24 {vr(xa2)}, 288, {vr(t0)}
        v_lshl_add_u32 {vr(xa2)}, {vr(t2)}, 3, {vr(xa2)}
        v_add_u32 {vr(xa2)}, {sr(S_LB)}, {vr(xa2)}
        v_and_b32 {vr(t1)}, 1, {vr(t2)}
        v_lshlrev_b32 {vr(t1)}, 5, {vr(t1)}
        v_add_u32 {vr(xa0)}, {vr(xa2)}, {vr(t1)}
        v_xor_b32 {vr(t1)}, 32, {vr(t1)}
        v_add_u32 {vr(xa1)}, {vr(xa2)}, {vr(t1)}
        s_mul_i32 {sr(S_LB)}, {sr(S_W)}, {TILE}
        v_lshrrev_b32 {vr(t0)}, 2, v0
        v_bfe_u32 {vr(t1)}, v0, 1, 1
        v_lshlrev_b32 {vr(t1)}, 3, {vr(t1)}
        v_xor_b32 {vr(t1)}, {vr(t0)}, {vr(t1)}
        v_lshlrev_b32 {vr(t1)}, 4, {vr(t1)}
        v_and_b32 {vr(t2)}, 3, v0
        v_lshl_add_u32 {vr(t1)}, {vr(t2)}, 9, {vr(t1)}
        v_and_b32 {vr(V_VA)}, 1, v0
        v_lshl_add_u32 {vr(t1)}, {vr(V_VA)}, 3, {vr(t1)}
        s_and_b32 {sr(T)}, {sr(S_W)}, 1
        s_lshl_b32 {sr(T)}, {sr(T)}, 12
        s_add_u32 {sr(T+1)}, {sr(T)}, {sr(S_LB)}
        s_xor_b32 {sr(T)}, {sr(T)}, 4096
        s_add_u32 {sr(T)}, {sr(T)}, {sr(S_LB)}
        v_add_u32 {vr(V_VA)}, {sr(T)}, {vr(t1)}
        v_add_u32 {vr(V_VB)}, {sr(T+1)}, {vr(t1)}
        v_xor_b32 {vr(V_VA+1)}, 8, {vr(V_VA)}
        v_xor_b32 {vr(V_VB+1)}, 8, {vr(V_VB)}
        v_lshrrev_b32 {vr(t1)}, 5, v0
        v_lshlrev_b32 {vr(t1)}, 1, {vr(t1)}
        v_xor_b32 {vr(t1)}, {vr(t2)}, {vr(t1)}
        v_lshl_add_u32 {vr(t1)}, {vr(t0)}, 2, {vr(t1)}
        v_lshlrev_b32 {vr(t1)}, 3, {vr(t1)}
        v_add_u32 {vr(V_VR)}, {sr(S_LB)}, {vr(t1)}
        v_add_u32 {vr(V_DMA+1)}, 4096, {vr(V_DMA)}
        v_add_u32 {vr(V_DMA+2)}, 8192, {vr(V_DMA)}""")
        self.tr_addr(TRU, L_WU, True, t0)
        a(f"s_lshl_b32 {sr(T)}, {sr(S_W)}, 6\ns_add_u32 {sr(T)}, {sr(T)}, {L_WQ - L_WU}")
        for k in range(3):
            a(f"v_add_u32 {vr(TRQ+k)}, {sr(T)}, {vr(TRU+k)}\nv_add_u32 {vr(TRQ8+k)}, {L_WQ - L_WU + 256}, {vr(TRU+k)}")
        self.row_addr(RK + 2, L_WK + 8 * 4864, t0)
        a(f"""s_mul_i32 {sr(T)}, {sr(S_W)}, {2*4864}
        s_sub_u32 {sr(T)}, {sr(T)}, {8*4864}
        v_add_u32 {vr(t1)}, {sr(T)}, {vr(RK+2)}
        v_bfe_u32 {vr(t0)}, v0, 2, 1
        v_mul_u32_u24 {vr(t0)}, 4864, {vr(t0)}
        v_add_u32 {vr(RK)}, {vr(t1)}, {vr(t0)}
        v_sub_u32 {vr(RK+1)}, {vr(t1)}, {vr(t0)}""")
        for j in range(4):
            a(f"""s_add_u32 {sr(T)}, {sr(S_W)}, {j}
            s_and_b32 {sr(T)}, {sr(T)}, 3
            s_lshl_b32 {sr(T+1)}, {sr(T)}, 12
            s_add_u32 {sr(T+1)}, {sr(T+1)}, {L_XX}
            v_add_u32 {vr(VS+j)}, {sr(T+1)}, {vr(V_DMA)}
            s_lshl_b32 {sr(T+1)}, {sr(T)}, 9
            s_add_u32 {sr(T+1)}, {sr(T+1)}, {L_XR}
            v_add_u32 {vr(VR4+j)}, {sr(T+1)}, {vr(L8)}
            v_add_u32 {vr(VSW+j)}, {sr(W10)}, {vr(VS+j)}""")
        a(f"""s_sub_u32 {sr(T+2)}, 63, {sr(S_H)}
        s_add_u32 {sr(T+3)}, {sr(S_W)}, 60
        s_cmp_ge_u32 {sr(T+3)}, {sr(T+2)}
        s_cselect_b32 {sr(S_DUM)}, 4, 99
        s_mov_b32 {sr(S_REDO)}, 0
        s_mov_b32 {sr(S_TOFF)}, {sr(S_LB)}
        s_sub_u32 {sr(T)}, {sr(S_TOWN)}, 63
        s_mul_i32 {sr(T+1)}, {sr(S_B)}, {NT}
        s_cmp_ge_i32 {sr(T)}, {sr(T+1)}
        s_cselect_b32 {sr(T)}, 64, 0
        s_lshl_b32 {sr(T+1)}, {sr(S_B)}, 7
        s_add_u32 {sr(PUB)}, {sr(T)}, {sr(T+1)}
        s_cmp_eq_u32 {sr(S_W)}, 2
        s_cselect_b32 {sr(T)}, {sr(S_VAL)}, 0
        s_cmp_eq_u32 {sr(T)}, 1
        s_cselect_b32 {sr(PUB)}, {sr(PUB)}, 0x40000000
        s_add_u32 {sr(T+1)}, {sr(T+1)}, {DB_CB}
        v_mov_b32 {vr(self.VPL)}, {sr(T+1)}""")
        a.flush()
        if o.get("tlb", 1) == 2: tlb()
        self.stamp("pre")
        if o.get("es", 0) == 0: self.epi_setup()
        self.stamp("es")
        nx = self.vm_since(mx)
        if o.get("touch", 1):
            a(f"""s_mov_b64 exec, 0
            s_cmp_eq_u32 {sr(S_W)}, 0
            s_cbranch_scc1 L_tr
            s_cmp_eq_u32 {sr(S_W)}, 1
            s_cbranch_scc1 L_t0
            s_cmp_eq_u32 {sr(S_W)}, 2
            s_cbranch_scc1 L_t1
            s_branch L_t2""")
            self.rare()
            a.raw(".p2align 12")
            a.label("L_tr")
            a("s_mov_b64 exec, -1")
        nlate = o.get("nlate", 0)
        for g_ in gu[npre:npre + nlate]: a(g_)
        a(f"s_waitcnt vmcnt({nx + nlate})")
        self.stamp("xarr")
        for s in range(4):
            a(f"ds_read_b64 {vr(XR+4*s,2)}, {vr(xa0)} offset:{64*s}\nds_read_b64 {vr(XR+4*s+2,2)}, {vr(xa1)} offset:{64*s}")
        a(f"ds_read_b64 {vr(XR+16,2)}, {vr(xa2)} offset:256")
        a(f"""s_and_b32 {sr(T)}, {sr(S_W)}, 1
        s_mul_i32 {sr(T+2)}, {sr(S_TOWN)}, {TILE}
        s_cmp_eq_u32 {sr(S_VAL)}, 1
        s_cselect_b32 {sr(T+2)}, {sr(T+2)}, 0x40000000
        s_lshl_b32 {sr(T+3)}, {sr(T)}, 8
        s_add_u32 {sr(T+3)}, {sr(T+3)}, {sr(T+2)}
        s_add_u32 {sr(T+4)}, {sr(T+3)}, 4096
        s_lshl_b32 {sr(T+5)}, {sr(T)}, 9
        s_add_u32 {sr(T+5)}, {sr(T+5)}, {sr(T+2)}
        s_add_u32 {sr(T+5)}, {sr(T+5)}, 8192
        s_waitcnt lgkmcnt(0)""")
        wl = gq + gk
        a.bg, a.every, a.cnt = gu[npre + nlate:] + [wl.pop(0) for _ in range(o.get("nql", 4))], o.get("evln", 10), 0
        self.ln_packed(XR, XF, XA, TM)
        a.flush()
        self.stamp("ln")
        a(f"s_cmp_lt_u32 {sr(S_W)}, 2\ns_cbranch_scc1 L_nop")
        for s in range(4):
            a(f"buffer_store_dwordx4 {vr(XA+4*s,4)}, {vr(V_KA)}, {sr(S_WS,4)}, {sr(T+3+(s>>1))} offen offset:{2048*(s&1)} sc1")
        a(f"buffer_store_dwordx2 {vr(XA+16,2)}, {vr(V_KA+1)}, {sr(S_WS,4)}, {sr(T+5)} offen sc1\ns_waitcnt vmcnt({5 + o.get('nql', 4)})\ns_branch L_bar1")
        a.label("L_nop")
        if o.get("touch", 1):
            a(f"s_mov_b64 exec, 0\ns_cmp_eq_u32 {sr(S_W)}, 0\ns_cbranch_scc1 L_t3\ns_branch L_t4")
            a.label("L_tr2")
            a("s_mov_b64 exec, -1")
        a(f"s_waitcnt vmcnt({o.get('nql', 4)})")
        a.label("L_bar1")
        self.stamp("pub")
        xw = [f"ds_write_b128 {vr(VS)}, {vr(XA+4*s,4)} offset:{1024*s}" for s in range(4)] + [f"ds_write_b64 {vr(VR4)}, {vr(XA+16,2)}"]
        self.stamp("tch")
        PA = 249
        a(f"""v_add_u32 {vr(V_KA)}, {sr(S_LB)}, {vr(V_KA)}
        v_add_u32 {vr(V_KA+1)}, {sr(S_LB)}, {vr(V_KA+1)}
        s_lshl1_add_u32 {sr(T)}, {sr(S_B)}, {sr(S_H)}
        s_lshl_b32 {sr(T)}, {sr(T)}, 6
        s_cmp_eq_u32 {sr(S_W)}, 0
        s_cselect_b32 {sr(T)}, {sr(T)}, 0x40000000
        v_mov_b32 {vr(PA)}, {sr(T)}
        {self.xa_srd()}
        s_waitcnt lgkmcnt(0)""")
        self.stamp("w1")
        a("s_barrier")
        self.stamp("bar1")
        poll = lambda r: f"buffer_load_dword {vr(r)}, {vr(PA)}, {sr(S_DB,4)}, 0 offen sc1"

        def gate(lab, r, word, need, younger):
            a(f"s_mov_b32 {sr(T+2)}, 0\ns_waitcnt vmcnt({younger})")
            a.label(lab)
            a(f"""v_readfirstlane_b32 {sr(T+3)}, {vr(r+word)}
            s_add_u32 {sr(T+2)}, {sr(T+2)}, 1
            s_cmp_ge_u32 {sr(T+3)}, {need}
            s_cbranch_scc1 {lab}_ok
            {poll(r)}
            s_waitcnt vmcnt(0)
            s_cmp_lt_u32 {sr(T+2)}, 0x40000
            s_cbranch_scc1 {lab}""")
            a.label(lab + "_ok")

        H, G_, UG, MS, CL = 16, 52, 208, 110, 104
        nup = o.get("nup", 12)
        at = {o.get("u0", 6) + o.get("usp", 3) * i: wl.pop(0) for i in range(nup)}
        for i in range(5): at[i] = xw[i]
        if o.get("es", 0) == 1:
            n_ = len(a.lines); self.epi_setup()
            el = [l.strip() for l in a.lines[n_:]]; del a.lines[n_:]
            for k in range(5, 42):
                if k in at: continue
                c_ = 0
                while el and c_ < o.get("esn", 2):
                    x = el.pop(0); at[k] = at.get(k, "") + x + "\n"; c_ += 1 if x.startswith("v_") else 0.5
            self.es_left = el
        self.gemm(self.tr_reads(TRU), XA, H, None, at=at)
        if o.get("es", 0) == 1:
            for x in self.es_left: a(x)
        self.stamp("up")
        last = lambda srd: max(i for i, l in enumerate(a.lines) if l.strip().startswith("buffer_load") and sr(srd, 4) in l) + 1
        assert not any(sr(SQ, 4) in x for x in wl)
        a(f"v_mov_b32 {vr(t0)}, {sr(PUB)}\nv_mov_b32 {vr(t1)}, 1\ns_waitcnt vmcnt({self.vm_since(last(SQ))}) lgkmcnt(0)\ns_barrier")
        a(f"s_mov_b64 exec, 1\nbuffer_atomic_add {vr(t1)}, {vr(t0)}, {sr(S_DB,4)}, 0 offen sc1\ns_mov_b64 exec, -1")
        self.stamp("barG")

        def a_tr(t):
            ad, off = (TRQ, 32 * t) if t < 2 else (TRQ8, 0)
            return [f"ds_read_b64_tr_b16 {ar(AQ1+18*t+4*s+2*u,2)}, {vr(ad+u)} offset:{9216*s + off}" for s in range(4) for u in range(2)] + \
                   [f"ds_read_b64_tr_b16 {ar(AQ1+18*t+16,2)}, {vr(ad+2)} offset:{36864 + off}"]

        def a_row(t):
            off = 4864 * t if t < 2 else 0
            return [f"ds_read_b64 {ar(A_Q+18*t+4*s+2*u,2)}, {vr(RK+t)} offset:{off + 64*s + 32*u}" for s in range(4) for u in range(2)] + \
                   [f"ds_read_b64 {ar(A_Q+18*t+16,2)}, {vr(RK+t)} offset:{off + 256}"]
        bq = lambda j, d=0: [f"ds_read_b128 {ar(18*j+4*s,4)}, {vr(VS+j)} offset:{d + 1024*s}" for s in range(4)] + [f"ds_read_b64 {ar(18*j+16,2)}, {vr(VR4+j)} offset:{d}"]

        def post(u, scale, d):
            L = [f"v_mul_f32 {vr(ACC+4*u+i)}, {sr(T+4)}, {vr(ACC+4*u+i)}" for i in range(4)] if scale else []
            L += [f"v_cvt_pk_bf16_f32 {vr(PK + (4*(u&3) + 2*(u>>2) if u < 8 else 16) + h)}, {vr(ACC+4*u+2*h)}, {vr(ACC+4*u+2*h+1)}" for h in range(2)]
            if 4 <= u < 8: L.append(f"ds_write_b128 {vr(VSW+u-4)}, {vr(PK+4*(u-4),4)} offset:{d}")
            if u == 8: L.append(f"ds_write_b64 {vr(VR4)}, {vr(PK+16,2)} offset:{d}")
            return L
        xd = [f"ds_read_b128 {vr(XD+4*j,4)}, {vr(VSW+j)}" for j in range(4)]
        self.gemm_u(AQ1, ar, [("v", XA), ("a", 18), ("a", 36), ("a", 54)], ACC, a_tr, lambda j: bq(j) if j else None, lambda u: post(u, False, L_QD),
                    vm_items=wl, other=xd, vmsp=o.get("vmsp", 3))
        self.stamp("g1")
        for i in range(4): a(f"v_mov_b32 {vr(CL+i)}, -1")
        a(f"s_lshl2_add_u32 {sr(T+2)}, s2, {sr(S_W)}\ns_mul_i32 {sr(T+2)}, {sr(T+2)}, 2560\ns_add_u32 {sr(T+2)}, {sr(T+2)}, {WS_IB}")
        a(f"s_mov_b32 {sr(T+4)}, {f32(LOG2E / 12.0)}\ns_waitcnt vmcnt({self.vm_since(last(SK))}) lgkmcnt(0)\ns_barrier")
        clr = [f"buffer_store_dwordx4 {vr(CL,4)}, {vr(V_DMA)}, {sr(S_WS,4)}, {sr(T+2)} offen sc1",
               f"buffer_store_dwordx4 {vr(CL,4)}, {vr(V_DMA)}, {sr(S_WS,4)}, {sr(T+2)} offen offset:1024 sc1",
               f"buffer_store_dwordx2 {vr(CL,2)}, {vr(L8)}, {sr(S_WS,4)}, {sr(T+2)} offen offset:2048 sc1"]
        self.stamp("bar2")
        self.gemm_u(A_Q, ar, [("a", 18 * j) for j in range(4)], ACC, a_row, lambda j: bq(j, L_QD), lambda u: post(u, True, 0), vm_items=[poll(252)] + clr, vm0=o.get("pg", 4), vmsp=o.get("csp", 8))
        self.stamp("g2")
        p = lambda r: vr(r, 2)
        CC = TM
        for j in range(4): a(f"v_dot2_f32_bf16 {vr(CC+j)}, {vr(PK+4*j)}, {vr(XD+4*j)}, 0")
        for i in range(2): a(f"v_dot2_f32_bf16 {vr(CC)}, {vr(PK+16+i)}, {vr(XA+16+i)}, {vr(CC)}")
        for i in range(1, 4):
            for j in range(4): a(f"v_dot2_f32_bf16 {vr(CC+j)}, {vr(PK+4*j+i)}, {vr(XD+4*j+i)}, {vr(CC+j)}")
        QE = TRQ
        a(f"""s_xor_b32 {sr(T+1)}, {sr(self.NB)}, 1
        v_add_u32 {vr(t0)}, {L_XX}, {vr(V_DMA)}
        v_lshl_add_u32 {vr(QE)}, {sr(T+1)}, 12, {vr(t0)}
        v_lshl_add_u32 {vr(QE+1)}, {sr(self.NB)}, 12, {vr(t0)}""")
        self.treduce(CC)
        a(f"""ds_write_b32 {vr(MXA)}, {vr(CC)}
        v_add_u32 {vr(t0)}, {L_XR}, {vr(L8)}
        v_lshl_add_u32 {vr(QE+2)}, {sr(T+1)}, 9, {vr(t0)}
        v_lshl_add_u32 {vr(QE+3)}, {sr(self.NB)}, 9, {vr(t0)}
        v_lshl_add_u32 {vr(QE+4)}, {sr(T+1)}, 8, {vr(MXR)}
        v_lshl_add_u32 {vr(QE+5)}, {sr(self.NB)}, 8, {vr(MXR)}
        s_sub_u32 {sr(T+5)}, 63, {sr(S_H)}
        s_lshr_b32 {sr(T+6)}, s2, 3
        s_lshl_b32 {sr(T+6)}, {sr(T+6)}, 12
        s_add_u32 {sr(T+6)}, {sr(T+6)}, {sr(W10)}
        s_cmp_lg_u32 {sr(S_W)}, 0
        s_cbranch_scc1 L_ga_ok""")
        gate("L_ga", 252, 0, sr(T + 5), 3)
        a("s_waitcnt lgkmcnt(0)\ns_barrier")
        self.stamp("bar3")
        c1 = -2.0 * math.sqrt(2.0 / math.pi) * LOG2E
        c2 = c1 * 0.044715
        qrd = [f"ds_read_b128 {vr(MS+4*qb,4)}, {vr(QE+4+(qb&1))} offset:{512*(qb>>1)}" for qb in range(4)]
        for qb in range(4):
            qrd += [f"ds_read_b128 {ar(A_Q+18*qb+4*s,4)}, {vr(QE+(qb&1))} offset:{8192*(qb>>1) + 1024*s}" for s in range(4)]
            qrd.append(f"ds_read_b64 {ar(A_Q+18*qb+16,2)}, {vr(QE+2+(qb&1))} offset:{1024*(qb>>1)}")
        tg = self.tile_groups(0) + self.tile_groups(1) + self.tile_groups(2)[:8]
        n0 = o.get("n0", 3)
        for k in range(o.get("tpf", 0)):
            a(f"s_add_u32 {sr(T+7)}, {sr(T+6)}, {o.get('tpf0', 4*TILE) + 131072*k}\nbuffer_load_dwordx4 v[252:255], {vr(V_DMA)}, {sr(S_XA,4)}, {sr(T+7)} offen")
        for x in tg[:n0]: a(x)
        a(f"v_mov_b32 {vr(CC)}, {f32(c1)}\nv_mov_b32 {vr(CC+2)}, {f32(c2)}\nv_mov_b32 {vr(CC+4)}, 1.0")
        nq1, nt1 = o.get("nq1", 8), o.get("nt1", 5)
        bgl = []
        for i in range(max(nq1 // 2, nt1)):
            if 2 * i < nq1: bgl.append(qrd[2 * i] + "\n" + qrd[2 * i + 1])
            if i < nt1: bgl.append(tg[n0 + i])
        tg, qrd = tg[n0 + nt1:], qrd[nq1:]
        a.bg, a.every, a.cnt = bgl, 54 // (len(bgl) + 1), 0
        for i in range(18): a(f"v_pk_mul_f32 {p(G_+2*i)}, {p(H+2*i)}, {p(H+2*i)}")
        for i in range(18): a(f"v_pk_fma_f32 {p(G_+2*i)}, {p(G_+2*i)}, {p(CC+2)}, {p(CC)} op_sel_hi:[1,0,0]")
        for i in range(18): a(f"v_pk_mul_f32 {p(G_+2*i)}, {p(G_+2*i)}, {p(H+2*i)}")
        a.flush()
        self.stamp("ge1")
        esp = o.get("esp", 4)
        for i in range(36):
            a(f"v_exp_f32 {vr(G_+i)}, {vr(G_+i)}")
            if i % esp == 1 and tg: a(tg.pop(0))
            if i % 8 == 3 and qrd: a(qrd.pop(0)); a(qrd.pop(0))
        self.stamp("ge2")
        for i in range(18): a(f"v_pk_add_f32 {p(G_+2*i)}, {p(G_+2*i)}, {p(CC+4)} op_sel_hi:[1,0]")
        for i in range(36):
            a(f"v_rcp_f32 {vr(G_+i)}, {vr(G_+i)}")
            if i % esp == 1 and tg: a(tg.pop(0))
            if i % 8 == 3 and qrd: a(qrd.pop(0)); a(qrd.pop(0))
        assert not tg and not qrd
        idx = [i for i, l in enumerate(a.lines) if l.strip().startswith("buffer_load") and l.rstrip().endswith("lds")]
        m_t0, m_t1 = idx[-18] + 1, idx[-9] + 1
        for i in range(18): a(f"v_pk_mul_f32 {p(H+2*i)}, {p(G_+2*i)}, {p(H+2*i)}")
        a(f"""s_mul_i32 {sr(T)}, {sr(WV+1)}, {BLK}
        s_cmp_eq_u32 {sr(S_H)}, 1
        s_cbranch_scc1 L_ln2
        s_add_u32 {sr(T)}, {sr(T)}, {WS_U}""")
        for i in range(18): a(f"v_cvt_pk_bf16_f32 {vr(UG+i)}, {vr(H+2*i)}, {vr(H+2*i+1)}")
        a("s_branch L_ug")
        a.label("L_ln2")
        a(f"s_add_u32 {sr(T)}, {sr(T)}, {WS_G}")
        self.ln_f32(H, UG, TM)
        a.label("L_ug")
        self.stamp("ge3")
        a(f"""s_cmp_eq_u32 {sr(WV)}, 1
        s_cselect_b32 {sr(S_UG)}, {sr(T)}, 0x40000000
        s_waitcnt vmcnt({self.vm_since(m_t0)}) lgkmcnt(0)""")
        for x in self.k_reads(0, V_V): a(x)
        self.ugs = [f"buffer_store_dwordx4 {vr(UG+4*s,4)}, {vr(V_DMA)}, {sr(S_WS,4)}, {sr(S_UG)} offen offset:{1024*s} sc1" for s in range(4)]
        self.ugs.append(f"buffer_store_dwordx2 {vr(UG+16,2)}, {vr(self.VL8)}, {sr(S_WS,4)}, {sr(S_UG)} offen sc1")
        for qb in range(4): a(f"v_pk_add_f32 {p(MS+4*qb)}, {p(MS+4*qb)}, {p(MS+4*qb+2)} neg_lo:[1,1] neg_hi:[1,1]")
        for qb in range(4): a(f"v_add_f32 {vr(self.MK+qb)}, {vr(MS+4*qb)}, {vr(MS+4*qb+1)}")
        a(f"v_lshlrev_b32 {vr(t1)}, 8, v0\nv_lshlrev_b32 v231, 2, v0\nv_add_u32 v231, {L_PC}, v231\nds_write_b32 v231, {vr(t1)}")
        self.loop_init(False)
        self.n_t1 = self.vm_since(m_t1)
        self.stamp("ug")

    def loop_init(self, part):
        a = self.a
        if part:
            for qb in range(4):
                for i in range(4): a(f"v_mov_b32 {vr(V_CI+4*qb+i)}, {vr(self.MK+qb)}")
            return
        for k in range(7): a(f"v_add_u32 {vr(V_HI+k)}, {2*SLOT}, {vr(V_KA+k if k < 5 else V_VB+k-5)}")
        a(f"v_add_u32 {vr(self.VS0)}, {sr(S_LB)}, {vr(V_DMA)}\nv_add_u32 {vr(self.VS0R)}, {sr(S_LB)}, {vr(self.VL8)}\ns_mov_b32 {sr(S_CNT)}, 0\ns_mov_b32 {sr(S_INC)}, {4*TILE}")
        for i in range(4): a(f"v_mov_b32 {vr(V_L+i)}, 0")
        a(f"v_mov_b32 {vr(self.VPL+1)}, 1\nv_lshlrev_b32 v231, 2, v0\nv_add_u32 v231, {L_PC}, v231")

    def head(self):
        a, o = self.a, self.o
        a.label("L_go")
        self.loop_init(True)
        a("s_waitcnt lgkmcnt(0)\ns_barrier")
        self.stamp("bar5")
        base = self.qk_mfmas(0)
        pick = lambda s_, kb, qb: base[8 * s_ + 4 * kb + qb].replace(vr(V_K + 8 * s_ + 4 * kb, 4) + ",", vr(V_V + 8 * s_ + 4 * kb, 4) + ",").replace(vr(V_K + 32 + 2 * kb, 2) + ",", vr(V_V + 32 + 2 * kb, 2) + ",")
        mf, fin = [], {}
        for qb, s_ in [(0, 0), (0, 1), (0, 2), (0, 3), (1, 0), (1, 1), (0, 4), (1, 2), (1, 3), (2, 0), (2, 1), (1, 4), (2, 2), (2, 3), (3, 0), (3, 1), (2, 4),
                       (3, 2), (3, 3), (3, 4)]:
            for kb in range(2):
                fin[qb, kb] = len(mf)
                mf.append(("s_nop 3\n" if (qb, s_, kb) == (3, 4, 0) else "") + pick(s_, kb, qb))
        enew = [e[1] for g in range(40, 76) for e in self.gaps[g] if e[0] == "E"]
        items = self.e_items(0, enew, lambda qb, j: 0, lambda qb: 999)
        for it, e in zip(items, enew):
            if e[0] == "e": it["am"] = fin[e[1], e[2] // 4]
        dm = []
        for k, (slot, j) in enumerate([(2, 8)] + [(3, j) for j in range(9)]):
            g_ = 1 + o.get("hsp", 4) * k
            if j % 4 == 0: dm.append(dict(t=f"s_add_u32 m0, {sr(S_LB)}, {slot*SLOT + 4096*(j//4)}", c=0, lo=g_ - 1, hi=g_ - 1))
            dm.append(dict(t=f"buffer_load_dwordx4 {vr(V_DMA + j//4)}, {sr(S_XA,4)}, {sr(S_TOFF)} offen offset:{1024*(j%4)} lds", c=8, lo=g_, hi=g_))
            if j == 8: dm.append(dict(t=f"s_add_u32 {sr(S_TOFF)}, {sr(S_TOFF)}, {4*TILE}", c=0, lo=g_ + 1, hi=g_ + 1))
        nh = o.get("ugh", 2)
        for k in range(nh): dm.append(dict(t=self.ugs[k], c=8, lo=3 + 16 * k, hi=3 + 16 * k))
        a(f"s_waitcnt vmcnt({self.n_t1})")
        left = self.pack(mf, items + dm + [dict(t=x, c=4, lo=i // 2, nds=2) for i, x in enumerate(self.k_reads(1))])
        print("head overflow", self.over, "left", len(left))
        left.sort(key=lambda x: not x.startswith("v_exp"))
        last = a.lines[-1].strip()
        for x in left:
            if last.startswith("v_exp") and not x.startswith("v_exp") and (last.split()[1].rstrip(",") + ",") in (x + ","): a("s_nop 0")
            a(x); last = x
        a("s_waitcnt lgkmcnt(0)")

    def tile_groups(self, slot):
        out = []
        for j in range(9):
            g = ""
            if j % 4 == 0: g = f"s_add_u32 m0, {sr(S_LB)}, {slot*SLOT + 4096*(j//4)}\ns_nop 0\n"
            g += f"buffer_load_dwordx4 {vr(V_DMA + j//4)}, {sr(S_XA,4)}, {sr(S_TOFF)} offen offset:{1024*(j%4)} lds"
            if j == 8: g += f"\ns_add_u32 {sr(S_TOFF)}, {sr(S_TOFF)}, {4*TILE}"
            out.append(g)
        return out

    def first_tiles(self):
        pass

    def wfuse(self):
        a = self.a
        BF, ACC, AF, TM, AD = 88, 108, 144, 208, 240
        LA, LB_, LM = 0, 44032, 88064
        T = S_T
        a.label("L_wfuse")
        a(f"v_lshrrev_b32 v1, 6, v0\nv_and_b32 v0, 63, v0\nv_readfirstlane_b32 {sr(S_W)}, v1\nv_lshlrev_b32 {vr(V_DMA)}, 4, v0\ns_waitcnt lgkmcnt(0)")
        self.srd(S_DB, 76, 77, 256)
        self.srd(S_WS, 78, 79, WS_END)
        self.wf0 = 0
        self.srd(S_X, 72, 73, 82944)
        self.srd(S_W2, 62, 63, 41472)
        a(f"""s_cmp_eq_u32 s2, {self.wf0}
        s_cselect_b32 {sr(S_W1)}, s64, s70
        s_cselect_b32 {sr(S_W1+1)}, s65, s71
        s_mov_b32 {sr(S_W1+2)}, 41472
        s_mov_b32 {sr(S_W1+3)}, 0x20000
        s_cselect_b32 {sr(T+4)}, 0, 41472""")
        self.dma_rows([(S_W1, "0", LA), (S_W2, "0", LB_)], 19, 288, TM + 4, TM + 5, 11, 3, "L_wf1")
        a(f"s_lshl_b32 {sr(T)}, {sr(S_W)}, 10\ns_add_u32 {sr(T+2)}, {sr(T)}, {sr(T+4)}")
        for k in range(11):
            if k == 10: a(f"s_cmp_ge_u32 {sr(S_W)}, 1\ns_cbranch_scc1 L_wf2")
            a(f"s_add_u32 m0, {sr(T)}, {LM + 4096*k}\ns_add_u32 {sr(T+1)}, {sr(T+2)}, {4096*k}")
            a(f"buffer_load_dwordx4 {vr(V_DMA)}, {sr(S_X,4)}, {sr(T+1)} offen lds")
        a.label("L_wf2")
        self.srd(S_DW, 68, 69, 864)
        a(f"""v_and_b32 {vr(TM)}, 15, v0
        v_lshlrev_b32 {vr(TM+2)}, 4, {vr(TM)}
        v_lshlrev_b32 {vr(TM)}, 1, {vr(TM)}
        v_bfe_u32 {vr(TM+3)}, v0, 4, 1
        v_lshl_add_u32 {vr(TM+1)}, {vr(TM+3)}, 7, {vr(TM)}
        v_lshl_add_u32 {vr(TM+2)}, {vr(TM+3)}, 11, {vr(TM+2)}
        v_and_b32 {vr(TM+3)}, 1, v0
        v_lshlrev_b32 {vr(TM+3)}, 4, {vr(TM+3)}
        v_bfe_i32 {vr(TM+4)}, v0, 1, 1
        v_not_b32 {vr(TM+5)}, {vr(TM+4)}""")
        for k in range(3):
            for i in range(5): a(f"buffer_load_ushort {vr(16+5*k+i)}, {vr(TM+1 if i < 4 else TM)}, {sr(S_DW,4)}, 0 offen offset:{288*k + (32*i if i < 4 else 256)}")
        a(f"s_mov_b32 {sr(T+1)}, {WS_DWF}\ns_waitcnt vmcnt(0)")
        for f in range(15):
            a(f"v_lshlrev_b32 {vr(16+f)}, {vr(TM+3)}, {vr(16+f)}\nv_and_b32 {vr(32+2*f)}, {vr(TM+5)}, {vr(16+f)}\nv_and_b32 {vr(33+2*f)}, {vr(TM+4)}, {vr(16+f)}")
        for r_ in range(8): a(f"buffer_store_dwordx{4 if r_ < 7 else 2} {vr(32+4*r_, 4 if r_ < 7 else 2)}, {vr(TM+2)}, {sr(S_WS,4)}, {sr(T+1)} offen offset:{256*r_} sc1")
        self.tr_addr(AD, LM, False, TM + 8)
        self.row_addr(AD + 3, LA, TM + 8)
        a(f"v_add_u32 {vr(AD+5)}, {LB_}, {vr(AD+3)}")
        a(f"v_lshlrev_b32 {vr(AD+4)}, 3, v0")
        a(f"""s_lshr_b32 {sr(T)}, {sr(S_W)}, 1
        s_lshl_b32 {sr(T)}, {sr(T)}, 6
        s_and_b32 {sr(T+1)}, {sr(S_W)}, 1
        s_lshl_b32 {sr(T+1)}, {sr(T+1)}, 3
        s_add_u32 {sr(T)}, {sr(T)}, {sr(T+1)}
        v_and_b32 {vr(AD+6)}, 3, v0
        v_lshlrev_b32 {vr(AD+6)}, 3, {vr(AD+6)}
        v_add_u32 {vr(AD+7)}, {sr(T)}, {vr(AD+6)}""")
        for k in range(3): a(f"v_add_u32 {vr(AD+k)}, {vr(AD+7)}, {vr(AD+k)}")
        a(f"s_mov_b32 {sr(S_CNT)}, {sr(S_W)}")
        a("s_waitcnt vmcnt(0)\ns_barrier")
        a.label("L_wfl")
        for s in self.tr_reads(AD, vr)(0, BF): a(s)
        a("s_waitcnt lgkmcnt(0)")
        self.gemm(self.row_reads(AD + 3), BF, ACC, AF)
        for i in range(18): a(f"v_cvt_pk_bf16_f32 {vr(BF+i)}, {vr(ACC+2*i)}, {vr(ACC+2*i+1)}")
        a(f"s_cmp_eq_u32 s2, {self.wf0}\ns_cbranch_scc0 L_wf3")
        self.gemm(self.row_reads(AD + 5), BF, ACC, AF)
        for i in range(18): a(f"v_cvt_pk_bf16_f32 {vr(BF+i)}, {vr(ACC+2*i)}, {vr(ACC+2*i+1)}")
        a.label("L_wf3")
        a(f"""s_mul_i32 {sr(T)}, {sr(S_CNT)}, {BLK}
        s_add_u32 {sr(T)}, {sr(T)}, {sr(T+4)}
        s_add_u32 {sr(T)}, {sr(T)}, {WS_WF}
        s_add_u32 {sr(T+1)}, {sr(T)}, 4096""")
        self.store_block(BF, V_DMA, AD + 4, S_WS, T, T + 1, "sc1")
        for k in range(3): a(f"v_add_u32 {vr(AD+k)}, 128, {vr(AD+k)}")
        a(f"s_add_u32 {sr(S_CNT)}, {sr(S_CNT)}, 4\ns_cmp_lt_u32 {sr(S_CNT)}, 8\ns_cbranch_scc1 L_wfl")
        for k in range(3): a(f"v_sub_u32 {vr(AD+k)}, {vr(AD+k)}, {vr(AD+6)}")
        a(f"s_cmp_eq_u32 {sr(S_CNT)}, 8\ns_cbranch_scc1 L_wfl")
        a(f"""s_waitcnt vmcnt(0)
        s_barrier
        s_cmp_lg_u32 {sr(S_W)}, 0
        s_cbranch_scc1 L_end
        s_mov_b64 exec, 1
        v_mov_b32 {vr(TM)}, 1
        v_mov_b32 {vr(TM+1)}, {DB_CW}
        buffer_atomic_add {vr(TM)}, {vr(TM+1)}, {sr(S_DB,4)}, 0 offen sc1
        v_mov_b32 {vr(TM+1)}, {DB_CW + 128}
        buffer_atomic_add {vr(TM)}, {vr(TM+1)}, {sr(S_DB,4)}, 0 offen sc1
        s_endpgm""")

    def dump_stamps(self):
        a = self.a
        if self.o.get("echo"):
            if self.o["echo"][0] == "skew":
                a(f"v_mov_b32 v16, 4\nbuffer_load_dword v17, v16, {sr(S_DB,4)}, 0 offen sc1\ns_waitcnt vmcnt(0)\nv_readfirstlane_b32 s98, v17\ns_not_b32 s98, s98")
                x, y = 98, S_ST + 2 * self.stnames.index(self.o["echo"][1])
            else:
                x, y = [S_ST + 2 * self.stnames.index(n) for n in self.o["echo"]]
            lo, hi = self.o.get("echo_ids", (0, 999))
            a(f"""s_cmp_eq_u32 {sr(S_VAL)}, 0
            s_cbranch_scc1 L_end
            s_cmp_lt_u32 s2, {lo}
            s_cbranch_scc1 L_end
            s_cmp_ge_u32 s2, {hi}
            s_cbranch_scc1 L_end
            s_memrealtime s[4:5]
            s_waitcnt lgkmcnt(0)
            s_sub_u32 s6, {sr(y)}, {sr(x)}
            s_mul_i32 s6, s6, {self.o.get("echo_mul", 1)}
            s_lshr_b32 s6, s6, {self.o.get("echo_shr", 0)}
            s_add_u32 s6, s6, s4""")
            a.label("L_echo")
            a("s_memrealtime s[4:5]\ns_waitcnt lgkmcnt(0)\ns_sub_u32 s7, s6, s4\ns_cmp_gt_i32 s7, 0\ns_cbranch_scc1 L_echo")
            return
        if self.o.get("dbgst"):
            a("s_waitcnt vmcnt(0)")
            self.stamp("done")
            a("s_waitcnt lgkmcnt(0)\ns_mov_b64 exec, 1")
            slots = [1, 2, 3, 4, 5, 6, 7, 9, 11, 12, 13, 14, 15]
            a(f"s_not_b32 {sr(S_T)}, {sr(S_ST)}\nv_mov_b32 v16, {sr(S_T)}\nv_mov_b32 v17, 4\nbuffer_atomic_umax v16, v17, {sr(S_DB,4)}, 0 offen sc1")
            for i in range(min(self.nst, 12)):
                a(f"v_mov_b32 v{18+2*i}, {sr(S_ST+2*i)}\nv_mov_b32 v{19+2*i}, {4*slots[i+1]}\nbuffer_atomic_umax v{18+2*i}, v{19+2*i}, {sr(S_DB,4)}, 0 offen sc1")
            return
        if not self.o.get("stamps"): return
        T = S_T
        a(f"""s_waitcnt lgkmcnt(0)
        s_lshl_b32 {sr(T)}, s2, 2
        s_add_u32 {sr(T)}, {sr(T)}, {sr(S_W)}
        s_lshl_b32 {sr(T)}, {sr(T)}, 7
        s_add_u32 {sr(T)}, {sr(T)}, {WS_DBG}
        v_mov_b32 v1, 0""")
        for i in range(26): a(f"v_mov_b32 {vr(16+i)}, {sr(S_ST+i)}")
        for i in range(7): a(f"buffer_store_dwordx4 {vr(16+4*i,4)}, v1, {sr(S_WS,4)}, {sr(T)} offen offset:{16*i}")

    def build(self):
        a = self.a
        self.stnames = []
        a.raw(f"; @launch grid=({NWG},1,1) block=(256,1,1) lds={LDS_TOTAL}")
        a.raw('.amdgcn_target "amdgcn-amd-amdhsa--gfx950"')
        a.raw(".text")
        a.raw(f".globl {NAME}")
        a.raw(".p2align 12")
        self.entry()
        self.phase_a()
        self.rest()
        a.label("L_fin")
        self.dump_stamps()
        a.label("L_end")
        a("s_endpgm")
        self.poll2()
        if not self.o.get("touch", 1): self.rare()
        a.label("L_dummy")
        self.fallback()
        self.wfuse()
        a.raw('.section .rodata,"a"')
        a.raw(".p2align 6")
        a.raw(kernel_desc(NAME, 512, 102, 256))
        return a.text()

    def S(self, buf, qb, i=0): return V_S + buf * 32 + qb * 8 + i
    def P(self, buf, qb, i=0): return V_P + buf * 16 + qb * 4 + i

    def k_reads(self, slot, V_K=V_K):
        ka, so = (V_KA, slot * SLOT) if slot < 2 else (V_HI, (slot - 2) * SLOT)
        out = [f"ds_read_b128 {vr(V_K+8*s+4*kb,4)}, {vr(ka)} offset:{so + 2048*s + 256*kb}" for s in range(4) for kb in range(2)]
        out += [f"ds_read_b64 {vr(V_K+32+2*kb,2)}, {vr(ka+1)} offset:{so + 8192 + 512*kb}" for kb in range(2)]
        return out

    def v_reads(self, slot, dst=V_V):
        (va, vr_, vb), so = ((V_VA, V_VR, V_VB), slot * SLOT) if slot < 2 else ((V_HI + 2, V_HI + 4, V_HI + 5), (slot - 2) * SLOT)
        out = []
        for T in range(9):
            for u in range(2):
                if T < 8: out.append(f"ds_read_b64_tr_b16 {vr(dst+4*T+2*u,2)}, {vr((va if T < 4 else vb)+(T&1))} offset:{so + 2048*((T>>1)&1) + 256*u}")
                else: out.append(f"ds_read_b64_tr_b16 {vr(dst+4*T+2*u,2)}, {vr(vr_)} offset:{so + 8192 + 512*u}")
        return out

    def qk_mfmas(self, buf, czero=False):
        out = []
        for s in range(5):
            for kb in range(2):
                for qb in range(4):
                    d = vr(self.S(buf, qb, 4 * kb), 4)
                    c = ("0" if czero else vr(V_CI + 4 * qb, 4)) if s == 0 else d
                    if s < 4: out.append(f"v_mfma_f32_16x16x32_bf16 {d}, {vr(V_K+8*s+4*kb,4)}, {ar(A_Q+18*qb+4*s,4)}, {c}")
                    else: out.append(f"v_mfma_f32_16x16x16_bf16 {d}, {vr(V_K+32+2*kb,2)}, {ar(A_Q+18*qb+16,2)}, {c}")
        return out

    def pv_mfmas(self, buf, czero=False):
        out = []
        for T in range(9):
            for qb in range(4):
                o = ar(A_O + 36 * qb + 4 * T, 4)
                out.append(f"v_mfma_f32_16x16x32_bf16 {o}, {vr(V_V+4*T,4)}, {vr(self.P(buf,qb),4)}, {'0' if czero else o}")
        return out

    def plan(self):
        o = self.o
        n = 76
        fixed = [None] * n
        for i, g in enumerate(range(1, 36, 2)): fixed[g] = ("V", i)
        for i, g in enumerate([41, 44, 47, 50, 53, 56, 59, 62, 65, 68]): fixed[g] = ("K", i)
        for i, g in enumerate([42, 46, 49, 52, 55, 58, 61, 64, 67]): fixed[g] = ("D", i)
        exps = [(qb, j) for qb in range(4) for j in range(8)]
        start = 40
        order = [(start + k) % n for k in range(n)]
        free_idx = [k for k, g in enumerate(order) if fixed[g] is None]
        nsm = len(free_idx) - 32
        cand = free_idx[6:-2]
        sm_set = set(free_idx[-2:]) | {cand[int((i + 0.5) * len(cand) / (nsm - 2))] for i in range(nsm - 2)}
        nds = sum(1 for f in fixed if f is not None and f[0] != "D")
        over = 48 - nds - 2 * nsm
        ocand = [k for k, g in enumerate(order) if k >= 20 and (fixed[g] is None or fixed[g][0] != "D")]
        o_set = {ocand[int((i + 0.5) * len(ocand) / over)] for i in range(over)}
        gaps = [[] for _ in range(n)]
        small, pend, ei = [], [], 0
        for k, g in enumerate(order):
            new = (start + k) < n
            small.extend(pend); pend = []
            small.sort(key=lambda t: 0 if t[0] == "c" else 1)
            f = fixed[g]
            want = 0
            if f is not None:
                gaps[g].append((f[0], f[1], None))
                if f[0] == "D": continue
                want = 1
            elif k in sm_set: want = 2
            else:
                qb, j = exps[ei]; ei += 1
                gaps[g].append(("E", ("e", qb, j), new))
                if j & 1: pend.append(("c", qb, j // 2))
                pend.append(("a", qb, j))
            if k in o_set: want += 1
            if k == n - 1: want = 99
            for _ in range(want):
                if small: gaps[g].append(("E", small.pop(0), new))
        assert not small and not pend and ei == 32
        self.gaps = gaps

    def pack(self, mf, items):
        a = self.a
        where, order, done, nvm, mpos = {}, [], 0, 0, []
        isds = lambda it: "ds_" in it["t"]
        self.over = 0
        for g, m in enumerate(mf):
            assert not any(it.get("need", 999) <= g and i not in where for i, it in enumerate(items)), g
            idx = [k for k, n_ in enumerate(order) if n_ <= g]
            if idx and max(idx) + 1 > done:
                a(f"s_waitcnt lgkmcnt({min(15, len(order) - 1 - max(idx))})"); done = max(idx) + 1
            if m.startswith("@W"):
                w_, m = m.split("\n", 1)
                a(f"s_waitcnt lgkmcnt({min(15, int(w_[2:]) + len(order))})")
            a(m)
            mpos.append(len(a.lines))
            cap, pick = 8, []
            for phase in (0, 1):
                for i, it in enumerate(items):
                    if i in where or it.get("lo", 0) > g: continue
                    if "am" in it and (it["am"] >= g or len(a.lines) - mpos[it["am"]] < 8): continue
                    d = it.get("dep")
                    if d is not None and not all(where.get(x, 999) < g for x in d): continue
                    if (phase == 0 and it.get("hi", 999) <= g) or (phase == 1 and it["c"] <= cap):
                        if it["t"].startswith("buffer") and pick and any(items[x]["c"] for x in pick) and phase == 1: continue
                        if isds(it) and sum(isds(items[x]) for x in pick) >= it.get("nds", 1) and phase == 1: continue
                        pick.append(i); where[i] = g; cap -= it["c"]
            key = lambda i: 0 if items[i]["c"] == 0 else 1 if isds(items[i]) else 2 if items[i]["t"].startswith("buffer") else 3
            for i in sorted(pick, key=key):
                a(items[i]["t"].replace("@VM", f"s_waitcnt vmcnt({nvm})"))
                nvm += items[i]["t"].startswith("buffer")
                if isds(items[i]): order.append(items[i].get("need", 999))
            self.over += max(0, -cap)
        return [it["t"] for i, it in enumerate(items) if i not in where]

    def e_items(self, buf, lst, lo, hi):
        items, idx = [], {}
        for it in lst:
            kind, qb, j = it
            d = dict(t=self.etext(buf, it), c=8 if kind == "e" else 4)
            if kind == "e": d["lo"] = lo(qb, j); d["hi"] = hi(qb) - 2 - (7 - j)
            else:
                need = [("e", qb, j)] if kind == "a" else [("e", qb, 2 * j), ("e", qb, 2 * j + 1)]
                d["dep"] = [idx[x] for x in need if x in idx]
                if kind == "c": d["hi"] = hi(qb) - (3 - j) // 2
            idx[it] = len(items); items.append(d)
        return items

    def etext(self, buf, it):
        kind, qb, j = it
        s = self.S(buf, qb)
        if kind == "e": return f"v_exp_f32 {vr(s+j)}, {vr(s+j)}"
        if kind == "a": return f"v_add_f32 {vr(V_L+qb)}, {vr(V_L+qb)}, {vr(s+j)}"
        return f"v_cvt_pk_bf16_f32 {vr(self.P(buf, qb, j))}, {vr(s+2*j)}, {vr(s+2*j+1)}"

    def period(self, p, qk=True, pv=True, e_old=True, e_new=True, kread=True, vread=True, dma=True, extra={}, dsub=None, ksub=None, vm=9, halves=(0, 1), inc=None):
        a = self.a
        bn, bo = (p + 1) & 1, p & 1
        mf = self.qk_mfmas(bn) + self.pv_mfmas(bo, czero=(p == 0))
        kr, vrd = self.k_reads((p + 2) % RING), self.v_reads(p % RING)
        slot = p % RING
        n = 76
        sc = [[] for _ in range(n)]
        dgs = [g for g in range(n) if any(e[0] == "D" for e in self.gaps[g])]
        if dma:
            for j, g in enumerate(dgs):
                if j % 4 == 0: sc[g - 1].append(f"s_add_u32 m0, {sr(S_LB)}, {slot*SLOT + 4096*(j//4)}")
            sc[dgs[-1] + 1].append(f"s_add_u32 {sr(S_TOFF)}, {sr(S_TOFF)}, {inc or 4*TILE}")
        w = []
        if kread: w.append(f"vmcnt({vm})")
        if pv: w.append("lgkmcnt(0)")
        if w: sc[39].append("s_waitcnt " + " ".join(w))
        if kread: sc[75].append("s_waitcnt lgkmcnt(0)")
        for half in halves:
            rng = range(0, 40) if half == 0 else range(40, 76)
            on = qk if half == 0 else pv
            if not on:
                ds, mem, val, post = [], [], [], []
                for g in rng:
                    for s_ in sc[g]:
                        (post if s_.startswith("s_waitcnt") else mem).append(s_)
                    if g in extra: mem.append(extra[g])
                    for kind, d, new in self.gaps[g]:
                        if kind == "V" and vread: ds.append(vrd[d])
                        elif kind == "K" and kread: ds.append(kr[d])
                        elif kind == "D" and dma: mem.append(f"buffer_load_dwordx4 {vr(V_DMA + d//4)}, {sr(S_XA,4)}, {sr(S_TOFF)} offen offset:{1024*(d%4)} lds")
                        elif kind == "E" and ((new and e_new) or (not new and e_old)): val.append((d, self.etext(bn if new else bo, d)))
                if half == 1: a("s_nop 3")
                seq, pend = [], list(val)
                while pend:
                    k = 0
                    if seq and seq[-1][0][0] == "e":
                        le = seq[-1][0]
                        dep = lambda it: it[0][1] == le[1] and ((it[0][0] == "a" and it[0][2] == le[2]) or (it[0][0] == "c" and it[0][2] == le[2] // 2))
                        have = {x[0] for x in seq}
                        ok = lambda it: it[0][0] == "e" or (("e", it[0][1], it[0][2]) in have if it[0][0] == "a" else (("e", it[0][1], 2*it[0][2]+1) in have)) or not any(x[0][0] == "e" and x[0][1] == it[0][1] and (x[0][2] == it[0][2] if it[0][0] == "a" else x[0][2] // 2 == it[0][2]) for x in pend)
                        while k < len(pend) and (dep(pend[k]) or not ok(pend[k])): k += 1
                        if k == len(pend): seq.append((("n", 0, 0), "s_nop 0")); k = 0
                    seq.append(pend.pop(k))
                step = max(1, len(seq) // (len(mem) + len(ds) + 1))
                allm = ds + mem
                for x in allm[:6]: a(x)
                allm = allm[6:]
                for i_, (d, t_) in enumerate(seq):
                    a(t_)
                    if allm and i_ % step == step - 1:
                        x = allm.pop(0); a(x)
                        if x.startswith("s_add_u32 m0"): a("s_nop 0")
                for x in allm:
                    a(x)
                    if x.startswith("s_add_u32 m0"): a("s_nop 0")
                for x in post: a(x)
                if half == 0: a("s_nop 1")
                continue
            for g in rng:
                a(mf[g])
                for s_ in sc[g]: a(s_)
                if g in extra: a(extra[g])
                for kind, d, new in self.gaps[g]:
                    if kind == "V":
                        if vread: a(vrd[d])
                    elif kind == "K":
                        if kread: a(kr[d])
                        elif ksub: a(ksub.pop(0))
                    elif kind == "D":
                        if dma: a(f"buffer_load_dwordx4 {vr(V_DMA + d//4)}, {sr(S_XA,4)}, {sr(S_TOFF)} offen offset:{1024*(d%4)} lds")
                        elif dsub: a(dsub.pop(0))
                    elif (new and e_new) or (not new and e_old):
                        a(self.etext(bn if new else bo, d))

    MK, VO, VO8, GA, VS0, VS0R, VDW, VLW, VL8, VST, VPL = 232, 236, 9, 238, 250, 251, 244, 245, 246, 247, 248
    NB, PT, E_U, E_G, RS3, E_COL, RS1, RS2, MP1 = 3, 4, 5, 6, 7, 43, 36, 37, 38
    G0, GM, GP, U, DWT = 16, 26, 36, 80, (90, 252, 96, 100, 112, 116, 104, 94)
    XRS = (192, 196, 46)
    frag = staticmethod(lambda f, b: [(f, b + 4 * s) for s in range(5)])
    WD = [[("a", 216 + 4 * s) for s in range(5)], [("a", 234 + 4 * s) for s in range(5)], [("v", 208 + 4 * s) for s in range(5)]]
    WO = [[("a", 4 * s) for s in range(5)], [("a", 18 + 4 * s) for s in range(5)], [("a", 36), ("a", 40), ("a", 44), ("a", 48), ("a", 252)]]
    X1B = 98304
    X2O = L_SP - X1B
    L_L = L_SP + 9216

    def epi_setup(self):
        a = self.a
        T = S_T
        NB, PT, VO, GA = self.NB, self.PT, self.VO, self.GA
        r, g4, x, y, big, r0 = 52, 53, 54, 55, 56, 57
        a(f"""s_lshr_b32 {sr(NB)}, {sr(S_W)}, 1
        s_and_b32 {sr(PT)}, {sr(S_W)}, 1
        v_and_b32 {vr(r0)}, 15, v0
        v_lshrrev_b32 {vr(g4)}, 4, v0
        v_mul_u32_u24 {vr(x)}, 288, {vr(r0)}
        v_mov_b32 {vr(big)}, 0x40000000
        s_lshl_b32 {sr(T)}, {sr(S_TOWN)}, 1
        s_add_u32 {sr(T)}, {sr(T)}, {sr(NB)}
        s_lshl_b32 {sr(T)}, {sr(T)}, 4
        v_add_u32 {vr(r)}, {sr(T)}, {vr(r0)}
        s_mul_i32 {sr(T+1)}, {sr(S_TOWN)}, {TILE}
        s_mul_i32 {sr(T+2)}, {sr(PT)}, {BLK}
        v_add_u32 {vr(x)}, {sr(T+1)}, {vr(x)}
        s_sub_u32 {sr(T+3)}, {BLK}, {sr(T+2)}
        v_add_u32 {vr(y)}, {sr(T+3)}, {vr(x)}
        v_add_u32 {vr(x)}, {sr(T+2)}, {vr(x)}
        v_lshl_add_u32 {vr(VO)}, {vr(g4)}, 4, {vr(x)}
        v_lshl_add_u32 {vr(VO+1)}, {vr(g4)}, 4, {vr(y)}
        v_lshl_add_u32 {vr(self.VO8)}, {vr(g4)}, 3, {vr(x)}
        s_lshl_b32 {sr(T+3)}, {sr(PT)}, 11
        s_add_u32 {sr(self.E_U)}, {sr(T+3)}, {WS_U}
        s_add_u32 {sr(self.E_G)}, {sr(T+3)}, {WS_G}
        s_sub_u32 {sr(T+3)}, 4096, {sr(T+3)}
        s_lshl_b32 {sr(T)}, {sr(PT)}, 11
        s_add_u32 {sr(T)}, {sr(T)}, {WS_DWF}
        v_lshrrev_b32 {vr(x)}, 2, {vr(r0)}
        v_cmp_eq_u32 vcc, {vr(x)}, {vr(g4)}
        v_lshl_add_u32 {vr(self.VDW)}, {vr(r0)}, 4, {sr(T)}
        s_nop 0
        v_cndmask_b32 {vr(self.VDW)}, {vr(big)}, {vr(self.VDW)}, vcc
        s_lshl_b32 {sr(self.E_COL)}, {sr(S_W)}, 6
        v_lshlrev_b32 {vr(self.VL8)}, 3, v0
        v_add_u32 {vr(self.VL8)}, 4096, {vr(self.VL8)}
        v_add_u32 {vr(self.VST)}, {sr(S_LB)}, {vr(V_DMA)}
        v_add_u32 {vr(self.VST)}, {2*SLOT}, {vr(self.VST)}
        s_xor_b32 {sr(T)}, {sr(NB)}, 1
        v_xor_b32 {vr(x)}, {sr(T)}, {vr(g4)}
        v_lshl_add_u32 {vr(x)}, {vr(x)}, 4, {vr(r0)}
        s_lshl_b32 {sr(T)}, {sr(S_W)}, 2
        s_add_u32 {sr(T)}, {sr(T)}, {self.L_L}
        v_lshl_add_u32 {vr(self.VLW)}, {vr(x)}, 4, {sr(T)}
        s_sub_u32 {sr(self.MP1)}, 0, {sr(PT)}
        s_mov_b32 {sr(self.MP1+1)}, {sr(self.MP1)}""")
        for k, (d, base) in enumerate(((self.RS1, 3 * SLOT), (self.RS2, 2 * SLOT), (self.RS3, 2 * SLOT))):
            a(f"s_xor_b32 {sr(T)}, {sr(S_W)}, {k+1}\ns_mul_i32 {sr(T)}, {sr(T)}, {TILE}\ns_add_u32 {sr(d)}, {sr(T)}, {base}")
        a(f"""s_mul_i32 {sr(T)}, {sr(S_B)}, 4000
        s_add_u32 {sr(T+1)}, {sr(T)}, 3999
        s_mov_b32 {sr(T+2)}, {BLK}""")
        for k, dr in enumerate((0, -1, 1)):
            m = GA + 2 * k
            if dr: a(f"v_add_u32 {vr(m)}, {dr}, {vr(r)}\nv_cmp_eq_u32 vcc, {sr(T if dr < 0 else T+1)}, {vr(r)}")
            src = m if dr else r
            a(f"""v_lshrrev_b32 {vr(x)}, 4, {vr(src)}
            v_and_b32 {vr(y)}, 15, {vr(src)}
            v_mul_lo_u32 {vr(x)}, {vr(x)}, {sr(T+2)}
            v_lshl_add_u32 {vr(y)}, {vr(g4)}, 4, {vr(y)}
            v_lshl_add_u32 {vr(m)}, {vr(y)}, 4, {vr(x)}
            v_lshl_add_u32 {vr(m+1)}, {vr(y)}, 3, {vr(x)}
            v_add_u32 {vr(m+1)}, {sr(T+3)}, {vr(m+1)}""")
            if dr: a(f"v_cndmask_b32 {vr(m)}, {vr(m)}, {vr(big)}, vcc\nv_cndmask_b32 {vr(m+1)}, {vr(m+1)}, {vr(big)}, vcc")

    def conv_loads(self):
        GA = self.GA
        L = []
        for dst, m, so in ((self.GM, GA + 2, 1), (self.G0, GA, 1), (self.GP, GA + 4, 1), (self.U, GA, 0)):
            for k in range(2): L.append(f"buffer_load_dwordx4 {vr(dst+4*k,4)}, {vr(m)}, {sr(S_WS,4)}, {sr(self.E_U+so)} offen offset:{1024*k}")
            L.append(f"buffer_load_dwordx2 {vr(dst+8,2)}, {vr(m+1)}, {sr(S_WS,4)}, {sr(self.E_U+so)} offen")
        return L

    def rg(self, e, n): return (ar if e[0] == "a" else vr)(e[1], n)

    def w8_loads(self, regs, so):
        return [f"buffer_load_dwordx4 {self.rg(regs[s],4)}, {vr(V_DMA)}, {sr(S_WS,4)}, {sr(so)} offen offset:{1024*s}" for s in range(4)] + \
               [f"buffer_load_dwordx2 {self.rg(regs[4],2)}, {vr(self.VL8)}, {sr(S_WS,4)}, {sr(so)} offen"]

    def w_reads(self, regs, off):
        L = []
        for tt in range(2):
            L += [f"ds_read_b128 {self.rg(regs[tt][s],4)}, {vr(self.VS0)} offset:{off + BLK*tt + 1024*s}" for s in range(4)]
            L.append(f"ds_read_b64 {self.rg(regs[tt][4],2)}, {vr(self.VS0R)} offset:{off + BLK*tt}")
        return L

    def xa_srd(self):
        T = S_T
        return f"""s_mul_i32 {sr(T)}, {sr(S_B)}, {NT}
        s_mul_i32 {sr(T+1)}, {sr(S_H)}, 63
        s_add_u32 {sr(T+1)}, {sr(T+1)}, {sr(T)}
        s_mul_i32 {sr(T+1)}, {sr(T+1)}, {TILE}
        s_add_u32 {sr(S_XA)}, {sr(S_WS)}, {sr(T+1)}
        s_addc_u32 {sr(S_XA+1)}, {sr(S_WS+1)}, 0
        s_sub_u32 {sr(T+2)}, 63, {sr(S_H)}
        s_mul_i32 {sr(S_XA+2)}, {sr(T+2)}, {TILE}
        s_mov_b32 {sr(S_XA+3)}, 0x20000"""

    def rest(self):
        a, o = self.a, self.o
        T = S_T
        VPL = self.VPL
        self.plan()
        self.head()
        self.stamp("loop")
        if o.get("echo") and o["echo"][0] == "skew":
            a(f"s_waitcnt lgkmcnt(0)\ns_mov_b64 exec, 1\ns_not_b32 s98, {sr(S_ST)}\nv_mov_b32 v226, s98\nv_mov_b32 v227, 4\ns_cmp_lg_u32 {sr(S_W)}, 0\ns_cbranch_scc1 L_sk\nbuffer_atomic_umax v226, v227, {sr(S_DB,4)}, 0 offen sc1\ns_waitcnt vmcnt(0)\nL_sk:\ns_mov_b64 exec, -1\ns_nop 3")
        nh = o.get("ugh", 2)
        ex = {2 + 12 * k: x for k, x in enumerate(self.ugs[nh:])}
        self.period(0, vm=9 + 5, extra=ex)
        self.stamp("l0")
        a.raw(".p2align 6")
        a.label("L_loop")
        self.stamp("q1")
        for p in range(1, 5):
            ex = {}
            vm = 9
            if p == 1: ex = {73: f"s_cmp_eq_u32 {sr(S_CNT)}, 3"}
            if p == 2: ex = {70: f"buffer_load_dwordx4 v[252:255], {vr(VPL)}, {sr(S_DB,4)}, 0 offen sc1"}
            if p == 3:
                ex = {73: f"s_cmp_eq_u32 {sr(S_CNT)}, 2", 45: f"ds_add_rtn_u32 v230, v231, {vr(VPL+1)}"}
            if p == 4:
                self.stamp("la0")
                a(f"s_cbranch_scc1 L_last")
                a.label("L_lastb")
                self.stamp("la1")
                ex = {72: f"s_add_u32 {sr(S_CNT)}, {sr(S_CNT)}, 1", 1: "v_cmp_eq_u32 vcc, 3, v230", 3: f"v_cndmask_b32 v230, v231, {vr(VPL)}, vcc",
                      6: f"buffer_atomic_add {vr(VPL+1)}, v230, {sr(S_DB,4)}, 0 offen sc1"}
            self.period(p, extra=ex, inc=sr(S_INC) if p == 4 else None)
            if p == 1: a("s_cbranch_scc1 L_p14")
        a("s_branch L_loop")
        a.label("L_p14")
        SW = 66
        self.stamp("p14")
        a(f"s_cmp_eq_u32 {sr(S_DUM)}, 4\ns_cbranch_scc0 L_dummyb")
        for i in range(16): a(f"v_mov_b32 {vr(V_CI+i)}, 0xff800000")
        a("s_nop 1")
        a.label("L_dummyb")
        ex = dict(zip([2, 6, 8, 12, 14, 18, 20, 24, 26, 30], self.w_reads(self.WD, 0)))
        ex[0] = "s_waitcnt vmcnt(9)"
        ex.update(dict(zip([4, 10, 16, 22, 28], self.w8_loads(self.WD[2], SW))))
        self.period(14, dma=False, kread=False, extra=ex, halves=(0,))
        self.stamp("tail")
        self.tail(SW)
        self.stamp("end")
        self.epilogue(SW)

    def rare(self):
        a = self.a
        T = S_T
        SW = 66
        a.label("L_last")
        a(f"s_waitcnt vmcnt(9)\ns_mov_b32 {sr(T+2)}, 0")
        a.label("L_late")
        a(f"""v_readfirstlane_b32 {sr(T)}, v252
        v_readfirstlane_b32 {sr(T+1)}, v254
        s_add_u32 {sr(S_XA)}, {sr(S_WS)}, {WS_WF}
        s_addc_u32 {sr(S_XA+1)}, {sr(S_WS+1)}, 0
        s_mov_b32 {sr(S_XA+2)}, {18*BLK}
        s_add_u32 {sr(S_TOFF)}, {sr(S_LB)}, {9*BLK}
        s_mov_b32 {sr(S_INC)}, {-9*BLK}
        s_lshr_b32 {sr(SW)}, {sr(S_W)}, 1
        s_lshl_b32 {sr(SW)}, {sr(SW)}, 30
        s_add_u32 {sr(SW+1)}, {sr(SW)}, {WS_WF + 8*BLK}
        s_add_u32 {sr(SW)}, {sr(SW)}, {WS_WF + 17*BLK}
        s_cmp_ge_u32 {sr(T)}, 126
        s_cselect_b32 {sr(T+3)}, {sr(T+1)}, 0
        s_cmp_ge_u32 {sr(T+3)}, 2
        s_cbranch_scc1 L_lastb
        buffer_load_dwordx4 v[252:255], {vr(self.VPL)}, {sr(S_DB,4)}, 0 offen sc1
        s_add_u32 {sr(T+2)}, {sr(T+2)}, 1
        s_waitcnt vmcnt(0)
        s_cmp_lt_u32 {sr(T+2)}, 0x40000
        s_cbranch_scc1 L_late
        s_branch L_lastb""")

    units = [(0, 0), (0, 1), (1, 0), (1, 1), (2, 0)]
    V15 = V_K

    def stage(self, slot, T):
        src = ar(A_O + 36 * slot + 4 * T, 4)
        if slot == 0: return f"ds_write_b128 {vr(self.VST)}, {src} offset:{1024*T}"
        if slot == 2: return f"ds_write_b128 {vr(self.VS0)}, {src} offset:{1024*T}"
        if T < 4: return f"ds_write_b128 {vr(self.VST)}, {src} offset:{SLOT + 1024*T + (4096 if slot == 3 else 0)}"
        return f"{'s_not_b64' if slot == 1 else 's_mov_b64'} exec, {sr(self.MP1,2)}\nds_write_b128 {vr(self.VST)}, {src} offset:{SLOT + 8192}\ns_mov_b64 exec, -1"

    def dwf(self, k, i):
        f = 5 * k + i
        return self.DWT[f >> 1] + 2 * (f & 1)

    def tail(self, SW):
        a, o = self.a, self.o
        mf, pos, start = [], {}, {}
        for t_, qb in ((14, 0), (14, 1), (15, 0), (15, 1), (14, 2), (15, 2), (14, 3), (15, 3)):
            start[t_, qb] = len(mf)
            for Tt in ([0, 1, 2, 3, 8, 4, 5, 6, 7] if qb & 1 else range(9)):
                o_ = ar(A_O + 36 * qb + 4 * Tt, 4)
                pos[t_, qb, Tt] = len(mf)
                mf.append(f"v_mfma_f32_16x16x32_bf16 {o_}, {vr((V_V if t_ == 14 else self.V15)+4*Tt,4)}, {vr(self.P(t_ & 1,qb),4)}, {o_}")
        lst = []
        for qb in range(4):
            for j in range(8):
                lst.append(("e", qb, j))
                if j & 1: lst.append(("c", qb, j // 2))
        lst += [("a", qb, j) for qb in range(4) for j in range(8)]
        items = self.e_items(1, lst, lambda qb, j: 0 if j < 4 else 1, lambda qb: start[15, qb] - 2)
        for it in items[48:]: it["lo"] = o.get("alo", 26)
        v15 = [dict(t=x, c=4, need=pos[15, 0, i // 2], hi=pos[15, 0, i // 2] - o.get("vlead", 7), lo=0 if i < 16 else 2) for i, x in enumerate(self.v_reads(3, self.V15))]
        wr = []
        nown = o.get("nown", 4)
        self.own = [(2, T_) for T_ in range(nown, 9)] + [(3, T_) for T_ in (0, 1, 2, 3, 8)]
        g = o.get("w0", 23)
        for k, (sl, Tt) in enumerate([(0, T_) for T_ in range(9)] + [(1, T_) for T_ in (0, 1, 2, 3, 8)] + [(2, T_) for T_ in range(nown)]):
            g = max(pos[15, sl, Tt] + 5, g)
            wr.append(dict(t=self.stage(sl, Tt), c=o.get("wc", 20), lo=int(g), hi=int(g)) if g < 72 else dict(t=self.stage(sl, Tt), c=4, lo=999))
            g += o.get("wsp", 2.7)
        n0 = len(items) + len(v15)
        wo = []
        for i, x in enumerate(self.w_reads(self.WO, SLOT)):
            r0 = self.WO[i // 5][i % 5][1]
            wo.append(dict(t=("@VM\n" if i == 0 else "") + x, c=4, dep=sorted({n0 + r0 // 4, n0 + (r0 + 3) // 4 if (r0 + 3) // 4 < 9 else n0 + 8}), lo=o.get("wo0", 40) + 3 * i, hi=o.get("wo0", 40) + 3 * i + 2))
        cl = self.conv_loads()
        dl = [f"buffer_load_dwordx4 {vr(self.DWT[r],4)}, {vr(self.VDW)}, {sr(S_WS,4)}, 0 offen offset:{256*r}" for r in range(7)]
        dl.append(f"buffer_load_dwordx2 {vr(self.DWT[7],2)}, {vr(self.VDW)}, {sr(S_WS,4)}, 0 offen offset:{256*7}")
        fr = {96: 9, 100: 18, 104: 45, 112: 27, 116: 36}
        vm = [(x, 0) for x in cl] + [(x, fr.get(self.DWT[r], 0)) for r, x in enumerate(dl)]
        used = {w["lo"] for w in wr}
        vi, g = [], o.get("m0", 24)
        for x, lo in vm:
            g = max(g, lo)
            while int(g) in used: g += 1
            vi.append(dict(t=x, c=8, lo=int(g), hi=int(g)) if g < 72 else dict(t=x, c=8, lo=999))
            g += o.get("msp", 2.2)
        left = self.pack(mf, items + v15 + wr + wo + vi)
        self.done_a = {(qb, j) for qb in range(4) for j in range(8) if self.etext(1, ("a", qb, j)) not in left}
        left = [x for x in left if not x.startswith("v_add_f32")]
        print("tail overflow", self.over, "left", len(left), "adds done", len(self.done_a))
        self.left = left

    def epilogue(self, SW):
        a, o = self.a, self.o
        T = S_T
        p = lambda r: vr(r, 2)
        NB, PT, MK, VO, units, MP1 = self.NB, self.PT, self.MK, self.VO, self.units, self.MP1
        U, GM, G0, GP = self.U, self.GM, self.G0, self.GP
        X2O = self.X2O
        R1, R2, R3 = 230, 231, 249
        LA, LS, M = 10, 226, 48

        def weave(main, fill, per):
            fill = list(fill)
            for x in main:
                a(x)
                for _ in range(per):
                    if fill: a(fill.pop(0))
            return fill
        for x in self.left:
            if not x.startswith("buffer"): a(x)
        lv = [x for x in self.left if x.startswith("buffer")]
        lv += [f"buffer_load_dwordx4 {vr(self.XRS[j],4)}, {vr(VO+j)}, {sr(S_X,4)}, {sr(self.E_COL)} offen" for j in range(2)]
        lv.append(f"buffer_load_dwordx2 {vr(self.XRS[2],2)}, {vr(self.VO8)}, {sr(S_X,4)}, 0 offen offset:256")
        S1 = lambda qb, j: self.S(1, qb, j)
        rounds = [[] for _ in range(6)]
        for qb in range(4):
            rem = [j for j in range(8) if (qb, j) not in self.done_a]
            prs = [j for j in rem if j % 2 == 0 and j + 1 in rem]
            sing = [j for j in rem if (j & ~1) not in prs]
            r_ = 0
            while len(prs) > 1:
                for x, y in zip(prs[0::2], prs[1::2]): rounds[r_].append(f"v_pk_add_f32 {p(S1(qb,x))}, {p(S1(qb,x))}, {p(S1(qb,y))}")
                prs = prs[0::2]; r_ += 1
            for k_, j in enumerate(sing + ([prs[0], prs[0] + 1] if prs else [])): rounds[min(5, max(r_, 2) + k_)].append(f"v_add_f32 {vr(V_L+qb)}, {vr(V_L+qb)}, {vr(S1(qb,j))}")
        for r_ in rounds:
            for x in r_: a(x)
        a(f"v_add_u32 {vr(R1)}, {sr(self.RS1)}, {vr(V_DMA)}\nv_add_u32 {vr(R2)}, {sr(self.RS2)}, {vr(V_DMA)}")
        self.treduce(V_L)
        a(f"ds_write_b32 {vr(self.VLW)}, {vr(V_L)}")
        acc = lambda slot: [f"v_accvgpr_read_b32 {vr(M+i)}, {ar(A_O+36*slot+16+i)}" for i in range(20)]
        a(f"""v_add_u32 {vr(R3)}, {sr(self.RS3)}, {vr(V_DMA)}
        v_add_u32 {vr(LA+1)}, {self.L_L}, {vr(V_DMA)}
        v_and_b32 {vr(LS+1)}, 0xf0, {vr(V_DMA)}
        s_lshl_b32 {sr(T)}, {sr(NB)}, 8
        s_add_u32 {sr(T+8)}, {sr(T)}, {self.L_L}
        v_add_u32 {vr(LS)}, {sr(T+8)}, {vr(LS+1)}""")
        for x in lv: a(x)
        a(f"""s_xor_b32 {sr(T)}, s2, 1
        s_mul_i32 {sr(T)}, {sr(T)}, {IB}
        s_mul_i32 {sr(T+9)}, {sr(NB)}, 5120
        s_add_u32 {sr(T+9)}, {sr(T+9)}, {WS_IB}
        s_add_u32 {sr(T)}, {sr(T)}, {sr(T+9)}
        s_lshl_b32 {sr(T+10)}, {sr(PT)}, 11
        s_add_u32 {sr(T+1)}, {sr(T+10)}, {sr(T)}
        s_add_u32 {sr(T)}, {sr(T)}, 4096
        s_cmp_eq_u32 {sr(PT)}, 0
        s_cselect_b32 {sr(T)}, 0x40000000, {sr(T)}
        s_mov_b32 {sr(T+2)}, {f32(2.0**100)}
        s_mul_i32 {sr(T+12)}, s2, {IB}
        s_add_u32 {sr(T+12)}, {sr(T+12)}, {sr(T+9)}
        s_add_u32 {sr(T+13)}, {sr(T+12)}, {sr(T+10)}
        s_waitcnt lgkmcnt(0)
        s_barrier""")
        self.stamp("B1")

        def rd(X, offs):
            L = [[f"ds_read_b128 {vr(X[k][i],4)}, {vr((R1, R2, R3)[k])} offset:{offs[k] + 1024*i}" for i in range(4)] for k in range(3)]
            L8 = [f"ds_read_b128 {vr(X[k][4],4)}, {vr((R1, R2, R3)[k])} offset:8192" for k in range(3)]
            return L, L8

        def adds(X, k, rng):
            return [f"v_pk_add_f32 {p(M+4*i+2*h)}, {p(M+4*i+2*h)}, {p(X[k][i]+2*h)}" for i in rng for h in range(2)]
        X = [[128, 132, 136, 140, 144], [148, 152, 156, 160, 68], [72, 76, 200, 204, 108]]
        PK = 128
        L, L8 = rd(X, (0, 4096, 0))
        a(f"ds_read_b128 {vr(LA,4)}, {vr(LA+1)}\nds_read_b128 {vr(LS,4)}, {vr(LS)}")
        rest = weave(L[0] + L[1] + L[2], acc(1), 2)
        assert not rest
        a(f"s_mov_b64 exec, {sr(MP1,2)}")
        for x in L8: a(x)
        a(f"""s_mov_b64 exec, -1
        s_waitcnt lgkmcnt(11)
        v_add_f32 {vr(LA)}, {vr(LA)}, {vr(LA+1)}
        v_add_f32 {vr(LA+2)}, {vr(LA+2)}, {vr(LA+3)}
        v_add_f32 {vr(LS)}, {vr(LS)}, {vr(LS+1)}
        v_add_f32 {vr(LA)}, {vr(LA)}, {vr(LA+2)}
        v_add_f32 {vr(LS+2)}, {vr(LS+2)}, {vr(LS+3)}
        v_cmp_nge_f32 vcc, {sr(T+2)}, {vr(LA)}""")
        for x in adds(X, 0, range(4)): a(x)
        a(f"""s_cmp_lg_u64 vcc, 0
        s_cselect_b32 {sr(T+2)}, 1, 0
        s_andn2_b32 {sr(T+2)}, {sr(T+2)}, {sr(S_REDO)}
        s_cbranch_scc1 L_fallback
        v_add_f32 {vr(PK+10)}, {vr(LS)}, {vr(LS+2)}
        v_mov_b32 {vr(PK+11)}, {vr(MK+1)}
        s_waitcnt lgkmcnt(7)""")
        for x in adds(X, 1, range(4)): a(x)
        a("s_waitcnt lgkmcnt(3)")
        a3 = adds(X, 2, range(4))
        cv = [f"v_cvt_pk_bf16_f32 {vr(PK+i)}, {vr(M+2*i)}, {vr(M+2*i+1)}" for i in range(10)]
        for x in a3[:4] + a3[4:6] + cv[:4]: a(x)
        a(f"buffer_store_dwordx4 {vr(PK,4)}, {vr(V_DMA)}, {sr(S_WS,4)}, {sr(T+1)} offen sc1")
        for x in a3[6:] + cv[4:8]: a(x)
        a(f"buffer_store_dwordx4 {vr(PK+4,4)}, {vr(V_DMA)}, {sr(S_WS,4)}, {sr(T+1)} offen offset:1024 sc1")
        a("s_waitcnt lgkmcnt(0)")
        for kk in range(3):
            for x in adds(X, kk, [4]): a(x)
        for x in cv[8:]: a(x)
        a(f"buffer_store_dwordx4 {vr(PK+8,4)}, {vr(V_DMA)}, {sr(S_WS,4)}, {sr(T)} offen sc1")
        self.stamp("sent")
        a(f"s_cmp_eq_u32 {sr(S_VAL)}, 0\ns_cbranch_scc1 L_fin")
        C, UP = 140, 68
        IN = [(200, 204, 226), (164, 168, 252), (192, 196, 172)]
        VXW, VXR, VF, LO = 78, 79, 10, 36
        wr = [self.stage(*e) for e in self.own]

        def inbox(k):
            return [f"buffer_load_dwordx4 {vr(IN[k][0],4)}, {vr(V_DMA)}, {sr(S_WS,4)}, {sr(T+13)} offen sc1",
                    f"buffer_load_dwordx4 {vr(IN[k][1],4)}, {vr(V_DMA)}, {sr(S_WS,4)}, {sr(T+13)} offen offset:1024 sc1",
                    f"buffer_load_dwordx4 {vr(IN[k][2],4)}, {vr(V_DMA+1)}, {sr(S_WS,4)}, {sr(T+12)} offen sc1"]
        for x in inbox(0): a(x)
        n0 = len(a.lines)
        a(f"""s_lshl_b32 {sr(T)}, {sr(NB)}, 12
        s_add_u32 {sr(T)}, {sr(T)}, {sr(T+10)}
        s_add_u32 {sr(T)}, {sr(T)}, {self.X1B}
        v_add_u32 {vr(VXW)}, {sr(T)}, {vr(V_DMA)}
        s_lshl_b32 {sr(T)}, {sr(NB)}, 9
        s_add_u32 {sr(T)}, {sr(T)}, {self.X1B + 4096}
        v_add_u32 {vr(VXR)}, {sr(T)}, {vr(self.VL8)}
        s_lshl_b32 {sr(T)}, {sr(PT)}, 12
        s_add_u32 {sr(T)}, {sr(T)}, {self.X1B}
        v_add_u32 {vr(VF)}, {sr(T)}, {vr(V_DMA)}
        v_xor_b32 {vr(VF+1)}, 4096, {vr(VF)}
        s_lshl_b32 {sr(T)}, {sr(PT)}, 9
        s_add_u32 {sr(T)}, {sr(T)}, {self.X1B + 4096}
        v_add_u32 {vr(VF+2)}, {sr(T)}, {vr(self.VL8)}
        v_xor_b32 {vr(VF+3)}, 512, {vr(VF+2)}
        v_subrev_u32 {vr(R2)}, {2*SLOT}, {vr(R2)}
        v_subrev_u32 {vr(R3)}, {2*SLOT}, {vr(R3)}
        s_waitcnt vmcnt(9)""")
        self.stamp("cv0")
        un = [f"v_lshlrev_b32 {vr(M+2*i)}, 16, {vr(U+i)}\nv_and_b32 {vr(M+1+2*i)}, 0xffff0000, {vr(U+i)}" for i in range(10)]
        w8 = self.w8_loads(self.WO[2], SW + 1)
        for k, src in enumerate((GM, G0, GP)):
            for i in range(5):
                d = vr(C + 4 * i, 4)
                a(f"v_mfma_f32_16x16x16_bf16 {d}, {vr(self.dwf(k, i),2)}, {vr(src+2*i,2)}, {'0' if k == 0 else d}")
                a(w8.pop(0) if i in (0, 3) and w8 else un.pop(0))
        self.stamp("cv1")
        a(f"v_and_b32 {vr(LO+1)}, 0xf0, {vr(V_DMA)}\nv_add_u32 {vr(LO)}, {sr(T+8)}, {vr(LO+1)}\ns_nop 1")
        for i in range(10): a(f"v_pk_mul_f32 {p(C+2*i)}, {p(C+2*i)}, {p(M+2*i)}")
        for i in range(10):
            a(f"v_cvt_pk_bf16_f32 {vr(UP+i)}, {vr(C+2*i)}, {vr(C+2*i+1)}")
        body = a.lines[n0:]; del a.lines[n0:]
        step = max(1, len(body) // len(wr))
        for i, l in enumerate(body):
            if i % o.get("wstep", step) == 0 and wr: a(wr.pop(0))
            a.lines.append(l)
        for x in wr: a(x)
        ac = acc(3)
        a(f"ds_write_b128 {vr(VXW)}, {vr(UP,4)} offset:{X2O}")
        for x in ac[:6]: a(x)
        a(f"ds_write_b128 {vr(VXW)}, {vr(UP+4,4)} offset:{X2O + 1024}")
        for x in ac[6:12]: a(x)
        a(f"""s_mov_b64 exec, {sr(MP1,2)}
        ds_write_b64 {vr(VXR)}, {vr(UP+8,2)} offset:{X2O}
        s_mov_b64 exec, -1""")
        self.stamp("x2")
        for x in inbox(1): a(x)
        for x in ac[12:]: a(x)
        a("s_waitcnt lgkmcnt(0)\ns_barrier")
        self.stamp("B2")
        X = [[128, 132, 136, 140, 144], [148, 152, 156, 160, 188], [16, 20, 24, 28, 32]]
        L, L8 = rd(X, (4096, 4096, 0))
        BU = [[("v", r) for r in (100, 104, 108, 112, 116)], [("v", r) for r in (118, 122, 180, 184, 126)]]
        BO = [self.frag("v", 128), self.frag("v", 146)]
        AB = 80

        def bfrags(dst, off):
            out = []
            for s in range(5):
                for j in range(2):
                    out.append(f"ds_read_b128 {self.rg(dst[j][s],4)}, {vr(VF+j)} offset:{off + 1024*s}" if s < 4 else f"ds_read_b64 {self.rg(dst[j][4],2)}, {vr(VF+2+j)} offset:{off}")
            return out

        def fg(W, Bf):
            out = []
            for s in range(5):
                for u, (tt, j) in enumerate(units):
                    d = vr(AB + 4 * u, 4)
                    if s < 4: out.append(f"v_mfma_f32_16x16x32_bf16 {d}, {self.rg(W[tt][s],4)}, {self.rg(Bf[j][s],4)}, {d}")
                    else: out.append(f"v_mfma_f32_16x16x16_bf16 {d}, {self.rg(W[tt][4],2)}, {self.rg(Bf[j][4],2)}, {d}")
            return out
        xu = []
        for u, (tt, j) in enumerate(units):
            for h in range(2):
                x = self.XRS[j] + 2 * tt + h if tt < 2 else self.XRS[2] + h
                xu += [f"v_lshlrev_b32 {vr(AB+4*u+2*h)}, 16, {vr(x)}", f"v_and_b32 {vr(AB+1+4*u+2*h)}, 0xffff0000, {vr(x)}"]
        a("s_waitcnt vmcnt(14)")
        weave(bfrags(BU, X2O), xu, 2)
        pl = lambda k, i, e: f"v_add_f32 {vr(M+4*i+e)}, {vr(M+4*i+e)}, {vr(X[k][i]+e)}"
        ds = L[0] + L[1] + L[2] + [f"s_not_b64 exec, {sr(MP1,2)}\n" + "\n".join(L8) + "\ns_mov_b64 exec, -1", f"ds_read_b128 {vr(LO,4)}, {vr(LO)} offset:512"]
        nis = [1] * 12 + [3, 1]
        gap = [[] for _ in range(25)]
        tot = [10]
        for g in range(25): tot.append(tot[-1] + (nis[g] if g < 14 else 0))
        A0 = [pl(0, i, e) for i in range(4) for e in range(4)]
        A1 = [pl(1, i, e) for i in range(4) for e in range(4)]
        ib = inbox(2)
        for g, m in enumerate(fg(self.WD, BU)):
            if g % 5 == 0: a(f"s_waitcnt lgkmcnt({min(15, tot[g] - 2 * (g // 5 + 1))})")
            a(m)
            if g == 8: a(f"s_waitcnt lgkmcnt({tot[g] - 14})")
            if g == 16: a(f"s_waitcnt lgkmcnt({tot[g] - 18})")
            if g < 14: a(ds[g])
            if 8 <= g < 14: a(A0.pop(0))
            elif g in (14, 18, 22): a(ib.pop(0))
            elif g >= 14:
                for _ in range(2): a(A0.pop(0) if A0 else A1.pop(0))
        assert not A0 and len(A1) % 2 == 0
        n1 = 16 - len(A1)
        for e in range(n1, 16, 2): a(f"v_pk_add_f32 {p(M+e)}, {p(M+e)}, {p(X[1][e//4]+e%4)}")
        a("s_waitcnt lgkmcnt(0)")
        for x in adds(X, 2, range(4)): a(x)
        a(f"v_add_f32 {vr(LO)}, {vr(LO)}, {vr(LO+1)}\nv_add_f32 {vr(LO+2)}, {vr(LO+2)}, {vr(LO+3)}")
        for kk in range(3):
            for x in adds(X, kk, [4]): a(x)
        a(f"s_mov_b32 {sr(T+2)}, 0\nv_add_f32 {vr(LO)}, {vr(LO)}, {vr(LO+2)}")
        self.stamp("own")
        w, PU = 40, 128
        mo = MK + 3

        def chk(k):
            r = [IN[k][q] + i for q in range(3) for i in range(4)]
            c = [f"v_max3_u32 v46, {vr(r[0])}, {vr(r[1])}, {vr(r[2])}", f"v_max3_u32 v47, {vr(r[3])}, {vr(r[4])}, {vr(r[5])}"]
            for q in range(3): c.append(f"v_max3_u32 v{46+(q&1)}, v{46+(q&1)}, {vr(r[6+2*q])}, {vr(r[7+2*q])}")
            return c + ["v_max_u32 v46, v46, v47", "v_cmp_eq_u32 vcc, -1, v46"]

        def take(k, with_chk):
            r = [IN[k][q] + i for q in range(3) for i in range(4)]
            lp_, mp = r[10], r[11]
            wt = [f"v_min_f32 {vr(w)}, {vr(mo)}, {vr(mp)}", f"v_sub_f32 {vr(w+2)}, {vr(w)}, {vr(mp)}", f"v_sub_f32 {vr(w)}, {vr(w)}, {vr(mo)}",
                  f"v_exp_f32 {vr(w+2)}, {vr(w+2)}", f"v_exp_f32 {vr(w)}, {vr(w)}", f"v_mul_f32 {vr(w+4)}, {vr(w+2)}, {vr(lp_)}",
                  f"v_fmac_f32 {vr(w+4)}, {vr(w)}, {vr(LO)}", f"v_rcp_f32 {vr(w+4)}, {vr(w+4)}", f"v_mul_f32 {vr(w)}, {vr(w)}, {vr(w+4)}",
                  f"v_mul_f32 {vr(w+2)}, {vr(w+2)}, {vr(w+4)}"]
            un = []
            for i in range(10): un += [f"v_lshlrev_b32 {vr(PU+2*i)}, 16, {vr(r[i])}", f"v_and_b32 {vr(PU+1+2*i)}, 0xffff0000, {vr(r[i])}"]
            c = chk(k) if with_chk else []
            for i in range(10):
                a(wt[i])
                if c: a(c.pop(0))
                a(un.pop(0)); a(un.pop(0))
        a("s_waitcnt vmcnt(6)")
        take(0, True)
        a("s_cmp_eq_u64 vcc, 0\ns_cbranch_scc0 L_poll2")
        a.label("L_got")
        self.stamp("got")
        for i in range(10): a(f"v_pk_mul_f32 {p(M+2*i)}, {p(M+2*i)}, {p(w)} op_sel_hi:[1,0]")
        for i in range(10): a(f"v_pk_fma_f32 {p(M+2*i)}, {p(PU+2*i)}, {p(w+2)}, {p(M+2*i)} op_sel_hi:[1,0,1]")
        for i in range(10):
            a(f"v_cvt_pk_bf16_f32 {vr(UP+i)}, {vr(M+2*i)}, {vr(M+2*i+1)}")
            if i == 3: a(f"ds_write_b128 {vr(VXW)}, {vr(UP,4)}")
            if i == 7: a(f"ds_write_b128 {vr(VXW)}, {vr(UP+4,4)} offset:1024")
        a(f"""s_not_b64 exec, {sr(MP1,2)}
        ds_write_b64 {vr(VXR)}, {vr(UP+8,2)}
        s_mov_b64 exec, -1
        s_waitcnt lgkmcnt(0)
        s_barrier""")
        self.stamp("B3")
        for x in bfrags(BO, 0): a(x)
        for g, m in enumerate(fg(self.WO, BO)):
            if g % 5 == 0: a(f"s_waitcnt lgkmcnt({8 - 2 * (g // 5)})" + ("\ns_nop 0" if g == 20 else ""))
            a(m)
        self.stamp("gem")
        a("s_nop 3")
        for j in range(2):
            for tt in range(2):
                u = 2 * tt + j
                for h in range(2): a(f"v_cvt_pk_bf16_f32 {vr(16+4*j+2*tt+h)}, {vr(AB+4*u+2*h)}, {vr(AB+4*u+2*h+1)}")
            a(f"buffer_store_dwordx4 {vr(16+4*j,4)}, {vr(VO+j)}, {sr(S_OUT,4)}, {sr(self.E_COL)} offen")
        a(f"s_cmp_ge_u32 {sr(S_W)}, 2\ns_cbranch_scc1 L_fin")
        for h in range(2): a(f"v_cvt_pk_bf16_f32 {vr(24+h)}, {vr(AB+16+2*h)}, {vr(AB+16+2*h+1)}")
        a(f"buffer_store_dwordx2 v[24:25], {vr(self.VO8)}, {sr(S_OUT,4)}, 0 offen offset:256")
        self.stamp("fin")

        def poll2():
            a.label("L_poll2")
            for k in (1, 2, 0):
                for x in inbox((k + 2) % 3): a(x)
                a("s_waitcnt vmcnt(6)")
                for x in chk(k): a(x)
                a(f"s_add_u32 {sr(T+2)}, {sr(T+2)}, 1\ns_cmp_eq_u64 vcc, 0\ns_cbranch_scc1 L_take{k}")
            a(f"s_cmp_lt_u32 {sr(T+2)}, 0x10000\ns_cbranch_scc1 L_poll2")
            for k in (0, 1, 2):
                a.label(f"L_take{k}")
                take(k, False)
                a("s_branch L_got")
        self.poll2 = poll2

    def fallback(self):
        a = self.a
        T = S_T
        MXR = 208
        a.label("L_fallback")
        a(f"""s_waitcnt vmcnt(0) lgkmcnt(0)
        s_barrier
        s_mov_b32 {sr(S_REDO)}, 1
        s_mov_b32 {sr(S_UG)}, 0x40000000
        {self.xa_srd()}
        s_mov_b32 {sr(S_TOFF)}, {sr(S_LB)}
        s_cmp_eq_u32 {sr(S_DUM)}, 4
        s_cselect_b32 {sr(S_CNT)}, 15, 16""")
        for i in range(4): a(f"v_mov_b32 {vr(MXR+i)}, 0xff800000")
        a.label("L_fb1")
        for g in self.tile_groups(0): a(g)
        a("s_waitcnt vmcnt(0)")
        for x in self.k_reads(0): a(x)
        a("s_waitcnt lgkmcnt(0)")
        for m in self.qk_mfmas(0, czero=True): a(m)
        a("s_nop 7")
        for qb in range(4):
            for i in range(0, 8, 2): a(f"v_max3_f32 {vr(MXR+qb)}, {vr(MXR+qb)}, {vr(self.S(0,qb,i))}, {vr(self.S(0,qb,i+1))}")
        a(f"s_sub_u32 {sr(S_CNT)}, {sr(S_CNT)}, 1\ns_cmp_lg_u32 {sr(S_CNT)}, 0\ns_cbranch_scc1 L_fb1")
        self.greduce([MXR + i for i in range(4)], MXR + 4, "v_max_f32")
        a(f"""v_and_b32 {vr(MXR+4)}, 15, v0
        v_lshlrev_b32 {vr(MXR+4)}, 4, {vr(MXR+4)}
        v_add_u32 {vr(MXR+4)}, {L_SP}, {vr(MXR+4)}
        s_lshl_b32 {sr(T)}, {sr(S_W)}, 2
        s_xor_b32 {sr(T+1)}, {sr(self.NB)}, 1
        v_lshl_add_u32 {vr(MXR+5)}, {sr(self.NB)}, 8, {vr(MXR+4)}
        v_lshl_add_u32 {vr(MXR+4)}, {sr(T+1)}, 8, {vr(MXR+4)}
        v_add_u32 {vr(MXR+6)}, {sr(T)}, {vr(MXR+4)}
        v_add_u32 {vr(MXR+7)}, {sr(T)}, {vr(MXR+5)}""")
        for qb in range(4): a(f"ds_write_b32 {vr(MXR+6+(qb&1))}, {vr(MXR+qb)} offset:{512*(qb>>1)}")
        a("s_waitcnt lgkmcnt(0)\ns_barrier")
        for qb in range(4): a(f"ds_read_b128 {vr(16+4*qb,4)}, {vr(MXR+4+(qb&1))} offset:{512*(qb>>1)}")
        a(f"s_mov_b32 {sr(S_TOFF)}, {sr(S_LB)}")
        for g in self.tile_groups(0) + self.tile_groups(1) + self.tile_groups(2)[:8]: a(g)
        a("s_waitcnt lgkmcnt(0)")
        for qb in range(4):
            r = 16 + 4 * qb
            a(f"v_max_f32 {vr(r)}, {vr(r)}, {vr(r+1)}\nv_max3_f32 {vr(r)}, {vr(r)}, {vr(r+2)}, {vr(r+3)}")
            a(f"v_sub_f32 {vr(self.MK+qb)}, 0, {vr(r)}")
        a("s_waitcnt vmcnt(0)")
        for x in self.k_reads(0, V_V): a(x)
        self.loop_init(False)
        a("s_branch L_go")


if __name__ == "__main__":
    opt = json.loads(sys.argv[2]) if len(sys.argv) > 2 else {}
    g = G(opt)
    txt = g.build()
    if opt.get("align", 1):
        from align import align
        for n2 in (1, 2):
            try:
                txt, st = align(txt, chains=[(1, "L_tr")] * 3 + [(1, "L_tr2"), (n2, "L_tr2")] if opt.get("touch", 1) else None)
                break
            except AssertionError as e:
                if n2 == 2: raise
        print("align: promoted %d, padded %d, left %d" % st)
    txt = txt.replace("\n", "\n; stamps " + json.dumps(g.stnames) + "\n; map %d\n" % g.mp, 1)
    open(sys.argv[1], "w").write(txt)
```

```python
import sys, json, math
from common import Asm, vr, ar, sr, kernel_header, kernel_desc
from lay import *

NAME = "standalone__conformer_family_branchformer__speech_kernel"
NH = 2
NWG = 252 + NH
CHAINS = (3, 3)
RING = 4
LDS_RING = RING * TILE
LDS_TOTAL = 163840
SLOT = 4 * TILE
L_WU, L_WQ, L_WK = 0, 41472, 82944
L_XX, L_XR = 126976, 143360
L_QD = 18432
L_XS = L_XX + L_QD
L_MX = 81920
L_PC = LDS_TOTAL - 256
L_DUMP = 123904
L_SP = 147456

S_X, S_WS, S_XA, S_DB, S_W1, S_W2, S_OUT, S_DW = 8, 12, 16, 20, 24, 28, 32, 36
S_W, S_B, S_H, S_QB, S_TOFF, S_CNT, S_DUM, S_LB, S_TOWN, S_TSND, S_VAL, S_REDO = range(40, 52)
S_UG = 25
S_INC = 24
S_T = 52
S_ST = 76

V_KA, V_VA, V_VR, V_DMA, V_L, V_VB = 1, 3, 5, 6, 10, 14
V_S, V_CI, V_P, V_K, V_V = 16, 80, 96, 128, 164
V_HI = 200
V_X = 208
A_O, A_Q, A_F = 0, 144, 216

LOG2E = 1.4426950408889634
import struct
def f32(x): return "0x%08x" % struct.unpack("<I", struct.pack("<f", x))[0]


class BAsm(Asm):
    def __init__(self):
        super().__init__()
        self.bg, self.every, self.cnt, self.skip = [], 0, 0, 0

    def __call__(self, s):
        for l in s.split("\n"):
            l = l.strip()
            if not l: continue
            self.lines.append("    " + l)
            if self.bg and self.every and not l.startswith(("s_nop", "v_mov_b32", "v_exp", "v_rcp", "v_rsq", "v_sqrt", "s_add_u32 m0")):
                self.cnt += 1
                if self.cnt >= self.every:
                    self.cnt = 0
                    self.pop()

    def pop(self):
        for x in self.bg.pop(0).split("\n"): self.lines.append("    " + x)

    def flush(self):
        while self.bg: self.pop()
        self.every = 0


class G:
    def __init__(self, opt):
        self.o = opt
        self.a = BAsm()
        self.nst = 0
        self.fill = []

    def stamp(self, name):
        if self.o.get("stamps"):
            if name in self.o.get("skipst", []): return
            if "only" in self.o and name not in self.o["only"]: return
            if self.nst >= 11: return
            self.a(f"{'s_memtime' if self.o.get('cyc') else 's_memrealtime'} {sr(S_ST + 2*self.nst, 2)}")
            self.stnames.append(name)
            self.nst += 1

    def srd(self, dst, lo, hi, n):
        if dst == S_WS and self.o.get("wsoff"):
            self.a(f"s_add_u32 {sr(dst)}, {sr(lo)}, {self.o['wsoff']}\ns_addc_u32 {sr(dst+1)}, {sr(hi)}, 0\ns_mov_b32 {sr(dst+2)}, {n}\ns_mov_b32 {sr(dst+3)}, 0x20000")
            return
        self.a(f"s_mov_b32 {sr(dst)}, {sr(lo)}\ns_mov_b32 {sr(dst+1)}, {sr(hi)}\ns_mov_b32 {sr(dst+2)}, {n}\ns_mov_b32 {sr(dst+3)}, 0x20000")

    def greduce(self, regs, tmp, op="v_add_f32"):
        a = self.a
        for sw in ("32", "16"):
            for i, r in enumerate(regs): a(f"v_mov_b32 {vr(tmp+i)}, {vr(r)}")
            if len(regs) < 3: a("s_nop 1" if len(regs) == 1 else "s_nop 0")
            for i, r in enumerate(regs): a(f"v_permlane{sw}_swap_b32 {vr(r)}, {vr(tmp+i)}")
            for i, r in enumerate(regs): a(f"{op} {vr(r)}, {vr(r)}, {vr(tmp+i)}")

    def treduce(self, r, op="v_add_f32"):
        a = self.a
        a(f"v_permlane32_swap_b32 {vr(r)}, {vr(r+2)}\nv_permlane32_swap_b32 {vr(r+1)}, {vr(r+3)}")
        a(f"{op} {vr(r)}, {vr(r)}, {vr(r+2)}\n{op} {vr(r+1)}, {vr(r+1)}, {vr(r+3)}\ns_nop 1")
        a(f"v_permlane16_swap_b32 {vr(r)}, {vr(r+1)}\n{op} {vr(r)}, {vr(r)}, {vr(r+1)}")

    def rbf(self, r):
        self.a(f"v_cvt_pk_bf16_f32 {vr(r)}, {vr(r)}, {vr(r)}\nv_lshlrev_b32 {vr(r)}, 16, {vr(r)}")

    def ln_tail(self, F, out, t, mimic):
        a = self.a
        p = lambda r: vr(r, 2)
        self.greduce([t, t + 1], t + 2)
        a(f"v_mul_f32 {vr(t+2)}, {f32(1.0/144)}, {vr(t)}")
        a(f"v_mul_f32 {vr(t+3)}, {vr(t+2)}, {vr(t+2)}")
        a(f"v_mov_b32 {vr(t+4)}, {f32(1.0/144)}")
        a(f"v_fma_f32 {vr(t)}, {vr(t+1)}, {vr(t+4)}, -{vr(t+3)}")
        a(f"v_max_f32 {vr(t)}, 0, {vr(t)}")
        if mimic:
            self.rbf(t)
            self.rbf(t + 2)
            a(f"v_add_f32 {vr(t)}, {f32(1e-5)}, {vr(t)}")
            self.rbf(t)
            a(f"v_sqrt_f32 {vr(t)}, {vr(t)}\ns_nop 0")
            self.rbf(t)
            a(f"v_rcp_f32 {vr(t)}, {vr(t)}\ns_nop 0")
        else:
            a(f"v_add_f32 {vr(t)}, {f32(1e-5)}, {vr(t)}")
            a(f"v_rsq_f32 {vr(t)}, {vr(t)}\ns_nop 0")
        a(f"v_mul_f32 {vr(t+2)}, -{vr(t+2)}, {vr(t)}")
        for i in range(18):
            a(f"v_pk_fma_f32 {p(F+2*i)}, {p(F+2*i)}, {p(t)}, {p(t+2)} op_sel_hi:[1,0,0]")
        for i in range(18):
            a(f"v_cvt_pk_bf16_f32 {vr(out+i)}, {vr(F+2*i)}, {vr(F+2*i+1)}")

    def ln_packed(self, X, F, out, t):
        a = self.a
        a(f"v_mov_b32 {vr(t+6)}, 0x3f803f80")
        for k in range(4): a(f"v_mov_b32 {vr(t+k)}, 0")
        for i in range(18):
            a(f"v_dot2_f32_bf16 {vr(t+2*(i&1))}, {vr(X+i)}, {vr(t+6)}, {vr(t+2*(i&1))}")
            a(f"v_dot2_f32_bf16 {vr(t+1+2*(i&1))}, {vr(X+i)}, {vr(X+i)}, {vr(t+1+2*(i&1))}")
        for i in range(2):
            a(f"v_lshlrev_b32 {vr(F+2*i)}, 16, {vr(X+i)}\nv_and_b32 {vr(F+2*i+1)}, 0xffff0000, {vr(X+i)}")
        a(f"v_pk_add_f32 {vr(t,2)}, {vr(t,2)}, {vr(t+2,2)}")
        un = []
        for i in range(2, 18):
            un.append(f"v_lshlrev_b32 {vr(F+2*i)}, 16, {vr(X+i)}\nv_and_b32 {vr(F+2*i+1)}, 0xffff0000, {vr(X+i)}")
        sv = (a.bg, a.every, a.cnt, a.skip)
        n0 = len(a.lines)
        a.bg, a.every = [], 0
        self.ln_tail(F, out, t, True)
        tail = a.lines[n0:]
        del a.lines[n0:]
        a.bg, a.every, a.cnt, a.skip = sv
        k = next(i for i, l in enumerate(tail) if "v_pk_fma" in l)
        for i, l in enumerate(tail[:k]):
            if "s_nop" in l and un: continue_nop = True
            a(l)
            if un and not l.strip().startswith("s_nop"): a(un.pop(0))
        while un: a(un.pop(0))
        for l in tail[k:]: a(l)

    def ln_f32(self, F, out, t):
        a = self.a
        p = lambda r: vr(r, 2)
        a(f"v_pk_add_f32 {p(t)}, {p(F)}, {p(F+2)}\nv_pk_add_f32 {p(t+2)}, {p(F+4)}, {p(F+6)}")
        a(f"v_pk_mul_f32 {p(t+4)}, {p(F)}, {p(F)}\nv_pk_mul_f32 {p(t+6)}, {p(F+2)}, {p(F+2)}")
        for i in range(2, 18):
            if i >= 4: a(f"v_pk_add_f32 {p(t+2*(i&1))}, {p(t+2*(i&1))}, {p(F+2*i)}")
            a(f"v_pk_fma_f32 {p(t+4+2*(i&1))}, {p(F+2*i)}, {p(F+2*i)}, {p(t+4+2*(i&1))}")
        a(f"v_pk_add_f32 {p(t)}, {p(t)}, {p(t+2)}\nv_pk_add_f32 {p(t+4)}, {p(t+4)}, {p(t+6)}")
        a(f"v_add_f32 {vr(t)}, {vr(t)}, {vr(t+1)}\nv_add_f32 {vr(t+1)}, {vr(t+4)}, {vr(t+5)}")
        self.ln_tail(F, out, t, False)

    def gemm_u(self, AF, rf, Bs, ACC, afr, bfr, post, vm_items=(), other=(), lead=7, vm0=0, vmsp=4):
        a = self.a
        units = [(0, j) for j in range(4)] + [(1, j) for j in range(4)] + [(2, 0)]
        seq, dl = [], {}
        bs = lambda j, o_, n: self.rg((Bs[j][0], Bs[j][1] + o_), n)
        rem = lambda u: (f"v_mfma_f32_16x16x16_bf16 {vr(ACC+4*u,4)}, {rf(AF+18*units[u][0]+16,2)}, {bs(units[u][1],16,2)}, {vr(ACC+4*u,4)}", u)
        A = [afr(t) for t in range(3)]
        Bf = [bfr(j) for j in range(4)]

        def use(t, j, s, k):
            for x in (A[t][2 * s:2 * s + 2] if s < 4 else A[t][8:]) + ([Bf[j][s]] if Bf[j] else []): dl.setdefault(x, k)
        for g in range(4):
            for s in range(4):
                for u in range(3 * g, 3 * g + 3) if g < 3 else []:
                    t, j = units[u]
                    d = vr(ACC + 4 * u, 4)
                    use(t, j, s, len(seq))
                    seq.append((f"v_mfma_f32_16x16x32_bf16 {d}, {rf(AF+18*t+4*s,4)}, {bs(j,4*s,4)}, {'0' if s == 0 else d}", None))
                if s == 0 and g > 0:
                    for u in range(3 * g - 3, 3 * g):
                        use(units[u][0], units[u][1], 4, len(seq)); seq.append(rem(u))
        last = seq[-3:]; seq = seq[:-3]
        ds = sorted(dl.items(), key=lambda e: e[1]) + [(x, 99) for x in other]
        vm_items = list(vm_items)
        lastvm = vm0 - vmsp
        order, ready, q, done = [], [], [], 0

        def issue():
            x, k_ = ds.pop(0); a(x); order.append(k_)

        def wait(k):
            nonlocal done
            idx = [i_ for i_, k_ in enumerate(order) if k_ <= k]
            if idx and max(idx) + 1 > done:
                a(f"s_waitcnt lgkmcnt({min(15, len(order) - 1 - max(idx))})"); done = max(idx) + 1
        while ds and ds[0][1] < 6: issue()
        for k, (m, fin) in enumerate(seq):
            assert not ds or ds[0][1] > k, (k, ds[0])
            wait(k)
            a(m)
            for u_, kk in list(ready):
                if k - kk >= 4: q += post(u_); ready.remove((u_, kk))
            if fin is not None: ready.append((fin, k))
            due = sum(1 for x, k_ in ds if k_ <= k + lead)
            if due == 0 and vm_items and k >= lastvm + vmsp:
                a(vm_items.pop(0)); lastvm = k; continue
            cap = 2
            for _ in range(min(due, 3)): issue(); cap -= 1
            if cap == 2:
                if q and q[0].startswith("ds_"): a(q.pop(0)); order.append(99); cap -= 1
                elif ds: issue(); cap -= 1
            while cap > 0 and q and not q[0].startswith("ds_"):
                a(q.pop(0)); cap -= 1
        assert not ready
        while ds: issue()
        wait(98)
        for x in vm_items: a(x)
        for x in q[:4]: a(x)
        a(f"s_nop {max(0, 4 - len(q[:4]))}")
        for m, _ in last: a(m)
        for x in q[4:]: a(x)
        a(f"s_nop {max(0, 6 - len(q[4:]))}")
        for u in range(6, 9):
            for x in post(u): a(x)

    def gemm(self, reads, B, ACC, AF, late=(), at={}, per=2):
        a = self.a
        buf = lambda T: 18 * (T % 6)
        ng = 3 * (4 * per + 1)

        def grp(g):
            r = [reads(T, buf(T)) for T in range(3 * g, 3 * g + 3)]
            return [r[t][per * s + u] for s in range(4) for t in range(3) for u in range(per)] + [r[t][4 * per] for t in range(3)]
        rem = lambda T: f"v_mfma_f32_16x16x16_bf16 {vr(ACC+4*T,4)}, {ar(buf(T)+16,2)}, {vr(B+16,2)}, {vr(ACC+4*T,4)}"
        pend = grp(0) + grp(1) + grp(2) + list(late)
        issued = k = 0

        def issue(n):
            nonlocal issued
            for _ in range(n):
                if issued < len(pend): a(pend[issued]); issued += 1

        def mf(x):
            nonlocal k
            a(x); issue(per if per == 2 else (2 if k % 4 == 0 else 1))
            if k in at: a(at[k])
            k += 1
        issue(self.o.get('look', 12) if per == 2 else self.o.get('look1', 8))
        for g in range(3):
            for s in range(4):
                need = ng * g + 3 * per * (s + 1)
                a(f"s_waitcnt lgkmcnt({min(15, issued - need)})")
                for T in range(3 * g, 3 * g + 3):
                    d = vr(ACC + 4 * T, 4)
                    mf(f"v_mfma_f32_16x16x32_bf16 {d}, {ar(buf(T)+4*s,4)}, {vr(B+4*s,4)}, {'0' if s == 0 else d}")
                if s == 0 and g > 0:
                    for T in range(3 * g - 3, 3 * g): mf(rem(T))
                if g == 1 and s == 0: assert issued <= 2 * ng + 6 * per, "group 2 overwrites group 0 too early"
        issue(99)
        a(f"s_waitcnt lgkmcnt({len(late)})\ns_nop 2")
        for T in range(6, 9): a(rem(T))
        a("s_nop 7")

    def tr_reads(self, ad, rf=ar):
        def f(T, dst):
            out = []
            for s in range(4):
                for u in range(2):
                    out.append(f"ds_read_b64_tr_b16 {rf(dst+4*s+2*u,2)}, {vr(ad+u)} offset:{9216*s + 32*T}")
            out.append(f"ds_read_b64_tr_b16 {rf(dst+16,2)}, {vr(ad+2)} offset:{36864 + 32*T}")
            return out
        return f

    def row_reads(self, ad, sw=None):
        def f(T, dst):
            r = ad if sw is None or T == 8 else sw[T & 1]
            out = []
            for s in range(4):
                for u in range(2):
                    out.append(f"ds_read_b64 {ar(dst+4*s+2*u,2)}, {vr(r)} offset:{4864*T + 64*s + 32*u}")
            out.append(f"ds_read_b64 {ar(dst+16,2)}, {vr(r)} offset:{4864*T + 256}")
            return out
        return f

    def dma_rows(self, jobs, cpr, rstride, vo, vc, n_first, first_waves, lab):
        a = self.a
        mul = {18: 3641, 19: 3450}[cpr]
        dr, dc = 256 // cpr, 256 % cpr
        a(f"s_lshl_b32 {sr(S_T)}, {sr(S_W)}, 6")
        a(f"v_add_u32 {vr(vc)}, {sr(S_T)}, v0")
        a(f"v_mul_u32_u24 {vr(vo)}, {mul}, {vr(vc)}")
        a(f"v_lshrrev_b32 {vr(vo)}, 16, {vr(vo)}")
        a(f"v_mul_u32_u24 {vr(vc+1)}, {cpr}, {vr(vo)}")
        a(f"v_sub_u32 {vr(vc)}, {vr(vc)}, {vr(vc+1)}")
        a(f"v_mul_u32_u24 {vr(vo)}, {rstride}, {vr(vo)}")
        a(f"v_lshl_add_u32 {vr(vo)}, {vr(vc)}, 4, {vr(vo)}")
        a(f"s_lshl_b32 {sr(S_T)}, {sr(S_W)}, 10")
        a(f"v_mov_b32 {vr(vc+1)}, {rstride - 16*cpr}")
        for k in range(n_first):
            if k == n_first - 1:
                a(f"s_cmp_ge_u32 {sr(S_W)}, {first_waves}\ns_cbranch_scc1 {lab}")
            for srd, so, lb in jobs:
                a(f"s_add_u32 m0, {sr(S_T)}, {lb + 4096*k}")
                a("s_nop 0")
                a(f"buffer_load_dwordx4 {vr(vo)}, {sr(srd,4)}, {so} offen lds")
            if k < n_first - 1:
                a(f"v_add_u32 {vr(vc)}, {dc}, {vr(vc)}")
                a(f"v_cmp_le_u32 vcc, {cpr}, {vr(vc)}")
                a(f"v_add_u32 {vr(vo)}, {dr*rstride + 16*dc}, {vr(vo)}")
                a(f"v_subrev_u32 {vr(vc+2)}, {cpr}, {vr(vc)}")
                a(f"v_cndmask_b32 {vr(vc)}, {vr(vc)}, {vr(vc+2)}, vcc")
                a(f"v_cndmask_b32 {vr(vc+2)}, 0, {vr(vc+1)}, vcc")
                a(f"v_add_u32 {vr(vo)}, {vr(vo)}, {vr(vc+2)}")
        a.label(lab)

    def voff_table(self, dst, cpr, rstride, vc, step=256):
        a = self.a
        mul = {18: 29128, 19: 27595}[cpr]
        n = len(dst)
        a(f"s_mov_b32 {sr(S_T)}, {rstride - 16*cpr}")
        a(f"v_mul_u32_u24 {vr(dst[0])}, {mul}, {vr(vc)}")
        for k in range(1, n): a(f"v_add_u32 {vr(dst[k])}, {(step*k % cpr)*mul}, {vr(dst[0])}")
        for k in range(n): a(f"v_lshrrev_b32 {vr(dst[k])}, 19, {vr(dst[k])}")
        for k in range(n): a(f"v_mad_i32_i24 {vr(dst[k])}, {vr(dst[k])}, {sr(S_T)}, {vr(vc+1)}")

    def dma_lin(self, srd, soff, lb, v16, lab):
        a = self.a
        a(f"s_lshl_b32 {sr(S_T)}, {sr(S_W)}, 10")
        for k in range(11):
            if k == 10:
                a(f"s_cmp_ge_u32 {sr(S_W)}, 1\ns_cbranch_scc1 {lab}")
            a(f"s_add_u32 m0, {sr(S_T)}, {lb + 4096*k}")
            a(f"s_add_u32 {sr(S_T+1)}, {sr(S_T)}, {soff + 4096*k}")
            a(f"buffer_load_dwordx4 {vr(v16)}, {sr(srd,4)}, {sr(S_T+1)} offen lds")
        a.label(lab)

    def tr_addr(self, ad, base, swapped, t):
        a = self.a
        a(f"v_lshrrev_b32 {vr(t)}, 2, v0")
        a(f"v_mul_u32_u24 {vr(t)}, 288, {vr(t)}")
        a(f"v_and_b32 {vr(t+1)}, 3, v0")
        a(f"v_lshl_add_u32 {vr(t)}, {vr(t+1)}, 3, {vr(t)}")
        a(f"v_add_u32 {vr(ad+2)}, {base}, {vr(t)}")
        if swapped:
            a(f"v_bfe_u32 {vr(t)}, v0, 4, 1")
            a(f"v_mul_u32_u24 {vr(t)}, {16*288}, {vr(t)}")
            a(f"v_add_u32 {vr(ad)}, {vr(ad+2)}, {vr(t)}")
            a(f"v_sub_u32 {vr(ad+1)}, {vr(ad+2)}, {vr(t)}")
            a(f"v_add_u32 {vr(ad+1)}, {16*288}, {vr(ad+1)}")
        else:
            a(f"v_mov_b32 {vr(ad)}, {vr(ad+2)}")
            a(f"v_add_u32 {vr(ad+1)}, {16*288}, {vr(ad+2)}")

    def row_addr(self, ad, base, t):
        a = self.a
        a(f"v_and_b32 {vr(t)}, 15, v0")
        a(f"v_mul_u32_u24 {vr(t)}, 304, {vr(t)}")
        a(f"v_lshrrev_b32 {vr(t+1)}, 4, v0")
        a(f"v_lshl_add_u32 {vr(t)}, {vr(t+1)}, 3, {vr(t)}")
        a(f"v_add_u32 {vr(ad)}, {base}, {vr(t)}")

    def store_block(self, src, v16, v8, srd, soff, soff2, flags=""):
        a = self.a
        for s in range(4):
            a(f"buffer_store_dwordx4 {vr(src+4*s,4)}, {vr(v16)}, {sr(srd,4)}, {sr(soff)} offen offset:{1024*s} {flags}")
        a(f"buffer_store_dwordx2 {vr(src+16,2)}, {vr(v8)}, {sr(srd,4)}, {sr(soff2)} offen {flags}")

    def entry(self):
        a = self.a
        kernel_header(a, NAME)
        a(f"s_load_dwordx16 s[56:71], s[0:1], 0")
        a(f"s_load_dwordx8 s[72:79], s[0:1], 64")
        a(f"s_getpc_b64 {sr(S_W1,2)}")
        a.label("L_pf")
        hl = self.o.get("hlast", 1)
        if not hl: a(f"s_cmp_lt_u32 s2, {NH}\ns_cbranch_scc1 L_wfuse")
        a(f"""s_mov_b32 {sr(S_W1+2)}, L_dummy-L_pf
        s_mov_b32 {sr(S_W1+3)}, 0x20000
        v_lshlrev_b32 v1, 4, v0
        s_bfe_u32 {sr(S_T)}, s2, 0x30003
        s_lshl_b32 {sr(S_T)}, {sr(S_T)}, 12
        buffer_load_dwordx4 v[252:255], v1, {sr(S_W1,4)}, 0 offen
        buffer_load_dwordx4 v[252:255], v1, {sr(S_W1,4)}, {sr(S_T)} offen
        s_cmp_ge_u32 s2, {NWG - NH * hl}
        s_cbranch_scc1 {"L_wfuse" if hl else "L_end"}""")
        if self.o.get("stamps"):
            a("s_memrealtime s[100:101]" if not self.o.get("cyc") else "s_memtime s[100:101]")
        self.mp = 2
        a(f"""v_lshrrev_b32 v1, 6, v0
        s_sub_u32 s2, s2, {0 if hl else NH}
        v_readfirstlane_b32 {sr(S_W)}, v1
        s_and_b32 {sr(S_H)}, s2, 1
        s_bfe_u32 {sr(S_B)}, s2, 0x10001
        s_lshr_b32 {sr(S_QB)}, s2, 2
        v_and_b32 v0, 63, v0
        v_lshlrev_b32 {vr(V_DMA)}, 4, v0""")

    def vm_since(self, mark):
        return sum(1 for l in self.a.lines[mark:] if l.strip().startswith("buffer_"))

    def phase_a(self):
        a, o = self.a, self.o
        XR, XF, XA, ACC, G_, PK = 16, 34, 146, 110, 16, 164
        B4, XD = 16, 88
        VS, VSW, VR4, MXA, MXR, L8, TRU, TRQ, TRQ8, RK, TM = 200, 204, 208, 212, 213, 214, 215, 218, 221, 224, 228
        VK, VU = list(range(182, 193)), list(range(193, 200)) + list(range(104, 108))
        AQ1 = 200
        t0, t1, t2 = 250, 251, 227
        T = S_T
        WV, W10, UOFF, M1, PUB, M3 = 72, 70, 71, 69, 68, 65
        a(f"""s_lshl_b32 {sr(T)}, {sr(S_QB)}, 1
        s_add_u32 {sr(S_TOWN)}, {sr(T)}, {sr(S_H)}
        s_xor_b32 {sr(S_TSND)}, {sr(S_TOWN)}, 1
        s_cmp_lt_u32 {sr(S_TOWN)}, {NT}
        s_cselect_b32 {sr(S_VAL)}, 1, 0
        s_cmp_lt_u32 {sr(S_W)}, 2
        s_cselect_b32 {sr(T+3)}, {sr(S_TSND)}, {sr(S_TOWN)}
        s_mul_i32 {sr(T)}, {sr(S_B)}, {NT}
        s_add_u32 {sr(S_TOWN)}, {sr(S_TOWN)}, {sr(T)}
        s_add_u32 {sr(S_TSND)}, {sr(S_TSND)}, {sr(T)}
        s_add_u32 {sr(T+1)}, {sr(T+3)}, {sr(T)}
        s_lshl_b32 {sr(T+1)}, {sr(T+1)}, 1
        s_and_b32 {sr(T+2)}, {sr(S_W)}, 1
        s_add_u32 {sr(T+2)}, {sr(T+1)}, {sr(T+2)}
        s_mul_i32 {sr(T+1)}, {sr(T+2)}, {16*288}
        s_mul_i32 {sr(S_LB)}, {sr(S_W)}, {BLK}
        s_add_u32 {sr(S_LB)}, {sr(S_LB)}, {L_XS}
        s_mov_b32 m0, {sr(S_LB)}
        s_mov_b32 {sr(S_X+2)}, 2304000
        s_mov_b32 {sr(S_X+3)}, 0x20000
        s_add_u32 {sr(S_CNT)}, {sr(T+1)}, 4096
        s_waitcnt lgkmcnt(0)
        s_mov_b32 {sr(S_X)}, s56
        s_mov_b32 {sr(S_X+1)}, s57""")
        for k in range(4): a(f"buffer_load_dwordx4 {vr(V_DMA)}, {sr(S_X,4)}, {sr(T+1)} offen offset:{1024*k} lds")
        a(f"s_add_u32 m0, {sr(S_LB)}, 4096\ns_mov_b32 exec_hi, 0\nbuffer_load_dwordx4 {vr(V_DMA)}, {sr(S_X,4)}, {sr(S_CNT)} offen lds\ns_mov_b32 exec_hi, -1")
        mx = len(a.lines)
        SQ, SK, SU = S_W2, S_W1, S_XA
        self.srd(SU, 66, 67, 82944)
        self.srd(SQ, 58, 59, 41472)
        self.srd(SK, 60, 61, 41472)
        a(f"s_lshr_b32 {sr(T)}, s2, 3\ns_lshl_b32 {sr(T)}, {sr(T)}, 12\ns_lshl_b32 {sr(W10)}, {sr(S_W)}, 10\ns_add_u32 {sr(T)}, {sr(T)}, {sr(W10)}")
        a(f"buffer_load_dwordx4 v[252:255], {vr(V_DMA)}, {sr(SU,4)}, {sr(T)} offen")
        for srd_, rot in ((SQ, 82), (SK, 41)):
            a(f"s_add_u32 {sr(T+1)}, {sr(T)}, {(128 - rot) * 1024}\ns_and_b32 {sr(T+1)}, {sr(T+1)}, {127 * 1024}")
            a(f"buffer_load_dwordx4 v[252:255], {vr(V_DMA)}, {sr(srd_,4)}, {sr(T+1)} offen")
        self.srd(S_OUT, 74, 75, 2304000)
        self.srd(S_DB, 76, 77, 256)
        self.srd(S_WS, 78, 79, WS_END)
        def tlb():
            a(f"v_lshlrev_b32 v249, 21, v0")
            for ch in o.get("tlbw", "wdo"): a(f"buffer_load_dword v252, v249, {sr(dict(w=S_WS, d=S_DB, o=S_OUT)[ch],4)}, 0 offen")
        if o.get("tlb", 0) == 1: tlb()
        if o.get("stamps"): a(f"s_mov_b64 {sr(S_ST,2)}, s[100:101]"); self.stnames.append("start"); self.nst = 1
        self.stamp("xiss")
        a(f"""s_cmp_lt_u32 {sr(T+3)}, {NT}
        s_cselect_b32 {sr(WV)}, 1, 0
        s_mov_b32 {sr(WV+1)}, {sr(T+2)}
        s_mul_i32 {sr(UOFF)}, {sr(S_H)}, 288
        s_cmp_eq_u32 {sr(S_W)}, 0
        s_cselect_b32 {sr(M1)}, 0, {L_DUMP}
        s_cmp_lt_u32 {sr(S_W)}, 3
        s_cselect_b32 {sr(M3)}, {sr(W10)}, {L_DUMP}""")
        half = lambda g_: "s_mov_b32 exec_hi, 0\n" + g_ + "\ns_mov_b32 exec_hi, -1"
        gu = [f"s_add_u32 m0, {sr(W10 if k < 10 else M1)}, {L_WU + 4096*k}\ns_add_u32 {sr(S_CNT)}, {sr(UOFF)}, {4096*k + 288*(256*k//18)}\nbuffer_load_dwordx4 {vr(VU[k])}, {sr(SU,4)}, {sr(S_CNT)} offen lds" for k in range(11)]
        gu[10] = half(gu[10])
        gq = [f"s_add_u32 m0, {sr(W10 if k < 10 else M1)}, {L_WQ + 4096*k}\ns_add_u32 {sr(S_CNT)}, {sr(W10)}, {4096*k}\nbuffer_load_dwordx4 {vr(V_DMA)}, {sr(SQ,4)}, {sr(S_CNT)} offen lds" for k in range(11)]
        gq[10] = half(gq[10])
        gk = [f"s_add_u32 m0, {sr(W10 if k < 10 else M3)}, {L_WK + 4096*k}\ns_mov_b32 {sr(S_CNT)}, {4096*k - 16*(256*k//19)}\nbuffer_load_dwordx4 {vr(VK[k])}, {sr(SK,4)}, {sr(S_CNT)} offen lds" for k in range(11)]
        a(f"s_lshl_b32 {sr(T)}, {sr(S_W)}, 6\nv_add_u32 {vr(t0)}, {sr(T)}, v0\nv_lshlrev_b32 {vr(t1)}, 4, {vr(t0)}")
        self.voff_table(VU, 18, 576, t0)
        npre = o.get("npre", 6)
        a.bg, a.every, a.cnt = gu[:npre], o.get("evpre", 14), 0
        self.voff_table(VK, 19, 288, t0)
        xa0, xa1, xa2 = TM, TM + 1, TM + 2
        a(f"""v_and_b32 {vr(t0)}, 15, v0
        v_lshrrev_b32 {vr(t1)}, 5, v0
        v_lshlrev_b32 {vr(t1)}, 3, {vr(t1)}
        v_xor_b32 {vr(t1)}, {vr(t0)}, {vr(t1)}
        v_lshlrev_b32 {vr(t1)}, 4, {vr(t1)}
        v_lshrrev_b32 {vr(t2)}, 4, v0
        v_lshl_add_u32 {vr(V_KA)}, {vr(t2)}, 9, {vr(t1)}
        v_lshrrev_b32 {vr(t1)}, 3, {vr(t0)}
        v_lshlrev_b32 {vr(t1)}, 1, {vr(t1)}
        v_xor_b32 {vr(t1)}, {vr(t2)}, {vr(t1)}
        v_lshl_add_u32 {vr(t1)}, {vr(t0)}, 2, {vr(t1)}
        v_lshlrev_b32 {vr(V_KA+1)}, 3, {vr(t1)}
        v_lshlrev_b32 {vr(L8)}, 3, v0
        v_lshlrev_b32 {vr(MXR)}, 4, {vr(t0)}
        v_add_u32 {vr(MXR)}, {L_MX}, {vr(MXR)}
        v_add_u32 {vr(MXA)}, {sr(S_W)}, {vr(t2)}
        v_and_b32 {vr(MXA)}, 3, {vr(MXA)}
        v_lshl_add_u32 {vr(MXA)}, {vr(MXA)}, 8, {vr(MXR)}
        s_lshl_b32 {sr(T)}, {sr(S_W)}, 2
        v_add_u32 {vr(MXA)}, {sr(T)}, {vr(MXA)}
        v_mul_u32_u24 {vr(xa2)}, 288, {vr(t0)}
        v_lshl_add_u32 {vr(xa2)}, {vr(t2)}, 3, {vr(xa2)}
        v_add_u32 {vr(xa2)}, {sr(S_LB)}, {vr(xa2)}
        v_and_b32 {vr(t1)}, 1, {vr(t2)}
        v_lshlrev_b32 {vr(t1)}, 5, {vr(t1)}
        v_add_u32 {vr(xa0)}, {vr(xa2)}, {vr(t1)}
        v_xor_b32 {vr(t1)}, 32, {vr(t1)}
        v_add_u32 {vr(xa1)}, {vr(xa2)}, {vr(t1)}
        s_mul_i32 {sr(S_LB)}, {sr(S_W)}, {TILE}
        v_lshrrev_b32 {vr(t0)}, 2, v0
        v_bfe_u32 {vr(t1)}, v0, 1, 1
        v_lshlrev_b32 {vr(t1)}, 3, {vr(t1)}
        v_xor_b32 {vr(t1)}, {vr(t0)}, {vr(t1)}
        v_lshlrev_b32 {vr(t1)}, 4, {vr(t1)}
        v_and_b32 {vr(t2)}, 3, v0
        v_lshl_add_u32 {vr(t1)}, {vr(t2)}, 9, {vr(t1)}
        v_and_b32 {vr(V_VA)}, 1, v0
        v_lshl_add_u32 {vr(t1)}, {vr(V_VA)}, 3, {vr(t1)}
        s_and_b32 {sr(T)}, {sr(S_W)}, 1
        s_lshl_b32 {sr(T)}, {sr(T)}, 12
        s_add_u32 {sr(T+1)}, {sr(T)}, {sr(S_LB)}
        s_xor_b32 {sr(T)}, {sr(T)}, 4096
        s_add_u32 {sr(T)}, {sr(T)}, {sr(S_LB)}
        v_add_u32 {vr(V_VA)}, {sr(T)}, {vr(t1)}
        v_add_u32 {vr(V_VB)}, {sr(T+1)}, {vr(t1)}
        v_xor_b32 {vr(V_VA+1)}, 8, {vr(V_VA)}
        v_xor_b32 {vr(V_VB+1)}, 8, {vr(V_VB)}
        v_lshrrev_b32 {vr(t1)}, 5, v0
        v_lshlrev_b32 {vr(t1)}, 1, {vr(t1)}
        v_xor_b32 {vr(t1)}, {vr(t2)}, {vr(t1)}
        v_lshl_add_u32 {vr(t1)}, {vr(t0)}, 2, {vr(t1)}
        v_lshlrev_b32 {vr(t1)}, 3, {vr(t1)}
        v_add_u32 {vr(V_VR)}, {sr(S_LB)}, {vr(t1)}
        v_add_u32 {vr(V_DMA+1)}, 4096, {vr(V_DMA)}
        v_add_u32 {vr(V_DMA+2)}, 8192, {vr(V_DMA)}""")
        self.tr_addr(TRU, L_WU, True, t0)
        a(f"s_lshl_b32 {sr(T)}, {sr(S_W)}, 6\ns_add_u32 {sr(T)}, {sr(T)}, {L_WQ - L_WU}")
        for k in range(3):
            a(f"v_add_u32 {vr(TRQ+k)}, {sr(T)}, {vr(TRU+k)}\nv_add_u32 {vr(TRQ8+k)}, {L_WQ - L_WU + 256}, {vr(TRU+k)}")
        self.row_addr(RK + 2, L_WK + 8 * 4864, t0)
        a(f"""s_mul_i32 {sr(T)}, {sr(S_W)}, {2*4864}
        s_sub_u32 {sr(T)}, {sr(T)}, {8*4864}
        v_add_u32 {vr(t1)}, {sr(T)}, {vr(RK+2)}
        v_bfe_u32 {vr(t0)}, v0, 2, 1
        v_mul_u32_u24 {vr(t0)}, 4864, {vr(t0)}
        v_add_u32 {vr(RK)}, {vr(t1)}, {vr(t0)}
        v_sub_u32 {vr(RK+1)}, {vr(t1)}, {vr(t0)}""")
        for j in range(4):
            a(f"""s_add_u32 {sr(T)}, {sr(S_W)}, {j}
            s_and_b32 {sr(T)}, {sr(T)}, 3
            s_lshl_b32 {sr(T+1)}, {sr(T)}, 12
            s_add_u32 {sr(T+1)}, {sr(T+1)}, {L_XX}
            v_add_u32 {vr(VS+j)}, {sr(T+1)}, {vr(V_DMA)}
            s_lshl_b32 {sr(T+1)}, {sr(T)}, 9
            s_add_u32 {sr(T+1)}, {sr(T+1)}, {L_XR}
            v_add_u32 {vr(VR4+j)}, {sr(T+1)}, {vr(L8)}
            v_add_u32 {vr(VSW+j)}, {sr(W10)}, {vr(VS+j)}""")
        a(f"""s_sub_u32 {sr(T+2)}, 63, {sr(S_H)}
        s_add_u32 {sr(T+3)}, {sr(S_W)}, 60
        s_cmp_ge_u32 {sr(T+3)}, {sr(T+2)}
        s_cselect_b32 {sr(S_DUM)}, 4, 99
        s_mov_b32 {sr(S_REDO)}, 0
        s_mov_b32 {sr(S_TOFF)}, {sr(S_LB)}
        s_sub_u32 {sr(T)}, {sr(S_TOWN)}, 63
        s_mul_i32 {sr(T+1)}, {sr(S_B)}, {NT}
        s_cmp_ge_i32 {sr(T)}, {sr(T+1)}
        s_cselect_b32 {sr(T)}, 64, 0
        s_lshl_b32 {sr(T+1)}, {sr(S_B)}, 7
        s_add_u32 {sr(PUB)}, {sr(T)}, {sr(T+1)}
        s_cmp_eq_u32 {sr(S_W)}, 2
        s_cselect_b32 {sr(T)}, {sr(S_VAL)}, 0
        s_cmp_eq_u32 {sr(T)}, 1
        s_cselect_b32 {sr(PUB)}, {sr(PUB)}, 0x40000000
        s_add_u32 {sr(T+1)}, {sr(T+1)}, {DB_CB}
        v_mov_b32 {vr(self.VPL)}, {sr(T+1)}""")
        a.flush()
        if o.get("tlb", 0) == 2: tlb()
        self.stamp("pre")
        if o.get("es", 0) == 0: self.epi_setup()
        self.stamp("es")
        nx = self.vm_since(mx)
        if o.get("touch", 1):
            a(f"""s_mov_b64 exec, 0
            s_cmp_eq_u32 {sr(S_W)}, 0
            s_cbranch_scc1 L_tr
            s_cmp_eq_u32 {sr(S_W)}, 1
            s_cbranch_scc1 L_t0
            s_cmp_eq_u32 {sr(S_W)}, 2
            s_cbranch_scc1 L_t1
            s_branch L_t2""")
            self.rare()
            a.raw(".p2align 12")
            a.label("L_tr")
            a("s_mov_b64 exec, -1")
        nlate = o.get("nlate", 0)
        for g_ in gu[npre:npre + nlate]: a(g_)
        a(f"s_waitcnt vmcnt({nx + nlate})")
        self.stamp("xarr")
        for s in range(4):
            a(f"ds_read_b64 {vr(XR+4*s,2)}, {vr(xa0)} offset:{64*s}\nds_read_b64 {vr(XR+4*s+2,2)}, {vr(xa1)} offset:{64*s}")
        a(f"ds_read_b64 {vr(XR+16,2)}, {vr(xa2)} offset:256")
        a(f"""s_and_b32 {sr(T)}, {sr(S_W)}, 1
        s_mul_i32 {sr(T+2)}, {sr(S_TOWN)}, {TILE}
        s_cmp_eq_u32 {sr(S_VAL)}, 1
        s_cselect_b32 {sr(T+2)}, {sr(T+2)}, 0x40000000
        s_lshl_b32 {sr(T+3)}, {sr(T)}, 8
        s_add_u32 {sr(T+3)}, {sr(T+3)}, {sr(T+2)}
        s_add_u32 {sr(T+4)}, {sr(T+3)}, 4096
        s_lshl_b32 {sr(T+5)}, {sr(T)}, 9
        s_add_u32 {sr(T+5)}, {sr(T+5)}, {sr(T+2)}
        s_add_u32 {sr(T+5)}, {sr(T+5)}, 8192
        s_waitcnt lgkmcnt(0)""")
        wl = gq + gk
        a.bg, a.every, a.cnt = gu[npre + nlate:] + [wl.pop(0) for _ in range(o.get("nql", 4))], o.get("evln", 10), 0
        self.ln_packed(XR, XF, XA, TM)
        a.flush()
        self.stamp("ln")
        a(f"s_cmp_lt_u32 {sr(S_W)}, 2\ns_cbranch_scc1 L_nop")
        for s in range(4):
            a(f"buffer_store_dwordx4 {vr(XA+4*s,4)}, {vr(V_KA)}, {sr(S_WS,4)}, {sr(T+3+(s>>1))} offen offset:{2048*(s&1)} sc1")
        a(f"buffer_store_dwordx2 {vr(XA+16,2)}, {vr(V_KA+1)}, {sr(S_WS,4)}, {sr(T+5)} offen sc1\ns_waitcnt vmcnt({5 + o.get('nql', 4)})\ns_branch L_bar1")
        a.label("L_nop")
        if o.get("touch", 1):
            a(f"s_mov_b64 exec, 0\ns_cmp_eq_u32 {sr(S_W)}, 0\ns_cbranch_scc1 L_t3\ns_branch L_t4")
            a.label("L_tr2")
            a("s_mov_b64 exec, -1")
        a(f"s_waitcnt vmcnt({o.get('nql', 4)})")
        a.label("L_bar1")
        self.stamp("pub")
        xw = [f"ds_write_b128 {vr(VS)}, {vr(XA+4*s,4)} offset:{1024*s}" for s in range(4)] + [f"ds_write_b64 {vr(VR4)}, {vr(XA+16,2)}"]
        self.stamp("tch")
        PA = 249
        a(f"""v_add_u32 {vr(V_KA)}, {sr(S_LB)}, {vr(V_KA)}
        v_add_u32 {vr(V_KA+1)}, {sr(S_LB)}, {vr(V_KA+1)}
        s_lshl1_add_u32 {sr(T)}, {sr(S_B)}, {sr(S_H)}
        s_lshl_b32 {sr(T)}, {sr(T)}, 6
        s_cmp_eq_u32 {sr(S_W)}, 0
        s_cselect_b32 {sr(T)}, {sr(T)}, 0x40000000
        v_mov_b32 {vr(PA)}, {sr(T)}
        {self.xa_srd()}
        s_waitcnt lgkmcnt(0)""")
        self.stamp("w1")
        a("s_barrier")
        self.stamp("bar1")
        poll = lambda r: f"buffer_load_dword {vr(r)}, {vr(PA)}, {sr(S_DB,4)}, 0 offen sc1"

        def gate(lab, r, word, need, younger):
            a(f"s_mov_b32 {sr(T+2)}, 0\ns_waitcnt vmcnt({younger})")
            a.label(lab)
            a(f"""v_readfirstlane_b32 {sr(T+3)}, {vr(r+word)}
            s_add_u32 {sr(T+2)}, {sr(T+2)}, 1
            s_cmp_ge_u32 {sr(T+3)}, {need}
            s_cbranch_scc1 {lab}_ok
            {poll(r)}
            s_waitcnt vmcnt(0)
            s_cmp_lt_u32 {sr(T+2)}, 0x40000
            s_cbranch_scc1 {lab}""")
            a.label(lab + "_ok")

        H, G_, UG, MS, CL = 16, 52, 208, 110, 104
        nup = o.get("nup", 12)
        at = {o.get("u0", 6) + o.get("usp", 3) * i: wl.pop(0) for i in range(nup)}
        for i in range(5): at[i] = xw[i]
        if o.get("es", 0) == 1:
            n_ = len(a.lines); self.epi_setup()
            el = [l.strip() for l in a.lines[n_:]]; del a.lines[n_:]
            for k in range(5, 42):
                if k in at: continue
                c_ = 0
                while el and c_ < o.get("esn", 2):
                    x = el.pop(0); at[k] = at.get(k, "") + x + "\n"; c_ += 1 if x.startswith("v_") else 0.5
            self.es_left = el
        self.gemm(self.tr_reads(TRU), XA, H, None, at=at)
        if o.get("es", 0) == 1:
            for x in self.es_left: a(x)
        self.stamp("up")
        last = lambda srd: max(i for i, l in enumerate(a.lines) if l.strip().startswith("buffer_load") and sr(srd, 4) in l) + 1
        assert not any(sr(SQ, 4) in x for x in wl)
        a(f"v_mov_b32 {vr(t0)}, {sr(PUB)}\nv_mov_b32 {vr(t1)}, 1\ns_waitcnt vmcnt({self.vm_since(last(SQ))}) lgkmcnt(0)\ns_barrier")
        a(f"s_mov_b64 exec, 1\nbuffer_atomic_add {vr(t1)}, {vr(t0)}, {sr(S_DB,4)}, 0 offen sc1\ns_mov_b64 exec, -1")
        self.stamp("barG")

        def a_tr(t):
            ad, off = (TRQ, 32 * t) if t < 2 else (TRQ8, 0)
            return [f"ds_read_b64_tr_b16 {ar(AQ1+18*t+4*s+2*u,2)}, {vr(ad+u)} offset:{9216*s + off}" for s in range(4) for u in range(2)] + \
                   [f"ds_read_b64_tr_b16 {ar(AQ1+18*t+16,2)}, {vr(ad+2)} offset:{36864 + off}"]

        def a_row(t):
            off = 4864 * t if t < 2 else 0
            return [f"ds_read_b64 {ar(A_Q+18*t+4*s+2*u,2)}, {vr(RK+t)} offset:{off + 64*s + 32*u}" for s in range(4) for u in range(2)] + \
                   [f"ds_read_b64 {ar(A_Q+18*t+16,2)}, {vr(RK+t)} offset:{off + 256}"]
        bq = lambda j, d=0: [f"ds_read_b128 {ar(18*j+4*s,4)}, {vr(VS+j)} offset:{d + 1024*s}" for s in range(4)] + [f"ds_read_b64 {ar(18*j+16,2)}, {vr(VR4+j)} offset:{d}"]

        def post(u, scale, d):
            L = [f"v_mul_f32 {vr(ACC+4*u+i)}, {sr(T+4)}, {vr(ACC+4*u+i)}" for i in range(4)] if scale else []
            L += [f"v_cvt_pk_bf16_f32 {vr(PK + (4*(u&3) + 2*(u>>2) if u < 8 else 16) + h)}, {vr(ACC+4*u+2*h)}, {vr(ACC+4*u+2*h+1)}" for h in range(2)]
            if 4 <= u < 8: L.append(f"ds_write_b128 {vr(VSW+u-4)}, {vr(PK+4*(u-4),4)} offset:{d}")
            if u == 8: L.append(f"ds_write_b64 {vr(VR4)}, {vr(PK+16,2)} offset:{d}")
            return L
        xd = [f"ds_read_b128 {vr(XD+4*j,4)}, {vr(VSW+j)}" for j in range(4)]
        self.gemm_u(AQ1, ar, [("v", XA), ("a", 18), ("a", 36), ("a", 54)], ACC, a_tr, lambda j: bq(j) if j else None, lambda u: post(u, False, L_QD),
                    vm_items=wl, other=xd, vmsp=o.get("vmsp", 3))
        self.stamp("g1")
        for i in range(4): a(f"v_mov_b32 {vr(CL+i)}, -1")
        a(f"s_lshl2_add_u32 {sr(T+2)}, s2, {sr(S_W)}\ns_mul_i32 {sr(T+2)}, {sr(T+2)}, 2560\ns_add_u32 {sr(T+2)}, {sr(T+2)}, {WS_IB}")
        a(f"s_mov_b32 {sr(T+4)}, {f32(LOG2E / 12.0)}\ns_waitcnt vmcnt({self.vm_since(last(SK))}) lgkmcnt(0)\ns_barrier")
        clr = [f"buffer_store_dwordx4 {vr(CL,4)}, {vr(V_DMA)}, {sr(S_WS,4)}, {sr(T+2)} offen sc1",
               f"buffer_store_dwordx4 {vr(CL,4)}, {vr(V_DMA)}, {sr(S_WS,4)}, {sr(T+2)} offen offset:1024 sc1",
               f"buffer_store_dwordx2 {vr(CL,2)}, {vr(L8)}, {sr(S_WS,4)}, {sr(T+2)} offen offset:2048 sc1"]
        self.stamp("bar2")
        self.gemm_u(A_Q, ar, [("a", 18 * j) for j in range(4)], ACC, a_row, lambda j: bq(j, L_QD), lambda u: post(u, True, 0), vm_items=[poll(252)] + clr, vm0=o.get("pg", 4), vmsp=o.get("csp", 8))
        self.stamp("g2")
        p = lambda r: vr(r, 2)
        CC = TM
        for j in range(4): a(f"v_dot2_f32_bf16 {vr(CC+j)}, {vr(PK+4*j)}, {vr(XD+4*j)}, 0")
        for i in range(2): a(f"v_dot2_f32_bf16 {vr(CC)}, {vr(PK+16+i)}, {vr(XA+16+i)}, {vr(CC)}")
        for i in range(1, 4):
            for j in range(4): a(f"v_dot2_f32_bf16 {vr(CC+j)}, {vr(PK+4*j+i)}, {vr(XD+4*j+i)}, {vr(CC+j)}")
        QE = TRQ
        a(f"""s_xor_b32 {sr(T+1)}, {sr(self.NB)}, 1
        v_add_u32 {vr(t0)}, {L_XX}, {vr(V_DMA)}
        v_lshl_add_u32 {vr(QE)}, {sr(T+1)}, 12, {vr(t0)}
        v_lshl_add_u32 {vr(QE+1)}, {sr(self.NB)}, 12, {vr(t0)}""")
        self.treduce(CC)
        a(f"""ds_write_b32 {vr(MXA)}, {vr(CC)}
        v_add_u32 {vr(t0)}, {L_XR}, {vr(L8)}
        v_lshl_add_u32 {vr(QE+2)}, {sr(T+1)}, 9, {vr(t0)}
        v_lshl_add_u32 {vr(QE+3)}, {sr(self.NB)}, 9, {vr(t0)}
        v_lshl_add_u32 {vr(QE+4)}, {sr(T+1)}, 8, {vr(MXR)}
        v_lshl_add_u32 {vr(QE+5)}, {sr(self.NB)}, 8, {vr(MXR)}
        s_sub_u32 {sr(T+5)}, 63, {sr(S_H)}
        s_lshr_b32 {sr(T+6)}, s2, 3
        s_lshl_b32 {sr(T+6)}, {sr(T+6)}, 12
        s_add_u32 {sr(T+6)}, {sr(T+6)}, {sr(W10)}
        s_cmp_lg_u32 {sr(S_W)}, 0
        s_cbranch_scc1 L_ga_ok""")
        gate("L_ga", 252, 0, sr(T + 5), 3)
        a("s_waitcnt lgkmcnt(0)\ns_barrier")
        self.stamp("bar3")
        c1 = -2.0 * math.sqrt(2.0 / math.pi) * LOG2E
        c2 = c1 * 0.044715
        qrd = [f"ds_read_b128 {vr(MS+4*qb,4)}, {vr(QE+4+(qb&1))} offset:{512*(qb>>1)}" for qb in range(4)]
        for qb in range(4):
            qrd += [f"ds_read_b128 {ar(A_Q+18*qb+4*s,4)}, {vr(QE+(qb&1))} offset:{8192*(qb>>1) + 1024*s}" for s in range(4)]
            qrd.append(f"ds_read_b64 {ar(A_Q+18*qb+16,2)}, {vr(QE+2+(qb&1))} offset:{1024*(qb>>1)}")
        tg = self.tile_groups(0) + self.tile_groups(1) + self.tile_groups(2)[:8]
        n0 = o.get("n0", 3)
        for k in range(o.get("tpf", 0)):
            a(f"s_add_u32 {sr(T+7)}, {sr(T+6)}, {o.get('tpf0', 4*TILE) + 131072*k}\nbuffer_load_dwordx4 v[252:255], {vr(V_DMA)}, {sr(S_XA,4)}, {sr(T+7)} offen")
        for x in tg[:n0]: a(x)
        a(f"v_mov_b32 {vr(CC)}, {f32(c1)}\nv_mov_b32 {vr(CC+2)}, {f32(c2)}\nv_mov_b32 {vr(CC+4)}, 1.0")
        nq1, nt1 = o.get("nq1", 8), o.get("nt1", 5)
        bgl = []
        for i in range(max(nq1 // 2, nt1)):
            if 2 * i < nq1: bgl.append(qrd[2 * i] + "\n" + qrd[2 * i + 1])
            if i < nt1: bgl.append(tg[n0 + i])
        tg, qrd = tg[n0 + nt1:], qrd[nq1:]
        a.bg, a.every, a.cnt = bgl, 54 // (len(bgl) + 1), 0
        for i in range(18): a(f"v_pk_mul_f32 {p(G_+2*i)}, {p(H+2*i)}, {p(H+2*i)}")
        for i in range(18): a(f"v_pk_fma_f32 {p(G_+2*i)}, {p(G_+2*i)}, {p(CC+2)}, {p(CC)} op_sel_hi:[1,0,0]")
        for i in range(18): a(f"v_pk_mul_f32 {p(G_+2*i)}, {p(G_+2*i)}, {p(H+2*i)}")
        a.flush()
        self.stamp("ge1")
        esp = o.get("esp", 4)
        for i in range(36):
            a(f"v_exp_f32 {vr(G_+i)}, {vr(G_+i)}")
            if i % esp == 1 and tg: a(tg.pop(0))
            if i % 8 == 3 and qrd: a(qrd.pop(0)); a(qrd.pop(0))
        self.stamp("ge2")
        for i in range(18): a(f"v_pk_add_f32 {p(G_+2*i)}, {p(G_+2*i)}, {p(CC+4)} op_sel_hi:[1,0]")
        for i in range(36):
            a(f"v_rcp_f32 {vr(G_+i)}, {vr(G_+i)}")
            if i % esp == 1 and tg: a(tg.pop(0))
            if i % 8 == 3 and qrd: a(qrd.pop(0)); a(qrd.pop(0))
        assert not tg and not qrd
        idx = [i for i, l in enumerate(a.lines) if l.strip().startswith("buffer_load") and l.rstrip().endswith("lds")]
        m_t0, m_t1 = idx[-18] + 1, idx[-9] + 1
        for i in range(18): a(f"v_pk_mul_f32 {p(H+2*i)}, {p(G_+2*i)}, {p(H+2*i)}")
        a(f"""s_mul_i32 {sr(T)}, {sr(WV+1)}, {BLK}
        s_cmp_eq_u32 {sr(S_H)}, 1
        s_cbranch_scc1 L_ln2
        s_add_u32 {sr(T)}, {sr(T)}, {WS_U}""")
        for i in range(18): a(f"v_cvt_pk_bf16_f32 {vr(UG+i)}, {vr(H+2*i)}, {vr(H+2*i+1)}")
        a("s_branch L_ug")
        a.label("L_ln2")
        a(f"s_add_u32 {sr(T)}, {sr(T)}, {WS_G}")
        self.ln_f32(H, UG, TM)
        a.label("L_ug")
        self.stamp("ge3")
        a(f"""s_cmp_eq_u32 {sr(WV)}, 1
        s_cselect_b32 {sr(S_UG)}, {sr(T)}, 0x40000000
        s_waitcnt vmcnt({self.vm_since(m_t0)}) lgkmcnt(0)""")
        for x in self.k_reads(0, V_V): a(x)
        self.ugs = [f"buffer_store_dwordx4 {vr(UG+4*s,4)}, {vr(V_DMA)}, {sr(S_WS,4)}, {sr(S_UG)} offen offset:{1024*s} sc1" for s in range(4)]
        self.ugs.append(f"buffer_store_dwordx2 {vr(UG+16,2)}, {vr(self.VL8)}, {sr(S_WS,4)}, {sr(S_UG)} offen sc1")
        for qb in range(4): a(f"v_pk_add_f32 {p(MS+4*qb)}, {p(MS+4*qb)}, {p(MS+4*qb+2)} neg_lo:[1,1] neg_hi:[1,1]")
        for qb in range(4): a(f"v_add_f32 {vr(self.MK+qb)}, {vr(MS+4*qb)}, {vr(MS+4*qb+1)}")
        a(f"v_lshlrev_b32 {vr(t1)}, 8, v0\nv_lshlrev_b32 v231, 2, v0\nv_add_u32 v231, {L_PC}, v231\nds_write_b32 v231, {vr(t1)}")
        self.loop_init(False)
        self.n_t1 = self.vm_since(m_t1)
        self.stamp("ug")

    def loop_init(self, part):
        a = self.a
        if part:
            for qb in range(4):
                for i in range(4): a(f"v_mov_b32 {vr(V_CI+4*qb+i)}, {vr(self.MK+qb)}")
            return
        for k in range(7): a(f"v_add_u32 {vr(V_HI+k)}, {2*SLOT}, {vr(V_KA+k if k < 5 else V_VB+k-5)}")
        a(f"v_add_u32 {vr(self.VS0)}, {sr(S_LB)}, {vr(V_DMA)}\nv_add_u32 {vr(self.VS0R)}, {sr(S_LB)}, {vr(self.VL8)}\ns_mov_b32 {sr(S_CNT)}, 0\ns_mov_b32 {sr(S_INC)}, {4*TILE}")
        for i in range(4): a(f"v_mov_b32 {vr(V_L+i)}, 0")
        a(f"v_mov_b32 {vr(self.VPL+1)}, 1\nv_lshlrev_b32 v231, 2, v0\nv_add_u32 v231, {L_PC}, v231")

    def head(self):
        a, o = self.a, self.o
        a.label("L_go")
        self.loop_init(True)
        a("s_waitcnt lgkmcnt(0)\ns_barrier")
        self.stamp("bar5")
        base = self.qk_mfmas(0)
        pick = lambda s_, kb, qb: base[8 * s_ + 4 * kb + qb].replace(vr(V_K + 8 * s_ + 4 * kb, 4) + ",", vr(V_V + 8 * s_ + 4 * kb, 4) + ",").replace(vr(V_K + 32 + 2 * kb, 2) + ",", vr(V_V + 32 + 2 * kb, 2) + ",")
        mf, fin = [], {}
        for qb, s_ in [(0, 0), (0, 1), (0, 2), (0, 3), (1, 0), (1, 1), (0, 4), (1, 2), (1, 3), (2, 0), (2, 1), (1, 4), (2, 2), (2, 3), (3, 0), (3, 1), (2, 4),
                       (3, 2), (3, 3), (3, 4)]:
            for kb in range(2):
                fin[qb, kb] = len(mf)
                mf.append(("s_nop 3\n" if (qb, s_, kb) == (3, 4, 0) else "") + pick(s_, kb, qb))
        enew = [e[1] for g in range(40, 76) for e in self.gaps[g] if e[0] == "E"]
        items = self.e_items(0, enew, lambda qb, j: 0, lambda qb: 999)
        for it, e in zip(items, enew):
            if e[0] == "e": it["am"] = fin[e[1], e[2] // 4]
        dm = []
        for k, (slot, j) in enumerate([(2, 8)] + [(3, j) for j in range(9)]):
            g_ = 1 + o.get("hsp", 4) * k
            if j % 4 == 0: dm.append(dict(t=f"s_add_u32 m0, {sr(S_LB)}, {slot*SLOT + 4096*(j//4)}", c=0, lo=g_ - 1, hi=g_ - 1))
            dm.append(dict(t=f"buffer_load_dwordx4 {vr(V_DMA + j//4)}, {sr(S_XA,4)}, {sr(S_TOFF)} offen offset:{1024*(j%4)} lds", c=8, lo=g_, hi=g_))
            if j == 8: dm.append(dict(t=f"s_add_u32 {sr(S_TOFF)}, {sr(S_TOFF)}, {4*TILE}", c=0, lo=g_ + 1, hi=g_ + 1))
        nh = o.get("ugh", 2)
        for k in range(nh): dm.append(dict(t=self.ugs[k], c=8, lo=3 + 16 * k, hi=3 + 16 * k))
        a(f"s_waitcnt vmcnt({self.n_t1})")
        left = self.pack(mf, items + dm + [dict(t=x, c=4, lo=i // 2, nds=2) for i, x in enumerate(self.k_reads(1))])
        print("head overflow", self.over, "left", len(left))
        left.sort(key=lambda x: not x.startswith("v_exp"))
        last = a.lines[-1].strip()
        for x in left:
            if last.startswith("v_exp") and not x.startswith("v_exp") and (last.split()[1].rstrip(",") + ",") in (x + ","): a("s_nop 0")
            a(x); last = x
        a("s_waitcnt lgkmcnt(0)")

    def tile_groups(self, slot):
        out = []
        for j in range(9):
            g = ""
            if j % 4 == 0: g = f"s_add_u32 m0, {sr(S_LB)}, {slot*SLOT + 4096*(j//4)}\ns_nop 0\n"
            g += f"buffer_load_dwordx4 {vr(V_DMA + j//4)}, {sr(S_XA,4)}, {sr(S_TOFF)} offen offset:{1024*(j%4)} lds"
            if j == 8: g += f"\ns_add_u32 {sr(S_TOFF)}, {sr(S_TOFF)}, {4*TILE}"
            out.append(g)
        return out

    def first_tiles(self):
        pass

    def wfuse(self):
        a = self.a
        BF, ACC, AF, TM, AD = 88, 108, 144, 208, 240
        LA, LB_, LM = 0, 44032, 88064
        T = S_T
        a.label("L_wfuse")
        if self.o.get("hlast", 1): a(f"s_cmp_ge_u32 s2, {NWG}\ns_cbranch_scc1 L_end\ns_sub_u32 s2, s2, {NWG - NH}")
        a(f"v_lshrrev_b32 v1, 6, v0\nv_and_b32 v0, 63, v0\nv_readfirstlane_b32 {sr(S_W)}, v1\nv_lshlrev_b32 {vr(V_DMA)}, 4, v0\ns_waitcnt lgkmcnt(0)")
        self.srd(S_DB, 76, 77, 256)
        self.srd(S_WS, 78, 79, WS_END)
        self.wf0 = 0
        self.srd(S_X, 72, 73, 82944)
        self.srd(S_W2, 62, 63, 41472)
        a(f"""s_cmp_eq_u32 s2, {self.wf0}
        s_cselect_b32 {sr(S_W1)}, s64, s70
        s_cselect_b32 {sr(S_W1+1)}, s65, s71
        s_mov_b32 {sr(S_W1+2)}, 41472
        s_mov_b32 {sr(S_W1+3)}, 0x20000
        s_cselect_b32 {sr(T+4)}, 0, 41472""")
        self.dma_rows([(S_W1, "0", LA), (S_W2, "0", LB_)], 19, 288, TM + 4, TM + 5, 11, 3, "L_wf1")
        a(f"s_lshl_b32 {sr(T)}, {sr(S_W)}, 10\ns_add_u32 {sr(T+2)}, {sr(T)}, {sr(T+4)}")
        for k in range(11):
            if k == 10: a(f"s_cmp_ge_u32 {sr(S_W)}, 1\ns_cbranch_scc1 L_wf2")
            a(f"s_add_u32 m0, {sr(T)}, {LM + 4096*k}\ns_add_u32 {sr(T+1)}, {sr(T+2)}, {4096*k}")
            a(f"buffer_load_dwordx4 {vr(V_DMA)}, {sr(S_X,4)}, {sr(T+1)} offen lds")
        a.label("L_wf2")
        self.srd(S_DW, 68, 69, 864)
        a(f"""v_and_b32 {vr(TM)}, 15, v0
        v_lshlrev_b32 {vr(TM+2)}, 4, {vr(TM)}
        v_lshlrev_b32 {vr(TM)}, 1, {vr(TM)}
        v_bfe_u32 {vr(TM+3)}, v0, 4, 1
        v_lshl_add_u32 {vr(TM+1)}, {vr(TM+3)}, 7, {vr(TM)}
        v_lshl_add_u32 {vr(TM+2)}, {vr(TM+3)}, 11, {vr(TM+2)}
        v_and_b32 {vr(TM+3)}, 1, v0
        v_lshlrev_b32 {vr(TM+3)}, 4, {vr(TM+3)}
        v_bfe_i32 {vr(TM+4)}, v0, 1, 1
        v_not_b32 {vr(TM+5)}, {vr(TM+4)}""")
        for k in range(3):
            for i in range(5): a(f"buffer_load_ushort {vr(16+5*k+i)}, {vr(TM+1 if i < 4 else TM)}, {sr(S_DW,4)}, 0 offen offset:{288*k + (32*i if i < 4 else 256)}")
        a(f"s_mov_b32 {sr(T+1)}, {WS_DWF}\ns_waitcnt vmcnt(0)")
        for f in range(15):
            a(f"v_lshlrev_b32 {vr(16+f)}, {vr(TM+3)}, {vr(16+f)}\nv_and_b32 {vr(32+2*f)}, {vr(TM+5)}, {vr(16+f)}\nv_and_b32 {vr(33+2*f)}, {vr(TM+4)}, {vr(16+f)}")
        for r_ in range(8): a(f"buffer_store_dwordx{4 if r_ < 7 else 2} {vr(32+4*r_, 4 if r_ < 7 else 2)}, {vr(TM+2)}, {sr(S_WS,4)}, {sr(T+1)} offen offset:{256*r_} sc1")
        self.tr_addr(AD, LM, False, TM + 8)
        self.row_addr(AD + 3, LA, TM + 8)
        a(f"v_add_u32 {vr(AD+5)}, {LB_}, {vr(AD+3)}")
        a(f"v_lshlrev_b32 {vr(AD+4)}, 3, v0")
        a(f"""s_lshr_b32 {sr(T)}, {sr(S_W)}, 1
        s_lshl_b32 {sr(T)}, {sr(T)}, 6
        s_and_b32 {sr(T+1)}, {sr(S_W)}, 1
        s_lshl_b32 {sr(T+1)}, {sr(T+1)}, 3
        s_add_u32 {sr(T)}, {sr(T)}, {sr(T+1)}
        v_and_b32 {vr(AD+6)}, 3, v0
        v_lshlrev_b32 {vr(AD+6)}, 3, {vr(AD+6)}
        v_add_u32 {vr(AD+7)}, {sr(T)}, {vr(AD+6)}""")
        for k in range(3): a(f"v_add_u32 {vr(AD+k)}, {vr(AD+7)}, {vr(AD+k)}")
        a(f"s_mov_b32 {sr(S_CNT)}, {sr(S_W)}")
        a("s_waitcnt vmcnt(0)\ns_barrier")
        a.label("L_wfl")
        for s in self.tr_reads(AD, vr)(0, BF): a(s)
        a("s_waitcnt lgkmcnt(0)")
        self.gemm(self.row_reads(AD + 3), BF, ACC, AF)
        for i in range(18): a(f"v_cvt_pk_bf16_f32 {vr(BF+i)}, {vr(ACC+2*i)}, {vr(ACC+2*i+1)}")
        a(f"s_cmp_eq_u32 s2, {self.wf0}\ns_cbranch_scc0 L_wf3")
        self.gemm(self.row_reads(AD + 5), BF, ACC, AF)
        for i in range(18): a(f"v_cvt_pk_bf16_f32 {vr(BF+i)}, {vr(ACC+2*i)}, {vr(ACC+2*i+1)}")
        a.label("L_wf3")
        a(f"""s_mul_i32 {sr(T)}, {sr(S_CNT)}, {BLK}
        s_add_u32 {sr(T)}, {sr(T)}, {sr(T+4)}
        s_add_u32 {sr(T)}, {sr(T)}, {WS_WF}
        s_add_u32 {sr(T+1)}, {sr(T)}, 4096""")
        self.store_block(BF, V_DMA, AD + 4, S_WS, T, T + 1, "sc1")
        for k in range(3): a(f"v_add_u32 {vr(AD+k)}, 128, {vr(AD+k)}")
        a(f"s_add_u32 {sr(S_CNT)}, {sr(S_CNT)}, 4\ns_cmp_lt_u32 {sr(S_CNT)}, 8\ns_cbranch_scc1 L_wfl")
        for k in range(3): a(f"v_sub_u32 {vr(AD+k)}, {vr(AD+k)}, {vr(AD+6)}")
        a(f"s_cmp_eq_u32 {sr(S_CNT)}, 8\ns_cbranch_scc1 L_wfl")
        a(f"""s_waitcnt vmcnt(0)
        s_barrier
        s_cmp_lg_u32 {sr(S_W)}, 0
        s_cbranch_scc1 L_end
        s_mov_b64 exec, 1
        v_mov_b32 {vr(TM)}, 1
        v_mov_b32 {vr(TM+1)}, {DB_CW}
        buffer_atomic_add {vr(TM)}, {vr(TM+1)}, {sr(S_DB,4)}, 0 offen sc1
        v_mov_b32 {vr(TM+1)}, {DB_CW + 128}
        buffer_atomic_add {vr(TM)}, {vr(TM+1)}, {sr(S_DB,4)}, 0 offen sc1
        s_endpgm""")

    def dump_stamps(self):
        a = self.a
        if self.o.get("echo"):
            if self.o["echo"][0] == "skew":
                a(f"v_mov_b32 v16, 4\nbuffer_load_dword v17, v16, {sr(S_DB,4)}, 0 offen sc1\ns_waitcnt vmcnt(0)\nv_readfirstlane_b32 s98, v17\ns_not_b32 s98, s98")
                x, y = 98, S_ST + 2 * self.stnames.index(self.o["echo"][1])
            else:
                x, y = [S_ST + 2 * self.stnames.index(n) for n in self.o["echo"]]
            lo, hi = self.o.get("echo_ids", (0, 999))
            a(f"""s_cmp_eq_u32 {sr(S_VAL)}, 0
            s_cbranch_scc1 L_end
            s_cmp_lt_u32 s2, {lo}
            s_cbranch_scc1 L_end
            s_cmp_ge_u32 s2, {hi}
            s_cbranch_scc1 L_end
            s_memrealtime s[4:5]
            s_waitcnt lgkmcnt(0)
            s_sub_u32 s6, {sr(y)}, {sr(x)}
            s_mul_i32 s6, s6, {self.o.get("echo_mul", 1)}
            s_lshr_b32 s6, s6, {self.o.get("echo_shr", 0)}
            s_add_u32 s6, s6, s4""")
            a.label("L_echo")
            a("s_memrealtime s[4:5]\ns_waitcnt lgkmcnt(0)\ns_sub_u32 s7, s6, s4\ns_cmp_gt_i32 s7, 0\ns_cbranch_scc1 L_echo")
            return
        if self.o.get("dbgst"):
            a("s_waitcnt vmcnt(0)")
            self.stamp("done")
            a("s_waitcnt lgkmcnt(0)\ns_mov_b64 exec, 1")
            slots = [1, 2, 3, 4, 5, 6, 7, 9, 11, 12, 13, 14, 15]
            a(f"s_not_b32 {sr(S_T)}, {sr(S_ST)}\nv_mov_b32 v16, {sr(S_T)}\nv_mov_b32 v17, 4\nbuffer_atomic_umax v16, v17, {sr(S_DB,4)}, 0 offen sc1")
            for i in range(min(self.nst, 12)):
                a(f"v_mov_b32 v{18+2*i}, {sr(S_ST+2*i)}\nv_mov_b32 v{19+2*i}, {4*slots[i+1]}\nbuffer_atomic_umax v{18+2*i}, v{19+2*i}, {sr(S_DB,4)}, 0 offen sc1")
            return
        if not self.o.get("stamps"): return
        T = S_T
        a(f"""s_waitcnt lgkmcnt(0)
        s_lshl_b32 {sr(T)}, s2, 2
        s_add_u32 {sr(T)}, {sr(T)}, {sr(S_W)}
        s_lshl_b32 {sr(T)}, {sr(T)}, 7
        s_add_u32 {sr(T)}, {sr(T)}, {WS_DBG}
        v_mov_b32 v1, 0""")
        for i in range(26): a(f"v_mov_b32 {vr(16+i)}, {sr(S_ST+i)}")
        for i in range(7): a(f"buffer_store_dwordx4 {vr(16+4*i,4)}, v1, {sr(S_WS,4)}, {sr(T)} offen offset:{16*i}")

    def build(self):
        a = self.a
        self.stnames = []
        a.raw(f"; @launch grid=({NWG},1,1) block=(256,1,1) lds={LDS_TOTAL}")
        a.raw('.amdgcn_target "amdgcn-amd-amdhsa--gfx950"')
        a.raw(".text")
        a.raw(f".globl {NAME}")
        a.raw(".p2align 12")
        self.entry()
        self.phase_a()
        self.rest()
        a.label("L_fin")
        self.dump_stamps()
        a.label("L_end")
        a("s_endpgm")
        self.poll2()
        if not self.o.get("touch", 1): self.rare()
        a.label("L_dummy")
        self.fallback()
        self.wfuse()
        a.raw('.section .rodata,"a"')
        a.raw(".p2align 6")
        a.raw(kernel_desc(NAME, 512, 102, 256))
        return a.text()

    def S(self, buf, qb, i=0): return V_S + buf * 32 + qb * 8 + i
    def P(self, buf, qb, i=0): return V_P + buf * 16 + qb * 4 + i

    def k_reads(self, slot, V_K=V_K):
        ka, so = (V_KA, slot * SLOT) if slot < 2 else (V_HI, (slot - 2) * SLOT)
        out = [f"ds_read_b128 {vr(V_K+8*s+4*kb,4)}, {vr(ka)} offset:{so + 2048*s + 256*kb}" for s in range(4) for kb in range(2)]
        out += [f"ds_read_b64 {vr(V_K+32+2*kb,2)}, {vr(ka+1)} offset:{so + 8192 + 512*kb}" for kb in range(2)]
        return out

    def v_reads(self, slot, dst=V_V):
        (va, vr_, vb), so = ((V_VA, V_VR, V_VB), slot * SLOT) if slot < 2 else ((V_HI + 2, V_HI + 4, V_HI + 5), (slot - 2) * SLOT)
        out = []
        for T in range(9):
            for u in range(2):
                if T < 8: out.append(f"ds_read_b64_tr_b16 {vr(dst+4*T+2*u,2)}, {vr((va if T < 4 else vb)+(T&1))} offset:{so + 2048*((T>>1)&1) + 256*u}")
                else: out.append(f"ds_read_b64_tr_b16 {vr(dst+4*T+2*u,2)}, {vr(vr_)} offset:{so + 8192 + 512*u}")
        return out

    def qk_mfmas(self, buf, czero=False):
        out = []
        for s in range(5):
            for kb in range(2):
                for qb in range(4):
                    d = vr(self.S(buf, qb, 4 * kb), 4)
                    c = ("0" if czero else vr(V_CI + 4 * qb, 4)) if s == 0 else d
                    if s < 4: out.append(f"v_mfma_f32_16x16x32_bf16 {d}, {vr(V_K+8*s+4*kb,4)}, {ar(A_Q+18*qb+4*s,4)}, {c}")
                    else: out.append(f"v_mfma_f32_16x16x16_bf16 {d}, {vr(V_K+32+2*kb,2)}, {ar(A_Q+18*qb+16,2)}, {c}")
        return out

    def pv_mfmas(self, buf, czero=False):
        out = []
        for T in range(9):
            for qb in range(4):
                o = ar(A_O + 36 * qb + 4 * T, 4)
                out.append(f"v_mfma_f32_16x16x32_bf16 {o}, {vr(V_V+4*T,4)}, {vr(self.P(buf,qb),4)}, {'0' if czero else o}")
        return out

    def plan(self):
        o = self.o
        n = 76
        fixed = [None] * n
        for i, g in enumerate(range(1, 36, 2)): fixed[g] = ("V", i)
        for i, g in enumerate([41, 44, 47, 50, 53, 56, 59, 62, 65, 68]): fixed[g] = ("K", i)
        for i, g in enumerate([42, 46, 49, 52, 55, 58, 61, 64, 67]): fixed[g] = ("D", i)
        exps = [(qb, j) for qb in range(4) for j in range(8)]
        start = 40
        order = [(start + k) % n for k in range(n)]
        free_idx = [k for k, g in enumerate(order) if fixed[g] is None]
        nsm = len(free_idx) - 32
        cand = free_idx[6:-2]
        sm_set = set(free_idx[-2:]) | {cand[int((i + 0.5) * len(cand) / (nsm - 2))] for i in range(nsm - 2)}
        nds = sum(1 for f in fixed if f is not None and f[0] != "D")
        over = 48 - nds - 2 * nsm
        ocand = [k for k, g in enumerate(order) if k >= 20 and (fixed[g] is None or fixed[g][0] != "D")]
        o_set = {ocand[int((i + 0.5) * len(ocand) / over)] for i in range(over)}
        gaps = [[] for _ in range(n)]
        small, pend, ei = [], [], 0
        for k, g in enumerate(order):
            new = (start + k) < n
            small.extend(pend); pend = []
            small.sort(key=lambda t: 0 if t[0] == "c" else 1)
            f = fixed[g]
            want = 0
            if f is not None:
                gaps[g].append((f[0], f[1], None))
                if f[0] == "D": continue
                want = 1
            elif k in sm_set: want = 2
            else:
                qb, j = exps[ei]; ei += 1
                gaps[g].append(("E", ("e", qb, j), new))
                if j & 1: pend.append(("c", qb, j // 2))
                pend.append(("a", qb, j))
            if k in o_set: want += 1
            if k == n - 1: want = 99
            for _ in range(want):
                if small: gaps[g].append(("E", small.pop(0), new))
        assert not small and not pend and ei == 32
        self.gaps = gaps

    def pack(self, mf, items):
        a = self.a
        where, order, done, nvm, mpos = {}, [], 0, 0, []
        isds = lambda it: "ds_" in it["t"]
        self.over = 0
        for g, m in enumerate(mf):
            assert not any(it.get("need", 999) <= g and i not in where for i, it in enumerate(items)), g
            idx = [k for k, n_ in enumerate(order) if n_ <= g]
            if idx and max(idx) + 1 > done:
                a(f"s_waitcnt lgkmcnt({min(15, len(order) - 1 - max(idx))})"); done = max(idx) + 1
            if m.startswith("@W"):
                w_, m = m.split("\n", 1)
                a(f"s_waitcnt lgkmcnt({min(15, int(w_[2:]) + len(order))})")
            a(m)
            mpos.append(len(a.lines))
            cap, pick = 8, []
            for phase in (0, 1):
                for i, it in enumerate(items):
                    if i in where or it.get("lo", 0) > g: continue
                    if "am" in it and (it["am"] >= g or len(a.lines) - mpos[it["am"]] < 8): continue
                    d = it.get("dep")
                    if d is not None and not all(where.get(x, 999) < g for x in d): continue
                    if (phase == 0 and it.get("hi", 999) <= g) or (phase == 1 and it["c"] <= cap):
                        if it["t"].startswith("buffer") and pick and any(items[x]["c"] for x in pick) and phase == 1: continue
                        if isds(it) and sum(isds(items[x]) for x in pick) >= it.get("nds", 1) and phase == 1: continue
                        pick.append(i); where[i] = g; cap -= it["c"]
            key = lambda i: 0 if items[i]["c"] == 0 else 1 if isds(items[i]) else 2 if items[i]["t"].startswith("buffer") else 3
            for i in sorted(pick, key=key):
                a(items[i]["t"].replace("@VM", f"s_waitcnt vmcnt({nvm})"))
                nvm += items[i]["t"].startswith("buffer")
                if isds(items[i]): order.append(items[i].get("need", 999))
            self.over += max(0, -cap)
        return [it["t"] for i, it in enumerate(items) if i not in where]

    def e_items(self, buf, lst, lo, hi):
        items, idx = [], {}
        for it in lst:
            kind, qb, j = it
            d = dict(t=self.etext(buf, it), c=8 if kind == "e" else 4)
            if kind == "e": d["lo"] = lo(qb, j); d["hi"] = hi(qb) - 2 - (7 - j)
            else:
                need = [("e", qb, j)] if kind == "a" else [("e", qb, 2 * j), ("e", qb, 2 * j + 1)]
                d["dep"] = [idx[x] for x in need if x in idx]
                if kind == "c": d["hi"] = hi(qb) - (3 - j) // 2
            idx[it] = len(items); items.append(d)
        return items

    def etext(self, buf, it):
        kind, qb, j = it
        s = self.S(buf, qb)
        if kind == "e": return f"v_exp_f32 {vr(s+j)}, {vr(s+j)}"
        if kind == "a": return f"v_add_f32 {vr(V_L+qb)}, {vr(V_L+qb)}, {vr(s+j)}"
        return f"v_cvt_pk_bf16_f32 {vr(self.P(buf, qb, j))}, {vr(s+2*j)}, {vr(s+2*j+1)}"

    def period(self, p, qk=True, pv=True, e_old=True, e_new=True, kread=True, vread=True, dma=True, extra={}, dsub=None, ksub=None, vm=9, halves=(0, 1), inc=None):
        a = self.a
        bn, bo = (p + 1) & 1, p & 1
        mf = self.qk_mfmas(bn) + self.pv_mfmas(bo, czero=(p == 0))
        kr, vrd = self.k_reads((p + 2) % RING), self.v_reads(p % RING)
        slot = p % RING
        n = 76
        sc = [[] for _ in range(n)]
        dgs = [g for g in range(n) if any(e[0] == "D" for e in self.gaps[g])]
        if dma:
            for j, g in enumerate(dgs):
                if j % 4 == 0: sc[g - 1].append(f"s_add_u32 m0, {sr(S_LB)}, {slot*SLOT + 4096*(j//4)}")
            sc[dgs[-1] + 1].append(f"s_add_u32 {sr(S_TOFF)}, {sr(S_TOFF)}, {inc or 4*TILE}")
        w = []
        if kread: w.append(f"vmcnt({vm})")
        if pv: w.append("lgkmcnt(0)")
        if w: sc[39].append("s_waitcnt " + " ".join(w))
        if kread: sc[75].append("s_waitcnt lgkmcnt(0)")
        for half in halves:
            rng = range(0, 40) if half == 0 else range(40, 76)
            on = qk if half == 0 else pv
            if not on:
                ds, mem, val, post = [], [], [], []
                for g in rng:
                    for s_ in sc[g]:
                        (post if s_.startswith("s_waitcnt") else mem).append(s_)
                    if g in extra: mem.append(extra[g])
                    for kind, d, new in self.gaps[g]:
                        if kind == "V" and vread: ds.append(vrd[d])
                        elif kind == "K" and kread: ds.append(kr[d])
                        elif kind == "D" and dma: mem.append(f"buffer_load_dwordx4 {vr(V_DMA + d//4)}, {sr(S_XA,4)}, {sr(S_TOFF)} offen offset:{1024*(d%4)} lds")
                        elif kind == "E" and ((new and e_new) or (not new and e_old)): val.append((d, self.etext(bn if new else bo, d)))
                if half == 1: a("s_nop 3")
                seq, pend = [], list(val)
                while pend:
                    k = 0
                    if seq and seq[-1][0][0] == "e":
                        le = seq[-1][0]
                        dep = lambda it: it[0][1] == le[1] and ((it[0][0] == "a" and it[0][2] == le[2]) or (it[0][0] == "c" and it[0][2] == le[2] // 2))
                        have = {x[0] for x in seq}
                        ok = lambda it: it[0][0] == "e" or (("e", it[0][1], it[0][2]) in have if it[0][0] == "a" else (("e", it[0][1], 2*it[0][2]+1) in have)) or not any(x[0][0] == "e" and x[0][1] == it[0][1] and (x[0][2] == it[0][2] if it[0][0] == "a" else x[0][2] // 2 == it[0][2]) for x in pend)
                        while k < len(pend) and (dep(pend[k]) or not ok(pend[k])): k += 1
                        if k == len(pend): seq.append((("n", 0, 0), "s_nop 0")); k = 0
                    seq.append(pend.pop(k))
                step = max(1, len(seq) // (len(mem) + len(ds) + 1))
                allm = ds + mem
                for x in allm[:6]: a(x)
                allm = allm[6:]
                for i_, (d, t_) in enumerate(seq):
                    a(t_)
                    if allm and i_ % step == step - 1:
                        x = allm.pop(0); a(x)
                        if x.startswith("s_add_u32 m0"): a("s_nop 0")
                for x in allm:
                    a(x)
                    if x.startswith("s_add_u32 m0"): a("s_nop 0")
                for x in post: a(x)
                if half == 0: a("s_nop 1")
                continue
            for g in rng:
                a(mf[g])
                for s_ in sc[g]: a(s_)
                if g in extra: a(extra[g])
                for kind, d, new in self.gaps[g]:
                    if kind == "V":
                        if vread: a(vrd[d])
                    elif kind == "K":
                        if kread: a(kr[d])
                        elif ksub: a(ksub.pop(0))
                    elif kind == "D":
                        if dma: a(f"buffer_load_dwordx4 {vr(V_DMA + d//4)}, {sr(S_XA,4)}, {sr(S_TOFF)} offen offset:{1024*(d%4)} lds")
                        elif dsub: a(dsub.pop(0))
                    elif (new and e_new) or (not new and e_old):
                        a(self.etext(bn if new else bo, d))

    MK, VO, VO8, GA, VS0, VS0R, VDW, VLW, VL8, VST, VPL = 232, 236, 9, 238, 250, 251, 244, 245, 246, 247, 248
    NB, PT, E_U, E_G, RS3, E_COL, RS1, RS2, MP1 = 3, 4, 5, 6, 7, 43, 36, 37, 38
    G0, GM, GP, U, DWT = 16, 26, 36, 80, (90, 252, 96, 100, 112, 116, 104, 94)
    XRS = (192, 196, 46)
    frag = staticmethod(lambda f, b: [(f, b + 4 * s) for s in range(5)])
    WD = [[("a", 216 + 4 * s) for s in range(5)], [("a", 234 + 4 * s) for s in range(5)], [("v", 208 + 4 * s) for s in range(5)]]
    WO = [[("a", 4 * s) for s in range(5)], [("a", 18 + 4 * s) for s in range(5)], [("a", 36), ("a", 40), ("a", 44), ("a", 48), ("a", 252)]]
    X1B = 98304
    X2O = L_SP - X1B
    L_L = L_SP + 9216

    def epi_setup(self):
        a = self.a
        T = S_T
        NB, PT, VO, GA = self.NB, self.PT, self.VO, self.GA
        r, g4, x, y, big, r0 = 52, 53, 54, 55, 56, 57
        a(f"""s_lshr_b32 {sr(NB)}, {sr(S_W)}, 1
        s_and_b32 {sr(PT)}, {sr(S_W)}, 1
        v_and_b32 {vr(r0)}, 15, v0
        v_lshrrev_b32 {vr(g4)}, 4, v0
        v_mul_u32_u24 {vr(x)}, 288, {vr(r0)}
        v_mov_b32 {vr(big)}, 0x40000000
        s_lshl_b32 {sr(T)}, {sr(S_TOWN)}, 1
        s_add_u32 {sr(T)}, {sr(T)}, {sr(NB)}
        s_lshl_b32 {sr(T)}, {sr(T)}, 4
        v_add_u32 {vr(r)}, {sr(T)}, {vr(r0)}
        s_mul_i32 {sr(T+1)}, {sr(S_TOWN)}, {TILE}
        s_mul_i32 {sr(T+2)}, {sr(PT)}, {BLK}
        v_add_u32 {vr(x)}, {sr(T+1)}, {vr(x)}
        s_sub_u32 {sr(T+3)}, {BLK}, {sr(T+2)}
        v_add_u32 {vr(y)}, {sr(T+3)}, {vr(x)}
        v_add_u32 {vr(x)}, {sr(T+2)}, {vr(x)}
        v_lshl_add_u32 {vr(VO)}, {vr(g4)}, 4, {vr(x)}
        v_lshl_add_u32 {vr(VO+1)}, {vr(g4)}, 4, {vr(y)}
        v_lshl_add_u32 {vr(self.VO8)}, {vr(g4)}, 3, {vr(x)}
        s_lshl_b32 {sr(T+3)}, {sr(PT)}, 11
        s_add_u32 {sr(self.E_U)}, {sr(T+3)}, {WS_U}
        s_add_u32 {sr(self.E_G)}, {sr(T+3)}, {WS_G}
        s_sub_u32 {sr(T+3)}, 4096, {sr(T+3)}
        s_lshl_b32 {sr(T)}, {sr(PT)}, 11
        s_add_u32 {sr(T)}, {sr(T)}, {WS_DWF}
        v_lshrrev_b32 {vr(x)}, 2, {vr(r0)}
        v_cmp_eq_u32 vcc, {vr(x)}, {vr(g4)}
        v_lshl_add_u32 {vr(self.VDW)}, {vr(r0)}, 4, {sr(T)}
        s_nop 0
        v_cndmask_b32 {vr(self.VDW)}, {vr(big)}, {vr(self.VDW)}, vcc
        s_lshl_b32 {sr(self.E_COL)}, {sr(S_W)}, 6
        v_lshlrev_b32 {vr(self.VL8)}, 3, v0
        v_add_u32 {vr(self.VL8)}, 4096, {vr(self.VL8)}
        v_add_u32 {vr(self.VST)}, {sr(S_LB)}, {vr(V_DMA)}
        v_add_u32 {vr(self.VST)}, {2*SLOT}, {vr(self.VST)}
        s_xor_b32 {sr(T)}, {sr(NB)}, 1
        v_xor_b32 {vr(x)}, {sr(T)}, {vr(g4)}
        v_lshl_add_u32 {vr(x)}, {vr(x)}, 4, {vr(r0)}
        s_lshl_b32 {sr(T)}, {sr(S_W)}, 2
        s_add_u32 {sr(T)}, {sr(T)}, {self.L_L}
        v_lshl_add_u32 {vr(self.VLW)}, {vr(x)}, 4, {sr(T)}
        s_sub_u32 {sr(self.MP1)}, 0, {sr(PT)}
        s_mov_b32 {sr(self.MP1+1)}, {sr(self.MP1)}""")
        for k, (d, base) in enumerate(((self.RS1, 3 * SLOT), (self.RS2, 2 * SLOT), (self.RS3, 2 * SLOT))):
            a(f"s_xor_b32 {sr(T)}, {sr(S_W)}, {k+1}\ns_mul_i32 {sr(T)}, {sr(T)}, {TILE}\ns_add_u32 {sr(d)}, {sr(T)}, {base}")
        a(f"""s_mul_i32 {sr(T)}, {sr(S_B)}, 4000
        s_add_u32 {sr(T+1)}, {sr(T)}, 3999
        s_mov_b32 {sr(T+2)}, {BLK}""")
        for k, dr in enumerate((0, -1, 1)):
            m = GA + 2 * k
            if dr: a(f"v_add_u32 {vr(m)}, {dr}, {vr(r)}\nv_cmp_eq_u32 vcc, {sr(T if dr < 0 else T+1)}, {vr(r)}")
            src = m if dr else r
            a(f"""v_lshrrev_b32 {vr(x)}, 4, {vr(src)}
            v_and_b32 {vr(y)}, 15, {vr(src)}
            v_mul_lo_u32 {vr(x)}, {vr(x)}, {sr(T+2)}
            v_lshl_add_u32 {vr(y)}, {vr(g4)}, 4, {vr(y)}
            v_lshl_add_u32 {vr(m)}, {vr(y)}, 4, {vr(x)}
            v_lshl_add_u32 {vr(m+1)}, {vr(y)}, 3, {vr(x)}
            v_add_u32 {vr(m+1)}, {sr(T+3)}, {vr(m+1)}""")
            if dr: a(f"v_cndmask_b32 {vr(m)}, {vr(m)}, {vr(big)}, vcc\nv_cndmask_b32 {vr(m+1)}, {vr(m+1)}, {vr(big)}, vcc")

    def conv_loads(self):
        GA = self.GA
        L = []
        for dst, m, so in ((self.GM, GA + 2, 1), (self.G0, GA, 1), (self.GP, GA + 4, 1), (self.U, GA, 0)):
            for k in range(2): L.append(f"buffer_load_dwordx4 {vr(dst+4*k,4)}, {vr(m)}, {sr(S_WS,4)}, {sr(self.E_U+so)} offen offset:{1024*k}")
            L.append(f"buffer_load_dwordx2 {vr(dst+8,2)}, {vr(m+1)}, {sr(S_WS,4)}, {sr(self.E_U+so)} offen")
        return L

    def rg(self, e, n): return (ar if e[0] == "a" else vr)(e[1], n)

    def w8_loads(self, regs, so):
        return [f"buffer_load_dwordx4 {self.rg(regs[s],4)}, {vr(V_DMA)}, {sr(S_WS,4)}, {sr(so)} offen offset:{1024*s}" for s in range(4)] + \
               [f"buffer_load_dwordx2 {self.rg(regs[4],2)}, {vr(self.VL8)}, {sr(S_WS,4)}, {sr(so)} offen"]

    def w_reads(self, regs, off):
        L = []
        for tt in range(2):
            L += [f"ds_read_b128 {self.rg(regs[tt][s],4)}, {vr(self.VS0)} offset:{off + BLK*tt + 1024*s}" for s in range(4)]
            L.append(f"ds_read_b64 {self.rg(regs[tt][4],2)}, {vr(self.VS0R)} offset:{off + BLK*tt}")
        return L

    def xa_srd(self):
        T = S_T
        return f"""s_mul_i32 {sr(T)}, {sr(S_B)}, {NT}
        s_mul_i32 {sr(T+1)}, {sr(S_H)}, 63
        s_add_u32 {sr(T+1)}, {sr(T+1)}, {sr(T)}
        s_mul_i32 {sr(T+1)}, {sr(T+1)}, {TILE}
        s_add_u32 {sr(S_XA)}, {sr(S_WS)}, {sr(T+1)}
        s_addc_u32 {sr(S_XA+1)}, {sr(S_WS+1)}, 0
        s_sub_u32 {sr(T+2)}, 63, {sr(S_H)}
        s_mul_i32 {sr(S_XA+2)}, {sr(T+2)}, {TILE}
        s_mov_b32 {sr(S_XA+3)}, 0x20000"""

    def rest(self):
        a, o = self.a, self.o
        T = S_T
        VPL = self.VPL
        self.plan()
        self.head()
        self.stamp("loop")
        if o.get("echo") and o["echo"][0] == "skew":
            a(f"s_waitcnt lgkmcnt(0)\ns_mov_b64 exec, 1\ns_not_b32 s98, {sr(S_ST)}\nv_mov_b32 v226, s98\nv_mov_b32 v227, 4\ns_cmp_lg_u32 {sr(S_W)}, 0\ns_cbranch_scc1 L_sk\nbuffer_atomic_umax v226, v227, {sr(S_DB,4)}, 0 offen sc1\ns_waitcnt vmcnt(0)\nL_sk:\ns_mov_b64 exec, -1\ns_nop 3")
        nh = o.get("ugh", 2)
        ex = {2 + 12 * k: x for k, x in enumerate(self.ugs[nh:])}
        self.period(0, vm=9 + 5, extra=ex)
        self.stamp("l0")
        a.raw(".p2align 6")
        a.label("L_loop")
        self.stamp("q1")
        for p in range(1, 5):
            ex = {}
            vm = 9
            if p == 1: ex = {73: f"s_cmp_eq_u32 {sr(S_CNT)}, 3"}
            if p == 2: ex = {70: f"buffer_load_dwordx4 v[252:255], {vr(VPL)}, {sr(S_DB,4)}, 0 offen sc1"}
            if p == 3:
                ex = {73: f"s_cmp_eq_u32 {sr(S_CNT)}, 2", 45: f"ds_add_rtn_u32 v230, v231, {vr(VPL+1)}"}
            if p == 4:
                self.stamp("la0")
                a(f"s_cbranch_scc1 L_last")
                a.label("L_lastb")
                self.stamp("la1")
                ex = {72: f"s_add_u32 {sr(S_CNT)}, {sr(S_CNT)}, 1", 1: "v_cmp_eq_u32 vcc, 3, v230", 3: f"v_cndmask_b32 v230, v231, {vr(VPL)}, vcc",
                      6: f"buffer_atomic_add {vr(VPL+1)}, v230, {sr(S_DB,4)}, 0 offen sc1"}
            self.period(p, extra=ex, inc=sr(S_INC) if p == 4 else None)
            if p == 1: a("s_cbranch_scc1 L_p14")
        a("s_branch L_loop")
        a.label("L_p14")
        SW = 66
        self.stamp("p14")
        a(f"s_cmp_eq_u32 {sr(S_DUM)}, 4\ns_cbranch_scc0 L_dummyb")
        for i in range(16): a(f"v_mov_b32 {vr(V_CI+i)}, 0xff800000")
        a("s_nop 1")
        a.label("L_dummyb")
        ex = dict(zip([2, 6, 8, 12, 14, 18, 20, 24, 26, 30], self.w_reads(self.WD, 0)))
        ex[0] = "s_waitcnt vmcnt(9)"
        ex.update(dict(zip([4, 10, 16, 22, 28], self.w8_loads(self.WD[2], SW))))
        self.period(14, dma=False, kread=False, extra=ex, halves=(0,))
        self.stamp("tail")
        self.tail(SW)
        self.stamp("end")
        self.epilogue(SW)

    def rare(self):
        a = self.a
        T = S_T
        SW = 66
        a.label("L_last")
        a(f"s_waitcnt vmcnt(9)\ns_mov_b32 {sr(T+2)}, 0")
        a.label("L_late")
        a(f"""v_readfirstlane_b32 {sr(T)}, v252
        v_readfirstlane_b32 {sr(T+1)}, v254
        s_add_u32 {sr(S_XA)}, {sr(S_WS)}, {WS_WF}
        s_addc_u32 {sr(S_XA+1)}, {sr(S_WS+1)}, 0
        s_mov_b32 {sr(S_XA+2)}, {18*BLK}
        s_add_u32 {sr(S_TOFF)}, {sr(S_LB)}, {9*BLK}
        s_mov_b32 {sr(S_INC)}, {-9*BLK}
        s_lshr_b32 {sr(SW)}, {sr(S_W)}, 1
        s_lshl_b32 {sr(SW)}, {sr(SW)}, 30
        s_add_u32 {sr(SW+1)}, {sr(SW)}, {WS_WF + 8*BLK}
        s_add_u32 {sr(SW)}, {sr(SW)}, {WS_WF + 17*BLK}
        s_cmp_ge_u32 {sr(T)}, 126
        s_cselect_b32 {sr(T+3)}, {sr(T+1)}, 0
        s_cmp_ge_u32 {sr(T+3)}, 2
        s_cbranch_scc1 L_lastb
        buffer_load_dwordx4 v[252:255], {vr(self.VPL)}, {sr(S_DB,4)}, 0 offen sc1
        s_add_u32 {sr(T+2)}, {sr(T+2)}, 1
        s_waitcnt vmcnt(0)
        s_cmp_lt_u32 {sr(T+2)}, 0x40000
        s_cbranch_scc1 L_late
        s_branch L_lastb""")

    units = [(0, 0), (0, 1), (1, 0), (1, 1), (2, 0)]
    V15 = V_K

    def stage(self, slot, T):
        src = ar(A_O + 36 * slot + 4 * T, 4)
        if slot == 0: return f"ds_write_b128 {vr(self.VST)}, {src} offset:{1024*T}"
        if slot == 2: return f"ds_write_b128 {vr(self.VS0)}, {src} offset:{1024*T}"
        if T < 4: return f"ds_write_b128 {vr(self.VST)}, {src} offset:{SLOT + 1024*T + (4096 if slot == 3 else 0)}"
        return f"{'s_not_b64' if slot == 1 else 's_mov_b64'} exec, {sr(self.MP1,2)}\nds_write_b128 {vr(self.VST)}, {src} offset:{SLOT + 8192}\ns_mov_b64 exec, -1"

    def dwf(self, k, i):
        f = 5 * k + i
        return self.DWT[f >> 1] + 2 * (f & 1)

    def tail(self, SW):
        a, o = self.a, self.o
        mf, pos, start = [], {}, {}
        for t_, qb in ((14, 0), (14, 1), (15, 0), (15, 1), (14, 2), (15, 2), (14, 3), (15, 3)):
            start[t_, qb] = len(mf)
            for Tt in ([0, 1, 2, 3, 8, 4, 5, 6, 7] if qb & 1 else range(9)):
                o_ = ar(A_O + 36 * qb + 4 * Tt, 4)
                pos[t_, qb, Tt] = len(mf)
                mf.append(f"v_mfma_f32_16x16x32_bf16 {o_}, {vr((V_V if t_ == 14 else self.V15)+4*Tt,4)}, {vr(self.P(t_ & 1,qb),4)}, {o_}")
        lst = []
        for qb in range(4):
            for j in range(8):
                lst.append(("e", qb, j))
                if j & 1: lst.append(("c", qb, j // 2))
        lst += [("a", qb, j) for qb in range(4) for j in range(8)]
        items = self.e_items(1, lst, lambda qb, j: 0 if j < 4 else 1, lambda qb: start[15, qb] - 2)
        for it in items[48:]: it["lo"] = o.get("alo", 26)
        v15 = [dict(t=x, c=4, need=pos[15, 0, i // 2], hi=pos[15, 0, i // 2] - o.get("vlead", 7), lo=0 if i < 16 else 2) for i, x in enumerate(self.v_reads(3, self.V15))]
        wr = []
        nown = o.get("nown", 4)
        self.own = [(2, T_) for T_ in range(nown, 9)] + [(3, T_) for T_ in (0, 1, 2, 3, 8)]
        g = o.get("w0", 23)
        for k, (sl, Tt) in enumerate([(0, T_) for T_ in range(9)] + [(1, T_) for T_ in (0, 1, 2, 3, 8)] + [(2, T_) for T_ in range(nown)]):
            g = max(pos[15, sl, Tt] + 5, g)
            wr.append(dict(t=self.stage(sl, Tt), c=o.get("wc", 20), lo=int(g), hi=int(g)) if g < 72 else dict(t=self.stage(sl, Tt), c=4, lo=999))
            g += o.get("wsp", 2.7)
        n0 = len(items) + len(v15)
        wo = []
        for i, x in enumerate(self.w_reads(self.WO, SLOT)):
            r0 = self.WO[i // 5][i % 5][1]
            wo.append(dict(t=("@VM\n" if i == 0 else "") + x, c=4, dep=sorted({n0 + r0 // 4, n0 + (r0 + 3) // 4 if (r0 + 3) // 4 < 9 else n0 + 8}), lo=o.get("wo0", 40) + 3 * i, hi=o.get("wo0", 40) + 3 * i + 2))
        cl = self.conv_loads()
        dl = [f"buffer_load_dwordx4 {vr(self.DWT[r],4)}, {vr(self.VDW)}, {sr(S_WS,4)}, 0 offen offset:{256*r}" for r in range(7)]
        dl.append(f"buffer_load_dwordx2 {vr(self.DWT[7],2)}, {vr(self.VDW)}, {sr(S_WS,4)}, 0 offen offset:{256*7}")
        fr = {96: 9, 100: 18, 104: 45, 112: 27, 116: 36}
        vm = [(x, 0) for x in cl] + [(x, fr.get(self.DWT[r], 0)) for r, x in enumerate(dl)]
        used = {w["lo"] for w in wr}
        vi, g = [], o.get("m0", 24)
        for x, lo in vm:
            g = max(g, lo)
            while int(g) in used: g += 1
            vi.append(dict(t=x, c=8, lo=int(g), hi=int(g)) if g < 72 else dict(t=x, c=8, lo=999))
            g += o.get("msp", 2.2)
        left = self.pack(mf, items + v15 + wr + wo + vi)
        self.done_a = {(qb, j) for qb in range(4) for j in range(8) if self.etext(1, ("a", qb, j)) not in left}
        left = [x for x in left if not x.startswith("v_add_f32")]
        print("tail overflow", self.over, "left", len(left), "adds done", len(self.done_a))
        self.left = left

    def epilogue(self, SW):
        a, o = self.a, self.o
        T = S_T
        p = lambda r: vr(r, 2)
        NB, PT, MK, VO, units, MP1 = self.NB, self.PT, self.MK, self.VO, self.units, self.MP1
        U, GM, G0, GP = self.U, self.GM, self.G0, self.GP
        X2O = self.X2O
        R1, R2, R3 = 230, 231, 249
        LA, LS, M = 10, 226, 48

        def weave(main, fill, per):
            fill = list(fill)
            for x in main:
                a(x)
                for _ in range(per):
                    if fill: a(fill.pop(0))
            return fill
        for x in self.left:
            if not x.startswith("buffer"): a(x)
        lv = [x for x in self.left if x.startswith("buffer")]
        lv += [f"buffer_load_dwordx4 {vr(self.XRS[j],4)}, {vr(VO+j)}, {sr(S_X,4)}, {sr(self.E_COL)} offen" for j in range(2)]
        lv.append(f"buffer_load_dwordx2 {vr(self.XRS[2],2)}, {vr(self.VO8)}, {sr(S_X,4)}, 0 offen offset:256")
        S1 = lambda qb, j: self.S(1, qb, j)
        rounds = [[] for _ in range(6)]
        for qb in range(4):
            rem = [j for j in range(8) if (qb, j) not in self.done_a]
            prs = [j for j in rem if j % 2 == 0 and j + 1 in rem]
            sing = [j for j in rem if (j & ~1) not in prs]
            r_ = 0
            while len(prs) > 1:
                for x, y in zip(prs[0::2], prs[1::2]): rounds[r_].append(f"v_pk_add_f32 {p(S1(qb,x))}, {p(S1(qb,x))}, {p(S1(qb,y))}")
                prs = prs[0::2]; r_ += 1
            for k_, j in enumerate(sing + ([prs[0], prs[0] + 1] if prs else [])): rounds[min(5, max(r_, 2) + k_)].append(f"v_add_f32 {vr(V_L+qb)}, {vr(V_L+qb)}, {vr(S1(qb,j))}")
        for r_ in rounds:
            for x in r_: a(x)
        a(f"v_add_u32 {vr(R1)}, {sr(self.RS1)}, {vr(V_DMA)}\nv_add_u32 {vr(R2)}, {sr(self.RS2)}, {vr(V_DMA)}")
        self.treduce(V_L)
        a(f"ds_write_b32 {vr(self.VLW)}, {vr(V_L)}")
        acc = lambda slot: [f"v_accvgpr_read_b32 {vr(M+i)}, {ar(A_O+36*slot+16+i)}" for i in range(20)]
        a(f"""v_add_u32 {vr(R3)}, {sr(self.RS3)}, {vr(V_DMA)}
        v_add_u32 {vr(LA+1)}, {self.L_L}, {vr(V_DMA)}
        v_and_b32 {vr(LS+1)}, 0xf0, {vr(V_DMA)}
        s_lshl_b32 {sr(T)}, {sr(NB)}, 8
        s_add_u32 {sr(T+8)}, {sr(T)}, {self.L_L}
        v_add_u32 {vr(LS)}, {sr(T+8)}, {vr(LS+1)}""")
        for x in lv: a(x)
        a(f"""s_xor_b32 {sr(T)}, s2, 1
        s_mul_i32 {sr(T)}, {sr(T)}, {IB}
        s_mul_i32 {sr(T+9)}, {sr(NB)}, 5120
        s_add_u32 {sr(T+9)}, {sr(T+9)}, {WS_IB}
        s_add_u32 {sr(T)}, {sr(T)}, {sr(T+9)}
        s_lshl_b32 {sr(T+10)}, {sr(PT)}, 11
        s_add_u32 {sr(T+1)}, {sr(T+10)}, {sr(T)}
        s_add_u32 {sr(T)}, {sr(T)}, 4096
        s_cmp_eq_u32 {sr(PT)}, 0
        s_cselect_b32 {sr(T)}, 0x40000000, {sr(T)}
        s_mov_b32 {sr(T+2)}, {f32(2.0**100)}
        s_mul_i32 {sr(T+12)}, s2, {IB}
        s_add_u32 {sr(T+12)}, {sr(T+12)}, {sr(T+9)}
        s_add_u32 {sr(T+13)}, {sr(T+12)}, {sr(T+10)}
        s_waitcnt lgkmcnt(0)
        s_barrier""")
        self.stamp("B1")

        def rd(X, offs):
            L = [[f"ds_read_b128 {vr(X[k][i],4)}, {vr((R1, R2, R3)[k])} offset:{offs[k] + 1024*i}" for i in range(4)] for k in range(3)]
            L8 = [f"ds_read_b128 {vr(X[k][4],4)}, {vr((R1, R2, R3)[k])} offset:8192" for k in range(3)]
            return L, L8

        def adds(X, k, rng):
            return [f"v_pk_add_f32 {p(M+4*i+2*h)}, {p(M+4*i+2*h)}, {p(X[k][i]+2*h)}" for i in rng for h in range(2)]
        X = [[128, 132, 136, 140, 144], [148, 152, 156, 160, 68], [72, 76, 200, 204, 108]]
        PK = 128
        L, L8 = rd(X, (0, 4096, 0))
        a(f"ds_read_b128 {vr(LA,4)}, {vr(LA+1)}\nds_read_b128 {vr(LS,4)}, {vr(LS)}")
        rest = weave(L[0] + L[1] + L[2], acc(1), 2)
        assert not rest
        a(f"s_mov_b64 exec, {sr(MP1,2)}")
        for x in L8: a(x)
        a(f"""s_mov_b64 exec, -1
        s_waitcnt lgkmcnt(11)
        v_add_f32 {vr(LA)}, {vr(LA)}, {vr(LA+1)}
        v_add_f32 {vr(LA+2)}, {vr(LA+2)}, {vr(LA+3)}
        v_add_f32 {vr(LS)}, {vr(LS)}, {vr(LS+1)}
        v_add_f32 {vr(LA)}, {vr(LA)}, {vr(LA+2)}
        v_add_f32 {vr(LS+2)}, {vr(LS+2)}, {vr(LS+3)}
        v_cmp_nge_f32 vcc, {sr(T+2)}, {vr(LA)}""")
        for x in adds(X, 0, range(4)): a(x)
        a(f"""s_cmp_lg_u64 vcc, 0
        s_cselect_b32 {sr(T+2)}, 1, 0
        s_andn2_b32 {sr(T+2)}, {sr(T+2)}, {sr(S_REDO)}
        s_cbranch_scc1 L_fallback
        v_add_f32 {vr(PK+10)}, {vr(LS)}, {vr(LS+2)}
        v_mov_b32 {vr(PK+11)}, {vr(MK+1)}
        s_waitcnt lgkmcnt(7)""")
        for x in adds(X, 1, range(4)): a(x)
        a("s_waitcnt lgkmcnt(3)")
        a3 = adds(X, 2, range(4))
        cv = [f"v_cvt_pk_bf16_f32 {vr(PK+i)}, {vr(M+2*i)}, {vr(M+2*i+1)}" for i in range(10)]
        for x in a3[:4] + a3[4:6] + cv[:4]: a(x)
        a(f"buffer_store_dwordx4 {vr(PK,4)}, {vr(V_DMA)}, {sr(S_WS,4)}, {sr(T+1)} offen sc1")
        for x in a3[6:] + cv[4:8]: a(x)
        a(f"buffer_store_dwordx4 {vr(PK+4,4)}, {vr(V_DMA)}, {sr(S_WS,4)}, {sr(T+1)} offen offset:1024 sc1")
        a("s_waitcnt lgkmcnt(0)")
        for kk in range(3):
            for x in adds(X, kk, [4]): a(x)
        for x in cv[8:]: a(x)
        a(f"buffer_store_dwordx4 {vr(PK+8,4)}, {vr(V_DMA)}, {sr(S_WS,4)}, {sr(T)} offen sc1")
        self.stamp("sent")
        a(f"s_cmp_eq_u32 {sr(S_VAL)}, 0\ns_cbranch_scc1 L_fin")
        C, UP = 140, 68
        IN = [(200, 204, 226), (164, 168, 252), (192, 196, 172)]
        VXW, VXR, VF, LO = 78, 79, 10, 36
        wr = [self.stage(*e) for e in self.own]

        def inbox(k):
            return [f"buffer_load_dwordx4 {vr(IN[k][0],4)}, {vr(V_DMA)}, {sr(S_WS,4)}, {sr(T+13)} offen sc1",
                    f"buffer_load_dwordx4 {vr(IN[k][1],4)}, {vr(V_DMA)}, {sr(S_WS,4)}, {sr(T+13)} offen offset:1024 sc1",
                    f"buffer_load_dwordx4 {vr(IN[k][2],4)}, {vr(V_DMA+1)}, {sr(S_WS,4)}, {sr(T+12)} offen sc1"]
        for x in inbox(0): a(x)
        n0 = len(a.lines)
        a(f"""s_lshl_b32 {sr(T)}, {sr(NB)}, 12
        s_add_u32 {sr(T)}, {sr(T)}, {sr(T+10)}
        s_add_u32 {sr(T)}, {sr(T)}, {self.X1B}
        v_add_u32 {vr(VXW)}, {sr(T)}, {vr(V_DMA)}
        s_lshl_b32 {sr(T)}, {sr(NB)}, 9
        s_add_u32 {sr(T)}, {sr(T)}, {self.X1B + 4096}
        v_add_u32 {vr(VXR)}, {sr(T)}, {vr(self.VL8)}
        s_lshl_b32 {sr(T)}, {sr(PT)}, 12
        s_add_u32 {sr(T)}, {sr(T)}, {self.X1B}
        v_add_u32 {vr(VF)}, {sr(T)}, {vr(V_DMA)}
        v_xor_b32 {vr(VF+1)}, 4096, {vr(VF)}
        s_lshl_b32 {sr(T)}, {sr(PT)}, 9
        s_add_u32 {sr(T)}, {sr(T)}, {self.X1B + 4096}
        v_add_u32 {vr(VF+2)}, {sr(T)}, {vr(self.VL8)}
        v_xor_b32 {vr(VF+3)}, 512, {vr(VF+2)}
        v_subrev_u32 {vr(R2)}, {2*SLOT}, {vr(R2)}
        v_subrev_u32 {vr(R3)}, {2*SLOT}, {vr(R3)}
        s_waitcnt vmcnt(9)""")
        self.stamp("cv0")
        un = [f"v_lshlrev_b32 {vr(M+2*i)}, 16, {vr(U+i)}\nv_and_b32 {vr(M+1+2*i)}, 0xffff0000, {vr(U+i)}" for i in range(10)]
        w8 = self.w8_loads(self.WO[2], SW + 1)
        for k, src in enumerate((GM, G0, GP)):
            for i in range(5):
                d = vr(C + 4 * i, 4)
                a(f"v_mfma_f32_16x16x16_bf16 {d}, {vr(self.dwf(k, i),2)}, {vr(src+2*i,2)}, {'0' if k == 0 else d}")
                a(w8.pop(0) if i in (0, 3) and w8 else un.pop(0))
        self.stamp("cv1")
        a(f"v_and_b32 {vr(LO+1)}, 0xf0, {vr(V_DMA)}\nv_add_u32 {vr(LO)}, {sr(T+8)}, {vr(LO+1)}\ns_nop 1")
        for i in range(10): a(f"v_pk_mul_f32 {p(C+2*i)}, {p(C+2*i)}, {p(M+2*i)}")
        for i in range(10):
            a(f"v_cvt_pk_bf16_f32 {vr(UP+i)}, {vr(C+2*i)}, {vr(C+2*i+1)}")
        body = a.lines[n0:]; del a.lines[n0:]
        step = max(1, len(body) // len(wr))
        for i, l in enumerate(body):
            if i % o.get("wstep", step) == 0 and wr: a(wr.pop(0))
            a.lines.append(l)
        for x in wr: a(x)
        ac = acc(3)
        a(f"ds_write_b128 {vr(VXW)}, {vr(UP,4)} offset:{X2O}")
        for x in ac[:6]: a(x)
        a(f"ds_write_b128 {vr(VXW)}, {vr(UP+4,4)} offset:{X2O + 1024}")
        for x in ac[6:12]: a(x)
        a(f"""s_mov_b64 exec, {sr(MP1,2)}
        ds_write_b64 {vr(VXR)}, {vr(UP+8,2)} offset:{X2O}
        s_mov_b64 exec, -1""")
        self.stamp("x2")
        for x in inbox(1): a(x)
        for x in ac[12:]: a(x)
        a("s_waitcnt lgkmcnt(0)\ns_barrier")
        self.stamp("B2")
        X = [[128, 132, 136, 140, 144], [148, 152, 156, 160, 188], [16, 20, 24, 28, 32]]
        L, L8 = rd(X, (4096, 4096, 0))
        BU = [[("v", r) for r in (100, 104, 108, 112, 116)], [("v", r) for r in (118, 122, 180, 184, 126)]]
        BO = [self.frag("v", 128), self.frag("v", 146)]
        AB = 80

        def bfrags(dst, off):
            out = []
            for s in range(5):
                for j in range(2):
                    out.append(f"ds_read_b128 {self.rg(dst[j][s],4)}, {vr(VF+j)} offset:{off + 1024*s}" if s < 4 else f"ds_read_b64 {self.rg(dst[j][4],2)}, {vr(VF+2+j)} offset:{off}")
            return out

        def fg(W, Bf):
            out = []
            for s in range(5):
                for u, (tt, j) in enumerate(units):
                    d = vr(AB + 4 * u, 4)
                    if s < 4: out.append(f"v_mfma_f32_16x16x32_bf16 {d}, {self.rg(W[tt][s],4)}, {self.rg(Bf[j][s],4)}, {d}")
                    else: out.append(f"v_mfma_f32_16x16x16_bf16 {d}, {self.rg(W[tt][4],2)}, {self.rg(Bf[j][4],2)}, {d}")
            return out
        xu = []
        for u, (tt, j) in enumerate(units):
            for h in range(2):
                x = self.XRS[j] + 2 * tt + h if tt < 2 else self.XRS[2] + h
                xu += [f"v_lshlrev_b32 {vr(AB+4*u+2*h)}, 16, {vr(x)}", f"v_and_b32 {vr(AB+1+4*u+2*h)}, 0xffff0000, {vr(x)}"]
        a("s_waitcnt vmcnt(14)")
        weave(bfrags(BU, X2O), xu, 2)
        pl = lambda k, i, e: f"v_add_f32 {vr(M+4*i+e)}, {vr(M+4*i+e)}, {vr(X[k][i]+e)}"
        ds = L[0] + L[1] + L[2] + [f"s_not_b64 exec, {sr(MP1,2)}\n" + "\n".join(L8) + "\ns_mov_b64 exec, -1", f"ds_read_b128 {vr(LO,4)}, {vr(LO)} offset:512"]
        nis = [1] * 12 + [3, 1]
        gap = [[] for _ in range(25)]
        tot = [10]
        for g in range(25): tot.append(tot[-1] + (nis[g] if g < 14 else 0))
        A0 = [pl(0, i, e) for i in range(4) for e in range(4)]
        A1 = [pl(1, i, e) for i in range(4) for e in range(4)]
        ib = inbox(2)
        for g, m in enumerate(fg(self.WD, BU)):
            if g % 5 == 0: a(f"s_waitcnt lgkmcnt({min(15, tot[g] - 2 * (g // 5 + 1))})")
            a(m)
            if g == 8: a(f"s_waitcnt lgkmcnt({tot[g] - 14})")
            if g == 16: a(f"s_waitcnt lgkmcnt({tot[g] - 18})")
            if g < 14: a(ds[g])
            if 8 <= g < 14: a(A0.pop(0))
            elif g in (14, 18, 22): a(ib.pop(0))
            elif g >= 14:
                for _ in range(2): a(A0.pop(0) if A0 else A1.pop(0))
        assert not A0 and len(A1) % 2 == 0
        n1 = 16 - len(A1)
        for e in range(n1, 16, 2): a(f"v_pk_add_f32 {p(M+e)}, {p(M+e)}, {p(X[1][e//4]+e%4)}")
        a("s_waitcnt lgkmcnt(0)")
        for x in adds(X, 2, range(4)): a(x)
        a(f"v_add_f32 {vr(LO)}, {vr(LO)}, {vr(LO+1)}\nv_add_f32 {vr(LO+2)}, {vr(LO+2)}, {vr(LO+3)}")
        for kk in range(3):
            for x in adds(X, kk, [4]): a(x)
        a(f"s_mov_b32 {sr(T+2)}, 0\nv_add_f32 {vr(LO)}, {vr(LO)}, {vr(LO+2)}")
        self.stamp("own")
        w, PU = 40, 128
        mo = MK + 3

        def chk(k):
            r = [IN[k][q] + i for q in range(3) for i in range(4)]
            c = [f"v_max3_u32 v46, {vr(r[0])}, {vr(r[1])}, {vr(r[2])}", f"v_max3_u32 v47, {vr(r[3])}, {vr(r[4])}, {vr(r[5])}"]
            for q in range(3): c.append(f"v_max3_u32 v{46+(q&1)}, v{46+(q&1)}, {vr(r[6+2*q])}, {vr(r[7+2*q])}")
            return c + ["v_max_u32 v46, v46, v47", "v_cmp_eq_u32 vcc, -1, v46"]

        def take(k, with_chk):
            r = [IN[k][q] + i for q in range(3) for i in range(4)]
            lp_, mp = r[10], r[11]
            wt = [f"v_min_f32 {vr(w)}, {vr(mo)}, {vr(mp)}", f"v_sub_f32 {vr(w+2)}, {vr(w)}, {vr(mp)}", f"v_sub_f32 {vr(w)}, {vr(w)}, {vr(mo)}",
                  f"v_exp_f32 {vr(w+2)}, {vr(w+2)}", f"v_exp_f32 {vr(w)}, {vr(w)}", f"v_mul_f32 {vr(w+4)}, {vr(w+2)}, {vr(lp_)}",
                  f"v_fmac_f32 {vr(w+4)}, {vr(w)}, {vr(LO)}", f"v_rcp_f32 {vr(w+4)}, {vr(w+4)}", f"v_mul_f32 {vr(w)}, {vr(w)}, {vr(w+4)}",
                  f"v_mul_f32 {vr(w+2)}, {vr(w+2)}, {vr(w+4)}"]
            un = []
            for i in range(10): un += [f"v_lshlrev_b32 {vr(PU+2*i)}, 16, {vr(r[i])}", f"v_and_b32 {vr(PU+1+2*i)}, 0xffff0000, {vr(r[i])}"]
            c = chk(k) if with_chk else []
            for i in range(10):
                a(wt[i])
                if c: a(c.pop(0))
                a(un.pop(0)); a(un.pop(0))
        a("s_waitcnt vmcnt(6)")
        take(0, True)
        a("s_cmp_eq_u64 vcc, 0\ns_cbranch_scc0 L_poll2")
        a.label("L_got")
        self.stamp("got")
        for i in range(10): a(f"v_pk_mul_f32 {p(M+2*i)}, {p(M+2*i)}, {p(w)} op_sel_hi:[1,0]")
        for i in range(10): a(f"v_pk_fma_f32 {p(M+2*i)}, {p(PU+2*i)}, {p(w+2)}, {p(M+2*i)} op_sel_hi:[1,0,1]")
        for i in range(10):
            a(f"v_cvt_pk_bf16_f32 {vr(UP+i)}, {vr(M+2*i)}, {vr(M+2*i+1)}")
            if i == 3: a(f"ds_write_b128 {vr(VXW)}, {vr(UP,4)}")
            if i == 7: a(f"ds_write_b128 {vr(VXW)}, {vr(UP+4,4)} offset:1024")
        a(f"""s_not_b64 exec, {sr(MP1,2)}
        ds_write_b64 {vr(VXR)}, {vr(UP+8,2)}
        s_mov_b64 exec, -1
        s_waitcnt lgkmcnt(0)
        s_barrier""")
        self.stamp("B3")
        for x in bfrags(BO, 0): a(x)
        for g, m in enumerate(fg(self.WO, BO)):
            if g % 5 == 0: a(f"s_waitcnt lgkmcnt({8 - 2 * (g // 5)})" + ("\ns_nop 0" if g == 20 else ""))
            a(m)
        self.stamp("gem")
        a("s_nop 3")
        for j in range(2):
            for tt in range(2):
                u = 2 * tt + j
                for h in range(2): a(f"v_cvt_pk_bf16_f32 {vr(16+4*j+2*tt+h)}, {vr(AB+4*u+2*h)}, {vr(AB+4*u+2*h+1)}")
            a(f"buffer_store_dwordx4 {vr(16+4*j,4)}, {vr(VO+j)}, {sr(S_OUT,4)}, {sr(self.E_COL)} offen")
        a(f"s_cmp_ge_u32 {sr(S_W)}, 2\ns_cbranch_scc1 L_fin")
        for h in range(2): a(f"v_cvt_pk_bf16_f32 {vr(24+h)}, {vr(AB+16+2*h)}, {vr(AB+16+2*h+1)}")
        a(f"buffer_store_dwordx2 v[24:25], {vr(self.VO8)}, {sr(S_OUT,4)}, 0 offen offset:256")
        self.stamp("fin")

        def poll2():
            a.label("L_poll2")
            for k in (1, 2, 0):
                for x in inbox((k + 2) % 3): a(x)
                a("s_waitcnt vmcnt(6)")
                for x in chk(k): a(x)
                a(f"s_add_u32 {sr(T+2)}, {sr(T+2)}, 1\ns_cmp_eq_u64 vcc, 0\ns_cbranch_scc1 L_take{k}")
            a(f"s_cmp_lt_u32 {sr(T+2)}, 0x10000\ns_cbranch_scc1 L_poll2")
            for k in (0, 1, 2):
                a.label(f"L_take{k}")
                take(k, False)
                a("s_branch L_got")
        self.poll2 = poll2

    def fallback(self):
        a = self.a
        T = S_T
        MXR = 208
        a.label("L_fallback")
        a(f"""s_waitcnt vmcnt(0) lgkmcnt(0)
        s_barrier
        s_mov_b32 {sr(S_REDO)}, 1
        s_mov_b32 {sr(S_UG)}, 0x40000000
        {self.xa_srd()}
        s_mov_b32 {sr(S_TOFF)}, {sr(S_LB)}
        s_cmp_eq_u32 {sr(S_DUM)}, 4
        s_cselect_b32 {sr(S_CNT)}, 15, 16""")
        for i in range(4): a(f"v_mov_b32 {vr(MXR+i)}, 0xff800000")
        a.label("L_fb1")
        for g in self.tile_groups(0): a(g)
        a("s_waitcnt vmcnt(0)")
        for x in self.k_reads(0): a(x)
        a("s_waitcnt lgkmcnt(0)")
        for m in self.qk_mfmas(0, czero=True): a(m)
        a("s_nop 7")
        for qb in range(4):
            for i in range(0, 8, 2): a(f"v_max3_f32 {vr(MXR+qb)}, {vr(MXR+qb)}, {vr(self.S(0,qb,i))}, {vr(self.S(0,qb,i+1))}")
        a(f"s_sub_u32 {sr(S_CNT)}, {sr(S_CNT)}, 1\ns_cmp_lg_u32 {sr(S_CNT)}, 0\ns_cbranch_scc1 L_fb1")
        self.greduce([MXR + i for i in range(4)], MXR + 4, "v_max_f32")
        a(f"""v_and_b32 {vr(MXR+4)}, 15, v0
        v_lshlrev_b32 {vr(MXR+4)}, 4, {vr(MXR+4)}
        v_add_u32 {vr(MXR+4)}, {L_SP}, {vr(MXR+4)}
        s_lshl_b32 {sr(T)}, {sr(S_W)}, 2
        s_xor_b32 {sr(T+1)}, {sr(self.NB)}, 1
        v_lshl_add_u32 {vr(MXR+5)}, {sr(self.NB)}, 8, {vr(MXR+4)}
        v_lshl_add_u32 {vr(MXR+4)}, {sr(T+1)}, 8, {vr(MXR+4)}
        v_add_u32 {vr(MXR+6)}, {sr(T)}, {vr(MXR+4)}
        v_add_u32 {vr(MXR+7)}, {sr(T)}, {vr(MXR+5)}""")
        for qb in range(4): a(f"ds_write_b32 {vr(MXR+6+(qb&1))}, {vr(MXR+qb)} offset:{512*(qb>>1)}")
        a("s_waitcnt lgkmcnt(0)\ns_barrier")
        for qb in range(4): a(f"ds_read_b128 {vr(16+4*qb,4)}, {vr(MXR+4+(qb&1))} offset:{512*(qb>>1)}")
        a(f"s_mov_b32 {sr(S_TOFF)}, {sr(S_LB)}")
        for g in self.tile_groups(0) + self.tile_groups(1) + self.tile_groups(2)[:8]: a(g)
        a("s_waitcnt lgkmcnt(0)")
        for qb in range(4):
            r = 16 + 4 * qb
            a(f"v_max_f32 {vr(r)}, {vr(r)}, {vr(r+1)}\nv_max3_f32 {vr(r)}, {vr(r)}, {vr(r+2)}, {vr(r+3)}")
            a(f"v_sub_f32 {vr(self.MK+qb)}, 0, {vr(r)}")
        a("s_waitcnt vmcnt(0)")
        for x in self.k_reads(0, V_V): a(x)
        self.loop_init(False)
        a("s_branch L_go")


if __name__ == "__main__":
    opt = json.loads(sys.argv[2]) if len(sys.argv) > 2 else {}
    g = G(opt)
    txt = g.build()
    if opt.get("align", 1):
        from align import align
        for n2 in (1, 2):
            try:
                txt, st = align(txt, chains=[(1, "L_tr")] * 3 + [(1, "L_tr2"), (n2, "L_tr2")] if opt.get("touch", 1) else None)
                break
            except AssertionError as e:
                if n2 == 2: raise
        print("align: promoted %d, padded %d, left %d" % st)
    txt = txt.replace("\n", "\n; stamps " + json.dumps(g.stnames) + "\n; map %d\n" % g.mp, 1)
    open(sys.argv[1], "w").write(txt)
```

```python
import sys, json, math
from common import Asm, vr, ar, sr, kernel_header, kernel_desc
from lay import *

NAME = "standalone__conformer_family_branchformer__speech_kernel"
NH = 2
NWG = 252 + NH
CHAINS = (3, 3)
RING = 4
LDS_RING = RING * TILE
LDS_TOTAL = 163840
SLOT = 4 * TILE
L_WU, L_WQ, L_WK = 0, 41472, 82944
L_XX, L_XR = 126976, 143360
L_QD = 18432
L_XS = L_XX + L_QD
L_MX = 81920
L_PC = LDS_TOTAL - 256
L_DUMP = 123904
L_SP = 147456

S_X, S_WS, S_XA, S_DB, S_W1, S_W2, S_OUT, S_DW = 8, 12, 16, 20, 24, 28, 32, 36
S_W, S_B, S_H, S_QB, S_TOFF, S_CNT, S_DUM, S_LB, S_TOWN, S_TSND, S_VAL, S_REDO = range(40, 52)
S_UG = 25
S_INC = 24
S_T = 52
S_ST = 76

V_KA, V_VA, V_VR, V_DMA, V_L, V_VB = 1, 3, 5, 6, 10, 14
V_S, V_CI, V_P, V_K, V_V = 16, 80, 96, 128, 164
V_HI = 200
V_X = 208
A_O, A_Q, A_F = 0, 144, 216

LOG2E = 1.4426950408889634
import struct
def f32(x): return "0x%08x" % struct.unpack("<I", struct.pack("<f", x))[0]


class BAsm(Asm):
    def __init__(self):
        super().__init__()
        self.bg, self.every, self.cnt, self.skip = [], 0, 0, 0

    def __call__(self, s):
        for l in s.split("\n"):
            l = l.strip()
            if not l: continue
            self.lines.append("    " + l)
            if self.bg and self.every and not l.startswith(("s_nop", "v_mov_b32", "v_exp", "v_rcp", "v_rsq", "v_sqrt", "s_add_u32 m0")):
                self.cnt += 1
                if self.cnt >= self.every:
                    self.cnt = 0
                    self.pop()

    def pop(self):
        for x in self.bg.pop(0).split("\n"): self.lines.append("    " + x)

    def flush(self):
        while self.bg: self.pop()
        self.every = 0


class G:
    def __init__(self, opt):
        self.o = opt
        self.a = BAsm()
        self.nst = 0
        self.fill = []

    def stamp(self, name):
        if self.o.get("stamps"):
            if name in self.o.get("skipst", []): return
            if "only" in self.o and name not in self.o["only"]: return
            if self.nst >= 11: return
            self.a(f"{'s_memtime' if self.o.get('cyc') else 's_memrealtime'} {sr(S_ST + 2*self.nst, 2)}")
            self.stnames.append(name)
            self.nst += 1

    def srd(self, dst, lo, hi, n):
        if dst == S_WS and self.o.get("wsoff"):
            self.a(f"s_add_u32 {sr(dst)}, {sr(lo)}, {self.o['wsoff']}\ns_addc_u32 {sr(dst+1)}, {sr(hi)}, 0\ns_mov_b32 {sr(dst+2)}, {n}\ns_mov_b32 {sr(dst+3)}, 0x20000")
            return
        self.a(f"s_mov_b32 {sr(dst)}, {sr(lo)}\ns_mov_b32 {sr(dst+1)}, {sr(hi)}\ns_mov_b32 {sr(dst+2)}, {n}\ns_mov_b32 {sr(dst+3)}, 0x20000")

    def greduce(self, regs, tmp, op="v_add_f32"):
        a = self.a
        for sw in ("32", "16"):
            for i, r in enumerate(regs): a(f"v_mov_b32 {vr(tmp+i)}, {vr(r)}")
            if len(regs) < 3: a("s_nop 1" if len(regs) == 1 else "s_nop 0")
            for i, r in enumerate(regs): a(f"v_permlane{sw}_swap_b32 {vr(r)}, {vr(tmp+i)}")
            for i, r in enumerate(regs): a(f"{op} {vr(r)}, {vr(r)}, {vr(tmp+i)}")

    def treduce(self, r, op="v_add_f32"):
        a = self.a
        a(f"v_permlane32_swap_b32 {vr(r)}, {vr(r+2)}\nv_permlane32_swap_b32 {vr(r+1)}, {vr(r+3)}")
        a(f"{op} {vr(r)}, {vr(r)}, {vr(r+2)}\n{op} {vr(r+1)}, {vr(r+1)}, {vr(r+3)}\ns_nop 1")
        a(f"v_permlane16_swap_b32 {vr(r)}, {vr(r+1)}\n{op} {vr(r)}, {vr(r)}, {vr(r+1)}")

    def rbf(self, r):
        self.a(f"v_cvt_pk_bf16_f32 {vr(r)}, {vr(r)}, {vr(r)}\nv_lshlrev_b32 {vr(r)}, 16, {vr(r)}")

    def ln_tail(self, F, out, t, mimic):
        a = self.a
        p = lambda r: vr(r, 2)
        self.greduce([t, t + 1], t + 2)
        a(f"v_mul_f32 {vr(t+2)}, {f32(1.0/144)}, {vr(t)}")
        a(f"v_mul_f32 {vr(t+3)}, {vr(t+2)}, {vr(t+2)}")
        a(f"v_mov_b32 {vr(t+4)}, {f32(1.0/144)}")
        a(f"v_fma_f32 {vr(t)}, {vr(t+1)}, {vr(t+4)}, -{vr(t+3)}")
        a(f"v_max_f32 {vr(t)}, 0, {vr(t)}")
        if mimic:
            self.rbf(t)
            self.rbf(t + 2)
            a(f"v_add_f32 {vr(t)}, {f32(1e-5)}, {vr(t)}")
            self.rbf(t)
            a(f"v_sqrt_f32 {vr(t)}, {vr(t)}\ns_nop 0")
            self.rbf(t)
            a(f"v_rcp_f32 {vr(t)}, {vr(t)}\ns_nop 0")
        else:
            a(f"v_add_f32 {vr(t)}, {f32(1e-5)}, {vr(t)}")
            a(f"v_rsq_f32 {vr(t)}, {vr(t)}\ns_nop 0")
        a(f"v_mul_f32 {vr(t+2)}, -{vr(t+2)}, {vr(t)}")
        for i in range(18):
            a(f"v_pk_fma_f32 {p(F+2*i)}, {p(F+2*i)}, {p(t)}, {p(t+2)} op_sel_hi:[1,0,0]")
        for i in range(18):
            a(f"v_cvt_pk_bf16_f32 {vr(out+i)}, {vr(F+2*i)}, {vr(F+2*i+1)}")

    def ln_packed(self, X, F, out, t):
        a = self.a
        a(f"v_mov_b32 {vr(t+6)}, 0x3f803f80")
        for k in range(4): a(f"v_mov_b32 {vr(t+k)}, 0")
        for i in range(18):
            a(f"v_dot2_f32_bf16 {vr(t+2*(i&1))}, {vr(X+i)}, {vr(t+6)}, {vr(t+2*(i&1))}")
            a(f"v_dot2_f32_bf16 {vr(t+1+2*(i&1))}, {vr(X+i)}, {vr(X+i)}, {vr(t+1+2*(i&1))}")
        for i in range(2):
            a(f"v_lshlrev_b32 {vr(F+2*i)}, 16, {vr(X+i)}\nv_and_b32 {vr(F+2*i+1)}, 0xffff0000, {vr(X+i)}")
        a(f"v_pk_add_f32 {vr(t,2)}, {vr(t,2)}, {vr(t+2,2)}")
        un = []
        for i in range(2, 18):
            un.append(f"v_lshlrev_b32 {vr(F+2*i)}, 16, {vr(X+i)}\nv_and_b32 {vr(F+2*i+1)}, 0xffff0000, {vr(X+i)}")
        sv = (a.bg, a.every, a.cnt, a.skip)
        n0 = len(a.lines)
        a.bg, a.every = [], 0
        self.ln_tail(F, out, t, True)
        tail = a.lines[n0:]
        del a.lines[n0:]
        a.bg, a.every, a.cnt, a.skip = sv
        k = next(i for i, l in enumerate(tail) if "v_pk_fma" in l)
        for i, l in enumerate(tail[:k]):
            if "s_nop" in l and un: continue_nop = True
            a(l)
            if un and not l.strip().startswith("s_nop"): a(un.pop(0))
        while un: a(un.pop(0))
        for l in tail[k:]: a(l)

    def ln_f32(self, F, out, t):
        a = self.a
        p = lambda r: vr(r, 2)
        a(f"v_pk_add_f32 {p(t)}, {p(F)}, {p(F+2)}\nv_pk_add_f32 {p(t+2)}, {p(F+4)}, {p(F+6)}")
        a(f"v_pk_mul_f32 {p(t+4)}, {p(F)}, {p(F)}\nv_pk_mul_f32 {p(t+6)}, {p(F+2)}, {p(F+2)}")
        for i in range(2, 18):
            if i >= 4: a(f"v_pk_add_f32 {p(t+2*(i&1))}, {p(t+2*(i&1))}, {p(F+2*i)}")
            a(f"v_pk_fma_f32 {p(t+4+2*(i&1))}, {p(F+2*i)}, {p(F+2*i)}, {p(t+4+2*(i&1))}")
        a(f"v_pk_add_f32 {p(t)}, {p(t)}, {p(t+2)}\nv_pk_add_f32 {p(t+4)}, {p(t+4)}, {p(t+6)}")
        a(f"v_add_f32 {vr(t)}, {vr(t)}, {vr(t+1)}\nv_add_f32 {vr(t+1)}, {vr(t+4)}, {vr(t+5)}")
        self.ln_tail(F, out, t, False)

    def gemm_u(self, AF, rf, Bs, ACC, afr, bfr, post, vm_items=(), other=(), lead=7, vm0=0, vmsp=4):
        a = self.a
        units = [(0, j) for j in range(4)] + [(1, j) for j in range(4)] + [(2, 0)]
        seq, dl = [], {}
        bs = lambda j, o_, n: self.rg((Bs[j][0], Bs[j][1] + o_), n)
        rem = lambda u: (f"v_mfma_f32_16x16x16_bf16 {vr(ACC+4*u,4)}, {rf(AF+18*units[u][0]+16,2)}, {bs(units[u][1],16,2)}, {vr(ACC+4*u,4)}", u)
        A = [afr(t) for t in range(3)]
        Bf = [bfr(j) for j in range(4)]

        def use(t, j, s, k):
            for x in (A[t][2 * s:2 * s + 2] if s < 4 else A[t][8:]) + ([Bf[j][s]] if Bf[j] else []): dl.setdefault(x, k)
        for g in range(4):
            for s in range(4):
                for u in range(3 * g, 3 * g + 3) if g < 3 else []:
                    t, j = units[u]
                    d = vr(ACC + 4 * u, 4)
                    use(t, j, s, len(seq))
                    seq.append((f"v_mfma_f32_16x16x32_bf16 {d}, {rf(AF+18*t+4*s,4)}, {bs(j,4*s,4)}, {'0' if s == 0 else d}", None))
                if s == 0 and g > 0:
                    for u in range(3 * g - 3, 3 * g):
                        use(units[u][0], units[u][1], 4, len(seq)); seq.append(rem(u))
        last = seq[-3:]; seq = seq[:-3]
        ds = sorted(dl.items(), key=lambda e: e[1]) + [(x, 99) for x in other]
        vm_items = list(vm_items)
        lastvm = vm0 - vmsp
        order, ready, q, done = [], [], [], 0

        def issue():
            x, k_ = ds.pop(0); a(x); order.append(k_)

        def wait(k):
            nonlocal done
            idx = [i_ for i_, k_ in enumerate(order) if k_ <= k]
            if idx and max(idx) + 1 > done:
                a(f"s_waitcnt lgkmcnt({min(15, len(order) - 1 - max(idx))})"); done = max(idx) + 1
        while ds and ds[0][1] < 6: issue()
        for k, (m, fin) in enumerate(seq):
            assert not ds or ds[0][1] > k, (k, ds[0])
            wait(k)
            a(m)
            for u_, kk in list(ready):
                if k - kk >= 4: q += post(u_); ready.remove((u_, kk))
            if fin is not None: ready.append((fin, k))
            due = sum(1 for x, k_ in ds if k_ <= k + lead)
            if due == 0 and vm_items and k >= lastvm + vmsp:
                a(vm_items.pop(0)); lastvm = k; continue
            cap = 2
            for _ in range(min(due, 3)): issue(); cap -= 1
            if cap == 2:
                if q and q[0].startswith("ds_"): a(q.pop(0)); order.append(99); cap -= 1
                elif ds: issue(); cap -= 1
            while cap > 0 and q and not q[0].startswith("ds_"):
                a(q.pop(0)); cap -= 1
        assert not ready
        while ds: issue()
        wait(98)
        for x in vm_items: a(x)
        for x in q[:4]: a(x)
        a(f"s_nop {max(0, 4 - len(q[:4]))}")
        for m, _ in last: a(m)
        for x in q[4:]: a(x)
        a(f"s_nop {max(0, 6 - len(q[4:]))}")
        for u in range(6, 9):
            for x in post(u): a(x)

    def gemm(self, reads, B, ACC, AF, late=(), at={}, per=2):
        a = self.a
        buf = lambda T: 18 * (T % 6)
        ng = 3 * (4 * per + 1)

        def grp(g):
            r = [reads(T, buf(T)) for T in range(3 * g, 3 * g + 3)]
            return [r[t][per * s + u] for s in range(4) for t in range(3) for u in range(per)] + [r[t][4 * per] for t in range(3)]
        rem = lambda T: f"v_mfma_f32_16x16x16_bf16 {vr(ACC+4*T,4)}, {ar(buf(T)+16,2)}, {vr(B+16,2)}, {vr(ACC+4*T,4)}"
        pend = grp(0) + grp(1) + grp(2) + list(late)
        issued = k = 0

        def issue(n):
            nonlocal issued
            for _ in range(n):
                if issued < len(pend): a(pend[issued]); issued += 1

        def mf(x):
            nonlocal k
            a(x); issue(per if per == 2 else (2 if k % 4 == 0 else 1))
            if k in at: a(at[k])
            k += 1
        issue(self.o.get('look', 12) if per == 2 else self.o.get('look1', 8))
        for g in range(3):
            for s in range(4):
                need = ng * g + 3 * per * (s + 1)
                a(f"s_waitcnt lgkmcnt({min(15, issued - need)})")
                for T in range(3 * g, 3 * g + 3):
                    d = vr(ACC + 4 * T, 4)
                    mf(f"v_mfma_f32_16x16x32_bf16 {d}, {ar(buf(T)+4*s,4)}, {vr(B+4*s,4)}, {'0' if s == 0 else d}")
                if s == 0 and g > 0:
                    for T in range(3 * g - 3, 3 * g): mf(rem(T))
                if g == 1 and s == 0: assert issued <= 2 * ng + 6 * per, "group 2 overwrites group 0 too early"
        issue(99)
        a(f"s_waitcnt lgkmcnt({len(late)})\ns_nop 2")
        for T in range(6, 9): a(rem(T))
        a("s_nop 7")

    def tr_reads(self, ad, rf=ar):
        def f(T, dst):
            out = []
            for s in range(4):
                for u in range(2):
                    out.append(f"ds_read_b64_tr_b16 {rf(dst+4*s+2*u,2)}, {vr(ad+u)} offset:{9216*s + 32*T}")
            out.append(f"ds_read_b64_tr_b16 {rf(dst+16,2)}, {vr(ad+2)} offset:{36864 + 32*T}")
            return out
        return f

    def row_reads(self, ad, sw=None):
        def f(T, dst):
            r = ad if sw is None or T == 8 else sw[T & 1]
            out = []
            for s in range(4):
                for u in range(2):
                    out.append(f"ds_read_b64 {ar(dst+4*s+2*u,2)}, {vr(r)} offset:{4864*T + 64*s + 32*u}")
            out.append(f"ds_read_b64 {ar(dst+16,2)}, {vr(r)} offset:{4864*T + 256}")
            return out
        return f

    def dma_rows(self, jobs, cpr, rstride, vo, vc, n_first, first_waves, lab):
        a = self.a
        mul = {18: 3641, 19: 3450}[cpr]
        dr, dc = 256 // cpr, 256 % cpr
        a(f"s_lshl_b32 {sr(S_T)}, {sr(S_W)}, 6")
        a(f"v_add_u32 {vr(vc)}, {sr(S_T)}, v0")
        a(f"v_mul_u32_u24 {vr(vo)}, {mul}, {vr(vc)}")
        a(f"v_lshrrev_b32 {vr(vo)}, 16, {vr(vo)}")
        a(f"v_mul_u32_u24 {vr(vc+1)}, {cpr}, {vr(vo)}")
        a(f"v_sub_u32 {vr(vc)}, {vr(vc)}, {vr(vc+1)}")
        a(f"v_mul_u32_u24 {vr(vo)}, {rstride}, {vr(vo)}")
        a(f"v_lshl_add_u32 {vr(vo)}, {vr(vc)}, 4, {vr(vo)}")
        a(f"s_lshl_b32 {sr(S_T)}, {sr(S_W)}, 10")
        a(f"v_mov_b32 {vr(vc+1)}, {rstride - 16*cpr}")
        for k in range(n_first):
            if k == n_first - 1:
                a(f"s_cmp_ge_u32 {sr(S_W)}, {first_waves}\ns_cbranch_scc1 {lab}")
            for srd, so, lb in jobs:
                a(f"s_add_u32 m0, {sr(S_T)}, {lb + 4096*k}")
                a("s_nop 0")
                a(f"buffer_load_dwordx4 {vr(vo)}, {sr(srd,4)}, {so} offen lds")
            if k < n_first - 1:
                a(f"v_add_u32 {vr(vc)}, {dc}, {vr(vc)}")
                a(f"v_cmp_le_u32 vcc, {cpr}, {vr(vc)}")
                a(f"v_add_u32 {vr(vo)}, {dr*rstride + 16*dc}, {vr(vo)}")
                a(f"v_subrev_u32 {vr(vc+2)}, {cpr}, {vr(vc)}")
                a(f"v_cndmask_b32 {vr(vc)}, {vr(vc)}, {vr(vc+2)}, vcc")
                a(f"v_cndmask_b32 {vr(vc+2)}, 0, {vr(vc+1)}, vcc")
                a(f"v_add_u32 {vr(vo)}, {vr(vo)}, {vr(vc+2)}")
        a.label(lab)

    def voff_table(self, dst, cpr, rstride, vc, step=256):
        a = self.a
        mul = {18: 29128, 19: 27595}[cpr]
        n = len(dst)
        a(f"s_mov_b32 {sr(S_T)}, {rstride - 16*cpr}")
        a(f"v_mul_u32_u24 {vr(dst[0])}, {mul}, {vr(vc)}")
        for k in range(1, n): a(f"v_add_u32 {vr(dst[k])}, {(step*k % cpr)*mul}, {vr(dst[0])}")
        for k in range(n): a(f"v_lshrrev_b32 {vr(dst[k])}, 19, {vr(dst[k])}")
        for k in range(n): a(f"v_mad_i32_i24 {vr(dst[k])}, {vr(dst[k])}, {sr(S_T)}, {vr(vc+1)}")

    def dma_lin(self, srd, soff, lb, v16, lab):
        a = self.a
        a(f"s_lshl_b32 {sr(S_T)}, {sr(S_W)}, 10")
        for k in range(11):
            if k == 10:
                a(f"s_cmp_ge_u32 {sr(S_W)}, 1\ns_cbranch_scc1 {lab}")
            a(f"s_add_u32 m0, {sr(S_T)}, {lb + 4096*k}")
            a(f"s_add_u32 {sr(S_T+1)}, {sr(S_T)}, {soff + 4096*k}")
            a(f"buffer_load_dwordx4 {vr(v16)}, {sr(srd,4)}, {sr(S_T+1)} offen lds")
        a.label(lab)

    def tr_addr(self, ad, base, swapped, t):
        a = self.a
        a(f"v_lshrrev_b32 {vr(t)}, 2, v0")
        a(f"v_mul_u32_u24 {vr(t)}, 288, {vr(t)}")
        a(f"v_and_b32 {vr(t+1)}, 3, v0")
        a(f"v_lshl_add_u32 {vr(t)}, {vr(t+1)}, 3, {vr(t)}")
        a(f"v_add_u32 {vr(ad+2)}, {base}, {vr(t)}")
        if swapped:
            a(f"v_bfe_u32 {vr(t)}, v0, 4, 1")
            a(f"v_mul_u32_u24 {vr(t)}, {16*288}, {vr(t)}")
            a(f"v_add_u32 {vr(ad)}, {vr(ad+2)}, {vr(t)}")
            a(f"v_sub_u32 {vr(ad+1)}, {vr(ad+2)}, {vr(t)}")
            a(f"v_add_u32 {vr(ad+1)}, {16*288}, {vr(ad+1)}")
        else:
            a(f"v_mov_b32 {vr(ad)}, {vr(ad+2)}")
            a(f"v_add_u32 {vr(ad+1)}, {16*288}, {vr(ad+2)}")

    def row_addr(self, ad, base, t):
        a = self.a
        a(f"v_and_b32 {vr(t)}, 15, v0")
        a(f"v_mul_u32_u24 {vr(t)}, 304, {vr(t)}")
        a(f"v_lshrrev_b32 {vr(t+1)}, 4, v0")
        a(f"v_lshl_add_u32 {vr(t)}, {vr(t+1)}, 3, {vr(t)}")
        a(f"v_add_u32 {vr(ad)}, {base}, {vr(t)}")

    def store_block(self, src, v16, v8, srd, soff, soff2, flags=""):
        a = self.a
        for s in range(4):
            a(f"buffer_store_dwordx4 {vr(src+4*s,4)}, {vr(v16)}, {sr(srd,4)}, {sr(soff)} offen offset:{1024*s} {flags}")
        a(f"buffer_store_dwordx2 {vr(src+16,2)}, {vr(v8)}, {sr(srd,4)}, {sr(soff2)} offen {flags}")

    def entry(self):
        a = self.a
        kernel_header(a, NAME)
        a(f"s_load_dwordx16 s[56:71], s[0:1], 0")
        a(f"s_load_dwordx8 s[72:79], s[0:1], 64")
        a(f"s_getpc_b64 {sr(S_W1,2)}")
        a.label("L_pf")
        hl = self.o.get("hlast", 1)
        if not hl: a(f"s_cmp_lt_u32 s2, {NH}\ns_cbranch_scc1 L_wfuse")
        a(f"""s_mov_b32 {sr(S_W1+2)}, L_dummy-L_pf
        s_mov_b32 {sr(S_W1+3)}, 0x20000
        v_lshlrev_b32 v1, 4, v0
        s_bfe_u32 {sr(S_T)}, s2, 0x30003
        s_lshl_b32 {sr(S_T)}, {sr(S_T)}, 12
        buffer_load_dwordx4 v[252:255], v1, {sr(S_W1,4)}, 0 offen
        buffer_load_dwordx4 v[252:255], v1, {sr(S_W1,4)}, {sr(S_T)} offen
        s_cmp_ge_u32 s2, {NWG - NH * hl}
        s_cbranch_scc1 {"L_wfuse" if hl else "L_end"}""")
        if self.o.get("stamps"):
            a("s_memrealtime s[100:101]" if not self.o.get("cyc") else "s_memtime s[100:101]")
        self.mp = 2
        a(f"""v_lshrrev_b32 v1, 6, v0
        s_sub_u32 s2, s2, {0 if hl else NH}
        v_readfirstlane_b32 {sr(S_W)}, v1
        s_and_b32 {sr(S_H)}, s2, 1
        s_bfe_u32 {sr(S_B)}, s2, 0x10001
        s_lshr_b32 {sr(S_QB)}, s2, 2
        v_and_b32 v0, 63, v0
        v_lshlrev_b32 {vr(V_DMA)}, 4, v0""")

    def vm_since(self, mark):
        return sum(1 for l in self.a.lines[mark:] if l.strip().startswith("buffer_"))

    def phase_a(self):
        a, o = self.a, self.o
        XR, XF, XA, ACC, G_, PK = 16, 34, 146, 110, 16, 164
        B4, XD = 16, 88
        VS, VSW, VR4, MXA, MXR, L8, TRU, TRQ, TRQ8, RK, TM = 200, 204, 208, 212, 213, 214, 215, 218, 221, 224, 228
        VK, VU = list(range(182, 193)), list(range(193, 200)) + list(range(104, 108))
        AQ1 = 200
        t0, t1, t2 = 250, 251, 227
        T = S_T
        WV, W10, UOFF, M1, PUB, M3 = 72, 70, 71, 69, 68, 65
        a(f"""s_lshl_b32 {sr(T)}, {sr(S_QB)}, 1
        s_add_u32 {sr(S_TOWN)}, {sr(T)}, {sr(S_H)}
        s_xor_b32 {sr(S_TSND)}, {sr(S_TOWN)}, 1
        s_cmp_lt_u32 {sr(S_TOWN)}, {NT}
        s_cselect_b32 {sr(S_VAL)}, 1, 0
        s_cmp_lt_u32 {sr(S_W)}, 2
        s_cselect_b32 {sr(T+3)}, {sr(S_TSND)}, {sr(S_TOWN)}
        s_mul_i32 {sr(T)}, {sr(S_B)}, {NT}
        s_add_u32 {sr(S_TOWN)}, {sr(S_TOWN)}, {sr(T)}
        s_add_u32 {sr(S_TSND)}, {sr(S_TSND)}, {sr(T)}
        s_add_u32 {sr(T+1)}, {sr(T+3)}, {sr(T)}
        s_lshl_b32 {sr(T+1)}, {sr(T+1)}, 1
        s_and_b32 {sr(T+2)}, {sr(S_W)}, 1
        s_add_u32 {sr(T+2)}, {sr(T+1)}, {sr(T+2)}
        s_mul_i32 {sr(T+1)}, {sr(T+2)}, {16*288}
        s_mul_i32 {sr(S_LB)}, {sr(S_W)}, {BLK}
        s_add_u32 {sr(S_LB)}, {sr(S_LB)}, {L_XS}
        s_mov_b32 m0, {sr(S_LB)}
        s_mov_b32 {sr(S_X+2)}, 2304000
        s_mov_b32 {sr(S_X+3)}, 0x20000
        s_add_u32 {sr(S_CNT)}, {sr(T+1)}, 4096
        s_waitcnt lgkmcnt(0)
        s_mov_b32 {sr(S_X)}, s56
        s_mov_b32 {sr(S_X+1)}, s57""")
        for k in range(4): a(f"buffer_load_dwordx4 {vr(V_DMA)}, {sr(S_X,4)}, {sr(T+1)} offen offset:{1024*k} lds")
        a(f"s_add_u32 m0, {sr(S_LB)}, 4096\ns_mov_b32 exec_hi, 0\nbuffer_load_dwordx4 {vr(V_DMA)}, {sr(S_X,4)}, {sr(S_CNT)} offen lds\ns_mov_b32 exec_hi, -1")
        mx = len(a.lines)
        SQ, SK, SU = S_W2, S_W1, S_XA
        self.srd(SU, 66, 67, 82944)
        self.srd(SQ, 58, 59, 41472)
        self.srd(SK, 60, 61, 41472)
        a(f"s_lshr_b32 {sr(T)}, s2, 3\ns_lshl_b32 {sr(T)}, {sr(T)}, 12\ns_lshl_b32 {sr(W10)}, {sr(S_W)}, 10\ns_add_u32 {sr(T)}, {sr(T)}, {sr(W10)}")
        a(f"buffer_load_dwordx4 v[252:255], {vr(V_DMA)}, {sr(SU,4)}, {sr(T)} offen")
        for srd_, rot in ((SQ, 82), (SK, 41)):
            a(f"s_add_u32 {sr(T+1)}, {sr(T)}, {(128 - rot) * 1024}\ns_and_b32 {sr(T+1)}, {sr(T+1)}, {127 * 1024}")
            a(f"buffer_load_dwordx4 v[252:255], {vr(V_DMA)}, {sr(srd_,4)}, {sr(T+1)} offen")
        self.srd(S_OUT, 74, 75, 2304000)
        self.srd(S_DB, 76, 77, 256)
        self.srd(S_WS, 78, 79, WS_END)
        def tlb():
            a(f"v_lshlrev_b32 v249, 21, v0")
            for ch in o.get("tlbw", "wdo"): a(f"buffer_load_dword v252, v249, {sr(dict(w=S_WS, d=S_DB, o=S_OUT)[ch],4)}, 0 offen")
        if o.get("tlb", 0) == 1: tlb()
        if o.get("tlb", 0) == 3:
            a(f"""s_bfe_u32 {sr(T)}, s2, 0x30003
            s_lshl_b32 {sr(T)}, {sr(T)}, 21
            v_mov_b32 v249, 0
            s_cmp_lt_u32 {sr(T)}, {5 << 21}
            s_cbranch_scc0 L_tl1
            buffer_load_dword v252, v249, {sr(S_WS,4)}, {sr(T)} offen
            s_branch L_tl3
            L_tl1:
            s_sub_u32 {sr(T)}, {sr(T)}, {5 << 21}
            s_cmp_lt_u32 {sr(T)}, {2 << 21}
            s_cbranch_scc0 L_tl2
            buffer_load_dword v252, v249, {sr(S_OUT,4)}, {sr(T)} offen
            s_branch L_tl3
            L_tl2:
            buffer_load_dword v252, v249, {sr(S_DB,4)}, 0 offen
            L_tl3:""")
            self.vm_adj = -2
        if o.get("stamps"): a(f"s_mov_b64 {sr(S_ST,2)}, s[100:101]"); self.stnames.append("start"); self.nst = 1
        self.stamp("xiss")
        a(f"""s_cmp_lt_u32 {sr(T+3)}, {NT}
        s_cselect_b32 {sr(WV)}, 1, 0
        s_mov_b32 {sr(WV+1)}, {sr(T+2)}
        s_mul_i32 {sr(UOFF)}, {sr(S_H)}, 288
        s_cmp_eq_u32 {sr(S_W)}, 0
        s_cselect_b32 {sr(M1)}, 0, {L_DUMP}
        s_cmp_lt_u32 {sr(S_W)}, 3
        s_cselect_b32 {sr(M3)}, {sr(W10)}, {L_DUMP}""")
        half = lambda g_: "s_mov_b32 exec_hi, 0\n" + g_ + "\ns_mov_b32 exec_hi, -1"
        gu = [f"s_add_u32 m0, {sr(W10 if k < 10 else M1)}, {L_WU + 4096*k}\ns_add_u32 {sr(S_CNT)}, {sr(UOFF)}, {4096*k + 288*(256*k//18)}\nbuffer_load_dwordx4 {vr(VU[k])}, {sr(SU,4)}, {sr(S_CNT)} offen lds" for k in range(11)]
        gu[10] = half(gu[10])
        gq = [f"s_add_u32 m0, {sr(W10 if k < 10 else M1)}, {L_WQ + 4096*k}\ns_add_u32 {sr(S_CNT)}, {sr(W10)}, {4096*k}\nbuffer_load_dwordx4 {vr(V_DMA)}, {sr(SQ,4)}, {sr(S_CNT)} offen lds" for k in range(11)]
        gq[10] = half(gq[10])
        gk = [f"s_add_u32 m0, {sr(W10 if k < 10 else M3)}, {L_WK + 4096*k}\ns_mov_b32 {sr(S_CNT)}, {4096*k - 16*(256*k//19)}\nbuffer_load_dwordx4 {vr(VK[k])}, {sr(SK,4)}, {sr(S_CNT)} offen lds" for k in range(11)]
        a(f"s_lshl_b32 {sr(T)}, {sr(S_W)}, 6\nv_add_u32 {vr(t0)}, {sr(T)}, v0\nv_lshlrev_b32 {vr(t1)}, 4, {vr(t0)}")
        self.voff_table(VU, 18, 576, t0)
        npre = o.get("npre", 6)
        a.bg, a.every, a.cnt = gu[:npre], o.get("evpre", 14), 0
        self.voff_table(VK, 19, 288, t0)
        xa0, xa1, xa2 = TM, TM + 1, TM + 2
        a(f"""v_and_b32 {vr(t0)}, 15, v0
        v_lshrrev_b32 {vr(t1)}, 5, v0
        v_lshlrev_b32 {vr(t1)}, 3, {vr(t1)}
        v_xor_b32 {vr(t1)}, {vr(t0)}, {vr(t1)}
        v_lshlrev_b32 {vr(t1)}, 4, {vr(t1)}
        v_lshrrev_b32 {vr(t2)}, 4, v0
        v_lshl_add_u32 {vr(V_KA)}, {vr(t2)}, 9, {vr(t1)}
        v_lshrrev_b32 {vr(t1)}, 3, {vr(t0)}
        v_lshlrev_b32 {vr(t1)}, 1, {vr(t1)}
        v_xor_b32 {vr(t1)}, {vr(t2)}, {vr(t1)}
        v_lshl_add_u32 {vr(t1)}, {vr(t0)}, 2, {vr(t1)}
        v_lshlrev_b32 {vr(V_KA+1)}, 3, {vr(t1)}
        v_lshlrev_b32 {vr(L8)}, 3, v0
        v_lshlrev_b32 {vr(MXR)}, 4, {vr(t0)}
        v_add_u32 {vr(MXR)}, {L_MX}, {vr(MXR)}
        v_add_u32 {vr(MXA)}, {sr(S_W)}, {vr(t2)}
        v_and_b32 {vr(MXA)}, 3, {vr(MXA)}
        v_lshl_add_u32 {vr(MXA)}, {vr(MXA)}, 8, {vr(MXR)}
        s_lshl_b32 {sr(T)}, {sr(S_W)}, 2
        v_add_u32 {vr(MXA)}, {sr(T)}, {vr(MXA)}
        v_mul_u32_u24 {vr(xa2)}, 288, {vr(t0)}
        v_lshl_add_u32 {vr(xa2)}, {vr(t2)}, 3, {vr(xa2)}
        v_add_u32 {vr(xa2)}, {sr(S_LB)}, {vr(xa2)}
        v_and_b32 {vr(t1)}, 1, {vr(t2)}
        v_lshlrev_b32 {vr(t1)}, 5, {vr(t1)}
        v_add_u32 {vr(xa0)}, {vr(xa2)}, {vr(t1)}
        v_xor_b32 {vr(t1)}, 32, {vr(t1)}
        v_add_u32 {vr(xa1)}, {vr(xa2)}, {vr(t1)}
        s_mul_i32 {sr(S_LB)}, {sr(S_W)}, {TILE}
        v_lshrrev_b32 {vr(t0)}, 2, v0
        v_bfe_u32 {vr(t1)}, v0, 1, 1
        v_lshlrev_b32 {vr(t1)}, 3, {vr(t1)}
        v_xor_b32 {vr(t1)}, {vr(t0)}, {vr(t1)}
        v_lshlrev_b32 {vr(t1)}, 4, {vr(t1)}
        v_and_b32 {vr(t2)}, 3, v0
        v_lshl_add_u32 {vr(t1)}, {vr(t2)}, 9, {vr(t1)}
        v_and_b32 {vr(V_VA)}, 1, v0
        v_lshl_add_u32 {vr(t1)}, {vr(V_VA)}, 3, {vr(t1)}
        s_and_b32 {sr(T)}, {sr(S_W)}, 1
        s_lshl_b32 {sr(T)}, {sr(T)}, 12
        s_add_u32 {sr(T+1)}, {sr(T)}, {sr(S_LB)}
        s_xor_b32 {sr(T)}, {sr(T)}, 4096
        s_add_u32 {sr(T)}, {sr(T)}, {sr(S_LB)}
        v_add_u32 {vr(V_VA)}, {sr(T)}, {vr(t1)}
        v_add_u32 {vr(V_VB)}, {sr(T+1)}, {vr(t1)}
        v_xor_b32 {vr(V_VA+1)}, 8, {vr(V_VA)}
        v_xor_b32 {vr(V_VB+1)}, 8, {vr(V_VB)}
        v_lshrrev_b32 {vr(t1)}, 5, v0
        v_lshlrev_b32 {vr(t1)}, 1, {vr(t1)}
        v_xor_b32 {vr(t1)}, {vr(t2)}, {vr(t1)}
        v_lshl_add_u32 {vr(t1)}, {vr(t0)}, 2, {vr(t1)}
        v_lshlrev_b32 {vr(t1)}, 3, {vr(t1)}
        v_add_u32 {vr(V_VR)}, {sr(S_LB)}, {vr(t1)}
        v_add_u32 {vr(V_DMA+1)}, 4096, {vr(V_DMA)}
        v_add_u32 {vr(V_DMA+2)}, 8192, {vr(V_DMA)}""")
        self.tr_addr(TRU, L_WU, True, t0)
        a(f"s_lshl_b32 {sr(T)}, {sr(S_W)}, 6\ns_add_u32 {sr(T)}, {sr(T)}, {L_WQ - L_WU}")
        for k in range(3):
            a(f"v_add_u32 {vr(TRQ+k)}, {sr(T)}, {vr(TRU+k)}\nv_add_u32 {vr(TRQ8+k)}, {L_WQ - L_WU + 256}, {vr(TRU+k)}")
        self.row_addr(RK + 2, L_WK + 8 * 4864, t0)
        a(f"""s_mul_i32 {sr(T)}, {sr(S_W)}, {2*4864}
        s_sub_u32 {sr(T)}, {sr(T)}, {8*4864}
        v_add_u32 {vr(t1)}, {sr(T)}, {vr(RK+2)}
        v_bfe_u32 {vr(t0)}, v0, 2, 1
        v_mul_u32_u24 {vr(t0)}, 4864, {vr(t0)}
        v_add_u32 {vr(RK)}, {vr(t1)}, {vr(t0)}
        v_sub_u32 {vr(RK+1)}, {vr(t1)}, {vr(t0)}""")
        for j in range(4):
            a(f"""s_add_u32 {sr(T)}, {sr(S_W)}, {j}
            s_and_b32 {sr(T)}, {sr(T)}, 3
            s_lshl_b32 {sr(T+1)}, {sr(T)}, 12
            s_add_u32 {sr(T+1)}, {sr(T+1)}, {L_XX}
            v_add_u32 {vr(VS+j)}, {sr(T+1)}, {vr(V_DMA)}
            s_lshl_b32 {sr(T+1)}, {sr(T)}, 9
            s_add_u32 {sr(T+1)}, {sr(T+1)}, {L_XR}
            v_add_u32 {vr(VR4+j)}, {sr(T+1)}, {vr(L8)}
            v_add_u32 {vr(VSW+j)}, {sr(W10)}, {vr(VS+j)}""")
        a(f"""s_sub_u32 {sr(T+2)}, 63, {sr(S_H)}
        s_add_u32 {sr(T+3)}, {sr(S_W)}, 60
        s_cmp_ge_u32 {sr(T+3)}, {sr(T+2)}
        s_cselect_b32 {sr(S_DUM)}, 4, 99
        s_mov_b32 {sr(S_REDO)}, 0
        s_mov_b32 {sr(S_TOFF)}, {sr(S_LB)}
        s_sub_u32 {sr(T)}, {sr(S_TOWN)}, 63
        s_mul_i32 {sr(T+1)}, {sr(S_B)}, {NT}
        s_cmp_ge_i32 {sr(T)}, {sr(T+1)}
        s_cselect_b32 {sr(T)}, 64, 0
        s_lshl_b32 {sr(T+1)}, {sr(S_B)}, 7
        s_add_u32 {sr(PUB)}, {sr(T)}, {sr(T+1)}
        s_cmp_eq_u32 {sr(S_W)}, 2
        s_cselect_b32 {sr(T)}, {sr(S_VAL)}, 0
        s_cmp_eq_u32 {sr(T)}, 1
        s_cselect_b32 {sr(PUB)}, {sr(PUB)}, 0x40000000
        s_add_u32 {sr(T+1)}, {sr(T+1)}, {DB_CB}
        v_mov_b32 {vr(self.VPL)}, {sr(T+1)}""")
        a.flush()
        if o.get("tlb", 0) == 2: tlb()
        self.stamp("pre")
        if o.get("es", 0) == 0: self.epi_setup()
        self.stamp("es")
        nx = self.vm_since(mx) + getattr(self, "vm_adj", 0)
        if o.get("touch", 1):
            a(f"""s_mov_b64 exec, 0
            s_cmp_eq_u32 {sr(S_W)}, 0
            s_cbranch_scc1 L_tr
            s_cmp_eq_u32 {sr(S_W)}, 1
            s_cbranch_scc1 L_t0
            s_cmp_eq_u32 {sr(S_W)}, 2
            s_cbranch_scc1 L_t1
            s_branch L_t2""")
            self.rare()
            a.raw(".p2align 12")
            a.label("L_tr")
            a("s_mov_b64 exec, -1")
        nlate = o.get("nlate", 0)
        for g_ in gu[npre:npre + nlate]: a(g_)
        a(f"s_waitcnt vmcnt({nx + nlate})")
        self.stamp("xarr")
        for s in range(4):
            a(f"ds_read_b64 {vr(XR+4*s,2)}, {vr(xa0)} offset:{64*s}\nds_read_b64 {vr(XR+4*s+2,2)}, {vr(xa1)} offset:{64*s}")
        a(f"ds_read_b64 {vr(XR+16,2)}, {vr(xa2)} offset:256")
        a(f"""s_and_b32 {sr(T)}, {sr(S_W)}, 1
        s_mul_i32 {sr(T+2)}, {sr(S_TOWN)}, {TILE}
        s_cmp_eq_u32 {sr(S_VAL)}, 1
        s_cselect_b32 {sr(T+2)}, {sr(T+2)}, 0x40000000
        s_lshl_b32 {sr(T+3)}, {sr(T)}, 8
        s_add_u32 {sr(T+3)}, {sr(T+3)}, {sr(T+2)}
        s_add_u32 {sr(T+4)}, {sr(T+3)}, 4096
        s_lshl_b32 {sr(T+5)}, {sr(T)}, 9
        s_add_u32 {sr(T+5)}, {sr(T+5)}, {sr(T+2)}
        s_add_u32 {sr(T+5)}, {sr(T+5)}, 8192
        s_waitcnt lgkmcnt(0)""")
        wl = gq + gk
        a.bg, a.every, a.cnt = gu[npre + nlate:] + [wl.pop(0) for _ in range(o.get("nql", 4))], o.get("evln", 10), 0
        self.ln_packed(XR, XF, XA, TM)
        a.flush()
        self.stamp("ln")
        a(f"s_cmp_lt_u32 {sr(S_W)}, 2\ns_cbranch_scc1 L_nop")
        for s in range(4):
            a(f"buffer_store_dwordx4 {vr(XA+4*s,4)}, {vr(V_KA)}, {sr(S_WS,4)}, {sr(T+3+(s>>1))} offen offset:{2048*(s&1)} sc1")
        a(f"buffer_store_dwordx2 {vr(XA+16,2)}, {vr(V_KA+1)}, {sr(S_WS,4)}, {sr(T+5)} offen sc1\ns_waitcnt vmcnt({5 + o.get('nql', 4)})\ns_branch L_bar1")
        a.label("L_nop")
        if o.get("touch", 1):
            a(f"s_mov_b64 exec, 0\ns_cmp_eq_u32 {sr(S_W)}, 0\ns_cbranch_scc1 L_t3\ns_branch L_t4")
            a.label("L_tr2")
            a("s_mov_b64 exec, -1")
        a(f"s_waitcnt vmcnt({o.get('nql', 4)})")
        a.label("L_bar1")
        self.stamp("pub")
        xw = [f"ds_write_b128 {vr(VS)}, {vr(XA+4*s,4)} offset:{1024*s}" for s in range(4)] + [f"ds_write_b64 {vr(VR4)}, {vr(XA+16,2)}"]
        self.stamp("tch")
        PA = 249
        a(f"""v_add_u32 {vr(V_KA)}, {sr(S_LB)}, {vr(V_KA)}
        v_add_u32 {vr(V_KA+1)}, {sr(S_LB)}, {vr(V_KA+1)}
        s_lshl1_add_u32 {sr(T)}, {sr(S_B)}, {sr(S_H)}
        s_lshl_b32 {sr(T)}, {sr(T)}, 6
        s_cmp_eq_u32 {sr(S_W)}, 0
        s_cselect_b32 {sr(T)}, {sr(T)}, 0x40000000
        v_mov_b32 {vr(PA)}, {sr(T)}
        {self.xa_srd()}
        s_waitcnt lgkmcnt(0)""")
        self.stamp("w1")
        a("s_barrier")
        self.stamp("bar1")
        poll = lambda r: f"buffer_load_dword {vr(r)}, {vr(PA)}, {sr(S_DB,4)}, 0 offen sc1"

        def gate(lab, r, word, need, younger):
            a(f"s_mov_b32 {sr(T+2)}, 0\ns_waitcnt vmcnt({younger})")
            a.label(lab)
            a(f"""v_readfirstlane_b32 {sr(T+3)}, {vr(r+word)}
            s_add_u32 {sr(T+2)}, {sr(T+2)}, 1
            s_cmp_ge_u32 {sr(T+3)}, {need}
            s_cbranch_scc1 {lab}_ok
            {poll(r)}
            s_waitcnt vmcnt(0)
            s_cmp_lt_u32 {sr(T+2)}, 0x40000
            s_cbranch_scc1 {lab}""")
            a.label(lab + "_ok")

        H, G_, UG, MS, CL = 16, 52, 208, 110, 104
        nup = o.get("nup", 12)
        at = {o.get("u0", 6) + o.get("usp", 3) * i: wl.pop(0) for i in range(nup)}
        for i in range(5): at[i] = xw[i]
        if o.get("es", 0) == 1:
            n_ = len(a.lines); self.epi_setup()
            el = [l.strip() for l in a.lines[n_:]]; del a.lines[n_:]
            for k in range(5, 42):
                if k in at: continue
                c_ = 0
                while el and c_ < o.get("esn", 2):
                    x = el.pop(0); at[k] = at.get(k, "") + x + "\n"; c_ += 1 if x.startswith("v_") else 0.5
            self.es_left = el
        self.gemm(self.tr_reads(TRU), XA, H, None, at=at)
        if o.get("es", 0) == 1:
            for x in self.es_left: a(x)
        self.stamp("up")
        last = lambda srd: max(i for i, l in enumerate(a.lines) if l.strip().startswith("buffer_load") and sr(srd, 4) in l) + 1
        assert not any(sr(SQ, 4) in x for x in wl)
        a(f"v_mov_b32 {vr(t0)}, {sr(PUB)}\nv_mov_b32 {vr(t1)}, 1\ns_waitcnt vmcnt({self.vm_since(last(SQ))}) lgkmcnt(0)\ns_barrier")
        a(f"s_mov_b64 exec, 1\nbuffer_atomic_add {vr(t1)}, {vr(t0)}, {sr(S_DB,4)}, 0 offen sc1\ns_mov_b64 exec, -1")
        self.stamp("barG")

        def a_tr(t):
            ad, off = (TRQ, 32 * t) if t < 2 else (TRQ8, 0)
            return [f"ds_read_b64_tr_b16 {ar(AQ1+18*t+4*s+2*u,2)}, {vr(ad+u)} offset:{9216*s + off}" for s in range(4) for u in range(2)] + \
                   [f"ds_read_b64_tr_b16 {ar(AQ1+18*t+16,2)}, {vr(ad+2)} offset:{36864 + off}"]

        def a_row(t):
            off = 4864 * t if t < 2 else 0
            return [f"ds_read_b64 {ar(A_Q+18*t+4*s+2*u,2)}, {vr(RK+t)} offset:{off + 64*s + 32*u}" for s in range(4) for u in range(2)] + \
                   [f"ds_read_b64 {ar(A_Q+18*t+16,2)}, {vr(RK+t)} offset:{off + 256}"]
        bq = lambda j, d=0: [f"ds_read_b128 {ar(18*j+4*s,4)}, {vr(VS+j)} offset:{d + 1024*s}" for s in range(4)] + [f"ds_read_b64 {ar(18*j+16,2)}, {vr(VR4+j)} offset:{d}"]

        def post(u, scale, d):
            L = [f"v_mul_f32 {vr(ACC+4*u+i)}, {sr(T+4)}, {vr(ACC+4*u+i)}" for i in range(4)] if scale else []
            L += [f"v_cvt_pk_bf16_f32 {vr(PK + (4*(u&3) + 2*(u>>2) if u < 8 else 16) + h)}, {vr(ACC+4*u+2*h)}, {vr(ACC+4*u+2*h+1)}" for h in range(2)]
            if 4 <= u < 8: L.append(f"ds_write_b128 {vr(VSW+u-4)}, {vr(PK+4*(u-4),4)} offset:{d}")
            if u == 8: L.append(f"ds_write_b64 {vr(VR4)}, {vr(PK+16,2)} offset:{d}")
            return L
        xd = [f"ds_read_b128 {vr(XD+4*j,4)}, {vr(VSW+j)}" for j in range(4)]
        self.gemm_u(AQ1, ar, [("v", XA), ("a", 18), ("a", 36), ("a", 54)], ACC, a_tr, lambda j: bq(j) if j else None, lambda u: post(u, False, L_QD),
                    vm_items=wl, other=xd, vmsp=o.get("vmsp", 3))
        self.stamp("g1")
        for i in range(4): a(f"v_mov_b32 {vr(CL+i)}, -1")
        a(f"s_lshl2_add_u32 {sr(T+2)}, s2, {sr(S_W)}\ns_mul_i32 {sr(T+2)}, {sr(T+2)}, 2560\ns_add_u32 {sr(T+2)}, {sr(T+2)}, {WS_IB}")
        a(f"s_mov_b32 {sr(T+4)}, {f32(LOG2E / 12.0)}\ns_waitcnt vmcnt({self.vm_since(last(SK))}) lgkmcnt(0)\ns_barrier")
        clr = [f"buffer_store_dwordx4 {vr(CL,4)}, {vr(V_DMA)}, {sr(S_WS,4)}, {sr(T+2)} offen sc1",
               f"buffer_store_dwordx4 {vr(CL,4)}, {vr(V_DMA)}, {sr(S_WS,4)}, {sr(T+2)} offen offset:1024 sc1",
               f"buffer_store_dwordx2 {vr(CL,2)}, {vr(L8)}, {sr(S_WS,4)}, {sr(T+2)} offen offset:2048 sc1"]
        self.stamp("bar2")
        self.gemm_u(A_Q, ar, [("a", 18 * j) for j in range(4)], ACC, a_row, lambda j: bq(j, L_QD), lambda u: post(u, True, 0), vm_items=[poll(252)] + clr, vm0=o.get("pg", 4), vmsp=o.get("csp", 8))
        self.stamp("g2")
        p = lambda r: vr(r, 2)
        CC = TM
        for j in range(4): a(f"v_dot2_f32_bf16 {vr(CC+j)}, {vr(PK+4*j)}, {vr(XD+4*j)}, 0")
        for i in range(2): a(f"v_dot2_f32_bf16 {vr(CC)}, {vr(PK+16+i)}, {vr(XA+16+i)}, {vr(CC)}")
        for i in range(1, 4):
            for j in range(4): a(f"v_dot2_f32_bf16 {vr(CC+j)}, {vr(PK+4*j+i)}, {vr(XD+4*j+i)}, {vr(CC+j)}")
        QE = TRQ
        a(f"""s_xor_b32 {sr(T+1)}, {sr(self.NB)}, 1
        v_add_u32 {vr(t0)}, {L_XX}, {vr(V_DMA)}
        v_lshl_add_u32 {vr(QE)}, {sr(T+1)}, 12, {vr(t0)}
        v_lshl_add_u32 {vr(QE+1)}, {sr(self.NB)}, 12, {vr(t0)}""")
        self.treduce(CC)
        a(f"""ds_write_b32 {vr(MXA)}, {vr(CC)}
        v_add_u32 {vr(t0)}, {L_XR}, {vr(L8)}
        v_lshl_add_u32 {vr(QE+2)}, {sr(T+1)}, 9, {vr(t0)}
        v_lshl_add_u32 {vr(QE+3)}, {sr(self.NB)}, 9, {vr(t0)}
        v_lshl_add_u32 {vr(QE+4)}, {sr(T+1)}, 8, {vr(MXR)}
        v_lshl_add_u32 {vr(QE+5)}, {sr(self.NB)}, 8, {vr(MXR)}
        s_sub_u32 {sr(T+5)}, 63, {sr(S_H)}
        s_lshr_b32 {sr(T+6)}, s2, 3
        s_lshl_b32 {sr(T+6)}, {sr(T+6)}, 12
        s_add_u32 {sr(T+6)}, {sr(T+6)}, {sr(W10)}
        s_cmp_lg_u32 {sr(S_W)}, 0
        s_cbranch_scc1 L_ga_ok""")
        gate("L_ga", 252, 0, sr(T + 5), 3)
        a("s_waitcnt lgkmcnt(0)\ns_barrier")
        self.stamp("bar3")
        c1 = -2.0 * math.sqrt(2.0 / math.pi) * LOG2E
        c2 = c1 * 0.044715
        qrd = [f"ds_read_b128 {vr(MS+4*qb,4)}, {vr(QE+4+(qb&1))} offset:{512*(qb>>1)}" for qb in range(4)]
        for qb in range(4):
            qrd += [f"ds_read_b128 {ar(A_Q+18*qb+4*s,4)}, {vr(QE+(qb&1))} offset:{8192*(qb>>1) + 1024*s}" for s in range(4)]
            qrd.append(f"ds_read_b64 {ar(A_Q+18*qb+16,2)}, {vr(QE+2+(qb&1))} offset:{1024*(qb>>1)}")
        tg = self.tile_groups(0) + self.tile_groups(1) + self.tile_groups(2)[:8]
        n0 = o.get("n0", 3)
        for k in range(o.get("tpf", 0)):
            a(f"s_add_u32 {sr(T+7)}, {sr(T+6)}, {o.get('tpf0', 4*TILE) + 131072*k}\nbuffer_load_dwordx4 v[252:255], {vr(V_DMA)}, {sr(S_XA,4)}, {sr(T+7)} offen")
        for x in tg[:n0]: a(x)
        a(f"v_mov_b32 {vr(CC)}, {f32(c1)}\nv_mov_b32 {vr(CC+2)}, {f32(c2)}\nv_mov_b32 {vr(CC+4)}, 1.0")
        nq1, nt1 = o.get("nq1", 8), o.get("nt1", 5)
        bgl = []
        for i in range(max(nq1 // 2, nt1)):
            if 2 * i < nq1: bgl.append(qrd[2 * i] + "\n" + qrd[2 * i + 1])
            if i < nt1: bgl.append(tg[n0 + i])
        tg, qrd = tg[n0 + nt1:], qrd[nq1:]
        a.bg, a.every, a.cnt = bgl, 54 // (len(bgl) + 1), 0
        for i in range(18): a(f"v_pk_mul_f32 {p(G_+2*i)}, {p(H+2*i)}, {p(H+2*i)}")
        for i in range(18): a(f"v_pk_fma_f32 {p(G_+2*i)}, {p(G_+2*i)}, {p(CC+2)}, {p(CC)} op_sel_hi:[1,0,0]")
        for i in range(18): a(f"v_pk_mul_f32 {p(G_+2*i)}, {p(G_+2*i)}, {p(H+2*i)}")
        a.flush()
        self.stamp("ge1")
        esp = o.get("esp", 4)
        for i in range(36):
            a(f"v_exp_f32 {vr(G_+i)}, {vr(G_+i)}")
            if i % esp == 1 and tg: a(tg.pop(0))
            if i % 8 == 3 and qrd: a(qrd.pop(0)); a(qrd.pop(0))
        self.stamp("ge2")
        for i in range(18): a(f"v_pk_add_f32 {p(G_+2*i)}, {p(G_+2*i)}, {p(CC+4)} op_sel_hi:[1,0]")
        for i in range(36):
            a(f"v_rcp_f32 {vr(G_+i)}, {vr(G_+i)}")
            if i % esp == 1 and tg: a(tg.pop(0))
            if i % 8 == 3 and qrd: a(qrd.pop(0)); a(qrd.pop(0))
        assert not tg and not qrd
        idx = [i for i, l in enumerate(a.lines) if l.strip().startswith("buffer_load") and l.rstrip().endswith("lds")]
        m_t0, m_t1 = idx[-18] + 1, idx[-9] + 1
        for i in range(18): a(f"v_pk_mul_f32 {p(H+2*i)}, {p(G_+2*i)}, {p(H+2*i)}")
        a(f"""s_mul_i32 {sr(T)}, {sr(WV+1)}, {BLK}
        s_cmp_eq_u32 {sr(S_H)}, 1
        s_cbranch_scc1 L_ln2
        s_add_u32 {sr(T)}, {sr(T)}, {WS_U}""")
        for i in range(18): a(f"v_cvt_pk_bf16_f32 {vr(UG+i)}, {vr(H+2*i)}, {vr(H+2*i+1)}")
        a("s_branch L_ug")
        a.label("L_ln2")
        a(f"s_add_u32 {sr(T)}, {sr(T)}, {WS_G}")
        self.ln_f32(H, UG, TM)
        a.label("L_ug")
        self.stamp("ge3")
        a(f"""s_cmp_eq_u32 {sr(WV)}, 1
        s_cselect_b32 {sr(S_UG)}, {sr(T)}, 0x40000000
        s_waitcnt vmcnt({self.vm_since(m_t0)}) lgkmcnt(0)""")
        for x in self.k_reads(0, V_V): a(x)
        self.ugs = [f"buffer_store_dwordx4 {vr(UG+4*s,4)}, {vr(V_DMA)}, {sr(S_WS,4)}, {sr(S_UG)} offen offset:{1024*s} sc1" for s in range(4)]
        self.ugs.append(f"buffer_store_dwordx2 {vr(UG+16,2)}, {vr(self.VL8)}, {sr(S_WS,4)}, {sr(S_UG)} offen sc1")
        for qb in range(4): a(f"v_pk_add_f32 {p(MS+4*qb)}, {p(MS+4*qb)}, {p(MS+4*qb+2)} neg_lo:[1,1] neg_hi:[1,1]")
        for qb in range(4): a(f"v_add_f32 {vr(self.MK+qb)}, {vr(MS+4*qb)}, {vr(MS+4*qb+1)}")
        a(f"v_lshlrev_b32 {vr(t1)}, 8, v0\nv_lshlrev_b32 v231, 2, v0\nv_add_u32 v231, {L_PC}, v231\nds_write_b32 v231, {vr(t1)}")
        self.loop_init(False)
        self.n_t1 = self.vm_since(m_t1)
        self.stamp("ug")

    def loop_init(self, part):
        a = self.a
        if part:
            for qb in range(4):
                for i in range(4): a(f"v_mov_b32 {vr(V_CI+4*qb+i)}, {vr(self.MK+qb)}")
            return
        for k in range(7): a(f"v_add_u32 {vr(V_HI+k)}, {2*SLOT}, {vr(V_KA+k if k < 5 else V_VB+k-5)}")
        a(f"v_add_u32 {vr(self.VS0)}, {sr(S_LB)}, {vr(V_DMA)}\nv_add_u32 {vr(self.VS0R)}, {sr(S_LB)}, {vr(self.VL8)}\ns_mov_b32 {sr(S_CNT)}, 0\ns_mov_b32 {sr(S_INC)}, {4*TILE}")
        for i in range(4): a(f"v_mov_b32 {vr(V_L+i)}, 0")
        a(f"v_mov_b32 {vr(self.VPL+1)}, 1\nv_lshlrev_b32 v231, 2, v0\nv_add_u32 v231, {L_PC}, v231")

    def head(self):
        a, o = self.a, self.o
        a.label("L_go")
        self.loop_init(True)
        a("s_waitcnt lgkmcnt(0)\ns_barrier")
        self.stamp("bar5")
        base = self.qk_mfmas(0)
        pick = lambda s_, kb, qb: base[8 * s_ + 4 * kb + qb].replace(vr(V_K + 8 * s_ + 4 * kb, 4) + ",", vr(V_V + 8 * s_ + 4 * kb, 4) + ",").replace(vr(V_K + 32 + 2 * kb, 2) + ",", vr(V_V + 32 + 2 * kb, 2) + ",")
        mf, fin = [], {}
        for qb, s_ in [(0, 0), (0, 1), (0, 2), (0, 3), (1, 0), (1, 1), (0, 4), (1, 2), (1, 3), (2, 0), (2, 1), (1, 4), (2, 2), (2, 3), (3, 0), (3, 1), (2, 4),
                       (3, 2), (3, 3), (3, 4)]:
            for kb in range(2):
                fin[qb, kb] = len(mf)
                mf.append(("s_nop 3\n" if (qb, s_, kb) == (3, 4, 0) else "") + pick(s_, kb, qb))
        enew = [e[1] for g in range(40, 76) for e in self.gaps[g] if e[0] == "E"]
        items = self.e_items(0, enew, lambda qb, j: 0, lambda qb: 999)
        for it, e in zip(items, enew):
            if e[0] == "e": it["am"] = fin[e[1], e[2] // 4]
        dm = []
        for k, (slot, j) in enumerate([(2, 8)] + [(3, j) for j in range(9)]):
            g_ = 1 + o.get("hsp", 4) * k
            if j % 4 == 0: dm.append(dict(t=f"s_add_u32 m0, {sr(S_LB)}, {slot*SLOT + 4096*(j//4)}", c=0, lo=g_ - 1, hi=g_ - 1))
            dm.append(dict(t=f"buffer_load_dwordx4 {vr(V_DMA + j//4)}, {sr(S_XA,4)}, {sr(S_TOFF)} offen offset:{1024*(j%4)} lds", c=8, lo=g_, hi=g_))
            if j == 8: dm.append(dict(t=f"s_add_u32 {sr(S_TOFF)}, {sr(S_TOFF)}, {4*TILE}", c=0, lo=g_ + 1, hi=g_ + 1))
        nh = o.get("ugh", 2)
        for k in range(nh): dm.append(dict(t=self.ugs[k], c=8, lo=3 + 16 * k, hi=3 + 16 * k))
        a(f"s_waitcnt vmcnt({self.n_t1})")
        left = self.pack(mf, items + dm + [dict(t=x, c=4, lo=i // 2, nds=2) for i, x in enumerate(self.k_reads(1))])
        print("head overflow", self.over, "left", len(left))
        left.sort(key=lambda x: not x.startswith("v_exp"))
        last = a.lines[-1].strip()
        for x in left:
            if last.startswith("v_exp") and not x.startswith("v_exp") and (last.split()[1].rstrip(",") + ",") in (x + ","): a("s_nop 0")
            a(x); last = x
        a("s_waitcnt lgkmcnt(0)")

    def tile_groups(self, slot):
        out = []
        for j in range(9):
            g = ""
            if j % 4 == 0: g = f"s_add_u32 m0, {sr(S_LB)}, {slot*SLOT + 4096*(j//4)}\ns_nop 0\n"
            g += f"buffer_load_dwordx4 {vr(V_DMA + j//4)}, {sr(S_XA,4)}, {sr(S_TOFF)} offen offset:{1024*(j%4)} lds"
            if j == 8: g += f"\ns_add_u32 {sr(S_TOFF)}, {sr(S_TOFF)}, {4*TILE}"
            out.append(g)
        return out

    def first_tiles(self):
        pass

    def wfuse(self):
        a = self.a
        BF, ACC, AF, TM, AD = 88, 108, 144, 208, 240
        LA, LB_, LM = 0, 44032, 88064
        T = S_T
        a.label("L_wfuse")
        if self.o.get("hlast", 1): a(f"s_cmp_ge_u32 s2, {NWG}\ns_cbranch_scc1 L_end\ns_sub_u32 s2, s2, {NWG - NH}")
        a(f"v_lshrrev_b32 v1, 6, v0\nv_and_b32 v0, 63, v0\nv_readfirstlane_b32 {sr(S_W)}, v1\nv_lshlrev_b32 {vr(V_DMA)}, 4, v0\ns_waitcnt lgkmcnt(0)")
        self.srd(S_DB, 76, 77, 256)
        self.srd(S_WS, 78, 79, WS_END)
        self.wf0 = 0
        self.srd(S_X, 72, 73, 82944)
        self.srd(S_W2, 62, 63, 41472)
        a(f"""s_cmp_eq_u32 s2, {self.wf0}
        s_cselect_b32 {sr(S_W1)}, s64, s70
        s_cselect_b32 {sr(S_W1+1)}, s65, s71
        s_mov_b32 {sr(S_W1+2)}, 41472
        s_mov_b32 {sr(S_W1+3)}, 0x20000
        s_cselect_b32 {sr(T+4)}, 0, 41472""")
        self.dma_rows([(S_W1, "0", LA), (S_W2, "0", LB_)], 19, 288, TM + 4, TM + 5, 11, 3, "L_wf1")
        a(f"s_lshl_b32 {sr(T)}, {sr(S_W)}, 10\ns_add_u32 {sr(T+2)}, {sr(T)}, {sr(T+4)}")
        for k in range(11):
            if k == 10: a(f"s_cmp_ge_u32 {sr(S_W)}, 1\ns_cbranch_scc1 L_wf2")
            a(f"s_add_u32 m0, {sr(T)}, {LM + 4096*k}\ns_add_u32 {sr(T+1)}, {sr(T+2)}, {4096*k}")
            a(f"buffer_load_dwordx4 {vr(V_DMA)}, {sr(S_X,4)}, {sr(T+1)} offen lds")
        a.label("L_wf2")
        self.srd(S_DW, 68, 69, 864)
        a(f"""v_and_b32 {vr(TM)}, 15, v0
        v_lshlrev_b32 {vr(TM+2)}, 4, {vr(TM)}
        v_lshlrev_b32 {vr(TM)}, 1, {vr(TM)}
        v_bfe_u32 {vr(TM+3)}, v0, 4, 1
        v_lshl_add_u32 {vr(TM+1)}, {vr(TM+3)}, 7, {vr(TM)}
        v_lshl_add_u32 {vr(TM+2)}, {vr(TM+3)}, 11, {vr(TM+2)}
        v_and_b32 {vr(TM+3)}, 1, v0
        v_lshlrev_b32 {vr(TM+3)}, 4, {vr(TM+3)}
        v_bfe_i32 {vr(TM+4)}, v0, 1, 1
        v_not_b32 {vr(TM+5)}, {vr(TM+4)}""")
        for k in range(3):
            for i in range(5): a(f"buffer_load_ushort {vr(16+5*k+i)}, {vr(TM+1 if i < 4 else TM)}, {sr(S_DW,4)}, 0 offen offset:{288*k + (32*i if i < 4 else 256)}")
        a(f"s_mov_b32 {sr(T+1)}, {WS_DWF}\ns_waitcnt vmcnt(0)")
        for f in range(15):
            a(f"v_lshlrev_b32 {vr(16+f)}, {vr(TM+3)}, {vr(16+f)}\nv_and_b32 {vr(32+2*f)}, {vr(TM+5)}, {vr(16+f)}\nv_and_b32 {vr(33+2*f)}, {vr(TM+4)}, {vr(16+f)}")
        for r_ in range(8): a(f"buffer_store_dwordx{4 if r_ < 7 else 2} {vr(32+4*r_, 4 if r_ < 7 else 2)}, {vr(TM+2)}, {sr(S_WS,4)}, {sr(T+1)} offen offset:{256*r_} sc1")
        self.tr_addr(AD, LM, False, TM + 8)
        self.row_addr(AD + 3, LA, TM + 8)
        a(f"v_add_u32 {vr(AD+5)}, {LB_}, {vr(AD+3)}")
        a(f"v_lshlrev_b32 {vr(AD+4)}, 3, v0")
        a(f"""s_lshr_b32 {sr(T)}, {sr(S_W)}, 1
        s_lshl_b32 {sr(T)}, {sr(T)}, 6
        s_and_b32 {sr(T+1)}, {sr(S_W)}, 1
        s_lshl_b32 {sr(T+1)}, {sr(T+1)}, 3
        s_add_u32 {sr(T)}, {sr(T)}, {sr(T+1)}
        v_and_b32 {vr(AD+6)}, 3, v0
        v_lshlrev_b32 {vr(AD+6)}, 3, {vr(AD+6)}
        v_add_u32 {vr(AD+7)}, {sr(T)}, {vr(AD+6)}""")
        for k in range(3): a(f"v_add_u32 {vr(AD+k)}, {vr(AD+7)}, {vr(AD+k)}")
        a(f"s_mov_b32 {sr(S_CNT)}, {sr(S_W)}")
        a("s_waitcnt vmcnt(0)\ns_barrier")
        a.label("L_wfl")
        for s in self.tr_reads(AD, vr)(0, BF): a(s)
        a("s_waitcnt lgkmcnt(0)")
        self.gemm(self.row_reads(AD + 3), BF, ACC, AF)
        for i in range(18): a(f"v_cvt_pk_bf16_f32 {vr(BF+i)}, {vr(ACC+2*i)}, {vr(ACC+2*i+1)}")
        a(f"s_cmp_eq_u32 s2, {self.wf0}\ns_cbranch_scc0 L_wf3")
        self.gemm(self.row_reads(AD + 5), BF, ACC, AF)
        for i in range(18): a(f"v_cvt_pk_bf16_f32 {vr(BF+i)}, {vr(ACC+2*i)}, {vr(ACC+2*i+1)}")
        a.label("L_wf3")
        a(f"""s_mul_i32 {sr(T)}, {sr(S_CNT)}, {BLK}
        s_add_u32 {sr(T)}, {sr(T)}, {sr(T+4)}
        s_add_u32 {sr(T)}, {sr(T)}, {WS_WF}
        s_add_u32 {sr(T+1)}, {sr(T)}, 4096""")
        self.store_block(BF, V_DMA, AD + 4, S_WS, T, T + 1, "sc1")
        for k in range(3): a(f"v_add_u32 {vr(AD+k)}, 128, {vr(AD+k)}")
        a(f"s_add_u32 {sr(S_CNT)}, {sr(S_CNT)}, 4\ns_cmp_lt_u32 {sr(S_CNT)}, 8\ns_cbranch_scc1 L_wfl")
        for k in range(3): a(f"v_sub_u32 {vr(AD+k)}, {vr(AD+k)}, {vr(AD+6)}")
        a(f"s_cmp_eq_u32 {sr(S_CNT)}, 8\ns_cbranch_scc1 L_wfl")
        a(f"""s_waitcnt vmcnt(0)
        s_barrier
        s_cmp_lg_u32 {sr(S_W)}, 0
        s_cbranch_scc1 L_end
        s_mov_b64 exec, 1
        v_mov_b32 {vr(TM)}, 1
        v_mov_b32 {vr(TM+1)}, {DB_CW}
        buffer_atomic_add {vr(TM)}, {vr(TM+1)}, {sr(S_DB,4)}, 0 offen sc1
        v_mov_b32 {vr(TM+1)}, {DB_CW + 128}
        buffer_atomic_add {vr(TM)}, {vr(TM+1)}, {sr(S_DB,4)}, 0 offen sc1
        s_endpgm""")

    def dump_stamps(self):
        a = self.a
        if self.o.get("echo"):
            if self.o["echo"][0] == "skew":
                a(f"v_mov_b32 v16, 4\nbuffer_load_dword v17, v16, {sr(S_DB,4)}, 0 offen sc1\ns_waitcnt vmcnt(0)\nv_readfirstlane_b32 s98, v17\ns_not_b32 s98, s98")
                x, y = 98, S_ST + 2 * self.stnames.index(self.o["echo"][1])
            else:
                x, y = [S_ST + 2 * self.stnames.index(n) for n in self.o["echo"]]
            lo, hi = self.o.get("echo_ids", (0, 999))
            a(f"""s_cmp_eq_u32 {sr(S_VAL)}, 0
            s_cbranch_scc1 L_end
            s_cmp_lt_u32 s2, {lo}
            s_cbranch_scc1 L_end
            s_cmp_ge_u32 s2, {hi}
            s_cbranch_scc1 L_end
            s_memrealtime s[4:5]
            s_waitcnt lgkmcnt(0)
            s_sub_u32 s6, {sr(y)}, {sr(x)}
            s_mul_i32 s6, s6, {self.o.get("echo_mul", 1)}
            s_lshr_b32 s6, s6, {self.o.get("echo_shr", 0)}
            s_add_u32 s6, s6, s4""")
            a.label("L_echo")
            a("s_memrealtime s[4:5]\ns_waitcnt lgkmcnt(0)\ns_sub_u32 s7, s6, s4\ns_cmp_gt_i32 s7, 0\ns_cbranch_scc1 L_echo")
            return
        if self.o.get("dbgst"):
            a("s_waitcnt vmcnt(0)")
            self.stamp("done")
            a("s_waitcnt lgkmcnt(0)\ns_mov_b64 exec, 1")
            slots = [1, 2, 3, 4, 5, 6, 7, 9, 11, 12, 13, 14, 15]
            a(f"s_not_b32 {sr(S_T)}, {sr(S_ST)}\nv_mov_b32 v16, {sr(S_T)}\nv_mov_b32 v17, 4\nbuffer_atomic_umax v16, v17, {sr(S_DB,4)}, 0 offen sc1")
            for i in range(min(self.nst, 12)):
                a(f"v_mov_b32 v{18+2*i}, {sr(S_ST+2*i)}\nv_mov_b32 v{19+2*i}, {4*slots[i+1]}\nbuffer_atomic_umax v{18+2*i}, v{19+2*i}, {sr(S_DB,4)}, 0 offen sc1")
            return
        if not self.o.get("stamps"): return
        T = S_T
        a(f"""s_waitcnt lgkmcnt(0)
        s_lshl_b32 {sr(T)}, s2, 2
        s_add_u32 {sr(T)}, {sr(T)}, {sr(S_W)}
        s_lshl_b32 {sr(T)}, {sr(T)}, 7
        s_add_u32 {sr(T)}, {sr(T)}, {WS_DBG}
        v_mov_b32 v1, 0""")
        for i in range(26): a(f"v_mov_b32 {vr(16+i)}, {sr(S_ST+i)}")
        for i in range(7): a(f"buffer_store_dwordx4 {vr(16+4*i,4)}, v1, {sr(S_WS,4)}, {sr(T)} offen offset:{16*i}")

    def build(self):
        a = self.a
        self.stnames = []
        a.raw(f"; @launch grid=({NWG},1,1) block=(256,1,1) lds={LDS_TOTAL}")
        a.raw('.amdgcn_target "amdgcn-amd-amdhsa--gfx950"')
        a.raw(".text")
        a.raw(f".globl {NAME}")
        a.raw(".p2align 12")
        self.entry()
        self.phase_a()
        self.rest()
        a.label("L_fin")
        self.dump_stamps()
        a.label("L_end")
        a("s_endpgm")
        self.poll2()
        if not self.o.get("touch", 1): self.rare()
        a.label("L_dummy")
        self.fallback()
        self.wfuse()
        a.raw('.section .rodata,"a"')
        a.raw(".p2align 6")
        a.raw(kernel_desc(NAME, 512, 102, 256))
        return a.text()

    def S(self, buf, qb, i=0): return V_S + buf * 32 + qb * 8 + i
    def P(self, buf, qb, i=0): return V_P + buf * 16 + qb * 4 + i

    def k_reads(self, slot, V_K=V_K):
        ka, so = (V_KA, slot * SLOT) if slot < 2 else (V_HI, (slot - 2) * SLOT)
        out = [f"ds_read_b128 {vr(V_K+8*s+4*kb,4)}, {vr(ka)} offset:{so + 2048*s + 256*kb}" for s in range(4) for kb in range(2)]
        out += [f"ds_read_b64 {vr(V_K+32+2*kb,2)}, {vr(ka+1)} offset:{so + 8192 + 512*kb}" for kb in range(2)]
        return out

    def v_reads(self, slot, dst=V_V):
        (va, vr_, vb), so = ((V_VA, V_VR, V_VB), slot * SLOT) if slot < 2 else ((V_HI + 2, V_HI + 4, V_HI + 5), (slot - 2) * SLOT)
        out = []
        for T in range(9):
            for u in range(2):
                if T < 8: out.append(f"ds_read_b64_tr_b16 {vr(dst+4*T+2*u,2)}, {vr((va if T < 4 else vb)+(T&1))} offset:{so + 2048*((T>>1)&1) + 256*u}")
                else: out.append(f"ds_read_b64_tr_b16 {vr(dst+4*T+2*u,2)}, {vr(vr_)} offset:{so + 8192 + 512*u}")
        return out

    def qk_mfmas(self, buf, czero=False):
        out = []
        for s in range(5):
            for kb in range(2):
                for qb in range(4):
                    d = vr(self.S(buf, qb, 4 * kb), 4)
                    c = ("0" if czero else vr(V_CI + 4 * qb, 4)) if s == 0 else d
                    if s < 4: out.append(f"v_mfma_f32_16x16x32_bf16 {d}, {vr(V_K+8*s+4*kb,4)}, {ar(A_Q+18*qb+4*s,4)}, {c}")
                    else: out.append(f"v_mfma_f32_16x16x16_bf16 {d}, {vr(V_K+32+2*kb,2)}, {ar(A_Q+18*qb+16,2)}, {c}")
        return out

    def pv_mfmas(self, buf, czero=False):
        out = []
        for T in range(9):
            for qb in range(4):
                o = ar(A_O + 36 * qb + 4 * T, 4)
                out.append(f"v_mfma_f32_16x16x32_bf16 {o}, {vr(V_V+4*T,4)}, {vr(self.P(buf,qb),4)}, {'0' if czero else o}")
        return out

    def plan(self):
        o = self.o
        n = 76
        fixed = [None] * n
        for i, g in enumerate(range(1, 36, 2)): fixed[g] = ("V", i)
        for i, g in enumerate([41, 44, 47, 50, 53, 56, 59, 62, 65, 68]): fixed[g] = ("K", i)
        for i, g in enumerate([42, 46, 49, 52, 55, 58, 61, 64, 67]): fixed[g] = ("D", i)
        exps = [(qb, j) for qb in range(4) for j in range(8)]
        start = 40
        order = [(start + k) % n for k in range(n)]
        free_idx = [k for k, g in enumerate(order) if fixed[g] is None]
        nsm = len(free_idx) - 32
        cand = free_idx[6:-2]
        sm_set = set(free_idx[-2:]) | {cand[int((i + 0.5) * len(cand) / (nsm - 2))] for i in range(nsm - 2)}
        nds = sum(1 for f in fixed if f is not None and f[0] != "D")
        over = 48 - nds - 2 * nsm
        ocand = [k for k, g in enumerate(order) if k >= 20 and (fixed[g] is None or fixed[g][0] != "D")]
        o_set = {ocand[int((i + 0.5) * len(ocand) / over)] for i in range(over)}
        gaps = [[] for _ in range(n)]
        small, pend, ei = [], [], 0
        for k, g in enumerate(order):
            new = (start + k) < n
            small.extend(pend); pend = []
            small.sort(key=lambda t: 0 if t[0] == "c" else 1)
            f = fixed[g]
            want = 0
            if f is not None:
                gaps[g].append((f[0], f[1], None))
                if f[0] == "D": continue
                want = 1
            elif k in sm_set: want = 2
            else:
                qb, j = exps[ei]; ei += 1
                gaps[g].append(("E", ("e", qb, j), new))
                if j & 1: pend.append(("c", qb, j // 2))
                pend.append(("a", qb, j))
            if k in o_set: want += 1
            if k == n - 1: want = 99
            for _ in range(want):
                if small: gaps[g].append(("E", small.pop(0), new))
        assert not small and not pend and ei == 32
        self.gaps = gaps

    def pack(self, mf, items):
        a = self.a
        where, order, done, nvm, mpos = {}, [], 0, 0, []
        isds = lambda it: "ds_" in it["t"]
        self.over = 0
        for g, m in enumerate(mf):
            assert not any(it.get("need", 999) <= g and i not in where for i, it in enumerate(items)), g
            idx = [k for k, n_ in enumerate(order) if n_ <= g]
            if idx and max(idx) + 1 > done:
                a(f"s_waitcnt lgkmcnt({min(15, len(order) - 1 - max(idx))})"); done = max(idx) + 1
            if m.startswith("@W"):
                w_, m = m.split("\n", 1)
                a(f"s_waitcnt lgkmcnt({min(15, int(w_[2:]) + len(order))})")
            a(m)
            mpos.append(len(a.lines))
            cap, pick = 8, []
            for phase in (0, 1):
                for i, it in enumerate(items):
                    if i in where or it.get("lo", 0) > g: continue
                    if "am" in it and (it["am"] >= g or len(a.lines) - mpos[it["am"]] < 8): continue
                    d = it.get("dep")
                    if d is not None and not all(where.get(x, 999) < g for x in d): continue
                    if (phase == 0 and it.get("hi", 999) <= g) or (phase == 1 and it["c"] <= cap):
                        if it["t"].startswith("buffer") and pick and any(items[x]["c"] for x in pick) and phase == 1: continue
                        if isds(it) and sum(isds(items[x]) for x in pick) >= it.get("nds", 1) and phase == 1: continue
                        pick.append(i); where[i] = g; cap -= it["c"]
            key = lambda i: 0 if items[i]["c"] == 0 else 1 if isds(items[i]) else 2 if items[i]["t"].startswith("buffer") else 3
            for i in sorted(pick, key=key):
                a(items[i]["t"].replace("@VM", f"s_waitcnt vmcnt({nvm})"))
                nvm += items[i]["t"].startswith("buffer")
                if isds(items[i]): order.append(items[i].get("need", 999))
            self.over += max(0, -cap)
        return [it["t"] for i, it in enumerate(items) if i not in where]

    def e_items(self, buf, lst, lo, hi):
        items, idx = [], {}
        for it in lst:
            kind, qb, j = it
            d = dict(t=self.etext(buf, it), c=8 if kind == "e" else 4)
            if kind == "e": d["lo"] = lo(qb, j); d["hi"] = hi(qb) - 2 - (7 - j)
            else:
                need = [("e", qb, j)] if kind == "a" else [("e", qb, 2 * j), ("e", qb, 2 * j + 1)]
                d["dep"] = [idx[x] for x in need if x in idx]
                if kind == "c": d["hi"] = hi(qb) - (3 - j) // 2
            idx[it] = len(items); items.append(d)
        return items

    def etext(self, buf, it):
        kind, qb, j = it
        s = self.S(buf, qb)
        if kind == "e": return f"v_exp_f32 {vr(s+j)}, {vr(s+j)}"
        if kind == "a": return f"v_add_f32 {vr(V_L+qb)}, {vr(V_L+qb)}, {vr(s+j)}"
        return f"v_cvt_pk_bf16_f32 {vr(self.P(buf, qb, j))}, {vr(s+2*j)}, {vr(s+2*j+1)}"

    def period(self, p, qk=True, pv=True, e_old=True, e_new=True, kread=True, vread=True, dma=True, extra={}, dsub=None, ksub=None, vm=9, halves=(0, 1), inc=None):
        a = self.a
        bn, bo = (p + 1) & 1, p & 1
        mf = self.qk_mfmas(bn) + self.pv_mfmas(bo, czero=(p == 0))
        kr, vrd = self.k_reads((p + 2) % RING), self.v_reads(p % RING)
        slot = p % RING
        n = 76
        sc = [[] for _ in range(n)]
        dgs = [g for g in range(n) if any(e[0] == "D" for e in self.gaps[g])]
        if dma:
            for j, g in enumerate(dgs):
                if j % 4 == 0: sc[g - 1].append(f"s_add_u32 m0, {sr(S_LB)}, {slot*SLOT + 4096*(j//4)}")
            sc[dgs[-1] + 1].append(f"s_add_u32 {sr(S_TOFF)}, {sr(S_TOFF)}, {inc or 4*TILE}")
        w = []
        if kread: w.append(f"vmcnt({vm})")
        if pv: w.append("lgkmcnt(0)")
        if w: sc[39].append("s_waitcnt " + " ".join(w))
        if kread: sc[75].append("s_waitcnt lgkmcnt(0)")
        for half in halves:
            rng = range(0, 40) if half == 0 else range(40, 76)
            on = qk if half == 0 else pv
            if not on:
                ds, mem, val, post = [], [], [], []
                for g in rng:
                    for s_ in sc[g]:
                        (post if s_.startswith("s_waitcnt") else mem).append(s_)
                    if g in extra: mem.append(extra[g])
                    for kind, d, new in self.gaps[g]:
                        if kind == "V" and vread: ds.append(vrd[d])
                        elif kind == "K" and kread: ds.append(kr[d])
                        elif kind == "D" and dma: mem.append(f"buffer_load_dwordx4 {vr(V_DMA + d//4)}, {sr(S_XA,4)}, {sr(S_TOFF)} offen offset:{1024*(d%4)} lds")
                        elif kind == "E" and ((new and e_new) or (not new and e_old)): val.append((d, self.etext(bn if new else bo, d)))
                if half == 1: a("s_nop 3")
                seq, pend = [], list(val)
                while pend:
                    k = 0
                    if seq and seq[-1][0][0] == "e":
                        le = seq[-1][0]
                        dep = lambda it: it[0][1] == le[1] and ((it[0][0] == "a" and it[0][2] == le[2]) or (it[0][0] == "c" and it[0][2] == le[2] // 2))
                        have = {x[0] for x in seq}
                        ok = lambda it: it[0][0] == "e" or (("e", it[0][1], it[0][2]) in have if it[0][0] == "a" else (("e", it[0][1], 2*it[0][2]+1) in have)) or not any(x[0][0] == "e" and x[0][1] == it[0][1] and (x[0][2] == it[0][2] if it[0][0] == "a" else x[0][2] // 2 == it[0][2]) for x in pend)
                        while k < len(pend) and (dep(pend[k]) or not ok(pend[k])): k += 1
                        if k == len(pend): seq.append((("n", 0, 0), "s_nop 0")); k = 0
                    seq.append(pend.pop(k))
                step = max(1, len(seq) // (len(mem) + len(ds) + 1))
                allm = ds + mem
                for x in allm[:6]: a(x)
                allm = allm[6:]
                for i_, (d, t_) in enumerate(seq):
                    a(t_)
                    if allm and i_ % step == step - 1:
                        x = allm.pop(0); a(x)
                        if x.startswith("s_add_u32 m0"): a("s_nop 0")
                for x in allm:
                    a(x)
                    if x.startswith("s_add_u32 m0"): a("s_nop 0")
                for x in post: a(x)
                if half == 0: a("s_nop 1")
                continue
            for g in rng:
                a(mf[g])
                for s_ in sc[g]: a(s_)
                if g in extra: a(extra[g])
                for kind, d, new in self.gaps[g]:
                    if kind == "V":
                        if vread: a(vrd[d])
                    elif kind == "K":
                        if kread: a(kr[d])
                        elif ksub: a(ksub.pop(0))
                    elif kind == "D":
                        if dma: a(f"buffer_load_dwordx4 {vr(V_DMA + d//4)}, {sr(S_XA,4)}, {sr(S_TOFF)} offen offset:{1024*(d%4)} lds")
                        elif dsub: a(dsub.pop(0))
                    elif (new and e_new) or (not new and e_old):
                        a(self.etext(bn if new else bo, d))

    MK, VO, VO8, GA, VS0, VS0R, VDW, VLW, VL8, VST, VPL = 232, 236, 9, 238, 250, 251, 244, 245, 246, 247, 248
    NB, PT, E_U, E_G, RS3, E_COL, RS1, RS2, MP1 = 3, 4, 5, 6, 7, 43, 36, 37, 38
    G0, GM, GP, U, DWT = 16, 26, 36, 80, (90, 252, 96, 100, 112, 116, 104, 94)
    XRS = (192, 196, 46)
    frag = staticmethod(lambda f, b: [(f, b + 4 * s) for s in range(5)])
    WD = [[("a", 216 + 4 * s) for s in range(5)], [("a", 234 + 4 * s) for s in range(5)], [("v", 208 + 4 * s) for s in range(5)]]
    WO = [[("a", 4 * s) for s in range(5)], [("a", 18 + 4 * s) for s in range(5)], [("a", 36), ("a", 40), ("a", 44), ("a", 48), ("a", 252)]]
    X1B = 98304
    X2O = L_SP - X1B
    L_L = L_SP + 9216

    def epi_setup(self):
        a = self.a
        T = S_T
        NB, PT, VO, GA = self.NB, self.PT, self.VO, self.GA
        r, g4, x, y, big, r0 = 52, 53, 54, 55, 56, 57
        a(f"""s_lshr_b32 {sr(NB)}, {sr(S_W)}, 1
        s_and_b32 {sr(PT)}, {sr(S_W)}, 1
        v_and_b32 {vr(r0)}, 15, v0
        v_lshrrev_b32 {vr(g4)}, 4, v0
        v_mul_u32_u24 {vr(x)}, 288, {vr(r0)}
        v_mov_b32 {vr(big)}, 0x40000000
        s_lshl_b32 {sr(T)}, {sr(S_TOWN)}, 1
        s_add_u32 {sr(T)}, {sr(T)}, {sr(NB)}
        s_lshl_b32 {sr(T)}, {sr(T)}, 4
        v_add_u32 {vr(r)}, {sr(T)}, {vr(r0)}
        s_mul_i32 {sr(T+1)}, {sr(S_TOWN)}, {TILE}
        s_mul_i32 {sr(T+2)}, {sr(PT)}, {BLK}
        v_add_u32 {vr(x)}, {sr(T+1)}, {vr(x)}
        s_sub_u32 {sr(T+3)}, {BLK}, {sr(T+2)}
        v_add_u32 {vr(y)}, {sr(T+3)}, {vr(x)}
        v_add_u32 {vr(x)}, {sr(T+2)}, {vr(x)}
        v_lshl_add_u32 {vr(VO)}, {vr(g4)}, 4, {vr(x)}
        v_lshl_add_u32 {vr(VO+1)}, {vr(g4)}, 4, {vr(y)}
        v_lshl_add_u32 {vr(self.VO8)}, {vr(g4)}, 3, {vr(x)}
        s_lshl_b32 {sr(T+3)}, {sr(PT)}, 11
        s_add_u32 {sr(self.E_U)}, {sr(T+3)}, {WS_U}
        s_add_u32 {sr(self.E_G)}, {sr(T+3)}, {WS_G}
        s_sub_u32 {sr(T+3)}, 4096, {sr(T+3)}
        s_lshl_b32 {sr(T)}, {sr(PT)}, 11
        s_add_u32 {sr(T)}, {sr(T)}, {WS_DWF}
        v_lshrrev_b32 {vr(x)}, 2, {vr(r0)}
        v_cmp_eq_u32 vcc, {vr(x)}, {vr(g4)}
        v_lshl_add_u32 {vr(self.VDW)}, {vr(r0)}, 4, {sr(T)}
        s_nop 0
        v_cndmask_b32 {vr(self.VDW)}, {vr(big)}, {vr(self.VDW)}, vcc
        s_lshl_b32 {sr(self.E_COL)}, {sr(S_W)}, 6
        v_lshlrev_b32 {vr(self.VL8)}, 3, v0
        v_add_u32 {vr(self.VL8)}, 4096, {vr(self.VL8)}
        v_add_u32 {vr(self.VST)}, {sr(S_LB)}, {vr(V_DMA)}
        v_add_u32 {vr(self.VST)}, {2*SLOT}, {vr(self.VST)}
        s_xor_b32 {sr(T)}, {sr(NB)}, 1
        v_xor_b32 {vr(x)}, {sr(T)}, {vr(g4)}
        v_lshl_add_u32 {vr(x)}, {vr(x)}, 4, {vr(r0)}
        s_lshl_b32 {sr(T)}, {sr(S_W)}, 2
        s_add_u32 {sr(T)}, {sr(T)}, {self.L_L}
        v_lshl_add_u32 {vr(self.VLW)}, {vr(x)}, 4, {sr(T)}
        s_sub_u32 {sr(self.MP1)}, 0, {sr(PT)}
        s_mov_b32 {sr(self.MP1+1)}, {sr(self.MP1)}""")
        for k, (d, base) in enumerate(((self.RS1, 3 * SLOT), (self.RS2, 2 * SLOT), (self.RS3, 2 * SLOT))):
            a(f"s_xor_b32 {sr(T)}, {sr(S_W)}, {k+1}\ns_mul_i32 {sr(T)}, {sr(T)}, {TILE}\ns_add_u32 {sr(d)}, {sr(T)}, {base}")
        a(f"""s_mul_i32 {sr(T)}, {sr(S_B)}, 4000
        s_add_u32 {sr(T+1)}, {sr(T)}, 3999
        s_mov_b32 {sr(T+2)}, {BLK}""")
        for k, dr in enumerate((0, -1, 1)):
            m = GA + 2 * k
            if dr: a(f"v_add_u32 {vr(m)}, {dr}, {vr(r)}\nv_cmp_eq_u32 vcc, {sr(T if dr < 0 else T+1)}, {vr(r)}")
            src = m if dr else r
            a(f"""v_lshrrev_b32 {vr(x)}, 4, {vr(src)}
            v_and_b32 {vr(y)}, 15, {vr(src)}
            v_mul_lo_u32 {vr(x)}, {vr(x)}, {sr(T+2)}
            v_lshl_add_u32 {vr(y)}, {vr(g4)}, 4, {vr(y)}
            v_lshl_add_u32 {vr(m)}, {vr(y)}, 4, {vr(x)}
            v_lshl_add_u32 {vr(m+1)}, {vr(y)}, 3, {vr(x)}
            v_add_u32 {vr(m+1)}, {sr(T+3)}, {vr(m+1)}""")
            if dr: a(f"v_cndmask_b32 {vr(m)}, {vr(m)}, {vr(big)}, vcc\nv_cndmask_b32 {vr(m+1)}, {vr(m+1)}, {vr(big)}, vcc")

    def conv_loads(self):
        GA = self.GA
        L = []
        for dst, m, so in ((self.GM, GA + 2, 1), (self.G0, GA, 1), (self.GP, GA + 4, 1), (self.U, GA, 0)):
            for k in range(2): L.append(f"buffer_load_dwordx4 {vr(dst+4*k,4)}, {vr(m)}, {sr(S_WS,4)}, {sr(self.E_U+so)} offen offset:{1024*k}")
            L.append(f"buffer_load_dwordx2 {vr(dst+8,2)}, {vr(m+1)}, {sr(S_WS,4)}, {sr(self.E_U+so)} offen")
        return L

    def rg(self, e, n): return (ar if e[0] == "a" else vr)(e[1], n)

    def w8_loads(self, regs, so):
        return [f"buffer_load_dwordx4 {self.rg(regs[s],4)}, {vr(V_DMA)}, {sr(S_WS,4)}, {sr(so)} offen offset:{1024*s}" for s in range(4)] + \
               [f"buffer_load_dwordx2 {self.rg(regs[4],2)}, {vr(self.VL8)}, {sr(S_WS,4)}, {sr(so)} offen"]

    def w_reads(self, regs, off):
        L = []
        for tt in range(2):
            L += [f"ds_read_b128 {self.rg(regs[tt][s],4)}, {vr(self.VS0)} offset:{off + BLK*tt + 1024*s}" for s in range(4)]
            L.append(f"ds_read_b64 {self.rg(regs[tt][4],2)}, {vr(self.VS0R)} offset:{off + BLK*tt}")
        return L

    def xa_srd(self):
        T = S_T
        return f"""s_mul_i32 {sr(T)}, {sr(S_B)}, {NT}
        s_mul_i32 {sr(T+1)}, {sr(S_H)}, 63
        s_add_u32 {sr(T+1)}, {sr(T+1)}, {sr(T)}
        s_mul_i32 {sr(T+1)}, {sr(T+1)}, {TILE}
        s_add_u32 {sr(S_XA)}, {sr(S_WS)}, {sr(T+1)}
        s_addc_u32 {sr(S_XA+1)}, {sr(S_WS+1)}, 0
        s_sub_u32 {sr(T+2)}, 63, {sr(S_H)}
        s_mul_i32 {sr(S_XA+2)}, {sr(T+2)}, {TILE}
        s_mov_b32 {sr(S_XA+3)}, 0x20000"""

    def rest(self):
        a, o = self.a, self.o
        T = S_T
        VPL = self.VPL
        self.plan()
        self.head()
        self.stamp("loop")
        if o.get("echo") and o["echo"][0] == "skew":
            a(f"s_waitcnt lgkmcnt(0)\ns_mov_b64 exec, 1\ns_not_b32 s98, {sr(S_ST)}\nv_mov_b32 v226, s98\nv_mov_b32 v227, 4\ns_cmp_lg_u32 {sr(S_W)}, 0\ns_cbranch_scc1 L_sk\nbuffer_atomic_umax v226, v227, {sr(S_DB,4)}, 0 offen sc1\ns_waitcnt vmcnt(0)\nL_sk:\ns_mov_b64 exec, -1\ns_nop 3")
        nh = o.get("ugh", 2)
        ex = {2 + 12 * k: x for k, x in enumerate(self.ugs[nh:])}
        self.period(0, vm=9 + 5, extra=ex)
        self.stamp("l0")
        a.raw(".p2align 6")
        a.label("L_loop")
        self.stamp("q1")
        for p in range(1, 5):
            ex = {}
            vm = 9
            if p == 1: ex = {73: f"s_cmp_eq_u32 {sr(S_CNT)}, 3"}
            if p == 2: ex = {70: f"buffer_load_dwordx4 v[252:255], {vr(VPL)}, {sr(S_DB,4)}, 0 offen sc1"}
            if p == 3:
                ex = {73: f"s_cmp_eq_u32 {sr(S_CNT)}, 2", 45: f"ds_add_rtn_u32 v230, v231, {vr(VPL+1)}"}
            if p == 4:
                self.stamp("la0")
                a(f"s_cbranch_scc1 L_last")
                a.label("L_lastb")
                self.stamp("la1")
                ex = {72: f"s_add_u32 {sr(S_CNT)}, {sr(S_CNT)}, 1", 1: "v_cmp_eq_u32 vcc, 3, v230", 3: f"v_cndmask_b32 v230, v231, {vr(VPL)}, vcc",
                      6: f"buffer_atomic_add {vr(VPL+1)}, v230, {sr(S_DB,4)}, 0 offen sc1"}
            self.period(p, extra=ex, inc=sr(S_INC) if p == 4 else None)
            if p == 1: a("s_cbranch_scc1 L_p14")
        a("s_branch L_loop")
        a.label("L_p14")
        SW = 66
        self.stamp("p14")
        a(f"s_cmp_eq_u32 {sr(S_DUM)}, 4\ns_cbranch_scc0 L_dummyb")
        for i in range(16): a(f"v_mov_b32 {vr(V_CI+i)}, 0xff800000")
        a("s_nop 1")
        a.label("L_dummyb")
        ex = dict(zip([2, 6, 8, 12, 14, 18, 20, 24, 26, 30], self.w_reads(self.WD, 0)))
        ex[0] = "s_waitcnt vmcnt(9)"
        ex.update(dict(zip([4, 10, 16, 22, 28], self.w8_loads(self.WD[2], SW))))
        self.period(14, dma=False, kread=False, extra=ex, halves=(0,))
        self.stamp("tail")
        self.tail(SW)
        self.stamp("end")
        self.epilogue(SW)

    def rare(self):
        a = self.a
        T = S_T
        SW = 66
        a.label("L_last")
        a(f"s_waitcnt vmcnt(9)\ns_mov_b32 {sr(T+2)}, 0")
        a.label("L_late")
        a(f"""v_readfirstlane_b32 {sr(T)}, v252
        v_readfirstlane_b32 {sr(T+1)}, v254
        s_add_u32 {sr(S_XA)}, {sr(S_WS)}, {WS_WF}
        s_addc_u32 {sr(S_XA+1)}, {sr(S_WS+1)}, 0
        s_mov_b32 {sr(S_XA+2)}, {18*BLK}
        s_add_u32 {sr(S_TOFF)}, {sr(S_LB)}, {9*BLK}
        s_mov_b32 {sr(S_INC)}, {-9*BLK}
        s_lshr_b32 {sr(SW)}, {sr(S_W)}, 1
        s_lshl_b32 {sr(SW)}, {sr(SW)}, 30
        s_add_u32 {sr(SW+1)}, {sr(SW)}, {WS_WF + 8*BLK}
        s_add_u32 {sr(SW)}, {sr(SW)}, {WS_WF + 17*BLK}
        s_cmp_ge_u32 {sr(T)}, 126
        s_cselect_b32 {sr(T+3)}, {sr(T+1)}, 0
        s_cmp_ge_u32 {sr(T+3)}, 2
        s_cbranch_scc1 L_lastb
        buffer_load_dwordx4 v[252:255], {vr(self.VPL)}, {sr(S_DB,4)}, 0 offen sc1
        s_add_u32 {sr(T+2)}, {sr(T+2)}, 1
        s_waitcnt vmcnt(0)
        s_cmp_lt_u32 {sr(T+2)}, 0x40000
        s_cbranch_scc1 L_late
        s_branch L_lastb""")

    units = [(0, 0), (0, 1), (1, 0), (1, 1), (2, 0)]
    V15 = V_K

    def stage(self, slot, T):
        src = ar(A_O + 36 * slot + 4 * T, 4)
        if slot == 0: return f"ds_write_b128 {vr(self.VST)}, {src} offset:{1024*T}"
        if slot == 2: return f"ds_write_b128 {vr(self.VS0)}, {src} offset:{1024*T}"
        if T < 4: return f"ds_write_b128 {vr(self.VST)}, {src} offset:{SLOT + 1024*T + (4096 if slot == 3 else 0)}"
        return f"{'s_not_b64' if slot == 1 else 's_mov_b64'} exec, {sr(self.MP1,2)}\nds_write_b128 {vr(self.VST)}, {src} offset:{SLOT + 8192}\ns_mov_b64 exec, -1"

    def dwf(self, k, i):
        f = 5 * k + i
        return self.DWT[f >> 1] + 2 * (f & 1)

    def tail(self, SW):
        a, o = self.a, self.o
        mf, pos, start = [], {}, {}
        for t_, qb in ((14, 0), (14, 1), (15, 0), (15, 1), (14, 2), (15, 2), (14, 3), (15, 3)):
            start[t_, qb] = len(mf)
            for Tt in ([0, 1, 2, 3, 8, 4, 5, 6, 7] if qb & 1 else range(9)):
                o_ = ar(A_O + 36 * qb + 4 * Tt, 4)
                pos[t_, qb, Tt] = len(mf)
                mf.append(f"v_mfma_f32_16x16x32_bf16 {o_}, {vr((V_V if t_ == 14 else self.V15)+4*Tt,4)}, {vr(self.P(t_ & 1,qb),4)}, {o_}")
        lst = []
        for qb in range(4):
            for j in range(8):
                lst.append(("e", qb, j))
                if j & 1: lst.append(("c", qb, j // 2))
        lst += [("a", qb, j) for qb in range(4) for j in range(8)]
        items = self.e_items(1, lst, lambda qb, j: 0 if j < 4 else 1, lambda qb: start[15, qb] - 2)
        for it in items[48:]: it["lo"] = o.get("alo", 26)
        v15 = [dict(t=x, c=4, need=pos[15, 0, i // 2], hi=pos[15, 0, i // 2] - o.get("vlead", 7), lo=0 if i < 16 else 2) for i, x in enumerate(self.v_reads(3, self.V15))]
        wr = []
        nown = o.get("nown", 4)
        self.own = [(2, T_) for T_ in range(nown, 9)] + [(3, T_) for T_ in (0, 1, 2, 3, 8)]
        g = o.get("w0", 23)
        for k, (sl, Tt) in enumerate([(0, T_) for T_ in range(9)] + [(1, T_) for T_ in (0, 1, 2, 3, 8)] + [(2, T_) for T_ in range(nown)]):
            g = max(pos[15, sl, Tt] + 5, g)
            wr.append(dict(t=self.stage(sl, Tt), c=o.get("wc", 20), lo=int(g), hi=int(g)) if g < 72 else dict(t=self.stage(sl, Tt), c=4, lo=999))
            g += o.get("wsp", 2.7)
        n0 = len(items) + len(v15)
        wo = []
        for i, x in enumerate(self.w_reads(self.WO, SLOT)):
            r0 = self.WO[i // 5][i % 5][1]
            wo.append(dict(t=("@VM\n" if i == 0 else "") + x, c=4, dep=sorted({n0 + r0 // 4, n0 + (r0 + 3) // 4 if (r0 + 3) // 4 < 9 else n0 + 8}), lo=o.get("wo0", 40) + 3 * i, hi=o.get("wo0", 40) + 3 * i + 2))
        cl = self.conv_loads()
        dl = [f"buffer_load_dwordx4 {vr(self.DWT[r],4)}, {vr(self.VDW)}, {sr(S_WS,4)}, 0 offen offset:{256*r}" for r in range(7)]
        dl.append(f"buffer_load_dwordx2 {vr(self.DWT[7],2)}, {vr(self.VDW)}, {sr(S_WS,4)}, 0 offen offset:{256*7}")
        fr = {96: 9, 100: 18, 104: 45, 112: 27, 116: 36}
        vm = [(x, 0) for x in cl] + [(x, fr.get(self.DWT[r], 0)) for r, x in enumerate(dl)]
        used = {w["lo"] for w in wr}
        vi, g = [], o.get("m0", 24)
        for x, lo in vm:
            g = max(g, lo)
            while int(g) in used: g += 1
            vi.append(dict(t=x, c=8, lo=int(g), hi=int(g)) if g < 72 else dict(t=x, c=8, lo=999))
            g += o.get("msp", 2.2)
        left = self.pack(mf, items + v15 + wr + wo + vi)
        self.done_a = {(qb, j) for qb in range(4) for j in range(8) if self.etext(1, ("a", qb, j)) not in left}
        left = [x for x in left if not x.startswith("v_add_f32")]
        print("tail overflow", self.over, "left", len(left), "adds done", len(self.done_a))
        self.left = left

    def epilogue(self, SW):
        a, o = self.a, self.o
        T = S_T
        p = lambda r: vr(r, 2)
        NB, PT, MK, VO, units, MP1 = self.NB, self.PT, self.MK, self.VO, self.units, self.MP1
        U, GM, G0, GP = self.U, self.GM, self.G0, self.GP
        X2O = self.X2O
        R1, R2, R3 = 230, 231, 249
        LA, LS, M = 10, 226, 48

        def weave(main, fill, per):
            fill = list(fill)
            for x in main:
                a(x)
                for _ in range(per):
                    if fill: a(fill.pop(0))
            return fill
        for x in self.left:
            if not x.startswith("buffer"): a(x)
        lv = [x for x in self.left if x.startswith("buffer")]
        lv += [f"buffer_load_dwordx4 {vr(self.XRS[j],4)}, {vr(VO+j)}, {sr(S_X,4)}, {sr(self.E_COL)} offen" for j in range(2)]
        lv.append(f"buffer_load_dwordx2 {vr(self.XRS[2],2)}, {vr(self.VO8)}, {sr(S_X,4)}, 0 offen offset:256")
        S1 = lambda qb, j: self.S(1, qb, j)
        rounds = [[] for _ in range(6)]
        for qb in range(4):
            rem = [j for j in range(8) if (qb, j) not in self.done_a]
            prs = [j for j in rem if j % 2 == 0 and j + 1 in rem]
            sing = [j for j in rem if (j & ~1) not in prs]
            r_ = 0
            while len(prs) > 1:
                for x, y in zip(prs[0::2], prs[1::2]): rounds[r_].append(f"v_pk_add_f32 {p(S1(qb,x))}, {p(S1(qb,x))}, {p(S1(qb,y))}")
                prs = prs[0::2]; r_ += 1
            for k_, j in enumerate(sing + ([prs[0], prs[0] + 1] if prs else [])): rounds[min(5, max(r_, 2) + k_)].append(f"v_add_f32 {vr(V_L+qb)}, {vr(V_L+qb)}, {vr(S1(qb,j))}")
        for r_ in rounds:
            for x in r_: a(x)
        a(f"v_add_u32 {vr(R1)}, {sr(self.RS1)}, {vr(V_DMA)}\nv_add_u32 {vr(R2)}, {sr(self.RS2)}, {vr(V_DMA)}")
        self.treduce(V_L)
        a(f"ds_write_b32 {vr(self.VLW)}, {vr(V_L)}")
        acc = lambda slot: [f"v_accvgpr_read_b32 {vr(M+i)}, {ar(A_O+36*slot+16+i)}" for i in range(20)]
        a(f"""v_add_u32 {vr(R3)}, {sr(self.RS3)}, {vr(V_DMA)}
        v_add_u32 {vr(LA+1)}, {self.L_L}, {vr(V_DMA)}
        v_and_b32 {vr(LS+1)}, 0xf0, {vr(V_DMA)}
        s_lshl_b32 {sr(T)}, {sr(NB)}, 8
        s_add_u32 {sr(T+8)}, {sr(T)}, {self.L_L}
        v_add_u32 {vr(LS)}, {sr(T+8)}, {vr(LS+1)}""")
        for x in lv: a(x)
        a(f"""s_xor_b32 {sr(T)}, s2, 1
        s_mul_i32 {sr(T)}, {sr(T)}, {IB}
        s_mul_i32 {sr(T+9)}, {sr(NB)}, 5120
        s_add_u32 {sr(T+9)}, {sr(T+9)}, {WS_IB}
        s_add_u32 {sr(T)}, {sr(T)}, {sr(T+9)}
        s_lshl_b32 {sr(T+10)}, {sr(PT)}, 11
        s_add_u32 {sr(T+1)}, {sr(T+10)}, {sr(T)}
        s_add_u32 {sr(T)}, {sr(T)}, 4096
        s_cmp_eq_u32 {sr(PT)}, 0
        s_cselect_b32 {sr(T)}, 0x40000000, {sr(T)}
        s_mov_b32 {sr(T+2)}, {f32(2.0**100)}
        s_mul_i32 {sr(T+12)}, s2, {IB}
        s_add_u32 {sr(T+12)}, {sr(T+12)}, {sr(T+9)}
        s_add_u32 {sr(T+13)}, {sr(T+12)}, {sr(T+10)}
        s_waitcnt lgkmcnt(0)
        s_barrier""")
        self.stamp("B1")

        def rd(X, offs):
            L = [[f"ds_read_b128 {vr(X[k][i],4)}, {vr((R1, R2, R3)[k])} offset:{offs[k] + 1024*i}" for i in range(4)] for k in range(3)]
            L8 = [f"ds_read_b128 {vr(X[k][4],4)}, {vr((R1, R2, R3)[k])} offset:8192" for k in range(3)]
            return L, L8

        def adds(X, k, rng):
            return [f"v_pk_add_f32 {p(M+4*i+2*h)}, {p(M+4*i+2*h)}, {p(X[k][i]+2*h)}" for i in rng for h in range(2)]
        X = [[128, 132, 136, 140, 144], [148, 152, 156, 160, 68], [72, 76, 200, 204, 108]]
        PK = 128
        L, L8 = rd(X, (0, 4096, 0))
        a(f"ds_read_b128 {vr(LA,4)}, {vr(LA+1)}\nds_read_b128 {vr(LS,4)}, {vr(LS)}")
        rest = weave(L[0] + L[1] + L[2], acc(1), 2)
        assert not rest
        a(f"s_mov_b64 exec, {sr(MP1,2)}")
        for x in L8: a(x)
        a(f"""s_mov_b64 exec, -1
        s_waitcnt lgkmcnt(11)
        v_add_f32 {vr(LA)}, {vr(LA)}, {vr(LA+1)}
        v_add_f32 {vr(LA+2)}, {vr(LA+2)}, {vr(LA+3)}
        v_add_f32 {vr(LS)}, {vr(LS)}, {vr(LS+1)}
        v_add_f32 {vr(LA)}, {vr(LA)}, {vr(LA+2)}
        v_add_f32 {vr(LS+2)}, {vr(LS+2)}, {vr(LS+3)}
        v_cmp_nge_f32 vcc, {sr(T+2)}, {vr(LA)}""")
        for x in adds(X, 0, range(4)): a(x)
        a(f"""s_cmp_lg_u64 vcc, 0
        s_cselect_b32 {sr(T+2)}, 1, 0
        s_andn2_b32 {sr(T+2)}, {sr(T+2)}, {sr(S_REDO)}
        s_cbranch_scc1 L_fallback
        v_add_f32 {vr(PK+10)}, {vr(LS)}, {vr(LS+2)}
        v_mov_b32 {vr(PK+11)}, {vr(MK+1)}
        s_waitcnt lgkmcnt(7)""")
        for x in adds(X, 1, range(4)): a(x)
        a("s_waitcnt lgkmcnt(3)")
        a3 = adds(X, 2, range(4))
        cv = [f"v_cvt_pk_bf16_f32 {vr(PK+i)}, {vr(M+2*i)}, {vr(M+2*i+1)}" for i in range(10)]
        for x in a3[:4] + a3[4:6] + cv[:4]: a(x)
        a(f"buffer_store_dwordx4 {vr(PK,4)}, {vr(V_DMA)}, {sr(S_WS,4)}, {sr(T+1)} offen sc1")
        for x in a3[6:] + cv[4:8]: a(x)
        a(f"buffer_store_dwordx4 {vr(PK+4,4)}, {vr(V_DMA)}, {sr(S_WS,4)}, {sr(T+1)} offen offset:1024 sc1")
        a("s_waitcnt lgkmcnt(0)")
        for kk in range(3):
            for x in adds(X, kk, [4]): a(x)
        for x in cv[8:]: a(x)
        a(f"buffer_store_dwordx4 {vr(PK+8,4)}, {vr(V_DMA)}, {sr(S_WS,4)}, {sr(T)} offen sc1")
        self.stamp("sent")
        a(f"s_cmp_eq_u32 {sr(S_VAL)}, 0\ns_cbranch_scc1 L_fin")
        C, UP = 140, 68
        IN = [(200, 204, 226), (164, 168, 252), (192, 196, 172)]
        VXW, VXR, VF, LO = 78, 79, 10, 36
        wr = [self.stage(*e) for e in self.own]

        def inbox(k):
            return [f"buffer_load_dwordx4 {vr(IN[k][0],4)}, {vr(V_DMA)}, {sr(S_WS,4)}, {sr(T+13)} offen sc1",
                    f"buffer_load_dwordx4 {vr(IN[k][1],4)}, {vr(V_DMA)}, {sr(S_WS,4)}, {sr(T+13)} offen offset:1024 sc1",
                    f"buffer_load_dwordx4 {vr(IN[k][2],4)}, {vr(V_DMA+1)}, {sr(S_WS,4)}, {sr(T+12)} offen sc1"]
        for x in inbox(0): a(x)
        n0 = len(a.lines)
        a(f"""s_lshl_b32 {sr(T)}, {sr(NB)}, 12
        s_add_u32 {sr(T)}, {sr(T)}, {sr(T+10)}
        s_add_u32 {sr(T)}, {sr(T)}, {self.X1B}
        v_add_u32 {vr(VXW)}, {sr(T)}, {vr(V_DMA)}
        s_lshl_b32 {sr(T)}, {sr(NB)}, 9
        s_add_u32 {sr(T)}, {sr(T)}, {self.X1B + 4096}
        v_add_u32 {vr(VXR)}, {sr(T)}, {vr(self.VL8)}
        s_lshl_b32 {sr(T)}, {sr(PT)}, 12
        s_add_u32 {sr(T)}, {sr(T)}, {self.X1B}
        v_add_u32 {vr(VF)}, {sr(T)}, {vr(V_DMA)}
        v_xor_b32 {vr(VF+1)}, 4096, {vr(VF)}
        s_lshl_b32 {sr(T)}, {sr(PT)}, 9
        s_add_u32 {sr(T)}, {sr(T)}, {self.X1B + 4096}
        v_add_u32 {vr(VF+2)}, {sr(T)}, {vr(self.VL8)}
        v_xor_b32 {vr(VF+3)}, 512, {vr(VF+2)}
        v_subrev_u32 {vr(R2)}, {2*SLOT}, {vr(R2)}
        v_subrev_u32 {vr(R3)}, {2*SLOT}, {vr(R3)}
        s_waitcnt vmcnt(9)""")
        self.stamp("cv0")
        un = [f"v_lshlrev_b32 {vr(M+2*i)}, 16, {vr(U+i)}\nv_and_b32 {vr(M+1+2*i)}, 0xffff0000, {vr(U+i)}" for i in range(10)]
        w8 = self.w8_loads(self.WO[2], SW + 1)
        for k, src in enumerate((GM, G0, GP)):
            for i in range(5):
                d = vr(C + 4 * i, 4)
                a(f"v_mfma_f32_16x16x16_bf16 {d}, {vr(self.dwf(k, i),2)}, {vr(src+2*i,2)}, {'0' if k == 0 else d}")
                a(w8.pop(0) if i in (0, 3) and w8 else un.pop(0))
        self.stamp("cv1")
        a(f"v_and_b32 {vr(LO+1)}, 0xf0, {vr(V_DMA)}\nv_add_u32 {vr(LO)}, {sr(T+8)}, {vr(LO+1)}\ns_nop 1")
        for i in range(10): a(f"v_pk_mul_f32 {p(C+2*i)}, {p(C+2*i)}, {p(M+2*i)}")
        for i in range(10):
            a(f"v_cvt_pk_bf16_f32 {vr(UP+i)}, {vr(C+2*i)}, {vr(C+2*i+1)}")
        body = a.lines[n0:]; del a.lines[n0:]
        step = max(1, len(body) // len(wr))
        for i, l in enumerate(body):
            if i % o.get("wstep", step) == 0 and wr: a(wr.pop(0))
            a.lines.append(l)
        for x in wr: a(x)
        ac = acc(3)
        a(f"ds_write_b128 {vr(VXW)}, {vr(UP,4)} offset:{X2O}")
        for x in ac[:6]: a(x)
        a(f"ds_write_b128 {vr(VXW)}, {vr(UP+4,4)} offset:{X2O + 1024}")
        for x in ac[6:12]: a(x)
        a(f"""s_mov_b64 exec, {sr(MP1,2)}
        ds_write_b64 {vr(VXR)}, {vr(UP+8,2)} offset:{X2O}
        s_mov_b64 exec, -1""")
        self.stamp("x2")
        for x in inbox(1): a(x)
        for x in ac[12:]: a(x)
        a("s_waitcnt lgkmcnt(0)\ns_barrier")
        self.stamp("B2")
        X = [[128, 132, 136, 140, 144], [148, 152, 156, 160, 188], [16, 20, 24, 28, 32]]
        L, L8 = rd(X, (4096, 4096, 0))
        BU = [[("v", r) for r in (100, 104, 108, 112, 116)], [("v", r) for r in (118, 122, 180, 184, 126)]]
        BO = [self.frag("v", 128), self.frag("v", 146)]
        AB = 80

        def bfrags(dst, off):
            out = []
            for s in range(5):
                for j in range(2):
                    out.append(f"ds_read_b128 {self.rg(dst[j][s],4)}, {vr(VF+j)} offset:{off + 1024*s}" if s < 4 else f"ds_read_b64 {self.rg(dst[j][4],2)}, {vr(VF+2+j)} offset:{off}")
            return out

        def fg(W, Bf):
            out = []
            for s in range(5):
                for u, (tt, j) in enumerate(units):
                    d = vr(AB + 4 * u, 4)
                    if s < 4: out.append(f"v_mfma_f32_16x16x32_bf16 {d}, {self.rg(W[tt][s],4)}, {self.rg(Bf[j][s],4)}, {d}")
                    else: out.append(f"v_mfma_f32_16x16x16_bf16 {d}, {self.rg(W[tt][4],2)}, {self.rg(Bf[j][4],2)}, {d}")
            return out
        xu = []
        for u, (tt, j) in enumerate(units):
            for h in range(2):
                x = self.XRS[j] + 2 * tt + h if tt < 2 else self.XRS[2] + h
                xu += [f"v_lshlrev_b32 {vr(AB+4*u+2*h)}, 16, {vr(x)}", f"v_and_b32 {vr(AB+1+4*u+2*h)}, 0xffff0000, {vr(x)}"]
        a("s_waitcnt vmcnt(14)")
        weave(bfrags(BU, X2O), xu, 2)
        pl = lambda k, i, e: f"v_add_f32 {vr(M+4*i+e)}, {vr(M+4*i+e)}, {vr(X[k][i]+e)}"
        ds = L[0] + L[1] + L[2] + [f"s_not_b64 exec, {sr(MP1,2)}\n" + "\n".join(L8) + "\ns_mov_b64 exec, -1", f"ds_read_b128 {vr(LO,4)}, {vr(LO)} offset:512"]
        nis = [1] * 12 + [3, 1]
        gap = [[] for _ in range(25)]
        tot = [10]
        for g in range(25): tot.append(tot[-1] + (nis[g] if g < 14 else 0))
        A0 = [pl(0, i, e) for i in range(4) for e in range(4)]
        A1 = [pl(1, i, e) for i in range(4) for e in range(4)]
        ib = inbox(2)
        for g, m in enumerate(fg(self.WD, BU)):
            if g % 5 == 0: a(f"s_waitcnt lgkmcnt({min(15, tot[g] - 2 * (g // 5 + 1))})")
            a(m)
            if g == 8: a(f"s_waitcnt lgkmcnt({tot[g] - 14})")
            if g == 16: a(f"s_waitcnt lgkmcnt({tot[g] - 18})")
            if g < 14: a(ds[g])
            if 8 <= g < 14: a(A0.pop(0))
            elif g in (14, 18, 22): a(ib.pop(0))
            elif g >= 14:
                for _ in range(2): a(A0.pop(0) if A0 else A1.pop(0))
        assert not A0 and len(A1) % 2 == 0
        n1 = 16 - len(A1)
        for e in range(n1, 16, 2): a(f"v_pk_add_f32 {p(M+e)}, {p(M+e)}, {p(X[1][e//4]+e%4)}")
        a("s_waitcnt lgkmcnt(0)")
        for x in adds(X, 2, range(4)): a(x)
        a(f"v_add_f32 {vr(LO)}, {vr(LO)}, {vr(LO+1)}\nv_add_f32 {vr(LO+2)}, {vr(LO+2)}, {vr(LO+3)}")
        for kk in range(3):
            for x in adds(X, kk, [4]): a(x)
        a(f"s_mov_b32 {sr(T+2)}, 0\nv_add_f32 {vr(LO)}, {vr(LO)}, {vr(LO+2)}")
        self.stamp("own")
        w, PU = 40, 128
        mo = MK + 3

        def chk(k):
            r = [IN[k][q] + i for q in range(3) for i in range(4)]
            c = [f"v_max3_u32 v46, {vr(r[0])}, {vr(r[1])}, {vr(r[2])}", f"v_max3_u32 v47, {vr(r[3])}, {vr(r[4])}, {vr(r[5])}"]
            for q in range(3): c.append(f"v_max3_u32 v{46+(q&1)}, v{46+(q&1)}, {vr(r[6+2*q])}, {vr(r[7+2*q])}")
            return c + ["v_max_u32 v46, v46, v47", "v_cmp_eq_u32 vcc, -1, v46"]

        def take(k, with_chk):
            r = [IN[k][q] + i for q in range(3) for i in range(4)]
            lp_, mp = r[10], r[11]
            wt = [f"v_min_f32 {vr(w)}, {vr(mo)}, {vr(mp)}", f"v_sub_f32 {vr(w+2)}, {vr(w)}, {vr(mp)}", f"v_sub_f32 {vr(w)}, {vr(w)}, {vr(mo)}",
                  f"v_exp_f32 {vr(w+2)}, {vr(w+2)}", f"v_exp_f32 {vr(w)}, {vr(w)}", f"v_mul_f32 {vr(w+4)}, {vr(w+2)}, {vr(lp_)}",
                  f"v_fmac_f32 {vr(w+4)}, {vr(w)}, {vr(LO)}", f"v_rcp_f32 {vr(w+4)}, {vr(w+4)}", f"v_mul_f32 {vr(w)}, {vr(w)}, {vr(w+4)}",
                  f"v_mul_f32 {vr(w+2)}, {vr(w+2)}, {vr(w+4)}"]
            un = []
            for i in range(10): un += [f"v_lshlrev_b32 {vr(PU+2*i)}, 16, {vr(r[i])}", f"v_and_b32 {vr(PU+1+2*i)}, 0xffff0000, {vr(r[i])}"]
            c = chk(k) if with_chk else []
            for i in range(10):
                a(wt[i])
                if c: a(c.pop(0))
                a(un.pop(0)); a(un.pop(0))
        a("s_waitcnt vmcnt(6)")
        take(0, True)
        a("s_cmp_eq_u64 vcc, 0\ns_cbranch_scc0 L_poll2")
        a.label("L_got")
        self.stamp("got")
        for i in range(10): a(f"v_pk_mul_f32 {p(M+2*i)}, {p(M+2*i)}, {p(w)} op_sel_hi:[1,0]")
        for i in range(10): a(f"v_pk_fma_f32 {p(M+2*i)}, {p(PU+2*i)}, {p(w+2)}, {p(M+2*i)} op_sel_hi:[1,0,1]")
        for i in range(10):
            a(f"v_cvt_pk_bf16_f32 {vr(UP+i)}, {vr(M+2*i)}, {vr(M+2*i+1)}")
            if i == 3: a(f"ds_write_b128 {vr(VXW)}, {vr(UP,4)}")
            if i == 7: a(f"ds_write_b128 {vr(VXW)}, {vr(UP+4,4)} offset:1024")
        a(f"""s_not_b64 exec, {sr(MP1,2)}
        ds_write_b64 {vr(VXR)}, {vr(UP+8,2)}
        s_mov_b64 exec, -1
        s_waitcnt lgkmcnt(0)
        s_barrier""")
        self.stamp("B3")
        for x in bfrags(BO, 0): a(x)
        for g, m in enumerate(fg(self.WO, BO)):
            if g % 5 == 0: a(f"s_waitcnt lgkmcnt({8 - 2 * (g // 5)})" + ("\ns_nop 0" if g == 20 else ""))
            a(m)
        self.stamp("gem")
        a("s_nop 3")
        for j in range(2):
            for tt in range(2):
                u = 2 * tt + j
                for h in range(2): a(f"v_cvt_pk_bf16_f32 {vr(16+4*j+2*tt+h)}, {vr(AB+4*u+2*h)}, {vr(AB+4*u+2*h+1)}")
            a(f"buffer_store_dwordx4 {vr(16+4*j,4)}, {vr(VO+j)}, {sr(S_OUT,4)}, {sr(self.E_COL)} offen")
        a(f"s_cmp_ge_u32 {sr(S_W)}, 2\ns_cbranch_scc1 L_fin")
        for h in range(2): a(f"v_cvt_pk_bf16_f32 {vr(24+h)}, {vr(AB+16+2*h)}, {vr(AB+16+2*h+1)}")
        a(f"buffer_store_dwordx2 v[24:25], {vr(self.VO8)}, {sr(S_OUT,4)}, 0 offen offset:256")
        self.stamp("fin")

        def poll2():
            a.label("L_poll2")
            for k in (1, 2, 0):
                for x in inbox((k + 2) % 3): a(x)
                a("s_waitcnt vmcnt(6)")
                for x in chk(k): a(x)
                a(f"s_add_u32 {sr(T+2)}, {sr(T+2)}, 1\ns_cmp_eq_u64 vcc, 0\ns_cbranch_scc1 L_take{k}")
            a(f"s_cmp_lt_u32 {sr(T+2)}, 0x10000\ns_cbranch_scc1 L_poll2")
            for k in (0, 1, 2):
                a.label(f"L_take{k}")
                take(k, False)
                a("s_branch L_got")
        self.poll2 = poll2

    def fallback(self):
        a = self.a
        T = S_T
        MXR = 208
        a.label("L_fallback")
        a(f"""s_waitcnt vmcnt(0) lgkmcnt(0)
        s_barrier
        s_mov_b32 {sr(S_REDO)}, 1
        s_mov_b32 {sr(S_UG)}, 0x40000000
        {self.xa_srd()}
        s_mov_b32 {sr(S_TOFF)}, {sr(S_LB)}
        s_cmp_eq_u32 {sr(S_DUM)}, 4
        s_cselect_b32 {sr(S_CNT)}, 15, 16""")
        for i in range(4): a(f"v_mov_b32 {vr(MXR+i)}, 0xff800000")
        a.label("L_fb1")
        for g in self.tile_groups(0): a(g)
        a("s_waitcnt vmcnt(0)")
        for x in self.k_reads(0): a(x)
        a("s_waitcnt lgkmcnt(0)")
        for m in self.qk_mfmas(0, czero=True): a(m)
        a("s_nop 7")
        for qb in range(4):
            for i in range(0, 8, 2): a(f"v_max3_f32 {vr(MXR+qb)}, {vr(MXR+qb)}, {vr(self.S(0,qb,i))}, {vr(self.S(0,qb,i+1))}")
        a(f"s_sub_u32 {sr(S_CNT)}, {sr(S_CNT)}, 1\ns_cmp_lg_u32 {sr(S_CNT)}, 0\ns_cbranch_scc1 L_fb1")
        self.greduce([MXR + i for i in range(4)], MXR + 4, "v_max_f32")
        a(f"""v_and_b32 {vr(MXR+4)}, 15, v0
        v_lshlrev_b32 {vr(MXR+4)}, 4, {vr(MXR+4)}
        v_add_u32 {vr(MXR+4)}, {L_SP}, {vr(MXR+4)}
        s_lshl_b32 {sr(T)}, {sr(S_W)}, 2
        s_xor_b32 {sr(T+1)}, {sr(self.NB)}, 1
        v_lshl_add_u32 {vr(MXR+5)}, {sr(self.NB)}, 8, {vr(MXR+4)}
        v_lshl_add_u32 {vr(MXR+4)}, {sr(T+1)}, 8, {vr(MXR+4)}
        v_add_u32 {vr(MXR+6)}, {sr(T)}, {vr(MXR+4)}
        v_add_u32 {vr(MXR+7)}, {sr(T)}, {vr(MXR+5)}""")
        for qb in range(4): a(f"ds_write_b32 {vr(MXR+6+(qb&1))}, {vr(MXR+qb)} offset:{512*(qb>>1)}")
        a("s_waitcnt lgkmcnt(0)\ns_barrier")
        for qb in range(4): a(f"ds_read_b128 {vr(16+4*qb,4)}, {vr(MXR+4+(qb&1))} offset:{512*(qb>>1)}")
        a(f"s_mov_b32 {sr(S_TOFF)}, {sr(S_LB)}")
        for g in self.tile_groups(0) + self.tile_groups(1) + self.tile_groups(2)[:8]: a(g)
        a("s_waitcnt lgkmcnt(0)")
        for qb in range(4):
            r = 16 + 4 * qb
            a(f"v_max_f32 {vr(r)}, {vr(r)}, {vr(r+1)}\nv_max3_f32 {vr(r)}, {vr(r)}, {vr(r+2)}, {vr(r+3)}")
            a(f"v_sub_f32 {vr(self.MK+qb)}, 0, {vr(r)}")
        a("s_waitcnt vmcnt(0)")
        for x in self.k_reads(0, V_V): a(x)
        self.loop_init(False)
        a("s_branch L_go")


if __name__ == "__main__":
    opt = json.loads(sys.argv[2]) if len(sys.argv) > 2 else {}
    g = G(opt)
    txt = g.build()
    if opt.get("align", 1):
        from align import align
        for n2 in (1, 2):
            try:
                txt, st = align(txt, chains=[(1, "L_tr")] * 3 + [(1, "L_tr2"), (n2, "L_tr2")] if opt.get("touch", 1) else None)
                break
            except AssertionError as e:
                if n2 == 2: raise
        print("align: promoted %d, padded %d, left %d" % st)
    txt = txt.replace("\n", "\n; stamps " + json.dumps(g.stnames) + "\n; map %d\n" % g.mp, 1)
    open(sys.argv[1], "w").write(txt)
```

```python
import sys, json, math
from common import Asm, vr, ar, sr, kernel_header, kernel_desc
from lay import *

NAME = "standalone__conformer_family_branchformer__speech_kernel"
NH = 2
NWG = 252 + NH
CHAINS = (3, 3)
RING = 4
LDS_RING = RING * TILE
LDS_TOTAL = 163840
SLOT = 4 * TILE
L_WU, L_WQ, L_WK = 0, 41472, 82944
L_XX, L_XR = 126976, 143360
L_QD = 18432
L_XS = L_XX + L_QD
L_MX = 81920
L_PC = LDS_TOTAL - 256
L_DUMP = 123904
L_SP = 147456

S_X, S_WS, S_XA, S_DB, S_W1, S_W2, S_OUT, S_DW = 8, 12, 16, 20, 24, 28, 32, 36
S_W, S_B, S_H, S_QB, S_TOFF, S_CNT, S_DUM, S_LB, S_TOWN, S_TSND, S_VAL, S_REDO = range(40, 52)
S_UG = 25
S_INC = 24
S_T = 52
S_ST = 76

V_KA, V_VA, V_VR, V_DMA, V_L, V_VB = 1, 3, 5, 6, 10, 14
V_S, V_CI, V_P, V_K, V_V = 16, 80, 96, 128, 164
V_HI = 200
V_X = 208
A_O, A_Q, A_F = 0, 144, 216

LOG2E = 1.4426950408889634
import struct
def f32(x): return "0x%08x" % struct.unpack("<I", struct.pack("<f", x))[0]


class BAsm(Asm):
    def __init__(self):
        super().__init__()
        self.bg, self.every, self.cnt, self.skip = [], 0, 0, 0

    def __call__(self, s):
        for l in s.split("\n"):
            l = l.strip()
            if not l: continue
            self.lines.append("    " + l)
            if self.bg and self.every and not l.startswith(("s_nop", "v_mov_b32", "v_exp", "v_rcp", "v_rsq", "v_sqrt", "s_add_u32 m0")):
                self.cnt += 1
                if self.cnt >= self.every:
                    self.cnt = 0
                    self.pop()

    def pop(self):
        for x in self.bg.pop(0).split("\n"): self.lines.append("    " + x)

    def flush(self):
        while self.bg: self.pop()
        self.every = 0


class G:
    def __init__(self, opt):
        self.o = opt
        self.a = BAsm()
        self.nst = 0
        self.fill = []

    def stamp(self, name):
        if self.o.get("stamps"):
            if name in self.o.get("skipst", []): return
            if "only" in self.o and name not in self.o["only"]: return
            if self.nst >= 11: return
            self.a(f"{'s_memtime' if self.o.get('cyc') else 's_memrealtime'} {sr(S_ST + 2*self.nst, 2)}")
            self.stnames.append(name)
            self.nst += 1

    def srd(self, dst, lo, hi, n):
        if dst == S_WS and self.o.get("wsoff"):
            self.a(f"s_add_u32 {sr(dst)}, {sr(lo)}, {self.o['wsoff']}\ns_addc_u32 {sr(dst+1)}, {sr(hi)}, 0\ns_mov_b32 {sr(dst+2)}, {n}\ns_mov_b32 {sr(dst+3)}, 0x20000")
            return
        self.a(f"s_mov_b32 {sr(dst)}, {sr(lo)}\ns_mov_b32 {sr(dst+1)}, {sr(hi)}\ns_mov_b32 {sr(dst+2)}, {n}\ns_mov_b32 {sr(dst+3)}, 0x20000")

    def greduce(self, regs, tmp, op="v_add_f32"):
        a = self.a
        for sw in ("32", "16"):
            for i, r in enumerate(regs): a(f"v_mov_b32 {vr(tmp+i)}, {vr(r)}")
            if len(regs) < 3: a("s_nop 1" if len(regs) == 1 else "s_nop 0")
            for i, r in enumerate(regs): a(f"v_permlane{sw}_swap_b32 {vr(r)}, {vr(tmp+i)}")
            for i, r in enumerate(regs): a(f"{op} {vr(r)}, {vr(r)}, {vr(tmp+i)}")

    def treduce(self, r, op="v_add_f32"):
        a = self.a
        a(f"v_permlane32_swap_b32 {vr(r)}, {vr(r+2)}\nv_permlane32_swap_b32 {vr(r+1)}, {vr(r+3)}")
        a(f"{op} {vr(r)}, {vr(r)}, {vr(r+2)}\n{op} {vr(r+1)}, {vr(r+1)}, {vr(r+3)}\ns_nop 1")
        a(f"v_permlane16_swap_b32 {vr(r)}, {vr(r+1)}\n{op} {vr(r)}, {vr(r)}, {vr(r+1)}")

    def rbf(self, r):
        self.a(f"v_cvt_pk_bf16_f32 {vr(r)}, {vr(r)}, {vr(r)}\nv_lshlrev_b32 {vr(r)}, 16, {vr(r)}")

    def ln_tail(self, F, out, t, mimic):
        a = self.a
        p = lambda r: vr(r, 2)
        self.greduce([t, t + 1], t + 2)
        a(f"v_mul_f32 {vr(t+2)}, {f32(1.0/144)}, {vr(t)}")
        a(f"v_mul_f32 {vr(t+3)}, {vr(t+2)}, {vr(t+2)}")
        a(f"v_mov_b32 {vr(t+4)}, {f32(1.0/144)}")
        a(f"v_fma_f32 {vr(t)}, {vr(t+1)}, {vr(t+4)}, -{vr(t+3)}")
        a(f"v_max_f32 {vr(t)}, 0, {vr(t)}")
        if mimic:
            self.rbf(t)
            self.rbf(t + 2)
            a(f"v_add_f32 {vr(t)}, {f32(1e-5)}, {vr(t)}")
            self.rbf(t)
            a(f"v_sqrt_f32 {vr(t)}, {vr(t)}\ns_nop 0")
            self.rbf(t)
            a(f"v_rcp_f32 {vr(t)}, {vr(t)}\ns_nop 0")
        else:
            a(f"v_add_f32 {vr(t)}, {f32(1e-5)}, {vr(t)}")
            a(f"v_rsq_f32 {vr(t)}, {vr(t)}\ns_nop 0")
        a(f"v_mul_f32 {vr(t+2)}, -{vr(t+2)}, {vr(t)}")
        for i in range(18):
            a(f"v_pk_fma_f32 {p(F+2*i)}, {p(F+2*i)}, {p(t)}, {p(t+2)} op_sel_hi:[1,0,0]")
        for i in range(18):
            a(f"v_cvt_pk_bf16_f32 {vr(out+i)}, {vr(F+2*i)}, {vr(F+2*i+1)}")

    def ln_packed(self, X, F, out, t):
        a = self.a
        a(f"v_mov_b32 {vr(t+6)}, 0x3f803f80")
        for k in range(4): a(f"v_mov_b32 {vr(t+k)}, 0")
        for i in range(18):
            a(f"v_dot2_f32_bf16 {vr(t+2*(i&1))}, {vr(X+i)}, {vr(t+6)}, {vr(t+2*(i&1))}")
            a(f"v_dot2_f32_bf16 {vr(t+1+2*(i&1))}, {vr(X+i)}, {vr(X+i)}, {vr(t+1+2*(i&1))}")
        for i in range(2):
            a(f"v_lshlrev_b32 {vr(F+2*i)}, 16, {vr(X+i)}\nv_and_b32 {vr(F+2*i+1)}, 0xffff0000, {vr(X+i)}")
        a(f"v_pk_add_f32 {vr(t,2)}, {vr(t,2)}, {vr(t+2,2)}")
        un = []
        for i in range(2, 18):
            un.append(f"v_lshlrev_b32 {vr(F+2*i)}, 16, {vr(X+i)}\nv_and_b32 {vr(F+2*i+1)}, 0xffff0000, {vr(X+i)}")
        sv = (a.bg, a.every, a.cnt, a.skip)
        n0 = len(a.lines)
        a.bg, a.every = [], 0
        self.ln_tail(F, out, t, True)
        tail = a.lines[n0:]
        del a.lines[n0:]
        a.bg, a.every, a.cnt, a.skip = sv
        k = next(i for i, l in enumerate(tail) if "v_pk_fma" in l)
        for i, l in enumerate(tail[:k]):
            if "s_nop" in l and un: continue_nop = True
            a(l)
            if un and not l.strip().startswith("s_nop"): a(un.pop(0))
        while un: a(un.pop(0))
        for l in tail[k:]: a(l)

    def ln_f32(self, F, out, t):
        a = self.a
        p = lambda r: vr(r, 2)
        a(f"v_pk_add_f32 {p(t)}, {p(F)}, {p(F+2)}\nv_pk_add_f32 {p(t+2)}, {p(F+4)}, {p(F+6)}")
        a(f"v_pk_mul_f32 {p(t+4)}, {p(F)}, {p(F)}\nv_pk_mul_f32 {p(t+6)}, {p(F+2)}, {p(F+2)}")
        for i in range(2, 18):
            if i >= 4: a(f"v_pk_add_f32 {p(t+2*(i&1))}, {p(t+2*(i&1))}, {p(F+2*i)}")
            a(f"v_pk_fma_f32 {p(t+4+2*(i&1))}, {p(F+2*i)}, {p(F+2*i)}, {p(t+4+2*(i&1))}")
        a(f"v_pk_add_f32 {p(t)}, {p(t)}, {p(t+2)}\nv_pk_add_f32 {p(t+4)}, {p(t+4)}, {p(t+6)}")
        a(f"v_add_f32 {vr(t)}, {vr(t)}, {vr(t+1)}\nv_add_f32 {vr(t+1)}, {vr(t+4)}, {vr(t+5)}")
        self.ln_tail(F, out, t, False)

    def gemm_u(self, AF, rf, Bs, ACC, afr, bfr, post, vm_items=(), other=(), lead=7, vm0=0, vmsp=4):
        a = self.a
        units = [(0, j) for j in range(4)] + [(1, j) for j in range(4)] + [(2, 0)]
        seq, dl = [], {}
        bs = lambda j, o_, n: self.rg((Bs[j][0], Bs[j][1] + o_), n)
        rem = lambda u: (f"v_mfma_f32_16x16x16_bf16 {vr(ACC+4*u,4)}, {rf(AF+18*units[u][0]+16,2)}, {bs(units[u][1],16,2)}, {vr(ACC+4*u,4)}", u)
        A = [afr(t) for t in range(3)]
        Bf = [bfr(j) for j in range(4)]

        def use(t, j, s, k):
            for x in (A[t][2 * s:2 * s + 2] if s < 4 else A[t][8:]) + ([Bf[j][s]] if Bf[j] else []): dl.setdefault(x, k)
        for g in range(4):
            for s in range(4):
                for u in range(3 * g, 3 * g + 3) if g < 3 else []:
                    t, j = units[u]
                    d = vr(ACC + 4 * u, 4)
                    use(t, j, s, len(seq))
                    seq.append((f"v_mfma_f32_16x16x32_bf16 {d}, {rf(AF+18*t+4*s,4)}, {bs(j,4*s,4)}, {'0' if s == 0 else d}", None))
                if s == 0 and g > 0:
                    for u in range(3 * g - 3, 3 * g):
                        use(units[u][0], units[u][1], 4, len(seq)); seq.append(rem(u))
        last = seq[-3:]; seq = seq[:-3]
        ds = sorted(dl.items(), key=lambda e: e[1]) + [(x, 99) for x in other]
        vm_items = list(vm_items)
        lastvm = vm0 - vmsp
        order, ready, q, done = [], [], [], 0

        def issue():
            x, k_ = ds.pop(0); a(x); order.append(k_)

        def wait(k):
            nonlocal done
            idx = [i_ for i_, k_ in enumerate(order) if k_ <= k]
            if idx and max(idx) + 1 > done:
                a(f"s_waitcnt lgkmcnt({min(15, len(order) - 1 - max(idx))})"); done = max(idx) + 1
        while ds and ds[0][1] < 6: issue()
        for k, (m, fin) in enumerate(seq):
            assert not ds or ds[0][1] > k, (k, ds[0])
            wait(k)
            a(m)
            for u_, kk in list(ready):
                if k - kk >= 4: q += post(u_); ready.remove((u_, kk))
            if fin is not None: ready.append((fin, k))
            due = sum(1 for x, k_ in ds if k_ <= k + lead)
            if due == 0 and vm_items and k >= lastvm + vmsp:
                a(vm_items.pop(0)); lastvm = k; continue
            cap = 2
            for _ in range(min(due, 3)): issue(); cap -= 1
            if cap == 2:
                if q and q[0].startswith("ds_"): a(q.pop(0)); order.append(99); cap -= 1
                elif ds: issue(); cap -= 1
            while cap > 0 and q and not q[0].startswith("ds_"):
                a(q.pop(0)); cap -= 1
        assert not ready
        while ds: issue()
        wait(98)
        for x in vm_items: a(x)
        for x in q[:4]: a(x)
        a(f"s_nop {max(0, 4 - len(q[:4]))}")
        for m, _ in last: a(m)
        for x in q[4:]: a(x)
        a(f"s_nop {max(0, 6 - len(q[4:]))}")
        for u in range(6, 9):
            for x in post(u): a(x)

    def gemm(self, reads, B, ACC, AF, late=(), at={}, per=2):
        a = self.a
        buf = lambda T: 18 * (T % 6)
        ng = 3 * (4 * per + 1)

        def grp(g):
            r = [reads(T, buf(T)) for T in range(3 * g, 3 * g + 3)]
            return [r[t][per * s + u] for s in range(4) for t in range(3) for u in range(per)] + [r[t][4 * per] for t in range(3)]
        rem = lambda T: f"v_mfma_f32_16x16x16_bf16 {vr(ACC+4*T,4)}, {ar(buf(T)+16,2)}, {vr(B+16,2)}, {vr(ACC+4*T,4)}"
        pend = grp(0) + grp(1) + grp(2) + list(late)
        issued = k = 0

        def issue(n):
            nonlocal issued
            for _ in range(n):
                if issued < len(pend): a(pend[issued]); issued += 1

        def mf(x):
            nonlocal k
            a(x); issue(per if per == 2 else (2 if k % 4 == 0 else 1))
            if k in at: a(at[k])
            k += 1
        issue(self.o.get('look', 12) if per == 2 else self.o.get('look1', 8))
        for g in range(3):
            for s in range(4):
                need = ng * g + 3 * per * (s + 1)
                a(f"s_waitcnt lgkmcnt({min(15, issued - need)})")
                for T in range(3 * g, 3 * g + 3):
                    d = vr(ACC + 4 * T, 4)
                    mf(f"v_mfma_f32_16x16x32_bf16 {d}, {ar(buf(T)+4*s,4)}, {vr(B+4*s,4)}, {'0' if s == 0 else d}")
                if s == 0 and g > 0:
                    for T in range(3 * g - 3, 3 * g): mf(rem(T))
                if g == 1 and s == 0: assert issued <= 2 * ng + 6 * per, "group 2 overwrites group 0 too early"
        issue(99)
        a(f"s_waitcnt lgkmcnt({len(late)})\ns_nop 2")
        for T in range(6, 9): a(rem(T))
        a("s_nop 7")

    def tr_reads(self, ad, rf=ar):
        def f(T, dst):
            out = []
            for s in range(4):
                for u in range(2):
                    out.append(f"ds_read_b64_tr_b16 {rf(dst+4*s+2*u,2)}, {vr(ad+u)} offset:{9216*s + 32*T}")
            out.append(f"ds_read_b64_tr_b16 {rf(dst+16,2)}, {vr(ad+2)} offset:{36864 + 32*T}")
            return out
        return f

    def row_reads(self, ad, sw=None):
        def f(T, dst):
            r = ad if sw is None or T == 8 else sw[T & 1]
            out = []
            for s in range(4):
                for u in range(2):
                    out.append(f"ds_read_b64 {ar(dst+4*s+2*u,2)}, {vr(r)} offset:{4864*T + 64*s + 32*u}")
            out.append(f"ds_read_b64 {ar(dst+16,2)}, {vr(r)} offset:{4864*T + 256}")
            return out
        return f

    def dma_rows(self, jobs, cpr, rstride, vo, vc, n_first, first_waves, lab):
        a = self.a
        mul = {18: 3641, 19: 3450}[cpr]
        dr, dc = 256 // cpr, 256 % cpr
        a(f"s_lshl_b32 {sr(S_T)}, {sr(S_W)}, 6")
        a(f"v_add_u32 {vr(vc)}, {sr(S_T)}, v0")
        a(f"v_mul_u32_u24 {vr(vo)}, {mul}, {vr(vc)}")
        a(f"v_lshrrev_b32 {vr(vo)}, 16, {vr(vo)}")
        a(f"v_mul_u32_u24 {vr(vc+1)}, {cpr}, {vr(vo)}")
        a(f"v_sub_u32 {vr(vc)}, {vr(vc)}, {vr(vc+1)}")
        a(f"v_mul_u32_u24 {vr(vo)}, {rstride}, {vr(vo)}")
        a(f"v_lshl_add_u32 {vr(vo)}, {vr(vc)}, 4, {vr(vo)}")
        a(f"s_lshl_b32 {sr(S_T)}, {sr(S_W)}, 10")
        a(f"v_mov_b32 {vr(vc+1)}, {rstride - 16*cpr}")
        for k in range(n_first):
            if k == n_first - 1:
                a(f"s_cmp_ge_u32 {sr(S_W)}, {first_waves}\ns_cbranch_scc1 {lab}")
            for srd, so, lb in jobs:
                a(f"s_add_u32 m0, {sr(S_T)}, {lb + 4096*k}")
                a("s_nop 0")
                a(f"buffer_load_dwordx4 {vr(vo)}, {sr(srd,4)}, {so} offen lds")
            if k < n_first - 1:
                a(f"v_add_u32 {vr(vc)}, {dc}, {vr(vc)}")
                a(f"v_cmp_le_u32 vcc, {cpr}, {vr(vc)}")
                a(f"v_add_u32 {vr(vo)}, {dr*rstride + 16*dc}, {vr(vo)}")
                a(f"v_subrev_u32 {vr(vc+2)}, {cpr}, {vr(vc)}")
                a(f"v_cndmask_b32 {vr(vc)}, {vr(vc)}, {vr(vc+2)}, vcc")
                a(f"v_cndmask_b32 {vr(vc+2)}, 0, {vr(vc+1)}, vcc")
                a(f"v_add_u32 {vr(vo)}, {vr(vo)}, {vr(vc+2)}")
        a.label(lab)

    def voff_table(self, dst, cpr, rstride, vc, step=256):
        a = self.a
        mul = {18: 29128, 19: 27595}[cpr]
        n = len(dst)
        a(f"s_mov_b32 {sr(S_T)}, {rstride - 16*cpr}")
        a(f"v_mul_u32_u24 {vr(dst[0])}, {mul}, {vr(vc)}")
        for k in range(1, n): a(f"v_add_u32 {vr(dst[k])}, {(step*k % cpr)*mul}, {vr(dst[0])}")
        for k in range(n): a(f"v_lshrrev_b32 {vr(dst[k])}, 19, {vr(dst[k])}")
        for k in range(n): a(f"v_mad_i32_i24 {vr(dst[k])}, {vr(dst[k])}, {sr(S_T)}, {vr(vc+1)}")

    def dma_lin(self, srd, soff, lb, v16, lab):
        a = self.a
        a(f"s_lshl_b32 {sr(S_T)}, {sr(S_W)}, 10")
        for k in range(11):
            if k == 10:
                a(f"s_cmp_ge_u32 {sr(S_W)}, 1\ns_cbranch_scc1 {lab}")
            a(f"s_add_u32 m0, {sr(S_T)}, {lb + 4096*k}")
            a(f"s_add_u32 {sr(S_T+1)}, {sr(S_T)}, {soff + 4096*k}")
            a(f"buffer_load_dwordx4 {vr(v16)}, {sr(srd,4)}, {sr(S_T+1)} offen lds")
        a.label(lab)

    def tr_addr(self, ad, base, swapped, t):
        a = self.a
        a(f"v_lshrrev_b32 {vr(t)}, 2, v0")
        a(f"v_mul_u32_u24 {vr(t)}, 288, {vr(t)}")
        a(f"v_and_b32 {vr(t+1)}, 3, v0")
        a(f"v_lshl_add_u32 {vr(t)}, {vr(t+1)}, 3, {vr(t)}")
        a(f"v_add_u32 {vr(ad+2)}, {base}, {vr(t)}")
        if swapped:
            a(f"v_bfe_u32 {vr(t)}, v0, 4, 1")
            a(f"v_mul_u32_u24 {vr(t)}, {16*288}, {vr(t)}")
            a(f"v_add_u32 {vr(ad)}, {vr(ad+2)}, {vr(t)}")
            a(f"v_sub_u32 {vr(ad+1)}, {vr(ad+2)}, {vr(t)}")
            a(f"v_add_u32 {vr(ad+1)}, {16*288}, {vr(ad+1)}")
        else:
            a(f"v_mov_b32 {vr(ad)}, {vr(ad+2)}")
            a(f"v_add_u32 {vr(ad+1)}, {16*288}, {vr(ad+2)}")

    def row_addr(self, ad, base, t):
        a = self.a
        a(f"v_and_b32 {vr(t)}, 15, v0")
        a(f"v_mul_u32_u24 {vr(t)}, 304, {vr(t)}")
        a(f"v_lshrrev_b32 {vr(t+1)}, 4, v0")
        a(f"v_lshl_add_u32 {vr(t)}, {vr(t+1)}, 3, {vr(t)}")
        a(f"v_add_u32 {vr(ad)}, {base}, {vr(t)}")

    def store_block(self, src, v16, v8, srd, soff, soff2, flags=""):
        a = self.a
        for s in range(4):
            a(f"buffer_store_dwordx4 {vr(src+4*s,4)}, {vr(v16)}, {sr(srd,4)}, {sr(soff)} offen offset:{1024*s} {flags}")
        a(f"buffer_store_dwordx2 {vr(src+16,2)}, {vr(v8)}, {sr(srd,4)}, {sr(soff2)} offen {flags}")

    def entry(self):
        a = self.a
        kernel_header(a, NAME)
        a(f"s_load_dwordx16 s[56:71], s[0:1], 0")
        a(f"s_load_dwordx8 s[72:79], s[0:1], 64")
        a(f"s_getpc_b64 {sr(S_W1,2)}")
        a.label("L_pf")
        hl = self.o.get("hlast", 1)
        if not hl: a(f"s_cmp_lt_u32 s2, {NH}\ns_cbranch_scc1 L_wfuse")
        a(f"""s_mov_b32 {sr(S_W1+2)}, L_dummy-L_pf
        s_mov_b32 {sr(S_W1+3)}, 0x20000
        v_lshlrev_b32 v1, 4, v0
        s_bfe_u32 {sr(S_T)}, s2, 0x30003
        s_lshl_b32 {sr(S_T)}, {sr(S_T)}, 12
        buffer_load_dwordx4 v[252:255], v1, {sr(S_W1,4)}, 0 offen
        buffer_load_dwordx4 v[252:255], v1, {sr(S_W1,4)}, {sr(S_T)} offen
        s_cmp_ge_u32 s2, {NWG - NH * hl}
        s_cbranch_scc1 {"L_wfuse" if hl else "L_end"}""")
        if self.o.get("stamps"):
            a("s_memrealtime s[100:101]" if not self.o.get("cyc") else "s_memtime s[100:101]")
        self.mp = 2
        a(f"""v_lshrrev_b32 v1, 6, v0
        s_sub_u32 s2, s2, {0 if hl else NH}
        v_readfirstlane_b32 {sr(S_W)}, v1
        s_and_b32 {sr(S_H)}, s2, 1
        s_bfe_u32 {sr(S_B)}, s2, 0x10001
        s_lshr_b32 {sr(S_QB)}, s2, 2
        v_and_b32 v0, 63, v0
        v_lshlrev_b32 {vr(V_DMA)}, 4, v0""")

    def vm_since(self, mark):
        return sum(1 for l in self.a.lines[mark:] if l.strip().startswith("buffer_"))

    def phase_a(self):
        a, o = self.a, self.o
        XR, XF, XA, ACC, G_, PK = 16, 34, 146, 110, 16, 164
        B4, XD = 16, 88
        VS, VSW, VR4, MXA, MXR, L8, TRU, TRQ, TRQ8, RK, TM = 200, 204, 208, 212, 213, 214, 215, 218, 221, 224, 228
        VK, VU = list(range(182, 193)), list(range(193, 200)) + list(range(104, 108))
        AQ1 = 200
        t0, t1, t2 = 250, 251, 227
        T = S_T
        WV, W10, UOFF, M1, PUB, M3 = 72, 70, 71, 69, 68, 65
        a(f"""s_lshl_b32 {sr(T)}, {sr(S_QB)}, 1
        s_add_u32 {sr(S_TOWN)}, {sr(T)}, {sr(S_H)}
        s_xor_b32 {sr(S_TSND)}, {sr(S_TOWN)}, 1
        s_cmp_lt_u32 {sr(S_TOWN)}, {NT}
        s_cselect_b32 {sr(S_VAL)}, 1, 0
        s_cmp_lt_u32 {sr(S_W)}, 2
        s_cselect_b32 {sr(T+3)}, {sr(S_TSND)}, {sr(S_TOWN)}
        s_mul_i32 {sr(T)}, {sr(S_B)}, {NT}
        s_add_u32 {sr(S_TOWN)}, {sr(S_TOWN)}, {sr(T)}
        s_add_u32 {sr(S_TSND)}, {sr(S_TSND)}, {sr(T)}
        s_add_u32 {sr(T+1)}, {sr(T+3)}, {sr(T)}
        s_lshl_b32 {sr(T+1)}, {sr(T+1)}, 1
        s_and_b32 {sr(T+2)}, {sr(S_W)}, 1
        s_add_u32 {sr(T+2)}, {sr(T+1)}, {sr(T+2)}
        s_mul_i32 {sr(T+1)}, {sr(T+2)}, {16*288}
        s_mul_i32 {sr(S_LB)}, {sr(S_W)}, {BLK}
        s_add_u32 {sr(S_LB)}, {sr(S_LB)}, {L_XS}
        s_mov_b32 m0, {sr(S_LB)}
        s_mov_b32 {sr(S_X+2)}, 2304000
        s_mov_b32 {sr(S_X+3)}, 0x20000
        s_add_u32 {sr(S_CNT)}, {sr(T+1)}, 4096
        s_waitcnt lgkmcnt(0)
        s_mov_b32 {sr(S_X)}, s56
        s_mov_b32 {sr(S_X+1)}, s57""")
        for k in range(4): a(f"buffer_load_dwordx4 {vr(V_DMA)}, {sr(S_X,4)}, {sr(T+1)} offen offset:{1024*k} lds")
        a(f"s_add_u32 m0, {sr(S_LB)}, 4096\ns_mov_b32 exec_hi, 0\nbuffer_load_dwordx4 {vr(V_DMA)}, {sr(S_X,4)}, {sr(S_CNT)} offen lds\ns_mov_b32 exec_hi, -1")
        mx = len(a.lines)
        SQ, SK, SU = S_W2, S_W1, S_XA
        self.srd(SU, 66, 67, 82944)
        self.srd(SQ, 58, 59, 41472)
        self.srd(SK, 60, 61, 41472)
        a(f"s_lshr_b32 {sr(T)}, s2, 3\ns_lshl_b32 {sr(T)}, {sr(T)}, 12\ns_lshl_b32 {sr(W10)}, {sr(S_W)}, 10\ns_add_u32 {sr(T)}, {sr(T)}, {sr(W10)}")
        a(f"buffer_load_dwordx4 v[252:255], {vr(V_DMA)}, {sr(SU,4)}, {sr(T)} offen")
        for srd_, rot in ((SQ, 82), (SK, 41)):
            a(f"s_add_u32 {sr(T+1)}, {sr(T)}, {(128 - rot) * 1024}\ns_and_b32 {sr(T+1)}, {sr(T+1)}, {127 * 1024}")
            a(f"buffer_load_dwordx4 v[252:255], {vr(V_DMA)}, {sr(srd_,4)}, {sr(T+1)} offen")
        self.srd(S_OUT, 74, 75, 2304000)
        self.srd(S_DB, 76, 77, 256)
        self.srd(S_WS, 78, 79, WS_END)
        def tlb():
            a(f"v_lshlrev_b32 v249, 21, v0")
            for ch in o.get("tlbw", "wdo"): a(f"buffer_load_dword v252, v249, {sr(dict(w=S_WS, d=S_DB, o=S_OUT)[ch],4)}, 0 offen")
        if o.get("tlb", 0) == 1: tlb()
        if o.get("tlb", 0) == 3:
            a(f"""s_bfe_u32 {sr(T)}, s2, 0x30003
            s_lshl_b32 {sr(T)}, {sr(T)}, 21
            v_mov_b32 v249, 0
            s_cmp_lt_u32 {sr(T)}, {5 << 21}
            s_cbranch_scc0 L_tl1
            buffer_load_dword v252, v249, {sr(S_WS,4)}, {sr(T)} offen
            s_branch L_tl3
            L_tl1:
            s_sub_u32 {sr(T)}, {sr(T)}, {5 << 21}
            s_cmp_lt_u32 {sr(T)}, {2 << 21}
            s_cbranch_scc0 L_tl2
            buffer_load_dword v252, v249, {sr(S_OUT,4)}, {sr(T)} offen
            s_branch L_tl3
            L_tl2:
            buffer_load_dword v252, v249, {sr(S_DB,4)}, 0 offen
            L_tl3:""")
            self.vm_adj = -2
        if o.get("stamps"): a(f"s_mov_b64 {sr(S_ST,2)}, s[100:101]"); self.stnames.append("start"); self.nst = 1
        self.stamp("xiss")
        a(f"""s_cmp_lt_u32 {sr(T+3)}, {NT}
        s_cselect_b32 {sr(WV)}, 1, 0
        s_mov_b32 {sr(WV+1)}, {sr(T+2)}
        s_mul_i32 {sr(UOFF)}, {sr(S_H)}, 288
        s_cmp_eq_u32 {sr(S_W)}, 0
        s_cselect_b32 {sr(M1)}, 0, {L_DUMP}
        s_cmp_lt_u32 {sr(S_W)}, 3
        s_cselect_b32 {sr(M3)}, {sr(W10)}, {L_DUMP}""")
        half = lambda g_: "s_mov_b32 exec_hi, 0\n" + g_ + "\ns_mov_b32 exec_hi, -1"
        gu = [f"s_add_u32 m0, {sr(W10 if k < 10 else M1)}, {L_WU + 4096*k}\ns_add_u32 {sr(S_CNT)}, {sr(UOFF)}, {4096*k + 288*(256*k//18)}\nbuffer_load_dwordx4 {vr(VU[k])}, {sr(SU,4)}, {sr(S_CNT)} offen lds" for k in range(11)]
        gu[10] = half(gu[10])
        gq = [f"s_add_u32 m0, {sr(W10 if k < 10 else M1)}, {L_WQ + 4096*k}\ns_add_u32 {sr(S_CNT)}, {sr(W10)}, {4096*k}\nbuffer_load_dwordx4 {vr(V_DMA)}, {sr(SQ,4)}, {sr(S_CNT)} offen lds" for k in range(11)]
        gq[10] = half(gq[10])
        gk = [f"s_add_u32 m0, {sr(W10 if k < 10 else M3)}, {L_WK + 4096*k}\ns_mov_b32 {sr(S_CNT)}, {4096*k - 16*(256*k//19)}\nbuffer_load_dwordx4 {vr(VK[k])}, {sr(SK,4)}, {sr(S_CNT)} offen lds" for k in range(11)]
        a(f"s_lshl_b32 {sr(T)}, {sr(S_W)}, 6\nv_add_u32 {vr(t0)}, {sr(T)}, v0\nv_lshlrev_b32 {vr(t1)}, 4, {vr(t0)}")
        self.voff_table(VU, 18, 576, t0)
        npre = o.get("npre", 6)
        a.bg, a.every, a.cnt = gu[:npre], o.get("evpre", 14), 0
        self.voff_table(VK, 19, 288, t0)
        xa0, xa1, xa2 = TM, TM + 1, TM + 2
        a(f"""v_and_b32 {vr(t0)}, 15, v0
        v_lshrrev_b32 {vr(t1)}, 5, v0
        v_lshlrev_b32 {vr(t1)}, 3, {vr(t1)}
        v_xor_b32 {vr(t1)}, {vr(t0)}, {vr(t1)}
        v_lshlrev_b32 {vr(t1)}, 4, {vr(t1)}
        v_lshrrev_b32 {vr(t2)}, 4, v0
        v_lshl_add_u32 {vr(V_KA)}, {vr(t2)}, 9, {vr(t1)}
        v_lshrrev_b32 {vr(t1)}, 3, {vr(t0)}
        v_lshlrev_b32 {vr(t1)}, 1, {vr(t1)}
        v_xor_b32 {vr(t1)}, {vr(t2)}, {vr(t1)}
        v_lshl_add_u32 {vr(t1)}, {vr(t0)}, 2, {vr(t1)}
        v_lshlrev_b32 {vr(V_KA+1)}, 3, {vr(t1)}
        v_lshlrev_b32 {vr(L8)}, 3, v0
        v_lshlrev_b32 {vr(MXR)}, 4, {vr(t0)}
        v_add_u32 {vr(MXR)}, {L_MX}, {vr(MXR)}
        v_add_u32 {vr(MXA)}, {sr(S_W)}, {vr(t2)}
        v_and_b32 {vr(MXA)}, 3, {vr(MXA)}
        v_lshl_add_u32 {vr(MXA)}, {vr(MXA)}, 8, {vr(MXR)}
        s_lshl_b32 {sr(T)}, {sr(S_W)}, 2
        v_add_u32 {vr(MXA)}, {sr(T)}, {vr(MXA)}
        v_mul_u32_u24 {vr(xa2)}, 288, {vr(t0)}
        v_lshl_add_u32 {vr(xa2)}, {vr(t2)}, 3, {vr(xa2)}
        v_add_u32 {vr(xa2)}, {sr(S_LB)}, {vr(xa2)}
        v_and_b32 {vr(t1)}, 1, {vr(t2)}
        v_lshlrev_b32 {vr(t1)}, 5, {vr(t1)}
        v_add_u32 {vr(xa0)}, {vr(xa2)}, {vr(t1)}
        v_xor_b32 {vr(t1)}, 32, {vr(t1)}
        v_add_u32 {vr(xa1)}, {vr(xa2)}, {vr(t1)}
        s_mul_i32 {sr(S_LB)}, {sr(S_W)}, {TILE}
        v_lshrrev_b32 {vr(t0)}, 2, v0
        v_bfe_u32 {vr(t1)}, v0, 1, 1
        v_lshlrev_b32 {vr(t1)}, 3, {vr(t1)}
        v_xor_b32 {vr(t1)}, {vr(t0)}, {vr(t1)}
        v_lshlrev_b32 {vr(t1)}, 4, {vr(t1)}
        v_and_b32 {vr(t2)}, 3, v0
        v_lshl_add_u32 {vr(t1)}, {vr(t2)}, 9, {vr(t1)}
        v_and_b32 {vr(V_VA)}, 1, v0
        v_lshl_add_u32 {vr(t1)}, {vr(V_VA)}, 3, {vr(t1)}
        s_and_b32 {sr(T)}, {sr(S_W)}, 1
        s_lshl_b32 {sr(T)}, {sr(T)}, 12
        s_add_u32 {sr(T+1)}, {sr(T)}, {sr(S_LB)}
        s_xor_b32 {sr(T)}, {sr(T)}, 4096
        s_add_u32 {sr(T)}, {sr(T)}, {sr(S_LB)}
        v_add_u32 {vr(V_VA)}, {sr(T)}, {vr(t1)}
        v_add_u32 {vr(V_VB)}, {sr(T+1)}, {vr(t1)}
        v_xor_b32 {vr(V_VA+1)}, 8, {vr(V_VA)}
        v_xor_b32 {vr(V_VB+1)}, 8, {vr(V_VB)}
        v_lshrrev_b32 {vr(t1)}, 5, v0
        v_lshlrev_b32 {vr(t1)}, 1, {vr(t1)}
        v_xor_b32 {vr(t1)}, {vr(t2)}, {vr(t1)}
        v_lshl_add_u32 {vr(t1)}, {vr(t0)}, 2, {vr(t1)}
        v_lshlrev_b32 {vr(t1)}, 3, {vr(t1)}
        v_add_u32 {vr(V_VR)}, {sr(S_LB)}, {vr(t1)}
        v_add_u32 {vr(V_DMA+1)}, 4096, {vr(V_DMA)}
        v_add_u32 {vr(V_DMA+2)}, 8192, {vr(V_DMA)}""")
        self.tr_addr(TRU, L_WU, True, t0)
        a(f"s_lshl_b32 {sr(T)}, {sr(S_W)}, 6\ns_add_u32 {sr(T)}, {sr(T)}, {L_WQ - L_WU}")
        for k in range(3):
            a(f"v_add_u32 {vr(TRQ+k)}, {sr(T)}, {vr(TRU+k)}\nv_add_u32 {vr(TRQ8+k)}, {L_WQ - L_WU + 256}, {vr(TRU+k)}")
        self.row_addr(RK + 2, L_WK + 8 * 4864, t0)
        a(f"""s_mul_i32 {sr(T)}, {sr(S_W)}, {2*4864}
        s_sub_u32 {sr(T)}, {sr(T)}, {8*4864}
        v_add_u32 {vr(t1)}, {sr(T)}, {vr(RK+2)}
        v_bfe_u32 {vr(t0)}, v0, 2, 1
        v_mul_u32_u24 {vr(t0)}, 4864, {vr(t0)}
        v_add_u32 {vr(RK)}, {vr(t1)}, {vr(t0)}
        v_sub_u32 {vr(RK+1)}, {vr(t1)}, {vr(t0)}""")
        for j in range(4):
            a(f"""s_add_u32 {sr(T)}, {sr(S_W)}, {j}
            s_and_b32 {sr(T)}, {sr(T)}, 3
            s_lshl_b32 {sr(T+1)}, {sr(T)}, 12
            s_add_u32 {sr(T+1)}, {sr(T+1)}, {L_XX}
            v_add_u32 {vr(VS+j)}, {sr(T+1)}, {vr(V_DMA)}
            s_lshl_b32 {sr(T+1)}, {sr(T)}, 9
            s_add_u32 {sr(T+1)}, {sr(T+1)}, {L_XR}
            v_add_u32 {vr(VR4+j)}, {sr(T+1)}, {vr(L8)}
            v_add_u32 {vr(VSW+j)}, {sr(W10)}, {vr(VS+j)}""")
        a(f"""s_sub_u32 {sr(T+2)}, 63, {sr(S_H)}
        s_add_u32 {sr(T+3)}, {sr(S_W)}, 60
        s_cmp_ge_u32 {sr(T+3)}, {sr(T+2)}
        s_cselect_b32 {sr(S_DUM)}, 4, 99
        s_mov_b32 {sr(S_REDO)}, 0
        s_mov_b32 {sr(S_TOFF)}, {sr(S_LB)}
        s_sub_u32 {sr(T)}, {sr(S_TOWN)}, 63
        s_mul_i32 {sr(T+1)}, {sr(S_B)}, {NT}
        s_cmp_ge_i32 {sr(T)}, {sr(T+1)}
        s_cselect_b32 {sr(T)}, 64, 0
        s_lshl_b32 {sr(T+1)}, {sr(S_B)}, 7
        s_add_u32 {sr(PUB)}, {sr(T)}, {sr(T+1)}
        s_cmp_eq_u32 {sr(S_W)}, 2
        s_cselect_b32 {sr(T)}, {sr(S_VAL)}, 0
        s_cmp_eq_u32 {sr(T)}, 1
        s_cselect_b32 {sr(PUB)}, {sr(PUB)}, 0x40000000
        s_add_u32 {sr(T+1)}, {sr(T+1)}, {DB_CB}
        v_mov_b32 {vr(self.VPL)}, {sr(T+1)}""")
        a.flush()
        if o.get("tlb", 0) == 2: tlb()
        self.stamp("pre")
        if o.get("es", 0) == 0: self.epi_setup()
        self.stamp("es")
        nx = self.vm_since(mx) + getattr(self, "vm_adj", 0)
        if o.get("touch", 1):
            a(f"""s_mov_b64 exec, 0
            s_cmp_eq_u32 {sr(S_W)}, 0
            s_cbranch_scc1 L_tr
            s_cmp_eq_u32 {sr(S_W)}, 1
            s_cbranch_scc1 L_t0
            s_cmp_eq_u32 {sr(S_W)}, 2
            s_cbranch_scc1 L_t1
            s_branch L_t2""")
            self.rare()
            a.raw(".p2align 12")
            a.label("L_tr")
            a("s_mov_b64 exec, -1")
        nlate = o.get("nlate", 0)
        for g_ in gu[npre:npre + nlate]: a(g_)
        a(f"s_waitcnt vmcnt({nx + nlate})")
        self.stamp("xarr")
        for s in range(4):
            a(f"ds_read_b64 {vr(XR+4*s,2)}, {vr(xa0)} offset:{64*s}\nds_read_b64 {vr(XR+4*s+2,2)}, {vr(xa1)} offset:{64*s}")
        a(f"ds_read_b64 {vr(XR+16,2)}, {vr(xa2)} offset:256")
        a(f"""s_and_b32 {sr(T)}, {sr(S_W)}, 1
        s_mul_i32 {sr(T+2)}, {sr(S_TOWN)}, {TILE}
        s_cmp_eq_u32 {sr(S_VAL)}, 1
        s_cselect_b32 {sr(T+2)}, {sr(T+2)}, 0x40000000
        s_lshl_b32 {sr(T+3)}, {sr(T)}, 8
        s_add_u32 {sr(T+3)}, {sr(T+3)}, {sr(T+2)}
        s_add_u32 {sr(T+4)}, {sr(T+3)}, 4096
        s_lshl_b32 {sr(T+5)}, {sr(T)}, 9
        s_add_u32 {sr(T+5)}, {sr(T+5)}, {sr(T+2)}
        s_add_u32 {sr(T+5)}, {sr(T+5)}, 8192
        s_waitcnt lgkmcnt(0)""")
        wl = gq + gk
        a.bg, a.every, a.cnt = gu[npre + nlate:] + [wl.pop(0) for _ in range(o.get("nql", 4))], o.get("evln", 10), 0
        self.ln_packed(XR, XF, XA, TM)
        a.flush()
        self.stamp("ln")
        a(f"s_cmp_lt_u32 {sr(S_W)}, 2\ns_cbranch_scc1 L_nop")
        for s in range(4):
            a(f"buffer_store_dwordx4 {vr(XA+4*s,4)}, {vr(V_KA)}, {sr(S_WS,4)}, {sr(T+3+(s>>1))} offen offset:{2048*(s&1)} sc1")
        a(f"buffer_store_dwordx2 {vr(XA+16,2)}, {vr(V_KA+1)}, {sr(S_WS,4)}, {sr(T+5)} offen sc1\ns_waitcnt vmcnt({5 + o.get('nql', 4)})\ns_branch L_bar1")
        a.label("L_nop")
        if o.get("touch", 1):
            a(f"s_mov_b64 exec, 0\ns_cmp_eq_u32 {sr(S_W)}, 0\ns_cbranch_scc1 L_t3\ns_branch L_t4")
            a.label("L_tr2")
            a("s_mov_b64 exec, -1")
        a(f"s_waitcnt vmcnt({o.get('nql', 4)})")
        a.label("L_bar1")
        self.stamp("pub")
        xw = [f"ds_write_b128 {vr(VS)}, {vr(XA+4*s,4)} offset:{1024*s}" for s in range(4)] + [f"ds_write_b64 {vr(VR4)}, {vr(XA+16,2)}"]
        self.stamp("tch")
        PA = 249
        a(f"""v_add_u32 {vr(V_KA)}, {sr(S_LB)}, {vr(V_KA)}
        v_add_u32 {vr(V_KA+1)}, {sr(S_LB)}, {vr(V_KA+1)}
        s_lshl1_add_u32 {sr(T)}, {sr(S_B)}, {sr(S_H)}
        s_lshl_b32 {sr(T)}, {sr(T)}, 6
        s_cmp_eq_u32 {sr(S_W)}, 0
        s_cselect_b32 {sr(T)}, {sr(T)}, 0x40000000
        v_mov_b32 {vr(PA)}, {sr(T)}
        {self.xa_srd()}
        s_waitcnt lgkmcnt(0)""")
        self.stamp("w1")
        a("s_barrier")
        self.stamp("bar1")
        poll = lambda r: f"buffer_load_dword {vr(r)}, {vr(PA)}, {sr(S_DB,4)}, 0 offen sc1"

        def gate(lab, r, word, need, younger):
            a(f"s_mov_b32 {sr(T+2)}, 0\ns_waitcnt vmcnt({younger})")
            a.label(lab)
            a(f"""v_readfirstlane_b32 {sr(T+3)}, {vr(r+word)}
            s_add_u32 {sr(T+2)}, {sr(T+2)}, 1
            s_cmp_ge_u32 {sr(T+3)}, {need}
            s_cbranch_scc1 {lab}_ok
            {poll(r)}
            s_waitcnt vmcnt(0)
            s_cmp_lt_u32 {sr(T+2)}, 0x40000
            s_cbranch_scc1 {lab}""")
            a.label(lab + "_ok")

        H, G_, UG, MS, CL = 16, 52, 208, 110, 104
        nup = o.get("nup", 12)
        at = {o.get("u0", 6) + o.get("usp", 3) * i: wl.pop(0) for i in range(nup)}
        for i in range(5): at[i] = xw[i]
        if o.get("es", 0) == 1:
            n_ = len(a.lines); self.epi_setup()
            el = [l.strip() for l in a.lines[n_:]]; del a.lines[n_:]
            for k in range(5, 42):
                if k in at: continue
                c_ = 0
                while el and c_ < o.get("esn", 2):
                    x = el.pop(0); at[k] = at.get(k, "") + x + "\n"; c_ += 1 if x.startswith("v_") else 0.5
            self.es_left = el
        self.gemm(self.tr_reads(TRU), XA, H, None, at=at)
        if o.get("es", 0) == 1:
            for x in self.es_left: a(x)
        self.stamp("up")
        last = lambda srd: max(i for i, l in enumerate(a.lines) if l.strip().startswith("buffer_load") and sr(srd, 4) in l) + 1
        assert not any(sr(SQ, 4) in x for x in wl)
        a(f"v_mov_b32 {vr(t0)}, {sr(PUB)}\nv_mov_b32 {vr(t1)}, 1\ns_waitcnt vmcnt({self.vm_since(last(SQ))}) lgkmcnt(0)\ns_barrier")
        a(f"s_mov_b64 exec, 1\nbuffer_atomic_add {vr(t1)}, {vr(t0)}, {sr(S_DB,4)}, 0 offen sc1\ns_mov_b64 exec, -1")
        self.stamp("barG")

        def a_tr(t):
            ad, off = (TRQ, 32 * t) if t < 2 else (TRQ8, 0)
            return [f"ds_read_b64_tr_b16 {ar(AQ1+18*t+4*s+2*u,2)}, {vr(ad+u)} offset:{9216*s + off}" for s in range(4) for u in range(2)] + \
                   [f"ds_read_b64_tr_b16 {ar(AQ1+18*t+16,2)}, {vr(ad+2)} offset:{36864 + off}"]

        def a_row(t):
            off = 4864 * t if t < 2 else 0
            return [f"ds_read_b64 {ar(A_Q+18*t+4*s+2*u,2)}, {vr(RK+t)} offset:{off + 64*s + 32*u}" for s in range(4) for u in range(2)] + \
                   [f"ds_read_b64 {ar(A_Q+18*t+16,2)}, {vr(RK+t)} offset:{off + 256}"]
        bq = lambda j, d=0: [f"ds_read_b128 {ar(18*j+4*s,4)}, {vr(VS+j)} offset:{d + 1024*s}" for s in range(4)] + [f"ds_read_b64 {ar(18*j+16,2)}, {vr(VR4+j)} offset:{d}"]

        def post(u, scale, d):
            L = [f"v_mul_f32 {vr(ACC+4*u+i)}, {sr(T+4)}, {vr(ACC+4*u+i)}" for i in range(4)] if scale else []
            L += [f"v_cvt_pk_bf16_f32 {vr(PK + (4*(u&3) + 2*(u>>2) if u < 8 else 16) + h)}, {vr(ACC+4*u+2*h)}, {vr(ACC+4*u+2*h+1)}" for h in range(2)]
            if 4 <= u < 8: L.append(f"ds_write_b128 {vr(VSW+u-4)}, {vr(PK+4*(u-4),4)} offset:{d}")
            if u == 8: L.append(f"ds_write_b64 {vr(VR4)}, {vr(PK+16,2)} offset:{d}")
            return L
        xd = [f"ds_read_b128 {vr(XD+4*j,4)}, {vr(VSW+j)}" for j in range(4)]
        self.gemm_u(AQ1, ar, [("v", XA), ("a", 18), ("a", 36), ("a", 54)], ACC, a_tr, lambda j: bq(j) if j else None, lambda u: post(u, False, L_QD),
                    vm_items=wl, other=xd, vmsp=o.get("vmsp", 3))
        self.stamp("g1")
        for i in range(4): a(f"v_mov_b32 {vr(CL+i)}, -1")
        a(f"s_lshl2_add_u32 {sr(T+2)}, s2, {sr(S_W)}\ns_mul_i32 {sr(T+2)}, {sr(T+2)}, 2560\ns_add_u32 {sr(T+2)}, {sr(T+2)}, {WS_IB}")
        a(f"s_mov_b32 {sr(T+4)}, {f32(LOG2E / 12.0)}\ns_waitcnt vmcnt({self.vm_since(last(SK))}) lgkmcnt(0)\ns_barrier")
        clr = [f"buffer_store_dwordx4 {vr(CL,4)}, {vr(V_DMA)}, {sr(S_WS,4)}, {sr(T+2)} offen sc1",
               f"buffer_store_dwordx4 {vr(CL,4)}, {vr(V_DMA)}, {sr(S_WS,4)}, {sr(T+2)} offen offset:1024 sc1",
               f"buffer_store_dwordx2 {vr(CL,2)}, {vr(L8)}, {sr(S_WS,4)}, {sr(T+2)} offen offset:2048 sc1"]
        self.stamp("bar2")
        self.gemm_u(A_Q, ar, [("a", 18 * j) for j in range(4)], ACC, a_row, lambda j: bq(j, L_QD), lambda u: post(u, True, 0), vm_items=[poll(252)] + clr, vm0=o.get("pg", 4), vmsp=o.get("csp", 8))
        self.stamp("g2")
        p = lambda r: vr(r, 2)
        CC = TM
        for j in range(4): a(f"v_dot2_f32_bf16 {vr(CC+j)}, {vr(PK+4*j)}, {vr(XD+4*j)}, 0")
        for i in range(2): a(f"v_dot2_f32_bf16 {vr(CC)}, {vr(PK+16+i)}, {vr(XA+16+i)}, {vr(CC)}")
        for i in range(1, 4):
            for j in range(4): a(f"v_dot2_f32_bf16 {vr(CC+j)}, {vr(PK+4*j+i)}, {vr(XD+4*j+i)}, {vr(CC+j)}")
        QE = TRQ
        a(f"""s_xor_b32 {sr(T+1)}, {sr(self.NB)}, 1
        v_add_u32 {vr(t0)}, {L_XX}, {vr(V_DMA)}
        v_lshl_add_u32 {vr(QE)}, {sr(T+1)}, 12, {vr(t0)}
        v_lshl_add_u32 {vr(QE+1)}, {sr(self.NB)}, 12, {vr(t0)}""")
        self.treduce(CC)
        a(f"""ds_write_b32 {vr(MXA)}, {vr(CC)}
        v_add_u32 {vr(t0)}, {L_XR}, {vr(L8)}
        v_lshl_add_u32 {vr(QE+2)}, {sr(T+1)}, 9, {vr(t0)}
        v_lshl_add_u32 {vr(QE+3)}, {sr(self.NB)}, 9, {vr(t0)}
        v_lshl_add_u32 {vr(QE+4)}, {sr(T+1)}, 8, {vr(MXR)}
        v_lshl_add_u32 {vr(QE+5)}, {sr(self.NB)}, 8, {vr(MXR)}
        s_sub_u32 {sr(T+5)}, 63, {sr(S_H)}
        s_lshr_b32 {sr(T+6)}, s2, 3
        s_lshl_b32 {sr(T+6)}, {sr(T+6)}, 12
        s_add_u32 {sr(T+6)}, {sr(T+6)}, {sr(W10)}
        s_cmp_lg_u32 {sr(S_W)}, 0
        s_cbranch_scc1 L_ga_ok""")
        gate("L_ga", 252, 0, sr(T + 5), 3)
        a("s_waitcnt lgkmcnt(0)\ns_barrier")
        self.stamp("bar3")
        c1 = -2.0 * math.sqrt(2.0 / math.pi) * LOG2E
        c2 = c1 * 0.044715
        qrd = [f"ds_read_b128 {vr(MS+4*qb,4)}, {vr(QE+4+(qb&1))} offset:{512*(qb>>1)}" for qb in range(4)]
        for qb in range(4):
            qrd += [f"ds_read_b128 {ar(A_Q+18*qb+4*s,4)}, {vr(QE+(qb&1))} offset:{8192*(qb>>1) + 1024*s}" for s in range(4)]
            qrd.append(f"ds_read_b64 {ar(A_Q+18*qb+16,2)}, {vr(QE+2+(qb&1))} offset:{1024*(qb>>1)}")
        tg = self.tile_groups(0) + self.tile_groups(1) + self.tile_groups(2)[:8]
        n0 = o.get("n0", 3)
        for k in range(o.get("tpf", 0)):
            a(f"s_add_u32 {sr(T+7)}, {sr(T+6)}, {o.get('tpf0', 4*TILE) + 131072*k}\nbuffer_load_dwordx4 v[252:255], {vr(V_DMA)}, {sr(S_XA,4)}, {sr(T+7)} offen")
        for x in tg[:n0]: a(x)
        a(f"v_mov_b32 {vr(CC)}, {f32(c1)}\nv_mov_b32 {vr(CC+2)}, {f32(c2)}\nv_mov_b32 {vr(CC+4)}, 1.0")
        nq1, nt1 = o.get("nq1", 8), o.get("nt1", 5)
        bgl = []
        for i in range(max(nq1 // 2, nt1)):
            if 2 * i < nq1: bgl.append(qrd[2 * i] + "\n" + qrd[2 * i + 1])
            if i < nt1: bgl.append(tg[n0 + i])
        tg, qrd = tg[n0 + nt1:], qrd[nq1:]
        a.bg, a.every, a.cnt = bgl, 54 // (len(bgl) + 1), 0
        for i in range(18): a(f"v_pk_mul_f32 {p(G_+2*i)}, {p(H+2*i)}, {p(H+2*i)}")
        for i in range(18): a(f"v_pk_fma_f32 {p(G_+2*i)}, {p(G_+2*i)}, {p(CC+2)}, {p(CC)} op_sel_hi:[1,0,0]")
        for i in range(18): a(f"v_pk_mul_f32 {p(G_+2*i)}, {p(G_+2*i)}, {p(H+2*i)}")
        a.flush()
        self.stamp("ge1")
        esp = o.get("esp", 4)
        for i in range(36):
            a(f"v_exp_f32 {vr(G_+i)}, {vr(G_+i)}")
            if i % esp == 1 and tg: a(tg.pop(0))
            if i % 8 == 3 and qrd: a(qrd.pop(0)); a(qrd.pop(0))
        self.stamp("ge2")
        for i in range(18): a(f"v_pk_add_f32 {p(G_+2*i)}, {p(G_+2*i)}, {p(CC+4)} op_sel_hi:[1,0]")
        for i in range(36):
            a(f"v_rcp_f32 {vr(G_+i)}, {vr(G_+i)}")
            if i % esp == 1 and tg: a(tg.pop(0))
            if i % 8 == 3 and qrd: a(qrd.pop(0)); a(qrd.pop(0))
        assert not tg and not qrd
        idx = [i for i, l in enumerate(a.lines) if l.strip().startswith("buffer_load") and l.rstrip().endswith("lds")]
        m_t0, m_t1 = idx[-18] + 1, idx[-9] + 1
        for i in range(18): a(f"v_pk_mul_f32 {p(H+2*i)}, {p(G_+2*i)}, {p(H+2*i)}")
        a(f"""s_mul_i32 {sr(T)}, {sr(WV+1)}, {BLK}
        s_cmp_eq_u32 {sr(S_H)}, 1
        s_cbranch_scc1 L_ln2
        s_add_u32 {sr(T)}, {sr(T)}, {WS_U}""")
        for i in range(18): a(f"v_cvt_pk_bf16_f32 {vr(UG+i)}, {vr(H+2*i)}, {vr(H+2*i+1)}")
        a("s_branch L_ug")
        a.label("L_ln2")
        a(f"s_add_u32 {sr(T)}, {sr(T)}, {WS_G}")
        self.ln_f32(H, UG, TM)
        a.label("L_ug")
        self.stamp("ge3")
        a(f"""s_cmp_eq_u32 {sr(WV)}, 1
        s_cselect_b32 {sr(S_UG)}, {sr(T)}, 0x40000000
        s_waitcnt vmcnt({self.vm_since(m_t0)}) lgkmcnt(0)""")
        for x in self.k_reads(0, V_V): a(x)
        self.ugs = [f"buffer_store_dwordx4 {vr(UG+4*s,4)}, {vr(V_DMA)}, {sr(S_WS,4)}, {sr(S_UG)} offen offset:{1024*s} sc1" for s in range(4)]
        self.ugs.append(f"buffer_store_dwordx2 {vr(UG+16,2)}, {vr(self.VL8)}, {sr(S_WS,4)}, {sr(S_UG)} offen sc1")
        for qb in range(4): a(f"v_pk_add_f32 {p(MS+4*qb)}, {p(MS+4*qb)}, {p(MS+4*qb+2)} neg_lo:[1,1] neg_hi:[1,1]")
        for qb in range(4): a(f"v_add_f32 {vr(self.MK+qb)}, {vr(MS+4*qb)}, {vr(MS+4*qb+1)}")
        a(f"v_lshlrev_b32 {vr(t1)}, 8, v0\nv_lshlrev_b32 v231, 2, v0\nv_add_u32 v231, {L_PC}, v231\nds_write_b32 v231, {vr(t1)}")
        self.loop_init(False)
        self.n_t1 = self.vm_since(m_t1)
        self.stamp("ug")

    def loop_init(self, part):
        a = self.a
        if part:
            for qb in range(4):
                for i in range(4): a(f"v_mov_b32 {vr(V_CI+4*qb+i)}, {vr(self.MK+qb)}")
            return
        for k in range(7): a(f"v_add_u32 {vr(V_HI+k)}, {2*SLOT}, {vr(V_KA+k if k < 5 else V_VB+k-5)}")
        a(f"v_add_u32 {vr(self.VS0)}, {sr(S_LB)}, {vr(V_DMA)}\nv_add_u32 {vr(self.VS0R)}, {sr(S_LB)}, {vr(self.VL8)}\ns_mov_b32 {sr(S_CNT)}, 0\ns_mov_b32 {sr(S_INC)}, {4*TILE}")
        for i in range(4): a(f"v_mov_b32 {vr(V_L+i)}, 0")
        a(f"v_mov_b32 {vr(self.VPL+1)}, 1\nv_lshlrev_b32 v231, 2, v0\nv_add_u32 v231, {L_PC}, v231")

    def head(self):
        a, o = self.a, self.o
        a.label("L_go")
        self.loop_init(True)
        a("s_waitcnt lgkmcnt(0)\ns_barrier")
        self.stamp("bar5")
        base = self.qk_mfmas(0)
        pick = lambda s_, kb, qb: base[8 * s_ + 4 * kb + qb].replace(vr(V_K + 8 * s_ + 4 * kb, 4) + ",", vr(V_V + 8 * s_ + 4 * kb, 4) + ",").replace(vr(V_K + 32 + 2 * kb, 2) + ",", vr(V_V + 32 + 2 * kb, 2) + ",")
        mf, fin = [], {}
        for qb, s_ in [(0, 0), (0, 1), (0, 2), (0, 3), (1, 0), (1, 1), (0, 4), (1, 2), (1, 3), (2, 0), (2, 1), (1, 4), (2, 2), (2, 3), (3, 0), (3, 1), (2, 4),
                       (3, 2), (3, 3), (3, 4)]:
            for kb in range(2):
                fin[qb, kb] = len(mf)
                mf.append(("s_nop 3\n" if (qb, s_, kb) == (3, 4, 0) else "") + pick(s_, kb, qb))
        enew = [e[1] for g in range(40, 76) for e in self.gaps[g] if e[0] == "E"]
        items = self.e_items(0, enew, lambda qb, j: 0, lambda qb: 999)
        for it, e in zip(items, enew):
            if e[0] == "e": it["am"] = fin[e[1], e[2] // 4]
        dm = []
        for k, (slot, j) in enumerate([(2, 8)] + [(3, j) for j in range(9)]):
            g_ = 1 + o.get("hsp", 4) * k
            if j % 4 == 0: dm.append(dict(t=f"s_add_u32 m0, {sr(S_LB)}, {slot*SLOT + 4096*(j//4)}", c=0, lo=g_ - 1, hi=g_ - 1))
            dm.append(dict(t=f"buffer_load_dwordx4 {vr(V_DMA + j//4)}, {sr(S_XA,4)}, {sr(S_TOFF)} offen offset:{1024*(j%4)} lds", c=8, lo=g_, hi=g_))
            if j == 8: dm.append(dict(t=f"s_add_u32 {sr(S_TOFF)}, {sr(S_TOFF)}, {4*TILE}", c=0, lo=g_ + 1, hi=g_ + 1))
        nh = o.get("ugh", 2)
        for k in range(nh): dm.append(dict(t=self.ugs[k], c=8, lo=3 + 16 * k, hi=3 + 16 * k))
        a(f"s_waitcnt vmcnt({self.n_t1})")
        left = self.pack(mf, items + dm + [dict(t=x, c=4, lo=i // 2, nds=2) for i, x in enumerate(self.k_reads(1))])
        print("head overflow", self.over, "left", len(left))
        left.sort(key=lambda x: not x.startswith("v_exp"))
        last = a.lines[-1].strip()
        for x in left:
            if last.startswith("v_exp") and not x.startswith("v_exp") and (last.split()[1].rstrip(",") + ",") in (x + ","): a("s_nop 0")
            a(x); last = x
        a("s_waitcnt lgkmcnt(0)")

    def tile_groups(self, slot):
        out = []
        for j in range(9):
            g = ""
            if j % 4 == 0: g = f"s_add_u32 m0, {sr(S_LB)}, {slot*SLOT + 4096*(j//4)}\ns_nop 0\n"
            g += f"buffer_load_dwordx4 {vr(V_DMA + j//4)}, {sr(S_XA,4)}, {sr(S_TOFF)} offen offset:{1024*(j%4)} lds"
            if j == 8: g += f"\ns_add_u32 {sr(S_TOFF)}, {sr(S_TOFF)}, {4*TILE}"
            out.append(g)
        return out

    def first_tiles(self):
        pass

    def wfuse(self):
        a = self.a
        BF, ACC, AF, TM, AD = 88, 108, 144, 208, 240
        LA, LB_, LM = 0, 44032, 88064
        T = S_T
        a.label("L_wfuse")
        if self.o.get("hlast", 1): a(f"s_cmp_ge_u32 s2, {NWG}\ns_cbranch_scc1 L_end\ns_sub_u32 s2, s2, {NWG - NH}")
        a(f"v_lshrrev_b32 v1, 6, v0\nv_and_b32 v0, 63, v0\nv_readfirstlane_b32 {sr(S_W)}, v1\nv_lshlrev_b32 {vr(V_DMA)}, 4, v0\ns_waitcnt lgkmcnt(0)")
        self.srd(S_DB, 76, 77, 256)
        self.srd(S_WS, 78, 79, WS_END)
        self.wf0 = 0
        self.srd(S_X, 72, 73, 82944)
        self.srd(S_W2, 62, 63, 41472)
        a(f"""s_cmp_eq_u32 s2, {self.wf0}
        s_cselect_b32 {sr(S_W1)}, s64, s70
        s_cselect_b32 {sr(S_W1+1)}, s65, s71
        s_mov_b32 {sr(S_W1+2)}, 41472
        s_mov_b32 {sr(S_W1+3)}, 0x20000
        s_cselect_b32 {sr(T+4)}, 0, 41472""")
        self.dma_rows([(S_W1, "0", LA), (S_W2, "0", LB_)], 19, 288, TM + 4, TM + 5, 11, 3, "L_wf1")
        a(f"s_lshl_b32 {sr(T)}, {sr(S_W)}, 10\ns_add_u32 {sr(T+2)}, {sr(T)}, {sr(T+4)}")
        for k in range(11):
            if k == 10: a(f"s_cmp_ge_u32 {sr(S_W)}, 1\ns_cbranch_scc1 L_wf2")
            a(f"s_add_u32 m0, {sr(T)}, {LM + 4096*k}\ns_add_u32 {sr(T+1)}, {sr(T+2)}, {4096*k}")
            a(f"buffer_load_dwordx4 {vr(V_DMA)}, {sr(S_X,4)}, {sr(T+1)} offen lds")
        a.label("L_wf2")
        self.srd(S_DW, 68, 69, 864)
        a(f"""v_and_b32 {vr(TM)}, 15, v0
        v_lshlrev_b32 {vr(TM+2)}, 4, {vr(TM)}
        v_lshlrev_b32 {vr(TM)}, 1, {vr(TM)}
        v_bfe_u32 {vr(TM+3)}, v0, 4, 1
        v_lshl_add_u32 {vr(TM+1)}, {vr(TM+3)}, 7, {vr(TM)}
        v_lshl_add_u32 {vr(TM+2)}, {vr(TM+3)}, 11, {vr(TM+2)}
        v_and_b32 {vr(TM+3)}, 1, v0
        v_lshlrev_b32 {vr(TM+3)}, 4, {vr(TM+3)}
        v_bfe_i32 {vr(TM+4)}, v0, 1, 1
        v_not_b32 {vr(TM+5)}, {vr(TM+4)}""")
        for k in range(3):
            for i in range(5): a(f"buffer_load_ushort {vr(16+5*k+i)}, {vr(TM+1 if i < 4 else TM)}, {sr(S_DW,4)}, 0 offen offset:{288*k + (32*i if i < 4 else 256)}")
        a(f"s_mov_b32 {sr(T+1)}, {WS_DWF}\ns_waitcnt vmcnt(0)")
        for f in range(15):
            a(f"v_lshlrev_b32 {vr(16+f)}, {vr(TM+3)}, {vr(16+f)}\nv_and_b32 {vr(32+2*f)}, {vr(TM+5)}, {vr(16+f)}\nv_and_b32 {vr(33+2*f)}, {vr(TM+4)}, {vr(16+f)}")
        for r_ in range(8): a(f"buffer_store_dwordx{4 if r_ < 7 else 2} {vr(32+4*r_, 4 if r_ < 7 else 2)}, {vr(TM+2)}, {sr(S_WS,4)}, {sr(T+1)} offen offset:{256*r_} sc1")
        self.tr_addr(AD, LM, False, TM + 8)
        self.row_addr(AD + 3, LA, TM + 8)
        a(f"v_add_u32 {vr(AD+5)}, {LB_}, {vr(AD+3)}")
        a(f"v_lshlrev_b32 {vr(AD+4)}, 3, v0")
        a(f"""s_lshr_b32 {sr(T)}, {sr(S_W)}, 1
        s_lshl_b32 {sr(T)}, {sr(T)}, 6
        s_and_b32 {sr(T+1)}, {sr(S_W)}, 1
        s_lshl_b32 {sr(T+1)}, {sr(T+1)}, 3
        s_add_u32 {sr(T)}, {sr(T)}, {sr(T+1)}
        v_and_b32 {vr(AD+6)}, 3, v0
        v_lshlrev_b32 {vr(AD+6)}, 3, {vr(AD+6)}
        v_add_u32 {vr(AD+7)}, {sr(T)}, {vr(AD+6)}""")
        for k in range(3): a(f"v_add_u32 {vr(AD+k)}, {vr(AD+7)}, {vr(AD+k)}")
        a(f"s_mov_b32 {sr(S_CNT)}, {sr(S_W)}")
        a("s_waitcnt vmcnt(0)\ns_barrier")
        a.label("L_wfl")
        for s in self.tr_reads(AD, vr)(0, BF): a(s)
        a("s_waitcnt lgkmcnt(0)")
        self.gemm(self.row_reads(AD + 3), BF, ACC, AF)
        for i in range(18): a(f"v_cvt_pk_bf16_f32 {vr(BF+i)}, {vr(ACC+2*i)}, {vr(ACC+2*i+1)}")
        a(f"s_cmp_eq_u32 s2, {self.wf0}\ns_cbranch_scc0 L_wf3")
        self.gemm(self.row_reads(AD + 5), BF, ACC, AF)
        for i in range(18): a(f"v_cvt_pk_bf16_f32 {vr(BF+i)}, {vr(ACC+2*i)}, {vr(ACC+2*i+1)}")
        a.label("L_wf3")
        a(f"""s_mul_i32 {sr(T)}, {sr(S_CNT)}, {BLK}
        s_add_u32 {sr(T)}, {sr(T)}, {sr(T+4)}
        s_add_u32 {sr(T)}, {sr(T)}, {WS_WF}
        s_add_u32 {sr(T+1)}, {sr(T)}, 4096""")
        self.store_block(BF, V_DMA, AD + 4, S_WS, T, T + 1, "sc1")
        for k in range(3): a(f"v_add_u32 {vr(AD+k)}, 128, {vr(AD+k)}")
        a(f"s_add_u32 {sr(S_CNT)}, {sr(S_CNT)}, 4\ns_cmp_lt_u32 {sr(S_CNT)}, 8\ns_cbranch_scc1 L_wfl")
        for k in range(3): a(f"v_sub_u32 {vr(AD+k)}, {vr(AD+k)}, {vr(AD+6)}")
        a(f"s_cmp_eq_u32 {sr(S_CNT)}, 8\ns_cbranch_scc1 L_wfl")
        a(f"""s_waitcnt vmcnt(0)
        s_barrier
        s_cmp_lg_u32 {sr(S_W)}, 0
        s_cbranch_scc1 L_end
        s_mov_b64 exec, 1
        v_mov_b32 {vr(TM)}, 1
        v_mov_b32 {vr(TM+1)}, {DB_CW}
        buffer_atomic_add {vr(TM)}, {vr(TM+1)}, {sr(S_DB,4)}, 0 offen sc1
        v_mov_b32 {vr(TM+1)}, {DB_CW + 128}
        buffer_atomic_add {vr(TM)}, {vr(TM+1)}, {sr(S_DB,4)}, 0 offen sc1
        s_endpgm""")

    def dump_stamps(self):
        a = self.a
        if self.o.get("echo"):
            if self.o["echo"][0] == "skew":
                a(f"v_mov_b32 v16, 4\nbuffer_load_dword v17, v16, {sr(S_DB,4)}, 0 offen sc1\ns_waitcnt vmcnt(0)\nv_readfirstlane_b32 s98, v17\ns_not_b32 s98, s98")
                x, y = 98, S_ST + 2 * self.stnames.index(self.o["echo"][1])
            else:
                x, y = [S_ST + 2 * self.stnames.index(n) for n in self.o["echo"]]
            lo, hi = self.o.get("echo_ids", (0, 999))
            a(f"""s_cmp_eq_u32 {sr(S_VAL)}, 0
            s_cbranch_scc1 L_end
            s_cmp_lt_u32 s2, {lo}
            s_cbranch_scc1 L_end
            s_cmp_ge_u32 s2, {hi}
            s_cbranch_scc1 L_end
            s_and_b32 s6, s2, {self.o.get("echo_m", 0)}
            s_cmp_lg_u32 s6, {self.o.get("echo_v", 0)}
            s_cbranch_scc1 L_end
            s_memrealtime s[4:5]
            s_waitcnt lgkmcnt(0)
            s_sub_u32 s6, {sr(y)}, {sr(x)}
            s_mul_i32 s6, s6, {self.o.get("echo_mul", 1)}
            s_lshr_b32 s6, s6, {self.o.get("echo_shr", 0)}
            s_add_u32 s6, s6, {self.o.get("echo_add", 0)}
            s_add_u32 s6, s6, s4""")
            a.label("L_echo")
            a("s_memrealtime s[4:5]\ns_waitcnt lgkmcnt(0)\ns_sub_u32 s7, s6, s4\ns_cmp_gt_i32 s7, 0\ns_cbranch_scc1 L_echo")
            return
        if self.o.get("dbgst"):
            a("s_waitcnt vmcnt(0)")
            self.stamp("done")
            a("s_waitcnt lgkmcnt(0)\ns_mov_b64 exec, 1")
            slots = [1, 2, 3, 4, 5, 6, 7, 9, 11, 12, 13, 14, 15]
            a(f"s_not_b32 {sr(S_T)}, {sr(S_ST)}\nv_mov_b32 v16, {sr(S_T)}\nv_mov_b32 v17, 4\nbuffer_atomic_umax v16, v17, {sr(S_DB,4)}, 0 offen sc1")
            for i in range(min(self.nst, 12)):
                a(f"v_mov_b32 v{18+2*i}, {sr(S_ST+2*i)}\nv_mov_b32 v{19+2*i}, {4*slots[i+1]}\nbuffer_atomic_umax v{18+2*i}, v{19+2*i}, {sr(S_DB,4)}, 0 offen sc1")
            return
        if not self.o.get("stamps"): return
        T = S_T
        a(f"""s_waitcnt lgkmcnt(0)
        s_lshl_b32 {sr(T)}, s2, 2
        s_add_u32 {sr(T)}, {sr(T)}, {sr(S_W)}
        s_lshl_b32 {sr(T)}, {sr(T)}, 7
        s_add_u32 {sr(T)}, {sr(T)}, {WS_DBG}
        v_mov_b32 v1, 0""")
        for i in range(26): a(f"v_mov_b32 {vr(16+i)}, {sr(S_ST+i)}")
        for i in range(7): a(f"buffer_store_dwordx4 {vr(16+4*i,4)}, v1, {sr(S_WS,4)}, {sr(T)} offen offset:{16*i}")

    def build(self):
        a = self.a
        self.stnames = []
        a.raw(f"; @launch grid=({NWG},1,1) block=(256,1,1) lds={LDS_TOTAL}")
        a.raw('.amdgcn_target "amdgcn-amd-amdhsa--gfx950"')
        a.raw(".text")
        a.raw(f".globl {NAME}")
        a.raw(".p2align 12")
        self.entry()
        self.phase_a()
        self.rest()
        a.label("L_fin")
        self.dump_stamps()
        a.label("L_end")
        a("s_endpgm")
        self.poll2()
        if not self.o.get("touch", 1): self.rare()
        a.label("L_dummy")
        self.fallback()
        self.wfuse()
        a.raw('.section .rodata,"a"')
        a.raw(".p2align 6")
        a.raw(kernel_desc(NAME, 512, 102, 256))
        return a.text()

    def S(self, buf, qb, i=0): return V_S + buf * 32 + qb * 8 + i
    def P(self, buf, qb, i=0): return V_P + buf * 16 + qb * 4 + i

    def k_reads(self, slot, V_K=V_K):
        ka, so = (V_KA, slot * SLOT) if slot < 2 else (V_HI, (slot - 2) * SLOT)
        out = [f"ds_read_b128 {vr(V_K+8*s+4*kb,4)}, {vr(ka)} offset:{so + 2048*s + 256*kb}" for s in range(4) for kb in range(2)]
        out += [f"ds_read_b64 {vr(V_K+32+2*kb,2)}, {vr(ka+1)} offset:{so + 8192 + 512*kb}" for kb in range(2)]
        return out

    def v_reads(self, slot, dst=V_V):
        (va, vr_, vb), so = ((V_VA, V_VR, V_VB), slot * SLOT) if slot < 2 else ((V_HI + 2, V_HI + 4, V_HI + 5), (slot - 2) * SLOT)
        out = []
        for T in range(9):
            for u in range(2):
                if T < 8: out.append(f"ds_read_b64_tr_b16 {vr(dst+4*T+2*u,2)}, {vr((va if T < 4 else vb)+(T&1))} offset:{so + 2048*((T>>1)&1) + 256*u}")
                else: out.append(f"ds_read_b64_tr_b16 {vr(dst+4*T+2*u,2)}, {vr(vr_)} offset:{so + 8192 + 512*u}")
        return out

    def qk_mfmas(self, buf, czero=False):
        out = []
        for s in range(5):
            for kb in range(2):
                for qb in range(4):
                    d = vr(self.S(buf, qb, 4 * kb), 4)
                    c = ("0" if czero else vr(V_CI + 4 * qb, 4)) if s == 0 else d
                    if s < 4: out.append(f"v_mfma_f32_16x16x32_bf16 {d}, {vr(V_K+8*s+4*kb,4)}, {ar(A_Q+18*qb+4*s,4)}, {c}")
                    else: out.append(f"v_mfma_f32_16x16x16_bf16 {d}, {vr(V_K+32+2*kb,2)}, {ar(A_Q+18*qb+16,2)}, {c}")
        return out

    def pv_mfmas(self, buf, czero=False):
        out = []
        for T in range(9):
            for qb in range(4):
                o = ar(A_O + 36 * qb + 4 * T, 4)
                out.append(f"v_mfma_f32_16x16x32_bf16 {o}, {vr(V_V+4*T,4)}, {vr(self.P(buf,qb),4)}, {'0' if czero else o}")
        return out

    def plan(self):
        o = self.o
        n = 76
        fixed = [None] * n
        for i, g in enumerate(range(1, 36, 2)): fixed[g] = ("V", i)
        for i, g in enumerate([41, 44, 47, 50, 53, 56, 59, 62, 65, 68]): fixed[g] = ("K", i)
        for i, g in enumerate([42, 46, 49, 52, 55, 58, 61, 64, 67]): fixed[g] = ("D", i)
        exps = [(qb, j) for qb in range(4) for j in range(8)]
        start = 40
        order = [(start + k) % n for k in range(n)]
        free_idx = [k for k, g in enumerate(order) if fixed[g] is None]
        nsm = len(free_idx) - 32
        cand = free_idx[6:-2]
        sm_set = set(free_idx[-2:]) | {cand[int((i + 0.5) * len(cand) / (nsm - 2))] for i in range(nsm - 2)}
        nds = sum(1 for f in fixed if f is not None and f[0] != "D")
        over = 48 - nds - 2 * nsm
        ocand = [k for k, g in enumerate(order) if k >= 20 and (fixed[g] is None or fixed[g][0] != "D")]
        o_set = {ocand[int((i + 0.5) * len(ocand) / over)] for i in range(over)}
        gaps = [[] for _ in range(n)]
        small, pend, ei = [], [], 0
        for k, g in enumerate(order):
            new = (start + k) < n
            small.extend(pend); pend = []
            small.sort(key=lambda t: 0 if t[0] == "c" else 1)
            f = fixed[g]
            want = 0
            if f is not None:
                gaps[g].append((f[0], f[1], None))
                if f[0] == "D": continue
                want = 1
            elif k in sm_set: want = 2
            else:
                qb, j = exps[ei]; ei += 1
                gaps[g].append(("E", ("e", qb, j), new))
                if j & 1: pend.append(("c", qb, j // 2))
                pend.append(("a", qb, j))
            if k in o_set: want += 1
            if k == n - 1: want = 99
            for _ in range(want):
                if small: gaps[g].append(("E", small.pop(0), new))
        assert not small and not pend and ei == 32
        self.gaps = gaps

    def pack(self, mf, items):
        a = self.a
        where, order, done, nvm, mpos = {}, [], 0, 0, []
        isds = lambda it: "ds_" in it["t"]
        self.over = 0
        for g, m in enumerate(mf):
            assert not any(it.get("need", 999) <= g and i not in where for i, it in enumerate(items)), g
            idx = [k for k, n_ in enumerate(order) if n_ <= g]
            if idx and max(idx) + 1 > done:
                a(f"s_waitcnt lgkmcnt({min(15, len(order) - 1 - max(idx))})"); done = max(idx) + 1
            if m.startswith("@W"):
                w_, m = m.split("\n", 1)
                a(f"s_waitcnt lgkmcnt({min(15, int(w_[2:]) + len(order))})")
            a(m)
            mpos.append(len(a.lines))
            cap, pick = 8, []
            for phase in (0, 1):
                for i, it in enumerate(items):
                    if i in where or it.get("lo", 0) > g: continue
                    if "am" in it and (it["am"] >= g or len(a.lines) - mpos[it["am"]] < 8): continue
                    d = it.get("dep")
                    if d is not None and not all(where.get(x, 999) < g for x in d): continue
                    if (phase == 0 and it.get("hi", 999) <= g) or (phase == 1 and it["c"] <= cap):
                        if it["t"].startswith("buffer") and pick and any(items[x]["c"] for x in pick) and phase == 1: continue
                        if isds(it) and sum(isds(items[x]) for x in pick) >= it.get("nds", 1) and phase == 1: continue
                        pick.append(i); where[i] = g; cap -= it["c"]
            key = lambda i: 0 if items[i]["c"] == 0 else 1 if isds(items[i]) else 2 if items[i]["t"].startswith("buffer") else 3
            for i in sorted(pick, key=key):
                a(items[i]["t"].replace("@VM", f"s_waitcnt vmcnt({nvm})"))
                nvm += items[i]["t"].startswith("buffer")
                if isds(items[i]): order.append(items[i].get("need", 999))
            self.over += max(0, -cap)
        return [it["t"] for i, it in enumerate(items) if i not in where]

    def e_items(self, buf, lst, lo, hi):
        items, idx = [], {}
        for it in lst:
            kind, qb, j = it
            d = dict(t=self.etext(buf, it), c=8 if kind == "e" else 4)
            if kind == "e": d["lo"] = lo(qb, j); d["hi"] = hi(qb) - 2 - (7 - j)
            else:
                need = [("e", qb, j)] if kind == "a" else [("e", qb, 2 * j), ("e", qb, 2 * j + 1)]
                d["dep"] = [idx[x] for x in need if x in idx]
                if kind == "c": d["hi"] = hi(qb) - (3 - j) // 2
            idx[it] = len(items); items.append(d)
        return items

    def etext(self, buf, it):
        kind, qb, j = it
        s = self.S(buf, qb)
        if kind == "e": return f"v_exp_f32 {vr(s+j)}, {vr(s+j)}"
        if kind == "a": return f"v_add_f32 {vr(V_L+qb)}, {vr(V_L+qb)}, {vr(s+j)}"
        return f"v_cvt_pk_bf16_f32 {vr(self.P(buf, qb, j))}, {vr(s+2*j)}, {vr(s+2*j+1)}"

    def period(self, p, qk=True, pv=True, e_old=True, e_new=True, kread=True, vread=True, dma=True, extra={}, dsub=None, ksub=None, vm=9, halves=(0, 1), inc=None):
        a = self.a
        bn, bo = (p + 1) & 1, p & 1
        mf = self.qk_mfmas(bn) + self.pv_mfmas(bo, czero=(p == 0))
        kr, vrd = self.k_reads((p + 2) % RING), self.v_reads(p % RING)
        slot = p % RING
        n = 76
        sc = [[] for _ in range(n)]
        dgs = [g for g in range(n) if any(e[0] == "D" for e in self.gaps[g])]
        if dma:
            for j, g in enumerate(dgs):
                if j % 4 == 0: sc[g - 1].append(f"s_add_u32 m0, {sr(S_LB)}, {slot*SLOT + 4096*(j//4)}")
            sc[dgs[-1] + 1].append(f"s_add_u32 {sr(S_TOFF)}, {sr(S_TOFF)}, {inc or 4*TILE}")
        w = []
        if kread: w.append(f"vmcnt({vm})")
        if pv: w.append("lgkmcnt(0)")
        if w: sc[39].append("s_waitcnt " + " ".join(w))
        if kread: sc[75].append("s_waitcnt lgkmcnt(0)")
        for half in halves:
            rng = range(0, 40) if half == 0 else range(40, 76)
            on = qk if half == 0 else pv
            if not on:
                ds, mem, val, post = [], [], [], []
                for g in rng:
                    for s_ in sc[g]:
                        (post if s_.startswith("s_waitcnt") else mem).append(s_)
                    if g in extra: mem.append(extra[g])
                    for kind, d, new in self.gaps[g]:
                        if kind == "V" and vread: ds.append(vrd[d])
                        elif kind == "K" and kread: ds.append(kr[d])
                        elif kind == "D" and dma: mem.append(f"buffer_load_dwordx4 {vr(V_DMA + d//4)}, {sr(S_XA,4)}, {sr(S_TOFF)} offen offset:{1024*(d%4)} lds")
                        elif kind == "E" and ((new and e_new) or (not new and e_old)): val.append((d, self.etext(bn if new else bo, d)))
                if half == 1: a("s_nop 3")
                seq, pend = [], list(val)
                while pend:
                    k = 0
                    if seq and seq[-1][0][0] == "e":
                        le = seq[-1][0]
                        dep = lambda it: it[0][1] == le[1] and ((it[0][0] == "a" and it[0][2] == le[2]) or (it[0][0] == "c" and it[0][2] == le[2] // 2))
                        have = {x[0] for x in seq}
                        ok = lambda it: it[0][0] == "e" or (("e", it[0][1], it[0][2]) in have if it[0][0] == "a" else (("e", it[0][1], 2*it[0][2]+1) in have)) or not any(x[0][0] == "e" and x[0][1] == it[0][1] and (x[0][2] == it[0][2] if it[0][0] == "a" else x[0][2] // 2 == it[0][2]) for x in pend)
                        while k < len(pend) and (dep(pend[k]) or not ok(pend[k])): k += 1
                        if k == len(pend): seq.append((("n", 0, 0), "s_nop 0")); k = 0
                    seq.append(pend.pop(k))
                step = max(1, len(seq) // (len(mem) + len(ds) + 1))
                allm = ds + mem
                for x in allm[:6]: a(x)
                allm = allm[6:]
                for i_, (d, t_) in enumerate(seq):
                    a(t_)
                    if allm and i_ % step == step - 1:
                        x = allm.pop(0); a(x)
                        if x.startswith("s_add_u32 m0"): a("s_nop 0")
                for x in allm:
                    a(x)
                    if x.startswith("s_add_u32 m0"): a("s_nop 0")
                for x in post: a(x)
                if half == 0: a("s_nop 1")
                continue
            for g in rng:
                a(mf[g])
                for s_ in sc[g]: a(s_)
                if g in extra: a(extra[g])
                for kind, d, new in self.gaps[g]:
                    if kind == "V":
                        if vread: a(vrd[d])
                    elif kind == "K":
                        if kread: a(kr[d])
                        elif ksub: a(ksub.pop(0))
                    elif kind == "D":
                        if dma: a(f"buffer_load_dwordx4 {vr(V_DMA + d//4)}, {sr(S_XA,4)}, {sr(S_TOFF)} offen offset:{1024*(d%4)} lds")
                        elif dsub: a(dsub.pop(0))
                    elif (new and e_new) or (not new and e_old):
                        a(self.etext(bn if new else bo, d))

    MK, VO, VO8, GA, VS0, VS0R, VDW, VLW, VL8, VST, VPL = 232, 236, 9, 238, 250, 251, 244, 245, 246, 247, 248
    NB, PT, E_U, E_G, RS3, E_COL, RS1, RS2, MP1 = 3, 4, 5, 6, 7, 43, 36, 37, 38
    G0, GM, GP, U, DWT = 16, 26, 36, 80, (90, 252, 96, 100, 112, 116, 104, 94)
    XRS = (192, 196, 46)
    frag = staticmethod(lambda f, b: [(f, b + 4 * s) for s in range(5)])
    WD = [[("a", 216 + 4 * s) for s in range(5)], [("a", 234 + 4 * s) for s in range(5)], [("v", 208 + 4 * s) for s in range(5)]]
    WO = [[("a", 4 * s) for s in range(5)], [("a", 18 + 4 * s) for s in range(5)], [("a", 36), ("a", 40), ("a", 44), ("a", 48), ("a", 252)]]
    X1B = 98304
    X2O = L_SP - X1B
    L_L = L_SP + 9216

    def epi_setup(self):
        a = self.a
        T = S_T
        NB, PT, VO, GA = self.NB, self.PT, self.VO, self.GA
        r, g4, x, y, big, r0 = 52, 53, 54, 55, 56, 57
        a(f"""s_lshr_b32 {sr(NB)}, {sr(S_W)}, 1
        s_and_b32 {sr(PT)}, {sr(S_W)}, 1
        v_and_b32 {vr(r0)}, 15, v0
        v_lshrrev_b32 {vr(g4)}, 4, v0
        v_mul_u32_u24 {vr(x)}, 288, {vr(r0)}
        v_mov_b32 {vr(big)}, 0x40000000
        s_lshl_b32 {sr(T)}, {sr(S_TOWN)}, 1
        s_add_u32 {sr(T)}, {sr(T)}, {sr(NB)}
        s_lshl_b32 {sr(T)}, {sr(T)}, 4
        v_add_u32 {vr(r)}, {sr(T)}, {vr(r0)}
        s_mul_i32 {sr(T+1)}, {sr(S_TOWN)}, {TILE}
        s_mul_i32 {sr(T+2)}, {sr(PT)}, {BLK}
        v_add_u32 {vr(x)}, {sr(T+1)}, {vr(x)}
        s_sub_u32 {sr(T+3)}, {BLK}, {sr(T+2)}
        v_add_u32 {vr(y)}, {sr(T+3)}, {vr(x)}
        v_add_u32 {vr(x)}, {sr(T+2)}, {vr(x)}
        v_lshl_add_u32 {vr(VO)}, {vr(g4)}, 4, {vr(x)}
        v_lshl_add_u32 {vr(VO+1)}, {vr(g4)}, 4, {vr(y)}
        v_lshl_add_u32 {vr(self.VO8)}, {vr(g4)}, 3, {vr(x)}
        s_lshl_b32 {sr(T+3)}, {sr(PT)}, 11
        s_add_u32 {sr(self.E_U)}, {sr(T+3)}, {WS_U}
        s_add_u32 {sr(self.E_G)}, {sr(T+3)}, {WS_G}
        s_sub_u32 {sr(T+3)}, 4096, {sr(T+3)}
        s_lshl_b32 {sr(T)}, {sr(PT)}, 11
        s_add_u32 {sr(T)}, {sr(T)}, {WS_DWF}
        v_lshrrev_b32 {vr(x)}, 2, {vr(r0)}
        v_cmp_eq_u32 vcc, {vr(x)}, {vr(g4)}
        v_lshl_add_u32 {vr(self.VDW)}, {vr(r0)}, 4, {sr(T)}
        s_nop 0
        v_cndmask_b32 {vr(self.VDW)}, {vr(big)}, {vr(self.VDW)}, vcc
        s_lshl_b32 {sr(self.E_COL)}, {sr(S_W)}, 6
        v_lshlrev_b32 {vr(self.VL8)}, 3, v0
        v_add_u32 {vr(self.VL8)}, 4096, {vr(self.VL8)}
        v_add_u32 {vr(self.VST)}, {sr(S_LB)}, {vr(V_DMA)}
        v_add_u32 {vr(self.VST)}, {2*SLOT}, {vr(self.VST)}
        s_xor_b32 {sr(T)}, {sr(NB)}, 1
        v_xor_b32 {vr(x)}, {sr(T)}, {vr(g4)}
        v_lshl_add_u32 {vr(x)}, {vr(x)}, 4, {vr(r0)}
        s_lshl_b32 {sr(T)}, {sr(S_W)}, 2
        s_add_u32 {sr(T)}, {sr(T)}, {self.L_L}
        v_lshl_add_u32 {vr(self.VLW)}, {vr(x)}, 4, {sr(T)}
        s_sub_u32 {sr(self.MP1)}, 0, {sr(PT)}
        s_mov_b32 {sr(self.MP1+1)}, {sr(self.MP1)}""")
        for k, (d, base) in enumerate(((self.RS1, 3 * SLOT), (self.RS2, 2 * SLOT), (self.RS3, 2 * SLOT))):
            a(f"s_xor_b32 {sr(T)}, {sr(S_W)}, {k+1}\ns_mul_i32 {sr(T)}, {sr(T)}, {TILE}\ns_add_u32 {sr(d)}, {sr(T)}, {base}")
        a(f"""s_mul_i32 {sr(T)}, {sr(S_B)}, 4000
        s_add_u32 {sr(T+1)}, {sr(T)}, 3999
        s_mov_b32 {sr(T+2)}, {BLK}""")
        for k, dr in enumerate((0, -1, 1)):
            m = GA + 2 * k
            if dr: a(f"v_add_u32 {vr(m)}, {dr}, {vr(r)}\nv_cmp_eq_u32 vcc, {sr(T if dr < 0 else T+1)}, {vr(r)}")
            src = m if dr else r
            a(f"""v_lshrrev_b32 {vr(x)}, 4, {vr(src)}
            v_and_b32 {vr(y)}, 15, {vr(src)}
            v_mul_lo_u32 {vr(x)}, {vr(x)}, {sr(T+2)}
            v_lshl_add_u32 {vr(y)}, {vr(g4)}, 4, {vr(y)}
            v_lshl_add_u32 {vr(m)}, {vr(y)}, 4, {vr(x)}
            v_lshl_add_u32 {vr(m+1)}, {vr(y)}, 3, {vr(x)}
            v_add_u32 {vr(m+1)}, {sr(T+3)}, {vr(m+1)}""")
            if dr: a(f"v_cndmask_b32 {vr(m)}, {vr(m)}, {vr(big)}, vcc\nv_cndmask_b32 {vr(m+1)}, {vr(m+1)}, {vr(big)}, vcc")

    def conv_loads(self):
        GA = self.GA
        L = []
        for dst, m, so in ((self.GM, GA + 2, 1), (self.G0, GA, 1), (self.GP, GA + 4, 1), (self.U, GA, 0)):
            for k in range(2): L.append(f"buffer_load_dwordx4 {vr(dst+4*k,4)}, {vr(m)}, {sr(S_WS,4)}, {sr(self.E_U+so)} offen offset:{1024*k}")
            L.append(f"buffer_load_dwordx2 {vr(dst+8,2)}, {vr(m+1)}, {sr(S_WS,4)}, {sr(self.E_U+so)} offen")
        return L

    def rg(self, e, n): return (ar if e[0] == "a" else vr)(e[1], n)

    def w8_loads(self, regs, so):
        return [f"buffer_load_dwordx4 {self.rg(regs[s],4)}, {vr(V_DMA)}, {sr(S_WS,4)}, {sr(so)} offen offset:{1024*s}" for s in range(4)] + \
               [f"buffer_load_dwordx2 {self.rg(regs[4],2)}, {vr(self.VL8)}, {sr(S_WS,4)}, {sr(so)} offen"]

    def w_reads(self, regs, off):
        L = []
        for tt in range(2):
            L += [f"ds_read_b128 {self.rg(regs[tt][s],4)}, {vr(self.VS0)} offset:{off + BLK*tt + 1024*s}" for s in range(4)]
            L.append(f"ds_read_b64 {self.rg(regs[tt][4],2)}, {vr(self.VS0R)} offset:{off + BLK*tt}")
        return L

    def xa_srd(self):
        T = S_T
        return f"""s_mul_i32 {sr(T)}, {sr(S_B)}, {NT}
        s_mul_i32 {sr(T+1)}, {sr(S_H)}, 63
        s_add_u32 {sr(T+1)}, {sr(T+1)}, {sr(T)}
        s_mul_i32 {sr(T+1)}, {sr(T+1)}, {TILE}
        s_add_u32 {sr(S_XA)}, {sr(S_WS)}, {sr(T+1)}
        s_addc_u32 {sr(S_XA+1)}, {sr(S_WS+1)}, 0
        s_sub_u32 {sr(T+2)}, 63, {sr(S_H)}
        s_mul_i32 {sr(S_XA+2)}, {sr(T+2)}, {TILE}
        s_mov_b32 {sr(S_XA+3)}, 0x20000"""

    def rest(self):
        a, o = self.a, self.o
        T = S_T
        VPL = self.VPL
        self.plan()
        self.head()
        self.stamp("loop")
        if o.get("echo") and o["echo"][0] == "skew":
            a(f"s_waitcnt lgkmcnt(0)\ns_mov_b64 exec, 1\ns_not_b32 s98, {sr(S_ST)}\nv_mov_b32 v226, s98\nv_mov_b32 v227, 4\ns_cmp_lg_u32 {sr(S_W)}, 0\ns_cbranch_scc1 L_sk\nbuffer_atomic_umax v226, v227, {sr(S_DB,4)}, 0 offen sc1\ns_waitcnt vmcnt(0)\nL_sk:\ns_mov_b64 exec, -1\ns_nop 3")
        nh = o.get("ugh", 2)
        ex = {2 + 12 * k: x for k, x in enumerate(self.ugs[nh:])}
        self.period(0, vm=9 + 5, extra=ex)
        self.stamp("l0")
        a.raw(".p2align 6")
        a.label("L_loop")
        self.stamp("q1")
        for p in range(1, 5):
            ex = {}
            vm = 9
            if p == 1: ex = {73: f"s_cmp_eq_u32 {sr(S_CNT)}, 3"}
            if p == 2: ex = {70: f"buffer_load_dwordx4 v[252:255], {vr(VPL)}, {sr(S_DB,4)}, 0 offen sc1"}
            if p == 3:
                ex = {73: f"s_cmp_eq_u32 {sr(S_CNT)}, 2", 45: f"ds_add_rtn_u32 v230, v231, {vr(VPL+1)}"}
            if p == 4:
                self.stamp("la0")
                a(f"s_cbranch_scc1 L_last")
                a.label("L_lastb")
                self.stamp("la1")
                ex = {72: f"s_add_u32 {sr(S_CNT)}, {sr(S_CNT)}, 1", 1: "v_cmp_eq_u32 vcc, 3, v230", 3: f"v_cndmask_b32 v230, v231, {vr(VPL)}, vcc",
                      6: f"buffer_atomic_add {vr(VPL+1)}, v230, {sr(S_DB,4)}, 0 offen sc1"}
            self.period(p, extra=ex, inc=sr(S_INC) if p == 4 else None)
            if p == 1: a("s_cbranch_scc1 L_p14")
        a("s_branch L_loop")
        a.label("L_p14")
        SW = 66
        self.stamp("p14")
        a(f"s_cmp_eq_u32 {sr(S_DUM)}, 4\ns_cbranch_scc0 L_dummyb")
        for i in range(16): a(f"v_mov_b32 {vr(V_CI+i)}, 0xff800000")
        a("s_nop 1")
        a.label("L_dummyb")
        ex = dict(zip([2, 6, 8, 12, 14, 18, 20, 24, 26, 30], self.w_reads(self.WD, 0)))
        ex[0] = "s_waitcnt vmcnt(9)"
        ex.update(dict(zip([4, 10, 16, 22, 28], self.w8_loads(self.WD[2], SW))))
        self.period(14, dma=False, kread=False, extra=ex, halves=(0,))
        self.stamp("tail")
        self.tail(SW)
        self.stamp("end")
        self.epilogue(SW)

    def rare(self):
        a = self.a
        T = S_T
        SW = 66
        a.label("L_last")
        a(f"s_waitcnt vmcnt(9)\ns_mov_b32 {sr(T+2)}, 0")
        a.label("L_late")
        a(f"""v_readfirstlane_b32 {sr(T)}, v252
        v_readfirstlane_b32 {sr(T+1)}, v254
        s_add_u32 {sr(S_XA)}, {sr(S_WS)}, {WS_WF}
        s_addc_u32 {sr(S_XA+1)}, {sr(S_WS+1)}, 0
        s_mov_b32 {sr(S_XA+2)}, {18*BLK}
        s_add_u32 {sr(S_TOFF)}, {sr(S_LB)}, {9*BLK}
        s_mov_b32 {sr(S_INC)}, {-9*BLK}
        s_lshr_b32 {sr(SW)}, {sr(S_W)}, 1
        s_lshl_b32 {sr(SW)}, {sr(SW)}, 30
        s_add_u32 {sr(SW+1)}, {sr(SW)}, {WS_WF + 8*BLK}
        s_add_u32 {sr(SW)}, {sr(SW)}, {WS_WF + 17*BLK}
        s_cmp_ge_u32 {sr(T)}, 126
        s_cselect_b32 {sr(T+3)}, {sr(T+1)}, 0
        s_cmp_ge_u32 {sr(T+3)}, 2
        s_cbranch_scc1 L_lastb
        buffer_load_dwordx4 v[252:255], {vr(self.VPL)}, {sr(S_DB,4)}, 0 offen sc1
        s_add_u32 {sr(T+2)}, {sr(T+2)}, 1
        s_waitcnt vmcnt(0)
        s_cmp_lt_u32 {sr(T+2)}, 0x40000
        s_cbranch_scc1 L_late
        s_branch L_lastb""")

    units = [(0, 0), (0, 1), (1, 0), (1, 1), (2, 0)]
    V15 = V_K

    def stage(self, slot, T):
        src = ar(A_O + 36 * slot + 4 * T, 4)
        if slot == 0: return f"ds_write_b128 {vr(self.VST)}, {src} offset:{1024*T}"
        if slot == 2: return f"ds_write_b128 {vr(self.VS0)}, {src} offset:{1024*T}"
        if T < 4: return f"ds_write_b128 {vr(self.VST)}, {src} offset:{SLOT + 1024*T + (4096 if slot == 3 else 0)}"
        return f"{'s_not_b64' if slot == 1 else 's_mov_b64'} exec, {sr(self.MP1,2)}\nds_write_b128 {vr(self.VST)}, {src} offset:{SLOT + 8192}\ns_mov_b64 exec, -1"

    def dwf(self, k, i):
        f = 5 * k + i
        return self.DWT[f >> 1] + 2 * (f & 1)

    def tail(self, SW):
        a, o = self.a, self.o
        mf, pos, start = [], {}, {}
        for t_, qb in ((14, 0), (14, 1), (15, 0), (15, 1), (14, 2), (15, 2), (14, 3), (15, 3)):
            start[t_, qb] = len(mf)
            for Tt in ([0, 1, 2, 3, 8, 4, 5, 6, 7] if qb & 1 else range(9)):
                o_ = ar(A_O + 36 * qb + 4 * Tt, 4)
                pos[t_, qb, Tt] = len(mf)
                mf.append(f"v_mfma_f32_16x16x32_bf16 {o_}, {vr((V_V if t_ == 14 else self.V15)+4*Tt,4)}, {vr(self.P(t_ & 1,qb),4)}, {o_}")
        lst = []
        for qb in range(4):
            for j in range(8):
                lst.append(("e", qb, j))
                if j & 1: lst.append(("c", qb, j // 2))
        lst += [("a", qb, j) for qb in range(4) for j in range(8)]
        items = self.e_items(1, lst, lambda qb, j: 0 if j < 4 else 1, lambda qb: start[15, qb] - 2)
        for it in items[48:]: it["lo"] = o.get("alo", 26)
        v15 = [dict(t=x, c=4, need=pos[15, 0, i // 2], hi=pos[15, 0, i // 2] - o.get("vlead", 7), lo=0 if i < 16 else 2) for i, x in enumerate(self.v_reads(3, self.V15))]
        wr = []
        nown = o.get("nown", 4)
        self.own = [(2, T_) for T_ in range(nown, 9)] + [(3, T_) for T_ in (0, 1, 2, 3, 8)]
        g = o.get("w0", 23)
        for k, (sl, Tt) in enumerate([(0, T_) for T_ in range(9)] + [(1, T_) for T_ in (0, 1, 2, 3, 8)] + [(2, T_) for T_ in range(nown)]):
            g = max(pos[15, sl, Tt] + 5, g)
            wr.append(dict(t=self.stage(sl, Tt), c=o.get("wc", 20), lo=int(g), hi=int(g)) if g < 72 else dict(t=self.stage(sl, Tt), c=4, lo=999))
            g += o.get("wsp", 2.7)
        n0 = len(items) + len(v15)
        wo = []
        for i, x in enumerate(self.w_reads(self.WO, SLOT)):
            r0 = self.WO[i // 5][i % 5][1]
            wo.append(dict(t=("@VM\n" if i == 0 else "") + x, c=4, dep=sorted({n0 + r0 // 4, n0 + (r0 + 3) // 4 if (r0 + 3) // 4 < 9 else n0 + 8}), lo=o.get("wo0", 40) + 3 * i, hi=o.get("wo0", 40) + 3 * i + 2))
        cl = self.conv_loads()
        dl = [f"buffer_load_dwordx4 {vr(self.DWT[r],4)}, {vr(self.VDW)}, {sr(S_WS,4)}, 0 offen offset:{256*r}" for r in range(7)]
        dl.append(f"buffer_load_dwordx2 {vr(self.DWT[7],2)}, {vr(self.VDW)}, {sr(S_WS,4)}, 0 offen offset:{256*7}")
        fr = {96: 9, 100: 18, 104: 45, 112: 27, 116: 36}
        vm = [(x, 0) for x in cl] + [(x, fr.get(self.DWT[r], 0)) for r, x in enumerate(dl)]
        used = {w["lo"] for w in wr}
        vi, g = [], o.get("m0", 24)
        for x, lo in vm:
            g = max(g, lo)
            while int(g) in used: g += 1
            vi.append(dict(t=x, c=8, lo=int(g), hi=int(g)) if g < 72 else dict(t=x, c=8, lo=999))
            g += o.get("msp", 2.2)
        left = self.pack(mf, items + v15 + wr + wo + vi)
        self.done_a = {(qb, j) for qb in range(4) for j in range(8) if self.etext(1, ("a", qb, j)) not in left}
        left = [x for x in left if not x.startswith("v_add_f32")]
        print("tail overflow", self.over, "left", len(left), "adds done", len(self.done_a))
        self.left = left

    def epilogue(self, SW):
        a, o = self.a, self.o
        T = S_T
        p = lambda r: vr(r, 2)
        NB, PT, MK, VO, units, MP1 = self.NB, self.PT, self.MK, self.VO, self.units, self.MP1
        U, GM, G0, GP = self.U, self.GM, self.G0, self.GP
        X2O = self.X2O
        R1, R2, R3 = 230, 231, 249
        LA, LS, M = 10, 226, 48

        def weave(main, fill, per):
            fill = list(fill)
            for x in main:
                a(x)
                for _ in range(per):
                    if fill: a(fill.pop(0))
            return fill
        for x in self.left:
            if not x.startswith("buffer"): a(x)
        lv = [x for x in self.left if x.startswith("buffer")]
        lv += [f"buffer_load_dwordx4 {vr(self.XRS[j],4)}, {vr(VO+j)}, {sr(S_X,4)}, {sr(self.E_COL)} offen" for j in range(2)]
        lv.append(f"buffer_load_dwordx2 {vr(self.XRS[2],2)}, {vr(self.VO8)}, {sr(S_X,4)}, 0 offen offset:256")
        S1 = lambda qb, j: self.S(1, qb, j)
        rounds = [[] for _ in range(6)]
        for qb in range(4):
            rem = [j for j in range(8) if (qb, j) not in self.done_a]
            prs = [j for j in rem if j % 2 == 0 and j + 1 in rem]
            sing = [j for j in rem if (j & ~1) not in prs]
            r_ = 0
            while len(prs) > 1:
                for x, y in zip(prs[0::2], prs[1::2]): rounds[r_].append(f"v_pk_add_f32 {p(S1(qb,x))}, {p(S1(qb,x))}, {p(S1(qb,y))}")
                prs = prs[0::2]; r_ += 1
            for k_, j in enumerate(sing + ([prs[0], prs[0] + 1] if prs else [])): rounds[min(5, max(r_, 2) + k_)].append(f"v_add_f32 {vr(V_L+qb)}, {vr(V_L+qb)}, {vr(S1(qb,j))}")
        for r_ in rounds:
            for x in r_: a(x)
        a(f"v_add_u32 {vr(R1)}, {sr(self.RS1)}, {vr(V_DMA)}\nv_add_u32 {vr(R2)}, {sr(self.RS2)}, {vr(V_DMA)}")
        self.treduce(V_L)
        a(f"ds_write_b32 {vr(self.VLW)}, {vr(V_L)}")
        acc = lambda slot: [f"v_accvgpr_read_b32 {vr(M+i)}, {ar(A_O+36*slot+16+i)}" for i in range(20)]
        a(f"""v_add_u32 {vr(R3)}, {sr(self.RS3)}, {vr(V_DMA)}
        v_add_u32 {vr(LA+1)}, {self.L_L}, {vr(V_DMA)}
        v_and_b32 {vr(LS+1)}, 0xf0, {vr(V_DMA)}
        s_lshl_b32 {sr(T)}, {sr(NB)}, 8
        s_add_u32 {sr(T+8)}, {sr(T)}, {self.L_L}
        v_add_u32 {vr(LS)}, {sr(T+8)}, {vr(LS+1)}""")
        for x in lv: a(x)
        a(f"""s_xor_b32 {sr(T)}, s2, 1
        s_mul_i32 {sr(T)}, {sr(T)}, {IB}
        s_mul_i32 {sr(T+9)}, {sr(NB)}, 5120
        s_add_u32 {sr(T+9)}, {sr(T+9)}, {WS_IB}
        s_add_u32 {sr(T)}, {sr(T)}, {sr(T+9)}
        s_lshl_b32 {sr(T+10)}, {sr(PT)}, 11
        s_add_u32 {sr(T+1)}, {sr(T+10)}, {sr(T)}
        s_add_u32 {sr(T)}, {sr(T)}, 4096
        s_cmp_eq_u32 {sr(PT)}, 0
        s_cselect_b32 {sr(T)}, 0x40000000, {sr(T)}
        s_mov_b32 {sr(T+2)}, {f32(2.0**100)}
        s_mul_i32 {sr(T+12)}, s2, {IB}
        s_add_u32 {sr(T+12)}, {sr(T+12)}, {sr(T+9)}
        s_add_u32 {sr(T+13)}, {sr(T+12)}, {sr(T+10)}
        s_waitcnt lgkmcnt(0)
        s_barrier""")
        self.stamp("B1")

        def rd(X, offs):
            L = [[f"ds_read_b128 {vr(X[k][i],4)}, {vr((R1, R2, R3)[k])} offset:{offs[k] + 1024*i}" for i in range(4)] for k in range(3)]
            L8 = [f"ds_read_b128 {vr(X[k][4],4)}, {vr((R1, R2, R3)[k])} offset:8192" for k in range(3)]
            return L, L8

        def adds(X, k, rng):
            return [f"v_pk_add_f32 {p(M+4*i+2*h)}, {p(M+4*i+2*h)}, {p(X[k][i]+2*h)}" for i in rng for h in range(2)]
        X = [[128, 132, 136, 140, 144], [148, 152, 156, 160, 68], [72, 76, 200, 204, 108]]
        PK = 128
        L, L8 = rd(X, (0, 4096, 0))
        a(f"ds_read_b128 {vr(LA,4)}, {vr(LA+1)}\nds_read_b128 {vr(LS,4)}, {vr(LS)}")
        rest = weave(L[0] + L[1] + L[2], acc(1), 2)
        assert not rest
        a(f"s_mov_b64 exec, {sr(MP1,2)}")
        for x in L8: a(x)
        a(f"""s_mov_b64 exec, -1
        s_waitcnt lgkmcnt(11)
        v_add_f32 {vr(LA)}, {vr(LA)}, {vr(LA+1)}
        v_add_f32 {vr(LA+2)}, {vr(LA+2)}, {vr(LA+3)}
        v_add_f32 {vr(LS)}, {vr(LS)}, {vr(LS+1)}
        v_add_f32 {vr(LA)}, {vr(LA)}, {vr(LA+2)}
        v_add_f32 {vr(LS+2)}, {vr(LS+2)}, {vr(LS+3)}
        v_cmp_nge_f32 vcc, {sr(T+2)}, {vr(LA)}""")
        for x in adds(X, 0, range(4)): a(x)
        a(f"""s_cmp_lg_u64 vcc, 0
        s_cselect_b32 {sr(T+2)}, 1, 0
        s_andn2_b32 {sr(T+2)}, {sr(T+2)}, {sr(S_REDO)}
        s_cbranch_scc1 L_fallback
        v_add_f32 {vr(PK+10)}, {vr(LS)}, {vr(LS+2)}
        v_mov_b32 {vr(PK+11)}, {vr(MK+1)}
        s_waitcnt lgkmcnt(7)""")
        for x in adds(X, 1, range(4)): a(x)
        a("s_waitcnt lgkmcnt(3)")
        a3 = adds(X, 2, range(4))
        cv = [f"v_cvt_pk_bf16_f32 {vr(PK+i)}, {vr(M+2*i)}, {vr(M+2*i+1)}" for i in range(10)]
        for x in a3[:4] + a3[4:6] + cv[:4]: a(x)
        a(f"buffer_store_dwordx4 {vr(PK,4)}, {vr(V_DMA)}, {sr(S_WS,4)}, {sr(T+1)} offen sc1")
        for x in a3[6:] + cv[4:8]: a(x)
        a(f"buffer_store_dwordx4 {vr(PK+4,4)}, {vr(V_DMA)}, {sr(S_WS,4)}, {sr(T+1)} offen offset:1024 sc1")
        a("s_waitcnt lgkmcnt(0)")
        for kk in range(3):
            for x in adds(X, kk, [4]): a(x)
        for x in cv[8:]: a(x)
        a(f"buffer_store_dwordx4 {vr(PK+8,4)}, {vr(V_DMA)}, {sr(S_WS,4)}, {sr(T)} offen sc1")
        self.stamp("sent")
        a(f"s_cmp_eq_u32 {sr(S_VAL)}, 0\ns_cbranch_scc1 L_fin")
        C, UP = 140, 68
        IN = [(200, 204, 226), (164, 168, 252), (192, 196, 172)]
        VXW, VXR, VF, LO = 78, 79, 10, 36
        wr = [self.stage(*e) for e in self.own]

        def inbox(k):
            return [f"buffer_load_dwordx4 {vr(IN[k][0],4)}, {vr(V_DMA)}, {sr(S_WS,4)}, {sr(T+13)} offen sc1",
                    f"buffer_load_dwordx4 {vr(IN[k][1],4)}, {vr(V_DMA)}, {sr(S_WS,4)}, {sr(T+13)} offen offset:1024 sc1",
                    f"buffer_load_dwordx4 {vr(IN[k][2],4)}, {vr(V_DMA+1)}, {sr(S_WS,4)}, {sr(T+12)} offen sc1"]
        for x in inbox(0): a(x)
        n0 = len(a.lines)
        a(f"""s_lshl_b32 {sr(T)}, {sr(NB)}, 12
        s_add_u32 {sr(T)}, {sr(T)}, {sr(T+10)}
        s_add_u32 {sr(T)}, {sr(T)}, {self.X1B}
        v_add_u32 {vr(VXW)}, {sr(T)}, {vr(V_DMA)}
        s_lshl_b32 {sr(T)}, {sr(NB)}, 9
        s_add_u32 {sr(T)}, {sr(T)}, {self.X1B + 4096}
        v_add_u32 {vr(VXR)}, {sr(T)}, {vr(self.VL8)}
        s_lshl_b32 {sr(T)}, {sr(PT)}, 12
        s_add_u32 {sr(T)}, {sr(T)}, {self.X1B}
        v_add_u32 {vr(VF)}, {sr(T)}, {vr(V_DMA)}
        v_xor_b32 {vr(VF+1)}, 4096, {vr(VF)}
        s_lshl_b32 {sr(T)}, {sr(PT)}, 9
        s_add_u32 {sr(T)}, {sr(T)}, {self.X1B + 4096}
        v_add_u32 {vr(VF+2)}, {sr(T)}, {vr(self.VL8)}
        v_xor_b32 {vr(VF+3)}, 512, {vr(VF+2)}
        v_subrev_u32 {vr(R2)}, {2*SLOT}, {vr(R2)}
        v_subrev_u32 {vr(R3)}, {2*SLOT}, {vr(R3)}
        s_waitcnt vmcnt(9)""")
        self.stamp("cv0")
        un = [f"v_lshlrev_b32 {vr(M+2*i)}, 16, {vr(U+i)}\nv_and_b32 {vr(M+1+2*i)}, 0xffff0000, {vr(U+i)}" for i in range(10)]
        w8 = self.w8_loads(self.WO[2], SW + 1)
        for k, src in enumerate((GM, G0, GP)):
            for i in range(5):
                d = vr(C + 4 * i, 4)
                a(f"v_mfma_f32_16x16x16_bf16 {d}, {vr(self.dwf(k, i),2)}, {vr(src+2*i,2)}, {'0' if k == 0 else d}")
                a(w8.pop(0) if i in (0, 3) and w8 else un.pop(0))
        self.stamp("cv1")
        a(f"v_and_b32 {vr(LO+1)}, 0xf0, {vr(V_DMA)}\nv_add_u32 {vr(LO)}, {sr(T+8)}, {vr(LO+1)}\ns_nop 1")
        for i in range(10): a(f"v_pk_mul_f32 {p(C+2*i)}, {p(C+2*i)}, {p(M+2*i)}")
        for i in range(10):
            a(f"v_cvt_pk_bf16_f32 {vr(UP+i)}, {vr(C+2*i)}, {vr(C+2*i+1)}")
        body = a.lines[n0:]; del a.lines[n0:]
        step = max(1, len(body) // len(wr))
        for i, l in enumerate(body):
            if i % o.get("wstep", step) == 0 and wr: a(wr.pop(0))
            a.lines.append(l)
        for x in wr: a(x)
        ac = acc(3)
        a(f"ds_write_b128 {vr(VXW)}, {vr(UP,4)} offset:{X2O}")
        for x in ac[:6]: a(x)
        a(f"ds_write_b128 {vr(VXW)}, {vr(UP+4,4)} offset:{X2O + 1024}")
        for x in ac[6:12]: a(x)
        a(f"""s_mov_b64 exec, {sr(MP1,2)}
        ds_write_b64 {vr(VXR)}, {vr(UP+8,2)} offset:{X2O}
        s_mov_b64 exec, -1""")
        self.stamp("x2")
        for x in inbox(1): a(x)
        for x in ac[12:]: a(x)
        a("s_waitcnt lgkmcnt(0)\ns_barrier")
        self.stamp("B2")
        X = [[128, 132, 136, 140, 144], [148, 152, 156, 160, 188], [16, 20, 24, 28, 32]]
        L, L8 = rd(X, (4096, 4096, 0))
        BU = [[("v", r) for r in (100, 104, 108, 112, 116)], [("v", r) for r in (118, 122, 180, 184, 126)]]
        BO = [self.frag("v", 128), self.frag("v", 146)]
        AB = 80

        def bfrags(dst, off):
            out = []
            for s in range(5):
                for j in range(2):
                    out.append(f"ds_read_b128 {self.rg(dst[j][s],4)}, {vr(VF+j)} offset:{off + 1024*s}" if s < 4 else f"ds_read_b64 {self.rg(dst[j][4],2)}, {vr(VF+2+j)} offset:{off}")
            return out

        def fg(W, Bf):
            out = []
            for s in range(5):
                for u, (tt, j) in enumerate(units):
                    d = vr(AB + 4 * u, 4)
                    if s < 4: out.append(f"v_mfma_f32_16x16x32_bf16 {d}, {self.rg(W[tt][s],4)}, {self.rg(Bf[j][s],4)}, {d}")
                    else: out.append(f"v_mfma_f32_16x16x16_bf16 {d}, {self.rg(W[tt][4],2)}, {self.rg(Bf[j][4],2)}, {d}")
            return out
        xu = []
        for u, (tt, j) in enumerate(units):
            for h in range(2):
                x = self.XRS[j] + 2 * tt + h if tt < 2 else self.XRS[2] + h
                xu += [f"v_lshlrev_b32 {vr(AB+4*u+2*h)}, 16, {vr(x)}", f"v_and_b32 {vr(AB+1+4*u+2*h)}, 0xffff0000, {vr(x)}"]
        a("s_waitcnt vmcnt(14)")
        weave(bfrags(BU, X2O), xu, 2)
        pl = lambda k, i, e: f"v_add_f32 {vr(M+4*i+e)}, {vr(M+4*i+e)}, {vr(X[k][i]+e)}"
        ds = L[0] + L[1] + L[2] + [f"s_not_b64 exec, {sr(MP1,2)}\n" + "\n".join(L8) + "\ns_mov_b64 exec, -1", f"ds_read_b128 {vr(LO,4)}, {vr(LO)} offset:512"]
        nis = [1] * 12 + [3, 1]
        gap = [[] for _ in range(25)]
        tot = [10]
        for g in range(25): tot.append(tot[-1] + (nis[g] if g < 14 else 0))
        A0 = [pl(0, i, e) for i in range(4) for e in range(4)]
        A1 = [pl(1, i, e) for i in range(4) for e in range(4)]
        ib = inbox(2)
        for g, m in enumerate(fg(self.WD, BU)):
            if g % 5 == 0: a(f"s_waitcnt lgkmcnt({min(15, tot[g] - 2 * (g // 5 + 1))})")
            a(m)
            if g == 8: a(f"s_waitcnt lgkmcnt({tot[g] - 14})")
            if g == 16: a(f"s_waitcnt lgkmcnt({tot[g] - 18})")
            if g < 14: a(ds[g])
            if 8 <= g < 14: a(A0.pop(0))
            elif g in (14, 18, 22): a(ib.pop(0))
            elif g >= 14:
                for _ in range(2): a(A0.pop(0) if A0 else A1.pop(0))
        assert not A0 and len(A1) % 2 == 0
        n1 = 16 - len(A1)
        for e in range(n1, 16, 2): a(f"v_pk_add_f32 {p(M+e)}, {p(M+e)}, {p(X[1][e//4]+e%4)}")
        a("s_waitcnt lgkmcnt(0)")
        for x in adds(X, 2, range(4)): a(x)
        a(f"v_add_f32 {vr(LO)}, {vr(LO)}, {vr(LO+1)}\nv_add_f32 {vr(LO+2)}, {vr(LO+2)}, {vr(LO+3)}")
        for kk in range(3):
            for x in adds(X, kk, [4]): a(x)
        a(f"s_mov_b32 {sr(T+2)}, 0\nv_add_f32 {vr(LO)}, {vr(LO)}, {vr(LO+2)}")
        self.stamp("own")
        w, PU = 40, 128
        mo = MK + 3

        def chk(k):
            r = [IN[k][q] + i for q in range(3) for i in range(4)]
            c = [f"v_max3_u32 v46, {vr(r[0])}, {vr(r[1])}, {vr(r[2])}", f"v_max3_u32 v47, {vr(r[3])}, {vr(r[4])}, {vr(r[5])}"]
            for q in range(3): c.append(f"v_max3_u32 v{46+(q&1)}, v{46+(q&1)}, {vr(r[6+2*q])}, {vr(r[7+2*q])}")
            return c + ["v_max_u32 v46, v46, v47", "v_cmp_eq_u32 vcc, -1, v46"]

        def take(k, with_chk):
            r = [IN[k][q] + i for q in range(3) for i in range(4)]
            lp_, mp = r[10], r[11]
            wt = [f"v_min_f32 {vr(w)}, {vr(mo)}, {vr(mp)}", f"v_sub_f32 {vr(w+2)}, {vr(w)}, {vr(mp)}", f"v_sub_f32 {vr(w)}, {vr(w)}, {vr(mo)}",
                  f"v_exp_f32 {vr(w+2)}, {vr(w+2)}", f"v_exp_f32 {vr(w)}, {vr(w)}", f"v_mul_f32 {vr(w+4)}, {vr(w+2)}, {vr(lp_)}",
                  f"v_fmac_f32 {vr(w+4)}, {vr(w)}, {vr(LO)}", f"v_rcp_f32 {vr(w+4)}, {vr(w+4)}", f"v_mul_f32 {vr(w)}, {vr(w)}, {vr(w+4)}",
                  f"v_mul_f32 {vr(w+2)}, {vr(w+2)}, {vr(w+4)}"]
            un = []
            for i in range(10): un += [f"v_lshlrev_b32 {vr(PU+2*i)}, 16, {vr(r[i])}", f"v_and_b32 {vr(PU+1+2*i)}, 0xffff0000, {vr(r[i])}"]
            c = chk(k) if with_chk else []
            for i in range(10):
                a(wt[i])
                if c: a(c.pop(0))
                a(un.pop(0)); a(un.pop(0))
        a("s_waitcnt vmcnt(6)")
        take(0, True)
        a("s_cmp_eq_u64 vcc, 0\ns_cbranch_scc0 L_poll2")
        a.label("L_got")
        self.stamp("got")
        for i in range(10): a(f"v_pk_mul_f32 {p(M+2*i)}, {p(M+2*i)}, {p(w)} op_sel_hi:[1,0]")
        for i in range(10): a(f"v_pk_fma_f32 {p(M+2*i)}, {p(PU+2*i)}, {p(w+2)}, {p(M+2*i)} op_sel_hi:[1,0,1]")
        for i in range(10):
            a(f"v_cvt_pk_bf16_f32 {vr(UP+i)}, {vr(M+2*i)}, {vr(M+2*i+1)}")
            if i == 3: a(f"ds_write_b128 {vr(VXW)}, {vr(UP,4)}")
            if i == 7: a(f"ds_write_b128 {vr(VXW)}, {vr(UP+4,4)} offset:1024")
        a(f"""s_not_b64 exec, {sr(MP1,2)}
        ds_write_b64 {vr(VXR)}, {vr(UP+8,2)}
        s_mov_b64 exec, -1
        s_waitcnt lgkmcnt(0)
        s_barrier""")
        self.stamp("B3")
        for x in bfrags(BO, 0): a(x)
        for g, m in enumerate(fg(self.WO, BO)):
            if g % 5 == 0: a(f"s_waitcnt lgkmcnt({8 - 2 * (g // 5)})" + ("\ns_nop 0" if g == 20 else ""))
            a(m)
        self.stamp("gem")
        a("s_nop 3")
        for j in range(2):
            for tt in range(2):
                u = 2 * tt + j
                for h in range(2): a(f"v_cvt_pk_bf16_f32 {vr(16+4*j+2*tt+h)}, {vr(AB+4*u+2*h)}, {vr(AB+4*u+2*h+1)}")
            a(f"buffer_store_dwordx4 {vr(16+4*j,4)}, {vr(VO+j)}, {sr(S_OUT,4)}, {sr(self.E_COL)} offen")
        a(f"s_cmp_ge_u32 {sr(S_W)}, 2\ns_cbranch_scc1 L_fin")
        for h in range(2): a(f"v_cvt_pk_bf16_f32 {vr(24+h)}, {vr(AB+16+2*h)}, {vr(AB+16+2*h+1)}")
        a(f"buffer_store_dwordx2 v[24:25], {vr(self.VO8)}, {sr(S_OUT,4)}, 0 offen offset:256")
        self.stamp("fin")

        def poll2():
            a.label("L_poll2")
            for k in (1, 2, 0):
                for x in inbox((k + 2) % 3): a(x)
                a("s_waitcnt vmcnt(6)")
                for x in chk(k): a(x)
                a(f"s_add_u32 {sr(T+2)}, {sr(T+2)}, 1\ns_cmp_eq_u64 vcc, 0\ns_cbranch_scc1 L_take{k}")
            a(f"s_cmp_lt_u32 {sr(T+2)}, 0x10000\ns_cbranch_scc1 L_poll2")
            for k in (0, 1, 2):
                a.label(f"L_take{k}")
                take(k, False)
                a("s_branch L_got")
        self.poll2 = poll2

    def fallback(self):
        a = self.a
        T = S_T
        MXR = 208
        a.label("L_fallback")
        a(f"""s_waitcnt vmcnt(0) lgkmcnt(0)
        s_barrier
        s_mov_b32 {sr(S_REDO)}, 1
        s_mov_b32 {sr(S_UG)}, 0x40000000
        {self.xa_srd()}
        s_mov_b32 {sr(S_TOFF)}, {sr(S_LB)}
        s_cmp_eq_u32 {sr(S_DUM)}, 4
        s_cselect_b32 {sr(S_CNT)}, 15, 16""")
        for i in range(4): a(f"v_mov_b32 {vr(MXR+i)}, 0xff800000")
        a.label("L_fb1")
        for g in self.tile_groups(0): a(g)
        a("s_waitcnt vmcnt(0)")
        for x in self.k_reads(0): a(x)
        a("s_waitcnt lgkmcnt(0)")
        for m in self.qk_mfmas(0, czero=True): a(m)
        a("s_nop 7")
        for qb in range(4):
            for i in range(0, 8, 2): a(f"v_max3_f32 {vr(MXR+qb)}, {vr(MXR+qb)}, {vr(self.S(0,qb,i))}, {vr(self.S(0,qb,i+1))}")
        a(f"s_sub_u32 {sr(S_CNT)}, {sr(S_CNT)}, 1\ns_cmp_lg_u32 {sr(S_CNT)}, 0\ns_cbranch_scc1 L_fb1")
        self.greduce([MXR + i for i in range(4)], MXR + 4, "v_max_f32")
        a(f"""v_and_b32 {vr(MXR+4)}, 15, v0
        v_lshlrev_b32 {vr(MXR+4)}, 4, {vr(MXR+4)}
        v_add_u32 {vr(MXR+4)}, {L_SP}, {vr(MXR+4)}
        s_lshl_b32 {sr(T)}, {sr(S_W)}, 2
        s_xor_b32 {sr(T+1)}, {sr(self.NB)}, 1
        v_lshl_add_u32 {vr(MXR+5)}, {sr(self.NB)}, 8, {vr(MXR+4)}
        v_lshl_add_u32 {vr(MXR+4)}, {sr(T+1)}, 8, {vr(MXR+4)}
        v_add_u32 {vr(MXR+6)}, {sr(T)}, {vr(MXR+4)}
        v_add_u32 {vr(MXR+7)}, {sr(T)}, {vr(MXR+5)}""")
        for qb in range(4): a(f"ds_write_b32 {vr(MXR+6+(qb&1))}, {vr(MXR+qb)} offset:{512*(qb>>1)}")
        a("s_waitcnt lgkmcnt(0)\ns_barrier")
        for qb in range(4): a(f"ds_read_b128 {vr(16+4*qb,4)}, {vr(MXR+4+(qb&1))} offset:{512*(qb>>1)}")
        a(f"s_mov_b32 {sr(S_TOFF)}, {sr(S_LB)}")
        for g in self.tile_groups(0) + self.tile_groups(1) + self.tile_groups(2)[:8]: a(g)
        a("s_waitcnt lgkmcnt(0)")
        for qb in range(4):
            r = 16 + 4 * qb
            a(f"v_max_f32 {vr(r)}, {vr(r)}, {vr(r+1)}\nv_max3_f32 {vr(r)}, {vr(r)}, {vr(r+2)}, {vr(r+3)}")
            a(f"v_sub_f32 {vr(self.MK+qb)}, 0, {vr(r)}")
        a("s_waitcnt vmcnt(0)")
        for x in self.k_reads(0, V_V): a(x)
        self.loop_init(False)
        a("s_branch L_go")


if __name__ == "__main__":
    opt = json.loads(sys.argv[2]) if len(sys.argv) > 2 else {}
    g = G(opt)
    txt = g.build()
    if opt.get("align", 1):
        from align import align
        for n2 in (1, 2):
            try:
                txt, st = align(txt, chains=[(1, "L_tr")] * 3 + [(1, "L_tr2"), (n2, "L_tr2")] if opt.get("touch", 1) else None)
                break
            except AssertionError as e:
                if n2 == 2: raise
        print("align: promoted %d, padded %d, left %d" % st)
    txt = txt.replace("\n", "\n; stamps " + json.dumps(g.stnames) + "\n; map %d\n" % g.mp, 1)
    open(sys.argv[1], "w").write(txt)
```

```python
import sys, json, math
from common import Asm, vr, ar, sr, kernel_header, kernel_desc
from lay import *

NAME = "standalone__conformer_family_branchformer__speech_kernel"
NH = 2
NWG = 252 + NH
CHAINS = (3, 3)
RING = 4
LDS_RING = RING * TILE
LDS_TOTAL = 163840
SLOT = 4 * TILE
L_WU, L_WQ, L_WK = 0, 41472, 82944
L_XX, L_XR = 126976, 143360
L_QD = 18432
L_XS = L_XX + L_QD
L_MX = 81920
L_PC = LDS_TOTAL - 256
L_DUMP = 123904
L_SP = 147456

S_X, S_WS, S_XA, S_DB, S_W1, S_W2, S_OUT, S_DW = 8, 12, 16, 20, 24, 28, 32, 36
S_W, S_B, S_H, S_QB, S_TOFF, S_CNT, S_DUM, S_LB, S_TOWN, S_TSND, S_VAL, S_REDO = range(40, 52)
S_UG = 25
S_INC = 24
S_T = 52
S_ST = 76

V_KA, V_VA, V_VR, V_DMA, V_L, V_VB = 1, 3, 5, 6, 10, 14
V_S, V_CI, V_P, V_K, V_V = 16, 80, 96, 128, 164
V_HI = 200
V_X = 208
A_O, A_Q, A_F = 0, 144, 216

LOG2E = 1.4426950408889634
import struct
def f32(x): return "0x%08x" % struct.unpack("<I", struct.pack("<f", x))[0]


class BAsm(Asm):
    def __init__(self):
        super().__init__()
        self.bg, self.every, self.cnt, self.skip = [], 0, 0, 0

    def __call__(self, s):
        for l in s.split("\n"):
            l = l.strip()
            if not l: continue
            self.lines.append("    " + l)
            if self.bg and self.every and not l.startswith(("s_nop", "v_mov_b32", "v_exp", "v_rcp", "v_rsq", "v_sqrt", "s_add_u32 m0")):
                self.cnt += 1
                if self.cnt >= self.every:
                    self.cnt = 0
                    self.pop()

    def pop(self):
        for x in self.bg.pop(0).split("\n"): self.lines.append("    " + x)

    def flush(self):
        while self.bg: self.pop()
        self.every = 0


class G:
    def __init__(self, opt):
        self.o = opt
        self.a = BAsm()
        self.nst = 0
        self.fill = []

    def stamp(self, name):
        if self.o.get("stamps"):
            if name in self.o.get("skipst", []): return
            if "only" in self.o and name not in self.o["only"]: return
            if self.nst >= 11: return
            self.a(f"{'s_memtime' if self.o.get('cyc') else 's_memrealtime'} {sr(S_ST + 2*self.nst, 2)}")
            self.stnames.append(name)
            self.nst += 1

    def srd(self, dst, lo, hi, n):
        if dst == S_WS and self.o.get("wsoff"):
            self.a(f"s_add_u32 {sr(dst)}, {sr(lo)}, {self.o['wsoff']}\ns_addc_u32 {sr(dst+1)}, {sr(hi)}, 0\ns_mov_b32 {sr(dst+2)}, {n}\ns_mov_b32 {sr(dst+3)}, 0x20000")
            return
        self.a(f"s_mov_b32 {sr(dst)}, {sr(lo)}\ns_mov_b32 {sr(dst+1)}, {sr(hi)}\ns_mov_b32 {sr(dst+2)}, {n}\ns_mov_b32 {sr(dst+3)}, 0x20000")

    def greduce(self, regs, tmp, op="v_add_f32"):
        a = self.a
        for sw in ("32", "16"):
            for i, r in enumerate(regs): a(f"v_mov_b32 {vr(tmp+i)}, {vr(r)}")
            if len(regs) < 3: a("s_nop 1" if len(regs) == 1 else "s_nop 0")
            for i, r in enumerate(regs): a(f"v_permlane{sw}_swap_b32 {vr(r)}, {vr(tmp+i)}")
            for i, r in enumerate(regs): a(f"{op} {vr(r)}, {vr(r)}, {vr(tmp+i)}")

    def treduce(self, r, op="v_add_f32"):
        a = self.a
        a(f"v_permlane32_swap_b32 {vr(r)}, {vr(r+2)}\nv_permlane32_swap_b32 {vr(r+1)}, {vr(r+3)}")
        a(f"{op} {vr(r)}, {vr(r)}, {vr(r+2)}\n{op} {vr(r+1)}, {vr(r+1)}, {vr(r+3)}\ns_nop 1")
        a(f"v_permlane16_swap_b32 {vr(r)}, {vr(r+1)}\n{op} {vr(r)}, {vr(r)}, {vr(r+1)}")

    def rbf(self, r):
        self.a(f"v_cvt_pk_bf16_f32 {vr(r)}, {vr(r)}, {vr(r)}\nv_lshlrev_b32 {vr(r)}, 16, {vr(r)}")

    def ln_tail(self, F, out, t, mimic):
        a = self.a
        p = lambda r: vr(r, 2)
        self.greduce([t, t + 1], t + 2)
        a(f"v_mul_f32 {vr(t+2)}, {f32(1.0/144)}, {vr(t)}")
        a(f"v_mul_f32 {vr(t+3)}, {vr(t+2)}, {vr(t+2)}")
        a(f"v_mov_b32 {vr(t+4)}, {f32(1.0/144)}")
        a(f"v_fma_f32 {vr(t)}, {vr(t+1)}, {vr(t+4)}, -{vr(t+3)}")
        a(f"v_max_f32 {vr(t)}, 0, {vr(t)}")
        if mimic:
            self.rbf(t)
            self.rbf(t + 2)
            a(f"v_add_f32 {vr(t)}, {f32(1e-5)}, {vr(t)}")
            self.rbf(t)
            a(f"v_sqrt_f32 {vr(t)}, {vr(t)}\ns_nop 0")
            self.rbf(t)
            a(f"v_rcp_f32 {vr(t)}, {vr(t)}\ns_nop 0")
        else:
            a(f"v_add_f32 {vr(t)}, {f32(1e-5)}, {vr(t)}")
            a(f"v_rsq_f32 {vr(t)}, {vr(t)}\ns_nop 0")
        a(f"v_mul_f32 {vr(t+2)}, -{vr(t+2)}, {vr(t)}")
        for i in range(18):
            a(f"v_pk_fma_f32 {p(F+2*i)}, {p(F+2*i)}, {p(t)}, {p(t+2)} op_sel_hi:[1,0,0]")
        for i in range(18):
            a(f"v_cvt_pk_bf16_f32 {vr(out+i)}, {vr(F+2*i)}, {vr(F+2*i+1)}")

    def ln_packed(self, X, F, out, t):
        a = self.a
        a(f"v_mov_b32 {vr(t+6)}, 0x3f803f80")
        for k in range(4): a(f"v_mov_b32 {vr(t+k)}, 0")
        for i in range(18):
            a(f"v_dot2_f32_bf16 {vr(t+2*(i&1))}, {vr(X+i)}, {vr(t+6)}, {vr(t+2*(i&1))}")
            a(f"v_dot2_f32_bf16 {vr(t+1+2*(i&1))}, {vr(X+i)}, {vr(X+i)}, {vr(t+1+2*(i&1))}")
        for i in range(2):
            a(f"v_lshlrev_b32 {vr(F+2*i)}, 16, {vr(X+i)}\nv_and_b32 {vr(F+2*i+1)}, 0xffff0000, {vr(X+i)}")
        a(f"v_pk_add_f32 {vr(t,2)}, {vr(t,2)}, {vr(t+2,2)}")
        un = []
        for i in range(2, 18):
            un.append(f"v_lshlrev_b32 {vr(F+2*i)}, 16, {vr(X+i)}\nv_and_b32 {vr(F+2*i+1)}, 0xffff0000, {vr(X+i)}")
        sv = (a.bg, a.every, a.cnt, a.skip)
        n0 = len(a.lines)
        a.bg, a.every = [], 0
        self.ln_tail(F, out, t, True)
        tail = a.lines[n0:]
        del a.lines[n0:]
        a.bg, a.every, a.cnt, a.skip = sv
        k = next(i for i, l in enumerate(tail) if "v_pk_fma" in l)
        for i, l in enumerate(tail[:k]):
            if "s_nop" in l and un: continue_nop = True
            a(l)
            if un and not l.strip().startswith("s_nop"): a(un.pop(0))
        while un: a(un.pop(0))
        for l in tail[k:]: a(l)

    def ln_f32(self, F, out, t):
        a = self.a
        p = lambda r: vr(r, 2)
        a(f"v_pk_add_f32 {p(t)}, {p(F)}, {p(F+2)}\nv_pk_add_f32 {p(t+2)}, {p(F+4)}, {p(F+6)}")
        a(f"v_pk_mul_f32 {p(t+4)}, {p(F)}, {p(F)}\nv_pk_mul_f32 {p(t+6)}, {p(F+2)}, {p(F+2)}")
        for i in range(2, 18):
            if i >= 4: a(f"v_pk_add_f32 {p(t+2*(i&1))}, {p(t+2*(i&1))}, {p(F+2*i)}")
            a(f"v_pk_fma_f32 {p(t+4+2*(i&1))}, {p(F+2*i)}, {p(F+2*i)}, {p(t+4+2*(i&1))}")
        a(f"v_pk_add_f32 {p(t)}, {p(t)}, {p(t+2)}\nv_pk_add_f32 {p(t+4)}, {p(t+4)}, {p(t+6)}")
        a(f"v_add_f32 {vr(t)}, {vr(t)}, {vr(t+1)}\nv_add_f32 {vr(t+1)}, {vr(t+4)}, {vr(t+5)}")
        self.ln_tail(F, out, t, False)

    def gemm_u(self, AF, rf, Bs, ACC, afr, bfr, post, vm_items=(), other=(), lead=7, vm0=0, vmsp=4):
        a = self.a
        units = [(0, j) for j in range(4)] + [(1, j) for j in range(4)] + [(2, 0)]
        seq, dl = [], {}
        bs = lambda j, o_, n: self.rg((Bs[j][0], Bs[j][1] + o_), n)
        rem = lambda u: (f"v_mfma_f32_16x16x16_bf16 {vr(ACC+4*u,4)}, {rf(AF+18*units[u][0]+16,2)}, {bs(units[u][1],16,2)}, {vr(ACC+4*u,4)}", u)
        A = [afr(t) for t in range(3)]
        Bf = [bfr(j) for j in range(4)]

        def use(t, j, s, k):
            for x in (A[t][2 * s:2 * s + 2] if s < 4 else A[t][8:]) + ([Bf[j][s]] if Bf[j] else []): dl.setdefault(x, k)
        for g in range(4):
            for s in range(4):
                for u in range(3 * g, 3 * g + 3) if g < 3 else []:
                    t, j = units[u]
                    d = vr(ACC + 4 * u, 4)
                    use(t, j, s, len(seq))
                    seq.append((f"v_mfma_f32_16x16x32_bf16 {d}, {rf(AF+18*t+4*s,4)}, {bs(j,4*s,4)}, {'0' if s == 0 else d}", None))
                if s == 0 and g > 0:
                    for u in range(3 * g - 3, 3 * g):
                        use(units[u][0], units[u][1], 4, len(seq)); seq.append(rem(u))
        last = seq[-3:]; seq = seq[:-3]
        ds = sorted(dl.items(), key=lambda e: e[1]) + [(x, 99) for x in other]
        vm_items = list(vm_items)
        lastvm = vm0 - vmsp
        order, ready, q, done = [], [], [], 0

        def issue():
            x, k_ = ds.pop(0); a(x); order.append(k_)

        def wait(k):
            nonlocal done
            idx = [i_ for i_, k_ in enumerate(order) if k_ <= k]
            if idx and max(idx) + 1 > done:
                a(f"s_waitcnt lgkmcnt({min(15, len(order) - 1 - max(idx))})"); done = max(idx) + 1
        while ds and ds[0][1] < 6: issue()
        for k, (m, fin) in enumerate(seq):
            assert not ds or ds[0][1] > k, (k, ds[0])
            wait(k)
            a(m)
            for u_, kk in list(ready):
                if k - kk >= 4: q += post(u_); ready.remove((u_, kk))
            if fin is not None: ready.append((fin, k))
            due = sum(1 for x, k_ in ds if k_ <= k + lead)
            if due == 0 and vm_items and k >= lastvm + vmsp:
                a(vm_items.pop(0)); lastvm = k; continue
            cap = 2
            for _ in range(min(due, 3)): issue(); cap -= 1
            if cap == 2:
                if q and q[0].startswith("ds_"): a(q.pop(0)); order.append(99); cap -= 1
                elif ds: issue(); cap -= 1
            while cap > 0 and q and not q[0].startswith("ds_"):
                a(q.pop(0)); cap -= 1
        assert not ready
        while ds: issue()
        wait(98)
        for x in vm_items: a(x)
        for x in q[:4]: a(x)
        a(f"s_nop {max(0, 4 - len(q[:4]))}")
        for m, _ in last: a(m)
        for x in q[4:]: a(x)
        a(f"s_nop {max(0, 6 - len(q[4:]))}")
        for u in range(6, 9):
            for x in post(u): a(x)

    def gemm(self, reads, B, ACC, AF, late=(), at={}, per=2):
        a = self.a
        buf = lambda T: 18 * (T % 6)
        ng = 3 * (4 * per + 1)

        def grp(g):
            r = [reads(T, buf(T)) for T in range(3 * g, 3 * g + 3)]
            return [r[t][per * s + u] for s in range(4) for t in range(3) for u in range(per)] + [r[t][4 * per] for t in range(3)]
        rem = lambda T: f"v_mfma_f32_16x16x16_bf16 {vr(ACC+4*T,4)}, {ar(buf(T)+16,2)}, {vr(B+16,2)}, {vr(ACC+4*T,4)}"
        pend = grp(0) + grp(1) + grp(2) + list(late)
        issued = k = 0

        def issue(n):
            nonlocal issued
            for _ in range(n):
                if issued < len(pend): a(pend[issued]); issued += 1

        def mf(x):
            nonlocal k
            a(x); issue(per if per == 2 else (2 if k % 4 == 0 else 1))
            if k in at: a(at[k])
            k += 1
        issue(self.o.get('look', 12) if per == 2 else self.o.get('look1', 8))
        for g in range(3):
            for s in range(4):
                need = ng * g + 3 * per * (s + 1)
                a(f"s_waitcnt lgkmcnt({min(15, issued - need)})")
                for T in range(3 * g, 3 * g + 3):
                    d = vr(ACC + 4 * T, 4)
                    mf(f"v_mfma_f32_16x16x32_bf16 {d}, {ar(buf(T)+4*s,4)}, {vr(B+4*s,4)}, {'0' if s == 0 else d}")
                if s == 0 and g > 0:
                    for T in range(3 * g - 3, 3 * g): mf(rem(T))
                if g == 1 and s == 0: assert issued <= 2 * ng + 6 * per, "group 2 overwrites group 0 too early"
        issue(99)
        a(f"s_waitcnt lgkmcnt({len(late)})\ns_nop 2")
        for T in range(6, 9): a(rem(T))
        a("s_nop 7")

    def tr_reads(self, ad, rf=ar):
        def f(T, dst):
            out = []
            for s in range(4):
                for u in range(2):
                    out.append(f"ds_read_b64_tr_b16 {rf(dst+4*s+2*u,2)}, {vr(ad+u)} offset:{9216*s + 32*T}")
            out.append(f"ds_read_b64_tr_b16 {rf(dst+16,2)}, {vr(ad+2)} offset:{36864 + 32*T}")
            return out
        return f

    def row_reads(self, ad, sw=None):
        def f(T, dst):
            r = ad if sw is None or T == 8 else sw[T & 1]
            out = []
            for s in range(4):
                for u in range(2):
                    out.append(f"ds_read_b64 {ar(dst+4*s+2*u,2)}, {vr(r)} offset:{4864*T + 64*s + 32*u}")
            out.append(f"ds_read_b64 {ar(dst+16,2)}, {vr(r)} offset:{4864*T + 256}")
            return out
        return f

    def dma_rows(self, jobs, cpr, rstride, vo, vc, n_first, first_waves, lab):
        a = self.a
        mul = {18: 3641, 19: 3450}[cpr]
        dr, dc = 256 // cpr, 256 % cpr
        a(f"s_lshl_b32 {sr(S_T)}, {sr(S_W)}, 6")
        a(f"v_add_u32 {vr(vc)}, {sr(S_T)}, v0")
        a(f"v_mul_u32_u24 {vr(vo)}, {mul}, {vr(vc)}")
        a(f"v_lshrrev_b32 {vr(vo)}, 16, {vr(vo)}")
        a(f"v_mul_u32_u24 {vr(vc+1)}, {cpr}, {vr(vo)}")
        a(f"v_sub_u32 {vr(vc)}, {vr(vc)}, {vr(vc+1)}")
        a(f"v_mul_u32_u24 {vr(vo)}, {rstride}, {vr(vo)}")
        a(f"v_lshl_add_u32 {vr(vo)}, {vr(vc)}, 4, {vr(vo)}")
        a(f"s_lshl_b32 {sr(S_T)}, {sr(S_W)}, 10")
        a(f"v_mov_b32 {vr(vc+1)}, {rstride - 16*cpr}")
        for k in range(n_first):
            if k == n_first - 1:
                a(f"s_cmp_ge_u32 {sr(S_W)}, {first_waves}\ns_cbranch_scc1 {lab}")
            for srd, so, lb in jobs:
                a(f"s_add_u32 m0, {sr(S_T)}, {lb + 4096*k}")
                a("s_nop 0")
                a(f"buffer_load_dwordx4 {vr(vo)}, {sr(srd,4)}, {so} offen lds")
            if k < n_first - 1:
                a(f"v_add_u32 {vr(vc)}, {dc}, {vr(vc)}")
                a(f"v_cmp_le_u32 vcc, {cpr}, {vr(vc)}")
                a(f"v_add_u32 {vr(vo)}, {dr*rstride + 16*dc}, {vr(vo)}")
                a(f"v_subrev_u32 {vr(vc+2)}, {cpr}, {vr(vc)}")
                a(f"v_cndmask_b32 {vr(vc)}, {vr(vc)}, {vr(vc+2)}, vcc")
                a(f"v_cndmask_b32 {vr(vc+2)}, 0, {vr(vc+1)}, vcc")
                a(f"v_add_u32 {vr(vo)}, {vr(vo)}, {vr(vc+2)}")
        a.label(lab)

    def voff_table(self, dst, cpr, rstride, vc, step=256):
        a = self.a
        mul = {18: 29128, 19: 27595}[cpr]
        n = len(dst)
        a(f"s_mov_b32 {sr(S_T)}, {rstride - 16*cpr}")
        a(f"v_mul_u32_u24 {vr(dst[0])}, {mul}, {vr(vc)}")
        for k in range(1, n): a(f"v_add_u32 {vr(dst[k])}, {(step*k % cpr)*mul}, {vr(dst[0])}")
        for k in range(n): a(f"v_lshrrev_b32 {vr(dst[k])}, 19, {vr(dst[k])}")
        for k in range(n): a(f"v_mad_i32_i24 {vr(dst[k])}, {vr(dst[k])}, {sr(S_T)}, {vr(vc+1)}")

    def dma_lin(self, srd, soff, lb, v16, lab):
        a = self.a
        a(f"s_lshl_b32 {sr(S_T)}, {sr(S_W)}, 10")
        for k in range(11):
            if k == 10:
                a(f"s_cmp_ge_u32 {sr(S_W)}, 1\ns_cbranch_scc1 {lab}")
            a(f"s_add_u32 m0, {sr(S_T)}, {lb + 4096*k}")
            a(f"s_add_u32 {sr(S_T+1)}, {sr(S_T)}, {soff + 4096*k}")
            a(f"buffer_load_dwordx4 {vr(v16)}, {sr(srd,4)}, {sr(S_T+1)} offen lds")
        a.label(lab)

    def tr_addr(self, ad, base, swapped, t):
        a = self.a
        a(f"v_lshrrev_b32 {vr(t)}, 2, v0")
        a(f"v_mul_u32_u24 {vr(t)}, 288, {vr(t)}")
        a(f"v_and_b32 {vr(t+1)}, 3, v0")
        a(f"v_lshl_add_u32 {vr(t)}, {vr(t+1)}, 3, {vr(t)}")
        a(f"v_add_u32 {vr(ad+2)}, {base}, {vr(t)}")
        if swapped:
            a(f"v_bfe_u32 {vr(t)}, v0, 4, 1")
            a(f"v_mul_u32_u24 {vr(t)}, {16*288}, {vr(t)}")
            a(f"v_add_u32 {vr(ad)}, {vr(ad+2)}, {vr(t)}")
            a(f"v_sub_u32 {vr(ad+1)}, {vr(ad+2)}, {vr(t)}")
            a(f"v_add_u32 {vr(ad+1)}, {16*288}, {vr(ad+1)}")
        else:
            a(f"v_mov_b32 {vr(ad)}, {vr(ad+2)}")
            a(f"v_add_u32 {vr(ad+1)}, {16*288}, {vr(ad+2)}")

    def row_addr(self, ad, base, t):
        a = self.a
        a(f"v_and_b32 {vr(t)}, 15, v0")
        a(f"v_mul_u32_u24 {vr(t)}, 304, {vr(t)}")
        a(f"v_lshrrev_b32 {vr(t+1)}, 4, v0")
        a(f"v_lshl_add_u32 {vr(t)}, {vr(t+1)}, 3, {vr(t)}")
        a(f"v_add_u32 {vr(ad)}, {base}, {vr(t)}")

    def store_block(self, src, v16, v8, srd, soff, soff2, flags=""):
        a = self.a
        for s in range(4):
            a(f"buffer_store_dwordx4 {vr(src+4*s,4)}, {vr(v16)}, {sr(srd,4)}, {sr(soff)} offen offset:{1024*s} {flags}")
        a(f"buffer_store_dwordx2 {vr(src+16,2)}, {vr(v8)}, {sr(srd,4)}, {sr(soff2)} offen {flags}")

    def entry(self):
        a = self.a
        kernel_header(a, NAME)
        a(f"s_load_dwordx16 s[56:71], s[0:1], 0")
        a(f"s_load_dwordx8 s[72:79], s[0:1], 64")
        a(f"s_getpc_b64 {sr(S_W1,2)}")
        a.label("L_pf")
        hl = self.o.get("hlast", 1)
        if not hl: a(f"s_cmp_lt_u32 s2, {NH}\ns_cbranch_scc1 L_wfuse")
        a(f"""s_mov_b32 {sr(S_W1+2)}, L_dummy-L_pf
        s_mov_b32 {sr(S_W1+3)}, 0x20000
        v_lshlrev_b32 v1, 4, v0
        s_bfe_u32 {sr(S_T)}, s2, 0x30003
        s_lshl_b32 {sr(S_T)}, {sr(S_T)}, 12
        buffer_load_dwordx4 v[252:255], v1, {sr(S_W1,4)}, 0 offen
        buffer_load_dwordx4 v[252:255], v1, {sr(S_W1,4)}, {sr(S_T)} offen
        s_cmp_ge_u32 s2, {NWG - NH * hl}
        s_cbranch_scc1 {"L_wfuse" if hl else "L_end"}""")
        if self.o.get("late"):
            m_, v_, n_ = self.o["late"]
            a(f"""s_and_b32 s3, s2, {m_}
            s_cmp_lg_u32 s3, {v_}
            s_cbranch_scc1 L_nl
            s_memrealtime s[4:5]
            s_waitcnt lgkmcnt(0)
            s_add_u32 s6, s4, {n_}
            L_lt:
            s_memrealtime s[4:5]
            s_waitcnt lgkmcnt(0)
            s_sub_u32 s7, s6, s4
            s_cmp_gt_i32 s7, 0
            s_cbranch_scc1 L_lt
            L_nl:""")
        if self.o.get("stamps"):
            a("s_memrealtime s[100:101]" if not self.o.get("cyc") else "s_memtime s[100:101]")
        self.mp = 2
        a(f"""v_lshrrev_b32 v1, 6, v0
        s_sub_u32 s2, s2, {0 if hl else NH}
        v_readfirstlane_b32 {sr(S_W)}, v1
        s_and_b32 {sr(S_H)}, s2, 1
        s_bfe_u32 {sr(S_B)}, s2, 0x10001
        s_lshr_b32 {sr(S_QB)}, s2, 2
        v_and_b32 v0, 63, v0
        v_lshlrev_b32 {vr(V_DMA)}, 4, v0""")

    def vm_since(self, mark):
        return sum(1 for l in self.a.lines[mark:] if l.strip().startswith("buffer_"))

    def phase_a(self):
        a, o = self.a, self.o
        XR, XF, XA, ACC, G_, PK = 16, 34, 146, 110, 16, 164
        B4, XD = 16, 88
        VS, VSW, VR4, MXA, MXR, L8, TRU, TRQ, TRQ8, RK, TM = 200, 204, 208, 212, 213, 214, 215, 218, 221, 224, 228
        VK, VU = list(range(182, 193)), list(range(193, 200)) + list(range(104, 108))
        AQ1 = 200
        t0, t1, t2 = 250, 251, 227
        T = S_T
        WV, W10, UOFF, M1, PUB, M3 = 72, 70, 71, 69, 68, 65
        a(f"""s_lshl_b32 {sr(T)}, {sr(S_QB)}, 1
        s_add_u32 {sr(S_TOWN)}, {sr(T)}, {sr(S_H)}
        s_xor_b32 {sr(S_TSND)}, {sr(S_TOWN)}, 1
        s_cmp_lt_u32 {sr(S_TOWN)}, {NT}
        s_cselect_b32 {sr(S_VAL)}, 1, 0
        s_cmp_lt_u32 {sr(S_W)}, 2
        s_cselect_b32 {sr(T+3)}, {sr(S_TSND)}, {sr(S_TOWN)}
        s_mul_i32 {sr(T)}, {sr(S_B)}, {NT}
        s_add_u32 {sr(S_TOWN)}, {sr(S_TOWN)}, {sr(T)}
        s_add_u32 {sr(S_TSND)}, {sr(S_TSND)}, {sr(T)}
        s_add_u32 {sr(T+1)}, {sr(T+3)}, {sr(T)}
        s_lshl_b32 {sr(T+1)}, {sr(T+1)}, 1
        s_and_b32 {sr(T+2)}, {sr(S_W)}, 1
        s_add_u32 {sr(T+2)}, {sr(T+1)}, {sr(T+2)}
        s_mul_i32 {sr(T+1)}, {sr(T+2)}, {16*288}
        s_mul_i32 {sr(S_LB)}, {sr(S_W)}, {BLK}
        s_add_u32 {sr(S_LB)}, {sr(S_LB)}, {L_XS}
        s_mov_b32 m0, {sr(S_LB)}
        s_mov_b32 {sr(S_X+2)}, 2304000
        s_mov_b32 {sr(S_X+3)}, 0x20000
        s_add_u32 {sr(S_CNT)}, {sr(T+1)}, 4096
        s_waitcnt lgkmcnt(0)
        s_mov_b32 {sr(S_X)}, s56
        s_mov_b32 {sr(S_X+1)}, s57""")
        for k in range(4): a(f"buffer_load_dwordx4 {vr(V_DMA)}, {sr(S_X,4)}, {sr(T+1)} offen offset:{1024*k} lds")
        a(f"s_add_u32 m0, {sr(S_LB)}, 4096\ns_mov_b32 exec_hi, 0\nbuffer_load_dwordx4 {vr(V_DMA)}, {sr(S_X,4)}, {sr(S_CNT)} offen lds\ns_mov_b32 exec_hi, -1")
        mx = len(a.lines)
        SQ, SK, SU = S_W2, S_W1, S_XA
        self.srd(SU, 66, 67, 82944)
        self.srd(SQ, 58, 59, 41472)
        self.srd(SK, 60, 61, 41472)
        a(f"s_lshr_b32 {sr(T)}, s2, 3\ns_lshl_b32 {sr(T)}, {sr(T)}, 12\ns_lshl_b32 {sr(W10)}, {sr(S_W)}, 10\ns_add_u32 {sr(T)}, {sr(T)}, {sr(W10)}")
        a(f"buffer_load_dwordx4 v[252:255], {vr(V_DMA)}, {sr(SU,4)}, {sr(T)} offen")
        for srd_, rot in ((SQ, 82), (SK, 41)):
            a(f"s_add_u32 {sr(T+1)}, {sr(T)}, {(128 - rot) * 1024}\ns_and_b32 {sr(T+1)}, {sr(T+1)}, {127 * 1024}")
            a(f"buffer_load_dwordx4 v[252:255], {vr(V_DMA)}, {sr(srd_,4)}, {sr(T+1)} offen")
        self.srd(S_OUT, 74, 75, 2304000)
        self.srd(S_DB, 76, 77, 256)
        self.srd(S_WS, 78, 79, WS_END)
        def tlb():
            a(f"v_lshlrev_b32 v249, 21, v0")
            for ch in o.get("tlbw", "wdo"): a(f"buffer_load_dword v252, v249, {sr(dict(w=S_WS, d=S_DB, o=S_OUT)[ch],4)}, 0 offen")
        if o.get("tlb", 0) == 1: tlb()
        if o.get("tlb", 0) == 3:
            a(f"""s_bfe_u32 {sr(T)}, s2, 0x30003
            s_lshl_b32 {sr(T)}, {sr(T)}, 21
            v_mov_b32 v249, 0
            s_cmp_lt_u32 {sr(T)}, {5 << 21}
            s_cbranch_scc0 L_tl1
            buffer_load_dword v252, v249, {sr(S_WS,4)}, {sr(T)} offen
            s_branch L_tl3
            L_tl1:
            s_sub_u32 {sr(T)}, {sr(T)}, {5 << 21}
            s_cmp_lt_u32 {sr(T)}, {2 << 21}
            s_cbranch_scc0 L_tl2
            buffer_load_dword v252, v249, {sr(S_OUT,4)}, {sr(T)} offen
            s_branch L_tl3
            L_tl2:
            buffer_load_dword v252, v249, {sr(S_DB,4)}, 0 offen
            L_tl3:""")
            self.vm_adj = -2
        if o.get("stamps"): a(f"s_mov_b64 {sr(S_ST,2)}, s[100:101]"); self.stnames.append("start"); self.nst = 1
        self.stamp("xiss")
        a(f"""s_cmp_lt_u32 {sr(T+3)}, {NT}
        s_cselect_b32 {sr(WV)}, 1, 0
        s_mov_b32 {sr(WV+1)}, {sr(T+2)}
        s_mul_i32 {sr(UOFF)}, {sr(S_H)}, 288
        s_cmp_eq_u32 {sr(S_W)}, 0
        s_cselect_b32 {sr(M1)}, 0, {L_DUMP}
        s_cmp_lt_u32 {sr(S_W)}, 3
        s_cselect_b32 {sr(M3)}, {sr(W10)}, {L_DUMP}""")
        half = lambda g_: "s_mov_b32 exec_hi, 0\n" + g_ + "\ns_mov_b32 exec_hi, -1"
        gu = [f"s_add_u32 m0, {sr(W10 if k < 10 else M1)}, {L_WU + 4096*k}\ns_add_u32 {sr(S_CNT)}, {sr(UOFF)}, {4096*k + 288*(256*k//18)}\nbuffer_load_dwordx4 {vr(VU[k])}, {sr(SU,4)}, {sr(S_CNT)} offen lds" for k in range(11)]
        gu[10] = half(gu[10])
        gq = [f"s_add_u32 m0, {sr(W10 if k < 10 else M1)}, {L_WQ + 4096*k}\ns_add_u32 {sr(S_CNT)}, {sr(W10)}, {4096*k}\nbuffer_load_dwordx4 {vr(V_DMA)}, {sr(SQ,4)}, {sr(S_CNT)} offen lds" for k in range(11)]
        gq[10] = half(gq[10])
        gk = [f"s_add_u32 m0, {sr(W10 if k < 10 else M3)}, {L_WK + 4096*k}\ns_mov_b32 {sr(S_CNT)}, {4096*k - 16*(256*k//19)}\nbuffer_load_dwordx4 {vr(VK[k])}, {sr(SK,4)}, {sr(S_CNT)} offen lds" for k in range(11)]
        a(f"s_lshl_b32 {sr(T)}, {sr(S_W)}, 6\nv_add_u32 {vr(t0)}, {sr(T)}, v0\nv_lshlrev_b32 {vr(t1)}, 4, {vr(t0)}")
        self.voff_table(VU, 18, 576, t0)
        npre = o.get("npre", 6)
        a.bg, a.every, a.cnt = gu[:npre], o.get("evpre", 14), 0
        self.voff_table(VK, 19, 288, t0)
        xa0, xa1, xa2 = TM, TM + 1, TM + 2
        a(f"""v_and_b32 {vr(t0)}, 15, v0
        v_lshrrev_b32 {vr(t1)}, 5, v0
        v_lshlrev_b32 {vr(t1)}, 3, {vr(t1)}
        v_xor_b32 {vr(t1)}, {vr(t0)}, {vr(t1)}
        v_lshlrev_b32 {vr(t1)}, 4, {vr(t1)}
        v_lshrrev_b32 {vr(t2)}, 4, v0
        v_lshl_add_u32 {vr(V_KA)}, {vr(t2)}, 9, {vr(t1)}
        v_lshrrev_b32 {vr(t1)}, 3, {vr(t0)}
        v_lshlrev_b32 {vr(t1)}, 1, {vr(t1)}
        v_xor_b32 {vr(t1)}, {vr(t2)}, {vr(t1)}
        v_lshl_add_u32 {vr(t1)}, {vr(t0)}, 2, {vr(t1)}
        v_lshlrev_b32 {vr(V_KA+1)}, 3, {vr(t1)}
        v_lshlrev_b32 {vr(L8)}, 3, v0
        v_lshlrev_b32 {vr(MXR)}, 4, {vr(t0)}
        v_add_u32 {vr(MXR)}, {L_MX}, {vr(MXR)}
        v_add_u32 {vr(MXA)}, {sr(S_W)}, {vr(t2)}
        v_and_b32 {vr(MXA)}, 3, {vr(MXA)}
        v_lshl_add_u32 {vr(MXA)}, {vr(MXA)}, 8, {vr(MXR)}
        s_lshl_b32 {sr(T)}, {sr(S_W)}, 2
        v_add_u32 {vr(MXA)}, {sr(T)}, {vr(MXA)}
        v_mul_u32_u24 {vr(xa2)}, 288, {vr(t0)}
        v_lshl_add_u32 {vr(xa2)}, {vr(t2)}, 3, {vr(xa2)}
        v_add_u32 {vr(xa2)}, {sr(S_LB)}, {vr(xa2)}
        v_and_b32 {vr(t1)}, 1, {vr(t2)}
        v_lshlrev_b32 {vr(t1)}, 5, {vr(t1)}
        v_add_u32 {vr(xa0)}, {vr(xa2)}, {vr(t1)}
        v_xor_b32 {vr(t1)}, 32, {vr(t1)}
        v_add_u32 {vr(xa1)}, {vr(xa2)}, {vr(t1)}
        s_mul_i32 {sr(S_LB)}, {sr(S_W)}, {TILE}
        v_lshrrev_b32 {vr(t0)}, 2, v0
        v_bfe_u32 {vr(t1)}, v0, 1, 1
        v_lshlrev_b32 {vr(t1)}, 3, {vr(t1)}
        v_xor_b32 {vr(t1)}, {vr(t0)}, {vr(t1)}
        v_lshlrev_b32 {vr(t1)}, 4, {vr(t1)}
        v_and_b32 {vr(t2)}, 3, v0
        v_lshl_add_u32 {vr(t1)}, {vr(t2)}, 9, {vr(t1)}
        v_and_b32 {vr(V_VA)}, 1, v0
        v_lshl_add_u32 {vr(t1)}, {vr(V_VA)}, 3, {vr(t1)}
        s_and_b32 {sr(T)}, {sr(S_W)}, 1
        s_lshl_b32 {sr(T)}, {sr(T)}, 12
        s_add_u32 {sr(T+1)}, {sr(T)}, {sr(S_LB)}
        s_xor_b32 {sr(T)}, {sr(T)}, 4096
        s_add_u32 {sr(T)}, {sr(T)}, {sr(S_LB)}
        v_add_u32 {vr(V_VA)}, {sr(T)}, {vr(t1)}
        v_add_u32 {vr(V_VB)}, {sr(T+1)}, {vr(t1)}
        v_xor_b32 {vr(V_VA+1)}, 8, {vr(V_VA)}
        v_xor_b32 {vr(V_VB+1)}, 8, {vr(V_VB)}
        v_lshrrev_b32 {vr(t1)}, 5, v0
        v_lshlrev_b32 {vr(t1)}, 1, {vr(t1)}
        v_xor_b32 {vr(t1)}, {vr(t2)}, {vr(t1)}
        v_lshl_add_u32 {vr(t1)}, {vr(t0)}, 2, {vr(t1)}
        v_lshlrev_b32 {vr(t1)}, 3, {vr(t1)}
        v_add_u32 {vr(V_VR)}, {sr(S_LB)}, {vr(t1)}
        v_add_u32 {vr(V_DMA+1)}, 4096, {vr(V_DMA)}
        v_add_u32 {vr(V_DMA+2)}, 8192, {vr(V_DMA)}""")
        self.tr_addr(TRU, L_WU, True, t0)
        a(f"s_lshl_b32 {sr(T)}, {sr(S_W)}, 6\ns_add_u32 {sr(T)}, {sr(T)}, {L_WQ - L_WU}")
        for k in range(3):
            a(f"v_add_u32 {vr(TRQ+k)}, {sr(T)}, {vr(TRU+k)}\nv_add_u32 {vr(TRQ8+k)}, {L_WQ - L_WU + 256}, {vr(TRU+k)}")
        self.row_addr(RK + 2, L_WK + 8 * 4864, t0)
        a(f"""s_mul_i32 {sr(T)}, {sr(S_W)}, {2*4864}
        s_sub_u32 {sr(T)}, {sr(T)}, {8*4864}
        v_add_u32 {vr(t1)}, {sr(T)}, {vr(RK+2)}
        v_bfe_u32 {vr(t0)}, v0, 2, 1
        v_mul_u32_u24 {vr(t0)}, 4864, {vr(t0)}
        v_add_u32 {vr(RK)}, {vr(t1)}, {vr(t0)}
        v_sub_u32 {vr(RK+1)}, {vr(t1)}, {vr(t0)}""")
        for j in range(4):
            a(f"""s_add_u32 {sr(T)}, {sr(S_W)}, {j}
            s_and_b32 {sr(T)}, {sr(T)}, 3
            s_lshl_b32 {sr(T+1)}, {sr(T)}, 12
            s_add_u32 {sr(T+1)}, {sr(T+1)}, {L_XX}
            v_add_u32 {vr(VS+j)}, {sr(T+1)}, {vr(V_DMA)}
            s_lshl_b32 {sr(T+1)}, {sr(T)}, 9
            s_add_u32 {sr(T+1)}, {sr(T+1)}, {L_XR}
            v_add_u32 {vr(VR4+j)}, {sr(T+1)}, {vr(L8)}
            v_add_u32 {vr(VSW+j)}, {sr(W10)}, {vr(VS+j)}""")
        a(f"""s_sub_u32 {sr(T+2)}, 63, {sr(S_H)}
        s_add_u32 {sr(T+3)}, {sr(S_W)}, 60
        s_cmp_ge_u32 {sr(T+3)}, {sr(T+2)}
        s_cselect_b32 {sr(S_DUM)}, 4, 99
        s_mov_b32 {sr(S_REDO)}, 0
        s_mov_b32 {sr(S_TOFF)}, {sr(S_LB)}
        s_sub_u32 {sr(T)}, {sr(S_TOWN)}, 63
        s_mul_i32 {sr(T+1)}, {sr(S_B)}, {NT}
        s_cmp_ge_i32 {sr(T)}, {sr(T+1)}
        s_cselect_b32 {sr(T)}, 64, 0
        s_lshl_b32 {sr(T+1)}, {sr(S_B)}, 7
        s_add_u32 {sr(PUB)}, {sr(T)}, {sr(T+1)}
        s_cmp_eq_u32 {sr(S_W)}, 2
        s_cselect_b32 {sr(T)}, {sr(S_VAL)}, 0
        s_cmp_eq_u32 {sr(T)}, 1
        s_cselect_b32 {sr(PUB)}, {sr(PUB)}, 0x40000000
        s_add_u32 {sr(T+1)}, {sr(T+1)}, {DB_CB}
        v_mov_b32 {vr(self.VPL)}, {sr(T+1)}""")
        a.flush()
        if o.get("tlb", 0) == 2: tlb()
        self.stamp("pre")
        if o.get("es", 0) == 0: self.epi_setup()
        self.stamp("es")
        nx = self.vm_since(mx) + getattr(self, "vm_adj", 0)
        if o.get("touch", 1):
            a(f"""s_mov_b64 exec, 0
            s_cmp_eq_u32 {sr(S_W)}, 0
            s_cbranch_scc1 L_tr
            s_cmp_eq_u32 {sr(S_W)}, 1
            s_cbranch_scc1 L_t0
            s_cmp_eq_u32 {sr(S_W)}, 2
            s_cbranch_scc1 L_t1
            s_branch L_t2""")
            self.rare()
            a.raw(".p2align 12")
            a.label("L_tr")
            a("s_mov_b64 exec, -1")
        nlate = o.get("nlate", 0)
        for g_ in gu[npre:npre + nlate]: a(g_)
        a(f"s_waitcnt vmcnt({nx + nlate})")
        self.stamp("xarr")
        for s in range(4):
            a(f"ds_read_b64 {vr(XR+4*s,2)}, {vr(xa0)} offset:{64*s}\nds_read_b64 {vr(XR+4*s+2,2)}, {vr(xa1)} offset:{64*s}")
        a(f"ds_read_b64 {vr(XR+16,2)}, {vr(xa2)} offset:256")
        a(f"""s_and_b32 {sr(T)}, {sr(S_W)}, 1
        s_mul_i32 {sr(T+2)}, {sr(S_TOWN)}, {TILE}
        s_cmp_eq_u32 {sr(S_VAL)}, 1
        s_cselect_b32 {sr(T+2)}, {sr(T+2)}, 0x40000000
        s_lshl_b32 {sr(T+3)}, {sr(T)}, 8
        s_add_u32 {sr(T+3)}, {sr(T+3)}, {sr(T+2)}
        s_add_u32 {sr(T+4)}, {sr(T+3)}, 4096
        s_lshl_b32 {sr(T+5)}, {sr(T)}, 9
        s_add_u32 {sr(T+5)}, {sr(T+5)}, {sr(T+2)}
        s_add_u32 {sr(T+5)}, {sr(T+5)}, 8192
        s_waitcnt lgkmcnt(0)""")
        wl = gq + gk
        a.bg, a.every, a.cnt = gu[npre + nlate:] + [wl.pop(0) for _ in range(o.get("nql", 4))], o.get("evln", 10), 0
        self.ln_packed(XR, XF, XA, TM)
        a.flush()
        self.stamp("ln")
        a(f"s_cmp_lt_u32 {sr(S_W)}, 2\ns_cbranch_scc1 L_nop")
        for s in range(4):
            a(f"buffer_store_dwordx4 {vr(XA+4*s,4)}, {vr(V_KA)}, {sr(S_WS,4)}, {sr(T+3+(s>>1))} offen offset:{2048*(s&1)} sc1")
        a(f"buffer_store_dwordx2 {vr(XA+16,2)}, {vr(V_KA+1)}, {sr(S_WS,4)}, {sr(T+5)} offen sc1\ns_waitcnt vmcnt({5 + o.get('nql', 4)})\ns_branch L_bar1")
        a.label("L_nop")
        if o.get("touch", 1):
            a(f"s_mov_b64 exec, 0\ns_cmp_eq_u32 {sr(S_W)}, 0\ns_cbranch_scc1 L_t3\ns_branch L_t4")
            a.label("L_tr2")
            a("s_mov_b64 exec, -1")
        a(f"s_waitcnt vmcnt({o.get('nql', 4)})")
        a.label("L_bar1")
        self.stamp("pub")
        xw = [f"ds_write_b128 {vr(VS)}, {vr(XA+4*s,4)} offset:{1024*s}" for s in range(4)] + [f"ds_write_b64 {vr(VR4)}, {vr(XA+16,2)}"]
        self.stamp("tch")
        PA = 249
        a(f"""v_add_u32 {vr(V_KA)}, {sr(S_LB)}, {vr(V_KA)}
        v_add_u32 {vr(V_KA+1)}, {sr(S_LB)}, {vr(V_KA+1)}
        s_lshl1_add_u32 {sr(T)}, {sr(S_B)}, {sr(S_H)}
        s_lshl_b32 {sr(T)}, {sr(T)}, 6
        s_cmp_eq_u32 {sr(S_W)}, 0
        s_cselect_b32 {sr(T)}, {sr(T)}, 0x40000000
        v_mov_b32 {vr(PA)}, {sr(T)}
        {self.xa_srd()}
        s_waitcnt lgkmcnt(0)""")
        self.stamp("w1")
        a("s_barrier")
        self.stamp("bar1")
        poll = lambda r: f"buffer_load_dword {vr(r)}, {vr(PA)}, {sr(S_DB,4)}, 0 offen sc1"

        def gate(lab, r, word, need, younger):
            a(f"s_mov_b32 {sr(T+2)}, 0\ns_waitcnt vmcnt({younger})")
            a.label(lab)
            a(f"""v_readfirstlane_b32 {sr(T+3)}, {vr(r+word)}
            s_add_u32 {sr(T+2)}, {sr(T+2)}, 1
            s_cmp_ge_u32 {sr(T+3)}, {need}
            s_cbranch_scc1 {lab}_ok
            s_sleep {o.get("slp", 0)}
            {poll(r)}
            s_waitcnt vmcnt(0)
            s_cmp_lt_u32 {sr(T+2)}, 0x40000
            s_cbranch_scc1 {lab}""")
            a.label(lab + "_ok")

        H, G_, UG, MS, CL = 16, 52, 208, 110, 104
        nup = o.get("nup", 12)
        at = {o.get("u0", 6) + o.get("usp", 3) * i: wl.pop(0) for i in range(nup)}
        for i in range(5): at[i] = xw[i]
        if o.get("es", 0) == 1:
            n_ = len(a.lines); self.epi_setup()
            el = [l.strip() for l in a.lines[n_:]]; del a.lines[n_:]
            for k in range(5, 42):
                if k in at: continue
                c_ = 0
                while el and c_ < o.get("esn", 2):
                    x = el.pop(0); at[k] = at.get(k, "") + x + "\n"; c_ += 1 if x.startswith("v_") else 0.5
            self.es_left = el
        self.gemm(self.tr_reads(TRU), XA, H, None, at=at)
        if o.get("es", 0) == 1:
            for x in self.es_left: a(x)
        self.stamp("up")
        last = lambda srd: max(i for i, l in enumerate(a.lines) if l.strip().startswith("buffer_load") and sr(srd, 4) in l) + 1
        assert not any(sr(SQ, 4) in x for x in wl)
        a(f"v_mov_b32 {vr(t0)}, {sr(PUB)}\nv_mov_b32 {vr(t1)}, 1\ns_waitcnt vmcnt({self.vm_since(last(SQ))}) lgkmcnt(0)\ns_barrier")
        a(f"s_mov_b64 exec, 1\nbuffer_atomic_add {vr(t1)}, {vr(t0)}, {sr(S_DB,4)}, 0 offen sc1\ns_mov_b64 exec, -1")
        self.stamp("barG")
        if o.get("atw"):
            a("s_waitcnt vmcnt(0)")
            self.stamp("ack")
        if o.get("census"):
            k_ = S_ST + 2 * self.stnames.index(o["census"][0])
            a(f"s_waitcnt lgkmcnt(0)\nv_mov_b32 v252, {sr(k_)}\ns_lshl_b32 {sr(T)}, s2, 2\ns_add_u32 {sr(T)}, {sr(T)}, {WS_DBG}\nv_mov_b32 v253, 0\nbuffer_store_dword v252, v253, {sr(S_WS,4)}, {sr(T)} offen sc1")

        def a_tr(t):
            ad, off = (TRQ, 32 * t) if t < 2 else (TRQ8, 0)
            return [f"ds_read_b64_tr_b16 {ar(AQ1+18*t+4*s+2*u,2)}, {vr(ad+u)} offset:{9216*s + off}" for s in range(4) for u in range(2)] + \
                   [f"ds_read_b64_tr_b16 {ar(AQ1+18*t+16,2)}, {vr(ad+2)} offset:{36864 + off}"]

        def a_row(t):
            off = 4864 * t if t < 2 else 0
            return [f"ds_read_b64 {ar(A_Q+18*t+4*s+2*u,2)}, {vr(RK+t)} offset:{off + 64*s + 32*u}" for s in range(4) for u in range(2)] + \
                   [f"ds_read_b64 {ar(A_Q+18*t+16,2)}, {vr(RK+t)} offset:{off + 256}"]
        bq = lambda j, d=0: [f"ds_read_b128 {ar(18*j+4*s,4)}, {vr(VS+j)} offset:{d + 1024*s}" for s in range(4)] + [f"ds_read_b64 {ar(18*j+16,2)}, {vr(VR4+j)} offset:{d}"]

        def post(u, scale, d):
            L = [f"v_mul_f32 {vr(ACC+4*u+i)}, {sr(T+4)}, {vr(ACC+4*u+i)}" for i in range(4)] if scale else []
            L += [f"v_cvt_pk_bf16_f32 {vr(PK + (4*(u&3) + 2*(u>>2) if u < 8 else 16) + h)}, {vr(ACC+4*u+2*h)}, {vr(ACC+4*u+2*h+1)}" for h in range(2)]
            if 4 <= u < 8: L.append(f"ds_write_b128 {vr(VSW+u-4)}, {vr(PK+4*(u-4),4)} offset:{d}")
            if u == 8: L.append(f"ds_write_b64 {vr(VR4)}, {vr(PK+16,2)} offset:{d}")
            return L
        xd = [f"ds_read_b128 {vr(XD+4*j,4)}, {vr(VSW+j)}" for j in range(4)]
        self.gemm_u(AQ1, ar, [("v", XA), ("a", 18), ("a", 36), ("a", 54)], ACC, a_tr, lambda j: bq(j) if j else None, lambda u: post(u, False, L_QD),
                    vm_items=wl, other=xd, vmsp=o.get("vmsp", 3))
        self.stamp("g1")
        for i in range(4): a(f"v_mov_b32 {vr(CL+i)}, -1")
        a(f"s_lshl2_add_u32 {sr(T+2)}, s2, {sr(S_W)}\ns_mul_i32 {sr(T+2)}, {sr(T+2)}, 2560\ns_add_u32 {sr(T+2)}, {sr(T+2)}, {WS_IB}")
        a(f"s_mov_b32 {sr(T+4)}, {f32(LOG2E / 12.0)}\ns_waitcnt vmcnt({self.vm_since(last(SK))}) lgkmcnt(0)\ns_barrier")
        clr = [f"buffer_store_dwordx4 {vr(CL,4)}, {vr(V_DMA)}, {sr(S_WS,4)}, {sr(T+2)} offen sc1",
               f"buffer_store_dwordx4 {vr(CL,4)}, {vr(V_DMA)}, {sr(S_WS,4)}, {sr(T+2)} offen offset:1024 sc1",
               f"buffer_store_dwordx2 {vr(CL,2)}, {vr(L8)}, {sr(S_WS,4)}, {sr(T+2)} offen offset:2048 sc1"]
        self.stamp("bar2")
        self.gemm_u(A_Q, ar, [("a", 18 * j) for j in range(4)], ACC, a_row, lambda j: bq(j, L_QD), lambda u: post(u, True, 0), vm_items=[poll(252)] + clr, vm0=o.get("pg", 4), vmsp=o.get("csp", 8))
        self.stamp("g2")
        p = lambda r: vr(r, 2)
        CC = TM
        for j in range(4): a(f"v_dot2_f32_bf16 {vr(CC+j)}, {vr(PK+4*j)}, {vr(XD+4*j)}, 0")
        for i in range(2): a(f"v_dot2_f32_bf16 {vr(CC)}, {vr(PK+16+i)}, {vr(XA+16+i)}, {vr(CC)}")
        for i in range(1, 4):
            for j in range(4): a(f"v_dot2_f32_bf16 {vr(CC+j)}, {vr(PK+4*j+i)}, {vr(XD+4*j+i)}, {vr(CC+j)}")
        QE = TRQ
        a(f"""s_xor_b32 {sr(T+1)}, {sr(self.NB)}, 1
        v_add_u32 {vr(t0)}, {L_XX}, {vr(V_DMA)}
        v_lshl_add_u32 {vr(QE)}, {sr(T+1)}, 12, {vr(t0)}
        v_lshl_add_u32 {vr(QE+1)}, {sr(self.NB)}, 12, {vr(t0)}""")
        self.treduce(CC)
        a(f"""ds_write_b32 {vr(MXA)}, {vr(CC)}
        v_add_u32 {vr(t0)}, {L_XR}, {vr(L8)}
        v_lshl_add_u32 {vr(QE+2)}, {sr(T+1)}, 9, {vr(t0)}
        v_lshl_add_u32 {vr(QE+3)}, {sr(self.NB)}, 9, {vr(t0)}
        v_lshl_add_u32 {vr(QE+4)}, {sr(T+1)}, 8, {vr(MXR)}
        v_lshl_add_u32 {vr(QE+5)}, {sr(self.NB)}, 8, {vr(MXR)}
        s_sub_u32 {sr(T+5)}, 63, {sr(S_H)}
        s_lshr_b32 {sr(T+6)}, s2, 3
        s_lshl_b32 {sr(T+6)}, {sr(T+6)}, 12
        s_add_u32 {sr(T+6)}, {sr(T+6)}, {sr(W10)}
        s_cmp_lg_u32 {sr(S_W)}, 0
        s_cbranch_scc1 L_ga_ok""")
        gate("L_ga", 252, 0, sr(T + 5), 3)
        a("s_waitcnt lgkmcnt(0)\ns_barrier")
        self.stamp("bar3")
        c1 = -2.0 * math.sqrt(2.0 / math.pi) * LOG2E
        c2 = c1 * 0.044715
        qrd = [f"ds_read_b128 {vr(MS+4*qb,4)}, {vr(QE+4+(qb&1))} offset:{512*(qb>>1)}" for qb in range(4)]
        for qb in range(4):
            qrd += [f"ds_read_b128 {ar(A_Q+18*qb+4*s,4)}, {vr(QE+(qb&1))} offset:{8192*(qb>>1) + 1024*s}" for s in range(4)]
            qrd.append(f"ds_read_b64 {ar(A_Q+18*qb+16,2)}, {vr(QE+2+(qb&1))} offset:{1024*(qb>>1)}")
        tg = self.tile_groups(0) + self.tile_groups(1) + self.tile_groups(2)[:8]
        n0 = o.get("n0", 3)
        for k in range(o.get("tpf", 0)):
            a(f"s_add_u32 {sr(T+7)}, {sr(T+6)}, {o.get('tpf0', 4*TILE) + 131072*k}\nbuffer_load_dwordx4 v[252:255], {vr(V_DMA)}, {sr(S_XA,4)}, {sr(T+7)} offen")
        for x in tg[:n0]: a(x)
        a(f"v_mov_b32 {vr(CC)}, {f32(c1)}\nv_mov_b32 {vr(CC+2)}, {f32(c2)}\nv_mov_b32 {vr(CC+4)}, 1.0")
        nq1, nt1 = o.get("nq1", 8), o.get("nt1", 5)
        bgl = []
        for i in range(max(nq1 // 2, nt1)):
            if 2 * i < nq1: bgl.append(qrd[2 * i] + "\n" + qrd[2 * i + 1])
            if i < nt1: bgl.append(tg[n0 + i])
        tg, qrd = tg[n0 + nt1:], qrd[nq1:]
        a.bg, a.every, a.cnt = bgl, 54 // (len(bgl) + 1), 0
        for i in range(18): a(f"v_pk_mul_f32 {p(G_+2*i)}, {p(H+2*i)}, {p(H+2*i)}")
        for i in range(18): a(f"v_pk_fma_f32 {p(G_+2*i)}, {p(G_+2*i)}, {p(CC+2)}, {p(CC)} op_sel_hi:[1,0,0]")
        for i in range(18): a(f"v_pk_mul_f32 {p(G_+2*i)}, {p(G_+2*i)}, {p(H+2*i)}")
        a.flush()
        self.stamp("ge1")
        esp = o.get("esp", 4)
        for i in range(36):
            a(f"v_exp_f32 {vr(G_+i)}, {vr(G_+i)}")
            if i % esp == 1 and tg: a(tg.pop(0))
            if i % 8 == 3 and qrd: a(qrd.pop(0)); a(qrd.pop(0))
        self.stamp("ge2")
        for i in range(18): a(f"v_pk_add_f32 {p(G_+2*i)}, {p(G_+2*i)}, {p(CC+4)} op_sel_hi:[1,0]")
        for i in range(36):
            a(f"v_rcp_f32 {vr(G_+i)}, {vr(G_+i)}")
            if i % esp == 1 and tg: a(tg.pop(0))
            if i % 8 == 3 and qrd: a(qrd.pop(0)); a(qrd.pop(0))
        assert not tg and not qrd
        idx = [i for i, l in enumerate(a.lines) if l.strip().startswith("buffer_load") and l.rstrip().endswith("lds")]
        m_t0, m_t1 = idx[-18] + 1, idx[-9] + 1
        for i in range(18): a(f"v_pk_mul_f32 {p(H+2*i)}, {p(G_+2*i)}, {p(H+2*i)}")
        a(f"""s_mul_i32 {sr(T)}, {sr(WV+1)}, {BLK}
        s_cmp_eq_u32 {sr(S_H)}, 1
        s_cbranch_scc1 L_ln2
        s_add_u32 {sr(T)}, {sr(T)}, {WS_U}""")
        for i in range(18): a(f"v_cvt_pk_bf16_f32 {vr(UG+i)}, {vr(H+2*i)}, {vr(H+2*i+1)}")
        a("s_branch L_ug")
        a.label("L_ln2")
        a(f"s_add_u32 {sr(T)}, {sr(T)}, {WS_G}")
        self.ln_f32(H, UG, TM)
        a.label("L_ug")
        self.stamp("ge3")
        a(f"""s_cmp_eq_u32 {sr(WV)}, 1
        s_cselect_b32 {sr(S_UG)}, {sr(T)}, 0x40000000
        s_waitcnt vmcnt({self.vm_since(m_t0)}) lgkmcnt(0)""")
        for x in self.k_reads(0, V_V): a(x)
        self.ugs = [f"buffer_store_dwordx4 {vr(UG+4*s,4)}, {vr(V_DMA)}, {sr(S_WS,4)}, {sr(S_UG)} offen offset:{1024*s} sc1" for s in range(4)]
        self.ugs.append(f"buffer_store_dwordx2 {vr(UG+16,2)}, {vr(self.VL8)}, {sr(S_WS,4)}, {sr(S_UG)} offen sc1")
        for qb in range(4): a(f"v_pk_add_f32 {p(MS+4*qb)}, {p(MS+4*qb)}, {p(MS+4*qb+2)} neg_lo:[1,1] neg_hi:[1,1]")
        for qb in range(4): a(f"v_add_f32 {vr(self.MK+qb)}, {vr(MS+4*qb)}, {vr(MS+4*qb+1)}")
        a(f"v_lshlrev_b32 {vr(t1)}, 8, v0\nv_lshlrev_b32 v231, 2, v0\nv_add_u32 v231, {L_PC}, v231\nds_write_b32 v231, {vr(t1)}")
        self.loop_init(False)
        self.n_t1 = self.vm_since(m_t1)
        self.stamp("ug")

    def loop_init(self, part):
        a = self.a
        if part:
            for qb in range(4):
                for i in range(4): a(f"v_mov_b32 {vr(V_CI+4*qb+i)}, {vr(self.MK+qb)}")
            return
        for k in range(7): a(f"v_add_u32 {vr(V_HI+k)}, {2*SLOT}, {vr(V_KA+k if k < 5 else V_VB+k-5)}")
        a(f"v_add_u32 {vr(self.VS0)}, {sr(S_LB)}, {vr(V_DMA)}\nv_add_u32 {vr(self.VS0R)}, {sr(S_LB)}, {vr(self.VL8)}\ns_mov_b32 {sr(S_CNT)}, 0\ns_mov_b32 {sr(S_INC)}, {4*TILE}")
        for i in range(4): a(f"v_mov_b32 {vr(V_L+i)}, 0")
        a(f"v_mov_b32 {vr(self.VPL+1)}, 1\nv_lshlrev_b32 v231, 2, v0\nv_add_u32 v231, {L_PC}, v231")

    def head(self):
        a, o = self.a, self.o
        a.label("L_go")
        self.loop_init(True)
        a("s_waitcnt lgkmcnt(0)\ns_barrier")
        self.stamp("bar5")
        base = self.qk_mfmas(0)
        pick = lambda s_, kb, qb: base[8 * s_ + 4 * kb + qb].replace(vr(V_K + 8 * s_ + 4 * kb, 4) + ",", vr(V_V + 8 * s_ + 4 * kb, 4) + ",").replace(vr(V_K + 32 + 2 * kb, 2) + ",", vr(V_V + 32 + 2 * kb, 2) + ",")
        mf, fin = [], {}
        for qb, s_ in [(0, 0), (0, 1), (0, 2), (0, 3), (1, 0), (1, 1), (0, 4), (1, 2), (1, 3), (2, 0), (2, 1), (1, 4), (2, 2), (2, 3), (3, 0), (3, 1), (2, 4),
                       (3, 2), (3, 3), (3, 4)]:
            for kb in range(2):
                fin[qb, kb] = len(mf)
                mf.append(("s_nop 3\n" if (qb, s_, kb) == (3, 4, 0) else "") + pick(s_, kb, qb))
        enew = [e[1] for g in range(40, 76) for e in self.gaps[g] if e[0] == "E"]
        items = self.e_items(0, enew, lambda qb, j: 0, lambda qb: 999)
        for it, e in zip(items, enew):
            if e[0] == "e": it["am"] = fin[e[1], e[2] // 4]
        dm = []
        for k, (slot, j) in enumerate([(2, 8)] + [(3, j) for j in range(9)]):
            g_ = 1 + o.get("hsp", 4) * k
            if j % 4 == 0: dm.append(dict(t=f"s_add_u32 m0, {sr(S_LB)}, {slot*SLOT + 4096*(j//4)}", c=0, lo=g_ - 1, hi=g_ - 1))
            dm.append(dict(t=f"buffer_load_dwordx4 {vr(V_DMA + j//4)}, {sr(S_XA,4)}, {sr(S_TOFF)} offen offset:{1024*(j%4)} lds", c=8, lo=g_, hi=g_))
            if j == 8: dm.append(dict(t=f"s_add_u32 {sr(S_TOFF)}, {sr(S_TOFF)}, {4*TILE}", c=0, lo=g_ + 1, hi=g_ + 1))
        nh = o.get("ugh", 2)
        for k in range(nh): dm.append(dict(t=self.ugs[k], c=8, lo=3 + 16 * k, hi=3 + 16 * k))
        a(f"s_waitcnt vmcnt({self.n_t1})")
        left = self.pack(mf, items + dm + [dict(t=x, c=4, lo=i // 2, nds=2) for i, x in enumerate(self.k_reads(1))])
        print("head overflow", self.over, "left", len(left))
        left.sort(key=lambda x: not x.startswith("v_exp"))
        last = a.lines[-1].strip()
        for x in left:
            if last.startswith("v_exp") and not x.startswith("v_exp") and (last.split()[1].rstrip(",") + ",") in (x + ","): a("s_nop 0")
            a(x); last = x
        a("s_waitcnt lgkmcnt(0)")

    def tile_groups(self, slot):
        out = []
        for j in range(9):
            g = ""
            if j % 4 == 0: g = f"s_add_u32 m0, {sr(S_LB)}, {slot*SLOT + 4096*(j//4)}\ns_nop 0\n"
            g += f"buffer_load_dwordx4 {vr(V_DMA + j//4)}, {sr(S_XA,4)}, {sr(S_TOFF)} offen offset:{1024*(j%4)} lds"
            if j == 8: g += f"\ns_add_u32 {sr(S_TOFF)}, {sr(S_TOFF)}, {4*TILE}"
            out.append(g)
        return out

    def first_tiles(self):
        pass

    def wfuse(self):
        a = self.a
        BF, ACC, AF, TM, AD = 88, 108, 144, 208, 240
        LA, LB_, LM = 0, 44032, 88064
        T = S_T
        a.label("L_wfuse")
        if self.o.get("hlast", 1): a(f"s_cmp_ge_u32 s2, {NWG}\ns_cbranch_scc1 L_end\ns_sub_u32 s2, s2, {NWG - NH}")
        a(f"v_lshrrev_b32 v1, 6, v0\nv_and_b32 v0, 63, v0\nv_readfirstlane_b32 {sr(S_W)}, v1\nv_lshlrev_b32 {vr(V_DMA)}, 4, v0\ns_waitcnt lgkmcnt(0)")
        self.srd(S_DB, 76, 77, 256)
        self.srd(S_WS, 78, 79, WS_END)
        self.wf0 = 0
        self.srd(S_X, 72, 73, 82944)
        self.srd(S_W2, 62, 63, 41472)
        a(f"""s_cmp_eq_u32 s2, {self.wf0}
        s_cselect_b32 {sr(S_W1)}, s64, s70
        s_cselect_b32 {sr(S_W1+1)}, s65, s71
        s_mov_b32 {sr(S_W1+2)}, 41472
        s_mov_b32 {sr(S_W1+3)}, 0x20000
        s_cselect_b32 {sr(T+4)}, 0, 41472""")
        self.dma_rows([(S_W1, "0", LA), (S_W2, "0", LB_)], 19, 288, TM + 4, TM + 5, 11, 3, "L_wf1")
        a(f"s_lshl_b32 {sr(T)}, {sr(S_W)}, 10\ns_add_u32 {sr(T+2)}, {sr(T)}, {sr(T+4)}")
        for k in range(11):
            if k == 10: a(f"s_cmp_ge_u32 {sr(S_W)}, 1\ns_cbranch_scc1 L_wf2")
            a(f"s_add_u32 m0, {sr(T)}, {LM + 4096*k}\ns_add_u32 {sr(T+1)}, {sr(T+2)}, {4096*k}")
            a(f"buffer_load_dwordx4 {vr(V_DMA)}, {sr(S_X,4)}, {sr(T+1)} offen lds")
        a.label("L_wf2")
        self.srd(S_DW, 68, 69, 864)
        a(f"""v_and_b32 {vr(TM)}, 15, v0
        v_lshlrev_b32 {vr(TM+2)}, 4, {vr(TM)}
        v_lshlrev_b32 {vr(TM)}, 1, {vr(TM)}
        v_bfe_u32 {vr(TM+3)}, v0, 4, 1
        v_lshl_add_u32 {vr(TM+1)}, {vr(TM+3)}, 7, {vr(TM)}
        v_lshl_add_u32 {vr(TM+2)}, {vr(TM+3)}, 11, {vr(TM+2)}
        v_and_b32 {vr(TM+3)}, 1, v0
        v_lshlrev_b32 {vr(TM+3)}, 4, {vr(TM+3)}
        v_bfe_i32 {vr(TM+4)}, v0, 1, 1
        v_not_b32 {vr(TM+5)}, {vr(TM+4)}""")
        for k in range(3):
            for i in range(5): a(f"buffer_load_ushort {vr(16+5*k+i)}, {vr(TM+1 if i < 4 else TM)}, {sr(S_DW,4)}, 0 offen offset:{288*k + (32*i if i < 4 else 256)}")
        a(f"s_mov_b32 {sr(T+1)}, {WS_DWF}\ns_waitcnt vmcnt(0)")
        for f in range(15):
            a(f"v_lshlrev_b32 {vr(16+f)}, {vr(TM+3)}, {vr(16+f)}\nv_and_b32 {vr(32+2*f)}, {vr(TM+5)}, {vr(16+f)}\nv_and_b32 {vr(33+2*f)}, {vr(TM+4)}, {vr(16+f)}")
        for r_ in range(8): a(f"buffer_store_dwordx{4 if r_ < 7 else 2} {vr(32+4*r_, 4 if r_ < 7 else 2)}, {vr(TM+2)}, {sr(S_WS,4)}, {sr(T+1)} offen offset:{256*r_} sc1")
        self.tr_addr(AD, LM, False, TM + 8)
        self.row_addr(AD + 3, LA, TM + 8)
        a(f"v_add_u32 {vr(AD+5)}, {LB_}, {vr(AD+3)}")
        a(f"v_lshlrev_b32 {vr(AD+4)}, 3, v0")
        a(f"""s_lshr_b32 {sr(T)}, {sr(S_W)}, 1
        s_lshl_b32 {sr(T)}, {sr(T)}, 6
        s_and_b32 {sr(T+1)}, {sr(S_W)}, 1
        s_lshl_b32 {sr(T+1)}, {sr(T+1)}, 3
        s_add_u32 {sr(T)}, {sr(T)}, {sr(T+1)}
        v_and_b32 {vr(AD+6)}, 3, v0
        v_lshlrev_b32 {vr(AD+6)}, 3, {vr(AD+6)}
        v_add_u32 {vr(AD+7)}, {sr(T)}, {vr(AD+6)}""")
        for k in range(3): a(f"v_add_u32 {vr(AD+k)}, {vr(AD+7)}, {vr(AD+k)}")
        a(f"s_mov_b32 {sr(S_CNT)}, {sr(S_W)}")
        a("s_waitcnt vmcnt(0)\ns_barrier")
        a.label("L_wfl")
        for s in self.tr_reads(AD, vr)(0, BF): a(s)
        a("s_waitcnt lgkmcnt(0)")
        self.gemm(self.row_reads(AD + 3), BF, ACC, AF)
        for i in range(18): a(f"v_cvt_pk_bf16_f32 {vr(BF+i)}, {vr(ACC+2*i)}, {vr(ACC+2*i+1)}")
        a(f"s_cmp_eq_u32 s2, {self.wf0}\ns_cbranch_scc0 L_wf3")
        self.gemm(self.row_reads(AD + 5), BF, ACC, AF)
        for i in range(18): a(f"v_cvt_pk_bf16_f32 {vr(BF+i)}, {vr(ACC+2*i)}, {vr(ACC+2*i+1)}")
        a.label("L_wf3")
        a(f"""s_mul_i32 {sr(T)}, {sr(S_CNT)}, {BLK}
        s_add_u32 {sr(T)}, {sr(T)}, {sr(T+4)}
        s_add_u32 {sr(T)}, {sr(T)}, {WS_WF}
        s_add_u32 {sr(T+1)}, {sr(T)}, 4096""")
        self.store_block(BF, V_DMA, AD + 4, S_WS, T, T + 1, "sc1")
        for k in range(3): a(f"v_add_u32 {vr(AD+k)}, 128, {vr(AD+k)}")
        a(f"s_add_u32 {sr(S_CNT)}, {sr(S_CNT)}, 4\ns_cmp_lt_u32 {sr(S_CNT)}, 8\ns_cbranch_scc1 L_wfl")
        for k in range(3): a(f"v_sub_u32 {vr(AD+k)}, {vr(AD+k)}, {vr(AD+6)}")
        a(f"s_cmp_eq_u32 {sr(S_CNT)}, 8\ns_cbranch_scc1 L_wfl")
        a(f"""s_waitcnt vmcnt(0)
        s_barrier
        s_cmp_lg_u32 {sr(S_W)}, 0
        s_cbranch_scc1 L_end
        s_mov_b64 exec, 1
        v_mov_b32 {vr(TM)}, 1
        v_mov_b32 {vr(TM+1)}, {DB_CW}
        buffer_atomic_add {vr(TM)}, {vr(TM+1)}, {sr(S_DB,4)}, 0 offen sc1
        v_mov_b32 {vr(TM+1)}, {DB_CW + 128}
        buffer_atomic_add {vr(TM)}, {vr(TM+1)}, {sr(S_DB,4)}, 0 offen sc1
        s_endpgm""")

    def dump_stamps(self):
        a = self.a
        if self.o.get("census"):
            key, mode, m_, v_ = self.o["census"]
            a(f"""s_cmp_lg_u32 s2, 100
            s_cbranch_scc1 L_end
            v_lshlrev_b32 v16, 2, v0
            s_mov_b32 s4, {WS_DBG}""")
            for k in range(4): a(f"buffer_load_dword v{20+k}, v16, {sr(S_WS,4)}, s4 offen offset:{256*k} sc1")
            a(f"s_waitcnt vmcnt(0)\nv_readlane_b32 s8, v21, 36\ns_mov_b32 s9, 0x80000000\ns_mov_b32 s10, 0x7fffffff\ns_mov_b32 s11, 0\ns_mov_b32 s17, 0")
            for k in range(4):
                a(f"s_mov_b32 s5, 0")
                a.label(f"L_cs{k}")
                a(f"""v_readlane_b32 s6, v{20+k}, s5
                s_add_u32 s7, s5, {64*k}
                s_sub_u32 s6, s6, s8
                s_and_b32 s16, s7, {m_}
                s_cmp_lg_u32 s16, {v_}
                s_cbranch_scc1 L_cn{k}
                s_min_i32 s10, s10, s6
                s_cmp_gt_i32 s6, {self.o.get("thr", 150)}
                s_addc_u32 s17, s17, 0
                s_cmp_gt_i32 s6, s9
                s_cselect_b32 s9, s6, s9
                s_cselect_b32 s11, s7, s11""")
                a.label(f"L_cn{k}")
                a(f"s_add_u32 s5, s5, 1\ns_cmp_lt_u32 s5, {64 if k < 3 else 60}\ns_cbranch_scc1 L_cs{k}")
            a({"arg": "s_lshl_b32 s6, s11, 3", "range": "s_sub_u32 s6, s9, s10\ns_lshl_b32 s6, s6, 1", "zero": "s_mov_b32 s6, 0", "cnt": "s_lshl_b32 s6, s17, 4",
               "max": "s_lshl_b32 s6, s9, 1"}[mode])
            a("s_add_u32 s6, s6, 1000\ns_memrealtime s[4:5]\ns_waitcnt lgkmcnt(0)\ns_add_u32 s6, s6, s4")
            a.label("L_echo")
            a("s_memrealtime s[4:5]\ns_waitcnt lgkmcnt(0)\ns_sub_u32 s7, s6, s4\ns_cmp_gt_i32 s7, 0\ns_cbranch_scc1 L_echo")
            return
        if self.o.get("echo"):
            if self.o["echo"][0] == "skew":
                a(f"v_mov_b32 v16, 4\nbuffer_load_dword v17, v16, {sr(S_DB,4)}, 0 offen sc1\ns_waitcnt vmcnt(0)\nv_readfirstlane_b32 s98, v17\ns_not_b32 s98, s98")
                x, y = 98, S_ST + 2 * self.stnames.index(self.o["echo"][1])
            else:
                x, y = [S_ST + 2 * self.stnames.index(n) for n in self.o["echo"]]
            lo, hi = self.o.get("echo_ids", (0, 999))
            a(f"""s_cmp_eq_u32 {sr(S_VAL)}, 0
            s_cbranch_scc1 L_end
            s_cmp_lt_u32 s2, {lo}
            s_cbranch_scc1 L_end
            s_cmp_ge_u32 s2, {hi}
            s_cbranch_scc1 L_end
            s_and_b32 s6, s2, {self.o.get("echo_m", 0)}
            s_cmp_lg_u32 s6, {self.o.get("echo_v", 0)}
            s_cbranch_scc1 L_end
            s_memrealtime s[4:5]
            s_waitcnt lgkmcnt(0)
            s_sub_u32 s6, {sr(y)}, {sr(x)}
            s_mul_i32 s6, s6, {self.o.get("echo_mul", 1)}
            s_lshr_b32 s6, s6, {self.o.get("echo_shr", 0)}
            s_add_u32 s6, s6, {self.o.get("echo_add", 0)}
            s_add_u32 s6, s6, s4""")
            a.label("L_echo")
            a("s_memrealtime s[4:5]\ns_waitcnt lgkmcnt(0)\ns_sub_u32 s7, s6, s4\ns_cmp_gt_i32 s7, 0\ns_cbranch_scc1 L_echo")
            return
        if self.o.get("dbgst"):
            a("s_waitcnt vmcnt(0)")
            self.stamp("done")
            a("s_waitcnt lgkmcnt(0)\ns_mov_b64 exec, 1")
            slots = [1, 2, 3, 4, 5, 6, 7, 9, 11, 12, 13, 14, 15]
            a(f"s_not_b32 {sr(S_T)}, {sr(S_ST)}\nv_mov_b32 v16, {sr(S_T)}\nv_mov_b32 v17, 4\nbuffer_atomic_umax v16, v17, {sr(S_DB,4)}, 0 offen sc1")
            for i in range(min(self.nst, 12)):
                a(f"v_mov_b32 v{18+2*i}, {sr(S_ST+2*i)}\nv_mov_b32 v{19+2*i}, {4*slots[i+1]}\nbuffer_atomic_umax v{18+2*i}, v{19+2*i}, {sr(S_DB,4)}, 0 offen sc1")
            return
        if not self.o.get("stamps"): return
        T = S_T
        a(f"""s_waitcnt lgkmcnt(0)
        s_lshl_b32 {sr(T)}, s2, 2
        s_add_u32 {sr(T)}, {sr(T)}, {sr(S_W)}
        s_lshl_b32 {sr(T)}, {sr(T)}, 7
        s_add_u32 {sr(T)}, {sr(T)}, {WS_DBG}
        v_mov_b32 v1, 0""")
        for i in range(26): a(f"v_mov_b32 {vr(16+i)}, {sr(S_ST+i)}")
        for i in range(7): a(f"buffer_store_dwordx4 {vr(16+4*i,4)}, v1, {sr(S_WS,4)}, {sr(T)} offen offset:{16*i}")

    def build(self):
        a = self.a
        self.stnames = []
        a.raw(f"; @launch grid=({NWG},1,1) block=(256,1,1) lds={LDS_TOTAL}")
        a.raw('.amdgcn_target "amdgcn-amd-amdhsa--gfx950"')
        a.raw(".text")
        a.raw(f".globl {NAME}")
        a.raw(".p2align 12")
        self.entry()
        self.phase_a()
        self.rest()
        a.label("L_fin")
        self.dump_stamps()
        a.label("L_end")
        a("s_endpgm")
        self.poll2()
        if not self.o.get("touch", 1): self.rare()
        a.label("L_dummy")
        self.fallback()
        self.wfuse()
        a.raw('.section .rodata,"a"')
        a.raw(".p2align 6")
        a.raw(kernel_desc(NAME, 512, 102, 256))
        return a.text()

    def S(self, buf, qb, i=0): return V_S + buf * 32 + qb * 8 + i
    def P(self, buf, qb, i=0): return V_P + buf * 16 + qb * 4 + i

    def k_reads(self, slot, V_K=V_K):
        ka, so = (V_KA, slot * SLOT) if slot < 2 else (V_HI, (slot - 2) * SLOT)
        out = [f"ds_read_b128 {vr(V_K+8*s+4*kb,4)}, {vr(ka)} offset:{so + 2048*s + 256*kb}" for s in range(4) for kb in range(2)]
        out += [f"ds_read_b64 {vr(V_K+32+2*kb,2)}, {vr(ka+1)} offset:{so + 8192 + 512*kb}" for kb in range(2)]
        return out

    def v_reads(self, slot, dst=V_V):
        (va, vr_, vb), so = ((V_VA, V_VR, V_VB), slot * SLOT) if slot < 2 else ((V_HI + 2, V_HI + 4, V_HI + 5), (slot - 2) * SLOT)
        out = []
        for T in range(9):
            for u in range(2):
                if T < 8: out.append(f"ds_read_b64_tr_b16 {vr(dst+4*T+2*u,2)}, {vr((va if T < 4 else vb)+(T&1))} offset:{so + 2048*((T>>1)&1) + 256*u}")
                else: out.append(f"ds_read_b64_tr_b16 {vr(dst+4*T+2*u,2)}, {vr(vr_)} offset:{so + 8192 + 512*u}")
        return out

    def qk_mfmas(self, buf, czero=False):
        out = []
        for s in range(5):
            for kb in range(2):
                for qb in range(4):
                    d = vr(self.S(buf, qb, 4 * kb), 4)
                    c = ("0" if czero else vr(V_CI + 4 * qb, 4)) if s == 0 else d
                    if s < 4: out.append(f"v_mfma_f32_16x16x32_bf16 {d}, {vr(V_K+8*s+4*kb,4)}, {ar(A_Q+18*qb+4*s,4)}, {c}")
                    else: out.append(f"v_mfma_f32_16x16x16_bf16 {d}, {vr(V_K+32+2*kb,2)}, {ar(A_Q+18*qb+16,2)}, {c}")
        return out

    def pv_mfmas(self, buf, czero=False):
        out = []
        for T in range(9):
            for qb in range(4):
                o = ar(A_O + 36 * qb + 4 * T, 4)
                out.append(f"v_mfma_f32_16x16x32_bf16 {o}, {vr(V_V+4*T,4)}, {vr(self.P(buf,qb),4)}, {'0' if czero else o}")
        return out

    def plan(self):
        o = self.o
        n = 76
        fixed = [None] * n
        for i, g in enumerate(range(1, 36, 2)): fixed[g] = ("V", i)
        for i, g in enumerate([41, 44, 47, 50, 53, 56, 59, 62, 65, 68]): fixed[g] = ("K", i)
        for i, g in enumerate([42, 46, 49, 52, 55, 58, 61, 64, 67]): fixed[g] = ("D", i)
        exps = [(qb, j) for qb in range(4) for j in range(8)]
        start = 40
        order = [(start + k) % n for k in range(n)]
        free_idx = [k for k, g in enumerate(order) if fixed[g] is None]
        nsm = len(free_idx) - 32
        cand = free_idx[6:-2]
        sm_set = set(free_idx[-2:]) | {cand[int((i + 0.5) * len(cand) / (nsm - 2))] for i in range(nsm - 2)}
        nds = sum(1 for f in fixed if f is not None and f[0] != "D")
        over = 48 - nds - 2 * nsm
        ocand = [k for k, g in enumerate(order) if k >= 20 and (fixed[g] is None or fixed[g][0] != "D")]
        o_set = {ocand[int((i + 0.5) * len(ocand) / over)] for i in range(over)}
        gaps = [[] for _ in range(n)]
        small, pend, ei = [], [], 0
        for k, g in enumerate(order):
            new = (start + k) < n
            small.extend(pend); pend = []
            small.sort(key=lambda t: 0 if t[0] == "c" else 1)
            f = fixed[g]
            want = 0
            if f is not None:
                gaps[g].append((f[0], f[1], None))
                if f[0] == "D": continue
                want = 1
            elif k in sm_set: want = 2
            else:
                qb, j = exps[ei]; ei += 1
                gaps[g].append(("E", ("e", qb, j), new))
                if j & 1: pend.append(("c", qb, j // 2))
                pend.append(("a", qb, j))
            if k in o_set: want += 1
            if k == n - 1: want = 99
            for _ in range(want):
                if small: gaps[g].append(("E", small.pop(0), new))
        assert not small and not pend and ei == 32
        self.gaps = gaps

    def pack(self, mf, items):
        a = self.a
        where, order, done, nvm, mpos = {}, [], 0, 0, []
        isds = lambda it: "ds_" in it["t"]
        self.over = 0
        for g, m in enumerate(mf):
            assert not any(it.get("need", 999) <= g and i not in where for i, it in enumerate(items)), g
            idx = [k for k, n_ in enumerate(order) if n_ <= g]
            if idx and max(idx) + 1 > done:
                a(f"s_waitcnt lgkmcnt({min(15, len(order) - 1 - max(idx))})"); done = max(idx) + 1
            if m.startswith("@W"):
                w_, m = m.split("\n", 1)
                a(f"s_waitcnt lgkmcnt({min(15, int(w_[2:]) + len(order))})")
            a(m)
            mpos.append(len(a.lines))
            cap, pick = 8, []
            for phase in (0, 1):
                for i, it in enumerate(items):
                    if i in where or it.get("lo", 0) > g: continue
                    if "am" in it and (it["am"] >= g or len(a.lines) - mpos[it["am"]] < 8): continue
                    d = it.get("dep")
                    if d is not None and not all(where.get(x, 999) < g for x in d): continue
                    if (phase == 0 and it.get("hi", 999) <= g) or (phase == 1 and it["c"] <= cap):
                        if it["t"].startswith("buffer") and pick and any(items[x]["c"] for x in pick) and phase == 1: continue
                        if isds(it) and sum(isds(items[x]) for x in pick) >= it.get("nds", 1) and phase == 1: continue
                        pick.append(i); where[i] = g; cap -= it["c"]
            key = lambda i: 0 if items[i]["c"] == 0 else 1 if isds(items[i]) else 2 if items[i]["t"].startswith("buffer") else 3
            for i in sorted(pick, key=key):
                a(items[i]["t"].replace("@VM", f"s_waitcnt vmcnt({nvm})"))
                nvm += items[i]["t"].startswith("buffer")
                if isds(items[i]): order.append(items[i].get("need", 999))
            self.over += max(0, -cap)
        return [it["t"] for i, it in enumerate(items) if i not in where]

    def e_items(self, buf, lst, lo, hi):
        items, idx = [], {}
        for it in lst:
            kind, qb, j = it
            d = dict(t=self.etext(buf, it), c=8 if kind == "e" else 4)
            if kind == "e": d["lo"] = lo(qb, j); d["hi"] = hi(qb) - 2 - (7 - j)
            else:
                need = [("e", qb, j)] if kind == "a" else [("e", qb, 2 * j), ("e", qb, 2 * j + 1)]
                d["dep"] = [idx[x] for x in need if x in idx]
                if kind == "c": d["hi"] = hi(qb) - (3 - j) // 2
            idx[it] = len(items); items.append(d)
        return items

    def etext(self, buf, it):
        kind, qb, j = it
        s = self.S(buf, qb)
        if kind == "e": return f"v_exp_f32 {vr(s+j)}, {vr(s+j)}"
        if kind == "a": return f"v_add_f32 {vr(V_L+qb)}, {vr(V_L+qb)}, {vr(s+j)}"
        return f"v_cvt_pk_bf16_f32 {vr(self.P(buf, qb, j))}, {vr(s+2*j)}, {vr(s+2*j+1)}"

    def period(self, p, qk=True, pv=True, e_old=True, e_new=True, kread=True, vread=True, dma=True, extra={}, dsub=None, ksub=None, vm=9, halves=(0, 1), inc=None):
        a = self.a
        bn, bo = (p + 1) & 1, p & 1
        mf = self.qk_mfmas(bn) + self.pv_mfmas(bo, czero=(p == 0))
        kr, vrd = self.k_reads((p + 2) % RING), self.v_reads(p % RING)
        slot = p % RING
        n = 76
        sc = [[] for _ in range(n)]
        dgs = [g for g in range(n) if any(e[0] == "D" for e in self.gaps[g])]
        if dma:
            for j, g in enumerate(dgs):
                if j % 4 == 0: sc[g - 1].append(f"s_add_u32 m0, {sr(S_LB)}, {slot*SLOT + 4096*(j//4)}")
            sc[dgs[-1] + 1].append(f"s_add_u32 {sr(S_TOFF)}, {sr(S_TOFF)}, {inc or 4*TILE}")
        w = []
        if kread: w.append(f"vmcnt({vm})")
        if pv: w.append("lgkmcnt(0)")
        if w: sc[39].append("s_waitcnt " + " ".join(w))
        if kread: sc[75].append("s_waitcnt lgkmcnt(0)")
        for half in halves:
            rng = range(0, 40) if half == 0 else range(40, 76)
            on = qk if half == 0 else pv
            if not on:
                ds, mem, val, post = [], [], [], []
                for g in rng:
                    for s_ in sc[g]:
                        (post if s_.startswith("s_waitcnt") else mem).append(s_)
                    if g in extra: mem.append(extra[g])
                    for kind, d, new in self.gaps[g]:
                        if kind == "V" and vread: ds.append(vrd[d])
                        elif kind == "K" and kread: ds.append(kr[d])
                        elif kind == "D" and dma: mem.append(f"buffer_load_dwordx4 {vr(V_DMA + d//4)}, {sr(S_XA,4)}, {sr(S_TOFF)} offen offset:{1024*(d%4)} lds")
                        elif kind == "E" and ((new and e_new) or (not new and e_old)): val.append((d, self.etext(bn if new else bo, d)))
                if half == 1: a("s_nop 3")
                seq, pend = [], list(val)
                while pend:
                    k = 0
                    if seq and seq[-1][0][0] == "e":
                        le = seq[-1][0]
                        dep = lambda it: it[0][1] == le[1] and ((it[0][0] == "a" and it[0][2] == le[2]) or (it[0][0] == "c" and it[0][2] == le[2] // 2))
                        have = {x[0] for x in seq}
                        ok = lambda it: it[0][0] == "e" or (("e", it[0][1], it[0][2]) in have if it[0][0] == "a" else (("e", it[0][1], 2*it[0][2]+1) in have)) or not any(x[0][0] == "e" and x[0][1] == it[0][1] and (x[0][2] == it[0][2] if it[0][0] == "a" else x[0][2] // 2 == it[0][2]) for x in pend)
                        while k < len(pend) and (dep(pend[k]) or not ok(pend[k])): k += 1
                        if k == len(pend): seq.append((("n", 0, 0), "s_nop 0")); k = 0
                    seq.append(pend.pop(k))
                step = max(1, len(seq) // (len(mem) + len(ds) + 1))
                allm = ds + mem
                for x in allm[:6]: a(x)
                allm = allm[6:]
                for i_, (d, t_) in enumerate(seq):
                    a(t_)
                    if allm and i_ % step == step - 1:
                        x = allm.pop(0); a(x)
                        if x.startswith("s_add_u32 m0"): a("s_nop 0")
                for x in allm:
                    a(x)
                    if x.startswith("s_add_u32 m0"): a("s_nop 0")
                for x in post: a(x)
                if half == 0: a("s_nop 1")
                continue
            for g in rng:
                a(mf[g])
                for s_ in sc[g]: a(s_)
                if g in extra: a(extra[g])
                for kind, d, new in self.gaps[g]:
                    if kind == "V":
                        if vread: a(vrd[d])
                    elif kind == "K":
                        if kread: a(kr[d])
                        elif ksub: a(ksub.pop(0))
                    elif kind == "D":
                        if dma: a(f"buffer_load_dwordx4 {vr(V_DMA + d//4)}, {sr(S_XA,4)}, {sr(S_TOFF)} offen offset:{1024*(d%4)} lds")
                        elif dsub: a(dsub.pop(0))
                    elif (new and e_new) or (not new and e_old):
                        a(self.etext(bn if new else bo, d))

    MK, VO, VO8, GA, VS0, VS0R, VDW, VLW, VL8, VST, VPL = 232, 236, 9, 238, 250, 251, 244, 245, 246, 247, 248
    NB, PT, E_U, E_G, RS3, E_COL, RS1, RS2, MP1 = 3, 4, 5, 6, 7, 43, 36, 37, 38
    G0, GM, GP, U, DWT = 16, 26, 36, 80, (90, 252, 96, 100, 112, 116, 104, 94)
    XRS = (192, 196, 46)
    frag = staticmethod(lambda f, b: [(f, b + 4 * s) for s in range(5)])
    WD = [[("a", 216 + 4 * s) for s in range(5)], [("a", 234 + 4 * s) for s in range(5)], [("v", 208 + 4 * s) for s in range(5)]]
    WO = [[("a", 4 * s) for s in range(5)], [("a", 18 + 4 * s) for s in range(5)], [("a", 36), ("a", 40), ("a", 44), ("a", 48), ("a", 252)]]
    X1B = 98304
    X2O = L_SP - X1B
    L_L = L_SP + 9216

    def epi_setup(self):
        a = self.a
        T = S_T
        NB, PT, VO, GA = self.NB, self.PT, self.VO, self.GA
        r, g4, x, y, big, r0 = 52, 53, 54, 55, 56, 57
        a(f"""s_lshr_b32 {sr(NB)}, {sr(S_W)}, 1
        s_and_b32 {sr(PT)}, {sr(S_W)}, 1
        v_and_b32 {vr(r0)}, 15, v0
        v_lshrrev_b32 {vr(g4)}, 4, v0
        v_mul_u32_u24 {vr(x)}, 288, {vr(r0)}
        v_mov_b32 {vr(big)}, 0x40000000
        s_lshl_b32 {sr(T)}, {sr(S_TOWN)}, 1
        s_add_u32 {sr(T)}, {sr(T)}, {sr(NB)}
        s_lshl_b32 {sr(T)}, {sr(T)}, 4
        v_add_u32 {vr(r)}, {sr(T)}, {vr(r0)}
        s_mul_i32 {sr(T+1)}, {sr(S_TOWN)}, {TILE}
        s_mul_i32 {sr(T+2)}, {sr(PT)}, {BLK}
        v_add_u32 {vr(x)}, {sr(T+1)}, {vr(x)}
        s_sub_u32 {sr(T+3)}, {BLK}, {sr(T+2)}
        v_add_u32 {vr(y)}, {sr(T+3)}, {vr(x)}
        v_add_u32 {vr(x)}, {sr(T+2)}, {vr(x)}
        v_lshl_add_u32 {vr(VO)}, {vr(g4)}, 4, {vr(x)}
        v_lshl_add_u32 {vr(VO+1)}, {vr(g4)}, 4, {vr(y)}
        v_lshl_add_u32 {vr(self.VO8)}, {vr(g4)}, 3, {vr(x)}
        s_lshl_b32 {sr(T+3)}, {sr(PT)}, 11
        s_add_u32 {sr(self.E_U)}, {sr(T+3)}, {WS_U}
        s_add_u32 {sr(self.E_G)}, {sr(T+3)}, {WS_G}
        s_sub_u32 {sr(T+3)}, 4096, {sr(T+3)}
        s_lshl_b32 {sr(T)}, {sr(PT)}, 11
        s_add_u32 {sr(T)}, {sr(T)}, {WS_DWF}
        v_lshrrev_b32 {vr(x)}, 2, {vr(r0)}
        v_cmp_eq_u32 vcc, {vr(x)}, {vr(g4)}
        v_lshl_add_u32 {vr(self.VDW)}, {vr(r0)}, 4, {sr(T)}
        s_nop 0
        v_cndmask_b32 {vr(self.VDW)}, {vr(big)}, {vr(self.VDW)}, vcc
        s_lshl_b32 {sr(self.E_COL)}, {sr(S_W)}, 6
        v_lshlrev_b32 {vr(self.VL8)}, 3, v0
        v_add_u32 {vr(self.VL8)}, 4096, {vr(self.VL8)}
        v_add_u32 {vr(self.VST)}, {sr(S_LB)}, {vr(V_DMA)}
        v_add_u32 {vr(self.VST)}, {2*SLOT}, {vr(self.VST)}
        s_xor_b32 {sr(T)}, {sr(NB)}, 1
        v_xor_b32 {vr(x)}, {sr(T)}, {vr(g4)}
        v_lshl_add_u32 {vr(x)}, {vr(x)}, 4, {vr(r0)}
        s_lshl_b32 {sr(T)}, {sr(S_W)}, 2
        s_add_u32 {sr(T)}, {sr(T)}, {self.L_L}
        v_lshl_add_u32 {vr(self.VLW)}, {vr(x)}, 4, {sr(T)}
        s_sub_u32 {sr(self.MP1)}, 0, {sr(PT)}
        s_mov_b32 {sr(self.MP1+1)}, {sr(self.MP1)}""")
        for k, (d, base) in enumerate(((self.RS1, 3 * SLOT), (self.RS2, 2 * SLOT), (self.RS3, 2 * SLOT))):
            a(f"s_xor_b32 {sr(T)}, {sr(S_W)}, {k+1}\ns_mul_i32 {sr(T)}, {sr(T)}, {TILE}\ns_add_u32 {sr(d)}, {sr(T)}, {base}")
        a(f"""s_mul_i32 {sr(T)}, {sr(S_B)}, 4000
        s_add_u32 {sr(T+1)}, {sr(T)}, 3999
        s_mov_b32 {sr(T+2)}, {BLK}""")
        for k, dr in enumerate((0, -1, 1)):
            m = GA + 2 * k
            if dr: a(f"v_add_u32 {vr(m)}, {dr}, {vr(r)}\nv_cmp_eq_u32 vcc, {sr(T if dr < 0 else T+1)}, {vr(r)}")
            src = m if dr else r
            a(f"""v_lshrrev_b32 {vr(x)}, 4, {vr(src)}
            v_and_b32 {vr(y)}, 15, {vr(src)}
            v_mul_lo_u32 {vr(x)}, {vr(x)}, {sr(T+2)}
            v_lshl_add_u32 {vr(y)}, {vr(g4)}, 4, {vr(y)}
            v_lshl_add_u32 {vr(m)}, {vr(y)}, 4, {vr(x)}
            v_lshl_add_u32 {vr(m+1)}, {vr(y)}, 3, {vr(x)}
            v_add_u32 {vr(m+1)}, {sr(T+3)}, {vr(m+1)}""")
            if dr: a(f"v_cndmask_b32 {vr(m)}, {vr(m)}, {vr(big)}, vcc\nv_cndmask_b32 {vr(m+1)}, {vr(m+1)}, {vr(big)}, vcc")

    def conv_loads(self):
        GA = self.GA
        L = []
        for dst, m, so in ((self.GM, GA + 2, 1), (self.G0, GA, 1), (self.GP, GA + 4, 1), (self.U, GA, 0)):
            for k in range(2): L.append(f"buffer_load_dwordx4 {vr(dst+4*k,4)}, {vr(m)}, {sr(S_WS,4)}, {sr(self.E_U+so)} offen offset:{1024*k}")
            L.append(f"buffer_load_dwordx2 {vr(dst+8,2)}, {vr(m+1)}, {sr(S_WS,4)}, {sr(self.E_U+so)} offen")
        return L

    def rg(self, e, n): return (ar if e[0] == "a" else vr)(e[1], n)

    def w8_loads(self, regs, so):
        return [f"buffer_load_dwordx4 {self.rg(regs[s],4)}, {vr(V_DMA)}, {sr(S_WS,4)}, {sr(so)} offen offset:{1024*s}" for s in range(4)] + \
               [f"buffer_load_dwordx2 {self.rg(regs[4],2)}, {vr(self.VL8)}, {sr(S_WS,4)}, {sr(so)} offen"]

    def w_reads(self, regs, off):
        L = []
        for tt in range(2):
            L += [f"ds_read_b128 {self.rg(regs[tt][s],4)}, {vr(self.VS0)} offset:{off + BLK*tt + 1024*s}" for s in range(4)]
            L.append(f"ds_read_b64 {self.rg(regs[tt][4],2)}, {vr(self.VS0R)} offset:{off + BLK*tt}")
        return L

    def xa_srd(self):
        T = S_T
        return f"""s_mul_i32 {sr(T)}, {sr(S_B)}, {NT}
        s_mul_i32 {sr(T+1)}, {sr(S_H)}, 63
        s_add_u32 {sr(T+1)}, {sr(T+1)}, {sr(T)}
        s_mul_i32 {sr(T+1)}, {sr(T+1)}, {TILE}
        s_add_u32 {sr(S_XA)}, {sr(S_WS)}, {sr(T+1)}
        s_addc_u32 {sr(S_XA+1)}, {sr(S_WS+1)}, 0
        s_sub_u32 {sr(T+2)}, 63, {sr(S_H)}
        s_mul_i32 {sr(S_XA+2)}, {sr(T+2)}, {TILE}
        s_mov_b32 {sr(S_XA+3)}, 0x20000"""

    def rest(self):
        a, o = self.a, self.o
        T = S_T
        VPL = self.VPL
        self.plan()
        self.head()
        self.stamp("loop")
        if o.get("echo") and o["echo"][0] == "skew":
            a(f"s_waitcnt lgkmcnt(0)\ns_mov_b64 exec, 1\ns_not_b32 s98, {sr(S_ST)}\nv_mov_b32 v226, s98\nv_mov_b32 v227, 4\ns_cmp_lg_u32 {sr(S_W)}, 0\ns_cbranch_scc1 L_sk\nbuffer_atomic_umax v226, v227, {sr(S_DB,4)}, 0 offen sc1\ns_waitcnt vmcnt(0)\nL_sk:\ns_mov_b64 exec, -1\ns_nop 3")
        nh = o.get("ugh", 2)
        ex = {2 + 12 * k: x for k, x in enumerate(self.ugs[nh:])}
        self.period(0, vm=9 + 5, extra=ex)
        self.stamp("l0")
        a.raw(".p2align 6")
        a.label("L_loop")
        self.stamp("q1")
        for p in range(1, 5):
            ex = {}
            vm = 9
            if p == 1: ex = {73: f"s_cmp_eq_u32 {sr(S_CNT)}, 3"}
            if p == 2: ex = {70: f"buffer_load_dwordx4 v[252:255], {vr(VPL)}, {sr(S_DB,4)}, 0 offen sc1"}
            if p == 3:
                ex = {73: f"s_cmp_eq_u32 {sr(S_CNT)}, 2", 45: f"ds_add_rtn_u32 v230, v231, {vr(VPL+1)}"}
            if p == 4:
                self.stamp("la0")
                a(f"s_cbranch_scc1 L_last")
                a.label("L_lastb")
                self.stamp("la1")
                ex = {72: f"s_add_u32 {sr(S_CNT)}, {sr(S_CNT)}, 1", 1: "v_cmp_eq_u32 vcc, 3, v230", 3: f"v_cndmask_b32 v230, v231, {vr(VPL)}, vcc",
                      6: f"buffer_atomic_add {vr(VPL+1)}, v230, {sr(S_DB,4)}, 0 offen sc1"}
            self.period(p, extra=ex, inc=sr(S_INC) if p == 4 else None)
            if p == 1: a("s_cbranch_scc1 L_p14")
        a("s_branch L_loop")
        a.label("L_p14")
        SW = 66
        self.stamp("p14")
        a(f"s_cmp_eq_u32 {sr(S_DUM)}, 4\ns_cbranch_scc0 L_dummyb")
        for i in range(16): a(f"v_mov_b32 {vr(V_CI+i)}, 0xff800000")
        a("s_nop 1")
        a.label("L_dummyb")
        ex = dict(zip([2, 6, 8, 12, 14, 18, 20, 24, 26, 30], self.w_reads(self.WD, 0)))
        ex[0] = "s_waitcnt vmcnt(9)"
        ex.update(dict(zip([4, 10, 16, 22, 28], self.w8_loads(self.WD[2], SW))))
        self.period(14, dma=False, kread=False, extra=ex, halves=(0,))
        self.stamp("tail")
        self.tail(SW)
        self.stamp("end")
        self.epilogue(SW)

    def rare(self):
        a = self.a
        T = S_T
        SW = 66
        a.label("L_last")
        a(f"s_waitcnt vmcnt(9)\ns_mov_b32 {sr(T+2)}, 0")
        a.label("L_late")
        a(f"""v_readfirstlane_b32 {sr(T)}, v252
        v_readfirstlane_b32 {sr(T+1)}, v254
        s_add_u32 {sr(S_XA)}, {sr(S_WS)}, {WS_WF}
        s_addc_u32 {sr(S_XA+1)}, {sr(S_WS+1)}, 0
        s_mov_b32 {sr(S_XA+2)}, {18*BLK}
        s_add_u32 {sr(S_TOFF)}, {sr(S_LB)}, {9*BLK}
        s_mov_b32 {sr(S_INC)}, {-9*BLK}
        s_lshr_b32 {sr(SW)}, {sr(S_W)}, 1
        s_lshl_b32 {sr(SW)}, {sr(SW)}, 30
        s_add_u32 {sr(SW+1)}, {sr(SW)}, {WS_WF + 8*BLK}
        s_add_u32 {sr(SW)}, {sr(SW)}, {WS_WF + 17*BLK}
        s_cmp_ge_u32 {sr(T)}, 126
        s_cselect_b32 {sr(T+3)}, {sr(T+1)}, 0
        s_cmp_ge_u32 {sr(T+3)}, 2
        s_cbranch_scc1 L_lastb
        buffer_load_dwordx4 v[252:255], {vr(self.VPL)}, {sr(S_DB,4)}, 0 offen sc1
        s_add_u32 {sr(T+2)}, {sr(T+2)}, 1
        s_waitcnt vmcnt(0)
        s_cmp_lt_u32 {sr(T+2)}, 0x40000
        s_cbranch_scc1 L_late
        s_branch L_lastb""")

    units = [(0, 0), (0, 1), (1, 0), (1, 1), (2, 0)]
    V15 = V_K

    def stage(self, slot, T):
        src = ar(A_O + 36 * slot + 4 * T, 4)
        if slot == 0: return f"ds_write_b128 {vr(self.VST)}, {src} offset:{1024*T}"
        if slot == 2: return f"ds_write_b128 {vr(self.VS0)}, {src} offset:{1024*T}"
        if T < 4: return f"ds_write_b128 {vr(self.VST)}, {src} offset:{SLOT + 1024*T + (4096 if slot == 3 else 0)}"
        return f"{'s_not_b64' if slot == 1 else 's_mov_b64'} exec, {sr(self.MP1,2)}\nds_write_b128 {vr(self.VST)}, {src} offset:{SLOT + 8192}\ns_mov_b64 exec, -1"

    def dwf(self, k, i):
        f = 5 * k + i
        return self.DWT[f >> 1] + 2 * (f & 1)

    def tail(self, SW):
        a, o = self.a, self.o
        mf, pos, start = [], {}, {}
        for t_, qb in ((14, 0), (14, 1), (15, 0), (15, 1), (14, 2), (15, 2), (14, 3), (15, 3)):
            start[t_, qb] = len(mf)
            for Tt in ([0, 1, 2, 3, 8, 4, 5, 6, 7] if qb & 1 else range(9)):
                o_ = ar(A_O + 36 * qb + 4 * Tt, 4)
                pos[t_, qb, Tt] = len(mf)
                mf.append(f"v_mfma_f32_16x16x32_bf16 {o_}, {vr((V_V if t_ == 14 else self.V15)+4*Tt,4)}, {vr(self.P(t_ & 1,qb),4)}, {o_}")
        lst = []
        for qb in range(4):
            for j in range(8):
                lst.append(("e", qb, j))
                if j & 1: lst.append(("c", qb, j // 2))
        lst += [("a", qb, j) for qb in range(4) for j in range(8)]
        items = self.e_items(1, lst, lambda qb, j: 0 if j < 4 else 1, lambda qb: start[15, qb] - 2)
        for it in items[48:]: it["lo"] = o.get("alo", 26)
        v15 = [dict(t=x, c=4, need=pos[15, 0, i // 2], hi=pos[15, 0, i // 2] - o.get("vlead", 7), lo=0 if i < 16 else 2) for i, x in enumerate(self.v_reads(3, self.V15))]
        wr = []
        nown = o.get("nown", 4)
        self.own = [(2, T_) for T_ in range(nown, 9)] + [(3, T_) for T_ in (0, 1, 2, 3, 8)]
        g = o.get("w0", 23)
        for k, (sl, Tt) in enumerate([(0, T_) for T_ in range(9)] + [(1, T_) for T_ in (0, 1, 2, 3, 8)] + [(2, T_) for T_ in range(nown)]):
            g = max(pos[15, sl, Tt] + 5, g)
            wr.append(dict(t=self.stage(sl, Tt), c=o.get("wc", 20), lo=int(g), hi=int(g)) if g < 72 else dict(t=self.stage(sl, Tt), c=4, lo=999))
            g += o.get("wsp", 2.7)
        n0 = len(items) + len(v15)
        wo = []
        for i, x in enumerate(self.w_reads(self.WO, SLOT)):
            r0 = self.WO[i // 5][i % 5][1]
            wo.append(dict(t=("@VM\n" if i == 0 else "") + x, c=4, dep=sorted({n0 + r0 // 4, n0 + (r0 + 3) // 4 if (r0 + 3) // 4 < 9 else n0 + 8}), lo=o.get("wo0", 40) + 3 * i, hi=o.get("wo0", 40) + 3 * i + 2))
        cl = self.conv_loads()
        dl = [f"buffer_load_dwordx4 {vr(self.DWT[r],4)}, {vr(self.VDW)}, {sr(S_WS,4)}, 0 offen offset:{256*r}" for r in range(7)]
        dl.append(f"buffer_load_dwordx2 {vr(self.DWT[7],2)}, {vr(self.VDW)}, {sr(S_WS,4)}, 0 offen offset:{256*7}")
        fr = {96: 9, 100: 18, 104: 45, 112: 27, 116: 36}
        vm = [(x, 0) for x in cl] + [(x, fr.get(self.DWT[r], 0)) for r, x in enumerate(dl)]
        used = {w["lo"] for w in wr}
        vi, g = [], o.get("m0", 24)
        for x, lo in vm:
            g = max(g, lo)
            while int(g) in used: g += 1
            vi.append(dict(t=x, c=8, lo=int(g), hi=int(g)) if g < 72 else dict(t=x, c=8, lo=999))
            g += o.get("msp", 2.2)
        left = self.pack(mf, items + v15 + wr + wo + vi)
        self.done_a = {(qb, j) for qb in range(4) for j in range(8) if self.etext(1, ("a", qb, j)) not in left}
        left = [x for x in left if not x.startswith("v_add_f32")]
        print("tail overflow", self.over, "left", len(left), "adds done", len(self.done_a))
        self.left = left

    def epilogue(self, SW):
        a, o = self.a, self.o
        T = S_T
        p = lambda r: vr(r, 2)
        NB, PT, MK, VO, units, MP1 = self.NB, self.PT, self.MK, self.VO, self.units, self.MP1
        U, GM, G0, GP = self.U, self.GM, self.G0, self.GP
        X2O = self.X2O
        R1, R2, R3 = 230, 231, 249
        LA, LS, M = 10, 226, 48

        def weave(main, fill, per):
            fill = list(fill)
            for x in main:
                a(x)
                for _ in range(per):
                    if fill: a(fill.pop(0))
            return fill
        for x in self.left:
            if not x.startswith("buffer"): a(x)
        lv = [x for x in self.left if x.startswith("buffer")]
        lv += [f"buffer_load_dwordx4 {vr(self.XRS[j],4)}, {vr(VO+j)}, {sr(S_X,4)}, {sr(self.E_COL)} offen" for j in range(2)]
        lv.append(f"buffer_load_dwordx2 {vr(self.XRS[2],2)}, {vr(self.VO8)}, {sr(S_X,4)}, 0 offen offset:256")
        S1 = lambda qb, j: self.S(1, qb, j)
        rounds = [[] for _ in range(6)]
        for qb in range(4):
            rem = [j for j in range(8) if (qb, j) not in self.done_a]
            prs = [j for j in rem if j % 2 == 0 and j + 1 in rem]
            sing = [j for j in rem if (j & ~1) not in prs]
            r_ = 0
            while len(prs) > 1:
                for x, y in zip(prs[0::2], prs[1::2]): rounds[r_].append(f"v_pk_add_f32 {p(S1(qb,x))}, {p(S1(qb,x))}, {p(S1(qb,y))}")
                prs = prs[0::2]; r_ += 1
            for k_, j in enumerate(sing + ([prs[0], prs[0] + 1] if prs else [])): rounds[min(5, max(r_, 2) + k_)].append(f"v_add_f32 {vr(V_L+qb)}, {vr(V_L+qb)}, {vr(S1(qb,j))}")
        for r_ in rounds:
            for x in r_: a(x)
        a(f"v_add_u32 {vr(R1)}, {sr(self.RS1)}, {vr(V_DMA)}\nv_add_u32 {vr(R2)}, {sr(self.RS2)}, {vr(V_DMA)}")
        self.treduce(V_L)
        a(f"ds_write_b32 {vr(self.VLW)}, {vr(V_L)}")
        acc = lambda slot: [f"v_accvgpr_read_b32 {vr(M+i)}, {ar(A_O+36*slot+16+i)}" for i in range(20)]
        a(f"""v_add_u32 {vr(R3)}, {sr(self.RS3)}, {vr(V_DMA)}
        v_add_u32 {vr(LA+1)}, {self.L_L}, {vr(V_DMA)}
        v_and_b32 {vr(LS+1)}, 0xf0, {vr(V_DMA)}
        s_lshl_b32 {sr(T)}, {sr(NB)}, 8
        s_add_u32 {sr(T+8)}, {sr(T)}, {self.L_L}
        v_add_u32 {vr(LS)}, {sr(T+8)}, {vr(LS+1)}""")
        for x in lv: a(x)
        a(f"""s_xor_b32 {sr(T)}, s2, 1
        s_mul_i32 {sr(T)}, {sr(T)}, {IB}
        s_mul_i32 {sr(T+9)}, {sr(NB)}, 5120
        s_add_u32 {sr(T+9)}, {sr(T+9)}, {WS_IB}
        s_add_u32 {sr(T)}, {sr(T)}, {sr(T+9)}
        s_lshl_b32 {sr(T+10)}, {sr(PT)}, 11
        s_add_u32 {sr(T+1)}, {sr(T+10)}, {sr(T)}
        s_add_u32 {sr(T)}, {sr(T)}, 4096
        s_cmp_eq_u32 {sr(PT)}, 0
        s_cselect_b32 {sr(T)}, 0x40000000, {sr(T)}
        s_mov_b32 {sr(T+2)}, {f32(2.0**100)}
        s_mul_i32 {sr(T+12)}, s2, {IB}
        s_add_u32 {sr(T+12)}, {sr(T+12)}, {sr(T+9)}
        s_add_u32 {sr(T+13)}, {sr(T+12)}, {sr(T+10)}
        s_waitcnt lgkmcnt(0)
        s_barrier""")
        self.stamp("B1")

        def rd(X, offs):
            L = [[f"ds_read_b128 {vr(X[k][i],4)}, {vr((R1, R2, R3)[k])} offset:{offs[k] + 1024*i}" for i in range(4)] for k in range(3)]
            L8 = [f"ds_read_b128 {vr(X[k][4],4)}, {vr((R1, R2, R3)[k])} offset:8192" for k in range(3)]
            return L, L8

        def adds(X, k, rng):
            return [f"v_pk_add_f32 {p(M+4*i+2*h)}, {p(M+4*i+2*h)}, {p(X[k][i]+2*h)}" for i in rng for h in range(2)]
        X = [[128, 132, 136, 140, 144], [148, 152, 156, 160, 68], [72, 76, 200, 204, 108]]
        PK = 128
        L, L8 = rd(X, (0, 4096, 0))
        a(f"ds_read_b128 {vr(LA,4)}, {vr(LA+1)}\nds_read_b128 {vr(LS,4)}, {vr(LS)}")
        rest = weave(L[0] + L[1] + L[2], acc(1), 2)
        assert not rest
        a(f"s_mov_b64 exec, {sr(MP1,2)}")
        for x in L8: a(x)
        a(f"""s_mov_b64 exec, -1
        s_waitcnt lgkmcnt(11)
        v_add_f32 {vr(LA)}, {vr(LA)}, {vr(LA+1)}
        v_add_f32 {vr(LA+2)}, {vr(LA+2)}, {vr(LA+3)}
        v_add_f32 {vr(LS)}, {vr(LS)}, {vr(LS+1)}
        v_add_f32 {vr(LA)}, {vr(LA)}, {vr(LA+2)}
        v_add_f32 {vr(LS+2)}, {vr(LS+2)}, {vr(LS+3)}
        v_cmp_nge_f32 vcc, {sr(T+2)}, {vr(LA)}""")
        for x in adds(X, 0, range(4)): a(x)
        a(f"""s_cmp_lg_u64 vcc, 0
        s_cselect_b32 {sr(T+2)}, 1, 0
        s_andn2_b32 {sr(T+2)}, {sr(T+2)}, {sr(S_REDO)}
        s_cbranch_scc1 L_fallback
        v_add_f32 {vr(PK+10)}, {vr(LS)}, {vr(LS+2)}
        v_mov_b32 {vr(PK+11)}, {vr(MK+1)}
        s_waitcnt lgkmcnt(7)""")
        for x in adds(X, 1, range(4)): a(x)
        a("s_waitcnt lgkmcnt(3)")
        a3 = adds(X, 2, range(4))
        cv = [f"v_cvt_pk_bf16_f32 {vr(PK+i)}, {vr(M+2*i)}, {vr(M+2*i+1)}" for i in range(10)]
        for x in a3[:4] + a3[4:6] + cv[:4]: a(x)
        a(f"buffer_store_dwordx4 {vr(PK,4)}, {vr(V_DMA)}, {sr(S_WS,4)}, {sr(T+1)} offen sc1")
        for x in a3[6:] + cv[4:8]: a(x)
        a(f"buffer_store_dwordx4 {vr(PK+4,4)}, {vr(V_DMA)}, {sr(S_WS,4)}, {sr(T+1)} offen offset:1024 sc1")
        a("s_waitcnt lgkmcnt(0)")
        for kk in range(3):
            for x in adds(X, kk, [4]): a(x)
        for x in cv[8:]: a(x)
        a(f"buffer_store_dwordx4 {vr(PK+8,4)}, {vr(V_DMA)}, {sr(S_WS,4)}, {sr(T)} offen sc1")
        self.stamp("sent")
        a(f"s_cmp_eq_u32 {sr(S_VAL)}, 0\ns_cbranch_scc1 L_fin")
        C, UP = 140, 68
        IN = [(200, 204, 226), (164, 168, 252), (192, 196, 172)]
        VXW, VXR, VF, LO = 78, 79, 10, 36
        wr = [self.stage(*e) for e in self.own]

        def inbox(k):
            return [f"buffer_load_dwordx4 {vr(IN[k][0],4)}, {vr(V_DMA)}, {sr(S_WS,4)}, {sr(T+13)} offen sc1",
                    f"buffer_load_dwordx4 {vr(IN[k][1],4)}, {vr(V_DMA)}, {sr(S_WS,4)}, {sr(T+13)} offen offset:1024 sc1",
                    f"buffer_load_dwordx4 {vr(IN[k][2],4)}, {vr(V_DMA+1)}, {sr(S_WS,4)}, {sr(T+12)} offen sc1"]
        for x in inbox(0): a(x)
        n0 = len(a.lines)
        a(f"""s_lshl_b32 {sr(T)}, {sr(NB)}, 12
        s_add_u32 {sr(T)}, {sr(T)}, {sr(T+10)}
        s_add_u32 {sr(T)}, {sr(T)}, {self.X1B}
        v_add_u32 {vr(VXW)}, {sr(T)}, {vr(V_DMA)}
        s_lshl_b32 {sr(T)}, {sr(NB)}, 9
        s_add_u32 {sr(T)}, {sr(T)}, {self.X1B + 4096}
        v_add_u32 {vr(VXR)}, {sr(T)}, {vr(self.VL8)}
        s_lshl_b32 {sr(T)}, {sr(PT)}, 12
        s_add_u32 {sr(T)}, {sr(T)}, {self.X1B}
        v_add_u32 {vr(VF)}, {sr(T)}, {vr(V_DMA)}
        v_xor_b32 {vr(VF+1)}, 4096, {vr(VF)}
        s_lshl_b32 {sr(T)}, {sr(PT)}, 9
        s_add_u32 {sr(T)}, {sr(T)}, {self.X1B + 4096}
        v_add_u32 {vr(VF+2)}, {sr(T)}, {vr(self.VL8)}
        v_xor_b32 {vr(VF+3)}, 512, {vr(VF+2)}
        v_subrev_u32 {vr(R2)}, {2*SLOT}, {vr(R2)}
        v_subrev_u32 {vr(R3)}, {2*SLOT}, {vr(R3)}
        s_waitcnt vmcnt(9)""")
        self.stamp("cv0")
        un = [f"v_lshlrev_b32 {vr(M+2*i)}, 16, {vr(U+i)}\nv_and_b32 {vr(M+1+2*i)}, 0xffff0000, {vr(U+i)}" for i in range(10)]
        w8 = self.w8_loads(self.WO[2], SW + 1)
        for k, src in enumerate((GM, G0, GP)):
            for i in range(5):
                d = vr(C + 4 * i, 4)
                a(f"v_mfma_f32_16x16x16_bf16 {d}, {vr(self.dwf(k, i),2)}, {vr(src+2*i,2)}, {'0' if k == 0 else d}")
                a(w8.pop(0) if i in (0, 3) and w8 else un.pop(0))
        self.stamp("cv1")
        a(f"v_and_b32 {vr(LO+1)}, 0xf0, {vr(V_DMA)}\nv_add_u32 {vr(LO)}, {sr(T+8)}, {vr(LO+1)}\ns_nop 1")
        for i in range(10): a(f"v_pk_mul_f32 {p(C+2*i)}, {p(C+2*i)}, {p(M+2*i)}")
        for i in range(10):
            a(f"v_cvt_pk_bf16_f32 {vr(UP+i)}, {vr(C+2*i)}, {vr(C+2*i+1)}")
        body = a.lines[n0:]; del a.lines[n0:]
        step = max(1, len(body) // len(wr))
        for i, l in enumerate(body):
            if i % o.get("wstep", step) == 0 and wr: a(wr.pop(0))
            a.lines.append(l)
        for x in wr: a(x)
        ac = acc(3)
        a(f"ds_write_b128 {vr(VXW)}, {vr(UP,4)} offset:{X2O}")
        for x in ac[:6]: a(x)
        a(f"ds_write_b128 {vr(VXW)}, {vr(UP+4,4)} offset:{X2O + 1024}")
        for x in ac[6:12]: a(x)
        a(f"""s_mov_b64 exec, {sr(MP1,2)}
        ds_write_b64 {vr(VXR)}, {vr(UP+8,2)} offset:{X2O}
        s_mov_b64 exec, -1""")
        self.stamp("x2")
        for x in inbox(1): a(x)
        for x in ac[12:]: a(x)
        a("s_waitcnt lgkmcnt(0)\ns_barrier")
        self.stamp("B2")
        X = [[128, 132, 136, 140, 144], [148, 152, 156, 160, 188], [16, 20, 24, 28, 32]]
        L, L8 = rd(X, (4096, 4096, 0))
        BU = [[("v", r) for r in (100, 104, 108, 112, 116)], [("v", r) for r in (118, 122, 180, 184, 126)]]
        BO = [self.frag("v", 128), self.frag("v", 146)]
        AB = 80

        def bfrags(dst, off):
            out = []
            for s in range(5):
                for j in range(2):
                    out.append(f"ds_read_b128 {self.rg(dst[j][s],4)}, {vr(VF+j)} offset:{off + 1024*s}" if s < 4 else f"ds_read_b64 {self.rg(dst[j][4],2)}, {vr(VF+2+j)} offset:{off}")
            return out

        def fg(W, Bf):
            out = []
            for s in range(5):
                for u, (tt, j) in enumerate(units):
                    d = vr(AB + 4 * u, 4)
                    if s < 4: out.append(f"v_mfma_f32_16x16x32_bf16 {d}, {self.rg(W[tt][s],4)}, {self.rg(Bf[j][s],4)}, {d}")
                    else: out.append(f"v_mfma_f32_16x16x16_bf16 {d}, {self.rg(W[tt][4],2)}, {self.rg(Bf[j][4],2)}, {d}")
            return out
        xu = []
        for u, (tt, j) in enumerate(units):
            for h in range(2):
                x = self.XRS[j] + 2 * tt + h if tt < 2 else self.XRS[2] + h
                xu += [f"v_lshlrev_b32 {vr(AB+4*u+2*h)}, 16, {vr(x)}", f"v_and_b32 {vr(AB+1+4*u+2*h)}, 0xffff0000, {vr(x)}"]
        a("s_waitcnt vmcnt(14)")
        weave(bfrags(BU, X2O), xu, 2)
        pl = lambda k, i, e: f"v_add_f32 {vr(M+4*i+e)}, {vr(M+4*i+e)}, {vr(X[k][i]+e)}"
        ds = L[0] + L[1] + L[2] + [f"s_not_b64 exec, {sr(MP1,2)}\n" + "\n".join(L8) + "\ns_mov_b64 exec, -1", f"ds_read_b128 {vr(LO,4)}, {vr(LO)} offset:512"]
        nis = [1] * 12 + [3, 1]
        gap = [[] for _ in range(25)]
        tot = [10]
        for g in range(25): tot.append(tot[-1] + (nis[g] if g < 14 else 0))
        A0 = [pl(0, i, e) for i in range(4) for e in range(4)]
        A1 = [pl(1, i, e) for i in range(4) for e in range(4)]
        ib = inbox(2)
        for g, m in enumerate(fg(self.WD, BU)):
            if g % 5 == 0: a(f"s_waitcnt lgkmcnt({min(15, tot[g] - 2 * (g // 5 + 1))})")
            a(m)
            if g == 8: a(f"s_waitcnt lgkmcnt({tot[g] - 14})")
            if g == 16: a(f"s_waitcnt lgkmcnt({tot[g] - 18})")
            if g < 14: a(ds[g])
            if 8 <= g < 14: a(A0.pop(0))
            elif g in (14, 18, 22): a(ib.pop(0))
            elif g >= 14:
                for _ in range(2): a(A0.pop(0) if A0 else A1.pop(0))
        assert not A0 and len(A1) % 2 == 0
        n1 = 16 - len(A1)
        for e in range(n1, 16, 2): a(f"v_pk_add_f32 {p(M+e)}, {p(M+e)}, {p(X[1][e//4]+e%4)}")
        a("s_waitcnt lgkmcnt(0)")
        for x in adds(X, 2, range(4)): a(x)
        a(f"v_add_f32 {vr(LO)}, {vr(LO)}, {vr(LO+1)}\nv_add_f32 {vr(LO+2)}, {vr(LO+2)}, {vr(LO+3)}")
        for kk in range(3):
            for x in adds(X, kk, [4]): a(x)
        a(f"s_mov_b32 {sr(T+2)}, 0\nv_add_f32 {vr(LO)}, {vr(LO)}, {vr(LO+2)}")
        self.stamp("own")
        w, PU = 40, 128
        mo = MK + 3

        def chk(k):
            r = [IN[k][q] + i for q in range(3) for i in range(4)]
            c = [f"v_max3_u32 v46, {vr(r[0])}, {vr(r[1])}, {vr(r[2])}", f"v_max3_u32 v47, {vr(r[3])}, {vr(r[4])}, {vr(r[5])}"]
            for q in range(3): c.append(f"v_max3_u32 v{46+(q&1)}, v{46+(q&1)}, {vr(r[6+2*q])}, {vr(r[7+2*q])}")
            return c + ["v_max_u32 v46, v46, v47", "v_cmp_eq_u32 vcc, -1, v46"]

        def take(k, with_chk):
            r = [IN[k][q] + i for q in range(3) for i in range(4)]
            lp_, mp = r[10], r[11]
            wt = [f"v_min_f32 {vr(w)}, {vr(mo)}, {vr(mp)}", f"v_sub_f32 {vr(w+2)}, {vr(w)}, {vr(mp)}", f"v_sub_f32 {vr(w)}, {vr(w)}, {vr(mo)}",
                  f"v_exp_f32 {vr(w+2)}, {vr(w+2)}", f"v_exp_f32 {vr(w)}, {vr(w)}", f"v_mul_f32 {vr(w+4)}, {vr(w+2)}, {vr(lp_)}",
                  f"v_fmac_f32 {vr(w+4)}, {vr(w)}, {vr(LO)}", f"v_rcp_f32 {vr(w+4)}, {vr(w+4)}", f"v_mul_f32 {vr(w)}, {vr(w)}, {vr(w+4)}",
                  f"v_mul_f32 {vr(w+2)}, {vr(w+2)}, {vr(w+4)}"]
            un = []
            for i in range(10): un += [f"v_lshlrev_b32 {vr(PU+2*i)}, 16, {vr(r[i])}", f"v_and_b32 {vr(PU+1+2*i)}, 0xffff0000, {vr(r[i])}"]
            c = chk(k) if with_chk else []
            for i in range(10):
                a(wt[i])
                if c: a(c.pop(0))
                a(un.pop(0)); a(un.pop(0))
        a("s_waitcnt vmcnt(6)")
        take(0, True)
        a("s_cmp_eq_u64 vcc, 0\ns_cbranch_scc0 L_poll2")
        a.label("L_got")
        self.stamp("got")
        for i in range(10): a(f"v_pk_mul_f32 {p(M+2*i)}, {p(M+2*i)}, {p(w)} op_sel_hi:[1,0]")
        for i in range(10): a(f"v_pk_fma_f32 {p(M+2*i)}, {p(PU+2*i)}, {p(w+2)}, {p(M+2*i)} op_sel_hi:[1,0,1]")
        for i in range(10):
            a(f"v_cvt_pk_bf16_f32 {vr(UP+i)}, {vr(M+2*i)}, {vr(M+2*i+1)}")
            if i == 3: a(f"ds_write_b128 {vr(VXW)}, {vr(UP,4)}")
            if i == 7: a(f"ds_write_b128 {vr(VXW)}, {vr(UP+4,4)} offset:1024")
        a(f"""s_not_b64 exec, {sr(MP1,2)}
        ds_write_b64 {vr(VXR)}, {vr(UP+8,2)}
        s_mov_b64 exec, -1
        s_waitcnt lgkmcnt(0)
        s_barrier""")
        self.stamp("B3")
        for x in bfrags(BO, 0): a(x)
        for g, m in enumerate(fg(self.WO, BO)):
            if g % 5 == 0: a(f"s_waitcnt lgkmcnt({8 - 2 * (g // 5)})" + ("\ns_nop 0" if g == 20 else ""))
            a(m)
        self.stamp("gem")
        a("s_nop 3")
        for j in range(2):
            for tt in range(2):
                u = 2 * tt + j
                for h in range(2): a(f"v_cvt_pk_bf16_f32 {vr(16+4*j+2*tt+h)}, {vr(AB+4*u+2*h)}, {vr(AB+4*u+2*h+1)}")
            a(f"buffer_store_dwordx4 {vr(16+4*j,4)}, {vr(VO+j)}, {sr(S_OUT,4)}, {sr(self.E_COL)} offen")
        a(f"s_cmp_ge_u32 {sr(S_W)}, 2\ns_cbranch_scc1 L_fin")
        for h in range(2): a(f"v_cvt_pk_bf16_f32 {vr(24+h)}, {vr(AB+16+2*h)}, {vr(AB+16+2*h+1)}")
        a(f"buffer_store_dwordx2 v[24:25], {vr(self.VO8)}, {sr(S_OUT,4)}, 0 offen offset:256")
        self.stamp("fin")

        def poll2():
            a.label("L_poll2")
            for k in (1, 2, 0):
                for x in inbox((k + 2) % 3): a(x)
                a("s_waitcnt vmcnt(6)")
                for x in chk(k): a(x)
                a(f"s_add_u32 {sr(T+2)}, {sr(T+2)}, 1\ns_cmp_eq_u64 vcc, 0\ns_cbranch_scc1 L_take{k}")
            a(f"s_cmp_lt_u32 {sr(T+2)}, 0x10000\ns_cbranch_scc1 L_poll2")
            for k in (0, 1, 2):
                a.label(f"L_take{k}")
                take(k, False)
                a("s_branch L_got")
        self.poll2 = poll2

    def fallback(self):
        a = self.a
        T = S_T
        MXR = 208
        a.label("L_fallback")
        a(f"""s_waitcnt vmcnt(0) lgkmcnt(0)
        s_barrier
        s_mov_b32 {sr(S_REDO)}, 1
        s_mov_b32 {sr(S_UG)}, 0x40000000
        {self.xa_srd()}
        s_mov_b32 {sr(S_TOFF)}, {sr(S_LB)}
        s_cmp_eq_u32 {sr(S_DUM)}, 4
        s_cselect_b32 {sr(S_CNT)}, 15, 16""")
        for i in range(4): a(f"v_mov_b32 {vr(MXR+i)}, 0xff800000")
        a.label("L_fb1")
        for g in self.tile_groups(0): a(g)
        a("s_waitcnt vmcnt(0)")
        for x in self.k_reads(0): a(x)
        a("s_waitcnt lgkmcnt(0)")
        for m in self.qk_mfmas(0, czero=True): a(m)
        a("s_nop 7")
        for qb in range(4):
            for i in range(0, 8, 2): a(f"v_max3_f32 {vr(MXR+qb)}, {vr(MXR+qb)}, {vr(self.S(0,qb,i))}, {vr(self.S(0,qb,i+1))}")
        a(f"s_sub_u32 {sr(S_CNT)}, {sr(S_CNT)}, 1\ns_cmp_lg_u32 {sr(S_CNT)}, 0\ns_cbranch_scc1 L_fb1")
        self.greduce([MXR + i for i in range(4)], MXR + 4, "v_max_f32")
        a(f"""v_and_b32 {vr(MXR+4)}, 15, v0
        v_lshlrev_b32 {vr(MXR+4)}, 4, {vr(MXR+4)}
        v_add_u32 {vr(MXR+4)}, {L_SP}, {vr(MXR+4)}
        s_lshl_b32 {sr(T)}, {sr(S_W)}, 2
        s_xor_b32 {sr(T+1)}, {sr(self.NB)}, 1
        v_lshl_add_u32 {vr(MXR+5)}, {sr(self.NB)}, 8, {vr(MXR+4)}
        v_lshl_add_u32 {vr(MXR+4)}, {sr(T+1)}, 8, {vr(MXR+4)}
        v_add_u32 {vr(MXR+6)}, {sr(T)}, {vr(MXR+4)}
        v_add_u32 {vr(MXR+7)}, {sr(T)}, {vr(MXR+5)}""")
        for qb in range(4): a(f"ds_write_b32 {vr(MXR+6+(qb&1))}, {vr(MXR+qb)} offset:{512*(qb>>1)}")
        a("s_waitcnt lgkmcnt(0)\ns_barrier")
        for qb in range(4): a(f"ds_read_b128 {vr(16+4*qb,4)}, {vr(MXR+4+(qb&1))} offset:{512*(qb>>1)}")
        a(f"s_mov_b32 {sr(S_TOFF)}, {sr(S_LB)}")
        for g in self.tile_groups(0) + self.tile_groups(1) + self.tile_groups(2)[:8]: a(g)
        a("s_waitcnt lgkmcnt(0)")
        for qb in range(4):
            r = 16 + 4 * qb
            a(f"v_max_f32 {vr(r)}, {vr(r)}, {vr(r+1)}\nv_max3_f32 {vr(r)}, {vr(r)}, {vr(r+2)}, {vr(r+3)}")
            a(f"v_sub_f32 {vr(self.MK+qb)}, 0, {vr(r)}")
        a("s_waitcnt vmcnt(0)")
        for x in self.k_reads(0, V_V): a(x)
        self.loop_init(False)
        a("s_branch L_go")


if __name__ == "__main__":
    opt = json.loads(sys.argv[2]) if len(sys.argv) > 2 else {}
    g = G(opt)
    txt = g.build()
    if opt.get("align", 1):
        from align import align
        for n2 in (1, 2):
            try:
                txt, st = align(txt, chains=[(1, "L_tr")] * 3 + [(1, "L_tr2"), (n2, "L_tr2")] if opt.get("touch", 1) else None)
                break
            except AssertionError as e:
                if n2 == 2: raise
        print("align: promoted %d, padded %d, left %d" % st)
    txt = txt.replace("\n", "\n; stamps " + json.dumps(g.stnames) + "\n; map %d\n" % g.mp, 1)
    open(sys.argv[1], "w").write(txt)
```

```python
import sys, json, math
from common import Asm, vr, ar, sr, kernel_header, kernel_desc
from lay import *

NAME = "standalone__conformer_family_branchformer__speech_kernel"
NH = 2
NWG = 252 + NH
CHAINS = (3, 3)
RING = 4
LDS_RING = RING * TILE
LDS_TOTAL = 163840
SLOT = 4 * TILE
L_WU, L_WQ, L_WK = 0, 41472, 82944
L_XX, L_XR = 126976, 143360
L_QD = 18432
L_XS = L_XX + L_QD
L_MX = 81920
L_PC = LDS_TOTAL - 256
L_DUMP = 123904
L_SP = 147456

S_X, S_WS, S_XA, S_DB, S_W1, S_W2, S_OUT, S_DW = 8, 12, 16, 20, 24, 28, 32, 36
S_W, S_B, S_H, S_QB, S_TOFF, S_CNT, S_DUM, S_LB, S_TOWN, S_TSND, S_VAL, S_REDO = range(40, 52)
S_UG = 25
S_INC = 24
S_T = 52
S_ST = 76

V_KA, V_VA, V_VR, V_DMA, V_L, V_VB = 1, 3, 5, 6, 10, 14
V_S, V_CI, V_P, V_K, V_V = 16, 80, 96, 128, 164
V_HI = 200
V_X = 208
A_O, A_Q, A_F = 0, 144, 216

LOG2E = 1.4426950408889634
import struct
def f32(x): return "0x%08x" % struct.unpack("<I", struct.pack("<f", x))[0]


class BAsm(Asm):
    def __init__(self):
        super().__init__()
        self.bg, self.every, self.cnt, self.skip = [], 0, 0, 0

    def __call__(self, s):
        for l in s.split("\n"):
            l = l.strip()
            if not l: continue
            self.lines.append("    " + l)
            if self.bg and self.every and not l.startswith(("s_nop", "v_mov_b32", "v_exp", "v_rcp", "v_rsq", "v_sqrt", "s_add_u32 m0")):
                self.cnt += 1
                if self.cnt >= self.every:
                    self.cnt = 0
                    self.pop()

    def pop(self):
        for x in self.bg.pop(0).split("\n"): self.lines.append("    " + x)

    def flush(self):
        while self.bg: self.pop()
        self.every = 0


class G:
    def __init__(self, opt):
        self.o = opt
        self.a = BAsm()
        self.nst = 0
        self.fill = []

    def stamp(self, name):
        if self.o.get("stamps"):
            if name in self.o.get("skipst", []): return
            if "only" in self.o and name not in self.o["only"]: return
            if self.nst >= 11: return
            self.a(f"{'s_memtime' if self.o.get('cyc') else 's_memrealtime'} {sr(S_ST + 2*self.nst, 2)}")
            self.stnames.append(name)
            self.nst += 1

    def srd(self, dst, lo, hi, n):
        if dst == S_WS and self.o.get("wsoff"):
            self.a(f"s_add_u32 {sr(dst)}, {sr(lo)}, {self.o['wsoff']}\ns_addc_u32 {sr(dst+1)}, {sr(hi)}, 0\ns_mov_b32 {sr(dst+2)}, {n}\ns_mov_b32 {sr(dst+3)}, 0x20000")
            return
        self.a(f"s_mov_b32 {sr(dst)}, {sr(lo)}\ns_mov_b32 {sr(dst+1)}, {sr(hi)}\ns_mov_b32 {sr(dst+2)}, {n}\ns_mov_b32 {sr(dst+3)}, 0x20000")

    def greduce(self, regs, tmp, op="v_add_f32"):
        a = self.a
        for sw in ("32", "16"):
            for i, r in enumerate(regs): a(f"v_mov_b32 {vr(tmp+i)}, {vr(r)}")
            if len(regs) < 3: a("s_nop 1" if len(regs) == 1 else "s_nop 0")
            for i, r in enumerate(regs): a(f"v_permlane{sw}_swap_b32 {vr(r)}, {vr(tmp+i)}")
            for i, r in enumerate(regs): a(f"{op} {vr(r)}, {vr(r)}, {vr(tmp+i)}")

    def treduce(self, r, op="v_add_f32"):
        a = self.a
        a(f"v_permlane32_swap_b32 {vr(r)}, {vr(r+2)}\nv_permlane32_swap_b32 {vr(r+1)}, {vr(r+3)}")
        a(f"{op} {vr(r)}, {vr(r)}, {vr(r+2)}\n{op} {vr(r+1)}, {vr(r+1)}, {vr(r+3)}\ns_nop 1")
        a(f"v_permlane16_swap_b32 {vr(r)}, {vr(r+1)}\n{op} {vr(r)}, {vr(r)}, {vr(r+1)}")

    def rbf(self, r):
        self.a(f"v_cvt_pk_bf16_f32 {vr(r)}, {vr(r)}, {vr(r)}\nv_lshlrev_b32 {vr(r)}, 16, {vr(r)}")

    def ln_tail(self, F, out, t, mimic):
        a = self.a
        p = lambda r: vr(r, 2)
        self.greduce([t, t + 1], t + 2)
        a(f"v_mul_f32 {vr(t+2)}, {f32(1.0/144)}, {vr(t)}")
        a(f"v_mul_f32 {vr(t+3)}, {vr(t+2)}, {vr(t+2)}")
        a(f"v_mov_b32 {vr(t+4)}, {f32(1.0/144)}")
        a(f"v_fma_f32 {vr(t)}, {vr(t+1)}, {vr(t+4)}, -{vr(t+3)}")
        a(f"v_max_f32 {vr(t)}, 0, {vr(t)}")
        if mimic:
            self.rbf(t)
            self.rbf(t + 2)
            a(f"v_add_f32 {vr(t)}, {f32(1e-5)}, {vr(t)}")
            self.rbf(t)
            a(f"v_sqrt_f32 {vr(t)}, {vr(t)}\ns_nop 0")
            self.rbf(t)
            a(f"v_rcp_f32 {vr(t)}, {vr(t)}\ns_nop 0")
        else:
            a(f"v_add_f32 {vr(t)}, {f32(1e-5)}, {vr(t)}")
            a(f"v_rsq_f32 {vr(t)}, {vr(t)}\ns_nop 0")
        a(f"v_mul_f32 {vr(t+2)}, -{vr(t+2)}, {vr(t)}")
        for i in range(18):
            a(f"v_pk_fma_f32 {p(F+2*i)}, {p(F+2*i)}, {p(t)}, {p(t+2)} op_sel_hi:[1,0,0]")
        for i in range(18):
            a(f"v_cvt_pk_bf16_f32 {vr(out+i)}, {vr(F+2*i)}, {vr(F+2*i+1)}")

    def ln_packed(self, X, F, out, t):
        a = self.a
        a(f"v_mov_b32 {vr(t+6)}, 0x3f803f80")
        for k in range(4): a(f"v_mov_b32 {vr(t+k)}, 0")
        for i in range(18):
            a(f"v_dot2_f32_bf16 {vr(t+2*(i&1))}, {vr(X+i)}, {vr(t+6)}, {vr(t+2*(i&1))}")
            a(f"v_dot2_f32_bf16 {vr(t+1+2*(i&1))}, {vr(X+i)}, {vr(X+i)}, {vr(t+1+2*(i&1))}")
        for i in range(2):
            a(f"v_lshlrev_b32 {vr(F+2*i)}, 16, {vr(X+i)}\nv_and_b32 {vr(F+2*i+1)}, 0xffff0000, {vr(X+i)}")
        a(f"v_pk_add_f32 {vr(t,2)}, {vr(t,2)}, {vr(t+2,2)}")
        un = []
        for i in range(2, 18):
            un.append(f"v_lshlrev_b32 {vr(F+2*i)}, 16, {vr(X+i)}\nv_and_b32 {vr(F+2*i+1)}, 0xffff0000, {vr(X+i)}")
        sv = (a.bg, a.every, a.cnt, a.skip)
        n0 = len(a.lines)
        a.bg, a.every = [], 0
        self.ln_tail(F, out, t, True)
        tail = a.lines[n0:]
        del a.lines[n0:]
        a.bg, a.every, a.cnt, a.skip = sv
        k = next(i for i, l in enumerate(tail) if "v_pk_fma" in l)
        for i, l in enumerate(tail[:k]):
            if "s_nop" in l and un: continue_nop = True
            a(l)
            if un and not l.strip().startswith("s_nop"): a(un.pop(0))
        while un: a(un.pop(0))
        for l in tail[k:]: a(l)

    def ln_f32(self, F, out, t):
        a = self.a
        p = lambda r: vr(r, 2)
        a(f"v_pk_add_f32 {p(t)}, {p(F)}, {p(F+2)}\nv_pk_add_f32 {p(t+2)}, {p(F+4)}, {p(F+6)}")
        a(f"v_pk_mul_f32 {p(t+4)}, {p(F)}, {p(F)}\nv_pk_mul_f32 {p(t+6)}, {p(F+2)}, {p(F+2)}")
        for i in range(2, 18):
            if i >= 4: a(f"v_pk_add_f32 {p(t+2*(i&1))}, {p(t+2*(i&1))}, {p(F+2*i)}")
            a(f"v_pk_fma_f32 {p(t+4+2*(i&1))}, {p(F+2*i)}, {p(F+2*i)}, {p(t+4+2*(i&1))}")
        a(f"v_pk_add_f32 {p(t)}, {p(t)}, {p(t+2)}\nv_pk_add_f32 {p(t+4)}, {p(t+4)}, {p(t+6)}")
        a(f"v_add_f32 {vr(t)}, {vr(t)}, {vr(t+1)}\nv_add_f32 {vr(t+1)}, {vr(t+4)}, {vr(t+5)}")
        self.ln_tail(F, out, t, False)

    def gemm_u(self, AF, rf, Bs, ACC, afr, bfr, post, vm_items=(), other=(), lead=7, vm0=0, vmsp=4):
        a = self.a
        units = [(0, j) for j in range(4)] + [(1, j) for j in range(4)] + [(2, 0)]
        seq, dl = [], {}
        bs = lambda j, o_, n: self.rg((Bs[j][0], Bs[j][1] + o_), n)
        rem = lambda u: (f"v_mfma_f32_16x16x16_bf16 {vr(ACC+4*u,4)}, {rf(AF+18*units[u][0]+16,2)}, {bs(units[u][1],16,2)}, {vr(ACC+4*u,4)}", u)
        A = [afr(t) for t in range(3)]
        Bf = [bfr(j) for j in range(4)]

        def use(t, j, s, k):
            for x in (A[t][2 * s:2 * s + 2] if s < 4 else A[t][8:]) + ([Bf[j][s]] if Bf[j] else []): dl.setdefault(x, k)
        for g in range(4):
            for s in range(4):
                for u in range(3 * g, 3 * g + 3) if g < 3 else []:
                    t, j = units[u]
                    d = vr(ACC + 4 * u, 4)
                    use(t, j, s, len(seq))
                    seq.append((f"v_mfma_f32_16x16x32_bf16 {d}, {rf(AF+18*t+4*s,4)}, {bs(j,4*s,4)}, {'0' if s == 0 else d}", None))
                if s == 0 and g > 0:
                    for u in range(3 * g - 3, 3 * g):
                        use(units[u][0], units[u][1], 4, len(seq)); seq.append(rem(u))
        last = seq[-3:]; seq = seq[:-3]
        ds = sorted(dl.items(), key=lambda e: e[1]) + [(x, 99) for x in other]
        vm_items = list(vm_items)
        lastvm = vm0 - vmsp
        order, ready, q, done = [], [], [], 0

        def issue():
            x, k_ = ds.pop(0); a(x); order.append(k_)

        def wait(k):
            nonlocal done
            idx = [i_ for i_, k_ in enumerate(order) if k_ <= k]
            if idx and max(idx) + 1 > done:
                a(f"s_waitcnt lgkmcnt({min(15, len(order) - 1 - max(idx))})"); done = max(idx) + 1
        while ds and ds[0][1] < 6: issue()
        for k, (m, fin) in enumerate(seq):
            assert not ds or ds[0][1] > k, (k, ds[0])
            wait(k)
            a(m)
            for u_, kk in list(ready):
                if k - kk >= 4: q += post(u_); ready.remove((u_, kk))
            if fin is not None: ready.append((fin, k))
            due = sum(1 for x, k_ in ds if k_ <= k + lead)
            if due == 0 and vm_items and k >= lastvm + vmsp:
                a(vm_items.pop(0)); lastvm = k; continue
            cap = 2
            for _ in range(min(due, 3)): issue(); cap -= 1
            if cap == 2:
                if q and q[0].startswith("ds_"): a(q.pop(0)); order.append(99); cap -= 1
                elif ds: issue(); cap -= 1
            while cap > 0 and q and not q[0].startswith("ds_"):
                a(q.pop(0)); cap -= 1
        assert not ready
        while ds: issue()
        wait(98)
        for x in vm_items: a(x)
        for x in q[:4]: a(x)
        a(f"s_nop {max(0, 4 - len(q[:4]))}")
        for m, _ in last: a(m)
        for x in q[4:]: a(x)
        a(f"s_nop {max(0, 6 - len(q[4:]))}")
        for u in range(6, 9):
            for x in post(u): a(x)

    def gemm(self, reads, B, ACC, AF, late=(), at={}, per=2):
        a = self.a
        buf = lambda T: 18 * (T % 6)
        ng = 3 * (4 * per + 1)

        def grp(g):
            r = [reads(T, buf(T)) for T in range(3 * g, 3 * g + 3)]
            return [r[t][per * s + u] for s in range(4) for t in range(3) for u in range(per)] + [r[t][4 * per] for t in range(3)]
        rem = lambda T: f"v_mfma_f32_16x16x16_bf16 {vr(ACC+4*T,4)}, {ar(buf(T)+16,2)}, {vr(B+16,2)}, {vr(ACC+4*T,4)}"
        pend = grp(0) + grp(1) + grp(2) + list(late)
        issued = k = 0

        def issue(n):
            nonlocal issued
            for _ in range(n):
                if issued < len(pend): a(pend[issued]); issued += 1

        def mf(x):
            nonlocal k
            a(x); issue(per if per == 2 else (2 if k % 4 == 0 else 1))
            if k in at: a(at[k])
            k += 1
        issue(self.o.get('look', 12) if per == 2 else self.o.get('look1', 8))
        for g in range(3):
            for s in range(4):
                need = ng * g + 3 * per * (s + 1)
                a(f"s_waitcnt lgkmcnt({min(15, issued - need)})")
                for T in range(3 * g, 3 * g + 3):
                    d = vr(ACC + 4 * T, 4)
                    mf(f"v_mfma_f32_16x16x32_bf16 {d}, {ar(buf(T)+4*s,4)}, {vr(B+4*s,4)}, {'0' if s == 0 else d}")
                if s == 0 and g > 0:
                    for T in range(3 * g - 3, 3 * g): mf(rem(T))
                if g == 1 and s == 0: assert issued <= 2 * ng + 6 * per, "group 2 overwrites group 0 too early"
        issue(99)
        a(f"s_waitcnt lgkmcnt({len(late)})\ns_nop 2")
        for T in range(6, 9): a(rem(T))
        a("s_nop 7")

    def tr_reads(self, ad, rf=ar):
        def f(T, dst):
            out = []
            for s in range(4):
                for u in range(2):
                    out.append(f"ds_read_b64_tr_b16 {rf(dst+4*s+2*u,2)}, {vr(ad+u)} offset:{9216*s + 32*T}")
            out.append(f"ds_read_b64_tr_b16 {rf(dst+16,2)}, {vr(ad+2)} offset:{36864 + 32*T}")
            return out
        return f

    def row_reads(self, ad, sw=None):
        def f(T, dst):
            r = ad if sw is None or T == 8 else sw[T & 1]
            out = []
            for s in range(4):
                for u in range(2):
                    out.append(f"ds_read_b64 {ar(dst+4*s+2*u,2)}, {vr(r)} offset:{4864*T + 64*s + 32*u}")
            out.append(f"ds_read_b64 {ar(dst+16,2)}, {vr(r)} offset:{4864*T + 256}")
            return out
        return f

    def dma_rows(self, jobs, cpr, rstride, vo, vc, n_first, first_waves, lab):
        a = self.a
        mul = {18: 3641, 19: 3450}[cpr]
        dr, dc = 256 // cpr, 256 % cpr
        a(f"s_lshl_b32 {sr(S_T)}, {sr(S_W)}, 6")
        a(f"v_add_u32 {vr(vc)}, {sr(S_T)}, v0")
        a(f"v_mul_u32_u24 {vr(vo)}, {mul}, {vr(vc)}")
        a(f"v_lshrrev_b32 {vr(vo)}, 16, {vr(vo)}")
        a(f"v_mul_u32_u24 {vr(vc+1)}, {cpr}, {vr(vo)}")
        a(f"v_sub_u32 {vr(vc)}, {vr(vc)}, {vr(vc+1)}")
        a(f"v_mul_u32_u24 {vr(vo)}, {rstride}, {vr(vo)}")
        a(f"v_lshl_add_u32 {vr(vo)}, {vr(vc)}, 4, {vr(vo)}")
        a(f"s_lshl_b32 {sr(S_T)}, {sr(S_W)}, 10")
        a(f"v_mov_b32 {vr(vc+1)}, {rstride - 16*cpr}")
        for k in range(n_first):
            if k == n_first - 1:
                a(f"s_cmp_ge_u32 {sr(S_W)}, {first_waves}\ns_cbranch_scc1 {lab}")
            for srd, so, lb in jobs:
                a(f"s_add_u32 m0, {sr(S_T)}, {lb + 4096*k}")
                a("s_nop 0")
                a(f"buffer_load_dwordx4 {vr(vo)}, {sr(srd,4)}, {so} offen lds")
            if k < n_first - 1:
                a(f"v_add_u32 {vr(vc)}, {dc}, {vr(vc)}")
                a(f"v_cmp_le_u32 vcc, {cpr}, {vr(vc)}")
                a(f"v_add_u32 {vr(vo)}, {dr*rstride + 16*dc}, {vr(vo)}")
                a(f"v_subrev_u32 {vr(vc+2)}, {cpr}, {vr(vc)}")
                a(f"v_cndmask_b32 {vr(vc)}, {vr(vc)}, {vr(vc+2)}, vcc")
                a(f"v_cndmask_b32 {vr(vc+2)}, 0, {vr(vc+1)}, vcc")
                a(f"v_add_u32 {vr(vo)}, {vr(vo)}, {vr(vc+2)}")
        a.label(lab)

    def voff_table(self, dst, cpr, rstride, vc, step=256):
        a = self.a
        mul = {18: 29128, 19: 27595}[cpr]
        n = len(dst)
        a(f"s_mov_b32 {sr(S_T)}, {rstride - 16*cpr}")
        a(f"v_mul_u32_u24 {vr(dst[0])}, {mul}, {vr(vc)}")
        for k in range(1, n): a(f"v_add_u32 {vr(dst[k])}, {(step*k % cpr)*mul}, {vr(dst[0])}")
        for k in range(n): a(f"v_lshrrev_b32 {vr(dst[k])}, 19, {vr(dst[k])}")
        for k in range(n): a(f"v_mad_i32_i24 {vr(dst[k])}, {vr(dst[k])}, {sr(S_T)}, {vr(vc+1)}")

    def dma_lin(self, srd, soff, lb, v16, lab):
        a = self.a
        a(f"s_lshl_b32 {sr(S_T)}, {sr(S_W)}, 10")
        for k in range(11):
            if k == 10:
                a(f"s_cmp_ge_u32 {sr(S_W)}, 1\ns_cbranch_scc1 {lab}")
            a(f"s_add_u32 m0, {sr(S_T)}, {lb + 4096*k}")
            a(f"s_add_u32 {sr(S_T+1)}, {sr(S_T)}, {soff + 4096*k}")
            a(f"buffer_load_dwordx4 {vr(v16)}, {sr(srd,4)}, {sr(S_T+1)} offen lds")
        a.label(lab)

    def tr_addr(self, ad, base, swapped, t):
        a = self.a
        a(f"v_lshrrev_b32 {vr(t)}, 2, v0")
        a(f"v_mul_u32_u24 {vr(t)}, 288, {vr(t)}")
        a(f"v_and_b32 {vr(t+1)}, 3, v0")
        a(f"v_lshl_add_u32 {vr(t)}, {vr(t+1)}, 3, {vr(t)}")
        a(f"v_add_u32 {vr(ad+2)}, {base}, {vr(t)}")
        if swapped:
            a(f"v_bfe_u32 {vr(t)}, v0, 4, 1")
            a(f"v_mul_u32_u24 {vr(t)}, {16*288}, {vr(t)}")
            a(f"v_add_u32 {vr(ad)}, {vr(ad+2)}, {vr(t)}")
            a(f"v_sub_u32 {vr(ad+1)}, {vr(ad+2)}, {vr(t)}")
            a(f"v_add_u32 {vr(ad+1)}, {16*288}, {vr(ad+1)}")
        else:
            a(f"v_mov_b32 {vr(ad)}, {vr(ad+2)}")
            a(f"v_add_u32 {vr(ad+1)}, {16*288}, {vr(ad+2)}")

    def row_addr(self, ad, base, t):
        a = self.a
        a(f"v_and_b32 {vr(t)}, 15, v0")
        a(f"v_mul_u32_u24 {vr(t)}, 304, {vr(t)}")
        a(f"v_lshrrev_b32 {vr(t+1)}, 4, v0")
        a(f"v_lshl_add_u32 {vr(t)}, {vr(t+1)}, 3, {vr(t)}")
        a(f"v_add_u32 {vr(ad)}, {base}, {vr(t)}")

    def store_block(self, src, v16, v8, srd, soff, soff2, flags=""):
        a = self.a
        for s in range(4):
            a(f"buffer_store_dwordx4 {vr(src+4*s,4)}, {vr(v16)}, {sr(srd,4)}, {sr(soff)} offen offset:{1024*s} {flags}")
        a(f"buffer_store_dwordx2 {vr(src+16,2)}, {vr(v8)}, {sr(srd,4)}, {sr(soff2)} offen {flags}")

    def entry(self):
        a = self.a
        kernel_header(a, NAME)
        a(f"s_load_dwordx16 s[56:71], s[0:1], 0")
        a(f"s_load_dwordx8 s[72:79], s[0:1], 64")
        a(f"s_getpc_b64 {sr(S_W1,2)}")
        a.label("L_pf")
        hl = self.o.get("hlast", 1)
        if not hl: a(f"s_cmp_lt_u32 s2, {NH}\ns_cbranch_scc1 L_wfuse")
        a(f"""s_mov_b32 {sr(S_W1+2)}, L_dummy-L_pf
        s_mov_b32 {sr(S_W1+3)}, 0x20000
        v_lshlrev_b32 v1, 4, v0
        s_bfe_u32 {sr(S_T)}, s2, 0x30003
        s_lshl_b32 {sr(S_T)}, {sr(S_T)}, 12
        buffer_load_dwordx4 v[252:255], v1, {sr(S_W1,4)}, 0 offen
        buffer_load_dwordx4 v[252:255], v1, {sr(S_W1,4)}, {sr(S_T)} offen
        s_cmp_ge_u32 s2, {NWG - NH * hl}
        s_cbranch_scc1 {"L_wfuse" if hl else "L_end"}""")
        if self.o.get("late"):
            m_, v_, n_ = self.o["late"]
            a(f"""s_and_b32 s3, s2, {m_}
            s_cmp_lg_u32 s3, {v_}
            s_cbranch_scc1 L_nl
            s_memrealtime s[4:5]
            s_waitcnt lgkmcnt(0)
            s_add_u32 s6, s4, {n_}
            L_lt:
            s_memrealtime s[4:5]
            s_waitcnt lgkmcnt(0)
            s_sub_u32 s7, s6, s4
            s_cmp_gt_i32 s7, 0
            s_cbranch_scc1 L_lt
            L_nl:""")
        if self.o.get("stamps"):
            a("s_memrealtime s[100:101]" if not self.o.get("cyc") else "s_memtime s[100:101]")
        self.mp = 2
        a(f"""v_lshrrev_b32 v1, 6, v0
        s_sub_u32 s2, s2, {0 if hl else NH}
        v_readfirstlane_b32 {sr(S_W)}, v1
        s_and_b32 {sr(S_H)}, s2, 1
        s_bfe_u32 {sr(S_B)}, s2, 0x10001
        s_lshr_b32 {sr(S_QB)}, s2, 2
        v_and_b32 v0, 63, v0
        v_lshlrev_b32 {vr(V_DMA)}, 4, v0""")

    def vm_since(self, mark):
        return sum(1 for l in self.a.lines[mark:] if l.strip().startswith("buffer_"))

    def phase_a(self):
        a, o = self.a, self.o
        XR, XF, XA, ACC, G_, PK = 16, 34, 146, 110, 16, 164
        B4, XD = 16, 88
        VS, VSW, VR4, MXA, MXR, L8, TRU, TRQ, TRQ8, RK, TM = 200, 204, 208, 212, 213, 214, 215, 218, 221, 224, 228
        VK, VU = list(range(182, 193)), list(range(193, 200)) + list(range(104, 108))
        AQ1 = 200
        t0, t1, t2 = 250, 251, 227
        T = S_T
        WV, W10, UOFF, M1, PUB, M3 = 72, 70, 71, 69, 68, 65
        a(f"""s_lshl_b32 {sr(T)}, {sr(S_QB)}, 1
        s_add_u32 {sr(S_TOWN)}, {sr(T)}, {sr(S_H)}
        s_xor_b32 {sr(S_TSND)}, {sr(S_TOWN)}, 1
        s_cmp_lt_u32 {sr(S_TOWN)}, {NT}
        s_cselect_b32 {sr(S_VAL)}, 1, 0
        s_cmp_lt_u32 {sr(S_W)}, 2
        s_cselect_b32 {sr(T+3)}, {sr(S_TSND)}, {sr(S_TOWN)}
        s_mul_i32 {sr(T)}, {sr(S_B)}, {NT}
        s_add_u32 {sr(S_TOWN)}, {sr(S_TOWN)}, {sr(T)}
        s_add_u32 {sr(S_TSND)}, {sr(S_TSND)}, {sr(T)}
        s_add_u32 {sr(T+1)}, {sr(T+3)}, {sr(T)}
        s_lshl_b32 {sr(T+1)}, {sr(T+1)}, 1
        s_and_b32 {sr(T+2)}, {sr(S_W)}, 1
        s_add_u32 {sr(T+2)}, {sr(T+1)}, {sr(T+2)}
        s_mul_i32 {sr(T+1)}, {sr(T+2)}, {16*288}
        s_mul_i32 {sr(S_LB)}, {sr(S_W)}, {BLK}
        s_add_u32 {sr(S_LB)}, {sr(S_LB)}, {L_XS}
        s_mov_b32 m0, {sr(S_LB)}
        s_mov_b32 {sr(S_X+2)}, 2304000
        s_mov_b32 {sr(S_X+3)}, 0x20000
        s_add_u32 {sr(S_CNT)}, {sr(T+1)}, 4096
        s_waitcnt lgkmcnt(0)
        s_mov_b32 {sr(S_X)}, s56
        s_mov_b32 {sr(S_X+1)}, s57""")
        for k in range(4): a(f"buffer_load_dwordx4 {vr(V_DMA)}, {sr(S_X,4)}, {sr(T+1)} offen offset:{1024*k} lds")
        a(f"s_add_u32 m0, {sr(S_LB)}, 4096\ns_mov_b32 exec_hi, 0\nbuffer_load_dwordx4 {vr(V_DMA)}, {sr(S_X,4)}, {sr(S_CNT)} offen lds\ns_mov_b32 exec_hi, -1")
        mx = len(a.lines)
        SQ, SK, SU = S_W2, S_W1, S_XA
        self.srd(SU, 66, 67, 82944)
        self.srd(SQ, 58, 59, 41472)
        self.srd(SK, 60, 61, 41472)
        a(f"s_lshr_b32 {sr(T)}, s2, 3\ns_lshl_b32 {sr(T)}, {sr(T)}, 12\ns_lshl_b32 {sr(W10)}, {sr(S_W)}, 10\ns_add_u32 {sr(T)}, {sr(T)}, {sr(W10)}")
        a(f"buffer_load_dwordx4 v[252:255], {vr(V_DMA)}, {sr(SU,4)}, {sr(T)} offen")
        for srd_, rot in ((SQ, 82), (SK, 41)):
            a(f"s_add_u32 {sr(T+1)}, {sr(T)}, {(128 - rot) * 1024}\ns_and_b32 {sr(T+1)}, {sr(T+1)}, {127 * 1024}")
            a(f"buffer_load_dwordx4 v[252:255], {vr(V_DMA)}, {sr(srd_,4)}, {sr(T+1)} offen")
        self.srd(S_OUT, 74, 75, 2304000)
        self.srd(S_DB, 76, 77, 256)
        self.srd(S_WS, 78, 79, WS_END)
        def tlb():
            a(f"v_lshlrev_b32 v249, 21, v0")
            for ch in o.get("tlbw", "wdo"): a(f"buffer_load_dword v252, v249, {sr(dict(w=S_WS, d=S_DB, o=S_OUT)[ch],4)}, 0 offen")
        if o.get("tlb", 0) == 1: tlb()
        if o.get("tlb", 0) == 3:
            a(f"""s_bfe_u32 {sr(T)}, s2, 0x30003
            s_lshl_b32 {sr(T)}, {sr(T)}, 21
            v_mov_b32 v249, 0
            s_cmp_lt_u32 {sr(T)}, {5 << 21}
            s_cbranch_scc0 L_tl1
            buffer_load_dword v252, v249, {sr(S_WS,4)}, {sr(T)} offen
            s_branch L_tl3
            L_tl1:
            s_sub_u32 {sr(T)}, {sr(T)}, {5 << 21}
            s_cmp_lt_u32 {sr(T)}, {2 << 21}
            s_cbranch_scc0 L_tl2
            buffer_load_dword v252, v249, {sr(S_OUT,4)}, {sr(T)} offen
            s_branch L_tl3
            L_tl2:
            v_lshlrev_b32 v249, {o.get("dsh", 6)}, v0
            buffer_load_dword v252, v249, {sr(S_DB,4)}, 0 offen {o.get("dfl", "")}
            L_tl3:""")
            self.vm_adj = -2
        if o.get("stamps"): a(f"s_mov_b64 {sr(S_ST,2)}, s[100:101]"); self.stnames.append("start"); self.nst = 1
        self.stamp("xiss")
        a(f"""s_cmp_lt_u32 {sr(T+3)}, {NT}
        s_cselect_b32 {sr(WV)}, 1, 0
        s_mov_b32 {sr(WV+1)}, {sr(T+2)}
        s_mul_i32 {sr(UOFF)}, {sr(S_H)}, 288
        s_cmp_eq_u32 {sr(S_W)}, 0
        s_cselect_b32 {sr(M1)}, 0, {L_DUMP}
        s_cmp_lt_u32 {sr(S_W)}, 3
        s_cselect_b32 {sr(M3)}, {sr(W10)}, {L_DUMP}""")
        half = lambda g_: "s_mov_b32 exec_hi, 0\n" + g_ + "\ns_mov_b32 exec_hi, -1"
        gu = [f"s_add_u32 m0, {sr(W10 if k < 10 else M1)}, {L_WU + 4096*k}\ns_add_u32 {sr(S_CNT)}, {sr(UOFF)}, {4096*k + 288*(256*k//18)}\nbuffer_load_dwordx4 {vr(VU[k])}, {sr(SU,4)}, {sr(S_CNT)} offen lds" for k in range(11)]
        gu[10] = half(gu[10])
        gq = [f"s_add_u32 m0, {sr(W10 if k < 10 else M1)}, {L_WQ + 4096*k}\ns_add_u32 {sr(S_CNT)}, {sr(W10)}, {4096*k}\nbuffer_load_dwordx4 {vr(V_DMA)}, {sr(SQ,4)}, {sr(S_CNT)} offen lds" for k in range(11)]
        gq[10] = half(gq[10])
        gk = [f"s_add_u32 m0, {sr(W10 if k < 10 else M3)}, {L_WK + 4096*k}\ns_mov_b32 {sr(S_CNT)}, {4096*k - 16*(256*k//19)}\nbuffer_load_dwordx4 {vr(VK[k])}, {sr(SK,4)}, {sr(S_CNT)} offen lds" for k in range(11)]
        a(f"s_lshl_b32 {sr(T)}, {sr(S_W)}, 6\nv_add_u32 {vr(t0)}, {sr(T)}, v0\nv_lshlrev_b32 {vr(t1)}, 4, {vr(t0)}")
        self.voff_table(VU, 18, 576, t0)
        npre = o.get("npre", 6)
        a.bg, a.every, a.cnt = gu[:npre], o.get("evpre", 14), 0
        self.voff_table(VK, 19, 288, t0)
        xa0, xa1, xa2 = TM, TM + 1, TM + 2
        a(f"""v_and_b32 {vr(t0)}, 15, v0
        v_lshrrev_b32 {vr(t1)}, 5, v0
        v_lshlrev_b32 {vr(t1)}, 3, {vr(t1)}
        v_xor_b32 {vr(t1)}, {vr(t0)}, {vr(t1)}
        v_lshlrev_b32 {vr(t1)}, 4, {vr(t1)}
        v_lshrrev_b32 {vr(t2)}, 4, v0
        v_lshl_add_u32 {vr(V_KA)}, {vr(t2)}, 9, {vr(t1)}
        v_lshrrev_b32 {vr(t1)}, 3, {vr(t0)}
        v_lshlrev_b32 {vr(t1)}, 1, {vr(t1)}
        v_xor_b32 {vr(t1)}, {vr(t2)}, {vr(t1)}
        v_lshl_add_u32 {vr(t1)}, {vr(t0)}, 2, {vr(t1)}
        v_lshlrev_b32 {vr(V_KA+1)}, 3, {vr(t1)}
        v_lshlrev_b32 {vr(L8)}, 3, v0
        v_lshlrev_b32 {vr(MXR)}, 4, {vr(t0)}
        v_add_u32 {vr(MXR)}, {L_MX}, {vr(MXR)}
        v_add_u32 {vr(MXA)}, {sr(S_W)}, {vr(t2)}
        v_and_b32 {vr(MXA)}, 3, {vr(MXA)}
        v_lshl_add_u32 {vr(MXA)}, {vr(MXA)}, 8, {vr(MXR)}
        s_lshl_b32 {sr(T)}, {sr(S_W)}, 2
        v_add_u32 {vr(MXA)}, {sr(T)}, {vr(MXA)}
        v_mul_u32_u24 {vr(xa2)}, 288, {vr(t0)}
        v_lshl_add_u32 {vr(xa2)}, {vr(t2)}, 3, {vr(xa2)}
        v_add_u32 {vr(xa2)}, {sr(S_LB)}, {vr(xa2)}
        v_and_b32 {vr(t1)}, 1, {vr(t2)}
        v_lshlrev_b32 {vr(t1)}, 5, {vr(t1)}
        v_add_u32 {vr(xa0)}, {vr(xa2)}, {vr(t1)}
        v_xor_b32 {vr(t1)}, 32, {vr(t1)}
        v_add_u32 {vr(xa1)}, {vr(xa2)}, {vr(t1)}
        s_mul_i32 {sr(S_LB)}, {sr(S_W)}, {TILE}
        v_lshrrev_b32 {vr(t0)}, 2, v0
        v_bfe_u32 {vr(t1)}, v0, 1, 1
        v_lshlrev_b32 {vr(t1)}, 3, {vr(t1)}
        v_xor_b32 {vr(t1)}, {vr(t0)}, {vr(t1)}
        v_lshlrev_b32 {vr(t1)}, 4, {vr(t1)}
        v_and_b32 {vr(t2)}, 3, v0
        v_lshl_add_u32 {vr(t1)}, {vr(t2)}, 9, {vr(t1)}
        v_and_b32 {vr(V_VA)}, 1, v0
        v_lshl_add_u32 {vr(t1)}, {vr(V_VA)}, 3, {vr(t1)}
        s_and_b32 {sr(T)}, {sr(S_W)}, 1
        s_lshl_b32 {sr(T)}, {sr(T)}, 12
        s_add_u32 {sr(T+1)}, {sr(T)}, {sr(S_LB)}
        s_xor_b32 {sr(T)}, {sr(T)}, 4096
        s_add_u32 {sr(T)}, {sr(T)}, {sr(S_LB)}
        v_add_u32 {vr(V_VA)}, {sr(T)}, {vr(t1)}
        v_add_u32 {vr(V_VB)}, {sr(T+1)}, {vr(t1)}
        v_xor_b32 {vr(V_VA+1)}, 8, {vr(V_VA)}
        v_xor_b32 {vr(V_VB+1)}, 8, {vr(V_VB)}
        v_lshrrev_b32 {vr(t1)}, 5, v0
        v_lshlrev_b32 {vr(t1)}, 1, {vr(t1)}
        v_xor_b32 {vr(t1)}, {vr(t2)}, {vr(t1)}
        v_lshl_add_u32 {vr(t1)}, {vr(t0)}, 2, {vr(t1)}
        v_lshlrev_b32 {vr(t1)}, 3, {vr(t1)}
        v_add_u32 {vr(V_VR)}, {sr(S_LB)}, {vr(t1)}
        v_add_u32 {vr(V_DMA+1)}, 4096, {vr(V_DMA)}
        v_add_u32 {vr(V_DMA+2)}, 8192, {vr(V_DMA)}""")
        self.tr_addr(TRU, L_WU, True, t0)
        a(f"s_lshl_b32 {sr(T)}, {sr(S_W)}, 6\ns_add_u32 {sr(T)}, {sr(T)}, {L_WQ - L_WU}")
        for k in range(3):
            a(f"v_add_u32 {vr(TRQ+k)}, {sr(T)}, {vr(TRU+k)}\nv_add_u32 {vr(TRQ8+k)}, {L_WQ - L_WU + 256}, {vr(TRU+k)}")
        self.row_addr(RK + 2, L_WK + 8 * 4864, t0)
        a(f"""s_mul_i32 {sr(T)}, {sr(S_W)}, {2*4864}
        s_sub_u32 {sr(T)}, {sr(T)}, {8*4864}
        v_add_u32 {vr(t1)}, {sr(T)}, {vr(RK+2)}
        v_bfe_u32 {vr(t0)}, v0, 2, 1
        v_mul_u32_u24 {vr(t0)}, 4864, {vr(t0)}
        v_add_u32 {vr(RK)}, {vr(t1)}, {vr(t0)}
        v_sub_u32 {vr(RK+1)}, {vr(t1)}, {vr(t0)}""")
        for j in range(4):
            a(f"""s_add_u32 {sr(T)}, {sr(S_W)}, {j}
            s_and_b32 {sr(T)}, {sr(T)}, 3
            s_lshl_b32 {sr(T+1)}, {sr(T)}, 12
            s_add_u32 {sr(T+1)}, {sr(T+1)}, {L_XX}
            v_add_u32 {vr(VS+j)}, {sr(T+1)}, {vr(V_DMA)}
            s_lshl_b32 {sr(T+1)}, {sr(T)}, 9
            s_add_u32 {sr(T+1)}, {sr(T+1)}, {L_XR}
            v_add_u32 {vr(VR4+j)}, {sr(T+1)}, {vr(L8)}
            v_add_u32 {vr(VSW+j)}, {sr(W10)}, {vr(VS+j)}""")
        a(f"""s_sub_u32 {sr(T+2)}, 63, {sr(S_H)}
        s_add_u32 {sr(T+3)}, {sr(S_W)}, 60
        s_cmp_ge_u32 {sr(T+3)}, {sr(T+2)}
        s_cselect_b32 {sr(S_DUM)}, 4, 99
        s_mov_b32 {sr(S_REDO)}, 0
        s_mov_b32 {sr(S_TOFF)}, {sr(S_LB)}
        s_sub_u32 {sr(T)}, {sr(S_TOWN)}, 63
        s_mul_i32 {sr(T+1)}, {sr(S_B)}, {NT}
        s_cmp_ge_i32 {sr(T)}, {sr(T+1)}
        s_cselect_b32 {sr(T)}, 64, 0
        s_lshl_b32 {sr(T+1)}, {sr(S_B)}, 7
        s_add_u32 {sr(PUB)}, {sr(T)}, {sr(T+1)}
        s_cmp_eq_u32 {sr(S_W)}, 2
        s_cselect_b32 {sr(T)}, {sr(S_VAL)}, 0
        s_cmp_eq_u32 {sr(T)}, 1
        s_cselect_b32 {sr(PUB)}, {sr(PUB)}, 0x40000000
        s_add_u32 {sr(T+1)}, {sr(T+1)}, {DB_CB}
        v_mov_b32 {vr(self.VPL)}, {sr(T+1)}""")
        a.flush()
        if o.get("tlb", 0) == 2: tlb()
        self.stamp("pre")
        if o.get("es", 0) == 0: self.epi_setup()
        self.stamp("es")
        nx = self.vm_since(mx) + getattr(self, "vm_adj", 0)
        if o.get("touch", 1):
            a(f"""s_mov_b64 exec, 0
            s_cmp_eq_u32 {sr(S_W)}, 0
            s_cbranch_scc1 L_tr
            s_cmp_eq_u32 {sr(S_W)}, 1
            s_cbranch_scc1 L_t0
            s_cmp_eq_u32 {sr(S_W)}, 2
            s_cbranch_scc1 L_t1
            s_branch L_t2""")
            self.rare()
            a.raw(".p2align 12")
            a.label("L_tr")
            a("s_mov_b64 exec, -1")
        nlate = o.get("nlate", 0)
        for g_ in gu[npre:npre + nlate]: a(g_)
        a(f"s_waitcnt vmcnt({nx + nlate})")
        self.stamp("xarr")
        for s in range(4):
            a(f"ds_read_b64 {vr(XR+4*s,2)}, {vr(xa0)} offset:{64*s}\nds_read_b64 {vr(XR+4*s+2,2)}, {vr(xa1)} offset:{64*s}")
        a(f"ds_read_b64 {vr(XR+16,2)}, {vr(xa2)} offset:256")
        a(f"""s_and_b32 {sr(T)}, {sr(S_W)}, 1
        s_mul_i32 {sr(T+2)}, {sr(S_TOWN)}, {TILE}
        s_cmp_eq_u32 {sr(S_VAL)}, 1
        s_cselect_b32 {sr(T+2)}, {sr(T+2)}, 0x40000000
        s_lshl_b32 {sr(T+3)}, {sr(T)}, 8
        s_add_u32 {sr(T+3)}, {sr(T+3)}, {sr(T+2)}
        s_add_u32 {sr(T+4)}, {sr(T+3)}, 4096
        s_lshl_b32 {sr(T+5)}, {sr(T)}, 9
        s_add_u32 {sr(T+5)}, {sr(T+5)}, {sr(T+2)}
        s_add_u32 {sr(T+5)}, {sr(T+5)}, 8192
        s_waitcnt lgkmcnt(0)""")
        wl = gq + gk
        a.bg, a.every, a.cnt = gu[npre + nlate:] + [wl.pop(0) for _ in range(o.get("nql", 4))], o.get("evln", 10), 0
        self.ln_packed(XR, XF, XA, TM)
        a.flush()
        self.stamp("ln")
        a(f"s_cmp_lt_u32 {sr(S_W)}, 2\ns_cbranch_scc1 L_nop")
        for s in range(4):
            a(f"buffer_store_dwordx4 {vr(XA+4*s,4)}, {vr(V_KA)}, {sr(S_WS,4)}, {sr(T+3+(s>>1))} offen offset:{2048*(s&1)} sc1")
        a(f"buffer_store_dwordx2 {vr(XA+16,2)}, {vr(V_KA+1)}, {sr(S_WS,4)}, {sr(T+5)} offen sc1\ns_waitcnt vmcnt({5 + o.get('nql', 4)})\ns_branch L_bar1")
        a.label("L_nop")
        if o.get("touch", 1):
            a(f"s_mov_b64 exec, 0\ns_cmp_eq_u32 {sr(S_W)}, 0\ns_cbranch_scc1 L_t3\ns_branch L_t4")
            a.label("L_tr2")
            a("s_mov_b64 exec, -1")
        a(f"s_waitcnt vmcnt({o.get('nql', 4)})")
        a.label("L_bar1")
        self.stamp("pub")
        xw = [f"ds_write_b128 {vr(VS)}, {vr(XA+4*s,4)} offset:{1024*s}" for s in range(4)] + [f"ds_write_b64 {vr(VR4)}, {vr(XA+16,2)}"]
        self.stamp("tch")
        PA = 249
        a(f"""v_add_u32 {vr(V_KA)}, {sr(S_LB)}, {vr(V_KA)}
        v_add_u32 {vr(V_KA+1)}, {sr(S_LB)}, {vr(V_KA+1)}
        s_lshl1_add_u32 {sr(T)}, {sr(S_B)}, {sr(S_H)}
        s_lshl_b32 {sr(T)}, {sr(T)}, 6
        s_cmp_eq_u32 {sr(S_W)}, 0
        s_cselect_b32 {sr(T)}, {sr(T)}, 0x40000000
        v_mov_b32 {vr(PA)}, {sr(T)}
        {self.xa_srd()}
        s_waitcnt lgkmcnt(0)""")
        self.stamp("w1")
        a("s_barrier")
        self.stamp("bar1")
        poll = lambda r: f"buffer_load_dword {vr(r)}, {vr(PA)}, {sr(S_DB,4)}, 0 offen sc1"

        def gate(lab, r, word, need, younger):
            a(f"s_mov_b32 {sr(T+2)}, 0\ns_waitcnt vmcnt({younger})")
            a.label(lab)
            a(f"""v_readfirstlane_b32 {sr(T+3)}, {vr(r+word)}
            s_add_u32 {sr(T+2)}, {sr(T+2)}, 1
            s_cmp_ge_u32 {sr(T+3)}, {need}
            s_cbranch_scc1 {lab}_ok
            s_sleep {o.get("slp", 0)}
            {poll(r)}
            s_waitcnt vmcnt(0)
            s_cmp_lt_u32 {sr(T+2)}, 0x40000
            s_cbranch_scc1 {lab}""")
            a.label(lab + "_ok")

        H, G_, UG, MS, CL = 16, 52, 208, 110, 104
        nup = o.get("nup", 12)
        at = {o.get("u0", 6) + o.get("usp", 3) * i: wl.pop(0) for i in range(nup)}
        for i in range(5): at[i] = xw[i]
        if o.get("es", 0) == 1:
            n_ = len(a.lines); self.epi_setup()
            el = [l.strip() for l in a.lines[n_:]]; del a.lines[n_:]
            for k in range(5, 42):
                if k in at: continue
                c_ = 0
                while el and c_ < o.get("esn", 2):
                    x = el.pop(0); at[k] = at.get(k, "") + x + "\n"; c_ += 1 if x.startswith("v_") else 0.5
            self.es_left = el
        self.gemm(self.tr_reads(TRU), XA, H, None, at=at)
        if o.get("es", 0) == 1:
            for x in self.es_left: a(x)
        self.stamp("up")
        last = lambda srd: max(i for i, l in enumerate(a.lines) if l.strip().startswith("buffer_load") and sr(srd, 4) in l) + 1
        assert not any(sr(SQ, 4) in x for x in wl)
        a(f"v_mov_b32 {vr(t0)}, {sr(PUB)}\nv_mov_b32 {vr(t1)}, 1\ns_waitcnt vmcnt({self.vm_since(last(SQ))}) lgkmcnt(0)\ns_barrier")
        a(f"s_mov_b64 exec, 1\nbuffer_atomic_add {vr(t1)}, {vr(t0)}, {sr(S_DB,4)}, 0 offen sc1\ns_mov_b64 exec, -1")
        self.stamp("barG")
        if o.get("atw"):
            a("s_waitcnt vmcnt(0)")
            self.stamp("ack")
        if o.get("census"):
            k_ = S_ST + 2 * self.stnames.index(o["census"][0])
            a(f"s_waitcnt lgkmcnt(0)\nv_mov_b32 v252, {sr(k_)}\ns_lshl_b32 {sr(T)}, s2, 2\ns_add_u32 {sr(T)}, {sr(T)}, {WS_DBG}\nv_mov_b32 v253, 0\nbuffer_store_dword v252, v253, {sr(S_WS,4)}, {sr(T)} offen sc1")

        def a_tr(t):
            ad, off = (TRQ, 32 * t) if t < 2 else (TRQ8, 0)
            return [f"ds_read_b64_tr_b16 {ar(AQ1+18*t+4*s+2*u,2)}, {vr(ad+u)} offset:{9216*s + off}" for s in range(4) for u in range(2)] + \
                   [f"ds_read_b64_tr_b16 {ar(AQ1+18*t+16,2)}, {vr(ad+2)} offset:{36864 + off}"]

        def a_row(t):
            off = 4864 * t if t < 2 else 0
            return [f"ds_read_b64 {ar(A_Q+18*t+4*s+2*u,2)}, {vr(RK+t)} offset:{off + 64*s + 32*u}" for s in range(4) for u in range(2)] + \
                   [f"ds_read_b64 {ar(A_Q+18*t+16,2)}, {vr(RK+t)} offset:{off + 256}"]
        bq = lambda j, d=0: [f"ds_read_b128 {ar(18*j+4*s,4)}, {vr(VS+j)} offset:{d + 1024*s}" for s in range(4)] + [f"ds_read_b64 {ar(18*j+16,2)}, {vr(VR4+j)} offset:{d}"]

        def post(u, scale, d):
            L = [f"v_mul_f32 {vr(ACC+4*u+i)}, {sr(T+4)}, {vr(ACC+4*u+i)}" for i in range(4)] if scale else []
            L += [f"v_cvt_pk_bf16_f32 {vr(PK + (4*(u&3) + 2*(u>>2) if u < 8 else 16) + h)}, {vr(ACC+4*u+2*h)}, {vr(ACC+4*u+2*h+1)}" for h in range(2)]
            if 4 <= u < 8: L.append(f"ds_write_b128 {vr(VSW+u-4)}, {vr(PK+4*(u-4),4)} offset:{d}")
            if u == 8: L.append(f"ds_write_b64 {vr(VR4)}, {vr(PK+16,2)} offset:{d}")
            return L
        xd = [f"ds_read_b128 {vr(XD+4*j,4)}, {vr(VSW+j)}" for j in range(4)]
        self.gemm_u(AQ1, ar, [("v", XA), ("a", 18), ("a", 36), ("a", 54)], ACC, a_tr, lambda j: bq(j) if j else None, lambda u: post(u, False, L_QD),
                    vm_items=wl, other=xd, vmsp=o.get("vmsp", 3))
        self.stamp("g1")
        for i in range(4): a(f"v_mov_b32 {vr(CL+i)}, -1")
        a(f"s_lshl2_add_u32 {sr(T+2)}, s2, {sr(S_W)}\ns_mul_i32 {sr(T+2)}, {sr(T+2)}, 2560\ns_add_u32 {sr(T+2)}, {sr(T+2)}, {WS_IB}")
        a(f"s_mov_b32 {sr(T+4)}, {f32(LOG2E / 12.0)}\ns_waitcnt vmcnt({self.vm_since(last(SK))}) lgkmcnt(0)\ns_barrier")
        clr = [f"buffer_store_dwordx4 {vr(CL,4)}, {vr(V_DMA)}, {sr(S_WS,4)}, {sr(T+2)} offen sc1",
               f"buffer_store_dwordx4 {vr(CL,4)}, {vr(V_DMA)}, {sr(S_WS,4)}, {sr(T+2)} offen offset:1024 sc1",
               f"buffer_store_dwordx2 {vr(CL,2)}, {vr(L8)}, {sr(S_WS,4)}, {sr(T+2)} offen offset:2048 sc1"]
        self.stamp("bar2")
        self.gemm_u(A_Q, ar, [("a", 18 * j) for j in range(4)], ACC, a_row, lambda j: bq(j, L_QD), lambda u: post(u, True, 0), vm_items=[poll(252)] + clr, vm0=o.get("pg", 4), vmsp=o.get("csp", 8))
        self.stamp("g2")
        p = lambda r: vr(r, 2)
        CC = TM
        for j in range(4): a(f"v_dot2_f32_bf16 {vr(CC+j)}, {vr(PK+4*j)}, {vr(XD+4*j)}, 0")
        for i in range(2): a(f"v_dot2_f32_bf16 {vr(CC)}, {vr(PK+16+i)}, {vr(XA+16+i)}, {vr(CC)}")
        for i in range(1, 4):
            for j in range(4): a(f"v_dot2_f32_bf16 {vr(CC+j)}, {vr(PK+4*j+i)}, {vr(XD+4*j+i)}, {vr(CC+j)}")
        QE = TRQ
        a(f"""s_xor_b32 {sr(T+1)}, {sr(self.NB)}, 1
        v_add_u32 {vr(t0)}, {L_XX}, {vr(V_DMA)}
        v_lshl_add_u32 {vr(QE)}, {sr(T+1)}, 12, {vr(t0)}
        v_lshl_add_u32 {vr(QE+1)}, {sr(self.NB)}, 12, {vr(t0)}""")
        self.treduce(CC)
        a(f"""ds_write_b32 {vr(MXA)}, {vr(CC)}
        v_add_u32 {vr(t0)}, {L_XR}, {vr(L8)}
        v_lshl_add_u32 {vr(QE+2)}, {sr(T+1)}, 9, {vr(t0)}
        v_lshl_add_u32 {vr(QE+3)}, {sr(self.NB)}, 9, {vr(t0)}
        v_lshl_add_u32 {vr(QE+4)}, {sr(T+1)}, 8, {vr(MXR)}
        v_lshl_add_u32 {vr(QE+5)}, {sr(self.NB)}, 8, {vr(MXR)}
        s_sub_u32 {sr(T+5)}, 63, {sr(S_H)}
        s_lshr_b32 {sr(T+6)}, s2, 3
        s_lshl_b32 {sr(T+6)}, {sr(T+6)}, 12
        s_add_u32 {sr(T+6)}, {sr(T+6)}, {sr(W10)}
        s_cmp_lg_u32 {sr(S_W)}, 0
        s_cbranch_scc1 L_ga_ok""")
        gate("L_ga", 252, 0, sr(T + 5), 3)
        a("s_waitcnt lgkmcnt(0)\ns_barrier")
        self.stamp("bar3")
        c1 = -2.0 * math.sqrt(2.0 / math.pi) * LOG2E
        c2 = c1 * 0.044715
        qrd = [f"ds_read_b128 {vr(MS+4*qb,4)}, {vr(QE+4+(qb&1))} offset:{512*(qb>>1)}" for qb in range(4)]
        for qb in range(4):
            qrd += [f"ds_read_b128 {ar(A_Q+18*qb+4*s,4)}, {vr(QE+(qb&1))} offset:{8192*(qb>>1) + 1024*s}" for s in range(4)]
            qrd.append(f"ds_read_b64 {ar(A_Q+18*qb+16,2)}, {vr(QE+2+(qb&1))} offset:{1024*(qb>>1)}")
        tg = self.tile_groups(0) + self.tile_groups(1) + self.tile_groups(2)[:8]
        n0 = o.get("n0", 3)
        for k in range(o.get("tpf", 0)):
            a(f"s_add_u32 {sr(T+7)}, {sr(T+6)}, {o.get('tpf0', 4*TILE) + 131072*k}\nbuffer_load_dwordx4 v[252:255], {vr(V_DMA)}, {sr(S_XA,4)}, {sr(T+7)} offen")
        for x in tg[:n0]: a(x)
        a(f"v_mov_b32 {vr(CC)}, {f32(c1)}\nv_mov_b32 {vr(CC+2)}, {f32(c2)}\nv_mov_b32 {vr(CC+4)}, 1.0")
        nq1, nt1 = o.get("nq1", 8), o.get("nt1", 5)
        bgl = []
        for i in range(max(nq1 // 2, nt1)):
            if 2 * i < nq1: bgl.append(qrd[2 * i] + "\n" + qrd[2 * i + 1])
            if i < nt1: bgl.append(tg[n0 + i])
        tg, qrd = tg[n0 + nt1:], qrd[nq1:]
        a.bg, a.every, a.cnt = bgl, 54 // (len(bgl) + 1), 0
        for i in range(18): a(f"v_pk_mul_f32 {p(G_+2*i)}, {p(H+2*i)}, {p(H+2*i)}")
        for i in range(18): a(f"v_pk_fma_f32 {p(G_+2*i)}, {p(G_+2*i)}, {p(CC+2)}, {p(CC)} op_sel_hi:[1,0,0]")
        for i in range(18): a(f"v_pk_mul_f32 {p(G_+2*i)}, {p(G_+2*i)}, {p(H+2*i)}")
        a.flush()
        self.stamp("ge1")
        esp = o.get("esp", 4)
        for i in range(36):
            a(f"v_exp_f32 {vr(G_+i)}, {vr(G_+i)}")
            if i % esp == 1 and tg: a(tg.pop(0))
            if i % 8 == 3 and qrd: a(qrd.pop(0)); a(qrd.pop(0))
        self.stamp("ge2")
        for i in range(18): a(f"v_pk_add_f32 {p(G_+2*i)}, {p(G_+2*i)}, {p(CC+4)} op_sel_hi:[1,0]")
        for i in range(36):
            a(f"v_rcp_f32 {vr(G_+i)}, {vr(G_+i)}")
            if i % esp == 1 and tg: a(tg.pop(0))
            if i % 8 == 3 and qrd: a(qrd.pop(0)); a(qrd.pop(0))
        assert not tg and not qrd
        idx = [i for i, l in enumerate(a.lines) if l.strip().startswith("buffer_load") and l.rstrip().endswith("lds")]
        m_t0, m_t1 = idx[-18] + 1, idx[-9] + 1
        for i in range(18): a(f"v_pk_mul_f32 {p(H+2*i)}, {p(G_+2*i)}, {p(H+2*i)}")
        a(f"""s_mul_i32 {sr(T)}, {sr(WV+1)}, {BLK}
        s_cmp_eq_u32 {sr(S_H)}, 1
        s_cbranch_scc1 L_ln2
        s_add_u32 {sr(T)}, {sr(T)}, {WS_U}""")
        for i in range(18): a(f"v_cvt_pk_bf16_f32 {vr(UG+i)}, {vr(H+2*i)}, {vr(H+2*i+1)}")
        a("s_branch L_ug")
        a.label("L_ln2")
        a(f"s_add_u32 {sr(T)}, {sr(T)}, {WS_G}")
        self.ln_f32(H, UG, TM)
        a.label("L_ug")
        self.stamp("ge3")
        a(f"""s_cmp_eq_u32 {sr(WV)}, 1
        s_cselect_b32 {sr(S_UG)}, {sr(T)}, 0x40000000
        s_waitcnt vmcnt({self.vm_since(m_t0)}) lgkmcnt(0)""")
        for x in self.k_reads(0, V_V): a(x)
        self.ugs = [f"buffer_store_dwordx4 {vr(UG+4*s,4)}, {vr(V_DMA)}, {sr(S_WS,4)}, {sr(S_UG)} offen offset:{1024*s} sc1" for s in range(4)]
        self.ugs.append(f"buffer_store_dwordx2 {vr(UG+16,2)}, {vr(self.VL8)}, {sr(S_WS,4)}, {sr(S_UG)} offen sc1")
        for qb in range(4): a(f"v_pk_add_f32 {p(MS+4*qb)}, {p(MS+4*qb)}, {p(MS+4*qb+2)} neg_lo:[1,1] neg_hi:[1,1]")
        for qb in range(4): a(f"v_add_f32 {vr(self.MK+qb)}, {vr(MS+4*qb)}, {vr(MS+4*qb+1)}")
        a(f"v_lshlrev_b32 {vr(t1)}, 8, v0\nv_lshlrev_b32 v231, 2, v0\nv_add_u32 v231, {L_PC}, v231\nds_write_b32 v231, {vr(t1)}")
        self.loop_init(False)
        self.n_t1 = self.vm_since(m_t1)
        self.stamp("ug")

    def loop_init(self, part):
        a = self.a
        if part:
            for qb in range(4):
                for i in range(4): a(f"v_mov_b32 {vr(V_CI+4*qb+i)}, {vr(self.MK+qb)}")
            return
        for k in range(7): a(f"v_add_u32 {vr(V_HI+k)}, {2*SLOT}, {vr(V_KA+k if k < 5 else V_VB+k-5)}")
        a(f"v_add_u32 {vr(self.VS0)}, {sr(S_LB)}, {vr(V_DMA)}\nv_add_u32 {vr(self.VS0R)}, {sr(S_LB)}, {vr(self.VL8)}\ns_mov_b32 {sr(S_CNT)}, 0\ns_mov_b32 {sr(S_INC)}, {4*TILE}")
        for i in range(4): a(f"v_mov_b32 {vr(V_L+i)}, 0")
        a(f"v_mov_b32 {vr(self.VPL+1)}, 1\nv_lshlrev_b32 v231, 2, v0\nv_add_u32 v231, {L_PC}, v231")

    def head(self):
        a, o = self.a, self.o
        a.label("L_go")
        self.loop_init(True)
        a("s_waitcnt lgkmcnt(0)\ns_barrier")
        self.stamp("bar5")
        base = self.qk_mfmas(0)
        pick = lambda s_, kb, qb: base[8 * s_ + 4 * kb + qb].replace(vr(V_K + 8 * s_ + 4 * kb, 4) + ",", vr(V_V + 8 * s_ + 4 * kb, 4) + ",").replace(vr(V_K + 32 + 2 * kb, 2) + ",", vr(V_V + 32 + 2 * kb, 2) + ",")
        mf, fin = [], {}
        for qb, s_ in [(0, 0), (0, 1), (0, 2), (0, 3), (1, 0), (1, 1), (0, 4), (1, 2), (1, 3), (2, 0), (2, 1), (1, 4), (2, 2), (2, 3), (3, 0), (3, 1), (2, 4),
                       (3, 2), (3, 3), (3, 4)]:
            for kb in range(2):
                fin[qb, kb] = len(mf)
                mf.append(("s_nop 3\n" if (qb, s_, kb) == (3, 4, 0) else "") + pick(s_, kb, qb))
        enew = [e[1] for g in range(40, 76) for e in self.gaps[g] if e[0] == "E"]
        items = self.e_items(0, enew, lambda qb, j: 0, lambda qb: 999)
        for it, e in zip(items, enew):
            if e[0] == "e": it["am"] = fin[e[1], e[2] // 4]
        dm = []
        for k, (slot, j) in enumerate([(2, 8)] + [(3, j) for j in range(9)]):
            g_ = 1 + o.get("hsp", 4) * k
            if j % 4 == 0: dm.append(dict(t=f"s_add_u32 m0, {sr(S_LB)}, {slot*SLOT + 4096*(j//4)}", c=0, lo=g_ - 1, hi=g_ - 1))
            dm.append(dict(t=f"buffer_load_dwordx4 {vr(V_DMA + j//4)}, {sr(S_XA,4)}, {sr(S_TOFF)} offen offset:{1024*(j%4)} lds", c=8, lo=g_, hi=g_))
            if j == 8: dm.append(dict(t=f"s_add_u32 {sr(S_TOFF)}, {sr(S_TOFF)}, {4*TILE}", c=0, lo=g_ + 1, hi=g_ + 1))
        nh = o.get("ugh", 2)
        for k in range(nh): dm.append(dict(t=self.ugs[k], c=8, lo=3 + 16 * k, hi=3 + 16 * k))
        a(f"s_waitcnt vmcnt({self.n_t1})")
        left = self.pack(mf, items + dm + [dict(t=x, c=4, lo=i // 2, nds=2) for i, x in enumerate(self.k_reads(1))])
        print("head overflow", self.over, "left", len(left))
        left.sort(key=lambda x: not x.startswith("v_exp"))
        last = a.lines[-1].strip()
        for x in left:
            if last.startswith("v_exp") and not x.startswith("v_exp") and (last.split()[1].rstrip(",") + ",") in (x + ","): a("s_nop 0")
            a(x); last = x
        a("s_waitcnt lgkmcnt(0)")

    def tile_groups(self, slot):
        out = []
        for j in range(9):
            g = ""
            if j % 4 == 0: g = f"s_add_u32 m0, {sr(S_LB)}, {slot*SLOT + 4096*(j//4)}\ns_nop 0\n"
            g += f"buffer_load_dwordx4 {vr(V_DMA + j//4)}, {sr(S_XA,4)}, {sr(S_TOFF)} offen offset:{1024*(j%4)} lds"
            if j == 8: g += f"\ns_add_u32 {sr(S_TOFF)}, {sr(S_TOFF)}, {4*TILE}"
            out.append(g)
        return out

    def first_tiles(self):
        pass

    def wfuse(self):
        a = self.a
        BF, ACC, AF, TM, AD = 88, 108, 144, 208, 240
        LA, LB_, LM = 0, 44032, 88064
        T = S_T
        a.label("L_wfuse")
        if self.o.get("hlast", 1): a(f"s_cmp_ge_u32 s2, {NWG}\ns_cbranch_scc1 L_end\ns_sub_u32 s2, s2, {NWG - NH}")
        a(f"v_lshrrev_b32 v1, 6, v0\nv_and_b32 v0, 63, v0\nv_readfirstlane_b32 {sr(S_W)}, v1\nv_lshlrev_b32 {vr(V_DMA)}, 4, v0\ns_waitcnt lgkmcnt(0)")
        self.srd(S_DB, 76, 77, 256)
        self.srd(S_WS, 78, 79, WS_END)
        self.wf0 = 0
        self.srd(S_X, 72, 73, 82944)
        self.srd(S_W2, 62, 63, 41472)
        a(f"""s_cmp_eq_u32 s2, {self.wf0}
        s_cselect_b32 {sr(S_W1)}, s64, s70
        s_cselect_b32 {sr(S_W1+1)}, s65, s71
        s_mov_b32 {sr(S_W1+2)}, 41472
        s_mov_b32 {sr(S_W1+3)}, 0x20000
        s_cselect_b32 {sr(T+4)}, 0, 41472""")
        self.dma_rows([(S_W1, "0", LA), (S_W2, "0", LB_)], 19, 288, TM + 4, TM + 5, 11, 3, "L_wf1")
        a(f"s_lshl_b32 {sr(T)}, {sr(S_W)}, 10\ns_add_u32 {sr(T+2)}, {sr(T)}, {sr(T+4)}")
        for k in range(11):
            if k == 10: a(f"s_cmp_ge_u32 {sr(S_W)}, 1\ns_cbranch_scc1 L_wf2")
            a(f"s_add_u32 m0, {sr(T)}, {LM + 4096*k}\ns_add_u32 {sr(T+1)}, {sr(T+2)}, {4096*k}")
            a(f"buffer_load_dwordx4 {vr(V_DMA)}, {sr(S_X,4)}, {sr(T+1)} offen lds")
        a.label("L_wf2")
        self.srd(S_DW, 68, 69, 864)
        a(f"""v_and_b32 {vr(TM)}, 15, v0
        v_lshlrev_b32 {vr(TM+2)}, 4, {vr(TM)}
        v_lshlrev_b32 {vr(TM)}, 1, {vr(TM)}
        v_bfe_u32 {vr(TM+3)}, v0, 4, 1
        v_lshl_add_u32 {vr(TM+1)}, {vr(TM+3)}, 7, {vr(TM)}
        v_lshl_add_u32 {vr(TM+2)}, {vr(TM+3)}, 11, {vr(TM+2)}
        v_and_b32 {vr(TM+3)}, 1, v0
        v_lshlrev_b32 {vr(TM+3)}, 4, {vr(TM+3)}
        v_bfe_i32 {vr(TM+4)}, v0, 1, 1
        v_not_b32 {vr(TM+5)}, {vr(TM+4)}""")
        for k in range(3):
            for i in range(5): a(f"buffer_load_ushort {vr(16+5*k+i)}, {vr(TM+1 if i < 4 else TM)}, {sr(S_DW,4)}, 0 offen offset:{288*k + (32*i if i < 4 else 256)}")
        a(f"s_mov_b32 {sr(T+1)}, {WS_DWF}\ns_waitcnt vmcnt(0)")
        for f in range(15):
            a(f"v_lshlrev_b32 {vr(16+f)}, {vr(TM+3)}, {vr(16+f)}\nv_and_b32 {vr(32+2*f)}, {vr(TM+5)}, {vr(16+f)}\nv_and_b32 {vr(33+2*f)}, {vr(TM+4)}, {vr(16+f)}")
        for r_ in range(8): a(f"buffer_store_dwordx{4 if r_ < 7 else 2} {vr(32+4*r_, 4 if r_ < 7 else 2)}, {vr(TM+2)}, {sr(S_WS,4)}, {sr(T+1)} offen offset:{256*r_} sc1")
        self.tr_addr(AD, LM, False, TM + 8)
        self.row_addr(AD + 3, LA, TM + 8)
        a(f"v_add_u32 {vr(AD+5)}, {LB_}, {vr(AD+3)}")
        a(f"v_lshlrev_b32 {vr(AD+4)}, 3, v0")
        a(f"""s_lshr_b32 {sr(T)}, {sr(S_W)}, 1
        s_lshl_b32 {sr(T)}, {sr(T)}, 6
        s_and_b32 {sr(T+1)}, {sr(S_W)}, 1
        s_lshl_b32 {sr(T+1)}, {sr(T+1)}, 3
        s_add_u32 {sr(T)}, {sr(T)}, {sr(T+1)}
        v_and_b32 {vr(AD+6)}, 3, v0
        v_lshlrev_b32 {vr(AD+6)}, 3, {vr(AD+6)}
        v_add_u32 {vr(AD+7)}, {sr(T)}, {vr(AD+6)}""")
        for k in range(3): a(f"v_add_u32 {vr(AD+k)}, {vr(AD+7)}, {vr(AD+k)}")
        a(f"s_mov_b32 {sr(S_CNT)}, {sr(S_W)}")
        a("s_waitcnt vmcnt(0)\ns_barrier")
        a.label("L_wfl")
        for s in self.tr_reads(AD, vr)(0, BF): a(s)
        a("s_waitcnt lgkmcnt(0)")
        self.gemm(self.row_reads(AD + 3), BF, ACC, AF)
        for i in range(18): a(f"v_cvt_pk_bf16_f32 {vr(BF+i)}, {vr(ACC+2*i)}, {vr(ACC+2*i+1)}")
        a(f"s_cmp_eq_u32 s2, {self.wf0}\ns_cbranch_scc0 L_wf3")
        self.gemm(self.row_reads(AD + 5), BF, ACC, AF)
        for i in range(18): a(f"v_cvt_pk_bf16_f32 {vr(BF+i)}, {vr(ACC+2*i)}, {vr(ACC+2*i+1)}")
        a.label("L_wf3")
        a(f"""s_mul_i32 {sr(T)}, {sr(S_CNT)}, {BLK}
        s_add_u32 {sr(T)}, {sr(T)}, {sr(T+4)}
        s_add_u32 {sr(T)}, {sr(T)}, {WS_WF}
        s_add_u32 {sr(T+1)}, {sr(T)}, 4096""")
        self.store_block(BF, V_DMA, AD + 4, S_WS, T, T + 1, "sc1")
        for k in range(3): a(f"v_add_u32 {vr(AD+k)}, 128, {vr(AD+k)}")
        a(f"s_add_u32 {sr(S_CNT)}, {sr(S_CNT)}, 4\ns_cmp_lt_u32 {sr(S_CNT)}, 8\ns_cbranch_scc1 L_wfl")
        for k in range(3): a(f"v_sub_u32 {vr(AD+k)}, {vr(AD+k)}, {vr(AD+6)}")
        a(f"s_cmp_eq_u32 {sr(S_CNT)}, 8\ns_cbranch_scc1 L_wfl")
        a(f"""s_waitcnt vmcnt(0)
        s_barrier
        s_cmp_lg_u32 {sr(S_W)}, 0
        s_cbranch_scc1 L_end
        s_mov_b64 exec, 1
        v_mov_b32 {vr(TM)}, 1
        v_mov_b32 {vr(TM+1)}, {DB_CW}
        buffer_atomic_add {vr(TM)}, {vr(TM+1)}, {sr(S_DB,4)}, 0 offen sc1
        v_mov_b32 {vr(TM+1)}, {DB_CW + 128}
        buffer_atomic_add {vr(TM)}, {vr(TM+1)}, {sr(S_DB,4)}, 0 offen sc1
        s_endpgm""")

    def dump_stamps(self):
        a = self.a
        if self.o.get("census"):
            key, mode, m_, v_ = self.o["census"]
            a(f"""s_cmp_lg_u32 s2, 100
            s_cbranch_scc1 L_end
            v_lshlrev_b32 v16, 2, v0
            s_mov_b32 s4, {WS_DBG}""")
            for k in range(4): a(f"buffer_load_dword v{20+k}, v16, {sr(S_WS,4)}, s4 offen offset:{256*k} sc1")
            a(f"s_waitcnt vmcnt(0)\nv_readlane_b32 s8, v21, 36\ns_mov_b32 s9, 0x80000000\ns_mov_b32 s10, 0x7fffffff\ns_mov_b32 s11, 0\ns_mov_b32 s17, 0")
            for k in range(4):
                a(f"s_mov_b32 s5, 0")
                a.label(f"L_cs{k}")
                a(f"""v_readlane_b32 s6, v{20+k}, s5
                s_add_u32 s7, s5, {64*k}
                s_sub_u32 s6, s6, s8
                s_and_b32 s16, s7, {m_}
                s_cmp_lg_u32 s16, {v_}
                s_cbranch_scc1 L_cn{k}
                s_min_i32 s10, s10, s6
                s_cmp_gt_i32 s6, {self.o.get("thr", 150)}
                s_addc_u32 s17, s17, 0
                s_cmp_gt_i32 s6, s9
                s_cselect_b32 s9, s6, s9
                s_cselect_b32 s11, s7, s11""")
                a.label(f"L_cn{k}")
                a(f"s_add_u32 s5, s5, 1\ns_cmp_lt_u32 s5, {64 if k < 3 else 60}\ns_cbranch_scc1 L_cs{k}")
            a({"arg": "s_lshl_b32 s6, s11, 3", "range": "s_sub_u32 s6, s9, s10\ns_lshl_b32 s6, s6, 1", "zero": "s_mov_b32 s6, 0", "cnt": "s_lshl_b32 s6, s17, 4",
               "max": "s_lshl_b32 s6, s9, 1"}[mode])
            a("s_add_u32 s6, s6, 1000\ns_memrealtime s[4:5]\ns_waitcnt lgkmcnt(0)\ns_add_u32 s6, s6, s4")
            a.label("L_echo")
            a("s_memrealtime s[4:5]\ns_waitcnt lgkmcnt(0)\ns_sub_u32 s7, s6, s4\ns_cmp_gt_i32 s7, 0\ns_cbranch_scc1 L_echo")
            return
        if self.o.get("echo"):
            if self.o["echo"][0] == "skew":
                a(f"v_mov_b32 v16, 4\nbuffer_load_dword v17, v16, {sr(S_DB,4)}, 0 offen sc1\ns_waitcnt vmcnt(0)\nv_readfirstlane_b32 s98, v17\ns_not_b32 s98, s98")
                x, y = 98, S_ST + 2 * self.stnames.index(self.o["echo"][1])
            else:
                x, y = [S_ST + 2 * self.stnames.index(n) for n in self.o["echo"]]
            lo, hi = self.o.get("echo_ids", (0, 999))
            a(f"""s_cmp_eq_u32 {sr(S_VAL)}, 0
            s_cbranch_scc1 L_end
            s_cmp_lt_u32 s2, {lo}
            s_cbranch_scc1 L_end
            s_cmp_ge_u32 s2, {hi}
            s_cbranch_scc1 L_end
            s_and_b32 s6, s2, {self.o.get("echo_m", 0)}
            s_cmp_lg_u32 s6, {self.o.get("echo_v", 0)}
            s_cbranch_scc1 L_end
            s_memrealtime s[4:5]
            s_waitcnt lgkmcnt(0)
            s_sub_u32 s6, {sr(y)}, {sr(x)}
            s_mul_i32 s6, s6, {self.o.get("echo_mul", 1)}
            s_lshr_b32 s6, s6, {self.o.get("echo_shr", 0)}
            s_add_u32 s6, s6, {self.o.get("echo_add", 0)}
            s_add_u32 s6, s6, s4""")
            a.label("L_echo")
            a("s_memrealtime s[4:5]\ns_waitcnt lgkmcnt(0)\ns_sub_u32 s7, s6, s4\ns_cmp_gt_i32 s7, 0\ns_cbranch_scc1 L_echo")
            return
        if self.o.get("dbgst"):
            a("s_waitcnt vmcnt(0)")
            self.stamp("done")
            a("s_waitcnt lgkmcnt(0)\ns_mov_b64 exec, 1")
            slots = [1, 2, 3, 4, 5, 6, 7, 9, 11, 12, 13, 14, 15]
            a(f"s_not_b32 {sr(S_T)}, {sr(S_ST)}\nv_mov_b32 v16, {sr(S_T)}\nv_mov_b32 v17, 4\nbuffer_atomic_umax v16, v17, {sr(S_DB,4)}, 0 offen sc1")
            for i in range(min(self.nst, 12)):
                a(f"v_mov_b32 v{18+2*i}, {sr(S_ST+2*i)}\nv_mov_b32 v{19+2*i}, {4*slots[i+1]}\nbuffer_atomic_umax v{18+2*i}, v{19+2*i}, {sr(S_DB,4)}, 0 offen sc1")
            return
        if not self.o.get("stamps"): return
        T = S_T
        a(f"""s_waitcnt lgkmcnt(0)
        s_lshl_b32 {sr(T)}, s2, 2
        s_add_u32 {sr(T)}, {sr(T)}, {sr(S_W)}
        s_lshl_b32 {sr(T)}, {sr(T)}, 7
        s_add_u32 {sr(T)}, {sr(T)}, {WS_DBG}
        v_mov_b32 v1, 0""")
        for i in range(26): a(f"v_mov_b32 {vr(16+i)}, {sr(S_ST+i)}")
        for i in range(7): a(f"buffer_store_dwordx4 {vr(16+4*i,4)}, v1, {sr(S_WS,4)}, {sr(T)} offen offset:{16*i}")

    def build(self):
        a = self.a
        self.stnames = []
        a.raw(f"; @launch grid=({NWG},1,1) block=(256,1,1) lds={LDS_TOTAL}")
        a.raw('.amdgcn_target "amdgcn-amd-amdhsa--gfx950"')
        a.raw(".text")
        a.raw(f".globl {NAME}")
        a.raw(".p2align 12")
        self.entry()
        self.phase_a()
        self.rest()
        a.label("L_fin")
        self.dump_stamps()
        a.label("L_end")
        a("s_endpgm")
        self.poll2()
        if not self.o.get("touch", 1): self.rare()
        a.label("L_dummy")
        self.fallback()
        self.wfuse()
        a.raw('.section .rodata,"a"')
        a.raw(".p2align 6")
        a.raw(kernel_desc(NAME, 512, 102, 256))
        return a.text()

    def S(self, buf, qb, i=0): return V_S + buf * 32 + qb * 8 + i
    def P(self, buf, qb, i=0): return V_P + buf * 16 + qb * 4 + i

    def k_reads(self, slot, V_K=V_K):
        ka, so = (V_KA, slot * SLOT) if slot < 2 else (V_HI, (slot - 2) * SLOT)
        out = [f"ds_read_b128 {vr(V_K+8*s+4*kb,4)}, {vr(ka)} offset:{so + 2048*s + 256*kb}" for s in range(4) for kb in range(2)]
        out += [f"ds_read_b64 {vr(V_K+32+2*kb,2)}, {vr(ka+1)} offset:{so + 8192 + 512*kb}" for kb in range(2)]
        return out

    def v_reads(self, slot, dst=V_V):
        (va, vr_, vb), so = ((V_VA, V_VR, V_VB), slot * SLOT) if slot < 2 else ((V_HI + 2, V_HI + 4, V_HI + 5), (slot - 2) * SLOT)
        out = []
        for T in range(9):
            for u in range(2):
                if T < 8: out.append(f"ds_read_b64_tr_b16 {vr(dst+4*T+2*u,2)}, {vr((va if T < 4 else vb)+(T&1))} offset:{so + 2048*((T>>1)&1) + 256*u}")
                else: out.append(f"ds_read_b64_tr_b16 {vr(dst+4*T+2*u,2)}, {vr(vr_)} offset:{so + 8192 + 512*u}")
        return out

    def qk_mfmas(self, buf, czero=False):
        out = []
        for s in range(5):
            for kb in range(2):
                for qb in range(4):
                    d = vr(self.S(buf, qb, 4 * kb), 4)
                    c = ("0" if czero else vr(V_CI + 4 * qb, 4)) if s == 0 else d
                    if s < 4: out.append(f"v_mfma_f32_16x16x32_bf16 {d}, {vr(V_K+8*s+4*kb,4)}, {ar(A_Q+18*qb+4*s,4)}, {c}")
                    else: out.append(f"v_mfma_f32_16x16x16_bf16 {d}, {vr(V_K+32+2*kb,2)}, {ar(A_Q+18*qb+16,2)}, {c}")
        return out

    def pv_mfmas(self, buf, czero=False):
        out = []
        for T in range(9):
            for qb in range(4):
                o = ar(A_O + 36 * qb + 4 * T, 4)
                out.append(f"v_mfma_f32_16x16x32_bf16 {o}, {vr(V_V+4*T,4)}, {vr(self.P(buf,qb),4)}, {'0' if czero else o}")
        return out

    def plan(self):
        o = self.o
        n = 76
        fixed = [None] * n
        for i, g in enumerate(range(1, 36, 2)): fixed[g] = ("V", i)
        for i, g in enumerate([41, 44, 47, 50, 53, 56, 59, 62, 65, 68]): fixed[g] = ("K", i)
        for i, g in enumerate([42, 46, 49, 52, 55, 58, 61, 64, 67]): fixed[g] = ("D", i)
        exps = [(qb, j) for qb in range(4) for j in range(8)]
        start = 40
        order = [(start + k) % n for k in range(n)]
        free_idx = [k for k, g in enumerate(order) if fixed[g] is None]
        nsm = len(free_idx) - 32
        cand = free_idx[6:-2]
        sm_set = set(free_idx[-2:]) | {cand[int((i + 0.5) * len(cand) / (nsm - 2))] for i in range(nsm - 2)}
        nds = sum(1 for f in fixed if f is not None and f[0] != "D")
        over = 48 - nds - 2 * nsm
        ocand = [k for k, g in enumerate(order) if k >= 20 and (fixed[g] is None or fixed[g][0] != "D")]
        o_set = {ocand[int((i + 0.5) * len(ocand) / over)] for i in range(over)}
        gaps = [[] for _ in range(n)]
        small, pend, ei = [], [], 0
        for k, g in enumerate(order):
            new = (start + k) < n
            small.extend(pend); pend = []
            small.sort(key=lambda t: 0 if t[0] == "c" else 1)
            f = fixed[g]
            want = 0
            if f is not None:
                gaps[g].append((f[0], f[1], None))
                if f[0] == "D": continue
                want = 1
            elif k in sm_set: want = 2
            else:
                qb, j = exps[ei]; ei += 1
                gaps[g].append(("E", ("e", qb, j), new))
                if j & 1: pend.append(("c", qb, j // 2))
                pend.append(("a", qb, j))
            if k in o_set: want += 1
            if k == n - 1: want = 99
            for _ in range(want):
                if small: gaps[g].append(("E", small.pop(0), new))
        assert not small and not pend and ei == 32
        self.gaps = gaps

    def pack(self, mf, items):
        a = self.a
        where, order, done, nvm, mpos = {}, [], 0, 0, []
        isds = lambda it: "ds_" in it["t"]
        self.over = 0
        for g, m in enumerate(mf):
            assert not any(it.get("need", 999) <= g and i not in where for i, it in enumerate(items)), g
            idx = [k for k, n_ in enumerate(order) if n_ <= g]
            if idx and max(idx) + 1 > done:
                a(f"s_waitcnt lgkmcnt({min(15, len(order) - 1 - max(idx))})"); done = max(idx) + 1
            if m.startswith("@W"):
                w_, m = m.split("\n", 1)
                a(f"s_waitcnt lgkmcnt({min(15, int(w_[2:]) + len(order))})")
            a(m)
            mpos.append(len(a.lines))
            cap, pick = 8, []
            for phase in (0, 1):
                for i, it in enumerate(items):
                    if i in where or it.get("lo", 0) > g: continue
                    if "am" in it and (it["am"] >= g or len(a.lines) - mpos[it["am"]] < 8): continue
                    d = it.get("dep")
                    if d is not None and not all(where.get(x, 999) < g for x in d): continue
                    if (phase == 0 and it.get("hi", 999) <= g) or (phase == 1 and it["c"] <= cap):
                        if it["t"].startswith("buffer") and pick and any(items[x]["c"] for x in pick) and phase == 1: continue
                        if isds(it) and sum(isds(items[x]) for x in pick) >= it.get("nds", 1) and phase == 1: continue
                        pick.append(i); where[i] = g; cap -= it["c"]
            key = lambda i: 0 if items[i]["c"] == 0 else 1 if isds(items[i]) else 2 if items[i]["t"].startswith("buffer") else 3
            for i in sorted(pick, key=key):
                a(items[i]["t"].replace("@VM", f"s_waitcnt vmcnt({nvm})"))
                nvm += items[i]["t"].startswith("buffer")
                if isds(items[i]): order.append(items[i].get("need", 999))
            self.over += max(0, -cap)
        return [it["t"] for i, it in enumerate(items) if i not in where]

    def e_items(self, buf, lst, lo, hi):
        items, idx = [], {}
        for it in lst:
            kind, qb, j = it
            d = dict(t=self.etext(buf, it), c=8 if kind == "e" else 4)
            if kind == "e": d["lo"] = lo(qb, j); d["hi"] = hi(qb) - 2 - (7 - j)
            else:
                need = [("e", qb, j)] if kind == "a" else [("e", qb, 2 * j), ("e", qb, 2 * j + 1)]
                d["dep"] = [idx[x] for x in need if x in idx]
                if kind == "c": d["hi"] = hi(qb) - (3 - j) // 2
            idx[it] = len(items); items.append(d)
        return items

    def etext(self, buf, it):
        kind, qb, j = it
        s = self.S(buf, qb)
        if kind == "e": return f"v_exp_f32 {vr(s+j)}, {vr(s+j)}"
        if kind == "a": return f"v_add_f32 {vr(V_L+qb)}, {vr(V_L+qb)}, {vr(s+j)}"
        return f"v_cvt_pk_bf16_f32 {vr(self.P(buf, qb, j))}, {vr(s+2*j)}, {vr(s+2*j+1)}"

    def period(self, p, qk=True, pv=True, e_old=True, e_new=True, kread=True, vread=True, dma=True, extra={}, dsub=None, ksub=None, vm=9, halves=(0, 1), inc=None):
        a = self.a
        bn, bo = (p + 1) & 1, p & 1
        mf = self.qk_mfmas(bn) + self.pv_mfmas(bo, czero=(p == 0))
        kr, vrd = self.k_reads((p + 2) % RING), self.v_reads(p % RING)
        slot = p % RING
        n = 76
        sc = [[] for _ in range(n)]
        dgs = [g for g in range(n) if any(e[0] == "D" for e in self.gaps[g])]
        if dma:
            for j, g in enumerate(dgs):
                if j % 4 == 0: sc[g - 1].append(f"s_add_u32 m0, {sr(S_LB)}, {slot*SLOT + 4096*(j//4)}")
            sc[dgs[-1] + 1].append(f"s_add_u32 {sr(S_TOFF)}, {sr(S_TOFF)}, {inc or 4*TILE}")
        w = []
        if kread: w.append(f"vmcnt({vm})")
        if pv: w.append("lgkmcnt(0)")
        if w: sc[39].append("s_waitcnt " + " ".join(w))
        if kread: sc[75].append("s_waitcnt lgkmcnt(0)")
        for half in halves:
            rng = range(0, 40) if half == 0 else range(40, 76)
            on = qk if half == 0 else pv
            if not on:
                ds, mem, val, post = [], [], [], []
                for g in rng:
                    for s_ in sc[g]:
                        (post if s_.startswith("s_waitcnt") else mem).append(s_)
                    if g in extra: mem.append(extra[g])
                    for kind, d, new in self.gaps[g]:
                        if kind == "V" and vread: ds.append(vrd[d])
                        elif kind == "K" and kread: ds.append(kr[d])
                        elif kind == "D" and dma: mem.append(f"buffer_load_dwordx4 {vr(V_DMA + d//4)}, {sr(S_XA,4)}, {sr(S_TOFF)} offen offset:{1024*(d%4)} lds")
                        elif kind == "E" and ((new and e_new) or (not new and e_old)): val.append((d, self.etext(bn if new else bo, d)))
                if half == 1: a("s_nop 3")
                seq, pend = [], list(val)
                while pend:
                    k = 0
                    if seq and seq[-1][0][0] == "e":
                        le = seq[-1][0]
                        dep = lambda it: it[0][1] == le[1] and ((it[0][0] == "a" and it[0][2] == le[2]) or (it[0][0] == "c" and it[0][2] == le[2] // 2))
                        have = {x[0] for x in seq}
                        ok = lambda it: it[0][0] == "e" or (("e", it[0][1], it[0][2]) in have if it[0][0] == "a" else (("e", it[0][1], 2*it[0][2]+1) in have)) or not any(x[0][0] == "e" and x[0][1] == it[0][1] and (x[0][2] == it[0][2] if it[0][0] == "a" else x[0][2] // 2 == it[0][2]) for x in pend)
                        while k < len(pend) and (dep(pend[k]) or not ok(pend[k])): k += 1
                        if k == len(pend): seq.append((("n", 0, 0), "s_nop 0")); k = 0
                    seq.append(pend.pop(k))
                step = max(1, len(seq) // (len(mem) + len(ds) + 1))
                allm = ds + mem
                for x in allm[:6]: a(x)
                allm = allm[6:]
                for i_, (d, t_) in enumerate(seq):
                    a(t_)
                    if allm and i_ % step == step - 1:
                        x = allm.pop(0); a(x)
                        if x.startswith("s_add_u32 m0"): a("s_nop 0")
                for x in allm:
                    a(x)
                    if x.startswith("s_add_u32 m0"): a("s_nop 0")
                for x in post: a(x)
                if half == 0: a("s_nop 1")
                continue
            for g in rng:
                a(mf[g])
                for s_ in sc[g]: a(s_)
                if g in extra: a(extra[g])
                for kind, d, new in self.gaps[g]:
                    if kind == "V":
                        if vread: a(vrd[d])
                    elif kind == "K":
                        if kread: a(kr[d])
                        elif ksub: a(ksub.pop(0))
                    elif kind == "D":
                        if dma: a(f"buffer_load_dwordx4 {vr(V_DMA + d//4)}, {sr(S_XA,4)}, {sr(S_TOFF)} offen offset:{1024*(d%4)} lds")
                        elif dsub: a(dsub.pop(0))
                    elif (new and e_new) or (not new and e_old):
                        a(self.etext(bn if new else bo, d))

    MK, VO, VO8, GA, VS0, VS0R, VDW, VLW, VL8, VST, VPL = 232, 236, 9, 238, 250, 251, 244, 245, 246, 247, 248
    NB, PT, E_U, E_G, RS3, E_COL, RS1, RS2, MP1 = 3, 4, 5, 6, 7, 43, 36, 37, 38
    G0, GM, GP, U, DWT = 16, 26, 36, 80, (90, 252, 96, 100, 112, 116, 104, 94)
    XRS = (192, 196, 46)
    frag = staticmethod(lambda f, b: [(f, b + 4 * s) for s in range(5)])
    WD = [[("a", 216 + 4 * s) for s in range(5)], [("a", 234 + 4 * s) for s in range(5)], [("v", 208 + 4 * s) for s in range(5)]]
    WO = [[("a", 4 * s) for s in range(5)], [("a", 18 + 4 * s) for s in range(5)], [("a", 36), ("a", 40), ("a", 44), ("a", 48), ("a", 252)]]
    X1B = 98304
    X2O = L_SP - X1B
    L_L = L_SP + 9216

    def epi_setup(self):
        a = self.a
        T = S_T
        NB, PT, VO, GA = self.NB, self.PT, self.VO, self.GA
        r, g4, x, y, big, r0 = 52, 53, 54, 55, 56, 57
        a(f"""s_lshr_b32 {sr(NB)}, {sr(S_W)}, 1
        s_and_b32 {sr(PT)}, {sr(S_W)}, 1
        v_and_b32 {vr(r0)}, 15, v0
        v_lshrrev_b32 {vr(g4)}, 4, v0
        v_mul_u32_u24 {vr(x)}, 288, {vr(r0)}
        v_mov_b32 {vr(big)}, 0x40000000
        s_lshl_b32 {sr(T)}, {sr(S_TOWN)}, 1
        s_add_u32 {sr(T)}, {sr(T)}, {sr(NB)}
        s_lshl_b32 {sr(T)}, {sr(T)}, 4
        v_add_u32 {vr(r)}, {sr(T)}, {vr(r0)}
        s_mul_i32 {sr(T+1)}, {sr(S_TOWN)}, {TILE}
        s_mul_i32 {sr(T+2)}, {sr(PT)}, {BLK}
        v_add_u32 {vr(x)}, {sr(T+1)}, {vr(x)}
        s_sub_u32 {sr(T+3)}, {BLK}, {sr(T+2)}
        v_add_u32 {vr(y)}, {sr(T+3)}, {vr(x)}
        v_add_u32 {vr(x)}, {sr(T+2)}, {vr(x)}
        v_lshl_add_u32 {vr(VO)}, {vr(g4)}, 4, {vr(x)}
        v_lshl_add_u32 {vr(VO+1)}, {vr(g4)}, 4, {vr(y)}
        v_lshl_add_u32 {vr(self.VO8)}, {vr(g4)}, 3, {vr(x)}
        s_lshl_b32 {sr(T+3)}, {sr(PT)}, 11
        s_add_u32 {sr(self.E_U)}, {sr(T+3)}, {WS_U}
        s_add_u32 {sr(self.E_G)}, {sr(T+3)}, {WS_G}
        s_sub_u32 {sr(T+3)}, 4096, {sr(T+3)}
        s_lshl_b32 {sr(T)}, {sr(PT)}, 11
        s_add_u32 {sr(T)}, {sr(T)}, {WS_DWF}
        v_lshrrev_b32 {vr(x)}, 2, {vr(r0)}
        v_cmp_eq_u32 vcc, {vr(x)}, {vr(g4)}
        v_lshl_add_u32 {vr(self.VDW)}, {vr(r0)}, 4, {sr(T)}
        s_nop 0
        v_cndmask_b32 {vr(self.VDW)}, {vr(big)}, {vr(self.VDW)}, vcc
        s_lshl_b32 {sr(self.E_COL)}, {sr(S_W)}, 6
        v_lshlrev_b32 {vr(self.VL8)}, 3, v0
        v_add_u32 {vr(self.VL8)}, 4096, {vr(self.VL8)}
        v_add_u32 {vr(self.VST)}, {sr(S_LB)}, {vr(V_DMA)}
        v_add_u32 {vr(self.VST)}, {2*SLOT}, {vr(self.VST)}
        s_xor_b32 {sr(T)}, {sr(NB)}, 1
        v_xor_b32 {vr(x)}, {sr(T)}, {vr(g4)}
        v_lshl_add_u32 {vr(x)}, {vr(x)}, 4, {vr(r0)}
        s_lshl_b32 {sr(T)}, {sr(S_W)}, 2
        s_add_u32 {sr(T)}, {sr(T)}, {self.L_L}
        v_lshl_add_u32 {vr(self.VLW)}, {vr(x)}, 4, {sr(T)}
        s_sub_u32 {sr(self.MP1)}, 0, {sr(PT)}
        s_mov_b32 {sr(self.MP1+1)}, {sr(self.MP1)}""")
        for k, (d, base) in enumerate(((self.RS1, 3 * SLOT), (self.RS2, 2 * SLOT), (self.RS3, 2 * SLOT))):
            a(f"s_xor_b32 {sr(T)}, {sr(S_W)}, {k+1}\ns_mul_i32 {sr(T)}, {sr(T)}, {TILE}\ns_add_u32 {sr(d)}, {sr(T)}, {base}")
        a(f"""s_mul_i32 {sr(T)}, {sr(S_B)}, 4000
        s_add_u32 {sr(T+1)}, {sr(T)}, 3999
        s_mov_b32 {sr(T+2)}, {BLK}""")
        for k, dr in enumerate((0, -1, 1)):
            m = GA + 2 * k
            if dr: a(f"v_add_u32 {vr(m)}, {dr}, {vr(r)}\nv_cmp_eq_u32 vcc, {sr(T if dr < 0 else T+1)}, {vr(r)}")
            src = m if dr else r
            a(f"""v_lshrrev_b32 {vr(x)}, 4, {vr(src)}
            v_and_b32 {vr(y)}, 15, {vr(src)}
            v_mul_lo_u32 {vr(x)}, {vr(x)}, {sr(T+2)}
            v_lshl_add_u32 {vr(y)}, {vr(g4)}, 4, {vr(y)}
            v_lshl_add_u32 {vr(m)}, {vr(y)}, 4, {vr(x)}
            v_lshl_add_u32 {vr(m+1)}, {vr(y)}, 3, {vr(x)}
            v_add_u32 {vr(m+1)}, {sr(T+3)}, {vr(m+1)}""")
            if dr: a(f"v_cndmask_b32 {vr(m)}, {vr(m)}, {vr(big)}, vcc\nv_cndmask_b32 {vr(m+1)}, {vr(m+1)}, {vr(big)}, vcc")

    def conv_loads(self):
        GA = self.GA
        L = []
        for dst, m, so in ((self.GM, GA + 2, 1), (self.G0, GA, 1), (self.GP, GA + 4, 1), (self.U, GA, 0)):
            for k in range(2): L.append(f"buffer_load_dwordx4 {vr(dst+4*k,4)}, {vr(m)}, {sr(S_WS,4)}, {sr(self.E_U+so)} offen offset:{1024*k}")
            L.append(f"buffer_load_dwordx2 {vr(dst+8,2)}, {vr(m+1)}, {sr(S_WS,4)}, {sr(self.E_U+so)} offen")
        return L

    def rg(self, e, n): return (ar if e[0] == "a" else vr)(e[1], n)

    def w8_loads(self, regs, so):
        return [f"buffer_load_dwordx4 {self.rg(regs[s],4)}, {vr(V_DMA)}, {sr(S_WS,4)}, {sr(so)} offen offset:{1024*s}" for s in range(4)] + \
               [f"buffer_load_dwordx2 {self.rg(regs[4],2)}, {vr(self.VL8)}, {sr(S_WS,4)}, {sr(so)} offen"]

    def w_reads(self, regs, off):
        L = []
        for tt in range(2):
            L += [f"ds_read_b128 {self.rg(regs[tt][s],4)}, {vr(self.VS0)} offset:{off + BLK*tt + 1024*s}" for s in range(4)]
            L.append(f"ds_read_b64 {self.rg(regs[tt][4],2)}, {vr(self.VS0R)} offset:{off + BLK*tt}")
        return L

    def xa_srd(self):
        T = S_T
        return f"""s_mul_i32 {sr(T)}, {sr(S_B)}, {NT}
        s_mul_i32 {sr(T+1)}, {sr(S_H)}, 63
        s_add_u32 {sr(T+1)}, {sr(T+1)}, {sr(T)}
        s_mul_i32 {sr(T+1)}, {sr(T+1)}, {TILE}
        s_add_u32 {sr(S_XA)}, {sr(S_WS)}, {sr(T+1)}
        s_addc_u32 {sr(S_XA+1)}, {sr(S_WS+1)}, 0
        s_sub_u32 {sr(T+2)}, 63, {sr(S_H)}
        s_mul_i32 {sr(S_XA+2)}, {sr(T+2)}, {TILE}
        s_mov_b32 {sr(S_XA+3)}, 0x20000"""

    def rest(self):
        a, o = self.a, self.o
        T = S_T
        VPL = self.VPL
        self.plan()
        self.head()
        self.stamp("loop")
        if o.get("sktest") or o.get("echo") and o["echo"][0] == "skew":
            a(f"s_waitcnt lgkmcnt(0)\ns_mov_b64 exec, 1\ns_not_b32 s98, {sr(S_ST)}\nv_mov_b32 v226, s98\nv_mov_b32 v227, 4\ns_cmp_lg_u32 {sr(S_W)}, 0\ns_cbranch_scc1 L_sk\nbuffer_atomic_umax v226, v227, {sr(S_DB,4)}, 0 offen sc1\ns_waitcnt vmcnt(0)\nL_sk:\ns_mov_b64 exec, -1\ns_nop 3")
            self.stamp("sk")
        nh = o.get("ugh", 2)
        ex = {2 + 12 * k: x for k, x in enumerate(self.ugs[nh:])}
        self.period(0, vm=9 + 5, extra=ex)
        self.stamp("l0")
        a.raw(".p2align 6")
        a.label("L_loop")
        self.stamp("q1")
        for p in range(1, 5):
            ex = {}
            vm = 9
            if p == 1: ex = {73: f"s_cmp_eq_u32 {sr(S_CNT)}, 3"}
            if p == 2: ex = {70: f"buffer_load_dwordx4 v[252:255], {vr(VPL)}, {sr(S_DB,4)}, 0 offen sc1"}
            if p == 3:
                ex = {73: f"s_cmp_eq_u32 {sr(S_CNT)}, 2", 45: f"ds_add_rtn_u32 v230, v231, {vr(VPL+1)}"}
            if p == 4:
                self.stamp("la0")
                a(f"s_cbranch_scc1 L_last")
                a.label("L_lastb")
                self.stamp("la1")
                ex = {72: f"s_add_u32 {sr(S_CNT)}, {sr(S_CNT)}, 1", 1: "v_cmp_eq_u32 vcc, 3, v230", 3: f"v_cndmask_b32 v230, v231, {vr(VPL)}, vcc",
                      6: f"buffer_atomic_add {vr(VPL+1)}, v230, {sr(S_DB,4)}, 0 offen sc1"}
            self.period(p, extra=ex, inc=sr(S_INC) if p == 4 else None)
            if p == 1: a("s_cbranch_scc1 L_p14")
        a("s_branch L_loop")
        a.label("L_p14")
        SW = 66
        self.stamp("p14")
        a(f"s_cmp_eq_u32 {sr(S_DUM)}, 4\ns_cbranch_scc0 L_dummyb")
        for i in range(16): a(f"v_mov_b32 {vr(V_CI+i)}, 0xff800000")
        a("s_nop 1")
        a.label("L_dummyb")
        ex = dict(zip([2, 6, 8, 12, 14, 18, 20, 24, 26, 30], self.w_reads(self.WD, 0)))
        ex[0] = "s_waitcnt vmcnt(9)"
        ex.update(dict(zip([4, 10, 16, 22, 28], self.w8_loads(self.WD[2], SW))))
        self.period(14, dma=False, kread=False, extra=ex, halves=(0,))
        self.stamp("tail")
        self.tail(SW)
        self.stamp("end")
        self.epilogue(SW)

    def rare(self):
        a = self.a
        T = S_T
        SW = 66
        a.label("L_last")
        a(f"s_waitcnt vmcnt(9)\ns_mov_b32 {sr(T+2)}, 0")
        a.label("L_late")
        a(f"""v_readfirstlane_b32 {sr(T)}, v252
        v_readfirstlane_b32 {sr(T+1)}, v254
        s_add_u32 {sr(S_XA)}, {sr(S_WS)}, {WS_WF}
        s_addc_u32 {sr(S_XA+1)}, {sr(S_WS+1)}, 0
        s_mov_b32 {sr(S_XA+2)}, {18*BLK}
        s_add_u32 {sr(S_TOFF)}, {sr(S_LB)}, {9*BLK}
        s_mov_b32 {sr(S_INC)}, {-9*BLK}
        s_lshr_b32 {sr(SW)}, {sr(S_W)}, 1
        s_lshl_b32 {sr(SW)}, {sr(SW)}, 30
        s_add_u32 {sr(SW+1)}, {sr(SW)}, {WS_WF + 8*BLK}
        s_add_u32 {sr(SW)}, {sr(SW)}, {WS_WF + 17*BLK}
        s_cmp_ge_u32 {sr(T)}, 126
        s_cselect_b32 {sr(T+3)}, {sr(T+1)}, 0
        s_cmp_ge_u32 {sr(T+3)}, 2
        s_cbranch_scc1 L_lastb
        buffer_load_dwordx4 v[252:255], {vr(self.VPL)}, {sr(S_DB,4)}, 0 offen sc1
        s_add_u32 {sr(T+2)}, {sr(T+2)}, 1
        s_waitcnt vmcnt(0)
        s_cmp_lt_u32 {sr(T+2)}, 0x40000
        s_cbranch_scc1 L_late
        s_branch L_lastb""")

    units = [(0, 0), (0, 1), (1, 0), (1, 1), (2, 0)]
    V15 = V_K

    def stage(self, slot, T):
        src = ar(A_O + 36 * slot + 4 * T, 4)
        if slot == 0: return f"ds_write_b128 {vr(self.VST)}, {src} offset:{1024*T}"
        if slot == 2: return f"ds_write_b128 {vr(self.VS0)}, {src} offset:{1024*T}"
        if T < 4: return f"ds_write_b128 {vr(self.VST)}, {src} offset:{SLOT + 1024*T + (4096 if slot == 3 else 0)}"
        return f"{'s_not_b64' if slot == 1 else 's_mov_b64'} exec, {sr(self.MP1,2)}\nds_write_b128 {vr(self.VST)}, {src} offset:{SLOT + 8192}\ns_mov_b64 exec, -1"

    def dwf(self, k, i):
        f = 5 * k + i
        return self.DWT[f >> 1] + 2 * (f & 1)

    def tail(self, SW):
        a, o = self.a, self.o
        mf, pos, start = [], {}, {}
        for t_, qb in ((14, 0), (14, 1), (15, 0), (15, 1), (14, 2), (15, 2), (14, 3), (15, 3)):
            start[t_, qb] = len(mf)
            for Tt in ([0, 1, 2, 3, 8, 4, 5, 6, 7] if qb & 1 else range(9)):
                o_ = ar(A_O + 36 * qb + 4 * Tt, 4)
                pos[t_, qb, Tt] = len(mf)
                mf.append(f"v_mfma_f32_16x16x32_bf16 {o_}, {vr((V_V if t_ == 14 else self.V15)+4*Tt,4)}, {vr(self.P(t_ & 1,qb),4)}, {o_}")
        lst = []
        for qb in range(4):
            for j in range(8):
                lst.append(("e", qb, j))
                if j & 1: lst.append(("c", qb, j // 2))
        lst += [("a", qb, j) for qb in range(4) for j in range(8)]
        items = self.e_items(1, lst, lambda qb, j: 0 if j < 4 else 1, lambda qb: start[15, qb] - 2)
        for it in items[48:]: it["lo"] = o.get("alo", 26)
        v15 = [dict(t=x, c=4, need=pos[15, 0, i // 2], hi=pos[15, 0, i // 2] - o.get("vlead", 7), lo=0 if i < 16 else 2) for i, x in enumerate(self.v_reads(3, self.V15))]
        wr = []
        nown = o.get("nown", 4)
        self.own = [(2, T_) for T_ in range(nown, 9)] + [(3, T_) for T_ in (0, 1, 2, 3, 8)]
        g = o.get("w0", 23)
        for k, (sl, Tt) in enumerate([(0, T_) for T_ in range(9)] + [(1, T_) for T_ in (0, 1, 2, 3, 8)] + [(2, T_) for T_ in range(nown)]):
            g = max(pos[15, sl, Tt] + 5, g)
            wr.append(dict(t=self.stage(sl, Tt), c=o.get("wc", 20), lo=int(g), hi=int(g)) if g < 72 else dict(t=self.stage(sl, Tt), c=4, lo=999))
            g += o.get("wsp", 2.7)
        n0 = len(items) + len(v15)
        wo = []
        for i, x in enumerate(self.w_reads(self.WO, SLOT)):
            r0 = self.WO[i // 5][i % 5][1]
            wo.append(dict(t=("@VM\n" if i == 0 else "") + x, c=4, dep=sorted({n0 + r0 // 4, n0 + (r0 + 3) // 4 if (r0 + 3) // 4 < 9 else n0 + 8}), lo=o.get("wo0", 40) + 3 * i, hi=o.get("wo0", 40) + 3 * i + 2))
        cl = self.conv_loads()
        dl = [f"buffer_load_dwordx4 {vr(self.DWT[r],4)}, {vr(self.VDW)}, {sr(S_WS,4)}, 0 offen offset:{256*r}" for r in range(7)]
        dl.append(f"buffer_load_dwordx2 {vr(self.DWT[7],2)}, {vr(self.VDW)}, {sr(S_WS,4)}, 0 offen offset:{256*7}")
        fr = {96: 9, 100: 18, 104: 45, 112: 27, 116: 36}
        vm = [(x, 0) for x in cl] + [(x, fr.get(self.DWT[r], 0)) for r, x in enumerate(dl)]
        used = {w["lo"] for w in wr}
        vi, g = [], o.get("m0", 24)
        for x, lo in vm:
            g = max(g, lo)
            while int(g) in used: g += 1
            vi.append(dict(t=x, c=8, lo=int(g), hi=int(g)) if g < 72 else dict(t=x, c=8, lo=999))
            g += o.get("msp", 2.2)
        left = self.pack(mf, items + v15 + wr + wo + vi)
        self.done_a = {(qb, j) for qb in range(4) for j in range(8) if self.etext(1, ("a", qb, j)) not in left}
        left = [x for x in left if not x.startswith("v_add_f32")]
        print("tail overflow", self.over, "left", len(left), "adds done", len(self.done_a))
        self.left = left

    def epilogue(self, SW):
        a, o = self.a, self.o
        T = S_T
        p = lambda r: vr(r, 2)
        NB, PT, MK, VO, units, MP1 = self.NB, self.PT, self.MK, self.VO, self.units, self.MP1
        U, GM, G0, GP = self.U, self.GM, self.G0, self.GP
        X2O = self.X2O
        R1, R2, R3 = 230, 231, 249
        LA, LS, M = 10, 226, 48

        def weave(main, fill, per):
            fill = list(fill)
            for x in main:
                a(x)
                for _ in range(per):
                    if fill: a(fill.pop(0))
            return fill
        for x in self.left:
            if not x.startswith("buffer"): a(x)
        lv = [x for x in self.left if x.startswith("buffer")]
        lv += [f"buffer_load_dwordx4 {vr(self.XRS[j],4)}, {vr(VO+j)}, {sr(S_X,4)}, {sr(self.E_COL)} offen" for j in range(2)]
        lv.append(f"buffer_load_dwordx2 {vr(self.XRS[2],2)}, {vr(self.VO8)}, {sr(S_X,4)}, 0 offen offset:256")
        S1 = lambda qb, j: self.S(1, qb, j)
        rounds = [[] for _ in range(6)]
        for qb in range(4):
            rem = [j for j in range(8) if (qb, j) not in self.done_a]
            prs = [j for j in rem if j % 2 == 0 and j + 1 in rem]
            sing = [j for j in rem if (j & ~1) not in prs]
            r_ = 0
            while len(prs) > 1:
                for x, y in zip(prs[0::2], prs[1::2]): rounds[r_].append(f"v_pk_add_f32 {p(S1(qb,x))}, {p(S1(qb,x))}, {p(S1(qb,y))}")
                prs = prs[0::2]; r_ += 1
            for k_, j in enumerate(sing + ([prs[0], prs[0] + 1] if prs else [])): rounds[min(5, max(r_, 2) + k_)].append(f"v_add_f32 {vr(V_L+qb)}, {vr(V_L+qb)}, {vr(S1(qb,j))}")
        for r_ in rounds:
            for x in r_: a(x)
        a(f"v_add_u32 {vr(R1)}, {sr(self.RS1)}, {vr(V_DMA)}\nv_add_u32 {vr(R2)}, {sr(self.RS2)}, {vr(V_DMA)}")
        self.treduce(V_L)
        a(f"ds_write_b32 {vr(self.VLW)}, {vr(V_L)}")
        acc = lambda slot: [f"v_accvgpr_read_b32 {vr(M+i)}, {ar(A_O+36*slot+16+i)}" for i in range(20)]
        a(f"""v_add_u32 {vr(R3)}, {sr(self.RS3)}, {vr(V_DMA)}
        v_add_u32 {vr(LA+1)}, {self.L_L}, {vr(V_DMA)}
        v_and_b32 {vr(LS+1)}, 0xf0, {vr(V_DMA)}
        s_lshl_b32 {sr(T)}, {sr(NB)}, 8
        s_add_u32 {sr(T+8)}, {sr(T)}, {self.L_L}
        v_add_u32 {vr(LS)}, {sr(T+8)}, {vr(LS+1)}""")
        for x in lv: a(x)
        a(f"""s_xor_b32 {sr(T)}, s2, 1
        s_mul_i32 {sr(T)}, {sr(T)}, {IB}
        s_mul_i32 {sr(T+9)}, {sr(NB)}, 5120
        s_add_u32 {sr(T+9)}, {sr(T+9)}, {WS_IB}
        s_add_u32 {sr(T)}, {sr(T)}, {sr(T+9)}
        s_lshl_b32 {sr(T+10)}, {sr(PT)}, 11
        s_add_u32 {sr(T+1)}, {sr(T+10)}, {sr(T)}
        s_add_u32 {sr(T)}, {sr(T)}, 4096
        s_cmp_eq_u32 {sr(PT)}, 0
        s_cselect_b32 {sr(T)}, 0x40000000, {sr(T)}
        s_mov_b32 {sr(T+2)}, {f32(2.0**100)}
        s_mul_i32 {sr(T+12)}, s2, {IB}
        s_add_u32 {sr(T+12)}, {sr(T+12)}, {sr(T+9)}
        s_add_u32 {sr(T+13)}, {sr(T+12)}, {sr(T+10)}
        s_waitcnt lgkmcnt(0)
        s_barrier""")
        self.stamp("B1")

        def rd(X, offs):
            L = [[f"ds_read_b128 {vr(X[k][i],4)}, {vr((R1, R2, R3)[k])} offset:{offs[k] + 1024*i}" for i in range(4)] for k in range(3)]
            L8 = [f"ds_read_b128 {vr(X[k][4],4)}, {vr((R1, R2, R3)[k])} offset:8192" for k in range(3)]
            return L, L8

        def adds(X, k, rng):
            return [f"v_pk_add_f32 {p(M+4*i+2*h)}, {p(M+4*i+2*h)}, {p(X[k][i]+2*h)}" for i in rng for h in range(2)]
        X = [[128, 132, 136, 140, 144], [148, 152, 156, 160, 68], [72, 76, 200, 204, 108]]
        PK = 128
        L, L8 = rd(X, (0, 4096, 0))
        a(f"ds_read_b128 {vr(LA,4)}, {vr(LA+1)}\nds_read_b128 {vr(LS,4)}, {vr(LS)}")
        rest = weave(L[0] + L[1] + L[2], acc(1), 2)
        assert not rest
        a(f"s_mov_b64 exec, {sr(MP1,2)}")
        for x in L8: a(x)
        a(f"""s_mov_b64 exec, -1
        s_waitcnt lgkmcnt(11)
        v_add_f32 {vr(LA)}, {vr(LA)}, {vr(LA+1)}
        v_add_f32 {vr(LA+2)}, {vr(LA+2)}, {vr(LA+3)}
        v_add_f32 {vr(LS)}, {vr(LS)}, {vr(LS+1)}
        v_add_f32 {vr(LA)}, {vr(LA)}, {vr(LA+2)}
        v_add_f32 {vr(LS+2)}, {vr(LS+2)}, {vr(LS+3)}
        v_cmp_nge_f32 vcc, {sr(T+2)}, {vr(LA)}""")
        for x in adds(X, 0, range(4)): a(x)
        a(f"""s_cmp_lg_u64 vcc, 0
        s_cselect_b32 {sr(T+2)}, 1, 0
        s_andn2_b32 {sr(T+2)}, {sr(T+2)}, {sr(S_REDO)}
        s_cbranch_scc1 L_fallback
        v_add_f32 {vr(PK+10)}, {vr(LS)}, {vr(LS+2)}
        v_mov_b32 {vr(PK+11)}, {vr(MK+1)}
        s_waitcnt lgkmcnt(7)""")
        for x in adds(X, 1, range(4)): a(x)
        a("s_waitcnt lgkmcnt(3)")
        a3 = adds(X, 2, range(4))
        cv = [f"v_cvt_pk_bf16_f32 {vr(PK+i)}, {vr(M+2*i)}, {vr(M+2*i+1)}" for i in range(10)]
        for x in a3[:4] + a3[4:6] + cv[:4]: a(x)
        a(f"buffer_store_dwordx4 {vr(PK,4)}, {vr(V_DMA)}, {sr(S_WS,4)}, {sr(T+1)} offen sc1")
        for x in a3[6:] + cv[4:8]: a(x)
        a(f"buffer_store_dwordx4 {vr(PK+4,4)}, {vr(V_DMA)}, {sr(S_WS,4)}, {sr(T+1)} offen offset:1024 sc1")
        a("s_waitcnt lgkmcnt(0)")
        for kk in range(3):
            for x in adds(X, kk, [4]): a(x)
        for x in cv[8:]: a(x)
        a(f"buffer_store_dwordx4 {vr(PK+8,4)}, {vr(V_DMA)}, {sr(S_WS,4)}, {sr(T)} offen sc1")
        self.stamp("sent")
        a(f"s_cmp_eq_u32 {sr(S_VAL)}, 0\ns_cbranch_scc1 L_fin")
        C, UP = 140, 68
        IN = [(200, 204, 226), (164, 168, 252), (192, 196, 172)]
        VXW, VXR, VF, LO = 78, 79, 10, 36
        wr = [self.stage(*e) for e in self.own]

        def inbox(k):
            return [f"buffer_load_dwordx4 {vr(IN[k][0],4)}, {vr(V_DMA)}, {sr(S_WS,4)}, {sr(T+13)} offen sc1",
                    f"buffer_load_dwordx4 {vr(IN[k][1],4)}, {vr(V_DMA)}, {sr(S_WS,4)}, {sr(T+13)} offen offset:1024 sc1",
                    f"buffer_load_dwordx4 {vr(IN[k][2],4)}, {vr(V_DMA+1)}, {sr(S_WS,4)}, {sr(T+12)} offen sc1"]
        for x in inbox(0): a(x)
        n0 = len(a.lines)
        a(f"""s_lshl_b32 {sr(T)}, {sr(NB)}, 12
        s_add_u32 {sr(T)}, {sr(T)}, {sr(T+10)}
        s_add_u32 {sr(T)}, {sr(T)}, {self.X1B}
        v_add_u32 {vr(VXW)}, {sr(T)}, {vr(V_DMA)}
        s_lshl_b32 {sr(T)}, {sr(NB)}, 9
        s_add_u32 {sr(T)}, {sr(T)}, {self.X1B + 4096}
        v_add_u32 {vr(VXR)}, {sr(T)}, {vr(self.VL8)}
        s_lshl_b32 {sr(T)}, {sr(PT)}, 12
        s_add_u32 {sr(T)}, {sr(T)}, {self.X1B}
        v_add_u32 {vr(VF)}, {sr(T)}, {vr(V_DMA)}
        v_xor_b32 {vr(VF+1)}, 4096, {vr(VF)}
        s_lshl_b32 {sr(T)}, {sr(PT)}, 9
        s_add_u32 {sr(T)}, {sr(T)}, {self.X1B + 4096}
        v_add_u32 {vr(VF+2)}, {sr(T)}, {vr(self.VL8)}
        v_xor_b32 {vr(VF+3)}, 512, {vr(VF+2)}
        v_subrev_u32 {vr(R2)}, {2*SLOT}, {vr(R2)}
        v_subrev_u32 {vr(R3)}, {2*SLOT}, {vr(R3)}
        s_waitcnt vmcnt(9)""")
        self.stamp("cv0")
        un = [f"v_lshlrev_b32 {vr(M+2*i)}, 16, {vr(U+i)}\nv_and_b32 {vr(M+1+2*i)}, 0xffff0000, {vr(U+i)}" for i in range(10)]
        w8 = self.w8_loads(self.WO[2], SW + 1)
        for k, src in enumerate((GM, G0, GP)):
            for i in range(5):
                d = vr(C + 4 * i, 4)
                a(f"v_mfma_f32_16x16x16_bf16 {d}, {vr(self.dwf(k, i),2)}, {vr(src+2*i,2)}, {'0' if k == 0 else d}")
                a(w8.pop(0) if i in (0, 3) and w8 else un.pop(0))
        self.stamp("cv1")
        a(f"v_and_b32 {vr(LO+1)}, 0xf0, {vr(V_DMA)}\nv_add_u32 {vr(LO)}, {sr(T+8)}, {vr(LO+1)}\ns_nop 1")
        for i in range(10): a(f"v_pk_mul_f32 {p(C+2*i)}, {p(C+2*i)}, {p(M+2*i)}")
        for i in range(10):
            a(f"v_cvt_pk_bf16_f32 {vr(UP+i)}, {vr(C+2*i)}, {vr(C+2*i+1)}")
        body = a.lines[n0:]; del a.lines[n0:]
        step = max(1, len(body) // len(wr))
        for i, l in enumerate(body):
            if i % o.get("wstep", step) == 0 and wr: a(wr.pop(0))
            a.lines.append(l)
        for x in wr: a(x)
        ac = acc(3)
        a(f"ds_write_b128 {vr(VXW)}, {vr(UP,4)} offset:{X2O}")
        for x in ac[:6]: a(x)
        a(f"ds_write_b128 {vr(VXW)}, {vr(UP+4,4)} offset:{X2O + 1024}")
        for x in ac[6:12]: a(x)
        a(f"""s_mov_b64 exec, {sr(MP1,2)}
        ds_write_b64 {vr(VXR)}, {vr(UP+8,2)} offset:{X2O}
        s_mov_b64 exec, -1""")
        self.stamp("x2")
        for x in inbox(1): a(x)
        for x in ac[12:]: a(x)
        a("s_waitcnt lgkmcnt(0)\ns_barrier")
        self.stamp("B2")
        X = [[128, 132, 136, 140, 144], [148, 152, 156, 160, 188], [16, 20, 24, 28, 32]]
        L, L8 = rd(X, (4096, 4096, 0))
        BU = [[("v", r) for r in (100, 104, 108, 112, 116)], [("v", r) for r in (118, 122, 180, 184, 126)]]
        BO = [self.frag("v", 128), self.frag("v", 146)]
        AB = 80

        def bfrags(dst, off):
            out = []
            for s in range(5):
                for j in range(2):
                    out.append(f"ds_read_b128 {self.rg(dst[j][s],4)}, {vr(VF+j)} offset:{off + 1024*s}" if s < 4 else f"ds_read_b64 {self.rg(dst[j][4],2)}, {vr(VF+2+j)} offset:{off}")
            return out

        def fg(W, Bf):
            out = []
            for s in range(5):
                for u, (tt, j) in enumerate(units):
                    d = vr(AB + 4 * u, 4)
                    if s < 4: out.append(f"v_mfma_f32_16x16x32_bf16 {d}, {self.rg(W[tt][s],4)}, {self.rg(Bf[j][s],4)}, {d}")
                    else: out.append(f"v_mfma_f32_16x16x16_bf16 {d}, {self.rg(W[tt][4],2)}, {self.rg(Bf[j][4],2)}, {d}")
            return out
        xu = []
        for u, (tt, j) in enumerate(units):
            for h in range(2):
                x = self.XRS[j] + 2 * tt + h if tt < 2 else self.XRS[2] + h
                xu += [f"v_lshlrev_b32 {vr(AB+4*u+2*h)}, 16, {vr(x)}", f"v_and_b32 {vr(AB+1+4*u+2*h)}, 0xffff0000, {vr(x)}"]
        a("s_waitcnt vmcnt(14)")
        weave(bfrags(BU, X2O), xu, 2)
        pl = lambda k, i, e: f"v_add_f32 {vr(M+4*i+e)}, {vr(M+4*i+e)}, {vr(X[k][i]+e)}"
        ds = L[0] + L[1] + L[2] + [f"s_not_b64 exec, {sr(MP1,2)}\n" + "\n".join(L8) + "\ns_mov_b64 exec, -1", f"ds_read_b128 {vr(LO,4)}, {vr(LO)} offset:512"]
        nis = [1] * 12 + [3, 1]
        gap = [[] for _ in range(25)]
        tot = [10]
        for g in range(25): tot.append(tot[-1] + (nis[g] if g < 14 else 0))
        A0 = [pl(0, i, e) for i in range(4) for e in range(4)]
        A1 = [pl(1, i, e) for i in range(4) for e in range(4)]
        ib = inbox(2)
        for g, m in enumerate(fg(self.WD, BU)):
            if g % 5 == 0: a(f"s_waitcnt lgkmcnt({min(15, tot[g] - 2 * (g // 5 + 1))})")
            a(m)
            if g == 8: a(f"s_waitcnt lgkmcnt({tot[g] - 14})")
            if g == 16: a(f"s_waitcnt lgkmcnt({tot[g] - 18})")
            if g < 14: a(ds[g])
            if 8 <= g < 14: a(A0.pop(0))
            elif g in (14, 18, 22): a(ib.pop(0))
            elif g >= 14:
                for _ in range(2): a(A0.pop(0) if A0 else A1.pop(0))
        assert not A0 and len(A1) % 2 == 0
        n1 = 16 - len(A1)
        for e in range(n1, 16, 2): a(f"v_pk_add_f32 {p(M+e)}, {p(M+e)}, {p(X[1][e//4]+e%4)}")
        a("s_waitcnt lgkmcnt(0)")
        for x in adds(X, 2, range(4)): a(x)
        a(f"v_add_f32 {vr(LO)}, {vr(LO)}, {vr(LO+1)}\nv_add_f32 {vr(LO+2)}, {vr(LO+2)}, {vr(LO+3)}")
        for kk in range(3):
            for x in adds(X, kk, [4]): a(x)
        a(f"s_mov_b32 {sr(T+2)}, 0\nv_add_f32 {vr(LO)}, {vr(LO)}, {vr(LO+2)}")
        self.stamp("own")
        w, PU = 40, 128
        mo = MK + 3

        def chk(k):
            r = [IN[k][q] + i for q in range(3) for i in range(4)]
            c = [f"v_max3_u32 v46, {vr(r[0])}, {vr(r[1])}, {vr(r[2])}", f"v_max3_u32 v47, {vr(r[3])}, {vr(r[4])}, {vr(r[5])}"]
            for q in range(3): c.append(f"v_max3_u32 v{46+(q&1)}, v{46+(q&1)}, {vr(r[6+2*q])}, {vr(r[7+2*q])}")
            return c + ["v_max_u32 v46, v46, v47", "v_cmp_eq_u32 vcc, -1, v46"]

        def take(k, with_chk):
            r = [IN[k][q] + i for q in range(3) for i in range(4)]
            lp_, mp = r[10], r[11]
            wt = [f"v_min_f32 {vr(w)}, {vr(mo)}, {vr(mp)}", f"v_sub_f32 {vr(w+2)}, {vr(w)}, {vr(mp)}", f"v_sub_f32 {vr(w)}, {vr(w)}, {vr(mo)}",
                  f"v_exp_f32 {vr(w+2)}, {vr(w+2)}", f"v_exp_f32 {vr(w)}, {vr(w)}", f"v_mul_f32 {vr(w+4)}, {vr(w+2)}, {vr(lp_)}",
                  f"v_fmac_f32 {vr(w+4)}, {vr(w)}, {vr(LO)}", f"v_rcp_f32 {vr(w+4)}, {vr(w+4)}", f"v_mul_f32 {vr(w)}, {vr(w)}, {vr(w+4)}",
                  f"v_mul_f32 {vr(w+2)}, {vr(w+2)}, {vr(w+4)}"]
            un = []
            for i in range(10): un += [f"v_lshlrev_b32 {vr(PU+2*i)}, 16, {vr(r[i])}", f"v_and_b32 {vr(PU+1+2*i)}, 0xffff0000, {vr(r[i])}"]
            c = chk(k) if with_chk else []
            for i in range(10):
                a(wt[i])
                if c: a(c.pop(0))
                a(un.pop(0)); a(un.pop(0))
        a("s_waitcnt vmcnt(6)")
        take(0, True)
        a("s_cmp_eq_u64 vcc, 0\ns_cbranch_scc0 L_poll2")
        a.label("L_got")
        self.stamp("got")
        for i in range(10): a(f"v_pk_mul_f32 {p(M+2*i)}, {p(M+2*i)}, {p(w)} op_sel_hi:[1,0]")
        for i in range(10): a(f"v_pk_fma_f32 {p(M+2*i)}, {p(PU+2*i)}, {p(w+2)}, {p(M+2*i)} op_sel_hi:[1,0,1]")
        for i in range(10):
            a(f"v_cvt_pk_bf16_f32 {vr(UP+i)}, {vr(M+2*i)}, {vr(M+2*i+1)}")
            if i == 3: a(f"ds_write_b128 {vr(VXW)}, {vr(UP,4)}")
            if i == 7: a(f"ds_write_b128 {vr(VXW)}, {vr(UP+4,4)} offset:1024")
        a(f"""s_not_b64 exec, {sr(MP1,2)}
        ds_write_b64 {vr(VXR)}, {vr(UP+8,2)}
        s_mov_b64 exec, -1
        s_waitcnt lgkmcnt(0)
        s_barrier""")
        self.stamp("B3")
        for x in bfrags(BO, 0): a(x)
        for g, m in enumerate(fg(self.WO, BO)):
            if g % 5 == 0: a(f"s_waitcnt lgkmcnt({8 - 2 * (g // 5)})" + ("\ns_nop 0" if g == 20 else ""))
            a(m)
        self.stamp("gem")
        a("s_nop 3")
        for j in range(2):
            for tt in range(2):
                u = 2 * tt + j
                for h in range(2): a(f"v_cvt_pk_bf16_f32 {vr(16+4*j+2*tt+h)}, {vr(AB+4*u+2*h)}, {vr(AB+4*u+2*h+1)}")
            a(f"buffer_store_dwordx4 {vr(16+4*j,4)}, {vr(VO+j)}, {sr(S_OUT,4)}, {sr(self.E_COL)} offen")
        a(f"s_cmp_ge_u32 {sr(S_W)}, 2\ns_cbranch_scc1 L_fin")
        for h in range(2): a(f"v_cvt_pk_bf16_f32 {vr(24+h)}, {vr(AB+16+2*h)}, {vr(AB+16+2*h+1)}")
        a(f"buffer_store_dwordx2 v[24:25], {vr(self.VO8)}, {sr(S_OUT,4)}, 0 offen offset:256")
        self.stamp("fin")

        def poll2():
            a.label("L_poll2")
            for k in (1, 2, 0):
                for x in inbox((k + 2) % 3): a(x)
                a("s_waitcnt vmcnt(6)")
                for x in chk(k): a(x)
                a(f"s_add_u32 {sr(T+2)}, {sr(T+2)}, 1\ns_cmp_eq_u64 vcc, 0\ns_cbranch_scc1 L_take{k}")
            a(f"s_cmp_lt_u32 {sr(T+2)}, 0x10000\ns_cbranch_scc1 L_poll2")
            for k in (0, 1, 2):
                a.label(f"L_take{k}")
                take(k, False)
                a("s_branch L_got")
        self.poll2 = poll2

    def fallback(self):
        a = self.a
        T = S_T
        MXR = 208
        a.label("L_fallback")
        a(f"""s_waitcnt vmcnt(0) lgkmcnt(0)
        s_barrier
        s_mov_b32 {sr(S_REDO)}, 1
        s_mov_b32 {sr(S_UG)}, 0x40000000
        {self.xa_srd()}
        s_mov_b32 {sr(S_TOFF)}, {sr(S_LB)}
        s_cmp_eq_u32 {sr(S_DUM)}, 4
        s_cselect_b32 {sr(S_CNT)}, 15, 16""")
        for i in range(4): a(f"v_mov_b32 {vr(MXR+i)}, 0xff800000")
        a.label("L_fb1")
        for g in self.tile_groups(0): a(g)
        a("s_waitcnt vmcnt(0)")
        for x in self.k_reads(0): a(x)
        a("s_waitcnt lgkmcnt(0)")
        for m in self.qk_mfmas(0, czero=True): a(m)
        a("s_nop 7")
        for qb in range(4):
            for i in range(0, 8, 2): a(f"v_max3_f32 {vr(MXR+qb)}, {vr(MXR+qb)}, {vr(self.S(0,qb,i))}, {vr(self.S(0,qb,i+1))}")
        a(f"s_sub_u32 {sr(S_CNT)}, {sr(S_CNT)}, 1\ns_cmp_lg_u32 {sr(S_CNT)}, 0\ns_cbranch_scc1 L_fb1")
        self.greduce([MXR + i for i in range(4)], MXR + 4, "v_max_f32")
        a(f"""v_and_b32 {vr(MXR+4)}, 15, v0
        v_lshlrev_b32 {vr(MXR+4)}, 4, {vr(MXR+4)}
        v_add_u32 {vr(MXR+4)}, {L_SP}, {vr(MXR+4)}
        s_lshl_b32 {sr(T)}, {sr(S_W)}, 2
        s_xor_b32 {sr(T+1)}, {sr(self.NB)}, 1
        v_lshl_add_u32 {vr(MXR+5)}, {sr(self.NB)}, 8, {vr(MXR+4)}
        v_lshl_add_u32 {vr(MXR+4)}, {sr(T+1)}, 8, {vr(MXR+4)}
        v_add_u32 {vr(MXR+6)}, {sr(T)}, {vr(MXR+4)}
        v_add_u32 {vr(MXR+7)}, {sr(T)}, {vr(MXR+5)}""")
        for qb in range(4): a(f"ds_write_b32 {vr(MXR+6+(qb&1))}, {vr(MXR+qb)} offset:{512*(qb>>1)}")
        a("s_waitcnt lgkmcnt(0)\ns_barrier")
        for qb in range(4): a(f"ds_read_b128 {vr(16+4*qb,4)}, {vr(MXR+4+(qb&1))} offset:{512*(qb>>1)}")
        a(f"s_mov_b32 {sr(S_TOFF)}, {sr(S_LB)}")
        for g in self.tile_groups(0) + self.tile_groups(1) + self.tile_groups(2)[:8]: a(g)
        a("s_waitcnt lgkmcnt(0)")
        for qb in range(4):
            r = 16 + 4 * qb
            a(f"v_max_f32 {vr(r)}, {vr(r)}, {vr(r+1)}\nv_max3_f32 {vr(r)}, {vr(r)}, {vr(r+2)}, {vr(r+3)}")
            a(f"v_sub_f32 {vr(self.MK+qb)}, 0, {vr(r)}")
        a("s_waitcnt vmcnt(0)")
        for x in self.k_reads(0, V_V): a(x)
        self.loop_init(False)
        a("s_branch L_go")


if __name__ == "__main__":
    opt = json.loads(sys.argv[2]) if len(sys.argv) > 2 else {}
    g = G(opt)
    txt = g.build()
    if opt.get("align", 1):
        from align import align
        for n2 in (1, 2):
            try:
                txt, st = align(txt, chains=[(1, "L_tr")] * 3 + [(1, "L_tr2"), (n2, "L_tr2")] if opt.get("touch", 1) else None)
                break
            except AssertionError as e:
                if n2 == 2: raise
        print("align: promoted %d, padded %d, left %d" % st)
    txt = txt.replace("\n", "\n; stamps " + json.dumps(g.stnames) + "\n; map %d\n" % g.mp, 1)
    open(sys.argv[1], "w").write(txt)
```

```python
import sys, json, math
from common import Asm, vr, ar, sr, kernel_header, kernel_desc
from lay import *

NAME = "standalone__conformer_family_branchformer__speech_kernel"
NH = 2
NWG = 252 + NH
CHAINS = (3, 3)
RING = 4
LDS_RING = RING * TILE
LDS_TOTAL = 163840
SLOT = 4 * TILE
L_WU, L_WQ, L_WK = 0, 41472, 82944
L_XX, L_XR = 126976, 143360
L_QD = 18432
L_XS = L_XX + L_QD
L_MX = 81920
L_PC = LDS_TOTAL - 256
L_DUMP = 123904
L_SP = 147456

S_X, S_WS, S_XA, S_DB, S_W1, S_W2, S_OUT, S_DW = 8, 12, 16, 20, 24, 28, 32, 36
S_W, S_B, S_H, S_QB, S_TOFF, S_CNT, S_DUM, S_LB, S_TOWN, S_TSND, S_VAL, S_REDO = range(40, 52)
S_UG = 25
S_N, S_FB = 98, 99
S_INC = 24
S_T = 52
S_ST = 76

V_KA, V_VA, V_VR, V_DMA, V_L, V_VB = 1, 3, 5, 6, 10, 14
V_S, V_CI, V_P, V_K, V_V = 16, 80, 96, 128, 164
V_HI = 200
V_X = 208
A_O, A_Q, A_F = 0, 144, 216

LOG2E = 1.4426950408889634
import struct
def f32(x): return "0x%08x" % struct.unpack("<I", struct.pack("<f", x))[0]


class BAsm(Asm):
    def __init__(self):
        super().__init__()
        self.bg, self.every, self.cnt, self.skip = [], 0, 0, 0

    def __call__(self, s):
        for l in s.split("\n"):
            l = l.strip()
            if not l: continue
            self.lines.append("    " + l)
            if self.bg and self.every and not l.startswith(("s_nop", "v_mov_b32", "v_exp", "v_rcp", "v_rsq", "v_sqrt", "s_add_u32 m0")):
                self.cnt += 1
                if self.cnt >= self.every:
                    self.cnt = 0
                    self.pop()

    def pop(self):
        for x in self.bg.pop(0).split("\n"): self.lines.append("    " + x)

    def flush(self):
        while self.bg: self.pop()
        self.every = 0


class G:
    def __init__(self, opt):
        self.o = opt
        self.a = BAsm()
        self.nst = 0
        self.fill = []

    def stamp(self, name):
        if self.o.get("stamps"):
            if name in self.o.get("skipst", []): return
            if "only" in self.o and name not in self.o["only"]: return
            if self.nst >= 11: return
            self.a(f"{'s_memtime' if self.o.get('cyc') else 's_memrealtime'} {sr(S_ST + 2*self.nst, 2)}")
            self.stnames.append(name)
            self.nst += 1

    def srd(self, dst, lo, hi, n):
        if dst == S_WS and self.o.get("wsoff"):
            self.a(f"s_add_u32 {sr(dst)}, {sr(lo)}, {self.o['wsoff']}\ns_addc_u32 {sr(dst+1)}, {sr(hi)}, 0\ns_mov_b32 {sr(dst+2)}, {n}\ns_mov_b32 {sr(dst+3)}, 0x20000")
            return
        self.a(f"s_mov_b32 {sr(dst)}, {sr(lo)}\ns_mov_b32 {sr(dst+1)}, {sr(hi)}\ns_mov_b32 {sr(dst+2)}, {n}\ns_mov_b32 {sr(dst+3)}, 0x20000")

    def greduce(self, regs, tmp, op="v_add_f32"):
        a = self.a
        for sw in ("32", "16"):
            for i, r in enumerate(regs): a(f"v_mov_b32 {vr(tmp+i)}, {vr(r)}")
            if len(regs) < 3: a("s_nop 1" if len(regs) == 1 else "s_nop 0")
            for i, r in enumerate(regs): a(f"v_permlane{sw}_swap_b32 {vr(r)}, {vr(tmp+i)}")
            for i, r in enumerate(regs): a(f"{op} {vr(r)}, {vr(r)}, {vr(tmp+i)}")

    def treduce(self, r, op="v_add_f32"):
        a = self.a
        a(f"v_permlane32_swap_b32 {vr(r)}, {vr(r+2)}\nv_permlane32_swap_b32 {vr(r+1)}, {vr(r+3)}")
        a(f"{op} {vr(r)}, {vr(r)}, {vr(r+2)}\n{op} {vr(r+1)}, {vr(r+1)}, {vr(r+3)}\ns_nop 1")
        a(f"v_permlane16_swap_b32 {vr(r)}, {vr(r+1)}\n{op} {vr(r)}, {vr(r)}, {vr(r+1)}")

    def rbf(self, r):
        self.a(f"v_cvt_pk_bf16_f32 {vr(r)}, {vr(r)}, {vr(r)}\nv_lshlrev_b32 {vr(r)}, 16, {vr(r)}")

    def ln_tail(self, F, out, t, mimic):
        a = self.a
        p = lambda r: vr(r, 2)
        self.greduce([t, t + 1], t + 2)
        a(f"v_mul_f32 {vr(t+2)}, {f32(1.0/144)}, {vr(t)}")
        a(f"v_mul_f32 {vr(t+3)}, {vr(t+2)}, {vr(t+2)}")
        a(f"v_mov_b32 {vr(t+4)}, {f32(1.0/144)}")
        a(f"v_fma_f32 {vr(t)}, {vr(t+1)}, {vr(t+4)}, -{vr(t+3)}")
        a(f"v_max_f32 {vr(t)}, 0, {vr(t)}")
        if mimic:
            self.rbf(t)
            self.rbf(t + 2)
            a(f"v_add_f32 {vr(t)}, {f32(1e-5)}, {vr(t)}")
            self.rbf(t)
            a(f"v_sqrt_f32 {vr(t)}, {vr(t)}\ns_nop 0")
            self.rbf(t)
            a(f"v_rcp_f32 {vr(t)}, {vr(t)}\ns_nop 0")
        else:
            a(f"v_add_f32 {vr(t)}, {f32(1e-5)}, {vr(t)}")
            a(f"v_rsq_f32 {vr(t)}, {vr(t)}\ns_nop 0")
        a(f"v_mul_f32 {vr(t+2)}, -{vr(t+2)}, {vr(t)}")
        for i in range(18):
            a(f"v_pk_fma_f32 {p(F+2*i)}, {p(F+2*i)}, {p(t)}, {p(t+2)} op_sel_hi:[1,0,0]")
        for i in range(18):
            a(f"v_cvt_pk_bf16_f32 {vr(out+i)}, {vr(F+2*i)}, {vr(F+2*i+1)}")

    def ln_packed(self, X, F, out, t):
        a = self.a
        a(f"v_mov_b32 {vr(t+6)}, 0x3f803f80")
        for k in range(4): a(f"v_mov_b32 {vr(t+k)}, 0")
        for i in range(18):
            a(f"v_dot2_f32_bf16 {vr(t+2*(i&1))}, {vr(X+i)}, {vr(t+6)}, {vr(t+2*(i&1))}")
            a(f"v_dot2_f32_bf16 {vr(t+1+2*(i&1))}, {vr(X+i)}, {vr(X+i)}, {vr(t+1+2*(i&1))}")
        for i in range(2):
            a(f"v_lshlrev_b32 {vr(F+2*i)}, 16, {vr(X+i)}\nv_and_b32 {vr(F+2*i+1)}, 0xffff0000, {vr(X+i)}")
        a(f"v_pk_add_f32 {vr(t,2)}, {vr(t,2)}, {vr(t+2,2)}")
        un = []
        for i in range(2, 18):
            un.append(f"v_lshlrev_b32 {vr(F+2*i)}, 16, {vr(X+i)}\nv_and_b32 {vr(F+2*i+1)}, 0xffff0000, {vr(X+i)}")
        sv = (a.bg, a.every, a.cnt, a.skip)
        n0 = len(a.lines)
        a.bg, a.every = [], 0
        self.ln_tail(F, out, t, True)
        tail = a.lines[n0:]
        del a.lines[n0:]
        a.bg, a.every, a.cnt, a.skip = sv
        k = next(i for i, l in enumerate(tail) if "v_pk_fma" in l)
        for i, l in enumerate(tail[:k]):
            if "s_nop" in l and un: continue_nop = True
            a(l)
            if un and not l.strip().startswith("s_nop"): a(un.pop(0))
        while un: a(un.pop(0))
        for l in tail[k:]: a(l)

    def ln_f32(self, F, out, t):
        a = self.a
        p = lambda r: vr(r, 2)
        a(f"v_pk_add_f32 {p(t)}, {p(F)}, {p(F+2)}\nv_pk_add_f32 {p(t+2)}, {p(F+4)}, {p(F+6)}")
        a(f"v_pk_mul_f32 {p(t+4)}, {p(F)}, {p(F)}\nv_pk_mul_f32 {p(t+6)}, {p(F+2)}, {p(F+2)}")
        for i in range(2, 18):
            if i >= 4: a(f"v_pk_add_f32 {p(t+2*(i&1))}, {p(t+2*(i&1))}, {p(F+2*i)}")
            a(f"v_pk_fma_f32 {p(t+4+2*(i&1))}, {p(F+2*i)}, {p(F+2*i)}, {p(t+4+2*(i&1))}")
        a(f"v_pk_add_f32 {p(t)}, {p(t)}, {p(t+2)}\nv_pk_add_f32 {p(t+4)}, {p(t+4)}, {p(t+6)}")
        a(f"v_add_f32 {vr(t)}, {vr(t)}, {vr(t+1)}\nv_add_f32 {vr(t+1)}, {vr(t+4)}, {vr(t+5)}")
        self.ln_tail(F, out, t, False)

    def gemm_u(self, AF, rf, Bs, ACC, afr, bfr, post, vm_items=(), other=(), lead=7, vm0=0, vmsp=4):
        a = self.a
        units = [(0, j) for j in range(4)] + [(1, j) for j in range(4)] + [(2, 0)]
        seq, dl = [], {}
        bs = lambda j, o_, n: self.rg((Bs[j][0], Bs[j][1] + o_), n)
        rem = lambda u: (f"v_mfma_f32_16x16x16_bf16 {vr(ACC+4*u,4)}, {rf(AF+18*units[u][0]+16,2)}, {bs(units[u][1],16,2)}, {vr(ACC+4*u,4)}", u)
        A = [afr(t) for t in range(3)]
        Bf = [bfr(j) for j in range(4)]

        def use(t, j, s, k):
            for x in (A[t][2 * s:2 * s + 2] if s < 4 else A[t][8:]) + ([Bf[j][s]] if Bf[j] else []): dl.setdefault(x, k)
        for g in range(4):
            for s in range(4):
                for u in range(3 * g, 3 * g + 3) if g < 3 else []:
                    t, j = units[u]
                    d = vr(ACC + 4 * u, 4)
                    use(t, j, s, len(seq))
                    seq.append((f"v_mfma_f32_16x16x32_bf16 {d}, {rf(AF+18*t+4*s,4)}, {bs(j,4*s,4)}, {'0' if s == 0 else d}", None))
                if s == 0 and g > 0:
                    for u in range(3 * g - 3, 3 * g):
                        use(units[u][0], units[u][1], 4, len(seq)); seq.append(rem(u))
        last = seq[-3:]; seq = seq[:-3]
        ds = sorted(dl.items(), key=lambda e: e[1]) + [(x, 99) for x in other]
        vm_items = list(vm_items)
        lastvm = vm0 - vmsp
        order, ready, q, done = [], [], [], 0

        def issue():
            x, k_ = ds.pop(0); a(x); order.append(k_)

        def wait(k):
            nonlocal done
            idx = [i_ for i_, k_ in enumerate(order) if k_ <= k]
            if idx and max(idx) + 1 > done:
                a(f"s_waitcnt lgkmcnt({min(15, len(order) - 1 - max(idx))})"); done = max(idx) + 1
        while ds and ds[0][1] < 6: issue()
        for k, (m, fin) in enumerate(seq):
            assert not ds or ds[0][1] > k, (k, ds[0])
            wait(k)
            a(m)
            for u_, kk in list(ready):
                if k - kk >= 4: q += post(u_); ready.remove((u_, kk))
            if fin is not None: ready.append((fin, k))
            due = sum(1 for x, k_ in ds if k_ <= k + lead)
            if due == 0 and vm_items and k >= lastvm + vmsp:
                a(vm_items.pop(0)); lastvm = k; continue
            cap = 2
            for _ in range(min(due, 3)): issue(); cap -= 1
            if cap == 2:
                if q and q[0].startswith("ds_"): a(q.pop(0)); order.append(99); cap -= 1
                elif ds: issue(); cap -= 1
            while cap > 0 and q and not q[0].startswith("ds_"):
                a(q.pop(0)); cap -= 1
        assert not ready
        while ds: issue()
        wait(98)
        for x in vm_items: a(x)
        for x in q[:4]: a(x)
        a(f"s_nop {max(0, 4 - len(q[:4]))}")
        for m, _ in last: a(m)
        for x in q[4:]: a(x)
        a(f"s_nop {max(0, 6 - len(q[4:]))}")
        for u in range(6, 9):
            for x in post(u): a(x)

    def gemm(self, reads, B, ACC, AF, late=(), at={}, per=2):
        a = self.a
        buf = lambda T: 18 * (T % 6)
        ng = 3 * (4 * per + 1)

        def grp(g):
            r = [reads(T, buf(T)) for T in range(3 * g, 3 * g + 3)]
            return [r[t][per * s + u] for s in range(4) for t in range(3) for u in range(per)] + [r[t][4 * per] for t in range(3)]
        rem = lambda T: f"v_mfma_f32_16x16x16_bf16 {vr(ACC+4*T,4)}, {ar(buf(T)+16,2)}, {vr(B+16,2)}, {vr(ACC+4*T,4)}"
        pend = grp(0) + grp(1) + grp(2) + list(late)
        issued = k = 0

        def issue(n):
            nonlocal issued
            for _ in range(n):
                if issued < len(pend): a(pend[issued]); issued += 1

        def mf(x):
            nonlocal k
            a(x); issue(per if per == 2 else (2 if k % 4 == 0 else 1))
            if k in at: a(at[k])
            k += 1
        issue(self.o.get('look', 12) if per == 2 else self.o.get('look1', 8))
        for g in range(3):
            for s in range(4):
                need = ng * g + 3 * per * (s + 1)
                a(f"s_waitcnt lgkmcnt({min(15, issued - need)})")
                for T in range(3 * g, 3 * g + 3):
                    d = vr(ACC + 4 * T, 4)
                    mf(f"v_mfma_f32_16x16x32_bf16 {d}, {ar(buf(T)+4*s,4)}, {vr(B+4*s,4)}, {'0' if s == 0 else d}")
                if s == 0 and g > 0:
                    for T in range(3 * g - 3, 3 * g): mf(rem(T))
                if g == 1 and s == 0: assert issued <= 2 * ng + 6 * per, "group 2 overwrites group 0 too early"
        issue(99)
        a(f"s_waitcnt lgkmcnt({len(late)})\ns_nop 2")
        for T in range(6, 9): a(rem(T))
        a("s_nop 7")

    def tr_reads(self, ad, rf=ar):
        def f(T, dst):
            out = []
            for s in range(4):
                for u in range(2):
                    out.append(f"ds_read_b64_tr_b16 {rf(dst+4*s+2*u,2)}, {vr(ad+u)} offset:{9216*s + 32*T}")
            out.append(f"ds_read_b64_tr_b16 {rf(dst+16,2)}, {vr(ad+2)} offset:{36864 + 32*T}")
            return out
        return f

    def row_reads(self, ad, sw=None):
        def f(T, dst):
            r = ad if sw is None or T == 8 else sw[T & 1]
            out = []
            for s in range(4):
                for u in range(2):
                    out.append(f"ds_read_b64 {ar(dst+4*s+2*u,2)}, {vr(r)} offset:{4864*T + 64*s + 32*u}")
            out.append(f"ds_read_b64 {ar(dst+16,2)}, {vr(r)} offset:{4864*T + 256}")
            return out
        return f

    def dma_rows(self, jobs, cpr, rstride, vo, vc, n_first, first_waves, lab):
        a = self.a
        mul = {18: 3641, 19: 3450}[cpr]
        dr, dc = 256 // cpr, 256 % cpr
        a(f"s_lshl_b32 {sr(S_T)}, {sr(S_W)}, 6")
        a(f"v_add_u32 {vr(vc)}, {sr(S_T)}, v0")
        a(f"v_mul_u32_u24 {vr(vo)}, {mul}, {vr(vc)}")
        a(f"v_lshrrev_b32 {vr(vo)}, 16, {vr(vo)}")
        a(f"v_mul_u32_u24 {vr(vc+1)}, {cpr}, {vr(vo)}")
        a(f"v_sub_u32 {vr(vc)}, {vr(vc)}, {vr(vc+1)}")
        a(f"v_mul_u32_u24 {vr(vo)}, {rstride}, {vr(vo)}")
        a(f"v_lshl_add_u32 {vr(vo)}, {vr(vc)}, 4, {vr(vo)}")
        a(f"s_lshl_b32 {sr(S_T)}, {sr(S_W)}, 10")
        a(f"v_mov_b32 {vr(vc+1)}, {rstride - 16*cpr}")
        for k in range(n_first):
            if k == n_first - 1:
                a(f"s_cmp_ge_u32 {sr(S_W)}, {first_waves}\ns_cbranch_scc1 {lab}")
            for srd, so, lb in jobs:
                a(f"s_add_u32 m0, {sr(S_T)}, {lb + 4096*k}")
                a("s_nop 0")
                a(f"buffer_load_dwordx4 {vr(vo)}, {sr(srd,4)}, {so} offen lds")
            if k < n_first - 1:
                a(f"v_add_u32 {vr(vc)}, {dc}, {vr(vc)}")
                a(f"v_cmp_le_u32 vcc, {cpr}, {vr(vc)}")
                a(f"v_add_u32 {vr(vo)}, {dr*rstride + 16*dc}, {vr(vo)}")
                a(f"v_subrev_u32 {vr(vc+2)}, {cpr}, {vr(vc)}")
                a(f"v_cndmask_b32 {vr(vc)}, {vr(vc)}, {vr(vc+2)}, vcc")
                a(f"v_cndmask_b32 {vr(vc+2)}, 0, {vr(vc+1)}, vcc")
                a(f"v_add_u32 {vr(vo)}, {vr(vo)}, {vr(vc+2)}")
        a.label(lab)

    def voff_table(self, dst, cpr, rstride, vc, step=256):
        a = self.a
        mul = {18: 29128, 19: 27595}[cpr]
        n = len(dst)
        a(f"s_mov_b32 {sr(S_T)}, {rstride - 16*cpr}")
        a(f"v_mul_u32_u24 {vr(dst[0])}, {mul}, {vr(vc)}")
        for k in range(1, n): a(f"v_add_u32 {vr(dst[k])}, {(step*k % cpr)*mul}, {vr(dst[0])}")
        for k in range(n): a(f"v_lshrrev_b32 {vr(dst[k])}, 19, {vr(dst[k])}")
        for k in range(n): a(f"v_mad_i32_i24 {vr(dst[k])}, {vr(dst[k])}, {sr(S_T)}, {vr(vc+1)}")

    def dma_lin(self, srd, soff, lb, v16, lab):
        a = self.a
        a(f"s_lshl_b32 {sr(S_T)}, {sr(S_W)}, 10")
        for k in range(11):
            if k == 10:
                a(f"s_cmp_ge_u32 {sr(S_W)}, 1\ns_cbranch_scc1 {lab}")
            a(f"s_add_u32 m0, {sr(S_T)}, {lb + 4096*k}")
            a(f"s_add_u32 {sr(S_T+1)}, {sr(S_T)}, {soff + 4096*k}")
            a(f"buffer_load_dwordx4 {vr(v16)}, {sr(srd,4)}, {sr(S_T+1)} offen lds")
        a.label(lab)

    def tr_addr(self, ad, base, swapped, t):
        a = self.a
        a(f"v_lshrrev_b32 {vr(t)}, 2, v0")
        a(f"v_mul_u32_u24 {vr(t)}, 288, {vr(t)}")
        a(f"v_and_b32 {vr(t+1)}, 3, v0")
        a(f"v_lshl_add_u32 {vr(t)}, {vr(t+1)}, 3, {vr(t)}")
        a(f"v_add_u32 {vr(ad+2)}, {base}, {vr(t)}")
        if swapped:
            a(f"v_bfe_u32 {vr(t)}, v0, 4, 1")
            a(f"v_mul_u32_u24 {vr(t)}, {16*288}, {vr(t)}")
            a(f"v_add_u32 {vr(ad)}, {vr(ad+2)}, {vr(t)}")
            a(f"v_sub_u32 {vr(ad+1)}, {vr(ad+2)}, {vr(t)}")
            a(f"v_add_u32 {vr(ad+1)}, {16*288}, {vr(ad+1)}")
        else:
            a(f"v_mov_b32 {vr(ad)}, {vr(ad+2)}")
            a(f"v_add_u32 {vr(ad+1)}, {16*288}, {vr(ad+2)}")

    def row_addr(self, ad, base, t):
        a = self.a
        a(f"v_and_b32 {vr(t)}, 15, v0")
        a(f"v_mul_u32_u24 {vr(t)}, 304, {vr(t)}")
        a(f"v_lshrrev_b32 {vr(t+1)}, 4, v0")
        a(f"v_lshl_add_u32 {vr(t)}, {vr(t+1)}, 3, {vr(t)}")
        a(f"v_add_u32 {vr(ad)}, {base}, {vr(t)}")

    def store_block(self, src, v16, v8, srd, soff, soff2, flags=""):
        a = self.a
        for s in range(4):
            a(f"buffer_store_dwordx4 {vr(src+4*s,4)}, {vr(v16)}, {sr(srd,4)}, {sr(soff)} offen offset:{1024*s} {flags}")
        a(f"buffer_store_dwordx2 {vr(src+16,2)}, {vr(v8)}, {sr(srd,4)}, {sr(soff2)} offen {flags}")

    def entry(self):
        a = self.a
        kernel_header(a, NAME)
        a(f"s_load_dwordx16 s[56:71], s[0:1], 0")
        a(f"s_load_dwordx8 s[72:79], s[0:1], 64")
        a(f"s_getpc_b64 {sr(S_W1,2)}")
        a.label("L_pf")
        hl = self.o.get("hlast", 0)
        assert not hl
        a(f"""s_cmp_ge_u32 s2, {NH}
        s_cbranch_scc1 L_main
        s_memrealtime s[4:5]
        s_waitcnt lgkmcnt(0)
        s_mov_b32 {sr(S_DB)}, s76
        s_mov_b32 {sr(S_DB+1)}, s77
        s_mov_b32 {sr(S_DB+2)}, 256
        s_mov_b32 {sr(S_DB+3)}, 0x20000
        v_lshlrev_b32 v1, 8, v0
        s_or_b32 s4, s4, 1
        v_mov_b32 v2, s4
        s_lshl_b32 s5, s2, 8
        buffer_store_dword v2, v1, {sr(S_DB,4)}, s5 offen sc1
        s_branch L_wfuse""")
        a.label("L_main")
        a(f"""s_mov_b32 {sr(S_W1+2)}, L_dummy-L_pf
        s_mov_b32 {sr(S_W1+3)}, 0x20000
        v_lshlrev_b32 v1, 4, v0
        s_bfe_u32 {sr(S_T)}, s2, 0x30003
        s_lshl_b32 {sr(S_T)}, {sr(S_T)}, 12
        buffer_load_dwordx4 v[252:255], v1, {sr(S_W1,4)}, 0 offen
        buffer_load_dwordx4 v[252:255], v1, {sr(S_W1,4)}, {sr(S_T)} offen
        s_cmp_ge_u32 s2, {NWG - NH * hl}
        s_cbranch_scc1 {"L_wfuse" if hl else "L_end"}""")
        if self.o.get("late"):
            m_, v_, n_ = self.o["late"]
            a(f"""s_and_b32 s3, s2, {m_}
            s_cmp_lg_u32 s3, {v_}
            s_cbranch_scc1 L_nl
            s_memrealtime s[4:5]
            s_waitcnt lgkmcnt(0)
            s_add_u32 s6, s4, {n_}
            L_lt:
            s_memrealtime s[4:5]
            s_waitcnt lgkmcnt(0)
            s_sub_u32 s7, s6, s4
            s_cmp_gt_i32 s7, 0
            s_cbranch_scc1 L_lt
            L_nl:""")
        if self.o.get("stamps"):
            a("s_memrealtime s[100:101]" if not self.o.get("cyc") else "s_memtime s[100:101]")
        self.mp = 2
        a(f"""v_lshrrev_b32 v1, 6, v0
        s_sub_u32 s2, s2, {0 if hl else NH}
        v_readfirstlane_b32 {sr(S_W)}, v1
        s_and_b32 {sr(S_H)}, s2, 1
        s_bfe_u32 {sr(S_B)}, s2, 0x10001
        s_lshr_b32 {sr(S_QB)}, s2, 2
        v_and_b32 v0, 63, v0
        v_lshlrev_b32 {vr(V_DMA)}, 4, v0""")

    def vm_since(self, mark):
        return sum(1 for l in self.a.lines[mark:] if l.strip().startswith("buffer_"))

    def phase_a(self):
        a, o = self.a, self.o
        XR, XF, XA, ACC, G_, PK = 16, 34, 146, 110, 16, 164
        B4, XD = 16, 88
        VS, VSW, VR4, MXA, MXR, L8, TRU, TRQ, TRQ8, RK, TM = 200, 204, 208, 212, 213, 214, 215, 218, 221, 224, 228
        VK, VU = list(range(182, 193)), list(range(193, 200)) + list(range(104, 108))
        AQ1 = 200
        t0, t1, t2 = 250, 251, 227
        T = S_T
        WV, W10, UOFF, M1, PUB, M3 = 72, 70, 71, 69, 68, 65
        a(f"""s_lshl_b32 {sr(T)}, {sr(S_QB)}, 1
        s_add_u32 {sr(S_TOWN)}, {sr(T)}, {sr(S_H)}
        s_xor_b32 {sr(S_TSND)}, {sr(S_TOWN)}, 1
        s_cmp_lt_u32 {sr(S_TOWN)}, {NT}
        s_cselect_b32 {sr(S_VAL)}, 1, 0
        s_cmp_lt_u32 {sr(S_W)}, 2
        s_cselect_b32 {sr(T+3)}, {sr(S_TSND)}, {sr(S_TOWN)}
        s_mul_i32 {sr(T)}, {sr(S_B)}, {NT}
        s_add_u32 {sr(S_TOWN)}, {sr(S_TOWN)}, {sr(T)}
        s_add_u32 {sr(S_TSND)}, {sr(S_TSND)}, {sr(T)}
        s_add_u32 {sr(T+1)}, {sr(T+3)}, {sr(T)}
        s_lshl_b32 {sr(T+1)}, {sr(T+1)}, 1
        s_and_b32 {sr(T+2)}, {sr(S_W)}, 1
        s_add_u32 {sr(T+2)}, {sr(T+1)}, {sr(T+2)}
        s_mul_i32 {sr(T+1)}, {sr(T+2)}, {16*288}
        s_mul_i32 {sr(S_LB)}, {sr(S_W)}, {BLK}
        s_add_u32 {sr(S_LB)}, {sr(S_LB)}, {L_XS}
        s_mov_b32 m0, {sr(S_LB)}
        s_mov_b32 {sr(S_X+2)}, 2304000
        s_mov_b32 {sr(S_X+3)}, 0x20000
        s_add_u32 {sr(S_CNT)}, {sr(T+1)}, 4096
        s_waitcnt lgkmcnt(0)
        s_mov_b32 {sr(S_X)}, s56
        s_mov_b32 {sr(S_X+1)}, s57""")
        for k in range(4): a(f"buffer_load_dwordx4 {vr(V_DMA)}, {sr(S_X,4)}, {sr(T+1)} offen offset:{1024*k} lds")
        a(f"s_add_u32 m0, {sr(S_LB)}, 4096\ns_mov_b32 exec_hi, 0\nbuffer_load_dwordx4 {vr(V_DMA)}, {sr(S_X,4)}, {sr(S_CNT)} offen lds\ns_mov_b32 exec_hi, -1")
        mx = len(a.lines)
        SQ, SK, SU = S_W2, S_W1, S_XA
        self.srd(SU, 66, 67, 82944)
        self.srd(SQ, 58, 59, 41472)
        self.srd(SK, 60, 61, 41472)
        a(f"s_lshr_b32 {sr(T)}, s2, 3\ns_lshl_b32 {sr(T)}, {sr(T)}, 12\ns_lshl_b32 {sr(W10)}, {sr(S_W)}, 10\ns_add_u32 {sr(T)}, {sr(T)}, {sr(W10)}")
        a(f"buffer_load_dwordx4 v[252:255], {vr(V_DMA)}, {sr(SU,4)}, {sr(T)} offen")
        for srd_, rot in ((SQ, 82), (SK, 41)):
            a(f"s_add_u32 {sr(T+1)}, {sr(T)}, {(128 - rot) * 1024}\ns_and_b32 {sr(T+1)}, {sr(T+1)}, {127 * 1024}")
            a(f"buffer_load_dwordx4 v[252:255], {vr(V_DMA)}, {sr(srd_,4)}, {sr(T+1)} offen")
        self.srd(S_OUT, 74, 75, 2304000)
        self.srd(S_DB, 76, 77, 256)
        self.srd(S_WS, 78, 79, WS_END)
        def tlb():
            a(f"v_lshlrev_b32 v249, 21, v0")
            for ch in o.get("tlbw", "wdo"): a(f"buffer_load_dword v252, v249, {sr(dict(w=S_WS, d=S_DB, o=S_OUT)[ch],4)}, 0 offen")
        if o.get("tlb", 0) == 1: tlb()
        if o.get("tlb", 3) == 3:
            a(f"""s_bfe_u32 {sr(T)}, s2, 0x30003
            s_lshl_b32 {sr(T)}, {sr(T)}, 21
            v_mov_b32 v249, 0
            s_cmp_lt_u32 {sr(T)}, {5 << 21}
            s_cbranch_scc0 L_tl1
            buffer_load_dword v252, v249, {sr(S_WS,4)}, {sr(T)} offen
            s_branch L_tl3
            L_tl1:
            s_sub_u32 {sr(T)}, {sr(T)}, {5 << 21}
            s_cmp_lt_u32 {sr(T)}, {2 << 21}
            s_cbranch_scc0 L_tl2
            buffer_load_dword v252, v249, {sr(S_OUT,4)}, {sr(T)} offen
            s_branch L_tl3
            L_tl2:
            v_lshlrev_b32 v249, {o.get("dsh", 6)}, v0
            buffer_load_dword v252, v249, {sr(S_DB,4)}, 0 offen {o.get("dfl", "")}
            L_tl3:""")
            self.vm_adj = -2
        if o.get("stamps"): a(f"s_mov_b64 {sr(S_ST,2)}, s[100:101]"); self.stnames.append("start"); self.nst = 1
        self.stamp("xiss")
        a(f"""s_cmp_lt_u32 {sr(T+3)}, {NT}
        s_cselect_b32 {sr(WV)}, 1, 0
        s_mov_b32 {sr(WV+1)}, {sr(T+2)}
        s_mul_i32 {sr(UOFF)}, {sr(S_H)}, 288
        s_cmp_eq_u32 {sr(S_W)}, 0
        s_cselect_b32 {sr(M1)}, 0, {L_DUMP}
        s_cmp_lt_u32 {sr(S_W)}, 3
        s_cselect_b32 {sr(M3)}, {sr(W10)}, {L_DUMP}""")
        half = lambda g_: "s_mov_b32 exec_hi, 0\n" + g_ + "\ns_mov_b32 exec_hi, -1"
        gu = [f"s_add_u32 m0, {sr(W10 if k < 10 else M1)}, {L_WU + 4096*k}\ns_add_u32 {sr(S_CNT)}, {sr(UOFF)}, {4096*k + 288*(256*k//18)}\nbuffer_load_dwordx4 {vr(VU[k])}, {sr(SU,4)}, {sr(S_CNT)} offen lds" for k in range(11)]
        gu[10] = half(gu[10])
        gq = [f"s_add_u32 m0, {sr(W10 if k < 10 else M1)}, {L_WQ + 4096*k}\ns_add_u32 {sr(S_CNT)}, {sr(W10)}, {4096*k}\nbuffer_load_dwordx4 {vr(V_DMA)}, {sr(SQ,4)}, {sr(S_CNT)} offen lds" for k in range(11)]
        gq[10] = half(gq[10])
        gk = [f"s_add_u32 m0, {sr(W10 if k < 10 else M3)}, {L_WK + 4096*k}\ns_mov_b32 {sr(S_CNT)}, {4096*k - 16*(256*k//19)}\nbuffer_load_dwordx4 {vr(VK[k])}, {sr(SK,4)}, {sr(S_CNT)} offen lds" for k in range(11)]
        a(f"s_lshl_b32 {sr(T)}, {sr(S_W)}, 6\nv_add_u32 {vr(t0)}, {sr(T)}, v0\nv_lshlrev_b32 {vr(t1)}, 4, {vr(t0)}")
        self.voff_table(VU, 18, 576, t0)
        npre = o.get("npre", 3)
        a.bg, a.every, a.cnt = gu[:npre], o.get("evpre", 40), 0
        self.voff_table(VK, 19, 288, t0)
        xa0, xa1, xa2 = TM, TM + 1, TM + 2
        a(f"""v_and_b32 {vr(t0)}, 15, v0
        v_lshrrev_b32 {vr(t1)}, 5, v0
        v_lshlrev_b32 {vr(t1)}, 3, {vr(t1)}
        v_xor_b32 {vr(t1)}, {vr(t0)}, {vr(t1)}
        v_lshlrev_b32 {vr(t1)}, 4, {vr(t1)}
        v_lshrrev_b32 {vr(t2)}, 4, v0
        v_lshl_add_u32 {vr(V_KA)}, {vr(t2)}, 9, {vr(t1)}
        v_lshrrev_b32 {vr(t1)}, 3, {vr(t0)}
        v_lshlrev_b32 {vr(t1)}, 1, {vr(t1)}
        v_xor_b32 {vr(t1)}, {vr(t2)}, {vr(t1)}
        v_lshl_add_u32 {vr(t1)}, {vr(t0)}, 2, {vr(t1)}
        v_lshlrev_b32 {vr(V_KA+1)}, 3, {vr(t1)}
        v_lshlrev_b32 {vr(L8)}, 3, v0
        v_lshlrev_b32 {vr(MXR)}, 4, {vr(t0)}
        v_add_u32 {vr(MXR)}, {L_MX}, {vr(MXR)}
        v_add_u32 {vr(MXA)}, {sr(S_W)}, {vr(t2)}
        v_and_b32 {vr(MXA)}, 3, {vr(MXA)}
        v_lshl_add_u32 {vr(MXA)}, {vr(MXA)}, 8, {vr(MXR)}
        s_lshl_b32 {sr(T)}, {sr(S_W)}, 2
        v_add_u32 {vr(MXA)}, {sr(T)}, {vr(MXA)}
        v_mul_u32_u24 {vr(xa2)}, 288, {vr(t0)}
        v_lshl_add_u32 {vr(xa2)}, {vr(t2)}, 3, {vr(xa2)}
        v_add_u32 {vr(xa2)}, {sr(S_LB)}, {vr(xa2)}
        v_and_b32 {vr(t1)}, 1, {vr(t2)}
        v_lshlrev_b32 {vr(t1)}, 5, {vr(t1)}
        v_add_u32 {vr(xa0)}, {vr(xa2)}, {vr(t1)}
        v_xor_b32 {vr(t1)}, 32, {vr(t1)}
        v_add_u32 {vr(xa1)}, {vr(xa2)}, {vr(t1)}
        s_mul_i32 {sr(S_LB)}, {sr(S_W)}, {TILE}
        v_lshrrev_b32 {vr(t0)}, 2, v0
        v_bfe_u32 {vr(t1)}, v0, 1, 1
        v_lshlrev_b32 {vr(t1)}, 3, {vr(t1)}
        v_xor_b32 {vr(t1)}, {vr(t0)}, {vr(t1)}
        v_lshlrev_b32 {vr(t1)}, 4, {vr(t1)}
        v_and_b32 {vr(t2)}, 3, v0
        v_lshl_add_u32 {vr(t1)}, {vr(t2)}, 9, {vr(t1)}
        v_and_b32 {vr(V_VA)}, 1, v0
        v_lshl_add_u32 {vr(t1)}, {vr(V_VA)}, 3, {vr(t1)}
        s_and_b32 {sr(T)}, {sr(S_W)}, 1
        s_lshl_b32 {sr(T)}, {sr(T)}, 12
        s_add_u32 {sr(T+1)}, {sr(T)}, {sr(S_LB)}
        s_xor_b32 {sr(T)}, {sr(T)}, 4096
        s_add_u32 {sr(T)}, {sr(T)}, {sr(S_LB)}
        v_add_u32 {vr(V_VA)}, {sr(T)}, {vr(t1)}
        v_add_u32 {vr(V_VB)}, {sr(T+1)}, {vr(t1)}
        v_xor_b32 {vr(V_VA+1)}, 8, {vr(V_VA)}
        v_xor_b32 {vr(V_VB+1)}, 8, {vr(V_VB)}
        v_lshrrev_b32 {vr(t1)}, 5, v0
        v_lshlrev_b32 {vr(t1)}, 1, {vr(t1)}
        v_xor_b32 {vr(t1)}, {vr(t2)}, {vr(t1)}
        v_lshl_add_u32 {vr(t1)}, {vr(t0)}, 2, {vr(t1)}
        v_lshlrev_b32 {vr(t1)}, 3, {vr(t1)}
        v_add_u32 {vr(V_VR)}, {sr(S_LB)}, {vr(t1)}
        v_add_u32 {vr(V_DMA+1)}, 4096, {vr(V_DMA)}
        v_add_u32 {vr(V_DMA+2)}, 8192, {vr(V_DMA)}""")
        self.tr_addr(TRU, L_WU, True, t0)
        a(f"s_lshl_b32 {sr(T)}, {sr(S_W)}, 6\ns_add_u32 {sr(T)}, {sr(T)}, {L_WQ - L_WU}")
        for k in range(3):
            a(f"v_add_u32 {vr(TRQ+k)}, {sr(T)}, {vr(TRU+k)}\nv_add_u32 {vr(TRQ8+k)}, {L_WQ - L_WU + 256}, {vr(TRU+k)}")
        self.row_addr(RK + 2, L_WK + 8 * 4864, t0)
        a(f"""s_mul_i32 {sr(T)}, {sr(S_W)}, {2*4864}
        s_sub_u32 {sr(T)}, {sr(T)}, {8*4864}
        v_add_u32 {vr(t1)}, {sr(T)}, {vr(RK+2)}
        v_bfe_u32 {vr(t0)}, v0, 2, 1
        v_mul_u32_u24 {vr(t0)}, 4864, {vr(t0)}
        v_add_u32 {vr(RK)}, {vr(t1)}, {vr(t0)}
        v_sub_u32 {vr(RK+1)}, {vr(t1)}, {vr(t0)}""")
        for j in range(4):
            a(f"""s_add_u32 {sr(T)}, {sr(S_W)}, {j}
            s_and_b32 {sr(T)}, {sr(T)}, 3
            s_lshl_b32 {sr(T+1)}, {sr(T)}, 12
            s_add_u32 {sr(T+1)}, {sr(T+1)}, {L_XX}
            v_add_u32 {vr(VS+j)}, {sr(T+1)}, {vr(V_DMA)}
            s_lshl_b32 {sr(T+1)}, {sr(T)}, 9
            s_add_u32 {sr(T+1)}, {sr(T+1)}, {L_XR}
            v_add_u32 {vr(VR4+j)}, {sr(T+1)}, {vr(L8)}
            v_add_u32 {vr(VSW+j)}, {sr(W10)}, {vr(VS+j)}""")
        a(f"""s_sub_u32 {sr(T+2)}, 63, {sr(S_H)}
        s_add_u32 {sr(T+3)}, {sr(S_W)}, 60
        s_cmp_ge_u32 {sr(T+3)}, {sr(T+2)}
        s_cselect_b32 {sr(S_DUM)}, 4, 99
        s_mov_b32 {sr(S_REDO)}, 0
        s_mov_b32 {sr(S_TOFF)}, {sr(S_LB)}
        s_lshl_b32 {sr(PUB)}, {sr(S_TOWN)}, 8
        s_add_u32 {sr(PUB)}, {sr(PUB)}, {WS_F}
        s_cmp_eq_u32 {sr(S_W)}, 2
        s_cselect_b32 {sr(T)}, {sr(S_VAL)}, 0
        s_cmp_eq_u32 {sr(T)}, 1
        s_cselect_b32 {sr(PUB)}, {sr(PUB)}, 0x40000000
        s_lshl_b32 {sr(S_FB)}, s2, 8
        s_add_u32 {sr(S_FB)}, {sr(S_FB)}, {WS_F + 250*256}
        s_mul_i32 {sr(T)}, {sr(S_H)}, 1792
        s_sub_u32 {sr(T)}, {sr(T)}, 768
        s_mul_i32 {sr(T+1)}, {sr(S_H)}, 62
        s_cmp_eq_u32 {sr(S_QB)}, {sr(T+1)}
        s_cselect_b32 {sr(T)}, 0, {sr(T)}
        v_mov_b32 {vr(self.VPL)}, 0x40000000
        s_xor_b32 {sr(T+1)}, {sr(S_FB)}, 256
        s_add_u32 {sr(T)}, {sr(T)}, {sr(S_FB)}
        v_writelane_b32 {vr(self.VPL)}, {sr(S_FB)}, 0
        v_writelane_b32 {vr(self.VPL)}, {sr(T+1)}, 1
        v_writelane_b32 {vr(self.VPL)}, {sr(T)}, 2
        s_mov_b32 {sr(T)}, {WS_F + 502*256}
        s_mov_b32 {sr(T+1)}, {WS_F + 503*256}
        v_writelane_b32 {vr(self.VPL)}, {sr(T)}, 3
        v_writelane_b32 {vr(self.VPL)}, {sr(T+1)}, 4
        s_sub_u32 {sr(S_FB)}, {sr(S_FB)}, {L_PC}""")
        a.flush()
        if o.get("tlb", 0) == 2: tlb()
        self.stamp("pre")
        if o.get("es", 0) == 0: self.epi_setup()
        self.stamp("es")
        nx = self.vm_since(mx) + getattr(self, "vm_adj", 0)
        if o.get("touch", 1):
            a(f"""s_mov_b64 exec, 0
            s_cmp_eq_u32 {sr(S_W)}, 0
            s_cbranch_scc1 L_tr
            s_cmp_eq_u32 {sr(S_W)}, 1
            s_cbranch_scc1 L_t0
            s_cmp_eq_u32 {sr(S_W)}, 2
            s_cbranch_scc1 L_t1
            s_branch L_t2""")
            self.rare()
            a.raw(".p2align 12")
            a.label("L_tr")
            a("s_mov_b64 exec, -1")
        nlate = o.get("nlate", 0)
        for g_ in gu[npre:npre + nlate]: a(g_)
        a(f"s_waitcnt vmcnt({nx + nlate})")
        self.stamp("xarr")
        for s in range(4):
            a(f"ds_read_b64 {vr(XR+4*s,2)}, {vr(xa0)} offset:{64*s}\nds_read_b64 {vr(XR+4*s+2,2)}, {vr(xa1)} offset:{64*s}")
        a(f"ds_read_b64 {vr(XR+16,2)}, {vr(xa2)} offset:256")
        a(f"""s_and_b32 {sr(T)}, {sr(S_W)}, 1
        s_mul_i32 {sr(T+2)}, {sr(S_TOWN)}, {TILE}
        s_cmp_eq_u32 {sr(S_VAL)}, 1
        s_cselect_b32 {sr(T+2)}, {sr(T+2)}, 0x40000000
        s_lshl_b32 {sr(T+3)}, {sr(T)}, 8
        s_add_u32 {sr(T+3)}, {sr(T+3)}, {sr(T+2)}
        s_add_u32 {sr(T+4)}, {sr(T+3)}, 4096
        s_lshl_b32 {sr(T+5)}, {sr(T)}, 9
        s_add_u32 {sr(T+5)}, {sr(T+5)}, {sr(T+2)}
        s_add_u32 {sr(T+5)}, {sr(T+5)}, 8192
        s_waitcnt lgkmcnt(0)""")
        wl = gq + gk
        a.bg, a.every, a.cnt = gu[npre + nlate:] + [wl.pop(0) for _ in range(o.get("nql", 4))], o.get("evln", 8), 0
        self.ln_packed(XR, XF, XA, TM)
        a.flush()
        self.stamp("ln")
        a(f"s_cmp_lt_u32 {sr(S_W)}, 2\ns_cbranch_scc1 L_nop")
        for s in range(4):
            a(f"buffer_store_dwordx4 {vr(XA+4*s,4)}, {vr(V_KA)}, {sr(S_WS,4)}, {sr(T+3+(s>>1))} offen offset:{2048*(s&1)} sc1")
        a(f"buffer_store_dwordx2 {vr(XA+16,2)}, {vr(V_KA+1)}, {sr(S_WS,4)}, {sr(T+5)} offen sc1\ns_waitcnt vmcnt({5 + o.get('nql', 4)})\ns_branch L_bar1")
        a.label("L_nop")
        if o.get("touch", 1):
            a(f"s_mov_b64 exec, 0\ns_cmp_eq_u32 {sr(S_W)}, 0\ns_cbranch_scc1 L_t3\ns_branch L_t4")
            a.label("L_tr2")
            a("s_mov_b64 exec, -1")
        a(f"s_waitcnt vmcnt({o.get('nql', 4)})")
        a.label("L_bar1")
        self.stamp("pub")
        xw = [f"ds_write_b128 {vr(VS)}, {vr(XA+4*s,4)} offset:{1024*s}" for s in range(4)] + [f"ds_write_b64 {vr(VR4)}, {vr(XA+16,2)}"]
        self.stamp("tch")
        PA = 249
        a(f"""v_add_u32 {vr(V_KA)}, {sr(S_LB)}, {vr(V_KA)}
        v_add_u32 {vr(V_KA+1)}, {sr(S_LB)}, {vr(V_KA+1)}
        s_mul_i32 {sr(T)}, {sr(S_B)}, {NT}
        s_mul_i32 {sr(T+1)}, {sr(S_H)}, 63
        s_add_u32 {sr(T)}, {sr(T)}, {sr(T+1)}
        s_lshl_b32 {sr(T)}, {sr(T)}, 8
        s_add_u32 {sr(T)}, {sr(T)}, {WS_F}
        s_cmp_eq_u32 {sr(S_W)}, 0
        s_cselect_b32 {sr(T)}, {sr(T)}, 0x40000000
        v_lshl_add_u32 {vr(PA)}, v0, 8, {sr(T)}
        {self.xa_srd()}
        s_waitcnt lgkmcnt(0)""")
        self.stamp("w1")
        a("s_barrier")
        self.stamp("bar1")
        poll = lambda r: f"buffer_load_dword {vr(r)}, {vr(PA)}, {sr(S_WS,4)}, 0 offen sc1"

        def gate(lab, r, mask, younger):
            a(f"s_mov_b32 {sr(T+2)}, 0\ns_waitcnt vmcnt({younger})")
            a.label(lab)
            a(f"""v_cmp_ne_u32 vcc, {sr(S_N)}, {vr(r)}
            s_add_u32 {sr(T+2)}, {sr(T+2)}, 1
            s_and_b64 vcc, vcc, {mask}
            s_cbranch_scc0 {lab}_ok
            s_sleep {o.get("slp", 4)}
            {poll(r)}
            s_waitcnt vmcnt(0)
            s_cmp_lt_u32 {sr(T+2)}, 0x40000
            s_cbranch_scc1 {lab}""")
            a.label(lab + "_ok")

        H, G_, UG, MS, CL = 16, 52, 208, 110, 104
        nup = o.get("nup", 12)
        at = {o.get("u0", 6) + o.get("usp", 3) * i: wl.pop(0) for i in range(nup)}
        for i in range(5): at[i] = xw[i]
        tagld = f"buffer_load_dword v253, off, {sr(S_DB,4)}, 0 sc1"
        at[o.get("tgp", 5)] = tagld
        if o.get("es", 0) == 1:
            n_ = len(a.lines); self.epi_setup()
            el = [l.strip() for l in a.lines[n_:]]; del a.lines[n_:]
            for k in range(5, 42):
                if k in at: continue
                c_ = 0
                while el and c_ < o.get("esn", 2):
                    x = el.pop(0); at[k] = at.get(k, "") + x + "\n"; c_ += 1 if x.startswith("v_") else 0.5
            self.es_left = el
        self.gemm(self.tr_reads(TRU), XA, H, None, at=at)
        if o.get("es", 0) == 1:
            for x in self.es_left: a(x)
        self.stamp("up")
        last = lambda srd: max(i for i, l in enumerate(a.lines) if l.strip().startswith("buffer_load") and sr(srd, 4) in l) + 1
        assert not any(sr(SQ, 4) in x for x in wl)
        a(f"v_lshlrev_b32 {vr(t0)}, 2, v0\ns_mov_b32 {sr(T+2)}, 0\ns_waitcnt vmcnt({self.vm_since(last(SQ))}) lgkmcnt(0)")
        a.label("L_tag")
        a(f"""v_readfirstlane_b32 {sr(S_N)}, v253
        s_add_u32 {sr(T+2)}, {sr(T+2)}, 1
        s_cmp_lg_u32 {sr(S_N)}, 0
        s_cbranch_scc1 L_tag_ok
        {tagld}
        s_waitcnt vmcnt(0)
        s_cmp_lt_u32 {sr(T+2)}, 0x40000
        s_cbranch_scc1 L_tag""")
        a.label("L_tag_ok")
        m_g = len(a.lines)
        a(f"v_mov_b32 {vr(t1)}, {sr(S_N)}\ns_barrier\nbuffer_store_dword {vr(t1)}, {vr(t0)}, {sr(S_WS,4)}, {sr(PUB)} offen sc1")
        self.stamp("barG")
        if o.get("atw"):
            a("s_waitcnt vmcnt(0)")
            self.stamp("ack")
        if o.get("census"):
            k_ = S_ST + 2 * self.stnames.index(o["census"][0])
            a(f"s_waitcnt lgkmcnt(0)\nv_mov_b32 v252, {sr(k_)}\ns_lshl_b32 {sr(T)}, s2, 2\ns_add_u32 {sr(T)}, {sr(T)}, {WS_DBG}\nv_mov_b32 v253, 0\nbuffer_store_dword v252, v253, {sr(S_WS,4)}, {sr(T)} offen sc1")

        def a_tr(t):
            ad, off = (TRQ, 32 * t) if t < 2 else (TRQ8, 0)
            return [f"ds_read_b64_tr_b16 {ar(AQ1+18*t+4*s+2*u,2)}, {vr(ad+u)} offset:{9216*s + off}" for s in range(4) for u in range(2)] + \
                   [f"ds_read_b64_tr_b16 {ar(AQ1+18*t+16,2)}, {vr(ad+2)} offset:{36864 + off}"]

        def a_row(t):
            off = 4864 * t if t < 2 else 0
            return [f"ds_read_b64 {ar(A_Q+18*t+4*s+2*u,2)}, {vr(RK+t)} offset:{off + 64*s + 32*u}" for s in range(4) for u in range(2)] + \
                   [f"ds_read_b64 {ar(A_Q+18*t+16,2)}, {vr(RK+t)} offset:{off + 256}"]
        bq = lambda j, d=0: [f"ds_read_b128 {ar(18*j+4*s,4)}, {vr(VS+j)} offset:{d + 1024*s}" for s in range(4)] + [f"ds_read_b64 {ar(18*j+16,2)}, {vr(VR4+j)} offset:{d}"]

        def post(u, scale, d):
            L = [f"v_mul_f32 {vr(ACC+4*u+i)}, {sr(T+4)}, {vr(ACC+4*u+i)}" for i in range(4)] if scale else []
            L += [f"v_cvt_pk_bf16_f32 {vr(PK + (4*(u&3) + 2*(u>>2) if u < 8 else 16) + h)}, {vr(ACC+4*u+2*h)}, {vr(ACC+4*u+2*h+1)}" for h in range(2)]
            if 4 <= u < 8: L.append(f"ds_write_b128 {vr(VSW+u-4)}, {vr(PK+4*(u-4),4)} offset:{d}")
            if u == 8: L.append(f"ds_write_b64 {vr(VR4)}, {vr(PK+16,2)} offset:{d}")
            return L
        xd = [f"ds_read_b128 {vr(XD+4*j,4)}, {vr(VSW+j)}" for j in range(4)]
        self.gemm_u(AQ1, ar, [("v", XA), ("a", 18), ("a", 36), ("a", 54)], ACC, a_tr, lambda j: bq(j) if j else None, lambda u: post(u, False, L_QD),
                    vm_items=wl, other=xd, vmsp=o.get("vmsp", 3))
        self.stamp("g1")
        assert last(SK) > m_g
        for i in range(4): a(f"v_mov_b32 {vr(CL+i)}, -1")
        a(f"s_lshl2_add_u32 {sr(T+2)}, s2, {sr(S_W)}\ns_mul_i32 {sr(T+2)}, {sr(T+2)}, 2560\ns_add_u32 {sr(T+2)}, {sr(T+2)}, {WS_IB}")
        a(f"s_mov_b32 {sr(T+4)}, {f32(LOG2E / 12.0)}\ns_waitcnt vmcnt({self.vm_since(last(SK))}) lgkmcnt(0)\ns_barrier")
        clr = [f"buffer_store_dwordx4 {vr(CL,4)}, {vr(V_DMA)}, {sr(S_WS,4)}, {sr(T+2)} offen sc1",
               f"buffer_store_dwordx4 {vr(CL,4)}, {vr(V_DMA)}, {sr(S_WS,4)}, {sr(T+2)} offen offset:1024 sc1",
               f"buffer_store_dwordx2 {vr(CL,2)}, {vr(L8)}, {sr(S_WS,4)}, {sr(T+2)} offen offset:2048 sc1"]
        self.stamp("bar2")
        self.gemm_u(A_Q, ar, [("a", 18 * j) for j in range(4)], ACC, a_row, lambda j: bq(j, L_QD), lambda u: post(u, True, 0), vm_items=[poll(252)] + clr, vm0=o.get("pg", 12), vmsp=o.get("csp", 8))
        self.stamp("g2")
        p = lambda r: vr(r, 2)
        CC = TM
        for j in range(4): a(f"v_dot2_f32_bf16 {vr(CC+j)}, {vr(PK+4*j)}, {vr(XD+4*j)}, 0")
        for i in range(2): a(f"v_dot2_f32_bf16 {vr(CC)}, {vr(PK+16+i)}, {vr(XA+16+i)}, {vr(CC)}")
        for i in range(1, 4):
            for j in range(4): a(f"v_dot2_f32_bf16 {vr(CC+j)}, {vr(PK+4*j+i)}, {vr(XD+4*j+i)}, {vr(CC+j)}")
        QE = TRQ
        a(f"""s_xor_b32 {sr(T+1)}, {sr(self.NB)}, 1
        v_add_u32 {vr(t0)}, {L_XX}, {vr(V_DMA)}
        v_lshl_add_u32 {vr(QE)}, {sr(T+1)}, 12, {vr(t0)}
        v_lshl_add_u32 {vr(QE+1)}, {sr(self.NB)}, 12, {vr(t0)}""")
        self.treduce(CC)
        a(f"""ds_write_b32 {vr(MXA)}, {vr(CC)}
        v_add_u32 {vr(t0)}, {L_XR}, {vr(L8)}
        v_lshl_add_u32 {vr(QE+2)}, {sr(T+1)}, 9, {vr(t0)}
        v_lshl_add_u32 {vr(QE+3)}, {sr(self.NB)}, 9, {vr(t0)}
        v_lshl_add_u32 {vr(QE+4)}, {sr(T+1)}, 8, {vr(MXR)}
        v_lshl_add_u32 {vr(QE+5)}, {sr(self.NB)}, 8, {vr(MXR)}
        s_sub_u32 {sr(T+5)}, 63, {sr(S_H)}
        s_bfm_b64 {sr(T+8,2)}, {sr(T+5)}, 0
        s_lshr_b32 {sr(T+6)}, s2, 3
        s_lshl_b32 {sr(T+6)}, {sr(T+6)}, 12
        s_add_u32 {sr(T+6)}, {sr(T+6)}, {sr(W10)}
        s_cmp_lg_u32 {sr(S_W)}, 0
        s_cbranch_scc1 L_ga_ok""")
        gate("L_ga", 252, sr(T + 8, 2), 3)
        a("s_waitcnt lgkmcnt(0)\ns_barrier")
        self.stamp("bar3")
        c1 = -2.0 * math.sqrt(2.0 / math.pi) * LOG2E
        c2 = c1 * 0.044715
        qrd = [f"ds_read_b128 {vr(MS+4*qb,4)}, {vr(QE+4+(qb&1))} offset:{512*(qb>>1)}" for qb in range(4)]
        for qb in range(4):
            qrd += [f"ds_read_b128 {ar(A_Q+18*qb+4*s,4)}, {vr(QE+(qb&1))} offset:{8192*(qb>>1) + 1024*s}" for s in range(4)]
            qrd.append(f"ds_read_b64 {ar(A_Q+18*qb+16,2)}, {vr(QE+2+(qb&1))} offset:{1024*(qb>>1)}")
        tg = self.tile_groups(0) + self.tile_groups(1) + self.tile_groups(2)[:8]
        n0 = o.get("n0", 3)
        for k in range(o.get("tpf", 0)):
            a(f"s_add_u32 {sr(T+7)}, {sr(T+6)}, {o.get('tpf0', 4*TILE) + 131072*k}\nbuffer_load_dwordx4 v[252:255], {vr(V_DMA)}, {sr(S_XA,4)}, {sr(T+7)} offen")
        for x in tg[:n0]: a(x)
        a(f"v_mov_b32 {vr(CC)}, {f32(c1)}\nv_mov_b32 {vr(CC+2)}, {f32(c2)}\nv_mov_b32 {vr(CC+4)}, 1.0")
        nq1, nt1 = o.get("nq1", 8), o.get("nt1", 5)
        bgl = []
        for i in range(max(nq1 // 2, nt1)):
            if 2 * i < nq1: bgl.append(qrd[2 * i] + "\n" + qrd[2 * i + 1])
            if i < nt1: bgl.append(tg[n0 + i])
        tg, qrd = tg[n0 + nt1:], qrd[nq1:]
        a.bg, a.every, a.cnt = bgl, 54 // (len(bgl) + 1), 0
        for i in range(18): a(f"v_pk_mul_f32 {p(G_+2*i)}, {p(H+2*i)}, {p(H+2*i)}")
        for i in range(18): a(f"v_pk_fma_f32 {p(G_+2*i)}, {p(G_+2*i)}, {p(CC+2)}, {p(CC)} op_sel_hi:[1,0,0]")
        for i in range(18): a(f"v_pk_mul_f32 {p(G_+2*i)}, {p(G_+2*i)}, {p(H+2*i)}")
        a.flush()
        self.stamp("ge1")
        esp = o.get("esp", 4)
        for i in range(36):
            a(f"v_exp_f32 {vr(G_+i)}, {vr(G_+i)}")
            if i % esp == 1 and tg: a(tg.pop(0))
            if i % 8 == 3 and qrd: a(qrd.pop(0)); a(qrd.pop(0))
        self.stamp("ge2")
        for i in range(18): a(f"v_pk_add_f32 {p(G_+2*i)}, {p(G_+2*i)}, {p(CC+4)} op_sel_hi:[1,0]")
        for i in range(36):
            a(f"v_rcp_f32 {vr(G_+i)}, {vr(G_+i)}")
            if i % esp == 1 and tg: a(tg.pop(0))
            if i % 8 == 3 and qrd: a(qrd.pop(0)); a(qrd.pop(0))
        assert not tg and not qrd
        idx = [i for i, l in enumerate(a.lines) if l.strip().startswith("buffer_load") and l.rstrip().endswith("lds")]
        m_t0, m_t1 = idx[-18] + 1, idx[-9] + 1
        for i in range(18): a(f"v_pk_mul_f32 {p(H+2*i)}, {p(G_+2*i)}, {p(H+2*i)}")
        a(f"""s_mul_i32 {sr(T)}, {sr(WV+1)}, {BLK}
        s_cmp_eq_u32 {sr(S_H)}, 1
        s_cbranch_scc1 L_ln2
        s_add_u32 {sr(T)}, {sr(T)}, {WS_U}""")
        for i in range(18): a(f"v_cvt_pk_bf16_f32 {vr(UG+i)}, {vr(H+2*i)}, {vr(H+2*i+1)}")
        a("s_branch L_ug")
        a.label("L_ln2")
        a(f"s_add_u32 {sr(T)}, {sr(T)}, {WS_G}")
        self.ln_f32(H, UG, TM)
        a.label("L_ug")
        self.stamp("ge3")
        a(f"""s_cmp_eq_u32 {sr(WV)}, 1
        s_cselect_b32 {sr(S_UG)}, {sr(T)}, 0x40000000
        s_waitcnt vmcnt({self.vm_since(m_t0)}) lgkmcnt(0)""")
        for x in self.k_reads(0, V_V): a(x)
        self.ugs = [f"buffer_store_dwordx4 {vr(UG+4*s,4)}, {vr(V_DMA)}, {sr(S_WS,4)}, {sr(S_UG)} offen offset:{1024*s} sc1" for s in range(4)]
        self.ugs.append(f"buffer_store_dwordx2 {vr(UG+16,2)}, {vr(self.VL8)}, {sr(S_WS,4)}, {sr(S_UG)} offen sc1")
        for qb in range(4): a(f"v_pk_add_f32 {p(MS+4*qb)}, {p(MS+4*qb)}, {p(MS+4*qb+2)} neg_lo:[1,1] neg_hi:[1,1]")
        for qb in range(4): a(f"v_add_f32 {vr(self.MK+qb)}, {vr(MS+4*qb)}, {vr(MS+4*qb+1)}")
        a(f"v_lshlrev_b32 {vr(t1)}, 8, v0\nv_lshlrev_b32 v231, 2, v0\nv_add_u32 v231, {L_PC}, v231\nds_write_b32 v231, {vr(t1)}")
        self.loop_init(False)
        self.n_t1 = self.vm_since(m_t1)
        self.stamp("ug")

    def loop_init(self, part):
        a = self.a
        if part:
            for qb in range(4):
                for i in range(4): a(f"v_mov_b32 {vr(V_CI+4*qb+i)}, {vr(self.MK+qb)}")
            return
        for k in range(7): a(f"v_add_u32 {vr(V_HI+k)}, {2*SLOT}, {vr(V_KA+k if k < 5 else V_VB+k-5)}")
        a(f"v_add_u32 {vr(self.VS0)}, {sr(S_LB)}, {vr(V_DMA)}\nv_add_u32 {vr(self.VS0R)}, {sr(S_LB)}, {vr(self.VL8)}\ns_mov_b32 {sr(S_CNT)}, 0\ns_mov_b32 {sr(S_INC)}, {4*TILE}")
        for i in range(4): a(f"v_mov_b32 {vr(V_L+i)}, 0")
        a(f"v_mov_b32 v226, {sr(S_N)}\nv_mov_b32 {vr(self.VPL+1)}, 1\nv_lshlrev_b32 v231, 2, v0\nv_add_u32 v231, {L_PC}, v231")

    def head(self):
        a, o = self.a, self.o
        a.label("L_go")
        self.loop_init(True)
        a("s_waitcnt lgkmcnt(0)\ns_barrier")
        self.stamp("bar5")
        base = self.qk_mfmas(0)
        pick = lambda s_, kb, qb: base[8 * s_ + 4 * kb + qb].replace(vr(V_K + 8 * s_ + 4 * kb, 4) + ",", vr(V_V + 8 * s_ + 4 * kb, 4) + ",").replace(vr(V_K + 32 + 2 * kb, 2) + ",", vr(V_V + 32 + 2 * kb, 2) + ",")
        mf, fin = [], {}
        for qb, s_ in [(0, 0), (0, 1), (0, 2), (0, 3), (1, 0), (1, 1), (0, 4), (1, 2), (1, 3), (2, 0), (2, 1), (1, 4), (2, 2), (2, 3), (3, 0), (3, 1), (2, 4),
                       (3, 2), (3, 3), (3, 4)]:
            for kb in range(2):
                fin[qb, kb] = len(mf)
                mf.append(("s_nop 3\n" if (qb, s_, kb) == (3, 4, 0) else "") + pick(s_, kb, qb))
        enew = [e[1] for g in range(40, 76) for e in self.gaps[g] if e[0] == "E"]
        items = self.e_items(0, enew, lambda qb, j: 0, lambda qb: 999)
        for it, e in zip(items, enew):
            if e[0] == "e": it["am"] = fin[e[1], e[2] // 4]
        dm = []
        for k, (slot, j) in enumerate([(2, 8)] + [(3, j) for j in range(9)]):
            g_ = 1 + o.get("hsp", 4) * k
            if j % 4 == 0: dm.append(dict(t=f"s_add_u32 m0, {sr(S_LB)}, {slot*SLOT + 4096*(j//4)}", c=0, lo=g_ - 1, hi=g_ - 1))
            dm.append(dict(t=f"buffer_load_dwordx4 {vr(V_DMA + j//4)}, {sr(S_XA,4)}, {sr(S_TOFF)} offen offset:{1024*(j%4)} lds", c=8, lo=g_, hi=g_))
            if j == 8: dm.append(dict(t=f"s_add_u32 {sr(S_TOFF)}, {sr(S_TOFF)}, {4*TILE}", c=0, lo=g_ + 1, hi=g_ + 1))
        nh = o.get("ugh", 2)
        for k in range(nh): dm.append(dict(t=self.ugs[k], c=8, lo=3 + 16 * k, hi=3 + 16 * k))
        a(f"s_waitcnt vmcnt({self.n_t1})")
        left = self.pack(mf, items + dm + [dict(t=x, c=4, lo=i // 2, nds=2) for i, x in enumerate(self.k_reads(1))])
        print("head overflow", self.over, "left", len(left))
        left.sort(key=lambda x: not x.startswith("v_exp"))
        last = a.lines[-1].strip()
        for x in left:
            if last.startswith("v_exp") and not x.startswith("v_exp") and (last.split()[1].rstrip(",") + ",") in (x + ","): a("s_nop 0")
            a(x); last = x
        a("s_waitcnt lgkmcnt(0)")

    def tile_groups(self, slot):
        out = []
        for j in range(9):
            g = ""
            if j % 4 == 0: g = f"s_add_u32 m0, {sr(S_LB)}, {slot*SLOT + 4096*(j//4)}\ns_nop 0\n"
            g += f"buffer_load_dwordx4 {vr(V_DMA + j//4)}, {sr(S_XA,4)}, {sr(S_TOFF)} offen offset:{1024*(j%4)} lds"
            if j == 8: g += f"\ns_add_u32 {sr(S_TOFF)}, {sr(S_TOFF)}, {4*TILE}"
            out.append(g)
        return out

    def first_tiles(self):
        pass

    def wfuse(self):
        a = self.a
        BF, ACC, AF, TM, AD = 88, 108, 144, 208, 240
        LA, LB_, LM = 0, 44032, 88064
        T = S_T
        a.label("L_wfuse")
        if self.o.get("hlast", 0): a(f"s_cmp_ge_u32 s2, {NWG}\ns_cbranch_scc1 L_end\ns_sub_u32 s2, s2, {NWG - NH}")
        a(f"v_lshrrev_b32 v1, 6, v0\nv_and_b32 v0, 63, v0\nv_readfirstlane_b32 {sr(S_W)}, v1\nv_lshlrev_b32 {vr(V_DMA)}, 4, v0\ns_waitcnt lgkmcnt(0)")
        self.srd(S_WS, 78, 79, WS_END)
        self.wf0 = 0
        self.srd(S_X, 72, 73, 82944)
        self.srd(S_W2, 62, 63, 41472)
        a(f"""s_cmp_eq_u32 s2, {self.wf0}
        s_cselect_b32 {sr(S_W1)}, s64, s70
        s_cselect_b32 {sr(S_W1+1)}, s65, s71
        s_mov_b32 {sr(S_W1+2)}, 41472
        s_mov_b32 {sr(S_W1+3)}, 0x20000
        s_cselect_b32 {sr(T+4)}, 0, 41472""")
        self.dma_rows([(S_W1, "0", LA), (S_W2, "0", LB_)], 19, 288, TM + 4, TM + 5, 11, 3, "L_wf1")
        a(f"s_lshl_b32 {sr(T)}, {sr(S_W)}, 10\ns_add_u32 {sr(T+2)}, {sr(T)}, {sr(T+4)}")
        for k in range(11):
            if k == 10: a(f"s_cmp_ge_u32 {sr(S_W)}, 1\ns_cbranch_scc1 L_wf2")
            a(f"s_add_u32 m0, {sr(T)}, {LM + 4096*k}\ns_add_u32 {sr(T+1)}, {sr(T+2)}, {4096*k}")
            a(f"buffer_load_dwordx4 {vr(V_DMA)}, {sr(S_X,4)}, {sr(T+1)} offen lds")
        a.label("L_wf2")
        self.srd(S_DW, 68, 69, 864)
        a(f"""v_and_b32 {vr(TM)}, 15, v0
        v_lshlrev_b32 {vr(TM+2)}, 4, {vr(TM)}
        v_lshlrev_b32 {vr(TM)}, 1, {vr(TM)}
        v_bfe_u32 {vr(TM+3)}, v0, 4, 1
        v_lshl_add_u32 {vr(TM+1)}, {vr(TM+3)}, 7, {vr(TM)}
        v_lshl_add_u32 {vr(TM+2)}, {vr(TM+3)}, 11, {vr(TM+2)}
        v_and_b32 {vr(TM+3)}, 1, v0
        v_lshlrev_b32 {vr(TM+3)}, 4, {vr(TM+3)}
        v_bfe_i32 {vr(TM+4)}, v0, 1, 1
        v_not_b32 {vr(TM+5)}, {vr(TM+4)}""")
        for k in range(3):
            for i in range(5): a(f"buffer_load_ushort {vr(16+5*k+i)}, {vr(TM+1 if i < 4 else TM)}, {sr(S_DW,4)}, 0 offen offset:{288*k + (32*i if i < 4 else 256)}")
        a(f"s_mov_b32 {sr(T+1)}, {WS_DWF}\ns_waitcnt vmcnt(0)")
        for f in range(15):
            a(f"v_lshlrev_b32 {vr(16+f)}, {vr(TM+3)}, {vr(16+f)}\nv_and_b32 {vr(32+2*f)}, {vr(TM+5)}, {vr(16+f)}\nv_and_b32 {vr(33+2*f)}, {vr(TM+4)}, {vr(16+f)}")
        for r_ in range(8): a(f"buffer_store_dwordx{4 if r_ < 7 else 2} {vr(32+4*r_, 4 if r_ < 7 else 2)}, {vr(TM+2)}, {sr(S_WS,4)}, {sr(T+1)} offen offset:{256*r_} sc1")
        self.tr_addr(AD, LM, False, TM + 8)
        self.row_addr(AD + 3, LA, TM + 8)
        a(f"v_add_u32 {vr(AD+5)}, {LB_}, {vr(AD+3)}")
        a(f"v_lshlrev_b32 {vr(AD+4)}, 3, v0")
        a(f"""s_lshr_b32 {sr(T)}, {sr(S_W)}, 1
        s_lshl_b32 {sr(T)}, {sr(T)}, 6
        s_and_b32 {sr(T+1)}, {sr(S_W)}, 1
        s_lshl_b32 {sr(T+1)}, {sr(T+1)}, 3
        s_add_u32 {sr(T)}, {sr(T)}, {sr(T+1)}
        v_and_b32 {vr(AD+6)}, 3, v0
        v_lshlrev_b32 {vr(AD+6)}, 3, {vr(AD+6)}
        v_add_u32 {vr(AD+7)}, {sr(T)}, {vr(AD+6)}""")
        for k in range(3): a(f"v_add_u32 {vr(AD+k)}, {vr(AD+7)}, {vr(AD+k)}")
        a(f"s_mov_b32 {sr(S_CNT)}, {sr(S_W)}")
        a("s_waitcnt vmcnt(0)\ns_barrier")
        a.label("L_wfl")
        for s in self.tr_reads(AD, vr)(0, BF): a(s)
        a("s_waitcnt lgkmcnt(0)")
        self.gemm(self.row_reads(AD + 3), BF, ACC, AF)
        for i in range(18): a(f"v_cvt_pk_bf16_f32 {vr(BF+i)}, {vr(ACC+2*i)}, {vr(ACC+2*i+1)}")
        a(f"s_cmp_eq_u32 s2, {self.wf0}\ns_cbranch_scc0 L_wf3")
        self.gemm(self.row_reads(AD + 5), BF, ACC, AF)
        for i in range(18): a(f"v_cvt_pk_bf16_f32 {vr(BF+i)}, {vr(ACC+2*i)}, {vr(ACC+2*i+1)}")
        a.label("L_wf3")
        a(f"""s_mul_i32 {sr(T)}, {sr(S_CNT)}, {BLK}
        s_add_u32 {sr(T)}, {sr(T)}, {sr(T+4)}
        s_add_u32 {sr(T)}, {sr(T)}, {WS_WF}
        s_add_u32 {sr(T+1)}, {sr(T)}, 4096""")
        self.store_block(BF, V_DMA, AD + 4, S_WS, T, T + 1, "sc1")
        for k in range(3): a(f"v_add_u32 {vr(AD+k)}, 128, {vr(AD+k)}")
        a(f"s_add_u32 {sr(S_CNT)}, {sr(S_CNT)}, 4\ns_cmp_lt_u32 {sr(S_CNT)}, 8\ns_cbranch_scc1 L_wfl")
        for k in range(3): a(f"v_sub_u32 {vr(AD+k)}, {vr(AD+k)}, {vr(AD+6)}")
        a(f"s_cmp_eq_u32 {sr(S_CNT)}, 8\ns_cbranch_scc1 L_wfl")
        a(f"""s_waitcnt vmcnt(0)
        s_barrier
        s_cmp_lg_u32 {sr(S_W)}, 0
        s_cbranch_scc1 L_end
        s_mov_b32 {sr(T+2)}, 0""")
        a.label("L_wtag")
        a(f"""buffer_load_dword {vr(TM)}, off, {sr(S_DB,4)}, 0 sc1
        s_add_u32 {sr(T+2)}, {sr(T+2)}, 1
        s_waitcnt vmcnt(0)
        v_readfirstlane_b32 {sr(T)}, {vr(TM)}
        s_cmp_lt_u32 {sr(T+2)}, 0x40000
        s_cselect_b32 {sr(T)}, {sr(T)}, 1
        s_cmp_eq_u32 {sr(T)}, 0
        s_cbranch_scc1 L_wtag
        v_lshlrev_b32 {vr(TM+1)}, 2, v0
        s_lshl_b32 {sr(T)}, s2, 8
        s_add_u32 {sr(T)}, {sr(T)}, {WS_F + 502*256}
        buffer_store_dword {vr(TM)}, {vr(TM+1)}, {sr(S_WS,4)}, {sr(T)} offen sc1
        s_endpgm""")

    def dump_stamps(self):
        a = self.a
        if self.o.get("census"):
            key, mode, m_, v_ = self.o["census"]
            a(f"""s_cmp_lg_u32 s2, 100
            s_cbranch_scc1 L_end
            v_lshlrev_b32 v16, 2, v0
            s_mov_b32 s4, {WS_DBG}""")
            for k in range(4): a(f"buffer_load_dword v{20+k}, v16, {sr(S_WS,4)}, s4 offen offset:{256*k} sc1")
            a(f"s_waitcnt vmcnt(0)\nv_readlane_b32 s8, v21, 36\ns_mov_b32 s9, 0x80000000\ns_mov_b32 s10, 0x7fffffff\ns_mov_b32 s11, 0\ns_mov_b32 s17, 0")
            for k in range(4):
                a(f"s_mov_b32 s5, 0")
                a.label(f"L_cs{k}")
                a(f"""v_readlane_b32 s6, v{20+k}, s5
                s_add_u32 s7, s5, {64*k}
                s_sub_u32 s6, s6, s8
                s_and_b32 s16, s7, {m_}
                s_cmp_lg_u32 s16, {v_}
                s_cbranch_scc1 L_cn{k}
                s_min_i32 s10, s10, s6
                s_cmp_gt_i32 s6, {self.o.get("thr", 150)}
                s_addc_u32 s17, s17, 0
                s_cmp_gt_i32 s6, s9
                s_cselect_b32 s9, s6, s9
                s_cselect_b32 s11, s7, s11""")
                a.label(f"L_cn{k}")
                a(f"s_add_u32 s5, s5, 1\ns_cmp_lt_u32 s5, {64 if k < 3 else 60}\ns_cbranch_scc1 L_cs{k}")
            a({"arg": "s_lshl_b32 s6, s11, 3", "range": "s_sub_u32 s6, s9, s10\ns_lshl_b32 s6, s6, 1", "zero": "s_mov_b32 s6, 0", "cnt": "s_lshl_b32 s6, s17, 4",
               "max": "s_lshl_b32 s6, s9, 1"}[mode])
            a("s_add_u32 s6, s6, 1000\ns_memrealtime s[4:5]\ns_waitcnt lgkmcnt(0)\ns_add_u32 s6, s6, s4")
            a.label("L_echo")
            a("s_memrealtime s[4:5]\ns_waitcnt lgkmcnt(0)\ns_sub_u32 s7, s6, s4\ns_cmp_gt_i32 s7, 0\ns_cbranch_scc1 L_echo")
            return
        if self.o.get("echo"):
            if self.o["echo"][0] == "skew":
                a(f"v_mov_b32 v16, 4\nbuffer_load_dword v17, v16, {sr(S_DB,4)}, 0 offen sc1\ns_waitcnt vmcnt(0)\nv_readfirstlane_b32 s98, v17\ns_not_b32 s98, s98")
                x, y = 98, S_ST + 2 * self.stnames.index(self.o["echo"][1])
            else:
                x, y = [S_ST + 2 * self.stnames.index(n) for n in self.o["echo"]]
            lo, hi = self.o.get("echo_ids", (0, 999))
            a(f"""s_cmp_eq_u32 {sr(S_VAL)}, 0
            s_cbranch_scc1 L_end
            s_cmp_lt_u32 s2, {lo}
            s_cbranch_scc1 L_end
            s_cmp_ge_u32 s2, {hi}
            s_cbranch_scc1 L_end
            s_and_b32 s6, s2, {self.o.get("echo_m", 0)}
            s_cmp_lg_u32 s6, {self.o.get("echo_v", 0)}
            s_cbranch_scc1 L_end
            s_memrealtime s[4:5]
            s_waitcnt lgkmcnt(0)
            s_sub_u32 s6, {sr(y)}, {sr(x)}
            s_mul_i32 s6, s6, {self.o.get("echo_mul", 1)}
            s_lshr_b32 s6, s6, {self.o.get("echo_shr", 0)}
            s_add_u32 s6, s6, {self.o.get("echo_add", 0)}
            s_add_u32 s6, s6, s4""")
            a.label("L_echo")
            a("s_memrealtime s[4:5]\ns_waitcnt lgkmcnt(0)\ns_sub_u32 s7, s6, s4\ns_cmp_gt_i32 s7, 0\ns_cbranch_scc1 L_echo")
            return
        if self.o.get("dbgst"):
            a("s_waitcnt vmcnt(0)")
            self.stamp("done")
            a("s_waitcnt lgkmcnt(0)\ns_mov_b64 exec, 1")
            slots = [1, 2, 3, 4, 5, 6, 7, 9, 11, 12, 13, 14, 15]
            a(f"s_not_b32 {sr(S_T)}, {sr(S_ST)}\nv_mov_b32 v16, {sr(S_T)}\nv_mov_b32 v17, 4\nbuffer_atomic_umax v16, v17, {sr(S_DB,4)}, 0 offen sc1")
            for i in range(min(self.nst, 12)):
                a(f"v_mov_b32 v{18+2*i}, {sr(S_ST+2*i)}\nv_mov_b32 v{19+2*i}, {4*slots[i+1]}\nbuffer_atomic_umax v{18+2*i}, v{19+2*i}, {sr(S_DB,4)}, 0 offen sc1")
            return
        if not self.o.get("stamps"): return
        T = S_T
        a(f"""s_waitcnt lgkmcnt(0)
        s_lshl_b32 {sr(T)}, s2, 2
        s_add_u32 {sr(T)}, {sr(T)}, {sr(S_W)}
        s_lshl_b32 {sr(T)}, {sr(T)}, 7
        s_add_u32 {sr(T)}, {sr(T)}, {WS_DBG}
        v_mov_b32 v1, 0""")
        for i in range(26): a(f"v_mov_b32 {vr(16+i)}, {sr(S_ST+i)}")
        for i in range(7): a(f"buffer_store_dwordx4 {vr(16+4*i,4)}, v1, {sr(S_WS,4)}, {sr(T)} offen offset:{16*i}")

    def build(self):
        a = self.a
        self.stnames = []
        a.raw(f"; @launch grid=({NWG},1,1) block=(256,1,1) lds={LDS_TOTAL}")
        a.raw('.amdgcn_target "amdgcn-amd-amdhsa--gfx950"')
        a.raw(".text")
        a.raw(f".globl {NAME}")
        a.raw(".p2align 12")
        self.entry()
        self.phase_a()
        self.rest()
        a.label("L_fin")
        self.dump_stamps()
        a.label("L_end")
        a("s_endpgm")
        self.poll2()
        if not self.o.get("touch", 1): self.rare()
        a.label("L_dummy")
        self.fallback()
        self.wfuse()
        a.raw('.section .rodata,"a"')
        a.raw(".p2align 6")
        a.raw(kernel_desc(NAME, 512, 102, 256))
        return a.text()

    def S(self, buf, qb, i=0): return V_S + buf * 32 + qb * 8 + i
    def P(self, buf, qb, i=0): return V_P + buf * 16 + qb * 4 + i

    def k_reads(self, slot, V_K=V_K):
        ka, so = (V_KA, slot * SLOT) if slot < 2 else (V_HI, (slot - 2) * SLOT)
        out = [f"ds_read_b128 {vr(V_K+8*s+4*kb,4)}, {vr(ka)} offset:{so + 2048*s + 256*kb}" for s in range(4) for kb in range(2)]
        out += [f"ds_read_b64 {vr(V_K+32+2*kb,2)}, {vr(ka+1)} offset:{so + 8192 + 512*kb}" for kb in range(2)]
        return out

    def v_reads(self, slot, dst=V_V):
        (va, vr_, vb), so = ((V_VA, V_VR, V_VB), slot * SLOT) if slot < 2 else ((V_HI + 2, V_HI + 4, V_HI + 5), (slot - 2) * SLOT)
        out = []
        for T in range(9):
            for u in range(2):
                if T < 8: out.append(f"ds_read_b64_tr_b16 {vr(dst+4*T+2*u,2)}, {vr((va if T < 4 else vb)+(T&1))} offset:{so + 2048*((T>>1)&1) + 256*u}")
                else: out.append(f"ds_read_b64_tr_b16 {vr(dst+4*T+2*u,2)}, {vr(vr_)} offset:{so + 8192 + 512*u}")
        return out

    def qk_mfmas(self, buf, czero=False):
        out = []
        for s in range(5):
            for kb in range(2):
                for qb in range(4):
                    d = vr(self.S(buf, qb, 4 * kb), 4)
                    c = ("0" if czero else vr(V_CI + 4 * qb, 4)) if s == 0 else d
                    if s < 4: out.append(f"v_mfma_f32_16x16x32_bf16 {d}, {vr(V_K+8*s+4*kb,4)}, {ar(A_Q+18*qb+4*s,4)}, {c}")
                    else: out.append(f"v_mfma_f32_16x16x16_bf16 {d}, {vr(V_K+32+2*kb,2)}, {ar(A_Q+18*qb+16,2)}, {c}")
        return out

    def pv_mfmas(self, buf, czero=False):
        out = []
        for T in range(9):
            for qb in range(4):
                o = ar(A_O + 36 * qb + 4 * T, 4)
                out.append(f"v_mfma_f32_16x16x32_bf16 {o}, {vr(V_V+4*T,4)}, {vr(self.P(buf,qb),4)}, {'0' if czero else o}")
        return out

    def plan(self):
        o = self.o
        n = 76
        fixed = [None] * n
        for i, g in enumerate(range(1, 36, 2)): fixed[g] = ("V", i)
        for i, g in enumerate([41, 44, 47, 50, 53, 56, 59, 62, 65, 68]): fixed[g] = ("K", i)
        for i, g in enumerate([42, 46, 49, 52, 55, 58, 61, 64, 67]): fixed[g] = ("D", i)
        exps = [(qb, j) for qb in range(4) for j in range(8)]
        start = 40
        order = [(start + k) % n for k in range(n)]
        free_idx = [k for k, g in enumerate(order) if fixed[g] is None]
        nsm = len(free_idx) - 32
        cand = free_idx[6:-2]
        sm_set = set(free_idx[-2:]) | {cand[int((i + 0.5) * len(cand) / (nsm - 2))] for i in range(nsm - 2)}
        nds = sum(1 for f in fixed if f is not None and f[0] != "D")
        over = 48 - nds - 2 * nsm
        ocand = [k for k, g in enumerate(order) if k >= 20 and (fixed[g] is None or fixed[g][0] != "D")]
        o_set = {ocand[int((i + 0.5) * len(ocand) / over)] for i in range(over)}
        gaps = [[] for _ in range(n)]
        small, pend, ei = [], [], 0
        for k, g in enumerate(order):
            new = (start + k) < n
            small.extend(pend); pend = []
            small.sort(key=lambda t: 0 if t[0] == "c" else 1)
            f = fixed[g]
            want = 0
            if f is not None:
                gaps[g].append((f[0], f[1], None))
                if f[0] == "D": continue
                want = 1
            elif k in sm_set: want = 2
            else:
                qb, j = exps[ei]; ei += 1
                gaps[g].append(("E", ("e", qb, j), new))
                if j & 1: pend.append(("c", qb, j // 2))
                pend.append(("a", qb, j))
            if k in o_set: want += 1
            if k == n - 1: want = 99
            for _ in range(want):
                if small: gaps[g].append(("E", small.pop(0), new))
        assert not small and not pend and ei == 32
        self.gaps = gaps

    def pack(self, mf, items):
        a = self.a
        where, order, done, nvm, mpos = {}, [], 0, 0, []
        isds = lambda it: "ds_" in it["t"]
        self.over = 0
        for g, m in enumerate(mf):
            assert not any(it.get("need", 999) <= g and i not in where for i, it in enumerate(items)), g
            idx = [k for k, n_ in enumerate(order) if n_ <= g]
            if idx and max(idx) + 1 > done:
                a(f"s_waitcnt lgkmcnt({min(15, len(order) - 1 - max(idx))})"); done = max(idx) + 1
            if m.startswith("@W"):
                w_, m = m.split("\n", 1)
                a(f"s_waitcnt lgkmcnt({min(15, int(w_[2:]) + len(order))})")
            a(m)
            mpos.append(len(a.lines))
            cap, pick = 8, []
            for phase in (0, 1):
                for i, it in enumerate(items):
                    if i in where or it.get("lo", 0) > g: continue
                    if "am" in it and (it["am"] >= g or len(a.lines) - mpos[it["am"]] < 8): continue
                    d = it.get("dep")
                    if d is not None and not all(where.get(x, 999) < g for x in d): continue
                    if (phase == 0 and it.get("hi", 999) <= g) or (phase == 1 and it["c"] <= cap):
                        if it["t"].startswith("buffer") and pick and any(items[x]["c"] for x in pick) and phase == 1: continue
                        if isds(it) and sum(isds(items[x]) for x in pick) >= it.get("nds", 1) and phase == 1: continue
                        pick.append(i); where[i] = g; cap -= it["c"]
            key = lambda i: 0 if items[i]["c"] == 0 else 1 if isds(items[i]) else 2 if items[i]["t"].startswith("buffer") else 3
            for i in sorted(pick, key=key):
                a(items[i]["t"].replace("@VM", f"s_waitcnt vmcnt({nvm})"))
                nvm += items[i]["t"].startswith("buffer")
                if isds(items[i]): order.append(items[i].get("need", 999))
            self.over += max(0, -cap)
        return [it["t"] for i, it in enumerate(items) if i not in where]

    def e_items(self, buf, lst, lo, hi):
        items, idx = [], {}
        for it in lst:
            kind, qb, j = it
            d = dict(t=self.etext(buf, it), c=8 if kind == "e" else 4)
            if kind == "e": d["lo"] = lo(qb, j); d["hi"] = hi(qb) - 2 - (7 - j)
            else:
                need = [("e", qb, j)] if kind == "a" else [("e", qb, 2 * j), ("e", qb, 2 * j + 1)]
                d["dep"] = [idx[x] for x in need if x in idx]
                if kind == "c": d["hi"] = hi(qb) - (3 - j) // 2
            idx[it] = len(items); items.append(d)
        return items

    def etext(self, buf, it):
        kind, qb, j = it
        s = self.S(buf, qb)
        if kind == "e": return f"v_exp_f32 {vr(s+j)}, {vr(s+j)}"
        if kind == "a": return f"v_add_f32 {vr(V_L+qb)}, {vr(V_L+qb)}, {vr(s+j)}"
        return f"v_cvt_pk_bf16_f32 {vr(self.P(buf, qb, j))}, {vr(s+2*j)}, {vr(s+2*j+1)}"

    def period(self, p, qk=True, pv=True, e_old=True, e_new=True, kread=True, vread=True, dma=True, extra={}, dsub=None, ksub=None, vm=9, halves=(0, 1), inc=None):
        a = self.a
        bn, bo = (p + 1) & 1, p & 1
        mf = self.qk_mfmas(bn) + self.pv_mfmas(bo, czero=(p == 0))
        kr, vrd = self.k_reads((p + 2) % RING), self.v_reads(p % RING)
        slot = p % RING
        n = 76
        sc = [[] for _ in range(n)]
        dgs = [g for g in range(n) if any(e[0] == "D" for e in self.gaps[g])]
        if dma:
            for j, g in enumerate(dgs):
                if j % 4 == 0: sc[g - 1].append(f"s_add_u32 m0, {sr(S_LB)}, {slot*SLOT + 4096*(j//4)}")
            sc[dgs[-1] + 1].append(f"s_add_u32 {sr(S_TOFF)}, {sr(S_TOFF)}, {inc or 4*TILE}")
        w = []
        if kread: w.append(f"vmcnt({vm})")
        if pv: w.append("lgkmcnt(0)")
        if w: sc[39].append("s_waitcnt " + " ".join(w))
        if kread: sc[75].append("s_waitcnt lgkmcnt(0)")
        for half in halves:
            rng = range(0, 40) if half == 0 else range(40, 76)
            on = qk if half == 0 else pv
            if not on:
                ds, mem, val, post = [], [], [], []
                for g in rng:
                    for s_ in sc[g]:
                        (post if s_.startswith("s_waitcnt") else mem).append(s_)
                    if g in extra: mem.append(extra[g])
                    for kind, d, new in self.gaps[g]:
                        if kind == "V" and vread: ds.append(vrd[d])
                        elif kind == "K" and kread: ds.append(kr[d])
                        elif kind == "D" and dma: mem.append(f"buffer_load_dwordx4 {vr(V_DMA + d//4)}, {sr(S_XA,4)}, {sr(S_TOFF)} offen offset:{1024*(d%4)} lds")
                        elif kind == "E" and ((new and e_new) or (not new and e_old)): val.append((d, self.etext(bn if new else bo, d)))
                if half == 1: a("s_nop 3")
                seq, pend = [], list(val)
                while pend:
                    k = 0
                    if seq and seq[-1][0][0] == "e":
                        le = seq[-1][0]
                        dep = lambda it: it[0][1] == le[1] and ((it[0][0] == "a" and it[0][2] == le[2]) or (it[0][0] == "c" and it[0][2] == le[2] // 2))
                        have = {x[0] for x in seq}
                        ok = lambda it: it[0][0] == "e" or (("e", it[0][1], it[0][2]) in have if it[0][0] == "a" else (("e", it[0][1], 2*it[0][2]+1) in have)) or not any(x[0][0] == "e" and x[0][1] == it[0][1] and (x[0][2] == it[0][2] if it[0][0] == "a" else x[0][2] // 2 == it[0][2]) for x in pend)
                        while k < len(pend) and (dep(pend[k]) or not ok(pend[k])): k += 1
                        if k == len(pend): seq.append((("n", 0, 0), "s_nop 0")); k = 0
                    seq.append(pend.pop(k))
                step = max(1, len(seq) // (len(mem) + len(ds) + 1))
                allm = ds + mem
                for x in allm[:6]: a(x)
                allm = allm[6:]
                for i_, (d, t_) in enumerate(seq):
                    a(t_)
                    if allm and i_ % step == step - 1:
                        x = allm.pop(0); a(x)
                        if x.startswith("s_add_u32 m0"): a("s_nop 0")
                for x in allm:
                    a(x)
                    if x.startswith("s_add_u32 m0"): a("s_nop 0")
                for x in post: a(x)
                if half == 0: a("s_nop 1")
                continue
            for g in rng:
                a(mf[g])
                for s_ in sc[g]: a(s_)
                if g in extra: a(extra[g])
                for kind, d, new in self.gaps[g]:
                    if kind == "V":
                        if vread: a(vrd[d])
                    elif kind == "K":
                        if kread: a(kr[d])
                        elif ksub: a(ksub.pop(0))
                    elif kind == "D":
                        if dma: a(f"buffer_load_dwordx4 {vr(V_DMA + d//4)}, {sr(S_XA,4)}, {sr(S_TOFF)} offen offset:{1024*(d%4)} lds")
                        elif dsub: a(dsub.pop(0))
                    elif (new and e_new) or (not new and e_old):
                        a(self.etext(bn if new else bo, d))

    MK, VO, VO8, GA, VS0, VS0R, VDW, VLW, VL8, VST, VPL = 232, 236, 9, 238, 250, 251, 244, 245, 246, 247, 248
    NB, PT, E_U, E_G, RS3, E_COL, RS1, RS2, MP1 = 3, 4, 5, 6, 7, 43, 36, 37, 38
    G0, GM, GP, U, DWT = 16, 26, 36, 80, (90, 252, 96, 100, 112, 116, 104, 94)
    XRS = (192, 196, 46)
    frag = staticmethod(lambda f, b: [(f, b + 4 * s) for s in range(5)])
    WD = [[("a", 216 + 4 * s) for s in range(5)], [("a", 234 + 4 * s) for s in range(5)], [("v", 208 + 4 * s) for s in range(5)]]
    WO = [[("a", 4 * s) for s in range(5)], [("a", 18 + 4 * s) for s in range(5)], [("a", 36), ("a", 40), ("a", 44), ("a", 48), ("a", 252)]]
    X1B = 98304
    X2O = L_SP - X1B
    L_L = L_SP + 9216

    def epi_setup(self):
        a = self.a
        T = S_T
        NB, PT, VO, GA = self.NB, self.PT, self.VO, self.GA
        r, g4, x, y, big, r0 = 52, 53, 54, 55, 56, 57
        a(f"""s_lshr_b32 {sr(NB)}, {sr(S_W)}, 1
        s_and_b32 {sr(PT)}, {sr(S_W)}, 1
        v_and_b32 {vr(r0)}, 15, v0
        v_lshrrev_b32 {vr(g4)}, 4, v0
        v_mul_u32_u24 {vr(x)}, 288, {vr(r0)}
        v_mov_b32 {vr(big)}, 0x40000000
        s_lshl_b32 {sr(T)}, {sr(S_TOWN)}, 1
        s_add_u32 {sr(T)}, {sr(T)}, {sr(NB)}
        s_lshl_b32 {sr(T)}, {sr(T)}, 4
        v_add_u32 {vr(r)}, {sr(T)}, {vr(r0)}
        s_mul_i32 {sr(T+1)}, {sr(S_TOWN)}, {TILE}
        s_mul_i32 {sr(T+2)}, {sr(PT)}, {BLK}
        v_add_u32 {vr(x)}, {sr(T+1)}, {vr(x)}
        s_sub_u32 {sr(T+3)}, {BLK}, {sr(T+2)}
        v_add_u32 {vr(y)}, {sr(T+3)}, {vr(x)}
        v_add_u32 {vr(x)}, {sr(T+2)}, {vr(x)}
        v_lshl_add_u32 {vr(VO)}, {vr(g4)}, 4, {vr(x)}
        v_lshl_add_u32 {vr(VO+1)}, {vr(g4)}, 4, {vr(y)}
        v_lshl_add_u32 {vr(self.VO8)}, {vr(g4)}, 3, {vr(x)}
        s_lshl_b32 {sr(T+3)}, {sr(PT)}, 11
        s_add_u32 {sr(self.E_U)}, {sr(T+3)}, {WS_U}
        s_add_u32 {sr(self.E_G)}, {sr(T+3)}, {WS_G}
        s_sub_u32 {sr(T+3)}, 4096, {sr(T+3)}
        s_lshl_b32 {sr(T)}, {sr(PT)}, 11
        s_add_u32 {sr(T)}, {sr(T)}, {WS_DWF}
        v_lshrrev_b32 {vr(x)}, 2, {vr(r0)}
        v_cmp_eq_u32 vcc, {vr(x)}, {vr(g4)}
        v_lshl_add_u32 {vr(self.VDW)}, {vr(r0)}, 4, {sr(T)}
        s_nop 0
        v_cndmask_b32 {vr(self.VDW)}, {vr(big)}, {vr(self.VDW)}, vcc
        s_lshl_b32 {sr(self.E_COL)}, {sr(S_W)}, 6
        v_lshlrev_b32 {vr(self.VL8)}, 3, v0
        v_add_u32 {vr(self.VL8)}, 4096, {vr(self.VL8)}
        v_add_u32 {vr(self.VST)}, {sr(S_LB)}, {vr(V_DMA)}
        v_add_u32 {vr(self.VST)}, {2*SLOT}, {vr(self.VST)}
        s_xor_b32 {sr(T)}, {sr(NB)}, 1
        v_xor_b32 {vr(x)}, {sr(T)}, {vr(g4)}
        v_lshl_add_u32 {vr(x)}, {vr(x)}, 4, {vr(r0)}
        s_lshl_b32 {sr(T)}, {sr(S_W)}, 2
        s_add_u32 {sr(T)}, {sr(T)}, {self.L_L}
        v_lshl_add_u32 {vr(self.VLW)}, {vr(x)}, 4, {sr(T)}
        s_sub_u32 {sr(self.MP1)}, 0, {sr(PT)}
        s_mov_b32 {sr(self.MP1+1)}, {sr(self.MP1)}""")
        for k, (d, base) in enumerate(((self.RS1, 3 * SLOT), (self.RS2, 2 * SLOT), (self.RS3, 2 * SLOT))):
            a(f"s_xor_b32 {sr(T)}, {sr(S_W)}, {k+1}\ns_mul_i32 {sr(T)}, {sr(T)}, {TILE}\ns_add_u32 {sr(d)}, {sr(T)}, {base}")
        a(f"""s_mul_i32 {sr(T)}, {sr(S_B)}, 4000
        s_add_u32 {sr(T+1)}, {sr(T)}, 3999
        s_mov_b32 {sr(T+2)}, {BLK}""")
        for k, dr in enumerate((0, -1, 1)):
            m = GA + 2 * k
            if dr: a(f"v_add_u32 {vr(m)}, {dr}, {vr(r)}\nv_cmp_eq_u32 vcc, {sr(T if dr < 0 else T+1)}, {vr(r)}")
            src = m if dr else r
            a(f"""v_lshrrev_b32 {vr(x)}, 4, {vr(src)}
            v_and_b32 {vr(y)}, 15, {vr(src)}
            v_mul_lo_u32 {vr(x)}, {vr(x)}, {sr(T+2)}
            v_lshl_add_u32 {vr(y)}, {vr(g4)}, 4, {vr(y)}
            v_lshl_add_u32 {vr(m)}, {vr(y)}, 4, {vr(x)}
            v_lshl_add_u32 {vr(m+1)}, {vr(y)}, 3, {vr(x)}
            v_add_u32 {vr(m+1)}, {sr(T+3)}, {vr(m+1)}""")
            if dr: a(f"v_cndmask_b32 {vr(m)}, {vr(m)}, {vr(big)}, vcc\nv_cndmask_b32 {vr(m+1)}, {vr(m+1)}, {vr(big)}, vcc")

    def conv_loads(self):
        GA = self.GA
        L = []
        for dst, m, so in ((self.GM, GA + 2, 1), (self.G0, GA, 1), (self.GP, GA + 4, 1), (self.U, GA, 0)):
            for k in range(2): L.append(f"buffer_load_dwordx4 {vr(dst+4*k,4)}, {vr(m)}, {sr(S_WS,4)}, {sr(self.E_U+so)} offen offset:{1024*k}")
            L.append(f"buffer_load_dwordx2 {vr(dst+8,2)}, {vr(m+1)}, {sr(S_WS,4)}, {sr(self.E_U+so)} offen")
        return L

    def rg(self, e, n): return (ar if e[0] == "a" else vr)(e[1], n)

    def w8_loads(self, regs, so):
        return [f"buffer_load_dwordx4 {self.rg(regs[s],4)}, {vr(V_DMA)}, {sr(S_WS,4)}, {sr(so)} offen offset:{1024*s}" for s in range(4)] + \
               [f"buffer_load_dwordx2 {self.rg(regs[4],2)}, {vr(self.VL8)}, {sr(S_WS,4)}, {sr(so)} offen"]

    def w_reads(self, regs, off):
        L = []
        for tt in range(2):
            L += [f"ds_read_b128 {self.rg(regs[tt][s],4)}, {vr(self.VS0)} offset:{off + BLK*tt + 1024*s}" for s in range(4)]
            L.append(f"ds_read_b64 {self.rg(regs[tt][4],2)}, {vr(self.VS0R)} offset:{off + BLK*tt}")
        return L

    def xa_srd(self):
        T = S_T
        return f"""s_mul_i32 {sr(T)}, {sr(S_B)}, {NT}
        s_mul_i32 {sr(T+1)}, {sr(S_H)}, 63
        s_add_u32 {sr(T+1)}, {sr(T+1)}, {sr(T)}
        s_mul_i32 {sr(T+1)}, {sr(T+1)}, {TILE}
        s_add_u32 {sr(S_XA)}, {sr(S_WS)}, {sr(T+1)}
        s_addc_u32 {sr(S_XA+1)}, {sr(S_WS+1)}, 0
        s_sub_u32 {sr(T+2)}, 63, {sr(S_H)}
        s_mul_i32 {sr(S_XA+2)}, {sr(T+2)}, {TILE}
        s_mov_b32 {sr(S_XA+3)}, 0x20000"""

    def rest(self):
        a, o = self.a, self.o
        T = S_T
        VPL = self.VPL
        self.plan()
        self.head()
        self.stamp("loop")
        if o.get("sktest") or o.get("echo") and o["echo"][0] == "skew":
            a(f"s_waitcnt lgkmcnt(0)\ns_mov_b64 exec, 1\ns_not_b32 s98, {sr(S_ST)}\nv_mov_b32 v226, s98\nv_mov_b32 v227, 4\ns_cmp_lg_u32 {sr(S_W)}, 0\ns_cbranch_scc1 L_sk\nbuffer_atomic_umax v226, v227, {sr(S_DB,4)}, 0 offen sc1\ns_waitcnt vmcnt(0)\nL_sk:\ns_mov_b64 exec, -1\ns_nop 3")
            self.stamp("sk")
        nh = o.get("ugh", 2)
        ex = {2 + 12 * k: x for k, x in enumerate(self.ugs[nh:])}
        self.period(0, vm=9 + 5, extra=ex)
        self.stamp("l0")
        a.raw(".p2align 6")
        a.label("L_loop")
        self.stamp("q1")
        for p in range(1, 5):
            ex = {}
            vm = 9
            if p == 1: ex = {73: f"s_cmp_eq_u32 {sr(S_CNT)}, 3"}
            if p == 2: ex = {70: f"buffer_load_dword v252, {vr(VPL)}, {sr(S_WS,4)}, 0 offen sc1"}
            if p == 3:
                ex = {73: f"s_cmp_eq_u32 {sr(S_CNT)}, 2", 45: f"ds_add_rtn_u32 v230, v231, {vr(VPL+1)}"}
            if p == 4:
                self.stamp("la0")
                a(f"s_cbranch_scc1 L_last")
                a.label("L_lastb")
                self.stamp("la1")
                ex = {72: f"s_add_u32 {sr(S_CNT)}, {sr(S_CNT)}, 1", 1: f"v_readfirstlane_b32 {sr(T)}, v230", 3: f"s_cmp_eq_u32 {sr(T)}, 3",
                      4: f"s_cselect_b32 {sr(T)}, {sr(S_FB)}, 2.0", 6: f"buffer_store_dword v226, v231, {sr(S_WS,4)}, {sr(T)} offen sc1"}
            for k_ in range(o.get("pad", 0)): ex[10 + 7 * k_] = ex.get(10 + 7 * k_, "s_nop 0") + "\ns_nop 7"
            self.period(p, extra=ex, inc=sr(S_INC) if p == 4 else None)
            if p == 1: a("s_cbranch_scc1 L_p14")
        a("s_branch L_loop")
        a.label("L_p14")
        SW = 66
        self.stamp("p14")
        a(f"s_cmp_eq_u32 {sr(S_DUM)}, 4\ns_cbranch_scc0 L_dummyb")
        for i in range(16): a(f"v_mov_b32 {vr(V_CI+i)}, 0xff800000")
        a("s_nop 1")
        a.label("L_dummyb")
        ex = dict(zip([2, 6, 8, 12, 14, 18, 20, 24, 26, 30], self.w_reads(self.WD, 0)))
        ex[0] = "s_waitcnt vmcnt(9)"
        ex.update(dict(zip([4, 10, 16, 22, 28], self.w8_loads(self.WD[2], SW))))
        self.period(14, dma=False, kread=False, extra=ex, halves=(0,))
        self.stamp("tail")
        self.tail(SW)
        self.stamp("end")
        self.epilogue(SW)

    def rare(self):
        a = self.a
        T = S_T
        SW = 66
        a.label("L_last")
        a(f"s_waitcnt vmcnt(9)\ns_mov_b32 {sr(T+2)}, 0")
        a.label("L_late")
        a(f"""v_cmp_ne_u32 vcc, {sr(S_N)}, v252
        s_add_u32 {sr(S_XA)}, {sr(S_WS)}, {WS_WF}
        s_addc_u32 {sr(S_XA+1)}, {sr(S_WS+1)}, 0
        s_mov_b32 {sr(S_XA+2)}, {18*BLK}
        s_add_u32 {sr(S_TOFF)}, {sr(S_LB)}, {9*BLK}
        s_mov_b32 {sr(S_INC)}, {-9*BLK}
        s_lshr_b32 {sr(SW)}, {sr(S_W)}, 1
        s_lshl_b32 {sr(SW)}, {sr(SW)}, 30
        s_add_u32 {sr(SW+1)}, {sr(SW)}, {WS_WF + 8*BLK}
        s_add_u32 {sr(SW)}, {sr(SW)}, {WS_WF + 17*BLK}
        s_and_b32 {sr(T)}, vcc_lo, 31
        s_cbranch_scc0 L_lastb
        buffer_load_dword v252, {vr(self.VPL)}, {sr(S_WS,4)}, 0 offen sc1
        s_add_u32 {sr(T+2)}, {sr(T+2)}, 1
        s_waitcnt vmcnt(0)
        s_cmp_lt_u32 {sr(T+2)}, 0x40000
        s_cbranch_scc1 L_late
        s_branch L_lastb""")

    units = [(0, 0), (0, 1), (1, 0), (1, 1), (2, 0)]
    V15 = V_K

    def stage(self, slot, T):
        src = ar(A_O + 36 * slot + 4 * T, 4)
        if slot == 0: return f"ds_write_b128 {vr(self.VST)}, {src} offset:{1024*T}"
        if slot == 2: return f"ds_write_b128 {vr(self.VS0)}, {src} offset:{1024*T}"
        if T < 4: return f"ds_write_b128 {vr(self.VST)}, {src} offset:{SLOT + 1024*T + (4096 if slot == 3 else 0)}"
        return f"{'s_not_b64' if slot == 1 else 's_mov_b64'} exec, {sr(self.MP1,2)}\nds_write_b128 {vr(self.VST)}, {src} offset:{SLOT + 8192}\ns_mov_b64 exec, -1"

    def dwf(self, k, i):
        f = 5 * k + i
        return self.DWT[f >> 1] + 2 * (f & 1)

    def tail(self, SW):
        a, o = self.a, self.o
        mf, pos, start = [], {}, {}
        for t_, qb in ((14, 0), (14, 1), (15, 0), (15, 1), (14, 2), (15, 2), (14, 3), (15, 3)):
            start[t_, qb] = len(mf)
            for Tt in ([0, 1, 2, 3, 8, 4, 5, 6, 7] if qb & 1 else range(9)):
                o_ = ar(A_O + 36 * qb + 4 * Tt, 4)
                pos[t_, qb, Tt] = len(mf)
                mf.append(f"v_mfma_f32_16x16x32_bf16 {o_}, {vr((V_V if t_ == 14 else self.V15)+4*Tt,4)}, {vr(self.P(t_ & 1,qb),4)}, {o_}")
        lst = []
        for qb in range(4):
            for j in range(8):
                lst.append(("e", qb, j))
                if j & 1: lst.append(("c", qb, j // 2))
        lst += [("a", qb, j) for qb in range(4) for j in range(8)]
        items = self.e_items(1, lst, lambda qb, j: 0 if j < 4 else 1, lambda qb: start[15, qb] - 2)
        for it in items[48:]: it["lo"] = o.get("alo", 26)
        v15 = [dict(t=x, c=4, need=pos[15, 0, i // 2], hi=pos[15, 0, i // 2] - o.get("vlead", 7), lo=0 if i < 16 else 2) for i, x in enumerate(self.v_reads(3, self.V15))]
        wr = []
        nown = o.get("nown", 4)
        self.own = [(2, T_) for T_ in range(nown, 9)] + [(3, T_) for T_ in (0, 1, 2, 3, 8)]
        g = o.get("w0", 23)
        for k, (sl, Tt) in enumerate([(0, T_) for T_ in range(9)] + [(1, T_) for T_ in (0, 1, 2, 3, 8)] + [(2, T_) for T_ in range(nown)]):
            g = max(pos[15, sl, Tt] + 5, g)
            wr.append(dict(t=self.stage(sl, Tt), c=o.get("wc", 20), lo=int(g), hi=int(g)) if g < 72 else dict(t=self.stage(sl, Tt), c=4, lo=999))
            g += o.get("wsp", 2.7)
        n0 = len(items) + len(v15)
        wo = []
        for i, x in enumerate(self.w_reads(self.WO, SLOT)):
            r0 = self.WO[i // 5][i % 5][1]
            wo.append(dict(t=("@VM\n" if i == 0 else "") + x, c=4, dep=sorted({n0 + r0 // 4, n0 + (r0 + 3) // 4 if (r0 + 3) // 4 < 9 else n0 + 8}), lo=o.get("wo0", 40) + 3 * i, hi=o.get("wo0", 40) + 3 * i + 2))
        cl = self.conv_loads()
        dl = [f"buffer_load_dwordx4 {vr(self.DWT[r],4)}, {vr(self.VDW)}, {sr(S_WS,4)}, 0 offen offset:{256*r}" for r in range(7)]
        dl.append(f"buffer_load_dwordx2 {vr(self.DWT[7],2)}, {vr(self.VDW)}, {sr(S_WS,4)}, 0 offen offset:{256*7}")
        fr = {96: 9, 100: 18, 104: 45, 112: 27, 116: 36}
        vm = [(x, 0) for x in cl] + [(x, fr.get(self.DWT[r], 0)) for r, x in enumerate(dl)]
        used = {w["lo"] for w in wr}
        vi, g = [], o.get("m0", 24)
        for x, lo in vm:
            g = max(g, lo)
            while int(g) in used: g += 1
            vi.append(dict(t=x, c=8, lo=int(g), hi=int(g)) if g < 72 else dict(t=x, c=8, lo=999))
            g += o.get("msp", 2.2)
        left = self.pack(mf, items + v15 + wr + wo + vi)
        self.done_a = {(qb, j) for qb in range(4) for j in range(8) if self.etext(1, ("a", qb, j)) not in left}
        left = [x for x in left if not x.startswith("v_add_f32")]
        print("tail overflow", self.over, "left", len(left), "adds done", len(self.done_a))
        self.left = left

    def epilogue(self, SW):
        a, o = self.a, self.o
        T = S_T
        p = lambda r: vr(r, 2)
        NB, PT, MK, VO, units, MP1 = self.NB, self.PT, self.MK, self.VO, self.units, self.MP1
        U, GM, G0, GP = self.U, self.GM, self.G0, self.GP
        X2O = self.X2O
        R1, R2, R3 = 230, 231, 249
        LA, LS, M = 10, 226, 48

        def weave(main, fill, per):
            fill = list(fill)
            for x in main:
                a(x)
                for _ in range(per):
                    if fill: a(fill.pop(0))
            return fill
        for x in self.left:
            if not x.startswith("buffer"): a(x)
        lv = [x for x in self.left if x.startswith("buffer")]
        lv += [f"buffer_load_dwordx4 {vr(self.XRS[j],4)}, {vr(VO+j)}, {sr(S_X,4)}, {sr(self.E_COL)} offen" for j in range(2)]
        lv.append(f"buffer_load_dwordx2 {vr(self.XRS[2],2)}, {vr(self.VO8)}, {sr(S_X,4)}, 0 offen offset:256")
        S1 = lambda qb, j: self.S(1, qb, j)
        rounds = [[] for _ in range(6)]
        for qb in range(4):
            rem = [j for j in range(8) if (qb, j) not in self.done_a]
            prs = [j for j in rem if j % 2 == 0 and j + 1 in rem]
            sing = [j for j in rem if (j & ~1) not in prs]
            r_ = 0
            while len(prs) > 1:
                for x, y in zip(prs[0::2], prs[1::2]): rounds[r_].append(f"v_pk_add_f32 {p(S1(qb,x))}, {p(S1(qb,x))}, {p(S1(qb,y))}")
                prs = prs[0::2]; r_ += 1
            for k_, j in enumerate(sing + ([prs[0], prs[0] + 1] if prs else [])): rounds[min(5, max(r_, 2) + k_)].append(f"v_add_f32 {vr(V_L+qb)}, {vr(V_L+qb)}, {vr(S1(qb,j))}")
        for r_ in rounds:
            for x in r_: a(x)
        a(f"v_add_u32 {vr(R1)}, {sr(self.RS1)}, {vr(V_DMA)}\nv_add_u32 {vr(R2)}, {sr(self.RS2)}, {vr(V_DMA)}")
        self.treduce(V_L)
        a(f"ds_write_b32 {vr(self.VLW)}, {vr(V_L)}")
        acc = lambda slot: [f"v_accvgpr_read_b32 {vr(M+i)}, {ar(A_O+36*slot+16+i)}" for i in range(20)]
        a(f"""v_add_u32 {vr(R3)}, {sr(self.RS3)}, {vr(V_DMA)}
        v_add_u32 {vr(LA+1)}, {self.L_L}, {vr(V_DMA)}
        v_and_b32 {vr(LS+1)}, 0xf0, {vr(V_DMA)}
        s_lshl_b32 {sr(T)}, {sr(NB)}, 8
        s_add_u32 {sr(T+8)}, {sr(T)}, {self.L_L}
        v_add_u32 {vr(LS)}, {sr(T+8)}, {vr(LS+1)}""")
        for x in lv: a(x)
        a(f"""s_xor_b32 {sr(T)}, s2, 1
        s_mul_i32 {sr(T)}, {sr(T)}, {IB}
        s_mul_i32 {sr(T+9)}, {sr(NB)}, 5120
        s_add_u32 {sr(T+9)}, {sr(T+9)}, {WS_IB}
        s_add_u32 {sr(T)}, {sr(T)}, {sr(T+9)}
        s_lshl_b32 {sr(T+10)}, {sr(PT)}, 11
        s_add_u32 {sr(T+1)}, {sr(T+10)}, {sr(T)}
        s_add_u32 {sr(T)}, {sr(T)}, 4096
        s_cmp_eq_u32 {sr(PT)}, 0
        s_cselect_b32 {sr(T)}, 0x40000000, {sr(T)}
        s_mov_b32 {sr(T+2)}, {f32(2.0**100)}
        s_mul_i32 {sr(T+12)}, s2, {IB}
        s_add_u32 {sr(T+12)}, {sr(T+12)}, {sr(T+9)}
        s_add_u32 {sr(T+13)}, {sr(T+12)}, {sr(T+10)}
        s_waitcnt lgkmcnt(0)
        s_barrier""")
        self.stamp("B1")

        def rd(X, offs):
            L = [[f"ds_read_b128 {vr(X[k][i],4)}, {vr((R1, R2, R3)[k])} offset:{offs[k] + 1024*i}" for i in range(4)] for k in range(3)]
            L8 = [f"ds_read_b128 {vr(X[k][4],4)}, {vr((R1, R2, R3)[k])} offset:8192" for k in range(3)]
            return L, L8

        def adds(X, k, rng):
            return [f"v_pk_add_f32 {p(M+4*i+2*h)}, {p(M+4*i+2*h)}, {p(X[k][i]+2*h)}" for i in rng for h in range(2)]
        X = [[128, 132, 136, 140, 144], [148, 152, 156, 160, 68], [72, 76, 200, 204, 108]]
        PK = 128
        L, L8 = rd(X, (0, 4096, 0))
        a(f"ds_read_b128 {vr(LA,4)}, {vr(LA+1)}\nds_read_b128 {vr(LS,4)}, {vr(LS)}")
        rest = weave(L[0] + L[1] + L[2], acc(1), 2)
        assert not rest
        a(f"s_mov_b64 exec, {sr(MP1,2)}")
        for x in L8: a(x)
        a(f"""s_mov_b64 exec, -1
        s_waitcnt lgkmcnt(11)
        v_add_f32 {vr(LA)}, {vr(LA)}, {vr(LA+1)}
        v_add_f32 {vr(LA+2)}, {vr(LA+2)}, {vr(LA+3)}
        v_add_f32 {vr(LS)}, {vr(LS)}, {vr(LS+1)}
        v_add_f32 {vr(LA)}, {vr(LA)}, {vr(LA+2)}
        v_add_f32 {vr(LS+2)}, {vr(LS+2)}, {vr(LS+3)}
        v_cmp_nge_f32 vcc, {sr(T+2)}, {vr(LA)}""")
        for x in adds(X, 0, range(4)): a(x)
        a(f"""s_cmp_lg_u64 vcc, 0
        s_cselect_b32 {sr(T+2)}, 1, 0
        s_andn2_b32 {sr(T+2)}, {sr(T+2)}, {sr(S_REDO)}
        s_cbranch_scc1 L_fallback
        v_add_f32 {vr(PK+10)}, {vr(LS)}, {vr(LS+2)}
        v_mov_b32 {vr(PK+11)}, {vr(MK+1)}
        s_waitcnt lgkmcnt(7)""")
        for x in adds(X, 1, range(4)): a(x)
        a("s_waitcnt lgkmcnt(3)")
        a3 = adds(X, 2, range(4))
        cv = [f"v_cvt_pk_bf16_f32 {vr(PK+i)}, {vr(M+2*i)}, {vr(M+2*i+1)}" for i in range(10)]
        for x in a3[:4] + a3[4:6] + cv[:4]: a(x)
        a(f"buffer_store_dwordx4 {vr(PK,4)}, {vr(V_DMA)}, {sr(S_WS,4)}, {sr(T+1)} offen sc1")
        for x in a3[6:] + cv[4:8]: a(x)
        a(f"buffer_store_dwordx4 {vr(PK+4,4)}, {vr(V_DMA)}, {sr(S_WS,4)}, {sr(T+1)} offen offset:1024 sc1")
        a("s_waitcnt lgkmcnt(0)")
        for kk in range(3):
            for x in adds(X, kk, [4]): a(x)
        for x in cv[8:]: a(x)
        a(f"buffer_store_dwordx4 {vr(PK+8,4)}, {vr(V_DMA)}, {sr(S_WS,4)}, {sr(T)} offen sc1")
        self.stamp("sent")
        a(f"s_cmp_eq_u32 {sr(S_VAL)}, 0\ns_cbranch_scc1 L_fin")
        C, UP = 140, 68
        IN = [(200, 204, 226), (164, 168, 252), (192, 196, 172)]
        VXW, VXR, VF, LO = 78, 79, 10, 36
        wr = [self.stage(*e) for e in self.own]

        def inbox(k):
            return [f"buffer_load_dwordx4 {vr(IN[k][0],4)}, {vr(V_DMA)}, {sr(S_WS,4)}, {sr(T+13)} offen sc1",
                    f"buffer_load_dwordx4 {vr(IN[k][1],4)}, {vr(V_DMA)}, {sr(S_WS,4)}, {sr(T+13)} offen offset:1024 sc1",
                    f"buffer_load_dwordx4 {vr(IN[k][2],4)}, {vr(V_DMA+1)}, {sr(S_WS,4)}, {sr(T+12)} offen sc1"]
        for x in inbox(0): a(x)
        n0 = len(a.lines)
        a(f"""s_lshl_b32 {sr(T)}, {sr(NB)}, 12
        s_add_u32 {sr(T)}, {sr(T)}, {sr(T+10)}
        s_add_u32 {sr(T)}, {sr(T)}, {self.X1B}
        v_add_u32 {vr(VXW)}, {sr(T)}, {vr(V_DMA)}
        s_lshl_b32 {sr(T)}, {sr(NB)}, 9
        s_add_u32 {sr(T)}, {sr(T)}, {self.X1B + 4096}
        v_add_u32 {vr(VXR)}, {sr(T)}, {vr(self.VL8)}
        s_lshl_b32 {sr(T)}, {sr(PT)}, 12
        s_add_u32 {sr(T)}, {sr(T)}, {self.X1B}
        v_add_u32 {vr(VF)}, {sr(T)}, {vr(V_DMA)}
        v_xor_b32 {vr(VF+1)}, 4096, {vr(VF)}
        s_lshl_b32 {sr(T)}, {sr(PT)}, 9
        s_add_u32 {sr(T)}, {sr(T)}, {self.X1B + 4096}
        v_add_u32 {vr(VF+2)}, {sr(T)}, {vr(self.VL8)}
        v_xor_b32 {vr(VF+3)}, 512, {vr(VF+2)}
        v_subrev_u32 {vr(R2)}, {2*SLOT}, {vr(R2)}
        v_subrev_u32 {vr(R3)}, {2*SLOT}, {vr(R3)}
        s_waitcnt vmcnt(9)""")
        self.stamp("cv0")
        un = [f"v_lshlrev_b32 {vr(M+2*i)}, 16, {vr(U+i)}\nv_and_b32 {vr(M+1+2*i)}, 0xffff0000, {vr(U+i)}" for i in range(10)]
        w8 = self.w8_loads(self.WO[2], SW + 1)
        for k, src in enumerate((GM, G0, GP)):
            for i in range(5):
                d = vr(C + 4 * i, 4)
                a(f"v_mfma_f32_16x16x16_bf16 {d}, {vr(self.dwf(k, i),2)}, {vr(src+2*i,2)}, {'0' if k == 0 else d}")
                a(w8.pop(0) if i in (0, 3) and w8 else un.pop(0))
        self.stamp("cv1")
        a(f"v_and_b32 {vr(LO+1)}, 0xf0, {vr(V_DMA)}\nv_add_u32 {vr(LO)}, {sr(T+8)}, {vr(LO+1)}\ns_nop 1")
        for i in range(10): a(f"v_pk_mul_f32 {p(C+2*i)}, {p(C+2*i)}, {p(M+2*i)}")
        for i in range(10):
            a(f"v_cvt_pk_bf16_f32 {vr(UP+i)}, {vr(C+2*i)}, {vr(C+2*i+1)}")
        body = a.lines[n0:]; del a.lines[n0:]
        step = max(1, len(body) // len(wr))
        for i, l in enumerate(body):
            if i % o.get("wstep", step) == 0 and wr: a(wr.pop(0))
            a.lines.append(l)
        for x in wr: a(x)
        ac = acc(3)
        a(f"ds_write_b128 {vr(VXW)}, {vr(UP,4)} offset:{X2O}")
        for x in ac[:6]: a(x)
        a(f"ds_write_b128 {vr(VXW)}, {vr(UP+4,4)} offset:{X2O + 1024}")
        for x in ac[6:12]: a(x)
        a(f"""s_mov_b64 exec, {sr(MP1,2)}
        ds_write_b64 {vr(VXR)}, {vr(UP+8,2)} offset:{X2O}
        s_mov_b64 exec, -1""")
        self.stamp("x2")
        for x in inbox(1): a(x)
        for x in ac[12:]: a(x)
        a("s_waitcnt lgkmcnt(0)\ns_barrier")
        self.stamp("B2")
        X = [[128, 132, 136, 140, 144], [148, 152, 156, 160, 188], [16, 20, 24, 28, 32]]
        L, L8 = rd(X, (4096, 4096, 0))
        BU = [[("v", r) for r in (100, 104, 108, 112, 116)], [("v", r) for r in (118, 122, 180, 184, 126)]]
        BO = [self.frag("v", 128), self.frag("v", 146)]
        AB = 80

        def bfrags(dst, off):
            out = []
            for s in range(5):
                for j in range(2):
                    out.append(f"ds_read_b128 {self.rg(dst[j][s],4)}, {vr(VF+j)} offset:{off + 1024*s}" if s < 4 else f"ds_read_b64 {self.rg(dst[j][4],2)}, {vr(VF+2+j)} offset:{off}")
            return out

        def fg(W, Bf):
            out = []
            for s in range(5):
                for u, (tt, j) in enumerate(units):
                    d = vr(AB + 4 * u, 4)
                    if s < 4: out.append(f"v_mfma_f32_16x16x32_bf16 {d}, {self.rg(W[tt][s],4)}, {self.rg(Bf[j][s],4)}, {d}")
                    else: out.append(f"v_mfma_f32_16x16x16_bf16 {d}, {self.rg(W[tt][4],2)}, {self.rg(Bf[j][4],2)}, {d}")
            return out
        xu = []
        for u, (tt, j) in enumerate(units):
            for h in range(2):
                x = self.XRS[j] + 2 * tt + h if tt < 2 else self.XRS[2] + h
                xu += [f"v_lshlrev_b32 {vr(AB+4*u+2*h)}, 16, {vr(x)}", f"v_and_b32 {vr(AB+1+4*u+2*h)}, 0xffff0000, {vr(x)}"]
        a("s_waitcnt vmcnt(14)")
        weave(bfrags(BU, X2O), xu, 2)
        pl = lambda k, i, e: f"v_add_f32 {vr(M+4*i+e)}, {vr(M+4*i+e)}, {vr(X[k][i]+e)}"
        ds = L[0] + L[1] + L[2] + [f"s_not_b64 exec, {sr(MP1,2)}\n" + "\n".join(L8) + "\ns_mov_b64 exec, -1", f"ds_read_b128 {vr(LO,4)}, {vr(LO)} offset:512"]
        nis = [1] * 12 + [3, 1]
        gap = [[] for _ in range(25)]
        tot = [10]
        for g in range(25): tot.append(tot[-1] + (nis[g] if g < 14 else 0))
        A0 = [pl(0, i, e) for i in range(4) for e in range(4)]
        A1 = [pl(1, i, e) for i in range(4) for e in range(4)]
        ib = inbox(2)
        for g, m in enumerate(fg(self.WD, BU)):
            if g % 5 == 0: a(f"s_waitcnt lgkmcnt({min(15, tot[g] - 2 * (g // 5 + 1))})")
            a(m)
            if g == 8: a(f"s_waitcnt lgkmcnt({tot[g] - 14})")
            if g == 16: a(f"s_waitcnt lgkmcnt({tot[g] - 18})")
            if g < 14: a(ds[g])
            if 8 <= g < 14: a(A0.pop(0))
            elif g in (14, 18, 22): a(ib.pop(0))
            elif g >= 14:
                for _ in range(2): a(A0.pop(0) if A0 else A1.pop(0))
        assert not A0 and len(A1) % 2 == 0
        n1 = 16 - len(A1)
        for e in range(n1, 16, 2): a(f"v_pk_add_f32 {p(M+e)}, {p(M+e)}, {p(X[1][e//4]+e%4)}")
        a("s_waitcnt lgkmcnt(0)")
        for x in adds(X, 2, range(4)): a(x)
        a(f"v_add_f32 {vr(LO)}, {vr(LO)}, {vr(LO+1)}\nv_add_f32 {vr(LO+2)}, {vr(LO+2)}, {vr(LO+3)}")
        for kk in range(3):
            for x in adds(X, kk, [4]): a(x)
        a(f"s_mov_b32 {sr(T+2)}, 0\nv_add_f32 {vr(LO)}, {vr(LO)}, {vr(LO+2)}")
        self.stamp("own")
        w, PU = 40, 128
        mo = MK + 3

        def chk(k):
            r = [IN[k][q] + i for q in range(3) for i in range(4)]
            c = [f"v_max3_u32 v46, {vr(r[0])}, {vr(r[1])}, {vr(r[2])}", f"v_max3_u32 v47, {vr(r[3])}, {vr(r[4])}, {vr(r[5])}"]
            for q in range(3): c.append(f"v_max3_u32 v{46+(q&1)}, v{46+(q&1)}, {vr(r[6+2*q])}, {vr(r[7+2*q])}")
            return c + ["v_max_u32 v46, v46, v47", "v_cmp_eq_u32 vcc, -1, v46"]

        def take(k, with_chk):
            r = [IN[k][q] + i for q in range(3) for i in range(4)]
            lp_, mp = r[10], r[11]
            wt = [f"v_min_f32 {vr(w)}, {vr(mo)}, {vr(mp)}", f"v_sub_f32 {vr(w+2)}, {vr(w)}, {vr(mp)}", f"v_sub_f32 {vr(w)}, {vr(w)}, {vr(mo)}",
                  f"v_exp_f32 {vr(w+2)}, {vr(w+2)}", f"v_exp_f32 {vr(w)}, {vr(w)}", f"v_mul_f32 {vr(w+4)}, {vr(w+2)}, {vr(lp_)}",
                  f"v_fmac_f32 {vr(w+4)}, {vr(w)}, {vr(LO)}", f"v_rcp_f32 {vr(w+4)}, {vr(w+4)}", f"v_mul_f32 {vr(w)}, {vr(w)}, {vr(w+4)}",
                  f"v_mul_f32 {vr(w+2)}, {vr(w+2)}, {vr(w+4)}"]
            un = []
            for i in range(10): un += [f"v_lshlrev_b32 {vr(PU+2*i)}, 16, {vr(r[i])}", f"v_and_b32 {vr(PU+1+2*i)}, 0xffff0000, {vr(r[i])}"]
            c = chk(k) if with_chk else []
            for i in range(10):
                a(wt[i])
                if c: a(c.pop(0))
                a(un.pop(0)); a(un.pop(0))
        a("s_waitcnt vmcnt(6)")
        take(0, True)
        a("s_cmp_eq_u64 vcc, 0\ns_cbranch_scc0 L_poll2")
        a.label("L_got")
        self.stamp("got")
        for i in range(10): a(f"v_pk_mul_f32 {p(M+2*i)}, {p(M+2*i)}, {p(w)} op_sel_hi:[1,0]")
        for i in range(10): a(f"v_pk_fma_f32 {p(M+2*i)}, {p(PU+2*i)}, {p(w+2)}, {p(M+2*i)} op_sel_hi:[1,0,1]")
        for i in range(10):
            a(f"v_cvt_pk_bf16_f32 {vr(UP+i)}, {vr(M+2*i)}, {vr(M+2*i+1)}")
            if i == 3: a(f"ds_write_b128 {vr(VXW)}, {vr(UP,4)}")
            if i == 7: a(f"ds_write_b128 {vr(VXW)}, {vr(UP+4,4)} offset:1024")
        a(f"""s_not_b64 exec, {sr(MP1,2)}
        ds_write_b64 {vr(VXR)}, {vr(UP+8,2)}
        s_mov_b64 exec, -1
        s_waitcnt lgkmcnt(0)
        s_barrier""")
        self.stamp("B3")
        for x in bfrags(BO, 0): a(x)
        for g, m in enumerate(fg(self.WO, BO)):
            if g % 5 == 0: a(f"s_waitcnt lgkmcnt({8 - 2 * (g // 5)})" + ("\ns_nop 0" if g == 20 else ""))
            a(m)
        self.stamp("gem")
        a("s_nop 3")
        for j in range(2):
            for tt in range(2):
                u = 2 * tt + j
                for h in range(2): a(f"v_cvt_pk_bf16_f32 {vr(16+4*j+2*tt+h)}, {vr(AB+4*u+2*h)}, {vr(AB+4*u+2*h+1)}")
            a(f"buffer_store_dwordx4 {vr(16+4*j,4)}, {vr(VO+j)}, {sr(S_OUT,4)}, {sr(self.E_COL)} offen {o.get('ofl', '')}")
        a(f"s_cmp_ge_u32 {sr(S_W)}, 2\ns_cbranch_scc1 L_fin")
        for h in range(2): a(f"v_cvt_pk_bf16_f32 {vr(24+h)}, {vr(AB+16+2*h)}, {vr(AB+16+2*h+1)}")
        a(f"buffer_store_dwordx2 v[24:25], {vr(self.VO8)}, {sr(S_OUT,4)}, 0 offen offset:256 {o.get('ofl', '')}")
        self.stamp("fin")

        def poll2():
            a.label("L_poll2")
            for k in (1, 2, 0):
                for x in inbox((k + 2) % 3): a(x)
                a("s_waitcnt vmcnt(6)")
                for x in chk(k): a(x)
                a(f"s_add_u32 {sr(T+2)}, {sr(T+2)}, 1\ns_cmp_eq_u64 vcc, 0\ns_cbranch_scc1 L_take{k}")
            a(f"s_cmp_lt_u32 {sr(T+2)}, 0x10000\ns_cbranch_scc1 L_poll2")
            for k in (0, 1, 2):
                a.label(f"L_take{k}")
                take(k, False)
                a("s_branch L_got")
        self.poll2 = poll2

    def fallback(self):
        a = self.a
        T = S_T
        MXR = 208
        a.label("L_fallback")
        a(f"""s_waitcnt vmcnt(0) lgkmcnt(0)
        s_barrier
        s_mov_b32 {sr(S_REDO)}, 1
        s_mov_b32 {sr(S_UG)}, 0x40000000
        {self.xa_srd()}
        s_mov_b32 {sr(S_TOFF)}, {sr(S_LB)}
        s_cmp_eq_u32 {sr(S_DUM)}, 4
        s_cselect_b32 {sr(S_CNT)}, 15, 16""")
        for i in range(4): a(f"v_mov_b32 {vr(MXR+i)}, 0xff800000")
        a.label("L_fb1")
        for g in self.tile_groups(0): a(g)
        a("s_waitcnt vmcnt(0)")
        for x in self.k_reads(0): a(x)
        a("s_waitcnt lgkmcnt(0)")
        for m in self.qk_mfmas(0, czero=True): a(m)
        a("s_nop 7")
        for qb in range(4):
            for i in range(0, 8, 2): a(f"v_max3_f32 {vr(MXR+qb)}, {vr(MXR+qb)}, {vr(self.S(0,qb,i))}, {vr(self.S(0,qb,i+1))}")
        a(f"s_sub_u32 {sr(S_CNT)}, {sr(S_CNT)}, 1\ns_cmp_lg_u32 {sr(S_CNT)}, 0\ns_cbranch_scc1 L_fb1")
        self.greduce([MXR + i for i in range(4)], MXR + 4, "v_max_f32")
        a(f"""v_and_b32 {vr(MXR+4)}, 15, v0
        v_lshlrev_b32 {vr(MXR+4)}, 4, {vr(MXR+4)}
        v_add_u32 {vr(MXR+4)}, {L_SP}, {vr(MXR+4)}
        s_lshl_b32 {sr(T)}, {sr(S_W)}, 2
        s_xor_b32 {sr(T+1)}, {sr(self.NB)}, 1
        v_lshl_add_u32 {vr(MXR+5)}, {sr(self.NB)}, 8, {vr(MXR+4)}
        v_lshl_add_u32 {vr(MXR+4)}, {sr(T+1)}, 8, {vr(MXR+4)}
        v_add_u32 {vr(MXR+6)}, {sr(T)}, {vr(MXR+4)}
        v_add_u32 {vr(MXR+7)}, {sr(T)}, {vr(MXR+5)}""")
        for qb in range(4): a(f"ds_write_b32 {vr(MXR+6+(qb&1))}, {vr(MXR+qb)} offset:{512*(qb>>1)}")
        a("s_waitcnt lgkmcnt(0)\ns_barrier")
        for qb in range(4): a(f"ds_read_b128 {vr(16+4*qb,4)}, {vr(MXR+4+(qb&1))} offset:{512*(qb>>1)}")
        a(f"s_mov_b32 {sr(S_TOFF)}, {sr(S_LB)}")
        for g in self.tile_groups(0) + self.tile_groups(1) + self.tile_groups(2)[:8]: a(g)
        a("s_waitcnt lgkmcnt(0)")
        for qb in range(4):
            r = 16 + 4 * qb
            a(f"v_max_f32 {vr(r)}, {vr(r)}, {vr(r+1)}\nv_max3_f32 {vr(r)}, {vr(r)}, {vr(r+2)}, {vr(r+3)}")
            a(f"v_sub_f32 {vr(self.MK+qb)}, 0, {vr(r)}")
        a("s_waitcnt vmcnt(0)")
        for x in self.k_reads(0, V_V): a(x)
        self.loop_init(False)
        a("s_branch L_go")


if __name__ == "__main__":
    opt = json.loads(sys.argv[2]) if len(sys.argv) > 2 else {}
    g = G(opt)
    txt = g.build()
    if opt.get("align", 1):
        from align import align
        for n2 in (1, 2):
            try:
                txt, st = align(txt, chains=[(1, "L_tr")] * 3 + [(1, "L_tr2"), (n2, "L_tr2")] if opt.get("touch", 1) else None)
                break
            except AssertionError as e:
                if n2 == 2: raise
        print("align: promoted %d, padded %d, left %d" % st)
    txt = txt.replace("\n", "\n; stamps " + json.dumps(g.stnames) + "\n; map %d\n" % g.mp, 1)
    open(sys.argv[1], "w").write(txt)
```

```python
import sys, json, math
from common import Asm, vr, ar, sr, kernel_header, kernel_desc
from lay import *

NAME = "standalone__conformer_family_branchformer__speech_kernel"
NH = 2
NWG = 252 + NH
CHAINS = (3, 3)
RING = 4
LDS_RING = RING * TILE
LDS_TOTAL = 163840
SLOT = 4 * TILE
L_WU, L_WQ, L_WK = 0, 41472, 82944
L_XX, L_XR = 126976, 143360
L_QD = 18432
L_XS = L_XX + L_QD
L_MX = 81920
L_PC = LDS_TOTAL - 256
L_DUMP = 123904
L_SP = 147456

S_X, S_WS, S_XA, S_DB, S_W1, S_W2, S_OUT, S_DW = 8, 12, 16, 20, 24, 28, 32, 36
S_W, S_B, S_H, S_QB, S_TOFF, S_CNT, S_DUM, S_LB, S_TOWN, S_TSND, S_VAL, S_REDO = range(40, 52)
S_UG = 25
S_N, S_FB = 98, 99
S_INC = 24
S_T = 52
S_ST = 76

V_KA, V_VA, V_VR, V_DMA, V_L, V_VB = 1, 3, 5, 6, 10, 14
V_S, V_CI, V_P, V_K, V_V = 16, 80, 96, 128, 164
V_HI = 200
V_X = 208
A_O, A_Q, A_F = 0, 144, 216

LOG2E = 1.4426950408889634
import struct
def f32(x): return "0x%08x" % struct.unpack("<I", struct.pack("<f", x))[0]


class BAsm(Asm):
    def __init__(self):
        super().__init__()
        self.bg, self.every, self.cnt, self.skip = [], 0, 0, 0

    def __call__(self, s):
        for l in s.split("\n"):
            l = l.strip()
            if not l: continue
            self.lines.append("    " + l)
            if self.bg and self.every and not l.startswith(("s_nop", "v_mov_b32", "v_exp", "v_rcp", "v_rsq", "v_sqrt", "s_add_u32 m0")):
                self.cnt += 1
                if self.cnt >= self.every:
                    self.cnt = 0
                    self.pop()

    def pop(self):
        for x in self.bg.pop(0).split("\n"): self.lines.append("    " + x)

    def flush(self):
        while self.bg: self.pop()
        self.every = 0


class G:
    def __init__(self, opt):
        self.o = opt
        self.a = BAsm()
        self.nst = 0
        self.fill = []

    def stamp(self, name):
        if self.o.get("stamps"):
            if name in self.o.get("skipst", []): return
            if "only" in self.o and name not in self.o["only"]: return
            if self.nst >= 11: return
            self.a(f"{'s_memtime' if self.o.get('cyc') else 's_memrealtime'} {sr(S_ST + 2*self.nst, 2)}")
            self.stnames.append(name)
            self.nst += 1

    def srd(self, dst, lo, hi, n):
        if dst == S_WS and self.o.get("wsoff"):
            self.a(f"s_add_u32 {sr(dst)}, {sr(lo)}, {self.o['wsoff']}\ns_addc_u32 {sr(dst+1)}, {sr(hi)}, 0\ns_mov_b32 {sr(dst+2)}, {n}\ns_mov_b32 {sr(dst+3)}, 0x20000")
            return
        self.a(f"s_mov_b32 {sr(dst)}, {sr(lo)}\ns_mov_b32 {sr(dst+1)}, {sr(hi)}\ns_mov_b32 {sr(dst+2)}, {n}\ns_mov_b32 {sr(dst+3)}, 0x20000")

    def greduce(self, regs, tmp, op="v_add_f32"):
        a = self.a
        for sw in ("32", "16"):
            for i, r in enumerate(regs): a(f"v_mov_b32 {vr(tmp+i)}, {vr(r)}")
            if len(regs) < 3: a("s_nop 1" if len(regs) == 1 else "s_nop 0")
            for i, r in enumerate(regs): a(f"v_permlane{sw}_swap_b32 {vr(r)}, {vr(tmp+i)}")
            for i, r in enumerate(regs): a(f"{op} {vr(r)}, {vr(r)}, {vr(tmp+i)}")

    def treduce(self, r, op="v_add_f32"):
        a = self.a
        a(f"v_permlane32_swap_b32 {vr(r)}, {vr(r+2)}\nv_permlane32_swap_b32 {vr(r+1)}, {vr(r+3)}")
        a(f"{op} {vr(r)}, {vr(r)}, {vr(r+2)}\n{op} {vr(r+1)}, {vr(r+1)}, {vr(r+3)}\ns_nop 1")
        a(f"v_permlane16_swap_b32 {vr(r)}, {vr(r+1)}\n{op} {vr(r)}, {vr(r)}, {vr(r+1)}")

    def rbf(self, r):
        self.a(f"v_cvt_pk_bf16_f32 {vr(r)}, {vr(r)}, {vr(r)}\nv_lshlrev_b32 {vr(r)}, 16, {vr(r)}")

    def ln_tail(self, F, out, t, mimic):
        a = self.a
        p = lambda r: vr(r, 2)
        self.greduce([t, t + 1], t + 2)
        a(f"v_mul_f32 {vr(t+2)}, {f32(1.0/144)}, {vr(t)}")
        a(f"v_mul_f32 {vr(t+3)}, {vr(t+2)}, {vr(t+2)}")
        a(f"v_mov_b32 {vr(t+4)}, {f32(1.0/144)}")
        a(f"v_fma_f32 {vr(t)}, {vr(t+1)}, {vr(t+4)}, -{vr(t+3)}")
        a(f"v_max_f32 {vr(t)}, 0, {vr(t)}")
        if mimic:
            self.rbf(t)
            self.rbf(t + 2)
            a(f"v_add_f32 {vr(t)}, {f32(1e-5)}, {vr(t)}")
            self.rbf(t)
            a(f"v_sqrt_f32 {vr(t)}, {vr(t)}\ns_nop 0")
            self.rbf(t)
            a(f"v_rcp_f32 {vr(t)}, {vr(t)}\ns_nop 0")
        else:
            a(f"v_add_f32 {vr(t)}, {f32(1e-5)}, {vr(t)}")
            a(f"v_rsq_f32 {vr(t)}, {vr(t)}\ns_nop 0")
        a(f"v_mul_f32 {vr(t+2)}, -{vr(t+2)}, {vr(t)}")
        for i in range(18):
            a(f"v_pk_fma_f32 {p(F+2*i)}, {p(F+2*i)}, {p(t)}, {p(t+2)} op_sel_hi:[1,0,0]")
        for i in range(18):
            a(f"v_cvt_pk_bf16_f32 {vr(out+i)}, {vr(F+2*i)}, {vr(F+2*i+1)}")

    def ln_packed(self, X, F, out, t):
        a = self.a
        a(f"v_mov_b32 {vr(t+6)}, 0x3f803f80")
        for k in range(4): a(f"v_mov_b32 {vr(t+k)}, 0")
        for i in range(18):
            a(f"v_dot2_f32_bf16 {vr(t+2*(i&1))}, {vr(X+i)}, {vr(t+6)}, {vr(t+2*(i&1))}")
            a(f"v_dot2_f32_bf16 {vr(t+1+2*(i&1))}, {vr(X+i)}, {vr(X+i)}, {vr(t+1+2*(i&1))}")
        for i in range(2):
            a(f"v_lshlrev_b32 {vr(F+2*i)}, 16, {vr(X+i)}\nv_and_b32 {vr(F+2*i+1)}, 0xffff0000, {vr(X+i)}")
        a(f"v_pk_add_f32 {vr(t,2)}, {vr(t,2)}, {vr(t+2,2)}")
        un = []
        for i in range(2, 18):
            un.append(f"v_lshlrev_b32 {vr(F+2*i)}, 16, {vr(X+i)}\nv_and_b32 {vr(F+2*i+1)}, 0xffff0000, {vr(X+i)}")
        sv = (a.bg, a.every, a.cnt, a.skip)
        n0 = len(a.lines)
        a.bg, a.every = [], 0
        self.ln_tail(F, out, t, True)
        tail = a.lines[n0:]
        del a.lines[n0:]
        a.bg, a.every, a.cnt, a.skip = sv
        k = next(i for i, l in enumerate(tail) if "v_pk_fma" in l)
        for i, l in enumerate(tail[:k]):
            if "s_nop" in l and un: continue_nop = True
            a(l)
            if un and not l.strip().startswith("s_nop"): a(un.pop(0))
        while un: a(un.pop(0))
        for l in tail[k:]: a(l)

    def ln_f32(self, F, out, t):
        a = self.a
        p = lambda r: vr(r, 2)
        a(f"v_pk_add_f32 {p(t)}, {p(F)}, {p(F+2)}\nv_pk_add_f32 {p(t+2)}, {p(F+4)}, {p(F+6)}")
        a(f"v_pk_mul_f32 {p(t+4)}, {p(F)}, {p(F)}\nv_pk_mul_f32 {p(t+6)}, {p(F+2)}, {p(F+2)}")
        for i in range(2, 18):
            if i >= 4: a(f"v_pk_add_f32 {p(t+2*(i&1))}, {p(t+2*(i&1))}, {p(F+2*i)}")
            a(f"v_pk_fma_f32 {p(t+4+2*(i&1))}, {p(F+2*i)}, {p(F+2*i)}, {p(t+4+2*(i&1))}")
        a(f"v_pk_add_f32 {p(t)}, {p(t)}, {p(t+2)}\nv_pk_add_f32 {p(t+4)}, {p(t+4)}, {p(t+6)}")
        a(f"v_add_f32 {vr(t)}, {vr(t)}, {vr(t+1)}\nv_add_f32 {vr(t+1)}, {vr(t+4)}, {vr(t+5)}")
        self.ln_tail(F, out, t, False)

    def gemm_u(self, AF, rf, Bs, ACC, afr, bfr, post, vm_items=(), other=(), lead=7, vm0=0, vmsp=4):
        a = self.a
        units = [(0, j) for j in range(4)] + [(1, j) for j in range(4)] + [(2, 0)]
        seq, dl = [], {}
        bs = lambda j, o_, n: self.rg((Bs[j][0], Bs[j][1] + o_), n)
        rem = lambda u: (f"v_mfma_f32_16x16x16_bf16 {vr(ACC+4*u,4)}, {rf(AF+18*units[u][0]+16,2)}, {bs(units[u][1],16,2)}, {vr(ACC+4*u,4)}", u)
        A = [afr(t) for t in range(3)]
        Bf = [bfr(j) for j in range(4)]

        def use(t, j, s, k):
            for x in (A[t][2 * s:2 * s + 2] if s < 4 else A[t][8:]) + ([Bf[j][s]] if Bf[j] else []): dl.setdefault(x, k)
        for g in range(4):
            for s in range(4):
                for u in range(3 * g, 3 * g + 3) if g < 3 else []:
                    t, j = units[u]
                    d = vr(ACC + 4 * u, 4)
                    use(t, j, s, len(seq))
                    seq.append((f"v_mfma_f32_16x16x32_bf16 {d}, {rf(AF+18*t+4*s,4)}, {bs(j,4*s,4)}, {'0' if s == 0 else d}", None))
                if s == 0 and g > 0:
                    for u in range(3 * g - 3, 3 * g):
                        use(units[u][0], units[u][1], 4, len(seq)); seq.append(rem(u))
        last = seq[-3:]; seq = seq[:-3]
        ds = sorted(dl.items(), key=lambda e: e[1]) + [(x, 99) for x in other]
        vm_items = list(vm_items)
        lastvm = vm0 - vmsp
        order, ready, q, done = [], [], [], 0

        def issue():
            x, k_ = ds.pop(0); a(x); order.append(k_)

        def wait(k):
            nonlocal done
            idx = [i_ for i_, k_ in enumerate(order) if k_ <= k]
            if idx and max(idx) + 1 > done:
                a(f"s_waitcnt lgkmcnt({min(15, len(order) - 1 - max(idx))})"); done = max(idx) + 1
        while ds and ds[0][1] < 6: issue()
        for k, (m, fin) in enumerate(seq):
            assert not ds or ds[0][1] > k, (k, ds[0])
            wait(k)
            a(m)
            for u_, kk in list(ready):
                if k - kk >= 4: q += post(u_); ready.remove((u_, kk))
            if fin is not None: ready.append((fin, k))
            due = sum(1 for x, k_ in ds if k_ <= k + lead)
            if due == 0 and vm_items and k >= lastvm + vmsp:
                a(vm_items.pop(0)); lastvm = k; continue
            cap = 2
            for _ in range(min(due, 3)): issue(); cap -= 1
            if cap == 2:
                if q and q[0].startswith("ds_"): a(q.pop(0)); order.append(99); cap -= 1
                elif ds: issue(); cap -= 1
            while cap > 0 and q and not q[0].startswith("ds_"):
                a(q.pop(0)); cap -= 1
        assert not ready
        while ds: issue()
        wait(98)
        for x in vm_items: a(x)
        for x in q[:4]: a(x)
        a(f"s_nop {max(0, 4 - len(q[:4]))}")
        for m, _ in last: a(m)
        for x in q[4:]: a(x)
        a(f"s_nop {max(0, 6 - len(q[4:]))}")
        for u in range(6, 9):
            for x in post(u): a(x)

    def gemm(self, reads, B, ACC, AF, late=(), at={}, per=2):
        a = self.a
        buf = lambda T: 18 * (T % 6)
        ng = 3 * (4 * per + 1)

        def grp(g):
            r = [reads(T, buf(T)) for T in range(3 * g, 3 * g + 3)]
            return [r[t][per * s + u] for s in range(4) for t in range(3) for u in range(per)] + [r[t][4 * per] for t in range(3)]
        rem = lambda T: f"v_mfma_f32_16x16x16_bf16 {vr(ACC+4*T,4)}, {ar(buf(T)+16,2)}, {vr(B+16,2)}, {vr(ACC+4*T,4)}"
        pend = grp(0) + grp(1) + grp(2) + list(late)
        issued = k = 0

        def issue(n):
            nonlocal issued
            for _ in range(n):
                if issued < len(pend): a(pend[issued]); issued += 1

        def mf(x):
            nonlocal k
            a(x); issue(per if per == 2 else (2 if k % 4 == 0 else 1))
            if k in at: a(at[k])
            k += 1
        issue(self.o.get('look', 12) if per == 2 else self.o.get('look1', 8))
        for g in range(3):
            for s in range(4):
                need = ng * g + 3 * per * (s + 1)
                a(f"s_waitcnt lgkmcnt({min(15, issued - need)})")
                for T in range(3 * g, 3 * g + 3):
                    d = vr(ACC + 4 * T, 4)
                    mf(f"v_mfma_f32_16x16x32_bf16 {d}, {ar(buf(T)+4*s,4)}, {vr(B+4*s,4)}, {'0' if s == 0 else d}")
                if s == 0 and g > 0:
                    for T in range(3 * g - 3, 3 * g): mf(rem(T))
                if g == 1 and s == 0: assert issued <= 2 * ng + 6 * per, "group 2 overwrites group 0 too early"
        issue(99)
        a(f"s_waitcnt lgkmcnt({len(late)})\ns_nop 2")
        for T in range(6, 9): a(rem(T))
        a("s_nop 7")

    def tr_reads(self, ad, rf=ar):
        def f(T, dst):
            out = []
            for s in range(4):
                for u in range(2):
                    out.append(f"ds_read_b64_tr_b16 {rf(dst+4*s+2*u,2)}, {vr(ad+u)} offset:{9216*s + 32*T}")
            out.append(f"ds_read_b64_tr_b16 {rf(dst+16,2)}, {vr(ad+2)} offset:{36864 + 32*T}")
            return out
        return f

    def row_reads(self, ad, sw=None):
        def f(T, dst):
            r = ad if sw is None or T == 8 else sw[T & 1]
            out = []
            for s in range(4):
                for u in range(2):
                    out.append(f"ds_read_b64 {ar(dst+4*s+2*u,2)}, {vr(r)} offset:{4864*T + 64*s + 32*u}")
            out.append(f"ds_read_b64 {ar(dst+16,2)}, {vr(r)} offset:{4864*T + 256}")
            return out
        return f

    def dma_rows(self, jobs, cpr, rstride, vo, vc, n_first, first_waves, lab):
        a = self.a
        mul = {18: 3641, 19: 3450}[cpr]
        dr, dc = 256 // cpr, 256 % cpr
        a(f"s_lshl_b32 {sr(S_T)}, {sr(S_W)}, 6")
        a(f"v_add_u32 {vr(vc)}, {sr(S_T)}, v0")
        a(f"v_mul_u32_u24 {vr(vo)}, {mul}, {vr(vc)}")
        a(f"v_lshrrev_b32 {vr(vo)}, 16, {vr(vo)}")
        a(f"v_mul_u32_u24 {vr(vc+1)}, {cpr}, {vr(vo)}")
        a(f"v_sub_u32 {vr(vc)}, {vr(vc)}, {vr(vc+1)}")
        a(f"v_mul_u32_u24 {vr(vo)}, {rstride}, {vr(vo)}")
        a(f"v_lshl_add_u32 {vr(vo)}, {vr(vc)}, 4, {vr(vo)}")
        a(f"s_lshl_b32 {sr(S_T)}, {sr(S_W)}, 10")
        a(f"v_mov_b32 {vr(vc+1)}, {rstride - 16*cpr}")
        for k in range(n_first):
            if k == n_first - 1:
                a(f"s_cmp_ge_u32 {sr(S_W)}, {first_waves}\ns_cbranch_scc1 {lab}")
            for srd, so, lb in jobs:
                a(f"s_add_u32 m0, {sr(S_T)}, {lb + 4096*k}")
                a("s_nop 0")
                a(f"buffer_load_dwordx4 {vr(vo)}, {sr(srd,4)}, {so} offen lds")
            if k < n_first - 1:
                a(f"v_add_u32 {vr(vc)}, {dc}, {vr(vc)}")
                a(f"v_cmp_le_u32 vcc, {cpr}, {vr(vc)}")
                a(f"v_add_u32 {vr(vo)}, {dr*rstride + 16*dc}, {vr(vo)}")
                a(f"v_subrev_u32 {vr(vc+2)}, {cpr}, {vr(vc)}")
                a(f"v_cndmask_b32 {vr(vc)}, {vr(vc)}, {vr(vc+2)}, vcc")
                a(f"v_cndmask_b32 {vr(vc+2)}, 0, {vr(vc+1)}, vcc")
                a(f"v_add_u32 {vr(vo)}, {vr(vo)}, {vr(vc+2)}")
        a.label(lab)

    def voff_table(self, dst, cpr, rstride, vc, step=256):
        a = self.a
        mul = {18: 29128, 19: 27595}[cpr]
        n = len(dst)
        a(f"s_mov_b32 {sr(S_T)}, {rstride - 16*cpr}")
        a(f"v_mul_u32_u24 {vr(dst[0])}, {mul}, {vr(vc)}")
        for k in range(1, n): a(f"v_add_u32 {vr(dst[k])}, {(step*k % cpr)*mul}, {vr(dst[0])}")
        for k in range(n): a(f"v_lshrrev_b32 {vr(dst[k])}, 19, {vr(dst[k])}")
        for k in range(n): a(f"v_mad_i32_i24 {vr(dst[k])}, {vr(dst[k])}, {sr(S_T)}, {vr(vc+1)}")

    def dma_lin(self, srd, soff, lb, v16, lab):
        a = self.a
        a(f"s_lshl_b32 {sr(S_T)}, {sr(S_W)}, 10")
        for k in range(11):
            if k == 10:
                a(f"s_cmp_ge_u32 {sr(S_W)}, 1\ns_cbranch_scc1 {lab}")
            a(f"s_add_u32 m0, {sr(S_T)}, {lb + 4096*k}")
            a(f"s_add_u32 {sr(S_T+1)}, {sr(S_T)}, {soff + 4096*k}")
            a(f"buffer_load_dwordx4 {vr(v16)}, {sr(srd,4)}, {sr(S_T+1)} offen lds")
        a.label(lab)

    def tr_addr(self, ad, base, swapped, t):
        a = self.a
        a(f"v_lshrrev_b32 {vr(t)}, 2, v0")
        a(f"v_mul_u32_u24 {vr(t)}, 288, {vr(t)}")
        a(f"v_and_b32 {vr(t+1)}, 3, v0")
        a(f"v_lshl_add_u32 {vr(t)}, {vr(t+1)}, 3, {vr(t)}")
        a(f"v_add_u32 {vr(ad+2)}, {base}, {vr(t)}")
        if swapped:
            a(f"v_bfe_u32 {vr(t)}, v0, 4, 1")
            a(f"v_mul_u32_u24 {vr(t)}, {16*288}, {vr(t)}")
            a(f"v_add_u32 {vr(ad)}, {vr(ad+2)}, {vr(t)}")
            a(f"v_sub_u32 {vr(ad+1)}, {vr(ad+2)}, {vr(t)}")
            a(f"v_add_u32 {vr(ad+1)}, {16*288}, {vr(ad+1)}")
        else:
            a(f"v_mov_b32 {vr(ad)}, {vr(ad+2)}")
            a(f"v_add_u32 {vr(ad+1)}, {16*288}, {vr(ad+2)}")

    def row_addr(self, ad, base, t):
        a = self.a
        a(f"v_and_b32 {vr(t)}, 15, v0")
        a(f"v_mul_u32_u24 {vr(t)}, 304, {vr(t)}")
        a(f"v_lshrrev_b32 {vr(t+1)}, 4, v0")
        a(f"v_lshl_add_u32 {vr(t)}, {vr(t+1)}, 3, {vr(t)}")
        a(f"v_add_u32 {vr(ad)}, {base}, {vr(t)}")

    def store_block(self, src, v16, v8, srd, soff, soff2, flags=""):
        a = self.a
        for s in range(4):
            a(f"buffer_store_dwordx4 {vr(src+4*s,4)}, {vr(v16)}, {sr(srd,4)}, {sr(soff)} offen offset:{1024*s} {flags}")
        a(f"buffer_store_dwordx2 {vr(src+16,2)}, {vr(v8)}, {sr(srd,4)}, {sr(soff2)} offen {flags}")

    def entry(self):
        a = self.a
        kernel_header(a, NAME)
        a(f"s_load_dwordx16 s[56:71], s[0:1], 0")
        a(f"s_load_dwordx8 s[72:79], s[0:1], 64")
        a(f"s_getpc_b64 {sr(S_W1,2)}")
        a.label("L_pf")
        hl = self.o.get("hlast", 0)
        assert not hl
        a(f"""s_cmp_ge_u32 s2, {NH}
        s_cbranch_scc1 L_main
        s_memrealtime s[4:5]
        s_waitcnt lgkmcnt(0)
        s_mov_b32 {sr(S_DB)}, s76
        s_mov_b32 {sr(S_DB+1)}, s77
        s_mov_b32 {sr(S_DB+2)}, 256
        s_mov_b32 {sr(S_DB+3)}, 0x20000
        v_lshlrev_b32 v1, 8, v0
        s_or_b32 s4, s4, 1
        v_mov_b32 v2, s4
        s_lshl_b32 s5, s2, 8
        buffer_store_dword v2, v1, {sr(S_DB,4)}, s5 offen sc1
        s_branch L_wfuse""")
        a.label("L_main")
        a(f"""s_mov_b32 {sr(S_W1+2)}, L_dummy-L_pf
        s_mov_b32 {sr(S_W1+3)}, 0x20000
        v_lshlrev_b32 v1, 4, v0
        s_bfe_u32 {sr(S_T)}, s2, 0x30003
        s_lshl_b32 {sr(S_T)}, {sr(S_T)}, 12
        buffer_load_dwordx4 v[252:255], v1, {sr(S_W1,4)}, 0 offen
        buffer_load_dwordx4 v[252:255], v1, {sr(S_W1,4)}, {sr(S_T)} offen
        s_cmp_ge_u32 s2, {NWG - NH * hl}
        s_cbranch_scc1 {"L_wfuse" if hl else "L_end"}""")
        if self.o.get("late"):
            m_, v_, n_ = self.o["late"]
            a(f"""s_and_b32 s3, s2, {m_}
            s_cmp_lg_u32 s3, {v_}
            s_cbranch_scc1 L_nl
            s_memrealtime s[4:5]
            s_waitcnt lgkmcnt(0)
            s_add_u32 s6, s4, {n_}
            L_lt:
            s_memrealtime s[4:5]
            s_waitcnt lgkmcnt(0)
            s_sub_u32 s7, s6, s4
            s_cmp_gt_i32 s7, 0
            s_cbranch_scc1 L_lt
            L_nl:""")
        if self.o.get("stamps"):
            a("s_memrealtime s[100:101]" if not self.o.get("cyc") else "s_memtime s[100:101]")
        self.mp = 2
        a(f"""v_lshrrev_b32 v1, 6, v0
        s_sub_u32 s2, s2, {0 if hl else NH}
        v_readfirstlane_b32 {sr(S_W)}, v1
        s_and_b32 {sr(S_H)}, s2, 1
        s_bfe_u32 {sr(S_B)}, s2, 0x10001
        s_lshr_b32 {sr(S_QB)}, s2, 2
        v_and_b32 v0, 63, v0
        v_lshlrev_b32 {vr(V_DMA)}, 4, v0""")

    def vm_since(self, mark):
        return sum(1 for l in self.a.lines[mark:] if l.strip().startswith("buffer_"))

    def phase_a(self):
        a, o = self.a, self.o
        XR, XF, XA, ACC, G_, PK = 16, 34, 146, 110, 16, 164
        B4, XD = 16, 88
        VS, VSW, VR4, MXA, MXR, L8, TRU, TRQ, TRQ8, RK, TM = 200, 204, 208, 212, 213, 214, 215, 218, 221, 224, 228
        VK, VU = list(range(182, 193)), list(range(193, 200)) + list(range(104, 108))
        AQ1 = 200
        t0, t1, t2 = 250, 251, 227
        T = S_T
        WV, W10, UOFF, M1, PUB, M3 = 72, 70, 71, 69, 68, 65
        a(f"""s_lshl_b32 {sr(T)}, {sr(S_QB)}, 1
        s_add_u32 {sr(S_TOWN)}, {sr(T)}, {sr(S_H)}
        s_xor_b32 {sr(S_TSND)}, {sr(S_TOWN)}, 1
        s_cmp_lt_u32 {sr(S_TOWN)}, {NT}
        s_cselect_b32 {sr(S_VAL)}, 1, 0
        s_cmp_lt_u32 {sr(S_W)}, 2
        s_cselect_b32 {sr(T+3)}, {sr(S_TSND)}, {sr(S_TOWN)}
        s_mul_i32 {sr(T)}, {sr(S_B)}, {NT}
        s_add_u32 {sr(S_TOWN)}, {sr(S_TOWN)}, {sr(T)}
        s_add_u32 {sr(S_TSND)}, {sr(S_TSND)}, {sr(T)}
        s_add_u32 {sr(T+1)}, {sr(T+3)}, {sr(T)}
        s_lshl_b32 {sr(T+1)}, {sr(T+1)}, 1
        s_and_b32 {sr(T+2)}, {sr(S_W)}, 1
        s_add_u32 {sr(T+2)}, {sr(T+1)}, {sr(T+2)}
        s_mul_i32 {sr(T+1)}, {sr(T+2)}, {16*288}
        s_mul_i32 {sr(S_LB)}, {sr(S_W)}, {BLK}
        s_add_u32 {sr(S_LB)}, {sr(S_LB)}, {L_XS}
        s_mov_b32 m0, {sr(S_LB)}
        s_mov_b32 {sr(S_X+2)}, 2304000
        s_mov_b32 {sr(S_X+3)}, 0x20000
        s_add_u32 {sr(S_CNT)}, {sr(T+1)}, 4096
        s_waitcnt lgkmcnt(0)
        s_mov_b32 {sr(S_X)}, s56
        s_mov_b32 {sr(S_X+1)}, s57""")
        for k in range(4): a(f"buffer_load_dwordx4 {vr(V_DMA)}, {sr(S_X,4)}, {sr(T+1)} offen offset:{1024*k} lds")
        a(f"s_add_u32 m0, {sr(S_LB)}, 4096\ns_mov_b32 exec_hi, 0\nbuffer_load_dwordx4 {vr(V_DMA)}, {sr(S_X,4)}, {sr(S_CNT)} offen lds\ns_mov_b32 exec_hi, -1")
        mx = len(a.lines)
        SQ, SK, SU = S_W2, S_W1, S_XA
        self.srd(SU, 66, 67, 82944)
        self.srd(SQ, 58, 59, 41472)
        self.srd(SK, 60, 61, 41472)
        a(f"s_lshr_b32 {sr(T)}, s2, 3\ns_lshl_b32 {sr(T)}, {sr(T)}, 12\ns_lshl_b32 {sr(W10)}, {sr(S_W)}, 10\ns_add_u32 {sr(T)}, {sr(T)}, {sr(W10)}")
        a(f"buffer_load_dwordx4 v[252:255], {vr(V_DMA)}, {sr(SU,4)}, {sr(T)} offen")
        for srd_, rot in ((SQ, 82), (SK, 41)):
            a(f"s_add_u32 {sr(T+1)}, {sr(T)}, {(128 - rot) * 1024}\ns_and_b32 {sr(T+1)}, {sr(T+1)}, {127 * 1024}")
            a(f"buffer_load_dwordx4 v[252:255], {vr(V_DMA)}, {sr(srd_,4)}, {sr(T+1)} offen")
        self.srd(S_OUT, 74, 75, 2304000)
        self.srd(S_DB, 76, 77, 256)
        self.srd(S_WS, 78, 79, WS_END)
        def tlb():
            a(f"v_lshlrev_b32 v249, 21, v0")
            for ch in o.get("tlbw", "wdo"): a(f"buffer_load_dword v252, v249, {sr(dict(w=S_WS, d=S_DB, o=S_OUT)[ch],4)}, 0 offen")
        if o.get("tlb", 0) == 1: tlb()
        if o.get("tlb", 3) == 3:
            a(f"""s_bfe_u32 {sr(T)}, s2, 0x30003
            s_lshl_b32 {sr(T)}, {sr(T)}, 21
            v_mov_b32 v249, 0
            s_cmp_lt_u32 {sr(T)}, {5 << 21}
            s_cbranch_scc0 L_tl1
            buffer_load_dword v252, v249, {sr(S_WS,4)}, {sr(T)} offen
            s_branch L_tl3
            L_tl1:
            s_sub_u32 {sr(T)}, {sr(T)}, {5 << 21}
            s_cmp_lt_u32 {sr(T)}, {2 << 21}
            s_cbranch_scc0 L_tl2
            buffer_load_dword v252, v249, {sr(S_OUT,4)}, {sr(T)} offen
            s_branch L_tl3
            L_tl2:
            v_lshlrev_b32 v249, {o.get("dsh", 6)}, v0
            buffer_load_dword v252, v249, {sr(S_DB,4)}, 0 offen {o.get("dfl", "")}
            L_tl3:""")
            self.vm_adj = -2
        if o.get("stamps"): a(f"s_mov_b64 {sr(S_ST,2)}, s[100:101]"); self.stnames.append("start"); self.nst = 1
        self.stamp("xiss")
        a(f"""s_cmp_lt_u32 {sr(T+3)}, {NT}
        s_cselect_b32 {sr(WV)}, 1, 0
        s_mov_b32 {sr(WV+1)}, {sr(T+2)}
        s_mul_i32 {sr(UOFF)}, {sr(S_H)}, 288
        s_cmp_eq_u32 {sr(S_W)}, 0
        s_cselect_b32 {sr(M1)}, 0, {L_DUMP}
        s_cmp_lt_u32 {sr(S_W)}, 3
        s_cselect_b32 {sr(M3)}, {sr(W10)}, {L_DUMP}""")
        half = lambda g_: "s_mov_b32 exec_hi, 0\n" + g_ + "\ns_mov_b32 exec_hi, -1"
        gu = [f"s_add_u32 m0, {sr(W10 if k < 10 else M1)}, {L_WU + 4096*k}\ns_add_u32 {sr(S_CNT)}, {sr(UOFF)}, {4096*k + 288*(256*k//18)}\nbuffer_load_dwordx4 {vr(VU[k])}, {sr(SU,4)}, {sr(S_CNT)} offen lds" for k in range(11)]
        gu[10] = half(gu[10])
        gq = [f"s_add_u32 m0, {sr(W10 if k < 10 else M1)}, {L_WQ + 4096*k}\ns_add_u32 {sr(S_CNT)}, {sr(W10)}, {4096*k}\nbuffer_load_dwordx4 {vr(V_DMA)}, {sr(SQ,4)}, {sr(S_CNT)} offen lds" for k in range(11)]
        gq[10] = half(gq[10])
        gk = [f"s_add_u32 m0, {sr(W10 if k < 10 else M3)}, {L_WK + 4096*k}\ns_mov_b32 {sr(S_CNT)}, {4096*k - 16*(256*k//19)}\nbuffer_load_dwordx4 {vr(VK[k])}, {sr(SK,4)}, {sr(S_CNT)} offen lds" for k in range(11)]
        a(f"s_lshl_b32 {sr(T)}, {sr(S_W)}, 6\nv_add_u32 {vr(t0)}, {sr(T)}, v0\nv_lshlrev_b32 {vr(t1)}, 4, {vr(t0)}")
        self.voff_table(VU, 18, 576, t0)
        npre = o.get("npre", 3)
        a.bg, a.every, a.cnt = gu[:npre], o.get("evpre", 40), 0
        self.voff_table(VK, 19, 288, t0)
        xa0, xa1, xa2 = TM, TM + 1, TM + 2
        a(f"""v_and_b32 {vr(t0)}, 15, v0
        v_lshrrev_b32 {vr(t1)}, 5, v0
        v_lshlrev_b32 {vr(t1)}, 3, {vr(t1)}
        v_xor_b32 {vr(t1)}, {vr(t0)}, {vr(t1)}
        v_lshlrev_b32 {vr(t1)}, 4, {vr(t1)}
        v_lshrrev_b32 {vr(t2)}, 4, v0
        v_lshl_add_u32 {vr(V_KA)}, {vr(t2)}, 9, {vr(t1)}
        v_lshrrev_b32 {vr(t1)}, 3, {vr(t0)}
        v_lshlrev_b32 {vr(t1)}, 1, {vr(t1)}
        v_xor_b32 {vr(t1)}, {vr(t2)}, {vr(t1)}
        v_lshl_add_u32 {vr(t1)}, {vr(t0)}, 2, {vr(t1)}
        v_lshlrev_b32 {vr(V_KA+1)}, 3, {vr(t1)}
        v_lshlrev_b32 {vr(L8)}, 3, v0
        v_lshlrev_b32 {vr(MXR)}, 4, {vr(t0)}
        v_add_u32 {vr(MXR)}, {L_MX}, {vr(MXR)}
        v_add_u32 {vr(MXA)}, {sr(S_W)}, {vr(t2)}
        v_and_b32 {vr(MXA)}, 3, {vr(MXA)}
        v_lshl_add_u32 {vr(MXA)}, {vr(MXA)}, 8, {vr(MXR)}
        s_lshl_b32 {sr(T)}, {sr(S_W)}, 2
        v_add_u32 {vr(MXA)}, {sr(T)}, {vr(MXA)}
        v_mul_u32_u24 {vr(xa2)}, 288, {vr(t0)}
        v_lshl_add_u32 {vr(xa2)}, {vr(t2)}, 3, {vr(xa2)}
        v_add_u32 {vr(xa2)}, {sr(S_LB)}, {vr(xa2)}
        v_and_b32 {vr(t1)}, 1, {vr(t2)}
        v_lshlrev_b32 {vr(t1)}, 5, {vr(t1)}
        v_add_u32 {vr(xa0)}, {vr(xa2)}, {vr(t1)}
        v_xor_b32 {vr(t1)}, 32, {vr(t1)}
        v_add_u32 {vr(xa1)}, {vr(xa2)}, {vr(t1)}
        s_mul_i32 {sr(S_LB)}, {sr(S_W)}, {TILE}
        v_lshrrev_b32 {vr(t0)}, 2, v0
        v_bfe_u32 {vr(t1)}, v0, 1, 1
        v_lshlrev_b32 {vr(t1)}, 3, {vr(t1)}
        v_xor_b32 {vr(t1)}, {vr(t0)}, {vr(t1)}
        v_lshlrev_b32 {vr(t1)}, 4, {vr(t1)}
        v_and_b32 {vr(t2)}, 3, v0
        v_lshl_add_u32 {vr(t1)}, {vr(t2)}, 9, {vr(t1)}
        v_and_b32 {vr(V_VA)}, 1, v0
        v_lshl_add_u32 {vr(t1)}, {vr(V_VA)}, 3, {vr(t1)}
        s_and_b32 {sr(T)}, {sr(S_W)}, 1
        s_lshl_b32 {sr(T)}, {sr(T)}, 12
        s_add_u32 {sr(T+1)}, {sr(T)}, {sr(S_LB)}
        s_xor_b32 {sr(T)}, {sr(T)}, 4096
        s_add_u32 {sr(T)}, {sr(T)}, {sr(S_LB)}
        v_add_u32 {vr(V_VA)}, {sr(T)}, {vr(t1)}
        v_add_u32 {vr(V_VB)}, {sr(T+1)}, {vr(t1)}
        v_xor_b32 {vr(V_VA+1)}, 8, {vr(V_VA)}
        v_xor_b32 {vr(V_VB+1)}, 8, {vr(V_VB)}
        v_lshrrev_b32 {vr(t1)}, 5, v0
        v_lshlrev_b32 {vr(t1)}, 1, {vr(t1)}
        v_xor_b32 {vr(t1)}, {vr(t2)}, {vr(t1)}
        v_lshl_add_u32 {vr(t1)}, {vr(t0)}, 2, {vr(t1)}
        v_lshlrev_b32 {vr(t1)}, 3, {vr(t1)}
        v_add_u32 {vr(V_VR)}, {sr(S_LB)}, {vr(t1)}
        v_add_u32 {vr(V_DMA+1)}, 4096, {vr(V_DMA)}
        v_add_u32 {vr(V_DMA+2)}, 8192, {vr(V_DMA)}""")
        self.tr_addr(TRU, L_WU, True, t0)
        a(f"s_lshl_b32 {sr(T)}, {sr(S_W)}, 6\ns_add_u32 {sr(T)}, {sr(T)}, {L_WQ - L_WU}")
        for k in range(3):
            a(f"v_add_u32 {vr(TRQ+k)}, {sr(T)}, {vr(TRU+k)}\nv_add_u32 {vr(TRQ8+k)}, {L_WQ - L_WU + 256}, {vr(TRU+k)}")
        self.row_addr(RK + 2, L_WK + 8 * 4864, t0)
        a(f"""s_mul_i32 {sr(T)}, {sr(S_W)}, {2*4864}
        s_sub_u32 {sr(T)}, {sr(T)}, {8*4864}
        v_add_u32 {vr(t1)}, {sr(T)}, {vr(RK+2)}
        v_bfe_u32 {vr(t0)}, v0, 2, 1
        v_mul_u32_u24 {vr(t0)}, 4864, {vr(t0)}
        v_add_u32 {vr(RK)}, {vr(t1)}, {vr(t0)}
        v_sub_u32 {vr(RK+1)}, {vr(t1)}, {vr(t0)}""")
        for j in range(4):
            a(f"""s_add_u32 {sr(T)}, {sr(S_W)}, {j}
            s_and_b32 {sr(T)}, {sr(T)}, 3
            s_lshl_b32 {sr(T+1)}, {sr(T)}, 12
            s_add_u32 {sr(T+1)}, {sr(T+1)}, {L_XX}
            v_add_u32 {vr(VS+j)}, {sr(T+1)}, {vr(V_DMA)}
            s_lshl_b32 {sr(T+1)}, {sr(T)}, 9
            s_add_u32 {sr(T+1)}, {sr(T+1)}, {L_XR}
            v_add_u32 {vr(VR4+j)}, {sr(T+1)}, {vr(L8)}
            v_add_u32 {vr(VSW+j)}, {sr(W10)}, {vr(VS+j)}""")
        a(f"""s_sub_u32 {sr(T+2)}, 63, {sr(S_H)}
        s_add_u32 {sr(T+3)}, {sr(S_W)}, 60
        s_cmp_ge_u32 {sr(T+3)}, {sr(T+2)}
        s_cselect_b32 {sr(S_DUM)}, 4, 99
        s_mov_b32 {sr(S_REDO)}, 0
        s_mov_b32 {sr(S_TOFF)}, {sr(S_LB)}
        s_lshl_b32 {sr(PUB)}, {sr(S_TOWN)}, 8
        s_add_u32 {sr(PUB)}, {sr(PUB)}, {WS_F}
        s_cmp_eq_u32 {sr(S_W)}, 2
        s_cselect_b32 {sr(T)}, {sr(S_VAL)}, 0
        s_cmp_eq_u32 {sr(T)}, 1
        s_cselect_b32 {sr(PUB)}, {sr(PUB)}, 0x40000000
        s_lshl_b32 {sr(S_FB)}, s2, 8
        s_add_u32 {sr(S_FB)}, {sr(S_FB)}, {WS_F + 250*256}
        s_mul_i32 {sr(T)}, {sr(S_H)}, 1792
        s_sub_u32 {sr(T)}, {sr(T)}, 768
        s_mul_i32 {sr(T+1)}, {sr(S_H)}, 62
        s_cmp_eq_u32 {sr(S_QB)}, {sr(T+1)}
        s_cselect_b32 {sr(T)}, 0, {sr(T)}
        v_mov_b32 {vr(self.VPL)}, 0x40000000
        s_xor_b32 {sr(T+1)}, {sr(S_FB)}, 256
        s_add_u32 {sr(T)}, {sr(T)}, {sr(S_FB)}
        v_writelane_b32 {vr(self.VPL)}, {sr(S_FB)}, 0
        v_writelane_b32 {vr(self.VPL)}, {sr(T+1)}, 1
        v_writelane_b32 {vr(self.VPL)}, {sr(T)}, 2
        s_mov_b32 {sr(T)}, {WS_F + 502*256}
        s_mov_b32 {sr(T+1)}, {WS_F + 503*256}
        v_writelane_b32 {vr(self.VPL)}, {sr(T)}, 3
        v_writelane_b32 {vr(self.VPL)}, {sr(T+1)}, 4
        s_sub_u32 {sr(S_FB)}, {sr(S_FB)}, {L_PC}""")
        a.flush()
        if o.get("tlb", 0) == 2: tlb()
        self.stamp("pre")
        if o.get("es", 0) == 0: self.epi_setup()
        self.stamp("es")
        nx = self.vm_since(mx) + getattr(self, "vm_adj", 0)
        if o.get("touch", 1):
            a(f"""s_mov_b64 exec, 0
            s_cmp_eq_u32 {sr(S_W)}, 0
            s_cbranch_scc1 L_tr
            s_cmp_eq_u32 {sr(S_W)}, 1
            s_cbranch_scc1 L_t0
            s_cmp_eq_u32 {sr(S_W)}, 2
            s_cbranch_scc1 L_t1
            s_branch L_t2""")
            self.rare()
            a.raw(".p2align 12")
            a.label("L_tr")
            a("s_mov_b64 exec, -1")
        nlate = o.get("nlate", 0)
        for g_ in gu[npre:npre + nlate]: a(g_)
        a(f"s_waitcnt vmcnt({nx + nlate})")
        self.stamp("xarr")
        for s in range(4):
            a(f"ds_read_b64 {vr(XR+4*s,2)}, {vr(xa0)} offset:{64*s}\nds_read_b64 {vr(XR+4*s+2,2)}, {vr(xa1)} offset:{64*s}")
        a(f"ds_read_b64 {vr(XR+16,2)}, {vr(xa2)} offset:256")
        a(f"""s_and_b32 {sr(T)}, {sr(S_W)}, 1
        s_mul_i32 {sr(T+2)}, {sr(S_TOWN)}, {TILE}
        s_cmp_eq_u32 {sr(S_VAL)}, 1
        s_cselect_b32 {sr(T+2)}, {sr(T+2)}, 0x40000000
        s_lshl_b32 {sr(T+3)}, {sr(T)}, 8
        s_add_u32 {sr(T+3)}, {sr(T+3)}, {sr(T+2)}
        s_add_u32 {sr(T+4)}, {sr(T+3)}, 4096
        s_lshl_b32 {sr(T+5)}, {sr(T)}, 9
        s_add_u32 {sr(T+5)}, {sr(T+5)}, {sr(T+2)}
        s_add_u32 {sr(T+5)}, {sr(T+5)}, 8192
        s_waitcnt lgkmcnt(0)""")
        wl = gq + gk
        a.bg, a.every, a.cnt = gu[npre + nlate:] + [wl.pop(0) for _ in range(o.get("nql", 4))], o.get("evln", 8), 0
        self.ln_packed(XR, XF, XA, TM)
        a.flush()
        self.stamp("ln")
        a(f"s_cmp_lt_u32 {sr(S_W)}, 2\ns_cbranch_scc1 L_nop")
        for s in range(4):
            a(f"buffer_store_dwordx4 {vr(XA+4*s,4)}, {vr(V_KA)}, {sr(S_WS,4)}, {sr(T+3+(s>>1))} offen offset:{2048*(s&1)} sc1")
        a(f"buffer_store_dwordx2 {vr(XA+16,2)}, {vr(V_KA+1)}, {sr(S_WS,4)}, {sr(T+5)} offen sc1\ns_waitcnt vmcnt({5 + o.get('nql', 4)})\ns_branch L_bar1")
        a.label("L_nop")
        if o.get("touch", 1):
            a(f"s_mov_b64 exec, 0\ns_cmp_eq_u32 {sr(S_W)}, 0\ns_cbranch_scc1 L_t3\ns_branch L_t4")
            a.label("L_tr2")
            a("s_mov_b64 exec, -1")
        a(f"s_waitcnt vmcnt({o.get('nql', 4)})")
        a.label("L_bar1")
        self.stamp("pub")
        xw = [f"ds_write_b128 {vr(VS)}, {vr(XA+4*s,4)} offset:{1024*s}" for s in range(4)] + [f"ds_write_b64 {vr(VR4)}, {vr(XA+16,2)}"]
        self.stamp("tch")
        PA = 249
        a(f"""v_add_u32 {vr(V_KA)}, {sr(S_LB)}, {vr(V_KA)}
        v_add_u32 {vr(V_KA+1)}, {sr(S_LB)}, {vr(V_KA+1)}
        s_mul_i32 {sr(T)}, {sr(S_B)}, {NT}
        s_mul_i32 {sr(T+1)}, {sr(S_H)}, 63
        s_add_u32 {sr(T)}, {sr(T)}, {sr(T+1)}
        s_lshl_b32 {sr(T)}, {sr(T)}, 8
        s_add_u32 {sr(T)}, {sr(T)}, {WS_F}
        s_cmp_eq_u32 {sr(S_W)}, 0
        s_cselect_b32 {sr(T)}, {sr(T)}, 0x40000000
        v_lshl_add_u32 {vr(PA)}, v0, 8, {sr(T)}
        {self.xa_srd()}
        s_waitcnt lgkmcnt(0)""")
        self.stamp("w1")
        a("s_barrier")
        self.stamp("bar1")
        poll = lambda r: f"buffer_load_dword {vr(r)}, {vr(PA)}, {sr(S_WS,4)}, 0 offen sc1"

        def gate(lab, r, mask, younger):
            a(f"s_mov_b32 {sr(T+2)}, 0\ns_waitcnt vmcnt({younger})")
            a.label(lab)
            a(f"""v_cmp_ne_u32 vcc, {sr(S_N)}, {vr(r)}
            s_add_u32 {sr(T+2)}, {sr(T+2)}, 1
            s_and_b64 vcc, vcc, {mask}
            s_cbranch_scc0 {lab}_ok
            s_sleep {o.get("slp", 4)}
            {poll(r)}
            s_waitcnt vmcnt(0)
            s_cmp_lt_u32 {sr(T+2)}, 0x40000
            s_cbranch_scc1 {lab}""")
            a.label(lab + "_ok")

        H, G_, UG, MS, CL = 16, 52, 208, 110, 104
        nup = o.get("nup", 12)
        at = {o.get("u0", 6) + o.get("usp", 3) * i: wl.pop(0) for i in range(nup)}
        for i in range(5): at[i] = xw[i]
        tagld = f"buffer_load_dword v253, off, {sr(S_DB,4)}, 0 sc1"
        at[o.get("tgp", 5)] = tagld
        if o.get("es", 0) == 1:
            n_ = len(a.lines); self.epi_setup()
            el = [l.strip() for l in a.lines[n_:]]; del a.lines[n_:]
            for k in range(5, 42):
                if k in at: continue
                c_ = 0
                while el and c_ < o.get("esn", 2):
                    x = el.pop(0); at[k] = at.get(k, "") + x + "\n"; c_ += 1 if x.startswith("v_") else 0.5
            self.es_left = el
        self.gemm(self.tr_reads(TRU), XA, H, None, at=at)
        if o.get("es", 0) == 1:
            for x in self.es_left: a(x)
        self.stamp("up")
        last = lambda srd: max(i for i, l in enumerate(a.lines) if l.strip().startswith("buffer_load") and sr(srd, 4) in l) + 1
        assert not any(sr(SQ, 4) in x for x in wl)
        a(f"v_lshlrev_b32 {vr(t0)}, 2, v0\ns_mov_b32 {sr(T+2)}, 0\ns_waitcnt vmcnt({self.vm_since(last(SQ))}) lgkmcnt(0)")
        a.label("L_tag")
        a(f"""v_readfirstlane_b32 {sr(S_N)}, v253
        s_add_u32 {sr(T+2)}, {sr(T+2)}, 1
        s_cmp_lg_u32 {sr(S_N)}, 0
        s_cbranch_scc1 L_tag_ok
        {tagld}
        s_waitcnt vmcnt(0)
        s_cmp_lt_u32 {sr(T+2)}, 0x40000
        s_cbranch_scc1 L_tag""")
        a.label("L_tag_ok")
        m_g = len(a.lines)
        a(f"v_mov_b32 {vr(t1)}, {sr(S_N)}\ns_barrier\nbuffer_store_dword {vr(t1)}, {vr(t0)}, {sr(S_WS,4)}, {sr(PUB)} offen sc1")
        self.stamp("barG")
        if o.get("atw"):
            a("s_waitcnt vmcnt(0)")
            self.stamp("ack")
        if o.get("census"):
            k_ = S_ST + 2 * self.stnames.index(o["census"][0])
            a(f"s_waitcnt lgkmcnt(0)\nv_mov_b32 v252, {sr(k_)}\ns_lshl_b32 {sr(T)}, s2, 2\ns_add_u32 {sr(T)}, {sr(T)}, {WS_DBG}\nv_mov_b32 v253, 0\nbuffer_store_dword v252, v253, {sr(S_WS,4)}, {sr(T)} offen sc1")

        def a_tr(t):
            ad, off = (TRQ, 32 * t) if t < 2 else (TRQ8, 0)
            return [f"ds_read_b64_tr_b16 {ar(AQ1+18*t+4*s+2*u,2)}, {vr(ad+u)} offset:{9216*s + off}" for s in range(4) for u in range(2)] + \
                   [f"ds_read_b64_tr_b16 {ar(AQ1+18*t+16,2)}, {vr(ad+2)} offset:{36864 + off}"]

        def a_row(t):
            off = 4864 * t if t < 2 else 0
            return [f"ds_read_b64 {ar(A_Q+18*t+4*s+2*u,2)}, {vr(RK+t)} offset:{off + 64*s + 32*u}" for s in range(4) for u in range(2)] + \
                   [f"ds_read_b64 {ar(A_Q+18*t+16,2)}, {vr(RK+t)} offset:{off + 256}"]
        bq = lambda j, d=0: [f"ds_read_b128 {ar(18*j+4*s,4)}, {vr(VS+j)} offset:{d + 1024*s}" for s in range(4)] + [f"ds_read_b64 {ar(18*j+16,2)}, {vr(VR4+j)} offset:{d}"]

        def post(u, scale, d):
            L = [f"v_mul_f32 {vr(ACC+4*u+i)}, {sr(T+4)}, {vr(ACC+4*u+i)}" for i in range(4)] if scale else []
            L += [f"v_cvt_pk_bf16_f32 {vr(PK + (4*(u&3) + 2*(u>>2) if u < 8 else 16) + h)}, {vr(ACC+4*u+2*h)}, {vr(ACC+4*u+2*h+1)}" for h in range(2)]
            if 4 <= u < 8: L.append(f"ds_write_b128 {vr(VSW+u-4)}, {vr(PK+4*(u-4),4)} offset:{d}")
            if u == 8: L.append(f"ds_write_b64 {vr(VR4)}, {vr(PK+16,2)} offset:{d}")
            return L
        xd = [f"ds_read_b128 {vr(XD+4*j,4)}, {vr(VSW+j)}" for j in range(4)]
        self.gemm_u(AQ1, ar, [("v", XA), ("a", 18), ("a", 36), ("a", 54)], ACC, a_tr, lambda j: bq(j) if j else None, lambda u: post(u, False, L_QD),
                    vm_items=wl, other=xd, vmsp=o.get("vmsp", 3))
        self.stamp("g1")
        assert last(SK) > m_g
        for i in range(4): a(f"v_mov_b32 {vr(CL+i)}, -1")
        a(f"s_lshl2_add_u32 {sr(T+2)}, s2, {sr(S_W)}\ns_mul_i32 {sr(T+2)}, {sr(T+2)}, 2560\ns_add_u32 {sr(T+2)}, {sr(T+2)}, {WS_IB}")
        a(f"s_mov_b32 {sr(T+4)}, {f32(LOG2E / 12.0)}\ns_waitcnt vmcnt({self.vm_since(last(SK))}) lgkmcnt(0)\ns_barrier")
        clr = [f"buffer_store_dwordx4 {vr(CL,4)}, {vr(V_DMA)}, {sr(S_WS,4)}, {sr(T+2)} offen sc1",
               f"buffer_store_dwordx4 {vr(CL,4)}, {vr(V_DMA)}, {sr(S_WS,4)}, {sr(T+2)} offen offset:1024 sc1",
               f"buffer_store_dwordx2 {vr(CL,2)}, {vr(L8)}, {sr(S_WS,4)}, {sr(T+2)} offen offset:2048 sc1"]
        self.stamp("bar2")
        self.gemm_u(A_Q, ar, [("a", 18 * j) for j in range(4)], ACC, a_row, lambda j: bq(j, L_QD), lambda u: post(u, True, 0), vm_items=[poll(252)] + clr, vm0=o.get("pg", 12), vmsp=o.get("csp", 8))
        self.stamp("g2")
        p = lambda r: vr(r, 2)
        CC = TM
        for j in range(4): a(f"v_dot2_f32_bf16 {vr(CC+j)}, {vr(PK+4*j)}, {vr(XD+4*j)}, 0")
        for i in range(2): a(f"v_dot2_f32_bf16 {vr(CC)}, {vr(PK+16+i)}, {vr(XA+16+i)}, {vr(CC)}")
        for i in range(1, 4):
            for j in range(4): a(f"v_dot2_f32_bf16 {vr(CC+j)}, {vr(PK+4*j+i)}, {vr(XD+4*j+i)}, {vr(CC+j)}")
        QE = TRQ
        a(f"""s_xor_b32 {sr(T+1)}, {sr(self.NB)}, 1
        v_add_u32 {vr(t0)}, {L_XX}, {vr(V_DMA)}
        v_lshl_add_u32 {vr(QE)}, {sr(T+1)}, 12, {vr(t0)}
        v_lshl_add_u32 {vr(QE+1)}, {sr(self.NB)}, 12, {vr(t0)}""")
        self.treduce(CC)
        a(f"""ds_write_b32 {vr(MXA)}, {vr(CC)}
        v_add_u32 {vr(t0)}, {L_XR}, {vr(L8)}
        v_lshl_add_u32 {vr(QE+2)}, {sr(T+1)}, 9, {vr(t0)}
        v_lshl_add_u32 {vr(QE+3)}, {sr(self.NB)}, 9, {vr(t0)}
        v_lshl_add_u32 {vr(QE+4)}, {sr(T+1)}, 8, {vr(MXR)}
        v_lshl_add_u32 {vr(QE+5)}, {sr(self.NB)}, 8, {vr(MXR)}
        s_sub_u32 {sr(T+5)}, 63, {sr(S_H)}
        s_bfm_b64 {sr(T+8,2)}, {sr(T+5)}, 0
        s_lshr_b32 {sr(T+6)}, s2, 3
        s_lshl_b32 {sr(T+6)}, {sr(T+6)}, 12
        s_add_u32 {sr(T+6)}, {sr(T+6)}, {sr(W10)}
        s_cmp_lg_u32 {sr(S_W)}, 0
        s_cbranch_scc1 L_ga_ok""")
        gate("L_ga", 252, sr(T + 8, 2), 3)
        a("s_waitcnt lgkmcnt(0)\ns_barrier")
        self.stamp("bar3")
        c1 = -2.0 * math.sqrt(2.0 / math.pi) * LOG2E
        c2 = c1 * 0.044715
        qrd = [f"ds_read_b128 {vr(MS+4*qb,4)}, {vr(QE+4+(qb&1))} offset:{512*(qb>>1)}" for qb in range(4)]
        for qb in range(4):
            qrd += [f"ds_read_b128 {ar(A_Q+18*qb+4*s,4)}, {vr(QE+(qb&1))} offset:{8192*(qb>>1) + 1024*s}" for s in range(4)]
            qrd.append(f"ds_read_b64 {ar(A_Q+18*qb+16,2)}, {vr(QE+2+(qb&1))} offset:{1024*(qb>>1)}")
        tg = self.tile_groups(0) + self.tile_groups(1) + self.tile_groups(2)[:8]
        n0 = o.get("n0", 3)
        for k in range(o.get("tpf", 0)):
            a(f"s_add_u32 {sr(T+7)}, {sr(T+6)}, {o.get('tpf0', 4*TILE) + 131072*k}\nbuffer_load_dwordx4 v[252:255], {vr(V_DMA)}, {sr(S_XA,4)}, {sr(T+7)} offen")
        for x in tg[:n0]: a(x)
        a(f"v_mov_b32 {vr(CC)}, {f32(c1)}\nv_mov_b32 {vr(CC+2)}, {f32(c2)}\nv_mov_b32 {vr(CC+4)}, 1.0")
        nq1, nt1 = o.get("nq1", 8), o.get("nt1", 5)
        bgl = []
        for i in range(max(nq1 // 2, nt1)):
            if 2 * i < nq1: bgl.append(qrd[2 * i] + "\n" + qrd[2 * i + 1])
            if i < nt1: bgl.append(tg[n0 + i])
        tg, qrd = tg[n0 + nt1:], qrd[nq1:]
        a.bg, a.every, a.cnt = bgl, 54 // (len(bgl) + 1), 0
        for i in range(18): a(f"v_pk_mul_f32 {p(G_+2*i)}, {p(H+2*i)}, {p(H+2*i)}")
        for i in range(18): a(f"v_pk_fma_f32 {p(G_+2*i)}, {p(G_+2*i)}, {p(CC+2)}, {p(CC)} op_sel_hi:[1,0,0]")
        for i in range(18): a(f"v_pk_mul_f32 {p(G_+2*i)}, {p(G_+2*i)}, {p(H+2*i)}")
        a.flush()
        self.stamp("ge1")
        esp = o.get("esp", 4)
        for i in range(36):
            a(f"v_exp_f32 {vr(G_+i)}, {vr(G_+i)}")
            if i % esp == 1 and tg: a(tg.pop(0))
            if i % 8 == 3 and qrd: a(qrd.pop(0)); a(qrd.pop(0))
        self.stamp("ge2")
        for i in range(18): a(f"v_pk_add_f32 {p(G_+2*i)}, {p(G_+2*i)}, {p(CC+4)} op_sel_hi:[1,0]")
        for i in range(36):
            a(f"v_rcp_f32 {vr(G_+i)}, {vr(G_+i)}")
            if i % esp == 1 and tg: a(tg.pop(0))
            if i % 8 == 3 and qrd: a(qrd.pop(0)); a(qrd.pop(0))
        assert not tg and not qrd
        idx = [i for i, l in enumerate(a.lines) if l.strip().startswith("buffer_load") and l.rstrip().endswith("lds")]
        m_t0, m_t1 = idx[-18] + 1, idx[-9] + 1
        for i in range(18): a(f"v_pk_mul_f32 {p(H+2*i)}, {p(G_+2*i)}, {p(H+2*i)}")
        a(f"""s_mul_i32 {sr(T)}, {sr(WV+1)}, {BLK}
        s_cmp_eq_u32 {sr(S_H)}, 1
        s_cbranch_scc1 L_ln2
        s_add_u32 {sr(T)}, {sr(T)}, {WS_U}""")
        for i in range(18): a(f"v_cvt_pk_bf16_f32 {vr(UG+i)}, {vr(H+2*i)}, {vr(H+2*i+1)}")
        a("s_branch L_ug")
        a.label("L_ln2")
        a(f"s_add_u32 {sr(T)}, {sr(T)}, {WS_G}")
        self.ln_f32(H, UG, TM)
        a.label("L_ug")
        self.stamp("ge3")
        a(f"""s_cmp_eq_u32 {sr(WV)}, 1
        s_cselect_b32 {sr(S_UG)}, {sr(T)}, 0x40000000
        s_waitcnt vmcnt({self.vm_since(m_t0)}) lgkmcnt(0)""")
        for x in self.k_reads(0, V_V): a(x)
        self.ugs = [f"buffer_store_dwordx4 {vr(UG+4*s,4)}, {vr(V_DMA)}, {sr(S_WS,4)}, {sr(S_UG)} offen offset:{1024*s} sc1" for s in range(4)]
        self.ugs.append(f"buffer_store_dwordx2 {vr(UG+16,2)}, {vr(self.VL8)}, {sr(S_WS,4)}, {sr(S_UG)} offen sc1")
        for qb in range(4): a(f"v_pk_add_f32 {p(MS+4*qb)}, {p(MS+4*qb)}, {p(MS+4*qb+2)} neg_lo:[1,1] neg_hi:[1,1]")
        for qb in range(4): a(f"v_add_f32 {vr(self.MK+qb)}, {vr(MS+4*qb)}, {vr(MS+4*qb+1)}")
        a(f"v_lshlrev_b32 {vr(t1)}, 8, v0\nv_lshlrev_b32 v231, 2, v0\nv_add_u32 v231, {L_PC}, v231\nds_write_b32 v231, {vr(t1)}")
        self.loop_init(False)
        self.n_t1 = self.vm_since(m_t1)
        self.stamp("ug")

    def loop_init(self, part):
        a = self.a
        if part:
            for qb in range(4):
                for i in range(4): a(f"v_mov_b32 {vr(V_CI+4*qb+i)}, {vr(self.MK+qb)}")
            return
        for k in range(7): a(f"v_add_u32 {vr(V_HI+k)}, {2*SLOT}, {vr(V_KA+k if k < 5 else V_VB+k-5)}")
        a(f"v_add_u32 {vr(self.VS0)}, {sr(S_LB)}, {vr(V_DMA)}\nv_add_u32 {vr(self.VS0R)}, {sr(S_LB)}, {vr(self.VL8)}\ns_mov_b32 {sr(S_CNT)}, 0\ns_mov_b32 {sr(S_INC)}, {4*TILE}")
        for i in range(4): a(f"v_mov_b32 {vr(V_L+i)}, 0")
        a(f"v_mov_b32 v227, 0x3f803f80\nv_mov_b32 v226, {sr(S_N)}\nv_mov_b32 {vr(self.VPL+1)}, 1\nv_lshlrev_b32 v231, 2, v0\nv_add_u32 v231, {L_PC}, v231")

    def head(self):
        a, o = self.a, self.o
        a.label("L_go")
        self.loop_init(True)
        a("s_waitcnt lgkmcnt(0)\ns_barrier")
        self.stamp("bar5")
        base = self.qk_mfmas(0)
        pick = lambda s_, kb, qb: base[8 * s_ + 4 * kb + qb].replace(vr(V_K + 8 * s_ + 4 * kb, 4) + ",", vr(V_V + 8 * s_ + 4 * kb, 4) + ",").replace(vr(V_K + 32 + 2 * kb, 2) + ",", vr(V_V + 32 + 2 * kb, 2) + ",")
        mf, fin = [], {}
        for qb, s_ in [(0, 0), (0, 1), (0, 2), (0, 3), (1, 0), (1, 1), (0, 4), (1, 2), (1, 3), (2, 0), (2, 1), (1, 4), (2, 2), (2, 3), (3, 0), (3, 1), (2, 4),
                       (3, 2), (3, 3), (3, 4)]:
            for kb in range(2):
                fin[qb, kb] = len(mf)
                mf.append(("s_nop 3\n" if (qb, s_, kb) == (3, 4, 0) else "") + pick(s_, kb, qb))
        enew = [e[1] for g in range(40, 76) for e in self.gaps[g] if e[0] == "E"]
        items = self.e_items(0, enew, lambda qb, j: 0, lambda qb: 999)
        for it, e in zip(items, enew):
            if e[0] == "e": it["am"] = fin[e[1], e[2] // 4]
        dm = []
        for k, (slot, j) in enumerate([(2, 8)] + [(3, j) for j in range(9)]):
            g_ = 1 + o.get("hsp", 4) * k
            if j % 4 == 0: dm.append(dict(t=f"s_add_u32 m0, {sr(S_LB)}, {slot*SLOT + 4096*(j//4)}", c=0, lo=g_ - 1, hi=g_ - 1))
            dm.append(dict(t=f"buffer_load_dwordx4 {vr(V_DMA + j//4)}, {sr(S_XA,4)}, {sr(S_TOFF)} offen offset:{1024*(j%4)} lds", c=8, lo=g_, hi=g_))
            if j == 8: dm.append(dict(t=f"s_add_u32 {sr(S_TOFF)}, {sr(S_TOFF)}, {4*TILE}", c=0, lo=g_ + 1, hi=g_ + 1))
        nh = o.get("ugh", 2)
        for k in range(nh): dm.append(dict(t=self.ugs[k], c=8, lo=3 + 16 * k, hi=3 + 16 * k))
        a(f"s_waitcnt vmcnt({self.n_t1})")
        left = self.pack(mf, items + dm + [dict(t=x, c=4, lo=i // 2, nds=2) for i, x in enumerate(self.k_reads(1))])
        print("head overflow", self.over, "left", len(left))
        left.sort(key=lambda x: not x.startswith("v_exp"))
        last = a.lines[-1].strip()
        for x in left:
            if last.startswith("v_exp") and not x.startswith("v_exp") and (last.split()[1].rstrip(",") + ",") in (x + ","): a("s_nop 0")
            a(x); last = x
        a("s_waitcnt lgkmcnt(0)")

    def tile_groups(self, slot):
        out = []
        for j in range(9):
            g = ""
            if j % 4 == 0: g = f"s_add_u32 m0, {sr(S_LB)}, {slot*SLOT + 4096*(j//4)}\ns_nop 0\n"
            g += f"buffer_load_dwordx4 {vr(V_DMA + j//4)}, {sr(S_XA,4)}, {sr(S_TOFF)} offen offset:{1024*(j%4)} lds"
            if j == 8: g += f"\ns_add_u32 {sr(S_TOFF)}, {sr(S_TOFF)}, {4*TILE}"
            out.append(g)
        return out

    def first_tiles(self):
        pass

    def wfuse(self):
        a = self.a
        BF, ACC, AF, TM, AD = 88, 108, 144, 208, 240
        LA, LB_, LM = 0, 44032, 88064
        T = S_T
        a.label("L_wfuse")
        if self.o.get("hlast", 0): a(f"s_cmp_ge_u32 s2, {NWG}\ns_cbranch_scc1 L_end\ns_sub_u32 s2, s2, {NWG - NH}")
        a(f"v_lshrrev_b32 v1, 6, v0\nv_and_b32 v0, 63, v0\nv_readfirstlane_b32 {sr(S_W)}, v1\nv_lshlrev_b32 {vr(V_DMA)}, 4, v0\ns_waitcnt lgkmcnt(0)")
        self.srd(S_WS, 78, 79, WS_END)
        self.wf0 = 0
        self.srd(S_X, 72, 73, 82944)
        self.srd(S_W2, 62, 63, 41472)
        a(f"""s_cmp_eq_u32 s2, {self.wf0}
        s_cselect_b32 {sr(S_W1)}, s64, s70
        s_cselect_b32 {sr(S_W1+1)}, s65, s71
        s_mov_b32 {sr(S_W1+2)}, 41472
        s_mov_b32 {sr(S_W1+3)}, 0x20000
        s_cselect_b32 {sr(T+4)}, 0, 41472""")
        self.dma_rows([(S_W1, "0", LA), (S_W2, "0", LB_)], 19, 288, TM + 4, TM + 5, 11, 3, "L_wf1")
        a(f"s_lshl_b32 {sr(T)}, {sr(S_W)}, 10\ns_add_u32 {sr(T+2)}, {sr(T)}, {sr(T+4)}")
        for k in range(11):
            if k == 10: a(f"s_cmp_ge_u32 {sr(S_W)}, 1\ns_cbranch_scc1 L_wf2")
            a(f"s_add_u32 m0, {sr(T)}, {LM + 4096*k}\ns_add_u32 {sr(T+1)}, {sr(T+2)}, {4096*k}")
            a(f"buffer_load_dwordx4 {vr(V_DMA)}, {sr(S_X,4)}, {sr(T+1)} offen lds")
        a.label("L_wf2")
        self.srd(S_DW, 68, 69, 864)
        a(f"""v_and_b32 {vr(TM)}, 15, v0
        v_lshlrev_b32 {vr(TM+2)}, 4, {vr(TM)}
        v_lshlrev_b32 {vr(TM)}, 1, {vr(TM)}
        v_bfe_u32 {vr(TM+3)}, v0, 4, 1
        v_lshl_add_u32 {vr(TM+1)}, {vr(TM+3)}, 7, {vr(TM)}
        v_lshl_add_u32 {vr(TM+2)}, {vr(TM+3)}, 11, {vr(TM+2)}
        v_and_b32 {vr(TM+3)}, 1, v0
        v_lshlrev_b32 {vr(TM+3)}, 4, {vr(TM+3)}
        v_bfe_i32 {vr(TM+4)}, v0, 1, 1
        v_not_b32 {vr(TM+5)}, {vr(TM+4)}""")
        for k in range(3):
            for i in range(5): a(f"buffer_load_ushort {vr(16+5*k+i)}, {vr(TM+1 if i < 4 else TM)}, {sr(S_DW,4)}, 0 offen offset:{288*k + (32*i if i < 4 else 256)}")
        a(f"s_mov_b32 {sr(T+1)}, {WS_DWF}\ns_waitcnt vmcnt(0)")
        for f in range(15):
            a(f"v_lshlrev_b32 {vr(16+f)}, {vr(TM+3)}, {vr(16+f)}\nv_and_b32 {vr(32+2*f)}, {vr(TM+5)}, {vr(16+f)}\nv_and_b32 {vr(33+2*f)}, {vr(TM+4)}, {vr(16+f)}")
        for r_ in range(8): a(f"buffer_store_dwordx{4 if r_ < 7 else 2} {vr(32+4*r_, 4 if r_ < 7 else 2)}, {vr(TM+2)}, {sr(S_WS,4)}, {sr(T+1)} offen offset:{256*r_} sc1")
        self.tr_addr(AD, LM, False, TM + 8)
        self.row_addr(AD + 3, LA, TM + 8)
        a(f"v_add_u32 {vr(AD+5)}, {LB_}, {vr(AD+3)}")
        a(f"v_lshlrev_b32 {vr(AD+4)}, 3, v0")
        a(f"""s_lshr_b32 {sr(T)}, {sr(S_W)}, 1
        s_lshl_b32 {sr(T)}, {sr(T)}, 6
        s_and_b32 {sr(T+1)}, {sr(S_W)}, 1
        s_lshl_b32 {sr(T+1)}, {sr(T+1)}, 3
        s_add_u32 {sr(T)}, {sr(T)}, {sr(T+1)}
        v_and_b32 {vr(AD+6)}, 3, v0
        v_lshlrev_b32 {vr(AD+6)}, 3, {vr(AD+6)}
        v_add_u32 {vr(AD+7)}, {sr(T)}, {vr(AD+6)}""")
        for k in range(3): a(f"v_add_u32 {vr(AD+k)}, {vr(AD+7)}, {vr(AD+k)}")
        a(f"s_mov_b32 {sr(S_CNT)}, {sr(S_W)}")
        a("s_waitcnt vmcnt(0)\ns_barrier")
        a.label("L_wfl")
        for s in self.tr_reads(AD, vr)(0, BF): a(s)
        a("s_waitcnt lgkmcnt(0)")
        self.gemm(self.row_reads(AD + 3), BF, ACC, AF)
        for i in range(18): a(f"v_cvt_pk_bf16_f32 {vr(BF+i)}, {vr(ACC+2*i)}, {vr(ACC+2*i+1)}")
        a(f"s_cmp_eq_u32 s2, {self.wf0}\ns_cbranch_scc0 L_wf3")
        self.gemm(self.row_reads(AD + 5), BF, ACC, AF)
        for i in range(18): a(f"v_cvt_pk_bf16_f32 {vr(BF+i)}, {vr(ACC+2*i)}, {vr(ACC+2*i+1)}")
        a.label("L_wf3")
        a(f"""s_mul_i32 {sr(T)}, {sr(S_CNT)}, {BLK}
        s_add_u32 {sr(T)}, {sr(T)}, {sr(T+4)}
        s_add_u32 {sr(T)}, {sr(T)}, {WS_WF}
        s_add_u32 {sr(T+1)}, {sr(T)}, 4096""")
        self.store_block(BF, V_DMA, AD + 4, S_WS, T, T + 1, "sc1")
        for k in range(3): a(f"v_add_u32 {vr(AD+k)}, 128, {vr(AD+k)}")
        a(f"s_add_u32 {sr(S_CNT)}, {sr(S_CNT)}, 4\ns_cmp_lt_u32 {sr(S_CNT)}, 8\ns_cbranch_scc1 L_wfl")
        for k in range(3): a(f"v_sub_u32 {vr(AD+k)}, {vr(AD+k)}, {vr(AD+6)}")
        a(f"s_cmp_eq_u32 {sr(S_CNT)}, 8\ns_cbranch_scc1 L_wfl")
        a(f"""s_waitcnt vmcnt(0)
        s_barrier
        s_cmp_lg_u32 {sr(S_W)}, 0
        s_cbranch_scc1 L_end
        s_mov_b32 {sr(T+2)}, 0""")
        a.label("L_wtag")
        a(f"""buffer_load_dword {vr(TM)}, off, {sr(S_DB,4)}, 0 sc1
        s_add_u32 {sr(T+2)}, {sr(T+2)}, 1
        s_waitcnt vmcnt(0)
        v_readfirstlane_b32 {sr(T)}, {vr(TM)}
        s_cmp_lt_u32 {sr(T+2)}, 0x40000
        s_cselect_b32 {sr(T)}, {sr(T)}, 1
        s_cmp_eq_u32 {sr(T)}, 0
        s_cbranch_scc1 L_wtag
        v_lshlrev_b32 {vr(TM+1)}, 2, v0
        s_lshl_b32 {sr(T)}, s2, 8
        s_add_u32 {sr(T)}, {sr(T)}, {WS_F + 502*256}
        buffer_store_dword {vr(TM)}, {vr(TM+1)}, {sr(S_WS,4)}, {sr(T)} offen sc1
        s_endpgm""")

    def dump_stamps(self):
        a = self.a
        if self.o.get("census"):
            key, mode, m_, v_ = self.o["census"]
            a(f"""s_cmp_lg_u32 s2, 100
            s_cbranch_scc1 L_end
            v_lshlrev_b32 v16, 2, v0
            s_mov_b32 s4, {WS_DBG}""")
            for k in range(4): a(f"buffer_load_dword v{20+k}, v16, {sr(S_WS,4)}, s4 offen offset:{256*k} sc1")
            a(f"s_waitcnt vmcnt(0)\nv_readlane_b32 s8, v21, 36\ns_mov_b32 s9, 0x80000000\ns_mov_b32 s10, 0x7fffffff\ns_mov_b32 s11, 0\ns_mov_b32 s17, 0")
            for k in range(4):
                a(f"s_mov_b32 s5, 0")
                a.label(f"L_cs{k}")
                a(f"""v_readlane_b32 s6, v{20+k}, s5
                s_add_u32 s7, s5, {64*k}
                s_sub_u32 s6, s6, s8
                s_and_b32 s16, s7, {m_}
                s_cmp_lg_u32 s16, {v_}
                s_cbranch_scc1 L_cn{k}
                s_min_i32 s10, s10, s6
                s_cmp_gt_i32 s6, {self.o.get("thr", 150)}
                s_addc_u32 s17, s17, 0
                s_cmp_gt_i32 s6, s9
                s_cselect_b32 s9, s6, s9
                s_cselect_b32 s11, s7, s11""")
                a.label(f"L_cn{k}")
                a(f"s_add_u32 s5, s5, 1\ns_cmp_lt_u32 s5, {64 if k < 3 else 60}\ns_cbranch_scc1 L_cs{k}")
            a({"arg": "s_lshl_b32 s6, s11, 3", "range": "s_sub_u32 s6, s9, s10\ns_lshl_b32 s6, s6, 1", "zero": "s_mov_b32 s6, 0", "cnt": "s_lshl_b32 s6, s17, 4",
               "max": "s_lshl_b32 s6, s9, 1"}[mode])
            a("s_add_u32 s6, s6, 1000\ns_memrealtime s[4:5]\ns_waitcnt lgkmcnt(0)\ns_add_u32 s6, s6, s4")
            a.label("L_echo")
            a("s_memrealtime s[4:5]\ns_waitcnt lgkmcnt(0)\ns_sub_u32 s7, s6, s4\ns_cmp_gt_i32 s7, 0\ns_cbranch_scc1 L_echo")
            return
        if self.o.get("echo"):
            if self.o["echo"][0] == "skew":
                a(f"v_mov_b32 v16, 4\nbuffer_load_dword v17, v16, {sr(S_DB,4)}, 0 offen sc1\ns_waitcnt vmcnt(0)\nv_readfirstlane_b32 s98, v17\ns_not_b32 s98, s98")
                x, y = 98, S_ST + 2 * self.stnames.index(self.o["echo"][1])
            else:
                x, y = [S_ST + 2 * self.stnames.index(n) for n in self.o["echo"]]
            lo, hi = self.o.get("echo_ids", (0, 999))
            a(f"""s_cmp_eq_u32 {sr(S_VAL)}, 0
            s_cbranch_scc1 L_end
            s_cmp_lt_u32 s2, {lo}
            s_cbranch_scc1 L_end
            s_cmp_ge_u32 s2, {hi}
            s_cbranch_scc1 L_end
            s_and_b32 s6, s2, {self.o.get("echo_m", 0)}
            s_cmp_lg_u32 s6, {self.o.get("echo_v", 0)}
            s_cbranch_scc1 L_end
            s_memrealtime s[4:5]
            s_waitcnt lgkmcnt(0)
            s_sub_u32 s6, {sr(y)}, {sr(x)}
            s_mul_i32 s6, s6, {self.o.get("echo_mul", 1)}
            s_lshr_b32 s6, s6, {self.o.get("echo_shr", 0)}
            s_add_u32 s6, s6, {self.o.get("echo_add", 0)}
            s_add_u32 s6, s6, s4""")
            a.label("L_echo")
            a("s_memrealtime s[4:5]\ns_waitcnt lgkmcnt(0)\ns_sub_u32 s7, s6, s4\ns_cmp_gt_i32 s7, 0\ns_cbranch_scc1 L_echo")
            return
        if self.o.get("dbgst"):
            a("s_waitcnt vmcnt(0)")
            self.stamp("done")
            a("s_waitcnt lgkmcnt(0)\ns_mov_b64 exec, 1")
            slots = [1, 2, 3, 4, 5, 6, 7, 9, 11, 12, 13, 14, 15]
            a(f"s_not_b32 {sr(S_T)}, {sr(S_ST)}\nv_mov_b32 v16, {sr(S_T)}\nv_mov_b32 v17, 4\nbuffer_atomic_umax v16, v17, {sr(S_DB,4)}, 0 offen sc1")
            for i in range(min(self.nst, 12)):
                a(f"v_mov_b32 v{18+2*i}, {sr(S_ST+2*i)}\nv_mov_b32 v{19+2*i}, {4*slots[i+1]}\nbuffer_atomic_umax v{18+2*i}, v{19+2*i}, {sr(S_DB,4)}, 0 offen sc1")
            return
        if not self.o.get("stamps"): return
        T = S_T
        a(f"""s_waitcnt lgkmcnt(0)
        s_lshl_b32 {sr(T)}, s2, 2
        s_add_u32 {sr(T)}, {sr(T)}, {sr(S_W)}
        s_lshl_b32 {sr(T)}, {sr(T)}, 7
        s_add_u32 {sr(T)}, {sr(T)}, {WS_DBG}
        v_mov_b32 v1, 0""")
        for i in range(26): a(f"v_mov_b32 {vr(16+i)}, {sr(S_ST+i)}")
        for i in range(7): a(f"buffer_store_dwordx4 {vr(16+4*i,4)}, v1, {sr(S_WS,4)}, {sr(T)} offen offset:{16*i}")

    def build(self):
        a = self.a
        self.stnames = []
        a.raw(f"; @launch grid=({NWG},1,1) block=(256,1,1) lds={LDS_TOTAL}")
        a.raw('.amdgcn_target "amdgcn-amd-amdhsa--gfx950"')
        a.raw(".text")
        a.raw(f".globl {NAME}")
        a.raw(".p2align 12")
        self.entry()
        self.phase_a()
        self.rest()
        a.label("L_fin")
        self.dump_stamps()
        a.label("L_end")
        a("s_endpgm")
        self.poll2()
        if not self.o.get("touch", 1): self.rare()
        a.label("L_dummy")
        self.fallback()
        self.wfuse()
        a.raw('.section .rodata,"a"')
        a.raw(".p2align 6")
        a.raw(kernel_desc(NAME, 512, 102, 256))
        return a.text()

    def S(self, buf, qb, i=0): return V_S + buf * 32 + qb * 8 + i
    def P(self, buf, qb, i=0): return V_P + buf * 16 + qb * 4 + i

    def k_reads(self, slot, V_K=V_K):
        ka, so = (V_KA, slot * SLOT) if slot < 2 else (V_HI, (slot - 2) * SLOT)
        out = [f"ds_read_b128 {vr(V_K+8*s+4*kb,4)}, {vr(ka)} offset:{so + 2048*s + 256*kb}" for s in range(4) for kb in range(2)]
        out += [f"ds_read_b64 {vr(V_K+32+2*kb,2)}, {vr(ka+1)} offset:{so + 8192 + 512*kb}" for kb in range(2)]
        return out

    def v_reads(self, slot, dst=V_V):
        (va, vr_, vb), so = ((V_VA, V_VR, V_VB), slot * SLOT) if slot < 2 else ((V_HI + 2, V_HI + 4, V_HI + 5), (slot - 2) * SLOT)
        out = []
        for T in range(9):
            for u in range(2):
                if T < 8: out.append(f"ds_read_b64_tr_b16 {vr(dst+4*T+2*u,2)}, {vr((va if T < 4 else vb)+(T&1))} offset:{so + 2048*((T>>1)&1) + 256*u}")
                else: out.append(f"ds_read_b64_tr_b16 {vr(dst+4*T+2*u,2)}, {vr(vr_)} offset:{so + 8192 + 512*u}")
        return out

    def qk_mfmas(self, buf, czero=False):
        out = []
        for s in range(5):
            for kb in range(2):
                for qb in range(4):
                    d = vr(self.S(buf, qb, 4 * kb), 4)
                    c = ("0" if czero else vr(V_CI + 4 * qb, 4)) if s == 0 else d
                    if s < 4: out.append(f"v_mfma_f32_16x16x32_bf16 {d}, {vr(V_K+8*s+4*kb,4)}, {ar(A_Q+18*qb+4*s,4)}, {c}")
                    else: out.append(f"v_mfma_f32_16x16x16_bf16 {d}, {vr(V_K+32+2*kb,2)}, {ar(A_Q+18*qb+16,2)}, {c}")
        return out

    def pv_mfmas(self, buf, czero=False):
        out = []
        for T in range(9):
            for qb in range(4):
                o = ar(A_O + 36 * qb + 4 * T, 4)
                out.append(f"v_mfma_f32_16x16x32_bf16 {o}, {vr(V_V+4*T,4)}, {vr(self.P(buf,qb),4)}, {'0' if czero else o}")
        return out

    def plan(self):
        o = self.o
        n = 76
        fixed = [None] * n
        for i, g in enumerate(range(1, 36, 2)): fixed[g] = ("V", i)
        for i, g in enumerate([41, 44, 47, 50, 53, 56, 59, 62, 65, 68]): fixed[g] = ("K", i)
        for i, g in enumerate([42, 46, 49, 52, 55, 58, 61, 64, 67]): fixed[g] = ("D", i)
        exps = [(qb, j) for qb in range(4) for j in range(8)]
        start = 40
        order = [(start + k) % n for k in range(n)]
        free_idx = [k for k, g in enumerate(order) if fixed[g] is None]
        nsm = len(free_idx) - 32
        cand = free_idx[6:-2]
        sm_set = set(free_idx[-2:]) | {cand[int((i + 0.5) * len(cand) / (nsm - 2))] for i in range(nsm - 2)}
        nds = sum(1 for f in fixed if f is not None and f[0] != "D")
        ls = o.get("lsum", "add")
        over = max(0, (48 if ls == "add" else 32) - nds - 2 * nsm)
        ocand = [k for k, g in enumerate(order) if k >= 20 and (fixed[g] is None or fixed[g][0] != "D")]
        o_set = {ocand[int((i + 0.5) * len(ocand) / over)] for i in range(over)}
        later = []
        gaps = [[] for _ in range(n)]
        small, pend, ei = [], [], 0
        for k, g in enumerate(order):
            new = (start + k) < n
            small.extend(pend); pend = later; later = []
            small.sort(key=lambda t: 0 if t[0] == "c" else 1)
            f = fixed[g]
            want = 0
            if f is not None:
                gaps[g].append((f[0], f[1], None))
                if f[0] == "D": continue
                want = 1
            elif k in sm_set: want = 2
            else:
                qb, j = exps[ei]; ei += 1
                gaps[g].append(("E", ("e", qb, j), new))
                if j & 1: pend.append(("c", qb, j // 2))
                if ls == "add": pend.append(("a", qb, j))
                elif j & 1 and ls == "pk": pend.append(("p", qb, j // 2))
            if k in o_set: want += 1
            if k == n - 1: want = 99
            for _ in range(want):
                if small:
                    it = small.pop(0)
                    gaps[g].append(("E", it, new))
                    if it[0] == "c" and ls == "dot": (small if k == n - 1 else pend).append(("d", it[1], it[2]))
        assert not small and not pend and ei == 32
        self.gaps = gaps

    def pack(self, mf, items):
        a = self.a
        where, order, done, nvm, mpos = {}, [], 0, 0, []
        isds = lambda it: "ds_" in it["t"]
        self.over = 0
        for g, m in enumerate(mf):
            assert not any(it.get("need", 999) <= g and i not in where for i, it in enumerate(items)), g
            idx = [k for k, n_ in enumerate(order) if n_ <= g]
            if idx and max(idx) + 1 > done:
                a(f"s_waitcnt lgkmcnt({min(15, len(order) - 1 - max(idx))})"); done = max(idx) + 1
            if m.startswith("@W"):
                w_, m = m.split("\n", 1)
                a(f"s_waitcnt lgkmcnt({min(15, int(w_[2:]) + len(order))})")
            a(m)
            mpos.append(len(a.lines))
            cap, pick = 8, []
            for phase in (0, 1):
                for i, it in enumerate(items):
                    if i in where or it.get("lo", 0) > g: continue
                    if "am" in it and (it["am"] >= g or len(a.lines) - mpos[it["am"]] < 8): continue
                    d = it.get("dep")
                    if d is not None and not all(where.get(x, 999) < g for x in d): continue
                    if (phase == 0 and it.get("hi", 999) <= g) or (phase == 1 and it["c"] <= cap):
                        if it["t"].startswith("buffer") and pick and any(items[x]["c"] for x in pick) and phase == 1: continue
                        if isds(it) and sum(isds(items[x]) for x in pick) >= it.get("nds", 1) and phase == 1: continue
                        pick.append(i); where[i] = g; cap -= it["c"]
            key = lambda i: 0 if items[i]["c"] == 0 else 1 if isds(items[i]) else 2 if items[i]["t"].startswith("buffer") else 3
            for i in sorted(pick, key=key):
                a(items[i]["t"].replace("@VM", f"s_waitcnt vmcnt({nvm})"))
                nvm += items[i]["t"].startswith("buffer")
                if isds(items[i]): order.append(items[i].get("need", 999))
            self.over += max(0, -cap)
        return [it["t"] for i, it in enumerate(items) if i not in where]

    def e_items(self, buf, lst, lo, hi):
        items, idx = [], {}
        for it in lst:
            kind, qb, j = it
            d = dict(t=self.etext(buf, it), c=8 if kind == "e" else 4)
            if kind == "e": d["lo"] = lo(qb, j); d["hi"] = hi(qb) - 2 - (7 - j)
            else:
                need = [("e", qb, j)] if kind == "a" else [("c", qb, j)] if kind == "d" else [("e", qb, 2 * j), ("e", qb, 2 * j + 1)]
                d["dep"] = [idx[x] for x in need if x in idx]
                if kind == "c": d["hi"] = hi(qb) - (3 - j) // 2
            idx[it] = len(items); items.append(d)
        return items

    def etext(self, buf, it):
        kind, qb, j = it
        s = self.S(buf, qb)
        if kind == "e": return f"v_exp_f32 {vr(s+j)}, {vr(s+j)}"
        if kind == "d": return f"v_dot2_f32_bf16 {vr(V_L+qb)}, {vr(self.P(buf, qb, j))}, v227, {vr(V_L+qb)}"
        if kind == "p": return f"v_pk_add_f32 {vr(208+2*qb,2)}, {vr(208+2*qb,2)}, {vr(s+2*j,2)}"
        if kind == "a": return f"v_add_f32 {vr(V_L+qb)}, {vr(V_L+qb)}, {vr(s+j)}"
        return f"v_cvt_pk_bf16_f32 {vr(self.P(buf, qb, j))}, {vr(s+2*j)}, {vr(s+2*j+1)}"

    def period(self, p, qk=True, pv=True, e_old=True, e_new=True, kread=True, vread=True, dma=True, extra={}, dsub=None, ksub=None, vm=9, halves=(0, 1), inc=None):
        a = self.a
        bn, bo = (p + 1) & 1, p & 1
        qk_, pv_ = self.qk_mfmas(bn), self.pv_mfmas(bo, czero=(p == 0))
        qo, po = self.o.get("qkord", 1), self.o.get("pvord", 0)
        if qo == 1: qk_ = [qk_[8 * s_ + 4 * kb + qb] for kb in range(2) for qb in range(4) for s_ in range(4)] + qk_[32:]
        if qo == 2: qk_ = [qk_[8 * s_ + 4 * kb + qb] for qb in range(4) for kb in range(2) for s_ in range(4)] + qk_[32:]
        if qo == 3: qk_ = [qk_[8 * s_ + 4 * kb + qb] for qb in range(4) for s_ in range(4) for kb in range(2)] + qk_[32:]
        if po == 1: pv_ = [pv_[4 * T_ + qb] for qb in range(4) for T_ in range(9)]
        mf = qk_ + pv_
        kr, vrd = self.k_reads((p + 2) % RING), self.v_reads(p % RING)
        slot = p % RING
        n = 76
        sc = [[] for _ in range(n)]
        dgs = [g for g in range(n) if any(e[0] == "D" for e in self.gaps[g])]
        if dma:
            for j, g in enumerate(dgs):
                if j % 4 == 0: sc[g - 1].append(f"s_add_u32 m0, {sr(S_LB)}, {slot*SLOT + 4096*(j//4)}")
            sc[dgs[-1] + 1].append(f"s_add_u32 {sr(S_TOFF)}, {sr(S_TOFF)}, {inc or 4*TILE}")
        w = []
        if kread: w.append(f"vmcnt({vm})")
        if pv: w.append("lgkmcnt(0)")
        if w: sc[39].append("s_waitcnt " + " ".join(w))
        if kread: sc[75].append("s_waitcnt lgkmcnt(0)")
        for half in halves:
            rng = range(0, 40) if half == 0 else range(40, 76)
            on = qk if half == 0 else pv
            if not on:
                ds, mem, val, post = [], [], [], []
                for g in rng:
                    for s_ in sc[g]:
                        (post if s_.startswith("s_waitcnt") else mem).append(s_)
                    if g in extra: mem.append(extra[g])
                    for kind, d, new in self.gaps[g]:
                        if kind == "V" and vread: ds.append(vrd[d])
                        elif kind == "K" and kread: ds.append(kr[d])
                        elif kind == "D" and dma: mem.append(f"buffer_load_dwordx4 {vr(V_DMA + d//4)}, {sr(S_XA,4)}, {sr(S_TOFF)} offen offset:{1024*(d%4)} lds")
                        elif kind == "E" and ((new and e_new) or (not new and e_old)): val.append((d, self.etext(bn if new else bo, d)))
                if half == 1: a("s_nop 3")
                seq, pend = [], list(val)
                while pend:
                    k = 0
                    if seq and seq[-1][0][0] == "e":
                        le = seq[-1][0]
                        dep = lambda it: it[0][1] == le[1] and ((it[0][0] == "a" and it[0][2] == le[2]) or (it[0][0] == "c" and it[0][2] == le[2] // 2))
                        have = {x[0] for x in seq}
                        ok = lambda it: it[0][0] == "e" or (("e", it[0][1], it[0][2]) in have if it[0][0] == "a" else (("e", it[0][1], 2*it[0][2]+1) in have)) or not any(x[0][0] == "e" and x[0][1] == it[0][1] and (x[0][2] == it[0][2] if it[0][0] == "a" else x[0][2] // 2 == it[0][2]) for x in pend)
                        while k < len(pend) and (dep(pend[k]) or not ok(pend[k])): k += 1
                        if k == len(pend): seq.append((("n", 0, 0), "s_nop 0")); k = 0
                    seq.append(pend.pop(k))
                step = max(1, len(seq) // (len(mem) + len(ds) + 1))
                allm = ds + mem
                for x in allm[:6]: a(x)
                allm = allm[6:]
                for i_, (d, t_) in enumerate(seq):
                    a(t_)
                    if allm and i_ % step == step - 1:
                        x = allm.pop(0); a(x)
                        if x.startswith("s_add_u32 m0"): a("s_nop 0")
                for x in allm:
                    a(x)
                    if x.startswith("s_add_u32 m0"): a("s_nop 0")
                for x in post: a(x)
                if half == 0: a("s_nop 1")
                continue
            for g in rng:
                a(mf[g])
                for s_ in sc[g]: a(s_)
                if g in extra: a(extra[g])
                for kind, d, new in self.gaps[g]:
                    if kind == "V":
                        if vread: a(vrd[d])
                    elif kind == "K":
                        if kread: a(kr[d])
                        elif ksub: a(ksub.pop(0))
                    elif kind == "D":
                        if dma: a(f"buffer_load_dwordx4 {vr(V_DMA + d//4)}, {sr(S_XA,4)}, {sr(S_TOFF)} offen offset:{1024*(d%4)} lds")
                        elif dsub: a(dsub.pop(0))
                    elif (new and e_new) or (not new and e_old):
                        a(self.etext(bn if new else bo, d))

    MK, VO, VO8, GA, VS0, VS0R, VDW, VLW, VL8, VST, VPL = 232, 236, 9, 238, 250, 251, 244, 245, 246, 247, 248
    NB, PT, E_U, E_G, RS3, E_COL, RS1, RS2, MP1 = 3, 4, 5, 6, 7, 43, 36, 37, 38
    G0, GM, GP, U, DWT = 16, 26, 36, 80, (90, 252, 96, 100, 112, 116, 104, 94)
    XRS = (192, 196, 46)
    frag = staticmethod(lambda f, b: [(f, b + 4 * s) for s in range(5)])
    WD = [[("a", 216 + 4 * s) for s in range(5)], [("a", 234 + 4 * s) for s in range(5)], [("v", 208 + 4 * s) for s in range(5)]]
    WO = [[("a", 4 * s) for s in range(5)], [("a", 18 + 4 * s) for s in range(5)], [("a", 36), ("a", 40), ("a", 44), ("a", 48), ("a", 252)]]
    X1B = 98304
    X2O = L_SP - X1B
    L_L = L_SP + 9216

    def epi_setup(self):
        a = self.a
        T = S_T
        NB, PT, VO, GA = self.NB, self.PT, self.VO, self.GA
        r, g4, x, y, big, r0 = 52, 53, 54, 55, 56, 57
        a(f"""s_lshr_b32 {sr(NB)}, {sr(S_W)}, 1
        s_and_b32 {sr(PT)}, {sr(S_W)}, 1
        v_and_b32 {vr(r0)}, 15, v0
        v_lshrrev_b32 {vr(g4)}, 4, v0
        v_mul_u32_u24 {vr(x)}, 288, {vr(r0)}
        v_mov_b32 {vr(big)}, 0x40000000
        s_lshl_b32 {sr(T)}, {sr(S_TOWN)}, 1
        s_add_u32 {sr(T)}, {sr(T)}, {sr(NB)}
        s_lshl_b32 {sr(T)}, {sr(T)}, 4
        v_add_u32 {vr(r)}, {sr(T)}, {vr(r0)}
        s_mul_i32 {sr(T+1)}, {sr(S_TOWN)}, {TILE}
        s_mul_i32 {sr(T+2)}, {sr(PT)}, {BLK}
        v_add_u32 {vr(x)}, {sr(T+1)}, {vr(x)}
        s_sub_u32 {sr(T+3)}, {BLK}, {sr(T+2)}
        v_add_u32 {vr(y)}, {sr(T+3)}, {vr(x)}
        v_add_u32 {vr(x)}, {sr(T+2)}, {vr(x)}
        v_lshl_add_u32 {vr(VO)}, {vr(g4)}, 4, {vr(x)}
        v_lshl_add_u32 {vr(VO+1)}, {vr(g4)}, 4, {vr(y)}
        v_lshl_add_u32 {vr(self.VO8)}, {vr(g4)}, 3, {vr(x)}
        s_lshl_b32 {sr(T+3)}, {sr(PT)}, 11
        s_add_u32 {sr(self.E_U)}, {sr(T+3)}, {WS_U}
        s_add_u32 {sr(self.E_G)}, {sr(T+3)}, {WS_G}
        s_sub_u32 {sr(T+3)}, 4096, {sr(T+3)}
        s_lshl_b32 {sr(T)}, {sr(PT)}, 11
        s_add_u32 {sr(T)}, {sr(T)}, {WS_DWF}
        v_lshrrev_b32 {vr(x)}, 2, {vr(r0)}
        v_cmp_eq_u32 vcc, {vr(x)}, {vr(g4)}
        v_lshl_add_u32 {vr(self.VDW)}, {vr(r0)}, 4, {sr(T)}
        s_nop 0
        v_cndmask_b32 {vr(self.VDW)}, {vr(big)}, {vr(self.VDW)}, vcc
        s_lshl_b32 {sr(self.E_COL)}, {sr(S_W)}, 6
        v_lshlrev_b32 {vr(self.VL8)}, 3, v0
        v_add_u32 {vr(self.VL8)}, 4096, {vr(self.VL8)}
        v_add_u32 {vr(self.VST)}, {sr(S_LB)}, {vr(V_DMA)}
        v_add_u32 {vr(self.VST)}, {2*SLOT}, {vr(self.VST)}
        s_xor_b32 {sr(T)}, {sr(NB)}, 1
        v_xor_b32 {vr(x)}, {sr(T)}, {vr(g4)}
        v_lshl_add_u32 {vr(x)}, {vr(x)}, 4, {vr(r0)}
        s_lshl_b32 {sr(T)}, {sr(S_W)}, 2
        s_add_u32 {sr(T)}, {sr(T)}, {self.L_L}
        v_lshl_add_u32 {vr(self.VLW)}, {vr(x)}, 4, {sr(T)}
        s_sub_u32 {sr(self.MP1)}, 0, {sr(PT)}
        s_mov_b32 {sr(self.MP1+1)}, {sr(self.MP1)}""")
        for k, (d, base) in enumerate(((self.RS1, 3 * SLOT), (self.RS2, 2 * SLOT), (self.RS3, 2 * SLOT))):
            a(f"s_xor_b32 {sr(T)}, {sr(S_W)}, {k+1}\ns_mul_i32 {sr(T)}, {sr(T)}, {TILE}\ns_add_u32 {sr(d)}, {sr(T)}, {base}")
        a(f"""s_mul_i32 {sr(T)}, {sr(S_B)}, 4000
        s_add_u32 {sr(T+1)}, {sr(T)}, 3999
        s_mov_b32 {sr(T+2)}, {BLK}""")
        for k, dr in enumerate((0, -1, 1)):
            m = GA + 2 * k
            if dr: a(f"v_add_u32 {vr(m)}, {dr}, {vr(r)}\nv_cmp_eq_u32 vcc, {sr(T if dr < 0 else T+1)}, {vr(r)}")
            src = m if dr else r
            a(f"""v_lshrrev_b32 {vr(x)}, 4, {vr(src)}
            v_and_b32 {vr(y)}, 15, {vr(src)}
            v_mul_lo_u32 {vr(x)}, {vr(x)}, {sr(T+2)}
            v_lshl_add_u32 {vr(y)}, {vr(g4)}, 4, {vr(y)}
            v_lshl_add_u32 {vr(m)}, {vr(y)}, 4, {vr(x)}
            v_lshl_add_u32 {vr(m+1)}, {vr(y)}, 3, {vr(x)}
            v_add_u32 {vr(m+1)}, {sr(T+3)}, {vr(m+1)}""")
            if dr: a(f"v_cndmask_b32 {vr(m)}, {vr(m)}, {vr(big)}, vcc\nv_cndmask_b32 {vr(m+1)}, {vr(m+1)}, {vr(big)}, vcc")

    def conv_loads(self):
        GA = self.GA
        L = []
        for dst, m, so in ((self.GM, GA + 2, 1), (self.G0, GA, 1), (self.GP, GA + 4, 1), (self.U, GA, 0)):
            for k in range(2): L.append(f"buffer_load_dwordx4 {vr(dst+4*k,4)}, {vr(m)}, {sr(S_WS,4)}, {sr(self.E_U+so)} offen offset:{1024*k}")
            L.append(f"buffer_load_dwordx2 {vr(dst+8,2)}, {vr(m+1)}, {sr(S_WS,4)}, {sr(self.E_U+so)} offen")
        return L

    def rg(self, e, n): return (ar if e[0] == "a" else vr)(e[1], n)

    def w8_loads(self, regs, so):
        return [f"buffer_load_dwordx4 {self.rg(regs[s],4)}, {vr(V_DMA)}, {sr(S_WS,4)}, {sr(so)} offen offset:{1024*s}" for s in range(4)] + \
               [f"buffer_load_dwordx2 {self.rg(regs[4],2)}, {vr(self.VL8)}, {sr(S_WS,4)}, {sr(so)} offen"]

    def w_reads(self, regs, off):
        L = []
        for tt in range(2):
            L += [f"ds_read_b128 {self.rg(regs[tt][s],4)}, {vr(self.VS0)} offset:{off + BLK*tt + 1024*s}" for s in range(4)]
            L.append(f"ds_read_b64 {self.rg(regs[tt][4],2)}, {vr(self.VS0R)} offset:{off + BLK*tt}")
        return L

    def xa_srd(self):
        T = S_T
        return f"""s_mul_i32 {sr(T)}, {sr(S_B)}, {NT}
        s_mul_i32 {sr(T+1)}, {sr(S_H)}, 63
        s_add_u32 {sr(T+1)}, {sr(T+1)}, {sr(T)}
        s_mul_i32 {sr(T+1)}, {sr(T+1)}, {TILE}
        s_add_u32 {sr(S_XA)}, {sr(S_WS)}, {sr(T+1)}
        s_addc_u32 {sr(S_XA+1)}, {sr(S_WS+1)}, 0
        s_sub_u32 {sr(T+2)}, 63, {sr(S_H)}
        s_mul_i32 {sr(S_XA+2)}, {sr(T+2)}, {TILE}
        s_mov_b32 {sr(S_XA+3)}, 0x20000"""

    def rest(self):
        a, o = self.a, self.o
        T = S_T
        VPL = self.VPL
        self.plan()
        self.head()
        self.stamp("loop")
        if o.get("sktest") or o.get("echo") and o["echo"][0] == "skew":
            a(f"s_waitcnt lgkmcnt(0)\ns_mov_b64 exec, 1\ns_not_b32 s98, {sr(S_ST)}\nv_mov_b32 v226, s98\nv_mov_b32 v227, 4\ns_cmp_lg_u32 {sr(S_W)}, 0\ns_cbranch_scc1 L_sk\nbuffer_atomic_umax v226, v227, {sr(S_DB,4)}, 0 offen sc1\ns_waitcnt vmcnt(0)\nL_sk:\ns_mov_b64 exec, -1\ns_nop 3")
            self.stamp("sk")
        nh = o.get("ugh", 2)
        ex = {2 + 12 * k: x for k, x in enumerate(self.ugs[nh:])}
        self.period(0, vm=9 + 5, extra=ex)
        self.stamp("l0")
        a.raw(".p2align 6")
        a.label("L_loop")
        self.stamp("q1")
        for p in range(1, 5):
            ex = {}
            vm = 9
            if p == 1: ex = {73: f"s_cmp_eq_u32 {sr(S_CNT)}, 3"}
            if p == 2: ex = {70: f"buffer_load_dword v252, {vr(VPL)}, {sr(S_WS,4)}, 0 offen sc1"}
            if p == 3:
                ex = {73: f"s_cmp_eq_u32 {sr(S_CNT)}, 2", 45: f"ds_add_rtn_u32 v230, v231, {vr(VPL+1)}"}
            if p == 4:
                self.stamp("la0")
                a(f"s_cbranch_scc1 L_last")
                a.label("L_lastb")
                self.stamp("la1")
                ex = {72: f"s_add_u32 {sr(S_CNT)}, {sr(S_CNT)}, 1", 1: f"v_readfirstlane_b32 {sr(T)}, v230", 3: f"s_cmp_eq_u32 {sr(T)}, 3",
                      4: f"s_cselect_b32 {sr(T)}, {sr(S_FB)}, 2.0", 6: f"buffer_store_dword v226, v231, {sr(S_WS,4)}, {sr(T)} offen sc1"}
            for k_ in range(o.get("pad", 0)): ex[10 + 7 * k_] = ex.get(10 + 7 * k_, "s_nop 0") + "\ns_nop 7"
            self.period(p, extra=ex, inc=sr(S_INC) if p == 4 else None)
            if p == 1: a("s_cbranch_scc1 L_p14")
        a("s_branch L_loop")
        a.label("L_p14")
        SW = 66
        self.stamp("p14")
        a(f"s_cmp_eq_u32 {sr(S_DUM)}, 4\ns_cbranch_scc0 L_dummyb")
        for i in range(16): a(f"v_mov_b32 {vr(V_CI+i)}, 0xff800000")
        a("s_nop 1")
        a.label("L_dummyb")
        ex = dict(zip([2, 6, 8, 12, 14, 18, 20, 24, 26, 30], self.w_reads(self.WD, 0)))
        ex[0] = "s_waitcnt vmcnt(9)"
        ex.update(dict(zip([4, 10, 16, 22, 28], self.w8_loads(self.WD[2], SW))))
        self.period(14, dma=False, kread=False, extra=ex, halves=(0,))
        self.stamp("tail")
        self.tail(SW)
        self.stamp("end")
        self.epilogue(SW)

    def rare(self):
        a = self.a
        T = S_T
        SW = 66
        a.label("L_last")
        a(f"s_waitcnt vmcnt(9)\ns_mov_b32 {sr(T+2)}, 0")
        a.label("L_late")
        a(f"""v_cmp_ne_u32 vcc, {sr(S_N)}, v252
        s_add_u32 {sr(S_XA)}, {sr(S_WS)}, {WS_WF}
        s_addc_u32 {sr(S_XA+1)}, {sr(S_WS+1)}, 0
        s_mov_b32 {sr(S_XA+2)}, {18*BLK}
        s_add_u32 {sr(S_TOFF)}, {sr(S_LB)}, {9*BLK}
        s_mov_b32 {sr(S_INC)}, {-9*BLK}
        s_lshr_b32 {sr(SW)}, {sr(S_W)}, 1
        s_lshl_b32 {sr(SW)}, {sr(SW)}, 30
        s_add_u32 {sr(SW+1)}, {sr(SW)}, {WS_WF + 8*BLK}
        s_add_u32 {sr(SW)}, {sr(SW)}, {WS_WF + 17*BLK}
        s_and_b32 {sr(T)}, vcc_lo, 31
        s_cbranch_scc0 L_lastb
        buffer_load_dword v252, {vr(self.VPL)}, {sr(S_WS,4)}, 0 offen sc1
        s_add_u32 {sr(T+2)}, {sr(T+2)}, 1
        s_waitcnt vmcnt(0)
        s_cmp_lt_u32 {sr(T+2)}, 0x40000
        s_cbranch_scc1 L_late
        s_branch L_lastb""")

    units = [(0, 0), (0, 1), (1, 0), (1, 1), (2, 0)]
    V15 = V_K

    def stage(self, slot, T):
        src = ar(A_O + 36 * slot + 4 * T, 4)
        if slot == 0: return f"ds_write_b128 {vr(self.VST)}, {src} offset:{1024*T}"
        if slot == 2: return f"ds_write_b128 {vr(self.VS0)}, {src} offset:{1024*T}"
        if T < 4: return f"ds_write_b128 {vr(self.VST)}, {src} offset:{SLOT + 1024*T + (4096 if slot == 3 else 0)}"
        return f"{'s_not_b64' if slot == 1 else 's_mov_b64'} exec, {sr(self.MP1,2)}\nds_write_b128 {vr(self.VST)}, {src} offset:{SLOT + 8192}\ns_mov_b64 exec, -1"

    def dwf(self, k, i):
        f = 5 * k + i
        return self.DWT[f >> 1] + 2 * (f & 1)

    def tail(self, SW):
        a, o = self.a, self.o
        mf, pos, start = [], {}, {}
        for t_, qb in ((14, 0), (14, 1), (15, 0), (15, 1), (14, 2), (15, 2), (14, 3), (15, 3)):
            start[t_, qb] = len(mf)
            for Tt in ([0, 1, 2, 3, 8, 4, 5, 6, 7] if qb & 1 else range(9)):
                o_ = ar(A_O + 36 * qb + 4 * Tt, 4)
                pos[t_, qb, Tt] = len(mf)
                mf.append(f"v_mfma_f32_16x16x32_bf16 {o_}, {vr((V_V if t_ == 14 else self.V15)+4*Tt,4)}, {vr(self.P(t_ & 1,qb),4)}, {o_}")
        lst = []
        for qb in range(4):
            for j in range(8):
                lst.append(("e", qb, j))
                if j & 1: lst.append(("c", qb, j // 2))
        lst += [("a", qb, j) for qb in range(4) for j in range(8)]
        items = self.e_items(1, lst, lambda qb, j: 0 if j < 4 else 1, lambda qb: start[15, qb] - 2)
        for it in items[48:]: it["lo"] = o.get("alo", 26)
        v15 = [dict(t=x, c=4, need=pos[15, 0, i // 2], hi=pos[15, 0, i // 2] - o.get("vlead", 7), lo=0 if i < 16 else 2) for i, x in enumerate(self.v_reads(3, self.V15))]
        wr = []
        nown = o.get("nown", 4)
        self.own = [(2, T_) for T_ in range(nown, 9)] + [(3, T_) for T_ in (0, 1, 2, 3, 8)]
        g = o.get("w0", 23)
        for k, (sl, Tt) in enumerate([(0, T_) for T_ in range(9)] + [(1, T_) for T_ in (0, 1, 2, 3, 8)] + [(2, T_) for T_ in range(nown)]):
            g = max(pos[15, sl, Tt] + 5, g)
            wr.append(dict(t=self.stage(sl, Tt), c=o.get("wc", 20), lo=int(g), hi=int(g)) if g < 72 else dict(t=self.stage(sl, Tt), c=4, lo=999))
            g += o.get("wsp", 2.7)
        n0 = len(items) + len(v15)
        wo = []
        for i, x in enumerate(self.w_reads(self.WO, SLOT)):
            r0 = self.WO[i // 5][i % 5][1]
            wo.append(dict(t=("@VM\n" if i == 0 else "") + x, c=4, dep=sorted({n0 + r0 // 4, n0 + (r0 + 3) // 4 if (r0 + 3) // 4 < 9 else n0 + 8}), lo=o.get("wo0", 40) + 3 * i, hi=o.get("wo0", 40) + 3 * i + 2))
        cl = self.conv_loads()
        dl = [f"buffer_load_dwordx4 {vr(self.DWT[r],4)}, {vr(self.VDW)}, {sr(S_WS,4)}, 0 offen offset:{256*r}" for r in range(7)]
        dl.append(f"buffer_load_dwordx2 {vr(self.DWT[7],2)}, {vr(self.VDW)}, {sr(S_WS,4)}, 0 offen offset:{256*7}")
        fr = {96: 9, 100: 18, 104: 45, 112: 27, 116: 36}
        vm = [(x, 0) for x in cl] + [(x, fr.get(self.DWT[r], 0)) for r, x in enumerate(dl)]
        used = {w["lo"] for w in wr}
        vi, g = [], o.get("m0", 24)
        for x, lo in vm:
            g = max(g, lo)
            while int(g) in used: g += 1
            vi.append(dict(t=x, c=8, lo=int(g), hi=int(g)) if g < 72 else dict(t=x, c=8, lo=999))
            g += o.get("msp", 2.2)
        left = self.pack(mf, items + v15 + wr + wo + vi)
        self.done_a = {(qb, j) for qb in range(4) for j in range(8) if self.etext(1, ("a", qb, j)) not in left}
        left = [x for x in left if not x.startswith("v_add_f32")]
        print("tail overflow", self.over, "left", len(left), "adds done", len(self.done_a))
        self.left = left

    def epilogue(self, SW):
        a, o = self.a, self.o
        T = S_T
        p = lambda r: vr(r, 2)
        NB, PT, MK, VO, units, MP1 = self.NB, self.PT, self.MK, self.VO, self.units, self.MP1
        U, GM, G0, GP = self.U, self.GM, self.G0, self.GP
        X2O = self.X2O
        R1, R2, R3 = 230, 231, 249
        LA, LS, M = 10, 226, 48

        def weave(main, fill, per):
            fill = list(fill)
            for x in main:
                a(x)
                for _ in range(per):
                    if fill: a(fill.pop(0))
            return fill
        for x in self.left:
            if not x.startswith("buffer"): a(x)
        lv = [x for x in self.left if x.startswith("buffer")]
        lv += [f"buffer_load_dwordx4 {vr(self.XRS[j],4)}, {vr(VO+j)}, {sr(S_X,4)}, {sr(self.E_COL)} offen" for j in range(2)]
        lv.append(f"buffer_load_dwordx2 {vr(self.XRS[2],2)}, {vr(self.VO8)}, {sr(S_X,4)}, 0 offen offset:256")
        S1 = lambda qb, j: self.S(1, qb, j)
        rounds = [[] for _ in range(6)]
        for qb in range(4):
            rem = [j for j in range(8) if (qb, j) not in self.done_a]
            prs = [j for j in rem if j % 2 == 0 and j + 1 in rem]
            sing = [j for j in rem if (j & ~1) not in prs]
            r_ = 0
            while len(prs) > 1:
                for x, y in zip(prs[0::2], prs[1::2]): rounds[r_].append(f"v_pk_add_f32 {p(S1(qb,x))}, {p(S1(qb,x))}, {p(S1(qb,y))}")
                prs = prs[0::2]; r_ += 1
            for k_, j in enumerate(sing + ([prs[0], prs[0] + 1] if prs else [])): rounds[min(5, max(r_, 2) + k_)].append(f"v_add_f32 {vr(V_L+qb)}, {vr(V_L+qb)}, {vr(S1(qb,j))}")
        for r_ in rounds:
            for x in r_: a(x)
        a(f"v_add_u32 {vr(R1)}, {sr(self.RS1)}, {vr(V_DMA)}\nv_add_u32 {vr(R2)}, {sr(self.RS2)}, {vr(V_DMA)}")
        self.treduce(V_L)
        a(f"ds_write_b32 {vr(self.VLW)}, {vr(V_L)}")
        acc = lambda slot: [f"v_accvgpr_read_b32 {vr(M+i)}, {ar(A_O+36*slot+16+i)}" for i in range(20)]
        a(f"""v_add_u32 {vr(R3)}, {sr(self.RS3)}, {vr(V_DMA)}
        v_add_u32 {vr(LA+1)}, {self.L_L}, {vr(V_DMA)}
        v_and_b32 {vr(LS+1)}, 0xf0, {vr(V_DMA)}
        s_lshl_b32 {sr(T)}, {sr(NB)}, 8
        s_add_u32 {sr(T+8)}, {sr(T)}, {self.L_L}
        v_add_u32 {vr(LS)}, {sr(T+8)}, {vr(LS+1)}""")
        for x in lv: a(x)
        a(f"""s_xor_b32 {sr(T)}, s2, 1
        s_mul_i32 {sr(T)}, {sr(T)}, {IB}
        s_mul_i32 {sr(T+9)}, {sr(NB)}, 5120
        s_add_u32 {sr(T+9)}, {sr(T+9)}, {WS_IB}
        s_add_u32 {sr(T)}, {sr(T)}, {sr(T+9)}
        s_lshl_b32 {sr(T+10)}, {sr(PT)}, 11
        s_add_u32 {sr(T+1)}, {sr(T+10)}, {sr(T)}
        s_add_u32 {sr(T)}, {sr(T)}, 4096
        s_cmp_eq_u32 {sr(PT)}, 0
        s_cselect_b32 {sr(T)}, 0x40000000, {sr(T)}
        s_mov_b32 {sr(T+2)}, {f32(2.0**100)}
        s_mul_i32 {sr(T+12)}, s2, {IB}
        s_add_u32 {sr(T+12)}, {sr(T+12)}, {sr(T+9)}
        s_add_u32 {sr(T+13)}, {sr(T+12)}, {sr(T+10)}
        s_waitcnt lgkmcnt(0)
        s_barrier""")
        self.stamp("B1")

        def rd(X, offs):
            L = [[f"ds_read_b128 {vr(X[k][i],4)}, {vr((R1, R2, R3)[k])} offset:{offs[k] + 1024*i}" for i in range(4)] for k in range(3)]
            L8 = [f"ds_read_b128 {vr(X[k][4],4)}, {vr((R1, R2, R3)[k])} offset:8192" for k in range(3)]
            return L, L8

        def adds(X, k, rng):
            return [f"v_pk_add_f32 {p(M+4*i+2*h)}, {p(M+4*i+2*h)}, {p(X[k][i]+2*h)}" for i in rng for h in range(2)]
        X = [[128, 132, 136, 140, 144], [148, 152, 156, 160, 68], [72, 76, 200, 204, 108]]
        PK = 128
        L, L8 = rd(X, (0, 4096, 0))
        a(f"ds_read_b128 {vr(LA,4)}, {vr(LA+1)}\nds_read_b128 {vr(LS,4)}, {vr(LS)}")
        rest = weave(L[0] + L[1] + L[2], acc(1), 2)
        assert not rest
        a(f"s_mov_b64 exec, {sr(MP1,2)}")
        for x in L8: a(x)
        a(f"""s_mov_b64 exec, -1
        s_waitcnt lgkmcnt(11)
        v_add_f32 {vr(LA)}, {vr(LA)}, {vr(LA+1)}
        v_add_f32 {vr(LA+2)}, {vr(LA+2)}, {vr(LA+3)}
        v_add_f32 {vr(LS)}, {vr(LS)}, {vr(LS+1)}
        v_add_f32 {vr(LA)}, {vr(LA)}, {vr(LA+2)}
        v_add_f32 {vr(LS+2)}, {vr(LS+2)}, {vr(LS+3)}
        v_cmp_nge_f32 vcc, {sr(T+2)}, {vr(LA)}""")
        for x in adds(X, 0, range(4)): a(x)
        a(f"""s_cmp_lg_u64 vcc, 0
        s_cselect_b32 {sr(T+2)}, 1, 0
        s_andn2_b32 {sr(T+2)}, {sr(T+2)}, {sr(S_REDO)}
        s_cbranch_scc1 L_fallback
        v_add_f32 {vr(PK+10)}, {vr(LS)}, {vr(LS+2)}
        v_mov_b32 {vr(PK+11)}, {vr(MK+1)}
        s_waitcnt lgkmcnt(7)""")
        for x in adds(X, 1, range(4)): a(x)
        a("s_waitcnt lgkmcnt(3)")
        a3 = adds(X, 2, range(4))
        cv = [f"v_cvt_pk_bf16_f32 {vr(PK+i)}, {vr(M+2*i)}, {vr(M+2*i+1)}" for i in range(10)]
        for x in a3[:4] + a3[4:6] + cv[:4]: a(x)
        a(f"buffer_store_dwordx4 {vr(PK,4)}, {vr(V_DMA)}, {sr(S_WS,4)}, {sr(T+1)} offen sc1")
        for x in a3[6:] + cv[4:8]: a(x)
        a(f"buffer_store_dwordx4 {vr(PK+4,4)}, {vr(V_DMA)}, {sr(S_WS,4)}, {sr(T+1)} offen offset:1024 sc1")
        a("s_waitcnt lgkmcnt(0)")
        for kk in range(3):
            for x in adds(X, kk, [4]): a(x)
        for x in cv[8:]: a(x)
        a(f"buffer_store_dwordx4 {vr(PK+8,4)}, {vr(V_DMA)}, {sr(S_WS,4)}, {sr(T)} offen sc1")
        self.stamp("sent")
        a(f"s_cmp_eq_u32 {sr(S_VAL)}, 0\ns_cbranch_scc1 L_fin")
        C, UP = 140, 68
        IN = [(200, 204, 226), (164, 168, 252), (192, 196, 172)]
        VXW, VXR, VF, LO = 78, 79, 10, 36
        wr = [self.stage(*e) for e in self.own]

        def inbox(k):
            return [f"buffer_load_dwordx4 {vr(IN[k][0],4)}, {vr(V_DMA)}, {sr(S_WS,4)}, {sr(T+13)} offen sc1",
                    f"buffer_load_dwordx4 {vr(IN[k][1],4)}, {vr(V_DMA)}, {sr(S_WS,4)}, {sr(T+13)} offen offset:1024 sc1",
                    f"buffer_load_dwordx4 {vr(IN[k][2],4)}, {vr(V_DMA+1)}, {sr(S_WS,4)}, {sr(T+12)} offen sc1"]
        for x in inbox(0): a(x)
        n0 = len(a.lines)
        a(f"""s_lshl_b32 {sr(T)}, {sr(NB)}, 12
        s_add_u32 {sr(T)}, {sr(T)}, {sr(T+10)}
        s_add_u32 {sr(T)}, {sr(T)}, {self.X1B}
        v_add_u32 {vr(VXW)}, {sr(T)}, {vr(V_DMA)}
        s_lshl_b32 {sr(T)}, {sr(NB)}, 9
        s_add_u32 {sr(T)}, {sr(T)}, {self.X1B + 4096}
        v_add_u32 {vr(VXR)}, {sr(T)}, {vr(self.VL8)}
        s_lshl_b32 {sr(T)}, {sr(PT)}, 12
        s_add_u32 {sr(T)}, {sr(T)}, {self.X1B}
        v_add_u32 {vr(VF)}, {sr(T)}, {vr(V_DMA)}
        v_xor_b32 {vr(VF+1)}, 4096, {vr(VF)}
        s_lshl_b32 {sr(T)}, {sr(PT)}, 9
        s_add_u32 {sr(T)}, {sr(T)}, {self.X1B + 4096}
        v_add_u32 {vr(VF+2)}, {sr(T)}, {vr(self.VL8)}
        v_xor_b32 {vr(VF+3)}, 512, {vr(VF+2)}
        v_subrev_u32 {vr(R2)}, {2*SLOT}, {vr(R2)}
        v_subrev_u32 {vr(R3)}, {2*SLOT}, {vr(R3)}
        s_waitcnt vmcnt(9)""")
        self.stamp("cv0")
        un = [f"v_lshlrev_b32 {vr(M+2*i)}, 16, {vr(U+i)}\nv_and_b32 {vr(M+1+2*i)}, 0xffff0000, {vr(U+i)}" for i in range(10)]
        w8 = self.w8_loads(self.WO[2], SW + 1)
        for k, src in enumerate((GM, G0, GP)):
            for i in range(5):
                d = vr(C + 4 * i, 4)
                a(f"v_mfma_f32_16x16x16_bf16 {d}, {vr(self.dwf(k, i),2)}, {vr(src+2*i,2)}, {'0' if k == 0 else d}")
                a(w8.pop(0) if i in (0, 3) and w8 else un.pop(0))
        self.stamp("cv1")
        a(f"v_and_b32 {vr(LO+1)}, 0xf0, {vr(V_DMA)}\nv_add_u32 {vr(LO)}, {sr(T+8)}, {vr(LO+1)}\ns_nop 1")
        for i in range(10): a(f"v_pk_mul_f32 {p(C+2*i)}, {p(C+2*i)}, {p(M+2*i)}")
        for i in range(10):
            a(f"v_cvt_pk_bf16_f32 {vr(UP+i)}, {vr(C+2*i)}, {vr(C+2*i+1)}")
        body = a.lines[n0:]; del a.lines[n0:]
        step = max(1, len(body) // len(wr))
        for i, l in enumerate(body):
            if i % o.get("wstep", step) == 0 and wr: a(wr.pop(0))
            a.lines.append(l)
        for x in wr: a(x)
        ac = acc(3)
        a(f"ds_write_b128 {vr(VXW)}, {vr(UP,4)} offset:{X2O}")
        for x in ac[:6]: a(x)
        a(f"ds_write_b128 {vr(VXW)}, {vr(UP+4,4)} offset:{X2O + 1024}")
        for x in ac[6:12]: a(x)
        a(f"""s_mov_b64 exec, {sr(MP1,2)}
        ds_write_b64 {vr(VXR)}, {vr(UP+8,2)} offset:{X2O}
        s_mov_b64 exec, -1""")
        self.stamp("x2")
        for x in inbox(1): a(x)
        for x in ac[12:]: a(x)
        a("s_waitcnt lgkmcnt(0)\ns_barrier")
        self.stamp("B2")
        X = [[128, 132, 136, 140, 144], [148, 152, 156, 160, 188], [16, 20, 24, 28, 32]]
        L, L8 = rd(X, (4096, 4096, 0))
        BU = [[("v", r) for r in (100, 104, 108, 112, 116)], [("v", r) for r in (118, 122, 180, 184, 126)]]
        BO = [self.frag("v", 128), self.frag("v", 146)]
        AB = 80

        def bfrags(dst, off):
            out = []
            for s in range(5):
                for j in range(2):
                    out.append(f"ds_read_b128 {self.rg(dst[j][s],4)}, {vr(VF+j)} offset:{off + 1024*s}" if s < 4 else f"ds_read_b64 {self.rg(dst[j][4],2)}, {vr(VF+2+j)} offset:{off}")
            return out

        def fg(W, Bf):
            out = []
            for s in range(5):
                for u, (tt, j) in enumerate(units):
                    d = vr(AB + 4 * u, 4)
                    if s < 4: out.append(f"v_mfma_f32_16x16x32_bf16 {d}, {self.rg(W[tt][s],4)}, {self.rg(Bf[j][s],4)}, {d}")
                    else: out.append(f"v_mfma_f32_16x16x16_bf16 {d}, {self.rg(W[tt][4],2)}, {self.rg(Bf[j][4],2)}, {d}")
            return out
        xu = []
        for u, (tt, j) in enumerate(units):
            for h in range(2):
                x = self.XRS[j] + 2 * tt + h if tt < 2 else self.XRS[2] + h
                xu += [f"v_lshlrev_b32 {vr(AB+4*u+2*h)}, 16, {vr(x)}", f"v_and_b32 {vr(AB+1+4*u+2*h)}, 0xffff0000, {vr(x)}"]
        a("s_waitcnt vmcnt(14)")
        weave(bfrags(BU, X2O), xu, 2)
        pl = lambda k, i, e: f"v_add_f32 {vr(M+4*i+e)}, {vr(M+4*i+e)}, {vr(X[k][i]+e)}"
        ds = L[0] + L[1] + L[2] + [f"s_not_b64 exec, {sr(MP1,2)}\n" + "\n".join(L8) + "\ns_mov_b64 exec, -1", f"ds_read_b128 {vr(LO,4)}, {vr(LO)} offset:512"]
        nis = [1] * 12 + [3, 1]
        gap = [[] for _ in range(25)]
        tot = [10]
        for g in range(25): tot.append(tot[-1] + (nis[g] if g < 14 else 0))
        A0 = [pl(0, i, e) for i in range(4) for e in range(4)]
        A1 = [pl(1, i, e) for i in range(4) for e in range(4)]
        ib = inbox(2)
        for g, m in enumerate(fg(self.WD, BU)):
            if g % 5 == 0: a(f"s_waitcnt lgkmcnt({min(15, tot[g] - 2 * (g // 5 + 1))})")
            a(m)
            if g == 8: a(f"s_waitcnt lgkmcnt({tot[g] - 14})")
            if g == 16: a(f"s_waitcnt lgkmcnt({tot[g] - 18})")
            if g < 14: a(ds[g])
            if 8 <= g < 14: a(A0.pop(0))
            elif g in (14, 18, 22): a(ib.pop(0))
            elif g >= 14:
                for _ in range(2): a(A0.pop(0) if A0 else A1.pop(0))
        assert not A0 and len(A1) % 2 == 0
        n1 = 16 - len(A1)
        for e in range(n1, 16, 2): a(f"v_pk_add_f32 {p(M+e)}, {p(M+e)}, {p(X[1][e//4]+e%4)}")
        a("s_waitcnt lgkmcnt(0)")
        for x in adds(X, 2, range(4)): a(x)
        a(f"v_add_f32 {vr(LO)}, {vr(LO)}, {vr(LO+1)}\nv_add_f32 {vr(LO+2)}, {vr(LO+2)}, {vr(LO+3)}")
        for kk in range(3):
            for x in adds(X, kk, [4]): a(x)
        a(f"s_mov_b32 {sr(T+2)}, 0\nv_add_f32 {vr(LO)}, {vr(LO)}, {vr(LO+2)}")
        self.stamp("own")
        w, PU = 40, 128
        mo = MK + 3

        def chk(k):
            r = [IN[k][q] + i for q in range(3) for i in range(4)]
            c = [f"v_max3_u32 v46, {vr(r[0])}, {vr(r[1])}, {vr(r[2])}", f"v_max3_u32 v47, {vr(r[3])}, {vr(r[4])}, {vr(r[5])}"]
            for q in range(3): c.append(f"v_max3_u32 v{46+(q&1)}, v{46+(q&1)}, {vr(r[6+2*q])}, {vr(r[7+2*q])}")
            return c + ["v_max_u32 v46, v46, v47", "v_cmp_eq_u32 vcc, -1, v46"]

        def take(k, with_chk):
            r = [IN[k][q] + i for q in range(3) for i in range(4)]
            lp_, mp = r[10], r[11]
            wt = [f"v_min_f32 {vr(w)}, {vr(mo)}, {vr(mp)}", f"v_sub_f32 {vr(w+2)}, {vr(w)}, {vr(mp)}", f"v_sub_f32 {vr(w)}, {vr(w)}, {vr(mo)}",
                  f"v_exp_f32 {vr(w+2)}, {vr(w+2)}", f"v_exp_f32 {vr(w)}, {vr(w)}", f"v_mul_f32 {vr(w+4)}, {vr(w+2)}, {vr(lp_)}",
                  f"v_fmac_f32 {vr(w+4)}, {vr(w)}, {vr(LO)}", f"v_rcp_f32 {vr(w+4)}, {vr(w+4)}", f"v_mul_f32 {vr(w)}, {vr(w)}, {vr(w+4)}",
                  f"v_mul_f32 {vr(w+2)}, {vr(w+2)}, {vr(w+4)}"]
            un = []
            for i in range(10): un += [f"v_lshlrev_b32 {vr(PU+2*i)}, 16, {vr(r[i])}", f"v_and_b32 {vr(PU+1+2*i)}, 0xffff0000, {vr(r[i])}"]
            c = chk(k) if with_chk else []
            for i in range(10):
                a(wt[i])
                if c: a(c.pop(0))
                a(un.pop(0)); a(un.pop(0))
        a("s_waitcnt vmcnt(6)")
        take(0, True)
        a("s_cmp_eq_u64 vcc, 0\ns_cbranch_scc0 L_poll2")
        a.label("L_got")
        self.stamp("got")
        for i in range(10): a(f"v_pk_mul_f32 {p(M+2*i)}, {p(M+2*i)}, {p(w)} op_sel_hi:[1,0]")
        for i in range(10): a(f"v_pk_fma_f32 {p(M+2*i)}, {p(PU+2*i)}, {p(w+2)}, {p(M+2*i)} op_sel_hi:[1,0,1]")
        for i in range(10):
            a(f"v_cvt_pk_bf16_f32 {vr(UP+i)}, {vr(M+2*i)}, {vr(M+2*i+1)}")
            if i == 3: a(f"ds_write_b128 {vr(VXW)}, {vr(UP,4)}")
            if i == 7: a(f"ds_write_b128 {vr(VXW)}, {vr(UP+4,4)} offset:1024")
        a(f"""s_not_b64 exec, {sr(MP1,2)}
        ds_write_b64 {vr(VXR)}, {vr(UP+8,2)}
        s_mov_b64 exec, -1
        s_waitcnt lgkmcnt(0)
        s_barrier""")
        self.stamp("B3")
        for x in bfrags(BO, 0): a(x)
        for g, m in enumerate(fg(self.WO, BO)):
            if g % 5 == 0: a(f"s_waitcnt lgkmcnt({8 - 2 * (g // 5)})" + ("\ns_nop 0" if g == 20 else ""))
            a(m)
        self.stamp("gem")
        a("s_nop 3")
        for j in range(2):
            for tt in range(2):
                u = 2 * tt + j
                for h in range(2): a(f"v_cvt_pk_bf16_f32 {vr(16+4*j+2*tt+h)}, {vr(AB+4*u+2*h)}, {vr(AB+4*u+2*h+1)}")
            a(f"buffer_store_dwordx4 {vr(16+4*j,4)}, {vr(VO+j)}, {sr(S_OUT,4)}, {sr(self.E_COL)} offen {o.get('ofl', '')}")
        a(f"s_cmp_ge_u32 {sr(S_W)}, 2\ns_cbranch_scc1 L_fin")
        for h in range(2): a(f"v_cvt_pk_bf16_f32 {vr(24+h)}, {vr(AB+16+2*h)}, {vr(AB+16+2*h+1)}")
        a(f"buffer_store_dwordx2 v[24:25], {vr(self.VO8)}, {sr(S_OUT,4)}, 0 offen offset:256 {o.get('ofl', '')}")
        self.stamp("fin")

        def poll2():
            a.label("L_poll2")
            for k in (1, 2, 0):
                for x in inbox((k + 2) % 3): a(x)
                a("s_waitcnt vmcnt(6)")
                for x in chk(k): a(x)
                a(f"s_add_u32 {sr(T+2)}, {sr(T+2)}, 1\ns_cmp_eq_u64 vcc, 0\ns_cbranch_scc1 L_take{k}")
            a(f"s_cmp_lt_u32 {sr(T+2)}, 0x10000\ns_cbranch_scc1 L_poll2")
            for k in (0, 1, 2):
                a.label(f"L_take{k}")
                take(k, False)
                a("s_branch L_got")
        self.poll2 = poll2

    def fallback(self):
        a = self.a
        T = S_T
        MXR = 208
        a.label("L_fallback")
        a(f"""s_waitcnt vmcnt(0) lgkmcnt(0)
        s_barrier
        s_mov_b32 {sr(S_REDO)}, 1
        s_mov_b32 {sr(S_UG)}, 0x40000000
        {self.xa_srd()}
        s_mov_b32 {sr(S_TOFF)}, {sr(S_LB)}
        s_cmp_eq_u32 {sr(S_DUM)}, 4
        s_cselect_b32 {sr(S_CNT)}, 15, 16""")
        for i in range(4): a(f"v_mov_b32 {vr(MXR+i)}, 0xff800000")
        a.label("L_fb1")
        for g in self.tile_groups(0): a(g)
        a("s_waitcnt vmcnt(0)")
        for x in self.k_reads(0): a(x)
        a("s_waitcnt lgkmcnt(0)")
        for m in self.qk_mfmas(0, czero=True): a(m)
        a("s_nop 7")
        for qb in range(4):
            for i in range(0, 8, 2): a(f"v_max3_f32 {vr(MXR+qb)}, {vr(MXR+qb)}, {vr(self.S(0,qb,i))}, {vr(self.S(0,qb,i+1))}")
        a(f"s_sub_u32 {sr(S_CNT)}, {sr(S_CNT)}, 1\ns_cmp_lg_u32 {sr(S_CNT)}, 0\ns_cbranch_scc1 L_fb1")
        self.greduce([MXR + i for i in range(4)], MXR + 4, "v_max_f32")
        a(f"""v_and_b32 {vr(MXR+4)}, 15, v0
        v_lshlrev_b32 {vr(MXR+4)}, 4, {vr(MXR+4)}
        v_add_u32 {vr(MXR+4)}, {L_SP}, {vr(MXR+4)}
        s_lshl_b32 {sr(T)}, {sr(S_W)}, 2
        s_xor_b32 {sr(T+1)}, {sr(self.NB)}, 1
        v_lshl_add_u32 {vr(MXR+5)}, {sr(self.NB)}, 8, {vr(MXR+4)}
        v_lshl_add_u32 {vr(MXR+4)}, {sr(T+1)}, 8, {vr(MXR+4)}
        v_add_u32 {vr(MXR+6)}, {sr(T)}, {vr(MXR+4)}
        v_add_u32 {vr(MXR+7)}, {sr(T)}, {vr(MXR+5)}""")
        for qb in range(4): a(f"ds_write_b32 {vr(MXR+6+(qb&1))}, {vr(MXR+qb)} offset:{512*(qb>>1)}")
        a("s_waitcnt lgkmcnt(0)\ns_barrier")
        for qb in range(4): a(f"ds_read_b128 {vr(16+4*qb,4)}, {vr(MXR+4+(qb&1))} offset:{512*(qb>>1)}")
        a(f"s_mov_b32 {sr(S_TOFF)}, {sr(S_LB)}")
        for g in self.tile_groups(0) + self.tile_groups(1) + self.tile_groups(2)[:8]: a(g)
        a("s_waitcnt lgkmcnt(0)")
        for qb in range(4):
            r = 16 + 4 * qb
            a(f"v_max_f32 {vr(r)}, {vr(r)}, {vr(r+1)}\nv_max3_f32 {vr(r)}, {vr(r)}, {vr(r+2)}, {vr(r+3)}")
            a(f"v_sub_f32 {vr(self.MK+qb)}, 0, {vr(r)}")
        a("s_waitcnt vmcnt(0)")
        for x in self.k_reads(0, V_V): a(x)
        self.loop_init(False)
        a("s_branch L_go")


if __name__ == "__main__":
    opt = json.loads(sys.argv[2]) if len(sys.argv) > 2 else {}
    g = G(opt)
    txt = g.build()
    if opt.get("align", 1):
        from align import align
        for n2 in (1, 2):
            try:
                txt, st = align(txt, chains=[(1, "L_tr")] * 3 + [(1, "L_tr2"), (n2, "L_tr2")] if opt.get("touch", 1) else None)
                break
            except AssertionError as e:
                if n2 == 2: raise
        print("align: promoted %d, padded %d, left %d" % st)
    txt = txt.replace("\n", "\n; stamps " + json.dumps(g.stnames) + "\n; map %d\n" % g.mp, 1)
    open(sys.argv[1], "w").write(txt)
```

```python
import sys, json, math
from common import Asm, vr, ar, sr, kernel_header, kernel_desc
from lay import *

NAME = "standalone__conformer_family_branchformer__speech_kernel"
NH = 2
NWG = 252 + NH
CHAINS = (3, 3)
RING = 4
LDS_RING = RING * TILE
LDS_TOTAL = 163840
SLOT = 4 * TILE
L_WU, L_WQ, L_WK = 0, 41472, 82944
L_XX, L_XR = 126976, 143360
L_XS = L_XX + 18432
L_MX = L_XS + 4096
L_PC = LDS_TOTAL - 256
L_DUMP = 123904
L_SP = 147456

S_X, S_WS, S_XA, S_DB, S_W1, S_W2, S_OUT, S_DW = 8, 12, 16, 20, 24, 28, 32, 36
S_W, S_B, S_H, S_QB, S_TOFF, S_CNT, S_DUM, S_LB, S_TOWN, S_TSND, S_VAL, S_REDO = range(40, 52)
S_UG = 25
S_N, S_FB = 98, 99
S_INC = 24
S_T = 52
S_ST = 76

V_KA, V_VA, V_VR, V_DMA, V_L, V_VB = 1, 3, 5, 6, 10, 14
V_S, V_CI, V_P, V_K, V_V = 16, 80, 96, 128, 164
V_HI = 200
V_X = 208
A_O, A_Q, A_F = 0, 144, 216

LOG2E = 1.4426950408889634
import struct
def f32(x): return "0x%08x" % struct.unpack("<I", struct.pack("<f", x))[0]


class BAsm(Asm):
    def __init__(self):
        super().__init__()
        self.bg, self.every, self.cnt, self.skip = [], 0, 0, 0

    def __call__(self, s):
        for l in s.split("\n"):
            l = l.strip()
            if not l: continue
            self.lines.append("    " + l)
            if self.bg and self.every and not l.startswith(("s_nop", "v_mov_b32", "v_exp", "v_rcp", "v_rsq", "v_sqrt", "s_add_u32 m0")):
                self.cnt += 1
                if self.cnt >= self.every:
                    self.cnt = 0
                    self.pop()

    def pop(self):
        for x in self.bg.pop(0).split("\n"): self.lines.append("    " + x)

    def flush(self):
        while self.bg: self.pop()
        self.every = 0


class G:
    def __init__(self, opt):
        self.o = opt
        self.a = BAsm()
        self.nst = 0
        self.fill = []

    def stamp(self, name):
        if self.o.get("stamps"):
            if name in self.o.get("skipst", []): return
            if "only" in self.o and name not in self.o["only"]: return
            if self.nst >= 11: return
            self.a(f"{'s_memtime' if self.o.get('cyc') else 's_memrealtime'} {sr(S_ST + 2*self.nst, 2)}")
            self.stnames.append(name)
            self.nst += 1

    def srd(self, dst, lo, hi, n):
        if dst == S_WS and self.o.get("wsoff"):
            self.a(f"s_add_u32 {sr(dst)}, {sr(lo)}, {self.o['wsoff']}\ns_addc_u32 {sr(dst+1)}, {sr(hi)}, 0\ns_mov_b32 {sr(dst+2)}, {n}\ns_mov_b32 {sr(dst+3)}, 0x20000")
            return
        self.a(f"s_mov_b32 {sr(dst)}, {sr(lo)}\ns_mov_b32 {sr(dst+1)}, {sr(hi)}\ns_mov_b32 {sr(dst+2)}, {n}\ns_mov_b32 {sr(dst+3)}, 0x20000")

    def greduce(self, regs, tmp, op="v_add_f32"):
        a = self.a
        for sw in ("32", "16"):
            for i, r in enumerate(regs): a(f"v_mov_b32 {vr(tmp+i)}, {vr(r)}")
            if len(regs) < 3: a("s_nop 1" if len(regs) == 1 else "s_nop 0")
            for i, r in enumerate(regs): a(f"v_permlane{sw}_swap_b32 {vr(r)}, {vr(tmp+i)}")
            for i, r in enumerate(regs): a(f"{op} {vr(r)}, {vr(r)}, {vr(tmp+i)}")

    def treduce(self, r, op="v_add_f32"):
        a = self.a
        a(f"v_permlane32_swap_b32 {vr(r)}, {vr(r+2)}\nv_permlane32_swap_b32 {vr(r+1)}, {vr(r+3)}")
        a(f"{op} {vr(r)}, {vr(r)}, {vr(r+2)}\n{op} {vr(r+1)}, {vr(r+1)}, {vr(r+3)}\ns_nop 1")
        a(f"v_permlane16_swap_b32 {vr(r)}, {vr(r+1)}\n{op} {vr(r)}, {vr(r)}, {vr(r+1)}")

    def rbf(self, r):
        self.a(f"v_cvt_pk_bf16_f32 {vr(r)}, {vr(r)}, {vr(r)}\nv_lshlrev_b32 {vr(r)}, 16, {vr(r)}")

    def ln_tail(self, F, out, t, mimic):
        a = self.a
        p = lambda r: vr(r, 2)
        self.greduce([t, t + 1], t + 2)
        a(f"v_mul_f32 {vr(t+2)}, {f32(1.0/144)}, {vr(t)}")
        a(f"v_mul_f32 {vr(t+3)}, {vr(t+2)}, {vr(t+2)}")
        a(f"v_mov_b32 {vr(t+4)}, {f32(1.0/144)}")
        a(f"v_fma_f32 {vr(t)}, {vr(t+1)}, {vr(t+4)}, -{vr(t+3)}")
        a(f"v_max_f32 {vr(t)}, 0, {vr(t)}")
        if mimic:
            self.rbf(t)
            self.rbf(t + 2)
            a(f"v_add_f32 {vr(t)}, {f32(1e-5)}, {vr(t)}")
            self.rbf(t)
            a(f"v_sqrt_f32 {vr(t)}, {vr(t)}\ns_nop 0")
            self.rbf(t)
            a(f"v_rcp_f32 {vr(t)}, {vr(t)}\ns_nop 0")
        else:
            a(f"v_add_f32 {vr(t)}, {f32(1e-5)}, {vr(t)}")
            a(f"v_rsq_f32 {vr(t)}, {vr(t)}\ns_nop 0")
        a(f"v_mul_f32 {vr(t+2)}, -{vr(t+2)}, {vr(t)}")
        for i in range(18):
            a(f"v_pk_fma_f32 {p(F+2*i)}, {p(F+2*i)}, {p(t)}, {p(t+2)} op_sel_hi:[1,0,0]")
        for i in range(18):
            a(f"v_cvt_pk_bf16_f32 {vr(out+i)}, {vr(F+2*i)}, {vr(F+2*i+1)}")

    def ln_packed(self, X, F, out, t):
        a = self.a
        a(f"v_mov_b32 {vr(t+6)}, 0x3f803f80")
        for k in range(4): a(f"v_mov_b32 {vr(t+k)}, 0")
        for i in range(18):
            a(f"v_dot2_f32_bf16 {vr(t+2*(i&1))}, {vr(X+i)}, {vr(t+6)}, {vr(t+2*(i&1))}")
            a(f"v_dot2_f32_bf16 {vr(t+1+2*(i&1))}, {vr(X+i)}, {vr(X+i)}, {vr(t+1+2*(i&1))}")
        for i in range(2):
            a(f"v_lshlrev_b32 {vr(F+2*i)}, 16, {vr(X+i)}\nv_and_b32 {vr(F+2*i+1)}, 0xffff0000, {vr(X+i)}")
        a(f"v_pk_add_f32 {vr(t,2)}, {vr(t,2)}, {vr(t+2,2)}")
        un = []
        for i in range(2, 18):
            un.append(f"v_lshlrev_b32 {vr(F+2*i)}, 16, {vr(X+i)}\nv_and_b32 {vr(F+2*i+1)}, 0xffff0000, {vr(X+i)}")
        sv = (a.bg, a.every, a.cnt, a.skip)
        n0 = len(a.lines)
        a.bg, a.every = [], 0
        self.ln_tail(F, out, t, True)
        tail = a.lines[n0:]
        del a.lines[n0:]
        a.bg, a.every, a.cnt, a.skip = sv
        k = next(i for i, l in enumerate(tail) if "v_pk_fma" in l)
        for i, l in enumerate(tail[:k]):
            if "s_nop" in l and un: continue_nop = True
            a(l)
            if un and not l.strip().startswith("s_nop"): a(un.pop(0))
        while un: a(un.pop(0))
        for l in tail[k:]: a(l)

    def ln_f32(self, F, out, t):
        a = self.a
        p = lambda r: vr(r, 2)
        a(f"v_pk_add_f32 {p(t)}, {p(F)}, {p(F+2)}\nv_pk_add_f32 {p(t+2)}, {p(F+4)}, {p(F+6)}")
        a(f"v_pk_mul_f32 {p(t+4)}, {p(F)}, {p(F)}\nv_pk_mul_f32 {p(t+6)}, {p(F+2)}, {p(F+2)}")
        for i in range(2, 18):
            if i >= 4: a(f"v_pk_add_f32 {p(t+2*(i&1))}, {p(t+2*(i&1))}, {p(F+2*i)}")
            a(f"v_pk_fma_f32 {p(t+4+2*(i&1))}, {p(F+2*i)}, {p(F+2*i)}, {p(t+4+2*(i&1))}")
        a(f"v_pk_add_f32 {p(t)}, {p(t)}, {p(t+2)}\nv_pk_add_f32 {p(t+4)}, {p(t+4)}, {p(t+6)}")
        a(f"v_add_f32 {vr(t)}, {vr(t)}, {vr(t+1)}\nv_add_f32 {vr(t+1)}, {vr(t+4)}, {vr(t+5)}")
        self.ln_tail(F, out, t, False)

    def gemm_u(self, AF, rf, Bs, ACC, afr, bfr, post, vm_items=(), other=(), lead=7, vm0=0, vmsp=4):
        a = self.a
        units = [(0, j) for j in range(4)] + [(1, j) for j in range(4)] + [(2, 0)]
        seq, dl = [], {}
        bs = lambda j, o_, n: self.rg((Bs[j][0], Bs[j][1] + o_), n)
        rem = lambda u: (f"v_mfma_f32_16x16x16_bf16 {vr(ACC+4*u,4)}, {rf(AF+18*units[u][0]+16,2)}, {bs(units[u][1],16,2)}, {vr(ACC+4*u,4)}", u)
        A = [afr(t) for t in range(3)]
        Bf = [bfr(j) for j in range(4)]

        def use(t, j, s, k):
            for x in (A[t][2 * s:2 * s + 2] if s < 4 else A[t][8:]) + ([Bf[j][s]] if Bf[j] else []): dl.setdefault(x, k)
        for g in range(4):
            for s in range(4):
                for u in range(3 * g, 3 * g + 3) if g < 3 else []:
                    t, j = units[u]
                    d = vr(ACC + 4 * u, 4)
                    use(t, j, s, len(seq))
                    seq.append((f"v_mfma_f32_16x16x32_bf16 {d}, {rf(AF+18*t+4*s,4)}, {bs(j,4*s,4)}, {'0' if s == 0 else d}", None))
                if s == 0 and g > 0:
                    for u in range(3 * g - 3, 3 * g):
                        use(units[u][0], units[u][1], 4, len(seq)); seq.append(rem(u))
        last = seq[-3:]; seq = seq[:-3]
        ds = sorted(dl.items(), key=lambda e: e[1]) + [(x, 99) for x in other]
        vm_items = list(vm_items)
        lastvm = vm0 - vmsp
        order, ready, q, done = [], [], [], 0

        def issue():
            x, k_ = ds.pop(0); a(x); order.append(k_)

        def wait(k):
            nonlocal done
            idx = [i_ for i_, k_ in enumerate(order) if k_ <= k]
            if idx and max(idx) + 1 > done:
                a(f"s_waitcnt lgkmcnt({min(15, len(order) - 1 - max(idx))})"); done = max(idx) + 1
        while ds and ds[0][1] < 6: issue()
        for k, (m, fin) in enumerate(seq):
            assert not ds or ds[0][1] > k, (k, ds[0])
            wait(k)
            a(m)
            for u_, kk in list(ready):
                if k - kk >= 4: q += post(u_); ready.remove((u_, kk))
            if fin is not None: ready.append((fin, k))
            due = sum(1 for x, k_ in ds if k_ <= k + lead)
            if due == 0 and vm_items and k >= lastvm + vmsp:
                a(vm_items.pop(0)); lastvm = k; continue
            cap = 2
            for _ in range(min(due, 3)): issue(); cap -= 1
            if cap == 2:
                if q and q[0].startswith("ds_"): a(q.pop(0)); order.append(99); cap -= 1
                elif ds: issue(); cap -= 1
            while cap > 0 and q and not q[0].startswith("ds_"):
                a(q.pop(0)); cap -= 1
        assert not ready
        while ds: issue()
        wait(98)
        for x in vm_items: a(x)
        for x in q[:4]: a(x)
        a(f"s_nop {max(0, 4 - len(q[:4]))}")
        for m, _ in last: a(m)
        for x in q[4:]: a(x)
        a(f"s_nop {max(0, 6 - len(q[4:]))}")
        for u in range(6, 9):
            for x in post(u): a(x)

    def gemm(self, jobs, at={}):
        a = self.a
        buf = lambda G, t: 18 * ((3 * G + t) % 6)
        NG = 3 * len(jobs)
        seq, pend = [], []
        rems = []
        for G in range(NG + 1):
            if G < NG:
                reads, B, ACC, pre = jobs[G // 3]
                if G % 3 == 0 and pre: pend.append([pre, len(seq), len(seq)])
                r = [reads(3 * (G % 3) + t, buf(G, t)) for t in range(3)]
                per = (len(r[0]) - 1) // 4
            for s in range(4):
                if G < NG:
                    k0 = len(seq)
                    for t in range(3):
                        d = vr(ACC + 4 * (3 * (G % 3) + t), 4)
                        pend += [[r[t][per * s + u], k0 + t, k0] for u in range(per)]
                        seq.append(f"v_mfma_f32_16x16x32_bf16 {d}, {ar(buf(G, t)+4*s,4)}, {vr(B+4*s,4)}, {'0' if s == 0 else d}")
                if s == 0:
                    for t, (e, m) in enumerate(rems): e[1:] = [len(seq) + t, len(seq)]
                    seq += [m for e, m in rems]
                    rems = []
            if G < NG:
                for t in range(3):
                    d = vr(ACC + 4 * (3 * (G % 3) + t), 4)
                    e = [r[t][4 * per], None, None]; pend.append(e)
                    rems.append((e, f"v_mfma_f32_16x16x16_bf16 {d}, {ar(buf(G, t)+16,2)}, {vr(B+16,2)}, {d}"))
        pend.sort(key=lambda e: e[1])
        order, done = [], 0
        lead = self.o.get("lead", 8)
        self.gk = 0

        def issue(n, k):
            while n > 0 and pend and pend[0][1] <= k + lead:
                x, _, need = pend.pop(0)
                if callable(x): x()
                else: a(x); order.append(need); n -= 2 if "b128" in x and k >= 0 else 1

        def wait(k):
            nonlocal done
            idx = [i for i, n_ in enumerate(order) if n_ <= k]
            assert not any(e[2] <= k for e in pend)
            if idx and max(idx) + 1 > done:
                a(f"s_waitcnt lgkmcnt({min(15, len(order) - 1 - max(idx))})"); done = max(idx) + 1
        issue(14, -1)
        wait(0)
        for k, m in enumerate(seq):
            if k == len(seq) - 3: a("s_nop 2")
            a(m)
            wait(k + 1)
            issue(2, k)
            if k in at: at[k]() if callable(at[k]) else a(at[k])
            self.gk = k + 1
        if len(jobs) == 1: a("s_nop 7")
        assert max(at, default=0) < self.gk - 3

    def tr_reads(self, ad, rf=ar):
        def f(T, dst):
            out = []
            for s in range(4):
                for u in range(2):
                    out.append(f"ds_read_b64_tr_b16 {rf(dst+4*s+2*u,2)}, {vr(ad+u)} offset:{9216*s + 32*T}")
            out.append(f"ds_read_b64_tr_b16 {rf(dst+16,2)}, {vr(ad+2)} offset:{36864 + 32*T}")
            return out
        return f

    def row_reads(self, ad, sw=None):
        def f(T, dst):
            r = ad if sw is None or T == 8 else sw[T & 1]
            out = []
            for s in range(4):
                for u in range(2):
                    out.append(f"ds_read_b64 {ar(dst+4*s+2*u,2)}, {vr(r)} offset:{4864*T + 64*s + 32*u}")
            out.append(f"ds_read_b64 {ar(dst+16,2)}, {vr(r)} offset:{4864*T + 256}")
            return out
        return f

    def dma_rows(self, jobs, cpr, rstride, vo, vc, n_first, first_waves, lab):
        a = self.a
        mul = {18: 3641, 19: 3450}[cpr]
        dr, dc = 256 // cpr, 256 % cpr
        a(f"s_lshl_b32 {sr(S_T)}, {sr(S_W)}, 6")
        a(f"v_add_u32 {vr(vc)}, {sr(S_T)}, v0")
        a(f"v_mul_u32_u24 {vr(vo)}, {mul}, {vr(vc)}")
        a(f"v_lshrrev_b32 {vr(vo)}, 16, {vr(vo)}")
        a(f"v_mul_u32_u24 {vr(vc+1)}, {cpr}, {vr(vo)}")
        a(f"v_sub_u32 {vr(vc)}, {vr(vc)}, {vr(vc+1)}")
        a(f"v_mul_u32_u24 {vr(vo)}, {rstride}, {vr(vo)}")
        a(f"v_lshl_add_u32 {vr(vo)}, {vr(vc)}, 4, {vr(vo)}")
        a(f"s_lshl_b32 {sr(S_T)}, {sr(S_W)}, 10")
        a(f"v_mov_b32 {vr(vc+1)}, {rstride - 16*cpr}")
        for k in range(n_first):
            if k == n_first - 1:
                a(f"s_cmp_ge_u32 {sr(S_W)}, {first_waves}\ns_cbranch_scc1 {lab}")
            for srd, so, lb in jobs:
                a(f"s_add_u32 m0, {sr(S_T)}, {lb + 4096*k}")
                a("s_nop 0")
                a(f"buffer_load_dwordx4 {vr(vo)}, {sr(srd,4)}, {so} offen lds")
            if k < n_first - 1:
                a(f"v_add_u32 {vr(vc)}, {dc}, {vr(vc)}")
                a(f"v_cmp_le_u32 vcc, {cpr}, {vr(vc)}")
                a(f"v_add_u32 {vr(vo)}, {dr*rstride + 16*dc}, {vr(vo)}")
                a(f"v_subrev_u32 {vr(vc+2)}, {cpr}, {vr(vc)}")
                a(f"v_cndmask_b32 {vr(vc)}, {vr(vc)}, {vr(vc+2)}, vcc")
                a(f"v_cndmask_b32 {vr(vc+2)}, 0, {vr(vc+1)}, vcc")
                a(f"v_add_u32 {vr(vo)}, {vr(vo)}, {vr(vc+2)}")
        a.label(lab)

    def voff_table(self, dst, cpr, rstride, vc, step=256):
        a = self.a
        mul = {18: 29128, 19: 27595}[cpr]
        n = len(dst)
        a(f"s_mov_b32 {sr(S_T)}, {rstride - 16*cpr}")
        a(f"v_mul_u32_u24 {vr(dst[0])}, {mul}, {vr(vc)}")
        for k in range(1, n): a(f"v_add_u32 {vr(dst[k])}, {(step*k % cpr)*mul}, {vr(dst[0])}")
        for k in range(n): a(f"v_lshrrev_b32 {vr(dst[k])}, 19, {vr(dst[k])}")
        for k in range(n): a(f"v_mad_i32_i24 {vr(dst[k])}, {vr(dst[k])}, {sr(S_T)}, {vr(vc+1)}")

    def dma_lin(self, srd, soff, lb, v16, lab):
        a = self.a
        a(f"s_lshl_b32 {sr(S_T)}, {sr(S_W)}, 10")
        for k in range(11):
            if k == 10:
                a(f"s_cmp_ge_u32 {sr(S_W)}, 1\ns_cbranch_scc1 {lab}")
            a(f"s_add_u32 m0, {sr(S_T)}, {lb + 4096*k}")
            a(f"s_add_u32 {sr(S_T+1)}, {sr(S_T)}, {soff + 4096*k}")
            a(f"buffer_load_dwordx4 {vr(v16)}, {sr(srd,4)}, {sr(S_T+1)} offen lds")
        a.label(lab)

    def tr_addr(self, ad, base, swapped, t):
        a = self.a
        a(f"v_lshrrev_b32 {vr(t)}, 2, v0")
        a(f"v_mul_u32_u24 {vr(t)}, 288, {vr(t)}")
        a(f"v_and_b32 {vr(t+1)}, 3, v0")
        a(f"v_lshl_add_u32 {vr(t)}, {vr(t+1)}, 3, {vr(t)}")
        a(f"v_add_u32 {vr(ad+2)}, {base}, {vr(t)}")
        if swapped:
            a(f"v_bfe_u32 {vr(t)}, v0, 4, 1")
            a(f"v_mul_u32_u24 {vr(t)}, {16*288}, {vr(t)}")
            a(f"v_add_u32 {vr(ad)}, {vr(ad+2)}, {vr(t)}")
            a(f"v_sub_u32 {vr(ad+1)}, {vr(ad+2)}, {vr(t)}")
            a(f"v_add_u32 {vr(ad+1)}, {16*288}, {vr(ad+1)}")
        else:
            a(f"v_mov_b32 {vr(ad)}, {vr(ad+2)}")
            a(f"v_add_u32 {vr(ad+1)}, {16*288}, {vr(ad+2)}")

    def row_addr(self, ad, base, t):
        a = self.a
        a(f"v_and_b32 {vr(t)}, 15, v0")
        a(f"v_mul_u32_u24 {vr(t)}, 304, {vr(t)}")
        a(f"v_lshrrev_b32 {vr(t+1)}, 4, v0")
        a(f"v_lshl_add_u32 {vr(t)}, {vr(t+1)}, 3, {vr(t)}")
        a(f"v_add_u32 {vr(ad)}, {base}, {vr(t)}")

    def store_block(self, src, v16, v8, srd, soff, soff2, flags=""):
        a = self.a
        for s in range(4):
            a(f"buffer_store_dwordx4 {vr(src+4*s,4)}, {vr(v16)}, {sr(srd,4)}, {sr(soff)} offen offset:{1024*s} {flags}")
        a(f"buffer_store_dwordx2 {vr(src+16,2)}, {vr(v8)}, {sr(srd,4)}, {sr(soff2)} offen {flags}")

    def entry(self):
        a = self.a
        kernel_header(a, NAME)
        a(f"s_load_dwordx16 s[56:71], s[0:1], 0")
        a(f"s_load_dwordx8 s[72:79], s[0:1], 64")
        a(f"s_getpc_b64 {sr(S_W1,2)}")
        a.label("L_pf")
        hl = self.o.get("hlast", 0)
        assert not hl
        a(f"""s_cmp_ge_u32 s2, {NH}
        s_cbranch_scc1 L_main
        s_memrealtime s[4:5]
        s_waitcnt lgkmcnt(0)
        s_mov_b32 {sr(S_DB)}, s76
        s_mov_b32 {sr(S_DB+1)}, s77
        s_mov_b32 {sr(S_DB+2)}, 256
        s_mov_b32 {sr(S_DB+3)}, 0x20000
        v_lshlrev_b32 v1, 8, v0
        s_or_b32 s4, s4, 1
        v_mov_b32 v2, s4
        s_lshl_b32 s5, s2, 8
        buffer_store_dword v2, v1, {sr(S_DB,4)}, s5 offen sc1
        s_branch L_wfuse""")
        a.label("L_main")
        a(f"""s_mov_b32 {sr(S_W1+2)}, L_dummy-L_pf
        s_mov_b32 {sr(S_W1+3)}, 0x20000
        v_lshlrev_b32 v1, 4, v0
        s_bfe_u32 {sr(S_T)}, s2, 0x30003
        s_lshl_b32 {sr(S_T)}, {sr(S_T)}, 12
        buffer_load_dwordx4 v[252:255], v1, {sr(S_W1,4)}, 0 offen
        buffer_load_dwordx4 v[252:255], v1, {sr(S_W1,4)}, {sr(S_T)} offen
        s_cmp_ge_u32 s2, {NWG - NH * hl}
        s_cbranch_scc1 {"L_wfuse" if hl else "L_end"}""")
        if self.o.get("late"):
            m_, v_, n_ = self.o["late"]
            a(f"""s_and_b32 s3, s2, {m_}
            s_cmp_lg_u32 s3, {v_}
            s_cbranch_scc1 L_nl
            s_memrealtime s[4:5]
            s_waitcnt lgkmcnt(0)
            s_add_u32 s6, s4, {n_}
            L_lt:
            s_memrealtime s[4:5]
            s_waitcnt lgkmcnt(0)
            s_sub_u32 s7, s6, s4
            s_cmp_gt_i32 s7, 0
            s_cbranch_scc1 L_lt
            L_nl:""")
        if self.o.get("stamps"):
            a("s_memrealtime s[100:101]" if not self.o.get("cyc") else "s_memtime s[100:101]")
        self.mp = 2
        a(f"""v_lshrrev_b32 v1, 6, v0
        s_sub_u32 s2, s2, {0 if hl else NH}
        v_readfirstlane_b32 {sr(S_W)}, v1
        s_and_b32 {sr(S_H)}, s2, 1
        s_bfe_u32 {sr(S_B)}, s2, 0x10001
        s_lshr_b32 {sr(S_QB)}, s2, 2
        v_and_b32 v0, 63, v0
        v_lshlrev_b32 {vr(V_DMA)}, 4, v0""")

    def vm_since(self, mark):
        return sum(1 for l in self.a.lines[mark:] if l.strip().startswith("buffer_"))

    def phase_a(self):
        a, o = self.a, self.o
        XR, XF, XA, ACC, G_, PK = 16, 34, 146, 110, 16, 164
        QW, QE, L8, TRU, TRQ, RK, TM = 107, 200, 214, 215, 218, 221, 228
        RR = 182
        VU = list(range(193, 200)) + list(range(100, 104))
        t0, t1, t2 = 250, 251, 227
        T = S_T
        WV, W10, UOFF, M1, PUB, M3, W12 = 72, 70, 71, 69, 68, 65, 64
        a(f"""s_lshl_b32 {sr(T)}, {sr(S_QB)}, 1
        s_add_u32 {sr(S_TOWN)}, {sr(T)}, {sr(S_H)}
        s_xor_b32 {sr(S_TSND)}, {sr(S_TOWN)}, 1
        s_cmp_lt_u32 {sr(S_TOWN)}, {NT}
        s_cselect_b32 {sr(S_VAL)}, 1, 0
        s_cmp_lt_u32 {sr(S_W)}, 2
        s_cselect_b32 {sr(T+3)}, {sr(S_TSND)}, {sr(S_TOWN)}
        s_mul_i32 {sr(T)}, {sr(S_B)}, {NT}
        s_add_u32 {sr(S_TOWN)}, {sr(S_TOWN)}, {sr(T)}
        s_add_u32 {sr(S_TSND)}, {sr(S_TSND)}, {sr(T)}
        s_add_u32 {sr(T+1)}, {sr(T+3)}, {sr(T)}
        s_lshl_b32 {sr(T+1)}, {sr(T+1)}, 1
        s_and_b32 {sr(T+2)}, {sr(S_W)}, 1
        s_add_u32 {sr(T+2)}, {sr(T+1)}, {sr(T+2)}
        s_mul_i32 {sr(T+1)}, {sr(T+2)}, {16*288}
        s_mul_i32 {sr(S_LB)}, {sr(S_W)}, {BLK}
        s_add_u32 {sr(S_LB)}, {sr(S_LB)}, {L_XS}
        s_mov_b32 m0, {sr(S_LB)}
        s_mov_b32 {sr(S_X+2)}, 2304000
        s_mov_b32 {sr(S_X+3)}, 0x20000
        s_add_u32 {sr(S_CNT)}, {sr(T+1)}, 4096
        s_waitcnt lgkmcnt(0)
        s_mov_b32 {sr(S_X)}, s56
        s_mov_b32 {sr(S_X+1)}, s57""")
        for k in range(4): a(f"buffer_load_dwordx4 {vr(V_DMA)}, {sr(S_X,4)}, {sr(T+1)} offen offset:{1024*k} lds")
        a(f"s_add_u32 m0, {sr(S_LB)}, 4096\ns_mov_b32 exec_hi, 0\nbuffer_load_dwordx4 {vr(V_DMA)}, {sr(S_X,4)}, {sr(S_CNT)} offen lds\ns_mov_b32 exec_hi, -1")
        mx = len(a.lines)
        SQ, SK, SU = S_W2, S_W1, S_XA
        self.srd(SU, 66, 67, 82944)
        self.srd(SQ, 58, 59, 41472)
        self.srd(SK, 60, 61, 41472)
        a(f"s_lshr_b32 {sr(T)}, s2, 3\ns_lshl_b32 {sr(T)}, {sr(T)}, 12\ns_lshl_b32 {sr(W10)}, {sr(S_W)}, 10\ns_add_u32 {sr(T)}, {sr(T)}, {sr(W10)}")
        a(f"buffer_load_dwordx4 v[252:255], {vr(V_DMA)}, {sr(SU,4)}, {sr(T)} offen")
        for srd_, rot in ((SQ, 82), (SK, 41)):
            a(f"s_add_u32 {sr(T+1)}, {sr(T)}, {(128 - rot) * 1024}\ns_and_b32 {sr(T+1)}, {sr(T+1)}, {127 * 1024}")
            a(f"buffer_load_dwordx4 v[252:255], {vr(V_DMA)}, {sr(srd_,4)}, {sr(T+1)} offen")
        self.srd(S_OUT, 74, 75, 2304000)
        self.srd(S_DB, 76, 77, 256)
        self.srd(S_WS, 78, 79, WS_END)
        def tlb():
            a(f"v_lshlrev_b32 v249, 21, v0")
            for ch in o.get("tlbw", "wdo"): a(f"buffer_load_dword v252, v249, {sr(dict(w=S_WS, d=S_DB, o=S_OUT)[ch],4)}, 0 offen")
        if o.get("tlb", 0) == 1: tlb()
        if o.get("tlb", 3) == 3:
            a(f"""s_bfe_u32 {sr(T)}, s2, 0x30003
            s_lshl_b32 {sr(T)}, {sr(T)}, 21
            v_mov_b32 v249, 0
            s_cmp_lt_u32 {sr(T)}, {5 << 21}
            s_cbranch_scc0 L_tl1
            buffer_load_dword v252, v249, {sr(S_WS,4)}, {sr(T)} offen
            s_branch L_tl3
            L_tl1:
            s_sub_u32 {sr(T)}, {sr(T)}, {5 << 21}
            s_cmp_lt_u32 {sr(T)}, {2 << 21}
            s_cbranch_scc0 L_tl2
            buffer_load_dword v252, v249, {sr(S_OUT,4)}, {sr(T)} offen
            s_branch L_tl3
            L_tl2:
            v_lshlrev_b32 v249, {o.get("dsh", 6)}, v0
            buffer_load_dword v252, v249, {sr(S_DB,4)}, 0 offen {o.get("dfl", "")}
            L_tl3:""")
            self.vm_adj = -2
        if o.get("stamps"): a(f"s_mov_b64 {sr(S_ST,2)}, s[100:101]"); self.stnames.append("start"); self.nst = 1
        self.stamp("xiss")
        a(f"""s_cmp_lt_u32 {sr(T+3)}, {NT}
        s_cselect_b32 {sr(WV)}, 1, 0
        s_mov_b32 {sr(WV+1)}, {sr(T+2)}
        s_mul_i32 {sr(UOFF)}, {sr(S_H)}, 288
        s_cmp_eq_u32 {sr(S_W)}, 0
        s_cselect_b32 {sr(M1)}, 0, {L_DUMP}
        s_lshl_b32 {sr(W12)}, {sr(S_W)}, 12""")
        half = lambda g_: "s_mov_b32 exec_hi, 0\n" + g_ + "\ns_mov_b32 exec_hi, -1"
        gu = [f"s_add_u32 m0, {sr(W10 if k < 10 else M1)}, {L_WU + 4096*k}\ns_add_u32 {sr(S_CNT)}, {sr(UOFF)}, {4096*k + 288*(256*k//18)}\nbuffer_load_dwordx4 {vr(VU[k])}, {sr(SU,4)}, {sr(S_CNT)} offen lds" for k in range(11)]
        gu[10] = half(gu[10])
        lin = lambda srd, lb: [(f"s_add_u32 m0, {sr(W12)}, {lb + 16384*(k//4)}\ns_add_u32 {sr(T+6)}, {sr(W12)}, {16384*(k//4)}\n" if k % 4 == 0 else "") +
                               f"buffer_load_dwordx4 {vr(V_DMA)}, {sr(srd,4)}, {sr(T+6)} offen offset:{1024*(k%4)} lds" for k in range(12)]
        gq, gk = lin(SQ, L_WQ), lin(SK, L_WK)
        a(f"s_lshl_b32 {sr(T)}, {sr(S_W)}, 6\nv_add_u32 {vr(t0)}, {sr(T)}, v0\nv_lshlrev_b32 {vr(t1)}, 4, {vr(t0)}")
        npre = o.get("npre", 4)
        a.bg, a.every, a.cnt = gq[:npre], o.get("evpre", 30), 0
        self.voff_table(VU, 18, 576, t0)
        xa0, xa1, xa2 = TM, TM + 1, TM + 2
        a(f"""v_and_b32 {vr(t0)}, 15, v0
        v_lshrrev_b32 {vr(t1)}, 5, v0
        v_lshlrev_b32 {vr(t1)}, 3, {vr(t1)}
        v_xor_b32 {vr(t1)}, {vr(t0)}, {vr(t1)}
        v_lshlrev_b32 {vr(t1)}, 4, {vr(t1)}
        v_lshrrev_b32 {vr(t2)}, 4, v0
        v_lshl_add_u32 {vr(V_KA)}, {vr(t2)}, 9, {vr(t1)}
        v_lshrrev_b32 {vr(t1)}, 3, {vr(t0)}
        v_lshlrev_b32 {vr(t1)}, 1, {vr(t1)}
        v_xor_b32 {vr(t1)}, {vr(t2)}, {vr(t1)}
        v_lshl_add_u32 {vr(t1)}, {vr(t0)}, 2, {vr(t1)}
        v_lshlrev_b32 {vr(V_KA+1)}, 3, {vr(t1)}
        v_lshlrev_b32 {vr(L8)}, 3, v0
        v_lshlrev_b32 {vr(QE+5)}, 2, {vr(t0)}
        v_mul_u32_u24 {vr(xa2)}, 288, {vr(t0)}
        v_lshl_add_u32 {vr(xa2)}, {vr(t2)}, 3, {vr(xa2)}
        v_add_u32 {vr(xa2)}, {sr(S_LB)}, {vr(xa2)}
        v_and_b32 {vr(t1)}, 1, {vr(t2)}
        v_lshlrev_b32 {vr(t1)}, 5, {vr(t1)}
        v_add_u32 {vr(xa0)}, {vr(xa2)}, {vr(t1)}
        v_xor_b32 {vr(t1)}, 32, {vr(t1)}
        v_add_u32 {vr(xa1)}, {vr(xa2)}, {vr(t1)}
        s_mul_i32 {sr(S_LB)}, {sr(S_W)}, {TILE}
        v_lshrrev_b32 {vr(t0)}, 2, v0
        v_bfe_u32 {vr(t1)}, v0, 1, 1
        v_lshlrev_b32 {vr(t1)}, 3, {vr(t1)}
        v_xor_b32 {vr(t1)}, {vr(t0)}, {vr(t1)}
        v_lshlrev_b32 {vr(t1)}, 4, {vr(t1)}
        v_and_b32 {vr(t2)}, 3, v0
        v_lshl_add_u32 {vr(t1)}, {vr(t2)}, 9, {vr(t1)}
        v_and_b32 {vr(V_VA)}, 1, v0
        v_lshl_add_u32 {vr(t1)}, {vr(V_VA)}, 3, {vr(t1)}
        s_and_b32 {sr(T)}, {sr(S_W)}, 1
        s_lshl_b32 {sr(T)}, {sr(T)}, 12
        s_add_u32 {sr(T+1)}, {sr(T)}, {sr(S_LB)}
        s_xor_b32 {sr(T)}, {sr(T)}, 4096
        s_add_u32 {sr(T)}, {sr(T)}, {sr(S_LB)}
        v_add_u32 {vr(V_VA)}, {sr(T)}, {vr(t1)}
        v_add_u32 {vr(V_VB)}, {sr(T+1)}, {vr(t1)}
        v_xor_b32 {vr(V_VA+1)}, 8, {vr(V_VA)}
        v_xor_b32 {vr(V_VB+1)}, 8, {vr(V_VB)}
        v_lshrrev_b32 {vr(t1)}, 5, v0
        v_lshlrev_b32 {vr(t1)}, 1, {vr(t1)}
        v_xor_b32 {vr(t1)}, {vr(t2)}, {vr(t1)}
        v_lshl_add_u32 {vr(t1)}, {vr(t0)}, 2, {vr(t1)}
        v_lshlrev_b32 {vr(t1)}, 3, {vr(t1)}
        v_add_u32 {vr(V_VR)}, {sr(S_LB)}, {vr(t1)}
        v_add_u32 {vr(V_DMA+1)}, 4096, {vr(V_DMA)}
        v_add_u32 {vr(V_DMA+2)}, 8192, {vr(V_DMA)}""")
        self.tr_addr(TRU, L_WU, True, t0)
        for k in range(3): a(f"v_add_u32 {vr(TRQ+k)}, {L_WQ - L_WU}, {vr(TRU+k)}")
        a(f"""v_and_b32 {vr(t0)}, 15, v0
        v_mul_u32_u24 {vr(t0)}, 288, {vr(t0)}
        v_add_u32 {vr(t0)}, {L_WK}, {vr(t0)}
        v_lshrrev_b32 {vr(t1)}, 4, v0
        v_lshl_add_u32 {vr(RK+2)}, {vr(t1)}, 4, {vr(t0)}
        v_lshl_add_u32 {vr(RR+2)}, {vr(t1)}, 3, {vr(t0)}
        v_bfe_u32 {vr(t0)}, v0, 2, 1
        v_mul_u32_u24 {vr(t0)}, {BLK}, {vr(t0)}
        v_add_u32 {vr(RK)}, {vr(RK+2)}, {vr(t0)}
        v_sub_u32 {vr(RK+1)}, {vr(RK+2)}, {vr(t0)}
        v_add_u32 {vr(RR)}, {vr(RR+2)}, {vr(t0)}
        v_sub_u32 {vr(RR+1)}, {vr(RR+2)}, {vr(t0)}
        s_lshr_b32 {sr(T)}, {sr(S_W)}, 1
        s_xor_b32 {sr(T+1)}, {sr(T)}, 1
        v_add_u32 {vr(t0)}, {L_XX}, {vr(V_DMA)}
        v_lshl_add_u32 {vr(QW)}, {sr(S_W)}, 12, {vr(t0)}
        v_lshl_add_u32 {vr(QE)}, {sr(T+1)}, 12, {vr(t0)}
        v_lshl_add_u32 {vr(QE+1)}, {sr(T)}, 12, {vr(t0)}
        v_add_u32 {vr(t0)}, {L_XR}, {vr(L8)}
        v_lshl_add_u32 {vr(QW+1)}, {sr(S_W)}, 9, {vr(t0)}
        v_lshl_add_u32 {vr(QE+2)}, {sr(T+1)}, 9, {vr(t0)}
        v_lshl_add_u32 {vr(QE+3)}, {sr(T)}, 9, {vr(t0)}
        v_add_u32 {vr(t0)}, {L_MX}, {vr(QE+5)}
        v_lshl_add_u32 {vr(QW+2)}, {sr(S_W)}, 6, {vr(t0)}
        v_lshl_add_u32 {vr(QE+4)}, {sr(T+1)}, 6, {vr(t0)}
        v_lshl_add_u32 {vr(QE+5)}, {sr(T)}, 6, {vr(t0)}""")
        a(f"""s_sub_u32 {sr(T+2)}, 63, {sr(S_H)}
        s_add_u32 {sr(T+3)}, {sr(S_W)}, 60
        s_cmp_ge_u32 {sr(T+3)}, {sr(T+2)}
        s_cselect_b32 {sr(S_DUM)}, 4, 99
        s_mov_b32 {sr(S_REDO)}, 0
        s_mov_b32 {sr(S_TOFF)}, {sr(S_LB)}
        s_lshl_b32 {sr(PUB)}, {sr(S_TOWN)}, 8
        s_add_u32 {sr(PUB)}, {sr(PUB)}, {WS_F}
        s_cmp_eq_u32 {sr(S_W)}, 2
        s_cselect_b32 {sr(T)}, {sr(S_VAL)}, 0
        s_cmp_eq_u32 {sr(T)}, 1
        s_cselect_b32 {sr(PUB)}, {sr(PUB)}, 0x40000000
        s_lshl_b32 {sr(S_FB)}, s2, 8
        s_add_u32 {sr(S_FB)}, {sr(S_FB)}, {WS_F + 250*256}
        s_mul_i32 {sr(T)}, {sr(S_H)}, 1792
        s_sub_u32 {sr(T)}, {sr(T)}, 768
        s_mul_i32 {sr(T+1)}, {sr(S_H)}, 62
        s_cmp_eq_u32 {sr(S_QB)}, {sr(T+1)}
        s_cselect_b32 {sr(T)}, 0, {sr(T)}
        v_mov_b32 {vr(self.VPL)}, 0x40000000
        s_xor_b32 {sr(T+1)}, {sr(S_FB)}, 256
        s_add_u32 {sr(T)}, {sr(T)}, {sr(S_FB)}
        v_writelane_b32 {vr(self.VPL)}, {sr(S_FB)}, 0
        v_writelane_b32 {vr(self.VPL)}, {sr(T+1)}, 1
        v_writelane_b32 {vr(self.VPL)}, {sr(T)}, 2
        s_mov_b32 {sr(T)}, {WS_F + 502*256}
        s_mov_b32 {sr(T+1)}, {WS_F + 503*256}
        v_writelane_b32 {vr(self.VPL)}, {sr(T)}, 3
        v_writelane_b32 {vr(self.VPL)}, {sr(T+1)}, 4
        s_sub_u32 {sr(S_FB)}, {sr(S_FB)}, {L_PC}""")
        a.flush()
        if o.get("tlb", 0) == 2: tlb()
        self.stamp("pre")
        if o.get("es", 0) == 0: self.epi_setup()
        self.stamp("es")
        nx = self.vm_since(mx) + getattr(self, "vm_adj", 0)
        if o.get("touch", 1):
            a(f"""s_mov_b64 exec, 0
            s_cmp_eq_u32 {sr(S_W)}, 0
            s_cbranch_scc1 L_tr
            s_cmp_eq_u32 {sr(S_W)}, 1
            s_cbranch_scc1 L_t0
            s_cmp_eq_u32 {sr(S_W)}, 2
            s_cbranch_scc1 L_t1
            s_branch L_t2""")
            self.rare()
            a.raw(".p2align 12")
            a.label("L_tr")
            a("s_mov_b64 exec, -1")
        nlate = o.get("nlate", 0)
        assert nlate == 0
        a(f"s_waitcnt vmcnt({nx + nlate})")
        self.stamp("xarr")
        for s in range(4):
            a(f"ds_read_b64 {vr(XR+4*s,2)}, {vr(xa0)} offset:{64*s}\nds_read_b64 {vr(XR+4*s+2,2)}, {vr(xa1)} offset:{64*s}")
        a(f"ds_read_b64 {vr(XR+16,2)}, {vr(xa2)} offset:256")
        a(f"""s_and_b32 {sr(T)}, {sr(S_W)}, 1
        s_mul_i32 {sr(T+2)}, {sr(S_TOWN)}, {TILE}
        s_cmp_eq_u32 {sr(S_VAL)}, 1
        s_cselect_b32 {sr(T+2)}, {sr(T+2)}, 0x40000000
        s_lshl_b32 {sr(T+3)}, {sr(T)}, 8
        s_add_u32 {sr(T+3)}, {sr(T+3)}, {sr(T+2)}
        s_add_u32 {sr(T+4)}, {sr(T+3)}, 4096
        s_lshl_b32 {sr(T+5)}, {sr(T)}, 9
        s_add_u32 {sr(T+5)}, {sr(T+5)}, {sr(T+2)}
        s_add_u32 {sr(T+5)}, {sr(T+5)}, 8192
        s_waitcnt lgkmcnt(0)""")
        wl = gu + gk
        a.bg, a.every, a.cnt = gq[npre:] + [wl.pop(0) for _ in range(o.get("nql", 4))], o.get("evln", 8), 0
        self.ln_packed(XR, XF, XA, TM)
        a.flush()
        self.stamp("ln")
        a(f"s_cmp_lt_u32 {sr(S_W)}, 2\ns_cbranch_scc1 L_nop")
        for s in range(4):
            a(f"buffer_store_dwordx4 {vr(XA+4*s,4)}, {vr(V_KA)}, {sr(S_WS,4)}, {sr(T+3+(s>>1))} offen offset:{2048*(s&1)} sc1")
        a(f"buffer_store_dwordx2 {vr(XA+16,2)}, {vr(V_KA+1)}, {sr(S_WS,4)}, {sr(T+5)} offen sc1\ns_waitcnt vmcnt({5 + o.get('nql', 4)})\ns_branch L_bar1")
        a.label("L_nop")
        if o.get("touch", 1):
            a(f"s_mov_b64 exec, 0\ns_cmp_eq_u32 {sr(S_W)}, 0\ns_cbranch_scc1 L_t3\ns_branch L_t4")
            a.label("L_tr2")
            a("s_mov_b64 exec, -1")
        a(f"s_waitcnt vmcnt({o.get('nql', 4)})")
        a.label("L_bar1")
        self.stamp("pub")
        self.stamp("tch")
        PA = 249
        a(f"""v_add_u32 {vr(V_KA)}, {sr(S_LB)}, {vr(V_KA)}
        v_add_u32 {vr(V_KA+1)}, {sr(S_LB)}, {vr(V_KA+1)}
        s_mul_i32 {sr(T)}, {sr(S_B)}, {NT}
        s_mul_i32 {sr(T+1)}, {sr(S_H)}, 63
        s_add_u32 {sr(T)}, {sr(T)}, {sr(T+1)}
        s_lshl_b32 {sr(T)}, {sr(T)}, 8
        s_add_u32 {sr(T)}, {sr(T)}, {WS_F}
        s_cmp_eq_u32 {sr(S_W)}, 0
        s_cselect_b32 {sr(T)}, {sr(T)}, 0x40000000
        v_lshl_add_u32 {vr(PA)}, v0, 8, {sr(T)}
        s_lshl2_add_u32 {sr(T+3)}, s2, {sr(S_W)}
        s_mul_i32 {sr(T+3)}, {sr(T+3)}, 2560
        s_add_u32 {sr(T+3)}, {sr(T+3)}, {WS_IB}
        s_mov_b32 {sr(T+4)}, {f32(LOG2E / 12.0)}""")
        self.stamp("w1")
        a("s_barrier")
        self.stamp("bar1")
        poll = lambda r: f"buffer_load_dword {vr(r)}, {vr(PA)}, {sr(S_WS,4)}, 0 offen sc1"

        def gate(lab, r, mask, younger):
            a(f"s_mov_b32 {sr(T+2)}, 0\ns_waitcnt vmcnt({younger})")
            a.label(lab)
            a(f"""v_cmp_ne_u32 vcc, {sr(S_N)}, {vr(r)}
            s_add_u32 {sr(T+2)}, {sr(T+2)}, 1
            s_and_b64 vcc, vcc, {mask}
            s_cbranch_scc0 {lab}_ok
            s_sleep {o.get("slp", 4)}
            {poll(r)}
            s_waitcnt vmcnt(0)
            s_cmp_lt_u32 {sr(T+2)}, 0x40000
            s_cbranch_scc1 {lab}""")
            a.label(lab + "_ok")

        H, QB, G_, UG, CL = 16, 52, 52, 208, 100
        p = lambda r: vr(r, 2)
        tagld = f"buffer_load_dword v253, off, {sr(S_DB,4)}, 0 sc1"
        at = {}
        k_ = o.get("d0", 1)
        for x in wl:
            at[k_] = x; k_ += o.get("dsp", 3)
        assert k_ < 80
        tgp, flp = o.get("tgp", 24), o.get("flp", 50)
        at[tgp] = (at[tgp] + "\n" if tgp in at else "") + tagld
        def add(k, x): at[k] = (at[k] + "\n" if k in at else "") + x
        kq = 0
        for T_ in range(9):
            kq = max(kq, (22, 37, 52)[T_ // 3])
            L_ = [f"v_mul_f32 {vr(ACC+4*T_+i)}, {sr(T+4)}, {vr(ACC+4*T_+i)}" for i in range(4)]
            L_ += [f"v_cvt_pk_bf16_f32 {vr(QB+2*T_+h)}, {vr(ACC+4*T_+2*h)}, {vr(ACC+4*T_+2*h+1)}" for h in range(2)]
            if T_ >= 2 and T_ % 2 == 0:
                prs = [(vr(QB + 2 * T_ - 4 + h), vr(QB + 2 * T_ - 2 + h)) for h in range(2)]
                L_ = L_[:2] + [f"v_permlane32_swap_b32 {x_}, {y_}" for x_, y_ in prs] + L_[2:4] + [f"v_permlane16_swap_b32 {x_}, {y_}" for x_, y_ in prs] + L_[4:]
            for x in L_:
                while kq in at and o.get("qfree", 0): kq += 1
                add(kq, x); kq += 1
        print("q done at", kq)
        assert kq < 101
        for i in range(12): add((112, 127)[i // 6] + i % 6 // (1 + i // 6), f"v_cvt_pk_bf16_f32 {vr(PK+i)}, {vr(ACC+2*i)}, {vr(ACC+2*i+1)}")
        for i in range(o.get("nsq", 14)): add(97 + i, f"v_mul_f32 {vr(G_+20+i)}, {vr(H+20+i)}, {vr(H+20+i)}")
        krd = lambda T_, dst: [f"ds_read_b128 {ar(dst+4*s,4)}, {vr(RK + (T_ & 1 if T_ < 8 else 2))} offset:{BLK*T_ + 64*s}" for s in range(4)] + \
                              [f"ds_read_b64 {ar(dst+16,2)}, {vr(RR + (T_ & 1 if T_ < 8 else 2))} offset:{BLK*T_ + 256}"]
        last = lambda srd: max(i for i, l in enumerate(a.lines) if l.strip().startswith("buffer_load") and sr(srd, 4) in l) + 1

        def bar_u():
            assert not any(sr(SU, 4) in x for k, x in at.items() if k >= self.gk and not callable(x))
            a(f"s_waitcnt vmcnt({self.vm_since(last(SU))})\ns_barrier")
            self.gk_u = self.gk
            self.stamp("barU")

        def flag():
            assert self.gk_u <= self.gk
            n_ = self.vm_since(max(i for i, l in enumerate(a.lines) if l.strip() == tagld) + 1)
            a(f"v_lshlrev_b32 {vr(t0)}, 2, v0\ns_mov_b32 {sr(T+2)}, 0\ns_waitcnt vmcnt({n_})")
            a.label("L_tag")
            a(f"""v_readfirstlane_b32 {sr(S_N)}, v253
            s_add_u32 {sr(T+2)}, {sr(T+2)}, 1
            s_cmp_lg_u32 {sr(S_N)}, 0
            s_cbranch_scc1 L_tag_ok
            {tagld}
            s_waitcnt vmcnt(0)
            s_cmp_lt_u32 {sr(T+2)}, 0x40000
            s_cbranch_scc1 L_tag""")
            a.label("L_tag_ok")
            a(f"v_mov_b32 {vr(t1)}, {sr(S_N)}\nbuffer_store_dword {vr(t1)}, {vr(t0)}, {sr(S_WS,4)}, {sr(PUB)} offen sc1")
            self.m_fl = len(a.lines)
            self.stamp("flag")
        fl_old = at.get(flp, "")
        at[flp] = lambda: (a(fl_old), flag())

        def bar_k():
            assert self.gk > k_
            a(f"s_waitcnt vmcnt({self.vm_since(max(last(SK), self.m_fl)) + (last(SK) < self.m_fl)})\ns_barrier")
            self.stamp("barG")
        clr = [f"buffer_store_dwordx4 {vr(CL,4)}, {vr(V_DMA)}, {sr(S_WS,4)}, {sr(T+3)} offen sc1",
               f"buffer_store_dwordx4 {vr(CL,4)}, {vr(V_DMA)}, {sr(S_WS,4)}, {sr(T+3)} offen offset:1024 sc1",
               f"buffer_store_dwordx2 {vr(CL,2)}, {vr(L8)}, {sr(S_WS,4)}, {sr(T+3)} offen offset:2048 sc1"]
        for i in range(4): add(90 + i, f"v_mov_b32 {vr(CL+i)}, -1")
        for i, x in enumerate(clr): add(o.get("cl0", 104) + o.get("csp", 8) * i, x)
        pg = o.get("pg", 100)
        add(pg, poll(252))
        self.gemm([(self.tr_reads(TRQ), XA, ACC, None), (self.tr_reads(TRU), XA, H, bar_u), (krd, QB, ACC, bar_k)], at=at)
        self.stamp("g2")
        ng = self.vm_since(max(i for i, l in enumerate(a.lines) if l.strip() == poll(252)) + 1)
        CC = TM
        dot = lambda i: f"v_dot2_f32_bf16 {vr(CC+(i&3))}, {vr(PK+i)}, {vr(XA+i)}, {'0' if i < 4 else vr(CC+(i&3))}"
        for i in range(12):
            if i % 4 == 0: a(f"ds_write_b128 {vr(QW)}, {vr(PK+i,4)} offset:{1024*(i//4)}")
            a(dot(i))
        for i in range(12, 18): a(f"v_cvt_pk_bf16_f32 {vr(PK+i)}, {vr(ACC+2*i)}, {vr(ACC+2*i+1)}")
        a(f"ds_write_b128 {vr(QW)}, {vr(PK+12,4)} offset:3072")
        for i in range(12, 18): a(dot(i))
        a(f"""ds_write_b64 {vr(QW+1)}, {vr(PK+16,2)}
        {self.xa_srd()}
        v_pk_add_f32 {p(CC)}, {p(CC)}, {p(CC+2)}
        s_sub_u32 {sr(T+5)}, 63, {sr(S_H)}
        s_bfm_b64 {sr(T+8,2)}, {sr(T+5)}, 0
        v_add_f32 {vr(CC)}, {vr(CC)}, {vr(CC+1)}""")
        self.greduce([CC], CC + 1)
        a(f"""v_sub_f32 {vr(CC)}, 0, {vr(CC)}
        ds_write_b32 {vr(QW+2)}, {vr(CC)}
        s_cmp_lg_u32 {sr(S_W)}, 0
        s_cbranch_scc1 L_ga_ok""")
        gate("L_ga", 252, sr(T + 8, 2), ng)
        a("s_waitcnt lgkmcnt(0)\ns_barrier")
        self.stamp("bar3")
        c1 = -2.0 * math.sqrt(2.0 / math.pi) * LOG2E
        c2 = c1 * 0.044715
        mrd = [f"ds_read_b32 {vr(self.MK+qb)}, {vr(QE+4+(qb&1))} offset:{128*(qb>>1)}" for qb in range(4)]
        qrd = []
        for qb in range(4):
            qrd += [f"ds_read_b128 {ar(A_Q+18*qb+4*s,4)}, {vr(QE+(qb&1))} offset:{8192*(qb>>1) + 1024*s}" for s in range(4)]
            qrd.append(f"ds_read_b64 {ar(A_Q+18*qb+16,2)}, {vr(QE+2+(qb&1))} offset:{1024*(qb>>1)}")
        tg = self.tile_groups(0) + self.tile_groups(1) + self.tile_groups(2)[:8]
        n0 = o.get("n0", 3)
        for x in tg[:n0]: a(x)
        a(f"v_mov_b32 {vr(CC)}, {f32(c1)}\nv_mov_b32 {vr(CC+2)}, {f32(c2)}\nv_mov_b32 {vr(CC+4)}, 1.0")
        nq1, nt1 = o.get("nq1", 8), o.get("nt1", 5)
        bgl = []
        for i in range(max(nq1 // 2, nt1)):
            if 2 * i < nq1: bgl.append(qrd[2 * i] + "\n" + qrd[2 * i + 1])
            if i < nt1: bgl.append(tg[n0 + i])
        tg, qrd = tg[n0 + nt1:], qrd[nq1:]
        a.bg, a.every, a.cnt = bgl, 54 // (len(bgl) + 1), 0
        for i in range(18):
            if not 10 <= i < 10 + o.get("nsq", 14) // 2: a(f"v_pk_mul_f32 {p(G_+2*i)}, {p(H+2*i)}, {p(H+2*i)}")
        for i in range(18): a(f"v_pk_fma_f32 {p(G_+2*i)}, {p(G_+2*i)}, {p(CC+2)}, {p(CC)} op_sel_hi:[1,0,0]")
        for i in range(18): a(f"v_pk_mul_f32 {p(G_+2*i)}, {p(G_+2*i)}, {p(H+2*i)}")
        a.flush()
        self.stamp("ge1")
        esp = o.get("esp", 4)
        for i in range(36):
            a(f"v_exp_f32 {vr(G_+i)}, {vr(G_+i)}")
            if i % esp == 1 and tg: a(tg.pop(0))
            if i % 8 == 3 and qrd: a(qrd.pop(0)); a(qrd.pop(0))
        self.stamp("ge2")
        for i in range(18): a(f"v_pk_add_f32 {p(G_+2*i)}, {p(G_+2*i)}, {p(CC+4)} op_sel_hi:[1,0]")
        for i in range(36):
            a(f"v_rcp_f32 {vr(G_+i)}, {vr(G_+i)}")
            if i % esp == 1 and tg: a(tg.pop(0))
            if i % 8 == 3 and qrd: a(qrd.pop(0)); a(qrd.pop(0))
        assert not tg and not qrd
        idx = [i for i, l in enumerate(a.lines) if l.strip().startswith("buffer_load") and l.rstrip().endswith("lds")]
        m_t0, m_t1 = idx[-18] + 1, idx[-9] + 1
        for i in range(18): a(f"v_pk_mul_f32 {p(H+2*i)}, {p(G_+2*i)}, {p(H+2*i)}")
        a(f"""s_mul_i32 {sr(T)}, {sr(WV+1)}, {BLK}
        s_cmp_eq_u32 {sr(S_H)}, 1
        s_cbranch_scc1 L_ln2
        s_add_u32 {sr(T)}, {sr(T)}, {WS_U}""")
        for i in range(18): a(f"v_cvt_pk_bf16_f32 {vr(UG+i)}, {vr(H+2*i)}, {vr(H+2*i+1)}")
        a("s_branch L_ug")
        a.label("L_ln2")
        a(f"s_add_u32 {sr(T)}, {sr(T)}, {WS_G}")
        self.ln_f32(H, UG, TM)
        a.label("L_ug")
        self.stamp("ge3")
        a(f"""s_cmp_eq_u32 {sr(WV)}, 1
        s_cselect_b32 {sr(S_UG)}, {sr(T)}, 0x40000000
        s_waitcnt vmcnt({self.vm_since(m_t0)}) lgkmcnt(0)""")
        for x in mrd + self.k_reads(0, V_V): a(x)
        self.ugs = [f"buffer_store_dwordx4 {vr(UG+4*s,4)}, {vr(V_DMA)}, {sr(S_WS,4)}, {sr(S_UG)} offen offset:{1024*s} sc1" for s in range(4)]
        self.ugs.append(f"buffer_store_dwordx2 {vr(UG+16,2)}, {vr(self.VL8)}, {sr(S_WS,4)}, {sr(S_UG)} offen sc1")
        a(f"v_lshlrev_b32 {vr(t1)}, 8, v0\nv_lshlrev_b32 v231, 2, v0\nv_add_u32 v231, {L_PC}, v231\nds_write_b32 v231, {vr(t1)}")
        a("s_waitcnt lgkmcnt(11)")
        self.loop_init(False)
        self.n_t1 = self.vm_since(m_t1)
        self.stamp("ug")

    def loop_init(self, part):
        a = self.a
        if part:
            for qb in range(4):
                for i in range(4): a(f"v_mov_b32 {vr(V_CI+4*qb+i)}, {vr(self.MK+qb)}")
            return
        for k in range(7): a(f"v_add_u32 {vr(V_HI+k)}, {2*SLOT}, {vr(V_KA+k if k < 5 else V_VB+k-5)}")
        a(f"v_add_u32 {vr(self.VS0)}, {sr(S_LB)}, {vr(V_DMA)}\nv_add_u32 {vr(self.VS0R)}, {sr(S_LB)}, {vr(self.VL8)}\ns_mov_b32 {sr(S_CNT)}, 0\ns_mov_b32 {sr(S_INC)}, {4*TILE}")
        for i in range(4): a(f"v_mov_b32 {vr(V_L+i)}, 0")
        a(f"v_mov_b32 v227, 0x3f803f80\nv_mov_b32 v226, {sr(S_N)}\nv_mov_b32 {vr(self.VPL+1)}, 1\nv_lshlrev_b32 v231, 2, v0\nv_add_u32 v231, {L_PC}, v231")

    def head(self):
        a, o = self.a, self.o
        a.label("L_go")
        self.loop_init(True)
        a("s_waitcnt lgkmcnt(0)\ns_barrier")
        self.stamp("bar5")
        base = self.qk_mfmas(0)
        pick = lambda s_, kb, qb: base[8 * s_ + 4 * kb + qb].replace(vr(V_K + 8 * s_ + 4 * kb, 4) + ",", vr(V_V + 8 * s_ + 4 * kb, 4) + ",").replace(vr(V_K + 32 + 2 * kb, 2) + ",", vr(V_V + 32 + 2 * kb, 2) + ",")
        mf, fin = [], {}
        for qb, s_ in [(0, 0), (0, 1), (0, 2), (0, 3), (1, 0), (1, 1), (0, 4), (1, 2), (1, 3), (2, 0), (2, 1), (1, 4), (2, 2), (2, 3), (3, 0), (3, 1), (2, 4),
                       (3, 2), (3, 3), (3, 4)]:
            for kb in range(2):
                fin[qb, kb] = len(mf)
                mf.append(("s_nop 3\n" if (qb, s_, kb) == (3, 4, 0) else "") + pick(s_, kb, qb))
        enew = [e[1] for g in range(40, 76) for e in self.gaps[g] if e[0] == "E"]
        items = self.e_items(0, enew, lambda qb, j: 0, lambda qb: 999)
        for it, e in zip(items, enew):
            if e[0] == "e": it["am"] = fin[e[1], e[2] // 4]
        dm = []
        for k, (slot, j) in enumerate([(2, 8)] + [(3, j) for j in range(9)]):
            g_ = 1 + o.get("hsp", 4) * k
            if j % 4 == 0: dm.append(dict(t=f"s_add_u32 m0, {sr(S_LB)}, {slot*SLOT + 4096*(j//4)}", c=0, lo=g_ - 1, hi=g_ - 1))
            dm.append(dict(t=f"buffer_load_dwordx4 {vr(V_DMA + j//4)}, {sr(S_XA,4)}, {sr(S_TOFF)} offen offset:{1024*(j%4)} lds", c=8, lo=g_, hi=g_))
            if j == 8: dm.append(dict(t=f"s_add_u32 {sr(S_TOFF)}, {sr(S_TOFF)}, {4*TILE}", c=0, lo=g_ + 1, hi=g_ + 1))
        nh = o.get("ugh", 2)
        for k in range(nh): dm.append(dict(t=self.ugs[k], c=8, lo=3 + 16 * k, hi=3 + 16 * k))
        a(f"s_waitcnt vmcnt({self.n_t1})")
        left = self.pack(mf, items + dm + [dict(t=x, c=4, lo=i // 2, nds=2) for i, x in enumerate(self.k_reads(1))])
        print("head overflow", self.over, "left", len(left))
        left.sort(key=lambda x: not x.startswith("v_exp"))
        last = a.lines[-1].strip()
        for x in left:
            if last.startswith("v_exp") and not x.startswith("v_exp") and (last.split()[1].rstrip(",") + ",") in (x + ","): a("s_nop 0")
            a(x); last = x
        a("s_waitcnt lgkmcnt(0)")

    def tile_groups(self, slot):
        out = []
        for j in range(9):
            g = ""
            if j % 4 == 0: g = f"s_add_u32 m0, {sr(S_LB)}, {slot*SLOT + 4096*(j//4)}\ns_nop 0\n"
            g += f"buffer_load_dwordx4 {vr(V_DMA + j//4)}, {sr(S_XA,4)}, {sr(S_TOFF)} offen offset:{1024*(j%4)} lds"
            if j == 8: g += f"\ns_add_u32 {sr(S_TOFF)}, {sr(S_TOFF)}, {4*TILE}"
            out.append(g)
        return out

    def first_tiles(self):
        pass

    def wfuse(self):
        a = self.a
        BF, ACC, AF, TM, AD = 88, 108, 144, 208, 240
        LA, LB_, LM = 0, 44032, 88064
        T = S_T
        a.label("L_wfuse")
        if self.o.get("hlast", 0): a(f"s_cmp_ge_u32 s2, {NWG}\ns_cbranch_scc1 L_end\ns_sub_u32 s2, s2, {NWG - NH}")
        a(f"v_lshrrev_b32 v1, 6, v0\nv_and_b32 v0, 63, v0\nv_readfirstlane_b32 {sr(S_W)}, v1\nv_lshlrev_b32 {vr(V_DMA)}, 4, v0\ns_waitcnt lgkmcnt(0)")
        self.srd(S_WS, 78, 79, WS_END)
        self.wf0 = 0
        self.srd(S_X, 72, 73, 82944)
        self.srd(S_W2, 62, 63, 41472)
        a(f"""s_cmp_eq_u32 s2, {self.wf0}
        s_cselect_b32 {sr(S_W1)}, s64, s70
        s_cselect_b32 {sr(S_W1+1)}, s65, s71
        s_mov_b32 {sr(S_W1+2)}, 41472
        s_mov_b32 {sr(S_W1+3)}, 0x20000
        s_cselect_b32 {sr(T+4)}, 0, 41472""")
        self.dma_rows([(S_W1, "0", LA), (S_W2, "0", LB_)], 19, 288, TM + 4, TM + 5, 11, 3, "L_wf1")
        a(f"s_lshl_b32 {sr(T)}, {sr(S_W)}, 10\ns_add_u32 {sr(T+2)}, {sr(T)}, {sr(T+4)}")
        for k in range(11):
            if k == 10: a(f"s_cmp_ge_u32 {sr(S_W)}, 1\ns_cbranch_scc1 L_wf2")
            a(f"s_add_u32 m0, {sr(T)}, {LM + 4096*k}\ns_add_u32 {sr(T+1)}, {sr(T+2)}, {4096*k}")
            a(f"buffer_load_dwordx4 {vr(V_DMA)}, {sr(S_X,4)}, {sr(T+1)} offen lds")
        a.label("L_wf2")
        self.srd(S_DW, 68, 69, 864)
        a(f"""v_and_b32 {vr(TM)}, 15, v0
        v_lshlrev_b32 {vr(TM+2)}, 4, {vr(TM)}
        v_lshlrev_b32 {vr(TM)}, 1, {vr(TM)}
        v_bfe_u32 {vr(TM+3)}, v0, 4, 1
        v_lshl_add_u32 {vr(TM+1)}, {vr(TM+3)}, 7, {vr(TM)}
        v_lshl_add_u32 {vr(TM+2)}, {vr(TM+3)}, 11, {vr(TM+2)}
        v_and_b32 {vr(TM+3)}, 1, v0
        v_lshlrev_b32 {vr(TM+3)}, 4, {vr(TM+3)}
        v_bfe_i32 {vr(TM+4)}, v0, 1, 1
        v_not_b32 {vr(TM+5)}, {vr(TM+4)}""")
        for k in range(3):
            for i in range(5): a(f"buffer_load_ushort {vr(16+5*k+i)}, {vr(TM+1 if i < 4 else TM)}, {sr(S_DW,4)}, 0 offen offset:{288*k + (32*i if i < 4 else 256)}")
        a(f"s_mov_b32 {sr(T+1)}, {WS_DWF}\ns_waitcnt vmcnt(0)")
        for f in range(15):
            a(f"v_lshlrev_b32 {vr(16+f)}, {vr(TM+3)}, {vr(16+f)}\nv_and_b32 {vr(32+2*f)}, {vr(TM+5)}, {vr(16+f)}\nv_and_b32 {vr(33+2*f)}, {vr(TM+4)}, {vr(16+f)}")
        for r_ in range(8): a(f"buffer_store_dwordx{4 if r_ < 7 else 2} {vr(32+4*r_, 4 if r_ < 7 else 2)}, {vr(TM+2)}, {sr(S_WS,4)}, {sr(T+1)} offen offset:{256*r_} sc1")
        self.tr_addr(AD, LM, False, TM + 8)
        self.row_addr(AD + 3, LA, TM + 8)
        a(f"v_add_u32 {vr(AD+5)}, {LB_}, {vr(AD+3)}")
        a(f"v_lshlrev_b32 {vr(AD+4)}, 3, v0")
        a(f"""s_lshr_b32 {sr(T)}, {sr(S_W)}, 1
        s_lshl_b32 {sr(T)}, {sr(T)}, 6
        s_and_b32 {sr(T+1)}, {sr(S_W)}, 1
        s_lshl_b32 {sr(T+1)}, {sr(T+1)}, 3
        s_add_u32 {sr(T)}, {sr(T)}, {sr(T+1)}
        v_and_b32 {vr(AD+6)}, 3, v0
        v_lshlrev_b32 {vr(AD+6)}, 3, {vr(AD+6)}
        v_add_u32 {vr(AD+7)}, {sr(T)}, {vr(AD+6)}""")
        for k in range(3): a(f"v_add_u32 {vr(AD+k)}, {vr(AD+7)}, {vr(AD+k)}")
        a(f"s_mov_b32 {sr(S_CNT)}, {sr(S_W)}")
        a("s_waitcnt vmcnt(0)\ns_barrier")
        a.label("L_wfl")
        for s in self.tr_reads(AD, vr)(0, BF): a(s)
        a("s_waitcnt lgkmcnt(0)")
        self.gemm([(self.row_reads(AD + 3), BF, ACC, None)])
        for i in range(18): a(f"v_cvt_pk_bf16_f32 {vr(BF+i)}, {vr(ACC+2*i)}, {vr(ACC+2*i+1)}")
        a(f"s_cmp_eq_u32 s2, {self.wf0}\ns_cbranch_scc0 L_wf3")
        self.gemm([(self.row_reads(AD + 5), BF, ACC, None)])
        for i in range(18): a(f"v_cvt_pk_bf16_f32 {vr(BF+i)}, {vr(ACC+2*i)}, {vr(ACC+2*i+1)}")
        a.label("L_wf3")
        a(f"""s_mul_i32 {sr(T)}, {sr(S_CNT)}, {BLK}
        s_add_u32 {sr(T)}, {sr(T)}, {sr(T+4)}
        s_add_u32 {sr(T)}, {sr(T)}, {WS_WF}
        s_add_u32 {sr(T+1)}, {sr(T)}, 4096""")
        self.store_block(BF, V_DMA, AD + 4, S_WS, T, T + 1, "sc1")
        for k in range(3): a(f"v_add_u32 {vr(AD+k)}, 128, {vr(AD+k)}")
        a(f"s_add_u32 {sr(S_CNT)}, {sr(S_CNT)}, 4\ns_cmp_lt_u32 {sr(S_CNT)}, 8\ns_cbranch_scc1 L_wfl")
        for k in range(3): a(f"v_sub_u32 {vr(AD+k)}, {vr(AD+k)}, {vr(AD+6)}")
        a(f"s_cmp_eq_u32 {sr(S_CNT)}, 8\ns_cbranch_scc1 L_wfl")
        a(f"""s_waitcnt vmcnt(0)
        s_barrier
        s_cmp_lg_u32 {sr(S_W)}, 0
        s_cbranch_scc1 L_end
        s_mov_b32 {sr(T+2)}, 0""")
        a.label("L_wtag")
        a(f"""buffer_load_dword {vr(TM)}, off, {sr(S_DB,4)}, 0 sc1
        s_add_u32 {sr(T+2)}, {sr(T+2)}, 1
        s_waitcnt vmcnt(0)
        v_readfirstlane_b32 {sr(T)}, {vr(TM)}
        s_cmp_lt_u32 {sr(T+2)}, 0x40000
        s_cselect_b32 {sr(T)}, {sr(T)}, 1
        s_cmp_eq_u32 {sr(T)}, 0
        s_cbranch_scc1 L_wtag
        v_lshlrev_b32 {vr(TM+1)}, 2, v0
        s_lshl_b32 {sr(T)}, s2, 8
        s_add_u32 {sr(T)}, {sr(T)}, {WS_F + 502*256}
        buffer_store_dword {vr(TM)}, {vr(TM+1)}, {sr(S_WS,4)}, {sr(T)} offen sc1
        s_endpgm""")

    def dump_stamps(self):
        a = self.a
        if self.o.get("census"):
            key, mode, m_, v_ = self.o["census"]
            a(f"""s_cmp_lg_u32 s2, 100
            s_cbranch_scc1 L_end
            v_lshlrev_b32 v16, 2, v0
            s_mov_b32 s4, {WS_DBG}""")
            for k in range(4): a(f"buffer_load_dword v{20+k}, v16, {sr(S_WS,4)}, s4 offen offset:{256*k} sc1")
            a(f"s_waitcnt vmcnt(0)\nv_readlane_b32 s8, v21, 36\ns_mov_b32 s9, 0x80000000\ns_mov_b32 s10, 0x7fffffff\ns_mov_b32 s11, 0\ns_mov_b32 s17, 0")
            for k in range(4):
                a(f"s_mov_b32 s5, 0")
                a.label(f"L_cs{k}")
                a(f"""v_readlane_b32 s6, v{20+k}, s5
                s_add_u32 s7, s5, {64*k}
                s_sub_u32 s6, s6, s8
                s_and_b32 s16, s7, {m_}
                s_cmp_lg_u32 s16, {v_}
                s_cbranch_scc1 L_cn{k}
                s_min_i32 s10, s10, s6
                s_cmp_gt_i32 s6, {self.o.get("thr", 150)}
                s_addc_u32 s17, s17, 0
                s_cmp_gt_i32 s6, s9
                s_cselect_b32 s9, s6, s9
                s_cselect_b32 s11, s7, s11""")
                a.label(f"L_cn{k}")
                a(f"s_add_u32 s5, s5, 1\ns_cmp_lt_u32 s5, {64 if k < 3 else 60}\ns_cbranch_scc1 L_cs{k}")
            a({"arg": "s_lshl_b32 s6, s11, 3", "range": "s_sub_u32 s6, s9, s10\ns_lshl_b32 s6, s6, 1", "zero": "s_mov_b32 s6, 0", "cnt": "s_lshl_b32 s6, s17, 4",
               "max": "s_lshl_b32 s6, s9, 1"}[mode])
            a("s_add_u32 s6, s6, 1000\ns_memrealtime s[4:5]\ns_waitcnt lgkmcnt(0)\ns_add_u32 s6, s6, s4")
            a.label("L_echo")
            a("s_memrealtime s[4:5]\ns_waitcnt lgkmcnt(0)\ns_sub_u32 s7, s6, s4\ns_cmp_gt_i32 s7, 0\ns_cbranch_scc1 L_echo")
            return
        if self.o.get("echo"):
            if self.o["echo"][0] == "skew":
                a(f"v_mov_b32 v16, 4\nbuffer_load_dword v17, v16, {sr(S_DB,4)}, 0 offen sc1\ns_waitcnt vmcnt(0)\nv_readfirstlane_b32 s98, v17\ns_not_b32 s98, s98")
                x, y = 98, S_ST + 2 * self.stnames.index(self.o["echo"][1])
            else:
                x, y = [S_ST + 2 * self.stnames.index(n) for n in self.o["echo"]]
            lo, hi = self.o.get("echo_ids", (0, 999))
            a(f"""s_cmp_eq_u32 {sr(S_VAL)}, 0
            s_cbranch_scc1 L_end
            s_cmp_lt_u32 s2, {lo}
            s_cbranch_scc1 L_end
            s_cmp_ge_u32 s2, {hi}
            s_cbranch_scc1 L_end
            s_and_b32 s6, s2, {self.o.get("echo_m", 0)}
            s_cmp_lg_u32 s6, {self.o.get("echo_v", 0)}
            s_cbranch_scc1 L_end
            s_memrealtime s[4:5]
            s_waitcnt lgkmcnt(0)
            s_sub_u32 s6, {sr(y)}, {sr(x)}
            s_mul_i32 s6, s6, {self.o.get("echo_mul", 1)}
            s_lshr_b32 s6, s6, {self.o.get("echo_shr", 0)}
            s_add_u32 s6, s6, {self.o.get("echo_add", 0)}
            s_add_u32 s6, s6, s4""")
            a.label("L_echo")
            a("s_memrealtime s[4:5]\ns_waitcnt lgkmcnt(0)\ns_sub_u32 s7, s6, s4\ns_cmp_gt_i32 s7, 0\ns_cbranch_scc1 L_echo")
            return
        if self.o.get("dbgst"):
            a("s_waitcnt vmcnt(0)")
            self.stamp("done")
            a("s_waitcnt lgkmcnt(0)\ns_mov_b64 exec, 1")
            slots = [1, 2, 3, 4, 5, 6, 7, 9, 11, 12, 13, 14, 15]
            a(f"s_not_b32 {sr(S_T)}, {sr(S_ST)}\nv_mov_b32 v16, {sr(S_T)}\nv_mov_b32 v17, 4\nbuffer_atomic_umax v16, v17, {sr(S_DB,4)}, 0 offen sc1")
            for i in range(min(self.nst, 12)):
                a(f"v_mov_b32 v{18+2*i}, {sr(S_ST+2*i)}\nv_mov_b32 v{19+2*i}, {4*slots[i+1]}\nbuffer_atomic_umax v{18+2*i}, v{19+2*i}, {sr(S_DB,4)}, 0 offen sc1")
            return
        if not self.o.get("stamps"): return
        T = S_T
        a(f"""s_waitcnt lgkmcnt(0)
        s_lshl_b32 {sr(T)}, s2, 2
        s_add_u32 {sr(T)}, {sr(T)}, {sr(S_W)}
        s_lshl_b32 {sr(T)}, {sr(T)}, 7
        s_add_u32 {sr(T)}, {sr(T)}, {WS_DBG}
        v_mov_b32 v1, 0""")
        for i in range(26): a(f"v_mov_b32 {vr(16+i)}, {sr(S_ST+i)}")
        for i in range(7): a(f"buffer_store_dwordx4 {vr(16+4*i,4)}, v1, {sr(S_WS,4)}, {sr(T)} offen offset:{16*i}")

    def build(self):
        a = self.a
        self.stnames = []
        a.raw(f"; @launch grid=({NWG},1,1) block=(256,1,1) lds={LDS_TOTAL}")
        a.raw('.amdgcn_target "amdgcn-amd-amdhsa--gfx950"')
        a.raw(".text")
        a.raw(f".globl {NAME}")
        a.raw(".p2align 12")
        self.entry()
        self.phase_a()
        self.rest()
        a.label("L_fin")
        self.dump_stamps()
        a.label("L_end")
        a("s_endpgm")
        self.poll2()
        if not self.o.get("touch", 1): self.rare()
        a.label("L_dummy")
        self.fallback()
        self.wfuse()
        a.raw('.section .rodata,"a"')
        a.raw(".p2align 6")
        a.raw(kernel_desc(NAME, 512, 102, 256))
        return a.text()

    def S(self, buf, qb, i=0): return V_S + buf * 32 + qb * 8 + i
    def P(self, buf, qb, i=0): return V_P + buf * 16 + qb * 4 + i

    def k_reads(self, slot, V_K=V_K):
        ka, so = (V_KA, slot * SLOT) if slot < 2 else (V_HI, (slot - 2) * SLOT)
        out = [f"ds_read_b128 {vr(V_K+8*s+4*kb,4)}, {vr(ka)} offset:{so + 2048*s + 256*kb}" for s in range(4) for kb in range(2)]
        out += [f"ds_read_b64 {vr(V_K+32+2*kb,2)}, {vr(ka+1)} offset:{so + 8192 + 512*kb}" for kb in range(2)]
        return out

    def v_reads(self, slot, dst=V_V):
        (va, vr_, vb), so = ((V_VA, V_VR, V_VB), slot * SLOT) if slot < 2 else ((V_HI + 2, V_HI + 4, V_HI + 5), (slot - 2) * SLOT)
        out = []
        for T in range(9):
            for u in range(2):
                if T < 8: out.append(f"ds_read_b64_tr_b16 {vr(dst+4*T+2*u,2)}, {vr((va if T < 4 else vb)+(T&1))} offset:{so + 2048*((T>>1)&1) + 256*u}")
                else: out.append(f"ds_read_b64_tr_b16 {vr(dst+4*T+2*u,2)}, {vr(vr_)} offset:{so + 8192 + 512*u}")
        return out

    def qk_mfmas(self, buf, czero=False):
        out = []
        for s in range(5):
            for kb in range(2):
                for qb in range(4):
                    d = vr(self.S(buf, qb, 4 * kb), 4)
                    c = ("0" if czero else vr(V_CI + 4 * qb, 4)) if s == 0 else d
                    if s < 4: out.append(f"v_mfma_f32_16x16x32_bf16 {d}, {vr(V_K+8*s+4*kb,4)}, {ar(A_Q+18*qb+4*s,4)}, {c}")
                    else: out.append(f"v_mfma_f32_16x16x16_bf16 {d}, {vr(V_K+32+2*kb,2)}, {ar(A_Q+18*qb+16,2)}, {c}")
        return out

    def pv_mfmas(self, buf, czero=False):
        out = []
        for T in range(9):
            for qb in range(4):
                o = ar(A_O + 36 * qb + 4 * T, 4)
                out.append(f"v_mfma_f32_16x16x32_bf16 {o}, {vr(V_V+4*T,4)}, {vr(self.P(buf,qb),4)}, {'0' if czero else o}")
        return out

    def plan(self):
        o = self.o
        n = 76
        fixed = [None] * n
        for i, g in enumerate(range(1, 36, 2)): fixed[g] = ("V", i)
        for i, g in enumerate([41, 44, 47, 50, 53, 56, 59, 62, 65, 68]): fixed[g] = ("K", i)
        for i, g in enumerate([42, 46, 49, 52, 55, 58, 61, 64, 67]): fixed[g] = ("D", i)
        exps = [(qb, j) for qb in range(4) for j in range(8)]
        start = 40
        order = [(start + k) % n for k in range(n)]
        free_idx = [k for k, g in enumerate(order) if fixed[g] is None]
        nsm = len(free_idx) - 32
        cand = free_idx[6:-2]
        sm_set = set(free_idx[-2:]) | {cand[int((i + 0.5) * len(cand) / (nsm - 2))] for i in range(nsm - 2)}
        nds = sum(1 for f in fixed if f is not None and f[0] != "D")
        ls = o.get("lsum", "add")
        over = max(0, (48 if ls == "add" else 32) - nds - 2 * nsm)
        ocand = [k for k, g in enumerate(order) if k >= 20 and (fixed[g] is None or fixed[g][0] != "D")]
        o_set = {ocand[int((i + 0.5) * len(ocand) / over)] for i in range(over)}
        later = []
        gaps = [[] for _ in range(n)]
        small, pend, ei = [], [], 0
        for k, g in enumerate(order):
            new = (start + k) < n
            small.extend(pend); pend = later; later = []
            small.sort(key=lambda t: 0 if t[0] == "c" else 1)
            f = fixed[g]
            want = 0
            if f is not None:
                gaps[g].append((f[0], f[1], None))
                if f[0] == "D": continue
                want = 1
            elif k in sm_set: want = 2
            else:
                qb, j = exps[ei]; ei += 1
                gaps[g].append(("E", ("e", qb, j), new))
                if j & 1: pend.append(("c", qb, j // 2))
                if ls == "add": pend.append(("a", qb, j))
                elif j & 1 and ls == "pk": pend.append(("p", qb, j // 2))
            if k in o_set: want += 1
            if k == n - 1: want = 99
            for _ in range(want):
                if small:
                    it = small.pop(0)
                    gaps[g].append(("E", it, new))
                    if it[0] == "c" and ls == "dot": (small if k == n - 1 else pend).append(("d", it[1], it[2]))
        assert not small and not pend and ei == 32
        self.gaps = gaps

    def pack(self, mf, items):
        a = self.a
        where, order, done, nvm, mpos = {}, [], 0, 0, []
        isds = lambda it: "ds_" in it["t"]
        self.over = 0
        for g, m in enumerate(mf):
            assert not any(it.get("need", 999) <= g and i not in where for i, it in enumerate(items)), g
            idx = [k for k, n_ in enumerate(order) if n_ <= g]
            if idx and max(idx) + 1 > done:
                a(f"s_waitcnt lgkmcnt({min(15, len(order) - 1 - max(idx))})"); done = max(idx) + 1
            if m.startswith("@W"):
                w_, m = m.split("\n", 1)
                a(f"s_waitcnt lgkmcnt({min(15, int(w_[2:]) + len(order))})")
            a(m)
            mpos.append(len(a.lines))
            cap, pick = 8, []
            for phase in (0, 1):
                for i, it in enumerate(items):
                    if i in where or it.get("lo", 0) > g: continue
                    if "am" in it and (it["am"] >= g or len(a.lines) - mpos[it["am"]] < 8): continue
                    d = it.get("dep")
                    if d is not None and not all(where.get(x, 999) < g for x in d): continue
                    if (phase == 0 and it.get("hi", 999) <= g) or (phase == 1 and it["c"] <= cap):
                        if it["t"].startswith("buffer") and pick and any(items[x]["c"] for x in pick) and phase == 1: continue
                        if isds(it) and sum(isds(items[x]) for x in pick) >= it.get("nds", 1) and phase == 1: continue
                        pick.append(i); where[i] = g; cap -= it["c"]
            key = lambda i: 0 if items[i]["c"] == 0 else 1 if isds(items[i]) else 2 if items[i]["t"].startswith("buffer") else 3
            for i in sorted(pick, key=key):
                a(items[i]["t"].replace("@VM", f"s_waitcnt vmcnt({nvm})"))
                nvm += items[i]["t"].startswith("buffer")
                if isds(items[i]): order.append(items[i].get("need", 999))
            self.over += max(0, -cap)
        return [it["t"] for i, it in enumerate(items) if i not in where]

    def e_items(self, buf, lst, lo, hi):
        items, idx = [], {}
        for it in lst:
            kind, qb, j = it
            d = dict(t=self.etext(buf, it), c=8 if kind == "e" else 4)
            if kind == "e": d["lo"] = lo(qb, j); d["hi"] = hi(qb) - 2 - (7 - j)
            else:
                need = [("e", qb, j)] if kind == "a" else [("c", qb, j)] if kind == "d" else [("e", qb, 2 * j), ("e", qb, 2 * j + 1)]
                d["dep"] = [idx[x] for x in need if x in idx]
                if kind == "c": d["hi"] = hi(qb) - (3 - j) // 2
            idx[it] = len(items); items.append(d)
        return items

    def etext(self, buf, it):
        kind, qb, j = it
        s = self.S(buf, qb)
        if kind == "e": return f"v_exp_f32 {vr(s+j)}, {vr(s+j)}"
        if kind == "d": return f"v_dot2_f32_bf16 {vr(V_L+qb)}, {vr(self.P(buf, qb, j))}, v227, {vr(V_L+qb)}"
        if kind == "p": return f"v_pk_add_f32 {vr(208+2*qb,2)}, {vr(208+2*qb,2)}, {vr(s+2*j,2)}"
        if kind == "a": return f"v_add_f32 {vr(V_L+qb)}, {vr(V_L+qb)}, {vr(s+j)}"
        return f"v_cvt_pk_bf16_f32 {vr(self.P(buf, qb, j))}, {vr(s+2*j)}, {vr(s+2*j+1)}"

    def period(self, p, qk=True, pv=True, e_old=True, e_new=True, kread=True, vread=True, dma=True, extra={}, dsub=None, ksub=None, vm=9, halves=(0, 1), inc=None):
        a = self.a
        bn, bo = (p + 1) & 1, p & 1
        qk_, pv_ = self.qk_mfmas(bn), self.pv_mfmas(bo, czero=(p == 0))
        qo, po = self.o.get("qkord", 1), self.o.get("pvord", 0)
        if qo == 1: qk_ = [qk_[8 * s_ + 4 * kb + qb] for kb in range(2) for qb in range(4) for s_ in range(4)] + qk_[32:]
        if qo == 2: qk_ = [qk_[8 * s_ + 4 * kb + qb] for qb in range(4) for kb in range(2) for s_ in range(4)] + qk_[32:]
        if qo == 3: qk_ = [qk_[8 * s_ + 4 * kb + qb] for qb in range(4) for s_ in range(4) for kb in range(2)] + qk_[32:]
        if po == 1: pv_ = [pv_[4 * T_ + qb] for qb in range(4) for T_ in range(9)]
        mf = qk_ + pv_
        kr, vrd = self.k_reads((p + 2) % RING), self.v_reads(p % RING)
        slot = p % RING
        n = 76
        sc = [[] for _ in range(n)]
        dgs = [g for g in range(n) if any(e[0] == "D" for e in self.gaps[g])]
        if dma:
            for j, g in enumerate(dgs):
                if j % 4 == 0: sc[g - 1].append(f"s_add_u32 m0, {sr(S_LB)}, {slot*SLOT + 4096*(j//4)}")
            sc[dgs[-1] + 1].append(f"s_add_u32 {sr(S_TOFF)}, {sr(S_TOFF)}, {inc or 4*TILE}")
        w = []
        if kread: w.append(f"vmcnt({vm})")
        if pv: w.append("lgkmcnt(0)")
        if w: sc[39].append("s_waitcnt " + " ".join(w))
        if kread: sc[75].append("s_waitcnt lgkmcnt(0)")
        for half in halves:
            rng = range(0, 40) if half == 0 else range(40, 76)
            on = qk if half == 0 else pv
            if not on:
                ds, mem, val, post = [], [], [], []
                for g in rng:
                    for s_ in sc[g]:
                        (post if s_.startswith("s_waitcnt") else mem).append(s_)
                    if g in extra: mem.append(extra[g])
                    for kind, d, new in self.gaps[g]:
                        if kind == "V" and vread: ds.append(vrd[d])
                        elif kind == "K" and kread: ds.append(kr[d])
                        elif kind == "D" and dma: mem.append(f"buffer_load_dwordx4 {vr(V_DMA + d//4)}, {sr(S_XA,4)}, {sr(S_TOFF)} offen offset:{1024*(d%4)} lds")
                        elif kind == "E" and ((new and e_new) or (not new and e_old)): val.append((d, self.etext(bn if new else bo, d)))
                if half == 1: a("s_nop 3")
                seq, pend = [], list(val)
                while pend:
                    k = 0
                    if seq and seq[-1][0][0] == "e":
                        le = seq[-1][0]
                        dep = lambda it: it[0][1] == le[1] and ((it[0][0] == "a" and it[0][2] == le[2]) or (it[0][0] == "c" and it[0][2] == le[2] // 2))
                        have = {x[0] for x in seq}
                        ok = lambda it: it[0][0] == "e" or (("e", it[0][1], it[0][2]) in have if it[0][0] == "a" else (("e", it[0][1], 2*it[0][2]+1) in have)) or not any(x[0][0] == "e" and x[0][1] == it[0][1] and (x[0][2] == it[0][2] if it[0][0] == "a" else x[0][2] // 2 == it[0][2]) for x in pend)
                        while k < len(pend) and (dep(pend[k]) or not ok(pend[k])): k += 1
                        if k == len(pend): seq.append((("n", 0, 0), "s_nop 0")); k = 0
                    seq.append(pend.pop(k))
                step = max(1, len(seq) // (len(mem) + len(ds) + 1))
                allm = ds + mem
                for x in allm[:6]: a(x)
                allm = allm[6:]
                for i_, (d, t_) in enumerate(seq):
                    a(t_)
                    if allm and i_ % step == step - 1:
                        x = allm.pop(0); a(x)
                        if x.startswith("s_add_u32 m0"): a("s_nop 0")
                for x in allm:
                    a(x)
                    if x.startswith("s_add_u32 m0"): a("s_nop 0")
                for x in post: a(x)
                if half == 0: a("s_nop 1")
                continue
            for g in rng:
                a(mf[g])
                for s_ in sc[g]: a(s_)
                if g in extra: a(extra[g])
                for kind, d, new in self.gaps[g]:
                    if kind == "V":
                        if vread: a(vrd[d])
                    elif kind == "K":
                        if kread: a(kr[d])
                        elif ksub: a(ksub.pop(0))
                    elif kind == "D":
                        if dma: a(f"buffer_load_dwordx4 {vr(V_DMA + d//4)}, {sr(S_XA,4)}, {sr(S_TOFF)} offen offset:{1024*(d%4)} lds")
                        elif dsub: a(dsub.pop(0))
                    elif (new and e_new) or (not new and e_old):
                        a(self.etext(bn if new else bo, d))

    MK, VO, VO8, GA, VS0, VS0R, VDW, VLW, VL8, VST, VPL = 232, 236, 9, 238, 250, 251, 244, 245, 246, 247, 248
    NB, PT, E_U, E_G, RS3, E_COL, RS1, RS2, MP1 = 3, 4, 5, 6, 7, 43, 36, 37, 38
    G0, GM, GP, U, DWT = 16, 26, 36, 80, (90, 252, 96, 100, 112, 116, 104, 94)
    XRS = (192, 196, 46)
    frag = staticmethod(lambda f, b: [(f, b + 4 * s) for s in range(5)])
    WD = [[("a", 216 + 4 * s) for s in range(5)], [("a", 234 + 4 * s) for s in range(5)], [("v", 208 + 4 * s) for s in range(5)]]
    WO = [[("a", 4 * s) for s in range(5)], [("a", 18 + 4 * s) for s in range(5)], [("a", 36), ("a", 40), ("a", 44), ("a", 48), ("a", 252)]]
    X1B = 98304
    X2O = L_SP - X1B
    L_L = L_SP + 9216

    def epi_setup(self):
        a = self.a
        T = S_T
        NB, PT, VO, GA = self.NB, self.PT, self.VO, self.GA
        r, g4, x, y, big, r0 = 52, 53, 54, 55, 56, 57
        a(f"""s_lshr_b32 {sr(NB)}, {sr(S_W)}, 1
        s_and_b32 {sr(PT)}, {sr(S_W)}, 1
        v_and_b32 {vr(r0)}, 15, v0
        v_lshrrev_b32 {vr(g4)}, 4, v0
        v_mul_u32_u24 {vr(x)}, 288, {vr(r0)}
        v_mov_b32 {vr(big)}, 0x40000000
        s_lshl_b32 {sr(T)}, {sr(S_TOWN)}, 1
        s_add_u32 {sr(T)}, {sr(T)}, {sr(NB)}
        s_lshl_b32 {sr(T)}, {sr(T)}, 4
        v_add_u32 {vr(r)}, {sr(T)}, {vr(r0)}
        s_mul_i32 {sr(T+1)}, {sr(S_TOWN)}, {TILE}
        s_mul_i32 {sr(T+2)}, {sr(PT)}, {BLK}
        v_add_u32 {vr(x)}, {sr(T+1)}, {vr(x)}
        s_sub_u32 {sr(T+3)}, {BLK}, {sr(T+2)}
        v_add_u32 {vr(y)}, {sr(T+3)}, {vr(x)}
        v_add_u32 {vr(x)}, {sr(T+2)}, {vr(x)}
        v_lshl_add_u32 {vr(VO)}, {vr(g4)}, 4, {vr(x)}
        v_lshl_add_u32 {vr(VO+1)}, {vr(g4)}, 4, {vr(y)}
        v_lshl_add_u32 {vr(self.VO8)}, {vr(g4)}, 3, {vr(x)}
        s_lshl_b32 {sr(T+3)}, {sr(PT)}, 11
        s_add_u32 {sr(self.E_U)}, {sr(T+3)}, {WS_U}
        s_add_u32 {sr(self.E_G)}, {sr(T+3)}, {WS_G}
        s_sub_u32 {sr(T+3)}, 4096, {sr(T+3)}
        s_lshl_b32 {sr(T)}, {sr(PT)}, 11
        s_add_u32 {sr(T)}, {sr(T)}, {WS_DWF}
        v_lshrrev_b32 {vr(x)}, 2, {vr(r0)}
        v_cmp_eq_u32 vcc, {vr(x)}, {vr(g4)}
        v_lshl_add_u32 {vr(self.VDW)}, {vr(r0)}, 4, {sr(T)}
        s_nop 0
        v_cndmask_b32 {vr(self.VDW)}, {vr(big)}, {vr(self.VDW)}, vcc
        s_lshl_b32 {sr(self.E_COL)}, {sr(S_W)}, 6
        v_lshlrev_b32 {vr(self.VL8)}, 3, v0
        v_add_u32 {vr(self.VL8)}, 4096, {vr(self.VL8)}
        v_add_u32 {vr(self.VST)}, {sr(S_LB)}, {vr(V_DMA)}
        v_add_u32 {vr(self.VST)}, {2*SLOT}, {vr(self.VST)}
        s_xor_b32 {sr(T)}, {sr(NB)}, 1
        v_xor_b32 {vr(x)}, {sr(T)}, {vr(g4)}
        v_lshl_add_u32 {vr(x)}, {vr(x)}, 4, {vr(r0)}
        s_lshl_b32 {sr(T)}, {sr(S_W)}, 2
        s_add_u32 {sr(T)}, {sr(T)}, {self.L_L}
        v_lshl_add_u32 {vr(self.VLW)}, {vr(x)}, 4, {sr(T)}
        s_sub_u32 {sr(self.MP1)}, 0, {sr(PT)}
        s_mov_b32 {sr(self.MP1+1)}, {sr(self.MP1)}""")
        for k, (d, base) in enumerate(((self.RS1, 3 * SLOT), (self.RS2, 2 * SLOT), (self.RS3, 2 * SLOT))):
            a(f"s_xor_b32 {sr(T)}, {sr(S_W)}, {k+1}\ns_mul_i32 {sr(T)}, {sr(T)}, {TILE}\ns_add_u32 {sr(d)}, {sr(T)}, {base}")
        a(f"""s_mul_i32 {sr(T)}, {sr(S_B)}, 4000
        s_add_u32 {sr(T+1)}, {sr(T)}, 3999
        s_mov_b32 {sr(T+2)}, {BLK}""")
        for k, dr in enumerate((0, -1, 1)):
            m = GA + 2 * k
            if dr: a(f"v_add_u32 {vr(m)}, {dr}, {vr(r)}\nv_cmp_eq_u32 vcc, {sr(T if dr < 0 else T+1)}, {vr(r)}")
            src = m if dr else r
            a(f"""v_lshrrev_b32 {vr(x)}, 4, {vr(src)}
            v_and_b32 {vr(y)}, 15, {vr(src)}
            v_mul_lo_u32 {vr(x)}, {vr(x)}, {sr(T+2)}
            v_lshl_add_u32 {vr(y)}, {vr(g4)}, 4, {vr(y)}
            v_lshl_add_u32 {vr(m)}, {vr(y)}, 4, {vr(x)}
            v_lshl_add_u32 {vr(m+1)}, {vr(y)}, 3, {vr(x)}
            v_add_u32 {vr(m+1)}, {sr(T+3)}, {vr(m+1)}""")
            if dr: a(f"v_cndmask_b32 {vr(m)}, {vr(m)}, {vr(big)}, vcc\nv_cndmask_b32 {vr(m+1)}, {vr(m+1)}, {vr(big)}, vcc")

    def conv_loads(self):
        GA = self.GA
        L = []
        for dst, m, so in ((self.GM, GA + 2, 1), (self.G0, GA, 1), (self.GP, GA + 4, 1), (self.U, GA, 0)):
            for k in range(2): L.append(f"buffer_load_dwordx4 {vr(dst+4*k,4)}, {vr(m)}, {sr(S_WS,4)}, {sr(self.E_U+so)} offen offset:{1024*k}")
            L.append(f"buffer_load_dwordx2 {vr(dst+8,2)}, {vr(m+1)}, {sr(S_WS,4)}, {sr(self.E_U+so)} offen")
        return L

    def rg(self, e, n): return (ar if e[0] == "a" else vr)(e[1], n)

    def w8_loads(self, regs, so):
        return [f"buffer_load_dwordx4 {self.rg(regs[s],4)}, {vr(V_DMA)}, {sr(S_WS,4)}, {sr(so)} offen offset:{1024*s}" for s in range(4)] + \
               [f"buffer_load_dwordx2 {self.rg(regs[4],2)}, {vr(self.VL8)}, {sr(S_WS,4)}, {sr(so)} offen"]

    def w_reads(self, regs, off):
        L = []
        for tt in range(2):
            L += [f"ds_read_b128 {self.rg(regs[tt][s],4)}, {vr(self.VS0)} offset:{off + BLK*tt + 1024*s}" for s in range(4)]
            L.append(f"ds_read_b64 {self.rg(regs[tt][4],2)}, {vr(self.VS0R)} offset:{off + BLK*tt}")
        return L

    def xa_srd(self):
        T = S_T
        return f"""s_mul_i32 {sr(T)}, {sr(S_B)}, {NT}
        s_mul_i32 {sr(T+1)}, {sr(S_H)}, 63
        s_add_u32 {sr(T+1)}, {sr(T+1)}, {sr(T)}
        s_mul_i32 {sr(T+1)}, {sr(T+1)}, {TILE}
        s_add_u32 {sr(S_XA)}, {sr(S_WS)}, {sr(T+1)}
        s_addc_u32 {sr(S_XA+1)}, {sr(S_WS+1)}, 0
        s_sub_u32 {sr(T+2)}, 63, {sr(S_H)}
        s_mul_i32 {sr(S_XA+2)}, {sr(T+2)}, {TILE}
        s_mov_b32 {sr(S_XA+3)}, 0x20000"""

    def rest(self):
        a, o = self.a, self.o
        T = S_T
        VPL = self.VPL
        self.plan()
        self.head()
        self.stamp("loop")
        if o.get("sktest") or o.get("echo") and o["echo"][0] == "skew":
            a(f"s_waitcnt lgkmcnt(0)\ns_mov_b64 exec, 1\ns_not_b32 s98, {sr(S_ST)}\nv_mov_b32 v226, s98\nv_mov_b32 v227, 4\ns_cmp_lg_u32 {sr(S_W)}, 0\ns_cbranch_scc1 L_sk\nbuffer_atomic_umax v226, v227, {sr(S_DB,4)}, 0 offen sc1\ns_waitcnt vmcnt(0)\nL_sk:\ns_mov_b64 exec, -1\ns_nop 3")
            self.stamp("sk")
        nh = o.get("ugh", 2)
        ex = {2 + 12 * k: x for k, x in enumerate(self.ugs[nh:])}
        self.period(0, vm=9 + 5, extra=ex)
        self.stamp("l0")
        a.raw(".p2align 6")
        a.label("L_loop")
        self.stamp("q1")
        for p in range(1, 5):
            ex = {}
            vm = 9
            if p == 1: ex = {73: f"s_cmp_eq_u32 {sr(S_CNT)}, 3"}
            if p == 2: ex = {70: f"buffer_load_dword v252, {vr(VPL)}, {sr(S_WS,4)}, 0 offen sc1"}
            if p == 3:
                ex = {73: f"s_cmp_eq_u32 {sr(S_CNT)}, 2", 45: f"ds_add_rtn_u32 v230, v231, {vr(VPL+1)}"}
            if p == 4:
                self.stamp("la0")
                a(f"s_cbranch_scc1 L_last")
                a.label("L_lastb")
                self.stamp("la1")
                ex = {72: f"s_add_u32 {sr(S_CNT)}, {sr(S_CNT)}, 1", 1: f"v_readfirstlane_b32 {sr(T)}, v230", 3: f"s_cmp_eq_u32 {sr(T)}, 3",
                      4: f"s_cselect_b32 {sr(T)}, {sr(S_FB)}, 2.0", 6: f"buffer_store_dword v226, v231, {sr(S_WS,4)}, {sr(T)} offen sc1"}
            for k_ in range(o.get("pad", 0)): ex[10 + 7 * k_] = ex.get(10 + 7 * k_, "s_nop 0") + "\ns_nop 7"
            self.period(p, extra=ex, inc=sr(S_INC) if p == 4 else None)
            if p == 1: a("s_cbranch_scc1 L_p14")
        a("s_branch L_loop")
        a.label("L_p14")
        SW = 66
        self.stamp("p14")
        a(f"s_cmp_eq_u32 {sr(S_DUM)}, 4\ns_cbranch_scc0 L_dummyb")
        for i in range(16): a(f"v_mov_b32 {vr(V_CI+i)}, 0xff800000")
        a("s_nop 1")
        a.label("L_dummyb")
        ex = dict(zip([2, 6, 8, 12, 14, 18, 20, 24, 26, 30], self.w_reads(self.WD, 0)))
        ex[0] = "s_waitcnt vmcnt(9)"
        ex.update(dict(zip([4, 10, 16, 22, 28], self.w8_loads(self.WD[2], SW))))
        self.period(14, dma=False, kread=False, extra=ex, halves=(0,))
        self.stamp("tail")
        self.tail(SW)
        self.stamp("end")
        self.epilogue(SW)

    def rare(self):
        a = self.a
        T = S_T
        SW = 66
        a.label("L_last")
        a(f"s_waitcnt vmcnt(9)\ns_mov_b32 {sr(T+2)}, 0")
        a.label("L_late")
        a(f"""v_cmp_ne_u32 vcc, {sr(S_N)}, v252
        s_add_u32 {sr(S_XA)}, {sr(S_WS)}, {WS_WF}
        s_addc_u32 {sr(S_XA+1)}, {sr(S_WS+1)}, 0
        s_mov_b32 {sr(S_XA+2)}, {18*BLK}
        s_add_u32 {sr(S_TOFF)}, {sr(S_LB)}, {9*BLK}
        s_mov_b32 {sr(S_INC)}, {-9*BLK}
        s_lshr_b32 {sr(SW)}, {sr(S_W)}, 1
        s_lshl_b32 {sr(SW)}, {sr(SW)}, 30
        s_add_u32 {sr(SW+1)}, {sr(SW)}, {WS_WF + 8*BLK}
        s_add_u32 {sr(SW)}, {sr(SW)}, {WS_WF + 17*BLK}
        s_and_b32 {sr(T)}, vcc_lo, 31
        s_cbranch_scc0 L_lastb
        buffer_load_dword v252, {vr(self.VPL)}, {sr(S_WS,4)}, 0 offen sc1
        s_add_u32 {sr(T+2)}, {sr(T+2)}, 1
        s_waitcnt vmcnt(0)
        s_cmp_lt_u32 {sr(T+2)}, 0x40000
        s_cbranch_scc1 L_late
        s_branch L_lastb""")

    units = [(0, 0), (0, 1), (1, 0), (1, 1), (2, 0)]
    V15 = V_K

    def stage(self, slot, T):
        src = ar(A_O + 36 * slot + 4 * T, 4)
        if slot == 0: return f"ds_write_b128 {vr(self.VST)}, {src} offset:{1024*T}"
        if slot == 2: return f"ds_write_b128 {vr(self.VS0)}, {src} offset:{1024*T}"
        if T < 4: return f"ds_write_b128 {vr(self.VST)}, {src} offset:{SLOT + 1024*T + (4096 if slot == 3 else 0)}"
        return f"{'s_not_b64' if slot == 1 else 's_mov_b64'} exec, {sr(self.MP1,2)}\nds_write_b128 {vr(self.VST)}, {src} offset:{SLOT + 8192}\ns_mov_b64 exec, -1"

    def dwf(self, k, i):
        f = 5 * k + i
        return self.DWT[f >> 1] + 2 * (f & 1)

    def tail(self, SW):
        a, o = self.a, self.o
        mf, pos, start = [], {}, {}
        for t_, qb in ((14, 0), (14, 1), (15, 0), (15, 1), (14, 2), (15, 2), (14, 3), (15, 3)):
            start[t_, qb] = len(mf)
            for Tt in ([0, 1, 2, 3, 8, 4, 5, 6, 7] if qb & 1 else range(9)):
                o_ = ar(A_O + 36 * qb + 4 * Tt, 4)
                pos[t_, qb, Tt] = len(mf)
                mf.append(f"v_mfma_f32_16x16x32_bf16 {o_}, {vr((V_V if t_ == 14 else self.V15)+4*Tt,4)}, {vr(self.P(t_ & 1,qb),4)}, {o_}")
        lst = []
        for qb in range(4):
            for j in range(8):
                lst.append(("e", qb, j))
                if j & 1: lst.append(("c", qb, j // 2))
        lst += [("a", qb, j) for qb in range(4) for j in range(8)]
        items = self.e_items(1, lst, lambda qb, j: 0 if j < 4 else 1, lambda qb: start[15, qb] - 2)
        for it in items[48:]: it["lo"] = o.get("alo", 26)
        v15 = [dict(t=x, c=4, need=pos[15, 0, i // 2], hi=pos[15, 0, i // 2] - o.get("vlead", 7), lo=0 if i < 16 else 2) for i, x in enumerate(self.v_reads(3, self.V15))]
        wr = []
        nown = o.get("nown", 4)
        self.own = [(2, T_) for T_ in range(nown, 9)] + [(3, T_) for T_ in (0, 1, 2, 3, 8)]
        g = o.get("w0", 23)
        for k, (sl, Tt) in enumerate([(0, T_) for T_ in range(9)] + [(1, T_) for T_ in (0, 1, 2, 3, 8)] + [(2, T_) for T_ in range(nown)]):
            g = max(pos[15, sl, Tt] + 5, g)
            wr.append(dict(t=self.stage(sl, Tt), c=o.get("wc", 20), lo=int(g), hi=int(g)) if g < 72 else dict(t=self.stage(sl, Tt), c=4, lo=999))
            g += o.get("wsp", 2.7)
        n0 = len(items) + len(v15)
        wo = []
        for i, x in enumerate(self.w_reads(self.WO, SLOT)):
            r0 = self.WO[i // 5][i % 5][1]
            wo.append(dict(t=("@VM\n" if i == 0 else "") + x, c=4, dep=sorted({n0 + r0 // 4, n0 + (r0 + 3) // 4 if (r0 + 3) // 4 < 9 else n0 + 8}), lo=o.get("wo0", 40) + 3 * i, hi=o.get("wo0", 40) + 3 * i + 2))
        cl = self.conv_loads()
        dl = [f"buffer_load_dwordx4 {vr(self.DWT[r],4)}, {vr(self.VDW)}, {sr(S_WS,4)}, 0 offen offset:{256*r}" for r in range(7)]
        dl.append(f"buffer_load_dwordx2 {vr(self.DWT[7],2)}, {vr(self.VDW)}, {sr(S_WS,4)}, 0 offen offset:{256*7}")
        fr = {96: 9, 100: 18, 104: 45, 112: 27, 116: 36}
        vm = [(x, 0) for x in cl] + [(x, fr.get(self.DWT[r], 0)) for r, x in enumerate(dl)]
        used = {w["lo"] for w in wr}
        vi, g = [], o.get("m0", 24)
        for x, lo in vm:
            g = max(g, lo)
            while int(g) in used: g += 1
            vi.append(dict(t=x, c=8, lo=int(g), hi=int(g)) if g < 72 else dict(t=x, c=8, lo=999))
            g += o.get("msp", 2.2)
        left = self.pack(mf, items + v15 + wr + wo + vi)
        self.done_a = {(qb, j) for qb in range(4) for j in range(8) if self.etext(1, ("a", qb, j)) not in left}
        left = [x for x in left if not x.startswith("v_add_f32")]
        print("tail overflow", self.over, "left", len(left), "adds done", len(self.done_a))
        self.left = left

    def epilogue(self, SW):
        a, o = self.a, self.o
        T = S_T
        p = lambda r: vr(r, 2)
        NB, PT, MK, VO, units, MP1 = self.NB, self.PT, self.MK, self.VO, self.units, self.MP1
        U, GM, G0, GP = self.U, self.GM, self.G0, self.GP
        X2O = self.X2O
        R1, R2, R3 = 230, 231, 249
        LA, LS, M = 10, 226, 48

        def weave(main, fill, per):
            fill = list(fill)
            for x in main:
                a(x)
                for _ in range(per):
                    if fill: a(fill.pop(0))
            return fill
        for x in self.left:
            if not x.startswith("buffer"): a(x)
        lv = [x for x in self.left if x.startswith("buffer")]
        lv += [f"buffer_load_dwordx4 {vr(self.XRS[j],4)}, {vr(VO+j)}, {sr(S_X,4)}, {sr(self.E_COL)} offen" for j in range(2)]
        lv.append(f"buffer_load_dwordx2 {vr(self.XRS[2],2)}, {vr(self.VO8)}, {sr(S_X,4)}, 0 offen offset:256")
        S1 = lambda qb, j: self.S(1, qb, j)
        rounds = [[] for _ in range(6)]
        for qb in range(4):
            rem = [j for j in range(8) if (qb, j) not in self.done_a]
            prs = [j for j in rem if j % 2 == 0 and j + 1 in rem]
            sing = [j for j in rem if (j & ~1) not in prs]
            r_ = 0
            while len(prs) > 1:
                for x, y in zip(prs[0::2], prs[1::2]): rounds[r_].append(f"v_pk_add_f32 {p(S1(qb,x))}, {p(S1(qb,x))}, {p(S1(qb,y))}")
                prs = prs[0::2]; r_ += 1
            for k_, j in enumerate(sing + ([prs[0], prs[0] + 1] if prs else [])): rounds[min(5, max(r_, 2) + k_)].append(f"v_add_f32 {vr(V_L+qb)}, {vr(V_L+qb)}, {vr(S1(qb,j))}")
        for r_ in rounds:
            for x in r_: a(x)
        a(f"v_add_u32 {vr(R1)}, {sr(self.RS1)}, {vr(V_DMA)}\nv_add_u32 {vr(R2)}, {sr(self.RS2)}, {vr(V_DMA)}")
        self.treduce(V_L)
        a(f"ds_write_b32 {vr(self.VLW)}, {vr(V_L)}")
        acc = lambda slot: [f"v_accvgpr_read_b32 {vr(M+i)}, {ar(A_O+36*slot+16+i)}" for i in range(20)]
        a(f"""v_add_u32 {vr(R3)}, {sr(self.RS3)}, {vr(V_DMA)}
        v_add_u32 {vr(LA+1)}, {self.L_L}, {vr(V_DMA)}
        v_and_b32 {vr(LS+1)}, 0xf0, {vr(V_DMA)}
        s_lshl_b32 {sr(T)}, {sr(NB)}, 8
        s_add_u32 {sr(T+8)}, {sr(T)}, {self.L_L}
        v_add_u32 {vr(LS)}, {sr(T+8)}, {vr(LS+1)}""")
        for x in lv: a(x)
        a(f"""s_xor_b32 {sr(T)}, s2, 1
        s_mul_i32 {sr(T)}, {sr(T)}, {IB}
        s_mul_i32 {sr(T+9)}, {sr(NB)}, 5120
        s_add_u32 {sr(T+9)}, {sr(T+9)}, {WS_IB}
        s_add_u32 {sr(T)}, {sr(T)}, {sr(T+9)}
        s_lshl_b32 {sr(T+10)}, {sr(PT)}, 11
        s_add_u32 {sr(T+1)}, {sr(T+10)}, {sr(T)}
        s_add_u32 {sr(T)}, {sr(T)}, 4096
        s_cmp_eq_u32 {sr(PT)}, 0
        s_cselect_b32 {sr(T)}, 0x40000000, {sr(T)}
        s_mov_b32 {sr(T+2)}, {f32(2.0**100)}
        s_mul_i32 {sr(T+12)}, s2, {IB}
        s_add_u32 {sr(T+12)}, {sr(T+12)}, {sr(T+9)}
        s_add_u32 {sr(T+13)}, {sr(T+12)}, {sr(T+10)}
        s_waitcnt lgkmcnt(0)
        s_barrier""")
        self.stamp("B1")

        def rd(X, offs):
            L = [[f"ds_read_b128 {vr(X[k][i],4)}, {vr((R1, R2, R3)[k])} offset:{offs[k] + 1024*i}" for i in range(4)] for k in range(3)]
            L8 = [f"ds_read_b128 {vr(X[k][4],4)}, {vr((R1, R2, R3)[k])} offset:8192" for k in range(3)]
            return L, L8

        def adds(X, k, rng):
            return [f"v_pk_add_f32 {p(M+4*i+2*h)}, {p(M+4*i+2*h)}, {p(X[k][i]+2*h)}" for i in rng for h in range(2)]
        X = [[128, 132, 136, 140, 144], [148, 152, 156, 160, 68], [72, 76, 200, 204, 108]]
        PK = 128
        L, L8 = rd(X, (0, 4096, 0))
        a(f"ds_read_b128 {vr(LA,4)}, {vr(LA+1)}\nds_read_b128 {vr(LS,4)}, {vr(LS)}")
        rest = weave(L[0] + L[1] + L[2], acc(1), 2)
        assert not rest
        a(f"s_mov_b64 exec, {sr(MP1,2)}")
        for x in L8: a(x)
        a(f"""s_mov_b64 exec, -1
        s_waitcnt lgkmcnt(11)
        v_add_f32 {vr(LA)}, {vr(LA)}, {vr(LA+1)}
        v_add_f32 {vr(LA+2)}, {vr(LA+2)}, {vr(LA+3)}
        v_add_f32 {vr(LS)}, {vr(LS)}, {vr(LS+1)}
        v_add_f32 {vr(LA)}, {vr(LA)}, {vr(LA+2)}
        v_add_f32 {vr(LS+2)}, {vr(LS+2)}, {vr(LS+3)}
        v_cmp_nge_f32 vcc, {sr(T+2)}, {vr(LA)}""")
        for x in adds(X, 0, range(4)): a(x)
        a(f"""s_cmp_lg_u64 vcc, 0
        s_cselect_b32 {sr(T+2)}, 1, 0
        s_andn2_b32 {sr(T+2)}, {sr(T+2)}, {sr(S_REDO)}
        s_cbranch_scc1 L_fallback
        v_add_f32 {vr(PK+10)}, {vr(LS)}, {vr(LS+2)}
        v_mov_b32 {vr(PK+11)}, {vr(MK+1)}
        s_waitcnt lgkmcnt(7)""")
        for x in adds(X, 1, range(4)): a(x)
        a("s_waitcnt lgkmcnt(3)")
        a3 = adds(X, 2, range(4))
        cv = [f"v_cvt_pk_bf16_f32 {vr(PK+i)}, {vr(M+2*i)}, {vr(M+2*i+1)}" for i in range(10)]
        for x in a3[:4] + a3[4:6] + cv[:4]: a(x)
        a(f"buffer_store_dwordx4 {vr(PK,4)}, {vr(V_DMA)}, {sr(S_WS,4)}, {sr(T+1)} offen sc1")
        for x in a3[6:] + cv[4:8]: a(x)
        a(f"buffer_store_dwordx4 {vr(PK+4,4)}, {vr(V_DMA)}, {sr(S_WS,4)}, {sr(T+1)} offen offset:1024 sc1")
        a("s_waitcnt lgkmcnt(0)")
        for kk in range(3):
            for x in adds(X, kk, [4]): a(x)
        for x in cv[8:]: a(x)
        a(f"buffer_store_dwordx4 {vr(PK+8,4)}, {vr(V_DMA)}, {sr(S_WS,4)}, {sr(T)} offen sc1")
        self.stamp("sent")
        a(f"s_cmp_eq_u32 {sr(S_VAL)}, 0\ns_cbranch_scc1 L_fin")
        C, UP = 140, 68
        IN = [(200, 204, 226), (164, 168, 252), (192, 196, 172)]
        VXW, VXR, VF, LO = 78, 79, 10, 36
        wr = [self.stage(*e) for e in self.own]

        def inbox(k):
            return [f"buffer_load_dwordx4 {vr(IN[k][0],4)}, {vr(V_DMA)}, {sr(S_WS,4)}, {sr(T+13)} offen sc1",
                    f"buffer_load_dwordx4 {vr(IN[k][1],4)}, {vr(V_DMA)}, {sr(S_WS,4)}, {sr(T+13)} offen offset:1024 sc1",
                    f"buffer_load_dwordx4 {vr(IN[k][2],4)}, {vr(V_DMA+1)}, {sr(S_WS,4)}, {sr(T+12)} offen sc1"]
        for x in inbox(0): a(x)
        n0 = len(a.lines)
        a(f"""s_lshl_b32 {sr(T)}, {sr(NB)}, 12
        s_add_u32 {sr(T)}, {sr(T)}, {sr(T+10)}
        s_add_u32 {sr(T)}, {sr(T)}, {self.X1B}
        v_add_u32 {vr(VXW)}, {sr(T)}, {vr(V_DMA)}
        s_lshl_b32 {sr(T)}, {sr(NB)}, 9
        s_add_u32 {sr(T)}, {sr(T)}, {self.X1B + 4096}
        v_add_u32 {vr(VXR)}, {sr(T)}, {vr(self.VL8)}
        s_lshl_b32 {sr(T)}, {sr(PT)}, 12
        s_add_u32 {sr(T)}, {sr(T)}, {self.X1B}
        v_add_u32 {vr(VF)}, {sr(T)}, {vr(V_DMA)}
        v_xor_b32 {vr(VF+1)}, 4096, {vr(VF)}
        s_lshl_b32 {sr(T)}, {sr(PT)}, 9
        s_add_u32 {sr(T)}, {sr(T)}, {self.X1B + 4096}
        v_add_u32 {vr(VF+2)}, {sr(T)}, {vr(self.VL8)}
        v_xor_b32 {vr(VF+3)}, 512, {vr(VF+2)}
        v_subrev_u32 {vr(R2)}, {2*SLOT}, {vr(R2)}
        v_subrev_u32 {vr(R3)}, {2*SLOT}, {vr(R3)}
        s_waitcnt vmcnt(9)""")
        self.stamp("cv0")
        un = [f"v_lshlrev_b32 {vr(M+2*i)}, 16, {vr(U+i)}\nv_and_b32 {vr(M+1+2*i)}, 0xffff0000, {vr(U+i)}" for i in range(10)]
        w8 = self.w8_loads(self.WO[2], SW + 1)
        for k, src in enumerate((GM, G0, GP)):
            for i in range(5):
                d = vr(C + 4 * i, 4)
                a(f"v_mfma_f32_16x16x16_bf16 {d}, {vr(self.dwf(k, i),2)}, {vr(src+2*i,2)}, {'0' if k == 0 else d}")
                a(w8.pop(0) if i in (0, 3) and w8 else un.pop(0))
        self.stamp("cv1")
        a(f"v_and_b32 {vr(LO+1)}, 0xf0, {vr(V_DMA)}\nv_add_u32 {vr(LO)}, {sr(T+8)}, {vr(LO+1)}\ns_nop 1")
        for i in range(10): a(f"v_pk_mul_f32 {p(C+2*i)}, {p(C+2*i)}, {p(M+2*i)}")
        for i in range(10):
            a(f"v_cvt_pk_bf16_f32 {vr(UP+i)}, {vr(C+2*i)}, {vr(C+2*i+1)}")
        body = a.lines[n0:]; del a.lines[n0:]
        step = max(1, len(body) // len(wr))
        for i, l in enumerate(body):
            if i % o.get("wstep", step) == 0 and wr: a(wr.pop(0))
            a.lines.append(l)
        for x in wr: a(x)
        ac = acc(3)
        a(f"ds_write_b128 {vr(VXW)}, {vr(UP,4)} offset:{X2O}")
        for x in ac[:6]: a(x)
        a(f"ds_write_b128 {vr(VXW)}, {vr(UP+4,4)} offset:{X2O + 1024}")
        for x in ac[6:12]: a(x)
        a(f"""s_mov_b64 exec, {sr(MP1,2)}
        ds_write_b64 {vr(VXR)}, {vr(UP+8,2)} offset:{X2O}
        s_mov_b64 exec, -1""")
        self.stamp("x2")
        for x in inbox(1): a(x)
        for x in ac[12:]: a(x)
        a("s_waitcnt lgkmcnt(0)\ns_barrier")
        self.stamp("B2")
        X = [[128, 132, 136, 140, 144], [148, 152, 156, 160, 188], [16, 20, 24, 28, 32]]
        L, L8 = rd(X, (4096, 4096, 0))
        BU = [[("v", r) for r in (100, 104, 108, 112, 116)], [("v", r) for r in (118, 122, 180, 184, 126)]]
        BO = [self.frag("v", 128), self.frag("v", 146)]
        AB = 80

        def bfrags(dst, off):
            out = []
            for s in range(5):
                for j in range(2):
                    out.append(f"ds_read_b128 {self.rg(dst[j][s],4)}, {vr(VF+j)} offset:{off + 1024*s}" if s < 4 else f"ds_read_b64 {self.rg(dst[j][4],2)}, {vr(VF+2+j)} offset:{off}")
            return out

        def fg(W, Bf):
            out = []
            for s in range(5):
                for u, (tt, j) in enumerate(units):
                    d = vr(AB + 4 * u, 4)
                    if s < 4: out.append(f"v_mfma_f32_16x16x32_bf16 {d}, {self.rg(W[tt][s],4)}, {self.rg(Bf[j][s],4)}, {d}")
                    else: out.append(f"v_mfma_f32_16x16x16_bf16 {d}, {self.rg(W[tt][4],2)}, {self.rg(Bf[j][4],2)}, {d}")
            return out
        xu = []
        for u, (tt, j) in enumerate(units):
            for h in range(2):
                x = self.XRS[j] + 2 * tt + h if tt < 2 else self.XRS[2] + h
                xu += [f"v_lshlrev_b32 {vr(AB+4*u+2*h)}, 16, {vr(x)}", f"v_and_b32 {vr(AB+1+4*u+2*h)}, 0xffff0000, {vr(x)}"]
        a("s_waitcnt vmcnt(14)")
        weave(bfrags(BU, X2O), xu, 2)
        pl = lambda k, i, e: f"v_add_f32 {vr(M+4*i+e)}, {vr(M+4*i+e)}, {vr(X[k][i]+e)}"
        ds = L[0] + L[1] + L[2] + [f"s_not_b64 exec, {sr(MP1,2)}\n" + "\n".join(L8) + "\ns_mov_b64 exec, -1", f"ds_read_b128 {vr(LO,4)}, {vr(LO)} offset:512"]
        nis = [1] * 12 + [3, 1]
        gap = [[] for _ in range(25)]
        tot = [10]
        for g in range(25): tot.append(tot[-1] + (nis[g] if g < 14 else 0))
        A0 = [pl(0, i, e) for i in range(4) for e in range(4)]
        A1 = [pl(1, i, e) for i in range(4) for e in range(4)]
        ib = inbox(2)
        for g, m in enumerate(fg(self.WD, BU)):
            if g % 5 == 0: a(f"s_waitcnt lgkmcnt({min(15, tot[g] - 2 * (g // 5 + 1))})")
            a(m)
            if g == 8: a(f"s_waitcnt lgkmcnt({tot[g] - 14})")
            if g == 16: a(f"s_waitcnt lgkmcnt({tot[g] - 18})")
            if g < 14: a(ds[g])
            if 8 <= g < 14: a(A0.pop(0))
            elif g in (14, 18, 22): a(ib.pop(0))
            elif g >= 14:
                for _ in range(2): a(A0.pop(0) if A0 else A1.pop(0))
        assert not A0 and len(A1) % 2 == 0
        n1 = 16 - len(A1)
        for e in range(n1, 16, 2): a(f"v_pk_add_f32 {p(M+e)}, {p(M+e)}, {p(X[1][e//4]+e%4)}")
        a("s_waitcnt lgkmcnt(0)")
        for x in adds(X, 2, range(4)): a(x)
        a(f"v_add_f32 {vr(LO)}, {vr(LO)}, {vr(LO+1)}\nv_add_f32 {vr(LO+2)}, {vr(LO+2)}, {vr(LO+3)}")
        for kk in range(3):
            for x in adds(X, kk, [4]): a(x)
        a(f"s_mov_b32 {sr(T+2)}, 0\nv_add_f32 {vr(LO)}, {vr(LO)}, {vr(LO+2)}")
        self.stamp("own")
        w, PU = 40, 128
        mo = MK + 3

        def chk(k):
            r = [IN[k][q] + i for q in range(3) for i in range(4)]
            c = [f"v_max3_u32 v46, {vr(r[0])}, {vr(r[1])}, {vr(r[2])}", f"v_max3_u32 v47, {vr(r[3])}, {vr(r[4])}, {vr(r[5])}"]
            for q in range(3): c.append(f"v_max3_u32 v{46+(q&1)}, v{46+(q&1)}, {vr(r[6+2*q])}, {vr(r[7+2*q])}")
            return c + ["v_max_u32 v46, v46, v47", "v_cmp_eq_u32 vcc, -1, v46"]

        def take(k, with_chk):
            r = [IN[k][q] + i for q in range(3) for i in range(4)]
            lp_, mp = r[10], r[11]
            wt = [f"v_min_f32 {vr(w)}, {vr(mo)}, {vr(mp)}", f"v_sub_f32 {vr(w+2)}, {vr(w)}, {vr(mp)}", f"v_sub_f32 {vr(w)}, {vr(w)}, {vr(mo)}",
                  f"v_exp_f32 {vr(w+2)}, {vr(w+2)}", f"v_exp_f32 {vr(w)}, {vr(w)}", f"v_mul_f32 {vr(w+4)}, {vr(w+2)}, {vr(lp_)}",
                  f"v_fmac_f32 {vr(w+4)}, {vr(w)}, {vr(LO)}", f"v_rcp_f32 {vr(w+4)}, {vr(w+4)}", f"v_mul_f32 {vr(w)}, {vr(w)}, {vr(w+4)}",
                  f"v_mul_f32 {vr(w+2)}, {vr(w+2)}, {vr(w+4)}"]
            un = []
            for i in range(10): un += [f"v_lshlrev_b32 {vr(PU+2*i)}, 16, {vr(r[i])}", f"v_and_b32 {vr(PU+1+2*i)}, 0xffff0000, {vr(r[i])}"]
            c = chk(k) if with_chk else []
            for i in range(10):
                a(wt[i])
                if c: a(c.pop(0))
                a(un.pop(0)); a(un.pop(0))
        a("s_waitcnt vmcnt(6)")
        take(0, True)
        a("s_cmp_eq_u64 vcc, 0\ns_cbranch_scc0 L_poll2")
        a.label("L_got")
        self.stamp("got")
        for i in range(10): a(f"v_pk_mul_f32 {p(M+2*i)}, {p(M+2*i)}, {p(w)} op_sel_hi:[1,0]")
        for i in range(10): a(f"v_pk_fma_f32 {p(M+2*i)}, {p(PU+2*i)}, {p(w+2)}, {p(M+2*i)} op_sel_hi:[1,0,1]")
        for i in range(10):
            a(f"v_cvt_pk_bf16_f32 {vr(UP+i)}, {vr(M+2*i)}, {vr(M+2*i+1)}")
            if i == 3: a(f"ds_write_b128 {vr(VXW)}, {vr(UP,4)}")
            if i == 7: a(f"ds_write_b128 {vr(VXW)}, {vr(UP+4,4)} offset:1024")
        a(f"""s_not_b64 exec, {sr(MP1,2)}
        ds_write_b64 {vr(VXR)}, {vr(UP+8,2)}
        s_mov_b64 exec, -1
        s_waitcnt lgkmcnt(0)
        s_barrier""")
        self.stamp("B3")
        for x in bfrags(BO, 0): a(x)
        for g, m in enumerate(fg(self.WO, BO)):
            if g % 5 == 0: a(f"s_waitcnt lgkmcnt({8 - 2 * (g // 5)})" + ("\ns_nop 0" if g == 20 else ""))
            a(m)
        self.stamp("gem")
        a("s_nop 3")
        for j in range(2):
            for tt in range(2):
                u = 2 * tt + j
                for h in range(2): a(f"v_cvt_pk_bf16_f32 {vr(16+4*j+2*tt+h)}, {vr(AB+4*u+2*h)}, {vr(AB+4*u+2*h+1)}")
            a(f"buffer_store_dwordx4 {vr(16+4*j,4)}, {vr(VO+j)}, {sr(S_OUT,4)}, {sr(self.E_COL)} offen {o.get('ofl', '')}")
        a(f"s_cmp_ge_u32 {sr(S_W)}, 2\ns_cbranch_scc1 L_fin")
        for h in range(2): a(f"v_cvt_pk_bf16_f32 {vr(24+h)}, {vr(AB+16+2*h)}, {vr(AB+16+2*h+1)}")
        a(f"buffer_store_dwordx2 v[24:25], {vr(self.VO8)}, {sr(S_OUT,4)}, 0 offen offset:256 {o.get('ofl', '')}")
        self.stamp("fin")

        def poll2():
            a.label("L_poll2")
            for k in (1, 2, 0):
                for x in inbox((k + 2) % 3): a(x)
                a("s_waitcnt vmcnt(6)")
                for x in chk(k): a(x)
                a(f"s_add_u32 {sr(T+2)}, {sr(T+2)}, 1\ns_cmp_eq_u64 vcc, 0\ns_cbranch_scc1 L_take{k}")
            a(f"s_cmp_lt_u32 {sr(T+2)}, 0x10000\ns_cbranch_scc1 L_poll2")
            for k in (0, 1, 2):
                a.label(f"L_take{k}")
                take(k, False)
                a("s_branch L_got")
        self.poll2 = poll2

    def fallback(self):
        a = self.a
        T = S_T
        MXR = 208
        a.label("L_fallback")
        a(f"""s_waitcnt vmcnt(0) lgkmcnt(0)
        s_barrier
        s_mov_b32 {sr(S_REDO)}, 1
        s_mov_b32 {sr(S_UG)}, 0x40000000
        {self.xa_srd()}
        s_mov_b32 {sr(S_TOFF)}, {sr(S_LB)}
        s_cmp_eq_u32 {sr(S_DUM)}, 4
        s_cselect_b32 {sr(S_CNT)}, 15, 16""")
        for i in range(4): a(f"v_mov_b32 {vr(MXR+i)}, 0xff800000")
        a.label("L_fb1")
        for g in self.tile_groups(0): a(g)
        a("s_waitcnt vmcnt(0)")
        for x in self.k_reads(0): a(x)
        a("s_waitcnt lgkmcnt(0)")
        for m in self.qk_mfmas(0, czero=True): a(m)
        a("s_nop 7")
        for qb in range(4):
            for i in range(0, 8, 2): a(f"v_max3_f32 {vr(MXR+qb)}, {vr(MXR+qb)}, {vr(self.S(0,qb,i))}, {vr(self.S(0,qb,i+1))}")
        a(f"s_sub_u32 {sr(S_CNT)}, {sr(S_CNT)}, 1\ns_cmp_lg_u32 {sr(S_CNT)}, 0\ns_cbranch_scc1 L_fb1")
        self.greduce([MXR + i for i in range(4)], MXR + 4, "v_max_f32")
        a(f"""v_and_b32 {vr(MXR+4)}, 15, v0
        v_lshlrev_b32 {vr(MXR+4)}, 4, {vr(MXR+4)}
        v_add_u32 {vr(MXR+4)}, {L_SP}, {vr(MXR+4)}
        s_lshl_b32 {sr(T)}, {sr(S_W)}, 2
        s_xor_b32 {sr(T+1)}, {sr(self.NB)}, 1
        v_lshl_add_u32 {vr(MXR+5)}, {sr(self.NB)}, 8, {vr(MXR+4)}
        v_lshl_add_u32 {vr(MXR+4)}, {sr(T+1)}, 8, {vr(MXR+4)}
        v_add_u32 {vr(MXR+6)}, {sr(T)}, {vr(MXR+4)}
        v_add_u32 {vr(MXR+7)}, {sr(T)}, {vr(MXR+5)}""")
        for qb in range(4): a(f"ds_write_b32 {vr(MXR+6+(qb&1))}, {vr(MXR+qb)} offset:{512*(qb>>1)}")
        a("s_waitcnt lgkmcnt(0)\ns_barrier")
        for qb in range(4): a(f"ds_read_b128 {vr(16+4*qb,4)}, {vr(MXR+4+(qb&1))} offset:{512*(qb>>1)}")
        a(f"s_mov_b32 {sr(S_TOFF)}, {sr(S_LB)}")
        for g in self.tile_groups(0) + self.tile_groups(1) + self.tile_groups(2)[:8]: a(g)
        a("s_waitcnt lgkmcnt(0)")
        for qb in range(4):
            r = 16 + 4 * qb
            a(f"v_max_f32 {vr(r)}, {vr(r)}, {vr(r+1)}\nv_max3_f32 {vr(r)}, {vr(r)}, {vr(r+2)}, {vr(r+3)}")
            a(f"v_sub_f32 {vr(self.MK+qb)}, 0, {vr(r)}")
        a("s_waitcnt vmcnt(0)")
        for x in self.k_reads(0, V_V): a(x)
        self.loop_init(False)
        a("s_branch L_go")


if __name__ == "__main__":
    opt = json.loads(sys.argv[2]) if len(sys.argv) > 2 else {}
    g = G(opt)
    txt = g.build()
    if opt.get("align", 1):
        from align import align
        for n2 in (1, 2):
            try:
                txt, st = align(txt, chains=[(1, "L_tr")] * 3 + [(1, "L_tr2"), (n2, "L_tr2")] if opt.get("touch", 1) else None)
                break
            except AssertionError as e:
                if n2 == 2: raise
        print("align: promoted %d, padded %d, left %d" % st)
    txt = txt.replace("\n", "\n; stamps " + json.dumps(g.stnames) + "\n; map %d\n" % g.mp, 1)
    open(sys.argv[1], "w").write(txt)
```

```python
import sys, json, math
from common import Asm, vr, ar, sr, kernel_header, kernel_desc
from lay import *

NAME = "standalone__conformer_family_branchformer__speech_kernel"
NH = 2
NWG = 252 + NH
CHAINS = (3, 3)
RING = 4
LDS_RING = RING * TILE
LDS_TOTAL = 163840
SLOT = 4 * TILE
L_WU, L_WQ, L_WK = 0, 41472, 82944
L_XX, L_XR = 126976, 143360
L_QD = 18432
L_XS = L_XX + L_QD
L_MX = 81920
L_PC = LDS_TOTAL - 256
L_DUMP = 123904
L_SP = 147456

S_X, S_WS, S_XA, S_DB, S_W1, S_W2, S_OUT, S_DW = 8, 12, 16, 20, 24, 28, 32, 36
S_W, S_B, S_H, S_QB, S_TOFF, S_CNT, S_DUM, S_LB, S_TOWN, S_TSND, S_VAL, S_REDO = range(40, 52)
S_UG = 25
S_N, S_FB = 98, 99
S_INC = 24
S_T = 52
S_ST = 76

V_KA, V_VA, V_VR, V_DMA, V_L, V_VB = 1, 3, 5, 6, 10, 14
V_S, V_CI, V_P, V_K, V_V = 16, 80, 96, 128, 164
V_HI = 200
V_X = 208
A_O, A_Q, A_F = 0, 144, 216

LOG2E = 1.4426950408889634
import struct
def f32(x): return "0x%08x" % struct.unpack("<I", struct.pack("<f", x))[0]


class BAsm(Asm):
    def __init__(self):
        super().__init__()
        self.bg, self.every, self.cnt, self.skip = [], 0, 0, 0

    def __call__(self, s):
        for l in s.split("\n"):
            l = l.strip()
            if not l: continue
            self.lines.append("    " + l)
            if self.bg and self.every and not l.startswith(("s_nop", "v_mov_b32", "v_exp", "v_rcp", "v_rsq", "v_sqrt", "s_add_u32 m0")):
                self.cnt += 1
                if self.cnt >= self.every:
                    self.cnt = 0
                    self.pop()

    def pop(self):
        for x in self.bg.pop(0).split("\n"): self.lines.append("    " + x)

    def flush(self):
        while self.bg: self.pop()
        self.every = 0


class G:
    def __init__(self, opt):
        self.o = opt
        self.a = BAsm()
        self.nst = 0
        self.fill = []

    def stamp(self, name):
        if self.o.get("stamps"):
            if name in self.o.get("skipst", []): return
            if "only" in self.o and name not in self.o["only"]: return
            if self.nst >= 11: return
            self.a(f"{'s_memtime' if self.o.get('cyc') else 's_memrealtime'} {sr(S_ST + 2*self.nst, 2)}")
            self.stnames.append(name)
            self.nst += 1

    def srd(self, dst, lo, hi, n):
        if dst == S_WS and self.o.get("wsoff"):
            self.a(f"s_add_u32 {sr(dst)}, {sr(lo)}, {self.o['wsoff']}\ns_addc_u32 {sr(dst+1)}, {sr(hi)}, 0\ns_mov_b32 {sr(dst+2)}, {n}\ns_mov_b32 {sr(dst+3)}, 0x20000")
            return
        self.a(f"s_mov_b32 {sr(dst)}, {sr(lo)}\ns_mov_b32 {sr(dst+1)}, {sr(hi)}\ns_mov_b32 {sr(dst+2)}, {n}\ns_mov_b32 {sr(dst+3)}, 0x20000")

    def greduce(self, regs, tmp, op="v_add_f32"):
        a = self.a
        for sw in ("32", "16"):
            for i, r in enumerate(regs): a(f"v_mov_b32 {vr(tmp+i)}, {vr(r)}")
            if len(regs) < 3: a("s_nop 1" if len(regs) == 1 else "s_nop 0")
            for i, r in enumerate(regs): a(f"v_permlane{sw}_swap_b32 {vr(r)}, {vr(tmp+i)}")
            for i, r in enumerate(regs): a(f"{op} {vr(r)}, {vr(r)}, {vr(tmp+i)}")

    def treduce(self, r, op="v_add_f32"):
        a = self.a
        a(f"v_permlane32_swap_b32 {vr(r)}, {vr(r+2)}\nv_permlane32_swap_b32 {vr(r+1)}, {vr(r+3)}")
        a(f"{op} {vr(r)}, {vr(r)}, {vr(r+2)}\n{op} {vr(r+1)}, {vr(r+1)}, {vr(r+3)}\ns_nop 1")
        a(f"v_permlane16_swap_b32 {vr(r)}, {vr(r+1)}\n{op} {vr(r)}, {vr(r)}, {vr(r+1)}")

    def rbf(self, r):
        self.a(f"v_cvt_pk_bf16_f32 {vr(r)}, {vr(r)}, {vr(r)}\nv_lshlrev_b32 {vr(r)}, 16, {vr(r)}")

    def ln_tail(self, F, out, t, mimic):
        a = self.a
        p = lambda r: vr(r, 2)
        self.greduce([t, t + 1], t + 2)
        a(f"v_mul_f32 {vr(t+2)}, {f32(1.0/144)}, {vr(t)}")
        a(f"v_mul_f32 {vr(t+3)}, {vr(t+2)}, {vr(t+2)}")
        a(f"v_mov_b32 {vr(t+4)}, {f32(1.0/144)}")
        a(f"v_fma_f32 {vr(t)}, {vr(t+1)}, {vr(t+4)}, -{vr(t+3)}")
        a(f"v_max_f32 {vr(t)}, 0, {vr(t)}")
        if mimic:
            self.rbf(t)
            self.rbf(t + 2)
            a(f"v_add_f32 {vr(t)}, {f32(1e-5)}, {vr(t)}")
            self.rbf(t)
            a(f"v_sqrt_f32 {vr(t)}, {vr(t)}\ns_nop 0")
            self.rbf(t)
            a(f"v_rcp_f32 {vr(t)}, {vr(t)}\ns_nop 0")
        else:
            a(f"v_add_f32 {vr(t)}, {f32(1e-5)}, {vr(t)}")
            a(f"v_rsq_f32 {vr(t)}, {vr(t)}\ns_nop 0")
        a(f"v_mul_f32 {vr(t+2)}, -{vr(t+2)}, {vr(t)}")
        for i in range(18):
            a(f"v_pk_fma_f32 {p(F+2*i)}, {p(F+2*i)}, {p(t)}, {p(t+2)} op_sel_hi:[1,0,0]")
        for i in range(18):
            a(f"v_cvt_pk_bf16_f32 {vr(out+i)}, {vr(F+2*i)}, {vr(F+2*i+1)}")

    def ln_packed(self, X, F, out, t):
        a = self.a
        a(f"v_mov_b32 {vr(t+6)}, 0x3f803f80")
        for k in range(4): a(f"v_mov_b32 {vr(t+k)}, 0")
        for i in range(18):
            a(f"v_dot2_f32_bf16 {vr(t+2*(i&1))}, {vr(X+i)}, {vr(t+6)}, {vr(t+2*(i&1))}")
            a(f"v_dot2_f32_bf16 {vr(t+1+2*(i&1))}, {vr(X+i)}, {vr(X+i)}, {vr(t+1+2*(i&1))}")
        for i in range(2):
            a(f"v_lshlrev_b32 {vr(F+2*i)}, 16, {vr(X+i)}\nv_and_b32 {vr(F+2*i+1)}, 0xffff0000, {vr(X+i)}")
        a(f"v_pk_add_f32 {vr(t,2)}, {vr(t,2)}, {vr(t+2,2)}")
        un = []
        for i in range(2, 18):
            un.append(f"v_lshlrev_b32 {vr(F+2*i)}, 16, {vr(X+i)}\nv_and_b32 {vr(F+2*i+1)}, 0xffff0000, {vr(X+i)}")
        sv = (a.bg, a.every, a.cnt, a.skip)
        n0 = len(a.lines)
        a.bg, a.every = [], 0
        self.ln_tail(F, out, t, True)
        tail = a.lines[n0:]
        del a.lines[n0:]
        a.bg, a.every, a.cnt, a.skip = sv
        k = next(i for i, l in enumerate(tail) if "v_pk_fma" in l)
        for i, l in enumerate(tail[:k]):
            if "s_nop" in l and un: continue_nop = True
            a(l)
            if un and not l.strip().startswith("s_nop"): a(un.pop(0))
        while un: a(un.pop(0))
        for l in tail[k:]: a(l)

    def ln_f32(self, F, out, t):
        a = self.a
        p = lambda r: vr(r, 2)
        a(f"v_pk_add_f32 {p(t)}, {p(F)}, {p(F+2)}\nv_pk_add_f32 {p(t+2)}, {p(F+4)}, {p(F+6)}")
        a(f"v_pk_mul_f32 {p(t+4)}, {p(F)}, {p(F)}\nv_pk_mul_f32 {p(t+6)}, {p(F+2)}, {p(F+2)}")
        for i in range(2, 18):
            if i >= 4: a(f"v_pk_add_f32 {p(t+2*(i&1))}, {p(t+2*(i&1))}, {p(F+2*i)}")
            a(f"v_pk_fma_f32 {p(t+4+2*(i&1))}, {p(F+2*i)}, {p(F+2*i)}, {p(t+4+2*(i&1))}")
        a(f"v_pk_add_f32 {p(t)}, {p(t)}, {p(t+2)}\nv_pk_add_f32 {p(t+4)}, {p(t+4)}, {p(t+6)}")
        a(f"v_add_f32 {vr(t)}, {vr(t)}, {vr(t+1)}\nv_add_f32 {vr(t+1)}, {vr(t+4)}, {vr(t+5)}")
        self.ln_tail(F, out, t, False)

    def gemm_u(self, AF, rf, Bs, ACC, afr, bfr, post, vm_items=(), other=(), lead=7, vm0=0, vmsp=4):
        a = self.a
        units = [(0, j) for j in range(4)] + [(1, j) for j in range(4)] + [(2, 0)]
        seq, dl = [], {}
        bs = lambda j, o_, n: self.rg((Bs[j][0], Bs[j][1] + o_), n)
        rem = lambda u: (f"v_mfma_f32_16x16x16_bf16 {vr(ACC+4*u,4)}, {rf(AF+18*units[u][0]+16,2)}, {bs(units[u][1],16,2)}, {vr(ACC+4*u,4)}", u)
        A = [afr(t) for t in range(3)]
        Bf = [bfr(j) for j in range(4)]

        def use(t, j, s, k):
            for x in (A[t][2 * s:2 * s + 2] if s < 4 else A[t][8:]) + ([Bf[j][s]] if Bf[j] else []): dl.setdefault(x, k)
        for g in range(4):
            for s in range(4):
                for u in range(3 * g, 3 * g + 3) if g < 3 else []:
                    t, j = units[u]
                    d = vr(ACC + 4 * u, 4)
                    use(t, j, s, len(seq))
                    seq.append((f"v_mfma_f32_16x16x32_bf16 {d}, {rf(AF+18*t+4*s,4)}, {bs(j,4*s,4)}, {'0' if s == 0 else d}", None))
                if s == 0 and g > 0:
                    for u in range(3 * g - 3, 3 * g):
                        use(units[u][0], units[u][1], 4, len(seq)); seq.append(rem(u))
        last = seq[-3:]; seq = seq[:-3]
        ds = sorted(dl.items(), key=lambda e: e[1]) + [(x, 99) for x in other]
        vm_items = list(vm_items)
        lastvm = vm0 - vmsp
        order, ready, q, done = [], [], [], 0

        def issue():
            x, k_ = ds.pop(0); a(x); order.append(k_)

        def wait(k):
            nonlocal done
            idx = [i_ for i_, k_ in enumerate(order) if k_ <= k]
            if idx and max(idx) + 1 > done:
                a(f"s_waitcnt lgkmcnt({min(15, len(order) - 1 - max(idx))})"); done = max(idx) + 1
        while ds and ds[0][1] < 6: issue()
        for k, (m, fin) in enumerate(seq):
            assert not ds or ds[0][1] > k, (k, ds[0])
            wait(k)
            a(m)
            for u_, kk in list(ready):
                if k - kk >= 4: q += post(u_); ready.remove((u_, kk))
            if fin is not None: ready.append((fin, k))
            due = sum(1 for x, k_ in ds if k_ <= k + lead)
            if due == 0 and vm_items and k >= lastvm + vmsp:
                a(vm_items.pop(0)); lastvm = k; continue
            cap = 2
            for _ in range(min(due, 3)): issue(); cap -= 1
            if cap == 2:
                if q and q[0].startswith("ds_"): a(q.pop(0)); order.append(99); cap -= 1
                elif ds: issue(); cap -= 1
            while cap > 0 and q and not q[0].startswith("ds_"):
                a(q.pop(0)); cap -= 1
        assert not ready
        while ds: issue()
        wait(98)
        for x in vm_items: a(x)
        for x in q[:4]: a(x)
        a(f"s_nop {max(0, 4 - len(q[:4]))}")
        for m, _ in last: a(m)
        for x in q[4:]: a(x)
        a(f"s_nop {max(0, 6 - len(q[4:]))}")
        for u in range(6, 9):
            for x in post(u): a(x)

    def gemm(self, reads, B, ACC, AF, late=(), at={}, per=2):
        a = self.a
        buf = lambda T: 18 * (T % 6)
        ng = 3 * (4 * per + 1)

        def grp(g):
            r = [reads(T, buf(T)) for T in range(3 * g, 3 * g + 3)]
            return [r[t][per * s + u] for s in range(4) for t in range(3) for u in range(per)] + [r[t][4 * per] for t in range(3)]
        rem = lambda T: f"v_mfma_f32_16x16x16_bf16 {vr(ACC+4*T,4)}, {ar(buf(T)+16,2)}, {vr(B+16,2)}, {vr(ACC+4*T,4)}"
        pend = grp(0) + grp(1) + grp(2) + list(late)
        issued = k = 0

        def issue(n):
            nonlocal issued
            for _ in range(n):
                if issued < len(pend): a(pend[issued]); issued += 1

        def mf(x):
            nonlocal k
            a(x); issue(per if per == 2 else (2 if k % 4 == 0 else 1))
            if k in at: a(at[k])
            k += 1
        issue(self.o.get('look', 12) if per == 2 else self.o.get('look1', 8))
        for g in range(3):
            for s in range(4):
                need = ng * g + 3 * per * (s + 1)
                a(f"s_waitcnt lgkmcnt({min(15, issued - need)})")
                for T in range(3 * g, 3 * g + 3):
                    d = vr(ACC + 4 * T, 4)
                    mf(f"v_mfma_f32_16x16x32_bf16 {d}, {ar(buf(T)+4*s,4)}, {vr(B+4*s,4)}, {'0' if s == 0 else d}")
                if s == 0 and g > 0:
                    for T in range(3 * g - 3, 3 * g): mf(rem(T))
                if g == 1 and s == 0: assert issued <= 2 * ng + 6 * per, "group 2 overwrites group 0 too early"
        issue(99)
        a(f"s_waitcnt lgkmcnt({len(late)})\ns_nop 2")
        for T in range(6, 9): a(rem(T))
        a("s_nop 7")

    def tr_reads(self, ad, rf=ar):
        def f(T, dst):
            out = []
            for s in range(4):
                for u in range(2):
                    out.append(f"ds_read_b64_tr_b16 {rf(dst+4*s+2*u,2)}, {vr(ad+u)} offset:{9216*s + 32*T}")
            out.append(f"ds_read_b64_tr_b16 {rf(dst+16,2)}, {vr(ad+2)} offset:{36864 + 32*T}")
            return out
        return f

    def row_reads(self, ad, sw=None):
        def f(T, dst):
            r = ad if sw is None or T == 8 else sw[T & 1]
            out = []
            for s in range(4):
                for u in range(2):
                    out.append(f"ds_read_b64 {ar(dst+4*s+2*u,2)}, {vr(r)} offset:{4864*T + 64*s + 32*u}")
            out.append(f"ds_read_b64 {ar(dst+16,2)}, {vr(r)} offset:{4864*T + 256}")
            return out
        return f

    def dma_rows(self, jobs, cpr, rstride, vo, vc, n_first, first_waves, lab):
        a = self.a
        mul = {18: 3641, 19: 3450}[cpr]
        dr, dc = 256 // cpr, 256 % cpr
        a(f"s_lshl_b32 {sr(S_T)}, {sr(S_W)}, 6")
        a(f"v_add_u32 {vr(vc)}, {sr(S_T)}, v0")
        a(f"v_mul_u32_u24 {vr(vo)}, {mul}, {vr(vc)}")
        a(f"v_lshrrev_b32 {vr(vo)}, 16, {vr(vo)}")
        a(f"v_mul_u32_u24 {vr(vc+1)}, {cpr}, {vr(vo)}")
        a(f"v_sub_u32 {vr(vc)}, {vr(vc)}, {vr(vc+1)}")
        a(f"v_mul_u32_u24 {vr(vo)}, {rstride}, {vr(vo)}")
        a(f"v_lshl_add_u32 {vr(vo)}, {vr(vc)}, 4, {vr(vo)}")
        a(f"s_lshl_b32 {sr(S_T)}, {sr(S_W)}, 10")
        a(f"v_mov_b32 {vr(vc+1)}, {rstride - 16*cpr}")
        for k in range(n_first):
            if k == n_first - 1:
                a(f"s_cmp_ge_u32 {sr(S_W)}, {first_waves}\ns_cbranch_scc1 {lab}")
            for srd, so, lb in jobs:
                a(f"s_add_u32 m0, {sr(S_T)}, {lb + 4096*k}")
                a("s_nop 0")
                a(f"buffer_load_dwordx4 {vr(vo)}, {sr(srd,4)}, {so} offen lds")
            if k < n_first - 1:
                a(f"v_add_u32 {vr(vc)}, {dc}, {vr(vc)}")
                a(f"v_cmp_le_u32 vcc, {cpr}, {vr(vc)}")
                a(f"v_add_u32 {vr(vo)}, {dr*rstride + 16*dc}, {vr(vo)}")
                a(f"v_subrev_u32 {vr(vc+2)}, {cpr}, {vr(vc)}")
                a(f"v_cndmask_b32 {vr(vc)}, {vr(vc)}, {vr(vc+2)}, vcc")
                a(f"v_cndmask_b32 {vr(vc+2)}, 0, {vr(vc+1)}, vcc")
                a(f"v_add_u32 {vr(vo)}, {vr(vo)}, {vr(vc+2)}")
        a.label(lab)

    def voff_table(self, dst, cpr, rstride, vc, step=256):
        a = self.a
        mul = {18: 29128, 19: 27595}[cpr]
        n = len(dst)
        a(f"s_mov_b32 {sr(S_T)}, {rstride - 16*cpr}")
        a(f"v_mul_u32_u24 {vr(dst[0])}, {mul}, {vr(vc)}")
        for k in range(1, n): a(f"v_add_u32 {vr(dst[k])}, {(step*k % cpr)*mul}, {vr(dst[0])}")
        for k in range(n): a(f"v_lshrrev_b32 {vr(dst[k])}, 19, {vr(dst[k])}")
        for k in range(n): a(f"v_mad_i32_i24 {vr(dst[k])}, {vr(dst[k])}, {sr(S_T)}, {vr(vc+1)}")

    def dma_lin(self, srd, soff, lb, v16, lab):
        a = self.a
        a(f"s_lshl_b32 {sr(S_T)}, {sr(S_W)}, 10")
        for k in range(11):
            if k == 10:
                a(f"s_cmp_ge_u32 {sr(S_W)}, 1\ns_cbranch_scc1 {lab}")
            a(f"s_add_u32 m0, {sr(S_T)}, {lb + 4096*k}")
            a(f"s_add_u32 {sr(S_T+1)}, {sr(S_T)}, {soff + 4096*k}")
            a(f"buffer_load_dwordx4 {vr(v16)}, {sr(srd,4)}, {sr(S_T+1)} offen lds")
        a.label(lab)

    def tr_addr(self, ad, base, swapped, t):
        a = self.a
        a(f"v_lshrrev_b32 {vr(t)}, 2, v0")
        a(f"v_mul_u32_u24 {vr(t)}, 288, {vr(t)}")
        a(f"v_and_b32 {vr(t+1)}, 3, v0")
        a(f"v_lshl_add_u32 {vr(t)}, {vr(t+1)}, 3, {vr(t)}")
        a(f"v_add_u32 {vr(ad+2)}, {base}, {vr(t)}")
        if swapped:
            a(f"v_bfe_u32 {vr(t)}, v0, 4, 1")
            a(f"v_mul_u32_u24 {vr(t)}, {16*288}, {vr(t)}")
            a(f"v_add_u32 {vr(ad)}, {vr(ad+2)}, {vr(t)}")
            a(f"v_sub_u32 {vr(ad+1)}, {vr(ad+2)}, {vr(t)}")
            a(f"v_add_u32 {vr(ad+1)}, {16*288}, {vr(ad+1)}")
        else:
            a(f"v_mov_b32 {vr(ad)}, {vr(ad+2)}")
            a(f"v_add_u32 {vr(ad+1)}, {16*288}, {vr(ad+2)}")

    def row_addr(self, ad, base, t):
        a = self.a
        a(f"v_and_b32 {vr(t)}, 15, v0")
        a(f"v_mul_u32_u24 {vr(t)}, 304, {vr(t)}")
        a(f"v_lshrrev_b32 {vr(t+1)}, 4, v0")
        a(f"v_lshl_add_u32 {vr(t)}, {vr(t+1)}, 3, {vr(t)}")
        a(f"v_add_u32 {vr(ad)}, {base}, {vr(t)}")

    def store_block(self, src, v16, v8, srd, soff, soff2, flags=""):
        a = self.a
        for s in range(4):
            a(f"buffer_store_dwordx4 {vr(src+4*s,4)}, {vr(v16)}, {sr(srd,4)}, {sr(soff)} offen offset:{1024*s} {flags}")
        a(f"buffer_store_dwordx2 {vr(src+16,2)}, {vr(v8)}, {sr(srd,4)}, {sr(soff2)} offen {flags}")

    def entry(self):
        a = self.a
        kernel_header(a, NAME)
        a(f"s_load_dwordx16 s[56:71], s[0:1], 0")
        a(f"s_load_dwordx8 s[72:79], s[0:1], 64")
        a(f"s_getpc_b64 {sr(S_W1,2)}")
        a.label("L_pf")
        hl = self.o.get("hlast", 0)
        assert not hl
        a(f"""s_cmp_ge_u32 s2, {NH}
        s_cbranch_scc1 L_main
        s_memrealtime s[4:5]
        s_waitcnt lgkmcnt(0)
        s_mov_b32 {sr(S_DB)}, s76
        s_mov_b32 {sr(S_DB+1)}, s77
        s_mov_b32 {sr(S_DB+2)}, 256
        s_mov_b32 {sr(S_DB+3)}, 0x20000
        v_lshlrev_b32 v1, 8, v0
        s_or_b32 s4, s4, 1
        v_mov_b32 v2, s4
        s_lshl_b32 s5, s2, 8
        buffer_store_dword v2, v1, {sr(S_DB,4)}, s5 offen sc1
        s_branch L_wfuse""")
        a.label("L_main")
        a(f"""s_mov_b32 {sr(S_W1+2)}, L_dummy-L_pf
        s_mov_b32 {sr(S_W1+3)}, 0x20000
        v_lshlrev_b32 v1, 4, v0
        s_bfe_u32 {sr(S_T)}, s2, 0x30003
        s_lshl_b32 {sr(S_T)}, {sr(S_T)}, 12
        buffer_load_dwordx4 v[252:255], v1, {sr(S_W1,4)}, 0 offen
        buffer_load_dwordx4 v[252:255], v1, {sr(S_W1,4)}, {sr(S_T)} offen
        s_cmp_ge_u32 s2, {NWG - NH * hl}
        s_cbranch_scc1 {"L_wfuse" if hl else "L_end"}""")
        if self.o.get("late"):
            m_, v_, n_ = self.o["late"]
            a(f"""s_and_b32 s3, s2, {m_}
            s_cmp_lg_u32 s3, {v_}
            s_cbranch_scc1 L_nl
            s_memrealtime s[4:5]
            s_waitcnt lgkmcnt(0)
            s_add_u32 s6, s4, {n_}
            L_lt:
            s_memrealtime s[4:5]
            s_waitcnt lgkmcnt(0)
            s_sub_u32 s7, s6, s4
            s_cmp_gt_i32 s7, 0
            s_cbranch_scc1 L_lt
            L_nl:""")
        if self.o.get("stamps"):
            a("s_memrealtime s[100:101]" if not self.o.get("cyc") else "s_memtime s[100:101]")
        self.mp = 2
        a(f"""v_lshrrev_b32 v1, 6, v0
        s_sub_u32 s2, s2, {0 if hl else NH}
        v_readfirstlane_b32 {sr(S_W)}, v1
        s_and_b32 {sr(S_H)}, s2, 1
        s_bfe_u32 {sr(S_B)}, s2, 0x10001
        s_lshr_b32 {sr(S_QB)}, s2, 2
        v_and_b32 v0, 63, v0
        v_lshlrev_b32 {vr(V_DMA)}, 4, v0""")

    def vm_since(self, mark):
        return sum(1 for l in self.a.lines[mark:] if l.strip().startswith("buffer_"))

    def phase_a(self):
        a, o = self.a, self.o
        XR, XF, XA, ACC, G_, PK = 16, 34, 146, 110, 16, 164
        B4, XD = 16, 88
        VS, VSW, VR4, MXA, MXR, L8, TRU, TRQ, TRQ8, RK, TM = 200, 204, 208, 212, 213, 214, 215, 218, 221, 224, 228
        VK, VU = list(range(182, 193)), list(range(193, 200)) + list(range(104, 108))
        AQ1 = 200
        t0, t1, t2 = 250, 251, 227
        T = S_T
        WV, W10, UOFF, M1, PUB, M3 = 72, 70, 71, 69, 68, 65
        a(f"""s_lshl_b32 {sr(T)}, {sr(S_QB)}, 1
        s_add_u32 {sr(S_TOWN)}, {sr(T)}, {sr(S_H)}
        s_xor_b32 {sr(S_TSND)}, {sr(S_TOWN)}, 1
        s_cmp_lt_u32 {sr(S_TOWN)}, {NT}
        s_cselect_b32 {sr(S_VAL)}, 1, 0
        s_cmp_lt_u32 {sr(S_W)}, 2
        s_cselect_b32 {sr(T+3)}, {sr(S_TSND)}, {sr(S_TOWN)}
        s_mul_i32 {sr(T)}, {sr(S_B)}, {NT}
        s_add_u32 {sr(S_TOWN)}, {sr(S_TOWN)}, {sr(T)}
        s_add_u32 {sr(S_TSND)}, {sr(S_TSND)}, {sr(T)}
        s_add_u32 {sr(T+1)}, {sr(T+3)}, {sr(T)}
        s_lshl_b32 {sr(T+1)}, {sr(T+1)}, 1
        s_and_b32 {sr(T+2)}, {sr(S_W)}, 1
        s_add_u32 {sr(T+2)}, {sr(T+1)}, {sr(T+2)}
        s_mul_i32 {sr(T+1)}, {sr(T+2)}, {16*288}
        s_mul_i32 {sr(S_LB)}, {sr(S_W)}, {BLK}
        s_add_u32 {sr(S_LB)}, {sr(S_LB)}, {L_XS}
        s_mov_b32 m0, {sr(S_LB)}
        s_mov_b32 {sr(S_X+2)}, 2304000
        s_mov_b32 {sr(S_X+3)}, 0x20000
        s_add_u32 {sr(S_CNT)}, {sr(T+1)}, 4096
        s_waitcnt lgkmcnt(0)
        s_mov_b32 {sr(S_X)}, s56
        s_mov_b32 {sr(S_X+1)}, s57""")
        for k in range(4): a(f"buffer_load_dwordx4 {vr(V_DMA)}, {sr(S_X,4)}, {sr(T+1)} offen offset:{1024*k} lds")
        a(f"s_add_u32 m0, {sr(S_LB)}, 4096\ns_mov_b32 exec_hi, 0\nbuffer_load_dwordx4 {vr(V_DMA)}, {sr(S_X,4)}, {sr(S_CNT)} offen lds\ns_mov_b32 exec_hi, -1")
        mx = len(a.lines)
        SQ, SK, SU = S_W2, S_W1, S_XA
        self.srd(SU, 66, 67, 82944)
        self.srd(SQ, 58, 59, 41472)
        self.srd(SK, 60, 61, 41472)
        a(f"s_lshr_b32 {sr(T)}, s2, 3\ns_lshl_b32 {sr(T)}, {sr(T)}, 12\ns_lshl_b32 {sr(W10)}, {sr(S_W)}, 10\ns_add_u32 {sr(T)}, {sr(T)}, {sr(W10)}")
        a(f"buffer_load_dwordx4 v[252:255], {vr(V_DMA)}, {sr(SU,4)}, {sr(T)} offen")
        for srd_, rot in ((SQ, 82), (SK, 41)):
            a(f"s_add_u32 {sr(T+1)}, {sr(T)}, {(128 - rot) * 1024}\ns_and_b32 {sr(T+1)}, {sr(T+1)}, {127 * 1024}")
            a(f"buffer_load_dwordx4 v[252:255], {vr(V_DMA)}, {sr(srd_,4)}, {sr(T+1)} offen")
        self.srd(S_OUT, 74, 75, 2304000)
        self.srd(S_DB, 76, 77, 256)
        self.srd(S_WS, 78, 79, WS_END)
        def tlb():
            a(f"v_lshlrev_b32 v249, 21, v0")
            for ch in o.get("tlbw", "wdo"): a(f"buffer_load_dword v252, v249, {sr(dict(w=S_WS, d=S_DB, o=S_OUT)[ch],4)}, 0 offen")
        if o.get("tlb", 0) == 1: tlb()
        if o.get("tlb", 3) == 3:
            a(f"""s_bfe_u32 {sr(T)}, s2, 0x30003
            s_lshl_b32 {sr(T)}, {sr(T)}, 21
            v_mov_b32 v249, 0
            s_cmp_lt_u32 {sr(T)}, {5 << 21}
            s_cbranch_scc0 L_tl1
            buffer_load_dword v252, v249, {sr(S_WS,4)}, {sr(T)} offen
            s_branch L_tl3
            L_tl1:
            s_sub_u32 {sr(T)}, {sr(T)}, {5 << 21}
            s_cmp_lt_u32 {sr(T)}, {2 << 21}
            s_cbranch_scc0 L_tl2
            buffer_load_dword v252, v249, {sr(S_OUT,4)}, {sr(T)} offen
            s_branch L_tl3
            L_tl2:
            v_lshlrev_b32 v249, {o.get("dsh", 6)}, v0
            buffer_load_dword v252, v249, {sr(S_DB,4)}, 0 offen {o.get("dfl", "")}
            L_tl3:""")
            self.vm_adj = -2
        if o.get("stamps"): a(f"s_mov_b64 {sr(S_ST,2)}, s[100:101]"); self.stnames.append("start"); self.nst = 1
        self.stamp("xiss")
        a(f"""s_cmp_lt_u32 {sr(T+3)}, {NT}
        s_cselect_b32 {sr(WV)}, 1, 0
        s_mov_b32 {sr(WV+1)}, {sr(T+2)}
        s_mul_i32 {sr(UOFF)}, {sr(S_H)}, 288
        s_cmp_eq_u32 {sr(S_W)}, 0
        s_cselect_b32 {sr(M1)}, 0, {L_DUMP}
        s_cmp_lt_u32 {sr(S_W)}, 3
        s_cselect_b32 {sr(M3)}, {sr(W10)}, {L_DUMP}""")
        half = lambda g_: "s_mov_b32 exec_hi, 0\n" + g_ + "\ns_mov_b32 exec_hi, -1"
        gu = [f"s_add_u32 m0, {sr(W10 if k < 10 else M1)}, {L_WU + 4096*k}\ns_add_u32 {sr(S_CNT)}, {sr(UOFF)}, {4096*k + 288*(256*k//18)}\nbuffer_load_dwordx4 {vr(VU[k])}, {sr(SU,4)}, {sr(S_CNT)} offen lds" for k in range(11)]
        gu[10] = half(gu[10])
        gq = [f"s_add_u32 m0, {sr(W10 if k < 10 else M1)}, {L_WQ + 4096*k}\ns_add_u32 {sr(S_CNT)}, {sr(W10)}, {4096*k}\nbuffer_load_dwordx4 {vr(V_DMA)}, {sr(SQ,4)}, {sr(S_CNT)} offen lds" for k in range(11)]
        gq[10] = half(gq[10])
        gk = [f"s_add_u32 m0, {sr(W10 if k < 10 else M3)}, {L_WK + 4096*k}\ns_mov_b32 {sr(S_CNT)}, {4096*k - 16*(256*k//19)}\nbuffer_load_dwordx4 {vr(VK[k])}, {sr(SK,4)}, {sr(S_CNT)} offen lds" for k in range(11)]
        a(f"s_lshl_b32 {sr(T)}, {sr(S_W)}, 6\nv_add_u32 {vr(t0)}, {sr(T)}, v0\nv_lshlrev_b32 {vr(t1)}, 4, {vr(t0)}")
        self.voff_table(VU, 18, 576, t0)
        npre = o.get("npre", 3)
        a.bg, a.every, a.cnt = gu[:npre], o.get("evpre", 40), 0
        self.voff_table(VK, 19, 288, t0)
        xa0, xa1, xa2 = TM, TM + 1, TM + 2
        a(f"""v_and_b32 {vr(t0)}, 15, v0
        v_lshrrev_b32 {vr(t1)}, 5, v0
        v_lshlrev_b32 {vr(t1)}, 3, {vr(t1)}
        v_xor_b32 {vr(t1)}, {vr(t0)}, {vr(t1)}
        v_lshlrev_b32 {vr(t1)}, 4, {vr(t1)}
        v_lshrrev_b32 {vr(t2)}, 4, v0
        v_lshl_add_u32 {vr(V_KA)}, {vr(t2)}, 9, {vr(t1)}
        v_lshrrev_b32 {vr(t1)}, 3, {vr(t0)}
        v_lshlrev_b32 {vr(t1)}, 1, {vr(t1)}
        v_xor_b32 {vr(t1)}, {vr(t2)}, {vr(t1)}
        v_lshl_add_u32 {vr(t1)}, {vr(t0)}, 2, {vr(t1)}
        v_lshlrev_b32 {vr(V_KA+1)}, 3, {vr(t1)}
        v_lshlrev_b32 {vr(L8)}, 3, v0
        v_lshlrev_b32 {vr(MXR)}, 4, {vr(t0)}
        v_add_u32 {vr(MXR)}, {L_MX}, {vr(MXR)}
        v_add_u32 {vr(MXA)}, {sr(S_W)}, {vr(t2)}
        v_and_b32 {vr(MXA)}, 3, {vr(MXA)}
        v_lshl_add_u32 {vr(MXA)}, {vr(MXA)}, 8, {vr(MXR)}
        s_lshl_b32 {sr(T)}, {sr(S_W)}, 2
        v_add_u32 {vr(MXA)}, {sr(T)}, {vr(MXA)}
        v_mul_u32_u24 {vr(xa2)}, 288, {vr(t0)}
        v_lshl_add_u32 {vr(xa2)}, {vr(t2)}, 3, {vr(xa2)}
        v_add_u32 {vr(xa2)}, {sr(S_LB)}, {vr(xa2)}
        v_and_b32 {vr(t1)}, 1, {vr(t2)}
        v_lshlrev_b32 {vr(t1)}, 5, {vr(t1)}
        v_add_u32 {vr(xa0)}, {vr(xa2)}, {vr(t1)}
        v_xor_b32 {vr(t1)}, 32, {vr(t1)}
        v_add_u32 {vr(xa1)}, {vr(xa2)}, {vr(t1)}
        s_mul_i32 {sr(S_LB)}, {sr(S_W)}, {TILE}
        v_lshrrev_b32 {vr(t0)}, 2, v0
        v_bfe_u32 {vr(t1)}, v0, 1, 1
        v_lshlrev_b32 {vr(t1)}, 3, {vr(t1)}
        v_xor_b32 {vr(t1)}, {vr(t0)}, {vr(t1)}
        v_lshlrev_b32 {vr(t1)}, 4, {vr(t1)}
        v_and_b32 {vr(t2)}, 3, v0
        v_lshl_add_u32 {vr(t1)}, {vr(t2)}, 9, {vr(t1)}
        v_and_b32 {vr(V_VA)}, 1, v0
        v_lshl_add_u32 {vr(t1)}, {vr(V_VA)}, 3, {vr(t1)}
        s_and_b32 {sr(T)}, {sr(S_W)}, 1
        s_lshl_b32 {sr(T)}, {sr(T)}, 12
        s_add_u32 {sr(T+1)}, {sr(T)}, {sr(S_LB)}
        s_xor_b32 {sr(T)}, {sr(T)}, 4096
        s_add_u32 {sr(T)}, {sr(T)}, {sr(S_LB)}
        v_add_u32 {vr(V_VA)}, {sr(T)}, {vr(t1)}
        v_add_u32 {vr(V_VB)}, {sr(T+1)}, {vr(t1)}
        v_xor_b32 {vr(V_VA+1)}, 8, {vr(V_VA)}
        v_xor_b32 {vr(V_VB+1)}, 8, {vr(V_VB)}
        v_lshrrev_b32 {vr(t1)}, 5, v0
        v_lshlrev_b32 {vr(t1)}, 1, {vr(t1)}
        v_xor_b32 {vr(t1)}, {vr(t2)}, {vr(t1)}
        v_lshl_add_u32 {vr(t1)}, {vr(t0)}, 2, {vr(t1)}
        v_lshlrev_b32 {vr(t1)}, 3, {vr(t1)}
        v_add_u32 {vr(V_VR)}, {sr(S_LB)}, {vr(t1)}
        v_add_u32 {vr(V_DMA+1)}, 4096, {vr(V_DMA)}
        v_add_u32 {vr(V_DMA+2)}, 8192, {vr(V_DMA)}""")
        self.tr_addr(TRU, L_WU, True, t0)
        a(f"s_lshl_b32 {sr(T)}, {sr(S_W)}, 6\ns_add_u32 {sr(T)}, {sr(T)}, {L_WQ - L_WU}")
        for k in range(3):
            a(f"v_add_u32 {vr(TRQ+k)}, {sr(T)}, {vr(TRU+k)}\nv_add_u32 {vr(TRQ8+k)}, {L_WQ - L_WU + 256}, {vr(TRU+k)}")
        self.row_addr(RK + 2, L_WK + 8 * 4864, t0)
        a(f"""s_mul_i32 {sr(T)}, {sr(S_W)}, {2*4864}
        s_sub_u32 {sr(T)}, {sr(T)}, {8*4864}
        v_add_u32 {vr(t1)}, {sr(T)}, {vr(RK+2)}
        v_bfe_u32 {vr(t0)}, v0, 2, 1
        v_mul_u32_u24 {vr(t0)}, 4864, {vr(t0)}
        v_add_u32 {vr(RK)}, {vr(t1)}, {vr(t0)}
        v_sub_u32 {vr(RK+1)}, {vr(t1)}, {vr(t0)}""")
        for j in range(4):
            a(f"""s_add_u32 {sr(T)}, {sr(S_W)}, {j}
            s_and_b32 {sr(T)}, {sr(T)}, 3
            s_lshl_b32 {sr(T+1)}, {sr(T)}, 12
            s_add_u32 {sr(T+1)}, {sr(T+1)}, {L_XX}
            v_add_u32 {vr(VS+j)}, {sr(T+1)}, {vr(V_DMA)}
            s_lshl_b32 {sr(T+1)}, {sr(T)}, 9
            s_add_u32 {sr(T+1)}, {sr(T+1)}, {L_XR}
            v_add_u32 {vr(VR4+j)}, {sr(T+1)}, {vr(L8)}
            v_add_u32 {vr(VSW+j)}, {sr(W10)}, {vr(VS+j)}""")
        a(f"""s_sub_u32 {sr(T+2)}, 63, {sr(S_H)}
        s_add_u32 {sr(T+3)}, {sr(S_W)}, 60
        s_cmp_ge_u32 {sr(T+3)}, {sr(T+2)}
        s_cselect_b32 {sr(S_DUM)}, 4, 99
        s_mov_b32 {sr(S_REDO)}, 0
        s_mov_b32 {sr(S_TOFF)}, {sr(S_LB)}
        s_lshl_b32 {sr(PUB)}, {sr(S_TOWN)}, 8
        s_add_u32 {sr(PUB)}, {sr(PUB)}, {WS_F}
        s_cmp_eq_u32 {sr(S_W)}, 2
        s_cselect_b32 {sr(T)}, {sr(S_VAL)}, 0
        s_cmp_eq_u32 {sr(T)}, 1
        s_cselect_b32 {sr(PUB)}, {sr(PUB)}, 0x40000000
        s_lshl_b32 {sr(S_FB)}, s2, 8
        s_add_u32 {sr(S_FB)}, {sr(S_FB)}, {WS_F + 250*256}
        s_mul_i32 {sr(T)}, {sr(S_H)}, 1792
        s_sub_u32 {sr(T)}, {sr(T)}, 768
        s_mul_i32 {sr(T+1)}, {sr(S_H)}, 62
        s_cmp_eq_u32 {sr(S_QB)}, {sr(T+1)}
        s_cselect_b32 {sr(T)}, 0, {sr(T)}
        v_mov_b32 {vr(self.VPL)}, 0x40000000
        s_xor_b32 {sr(T+1)}, {sr(S_FB)}, 256
        s_add_u32 {sr(T)}, {sr(T)}, {sr(S_FB)}
        v_writelane_b32 {vr(self.VPL)}, {sr(S_FB)}, 0
        v_writelane_b32 {vr(self.VPL)}, {sr(T+1)}, 1
        v_writelane_b32 {vr(self.VPL)}, {sr(T)}, 2
        s_mov_b32 {sr(T)}, {WS_F + 502*256}
        s_mov_b32 {sr(T+1)}, {WS_F + 503*256}
        v_writelane_b32 {vr(self.VPL)}, {sr(T)}, 3
        v_writelane_b32 {vr(self.VPL)}, {sr(T+1)}, 4
        s_sub_u32 {sr(S_FB)}, {sr(S_FB)}, {L_PC}""")
        a.flush()
        if o.get("tlb", 0) == 2: tlb()
        self.stamp("pre")
        if o.get("es", 0) == 0: self.epi_setup()
        self.stamp("es")
        nx = self.vm_since(mx) + getattr(self, "vm_adj", 0)
        if o.get("touch", 1):
            a(f"""s_mov_b64 exec, 0
            s_cmp_eq_u32 {sr(S_W)}, 0
            s_cbranch_scc1 L_tr
            s_cmp_eq_u32 {sr(S_W)}, 1
            s_cbranch_scc1 L_t0
            s_cmp_eq_u32 {sr(S_W)}, 2
            s_cbranch_scc1 L_t1
            s_branch L_t2""")
            self.rare()
            a.raw(".p2align 12")
            a.label("L_tr")
            a("s_mov_b64 exec, -1")
        nlate = o.get("nlate", 0)
        for g_ in gu[npre:npre + nlate]: a(g_)
        a(f"s_waitcnt vmcnt({nx + nlate})")
        self.stamp("xarr")
        for s in range(4):
            a(f"ds_read_b64 {vr(XR+4*s,2)}, {vr(xa0)} offset:{64*s}\nds_read_b64 {vr(XR+4*s+2,2)}, {vr(xa1)} offset:{64*s}")
        a(f"ds_read_b64 {vr(XR+16,2)}, {vr(xa2)} offset:256")
        a(f"""s_and_b32 {sr(T)}, {sr(S_W)}, 1
        s_mul_i32 {sr(T+2)}, {sr(S_TOWN)}, {TILE}
        s_cmp_eq_u32 {sr(S_VAL)}, 1
        s_cselect_b32 {sr(T+2)}, {sr(T+2)}, 0x40000000
        s_lshl_b32 {sr(T+3)}, {sr(T)}, 8
        s_add_u32 {sr(T+3)}, {sr(T+3)}, {sr(T+2)}
        s_add_u32 {sr(T+4)}, {sr(T+3)}, 4096
        s_lshl_b32 {sr(T+5)}, {sr(T)}, 9
        s_add_u32 {sr(T+5)}, {sr(T+5)}, {sr(T+2)}
        s_add_u32 {sr(T+5)}, {sr(T+5)}, 8192
        s_waitcnt lgkmcnt(0)""")
        wl = gq + gk
        a.bg, a.every, a.cnt = gu[npre + nlate:] + [wl.pop(0) for _ in range(o.get("nql", 4))], o.get("evln", 8), 0
        self.ln_packed(XR, XF, XA, TM)
        a.flush()
        self.stamp("ln")
        a(f"s_cmp_lt_u32 {sr(S_W)}, 2\ns_cbranch_scc1 L_nop")
        for s in range(4):
            a(f"buffer_store_dwordx4 {vr(XA+4*s,4)}, {vr(V_KA)}, {sr(S_WS,4)}, {sr(T+3+(s>>1))} offen offset:{2048*(s&1)} sc1")
        a(f"buffer_store_dwordx2 {vr(XA+16,2)}, {vr(V_KA+1)}, {sr(S_WS,4)}, {sr(T+5)} offen sc1\ns_waitcnt vmcnt({5 + o.get('nql', 4)})\ns_branch L_bar1")
        a.label("L_nop")
        if o.get("touch", 1):
            a(f"s_mov_b64 exec, 0\ns_cmp_eq_u32 {sr(S_W)}, 0\ns_cbranch_scc1 L_t3\ns_branch L_t4")
            a.label("L_tr2")
            a("s_mov_b64 exec, -1")
        a(f"s_waitcnt vmcnt({o.get('nql', 4)})")
        a.label("L_bar1")
        self.stamp("pub")
        xw = [f"ds_write_b128 {vr(VS)}, {vr(XA+4*s,4)} offset:{1024*s}" for s in range(4)] + [f"ds_write_b64 {vr(VR4)}, {vr(XA+16,2)}"]
        self.stamp("tch")
        PA = 249
        a(f"""v_add_u32 {vr(V_KA)}, {sr(S_LB)}, {vr(V_KA)}
        v_add_u32 {vr(V_KA+1)}, {sr(S_LB)}, {vr(V_KA+1)}
        s_mul_i32 {sr(T)}, {sr(S_B)}, {NT}
        s_mul_i32 {sr(T+1)}, {sr(S_H)}, 63
        s_add_u32 {sr(T)}, {sr(T)}, {sr(T+1)}
        s_lshl_b32 {sr(T)}, {sr(T)}, 8
        s_add_u32 {sr(T)}, {sr(T)}, {WS_F}
        s_cmp_eq_u32 {sr(S_W)}, 0
        s_cselect_b32 {sr(T)}, {sr(T)}, 0x40000000
        v_lshl_add_u32 {vr(PA)}, v0, 8, {sr(T)}
        {self.xa_srd()}
        s_waitcnt lgkmcnt(0)""")
        self.stamp("w1")
        a("s_barrier")
        self.stamp("bar1")
        poll = lambda r: f"buffer_load_dword {vr(r)}, {vr(PA)}, {sr(S_WS,4)}, 0 offen sc1"

        def gate(lab, r, mask, younger):
            a(f"s_mov_b32 {sr(T+2)}, 0\ns_waitcnt vmcnt({younger})")
            a.label(lab)
            a(f"""v_cmp_ne_u32 vcc, {sr(S_N)}, {vr(r)}
            s_add_u32 {sr(T+2)}, {sr(T+2)}, 1
            s_and_b64 vcc, vcc, {mask}
            s_cbranch_scc0 {lab}_ok
            s_sleep {o.get("slp", 4)}
            {poll(r)}
            s_waitcnt vmcnt(0)
            s_cmp_lt_u32 {sr(T+2)}, 0x40000
            s_cbranch_scc1 {lab}""")
            a.label(lab + "_ok")

        H, G_, UG, MS, CL = 16, 52, 208, 110, 104
        nup = o.get("nup", 12)
        at = {o.get("u0", 6) + o.get("usp", 3) * i: wl.pop(0) for i in range(nup)}
        for i in range(5): at[i] = xw[i]
        tagld = f"buffer_load_dword v253, off, {sr(S_DB,4)}, 0 sc1"
        at[o.get("tgp", 5)] = tagld
        if o.get("es", 0) == 1:
            n_ = len(a.lines); self.epi_setup()
            el = [l.strip() for l in a.lines[n_:]]; del a.lines[n_:]
            for k in range(5, 42):
                if k in at: continue
                c_ = 0
                while el and c_ < o.get("esn", 2):
                    x = el.pop(0); at[k] = at.get(k, "") + x + "\n"; c_ += 1 if x.startswith("v_") else 0.5
            self.es_left = el
        self.gemm(self.tr_reads(TRU), XA, H, None, at=at)
        if o.get("es", 0) == 1:
            for x in self.es_left: a(x)
        self.stamp("up")
        last = lambda srd: max(i for i, l in enumerate(a.lines) if l.strip().startswith("buffer_load") and sr(srd, 4) in l) + 1
        assert not any(sr(SQ, 4) in x for x in wl)
        a(f"v_lshlrev_b32 {vr(t0)}, 2, v0\ns_mov_b32 {sr(T+2)}, 0\ns_waitcnt vmcnt({self.vm_since(last(SQ))}) lgkmcnt(0)")
        a.label("L_tag")
        a(f"""v_readfirstlane_b32 {sr(S_N)}, v253
        s_add_u32 {sr(T+2)}, {sr(T+2)}, 1
        s_cmp_lg_u32 {sr(S_N)}, 0
        s_cbranch_scc1 L_tag_ok
        {tagld}
        s_waitcnt vmcnt(0)
        s_cmp_lt_u32 {sr(T+2)}, 0x40000
        s_cbranch_scc1 L_tag""")
        a.label("L_tag_ok")
        m_g = len(a.lines)
        a(f"v_mov_b32 {vr(t1)}, {sr(S_N)}\ns_barrier\nbuffer_store_dword {vr(t1)}, {vr(t0)}, {sr(S_WS,4)}, {sr(PUB)} offen sc1")
        self.stamp("barG")
        if o.get("atw"):
            a("s_waitcnt vmcnt(0)")
            self.stamp("ack")
        if o.get("census"):
            k_ = S_ST + 2 * self.stnames.index(o["census"][0])
            a(f"s_waitcnt lgkmcnt(0)\nv_mov_b32 v252, {sr(k_)}\ns_lshl_b32 {sr(T)}, s2, 2\ns_add_u32 {sr(T)}, {sr(T)}, {WS_DBG}\nv_mov_b32 v253, 0\nbuffer_store_dword v252, v253, {sr(S_WS,4)}, {sr(T)} offen sc1")

        def a_tr(t):
            ad, off = (TRQ, 32 * t) if t < 2 else (TRQ8, 0)
            return [f"ds_read_b64_tr_b16 {ar(AQ1+18*t+4*s+2*u,2)}, {vr(ad+u)} offset:{9216*s + off}" for s in range(4) for u in range(2)] + \
                   [f"ds_read_b64_tr_b16 {ar(AQ1+18*t+16,2)}, {vr(ad+2)} offset:{36864 + off}"]

        def a_row(t):
            off = 4864 * t if t < 2 else 0
            return [f"ds_read_b64 {ar(A_Q+18*t+4*s+2*u,2)}, {vr(RK+t)} offset:{off + 64*s + 32*u}" for s in range(4) for u in range(2)] + \
                   [f"ds_read_b64 {ar(A_Q+18*t+16,2)}, {vr(RK+t)} offset:{off + 256}"]
        bq = lambda j, d=0: [f"ds_read_b128 {ar(18*j+4*s,4)}, {vr(VS+j)} offset:{d + 1024*s}" for s in range(4)] + [f"ds_read_b64 {ar(18*j+16,2)}, {vr(VR4+j)} offset:{d}"]

        def post(u, scale, d):
            L = [f"v_mul_f32 {vr(ACC+4*u+i)}, {sr(T+4)}, {vr(ACC+4*u+i)}" for i in range(4)] if scale else []
            L += [f"v_cvt_pk_bf16_f32 {vr(PK + (4*(u&3) + 2*(u>>2) if u < 8 else 16) + h)}, {vr(ACC+4*u+2*h)}, {vr(ACC+4*u+2*h+1)}" for h in range(2)]
            if 4 <= u < 8: L.append(f"ds_write_b128 {vr(VSW+u-4)}, {vr(PK+4*(u-4),4)} offset:{d}")
            if u == 8: L.append(f"ds_write_b64 {vr(VR4)}, {vr(PK+16,2)} offset:{d}")
            return L
        xd = [f"ds_read_b128 {vr(XD+4*j,4)}, {vr(VSW+j)}" for j in range(4)]
        self.gemm_u(AQ1, ar, [("v", XA), ("a", 18), ("a", 36), ("a", 54)], ACC, a_tr, lambda j: bq(j) if j else None, lambda u: post(u, False, L_QD),
                    vm_items=wl, other=xd, vmsp=o.get("vmsp", 3))
        self.stamp("g1")
        assert last(SK) > m_g
        for i in range(4): a(f"v_mov_b32 {vr(CL+i)}, -1")
        a(f"s_lshl2_add_u32 {sr(T+2)}, s2, {sr(S_W)}\ns_mul_i32 {sr(T+2)}, {sr(T+2)}, 2560\ns_add_u32 {sr(T+2)}, {sr(T+2)}, {WS_IB}")
        a(f"s_mov_b32 {sr(T+4)}, {f32(LOG2E / 12.0)}\ns_waitcnt vmcnt({self.vm_since(last(SK))}) lgkmcnt(0)\ns_barrier")
        clr = [f"buffer_store_dwordx4 {vr(CL,4)}, {vr(V_DMA)}, {sr(S_WS,4)}, {sr(T+2)} offen sc1",
               f"buffer_store_dwordx4 {vr(CL,4)}, {vr(V_DMA)}, {sr(S_WS,4)}, {sr(T+2)} offen offset:1024 sc1",
               f"buffer_store_dwordx2 {vr(CL,2)}, {vr(L8)}, {sr(S_WS,4)}, {sr(T+2)} offen offset:2048 sc1"]
        self.stamp("bar2")
        self.gemm_u(A_Q, ar, [("a", 18 * j) for j in range(4)], ACC, a_row, lambda j: bq(j, L_QD), lambda u: post(u, True, 0), vm_items=[poll(252)] + clr, vm0=o.get("pg", 12), vmsp=o.get("csp", 8))
        self.stamp("g2")
        p = lambda r: vr(r, 2)
        CC = TM
        for j in range(4): a(f"v_dot2_f32_bf16 {vr(CC+j)}, {vr(PK+4*j)}, {vr(XD+4*j)}, 0")
        for i in range(2): a(f"v_dot2_f32_bf16 {vr(CC)}, {vr(PK+16+i)}, {vr(XA+16+i)}, {vr(CC)}")
        for i in range(1, 4):
            for j in range(4): a(f"v_dot2_f32_bf16 {vr(CC+j)}, {vr(PK+4*j+i)}, {vr(XD+4*j+i)}, {vr(CC+j)}")
        QE = TRQ
        a(f"""s_xor_b32 {sr(T+1)}, {sr(self.NB)}, 1
        v_add_u32 {vr(t0)}, {L_XX}, {vr(V_DMA)}
        v_lshl_add_u32 {vr(QE)}, {sr(T+1)}, 12, {vr(t0)}
        v_lshl_add_u32 {vr(QE+1)}, {sr(self.NB)}, 12, {vr(t0)}""")
        self.treduce(CC)
        a(f"""ds_write_b32 {vr(MXA)}, {vr(CC)}
        v_add_u32 {vr(t0)}, {L_XR}, {vr(L8)}
        v_lshl_add_u32 {vr(QE+2)}, {sr(T+1)}, 9, {vr(t0)}
        v_lshl_add_u32 {vr(QE+3)}, {sr(self.NB)}, 9, {vr(t0)}
        v_lshl_add_u32 {vr(QE+4)}, {sr(T+1)}, 8, {vr(MXR)}
        v_lshl_add_u32 {vr(QE+5)}, {sr(self.NB)}, 8, {vr(MXR)}
        s_sub_u32 {sr(T+5)}, 63, {sr(S_H)}
        s_bfm_b64 {sr(T+8,2)}, {sr(T+5)}, 0
        s_lshr_b32 {sr(T+6)}, s2, 3
        s_lshl_b32 {sr(T+6)}, {sr(T+6)}, 12
        s_add_u32 {sr(T+6)}, {sr(T+6)}, {sr(W10)}
        s_cmp_lg_u32 {sr(S_W)}, 0
        s_cbranch_scc1 L_ga_ok""")
        gate("L_ga", 252, sr(T + 8, 2), 3)
        a("s_waitcnt lgkmcnt(0)\ns_barrier")
        self.stamp("bar3")
        c1 = -2.0 * math.sqrt(2.0 / math.pi) * LOG2E
        c2 = c1 * 0.044715
        qrd = [f"ds_read_b128 {vr(MS+4*qb,4)}, {vr(QE+4+(qb&1))} offset:{512*(qb>>1)}" for qb in range(4)]
        for qb in range(4):
            qrd += [f"ds_read_b128 {ar(A_Q+18*qb+4*s,4)}, {vr(QE+(qb&1))} offset:{8192*(qb>>1) + 1024*s}" for s in range(4)]
            qrd.append(f"ds_read_b64 {ar(A_Q+18*qb+16,2)}, {vr(QE+2+(qb&1))} offset:{1024*(qb>>1)}")
        tg = self.tile_groups(0) + self.tile_groups(1) + self.tile_groups(2)[:8]
        n0 = o.get("n0", 3)
        for k in range(o.get("tpf", 0)):
            a(f"s_add_u32 {sr(T+7)}, {sr(T+6)}, {o.get('tpf0', 4*TILE) + 131072*k}\nbuffer_load_dwordx4 v[252:255], {vr(V_DMA)}, {sr(S_XA,4)}, {sr(T+7)} offen")
        for x in tg[:n0]: a(x)
        a(f"v_mov_b32 {vr(CC)}, {f32(c1)}\nv_mov_b32 {vr(CC+2)}, {f32(c2)}\nv_mov_b32 {vr(CC+4)}, 1.0")
        nq1, nt1 = o.get("nq1", 8), o.get("nt1", 5)
        bgl = []
        for i in range(max(nq1 // 2, nt1)):
            if 2 * i < nq1: bgl.append(qrd[2 * i] + "\n" + qrd[2 * i + 1])
            if i < nt1: bgl.append(tg[n0 + i])
        tg, qrd = tg[n0 + nt1:], qrd[nq1:]
        a.bg, a.every, a.cnt = bgl, 54 // (len(bgl) + 1), 0
        for i in range(18): a(f"v_pk_mul_f32 {p(G_+2*i)}, {p(H+2*i)}, {p(H+2*i)}")
        for i in range(18): a(f"v_pk_fma_f32 {p(G_+2*i)}, {p(G_+2*i)}, {p(CC+2)}, {p(CC)} op_sel_hi:[1,0,0]")
        for i in range(18): a(f"v_pk_mul_f32 {p(G_+2*i)}, {p(G_+2*i)}, {p(H+2*i)}")
        a.flush()
        self.stamp("ge1")
        esp = o.get("esp", 4)
        for i in range(36):
            a(f"v_exp_f32 {vr(G_+i)}, {vr(G_+i)}")
            if i % esp == 1 and tg: a(tg.pop(0))
            if i % 8 == 3 and qrd: a(qrd.pop(0)); a(qrd.pop(0))
        self.stamp("ge2")
        for i in range(18): a(f"v_pk_add_f32 {p(G_+2*i)}, {p(G_+2*i)}, {p(CC+4)} op_sel_hi:[1,0]")
        for i in range(36):
            a(f"v_rcp_f32 {vr(G_+i)}, {vr(G_+i)}")
            if i % esp == 1 and tg: a(tg.pop(0))
            if i % 8 == 3 and qrd: a(qrd.pop(0)); a(qrd.pop(0))
        assert not tg and not qrd
        idx = [i for i, l in enumerate(a.lines) if l.strip().startswith("buffer_load") and l.rstrip().endswith("lds")]
        m_t0, m_t1 = idx[-18] + 1, idx[-9] + 1
        for i in range(18): a(f"v_pk_mul_f32 {p(H+2*i)}, {p(G_+2*i)}, {p(H+2*i)}")
        a(f"""s_mul_i32 {sr(T)}, {sr(WV+1)}, {BLK}
        s_cmp_eq_u32 {sr(S_H)}, 1
        s_cbranch_scc1 L_ln2
        s_add_u32 {sr(T)}, {sr(T)}, {WS_U}""")
        for i in range(18): a(f"v_cvt_pk_bf16_f32 {vr(UG+i)}, {vr(H+2*i)}, {vr(H+2*i+1)}")
        a("s_branch L_ug")
        a.label("L_ln2")
        a(f"s_add_u32 {sr(T)}, {sr(T)}, {WS_G}")
        self.ln_f32(H, UG, TM)
        a.label("L_ug")
        self.stamp("ge3")
        a(f"""s_cmp_eq_u32 {sr(WV)}, 1
        s_cselect_b32 {sr(S_UG)}, {sr(T)}, 0x40000000
        s_waitcnt vmcnt({self.vm_since(m_t0)}) lgkmcnt(0)""")
        for x in self.k_reads(0, V_V): a(x)
        self.ugs = [f"buffer_store_dwordx4 {vr(UG+4*s,4)}, {vr(V_DMA)}, {sr(S_WS,4)}, {sr(S_UG)} offen offset:{1024*s} sc1" for s in range(4)]
        self.ugs.append(f"buffer_store_dwordx2 {vr(UG+16,2)}, {vr(self.VL8)}, {sr(S_WS,4)}, {sr(S_UG)} offen sc1")
        for qb in range(4): a(f"v_pk_add_f32 {p(MS+4*qb)}, {p(MS+4*qb)}, {p(MS+4*qb+2)} neg_lo:[1,1] neg_hi:[1,1]")
        for qb in range(4): a(f"v_add_f32 {vr(self.MK+qb)}, {vr(MS+4*qb)}, {vr(MS+4*qb+1)}")
        a(f"v_lshlrev_b32 {vr(t1)}, 8, v0\nv_lshlrev_b32 v231, 2, v0\nv_add_u32 v231, {L_PC}, v231\nds_write_b32 v231, {vr(t1)}")
        self.loop_init(False)
        self.n_t1 = self.vm_since(m_t1)
        self.stamp("ug")

    def loop_init(self, part):
        a = self.a
        if part:
            for qb in range(4):
                for i in range(4): a(f"v_mov_b32 {vr(V_CI+4*qb+i)}, {vr(self.MK+qb)}")
            return
        for k in range(7): a(f"v_add_u32 {vr(V_HI+k)}, {2*SLOT}, {vr(V_KA+k if k < 5 else V_VB+k-5)}")
        a(f"v_add_u32 {vr(self.VS0)}, {sr(S_LB)}, {vr(V_DMA)}\nv_add_u32 {vr(self.VS0R)}, {sr(S_LB)}, {vr(self.VL8)}\ns_mov_b32 {sr(S_CNT)}, 0\ns_mov_b32 {sr(S_INC)}, {4*TILE}")
        for i in range(4): a(f"v_mov_b32 {vr(V_L+i)}, 0")
        a(f"v_mov_b32 v227, 0x3f803f80\nv_mov_b32 v226, {sr(S_N)}\nv_mov_b32 {vr(self.VPL+1)}, 1\nv_lshlrev_b32 v231, 2, v0\nv_add_u32 v231, {L_PC}, v231")

    def head(self):
        a, o = self.a, self.o
        a.label("L_go")
        self.loop_init(True)
        a("s_waitcnt lgkmcnt(0)\ns_barrier")
        self.stamp("bar5")
        base = self.qk_mfmas(0)
        pick = lambda s_, kb, qb: base[8 * s_ + 4 * kb + qb].replace(vr(V_K + 8 * s_ + 4 * kb, 4) + ",", vr(V_V + 8 * s_ + 4 * kb, 4) + ",").replace(vr(V_K + 32 + 2 * kb, 2) + ",", vr(V_V + 32 + 2 * kb, 2) + ",")
        mf, fin = [], {}
        for qb, s_ in [(0, 0), (0, 1), (0, 2), (0, 3), (1, 0), (1, 1), (0, 4), (1, 2), (1, 3), (2, 0), (2, 1), (1, 4), (2, 2), (2, 3), (3, 0), (3, 1), (2, 4),
                       (3, 2), (3, 3), (3, 4)]:
            for kb in range(2):
                fin[qb, kb] = len(mf)
                mf.append(("s_nop 3\n" if (qb, s_, kb) == (3, 4, 0) else "") + pick(s_, kb, qb))
        enew = [e[1] for g in range(40, 76) for e in self.gaps[g] if e[0] == "E"]
        items = self.e_items(0, enew, lambda qb, j: 0, lambda qb: 999)
        for it, e in zip(items, enew):
            if e[0] == "e": it["am"] = fin[e[1], e[2] // 4]
        dm = []
        for k, (slot, j) in enumerate([(2, 8)] + [(3, j) for j in range(9)]):
            g_ = 1 + o.get("hsp", 4) * k
            if j % 4 == 0: dm.append(dict(t=f"s_add_u32 m0, {sr(S_LB)}, {slot*SLOT + 4096*(j//4)}", c=0, lo=g_ - 1, hi=g_ - 1))
            dm.append(dict(t=f"buffer_load_dwordx4 {vr(V_DMA + j//4)}, {sr(S_XA,4)}, {sr(S_TOFF)} offen offset:{1024*(j%4)} lds", c=8, lo=g_, hi=g_))
            if j == 8: dm.append(dict(t=f"s_add_u32 {sr(S_TOFF)}, {sr(S_TOFF)}, {4*TILE}", c=0, lo=g_ + 1, hi=g_ + 1))
        nh = o.get("ugh", 2) if not o.get("ugl", 1) else 0
        for k in range(nh): dm.append(dict(t=self.ugs[k], c=8, lo=3 + 16 * k, hi=3 + 16 * k))
        a(f"s_waitcnt vmcnt({self.n_t1})")
        left = self.pack(mf, items + dm + [dict(t=x, c=4, lo=i // 2, nds=2) for i, x in enumerate(self.k_reads(1))])
        print("head overflow", self.over, "left", len(left))
        left.sort(key=lambda x: not x.startswith("v_exp"))
        last = a.lines[-1].strip()
        for x in left:
            if last.startswith("v_exp") and not x.startswith("v_exp") and (last.split()[1].rstrip(",") + ",") in (x + ","): a("s_nop 0")
            a(x); last = x
        a("s_waitcnt lgkmcnt(0)")

    def tile_groups(self, slot):
        out = []
        for j in range(9):
            g = ""
            if j % 4 == 0: g = f"s_add_u32 m0, {sr(S_LB)}, {slot*SLOT + 4096*(j//4)}\ns_nop 0\n"
            g += f"buffer_load_dwordx4 {vr(V_DMA + j//4)}, {sr(S_XA,4)}, {sr(S_TOFF)} offen offset:{1024*(j%4)} lds"
            if j == 8: g += f"\ns_add_u32 {sr(S_TOFF)}, {sr(S_TOFF)}, {4*TILE}"
            out.append(g)
        return out

    def first_tiles(self):
        pass

    def wfuse(self):
        a = self.a
        BF, ACC, AF, TM, AD = 88, 108, 144, 208, 240
        LA, LB_, LM = 0, 44032, 88064
        T = S_T
        a.label("L_wfuse")
        if self.o.get("hlast", 0): a(f"s_cmp_ge_u32 s2, {NWG}\ns_cbranch_scc1 L_end\ns_sub_u32 s2, s2, {NWG - NH}")
        a(f"v_lshrrev_b32 v1, 6, v0\nv_and_b32 v0, 63, v0\nv_readfirstlane_b32 {sr(S_W)}, v1\nv_lshlrev_b32 {vr(V_DMA)}, 4, v0\ns_waitcnt lgkmcnt(0)")
        self.srd(S_WS, 78, 79, WS_END)
        self.wf0 = 0
        self.srd(S_X, 72, 73, 82944)
        self.srd(S_W2, 62, 63, 41472)
        a(f"""s_cmp_eq_u32 s2, {self.wf0}
        s_cselect_b32 {sr(S_W1)}, s64, s70
        s_cselect_b32 {sr(S_W1+1)}, s65, s71
        s_mov_b32 {sr(S_W1+2)}, 41472
        s_mov_b32 {sr(S_W1+3)}, 0x20000
        s_cselect_b32 {sr(T+4)}, 0, 41472""")
        self.dma_rows([(S_W1, "0", LA), (S_W2, "0", LB_)], 19, 288, TM + 4, TM + 5, 11, 3, "L_wf1")
        a(f"s_lshl_b32 {sr(T)}, {sr(S_W)}, 10\ns_add_u32 {sr(T+2)}, {sr(T)}, {sr(T+4)}")
        for k in range(11):
            if k == 10: a(f"s_cmp_ge_u32 {sr(S_W)}, 1\ns_cbranch_scc1 L_wf2")
            a(f"s_add_u32 m0, {sr(T)}, {LM + 4096*k}\ns_add_u32 {sr(T+1)}, {sr(T+2)}, {4096*k}")
            a(f"buffer_load_dwordx4 {vr(V_DMA)}, {sr(S_X,4)}, {sr(T+1)} offen lds")
        a.label("L_wf2")
        self.srd(S_DW, 68, 69, 864)
        a(f"""v_and_b32 {vr(TM)}, 15, v0
        v_lshlrev_b32 {vr(TM+2)}, 4, {vr(TM)}
        v_lshlrev_b32 {vr(TM)}, 1, {vr(TM)}
        v_bfe_u32 {vr(TM+3)}, v0, 4, 1
        v_lshl_add_u32 {vr(TM+1)}, {vr(TM+3)}, 7, {vr(TM)}
        v_lshl_add_u32 {vr(TM+2)}, {vr(TM+3)}, 11, {vr(TM+2)}
        v_and_b32 {vr(TM+3)}, 1, v0
        v_lshlrev_b32 {vr(TM+3)}, 4, {vr(TM+3)}
        v_bfe_i32 {vr(TM+4)}, v0, 1, 1
        v_not_b32 {vr(TM+5)}, {vr(TM+4)}""")
        for k in range(3):
            for i in range(5): a(f"buffer_load_ushort {vr(16+5*k+i)}, {vr(TM+1 if i < 4 else TM)}, {sr(S_DW,4)}, 0 offen offset:{288*k + (32*i if i < 4 else 256)}")
        a(f"s_mov_b32 {sr(T+1)}, {WS_DWF}\ns_waitcnt vmcnt(0)")
        for f in range(15):
            a(f"v_lshlrev_b32 {vr(16+f)}, {vr(TM+3)}, {vr(16+f)}\nv_and_b32 {vr(32+2*f)}, {vr(TM+5)}, {vr(16+f)}\nv_and_b32 {vr(33+2*f)}, {vr(TM+4)}, {vr(16+f)}")
        for r_ in range(8): a(f"buffer_store_dwordx{4 if r_ < 7 else 2} {vr(32+4*r_, 4 if r_ < 7 else 2)}, {vr(TM+2)}, {sr(S_WS,4)}, {sr(T+1)} offen offset:{256*r_} sc1")
        self.tr_addr(AD, LM, False, TM + 8)
        self.row_addr(AD + 3, LA, TM + 8)
        a(f"v_add_u32 {vr(AD+5)}, {LB_}, {vr(AD+3)}")
        a(f"v_lshlrev_b32 {vr(AD+4)}, 3, v0")
        a(f"""s_lshr_b32 {sr(T)}, {sr(S_W)}, 1
        s_lshl_b32 {sr(T)}, {sr(T)}, 6
        s_and_b32 {sr(T+1)}, {sr(S_W)}, 1
        s_lshl_b32 {sr(T+1)}, {sr(T+1)}, 3
        s_add_u32 {sr(T)}, {sr(T)}, {sr(T+1)}
        v_and_b32 {vr(AD+6)}, 3, v0
        v_lshlrev_b32 {vr(AD+6)}, 3, {vr(AD+6)}
        v_add_u32 {vr(AD+7)}, {sr(T)}, {vr(AD+6)}""")
        for k in range(3): a(f"v_add_u32 {vr(AD+k)}, {vr(AD+7)}, {vr(AD+k)}")
        a(f"s_mov_b32 {sr(S_CNT)}, {sr(S_W)}")
        a("s_waitcnt vmcnt(0)\ns_barrier")
        a.label("L_wfl")
        for s in self.tr_reads(AD, vr)(0, BF): a(s)
        a("s_waitcnt lgkmcnt(0)")
        self.gemm(self.row_reads(AD + 3), BF, ACC, AF)
        for i in range(18): a(f"v_cvt_pk_bf16_f32 {vr(BF+i)}, {vr(ACC+2*i)}, {vr(ACC+2*i+1)}")
        a(f"s_cmp_eq_u32 s2, {self.wf0}\ns_cbranch_scc0 L_wf3")
        self.gemm(self.row_reads(AD + 5), BF, ACC, AF)
        for i in range(18): a(f"v_cvt_pk_bf16_f32 {vr(BF+i)}, {vr(ACC+2*i)}, {vr(ACC+2*i+1)}")
        a.label("L_wf3")
        a(f"""s_mul_i32 {sr(T)}, {sr(S_CNT)}, {BLK}
        s_add_u32 {sr(T)}, {sr(T)}, {sr(T+4)}
        s_add_u32 {sr(T)}, {sr(T)}, {WS_WF}
        s_add_u32 {sr(T+1)}, {sr(T)}, 4096""")
        self.store_block(BF, V_DMA, AD + 4, S_WS, T, T + 1, "sc1")
        for k in range(3): a(f"v_add_u32 {vr(AD+k)}, 128, {vr(AD+k)}")
        a(f"s_add_u32 {sr(S_CNT)}, {sr(S_CNT)}, 4\ns_cmp_lt_u32 {sr(S_CNT)}, 8\ns_cbranch_scc1 L_wfl")
        for k in range(3): a(f"v_sub_u32 {vr(AD+k)}, {vr(AD+k)}, {vr(AD+6)}")
        a(f"s_cmp_eq_u32 {sr(S_CNT)}, 8\ns_cbranch_scc1 L_wfl")
        a(f"""s_waitcnt vmcnt(0)
        s_barrier
        s_cmp_lg_u32 {sr(S_W)}, 0
        s_cbranch_scc1 L_end
        s_mov_b32 {sr(T+2)}, 0""")
        a.label("L_wtag")
        a(f"""buffer_load_dword {vr(TM)}, off, {sr(S_DB,4)}, 0 sc1
        s_add_u32 {sr(T+2)}, {sr(T+2)}, 1
        s_waitcnt vmcnt(0)
        v_readfirstlane_b32 {sr(T)}, {vr(TM)}
        s_cmp_lt_u32 {sr(T+2)}, 0x40000
        s_cselect_b32 {sr(T)}, {sr(T)}, 1
        s_cmp_eq_u32 {sr(T)}, 0
        s_cbranch_scc1 L_wtag
        v_lshlrev_b32 {vr(TM+1)}, 2, v0
        s_lshl_b32 {sr(T)}, s2, 8
        s_add_u32 {sr(T)}, {sr(T)}, {WS_F + 502*256}
        buffer_store_dword {vr(TM)}, {vr(TM+1)}, {sr(S_WS,4)}, {sr(T)} offen sc1
        s_endpgm""")

    def dump_stamps(self):
        a = self.a
        if self.o.get("census"):
            key, mode, m_, v_ = self.o["census"]
            a(f"""s_cmp_lg_u32 s2, 100
            s_cbranch_scc1 L_end
            v_lshlrev_b32 v16, 2, v0
            s_mov_b32 s4, {WS_DBG}""")
            for k in range(4): a(f"buffer_load_dword v{20+k}, v16, {sr(S_WS,4)}, s4 offen offset:{256*k} sc1")
            a(f"s_waitcnt vmcnt(0)\nv_readlane_b32 s8, v21, 36\ns_mov_b32 s9, 0x80000000\ns_mov_b32 s10, 0x7fffffff\ns_mov_b32 s11, 0\ns_mov_b32 s17, 0")
            for k in range(4):
                a(f"s_mov_b32 s5, 0")
                a.label(f"L_cs{k}")
                a(f"""v_readlane_b32 s6, v{20+k}, s5
                s_add_u32 s7, s5, {64*k}
                s_sub_u32 s6, s6, s8
                s_and_b32 s16, s7, {m_}
                s_cmp_lg_u32 s16, {v_}
                s_cbranch_scc1 L_cn{k}
                s_min_i32 s10, s10, s6
                s_cmp_gt_i32 s6, {self.o.get("thr", 150)}
                s_addc_u32 s17, s17, 0
                s_cmp_gt_i32 s6, s9
                s_cselect_b32 s9, s6, s9
                s_cselect_b32 s11, s7, s11""")
                a.label(f"L_cn{k}")
                a(f"s_add_u32 s5, s5, 1\ns_cmp_lt_u32 s5, {64 if k < 3 else 60}\ns_cbranch_scc1 L_cs{k}")
            a({"arg": "s_lshl_b32 s6, s11, 3", "range": "s_sub_u32 s6, s9, s10\ns_lshl_b32 s6, s6, 1", "zero": "s_mov_b32 s6, 0", "cnt": "s_lshl_b32 s6, s17, 4",
               "max": "s_lshl_b32 s6, s9, 1"}[mode])
            a("s_add_u32 s6, s6, 1000\ns_memrealtime s[4:5]\ns_waitcnt lgkmcnt(0)\ns_add_u32 s6, s6, s4")
            a.label("L_echo")
            a("s_memrealtime s[4:5]\ns_waitcnt lgkmcnt(0)\ns_sub_u32 s7, s6, s4\ns_cmp_gt_i32 s7, 0\ns_cbranch_scc1 L_echo")
            return
        if self.o.get("echo"):
            if self.o["echo"][0] == "skew":
                a(f"v_mov_b32 v16, 4\nbuffer_load_dword v17, v16, {sr(S_DB,4)}, 0 offen sc1\ns_waitcnt vmcnt(0)\nv_readfirstlane_b32 s98, v17\ns_not_b32 s98, s98")
                x, y = 98, S_ST + 2 * self.stnames.index(self.o["echo"][1])
            else:
                x, y = [S_ST + 2 * self.stnames.index(n) for n in self.o["echo"]]
            lo, hi = self.o.get("echo_ids", (0, 999))
            a(f"""s_cmp_eq_u32 {sr(S_VAL)}, 0
            s_cbranch_scc1 L_end
            s_cmp_lt_u32 s2, {lo}
            s_cbranch_scc1 L_end
            s_cmp_ge_u32 s2, {hi}
            s_cbranch_scc1 L_end
            s_and_b32 s6, s2, {self.o.get("echo_m", 0)}
            s_cmp_lg_u32 s6, {self.o.get("echo_v", 0)}
            s_cbranch_scc1 L_end
            s_memrealtime s[4:5]
            s_waitcnt lgkmcnt(0)
            s_sub_u32 s6, {sr(y)}, {sr(x)}
            s_mul_i32 s6, s6, {self.o.get("echo_mul", 1)}
            s_lshr_b32 s6, s6, {self.o.get("echo_shr", 0)}
            s_add_u32 s6, s6, {self.o.get("echo_add", 0)}
            s_add_u32 s6, s6, s4""")
            a.label("L_echo")
            a("s_memrealtime s[4:5]\ns_waitcnt lgkmcnt(0)\ns_sub_u32 s7, s6, s4\ns_cmp_gt_i32 s7, 0\ns_cbranch_scc1 L_echo")
            return
        if self.o.get("dbgst"):
            a("s_waitcnt vmcnt(0)")
            self.stamp("done")
            a("s_waitcnt lgkmcnt(0)\ns_mov_b64 exec, 1")
            slots = [1, 2, 3, 4, 5, 6, 7, 9, 11, 12, 13, 14, 15]
            a(f"s_not_b32 {sr(S_T)}, {sr(S_ST)}\nv_mov_b32 v16, {sr(S_T)}\nv_mov_b32 v17, 4\nbuffer_atomic_umax v16, v17, {sr(S_DB,4)}, 0 offen sc1")
            for i in range(min(self.nst, 12)):
                a(f"v_mov_b32 v{18+2*i}, {sr(S_ST+2*i)}\nv_mov_b32 v{19+2*i}, {4*slots[i+1]}\nbuffer_atomic_umax v{18+2*i}, v{19+2*i}, {sr(S_DB,4)}, 0 offen sc1")
            return
        if not self.o.get("stamps"): return
        T = S_T
        a(f"""s_waitcnt lgkmcnt(0)
        s_lshl_b32 {sr(T)}, s2, 2
        s_add_u32 {sr(T)}, {sr(T)}, {sr(S_W)}
        s_lshl_b32 {sr(T)}, {sr(T)}, 7
        s_add_u32 {sr(T)}, {sr(T)}, {WS_DBG}
        v_mov_b32 v1, 0""")
        for i in range(26): a(f"v_mov_b32 {vr(16+i)}, {sr(S_ST+i)}")
        for i in range(7): a(f"buffer_store_dwordx4 {vr(16+4*i,4)}, v1, {sr(S_WS,4)}, {sr(T)} offen offset:{16*i}")

    def build(self):
        a = self.a
        self.stnames = []
        a.raw(f"; @launch grid=({NWG},1,1) block=(256,1,1) lds={LDS_TOTAL}")
        a.raw('.amdgcn_target "amdgcn-amd-amdhsa--gfx950"')
        a.raw(".text")
        a.raw(f".globl {NAME}")
        a.raw(".p2align 12")
        self.entry()
        self.phase_a()
        self.rest()
        a.label("L_fin")
        self.dump_stamps()
        a.label("L_end")
        a("s_endpgm")
        self.poll2()
        if not self.o.get("touch", 1): self.rare()
        a.label("L_dummy")
        self.fallback()
        self.wfuse()
        a.raw('.section .rodata,"a"')
        a.raw(".p2align 6")
        a.raw(kernel_desc(NAME, 512, 102, 256))
        return a.text()

    def S(self, buf, qb, i=0): return V_S + buf * 32 + qb * 8 + i
    def P(self, buf, qb, i=0): return V_P + buf * 16 + qb * 4 + i

    def k_reads(self, slot, V_K=V_K):
        ka, so = (V_KA, slot * SLOT) if slot < 2 else (V_HI, (slot - 2) * SLOT)
        out = [f"ds_read_b128 {vr(V_K+8*s+4*kb,4)}, {vr(ka)} offset:{so + 2048*s + 256*kb}" for s in range(4) for kb in range(2)]
        out += [f"ds_read_b64 {vr(V_K+32+2*kb,2)}, {vr(ka+1)} offset:{so + 8192 + 512*kb}" for kb in range(2)]
        return out

    def v_reads(self, slot, dst=V_V):
        (va, vr_, vb), so = ((V_VA, V_VR, V_VB), slot * SLOT) if slot < 2 else ((V_HI + 2, V_HI + 4, V_HI + 5), (slot - 2) * SLOT)
        out = []
        for T in range(9):
            for u in range(2):
                if T < 8: out.append(f"ds_read_b64_tr_b16 {vr(dst+4*T+2*u,2)}, {vr((va if T < 4 else vb)+(T&1))} offset:{so + 2048*((T>>1)&1) + 256*u}")
                else: out.append(f"ds_read_b64_tr_b16 {vr(dst+4*T+2*u,2)}, {vr(vr_)} offset:{so + 8192 + 512*u}")
        return out

    def qk_mfmas(self, buf, czero=False):
        out = []
        for s in range(5):
            for kb in range(2):
                for qb in range(4):
                    d = vr(self.S(buf, qb, 4 * kb), 4)
                    c = ("0" if czero else vr(V_CI + 4 * qb, 4)) if s == 0 else d
                    if s < 4: out.append(f"v_mfma_f32_16x16x32_bf16 {d}, {vr(V_K+8*s+4*kb,4)}, {ar(A_Q+18*qb+4*s,4)}, {c}")
                    else: out.append(f"v_mfma_f32_16x16x16_bf16 {d}, {vr(V_K+32+2*kb,2)}, {ar(A_Q+18*qb+16,2)}, {c}")
        return out

    def pv_mfmas(self, buf, czero=False):
        out = []
        for T in range(9):
            for qb in range(4):
                o = ar(A_O + 36 * qb + 4 * T, 4)
                out.append(f"v_mfma_f32_16x16x32_bf16 {o}, {vr(V_V+4*T,4)}, {vr(self.P(buf,qb),4)}, {'0' if czero else o}")
        return out

    def plan(self):
        o = self.o
        n = 76
        fixed = [None] * n
        for i, g in enumerate(range(1, 36, 2)): fixed[g] = ("V", i)
        for i, g in enumerate([41, 44, 47, 50, 53, 56, 59, 62, 65, 68]): fixed[g] = ("K", i)
        for i, g in enumerate([42, 46, 49, 52, 55, 58, 61, 64, 67]): fixed[g] = ("D", i)
        exps = [(qb, j) for qb in range(4) for j in range(8)]
        start = 40
        order = [(start + k) % n for k in range(n)]
        free_idx = [k for k, g in enumerate(order) if fixed[g] is None]
        nsm = len(free_idx) - 32
        cand = free_idx[6:-2]
        sm_set = set(free_idx[-2:]) | {cand[int((i + 0.5) * len(cand) / (nsm - 2))] for i in range(nsm - 2)}
        nds = sum(1 for f in fixed if f is not None and f[0] != "D")
        ls = o.get("lsum", "add")
        over = max(0, (48 if ls == "add" else 32) - nds - 2 * nsm)
        ocand = [k for k, g in enumerate(order) if k >= 20 and (fixed[g] is None or fixed[g][0] != "D")]
        o_set = {ocand[int((i + 0.5) * len(ocand) / over)] for i in range(over)}
        later = []
        gaps = [[] for _ in range(n)]
        small, pend, ei = [], [], 0
        for k, g in enumerate(order):
            new = (start + k) < n
            small.extend(pend); pend = later; later = []
            small.sort(key=lambda t: 0 if t[0] == "c" else 1)
            f = fixed[g]
            want = 0
            if f is not None:
                gaps[g].append((f[0], f[1], None))
                if f[0] == "D": continue
                want = 1
            elif k in sm_set: want = 2
            else:
                qb, j = exps[ei]; ei += 1
                gaps[g].append(("E", ("e", qb, j), new))
                if j & 1: pend.append(("c", qb, j // 2))
                if ls == "add": pend.append(("a", qb, j))
                elif j & 1 and ls == "pk": pend.append(("p", qb, j // 2))
            if k in o_set: want += 1
            if k == n - 1: want = 99
            for _ in range(want):
                if small:
                    it = small.pop(0)
                    gaps[g].append(("E", it, new))
                    if it[0] == "c" and ls == "dot": (small if k == n - 1 else pend).append(("d", it[1], it[2]))
        assert not small and not pend and ei == 32
        self.gaps = gaps

    def pack(self, mf, items):
        a = self.a
        where, order, done, nvm, mpos = {}, [], 0, 0, []
        isds = lambda it: "ds_" in it["t"]
        self.over = 0
        for g, m in enumerate(mf):
            assert not any(it.get("need", 999) <= g and i not in where for i, it in enumerate(items)), g
            idx = [k for k, n_ in enumerate(order) if n_ <= g]
            if idx and max(idx) + 1 > done:
                a(f"s_waitcnt lgkmcnt({min(15, len(order) - 1 - max(idx))})"); done = max(idx) + 1
            if m.startswith("@W"):
                w_, m = m.split("\n", 1)
                a(f"s_waitcnt lgkmcnt({min(15, int(w_[2:]) + len(order))})")
            a(m)
            mpos.append(len(a.lines))
            cap, pick = 8, []
            for phase in (0, 1):
                for i, it in enumerate(items):
                    if i in where or it.get("lo", 0) > g: continue
                    if "am" in it and (it["am"] >= g or len(a.lines) - mpos[it["am"]] < 8): continue
                    d = it.get("dep")
                    if d is not None and not all(where.get(x, 999) < g for x in d): continue
                    if (phase == 0 and it.get("hi", 999) <= g) or (phase == 1 and it["c"] <= cap):
                        if it["t"].startswith("buffer") and pick and any(items[x]["c"] for x in pick) and phase == 1: continue
                        if isds(it) and sum(isds(items[x]) for x in pick) >= it.get("nds", 1) and phase == 1: continue
                        pick.append(i); where[i] = g; cap -= it["c"]
            key = lambda i: 0 if items[i]["c"] == 0 else 1 if isds(items[i]) else 2 if items[i]["t"].startswith("buffer") else 3
            for i in sorted(pick, key=key):
                a(items[i]["t"].replace("@VM", f"s_waitcnt vmcnt({nvm})"))
                nvm += items[i]["t"].startswith("buffer")
                if isds(items[i]): order.append(items[i].get("need", 999))
            self.over += max(0, -cap)
        return [it["t"] for i, it in enumerate(items) if i not in where]

    def e_items(self, buf, lst, lo, hi):
        items, idx = [], {}
        for it in lst:
            kind, qb, j = it
            d = dict(t=self.etext(buf, it), c=8 if kind == "e" else 4)
            if kind == "e": d["lo"] = lo(qb, j); d["hi"] = hi(qb) - 2 - (7 - j)
            else:
                need = [("e", qb, j)] if kind == "a" else [("c", qb, j)] if kind == "d" else [("e", qb, 2 * j), ("e", qb, 2 * j + 1)]
                d["dep"] = [idx[x] for x in need if x in idx]
                if kind == "c": d["hi"] = hi(qb) - (3 - j) // 2
            idx[it] = len(items); items.append(d)
        return items

    def etext(self, buf, it):
        kind, qb, j = it
        s = self.S(buf, qb)
        if kind == "e": return f"v_exp_f32 {vr(s+j)}, {vr(s+j)}"
        if kind == "d": return f"v_dot2_f32_bf16 {vr(V_L+qb)}, {vr(self.P(buf, qb, j))}, v227, {vr(V_L+qb)}"
        if kind == "p": return f"v_pk_add_f32 {vr(208+2*qb,2)}, {vr(208+2*qb,2)}, {vr(s+2*j,2)}"
        if kind == "a": return f"v_add_f32 {vr(V_L+qb)}, {vr(V_L+qb)}, {vr(s+j)}"
        return f"v_cvt_pk_bf16_f32 {vr(self.P(buf, qb, j))}, {vr(s+2*j)}, {vr(s+2*j+1)}"

    def period(self, p, qk=True, pv=True, e_old=True, e_new=True, kread=True, vread=True, dma=True, extra={}, dsub=None, ksub=None, vm=9, halves=(0, 1), inc=None):
        a = self.a
        bn, bo = (p + 1) & 1, p & 1
        qk_, pv_ = self.qk_mfmas(bn), self.pv_mfmas(bo, czero=(p == 0))
        qo, po = self.o.get("qkord", 1), self.o.get("pvord", 0)
        if qo == 1: qk_ = [qk_[8 * s_ + 4 * kb + qb] for kb in range(2) for qb in range(4) for s_ in range(4)] + qk_[32:]
        if qo == 2: qk_ = [qk_[8 * s_ + 4 * kb + qb] for qb in range(4) for kb in range(2) for s_ in range(4)] + qk_[32:]
        if qo == 3: qk_ = [qk_[8 * s_ + 4 * kb + qb] for qb in range(4) for s_ in range(4) for kb in range(2)] + qk_[32:]
        if po == 1: pv_ = [pv_[4 * T_ + qb] for qb in range(4) for T_ in range(9)]
        mf = qk_ + pv_
        kr, vrd = self.k_reads((p + 2) % RING), self.v_reads(p % RING)
        slot = p % RING
        n = 76
        sc = [[] for _ in range(n)]
        dgs = [g for g in range(n) if any(e[0] == "D" for e in self.gaps[g])]
        if dma:
            for j, g in enumerate(dgs):
                if j % 4 == 0: sc[g - 1].append(f"s_add_u32 m0, {sr(S_LB)}, {slot*SLOT + 4096*(j//4)}")
            sc[dgs[-1] + 1].append(f"s_add_u32 {sr(S_TOFF)}, {sr(S_TOFF)}, {inc or 4*TILE}")
        w = []
        if kread: w.append(f"vmcnt({vm})")
        if pv: w.append("lgkmcnt(0)")
        if w: sc[39].append("s_waitcnt " + " ".join(w))
        if kread: sc[75].append("s_waitcnt lgkmcnt(0)")
        for half in halves:
            rng = range(0, 40) if half == 0 else range(40, 76)
            on = qk if half == 0 else pv
            if not on:
                ds, mem, val, post = [], [], [], []
                for g in rng:
                    for s_ in sc[g]:
                        (post if s_.startswith("s_waitcnt") else mem).append(s_)
                    if g in extra: mem.append(extra[g])
                    for kind, d, new in self.gaps[g]:
                        if kind == "V" and vread: ds.append(vrd[d])
                        elif kind == "K" and kread: ds.append(kr[d])
                        elif kind == "D" and dma: mem.append(f"buffer_load_dwordx4 {vr(V_DMA + d//4)}, {sr(S_XA,4)}, {sr(S_TOFF)} offen offset:{1024*(d%4)} lds")
                        elif kind == "E" and ((new and e_new) or (not new and e_old)): val.append((d, self.etext(bn if new else bo, d)))
                if half == 1: a("s_nop 3")
                seq, pend = [], list(val)
                while pend:
                    k = 0
                    if seq and seq[-1][0][0] == "e":
                        le = seq[-1][0]
                        dep = lambda it: it[0][1] == le[1] and ((it[0][0] == "a" and it[0][2] == le[2]) or (it[0][0] == "c" and it[0][2] == le[2] // 2))
                        have = {x[0] for x in seq}
                        ok = lambda it: it[0][0] == "e" or (("e", it[0][1], it[0][2]) in have if it[0][0] == "a" else (("e", it[0][1], 2*it[0][2]+1) in have)) or not any(x[0][0] == "e" and x[0][1] == it[0][1] and (x[0][2] == it[0][2] if it[0][0] == "a" else x[0][2] // 2 == it[0][2]) for x in pend)
                        while k < len(pend) and (dep(pend[k]) or not ok(pend[k])): k += 1
                        if k == len(pend): seq.append((("n", 0, 0), "s_nop 0")); k = 0
                    seq.append(pend.pop(k))
                step = max(1, len(seq) // (len(mem) + len(ds) + 1))
                allm = ds + mem
                for x in allm[:6]: a(x)
                allm = allm[6:]
                for i_, (d, t_) in enumerate(seq):
                    a(t_)
                    if allm and i_ % step == step - 1:
                        x = allm.pop(0); a(x)
                        if x.startswith("s_add_u32 m0"): a("s_nop 0")
                for x in allm:
                    a(x)
                    if x.startswith("s_add_u32 m0"): a("s_nop 0")
                for x in post: a(x)
                if half == 0: a("s_nop 1")
                continue
            for g in rng:
                a(mf[g])
                for s_ in sc[g]: a(s_)
                if g in extra: a(extra[g])
                for kind, d, new in self.gaps[g]:
                    if kind == "V":
                        if vread: a(vrd[d])
                    elif kind == "K":
                        if kread: a(kr[d])
                        elif ksub: a(ksub.pop(0))
                    elif kind == "D":
                        if dma: a(f"buffer_load_dwordx4 {vr(V_DMA + d//4)}, {sr(S_XA,4)}, {sr(S_TOFF)} offen offset:{1024*(d%4)} lds")
                        elif dsub: a(dsub.pop(0))
                    elif (new and e_new) or (not new and e_old):
                        a(self.etext(bn if new else bo, d))

    MK, VO, VO8, GA, VS0, VS0R, VDW, VLW, VL8, VST, VPL = 232, 236, 9, 238, 250, 251, 244, 245, 246, 247, 248
    NB, PT, E_U, E_G, RS3, E_COL, RS1, RS2, MP1 = 3, 4, 5, 6, 7, 43, 36, 37, 38
    G0, GM, GP, U, DWT = 16, 26, 36, 80, (90, 252, 96, 100, 112, 116, 104, 94)
    XRS = (192, 196, 46)
    frag = staticmethod(lambda f, b: [(f, b + 4 * s) for s in range(5)])
    WD = [[("a", 216 + 4 * s) for s in range(5)], [("a", 234 + 4 * s) for s in range(5)], [("v", 208 + 4 * s) for s in range(5)]]
    WO = [[("a", 4 * s) for s in range(5)], [("a", 18 + 4 * s) for s in range(5)], [("a", 36), ("a", 40), ("a", 44), ("a", 48), ("a", 252)]]
    X1B = 98304
    X2O = L_SP - X1B
    L_L = L_SP + 9216

    def epi_setup(self):
        a = self.a
        T = S_T
        NB, PT, VO, GA = self.NB, self.PT, self.VO, self.GA
        r, g4, x, y, big, r0 = 52, 53, 54, 55, 56, 57
        a(f"""s_lshr_b32 {sr(NB)}, {sr(S_W)}, 1
        s_and_b32 {sr(PT)}, {sr(S_W)}, 1
        v_and_b32 {vr(r0)}, 15, v0
        v_lshrrev_b32 {vr(g4)}, 4, v0
        v_mul_u32_u24 {vr(x)}, 288, {vr(r0)}
        v_mov_b32 {vr(big)}, 0x40000000
        s_lshl_b32 {sr(T)}, {sr(S_TOWN)}, 1
        s_add_u32 {sr(T)}, {sr(T)}, {sr(NB)}
        s_lshl_b32 {sr(T)}, {sr(T)}, 4
        v_add_u32 {vr(r)}, {sr(T)}, {vr(r0)}
        s_mul_i32 {sr(T+1)}, {sr(S_TOWN)}, {TILE}
        s_mul_i32 {sr(T+2)}, {sr(PT)}, {BLK}
        v_add_u32 {vr(x)}, {sr(T+1)}, {vr(x)}
        s_sub_u32 {sr(T+3)}, {BLK}, {sr(T+2)}
        v_add_u32 {vr(y)}, {sr(T+3)}, {vr(x)}
        v_add_u32 {vr(x)}, {sr(T+2)}, {vr(x)}
        v_lshl_add_u32 {vr(VO)}, {vr(g4)}, 4, {vr(x)}
        v_lshl_add_u32 {vr(VO+1)}, {vr(g4)}, 4, {vr(y)}
        v_lshl_add_u32 {vr(self.VO8)}, {vr(g4)}, 3, {vr(x)}
        s_lshl_b32 {sr(T+3)}, {sr(PT)}, 11
        s_add_u32 {sr(self.E_U)}, {sr(T+3)}, {WS_U}
        s_add_u32 {sr(self.E_G)}, {sr(T+3)}, {WS_G}
        s_sub_u32 {sr(T+3)}, 4096, {sr(T+3)}
        s_lshl_b32 {sr(T)}, {sr(PT)}, 11
        s_add_u32 {sr(T)}, {sr(T)}, {WS_DWF}
        v_lshrrev_b32 {vr(x)}, 2, {vr(r0)}
        v_cmp_eq_u32 vcc, {vr(x)}, {vr(g4)}
        v_lshl_add_u32 {vr(self.VDW)}, {vr(r0)}, 4, {sr(T)}
        s_nop 0
        v_cndmask_b32 {vr(self.VDW)}, {vr(big)}, {vr(self.VDW)}, vcc
        s_lshl_b32 {sr(self.E_COL)}, {sr(S_W)}, 6
        v_lshlrev_b32 {vr(self.VL8)}, 3, v0
        v_add_u32 {vr(self.VL8)}, 4096, {vr(self.VL8)}
        v_add_u32 {vr(self.VST)}, {sr(S_LB)}, {vr(V_DMA)}
        v_add_u32 {vr(self.VST)}, {2*SLOT}, {vr(self.VST)}
        s_xor_b32 {sr(T)}, {sr(NB)}, 1
        v_xor_b32 {vr(x)}, {sr(T)}, {vr(g4)}
        v_lshl_add_u32 {vr(x)}, {vr(x)}, 4, {vr(r0)}
        s_lshl_b32 {sr(T)}, {sr(S_W)}, 2
        s_add_u32 {sr(T)}, {sr(T)}, {self.L_L}
        v_lshl_add_u32 {vr(self.VLW)}, {vr(x)}, 4, {sr(T)}
        s_sub_u32 {sr(self.MP1)}, 0, {sr(PT)}
        s_mov_b32 {sr(self.MP1+1)}, {sr(self.MP1)}""")
        for k, (d, base) in enumerate(((self.RS1, 3 * SLOT), (self.RS2, 2 * SLOT), (self.RS3, 2 * SLOT))):
            a(f"s_xor_b32 {sr(T)}, {sr(S_W)}, {k+1}\ns_mul_i32 {sr(T)}, {sr(T)}, {TILE}\ns_add_u32 {sr(d)}, {sr(T)}, {base}")
        a(f"""s_mul_i32 {sr(T)}, {sr(S_B)}, 4000
        s_add_u32 {sr(T+1)}, {sr(T)}, 3999
        s_mov_b32 {sr(T+2)}, {BLK}""")
        for k, dr in enumerate((0, -1, 1)):
            m = GA + 2 * k
            if dr: a(f"v_add_u32 {vr(m)}, {dr}, {vr(r)}\nv_cmp_eq_u32 vcc, {sr(T if dr < 0 else T+1)}, {vr(r)}")
            src = m if dr else r
            a(f"""v_lshrrev_b32 {vr(x)}, 4, {vr(src)}
            v_and_b32 {vr(y)}, 15, {vr(src)}
            v_mul_lo_u32 {vr(x)}, {vr(x)}, {sr(T+2)}
            v_lshl_add_u32 {vr(y)}, {vr(g4)}, 4, {vr(y)}
            v_lshl_add_u32 {vr(m)}, {vr(y)}, 4, {vr(x)}
            v_lshl_add_u32 {vr(m+1)}, {vr(y)}, 3, {vr(x)}
            v_add_u32 {vr(m+1)}, {sr(T+3)}, {vr(m+1)}""")
            if dr: a(f"v_cndmask_b32 {vr(m)}, {vr(m)}, {vr(big)}, vcc\nv_cndmask_b32 {vr(m+1)}, {vr(m+1)}, {vr(big)}, vcc")

    def conv_loads(self):
        GA = self.GA
        L = []
        for dst, m, so in ((self.GM, GA + 2, 1), (self.G0, GA, 1), (self.GP, GA + 4, 1), (self.U, GA, 0)):
            for k in range(2): L.append(f"buffer_load_dwordx4 {vr(dst+4*k,4)}, {vr(m)}, {sr(S_WS,4)}, {sr(self.E_U+so)} offen offset:{1024*k}")
            L.append(f"buffer_load_dwordx2 {vr(dst+8,2)}, {vr(m+1)}, {sr(S_WS,4)}, {sr(self.E_U+so)} offen")
        return L

    def rg(self, e, n): return (ar if e[0] == "a" else vr)(e[1], n)

    def w8_loads(self, regs, so):
        return [f"buffer_load_dwordx4 {self.rg(regs[s],4)}, {vr(V_DMA)}, {sr(S_WS,4)}, {sr(so)} offen offset:{1024*s}" for s in range(4)] + \
               [f"buffer_load_dwordx2 {self.rg(regs[4],2)}, {vr(self.VL8)}, {sr(S_WS,4)}, {sr(so)} offen"]

    def w_reads(self, regs, off):
        L = []
        for tt in range(2):
            L += [f"ds_read_b128 {self.rg(regs[tt][s],4)}, {vr(self.VS0)} offset:{off + BLK*tt + 1024*s}" for s in range(4)]
            L.append(f"ds_read_b64 {self.rg(regs[tt][4],2)}, {vr(self.VS0R)} offset:{off + BLK*tt}")
        return L

    def xa_srd(self):
        T = S_T
        return f"""s_mul_i32 {sr(T)}, {sr(S_B)}, {NT}
        s_mul_i32 {sr(T+1)}, {sr(S_H)}, 63
        s_add_u32 {sr(T+1)}, {sr(T+1)}, {sr(T)}
        s_mul_i32 {sr(T+1)}, {sr(T+1)}, {TILE}
        s_add_u32 {sr(S_XA)}, {sr(S_WS)}, {sr(T+1)}
        s_addc_u32 {sr(S_XA+1)}, {sr(S_WS+1)}, 0
        s_sub_u32 {sr(T+2)}, 63, {sr(S_H)}
        s_mul_i32 {sr(S_XA+2)}, {sr(T+2)}, {TILE}
        s_mov_b32 {sr(S_XA+3)}, 0x20000"""

    def rest(self):
        a, o = self.a, self.o
        T = S_T
        VPL = self.VPL
        self.plan()
        self.head()
        self.stamp("loop")
        if o.get("sktest") or o.get("echo") and o["echo"][0] == "skew":
            a(f"s_waitcnt lgkmcnt(0)\ns_mov_b64 exec, 1\ns_not_b32 s98, {sr(S_ST)}\nv_mov_b32 v226, s98\nv_mov_b32 v227, 4\ns_cmp_lg_u32 {sr(S_W)}, 0\ns_cbranch_scc1 L_sk\nbuffer_atomic_umax v226, v227, {sr(S_DB,4)}, 0 offen sc1\ns_waitcnt vmcnt(0)\nL_sk:\ns_mov_b64 exec, -1\ns_nop 3")
            self.stamp("sk")
        nh = o.get("ugh", 2)
        ex = {2 + 12 * k: x for k, x in enumerate(self.ugs[nh:])}
        ugl = o.get("ugl", 1)
        if ugl: self.period(0, extra={69: self.ugs[0]})
        else: self.period(0, vm=9 + 5, extra=ex)
        self.stamp("l0")
        a.raw(".p2align 6")
        a.label("L_loop")
        self.stamp("q1")
        for p in range(1, 5):
            ex = {}
            vm = 9
            if p == 1: ex = {73: f"s_cmp_eq_u32 {sr(S_CNT)}, 3"}
            if p == 2: ex = {70: f"buffer_load_dword v252, {vr(VPL)}, {sr(S_WS,4)}, 0 offen sc1"}
            if p == 3:
                ex = {73: f"s_cmp_eq_u32 {sr(S_CNT)}, 2", 45: f"ds_add_rtn_u32 v230, v231, {vr(VPL+1)}"}
            if p == 4:
                self.stamp("la0")
                a(f"s_cbranch_scc1 L_last")
                a.label("L_lastb")
                self.stamp("la1")
                ex = {72: f"s_add_u32 {sr(S_CNT)}, {sr(S_CNT)}, 1", 1: f"v_readfirstlane_b32 {sr(T)}, v230", 3: f"s_cmp_eq_u32 {sr(T)}, 3",
                      4: f"s_cselect_b32 {sr(T)}, {sr(S_FB)}, 2.0", 6: f"buffer_store_dword v226, v231, {sr(S_WS,4)}, {sr(T)} offen sc1"}
            if ugl:
                ex[69] = self.ugs[p]
                if p == 4: ex.update({71: f"s_mov_b32 {sr(S_UG)}, 2.0", 2: f"s_lshl2_add_u32 {sr(T)}, {sr(S_CNT)}, {sr(T)}", 3: f"s_cmp_eq_u32 {sr(T)}, 7"})
                if p == 3: ex.update({43: f"s_and_b32 {sr(T)}, {sr(S_CNT)}, 1", 44: f"v_mov_b32 {vr(VPL+1)}, {sr(T)}", 48: ex.pop(45)})
            for k_ in range(o.get("pad", 0)): ex[10 + 7 * k_] = ex.get(10 + 7 * k_, "s_nop 0") + "\ns_nop 7"
            self.period(p, extra=ex, inc=sr(S_INC) if p == 4 else None)
            if p == 1: a("s_cbranch_scc1 L_p14")
        a("s_branch L_loop")
        a.label("L_p14")
        SW = 66
        self.stamp("p14")
        a(f"s_cmp_eq_u32 {sr(S_DUM)}, 4\ns_cbranch_scc0 L_dummyb")
        for i in range(16): a(f"v_mov_b32 {vr(V_CI+i)}, 0xff800000")
        a("s_nop 1")
        a.label("L_dummyb")
        ex = dict(zip([2, 6, 8, 12, 14, 18, 20, 24, 26, 30], self.w_reads(self.WD, 0)))
        ex[0] = "s_waitcnt vmcnt(9)"
        ex.update(dict(zip([4, 10, 16, 22, 28], self.w8_loads(self.WD[2], SW))))
        self.period(14, dma=False, kread=False, extra=ex, halves=(0,))
        self.stamp("tail")
        self.tail(SW)
        self.stamp("end")
        self.epilogue(SW)

    def rare(self):
        a = self.a
        T = S_T
        SW = 66
        a.label("L_last")
        a(f"s_waitcnt vmcnt(9)\ns_mov_b32 {sr(T+2)}, 0")
        a.label("L_late")
        a(f"""v_cmp_ne_u32 vcc, {sr(S_N)}, v252
        s_add_u32 {sr(S_XA)}, {sr(S_WS)}, {WS_WF}
        s_addc_u32 {sr(S_XA+1)}, {sr(S_WS+1)}, 0
        s_mov_b32 {sr(S_XA+2)}, {18*BLK}
        s_add_u32 {sr(S_TOFF)}, {sr(S_LB)}, {9*BLK}
        s_mov_b32 {sr(S_INC)}, {-9*BLK}
        s_lshr_b32 {sr(SW)}, {sr(S_W)}, 1
        s_lshl_b32 {sr(SW)}, {sr(SW)}, 30
        s_add_u32 {sr(SW+1)}, {sr(SW)}, {WS_WF + 8*BLK}
        s_add_u32 {sr(SW)}, {sr(SW)}, {WS_WF + 17*BLK}
        s_and_b32 {sr(T)}, vcc_lo, 31
        s_cbranch_scc0 L_lastb
        buffer_load_dword v252, {vr(self.VPL)}, {sr(S_WS,4)}, 0 offen sc1
        s_add_u32 {sr(T+2)}, {sr(T+2)}, 1
        s_waitcnt vmcnt(0)
        s_cmp_lt_u32 {sr(T+2)}, 0x40000
        s_cbranch_scc1 L_late
        s_branch L_lastb""")

    units = [(0, 0), (0, 1), (1, 0), (1, 1), (2, 0)]
    V15 = V_K

    def stage(self, slot, T):
        src = ar(A_O + 36 * slot + 4 * T, 4)
        if slot == 0: return f"ds_write_b128 {vr(self.VST)}, {src} offset:{1024*T}"
        if slot == 2: return f"ds_write_b128 {vr(self.VS0)}, {src} offset:{1024*T}"
        if T < 4: return f"ds_write_b128 {vr(self.VST)}, {src} offset:{SLOT + 1024*T + (4096 if slot == 3 else 0)}"
        return f"{'s_not_b64' if slot == 1 else 's_mov_b64'} exec, {sr(self.MP1,2)}\nds_write_b128 {vr(self.VST)}, {src} offset:{SLOT + 8192}\ns_mov_b64 exec, -1"

    def dwf(self, k, i):
        f = 5 * k + i
        return self.DWT[f >> 1] + 2 * (f & 1)

    def tail(self, SW):
        a, o = self.a, self.o
        mf, pos, start = [], {}, {}
        for t_, qb in ((14, 0), (14, 1), (15, 0), (15, 1), (14, 2), (15, 2), (14, 3), (15, 3)):
            start[t_, qb] = len(mf)
            for Tt in ([0, 1, 2, 3, 8, 4, 5, 6, 7] if qb & 1 else range(9)):
                o_ = ar(A_O + 36 * qb + 4 * Tt, 4)
                pos[t_, qb, Tt] = len(mf)
                mf.append(f"v_mfma_f32_16x16x32_bf16 {o_}, {vr((V_V if t_ == 14 else self.V15)+4*Tt,4)}, {vr(self.P(t_ & 1,qb),4)}, {o_}")
        lst = []
        for qb in range(4):
            for j in range(8):
                lst.append(("e", qb, j))
                if j & 1: lst.append(("c", qb, j // 2))
        lst += [("a", qb, j) for qb in range(4) for j in range(8)]
        items = self.e_items(1, lst, lambda qb, j: 0 if j < 4 else 1, lambda qb: start[15, qb] - 2)
        for it in items[48:]: it["lo"] = o.get("alo", 26)
        v15 = [dict(t=x, c=4, need=pos[15, 0, i // 2], hi=pos[15, 0, i // 2] - o.get("vlead", 7), lo=0 if i < 16 else 2) for i, x in enumerate(self.v_reads(3, self.V15))]
        wr = []
        nown = o.get("nown", 4)
        self.own = [(2, T_) for T_ in range(nown, 9)] + [(3, T_) for T_ in (0, 1, 2, 3, 8)]
        g = o.get("w0", 23)
        for k, (sl, Tt) in enumerate([(0, T_) for T_ in range(9)] + [(1, T_) for T_ in (0, 1, 2, 3, 8)] + [(2, T_) for T_ in range(nown)]):
            g = max(pos[15, sl, Tt] + 5, g)
            wr.append(dict(t=self.stage(sl, Tt), c=o.get("wc", 20), lo=int(g), hi=int(g)) if g < 72 else dict(t=self.stage(sl, Tt), c=4, lo=999))
            g += o.get("wsp", 2.7)
        n0 = len(items) + len(v15)
        wo = []
        for i, x in enumerate(self.w_reads(self.WO, SLOT)):
            r0 = self.WO[i // 5][i % 5][1]
            wo.append(dict(t=("@VM\n" if i == 0 else "") + x, c=4, dep=sorted({n0 + r0 // 4, n0 + (r0 + 3) // 4 if (r0 + 3) // 4 < 9 else n0 + 8}), lo=o.get("wo0", 40) + 3 * i, hi=o.get("wo0", 40) + 3 * i + 2))
        cl = self.conv_loads()
        dl = [f"buffer_load_dwordx4 {vr(self.DWT[r],4)}, {vr(self.VDW)}, {sr(S_WS,4)}, 0 offen offset:{256*r}" for r in range(7)]
        dl.append(f"buffer_load_dwordx2 {vr(self.DWT[7],2)}, {vr(self.VDW)}, {sr(S_WS,4)}, 0 offen offset:{256*7}")
        fr = {96: 9, 100: 18, 104: 45, 112: 27, 116: 36}
        vm = [(x, 0) for x in cl] + [(x, fr.get(self.DWT[r], 0)) for r, x in enumerate(dl)]
        used = {w["lo"] for w in wr}
        vi, g = [], o.get("m0", 24)
        for x, lo in vm:
            g = max(g, lo)
            while int(g) in used: g += 1
            vi.append(dict(t=x, c=8, lo=int(g), hi=int(g)) if g < 72 else dict(t=x, c=8, lo=999))
            g += o.get("msp", 2.2)
        left = self.pack(mf, items + v15 + wr + wo + vi)
        self.done_a = {(qb, j) for qb in range(4) for j in range(8) if self.etext(1, ("a", qb, j)) not in left}
        left = [x for x in left if not x.startswith("v_add_f32")]
        print("tail overflow", self.over, "left", len(left), "adds done", len(self.done_a))
        self.left = left

    def epilogue(self, SW):
        a, o = self.a, self.o
        T = S_T
        p = lambda r: vr(r, 2)
        NB, PT, MK, VO, units, MP1 = self.NB, self.PT, self.MK, self.VO, self.units, self.MP1
        U, GM, G0, GP = self.U, self.GM, self.G0, self.GP
        X2O = self.X2O
        R1, R2, R3 = 230, 231, 249
        LA, LS, M = 10, 226, 48

        def weave(main, fill, per):
            fill = list(fill)
            for x in main:
                a(x)
                for _ in range(per):
                    if fill: a(fill.pop(0))
            return fill
        for x in self.left:
            if not x.startswith("buffer"): a(x)
        lv = [x for x in self.left if x.startswith("buffer")]
        lv += [f"buffer_load_dwordx4 {vr(self.XRS[j],4)}, {vr(VO+j)}, {sr(S_X,4)}, {sr(self.E_COL)} offen" for j in range(2)]
        lv.append(f"buffer_load_dwordx2 {vr(self.XRS[2],2)}, {vr(self.VO8)}, {sr(S_X,4)}, 0 offen offset:256")
        S1 = lambda qb, j: self.S(1, qb, j)
        rounds = [[] for _ in range(6)]
        for qb in range(4):
            rem = [j for j in range(8) if (qb, j) not in self.done_a]
            prs = [j for j in rem if j % 2 == 0 and j + 1 in rem]
            sing = [j for j in rem if (j & ~1) not in prs]
            r_ = 0
            while len(prs) > 1:
                for x, y in zip(prs[0::2], prs[1::2]): rounds[r_].append(f"v_pk_add_f32 {p(S1(qb,x))}, {p(S1(qb,x))}, {p(S1(qb,y))}")
                prs = prs[0::2]; r_ += 1
            for k_, j in enumerate(sing + ([prs[0], prs[0] + 1] if prs else [])): rounds[min(5, max(r_, 2) + k_)].append(f"v_add_f32 {vr(V_L+qb)}, {vr(V_L+qb)}, {vr(S1(qb,j))}")
        for r_ in rounds:
            for x in r_: a(x)
        a(f"v_add_u32 {vr(R1)}, {sr(self.RS1)}, {vr(V_DMA)}\nv_add_u32 {vr(R2)}, {sr(self.RS2)}, {vr(V_DMA)}")
        self.treduce(V_L)
        a(f"ds_write_b32 {vr(self.VLW)}, {vr(V_L)}")
        acc = lambda slot: [f"v_accvgpr_read_b32 {vr(M+i)}, {ar(A_O+36*slot+16+i)}" for i in range(20)]
        a(f"""v_add_u32 {vr(R3)}, {sr(self.RS3)}, {vr(V_DMA)}
        v_add_u32 {vr(LA+1)}, {self.L_L}, {vr(V_DMA)}
        v_and_b32 {vr(LS+1)}, 0xf0, {vr(V_DMA)}
        s_lshl_b32 {sr(T)}, {sr(NB)}, 8
        s_add_u32 {sr(T+8)}, {sr(T)}, {self.L_L}
        v_add_u32 {vr(LS)}, {sr(T+8)}, {vr(LS+1)}""")
        for x in lv: a(x)
        a(f"""s_xor_b32 {sr(T)}, s2, 1
        s_mul_i32 {sr(T)}, {sr(T)}, {IB}
        s_mul_i32 {sr(T+9)}, {sr(NB)}, 5120
        s_add_u32 {sr(T+9)}, {sr(T+9)}, {WS_IB}
        s_add_u32 {sr(T)}, {sr(T)}, {sr(T+9)}
        s_lshl_b32 {sr(T+10)}, {sr(PT)}, 11
        s_add_u32 {sr(T+1)}, {sr(T+10)}, {sr(T)}
        s_add_u32 {sr(T)}, {sr(T)}, 4096
        s_cmp_eq_u32 {sr(PT)}, 0
        s_cselect_b32 {sr(T)}, 0x40000000, {sr(T)}
        s_mov_b32 {sr(T+2)}, {f32(2.0**100)}
        s_mul_i32 {sr(T+12)}, s2, {IB}
        s_add_u32 {sr(T+12)}, {sr(T+12)}, {sr(T+9)}
        s_add_u32 {sr(T+13)}, {sr(T+12)}, {sr(T+10)}
        s_waitcnt lgkmcnt(0)
        s_barrier""")
        self.stamp("B1")

        def rd(X, offs):
            L = [[f"ds_read_b128 {vr(X[k][i],4)}, {vr((R1, R2, R3)[k])} offset:{offs[k] + 1024*i}" for i in range(4)] for k in range(3)]
            L8 = [f"ds_read_b128 {vr(X[k][4],4)}, {vr((R1, R2, R3)[k])} offset:8192" for k in range(3)]
            return L, L8

        def adds(X, k, rng):
            return [f"v_pk_add_f32 {p(M+4*i+2*h)}, {p(M+4*i+2*h)}, {p(X[k][i]+2*h)}" for i in rng for h in range(2)]
        X = [[128, 132, 136, 140, 144], [148, 152, 156, 160, 68], [72, 76, 200, 204, 108]]
        PK = 128
        L, L8 = rd(X, (0, 4096, 0))
        a(f"ds_read_b128 {vr(LA,4)}, {vr(LA+1)}\nds_read_b128 {vr(LS,4)}, {vr(LS)}")
        rest = weave(L[0] + L[1] + L[2], acc(1), 2)
        assert not rest
        a(f"s_mov_b64 exec, {sr(MP1,2)}")
        for x in L8: a(x)
        a(f"""s_mov_b64 exec, -1
        s_waitcnt lgkmcnt(11)
        v_add_f32 {vr(LA)}, {vr(LA)}, {vr(LA+1)}
        v_add_f32 {vr(LA+2)}, {vr(LA+2)}, {vr(LA+3)}
        v_add_f32 {vr(LS)}, {vr(LS)}, {vr(LS+1)}
        v_add_f32 {vr(LA)}, {vr(LA)}, {vr(LA+2)}
        v_add_f32 {vr(LS+2)}, {vr(LS+2)}, {vr(LS+3)}
        v_cmp_nge_f32 vcc, {sr(T+2)}, {vr(LA)}""")
        for x in adds(X, 0, range(4)): a(x)
        a(f"""s_cmp_lg_u64 vcc, 0
        s_cselect_b32 {sr(T+2)}, 1, 0
        s_andn2_b32 {sr(T+2)}, {sr(T+2)}, {sr(S_REDO)}
        s_cbranch_scc1 L_fallback
        v_add_f32 {vr(PK+10)}, {vr(LS)}, {vr(LS+2)}
        v_mov_b32 {vr(PK+11)}, {vr(MK+1)}
        s_waitcnt lgkmcnt(7)""")
        for x in adds(X, 1, range(4)): a(x)
        a("s_waitcnt lgkmcnt(3)")
        a3 = adds(X, 2, range(4))
        cv = [f"v_cvt_pk_bf16_f32 {vr(PK+i)}, {vr(M+2*i)}, {vr(M+2*i+1)}" for i in range(10)]
        for x in a3[:4] + a3[4:6] + cv[:4]: a(x)
        a(f"buffer_store_dwordx4 {vr(PK,4)}, {vr(V_DMA)}, {sr(S_WS,4)}, {sr(T+1)} offen sc1")
        for x in a3[6:] + cv[4:8]: a(x)
        a(f"buffer_store_dwordx4 {vr(PK+4,4)}, {vr(V_DMA)}, {sr(S_WS,4)}, {sr(T+1)} offen offset:1024 sc1")
        a("s_waitcnt lgkmcnt(0)")
        for kk in range(3):
            for x in adds(X, kk, [4]): a(x)
        for x in cv[8:]: a(x)
        a(f"buffer_store_dwordx4 {vr(PK+8,4)}, {vr(V_DMA)}, {sr(S_WS,4)}, {sr(T)} offen sc1")
        self.stamp("sent")
        a(f"s_cmp_eq_u32 {sr(S_VAL)}, 0\ns_cbranch_scc1 L_fin")
        C, UP = 140, 68
        IN = [(200, 204, 226), (164, 168, 252), (192, 196, 172)]
        VXW, VXR, VF, LO = 78, 79, 10, 36
        wr = [self.stage(*e) for e in self.own]

        def inbox(k):
            return [f"buffer_load_dwordx4 {vr(IN[k][0],4)}, {vr(V_DMA)}, {sr(S_WS,4)}, {sr(T+13)} offen sc1",
                    f"buffer_load_dwordx4 {vr(IN[k][1],4)}, {vr(V_DMA)}, {sr(S_WS,4)}, {sr(T+13)} offen offset:1024 sc1",
                    f"buffer_load_dwordx4 {vr(IN[k][2],4)}, {vr(V_DMA+1)}, {sr(S_WS,4)}, {sr(T+12)} offen sc1"]
        for x in inbox(0): a(x)
        n0 = len(a.lines)
        a(f"""s_lshl_b32 {sr(T)}, {sr(NB)}, 12
        s_add_u32 {sr(T)}, {sr(T)}, {sr(T+10)}
        s_add_u32 {sr(T)}, {sr(T)}, {self.X1B}
        v_add_u32 {vr(VXW)}, {sr(T)}, {vr(V_DMA)}
        s_lshl_b32 {sr(T)}, {sr(NB)}, 9
        s_add_u32 {sr(T)}, {sr(T)}, {self.X1B + 4096}
        v_add_u32 {vr(VXR)}, {sr(T)}, {vr(self.VL8)}
        s_lshl_b32 {sr(T)}, {sr(PT)}, 12
        s_add_u32 {sr(T)}, {sr(T)}, {self.X1B}
        v_add_u32 {vr(VF)}, {sr(T)}, {vr(V_DMA)}
        v_xor_b32 {vr(VF+1)}, 4096, {vr(VF)}
        s_lshl_b32 {sr(T)}, {sr(PT)}, 9
        s_add_u32 {sr(T)}, {sr(T)}, {self.X1B + 4096}
        v_add_u32 {vr(VF+2)}, {sr(T)}, {vr(self.VL8)}
        v_xor_b32 {vr(VF+3)}, 512, {vr(VF+2)}
        v_subrev_u32 {vr(R2)}, {2*SLOT}, {vr(R2)}
        v_subrev_u32 {vr(R3)}, {2*SLOT}, {vr(R3)}
        s_waitcnt vmcnt(9)""")
        self.stamp("cv0")
        un = [f"v_lshlrev_b32 {vr(M+2*i)}, 16, {vr(U+i)}\nv_and_b32 {vr(M+1+2*i)}, 0xffff0000, {vr(U+i)}" for i in range(10)]
        w8 = self.w8_loads(self.WO[2], SW + 1)
        for k, src in enumerate((GM, G0, GP)):
            for i in range(5):
                d = vr(C + 4 * i, 4)
                a(f"v_mfma_f32_16x16x16_bf16 {d}, {vr(self.dwf(k, i),2)}, {vr(src+2*i,2)}, {'0' if k == 0 else d}")
                a(w8.pop(0) if i in (0, 3) and w8 else un.pop(0))
        self.stamp("cv1")
        a(f"v_and_b32 {vr(LO+1)}, 0xf0, {vr(V_DMA)}\nv_add_u32 {vr(LO)}, {sr(T+8)}, {vr(LO+1)}\ns_nop 1")
        for i in range(10): a(f"v_pk_mul_f32 {p(C+2*i)}, {p(C+2*i)}, {p(M+2*i)}")
        for i in range(10):
            a(f"v_cvt_pk_bf16_f32 {vr(UP+i)}, {vr(C+2*i)}, {vr(C+2*i+1)}")
        body = a.lines[n0:]; del a.lines[n0:]
        step = max(1, len(body) // len(wr))
        for i, l in enumerate(body):
            if i % o.get("wstep", step) == 0 and wr: a(wr.pop(0))
            a.lines.append(l)
        for x in wr: a(x)
        ac = acc(3)
        a(f"ds_write_b128 {vr(VXW)}, {vr(UP,4)} offset:{X2O}")
        for x in ac[:6]: a(x)
        a(f"ds_write_b128 {vr(VXW)}, {vr(UP+4,4)} offset:{X2O + 1024}")
        for x in ac[6:12]: a(x)
        a(f"""s_mov_b64 exec, {sr(MP1,2)}
        ds_write_b64 {vr(VXR)}, {vr(UP+8,2)} offset:{X2O}
        s_mov_b64 exec, -1""")
        self.stamp("x2")
        for x in inbox(1): a(x)
        for x in ac[12:]: a(x)
        a("s_waitcnt lgkmcnt(0)\ns_barrier")
        self.stamp("B2")
        X = [[128, 132, 136, 140, 144], [148, 152, 156, 160, 188], [16, 20, 24, 28, 32]]
        L, L8 = rd(X, (4096, 4096, 0))
        BU = [[("v", r) for r in (100, 104, 108, 112, 116)], [("v", r) for r in (118, 122, 180, 184, 126)]]
        BO = [self.frag("v", 128), self.frag("v", 146)]
        AB = 80

        def bfrags(dst, off):
            out = []
            for s in range(5):
                for j in range(2):
                    out.append(f"ds_read_b128 {self.rg(dst[j][s],4)}, {vr(VF+j)} offset:{off + 1024*s}" if s < 4 else f"ds_read_b64 {self.rg(dst[j][4],2)}, {vr(VF+2+j)} offset:{off}")
            return out

        def fg(W, Bf):
            out = []
            for s in range(5):
                for u, (tt, j) in enumerate(units):
                    d = vr(AB + 4 * u, 4)
                    if s < 4: out.append(f"v_mfma_f32_16x16x32_bf16 {d}, {self.rg(W[tt][s],4)}, {self.rg(Bf[j][s],4)}, {d}")
                    else: out.append(f"v_mfma_f32_16x16x16_bf16 {d}, {self.rg(W[tt][4],2)}, {self.rg(Bf[j][4],2)}, {d}")
            return out
        xu = []
        for u, (tt, j) in enumerate(units):
            for h in range(2):
                x = self.XRS[j] + 2 * tt + h if tt < 2 else self.XRS[2] + h
                xu += [f"v_lshlrev_b32 {vr(AB+4*u+2*h)}, 16, {vr(x)}", f"v_and_b32 {vr(AB+1+4*u+2*h)}, 0xffff0000, {vr(x)}"]
        a("s_waitcnt vmcnt(14)")
        weave(bfrags(BU, X2O), xu, 2)
        pl = lambda k, i, e: f"v_add_f32 {vr(M+4*i+e)}, {vr(M+4*i+e)}, {vr(X[k][i]+e)}"
        ds = L[0] + L[1] + L[2] + [f"s_not_b64 exec, {sr(MP1,2)}\n" + "\n".join(L8) + "\ns_mov_b64 exec, -1", f"ds_read_b128 {vr(LO,4)}, {vr(LO)} offset:512"]
        nis = [1] * 12 + [3, 1]
        gap = [[] for _ in range(25)]
        tot = [10]
        for g in range(25): tot.append(tot[-1] + (nis[g] if g < 14 else 0))
        A0 = [pl(0, i, e) for i in range(4) for e in range(4)]
        A1 = [pl(1, i, e) for i in range(4) for e in range(4)]
        ib = inbox(2)
        for g, m in enumerate(fg(self.WD, BU)):
            if g % 5 == 0: a(f"s_waitcnt lgkmcnt({min(15, tot[g] - 2 * (g // 5 + 1))})")
            a(m)
            if g == 8: a(f"s_waitcnt lgkmcnt({tot[g] - 14})")
            if g == 16: a(f"s_waitcnt lgkmcnt({tot[g] - 18})")
            if g < 14: a(ds[g])
            if 8 <= g < 14: a(A0.pop(0))
            elif g in (14, 18, 22): a(ib.pop(0))
            elif g >= 14:
                for _ in range(2): a(A0.pop(0) if A0 else A1.pop(0))
        assert not A0 and len(A1) % 2 == 0
        n1 = 16 - len(A1)
        for e in range(n1, 16, 2): a(f"v_pk_add_f32 {p(M+e)}, {p(M+e)}, {p(X[1][e//4]+e%4)}")
        a("s_waitcnt lgkmcnt(0)")
        for x in adds(X, 2, range(4)): a(x)
        a(f"v_add_f32 {vr(LO)}, {vr(LO)}, {vr(LO+1)}\nv_add_f32 {vr(LO+2)}, {vr(LO+2)}, {vr(LO+3)}")
        for kk in range(3):
            for x in adds(X, kk, [4]): a(x)
        a(f"s_mov_b32 {sr(T+2)}, 0\nv_add_f32 {vr(LO)}, {vr(LO)}, {vr(LO+2)}")
        self.stamp("own")
        w, PU = 40, 128
        mo = MK + 3

        def chk(k):
            r = [IN[k][q] + i for q in range(3) for i in range(4)]
            c = [f"v_max3_u32 v46, {vr(r[0])}, {vr(r[1])}, {vr(r[2])}", f"v_max3_u32 v47, {vr(r[3])}, {vr(r[4])}, {vr(r[5])}"]
            for q in range(3): c.append(f"v_max3_u32 v{46+(q&1)}, v{46+(q&1)}, {vr(r[6+2*q])}, {vr(r[7+2*q])}")
            return c + ["v_max_u32 v46, v46, v47", "v_cmp_eq_u32 vcc, -1, v46"]

        def take(k, with_chk):
            r = [IN[k][q] + i for q in range(3) for i in range(4)]
            lp_, mp = r[10], r[11]
            wt = [f"v_min_f32 {vr(w)}, {vr(mo)}, {vr(mp)}", f"v_sub_f32 {vr(w+2)}, {vr(w)}, {vr(mp)}", f"v_sub_f32 {vr(w)}, {vr(w)}, {vr(mo)}",
                  f"v_exp_f32 {vr(w+2)}, {vr(w+2)}", f"v_exp_f32 {vr(w)}, {vr(w)}", f"v_mul_f32 {vr(w+4)}, {vr(w+2)}, {vr(lp_)}",
                  f"v_fmac_f32 {vr(w+4)}, {vr(w)}, {vr(LO)}", f"v_rcp_f32 {vr(w+4)}, {vr(w+4)}", f"v_mul_f32 {vr(w)}, {vr(w)}, {vr(w+4)}",
                  f"v_mul_f32 {vr(w+2)}, {vr(w+2)}, {vr(w+4)}"]
            un = []
            for i in range(10): un += [f"v_lshlrev_b32 {vr(PU+2*i)}, 16, {vr(r[i])}", f"v_and_b32 {vr(PU+1+2*i)}, 0xffff0000, {vr(r[i])}"]
            c = chk(k) if with_chk else []
            for i in range(10):
                a(wt[i])
                if c: a(c.pop(0))
                a(un.pop(0)); a(un.pop(0))
        a("s_waitcnt vmcnt(6)")
        take(0, True)
        a("s_cmp_eq_u64 vcc, 0\ns_cbranch_scc0 L_poll2")
        a.label("L_got")
        self.stamp("got")
        for i in range(10): a(f"v_pk_mul_f32 {p(M+2*i)}, {p(M+2*i)}, {p(w)} op_sel_hi:[1,0]")
        for i in range(10): a(f"v_pk_fma_f32 {p(M+2*i)}, {p(PU+2*i)}, {p(w+2)}, {p(M+2*i)} op_sel_hi:[1,0,1]")
        for i in range(10):
            a(f"v_cvt_pk_bf16_f32 {vr(UP+i)}, {vr(M+2*i)}, {vr(M+2*i+1)}")
            if i == 3: a(f"ds_write_b128 {vr(VXW)}, {vr(UP,4)}")
            if i == 7: a(f"ds_write_b128 {vr(VXW)}, {vr(UP+4,4)} offset:1024")
        a(f"""s_not_b64 exec, {sr(MP1,2)}
        ds_write_b64 {vr(VXR)}, {vr(UP+8,2)}
        s_mov_b64 exec, -1
        s_waitcnt lgkmcnt(0)
        s_barrier""")
        self.stamp("B3")
        for x in bfrags(BO, 0): a(x)
        for g, m in enumerate(fg(self.WO, BO)):
            if g % 5 == 0: a(f"s_waitcnt lgkmcnt({8 - 2 * (g // 5)})" + ("\ns_nop 0" if g == 20 else ""))
            a(m)
        self.stamp("gem")
        a("s_nop 3")
        for j in range(2):
            for tt in range(2):
                u = 2 * tt + j
                for h in range(2): a(f"v_cvt_pk_bf16_f32 {vr(16+4*j+2*tt+h)}, {vr(AB+4*u+2*h)}, {vr(AB+4*u+2*h+1)}")
            a(f"buffer_store_dwordx4 {vr(16+4*j,4)}, {vr(VO+j)}, {sr(S_OUT,4)}, {sr(self.E_COL)} offen {o.get('ofl', 'sc1')}")
        a(f"s_cmp_ge_u32 {sr(S_W)}, 2\ns_cbranch_scc1 L_fin")
        for h in range(2): a(f"v_cvt_pk_bf16_f32 {vr(24+h)}, {vr(AB+16+2*h)}, {vr(AB+16+2*h+1)}")
        a(f"buffer_store_dwordx2 v[24:25], {vr(self.VO8)}, {sr(S_OUT,4)}, 0 offen offset:256 {o.get('ofl', 'sc1')}")
        self.stamp("fin")

        def poll2():
            a.label("L_poll2")
            for k in (1, 2, 0):
                for x in inbox((k + 2) % 3): a(x)
                a("s_waitcnt vmcnt(6)")
                for x in chk(k): a(x)
                a(f"s_add_u32 {sr(T+2)}, {sr(T+2)}, 1\ns_cmp_eq_u64 vcc, 0\ns_cbranch_scc1 L_take{k}")
            a(f"s_cmp_lt_u32 {sr(T+2)}, 0x10000\ns_cbranch_scc1 L_poll2")
            for k in (0, 1, 2):
                a.label(f"L_take{k}")
                take(k, False)
                a("s_branch L_got")
        self.poll2 = poll2

    def fallback(self):
        a = self.a
        T = S_T
        MXR = 208
        a.label("L_fallback")
        a(f"""s_waitcnt vmcnt(0) lgkmcnt(0)
        s_barrier
        s_mov_b32 {sr(S_REDO)}, 1
        s_mov_b32 {sr(S_UG)}, 0x40000000
        {self.xa_srd()}
        s_mov_b32 {sr(S_TOFF)}, {sr(S_LB)}
        s_cmp_eq_u32 {sr(S_DUM)}, 4
        s_cselect_b32 {sr(S_CNT)}, 15, 16""")
        for i in range(4): a(f"v_mov_b32 {vr(MXR+i)}, 0xff800000")
        a.label("L_fb1")
        for g in self.tile_groups(0): a(g)
        a("s_waitcnt vmcnt(0)")
        for x in self.k_reads(0): a(x)
        a("s_waitcnt lgkmcnt(0)")
        for m in self.qk_mfmas(0, czero=True): a(m)
        a("s_nop 7")
        for qb in range(4):
            for i in range(0, 8, 2): a(f"v_max3_f32 {vr(MXR+qb)}, {vr(MXR+qb)}, {vr(self.S(0,qb,i))}, {vr(self.S(0,qb,i+1))}")
        a(f"s_sub_u32 {sr(S_CNT)}, {sr(S_CNT)}, 1\ns_cmp_lg_u32 {sr(S_CNT)}, 0\ns_cbranch_scc1 L_fb1")
        self.greduce([MXR + i for i in range(4)], MXR + 4, "v_max_f32")
        a(f"""v_and_b32 {vr(MXR+4)}, 15, v0
        v_lshlrev_b32 {vr(MXR+4)}, 4, {vr(MXR+4)}
        v_add_u32 {vr(MXR+4)}, {L_SP}, {vr(MXR+4)}
        s_lshl_b32 {sr(T)}, {sr(S_W)}, 2
        s_xor_b32 {sr(T+1)}, {sr(self.NB)}, 1
        v_lshl_add_u32 {vr(MXR+5)}, {sr(self.NB)}, 8, {vr(MXR+4)}
        v_lshl_add_u32 {vr(MXR+4)}, {sr(T+1)}, 8, {vr(MXR+4)}
        v_add_u32 {vr(MXR+6)}, {sr(T)}, {vr(MXR+4)}
        v_add_u32 {vr(MXR+7)}, {sr(T)}, {vr(MXR+5)}""")
        for qb in range(4): a(f"ds_write_b32 {vr(MXR+6+(qb&1))}, {vr(MXR+qb)} offset:{512*(qb>>1)}")
        a("s_waitcnt lgkmcnt(0)\ns_barrier")
        for qb in range(4): a(f"ds_read_b128 {vr(16+4*qb,4)}, {vr(MXR+4+(qb&1))} offset:{512*(qb>>1)}")
        a(f"s_mov_b32 {sr(S_TOFF)}, {sr(S_LB)}")
        for g in self.tile_groups(0) + self.tile_groups(1) + self.tile_groups(2)[:8]: a(g)
        a("s_waitcnt lgkmcnt(0)")
        for qb in range(4):
            r = 16 + 4 * qb
            a(f"v_max_f32 {vr(r)}, {vr(r)}, {vr(r+1)}\nv_max3_f32 {vr(r)}, {vr(r)}, {vr(r+2)}, {vr(r+3)}")
            a(f"v_sub_f32 {vr(self.MK+qb)}, 0, {vr(r)}")
        a("s_waitcnt vmcnt(0)")
        for x in self.k_reads(0, V_V): a(x)
        self.loop_init(False)
        a("s_branch L_go")


if __name__ == "__main__":
    opt = json.loads(sys.argv[2]) if len(sys.argv) > 2 else {}
    g = G(opt)
    txt = g.build()
    if opt.get("align", 1):
        from align import align
        for n2 in (1, 2):
            try:
                txt, st = align(txt, chains=[(1, "L_tr")] * 3 + [(1, "L_tr2"), (n2, "L_tr2")] if opt.get("touch", 1) else None)
                break
            except AssertionError as e:
                if n2 == 2: raise
        print("align: promoted %d, padded %d, left %d" % st)
    txt = txt.replace("\n", "\n; stamps " + json.dumps(g.stnames) + "\n; map %d\n" % g.mp, 1)
    open(sys.argv[1], "w").write(txt)
```

```python
import sys, json, math
from common import Asm, vr, ar, sr, kernel_header, kernel_desc
from lay import *

NAME = "standalone__conformer_family_branchformer__speech_kernel"
NH = 2
NWG = 252 + NH
CHAINS = (3, 3)
RING = 4
LDS_RING = RING * TILE
LDS_TOTAL = 163840
SLOT = 4 * TILE
L_WU, L_WQ, L_WK = 0, 41472, 82944
L_XX, L_XR = 126976, 143360
L_QD = 18432
L_XS = L_XX + L_QD
L_MX = 81920
L_PC = LDS_TOTAL - 256
L_DUMP = 123904
L_SP = 147456

S_X, S_WS, S_XA, S_DB, S_W1, S_W2, S_OUT, S_DW = 8, 12, 16, 20, 24, 28, 32, 36
S_W, S_B, S_H, S_QB, S_TOFF, S_CNT, S_DUM, S_LB, S_TOWN, S_TSND, S_VAL, S_REDO = range(40, 52)
S_UG = 25
S_N, S_FB = 98, 99
S_INC = 24
S_T = 52
S_ST = 76

V_KA, V_VA, V_VR, V_DMA, V_L, V_VB = 1, 3, 5, 6, 10, 14
V_S, V_CI, V_P, V_K, V_V = 16, 80, 96, 128, 164
V_HI = 200
V_X = 208
A_O, A_Q, A_F = 0, 144, 216

LOG2E = 1.4426950408889634
import struct
def f32(x): return "0x%08x" % struct.unpack("<I", struct.pack("<f", x))[0]


class BAsm(Asm):
    def __init__(self):
        super().__init__()
        self.bg, self.every, self.cnt, self.skip = [], 0, 0, 0

    def __call__(self, s):
        for l in s.split("\n"):
            l = l.strip()
            if not l: continue
            self.lines.append("    " + l)
            if self.bg and self.every and not l.startswith(("s_nop", "v_mov_b32", "v_exp", "v_rcp", "v_rsq", "v_sqrt", "s_add_u32 m0")):
                self.cnt += 1
                if self.cnt >= self.every:
                    self.cnt = 0
                    self.pop()

    def pop(self):
        for x in self.bg.pop(0).split("\n"): self.lines.append("    " + x)

    def flush(self):
        while self.bg: self.pop()
        self.every = 0


class G:
    def __init__(self, opt):
        self.o = opt
        self.a = BAsm()
        self.nst = 0
        self.fill = []

    def stamp(self, name):
        if self.o.get("stamps"):
            if name in self.o.get("skipst", []): return
            if "only" in self.o and name not in self.o["only"]: return
            if self.nst >= 11: return
            self.a(f"{'s_memtime' if self.o.get('cyc') else 's_memrealtime'} {sr(S_ST + 2*self.nst, 2)}")
            self.stnames.append(name)
            self.nst += 1

    def srd(self, dst, lo, hi, n):
        if dst == S_WS and self.o.get("wsoff"):
            self.a(f"s_add_u32 {sr(dst)}, {sr(lo)}, {self.o['wsoff']}\ns_addc_u32 {sr(dst+1)}, {sr(hi)}, 0\ns_mov_b32 {sr(dst+2)}, {n}\ns_mov_b32 {sr(dst+3)}, 0x20000")
            return
        self.a(f"s_mov_b32 {sr(dst)}, {sr(lo)}\ns_mov_b32 {sr(dst+1)}, {sr(hi)}\ns_mov_b32 {sr(dst+2)}, {n}\ns_mov_b32 {sr(dst+3)}, 0x20000")

    def greduce(self, regs, tmp, op="v_add_f32"):
        a = self.a
        for sw in ("32", "16"):
            for i, r in enumerate(regs): a(f"v_mov_b32 {vr(tmp+i)}, {vr(r)}")
            if len(regs) < 3: a("s_nop 1" if len(regs) == 1 else "s_nop 0")
            for i, r in enumerate(regs): a(f"v_permlane{sw}_swap_b32 {vr(r)}, {vr(tmp+i)}")
            for i, r in enumerate(regs): a(f"{op} {vr(r)}, {vr(r)}, {vr(tmp+i)}")

    def treduce(self, r, op="v_add_f32"):
        a = self.a
        a(f"v_permlane32_swap_b32 {vr(r)}, {vr(r+2)}\nv_permlane32_swap_b32 {vr(r+1)}, {vr(r+3)}")
        a(f"{op} {vr(r)}, {vr(r)}, {vr(r+2)}\n{op} {vr(r+1)}, {vr(r+1)}, {vr(r+3)}\ns_nop 1")
        a(f"v_permlane16_swap_b32 {vr(r)}, {vr(r+1)}\n{op} {vr(r)}, {vr(r)}, {vr(r+1)}")

    def rbf(self, r):
        self.a(f"v_cvt_pk_bf16_f32 {vr(r)}, {vr(r)}, {vr(r)}\nv_lshlrev_b32 {vr(r)}, 16, {vr(r)}")

    def ln_tail(self, F, out, t, mimic):
        a = self.a
        p = lambda r: vr(r, 2)
        self.greduce([t, t + 1], t + 2)
        a(f"v_mul_f32 {vr(t+2)}, {f32(1.0/144)}, {vr(t)}")
        a(f"v_mul_f32 {vr(t+3)}, {vr(t+2)}, {vr(t+2)}")
        a(f"v_mov_b32 {vr(t+4)}, {f32(1.0/144)}")
        a(f"v_fma_f32 {vr(t)}, {vr(t+1)}, {vr(t+4)}, -{vr(t+3)}")
        a(f"v_max_f32 {vr(t)}, 0, {vr(t)}")
        if mimic:
            self.rbf(t)
            self.rbf(t + 2)
            a(f"v_add_f32 {vr(t)}, {f32(1e-5)}, {vr(t)}")
            self.rbf(t)
            a(f"v_sqrt_f32 {vr(t)}, {vr(t)}\ns_nop 0")
            self.rbf(t)
            a(f"v_rcp_f32 {vr(t)}, {vr(t)}\ns_nop 0")
        else:
            a(f"v_add_f32 {vr(t)}, {f32(1e-5)}, {vr(t)}")
            a(f"v_rsq_f32 {vr(t)}, {vr(t)}\ns_nop 0")
        a(f"v_mul_f32 {vr(t+2)}, -{vr(t+2)}, {vr(t)}")
        for i in range(18):
            a(f"v_pk_fma_f32 {p(F+2*i)}, {p(F+2*i)}, {p(t)}, {p(t+2)} op_sel_hi:[1,0,0]")
        for i in range(18):
            a(f"v_cvt_pk_bf16_f32 {vr(out+i)}, {vr(F+2*i)}, {vr(F+2*i+1)}")

    def ln_packed(self, X, F, out, t):
        a = self.a
        a(f"v_mov_b32 {vr(t+6)}, 0x3f803f80")
        for k in range(4): a(f"v_mov_b32 {vr(t+k)}, 0")
        for i in range(18):
            a(f"v_dot2_f32_bf16 {vr(t+2*(i&1))}, {vr(X+i)}, {vr(t+6)}, {vr(t+2*(i&1))}")
            a(f"v_dot2_f32_bf16 {vr(t+1+2*(i&1))}, {vr(X+i)}, {vr(X+i)}, {vr(t+1+2*(i&1))}")
        for i in range(2):
            a(f"v_lshlrev_b32 {vr(F+2*i)}, 16, {vr(X+i)}\nv_and_b32 {vr(F+2*i+1)}, 0xffff0000, {vr(X+i)}")
        a(f"v_pk_add_f32 {vr(t,2)}, {vr(t,2)}, {vr(t+2,2)}")
        un = []
        for i in range(2, 18):
            un.append(f"v_lshlrev_b32 {vr(F+2*i)}, 16, {vr(X+i)}\nv_and_b32 {vr(F+2*i+1)}, 0xffff0000, {vr(X+i)}")
        sv = (a.bg, a.every, a.cnt, a.skip)
        n0 = len(a.lines)
        a.bg, a.every = [], 0
        self.ln_tail(F, out, t, True)
        tail = a.lines[n0:]
        del a.lines[n0:]
        a.bg, a.every, a.cnt, a.skip = sv
        k = next(i for i, l in enumerate(tail) if "v_pk_fma" in l)
        for i, l in enumerate(tail[:k]):
            if "s_nop" in l and un: continue_nop = True
            a(l)
            if un and not l.strip().startswith("s_nop"): a(un.pop(0))
        while un: a(un.pop(0))
        for l in tail[k:]: a(l)

    def ln_f32(self, F, out, t):
        a = self.a
        p = lambda r: vr(r, 2)
        a(f"v_pk_add_f32 {p(t)}, {p(F)}, {p(F+2)}\nv_pk_add_f32 {p(t+2)}, {p(F+4)}, {p(F+6)}")
        a(f"v_pk_mul_f32 {p(t+4)}, {p(F)}, {p(F)}\nv_pk_mul_f32 {p(t+6)}, {p(F+2)}, {p(F+2)}")
        for i in range(2, 18):
            if i >= 4: a(f"v_pk_add_f32 {p(t+2*(i&1))}, {p(t+2*(i&1))}, {p(F+2*i)}")
            a(f"v_pk_fma_f32 {p(t+4+2*(i&1))}, {p(F+2*i)}, {p(F+2*i)}, {p(t+4+2*(i&1))}")
        a(f"v_pk_add_f32 {p(t)}, {p(t)}, {p(t+2)}\nv_pk_add_f32 {p(t+4)}, {p(t+4)}, {p(t+6)}")
        a(f"v_add_f32 {vr(t)}, {vr(t)}, {vr(t+1)}\nv_add_f32 {vr(t+1)}, {vr(t+4)}, {vr(t+5)}")
        self.ln_tail(F, out, t, False)

    def gemm_u(self, AF, rf, Bs, ACC, afr, bfr, post, vm_items=(), other=(), lead=7, vm0=0, vmsp=4):
        a = self.a
        units = [(0, j) for j in range(4)] + [(1, j) for j in range(4)] + [(2, 0)]
        seq, dl = [], {}
        bs = lambda j, o_, n: self.rg((Bs[j][0], Bs[j][1] + o_), n)
        rem = lambda u: (f"v_mfma_f32_16x16x16_bf16 {vr(ACC+4*u,4)}, {rf(AF+18*units[u][0]+16,2)}, {bs(units[u][1],16,2)}, {vr(ACC+4*u,4)}", u)
        A = [afr(t) for t in range(3)]
        Bf = [bfr(j) for j in range(4)]

        def use(t, j, s, k):
            for x in (A[t][2 * s:2 * s + 2] if s < 4 else A[t][8:]) + ([Bf[j][s]] if Bf[j] else []): dl.setdefault(x, k)
        for g in range(4):
            for s in range(4):
                for u in range(3 * g, 3 * g + 3) if g < 3 else []:
                    t, j = units[u]
                    d = vr(ACC + 4 * u, 4)
                    use(t, j, s, len(seq))
                    seq.append((f"v_mfma_f32_16x16x32_bf16 {d}, {rf(AF+18*t+4*s,4)}, {bs(j,4*s,4)}, {'0' if s == 0 else d}", None))
                if s == 0 and g > 0:
                    for u in range(3 * g - 3, 3 * g):
                        use(units[u][0], units[u][1], 4, len(seq)); seq.append(rem(u))
        last = seq[-3:]; seq = seq[:-3]
        ds = sorted(dl.items(), key=lambda e: e[1]) + [(x, 99) for x in other]
        vm_items = list(vm_items)
        lastvm = vm0 - vmsp
        order, ready, q, done = [], [], [], 0

        def issue():
            x, k_ = ds.pop(0); a(x); order.append(k_)

        def wait(k):
            nonlocal done
            idx = [i_ for i_, k_ in enumerate(order) if k_ <= k]
            if idx and max(idx) + 1 > done:
                a(f"s_waitcnt lgkmcnt({min(15, len(order) - 1 - max(idx))})"); done = max(idx) + 1
        while ds and ds[0][1] < 6: issue()
        for k, (m, fin) in enumerate(seq):
            assert not ds or ds[0][1] > k, (k, ds[0])
            wait(k)
            a(m)
            for u_, kk in list(ready):
                if k - kk >= 4: q += post(u_); ready.remove((u_, kk))
            if fin is not None: ready.append((fin, k))
            due = sum(1 for x, k_ in ds if k_ <= k + lead)
            if due == 0 and vm_items and k >= lastvm + vmsp:
                a(vm_items.pop(0)); lastvm = k; continue
            cap = 2
            for _ in range(min(due, 3)): issue(); cap -= 1
            if cap == 2:
                if q and q[0].startswith("ds_"): a(q.pop(0)); order.append(99); cap -= 1
                elif ds: issue(); cap -= 1
            while cap > 0 and q and not q[0].startswith("ds_"):
                a(q.pop(0)); cap -= 1
        assert not ready
        while ds: issue()
        wait(98)
        for x in vm_items: a(x)
        for x in q[:4]: a(x)
        a(f"s_nop {max(0, 4 - len(q[:4]))}")
        for m, _ in last: a(m)
        for x in q[4:]: a(x)
        a(f"s_nop {max(0, 6 - len(q[4:]))}")
        for u in range(6, 9):
            for x in post(u): a(x)

    def gemm(self, reads, B, ACC, AF, late=(), at={}, per=2):
        a = self.a
        buf = lambda T: 18 * (T % 6)
        ng = 3 * (4 * per + 1)

        def grp(g):
            r = [reads(T, buf(T)) for T in range(3 * g, 3 * g + 3)]
            return [r[t][per * s + u] for s in range(4) for t in range(3) for u in range(per)] + [r[t][4 * per] for t in range(3)]
        rem = lambda T: f"v_mfma_f32_16x16x16_bf16 {vr(ACC+4*T,4)}, {ar(buf(T)+16,2)}, {vr(B+16,2)}, {vr(ACC+4*T,4)}"
        pend = grp(0) + grp(1) + grp(2) + list(late)
        issued = k = 0

        def issue(n):
            nonlocal issued
            for _ in range(n):
                if issued < len(pend): a(pend[issued]); issued += 1

        def mf(x):
            nonlocal k
            a(x); issue(per if per == 2 else (2 if k % 4 == 0 else 1))
            if k in at: a(at[k])
            k += 1
        issue(self.o.get('look', 12) if per == 2 else self.o.get('look1', 8))
        for g in range(3):
            for s in range(4):
                need = ng * g + 3 * per * (s + 1)
                a(f"s_waitcnt lgkmcnt({min(15, issued - need)})")
                for T in range(3 * g, 3 * g + 3):
                    d = vr(ACC + 4 * T, 4)
                    mf(f"v_mfma_f32_16x16x32_bf16 {d}, {ar(buf(T)+4*s,4)}, {vr(B+4*s,4)}, {'0' if s == 0 else d}")
                if s == 0 and g > 0:
                    for T in range(3 * g - 3, 3 * g): mf(rem(T))
                if g == 1 and s == 0: assert issued <= 2 * ng + 6 * per, "group 2 overwrites group 0 too early"
        issue(99)
        a(f"s_waitcnt lgkmcnt({len(late)})\ns_nop 2")
        for T in range(6, 9): a(rem(T))
        a("s_nop 7")

    def tr_reads(self, ad, rf=ar):
        def f(T, dst):
            out = []
            for s in range(4):
                for u in range(2):
                    out.append(f"ds_read_b64_tr_b16 {rf(dst+4*s+2*u,2)}, {vr(ad+u)} offset:{9216*s + 32*T}")
            out.append(f"ds_read_b64_tr_b16 {rf(dst+16,2)}, {vr(ad+2)} offset:{36864 + 32*T}")
            return out
        return f

    def row_reads(self, ad, sw=None):
        def f(T, dst):
            r = ad if sw is None or T == 8 else sw[T & 1]
            out = []
            for s in range(4):
                for u in range(2):
                    out.append(f"ds_read_b64 {ar(dst+4*s+2*u,2)}, {vr(r)} offset:{4864*T + 64*s + 32*u}")
            out.append(f"ds_read_b64 {ar(dst+16,2)}, {vr(r)} offset:{4864*T + 256}")
            return out
        return f

    def dma_rows(self, jobs, cpr, rstride, vo, vc, n_first, first_waves, lab):
        a = self.a
        mul = {18: 3641, 19: 3450}[cpr]
        dr, dc = 256 // cpr, 256 % cpr
        a(f"s_lshl_b32 {sr(S_T)}, {sr(S_W)}, 6")
        a(f"v_add_u32 {vr(vc)}, {sr(S_T)}, v0")
        a(f"v_mul_u32_u24 {vr(vo)}, {mul}, {vr(vc)}")
        a(f"v_lshrrev_b32 {vr(vo)}, 16, {vr(vo)}")
        a(f"v_mul_u32_u24 {vr(vc+1)}, {cpr}, {vr(vo)}")
        a(f"v_sub_u32 {vr(vc)}, {vr(vc)}, {vr(vc+1)}")
        a(f"v_mul_u32_u24 {vr(vo)}, {rstride}, {vr(vo)}")
        a(f"v_lshl_add_u32 {vr(vo)}, {vr(vc)}, 4, {vr(vo)}")
        a(f"s_lshl_b32 {sr(S_T)}, {sr(S_W)}, 10")
        a(f"v_mov_b32 {vr(vc+1)}, {rstride - 16*cpr}")
        for k in range(n_first):
            if k == n_first - 1:
                a(f"s_cmp_ge_u32 {sr(S_W)}, {first_waves}\ns_cbranch_scc1 {lab}")
            for srd, so, lb in jobs:
                a(f"s_add_u32 m0, {sr(S_T)}, {lb + 4096*k}")
                a("s_nop 0")
                a(f"buffer_load_dwordx4 {vr(vo)}, {sr(srd,4)}, {so} offen lds")
            if k < n_first - 1:
                a(f"v_add_u32 {vr(vc)}, {dc}, {vr(vc)}")
                a(f"v_cmp_le_u32 vcc, {cpr}, {vr(vc)}")
                a(f"v_add_u32 {vr(vo)}, {dr*rstride + 16*dc}, {vr(vo)}")
                a(f"v_subrev_u32 {vr(vc+2)}, {cpr}, {vr(vc)}")
                a(f"v_cndmask_b32 {vr(vc)}, {vr(vc)}, {vr(vc+2)}, vcc")
                a(f"v_cndmask_b32 {vr(vc+2)}, 0, {vr(vc+1)}, vcc")
                a(f"v_add_u32 {vr(vo)}, {vr(vo)}, {vr(vc+2)}")
        a.label(lab)

    def voff_table(self, dst, cpr, rstride, vc, step=256):
        a = self.a
        mul = {18: 29128, 19: 27595}[cpr]
        n = len(dst)
        a(f"s_mov_b32 {sr(S_T)}, {rstride - 16*cpr}")
        a(f"v_mul_u32_u24 {vr(dst[0])}, {mul}, {vr(vc)}")
        for k in range(1, n): a(f"v_add_u32 {vr(dst[k])}, {(step*k % cpr)*mul}, {vr(dst[0])}")
        for k in range(n): a(f"v_lshrrev_b32 {vr(dst[k])}, 19, {vr(dst[k])}")
        for k in range(n): a(f"v_mad_i32_i24 {vr(dst[k])}, {vr(dst[k])}, {sr(S_T)}, {vr(vc+1)}")

    def dma_lin(self, srd, soff, lb, v16, lab):
        a = self.a
        a(f"s_lshl_b32 {sr(S_T)}, {sr(S_W)}, 10")
        for k in range(11):
            if k == 10:
                a(f"s_cmp_ge_u32 {sr(S_W)}, 1\ns_cbranch_scc1 {lab}")
            a(f"s_add_u32 m0, {sr(S_T)}, {lb + 4096*k}")
            a(f"s_add_u32 {sr(S_T+1)}, {sr(S_T)}, {soff + 4096*k}")
            a(f"buffer_load_dwordx4 {vr(v16)}, {sr(srd,4)}, {sr(S_T+1)} offen lds")
        a.label(lab)

    def tr_addr(self, ad, base, swapped, t):
        a = self.a
        a(f"v_lshrrev_b32 {vr(t)}, 2, v0")
        a(f"v_mul_u32_u24 {vr(t)}, 288, {vr(t)}")
        a(f"v_and_b32 {vr(t+1)}, 3, v0")
        a(f"v_lshl_add_u32 {vr(t)}, {vr(t+1)}, 3, {vr(t)}")
        a(f"v_add_u32 {vr(ad+2)}, {base}, {vr(t)}")
        if swapped:
            a(f"v_bfe_u32 {vr(t)}, v0, 4, 1")
            a(f"v_mul_u32_u24 {vr(t)}, {16*288}, {vr(t)}")
            a(f"v_add_u32 {vr(ad)}, {vr(ad+2)}, {vr(t)}")
            a(f"v_sub_u32 {vr(ad+1)}, {vr(ad+2)}, {vr(t)}")
            a(f"v_add_u32 {vr(ad+1)}, {16*288}, {vr(ad+1)}")
        else:
            a(f"v_mov_b32 {vr(ad)}, {vr(ad+2)}")
            a(f"v_add_u32 {vr(ad+1)}, {16*288}, {vr(ad+2)}")

    def row_addr(self, ad, base, t):
        a = self.a
        a(f"v_and_b32 {vr(t)}, 15, v0")
        a(f"v_mul_u32_u24 {vr(t)}, 304, {vr(t)}")
        a(f"v_lshrrev_b32 {vr(t+1)}, 4, v0")
        a(f"v_lshl_add_u32 {vr(t)}, {vr(t+1)}, 3, {vr(t)}")
        a(f"v_add_u32 {vr(ad)}, {base}, {vr(t)}")

    def store_block(self, src, v16, v8, srd, soff, soff2, flags=""):
        a = self.a
        for s in range(4):
            a(f"buffer_store_dwordx4 {vr(src+4*s,4)}, {vr(v16)}, {sr(srd,4)}, {sr(soff)} offen offset:{1024*s} {flags}")
        a(f"buffer_store_dwordx2 {vr(src+16,2)}, {vr(v8)}, {sr(srd,4)}, {sr(soff2)} offen {flags}")

    def entry(self):
        a = self.a
        kernel_header(a, NAME)
        a(f"s_load_dwordx16 s[56:71], s[0:1], 0")
        a(f"s_load_dwordx8 s[72:79], s[0:1], 64")
        a(f"s_getpc_b64 {sr(S_W1,2)}")
        a.label("L_pf")
        hl = self.o.get("hlast", 0)
        assert not hl
        a(f"""s_cmp_ge_u32 s2, {NH}
        s_cbranch_scc1 L_main
        s_memrealtime s[4:5]
        s_waitcnt lgkmcnt(0)
        s_mov_b32 {sr(S_DB)}, s76
        s_mov_b32 {sr(S_DB+1)}, s77
        s_mov_b32 {sr(S_DB+2)}, 256
        s_mov_b32 {sr(S_DB+3)}, 0x20000
        v_lshlrev_b32 v1, 8, v0
        s_or_b32 s4, s4, 1
        v_mov_b32 v2, s4
        s_lshl_b32 s5, s2, 8
        buffer_store_dword v2, v1, {sr(S_DB,4)}, s5 offen sc1
        s_branch L_wfuse""")
        a.label("L_main")
        cpf = self.o.get("cpf", 0)
        cp = self.cp = [f"buffer_load_dwordx4 v[252:255], v2, {sr(S_W1,4)}, 0 offen", f"buffer_load_dwordx4 v[252:255], v2, {sr(S_W1,4)}, s3 offen"]
        a(f"""s_mov_b32 {sr(S_W1+2)}, L_dummy-L_pf
        s_mov_b32 {sr(S_W1+3)}, 0x20000
        v_lshlrev_b32 v2, 4, v0
        s_bfe_u32 s3, s2, 0x30003
        s_lshl_b32 s3, s3, 12
        {cp[0] if cpf in (0, 2) else ""}
        {cp[1] if cpf == 0 else ""}
        s_cmp_ge_u32 s2, {NWG - NH * hl}
        s_cbranch_scc1 {"L_wfuse" if hl else "L_end"}""")
        if self.o.get("late"):
            m_, v_, n_ = self.o["late"]
            a(f"""s_and_b32 s3, s2, {m_}
            s_cmp_lg_u32 s3, {v_}
            s_cbranch_scc1 L_nl
            s_memrealtime s[4:5]
            s_waitcnt lgkmcnt(0)
            s_add_u32 s6, s4, {n_}
            L_lt:
            s_memrealtime s[4:5]
            s_waitcnt lgkmcnt(0)
            s_sub_u32 s7, s6, s4
            s_cmp_gt_i32 s7, 0
            s_cbranch_scc1 L_lt
            L_nl:""")
        if self.o.get("stamps"):
            a("s_memrealtime s[100:101]" if not self.o.get("cyc") else "s_memtime s[100:101]")
        self.mp = 2
        a(f"""v_lshrrev_b32 v1, 6, v0
        s_sub_u32 s2, s2, {0 if hl else NH}
        v_readfirstlane_b32 {sr(S_W)}, v1
        s_and_b32 {sr(S_H)}, s2, 1
        s_bfe_u32 {sr(S_B)}, s2, 0x10001
        s_lshr_b32 {sr(S_QB)}, s2, 2
        v_and_b32 v0, 63, v0
        v_lshlrev_b32 {vr(V_DMA)}, 4, v0""")

    def vm_since(self, mark):
        return sum(1 for l in self.a.lines[mark:] if l.strip().startswith("buffer_"))

    def phase_a(self):
        a, o = self.a, self.o
        XR, XF, XA, ACC, G_, PK = 16, 34, 146, 110, 16, 164
        B4, XD = 16, 88
        VS, VSW, VR4, MXA, MXR, L8, TRU, TRQ, TRQ8, RK, TM = 200, 204, 208, 212, 213, 214, 215, 218, 221, 224, 228
        VK, VU = list(range(182, 193)), list(range(193, 200)) + list(range(104, 108))
        AQ1 = 200
        t0, t1, t2 = 250, 251, 227
        T = S_T
        WV, W10, UOFF, M1, PUB, M3 = 72, 70, 71, 69, 68, 65
        a(f"""s_lshl_b32 {sr(T)}, {sr(S_QB)}, 1
        s_add_u32 {sr(S_TOWN)}, {sr(T)}, {sr(S_H)}
        s_xor_b32 {sr(S_TSND)}, {sr(S_TOWN)}, 1
        s_cmp_lt_u32 {sr(S_TOWN)}, {NT}
        s_cselect_b32 {sr(S_VAL)}, 1, 0
        s_cmp_lt_u32 {sr(S_W)}, 2
        s_cselect_b32 {sr(T+3)}, {sr(S_TSND)}, {sr(S_TOWN)}
        s_mul_i32 {sr(T)}, {sr(S_B)}, {NT}
        s_add_u32 {sr(S_TOWN)}, {sr(S_TOWN)}, {sr(T)}
        s_add_u32 {sr(S_TSND)}, {sr(S_TSND)}, {sr(T)}
        s_add_u32 {sr(T+1)}, {sr(T+3)}, {sr(T)}
        s_lshl_b32 {sr(T+1)}, {sr(T+1)}, 1
        s_and_b32 {sr(T+2)}, {sr(S_W)}, 1
        s_add_u32 {sr(T+2)}, {sr(T+1)}, {sr(T+2)}
        s_mul_i32 {sr(T+1)}, {sr(T+2)}, {16*288}
        s_mul_i32 {sr(S_LB)}, {sr(S_W)}, {BLK}
        s_add_u32 {sr(S_LB)}, {sr(S_LB)}, {L_XS}
        s_mov_b32 m0, {sr(S_LB)}
        s_mov_b32 {sr(S_X+2)}, 2304000
        s_mov_b32 {sr(S_X+3)}, 0x20000
        s_add_u32 {sr(S_CNT)}, {sr(T+1)}, 4096
        s_waitcnt lgkmcnt(0)
        s_mov_b32 {sr(S_X)}, s56
        s_mov_b32 {sr(S_X+1)}, s57""")
        for k in range(4): a(f"buffer_load_dwordx4 {vr(V_DMA)}, {sr(S_X,4)}, {sr(T+1)} offen offset:{1024*k} lds")
        a(f"s_add_u32 m0, {sr(S_LB)}, 4096\ns_mov_b32 exec_hi, 0\nbuffer_load_dwordx4 {vr(V_DMA)}, {sr(S_X,4)}, {sr(S_CNT)} offen lds\ns_mov_b32 exec_hi, -1")
        mx = len(a.lines)
        if o.get("cpf", 0) == 1: a(self.cp[0])
        if o.get("cpf", 0) in (1, 2, 4): a(self.cp[1])
        SQ, SK, SU = S_W2, S_W1, S_XA
        self.srd(SU, 66, 67, 82944)
        self.srd(SQ, 58, 59, 41472)
        self.srd(SK, 60, 61, 41472)
        a(f"s_lshr_b32 {sr(T)}, s2, 3\ns_lshl_b32 {sr(T)}, {sr(T)}, 12\ns_lshl_b32 {sr(W10)}, {sr(S_W)}, 10\ns_add_u32 {sr(T)}, {sr(T)}, {sr(W10)}")
        a(f"buffer_load_dwordx4 v[252:255], {vr(V_DMA)}, {sr(SU,4)}, {sr(T)} offen")
        for srd_, rot in ((SQ, 82), (SK, 41)):
            a(f"s_add_u32 {sr(T+1)}, {sr(T)}, {(128 - rot) * 1024}\ns_and_b32 {sr(T+1)}, {sr(T+1)}, {127 * 1024}")
            a(f"buffer_load_dwordx4 v[252:255], {vr(V_DMA)}, {sr(srd_,4)}, {sr(T+1)} offen")
        self.srd(S_OUT, 74, 75, 2304000)
        self.srd(S_DB, 76, 77, 256)
        self.srd(S_WS, 78, 79, WS_END)
        def tlb():
            a(f"v_lshlrev_b32 v249, 21, v0")
            for ch in o.get("tlbw", "wdo"): a(f"buffer_load_dword v252, v249, {sr(dict(w=S_WS, d=S_DB, o=S_OUT)[ch],4)}, 0 offen")
        if o.get("tlb", 0) == 1: tlb()
        if o.get("tlb", 3) == 3:
            a(f"""s_bfe_u32 {sr(T)}, s2, 0x30003
            s_lshl_b32 {sr(T)}, {sr(T)}, 21
            v_mov_b32 v249, 0
            s_cmp_lt_u32 {sr(T)}, {5 << 21}
            s_cbranch_scc0 L_tl1
            buffer_load_dword v252, v249, {sr(S_WS,4)}, {sr(T)} offen
            s_branch L_tl3
            L_tl1:
            s_sub_u32 {sr(T)}, {sr(T)}, {5 << 21}
            s_cmp_lt_u32 {sr(T)}, {2 << 21}
            s_cbranch_scc0 L_tl2
            buffer_load_dword v252, v249, {sr(S_OUT,4)}, {sr(T)} offen
            s_branch L_tl3
            L_tl2:
            v_lshlrev_b32 v249, {o.get("dsh", 6)}, v0
            buffer_load_dword v252, v249, {sr(S_DB,4)}, 0 offen {o.get("dfl", "")}
            L_tl3:""")
            self.vm_adj = -2
        if o.get("stamps"): a(f"s_mov_b64 {sr(S_ST,2)}, s[100:101]"); self.stnames.append("start"); self.nst = 1
        self.stamp("xiss")
        a(f"""s_cmp_lt_u32 {sr(T+3)}, {NT}
        s_cselect_b32 {sr(WV)}, 1, 0
        s_mov_b32 {sr(WV+1)}, {sr(T+2)}
        s_mul_i32 {sr(UOFF)}, {sr(S_H)}, 288
        s_cmp_eq_u32 {sr(S_W)}, 0
        s_cselect_b32 {sr(M1)}, 0, {L_DUMP}
        s_cmp_lt_u32 {sr(S_W)}, 3
        s_cselect_b32 {sr(M3)}, {sr(W10)}, {L_DUMP}""")
        half = lambda g_: "s_mov_b32 exec_hi, 0\n" + g_ + "\ns_mov_b32 exec_hi, -1"
        gu = [f"s_add_u32 m0, {sr(W10 if k < 10 else M1)}, {L_WU + 4096*k}\ns_add_u32 {sr(S_CNT)}, {sr(UOFF)}, {4096*k + 288*(256*k//18)}\nbuffer_load_dwordx4 {vr(VU[k])}, {sr(SU,4)}, {sr(S_CNT)} offen lds" for k in range(11)]
        gu[10] = half(gu[10])
        gq = [f"s_add_u32 m0, {sr(W10 if k < 10 else M1)}, {L_WQ + 4096*k}\ns_add_u32 {sr(S_CNT)}, {sr(W10)}, {4096*k}\nbuffer_load_dwordx4 {vr(V_DMA)}, {sr(SQ,4)}, {sr(S_CNT)} offen lds" for k in range(11)]
        gq[10] = half(gq[10])
        gk = [f"s_add_u32 m0, {sr(W10 if k < 10 else M3)}, {L_WK + 4096*k}\ns_mov_b32 {sr(S_CNT)}, {4096*k - 16*(256*k//19)}\nbuffer_load_dwordx4 {vr(VK[k])}, {sr(SK,4)}, {sr(S_CNT)} offen lds" for k in range(11)]
        a(f"s_lshl_b32 {sr(T)}, {sr(S_W)}, 6\nv_add_u32 {vr(t0)}, {sr(T)}, v0\nv_lshlrev_b32 {vr(t1)}, 4, {vr(t0)}")
        self.voff_table(VU, 18, 576, t0)
        npre = o.get("npre", 3)
        a.bg, a.every, a.cnt = gu[:npre], o.get("evpre", 40), 0
        self.voff_table(VK, 19, 288, t0)
        xa0, xa1, xa2 = TM, TM + 1, TM + 2
        a(f"""v_and_b32 {vr(t0)}, 15, v0
        v_lshrrev_b32 {vr(t1)}, 5, v0
        v_lshlrev_b32 {vr(t1)}, 3, {vr(t1)}
        v_xor_b32 {vr(t1)}, {vr(t0)}, {vr(t1)}
        v_lshlrev_b32 {vr(t1)}, 4, {vr(t1)}
        v_lshrrev_b32 {vr(t2)}, 4, v0
        v_lshl_add_u32 {vr(V_KA)}, {vr(t2)}, 9, {vr(t1)}
        v_lshrrev_b32 {vr(t1)}, 3, {vr(t0)}
        v_lshlrev_b32 {vr(t1)}, 1, {vr(t1)}
        v_xor_b32 {vr(t1)}, {vr(t2)}, {vr(t1)}
        v_lshl_add_u32 {vr(t1)}, {vr(t0)}, 2, {vr(t1)}
        v_lshlrev_b32 {vr(V_KA+1)}, 3, {vr(t1)}
        v_lshlrev_b32 {vr(L8)}, 3, v0
        v_lshlrev_b32 {vr(MXR)}, 4, {vr(t0)}
        v_add_u32 {vr(MXR)}, {L_MX}, {vr(MXR)}
        v_add_u32 {vr(MXA)}, {sr(S_W)}, {vr(t2)}
        v_and_b32 {vr(MXA)}, 3, {vr(MXA)}
        v_lshl_add_u32 {vr(MXA)}, {vr(MXA)}, 8, {vr(MXR)}
        s_lshl_b32 {sr(T)}, {sr(S_W)}, 2
        v_add_u32 {vr(MXA)}, {sr(T)}, {vr(MXA)}
        v_mul_u32_u24 {vr(xa2)}, 288, {vr(t0)}
        v_lshl_add_u32 {vr(xa2)}, {vr(t2)}, 3, {vr(xa2)}
        v_add_u32 {vr(xa2)}, {sr(S_LB)}, {vr(xa2)}
        v_and_b32 {vr(t1)}, 1, {vr(t2)}
        v_lshlrev_b32 {vr(t1)}, 5, {vr(t1)}
        v_add_u32 {vr(xa0)}, {vr(xa2)}, {vr(t1)}
        v_xor_b32 {vr(t1)}, 32, {vr(t1)}
        v_add_u32 {vr(xa1)}, {vr(xa2)}, {vr(t1)}
        s_mul_i32 {sr(S_LB)}, {sr(S_W)}, {TILE}
        v_lshrrev_b32 {vr(t0)}, 2, v0
        v_bfe_u32 {vr(t1)}, v0, 1, 1
        v_lshlrev_b32 {vr(t1)}, 3, {vr(t1)}
        v_xor_b32 {vr(t1)}, {vr(t0)}, {vr(t1)}
        v_lshlrev_b32 {vr(t1)}, 4, {vr(t1)}
        v_and_b32 {vr(t2)}, 3, v0
        v_lshl_add_u32 {vr(t1)}, {vr(t2)}, 9, {vr(t1)}
        v_and_b32 {vr(V_VA)}, 1, v0
        v_lshl_add_u32 {vr(t1)}, {vr(V_VA)}, 3, {vr(t1)}
        s_and_b32 {sr(T)}, {sr(S_W)}, 1
        s_lshl_b32 {sr(T)}, {sr(T)}, 12
        s_add_u32 {sr(T+1)}, {sr(T)}, {sr(S_LB)}
        s_xor_b32 {sr(T)}, {sr(T)}, 4096
        s_add_u32 {sr(T)}, {sr(T)}, {sr(S_LB)}
        v_add_u32 {vr(V_VA)}, {sr(T)}, {vr(t1)}
        v_add_u32 {vr(V_VB)}, {sr(T+1)}, {vr(t1)}
        v_xor_b32 {vr(V_VA+1)}, 8, {vr(V_VA)}
        v_xor_b32 {vr(V_VB+1)}, 8, {vr(V_VB)}
        v_lshrrev_b32 {vr(t1)}, 5, v0
        v_lshlrev_b32 {vr(t1)}, 1, {vr(t1)}
        v_xor_b32 {vr(t1)}, {vr(t2)}, {vr(t1)}
        v_lshl_add_u32 {vr(t1)}, {vr(t0)}, 2, {vr(t1)}
        v_lshlrev_b32 {vr(t1)}, 3, {vr(t1)}
        v_add_u32 {vr(V_VR)}, {sr(S_LB)}, {vr(t1)}
        v_add_u32 {vr(V_DMA+1)}, 4096, {vr(V_DMA)}
        v_add_u32 {vr(V_DMA+2)}, 8192, {vr(V_DMA)}""")
        self.tr_addr(TRU, L_WU, True, t0)
        a(f"s_lshl_b32 {sr(T)}, {sr(S_W)}, 6\ns_add_u32 {sr(T)}, {sr(T)}, {L_WQ - L_WU}")
        for k in range(3):
            a(f"v_add_u32 {vr(TRQ+k)}, {sr(T)}, {vr(TRU+k)}\nv_add_u32 {vr(TRQ8+k)}, {L_WQ - L_WU + 256}, {vr(TRU+k)}")
        self.row_addr(RK + 2, L_WK + 8 * 4864, t0)
        a(f"""s_mul_i32 {sr(T)}, {sr(S_W)}, {2*4864}
        s_sub_u32 {sr(T)}, {sr(T)}, {8*4864}
        v_add_u32 {vr(t1)}, {sr(T)}, {vr(RK+2)}
        v_bfe_u32 {vr(t0)}, v0, 2, 1
        v_mul_u32_u24 {vr(t0)}, 4864, {vr(t0)}
        v_add_u32 {vr(RK)}, {vr(t1)}, {vr(t0)}
        v_sub_u32 {vr(RK+1)}, {vr(t1)}, {vr(t0)}""")
        for j in range(4):
            a(f"""s_add_u32 {sr(T)}, {sr(S_W)}, {j}
            s_and_b32 {sr(T)}, {sr(T)}, 3
            s_lshl_b32 {sr(T+1)}, {sr(T)}, 12
            s_add_u32 {sr(T+1)}, {sr(T+1)}, {L_XX}
            v_add_u32 {vr(VS+j)}, {sr(T+1)}, {vr(V_DMA)}
            s_lshl_b32 {sr(T+1)}, {sr(T)}, 9
            s_add_u32 {sr(T+1)}, {sr(T+1)}, {L_XR}
            v_add_u32 {vr(VR4+j)}, {sr(T+1)}, {vr(L8)}
            v_add_u32 {vr(VSW+j)}, {sr(W10)}, {vr(VS+j)}""")
        a(f"""s_sub_u32 {sr(T+2)}, 63, {sr(S_H)}
        s_add_u32 {sr(T+3)}, {sr(S_W)}, 60
        s_cmp_ge_u32 {sr(T+3)}, {sr(T+2)}
        s_cselect_b32 {sr(S_DUM)}, 4, 99
        s_mov_b32 {sr(S_REDO)}, 0
        s_mov_b32 {sr(S_TOFF)}, {sr(S_LB)}
        s_lshl_b32 {sr(PUB)}, {sr(S_TOWN)}, 8
        s_add_u32 {sr(PUB)}, {sr(PUB)}, {WS_F}
        s_cmp_eq_u32 {sr(S_W)}, 2
        s_cselect_b32 {sr(T)}, {sr(S_VAL)}, 0
        s_cmp_eq_u32 {sr(T)}, 1
        s_cselect_b32 {sr(PUB)}, {sr(PUB)}, 0x40000000
        s_lshl_b32 {sr(S_FB)}, s2, 8
        s_add_u32 {sr(S_FB)}, {sr(S_FB)}, {WS_F + 250*256}
        s_mul_i32 {sr(T)}, {sr(S_H)}, 1792
        s_sub_u32 {sr(T)}, {sr(T)}, 768
        s_mul_i32 {sr(T+1)}, {sr(S_H)}, 62
        s_cmp_eq_u32 {sr(S_QB)}, {sr(T+1)}
        s_cselect_b32 {sr(T)}, 0, {sr(T)}
        v_mov_b32 {vr(self.VPL)}, 0x40000000
        s_xor_b32 {sr(T+1)}, {sr(S_FB)}, 256
        s_add_u32 {sr(T)}, {sr(T)}, {sr(S_FB)}
        v_writelane_b32 {vr(self.VPL)}, {sr(S_FB)}, 0
        v_writelane_b32 {vr(self.VPL)}, {sr(T+1)}, 1
        v_writelane_b32 {vr(self.VPL)}, {sr(T)}, 2
        s_mov_b32 {sr(T)}, {WS_F + 502*256}
        s_mov_b32 {sr(T+1)}, {WS_F + 503*256}
        v_writelane_b32 {vr(self.VPL)}, {sr(T)}, 3
        v_writelane_b32 {vr(self.VPL)}, {sr(T+1)}, 4
        s_sub_u32 {sr(S_FB)}, {sr(S_FB)}, {L_PC}""")
        a.flush()
        if o.get("tlb", 0) == 2: tlb()
        self.stamp("pre")
        if o.get("es", 0) == 0: self.epi_setup()
        self.stamp("es")
        nx = self.vm_since(mx) + getattr(self, "vm_adj", 0)
        if o.get("touch", 1):
            a(f"""s_mov_b64 exec, 0
            s_cmp_eq_u32 {sr(S_W)}, 0
            s_cbranch_scc1 L_tr
            s_cmp_eq_u32 {sr(S_W)}, 1
            s_cbranch_scc1 L_t0
            s_cmp_eq_u32 {sr(S_W)}, 2
            s_cbranch_scc1 L_t1
            s_branch L_t2""")
            self.rare()
            a.raw(".p2align 12")
            a.label("L_tr")
            a("s_mov_b64 exec, -1")
        nlate = o.get("nlate", 0)
        for g_ in gu[npre:npre + nlate]: a(g_)
        a(f"s_waitcnt vmcnt({nx + nlate})")
        self.stamp("xarr")
        for s in range(4):
            a(f"ds_read_b64 {vr(XR+4*s,2)}, {vr(xa0)} offset:{64*s}\nds_read_b64 {vr(XR+4*s+2,2)}, {vr(xa1)} offset:{64*s}")
        a(f"ds_read_b64 {vr(XR+16,2)}, {vr(xa2)} offset:256")
        a(f"""s_and_b32 {sr(T)}, {sr(S_W)}, 1
        s_mul_i32 {sr(T+2)}, {sr(S_TOWN)}, {TILE}
        s_cmp_eq_u32 {sr(S_VAL)}, 1
        s_cselect_b32 {sr(T+2)}, {sr(T+2)}, 0x40000000
        s_lshl_b32 {sr(T+3)}, {sr(T)}, 8
        s_add_u32 {sr(T+3)}, {sr(T+3)}, {sr(T+2)}
        s_add_u32 {sr(T+4)}, {sr(T+3)}, 4096
        s_lshl_b32 {sr(T+5)}, {sr(T)}, 9
        s_add_u32 {sr(T+5)}, {sr(T+5)}, {sr(T+2)}
        s_add_u32 {sr(T+5)}, {sr(T+5)}, 8192
        s_waitcnt lgkmcnt(0)""")
        wl = gq + gk
        a.bg, a.every, a.cnt = gu[npre + nlate:] + [wl.pop(0) for _ in range(o.get("nql", 4))], o.get("evln", 8), 0
        self.ln_packed(XR, XF, XA, TM)
        a.flush()
        self.stamp("ln")
        a(f"s_cmp_lt_u32 {sr(S_W)}, 2\ns_cbranch_scc1 L_nop")
        for s in range(4):
            a(f"buffer_store_dwordx4 {vr(XA+4*s,4)}, {vr(V_KA)}, {sr(S_WS,4)}, {sr(T+3+(s>>1))} offen offset:{2048*(s&1)} sc1")
        a(f"buffer_store_dwordx2 {vr(XA+16,2)}, {vr(V_KA+1)}, {sr(S_WS,4)}, {sr(T+5)} offen sc1\ns_waitcnt vmcnt({5 + o.get('nql', 4)})\ns_branch L_bar1")
        a.label("L_nop")
        if o.get("touch", 1):
            a(f"s_mov_b64 exec, 0\ns_cmp_eq_u32 {sr(S_W)}, 0\ns_cbranch_scc1 L_t3\ns_branch L_t4")
            a.label("L_tr2")
            a("s_mov_b64 exec, -1")
        a(f"s_waitcnt vmcnt({o.get('nql', 4)})")
        a.label("L_bar1")
        self.stamp("pub")
        xw = [f"ds_write_b128 {vr(VS)}, {vr(XA+4*s,4)} offset:{1024*s}" for s in range(4)] + [f"ds_write_b64 {vr(VR4)}, {vr(XA+16,2)}"]
        self.stamp("tch")
        PA = 249
        a(f"""v_add_u32 {vr(V_KA)}, {sr(S_LB)}, {vr(V_KA)}
        v_add_u32 {vr(V_KA+1)}, {sr(S_LB)}, {vr(V_KA+1)}
        s_mul_i32 {sr(T)}, {sr(S_B)}, {NT}
        s_mul_i32 {sr(T+1)}, {sr(S_H)}, 63
        s_add_u32 {sr(T)}, {sr(T)}, {sr(T+1)}
        s_lshl_b32 {sr(T)}, {sr(T)}, 8
        s_add_u32 {sr(T)}, {sr(T)}, {WS_F}
        s_cmp_eq_u32 {sr(S_W)}, 0
        s_cselect_b32 {sr(T)}, {sr(T)}, 0x40000000
        v_lshl_add_u32 {vr(PA)}, v0, 8, {sr(T)}
        {self.xa_srd()}
        s_waitcnt lgkmcnt(0)""")
        self.stamp("w1")
        a("s_barrier")
        self.stamp("bar1")
        poll = lambda r: f"buffer_load_dword {vr(r)}, {vr(PA)}, {sr(S_WS,4)}, 0 offen sc1"

        def gate(lab, r, mask, younger):
            a(f"s_mov_b32 {sr(T+2)}, 0\ns_waitcnt vmcnt({younger})")
            a.label(lab)
            a(f"""v_cmp_ne_u32 vcc, {sr(S_N)}, {vr(r)}
            s_add_u32 {sr(T+2)}, {sr(T+2)}, 1
            s_and_b64 vcc, vcc, {mask}
            s_cbranch_scc0 {lab}_ok
            s_sleep {o.get("slp", 4)}
            {poll(r)}
            s_waitcnt vmcnt(0)
            s_cmp_lt_u32 {sr(T+2)}, 0x40000
            s_cbranch_scc1 {lab}""")
            a.label(lab + "_ok")

        H, G_, UG, MS, CL = 16, 52, 208, 110, 104
        nup = o.get("nup", 12)
        at = {o.get("u0", 6) + o.get("usp", 3) * i: wl.pop(0) for i in range(nup)}
        for i in range(5): at[i] = xw[i]
        tagld = f"buffer_load_dword v253, off, {sr(S_DB,4)}, 0 sc1"
        at[o.get("tgp", 5)] = tagld
        if o.get("es", 0) == 1:
            n_ = len(a.lines); self.epi_setup()
            el = [l.strip() for l in a.lines[n_:]]; del a.lines[n_:]
            for k in range(5, 42):
                if k in at: continue
                c_ = 0
                while el and c_ < o.get("esn", 2):
                    x = el.pop(0); at[k] = at.get(k, "") + x + "\n"; c_ += 1 if x.startswith("v_") else 0.5
            self.es_left = el
        self.gemm(self.tr_reads(TRU), XA, H, None, at=at)
        if o.get("es", 0) == 1:
            for x in self.es_left: a(x)
        self.stamp("up")
        last = lambda srd: max(i for i, l in enumerate(a.lines) if l.strip().startswith("buffer_load") and sr(srd, 4) in l) + 1
        assert not any(sr(SQ, 4) in x for x in wl)
        a(f"v_lshlrev_b32 {vr(t0)}, 2, v0\ns_mov_b32 {sr(T+2)}, 0\ns_waitcnt vmcnt({self.vm_since(last(SQ))}) lgkmcnt(0)")
        a.label("L_tag")
        a(f"""v_readfirstlane_b32 {sr(S_N)}, v253
        s_add_u32 {sr(T+2)}, {sr(T+2)}, 1
        s_cmp_lg_u32 {sr(S_N)}, 0
        s_cbranch_scc1 L_tag_ok
        {tagld}
        s_waitcnt vmcnt(0)
        s_cmp_lt_u32 {sr(T+2)}, 0x40000
        s_cbranch_scc1 L_tag""")
        a.label("L_tag_ok")
        m_g = len(a.lines)
        a(f"v_mov_b32 {vr(t1)}, {sr(S_N)}\ns_barrier\nbuffer_store_dword {vr(t1)}, {vr(t0)}, {sr(S_WS,4)}, {sr(PUB)} offen sc1")
        self.stamp("barG")
        if o.get("atw"):
            a("s_waitcnt vmcnt(0)")
            self.stamp("ack")
        if o.get("census"):
            k_ = S_ST + 2 * self.stnames.index(o["census"][0])
            a(f"s_waitcnt lgkmcnt(0)\nv_mov_b32 v252, {sr(k_)}\ns_lshl_b32 {sr(T)}, s2, 2\ns_add_u32 {sr(T)}, {sr(T)}, {WS_DBG}\nv_mov_b32 v253, 0\nbuffer_store_dword v252, v253, {sr(S_WS,4)}, {sr(T)} offen sc1")

        def a_tr(t):
            ad, off = (TRQ, 32 * t) if t < 2 else (TRQ8, 0)
            return [f"ds_read_b64_tr_b16 {ar(AQ1+18*t+4*s+2*u,2)}, {vr(ad+u)} offset:{9216*s + off}" for s in range(4) for u in range(2)] + \
                   [f"ds_read_b64_tr_b16 {ar(AQ1+18*t+16,2)}, {vr(ad+2)} offset:{36864 + off}"]

        def a_row(t):
            off = 4864 * t if t < 2 else 0
            return [f"ds_read_b64 {ar(A_Q+18*t+4*s+2*u,2)}, {vr(RK+t)} offset:{off + 64*s + 32*u}" for s in range(4) for u in range(2)] + \
                   [f"ds_read_b64 {ar(A_Q+18*t+16,2)}, {vr(RK+t)} offset:{off + 256}"]
        bq = lambda j, d=0: [f"ds_read_b128 {ar(18*j+4*s,4)}, {vr(VS+j)} offset:{d + 1024*s}" for s in range(4)] + [f"ds_read_b64 {ar(18*j+16,2)}, {vr(VR4+j)} offset:{d}"]

        def post(u, scale, d):
            L = [f"v_mul_f32 {vr(ACC+4*u+i)}, {sr(T+4)}, {vr(ACC+4*u+i)}" for i in range(4)] if scale else []
            L += [f"v_cvt_pk_bf16_f32 {vr(PK + (4*(u&3) + 2*(u>>2) if u < 8 else 16) + h)}, {vr(ACC+4*u+2*h)}, {vr(ACC+4*u+2*h+1)}" for h in range(2)]
            if 4 <= u < 8: L.append(f"ds_write_b128 {vr(VSW+u-4)}, {vr(PK+4*(u-4),4)} offset:{d}")
            if u == 8: L.append(f"ds_write_b64 {vr(VR4)}, {vr(PK+16,2)} offset:{d}")
            return L
        xd = [f"ds_read_b128 {vr(XD+4*j,4)}, {vr(VSW+j)}" for j in range(4)]
        self.gemm_u(AQ1, ar, [("v", XA), ("a", 18), ("a", 36), ("a", 54)], ACC, a_tr, lambda j: bq(j) if j else None, lambda u: post(u, False, L_QD),
                    vm_items=wl, other=xd, vmsp=o.get("vmsp", 3))
        self.stamp("g1")
        assert last(SK) > m_g
        for i in range(4): a(f"v_mov_b32 {vr(CL+i)}, -1")
        a(f"s_lshl2_add_u32 {sr(T+2)}, s2, {sr(S_W)}\ns_mul_i32 {sr(T+2)}, {sr(T+2)}, 2560\ns_add_u32 {sr(T+2)}, {sr(T+2)}, {WS_IB}")
        a(f"s_mov_b32 {sr(T+4)}, {f32(LOG2E / 12.0)}\ns_waitcnt vmcnt({self.vm_since(last(SK))}) lgkmcnt(0)\ns_barrier")
        clr = [f"buffer_store_dwordx4 {vr(CL,4)}, {vr(V_DMA)}, {sr(S_WS,4)}, {sr(T+2)} offen sc1",
               f"buffer_store_dwordx4 {vr(CL,4)}, {vr(V_DMA)}, {sr(S_WS,4)}, {sr(T+2)} offen offset:1024 sc1",
               f"buffer_store_dwordx2 {vr(CL,2)}, {vr(L8)}, {sr(S_WS,4)}, {sr(T+2)} offen offset:2048 sc1"]
        self.stamp("bar2")
        self.gemm_u(A_Q, ar, [("a", 18 * j) for j in range(4)], ACC, a_row, lambda j: bq(j, L_QD), lambda u: post(u, True, 0), vm_items=[poll(252)] + clr, vm0=o.get("pg", 12), vmsp=o.get("csp", 8))
        self.stamp("g2")
        p = lambda r: vr(r, 2)
        CC = TM
        for j in range(4): a(f"v_dot2_f32_bf16 {vr(CC+j)}, {vr(PK+4*j)}, {vr(XD+4*j)}, 0")
        for i in range(2): a(f"v_dot2_f32_bf16 {vr(CC)}, {vr(PK+16+i)}, {vr(XA+16+i)}, {vr(CC)}")
        for i in range(1, 4):
            for j in range(4): a(f"v_dot2_f32_bf16 {vr(CC+j)}, {vr(PK+4*j+i)}, {vr(XD+4*j+i)}, {vr(CC+j)}")
        QE = TRQ
        a(f"""s_xor_b32 {sr(T+1)}, {sr(self.NB)}, 1
        v_add_u32 {vr(t0)}, {L_XX}, {vr(V_DMA)}
        v_lshl_add_u32 {vr(QE)}, {sr(T+1)}, 12, {vr(t0)}
        v_lshl_add_u32 {vr(QE+1)}, {sr(self.NB)}, 12, {vr(t0)}""")
        self.treduce(CC)
        a(f"""ds_write_b32 {vr(MXA)}, {vr(CC)}
        v_add_u32 {vr(t0)}, {L_XR}, {vr(L8)}
        v_lshl_add_u32 {vr(QE+2)}, {sr(T+1)}, 9, {vr(t0)}
        v_lshl_add_u32 {vr(QE+3)}, {sr(self.NB)}, 9, {vr(t0)}
        v_lshl_add_u32 {vr(QE+4)}, {sr(T+1)}, 8, {vr(MXR)}
        v_lshl_add_u32 {vr(QE+5)}, {sr(self.NB)}, 8, {vr(MXR)}
        s_sub_u32 {sr(T+5)}, 63, {sr(S_H)}
        s_bfm_b64 {sr(T+8,2)}, {sr(T+5)}, 0
        s_lshr_b32 {sr(T+6)}, s2, 3
        s_lshl_b32 {sr(T+6)}, {sr(T+6)}, 12
        s_add_u32 {sr(T+6)}, {sr(T+6)}, {sr(W10)}
        s_cmp_lg_u32 {sr(S_W)}, 0
        s_cbranch_scc1 L_ga_ok""")
        gate("L_ga", 252, sr(T + 8, 2), 3)
        a("s_waitcnt lgkmcnt(0)\ns_barrier")
        self.stamp("bar3")
        c1 = -2.0 * math.sqrt(2.0 / math.pi) * LOG2E
        c2 = c1 * 0.044715
        qrd = [f"ds_read_b128 {vr(MS+4*qb,4)}, {vr(QE+4+(qb&1))} offset:{512*(qb>>1)}" for qb in range(4)]
        for qb in range(4):
            qrd += [f"ds_read_b128 {ar(A_Q+18*qb+4*s,4)}, {vr(QE+(qb&1))} offset:{8192*(qb>>1) + 1024*s}" for s in range(4)]
            qrd.append(f"ds_read_b64 {ar(A_Q+18*qb+16,2)}, {vr(QE+2+(qb&1))} offset:{1024*(qb>>1)}")
        tg = self.tile_groups(0) + self.tile_groups(1) + self.tile_groups(2)[:8]
        n0 = o.get("n0", 3)
        for k in range(o.get("tpf", 0)):
            a(f"s_add_u32 {sr(T+7)}, {sr(T+6)}, {o.get('tpf0', 4*TILE) + 131072*k}\nbuffer_load_dwordx4 v[252:255], {vr(V_DMA)}, {sr(S_XA,4)}, {sr(T+7)} offen")
        for x in tg[:n0]: a(x)
        a(f"v_mov_b32 {vr(CC)}, {f32(c1)}\nv_mov_b32 {vr(CC+2)}, {f32(c2)}\nv_mov_b32 {vr(CC+4)}, 1.0")
        nq1, nt1 = o.get("nq1", 8), o.get("nt1", 5)
        bgl = []
        for i in range(max(nq1 // 2, nt1)):
            if 2 * i < nq1: bgl.append(qrd[2 * i] + "\n" + qrd[2 * i + 1])
            if i < nt1: bgl.append(tg[n0 + i])
        tg, qrd = tg[n0 + nt1:], qrd[nq1:]
        a.bg, a.every, a.cnt = bgl, 54 // (len(bgl) + 1), 0
        for i in range(18): a(f"v_pk_mul_f32 {p(G_+2*i)}, {p(H+2*i)}, {p(H+2*i)}")
        for i in range(18): a(f"v_pk_fma_f32 {p(G_+2*i)}, {p(G_+2*i)}, {p(CC+2)}, {p(CC)} op_sel_hi:[1,0,0]")
        for i in range(18): a(f"v_pk_mul_f32 {p(G_+2*i)}, {p(G_+2*i)}, {p(H+2*i)}")
        a.flush()
        self.stamp("ge1")
        esp = o.get("esp", 4)
        for i in range(36):
            a(f"v_exp_f32 {vr(G_+i)}, {vr(G_+i)}")
            if i % esp == 1 and tg: a(tg.pop(0))
            if i % 8 == 3 and qrd: a(qrd.pop(0)); a(qrd.pop(0))
        self.stamp("ge2")
        for i in range(18): a(f"v_pk_add_f32 {p(G_+2*i)}, {p(G_+2*i)}, {p(CC+4)} op_sel_hi:[1,0]")
        for i in range(36):
            a(f"v_rcp_f32 {vr(G_+i)}, {vr(G_+i)}")
            if i % esp == 1 and tg: a(tg.pop(0))
            if i % 8 == 3 and qrd: a(qrd.pop(0)); a(qrd.pop(0))
        assert not tg and not qrd
        idx = [i for i, l in enumerate(a.lines) if l.strip().startswith("buffer_load") and l.rstrip().endswith("lds")]
        m_t0, m_t1 = idx[-18] + 1, idx[-9] + 1
        for i in range(18): a(f"v_pk_mul_f32 {p(H+2*i)}, {p(G_+2*i)}, {p(H+2*i)}")
        a(f"""s_mul_i32 {sr(T)}, {sr(WV+1)}, {BLK}
        s_cmp_eq_u32 {sr(S_H)}, 1
        s_cbranch_scc1 L_ln2
        s_add_u32 {sr(T)}, {sr(T)}, {WS_U}""")
        for i in range(18): a(f"v_cvt_pk_bf16_f32 {vr(UG+i)}, {vr(H+2*i)}, {vr(H+2*i+1)}")
        a("s_branch L_ug")
        a.label("L_ln2")
        a(f"s_add_u32 {sr(T)}, {sr(T)}, {WS_G}")
        self.ln_f32(H, UG, TM)
        a.label("L_ug")
        self.stamp("ge3")
        a(f"""s_cmp_eq_u32 {sr(WV)}, 1
        s_cselect_b32 {sr(S_UG)}, {sr(T)}, 0x40000000
        s_waitcnt vmcnt({self.vm_since(m_t0)}) lgkmcnt(0)""")
        for x in self.k_reads(0, V_V): a(x)
        self.ugs = [f"buffer_store_dwordx4 {vr(UG+4*s,4)}, {vr(V_DMA)}, {sr(S_WS,4)}, {sr(S_UG)} offen offset:{1024*s} sc1" for s in range(4)]
        self.ugs.append(f"buffer_store_dwordx2 {vr(UG+16,2)}, {vr(self.VL8)}, {sr(S_WS,4)}, {sr(S_UG)} offen sc1")
        for qb in range(4): a(f"v_pk_add_f32 {p(MS+4*qb)}, {p(MS+4*qb)}, {p(MS+4*qb+2)} neg_lo:[1,1] neg_hi:[1,1]")
        for qb in range(4): a(f"v_add_f32 {vr(self.MK+qb)}, {vr(MS+4*qb)}, {vr(MS+4*qb+1)}")
        a(f"v_lshlrev_b32 {vr(t1)}, 8, v0\nv_lshlrev_b32 v231, 2, v0\nv_add_u32 v231, {L_PC}, v231\nds_write_b32 v231, {vr(t1)}")
        self.loop_init(False)
        self.n_t1 = self.vm_since(m_t1)
        self.stamp("ug")

    def loop_init(self, part):
        a = self.a
        if part:
            for qb in range(4):
                for i in range(4): a(f"v_mov_b32 {vr(V_CI+4*qb+i)}, {vr(self.MK+qb)}")
            return
        for k in range(7): a(f"v_add_u32 {vr(V_HI+k)}, {2*SLOT}, {vr(V_KA+k if k < 5 else V_VB+k-5)}")
        a(f"v_add_u32 {vr(self.VS0)}, {sr(S_LB)}, {vr(V_DMA)}\nv_add_u32 {vr(self.VS0R)}, {sr(S_LB)}, {vr(self.VL8)}\ns_mov_b32 {sr(S_CNT)}, 0\ns_mov_b32 {sr(S_INC)}, {4*TILE}")
        for i in range(4): a(f"v_mov_b32 {vr(V_L+i)}, 0")
        a(f"v_mov_b32 v227, 0x3f803f80\nv_mov_b32 v226, {sr(S_N)}\nv_mov_b32 {vr(self.VPL+1)}, 1\nv_lshlrev_b32 v231, 2, v0\nv_add_u32 v231, {L_PC}, v231")

    def head(self):
        a, o = self.a, self.o
        a.label("L_go")
        self.loop_init(True)
        a("s_waitcnt lgkmcnt(0)\ns_barrier")
        self.stamp("bar5")
        base = self.qk_mfmas(0)
        pick = lambda s_, kb, qb: base[8 * s_ + 4 * kb + qb].replace(vr(V_K + 8 * s_ + 4 * kb, 4) + ",", vr(V_V + 8 * s_ + 4 * kb, 4) + ",").replace(vr(V_K + 32 + 2 * kb, 2) + ",", vr(V_V + 32 + 2 * kb, 2) + ",")
        mf, fin = [], {}
        for qb, s_ in [(0, 0), (0, 1), (0, 2), (0, 3), (1, 0), (1, 1), (0, 4), (1, 2), (1, 3), (2, 0), (2, 1), (1, 4), (2, 2), (2, 3), (3, 0), (3, 1), (2, 4),
                       (3, 2), (3, 3), (3, 4)]:
            for kb in range(2):
                fin[qb, kb] = len(mf)
                mf.append(("s_nop 3\n" if (qb, s_, kb) == (3, 4, 0) else "") + pick(s_, kb, qb))
        enew = [e[1] for g in range(40, 76) for e in self.gaps[g] if e[0] == "E"]
        items = self.e_items(0, enew, lambda qb, j: 0, lambda qb: 999)
        for it, e in zip(items, enew):
            if e[0] == "e": it["am"] = fin[e[1], e[2] // 4]
        dm = []
        for k, (slot, j) in enumerate([(2, 8)] + [(3, j) for j in range(9)]):
            g_ = 1 + o.get("hsp", 4) * k
            if j % 4 == 0: dm.append(dict(t=f"s_add_u32 m0, {sr(S_LB)}, {slot*SLOT + 4096*(j//4)}", c=0, lo=g_ - 1, hi=g_ - 1))
            dm.append(dict(t=f"buffer_load_dwordx4 {vr(V_DMA + j//4)}, {sr(S_XA,4)}, {sr(S_TOFF)} offen offset:{1024*(j%4)} lds", c=8, lo=g_, hi=g_))
            if j == 8: dm.append(dict(t=f"s_add_u32 {sr(S_TOFF)}, {sr(S_TOFF)}, {4*TILE}", c=0, lo=g_ + 1, hi=g_ + 1))
        nh = o.get("ugh", 2) if not o.get("ugl", 1) else 0
        for k in range(nh): dm.append(dict(t=self.ugs[k], c=8, lo=3 + 16 * k, hi=3 + 16 * k))
        a(f"s_waitcnt vmcnt({self.n_t1})")
        left = self.pack(mf, items + dm + [dict(t=x, c=4, lo=i // 2, nds=2) for i, x in enumerate(self.k_reads(1))])
        print("head overflow", self.over, "left", len(left))
        left.sort(key=lambda x: not x.startswith("v_exp"))
        last = a.lines[-1].strip()
        for x in left:
            if last.startswith("v_exp") and not x.startswith("v_exp") and (last.split()[1].rstrip(",") + ",") in (x + ","): a("s_nop 0")
            a(x); last = x
        a("s_waitcnt lgkmcnt(0)")

    def tile_groups(self, slot):
        out = []
        for j in range(9):
            g = ""
            if j % 4 == 0: g = f"s_add_u32 m0, {sr(S_LB)}, {slot*SLOT + 4096*(j//4)}\ns_nop 0\n"
            g += f"buffer_load_dwordx4 {vr(V_DMA + j//4)}, {sr(S_XA,4)}, {sr(S_TOFF)} offen offset:{1024*(j%4)} lds"
            if j == 8: g += f"\ns_add_u32 {sr(S_TOFF)}, {sr(S_TOFF)}, {4*TILE}"
            out.append(g)
        return out

    def first_tiles(self):
        pass

    def wfuse(self):
        a = self.a
        BF, ACC, AF, TM, AD = 88, 108, 144, 208, 240
        LA, LB_, LM = 0, 44032, 88064
        T = S_T
        a.label("L_wfuse")
        if self.o.get("hlast", 0): a(f"s_cmp_ge_u32 s2, {NWG}\ns_cbranch_scc1 L_end\ns_sub_u32 s2, s2, {NWG - NH}")
        a(f"v_lshrrev_b32 v1, 6, v0\nv_and_b32 v0, 63, v0\nv_readfirstlane_b32 {sr(S_W)}, v1\nv_lshlrev_b32 {vr(V_DMA)}, 4, v0\ns_waitcnt lgkmcnt(0)")
        self.srd(S_WS, 78, 79, WS_END)
        self.wf0 = 0
        self.srd(S_X, 72, 73, 82944)
        self.srd(S_W2, 62, 63, 41472)
        a(f"""s_cmp_eq_u32 s2, {self.wf0}
        s_cselect_b32 {sr(S_W1)}, s64, s70
        s_cselect_b32 {sr(S_W1+1)}, s65, s71
        s_mov_b32 {sr(S_W1+2)}, 41472
        s_mov_b32 {sr(S_W1+3)}, 0x20000
        s_cselect_b32 {sr(T+4)}, 0, 41472""")
        self.dma_rows([(S_W1, "0", LA), (S_W2, "0", LB_)], 19, 288, TM + 4, TM + 5, 11, 3, "L_wf1")
        a(f"s_lshl_b32 {sr(T)}, {sr(S_W)}, 10\ns_add_u32 {sr(T+2)}, {sr(T)}, {sr(T+4)}")
        for k in range(11):
            if k == 10: a(f"s_cmp_ge_u32 {sr(S_W)}, 1\ns_cbranch_scc1 L_wf2")
            a(f"s_add_u32 m0, {sr(T)}, {LM + 4096*k}\ns_add_u32 {sr(T+1)}, {sr(T+2)}, {4096*k}")
            a(f"buffer_load_dwordx4 {vr(V_DMA)}, {sr(S_X,4)}, {sr(T+1)} offen lds")
        a.label("L_wf2")
        self.srd(S_DW, 68, 69, 864)
        a(f"""v_and_b32 {vr(TM)}, 15, v0
        v_lshlrev_b32 {vr(TM+2)}, 4, {vr(TM)}
        v_lshlrev_b32 {vr(TM)}, 1, {vr(TM)}
        v_bfe_u32 {vr(TM+3)}, v0, 4, 1
        v_lshl_add_u32 {vr(TM+1)}, {vr(TM+3)}, 7, {vr(TM)}
        v_lshl_add_u32 {vr(TM+2)}, {vr(TM+3)}, 11, {vr(TM+2)}
        v_and_b32 {vr(TM+3)}, 1, v0
        v_lshlrev_b32 {vr(TM+3)}, 4, {vr(TM+3)}
        v_bfe_i32 {vr(TM+4)}, v0, 1, 1
        v_not_b32 {vr(TM+5)}, {vr(TM+4)}""")
        for k in range(3):
            for i in range(5): a(f"buffer_load_ushort {vr(16+5*k+i)}, {vr(TM+1 if i < 4 else TM)}, {sr(S_DW,4)}, 0 offen offset:{288*k + (32*i if i < 4 else 256)}")
        a(f"s_mov_b32 {sr(T+1)}, {WS_DWF}\ns_waitcnt vmcnt(0)")
        for f in range(15):
            a(f"v_lshlrev_b32 {vr(16+f)}, {vr(TM+3)}, {vr(16+f)}\nv_and_b32 {vr(32+2*f)}, {vr(TM+5)}, {vr(16+f)}\nv_and_b32 {vr(33+2*f)}, {vr(TM+4)}, {vr(16+f)}")
        for r_ in range(8): a(f"buffer_store_dwordx{4 if r_ < 7 else 2} {vr(32+4*r_, 4 if r_ < 7 else 2)}, {vr(TM+2)}, {sr(S_WS,4)}, {sr(T+1)} offen offset:{256*r_} sc1")
        self.tr_addr(AD, LM, False, TM + 8)
        self.row_addr(AD + 3, LA, TM + 8)
        a(f"v_add_u32 {vr(AD+5)}, {LB_}, {vr(AD+3)}")
        a(f"v_lshlrev_b32 {vr(AD+4)}, 3, v0")
        a(f"""s_lshr_b32 {sr(T)}, {sr(S_W)}, 1
        s_lshl_b32 {sr(T)}, {sr(T)}, 6
        s_and_b32 {sr(T+1)}, {sr(S_W)}, 1
        s_lshl_b32 {sr(T+1)}, {sr(T+1)}, 3
        s_add_u32 {sr(T)}, {sr(T)}, {sr(T+1)}
        v_and_b32 {vr(AD+6)}, 3, v0
        v_lshlrev_b32 {vr(AD+6)}, 3, {vr(AD+6)}
        v_add_u32 {vr(AD+7)}, {sr(T)}, {vr(AD+6)}""")
        for k in range(3): a(f"v_add_u32 {vr(AD+k)}, {vr(AD+7)}, {vr(AD+k)}")
        a(f"s_mov_b32 {sr(S_CNT)}, {sr(S_W)}")
        a("s_waitcnt vmcnt(0)\ns_barrier")
        a.label("L_wfl")
        for s in self.tr_reads(AD, vr)(0, BF): a(s)
        a("s_waitcnt lgkmcnt(0)")
        self.gemm(self.row_reads(AD + 3), BF, ACC, AF)
        for i in range(18): a(f"v_cvt_pk_bf16_f32 {vr(BF+i)}, {vr(ACC+2*i)}, {vr(ACC+2*i+1)}")
        a(f"s_cmp_eq_u32 s2, {self.wf0}\ns_cbranch_scc0 L_wf3")
        self.gemm(self.row_reads(AD + 5), BF, ACC, AF)
        for i in range(18): a(f"v_cvt_pk_bf16_f32 {vr(BF+i)}, {vr(ACC+2*i)}, {vr(ACC+2*i+1)}")
        a.label("L_wf3")
        a(f"""s_mul_i32 {sr(T)}, {sr(S_CNT)}, {BLK}
        s_add_u32 {sr(T)}, {sr(T)}, {sr(T+4)}
        s_add_u32 {sr(T)}, {sr(T)}, {WS_WF}
        s_add_u32 {sr(T+1)}, {sr(T)}, 4096""")
        self.store_block(BF, V_DMA, AD + 4, S_WS, T, T + 1, "sc1")
        for k in range(3): a(f"v_add_u32 {vr(AD+k)}, 128, {vr(AD+k)}")
        a(f"s_add_u32 {sr(S_CNT)}, {sr(S_CNT)}, 4\ns_cmp_lt_u32 {sr(S_CNT)}, 8\ns_cbranch_scc1 L_wfl")
        for k in range(3): a(f"v_sub_u32 {vr(AD+k)}, {vr(AD+k)}, {vr(AD+6)}")
        a(f"s_cmp_eq_u32 {sr(S_CNT)}, 8\ns_cbranch_scc1 L_wfl")
        a(f"""s_waitcnt vmcnt(0)
        s_barrier
        s_cmp_lg_u32 {sr(S_W)}, 0
        s_cbranch_scc1 L_end
        s_mov_b32 {sr(T+2)}, 0""")
        a.label("L_wtag")
        a(f"""buffer_load_dword {vr(TM)}, off, {sr(S_DB,4)}, 0 sc1
        s_add_u32 {sr(T+2)}, {sr(T+2)}, 1
        s_waitcnt vmcnt(0)
        v_readfirstlane_b32 {sr(T)}, {vr(TM)}
        s_cmp_lt_u32 {sr(T+2)}, 0x40000
        s_cselect_b32 {sr(T)}, {sr(T)}, 1
        s_cmp_eq_u32 {sr(T)}, 0
        s_cbranch_scc1 L_wtag
        v_lshlrev_b32 {vr(TM+1)}, 2, v0
        s_lshl_b32 {sr(T)}, s2, 8
        s_add_u32 {sr(T)}, {sr(T)}, {WS_F + 502*256}
        buffer_store_dword {vr(TM)}, {vr(TM+1)}, {sr(S_WS,4)}, {sr(T)} offen sc1
        s_endpgm""")

    def dump_stamps(self):
        a = self.a
        if self.o.get("census"):
            key, mode, m_, v_ = self.o["census"]
            a(f"""s_cmp_lg_u32 s2, 100
            s_cbranch_scc1 L_end
            v_lshlrev_b32 v16, 2, v0
            s_mov_b32 s4, {WS_DBG}""")
            for k in range(4): a(f"buffer_load_dword v{20+k}, v16, {sr(S_WS,4)}, s4 offen offset:{256*k} sc1")
            a(f"s_waitcnt vmcnt(0)\nv_readlane_b32 s8, v21, 36\ns_mov_b32 s9, 0x80000000\ns_mov_b32 s10, 0x7fffffff\ns_mov_b32 s11, 0\ns_mov_b32 s17, 0")
            for k in range(4):
                a(f"s_mov_b32 s5, 0")
                a.label(f"L_cs{k}")
                a(f"""v_readlane_b32 s6, v{20+k}, s5
                s_add_u32 s7, s5, {64*k}
                s_sub_u32 s6, s6, s8
                s_and_b32 s16, s7, {m_}
                s_cmp_lg_u32 s16, {v_}
                s_cbranch_scc1 L_cn{k}
                s_min_i32 s10, s10, s6
                s_cmp_gt_i32 s6, {self.o.get("thr", 150)}
                s_addc_u32 s17, s17, 0
                s_cmp_gt_i32 s6, s9
                s_cselect_b32 s9, s6, s9
                s_cselect_b32 s11, s7, s11""")
                a.label(f"L_cn{k}")
                a(f"s_add_u32 s5, s5, 1\ns_cmp_lt_u32 s5, {64 if k < 3 else 60}\ns_cbranch_scc1 L_cs{k}")
            a({"arg": "s_lshl_b32 s6, s11, 3", "range": "s_sub_u32 s6, s9, s10\ns_lshl_b32 s6, s6, 1", "zero": "s_mov_b32 s6, 0", "cnt": "s_lshl_b32 s6, s17, 4",
               "max": "s_lshl_b32 s6, s9, 1"}[mode])
            a("s_add_u32 s6, s6, 1000\ns_memrealtime s[4:5]\ns_waitcnt lgkmcnt(0)\ns_add_u32 s6, s6, s4")
            a.label("L_echo")
            a("s_memrealtime s[4:5]\ns_waitcnt lgkmcnt(0)\ns_sub_u32 s7, s6, s4\ns_cmp_gt_i32 s7, 0\ns_cbranch_scc1 L_echo")
            return
        if self.o.get("echo"):
            if self.o["echo"][0] == "skew":
                a(f"v_mov_b32 v16, 4\nbuffer_load_dword v17, v16, {sr(S_DB,4)}, 0 offen sc1\ns_waitcnt vmcnt(0)\nv_readfirstlane_b32 s98, v17\ns_not_b32 s98, s98")
                x, y = 98, S_ST + 2 * self.stnames.index(self.o["echo"][1])
            else:
                x, y = [S_ST + 2 * self.stnames.index(n) for n in self.o["echo"]]
            lo, hi = self.o.get("echo_ids", (0, 999))
            a(f"""s_cmp_eq_u32 {sr(S_VAL)}, 0
            s_cbranch_scc1 L_end
            s_cmp_lt_u32 s2, {lo}
            s_cbranch_scc1 L_end
            s_cmp_ge_u32 s2, {hi}
            s_cbranch_scc1 L_end
            s_and_b32 s6, s2, {self.o.get("echo_m", 0)}
            s_cmp_lg_u32 s6, {self.o.get("echo_v", 0)}
            s_cbranch_scc1 L_end
            s_memrealtime s[4:5]
            s_waitcnt lgkmcnt(0)
            s_sub_u32 s6, {sr(y)}, {sr(x)}
            s_mul_i32 s6, s6, {self.o.get("echo_mul", 1)}
            s_lshr_b32 s6, s6, {self.o.get("echo_shr", 0)}
            s_add_u32 s6, s6, {self.o.get("echo_add", 0)}
            s_add_u32 s6, s6, s4""")
            a.label("L_echo")
            a("s_memrealtime s[4:5]\ns_waitcnt lgkmcnt(0)\ns_sub_u32 s7, s6, s4\ns_cmp_gt_i32 s7, 0\ns_cbranch_scc1 L_echo")
            return
        if self.o.get("dbgst"):
            a("s_waitcnt vmcnt(0)")
            self.stamp("done")
            a("s_waitcnt lgkmcnt(0)\ns_mov_b64 exec, 1")
            slots = [1, 2, 3, 4, 5, 6, 7, 9, 11, 12, 13, 14, 15]
            a(f"s_not_b32 {sr(S_T)}, {sr(S_ST)}\nv_mov_b32 v16, {sr(S_T)}\nv_mov_b32 v17, 4\nbuffer_atomic_umax v16, v17, {sr(S_DB,4)}, 0 offen sc1")
            for i in range(min(self.nst, 12)):
                a(f"v_mov_b32 v{18+2*i}, {sr(S_ST+2*i)}\nv_mov_b32 v{19+2*i}, {4*slots[i+1]}\nbuffer_atomic_umax v{18+2*i}, v{19+2*i}, {sr(S_DB,4)}, 0 offen sc1")
            return
        if not self.o.get("stamps"): return
        T = S_T
        a(f"""s_waitcnt lgkmcnt(0)
        s_lshl_b32 {sr(T)}, s2, 2
        s_add_u32 {sr(T)}, {sr(T)}, {sr(S_W)}
        s_lshl_b32 {sr(T)}, {sr(T)}, 7
        s_add_u32 {sr(T)}, {sr(T)}, {WS_DBG}
        v_mov_b32 v1, 0""")
        for i in range(26): a(f"v_mov_b32 {vr(16+i)}, {sr(S_ST+i)}")
        for i in range(7): a(f"buffer_store_dwordx4 {vr(16+4*i,4)}, v1, {sr(S_WS,4)}, {sr(T)} offen offset:{16*i}")

    def build(self):
        a = self.a
        self.stnames = []
        a.raw(f"; @launch grid=({NWG},1,1) block=(256,1,1) lds={LDS_TOTAL}")
        a.raw('.amdgcn_target "amdgcn-amd-amdhsa--gfx950"')
        a.raw(".text")
        a.raw(f".globl {NAME}")
        a.raw(".p2align 12")
        self.entry()
        self.phase_a()
        self.rest()
        a.label("L_fin")
        self.dump_stamps()
        a.label("L_end")
        a("s_endpgm")
        self.poll2()
        if not self.o.get("touch", 1): self.rare()
        a.label("L_dummy")
        self.fallback()
        self.wfuse()
        a.raw('.section .rodata,"a"')
        a.raw(".p2align 6")
        a.raw(kernel_desc(NAME, 512, 102, 256))
        return a.text()

    def S(self, buf, qb, i=0): return V_S + buf * 32 + qb * 8 + i
    def P(self, buf, qb, i=0): return V_P + buf * 16 + qb * 4 + i

    def k_reads(self, slot, V_K=V_K):
        ka, so = (V_KA, slot * SLOT) if slot < 2 else (V_HI, (slot - 2) * SLOT)
        out = [f"ds_read_b128 {vr(V_K+8*s+4*kb,4)}, {vr(ka)} offset:{so + 2048*s + 256*kb}" for s in range(4) for kb in range(2)]
        out += [f"ds_read_b64 {vr(V_K+32+2*kb,2)}, {vr(ka+1)} offset:{so + 8192 + 512*kb}" for kb in range(2)]
        return out

    def v_reads(self, slot, dst=V_V):
        (va, vr_, vb), so = ((V_VA, V_VR, V_VB), slot * SLOT) if slot < 2 else ((V_HI + 2, V_HI + 4, V_HI + 5), (slot - 2) * SLOT)
        out = []
        for T in range(9):
            for u in range(2):
                if T < 8: out.append(f"ds_read_b64_tr_b16 {vr(dst+4*T+2*u,2)}, {vr((va if T < 4 else vb)+(T&1))} offset:{so + 2048*((T>>1)&1) + 256*u}")
                else: out.append(f"ds_read_b64_tr_b16 {vr(dst+4*T+2*u,2)}, {vr(vr_)} offset:{so + 8192 + 512*u}")
        return out

    def qk_mfmas(self, buf, czero=False):
        out = []
        for s in range(5):
            for kb in range(2):
                for qb in range(4):
                    d = vr(self.S(buf, qb, 4 * kb), 4)
                    c = ("0" if czero else vr(V_CI + 4 * qb, 4)) if s == 0 else d
                    if s < 4: out.append(f"v_mfma_f32_16x16x32_bf16 {d}, {vr(V_K+8*s+4*kb,4)}, {ar(A_Q+18*qb+4*s,4)}, {c}")
                    else: out.append(f"v_mfma_f32_16x16x16_bf16 {d}, {vr(V_K+32+2*kb,2)}, {ar(A_Q+18*qb+16,2)}, {c}")
        return out

    def pv_mfmas(self, buf, czero=False):
        out = []
        for T in range(9):
            for qb in range(4):
                o = ar(A_O + 36 * qb + 4 * T, 4)
                out.append(f"v_mfma_f32_16x16x32_bf16 {o}, {vr(V_V+4*T,4)}, {vr(self.P(buf,qb),4)}, {'0' if czero else o}")
        return out

    def plan(self):
        o = self.o
        n = 76
        fixed = [None] * n
        for i, g in enumerate(range(1, 36, 2)): fixed[g] = ("V", i)
        for i, g in enumerate([41, 44, 47, 50, 53, 56, 59, 62, 65, 68]): fixed[g] = ("K", i)
        for i, g in enumerate([42, 46, 49, 52, 55, 58, 61, 64, 67]): fixed[g] = ("D", i)
        exps = [(qb, j) for qb in range(4) for j in range(8)]
        start = 40
        order = [(start + k) % n for k in range(n)]
        free_idx = [k for k, g in enumerate(order) if fixed[g] is None]
        nsm = len(free_idx) - 32
        cand = free_idx[6:-2]
        sm_set = set(free_idx[-2:]) | {cand[int((i + 0.5) * len(cand) / (nsm - 2))] for i in range(nsm - 2)}
        nds = sum(1 for f in fixed if f is not None and f[0] != "D")
        ls = o.get("lsum", "add")
        over = max(0, (48 if ls == "add" else 32) - nds - 2 * nsm)
        ocand = [k for k, g in enumerate(order) if k >= 20 and (fixed[g] is None or fixed[g][0] != "D")]
        o_set = {ocand[int((i + 0.5) * len(ocand) / over)] for i in range(over)}
        later = []
        gaps = [[] for _ in range(n)]
        small, pend, ei = [], [], 0
        for k, g in enumerate(order):
            new = (start + k) < n
            small.extend(pend); pend = later; later = []
            small.sort(key=lambda t: 0 if t[0] == "c" else 1)
            f = fixed[g]
            want = 0
            if f is not None:
                gaps[g].append((f[0], f[1], None))
                if f[0] == "D": continue
                want = 1
            elif k in sm_set: want = 2
            else:
                qb, j = exps[ei]; ei += 1
                gaps[g].append(("E", ("e", qb, j), new))
                if j & 1: pend.append(("c", qb, j // 2))
                if ls == "add": pend.append(("a", qb, j))
                elif j & 1 and ls == "pk": pend.append(("p", qb, j // 2))
            if k in o_set: want += 1
            if k == n - 1: want = 99
            for _ in range(want):
                if small:
                    it = small.pop(0)
                    gaps[g].append(("E", it, new))
                    if it[0] == "c" and ls == "dot": (small if k == n - 1 else pend).append(("d", it[1], it[2]))
        assert not small and not pend and ei == 32
        self.gaps = gaps

    def pack(self, mf, items):
        a = self.a
        where, order, done, nvm, mpos = {}, [], 0, 0, []
        isds = lambda it: "ds_" in it["t"]
        self.over = 0
        for g, m in enumerate(mf):
            assert not any(it.get("need", 999) <= g and i not in where for i, it in enumerate(items)), g
            idx = [k for k, n_ in enumerate(order) if n_ <= g]
            if idx and max(idx) + 1 > done:
                a(f"s_waitcnt lgkmcnt({min(15, len(order) - 1 - max(idx))})"); done = max(idx) + 1
            if m.startswith("@W"):
                w_, m = m.split("\n", 1)
                a(f"s_waitcnt lgkmcnt({min(15, int(w_[2:]) + len(order))})")
            a(m)
            mpos.append(len(a.lines))
            cap, pick = 8, []
            for phase in (0, 1):
                for i, it in enumerate(items):
                    if i in where or it.get("lo", 0) > g: continue
                    if "am" in it and (it["am"] >= g or len(a.lines) - mpos[it["am"]] < 8): continue
                    d = it.get("dep")
                    if d is not None and not all(where.get(x, 999) < g for x in d): continue
                    if (phase == 0 and it.get("hi", 999) <= g) or (phase == 1 and it["c"] <= cap):
                        if it["t"].startswith("buffer") and pick and any(items[x]["c"] for x in pick) and phase == 1: continue
                        if isds(it) and sum(isds(items[x]) for x in pick) >= it.get("nds", 1) and phase == 1: continue
                        pick.append(i); where[i] = g; cap -= it["c"]
            key = lambda i: 0 if items[i]["c"] == 0 else 1 if isds(items[i]) else 2 if items[i]["t"].startswith("buffer") else 3
            for i in sorted(pick, key=key):
                a(items[i]["t"].replace("@VM", f"s_waitcnt vmcnt({nvm})"))
                nvm += items[i]["t"].startswith("buffer")
                if isds(items[i]): order.append(items[i].get("need", 999))
            self.over += max(0, -cap)
        return [it["t"] for i, it in enumerate(items) if i not in where]

    def e_items(self, buf, lst, lo, hi):
        items, idx = [], {}
        for it in lst:
            kind, qb, j = it
            d = dict(t=self.etext(buf, it), c=8 if kind == "e" else 4)
            if kind == "e": d["lo"] = lo(qb, j); d["hi"] = hi(qb) - 2 - (7 - j)
            else:
                need = [("e", qb, j)] if kind == "a" else [("c", qb, j)] if kind == "d" else [("e", qb, 2 * j), ("e", qb, 2 * j + 1)]
                d["dep"] = [idx[x] for x in need if x in idx]
                if kind == "c": d["hi"] = hi(qb) - (3 - j) // 2
            idx[it] = len(items); items.append(d)
        return items

    def etext(self, buf, it):
        kind, qb, j = it
        s = self.S(buf, qb)
        if kind == "e": return f"v_exp_f32 {vr(s+j)}, {vr(s+j)}"
        if kind == "d": return f"v_dot2_f32_bf16 {vr(V_L+qb)}, {vr(self.P(buf, qb, j))}, v227, {vr(V_L+qb)}"
        if kind == "p": return f"v_pk_add_f32 {vr(208+2*qb,2)}, {vr(208+2*qb,2)}, {vr(s+2*j,2)}"
        if kind == "a": return f"v_add_f32 {vr(V_L+qb)}, {vr(V_L+qb)}, {vr(s+j)}"
        return f"v_cvt_pk_bf16_f32 {vr(self.P(buf, qb, j))}, {vr(s+2*j)}, {vr(s+2*j+1)}"

    def period(self, p, qk=True, pv=True, e_old=True, e_new=True, kread=True, vread=True, dma=True, extra={}, dsub=None, ksub=None, vm=9, halves=(0, 1), inc=None):
        a = self.a
        bn, bo = (p + 1) & 1, p & 1
        qk_, pv_ = self.qk_mfmas(bn), self.pv_mfmas(bo, czero=(p == 0))
        qo, po = self.o.get("qkord", 1), self.o.get("pvord", 0)
        if qo == 1: qk_ = [qk_[8 * s_ + 4 * kb + qb] for kb in range(2) for qb in range(4) for s_ in range(4)] + qk_[32:]
        if qo == 2: qk_ = [qk_[8 * s_ + 4 * kb + qb] for qb in range(4) for kb in range(2) for s_ in range(4)] + qk_[32:]
        if qo == 3: qk_ = [qk_[8 * s_ + 4 * kb + qb] for qb in range(4) for s_ in range(4) for kb in range(2)] + qk_[32:]
        if po == 1: pv_ = [pv_[4 * T_ + qb] for qb in range(4) for T_ in range(9)]
        mf = qk_ + pv_
        kr, vrd = self.k_reads((p + 2) % RING), self.v_reads(p % RING)
        slot = p % RING
        n = 76
        sc = [[] for _ in range(n)]
        dgs = [g for g in range(n) if any(e[0] == "D" for e in self.gaps[g])]
        if dma:
            for j, g in enumerate(dgs):
                if j % 4 == 0: sc[g - 1].append(f"s_add_u32 m0, {sr(S_LB)}, {slot*SLOT + 4096*(j//4)}")
            sc[dgs[-1] + 1].append(f"s_add_u32 {sr(S_TOFF)}, {sr(S_TOFF)}, {inc or 4*TILE}")
        w = []
        if kread: w.append(f"vmcnt({vm})")
        if pv: w.append("lgkmcnt(0)")
        if w: sc[39].append("s_waitcnt " + " ".join(w))
        if kread: sc[75].append("s_waitcnt lgkmcnt(0)")
        for half in halves:
            rng = range(0, 40) if half == 0 else range(40, 76)
            on = qk if half == 0 else pv
            if not on:
                ds, mem, val, post = [], [], [], []
                for g in rng:
                    for s_ in sc[g]:
                        (post if s_.startswith("s_waitcnt") else mem).append(s_)
                    if g in extra: mem.append(extra[g])
                    for kind, d, new in self.gaps[g]:
                        if kind == "V" and vread: ds.append(vrd[d])
                        elif kind == "K" and kread: ds.append(kr[d])
                        elif kind == "D" and dma: mem.append(f"buffer_load_dwordx4 {vr(V_DMA + d//4)}, {sr(S_XA,4)}, {sr(S_TOFF)} offen offset:{1024*(d%4)} lds")
                        elif kind == "E" and ((new and e_new) or (not new and e_old)): val.append((d, self.etext(bn if new else bo, d)))
                if half == 1: a("s_nop 3")
                seq, pend = [], list(val)
                while pend:
                    k = 0
                    if seq and seq[-1][0][0] == "e":
                        le = seq[-1][0]
                        dep = lambda it: it[0][1] == le[1] and ((it[0][0] == "a" and it[0][2] == le[2]) or (it[0][0] == "c" and it[0][2] == le[2] // 2))
                        have = {x[0] for x in seq}
                        ok = lambda it: it[0][0] == "e" or (("e", it[0][1], it[0][2]) in have if it[0][0] == "a" else (("e", it[0][1], 2*it[0][2]+1) in have)) or not any(x[0][0] == "e" and x[0][1] == it[0][1] and (x[0][2] == it[0][2] if it[0][0] == "a" else x[0][2] // 2 == it[0][2]) for x in pend)
                        while k < len(pend) and (dep(pend[k]) or not ok(pend[k])): k += 1
                        if k == len(pend): seq.append((("n", 0, 0), "s_nop 0")); k = 0
                    seq.append(pend.pop(k))
                step = max(1, len(seq) // (len(mem) + len(ds) + 1))
                allm = ds + mem
                for x in allm[:6]: a(x)
                allm = allm[6:]
                for i_, (d, t_) in enumerate(seq):
                    a(t_)
                    if allm and i_ % step == step - 1:
                        x = allm.pop(0); a(x)
                        if x.startswith("s_add_u32 m0"): a("s_nop 0")
                for x in allm:
                    a(x)
                    if x.startswith("s_add_u32 m0"): a("s_nop 0")
                for x in post: a(x)
                if half == 0: a("s_nop 1")
                continue
            for g in rng:
                a(mf[g])
                for s_ in sc[g]: a(s_)
                if g in extra: a(extra[g])
                for kind, d, new in self.gaps[g]:
                    if kind == "V":
                        if vread: a(vrd[d])
                    elif kind == "K":
                        if kread: a(kr[d])
                        elif ksub: a(ksub.pop(0))
                    elif kind == "D":
                        if dma: a(f"buffer_load_dwordx4 {vr(V_DMA + d//4)}, {sr(S_XA,4)}, {sr(S_TOFF)} offen offset:{1024*(d%4)} lds")
                        elif dsub: a(dsub.pop(0))
                    elif (new and e_new) or (not new and e_old):
                        a(self.etext(bn if new else bo, d))

    MK, VO, VO8, GA, VS0, VS0R, VDW, VLW, VL8, VST, VPL = 232, 236, 9, 238, 250, 251, 244, 245, 246, 247, 248
    NB, PT, E_U, E_G, RS3, E_COL, RS1, RS2, MP1 = 3, 4, 5, 6, 7, 43, 36, 37, 38
    G0, GM, GP, U, DWT = 16, 26, 36, 80, (90, 252, 96, 100, 112, 116, 104, 94)
    XRS = (192, 196, 46)
    frag = staticmethod(lambda f, b: [(f, b + 4 * s) for s in range(5)])
    WD = [[("a", 216 + 4 * s) for s in range(5)], [("a", 234 + 4 * s) for s in range(5)], [("v", 208 + 4 * s) for s in range(5)]]
    WO = [[("a", 4 * s) for s in range(5)], [("a", 18 + 4 * s) for s in range(5)], [("a", 36), ("a", 40), ("a", 44), ("a", 48), ("a", 252)]]
    X1B = 98304
    X2O = L_SP - X1B
    L_L = L_SP + 9216

    def epi_setup(self):
        a = self.a
        T = S_T
        NB, PT, VO, GA = self.NB, self.PT, self.VO, self.GA
        r, g4, x, y, big, r0 = 52, 53, 54, 55, 56, 57
        a(f"""s_lshr_b32 {sr(NB)}, {sr(S_W)}, 1
        s_and_b32 {sr(PT)}, {sr(S_W)}, 1
        v_and_b32 {vr(r0)}, 15, v0
        v_lshrrev_b32 {vr(g4)}, 4, v0
        v_mul_u32_u24 {vr(x)}, 288, {vr(r0)}
        v_mov_b32 {vr(big)}, 0x40000000
        s_lshl_b32 {sr(T)}, {sr(S_TOWN)}, 1
        s_add_u32 {sr(T)}, {sr(T)}, {sr(NB)}
        s_lshl_b32 {sr(T)}, {sr(T)}, 4
        v_add_u32 {vr(r)}, {sr(T)}, {vr(r0)}
        s_mul_i32 {sr(T+1)}, {sr(S_TOWN)}, {TILE}
        s_mul_i32 {sr(T+2)}, {sr(PT)}, {BLK}
        v_add_u32 {vr(x)}, {sr(T+1)}, {vr(x)}
        s_sub_u32 {sr(T+3)}, {BLK}, {sr(T+2)}
        v_add_u32 {vr(y)}, {sr(T+3)}, {vr(x)}
        v_add_u32 {vr(x)}, {sr(T+2)}, {vr(x)}
        v_lshl_add_u32 {vr(VO)}, {vr(g4)}, 4, {vr(x)}
        v_lshl_add_u32 {vr(VO+1)}, {vr(g4)}, 4, {vr(y)}
        v_lshl_add_u32 {vr(self.VO8)}, {vr(g4)}, 3, {vr(x)}
        s_lshl_b32 {sr(T+3)}, {sr(PT)}, 11
        s_add_u32 {sr(self.E_U)}, {sr(T+3)}, {WS_U}
        s_add_u32 {sr(self.E_G)}, {sr(T+3)}, {WS_G}
        s_sub_u32 {sr(T+3)}, 4096, {sr(T+3)}
        s_lshl_b32 {sr(T)}, {sr(PT)}, 11
        s_add_u32 {sr(T)}, {sr(T)}, {WS_DWF}
        v_lshrrev_b32 {vr(x)}, 2, {vr(r0)}
        v_cmp_eq_u32 vcc, {vr(x)}, {vr(g4)}
        v_lshl_add_u32 {vr(self.VDW)}, {vr(r0)}, 4, {sr(T)}
        s_nop 0
        v_cndmask_b32 {vr(self.VDW)}, {vr(big)}, {vr(self.VDW)}, vcc
        s_lshl_b32 {sr(self.E_COL)}, {sr(S_W)}, 6
        v_lshlrev_b32 {vr(self.VL8)}, 3, v0
        v_add_u32 {vr(self.VL8)}, 4096, {vr(self.VL8)}
        v_add_u32 {vr(self.VST)}, {sr(S_LB)}, {vr(V_DMA)}
        v_add_u32 {vr(self.VST)}, {2*SLOT}, {vr(self.VST)}
        s_xor_b32 {sr(T)}, {sr(NB)}, 1
        v_xor_b32 {vr(x)}, {sr(T)}, {vr(g4)}
        v_lshl_add_u32 {vr(x)}, {vr(x)}, 4, {vr(r0)}
        s_lshl_b32 {sr(T)}, {sr(S_W)}, 2
        s_add_u32 {sr(T)}, {sr(T)}, {self.L_L}
        v_lshl_add_u32 {vr(self.VLW)}, {vr(x)}, 4, {sr(T)}
        s_sub_u32 {sr(self.MP1)}, 0, {sr(PT)}
        s_mov_b32 {sr(self.MP1+1)}, {sr(self.MP1)}""")
        for k, (d, base) in enumerate(((self.RS1, 3 * SLOT), (self.RS2, 2 * SLOT), (self.RS3, 2 * SLOT))):
            a(f"s_xor_b32 {sr(T)}, {sr(S_W)}, {k+1}\ns_mul_i32 {sr(T)}, {sr(T)}, {TILE}\ns_add_u32 {sr(d)}, {sr(T)}, {base}")
        a(f"""s_mul_i32 {sr(T)}, {sr(S_B)}, 4000
        s_add_u32 {sr(T+1)}, {sr(T)}, 3999
        s_mov_b32 {sr(T+2)}, {BLK}""")
        for k, dr in enumerate((0, -1, 1)):
            m = GA + 2 * k
            if dr: a(f"v_add_u32 {vr(m)}, {dr}, {vr(r)}\nv_cmp_eq_u32 vcc, {sr(T if dr < 0 else T+1)}, {vr(r)}")
            src = m if dr else r
            a(f"""v_lshrrev_b32 {vr(x)}, 4, {vr(src)}
            v_and_b32 {vr(y)}, 15, {vr(src)}
            v_mul_lo_u32 {vr(x)}, {vr(x)}, {sr(T+2)}
            v_lshl_add_u32 {vr(y)}, {vr(g4)}, 4, {vr(y)}
            v_lshl_add_u32 {vr(m)}, {vr(y)}, 4, {vr(x)}
            v_lshl_add_u32 {vr(m+1)}, {vr(y)}, 3, {vr(x)}
            v_add_u32 {vr(m+1)}, {sr(T+3)}, {vr(m+1)}""")
            if dr: a(f"v_cndmask_b32 {vr(m)}, {vr(m)}, {vr(big)}, vcc\nv_cndmask_b32 {vr(m+1)}, {vr(m+1)}, {vr(big)}, vcc")

    def conv_loads(self):
        GA = self.GA
        L = []
        for dst, m, so in ((self.GM, GA + 2, 1), (self.G0, GA, 1), (self.GP, GA + 4, 1), (self.U, GA, 0)):
            for k in range(2): L.append(f"buffer_load_dwordx4 {vr(dst+4*k,4)}, {vr(m)}, {sr(S_WS,4)}, {sr(self.E_U+so)} offen offset:{1024*k}")
            L.append(f"buffer_load_dwordx2 {vr(dst+8,2)}, {vr(m+1)}, {sr(S_WS,4)}, {sr(self.E_U+so)} offen")
        return L

    def rg(self, e, n): return (ar if e[0] == "a" else vr)(e[1], n)

    def w8_loads(self, regs, so):
        return [f"buffer_load_dwordx4 {self.rg(regs[s],4)}, {vr(V_DMA)}, {sr(S_WS,4)}, {sr(so)} offen offset:{1024*s}" for s in range(4)] + \
               [f"buffer_load_dwordx2 {self.rg(regs[4],2)}, {vr(self.VL8)}, {sr(S_WS,4)}, {sr(so)} offen"]

    def w_reads(self, regs, off):
        L = []
        for tt in range(2):
            L += [f"ds_read_b128 {self.rg(regs[tt][s],4)}, {vr(self.VS0)} offset:{off + BLK*tt + 1024*s}" for s in range(4)]
            L.append(f"ds_read_b64 {self.rg(regs[tt][4],2)}, {vr(self.VS0R)} offset:{off + BLK*tt}")
        return L

    def xa_srd(self):
        T = S_T
        return f"""s_mul_i32 {sr(T)}, {sr(S_B)}, {NT}
        s_mul_i32 {sr(T+1)}, {sr(S_H)}, 63
        s_add_u32 {sr(T+1)}, {sr(T+1)}, {sr(T)}
        s_mul_i32 {sr(T+1)}, {sr(T+1)}, {TILE}
        s_add_u32 {sr(S_XA)}, {sr(S_WS)}, {sr(T+1)}
        s_addc_u32 {sr(S_XA+1)}, {sr(S_WS+1)}, 0
        s_sub_u32 {sr(T+2)}, 63, {sr(S_H)}
        s_mul_i32 {sr(S_XA+2)}, {sr(T+2)}, {TILE}
        s_mov_b32 {sr(S_XA+3)}, 0x20000"""

    def rest(self):
        a, o = self.a, self.o
        T = S_T
        VPL = self.VPL
        self.plan()
        self.head()
        self.stamp("loop")
        if o.get("sktest") or o.get("echo") and o["echo"][0] == "skew":
            a(f"s_waitcnt lgkmcnt(0)\ns_mov_b64 exec, 1\ns_not_b32 s98, {sr(S_ST)}\nv_mov_b32 v226, s98\nv_mov_b32 v227, 4\ns_cmp_lg_u32 {sr(S_W)}, 0\ns_cbranch_scc1 L_sk\nbuffer_atomic_umax v226, v227, {sr(S_DB,4)}, 0 offen sc1\ns_waitcnt vmcnt(0)\nL_sk:\ns_mov_b64 exec, -1\ns_nop 3")
            self.stamp("sk")
        nh = o.get("ugh", 2)
        ex = {2 + 12 * k: x for k, x in enumerate(self.ugs[nh:])}
        ugl = o.get("ugl", 1)
        if ugl: self.period(0, extra={69: self.ugs[0]})
        else: self.period(0, vm=9 + 5, extra=ex)
        self.stamp("l0")
        a.raw(".p2align 6")
        a.label("L_loop")
        self.stamp("q1")
        for p in range(1, 5):
            ex = {}
            vm = 9
            if p == 1: ex = {73: f"s_cmp_eq_u32 {sr(S_CNT)}, 3"}
            if p == 2: ex = {70: f"buffer_load_dword v252, {vr(VPL)}, {sr(S_WS,4)}, 0 offen sc1"}
            if p == 3:
                ex = {73: f"s_cmp_eq_u32 {sr(S_CNT)}, 2", 45: f"ds_add_rtn_u32 v230, v231, {vr(VPL+1)}"}
            if p == 4:
                self.stamp("la0")
                a(f"s_cbranch_scc1 L_last")
                a.label("L_lastb")
                self.stamp("la1")
                ex = {72: f"s_add_u32 {sr(S_CNT)}, {sr(S_CNT)}, 1", 1: f"v_readfirstlane_b32 {sr(T)}, v230", 3: f"s_cmp_eq_u32 {sr(T)}, 3",
                      4: f"s_cselect_b32 {sr(T)}, {sr(S_FB)}, 2.0", 6: f"buffer_store_dword v226, v231, {sr(S_WS,4)}, {sr(T)} offen sc1"}
            if ugl:
                ex[69] = self.ugs[p]
                if p == 4: ex.update({71: f"s_mov_b32 {sr(S_UG)}, 2.0", 2: f"s_lshl2_add_u32 {sr(T)}, {sr(S_CNT)}, {sr(T)}", 3: f"s_cmp_eq_u32 {sr(T)}, 7"})
                if p == 3: ex.update({43: f"s_and_b32 {sr(T)}, {sr(S_CNT)}, 1", 44: f"v_mov_b32 {vr(VPL+1)}, {sr(T)}", 48: ex.pop(45)})
            for k_ in range(o.get("pad", 0)): ex[10 + 7 * k_] = ex.get(10 + 7 * k_, "s_nop 0") + "\ns_nop 7"
            self.period(p, extra=ex, inc=sr(S_INC) if p == 4 else None)
            if p == 1: a("s_cbranch_scc1 L_p14")
        a("s_branch L_loop")
        a.label("L_p14")
        SW = 66
        self.stamp("p14")
        a(f"s_cmp_eq_u32 {sr(S_DUM)}, 4\ns_cbranch_scc0 L_dummyb")
        for i in range(16): a(f"v_mov_b32 {vr(V_CI+i)}, 0xff800000")
        a("s_nop 1")
        a.label("L_dummyb")
        ex = dict(zip([2, 6, 8, 12, 14, 18, 20, 24, 26, 30], self.w_reads(self.WD, 0)))
        ex[0] = "s_waitcnt vmcnt(9)"
        ex.update(dict(zip([4, 10, 16, 22, 28], self.w8_loads(self.WD[2], SW))))
        self.period(14, dma=False, kread=False, extra=ex, halves=(0,))
        self.stamp("tail")
        self.tail(SW)
        self.stamp("end")
        self.epilogue(SW)

    def rare(self):
        a = self.a
        T = S_T
        SW = 66
        a.label("L_last")
        a(f"s_waitcnt vmcnt(9)\ns_mov_b32 {sr(T+2)}, 0")
        a.label("L_late")
        a(f"""v_cmp_ne_u32 vcc, {sr(S_N)}, v252
        s_add_u32 {sr(S_XA)}, {sr(S_WS)}, {WS_WF}
        s_addc_u32 {sr(S_XA+1)}, {sr(S_WS+1)}, 0
        s_mov_b32 {sr(S_XA+2)}, {18*BLK}
        s_add_u32 {sr(S_TOFF)}, {sr(S_LB)}, {9*BLK}
        s_mov_b32 {sr(S_INC)}, {-9*BLK}
        s_lshr_b32 {sr(SW)}, {sr(S_W)}, 1
        s_lshl_b32 {sr(SW)}, {sr(SW)}, 30
        s_add_u32 {sr(SW+1)}, {sr(SW)}, {WS_WF + 8*BLK}
        s_add_u32 {sr(SW)}, {sr(SW)}, {WS_WF + 17*BLK}
        s_and_b32 {sr(T)}, vcc_lo, 31
        s_cbranch_scc0 L_lastb
        buffer_load_dword v252, {vr(self.VPL)}, {sr(S_WS,4)}, 0 offen sc1
        s_add_u32 {sr(T+2)}, {sr(T+2)}, 1
        s_waitcnt vmcnt(0)
        s_cmp_lt_u32 {sr(T+2)}, 0x40000
        s_cbranch_scc1 L_late
        s_branch L_lastb""")

    units = [(0, 0), (0, 1), (1, 0), (1, 1), (2, 0)]
    V15 = V_K

    def stage(self, slot, T):
        src = ar(A_O + 36 * slot + 4 * T, 4)
        if slot == 0: return f"ds_write_b128 {vr(self.VST)}, {src} offset:{1024*T}"
        if slot == 2: return f"ds_write_b128 {vr(self.VS0)}, {src} offset:{1024*T}"
        if T < 4: return f"ds_write_b128 {vr(self.VST)}, {src} offset:{SLOT + 1024*T + (4096 if slot == 3 else 0)}"
        return f"{'s_not_b64' if slot == 1 else 's_mov_b64'} exec, {sr(self.MP1,2)}\nds_write_b128 {vr(self.VST)}, {src} offset:{SLOT + 8192}\ns_mov_b64 exec, -1"

    def dwf(self, k, i):
        f = 5 * k + i
        return self.DWT[f >> 1] + 2 * (f & 1)

    def tail(self, SW):
        a, o = self.a, self.o
        mf, pos, start = [], {}, {}
        for t_, qb in ((14, 0), (14, 1), (15, 0), (15, 1), (14, 2), (15, 2), (14, 3), (15, 3)):
            start[t_, qb] = len(mf)
            for Tt in ([0, 1, 2, 3, 8, 4, 5, 6, 7] if qb & 1 else range(9)):
                o_ = ar(A_O + 36 * qb + 4 * Tt, 4)
                pos[t_, qb, Tt] = len(mf)
                mf.append(f"v_mfma_f32_16x16x32_bf16 {o_}, {vr((V_V if t_ == 14 else self.V15)+4*Tt,4)}, {vr(self.P(t_ & 1,qb),4)}, {o_}")
        lst = []
        for qb in range(4):
            for j in range(8):
                lst.append(("e", qb, j))
                if j & 1: lst.append(("c", qb, j // 2))
        lst += [("a", qb, j) for qb in range(4) for j in range(8)]
        items = self.e_items(1, lst, lambda qb, j: 0 if j < 4 else 1, lambda qb: start[15, qb] - 2)
        for it in items[48:]: it["lo"] = o.get("alo", 26)
        v15 = [dict(t=x, c=4, need=pos[15, 0, i // 2], hi=pos[15, 0, i // 2] - o.get("vlead", 7), lo=0 if i < 16 else 2) for i, x in enumerate(self.v_reads(3, self.V15))]
        wr = []
        nown = o.get("nown", 4)
        self.own = [(2, T_) for T_ in range(nown, 9)] + [(3, T_) for T_ in (0, 1, 2, 3, 8)]
        g = o.get("w0", 23)
        for k, (sl, Tt) in enumerate([(0, T_) for T_ in range(9)] + [(1, T_) for T_ in (0, 1, 2, 3, 8)] + [(2, T_) for T_ in range(nown)]):
            g = max(pos[15, sl, Tt] + 5, g)
            wr.append(dict(t=self.stage(sl, Tt), c=o.get("wc", 20), lo=int(g), hi=int(g)) if g < 72 else dict(t=self.stage(sl, Tt), c=4, lo=999))
            g += o.get("wsp", 2.7)
        n0 = len(items) + len(v15)
        wo = []
        for i, x in enumerate(self.w_reads(self.WO, SLOT)):
            r0 = self.WO[i // 5][i % 5][1]
            wo.append(dict(t=("@VM\n" if i == 0 else "") + x, c=4, dep=sorted({n0 + r0 // 4, n0 + (r0 + 3) // 4 if (r0 + 3) // 4 < 9 else n0 + 8}), lo=o.get("wo0", 40) + 3 * i, hi=o.get("wo0", 40) + 3 * i + 2))
        cl = self.conv_loads()
        dl = [f"buffer_load_dwordx4 {vr(self.DWT[r],4)}, {vr(self.VDW)}, {sr(S_WS,4)}, 0 offen offset:{256*r}" for r in range(7)]
        dl.append(f"buffer_load_dwordx2 {vr(self.DWT[7],2)}, {vr(self.VDW)}, {sr(S_WS,4)}, 0 offen offset:{256*7}")
        fr = {96: 9, 100: 18, 104: 45, 112: 27, 116: 36}
        vm = [(x, 0) for x in cl] + [(x, fr.get(self.DWT[r], 0)) for r, x in enumerate(dl)]
        used = {w["lo"] for w in wr}
        vi, g = [], o.get("m0", 24)
        for x, lo in vm:
            g = max(g, lo)
            while int(g) in used: g += 1
            vi.append(dict(t=x, c=8, lo=int(g), hi=int(g)) if g < 72 else dict(t=x, c=8, lo=999))
            g += o.get("msp", 2.2)
        left = self.pack(mf, items + v15 + wr + wo + vi)
        self.done_a = {(qb, j) for qb in range(4) for j in range(8) if self.etext(1, ("a", qb, j)) not in left}
        left = [x for x in left if not x.startswith("v_add_f32")]
        print("tail overflow", self.over, "left", len(left), "adds done", len(self.done_a))
        self.left = left

    def epilogue(self, SW):
        a, o = self.a, self.o
        T = S_T
        p = lambda r: vr(r, 2)
        NB, PT, MK, VO, units, MP1 = self.NB, self.PT, self.MK, self.VO, self.units, self.MP1
        U, GM, G0, GP = self.U, self.GM, self.G0, self.GP
        X2O = self.X2O
        R1, R2, R3 = 230, 231, 249
        LA, LS, M = 10, 226, 48

        def weave(main, fill, per):
            fill = list(fill)
            for x in main:
                a(x)
                for _ in range(per):
                    if fill: a(fill.pop(0))
            return fill
        for x in self.left:
            if not x.startswith("buffer"): a(x)
        lv = [x for x in self.left if x.startswith("buffer")]
        lv += [f"buffer_load_dwordx4 {vr(self.XRS[j],4)}, {vr(VO+j)}, {sr(S_X,4)}, {sr(self.E_COL)} offen" for j in range(2)]
        lv.append(f"buffer_load_dwordx2 {vr(self.XRS[2],2)}, {vr(self.VO8)}, {sr(S_X,4)}, 0 offen offset:256")
        S1 = lambda qb, j: self.S(1, qb, j)
        rounds = [[] for _ in range(6)]
        for qb in range(4):
            rem = [j for j in range(8) if (qb, j) not in self.done_a]
            prs = [j for j in rem if j % 2 == 0 and j + 1 in rem]
            sing = [j for j in rem if (j & ~1) not in prs]
            r_ = 0
            while len(prs) > 1:
                for x, y in zip(prs[0::2], prs[1::2]): rounds[r_].append(f"v_pk_add_f32 {p(S1(qb,x))}, {p(S1(qb,x))}, {p(S1(qb,y))}")
                prs = prs[0::2]; r_ += 1
            for k_, j in enumerate(sing + ([prs[0], prs[0] + 1] if prs else [])): rounds[min(5, max(r_, 2) + k_)].append(f"v_add_f32 {vr(V_L+qb)}, {vr(V_L+qb)}, {vr(S1(qb,j))}")
        for r_ in rounds:
            for x in r_: a(x)
        a(f"v_add_u32 {vr(R1)}, {sr(self.RS1)}, {vr(V_DMA)}\nv_add_u32 {vr(R2)}, {sr(self.RS2)}, {vr(V_DMA)}")
        self.treduce(V_L)
        a(f"ds_write_b32 {vr(self.VLW)}, {vr(V_L)}")
        acc = lambda slot: [f"v_accvgpr_read_b32 {vr(M+i)}, {ar(A_O+36*slot+16+i)}" for i in range(20)]
        a(f"""v_add_u32 {vr(R3)}, {sr(self.RS3)}, {vr(V_DMA)}
        v_add_u32 {vr(LA+1)}, {self.L_L}, {vr(V_DMA)}
        v_and_b32 {vr(LS+1)}, 0xf0, {vr(V_DMA)}
        s_lshl_b32 {sr(T)}, {sr(NB)}, 8
        s_add_u32 {sr(T+8)}, {sr(T)}, {self.L_L}
        v_add_u32 {vr(LS)}, {sr(T+8)}, {vr(LS+1)}""")
        for x in lv: a(x)
        a(f"""s_xor_b32 {sr(T)}, s2, 1
        s_mul_i32 {sr(T)}, {sr(T)}, {IB}
        s_mul_i32 {sr(T+9)}, {sr(NB)}, 5120
        s_add_u32 {sr(T+9)}, {sr(T+9)}, {WS_IB}
        s_add_u32 {sr(T)}, {sr(T)}, {sr(T+9)}
        s_lshl_b32 {sr(T+10)}, {sr(PT)}, 11
        s_add_u32 {sr(T+1)}, {sr(T+10)}, {sr(T)}
        s_add_u32 {sr(T)}, {sr(T)}, 4096
        s_cmp_eq_u32 {sr(PT)}, 0
        s_cselect_b32 {sr(T)}, 0x40000000, {sr(T)}
        s_mov_b32 {sr(T+2)}, {f32(2.0**100)}
        s_mul_i32 {sr(T+12)}, s2, {IB}
        s_add_u32 {sr(T+12)}, {sr(T+12)}, {sr(T+9)}
        s_add_u32 {sr(T+13)}, {sr(T+12)}, {sr(T+10)}
        s_waitcnt lgkmcnt(0)
        s_barrier""")
        self.stamp("B1")

        def rd(X, offs):
            L = [[f"ds_read_b128 {vr(X[k][i],4)}, {vr((R1, R2, R3)[k])} offset:{offs[k] + 1024*i}" for i in range(4)] for k in range(3)]
            L8 = [f"ds_read_b128 {vr(X[k][4],4)}, {vr((R1, R2, R3)[k])} offset:8192" for k in range(3)]
            return L, L8

        def adds(X, k, rng):
            return [f"v_pk_add_f32 {p(M+4*i+2*h)}, {p(M+4*i+2*h)}, {p(X[k][i]+2*h)}" for i in rng for h in range(2)]
        X = [[128, 132, 136, 140, 144], [148, 152, 156, 160, 68], [72, 76, 200, 204, 108]]
        PK = 128
        L, L8 = rd(X, (0, 4096, 0))
        a(f"ds_read_b128 {vr(LA,4)}, {vr(LA+1)}\nds_read_b128 {vr(LS,4)}, {vr(LS)}")
        rest = weave(L[0] + L[1] + L[2], acc(1), 2)
        assert not rest
        a(f"s_mov_b64 exec, {sr(MP1,2)}")
        for x in L8: a(x)
        a(f"""s_mov_b64 exec, -1
        s_waitcnt lgkmcnt(11)
        v_add_f32 {vr(LA)}, {vr(LA)}, {vr(LA+1)}
        v_add_f32 {vr(LA+2)}, {vr(LA+2)}, {vr(LA+3)}
        v_add_f32 {vr(LS)}, {vr(LS)}, {vr(LS+1)}
        v_add_f32 {vr(LA)}, {vr(LA)}, {vr(LA+2)}
        v_add_f32 {vr(LS+2)}, {vr(LS+2)}, {vr(LS+3)}
        v_cmp_nge_f32 vcc, {sr(T+2)}, {vr(LA)}""")
        for x in adds(X, 0, range(4)): a(x)
        a(f"""s_cmp_lg_u64 vcc, 0
        s_cselect_b32 {sr(T+2)}, 1, 0
        s_andn2_b32 {sr(T+2)}, {sr(T+2)}, {sr(S_REDO)}
        s_cbranch_scc1 L_fallback
        v_add_f32 {vr(PK+10)}, {vr(LS)}, {vr(LS+2)}
        v_mov_b32 {vr(PK+11)}, {vr(MK+1)}
        s_waitcnt lgkmcnt(7)""")
        for x in adds(X, 1, range(4)): a(x)
        a("s_waitcnt lgkmcnt(3)")
        a3 = adds(X, 2, range(4))
        cv = [f"v_cvt_pk_bf16_f32 {vr(PK+i)}, {vr(M+2*i)}, {vr(M+2*i+1)}" for i in range(10)]
        for x in a3[:4] + a3[4:6] + cv[:4]: a(x)
        a(f"buffer_store_dwordx4 {vr(PK,4)}, {vr(V_DMA)}, {sr(S_WS,4)}, {sr(T+1)} offen sc1")
        for x in a3[6:] + cv[4:8]: a(x)
        a(f"buffer_store_dwordx4 {vr(PK+4,4)}, {vr(V_DMA)}, {sr(S_WS,4)}, {sr(T+1)} offen offset:1024 sc1")
        a("s_waitcnt lgkmcnt(0)")
        for kk in range(3):
            for x in adds(X, kk, [4]): a(x)
        for x in cv[8:]: a(x)
        a(f"buffer_store_dwordx4 {vr(PK+8,4)}, {vr(V_DMA)}, {sr(S_WS,4)}, {sr(T)} offen sc1")
        self.stamp("sent")
        a(f"s_cmp_eq_u32 {sr(S_VAL)}, 0\ns_cbranch_scc1 L_fin")
        C, UP = 140, 68
        IN = [(200, 204, 226), (164, 168, 252), (192, 196, 172)]
        VXW, VXR, VF, LO = 78, 79, 10, 36
        wr = [self.stage(*e) for e in self.own]

        def inbox(k):
            return [f"buffer_load_dwordx4 {vr(IN[k][0],4)}, {vr(V_DMA)}, {sr(S_WS,4)}, {sr(T+13)} offen sc1",
                    f"buffer_load_dwordx4 {vr(IN[k][1],4)}, {vr(V_DMA)}, {sr(S_WS,4)}, {sr(T+13)} offen offset:1024 sc1",
                    f"buffer_load_dwordx4 {vr(IN[k][2],4)}, {vr(V_DMA+1)}, {sr(S_WS,4)}, {sr(T+12)} offen sc1"]
        for x in inbox(0): a(x)
        n0 = len(a.lines)
        a(f"""s_lshl_b32 {sr(T)}, {sr(NB)}, 12
        s_add_u32 {sr(T)}, {sr(T)}, {sr(T+10)}
        s_add_u32 {sr(T)}, {sr(T)}, {self.X1B}
        v_add_u32 {vr(VXW)}, {sr(T)}, {vr(V_DMA)}
        s_lshl_b32 {sr(T)}, {sr(NB)}, 9
        s_add_u32 {sr(T)}, {sr(T)}, {self.X1B + 4096}
        v_add_u32 {vr(VXR)}, {sr(T)}, {vr(self.VL8)}
        s_lshl_b32 {sr(T)}, {sr(PT)}, 12
        s_add_u32 {sr(T)}, {sr(T)}, {self.X1B}
        v_add_u32 {vr(VF)}, {sr(T)}, {vr(V_DMA)}
        v_xor_b32 {vr(VF+1)}, 4096, {vr(VF)}
        s_lshl_b32 {sr(T)}, {sr(PT)}, 9
        s_add_u32 {sr(T)}, {sr(T)}, {self.X1B + 4096}
        v_add_u32 {vr(VF+2)}, {sr(T)}, {vr(self.VL8)}
        v_xor_b32 {vr(VF+3)}, 512, {vr(VF+2)}
        v_subrev_u32 {vr(R2)}, {2*SLOT}, {vr(R2)}
        v_subrev_u32 {vr(R3)}, {2*SLOT}, {vr(R3)}
        s_waitcnt vmcnt(9)""")
        self.stamp("cv0")
        un = [f"v_lshlrev_b32 {vr(M+2*i)}, 16, {vr(U+i)}\nv_and_b32 {vr(M+1+2*i)}, 0xffff0000, {vr(U+i)}" for i in range(10)]
        w8 = self.w8_loads(self.WO[2], SW + 1)
        for k, src in enumerate((GM, G0, GP)):
            for i in range(5):
                d = vr(C + 4 * i, 4)
                a(f"v_mfma_f32_16x16x16_bf16 {d}, {vr(self.dwf(k, i),2)}, {vr(src+2*i,2)}, {'0' if k == 0 else d}")
                a(w8.pop(0) if i in (0, 3) and w8 else un.pop(0))
        self.stamp("cv1")
        a(f"v_and_b32 {vr(LO+1)}, 0xf0, {vr(V_DMA)}\nv_add_u32 {vr(LO)}, {sr(T+8)}, {vr(LO+1)}\ns_nop 1")
        for i in range(10): a(f"v_pk_mul_f32 {p(C+2*i)}, {p(C+2*i)}, {p(M+2*i)}")
        for i in range(10):
            a(f"v_cvt_pk_bf16_f32 {vr(UP+i)}, {vr(C+2*i)}, {vr(C+2*i+1)}")
        body = a.lines[n0:]; del a.lines[n0:]
        step = max(1, len(body) // len(wr))
        for i, l in enumerate(body):
            if i % o.get("wstep", step) == 0 and wr: a(wr.pop(0))
            a.lines.append(l)
        for x in wr: a(x)
        ac = acc(3)
        a(f"ds_write_b128 {vr(VXW)}, {vr(UP,4)} offset:{X2O}")
        for x in ac[:6]: a(x)
        a(f"ds_write_b128 {vr(VXW)}, {vr(UP+4,4)} offset:{X2O + 1024}")
        for x in ac[6:12]: a(x)
        a(f"""s_mov_b64 exec, {sr(MP1,2)}
        ds_write_b64 {vr(VXR)}, {vr(UP+8,2)} offset:{X2O}
        s_mov_b64 exec, -1""")
        self.stamp("x2")
        for x in inbox(1): a(x)
        for x in ac[12:]: a(x)
        a("s_waitcnt lgkmcnt(0)\ns_barrier")
        self.stamp("B2")
        X = [[128, 132, 136, 140, 144], [148, 152, 156, 160, 188], [16, 20, 24, 28, 32]]
        L, L8 = rd(X, (4096, 4096, 0))
        BU = [[("v", r) for r in (100, 104, 108, 112, 116)], [("v", r) for r in (118, 122, 180, 184, 126)]]
        BO = [self.frag("v", 128), self.frag("v", 146)]
        AB = 80

        def bfrags(dst, off):
            out = []
            for s in range(5):
                for j in range(2):
                    out.append(f"ds_read_b128 {self.rg(dst[j][s],4)}, {vr(VF+j)} offset:{off + 1024*s}" if s < 4 else f"ds_read_b64 {self.rg(dst[j][4],2)}, {vr(VF+2+j)} offset:{off}")
            return out

        def fg(W, Bf):
            out = []
            for s in range(5):
                for u, (tt, j) in enumerate(units):
                    d = vr(AB + 4 * u, 4)
                    if s < 4: out.append(f"v_mfma_f32_16x16x32_bf16 {d}, {self.rg(W[tt][s],4)}, {self.rg(Bf[j][s],4)}, {d}")
                    else: out.append(f"v_mfma_f32_16x16x16_bf16 {d}, {self.rg(W[tt][4],2)}, {self.rg(Bf[j][4],2)}, {d}")
            return out
        xu = []
        for u, (tt, j) in enumerate(units):
            for h in range(2):
                x = self.XRS[j] + 2 * tt + h if tt < 2 else self.XRS[2] + h
                xu += [f"v_lshlrev_b32 {vr(AB+4*u+2*h)}, 16, {vr(x)}", f"v_and_b32 {vr(AB+1+4*u+2*h)}, 0xffff0000, {vr(x)}"]
        a("s_waitcnt vmcnt(14)")
        weave(bfrags(BU, X2O), xu, 2)
        pl = lambda k, i, e: f"v_add_f32 {vr(M+4*i+e)}, {vr(M+4*i+e)}, {vr(X[k][i]+e)}"
        ds = L[0] + L[1] + L[2] + [f"s_not_b64 exec, {sr(MP1,2)}\n" + "\n".join(L8) + "\ns_mov_b64 exec, -1", f"ds_read_b128 {vr(LO,4)}, {vr(LO)} offset:512"]
        nis = [1] * 12 + [3, 1]
        gap = [[] for _ in range(25)]
        tot = [10]
        for g in range(25): tot.append(tot[-1] + (nis[g] if g < 14 else 0))
        A0 = [pl(0, i, e) for i in range(4) for e in range(4)]
        A1 = [pl(1, i, e) for i in range(4) for e in range(4)]
        ib = inbox(2)
        for g, m in enumerate(fg(self.WD, BU)):
            if g % 5 == 0: a(f"s_waitcnt lgkmcnt({min(15, tot[g] - 2 * (g // 5 + 1))})")
            a(m)
            if g == 8: a(f"s_waitcnt lgkmcnt({tot[g] - 14})")
            if g == 16: a(f"s_waitcnt lgkmcnt({tot[g] - 18})")
            if g < 14: a(ds[g])
            if 8 <= g < 14: a(A0.pop(0))
            elif g in (14, 18, 22): a(ib.pop(0))
            elif g >= 14:
                for _ in range(2): a(A0.pop(0) if A0 else A1.pop(0))
        assert not A0 and len(A1) % 2 == 0
        n1 = 16 - len(A1)
        for e in range(n1, 16, 2): a(f"v_pk_add_f32 {p(M+e)}, {p(M+e)}, {p(X[1][e//4]+e%4)}")
        a("s_waitcnt lgkmcnt(0)")
        for x in adds(X, 2, range(4)): a(x)
        a(f"v_add_f32 {vr(LO)}, {vr(LO)}, {vr(LO+1)}\nv_add_f32 {vr(LO+2)}, {vr(LO+2)}, {vr(LO+3)}")
        for kk in range(3):
            for x in adds(X, kk, [4]): a(x)
        a(f"s_mov_b32 {sr(T+2)}, 0\nv_add_f32 {vr(LO)}, {vr(LO)}, {vr(LO+2)}")
        self.stamp("own")
        w, PU = 40, 128
        mo = MK + 3

        def chk(k):
            r = [IN[k][q] + i for q in range(3) for i in range(4)]
            c = [f"v_max3_u32 v46, {vr(r[0])}, {vr(r[1])}, {vr(r[2])}", f"v_max3_u32 v47, {vr(r[3])}, {vr(r[4])}, {vr(r[5])}"]
            for q in range(3): c.append(f"v_max3_u32 v{46+(q&1)}, v{46+(q&1)}, {vr(r[6+2*q])}, {vr(r[7+2*q])}")
            return c + ["v_max_u32 v46, v46, v47", "v_cmp_eq_u32 vcc, -1, v46"]

        def take(k, with_chk):
            r = [IN[k][q] + i for q in range(3) for i in range(4)]
            lp_, mp = r[10], r[11]
            wt = [f"v_min_f32 {vr(w)}, {vr(mo)}, {vr(mp)}", f"v_sub_f32 {vr(w+2)}, {vr(w)}, {vr(mp)}", f"v_sub_f32 {vr(w)}, {vr(w)}, {vr(mo)}",
                  f"v_exp_f32 {vr(w+2)}, {vr(w+2)}", f"v_exp_f32 {vr(w)}, {vr(w)}", f"v_mul_f32 {vr(w+4)}, {vr(w+2)}, {vr(lp_)}",
                  f"v_fmac_f32 {vr(w+4)}, {vr(w)}, {vr(LO)}", f"v_rcp_f32 {vr(w+4)}, {vr(w+4)}", f"v_mul_f32 {vr(w)}, {vr(w)}, {vr(w+4)}",
                  f"v_mul_f32 {vr(w+2)}, {vr(w+2)}, {vr(w+4)}"]
            un = []
            for i in range(10): un += [f"v_lshlrev_b32 {vr(PU+2*i)}, 16, {vr(r[i])}", f"v_and_b32 {vr(PU+1+2*i)}, 0xffff0000, {vr(r[i])}"]
            c = chk(k) if with_chk else []
            for i in range(10):
                a(wt[i])
                if c: a(c.pop(0))
                a(un.pop(0)); a(un.pop(0))
        a("s_waitcnt vmcnt(6)")
        take(0, True)
        a("s_cmp_eq_u64 vcc, 0\ns_cbranch_scc0 L_poll2")
        a.label("L_got")
        self.stamp("got")
        for i in range(10): a(f"v_pk_mul_f32 {p(M+2*i)}, {p(M+2*i)}, {p(w)} op_sel_hi:[1,0]")
        for i in range(10): a(f"v_pk_fma_f32 {p(M+2*i)}, {p(PU+2*i)}, {p(w+2)}, {p(M+2*i)} op_sel_hi:[1,0,1]")
        for i in range(10):
            a(f"v_cvt_pk_bf16_f32 {vr(UP+i)}, {vr(M+2*i)}, {vr(M+2*i+1)}")
            if i == 3: a(f"ds_write_b128 {vr(VXW)}, {vr(UP,4)}")
            if i == 7: a(f"ds_write_b128 {vr(VXW)}, {vr(UP+4,4)} offset:1024")
        a(f"""s_not_b64 exec, {sr(MP1,2)}
        ds_write_b64 {vr(VXR)}, {vr(UP+8,2)}
        s_mov_b64 exec, -1
        s_waitcnt lgkmcnt(0)
        s_barrier""")
        self.stamp("B3")
        for x in bfrags(BO, 0): a(x)
        for g, m in enumerate(fg(self.WO, BO)):
            if g % 5 == 0: a(f"s_waitcnt lgkmcnt({8 - 2 * (g // 5)})" + ("\ns_nop 0" if g == 20 else ""))
            a(m)
        self.stamp("gem")
        a("s_nop 3")
        for j in range(2):
            for tt in range(2):
                u = 2 * tt + j
                for h in range(2): a(f"v_cvt_pk_bf16_f32 {vr(16+4*j+2*tt+h)}, {vr(AB+4*u+2*h)}, {vr(AB+4*u+2*h+1)}")
            a(f"buffer_store_dwordx4 {vr(16+4*j,4)}, {vr(VO+j)}, {sr(S_OUT,4)}, {sr(self.E_COL)} offen {o.get('ofl', 'sc1')}")
        a(f"s_cmp_ge_u32 {sr(S_W)}, 2\ns_cbranch_scc1 L_fin")
        for h in range(2): a(f"v_cvt_pk_bf16_f32 {vr(24+h)}, {vr(AB+16+2*h)}, {vr(AB+16+2*h+1)}")
        a(f"buffer_store_dwordx2 v[24:25], {vr(self.VO8)}, {sr(S_OUT,4)}, 0 offen offset:256 {o.get('ofl', 'sc1')}")
        self.stamp("fin")

        def poll2():
            a.label("L_poll2")
            for k in (1, 2, 0):
                for x in inbox((k + 2) % 3): a(x)
                a("s_waitcnt vmcnt(6)")
                for x in chk(k): a(x)
                a(f"s_add_u32 {sr(T+2)}, {sr(T+2)}, 1\ns_cmp_eq_u64 vcc, 0\ns_cbranch_scc1 L_take{k}")
            a(f"s_cmp_lt_u32 {sr(T+2)}, 0x10000\ns_cbranch_scc1 L_poll2")
            for k in (0, 1, 2):
                a.label(f"L_take{k}")
                take(k, False)
                a("s_branch L_got")
        self.poll2 = poll2

    def fallback(self):
        a = self.a
        T = S_T
        MXR = 208
        a.label("L_fallback")
        a(f"""s_waitcnt vmcnt(0) lgkmcnt(0)
        s_barrier
        s_mov_b32 {sr(S_REDO)}, 1
        s_mov_b32 {sr(S_UG)}, 0x40000000
        {self.xa_srd()}
        s_mov_b32 {sr(S_TOFF)}, {sr(S_LB)}
        s_cmp_eq_u32 {sr(S_DUM)}, 4
        s_cselect_b32 {sr(S_CNT)}, 15, 16""")
        for i in range(4): a(f"v_mov_b32 {vr(MXR+i)}, 0xff800000")
        a.label("L_fb1")
        for g in self.tile_groups(0): a(g)
        a("s_waitcnt vmcnt(0)")
        for x in self.k_reads(0): a(x)
        a("s_waitcnt lgkmcnt(0)")
        for m in self.qk_mfmas(0, czero=True): a(m)
        a("s_nop 7")
        for qb in range(4):
            for i in range(0, 8, 2): a(f"v_max3_f32 {vr(MXR+qb)}, {vr(MXR+qb)}, {vr(self.S(0,qb,i))}, {vr(self.S(0,qb,i+1))}")
        a(f"s_sub_u32 {sr(S_CNT)}, {sr(S_CNT)}, 1\ns_cmp_lg_u32 {sr(S_CNT)}, 0\ns_cbranch_scc1 L_fb1")
        self.greduce([MXR + i for i in range(4)], MXR + 4, "v_max_f32")
        a(f"""v_and_b32 {vr(MXR+4)}, 15, v0
        v_lshlrev_b32 {vr(MXR+4)}, 4, {vr(MXR+4)}
        v_add_u32 {vr(MXR+4)}, {L_SP}, {vr(MXR+4)}
        s_lshl_b32 {sr(T)}, {sr(S_W)}, 2
        s_xor_b32 {sr(T+1)}, {sr(self.NB)}, 1
        v_lshl_add_u32 {vr(MXR+5)}, {sr(self.NB)}, 8, {vr(MXR+4)}
        v_lshl_add_u32 {vr(MXR+4)}, {sr(T+1)}, 8, {vr(MXR+4)}
        v_add_u32 {vr(MXR+6)}, {sr(T)}, {vr(MXR+4)}
        v_add_u32 {vr(MXR+7)}, {sr(T)}, {vr(MXR+5)}""")
        for qb in range(4): a(f"ds_write_b32 {vr(MXR+6+(qb&1))}, {vr(MXR+qb)} offset:{512*(qb>>1)}")
        a("s_waitcnt lgkmcnt(0)\ns_barrier")
        for qb in range(4): a(f"ds_read_b128 {vr(16+4*qb,4)}, {vr(MXR+4+(qb&1))} offset:{512*(qb>>1)}")
        a(f"s_mov_b32 {sr(S_TOFF)}, {sr(S_LB)}")
        for g in self.tile_groups(0) + self.tile_groups(1) + self.tile_groups(2)[:8]: a(g)
        a("s_waitcnt lgkmcnt(0)")
        for qb in range(4):
            r = 16 + 4 * qb
            a(f"v_max_f32 {vr(r)}, {vr(r)}, {vr(r+1)}\nv_max3_f32 {vr(r)}, {vr(r)}, {vr(r+2)}, {vr(r+3)}")
            a(f"v_sub_f32 {vr(self.MK+qb)}, 0, {vr(r)}")
        a("s_waitcnt vmcnt(0)")
        for x in self.k_reads(0, V_V): a(x)
        self.loop_init(False)
        a("s_branch L_go")


if __name__ == "__main__":
    opt = json.loads(sys.argv[2]) if len(sys.argv) > 2 else {}
    g = G(opt)
    txt = g.build()
    if opt.get("align", 1):
        from align import align
        for n2 in (1, 2):
            try:
                txt, st = align(txt, chains=[(1, "L_tr")] * 3 + [(1, "L_tr2"), (n2, "L_tr2")] if opt.get("touch", 1) else None)
                break
            except AssertionError as e:
                if n2 == 2: raise
        print("align: promoted %d, padded %d, left %d" % st)
    txt = txt.replace("\n", "\n; stamps " + json.dumps(g.stnames) + "\n; map %d\n" % g.mp, 1)
    open(sys.argv[1], "w").write(txt)
```

```python
import sys, json, math
from common import Asm, vr, ar, sr, kernel_header, kernel_desc
from lay import *

NAME = "standalone__conformer_family_branchformer__speech_kernel"
NH = 2
NWG = 252 + NH
CHAINS = (3, 3)
RING = 4
LDS_RING = RING * TILE
LDS_TOTAL = 163840
SLOT = 4 * TILE
L_WU, L_WQ, L_WK = 0, 41472, 82944
L_XX, L_XR = 126976, 143360
L_QD = 18432
L_XS = L_XX + L_QD
L_MX = 81920
L_PC = LDS_TOTAL - 256
L_DUMP = 123904
L_SP = 147456

S_X, S_WS, S_XA, S_DB, S_W1, S_W2, S_OUT, S_DW = 8, 12, 16, 20, 24, 28, 32, 36
S_W, S_B, S_H, S_QB, S_TOFF, S_CNT, S_DUM, S_LB, S_TOWN, S_TSND, S_VAL, S_REDO = range(40, 52)
S_UG = 25
S_N, S_FB = 98, 99
S_INC = 24
S_T = 52
S_ST = 76

V_KA, V_VA, V_VR, V_DMA, V_L, V_VB = 1, 3, 5, 6, 10, 14
V_S, V_CI, V_P, V_K, V_V = 16, 80, 96, 128, 164
V_HI = 200
V_X = 208
A_O, A_Q, A_F = 0, 144, 216

LOG2E = 1.4426950408889634
import struct
def f32(x): return "0x%08x" % struct.unpack("<I", struct.pack("<f", x))[0]


class BAsm(Asm):
    def __init__(self):
        super().__init__()
        self.bg, self.every, self.cnt, self.skip = [], 0, 0, 0

    def __call__(self, s):
        for l in s.split("\n"):
            l = l.strip()
            if not l: continue
            self.lines.append("    " + l)
            if self.bg and self.every and not l.startswith(("s_nop", "v_mov_b32", "v_exp", "v_rcp", "v_rsq", "v_sqrt", "s_add_u32 m0")):
                self.cnt += 1
                if self.cnt >= self.every:
                    self.cnt = 0
                    self.pop()

    def pop(self):
        for x in self.bg.pop(0).split("\n"): self.lines.append("    " + x)

    def flush(self):
        while self.bg: self.pop()
        self.every = 0


class G:
    def __init__(self, opt):
        self.o = opt
        self.a = BAsm()
        self.nst = 0
        self.fill = []

    def stamp(self, name):
        if self.o.get("stamps"):
            if name in self.o.get("skipst", []): return
            if "only" in self.o and name not in self.o["only"]: return
            if self.nst >= 11: return
            self.a(f"{'s_memtime' if self.o.get('cyc') else 's_memrealtime'} {sr(S_ST + 2*self.nst, 2)}")
            self.stnames.append(name)
            self.nst += 1

    def srd(self, dst, lo, hi, n):
        if dst == S_WS and self.o.get("wsoff"):
            self.a(f"s_add_u32 {sr(dst)}, {sr(lo)}, {self.o['wsoff']}\ns_addc_u32 {sr(dst+1)}, {sr(hi)}, 0\ns_mov_b32 {sr(dst+2)}, {n}\ns_mov_b32 {sr(dst+3)}, 0x20000")
            return
        self.a(f"s_mov_b32 {sr(dst)}, {sr(lo)}\ns_mov_b32 {sr(dst+1)}, {sr(hi)}\ns_mov_b32 {sr(dst+2)}, {n}\ns_mov_b32 {sr(dst+3)}, 0x20000")

    def greduce(self, regs, tmp, op="v_add_f32"):
        a = self.a
        for sw in ("32", "16"):
            for i, r in enumerate(regs): a(f"v_mov_b32 {vr(tmp+i)}, {vr(r)}")
            if len(regs) < 3: a("s_nop 1" if len(regs) == 1 else "s_nop 0")
            for i, r in enumerate(regs): a(f"v_permlane{sw}_swap_b32 {vr(r)}, {vr(tmp+i)}")
            for i, r in enumerate(regs): a(f"{op} {vr(r)}, {vr(r)}, {vr(tmp+i)}")

    def treduce(self, r, op="v_add_f32"):
        a = self.a
        a(f"v_permlane32_swap_b32 {vr(r)}, {vr(r+2)}\nv_permlane32_swap_b32 {vr(r+1)}, {vr(r+3)}")
        a(f"{op} {vr(r)}, {vr(r)}, {vr(r+2)}\n{op} {vr(r+1)}, {vr(r+1)}, {vr(r+3)}\ns_nop 1")
        a(f"v_permlane16_swap_b32 {vr(r)}, {vr(r+1)}\n{op} {vr(r)}, {vr(r)}, {vr(r+1)}")

    def rbf(self, r):
        self.a(f"v_cvt_pk_bf16_f32 {vr(r)}, {vr(r)}, {vr(r)}\nv_lshlrev_b32 {vr(r)}, 16, {vr(r)}")

    def ln_tail(self, F, out, t, mimic):
        a = self.a
        p = lambda r: vr(r, 2)
        self.greduce([t, t + 1], t + 2)
        a(f"v_mul_f32 {vr(t+2)}, {f32(1.0/144)}, {vr(t)}")
        a(f"v_mul_f32 {vr(t+3)}, {vr(t+2)}, {vr(t+2)}")
        a(f"v_mov_b32 {vr(t+4)}, {f32(1.0/144)}")
        a(f"v_fma_f32 {vr(t)}, {vr(t+1)}, {vr(t+4)}, -{vr(t+3)}")
        a(f"v_max_f32 {vr(t)}, 0, {vr(t)}")
        if mimic:
            self.rbf(t)
            self.rbf(t + 2)
            a(f"v_add_f32 {vr(t)}, {f32(1e-5)}, {vr(t)}")
            self.rbf(t)
            a(f"v_sqrt_f32 {vr(t)}, {vr(t)}\ns_nop 0")
            self.rbf(t)
            a(f"v_rcp_f32 {vr(t)}, {vr(t)}\ns_nop 0")
        else:
            a(f"v_add_f32 {vr(t)}, {f32(1e-5)}, {vr(t)}")
            a(f"v_rsq_f32 {vr(t)}, {vr(t)}\ns_nop 0")
        a(f"v_mul_f32 {vr(t+2)}, -{vr(t+2)}, {vr(t)}")
        for i in range(18):
            a(f"v_pk_fma_f32 {p(F+2*i)}, {p(F+2*i)}, {p(t)}, {p(t+2)} op_sel_hi:[1,0,0]")
        for i in range(18):
            a(f"v_cvt_pk_bf16_f32 {vr(out+i)}, {vr(F+2*i)}, {vr(F+2*i+1)}")

    def ln_packed(self, X, F, out, t):
        a = self.a
        a(f"v_mov_b32 {vr(t+6)}, 0x3f803f80")
        for k in range(4): a(f"v_mov_b32 {vr(t+k)}, 0")
        for i in range(18):
            a(f"v_dot2_f32_bf16 {vr(t+2*(i&1))}, {vr(X+i)}, {vr(t+6)}, {vr(t+2*(i&1))}")
            a(f"v_dot2_f32_bf16 {vr(t+1+2*(i&1))}, {vr(X+i)}, {vr(X+i)}, {vr(t+1+2*(i&1))}")
        for i in range(2):
            a(f"v_lshlrev_b32 {vr(F+2*i)}, 16, {vr(X+i)}\nv_and_b32 {vr(F+2*i+1)}, 0xffff0000, {vr(X+i)}")
        a(f"v_pk_add_f32 {vr(t,2)}, {vr(t,2)}, {vr(t+2,2)}")
        un = []
        for i in range(2, 18):
            un.append(f"v_lshlrev_b32 {vr(F+2*i)}, 16, {vr(X+i)}\nv_and_b32 {vr(F+2*i+1)}, 0xffff0000, {vr(X+i)}")
        sv = (a.bg, a.every, a.cnt, a.skip)
        n0 = len(a.lines)
        a.bg, a.every = [], 0
        self.ln_tail(F, out, t, True)
        tail = a.lines[n0:]
        del a.lines[n0:]
        a.bg, a.every, a.cnt, a.skip = sv
        k = next(i for i, l in enumerate(tail) if "v_pk_fma" in l)
        for i, l in enumerate(tail[:k]):
            if "s_nop" in l and un: continue_nop = True
            a(l)
            if un and not l.strip().startswith("s_nop"): a(un.pop(0))
        while un: a(un.pop(0))
        for l in tail[k:]: a(l)

    def ln_f32(self, F, out, t):
        a = self.a
        p = lambda r: vr(r, 2)
        a(f"v_pk_add_f32 {p(t)}, {p(F)}, {p(F+2)}\nv_pk_add_f32 {p(t+2)}, {p(F+4)}, {p(F+6)}")
        a(f"v_pk_mul_f32 {p(t+4)}, {p(F)}, {p(F)}\nv_pk_mul_f32 {p(t+6)}, {p(F+2)}, {p(F+2)}")
        for i in range(2, 18):
            if i >= 4: a(f"v_pk_add_f32 {p(t+2*(i&1))}, {p(t+2*(i&1))}, {p(F+2*i)}")
            a(f"v_pk_fma_f32 {p(t+4+2*(i&1))}, {p(F+2*i)}, {p(F+2*i)}, {p(t+4+2*(i&1))}")
        a(f"v_pk_add_f32 {p(t)}, {p(t)}, {p(t+2)}\nv_pk_add_f32 {p(t+4)}, {p(t+4)}, {p(t+6)}")
        a(f"v_add_f32 {vr(t)}, {vr(t)}, {vr(t+1)}\nv_add_f32 {vr(t+1)}, {vr(t+4)}, {vr(t+5)}")
        self.ln_tail(F, out, t, False)

    def gemm_u(self, AF, rf, Bs, ACC, afr, bfr, post, vm_items=(), other=(), lead=7, vm0=0, vmsp=4):
        a = self.a
        units = [(0, j) for j in range(4)] + [(1, j) for j in range(4)] + [(2, 0)]
        seq, dl = [], {}
        bs = lambda j, o_, n: self.rg((Bs[j][0], Bs[j][1] + o_), n)
        rem = lambda u: (f"v_mfma_f32_16x16x16_bf16 {vr(ACC+4*u,4)}, {rf(AF+18*units[u][0]+16,2)}, {bs(units[u][1],16,2)}, {vr(ACC+4*u,4)}", u)
        A = [afr(t) for t in range(3)]
        Bf = [bfr(j) for j in range(4)]

        def use(t, j, s, k):
            for x in (A[t][2 * s:2 * s + 2] if s < 4 else A[t][8:]) + ([Bf[j][s]] if Bf[j] else []): dl.setdefault(x, k)
        for g in range(4):
            for s in range(4):
                for u in range(3 * g, 3 * g + 3) if g < 3 else []:
                    t, j = units[u]
                    d = vr(ACC + 4 * u, 4)
                    use(t, j, s, len(seq))
                    seq.append((f"v_mfma_f32_16x16x32_bf16 {d}, {rf(AF+18*t+4*s,4)}, {bs(j,4*s,4)}, {'0' if s == 0 else d}", None))
                if s == 0 and g > 0:
                    for u in range(3 * g - 3, 3 * g):
                        use(units[u][0], units[u][1], 4, len(seq)); seq.append(rem(u))
        last = seq[-3:]; seq = seq[:-3]
        ds = sorted(dl.items(), key=lambda e: e[1]) + [(x, 99) for x in other]
        vm_items = list(vm_items)
        lastvm = vm0 - vmsp
        order, ready, q, done = [], [], [], 0

        def issue():
            x, k_ = ds.pop(0); a(x); order.append(k_)

        def wait(k):
            nonlocal done
            idx = [i_ for i_, k_ in enumerate(order) if k_ <= k]
            if idx and max(idx) + 1 > done:
                a(f"s_waitcnt lgkmcnt({min(15, len(order) - 1 - max(idx))})"); done = max(idx) + 1
        while ds and ds[0][1] < 6: issue()
        for k, (m, fin) in enumerate(seq):
            assert not ds or ds[0][1] > k, (k, ds[0])
            wait(k)
            a(m)
            for u_, kk in list(ready):
                if k - kk >= 4: q += post(u_); ready.remove((u_, kk))
            if fin is not None: ready.append((fin, k))
            due = sum(1 for x, k_ in ds if k_ <= k + lead)
            if due == 0 and vm_items and k >= lastvm + vmsp:
                a(vm_items.pop(0)); lastvm = k; continue
            cap = 2
            for _ in range(min(due, 3)): issue(); cap -= 1
            if cap == 2:
                if q and q[0].startswith("ds_"): a(q.pop(0)); order.append(99); cap -= 1
                elif ds: issue(); cap -= 1
            while cap > 0 and q and not q[0].startswith("ds_"):
                a(q.pop(0)); cap -= 1
        assert not ready
        while ds: issue()
        wait(98)
        for x in vm_items: a(x)
        for x in q[:4]: a(x)
        a(f"s_nop {max(0, 4 - len(q[:4]))}")
        for m, _ in last: a(m)
        for x in q[4:]: a(x)
        a(f"s_nop {max(0, 6 - len(q[4:]))}")
        for u in range(6, 9):
            for x in post(u): a(x)

    def gemm(self, reads, B, ACC, AF, late=(), at={}, per=2):
        a = self.a
        buf = lambda T: 18 * (T % 6)
        ng = 3 * (4 * per + 1)

        def grp(g):
            r = [reads(T, buf(T)) for T in range(3 * g, 3 * g + 3)]
            return [r[t][per * s + u] for s in range(4) for t in range(3) for u in range(per)] + [r[t][4 * per] for t in range(3)]
        rem = lambda T: f"v_mfma_f32_16x16x16_bf16 {vr(ACC+4*T,4)}, {ar(buf(T)+16,2)}, {vr(B+16,2)}, {vr(ACC+4*T,4)}"
        pend = grp(0) + grp(1) + grp(2) + list(late)
        issued = k = 0

        def issue(n):
            nonlocal issued
            for _ in range(n):
                if issued < len(pend): a(pend[issued]); issued += 1

        def mf(x):
            nonlocal k
            a(x); issue(per if per == 2 else (2 if k % 4 == 0 else 1))
            if k in at: a(at[k])
            k += 1
        issue(self.o.get('look', 12) if per == 2 else self.o.get('look1', 8))
        for g in range(3):
            for s in range(4):
                need = ng * g + 3 * per * (s + 1)
                a(f"s_waitcnt lgkmcnt({min(15, issued - need)})")
                for T in range(3 * g, 3 * g + 3):
                    d = vr(ACC + 4 * T, 4)
                    mf(f"v_mfma_f32_16x16x32_bf16 {d}, {ar(buf(T)+4*s,4)}, {vr(B+4*s,4)}, {'0' if s == 0 else d}")
                if s == 0 and g > 0:
                    for T in range(3 * g - 3, 3 * g): mf(rem(T))
                if g == 1 and s == 0: assert issued <= 2 * ng + 6 * per, "group 2 overwrites group 0 too early"
        issue(99)
        a(f"s_waitcnt lgkmcnt({len(late)})\ns_nop 2")
        for T in range(6, 9): a(rem(T))
        a("s_nop 7")

    def tr_reads(self, ad, rf=ar):
        def f(T, dst):
            out = []
            for s in range(4):
                for u in range(2):
                    out.append(f"ds_read_b64_tr_b16 {rf(dst+4*s+2*u,2)}, {vr(ad+u)} offset:{9216*s + 32*T}")
            out.append(f"ds_read_b64_tr_b16 {rf(dst+16,2)}, {vr(ad+2)} offset:{36864 + 32*T}")
            return out
        return f

    def row_reads(self, ad, sw=None):
        def f(T, dst):
            r = ad if sw is None or T == 8 else sw[T & 1]
            out = []
            for s in range(4):
                for u in range(2):
                    out.append(f"ds_read_b64 {ar(dst+4*s+2*u,2)}, {vr(r)} offset:{4864*T + 64*s + 32*u}")
            out.append(f"ds_read_b64 {ar(dst+16,2)}, {vr(r)} offset:{4864*T + 256}")
            return out
        return f

    def dma_rows(self, jobs, cpr, rstride, vo, vc, n_first, first_waves, lab):
        a = self.a
        mul = {18: 3641, 19: 3450}[cpr]
        dr, dc = 256 // cpr, 256 % cpr
        a(f"s_lshl_b32 {sr(S_T)}, {sr(S_W)}, 6")
        a(f"v_add_u32 {vr(vc)}, {sr(S_T)}, v0")
        a(f"v_mul_u32_u24 {vr(vo)}, {mul}, {vr(vc)}")
        a(f"v_lshrrev_b32 {vr(vo)}, 16, {vr(vo)}")
        a(f"v_mul_u32_u24 {vr(vc+1)}, {cpr}, {vr(vo)}")
        a(f"v_sub_u32 {vr(vc)}, {vr(vc)}, {vr(vc+1)}")
        a(f"v_mul_u32_u24 {vr(vo)}, {rstride}, {vr(vo)}")
        a(f"v_lshl_add_u32 {vr(vo)}, {vr(vc)}, 4, {vr(vo)}")
        a(f"s_lshl_b32 {sr(S_T)}, {sr(S_W)}, 10")
        a(f"v_mov_b32 {vr(vc+1)}, {rstride - 16*cpr}")
        for k in range(n_first):
            if k == n_first - 1:
                a(f"s_cmp_ge_u32 {sr(S_W)}, {first_waves}\ns_cbranch_scc1 {lab}")
            for srd, so, lb in jobs:
                a(f"s_add_u32 m0, {sr(S_T)}, {lb + 4096*k}")
                a("s_nop 0")
                a(f"buffer_load_dwordx4 {vr(vo)}, {sr(srd,4)}, {so} offen lds")
            if k < n_first - 1:
                a(f"v_add_u32 {vr(vc)}, {dc}, {vr(vc)}")
                a(f"v_cmp_le_u32 vcc, {cpr}, {vr(vc)}")
                a(f"v_add_u32 {vr(vo)}, {dr*rstride + 16*dc}, {vr(vo)}")
                a(f"v_subrev_u32 {vr(vc+2)}, {cpr}, {vr(vc)}")
                a(f"v_cndmask_b32 {vr(vc)}, {vr(vc)}, {vr(vc+2)}, vcc")
                a(f"v_cndmask_b32 {vr(vc+2)}, 0, {vr(vc+1)}, vcc")
                a(f"v_add_u32 {vr(vo)}, {vr(vo)}, {vr(vc+2)}")
        a.label(lab)

    def voff_table(self, dst, cpr, rstride, vc, step=256):
        a = self.a
        mul = {18: 29128, 19: 27595}[cpr]
        n = len(dst)
        a(f"s_mov_b32 {sr(S_T)}, {rstride - 16*cpr}")
        a(f"v_mul_u32_u24 {vr(dst[0])}, {mul}, {vr(vc)}")
        for k in range(1, n): a(f"v_add_u32 {vr(dst[k])}, {(step*k % cpr)*mul}, {vr(dst[0])}")
        for k in range(n): a(f"v_lshrrev_b32 {vr(dst[k])}, 19, {vr(dst[k])}")
        for k in range(n): a(f"v_mad_i32_i24 {vr(dst[k])}, {vr(dst[k])}, {sr(S_T)}, {vr(vc+1)}")

    def dma_lin(self, srd, soff, lb, v16, lab):
        a = self.a
        a(f"s_lshl_b32 {sr(S_T)}, {sr(S_W)}, 10")
        for k in range(11):
            if k == 10:
                a(f"s_cmp_ge_u32 {sr(S_W)}, 1\ns_cbranch_scc1 {lab}")
            a(f"s_add_u32 m0, {sr(S_T)}, {lb + 4096*k}")
            a(f"s_add_u32 {sr(S_T+1)}, {sr(S_T)}, {soff + 4096*k}")
            a(f"buffer_load_dwordx4 {vr(v16)}, {sr(srd,4)}, {sr(S_T+1)} offen lds")
        a.label(lab)

    def tr_addr(self, ad, base, swapped, t):
        a = self.a
        a(f"v_lshrrev_b32 {vr(t)}, 2, v0")
        a(f"v_mul_u32_u24 {vr(t)}, 288, {vr(t)}")
        a(f"v_and_b32 {vr(t+1)}, 3, v0")
        a(f"v_lshl_add_u32 {vr(t)}, {vr(t+1)}, 3, {vr(t)}")
        a(f"v_add_u32 {vr(ad+2)}, {base}, {vr(t)}")
        if swapped:
            a(f"v_bfe_u32 {vr(t)}, v0, 4, 1")
            a(f"v_mul_u32_u24 {vr(t)}, {16*288}, {vr(t)}")
            a(f"v_add_u32 {vr(ad)}, {vr(ad+2)}, {vr(t)}")
            a(f"v_sub_u32 {vr(ad+1)}, {vr(ad+2)}, {vr(t)}")
            a(f"v_add_u32 {vr(ad+1)}, {16*288}, {vr(ad+1)}")
        else:
            a(f"v_mov_b32 {vr(ad)}, {vr(ad+2)}")
            a(f"v_add_u32 {vr(ad+1)}, {16*288}, {vr(ad+2)}")

    def row_addr(self, ad, base, t):
        a = self.a
        a(f"v_and_b32 {vr(t)}, 15, v0")
        a(f"v_mul_u32_u24 {vr(t)}, 304, {vr(t)}")
        a(f"v_lshrrev_b32 {vr(t+1)}, 4, v0")
        a(f"v_lshl_add_u32 {vr(t)}, {vr(t+1)}, 3, {vr(t)}")
        a(f"v_add_u32 {vr(ad)}, {base}, {vr(t)}")

    def store_block(self, src, v16, v8, srd, soff, soff2, flags=""):
        a = self.a
        for s in range(4):
            a(f"buffer_store_dwordx4 {vr(src+4*s,4)}, {vr(v16)}, {sr(srd,4)}, {sr(soff)} offen offset:{1024*s} {flags}")
        a(f"buffer_store_dwordx2 {vr(src+16,2)}, {vr(v8)}, {sr(srd,4)}, {sr(soff2)} offen {flags}")

    def entry(self):
        a = self.a
        kernel_header(a, NAME)
        a(f"s_load_dwordx16 s[56:71], s[0:1], 0")
        a(f"s_load_dwordx8 s[72:79], s[0:1], 64")
        a(f"s_getpc_b64 {sr(S_W1,2)}")
        a.label("L_pf")
        a(f"""s_mov_b32 {sr(S_W1+2)}, L_dummy-L_pf
        s_mov_b32 {sr(S_W1+3)}, 0x20000
        v_lshlrev_b32 v2, 4, v0
        buffer_load_dwordx4 v[252:255], v2, {sr(S_W1,4)}, 0 offen
        s_lshl_b32 s3, s2, 9
        s_and_b32 s3, s3, 0x7000
        buffer_load_dwordx4 v[252:255], v2, {sr(S_W1,4)}, s3 offen
        v_lshrrev_b32 v1, 6, v0
        s_sub_u32 s2, s2, {NH}
        v_readfirstlane_b32 {sr(S_W)}, v1
        s_memrealtime s[4:5]
        s_cmp_ge_u32 s2, {NWG - NH}
        s_cbranch_scc1 L_wfuse""")
        if self.o.get("late"):
            m_, v_, n_ = self.o["late"]
            a(f"""s_and_b32 s3, s2, {m_}
            s_cmp_lg_u32 s3, {v_}
            s_cbranch_scc1 L_nl
            s_memrealtime s[4:5]
            s_waitcnt lgkmcnt(0)
            s_add_u32 s6, s4, {n_}
            L_lt:
            s_memrealtime s[4:5]
            s_waitcnt lgkmcnt(0)
            s_sub_u32 s7, s6, s4
            s_cmp_gt_i32 s7, 0
            s_cbranch_scc1 L_lt
            L_nl:""")
        if self.o.get("stamps"):
            a("s_memrealtime s[100:101]" if not self.o.get("cyc") else "s_memtime s[100:101]")
        self.mp = 2

    def vm_since(self, mark):
        return sum(1 for l in self.a.lines[mark:] if l.strip().startswith("buffer_"))

    def phase_a(self):
        a, o = self.a, self.o
        XR, XF, XA, ACC, G_, PK = 16, 34, 146, 110, 16, 164
        B4, XD = 16, 88
        VS, VSW, VR4, MXA, MXR, L8, TRU, TRQ, TRQ8, RK, TM = 200, 204, 208, 212, 213, 214, 215, 218, 221, 224, 228
        VK, VU = list(range(182, 193)), list(range(193, 200)) + list(range(104, 108))
        AQ1 = 200
        t0, t1, t2 = 250, 251, 227
        T = S_T
        WV, W10, UOFF, M1, PUB, M3 = 72, 70, 71, 69, 68, 65
        a(f"""v_and_b32 v0, 63, v0
        s_bfe_u32 {sr(S_B)}, s2, 0x10001
        s_lshr_b32 {sr(S_QB)}, s2, 2
        s_lshr_b32 {sr(T)}, {sr(S_W)}, 1
        s_xor_b32 {sr(T)}, {sr(T)}, s2
        s_andn2_b32 {sr(T)}, 1, {sr(T)}
        s_lshl1_add_u32 {sr(T+3)}, {sr(S_QB)}, {sr(T)}
        s_mul_i32 {sr(T)}, {sr(S_B)}, {NT}
        s_add_u32 {sr(T+1)}, {sr(T+3)}, {sr(T)}
        s_and_b32 {sr(T+2)}, {sr(S_W)}, 1
        s_lshl1_add_u32 {sr(T+2)}, {sr(T+1)}, {sr(T+2)}
        v_lshlrev_b32 {vr(V_DMA)}, 4, v0
        s_mul_i32 {sr(T+1)}, {sr(T+2)}, {16*288}
        s_mul_i32 {sr(S_LB)}, {sr(S_W)}, {BLK}
        s_add_u32 m0, {sr(S_LB)}, {L_XS}
        s_mov_b32 {sr(S_X+2)}, 2304000
        s_mov_b32 {sr(S_X+3)}, {sr(S_W1+3)}
        s_add_u32 {sr(S_CNT)}, {sr(T+1)}, 4096
        s_waitcnt lgkmcnt(0)
        s_mov_b64 {sr(S_X,2)}, s[56:57]""")
        for k in range(4): a(f"buffer_load_dwordx4 {vr(V_DMA)}, {sr(S_X,4)}, {sr(T+1)} offen offset:{1024*k} lds")
        a(f"s_add_u32 m0, {sr(S_LB)}, {L_XS + 4096}\ns_mov_b32 exec_hi, 0\nbuffer_load_dwordx4 {vr(V_DMA)}, {sr(S_X,4)}, {sr(S_CNT)} offen lds\ns_mov_b32 exec_hi, -1")
        mx = len(a.lines)
        a(f"""s_add_u32 {sr(S_LB)}, {sr(S_LB)}, {L_XS}
        s_and_b32 {sr(S_H)}, s2, 1
        s_lshl1_add_u32 {sr(S_TOWN)}, {sr(S_QB)}, {sr(S_H)}
        s_cmp_lt_u32 {sr(S_TOWN)}, {NT}
        s_cselect_b32 {sr(S_VAL)}, 1, 0
        s_add_u32 {sr(S_TOWN)}, {sr(S_TOWN)}, {sr(T)}""")
        SQ, SK, SU = S_W2, S_W1, S_XA
        self.srd(SU, 66, 67, 82944)
        self.srd(SQ, 58, 59, 41472)
        self.srd(SK, 60, 61, 41472)
        a(f"s_lshr_b32 {sr(T)}, s2, 3\ns_lshl_b32 {sr(T)}, {sr(T)}, 12\ns_lshl_b32 {sr(W10)}, {sr(S_W)}, 10\ns_add_u32 {sr(T)}, {sr(T)}, {sr(W10)}")
        a(f"buffer_load_dwordx4 v[252:255], {vr(V_DMA)}, {sr(SU,4)}, {sr(T)} offen")
        for srd_, rot in ((SQ, 82), (SK, 41)):
            a(f"s_add_u32 {sr(T+1)}, {sr(T)}, {(128 - rot) * 1024}\ns_and_b32 {sr(T+1)}, {sr(T+1)}, {127 * 1024}")
            a(f"buffer_load_dwordx4 v[252:255], {vr(V_DMA)}, {sr(srd_,4)}, {sr(T+1)} offen")
        self.srd(S_OUT, 74, 75, 2304000)
        self.srd(S_DB, 76, 77, 256)
        self.srd(S_WS, 78, 79, WS_END)
        def tlb():
            a(f"v_lshlrev_b32 v249, 21, v0")
            for ch in o.get("tlbw", "wdo"): a(f"buffer_load_dword v252, v249, {sr(dict(w=S_WS, d=S_DB, o=S_OUT)[ch],4)}, 0 offen")
        if o.get("tlb", 0) == 1: tlb()
        if o.get("tlb", 3) == 3:
            a(f"""s_bfe_u32 {sr(T)}, s2, 0x30003
            s_lshl_b32 {sr(T)}, {sr(T)}, 21
            v_mov_b32 v249, 0
            s_cmp_lt_u32 {sr(T)}, {5 << 21}
            s_cbranch_scc0 L_tl1
            buffer_load_dword v252, v249, {sr(S_WS,4)}, {sr(T)} offen
            s_branch L_tl3
            L_tl1:
            s_sub_u32 {sr(T)}, {sr(T)}, {5 << 21}
            s_cmp_lt_u32 {sr(T)}, {2 << 21}
            s_cbranch_scc0 L_tl2
            buffer_load_dword v252, v249, {sr(S_OUT,4)}, {sr(T)} offen
            s_branch L_tl3
            L_tl2:
            s_or_b32 s4, s4, 1
            v_lshlrev_b32 v249, 8, v0
            v_mov_b32 v250, s4
            s_lshl2_add_u32 s5, s2, {sr(S_W)}
            s_cmp_eq_u32 s5, {56 * 4}
            s_cbranch_scc0 L_tl4
            buffer_store_dword v250, v249, {sr(S_DB,4)}, 0 offen sc1
            s_branch L_tl3
            L_tl4:
            buffer_load_dword v252, v249, {sr(S_DB,4)}, 0 offen
            L_tl3:""")
            self.vm_adj = -3
        if o.get("stamps"): a(f"s_mov_b64 {sr(S_ST,2)}, s[100:101]"); self.stnames.append("start"); self.nst = 1
        self.stamp("xiss")
        a(f"""s_cmp_lt_u32 {sr(T+3)}, {NT}
        s_cselect_b32 {sr(WV)}, 1, 0
        s_mov_b32 {sr(WV+1)}, {sr(T+2)}
        s_mul_i32 {sr(UOFF)}, {sr(S_H)}, 288
        s_cmp_eq_u32 {sr(S_W)}, 0
        s_cselect_b32 {sr(M1)}, 0, {L_DUMP}
        s_cmp_lt_u32 {sr(S_W)}, 3
        s_cselect_b32 {sr(M3)}, {sr(W10)}, {L_DUMP}""")
        half = lambda g_: "s_mov_b32 exec_hi, 0\n" + g_ + "\ns_mov_b32 exec_hi, -1"
        gu = [f"s_add_u32 m0, {sr(W10 if k < 10 else M1)}, {L_WU + 4096*k}\ns_add_u32 {sr(S_CNT)}, {sr(UOFF)}, {4096*k + 288*(256*k//18)}\nbuffer_load_dwordx4 {vr(VU[k])}, {sr(SU,4)}, {sr(S_CNT)} offen lds" for k in range(11)]
        gu[10] = half(gu[10])
        gq = [f"s_add_u32 m0, {sr(W10 if k < 10 else M1)}, {L_WQ + 4096*k}\ns_add_u32 {sr(S_CNT)}, {sr(W10)}, {4096*k}\nbuffer_load_dwordx4 {vr(V_DMA)}, {sr(SQ,4)}, {sr(S_CNT)} offen lds" for k in range(11)]
        gq[10] = half(gq[10])
        gk = [f"s_add_u32 m0, {sr(W10 if k < 10 else M3)}, {L_WK + 4096*k}\ns_mov_b32 {sr(S_CNT)}, {4096*k - 16*(256*k//19)}\nbuffer_load_dwordx4 {vr(VK[k])}, {sr(SK,4)}, {sr(S_CNT)} offen lds" for k in range(11)]
        a(f"s_lshl_b32 {sr(T)}, {sr(S_W)}, 6\nv_add_u32 {vr(t0)}, {sr(T)}, v0\nv_lshlrev_b32 {vr(t1)}, 4, {vr(t0)}")
        self.voff_table(VU, 18, 576, t0)
        npre = o.get("npre", 3)
        a.bg, a.every, a.cnt = gu[:npre], o.get("evpre", 40), 0
        self.voff_table(VK, 19, 288, t0)
        xa0, xa1, xa2 = TM, TM + 1, TM + 2
        a(f"""v_and_b32 {vr(t0)}, 15, v0
        v_lshrrev_b32 {vr(t1)}, 5, v0
        v_lshlrev_b32 {vr(t1)}, 3, {vr(t1)}
        v_xor_b32 {vr(t1)}, {vr(t0)}, {vr(t1)}
        v_lshlrev_b32 {vr(t1)}, 4, {vr(t1)}
        v_lshrrev_b32 {vr(t2)}, 4, v0
        v_lshl_add_u32 {vr(V_KA)}, {vr(t2)}, 9, {vr(t1)}
        v_lshrrev_b32 {vr(t1)}, 3, {vr(t0)}
        v_lshlrev_b32 {vr(t1)}, 1, {vr(t1)}
        v_xor_b32 {vr(t1)}, {vr(t2)}, {vr(t1)}
        v_lshl_add_u32 {vr(t1)}, {vr(t0)}, 2, {vr(t1)}
        v_lshlrev_b32 {vr(V_KA+1)}, 3, {vr(t1)}
        v_lshlrev_b32 {vr(L8)}, 3, v0
        v_lshlrev_b32 {vr(MXR)}, 4, {vr(t0)}
        v_add_u32 {vr(MXR)}, {L_MX}, {vr(MXR)}
        v_add_u32 {vr(MXA)}, {sr(S_W)}, {vr(t2)}
        v_and_b32 {vr(MXA)}, 3, {vr(MXA)}
        v_lshl_add_u32 {vr(MXA)}, {vr(MXA)}, 8, {vr(MXR)}
        s_lshl_b32 {sr(T)}, {sr(S_W)}, 2
        v_add_u32 {vr(MXA)}, {sr(T)}, {vr(MXA)}
        v_mul_u32_u24 {vr(xa2)}, 288, {vr(t0)}
        v_lshl_add_u32 {vr(xa2)}, {vr(t2)}, 3, {vr(xa2)}
        v_add_u32 {vr(xa2)}, {sr(S_LB)}, {vr(xa2)}
        v_and_b32 {vr(t1)}, 1, {vr(t2)}
        v_lshlrev_b32 {vr(t1)}, 5, {vr(t1)}
        v_add_u32 {vr(xa0)}, {vr(xa2)}, {vr(t1)}
        v_xor_b32 {vr(t1)}, 32, {vr(t1)}
        v_add_u32 {vr(xa1)}, {vr(xa2)}, {vr(t1)}
        s_mul_i32 {sr(S_LB)}, {sr(S_W)}, {TILE}
        v_lshrrev_b32 {vr(t0)}, 2, v0
        v_bfe_u32 {vr(t1)}, v0, 1, 1
        v_lshlrev_b32 {vr(t1)}, 3, {vr(t1)}
        v_xor_b32 {vr(t1)}, {vr(t0)}, {vr(t1)}
        v_lshlrev_b32 {vr(t1)}, 4, {vr(t1)}
        v_and_b32 {vr(t2)}, 3, v0
        v_lshl_add_u32 {vr(t1)}, {vr(t2)}, 9, {vr(t1)}
        v_and_b32 {vr(V_VA)}, 1, v0
        v_lshl_add_u32 {vr(t1)}, {vr(V_VA)}, 3, {vr(t1)}
        s_and_b32 {sr(T)}, {sr(S_W)}, 1
        s_lshl_b32 {sr(T)}, {sr(T)}, 12
        s_add_u32 {sr(T+1)}, {sr(T)}, {sr(S_LB)}
        s_xor_b32 {sr(T)}, {sr(T)}, 4096
        s_add_u32 {sr(T)}, {sr(T)}, {sr(S_LB)}
        v_add_u32 {vr(V_VA)}, {sr(T)}, {vr(t1)}
        v_add_u32 {vr(V_VB)}, {sr(T+1)}, {vr(t1)}
        v_xor_b32 {vr(V_VA+1)}, 8, {vr(V_VA)}
        v_xor_b32 {vr(V_VB+1)}, 8, {vr(V_VB)}
        v_lshrrev_b32 {vr(t1)}, 5, v0
        v_lshlrev_b32 {vr(t1)}, 1, {vr(t1)}
        v_xor_b32 {vr(t1)}, {vr(t2)}, {vr(t1)}
        v_lshl_add_u32 {vr(t1)}, {vr(t0)}, 2, {vr(t1)}
        v_lshlrev_b32 {vr(t1)}, 3, {vr(t1)}
        v_add_u32 {vr(V_VR)}, {sr(S_LB)}, {vr(t1)}
        v_add_u32 {vr(V_DMA+1)}, 4096, {vr(V_DMA)}
        v_add_u32 {vr(V_DMA+2)}, 8192, {vr(V_DMA)}""")
        self.tr_addr(TRU, L_WU, True, t0)
        a(f"s_lshl_b32 {sr(T)}, {sr(S_W)}, 6\ns_add_u32 {sr(T)}, {sr(T)}, {L_WQ - L_WU}")
        for k in range(3):
            a(f"v_add_u32 {vr(TRQ+k)}, {sr(T)}, {vr(TRU+k)}\nv_add_u32 {vr(TRQ8+k)}, {L_WQ - L_WU + 256}, {vr(TRU+k)}")
        self.row_addr(RK + 2, L_WK + 8 * 4864, t0)
        a(f"""s_mul_i32 {sr(T)}, {sr(S_W)}, {2*4864}
        s_sub_u32 {sr(T)}, {sr(T)}, {8*4864}
        v_add_u32 {vr(t1)}, {sr(T)}, {vr(RK+2)}
        v_bfe_u32 {vr(t0)}, v0, 2, 1
        v_mul_u32_u24 {vr(t0)}, 4864, {vr(t0)}
        v_add_u32 {vr(RK)}, {vr(t1)}, {vr(t0)}
        v_sub_u32 {vr(RK+1)}, {vr(t1)}, {vr(t0)}""")
        for j in range(4):
            a(f"""s_add_u32 {sr(T)}, {sr(S_W)}, {j}
            s_and_b32 {sr(T)}, {sr(T)}, 3
            s_lshl_b32 {sr(T+1)}, {sr(T)}, 12
            s_add_u32 {sr(T+1)}, {sr(T+1)}, {L_XX}
            v_add_u32 {vr(VS+j)}, {sr(T+1)}, {vr(V_DMA)}
            s_lshl_b32 {sr(T+1)}, {sr(T)}, 9
            s_add_u32 {sr(T+1)}, {sr(T+1)}, {L_XR}
            v_add_u32 {vr(VR4+j)}, {sr(T+1)}, {vr(L8)}
            v_add_u32 {vr(VSW+j)}, {sr(W10)}, {vr(VS+j)}""")
        a(f"""s_sub_u32 {sr(T+2)}, 63, {sr(S_H)}
        s_add_u32 {sr(T+3)}, {sr(S_W)}, 60
        s_cmp_ge_u32 {sr(T+3)}, {sr(T+2)}
        s_cselect_b32 {sr(S_DUM)}, 4, 99
        s_mov_b32 {sr(S_REDO)}, 0
        s_mov_b32 {sr(S_TOFF)}, {sr(S_LB)}
        s_lshl_b32 {sr(PUB)}, {sr(S_TOWN)}, 8
        s_add_u32 {sr(PUB)}, {sr(PUB)}, {WS_F}
        s_cmp_eq_u32 {sr(S_W)}, 2
        s_cselect_b32 {sr(T)}, {sr(S_VAL)}, 0
        s_cmp_eq_u32 {sr(T)}, 1
        s_cselect_b32 {sr(PUB)}, {sr(PUB)}, 0x40000000
        s_lshl_b32 {sr(S_FB)}, s2, 8
        s_add_u32 {sr(S_FB)}, {sr(S_FB)}, {WS_F + 250*256}
        s_mul_i32 {sr(T)}, {sr(S_H)}, 1792
        s_sub_u32 {sr(T)}, {sr(T)}, 768
        s_mul_i32 {sr(T+1)}, {sr(S_H)}, 62
        s_cmp_eq_u32 {sr(S_QB)}, {sr(T+1)}
        s_cselect_b32 {sr(T)}, 0, {sr(T)}
        v_mov_b32 {vr(self.VPL)}, 0x40000000
        s_xor_b32 {sr(T+1)}, {sr(S_FB)}, 256
        s_add_u32 {sr(T)}, {sr(T)}, {sr(S_FB)}
        v_writelane_b32 {vr(self.VPL)}, {sr(S_FB)}, 0
        v_writelane_b32 {vr(self.VPL)}, {sr(T+1)}, 1
        v_writelane_b32 {vr(self.VPL)}, {sr(T)}, 2
        s_mov_b32 {sr(T)}, {WS_F + 502*256}
        s_mov_b32 {sr(T+1)}, {WS_F + 503*256}
        v_writelane_b32 {vr(self.VPL)}, {sr(T)}, 3
        v_writelane_b32 {vr(self.VPL)}, {sr(T+1)}, 4
        s_sub_u32 {sr(S_FB)}, {sr(S_FB)}, {L_PC}""")
        a.flush()
        if o.get("tlb", 0) == 2: tlb()
        self.stamp("pre")
        if o.get("es", 0) == 0: self.epi_setup()
        self.stamp("es")
        nx = self.vm_since(mx) + getattr(self, "vm_adj", 0)
        if o.get("touch", 1):
            a(f"""s_mov_b64 exec, 0
            s_cmp_eq_u32 {sr(S_W)}, 0
            s_cbranch_scc1 L_tr
            s_cmp_eq_u32 {sr(S_W)}, 1
            s_cbranch_scc1 L_t0
            s_cmp_eq_u32 {sr(S_W)}, 2
            s_cbranch_scc1 L_t1
            s_branch L_t2""")
            self.rare()
            a.raw(".p2align 12")
            a.label("L_tr")
            a("s_mov_b64 exec, -1")
        nlate = o.get("nlate", 0)
        for g_ in gu[npre:npre + nlate]: a(g_)
        a(f"s_waitcnt vmcnt({nx + nlate})")
        self.stamp("xarr")
        for s in range(4):
            a(f"ds_read_b64 {vr(XR+4*s,2)}, {vr(xa0)} offset:{64*s}\nds_read_b64 {vr(XR+4*s+2,2)}, {vr(xa1)} offset:{64*s}")
        a(f"ds_read_b64 {vr(XR+16,2)}, {vr(xa2)} offset:256")
        a(f"""s_and_b32 {sr(T)}, {sr(S_W)}, 1
        s_mul_i32 {sr(T+2)}, {sr(S_TOWN)}, {TILE}
        s_cmp_eq_u32 {sr(S_VAL)}, 1
        s_cselect_b32 {sr(T+2)}, {sr(T+2)}, 0x40000000
        s_lshl_b32 {sr(T+3)}, {sr(T)}, 8
        s_add_u32 {sr(T+3)}, {sr(T+3)}, {sr(T+2)}
        s_add_u32 {sr(T+4)}, {sr(T+3)}, 4096
        s_lshl_b32 {sr(T+5)}, {sr(T)}, 9
        s_add_u32 {sr(T+5)}, {sr(T+5)}, {sr(T+2)}
        s_add_u32 {sr(T+5)}, {sr(T+5)}, 8192
        s_waitcnt lgkmcnt(0)""")
        wl = gq + gk
        a.bg, a.every, a.cnt = gu[npre + nlate:] + [wl.pop(0) for _ in range(o.get("nql", 4))], o.get("evln", 8), 0
        self.ln_packed(XR, XF, XA, TM)
        a.flush()
        self.stamp("ln")
        a(f"s_cmp_lt_u32 {sr(S_W)}, 2\ns_cbranch_scc1 L_nop")
        for s in range(4):
            a(f"buffer_store_dwordx4 {vr(XA+4*s,4)}, {vr(V_KA)}, {sr(S_WS,4)}, {sr(T+3+(s>>1))} offen offset:{2048*(s&1)} sc1")
        a(f"buffer_store_dwordx2 {vr(XA+16,2)}, {vr(V_KA+1)}, {sr(S_WS,4)}, {sr(T+5)} offen sc1\ns_waitcnt vmcnt({5 + o.get('nql', 4)})\ns_branch L_bar1")
        a.label("L_nop")
        if o.get("touch", 1):
            a(f"s_mov_b64 exec, 0\ns_cmp_eq_u32 {sr(S_W)}, 0\ns_cbranch_scc1 L_t3\ns_branch L_t4")
            a.label("L_tr2")
            a("s_mov_b64 exec, -1")
        a(f"s_waitcnt vmcnt({o.get('nql', 4)})")
        a.label("L_bar1")
        self.stamp("pub")
        xw = [f"ds_write_b128 {vr(VS)}, {vr(XA+4*s,4)} offset:{1024*s}" for s in range(4)] + [f"ds_write_b64 {vr(VR4)}, {vr(XA+16,2)}"]
        self.stamp("tch")
        PA = 249
        a(f"""v_add_u32 {vr(V_KA)}, {sr(S_LB)}, {vr(V_KA)}
        v_add_u32 {vr(V_KA+1)}, {sr(S_LB)}, {vr(V_KA+1)}
        s_mul_i32 {sr(T)}, {sr(S_B)}, {NT}
        s_mul_i32 {sr(T+1)}, {sr(S_H)}, 63
        s_add_u32 {sr(T)}, {sr(T)}, {sr(T+1)}
        s_lshl_b32 {sr(T)}, {sr(T)}, 8
        s_add_u32 {sr(T)}, {sr(T)}, {WS_F}
        s_cmp_eq_u32 {sr(S_W)}, 0
        s_cselect_b32 {sr(T)}, {sr(T)}, 0x40000000
        v_lshl_add_u32 {vr(PA)}, v0, 8, {sr(T)}
        {self.xa_srd()}
        s_waitcnt lgkmcnt(0)""")
        self.stamp("w1")
        a("s_barrier")
        self.stamp("bar1")
        poll = lambda r: f"buffer_load_dword {vr(r)}, {vr(PA)}, {sr(S_WS,4)}, 0 offen sc1"

        def gate(lab, r, mask, younger):
            a(f"s_mov_b32 {sr(T+2)}, 0\ns_waitcnt vmcnt({younger})")
            a.label(lab)
            a(f"""v_cmp_ne_u32 vcc, {sr(S_N)}, {vr(r)}
            s_add_u32 {sr(T+2)}, {sr(T+2)}, 1
            s_and_b64 vcc, vcc, {mask}
            s_cbranch_scc0 {lab}_ok
            s_sleep {o.get("slp", 4)}
            {poll(r)}
            s_waitcnt vmcnt(0)
            s_cmp_lt_u32 {sr(T+2)}, 0x40000
            s_cbranch_scc1 {lab}""")
            a.label(lab + "_ok")

        H, G_, UG, MS, CL = 16, 52, 208, 110, 104
        nup = o.get("nup", 12)
        at = {o.get("u0", 6) + o.get("usp", 3) * i: wl.pop(0) for i in range(nup)}
        for i in range(5): at[i] = xw[i]
        tagld = f"buffer_load_dword v253, off, {sr(S_DB,4)}, 0 sc1"
        at[o.get("tgp", 5)] = tagld
        if o.get("es", 0) == 1:
            n_ = len(a.lines); self.epi_setup()
            el = [l.strip() for l in a.lines[n_:]]; del a.lines[n_:]
            for k in range(5, 42):
                if k in at: continue
                c_ = 0
                while el and c_ < o.get("esn", 2):
                    x = el.pop(0); at[k] = at.get(k, "") + x + "\n"; c_ += 1 if x.startswith("v_") else 0.5
            self.es_left = el
        self.gemm(self.tr_reads(TRU), XA, H, None, at=at)
        if o.get("es", 0) == 1:
            for x in self.es_left: a(x)
        self.stamp("up")
        last = lambda srd: max(i for i, l in enumerate(a.lines) if l.strip().startswith("buffer_load") and sr(srd, 4) in l) + 1
        assert not any(sr(SQ, 4) in x for x in wl)
        a(f"v_lshlrev_b32 {vr(t0)}, 2, v0\ns_mov_b32 {sr(T+2)}, 0\ns_waitcnt vmcnt({self.vm_since(last(SQ))}) lgkmcnt(0)")
        a.label("L_tag")
        a(f"""v_readfirstlane_b32 {sr(S_N)}, v253
        s_add_u32 {sr(T+2)}, {sr(T+2)}, 1
        s_cmp_lg_u32 {sr(S_N)}, 0
        s_cbranch_scc1 L_tag_ok
        {tagld}
        s_waitcnt vmcnt(0)
        s_cmp_lt_u32 {sr(T+2)}, 0x40000
        s_cbranch_scc1 L_tag""")
        a.label("L_tag_ok")
        m_g = len(a.lines)
        a(f"v_mov_b32 {vr(t1)}, {sr(S_N)}\ns_barrier\nbuffer_store_dword {vr(t1)}, {vr(t0)}, {sr(S_WS,4)}, {sr(PUB)} offen sc1")
        self.stamp("barG")
        if o.get("atw"):
            a("s_waitcnt vmcnt(0)")
            self.stamp("ack")
        if o.get("census"):
            k_ = S_ST + 2 * self.stnames.index(o["census"][0])
            a(f"s_waitcnt lgkmcnt(0)\nv_mov_b32 v252, {sr(k_)}\ns_lshl_b32 {sr(T)}, s2, 2\ns_add_u32 {sr(T)}, {sr(T)}, {WS_DBG}\nv_mov_b32 v253, 0\nbuffer_store_dword v252, v253, {sr(S_WS,4)}, {sr(T)} offen sc1")

        def a_tr(t):
            ad, off = (TRQ, 32 * t) if t < 2 else (TRQ8, 0)
            return [f"ds_read_b64_tr_b16 {ar(AQ1+18*t+4*s+2*u,2)}, {vr(ad+u)} offset:{9216*s + off}" for s in range(4) for u in range(2)] + \
                   [f"ds_read_b64_tr_b16 {ar(AQ1+18*t+16,2)}, {vr(ad+2)} offset:{36864 + off}"]

        def a_row(t):
            off = 4864 * t if t < 2 else 0
            return [f"ds_read_b64 {ar(A_Q+18*t+4*s+2*u,2)}, {vr(RK+t)} offset:{off + 64*s + 32*u}" for s in range(4) for u in range(2)] + \
                   [f"ds_read_b64 {ar(A_Q+18*t+16,2)}, {vr(RK+t)} offset:{off + 256}"]
        bq = lambda j, d=0: [f"ds_read_b128 {ar(18*j+4*s,4)}, {vr(VS+j)} offset:{d + 1024*s}" for s in range(4)] + [f"ds_read_b64 {ar(18*j+16,2)}, {vr(VR4+j)} offset:{d}"]

        def post(u, scale, d):
            L = [f"v_mul_f32 {vr(ACC+4*u+i)}, {sr(T+4)}, {vr(ACC+4*u+i)}" for i in range(4)] if scale else []
            L += [f"v_cvt_pk_bf16_f32 {vr(PK + (4*(u&3) + 2*(u>>2) if u < 8 else 16) + h)}, {vr(ACC+4*u+2*h)}, {vr(ACC+4*u+2*h+1)}" for h in range(2)]
            if 4 <= u < 8: L.append(f"ds_write_b128 {vr(VSW+u-4)}, {vr(PK+4*(u-4),4)} offset:{d}")
            if u == 8: L.append(f"ds_write_b64 {vr(VR4)}, {vr(PK+16,2)} offset:{d}")
            return L
        xd = [f"ds_read_b128 {vr(XD+4*j,4)}, {vr(VSW+j)}" for j in range(4)]
        self.gemm_u(AQ1, ar, [("v", XA), ("a", 18), ("a", 36), ("a", 54)], ACC, a_tr, lambda j: bq(j) if j else None, lambda u: post(u, False, L_QD),
                    vm_items=wl, other=xd, vmsp=o.get("vmsp", 3))
        self.stamp("g1")
        assert last(SK) > m_g
        for i in range(4): a(f"v_mov_b32 {vr(CL+i)}, -1")
        a(f"s_lshl2_add_u32 {sr(T+2)}, s2, {sr(S_W)}\ns_mul_i32 {sr(T+2)}, {sr(T+2)}, 2560\ns_add_u32 {sr(T+2)}, {sr(T+2)}, {WS_IB}")
        a(f"s_mov_b32 {sr(T+4)}, {f32(LOG2E / 12.0)}\ns_waitcnt vmcnt({self.vm_since(last(SK))}) lgkmcnt(0)\ns_barrier")
        clr = [f"buffer_store_dwordx4 {vr(CL,4)}, {vr(V_DMA)}, {sr(S_WS,4)}, {sr(T+2)} offen sc1",
               f"buffer_store_dwordx4 {vr(CL,4)}, {vr(V_DMA)}, {sr(S_WS,4)}, {sr(T+2)} offen offset:1024 sc1",
               f"buffer_store_dwordx2 {vr(CL,2)}, {vr(L8)}, {sr(S_WS,4)}, {sr(T+2)} offen offset:2048 sc1"]
        self.stamp("bar2")
        self.gemm_u(A_Q, ar, [("a", 18 * j) for j in range(4)], ACC, a_row, lambda j: bq(j, L_QD), lambda u: post(u, True, 0), vm_items=[poll(252)] + clr, vm0=o.get("pg", 12), vmsp=o.get("csp", 8))
        self.stamp("g2")
        p = lambda r: vr(r, 2)
        CC = TM
        for j in range(4): a(f"v_dot2_f32_bf16 {vr(CC+j)}, {vr(PK+4*j)}, {vr(XD+4*j)}, 0")
        for i in range(2): a(f"v_dot2_f32_bf16 {vr(CC)}, {vr(PK+16+i)}, {vr(XA+16+i)}, {vr(CC)}")
        for i in range(1, 4):
            for j in range(4): a(f"v_dot2_f32_bf16 {vr(CC+j)}, {vr(PK+4*j+i)}, {vr(XD+4*j+i)}, {vr(CC+j)}")
        QE = TRQ
        a(f"""s_xor_b32 {sr(T+1)}, {sr(self.NB)}, 1
        v_add_u32 {vr(t0)}, {L_XX}, {vr(V_DMA)}
        v_lshl_add_u32 {vr(QE)}, {sr(T+1)}, 12, {vr(t0)}
        v_lshl_add_u32 {vr(QE+1)}, {sr(self.NB)}, 12, {vr(t0)}""")
        self.treduce(CC)
        a(f"""ds_write_b32 {vr(MXA)}, {vr(CC)}
        v_add_u32 {vr(t0)}, {L_XR}, {vr(L8)}
        v_lshl_add_u32 {vr(QE+2)}, {sr(T+1)}, 9, {vr(t0)}
        v_lshl_add_u32 {vr(QE+3)}, {sr(self.NB)}, 9, {vr(t0)}
        v_lshl_add_u32 {vr(QE+4)}, {sr(T+1)}, 8, {vr(MXR)}
        v_lshl_add_u32 {vr(QE+5)}, {sr(self.NB)}, 8, {vr(MXR)}
        s_sub_u32 {sr(T+5)}, 63, {sr(S_H)}
        s_bfm_b64 {sr(T+8,2)}, {sr(T+5)}, 0
        s_lshr_b32 {sr(T+6)}, s2, 3
        s_lshl_b32 {sr(T+6)}, {sr(T+6)}, 12
        s_add_u32 {sr(T+6)}, {sr(T+6)}, {sr(W10)}
        s_cmp_lg_u32 {sr(S_W)}, 0
        s_cbranch_scc1 L_ga_ok""")
        gate("L_ga", 252, sr(T + 8, 2), 3)
        a("s_waitcnt lgkmcnt(0)\ns_barrier")
        self.stamp("bar3")
        c1 = -2.0 * math.sqrt(2.0 / math.pi) * LOG2E
        c2 = c1 * 0.044715
        qrd = [f"ds_read_b128 {vr(MS+4*qb,4)}, {vr(QE+4+(qb&1))} offset:{512*(qb>>1)}" for qb in range(4)]
        for qb in range(4):
            qrd += [f"ds_read_b128 {ar(A_Q+18*qb+4*s,4)}, {vr(QE+(qb&1))} offset:{8192*(qb>>1) + 1024*s}" for s in range(4)]
            qrd.append(f"ds_read_b64 {ar(A_Q+18*qb+16,2)}, {vr(QE+2+(qb&1))} offset:{1024*(qb>>1)}")
        tg = self.tile_groups(0) + self.tile_groups(1) + self.tile_groups(2)[:8]
        n0 = o.get("n0", 3)
        for k in range(o.get("tpf", 0)):
            a(f"s_add_u32 {sr(T+7)}, {sr(T+6)}, {o.get('tpf0', 4*TILE) + 131072*k}\nbuffer_load_dwordx4 v[252:255], {vr(V_DMA)}, {sr(S_XA,4)}, {sr(T+7)} offen")
        for x in tg[:n0]: a(x)
        a(f"v_mov_b32 {vr(CC)}, {f32(c1)}\nv_mov_b32 {vr(CC+2)}, {f32(c2)}\nv_mov_b32 {vr(CC+4)}, 1.0")
        nq1, nt1 = o.get("nq1", 8), o.get("nt1", 5)
        bgl = []
        for i in range(max(nq1 // 2, nt1)):
            if 2 * i < nq1: bgl.append(qrd[2 * i] + "\n" + qrd[2 * i + 1])
            if i < nt1: bgl.append(tg[n0 + i])
        tg, qrd = tg[n0 + nt1:], qrd[nq1:]
        a.bg, a.every, a.cnt = bgl, 54 // (len(bgl) + 1), 0
        for i in range(18): a(f"v_pk_mul_f32 {p(G_+2*i)}, {p(H+2*i)}, {p(H+2*i)}")
        for i in range(18): a(f"v_pk_fma_f32 {p(G_+2*i)}, {p(G_+2*i)}, {p(CC+2)}, {p(CC)} op_sel_hi:[1,0,0]")
        for i in range(18): a(f"v_pk_mul_f32 {p(G_+2*i)}, {p(G_+2*i)}, {p(H+2*i)}")
        a.flush()
        self.stamp("ge1")
        esp = o.get("esp", 4)
        for i in range(36):
            a(f"v_exp_f32 {vr(G_+i)}, {vr(G_+i)}")
            if i % esp == 1 and tg: a(tg.pop(0))
            if i % 8 == 3 and qrd: a(qrd.pop(0)); a(qrd.pop(0))
        self.stamp("ge2")
        for i in range(18): a(f"v_pk_add_f32 {p(G_+2*i)}, {p(G_+2*i)}, {p(CC+4)} op_sel_hi:[1,0]")
        for i in range(36):
            a(f"v_rcp_f32 {vr(G_+i)}, {vr(G_+i)}")
            if i % esp == 1 and tg: a(tg.pop(0))
            if i % 8 == 3 and qrd: a(qrd.pop(0)); a(qrd.pop(0))
        assert not tg and not qrd
        idx = [i for i, l in enumerate(a.lines) if l.strip().startswith("buffer_load") and l.rstrip().endswith("lds")]
        m_t0, m_t1 = idx[-18] + 1, idx[-9] + 1
        for i in range(18): a(f"v_pk_mul_f32 {p(H+2*i)}, {p(G_+2*i)}, {p(H+2*i)}")
        a(f"""s_mul_i32 {sr(T)}, {sr(WV+1)}, {BLK}
        s_cmp_eq_u32 {sr(S_H)}, 1
        s_cbranch_scc1 L_ln2
        s_add_u32 {sr(T)}, {sr(T)}, {WS_U}""")
        for i in range(18): a(f"v_cvt_pk_bf16_f32 {vr(UG+i)}, {vr(H+2*i)}, {vr(H+2*i+1)}")
        a("s_branch L_ug")
        a.label("L_ln2")
        a(f"s_add_u32 {sr(T)}, {sr(T)}, {WS_G}")
        self.ln_f32(H, UG, TM)
        a.label("L_ug")
        self.stamp("ge3")
        a(f"""s_cmp_eq_u32 {sr(WV)}, 1
        s_cselect_b32 {sr(S_UG)}, {sr(T)}, 0x40000000
        s_waitcnt vmcnt({self.vm_since(m_t0)}) lgkmcnt(0)""")
        for x in self.k_reads(0, V_V): a(x)
        self.ugs = [f"buffer_store_dwordx4 {vr(UG+4*s,4)}, {vr(V_DMA)}, {sr(S_WS,4)}, {sr(S_UG)} offen offset:{1024*s} sc1" for s in range(4)]
        self.ugs.append(f"buffer_store_dwordx2 {vr(UG+16,2)}, {vr(self.VL8)}, {sr(S_WS,4)}, {sr(S_UG)} offen sc1")
        for qb in range(4): a(f"v_pk_add_f32 {p(MS+4*qb)}, {p(MS+4*qb)}, {p(MS+4*qb+2)} neg_lo:[1,1] neg_hi:[1,1]")
        for qb in range(4): a(f"v_add_f32 {vr(self.MK+qb)}, {vr(MS+4*qb)}, {vr(MS+4*qb+1)}")
        a(f"v_lshlrev_b32 {vr(t1)}, 8, v0\nv_lshlrev_b32 v231, 2, v0\nv_add_u32 v231, {L_PC}, v231\nds_write_b32 v231, {vr(t1)}")
        self.loop_init(False)
        self.n_t1 = self.vm_since(m_t1)
        self.stamp("ug")

    def loop_init(self, part):
        a = self.a
        if part:
            for qb in range(4):
                for i in range(4): a(f"v_mov_b32 {vr(V_CI+4*qb+i)}, {vr(self.MK+qb)}")
            return
        for k in range(7): a(f"v_add_u32 {vr(V_HI+k)}, {2*SLOT}, {vr(V_KA+k if k < 5 else V_VB+k-5)}")
        a(f"v_add_u32 {vr(self.VS0)}, {sr(S_LB)}, {vr(V_DMA)}\nv_add_u32 {vr(self.VS0R)}, {sr(S_LB)}, {vr(self.VL8)}\ns_mov_b32 {sr(S_CNT)}, 0\ns_mov_b32 {sr(S_INC)}, {4*TILE}")
        for i in range(4): a(f"v_mov_b32 {vr(V_L+i)}, 0")
        a(f"v_mov_b32 v227, 0x3f803f80\nv_mov_b32 v226, {sr(S_N)}\nv_mov_b32 {vr(self.VPL+1)}, 1\nv_lshlrev_b32 v231, 2, v0\nv_add_u32 v231, {L_PC}, v231")

    def head(self):
        a, o = self.a, self.o
        a.label("L_go")
        self.loop_init(True)
        a("s_waitcnt lgkmcnt(0)\ns_barrier")
        self.stamp("bar5")
        base = self.qk_mfmas(0)
        pick = lambda s_, kb, qb: base[8 * s_ + 4 * kb + qb].replace(vr(V_K + 8 * s_ + 4 * kb, 4) + ",", vr(V_V + 8 * s_ + 4 * kb, 4) + ",").replace(vr(V_K + 32 + 2 * kb, 2) + ",", vr(V_V + 32 + 2 * kb, 2) + ",")
        mf, fin = [], {}
        for qb, s_ in [(0, 0), (0, 1), (0, 2), (0, 3), (1, 0), (1, 1), (0, 4), (1, 2), (1, 3), (2, 0), (2, 1), (1, 4), (2, 2), (2, 3), (3, 0), (3, 1), (2, 4),
                       (3, 2), (3, 3), (3, 4)]:
            for kb in range(2):
                fin[qb, kb] = len(mf)
                mf.append(("s_nop 3\n" if (qb, s_, kb) == (3, 4, 0) else "") + pick(s_, kb, qb))
        enew = [e[1] for g in range(40, 76) for e in self.gaps[g] if e[0] == "E"]
        items = self.e_items(0, enew, lambda qb, j: 0, lambda qb: 999)
        for it, e in zip(items, enew):
            if e[0] == "e": it["am"] = fin[e[1], e[2] // 4]
        dm = []
        for k, (slot, j) in enumerate([(2, 8)] + [(3, j) for j in range(9)]):
            g_ = 1 + o.get("hsp", 4) * k
            if j % 4 == 0: dm.append(dict(t=f"s_add_u32 m0, {sr(S_LB)}, {slot*SLOT + 4096*(j//4)}", c=0, lo=g_ - 1, hi=g_ - 1))
            dm.append(dict(t=f"buffer_load_dwordx4 {vr(V_DMA + j//4)}, {sr(S_XA,4)}, {sr(S_TOFF)} offen offset:{1024*(j%4)} lds", c=8, lo=g_, hi=g_))
            if j == 8: dm.append(dict(t=f"s_add_u32 {sr(S_TOFF)}, {sr(S_TOFF)}, {4*TILE}", c=0, lo=g_ + 1, hi=g_ + 1))
        nh = o.get("ugh", 2) if not o.get("ugl", 1) else 0
        for k in range(nh): dm.append(dict(t=self.ugs[k], c=8, lo=3 + 16 * k, hi=3 + 16 * k))
        a(f"s_waitcnt vmcnt({self.n_t1})")
        left = self.pack(mf, items + dm + [dict(t=x, c=4, lo=i // 2, nds=2) for i, x in enumerate(self.k_reads(1))])
        print("head overflow", self.over, "left", len(left))
        left.sort(key=lambda x: not x.startswith("v_exp"))
        last = a.lines[-1].strip()
        for x in left:
            if last.startswith("v_exp") and not x.startswith("v_exp") and (last.split()[1].rstrip(",") + ",") in (x + ","): a("s_nop 0")
            a(x); last = x
        a("s_waitcnt lgkmcnt(0)")

    def tile_groups(self, slot):
        out = []
        for j in range(9):
            g = ""
            if j % 4 == 0: g = f"s_add_u32 m0, {sr(S_LB)}, {slot*SLOT + 4096*(j//4)}\ns_nop 0\n"
            g += f"buffer_load_dwordx4 {vr(V_DMA + j//4)}, {sr(S_XA,4)}, {sr(S_TOFF)} offen offset:{1024*(j%4)} lds"
            if j == 8: g += f"\ns_add_u32 {sr(S_TOFF)}, {sr(S_TOFF)}, {4*TILE}"
            out.append(g)
        return out

    def first_tiles(self):
        pass

    def wfuse(self):
        a = self.a
        BF, ACC, AF, TM, AD = 88, 108, 144, 208, 240
        LA, LB_, LM = 0, 44032, 88064
        T = S_T
        a.label("L_wfuse")
        a(f"s_add_u32 s2, s2, {NH}\ns_cmp_ge_u32 s2, {NH}\ns_cbranch_scc1 L_end")
        a(f"v_lshrrev_b32 v1, 6, v0\nv_and_b32 v0, 63, v0\nv_readfirstlane_b32 {sr(S_W)}, v1\nv_lshlrev_b32 {vr(V_DMA)}, 4, v0\ns_waitcnt lgkmcnt(0)")
        self.srd(S_WS, 78, 79, WS_END)
        self.srd(S_DB, 76, 77, 256)
        self.wf0 = 0
        self.srd(S_X, 72, 73, 82944)
        self.srd(S_W2, 62, 63, 41472)
        a(f"""s_cmp_eq_u32 s2, {self.wf0}
        s_cselect_b32 {sr(S_W1)}, s64, s70
        s_cselect_b32 {sr(S_W1+1)}, s65, s71
        s_mov_b32 {sr(S_W1+2)}, 41472
        s_mov_b32 {sr(S_W1+3)}, 0x20000
        s_cselect_b32 {sr(T+4)}, 0, 41472""")
        self.dma_rows([(S_W1, "0", LA), (S_W2, "0", LB_)], 19, 288, TM + 4, TM + 5, 11, 3, "L_wf1")
        a(f"s_lshl_b32 {sr(T)}, {sr(S_W)}, 10\ns_add_u32 {sr(T+2)}, {sr(T)}, {sr(T+4)}")
        for k in range(11):
            if k == 10: a(f"s_cmp_ge_u32 {sr(S_W)}, 1\ns_cbranch_scc1 L_wf2")
            a(f"s_add_u32 m0, {sr(T)}, {LM + 4096*k}\ns_add_u32 {sr(T+1)}, {sr(T+2)}, {4096*k}")
            a(f"buffer_load_dwordx4 {vr(V_DMA)}, {sr(S_X,4)}, {sr(T+1)} offen lds")
        a.label("L_wf2")
        self.srd(S_DW, 68, 69, 864)
        a(f"""v_and_b32 {vr(TM)}, 15, v0
        v_lshlrev_b32 {vr(TM+2)}, 4, {vr(TM)}
        v_lshlrev_b32 {vr(TM)}, 1, {vr(TM)}
        v_bfe_u32 {vr(TM+3)}, v0, 4, 1
        v_lshl_add_u32 {vr(TM+1)}, {vr(TM+3)}, 7, {vr(TM)}
        v_lshl_add_u32 {vr(TM+2)}, {vr(TM+3)}, 11, {vr(TM+2)}
        v_and_b32 {vr(TM+3)}, 1, v0
        v_lshlrev_b32 {vr(TM+3)}, 4, {vr(TM+3)}
        v_bfe_i32 {vr(TM+4)}, v0, 1, 1
        v_not_b32 {vr(TM+5)}, {vr(TM+4)}""")
        for k in range(3):
            for i in range(5): a(f"buffer_load_ushort {vr(16+5*k+i)}, {vr(TM+1 if i < 4 else TM)}, {sr(S_DW,4)}, 0 offen offset:{288*k + (32*i if i < 4 else 256)}")
        a(f"s_mov_b32 {sr(T+1)}, {WS_DWF}\ns_waitcnt vmcnt(0)")
        for f in range(15):
            a(f"v_lshlrev_b32 {vr(16+f)}, {vr(TM+3)}, {vr(16+f)}\nv_and_b32 {vr(32+2*f)}, {vr(TM+5)}, {vr(16+f)}\nv_and_b32 {vr(33+2*f)}, {vr(TM+4)}, {vr(16+f)}")
        for r_ in range(8): a(f"buffer_store_dwordx{4 if r_ < 7 else 2} {vr(32+4*r_, 4 if r_ < 7 else 2)}, {vr(TM+2)}, {sr(S_WS,4)}, {sr(T+1)} offen offset:{256*r_} sc1")
        self.tr_addr(AD, LM, False, TM + 8)
        self.row_addr(AD + 3, LA, TM + 8)
        a(f"v_add_u32 {vr(AD+5)}, {LB_}, {vr(AD+3)}")
        a(f"v_lshlrev_b32 {vr(AD+4)}, 3, v0")
        a(f"""s_lshr_b32 {sr(T)}, {sr(S_W)}, 1
        s_lshl_b32 {sr(T)}, {sr(T)}, 6
        s_and_b32 {sr(T+1)}, {sr(S_W)}, 1
        s_lshl_b32 {sr(T+1)}, {sr(T+1)}, 3
        s_add_u32 {sr(T)}, {sr(T)}, {sr(T+1)}
        v_and_b32 {vr(AD+6)}, 3, v0
        v_lshlrev_b32 {vr(AD+6)}, 3, {vr(AD+6)}
        v_add_u32 {vr(AD+7)}, {sr(T)}, {vr(AD+6)}""")
        for k in range(3): a(f"v_add_u32 {vr(AD+k)}, {vr(AD+7)}, {vr(AD+k)}")
        a(f"s_mov_b32 {sr(S_CNT)}, {sr(S_W)}")
        a("s_waitcnt vmcnt(0)\ns_barrier")
        a.label("L_wfl")
        for s in self.tr_reads(AD, vr)(0, BF): a(s)
        a("s_waitcnt lgkmcnt(0)")
        self.gemm(self.row_reads(AD + 3), BF, ACC, AF)
        for i in range(18): a(f"v_cvt_pk_bf16_f32 {vr(BF+i)}, {vr(ACC+2*i)}, {vr(ACC+2*i+1)}")
        a(f"s_cmp_eq_u32 s2, {self.wf0}\ns_cbranch_scc0 L_wf3")
        self.gemm(self.row_reads(AD + 5), BF, ACC, AF)
        for i in range(18): a(f"v_cvt_pk_bf16_f32 {vr(BF+i)}, {vr(ACC+2*i)}, {vr(ACC+2*i+1)}")
        a.label("L_wf3")
        a(f"""s_mul_i32 {sr(T)}, {sr(S_CNT)}, {BLK}
        s_add_u32 {sr(T)}, {sr(T)}, {sr(T+4)}
        s_add_u32 {sr(T)}, {sr(T)}, {WS_WF}
        s_add_u32 {sr(T+1)}, {sr(T)}, 4096""")
        self.store_block(BF, V_DMA, AD + 4, S_WS, T, T + 1, "sc1")
        for k in range(3): a(f"v_add_u32 {vr(AD+k)}, 128, {vr(AD+k)}")
        a(f"s_add_u32 {sr(S_CNT)}, {sr(S_CNT)}, 4\ns_cmp_lt_u32 {sr(S_CNT)}, 8\ns_cbranch_scc1 L_wfl")
        for k in range(3): a(f"v_sub_u32 {vr(AD+k)}, {vr(AD+k)}, {vr(AD+6)}")
        a(f"s_cmp_eq_u32 {sr(S_CNT)}, 8\ns_cbranch_scc1 L_wfl")
        a(f"""s_waitcnt vmcnt(0)
        s_barrier
        s_cmp_lg_u32 {sr(S_W)}, 0
        s_cbranch_scc1 L_end
        s_mov_b32 {sr(T+2)}, 0""")
        a.label("L_wtag")
        a(f"""buffer_load_dword {vr(TM)}, off, {sr(S_DB,4)}, 0 sc1
        s_add_u32 {sr(T+2)}, {sr(T+2)}, 1
        s_waitcnt vmcnt(0)
        v_readfirstlane_b32 {sr(T)}, {vr(TM)}
        s_cmp_lt_u32 {sr(T+2)}, 0x40000
        s_cselect_b32 {sr(T)}, {sr(T)}, 1
        s_cmp_eq_u32 {sr(T)}, 0
        s_cbranch_scc1 L_wtag
        v_lshlrev_b32 {vr(TM+1)}, 2, v0
        s_lshl_b32 {sr(T)}, s2, 8
        s_add_u32 {sr(T)}, {sr(T)}, {WS_F + 502*256}
        buffer_store_dword {vr(TM)}, {vr(TM+1)}, {sr(S_WS,4)}, {sr(T)} offen sc1
        s_endpgm""")

    def dump_stamps(self):
        a = self.a
        if self.o.get("census"):
            key, mode, m_, v_ = self.o["census"]
            a(f"""s_cmp_lg_u32 s2, 100
            s_cbranch_scc1 L_end
            v_lshlrev_b32 v16, 2, v0
            s_mov_b32 s4, {WS_DBG}""")
            for k in range(4): a(f"buffer_load_dword v{20+k}, v16, {sr(S_WS,4)}, s4 offen offset:{256*k} sc1")
            a(f"s_waitcnt vmcnt(0)\nv_readlane_b32 s8, v21, 36\ns_mov_b32 s9, 0x80000000\ns_mov_b32 s10, 0x7fffffff\ns_mov_b32 s11, 0\ns_mov_b32 s17, 0")
            for k in range(4):
                a(f"s_mov_b32 s5, 0")
                a.label(f"L_cs{k}")
                a(f"""v_readlane_b32 s6, v{20+k}, s5
                s_add_u32 s7, s5, {64*k}
                s_sub_u32 s6, s6, s8
                s_and_b32 s16, s7, {m_}
                s_cmp_lg_u32 s16, {v_}
                s_cbranch_scc1 L_cn{k}
                s_min_i32 s10, s10, s6
                s_cmp_gt_i32 s6, {self.o.get("thr", 150)}
                s_addc_u32 s17, s17, 0
                s_cmp_gt_i32 s6, s9
                s_cselect_b32 s9, s6, s9
                s_cselect_b32 s11, s7, s11""")
                a.label(f"L_cn{k}")
                a(f"s_add_u32 s5, s5, 1\ns_cmp_lt_u32 s5, {64 if k < 3 else 60}\ns_cbranch_scc1 L_cs{k}")
            a({"arg": "s_lshl_b32 s6, s11, 3", "range": "s_sub_u32 s6, s9, s10\ns_lshl_b32 s6, s6, 1", "zero": "s_mov_b32 s6, 0", "cnt": "s_lshl_b32 s6, s17, 4",
               "max": "s_lshl_b32 s6, s9, 1"}[mode])
            a("s_add_u32 s6, s6, 1000\ns_memrealtime s[4:5]\ns_waitcnt lgkmcnt(0)\ns_add_u32 s6, s6, s4")
            a.label("L_echo")
            a("s_memrealtime s[4:5]\ns_waitcnt lgkmcnt(0)\ns_sub_u32 s7, s6, s4\ns_cmp_gt_i32 s7, 0\ns_cbranch_scc1 L_echo")
            return
        if self.o.get("echo"):
            if self.o["echo"][0] == "skew":
                a(f"v_mov_b32 v16, 4\nbuffer_load_dword v17, v16, {sr(S_DB,4)}, 0 offen sc1\ns_waitcnt vmcnt(0)\nv_readfirstlane_b32 s98, v17\ns_not_b32 s98, s98")
                x, y = 98, S_ST + 2 * self.stnames.index(self.o["echo"][1])
            else:
                x, y = [S_ST + 2 * self.stnames.index(n) for n in self.o["echo"]]
            lo, hi = self.o.get("echo_ids", (0, 999))
            a(f"""s_cmp_eq_u32 {sr(S_VAL)}, 0
            s_cbranch_scc1 L_end
            s_cmp_lt_u32 s2, {lo}
            s_cbranch_scc1 L_end
            s_cmp_ge_u32 s2, {hi}
            s_cbranch_scc1 L_end
            s_and_b32 s6, s2, {self.o.get("echo_m", 0)}
            s_cmp_lg_u32 s6, {self.o.get("echo_v", 0)}
            s_cbranch_scc1 L_end
            s_memrealtime s[4:5]
            s_waitcnt lgkmcnt(0)
            s_sub_u32 s6, {sr(y)}, {sr(x)}
            s_mul_i32 s6, s6, {self.o.get("echo_mul", 1)}
            s_lshr_b32 s6, s6, {self.o.get("echo_shr", 0)}
            s_add_u32 s6, s6, {self.o.get("echo_add", 0)}
            s_add_u32 s6, s6, s4""")
            a.label("L_echo")
            a("s_memrealtime s[4:5]\ns_waitcnt lgkmcnt(0)\ns_sub_u32 s7, s6, s4\ns_cmp_gt_i32 s7, 0\ns_cbranch_scc1 L_echo")
            return
        if self.o.get("dbgst"):
            a("s_waitcnt vmcnt(0)")
            self.stamp("done")
            a("s_waitcnt lgkmcnt(0)\ns_mov_b64 exec, 1")
            slots = [1, 2, 3, 4, 5, 6, 7, 9, 11, 12, 13, 14, 15]
            a(f"s_not_b32 {sr(S_T)}, {sr(S_ST)}\nv_mov_b32 v16, {sr(S_T)}\nv_mov_b32 v17, 4\nbuffer_atomic_umax v16, v17, {sr(S_DB,4)}, 0 offen sc1")
            for i in range(min(self.nst, 12)):
                a(f"v_mov_b32 v{18+2*i}, {sr(S_ST+2*i)}\nv_mov_b32 v{19+2*i}, {4*slots[i+1]}\nbuffer_atomic_umax v{18+2*i}, v{19+2*i}, {sr(S_DB,4)}, 0 offen sc1")
            return
        if not self.o.get("stamps"): return
        T = S_T
        a(f"""s_waitcnt lgkmcnt(0)
        s_lshl_b32 {sr(T)}, s2, 2
        s_add_u32 {sr(T)}, {sr(T)}, {sr(S_W)}
        s_lshl_b32 {sr(T)}, {sr(T)}, 7
        s_add_u32 {sr(T)}, {sr(T)}, {WS_DBG}
        v_mov_b32 v1, 0""")
        for i in range(26): a(f"v_mov_b32 {vr(16+i)}, {sr(S_ST+i)}")
        for i in range(7): a(f"buffer_store_dwordx4 {vr(16+4*i,4)}, v1, {sr(S_WS,4)}, {sr(T)} offen offset:{16*i}")

    def build(self):
        a = self.a
        self.stnames = []
        a.raw(f"; @launch grid=({NWG},1,1) block=(256,1,1) lds={LDS_TOTAL}")
        a.raw('.amdgcn_target "amdgcn-amd-amdhsa--gfx950"')
        a.raw(".text")
        a.raw(f".globl {NAME}")
        a.raw(".p2align 12")
        self.entry()
        self.phase_a()
        self.rest()
        a.label("L_fin")
        self.dump_stamps()
        a.label("L_end")
        a("s_endpgm")
        self.poll2()
        if not self.o.get("touch", 1): self.rare()
        a.label("L_dummy")
        self.fallback()
        self.wfuse()
        a.raw('.section .rodata,"a"')
        a.raw(".p2align 6")
        a.raw(kernel_desc(NAME, 512, 102, 256))
        return a.text()

    def S(self, buf, qb, i=0): return V_S + buf * 32 + qb * 8 + i
    def P(self, buf, qb, i=0): return V_P + buf * 16 + qb * 4 + i

    def k_reads(self, slot, V_K=V_K):
        ka, so = (V_KA, slot * SLOT) if slot < 2 else (V_HI, (slot - 2) * SLOT)
        out = [f"ds_read_b128 {vr(V_K+8*s+4*kb,4)}, {vr(ka)} offset:{so + 2048*s + 256*kb}" for s in range(4) for kb in range(2)]
        out += [f"ds_read_b64 {vr(V_K+32+2*kb,2)}, {vr(ka+1)} offset:{so + 8192 + 512*kb}" for kb in range(2)]
        return out

    def v_reads(self, slot, dst=V_V):
        (va, vr_, vb), so = ((V_VA, V_VR, V_VB), slot * SLOT) if slot < 2 else ((V_HI + 2, V_HI + 4, V_HI + 5), (slot - 2) * SLOT)
        out = []
        for T in range(9):
            for u in range(2):
                if T < 8: out.append(f"ds_read_b64_tr_b16 {vr(dst+4*T+2*u,2)}, {vr((va if T < 4 else vb)+(T&1))} offset:{so + 2048*((T>>1)&1) + 256*u}")
                else: out.append(f"ds_read_b64_tr_b16 {vr(dst+4*T+2*u,2)}, {vr(vr_)} offset:{so + 8192 + 512*u}")
        return out

    def qk_mfmas(self, buf, czero=False):
        out = []
        for s in range(5):
            for kb in range(2):
                for qb in range(4):
                    d = vr(self.S(buf, qb, 4 * kb), 4)
                    c = ("0" if czero else vr(V_CI + 4 * qb, 4)) if s == 0 else d
                    if s < 4: out.append(f"v_mfma_f32_16x16x32_bf16 {d}, {vr(V_K+8*s+4*kb,4)}, {ar(A_Q+18*qb+4*s,4)}, {c}")
                    else: out.append(f"v_mfma_f32_16x16x16_bf16 {d}, {vr(V_K+32+2*kb,2)}, {ar(A_Q+18*qb+16,2)}, {c}")
        return out

    def pv_mfmas(self, buf, czero=False):
        out = []
        for T in range(9):
            for qb in range(4):
                o = ar(A_O + 36 * qb + 4 * T, 4)
                out.append(f"v_mfma_f32_16x16x32_bf16 {o}, {vr(V_V+4*T,4)}, {vr(self.P(buf,qb),4)}, {'0' if czero else o}")
        return out

    def plan(self):
        o = self.o
        n = 76
        fixed = [None] * n
        for i, g in enumerate(range(1, 36, 2)): fixed[g] = ("V", i)
        for i, g in enumerate([41, 44, 47, 50, 53, 56, 59, 62, 65, 68]): fixed[g] = ("K", i)
        for i, g in enumerate([42, 46, 49, 52, 55, 58, 61, 64, 67]): fixed[g] = ("D", i)
        exps = [(qb, j) for qb in range(4) for j in range(8)]
        start = 40
        order = [(start + k) % n for k in range(n)]
        free_idx = [k for k, g in enumerate(order) if fixed[g] is None]
        nsm = len(free_idx) - 32
        cand = free_idx[6:-2]
        sm_set = set(free_idx[-2:]) | {cand[int((i + 0.5) * len(cand) / (nsm - 2))] for i in range(nsm - 2)}
        nds = sum(1 for f in fixed if f is not None and f[0] != "D")
        ls = o.get("lsum", "add")
        over = max(0, (48 if ls == "add" else 32) - nds - 2 * nsm)
        ocand = [k for k, g in enumerate(order) if k >= 20 and (fixed[g] is None or fixed[g][0] != "D")]
        o_set = {ocand[int((i + 0.5) * len(ocand) / over)] for i in range(over)}
        later = []
        gaps = [[] for _ in range(n)]
        small, pend, ei = [], [], 0
        for k, g in enumerate(order):
            new = (start + k) < n
            small.extend(pend); pend = later; later = []
            small.sort(key=lambda t: 0 if t[0] == "c" else 1)
            f = fixed[g]
            want = 0
            if f is not None:
                gaps[g].append((f[0], f[1], None))
                if f[0] == "D": continue
                want = 1
            elif k in sm_set: want = 2
            else:
                qb, j = exps[ei]; ei += 1
                gaps[g].append(("E", ("e", qb, j), new))
                if j & 1: pend.append(("c", qb, j // 2))
                if ls == "add": pend.append(("a", qb, j))
                elif j & 1 and ls == "pk": pend.append(("p", qb, j // 2))
            if k in o_set: want += 1
            if k == n - 1: want = 99
            for _ in range(want):
                if small:
                    it = small.pop(0)
                    gaps[g].append(("E", it, new))
                    if it[0] == "c" and ls == "dot": (small if k == n - 1 else pend).append(("d", it[1], it[2]))
        assert not small and not pend and ei == 32
        self.gaps = gaps

    def pack(self, mf, items):
        a = self.a
        where, order, done, nvm, mpos = {}, [], 0, 0, []
        isds = lambda it: "ds_" in it["t"]
        self.over = 0
        for g, m in enumerate(mf):
            assert not any(it.get("need", 999) <= g and i not in where for i, it in enumerate(items)), g
            idx = [k for k, n_ in enumerate(order) if n_ <= g]
            if idx and max(idx) + 1 > done:
                a(f"s_waitcnt lgkmcnt({min(15, len(order) - 1 - max(idx))})"); done = max(idx) + 1
            if m.startswith("@W"):
                w_, m = m.split("\n", 1)
                a(f"s_waitcnt lgkmcnt({min(15, int(w_[2:]) + len(order))})")
            a(m)
            mpos.append(len(a.lines))
            cap, pick = 8, []
            for phase in (0, 1):
                for i, it in enumerate(items):
                    if i in where or it.get("lo", 0) > g: continue
                    if "am" in it and (it["am"] >= g or len(a.lines) - mpos[it["am"]] < 8): continue
                    d = it.get("dep")
                    if d is not None and not all(where.get(x, 999) < g for x in d): continue
                    if (phase == 0 and it.get("hi", 999) <= g) or (phase == 1 and it["c"] <= cap):
                        if it["t"].startswith("buffer") and pick and any(items[x]["c"] for x in pick) and phase == 1: continue
                        if isds(it) and sum(isds(items[x]) for x in pick) >= it.get("nds", 1) and phase == 1: continue
                        pick.append(i); where[i] = g; cap -= it["c"]
            key = lambda i: 0 if items[i]["c"] == 0 else 1 if isds(items[i]) else 2 if items[i]["t"].startswith("buffer") else 3
            for i in sorted(pick, key=key):
                a(items[i]["t"].replace("@VM", f"s_waitcnt vmcnt({nvm})"))
                nvm += items[i]["t"].startswith("buffer")
                if isds(items[i]): order.append(items[i].get("need", 999))
            self.over += max(0, -cap)
        return [it["t"] for i, it in enumerate(items) if i not in where]

    def e_items(self, buf, lst, lo, hi):
        items, idx = [], {}
        for it in lst:
            kind, qb, j = it
            d = dict(t=self.etext(buf, it), c=8 if kind == "e" else 4)
            if kind == "e": d["lo"] = lo(qb, j); d["hi"] = hi(qb) - 2 - (7 - j)
            else:
                need = [("e", qb, j)] if kind == "a" else [("c", qb, j)] if kind == "d" else [("e", qb, 2 * j), ("e", qb, 2 * j + 1)]
                d["dep"] = [idx[x] for x in need if x in idx]
                if kind == "c": d["hi"] = hi(qb) - (3 - j) // 2
            idx[it] = len(items); items.append(d)
        return items

    def etext(self, buf, it):
        kind, qb, j = it
        s = self.S(buf, qb)
        if kind == "e": return f"v_exp_f32 {vr(s+j)}, {vr(s+j)}"
        if kind == "d": return f"v_dot2_f32_bf16 {vr(V_L+qb)}, {vr(self.P(buf, qb, j))}, v227, {vr(V_L+qb)}"
        if kind == "p": return f"v_pk_add_f32 {vr(208+2*qb,2)}, {vr(208+2*qb,2)}, {vr(s+2*j,2)}"
        if kind == "a": return f"v_add_f32 {vr(V_L+qb)}, {vr(V_L+qb)}, {vr(s+j)}"
        return f"v_cvt_pk_bf16_f32 {vr(self.P(buf, qb, j))}, {vr(s+2*j)}, {vr(s+2*j+1)}"

    def period(self, p, qk=True, pv=True, e_old=True, e_new=True, kread=True, vread=True, dma=True, extra={}, dsub=None, ksub=None, vm=9, halves=(0, 1), inc=None):
        a = self.a
        bn, bo = (p + 1) & 1, p & 1
        qk_, pv_ = self.qk_mfmas(bn), self.pv_mfmas(bo, czero=(p == 0))
        qo, po = self.o.get("qkord", 1), self.o.get("pvord", 0)
        if qo == 1: qk_ = [qk_[8 * s_ + 4 * kb + qb] for kb in range(2) for qb in range(4) for s_ in range(4)] + qk_[32:]
        if qo == 2: qk_ = [qk_[8 * s_ + 4 * kb + qb] for qb in range(4) for kb in range(2) for s_ in range(4)] + qk_[32:]
        if qo == 3: qk_ = [qk_[8 * s_ + 4 * kb + qb] for qb in range(4) for s_ in range(4) for kb in range(2)] + qk_[32:]
        if po == 1: pv_ = [pv_[4 * T_ + qb] for qb in range(4) for T_ in range(9)]
        mf = qk_ + pv_
        kr, vrd = self.k_reads((p + 2) % RING), self.v_reads(p % RING)
        slot = p % RING
        n = 76
        sc = [[] for _ in range(n)]
        dgs = [g for g in range(n) if any(e[0] == "D" for e in self.gaps[g])]
        if dma:
            for j, g in enumerate(dgs):
                if j % 4 == 0: sc[g - 1].append(f"s_add_u32 m0, {sr(S_LB)}, {slot*SLOT + 4096*(j//4)}")
            sc[dgs[-1] + 1].append(f"s_add_u32 {sr(S_TOFF)}, {sr(S_TOFF)}, {inc or 4*TILE}")
        w = []
        if kread: w.append(f"vmcnt({vm})")
        if pv: w.append("lgkmcnt(0)")
        if w: sc[39].append("s_waitcnt " + " ".join(w))
        if kread: sc[75].append("s_waitcnt lgkmcnt(0)")
        for half in halves:
            rng = range(0, 40) if half == 0 else range(40, 76)
            on = qk if half == 0 else pv
            if not on:
                ds, mem, val, post = [], [], [], []
                for g in rng:
                    for s_ in sc[g]:
                        (post if s_.startswith("s_waitcnt") else mem).append(s_)
                    if g in extra: mem.append(extra[g])
                    for kind, d, new in self.gaps[g]:
                        if kind == "V" and vread: ds.append(vrd[d])
                        elif kind == "K" and kread: ds.append(kr[d])
                        elif kind == "D" and dma: mem.append(f"buffer_load_dwordx4 {vr(V_DMA + d//4)}, {sr(S_XA,4)}, {sr(S_TOFF)} offen offset:{1024*(d%4)} lds")
                        elif kind == "E" and ((new and e_new) or (not new and e_old)): val.append((d, self.etext(bn if new else bo, d)))
                if half == 1: a("s_nop 3")
                seq, pend = [], list(val)
                while pend:
                    k = 0
                    if seq and seq[-1][0][0] == "e":
                        le = seq[-1][0]
                        dep = lambda it: it[0][1] == le[1] and ((it[0][0] == "a" and it[0][2] == le[2]) or (it[0][0] == "c" and it[0][2] == le[2] // 2))
                        have = {x[0] for x in seq}
                        ok = lambda it: it[0][0] == "e" or (("e", it[0][1], it[0][2]) in have if it[0][0] == "a" else (("e", it[0][1], 2*it[0][2]+1) in have)) or not any(x[0][0] == "e" and x[0][1] == it[0][1] and (x[0][2] == it[0][2] if it[0][0] == "a" else x[0][2] // 2 == it[0][2]) for x in pend)
                        while k < len(pend) and (dep(pend[k]) or not ok(pend[k])): k += 1
                        if k == len(pend): seq.append((("n", 0, 0), "s_nop 0")); k = 0
                    seq.append(pend.pop(k))
                step = max(1, len(seq) // (len(mem) + len(ds) + 1))
                allm = ds + mem
                for x in allm[:6]: a(x)
                allm = allm[6:]
                for i_, (d, t_) in enumerate(seq):
                    a(t_)
                    if allm and i_ % step == step - 1:
                        x = allm.pop(0); a(x)
                        if x.startswith("s_add_u32 m0"): a("s_nop 0")
                for x in allm:
                    a(x)
                    if x.startswith("s_add_u32 m0"): a("s_nop 0")
                for x in post: a(x)
                if half == 0: a("s_nop 1")
                continue
            for g in rng:
                a(mf[g])
                for s_ in sc[g]: a(s_)
                if g in extra: a(extra[g])
                for kind, d, new in self.gaps[g]:
                    if kind == "V":
                        if vread: a(vrd[d])
                    elif kind == "K":
                        if kread: a(kr[d])
                        elif ksub: a(ksub.pop(0))
                    elif kind == "D":
                        if dma: a(f"buffer_load_dwordx4 {vr(V_DMA + d//4)}, {sr(S_XA,4)}, {sr(S_TOFF)} offen offset:{1024*(d%4)} lds")
                        elif dsub: a(dsub.pop(0))
                    elif (new and e_new) or (not new and e_old):
                        a(self.etext(bn if new else bo, d))

    MK, VO, VO8, GA, VS0, VS0R, VDW, VLW, VL8, VST, VPL = 232, 236, 9, 238, 250, 251, 244, 245, 246, 247, 248
    NB, PT, E_U, E_G, RS3, E_COL, RS1, RS2, MP1 = 3, 4, 5, 6, 7, 43, 36, 37, 38
    G0, GM, GP, U, DWT = 16, 26, 36, 80, (90, 252, 96, 100, 112, 116, 104, 94)
    XRS = (192, 196, 46)
    frag = staticmethod(lambda f, b: [(f, b + 4 * s) for s in range(5)])
    WD = [[("a", 216 + 4 * s) for s in range(5)], [("a", 234 + 4 * s) for s in range(5)], [("v", 208 + 4 * s) for s in range(5)]]
    WO = [[("a", 4 * s) for s in range(5)], [("a", 18 + 4 * s) for s in range(5)], [("a", 36), ("a", 40), ("a", 44), ("a", 48), ("a", 252)]]
    X1B = 98304
    X2O = L_SP - X1B
    L_L = L_SP + 9216

    def epi_setup(self):
        a = self.a
        T = S_T
        NB, PT, VO, GA = self.NB, self.PT, self.VO, self.GA
        r, g4, x, y, big, r0 = 52, 53, 54, 55, 56, 57
        a(f"""s_lshr_b32 {sr(NB)}, {sr(S_W)}, 1
        s_and_b32 {sr(PT)}, {sr(S_W)}, 1
        v_and_b32 {vr(r0)}, 15, v0
        v_lshrrev_b32 {vr(g4)}, 4, v0
        v_mul_u32_u24 {vr(x)}, 288, {vr(r0)}
        v_mov_b32 {vr(big)}, 0x40000000
        s_lshl_b32 {sr(T)}, {sr(S_TOWN)}, 1
        s_add_u32 {sr(T)}, {sr(T)}, {sr(NB)}
        s_lshl_b32 {sr(T)}, {sr(T)}, 4
        v_add_u32 {vr(r)}, {sr(T)}, {vr(r0)}
        s_mul_i32 {sr(T+1)}, {sr(S_TOWN)}, {TILE}
        s_mul_i32 {sr(T+2)}, {sr(PT)}, {BLK}
        v_add_u32 {vr(x)}, {sr(T+1)}, {vr(x)}
        s_sub_u32 {sr(T+3)}, {BLK}, {sr(T+2)}
        v_add_u32 {vr(y)}, {sr(T+3)}, {vr(x)}
        v_add_u32 {vr(x)}, {sr(T+2)}, {vr(x)}
        v_lshl_add_u32 {vr(VO)}, {vr(g4)}, 4, {vr(x)}
        v_lshl_add_u32 {vr(VO+1)}, {vr(g4)}, 4, {vr(y)}
        v_lshl_add_u32 {vr(self.VO8)}, {vr(g4)}, 3, {vr(x)}
        s_lshl_b32 {sr(T+3)}, {sr(PT)}, 11
        s_add_u32 {sr(self.E_U)}, {sr(T+3)}, {WS_U}
        s_add_u32 {sr(self.E_G)}, {sr(T+3)}, {WS_G}
        s_sub_u32 {sr(T+3)}, 4096, {sr(T+3)}
        s_lshl_b32 {sr(T)}, {sr(PT)}, 11
        s_add_u32 {sr(T)}, {sr(T)}, {WS_DWF}
        v_lshrrev_b32 {vr(x)}, 2, {vr(r0)}
        v_cmp_eq_u32 vcc, {vr(x)}, {vr(g4)}
        v_lshl_add_u32 {vr(self.VDW)}, {vr(r0)}, 4, {sr(T)}
        s_nop 0
        v_cndmask_b32 {vr(self.VDW)}, {vr(big)}, {vr(self.VDW)}, vcc
        s_lshl_b32 {sr(self.E_COL)}, {sr(S_W)}, 6
        v_lshlrev_b32 {vr(self.VL8)}, 3, v0
        v_add_u32 {vr(self.VL8)}, 4096, {vr(self.VL8)}
        v_add_u32 {vr(self.VST)}, {sr(S_LB)}, {vr(V_DMA)}
        v_add_u32 {vr(self.VST)}, {2*SLOT}, {vr(self.VST)}
        s_xor_b32 {sr(T)}, {sr(NB)}, 1
        v_xor_b32 {vr(x)}, {sr(T)}, {vr(g4)}
        v_lshl_add_u32 {vr(x)}, {vr(x)}, 4, {vr(r0)}
        s_lshl_b32 {sr(T)}, {sr(S_W)}, 2
        s_add_u32 {sr(T)}, {sr(T)}, {self.L_L}
        v_lshl_add_u32 {vr(self.VLW)}, {vr(x)}, 4, {sr(T)}
        s_sub_u32 {sr(self.MP1)}, 0, {sr(PT)}
        s_mov_b32 {sr(self.MP1+1)}, {sr(self.MP1)}""")
        for k, (d, base) in enumerate(((self.RS1, 3 * SLOT), (self.RS2, 2 * SLOT), (self.RS3, 2 * SLOT))):
            a(f"s_xor_b32 {sr(T)}, {sr(S_W)}, {k+1}\ns_mul_i32 {sr(T)}, {sr(T)}, {TILE}\ns_add_u32 {sr(d)}, {sr(T)}, {base}")
        a(f"""s_mul_i32 {sr(T)}, {sr(S_B)}, 4000
        s_add_u32 {sr(T+1)}, {sr(T)}, 3999
        s_mov_b32 {sr(T+2)}, {BLK}""")
        for k, dr in enumerate((0, -1, 1)):
            m = GA + 2 * k
            if dr: a(f"v_add_u32 {vr(m)}, {dr}, {vr(r)}\nv_cmp_eq_u32 vcc, {sr(T if dr < 0 else T+1)}, {vr(r)}")
            src = m if dr else r
            a(f"""v_lshrrev_b32 {vr(x)}, 4, {vr(src)}
            v_and_b32 {vr(y)}, 15, {vr(src)}
            v_mul_lo_u32 {vr(x)}, {vr(x)}, {sr(T+2)}
            v_lshl_add_u32 {vr(y)}, {vr(g4)}, 4, {vr(y)}
            v_lshl_add_u32 {vr(m)}, {vr(y)}, 4, {vr(x)}
            v_lshl_add_u32 {vr(m+1)}, {vr(y)}, 3, {vr(x)}
            v_add_u32 {vr(m+1)}, {sr(T+3)}, {vr(m+1)}""")
            if dr: a(f"v_cndmask_b32 {vr(m)}, {vr(m)}, {vr(big)}, vcc\nv_cndmask_b32 {vr(m+1)}, {vr(m+1)}, {vr(big)}, vcc")

    def conv_loads(self):
        GA = self.GA
        L = []
        for dst, m, so in ((self.GM, GA + 2, 1), (self.G0, GA, 1), (self.GP, GA + 4, 1), (self.U, GA, 0)):
            for k in range(2): L.append(f"buffer_load_dwordx4 {vr(dst+4*k,4)}, {vr(m)}, {sr(S_WS,4)}, {sr(self.E_U+so)} offen offset:{1024*k}")
            L.append(f"buffer_load_dwordx2 {vr(dst+8,2)}, {vr(m+1)}, {sr(S_WS,4)}, {sr(self.E_U+so)} offen")
        return L

    def rg(self, e, n): return (ar if e[0] == "a" else vr)(e[1], n)

    def w8_loads(self, regs, so):
        return [f"buffer_load_dwordx4 {self.rg(regs[s],4)}, {vr(V_DMA)}, {sr(S_WS,4)}, {sr(so)} offen offset:{1024*s}" for s in range(4)] + \
               [f"buffer_load_dwordx2 {self.rg(regs[4],2)}, {vr(self.VL8)}, {sr(S_WS,4)}, {sr(so)} offen"]

    def w_reads(self, regs, off):
        L = []
        for tt in range(2):
            L += [f"ds_read_b128 {self.rg(regs[tt][s],4)}, {vr(self.VS0)} offset:{off + BLK*tt + 1024*s}" for s in range(4)]
            L.append(f"ds_read_b64 {self.rg(regs[tt][4],2)}, {vr(self.VS0R)} offset:{off + BLK*tt}")
        return L

    def xa_srd(self):
        T = S_T
        return f"""s_mul_i32 {sr(T)}, {sr(S_B)}, {NT}
        s_mul_i32 {sr(T+1)}, {sr(S_H)}, 63
        s_add_u32 {sr(T+1)}, {sr(T+1)}, {sr(T)}
        s_mul_i32 {sr(T+1)}, {sr(T+1)}, {TILE}
        s_add_u32 {sr(S_XA)}, {sr(S_WS)}, {sr(T+1)}
        s_addc_u32 {sr(S_XA+1)}, {sr(S_WS+1)}, 0
        s_sub_u32 {sr(T+2)}, 63, {sr(S_H)}
        s_mul_i32 {sr(S_XA+2)}, {sr(T+2)}, {TILE}
        s_mov_b32 {sr(S_XA+3)}, 0x20000"""

    def rest(self):
        a, o = self.a, self.o
        T = S_T
        VPL = self.VPL
        self.plan()
        self.head()
        self.stamp("loop")
        if o.get("sktest") or o.get("echo") and o["echo"][0] == "skew":
            a(f"s_waitcnt lgkmcnt(0)\ns_mov_b64 exec, 1\ns_not_b32 s98, {sr(S_ST)}\nv_mov_b32 v226, s98\nv_mov_b32 v227, 4\ns_cmp_lg_u32 {sr(S_W)}, 0\ns_cbranch_scc1 L_sk\nbuffer_atomic_umax v226, v227, {sr(S_DB,4)}, 0 offen sc1\ns_waitcnt vmcnt(0)\nL_sk:\ns_mov_b64 exec, -1\ns_nop 3")
            self.stamp("sk")
        nh = o.get("ugh", 2)
        ex = {2 + 12 * k: x for k, x in enumerate(self.ugs[nh:])}
        ugl = o.get("ugl", 1)
        if ugl: self.period(0, extra={69: self.ugs[0]})
        else: self.period(0, vm=9 + 5, extra=ex)
        self.stamp("l0")
        a.raw(".p2align 6")
        a.label("L_loop")
        self.stamp("q1")
        for p in range(1, 5):
            ex = {}
            vm = 9
            if p == 1: ex = {73: f"s_cmp_eq_u32 {sr(S_CNT)}, 3"}
            if p == 2: ex = {70: f"buffer_load_dword v252, {vr(VPL)}, {sr(S_WS,4)}, 0 offen sc1"}
            if p == 3:
                ex = {73: f"s_cmp_eq_u32 {sr(S_CNT)}, 2", 45: f"ds_add_rtn_u32 v230, v231, {vr(VPL+1)}"}
            if p == 4:
                self.stamp("la0")
                a(f"s_cbranch_scc1 L_last")
                a.label("L_lastb")
                self.stamp("la1")
                ex = {72: f"s_add_u32 {sr(S_CNT)}, {sr(S_CNT)}, 1", 1: f"v_readfirstlane_b32 {sr(T)}, v230", 3: f"s_cmp_eq_u32 {sr(T)}, 3",
                      4: f"s_cselect_b32 {sr(T)}, {sr(S_FB)}, 2.0", 6: f"buffer_store_dword v226, v231, {sr(S_WS,4)}, {sr(T)} offen sc1"}
            if ugl:
                ex[69] = self.ugs[p]
                if p == 4: ex.update({71: f"s_mov_b32 {sr(S_UG)}, 2.0", 2: f"s_lshl2_add_u32 {sr(T)}, {sr(S_CNT)}, {sr(T)}", 3: f"s_cmp_eq_u32 {sr(T)}, 7"})
                if p == 3: ex.update({43: f"s_and_b32 {sr(T)}, {sr(S_CNT)}, 1", 44: f"v_mov_b32 {vr(VPL+1)}, {sr(T)}", 48: ex.pop(45)})
            for k_ in range(o.get("pad", 0)): ex[10 + 7 * k_] = ex.get(10 + 7 * k_, "s_nop 0") + "\ns_nop 7"
            self.period(p, extra=ex, inc=sr(S_INC) if p == 4 else None)
            if p == 1: a("s_cbranch_scc1 L_p14")
        a("s_branch L_loop")
        a.label("L_p14")
        SW = 66
        self.stamp("p14")
        a(f"s_cmp_eq_u32 {sr(S_DUM)}, 4\ns_cbranch_scc0 L_dummyb")
        for i in range(16): a(f"v_mov_b32 {vr(V_CI+i)}, 0xff800000")
        a("s_nop 1")
        a.label("L_dummyb")
        ex = dict(zip([2, 6, 8, 12, 14, 18, 20, 24, 26, 30], self.w_reads(self.WD, 0)))
        ex[0] = "s_waitcnt vmcnt(9)"
        ex.update(dict(zip([4, 10, 16, 22, 28], self.w8_loads(self.WD[2], SW))))
        self.period(14, dma=False, kread=False, extra=ex, halves=(0,))
        self.stamp("tail")
        self.tail(SW)
        self.stamp("end")
        self.epilogue(SW)

    def rare(self):
        a = self.a
        T = S_T
        SW = 66
        a.label("L_last")
        a(f"s_waitcnt vmcnt(9)\ns_mov_b32 {sr(T+2)}, 0")
        a.label("L_late")
        a(f"""v_cmp_ne_u32 vcc, {sr(S_N)}, v252
        s_add_u32 {sr(S_XA)}, {sr(S_WS)}, {WS_WF}
        s_addc_u32 {sr(S_XA+1)}, {sr(S_WS+1)}, 0
        s_mov_b32 {sr(S_XA+2)}, {18*BLK}
        s_add_u32 {sr(S_TOFF)}, {sr(S_LB)}, {9*BLK}
        s_mov_b32 {sr(S_INC)}, {-9*BLK}
        s_lshr_b32 {sr(SW)}, {sr(S_W)}, 1
        s_lshl_b32 {sr(SW)}, {sr(SW)}, 30
        s_add_u32 {sr(SW+1)}, {sr(SW)}, {WS_WF + 8*BLK}
        s_add_u32 {sr(SW)}, {sr(SW)}, {WS_WF + 17*BLK}
        s_and_b32 {sr(T)}, vcc_lo, 31
        s_cbranch_scc0 L_lastb
        buffer_load_dword v252, {vr(self.VPL)}, {sr(S_WS,4)}, 0 offen sc1
        s_add_u32 {sr(T+2)}, {sr(T+2)}, 1
        s_waitcnt vmcnt(0)
        s_cmp_lt_u32 {sr(T+2)}, 0x40000
        s_cbranch_scc1 L_late
        s_branch L_lastb""")

    units = [(0, 0), (0, 1), (1, 0), (1, 1), (2, 0)]
    V15 = V_K

    def stage(self, slot, T):
        src = ar(A_O + 36 * slot + 4 * T, 4)
        if slot == 0: return f"ds_write_b128 {vr(self.VST)}, {src} offset:{1024*T}"
        if slot == 2: return f"ds_write_b128 {vr(self.VS0)}, {src} offset:{1024*T}"
        if T < 4: return f"ds_write_b128 {vr(self.VST)}, {src} offset:{SLOT + 1024*T + (4096 if slot == 3 else 0)}"
        return f"{'s_not_b64' if slot == 1 else 's_mov_b64'} exec, {sr(self.MP1,2)}\nds_write_b128 {vr(self.VST)}, {src} offset:{SLOT + 8192}\ns_mov_b64 exec, -1"

    def dwf(self, k, i):
        f = 5 * k + i
        return self.DWT[f >> 1] + 2 * (f & 1)

    def tail(self, SW):
        a, o = self.a, self.o
        mf, pos, start = [], {}, {}
        for t_, qb in ((14, 0), (14, 1), (15, 0), (15, 1), (14, 2), (15, 2), (14, 3), (15, 3)):
            start[t_, qb] = len(mf)
            for Tt in ([0, 1, 2, 3, 8, 4, 5, 6, 7] if qb & 1 else range(9)):
                o_ = ar(A_O + 36 * qb + 4 * Tt, 4)
                pos[t_, qb, Tt] = len(mf)
                mf.append(f"v_mfma_f32_16x16x32_bf16 {o_}, {vr((V_V if t_ == 14 else self.V15)+4*Tt,4)}, {vr(self.P(t_ & 1,qb),4)}, {o_}")
        lst = []
        for qb in range(4):
            for j in range(8):
                lst.append(("e", qb, j))
                if j & 1: lst.append(("c", qb, j // 2))
        lst += [("a", qb, j) for qb in range(4) for j in range(8)]
        items = self.e_items(1, lst, lambda qb, j: 0 if j < 4 else 1, lambda qb: start[15, qb] - 2)
        for it in items[48:]: it["lo"] = o.get("alo", 26)
        v15 = [dict(t=x, c=4, need=pos[15, 0, i // 2], hi=pos[15, 0, i // 2] - o.get("vlead", 7), lo=0 if i < 16 else 2) for i, x in enumerate(self.v_reads(3, self.V15))]
        wr = []
        nown = o.get("nown", 4)
        self.own = [(2, T_) for T_ in range(nown, 9)] + [(3, T_) for T_ in (0, 1, 2, 3, 8)]
        g = o.get("w0", 23)
        for k, (sl, Tt) in enumerate([(0, T_) for T_ in range(9)] + [(1, T_) for T_ in (0, 1, 2, 3, 8)] + [(2, T_) for T_ in range(nown)]):
            g = max(pos[15, sl, Tt] + 5, g)
            wr.append(dict(t=self.stage(sl, Tt), c=o.get("wc", 20), lo=int(g), hi=int(g)) if g < 72 else dict(t=self.stage(sl, Tt), c=4, lo=999))
            g += o.get("wsp", 2.7)
        n0 = len(items) + len(v15)
        wo = []
        for i, x in enumerate(self.w_reads(self.WO, SLOT)):
            r0 = self.WO[i // 5][i % 5][1]
            wo.append(dict(t=("@VM\n" if i == 0 else "") + x, c=4, dep=sorted({n0 + r0 // 4, n0 + (r0 + 3) // 4 if (r0 + 3) // 4 < 9 else n0 + 8}), lo=o.get("wo0", 40) + 3 * i, hi=o.get("wo0", 40) + 3 * i + 2))
        cl = self.conv_loads()
        dl = [f"buffer_load_dwordx4 {vr(self.DWT[r],4)}, {vr(self.VDW)}, {sr(S_WS,4)}, 0 offen offset:{256*r}" for r in range(7)]
        dl.append(f"buffer_load_dwordx2 {vr(self.DWT[7],2)}, {vr(self.VDW)}, {sr(S_WS,4)}, 0 offen offset:{256*7}")
        fr = {96: 9, 100: 18, 104: 45, 112: 27, 116: 36}
        vm = [(x, 0) for x in cl] + [(x, fr.get(self.DWT[r], 0)) for r, x in enumerate(dl)]
        used = {w["lo"] for w in wr}
        vi, g = [], o.get("m0", 24)
        for x, lo in vm:
            g = max(g, lo)
            while int(g) in used: g += 1
            vi.append(dict(t=x, c=8, lo=int(g), hi=int(g)) if g < 72 else dict(t=x, c=8, lo=999))
            g += o.get("msp", 2.2)
        left = self.pack(mf, items + v15 + wr + wo + vi)
        self.done_a = {(qb, j) for qb in range(4) for j in range(8) if self.etext(1, ("a", qb, j)) not in left}
        left = [x for x in left if not x.startswith("v_add_f32")]
        print("tail overflow", self.over, "left", len(left), "adds done", len(self.done_a))
        self.left = left

    def epilogue(self, SW):
        a, o = self.a, self.o
        T = S_T
        p = lambda r: vr(r, 2)
        NB, PT, MK, VO, units, MP1 = self.NB, self.PT, self.MK, self.VO, self.units, self.MP1
        U, GM, G0, GP = self.U, self.GM, self.G0, self.GP
        X2O = self.X2O
        R1, R2, R3 = 230, 231, 249
        LA, LS, M = 10, 226, 48

        def weave(main, fill, per):
            fill = list(fill)
            for x in main:
                a(x)
                for _ in range(per):
                    if fill: a(fill.pop(0))
            return fill
        for x in self.left:
            if not x.startswith("buffer"): a(x)
        lv = [x for x in self.left if x.startswith("buffer")]
        lv += [f"buffer_load_dwordx4 {vr(self.XRS[j],4)}, {vr(VO+j)}, {sr(S_X,4)}, {sr(self.E_COL)} offen" for j in range(2)]
        lv.append(f"buffer_load_dwordx2 {vr(self.XRS[2],2)}, {vr(self.VO8)}, {sr(S_X,4)}, 0 offen offset:256")
        S1 = lambda qb, j: self.S(1, qb, j)
        rounds = [[] for _ in range(6)]
        for qb in range(4):
            rem = [j for j in range(8) if (qb, j) not in self.done_a]
            prs = [j for j in rem if j % 2 == 0 and j + 1 in rem]
            sing = [j for j in rem if (j & ~1) not in prs]
            r_ = 0
            while len(prs) > 1:
                for x, y in zip(prs[0::2], prs[1::2]): rounds[r_].append(f"v_pk_add_f32 {p(S1(qb,x))}, {p(S1(qb,x))}, {p(S1(qb,y))}")
                prs = prs[0::2]; r_ += 1
            for k_, j in enumerate(sing + ([prs[0], prs[0] + 1] if prs else [])): rounds[min(5, max(r_, 2) + k_)].append(f"v_add_f32 {vr(V_L+qb)}, {vr(V_L+qb)}, {vr(S1(qb,j))}")
        for r_ in rounds:
            for x in r_: a(x)
        a(f"v_add_u32 {vr(R1)}, {sr(self.RS1)}, {vr(V_DMA)}\nv_add_u32 {vr(R2)}, {sr(self.RS2)}, {vr(V_DMA)}")
        self.treduce(V_L)
        a(f"ds_write_b32 {vr(self.VLW)}, {vr(V_L)}")
        acc = lambda slot: [f"v_accvgpr_read_b32 {vr(M+i)}, {ar(A_O+36*slot+16+i)}" for i in range(20)]
        a(f"""v_add_u32 {vr(R3)}, {sr(self.RS3)}, {vr(V_DMA)}
        v_add_u32 {vr(LA+1)}, {self.L_L}, {vr(V_DMA)}
        v_and_b32 {vr(LS+1)}, 0xf0, {vr(V_DMA)}
        s_lshl_b32 {sr(T)}, {sr(NB)}, 8
        s_add_u32 {sr(T+8)}, {sr(T)}, {self.L_L}
        v_add_u32 {vr(LS)}, {sr(T+8)}, {vr(LS+1)}""")
        for x in lv: a(x)
        a(f"""s_xor_b32 {sr(T)}, s2, 1
        s_mul_i32 {sr(T)}, {sr(T)}, {IB}
        s_mul_i32 {sr(T+9)}, {sr(NB)}, 5120
        s_add_u32 {sr(T+9)}, {sr(T+9)}, {WS_IB}
        s_add_u32 {sr(T)}, {sr(T)}, {sr(T+9)}
        s_lshl_b32 {sr(T+10)}, {sr(PT)}, 11
        s_add_u32 {sr(T+1)}, {sr(T+10)}, {sr(T)}
        s_add_u32 {sr(T)}, {sr(T)}, 4096
        s_cmp_eq_u32 {sr(PT)}, 0
        s_cselect_b32 {sr(T)}, 0x40000000, {sr(T)}
        s_mov_b32 {sr(T+2)}, {f32(2.0**100)}
        s_mul_i32 {sr(T+12)}, s2, {IB}
        s_add_u32 {sr(T+12)}, {sr(T+12)}, {sr(T+9)}
        s_add_u32 {sr(T+13)}, {sr(T+12)}, {sr(T+10)}
        s_waitcnt lgkmcnt(0)
        s_barrier""")
        self.stamp("B1")

        def rd(X, offs):
            L = [[f"ds_read_b128 {vr(X[k][i],4)}, {vr((R1, R2, R3)[k])} offset:{offs[k] + 1024*i}" for i in range(4)] for k in range(3)]
            L8 = [f"ds_read_b128 {vr(X[k][4],4)}, {vr((R1, R2, R3)[k])} offset:8192" for k in range(3)]
            return L, L8

        def adds(X, k, rng):
            return [f"v_pk_add_f32 {p(M+4*i+2*h)}, {p(M+4*i+2*h)}, {p(X[k][i]+2*h)}" for i in rng for h in range(2)]
        X = [[128, 132, 136, 140, 144], [148, 152, 156, 160, 68], [72, 76, 200, 204, 108]]
        PK = 128
        L, L8 = rd(X, (0, 4096, 0))
        a(f"ds_read_b128 {vr(LA,4)}, {vr(LA+1)}\nds_read_b128 {vr(LS,4)}, {vr(LS)}")
        rest = weave(L[0] + L[1] + L[2], acc(1), 2)
        assert not rest
        a(f"s_mov_b64 exec, {sr(MP1,2)}")
        for x in L8: a(x)
        a(f"""s_mov_b64 exec, -1
        s_waitcnt lgkmcnt(11)
        v_add_f32 {vr(LA)}, {vr(LA)}, {vr(LA+1)}
        v_add_f32 {vr(LA+2)}, {vr(LA+2)}, {vr(LA+3)}
        v_add_f32 {vr(LS)}, {vr(LS)}, {vr(LS+1)}
        v_add_f32 {vr(LA)}, {vr(LA)}, {vr(LA+2)}
        v_add_f32 {vr(LS+2)}, {vr(LS+2)}, {vr(LS+3)}
        v_cmp_nge_f32 vcc, {sr(T+2)}, {vr(LA)}""")
        for x in adds(X, 0, range(4)): a(x)
        a(f"""s_cmp_lg_u64 vcc, 0
        s_cselect_b32 {sr(T+2)}, 1, 0
        s_andn2_b32 {sr(T+2)}, {sr(T+2)}, {sr(S_REDO)}
        s_cbranch_scc1 L_fallback
        v_add_f32 {vr(PK+10)}, {vr(LS)}, {vr(LS+2)}
        v_mov_b32 {vr(PK+11)}, {vr(MK+1)}
        s_waitcnt lgkmcnt(7)""")
        for x in adds(X, 1, range(4)): a(x)
        a("s_waitcnt lgkmcnt(3)")
        a3 = adds(X, 2, range(4))
        cv = [f"v_cvt_pk_bf16_f32 {vr(PK+i)}, {vr(M+2*i)}, {vr(M+2*i+1)}" for i in range(10)]
        for x in a3[:4] + a3[4:6] + cv[:4]: a(x)
        a(f"buffer_store_dwordx4 {vr(PK,4)}, {vr(V_DMA)}, {sr(S_WS,4)}, {sr(T+1)} offen sc1")
        for x in a3[6:] + cv[4:8]: a(x)
        a(f"buffer_store_dwordx4 {vr(PK+4,4)}, {vr(V_DMA)}, {sr(S_WS,4)}, {sr(T+1)} offen offset:1024 sc1")
        a("s_waitcnt lgkmcnt(0)")
        for kk in range(3):
            for x in adds(X, kk, [4]): a(x)
        for x in cv[8:]: a(x)
        a(f"buffer_store_dwordx4 {vr(PK+8,4)}, {vr(V_DMA)}, {sr(S_WS,4)}, {sr(T)} offen sc1")
        self.stamp("sent")
        a(f"s_cmp_eq_u32 {sr(S_VAL)}, 0\ns_cbranch_scc1 L_fin")
        C, UP = 140, 68
        IN = [(200, 204, 226), (164, 168, 252), (192, 196, 172)]
        VXW, VXR, VF, LO = 78, 79, 10, 36
        wr = [self.stage(*e) for e in self.own]

        def inbox(k):
            return [f"buffer_load_dwordx4 {vr(IN[k][0],4)}, {vr(V_DMA)}, {sr(S_WS,4)}, {sr(T+13)} offen sc1",
                    f"buffer_load_dwordx4 {vr(IN[k][1],4)}, {vr(V_DMA)}, {sr(S_WS,4)}, {sr(T+13)} offen offset:1024 sc1",
                    f"buffer_load_dwordx4 {vr(IN[k][2],4)}, {vr(V_DMA+1)}, {sr(S_WS,4)}, {sr(T+12)} offen sc1"]
        for x in inbox(0): a(x)
        n0 = len(a.lines)
        a(f"""s_lshl_b32 {sr(T)}, {sr(NB)}, 12
        s_add_u32 {sr(T)}, {sr(T)}, {sr(T+10)}
        s_add_u32 {sr(T)}, {sr(T)}, {self.X1B}
        v_add_u32 {vr(VXW)}, {sr(T)}, {vr(V_DMA)}
        s_lshl_b32 {sr(T)}, {sr(NB)}, 9
        s_add_u32 {sr(T)}, {sr(T)}, {self.X1B + 4096}
        v_add_u32 {vr(VXR)}, {sr(T)}, {vr(self.VL8)}
        s_lshl_b32 {sr(T)}, {sr(PT)}, 12
        s_add_u32 {sr(T)}, {sr(T)}, {self.X1B}
        v_add_u32 {vr(VF)}, {sr(T)}, {vr(V_DMA)}
        v_xor_b32 {vr(VF+1)}, 4096, {vr(VF)}
        s_lshl_b32 {sr(T)}, {sr(PT)}, 9
        s_add_u32 {sr(T)}, {sr(T)}, {self.X1B + 4096}
        v_add_u32 {vr(VF+2)}, {sr(T)}, {vr(self.VL8)}
        v_xor_b32 {vr(VF+3)}, 512, {vr(VF+2)}
        v_subrev_u32 {vr(R2)}, {2*SLOT}, {vr(R2)}
        v_subrev_u32 {vr(R3)}, {2*SLOT}, {vr(R3)}
        s_waitcnt vmcnt(9)""")
        self.stamp("cv0")
        un = [f"v_lshlrev_b32 {vr(M+2*i)}, 16, {vr(U+i)}\nv_and_b32 {vr(M+1+2*i)}, 0xffff0000, {vr(U+i)}" for i in range(10)]
        w8 = self.w8_loads(self.WO[2], SW + 1)
        for k, src in enumerate((GM, G0, GP)):
            for i in range(5):
                d = vr(C + 4 * i, 4)
                a(f"v_mfma_f32_16x16x16_bf16 {d}, {vr(self.dwf(k, i),2)}, {vr(src+2*i,2)}, {'0' if k == 0 else d}")
                a(w8.pop(0) if i in (0, 3) and w8 else un.pop(0))
        self.stamp("cv1")
        a(f"v_and_b32 {vr(LO+1)}, 0xf0, {vr(V_DMA)}\nv_add_u32 {vr(LO)}, {sr(T+8)}, {vr(LO+1)}\ns_nop 1")
        for i in range(10): a(f"v_pk_mul_f32 {p(C+2*i)}, {p(C+2*i)}, {p(M+2*i)}")
        for i in range(10):
            a(f"v_cvt_pk_bf16_f32 {vr(UP+i)}, {vr(C+2*i)}, {vr(C+2*i+1)}")
        body = a.lines[n0:]; del a.lines[n0:]
        step = max(1, len(body) // len(wr))
        for i, l in enumerate(body):
            if i % o.get("wstep", step) == 0 and wr: a(wr.pop(0))
            a.lines.append(l)
        for x in wr: a(x)
        ac = acc(3)
        a(f"ds_write_b128 {vr(VXW)}, {vr(UP,4)} offset:{X2O}")
        for x in ac[:6]: a(x)
        a(f"ds_write_b128 {vr(VXW)}, {vr(UP+4,4)} offset:{X2O + 1024}")
        for x in ac[6:12]: a(x)
        a(f"""s_mov_b64 exec, {sr(MP1,2)}
        ds_write_b64 {vr(VXR)}, {vr(UP+8,2)} offset:{X2O}
        s_mov_b64 exec, -1""")
        self.stamp("x2")
        for x in inbox(1): a(x)
        for x in ac[12:]: a(x)
        a("s_waitcnt lgkmcnt(0)\ns_barrier")
        self.stamp("B2")
        X = [[128, 132, 136, 140, 144], [148, 152, 156, 160, 188], [16, 20, 24, 28, 32]]
        L, L8 = rd(X, (4096, 4096, 0))
        BU = [[("v", r) for r in (100, 104, 108, 112, 116)], [("v", r) for r in (118, 122, 180, 184, 126)]]
        BO = [self.frag("v", 128), self.frag("v", 146)]
        AB = 80

        def bfrags(dst, off):
            out = []
            for s in range(5):
                for j in range(2):
                    out.append(f"ds_read_b128 {self.rg(dst[j][s],4)}, {vr(VF+j)} offset:{off + 1024*s}" if s < 4 else f"ds_read_b64 {self.rg(dst[j][4],2)}, {vr(VF+2+j)} offset:{off}")
            return out

        def fg(W, Bf):
            out = []
            for s in range(5):
                for u, (tt, j) in enumerate(units):
                    d = vr(AB + 4 * u, 4)
                    if s < 4: out.append(f"v_mfma_f32_16x16x32_bf16 {d}, {self.rg(W[tt][s],4)}, {self.rg(Bf[j][s],4)}, {d}")
                    else: out.append(f"v_mfma_f32_16x16x16_bf16 {d}, {self.rg(W[tt][4],2)}, {self.rg(Bf[j][4],2)}, {d}")
            return out
        xu = []
        for u, (tt, j) in enumerate(units):
            for h in range(2):
                x = self.XRS[j] + 2 * tt + h if tt < 2 else self.XRS[2] + h
                xu += [f"v_lshlrev_b32 {vr(AB+4*u+2*h)}, 16, {vr(x)}", f"v_and_b32 {vr(AB+1+4*u+2*h)}, 0xffff0000, {vr(x)}"]
        a("s_waitcnt vmcnt(14)")
        weave(bfrags(BU, X2O), xu, 2)
        pl = lambda k, i, e: f"v_add_f32 {vr(M+4*i+e)}, {vr(M+4*i+e)}, {vr(X[k][i]+e)}"
        ds = L[0] + L[1] + L[2] + [f"s_not_b64 exec, {sr(MP1,2)}\n" + "\n".join(L8) + "\ns_mov_b64 exec, -1", f"ds_read_b128 {vr(LO,4)}, {vr(LO)} offset:512"]
        nis = [1] * 12 + [3, 1]
        gap = [[] for _ in range(25)]
        tot = [10]
        for g in range(25): tot.append(tot[-1] + (nis[g] if g < 14 else 0))
        A0 = [pl(0, i, e) for i in range(4) for e in range(4)]
        A1 = [pl(1, i, e) for i in range(4) for e in range(4)]
        ib = inbox(2)
        for g, m in enumerate(fg(self.WD, BU)):
            if g % 5 == 0: a(f"s_waitcnt lgkmcnt({min(15, tot[g] - 2 * (g // 5 + 1))})")
            a(m)
            if g == 8: a(f"s_waitcnt lgkmcnt({tot[g] - 14})")
            if g == 16: a(f"s_waitcnt lgkmcnt({tot[g] - 18})")
            if g < 14: a(ds[g])
            if 8 <= g < 14: a(A0.pop(0))
            elif g in (14, 18, 22): a(ib.pop(0))
            elif g >= 14:
                for _ in range(2): a(A0.pop(0) if A0 else A1.pop(0))
        assert not A0 and len(A1) % 2 == 0
        n1 = 16 - len(A1)
        for e in range(n1, 16, 2): a(f"v_pk_add_f32 {p(M+e)}, {p(M+e)}, {p(X[1][e//4]+e%4)}")
        a("s_waitcnt lgkmcnt(0)")
        for x in adds(X, 2, range(4)): a(x)
        a(f"v_add_f32 {vr(LO)}, {vr(LO)}, {vr(LO+1)}\nv_add_f32 {vr(LO+2)}, {vr(LO+2)}, {vr(LO+3)}")
        for kk in range(3):
            for x in adds(X, kk, [4]): a(x)
        a(f"s_mov_b32 {sr(T+2)}, 0\nv_add_f32 {vr(LO)}, {vr(LO)}, {vr(LO+2)}")
        self.stamp("own")
        w, PU = 40, 128
        mo = MK + 3

        def chk(k):
            r = [IN[k][q] + i for q in range(3) for i in range(4)]
            c = [f"v_max3_u32 v46, {vr(r[0])}, {vr(r[1])}, {vr(r[2])}", f"v_max3_u32 v47, {vr(r[3])}, {vr(r[4])}, {vr(r[5])}"]
            for q in range(3): c.append(f"v_max3_u32 v{46+(q&1)}, v{46+(q&1)}, {vr(r[6+2*q])}, {vr(r[7+2*q])}")
            return c + ["v_max_u32 v46, v46, v47", "v_cmp_eq_u32 vcc, -1, v46"]

        def take(k, with_chk):
            r = [IN[k][q] + i for q in range(3) for i in range(4)]
            lp_, mp = r[10], r[11]
            wt = [f"v_min_f32 {vr(w)}, {vr(mo)}, {vr(mp)}", f"v_sub_f32 {vr(w+2)}, {vr(w)}, {vr(mp)}", f"v_sub_f32 {vr(w)}, {vr(w)}, {vr(mo)}",
                  f"v_exp_f32 {vr(w+2)}, {vr(w+2)}", f"v_exp_f32 {vr(w)}, {vr(w)}", f"v_mul_f32 {vr(w+4)}, {vr(w+2)}, {vr(lp_)}",
                  f"v_fmac_f32 {vr(w+4)}, {vr(w)}, {vr(LO)}", f"v_rcp_f32 {vr(w+4)}, {vr(w+4)}", f"v_mul_f32 {vr(w)}, {vr(w)}, {vr(w+4)}",
                  f"v_mul_f32 {vr(w+2)}, {vr(w+2)}, {vr(w+4)}"]
            un = []
            for i in range(10): un += [f"v_lshlrev_b32 {vr(PU+2*i)}, 16, {vr(r[i])}", f"v_and_b32 {vr(PU+1+2*i)}, 0xffff0000, {vr(r[i])}"]
            c = chk(k) if with_chk else []
            for i in range(10):
                a(wt[i])
                if c: a(c.pop(0))
                a(un.pop(0)); a(un.pop(0))
        a("s_waitcnt vmcnt(6)")
        take(0, True)
        a("s_cmp_eq_u64 vcc, 0\ns_cbranch_scc0 L_poll2")
        a.label("L_got")
        self.stamp("got")
        for i in range(10): a(f"v_pk_mul_f32 {p(M+2*i)}, {p(M+2*i)}, {p(w)} op_sel_hi:[1,0]")
        for i in range(10): a(f"v_pk_fma_f32 {p(M+2*i)}, {p(PU+2*i)}, {p(w+2)}, {p(M+2*i)} op_sel_hi:[1,0,1]")
        for i in range(10):
            a(f"v_cvt_pk_bf16_f32 {vr(UP+i)}, {vr(M+2*i)}, {vr(M+2*i+1)}")
            if i == 3: a(f"ds_write_b128 {vr(VXW)}, {vr(UP,4)}")
            if i == 7: a(f"ds_write_b128 {vr(VXW)}, {vr(UP+4,4)} offset:1024")
        a(f"""s_not_b64 exec, {sr(MP1,2)}
        ds_write_b64 {vr(VXR)}, {vr(UP+8,2)}
        s_mov_b64 exec, -1
        s_waitcnt lgkmcnt(0)
        s_barrier""")
        self.stamp("B3")
        for x in bfrags(BO, 0): a(x)
        for g, m in enumerate(fg(self.WO, BO)):
            if g % 5 == 0: a(f"s_waitcnt lgkmcnt({8 - 2 * (g // 5)})" + ("\ns_nop 0" if g == 20 else ""))
            a(m)
        self.stamp("gem")
        a("s_nop 3")
        for j in range(2):
            for tt in range(2):
                u = 2 * tt + j
                for h in range(2): a(f"v_cvt_pk_bf16_f32 {vr(16+4*j+2*tt+h)}, {vr(AB+4*u+2*h)}, {vr(AB+4*u+2*h+1)}")
            a(f"buffer_store_dwordx4 {vr(16+4*j,4)}, {vr(VO+j)}, {sr(S_OUT,4)}, {sr(self.E_COL)} offen {o.get('ofl', 'sc1')}")
        a(f"s_cmp_ge_u32 {sr(S_W)}, 2\ns_cbranch_scc1 L_fin")
        for h in range(2): a(f"v_cvt_pk_bf16_f32 {vr(24+h)}, {vr(AB+16+2*h)}, {vr(AB+16+2*h+1)}")
        a(f"buffer_store_dwordx2 v[24:25], {vr(self.VO8)}, {sr(S_OUT,4)}, 0 offen offset:256 {o.get('ofl', 'sc1')}")
        self.stamp("fin")

        def poll2():
            a.label("L_poll2")
            for k in (1, 2, 0):
                for x in inbox((k + 2) % 3): a(x)
                a("s_waitcnt vmcnt(6)")
                for x in chk(k): a(x)
                a(f"s_add_u32 {sr(T+2)}, {sr(T+2)}, 1\ns_cmp_eq_u64 vcc, 0\ns_cbranch_scc1 L_take{k}")
            a(f"s_cmp_lt_u32 {sr(T+2)}, 0x10000\ns_cbranch_scc1 L_poll2")
            for k in (0, 1, 2):
                a.label(f"L_take{k}")
                take(k, False)
                a("s_branch L_got")
        self.poll2 = poll2

    def fallback(self):
        a = self.a
        T = S_T
        MXR = 208
        a.label("L_fallback")
        a(f"""s_waitcnt vmcnt(0) lgkmcnt(0)
        s_barrier
        s_mov_b32 {sr(S_REDO)}, 1
        s_mov_b32 {sr(S_UG)}, 0x40000000
        {self.xa_srd()}
        s_mov_b32 {sr(S_TOFF)}, {sr(S_LB)}
        s_cmp_eq_u32 {sr(S_DUM)}, 4
        s_cselect_b32 {sr(S_CNT)}, 15, 16""")
        for i in range(4): a(f"v_mov_b32 {vr(MXR+i)}, 0xff800000")
        a.label("L_fb1")
        for g in self.tile_groups(0): a(g)
        a("s_waitcnt vmcnt(0)")
        for x in self.k_reads(0): a(x)
        a("s_waitcnt lgkmcnt(0)")
        for m in self.qk_mfmas(0, czero=True): a(m)
        a("s_nop 7")
        for qb in range(4):
            for i in range(0, 8, 2): a(f"v_max3_f32 {vr(MXR+qb)}, {vr(MXR+qb)}, {vr(self.S(0,qb,i))}, {vr(self.S(0,qb,i+1))}")
        a(f"s_sub_u32 {sr(S_CNT)}, {sr(S_CNT)}, 1\ns_cmp_lg_u32 {sr(S_CNT)}, 0\ns_cbranch_scc1 L_fb1")
        self.greduce([MXR + i for i in range(4)], MXR + 4, "v_max_f32")
        a(f"""v_and_b32 {vr(MXR+4)}, 15, v0
        v_lshlrev_b32 {vr(MXR+4)}, 4, {vr(MXR+4)}
        v_add_u32 {vr(MXR+4)}, {L_SP}, {vr(MXR+4)}
        s_lshl_b32 {sr(T)}, {sr(S_W)}, 2
        s_xor_b32 {sr(T+1)}, {sr(self.NB)}, 1
        v_lshl_add_u32 {vr(MXR+5)}, {sr(self.NB)}, 8, {vr(MXR+4)}
        v_lshl_add_u32 {vr(MXR+4)}, {sr(T+1)}, 8, {vr(MXR+4)}
        v_add_u32 {vr(MXR+6)}, {sr(T)}, {vr(MXR+4)}
        v_add_u32 {vr(MXR+7)}, {sr(T)}, {vr(MXR+5)}""")
        for qb in range(4): a(f"ds_write_b32 {vr(MXR+6+(qb&1))}, {vr(MXR+qb)} offset:{512*(qb>>1)}")
        a("s_waitcnt lgkmcnt(0)\ns_barrier")
        for qb in range(4): a(f"ds_read_b128 {vr(16+4*qb,4)}, {vr(MXR+4+(qb&1))} offset:{512*(qb>>1)}")
        a(f"s_mov_b32 {sr(S_TOFF)}, {sr(S_LB)}")
        for g in self.tile_groups(0) + self.tile_groups(1) + self.tile_groups(2)[:8]: a(g)
        a("s_waitcnt lgkmcnt(0)")
        for qb in range(4):
            r = 16 + 4 * qb
            a(f"v_max_f32 {vr(r)}, {vr(r)}, {vr(r+1)}\nv_max3_f32 {vr(r)}, {vr(r)}, {vr(r+2)}, {vr(r+3)}")
            a(f"v_sub_f32 {vr(self.MK+qb)}, 0, {vr(r)}")
        a("s_waitcnt vmcnt(0)")
        for x in self.k_reads(0, V_V): a(x)
        self.loop_init(False)
        a("s_branch L_go")


if __name__ == "__main__":
    opt = json.loads(sys.argv[2]) if len(sys.argv) > 2 else {}
    g = G(opt)
    txt = g.build()
    if opt.get("align", 1):
        from align import align
        for n2 in (1, 2):
            try:
                txt, st = align(txt, chains=[(1, "L_tr")] * 3 + [(1, "L_tr2"), (n2, "L_tr2")] if opt.get("touch", 1) else None)
                break
            except AssertionError as e:
                if n2 == 2: raise
        print("align: promoted %d, padded %d, left %d" % st)
    txt = txt.replace("\n", "\n; stamps " + json.dumps(g.stnames) + "\n; map %d\n" % g.mp, 1)
    open(sys.argv[1], "w").write(txt)
```

```python
import sys, json, math
from common import Asm, vr, ar, sr, kernel_header, kernel_desc
from lay import *

NAME = "standalone__conformer_family_branchformer__speech_kernel"
NH = 2
NWG = 252 + NH
CHAINS = (3, 3)
RING = 4
LDS_RING = RING * TILE
LDS_TOTAL = 163840
SLOT = 4 * TILE
L_WU, L_WQ, L_WK = 0, 41472, 82944
L_XX, L_XR = 126976, 143360
L_QD = 18432
L_XS = L_XX + L_QD
L_MX = 81920
L_PC = LDS_TOTAL - 256
L_DUMP = 123904
L_SP = 147456

S_X, S_WS, S_XA, S_DB, S_W1, S_W2, S_OUT, S_DW = 8, 12, 16, 20, 24, 28, 32, 36
S_W, S_B, S_H, S_QB, S_TOFF, S_CNT, S_DUM, S_LB, S_TOWN, S_TSND, S_VAL, S_REDO = range(40, 52)
S_UG = 25
S_N, S_FB = 98, 99
S_INC = 24
S_T = 52
S_ST = 76

V_KA, V_VA, V_VR, V_DMA, V_L, V_VB = 1, 3, 5, 6, 10, 14
V_S, V_CI, V_P, V_K, V_V = 16, 80, 96, 128, 164
V_HI = 200
V_X = 208
A_O, A_Q, A_F = 0, 144, 216

LOG2E = 1.4426950408889634
import struct
def f32(x): return "0x%08x" % struct.unpack("<I", struct.pack("<f", x))[0]


class BAsm(Asm):
    def __init__(self):
        super().__init__()
        self.bg, self.every, self.cnt, self.skip = [], 0, 0, 0

    def __call__(self, s):
        for l in s.split("\n"):
            l = l.strip()
            if not l: continue
            self.lines.append("    " + l)
            if self.bg and self.every and not l.startswith(("s_nop", "v_mov_b32", "v_exp", "v_rcp", "v_rsq", "v_sqrt", "s_add_u32 m0")):
                self.cnt += 1
                if self.cnt >= self.every:
                    self.cnt = 0
                    self.pop()

    def pop(self):
        for x in self.bg.pop(0).split("\n"): self.lines.append("    " + x)

    def flush(self):
        while self.bg: self.pop()
        self.every = 0


class G:
    def __init__(self, opt):
        self.o = opt
        self.a = BAsm()
        self.nst = 0
        self.fill = []

    def stamp(self, name):
        if self.o.get("stamps"):
            if name in self.o.get("skipst", []): return
            if "only" in self.o and name not in self.o["only"]: return
            if self.nst >= 11: return
            self.a(f"{'s_memtime' if self.o.get('cyc') else 's_memrealtime'} {sr(S_ST + 2*self.nst, 2)}")
            self.stnames.append(name)
            self.nst += 1

    def srd(self, dst, lo, hi, n):
        if dst == S_WS and self.o.get("wsoff"):
            self.a(f"s_add_u32 {sr(dst)}, {sr(lo)}, {self.o['wsoff']}\ns_addc_u32 {sr(dst+1)}, {sr(hi)}, 0\ns_mov_b32 {sr(dst+2)}, {n}\ns_mov_b32 {sr(dst+3)}, 0x20000")
            return
        self.a(f"s_mov_b32 {sr(dst)}, {sr(lo)}\ns_mov_b32 {sr(dst+1)}, {sr(hi)}\ns_mov_b32 {sr(dst+2)}, {n}\ns_mov_b32 {sr(dst+3)}, 0x20000")

    def greduce(self, regs, tmp, op="v_add_f32"):
        a = self.a
        for sw in ("32", "16"):
            for i, r in enumerate(regs): a(f"v_mov_b32 {vr(tmp+i)}, {vr(r)}")
            if len(regs) < 3: a("s_nop 1" if len(regs) == 1 else "s_nop 0")
            for i, r in enumerate(regs): a(f"v_permlane{sw}_swap_b32 {vr(r)}, {vr(tmp+i)}")
            for i, r in enumerate(regs): a(f"{op} {vr(r)}, {vr(r)}, {vr(tmp+i)}")

    def treduce(self, r, op="v_add_f32"):
        a = self.a
        a(f"v_permlane32_swap_b32 {vr(r)}, {vr(r+2)}\nv_permlane32_swap_b32 {vr(r+1)}, {vr(r+3)}")
        a(f"{op} {vr(r)}, {vr(r)}, {vr(r+2)}\n{op} {vr(r+1)}, {vr(r+1)}, {vr(r+3)}\ns_nop 1")
        a(f"v_permlane16_swap_b32 {vr(r)}, {vr(r+1)}\n{op} {vr(r)}, {vr(r)}, {vr(r+1)}")

    def rbf(self, r):
        self.a(f"v_cvt_pk_bf16_f32 {vr(r)}, {vr(r)}, {vr(r)}\nv_lshlrev_b32 {vr(r)}, 16, {vr(r)}")

    def ln_tail(self, F, out, t, mimic):
        a = self.a
        p = lambda r: vr(r, 2)
        self.greduce([t, t + 1], t + 2)
        a(f"v_mul_f32 {vr(t+2)}, {f32(1.0/144)}, {vr(t)}")
        a(f"v_mul_f32 {vr(t+3)}, {vr(t+2)}, {vr(t+2)}")
        a(f"v_mov_b32 {vr(t+4)}, {f32(1.0/144)}")
        a(f"v_fma_f32 {vr(t)}, {vr(t+1)}, {vr(t+4)}, -{vr(t+3)}")
        a(f"v_max_f32 {vr(t)}, 0, {vr(t)}")
        if mimic:
            self.rbf(t)
            self.rbf(t + 2)
            a(f"v_add_f32 {vr(t)}, {f32(1e-5)}, {vr(t)}")
            self.rbf(t)
            a(f"v_sqrt_f32 {vr(t)}, {vr(t)}\ns_nop 0")
            self.rbf(t)
            a(f"v_rcp_f32 {vr(t)}, {vr(t)}\ns_nop 0")
        else:
            a(f"v_add_f32 {vr(t)}, {f32(1e-5)}, {vr(t)}")
            a(f"v_rsq_f32 {vr(t)}, {vr(t)}\ns_nop 0")
        a(f"v_mul_f32 {vr(t+2)}, -{vr(t+2)}, {vr(t)}")
        for i in range(18):
            a(f"v_pk_fma_f32 {p(F+2*i)}, {p(F+2*i)}, {p(t)}, {p(t+2)} op_sel_hi:[1,0,0]")
        for i in range(18):
            a(f"v_cvt_pk_bf16_f32 {vr(out+i)}, {vr(F+2*i)}, {vr(F+2*i+1)}")

    def ln_packed(self, X, F, out, t):
        a = self.a
        a(f"v_mov_b32 {vr(t+6)}, 0x3f803f80")
        for k in range(4): a(f"v_mov_b32 {vr(t+k)}, 0")
        for i in range(18):
            a(f"v_dot2_f32_bf16 {vr(t+2*(i&1))}, {vr(X+i)}, {vr(t+6)}, {vr(t+2*(i&1))}")
            a(f"v_dot2_f32_bf16 {vr(t+1+2*(i&1))}, {vr(X+i)}, {vr(X+i)}, {vr(t+1+2*(i&1))}")
        for i in range(2):
            a(f"v_lshlrev_b32 {vr(F+2*i)}, 16, {vr(X+i)}\nv_and_b32 {vr(F+2*i+1)}, 0xffff0000, {vr(X+i)}")
        a(f"v_pk_add_f32 {vr(t,2)}, {vr(t,2)}, {vr(t+2,2)}")
        un = []
        for i in range(2, 18):
            un.append(f"v_lshlrev_b32 {vr(F+2*i)}, 16, {vr(X+i)}\nv_and_b32 {vr(F+2*i+1)}, 0xffff0000, {vr(X+i)}")
        sv = (a.bg, a.every, a.cnt, a.skip)
        n0 = len(a.lines)
        a.bg, a.every = [], 0
        self.ln_tail(F, out, t, True)
        tail = a.lines[n0:]
        del a.lines[n0:]
        a.bg, a.every, a.cnt, a.skip = sv
        k = next(i for i, l in enumerate(tail) if "v_pk_fma" in l)
        for i, l in enumerate(tail[:k]):
            if "s_nop" in l and un: continue_nop = True
            a(l)
            if un and not l.strip().startswith("s_nop"): a(un.pop(0))
        while un: a(un.pop(0))
        for l in tail[k:]: a(l)

    def ln_f32(self, F, out, t):
        a = self.a
        p = lambda r: vr(r, 2)
        a(f"v_pk_add_f32 {p(t)}, {p(F)}, {p(F+2)}\nv_pk_add_f32 {p(t+2)}, {p(F+4)}, {p(F+6)}")
        a(f"v_pk_mul_f32 {p(t+4)}, {p(F)}, {p(F)}\nv_pk_mul_f32 {p(t+6)}, {p(F+2)}, {p(F+2)}")
        for i in range(2, 18):
            if i >= 4: a(f"v_pk_add_f32 {p(t+2*(i&1))}, {p(t+2*(i&1))}, {p(F+2*i)}")
            a(f"v_pk_fma_f32 {p(t+4+2*(i&1))}, {p(F+2*i)}, {p(F+2*i)}, {p(t+4+2*(i&1))}")
        a(f"v_pk_add_f32 {p(t)}, {p(t)}, {p(t+2)}\nv_pk_add_f32 {p(t+4)}, {p(t+4)}, {p(t+6)}")
        a(f"v_add_f32 {vr(t)}, {vr(t)}, {vr(t+1)}\nv_add_f32 {vr(t+1)}, {vr(t+4)}, {vr(t+5)}")
        self.ln_tail(F, out, t, False)

    def gemm_u(self, AF, rf, Bs, ACC, afr, bfr, post, vm_items=(), other=(), lead=7, vm0=0, vmsp=4):
        a = self.a
        units = [(0, j) for j in range(4)] + [(1, j) for j in range(4)] + [(2, 0)]
        seq, dl = [], {}
        bs = lambda j, o_, n: self.rg((Bs[j][0], Bs[j][1] + o_), n)
        rem = lambda u: (f"v_mfma_f32_16x16x16_bf16 {vr(ACC+4*u,4)}, {rf(AF+18*units[u][0]+16,2)}, {bs(units[u][1],16,2)}, {vr(ACC+4*u,4)}", u)
        A = [afr(t) for t in range(3)]
        Bf = [bfr(j) for j in range(4)]

        def use(t, j, s, k):
            for x in (A[t][2 * s:2 * s + 2] if s < 4 else A[t][8:]) + ([Bf[j][s]] if Bf[j] else []): dl.setdefault(x, k)
        for g in range(4):
            for s in range(4):
                for u in range(3 * g, 3 * g + 3) if g < 3 else []:
                    t, j = units[u]
                    d = vr(ACC + 4 * u, 4)
                    use(t, j, s, len(seq))
                    seq.append((f"v_mfma_f32_16x16x32_bf16 {d}, {rf(AF+18*t+4*s,4)}, {bs(j,4*s,4)}, {'0' if s == 0 else d}", None))
                if s == 0 and g > 0:
                    for u in range(3 * g - 3, 3 * g):
                        use(units[u][0], units[u][1], 4, len(seq)); seq.append(rem(u))
        last = seq[-3:]; seq = seq[:-3]
        ds = sorted(dl.items(), key=lambda e: e[1]) + [(x, 99) for x in other]
        vm_items = list(vm_items)
        lastvm = vm0 - vmsp
        order, ready, q, done = [], [], [], 0

        def issue():
            x, k_ = ds.pop(0); a(x); order.append(k_)

        def wait(k):
            nonlocal done
            idx = [i_ for i_, k_ in enumerate(order) if k_ <= k]
            if idx and max(idx) + 1 > done:
                a(f"s_waitcnt lgkmcnt({min(15, len(order) - 1 - max(idx))})"); done = max(idx) + 1
        while ds and ds[0][1] < 6: issue()
        for k, (m, fin) in enumerate(seq):
            assert not ds or ds[0][1] > k, (k, ds[0])
            wait(k)
            a(m)
            for u_, kk in list(ready):
                if k - kk >= 4: q += post(u_); ready.remove((u_, kk))
            if fin is not None: ready.append((fin, k))
            due = sum(1 for x, k_ in ds if k_ <= k + lead)
            if due == 0 and vm_items and k >= lastvm + vmsp:
                a(vm_items.pop(0)); lastvm = k; continue
            cap = 2
            for _ in range(min(due, 3)): issue(); cap -= 1
            if cap == 2:
                if q and q[0].startswith("ds_"): a(q.pop(0)); order.append(99); cap -= 1
                elif ds: issue(); cap -= 1
            while cap > 0 and q and not q[0].startswith("ds_"):
                a(q.pop(0)); cap -= 1
        assert not ready
        while ds: issue()
        wait(98)
        for x in vm_items: a(x)
        for x in q[:4]: a(x)
        a(f"s_nop {max(0, 4 - len(q[:4]))}")
        for m, _ in last: a(m)
        for x in q[4:]: a(x)
        a(f"s_nop {max(0, 6 - len(q[4:]))}")
        for u in range(6, 9):
            for x in post(u): a(x)

    def gemm(self, reads, B, ACC, AF, late=(), at={}, per=2):
        a = self.a
        buf = lambda T: 18 * (T % 6)
        ng = 3 * (4 * per + 1)

        def grp(g):
            r = [reads(T, buf(T)) for T in range(3 * g, 3 * g + 3)]
            return [r[t][per * s + u] for s in range(4) for t in range(3) for u in range(per)] + [r[t][4 * per] for t in range(3)]
        rem = lambda T: f"v_mfma_f32_16x16x16_bf16 {vr(ACC+4*T,4)}, {ar(buf(T)+16,2)}, {vr(B+16,2)}, {vr(ACC+4*T,4)}"
        pend = grp(0) + grp(1) + grp(2) + list(late)
        issued = k = 0

        def issue(n):
            nonlocal issued
            for _ in range(n):
                if issued < len(pend): a(pend[issued]); issued += 1

        def mf(x):
            nonlocal k
            a(x); issue(per if per == 2 else (2 if k % 4 == 0 else 1))
            if k in at: a(at[k])
            k += 1
        issue(self.o.get('look', 12) if per == 2 else self.o.get('look1', 8))
        for g in range(3):
            for s in range(4):
                need = ng * g + 3 * per * (s + 1)
                a(f"s_waitcnt lgkmcnt({min(15, issued - need)})")
                for T in range(3 * g, 3 * g + 3):
                    d = vr(ACC + 4 * T, 4)
                    mf(f"v_mfma_f32_16x16x32_bf16 {d}, {ar(buf(T)+4*s,4)}, {vr(B+4*s,4)}, {'0' if s == 0 else d}")
                if s == 0 and g > 0:
                    for T in range(3 * g - 3, 3 * g): mf(rem(T))
                if g == 1 and s == 0: assert issued <= 2 * ng + 6 * per, "group 2 overwrites group 0 too early"
        issue(99)
        a(f"s_waitcnt lgkmcnt({len(late)})\ns_nop 2")
        for T in range(6, 9): a(rem(T))
        a("s_nop 7")

    def tr_reads(self, ad, rf=ar):
        def f(T, dst):
            out = []
            for s in range(4):
                for u in range(2):
                    out.append(f"ds_read_b64_tr_b16 {rf(dst+4*s+2*u,2)}, {vr(ad+u)} offset:{9216*s + 32*T}")
            out.append(f"ds_read_b64_tr_b16 {rf(dst+16,2)}, {vr(ad+2)} offset:{36864 + 32*T}")
            return out
        return f

    def row_reads(self, ad, sw=None):
        def f(T, dst):
            r = ad if sw is None or T == 8 else sw[T & 1]
            out = []
            for s in range(4):
                for u in range(2):
                    out.append(f"ds_read_b64 {ar(dst+4*s+2*u,2)}, {vr(r)} offset:{4864*T + 64*s + 32*u}")
            out.append(f"ds_read_b64 {ar(dst+16,2)}, {vr(r)} offset:{4864*T + 256}")
            return out
        return f

    def dma_rows(self, jobs, cpr, rstride, vo, vc, n_first, first_waves, lab):
        a = self.a
        mul = {18: 3641, 19: 3450}[cpr]
        dr, dc = 256 // cpr, 256 % cpr
        a(f"s_lshl_b32 {sr(S_T)}, {sr(S_W)}, 6")
        a(f"v_add_u32 {vr(vc)}, {sr(S_T)}, v0")
        a(f"v_mul_u32_u24 {vr(vo)}, {mul}, {vr(vc)}")
        a(f"v_lshrrev_b32 {vr(vo)}, 16, {vr(vo)}")
        a(f"v_mul_u32_u24 {vr(vc+1)}, {cpr}, {vr(vo)}")
        a(f"v_sub_u32 {vr(vc)}, {vr(vc)}, {vr(vc+1)}")
        a(f"v_mul_u32_u24 {vr(vo)}, {rstride}, {vr(vo)}")
        a(f"v_lshl_add_u32 {vr(vo)}, {vr(vc)}, 4, {vr(vo)}")
        a(f"s_lshl_b32 {sr(S_T)}, {sr(S_W)}, 10")
        a(f"v_mov_b32 {vr(vc+1)}, {rstride - 16*cpr}")
        for k in range(n_first):
            if k == n_first - 1:
                a(f"s_cmp_ge_u32 {sr(S_W)}, {first_waves}\ns_cbranch_scc1 {lab}")
            for srd, so, lb in jobs:
                a(f"s_add_u32 m0, {sr(S_T)}, {lb + 4096*k}")
                a("s_nop 0")
                a(f"buffer_load_dwordx4 {vr(vo)}, {sr(srd,4)}, {so} offen lds")
            if k < n_first - 1:
                a(f"v_add_u32 {vr(vc)}, {dc}, {vr(vc)}")
                a(f"v_cmp_le_u32 vcc, {cpr}, {vr(vc)}")
                a(f"v_add_u32 {vr(vo)}, {dr*rstride + 16*dc}, {vr(vo)}")
                a(f"v_subrev_u32 {vr(vc+2)}, {cpr}, {vr(vc)}")
                a(f"v_cndmask_b32 {vr(vc)}, {vr(vc)}, {vr(vc+2)}, vcc")
                a(f"v_cndmask_b32 {vr(vc+2)}, 0, {vr(vc+1)}, vcc")
                a(f"v_add_u32 {vr(vo)}, {vr(vo)}, {vr(vc+2)}")
        a.label(lab)

    def voff_table(self, dst, cpr, rstride, vc, step=256):
        a = self.a
        mul = {18: 29128, 19: 27595}[cpr]
        n = len(dst)
        a(f"s_mov_b32 {sr(S_T)}, {rstride - 16*cpr}")
        a(f"v_mul_u32_u24 {vr(dst[0])}, {mul}, {vr(vc)}")
        for k in range(1, n): a(f"v_add_u32 {vr(dst[k])}, {(step*k % cpr)*mul}, {vr(dst[0])}")
        for k in range(n): a(f"v_lshrrev_b32 {vr(dst[k])}, 19, {vr(dst[k])}")
        for k in range(n): a(f"v_mad_i32_i24 {vr(dst[k])}, {vr(dst[k])}, {sr(S_T)}, {vr(vc+1)}")

    def dma_lin(self, srd, soff, lb, v16, lab):
        a = self.a
        a(f"s_lshl_b32 {sr(S_T)}, {sr(S_W)}, 10")
        for k in range(11):
            if k == 10:
                a(f"s_cmp_ge_u32 {sr(S_W)}, 1\ns_cbranch_scc1 {lab}")
            a(f"s_add_u32 m0, {sr(S_T)}, {lb + 4096*k}")
            a(f"s_add_u32 {sr(S_T+1)}, {sr(S_T)}, {soff + 4096*k}")
            a(f"buffer_load_dwordx4 {vr(v16)}, {sr(srd,4)}, {sr(S_T+1)} offen lds")
        a.label(lab)

    def tr_addr(self, ad, base, swapped, t):
        a = self.a
        a(f"v_lshrrev_b32 {vr(t)}, 2, v0")
        a(f"v_mul_u32_u24 {vr(t)}, 288, {vr(t)}")
        a(f"v_and_b32 {vr(t+1)}, 3, v0")
        a(f"v_lshl_add_u32 {vr(t)}, {vr(t+1)}, 3, {vr(t)}")
        a(f"v_add_u32 {vr(ad+2)}, {base}, {vr(t)}")
        if swapped:
            a(f"v_bfe_u32 {vr(t)}, v0, 4, 1")
            a(f"v_mul_u32_u24 {vr(t)}, {16*288}, {vr(t)}")
            a(f"v_add_u32 {vr(ad)}, {vr(ad+2)}, {vr(t)}")
            a(f"v_sub_u32 {vr(ad+1)}, {vr(ad+2)}, {vr(t)}")
            a(f"v_add_u32 {vr(ad+1)}, {16*288}, {vr(ad+1)}")
        else:
            a(f"v_mov_b32 {vr(ad)}, {vr(ad+2)}")
            a(f"v_add_u32 {vr(ad+1)}, {16*288}, {vr(ad+2)}")

    def row_addr(self, ad, base, t):
        a = self.a
        a(f"v_and_b32 {vr(t)}, 15, v0")
        a(f"v_mul_u32_u24 {vr(t)}, 304, {vr(t)}")
        a(f"v_lshrrev_b32 {vr(t+1)}, 4, v0")
        a(f"v_lshl_add_u32 {vr(t)}, {vr(t+1)}, 3, {vr(t)}")
        a(f"v_add_u32 {vr(ad)}, {base}, {vr(t)}")

    def store_block(self, src, v16, v8, srd, soff, soff2, flags=""):
        a = self.a
        for s in range(4):
            a(f"buffer_store_dwordx4 {vr(src+4*s,4)}, {vr(v16)}, {sr(srd,4)}, {sr(soff)} offen offset:{1024*s} {flags}")
        a(f"buffer_store_dwordx2 {vr(src+16,2)}, {vr(v8)}, {sr(srd,4)}, {sr(soff2)} offen {flags}")

    def entry(self):
        a = self.a
        kernel_header(a, NAME)
        a(f"s_load_dwordx16 s[56:71], s[0:1], 0")
        a(f"s_load_dwordx8 s[72:79], s[0:1], 64")
        a(f"s_getpc_b64 {sr(S_W1,2)}")
        a.label("L_pf")
        a(f"""s_mov_b32 {sr(S_W1+2)}, L_dummy-L_pf
        s_mov_b32 {sr(S_W1+3)}, 0x20000
        v_lshlrev_b32 v2, 4, v0
        buffer_load_dwordx4 v[252:255], v2, {sr(S_W1,4)}, 0 offen
        s_lshl_b32 s3, s2, 9
        s_and_b32 s3, s3, 0x7000
        buffer_load_dwordx4 v[252:255], v2, {sr(S_W1,4)}, s3 offen
        v_lshrrev_b32 v1, 6, v0
        s_sub_u32 s2, s2, {NH}
        v_readfirstlane_b32 {sr(S_W)}, v1
        s_memrealtime s[4:5]
        s_cmp_ge_u32 s2, {NWG - NH}
        s_cbranch_scc1 L_wfuse""")
        if self.o.get("late"):
            m_, v_, n_ = self.o["late"]
            a(f"""s_and_b32 s3, s2, {m_}
            s_cmp_lg_u32 s3, {v_}
            s_cbranch_scc1 L_nl
            s_memrealtime s[4:5]
            s_waitcnt lgkmcnt(0)
            s_add_u32 s6, s4, {n_}
            L_lt:
            s_memrealtime s[4:5]
            s_waitcnt lgkmcnt(0)
            s_sub_u32 s7, s6, s4
            s_cmp_gt_i32 s7, 0
            s_cbranch_scc1 L_lt
            L_nl:""")
        if self.o.get("stamps"):
            a("s_memrealtime s[100:101]" if not self.o.get("cyc") else "s_memtime s[100:101]")
        self.mp = 2

    def vm_since(self, mark):
        return sum(1 for l in self.a.lines[mark:] if l.strip().startswith("buffer_"))

    def phase_a(self):
        a, o = self.a, self.o
        XR, XF, XA, ACC, G_, PK = 16, 34, 146, 110, 16, 164
        B4, XD = 16, 88
        VS, VSW, VR4, MXA, MXR, L8, TRU, TRQ, TRQ8, RK, TM = 200, 204, 208, 212, 213, 214, 215, 218, 221, 224, 228
        VK, VU = list(range(182, 193)), list(range(193, 200)) + list(range(104, 108))
        AQ1 = 200
        t0, t1, t2 = 250, 251, 227
        T = S_T
        WV, W10, UOFF, M1, PUB, M3 = 72, 70, 71, 69, 68, 65
        a(f"""v_and_b32 v0, 63, v0
        s_bfe_u32 {sr(S_B)}, s2, 0x10001
        s_lshr_b32 {sr(S_QB)}, s2, 2
        s_lshr_b32 {sr(T)}, {sr(S_W)}, 1
        s_xor_b32 {sr(T)}, {sr(T)}, s2
        s_andn2_b32 {sr(T)}, 1, {sr(T)}
        s_lshl1_add_u32 {sr(T+3)}, {sr(S_QB)}, {sr(T)}
        s_mul_i32 {sr(T)}, {sr(S_B)}, {NT}
        s_add_u32 {sr(T+1)}, {sr(T+3)}, {sr(T)}
        s_and_b32 {sr(T+2)}, {sr(S_W)}, 1
        s_lshl1_add_u32 {sr(T+2)}, {sr(T+1)}, {sr(T+2)}
        v_lshlrev_b32 {vr(V_DMA)}, 4, v0
        s_mul_i32 {sr(T+1)}, {sr(T+2)}, {16*288}
        s_mul_i32 {sr(S_LB)}, {sr(S_W)}, {BLK}
        s_add_u32 m0, {sr(S_LB)}, {L_XS}
        s_mov_b32 {sr(S_X+2)}, 2304000
        s_mov_b32 {sr(S_X+3)}, {sr(S_W1+3)}
        s_add_u32 {sr(S_CNT)}, {sr(T+1)}, 4096
        s_waitcnt lgkmcnt(0)
        s_mov_b64 {sr(S_X,2)}, s[56:57]""")
        for k in range(4): a(f"buffer_load_dwordx4 {vr(V_DMA)}, {sr(S_X,4)}, {sr(T+1)} offen offset:{1024*k} lds")
        a(f"s_add_u32 m0, {sr(S_LB)}, {L_XS + 4096}\ns_mov_b32 exec_hi, 0\nbuffer_load_dwordx4 {vr(V_DMA)}, {sr(S_X,4)}, {sr(S_CNT)} offen lds\ns_mov_b32 exec_hi, -1")
        mx = len(a.lines)
        a(f"""s_add_u32 {sr(S_LB)}, {sr(S_LB)}, {L_XS}
        s_and_b32 {sr(S_H)}, s2, 1
        s_lshl1_add_u32 {sr(S_TOWN)}, {sr(S_QB)}, {sr(S_H)}
        s_cmp_lt_u32 {sr(S_TOWN)}, {NT}
        s_cselect_b32 {sr(S_VAL)}, 1, 0
        s_add_u32 {sr(S_TOWN)}, {sr(S_TOWN)}, {sr(T)}""")
        SQ, SK, SU = S_W2, S_W1, S_XA
        self.srd(SU, 66, 67, 82944)
        self.srd(SQ, 58, 59, 41472)
        self.srd(SK, 60, 61, 41472)
        a(f"s_lshr_b32 {sr(T)}, s2, 3\ns_lshl_b32 {sr(T)}, {sr(T)}, 12\ns_lshl_b32 {sr(W10)}, {sr(S_W)}, 10\ns_add_u32 {sr(T)}, {sr(T)}, {sr(W10)}")
        a(f"buffer_load_dwordx4 v[252:255], {vr(V_DMA)}, {sr(SU,4)}, {sr(T)} offen")
        for srd_, rot in ((SQ, 82), (SK, 41)):
            a(f"s_add_u32 {sr(T+1)}, {sr(T)}, {(128 - rot) * 1024}\ns_and_b32 {sr(T+1)}, {sr(T+1)}, {127 * 1024}")
            a(f"buffer_load_dwordx4 v[252:255], {vr(V_DMA)}, {sr(srd_,4)}, {sr(T+1)} offen")
        self.srd(S_OUT, 74, 75, 2304000)
        self.srd(S_DB, 76, 77, 256)
        self.srd(S_WS, 78, 79, WS_END)
        def tlb():
            a(f"v_lshlrev_b32 v249, 21, v0")
            for ch in o.get("tlbw", "wdo"): a(f"buffer_load_dword v252, v249, {sr(dict(w=S_WS, d=S_DB, o=S_OUT)[ch],4)}, 0 offen")
        if o.get("tlb", 0) == 1: tlb()
        if o.get("tlb", 3) == 3:
            a(f"""s_bfe_u32 {sr(T)}, s2, 0x30003
            s_lshl_b32 {sr(T)}, {sr(T)}, 21
            v_mov_b32 v249, 0
            s_cmp_lt_u32 {sr(T)}, {5 << 21}
            s_cbranch_scc0 L_tl1
            buffer_load_dword v252, v249, {sr(S_WS,4)}, {sr(T)} offen
            s_branch L_tl3
            L_tl1:
            s_sub_u32 {sr(T)}, {sr(T)}, {5 << 21}
            s_cmp_lt_u32 {sr(T)}, {2 << 21}
            s_cbranch_scc0 L_tl2
            buffer_load_dword v252, v249, {sr(S_OUT,4)}, {sr(T)} offen
            s_branch L_tl3
            L_tl2:
            s_or_b32 s4, s4, 1
            v_lshlrev_b32 v249, 8, v0
            v_mov_b32 v250, s4
            s_lshl2_add_u32 s5, s2, {sr(S_W)}
            s_cmp_eq_u32 s5, {56 * 4}
            s_cbranch_scc0 L_tl4
            buffer_store_dword v250, v249, {sr(S_DB,4)}, 0 offen sc1
            s_branch L_tl3
            L_tl4:
            buffer_load_dword v252, v249, {sr(S_DB,4)}, 0 offen
            L_tl3:""")
            self.vm_adj = -3
        if o.get("stamps"): a(f"s_mov_b64 {sr(S_ST,2)}, s[100:101]"); self.stnames.append("start"); self.nst = 1
        self.stamp("xiss")
        a(f"""s_cmp_lt_u32 {sr(T+3)}, {NT}
        s_cselect_b32 {sr(WV)}, 1, 0
        s_mov_b32 {sr(WV+1)}, {sr(T+2)}
        s_mul_i32 {sr(UOFF)}, {sr(S_H)}, 288
        s_cmp_eq_u32 {sr(S_W)}, 0
        s_cselect_b32 {sr(M1)}, 0, {L_DUMP}
        s_cmp_lt_u32 {sr(S_W)}, 3
        s_cselect_b32 {sr(M3)}, {sr(W10)}, {L_DUMP}""")
        half = lambda g_: "s_mov_b32 exec_hi, 0\n" + g_ + "\ns_mov_b32 exec_hi, -1"
        gu = [f"s_add_u32 m0, {sr(W10 if k < 10 else M1)}, {L_WU + 4096*k}\ns_add_u32 {sr(S_CNT)}, {sr(UOFF)}, {4096*k + 288*(256*k//18)}\nbuffer_load_dwordx4 {vr(VU[k])}, {sr(SU,4)}, {sr(S_CNT)} offen lds" for k in range(11)]
        gu[10] = half(gu[10])
        gq = [f"s_add_u32 m0, {sr(W10 if k < 10 else M1)}, {L_WQ + 4096*k}\ns_add_u32 {sr(S_CNT)}, {sr(W10)}, {4096*k}\nbuffer_load_dwordx4 {vr(V_DMA)}, {sr(SQ,4)}, {sr(S_CNT)} offen lds" for k in range(11)]
        gq[10] = half(gq[10])
        gk = [f"s_add_u32 m0, {sr(W10 if k < 10 else M3)}, {L_WK + 4096*k}\ns_mov_b32 {sr(S_CNT)}, {4096*k - 16*(256*k//19)}\nbuffer_load_dwordx4 {vr(VK[k])}, {sr(SK,4)}, {sr(S_CNT)} offen lds" for k in range(11)]
        a(f"s_lshl_b32 {sr(T)}, {sr(S_W)}, 6\nv_add_u32 {vr(t0)}, {sr(T)}, v0\nv_lshlrev_b32 {vr(t1)}, 4, {vr(t0)}")
        self.voff_table(VU, 18, 576, t0)
        npre = o.get("npre", 3)
        a.bg, a.every, a.cnt = gu[:npre], o.get("evpre", 40), 0
        self.voff_table(VK, 19, 288, t0)
        xa0, xa1, xa2 = TM, TM + 1, TM + 2
        a(f"""v_and_b32 {vr(t0)}, 15, v0
        v_lshrrev_b32 {vr(t1)}, 5, v0
        v_lshlrev_b32 {vr(t1)}, 3, {vr(t1)}
        v_xor_b32 {vr(t1)}, {vr(t0)}, {vr(t1)}
        v_lshlrev_b32 {vr(t1)}, 4, {vr(t1)}
        v_lshrrev_b32 {vr(t2)}, 4, v0
        v_lshl_add_u32 {vr(V_KA)}, {vr(t2)}, 9, {vr(t1)}
        v_lshrrev_b32 {vr(t1)}, 3, {vr(t0)}
        v_lshlrev_b32 {vr(t1)}, 1, {vr(t1)}
        v_xor_b32 {vr(t1)}, {vr(t2)}, {vr(t1)}
        v_lshl_add_u32 {vr(t1)}, {vr(t0)}, 2, {vr(t1)}
        v_lshlrev_b32 {vr(V_KA+1)}, 3, {vr(t1)}
        v_lshlrev_b32 {vr(L8)}, 3, v0
        v_lshlrev_b32 {vr(MXR)}, 4, {vr(t0)}
        v_add_u32 {vr(MXR)}, {L_MX}, {vr(MXR)}
        v_add_u32 {vr(MXA)}, {sr(S_W)}, {vr(t2)}
        v_and_b32 {vr(MXA)}, 3, {vr(MXA)}
        v_lshl_add_u32 {vr(MXA)}, {vr(MXA)}, 8, {vr(MXR)}
        s_lshl_b32 {sr(T)}, {sr(S_W)}, 2
        v_add_u32 {vr(MXA)}, {sr(T)}, {vr(MXA)}
        v_mul_u32_u24 {vr(xa2)}, 288, {vr(t0)}
        v_lshl_add_u32 {vr(xa2)}, {vr(t2)}, 3, {vr(xa2)}
        v_add_u32 {vr(xa2)}, {sr(S_LB)}, {vr(xa2)}
        v_and_b32 {vr(t1)}, 1, {vr(t2)}
        v_lshlrev_b32 {vr(t1)}, 5, {vr(t1)}
        v_add_u32 {vr(xa0)}, {vr(xa2)}, {vr(t1)}
        v_xor_b32 {vr(t1)}, 32, {vr(t1)}
        v_add_u32 {vr(xa1)}, {vr(xa2)}, {vr(t1)}
        s_mul_i32 {sr(S_LB)}, {sr(S_W)}, {TILE}
        v_lshrrev_b32 {vr(t0)}, 2, v0
        v_bfe_u32 {vr(t1)}, v0, 1, 1
        v_lshlrev_b32 {vr(t1)}, 3, {vr(t1)}
        v_xor_b32 {vr(t1)}, {vr(t0)}, {vr(t1)}
        v_lshlrev_b32 {vr(t1)}, 4, {vr(t1)}
        v_and_b32 {vr(t2)}, 3, v0
        v_lshl_add_u32 {vr(t1)}, {vr(t2)}, 9, {vr(t1)}
        v_and_b32 {vr(V_VA)}, 1, v0
        v_lshl_add_u32 {vr(t1)}, {vr(V_VA)}, 3, {vr(t1)}
        s_and_b32 {sr(T)}, {sr(S_W)}, 1
        s_lshl_b32 {sr(T)}, {sr(T)}, 12
        s_add_u32 {sr(T+1)}, {sr(T)}, {sr(S_LB)}
        s_xor_b32 {sr(T)}, {sr(T)}, 4096
        s_add_u32 {sr(T)}, {sr(T)}, {sr(S_LB)}
        v_add_u32 {vr(V_VA)}, {sr(T)}, {vr(t1)}
        v_add_u32 {vr(V_VB)}, {sr(T+1)}, {vr(t1)}
        v_xor_b32 {vr(V_VA+1)}, 8, {vr(V_VA)}
        v_xor_b32 {vr(V_VB+1)}, 8, {vr(V_VB)}
        v_lshrrev_b32 {vr(t1)}, 5, v0
        v_lshlrev_b32 {vr(t1)}, 1, {vr(t1)}
        v_xor_b32 {vr(t1)}, {vr(t2)}, {vr(t1)}
        v_lshl_add_u32 {vr(t1)}, {vr(t0)}, 2, {vr(t1)}
        v_lshlrev_b32 {vr(t1)}, 3, {vr(t1)}
        v_add_u32 {vr(V_VR)}, {sr(S_LB)}, {vr(t1)}
        v_add_u32 {vr(V_DMA+1)}, 4096, {vr(V_DMA)}
        v_add_u32 {vr(V_DMA+2)}, 8192, {vr(V_DMA)}""")
        self.tr_addr(TRU, L_WU, True, t0)
        a(f"s_lshl_b32 {sr(T)}, {sr(S_W)}, 6\ns_add_u32 {sr(T)}, {sr(T)}, {L_WQ - L_WU}")
        for k in range(3):
            a(f"v_add_u32 {vr(TRQ+k)}, {sr(T)}, {vr(TRU+k)}\nv_add_u32 {vr(TRQ8+k)}, {L_WQ - L_WU + 256}, {vr(TRU+k)}")
        self.row_addr(RK + 2, L_WK + 8 * 4864, t0)
        a(f"""s_mul_i32 {sr(T)}, {sr(S_W)}, {2*4864}
        s_sub_u32 {sr(T)}, {sr(T)}, {8*4864}
        v_add_u32 {vr(t1)}, {sr(T)}, {vr(RK+2)}
        v_bfe_u32 {vr(t0)}, v0, 2, 1
        v_mul_u32_u24 {vr(t0)}, 4864, {vr(t0)}
        v_add_u32 {vr(RK)}, {vr(t1)}, {vr(t0)}
        v_sub_u32 {vr(RK+1)}, {vr(t1)}, {vr(t0)}""")
        for j in range(4):
            a(f"""s_add_u32 {sr(T)}, {sr(S_W)}, {j}
            s_and_b32 {sr(T)}, {sr(T)}, 3
            s_lshl_b32 {sr(T+1)}, {sr(T)}, 12
            s_add_u32 {sr(T+1)}, {sr(T+1)}, {L_XX}
            v_add_u32 {vr(VS+j)}, {sr(T+1)}, {vr(V_DMA)}
            s_lshl_b32 {sr(T+1)}, {sr(T)}, 9
            s_add_u32 {sr(T+1)}, {sr(T+1)}, {L_XR}
            v_add_u32 {vr(VR4+j)}, {sr(T+1)}, {vr(L8)}
            v_add_u32 {vr(VSW+j)}, {sr(W10)}, {vr(VS+j)}""")
        a(f"""s_sub_u32 {sr(T+2)}, 63, {sr(S_H)}
        s_add_u32 {sr(T+3)}, {sr(S_W)}, 60
        s_cmp_ge_u32 {sr(T+3)}, {sr(T+2)}
        s_cselect_b32 {sr(S_DUM)}, 4, 99
        s_mov_b32 {sr(S_REDO)}, 0
        s_mov_b32 {sr(S_TOFF)}, {sr(S_LB)}
        s_lshl_b32 {sr(PUB)}, {sr(S_TOWN)}, 8
        s_add_u32 {sr(PUB)}, {sr(PUB)}, {WS_F}
        s_cmp_eq_u32 {sr(S_W)}, 2
        s_cselect_b32 {sr(T)}, {sr(S_VAL)}, 0
        s_cmp_eq_u32 {sr(T)}, 1
        s_cselect_b32 {sr(PUB)}, {sr(PUB)}, 0x40000000
        s_lshl_b32 {sr(S_FB)}, s2, 8
        s_add_u32 {sr(S_FB)}, {sr(S_FB)}, {WS_F + 250*256}
        s_mul_i32 {sr(T)}, {sr(S_H)}, 1792
        s_sub_u32 {sr(T)}, {sr(T)}, 768
        s_mul_i32 {sr(T+1)}, {sr(S_H)}, 62
        s_cmp_eq_u32 {sr(S_QB)}, {sr(T+1)}
        s_cselect_b32 {sr(T)}, 0, {sr(T)}
        v_mov_b32 {vr(self.VPL)}, 0x40000000
        s_xor_b32 {sr(T+1)}, {sr(S_FB)}, 256
        s_add_u32 {sr(T)}, {sr(T)}, {sr(S_FB)}
        v_writelane_b32 {vr(self.VPL)}, {sr(S_FB)}, 0
        v_writelane_b32 {vr(self.VPL)}, {sr(T+1)}, 1
        v_writelane_b32 {vr(self.VPL)}, {sr(T)}, 2
        s_mov_b32 {sr(T)}, {WS_F + 502*256}
        s_mov_b32 {sr(T+1)}, {WS_F + 503*256}
        v_writelane_b32 {vr(self.VPL)}, {sr(T)}, 3
        v_writelane_b32 {vr(self.VPL)}, {sr(T+1)}, 4
        s_sub_u32 {sr(S_FB)}, {sr(S_FB)}, {L_PC}""")
        a.flush()
        if o.get("tlb", 0) == 2: tlb()
        self.stamp("pre")
        if o.get("es", 0) == 0: self.epi_setup()
        self.stamp("es")
        nx = self.vm_since(mx) + getattr(self, "vm_adj", 0)
        if o.get("touch", 1):
            a(f"""s_mov_b64 exec, 0
            s_cmp_eq_u32 {sr(S_W)}, 0
            s_cbranch_scc1 L_tr
            s_cmp_eq_u32 {sr(S_W)}, 1
            s_cbranch_scc1 L_t0
            s_cmp_eq_u32 {sr(S_W)}, 2
            s_cbranch_scc1 L_t1
            s_branch L_t2""")
            self.rare()
            a.raw(".p2align 12")
            a.label("L_tr")
            a("s_mov_b64 exec, -1")
        nlate = o.get("nlate", 0)
        for g_ in gu[npre:npre + nlate]: a(g_)
        a(f"s_waitcnt vmcnt({nx + nlate})")
        self.stamp("xarr")
        for s in range(4):
            a(f"ds_read_b64 {vr(XR+4*s,2)}, {vr(xa0)} offset:{64*s}\nds_read_b64 {vr(XR+4*s+2,2)}, {vr(xa1)} offset:{64*s}")
        a(f"ds_read_b64 {vr(XR+16,2)}, {vr(xa2)} offset:256")
        a(f"""s_and_b32 {sr(T)}, {sr(S_W)}, 1
        s_mul_i32 {sr(T+2)}, {sr(S_TOWN)}, {TILE}
        s_cmp_eq_u32 {sr(S_VAL)}, 1
        s_cselect_b32 {sr(T+2)}, {sr(T+2)}, 0x40000000
        s_lshl_b32 {sr(T+3)}, {sr(T)}, 8
        s_add_u32 {sr(T+3)}, {sr(T+3)}, {sr(T+2)}
        s_add_u32 {sr(T+4)}, {sr(T+3)}, 4096
        s_lshl_b32 {sr(T+5)}, {sr(T)}, 9
        s_add_u32 {sr(T+5)}, {sr(T+5)}, {sr(T+2)}
        s_add_u32 {sr(T+5)}, {sr(T+5)}, 8192
        s_waitcnt lgkmcnt(0)""")
        wl = gq + gk
        a.bg, a.every, a.cnt = gu[npre + nlate:] + [wl.pop(0) for _ in range(o.get("nql", 4))], o.get("evln", 8), 0
        self.ln_packed(XR, XF, XA, TM)
        a.flush()
        self.stamp("ln")
        a(f"s_cmp_lt_u32 {sr(S_W)}, 2\ns_cbranch_scc1 L_nop")
        for s in range(4):
            a(f"buffer_store_dwordx4 {vr(XA+4*s,4)}, {vr(V_KA)}, {sr(S_WS,4)}, {sr(T+3+(s>>1))} offen offset:{2048*(s&1)} sc1")
        a(f"buffer_store_dwordx2 {vr(XA+16,2)}, {vr(V_KA+1)}, {sr(S_WS,4)}, {sr(T+5)} offen sc1\ns_waitcnt vmcnt({5 + o.get('nql', 4)})\ns_branch L_bar1")
        a.label("L_nop")
        if o.get("touch", 1):
            a(f"s_mov_b64 exec, 0\ns_cmp_eq_u32 {sr(S_W)}, 0\ns_cbranch_scc1 L_t3\ns_branch L_t4")
            a.label("L_tr2")
            a("s_mov_b64 exec, -1")
        a(f"s_waitcnt vmcnt({o.get('nql', 4)})")
        a.label("L_bar1")
        self.stamp("pub")
        xw = [f"ds_write_b128 {vr(VS)}, {vr(XA+4*s,4)} offset:{1024*s}" for s in range(4)] + [f"ds_write_b64 {vr(VR4)}, {vr(XA+16,2)}"]
        self.stamp("tch")
        PA = 249
        a(f"""v_add_u32 {vr(V_KA)}, {sr(S_LB)}, {vr(V_KA)}
        v_add_u32 {vr(V_KA+1)}, {sr(S_LB)}, {vr(V_KA+1)}
        s_mul_i32 {sr(T)}, {sr(S_B)}, {NT}
        s_mul_i32 {sr(T+1)}, {sr(S_H)}, 63
        s_add_u32 {sr(T)}, {sr(T)}, {sr(T+1)}
        s_lshl_b32 {sr(T)}, {sr(T)}, 8
        s_add_u32 {sr(T)}, {sr(T)}, {WS_F}
        s_cmp_eq_u32 {sr(S_W)}, 0
        s_cselect_b32 {sr(T)}, {sr(T)}, 0x40000000
        v_lshl_add_u32 {vr(PA)}, v0, 8, {sr(T)}
        {self.xa_srd()}
        s_waitcnt lgkmcnt(0)""")
        self.stamp("w1")
        a("s_barrier")
        self.stamp("bar1")
        poll = lambda r: f"buffer_load_dword {vr(r)}, {vr(PA)}, {sr(S_WS,4)}, 0 offen sc1"

        def gate(lab, r, mask, younger):
            a(f"s_mov_b32 {sr(T+2)}, 0\ns_waitcnt vmcnt({younger})")
            a.label(lab)
            a(f"""v_cmp_ne_u32 vcc, {sr(S_N)}, {vr(r)}
            s_add_u32 {sr(T+2)}, {sr(T+2)}, 1
            s_and_b64 vcc, vcc, {mask}
            s_cbranch_scc0 {lab}_ok
            s_sleep {o.get("slp", 4)}
            {poll(r)}
            s_waitcnt vmcnt(0)
            s_cmp_lt_u32 {sr(T+2)}, 0x40000
            s_cbranch_scc1 {lab}""")
            a.label(lab + "_ok")

        H, G_, UG, MS, CL = 16, 52, 208, 110, 104
        nup = o.get("nup", 12)
        at = {o.get("u0", 6) + o.get("usp", 3) * i: wl.pop(0) for i in range(nup)}
        for i in range(5): at[i] = xw[i]
        tagld = f"buffer_load_dword v253, off, {sr(S_DB,4)}, 0 sc1"
        at[o.get("tgp", 5)] = tagld
        if o.get("es", 0) == 1:
            n_ = len(a.lines); self.epi_setup()
            el = [l.strip() for l in a.lines[n_:]]; del a.lines[n_:]
            for k in range(5, 42):
                if k in at: continue
                c_ = 0
                while el and c_ < o.get("esn", 2):
                    x = el.pop(0); at[k] = at.get(k, "") + x + "\n"; c_ += 1 if x.startswith("v_") else 0.5
            self.es_left = el
        self.gemm(self.tr_reads(TRU), XA, H, None, at=at)
        if o.get("es", 0) == 1:
            for x in self.es_left: a(x)
        self.stamp("up")
        last = lambda srd: max(i for i, l in enumerate(a.lines) if l.strip().startswith("buffer_load") and sr(srd, 4) in l) + 1
        assert not any(sr(SQ, 4) in x for x in wl)
        a(f"v_lshlrev_b32 {vr(t0)}, 2, v0\ns_mov_b32 {sr(T+2)}, 0\ns_waitcnt vmcnt({self.vm_since(last(SQ))}) lgkmcnt(0)")
        a.label("L_tag")
        a(f"""v_readfirstlane_b32 {sr(S_N)}, v253
        s_add_u32 {sr(T+2)}, {sr(T+2)}, 1
        s_cmp_lg_u32 {sr(S_N)}, 0
        s_cbranch_scc1 L_tag_ok
        {tagld}
        s_waitcnt vmcnt(0)
        s_cmp_lt_u32 {sr(T+2)}, 0x40000
        s_cbranch_scc1 L_tag""")
        a.label("L_tag_ok")
        m_g = len(a.lines)
        a(f"v_mov_b32 {vr(t1)}, {sr(S_N)}\ns_barrier\nbuffer_store_dword {vr(t1)}, {vr(t0)}, {sr(S_WS,4)}, {sr(PUB)} offen sc1")
        self.stamp("barG")
        if o.get("atw"):
            a("s_waitcnt vmcnt(0)")
            self.stamp("ack")
        if o.get("census"):
            k_ = S_ST + 2 * self.stnames.index(o["census"][0])
            a(f"s_waitcnt lgkmcnt(0)\nv_mov_b32 v252, {sr(k_)}\ns_lshl_b32 {sr(T)}, s2, 2\ns_add_u32 {sr(T)}, {sr(T)}, {WS_DBG}\nv_mov_b32 v253, 0\nbuffer_store_dword v252, v253, {sr(S_WS,4)}, {sr(T)} offen sc1")

        def a_tr(t):
            ad, off = (TRQ, 32 * t) if t < 2 else (TRQ8, 0)
            return [f"ds_read_b64_tr_b16 {ar(AQ1+18*t+4*s+2*u,2)}, {vr(ad+u)} offset:{9216*s + off}" for s in range(4) for u in range(2)] + \
                   [f"ds_read_b64_tr_b16 {ar(AQ1+18*t+16,2)}, {vr(ad+2)} offset:{36864 + off}"]

        def a_row(t):
            off = 4864 * t if t < 2 else 0
            return [f"ds_read_b64 {ar(A_Q+18*t+4*s+2*u,2)}, {vr(RK+t)} offset:{off + 64*s + 32*u}" for s in range(4) for u in range(2)] + \
                   [f"ds_read_b64 {ar(A_Q+18*t+16,2)}, {vr(RK+t)} offset:{off + 256}"]
        bq = lambda j, d=0: [f"ds_read_b128 {ar(18*j+4*s,4)}, {vr(VS+j)} offset:{d + 1024*s}" for s in range(4)] + [f"ds_read_b64 {ar(18*j+16,2)}, {vr(VR4+j)} offset:{d}"]

        def post(u, scale, d):
            L = [f"v_mul_f32 {vr(ACC+4*u+i)}, {sr(T+4)}, {vr(ACC+4*u+i)}" for i in range(4)] if scale else []
            L += [f"v_cvt_pk_bf16_f32 {vr(PK + (4*(u&3) + 2*(u>>2) if u < 8 else 16) + h)}, {vr(ACC+4*u+2*h)}, {vr(ACC+4*u+2*h+1)}" for h in range(2)]
            if 4 <= u < 8: L.append(f"ds_write_b128 {vr(VSW+u-4)}, {vr(PK+4*(u-4),4)} offset:{d}")
            if u == 8: L.append(f"ds_write_b64 {vr(VR4)}, {vr(PK+16,2)} offset:{d}")
            return L
        xd = [f"ds_read_b128 {vr(XD+4*j,4)}, {vr(VSW+j)}" for j in range(4)]
        self.gemm_u(AQ1, ar, [("v", XA), ("a", 18), ("a", 36), ("a", 54)], ACC, a_tr, lambda j: bq(j) if j else None, lambda u: post(u, False, L_QD),
                    vm_items=wl, other=xd, vmsp=o.get("vmsp", 3))
        self.stamp("g1")
        assert last(SK) > m_g
        for i in range(4): a(f"v_mov_b32 {vr(CL+i)}, -1")
        a(f"s_lshl2_add_u32 {sr(T+2)}, s2, {sr(S_W)}\ns_mul_i32 {sr(T+2)}, {sr(T+2)}, 2560\ns_add_u32 {sr(T+2)}, {sr(T+2)}, {WS_IB}")
        a(f"s_mov_b32 {sr(T+4)}, {f32(LOG2E / 12.0)}\ns_waitcnt vmcnt({self.vm_since(last(SK))}) lgkmcnt(0)\ns_barrier")
        clr = [f"buffer_store_dwordx4 {vr(CL,4)}, {vr(V_DMA)}, {sr(S_WS,4)}, {sr(T+2)} offen sc1",
               f"buffer_store_dwordx4 {vr(CL,4)}, {vr(V_DMA)}, {sr(S_WS,4)}, {sr(T+2)} offen offset:1024 sc1",
               f"buffer_store_dwordx2 {vr(CL,2)}, {vr(L8)}, {sr(S_WS,4)}, {sr(T+2)} offen offset:2048 sc1"]
        self.stamp("bar2")
        self.gemm_u(A_Q, ar, [("a", 18 * j) for j in range(4)], ACC, a_row, lambda j: bq(j, L_QD), lambda u: post(u, True, 0), vm_items=[poll(252)] + clr, vm0=o.get("pg", 12), vmsp=o.get("csp", 8))
        self.stamp("g2")
        p = lambda r: vr(r, 2)
        CC = TM
        for j in range(4): a(f"v_dot2_f32_bf16 {vr(CC+j)}, {vr(PK+4*j)}, {vr(XD+4*j)}, 0")
        for i in range(2): a(f"v_dot2_f32_bf16 {vr(CC)}, {vr(PK+16+i)}, {vr(XA+16+i)}, {vr(CC)}")
        for i in range(1, 4):
            for j in range(4): a(f"v_dot2_f32_bf16 {vr(CC+j)}, {vr(PK+4*j+i)}, {vr(XD+4*j+i)}, {vr(CC+j)}")
        QE = TRQ
        a(f"""s_xor_b32 {sr(T+1)}, {sr(self.NB)}, 1
        v_add_u32 {vr(t0)}, {L_XX}, {vr(V_DMA)}
        v_lshl_add_u32 {vr(QE)}, {sr(T+1)}, 12, {vr(t0)}
        v_lshl_add_u32 {vr(QE+1)}, {sr(self.NB)}, 12, {vr(t0)}""")
        self.treduce(CC)
        a(f"""ds_write_b32 {vr(MXA)}, {vr(CC)}
        v_add_u32 {vr(t0)}, {L_XR}, {vr(L8)}
        v_lshl_add_u32 {vr(QE+2)}, {sr(T+1)}, 9, {vr(t0)}
        v_lshl_add_u32 {vr(QE+3)}, {sr(self.NB)}, 9, {vr(t0)}
        v_lshl_add_u32 {vr(QE+4)}, {sr(T+1)}, 8, {vr(MXR)}
        v_lshl_add_u32 {vr(QE+5)}, {sr(self.NB)}, 8, {vr(MXR)}
        s_sub_u32 {sr(T+5)}, 63, {sr(S_H)}
        s_bfm_b64 {sr(T+8,2)}, {sr(T+5)}, 0
        s_lshr_b32 {sr(T+6)}, s2, 3
        s_lshl_b32 {sr(T+6)}, {sr(T+6)}, 12
        s_add_u32 {sr(T+6)}, {sr(T+6)}, {sr(W10)}
        s_cmp_lg_u32 {sr(S_W)}, 0
        s_cbranch_scc1 L_ga_ok""")
        gate("L_ga", 252, sr(T + 8, 2), 3)
        a("s_waitcnt lgkmcnt(0)\ns_barrier")
        self.stamp("bar3")
        c1 = -2.0 * math.sqrt(2.0 / math.pi) * LOG2E
        c2 = c1 * 0.044715
        qrd = [f"ds_read_b128 {vr(MS+4*qb,4)}, {vr(QE+4+(qb&1))} offset:{512*(qb>>1)}" for qb in range(4)]
        for qb in range(4):
            qrd += [f"ds_read_b128 {ar(A_Q+18*qb+4*s,4)}, {vr(QE+(qb&1))} offset:{8192*(qb>>1) + 1024*s}" for s in range(4)]
            qrd.append(f"ds_read_b64 {ar(A_Q+18*qb+16,2)}, {vr(QE+2+(qb&1))} offset:{1024*(qb>>1)}")
        tg = self.tile_groups(0) + self.tile_groups(1) + self.tile_groups(2)[:8]
        n0 = o.get("n0", 3)
        for k in range(o.get("tpf", 0)):
            a(f"s_add_u32 {sr(T+7)}, {sr(T+6)}, {o.get('tpf0', 4*TILE) + 131072*k}\nbuffer_load_dwordx4 v[252:255], {vr(V_DMA)}, {sr(S_XA,4)}, {sr(T+7)} offen")
        for x in tg[:n0]: a(x)
        a(f"v_mov_b32 {vr(CC)}, {f32(c1)}\nv_mov_b32 {vr(CC+2)}, {f32(c2)}\nv_mov_b32 {vr(CC+4)}, 1.0")
        nq1, nt1 = o.get("nq1", 8), o.get("nt1", 5)
        bgl = []
        for i in range(max(nq1 // 2, nt1)):
            if 2 * i < nq1: bgl.append(qrd[2 * i] + "\n" + qrd[2 * i + 1])
            if i < nt1: bgl.append(tg[n0 + i])
        tg, qrd = tg[n0 + nt1:], qrd[nq1:]
        a.bg, a.every, a.cnt = bgl, 54 // (len(bgl) + 1), 0
        for i in range(18): a(f"v_pk_mul_f32 {p(G_+2*i)}, {p(H+2*i)}, {p(H+2*i)}")
        for i in range(18): a(f"v_pk_fma_f32 {p(G_+2*i)}, {p(G_+2*i)}, {p(CC+2)}, {p(CC)} op_sel_hi:[1,0,0]")
        for i in range(18): a(f"v_pk_mul_f32 {p(G_+2*i)}, {p(G_+2*i)}, {p(H+2*i)}")
        a.flush()
        self.stamp("ge1")
        esp = o.get("esp", 4)
        for i in range(36):
            a(f"v_exp_f32 {vr(G_+i)}, {vr(G_+i)}")
            if i % esp == 1 and tg: a(tg.pop(0))
            if i % 8 == 3 and qrd: a(qrd.pop(0)); a(qrd.pop(0))
        self.stamp("ge2")
        for i in range(18): a(f"v_pk_add_f32 {p(G_+2*i)}, {p(G_+2*i)}, {p(CC+4)} op_sel_hi:[1,0]")
        for i in range(36):
            a(f"v_rcp_f32 {vr(G_+i)}, {vr(G_+i)}")
            if i % esp == 1 and tg: a(tg.pop(0))
            if i % 8 == 3 and qrd: a(qrd.pop(0)); a(qrd.pop(0))
        assert not tg and not qrd
        idx = [i for i, l in enumerate(a.lines) if l.strip().startswith("buffer_load") and l.rstrip().endswith("lds")]
        m_t0, m_t1 = idx[-18] + 1, idx[-9] + 1
        for i in range(18): a(f"v_pk_mul_f32 {p(H+2*i)}, {p(G_+2*i)}, {p(H+2*i)}")
        a(f"""s_mul_i32 {sr(T)}, {sr(WV+1)}, {BLK}
        s_cmp_eq_u32 {sr(S_H)}, 1
        s_cbranch_scc1 L_ln2
        s_add_u32 {sr(T)}, {sr(T)}, {WS_U}""")
        for i in range(18): a(f"v_cvt_pk_bf16_f32 {vr(UG+i)}, {vr(H+2*i)}, {vr(H+2*i+1)}")
        a("s_branch L_ug")
        a.label("L_ln2")
        a(f"s_add_u32 {sr(T)}, {sr(T)}, {WS_G}")
        self.ln_f32(H, UG, TM)
        a.label("L_ug")
        self.stamp("ge3")
        a(f"""s_cmp_eq_u32 {sr(WV)}, 1
        s_cselect_b32 {sr(S_UG)}, {sr(T)}, 0x40000000
        s_waitcnt vmcnt({self.vm_since(m_t0)}) lgkmcnt(0)""")
        for x in self.k_reads(0, V_V): a(x)
        self.ugs = [f"buffer_store_dwordx4 {vr(UG+4*s,4)}, {vr(V_DMA)}, {sr(S_WS,4)}, {sr(S_UG)} offen offset:{1024*s} sc1" for s in range(4)]
        self.ugs.append(f"buffer_store_dwordx2 {vr(UG+16,2)}, {vr(self.VL8)}, {sr(S_WS,4)}, {sr(S_UG)} offen sc1")
        for qb in range(4): a(f"v_pk_add_f32 {p(MS+4*qb)}, {p(MS+4*qb)}, {p(MS+4*qb+2)} neg_lo:[1,1] neg_hi:[1,1]")
        for qb in range(4): a(f"v_add_f32 {vr(self.MK+qb)}, {vr(MS+4*qb)}, {vr(MS+4*qb+1)}")
        a(f"v_lshlrev_b32 {vr(t1)}, 8, v0\nv_lshlrev_b32 v231, 2, v0\nv_add_u32 v231, {L_PC}, v231\nds_write_b32 v231, {vr(t1)}")
        self.loop_init(False)
        self.n_t1 = self.vm_since(m_t1)
        self.stamp("ug")

    def loop_init(self, part):
        a = self.a
        if part:
            for qb in range(4):
                for i in range(4): a(f"v_mov_b32 {vr(V_CI+4*qb+i)}, {vr(self.MK+qb)}")
            return
        for k in range(7): a(f"v_add_u32 {vr(V_HI+k)}, {2*SLOT}, {vr(V_KA+k if k < 5 else V_VB+k-5)}")
        a(f"v_add_u32 {vr(self.VS0)}, {sr(S_LB)}, {vr(V_DMA)}\nv_add_u32 {vr(self.VS0R)}, {sr(S_LB)}, {vr(self.VL8)}\ns_mov_b32 {sr(S_CNT)}, 0\ns_mov_b32 {sr(S_INC)}, {4*TILE}")
        for i in range(4): a(f"v_mov_b32 {vr(V_L+i)}, 0")
        a(f"v_mov_b32 v227, 0x3f803f80\nv_mov_b32 v226, {sr(S_N)}\nv_mov_b32 {vr(self.VPL+1)}, 1\nv_lshlrev_b32 v231, 2, v0\nv_add_u32 v231, {L_PC}, v231")

    def head(self):
        a, o = self.a, self.o
        a.label("L_go")
        self.loop_init(True)
        a("s_waitcnt lgkmcnt(0)\ns_barrier")
        self.stamp("bar5")
        base = self.qk_mfmas(0)
        pick = lambda s_, kb, qb: base[8 * s_ + 4 * kb + qb].replace(vr(V_K + 8 * s_ + 4 * kb, 4) + ",", vr(V_V + 8 * s_ + 4 * kb, 4) + ",").replace(vr(V_K + 32 + 2 * kb, 2) + ",", vr(V_V + 32 + 2 * kb, 2) + ",")
        mf, fin = [], {}
        for qb, s_ in [(0, 0), (0, 1), (0, 2), (0, 3), (1, 0), (1, 1), (0, 4), (1, 2), (1, 3), (2, 0), (2, 1), (1, 4), (2, 2), (2, 3), (3, 0), (3, 1), (2, 4),
                       (3, 2), (3, 3), (3, 4)]:
            for kb in range(2):
                fin[qb, kb] = len(mf)
                mf.append(("s_nop 3\n" if (qb, s_, kb) == (3, 4, 0) else "") + pick(s_, kb, qb))
        enew = [e[1] for g in range(40, 76) for e in self.gaps[g] if e[0] == "E"]
        items = self.e_items(0, enew, lambda qb, j: 0, lambda qb: 999)
        for it, e in zip(items, enew):
            if e[0] == "e": it["am"] = fin[e[1], e[2] // 4]
        dm = []
        for k, (slot, j) in enumerate([(2, 8)] + [(3, j) for j in range(9)]):
            g_ = 1 + o.get("hsp", 4) * k
            if j % 4 == 0: dm.append(dict(t=f"s_add_u32 m0, {sr(S_LB)}, {slot*SLOT + 4096*(j//4)}", c=0, lo=g_ - 1, hi=g_ - 1))
            dm.append(dict(t=f"buffer_load_dwordx4 {vr(V_DMA + j//4)}, {sr(S_XA,4)}, {sr(S_TOFF)} offen offset:{1024*(j%4)} lds", c=8, lo=g_, hi=g_))
            if j == 8: dm.append(dict(t=f"s_add_u32 {sr(S_TOFF)}, {sr(S_TOFF)}, {4*TILE}", c=0, lo=g_ + 1, hi=g_ + 1))
        nh = o.get("ugh", 2) if not o.get("ugl", 0) else 0
        for k in range(nh): dm.append(dict(t=self.ugs[k], c=8, lo=3 + 16 * k, hi=3 + 16 * k))
        a(f"s_waitcnt vmcnt({self.n_t1})")
        left = self.pack(mf, items + dm + [dict(t=x, c=4, lo=i // 2, nds=2) for i, x in enumerate(self.k_reads(1))])
        print("head overflow", self.over, "left", len(left))
        left.sort(key=lambda x: not x.startswith("v_exp"))
        last = a.lines[-1].strip()
        for x in left:
            if last.startswith("v_exp") and not x.startswith("v_exp") and (last.split()[1].rstrip(",") + ",") in (x + ","): a("s_nop 0")
            a(x); last = x
        a("s_waitcnt lgkmcnt(0)")

    def tile_groups(self, slot):
        out = []
        for j in range(9):
            g = ""
            if j % 4 == 0: g = f"s_add_u32 m0, {sr(S_LB)}, {slot*SLOT + 4096*(j//4)}\ns_nop 0\n"
            g += f"buffer_load_dwordx4 {vr(V_DMA + j//4)}, {sr(S_XA,4)}, {sr(S_TOFF)} offen offset:{1024*(j%4)} lds"
            if j == 8: g += f"\ns_add_u32 {sr(S_TOFF)}, {sr(S_TOFF)}, {4*TILE}"
            out.append(g)
        return out

    def first_tiles(self):
        pass

    def wfuse(self):
        a = self.a
        BF, ACC, AF, TM, AD = 88, 108, 144, 208, 240
        LA, LB_, LM = 0, 44032, 88064
        T = S_T
        a.label("L_wfuse")
        a(f"s_add_u32 s2, s2, {NH}\ns_cmp_ge_u32 s2, {NH}\ns_cbranch_scc1 L_end")
        a(f"v_lshrrev_b32 v1, 6, v0\nv_and_b32 v0, 63, v0\nv_readfirstlane_b32 {sr(S_W)}, v1\nv_lshlrev_b32 {vr(V_DMA)}, 4, v0\ns_waitcnt lgkmcnt(0)")
        self.srd(S_WS, 78, 79, WS_END)
        self.srd(S_DB, 76, 77, 256)
        self.wf0 = 0
        self.srd(S_X, 72, 73, 82944)
        self.srd(S_W2, 62, 63, 41472)
        a(f"""s_cmp_eq_u32 s2, {self.wf0}
        s_cselect_b32 {sr(S_W1)}, s64, s70
        s_cselect_b32 {sr(S_W1+1)}, s65, s71
        s_mov_b32 {sr(S_W1+2)}, 41472
        s_mov_b32 {sr(S_W1+3)}, 0x20000
        s_cselect_b32 {sr(T+4)}, 0, 41472""")
        self.dma_rows([(S_W1, "0", LA), (S_W2, "0", LB_)], 19, 288, TM + 4, TM + 5, 11, 3, "L_wf1")
        a(f"s_lshl_b32 {sr(T)}, {sr(S_W)}, 10\ns_add_u32 {sr(T+2)}, {sr(T)}, {sr(T+4)}")
        for k in range(11):
            if k == 10: a(f"s_cmp_ge_u32 {sr(S_W)}, 1\ns_cbranch_scc1 L_wf2")
            a(f"s_add_u32 m0, {sr(T)}, {LM + 4096*k}\ns_add_u32 {sr(T+1)}, {sr(T+2)}, {4096*k}")
            a(f"buffer_load_dwordx4 {vr(V_DMA)}, {sr(S_X,4)}, {sr(T+1)} offen lds")
        a.label("L_wf2")
        self.srd(S_DW, 68, 69, 864)
        a(f"""v_and_b32 {vr(TM)}, 15, v0
        v_lshlrev_b32 {vr(TM+2)}, 4, {vr(TM)}
        v_lshlrev_b32 {vr(TM)}, 1, {vr(TM)}
        v_bfe_u32 {vr(TM+3)}, v0, 4, 1
        v_lshl_add_u32 {vr(TM+1)}, {vr(TM+3)}, 7, {vr(TM)}
        v_lshl_add_u32 {vr(TM+2)}, {vr(TM+3)}, 11, {vr(TM+2)}
        v_and_b32 {vr(TM+3)}, 1, v0
        v_lshlrev_b32 {vr(TM+3)}, 4, {vr(TM+3)}
        v_bfe_i32 {vr(TM+4)}, v0, 1, 1
        v_not_b32 {vr(TM+5)}, {vr(TM+4)}""")
        for k in range(3):
            for i in range(5): a(f"buffer_load_ushort {vr(16+5*k+i)}, {vr(TM+1 if i < 4 else TM)}, {sr(S_DW,4)}, 0 offen offset:{288*k + (32*i if i < 4 else 256)}")
        a(f"s_mov_b32 {sr(T+1)}, {WS_DWF}\ns_waitcnt vmcnt(0)")
        for f in range(15):
            a(f"v_lshlrev_b32 {vr(16+f)}, {vr(TM+3)}, {vr(16+f)}\nv_and_b32 {vr(32+2*f)}, {vr(TM+5)}, {vr(16+f)}\nv_and_b32 {vr(33+2*f)}, {vr(TM+4)}, {vr(16+f)}")
        for r_ in range(8): a(f"buffer_store_dwordx{4 if r_ < 7 else 2} {vr(32+4*r_, 4 if r_ < 7 else 2)}, {vr(TM+2)}, {sr(S_WS,4)}, {sr(T+1)} offen offset:{256*r_} sc1")
        self.tr_addr(AD, LM, False, TM + 8)
        self.row_addr(AD + 3, LA, TM + 8)
        a(f"v_add_u32 {vr(AD+5)}, {LB_}, {vr(AD+3)}")
        a(f"v_lshlrev_b32 {vr(AD+4)}, 3, v0")
        a(f"""s_lshr_b32 {sr(T)}, {sr(S_W)}, 1
        s_lshl_b32 {sr(T)}, {sr(T)}, 6
        s_and_b32 {sr(T+1)}, {sr(S_W)}, 1
        s_lshl_b32 {sr(T+1)}, {sr(T+1)}, 3
        s_add_u32 {sr(T)}, {sr(T)}, {sr(T+1)}
        v_and_b32 {vr(AD+6)}, 3, v0
        v_lshlrev_b32 {vr(AD+6)}, 3, {vr(AD+6)}
        v_add_u32 {vr(AD+7)}, {sr(T)}, {vr(AD+6)}""")
        for k in range(3): a(f"v_add_u32 {vr(AD+k)}, {vr(AD+7)}, {vr(AD+k)}")
        a(f"s_mov_b32 {sr(S_CNT)}, {sr(S_W)}")
        a("s_waitcnt vmcnt(0)\ns_barrier")
        a.label("L_wfl")
        for s in self.tr_reads(AD, vr)(0, BF): a(s)
        a("s_waitcnt lgkmcnt(0)")
        self.gemm(self.row_reads(AD + 3), BF, ACC, AF)
        for i in range(18): a(f"v_cvt_pk_bf16_f32 {vr(BF+i)}, {vr(ACC+2*i)}, {vr(ACC+2*i+1)}")
        a(f"s_cmp_eq_u32 s2, {self.wf0}\ns_cbranch_scc0 L_wf3")
        self.gemm(self.row_reads(AD + 5), BF, ACC, AF)
        for i in range(18): a(f"v_cvt_pk_bf16_f32 {vr(BF+i)}, {vr(ACC+2*i)}, {vr(ACC+2*i+1)}")
        a.label("L_wf3")
        a(f"""s_mul_i32 {sr(T)}, {sr(S_CNT)}, {BLK}
        s_add_u32 {sr(T)}, {sr(T)}, {sr(T+4)}
        s_add_u32 {sr(T)}, {sr(T)}, {WS_WF}
        s_add_u32 {sr(T+1)}, {sr(T)}, 4096""")
        self.store_block(BF, V_DMA, AD + 4, S_WS, T, T + 1, "sc1")
        for k in range(3): a(f"v_add_u32 {vr(AD+k)}, 128, {vr(AD+k)}")
        a(f"s_add_u32 {sr(S_CNT)}, {sr(S_CNT)}, 4\ns_cmp_lt_u32 {sr(S_CNT)}, 8\ns_cbranch_scc1 L_wfl")
        for k in range(3): a(f"v_sub_u32 {vr(AD+k)}, {vr(AD+k)}, {vr(AD+6)}")
        a(f"s_cmp_eq_u32 {sr(S_CNT)}, 8\ns_cbranch_scc1 L_wfl")
        a(f"""s_waitcnt vmcnt(0)
        s_barrier
        s_cmp_lg_u32 {sr(S_W)}, 0
        s_cbranch_scc1 L_end
        s_mov_b32 {sr(T+2)}, 0""")
        a.label("L_wtag")
        a(f"""buffer_load_dword {vr(TM)}, off, {sr(S_DB,4)}, 0 sc1
        s_add_u32 {sr(T+2)}, {sr(T+2)}, 1
        s_waitcnt vmcnt(0)
        v_readfirstlane_b32 {sr(T)}, {vr(TM)}
        s_cmp_lt_u32 {sr(T+2)}, 0x40000
        s_cselect_b32 {sr(T)}, {sr(T)}, 1
        s_cmp_eq_u32 {sr(T)}, 0
        s_cbranch_scc1 L_wtag
        v_lshlrev_b32 {vr(TM+1)}, 2, v0
        s_lshl_b32 {sr(T)}, s2, 8
        s_add_u32 {sr(T)}, {sr(T)}, {WS_F + 502*256}
        buffer_store_dword {vr(TM)}, {vr(TM+1)}, {sr(S_WS,4)}, {sr(T)} offen sc1
        s_endpgm""")

    def dump_stamps(self):
        a = self.a
        if self.o.get("census"):
            key, mode, m_, v_ = self.o["census"]
            a(f"""s_cmp_lg_u32 s2, 100
            s_cbranch_scc1 L_end
            v_lshlrev_b32 v16, 2, v0
            s_mov_b32 s4, {WS_DBG}""")
            for k in range(4): a(f"buffer_load_dword v{20+k}, v16, {sr(S_WS,4)}, s4 offen offset:{256*k} sc1")
            a(f"s_waitcnt vmcnt(0)\nv_readlane_b32 s8, v21, 36\ns_mov_b32 s9, 0x80000000\ns_mov_b32 s10, 0x7fffffff\ns_mov_b32 s11, 0\ns_mov_b32 s17, 0")
            for k in range(4):
                a(f"s_mov_b32 s5, 0")
                a.label(f"L_cs{k}")
                a(f"""v_readlane_b32 s6, v{20+k}, s5
                s_add_u32 s7, s5, {64*k}
                s_sub_u32 s6, s6, s8
                s_and_b32 s16, s7, {m_}
                s_cmp_lg_u32 s16, {v_}
                s_cbranch_scc1 L_cn{k}
                s_min_i32 s10, s10, s6
                s_cmp_gt_i32 s6, {self.o.get("thr", 150)}
                s_addc_u32 s17, s17, 0
                s_cmp_gt_i32 s6, s9
                s_cselect_b32 s9, s6, s9
                s_cselect_b32 s11, s7, s11""")
                a.label(f"L_cn{k}")
                a(f"s_add_u32 s5, s5, 1\ns_cmp_lt_u32 s5, {64 if k < 3 else 60}\ns_cbranch_scc1 L_cs{k}")
            a({"arg": "s_lshl_b32 s6, s11, 3", "range": "s_sub_u32 s6, s9, s10\ns_lshl_b32 s6, s6, 1", "zero": "s_mov_b32 s6, 0", "cnt": "s_lshl_b32 s6, s17, 4",
               "max": "s_lshl_b32 s6, s9, 1"}[mode])
            a("s_add_u32 s6, s6, 1000\ns_memrealtime s[4:5]\ns_waitcnt lgkmcnt(0)\ns_add_u32 s6, s6, s4")
            a.label("L_echo")
            a("s_memrealtime s[4:5]\ns_waitcnt lgkmcnt(0)\ns_sub_u32 s7, s6, s4\ns_cmp_gt_i32 s7, 0\ns_cbranch_scc1 L_echo")
            return
        if self.o.get("echo"):
            if self.o["echo"][0] == "skew":
                a(f"v_mov_b32 v16, 4\nbuffer_load_dword v17, v16, {sr(S_DB,4)}, 0 offen sc1\ns_waitcnt vmcnt(0)\nv_readfirstlane_b32 s98, v17\ns_not_b32 s98, s98")
                x, y = 98, S_ST + 2 * self.stnames.index(self.o["echo"][1])
            else:
                x, y = [S_ST + 2 * self.stnames.index(n) for n in self.o["echo"]]
            lo, hi = self.o.get("echo_ids", (0, 999))
            a(f"""s_cmp_eq_u32 {sr(S_VAL)}, 0
            s_cbranch_scc1 L_end
            s_cmp_lt_u32 s2, {lo}
            s_cbranch_scc1 L_end
            s_cmp_ge_u32 s2, {hi}
            s_cbranch_scc1 L_end
            s_and_b32 s6, s2, {self.o.get("echo_m", 0)}
            s_cmp_lg_u32 s6, {self.o.get("echo_v", 0)}
            s_cbranch_scc1 L_end
            s_memrealtime s[4:5]
            s_waitcnt lgkmcnt(0)
            s_sub_u32 s6, {sr(y)}, {sr(x)}
            s_mul_i32 s6, s6, {self.o.get("echo_mul", 1)}
            s_lshr_b32 s6, s6, {self.o.get("echo_shr", 0)}
            s_add_u32 s6, s6, {self.o.get("echo_add", 0)}
            s_add_u32 s6, s6, s4""")
            a.label("L_echo")
            a("s_memrealtime s[4:5]\ns_waitcnt lgkmcnt(0)\ns_sub_u32 s7, s6, s4\ns_cmp_gt_i32 s7, 0\ns_cbranch_scc1 L_echo")
            return
        if self.o.get("dbgst"):
            a("s_waitcnt vmcnt(0)")
            self.stamp("done")
            a("s_waitcnt lgkmcnt(0)\ns_mov_b64 exec, 1")
            slots = [1, 2, 3, 4, 5, 6, 7, 9, 11, 12, 13, 14, 15]
            a(f"s_not_b32 {sr(S_T)}, {sr(S_ST)}\nv_mov_b32 v16, {sr(S_T)}\nv_mov_b32 v17, 4\nbuffer_atomic_umax v16, v17, {sr(S_DB,4)}, 0 offen sc1")
            for i in range(min(self.nst, 12)):
                a(f"v_mov_b32 v{18+2*i}, {sr(S_ST+2*i)}\nv_mov_b32 v{19+2*i}, {4*slots[i+1]}\nbuffer_atomic_umax v{18+2*i}, v{19+2*i}, {sr(S_DB,4)}, 0 offen sc1")
            return
        if not self.o.get("stamps"): return
        T = S_T
        a(f"""s_waitcnt lgkmcnt(0)
        s_lshl_b32 {sr(T)}, s2, 2
        s_add_u32 {sr(T)}, {sr(T)}, {sr(S_W)}
        s_lshl_b32 {sr(T)}, {sr(T)}, 7
        s_add_u32 {sr(T)}, {sr(T)}, {WS_DBG}
        v_mov_b32 v1, 0""")
        for i in range(26): a(f"v_mov_b32 {vr(16+i)}, {sr(S_ST+i)}")
        for i in range(7): a(f"buffer_store_dwordx4 {vr(16+4*i,4)}, v1, {sr(S_WS,4)}, {sr(T)} offen offset:{16*i}")

    def build(self):
        a = self.a
        self.stnames = []
        a.raw(f"; @launch grid=({NWG},1,1) block=(256,1,1) lds={LDS_TOTAL}")
        a.raw('.amdgcn_target "amdgcn-amd-amdhsa--gfx950"')
        a.raw(".text")
        a.raw(f".globl {NAME}")
        a.raw(".p2align 12")
        self.entry()
        self.phase_a()
        self.rest()
        a.label("L_fin")
        self.dump_stamps()
        a.label("L_end")
        a("s_endpgm")
        self.poll2()
        if not self.o.get("touch", 1): self.rare()
        a.label("L_dummy")
        self.fallback()
        self.wfuse()
        a.raw('.section .rodata,"a"')
        a.raw(".p2align 6")
        a.raw(kernel_desc(NAME, 512, 102, 256))
        return a.text()

    def S(self, buf, qb, i=0): return V_S + buf * 32 + qb * 8 + i
    def P(self, buf, qb, i=0): return V_P + buf * 16 + qb * 4 + i

    def k_reads(self, slot, V_K=V_K):
        ka, so = (V_KA, slot * SLOT) if slot < 2 else (V_HI, (slot - 2) * SLOT)
        out = [f"ds_read_b128 {vr(V_K+8*s+4*kb,4)}, {vr(ka)} offset:{so + 2048*s + 256*kb}" for s in range(4) for kb in range(2)]
        out += [f"ds_read_b64 {vr(V_K+32+2*kb,2)}, {vr(ka+1)} offset:{so + 8192 + 512*kb}" for kb in range(2)]
        return out

    def v_reads(self, slot, dst=V_V):
        (va, vr_, vb), so = ((V_VA, V_VR, V_VB), slot * SLOT) if slot < 2 else ((V_HI + 2, V_HI + 4, V_HI + 5), (slot - 2) * SLOT)
        out = []
        for T in range(9):
            for u in range(2):
                if T < 8: out.append(f"ds_read_b64_tr_b16 {vr(dst+4*T+2*u,2)}, {vr((va if T < 4 else vb)+(T&1))} offset:{so + 2048*((T>>1)&1) + 256*u}")
                else: out.append(f"ds_read_b64_tr_b16 {vr(dst+4*T+2*u,2)}, {vr(vr_)} offset:{so + 8192 + 512*u}")
        return out

    def qk_mfmas(self, buf, czero=False):
        out = []
        for s in range(5):
            for kb in range(2):
                for qb in range(4):
                    d = vr(self.S(buf, qb, 4 * kb), 4)
                    c = ("0" if czero else vr(V_CI + 4 * qb, 4)) if s == 0 else d
                    if s < 4: out.append(f"v_mfma_f32_16x16x32_bf16 {d}, {vr(V_K+8*s+4*kb,4)}, {ar(A_Q+18*qb+4*s,4)}, {c}")
                    else: out.append(f"v_mfma_f32_16x16x16_bf16 {d}, {vr(V_K+32+2*kb,2)}, {ar(A_Q+18*qb+16,2)}, {c}")
        return out

    def pv_mfmas(self, buf, czero=False):
        out = []
        for T in range(9):
            for qb in range(4):
                o = ar(A_O + 36 * qb + 4 * T, 4)
                out.append(f"v_mfma_f32_16x16x32_bf16 {o}, {vr(V_V+4*T,4)}, {vr(self.P(buf,qb),4)}, {'0' if czero else o}")
        return out

    def plan(self):
        o = self.o
        n = 76
        fixed = [None] * n
        for i, g in enumerate(range(1, 36, 2)): fixed[g] = ("V", i)
        for i, g in enumerate([41, 44, 47, 50, 53, 56, 59, 62, 65, 68]): fixed[g] = ("K", i)
        for i, g in enumerate([42, 46, 49, 52, 55, 58, 61, 64, 67]): fixed[g] = ("D", i)
        exps = [(qb, j) for qb in range(4) for j in range(8)]
        start = 40
        order = [(start + k) % n for k in range(n)]
        free_idx = [k for k, g in enumerate(order) if fixed[g] is None]
        nsm = len(free_idx) - 32
        cand = free_idx[6:-2]
        sm_set = set(free_idx[-2:]) | {cand[int((i + 0.5) * len(cand) / (nsm - 2))] for i in range(nsm - 2)}
        nds = sum(1 for f in fixed if f is not None and f[0] != "D")
        ls = o.get("lsum", "add")
        over = max(0, (48 if ls == "add" else 32) - nds - 2 * nsm)
        ocand = [k for k, g in enumerate(order) if k >= 20 and (fixed[g] is None or fixed[g][0] != "D")]
        o_set = {ocand[int((i + 0.5) * len(ocand) / over)] for i in range(over)}
        later = []
        gaps = [[] for _ in range(n)]
        small, pend, ei = [], [], 0
        for k, g in enumerate(order):
            new = (start + k) < n
            small.extend(pend); pend = later; later = []
            small.sort(key=lambda t: 0 if t[0] == "c" else 1)
            f = fixed[g]
            want = 0
            if f is not None:
                gaps[g].append((f[0], f[1], None))
                if f[0] == "D": continue
                want = 1
            elif k in sm_set: want = 2
            else:
                qb, j = exps[ei]; ei += 1
                gaps[g].append(("E", ("e", qb, j), new))
                if j & 1: pend.append(("c", qb, j // 2))
                if ls == "add": pend.append(("a", qb, j))
                elif j & 1 and ls == "pk": pend.append(("p", qb, j // 2))
            if k in o_set: want += 1
            if k == n - 1: want = 99
            for _ in range(want):
                if small:
                    it = small.pop(0)
                    gaps[g].append(("E", it, new))
                    if it[0] == "c" and ls == "dot": (small if k == n - 1 else pend).append(("d", it[1], it[2]))
        assert not small and not pend and ei == 32
        self.gaps = gaps

    def pack(self, mf, items):
        a = self.a
        where, order, done, nvm, mpos = {}, [], 0, 0, []
        isds = lambda it: "ds_" in it["t"]
        self.over = 0
        for g, m in enumerate(mf):
            assert not any(it.get("need", 999) <= g and i not in where for i, it in enumerate(items)), g
            idx = [k for k, n_ in enumerate(order) if n_ <= g]
            if idx and max(idx) + 1 > done:
                a(f"s_waitcnt lgkmcnt({min(15, len(order) - 1 - max(idx))})"); done = max(idx) + 1
            if m.startswith("@W"):
                w_, m = m.split("\n", 1)
                a(f"s_waitcnt lgkmcnt({min(15, int(w_[2:]) + len(order))})")
            a(m)
            mpos.append(len(a.lines))
            cap, pick = 8, []
            for phase in (0, 1):
                for i, it in enumerate(items):
                    if i in where or it.get("lo", 0) > g: continue
                    if "am" in it and (it["am"] >= g or len(a.lines) - mpos[it["am"]] < 8): continue
                    d = it.get("dep")
                    if d is not None and not all(where.get(x, 999) < g for x in d): continue
                    if (phase == 0 and it.get("hi", 999) <= g) or (phase == 1 and it["c"] <= cap):
                        if it["t"].startswith("buffer") and pick and any(items[x]["c"] for x in pick) and phase == 1: continue
                        if isds(it) and sum(isds(items[x]) for x in pick) >= it.get("nds", 1) and phase == 1: continue
                        pick.append(i); where[i] = g; cap -= it["c"]
            key = lambda i: 0 if items[i]["c"] == 0 else 1 if isds(items[i]) else 2 if items[i]["t"].startswith("buffer") else 3
            for i in sorted(pick, key=key):
                a(items[i]["t"].replace("@VM", f"s_waitcnt vmcnt({nvm})"))
                nvm += items[i]["t"].startswith("buffer")
                if isds(items[i]): order.append(items[i].get("need", 999))
            self.over += max(0, -cap)
        return [it["t"] for i, it in enumerate(items) if i not in where]

    def e_items(self, buf, lst, lo, hi):
        items, idx = [], {}
        for it in lst:
            kind, qb, j = it
            d = dict(t=self.etext(buf, it), c=8 if kind == "e" else 4)
            if kind == "e": d["lo"] = lo(qb, j); d["hi"] = hi(qb) - 2 - (7 - j)
            else:
                need = [("e", qb, j)] if kind == "a" else [("c", qb, j)] if kind == "d" else [("e", qb, 2 * j), ("e", qb, 2 * j + 1)]
                d["dep"] = [idx[x] for x in need if x in idx]
                if kind == "c": d["hi"] = hi(qb) - (3 - j) // 2
            idx[it] = len(items); items.append(d)
        return items

    def etext(self, buf, it):
        kind, qb, j = it
        s = self.S(buf, qb)
        if kind == "e": return f"v_exp_f32 {vr(s+j)}, {vr(s+j)}"
        if kind == "d": return f"v_dot2_f32_bf16 {vr(V_L+qb)}, {vr(self.P(buf, qb, j))}, v227, {vr(V_L+qb)}"
        if kind == "p": return f"v_pk_add_f32 {vr(208+2*qb,2)}, {vr(208+2*qb,2)}, {vr(s+2*j,2)}"
        if kind == "a": return f"v_add_f32 {vr(V_L+qb)}, {vr(V_L+qb)}, {vr(s+j)}"
        return f"v_cvt_pk_bf16_f32 {vr(self.P(buf, qb, j))}, {vr(s+2*j)}, {vr(s+2*j+1)}"

    def period(self, p, qk=True, pv=True, e_old=True, e_new=True, kread=True, vread=True, dma=True, extra={}, dsub=None, ksub=None, vm=9, halves=(0, 1), inc=None):
        a = self.a
        bn, bo = (p + 1) & 1, p & 1
        qk_, pv_ = self.qk_mfmas(bn), self.pv_mfmas(bo, czero=(p == 0))
        qo, po = self.o.get("qkord", 1), self.o.get("pvord", 0)
        if qo == 1: qk_ = [qk_[8 * s_ + 4 * kb + qb] for kb in range(2) for qb in range(4) for s_ in range(4)] + qk_[32:]
        if qo == 2: qk_ = [qk_[8 * s_ + 4 * kb + qb] for qb in range(4) for kb in range(2) for s_ in range(4)] + qk_[32:]
        if qo == 3: qk_ = [qk_[8 * s_ + 4 * kb + qb] for qb in range(4) for s_ in range(4) for kb in range(2)] + qk_[32:]
        if po == 1: pv_ = [pv_[4 * T_ + qb] for qb in range(4) for T_ in range(9)]
        mf = qk_ + pv_
        kr, vrd = self.k_reads((p + 2) % RING), self.v_reads(p % RING)
        slot = p % RING
        n = 76
        sc = [[] for _ in range(n)]
        dgs = [g for g in range(n) if any(e[0] == "D" for e in self.gaps[g])]
        if dma:
            for j, g in enumerate(dgs):
                if j % 4 == 0: sc[g - 1].append(f"s_add_u32 m0, {sr(S_LB)}, {slot*SLOT + 4096*(j//4)}")
            sc[dgs[-1] + 1].append(f"s_add_u32 {sr(S_TOFF)}, {sr(S_TOFF)}, {inc or 4*TILE}")
        w = []
        if kread: w.append(f"vmcnt({vm})")
        if pv: w.append("lgkmcnt(0)")
        if w: sc[39].append("s_waitcnt " + " ".join(w))
        if kread: sc[75].append("s_waitcnt lgkmcnt(0)")
        for half in halves:
            rng = range(0, 40) if half == 0 else range(40, 76)
            on = qk if half == 0 else pv
            if not on:
                ds, mem, val, post = [], [], [], []
                for g in rng:
                    for s_ in sc[g]:
                        (post if s_.startswith("s_waitcnt") else mem).append(s_)
                    if g in extra: mem.append(extra[g])
                    for kind, d, new in self.gaps[g]:
                        if kind == "V" and vread: ds.append(vrd[d])
                        elif kind == "K" and kread: ds.append(kr[d])
                        elif kind == "D" and dma: mem.append(f"buffer_load_dwordx4 {vr(V_DMA + d//4)}, {sr(S_XA,4)}, {sr(S_TOFF)} offen offset:{1024*(d%4)} lds")
                        elif kind == "E" and ((new and e_new) or (not new and e_old)): val.append((d, self.etext(bn if new else bo, d)))
                if half == 1: a("s_nop 3")
                seq, pend = [], list(val)
                while pend:
                    k = 0
                    if seq and seq[-1][0][0] == "e":
                        le = seq[-1][0]
                        dep = lambda it: it[0][1] == le[1] and ((it[0][0] == "a" and it[0][2] == le[2]) or (it[0][0] == "c" and it[0][2] == le[2] // 2))
                        have = {x[0] for x in seq}
                        ok = lambda it: it[0][0] == "e" or (("e", it[0][1], it[0][2]) in have if it[0][0] == "a" else (("e", it[0][1], 2*it[0][2]+1) in have)) or not any(x[0][0] == "e" and x[0][1] == it[0][1] and (x[0][2] == it[0][2] if it[0][0] == "a" else x[0][2] // 2 == it[0][2]) for x in pend)
                        while k < len(pend) and (dep(pend[k]) or not ok(pend[k])): k += 1
                        if k == len(pend): seq.append((("n", 0, 0), "s_nop 0")); k = 0
                    seq.append(pend.pop(k))
                step = max(1, len(seq) // (len(mem) + len(ds) + 1))
                allm = ds + mem
                for x in allm[:6]: a(x)
                allm = allm[6:]
                for i_, (d, t_) in enumerate(seq):
                    a(t_)
                    if allm and i_ % step == step - 1:
                        x = allm.pop(0); a(x)
                        if x.startswith("s_add_u32 m0"): a("s_nop 0")
                for x in allm:
                    a(x)
                    if x.startswith("s_add_u32 m0"): a("s_nop 0")
                for x in post: a(x)
                if half == 0: a("s_nop 1")
                continue
            for g in rng:
                a(mf[g])
                for s_ in sc[g]: a(s_)
                if g in extra: a(extra[g])
                for kind, d, new in self.gaps[g]:
                    if kind == "V":
                        if vread: a(vrd[d])
                    elif kind == "K":
                        if kread: a(kr[d])
                        elif ksub: a(ksub.pop(0))
                    elif kind == "D":
                        if dma: a(f"buffer_load_dwordx4 {vr(V_DMA + d//4)}, {sr(S_XA,4)}, {sr(S_TOFF)} offen offset:{1024*(d%4)} lds")
                        elif dsub: a(dsub.pop(0))
                    elif (new and e_new) or (not new and e_old):
                        a(self.etext(bn if new else bo, d))

    MK, VO, VO8, GA, VS0, VS0R, VDW, VLW, VL8, VST, VPL = 232, 236, 9, 238, 250, 251, 244, 245, 246, 247, 248
    NB, PT, E_U, E_G, RS3, E_COL, RS1, RS2, MP1 = 3, 4, 5, 6, 7, 43, 36, 37, 38
    G0, GM, GP, U, DWT = 16, 26, 36, 80, (90, 252, 96, 100, 112, 116, 104, 94)
    XRS = (192, 196, 46)
    frag = staticmethod(lambda f, b: [(f, b + 4 * s) for s in range(5)])
    WD = [[("a", 216 + 4 * s) for s in range(5)], [("a", 234 + 4 * s) for s in range(5)], [("v", 208 + 4 * s) for s in range(5)]]
    WO = [[("a", 4 * s) for s in range(5)], [("a", 18 + 4 * s) for s in range(5)], [("a", 36), ("a", 40), ("a", 44), ("a", 48), ("a", 252)]]
    X1B = 98304
    X2O = L_SP - X1B
    L_L = L_SP + 9216

    def epi_setup(self):
        a = self.a
        T = S_T
        NB, PT, VO, GA = self.NB, self.PT, self.VO, self.GA
        r, g4, x, y, big, r0 = 52, 53, 54, 55, 56, 57
        a(f"""s_lshr_b32 {sr(NB)}, {sr(S_W)}, 1
        s_and_b32 {sr(PT)}, {sr(S_W)}, 1
        v_and_b32 {vr(r0)}, 15, v0
        v_lshrrev_b32 {vr(g4)}, 4, v0
        v_mul_u32_u24 {vr(x)}, 288, {vr(r0)}
        v_mov_b32 {vr(big)}, 0x40000000
        s_lshl_b32 {sr(T)}, {sr(S_TOWN)}, 1
        s_add_u32 {sr(T)}, {sr(T)}, {sr(NB)}
        s_lshl_b32 {sr(T)}, {sr(T)}, 4
        v_add_u32 {vr(r)}, {sr(T)}, {vr(r0)}
        s_mul_i32 {sr(T+1)}, {sr(S_TOWN)}, {TILE}
        s_mul_i32 {sr(T+2)}, {sr(PT)}, {BLK}
        v_add_u32 {vr(x)}, {sr(T+1)}, {vr(x)}
        s_sub_u32 {sr(T+3)}, {BLK}, {sr(T+2)}
        v_add_u32 {vr(y)}, {sr(T+3)}, {vr(x)}
        v_add_u32 {vr(x)}, {sr(T+2)}, {vr(x)}
        v_lshl_add_u32 {vr(VO)}, {vr(g4)}, 4, {vr(x)}
        v_lshl_add_u32 {vr(VO+1)}, {vr(g4)}, 4, {vr(y)}
        v_lshl_add_u32 {vr(self.VO8)}, {vr(g4)}, 3, {vr(x)}
        s_lshl_b32 {sr(T+3)}, {sr(PT)}, 11
        s_add_u32 {sr(self.E_U)}, {sr(T+3)}, {WS_U}
        s_add_u32 {sr(self.E_G)}, {sr(T+3)}, {WS_G}
        s_sub_u32 {sr(T+3)}, 4096, {sr(T+3)}
        s_lshl_b32 {sr(T)}, {sr(PT)}, 11
        s_add_u32 {sr(T)}, {sr(T)}, {WS_DWF}
        v_lshrrev_b32 {vr(x)}, 2, {vr(r0)}
        v_cmp_eq_u32 vcc, {vr(x)}, {vr(g4)}
        v_lshl_add_u32 {vr(self.VDW)}, {vr(r0)}, 4, {sr(T)}
        s_nop 0
        v_cndmask_b32 {vr(self.VDW)}, {vr(big)}, {vr(self.VDW)}, vcc
        s_lshl_b32 {sr(self.E_COL)}, {sr(S_W)}, 6
        v_lshlrev_b32 {vr(self.VL8)}, 3, v0
        v_add_u32 {vr(self.VL8)}, 4096, {vr(self.VL8)}
        v_add_u32 {vr(self.VST)}, {sr(S_LB)}, {vr(V_DMA)}
        v_add_u32 {vr(self.VST)}, {2*SLOT}, {vr(self.VST)}
        s_xor_b32 {sr(T)}, {sr(NB)}, 1
        v_xor_b32 {vr(x)}, {sr(T)}, {vr(g4)}
        v_lshl_add_u32 {vr(x)}, {vr(x)}, 4, {vr(r0)}
        s_lshl_b32 {sr(T)}, {sr(S_W)}, 2
        s_add_u32 {sr(T)}, {sr(T)}, {self.L_L}
        v_lshl_add_u32 {vr(self.VLW)}, {vr(x)}, 4, {sr(T)}
        s_sub_u32 {sr(self.MP1)}, 0, {sr(PT)}
        s_mov_b32 {sr(self.MP1+1)}, {sr(self.MP1)}""")
        for k, (d, base) in enumerate(((self.RS1, 3 * SLOT), (self.RS2, 2 * SLOT), (self.RS3, 2 * SLOT))):
            a(f"s_xor_b32 {sr(T)}, {sr(S_W)}, {k+1}\ns_mul_i32 {sr(T)}, {sr(T)}, {TILE}\ns_add_u32 {sr(d)}, {sr(T)}, {base}")
        a(f"""s_mul_i32 {sr(T)}, {sr(S_B)}, 4000
        s_add_u32 {sr(T+1)}, {sr(T)}, 3999
        s_mov_b32 {sr(T+2)}, {BLK}""")
        for k, dr in enumerate((0, -1, 1)):
            m = GA + 2 * k
            if dr: a(f"v_add_u32 {vr(m)}, {dr}, {vr(r)}\nv_cmp_eq_u32 vcc, {sr(T if dr < 0 else T+1)}, {vr(r)}")
            src = m if dr else r
            a(f"""v_lshrrev_b32 {vr(x)}, 4, {vr(src)}
            v_and_b32 {vr(y)}, 15, {vr(src)}
            v_mul_lo_u32 {vr(x)}, {vr(x)}, {sr(T+2)}
            v_lshl_add_u32 {vr(y)}, {vr(g4)}, 4, {vr(y)}
            v_lshl_add_u32 {vr(m)}, {vr(y)}, 4, {vr(x)}
            v_lshl_add_u32 {vr(m+1)}, {vr(y)}, 3, {vr(x)}
            v_add_u32 {vr(m+1)}, {sr(T+3)}, {vr(m+1)}""")
            if dr: a(f"v_cndmask_b32 {vr(m)}, {vr(m)}, {vr(big)}, vcc\nv_cndmask_b32 {vr(m+1)}, {vr(m+1)}, {vr(big)}, vcc")

    def conv_loads(self):
        GA = self.GA
        L = []
        for dst, m, so in ((self.GM, GA + 2, 1), (self.G0, GA, 1), (self.GP, GA + 4, 1), (self.U, GA, 0)):
            for k in range(2): L.append(f"buffer_load_dwordx4 {vr(dst+4*k,4)}, {vr(m)}, {sr(S_WS,4)}, {sr(self.E_U+so)} offen offset:{1024*k}")
            L.append(f"buffer_load_dwordx2 {vr(dst+8,2)}, {vr(m+1)}, {sr(S_WS,4)}, {sr(self.E_U+so)} offen")
        return L

    def rg(self, e, n): return (ar if e[0] == "a" else vr)(e[1], n)

    def w8_loads(self, regs, so):
        return [f"buffer_load_dwordx4 {self.rg(regs[s],4)}, {vr(V_DMA)}, {sr(S_WS,4)}, {sr(so)} offen offset:{1024*s}" for s in range(4)] + \
               [f"buffer_load_dwordx2 {self.rg(regs[4],2)}, {vr(self.VL8)}, {sr(S_WS,4)}, {sr(so)} offen"]

    def w_reads(self, regs, off):
        L = []
        for tt in range(2):
            L += [f"ds_read_b128 {self.rg(regs[tt][s],4)}, {vr(self.VS0)} offset:{off + BLK*tt + 1024*s}" for s in range(4)]
            L.append(f"ds_read_b64 {self.rg(regs[tt][4],2)}, {vr(self.VS0R)} offset:{off + BLK*tt}")
        return L

    def xa_srd(self):
        T = S_T
        return f"""s_mul_i32 {sr(T)}, {sr(S_B)}, {NT}
        s_mul_i32 {sr(T+1)}, {sr(S_H)}, 63
        s_add_u32 {sr(T+1)}, {sr(T+1)}, {sr(T)}
        s_mul_i32 {sr(T+1)}, {sr(T+1)}, {TILE}
        s_add_u32 {sr(S_XA)}, {sr(S_WS)}, {sr(T+1)}
        s_addc_u32 {sr(S_XA+1)}, {sr(S_WS+1)}, 0
        s_sub_u32 {sr(T+2)}, 63, {sr(S_H)}
        s_mul_i32 {sr(S_XA+2)}, {sr(T+2)}, {TILE}
        s_mov_b32 {sr(S_XA+3)}, 0x20000"""

    def rest(self):
        a, o = self.a, self.o
        T = S_T
        VPL = self.VPL
        self.plan()
        self.head()
        self.stamp("loop")
        if o.get("sktest") or o.get("echo") and o["echo"][0] == "skew":
            a(f"s_waitcnt lgkmcnt(0)\ns_mov_b64 exec, 1\ns_not_b32 s98, {sr(S_ST)}\nv_mov_b32 v226, s98\nv_mov_b32 v227, 4\ns_cmp_lg_u32 {sr(S_W)}, 0\ns_cbranch_scc1 L_sk\nbuffer_atomic_umax v226, v227, {sr(S_DB,4)}, 0 offen sc1\ns_waitcnt vmcnt(0)\nL_sk:\ns_mov_b64 exec, -1\ns_nop 3")
            self.stamp("sk")
        nh = o.get("ugh", 2)
        ex = {2 + 12 * k: x for k, x in enumerate(self.ugs[nh:])}
        ugl = o.get("ugl", 0)
        if ugl: self.period(0, extra={69: self.ugs[0]})
        else: self.period(0, vm=9 + 5, extra=ex)
        self.stamp("l0")
        a.raw(".p2align 6")
        a.label("L_loop")
        self.stamp("q1")
        for p in range(1, 5):
            ex = {}
            vm = 9
            if p == 1: ex = {73: f"s_cmp_eq_u32 {sr(S_CNT)}, 3"}
            if p == 2: ex = {70: f"buffer_load_dword v252, {vr(VPL)}, {sr(S_WS,4)}, 0 offen sc1"}
            if p == 3:
                ex = {73: f"s_cmp_eq_u32 {sr(S_CNT)}, 2", 45: f"ds_add_rtn_u32 v230, v231, {vr(VPL+1)}"}
            if p == 4:
                self.stamp("la0")
                a(f"s_cbranch_scc1 L_last")
                a.label("L_lastb")
                self.stamp("la1")
                ex = {72: f"s_add_u32 {sr(S_CNT)}, {sr(S_CNT)}, 1", 1: f"v_readfirstlane_b32 {sr(T)}, v230", 3: f"s_cmp_eq_u32 {sr(T)}, 3",
                      4: f"s_cselect_b32 {sr(T)}, {sr(S_FB)}, 2.0", 6: f"buffer_store_dword v226, v231, {sr(S_WS,4)}, {sr(T)} offen sc1"}
            if ugl:
                ex[69] = self.ugs[p]
                if p == 4: ex.update({71: f"s_mov_b32 {sr(S_UG)}, 2.0", 2: f"s_lshl2_add_u32 {sr(T)}, {sr(S_CNT)}, {sr(T)}", 3: f"s_cmp_eq_u32 {sr(T)}, 7"})
                if p == 3: ex.update({43: f"s_and_b32 {sr(T)}, {sr(S_CNT)}, 1", 44: f"v_mov_b32 {vr(VPL+1)}, {sr(T)}", 48: ex.pop(45)})
            for k_ in range(o.get("pad", 0)): ex[10 + 7 * k_] = ex.get(10 + 7 * k_, "s_nop 0") + "\ns_nop 7"
            self.period(p, extra=ex, inc=sr(S_INC) if p == 4 else None)
            if p == 1: a("s_cbranch_scc1 L_p14")
        a("s_branch L_loop")
        a.label("L_p14")
        SW = 66
        self.stamp("p14")
        a(f"s_cmp_eq_u32 {sr(S_DUM)}, 4\ns_cbranch_scc0 L_dummyb")
        for i in range(16): a(f"v_mov_b32 {vr(V_CI+i)}, 0xff800000")
        a("s_nop 1")
        a.label("L_dummyb")
        ex = dict(zip([2, 6, 8, 12, 14, 18, 20, 24, 26, 30], self.w_reads(self.WD, 0)))
        ex[0] = "s_waitcnt vmcnt(9)"
        ex.update(dict(zip([4, 10, 16, 22, 28], self.w8_loads(self.WD[2], SW))))
        self.period(14, dma=False, kread=False, extra=ex, halves=(0,))
        self.stamp("tail")
        self.tail(SW)
        self.stamp("end")
        self.epilogue(SW)

    def rare(self):
        a = self.a
        T = S_T
        SW = 66
        a.label("L_last")
        a(f"s_waitcnt vmcnt(9)\ns_mov_b32 {sr(T+2)}, 0")
        a.label("L_late")
        a(f"""v_cmp_ne_u32 vcc, {sr(S_N)}, v252
        s_add_u32 {sr(S_XA)}, {sr(S_WS)}, {WS_WF}
        s_addc_u32 {sr(S_XA+1)}, {sr(S_WS+1)}, 0
        s_mov_b32 {sr(S_XA+2)}, {18*BLK}
        s_add_u32 {sr(S_TOFF)}, {sr(S_LB)}, {9*BLK}
        s_mov_b32 {sr(S_INC)}, {-9*BLK}
        s_lshr_b32 {sr(SW)}, {sr(S_W)}, 1
        s_lshl_b32 {sr(SW)}, {sr(SW)}, 30
        s_add_u32 {sr(SW+1)}, {sr(SW)}, {WS_WF + 8*BLK}
        s_add_u32 {sr(SW)}, {sr(SW)}, {WS_WF + 17*BLK}
        s_and_b32 {sr(T)}, vcc_lo, 31
        s_cbranch_scc0 L_lastb
        buffer_load_dword v252, {vr(self.VPL)}, {sr(S_WS,4)}, 0 offen sc1
        s_add_u32 {sr(T+2)}, {sr(T+2)}, 1
        s_waitcnt vmcnt(0)
        s_cmp_lt_u32 {sr(T+2)}, 0x40000
        s_cbranch_scc1 L_late
        s_branch L_lastb""")

    units = [(0, 0), (0, 1), (1, 0), (1, 1), (2, 0)]
    V15 = V_K

    def stage(self, slot, T):
        src = ar(A_O + 36 * slot + 4 * T, 4)
        if slot == 0: return f"ds_write_b128 {vr(self.VST)}, {src} offset:{1024*T}"
        if slot == 2: return f"ds_write_b128 {vr(self.VS0)}, {src} offset:{1024*T}"
        if T < 4: return f"ds_write_b128 {vr(self.VST)}, {src} offset:{SLOT + 1024*T + (4096 if slot == 3 else 0)}"
        return f"{'s_not_b64' if slot == 1 else 's_mov_b64'} exec, {sr(self.MP1,2)}\nds_write_b128 {vr(self.VST)}, {src} offset:{SLOT + 8192}\ns_mov_b64 exec, -1"

    def dwf(self, k, i):
        f = 5 * k + i
        return self.DWT[f >> 1] + 2 * (f & 1)

    def tail(self, SW):
        a, o = self.a, self.o
        mf, pos, start = [], {}, {}
        for t_, qb in ((14, 0), (14, 1), (15, 0), (15, 1), (14, 2), (15, 2), (14, 3), (15, 3)):
            start[t_, qb] = len(mf)
            for Tt in ([0, 1, 2, 3, 8, 4, 5, 6, 7] if qb & 1 else range(9)):
                o_ = ar(A_O + 36 * qb + 4 * Tt, 4)
                pos[t_, qb, Tt] = len(mf)
                mf.append(f"v_mfma_f32_16x16x32_bf16 {o_}, {vr((V_V if t_ == 14 else self.V15)+4*Tt,4)}, {vr(self.P(t_ & 1,qb),4)}, {o_}")
        lst = []
        for qb in range(4):
            for j in range(8):
                lst.append(("e", qb, j))
                if j & 1: lst.append(("c", qb, j // 2))
        lst += [("a", qb, j) for qb in range(4) for j in range(8)]
        items = self.e_items(1, lst, lambda qb, j: 0 if j < 4 else 1, lambda qb: start[15, qb] - 2)
        for it in items[48:]: it["lo"] = o.get("alo", 26)
        v15 = [dict(t=x, c=4, need=pos[15, 0, i // 2], hi=pos[15, 0, i // 2] - o.get("vlead", 7), lo=0 if i < 16 else 2) for i, x in enumerate(self.v_reads(3, self.V15))]
        wr = []
        nown = o.get("nown", 4)
        self.own = [(2, T_) for T_ in range(nown, 9)] + [(3, T_) for T_ in (0, 1, 2, 3, 8)]
        g = o.get("w0", 23)
        for k, (sl, Tt) in enumerate([(0, T_) for T_ in range(9)] + [(1, T_) for T_ in (0, 1, 2, 3, 8)] + [(2, T_) for T_ in range(nown)]):
            g = max(pos[15, sl, Tt] + 5, g)
            wr.append(dict(t=self.stage(sl, Tt), c=o.get("wc", 20), lo=int(g), hi=int(g)) if g < 72 else dict(t=self.stage(sl, Tt), c=4, lo=999))
            g += o.get("wsp", 2.7)
        n0 = len(items) + len(v15)
        wo = []
        for i, x in enumerate(self.w_reads(self.WO, SLOT)):
            r0 = self.WO[i // 5][i % 5][1]
            wo.append(dict(t=("@VM\n" if i == 0 else "") + x, c=4, dep=sorted({n0 + r0 // 4, n0 + (r0 + 3) // 4 if (r0 + 3) // 4 < 9 else n0 + 8}), lo=o.get("wo0", 40) + 3 * i, hi=o.get("wo0", 40) + 3 * i + 2))
        cl = self.conv_loads()
        dl = [f"buffer_load_dwordx4 {vr(self.DWT[r],4)}, {vr(self.VDW)}, {sr(S_WS,4)}, 0 offen offset:{256*r}" for r in range(7)]
        dl.append(f"buffer_load_dwordx2 {vr(self.DWT[7],2)}, {vr(self.VDW)}, {sr(S_WS,4)}, 0 offen offset:{256*7}")
        fr = {96: 9, 100: 18, 104: 45, 112: 27, 116: 36}
        vm = [(x, 0) for x in cl] + [(x, fr.get(self.DWT[r], 0)) for r, x in enumerate(dl)]
        used = {w["lo"] for w in wr}
        vi, g = [], o.get("m0", 24)
        for x, lo in vm:
            g = max(g, lo)
            while int(g) in used: g += 1
            vi.append(dict(t=x, c=8, lo=int(g), hi=int(g)) if g < 72 else dict(t=x, c=8, lo=999))
            g += o.get("msp", 2.2)
        left = self.pack(mf, items + v15 + wr + wo + vi)
        self.done_a = {(qb, j) for qb in range(4) for j in range(8) if self.etext(1, ("a", qb, j)) not in left}
        left = [x for x in left if not x.startswith("v_add_f32")]
        print("tail overflow", self.over, "left", len(left), "adds done", len(self.done_a))
        self.left = left

    def epilogue(self, SW):
        a, o = self.a, self.o
        T = S_T
        p = lambda r: vr(r, 2)
        NB, PT, MK, VO, units, MP1 = self.NB, self.PT, self.MK, self.VO, self.units, self.MP1
        U, GM, G0, GP = self.U, self.GM, self.G0, self.GP
        X2O = self.X2O
        R1, R2, R3 = 230, 231, 249
        LA, LS, M = 10, 226, 48

        def weave(main, fill, per):
            fill = list(fill)
            for x in main:
                a(x)
                for _ in range(per):
                    if fill: a(fill.pop(0))
            return fill
        for x in self.left:
            if not x.startswith("buffer"): a(x)
        lv = [x for x in self.left if x.startswith("buffer")]
        lv += [f"buffer_load_dwordx4 {vr(self.XRS[j],4)}, {vr(VO+j)}, {sr(S_X,4)}, {sr(self.E_COL)} offen" for j in range(2)]
        lv.append(f"buffer_load_dwordx2 {vr(self.XRS[2],2)}, {vr(self.VO8)}, {sr(S_X,4)}, 0 offen offset:256")
        S1 = lambda qb, j: self.S(1, qb, j)
        rounds = [[] for _ in range(6)]
        for qb in range(4):
            rem = [j for j in range(8) if (qb, j) not in self.done_a]
            prs = [j for j in rem if j % 2 == 0 and j + 1 in rem]
            sing = [j for j in rem if (j & ~1) not in prs]
            r_ = 0
            while len(prs) > 1:
                for x, y in zip(prs[0::2], prs[1::2]): rounds[r_].append(f"v_pk_add_f32 {p(S1(qb,x))}, {p(S1(qb,x))}, {p(S1(qb,y))}")
                prs = prs[0::2]; r_ += 1
            for k_, j in enumerate(sing + ([prs[0], prs[0] + 1] if prs else [])): rounds[min(5, max(r_, 2) + k_)].append(f"v_add_f32 {vr(V_L+qb)}, {vr(V_L+qb)}, {vr(S1(qb,j))}")
        for r_ in rounds:
            for x in r_: a(x)
        a(f"v_add_u32 {vr(R1)}, {sr(self.RS1)}, {vr(V_DMA)}\nv_add_u32 {vr(R2)}, {sr(self.RS2)}, {vr(V_DMA)}")
        self.treduce(V_L)
        a(f"ds_write_b32 {vr(self.VLW)}, {vr(V_L)}")
        acc = lambda slot: [f"v_accvgpr_read_b32 {vr(M+i)}, {ar(A_O+36*slot+16+i)}" for i in range(20)]
        a(f"""v_add_u32 {vr(R3)}, {sr(self.RS3)}, {vr(V_DMA)}
        v_add_u32 {vr(LA+1)}, {self.L_L}, {vr(V_DMA)}
        v_and_b32 {vr(LS+1)}, 0xf0, {vr(V_DMA)}
        s_lshl_b32 {sr(T)}, {sr(NB)}, 8
        s_add_u32 {sr(T+8)}, {sr(T)}, {self.L_L}
        v_add_u32 {vr(LS)}, {sr(T+8)}, {vr(LS+1)}""")
        for x in lv: a(x)
        a(f"""s_xor_b32 {sr(T)}, s2, 1
        s_mul_i32 {sr(T)}, {sr(T)}, {IB}
        s_mul_i32 {sr(T+9)}, {sr(NB)}, 5120
        s_add_u32 {sr(T+9)}, {sr(T+9)}, {WS_IB}
        s_add_u32 {sr(T)}, {sr(T)}, {sr(T+9)}
        s_lshl_b32 {sr(T+10)}, {sr(PT)}, 11
        s_add_u32 {sr(T+1)}, {sr(T+10)}, {sr(T)}
        s_add_u32 {sr(T)}, {sr(T)}, 4096
        s_cmp_eq_u32 {sr(PT)}, 0
        s_cselect_b32 {sr(T)}, 0x40000000, {sr(T)}
        s_mov_b32 {sr(T+2)}, {f32(2.0**100)}
        s_mul_i32 {sr(T+12)}, s2, {IB}
        s_add_u32 {sr(T+12)}, {sr(T+12)}, {sr(T+9)}
        s_add_u32 {sr(T+13)}, {sr(T+12)}, {sr(T+10)}
        s_waitcnt lgkmcnt(0)
        s_barrier""")
        self.stamp("B1")

        def rd(X, offs):
            L = [[f"ds_read_b128 {vr(X[k][i],4)}, {vr((R1, R2, R3)[k])} offset:{offs[k] + 1024*i}" for i in range(4)] for k in range(3)]
            L8 = [f"ds_read_b128 {vr(X[k][4],4)}, {vr((R1, R2, R3)[k])} offset:8192" for k in range(3)]
            return L, L8

        def adds(X, k, rng):
            return [f"v_pk_add_f32 {p(M+4*i+2*h)}, {p(M+4*i+2*h)}, {p(X[k][i]+2*h)}" for i in rng for h in range(2)]
        X = [[128, 132, 136, 140, 144], [148, 152, 156, 160, 68], [72, 76, 200, 204, 108]]
        PK = 128
        L, L8 = rd(X, (0, 4096, 0))
        a(f"ds_read_b128 {vr(LA,4)}, {vr(LA+1)}\nds_read_b128 {vr(LS,4)}, {vr(LS)}")
        rest = weave(L[0] + L[1] + L[2], acc(1), 2)
        assert not rest
        a(f"s_mov_b64 exec, {sr(MP1,2)}")
        for x in L8: a(x)
        a(f"""s_mov_b64 exec, -1
        s_waitcnt lgkmcnt(11)
        v_add_f32 {vr(LA)}, {vr(LA)}, {vr(LA+1)}
        v_add_f32 {vr(LA+2)}, {vr(LA+2)}, {vr(LA+3)}
        v_add_f32 {vr(LS)}, {vr(LS)}, {vr(LS+1)}
        v_add_f32 {vr(LA)}, {vr(LA)}, {vr(LA+2)}
        v_add_f32 {vr(LS+2)}, {vr(LS+2)}, {vr(LS+3)}
        v_cmp_nge_f32 vcc, {sr(T+2)}, {vr(LA)}""")
        for x in adds(X, 0, range(4)): a(x)
        a(f"""s_cmp_lg_u64 vcc, 0
        s_cselect_b32 {sr(T+2)}, 1, 0
        s_andn2_b32 {sr(T+2)}, {sr(T+2)}, {sr(S_REDO)}
        s_cbranch_scc1 L_fallback
        v_add_f32 {vr(PK+10)}, {vr(LS)}, {vr(LS+2)}
        v_mov_b32 {vr(PK+11)}, {vr(MK+1)}
        s_waitcnt lgkmcnt(7)""")
        for x in adds(X, 1, range(4)): a(x)
        a("s_waitcnt lgkmcnt(3)")
        a3 = adds(X, 2, range(4))
        cv = [f"v_cvt_pk_bf16_f32 {vr(PK+i)}, {vr(M+2*i)}, {vr(M+2*i+1)}" for i in range(10)]
        for x in a3[:4] + a3[4:6] + cv[:4]: a(x)
        a(f"buffer_store_dwordx4 {vr(PK,4)}, {vr(V_DMA)}, {sr(S_WS,4)}, {sr(T+1)} offen sc1")
        for x in a3[6:] + cv[4:8]: a(x)
        a(f"buffer_store_dwordx4 {vr(PK+4,4)}, {vr(V_DMA)}, {sr(S_WS,4)}, {sr(T+1)} offen offset:1024 sc1")
        a("s_waitcnt lgkmcnt(0)")
        for kk in range(3):
            for x in adds(X, kk, [4]): a(x)
        for x in cv[8:]: a(x)
        a(f"buffer_store_dwordx4 {vr(PK+8,4)}, {vr(V_DMA)}, {sr(S_WS,4)}, {sr(T)} offen sc1")
        self.stamp("sent")
        a(f"s_cmp_eq_u32 {sr(S_VAL)}, 0\ns_cbranch_scc1 L_fin")
        C, UP = 140, 68
        IN = [(200, 204, 226), (164, 168, 252), (192, 196, 172)]
        VXW, VXR, VF, LO = 78, 79, 10, 36
        wr = [self.stage(*e) for e in self.own]

        def inbox(k):
            return [f"buffer_load_dwordx4 {vr(IN[k][0],4)}, {vr(V_DMA)}, {sr(S_WS,4)}, {sr(T+13)} offen sc1",
                    f"buffer_load_dwordx4 {vr(IN[k][1],4)}, {vr(V_DMA)}, {sr(S_WS,4)}, {sr(T+13)} offen offset:1024 sc1",
                    f"buffer_load_dwordx4 {vr(IN[k][2],4)}, {vr(V_DMA+1)}, {sr(S_WS,4)}, {sr(T+12)} offen sc1"]
        for x in inbox(0): a(x)
        n0 = len(a.lines)
        a(f"""s_lshl_b32 {sr(T)}, {sr(NB)}, 12
        s_add_u32 {sr(T)}, {sr(T)}, {sr(T+10)}
        s_add_u32 {sr(T)}, {sr(T)}, {self.X1B}
        v_add_u32 {vr(VXW)}, {sr(T)}, {vr(V_DMA)}
        s_lshl_b32 {sr(T)}, {sr(NB)}, 9
        s_add_u32 {sr(T)}, {sr(T)}, {self.X1B + 4096}
        v_add_u32 {vr(VXR)}, {sr(T)}, {vr(self.VL8)}
        s_lshl_b32 {sr(T)}, {sr(PT)}, 12
        s_add_u32 {sr(T)}, {sr(T)}, {self.X1B}
        v_add_u32 {vr(VF)}, {sr(T)}, {vr(V_DMA)}
        v_xor_b32 {vr(VF+1)}, 4096, {vr(VF)}
        s_lshl_b32 {sr(T)}, {sr(PT)}, 9
        s_add_u32 {sr(T)}, {sr(T)}, {self.X1B + 4096}
        v_add_u32 {vr(VF+2)}, {sr(T)}, {vr(self.VL8)}
        v_xor_b32 {vr(VF+3)}, 512, {vr(VF+2)}
        v_subrev_u32 {vr(R2)}, {2*SLOT}, {vr(R2)}
        v_subrev_u32 {vr(R3)}, {2*SLOT}, {vr(R3)}
        s_waitcnt vmcnt(9)""")
        self.stamp("cv0")
        un = [f"v_lshlrev_b32 {vr(M+2*i)}, 16, {vr(U+i)}\nv_and_b32 {vr(M+1+2*i)}, 0xffff0000, {vr(U+i)}" for i in range(10)]
        w8 = self.w8_loads(self.WO[2], SW + 1)
        for k, src in enumerate((GM, G0, GP)):
            for i in range(5):
                d = vr(C + 4 * i, 4)
                a(f"v_mfma_f32_16x16x16_bf16 {d}, {vr(self.dwf(k, i),2)}, {vr(src+2*i,2)}, {'0' if k == 0 else d}")
                a(w8.pop(0) if i in (0, 3) and w8 else un.pop(0))
        self.stamp("cv1")
        a(f"v_and_b32 {vr(LO+1)}, 0xf0, {vr(V_DMA)}\nv_add_u32 {vr(LO)}, {sr(T+8)}, {vr(LO+1)}\ns_nop 1")
        for i in range(10): a(f"v_pk_mul_f32 {p(C+2*i)}, {p(C+2*i)}, {p(M+2*i)}")
        for i in range(10):
            a(f"v_cvt_pk_bf16_f32 {vr(UP+i)}, {vr(C+2*i)}, {vr(C+2*i+1)}")
        body = a.lines[n0:]; del a.lines[n0:]
        step = max(1, len(body) // len(wr))
        for i, l in enumerate(body):
            if i % o.get("wstep", step) == 0 and wr: a(wr.pop(0))
            a.lines.append(l)
        for x in wr: a(x)
        ac = acc(3)
        a(f"ds_write_b128 {vr(VXW)}, {vr(UP,4)} offset:{X2O}")
        for x in ac[:6]: a(x)
        a(f"ds_write_b128 {vr(VXW)}, {vr(UP+4,4)} offset:{X2O + 1024}")
        for x in ac[6:12]: a(x)
        a(f"""s_mov_b64 exec, {sr(MP1,2)}
        ds_write_b64 {vr(VXR)}, {vr(UP+8,2)} offset:{X2O}
        s_mov_b64 exec, -1""")
        self.stamp("x2")
        for x in inbox(1): a(x)
        for x in ac[12:]: a(x)
        a("s_waitcnt lgkmcnt(0)\ns_barrier")
        self.stamp("B2")
        X = [[128, 132, 136, 140, 144], [148, 152, 156, 160, 188], [16, 20, 24, 28, 32]]
        L, L8 = rd(X, (4096, 4096, 0))
        BU = [[("v", r) for r in (100, 104, 108, 112, 116)], [("v", r) for r in (118, 122, 180, 184, 126)]]
        BO = [self.frag("v", 128), self.frag("v", 146)]
        AB = 80

        def bfrags(dst, off):
            out = []
            for s in range(5):
                for j in range(2):
                    out.append(f"ds_read_b128 {self.rg(dst[j][s],4)}, {vr(VF+j)} offset:{off + 1024*s}" if s < 4 else f"ds_read_b64 {self.rg(dst[j][4],2)}, {vr(VF+2+j)} offset:{off}")
            return out

        def fg(W, Bf):
            out = []
            for s in range(5):
                for u, (tt, j) in enumerate(units):
                    d = vr(AB + 4 * u, 4)
                    if s < 4: out.append(f"v_mfma_f32_16x16x32_bf16 {d}, {self.rg(W[tt][s],4)}, {self.rg(Bf[j][s],4)}, {d}")
                    else: out.append(f"v_mfma_f32_16x16x16_bf16 {d}, {self.rg(W[tt][4],2)}, {self.rg(Bf[j][4],2)}, {d}")
            return out
        xu = []
        for u, (tt, j) in enumerate(units):
            for h in range(2):
                x = self.XRS[j] + 2 * tt + h if tt < 2 else self.XRS[2] + h
                xu += [f"v_lshlrev_b32 {vr(AB+4*u+2*h)}, 16, {vr(x)}", f"v_and_b32 {vr(AB+1+4*u+2*h)}, 0xffff0000, {vr(x)}"]
        a("s_waitcnt vmcnt(14)")
        weave(bfrags(BU, X2O), xu, 2)
        pl = lambda k, i, e: f"v_add_f32 {vr(M+4*i+e)}, {vr(M+4*i+e)}, {vr(X[k][i]+e)}"
        ds = L[0] + L[1] + L[2] + [f"s_not_b64 exec, {sr(MP1,2)}\n" + "\n".join(L8) + "\ns_mov_b64 exec, -1", f"ds_read_b128 {vr(LO,4)}, {vr(LO)} offset:512"]
        nis = [1] * 12 + [3, 1]
        gap = [[] for _ in range(25)]
        tot = [10]
        for g in range(25): tot.append(tot[-1] + (nis[g] if g < 14 else 0))
        A0 = [pl(0, i, e) for i in range(4) for e in range(4)]
        A1 = [pl(1, i, e) for i in range(4) for e in range(4)]
        ib = inbox(2)
        for g, m in enumerate(fg(self.WD, BU)):
            if g % 5 == 0: a(f"s_waitcnt lgkmcnt({min(15, tot[g] - 2 * (g // 5 + 1))})")
            a(m)
            if g == 8: a(f"s_waitcnt lgkmcnt({tot[g] - 14})")
            if g == 16: a(f"s_waitcnt lgkmcnt({tot[g] - 18})")
            if g < 14: a(ds[g])
            if 8 <= g < 14: a(A0.pop(0))
            elif g in (14, 18, 22): a(ib.pop(0))
            elif g >= 14:
                for _ in range(2): a(A0.pop(0) if A0 else A1.pop(0))
        assert not A0 and len(A1) % 2 == 0
        n1 = 16 - len(A1)
        for e in range(n1, 16, 2): a(f"v_pk_add_f32 {p(M+e)}, {p(M+e)}, {p(X[1][e//4]+e%4)}")
        a("s_waitcnt lgkmcnt(0)")
        for x in adds(X, 2, range(4)): a(x)
        a(f"v_add_f32 {vr(LO)}, {vr(LO)}, {vr(LO+1)}\nv_add_f32 {vr(LO+2)}, {vr(LO+2)}, {vr(LO+3)}")
        for kk in range(3):
            for x in adds(X, kk, [4]): a(x)
        a(f"s_mov_b32 {sr(T+2)}, 0\nv_add_f32 {vr(LO)}, {vr(LO)}, {vr(LO+2)}")
        self.stamp("own")
        w, PU = 40, 128
        mo = MK + 3

        def chk(k):
            r = [IN[k][q] + i for q in range(3) for i in range(4)]
            c = [f"v_max3_u32 v46, {vr(r[0])}, {vr(r[1])}, {vr(r[2])}", f"v_max3_u32 v47, {vr(r[3])}, {vr(r[4])}, {vr(r[5])}"]
            for q in range(3): c.append(f"v_max3_u32 v{46+(q&1)}, v{46+(q&1)}, {vr(r[6+2*q])}, {vr(r[7+2*q])}")
            return c + ["v_max_u32 v46, v46, v47", "v_cmp_eq_u32 vcc, -1, v46"]

        def take(k, with_chk):
            r = [IN[k][q] + i for q in range(3) for i in range(4)]
            lp_, mp = r[10], r[11]
            wt = [f"v_min_f32 {vr(w)}, {vr(mo)}, {vr(mp)}", f"v_sub_f32 {vr(w+2)}, {vr(w)}, {vr(mp)}", f"v_sub_f32 {vr(w)}, {vr(w)}, {vr(mo)}",
                  f"v_exp_f32 {vr(w+2)}, {vr(w+2)}", f"v_exp_f32 {vr(w)}, {vr(w)}", f"v_mul_f32 {vr(w+4)}, {vr(w+2)}, {vr(lp_)}",
                  f"v_fmac_f32 {vr(w+4)}, {vr(w)}, {vr(LO)}", f"v_rcp_f32 {vr(w+4)}, {vr(w+4)}", f"v_mul_f32 {vr(w)}, {vr(w)}, {vr(w+4)}",
                  f"v_mul_f32 {vr(w+2)}, {vr(w+2)}, {vr(w+4)}"]
            un = []
            for i in range(10): un += [f"v_lshlrev_b32 {vr(PU+2*i)}, 16, {vr(r[i])}", f"v_and_b32 {vr(PU+1+2*i)}, 0xffff0000, {vr(r[i])}"]
            c = chk(k) if with_chk else []
            for i in range(10):
                a(wt[i])
                if c: a(c.pop(0))
                a(un.pop(0)); a(un.pop(0))
        a("s_waitcnt vmcnt(6)")
        take(0, True)
        a("s_cmp_eq_u64 vcc, 0\ns_cbranch_scc0 L_poll2")
        a.label("L_got")
        self.stamp("got")
        for i in range(10): a(f"v_pk_mul_f32 {p(M+2*i)}, {p(M+2*i)}, {p(w)} op_sel_hi:[1,0]")
        for i in range(10): a(f"v_pk_fma_f32 {p(M+2*i)}, {p(PU+2*i)}, {p(w+2)}, {p(M+2*i)} op_sel_hi:[1,0,1]")
        for i in range(10):
            a(f"v_cvt_pk_bf16_f32 {vr(UP+i)}, {vr(M+2*i)}, {vr(M+2*i+1)}")
            if i == 3: a(f"ds_write_b128 {vr(VXW)}, {vr(UP,4)}")
            if i == 7: a(f"ds_write_b128 {vr(VXW)}, {vr(UP+4,4)} offset:1024")
        a(f"""s_not_b64 exec, {sr(MP1,2)}
        ds_write_b64 {vr(VXR)}, {vr(UP+8,2)}
        s_mov_b64 exec, -1
        s_waitcnt lgkmcnt(0)
        s_barrier""")
        self.stamp("B3")
        for x in bfrags(BO, 0): a(x)
        for g, m in enumerate(fg(self.WO, BO)):
            if g % 5 == 0: a(f"s_waitcnt lgkmcnt({8 - 2 * (g // 5)})" + ("\ns_nop 0" if g == 20 else ""))
            a(m)
        self.stamp("gem")
        a("s_nop 3")
        for j in range(2):
            for tt in range(2):
                u = 2 * tt + j
                for h in range(2): a(f"v_cvt_pk_bf16_f32 {vr(16+4*j+2*tt+h)}, {vr(AB+4*u+2*h)}, {vr(AB+4*u+2*h+1)}")
            a(f"buffer_store_dwordx4 {vr(16+4*j,4)}, {vr(VO+j)}, {sr(S_OUT,4)}, {sr(self.E_COL)} offen {o.get('ofl', '')}")
        a(f"s_cmp_ge_u32 {sr(S_W)}, 2\ns_cbranch_scc1 L_fin")
        for h in range(2): a(f"v_cvt_pk_bf16_f32 {vr(24+h)}, {vr(AB+16+2*h)}, {vr(AB+16+2*h+1)}")
        a(f"buffer_store_dwordx2 v[24:25], {vr(self.VO8)}, {sr(S_OUT,4)}, 0 offen offset:256 {o.get('ofl', '')}")
        self.stamp("fin")

        def poll2():
            a.label("L_poll2")
            for k in (1, 2, 0):
                for x in inbox((k + 2) % 3): a(x)
                a("s_waitcnt vmcnt(6)")
                for x in chk(k): a(x)
                a(f"s_add_u32 {sr(T+2)}, {sr(T+2)}, 1\ns_cmp_eq_u64 vcc, 0\ns_cbranch_scc1 L_take{k}")
            a(f"s_cmp_lt_u32 {sr(T+2)}, 0x10000\ns_cbranch_scc1 L_poll2")
            for k in (0, 1, 2):
                a.label(f"L_take{k}")
                take(k, False)
                a("s_branch L_got")
        self.poll2 = poll2

    def fallback(self):
        a = self.a
        T = S_T
        MXR = 208
        a.label("L_fallback")
        a(f"""s_waitcnt vmcnt(0) lgkmcnt(0)
        s_barrier
        s_mov_b32 {sr(S_REDO)}, 1
        s_mov_b32 {sr(S_UG)}, 0x40000000
        {self.xa_srd()}
        s_mov_b32 {sr(S_TOFF)}, {sr(S_LB)}
        s_cmp_eq_u32 {sr(S_DUM)}, 4
        s_cselect_b32 {sr(S_CNT)}, 15, 16""")
        for i in range(4): a(f"v_mov_b32 {vr(MXR+i)}, 0xff800000")
        a.label("L_fb1")
        for g in self.tile_groups(0): a(g)
        a("s_waitcnt vmcnt(0)")
        for x in self.k_reads(0): a(x)
        a("s_waitcnt lgkmcnt(0)")
        for m in self.qk_mfmas(0, czero=True): a(m)
        a("s_nop 7")
        for qb in range(4):
            for i in range(0, 8, 2): a(f"v_max3_f32 {vr(MXR+qb)}, {vr(MXR+qb)}, {vr(self.S(0,qb,i))}, {vr(self.S(0,qb,i+1))}")
        a(f"s_sub_u32 {sr(S_CNT)}, {sr(S_CNT)}, 1\ns_cmp_lg_u32 {sr(S_CNT)}, 0\ns_cbranch_scc1 L_fb1")
        self.greduce([MXR + i for i in range(4)], MXR + 4, "v_max_f32")
        a(f"""v_and_b32 {vr(MXR+4)}, 15, v0
        v_lshlrev_b32 {vr(MXR+4)}, 4, {vr(MXR+4)}
        v_add_u32 {vr(MXR+4)}, {L_SP}, {vr(MXR+4)}
        s_lshl_b32 {sr(T)}, {sr(S_W)}, 2
        s_xor_b32 {sr(T+1)}, {sr(self.NB)}, 1
        v_lshl_add_u32 {vr(MXR+5)}, {sr(self.NB)}, 8, {vr(MXR+4)}
        v_lshl_add_u32 {vr(MXR+4)}, {sr(T+1)}, 8, {vr(MXR+4)}
        v_add_u32 {vr(MXR+6)}, {sr(T)}, {vr(MXR+4)}
        v_add_u32 {vr(MXR+7)}, {sr(T)}, {vr(MXR+5)}""")
        for qb in range(4): a(f"ds_write_b32 {vr(MXR+6+(qb&1))}, {vr(MXR+qb)} offset:{512*(qb>>1)}")
        a("s_waitcnt lgkmcnt(0)\ns_barrier")
        for qb in range(4): a(f"ds_read_b128 {vr(16+4*qb,4)}, {vr(MXR+4+(qb&1))} offset:{512*(qb>>1)}")
        a(f"s_mov_b32 {sr(S_TOFF)}, {sr(S_LB)}")
        for g in self.tile_groups(0) + self.tile_groups(1) + self.tile_groups(2)[:8]: a(g)
        a("s_waitcnt lgkmcnt(0)")
        for qb in range(4):
            r = 16 + 4 * qb
            a(f"v_max_f32 {vr(r)}, {vr(r)}, {vr(r+1)}\nv_max3_f32 {vr(r)}, {vr(r)}, {vr(r+2)}, {vr(r+3)}")
            a(f"v_sub_f32 {vr(self.MK+qb)}, 0, {vr(r)}")
        a("s_waitcnt vmcnt(0)")
        for x in self.k_reads(0, V_V): a(x)
        self.loop_init(False)
        a("s_branch L_go")


if __name__ == "__main__":
    opt = json.loads(sys.argv[2]) if len(sys.argv) > 2 else {}
    g = G(opt)
    txt = g.build()
    if opt.get("align", 1):
        from align import align
        for n2 in (1, 2):
            try:
                txt, st = align(txt, chains=[(1, "L_tr")] * 3 + [(1, "L_tr2"), (n2, "L_tr2")] if opt.get("touch", 1) else None)
                break
            except AssertionError as e:
                if n2 == 2: raise
        print("align: promoted %d, padded %d, left %d" % st)
    txt = txt.replace("\n", "\n; stamps " + json.dumps(g.stnames) + "\n; map %d\n" % g.mp, 1)
    open(sys.argv[1], "w").write(txt)
```

```python
import sys, json, math
from common import Asm, vr, ar, sr, kernel_header, kernel_desc
from lay import *

NAME = "standalone__conformer_family_branchformer__speech_kernel"
NH = 2
NWG = 252 + NH
CHAINS = (3, 3)
RING = 4
LDS_RING = RING * TILE
LDS_TOTAL = 163840
SLOT = 4 * TILE
L_WU, L_WQ, L_WK = 0, 41472, 82944
L_XX, L_XR = 126976, 143360
L_QD = 18432
L_XS = L_XX + L_QD
L_MX = 81920
L_PC = LDS_TOTAL - 256
L_DUMP = 123904
L_SP = 147456

S_X, S_WS, S_XA, S_DB, S_W1, S_W2, S_OUT, S_DW = 8, 12, 16, 20, 24, 28, 32, 36
S_W, S_B, S_H, S_QB, S_TOFF, S_CNT, S_DUM, S_LB, S_TOWN, S_TSND, S_VAL, S_REDO = range(40, 52)
S_UG = 25
S_N, S_FB = 98, 99
S_INC = 24
S_T = 52
S_ST = 76

V_KA, V_VA, V_VR, V_DMA, V_L, V_VB = 1, 3, 5, 6, 10, 14
V_S, V_CI, V_P, V_K, V_V = 16, 80, 96, 128, 164
V_HI = 200
V_X = 208
A_O, A_Q, A_F = 0, 144, 216

LOG2E = 1.4426950408889634
import struct
def f32(x): return "0x%08x" % struct.unpack("<I", struct.pack("<f", x))[0]


class BAsm(Asm):
    def __init__(self):
        super().__init__()
        self.bg, self.every, self.cnt, self.skip = [], 0, 0, 0

    def __call__(self, s):
        for l in s.split("\n"):
            l = l.strip()
            if not l: continue
            self.lines.append("    " + l)
            if self.bg and self.every and not l.startswith(("s_nop", "v_mov_b32", "v_exp", "v_rcp", "v_rsq", "v_sqrt", "s_add_u32 m0")):
                self.cnt += 1
                if self.cnt >= self.every:
                    self.cnt = 0
                    self.pop()

    def pop(self):
        for x in self.bg.pop(0).split("\n"): self.lines.append("    " + x)

    def flush(self):
        while self.bg: self.pop()
        self.every = 0


class G:
    def __init__(self, opt):
        self.o = opt
        self.a = BAsm()
        self.nst = 0
        self.fill = []

    def stamp(self, name):
        if self.o.get("stamps"):
            if name in self.o.get("skipst", []): return
            if "only" in self.o and name not in self.o["only"]: return
            if self.nst >= 11: return
            self.a(f"{'s_memtime' if self.o.get('cyc') else 's_memrealtime'} {sr(S_ST + 2*self.nst, 2)}")
            self.stnames.append(name)
            self.nst += 1

    def srd(self, dst, lo, hi, n):
        if dst == S_WS and self.o.get("wsoff"):
            self.a(f"s_add_u32 {sr(dst)}, {sr(lo)}, {self.o['wsoff']}\ns_addc_u32 {sr(dst+1)}, {sr(hi)}, 0\ns_mov_b32 {sr(dst+2)}, {n}\ns_mov_b32 {sr(dst+3)}, 0x20000")
            return
        self.a(f"s_mov_b32 {sr(dst)}, {sr(lo)}\ns_mov_b32 {sr(dst+1)}, {sr(hi)}\ns_mov_b32 {sr(dst+2)}, {n}\ns_mov_b32 {sr(dst+3)}, 0x20000")

    def greduce(self, regs, tmp, op="v_add_f32"):
        a = self.a
        for sw in ("32", "16"):
            for i, r in enumerate(regs): a(f"v_mov_b32 {vr(tmp+i)}, {vr(r)}")
            if len(regs) < 3: a("s_nop 1" if len(regs) == 1 else "s_nop 0")
            for i, r in enumerate(regs): a(f"v_permlane{sw}_swap_b32 {vr(r)}, {vr(tmp+i)}")
            for i, r in enumerate(regs): a(f"{op} {vr(r)}, {vr(r)}, {vr(tmp+i)}")

    def treduce(self, r, op="v_add_f32"):
        a = self.a
        a(f"v_permlane32_swap_b32 {vr(r)}, {vr(r+2)}\nv_permlane32_swap_b32 {vr(r+1)}, {vr(r+3)}")
        a(f"{op} {vr(r)}, {vr(r)}, {vr(r+2)}\n{op} {vr(r+1)}, {vr(r+1)}, {vr(r+3)}\ns_nop 1")
        a(f"v_permlane16_swap_b32 {vr(r)}, {vr(r+1)}\n{op} {vr(r)}, {vr(r)}, {vr(r+1)}")

    def rbf(self, r):
        self.a(f"v_cvt_pk_bf16_f32 {vr(r)}, {vr(r)}, {vr(r)}\nv_lshlrev_b32 {vr(r)}, 16, {vr(r)}")

    def ln_tail(self, F, out, t, mimic):
        a = self.a
        p = lambda r: vr(r, 2)
        self.greduce([t, t + 1], t + 2)
        a(f"v_mul_f32 {vr(t+2)}, {f32(1.0/144)}, {vr(t)}")
        a(f"v_mul_f32 {vr(t+3)}, {vr(t+2)}, {vr(t+2)}")
        a(f"v_mov_b32 {vr(t+4)}, {f32(1.0/144)}")
        a(f"v_fma_f32 {vr(t)}, {vr(t+1)}, {vr(t+4)}, -{vr(t+3)}")
        a(f"v_max_f32 {vr(t)}, 0, {vr(t)}")
        if mimic:
            self.rbf(t)
            self.rbf(t + 2)
            a(f"v_add_f32 {vr(t)}, {f32(1e-5)}, {vr(t)}")
            self.rbf(t)
            a(f"v_sqrt_f32 {vr(t)}, {vr(t)}\ns_nop 0")
            self.rbf(t)
            a(f"v_rcp_f32 {vr(t)}, {vr(t)}\ns_nop 0")
        else:
            a(f"v_add_f32 {vr(t)}, {f32(1e-5)}, {vr(t)}")
            a(f"v_rsq_f32 {vr(t)}, {vr(t)}\ns_nop 0")
        a(f"v_mul_f32 {vr(t+2)}, -{vr(t+2)}, {vr(t)}")
        for i in range(18):
            a(f"v_pk_fma_f32 {p(F+2*i)}, {p(F+2*i)}, {p(t)}, {p(t+2)} op_sel_hi:[1,0,0]")
        for i in range(18):
            a(f"v_cvt_pk_bf16_f32 {vr(out+i)}, {vr(F+2*i)}, {vr(F+2*i+1)}")

    def ln_packed(self, X, F, out, t):
        a = self.a
        a(f"v_mov_b32 {vr(t+6)}, 0x3f803f80")
        for k in range(4): a(f"v_mov_b32 {vr(t+k)}, 0")
        for i in range(18):
            a(f"v_dot2_f32_bf16 {vr(t+2*(i&1))}, {vr(X+i)}, {vr(t+6)}, {vr(t+2*(i&1))}")
            a(f"v_dot2_f32_bf16 {vr(t+1+2*(i&1))}, {vr(X+i)}, {vr(X+i)}, {vr(t+1+2*(i&1))}")
        for i in range(2):
            a(f"v_lshlrev_b32 {vr(F+2*i)}, 16, {vr(X+i)}\nv_and_b32 {vr(F+2*i+1)}, 0xffff0000, {vr(X+i)}")
        a(f"v_pk_add_f32 {vr(t,2)}, {vr(t,2)}, {vr(t+2,2)}")
        un = []
        for i in range(2, 18):
            un.append(f"v_lshlrev_b32 {vr(F+2*i)}, 16, {vr(X+i)}\nv_and_b32 {vr(F+2*i+1)}, 0xffff0000, {vr(X+i)}")
        sv = (a.bg, a.every, a.cnt, a.skip)
        n0 = len(a.lines)
        a.bg, a.every = [], 0
        self.ln_tail(F, out, t, True)
        tail = a.lines[n0:]
        del a.lines[n0:]
        a.bg, a.every, a.cnt, a.skip = sv
        k = next(i for i, l in enumerate(tail) if "v_pk_fma" in l)
        for i, l in enumerate(tail[:k]):
            if "s_nop" in l and un: continue_nop = True
            a(l)
            if un and not l.strip().startswith("s_nop"): a(un.pop(0))
        while un: a(un.pop(0))
        for l in tail[k:]: a(l)

    def ln_f32(self, F, out, t):
        a = self.a
        p = lambda r: vr(r, 2)
        a(f"v_pk_add_f32 {p(t)}, {p(F)}, {p(F+2)}\nv_pk_add_f32 {p(t+2)}, {p(F+4)}, {p(F+6)}")
        a(f"v_pk_mul_f32 {p(t+4)}, {p(F)}, {p(F)}\nv_pk_mul_f32 {p(t+6)}, {p(F+2)}, {p(F+2)}")
        for i in range(2, 18):
            if i >= 4: a(f"v_pk_add_f32 {p(t+2*(i&1))}, {p(t+2*(i&1))}, {p(F+2*i)}")
            a(f"v_pk_fma_f32 {p(t+4+2*(i&1))}, {p(F+2*i)}, {p(F+2*i)}, {p(t+4+2*(i&1))}")
        a(f"v_pk_add_f32 {p(t)}, {p(t)}, {p(t+2)}\nv_pk_add_f32 {p(t+4)}, {p(t+4)}, {p(t+6)}")
        a(f"v_add_f32 {vr(t)}, {vr(t)}, {vr(t+1)}\nv_add_f32 {vr(t+1)}, {vr(t+4)}, {vr(t+5)}")
        self.ln_tail(F, out, t, False)

    def gemm_u(self, AF, rf, Bs, ACC, afr, bfr, post, vm_items=(), other=(), lead=7, vm0=0, vmsp=4, at={}):
        a = self.a
        units = [(0, j) for j in range(4)] + [(1, j) for j in range(4)] + [(2, 0)]
        seq, dl = [], {}
        bs = lambda j, o_, n: self.rg((Bs[j][0], Bs[j][1] + o_), n)
        rem = lambda u: (f"v_mfma_f32_16x16x16_bf16 {vr(ACC+4*u,4)}, {rf(AF+18*units[u][0]+16,2)}, {bs(units[u][1],16,2)}, {vr(ACC+4*u,4)}", u)
        A = [afr(t) for t in range(3)]
        Bf = [bfr(j) for j in range(4)]

        def use(t, j, s, k):
            for x in (A[t][2 * s:2 * s + 2] if s < 4 else A[t][8:]) + ([Bf[j][s]] if Bf[j] else []): dl.setdefault(x, k)
        for g in range(4):
            for s in range(4):
                for u in range(3 * g, 3 * g + 3) if g < 3 else []:
                    t, j = units[u]
                    d = vr(ACC + 4 * u, 4)
                    use(t, j, s, len(seq))
                    seq.append((f"v_mfma_f32_16x16x32_bf16 {d}, {rf(AF+18*t+4*s,4)}, {bs(j,4*s,4)}, {'0' if s == 0 else d}", None))
                if s == 0 and g > 0:
                    for u in range(3 * g - 3, 3 * g):
                        use(units[u][0], units[u][1], 4, len(seq)); seq.append(rem(u))
        last = seq[-3:]; seq = seq[:-3]
        ds = sorted(dl.items(), key=lambda e: e[1]) + [(x, 99) for x in other]
        vm_items = list(vm_items)
        lastvm = vm0 - vmsp
        order, ready, q, done = [], [], [], 0

        def issue():
            x, k_ = ds.pop(0); a(x); order.append(k_)

        def wait(k):
            nonlocal done
            idx = [i_ for i_, k_ in enumerate(order) if k_ <= k]
            if idx and max(idx) + 1 > done:
                a(f"s_waitcnt lgkmcnt({min(15, len(order) - 1 - max(idx))})"); done = max(idx) + 1
        while ds and ds[0][1] < 6: issue()
        for k, (m, fin) in enumerate(seq):
            assert not ds or ds[0][1] > k, (k, ds[0])
            wait(k)
            a(m)
            for u_, kk in list(ready):
                if k - kk >= 4: q += post(u_); ready.remove((u_, kk))
            if fin is not None: ready.append((fin, k))
            if k in at: at[k]()
            due = sum(1 for x, k_ in ds if k_ <= k + lead)
            if due == 0 and vm_items and k >= lastvm + vmsp:
                a(vm_items.pop(0)); lastvm = k; continue
            cap = 2
            for _ in range(min(due, 3)): issue(); cap -= 1
            if cap == 2:
                if q and q[0].startswith("ds_"): a(q.pop(0)); order.append(99); cap -= 1
                elif ds: issue(); cap -= 1
            while cap > 0 and q and not q[0].startswith("ds_"):
                a(q.pop(0)); cap -= 1
        assert not ready
        while ds: issue()
        wait(98)
        for x in vm_items: a(x)
        for x in q[:4]: a(x)
        a(f"s_nop {max(0, 4 - len(q[:4]))}")
        for m, _ in last: a(m)
        for x in q[4:]: a(x)
        a(f"s_nop {max(0, 6 - len(q[4:]))}")
        for u in range(6, 9):
            for x in post(u): a(x)

    def gemm(self, reads, B, ACC, AF, late=(), at={}, per=2):
        a = self.a
        buf = lambda T: 18 * (T % 6)
        ng = 3 * (4 * per + 1)

        def grp(g):
            r = [reads(T, buf(T)) for T in range(3 * g, 3 * g + 3)]
            return [r[t][per * s + u] for s in range(4) for t in range(3) for u in range(per)] + [r[t][4 * per] for t in range(3)]
        rem = lambda T: f"v_mfma_f32_16x16x16_bf16 {vr(ACC+4*T,4)}, {ar(buf(T)+16,2)}, {vr(B+16,2)}, {vr(ACC+4*T,4)}"
        pend = grp(0) + grp(1) + grp(2) + list(late)
        issued = k = 0

        def issue(n):
            nonlocal issued
            for _ in range(n):
                if issued < len(pend): a(pend[issued]); issued += 1

        def mf(x):
            nonlocal k
            a(x); issue(per if per == 2 else (2 if k % 4 == 0 else 1))
            if k in at: a(at[k])
            k += 1
        issue(self.o.get('look', 12) if per == 2 else self.o.get('look1', 8))
        for g in range(3):
            for s in range(4):
                need = ng * g + 3 * per * (s + 1)
                a(f"s_waitcnt lgkmcnt({min(15, issued - need)})")
                for T in range(3 * g, 3 * g + 3):
                    d = vr(ACC + 4 * T, 4)
                    mf(f"v_mfma_f32_16x16x32_bf16 {d}, {ar(buf(T)+4*s,4)}, {vr(B+4*s,4)}, {'0' if s == 0 else d}")
                if s == 0 and g > 0:
                    for T in range(3 * g - 3, 3 * g): mf(rem(T))
                if g == 1 and s == 0: assert issued <= 2 * ng + 6 * per, "group 2 overwrites group 0 too early"
        issue(99)
        a(f"s_waitcnt lgkmcnt({len(late)})\ns_nop 2")
        for T in range(6, 9): a(rem(T))
        a("s_nop 7")

    def tr_reads(self, ad, rf=ar):
        def f(T, dst):
            out = []
            for s in range(4):
                for u in range(2):
                    out.append(f"ds_read_b64_tr_b16 {rf(dst+4*s+2*u,2)}, {vr(ad+u)} offset:{9216*s + 32*T}")
            out.append(f"ds_read_b64_tr_b16 {rf(dst+16,2)}, {vr(ad+2)} offset:{36864 + 32*T}")
            return out
        return f

    def row_reads(self, ad, sw=None):
        def f(T, dst):
            r = ad if sw is None or T == 8 else sw[T & 1]
            out = []
            for s in range(4):
                for u in range(2):
                    out.append(f"ds_read_b64 {ar(dst+4*s+2*u,2)}, {vr(r)} offset:{4864*T + 64*s + 32*u}")
            out.append(f"ds_read_b64 {ar(dst+16,2)}, {vr(r)} offset:{4864*T + 256}")
            return out
        return f

    def dma_rows(self, jobs, cpr, rstride, vo, vc, n_first, first_waves, lab):
        a = self.a
        mul = {18: 3641, 19: 3450}[cpr]
        dr, dc = 256 // cpr, 256 % cpr
        a(f"s_lshl_b32 {sr(S_T)}, {sr(S_W)}, 6")
        a(f"v_add_u32 {vr(vc)}, {sr(S_T)}, v0")
        a(f"v_mul_u32_u24 {vr(vo)}, {mul}, {vr(vc)}")
        a(f"v_lshrrev_b32 {vr(vo)}, 16, {vr(vo)}")
        a(f"v_mul_u32_u24 {vr(vc+1)}, {cpr}, {vr(vo)}")
        a(f"v_sub_u32 {vr(vc)}, {vr(vc)}, {vr(vc+1)}")
        a(f"v_mul_u32_u24 {vr(vo)}, {rstride}, {vr(vo)}")
        a(f"v_lshl_add_u32 {vr(vo)}, {vr(vc)}, 4, {vr(vo)}")
        a(f"s_lshl_b32 {sr(S_T)}, {sr(S_W)}, 10")
        a(f"v_mov_b32 {vr(vc+1)}, {rstride - 16*cpr}")
        for k in range(n_first):
            if k == n_first - 1:
                a(f"s_cmp_ge_u32 {sr(S_W)}, {first_waves}\ns_cbranch_scc1 {lab}")
            for srd, so, lb in jobs:
                a(f"s_add_u32 m0, {sr(S_T)}, {lb + 4096*k}")
                a("s_nop 0")
                a(f"buffer_load_dwordx4 {vr(vo)}, {sr(srd,4)}, {so} offen lds")
            if k < n_first - 1:
                a(f"v_add_u32 {vr(vc)}, {dc}, {vr(vc)}")
                a(f"v_cmp_le_u32 vcc, {cpr}, {vr(vc)}")
                a(f"v_add_u32 {vr(vo)}, {dr*rstride + 16*dc}, {vr(vo)}")
                a(f"v_subrev_u32 {vr(vc+2)}, {cpr}, {vr(vc)}")
                a(f"v_cndmask_b32 {vr(vc)}, {vr(vc)}, {vr(vc+2)}, vcc")
                a(f"v_cndmask_b32 {vr(vc+2)}, 0, {vr(vc+1)}, vcc")
                a(f"v_add_u32 {vr(vo)}, {vr(vo)}, {vr(vc+2)}")
        a.label(lab)

    def voff_table(self, dst, cpr, rstride, vc, step=256):
        a = self.a
        mul = {18: 29128, 19: 27595}[cpr]
        n = len(dst)
        a(f"s_mov_b32 {sr(S_T)}, {rstride - 16*cpr}")
        a(f"v_mul_u32_u24 {vr(dst[0])}, {mul}, {vr(vc)}")
        for k in range(1, n): a(f"v_add_u32 {vr(dst[k])}, {(step*k % cpr)*mul}, {vr(dst[0])}")
        for k in range(n): a(f"v_lshrrev_b32 {vr(dst[k])}, 19, {vr(dst[k])}")
        for k in range(n): a(f"v_mad_i32_i24 {vr(dst[k])}, {vr(dst[k])}, {sr(S_T)}, {vr(vc+1)}")

    def dma_lin(self, srd, soff, lb, v16, lab):
        a = self.a
        a(f"s_lshl_b32 {sr(S_T)}, {sr(S_W)}, 10")
        for k in range(11):
            if k == 10:
                a(f"s_cmp_ge_u32 {sr(S_W)}, 1\ns_cbranch_scc1 {lab}")
            a(f"s_add_u32 m0, {sr(S_T)}, {lb + 4096*k}")
            a(f"s_add_u32 {sr(S_T+1)}, {sr(S_T)}, {soff + 4096*k}")
            a(f"buffer_load_dwordx4 {vr(v16)}, {sr(srd,4)}, {sr(S_T+1)} offen lds")
        a.label(lab)

    def tr_addr(self, ad, base, swapped, t):
        a = self.a
        a(f"v_lshrrev_b32 {vr(t)}, 2, v0")
        a(f"v_mul_u32_u24 {vr(t)}, 288, {vr(t)}")
        a(f"v_and_b32 {vr(t+1)}, 3, v0")
        a(f"v_lshl_add_u32 {vr(t)}, {vr(t+1)}, 3, {vr(t)}")
        a(f"v_add_u32 {vr(ad+2)}, {base}, {vr(t)}")
        if swapped:
            a(f"v_bfe_u32 {vr(t)}, v0, 4, 1")
            a(f"v_mul_u32_u24 {vr(t)}, {16*288}, {vr(t)}")
            a(f"v_add_u32 {vr(ad)}, {vr(ad+2)}, {vr(t)}")
            a(f"v_sub_u32 {vr(ad+1)}, {vr(ad+2)}, {vr(t)}")
            a(f"v_add_u32 {vr(ad+1)}, {16*288}, {vr(ad+1)}")
        else:
            a(f"v_mov_b32 {vr(ad)}, {vr(ad+2)}")
            a(f"v_add_u32 {vr(ad+1)}, {16*288}, {vr(ad+2)}")

    def row_addr(self, ad, base, t):
        a = self.a
        a(f"v_and_b32 {vr(t)}, 15, v0")
        a(f"v_mul_u32_u24 {vr(t)}, 304, {vr(t)}")
        a(f"v_lshrrev_b32 {vr(t+1)}, 4, v0")
        a(f"v_lshl_add_u32 {vr(t)}, {vr(t+1)}, 3, {vr(t)}")
        a(f"v_add_u32 {vr(ad)}, {base}, {vr(t)}")

    def store_block(self, src, v16, v8, srd, soff, soff2, flags=""):
        a = self.a
        for s in range(4):
            a(f"buffer_store_dwordx4 {vr(src+4*s,4)}, {vr(v16)}, {sr(srd,4)}, {sr(soff)} offen offset:{1024*s} {flags}")
        a(f"buffer_store_dwordx2 {vr(src+16,2)}, {vr(v8)}, {sr(srd,4)}, {sr(soff2)} offen {flags}")

    def entry(self):
        a = self.a
        kernel_header(a, NAME)
        a(f"s_load_dwordx16 s[56:71], s[0:1], 0")
        a(f"s_load_dwordx8 s[72:79], s[0:1], 64")
        a(f"s_getpc_b64 {sr(S_W1,2)}")
        a.label("L_pf")
        a(f"""s_mov_b32 {sr(S_W1+2)}, L_dummy-L_pf
        s_mov_b32 {sr(S_W1+3)}, 0x20000
        v_lshlrev_b32 v2, 4, v0
        buffer_load_dwordx4 v[252:255], v2, {sr(S_W1,4)}, 0 offen
        s_lshl_b32 s3, s2, 9
        s_and_b32 s3, s3, 0x7000
        buffer_load_dwordx4 v[252:255], v2, {sr(S_W1,4)}, s3 offen
        v_lshrrev_b32 v1, 6, v0
        s_sub_u32 s2, s2, {NH}
        v_readfirstlane_b32 {sr(S_W)}, v1
        s_memrealtime s[4:5]
        s_cmp_ge_u32 s2, {NWG - NH}
        s_cbranch_scc1 L_wfuse""")
        if self.o.get("late"):
            m_, v_, n_ = self.o["late"]
            a(f"""s_and_b32 s3, s2, {m_}
            s_cmp_lg_u32 s3, {v_}
            s_cbranch_scc1 L_nl
            s_memrealtime s[4:5]
            s_waitcnt lgkmcnt(0)
            s_add_u32 s6, s4, {n_}
            L_lt:
            s_memrealtime s[4:5]
            s_waitcnt lgkmcnt(0)
            s_sub_u32 s7, s6, s4
            s_cmp_gt_i32 s7, 0
            s_cbranch_scc1 L_lt
            L_nl:""")
        if self.o.get("stamps"):
            a("s_memrealtime s[100:101]" if not self.o.get("cyc") else "s_memtime s[100:101]")
        self.mp = 2

    def vm_since(self, mark):
        return sum(1 for l in self.a.lines[mark:] if l.strip().startswith("buffer_"))

    def phase_a(self):
        a, o = self.a, self.o
        XR, XF, XA, ACC, G_, PK = 16, 34, 146, 110, 16, 164
        B4, XD = 16, 88
        VS, VSW, VR4, MXA, MXR, L8, TRU, TRQ, TRQ8, RK, TM = 200, 204, 208, 212, 213, 214, 215, 218, 221, 224, 228
        VK, VU = list(range(182, 193)), list(range(193, 200)) + list(range(104, 108))
        AQ1 = 200
        t0, t1, t2 = 250, 251, 227
        T = S_T
        WV, W10, UOFF, M1, PUB, M3 = 72, 70, 71, 69, 68, 65
        a(f"""v_and_b32 v0, 63, v0
        s_bfe_u32 {sr(S_B)}, s2, 0x10001
        s_lshr_b32 {sr(S_QB)}, s2, 2
        s_lshr_b32 {sr(T)}, {sr(S_W)}, 1
        s_xor_b32 {sr(T)}, {sr(T)}, s2
        s_andn2_b32 {sr(T)}, 1, {sr(T)}
        s_lshl1_add_u32 {sr(T+3)}, {sr(S_QB)}, {sr(T)}
        s_mul_i32 {sr(T)}, {sr(S_B)}, {NT}
        s_add_u32 {sr(T+1)}, {sr(T+3)}, {sr(T)}
        s_and_b32 {sr(T+2)}, {sr(S_W)}, 1
        s_lshl1_add_u32 {sr(T+2)}, {sr(T+1)}, {sr(T+2)}
        v_lshlrev_b32 {vr(V_DMA)}, 4, v0
        s_mul_i32 {sr(T+1)}, {sr(T+2)}, {16*288}
        s_mul_i32 {sr(S_LB)}, {sr(S_W)}, {BLK}
        s_add_u32 m0, {sr(S_LB)}, {L_XS}
        s_mov_b32 {sr(S_X+2)}, 2304000
        s_mov_b32 {sr(S_X+3)}, {sr(S_W1+3)}
        s_add_u32 {sr(S_CNT)}, {sr(T+1)}, 4096
        s_waitcnt lgkmcnt(0)
        s_mov_b64 {sr(S_X,2)}, s[56:57]""")
        for k in range(4): a(f"buffer_load_dwordx4 {vr(V_DMA)}, {sr(S_X,4)}, {sr(T+1)} offen offset:{1024*k} lds")
        a(f"s_add_u32 m0, {sr(S_LB)}, {L_XS + 4096}\ns_mov_b32 exec_hi, 0\nbuffer_load_dwordx4 {vr(V_DMA)}, {sr(S_X,4)}, {sr(S_CNT)} offen lds\ns_mov_b32 exec_hi, -1")
        mx = len(a.lines)
        a(f"""s_add_u32 {sr(S_LB)}, {sr(S_LB)}, {L_XS}
        s_and_b32 {sr(S_H)}, s2, 1
        s_lshl1_add_u32 {sr(S_TOWN)}, {sr(S_QB)}, {sr(S_H)}
        s_cmp_lt_u32 {sr(S_TOWN)}, {NT}
        s_cselect_b32 {sr(S_VAL)}, 1, 0
        s_add_u32 {sr(S_TOWN)}, {sr(S_TOWN)}, {sr(T)}""")
        SQ, SK, SU = S_W2, S_W1, S_XA
        self.srd(SU, 66, 67, 82944)
        self.srd(SQ, 58, 59, 41472)
        self.srd(SK, 60, 61, 41472)
        a(f"s_lshr_b32 {sr(T)}, s2, 3\ns_lshl_b32 {sr(T)}, {sr(T)}, 12\ns_lshl_b32 {sr(W10)}, {sr(S_W)}, 10\ns_add_u32 {sr(T)}, {sr(T)}, {sr(W10)}")
        a(f"buffer_load_dwordx4 v[252:255], {vr(V_DMA)}, {sr(SU,4)}, {sr(T)} offen")
        for srd_, rot in ((SQ, 82), (SK, 41)):
            a(f"s_add_u32 {sr(T+1)}, {sr(T)}, {(128 - rot) * 1024}\ns_and_b32 {sr(T+1)}, {sr(T+1)}, {127 * 1024}")
            a(f"buffer_load_dwordx4 v[252:255], {vr(V_DMA)}, {sr(srd_,4)}, {sr(T+1)} offen")
        self.srd(S_OUT, 74, 75, 2304000)
        self.srd(S_DB, 76, 77, 256)
        self.srd(S_WS, 78, 79, WS_END)
        def tlb():
            a(f"v_lshlrev_b32 v249, 21, v0")
            for ch in o.get("tlbw", "wdo"): a(f"buffer_load_dword v252, v249, {sr(dict(w=S_WS, d=S_DB, o=S_OUT)[ch],4)}, 0 offen")
        if o.get("tlb", 0) == 1: tlb()
        if o.get("tlb", 3) == 3:
            a(f"""s_bfe_u32 {sr(T)}, s2, 0x30003
            s_lshl_b32 {sr(T)}, {sr(T)}, 21
            v_mov_b32 v249, 0
            s_cmp_lt_u32 {sr(T)}, {5 << 21}
            s_cbranch_scc0 L_tl1
            buffer_load_dword v252, v249, {sr(S_WS,4)}, {sr(T)} offen
            s_branch L_tl3
            L_tl1:
            s_sub_u32 {sr(T)}, {sr(T)}, {5 << 21}
            s_cmp_lt_u32 {sr(T)}, {2 << 21}
            s_cbranch_scc0 L_tl2
            buffer_load_dword v252, v249, {sr(S_OUT,4)}, {sr(T)} offen
            s_branch L_tl3
            L_tl2:
            s_or_b32 s4, s4, 1
            v_lshlrev_b32 v249, 8, v0
            v_mov_b32 v250, s4
            s_lshl2_add_u32 s5, s2, {sr(S_W)}
            s_cmp_eq_u32 s5, {56 * 4}
            s_cbranch_scc0 L_tl4
            buffer_store_dword v250, v249, {sr(S_DB,4)}, 0 offen sc1
            s_branch L_tl3
            L_tl4:
            buffer_load_dword v252, v249, {sr(S_DB,4)}, 0 offen
            L_tl3:""")
            self.vm_adj = -3
        if o.get("stamps"): a(f"s_mov_b64 {sr(S_ST,2)}, s[100:101]"); self.stnames.append("start"); self.nst = 1
        self.stamp("xiss")
        a(f"""s_cmp_lt_u32 {sr(T+3)}, {NT}
        s_cselect_b32 {sr(WV)}, 1, 0
        s_mov_b32 {sr(WV+1)}, {sr(T+2)}
        s_mul_i32 {sr(UOFF)}, {sr(S_H)}, 288
        s_cmp_eq_u32 {sr(S_W)}, 0
        s_cselect_b32 {sr(M1)}, 0, {L_DUMP}
        s_cmp_lt_u32 {sr(S_W)}, 3
        s_cselect_b32 {sr(M3)}, {sr(W10)}, {L_DUMP}""")
        half = lambda g_: "s_mov_b32 exec_hi, 0\n" + g_ + "\ns_mov_b32 exec_hi, -1"
        gu = [f"s_add_u32 m0, {sr(W10 if k < 10 else M1)}, {L_WU + 4096*k}\ns_add_u32 {sr(S_CNT)}, {sr(UOFF)}, {4096*k + 288*(256*k//18)}\nbuffer_load_dwordx4 {vr(VU[k])}, {sr(SU,4)}, {sr(S_CNT)} offen lds" for k in range(11)]
        gu[10] = half(gu[10])
        gq = [f"s_add_u32 m0, {sr(W10 if k < 10 else M1)}, {L_WQ + 4096*k}\ns_add_u32 {sr(S_CNT)}, {sr(W10)}, {4096*k}\nbuffer_load_dwordx4 {vr(V_DMA)}, {sr(SQ,4)}, {sr(S_CNT)} offen lds" for k in range(11)]
        gq[10] = half(gq[10])
        gk = [f"s_add_u32 m0, {sr(W10 if k < 10 else M3)}, {L_WK + 4096*k}\ns_mov_b32 {sr(S_CNT)}, {4096*k - 16*(256*k//19)}\nbuffer_load_dwordx4 {vr(VK[k])}, {sr(SK,4)}, {sr(S_CNT)} offen lds" for k in range(11)]
        a(f"s_lshl_b32 {sr(T)}, {sr(S_W)}, 6\nv_add_u32 {vr(t0)}, {sr(T)}, v0\nv_lshlrev_b32 {vr(t1)}, 4, {vr(t0)}")
        self.voff_table(VU, 18, 576, t0)
        npre = o.get("npre", 3)
        a.bg, a.every, a.cnt = gu[:npre], o.get("evpre", 40), 0
        self.voff_table(VK, 19, 288, t0)
        xa0, xa1, xa2 = TM, TM + 1, TM + 2
        a(f"""v_and_b32 {vr(t0)}, 15, v0
        v_lshrrev_b32 {vr(t1)}, 5, v0
        v_lshlrev_b32 {vr(t1)}, 3, {vr(t1)}
        v_xor_b32 {vr(t1)}, {vr(t0)}, {vr(t1)}
        v_lshlrev_b32 {vr(t1)}, 4, {vr(t1)}
        v_lshrrev_b32 {vr(t2)}, 4, v0
        v_lshl_add_u32 {vr(V_KA)}, {vr(t2)}, 9, {vr(t1)}
        v_lshrrev_b32 {vr(t1)}, 3, {vr(t0)}
        v_lshlrev_b32 {vr(t1)}, 1, {vr(t1)}
        v_xor_b32 {vr(t1)}, {vr(t2)}, {vr(t1)}
        v_lshl_add_u32 {vr(t1)}, {vr(t0)}, 2, {vr(t1)}
        v_lshlrev_b32 {vr(V_KA+1)}, 3, {vr(t1)}
        v_lshlrev_b32 {vr(L8)}, 3, v0
        v_lshlrev_b32 {vr(MXR)}, 4, {vr(t0)}
        v_add_u32 {vr(MXR)}, {L_MX}, {vr(MXR)}
        v_add_u32 {vr(MXA)}, {sr(S_W)}, {vr(t2)}
        v_and_b32 {vr(MXA)}, 3, {vr(MXA)}
        v_lshl_add_u32 {vr(MXA)}, {vr(MXA)}, 8, {vr(MXR)}
        s_lshl_b32 {sr(T)}, {sr(S_W)}, 2
        v_add_u32 {vr(MXA)}, {sr(T)}, {vr(MXA)}
        v_mul_u32_u24 {vr(xa2)}, 288, {vr(t0)}
        v_lshl_add_u32 {vr(xa2)}, {vr(t2)}, 3, {vr(xa2)}
        v_add_u32 {vr(xa2)}, {sr(S_LB)}, {vr(xa2)}
        v_and_b32 {vr(t1)}, 1, {vr(t2)}
        v_lshlrev_b32 {vr(t1)}, 5, {vr(t1)}
        v_add_u32 {vr(xa0)}, {vr(xa2)}, {vr(t1)}
        v_xor_b32 {vr(t1)}, 32, {vr(t1)}
        v_add_u32 {vr(xa1)}, {vr(xa2)}, {vr(t1)}
        s_mul_i32 {sr(S_LB)}, {sr(S_W)}, {TILE}
        v_lshrrev_b32 {vr(t0)}, 2, v0
        v_bfe_u32 {vr(t1)}, v0, 1, 1
        v_lshlrev_b32 {vr(t1)}, 3, {vr(t1)}
        v_xor_b32 {vr(t1)}, {vr(t0)}, {vr(t1)}
        v_lshlrev_b32 {vr(t1)}, 4, {vr(t1)}
        v_and_b32 {vr(t2)}, 3, v0
        v_lshl_add_u32 {vr(t1)}, {vr(t2)}, 9, {vr(t1)}
        v_and_b32 {vr(V_VA)}, 1, v0
        v_lshl_add_u32 {vr(t1)}, {vr(V_VA)}, 3, {vr(t1)}
        s_and_b32 {sr(T)}, {sr(S_W)}, 1
        s_lshl_b32 {sr(T)}, {sr(T)}, 12
        s_add_u32 {sr(T+1)}, {sr(T)}, {sr(S_LB)}
        s_xor_b32 {sr(T)}, {sr(T)}, 4096
        s_add_u32 {sr(T)}, {sr(T)}, {sr(S_LB)}
        v_add_u32 {vr(V_VA)}, {sr(T)}, {vr(t1)}
        v_add_u32 {vr(V_VB)}, {sr(T+1)}, {vr(t1)}
        v_xor_b32 {vr(V_VA+1)}, 8, {vr(V_VA)}
        v_xor_b32 {vr(V_VB+1)}, 8, {vr(V_VB)}
        v_lshrrev_b32 {vr(t1)}, 5, v0
        v_lshlrev_b32 {vr(t1)}, 1, {vr(t1)}
        v_xor_b32 {vr(t1)}, {vr(t2)}, {vr(t1)}
        v_lshl_add_u32 {vr(t1)}, {vr(t0)}, 2, {vr(t1)}
        v_lshlrev_b32 {vr(t1)}, 3, {vr(t1)}
        v_add_u32 {vr(V_VR)}, {sr(S_LB)}, {vr(t1)}
        v_add_u32 {vr(V_DMA+1)}, 4096, {vr(V_DMA)}
        v_add_u32 {vr(V_DMA+2)}, 8192, {vr(V_DMA)}""")
        self.tr_addr(TRU, L_WU, True, t0)
        a(f"s_lshl_b32 {sr(T)}, {sr(S_W)}, 6\ns_add_u32 {sr(T)}, {sr(T)}, {L_WQ - L_WU}")
        for k in range(3):
            a(f"v_add_u32 {vr(TRQ+k)}, {sr(T)}, {vr(TRU+k)}\nv_add_u32 {vr(TRQ8+k)}, {L_WQ - L_WU + 256}, {vr(TRU+k)}")
        self.row_addr(RK + 2, L_WK + 8 * 4864, t0)
        a(f"""s_mul_i32 {sr(T)}, {sr(S_W)}, {2*4864}
        s_sub_u32 {sr(T)}, {sr(T)}, {8*4864}
        v_add_u32 {vr(t1)}, {sr(T)}, {vr(RK+2)}
        v_bfe_u32 {vr(t0)}, v0, 2, 1
        v_mul_u32_u24 {vr(t0)}, 4864, {vr(t0)}
        v_add_u32 {vr(RK)}, {vr(t1)}, {vr(t0)}
        v_sub_u32 {vr(RK+1)}, {vr(t1)}, {vr(t0)}""")
        for j in range(4):
            a(f"""s_add_u32 {sr(T)}, {sr(S_W)}, {j}
            s_and_b32 {sr(T)}, {sr(T)}, 3
            s_lshl_b32 {sr(T+1)}, {sr(T)}, 12
            s_add_u32 {sr(T+1)}, {sr(T+1)}, {L_XX}
            v_add_u32 {vr(VS+j)}, {sr(T+1)}, {vr(V_DMA)}
            s_lshl_b32 {sr(T+1)}, {sr(T)}, 9
            s_add_u32 {sr(T+1)}, {sr(T+1)}, {L_XR}
            v_add_u32 {vr(VR4+j)}, {sr(T+1)}, {vr(L8)}
            v_add_u32 {vr(VSW+j)}, {sr(W10)}, {vr(VS+j)}""")
        a(f"""s_sub_u32 {sr(T+2)}, 63, {sr(S_H)}
        s_add_u32 {sr(T+3)}, {sr(S_W)}, 60
        s_cmp_ge_u32 {sr(T+3)}, {sr(T+2)}
        s_cselect_b32 {sr(S_DUM)}, 4, 99
        s_mov_b32 {sr(S_REDO)}, 0
        s_mov_b32 {sr(S_TOFF)}, {sr(S_LB)}
        s_lshl_b32 {sr(PUB)}, {sr(S_TOWN)}, 8
        s_add_u32 {sr(PUB)}, {sr(PUB)}, {WS_F}
        s_and_b32 {sr(T)}, {sr(S_W)}, 1
        s_lshl_b32 {sr(T)}, {sr(T)}, 7
        s_add_u32 {sr(PUB)}, {sr(PUB)}, {sr(T)}
        s_lshr_b32 {sr(T)}, {sr(S_W)}, 1
        s_and_b32 {sr(T)}, {sr(T)}, {sr(S_VAL)}
        s_cmp_eq_u32 {sr(T)}, 1
        s_cselect_b32 {sr(PUB)}, {sr(PUB)}, 0x40000000
        s_lshl_b32 {sr(S_FB)}, s2, 8
        s_add_u32 {sr(S_FB)}, {sr(S_FB)}, {WS_F + 250*256}
        s_mul_i32 {sr(T)}, {sr(S_H)}, 1792
        s_sub_u32 {sr(T)}, {sr(T)}, 768
        s_mul_i32 {sr(T+1)}, {sr(S_H)}, 62
        s_cmp_eq_u32 {sr(S_QB)}, {sr(T+1)}
        s_cselect_b32 {sr(T)}, 0, {sr(T)}
        v_mov_b32 {vr(self.VPL)}, 0x40000000
        s_xor_b32 {sr(T+1)}, {sr(S_FB)}, 256
        s_add_u32 {sr(T)}, {sr(T)}, {sr(S_FB)}
        v_writelane_b32 {vr(self.VPL)}, {sr(S_FB)}, 0
        v_writelane_b32 {vr(self.VPL)}, {sr(T+1)}, 1
        v_writelane_b32 {vr(self.VPL)}, {sr(T)}, 2
        s_mov_b32 {sr(T)}, {WS_F + 502*256}
        s_mov_b32 {sr(T+1)}, {WS_F + 503*256}
        v_writelane_b32 {vr(self.VPL)}, {sr(T)}, 3
        v_writelane_b32 {vr(self.VPL)}, {sr(T+1)}, 4
        s_sub_u32 {sr(S_FB)}, {sr(S_FB)}, {L_PC}""")
        a.flush()
        if o.get("tlb", 0) == 2: tlb()
        self.stamp("pre")
        if o.get("es", 0) == 0: self.epi_setup()
        self.stamp("es")
        nx = self.vm_since(mx) + getattr(self, "vm_adj", 0)
        if o.get("touch", 1):
            a(f"""s_mov_b64 exec, 0
            s_cmp_eq_u32 {sr(S_W)}, 0
            s_cbranch_scc1 L_tr
            s_cmp_eq_u32 {sr(S_W)}, 1
            s_cbranch_scc1 L_t0
            s_cmp_eq_u32 {sr(S_W)}, 2
            s_cbranch_scc1 L_t1
            s_branch L_t2""")
            self.rare()
            a.raw(".p2align 12")
            a.label("L_tr")
            a("s_mov_b64 exec, -1")
        nlate = o.get("nlate", 0)
        for g_ in gu[npre:npre + nlate]: a(g_)
        a(f"s_waitcnt vmcnt({nx + nlate})")
        self.stamp("xarr")
        for s in range(4):
            a(f"ds_read_b64 {vr(XR+4*s,2)}, {vr(xa0)} offset:{64*s}\nds_read_b64 {vr(XR+4*s+2,2)}, {vr(xa1)} offset:{64*s}")
        a(f"ds_read_b64 {vr(XR+16,2)}, {vr(xa2)} offset:256")
        a(f"""s_and_b32 {sr(T)}, {sr(S_W)}, 1
        s_mul_i32 {sr(T+2)}, {sr(S_TOWN)}, {TILE}
        s_cmp_eq_u32 {sr(S_VAL)}, 1
        s_cselect_b32 {sr(T+2)}, {sr(T+2)}, 0x40000000
        s_lshl_b32 {sr(T+3)}, {sr(T)}, 8
        s_add_u32 {sr(T+3)}, {sr(T+3)}, {sr(T+2)}
        s_add_u32 {sr(T+4)}, {sr(T+3)}, 4096
        s_lshl_b32 {sr(T+5)}, {sr(T)}, 9
        s_add_u32 {sr(T+5)}, {sr(T+5)}, {sr(T+2)}
        s_add_u32 {sr(T+5)}, {sr(T+5)}, 8192
        s_waitcnt lgkmcnt(0)""")
        wl = gq + gk
        a.bg, a.every, a.cnt = gu[npre + nlate:] + [wl.pop(0) for _ in range(o.get("nql", 11))], o.get("evln", 5), 0
        self.ln_packed(XR, XF, XA, TM)
        a.flush()
        self.stamp("ln")
        a(f"s_cmp_lt_u32 {sr(S_W)}, 2\ns_cbranch_scc1 L_nop")
        for s in range(4):
            a(f"buffer_store_dwordx4 {vr(XA+4*s,4)}, {vr(V_KA)}, {sr(S_WS,4)}, {sr(T+3+(s>>1))} offen offset:{2048*(s&1)} sc1")
        a(f"buffer_store_dwordx2 {vr(XA+16,2)}, {vr(V_KA+1)}, {sr(S_WS,4)}, {sr(T+5)} offen sc1\ns_waitcnt vmcnt({5 + o.get('nql', 11)})\ns_branch L_bar1")
        a.label("L_nop")
        if o.get("touch", 1):
            a(f"s_mov_b64 exec, 0\ns_cmp_eq_u32 {sr(S_W)}, 0\ns_cbranch_scc1 L_t3\ns_branch L_t4")
            a.label("L_tr2")
            a("s_mov_b64 exec, -1")
        a(f"s_waitcnt vmcnt({o.get('nql', 11)})")
        a.label("L_bar1")
        self.stamp("pub")
        xw = [f"ds_write_b128 {vr(VS)}, {vr(XA+4*s,4)} offset:{1024*s}" for s in range(4)] + [f"ds_write_b64 {vr(VR4)}, {vr(XA+16,2)}"]
        self.stamp("tch")
        PA = 249
        a(f"""v_add_u32 {vr(V_KA)}, {sr(S_LB)}, {vr(V_KA)}
        v_add_u32 {vr(V_KA+1)}, {sr(S_LB)}, {vr(V_KA+1)}
        s_mul_i32 {sr(T)}, {sr(S_B)}, {NT}
        s_mul_i32 {sr(T+1)}, {sr(S_H)}, 63
        s_add_u32 {sr(T)}, {sr(T)}, {sr(T+1)}
        s_lshl_b32 {sr(T)}, {sr(T)}, 8
        s_add_u32 {sr(T)}, {sr(T)}, {WS_F}
        s_cmp_eq_u32 {sr(S_W)}, 0
        s_cselect_b32 {sr(T)}, {sr(T)}, 0x40000000
        v_lshl_add_u32 {vr(PA)}, v0, 8, {sr(T)}
        {self.xa_srd()}
        s_waitcnt lgkmcnt(0)""")
        self.stamp("w1")
        a("s_barrier")
        self.stamp("bar1")
        m_b1 = len(a.lines)
        poll = lambda r: f"buffer_load_dword {vr(r)}, {vr(PA)}, {sr(S_WS,4)}, 0 offen sc1\nbuffer_load_dword {vr(r+2)}, {vr(PA)}, {sr(S_WS,4)}, 0 offen offset:128 sc1"

        def gate(lab, r, mask, younger):
            a(f"s_mov_b32 {sr(T+2)}, 0\ns_waitcnt vmcnt({younger})")
            a.label(lab)
            a(f"""v_cmp_ne_u32 vcc, {sr(S_N)}, {vr(r)}
            v_cmp_ne_u32 {sr(T+10,2)}, {sr(S_N)}, {vr(r+2)}
            s_add_u32 {sr(T+2)}, {sr(T+2)}, 1
            s_or_b64 vcc, vcc, {sr(T+10,2)}
            s_and_b64 vcc, vcc, {mask}
            s_cbranch_scc0 {lab}_ok
            s_sleep {o.get("slp", 4)}
            {poll(r)}
            s_waitcnt vmcnt(0)
            s_cmp_lt_u32 {sr(T+2)}, 0x40000
            s_cbranch_scc1 {lab}""")
            a.label(lab + "_ok")

        H, G_, UG, MS, CL = 16, 52, 208, 110, 104
        nup = o.get("nup", 5)
        at = {o.get("u0", 6) + o.get("usp", 6) * i: wl.pop(0) for i in range(nup)}
        for i in range(5): at[i] = xw[i]
        tagld = f"buffer_load_dword v253, off, {sr(S_DB,4)}, 0 sc1"
        at[o.get("tgp", 5)] = tagld
        if o.get("es", 0) == 1:
            n_ = len(a.lines); self.epi_setup()
            el = [l.strip() for l in a.lines[n_:]]; del a.lines[n_:]
            for k in range(5, 42):
                if k in at: continue
                c_ = 0
                while el and c_ < o.get("esn", 2):
                    x = el.pop(0); at[k] = at.get(k, "") + x + "\n"; c_ += 1 if x.startswith("v_") else 0.5
            self.es_left = el
        self.gemm(self.tr_reads(TRU), XA, H, None, at=at)
        if o.get("es", 0) == 1:
            for x in self.es_left: a(x)
        self.stamp("up")
        last = lambda srd: max(i for i, l in enumerate(a.lines) if l.strip().startswith("buffer_load") and sr(srd, 4) in l) + 1
        assert not any(sr(SQ, 4) in x for x in wl)
        nq_ = self.vm_since(m_b1) + (5 if last(SQ) < m_b1 else 0) if last(SQ) < m_b1 else self.vm_since(last(SQ))
        a(f"s_waitcnt vmcnt({self.vm_since(m_b1) if last(SQ) < m_b1 else nq_}) lgkmcnt(0)" if False else "")
        if last(SQ) < m_b1:
            a(f"s_cmp_lt_u32 {sr(S_W)}, 2\ns_cbranch_scc1 L_bg0\ns_waitcnt vmcnt({5 + self.vm_since(m_b1)})\ns_branch L_bg1\nL_bg0:\ns_waitcnt vmcnt({self.vm_since(m_b1)})\nL_bg1:\ns_waitcnt lgkmcnt(0)\ns_barrier")
        else: a(f"s_waitcnt vmcnt({self.vm_since(last(SQ))}) lgkmcnt(0)\ns_barrier")

        def flag():
            n_ = self.vm_since(max(i for i, l in enumerate(a.lines) if l.strip() == tagld) + 1)
            a(f"v_lshrrev_b32 {vr(t0)}, 5, v0\nv_lshlrev_b32 {vr(t0)}, 30, {vr(t0)}\nv_lshl_add_u32 {vr(t0)}, v0, 2, {vr(t0)}\ns_mov_b32 {sr(T+2)}, 0\ns_waitcnt vmcnt({n_})")
            a.label("L_tag")
            a(f"""v_readfirstlane_b32 {sr(S_N)}, v253
            s_add_u32 {sr(T+2)}, {sr(T+2)}, 1
            s_cmp_lg_u32 {sr(S_N)}, 0
            s_cbranch_scc1 L_tag_ok
            {tagld}
            s_waitcnt vmcnt(0)
            s_cmp_lt_u32 {sr(T+2)}, 0x40000
            s_cbranch_scc1 L_tag""")
            a.label("L_tag_ok")
            a(f"v_mov_b32 {vr(t1)}, {sr(S_N)}\nbuffer_store_dword {vr(t1)}, {vr(t0)}, {sr(S_WS,4)}, {sr(PUB)} offen sc1")
            self.m_fl = len(a.lines)
            self.stamp("flag")
        self.stamp("barG")
        if o.get("atw"):
            a("s_waitcnt vmcnt(0)")
            self.stamp("ack")
        if o.get("census"):
            k_ = S_ST + 2 * self.stnames.index(o["census"][0])
            a(f"s_waitcnt lgkmcnt(0)\nv_mov_b32 v252, {sr(k_)}\ns_lshl_b32 {sr(T)}, s2, 2\ns_add_u32 {sr(T)}, {sr(T)}, {WS_DBG}\nv_mov_b32 v253, 0\nbuffer_store_dword v252, v253, {sr(S_WS,4)}, {sr(T)} offen sc1")

        def a_tr(t):
            ad, off = (TRQ, 32 * t) if t < 2 else (TRQ8, 0)
            return [f"ds_read_b64_tr_b16 {ar(AQ1+18*t+4*s+2*u,2)}, {vr(ad+u)} offset:{9216*s + off}" for s in range(4) for u in range(2)] + \
                   [f"ds_read_b64_tr_b16 {ar(AQ1+18*t+16,2)}, {vr(ad+2)} offset:{36864 + off}"]

        def a_row(t):
            off = 4864 * t if t < 2 else 0
            return [f"ds_read_b64 {ar(A_Q+18*t+4*s+2*u,2)}, {vr(RK+t)} offset:{off + 64*s + 32*u}" for s in range(4) for u in range(2)] + \
                   [f"ds_read_b64 {ar(A_Q+18*t+16,2)}, {vr(RK+t)} offset:{off + 256}"]
        bq = lambda j, d=0: [f"ds_read_b128 {ar(18*j+4*s,4)}, {vr(VS+j)} offset:{d + 1024*s}" for s in range(4)] + [f"ds_read_b64 {ar(18*j+16,2)}, {vr(VR4+j)} offset:{d}"]

        def post(u, scale, d):
            L = [f"v_mul_f32 {vr(ACC+4*u+i)}, {sr(T+4)}, {vr(ACC+4*u+i)}" for i in range(4)] if scale else []
            L += [f"v_cvt_pk_bf16_f32 {vr(PK + (4*(u&3) + 2*(u>>2) if u < 8 else 16) + h)}, {vr(ACC+4*u+2*h)}, {vr(ACC+4*u+2*h+1)}" for h in range(2)]
            if 4 <= u < 8: L.append(f"ds_write_b128 {vr(VSW+u-4)}, {vr(PK+4*(u-4),4)} offset:{d}")
            if u == 8: L.append(f"ds_write_b64 {vr(VR4)}, {vr(PK+16,2)} offset:{d}")
            return L
        xd = [f"ds_read_b128 {vr(XD+4*j,4)}, {vr(VSW+j)}" for j in range(4)]
        self.gemm_u(AQ1, ar, [("v", XA), ("a", 18), ("a", 36), ("a", 54)], ACC, a_tr, lambda j: bq(j) if j else None, lambda u: post(u, False, L_QD),
                    vm_items=wl, other=xd, vmsp=o.get("vmsp", 3), at={o.get("flp", 22): flag})
        self.stamp("g1")
        for i in range(4): a(f"v_mov_b32 {vr(CL+i)}, -1")
        a(f"s_lshl2_add_u32 {sr(T+2)}, s2, {sr(S_W)}\ns_mul_i32 {sr(T+2)}, {sr(T+2)}, 2560\ns_add_u32 {sr(T+2)}, {sr(T+2)}, {WS_IB}")
        a(f"s_mov_b32 {sr(T+4)}, {f32(LOG2E / 12.0)}\ns_waitcnt vmcnt({self.vm_since(max(last(SK), self.m_fl)) + (last(SK) < self.m_fl)}) lgkmcnt(0)\ns_barrier")
        clr = [f"buffer_store_dwordx4 {vr(CL,4)}, {vr(V_DMA)}, {sr(S_WS,4)}, {sr(T+2)} offen sc1",
               f"buffer_store_dwordx4 {vr(CL,4)}, {vr(V_DMA)}, {sr(S_WS,4)}, {sr(T+2)} offen offset:1024 sc1",
               f"buffer_store_dwordx2 {vr(CL,2)}, {vr(L8)}, {sr(S_WS,4)}, {sr(T+2)} offen offset:2048 sc1"]
        self.stamp("bar2")
        self.gemm_u(A_Q, ar, [("a", 18 * j) for j in range(4)], ACC, a_row, lambda j: bq(j, L_QD), lambda u: post(u, True, 0), vm_items=[poll(252)] + clr, vm0=o.get("pg", 12), vmsp=o.get("csp", 8))
        self.stamp("g2")
        p = lambda r: vr(r, 2)
        CC = TM
        for j in range(4): a(f"v_dot2_f32_bf16 {vr(CC+j)}, {vr(PK+4*j)}, {vr(XD+4*j)}, 0")
        for i in range(2): a(f"v_dot2_f32_bf16 {vr(CC)}, {vr(PK+16+i)}, {vr(XA+16+i)}, {vr(CC)}")
        for i in range(1, 4):
            for j in range(4): a(f"v_dot2_f32_bf16 {vr(CC+j)}, {vr(PK+4*j+i)}, {vr(XD+4*j+i)}, {vr(CC+j)}")
        QE = TRQ
        a(f"""s_xor_b32 {sr(T+1)}, {sr(self.NB)}, 1
        v_add_u32 {vr(t0)}, {L_XX}, {vr(V_DMA)}
        v_lshl_add_u32 {vr(QE)}, {sr(T+1)}, 12, {vr(t0)}
        v_lshl_add_u32 {vr(QE+1)}, {sr(self.NB)}, 12, {vr(t0)}""")
        self.treduce(CC)
        a(f"""ds_write_b32 {vr(MXA)}, {vr(CC)}
        v_add_u32 {vr(t0)}, {L_XR}, {vr(L8)}
        v_lshl_add_u32 {vr(QE+2)}, {sr(T+1)}, 9, {vr(t0)}
        v_lshl_add_u32 {vr(QE+3)}, {sr(self.NB)}, 9, {vr(t0)}
        v_lshl_add_u32 {vr(QE+4)}, {sr(T+1)}, 8, {vr(MXR)}
        v_lshl_add_u32 {vr(QE+5)}, {sr(self.NB)}, 8, {vr(MXR)}
        s_sub_u32 {sr(T+5)}, 63, {sr(S_H)}
        s_bfm_b64 {sr(T+8,2)}, {sr(T+5)}, 0
        s_lshr_b32 {sr(T+6)}, s2, 3
        s_lshl_b32 {sr(T+6)}, {sr(T+6)}, 12
        s_add_u32 {sr(T+6)}, {sr(T+6)}, {sr(W10)}
        s_cmp_lg_u32 {sr(S_W)}, 0
        s_cbranch_scc1 L_ga_ok""")
        gate("L_ga", 252, sr(T + 8, 2), 3)
        a("s_waitcnt lgkmcnt(0)\ns_barrier")
        self.stamp("bar3")
        c1 = -2.0 * math.sqrt(2.0 / math.pi) * LOG2E
        c2 = c1 * 0.044715
        qrd = [f"ds_read_b128 {vr(MS+4*qb,4)}, {vr(QE+4+(qb&1))} offset:{512*(qb>>1)}" for qb in range(4)]
        for qb in range(4):
            qrd += [f"ds_read_b128 {ar(A_Q+18*qb+4*s,4)}, {vr(QE+(qb&1))} offset:{8192*(qb>>1) + 1024*s}" for s in range(4)]
            qrd.append(f"ds_read_b64 {ar(A_Q+18*qb+16,2)}, {vr(QE+2+(qb&1))} offset:{1024*(qb>>1)}")
        tg = self.tile_groups(0) + self.tile_groups(1) + self.tile_groups(2)[:8]
        n0 = o.get("n0", 3)
        for k in range(o.get("tpf", 0)):
            a(f"s_add_u32 {sr(T+7)}, {sr(T+6)}, {o.get('tpf0', 4*TILE) + 131072*k}\nbuffer_load_dwordx4 v[252:255], {vr(V_DMA)}, {sr(S_XA,4)}, {sr(T+7)} offen")
        for x in tg[:n0]: a(x)
        a(f"v_mov_b32 {vr(CC)}, {f32(c1)}\nv_mov_b32 {vr(CC+2)}, {f32(c2)}\nv_mov_b32 {vr(CC+4)}, 1.0")
        nq1, nt1 = o.get("nq1", 8), o.get("nt1", 5)
        bgl = []
        for i in range(max(nq1 // 2, nt1)):
            if 2 * i < nq1: bgl.append(qrd[2 * i] + "\n" + qrd[2 * i + 1])
            if i < nt1: bgl.append(tg[n0 + i])
        tg, qrd = tg[n0 + nt1:], qrd[nq1:]
        a.bg, a.every, a.cnt = bgl, 54 // (len(bgl) + 1), 0
        for i in range(18): a(f"v_pk_mul_f32 {p(G_+2*i)}, {p(H+2*i)}, {p(H+2*i)}")
        for i in range(18): a(f"v_pk_fma_f32 {p(G_+2*i)}, {p(G_+2*i)}, {p(CC+2)}, {p(CC)} op_sel_hi:[1,0,0]")
        for i in range(18): a(f"v_pk_mul_f32 {p(G_+2*i)}, {p(G_+2*i)}, {p(H+2*i)}")
        a.flush()
        self.stamp("ge1")
        esp = o.get("esp", 4)
        for i in range(36):
            a(f"v_exp_f32 {vr(G_+i)}, {vr(G_+i)}")
            if i % esp == 1 and tg: a(tg.pop(0))
            if i % 8 == 3 and qrd: a(qrd.pop(0)); a(qrd.pop(0))
        self.stamp("ge2")
        for i in range(18): a(f"v_pk_add_f32 {p(G_+2*i)}, {p(G_+2*i)}, {p(CC+4)} op_sel_hi:[1,0]")
        for i in range(36):
            a(f"v_rcp_f32 {vr(G_+i)}, {vr(G_+i)}")
            if i % esp == 1 and tg: a(tg.pop(0))
            if i % 8 == 3 and qrd: a(qrd.pop(0)); a(qrd.pop(0))
        assert not tg and not qrd
        idx = [i for i, l in enumerate(a.lines) if l.strip().startswith("buffer_load") and l.rstrip().endswith("lds")]
        m_t0, m_t1 = idx[-18] + 1, idx[-9] + 1
        for i in range(18): a(f"v_pk_mul_f32 {p(H+2*i)}, {p(G_+2*i)}, {p(H+2*i)}")
        a(f"""s_mul_i32 {sr(T)}, {sr(WV+1)}, {BLK}
        s_cmp_eq_u32 {sr(S_H)}, 1
        s_cbranch_scc1 L_ln2
        s_add_u32 {sr(T)}, {sr(T)}, {WS_U}""")
        for i in range(18): a(f"v_cvt_pk_bf16_f32 {vr(UG+i)}, {vr(H+2*i)}, {vr(H+2*i+1)}")
        a("s_branch L_ug")
        a.label("L_ln2")
        a(f"s_add_u32 {sr(T)}, {sr(T)}, {WS_G}")
        self.ln_f32(H, UG, TM)
        a.label("L_ug")
        self.stamp("ge3")
        a(f"""s_cmp_eq_u32 {sr(WV)}, 1
        s_cselect_b32 {sr(S_UG)}, {sr(T)}, 0x40000000
        s_waitcnt vmcnt({self.vm_since(m_t0)}) lgkmcnt(0)""")
        for x in self.k_reads(0, V_V): a(x)
        self.ugs = [f"buffer_store_dwordx4 {vr(UG+4*s,4)}, {vr(V_DMA)}, {sr(S_WS,4)}, {sr(S_UG)} offen offset:{1024*s} sc1" for s in range(4)]
        self.ugs.append(f"buffer_store_dwordx2 {vr(UG+16,2)}, {vr(self.VL8)}, {sr(S_WS,4)}, {sr(S_UG)} offen sc1")
        for qb in range(4): a(f"v_pk_add_f32 {p(MS+4*qb)}, {p(MS+4*qb)}, {p(MS+4*qb+2)} neg_lo:[1,1] neg_hi:[1,1]")
        for qb in range(4): a(f"v_add_f32 {vr(self.MK+qb)}, {vr(MS+4*qb)}, {vr(MS+4*qb+1)}")
        a(f"v_lshlrev_b32 {vr(t1)}, 8, v0\nv_lshlrev_b32 v231, 2, v0\nv_add_u32 v231, {L_PC}, v231\nds_write_b32 v231, {vr(t1)}")
        self.loop_init(False)
        self.n_t1 = self.vm_since(m_t1)
        self.stamp("ug")

    def loop_init(self, part):
        a = self.a
        if part:
            for qb in range(4):
                for i in range(4): a(f"v_mov_b32 {vr(V_CI+4*qb+i)}, {vr(self.MK+qb)}")
            return
        for k in range(7): a(f"v_add_u32 {vr(V_HI+k)}, {2*SLOT}, {vr(V_KA+k if k < 5 else V_VB+k-5)}")
        a(f"v_add_u32 {vr(self.VS0)}, {sr(S_LB)}, {vr(V_DMA)}\nv_add_u32 {vr(self.VS0R)}, {sr(S_LB)}, {vr(self.VL8)}\ns_mov_b32 {sr(S_CNT)}, 0\ns_mov_b32 {sr(S_INC)}, {4*TILE}")
        for i in range(4): a(f"v_mov_b32 {vr(V_L+i)}, 0")
        a(f"v_mov_b32 v227, 0x3f803f80\nv_mov_b32 v226, {sr(S_N)}\nv_mov_b32 {vr(self.VPL+1)}, 1\nv_lshlrev_b32 v231, 2, v0\nv_add_u32 v231, {L_PC}, v231")

    def head(self):
        a, o = self.a, self.o
        a.label("L_go")
        self.loop_init(True)
        a("s_waitcnt lgkmcnt(0)\ns_barrier")
        self.stamp("bar5")
        base = self.qk_mfmas(0)
        pick = lambda s_, kb, qb: base[8 * s_ + 4 * kb + qb].replace(vr(V_K + 8 * s_ + 4 * kb, 4) + ",", vr(V_V + 8 * s_ + 4 * kb, 4) + ",").replace(vr(V_K + 32 + 2 * kb, 2) + ",", vr(V_V + 32 + 2 * kb, 2) + ",")
        mf, fin = [], {}
        for qb, s_ in [(0, 0), (0, 1), (0, 2), (0, 3), (1, 0), (1, 1), (0, 4), (1, 2), (1, 3), (2, 0), (2, 1), (1, 4), (2, 2), (2, 3), (3, 0), (3, 1), (2, 4),
                       (3, 2), (3, 3), (3, 4)]:
            for kb in range(2):
                fin[qb, kb] = len(mf)
                mf.append(("s_nop 3\n" if (qb, s_, kb) == (3, 4, 0) else "") + pick(s_, kb, qb))
        enew = [e[1] for g in range(40, 76) for e in self.gaps[g] if e[0] == "E"]
        items = self.e_items(0, enew, lambda qb, j: 0, lambda qb: 999)
        for it, e in zip(items, enew):
            if e[0] == "e": it["am"] = fin[e[1], e[2] // 4]
        dm = []
        for k, (slot, j) in enumerate([(2, 8)] + [(3, j) for j in range(9)]):
            g_ = 1 + o.get("hsp", 4) * k
            if j % 4 == 0: dm.append(dict(t=f"s_add_u32 m0, {sr(S_LB)}, {slot*SLOT + 4096*(j//4)}", c=0, lo=g_ - 1, hi=g_ - 1))
            dm.append(dict(t=f"buffer_load_dwordx4 {vr(V_DMA + j//4)}, {sr(S_XA,4)}, {sr(S_TOFF)} offen offset:{1024*(j%4)} lds", c=8, lo=g_, hi=g_))
            if j == 8: dm.append(dict(t=f"s_add_u32 {sr(S_TOFF)}, {sr(S_TOFF)}, {4*TILE}", c=0, lo=g_ + 1, hi=g_ + 1))
        nh = o.get("ugh", 2) if not o.get("ugl", 0) else 0
        for k in range(nh): dm.append(dict(t=self.ugs[k], c=8, lo=3 + 16 * k, hi=3 + 16 * k))
        a(f"s_waitcnt vmcnt({self.n_t1})")
        left = self.pack(mf, items + dm + [dict(t=x, c=4, lo=i // 2, nds=2) for i, x in enumerate(self.k_reads(1))])
        print("head overflow", self.over, "left", len(left))
        left.sort(key=lambda x: not x.startswith("v_exp"))
        last = a.lines[-1].strip()
        for x in left:
            if last.startswith("v_exp") and not x.startswith("v_exp") and (last.split()[1].rstrip(",") + ",") in (x + ","): a("s_nop 0")
            a(x); last = x
        a("s_waitcnt lgkmcnt(0)")

    def tile_groups(self, slot):
        out = []
        for j in range(9):
            g = ""
            if j % 4 == 0: g = f"s_add_u32 m0, {sr(S_LB)}, {slot*SLOT + 4096*(j//4)}\ns_nop 0\n"
            g += f"buffer_load_dwordx4 {vr(V_DMA + j//4)}, {sr(S_XA,4)}, {sr(S_TOFF)} offen offset:{1024*(j%4)} lds"
            if j == 8: g += f"\ns_add_u32 {sr(S_TOFF)}, {sr(S_TOFF)}, {4*TILE}"
            out.append(g)
        return out

    def first_tiles(self):
        pass

    def wfuse(self):
        a = self.a
        BF, ACC, AF, TM, AD = 88, 108, 144, 208, 240
        LA, LB_, LM = 0, 44032, 88064
        T = S_T
        a.label("L_wfuse")
        a(f"s_add_u32 s2, s2, {NH}\ns_cmp_ge_u32 s2, {NH}\ns_cbranch_scc1 L_end")
        a(f"v_lshrrev_b32 v1, 6, v0\nv_and_b32 v0, 63, v0\nv_readfirstlane_b32 {sr(S_W)}, v1\nv_lshlrev_b32 {vr(V_DMA)}, 4, v0\ns_waitcnt lgkmcnt(0)")
        self.srd(S_WS, 78, 79, WS_END)
        self.srd(S_DB, 76, 77, 256)
        self.wf0 = 0
        self.srd(S_X, 72, 73, 82944)
        self.srd(S_W2, 62, 63, 41472)
        a(f"""s_cmp_eq_u32 s2, {self.wf0}
        s_cselect_b32 {sr(S_W1)}, s64, s70
        s_cselect_b32 {sr(S_W1+1)}, s65, s71
        s_mov_b32 {sr(S_W1+2)}, 41472
        s_mov_b32 {sr(S_W1+3)}, 0x20000
        s_cselect_b32 {sr(T+4)}, 0, 41472""")
        self.dma_rows([(S_W1, "0", LA), (S_W2, "0", LB_)], 19, 288, TM + 4, TM + 5, 11, 3, "L_wf1")
        a(f"s_lshl_b32 {sr(T)}, {sr(S_W)}, 10\ns_add_u32 {sr(T+2)}, {sr(T)}, {sr(T+4)}")
        for k in range(11):
            if k == 10: a(f"s_cmp_ge_u32 {sr(S_W)}, 1\ns_cbranch_scc1 L_wf2")
            a(f"s_add_u32 m0, {sr(T)}, {LM + 4096*k}\ns_add_u32 {sr(T+1)}, {sr(T+2)}, {4096*k}")
            a(f"buffer_load_dwordx4 {vr(V_DMA)}, {sr(S_X,4)}, {sr(T+1)} offen lds")
        a.label("L_wf2")
        self.srd(S_DW, 68, 69, 864)
        a(f"""v_and_b32 {vr(TM)}, 15, v0
        v_lshlrev_b32 {vr(TM+2)}, 4, {vr(TM)}
        v_lshlrev_b32 {vr(TM)}, 1, {vr(TM)}
        v_bfe_u32 {vr(TM+3)}, v0, 4, 1
        v_lshl_add_u32 {vr(TM+1)}, {vr(TM+3)}, 7, {vr(TM)}
        v_lshl_add_u32 {vr(TM+2)}, {vr(TM+3)}, 11, {vr(TM+2)}
        v_and_b32 {vr(TM+3)}, 1, v0
        v_lshlrev_b32 {vr(TM+3)}, 4, {vr(TM+3)}
        v_bfe_i32 {vr(TM+4)}, v0, 1, 1
        v_not_b32 {vr(TM+5)}, {vr(TM+4)}""")
        for k in range(3):
            for i in range(5): a(f"buffer_load_ushort {vr(16+5*k+i)}, {vr(TM+1 if i < 4 else TM)}, {sr(S_DW,4)}, 0 offen offset:{288*k + (32*i if i < 4 else 256)}")
        a(f"s_mov_b32 {sr(T+1)}, {WS_DWF}\ns_waitcnt vmcnt(0)")
        for f in range(15):
            a(f"v_lshlrev_b32 {vr(16+f)}, {vr(TM+3)}, {vr(16+f)}\nv_and_b32 {vr(32+2*f)}, {vr(TM+5)}, {vr(16+f)}\nv_and_b32 {vr(33+2*f)}, {vr(TM+4)}, {vr(16+f)}")
        for r_ in range(8): a(f"buffer_store_dwordx{4 if r_ < 7 else 2} {vr(32+4*r_, 4 if r_ < 7 else 2)}, {vr(TM+2)}, {sr(S_WS,4)}, {sr(T+1)} offen offset:{256*r_} sc1")
        self.tr_addr(AD, LM, False, TM + 8)
        self.row_addr(AD + 3, LA, TM + 8)
        a(f"v_add_u32 {vr(AD+5)}, {LB_}, {vr(AD+3)}")
        a(f"v_lshlrev_b32 {vr(AD+4)}, 3, v0")
        a(f"""s_lshr_b32 {sr(T)}, {sr(S_W)}, 1
        s_lshl_b32 {sr(T)}, {sr(T)}, 6
        s_and_b32 {sr(T+1)}, {sr(S_W)}, 1
        s_lshl_b32 {sr(T+1)}, {sr(T+1)}, 3
        s_add_u32 {sr(T)}, {sr(T)}, {sr(T+1)}
        v_and_b32 {vr(AD+6)}, 3, v0
        v_lshlrev_b32 {vr(AD+6)}, 3, {vr(AD+6)}
        v_add_u32 {vr(AD+7)}, {sr(T)}, {vr(AD+6)}""")
        for k in range(3): a(f"v_add_u32 {vr(AD+k)}, {vr(AD+7)}, {vr(AD+k)}")
        a(f"s_mov_b32 {sr(S_CNT)}, {sr(S_W)}")
        a("s_waitcnt vmcnt(0)\ns_barrier")
        a.label("L_wfl")
        for s in self.tr_reads(AD, vr)(0, BF): a(s)
        a("s_waitcnt lgkmcnt(0)")
        self.gemm(self.row_reads(AD + 3), BF, ACC, AF)
        for i in range(18): a(f"v_cvt_pk_bf16_f32 {vr(BF+i)}, {vr(ACC+2*i)}, {vr(ACC+2*i+1)}")
        a(f"s_cmp_eq_u32 s2, {self.wf0}\ns_cbranch_scc0 L_wf3")
        self.gemm(self.row_reads(AD + 5), BF, ACC, AF)
        for i in range(18): a(f"v_cvt_pk_bf16_f32 {vr(BF+i)}, {vr(ACC+2*i)}, {vr(ACC+2*i+1)}")
        a.label("L_wf3")
        a(f"""s_mul_i32 {sr(T)}, {sr(S_CNT)}, {BLK}
        s_add_u32 {sr(T)}, {sr(T)}, {sr(T+4)}
        s_add_u32 {sr(T)}, {sr(T)}, {WS_WF}
        s_add_u32 {sr(T+1)}, {sr(T)}, 4096""")
        self.store_block(BF, V_DMA, AD + 4, S_WS, T, T + 1, "sc1")
        for k in range(3): a(f"v_add_u32 {vr(AD+k)}, 128, {vr(AD+k)}")
        a(f"s_add_u32 {sr(S_CNT)}, {sr(S_CNT)}, 4\ns_cmp_lt_u32 {sr(S_CNT)}, 8\ns_cbranch_scc1 L_wfl")
        for k in range(3): a(f"v_sub_u32 {vr(AD+k)}, {vr(AD+k)}, {vr(AD+6)}")
        a(f"s_cmp_eq_u32 {sr(S_CNT)}, 8\ns_cbranch_scc1 L_wfl")
        a(f"""s_waitcnt vmcnt(0)
        s_barrier
        s_cmp_lg_u32 {sr(S_W)}, 0
        s_cbranch_scc1 L_end
        s_mov_b32 {sr(T+2)}, 0""")
        a.label("L_wtag")
        a(f"""buffer_load_dword {vr(TM)}, off, {sr(S_DB,4)}, 0 sc1
        s_add_u32 {sr(T+2)}, {sr(T+2)}, 1
        s_waitcnt vmcnt(0)
        v_readfirstlane_b32 {sr(T)}, {vr(TM)}
        s_cmp_lt_u32 {sr(T+2)}, 0x40000
        s_cselect_b32 {sr(T)}, {sr(T)}, 1
        s_cmp_eq_u32 {sr(T)}, 0
        s_cbranch_scc1 L_wtag
        v_lshlrev_b32 {vr(TM+1)}, 2, v0
        s_lshl_b32 {sr(T)}, s2, 8
        s_add_u32 {sr(T)}, {sr(T)}, {WS_F + 502*256}
        buffer_store_dword {vr(TM)}, {vr(TM+1)}, {sr(S_WS,4)}, {sr(T)} offen sc1
        s_endpgm""")

    def dump_stamps(self):
        a = self.a
        if self.o.get("census"):
            key, mode, m_, v_ = self.o["census"]
            a(f"""s_cmp_lg_u32 s2, 100
            s_cbranch_scc1 L_end
            v_lshlrev_b32 v16, 2, v0
            s_mov_b32 s4, {WS_DBG}""")
            for k in range(4): a(f"buffer_load_dword v{20+k}, v16, {sr(S_WS,4)}, s4 offen offset:{256*k} sc1")
            a(f"s_waitcnt vmcnt(0)\nv_readlane_b32 s8, v21, 36\ns_mov_b32 s9, 0x80000000\ns_mov_b32 s10, 0x7fffffff\ns_mov_b32 s11, 0\ns_mov_b32 s17, 0")
            for k in range(4):
                a(f"s_mov_b32 s5, 0")
                a.label(f"L_cs{k}")
                a(f"""v_readlane_b32 s6, v{20+k}, s5
                s_add_u32 s7, s5, {64*k}
                s_sub_u32 s6, s6, s8
                s_and_b32 s16, s7, {m_}
                s_cmp_lg_u32 s16, {v_}
                s_cbranch_scc1 L_cn{k}
                s_min_i32 s10, s10, s6
                s_cmp_gt_i32 s6, {self.o.get("thr", 150)}
                s_addc_u32 s17, s17, 0
                s_cmp_gt_i32 s6, s9
                s_cselect_b32 s9, s6, s9
                s_cselect_b32 s11, s7, s11""")
                a.label(f"L_cn{k}")
                a(f"s_add_u32 s5, s5, 1\ns_cmp_lt_u32 s5, {64 if k < 3 else 60}\ns_cbranch_scc1 L_cs{k}")
            a({"arg": "s_lshl_b32 s6, s11, 3", "range": "s_sub_u32 s6, s9, s10\ns_lshl_b32 s6, s6, 1", "zero": "s_mov_b32 s6, 0", "cnt": "s_lshl_b32 s6, s17, 4",
               "max": "s_lshl_b32 s6, s9, 1"}[mode])
            a("s_add_u32 s6, s6, 1000\ns_memrealtime s[4:5]\ns_waitcnt lgkmcnt(0)\ns_add_u32 s6, s6, s4")
            a.label("L_echo")
            a("s_memrealtime s[4:5]\ns_waitcnt lgkmcnt(0)\ns_sub_u32 s7, s6, s4\ns_cmp_gt_i32 s7, 0\ns_cbranch_scc1 L_echo")
            return
        if self.o.get("echo"):
            if self.o["echo"][0] == "skew":
                a(f"v_mov_b32 v16, 4\nbuffer_load_dword v17, v16, {sr(S_DB,4)}, 0 offen sc1\ns_waitcnt vmcnt(0)\nv_readfirstlane_b32 s98, v17\ns_not_b32 s98, s98")
                x, y = 98, S_ST + 2 * self.stnames.index(self.o["echo"][1])
            else:
                x, y = [S_ST + 2 * self.stnames.index(n) for n in self.o["echo"]]
            lo, hi = self.o.get("echo_ids", (0, 999))
            a(f"""s_cmp_eq_u32 {sr(S_VAL)}, 0
            s_cbranch_scc1 L_end
            s_cmp_lt_u32 s2, {lo}
            s_cbranch_scc1 L_end
            s_cmp_ge_u32 s2, {hi}
            s_cbranch_scc1 L_end
            s_and_b32 s6, s2, {self.o.get("echo_m", 0)}
            s_cmp_lg_u32 s6, {self.o.get("echo_v", 0)}
            s_cbranch_scc1 L_end
            s_memrealtime s[4:5]
            s_waitcnt lgkmcnt(0)
            s_sub_u32 s6, {sr(y)}, {sr(x)}
            s_mul_i32 s6, s6, {self.o.get("echo_mul", 1)}
            s_lshr_b32 s6, s6, {self.o.get("echo_shr", 0)}
            s_add_u32 s6, s6, {self.o.get("echo_add", 0)}
            s_add_u32 s6, s6, s4""")
            a.label("L_echo")
            a("s_memrealtime s[4:5]\ns_waitcnt lgkmcnt(0)\ns_sub_u32 s7, s6, s4\ns_cmp_gt_i32 s7, 0\ns_cbranch_scc1 L_echo")
            return
        if self.o.get("dbgst"):
            a("s_waitcnt vmcnt(0)")
            self.stamp("done")
            a("s_waitcnt lgkmcnt(0)\ns_mov_b64 exec, 1")
            slots = [1, 2, 3, 4, 5, 6, 7, 9, 11, 12, 13, 14, 15]
            a(f"s_not_b32 {sr(S_T)}, {sr(S_ST)}\nv_mov_b32 v16, {sr(S_T)}\nv_mov_b32 v17, 4\nbuffer_atomic_umax v16, v17, {sr(S_DB,4)}, 0 offen sc1")
            for i in range(min(self.nst, 12)):
                a(f"v_mov_b32 v{18+2*i}, {sr(S_ST+2*i)}\nv_mov_b32 v{19+2*i}, {4*slots[i+1]}\nbuffer_atomic_umax v{18+2*i}, v{19+2*i}, {sr(S_DB,4)}, 0 offen sc1")
            return
        if not self.o.get("stamps"): return
        T = S_T
        a(f"""s_waitcnt lgkmcnt(0)
        s_lshl_b32 {sr(T)}, s2, 2
        s_add_u32 {sr(T)}, {sr(T)}, {sr(S_W)}
        s_lshl_b32 {sr(T)}, {sr(T)}, 7
        s_add_u32 {sr(T)}, {sr(T)}, {WS_DBG}
        v_mov_b32 v1, 0""")
        for i in range(26): a(f"v_mov_b32 {vr(16+i)}, {sr(S_ST+i)}")
        for i in range(7): a(f"buffer_store_dwordx4 {vr(16+4*i,4)}, v1, {sr(S_WS,4)}, {sr(T)} offen offset:{16*i}")

    def build(self):
        a = self.a
        self.stnames = []
        a.raw(f"; @launch grid=({NWG},1,1) block=(256,1,1) lds={LDS_TOTAL}")
        a.raw('.amdgcn_target "amdgcn-amd-amdhsa--gfx950"')
        a.raw(".text")
        a.raw(f".globl {NAME}")
        a.raw(".p2align 12")
        self.entry()
        self.phase_a()
        self.rest()
        a.label("L_fin")
        self.dump_stamps()
        a.label("L_end")
        a("s_endpgm")
        self.poll2()
        if not self.o.get("touch", 1): self.rare()
        a.label("L_dummy")
        self.fallback()
        self.wfuse()
        a.raw('.section .rodata,"a"')
        a.raw(".p2align 6")
        a.raw(kernel_desc(NAME, 512, 102, 256))
        return a.text()

    def S(self, buf, qb, i=0): return V_S + buf * 32 + qb * 8 + i
    def P(self, buf, qb, i=0): return V_P + buf * 16 + qb * 4 + i

    def k_reads(self, slot, V_K=V_K):
        ka, so = (V_KA, slot * SLOT) if slot < 2 else (V_HI, (slot - 2) * SLOT)
        out = [f"ds_read_b128 {vr(V_K+8*s+4*kb,4)}, {vr(ka)} offset:{so + 2048*s + 256*kb}" for s in range(4) for kb in range(2)]
        out += [f"ds_read_b64 {vr(V_K+32+2*kb,2)}, {vr(ka+1)} offset:{so + 8192 + 512*kb}" for kb in range(2)]
        return out

    def v_reads(self, slot, dst=V_V):
        (va, vr_, vb), so = ((V_VA, V_VR, V_VB), slot * SLOT) if slot < 2 else ((V_HI + 2, V_HI + 4, V_HI + 5), (slot - 2) * SLOT)
        out = []
        for T in range(9):
            for u in range(2):
                if T < 8: out.append(f"ds_read_b64_tr_b16 {vr(dst+4*T+2*u,2)}, {vr((va if T < 4 else vb)+(T&1))} offset:{so + 2048*((T>>1)&1) + 256*u}")
                else: out.append(f"ds_read_b64_tr_b16 {vr(dst+4*T+2*u,2)}, {vr(vr_)} offset:{so + 8192 + 512*u}")
        return out

    def qk_mfmas(self, buf, czero=False):
        out = []
        for s in range(5):
            for kb in range(2):
                for qb in range(4):
                    d = vr(self.S(buf, qb, 4 * kb), 4)
                    c = ("0" if czero else vr(V_CI + 4 * qb, 4)) if s == 0 else d
                    if s < 4: out.append(f"v_mfma_f32_16x16x32_bf16 {d}, {vr(V_K+8*s+4*kb,4)}, {ar(A_Q+18*qb+4*s,4)}, {c}")
                    else: out.append(f"v_mfma_f32_16x16x16_bf16 {d}, {vr(V_K+32+2*kb,2)}, {ar(A_Q+18*qb+16,2)}, {c}")
        return out

    def pv_mfmas(self, buf, czero=False):
        out = []
        for T in range(9):
            for qb in range(4):
                o = ar(A_O + 36 * qb + 4 * T, 4)
                out.append(f"v_mfma_f32_16x16x32_bf16 {o}, {vr(V_V+4*T,4)}, {vr(self.P(buf,qb),4)}, {'0' if czero else o}")
        return out

    def plan(self):
        o = self.o
        n = 76
        fixed = [None] * n
        for i, g in enumerate(range(1, 36, 2)): fixed[g] = ("V", i)
        for i, g in enumerate([41, 44, 47, 50, 53, 56, 59, 62, 65, 68]): fixed[g] = ("K", i)
        for i, g in enumerate([42, 46, 49, 52, 55, 58, 61, 64, 67]): fixed[g] = ("D", i)
        exps = [(qb, j) for qb in range(4) for j in range(8)]
        start = 40
        order = [(start + k) % n for k in range(n)]
        free_idx = [k for k, g in enumerate(order) if fixed[g] is None]
        nsm = len(free_idx) - 32
        cand = free_idx[6:-2]
        sm_set = set(free_idx[-2:]) | {cand[int((i + 0.5) * len(cand) / (nsm - 2))] for i in range(nsm - 2)}
        nds = sum(1 for f in fixed if f is not None and f[0] != "D")
        ls = o.get("lsum", "add")
        over = max(0, (48 if ls == "add" else 32) - nds - 2 * nsm)
        ocand = [k for k, g in enumerate(order) if k >= 20 and (fixed[g] is None or fixed[g][0] != "D")]
        o_set = {ocand[int((i + 0.5) * len(ocand) / over)] for i in range(over)}
        later = []
        gaps = [[] for _ in range(n)]
        small, pend, ei = [], [], 0
        for k, g in enumerate(order):
            new = (start + k) < n
            small.extend(pend); pend = later; later = []
            small.sort(key=lambda t: 0 if t[0] == "c" else 1)
            f = fixed[g]
            want = 0
            if f is not None:
                gaps[g].append((f[0], f[1], None))
                if f[0] == "D": continue
                want = 1
            elif k in sm_set: want = 2
            else:
                qb, j = exps[ei]; ei += 1
                gaps[g].append(("E", ("e", qb, j), new))
                if j & 1: pend.append(("c", qb, j // 2))
                if ls == "add": pend.append(("a", qb, j))
                elif j & 1 and ls == "pk": pend.append(("p", qb, j // 2))
            if k in o_set: want += 1
            if k == n - 1: want = 99
            for _ in range(want):
                if small:
                    it = small.pop(0)
                    gaps[g].append(("E", it, new))
                    if it[0] == "c" and ls == "dot": (small if k == n - 1 else pend).append(("d", it[1], it[2]))
        assert not small and not pend and ei == 32
        self.gaps = gaps

    def pack(self, mf, items):
        a = self.a
        where, order, done, nvm, mpos = {}, [], 0, 0, []
        isds = lambda it: "ds_" in it["t"]
        self.over = 0
        for g, m in enumerate(mf):
            assert not any(it.get("need", 999) <= g and i not in where for i, it in enumerate(items)), g
            idx = [k for k, n_ in enumerate(order) if n_ <= g]
            if idx and max(idx) + 1 > done:
                a(f"s_waitcnt lgkmcnt({min(15, len(order) - 1 - max(idx))})"); done = max(idx) + 1
            if m.startswith("@W"):
                w_, m = m.split("\n", 1)
                a(f"s_waitcnt lgkmcnt({min(15, int(w_[2:]) + len(order))})")
            a(m)
            mpos.append(len(a.lines))
            cap, pick = 8, []
            for phase in (0, 1):
                for i, it in enumerate(items):
                    if i in where or it.get("lo", 0) > g: continue
                    if "am" in it and (it["am"] >= g or len(a.lines) - mpos[it["am"]] < 8): continue
                    d = it.get("dep")
                    if d is not None and not all(where.get(x, 999) < g for x in d): continue
                    if (phase == 0 and it.get("hi", 999) <= g) or (phase == 1 and it["c"] <= cap):
                        if it["t"].startswith("buffer") and pick and any(items[x]["c"] for x in pick) and phase == 1: continue
                        if isds(it) and sum(isds(items[x]) for x in pick) >= it.get("nds", 1) and phase == 1: continue
                        pick.append(i); where[i] = g; cap -= it["c"]
            key = lambda i: 0 if items[i]["c"] == 0 else 1 if isds(items[i]) else 2 if items[i]["t"].startswith("buffer") else 3
            for i in sorted(pick, key=key):
                a(items[i]["t"].replace("@VM", f"s_waitcnt vmcnt({nvm})"))
                nvm += items[i]["t"].startswith("buffer")
                if isds(items[i]): order.append(items[i].get("need", 999))
            self.over += max(0, -cap)
        return [it["t"] for i, it in enumerate(items) if i not in where]

    def e_items(self, buf, lst, lo, hi):
        items, idx = [], {}
        for it in lst:
            kind, qb, j = it
            d = dict(t=self.etext(buf, it), c=8 if kind == "e" else 4)
            if kind == "e": d["lo"] = lo(qb, j); d["hi"] = hi(qb) - 2 - (7 - j)
            else:
                need = [("e", qb, j)] if kind == "a" else [("c", qb, j)] if kind == "d" else [("e", qb, 2 * j), ("e", qb, 2 * j + 1)]
                d["dep"] = [idx[x] for x in need if x in idx]
                if kind == "c": d["hi"] = hi(qb) - (3 - j) // 2
            idx[it] = len(items); items.append(d)
        return items

    def etext(self, buf, it):
        kind, qb, j = it
        s = self.S(buf, qb)
        if kind == "e": return f"v_exp_f32 {vr(s+j)}, {vr(s+j)}"
        if kind == "d": return f"v_dot2_f32_bf16 {vr(V_L+qb)}, {vr(self.P(buf, qb, j))}, v227, {vr(V_L+qb)}"
        if kind == "p": return f"v_pk_add_f32 {vr(208+2*qb,2)}, {vr(208+2*qb,2)}, {vr(s+2*j,2)}"
        if kind == "a": return f"v_add_f32 {vr(V_L+qb)}, {vr(V_L+qb)}, {vr(s+j)}"
        return f"v_cvt_pk_bf16_f32 {vr(self.P(buf, qb, j))}, {vr(s+2*j)}, {vr(s+2*j+1)}"

    def period(self, p, qk=True, pv=True, e_old=True, e_new=True, kread=True, vread=True, dma=True, extra={}, dsub=None, ksub=None, vm=9, halves=(0, 1), inc=None):
        a = self.a
        bn, bo = (p + 1) & 1, p & 1
        qk_, pv_ = self.qk_mfmas(bn), self.pv_mfmas(bo, czero=(p == 0))
        qo, po = self.o.get("qkord", 1), self.o.get("pvord", 0)
        if qo == 1: qk_ = [qk_[8 * s_ + 4 * kb + qb] for kb in range(2) for qb in range(4) for s_ in range(4)] + qk_[32:]
        if qo == 2: qk_ = [qk_[8 * s_ + 4 * kb + qb] for qb in range(4) for kb in range(2) for s_ in range(4)] + qk_[32:]
        if qo == 3: qk_ = [qk_[8 * s_ + 4 * kb + qb] for qb in range(4) for s_ in range(4) for kb in range(2)] + qk_[32:]
        if po == 1: pv_ = [pv_[4 * T_ + qb] for qb in range(4) for T_ in range(9)]
        mf = qk_ + pv_
        kr, vrd = self.k_reads((p + 2) % RING), self.v_reads(p % RING)
        slot = p % RING
        n = 76
        sc = [[] for _ in range(n)]
        dgs = [g for g in range(n) if any(e[0] == "D" for e in self.gaps[g])]
        if dma:
            for j, g in enumerate(dgs):
                if j % 4 == 0: sc[g - 1].append(f"s_add_u32 m0, {sr(S_LB)}, {slot*SLOT + 4096*(j//4)}")
            sc[dgs[-1] + 1].append(f"s_add_u32 {sr(S_TOFF)}, {sr(S_TOFF)}, {inc or 4*TILE}")
        w = []
        if kread: w.append(f"vmcnt({vm})")
        if pv: w.append("lgkmcnt(0)")
        if w: sc[39].append("s_waitcnt " + " ".join(w))
        if kread: sc[75].append("s_waitcnt lgkmcnt(0)")
        for half in halves:
            rng = range(0, 40) if half == 0 else range(40, 76)
            on = qk if half == 0 else pv
            if not on:
                ds, mem, val, post = [], [], [], []
                for g in rng:
                    for s_ in sc[g]:
                        (post if s_.startswith("s_waitcnt") else mem).append(s_)
                    if g in extra: mem.append(extra[g])
                    for kind, d, new in self.gaps[g]:
                        if kind == "V" and vread: ds.append(vrd[d])
                        elif kind == "K" and kread: ds.append(kr[d])
                        elif kind == "D" and dma: mem.append(f"buffer_load_dwordx4 {vr(V_DMA + d//4)}, {sr(S_XA,4)}, {sr(S_TOFF)} offen offset:{1024*(d%4)} lds")
                        elif kind == "E" and ((new and e_new) or (not new and e_old)): val.append((d, self.etext(bn if new else bo, d)))
                if half == 1: a("s_nop 3")
                seq, pend = [], list(val)
                while pend:
                    k = 0
                    if seq and seq[-1][0][0] == "e":
                        le = seq[-1][0]
                        dep = lambda it: it[0][1] == le[1] and ((it[0][0] == "a" and it[0][2] == le[2]) or (it[0][0] == "c" and it[0][2] == le[2] // 2))
                        have = {x[0] for x in seq}
                        ok = lambda it: it[0][0] == "e" or (("e", it[0][1], it[0][2]) in have if it[0][0] == "a" else (("e", it[0][1], 2*it[0][2]+1) in have)) or not any(x[0][0] == "e" and x[0][1] == it[0][1] and (x[0][2] == it[0][2] if it[0][0] == "a" else x[0][2] // 2 == it[0][2]) for x in pend)
                        while k < len(pend) and (dep(pend[k]) or not ok(pend[k])): k += 1
                        if k == len(pend): seq.append((("n", 0, 0), "s_nop 0")); k = 0
                    seq.append(pend.pop(k))
                step = max(1, len(seq) // (len(mem) + len(ds) + 1))
                allm = ds + mem
                for x in allm[:6]: a(x)
                allm = allm[6:]
                for i_, (d, t_) in enumerate(seq):
                    a(t_)
                    if allm and i_ % step == step - 1:
                        x = allm.pop(0); a(x)
                        if x.startswith("s_add_u32 m0"): a("s_nop 0")
                for x in allm:
                    a(x)
                    if x.startswith("s_add_u32 m0"): a("s_nop 0")
                for x in post: a(x)
                if half == 0: a("s_nop 1")
                continue
            for g in rng:
                a(mf[g])
                for s_ in sc[g]: a(s_)
                if g in extra: a(extra[g])
                for kind, d, new in self.gaps[g]:
                    if kind == "V":
                        if vread: a(vrd[d])
                    elif kind == "K":
                        if kread: a(kr[d])
                        elif ksub: a(ksub.pop(0))
                    elif kind == "D":
                        if dma: a(f"buffer_load_dwordx4 {vr(V_DMA + d//4)}, {sr(S_XA,4)}, {sr(S_TOFF)} offen offset:{1024*(d%4)} lds")
                        elif dsub: a(dsub.pop(0))
                    elif (new and e_new) or (not new and e_old):
                        a(self.etext(bn if new else bo, d))

    MK, VO, VO8, GA, VS0, VS0R, VDW, VLW, VL8, VST, VPL = 232, 236, 9, 238, 250, 251, 244, 245, 246, 247, 248
    NB, PT, E_U, E_G, RS3, E_COL, RS1, RS2, MP1 = 3, 4, 5, 6, 7, 43, 36, 37, 38
    G0, GM, GP, U, DWT = 16, 26, 36, 80, (90, 252, 96, 100, 112, 116, 104, 94)
    XRS = (192, 196, 46)
    frag = staticmethod(lambda f, b: [(f, b + 4 * s) for s in range(5)])
    WD = [[("a", 216 + 4 * s) for s in range(5)], [("a", 234 + 4 * s) for s in range(5)], [("v", 208 + 4 * s) for s in range(5)]]
    WO = [[("a", 4 * s) for s in range(5)], [("a", 18 + 4 * s) for s in range(5)], [("a", 36), ("a", 40), ("a", 44), ("a", 48), ("a", 252)]]
    X1B = 98304
    X2O = L_SP - X1B
    L_L = L_SP + 9216

    def epi_setup(self):
        a = self.a
        T = S_T
        NB, PT, VO, GA = self.NB, self.PT, self.VO, self.GA
        r, g4, x, y, big, r0 = 52, 53, 54, 55, 56, 57
        a(f"""s_lshr_b32 {sr(NB)}, {sr(S_W)}, 1
        s_and_b32 {sr(PT)}, {sr(S_W)}, 1
        v_and_b32 {vr(r0)}, 15, v0
        v_lshrrev_b32 {vr(g4)}, 4, v0
        v_mul_u32_u24 {vr(x)}, 288, {vr(r0)}
        v_mov_b32 {vr(big)}, 0x40000000
        s_lshl_b32 {sr(T)}, {sr(S_TOWN)}, 1
        s_add_u32 {sr(T)}, {sr(T)}, {sr(NB)}
        s_lshl_b32 {sr(T)}, {sr(T)}, 4
        v_add_u32 {vr(r)}, {sr(T)}, {vr(r0)}
        s_mul_i32 {sr(T+1)}, {sr(S_TOWN)}, {TILE}
        s_mul_i32 {sr(T+2)}, {sr(PT)}, {BLK}
        v_add_u32 {vr(x)}, {sr(T+1)}, {vr(x)}
        s_sub_u32 {sr(T+3)}, {BLK}, {sr(T+2)}
        v_add_u32 {vr(y)}, {sr(T+3)}, {vr(x)}
        v_add_u32 {vr(x)}, {sr(T+2)}, {vr(x)}
        v_lshl_add_u32 {vr(VO)}, {vr(g4)}, 4, {vr(x)}
        v_lshl_add_u32 {vr(VO+1)}, {vr(g4)}, 4, {vr(y)}
        v_lshl_add_u32 {vr(self.VO8)}, {vr(g4)}, 3, {vr(x)}
        s_lshl_b32 {sr(T+3)}, {sr(PT)}, 11
        s_add_u32 {sr(self.E_U)}, {sr(T+3)}, {WS_U}
        s_add_u32 {sr(self.E_G)}, {sr(T+3)}, {WS_G}
        s_sub_u32 {sr(T+3)}, 4096, {sr(T+3)}
        s_lshl_b32 {sr(T)}, {sr(PT)}, 11
        s_add_u32 {sr(T)}, {sr(T)}, {WS_DWF}
        v_lshrrev_b32 {vr(x)}, 2, {vr(r0)}
        v_cmp_eq_u32 vcc, {vr(x)}, {vr(g4)}
        v_lshl_add_u32 {vr(self.VDW)}, {vr(r0)}, 4, {sr(T)}
        s_nop 0
        v_cndmask_b32 {vr(self.VDW)}, {vr(big)}, {vr(self.VDW)}, vcc
        s_lshl_b32 {sr(self.E_COL)}, {sr(S_W)}, 6
        v_lshlrev_b32 {vr(self.VL8)}, 3, v0
        v_add_u32 {vr(self.VL8)}, 4096, {vr(self.VL8)}
        v_add_u32 {vr(self.VST)}, {sr(S_LB)}, {vr(V_DMA)}
        v_add_u32 {vr(self.VST)}, {2*SLOT}, {vr(self.VST)}
        s_xor_b32 {sr(T)}, {sr(NB)}, 1
        v_xor_b32 {vr(x)}, {sr(T)}, {vr(g4)}
        v_lshl_add_u32 {vr(x)}, {vr(x)}, 4, {vr(r0)}
        s_lshl_b32 {sr(T)}, {sr(S_W)}, 2
        s_add_u32 {sr(T)}, {sr(T)}, {self.L_L}
        v_lshl_add_u32 {vr(self.VLW)}, {vr(x)}, 4, {sr(T)}
        s_sub_u32 {sr(self.MP1)}, 0, {sr(PT)}
        s_mov_b32 {sr(self.MP1+1)}, {sr(self.MP1)}""")
        for k, (d, base) in enumerate(((self.RS1, 3 * SLOT), (self.RS2, 2 * SLOT), (self.RS3, 2 * SLOT))):
            a(f"s_xor_b32 {sr(T)}, {sr(S_W)}, {k+1}\ns_mul_i32 {sr(T)}, {sr(T)}, {TILE}\ns_add_u32 {sr(d)}, {sr(T)}, {base}")
        a(f"""s_mul_i32 {sr(T)}, {sr(S_B)}, 4000
        s_add_u32 {sr(T+1)}, {sr(T)}, 3999
        s_mov_b32 {sr(T+2)}, {BLK}""")
        for k, dr in enumerate((0, -1, 1)):
            m = GA + 2 * k
            if dr: a(f"v_add_u32 {vr(m)}, {dr}, {vr(r)}\nv_cmp_eq_u32 vcc, {sr(T if dr < 0 else T+1)}, {vr(r)}")
            src = m if dr else r
            a(f"""v_lshrrev_b32 {vr(x)}, 4, {vr(src)}
            v_and_b32 {vr(y)}, 15, {vr(src)}
            v_mul_lo_u32 {vr(x)}, {vr(x)}, {sr(T+2)}
            v_lshl_add_u32 {vr(y)}, {vr(g4)}, 4, {vr(y)}
            v_lshl_add_u32 {vr(m)}, {vr(y)}, 4, {vr(x)}
            v_lshl_add_u32 {vr(m+1)}, {vr(y)}, 3, {vr(x)}
            v_add_u32 {vr(m+1)}, {sr(T+3)}, {vr(m+1)}""")
            if dr: a(f"v_cndmask_b32 {vr(m)}, {vr(m)}, {vr(big)}, vcc\nv_cndmask_b32 {vr(m+1)}, {vr(m+1)}, {vr(big)}, vcc")

    def conv_loads(self):
        GA = self.GA
        L = []
        for dst, m, so in ((self.GM, GA + 2, 1), (self.G0, GA, 1), (self.GP, GA + 4, 1), (self.U, GA, 0)):
            for k in range(2): L.append(f"buffer_load_dwordx4 {vr(dst+4*k,4)}, {vr(m)}, {sr(S_WS,4)}, {sr(self.E_U+so)} offen offset:{1024*k}")
            L.append(f"buffer_load_dwordx2 {vr(dst+8,2)}, {vr(m+1)}, {sr(S_WS,4)}, {sr(self.E_U+so)} offen")
        return L

    def rg(self, e, n): return (ar if e[0] == "a" else vr)(e[1], n)

    def w8_loads(self, regs, so):
        return [f"buffer_load_dwordx4 {self.rg(regs[s],4)}, {vr(V_DMA)}, {sr(S_WS,4)}, {sr(so)} offen offset:{1024*s}" for s in range(4)] + \
               [f"buffer_load_dwordx2 {self.rg(regs[4],2)}, {vr(self.VL8)}, {sr(S_WS,4)}, {sr(so)} offen"]

    def w_reads(self, regs, off):
        L = []
        for tt in range(2):
            L += [f"ds_read_b128 {self.rg(regs[tt][s],4)}, {vr(self.VS0)} offset:{off + BLK*tt + 1024*s}" for s in range(4)]
            L.append(f"ds_read_b64 {self.rg(regs[tt][4],2)}, {vr(self.VS0R)} offset:{off + BLK*tt}")
        return L

    def xa_srd(self):
        T = S_T
        return f"""s_mul_i32 {sr(T)}, {sr(S_B)}, {NT}
        s_mul_i32 {sr(T+1)}, {sr(S_H)}, 63
        s_add_u32 {sr(T+1)}, {sr(T+1)}, {sr(T)}
        s_mul_i32 {sr(T+1)}, {sr(T+1)}, {TILE}
        s_add_u32 {sr(S_XA)}, {sr(S_WS)}, {sr(T+1)}
        s_addc_u32 {sr(S_XA+1)}, {sr(S_WS+1)}, 0
        s_sub_u32 {sr(T+2)}, 63, {sr(S_H)}
        s_mul_i32 {sr(S_XA+2)}, {sr(T+2)}, {TILE}
        s_mov_b32 {sr(S_XA+3)}, 0x20000"""

    def rest(self):
        a, o = self.a, self.o
        T = S_T
        VPL = self.VPL
        self.plan()
        self.head()
        self.stamp("loop")
        if o.get("sktest") or o.get("echo") and o["echo"][0] == "skew":
            a(f"s_waitcnt lgkmcnt(0)\ns_mov_b64 exec, 1\ns_not_b32 s98, {sr(S_ST)}\nv_mov_b32 v226, s98\nv_mov_b32 v227, 4\ns_cmp_lg_u32 {sr(S_W)}, 0\ns_cbranch_scc1 L_sk\nbuffer_atomic_umax v226, v227, {sr(S_DB,4)}, 0 offen sc1\ns_waitcnt vmcnt(0)\nL_sk:\ns_mov_b64 exec, -1\ns_nop 3")
            self.stamp("sk")
        nh = o.get("ugh", 2)
        ex = {2 + 12 * k: x for k, x in enumerate(self.ugs[nh:])}
        ugl = o.get("ugl", 0)
        if ugl: self.period(0, extra={69: self.ugs[0]})
        else: self.period(0, vm=9 + 5, extra=ex)
        self.stamp("l0")
        a.raw(".p2align 6")
        a.label("L_loop")
        self.stamp("q1")
        for p in range(1, 5):
            ex = {}
            vm = 9
            if p == 1: ex = {73: f"s_cmp_eq_u32 {sr(S_CNT)}, 3"}
            if p == 2: ex = {70: f"buffer_load_dword v252, {vr(VPL)}, {sr(S_WS,4)}, 0 offen sc1"}
            if p == 3:
                ex = {73: f"s_cmp_eq_u32 {sr(S_CNT)}, 2", 45: f"ds_add_rtn_u32 v230, v231, {vr(VPL+1)}"}
            if p == 4:
                self.stamp("la0")
                a(f"s_cbranch_scc1 L_last")
                a.label("L_lastb")
                self.stamp("la1")
                ex = {72: f"s_add_u32 {sr(S_CNT)}, {sr(S_CNT)}, 1", 1: f"v_readfirstlane_b32 {sr(T)}, v230", 3: f"s_cmp_eq_u32 {sr(T)}, 3",
                      4: f"s_cselect_b32 {sr(T)}, {sr(S_FB)}, 2.0", 6: f"buffer_store_dword v226, v231, {sr(S_WS,4)}, {sr(T)} offen sc1"}
            if ugl:
                ex[69] = self.ugs[p]
                if p == 4: ex.update({71: f"s_mov_b32 {sr(S_UG)}, 2.0", 2: f"s_lshl2_add_u32 {sr(T)}, {sr(S_CNT)}, {sr(T)}", 3: f"s_cmp_eq_u32 {sr(T)}, 7"})
                if p == 3: ex.update({43: f"s_and_b32 {sr(T)}, {sr(S_CNT)}, 1", 44: f"v_mov_b32 {vr(VPL+1)}, {sr(T)}", 48: ex.pop(45)})
            for k_ in range(o.get("pad", 0)): ex[10 + 7 * k_] = ex.get(10 + 7 * k_, "s_nop 0") + "\ns_nop 7"
            self.period(p, extra=ex, inc=sr(S_INC) if p == 4 else None)
            if p == 1: a("s_cbranch_scc1 L_p14")
        a("s_branch L_loop")
        a.label("L_p14")
        SW = 66
        self.stamp("p14")
        a(f"s_cmp_eq_u32 {sr(S_DUM)}, 4\ns_cbranch_scc0 L_dummyb")
        for i in range(16): a(f"v_mov_b32 {vr(V_CI+i)}, 0xff800000")
        a("s_nop 1")
        a.label("L_dummyb")
        ex = dict(zip([2, 6, 8, 12, 14, 18, 20, 24, 26, 30], self.w_reads(self.WD, 0)))
        ex[0] = "s_waitcnt vmcnt(9)"
        ex.update(dict(zip([4, 10, 16, 22, 28], self.w8_loads(self.WD[2], SW))))
        self.period(14, dma=False, kread=False, extra=ex, halves=(0,))
        self.stamp("tail")
        self.tail(SW)
        self.stamp("end")
        self.epilogue(SW)

    def rare(self):
        a = self.a
        T = S_T
        SW = 66
        a.label("L_last")
        a(f"s_waitcnt vmcnt(9)\ns_mov_b32 {sr(T+2)}, 0")
        a.label("L_late")
        a(f"""v_cmp_ne_u32 vcc, {sr(S_N)}, v252
        s_add_u32 {sr(S_XA)}, {sr(S_WS)}, {WS_WF}
        s_addc_u32 {sr(S_XA+1)}, {sr(S_WS+1)}, 0
        s_mov_b32 {sr(S_XA+2)}, {18*BLK}
        s_add_u32 {sr(S_TOFF)}, {sr(S_LB)}, {9*BLK}
        s_mov_b32 {sr(S_INC)}, {-9*BLK}
        s_lshr_b32 {sr(SW)}, {sr(S_W)}, 1
        s_lshl_b32 {sr(SW)}, {sr(SW)}, 30
        s_add_u32 {sr(SW+1)}, {sr(SW)}, {WS_WF + 8*BLK}
        s_add_u32 {sr(SW)}, {sr(SW)}, {WS_WF + 17*BLK}
        s_and_b32 {sr(T)}, vcc_lo, 31
        s_cbranch_scc0 L_lastb
        buffer_load_dword v252, {vr(self.VPL)}, {sr(S_WS,4)}, 0 offen sc1
        s_add_u32 {sr(T+2)}, {sr(T+2)}, 1
        s_waitcnt vmcnt(0)
        s_cmp_lt_u32 {sr(T+2)}, 0x40000
        s_cbranch_scc1 L_late
        s_branch L_lastb""")

    units = [(0, 0), (0, 1), (1, 0), (1, 1), (2, 0)]
    V15 = V_K

    def stage(self, slot, T):
        src = ar(A_O + 36 * slot + 4 * T, 4)
        if slot == 0: return f"ds_write_b128 {vr(self.VST)}, {src} offset:{1024*T}"
        if slot == 2: return f"ds_write_b128 {vr(self.VS0)}, {src} offset:{1024*T}"
        if T < 4: return f"ds_write_b128 {vr(self.VST)}, {src} offset:{SLOT + 1024*T + (4096 if slot == 3 else 0)}"
        return f"{'s_not_b64' if slot == 1 else 's_mov_b64'} exec, {sr(self.MP1,2)}\nds_write_b128 {vr(self.VST)}, {src} offset:{SLOT + 8192}\ns_mov_b64 exec, -1"

    def dwf(self, k, i):
        f = 5 * k + i
        return self.DWT[f >> 1] + 2 * (f & 1)

    def tail(self, SW):
        a, o = self.a, self.o
        mf, pos, start = [], {}, {}
        for t_, qb in ((14, 0), (14, 1), (15, 0), (15, 1), (14, 2), (15, 2), (14, 3), (15, 3)):
            start[t_, qb] = len(mf)
            for Tt in ([0, 1, 2, 3, 8, 4, 5, 6, 7] if qb & 1 else range(9)):
                o_ = ar(A_O + 36 * qb + 4 * Tt, 4)
                pos[t_, qb, Tt] = len(mf)
                mf.append(f"v_mfma_f32_16x16x32_bf16 {o_}, {vr((V_V if t_ == 14 else self.V15)+4*Tt,4)}, {vr(self.P(t_ & 1,qb),4)}, {o_}")
        lst = []
        for qb in range(4):
            for j in range(8):
                lst.append(("e", qb, j))
                if j & 1: lst.append(("c", qb, j // 2))
        lst += [("a", qb, j) for qb in range(4) for j in range(8)]
        items = self.e_items(1, lst, lambda qb, j: 0 if j < 4 else 1, lambda qb: start[15, qb] - 2)
        for it in items[48:]: it["lo"] = o.get("alo", 26)
        v15 = [dict(t=x, c=4, need=pos[15, 0, i // 2], hi=pos[15, 0, i // 2] - o.get("vlead", 7), lo=0 if i < 16 else 2) for i, x in enumerate(self.v_reads(3, self.V15))]
        wr = []
        nown = o.get("nown", 4)
        self.own = [(2, T_) for T_ in range(nown, 9)] + [(3, T_) for T_ in (0, 1, 2, 3, 8)]
        g = o.get("w0", 23)
        for k, (sl, Tt) in enumerate([(0, T_) for T_ in range(9)] + [(1, T_) for T_ in (0, 1, 2, 3, 8)] + [(2, T_) for T_ in range(nown)]):
            g = max(pos[15, sl, Tt] + 5, g)
            wr.append(dict(t=self.stage(sl, Tt), c=o.get("wc", 20), lo=int(g), hi=int(g)) if g < 72 else dict(t=self.stage(sl, Tt), c=4, lo=999))
            g += o.get("wsp", 2.7)
        n0 = len(items) + len(v15)
        wo = []
        for i, x in enumerate(self.w_reads(self.WO, SLOT)):
            r0 = self.WO[i // 5][i % 5][1]
            wo.append(dict(t=("@VM\n" if i == 0 else "") + x, c=4, dep=sorted({n0 + r0 // 4, n0 + (r0 + 3) // 4 if (r0 + 3) // 4 < 9 else n0 + 8}), lo=o.get("wo0", 40) + 3 * i, hi=o.get("wo0", 40) + 3 * i + 2))
        cl = self.conv_loads()
        dl = [f"buffer_load_dwordx4 {vr(self.DWT[r],4)}, {vr(self.VDW)}, {sr(S_WS,4)}, 0 offen offset:{256*r}" for r in range(7)]
        dl.append(f"buffer_load_dwordx2 {vr(self.DWT[7],2)}, {vr(self.VDW)}, {sr(S_WS,4)}, 0 offen offset:{256*7}")
        fr = {96: 9, 100: 18, 104: 45, 112: 27, 116: 36}
        vm = [(x, 0) for x in cl] + [(x, fr.get(self.DWT[r], 0)) for r, x in enumerate(dl)]
        used = {w["lo"] for w in wr}
        vi, g = [], o.get("m0", 24)
        for x, lo in vm:
            g = max(g, lo)
            while int(g) in used: g += 1
            vi.append(dict(t=x, c=8, lo=int(g), hi=int(g)) if g < 72 else dict(t=x, c=8, lo=999))
            g += o.get("msp", 2.2)
        left = self.pack(mf, items + v15 + wr + wo + vi)
        self.done_a = {(qb, j) for qb in range(4) for j in range(8) if self.etext(1, ("a", qb, j)) not in left}
        left = [x for x in left if not x.startswith("v_add_f32")]
        print("tail overflow", self.over, "left", len(left), "adds done", len(self.done_a))
        self.left = left

    def epilogue(self, SW):
        a, o = self.a, self.o
        T = S_T
        p = lambda r: vr(r, 2)
        NB, PT, MK, VO, units, MP1 = self.NB, self.PT, self.MK, self.VO, self.units, self.MP1
        U, GM, G0, GP = self.U, self.GM, self.G0, self.GP
        X2O = self.X2O
        R1, R2, R3 = 230, 231, 249
        LA, LS, M = 10, 226, 48

        def weave(main, fill, per):
            fill = list(fill)
            for x in main:
                a(x)
                for _ in range(per):
                    if fill: a(fill.pop(0))
            return fill
        for x in self.left:
            if not x.startswith("buffer"): a(x)
        lv = [x for x in self.left if x.startswith("buffer")]
        lv += [f"buffer_load_dwordx4 {vr(self.XRS[j],4)}, {vr(VO+j)}, {sr(S_X,4)}, {sr(self.E_COL)} offen" for j in range(2)]
        lv.append(f"buffer_load_dwordx2 {vr(self.XRS[2],2)}, {vr(self.VO8)}, {sr(S_X,4)}, 0 offen offset:256")
        S1 = lambda qb, j: self.S(1, qb, j)
        rounds = [[] for _ in range(6)]
        for qb in range(4):
            rem = [j for j in range(8) if (qb, j) not in self.done_a]
            prs = [j for j in rem if j % 2 == 0 and j + 1 in rem]
            sing = [j for j in rem if (j & ~1) not in prs]
            r_ = 0
            while len(prs) > 1:
                for x, y in zip(prs[0::2], prs[1::2]): rounds[r_].append(f"v_pk_add_f32 {p(S1(qb,x))}, {p(S1(qb,x))}, {p(S1(qb,y))}")
                prs = prs[0::2]; r_ += 1
            for k_, j in enumerate(sing + ([prs[0], prs[0] + 1] if prs else [])): rounds[min(5, max(r_, 2) + k_)].append(f"v_add_f32 {vr(V_L+qb)}, {vr(V_L+qb)}, {vr(S1(qb,j))}")
        for r_ in rounds:
            for x in r_: a(x)
        a(f"v_add_u32 {vr(R1)}, {sr(self.RS1)}, {vr(V_DMA)}\nv_add_u32 {vr(R2)}, {sr(self.RS2)}, {vr(V_DMA)}")
        self.treduce(V_L)
        a(f"ds_write_b32 {vr(self.VLW)}, {vr(V_L)}")
        acc = lambda slot: [f"v_accvgpr_read_b32 {vr(M+i)}, {ar(A_O+36*slot+16+i)}" for i in range(20)]
        a(f"""v_add_u32 {vr(R3)}, {sr(self.RS3)}, {vr(V_DMA)}
        v_add_u32 {vr(LA+1)}, {self.L_L}, {vr(V_DMA)}
        v_and_b32 {vr(LS+1)}, 0xf0, {vr(V_DMA)}
        s_lshl_b32 {sr(T)}, {sr(NB)}, 8
        s_add_u32 {sr(T+8)}, {sr(T)}, {self.L_L}
        v_add_u32 {vr(LS)}, {sr(T+8)}, {vr(LS+1)}""")
        for x in lv: a(x)
        a(f"""s_xor_b32 {sr(T)}, s2, 1
        s_mul_i32 {sr(T)}, {sr(T)}, {IB}
        s_mul_i32 {sr(T+9)}, {sr(NB)}, 5120
        s_add_u32 {sr(T+9)}, {sr(T+9)}, {WS_IB}
        s_add_u32 {sr(T)}, {sr(T)}, {sr(T+9)}
        s_lshl_b32 {sr(T+10)}, {sr(PT)}, 11
        s_add_u32 {sr(T+1)}, {sr(T+10)}, {sr(T)}
        s_add_u32 {sr(T)}, {sr(T)}, 4096
        s_cmp_eq_u32 {sr(PT)}, 0
        s_cselect_b32 {sr(T)}, 0x40000000, {sr(T)}
        s_mov_b32 {sr(T+2)}, {f32(2.0**100)}
        s_mul_i32 {sr(T+12)}, s2, {IB}
        s_add_u32 {sr(T+12)}, {sr(T+12)}, {sr(T+9)}
        s_add_u32 {sr(T+13)}, {sr(T+12)}, {sr(T+10)}
        s_waitcnt lgkmcnt(0)
        s_barrier""")
        self.stamp("B1")

        def rd(X, offs):
            L = [[f"ds_read_b128 {vr(X[k][i],4)}, {vr((R1, R2, R3)[k])} offset:{offs[k] + 1024*i}" for i in range(4)] for k in range(3)]
            L8 = [f"ds_read_b128 {vr(X[k][4],4)}, {vr((R1, R2, R3)[k])} offset:8192" for k in range(3)]
            return L, L8

        def adds(X, k, rng):
            return [f"v_pk_add_f32 {p(M+4*i+2*h)}, {p(M+4*i+2*h)}, {p(X[k][i]+2*h)}" for i in rng for h in range(2)]
        X = [[128, 132, 136, 140, 144], [148, 152, 156, 160, 68], [72, 76, 200, 204, 108]]
        PK = 128
        L, L8 = rd(X, (0, 4096, 0))
        a(f"ds_read_b128 {vr(LA,4)}, {vr(LA+1)}\nds_read_b128 {vr(LS,4)}, {vr(LS)}")
        rest = weave(L[0] + L[1] + L[2], acc(1), 2)
        assert not rest
        a(f"s_mov_b64 exec, {sr(MP1,2)}")
        for x in L8: a(x)
        a(f"""s_mov_b64 exec, -1
        s_waitcnt lgkmcnt(11)
        v_add_f32 {vr(LA)}, {vr(LA)}, {vr(LA+1)}
        v_add_f32 {vr(LA+2)}, {vr(LA+2)}, {vr(LA+3)}
        v_add_f32 {vr(LS)}, {vr(LS)}, {vr(LS+1)}
        v_add_f32 {vr(LA)}, {vr(LA)}, {vr(LA+2)}
        v_add_f32 {vr(LS+2)}, {vr(LS+2)}, {vr(LS+3)}
        v_cmp_nge_f32 vcc, {sr(T+2)}, {vr(LA)}""")
        for x in adds(X, 0, range(4)): a(x)
        a(f"""s_cmp_lg_u64 vcc, 0
        s_cselect_b32 {sr(T+2)}, 1, 0
        s_andn2_b32 {sr(T+2)}, {sr(T+2)}, {sr(S_REDO)}
        s_cbranch_scc1 L_fallback
        v_add_f32 {vr(PK+10)}, {vr(LS)}, {vr(LS+2)}
        v_mov_b32 {vr(PK+11)}, {vr(MK+1)}
        s_waitcnt lgkmcnt(7)""")
        for x in adds(X, 1, range(4)): a(x)
        a("s_waitcnt lgkmcnt(3)")
        a3 = adds(X, 2, range(4))
        cv = [f"v_cvt_pk_bf16_f32 {vr(PK+i)}, {vr(M+2*i)}, {vr(M+2*i+1)}" for i in range(10)]
        for x in a3[:4] + a3[4:6] + cv[:4]: a(x)
        a(f"buffer_store_dwordx4 {vr(PK,4)}, {vr(V_DMA)}, {sr(S_WS,4)}, {sr(T+1)} offen sc1")
        for x in a3[6:] + cv[4:8]: a(x)
        a(f"buffer_store_dwordx4 {vr(PK+4,4)}, {vr(V_DMA)}, {sr(S_WS,4)}, {sr(T+1)} offen offset:1024 sc1")
        a("s_waitcnt lgkmcnt(0)")
        for kk in range(3):
            for x in adds(X, kk, [4]): a(x)
        for x in cv[8:]: a(x)
        a(f"buffer_store_dwordx4 {vr(PK+8,4)}, {vr(V_DMA)}, {sr(S_WS,4)}, {sr(T)} offen sc1")
        self.stamp("sent")
        a(f"s_cmp_eq_u32 {sr(S_VAL)}, 0\ns_cbranch_scc1 L_fin")
        C, UP = 140, 68
        IN = [(200, 204, 226), (164, 168, 252), (192, 196, 172)]
        VXW, VXR, VF, LO = 78, 79, 10, 36
        wr = [self.stage(*e) for e in self.own]

        def inbox(k):
            return [f"buffer_load_dwordx4 {vr(IN[k][0],4)}, {vr(V_DMA)}, {sr(S_WS,4)}, {sr(T+13)} offen sc1",
                    f"buffer_load_dwordx4 {vr(IN[k][1],4)}, {vr(V_DMA)}, {sr(S_WS,4)}, {sr(T+13)} offen offset:1024 sc1",
                    f"buffer_load_dwordx4 {vr(IN[k][2],4)}, {vr(V_DMA+1)}, {sr(S_WS,4)}, {sr(T+12)} offen sc1"]
        for x in inbox(0): a(x)
        n0 = len(a.lines)
        a(f"""s_lshl_b32 {sr(T)}, {sr(NB)}, 12
        s_add_u32 {sr(T)}, {sr(T)}, {sr(T+10)}
        s_add_u32 {sr(T)}, {sr(T)}, {self.X1B}
        v_add_u32 {vr(VXW)}, {sr(T)}, {vr(V_DMA)}
        s_lshl_b32 {sr(T)}, {sr(NB)}, 9
        s_add_u32 {sr(T)}, {sr(T)}, {self.X1B + 4096}
        v_add_u32 {vr(VXR)}, {sr(T)}, {vr(self.VL8)}
        s_lshl_b32 {sr(T)}, {sr(PT)}, 12
        s_add_u32 {sr(T)}, {sr(T)}, {self.X1B}
        v_add_u32 {vr(VF)}, {sr(T)}, {vr(V_DMA)}
        v_xor_b32 {vr(VF+1)}, 4096, {vr(VF)}
        s_lshl_b32 {sr(T)}, {sr(PT)}, 9
        s_add_u32 {sr(T)}, {sr(T)}, {self.X1B + 4096}
        v_add_u32 {vr(VF+2)}, {sr(T)}, {vr(self.VL8)}
        v_xor_b32 {vr(VF+3)}, 512, {vr(VF+2)}
        v_subrev_u32 {vr(R2)}, {2*SLOT}, {vr(R2)}
        v_subrev_u32 {vr(R3)}, {2*SLOT}, {vr(R3)}
        s_waitcnt vmcnt(9)""")
        self.stamp("cv0")
        un = [f"v_lshlrev_b32 {vr(M+2*i)}, 16, {vr(U+i)}\nv_and_b32 {vr(M+1+2*i)}, 0xffff0000, {vr(U+i)}" for i in range(10)]
        w8 = self.w8_loads(self.WO[2], SW + 1)
        for k, src in enumerate((GM, G0, GP)):
            for i in range(5):
                d = vr(C + 4 * i, 4)
                a(f"v_mfma_f32_16x16x16_bf16 {d}, {vr(self.dwf(k, i),2)}, {vr(src+2*i,2)}, {'0' if k == 0 else d}")
                a(w8.pop(0) if i in (0, 3) and w8 else un.pop(0))
        self.stamp("cv1")
        a(f"v_and_b32 {vr(LO+1)}, 0xf0, {vr(V_DMA)}\nv_add_u32 {vr(LO)}, {sr(T+8)}, {vr(LO+1)}\ns_nop 1")
        for i in range(10): a(f"v_pk_mul_f32 {p(C+2*i)}, {p(C+2*i)}, {p(M+2*i)}")
        for i in range(10):
            a(f"v_cvt_pk_bf16_f32 {vr(UP+i)}, {vr(C+2*i)}, {vr(C+2*i+1)}")
        body = a.lines[n0:]; del a.lines[n0:]
        step = max(1, len(body) // len(wr))
        for i, l in enumerate(body):
            if i % o.get("wstep", step) == 0 and wr: a(wr.pop(0))
            a.lines.append(l)
        for x in wr: a(x)
        ac = acc(3)
        a(f"ds_write_b128 {vr(VXW)}, {vr(UP,4)} offset:{X2O}")
        for x in ac[:6]: a(x)
        a(f"ds_write_b128 {vr(VXW)}, {vr(UP+4,4)} offset:{X2O + 1024}")
        for x in ac[6:12]: a(x)
        a(f"""s_mov_b64 exec, {sr(MP1,2)}
        ds_write_b64 {vr(VXR)}, {vr(UP+8,2)} offset:{X2O}
        s_mov_b64 exec, -1""")
        self.stamp("x2")
        for x in inbox(1): a(x)
        for x in ac[12:]: a(x)
        a("s_waitcnt lgkmcnt(0)\ns_barrier")
        self.stamp("B2")
        X = [[128, 132, 136, 140, 144], [148, 152, 156, 160, 188], [16, 20, 24, 28, 32]]
        L, L8 = rd(X, (4096, 4096, 0))
        BU = [[("v", r) for r in (100, 104, 108, 112, 116)], [("v", r) for r in (118, 122, 180, 184, 126)]]
        BO = [self.frag("v", 128), self.frag("v", 146)]
        AB = 80

        def bfrags(dst, off):
            out = []
            for s in range(5):
                for j in range(2):
                    out.append(f"ds_read_b128 {self.rg(dst[j][s],4)}, {vr(VF+j)} offset:{off + 1024*s}" if s < 4 else f"ds_read_b64 {self.rg(dst[j][4],2)}, {vr(VF+2+j)} offset:{off}")
            return out

        def fg(W, Bf):
            out = []
            for s in range(5):
                for u, (tt, j) in enumerate(units):
                    d = vr(AB + 4 * u, 4)
                    if s < 4: out.append(f"v_mfma_f32_16x16x32_bf16 {d}, {self.rg(W[tt][s],4)}, {self.rg(Bf[j][s],4)}, {d}")
                    else: out.append(f"v_mfma_f32_16x16x16_bf16 {d}, {self.rg(W[tt][4],2)}, {self.rg(Bf[j][4],2)}, {d}")
            return out
        xu = []
        for u, (tt, j) in enumerate(units):
            for h in range(2):
                x = self.XRS[j] + 2 * tt + h if tt < 2 else self.XRS[2] + h
                xu += [f"v_lshlrev_b32 {vr(AB+4*u+2*h)}, 16, {vr(x)}", f"v_and_b32 {vr(AB+1+4*u+2*h)}, 0xffff0000, {vr(x)}"]
        a("s_waitcnt vmcnt(14)")
        weave(bfrags(BU, X2O), xu, 2)
        pl = lambda k, i, e: f"v_add_f32 {vr(M+4*i+e)}, {vr(M+4*i+e)}, {vr(X[k][i]+e)}"
        ds = L[0] + L[1] + L[2] + [f"s_not_b64 exec, {sr(MP1,2)}\n" + "\n".join(L8) + "\ns_mov_b64 exec, -1", f"ds_read_b128 {vr(LO,4)}, {vr(LO)} offset:512"]
        nis = [1] * 12 + [3, 1]
        gap = [[] for _ in range(25)]
        tot = [10]
        for g in range(25): tot.append(tot[-1] + (nis[g] if g < 14 else 0))
        A0 = [pl(0, i, e) for i in range(4) for e in range(4)]
        A1 = [pl(1, i, e) for i in range(4) for e in range(4)]
        ib = inbox(2)
        for g, m in enumerate(fg(self.WD, BU)):
            if g % 5 == 0: a(f"s_waitcnt lgkmcnt({min(15, tot[g] - 2 * (g // 5 + 1))})")
            a(m)
            if g == 8: a(f"s_waitcnt lgkmcnt({tot[g] - 14})")
            if g == 16: a(f"s_waitcnt lgkmcnt({tot[g] - 18})")
            if g < 14: a(ds[g])
            if 8 <= g < 14: a(A0.pop(0))
            elif g in (14, 18, 22): a(ib.pop(0))
            elif g >= 14:
                for _ in range(2): a(A0.pop(0) if A0 else A1.pop(0))
        assert not A0 and len(A1) % 2 == 0
        n1 = 16 - len(A1)
        for e in range(n1, 16, 2): a(f"v_pk_add_f32 {p(M+e)}, {p(M+e)}, {p(X[1][e//4]+e%4)}")
        a("s_waitcnt lgkmcnt(0)")
        for x in adds(X, 2, range(4)): a(x)
        a(f"v_add_f32 {vr(LO)}, {vr(LO)}, {vr(LO+1)}\nv_add_f32 {vr(LO+2)}, {vr(LO+2)}, {vr(LO+3)}")
        for kk in range(3):
            for x in adds(X, kk, [4]): a(x)
        a(f"s_mov_b32 {sr(T+2)}, 0\nv_add_f32 {vr(LO)}, {vr(LO)}, {vr(LO+2)}")
        self.stamp("own")
        w, PU = 40, 128
        mo = MK + 3

        def chk(k):
            r = [IN[k][q] + i for q in range(3) for i in range(4)]
            c = [f"v_max3_u32 v46, {vr(r[0])}, {vr(r[1])}, {vr(r[2])}", f"v_max3_u32 v47, {vr(r[3])}, {vr(r[4])}, {vr(r[5])}"]
            for q in range(3): c.append(f"v_max3_u32 v{46+(q&1)}, v{46+(q&1)}, {vr(r[6+2*q])}, {vr(r[7+2*q])}")
            return c + ["v_max_u32 v46, v46, v47", "v_cmp_eq_u32 vcc, -1, v46"]

        def take(k, with_chk):
            r = [IN[k][q] + i for q in range(3) for i in range(4)]
            lp_, mp = r[10], r[11]
            wt = [f"v_min_f32 {vr(w)}, {vr(mo)}, {vr(mp)}", f"v_sub_f32 {vr(w+2)}, {vr(w)}, {vr(mp)}", f"v_sub_f32 {vr(w)}, {vr(w)}, {vr(mo)}",
                  f"v_exp_f32 {vr(w+2)}, {vr(w+2)}", f"v_exp_f32 {vr(w)}, {vr(w)}", f"v_mul_f32 {vr(w+4)}, {vr(w+2)}, {vr(lp_)}",
                  f"v_fmac_f32 {vr(w+4)}, {vr(w)}, {vr(LO)}", f"v_rcp_f32 {vr(w+4)}, {vr(w+4)}", f"v_mul_f32 {vr(w)}, {vr(w)}, {vr(w+4)}",
                  f"v_mul_f32 {vr(w+2)}, {vr(w+2)}, {vr(w+4)}"]
            un = []
            for i in range(10): un += [f"v_lshlrev_b32 {vr(PU+2*i)}, 16, {vr(r[i])}", f"v_and_b32 {vr(PU+1+2*i)}, 0xffff0000, {vr(r[i])}"]
            c = chk(k) if with_chk else []
            for i in range(10):
                a(wt[i])
                if c: a(c.pop(0))
                a(un.pop(0)); a(un.pop(0))
        a("s_waitcnt vmcnt(6)")
        take(0, True)
        a("s_cmp_eq_u64 vcc, 0\ns_cbranch_scc0 L_poll2")
        a.label("L_got")
        self.stamp("got")
        for i in range(10): a(f"v_pk_mul_f32 {p(M+2*i)}, {p(M+2*i)}, {p(w)} op_sel_hi:[1,0]")
        for i in range(10): a(f"v_pk_fma_f32 {p(M+2*i)}, {p(PU+2*i)}, {p(w+2)}, {p(M+2*i)} op_sel_hi:[1,0,1]")
        for i in range(10):
            a(f"v_cvt_pk_bf16_f32 {vr(UP+i)}, {vr(M+2*i)}, {vr(M+2*i+1)}")
            if i == 3: a(f"ds_write_b128 {vr(VXW)}, {vr(UP,4)}")
            if i == 7: a(f"ds_write_b128 {vr(VXW)}, {vr(UP+4,4)} offset:1024")
        a(f"""s_not_b64 exec, {sr(MP1,2)}
        ds_write_b64 {vr(VXR)}, {vr(UP+8,2)}
        s_mov_b64 exec, -1
        s_waitcnt lgkmcnt(0)
        s_barrier""")
        self.stamp("B3")
        for x in bfrags(BO, 0): a(x)
        for g, m in enumerate(fg(self.WO, BO)):
            if g % 5 == 0: a(f"s_waitcnt lgkmcnt({8 - 2 * (g // 5)})" + ("\ns_nop 0" if g == 20 else ""))
            a(m)
        self.stamp("gem")
        a("s_nop 3")
        for j in range(2):
            for tt in range(2):
                u = 2 * tt + j
                for h in range(2): a(f"v_cvt_pk_bf16_f32 {vr(16+4*j+2*tt+h)}, {vr(AB+4*u+2*h)}, {vr(AB+4*u+2*h+1)}")
            a(f"buffer_store_dwordx4 {vr(16+4*j,4)}, {vr(VO+j)}, {sr(S_OUT,4)}, {sr(self.E_COL)} offen {o.get('ofl', '')}")
        a(f"s_cmp_ge_u32 {sr(S_W)}, 2\ns_cbranch_scc1 L_fin")
        for h in range(2): a(f"v_cvt_pk_bf16_f32 {vr(24+h)}, {vr(AB+16+2*h)}, {vr(AB+16+2*h+1)}")
        a(f"buffer_store_dwordx2 v[24:25], {vr(self.VO8)}, {sr(S_OUT,4)}, 0 offen offset:256 {o.get('ofl', '')}")
        self.stamp("fin")

        def poll2():
            a.label("L_poll2")
            for k in (1, 2, 0):
                for x in inbox((k + 2) % 3): a(x)
                a("s_waitcnt vmcnt(6)")
                for x in chk(k): a(x)
                a(f"s_add_u32 {sr(T+2)}, {sr(T+2)}, 1\ns_cmp_eq_u64 vcc, 0\ns_cbranch_scc1 L_take{k}")
            a(f"s_cmp_lt_u32 {sr(T+2)}, 0x10000\ns_cbranch_scc1 L_poll2")
            for k in (0, 1, 2):
                a.label(f"L_take{k}")
                take(k, False)
                a("s_branch L_got")
        self.poll2 = poll2

    def fallback(self):
        a = self.a
        T = S_T
        MXR = 208
        a.label("L_fallback")
        a(f"""s_waitcnt vmcnt(0) lgkmcnt(0)
        s_barrier
        s_mov_b32 {sr(S_REDO)}, 1
        s_mov_b32 {sr(S_UG)}, 0x40000000
        {self.xa_srd()}
        s_mov_b32 {sr(S_TOFF)}, {sr(S_LB)}
        s_cmp_eq_u32 {sr(S_DUM)}, 4
        s_cselect_b32 {sr(S_CNT)}, 15, 16""")
        for i in range(4): a(f"v_mov_b32 {vr(MXR+i)}, 0xff800000")
        a.label("L_fb1")
        for g in self.tile_groups(0): a(g)
        a("s_waitcnt vmcnt(0)")
        for x in self.k_reads(0): a(x)
        a("s_waitcnt lgkmcnt(0)")
        for m in self.qk_mfmas(0, czero=True): a(m)
        a("s_nop 7")
        for qb in range(4):
            for i in range(0, 8, 2): a(f"v_max3_f32 {vr(MXR+qb)}, {vr(MXR+qb)}, {vr(self.S(0,qb,i))}, {vr(self.S(0,qb,i+1))}")
        a(f"s_sub_u32 {sr(S_CNT)}, {sr(S_CNT)}, 1\ns_cmp_lg_u32 {sr(S_CNT)}, 0\ns_cbranch_scc1 L_fb1")
        self.greduce([MXR + i for i in range(4)], MXR + 4, "v_max_f32")
        a(f"""v_and_b32 {vr(MXR+4)}, 15, v0
        v_lshlrev_b32 {vr(MXR+4)}, 4, {vr(MXR+4)}
        v_add_u32 {vr(MXR+4)}, {L_SP}, {vr(MXR+4)}
        s_lshl_b32 {sr(T)}, {sr(S_W)}, 2
        s_xor_b32 {sr(T+1)}, {sr(self.NB)}, 1
        v_lshl_add_u32 {vr(MXR+5)}, {sr(self.NB)}, 8, {vr(MXR+4)}
        v_lshl_add_u32 {vr(MXR+4)}, {sr(T+1)}, 8, {vr(MXR+4)}
        v_add_u32 {vr(MXR+6)}, {sr(T)}, {vr(MXR+4)}
        v_add_u32 {vr(MXR+7)}, {sr(T)}, {vr(MXR+5)}""")
        for qb in range(4): a(f"ds_write_b32 {vr(MXR+6+(qb&1))}, {vr(MXR+qb)} offset:{512*(qb>>1)}")
        a("s_waitcnt lgkmcnt(0)\ns_barrier")
        for qb in range(4): a(f"ds_read_b128 {vr(16+4*qb,4)}, {vr(MXR+4+(qb&1))} offset:{512*(qb>>1)}")
        a(f"s_mov_b32 {sr(S_TOFF)}, {sr(S_LB)}")
        for g in self.tile_groups(0) + self.tile_groups(1) + self.tile_groups(2)[:8]: a(g)
        a("s_waitcnt lgkmcnt(0)")
        for qb in range(4):
            r = 16 + 4 * qb
            a(f"v_max_f32 {vr(r)}, {vr(r)}, {vr(r+1)}\nv_max3_f32 {vr(r)}, {vr(r)}, {vr(r+2)}, {vr(r+3)}")
            a(f"v_sub_f32 {vr(self.MK+qb)}, 0, {vr(r)}")
        a("s_waitcnt vmcnt(0)")
        for x in self.k_reads(0, V_V): a(x)
        self.loop_init(False)
        a("s_branch L_go")


if __name__ == "__main__":
    opt = json.loads(sys.argv[2]) if len(sys.argv) > 2 else {}
    g = G(opt)
    txt = g.build()
    if opt.get("align", 1):
        from align import align
        for n2 in (1, 2):
            try:
                txt, st = align(txt, chains=[(1, "L_tr")] * 3 + [(1, "L_tr2"), (n2, "L_tr2")] if opt.get("touch", 1) else None)
                break
            except AssertionError as e:
                if n2 == 2: raise
        print("align: promoted %d, padded %d, left %d" % st)
    txt = txt.replace("\n", "\n; stamps " + json.dumps(g.stnames) + "\n; map %d\n" % g.mp, 1)
    open(sys.argv[1], "w").write(txt)
```

```python
import sys, json, math
from common import Asm, vr, ar, sr, kernel_header, kernel_desc
from lay import *

NAME = "standalone__conformer_family_branchformer__speech_kernel"
NH = 2
NWG = 252 + NH
CHAINS = (3, 3)
RING = 4
LDS_RING = RING * TILE
LDS_TOTAL = 163840
SLOT = 4 * TILE
L_WU, L_WQ, L_WK = 0, 41472, 82944
L_XX, L_XR = 126976, 143360
L_QD = 18432
L_XS = L_XX + L_QD
L_MX = 81920
L_PC = LDS_TOTAL - 256
L_DUMP = 123904
L_SP = 147456

S_X, S_WS, S_XA, S_DB, S_W1, S_W2, S_OUT, S_DW = 8, 12, 16, 20, 24, 28, 32, 36
S_W, S_B, S_H, S_QB, S_TOFF, S_CNT, S_DUM, S_LB, S_TOWN, S_TSND, S_VAL, S_REDO = range(40, 52)
S_UG = 25
S_N, S_FB = 98, 99
S_INC = 24
S_T = 52
S_ST = 76

V_KA, V_VA, V_VR, V_DMA, V_L, V_VB = 1, 3, 5, 6, 10, 14
V_S, V_CI, V_P, V_K, V_V = 16, 80, 96, 128, 164
V_HI = 200
V_X = 208
A_O, A_Q, A_F = 0, 144, 216

LOG2E = 1.4426950408889634
import struct
def f32(x): return "0x%08x" % struct.unpack("<I", struct.pack("<f", x))[0]


class BAsm(Asm):
    def __init__(self):
        super().__init__()
        self.bg, self.every, self.cnt, self.skip = [], 0, 0, 0

    def __call__(self, s):
        for l in s.split("\n"):
            l = l.strip()
            if not l: continue
            self.lines.append("    " + l)
            if self.bg and self.every and not l.startswith(("s_nop", "v_mov_b32", "v_exp", "v_rcp", "v_rsq", "v_sqrt", "s_add_u32 m0")):
                self.cnt += 1
                if self.cnt >= self.every:
                    self.cnt = 0
                    self.pop()

    def pop(self):
        for x in self.bg.pop(0).split("\n"): self.lines.append("    " + x)

    def flush(self):
        while self.bg: self.pop()
        self.every = 0


class G:
    def __init__(self, opt):
        self.o = opt
        self.a = BAsm()
        self.nst = 0
        self.fill = []

    def stamp(self, name):
        if self.o.get("stamps"):
            if name in self.o.get("skipst", []): return
            if "only" in self.o and name not in self.o["only"]: return
            if self.nst >= 11: return
            self.a(f"{'s_memtime' if self.o.get('cyc') else 's_memrealtime'} {sr(S_ST + 2*self.nst, 2)}")
            self.stnames.append(name)
            self.nst += 1

    def srd(self, dst, lo, hi, n):
        if dst == S_WS and self.o.get("wsoff"):
            self.a(f"s_add_u32 {sr(dst)}, {sr(lo)}, {self.o['wsoff']}\ns_addc_u32 {sr(dst+1)}, {sr(hi)}, 0\ns_mov_b32 {sr(dst+2)}, {n}\ns_mov_b32 {sr(dst+3)}, 0x20000")
            return
        self.a(f"s_mov_b32 {sr(dst)}, {sr(lo)}\ns_mov_b32 {sr(dst+1)}, {sr(hi)}\ns_mov_b32 {sr(dst+2)}, {n}\ns_mov_b32 {sr(dst+3)}, 0x20000")

    def greduce(self, regs, tmp, op="v_add_f32"):
        a = self.a
        for sw in ("32", "16"):
            for i, r in enumerate(regs): a(f"v_mov_b32 {vr(tmp+i)}, {vr(r)}")
            if len(regs) < 3: a("s_nop 1" if len(regs) == 1 else "s_nop 0")
            for i, r in enumerate(regs): a(f"v_permlane{sw}_swap_b32 {vr(r)}, {vr(tmp+i)}")
            for i, r in enumerate(regs): a(f"{op} {vr(r)}, {vr(r)}, {vr(tmp+i)}")

    def treduce(self, r, op="v_add_f32"):
        a = self.a
        a(f"v_permlane32_swap_b32 {vr(r)}, {vr(r+2)}\nv_permlane32_swap_b32 {vr(r+1)}, {vr(r+3)}")
        a(f"{op} {vr(r)}, {vr(r)}, {vr(r+2)}\n{op} {vr(r+1)}, {vr(r+1)}, {vr(r+3)}\ns_nop 1")
        a(f"v_permlane16_swap_b32 {vr(r)}, {vr(r+1)}\n{op} {vr(r)}, {vr(r)}, {vr(r+1)}")

    def rbf(self, r):
        self.a(f"v_cvt_pk_bf16_f32 {vr(r)}, {vr(r)}, {vr(r)}\nv_lshlrev_b32 {vr(r)}, 16, {vr(r)}")

    def ln_tail(self, F, out, t, mimic):
        a = self.a
        p = lambda r: vr(r, 2)
        self.greduce([t, t + 1], t + 2)
        a(f"v_mul_f32 {vr(t+2)}, {f32(1.0/144)}, {vr(t)}")
        a(f"v_mul_f32 {vr(t+3)}, {vr(t+2)}, {vr(t+2)}")
        a(f"v_mov_b32 {vr(t+4)}, {f32(1.0/144)}")
        a(f"v_fma_f32 {vr(t)}, {vr(t+1)}, {vr(t+4)}, -{vr(t+3)}")
        a(f"v_max_f32 {vr(t)}, 0, {vr(t)}")
        if mimic:
            self.rbf(t)
            self.rbf(t + 2)
            a(f"v_add_f32 {vr(t)}, {f32(1e-5)}, {vr(t)}")
            self.rbf(t)
            a(f"v_sqrt_f32 {vr(t)}, {vr(t)}\ns_nop 0")
            self.rbf(t)
            a(f"v_rcp_f32 {vr(t)}, {vr(t)}\ns_nop 0")
        else:
            a(f"v_add_f32 {vr(t)}, {f32(1e-5)}, {vr(t)}")
            a(f"v_rsq_f32 {vr(t)}, {vr(t)}\ns_nop 0")
        a(f"v_mul_f32 {vr(t+2)}, -{vr(t+2)}, {vr(t)}")
        for i in range(18):
            a(f"v_pk_fma_f32 {p(F+2*i)}, {p(F+2*i)}, {p(t)}, {p(t+2)} op_sel_hi:[1,0,0]")
        for i in range(18):
            a(f"v_cvt_pk_bf16_f32 {vr(out+i)}, {vr(F+2*i)}, {vr(F+2*i+1)}")

    def ln_packed(self, X, F, out, t):
        a = self.a
        a(f"v_mov_b32 {vr(t+6)}, 0x3f803f80")
        for k in range(4): a(f"v_mov_b32 {vr(t+k)}, 0")
        for i in range(18):
            a(f"v_dot2_f32_bf16 {vr(t+2*(i&1))}, {vr(X+i)}, {vr(t+6)}, {vr(t+2*(i&1))}")
            a(f"v_dot2_f32_bf16 {vr(t+1+2*(i&1))}, {vr(X+i)}, {vr(X+i)}, {vr(t+1+2*(i&1))}")
        for i in range(2):
            a(f"v_lshlrev_b32 {vr(F+2*i)}, 16, {vr(X+i)}\nv_and_b32 {vr(F+2*i+1)}, 0xffff0000, {vr(X+i)}")
        a(f"v_pk_add_f32 {vr(t,2)}, {vr(t,2)}, {vr(t+2,2)}")
        un = []
        for i in range(2, 18):
            un.append(f"v_lshlrev_b32 {vr(F+2*i)}, 16, {vr(X+i)}\nv_and_b32 {vr(F+2*i+1)}, 0xffff0000, {vr(X+i)}")
        sv = (a.bg, a.every, a.cnt, a.skip)
        n0 = len(a.lines)
        a.bg, a.every = [], 0
        self.ln_tail(F, out, t, True)
        tail = a.lines[n0:]
        del a.lines[n0:]
        a.bg, a.every, a.cnt, a.skip = sv
        k = next(i for i, l in enumerate(tail) if "v_pk_fma" in l)
        for i, l in enumerate(tail[:k]):
            if "s_nop" in l and un: continue_nop = True
            a(l)
            if un and not l.strip().startswith("s_nop"): a(un.pop(0))
        while un: a(un.pop(0))
        for l in tail[k:]: a(l)

    def ln_f32(self, F, out, t):
        a = self.a
        p = lambda r: vr(r, 2)
        a(f"v_pk_add_f32 {p(t)}, {p(F)}, {p(F+2)}\nv_pk_add_f32 {p(t+2)}, {p(F+4)}, {p(F+6)}")
        a(f"v_pk_mul_f32 {p(t+4)}, {p(F)}, {p(F)}\nv_pk_mul_f32 {p(t+6)}, {p(F+2)}, {p(F+2)}")
        for i in range(2, 18):
            if i >= 4: a(f"v_pk_add_f32 {p(t+2*(i&1))}, {p(t+2*(i&1))}, {p(F+2*i)}")
            a(f"v_pk_fma_f32 {p(t+4+2*(i&1))}, {p(F+2*i)}, {p(F+2*i)}, {p(t+4+2*(i&1))}")
        a(f"v_pk_add_f32 {p(t)}, {p(t)}, {p(t+2)}\nv_pk_add_f32 {p(t+4)}, {p(t+4)}, {p(t+6)}")
        a(f"v_add_f32 {vr(t)}, {vr(t)}, {vr(t+1)}\nv_add_f32 {vr(t+1)}, {vr(t+4)}, {vr(t+5)}")
        self.ln_tail(F, out, t, False)

    def gemm_u(self, AF, rf, Bs, ACC, afr, bfr, post, vm_items=(), other=(), lead=7, vm0=0, vmsp=4, at={}):
        a = self.a
        units = [(0, j) for j in range(4)] + [(1, j) for j in range(4)] + [(2, 0)]
        seq, dl = [], {}
        bs = lambda j, o_, n: self.rg((Bs[j][0], Bs[j][1] + o_), n)
        rem = lambda u: (f"v_mfma_f32_16x16x16_bf16 {vr(ACC+4*u,4)}, {rf(AF+18*units[u][0]+16,2)}, {bs(units[u][1],16,2)}, {vr(ACC+4*u,4)}", u)
        A = [afr(t) for t in range(3)]
        Bf = [bfr(j) for j in range(4)]

        def use(t, j, s, k):
            for x in (A[t][2 * s:2 * s + 2] if s < 4 else A[t][8:]) + ([Bf[j][s]] if Bf[j] else []): dl.setdefault(x, k)
        for g in range(4):
            for s in range(4):
                for u in range(3 * g, 3 * g + 3) if g < 3 else []:
                    t, j = units[u]
                    d = vr(ACC + 4 * u, 4)
                    use(t, j, s, len(seq))
                    seq.append((f"v_mfma_f32_16x16x32_bf16 {d}, {rf(AF+18*t+4*s,4)}, {bs(j,4*s,4)}, {'0' if s == 0 else d}", None))
                if s == 0 and g > 0:
                    for u in range(3 * g - 3, 3 * g):
                        use(units[u][0], units[u][1], 4, len(seq)); seq.append(rem(u))
        last = seq[-3:]; seq = seq[:-3]
        ds = sorted(dl.items(), key=lambda e: e[1]) + [(x, 99) for x in other]
        vm_items = list(vm_items)
        lastvm = vm0 - vmsp
        order, ready, q, done = [], [], [], 0

        def issue():
            x, k_ = ds.pop(0); a(x); order.append(k_)

        def wait(k):
            nonlocal done
            idx = [i_ for i_, k_ in enumerate(order) if k_ <= k]
            if idx and max(idx) + 1 > done:
                a(f"s_waitcnt lgkmcnt({min(15, len(order) - 1 - max(idx))})"); done = max(idx) + 1
        while ds and ds[0][1] < 6: issue()
        for k, (m, fin) in enumerate(seq):
            assert not ds or ds[0][1] > k, (k, ds[0])
            wait(k)
            a(m)
            for u_, kk in list(ready):
                if k - kk >= 4: q += post(u_); ready.remove((u_, kk))
            if fin is not None: ready.append((fin, k))
            if k in at: at[k]()
            due = sum(1 for x, k_ in ds if k_ <= k + lead)
            if due == 0 and vm_items and k >= lastvm + vmsp:
                a(vm_items.pop(0)); lastvm = k; continue
            cap = 2
            for _ in range(min(due, 3)): issue(); cap -= 1
            if cap == 2:
                if q and q[0].startswith("ds_"): a(q.pop(0)); order.append(99); cap -= 1
                elif ds: issue(); cap -= 1
            while cap > 0 and q and not q[0].startswith("ds_"):
                a(q.pop(0)); cap -= 1
        assert not ready
        while ds: issue()
        wait(98)
        for x in vm_items: a(x)
        for x in q[:4]: a(x)
        a(f"s_nop {max(0, 4 - len(q[:4]))}")
        for m, _ in last: a(m)
        for x in q[4:]: a(x)
        a(f"s_nop {max(0, 6 - len(q[4:]))}")
        for u in range(6, 9):
            for x in post(u): a(x)

    def gemm(self, reads, B, ACC, AF, late=(), at={}, per=2):
        a = self.a
        buf = lambda T: 18 * (T % 6)
        ng = 3 * (4 * per + 1)

        def grp(g):
            r = [reads(T, buf(T)) for T in range(3 * g, 3 * g + 3)]
            return [r[t][per * s + u] for s in range(4) for t in range(3) for u in range(per)] + [r[t][4 * per] for t in range(3)]
        rem = lambda T: f"v_mfma_f32_16x16x16_bf16 {vr(ACC+4*T,4)}, {ar(buf(T)+16,2)}, {vr(B+16,2)}, {vr(ACC+4*T,4)}"
        pend = grp(0) + grp(1) + grp(2) + list(late)
        issued = k = 0

        def issue(n):
            nonlocal issued
            for _ in range(n):
                if issued < len(pend): a(pend[issued]); issued += 1

        def mf(x):
            nonlocal k
            a(x); issue(per if per == 2 else (2 if k % 4 == 0 else 1))
            if k in at: a(at[k])
            k += 1
        issue(self.o.get('look', 12) if per == 2 else self.o.get('look1', 8))
        for g in range(3):
            for s in range(4):
                need = ng * g + 3 * per * (s + 1)
                a(f"s_waitcnt lgkmcnt({min(15, issued - need)})")
                for T in range(3 * g, 3 * g + 3):
                    d = vr(ACC + 4 * T, 4)
                    mf(f"v_mfma_f32_16x16x32_bf16 {d}, {ar(buf(T)+4*s,4)}, {vr(B+4*s,4)}, {'0' if s == 0 else d}")
                if s == 0 and g > 0:
                    for T in range(3 * g - 3, 3 * g): mf(rem(T))
                if g == 1 and s == 0: assert issued <= 2 * ng + 6 * per, "group 2 overwrites group 0 too early"
        issue(99)
        a(f"s_waitcnt lgkmcnt({len(late)})\ns_nop 2")
        for T in range(6, 9): a(rem(T))
        a("s_nop 7")

    def tr_reads(self, ad, rf=ar):
        def f(T, dst):
            out = []
            for s in range(4):
                for u in range(2):
                    out.append(f"ds_read_b64_tr_b16 {rf(dst+4*s+2*u,2)}, {vr(ad+u)} offset:{9216*s + 32*T}")
            out.append(f"ds_read_b64_tr_b16 {rf(dst+16,2)}, {vr(ad+2)} offset:{36864 + 32*T}")
            return out
        return f

    def row_reads(self, ad, sw=None):
        def f(T, dst):
            r = ad if sw is None or T == 8 else sw[T & 1]
            out = []
            for s in range(4):
                for u in range(2):
                    out.append(f"ds_read_b64 {ar(dst+4*s+2*u,2)}, {vr(r)} offset:{4864*T + 64*s + 32*u}")
            out.append(f"ds_read_b64 {ar(dst+16,2)}, {vr(r)} offset:{4864*T + 256}")
            return out
        return f

    def dma_rows(self, jobs, cpr, rstride, vo, vc, n_first, first_waves, lab):
        a = self.a
        mul = {18: 3641, 19: 3450}[cpr]
        dr, dc = 256 // cpr, 256 % cpr
        a(f"s_lshl_b32 {sr(S_T)}, {sr(S_W)}, 6")
        a(f"v_add_u32 {vr(vc)}, {sr(S_T)}, v0")
        a(f"v_mul_u32_u24 {vr(vo)}, {mul}, {vr(vc)}")
        a(f"v_lshrrev_b32 {vr(vo)}, 16, {vr(vo)}")
        a(f"v_mul_u32_u24 {vr(vc+1)}, {cpr}, {vr(vo)}")
        a(f"v_sub_u32 {vr(vc)}, {vr(vc)}, {vr(vc+1)}")
        a(f"v_mul_u32_u24 {vr(vo)}, {rstride}, {vr(vo)}")
        a(f"v_lshl_add_u32 {vr(vo)}, {vr(vc)}, 4, {vr(vo)}")
        a(f"s_lshl_b32 {sr(S_T)}, {sr(S_W)}, 10")
        a(f"v_mov_b32 {vr(vc+1)}, {rstride - 16*cpr}")
        for k in range(n_first):
            if k == n_first - 1:
                a(f"s_cmp_ge_u32 {sr(S_W)}, {first_waves}\ns_cbranch_scc1 {lab}")
            for srd, so, lb in jobs:
                a(f"s_add_u32 m0, {sr(S_T)}, {lb + 4096*k}")
                a("s_nop 0")
                a(f"buffer_load_dwordx4 {vr(vo)}, {sr(srd,4)}, {so} offen lds")
            if k < n_first - 1:
                a(f"v_add_u32 {vr(vc)}, {dc}, {vr(vc)}")
                a(f"v_cmp_le_u32 vcc, {cpr}, {vr(vc)}")
                a(f"v_add_u32 {vr(vo)}, {dr*rstride + 16*dc}, {vr(vo)}")
                a(f"v_subrev_u32 {vr(vc+2)}, {cpr}, {vr(vc)}")
                a(f"v_cndmask_b32 {vr(vc)}, {vr(vc)}, {vr(vc+2)}, vcc")
                a(f"v_cndmask_b32 {vr(vc+2)}, 0, {vr(vc+1)}, vcc")
                a(f"v_add_u32 {vr(vo)}, {vr(vo)}, {vr(vc+2)}")
        a.label(lab)

    def voff_table(self, dst, cpr, rstride, vc, step=256):
        a = self.a
        mul = {18: 29128, 19: 27595}[cpr]
        n = len(dst)
        a(f"s_mov_b32 {sr(S_T)}, {rstride - 16*cpr}")
        a(f"v_mul_u32_u24 {vr(dst[0])}, {mul}, {vr(vc)}")
        for k in range(1, n): a(f"v_add_u32 {vr(dst[k])}, {(step*k % cpr)*mul}, {vr(dst[0])}")
        for k in range(n): a(f"v_lshrrev_b32 {vr(dst[k])}, 19, {vr(dst[k])}")
        for k in range(n): a(f"v_mad_i32_i24 {vr(dst[k])}, {vr(dst[k])}, {sr(S_T)}, {vr(vc+1)}")

    def dma_lin(self, srd, soff, lb, v16, lab):
        a = self.a
        a(f"s_lshl_b32 {sr(S_T)}, {sr(S_W)}, 10")
        for k in range(11):
            if k == 10:
                a(f"s_cmp_ge_u32 {sr(S_W)}, 1\ns_cbranch_scc1 {lab}")
            a(f"s_add_u32 m0, {sr(S_T)}, {lb + 4096*k}")
            a(f"s_add_u32 {sr(S_T+1)}, {sr(S_T)}, {soff + 4096*k}")
            a(f"buffer_load_dwordx4 {vr(v16)}, {sr(srd,4)}, {sr(S_T+1)} offen lds")
        a.label(lab)

    def tr_addr(self, ad, base, swapped, t):
        a = self.a
        a(f"v_lshrrev_b32 {vr(t)}, 2, v0")
        a(f"v_mul_u32_u24 {vr(t)}, 288, {vr(t)}")
        a(f"v_and_b32 {vr(t+1)}, 3, v0")
        a(f"v_lshl_add_u32 {vr(t)}, {vr(t+1)}, 3, {vr(t)}")
        a(f"v_add_u32 {vr(ad+2)}, {base}, {vr(t)}")
        if swapped:
            a(f"v_bfe_u32 {vr(t)}, v0, 4, 1")
            a(f"v_mul_u32_u24 {vr(t)}, {16*288}, {vr(t)}")
            a(f"v_add_u32 {vr(ad)}, {vr(ad+2)}, {vr(t)}")
            a(f"v_sub_u32 {vr(ad+1)}, {vr(ad+2)}, {vr(t)}")
            a(f"v_add_u32 {vr(ad+1)}, {16*288}, {vr(ad+1)}")
        else:
            a(f"v_mov_b32 {vr(ad)}, {vr(ad+2)}")
            a(f"v_add_u32 {vr(ad+1)}, {16*288}, {vr(ad+2)}")

    def row_addr(self, ad, base, t):
        a = self.a
        a(f"v_and_b32 {vr(t)}, 15, v0")
        a(f"v_mul_u32_u24 {vr(t)}, 304, {vr(t)}")
        a(f"v_lshrrev_b32 {vr(t+1)}, 4, v0")
        a(f"v_lshl_add_u32 {vr(t)}, {vr(t+1)}, 3, {vr(t)}")
        a(f"v_add_u32 {vr(ad)}, {base}, {vr(t)}")

    def store_block(self, src, v16, v8, srd, soff, soff2, flags=""):
        a = self.a
        for s in range(4):
            a(f"buffer_store_dwordx4 {vr(src+4*s,4)}, {vr(v16)}, {sr(srd,4)}, {sr(soff)} offen offset:{1024*s} {flags}")
        a(f"buffer_store_dwordx2 {vr(src+16,2)}, {vr(v8)}, {sr(srd,4)}, {sr(soff2)} offen {flags}")

    def entry(self):
        a = self.a
        kernel_header(a, NAME)
        a(f"s_load_dwordx16 s[56:71], s[0:1], 0")
        a(f"s_load_dwordx8 s[72:79], s[0:1], 64")
        a(f"s_getpc_b64 {sr(S_W1,2)}")
        a.label("L_pf")
        a(f"""s_mov_b32 {sr(S_W1+2)}, L_dummy-L_pf
        s_mov_b32 {sr(S_W1+3)}, 0x20000
        v_lshlrev_b32 v2, 4, v0
        buffer_load_dwordx4 v[252:255], v2, {sr(S_W1,4)}, 0 offen
        s_lshl_b32 s3, s2, 9
        s_and_b32 s3, s3, 0x7000
        buffer_load_dwordx4 v[252:255], v2, {sr(S_W1,4)}, s3 offen
        v_lshrrev_b32 v1, 6, v0
        s_sub_u32 s2, s2, {NH}
        v_readfirstlane_b32 {sr(S_W)}, v1
        s_memrealtime s[4:5]
        s_cmp_ge_u32 s2, {NWG - NH}
        s_cbranch_scc1 L_wfuse""")
        if self.o.get("late"):
            m_, v_, n_ = self.o["late"]
            a(f"""s_and_b32 s3, s2, {m_}
            s_cmp_lg_u32 s3, {v_}
            s_cbranch_scc1 L_nl
            s_memrealtime s[4:5]
            s_waitcnt lgkmcnt(0)
            s_add_u32 s6, s4, {n_}
            L_lt:
            s_memrealtime s[4:5]
            s_waitcnt lgkmcnt(0)
            s_sub_u32 s7, s6, s4
            s_cmp_gt_i32 s7, 0
            s_cbranch_scc1 L_lt
            L_nl:""")
        if self.o.get("stamps"):
            a("s_memrealtime s[100:101]" if not self.o.get("cyc") else "s_memtime s[100:101]")
        self.mp = 2

    def vm_since(self, mark):
        return sum(1 for l in self.a.lines[mark:] if l.strip().startswith("buffer_"))

    def phase_a(self):
        a, o = self.a, self.o
        XR, XF, XA, ACC, G_, PK = 16, 34, 146, 110, 16, 164
        B4, XD = 16, 88
        VS, VSW, VR4, MXA, MXR, L8, TRU, TRQ, TRQ8, RK, TM = 200, 204, 208, 212, 213, 214, 215, 218, 221, 224, 228
        VK, VU = list(range(182, 193)), list(range(193, 200)) + list(range(104, 108))
        AQ1 = 200
        t0, t1, t2 = 250, 251, 227
        T = S_T
        WV, W10, UOFF, M1, PUB, M3 = 72, 70, 71, 69, 68, 65
        a(f"""v_and_b32 v0, 63, v0
        s_bfe_u32 {sr(S_B)}, s2, 0x10001
        s_lshr_b32 {sr(S_QB)}, s2, 2
        s_lshr_b32 {sr(T)}, {sr(S_W)}, 1
        s_xor_b32 {sr(T)}, {sr(T)}, s2
        s_andn2_b32 {sr(T)}, 1, {sr(T)}
        s_lshl1_add_u32 {sr(T+3)}, {sr(S_QB)}, {sr(T)}
        s_mul_i32 {sr(T)}, {sr(S_B)}, {NT}
        s_add_u32 {sr(T+1)}, {sr(T+3)}, {sr(T)}
        s_and_b32 {sr(T+2)}, {sr(S_W)}, 1
        s_lshl1_add_u32 {sr(T+2)}, {sr(T+1)}, {sr(T+2)}
        v_lshlrev_b32 {vr(V_DMA)}, 4, v0
        s_mul_i32 {sr(T+1)}, {sr(T+2)}, {16*288}
        s_mul_i32 {sr(S_LB)}, {sr(S_W)}, {BLK}
        s_add_u32 m0, {sr(S_LB)}, {L_XS}
        s_mov_b32 {sr(S_X+2)}, 2304000
        s_mov_b32 {sr(S_X+3)}, {sr(S_W1+3)}
        s_add_u32 {sr(S_CNT)}, {sr(T+1)}, 4096
        s_waitcnt lgkmcnt(0)
        s_mov_b64 {sr(S_X,2)}, s[56:57]""")
        for k in range(4): a(f"buffer_load_dwordx4 {vr(V_DMA)}, {sr(S_X,4)}, {sr(T+1)} offen offset:{1024*k} lds")
        a(f"s_add_u32 m0, {sr(S_LB)}, {L_XS + 4096}\ns_mov_b32 exec_hi, 0\nbuffer_load_dwordx4 {vr(V_DMA)}, {sr(S_X,4)}, {sr(S_CNT)} offen lds\ns_mov_b32 exec_hi, -1")
        mx = len(a.lines)
        a(f"""s_add_u32 {sr(S_LB)}, {sr(S_LB)}, {L_XS}
        s_and_b32 {sr(S_H)}, s2, 1
        s_lshl1_add_u32 {sr(S_TOWN)}, {sr(S_QB)}, {sr(S_H)}
        s_cmp_lt_u32 {sr(S_TOWN)}, {NT}
        s_cselect_b32 {sr(S_VAL)}, 1, 0
        s_add_u32 {sr(S_TOWN)}, {sr(S_TOWN)}, {sr(T)}""")
        SQ, SK, SU = S_W2, S_W1, S_XA
        self.srd(SU, 66, 67, 82944)
        self.srd(SQ, 58, 59, 41472)
        self.srd(SK, 60, 61, 41472)
        a(f"s_lshr_b32 {sr(T)}, s2, 3\ns_lshl_b32 {sr(T)}, {sr(T)}, 12\ns_lshl_b32 {sr(W10)}, {sr(S_W)}, 10\ns_add_u32 {sr(T)}, {sr(T)}, {sr(W10)}")
        a(f"buffer_load_dwordx4 v[252:255], {vr(V_DMA)}, {sr(SU,4)}, {sr(T)} offen")
        for srd_, rot in ((SQ, 82), (SK, 41)):
            a(f"s_add_u32 {sr(T+1)}, {sr(T)}, {(128 - rot) * 1024}\ns_and_b32 {sr(T+1)}, {sr(T+1)}, {127 * 1024}")
            a(f"buffer_load_dwordx4 v[252:255], {vr(V_DMA)}, {sr(srd_,4)}, {sr(T+1)} offen")
        self.srd(S_OUT, 74, 75, 2304000)
        self.srd(S_DB, 76, 77, 256)
        self.srd(S_WS, 78, 79, WS_END)
        def tlb():
            a(f"v_lshlrev_b32 v249, 21, v0")
            for ch in o.get("tlbw", "wdo"): a(f"buffer_load_dword v252, v249, {sr(dict(w=S_WS, d=S_DB, o=S_OUT)[ch],4)}, 0 offen")
        if o.get("tlb", 0) == 1: tlb()
        if o.get("tlb", 3) == 3:
            a(f"""s_bfe_u32 {sr(T)}, s2, 0x30003
            s_lshl_b32 {sr(T)}, {sr(T)}, 21
            v_mov_b32 v249, 0
            s_cmp_lt_u32 {sr(T)}, {5 << 21}
            s_cbranch_scc0 L_tl1
            buffer_load_dword v252, v249, {sr(S_WS,4)}, {sr(T)} offen
            s_branch L_tl3
            L_tl1:
            s_sub_u32 {sr(T)}, {sr(T)}, {5 << 21}
            s_cmp_lt_u32 {sr(T)}, {2 << 21}
            s_cbranch_scc0 L_tl2
            buffer_load_dword v252, v249, {sr(S_OUT,4)}, {sr(T)} offen
            s_branch L_tl3
            L_tl2:
            s_or_b32 s4, s4, 1
            v_lshlrev_b32 v249, 8, v0
            v_mov_b32 v250, s4
            s_lshl2_add_u32 s5, s2, {sr(S_W)}
            s_cmp_eq_u32 s5, {56 * 4}
            s_cbranch_scc0 L_tl4
            buffer_store_dword v250, v249, {sr(S_DB,4)}, 0 offen sc1
            s_branch L_tl3
            L_tl4:
            buffer_load_dword v252, v249, {sr(S_DB,4)}, 0 offen offset:128
            L_tl3:""")
            self.vm_adj = -3
        if o.get("stamps"): a(f"s_mov_b64 {sr(S_ST,2)}, s[100:101]"); self.stnames.append("start"); self.nst = 1
        self.stamp("xiss")
        a(f"""s_cmp_lt_u32 {sr(T+3)}, {NT}
        s_cselect_b32 {sr(WV)}, 1, 0
        s_mov_b32 {sr(WV+1)}, {sr(T+2)}
        s_mul_i32 {sr(UOFF)}, {sr(S_H)}, 288
        s_cmp_eq_u32 {sr(S_W)}, 0
        s_cselect_b32 {sr(M1)}, 0, {L_DUMP}
        s_cmp_lt_u32 {sr(S_W)}, 3
        s_cselect_b32 {sr(M3)}, {sr(W10)}, {L_DUMP}""")
        half = lambda g_: "s_mov_b32 exec_hi, 0\n" + g_ + "\ns_mov_b32 exec_hi, -1"
        gu = [f"s_add_u32 m0, {sr(W10 if k < 10 else M1)}, {L_WU + 4096*k}\ns_add_u32 {sr(S_CNT)}, {sr(UOFF)}, {4096*k + 288*(256*k//18)}\nbuffer_load_dwordx4 {vr(VU[k])}, {sr(SU,4)}, {sr(S_CNT)} offen lds" for k in range(11)]
        gu[10] = half(gu[10])
        gq = [f"s_add_u32 m0, {sr(W10 if k < 10 else M1)}, {L_WQ + 4096*k}\ns_add_u32 {sr(S_CNT)}, {sr(W10)}, {4096*k}\nbuffer_load_dwordx4 {vr(V_DMA)}, {sr(SQ,4)}, {sr(S_CNT)} offen lds" for k in range(11)]
        gq[10] = half(gq[10])
        gk = [f"s_add_u32 m0, {sr(W10 if k < 10 else M3)}, {L_WK + 4096*k}\ns_mov_b32 {sr(S_CNT)}, {4096*k - 16*(256*k//19)}\nbuffer_load_dwordx4 {vr(VK[k])}, {sr(SK,4)}, {sr(S_CNT)} offen lds" for k in range(11)]
        a(f"s_lshl_b32 {sr(T)}, {sr(S_W)}, 6\nv_add_u32 {vr(t0)}, {sr(T)}, v0\nv_lshlrev_b32 {vr(t1)}, 4, {vr(t0)}")
        self.voff_table(VU, 18, 576, t0)
        npre = o.get("npre", 3)
        a.bg, a.every, a.cnt = gu[:npre], o.get("evpre", 40), 0
        self.voff_table(VK, 19, 288, t0)
        xa0, xa1, xa2 = TM, TM + 1, TM + 2
        a(f"""v_and_b32 {vr(t0)}, 15, v0
        v_lshrrev_b32 {vr(t1)}, 5, v0
        v_lshlrev_b32 {vr(t1)}, 3, {vr(t1)}
        v_xor_b32 {vr(t1)}, {vr(t0)}, {vr(t1)}
        v_lshlrev_b32 {vr(t1)}, 4, {vr(t1)}
        v_lshrrev_b32 {vr(t2)}, 4, v0
        v_lshl_add_u32 {vr(V_KA)}, {vr(t2)}, 9, {vr(t1)}
        v_lshrrev_b32 {vr(t1)}, 3, {vr(t0)}
        v_lshlrev_b32 {vr(t1)}, 1, {vr(t1)}
        v_xor_b32 {vr(t1)}, {vr(t2)}, {vr(t1)}
        v_lshl_add_u32 {vr(t1)}, {vr(t0)}, 2, {vr(t1)}
        v_lshlrev_b32 {vr(V_KA+1)}, 3, {vr(t1)}
        v_lshlrev_b32 {vr(L8)}, 3, v0
        v_lshlrev_b32 {vr(MXR)}, 4, {vr(t0)}
        v_add_u32 {vr(MXR)}, {L_MX}, {vr(MXR)}
        v_add_u32 {vr(MXA)}, {sr(S_W)}, {vr(t2)}
        v_and_b32 {vr(MXA)}, 3, {vr(MXA)}
        v_lshl_add_u32 {vr(MXA)}, {vr(MXA)}, 8, {vr(MXR)}
        s_lshl_b32 {sr(T)}, {sr(S_W)}, 2
        v_add_u32 {vr(MXA)}, {sr(T)}, {vr(MXA)}
        v_mul_u32_u24 {vr(xa2)}, 288, {vr(t0)}
        v_lshl_add_u32 {vr(xa2)}, {vr(t2)}, 3, {vr(xa2)}
        v_add_u32 {vr(xa2)}, {sr(S_LB)}, {vr(xa2)}
        v_and_b32 {vr(t1)}, 1, {vr(t2)}
        v_lshlrev_b32 {vr(t1)}, 5, {vr(t1)}
        v_add_u32 {vr(xa0)}, {vr(xa2)}, {vr(t1)}
        v_xor_b32 {vr(t1)}, 32, {vr(t1)}
        v_add_u32 {vr(xa1)}, {vr(xa2)}, {vr(t1)}
        s_mul_i32 {sr(S_LB)}, {sr(S_W)}, {TILE}
        v_lshrrev_b32 {vr(t0)}, 2, v0
        v_bfe_u32 {vr(t1)}, v0, 1, 1
        v_lshlrev_b32 {vr(t1)}, 3, {vr(t1)}
        v_xor_b32 {vr(t1)}, {vr(t0)}, {vr(t1)}
        v_lshlrev_b32 {vr(t1)}, 4, {vr(t1)}
        v_and_b32 {vr(t2)}, 3, v0
        v_lshl_add_u32 {vr(t1)}, {vr(t2)}, 9, {vr(t1)}
        v_and_b32 {vr(V_VA)}, 1, v0
        v_lshl_add_u32 {vr(t1)}, {vr(V_VA)}, 3, {vr(t1)}
        s_and_b32 {sr(T)}, {sr(S_W)}, 1
        s_lshl_b32 {sr(T)}, {sr(T)}, 12
        s_add_u32 {sr(T+1)}, {sr(T)}, {sr(S_LB)}
        s_xor_b32 {sr(T)}, {sr(T)}, 4096
        s_add_u32 {sr(T)}, {sr(T)}, {sr(S_LB)}
        v_add_u32 {vr(V_VA)}, {sr(T)}, {vr(t1)}
        v_add_u32 {vr(V_VB)}, {sr(T+1)}, {vr(t1)}
        v_xor_b32 {vr(V_VA+1)}, 8, {vr(V_VA)}
        v_xor_b32 {vr(V_VB+1)}, 8, {vr(V_VB)}
        v_lshrrev_b32 {vr(t1)}, 5, v0
        v_lshlrev_b32 {vr(t1)}, 1, {vr(t1)}
        v_xor_b32 {vr(t1)}, {vr(t2)}, {vr(t1)}
        v_lshl_add_u32 {vr(t1)}, {vr(t0)}, 2, {vr(t1)}
        v_lshlrev_b32 {vr(t1)}, 3, {vr(t1)}
        v_add_u32 {vr(V_VR)}, {sr(S_LB)}, {vr(t1)}
        v_add_u32 {vr(V_DMA+1)}, 4096, {vr(V_DMA)}
        v_add_u32 {vr(V_DMA+2)}, 8192, {vr(V_DMA)}""")
        self.tr_addr(TRU, L_WU, True, t0)
        a(f"s_lshl_b32 {sr(T)}, {sr(S_W)}, 6\ns_add_u32 {sr(T)}, {sr(T)}, {L_WQ - L_WU}")
        for k in range(3):
            a(f"v_add_u32 {vr(TRQ+k)}, {sr(T)}, {vr(TRU+k)}\nv_add_u32 {vr(TRQ8+k)}, {L_WQ - L_WU + 256}, {vr(TRU+k)}")
        self.row_addr(RK + 2, L_WK + 8 * 4864, t0)
        a(f"""s_mul_i32 {sr(T)}, {sr(S_W)}, {2*4864}
        s_sub_u32 {sr(T)}, {sr(T)}, {8*4864}
        v_add_u32 {vr(t1)}, {sr(T)}, {vr(RK+2)}
        v_bfe_u32 {vr(t0)}, v0, 2, 1
        v_mul_u32_u24 {vr(t0)}, 4864, {vr(t0)}
        v_add_u32 {vr(RK)}, {vr(t1)}, {vr(t0)}
        v_sub_u32 {vr(RK+1)}, {vr(t1)}, {vr(t0)}""")
        for j in range(4):
            a(f"""s_add_u32 {sr(T)}, {sr(S_W)}, {j}
            s_and_b32 {sr(T)}, {sr(T)}, 3
            s_lshl_b32 {sr(T+1)}, {sr(T)}, 12
            s_add_u32 {sr(T+1)}, {sr(T+1)}, {L_XX}
            v_add_u32 {vr(VS+j)}, {sr(T+1)}, {vr(V_DMA)}
            s_lshl_b32 {sr(T+1)}, {sr(T)}, 9
            s_add_u32 {sr(T+1)}, {sr(T+1)}, {L_XR}
            v_add_u32 {vr(VR4+j)}, {sr(T+1)}, {vr(L8)}
            v_add_u32 {vr(VSW+j)}, {sr(W10)}, {vr(VS+j)}""")
        a(f"""s_sub_u32 {sr(T+2)}, 63, {sr(S_H)}
        s_add_u32 {sr(T+3)}, {sr(S_W)}, 60
        s_cmp_ge_u32 {sr(T+3)}, {sr(T+2)}
        s_cselect_b32 {sr(S_DUM)}, 4, 99
        s_mov_b32 {sr(S_REDO)}, 0
        s_mov_b32 {sr(S_TOFF)}, {sr(S_LB)}
        s_lshl_b32 {sr(PUB)}, {sr(S_TOWN)}, 8
        s_add_u32 {sr(PUB)}, {sr(PUB)}, {WS_F}
        s_and_b32 {sr(T)}, {sr(S_W)}, 1
        s_lshl_b32 {sr(T)}, {sr(T)}, 7
        s_add_u32 {sr(PUB)}, {sr(PUB)}, {sr(T)}
        s_lshr_b32 {sr(T)}, {sr(S_W)}, 1
        s_and_b32 {sr(T)}, {sr(T)}, {sr(S_VAL)}
        s_cmp_eq_u32 {sr(T)}, 1
        s_cselect_b32 {sr(PUB)}, {sr(PUB)}, 0x40000000
        s_lshl_b32 {sr(S_FB)}, s2, 8
        s_add_u32 {sr(S_FB)}, {sr(S_FB)}, {WS_F + 250*256}
        s_mul_i32 {sr(T)}, {sr(S_H)}, 1792
        s_sub_u32 {sr(T)}, {sr(T)}, 768
        s_mul_i32 {sr(T+1)}, {sr(S_H)}, 62
        s_cmp_eq_u32 {sr(S_QB)}, {sr(T+1)}
        s_cselect_b32 {sr(T)}, 0, {sr(T)}
        v_mov_b32 {vr(self.VPL)}, 0x40000000
        s_xor_b32 {sr(T+1)}, {sr(S_FB)}, 256
        s_add_u32 {sr(T)}, {sr(T)}, {sr(S_FB)}
        v_writelane_b32 {vr(self.VPL)}, {sr(S_FB)}, 0
        v_writelane_b32 {vr(self.VPL)}, {sr(T+1)}, 1
        v_writelane_b32 {vr(self.VPL)}, {sr(T)}, 2
        s_mov_b32 {sr(T)}, {WS_F + 502*256}
        s_mov_b32 {sr(T+1)}, {WS_F + 503*256}
        v_writelane_b32 {vr(self.VPL)}, {sr(T)}, 3
        v_writelane_b32 {vr(self.VPL)}, {sr(T+1)}, 4
        s_sub_u32 {sr(S_FB)}, {sr(S_FB)}, {L_PC}""")
        a.flush()
        if o.get("tlb", 0) == 2: tlb()
        self.stamp("pre")
        if o.get("es", 0) == 0: self.epi_setup()
        self.stamp("es")
        nx = self.vm_since(mx) + getattr(self, "vm_adj", 0)
        if o.get("touch", 1):
            a(f"""s_mov_b64 exec, 0
            s_cmp_eq_u32 {sr(S_W)}, 0
            s_cbranch_scc1 L_tr
            s_cmp_eq_u32 {sr(S_W)}, 1
            s_cbranch_scc1 L_t0
            s_cmp_eq_u32 {sr(S_W)}, 2
            s_cbranch_scc1 L_t1
            s_branch L_t2""")
            self.rare()
            a.raw(".p2align 12")
            a.label("L_tr")
            a("s_mov_b64 exec, -1")
        nlate = o.get("nlate", 0)
        for g_ in gu[npre:npre + nlate]: a(g_)
        a(f"s_waitcnt vmcnt({nx + nlate})")
        self.stamp("xarr")
        for s in range(4):
            a(f"ds_read_b64 {vr(XR+4*s,2)}, {vr(xa0)} offset:{64*s}\nds_read_b64 {vr(XR+4*s+2,2)}, {vr(xa1)} offset:{64*s}")
        a(f"ds_read_b64 {vr(XR+16,2)}, {vr(xa2)} offset:256")
        a(f"""s_and_b32 {sr(T)}, {sr(S_W)}, 1
        s_mul_i32 {sr(T+2)}, {sr(S_TOWN)}, {TILE}
        s_cmp_eq_u32 {sr(S_VAL)}, 1
        s_cselect_b32 {sr(T+2)}, {sr(T+2)}, 0x40000000
        s_lshl_b32 {sr(T+3)}, {sr(T)}, 8
        s_add_u32 {sr(T+3)}, {sr(T+3)}, {sr(T+2)}
        s_add_u32 {sr(T+4)}, {sr(T+3)}, 4096
        s_lshl_b32 {sr(T+5)}, {sr(T)}, 9
        s_add_u32 {sr(T+5)}, {sr(T+5)}, {sr(T+2)}
        s_add_u32 {sr(T+5)}, {sr(T+5)}, 8192
        s_waitcnt lgkmcnt(0)""")
        wl = gq + gk
        a.bg, a.every, a.cnt = gu[npre + nlate:] + [wl.pop(0) for _ in range(o.get("nql", 11))], o.get("evln", 5), 0
        self.ln_packed(XR, XF, XA, TM)
        a.flush()
        self.stamp("ln")
        a(f"s_cmp_lt_u32 {sr(S_W)}, 2\ns_cbranch_scc1 L_nop")
        for s in range(4):
            a(f"buffer_store_dwordx4 {vr(XA+4*s,4)}, {vr(V_KA)}, {sr(S_WS,4)}, {sr(T+3+(s>>1))} offen offset:{2048*(s&1)} sc1")
        a(f"buffer_store_dwordx2 {vr(XA+16,2)}, {vr(V_KA+1)}, {sr(S_WS,4)}, {sr(T+5)} offen sc1\ns_waitcnt vmcnt({5 + o.get('nql', 11)})\ns_branch L_bar1")
        a.label("L_nop")
        if o.get("touch", 1):
            a(f"s_mov_b64 exec, 0\ns_cmp_eq_u32 {sr(S_W)}, 0\ns_cbranch_scc1 L_t3\ns_branch L_t4")
            a.label("L_tr2")
            a("s_mov_b64 exec, -1")
        a(f"s_waitcnt vmcnt({o.get('nql', 11)})")
        a.label("L_bar1")
        self.stamp("pub")
        xw = [f"ds_write_b128 {vr(VS)}, {vr(XA+4*s,4)} offset:{1024*s}" for s in range(4)] + [f"ds_write_b64 {vr(VR4)}, {vr(XA+16,2)}"]
        self.stamp("tch")
        PA = 249
        a(f"""v_add_u32 {vr(V_KA)}, {sr(S_LB)}, {vr(V_KA)}
        v_add_u32 {vr(V_KA+1)}, {sr(S_LB)}, {vr(V_KA+1)}
        s_mul_i32 {sr(T)}, {sr(S_B)}, {NT}
        s_mul_i32 {sr(T+1)}, {sr(S_H)}, 63
        s_add_u32 {sr(T)}, {sr(T)}, {sr(T+1)}
        s_lshl_b32 {sr(T)}, {sr(T)}, 8
        s_add_u32 {sr(T)}, {sr(T)}, {WS_F}
        s_cmp_eq_u32 {sr(S_W)}, 0
        s_cselect_b32 {sr(T)}, {sr(T)}, 0x40000000
        v_lshl_add_u32 {vr(PA)}, v0, 8, {sr(T)}
        {self.xa_srd()}
        s_waitcnt lgkmcnt(0)""")
        self.stamp("w1")
        a("s_barrier")
        self.stamp("bar1")
        m_b1 = len(a.lines)
        poll = lambda r: f"buffer_load_dword {vr(r)}, {vr(PA)}, {sr(S_WS,4)}, 0 offen sc1\nbuffer_load_dword {vr(r+2)}, {vr(PA)}, {sr(S_WS,4)}, 0 offen offset:128 sc1"

        def gate(lab, r, mask, younger):
            a(f"s_mov_b32 {sr(T+2)}, 0\ns_waitcnt vmcnt({younger})")
            a.label(lab)
            a(f"""v_cmp_ne_u32 vcc, {sr(S_N)}, {vr(r)}
            v_cmp_ne_u32 {sr(T+10,2)}, {sr(S_N)}, {vr(r+2)}
            s_add_u32 {sr(T+2)}, {sr(T+2)}, 1
            s_or_b64 vcc, vcc, {sr(T+10,2)}
            s_and_b64 vcc, vcc, {mask}
            s_cbranch_scc0 {lab}_ok
            s_sleep {o.get("slp", 4)}
            {poll(r)}
            s_waitcnt vmcnt(0)
            s_cmp_lt_u32 {sr(T+2)}, 0x40000
            s_cbranch_scc1 {lab}""")
            a.label(lab + "_ok")

        H, G_, UG, MS, CL = 16, 52, 208, 110, 104
        nup = o.get("nup", 5)
        at = {o.get("u0", 6) + o.get("usp", 6) * i: wl.pop(0) for i in range(nup)}
        for i in range(5): at[i] = xw[i]
        tagld = f"buffer_load_dword v253, off, {sr(S_DB,4)}, 0 sc1"
        tag1 = tagld.replace("sc1", o.get("tgf", "sc1")).strip()
        at[o.get("tgp", 5)] = tag1
        if o.get("es", 0) == 1:
            n_ = len(a.lines); self.epi_setup()
            el = [l.strip() for l in a.lines[n_:]]; del a.lines[n_:]
            for k in range(5, 42):
                if k in at: continue
                c_ = 0
                while el and c_ < o.get("esn", 2):
                    x = el.pop(0); at[k] = at.get(k, "") + x + "\n"; c_ += 1 if x.startswith("v_") else 0.5
            self.es_left = el
        self.gemm(self.tr_reads(TRU), XA, H, None, at=at)
        if o.get("es", 0) == 1:
            for x in self.es_left: a(x)
        self.stamp("up")
        last = lambda srd: max(i for i, l in enumerate(a.lines) if l.strip().startswith("buffer_load") and sr(srd, 4) in l) + 1
        assert not any(sr(SQ, 4) in x for x in wl)
        nq_ = self.vm_since(m_b1) + (5 if last(SQ) < m_b1 else 0) if last(SQ) < m_b1 else self.vm_since(last(SQ))
        a(f"s_waitcnt vmcnt({self.vm_since(m_b1) if last(SQ) < m_b1 else nq_}) lgkmcnt(0)" if False else "")
        if last(SQ) < m_b1:
            a(f"s_cmp_lt_u32 {sr(S_W)}, 2\ns_cbranch_scc1 L_bg0\ns_waitcnt vmcnt({5 + self.vm_since(m_b1)})\ns_branch L_bg1\nL_bg0:\ns_waitcnt vmcnt({self.vm_since(m_b1)})\nL_bg1:\ns_waitcnt lgkmcnt(0)\ns_barrier")
        else: a(f"s_waitcnt vmcnt({self.vm_since(last(SQ))}) lgkmcnt(0)\ns_barrier")

        def flag():
            n_ = self.vm_since(max(i for i, l in enumerate(a.lines) if l.strip() == tag1) + 1)
            a(f"v_lshrrev_b32 {vr(t0)}, 5, v0\nv_lshlrev_b32 {vr(t0)}, 30, {vr(t0)}\nv_lshl_add_u32 {vr(t0)}, v0, 2, {vr(t0)}\ns_mov_b32 {sr(T+2)}, 0\ns_waitcnt vmcnt({n_})")
            a.label("L_tag")
            a(f"""v_readfirstlane_b32 {sr(S_N)}, v253
            s_add_u32 {sr(T+2)}, {sr(T+2)}, 1
            s_cmp_lg_u32 {sr(S_N)}, 0
            s_cbranch_scc1 L_tag_ok
            {tagld}
            s_waitcnt vmcnt(0)
            s_cmp_lt_u32 {sr(T+2)}, 0x40000
            s_cbranch_scc1 L_tag""")
            a.label("L_tag_ok")
            a(f"v_mov_b32 {vr(t1)}, {sr(S_N)}\nbuffer_store_dword {vr(t1)}, {vr(t0)}, {sr(S_WS,4)}, {sr(PUB)} offen sc1")
            self.m_fl = len(a.lines)
            self.stamp("flag")
        self.stamp("barG")
        if o.get("atw"):
            a("s_waitcnt vmcnt(0)")
            self.stamp("ack")
        if o.get("census"):
            k_ = S_ST + 2 * self.stnames.index(o["census"][0])
            a(f"s_waitcnt lgkmcnt(0)\nv_mov_b32 v252, {sr(k_)}\ns_lshl_b32 {sr(T)}, s2, 2\ns_add_u32 {sr(T)}, {sr(T)}, {WS_DBG}\nv_mov_b32 v253, 0\nbuffer_store_dword v252, v253, {sr(S_WS,4)}, {sr(T)} offen sc1")

        def a_tr(t):
            ad, off = (TRQ, 32 * t) if t < 2 else (TRQ8, 0)
            return [f"ds_read_b64_tr_b16 {ar(AQ1+18*t+4*s+2*u,2)}, {vr(ad+u)} offset:{9216*s + off}" for s in range(4) for u in range(2)] + \
                   [f"ds_read_b64_tr_b16 {ar(AQ1+18*t+16,2)}, {vr(ad+2)} offset:{36864 + off}"]

        def a_row(t):
            off = 4864 * t if t < 2 else 0
            return [f"ds_read_b64 {ar(A_Q+18*t+4*s+2*u,2)}, {vr(RK+t)} offset:{off + 64*s + 32*u}" for s in range(4) for u in range(2)] + \
                   [f"ds_read_b64 {ar(A_Q+18*t+16,2)}, {vr(RK+t)} offset:{off + 256}"]
        bq = lambda j, d=0: [f"ds_read_b128 {ar(18*j+4*s,4)}, {vr(VS+j)} offset:{d + 1024*s}" for s in range(4)] + [f"ds_read_b64 {ar(18*j+16,2)}, {vr(VR4+j)} offset:{d}"]

        def post(u, scale, d):
            L = [f"v_mul_f32 {vr(ACC+4*u+i)}, {sr(T+4)}, {vr(ACC+4*u+i)}" for i in range(4)] if scale else []
            L += [f"v_cvt_pk_bf16_f32 {vr(PK + (4*(u&3) + 2*(u>>2) if u < 8 else 16) + h)}, {vr(ACC+4*u+2*h)}, {vr(ACC+4*u+2*h+1)}" for h in range(2)]
            if 4 <= u < 8: L.append(f"ds_write_b128 {vr(VSW+u-4)}, {vr(PK+4*(u-4),4)} offset:{d}")
            if u == 8: L.append(f"ds_write_b64 {vr(VR4)}, {vr(PK+16,2)} offset:{d}")
            return L
        xd = [f"ds_read_b128 {vr(XD+4*j,4)}, {vr(VSW+j)}" for j in range(4)]
        self.gemm_u(AQ1, ar, [("v", XA), ("a", 18), ("a", 36), ("a", 54)], ACC, a_tr, lambda j: bq(j) if j else None, lambda u: post(u, False, L_QD),
                    vm_items=wl, other=xd, vmsp=o.get("vmsp", 3), at={o.get("flp", 22): flag})
        self.stamp("g1")
        for i in range(4): a(f"v_mov_b32 {vr(CL+i)}, -1")
        a(f"s_lshl2_add_u32 {sr(T+2)}, s2, {sr(S_W)}\ns_mul_i32 {sr(T+2)}, {sr(T+2)}, 2560\ns_add_u32 {sr(T+2)}, {sr(T+2)}, {WS_IB}")
        a(f"s_mov_b32 {sr(T+4)}, {f32(LOG2E / 12.0)}\ns_waitcnt vmcnt({self.vm_since(max(last(SK), self.m_fl)) + (last(SK) < self.m_fl)}) lgkmcnt(0)\ns_barrier")
        clr = [f"buffer_store_dwordx4 {vr(CL,4)}, {vr(V_DMA)}, {sr(S_WS,4)}, {sr(T+2)} offen sc1",
               f"buffer_store_dwordx4 {vr(CL,4)}, {vr(V_DMA)}, {sr(S_WS,4)}, {sr(T+2)} offen offset:1024 sc1",
               f"buffer_store_dwordx2 {vr(CL,2)}, {vr(L8)}, {sr(S_WS,4)}, {sr(T+2)} offen offset:2048 sc1"]
        self.stamp("bar2")
        self.gemm_u(A_Q, ar, [("a", 18 * j) for j in range(4)], ACC, a_row, lambda j: bq(j, L_QD), lambda u: post(u, True, 0), vm_items=[poll(252)] + clr, vm0=o.get("pg", 12), vmsp=o.get("csp", 8))
        self.stamp("g2")
        p = lambda r: vr(r, 2)
        CC = TM
        for j in range(4): a(f"v_dot2_f32_bf16 {vr(CC+j)}, {vr(PK+4*j)}, {vr(XD+4*j)}, 0")
        for i in range(2): a(f"v_dot2_f32_bf16 {vr(CC)}, {vr(PK+16+i)}, {vr(XA+16+i)}, {vr(CC)}")
        for i in range(1, 4):
            for j in range(4): a(f"v_dot2_f32_bf16 {vr(CC+j)}, {vr(PK+4*j+i)}, {vr(XD+4*j+i)}, {vr(CC+j)}")
        QE = TRQ
        a(f"""s_xor_b32 {sr(T+1)}, {sr(self.NB)}, 1
        v_add_u32 {vr(t0)}, {L_XX}, {vr(V_DMA)}
        v_lshl_add_u32 {vr(QE)}, {sr(T+1)}, 12, {vr(t0)}
        v_lshl_add_u32 {vr(QE+1)}, {sr(self.NB)}, 12, {vr(t0)}""")
        self.treduce(CC)
        a(f"""ds_write_b32 {vr(MXA)}, {vr(CC)}
        v_add_u32 {vr(t0)}, {L_XR}, {vr(L8)}
        v_lshl_add_u32 {vr(QE+2)}, {sr(T+1)}, 9, {vr(t0)}
        v_lshl_add_u32 {vr(QE+3)}, {sr(self.NB)}, 9, {vr(t0)}
        v_lshl_add_u32 {vr(QE+4)}, {sr(T+1)}, 8, {vr(MXR)}
        v_lshl_add_u32 {vr(QE+5)}, {sr(self.NB)}, 8, {vr(MXR)}
        s_sub_u32 {sr(T+5)}, 63, {sr(S_H)}
        s_bfm_b64 {sr(T+8,2)}, {sr(T+5)}, 0
        s_lshr_b32 {sr(T+6)}, s2, 3
        s_lshl_b32 {sr(T+6)}, {sr(T+6)}, 12
        s_add_u32 {sr(T+6)}, {sr(T+6)}, {sr(W10)}
        s_cmp_lg_u32 {sr(S_W)}, 0
        s_cbranch_scc1 L_ga_ok""")
        gate("L_ga", 252, sr(T + 8, 2), 3)
        a("s_waitcnt lgkmcnt(0)\ns_barrier")
        self.stamp("bar3")
        c1 = -2.0 * math.sqrt(2.0 / math.pi) * LOG2E
        c2 = c1 * 0.044715
        qrd = [f"ds_read_b128 {vr(MS+4*qb,4)}, {vr(QE+4+(qb&1))} offset:{512*(qb>>1)}" for qb in range(4)]
        for qb in range(4):
            qrd += [f"ds_read_b128 {ar(A_Q+18*qb+4*s,4)}, {vr(QE+(qb&1))} offset:{8192*(qb>>1) + 1024*s}" for s in range(4)]
            qrd.append(f"ds_read_b64 {ar(A_Q+18*qb+16,2)}, {vr(QE+2+(qb&1))} offset:{1024*(qb>>1)}")
        tg = self.tile_groups(0) + self.tile_groups(1) + self.tile_groups(2)[:8]
        n0 = o.get("n0", 3)
        for k in range(o.get("tpf", 0)):
            a(f"s_add_u32 {sr(T+7)}, {sr(T+6)}, {o.get('tpf0', 4*TILE) + 131072*k}\nbuffer_load_dwordx4 v[252:255], {vr(V_DMA)}, {sr(S_XA,4)}, {sr(T+7)} offen")
        for x in tg[:n0]: a(x)
        a(f"v_mov_b32 {vr(CC)}, {f32(c1)}\nv_mov_b32 {vr(CC+2)}, {f32(c2)}\nv_mov_b32 {vr(CC+4)}, 1.0")
        nq1, nt1 = o.get("nq1", 8), o.get("nt1", 5)
        bgl = []
        for i in range(max(nq1 // 2, nt1)):
            if 2 * i < nq1: bgl.append(qrd[2 * i] + "\n" + qrd[2 * i + 1])
            if i < nt1: bgl.append(tg[n0 + i])
        tg, qrd = tg[n0 + nt1:], qrd[nq1:]
        a.bg, a.every, a.cnt = bgl, 54 // (len(bgl) + 1), 0
        for i in range(18): a(f"v_pk_mul_f32 {p(G_+2*i)}, {p(H+2*i)}, {p(H+2*i)}")
        for i in range(18): a(f"v_pk_fma_f32 {p(G_+2*i)}, {p(G_+2*i)}, {p(CC+2)}, {p(CC)} op_sel_hi:[1,0,0]")
        for i in range(18): a(f"v_pk_mul_f32 {p(G_+2*i)}, {p(G_+2*i)}, {p(H+2*i)}")
        a.flush()
        self.stamp("ge1")
        esp = o.get("esp", 4)
        for i in range(36):
            a(f"v_exp_f32 {vr(G_+i)}, {vr(G_+i)}")
            if i % esp == 1 and tg: a(tg.pop(0))
            if i % 8 == 3 and qrd: a(qrd.pop(0)); a(qrd.pop(0))
        self.stamp("ge2")
        for i in range(18): a(f"v_pk_add_f32 {p(G_+2*i)}, {p(G_+2*i)}, {p(CC+4)} op_sel_hi:[1,0]")
        for i in range(36):
            a(f"v_rcp_f32 {vr(G_+i)}, {vr(G_+i)}")
            if i % esp == 1 and tg: a(tg.pop(0))
            if i % 8 == 3 and qrd: a(qrd.pop(0)); a(qrd.pop(0))
        assert not tg and not qrd
        idx = [i for i, l in enumerate(a.lines) if l.strip().startswith("buffer_load") and l.rstrip().endswith("lds")]
        m_t0, m_t1 = idx[-18] + 1, idx[-9] + 1
        for i in range(18): a(f"v_pk_mul_f32 {p(H+2*i)}, {p(G_+2*i)}, {p(H+2*i)}")
        a(f"""s_mul_i32 {sr(T)}, {sr(WV+1)}, {BLK}
        s_cmp_eq_u32 {sr(S_H)}, 1
        s_cbranch_scc1 L_ln2
        s_add_u32 {sr(T)}, {sr(T)}, {WS_U}""")
        for i in range(18): a(f"v_cvt_pk_bf16_f32 {vr(UG+i)}, {vr(H+2*i)}, {vr(H+2*i+1)}")
        a("s_branch L_ug")
        a.label("L_ln2")
        a(f"s_add_u32 {sr(T)}, {sr(T)}, {WS_G}")
        self.ln_f32(H, UG, TM)
        a.label("L_ug")
        self.stamp("ge3")
        a(f"""s_cmp_eq_u32 {sr(WV)}, 1
        s_cselect_b32 {sr(S_UG)}, {sr(T)}, 0x40000000
        s_waitcnt vmcnt({self.vm_since(m_t0)}) lgkmcnt(0)""")
        for x in self.k_reads(0, V_V): a(x)
        self.ugs = [f"buffer_store_dwordx4 {vr(UG+4*s,4)}, {vr(V_DMA)}, {sr(S_WS,4)}, {sr(S_UG)} offen offset:{1024*s} sc1" for s in range(4)]
        self.ugs.append(f"buffer_store_dwordx2 {vr(UG+16,2)}, {vr(self.VL8)}, {sr(S_WS,4)}, {sr(S_UG)} offen sc1")
        for qb in range(4): a(f"v_pk_add_f32 {p(MS+4*qb)}, {p(MS+4*qb)}, {p(MS+4*qb+2)} neg_lo:[1,1] neg_hi:[1,1]")
        for qb in range(4): a(f"v_add_f32 {vr(self.MK+qb)}, {vr(MS+4*qb)}, {vr(MS+4*qb+1)}")
        a(f"v_lshlrev_b32 {vr(t1)}, 8, v0\nv_lshlrev_b32 v231, 2, v0\nv_add_u32 v231, {L_PC}, v231\nds_write_b32 v231, {vr(t1)}")
        self.loop_init(False)
        self.n_t1 = self.vm_since(m_t1)
        self.stamp("ug")

    def loop_init(self, part):
        a = self.a
        if part:
            for qb in range(4):
                for i in range(4): a(f"v_mov_b32 {vr(V_CI+4*qb+i)}, {vr(self.MK+qb)}")
            return
        for k in range(7): a(f"v_add_u32 {vr(V_HI+k)}, {2*SLOT}, {vr(V_KA+k if k < 5 else V_VB+k-5)}")
        a(f"v_add_u32 {vr(self.VS0)}, {sr(S_LB)}, {vr(V_DMA)}\nv_add_u32 {vr(self.VS0R)}, {sr(S_LB)}, {vr(self.VL8)}\ns_mov_b32 {sr(S_CNT)}, 0\ns_mov_b32 {sr(S_INC)}, {4*TILE}")
        for i in range(4): a(f"v_mov_b32 {vr(V_L+i)}, 0")
        a(f"v_mov_b32 v227, 0x3f803f80\nv_mov_b32 v226, {sr(S_N)}\nv_mov_b32 {vr(self.VPL+1)}, 1\nv_lshlrev_b32 v231, 2, v0\nv_add_u32 v231, {L_PC}, v231")

    def head(self):
        a, o = self.a, self.o
        a.label("L_go")
        self.loop_init(True)
        a("s_waitcnt lgkmcnt(0)\ns_barrier")
        self.stamp("bar5")
        base = self.qk_mfmas(0)
        pick = lambda s_, kb, qb: base[8 * s_ + 4 * kb + qb].replace(vr(V_K + 8 * s_ + 4 * kb, 4) + ",", vr(V_V + 8 * s_ + 4 * kb, 4) + ",").replace(vr(V_K + 32 + 2 * kb, 2) + ",", vr(V_V + 32 + 2 * kb, 2) + ",")
        mf, fin = [], {}
        for qb, s_ in [(0, 0), (0, 1), (0, 2), (0, 3), (1, 0), (1, 1), (0, 4), (1, 2), (1, 3), (2, 0), (2, 1), (1, 4), (2, 2), (2, 3), (3, 0), (3, 1), (2, 4),
                       (3, 2), (3, 3), (3, 4)]:
            for kb in range(2):
                fin[qb, kb] = len(mf)
                mf.append(("s_nop 3\n" if (qb, s_, kb) == (3, 4, 0) else "") + pick(s_, kb, qb))
        enew = [e[1] for g in range(40, 76) for e in self.gaps[g] if e[0] == "E"]
        items = self.e_items(0, enew, lambda qb, j: 0, lambda qb: 999)
        for it, e in zip(items, enew):
            if e[0] == "e": it["am"] = fin[e[1], e[2] // 4]
        dm = []
        for k, (slot, j) in enumerate([(2, 8)] + [(3, j) for j in range(9)]):
            g_ = 1 + o.get("hsp", 4) * k
            if j % 4 == 0: dm.append(dict(t=f"s_add_u32 m0, {sr(S_LB)}, {slot*SLOT + 4096*(j//4)}", c=0, lo=g_ - 1, hi=g_ - 1))
            dm.append(dict(t=f"buffer_load_dwordx4 {vr(V_DMA + j//4)}, {sr(S_XA,4)}, {sr(S_TOFF)} offen offset:{1024*(j%4)} lds", c=8, lo=g_, hi=g_))
            if j == 8: dm.append(dict(t=f"s_add_u32 {sr(S_TOFF)}, {sr(S_TOFF)}, {4*TILE}", c=0, lo=g_ + 1, hi=g_ + 1))
        nh = o.get("ugh", 2) if not o.get("ugl", 0) else 0
        for k in range(nh): dm.append(dict(t=self.ugs[k], c=8, lo=3 + 16 * k, hi=3 + 16 * k))
        a(f"s_waitcnt vmcnt({self.n_t1})")
        left = self.pack(mf, items + dm + [dict(t=x, c=4, lo=i // 2, nds=2) for i, x in enumerate(self.k_reads(1))])
        print("head overflow", self.over, "left", len(left))
        left.sort(key=lambda x: not x.startswith("v_exp"))
        last = a.lines[-1].strip()
        for x in left:
            if last.startswith("v_exp") and not x.startswith("v_exp") and (last.split()[1].rstrip(",") + ",") in (x + ","): a("s_nop 0")
            a(x); last = x
        a("s_waitcnt lgkmcnt(0)")

    def tile_groups(self, slot):
        out = []
        for j in range(9):
            g = ""
            if j % 4 == 0: g = f"s_add_u32 m0, {sr(S_LB)}, {slot*SLOT + 4096*(j//4)}\ns_nop 0\n"
            g += f"buffer_load_dwordx4 {vr(V_DMA + j//4)}, {sr(S_XA,4)}, {sr(S_TOFF)} offen offset:{1024*(j%4)} lds"
            if j == 8: g += f"\ns_add_u32 {sr(S_TOFF)}, {sr(S_TOFF)}, {4*TILE}"
            out.append(g)
        return out

    def first_tiles(self):
        pass

    def wfuse(self):
        a = self.a
        BF, ACC, AF, TM, AD = 88, 108, 144, 208, 240
        LA, LB_, LM = 0, 44032, 88064
        T = S_T
        a.label("L_wfuse")
        a(f"s_add_u32 s2, s2, {NH}\ns_cmp_ge_u32 s2, {NH}\ns_cbranch_scc1 L_end")
        a(f"v_lshrrev_b32 v1, 6, v0\nv_and_b32 v0, 63, v0\nv_readfirstlane_b32 {sr(S_W)}, v1\nv_lshlrev_b32 {vr(V_DMA)}, 4, v0\ns_waitcnt lgkmcnt(0)")
        self.srd(S_WS, 78, 79, WS_END)
        self.srd(S_DB, 76, 77, 256)
        self.wf0 = 0
        self.srd(S_X, 72, 73, 82944)
        self.srd(S_W2, 62, 63, 41472)
        a(f"""s_cmp_eq_u32 s2, {self.wf0}
        s_cselect_b32 {sr(S_W1)}, s64, s70
        s_cselect_b32 {sr(S_W1+1)}, s65, s71
        s_mov_b32 {sr(S_W1+2)}, 41472
        s_mov_b32 {sr(S_W1+3)}, 0x20000
        s_cselect_b32 {sr(T+4)}, 0, 41472""")
        self.dma_rows([(S_W1, "0", LA), (S_W2, "0", LB_)], 19, 288, TM + 4, TM + 5, 11, 3, "L_wf1")
        a(f"s_lshl_b32 {sr(T)}, {sr(S_W)}, 10\ns_add_u32 {sr(T+2)}, {sr(T)}, {sr(T+4)}")
        for k in range(11):
            if k == 10: a(f"s_cmp_ge_u32 {sr(S_W)}, 1\ns_cbranch_scc1 L_wf2")
            a(f"s_add_u32 m0, {sr(T)}, {LM + 4096*k}\ns_add_u32 {sr(T+1)}, {sr(T+2)}, {4096*k}")
            a(f"buffer_load_dwordx4 {vr(V_DMA)}, {sr(S_X,4)}, {sr(T+1)} offen lds")
        a.label("L_wf2")
        self.srd(S_DW, 68, 69, 864)
        a(f"""v_and_b32 {vr(TM)}, 15, v0
        v_lshlrev_b32 {vr(TM+2)}, 4, {vr(TM)}
        v_lshlrev_b32 {vr(TM)}, 1, {vr(TM)}
        v_bfe_u32 {vr(TM+3)}, v0, 4, 1
        v_lshl_add_u32 {vr(TM+1)}, {vr(TM+3)}, 7, {vr(TM)}
        v_lshl_add_u32 {vr(TM+2)}, {vr(TM+3)}, 11, {vr(TM+2)}
        v_and_b32 {vr(TM+3)}, 1, v0
        v_lshlrev_b32 {vr(TM+3)}, 4, {vr(TM+3)}
        v_bfe_i32 {vr(TM+4)}, v0, 1, 1
        v_not_b32 {vr(TM+5)}, {vr(TM+4)}""")
        for k in range(3):
            for i in range(5): a(f"buffer_load_ushort {vr(16+5*k+i)}, {vr(TM+1 if i < 4 else TM)}, {sr(S_DW,4)}, 0 offen offset:{288*k + (32*i if i < 4 else 256)}")
        a(f"s_mov_b32 {sr(T+1)}, {WS_DWF}\ns_waitcnt vmcnt(0)")
        for f in range(15):
            a(f"v_lshlrev_b32 {vr(16+f)}, {vr(TM+3)}, {vr(16+f)}\nv_and_b32 {vr(32+2*f)}, {vr(TM+5)}, {vr(16+f)}\nv_and_b32 {vr(33+2*f)}, {vr(TM+4)}, {vr(16+f)}")
        for r_ in range(8): a(f"buffer_store_dwordx{4 if r_ < 7 else 2} {vr(32+4*r_, 4 if r_ < 7 else 2)}, {vr(TM+2)}, {sr(S_WS,4)}, {sr(T+1)} offen offset:{256*r_} sc1")
        self.tr_addr(AD, LM, False, TM + 8)
        self.row_addr(AD + 3, LA, TM + 8)
        a(f"v_add_u32 {vr(AD+5)}, {LB_}, {vr(AD+3)}")
        a(f"v_lshlrev_b32 {vr(AD+4)}, 3, v0")
        a(f"""s_lshr_b32 {sr(T)}, {sr(S_W)}, 1
        s_lshl_b32 {sr(T)}, {sr(T)}, 6
        s_and_b32 {sr(T+1)}, {sr(S_W)}, 1
        s_lshl_b32 {sr(T+1)}, {sr(T+1)}, 3
        s_add_u32 {sr(T)}, {sr(T)}, {sr(T+1)}
        v_and_b32 {vr(AD+6)}, 3, v0
        v_lshlrev_b32 {vr(AD+6)}, 3, {vr(AD+6)}
        v_add_u32 {vr(AD+7)}, {sr(T)}, {vr(AD+6)}""")
        for k in range(3): a(f"v_add_u32 {vr(AD+k)}, {vr(AD+7)}, {vr(AD+k)}")
        a(f"s_mov_b32 {sr(S_CNT)}, {sr(S_W)}")
        a("s_waitcnt vmcnt(0)\ns_barrier")
        a.label("L_wfl")
        for s in self.tr_reads(AD, vr)(0, BF): a(s)
        a("s_waitcnt lgkmcnt(0)")
        self.gemm(self.row_reads(AD + 3), BF, ACC, AF)
        for i in range(18): a(f"v_cvt_pk_bf16_f32 {vr(BF+i)}, {vr(ACC+2*i)}, {vr(ACC+2*i+1)}")
        a(f"s_cmp_eq_u32 s2, {self.wf0}\ns_cbranch_scc0 L_wf3")
        self.gemm(self.row_reads(AD + 5), BF, ACC, AF)
        for i in range(18): a(f"v_cvt_pk_bf16_f32 {vr(BF+i)}, {vr(ACC+2*i)}, {vr(ACC+2*i+1)}")
        a.label("L_wf3")
        a(f"""s_mul_i32 {sr(T)}, {sr(S_CNT)}, {BLK}
        s_add_u32 {sr(T)}, {sr(T)}, {sr(T+4)}
        s_add_u32 {sr(T)}, {sr(T)}, {WS_WF}
        s_add_u32 {sr(T+1)}, {sr(T)}, 4096""")
        self.store_block(BF, V_DMA, AD + 4, S_WS, T, T + 1, "sc1")
        for k in range(3): a(f"v_add_u32 {vr(AD+k)}, 128, {vr(AD+k)}")
        a(f"s_add_u32 {sr(S_CNT)}, {sr(S_CNT)}, 4\ns_cmp_lt_u32 {sr(S_CNT)}, 8\ns_cbranch_scc1 L_wfl")
        for k in range(3): a(f"v_sub_u32 {vr(AD+k)}, {vr(AD+k)}, {vr(AD+6)}")
        a(f"s_cmp_eq_u32 {sr(S_CNT)}, 8\ns_cbranch_scc1 L_wfl")
        a(f"""s_waitcnt vmcnt(0)
        s_barrier
        s_cmp_lg_u32 {sr(S_W)}, 0
        s_cbranch_scc1 L_end
        s_mov_b32 {sr(T+2)}, 0""")
        a.label("L_wtag")
        a(f"""buffer_load_dword {vr(TM)}, off, {sr(S_DB,4)}, 0 sc1
        s_add_u32 {sr(T+2)}, {sr(T+2)}, 1
        s_waitcnt vmcnt(0)
        v_readfirstlane_b32 {sr(T)}, {vr(TM)}
        s_cmp_lt_u32 {sr(T+2)}, 0x40000
        s_cselect_b32 {sr(T)}, {sr(T)}, 1
        s_cmp_eq_u32 {sr(T)}, 0
        s_cbranch_scc1 L_wtag
        v_lshlrev_b32 {vr(TM+1)}, 2, v0
        s_lshl_b32 {sr(T)}, s2, 8
        s_add_u32 {sr(T)}, {sr(T)}, {WS_F + 502*256}
        buffer_store_dword {vr(TM)}, {vr(TM+1)}, {sr(S_WS,4)}, {sr(T)} offen sc1
        s_endpgm""")

    def dump_stamps(self):
        a = self.a
        if self.o.get("census"):
            key, mode, m_, v_ = self.o["census"]
            a(f"""s_cmp_lg_u32 s2, 100
            s_cbranch_scc1 L_end
            v_lshlrev_b32 v16, 2, v0
            s_mov_b32 s4, {WS_DBG}""")
            for k in range(4): a(f"buffer_load_dword v{20+k}, v16, {sr(S_WS,4)}, s4 offen offset:{256*k} sc1")
            a(f"s_waitcnt vmcnt(0)\nv_readlane_b32 s8, v21, 36\ns_mov_b32 s9, 0x80000000\ns_mov_b32 s10, 0x7fffffff\ns_mov_b32 s11, 0\ns_mov_b32 s17, 0")
            for k in range(4):
                a(f"s_mov_b32 s5, 0")
                a.label(f"L_cs{k}")
                a(f"""v_readlane_b32 s6, v{20+k}, s5
                s_add_u32 s7, s5, {64*k}
                s_sub_u32 s6, s6, s8
                s_and_b32 s16, s7, {m_}
                s_cmp_lg_u32 s16, {v_}
                s_cbranch_scc1 L_cn{k}
                s_min_i32 s10, s10, s6
                s_cmp_gt_i32 s6, {self.o.get("thr", 150)}
                s_addc_u32 s17, s17, 0
                s_cmp_gt_i32 s6, s9
                s_cselect_b32 s9, s6, s9
                s_cselect_b32 s11, s7, s11""")
                a.label(f"L_cn{k}")
                a(f"s_add_u32 s5, s5, 1\ns_cmp_lt_u32 s5, {64 if k < 3 else 60}\ns_cbranch_scc1 L_cs{k}")
            a({"arg": "s_lshl_b32 s6, s11, 3", "range": "s_sub_u32 s6, s9, s10\ns_lshl_b32 s6, s6, 1", "zero": "s_mov_b32 s6, 0", "cnt": "s_lshl_b32 s6, s17, 4",
               "max": "s_lshl_b32 s6, s9, 1"}[mode])
            a("s_add_u32 s6, s6, 1000\ns_memrealtime s[4:5]\ns_waitcnt lgkmcnt(0)\ns_add_u32 s6, s6, s4")
            a.label("L_echo")
            a("s_memrealtime s[4:5]\ns_waitcnt lgkmcnt(0)\ns_sub_u32 s7, s6, s4\ns_cmp_gt_i32 s7, 0\ns_cbranch_scc1 L_echo")
            return
        if self.o.get("echo"):
            if self.o["echo"][0] == "skew":
                a(f"v_mov_b32 v16, 4\nbuffer_load_dword v17, v16, {sr(S_DB,4)}, 0 offen sc1\ns_waitcnt vmcnt(0)\nv_readfirstlane_b32 s98, v17\ns_not_b32 s98, s98")
                x, y = 98, S_ST + 2 * self.stnames.index(self.o["echo"][1])
            else:
                x, y = [S_ST + 2 * self.stnames.index(n) for n in self.o["echo"]]
            lo, hi = self.o.get("echo_ids", (0, 999))
            a(f"""s_cmp_eq_u32 {sr(S_VAL)}, 0
            s_cbranch_scc1 L_end
            s_cmp_lt_u32 s2, {lo}
            s_cbranch_scc1 L_end
            s_cmp_ge_u32 s2, {hi}
            s_cbranch_scc1 L_end
            s_and_b32 s6, s2, {self.o.get("echo_m", 0)}
            s_cmp_lg_u32 s6, {self.o.get("echo_v", 0)}
            s_cbranch_scc1 L_end
            s_memrealtime s[4:5]
            s_waitcnt lgkmcnt(0)
            s_sub_u32 s6, {sr(y)}, {sr(x)}
            s_mul_i32 s6, s6, {self.o.get("echo_mul", 1)}
            s_lshr_b32 s6, s6, {self.o.get("echo_shr", 0)}
            s_add_u32 s6, s6, {self.o.get("echo_add", 0)}
            s_add_u32 s6, s6, s4""")
            a.label("L_echo")
            a("s_memrealtime s[4:5]\ns_waitcnt lgkmcnt(0)\ns_sub_u32 s7, s6, s4\ns_cmp_gt_i32 s7, 0\ns_cbranch_scc1 L_echo")
            return
        if self.o.get("dbgst"):
            a("s_waitcnt vmcnt(0)")
            self.stamp("done")
            a("s_waitcnt lgkmcnt(0)\ns_mov_b64 exec, 1")
            slots = [1, 2, 3, 4, 5, 6, 7, 9, 11, 12, 13, 14, 15]
            a(f"s_not_b32 {sr(S_T)}, {sr(S_ST)}\nv_mov_b32 v16, {sr(S_T)}\nv_mov_b32 v17, 4\nbuffer_atomic_umax v16, v17, {sr(S_DB,4)}, 0 offen sc1")
            for i in range(min(self.nst, 12)):
                a(f"v_mov_b32 v{18+2*i}, {sr(S_ST+2*i)}\nv_mov_b32 v{19+2*i}, {4*slots[i+1]}\nbuffer_atomic_umax v{18+2*i}, v{19+2*i}, {sr(S_DB,4)}, 0 offen sc1")
            return
        if not self.o.get("stamps"): return
        T = S_T
        a(f"""s_waitcnt lgkmcnt(0)
        s_lshl_b32 {sr(T)}, s2, 2
        s_add_u32 {sr(T)}, {sr(T)}, {sr(S_W)}
        s_lshl_b32 {sr(T)}, {sr(T)}, 7
        s_add_u32 {sr(T)}, {sr(T)}, {WS_DBG}
        v_mov_b32 v1, 0""")
        for i in range(26): a(f"v_mov_b32 {vr(16+i)}, {sr(S_ST+i)}")
        for i in range(7): a(f"buffer_store_dwordx4 {vr(16+4*i,4)}, v1, {sr(S_WS,4)}, {sr(T)} offen offset:{16*i}")

    def build(self):
        a = self.a
        self.stnames = []
        a.raw(f"; @launch grid=({NWG},1,1) block=(256,1,1) lds={LDS_TOTAL}")
        a.raw('.amdgcn_target "amdgcn-amd-amdhsa--gfx950"')
        a.raw(".text")
        a.raw(f".globl {NAME}")
        a.raw(".p2align 12")
        self.entry()
        self.phase_a()
        self.rest()
        a.label("L_fin")
        self.dump_stamps()
        a.label("L_end")
        a("s_endpgm")
        self.poll2()
        if not self.o.get("touch", 1): self.rare()
        a.label("L_dummy")
        self.fallback()
        self.wfuse()
        a.raw('.section .rodata,"a"')
        a.raw(".p2align 6")
        a.raw(kernel_desc(NAME, 512, 102, 256))
        return a.text()

    def S(self, buf, qb, i=0): return V_S + buf * 32 + qb * 8 + i
    def P(self, buf, qb, i=0): return V_P + buf * 16 + qb * 4 + i

    def k_reads(self, slot, V_K=V_K):
        ka, so = (V_KA, slot * SLOT) if slot < 2 else (V_HI, (slot - 2) * SLOT)
        out = [f"ds_read_b128 {vr(V_K+8*s+4*kb,4)}, {vr(ka)} offset:{so + 2048*s + 256*kb}" for s in range(4) for kb in range(2)]
        out += [f"ds_read_b64 {vr(V_K+32+2*kb,2)}, {vr(ka+1)} offset:{so + 8192 + 512*kb}" for kb in range(2)]
        return out

    def v_reads(self, slot, dst=V_V):
        (va, vr_, vb), so = ((V_VA, V_VR, V_VB), slot * SLOT) if slot < 2 else ((V_HI + 2, V_HI + 4, V_HI + 5), (slot - 2) * SLOT)
        out = []
        for T in range(9):
            for u in range(2):
                if T < 8: out.append(f"ds_read_b64_tr_b16 {vr(dst+4*T+2*u,2)}, {vr((va if T < 4 else vb)+(T&1))} offset:{so + 2048*((T>>1)&1) + 256*u}")
                else: out.append(f"ds_read_b64_tr_b16 {vr(dst+4*T+2*u,2)}, {vr(vr_)} offset:{so + 8192 + 512*u}")
        return out

    def qk_mfmas(self, buf, czero=False):
        out = []
        for s in range(5):
            for kb in range(2):
                for qb in range(4):
                    d = vr(self.S(buf, qb, 4 * kb), 4)
                    c = ("0" if czero else vr(V_CI + 4 * qb, 4)) if s == 0 else d
                    if s < 4: out.append(f"v_mfma_f32_16x16x32_bf16 {d}, {vr(V_K+8*s+4*kb,4)}, {ar(A_Q+18*qb+4*s,4)}, {c}")
                    else: out.append(f"v_mfma_f32_16x16x16_bf16 {d}, {vr(V_K+32+2*kb,2)}, {ar(A_Q+18*qb+16,2)}, {c}")
        return out

    def pv_mfmas(self, buf, czero=False):
        out = []
        for T in range(9):
            for qb in range(4):
                o = ar(A_O + 36 * qb + 4 * T, 4)
                out.append(f"v_mfma_f32_16x16x32_bf16 {o}, {vr(V_V+4*T,4)}, {vr(self.P(buf,qb),4)}, {'0' if czero else o}")
        return out

    def plan(self):
        o = self.o
        n = 76
        fixed = [None] * n
        for i, g in enumerate(range(1, 36, 2)): fixed[g] = ("V", i)
        for i, g in enumerate([41, 44, 47, 50, 53, 56, 59, 62, 65, 68]): fixed[g] = ("K", i)
        for i, g in enumerate([42, 46, 49, 52, 55, 58, 61, 64, 67]): fixed[g] = ("D", i)
        exps = [(qb, j) for qb in range(4) for j in range(8)]
        start = 40
        order = [(start + k) % n for k in range(n)]
        free_idx = [k for k, g in enumerate(order) if fixed[g] is None]
        nsm = len(free_idx) - 32
        cand = free_idx[6:-2]
        sm_set = set(free_idx[-2:]) | {cand[int((i + 0.5) * len(cand) / (nsm - 2))] for i in range(nsm - 2)}
        nds = sum(1 for f in fixed if f is not None and f[0] != "D")
        ls = o.get("lsum", "add")
        over = max(0, (48 if ls == "add" else 32) - nds - 2 * nsm)
        ocand = [k for k, g in enumerate(order) if k >= 20 and (fixed[g] is None or fixed[g][0] != "D")]
        o_set = {ocand[int((i + 0.5) * len(ocand) / over)] for i in range(over)}
        later = []
        gaps = [[] for _ in range(n)]
        small, pend, ei = [], [], 0
        for k, g in enumerate(order):
            new = (start + k) < n
            small.extend(pend); pend = later; later = []
            small.sort(key=lambda t: 0 if t[0] == "c" else 1)
            f = fixed[g]
            want = 0
            if f is not None:
                gaps[g].append((f[0], f[1], None))
                if f[0] == "D": continue
                want = 1
            elif k in sm_set: want = 2
            else:
                qb, j = exps[ei]; ei += 1
                gaps[g].append(("E", ("e", qb, j), new))
                if j & 1: pend.append(("c", qb, j // 2))
                if ls == "add": pend.append(("a", qb, j))
                elif j & 1 and ls == "pk": pend.append(("p", qb, j // 2))
            if k in o_set: want += 1
            if k == n - 1: want = 99
            for _ in range(want):
                if small:
                    it = small.pop(0)
                    gaps[g].append(("E", it, new))
                    if it[0] == "c" and ls == "dot": (small if k == n - 1 else pend).append(("d", it[1], it[2]))
        assert not small and not pend and ei == 32
        self.gaps = gaps

    def pack(self, mf, items):
        a = self.a
        where, order, done, nvm, mpos = {}, [], 0, 0, []
        isds = lambda it: "ds_" in it["t"]
        self.over = 0
        for g, m in enumerate(mf):
            assert not any(it.get("need", 999) <= g and i not in where for i, it in enumerate(items)), g
            idx = [k for k, n_ in enumerate(order) if n_ <= g]
            if idx and max(idx) + 1 > done:
                a(f"s_waitcnt lgkmcnt({min(15, len(order) - 1 - max(idx))})"); done = max(idx) + 1
            if m.startswith("@W"):
                w_, m = m.split("\n", 1)
                a(f"s_waitcnt lgkmcnt({min(15, int(w_[2:]) + len(order))})")
            a(m)
            mpos.append(len(a.lines))
            cap, pick = 8, []
            for phase in (0, 1):
                for i, it in enumerate(items):
                    if i in where or it.get("lo", 0) > g: continue
                    if "am" in it and (it["am"] >= g or len(a.lines) - mpos[it["am"]] < 8): continue
                    d = it.get("dep")
                    if d is not None and not all(where.get(x, 999) < g for x in d): continue
                    if (phase == 0 and it.get("hi", 999) <= g) or (phase == 1 and it["c"] <= cap):
                        if it["t"].startswith("buffer") and pick and any(items[x]["c"] for x in pick) and phase == 1: continue
                        if isds(it) and sum(isds(items[x]) for x in pick) >= it.get("nds", 1) and phase == 1: continue
                        pick.append(i); where[i] = g; cap -= it["c"]
            key = lambda i: 0 if items[i]["c"] == 0 else 1 if isds(items[i]) else 2 if items[i]["t"].startswith("buffer") else 3
            for i in sorted(pick, key=key):
                a(items[i]["t"].replace("@VM", f"s_waitcnt vmcnt({nvm})"))
                nvm += items[i]["t"].startswith("buffer")
                if isds(items[i]): order.append(items[i].get("need", 999))
            self.over += max(0, -cap)
        return [it["t"] for i, it in enumerate(items) if i not in where]

    def e_items(self, buf, lst, lo, hi):
        items, idx = [], {}
        for it in lst:
            kind, qb, j = it
            d = dict(t=self.etext(buf, it), c=8 if kind == "e" else 4)
            if kind == "e": d["lo"] = lo(qb, j); d["hi"] = hi(qb) - 2 - (7 - j)
            else:
                need = [("e", qb, j)] if kind == "a" else [("c", qb, j)] if kind == "d" else [("e", qb, 2 * j), ("e", qb, 2 * j + 1)]
                d["dep"] = [idx[x] for x in need if x in idx]
                if kind == "c": d["hi"] = hi(qb) - (3 - j) // 2
            idx[it] = len(items); items.append(d)
        return items

    def etext(self, buf, it):
        kind, qb, j = it
        s = self.S(buf, qb)
        if kind == "e": return f"v_exp_f32 {vr(s+j)}, {vr(s+j)}"
        if kind == "d": return f"v_dot2_f32_bf16 {vr(V_L+qb)}, {vr(self.P(buf, qb, j))}, v227, {vr(V_L+qb)}"
        if kind == "p": return f"v_pk_add_f32 {vr(208+2*qb,2)}, {vr(208+2*qb,2)}, {vr(s+2*j,2)}"
        if kind == "a": return f"v_add_f32 {vr(V_L+qb)}, {vr(V_L+qb)}, {vr(s+j)}"
        return f"v_cvt_pk_bf16_f32 {vr(self.P(buf, qb, j))}, {vr(s+2*j)}, {vr(s+2*j+1)}"

    def period(self, p, qk=True, pv=True, e_old=True, e_new=True, kread=True, vread=True, dma=True, extra={}, dsub=None, ksub=None, vm=9, halves=(0, 1), inc=None):
        a = self.a
        bn, bo = (p + 1) & 1, p & 1
        qk_, pv_ = self.qk_mfmas(bn), self.pv_mfmas(bo, czero=(p == 0))
        qo, po = self.o.get("qkord", 1), self.o.get("pvord", 0)
        if qo == 1: qk_ = [qk_[8 * s_ + 4 * kb + qb] for kb in range(2) for qb in range(4) for s_ in range(4)] + qk_[32:]
        if qo == 2: qk_ = [qk_[8 * s_ + 4 * kb + qb] for qb in range(4) for kb in range(2) for s_ in range(4)] + qk_[32:]
        if qo == 3: qk_ = [qk_[8 * s_ + 4 * kb + qb] for qb in range(4) for s_ in range(4) for kb in range(2)] + qk_[32:]
        if po == 1: pv_ = [pv_[4 * T_ + qb] for qb in range(4) for T_ in range(9)]
        mf = qk_ + pv_
        kr, vrd = self.k_reads((p + 2) % RING), self.v_reads(p % RING)
        slot = p % RING
        n = 76
        sc = [[] for _ in range(n)]
        dgs = [g for g in range(n) if any(e[0] == "D" for e in self.gaps[g])]
        if dma:
            for j, g in enumerate(dgs):
                if j % 4 == 0: sc[g - 1].append(f"s_add_u32 m0, {sr(S_LB)}, {slot*SLOT + 4096*(j//4)}")
            sc[dgs[-1] + 1].append(f"s_add_u32 {sr(S_TOFF)}, {sr(S_TOFF)}, {inc or 4*TILE}")
        w = []
        if kread: w.append(f"vmcnt({vm})")
        if pv: w.append("lgkmcnt(0)")
        if w: sc[39].append("s_waitcnt " + " ".join(w))
        if kread: sc[75].append("s_waitcnt lgkmcnt(0)")
        for half in halves:
            rng = range(0, 40) if half == 0 else range(40, 76)
            on = qk if half == 0 else pv
            if not on:
                ds, mem, val, post = [], [], [], []
                for g in rng:
                    for s_ in sc[g]:
                        (post if s_.startswith("s_waitcnt") else mem).append(s_)
                    if g in extra: mem.append(extra[g])
                    for kind, d, new in self.gaps[g]:
                        if kind == "V" and vread: ds.append(vrd[d])
                        elif kind == "K" and kread: ds.append(kr[d])
                        elif kind == "D" and dma: mem.append(f"buffer_load_dwordx4 {vr(V_DMA + d//4)}, {sr(S_XA,4)}, {sr(S_TOFF)} offen offset:{1024*(d%4)} lds")
                        elif kind == "E" and ((new and e_new) or (not new and e_old)): val.append((d, self.etext(bn if new else bo, d)))
                if half == 1: a("s_nop 3")
                seq, pend = [], list(val)
                while pend:
                    k = 0
                    if seq and seq[-1][0][0] == "e":
                        le = seq[-1][0]
                        dep = lambda it: it[0][1] == le[1] and ((it[0][0] == "a" and it[0][2] == le[2]) or (it[0][0] == "c" and it[0][2] == le[2] // 2))
                        have = {x[0] for x in seq}
                        ok = lambda it: it[0][0] == "e" or (("e", it[0][1], it[0][2]) in have if it[0][0] == "a" else (("e", it[0][1], 2*it[0][2]+1) in have)) or not any(x[0][0] == "e" and x[0][1] == it[0][1] and (x[0][2] == it[0][2] if it[0][0] == "a" else x[0][2] // 2 == it[0][2]) for x in pend)
                        while k < len(pend) and (dep(pend[k]) or not ok(pend[k])): k += 1
                        if k == len(pend): seq.append((("n", 0, 0), "s_nop 0")); k = 0
                    seq.append(pend.pop(k))
                step = max(1, len(seq) // (len(mem) + len(ds) + 1))
                allm = ds + mem
                for x in allm[:6]: a(x)
                allm = allm[6:]
                for i_, (d, t_) in enumerate(seq):
                    a(t_)
                    if allm and i_ % step == step - 1:
                        x = allm.pop(0); a(x)
                        if x.startswith("s_add_u32 m0"): a("s_nop 0")
                for x in allm:
                    a(x)
                    if x.startswith("s_add_u32 m0"): a("s_nop 0")
                for x in post: a(x)
                if half == 0: a("s_nop 1")
                continue
            for g in rng:
                a(mf[g])
                for s_ in sc[g]: a(s_)
                if g in extra: a(extra[g])
                for kind, d, new in self.gaps[g]:
                    if kind == "V":
                        if vread: a(vrd[d])
                    elif kind == "K":
                        if kread: a(kr[d])
                        elif ksub: a(ksub.pop(0))
                    elif kind == "D":
                        if dma: a(f"buffer_load_dwordx4 {vr(V_DMA + d//4)}, {sr(S_XA,4)}, {sr(S_TOFF)} offen offset:{1024*(d%4)} lds")
                        elif dsub: a(dsub.pop(0))
                    elif (new and e_new) or (not new and e_old):
                        a(self.etext(bn if new else bo, d))

    MK, VO, VO8, GA, VS0, VS0R, VDW, VLW, VL8, VST, VPL = 232, 236, 9, 238, 250, 251, 244, 245, 246, 247, 248
    NB, PT, E_U, E_G, RS3, E_COL, RS1, RS2, MP1 = 3, 4, 5, 6, 7, 43, 36, 37, 38
    G0, GM, GP, U, DWT = 16, 26, 36, 80, (90, 252, 96, 100, 112, 116, 104, 94)
    XRS = (192, 196, 46)
    frag = staticmethod(lambda f, b: [(f, b + 4 * s) for s in range(5)])
    WD = [[("a", 216 + 4 * s) for s in range(5)], [("a", 234 + 4 * s) for s in range(5)], [("v", 208 + 4 * s) for s in range(5)]]
    WO = [[("a", 4 * s) for s in range(5)], [("a", 18 + 4 * s) for s in range(5)], [("a", 36), ("a", 40), ("a", 44), ("a", 48), ("a", 252)]]
    X1B = 98304
    X2O = L_SP - X1B
    L_L = L_SP + 9216

    def epi_setup(self):
        a = self.a
        T = S_T
        NB, PT, VO, GA = self.NB, self.PT, self.VO, self.GA
        r, g4, x, y, big, r0 = 52, 53, 54, 55, 56, 57
        a(f"""s_lshr_b32 {sr(NB)}, {sr(S_W)}, 1
        s_and_b32 {sr(PT)}, {sr(S_W)}, 1
        v_and_b32 {vr(r0)}, 15, v0
        v_lshrrev_b32 {vr(g4)}, 4, v0
        v_mul_u32_u24 {vr(x)}, 288, {vr(r0)}
        v_mov_b32 {vr(big)}, 0x40000000
        s_lshl_b32 {sr(T)}, {sr(S_TOWN)}, 1
        s_add_u32 {sr(T)}, {sr(T)}, {sr(NB)}
        s_lshl_b32 {sr(T)}, {sr(T)}, 4
        v_add_u32 {vr(r)}, {sr(T)}, {vr(r0)}
        s_mul_i32 {sr(T+1)}, {sr(S_TOWN)}, {TILE}
        s_mul_i32 {sr(T+2)}, {sr(PT)}, {BLK}
        v_add_u32 {vr(x)}, {sr(T+1)}, {vr(x)}
        s_sub_u32 {sr(T+3)}, {BLK}, {sr(T+2)}
        v_add_u32 {vr(y)}, {sr(T+3)}, {vr(x)}
        v_add_u32 {vr(x)}, {sr(T+2)}, {vr(x)}
        v_lshl_add_u32 {vr(VO)}, {vr(g4)}, 4, {vr(x)}
        v_lshl_add_u32 {vr(VO+1)}, {vr(g4)}, 4, {vr(y)}
        v_lshl_add_u32 {vr(self.VO8)}, {vr(g4)}, 3, {vr(x)}
        s_lshl_b32 {sr(T+3)}, {sr(PT)}, 11
        s_add_u32 {sr(self.E_U)}, {sr(T+3)}, {WS_U}
        s_add_u32 {sr(self.E_G)}, {sr(T+3)}, {WS_G}
        s_sub_u32 {sr(T+3)}, 4096, {sr(T+3)}
        s_lshl_b32 {sr(T)}, {sr(PT)}, 11
        s_add_u32 {sr(T)}, {sr(T)}, {WS_DWF}
        v_lshrrev_b32 {vr(x)}, 2, {vr(r0)}
        v_cmp_eq_u32 vcc, {vr(x)}, {vr(g4)}
        v_lshl_add_u32 {vr(self.VDW)}, {vr(r0)}, 4, {sr(T)}
        s_nop 0
        v_cndmask_b32 {vr(self.VDW)}, {vr(big)}, {vr(self.VDW)}, vcc
        s_lshl_b32 {sr(self.E_COL)}, {sr(S_W)}, 6
        v_lshlrev_b32 {vr(self.VL8)}, 3, v0
        v_add_u32 {vr(self.VL8)}, 4096, {vr(self.VL8)}
        v_add_u32 {vr(self.VST)}, {sr(S_LB)}, {vr(V_DMA)}
        v_add_u32 {vr(self.VST)}, {2*SLOT}, {vr(self.VST)}
        s_xor_b32 {sr(T)}, {sr(NB)}, 1
        v_xor_b32 {vr(x)}, {sr(T)}, {vr(g4)}
        v_lshl_add_u32 {vr(x)}, {vr(x)}, 4, {vr(r0)}
        s_lshl_b32 {sr(T)}, {sr(S_W)}, 2
        s_add_u32 {sr(T)}, {sr(T)}, {self.L_L}
        v_lshl_add_u32 {vr(self.VLW)}, {vr(x)}, 4, {sr(T)}
        s_sub_u32 {sr(self.MP1)}, 0, {sr(PT)}
        s_mov_b32 {sr(self.MP1+1)}, {sr(self.MP1)}""")
        for k, (d, base) in enumerate(((self.RS1, 3 * SLOT), (self.RS2, 2 * SLOT), (self.RS3, 2 * SLOT))):
            a(f"s_xor_b32 {sr(T)}, {sr(S_W)}, {k+1}\ns_mul_i32 {sr(T)}, {sr(T)}, {TILE}\ns_add_u32 {sr(d)}, {sr(T)}, {base}")
        a(f"""s_mul_i32 {sr(T)}, {sr(S_B)}, 4000
        s_add_u32 {sr(T+1)}, {sr(T)}, 3999
        s_mov_b32 {sr(T+2)}, {BLK}""")
        for k, dr in enumerate((0, -1, 1)):
            m = GA + 2 * k
            if dr: a(f"v_add_u32 {vr(m)}, {dr}, {vr(r)}\nv_cmp_eq_u32 vcc, {sr(T if dr < 0 else T+1)}, {vr(r)}")
            src = m if dr else r
            a(f"""v_lshrrev_b32 {vr(x)}, 4, {vr(src)}
            v_and_b32 {vr(y)}, 15, {vr(src)}
            v_mul_lo_u32 {vr(x)}, {vr(x)}, {sr(T+2)}
            v_lshl_add_u32 {vr(y)}, {vr(g4)}, 4, {vr(y)}
            v_lshl_add_u32 {vr(m)}, {vr(y)}, 4, {vr(x)}
            v_lshl_add_u32 {vr(m+1)}, {vr(y)}, 3, {vr(x)}
            v_add_u32 {vr(m+1)}, {sr(T+3)}, {vr(m+1)}""")
            if dr: a(f"v_cndmask_b32 {vr(m)}, {vr(m)}, {vr(big)}, vcc\nv_cndmask_b32 {vr(m+1)}, {vr(m+1)}, {vr(big)}, vcc")

    def conv_loads(self):
        GA = self.GA
        L = []
        for dst, m, so in ((self.GM, GA + 2, 1), (self.G0, GA, 1), (self.GP, GA + 4, 1), (self.U, GA, 0)):
            for k in range(2): L.append(f"buffer_load_dwordx4 {vr(dst+4*k,4)}, {vr(m)}, {sr(S_WS,4)}, {sr(self.E_U+so)} offen offset:{1024*k}")
            L.append(f"buffer_load_dwordx2 {vr(dst+8,2)}, {vr(m+1)}, {sr(S_WS,4)}, {sr(self.E_U+so)} offen")
        return L

    def rg(self, e, n): return (ar if e[0] == "a" else vr)(e[1], n)

    def w8_loads(self, regs, so):
        return [f"buffer_load_dwordx4 {self.rg(regs[s],4)}, {vr(V_DMA)}, {sr(S_WS,4)}, {sr(so)} offen offset:{1024*s}" for s in range(4)] + \
               [f"buffer_load_dwordx2 {self.rg(regs[4],2)}, {vr(self.VL8)}, {sr(S_WS,4)}, {sr(so)} offen"]

    def w_reads(self, regs, off):
        L = []
        for tt in range(2):
            L += [f"ds_read_b128 {self.rg(regs[tt][s],4)}, {vr(self.VS0)} offset:{off + BLK*tt + 1024*s}" for s in range(4)]
            L.append(f"ds_read_b64 {self.rg(regs[tt][4],2)}, {vr(self.VS0R)} offset:{off + BLK*tt}")
        return L

    def xa_srd(self):
        T = S_T
        return f"""s_mul_i32 {sr(T)}, {sr(S_B)}, {NT}
        s_mul_i32 {sr(T+1)}, {sr(S_H)}, 63
        s_add_u32 {sr(T+1)}, {sr(T+1)}, {sr(T)}
        s_mul_i32 {sr(T+1)}, {sr(T+1)}, {TILE}
        s_add_u32 {sr(S_XA)}, {sr(S_WS)}, {sr(T+1)}
        s_addc_u32 {sr(S_XA+1)}, {sr(S_WS+1)}, 0
        s_sub_u32 {sr(T+2)}, 63, {sr(S_H)}
        s_mul_i32 {sr(S_XA+2)}, {sr(T+2)}, {TILE}
        s_mov_b32 {sr(S_XA+3)}, 0x20000"""

    def rest(self):
        a, o = self.a, self.o
        T = S_T
        VPL = self.VPL
        self.plan()
        self.head()
        self.stamp("loop")
        if o.get("sktest") or o.get("echo") and o["echo"][0] == "skew":
            a(f"s_waitcnt lgkmcnt(0)\ns_mov_b64 exec, 1\ns_not_b32 s98, {sr(S_ST)}\nv_mov_b32 v226, s98\nv_mov_b32 v227, 4\ns_cmp_lg_u32 {sr(S_W)}, 0\ns_cbranch_scc1 L_sk\nbuffer_atomic_umax v226, v227, {sr(S_DB,4)}, 0 offen sc1\ns_waitcnt vmcnt(0)\nL_sk:\ns_mov_b64 exec, -1\ns_nop 3")
            self.stamp("sk")
        nh = o.get("ugh", 2)
        ex = {2 + 12 * k: x for k, x in enumerate(self.ugs[nh:])}
        ugl = o.get("ugl", 0)
        if ugl: self.period(0, extra={69: self.ugs[0]})
        else: self.period(0, vm=9 + 5, extra=ex)
        self.stamp("l0")
        a.raw(".p2align 6")
        a.label("L_loop")
        self.stamp("q1")
        for p in range(1, 5):
            ex = {}
            vm = 9
            if p == 1: ex = {73: f"s_cmp_eq_u32 {sr(S_CNT)}, 3"}
            if p == 2: ex = {70: f"buffer_load_dword v252, {vr(VPL)}, {sr(S_WS,4)}, 0 offen sc1"}
            if p == 3:
                ex = {73: f"s_cmp_eq_u32 {sr(S_CNT)}, 2", 45: f"ds_add_rtn_u32 v230, v231, {vr(VPL+1)}"}
            if p == 4:
                self.stamp("la0")
                a(f"s_cbranch_scc1 L_last")
                a.label("L_lastb")
                self.stamp("la1")
                ex = {72: f"s_add_u32 {sr(S_CNT)}, {sr(S_CNT)}, 1", 1: f"v_readfirstlane_b32 {sr(T)}, v230", 3: f"s_cmp_eq_u32 {sr(T)}, 3",
                      4: f"s_cselect_b32 {sr(T)}, {sr(S_FB)}, 2.0", 6: f"buffer_store_dword v226, v231, {sr(S_WS,4)}, {sr(T)} offen sc1"}
            if ugl:
                ex[69] = self.ugs[p]
                if p == 4: ex.update({71: f"s_mov_b32 {sr(S_UG)}, 2.0", 2: f"s_lshl2_add_u32 {sr(T)}, {sr(S_CNT)}, {sr(T)}", 3: f"s_cmp_eq_u32 {sr(T)}, 7"})
                if p == 3: ex.update({43: f"s_and_b32 {sr(T)}, {sr(S_CNT)}, 1", 44: f"v_mov_b32 {vr(VPL+1)}, {sr(T)}", 48: ex.pop(45)})
            for k_ in range(o.get("pad", 0)): ex[10 + 7 * k_] = ex.get(10 + 7 * k_, "s_nop 0") + "\ns_nop 7"
            self.period(p, extra=ex, inc=sr(S_INC) if p == 4 else None)
            if p == 1: a("s_cbranch_scc1 L_p14")
        a("s_branch L_loop")
        a.label("L_p14")
        SW = 66
        self.stamp("p14")
        a(f"s_cmp_eq_u32 {sr(S_DUM)}, 4\ns_cbranch_scc0 L_dummyb")
        for i in range(16): a(f"v_mov_b32 {vr(V_CI+i)}, 0xff800000")
        a("s_nop 1")
        a.label("L_dummyb")
        ex = dict(zip([2, 6, 8, 12, 14, 18, 20, 24, 26, 30], self.w_reads(self.WD, 0)))
        ex[0] = "s_waitcnt vmcnt(9)"
        ex.update(dict(zip([4, 10, 16, 22, 28], self.w8_loads(self.WD[2], SW))))
        self.period(14, dma=False, kread=False, extra=ex, halves=(0,))
        self.stamp("tail")
        self.tail(SW)
        self.stamp("end")
        self.epilogue(SW)

    def rare(self):
        a = self.a
        T = S_T
        SW = 66
        a.label("L_last")
        a(f"s_waitcnt vmcnt(9)\ns_mov_b32 {sr(T+2)}, 0")
        a.label("L_late")
        a(f"""v_cmp_ne_u32 vcc, {sr(S_N)}, v252
        s_add_u32 {sr(S_XA)}, {sr(S_WS)}, {WS_WF}
        s_addc_u32 {sr(S_XA+1)}, {sr(S_WS+1)}, 0
        s_mov_b32 {sr(S_XA+2)}, {18*BLK}
        s_add_u32 {sr(S_TOFF)}, {sr(S_LB)}, {9*BLK}
        s_mov_b32 {sr(S_INC)}, {-9*BLK}
        s_lshr_b32 {sr(SW)}, {sr(S_W)}, 1
        s_lshl_b32 {sr(SW)}, {sr(SW)}, 30
        s_add_u32 {sr(SW+1)}, {sr(SW)}, {WS_WF + 8*BLK}
        s_add_u32 {sr(SW)}, {sr(SW)}, {WS_WF + 17*BLK}
        s_and_b32 {sr(T)}, vcc_lo, 31
        s_cbranch_scc0 L_lastb
        buffer_load_dword v252, {vr(self.VPL)}, {sr(S_WS,4)}, 0 offen sc1
        s_add_u32 {sr(T+2)}, {sr(T+2)}, 1
        s_waitcnt vmcnt(0)
        s_cmp_lt_u32 {sr(T+2)}, 0x40000
        s_cbranch_scc1 L_late
        s_branch L_lastb""")

    units = [(0, 0), (0, 1), (1, 0), (1, 1), (2, 0)]
    V15 = V_K

    def stage(self, slot, T):
        src = ar(A_O + 36 * slot + 4 * T, 4)
        if slot == 0: return f"ds_write_b128 {vr(self.VST)}, {src} offset:{1024*T}"
        if slot == 2: return f"ds_write_b128 {vr(self.VS0)}, {src} offset:{1024*T}"
        if T < 4: return f"ds_write_b128 {vr(self.VST)}, {src} offset:{SLOT + 1024*T + (4096 if slot == 3 else 0)}"
        return f"{'s_not_b64' if slot == 1 else 's_mov_b64'} exec, {sr(self.MP1,2)}\nds_write_b128 {vr(self.VST)}, {src} offset:{SLOT + 8192}\ns_mov_b64 exec, -1"

    def dwf(self, k, i):
        f = 5 * k + i
        return self.DWT[f >> 1] + 2 * (f & 1)

    def tail(self, SW):
        a, o = self.a, self.o
        mf, pos, start = [], {}, {}
        for t_, qb in ((14, 0), (14, 1), (15, 0), (15, 1), (14, 2), (15, 2), (14, 3), (15, 3)):
            start[t_, qb] = len(mf)
            for Tt in ([0, 1, 2, 3, 8, 4, 5, 6, 7] if qb & 1 else range(9)):
                o_ = ar(A_O + 36 * qb + 4 * Tt, 4)
                pos[t_, qb, Tt] = len(mf)
                mf.append(f"v_mfma_f32_16x16x32_bf16 {o_}, {vr((V_V if t_ == 14 else self.V15)+4*Tt,4)}, {vr(self.P(t_ & 1,qb),4)}, {o_}")
        lst = []
        for qb in range(4):
            for j in range(8):
                lst.append(("e", qb, j))
                if j & 1: lst.append(("c", qb, j // 2))
        lst += [("a", qb, j) for qb in range(4) for j in range(8)]
        items = self.e_items(1, lst, lambda qb, j: 0 if j < 4 else 1, lambda qb: start[15, qb] - 2)
        for it in items[48:]: it["lo"] = o.get("alo", 26)
        v15 = [dict(t=x, c=4, need=pos[15, 0, i // 2], hi=pos[15, 0, i // 2] - o.get("vlead", 7), lo=0 if i < 16 else 2) for i, x in enumerate(self.v_reads(3, self.V15))]
        wr = []
        nown = o.get("nown", 4)
        self.own = [(2, T_) for T_ in range(nown, 9)] + [(3, T_) for T_ in (0, 1, 2, 3, 8)]
        g = o.get("w0", 23)
        for k, (sl, Tt) in enumerate([(0, T_) for T_ in range(9)] + [(1, T_) for T_ in (0, 1, 2, 3, 8)] + [(2, T_) for T_ in range(nown)]):
            g = max(pos[15, sl, Tt] + 5, g)
            wr.append(dict(t=self.stage(sl, Tt), c=o.get("wc", 20), lo=int(g), hi=int(g)) if g < 72 else dict(t=self.stage(sl, Tt), c=4, lo=999))
            g += o.get("wsp", 2.7)
        n0 = len(items) + len(v15)
        wo = []
        for i, x in enumerate(self.w_reads(self.WO, SLOT)):
            r0 = self.WO[i // 5][i % 5][1]
            wo.append(dict(t=("@VM\n" if i == 0 else "") + x, c=4, dep=sorted({n0 + r0 // 4, n0 + (r0 + 3) // 4 if (r0 + 3) // 4 < 9 else n0 + 8}), lo=o.get("wo0", 40) + 3 * i, hi=o.get("wo0", 40) + 3 * i + 2))
        cl = self.conv_loads()
        dl = [f"buffer_load_dwordx4 {vr(self.DWT[r],4)}, {vr(self.VDW)}, {sr(S_WS,4)}, 0 offen offset:{256*r}" for r in range(7)]
        dl.append(f"buffer_load_dwordx2 {vr(self.DWT[7],2)}, {vr(self.VDW)}, {sr(S_WS,4)}, 0 offen offset:{256*7}")
        fr = {96: 9, 100: 18, 104: 45, 112: 27, 116: 36}
        vm = [(x, 0) for x in cl] + [(x, fr.get(self.DWT[r], 0)) for r, x in enumerate(dl)]
        used = {w["lo"] for w in wr}
        vi, g = [], o.get("m0", 24)
        for x, lo in vm:
            g = max(g, lo)
            while int(g) in used: g += 1
            vi.append(dict(t=x, c=8, lo=int(g), hi=int(g)) if g < 72 else dict(t=x, c=8, lo=999))
            g += o.get("msp", 2.2)
        left = self.pack(mf, items + v15 + wr + wo + vi)
        self.done_a = {(qb, j) for qb in range(4) for j in range(8) if self.etext(1, ("a", qb, j)) not in left}
        left = [x for x in left if not x.startswith("v_add_f32")]
        print("tail overflow", self.over, "left", len(left), "adds done", len(self.done_a))
        self.left = left

    def epilogue(self, SW):
        a, o = self.a, self.o
        T = S_T
        p = lambda r: vr(r, 2)
        NB, PT, MK, VO, units, MP1 = self.NB, self.PT, self.MK, self.VO, self.units, self.MP1
        U, GM, G0, GP = self.U, self.GM, self.G0, self.GP
        X2O = self.X2O
        R1, R2, R3 = 230, 231, 249
        LA, LS, M = 10, 226, 48

        def weave(main, fill, per):
            fill = list(fill)
            for x in main:
                a(x)
                for _ in range(per):
                    if fill: a(fill.pop(0))
            return fill
        for x in self.left:
            if not x.startswith("buffer"): a(x)
        lv = [x for x in self.left if x.startswith("buffer")]
        lv += [f"buffer_load_dwordx4 {vr(self.XRS[j],4)}, {vr(VO+j)}, {sr(S_X,4)}, {sr(self.E_COL)} offen" for j in range(2)]
        lv.append(f"buffer_load_dwordx2 {vr(self.XRS[2],2)}, {vr(self.VO8)}, {sr(S_X,4)}, 0 offen offset:256")
        S1 = lambda qb, j: self.S(1, qb, j)
        rounds = [[] for _ in range(6)]
        for qb in range(4):
            rem = [j for j in range(8) if (qb, j) not in self.done_a]
            prs = [j for j in rem if j % 2 == 0 and j + 1 in rem]
            sing = [j for j in rem if (j & ~1) not in prs]
            r_ = 0
            while len(prs) > 1:
                for x, y in zip(prs[0::2], prs[1::2]): rounds[r_].append(f"v_pk_add_f32 {p(S1(qb,x))}, {p(S1(qb,x))}, {p(S1(qb,y))}")
                prs = prs[0::2]; r_ += 1
            for k_, j in enumerate(sing + ([prs[0], prs[0] + 1] if prs else [])): rounds[min(5, max(r_, 2) + k_)].append(f"v_add_f32 {vr(V_L+qb)}, {vr(V_L+qb)}, {vr(S1(qb,j))}")
        for r_ in rounds:
            for x in r_: a(x)
        a(f"v_add_u32 {vr(R1)}, {sr(self.RS1)}, {vr(V_DMA)}\nv_add_u32 {vr(R2)}, {sr(self.RS2)}, {vr(V_DMA)}")
        self.treduce(V_L)
        a(f"ds_write_b32 {vr(self.VLW)}, {vr(V_L)}")
        acc = lambda slot: [f"v_accvgpr_read_b32 {vr(M+i)}, {ar(A_O+36*slot+16+i)}" for i in range(20)]
        a(f"""v_add_u32 {vr(R3)}, {sr(self.RS3)}, {vr(V_DMA)}
        v_add_u32 {vr(LA+1)}, {self.L_L}, {vr(V_DMA)}
        v_and_b32 {vr(LS+1)}, 0xf0, {vr(V_DMA)}
        s_lshl_b32 {sr(T)}, {sr(NB)}, 8
        s_add_u32 {sr(T+8)}, {sr(T)}, {self.L_L}
        v_add_u32 {vr(LS)}, {sr(T+8)}, {vr(LS+1)}""")
        for x in lv: a(x)
        a(f"""s_xor_b32 {sr(T)}, s2, 1
        s_mul_i32 {sr(T)}, {sr(T)}, {IB}
        s_mul_i32 {sr(T+9)}, {sr(NB)}, 5120
        s_add_u32 {sr(T+9)}, {sr(T+9)}, {WS_IB}
        s_add_u32 {sr(T)}, {sr(T)}, {sr(T+9)}
        s_lshl_b32 {sr(T+10)}, {sr(PT)}, 11
        s_add_u32 {sr(T+1)}, {sr(T+10)}, {sr(T)}
        s_add_u32 {sr(T)}, {sr(T)}, 4096
        s_cmp_eq_u32 {sr(PT)}, 0
        s_cselect_b32 {sr(T)}, 0x40000000, {sr(T)}
        s_mov_b32 {sr(T+2)}, {f32(2.0**100)}
        s_mul_i32 {sr(T+12)}, s2, {IB}
        s_add_u32 {sr(T+12)}, {sr(T+12)}, {sr(T+9)}
        s_add_u32 {sr(T+13)}, {sr(T+12)}, {sr(T+10)}
        s_waitcnt lgkmcnt(0)
        s_barrier""")
        self.stamp("B1")

        def rd(X, offs):
            L = [[f"ds_read_b128 {vr(X[k][i],4)}, {vr((R1, R2, R3)[k])} offset:{offs[k] + 1024*i}" for i in range(4)] for k in range(3)]
            L8 = [f"ds_read_b128 {vr(X[k][4],4)}, {vr((R1, R2, R3)[k])} offset:8192" for k in range(3)]
            return L, L8

        def adds(X, k, rng):
            return [f"v_pk_add_f32 {p(M+4*i+2*h)}, {p(M+4*i+2*h)}, {p(X[k][i]+2*h)}" for i in rng for h in range(2)]
        X = [[128, 132, 136, 140, 144], [148, 152, 156, 160, 68], [72, 76, 200, 204, 108]]
        PK = 128
        L, L8 = rd(X, (0, 4096, 0))
        a(f"ds_read_b128 {vr(LA,4)}, {vr(LA+1)}\nds_read_b128 {vr(LS,4)}, {vr(LS)}")
        rest = weave(L[0] + L[1] + L[2], acc(1), 2)
        assert not rest
        a(f"s_mov_b64 exec, {sr(MP1,2)}")
        for x in L8: a(x)
        a(f"""s_mov_b64 exec, -1
        s_waitcnt lgkmcnt(11)
        v_add_f32 {vr(LA)}, {vr(LA)}, {vr(LA+1)}
        v_add_f32 {vr(LA+2)}, {vr(LA+2)}, {vr(LA+3)}
        v_add_f32 {vr(LS)}, {vr(LS)}, {vr(LS+1)}
        v_add_f32 {vr(LA)}, {vr(LA)}, {vr(LA+2)}
        v_add_f32 {vr(LS+2)}, {vr(LS+2)}, {vr(LS+3)}
        v_cmp_nge_f32 vcc, {sr(T+2)}, {vr(LA)}""")
        for x in adds(X, 0, range(4)): a(x)
        a(f"""s_cmp_lg_u64 vcc, 0
        s_cselect_b32 {sr(T+2)}, 1, 0
        s_andn2_b32 {sr(T+2)}, {sr(T+2)}, {sr(S_REDO)}
        s_cbranch_scc1 L_fallback
        v_add_f32 {vr(PK+10)}, {vr(LS)}, {vr(LS+2)}
        v_mov_b32 {vr(PK+11)}, {vr(MK+1)}
        s_waitcnt lgkmcnt(7)""")
        for x in adds(X, 1, range(4)): a(x)
        a("s_waitcnt lgkmcnt(3)")
        a3 = adds(X, 2, range(4))
        cv = [f"v_cvt_pk_bf16_f32 {vr(PK+i)}, {vr(M+2*i)}, {vr(M+2*i+1)}" for i in range(10)]
        for x in a3[:4] + a3[4:6] + cv[:4]: a(x)
        a(f"buffer_store_dwordx4 {vr(PK,4)}, {vr(V_DMA)}, {sr(S_WS,4)}, {sr(T+1)} offen sc1")
        for x in a3[6:] + cv[4:8]: a(x)
        a(f"buffer_store_dwordx4 {vr(PK+4,4)}, {vr(V_DMA)}, {sr(S_WS,4)}, {sr(T+1)} offen offset:1024 sc1")
        a("s_waitcnt lgkmcnt(0)")
        for kk in range(3):
            for x in adds(X, kk, [4]): a(x)
        for x in cv[8:]: a(x)
        a(f"buffer_store_dwordx4 {vr(PK+8,4)}, {vr(V_DMA)}, {sr(S_WS,4)}, {sr(T)} offen sc1")
        self.stamp("sent")
        a(f"s_cmp_eq_u32 {sr(S_VAL)}, 0\ns_cbranch_scc1 L_fin")
        C, UP = 140, 68
        IN = [(200, 204, 226), (164, 168, 252), (192, 196, 172)]
        VXW, VXR, VF, LO = 78, 79, 10, 36
        wr = [self.stage(*e) for e in self.own]

        def inbox(k):
            return [f"buffer_load_dwordx4 {vr(IN[k][0],4)}, {vr(V_DMA)}, {sr(S_WS,4)}, {sr(T+13)} offen sc1",
                    f"buffer_load_dwordx4 {vr(IN[k][1],4)}, {vr(V_DMA)}, {sr(S_WS,4)}, {sr(T+13)} offen offset:1024 sc1",
                    f"buffer_load_dwordx4 {vr(IN[k][2],4)}, {vr(V_DMA+1)}, {sr(S_WS,4)}, {sr(T+12)} offen sc1"]
        for x in inbox(0): a(x)
        n0 = len(a.lines)
        a(f"""s_lshl_b32 {sr(T)}, {sr(NB)}, 12
        s_add_u32 {sr(T)}, {sr(T)}, {sr(T+10)}
        s_add_u32 {sr(T)}, {sr(T)}, {self.X1B}
        v_add_u32 {vr(VXW)}, {sr(T)}, {vr(V_DMA)}
        s_lshl_b32 {sr(T)}, {sr(NB)}, 9
        s_add_u32 {sr(T)}, {sr(T)}, {self.X1B + 4096}
        v_add_u32 {vr(VXR)}, {sr(T)}, {vr(self.VL8)}
        s_lshl_b32 {sr(T)}, {sr(PT)}, 12
        s_add_u32 {sr(T)}, {sr(T)}, {self.X1B}
        v_add_u32 {vr(VF)}, {sr(T)}, {vr(V_DMA)}
        v_xor_b32 {vr(VF+1)}, 4096, {vr(VF)}
        s_lshl_b32 {sr(T)}, {sr(PT)}, 9
        s_add_u32 {sr(T)}, {sr(T)}, {self.X1B + 4096}
        v_add_u32 {vr(VF+2)}, {sr(T)}, {vr(self.VL8)}
        v_xor_b32 {vr(VF+3)}, 512, {vr(VF+2)}
        v_subrev_u32 {vr(R2)}, {2*SLOT}, {vr(R2)}
        v_subrev_u32 {vr(R3)}, {2*SLOT}, {vr(R3)}
        s_waitcnt vmcnt(9)""")
        self.stamp("cv0")
        un = [f"v_lshlrev_b32 {vr(M+2*i)}, 16, {vr(U+i)}\nv_and_b32 {vr(M+1+2*i)}, 0xffff0000, {vr(U+i)}" for i in range(10)]
        w8 = self.w8_loads(self.WO[2], SW + 1)
        for k, src in enumerate((GM, G0, GP)):
            for i in range(5):
                d = vr(C + 4 * i, 4)
                a(f"v_mfma_f32_16x16x16_bf16 {d}, {vr(self.dwf(k, i),2)}, {vr(src+2*i,2)}, {'0' if k == 0 else d}")
                a(w8.pop(0) if i in (0, 3) and w8 else un.pop(0))
        self.stamp("cv1")
        a(f"v_and_b32 {vr(LO+1)}, 0xf0, {vr(V_DMA)}\nv_add_u32 {vr(LO)}, {sr(T+8)}, {vr(LO+1)}\ns_nop 1")
        for i in range(10): a(f"v_pk_mul_f32 {p(C+2*i)}, {p(C+2*i)}, {p(M+2*i)}")
        for i in range(10):
            a(f"v_cvt_pk_bf16_f32 {vr(UP+i)}, {vr(C+2*i)}, {vr(C+2*i+1)}")
        body = a.lines[n0:]; del a.lines[n0:]
        step = max(1, len(body) // len(wr))
        for i, l in enumerate(body):
            if i % o.get("wstep", step) == 0 and wr: a(wr.pop(0))
            a.lines.append(l)
        for x in wr: a(x)
        ac = acc(3)
        a(f"ds_write_b128 {vr(VXW)}, {vr(UP,4)} offset:{X2O}")
        for x in ac[:6]: a(x)
        a(f"ds_write_b128 {vr(VXW)}, {vr(UP+4,4)} offset:{X2O + 1024}")
        for x in ac[6:12]: a(x)
        a(f"""s_mov_b64 exec, {sr(MP1,2)}
        ds_write_b64 {vr(VXR)}, {vr(UP+8,2)} offset:{X2O}
        s_mov_b64 exec, -1""")
        self.stamp("x2")
        for x in inbox(1): a(x)
        for x in ac[12:]: a(x)
        a("s_waitcnt lgkmcnt(0)\ns_barrier")
        self.stamp("B2")
        X = [[128, 132, 136, 140, 144], [148, 152, 156, 160, 188], [16, 20, 24, 28, 32]]
        L, L8 = rd(X, (4096, 4096, 0))
        BU = [[("v", r) for r in (100, 104, 108, 112, 116)], [("v", r) for r in (118, 122, 180, 184, 126)]]
        BO = [self.frag("v", 128), self.frag("v", 146)]
        AB = 80

        def bfrags(dst, off):
            out = []
            for s in range(5):
                for j in range(2):
                    out.append(f"ds_read_b128 {self.rg(dst[j][s],4)}, {vr(VF+j)} offset:{off + 1024*s}" if s < 4 else f"ds_read_b64 {self.rg(dst[j][4],2)}, {vr(VF+2+j)} offset:{off}")
            return out

        def fg(W, Bf):
            out = []
            for s in range(5):
                for u, (tt, j) in enumerate(units):
                    d = vr(AB + 4 * u, 4)
                    if s < 4: out.append(f"v_mfma_f32_16x16x32_bf16 {d}, {self.rg(W[tt][s],4)}, {self.rg(Bf[j][s],4)}, {d}")
                    else: out.append(f"v_mfma_f32_16x16x16_bf16 {d}, {self.rg(W[tt][4],2)}, {self.rg(Bf[j][4],2)}, {d}")
            return out
        xu = []
        for u, (tt, j) in enumerate(units):
            for h in range(2):
                x = self.XRS[j] + 2 * tt + h if tt < 2 else self.XRS[2] + h
                xu += [f"v_lshlrev_b32 {vr(AB+4*u+2*h)}, 16, {vr(x)}", f"v_and_b32 {vr(AB+1+4*u+2*h)}, 0xffff0000, {vr(x)}"]
        a("s_waitcnt vmcnt(14)")
        weave(bfrags(BU, X2O), xu, 2)
        pl = lambda k, i, e: f"v_add_f32 {vr(M+4*i+e)}, {vr(M+4*i+e)}, {vr(X[k][i]+e)}"
        ds = L[0] + L[1] + L[2] + [f"s_not_b64 exec, {sr(MP1,2)}\n" + "\n".join(L8) + "\ns_mov_b64 exec, -1", f"ds_read_b128 {vr(LO,4)}, {vr(LO)} offset:512"]
        nis = [1] * 12 + [3, 1]
        gap = [[] for _ in range(25)]
        tot = [10]
        for g in range(25): tot.append(tot[-1] + (nis[g] if g < 14 else 0))
        A0 = [pl(0, i, e) for i in range(4) for e in range(4)]
        A1 = [pl(1, i, e) for i in range(4) for e in range(4)]
        ib = inbox(2)
        for g, m in enumerate(fg(self.WD, BU)):
            if g % 5 == 0: a(f"s_waitcnt lgkmcnt({min(15, tot[g] - 2 * (g // 5 + 1))})")
            a(m)
            if g == 8: a(f"s_waitcnt lgkmcnt({tot[g] - 14})")
            if g == 16: a(f"s_waitcnt lgkmcnt({tot[g] - 18})")
            if g < 14: a(ds[g])
            if 8 <= g < 14: a(A0.pop(0))
            elif g in (14, 18, 22): a(ib.pop(0))
            elif g >= 14:
                for _ in range(2): a(A0.pop(0) if A0 else A1.pop(0))
        assert not A0 and len(A1) % 2 == 0
        n1 = 16 - len(A1)
        for e in range(n1, 16, 2): a(f"v_pk_add_f32 {p(M+e)}, {p(M+e)}, {p(X[1][e//4]+e%4)}")
        a("s_waitcnt lgkmcnt(0)")
        for x in adds(X, 2, range(4)): a(x)
        a(f"v_add_f32 {vr(LO)}, {vr(LO)}, {vr(LO+1)}\nv_add_f32 {vr(LO+2)}, {vr(LO+2)}, {vr(LO+3)}")
        for kk in range(3):
            for x in adds(X, kk, [4]): a(x)
        a(f"s_mov_b32 {sr(T+2)}, 0\nv_add_f32 {vr(LO)}, {vr(LO)}, {vr(LO+2)}")
        self.stamp("own")
        w, PU = 40, 128
        mo = MK + 3

        def chk(k):
            r = [IN[k][q] + i for q in range(3) for i in range(4)]
            c = [f"v_max3_u32 v46, {vr(r[0])}, {vr(r[1])}, {vr(r[2])}", f"v_max3_u32 v47, {vr(r[3])}, {vr(r[4])}, {vr(r[5])}"]
            for q in range(3): c.append(f"v_max3_u32 v{46+(q&1)}, v{46+(q&1)}, {vr(r[6+2*q])}, {vr(r[7+2*q])}")
            return c + ["v_max_u32 v46, v46, v47", "v_cmp_eq_u32 vcc, -1, v46"]

        def take(k, with_chk):
            r = [IN[k][q] + i for q in range(3) for i in range(4)]
            lp_, mp = r[10], r[11]
            wt = [f"v_min_f32 {vr(w)}, {vr(mo)}, {vr(mp)}", f"v_sub_f32 {vr(w+2)}, {vr(w)}, {vr(mp)}", f"v_sub_f32 {vr(w)}, {vr(w)}, {vr(mo)}",
                  f"v_exp_f32 {vr(w+2)}, {vr(w+2)}", f"v_exp_f32 {vr(w)}, {vr(w)}", f"v_mul_f32 {vr(w+4)}, {vr(w+2)}, {vr(lp_)}",
                  f"v_fmac_f32 {vr(w+4)}, {vr(w)}, {vr(LO)}", f"v_rcp_f32 {vr(w+4)}, {vr(w+4)}", f"v_mul_f32 {vr(w)}, {vr(w)}, {vr(w+4)}",
                  f"v_mul_f32 {vr(w+2)}, {vr(w+2)}, {vr(w+4)}"]
            un = []
            for i in range(10): un += [f"v_lshlrev_b32 {vr(PU+2*i)}, 16, {vr(r[i])}", f"v_and_b32 {vr(PU+1+2*i)}, 0xffff0000, {vr(r[i])}"]
            c = chk(k) if with_chk else []
            for i in range(10):
                a(wt[i])
                if c: a(c.pop(0))
                a(un.pop(0)); a(un.pop(0))
        a("s_waitcnt vmcnt(6)")
        take(0, True)
        a("s_cmp_eq_u64 vcc, 0\ns_cbranch_scc0 L_poll2")
        a.label("L_got")
        self.stamp("got")
        for i in range(10): a(f"v_pk_mul_f32 {p(M+2*i)}, {p(M+2*i)}, {p(w)} op_sel_hi:[1,0]")
        for i in range(10): a(f"v_pk_fma_f32 {p(M+2*i)}, {p(PU+2*i)}, {p(w+2)}, {p(M+2*i)} op_sel_hi:[1,0,1]")
        for i in range(10):
            a(f"v_cvt_pk_bf16_f32 {vr(UP+i)}, {vr(M+2*i)}, {vr(M+2*i+1)}")
            if i == 3: a(f"ds_write_b128 {vr(VXW)}, {vr(UP,4)}")
            if i == 7: a(f"ds_write_b128 {vr(VXW)}, {vr(UP+4,4)} offset:1024")
        a(f"""s_not_b64 exec, {sr(MP1,2)}
        ds_write_b64 {vr(VXR)}, {vr(UP+8,2)}
        s_mov_b64 exec, -1
        s_waitcnt lgkmcnt(0)
        s_barrier""")
        self.stamp("B3")
        for x in bfrags(BO, 0): a(x)
        for g, m in enumerate(fg(self.WO, BO)):
            if g % 5 == 0: a(f"s_waitcnt lgkmcnt({8 - 2 * (g // 5)})" + ("\ns_nop 0" if g == 20 else ""))
            a(m)
        self.stamp("gem")
        a("s_nop 3")
        for j in range(2):
            for tt in range(2):
                u = 2 * tt + j
                for h in range(2): a(f"v_cvt_pk_bf16_f32 {vr(16+4*j+2*tt+h)}, {vr(AB+4*u+2*h)}, {vr(AB+4*u+2*h+1)}")
            a(f"buffer_store_dwordx4 {vr(16+4*j,4)}, {vr(VO+j)}, {sr(S_OUT,4)}, {sr(self.E_COL)} offen {o.get('ofl', '')}")
        a(f"s_cmp_ge_u32 {sr(S_W)}, 2\ns_cbranch_scc1 L_fin")
        for h in range(2): a(f"v_cvt_pk_bf16_f32 {vr(24+h)}, {vr(AB+16+2*h)}, {vr(AB+16+2*h+1)}")
        a(f"buffer_store_dwordx2 v[24:25], {vr(self.VO8)}, {sr(S_OUT,4)}, 0 offen offset:256 {o.get('ofl', '')}")
        self.stamp("fin")

        def poll2():
            a.label("L_poll2")
            for k in (1, 2, 0):
                for x in inbox((k + 2) % 3): a(x)
                a("s_waitcnt vmcnt(6)")
                for x in chk(k): a(x)
                a(f"s_add_u32 {sr(T+2)}, {sr(T+2)}, 1\ns_cmp_eq_u64 vcc, 0\ns_cbranch_scc1 L_take{k}")
            a(f"s_cmp_lt_u32 {sr(T+2)}, 0x10000\ns_cbranch_scc1 L_poll2")
            for k in (0, 1, 2):
                a.label(f"L_take{k}")
                take(k, False)
                a("s_branch L_got")
        self.poll2 = poll2

    def fallback(self):
        a = self.a
        T = S_T
        MXR = 208
        a.label("L_fallback")
        a(f"""s_waitcnt vmcnt(0) lgkmcnt(0)
        s_barrier
        s_mov_b32 {sr(S_REDO)}, 1
        s_mov_b32 {sr(S_UG)}, 0x40000000
        {self.xa_srd()}
        s_mov_b32 {sr(S_TOFF)}, {sr(S_LB)}
        s_cmp_eq_u32 {sr(S_DUM)}, 4
        s_cselect_b32 {sr(S_CNT)}, 15, 16""")
        for i in range(4): a(f"v_mov_b32 {vr(MXR+i)}, 0xff800000")
        a.label("L_fb1")
        for g in self.tile_groups(0): a(g)
        a("s_waitcnt vmcnt(0)")
        for x in self.k_reads(0): a(x)
        a("s_waitcnt lgkmcnt(0)")
        for m in self.qk_mfmas(0, czero=True): a(m)
        a("s_nop 7")
        for qb in range(4):
            for i in range(0, 8, 2): a(f"v_max3_f32 {vr(MXR+qb)}, {vr(MXR+qb)}, {vr(self.S(0,qb,i))}, {vr(self.S(0,qb,i+1))}")
        a(f"s_sub_u32 {sr(S_CNT)}, {sr(S_CNT)}, 1\ns_cmp_lg_u32 {sr(S_CNT)}, 0\ns_cbranch_scc1 L_fb1")
        self.greduce([MXR + i for i in range(4)], MXR + 4, "v_max_f32")
        a(f"""v_and_b32 {vr(MXR+4)}, 15, v0
        v_lshlrev_b32 {vr(MXR+4)}, 4, {vr(MXR+4)}
        v_add_u32 {vr(MXR+4)}, {L_SP}, {vr(MXR+4)}
        s_lshl_b32 {sr(T)}, {sr(S_W)}, 2
        s_xor_b32 {sr(T+1)}, {sr(self.NB)}, 1
        v_lshl_add_u32 {vr(MXR+5)}, {sr(self.NB)}, 8, {vr(MXR+4)}
        v_lshl_add_u32 {vr(MXR+4)}, {sr(T+1)}, 8, {vr(MXR+4)}
        v_add_u32 {vr(MXR+6)}, {sr(T)}, {vr(MXR+4)}
        v_add_u32 {vr(MXR+7)}, {sr(T)}, {vr(MXR+5)}""")
        for qb in range(4): a(f"ds_write_b32 {vr(MXR+6+(qb&1))}, {vr(MXR+qb)} offset:{512*(qb>>1)}")
        a("s_waitcnt lgkmcnt(0)\ns_barrier")
        for qb in range(4): a(f"ds_read_b128 {vr(16+4*qb,4)}, {vr(MXR+4+(qb&1))} offset:{512*(qb>>1)}")
        a(f"s_mov_b32 {sr(S_TOFF)}, {sr(S_LB)}")
        for g in self.tile_groups(0) + self.tile_groups(1) + self.tile_groups(2)[:8]: a(g)
        a("s_waitcnt lgkmcnt(0)")
        for qb in range(4):
            r = 16 + 4 * qb
            a(f"v_max_f32 {vr(r)}, {vr(r)}, {vr(r+1)}\nv_max3_f32 {vr(r)}, {vr(r)}, {vr(r+2)}, {vr(r+3)}")
            a(f"v_sub_f32 {vr(self.MK+qb)}, 0, {vr(r)}")
        a("s_waitcnt vmcnt(0)")
        for x in self.k_reads(0, V_V): a(x)
        self.loop_init(False)
        a("s_branch L_go")


if __name__ == "__main__":
    opt = json.loads(sys.argv[2]) if len(sys.argv) > 2 else {}
    g = G(opt)
    txt = g.build()
    if opt.get("align", 1):
        from align import align
        for n2 in (1, 2):
            try:
                txt, st = align(txt, chains=[(1, "L_tr")] * 3 + [(1, "L_tr2"), (n2, "L_tr2")] if opt.get("touch", 1) else None)
                break
            except AssertionError as e:
                if n2 == 2: raise
        print("align: promoted %d, padded %d, left %d" % st)
    txt = txt.replace("\n", "\n; stamps " + json.dumps(g.stnames) + "\n; map %d\n" % g.mp, 1)
    open(sys.argv[1], "w").write(txt)
```

```python
import sys, json, math
from common import Asm, vr, ar, sr, kernel_header, kernel_desc
from lay import *

NAME = "standalone__conformer_family_branchformer__speech_kernel"
NH = 2
NWG = 252 + NH
CHAINS = (3, 3)
RING = 4
LDS_RING = RING * TILE
LDS_TOTAL = 163840
SLOT = 4 * TILE
L_WU, L_WQ, L_WK = 0, 41472, 82944
L_XX, L_XR = 126976, 143360
L_QD = 18432
L_XS = L_XX + L_QD
L_MX = 81920
L_PC = LDS_TOTAL - 256
L_DUMP = 123904
L_SP = 147456

S_X, S_WS, S_XA, S_DB, S_W1, S_W2, S_OUT, S_DW = 8, 12, 16, 20, 24, 28, 32, 36
S_W, S_B, S_H, S_QB, S_TOFF, S_CNT, S_DUM, S_LB, S_TOWN, S_TSND, S_VAL, S_REDO = range(40, 52)
S_UG = 25
S_N, S_FB = 98, 99
S_INC = 24
S_T = 52
S_ST = 76

V_KA, V_VA, V_VR, V_DMA, V_L, V_VB = 1, 3, 5, 6, 10, 14
V_S, V_CI, V_P, V_K, V_V = 16, 80, 96, 128, 164
V_HI = 200
V_X = 208
A_O, A_Q, A_F = 0, 144, 216

LOG2E = 1.4426950408889634
import struct
def f32(x): return "0x%08x" % struct.unpack("<I", struct.pack("<f", x))[0]


class BAsm(Asm):
    def __init__(self):
        super().__init__()
        self.bg, self.every, self.cnt, self.skip = [], 0, 0, 0

    def __call__(self, s):
        for l in s.split("\n"):
            l = l.strip()
            if not l: continue
            self.lines.append("    " + l)
            if self.bg and self.every and not l.startswith(("s_nop", "v_mov_b32", "v_exp", "v_rcp", "v_rsq", "v_sqrt", "s_add_u32 m0")):
                self.cnt += 1
                if self.cnt >= self.every:
                    self.cnt = 0
                    self.pop()

    def pop(self):
        for x in self.bg.pop(0).split("\n"): self.lines.append("    " + x)

    def flush(self):
        while self.bg: self.pop()
        self.every = 0


class G:
    def __init__(self, opt):
        self.o = opt
        self.a = BAsm()
        self.nst = 0
        self.fill = []

    def stamp(self, name):
        if self.o.get("stamps"):
            if name in self.o.get("skipst", []): return
            if "only" in self.o and name not in self.o["only"]: return
            if self.nst >= 11: return
            self.a(f"{'s_memtime' if self.o.get('cyc') else 's_memrealtime'} {sr(S_ST + 2*self.nst, 2)}")
            self.stnames.append(name)
            self.nst += 1

    def srd(self, dst, lo, hi, n):
        if dst == S_WS and self.o.get("wsoff"):
            self.a(f"s_add_u32 {sr(dst)}, {sr(lo)}, {self.o['wsoff']}\ns_addc_u32 {sr(dst+1)}, {sr(hi)}, 0\ns_mov_b32 {sr(dst+2)}, {n}\ns_mov_b32 {sr(dst+3)}, 0x20000")
            return
        self.a(f"s_mov_b32 {sr(dst)}, {sr(lo)}\ns_mov_b32 {sr(dst+1)}, {sr(hi)}\ns_mov_b32 {sr(dst+2)}, {n}\ns_mov_b32 {sr(dst+3)}, 0x20000")

    def greduce(self, regs, tmp, op="v_add_f32"):
        a = self.a
        for sw in ("32", "16"):
            for i, r in enumerate(regs): a(f"v_mov_b32 {vr(tmp+i)}, {vr(r)}")
            if len(regs) < 3: a("s_nop 1" if len(regs) == 1 else "s_nop 0")
            for i, r in enumerate(regs): a(f"v_permlane{sw}_swap_b32 {vr(r)}, {vr(tmp+i)}")
            for i, r in enumerate(regs): a(f"{op} {vr(r)}, {vr(r)}, {vr(tmp+i)}")

    def treduce(self, r, op="v_add_f32"):
        a = self.a
        a(f"v_permlane32_swap_b32 {vr(r)}, {vr(r+2)}\nv_permlane32_swap_b32 {vr(r+1)}, {vr(r+3)}")
        a(f"{op} {vr(r)}, {vr(r)}, {vr(r+2)}\n{op} {vr(r+1)}, {vr(r+1)}, {vr(r+3)}\ns_nop 1")
        a(f"v_permlane16_swap_b32 {vr(r)}, {vr(r+1)}\n{op} {vr(r)}, {vr(r)}, {vr(r+1)}")

    def rbf(self, r):
        self.a(f"v_cvt_pk_bf16_f32 {vr(r)}, {vr(r)}, {vr(r)}\nv_lshlrev_b32 {vr(r)}, 16, {vr(r)}")

    def ln_tail(self, F, out, t, mimic):
        a = self.a
        p = lambda r: vr(r, 2)
        self.greduce([t, t + 1], t + 2)
        a(f"v_mul_f32 {vr(t+2)}, {f32(1.0/144)}, {vr(t)}")
        a(f"v_mul_f32 {vr(t+3)}, {vr(t+2)}, {vr(t+2)}")
        a(f"v_mov_b32 {vr(t+4)}, {f32(1.0/144)}")
        a(f"v_fma_f32 {vr(t)}, {vr(t+1)}, {vr(t+4)}, -{vr(t+3)}")
        a(f"v_max_f32 {vr(t)}, 0, {vr(t)}")
        if mimic:
            self.rbf(t)
            self.rbf(t + 2)
            a(f"v_add_f32 {vr(t)}, {f32(1e-5)}, {vr(t)}")
            self.rbf(t)
            a(f"v_sqrt_f32 {vr(t)}, {vr(t)}\ns_nop 0")
            self.rbf(t)
            a(f"v_rcp_f32 {vr(t)}, {vr(t)}\ns_nop 0")
        else:
            a(f"v_add_f32 {vr(t)}, {f32(1e-5)}, {vr(t)}")
            a(f"v_rsq_f32 {vr(t)}, {vr(t)}\ns_nop 0")
        a(f"v_mul_f32 {vr(t+2)}, -{vr(t+2)}, {vr(t)}")
        for i in range(18):
            a(f"v_pk_fma_f32 {p(F+2*i)}, {p(F+2*i)}, {p(t)}, {p(t+2)} op_sel_hi:[1,0,0]")
        for i in range(18):
            a(f"v_cvt_pk_bf16_f32 {vr(out+i)}, {vr(F+2*i)}, {vr(F+2*i+1)}")

    def ln_packed(self, X, F, out, t):
        a = self.a
        a(f"v_mov_b32 {vr(t+6)}, 0x3f803f80")
        for k in range(4): a(f"v_mov_b32 {vr(t+k)}, 0")
        for i in range(18):
            a(f"v_dot2_f32_bf16 {vr(t+2*(i&1))}, {vr(X+i)}, {vr(t+6)}, {vr(t+2*(i&1))}")
            a(f"v_dot2_f32_bf16 {vr(t+1+2*(i&1))}, {vr(X+i)}, {vr(X+i)}, {vr(t+1+2*(i&1))}")
        for i in range(2):
            a(f"v_lshlrev_b32 {vr(F+2*i)}, 16, {vr(X+i)}\nv_and_b32 {vr(F+2*i+1)}, 0xffff0000, {vr(X+i)}")
        a(f"v_pk_add_f32 {vr(t,2)}, {vr(t,2)}, {vr(t+2,2)}")
        un = []
        for i in range(2, 18):
            un.append(f"v_lshlrev_b32 {vr(F+2*i)}, 16, {vr(X+i)}\nv_and_b32 {vr(F+2*i+1)}, 0xffff0000, {vr(X+i)}")
        sv = (a.bg, a.every, a.cnt, a.skip)
        n0 = len(a.lines)
        a.bg, a.every = [], 0
        self.ln_tail(F, out, t, True)
        tail = a.lines[n0:]
        del a.lines[n0:]
        a.bg, a.every, a.cnt, a.skip = sv
        k = next(i for i, l in enumerate(tail) if "v_pk_fma" in l)
        for i, l in enumerate(tail[:k]):
            if "s_nop" in l and un: continue_nop = True
            a(l)
            if un and not l.strip().startswith("s_nop"): a(un.pop(0))
        while un: a(un.pop(0))
        for l in tail[k:]: a(l)

    def ln_f32(self, F, out, t):
        a = self.a
        p = lambda r: vr(r, 2)
        a(f"v_pk_add_f32 {p(t)}, {p(F)}, {p(F+2)}\nv_pk_add_f32 {p(t+2)}, {p(F+4)}, {p(F+6)}")
        a(f"v_pk_mul_f32 {p(t+4)}, {p(F)}, {p(F)}\nv_pk_mul_f32 {p(t+6)}, {p(F+2)}, {p(F+2)}")
        for i in range(2, 18):
            if i >= 4: a(f"v_pk_add_f32 {p(t+2*(i&1))}, {p(t+2*(i&1))}, {p(F+2*i)}")
            a(f"v_pk_fma_f32 {p(t+4+2*(i&1))}, {p(F+2*i)}, {p(F+2*i)}, {p(t+4+2*(i&1))}")
        a(f"v_pk_add_f32 {p(t)}, {p(t)}, {p(t+2)}\nv_pk_add_f32 {p(t+4)}, {p(t+4)}, {p(t+6)}")
        a(f"v_add_f32 {vr(t)}, {vr(t)}, {vr(t+1)}\nv_add_f32 {vr(t+1)}, {vr(t+4)}, {vr(t+5)}")
        self.ln_tail(F, out, t, False)

    def gemm_u(self, AF, rf, Bs, ACC, afr, bfr, post, vm_items=(), other=(), lead=7, vm0=0, vmsp=4, at={}):
        a = self.a
        units = [(0, j) for j in range(4)] + [(1, j) for j in range(4)] + [(2, 0)]
        seq, dl = [], {}
        bs = lambda j, o_, n: self.rg((Bs[j][0], Bs[j][1] + o_), n)
        rem = lambda u: (f"v_mfma_f32_16x16x16_bf16 {vr(ACC+4*u,4)}, {rf(AF+18*units[u][0]+16,2)}, {bs(units[u][1],16,2)}, {vr(ACC+4*u,4)}", u)
        A = [afr(t) for t in range(3)]
        Bf = [bfr(j) for j in range(4)]

        def use(t, j, s, k):
            for x in (A[t][2 * s:2 * s + 2] if s < 4 else A[t][8:]) + ([Bf[j][s]] if Bf[j] else []): dl.setdefault(x, k)
        for g in range(4):
            for s in range(4):
                for u in range(3 * g, 3 * g + 3) if g < 3 else []:
                    t, j = units[u]
                    d = vr(ACC + 4 * u, 4)
                    use(t, j, s, len(seq))
                    seq.append((f"v_mfma_f32_16x16x32_bf16 {d}, {rf(AF+18*t+4*s,4)}, {bs(j,4*s,4)}, {'0' if s == 0 else d}", None))
                if s == 0 and g > 0:
                    for u in range(3 * g - 3, 3 * g):
                        use(units[u][0], units[u][1], 4, len(seq)); seq.append(rem(u))
        last = seq[-3:]; seq = seq[:-3]
        ds = sorted(dl.items(), key=lambda e: e[1]) + [(x, 99) for x in other]
        vm_items = list(vm_items)
        lastvm = vm0 - vmsp
        order, ready, q, done = [], [], [], 0

        def issue():
            x, k_ = ds.pop(0); a(x); order.append(k_)

        def wait(k):
            nonlocal done
            idx = [i_ for i_, k_ in enumerate(order) if k_ <= k]
            if idx and max(idx) + 1 > done:
                a(f"s_waitcnt lgkmcnt({min(15, len(order) - 1 - max(idx))})"); done = max(idx) + 1
        while ds and ds[0][1] < 6: issue()
        for k, (m, fin) in enumerate(seq):
            assert not ds or ds[0][1] > k, (k, ds[0])
            wait(k)
            a(m)
            for u_, kk in list(ready):
                if k - kk >= 4: q += post(u_); ready.remove((u_, kk))
            if fin is not None: ready.append((fin, k))
            if k in at: at[k]()
            due = sum(1 for x, k_ in ds if k_ <= k + lead)
            if due == 0 and vm_items and k >= lastvm + vmsp:
                a(vm_items.pop(0)); lastvm = k; continue
            cap = 2
            for _ in range(min(due, 3)): issue(); cap -= 1
            if cap == 2:
                if q and q[0].startswith("ds_"): a(q.pop(0)); order.append(99); cap -= 1
                elif ds: issue(); cap -= 1
            while cap > 0 and q and not q[0].startswith("ds_"):
                a(q.pop(0)); cap -= 1
        assert not ready
        while ds: issue()
        wait(98)
        for x in vm_items: a(x)
        for x in q[:4]: a(x)
        a(f"s_nop {max(0, 4 - len(q[:4]))}")
        for m, _ in last: a(m)
        for x in q[4:]: a(x)
        a(f"s_nop {max(0, 6 - len(q[4:]))}")
        for u in range(6, 9):
            for x in post(u): a(x)

    def gemm(self, reads, B, ACC, AF, late=(), at={}, per=2):
        a = self.a
        buf = lambda T: 18 * (T % 6)
        ng = 3 * (4 * per + 1)

        def grp(g):
            r = [reads(T, buf(T)) for T in range(3 * g, 3 * g + 3)]
            return [r[t][per * s + u] for s in range(4) for t in range(3) for u in range(per)] + [r[t][4 * per] for t in range(3)]
        rem = lambda T: f"v_mfma_f32_16x16x16_bf16 {vr(ACC+4*T,4)}, {ar(buf(T)+16,2)}, {vr(B+16,2)}, {vr(ACC+4*T,4)}"
        pend = grp(0) + grp(1) + grp(2) + list(late)
        issued = k = 0

        def issue(n):
            nonlocal issued
            for _ in range(n):
                if issued < len(pend): a(pend[issued]); issued += 1

        def mf(x):
            nonlocal k
            a(x); issue(per if per == 2 else (2 if k % 4 == 0 else 1))
            if k in at: a(at[k])
            k += 1
        issue(self.o.get('look', 12) if per == 2 else self.o.get('look1', 8))
        for g in range(3):
            for s in range(4):
                need = ng * g + 3 * per * (s + 1)
                a(f"s_waitcnt lgkmcnt({min(15, issued - need)})")
                for T in range(3 * g, 3 * g + 3):
                    d = vr(ACC + 4 * T, 4)
                    mf(f"v_mfma_f32_16x16x32_bf16 {d}, {ar(buf(T)+4*s,4)}, {vr(B+4*s,4)}, {'0' if s == 0 else d}")
                if s == 0 and g > 0:
                    for T in range(3 * g - 3, 3 * g): mf(rem(T))
                if g == 1 and s == 0: assert issued <= 2 * ng + 6 * per, "group 2 overwrites group 0 too early"
        issue(99)
        a(f"s_waitcnt lgkmcnt({len(late)})\ns_nop 2")
        for T in range(6, 9): a(rem(T))
        a("s_nop 7")

    def tr_reads(self, ad, rf=ar):
        def f(T, dst):
            out = []
            for s in range(4):
                for u in range(2):
                    out.append(f"ds_read_b64_tr_b16 {rf(dst+4*s+2*u,2)}, {vr(ad+u)} offset:{9216*s + 32*T}")
            out.append(f"ds_read_b64_tr_b16 {rf(dst+16,2)}, {vr(ad+2)} offset:{36864 + 32*T}")
            return out
        return f

    def row_reads(self, ad, sw=None):
        def f(T, dst):
            r = ad if sw is None or T == 8 else sw[T & 1]
            out = []
            for s in range(4):
                for u in range(2):
                    out.append(f"ds_read_b64 {ar(dst+4*s+2*u,2)}, {vr(r)} offset:{4864*T + 64*s + 32*u}")
            out.append(f"ds_read_b64 {ar(dst+16,2)}, {vr(r)} offset:{4864*T + 256}")
            return out
        return f

    def dma_rows(self, jobs, cpr, rstride, vo, vc, n_first, first_waves, lab):
        a = self.a
        mul = {18: 3641, 19: 3450}[cpr]
        dr, dc = 256 // cpr, 256 % cpr
        a(f"s_lshl_b32 {sr(S_T)}, {sr(S_W)}, 6")
        a(f"v_add_u32 {vr(vc)}, {sr(S_T)}, v0")
        a(f"v_mul_u32_u24 {vr(vo)}, {mul}, {vr(vc)}")
        a(f"v_lshrrev_b32 {vr(vo)}, 16, {vr(vo)}")
        a(f"v_mul_u32_u24 {vr(vc+1)}, {cpr}, {vr(vo)}")
        a(f"v_sub_u32 {vr(vc)}, {vr(vc)}, {vr(vc+1)}")
        a(f"v_mul_u32_u24 {vr(vo)}, {rstride}, {vr(vo)}")
        a(f"v_lshl_add_u32 {vr(vo)}, {vr(vc)}, 4, {vr(vo)}")
        a(f"s_lshl_b32 {sr(S_T)}, {sr(S_W)}, 10")
        a(f"v_mov_b32 {vr(vc+1)}, {rstride - 16*cpr}")
        for k in range(n_first):
            if k == n_first - 1:
                a(f"s_cmp_ge_u32 {sr(S_W)}, {first_waves}\ns_cbranch_scc1 {lab}")
            for srd, so, lb in jobs:
                a(f"s_add_u32 m0, {sr(S_T)}, {lb + 4096*k}")
                a("s_nop 0")
                a(f"buffer_load_dwordx4 {vr(vo)}, {sr(srd,4)}, {so} offen lds")
            if k < n_first - 1:
                a(f"v_add_u32 {vr(vc)}, {dc}, {vr(vc)}")
                a(f"v_cmp_le_u32 vcc, {cpr}, {vr(vc)}")
                a(f"v_add_u32 {vr(vo)}, {dr*rstride + 16*dc}, {vr(vo)}")
                a(f"v_subrev_u32 {vr(vc+2)}, {cpr}, {vr(vc)}")
                a(f"v_cndmask_b32 {vr(vc)}, {vr(vc)}, {vr(vc+2)}, vcc")
                a(f"v_cndmask_b32 {vr(vc+2)}, 0, {vr(vc+1)}, vcc")
                a(f"v_add_u32 {vr(vo)}, {vr(vo)}, {vr(vc+2)}")
        a.label(lab)

    def voff_table(self, dst, cpr, rstride, vc, step=256):
        a = self.a
        mul = {18: 29128, 19: 27595}[cpr]
        n = len(dst)
        a(f"s_mov_b32 {sr(S_T)}, {rstride - 16*cpr}")
        a(f"v_mul_u32_u24 {vr(dst[0])}, {mul}, {vr(vc)}")
        for k in range(1, n): a(f"v_add_u32 {vr(dst[k])}, {(step*k % cpr)*mul}, {vr(dst[0])}")
        for k in range(n): a(f"v_lshrrev_b32 {vr(dst[k])}, 19, {vr(dst[k])}")
        for k in range(n): a(f"v_mad_i32_i24 {vr(dst[k])}, {vr(dst[k])}, {sr(S_T)}, {vr(vc+1)}")

    def dma_lin(self, srd, soff, lb, v16, lab):
        a = self.a
        a(f"s_lshl_b32 {sr(S_T)}, {sr(S_W)}, 10")
        for k in range(11):
            if k == 10:
                a(f"s_cmp_ge_u32 {sr(S_W)}, 1\ns_cbranch_scc1 {lab}")
            a(f"s_add_u32 m0, {sr(S_T)}, {lb + 4096*k}")
            a(f"s_add_u32 {sr(S_T+1)}, {sr(S_T)}, {soff + 4096*k}")
            a(f"buffer_load_dwordx4 {vr(v16)}, {sr(srd,4)}, {sr(S_T+1)} offen lds")
        a.label(lab)

    def tr_addr(self, ad, base, swapped, t):
        a = self.a
        a(f"v_lshrrev_b32 {vr(t)}, 2, v0")
        a(f"v_mul_u32_u24 {vr(t)}, 288, {vr(t)}")
        a(f"v_and_b32 {vr(t+1)}, 3, v0")
        a(f"v_lshl_add_u32 {vr(t)}, {vr(t+1)}, 3, {vr(t)}")
        a(f"v_add_u32 {vr(ad+2)}, {base}, {vr(t)}")
        if swapped:
            a(f"v_bfe_u32 {vr(t)}, v0, 4, 1")
            a(f"v_mul_u32_u24 {vr(t)}, {16*288}, {vr(t)}")
            a(f"v_add_u32 {vr(ad)}, {vr(ad+2)}, {vr(t)}")
            a(f"v_sub_u32 {vr(ad+1)}, {vr(ad+2)}, {vr(t)}")
            a(f"v_add_u32 {vr(ad+1)}, {16*288}, {vr(ad+1)}")
        else:
            a(f"v_mov_b32 {vr(ad)}, {vr(ad+2)}")
            a(f"v_add_u32 {vr(ad+1)}, {16*288}, {vr(ad+2)}")

    def row_addr(self, ad, base, t):
        a = self.a
        a(f"v_and_b32 {vr(t)}, 15, v0")
        a(f"v_mul_u32_u24 {vr(t)}, 304, {vr(t)}")
        a(f"v_lshrrev_b32 {vr(t+1)}, 4, v0")
        a(f"v_lshl_add_u32 {vr(t)}, {vr(t+1)}, 3, {vr(t)}")
        a(f"v_add_u32 {vr(ad)}, {base}, {vr(t)}")

    def store_block(self, src, v16, v8, srd, soff, soff2, flags=""):
        a = self.a
        for s in range(4):
            a(f"buffer_store_dwordx4 {vr(src+4*s,4)}, {vr(v16)}, {sr(srd,4)}, {sr(soff)} offen offset:{1024*s} {flags}")
        a(f"buffer_store_dwordx2 {vr(src+16,2)}, {vr(v8)}, {sr(srd,4)}, {sr(soff2)} offen {flags}")

    def entry(self):
        a = self.a
        kernel_header(a, NAME)
        a(f"s_load_dwordx16 s[56:71], s[0:1], 0")
        a(f"s_load_dwordx8 s[72:79], s[0:1], 64")
        a(f"s_getpc_b64 {sr(S_W1,2)}")
        a.label("L_pf")
        a(f"""s_mov_b32 {sr(S_W1+2)}, L_dummy-L_pf
        s_mov_b32 {sr(S_W1+3)}, 0x20000
        v_lshlrev_b32 v2, 4, v0
        buffer_load_dwordx4 v[252:255], v2, {sr(S_W1,4)}, 0 offen
        s_lshl_b32 s3, s2, 9
        s_and_b32 s3, s3, 0x7000
        buffer_load_dwordx4 v[252:255], v2, {sr(S_W1,4)}, s3 offen
        v_lshrrev_b32 v1, 6, v0
        s_sub_u32 s2, s2, {NH}
        v_readfirstlane_b32 {sr(S_W)}, v1
        s_memrealtime s[4:5]
        s_cmp_ge_u32 s2, {NWG - NH}
        s_cbranch_scc1 L_wfuse""")
        if self.o.get("late"):
            m_, v_, n_ = self.o["late"]
            a(f"""s_and_b32 s3, s2, {m_}
            s_cmp_lg_u32 s3, {v_}
            s_cbranch_scc1 L_nl
            s_memrealtime s[4:5]
            s_waitcnt lgkmcnt(0)
            s_add_u32 s6, s4, {n_}
            L_lt:
            s_memrealtime s[4:5]
            s_waitcnt lgkmcnt(0)
            s_sub_u32 s7, s6, s4
            s_cmp_gt_i32 s7, 0
            s_cbranch_scc1 L_lt
            L_nl:""")
        if self.o.get("stamps"):
            a("s_memrealtime s[100:101]" if not self.o.get("cyc") else "s_memtime s[100:101]")
        self.mp = 2

    def vm_since(self, mark):
        return sum(1 for l in self.a.lines[mark:] if l.strip().startswith("buffer_"))

    def phase_a(self):
        a, o = self.a, self.o
        XR, XF, XA, ACC, G_, PK = 16, 34, 146, 110, 16, 164
        B4, XD = 16, 88
        VS, VSW, VR4, MXA, MXR, L8, TRU, TRQ, TRQ8, RK, TM = 200, 204, 208, 212, 213, 214, 215, 218, 221, 224, 228
        VK, VU = list(range(182, 193)), list(range(193, 200)) + list(range(104, 108))
        AQ1 = 200
        t0, t1, t2 = 250, 251, 227
        T = S_T
        WV, W10, UOFF, M1, PUB, M3 = 72, 70, 71, 69, 68, 65
        a(f"""v_and_b32 v0, 63, v0
        s_bfe_u32 {sr(S_B)}, s2, 0x10001
        s_lshr_b32 {sr(S_QB)}, s2, 2
        s_lshr_b32 {sr(T)}, {sr(S_W)}, 1
        s_xor_b32 {sr(T)}, {sr(T)}, s2
        s_andn2_b32 {sr(T)}, 1, {sr(T)}
        s_lshl1_add_u32 {sr(T+3)}, {sr(S_QB)}, {sr(T)}
        s_mul_i32 {sr(T)}, {sr(S_B)}, {NT}
        s_add_u32 {sr(T+1)}, {sr(T+3)}, {sr(T)}
        s_and_b32 {sr(T+2)}, {sr(S_W)}, 1
        s_lshl1_add_u32 {sr(T+2)}, {sr(T+1)}, {sr(T+2)}
        v_lshlrev_b32 {vr(V_DMA)}, 4, v0
        s_mul_i32 {sr(T+1)}, {sr(T+2)}, {16*288}
        s_mul_i32 {sr(S_LB)}, {sr(S_W)}, {BLK}
        s_add_u32 m0, {sr(S_LB)}, {L_XS}
        s_mov_b32 {sr(S_X+2)}, 2304000
        s_mov_b32 {sr(S_X+3)}, {sr(S_W1+3)}
        s_add_u32 {sr(S_CNT)}, {sr(T+1)}, 4096
        s_waitcnt lgkmcnt(0)
        s_mov_b64 {sr(S_X,2)}, s[56:57]""")
        for k in range(4): a(f"buffer_load_dwordx4 {vr(V_DMA)}, {sr(S_X,4)}, {sr(T+1)} offen offset:{1024*k} lds")
        a(f"s_add_u32 m0, {sr(S_LB)}, {L_XS + 4096}\ns_mov_b32 exec_hi, 0\nbuffer_load_dwordx4 {vr(V_DMA)}, {sr(S_X,4)}, {sr(S_CNT)} offen lds\ns_mov_b32 exec_hi, -1")
        mx = len(a.lines)
        a(f"""s_add_u32 {sr(S_LB)}, {sr(S_LB)}, {L_XS}
        s_and_b32 {sr(S_H)}, s2, 1
        s_lshl1_add_u32 {sr(S_TOWN)}, {sr(S_QB)}, {sr(S_H)}
        s_cmp_lt_u32 {sr(S_TOWN)}, {NT}
        s_cselect_b32 {sr(S_VAL)}, 1, 0
        s_add_u32 {sr(S_TOWN)}, {sr(S_TOWN)}, {sr(T)}""")
        SQ, SK, SU = S_W2, S_W1, S_XA
        self.srd(SU, 66, 67, 82944)
        self.srd(SQ, 58, 59, 41472)
        self.srd(SK, 60, 61, 41472)
        a(f"s_lshr_b32 {sr(T)}, s2, 3\ns_lshl_b32 {sr(T)}, {sr(T)}, 12\ns_lshl_b32 {sr(W10)}, {sr(S_W)}, 10\ns_add_u32 {sr(T)}, {sr(T)}, {sr(W10)}")
        a(f"buffer_load_dwordx4 v[252:255], {vr(V_DMA)}, {sr(SU,4)}, {sr(T)} offen")
        for srd_, rot in ((SQ, 82), (SK, 41)):
            a(f"s_add_u32 {sr(T+1)}, {sr(T)}, {(128 - rot) * 1024}\ns_and_b32 {sr(T+1)}, {sr(T+1)}, {127 * 1024}")
            a(f"buffer_load_dwordx4 v[252:255], {vr(V_DMA)}, {sr(srd_,4)}, {sr(T+1)} offen")
        self.srd(S_OUT, 74, 75, 2304000)
        self.srd(S_DB, 76, 77, 256)
        self.srd(S_WS, 78, 79, WS_END)
        def tlb():
            a(f"v_lshlrev_b32 v249, 21, v0")
            for ch in o.get("tlbw", "wdo"): a(f"buffer_load_dword v252, v249, {sr(dict(w=S_WS, d=S_DB, o=S_OUT)[ch],4)}, 0 offen")
        if o.get("tlb", 0) == 1: tlb()
        if o.get("tlb", 3) == 3:
            a(f"""s_bfe_u32 {sr(T)}, s2, 0x30003
            s_lshl_b32 {sr(T)}, {sr(T)}, 21
            v_mov_b32 v249, 0
            s_cmp_lt_u32 {sr(T)}, {5 << 21}
            s_cbranch_scc0 L_tl1
            buffer_load_dword v252, v249, {sr(S_WS,4)}, {sr(T)} offen
            s_branch L_tl3
            L_tl1:
            s_sub_u32 {sr(T)}, {sr(T)}, {5 << 21}
            s_cmp_lt_u32 {sr(T)}, {2 << 21}
            s_cbranch_scc0 L_tl2
            buffer_load_dword v252, v249, {sr(S_OUT,4)}, {sr(T)} offen
            s_branch L_tl3
            L_tl2:
            s_or_b32 s4, s4, 1
            v_lshlrev_b32 v249, 8, v0
            v_mov_b32 v250, s4
            s_lshl2_add_u32 s5, s2, {sr(S_W)}
            s_cmp_eq_u32 s5, {56 * 4}
            s_cbranch_scc0 L_tl4
            buffer_store_dword v250, v249, {sr(S_DB,4)}, 0 offen sc1
            s_branch L_tl3
            L_tl4:
            buffer_load_dword v252, v249, {sr(S_DB,4)}, 0 offen offset:128
            L_tl3:""")
            self.vm_adj = -3
        if o.get("tl4"):
            a(f"""s_mul_i32 {sr(T)}, {sr(S_TOWN)}, {TILE}
            v_lshlrev_b32 v249, 12, v0
            v_add_u32 v249, {sr(T)}, v249
            s_mov_b64 exec, 7
            buffer_load_dword v252, v249, {sr(S_WS,4)}, 0 offen
            s_mov_b64 exec, -1""")
        if o.get("stamps"): a(f"s_mov_b64 {sr(S_ST,2)}, s[100:101]"); self.stnames.append("start"); self.nst = 1
        self.stamp("xiss")
        a(f"""s_cmp_lt_u32 {sr(T+3)}, {NT}
        s_cselect_b32 {sr(WV)}, 1, 0
        s_mov_b32 {sr(WV+1)}, {sr(T+2)}
        s_mul_i32 {sr(UOFF)}, {sr(S_H)}, 288
        s_cmp_eq_u32 {sr(S_W)}, 0
        s_cselect_b32 {sr(M1)}, 0, {L_DUMP}
        s_cmp_lt_u32 {sr(S_W)}, 3
        s_cselect_b32 {sr(M3)}, {sr(W10)}, {L_DUMP}""")
        half = lambda g_: "s_mov_b32 exec_hi, 0\n" + g_ + "\ns_mov_b32 exec_hi, -1"
        gu = [f"s_add_u32 m0, {sr(W10 if k < 10 else M1)}, {L_WU + 4096*k}\ns_add_u32 {sr(S_CNT)}, {sr(UOFF)}, {4096*k + 288*(256*k//18)}\nbuffer_load_dwordx4 {vr(VU[k])}, {sr(SU,4)}, {sr(S_CNT)} offen lds" for k in range(11)]
        gu[10] = half(gu[10])
        gq = [f"s_add_u32 m0, {sr(W10 if k < 10 else M1)}, {L_WQ + 4096*k}\ns_add_u32 {sr(S_CNT)}, {sr(W10)}, {4096*k}\nbuffer_load_dwordx4 {vr(V_DMA)}, {sr(SQ,4)}, {sr(S_CNT)} offen lds" for k in range(11)]
        gq[10] = half(gq[10])
        gk = [f"s_add_u32 m0, {sr(W10 if k < 10 else M3)}, {L_WK + 4096*k}\ns_mov_b32 {sr(S_CNT)}, {4096*k - 16*(256*k//19)}\nbuffer_load_dwordx4 {vr(VK[k])}, {sr(SK,4)}, {sr(S_CNT)} offen lds" for k in range(11)]
        a(f"s_lshl_b32 {sr(T)}, {sr(S_W)}, 6\nv_add_u32 {vr(t0)}, {sr(T)}, v0\nv_lshlrev_b32 {vr(t1)}, 4, {vr(t0)}")
        self.voff_table(VU, 18, 576, t0)
        npre = o.get("npre", 3)
        a.bg, a.every, a.cnt = gu[:npre], o.get("evpre", 40), 0
        self.voff_table(VK, 19, 288, t0)
        xa0, xa1, xa2 = TM, TM + 1, TM + 2
        a(f"""v_and_b32 {vr(t0)}, 15, v0
        v_lshrrev_b32 {vr(t1)}, 5, v0
        v_lshlrev_b32 {vr(t1)}, 3, {vr(t1)}
        v_xor_b32 {vr(t1)}, {vr(t0)}, {vr(t1)}
        v_lshlrev_b32 {vr(t1)}, 4, {vr(t1)}
        v_lshrrev_b32 {vr(t2)}, 4, v0
        v_lshl_add_u32 {vr(V_KA)}, {vr(t2)}, 9, {vr(t1)}
        v_lshrrev_b32 {vr(t1)}, 3, {vr(t0)}
        v_lshlrev_b32 {vr(t1)}, 1, {vr(t1)}
        v_xor_b32 {vr(t1)}, {vr(t2)}, {vr(t1)}
        v_lshl_add_u32 {vr(t1)}, {vr(t0)}, 2, {vr(t1)}
        v_lshlrev_b32 {vr(V_KA+1)}, 3, {vr(t1)}
        v_lshlrev_b32 {vr(L8)}, 3, v0
        v_lshlrev_b32 {vr(MXR)}, 4, {vr(t0)}
        v_add_u32 {vr(MXR)}, {L_MX}, {vr(MXR)}
        v_add_u32 {vr(MXA)}, {sr(S_W)}, {vr(t2)}
        v_and_b32 {vr(MXA)}, 3, {vr(MXA)}
        v_lshl_add_u32 {vr(MXA)}, {vr(MXA)}, 8, {vr(MXR)}
        s_lshl_b32 {sr(T)}, {sr(S_W)}, 2
        v_add_u32 {vr(MXA)}, {sr(T)}, {vr(MXA)}
        v_mul_u32_u24 {vr(xa2)}, 288, {vr(t0)}
        v_lshl_add_u32 {vr(xa2)}, {vr(t2)}, 3, {vr(xa2)}
        v_add_u32 {vr(xa2)}, {sr(S_LB)}, {vr(xa2)}
        v_and_b32 {vr(t1)}, 1, {vr(t2)}
        v_lshlrev_b32 {vr(t1)}, 5, {vr(t1)}
        v_add_u32 {vr(xa0)}, {vr(xa2)}, {vr(t1)}
        v_xor_b32 {vr(t1)}, 32, {vr(t1)}
        v_add_u32 {vr(xa1)}, {vr(xa2)}, {vr(t1)}
        s_mul_i32 {sr(S_LB)}, {sr(S_W)}, {TILE}
        v_lshrrev_b32 {vr(t0)}, 2, v0
        v_bfe_u32 {vr(t1)}, v0, 1, 1
        v_lshlrev_b32 {vr(t1)}, 3, {vr(t1)}
        v_xor_b32 {vr(t1)}, {vr(t0)}, {vr(t1)}
        v_lshlrev_b32 {vr(t1)}, 4, {vr(t1)}
        v_and_b32 {vr(t2)}, 3, v0
        v_lshl_add_u32 {vr(t1)}, {vr(t2)}, 9, {vr(t1)}
        v_and_b32 {vr(V_VA)}, 1, v0
        v_lshl_add_u32 {vr(t1)}, {vr(V_VA)}, 3, {vr(t1)}
        s_and_b32 {sr(T)}, {sr(S_W)}, 1
        s_lshl_b32 {sr(T)}, {sr(T)}, 12
        s_add_u32 {sr(T+1)}, {sr(T)}, {sr(S_LB)}
        s_xor_b32 {sr(T)}, {sr(T)}, 4096
        s_add_u32 {sr(T)}, {sr(T)}, {sr(S_LB)}
        v_add_u32 {vr(V_VA)}, {sr(T)}, {vr(t1)}
        v_add_u32 {vr(V_VB)}, {sr(T+1)}, {vr(t1)}
        v_xor_b32 {vr(V_VA+1)}, 8, {vr(V_VA)}
        v_xor_b32 {vr(V_VB+1)}, 8, {vr(V_VB)}
        v_lshrrev_b32 {vr(t1)}, 5, v0
        v_lshlrev_b32 {vr(t1)}, 1, {vr(t1)}
        v_xor_b32 {vr(t1)}, {vr(t2)}, {vr(t1)}
        v_lshl_add_u32 {vr(t1)}, {vr(t0)}, 2, {vr(t1)}
        v_lshlrev_b32 {vr(t1)}, 3, {vr(t1)}
        v_add_u32 {vr(V_VR)}, {sr(S_LB)}, {vr(t1)}
        v_add_u32 {vr(V_DMA+1)}, 4096, {vr(V_DMA)}
        v_add_u32 {vr(V_DMA+2)}, 8192, {vr(V_DMA)}""")
        self.tr_addr(TRU, L_WU, True, t0)
        a(f"s_lshl_b32 {sr(T)}, {sr(S_W)}, 6\ns_add_u32 {sr(T)}, {sr(T)}, {L_WQ - L_WU}")
        for k in range(3):
            a(f"v_add_u32 {vr(TRQ+k)}, {sr(T)}, {vr(TRU+k)}\nv_add_u32 {vr(TRQ8+k)}, {L_WQ - L_WU + 256}, {vr(TRU+k)}")
        self.row_addr(RK + 2, L_WK + 8 * 4864, t0)
        a(f"""s_mul_i32 {sr(T)}, {sr(S_W)}, {2*4864}
        s_sub_u32 {sr(T)}, {sr(T)}, {8*4864}
        v_add_u32 {vr(t1)}, {sr(T)}, {vr(RK+2)}
        v_bfe_u32 {vr(t0)}, v0, 2, 1
        v_mul_u32_u24 {vr(t0)}, 4864, {vr(t0)}
        v_add_u32 {vr(RK)}, {vr(t1)}, {vr(t0)}
        v_sub_u32 {vr(RK+1)}, {vr(t1)}, {vr(t0)}""")
        for j in range(4):
            a(f"""s_add_u32 {sr(T)}, {sr(S_W)}, {j}
            s_and_b32 {sr(T)}, {sr(T)}, 3
            s_lshl_b32 {sr(T+1)}, {sr(T)}, 12
            s_add_u32 {sr(T+1)}, {sr(T+1)}, {L_XX}
            v_add_u32 {vr(VS+j)}, {sr(T+1)}, {vr(V_DMA)}
            s_lshl_b32 {sr(T+1)}, {sr(T)}, 9
            s_add_u32 {sr(T+1)}, {sr(T+1)}, {L_XR}
            v_add_u32 {vr(VR4+j)}, {sr(T+1)}, {vr(L8)}
            v_add_u32 {vr(VSW+j)}, {sr(W10)}, {vr(VS+j)}""")
        a(f"""s_sub_u32 {sr(T+2)}, 63, {sr(S_H)}
        s_add_u32 {sr(T+3)}, {sr(S_W)}, 60
        s_cmp_ge_u32 {sr(T+3)}, {sr(T+2)}
        s_cselect_b32 {sr(S_DUM)}, 4, 99
        s_mov_b32 {sr(S_REDO)}, 0
        s_mov_b32 {sr(S_TOFF)}, {sr(S_LB)}
        s_lshl_b32 {sr(PUB)}, {sr(S_TOWN)}, 8
        s_add_u32 {sr(PUB)}, {sr(PUB)}, {WS_F}
        s_and_b32 {sr(T)}, {sr(S_W)}, 1
        s_lshl_b32 {sr(T)}, {sr(T)}, 7
        s_add_u32 {sr(PUB)}, {sr(PUB)}, {sr(T)}
        s_lshr_b32 {sr(T)}, {sr(S_W)}, 1
        s_and_b32 {sr(T)}, {sr(T)}, {sr(S_VAL)}
        s_cmp_eq_u32 {sr(T)}, 1
        s_cselect_b32 {sr(PUB)}, {sr(PUB)}, 0x40000000
        s_lshl_b32 {sr(S_FB)}, s2, 8
        s_add_u32 {sr(S_FB)}, {sr(S_FB)}, {WS_F + 250*256}
        s_mul_i32 {sr(T)}, {sr(S_H)}, 1792
        s_sub_u32 {sr(T)}, {sr(T)}, 768
        s_mul_i32 {sr(T+1)}, {sr(S_H)}, 62
        s_cmp_eq_u32 {sr(S_QB)}, {sr(T+1)}
        s_cselect_b32 {sr(T)}, 0, {sr(T)}
        v_mov_b32 {vr(self.VPL)}, 0x40000000
        s_xor_b32 {sr(T+1)}, {sr(S_FB)}, 256
        s_add_u32 {sr(T)}, {sr(T)}, {sr(S_FB)}
        v_writelane_b32 {vr(self.VPL)}, {sr(S_FB)}, 0
        v_writelane_b32 {vr(self.VPL)}, {sr(T+1)}, 1
        v_writelane_b32 {vr(self.VPL)}, {sr(T)}, 2
        s_mov_b32 {sr(T)}, {WS_F + 502*256}
        s_mov_b32 {sr(T+1)}, {WS_F + 503*256}
        v_writelane_b32 {vr(self.VPL)}, {sr(T)}, 3
        v_writelane_b32 {vr(self.VPL)}, {sr(T+1)}, 4
        s_sub_u32 {sr(S_FB)}, {sr(S_FB)}, {L_PC}""")
        a.flush()
        if o.get("tlb", 0) == 2: tlb()
        self.stamp("pre")
        if o.get("es", 0) == 0: self.epi_setup()
        self.stamp("es")
        nx = self.vm_since(mx) + getattr(self, "vm_adj", 0)
        if o.get("touch", 1):
            a(f"""s_mov_b64 exec, 0
            s_cmp_eq_u32 {sr(S_W)}, 0
            s_cbranch_scc1 L_tr
            s_cmp_eq_u32 {sr(S_W)}, 1
            s_cbranch_scc1 L_t0
            s_cmp_eq_u32 {sr(S_W)}, 2
            s_cbranch_scc1 L_t1
            s_branch L_t2""")
            self.rare()
            a.raw(".p2align 12")
            a.label("L_tr")
            a("s_mov_b64 exec, -1")
        nlate = o.get("nlate", 0)
        for g_ in gu[npre:npre + nlate]: a(g_)
        a(f"s_waitcnt vmcnt({nx + nlate})")
        self.stamp("xarr")
        for s in range(4):
            a(f"ds_read_b64 {vr(XR+4*s,2)}, {vr(xa0)} offset:{64*s}\nds_read_b64 {vr(XR+4*s+2,2)}, {vr(xa1)} offset:{64*s}")
        a(f"ds_read_b64 {vr(XR+16,2)}, {vr(xa2)} offset:256")
        a(f"""s_and_b32 {sr(T)}, {sr(S_W)}, 1
        s_mul_i32 {sr(T+2)}, {sr(S_TOWN)}, {TILE}
        s_cmp_eq_u32 {sr(S_VAL)}, 1
        s_cselect_b32 {sr(T+2)}, {sr(T+2)}, 0x40000000
        s_lshl_b32 {sr(T+3)}, {sr(T)}, 8
        s_add_u32 {sr(T+3)}, {sr(T+3)}, {sr(T+2)}
        s_add_u32 {sr(T+4)}, {sr(T+3)}, 4096
        s_lshl_b32 {sr(T+5)}, {sr(T)}, 9
        s_add_u32 {sr(T+5)}, {sr(T+5)}, {sr(T+2)}
        s_add_u32 {sr(T+5)}, {sr(T+5)}, 8192
        s_waitcnt lgkmcnt(0)""")
        wl = gq + gk
        a.bg, a.every, a.cnt = gu[npre + nlate:] + [wl.pop(0) for _ in range(o.get("nql", 11))], o.get("evln", 5), 0
        self.ln_packed(XR, XF, XA, TM)
        a.flush()
        self.stamp("ln")
        a(f"s_cmp_lt_u32 {sr(S_W)}, 2\ns_cbranch_scc1 L_nop")
        for s in range(4):
            a(f"buffer_store_dwordx4 {vr(XA+4*s,4)}, {vr(V_KA)}, {sr(S_WS,4)}, {sr(T+3+(s>>1))} offen offset:{2048*(s&1)} {o.get('pfl', 'sc1')}")
        a(f"buffer_store_dwordx2 {vr(XA+16,2)}, {vr(V_KA+1)}, {sr(S_WS,4)}, {sr(T+5)} offen {o.get('pfl', 'sc1')}\ns_waitcnt vmcnt({5 + o.get('nql', 11)})\ns_branch L_bar1")
        a.label("L_nop")
        if o.get("touch", 1):
            a(f"s_mov_b64 exec, 0\ns_cmp_eq_u32 {sr(S_W)}, 0\ns_cbranch_scc1 L_t3\ns_branch L_t4")
            a.label("L_tr2")
            a("s_mov_b64 exec, -1")
        a(f"s_waitcnt vmcnt({o.get('nql', 11)})")
        a.label("L_bar1")
        self.stamp("pub")
        xw = [f"ds_write_b128 {vr(VS)}, {vr(XA+4*s,4)} offset:{1024*s}" for s in range(4)] + [f"ds_write_b64 {vr(VR4)}, {vr(XA+16,2)}"]
        self.stamp("tch")
        PA = 249
        a(f"""v_add_u32 {vr(V_KA)}, {sr(S_LB)}, {vr(V_KA)}
        v_add_u32 {vr(V_KA+1)}, {sr(S_LB)}, {vr(V_KA+1)}
        s_mul_i32 {sr(T)}, {sr(S_B)}, {NT}
        s_mul_i32 {sr(T+1)}, {sr(S_H)}, 63
        s_add_u32 {sr(T)}, {sr(T)}, {sr(T+1)}
        s_lshl_b32 {sr(T)}, {sr(T)}, 8
        s_add_u32 {sr(T)}, {sr(T)}, {WS_F}
        s_cmp_eq_u32 {sr(S_W)}, 0
        s_cselect_b32 {sr(T)}, {sr(T)}, 0x40000000
        v_lshl_add_u32 {vr(PA)}, v0, 8, {sr(T)}
        {self.xa_srd()}
        s_waitcnt lgkmcnt(0)""")
        self.stamp("w1")
        a("s_barrier")
        self.stamp("bar1")
        m_b1 = len(a.lines)
        poll = lambda r: f"buffer_load_dword {vr(r)}, {vr(PA)}, {sr(S_WS,4)}, 0 offen sc1\nbuffer_load_dword {vr(r+2)}, {vr(PA)}, {sr(S_WS,4)}, 0 offen offset:128 sc1"

        def gate(lab, r, mask, younger):
            a(f"s_mov_b32 {sr(T+2)}, 0\ns_waitcnt vmcnt({younger})")
            a.label(lab)
            a(f"""v_cmp_ne_u32 vcc, {sr(S_N)}, {vr(r)}
            v_cmp_ne_u32 {sr(T+10,2)}, {sr(S_N)}, {vr(r+2)}
            s_add_u32 {sr(T+2)}, {sr(T+2)}, 1
            s_or_b64 vcc, vcc, {sr(T+10,2)}
            s_and_b64 vcc, vcc, {mask}
            s_cbranch_scc0 {lab}_ok
            s_sleep {o.get("slp", 4)}
            {poll(r)}
            s_waitcnt vmcnt(0)
            s_cmp_lt_u32 {sr(T+2)}, 0x40000
            s_cbranch_scc1 {lab}""")
            a.label(lab + "_ok")

        H, G_, UG, MS, CL = 16, 52, 208, 110, 104
        nup = o.get("nup", 5)
        at = {o.get("u0", 6) + o.get("usp", 6) * i: wl.pop(0) for i in range(nup)}
        for i in range(5): at[i] = xw[i]
        tagld = f"buffer_load_dword v253, off, {sr(S_DB,4)}, 0 sc1"
        tag1 = tagld.replace("sc1", o.get("tgf", "sc1")).strip()
        at[o.get("tgp", 5)] = tag1
        if o.get("es", 0) == 1:
            n_ = len(a.lines); self.epi_setup()
            el = [l.strip() for l in a.lines[n_:]]; del a.lines[n_:]
            for k in range(5, 42):
                if k in at: continue
                c_ = 0
                while el and c_ < o.get("esn", 2):
                    x = el.pop(0); at[k] = at.get(k, "") + x + "\n"; c_ += 1 if x.startswith("v_") else 0.5
            self.es_left = el
        self.gemm(self.tr_reads(TRU), XA, H, None, at=at)
        if o.get("es", 0) == 1:
            for x in self.es_left: a(x)
        self.stamp("up")
        last = lambda srd: max(i for i, l in enumerate(a.lines) if l.strip().startswith("buffer_load") and sr(srd, 4) in l) + 1
        assert not any(sr(SQ, 4) in x for x in wl)
        nq_ = self.vm_since(m_b1) + (5 if last(SQ) < m_b1 else 0) if last(SQ) < m_b1 else self.vm_since(last(SQ))
        a(f"s_waitcnt vmcnt({self.vm_since(m_b1) if last(SQ) < m_b1 else nq_}) lgkmcnt(0)" if False else "")
        if last(SQ) < m_b1:
            a(f"s_cmp_lt_u32 {sr(S_W)}, 2\ns_cbranch_scc1 L_bg0\ns_waitcnt vmcnt({5 + self.vm_since(m_b1)})\ns_branch L_bg1\nL_bg0:\ns_waitcnt vmcnt({self.vm_since(m_b1)})\nL_bg1:\ns_waitcnt lgkmcnt(0)\ns_barrier")
        else: a(f"s_waitcnt vmcnt({self.vm_since(last(SQ))}) lgkmcnt(0)\ns_barrier")

        def flag():
            n_ = self.vm_since(max(i for i, l in enumerate(a.lines) if l.strip() == tag1) + 1)
            a(f"v_lshrrev_b32 {vr(t0)}, 5, v0\nv_lshlrev_b32 {vr(t0)}, 30, {vr(t0)}\nv_lshl_add_u32 {vr(t0)}, v0, 2, {vr(t0)}\ns_mov_b32 {sr(T+2)}, 0\ns_waitcnt vmcnt({n_})")
            a.label("L_tag")
            a(f"""v_readfirstlane_b32 {sr(S_N)}, v253
            s_add_u32 {sr(T+2)}, {sr(T+2)}, 1
            s_cmp_lg_u32 {sr(S_N)}, 0
            s_cbranch_scc1 L_tag_ok
            {tagld}
            s_waitcnt vmcnt(0)
            s_cmp_lt_u32 {sr(T+2)}, 0x40000
            s_cbranch_scc1 L_tag""")
            a.label("L_tag_ok")
            a(f"v_mov_b32 {vr(t1)}, {sr(S_N)}\nbuffer_store_dword {vr(t1)}, {vr(t0)}, {sr(S_WS,4)}, {sr(PUB)} offen sc1")
            self.m_fl = len(a.lines)
            self.stamp("flag")
        self.stamp("barG")
        if o.get("atw"):
            a("s_waitcnt vmcnt(0)")
            self.stamp("ack")
        if o.get("census"):
            k_ = S_ST + 2 * self.stnames.index(o["census"][0])
            a(f"s_waitcnt lgkmcnt(0)\nv_mov_b32 v252, {sr(k_)}\ns_lshl_b32 {sr(T)}, s2, 2\ns_add_u32 {sr(T)}, {sr(T)}, {WS_DBG}\nv_mov_b32 v253, 0\nbuffer_store_dword v252, v253, {sr(S_WS,4)}, {sr(T)} offen sc1")

        def a_tr(t):
            ad, off = (TRQ, 32 * t) if t < 2 else (TRQ8, 0)
            return [f"ds_read_b64_tr_b16 {ar(AQ1+18*t+4*s+2*u,2)}, {vr(ad+u)} offset:{9216*s + off}" for s in range(4) for u in range(2)] + \
                   [f"ds_read_b64_tr_b16 {ar(AQ1+18*t+16,2)}, {vr(ad+2)} offset:{36864 + off}"]

        def a_row(t):
            off = 4864 * t if t < 2 else 0
            return [f"ds_read_b64 {ar(A_Q+18*t+4*s+2*u,2)}, {vr(RK+t)} offset:{off + 64*s + 32*u}" for s in range(4) for u in range(2)] + \
                   [f"ds_read_b64 {ar(A_Q+18*t+16,2)}, {vr(RK+t)} offset:{off + 256}"]
        bq = lambda j, d=0: [f"ds_read_b128 {ar(18*j+4*s,4)}, {vr(VS+j)} offset:{d + 1024*s}" for s in range(4)] + [f"ds_read_b64 {ar(18*j+16,2)}, {vr(VR4+j)} offset:{d}"]

        def post(u, scale, d):
            L = [f"v_mul_f32 {vr(ACC+4*u+i)}, {sr(T+4)}, {vr(ACC+4*u+i)}" for i in range(4)] if scale else []
            L += [f"v_cvt_pk_bf16_f32 {vr(PK + (4*(u&3) + 2*(u>>2) if u < 8 else 16) + h)}, {vr(ACC+4*u+2*h)}, {vr(ACC+4*u+2*h+1)}" for h in range(2)]
            if 4 <= u < 8: L.append(f"ds_write_b128 {vr(VSW+u-4)}, {vr(PK+4*(u-4),4)} offset:{d}")
            if u == 8: L.append(f"ds_write_b64 {vr(VR4)}, {vr(PK+16,2)} offset:{d}")
            return L
        xd = [f"ds_read_b128 {vr(XD+4*j,4)}, {vr(VSW+j)}" for j in range(4)]
        self.gemm_u(AQ1, ar, [("v", XA), ("a", 18), ("a", 36), ("a", 54)], ACC, a_tr, lambda j: bq(j) if j else None, lambda u: post(u, False, L_QD),
                    vm_items=wl, other=xd, vmsp=o.get("vmsp", 3), at={o.get("flp", 22): flag})
        self.stamp("g1")
        for i in range(4): a(f"v_mov_b32 {vr(CL+i)}, -1")
        a(f"s_lshl2_add_u32 {sr(T+2)}, s2, {sr(S_W)}\ns_mul_i32 {sr(T+2)}, {sr(T+2)}, 2560\ns_add_u32 {sr(T+2)}, {sr(T+2)}, {WS_IB}")
        a(f"s_mov_b32 {sr(T+4)}, {f32(LOG2E / 12.0)}\ns_waitcnt vmcnt({self.vm_since(max(last(SK), self.m_fl)) + (last(SK) < self.m_fl)}) lgkmcnt(0)\ns_barrier")
        clr = [f"buffer_store_dwordx4 {vr(CL,4)}, {vr(V_DMA)}, {sr(S_WS,4)}, {sr(T+2)} offen sc1",
               f"buffer_store_dwordx4 {vr(CL,4)}, {vr(V_DMA)}, {sr(S_WS,4)}, {sr(T+2)} offen offset:1024 sc1",
               f"buffer_store_dwordx2 {vr(CL,2)}, {vr(L8)}, {sr(S_WS,4)}, {sr(T+2)} offen offset:2048 sc1"]
        self.stamp("bar2")
        self.gemm_u(A_Q, ar, [("a", 18 * j) for j in range(4)], ACC, a_row, lambda j: bq(j, L_QD), lambda u: post(u, True, 0), vm_items=[poll(252)] + clr, vm0=o.get("pg", 12), vmsp=o.get("csp", 8))
        self.stamp("g2")
        p = lambda r: vr(r, 2)
        CC = TM
        for j in range(4): a(f"v_dot2_f32_bf16 {vr(CC+j)}, {vr(PK+4*j)}, {vr(XD+4*j)}, 0")
        for i in range(2): a(f"v_dot2_f32_bf16 {vr(CC)}, {vr(PK+16+i)}, {vr(XA+16+i)}, {vr(CC)}")
        for i in range(1, 4):
            for j in range(4): a(f"v_dot2_f32_bf16 {vr(CC+j)}, {vr(PK+4*j+i)}, {vr(XD+4*j+i)}, {vr(CC+j)}")
        QE = TRQ
        a(f"""s_xor_b32 {sr(T+1)}, {sr(self.NB)}, 1
        v_add_u32 {vr(t0)}, {L_XX}, {vr(V_DMA)}
        v_lshl_add_u32 {vr(QE)}, {sr(T+1)}, 12, {vr(t0)}
        v_lshl_add_u32 {vr(QE+1)}, {sr(self.NB)}, 12, {vr(t0)}""")
        self.treduce(CC)
        a(f"""ds_write_b32 {vr(MXA)}, {vr(CC)}
        v_add_u32 {vr(t0)}, {L_XR}, {vr(L8)}
        v_lshl_add_u32 {vr(QE+2)}, {sr(T+1)}, 9, {vr(t0)}
        v_lshl_add_u32 {vr(QE+3)}, {sr(self.NB)}, 9, {vr(t0)}
        v_lshl_add_u32 {vr(QE+4)}, {sr(T+1)}, 8, {vr(MXR)}
        v_lshl_add_u32 {vr(QE+5)}, {sr(self.NB)}, 8, {vr(MXR)}
        s_sub_u32 {sr(T+5)}, 63, {sr(S_H)}
        s_bfm_b64 {sr(T+8,2)}, {sr(T+5)}, 0
        s_lshr_b32 {sr(T+6)}, s2, 3
        s_lshl_b32 {sr(T+6)}, {sr(T+6)}, 12
        s_add_u32 {sr(T+6)}, {sr(T+6)}, {sr(W10)}
        s_cmp_lg_u32 {sr(S_W)}, 0
        s_cbranch_scc1 L_ga_ok""")
        gate("L_ga", 252, sr(T + 8, 2), 3)
        a("s_waitcnt lgkmcnt(0)\ns_barrier")
        self.stamp("bar3")
        c1 = -2.0 * math.sqrt(2.0 / math.pi) * LOG2E
        c2 = c1 * 0.044715
        qrd = [f"ds_read_b128 {vr(MS+4*qb,4)}, {vr(QE+4+(qb&1))} offset:{512*(qb>>1)}" for qb in range(4)]
        for qb in range(4):
            qrd += [f"ds_read_b128 {ar(A_Q+18*qb+4*s,4)}, {vr(QE+(qb&1))} offset:{8192*(qb>>1) + 1024*s}" for s in range(4)]
            qrd.append(f"ds_read_b64 {ar(A_Q+18*qb+16,2)}, {vr(QE+2+(qb&1))} offset:{1024*(qb>>1)}")
        tg = self.tile_groups(0) + self.tile_groups(1) + self.tile_groups(2)[:8]
        n0 = o.get("n0", 3)
        for k in range(o.get("tpf", 0)):
            a(f"s_add_u32 {sr(T+7)}, {sr(T+6)}, {o.get('tpf0', 4*TILE) + 131072*k}\nbuffer_load_dwordx4 v[252:255], {vr(V_DMA)}, {sr(S_XA,4)}, {sr(T+7)} offen")
        for x in tg[:n0]: a(x)
        a(f"v_mov_b32 {vr(CC)}, {f32(c1)}\nv_mov_b32 {vr(CC+2)}, {f32(c2)}\nv_mov_b32 {vr(CC+4)}, 1.0")
        nq1, nt1 = o.get("nq1", 8), o.get("nt1", 5)
        bgl = []
        for i in range(max(nq1 // 2, nt1)):
            if 2 * i < nq1: bgl.append(qrd[2 * i] + "\n" + qrd[2 * i + 1])
            if i < nt1: bgl.append(tg[n0 + i])
        tg, qrd = tg[n0 + nt1:], qrd[nq1:]
        a.bg, a.every, a.cnt = bgl, 54 // (len(bgl) + 1), 0
        for i in range(18): a(f"v_pk_mul_f32 {p(G_+2*i)}, {p(H+2*i)}, {p(H+2*i)}")
        for i in range(18): a(f"v_pk_fma_f32 {p(G_+2*i)}, {p(G_+2*i)}, {p(CC+2)}, {p(CC)} op_sel_hi:[1,0,0]")
        for i in range(18): a(f"v_pk_mul_f32 {p(G_+2*i)}, {p(G_+2*i)}, {p(H+2*i)}")
        a.flush()
        self.stamp("ge1")
        esp = o.get("esp", 4)
        for i in range(36):
            a(f"v_exp_f32 {vr(G_+i)}, {vr(G_+i)}")
            if i % esp == 1 and tg: a(tg.pop(0))
            if i % 8 == 3 and qrd: a(qrd.pop(0)); a(qrd.pop(0))
        self.stamp("ge2")
        for i in range(18): a(f"v_pk_add_f32 {p(G_+2*i)}, {p(G_+2*i)}, {p(CC+4)} op_sel_hi:[1,0]")
        for i in range(36):
            a(f"v_rcp_f32 {vr(G_+i)}, {vr(G_+i)}")
            if i % esp == 1 and tg: a(tg.pop(0))
            if i % 8 == 3 and qrd: a(qrd.pop(0)); a(qrd.pop(0))
        assert not tg and not qrd
        idx = [i for i, l in enumerate(a.lines) if l.strip().startswith("buffer_load") and l.rstrip().endswith("lds")]
        m_t0, m_t1 = idx[-18] + 1, idx[-9] + 1
        for i in range(18): a(f"v_pk_mul_f32 {p(H+2*i)}, {p(G_+2*i)}, {p(H+2*i)}")
        a(f"""s_mul_i32 {sr(T)}, {sr(WV+1)}, {BLK}
        s_cmp_eq_u32 {sr(S_H)}, 1
        s_cbranch_scc1 L_ln2
        s_add_u32 {sr(T)}, {sr(T)}, {WS_U}""")
        for i in range(18): a(f"v_cvt_pk_bf16_f32 {vr(UG+i)}, {vr(H+2*i)}, {vr(H+2*i+1)}")
        a("s_branch L_ug")
        a.label("L_ln2")
        a(f"s_add_u32 {sr(T)}, {sr(T)}, {WS_G}")
        self.ln_f32(H, UG, TM)
        a.label("L_ug")
        self.stamp("ge3")
        a(f"""s_cmp_eq_u32 {sr(WV)}, 1
        s_cselect_b32 {sr(S_UG)}, {sr(T)}, 0x40000000
        s_waitcnt vmcnt({self.vm_since(m_t0)}) lgkmcnt(0)""")
        for x in self.k_reads(0, V_V): a(x)
        self.ugs = [f"buffer_store_dwordx4 {vr(UG+4*s,4)}, {vr(V_DMA)}, {sr(S_WS,4)}, {sr(S_UG)} offen offset:{1024*s} sc1" for s in range(4)]
        self.ugs.append(f"buffer_store_dwordx2 {vr(UG+16,2)}, {vr(self.VL8)}, {sr(S_WS,4)}, {sr(S_UG)} offen sc1")
        for qb in range(4): a(f"v_pk_add_f32 {p(MS+4*qb)}, {p(MS+4*qb)}, {p(MS+4*qb+2)} neg_lo:[1,1] neg_hi:[1,1]")
        for qb in range(4): a(f"v_add_f32 {vr(self.MK+qb)}, {vr(MS+4*qb)}, {vr(MS+4*qb+1)}")
        a(f"v_lshlrev_b32 {vr(t1)}, 8, v0\nv_lshlrev_b32 v231, 2, v0\nv_add_u32 v231, {L_PC}, v231\nds_write_b32 v231, {vr(t1)}")
        self.loop_init(False)
        self.n_t1 = self.vm_since(m_t1)
        self.stamp("ug")

    def loop_init(self, part):
        a = self.a
        if part:
            for qb in range(4):
                for i in range(4): a(f"v_mov_b32 {vr(V_CI+4*qb+i)}, {vr(self.MK+qb)}")
            return
        for k in range(7): a(f"v_add_u32 {vr(V_HI+k)}, {2*SLOT}, {vr(V_KA+k if k < 5 else V_VB+k-5)}")
        a(f"v_add_u32 {vr(self.VS0)}, {sr(S_LB)}, {vr(V_DMA)}\nv_add_u32 {vr(self.VS0R)}, {sr(S_LB)}, {vr(self.VL8)}\ns_mov_b32 {sr(S_CNT)}, 0\ns_mov_b32 {sr(S_INC)}, {4*TILE}")
        for i in range(4): a(f"v_mov_b32 {vr(V_L+i)}, 0")
        a(f"v_mov_b32 v227, 0x3f803f80\nv_mov_b32 v226, {sr(S_N)}\nv_mov_b32 {vr(self.VPL+1)}, 1\nv_lshlrev_b32 v231, 2, v0\nv_add_u32 v231, {L_PC}, v231")

    def head(self):
        a, o = self.a, self.o
        a.label("L_go")
        self.loop_init(True)
        a("s_waitcnt lgkmcnt(0)\ns_barrier")
        self.stamp("bar5")
        base = self.qk_mfmas(0)
        pick = lambda s_, kb, qb: base[8 * s_ + 4 * kb + qb].replace(vr(V_K + 8 * s_ + 4 * kb, 4) + ",", vr(V_V + 8 * s_ + 4 * kb, 4) + ",").replace(vr(V_K + 32 + 2 * kb, 2) + ",", vr(V_V + 32 + 2 * kb, 2) + ",")
        mf, fin = [], {}
        for qb, s_ in [(0, 0), (0, 1), (0, 2), (0, 3), (1, 0), (1, 1), (0, 4), (1, 2), (1, 3), (2, 0), (2, 1), (1, 4), (2, 2), (2, 3), (3, 0), (3, 1), (2, 4),
                       (3, 2), (3, 3), (3, 4)]:
            for kb in range(2):
                fin[qb, kb] = len(mf)
                mf.append(("s_nop 3\n" if (qb, s_, kb) == (3, 4, 0) else "") + pick(s_, kb, qb))
        enew = [e[1] for g in range(40, 76) for e in self.gaps[g] if e[0] == "E"]
        items = self.e_items(0, enew, lambda qb, j: 0, lambda qb: 999)
        for it, e in zip(items, enew):
            if e[0] == "e": it["am"] = fin[e[1], e[2] // 4]
        dm = []
        for k, (slot, j) in enumerate([(2, 8)] + [(3, j) for j in range(9)]):
            g_ = 1 + o.get("hsp", 4) * k
            if j % 4 == 0: dm.append(dict(t=f"s_add_u32 m0, {sr(S_LB)}, {slot*SLOT + 4096*(j//4)}", c=0, lo=g_ - 1, hi=g_ - 1))
            dm.append(dict(t=f"buffer_load_dwordx4 {vr(V_DMA + j//4)}, {sr(S_XA,4)}, {sr(S_TOFF)} offen offset:{1024*(j%4)} lds", c=8, lo=g_, hi=g_))
            if j == 8: dm.append(dict(t=f"s_add_u32 {sr(S_TOFF)}, {sr(S_TOFF)}, {4*TILE}", c=0, lo=g_ + 1, hi=g_ + 1))
        nh = o.get("ugh", 2) if not o.get("ugl", 0) else 0
        for k in range(nh): dm.append(dict(t=self.ugs[k], c=8, lo=3 + 16 * k, hi=3 + 16 * k))
        a(f"s_waitcnt vmcnt({self.n_t1})")
        left = self.pack(mf, items + dm + [dict(t=x, c=4, lo=i // 2, nds=2) for i, x in enumerate(self.k_reads(1))])
        print("head overflow", self.over, "left", len(left))
        left.sort(key=lambda x: not x.startswith("v_exp"))
        last = a.lines[-1].strip()
        for x in left:
            if last.startswith("v_exp") and not x.startswith("v_exp") and (last.split()[1].rstrip(",") + ",") in (x + ","): a("s_nop 0")
            a(x); last = x
        a("s_waitcnt lgkmcnt(0)")

    def tile_groups(self, slot):
        out = []
        for j in range(9):
            g = ""
            if j % 4 == 0: g = f"s_add_u32 m0, {sr(S_LB)}, {slot*SLOT + 4096*(j//4)}\ns_nop 0\n"
            g += f"buffer_load_dwordx4 {vr(V_DMA + j//4)}, {sr(S_XA,4)}, {sr(S_TOFF)} offen offset:{1024*(j%4)} lds"
            if j == 8: g += f"\ns_add_u32 {sr(S_TOFF)}, {sr(S_TOFF)}, {4*TILE}"
            out.append(g)
        return out

    def first_tiles(self):
        pass

    def wfuse(self):
        a = self.a
        BF, ACC, AF, TM, AD = 88, 108, 144, 208, 240
        LA, LB_, LM = 0, 44032, 88064
        T = S_T
        a.label("L_wfuse")
        a(f"s_add_u32 s2, s2, {NH}\ns_cmp_ge_u32 s2, {NH}\ns_cbranch_scc1 L_end")
        a(f"v_lshrrev_b32 v1, 6, v0\nv_and_b32 v0, 63, v0\nv_readfirstlane_b32 {sr(S_W)}, v1\nv_lshlrev_b32 {vr(V_DMA)}, 4, v0\ns_waitcnt lgkmcnt(0)")
        self.srd(S_WS, 78, 79, WS_END)
        self.srd(S_DB, 76, 77, 256)
        self.wf0 = 0
        self.srd(S_X, 72, 73, 82944)
        self.srd(S_W2, 62, 63, 41472)
        a(f"""s_cmp_eq_u32 s2, {self.wf0}
        s_cselect_b32 {sr(S_W1)}, s64, s70
        s_cselect_b32 {sr(S_W1+1)}, s65, s71
        s_mov_b32 {sr(S_W1+2)}, 41472
        s_mov_b32 {sr(S_W1+3)}, 0x20000
        s_cselect_b32 {sr(T+4)}, 0, 41472""")
        self.dma_rows([(S_W1, "0", LA), (S_W2, "0", LB_)], 19, 288, TM + 4, TM + 5, 11, 3, "L_wf1")
        a(f"s_lshl_b32 {sr(T)}, {sr(S_W)}, 10\ns_add_u32 {sr(T+2)}, {sr(T)}, {sr(T+4)}")
        for k in range(11):
            if k == 10: a(f"s_cmp_ge_u32 {sr(S_W)}, 1\ns_cbranch_scc1 L_wf2")
            a(f"s_add_u32 m0, {sr(T)}, {LM + 4096*k}\ns_add_u32 {sr(T+1)}, {sr(T+2)}, {4096*k}")
            a(f"buffer_load_dwordx4 {vr(V_DMA)}, {sr(S_X,4)}, {sr(T+1)} offen lds")
        a.label("L_wf2")
        self.srd(S_DW, 68, 69, 864)
        a(f"""v_and_b32 {vr(TM)}, 15, v0
        v_lshlrev_b32 {vr(TM+2)}, 4, {vr(TM)}
        v_lshlrev_b32 {vr(TM)}, 1, {vr(TM)}
        v_bfe_u32 {vr(TM+3)}, v0, 4, 1
        v_lshl_add_u32 {vr(TM+1)}, {vr(TM+3)}, 7, {vr(TM)}
        v_lshl_add_u32 {vr(TM+2)}, {vr(TM+3)}, 11, {vr(TM+2)}
        v_and_b32 {vr(TM+3)}, 1, v0
        v_lshlrev_b32 {vr(TM+3)}, 4, {vr(TM+3)}
        v_bfe_i32 {vr(TM+4)}, v0, 1, 1
        v_not_b32 {vr(TM+5)}, {vr(TM+4)}""")
        for k in range(3):
            for i in range(5): a(f"buffer_load_ushort {vr(16+5*k+i)}, {vr(TM+1 if i < 4 else TM)}, {sr(S_DW,4)}, 0 offen offset:{288*k + (32*i if i < 4 else 256)}")
        a(f"s_mov_b32 {sr(T+1)}, {WS_DWF}\ns_waitcnt vmcnt(0)")
        for f in range(15):
            a(f"v_lshlrev_b32 {vr(16+f)}, {vr(TM+3)}, {vr(16+f)}\nv_and_b32 {vr(32+2*f)}, {vr(TM+5)}, {vr(16+f)}\nv_and_b32 {vr(33+2*f)}, {vr(TM+4)}, {vr(16+f)}")
        for r_ in range(8): a(f"buffer_store_dwordx{4 if r_ < 7 else 2} {vr(32+4*r_, 4 if r_ < 7 else 2)}, {vr(TM+2)}, {sr(S_WS,4)}, {sr(T+1)} offen offset:{256*r_} sc1")
        self.tr_addr(AD, LM, False, TM + 8)
        self.row_addr(AD + 3, LA, TM + 8)
        a(f"v_add_u32 {vr(AD+5)}, {LB_}, {vr(AD+3)}")
        a(f"v_lshlrev_b32 {vr(AD+4)}, 3, v0")
        a(f"""s_lshr_b32 {sr(T)}, {sr(S_W)}, 1
        s_lshl_b32 {sr(T)}, {sr(T)}, 6
        s_and_b32 {sr(T+1)}, {sr(S_W)}, 1
        s_lshl_b32 {sr(T+1)}, {sr(T+1)}, 3
        s_add_u32 {sr(T)}, {sr(T)}, {sr(T+1)}
        v_and_b32 {vr(AD+6)}, 3, v0
        v_lshlrev_b32 {vr(AD+6)}, 3, {vr(AD+6)}
        v_add_u32 {vr(AD+7)}, {sr(T)}, {vr(AD+6)}""")
        for k in range(3): a(f"v_add_u32 {vr(AD+k)}, {vr(AD+7)}, {vr(AD+k)}")
        a(f"s_mov_b32 {sr(S_CNT)}, {sr(S_W)}")
        a("s_waitcnt vmcnt(0)\ns_barrier")
        a.label("L_wfl")
        for s in self.tr_reads(AD, vr)(0, BF): a(s)
        a("s_waitcnt lgkmcnt(0)")
        self.gemm(self.row_reads(AD + 3), BF, ACC, AF)
        for i in range(18): a(f"v_cvt_pk_bf16_f32 {vr(BF+i)}, {vr(ACC+2*i)}, {vr(ACC+2*i+1)}")
        a(f"s_cmp_eq_u32 s2, {self.wf0}\ns_cbranch_scc0 L_wf3")
        self.gemm(self.row_reads(AD + 5), BF, ACC, AF)
        for i in range(18): a(f"v_cvt_pk_bf16_f32 {vr(BF+i)}, {vr(ACC+2*i)}, {vr(ACC+2*i+1)}")
        a.label("L_wf3")
        a(f"""s_mul_i32 {sr(T)}, {sr(S_CNT)}, {BLK}
        s_add_u32 {sr(T)}, {sr(T)}, {sr(T+4)}
        s_add_u32 {sr(T)}, {sr(T)}, {WS_WF}
        s_add_u32 {sr(T+1)}, {sr(T)}, 4096""")
        self.store_block(BF, V_DMA, AD + 4, S_WS, T, T + 1, "sc1")
        for k in range(3): a(f"v_add_u32 {vr(AD+k)}, 128, {vr(AD+k)}")
        a(f"s_add_u32 {sr(S_CNT)}, {sr(S_CNT)}, 4\ns_cmp_lt_u32 {sr(S_CNT)}, 8\ns_cbranch_scc1 L_wfl")
        for k in range(3): a(f"v_sub_u32 {vr(AD+k)}, {vr(AD+k)}, {vr(AD+6)}")
        a(f"s_cmp_eq_u32 {sr(S_CNT)}, 8\ns_cbranch_scc1 L_wfl")
        a(f"""s_waitcnt vmcnt(0)
        s_barrier
        s_cmp_lg_u32 {sr(S_W)}, 0
        s_cbranch_scc1 L_end
        s_mov_b32 {sr(T+2)}, 0""")
        a.label("L_wtag")
        a(f"""buffer_load_dword {vr(TM)}, off, {sr(S_DB,4)}, 0 sc1
        s_add_u32 {sr(T+2)}, {sr(T+2)}, 1
        s_waitcnt vmcnt(0)
        v_readfirstlane_b32 {sr(T)}, {vr(TM)}
        s_cmp_lt_u32 {sr(T+2)}, 0x40000
        s_cselect_b32 {sr(T)}, {sr(T)}, 1
        s_cmp_eq_u32 {sr(T)}, 0
        s_cbranch_scc1 L_wtag
        v_lshlrev_b32 {vr(TM+1)}, 2, v0
        s_lshl_b32 {sr(T)}, s2, 8
        s_add_u32 {sr(T)}, {sr(T)}, {WS_F + 502*256}
        buffer_store_dword {vr(TM)}, {vr(TM+1)}, {sr(S_WS,4)}, {sr(T)} offen sc1
        s_endpgm""")

    def dump_stamps(self):
        a = self.a
        if self.o.get("census"):
            key, mode, m_, v_ = self.o["census"]
            a(f"""s_cmp_lg_u32 s2, 100
            s_cbranch_scc1 L_end
            v_lshlrev_b32 v16, 2, v0
            s_mov_b32 s4, {WS_DBG}""")
            for k in range(4): a(f"buffer_load_dword v{20+k}, v16, {sr(S_WS,4)}, s4 offen offset:{256*k} sc1")
            a(f"s_waitcnt vmcnt(0)\nv_readlane_b32 s8, v21, 36\ns_mov_b32 s9, 0x80000000\ns_mov_b32 s10, 0x7fffffff\ns_mov_b32 s11, 0\ns_mov_b32 s17, 0")
            for k in range(4):
                a(f"s_mov_b32 s5, 0")
                a.label(f"L_cs{k}")
                a(f"""v_readlane_b32 s6, v{20+k}, s5
                s_add_u32 s7, s5, {64*k}
                s_sub_u32 s6, s6, s8
                s_and_b32 s16, s7, {m_}
                s_cmp_lg_u32 s16, {v_}
                s_cbranch_scc1 L_cn{k}
                s_min_i32 s10, s10, s6
                s_cmp_gt_i32 s6, {self.o.get("thr", 150)}
                s_addc_u32 s17, s17, 0
                s_cmp_gt_i32 s6, s9
                s_cselect_b32 s9, s6, s9
                s_cselect_b32 s11, s7, s11""")
                a.label(f"L_cn{k}")
                a(f"s_add_u32 s5, s5, 1\ns_cmp_lt_u32 s5, {64 if k < 3 else 60}\ns_cbranch_scc1 L_cs{k}")
            a({"arg": "s_lshl_b32 s6, s11, 3", "range": "s_sub_u32 s6, s9, s10\ns_lshl_b32 s6, s6, 1", "zero": "s_mov_b32 s6, 0", "cnt": "s_lshl_b32 s6, s17, 4",
               "max": "s_lshl_b32 s6, s9, 1"}[mode])
            a("s_add_u32 s6, s6, 1000\ns_memrealtime s[4:5]\ns_waitcnt lgkmcnt(0)\ns_add_u32 s6, s6, s4")
            a.label("L_echo")
            a("s_memrealtime s[4:5]\ns_waitcnt lgkmcnt(0)\ns_sub_u32 s7, s6, s4\ns_cmp_gt_i32 s7, 0\ns_cbranch_scc1 L_echo")
            return
        if self.o.get("echo"):
            if self.o["echo"][0] == "skew":
                a(f"v_mov_b32 v16, 4\nbuffer_load_dword v17, v16, {sr(S_DB,4)}, 0 offen sc1\ns_waitcnt vmcnt(0)\nv_readfirstlane_b32 s98, v17\ns_not_b32 s98, s98")
                x, y = 98, S_ST + 2 * self.stnames.index(self.o["echo"][1])
            else:
                x, y = [S_ST + 2 * self.stnames.index(n) for n in self.o["echo"]]
            lo, hi = self.o.get("echo_ids", (0, 999))
            a(f"""s_cmp_eq_u32 {sr(S_VAL)}, 0
            s_cbranch_scc1 L_end
            s_cmp_lt_u32 s2, {lo}
            s_cbranch_scc1 L_end
            s_cmp_ge_u32 s2, {hi}
            s_cbranch_scc1 L_end
            s_and_b32 s6, s2, {self.o.get("echo_m", 0)}
            s_cmp_lg_u32 s6, {self.o.get("echo_v", 0)}
            s_cbranch_scc1 L_end
            s_memrealtime s[4:5]
            s_waitcnt lgkmcnt(0)
            s_sub_u32 s6, {sr(y)}, {sr(x)}
            s_mul_i32 s6, s6, {self.o.get("echo_mul", 1)}
            s_lshr_b32 s6, s6, {self.o.get("echo_shr", 0)}
            s_add_u32 s6, s6, {self.o.get("echo_add", 0)}
            s_add_u32 s6, s6, s4""")
            a.label("L_echo")
            a("s_memrealtime s[4:5]\ns_waitcnt lgkmcnt(0)\ns_sub_u32 s7, s6, s4\ns_cmp_gt_i32 s7, 0\ns_cbranch_scc1 L_echo")
            return
        if self.o.get("dbgst"):
            a("s_waitcnt vmcnt(0)")
            self.stamp("done")
            a("s_waitcnt lgkmcnt(0)\ns_mov_b64 exec, 1")
            slots = [1, 2, 3, 4, 5, 6, 7, 9, 11, 12, 13, 14, 15]
            a(f"s_not_b32 {sr(S_T)}, {sr(S_ST)}\nv_mov_b32 v16, {sr(S_T)}\nv_mov_b32 v17, 4\nbuffer_atomic_umax v16, v17, {sr(S_DB,4)}, 0 offen sc1")
            for i in range(min(self.nst, 12)):
                a(f"v_mov_b32 v{18+2*i}, {sr(S_ST+2*i)}\nv_mov_b32 v{19+2*i}, {4*slots[i+1]}\nbuffer_atomic_umax v{18+2*i}, v{19+2*i}, {sr(S_DB,4)}, 0 offen sc1")
            return
        if not self.o.get("stamps"): return
        T = S_T
        a(f"""s_waitcnt lgkmcnt(0)
        s_lshl_b32 {sr(T)}, s2, 2
        s_add_u32 {sr(T)}, {sr(T)}, {sr(S_W)}
        s_lshl_b32 {sr(T)}, {sr(T)}, 7
        s_add_u32 {sr(T)}, {sr(T)}, {WS_DBG}
        v_mov_b32 v1, 0""")
        for i in range(26): a(f"v_mov_b32 {vr(16+i)}, {sr(S_ST+i)}")
        for i in range(7): a(f"buffer_store_dwordx4 {vr(16+4*i,4)}, v1, {sr(S_WS,4)}, {sr(T)} offen offset:{16*i}")

    def build(self):
        a = self.a
        self.stnames = []
        a.raw(f"; @launch grid=({NWG},1,1) block=(256,1,1) lds={LDS_TOTAL}")
        a.raw('.amdgcn_target "amdgcn-amd-amdhsa--gfx950"')
        a.raw(".text")
        a.raw(f".globl {NAME}")
        a.raw(".p2align 12")
        self.entry()
        self.phase_a()
        self.rest()
        a.label("L_fin")
        self.dump_stamps()
        a.label("L_end")
        a("s_endpgm")
        self.poll2()
        if not self.o.get("touch", 1): self.rare()
        a.label("L_dummy")
        self.fallback()
        self.wfuse()
        a.raw('.section .rodata,"a"')
        a.raw(".p2align 6")
        a.raw(kernel_desc(NAME, 512, 102, 256))
        return a.text()

    def S(self, buf, qb, i=0): return V_S + buf * 32 + qb * 8 + i
    def P(self, buf, qb, i=0): return V_P + buf * 16 + qb * 4 + i

    def k_reads(self, slot, V_K=V_K):
        ka, so = (V_KA, slot * SLOT) if slot < 2 else (V_HI, (slot - 2) * SLOT)
        out = [f"ds_read_b128 {vr(V_K+8*s+4*kb,4)}, {vr(ka)} offset:{so + 2048*s + 256*kb}" for s in range(4) for kb in range(2)]
        out += [f"ds_read_b64 {vr(V_K+32+2*kb,2)}, {vr(ka+1)} offset:{so + 8192 + 512*kb}" for kb in range(2)]
        return out

    def v_reads(self, slot, dst=V_V):
        (va, vr_, vb), so = ((V_VA, V_VR, V_VB), slot * SLOT) if slot < 2 else ((V_HI + 2, V_HI + 4, V_HI + 5), (slot - 2) * SLOT)
        out = []
        for T in range(9):
            for u in range(2):
                if T < 8: out.append(f"ds_read_b64_tr_b16 {vr(dst+4*T+2*u,2)}, {vr((va if T < 4 else vb)+(T&1))} offset:{so + 2048*((T>>1)&1) + 256*u}")
                else: out.append(f"ds_read_b64_tr_b16 {vr(dst+4*T+2*u,2)}, {vr(vr_)} offset:{so + 8192 + 512*u}")
        return out

    def qk_mfmas(self, buf, czero=False):
        out = []
        for s in range(5):
            for kb in range(2):
                for qb in range(4):
                    d = vr(self.S(buf, qb, 4 * kb), 4)
                    c = ("0" if czero else vr(V_CI + 4 * qb, 4)) if s == 0 else d
                    if s < 4: out.append(f"v_mfma_f32_16x16x32_bf16 {d}, {vr(V_K+8*s+4*kb,4)}, {ar(A_Q+18*qb+4*s,4)}, {c}")
                    else: out.append(f"v_mfma_f32_16x16x16_bf16 {d}, {vr(V_K+32+2*kb,2)}, {ar(A_Q+18*qb+16,2)}, {c}")
        return out

    def pv_mfmas(self, buf, czero=False):
        out = []
        for T in range(9):
            for qb in range(4):
                o = ar(A_O + 36 * qb + 4 * T, 4)
                out.append(f"v_mfma_f32_16x16x32_bf16 {o}, {vr(V_V+4*T,4)}, {vr(self.P(buf,qb),4)}, {'0' if czero else o}")
        return out

    def plan(self):
        o = self.o
        n = 76
        fixed = [None] * n
        for i, g in enumerate(range(1, 36, 2)): fixed[g] = ("V", i)
        for i, g in enumerate([41, 44, 47, 50, 53, 56, 59, 62, 65, 68]): fixed[g] = ("K", i)
        for i, g in enumerate([42, 46, 49, 52, 55, 58, 61, 64, 67]): fixed[g] = ("D", i)
        exps = [(qb, j) for qb in range(4) for j in range(8)]
        start = 40
        order = [(start + k) % n for k in range(n)]
        free_idx = [k for k, g in enumerate(order) if fixed[g] is None]
        nsm = len(free_idx) - 32
        cand = free_idx[6:-2]
        sm_set = set(free_idx[-2:]) | {cand[int((i + 0.5) * len(cand) / (nsm - 2))] for i in range(nsm - 2)}
        nds = sum(1 for f in fixed if f is not None and f[0] != "D")
        ls = o.get("lsum", "add")
        over = max(0, (48 if ls == "add" else 32) - nds - 2 * nsm)
        ocand = [k for k, g in enumerate(order) if k >= 20 and (fixed[g] is None or fixed[g][0] != "D")]
        o_set = {ocand[int((i + 0.5) * len(ocand) / over)] for i in range(over)}
        later = []
        gaps = [[] for _ in range(n)]
        small, pend, ei = [], [], 0
        for k, g in enumerate(order):
            new = (start + k) < n
            small.extend(pend); pend = later; later = []
            small.sort(key=lambda t: 0 if t[0] == "c" else 1)
            f = fixed[g]
            want = 0
            if f is not None:
                gaps[g].append((f[0], f[1], None))
                if f[0] == "D": continue
                want = 1
            elif k in sm_set: want = 2
            else:
                qb, j = exps[ei]; ei += 1
                gaps[g].append(("E", ("e", qb, j), new))
                if j & 1: pend.append(("c", qb, j // 2))
                if ls == "add": pend.append(("a", qb, j))
                elif j & 1 and ls == "pk": pend.append(("p", qb, j // 2))
            if k in o_set: want += 1
            if k == n - 1: want = 99
            for _ in range(want):
                if small:
                    it = small.pop(0)
                    gaps[g].append(("E", it, new))
                    if it[0] == "c" and ls == "dot": (small if k == n - 1 else pend).append(("d", it[1], it[2]))
        assert not small and not pend and ei == 32
        self.gaps = gaps

    def pack(self, mf, items):
        a = self.a
        where, order, done, nvm, mpos = {}, [], 0, 0, []
        isds = lambda it: "ds_" in it["t"]
        self.over = 0
        for g, m in enumerate(mf):
            assert not any(it.get("need", 999) <= g and i not in where for i, it in enumerate(items)), g
            idx = [k for k, n_ in enumerate(order) if n_ <= g]
            if idx and max(idx) + 1 > done:
                a(f"s_waitcnt lgkmcnt({min(15, len(order) - 1 - max(idx))})"); done = max(idx) + 1
            if m.startswith("@W"):
                w_, m = m.split("\n", 1)
                a(f"s_waitcnt lgkmcnt({min(15, int(w_[2:]) + len(order))})")
            a(m)
            mpos.append(len(a.lines))
            cap, pick = 8, []
            for phase in (0, 1):
                for i, it in enumerate(items):
                    if i in where or it.get("lo", 0) > g: continue
                    if "am" in it and (it["am"] >= g or len(a.lines) - mpos[it["am"]] < 8): continue
                    d = it.get("dep")
                    if d is not None and not all(where.get(x, 999) < g for x in d): continue
                    if (phase == 0 and it.get("hi", 999) <= g) or (phase == 1 and it["c"] <= cap):
                        if it["t"].startswith("buffer") and pick and any(items[x]["c"] for x in pick) and phase == 1: continue
                        if isds(it) and sum(isds(items[x]) for x in pick) >= it.get("nds", 1) and phase == 1: continue
                        pick.append(i); where[i] = g; cap -= it["c"]
            key = lambda i: 0 if items[i]["c"] == 0 else 1 if isds(items[i]) else 2 if items[i]["t"].startswith("buffer") else 3
            for i in sorted(pick, key=key):
                a(items[i]["t"].replace("@VM", f"s_waitcnt vmcnt({nvm})"))
                nvm += items[i]["t"].startswith("buffer")
                if isds(items[i]): order.append(items[i].get("need", 999))
            self.over += max(0, -cap)
        return [it["t"] for i, it in enumerate(items) if i not in where]

    def e_items(self, buf, lst, lo, hi):
        items, idx = [], {}
        for it in lst:
            kind, qb, j = it
            d = dict(t=self.etext(buf, it), c=8 if kind == "e" else 4)
            if kind == "e": d["lo"] = lo(qb, j); d["hi"] = hi(qb) - 2 - (7 - j)
            else:
                need = [("e", qb, j)] if kind == "a" else [("c", qb, j)] if kind == "d" else [("e", qb, 2 * j), ("e", qb, 2 * j + 1)]
                d["dep"] = [idx[x] for x in need if x in idx]
                if kind == "c": d["hi"] = hi(qb) - (3 - j) // 2
            idx[it] = len(items); items.append(d)
        return items

    def etext(self, buf, it):
        kind, qb, j = it
        s = self.S(buf, qb)
        if kind == "e": return f"v_exp_f32 {vr(s+j)}, {vr(s+j)}"
        if kind == "d": return f"v_dot2_f32_bf16 {vr(V_L+qb)}, {vr(self.P(buf, qb, j))}, v227, {vr(V_L+qb)}"
        if kind == "p": return f"v_pk_add_f32 {vr(208+2*qb,2)}, {vr(208+2*qb,2)}, {vr(s+2*j,2)}"
        if kind == "a": return f"v_add_f32 {vr(V_L+qb)}, {vr(V_L+qb)}, {vr(s+j)}"
        return f"v_cvt_pk_bf16_f32 {vr(self.P(buf, qb, j))}, {vr(s+2*j)}, {vr(s+2*j+1)}"

    def period(self, p, qk=True, pv=True, e_old=True, e_new=True, kread=True, vread=True, dma=True, extra={}, dsub=None, ksub=None, vm=9, halves=(0, 1), inc=None):
        a = self.a
        bn, bo = (p + 1) & 1, p & 1
        qk_, pv_ = self.qk_mfmas(bn), self.pv_mfmas(bo, czero=(p == 0))
        qo, po = self.o.get("qkord", 1), self.o.get("pvord", 0)
        if qo == 1: qk_ = [qk_[8 * s_ + 4 * kb + qb] for kb in range(2) for qb in range(4) for s_ in range(4)] + qk_[32:]
        if qo == 2: qk_ = [qk_[8 * s_ + 4 * kb + qb] for qb in range(4) for kb in range(2) for s_ in range(4)] + qk_[32:]
        if qo == 3: qk_ = [qk_[8 * s_ + 4 * kb + qb] for qb in range(4) for s_ in range(4) for kb in range(2)] + qk_[32:]
        if po == 1: pv_ = [pv_[4 * T_ + qb] for qb in range(4) for T_ in range(9)]
        mf = qk_ + pv_
        kr, vrd = self.k_reads((p + 2) % RING), self.v_reads(p % RING)
        slot = p % RING
        n = 76
        sc = [[] for _ in range(n)]
        dgs = [g for g in range(n) if any(e[0] == "D" for e in self.gaps[g])]
        if dma:
            for j, g in enumerate(dgs):
                if j % 4 == 0: sc[g - 1].append(f"s_add_u32 m0, {sr(S_LB)}, {slot*SLOT + 4096*(j//4)}")
            sc[dgs[-1] + 1].append(f"s_add_u32 {sr(S_TOFF)}, {sr(S_TOFF)}, {inc or 4*TILE}")
        w = []
        if kread: w.append(f"vmcnt({vm})")
        if pv: w.append("lgkmcnt(0)")
        if w: sc[39].append("s_waitcnt " + " ".join(w))
        if kread: sc[75].append("s_waitcnt lgkmcnt(0)")
        for half in halves:
            rng = range(0, 40) if half == 0 else range(40, 76)
            on = qk if half == 0 else pv
            if not on:
                ds, mem, val, post = [], [], [], []
                for g in rng:
                    for s_ in sc[g]:
                        (post if s_.startswith("s_waitcnt") else mem).append(s_)
                    if g in extra: mem.append(extra[g])
                    for kind, d, new in self.gaps[g]:
                        if kind == "V" and vread: ds.append(vrd[d])
                        elif kind == "K" and kread: ds.append(kr[d])
                        elif kind == "D" and dma: mem.append(f"buffer_load_dwordx4 {vr(V_DMA + d//4)}, {sr(S_XA,4)}, {sr(S_TOFF)} offen offset:{1024*(d%4)} lds")
                        elif kind == "E" and ((new and e_new) or (not new and e_old)): val.append((d, self.etext(bn if new else bo, d)))
                if half == 1: a("s_nop 3")
                seq, pend = [], list(val)
                while pend:
                    k = 0
                    if seq and seq[-1][0][0] == "e":
                        le = seq[-1][0]
                        dep = lambda it: it[0][1] == le[1] and ((it[0][0] == "a" and it[0][2] == le[2]) or (it[0][0] == "c" and it[0][2] == le[2] // 2))
                        have = {x[0] for x in seq}
                        ok = lambda it: it[0][0] == "e" or (("e", it[0][1], it[0][2]) in have if it[0][0] == "a" else (("e", it[0][1], 2*it[0][2]+1) in have)) or not any(x[0][0] == "e" and x[0][1] == it[0][1] and (x[0][2] == it[0][2] if it[0][0] == "a" else x[0][2] // 2 == it[0][2]) for x in pend)
                        while k < len(pend) and (dep(pend[k]) or not ok(pend[k])): k += 1
                        if k == len(pend): seq.append((("n", 0, 0), "s_nop 0")); k = 0
                    seq.append(pend.pop(k))
                step = max(1, len(seq) // (len(mem) + len(ds) + 1))
                allm = ds + mem
                for x in allm[:6]: a(x)
                allm = allm[6:]
                for i_, (d, t_) in enumerate(seq):
                    a(t_)
                    if allm and i_ % step == step - 1:
                        x = allm.pop(0); a(x)
                        if x.startswith("s_add_u32 m0"): a("s_nop 0")
                for x in allm:
                    a(x)
                    if x.startswith("s_add_u32 m0"): a("s_nop 0")
                for x in post: a(x)
                if half == 0: a("s_nop 1")
                continue
            for g in rng:
                a(mf[g])
                for s_ in sc[g]: a(s_)
                if g in extra: a(extra[g])
                for kind, d, new in self.gaps[g]:
                    if kind == "V":
                        if vread: a(vrd[d])
                    elif kind == "K":
                        if kread: a(kr[d])
                        elif ksub: a(ksub.pop(0))
                    elif kind == "D":
                        if dma: a(f"buffer_load_dwordx4 {vr(V_DMA + d//4)}, {sr(S_XA,4)}, {sr(S_TOFF)} offen offset:{1024*(d%4)} lds")
                        elif dsub: a(dsub.pop(0))
                    elif (new and e_new) or (not new and e_old):
                        a(self.etext(bn if new else bo, d))

    MK, VO, VO8, GA, VS0, VS0R, VDW, VLW, VL8, VST, VPL = 232, 236, 9, 238, 250, 251, 244, 245, 246, 247, 248
    NB, PT, E_U, E_G, RS3, E_COL, RS1, RS2, MP1 = 3, 4, 5, 6, 7, 43, 36, 37, 38
    G0, GM, GP, U, DWT = 16, 26, 36, 80, (90, 252, 96, 100, 112, 116, 104, 94)
    XRS = (192, 196, 46)
    frag = staticmethod(lambda f, b: [(f, b + 4 * s) for s in range(5)])
    WD = [[("a", 216 + 4 * s) for s in range(5)], [("a", 234 + 4 * s) for s in range(5)], [("v", 208 + 4 * s) for s in range(5)]]
    WO = [[("a", 4 * s) for s in range(5)], [("a", 18 + 4 * s) for s in range(5)], [("a", 36), ("a", 40), ("a", 44), ("a", 48), ("a", 252)]]
    X1B = 98304
    X2O = L_SP - X1B
    L_L = L_SP + 9216

    def epi_setup(self):
        a = self.a
        T = S_T
        NB, PT, VO, GA = self.NB, self.PT, self.VO, self.GA
        r, g4, x, y, big, r0 = 52, 53, 54, 55, 56, 57
        a(f"""s_lshr_b32 {sr(NB)}, {sr(S_W)}, 1
        s_and_b32 {sr(PT)}, {sr(S_W)}, 1
        v_and_b32 {vr(r0)}, 15, v0
        v_lshrrev_b32 {vr(g4)}, 4, v0
        v_mul_u32_u24 {vr(x)}, 288, {vr(r0)}
        v_mov_b32 {vr(big)}, 0x40000000
        s_lshl_b32 {sr(T)}, {sr(S_TOWN)}, 1
        s_add_u32 {sr(T)}, {sr(T)}, {sr(NB)}
        s_lshl_b32 {sr(T)}, {sr(T)}, 4
        v_add_u32 {vr(r)}, {sr(T)}, {vr(r0)}
        s_mul_i32 {sr(T+1)}, {sr(S_TOWN)}, {TILE}
        s_mul_i32 {sr(T+2)}, {sr(PT)}, {BLK}
        v_add_u32 {vr(x)}, {sr(T+1)}, {vr(x)}
        s_sub_u32 {sr(T+3)}, {BLK}, {sr(T+2)}
        v_add_u32 {vr(y)}, {sr(T+3)}, {vr(x)}
        v_add_u32 {vr(x)}, {sr(T+2)}, {vr(x)}
        v_lshl_add_u32 {vr(VO)}, {vr(g4)}, 4, {vr(x)}
        v_lshl_add_u32 {vr(VO+1)}, {vr(g4)}, 4, {vr(y)}
        v_lshl_add_u32 {vr(self.VO8)}, {vr(g4)}, 3, {vr(x)}
        s_lshl_b32 {sr(T+3)}, {sr(PT)}, 11
        s_add_u32 {sr(self.E_U)}, {sr(T+3)}, {WS_U}
        s_add_u32 {sr(self.E_G)}, {sr(T+3)}, {WS_G}
        s_sub_u32 {sr(T+3)}, 4096, {sr(T+3)}
        s_lshl_b32 {sr(T)}, {sr(PT)}, 11
        s_add_u32 {sr(T)}, {sr(T)}, {WS_DWF}
        v_lshrrev_b32 {vr(x)}, 2, {vr(r0)}
        v_cmp_eq_u32 vcc, {vr(x)}, {vr(g4)}
        v_lshl_add_u32 {vr(self.VDW)}, {vr(r0)}, 4, {sr(T)}
        s_nop 0
        v_cndmask_b32 {vr(self.VDW)}, {vr(big)}, {vr(self.VDW)}, vcc
        s_lshl_b32 {sr(self.E_COL)}, {sr(S_W)}, 6
        v_lshlrev_b32 {vr(self.VL8)}, 3, v0
        v_add_u32 {vr(self.VL8)}, 4096, {vr(self.VL8)}
        v_add_u32 {vr(self.VST)}, {sr(S_LB)}, {vr(V_DMA)}
        v_add_u32 {vr(self.VST)}, {2*SLOT}, {vr(self.VST)}
        s_xor_b32 {sr(T)}, {sr(NB)}, 1
        v_xor_b32 {vr(x)}, {sr(T)}, {vr(g4)}
        v_lshl_add_u32 {vr(x)}, {vr(x)}, 4, {vr(r0)}
        s_lshl_b32 {sr(T)}, {sr(S_W)}, 2
        s_add_u32 {sr(T)}, {sr(T)}, {self.L_L}
        v_lshl_add_u32 {vr(self.VLW)}, {vr(x)}, 4, {sr(T)}
        s_sub_u32 {sr(self.MP1)}, 0, {sr(PT)}
        s_mov_b32 {sr(self.MP1+1)}, {sr(self.MP1)}""")
        for k, (d, base) in enumerate(((self.RS1, 3 * SLOT), (self.RS2, 2 * SLOT), (self.RS3, 2 * SLOT))):
            a(f"s_xor_b32 {sr(T)}, {sr(S_W)}, {k+1}\ns_mul_i32 {sr(T)}, {sr(T)}, {TILE}\ns_add_u32 {sr(d)}, {sr(T)}, {base}")
        a(f"""s_mul_i32 {sr(T)}, {sr(S_B)}, 4000
        s_add_u32 {sr(T+1)}, {sr(T)}, 3999
        s_mov_b32 {sr(T+2)}, {BLK}""")
        for k, dr in enumerate((0, -1, 1)):
            m = GA + 2 * k
            if dr: a(f"v_add_u32 {vr(m)}, {dr}, {vr(r)}\nv_cmp_eq_u32 vcc, {sr(T if dr < 0 else T+1)}, {vr(r)}")
            src = m if dr else r
            a(f"""v_lshrrev_b32 {vr(x)}, 4, {vr(src)}
            v_and_b32 {vr(y)}, 15, {vr(src)}
            v_mul_lo_u32 {vr(x)}, {vr(x)}, {sr(T+2)}
            v_lshl_add_u32 {vr(y)}, {vr(g4)}, 4, {vr(y)}
            v_lshl_add_u32 {vr(m)}, {vr(y)}, 4, {vr(x)}
            v_lshl_add_u32 {vr(m+1)}, {vr(y)}, 3, {vr(x)}
            v_add_u32 {vr(m+1)}, {sr(T+3)}, {vr(m+1)}""")
            if dr: a(f"v_cndmask_b32 {vr(m)}, {vr(m)}, {vr(big)}, vcc\nv_cndmask_b32 {vr(m+1)}, {vr(m+1)}, {vr(big)}, vcc")

    def conv_loads(self):
        GA = self.GA
        L = []
        for dst, m, so in ((self.GM, GA + 2, 1), (self.G0, GA, 1), (self.GP, GA + 4, 1), (self.U, GA, 0)):
            for k in range(2): L.append(f"buffer_load_dwordx4 {vr(dst+4*k,4)}, {vr(m)}, {sr(S_WS,4)}, {sr(self.E_U+so)} offen offset:{1024*k}")
            L.append(f"buffer_load_dwordx2 {vr(dst+8,2)}, {vr(m+1)}, {sr(S_WS,4)}, {sr(self.E_U+so)} offen")
        return L

    def rg(self, e, n): return (ar if e[0] == "a" else vr)(e[1], n)

    def w8_loads(self, regs, so):
        return [f"buffer_load_dwordx4 {self.rg(regs[s],4)}, {vr(V_DMA)}, {sr(S_WS,4)}, {sr(so)} offen offset:{1024*s}" for s in range(4)] + \
               [f"buffer_load_dwordx2 {self.rg(regs[4],2)}, {vr(self.VL8)}, {sr(S_WS,4)}, {sr(so)} offen"]

    def w_reads(self, regs, off):
        L = []
        for tt in range(2):
            L += [f"ds_read_b128 {self.rg(regs[tt][s],4)}, {vr(self.VS0)} offset:{off + BLK*tt + 1024*s}" for s in range(4)]
            L.append(f"ds_read_b64 {self.rg(regs[tt][4],2)}, {vr(self.VS0R)} offset:{off + BLK*tt}")
        return L

    def xa_srd(self):
        T = S_T
        return f"""s_mul_i32 {sr(T)}, {sr(S_B)}, {NT}
        s_mul_i32 {sr(T+1)}, {sr(S_H)}, 63
        s_add_u32 {sr(T+1)}, {sr(T+1)}, {sr(T)}
        s_mul_i32 {sr(T+1)}, {sr(T+1)}, {TILE}
        s_add_u32 {sr(S_XA)}, {sr(S_WS)}, {sr(T+1)}
        s_addc_u32 {sr(S_XA+1)}, {sr(S_WS+1)}, 0
        s_sub_u32 {sr(T+2)}, 63, {sr(S_H)}
        s_mul_i32 {sr(S_XA+2)}, {sr(T+2)}, {TILE}
        s_mov_b32 {sr(S_XA+3)}, 0x20000"""

    def rest(self):
        a, o = self.a, self.o
        T = S_T
        VPL = self.VPL
        self.plan()
        self.head()
        self.stamp("loop")
        if o.get("sktest") or o.get("echo") and o["echo"][0] == "skew":
            a(f"s_waitcnt lgkmcnt(0)\ns_mov_b64 exec, 1\ns_not_b32 s98, {sr(S_ST)}\nv_mov_b32 v226, s98\nv_mov_b32 v227, 4\ns_cmp_lg_u32 {sr(S_W)}, 0\ns_cbranch_scc1 L_sk\nbuffer_atomic_umax v226, v227, {sr(S_DB,4)}, 0 offen sc1\ns_waitcnt vmcnt(0)\nL_sk:\ns_mov_b64 exec, -1\ns_nop 3")
            self.stamp("sk")
        nh = o.get("ugh", 2)
        ex = {2 + 12 * k: x for k, x in enumerate(self.ugs[nh:])}
        ugl = o.get("ugl", 0)
        if ugl: self.period(0, extra={69: self.ugs[0]})
        else: self.period(0, vm=9 + 5, extra=ex)
        self.stamp("l0")
        a.raw(".p2align 6")
        a.label("L_loop")
        self.stamp("q1")
        for p in range(1, 5):
            ex = {}
            vm = 9
            if p == 1: ex = {73: f"s_cmp_eq_u32 {sr(S_CNT)}, 3"}
            if p == 2: ex = {70: f"buffer_load_dword v252, {vr(VPL)}, {sr(S_WS,4)}, 0 offen sc1"}
            if p == 3:
                ex = {73: f"s_cmp_eq_u32 {sr(S_CNT)}, 2", 45: f"ds_add_rtn_u32 v230, v231, {vr(VPL+1)}"}
            if p == 4:
                self.stamp("la0")
                a(f"s_cbranch_scc1 L_last")
                a.label("L_lastb")
                self.stamp("la1")
                ex = {72: f"s_add_u32 {sr(S_CNT)}, {sr(S_CNT)}, 1", 1: f"v_readfirstlane_b32 {sr(T)}, v230", 3: f"s_cmp_eq_u32 {sr(T)}, 3",
                      4: f"s_cselect_b32 {sr(T)}, {sr(S_FB)}, 2.0", 6: f"buffer_store_dword v226, v231, {sr(S_WS,4)}, {sr(T)} offen sc1"}
            if ugl:
                ex[69] = self.ugs[p]
                if p == 4: ex.update({71: f"s_mov_b32 {sr(S_UG)}, 2.0", 2: f"s_lshl2_add_u32 {sr(T)}, {sr(S_CNT)}, {sr(T)}", 3: f"s_cmp_eq_u32 {sr(T)}, 7"})
                if p == 3: ex.update({43: f"s_and_b32 {sr(T)}, {sr(S_CNT)}, 1", 44: f"v_mov_b32 {vr(VPL+1)}, {sr(T)}", 48: ex.pop(45)})
            for k_ in range(o.get("pad", 0)): ex[10 + 7 * k_] = ex.get(10 + 7 * k_, "s_nop 0") + "\ns_nop 7"
            self.period(p, extra=ex, inc=sr(S_INC) if p == 4 else None)
            if p == 1: a("s_cbranch_scc1 L_p14")
        a("s_branch L_loop")
        a.label("L_p14")
        SW = 66
        self.stamp("p14")
        a(f"s_cmp_eq_u32 {sr(S_DUM)}, 4\ns_cbranch_scc0 L_dummyb")
        for i in range(16): a(f"v_mov_b32 {vr(V_CI+i)}, 0xff800000")
        a("s_nop 1")
        a.label("L_dummyb")
        ex = dict(zip([2, 6, 8, 12, 14, 18, 20, 24, 26, 30], self.w_reads(self.WD, 0)))
        ex[0] = "s_waitcnt vmcnt(9)"
        ex.update(dict(zip([4, 10, 16, 22, 28], self.w8_loads(self.WD[2], SW))))
        self.period(14, dma=False, kread=False, extra=ex, halves=(0,))
        self.stamp("tail")
        self.tail(SW)
        self.stamp("end")
        self.epilogue(SW)

    def rare(self):
        a = self.a
        T = S_T
        SW = 66
        a.label("L_last")
        a(f"s_waitcnt vmcnt(9)\ns_mov_b32 {sr(T+2)}, 0")
        a.label("L_late")
        a(f"""v_cmp_ne_u32 vcc, {sr(S_N)}, v252
        s_add_u32 {sr(S_XA)}, {sr(S_WS)}, {WS_WF}
        s_addc_u32 {sr(S_XA+1)}, {sr(S_WS+1)}, 0
        s_mov_b32 {sr(S_XA+2)}, {18*BLK}
        s_add_u32 {sr(S_TOFF)}, {sr(S_LB)}, {9*BLK}
        s_mov_b32 {sr(S_INC)}, {-9*BLK}
        s_lshr_b32 {sr(SW)}, {sr(S_W)}, 1
        s_lshl_b32 {sr(SW)}, {sr(SW)}, 30
        s_add_u32 {sr(SW+1)}, {sr(SW)}, {WS_WF + 8*BLK}
        s_add_u32 {sr(SW)}, {sr(SW)}, {WS_WF + 17*BLK}
        s_and_b32 {sr(T)}, vcc_lo, 31
        s_cbranch_scc0 L_lastb
        buffer_load_dword v252, {vr(self.VPL)}, {sr(S_WS,4)}, 0 offen sc1
        s_add_u32 {sr(T+2)}, {sr(T+2)}, 1
        s_waitcnt vmcnt(0)
        s_cmp_lt_u32 {sr(T+2)}, 0x40000
        s_cbranch_scc1 L_late
        s_branch L_lastb""")

    units = [(0, 0), (0, 1), (1, 0), (1, 1), (2, 0)]
    V15 = V_K

    def stage(self, slot, T):
        src = ar(A_O + 36 * slot + 4 * T, 4)
        if slot == 0: return f"ds_write_b128 {vr(self.VST)}, {src} offset:{1024*T}"
        if slot == 2: return f"ds_write_b128 {vr(self.VS0)}, {src} offset:{1024*T}"
        if T < 4: return f"ds_write_b128 {vr(self.VST)}, {src} offset:{SLOT + 1024*T + (4096 if slot == 3 else 0)}"
        return f"{'s_not_b64' if slot == 1 else 's_mov_b64'} exec, {sr(self.MP1,2)}\nds_write_b128 {vr(self.VST)}, {src} offset:{SLOT + 8192}\ns_mov_b64 exec, -1"

    def dwf(self, k, i):
        f = 5 * k + i
        return self.DWT[f >> 1] + 2 * (f & 1)

    def tail(self, SW):
        a, o = self.a, self.o
        mf, pos, start = [], {}, {}
        for t_, qb in ((14, 0), (14, 1), (15, 0), (15, 1), (14, 2), (15, 2), (14, 3), (15, 3)):
            start[t_, qb] = len(mf)
            for Tt in ([0, 1, 2, 3, 8, 4, 5, 6, 7] if qb & 1 else range(9)):
                o_ = ar(A_O + 36 * qb + 4 * Tt, 4)
                pos[t_, qb, Tt] = len(mf)
                mf.append(f"v_mfma_f32_16x16x32_bf16 {o_}, {vr((V_V if t_ == 14 else self.V15)+4*Tt,4)}, {vr(self.P(t_ & 1,qb),4)}, {o_}")
        lst = []
        for qb in range(4):
            for j in range(8):
                lst.append(("e", qb, j))
                if j & 1: lst.append(("c", qb, j // 2))
        lst += [("a", qb, j) for qb in range(4) for j in range(8)]
        items = self.e_items(1, lst, lambda qb, j: 0 if j < 4 else 1, lambda qb: start[15, qb] - 2)
        for it in items[48:]: it["lo"] = o.get("alo", 26)
        v15 = [dict(t=x, c=4, need=pos[15, 0, i // 2], hi=pos[15, 0, i // 2] - o.get("vlead", 7), lo=0 if i < 16 else 2) for i, x in enumerate(self.v_reads(3, self.V15))]
        wr = []
        nown = o.get("nown", 4)
        self.own = [(2, T_) for T_ in range(nown, 9)] + [(3, T_) for T_ in (0, 1, 2, 3, 8)]
        g = o.get("w0", 23)
        for k, (sl, Tt) in enumerate([(0, T_) for T_ in range(9)] + [(1, T_) for T_ in (0, 1, 2, 3, 8)] + [(2, T_) for T_ in range(nown)]):
            g = max(pos[15, sl, Tt] + 5, g)
            wr.append(dict(t=self.stage(sl, Tt), c=o.get("wc", 20), lo=int(g), hi=int(g)) if g < 72 else dict(t=self.stage(sl, Tt), c=4, lo=999))
            g += o.get("wsp", 2.7)
        n0 = len(items) + len(v15)
        wo = []
        for i, x in enumerate(self.w_reads(self.WO, SLOT)):
            r0 = self.WO[i // 5][i % 5][1]
            wo.append(dict(t=("@VM\n" if i == 0 else "") + x, c=4, dep=sorted({n0 + r0 // 4, n0 + (r0 + 3) // 4 if (r0 + 3) // 4 < 9 else n0 + 8}), lo=o.get("wo0", 40) + 3 * i, hi=o.get("wo0", 40) + 3 * i + 2))
        cl = self.conv_loads()
        dl = [f"buffer_load_dwordx4 {vr(self.DWT[r],4)}, {vr(self.VDW)}, {sr(S_WS,4)}, 0 offen offset:{256*r}" for r in range(7)]
        dl.append(f"buffer_load_dwordx2 {vr(self.DWT[7],2)}, {vr(self.VDW)}, {sr(S_WS,4)}, 0 offen offset:{256*7}")
        fr = {96: 9, 100: 18, 104: 45, 112: 27, 116: 36}
        vm = [(x, 0) for x in cl] + [(x, fr.get(self.DWT[r], 0)) for r, x in enumerate(dl)]
        used = {w["lo"] for w in wr}
        vi, g = [], o.get("m0", 24)
        for x, lo in vm:
            g = max(g, lo)
            while int(g) in used: g += 1
            vi.append(dict(t=x, c=8, lo=int(g), hi=int(g)) if g < 72 else dict(t=x, c=8, lo=999))
            g += o.get("msp", 2.2)
        left = self.pack(mf, items + v15 + wr + wo + vi)
        self.done_a = {(qb, j) for qb in range(4) for j in range(8) if self.etext(1, ("a", qb, j)) not in left}
        left = [x for x in left if not x.startswith("v_add_f32")]
        print("tail overflow", self.over, "left", len(left), "adds done", len(self.done_a))
        self.left = left

    def epilogue(self, SW):
        a, o = self.a, self.o
        T = S_T
        p = lambda r: vr(r, 2)
        NB, PT, MK, VO, units, MP1 = self.NB, self.PT, self.MK, self.VO, self.units, self.MP1
        U, GM, G0, GP = self.U, self.GM, self.G0, self.GP
        X2O = self.X2O
        R1, R2, R3 = 230, 231, 249
        LA, LS, M = 10, 226, 48

        def weave(main, fill, per):
            fill = list(fill)
            for x in main:
                a(x)
                for _ in range(per):
                    if fill: a(fill.pop(0))
            return fill
        for x in self.left:
            if not x.startswith("buffer"): a(x)
        lv = [x for x in self.left if x.startswith("buffer")]
        lv += [f"buffer_load_dwordx4 {vr(self.XRS[j],4)}, {vr(VO+j)}, {sr(S_X,4)}, {sr(self.E_COL)} offen" for j in range(2)]
        lv.append(f"buffer_load_dwordx2 {vr(self.XRS[2],2)}, {vr(self.VO8)}, {sr(S_X,4)}, 0 offen offset:256")
        S1 = lambda qb, j: self.S(1, qb, j)
        rounds = [[] for _ in range(6)]
        for qb in range(4):
            rem = [j for j in range(8) if (qb, j) not in self.done_a]
            prs = [j for j in rem if j % 2 == 0 and j + 1 in rem]
            sing = [j for j in rem if (j & ~1) not in prs]
            r_ = 0
            while len(prs) > 1:
                for x, y in zip(prs[0::2], prs[1::2]): rounds[r_].append(f"v_pk_add_f32 {p(S1(qb,x))}, {p(S1(qb,x))}, {p(S1(qb,y))}")
                prs = prs[0::2]; r_ += 1
            for k_, j in enumerate(sing + ([prs[0], prs[0] + 1] if prs else [])): rounds[min(5, max(r_, 2) + k_)].append(f"v_add_f32 {vr(V_L+qb)}, {vr(V_L+qb)}, {vr(S1(qb,j))}")
        for r_ in rounds:
            for x in r_: a(x)
        a(f"v_add_u32 {vr(R1)}, {sr(self.RS1)}, {vr(V_DMA)}\nv_add_u32 {vr(R2)}, {sr(self.RS2)}, {vr(V_DMA)}")
        self.treduce(V_L)
        a(f"ds_write_b32 {vr(self.VLW)}, {vr(V_L)}")
        acc = lambda slot: [f"v_accvgpr_read_b32 {vr(M+i)}, {ar(A_O+36*slot+16+i)}" for i in range(20)]
        a(f"""v_add_u32 {vr(R3)}, {sr(self.RS3)}, {vr(V_DMA)}
        v_add_u32 {vr(LA+1)}, {self.L_L}, {vr(V_DMA)}
        v_and_b32 {vr(LS+1)}, 0xf0, {vr(V_DMA)}
        s_lshl_b32 {sr(T)}, {sr(NB)}, 8
        s_add_u32 {sr(T+8)}, {sr(T)}, {self.L_L}
        v_add_u32 {vr(LS)}, {sr(T+8)}, {vr(LS+1)}""")
        for x in lv: a(x)
        a(f"""s_xor_b32 {sr(T)}, s2, 1
        s_mul_i32 {sr(T)}, {sr(T)}, {IB}
        s_mul_i32 {sr(T+9)}, {sr(NB)}, 5120
        s_add_u32 {sr(T+9)}, {sr(T+9)}, {WS_IB}
        s_add_u32 {sr(T)}, {sr(T)}, {sr(T+9)}
        s_lshl_b32 {sr(T+10)}, {sr(PT)}, 11
        s_add_u32 {sr(T+1)}, {sr(T+10)}, {sr(T)}
        s_add_u32 {sr(T)}, {sr(T)}, 4096
        s_cmp_eq_u32 {sr(PT)}, 0
        s_cselect_b32 {sr(T)}, 0x40000000, {sr(T)}
        s_mov_b32 {sr(T+2)}, {f32(2.0**100)}
        s_mul_i32 {sr(T+12)}, s2, {IB}
        s_add_u32 {sr(T+12)}, {sr(T+12)}, {sr(T+9)}
        s_add_u32 {sr(T+13)}, {sr(T+12)}, {sr(T+10)}
        s_waitcnt lgkmcnt(0)
        s_barrier""")
        self.stamp("B1")

        def rd(X, offs):
            L = [[f"ds_read_b128 {vr(X[k][i],4)}, {vr((R1, R2, R3)[k])} offset:{offs[k] + 1024*i}" for i in range(4)] for k in range(3)]
            L8 = [f"ds_read_b128 {vr(X[k][4],4)}, {vr((R1, R2, R3)[k])} offset:8192" for k in range(3)]
            return L, L8

        def adds(X, k, rng):
            return [f"v_pk_add_f32 {p(M+4*i+2*h)}, {p(M+4*i+2*h)}, {p(X[k][i]+2*h)}" for i in rng for h in range(2)]
        X = [[128, 132, 136, 140, 144], [148, 152, 156, 160, 68], [72, 76, 200, 204, 108]]
        PK = 128
        L, L8 = rd(X, (0, 4096, 0))
        a(f"ds_read_b128 {vr(LA,4)}, {vr(LA+1)}\nds_read_b128 {vr(LS,4)}, {vr(LS)}")
        rest = weave(L[0] + L[1] + L[2], acc(1), 2)
        assert not rest
        a(f"s_mov_b64 exec, {sr(MP1,2)}")
        for x in L8: a(x)
        a(f"""s_mov_b64 exec, -1
        s_waitcnt lgkmcnt(11)
        v_add_f32 {vr(LA)}, {vr(LA)}, {vr(LA+1)}
        v_add_f32 {vr(LA+2)}, {vr(LA+2)}, {vr(LA+3)}
        v_add_f32 {vr(LS)}, {vr(LS)}, {vr(LS+1)}
        v_add_f32 {vr(LA)}, {vr(LA)}, {vr(LA+2)}
        v_add_f32 {vr(LS+2)}, {vr(LS+2)}, {vr(LS+3)}
        v_cmp_nge_f32 vcc, {sr(T+2)}, {vr(LA)}""")
        for x in adds(X, 0, range(4)): a(x)
        a(f"""s_cmp_lg_u64 vcc, 0
        s_cselect_b32 {sr(T+2)}, 1, 0
        s_andn2_b32 {sr(T+2)}, {sr(T+2)}, {sr(S_REDO)}
        s_cbranch_scc1 L_fallback
        v_add_f32 {vr(PK+10)}, {vr(LS)}, {vr(LS+2)}
        v_mov_b32 {vr(PK+11)}, {vr(MK+1)}
        s_waitcnt lgkmcnt(7)""")
        for x in adds(X, 1, range(4)): a(x)
        a("s_waitcnt lgkmcnt(3)")
        a3 = adds(X, 2, range(4))
        cv = [f"v_cvt_pk_bf16_f32 {vr(PK+i)}, {vr(M+2*i)}, {vr(M+2*i+1)}" for i in range(10)]
        for x in a3[:4] + a3[4:6] + cv[:4]: a(x)
        a(f"buffer_store_dwordx4 {vr(PK,4)}, {vr(V_DMA)}, {sr(S_WS,4)}, {sr(T+1)} offen sc1")
        for x in a3[6:] + cv[4:8]: a(x)
        a(f"buffer_store_dwordx4 {vr(PK+4,4)}, {vr(V_DMA)}, {sr(S_WS,4)}, {sr(T+1)} offen offset:1024 sc1")
        a("s_waitcnt lgkmcnt(0)")
        for kk in range(3):
            for x in adds(X, kk, [4]): a(x)
        for x in cv[8:]: a(x)
        a(f"buffer_store_dwordx4 {vr(PK+8,4)}, {vr(V_DMA)}, {sr(S_WS,4)}, {sr(T)} offen sc1")
        self.stamp("sent")
        a(f"s_cmp_eq_u32 {sr(S_VAL)}, 0\ns_cbranch_scc1 L_fin")
        C, UP = 140, 68
        IN = [(200, 204, 226), (164, 168, 252), (192, 196, 172)]
        VXW, VXR, VF, LO = 78, 79, 10, 36
        wr = [self.stage(*e) for e in self.own]

        def inbox(k):
            return [f"buffer_load_dwordx4 {vr(IN[k][0],4)}, {vr(V_DMA)}, {sr(S_WS,4)}, {sr(T+13)} offen sc1",
                    f"buffer_load_dwordx4 {vr(IN[k][1],4)}, {vr(V_DMA)}, {sr(S_WS,4)}, {sr(T+13)} offen offset:1024 sc1",
                    f"buffer_load_dwordx4 {vr(IN[k][2],4)}, {vr(V_DMA+1)}, {sr(S_WS,4)}, {sr(T+12)} offen sc1"]
        for x in inbox(0): a(x)
        n0 = len(a.lines)
        a(f"""s_lshl_b32 {sr(T)}, {sr(NB)}, 12
        s_add_u32 {sr(T)}, {sr(T)}, {sr(T+10)}
        s_add_u32 {sr(T)}, {sr(T)}, {self.X1B}
        v_add_u32 {vr(VXW)}, {sr(T)}, {vr(V_DMA)}
        s_lshl_b32 {sr(T)}, {sr(NB)}, 9
        s_add_u32 {sr(T)}, {sr(T)}, {self.X1B + 4096}
        v_add_u32 {vr(VXR)}, {sr(T)}, {vr(self.VL8)}
        s_lshl_b32 {sr(T)}, {sr(PT)}, 12
        s_add_u32 {sr(T)}, {sr(T)}, {self.X1B}
        v_add_u32 {vr(VF)}, {sr(T)}, {vr(V_DMA)}
        v_xor_b32 {vr(VF+1)}, 4096, {vr(VF)}
        s_lshl_b32 {sr(T)}, {sr(PT)}, 9
        s_add_u32 {sr(T)}, {sr(T)}, {self.X1B + 4096}
        v_add_u32 {vr(VF+2)}, {sr(T)}, {vr(self.VL8)}
        v_xor_b32 {vr(VF+3)}, 512, {vr(VF+2)}
        v_subrev_u32 {vr(R2)}, {2*SLOT}, {vr(R2)}
        v_subrev_u32 {vr(R3)}, {2*SLOT}, {vr(R3)}
        s_waitcnt vmcnt(9)""")
        self.stamp("cv0")
        un = [f"v_lshlrev_b32 {vr(M+2*i)}, 16, {vr(U+i)}\nv_and_b32 {vr(M+1+2*i)}, 0xffff0000, {vr(U+i)}" for i in range(10)]
        w8 = self.w8_loads(self.WO[2], SW + 1)
        for k, src in enumerate((GM, G0, GP)):
            for i in range(5):
                d = vr(C + 4 * i, 4)
                a(f"v_mfma_f32_16x16x16_bf16 {d}, {vr(self.dwf(k, i),2)}, {vr(src+2*i,2)}, {'0' if k == 0 else d}")
                a(w8.pop(0) if i in (0, 3) and w8 else un.pop(0))
        self.stamp("cv1")
        a(f"v_and_b32 {vr(LO+1)}, 0xf0, {vr(V_DMA)}\nv_add_u32 {vr(LO)}, {sr(T+8)}, {vr(LO+1)}\ns_nop 1")
        for i in range(10): a(f"v_pk_mul_f32 {p(C+2*i)}, {p(C+2*i)}, {p(M+2*i)}")
        for i in range(10):
            a(f"v_cvt_pk_bf16_f32 {vr(UP+i)}, {vr(C+2*i)}, {vr(C+2*i+1)}")
        body = a.lines[n0:]; del a.lines[n0:]
        step = max(1, len(body) // len(wr))
        for i, l in enumerate(body):
            if i % o.get("wstep", step) == 0 and wr: a(wr.pop(0))
            a.lines.append(l)
        for x in wr: a(x)
        ac = acc(3)
        a(f"ds_write_b128 {vr(VXW)}, {vr(UP,4)} offset:{X2O}")
        for x in ac[:6]: a(x)
        a(f"ds_write_b128 {vr(VXW)}, {vr(UP+4,4)} offset:{X2O + 1024}")
        for x in ac[6:12]: a(x)
        a(f"""s_mov_b64 exec, {sr(MP1,2)}
        ds_write_b64 {vr(VXR)}, {vr(UP+8,2)} offset:{X2O}
        s_mov_b64 exec, -1""")
        self.stamp("x2")
        for x in inbox(1): a(x)
        for x in ac[12:]: a(x)
        a("s_waitcnt lgkmcnt(0)\ns_barrier")
        self.stamp("B2")
        X = [[128, 132, 136, 140, 144], [148, 152, 156, 160, 188], [16, 20, 24, 28, 32]]
        L, L8 = rd(X, (4096, 4096, 0))
        BU = [[("v", r) for r in (100, 104, 108, 112, 116)], [("v", r) for r in (118, 122, 180, 184, 126)]]
        BO = [self.frag("v", 128), self.frag("v", 146)]
        AB = 80

        def bfrags(dst, off):
            out = []
            for s in range(5):
                for j in range(2):
                    out.append(f"ds_read_b128 {self.rg(dst[j][s],4)}, {vr(VF+j)} offset:{off + 1024*s}" if s < 4 else f"ds_read_b64 {self.rg(dst[j][4],2)}, {vr(VF+2+j)} offset:{off}")
            return out

        def fg(W, Bf):
            out = []
            for s in range(5):
                for u, (tt, j) in enumerate(units):
                    d = vr(AB + 4 * u, 4)
                    if s < 4: out.append(f"v_mfma_f32_16x16x32_bf16 {d}, {self.rg(W[tt][s],4)}, {self.rg(Bf[j][s],4)}, {d}")
                    else: out.append(f"v_mfma_f32_16x16x16_bf16 {d}, {self.rg(W[tt][4],2)}, {self.rg(Bf[j][4],2)}, {d}")
            return out
        xu = []
        for u, (tt, j) in enumerate(units):
            for h in range(2):
                x = self.XRS[j] + 2 * tt + h if tt < 2 else self.XRS[2] + h
                xu += [f"v_lshlrev_b32 {vr(AB+4*u+2*h)}, 16, {vr(x)}", f"v_and_b32 {vr(AB+1+4*u+2*h)}, 0xffff0000, {vr(x)}"]
        a("s_waitcnt vmcnt(14)")
        weave(bfrags(BU, X2O), xu, 2)
        pl = lambda k, i, e: f"v_add_f32 {vr(M+4*i+e)}, {vr(M+4*i+e)}, {vr(X[k][i]+e)}"
        ds = L[0] + L[1] + L[2] + [f"s_not_b64 exec, {sr(MP1,2)}\n" + "\n".join(L8) + "\ns_mov_b64 exec, -1", f"ds_read_b128 {vr(LO,4)}, {vr(LO)} offset:512"]
        nis = [1] * 12 + [3, 1]
        gap = [[] for _ in range(25)]
        tot = [10]
        for g in range(25): tot.append(tot[-1] + (nis[g] if g < 14 else 0))
        A0 = [pl(0, i, e) for i in range(4) for e in range(4)]
        A1 = [pl(1, i, e) for i in range(4) for e in range(4)]
        ib = inbox(2)
        for g, m in enumerate(fg(self.WD, BU)):
            if g % 5 == 0: a(f"s_waitcnt lgkmcnt({min(15, tot[g] - 2 * (g // 5 + 1))})")
            a(m)
            if g == 8: a(f"s_waitcnt lgkmcnt({tot[g] - 14})")
            if g == 16: a(f"s_waitcnt lgkmcnt({tot[g] - 18})")
            if g < 14: a(ds[g])
            if 8 <= g < 14: a(A0.pop(0))
            elif g in (14, 18, 22): a(ib.pop(0))
            elif g >= 14:
                for _ in range(2): a(A0.pop(0) if A0 else A1.pop(0))
        assert not A0 and len(A1) % 2 == 0
        n1 = 16 - len(A1)
        for e in range(n1, 16, 2): a(f"v_pk_add_f32 {p(M+e)}, {p(M+e)}, {p(X[1][e//4]+e%4)}")
        a("s_waitcnt lgkmcnt(0)")
        for x in adds(X, 2, range(4)): a(x)
        a(f"v_add_f32 {vr(LO)}, {vr(LO)}, {vr(LO+1)}\nv_add_f32 {vr(LO+2)}, {vr(LO+2)}, {vr(LO+3)}")
        for kk in range(3):
            for x in adds(X, kk, [4]): a(x)
        a(f"s_mov_b32 {sr(T+2)}, 0\nv_add_f32 {vr(LO)}, {vr(LO)}, {vr(LO+2)}")
        self.stamp("own")
        w, PU = 40, 128
        mo = MK + 3

        def chk(k):
            r = [IN[k][q] + i for q in range(3) for i in range(4)]
            c = [f"v_max3_u32 v46, {vr(r[0])}, {vr(r[1])}, {vr(r[2])}", f"v_max3_u32 v47, {vr(r[3])}, {vr(r[4])}, {vr(r[5])}"]
            for q in range(3): c.append(f"v_max3_u32 v{46+(q&1)}, v{46+(q&1)}, {vr(r[6+2*q])}, {vr(r[7+2*q])}")
            return c + ["v_max_u32 v46, v46, v47", "v_cmp_eq_u32 vcc, -1, v46"]

        def take(k, with_chk):
            r = [IN[k][q] + i for q in range(3) for i in range(4)]
            lp_, mp = r[10], r[11]
            wt = [f"v_min_f32 {vr(w)}, {vr(mo)}, {vr(mp)}", f"v_sub_f32 {vr(w+2)}, {vr(w)}, {vr(mp)}", f"v_sub_f32 {vr(w)}, {vr(w)}, {vr(mo)}",
                  f"v_exp_f32 {vr(w+2)}, {vr(w+2)}", f"v_exp_f32 {vr(w)}, {vr(w)}", f"v_mul_f32 {vr(w+4)}, {vr(w+2)}, {vr(lp_)}",
                  f"v_fmac_f32 {vr(w+4)}, {vr(w)}, {vr(LO)}", f"v_rcp_f32 {vr(w+4)}, {vr(w+4)}", f"v_mul_f32 {vr(w)}, {vr(w)}, {vr(w+4)}",
                  f"v_mul_f32 {vr(w+2)}, {vr(w+2)}, {vr(w+4)}"]
            un = []
            for i in range(10): un += [f"v_lshlrev_b32 {vr(PU+2*i)}, 16, {vr(r[i])}", f"v_and_b32 {vr(PU+1+2*i)}, 0xffff0000, {vr(r[i])}"]
            c = chk(k) if with_chk else []
            for i in range(10):
                a(wt[i])
                if c: a(c.pop(0))
                a(un.pop(0)); a(un.pop(0))
        a("s_waitcnt vmcnt(6)")
        take(0, True)
        a("s_cmp_eq_u64 vcc, 0\ns_cbranch_scc0 L_poll2")
        a.label("L_got")
        self.stamp("got")
        for i in range(10): a(f"v_pk_mul_f32 {p(M+2*i)}, {p(M+2*i)}, {p(w)} op_sel_hi:[1,0]")
        for i in range(10): a(f"v_pk_fma_f32 {p(M+2*i)}, {p(PU+2*i)}, {p(w+2)}, {p(M+2*i)} op_sel_hi:[1,0,1]")
        for i in range(10):
            a(f"v_cvt_pk_bf16_f32 {vr(UP+i)}, {vr(M+2*i)}, {vr(M+2*i+1)}")
            if i == 3: a(f"ds_write_b128 {vr(VXW)}, {vr(UP,4)}")
            if i == 7: a(f"ds_write_b128 {vr(VXW)}, {vr(UP+4,4)} offset:1024")
        a(f"""s_not_b64 exec, {sr(MP1,2)}
        ds_write_b64 {vr(VXR)}, {vr(UP+8,2)}
        s_mov_b64 exec, -1
        s_waitcnt lgkmcnt(0)
        s_barrier""")
        self.stamp("B3")
        for x in bfrags(BO, 0): a(x)
        for g, m in enumerate(fg(self.WO, BO)):
            if g % 5 == 0: a(f"s_waitcnt lgkmcnt({8 - 2 * (g // 5)})" + ("\ns_nop 0" if g == 20 else ""))
            a(m)
        self.stamp("gem")
        a("s_nop 3")
        for j in range(2):
            for tt in range(2):
                u = 2 * tt + j
                for h in range(2): a(f"v_cvt_pk_bf16_f32 {vr(16+4*j+2*tt+h)}, {vr(AB+4*u+2*h)}, {vr(AB+4*u+2*h+1)}")
            a(f"buffer_store_dwordx4 {vr(16+4*j,4)}, {vr(VO+j)}, {sr(S_OUT,4)}, {sr(self.E_COL)} offen {o.get('ofl', '')}")
        a(f"s_cmp_ge_u32 {sr(S_W)}, 2\ns_cbranch_scc1 L_fin")
        for h in range(2): a(f"v_cvt_pk_bf16_f32 {vr(24+h)}, {vr(AB+16+2*h)}, {vr(AB+16+2*h+1)}")
        a(f"buffer_store_dwordx2 v[24:25], {vr(self.VO8)}, {sr(S_OUT,4)}, 0 offen offset:256 {o.get('ofl', '')}")
        self.stamp("fin")

        def poll2():
            a.label("L_poll2")
            for k in (1, 2, 0):
                for x in inbox((k + 2) % 3): a(x)
                a("s_waitcnt vmcnt(6)")
                for x in chk(k): a(x)
                a(f"s_add_u32 {sr(T+2)}, {sr(T+2)}, 1\ns_cmp_eq_u64 vcc, 0\ns_cbranch_scc1 L_take{k}")
            a(f"s_cmp_lt_u32 {sr(T+2)}, 0x10000\ns_cbranch_scc1 L_poll2")
            for k in (0, 1, 2):
                a.label(f"L_take{k}")
                take(k, False)
                a("s_branch L_got")
        self.poll2 = poll2

    def fallback(self):
        a = self.a
        T = S_T
        MXR = 208
        a.label("L_fallback")
        a(f"""s_waitcnt vmcnt(0) lgkmcnt(0)
        s_barrier
        s_mov_b32 {sr(S_REDO)}, 1
        s_mov_b32 {sr(S_UG)}, 0x40000000
        {self.xa_srd()}
        s_mov_b32 {sr(S_TOFF)}, {sr(S_LB)}
        s_cmp_eq_u32 {sr(S_DUM)}, 4
        s_cselect_b32 {sr(S_CNT)}, 15, 16""")
        for i in range(4): a(f"v_mov_b32 {vr(MXR+i)}, 0xff800000")
        a.label("L_fb1")
        for g in self.tile_groups(0): a(g)
        a("s_waitcnt vmcnt(0)")
        for x in self.k_reads(0): a(x)
        a("s_waitcnt lgkmcnt(0)")
        for m in self.qk_mfmas(0, czero=True): a(m)
        a("s_nop 7")
        for qb in range(4):
            for i in range(0, 8, 2): a(f"v_max3_f32 {vr(MXR+qb)}, {vr(MXR+qb)}, {vr(self.S(0,qb,i))}, {vr(self.S(0,qb,i+1))}")
        a(f"s_sub_u32 {sr(S_CNT)}, {sr(S_CNT)}, 1\ns_cmp_lg_u32 {sr(S_CNT)}, 0\ns_cbranch_scc1 L_fb1")
        self.greduce([MXR + i for i in range(4)], MXR + 4, "v_max_f32")
        a(f"""v_and_b32 {vr(MXR+4)}, 15, v0
        v_lshlrev_b32 {vr(MXR+4)}, 4, {vr(MXR+4)}
        v_add_u32 {vr(MXR+4)}, {L_SP}, {vr(MXR+4)}
        s_lshl_b32 {sr(T)}, {sr(S_W)}, 2
        s_xor_b32 {sr(T+1)}, {sr(self.NB)}, 1
        v_lshl_add_u32 {vr(MXR+5)}, {sr(self.NB)}, 8, {vr(MXR+4)}
        v_lshl_add_u32 {vr(MXR+4)}, {sr(T+1)}, 8, {vr(MXR+4)}
        v_add_u32 {vr(MXR+6)}, {sr(T)}, {vr(MXR+4)}
        v_add_u32 {vr(MXR+7)}, {sr(T)}, {vr(MXR+5)}""")
        for qb in range(4): a(f"ds_write_b32 {vr(MXR+6+(qb&1))}, {vr(MXR+qb)} offset:{512*(qb>>1)}")
        a("s_waitcnt lgkmcnt(0)\ns_barrier")
        for qb in range(4): a(f"ds_read_b128 {vr(16+4*qb,4)}, {vr(MXR+4+(qb&1))} offset:{512*(qb>>1)}")
        a(f"s_mov_b32 {sr(S_TOFF)}, {sr(S_LB)}")
        for g in self.tile_groups(0) + self.tile_groups(1) + self.tile_groups(2)[:8]: a(g)
        a("s_waitcnt lgkmcnt(0)")
        for qb in range(4):
            r = 16 + 4 * qb
            a(f"v_max_f32 {vr(r)}, {vr(r)}, {vr(r+1)}\nv_max3_f32 {vr(r)}, {vr(r)}, {vr(r+2)}, {vr(r+3)}")
            a(f"v_sub_f32 {vr(self.MK+qb)}, 0, {vr(r)}")
        a("s_waitcnt vmcnt(0)")
        for x in self.k_reads(0, V_V): a(x)
        self.loop_init(False)
        a("s_branch L_go")


if __name__ == "__main__":
    opt = json.loads(sys.argv[2]) if len(sys.argv) > 2 else {}
    g = G(opt)
    txt = g.build()
    if opt.get("align", 1):
        from align import align
        for n2 in (1, 2):
            try:
                txt, st = align(txt, chains=[(1, "L_tr")] * 3 + [(1, "L_tr2"), (n2, "L_tr2")] if opt.get("touch", 1) else None)
                break
            except AssertionError as e:
                if n2 == 2: raise
        print("align: promoted %d, padded %d, left %d" % st)
    txt = txt.replace("\n", "\n; stamps " + json.dumps(g.stnames) + "\n; map %d\n" % g.mp, 1)
    open(sys.argv[1], "w").write(txt)
```

```python
import sys, json, math
from common import Asm, vr, ar, sr, kernel_header, kernel_desc
from lay import *

NAME = "standalone__conformer_family_branchformer__speech_kernel"
NH = 2
NWG = 252 + NH
CHAINS = (3, 3)
RING = 4
LDS_RING = RING * TILE
LDS_TOTAL = 163840
SLOT = 4 * TILE
L_WU, L_WQ, L_WK = 0, 41472, 82944
L_XX, L_XR = 126976, 143360
L_QD = 18432
L_XS = L_XX + L_QD
L_MX = 81920
L_PC = LDS_TOTAL - 256
L_DUMP = 123904
L_SP = 147456

S_X, S_WS, S_XA, S_DB, S_W1, S_W2, S_OUT, S_DW = 8, 12, 16, 20, 24, 28, 32, 36
S_W, S_B, S_H, S_QB, S_TOFF, S_CNT, S_DUM, S_LB, S_TOWN, S_TSND, S_VAL, S_REDO = range(40, 52)
S_UG, S_CL = 25, 26
S_N, S_FB = 98, 99
S_INC = 24
S_T = 52
S_ST = 76

V_KA, V_VA, V_VR, V_DMA, V_L, V_VB = 1, 3, 5, 6, 10, 14
V_S, V_CI, V_P, V_K, V_V = 16, 80, 96, 128, 164
V_HI = 200
V_X = 208
A_O, A_Q, A_F = 0, 144, 216

LOG2E = 1.4426950408889634
import struct
def f32(x): return "0x%08x" % struct.unpack("<I", struct.pack("<f", x))[0]


class BAsm(Asm):
    def __init__(self):
        super().__init__()
        self.bg, self.every, self.cnt, self.skip = [], 0, 0, 0

    def __call__(self, s):
        for l in s.split("\n"):
            l = l.strip()
            if not l: continue
            self.lines.append("    " + l)
            if self.bg and self.every and not l.startswith(("s_nop", "v_mov_b32", "v_exp", "v_rcp", "v_rsq", "v_sqrt", "s_add_u32 m0")):
                self.cnt += 1
                if self.cnt >= self.every:
                    self.cnt = 0
                    self.pop()

    def pop(self):
        for x in self.bg.pop(0).split("\n"): self.lines.append("    " + x)

    def flush(self):
        while self.bg: self.pop()
        self.every = 0


class G:
    def __init__(self, opt):
        self.o = opt
        self.a = BAsm()
        self.nst = 0
        self.fill = []

    def stamp(self, name):
        if self.o.get("stamps"):
            if name in self.o.get("skipst", []): return
            if "only" in self.o and name not in self.o["only"]: return
            if self.nst >= 11: return
            self.a(f"{'s_memtime' if self.o.get('cyc') else 's_memrealtime'} {sr(S_ST + 2*self.nst, 2)}")
            self.stnames.append(name)
            self.nst += 1

    def srd(self, dst, lo, hi, n):
        if dst == S_WS and self.o.get("wsoff"):
            self.a(f"s_add_u32 {sr(dst)}, {sr(lo)}, {self.o['wsoff']}\ns_addc_u32 {sr(dst+1)}, {sr(hi)}, 0\ns_mov_b32 {sr(dst+2)}, {n}\ns_mov_b32 {sr(dst+3)}, 0x20000")
            return
        self.a(f"s_mov_b32 {sr(dst)}, {sr(lo)}\ns_mov_b32 {sr(dst+1)}, {sr(hi)}\ns_mov_b32 {sr(dst+2)}, {n}\ns_mov_b32 {sr(dst+3)}, 0x20000")

    def greduce(self, regs, tmp, op="v_add_f32"):
        a = self.a
        for sw in ("32", "16"):
            for i, r in enumerate(regs): a(f"v_mov_b32 {vr(tmp+i)}, {vr(r)}")
            if len(regs) < 3: a("s_nop 1" if len(regs) == 1 else "s_nop 0")
            for i, r in enumerate(regs): a(f"v_permlane{sw}_swap_b32 {vr(r)}, {vr(tmp+i)}")
            for i, r in enumerate(regs): a(f"{op} {vr(r)}, {vr(r)}, {vr(tmp+i)}")

    def treduce(self, r, op="v_add_f32"):
        a = self.a
        a(f"v_permlane32_swap_b32 {vr(r)}, {vr(r+2)}\nv_permlane32_swap_b32 {vr(r+1)}, {vr(r+3)}")
        a(f"{op} {vr(r)}, {vr(r)}, {vr(r+2)}\n{op} {vr(r+1)}, {vr(r+1)}, {vr(r+3)}\ns_nop 1")
        a(f"v_permlane16_swap_b32 {vr(r)}, {vr(r+1)}\n{op} {vr(r)}, {vr(r)}, {vr(r+1)}")

    def rbf(self, r):
        self.a(f"v_cvt_pk_bf16_f32 {vr(r)}, {vr(r)}, {vr(r)}\nv_lshlrev_b32 {vr(r)}, 16, {vr(r)}")

    def ln_tail(self, F, out, t, mimic):
        a = self.a
        p = lambda r: vr(r, 2)
        self.greduce([t, t + 1], t + 2)
        a(f"v_mul_f32 {vr(t+2)}, {f32(1.0/144)}, {vr(t)}")
        a(f"v_mul_f32 {vr(t+3)}, {vr(t+2)}, {vr(t+2)}")
        a(f"v_mov_b32 {vr(t+4)}, {f32(1.0/144)}")
        a(f"v_fma_f32 {vr(t)}, {vr(t+1)}, {vr(t+4)}, -{vr(t+3)}")
        a(f"v_max_f32 {vr(t)}, 0, {vr(t)}")
        if mimic:
            self.rbf(t)
            self.rbf(t + 2)
            a(f"v_add_f32 {vr(t)}, {f32(1e-5)}, {vr(t)}")
            self.rbf(t)
            a(f"v_sqrt_f32 {vr(t)}, {vr(t)}\ns_nop 0")
            self.rbf(t)
            a(f"v_rcp_f32 {vr(t)}, {vr(t)}\ns_nop 0")
        else:
            a(f"v_add_f32 {vr(t)}, {f32(1e-5)}, {vr(t)}")
            a(f"v_rsq_f32 {vr(t)}, {vr(t)}\ns_nop 0")
        a(f"v_mul_f32 {vr(t+2)}, -{vr(t+2)}, {vr(t)}")
        for i in range(18):
            a(f"v_pk_fma_f32 {p(F+2*i)}, {p(F+2*i)}, {p(t)}, {p(t+2)} op_sel_hi:[1,0,0]")
        for i in range(18):
            a(f"v_cvt_pk_bf16_f32 {vr(out+i)}, {vr(F+2*i)}, {vr(F+2*i+1)}")

    def ln_packed(self, X, F, out, t):
        a = self.a
        a(f"v_mov_b32 {vr(t+6)}, 0x3f803f80")
        for k in range(4): a(f"v_mov_b32 {vr(t+k)}, 0")
        for i in range(18):
            a(f"v_dot2_f32_bf16 {vr(t+2*(i&1))}, {vr(X+i)}, {vr(t+6)}, {vr(t+2*(i&1))}")
            a(f"v_dot2_f32_bf16 {vr(t+1+2*(i&1))}, {vr(X+i)}, {vr(X+i)}, {vr(t+1+2*(i&1))}")
        for i in range(2):
            a(f"v_lshlrev_b32 {vr(F+2*i)}, 16, {vr(X+i)}\nv_and_b32 {vr(F+2*i+1)}, 0xffff0000, {vr(X+i)}")
        a(f"v_pk_add_f32 {vr(t,2)}, {vr(t,2)}, {vr(t+2,2)}")
        un = []
        for i in range(2, 18):
            un.append(f"v_lshlrev_b32 {vr(F+2*i)}, 16, {vr(X+i)}\nv_and_b32 {vr(F+2*i+1)}, 0xffff0000, {vr(X+i)}")
        sv = (a.bg, a.every, a.cnt, a.skip)
        n0 = len(a.lines)
        a.bg, a.every = [], 0
        self.ln_tail(F, out, t, True)
        tail = a.lines[n0:]
        del a.lines[n0:]
        a.bg, a.every, a.cnt, a.skip = sv
        k = next(i for i, l in enumerate(tail) if "v_pk_fma" in l)
        for i, l in enumerate(tail[:k]):
            if "s_nop" in l and un: continue_nop = True
            a(l)
            if un and not l.strip().startswith("s_nop"): a(un.pop(0))
        while un: a(un.pop(0))
        for l in tail[k:]: a(l)

    def ln_f32(self, F, out, t):
        a = self.a
        p = lambda r: vr(r, 2)
        a(f"v_pk_add_f32 {p(t)}, {p(F)}, {p(F+2)}\nv_pk_add_f32 {p(t+2)}, {p(F+4)}, {p(F+6)}")
        a(f"v_pk_mul_f32 {p(t+4)}, {p(F)}, {p(F)}\nv_pk_mul_f32 {p(t+6)}, {p(F+2)}, {p(F+2)}")
        for i in range(2, 18):
            if i >= 4: a(f"v_pk_add_f32 {p(t+2*(i&1))}, {p(t+2*(i&1))}, {p(F+2*i)}")
            a(f"v_pk_fma_f32 {p(t+4+2*(i&1))}, {p(F+2*i)}, {p(F+2*i)}, {p(t+4+2*(i&1))}")
        a(f"v_pk_add_f32 {p(t)}, {p(t)}, {p(t+2)}\nv_pk_add_f32 {p(t+4)}, {p(t+4)}, {p(t+6)}")
        a(f"v_add_f32 {vr(t)}, {vr(t)}, {vr(t+1)}\nv_add_f32 {vr(t+1)}, {vr(t+4)}, {vr(t+5)}")
        self.ln_tail(F, out, t, False)

    def gemm_u(self, AF, rf, Bs, ACC, afr, bfr, post, vm_items=(), other=(), lead=7, vm0=0, vmsp=4, at={}, lastk=0):
        a = self.a
        units = [(0, j) for j in range(4)] + [(1, j) for j in range(4)] + [(2, 0)]
        seq, dl = [], {}
        bs = lambda j, o_, n: self.rg((Bs[j][0], Bs[j][1] + o_), n)
        rem = lambda u: (f"v_mfma_f32_16x16x16_bf16 {vr(ACC+4*u,4)}, {rf(AF+18*units[u][0]+16,2)}, {bs(units[u][1],16,2)}, {vr(ACC+4*u,4)}", u)
        A = [afr(t) for t in range(3)]
        Bf = [bfr(j) for j in range(4)]

        def use(t, j, s, k):
            for x in (A[t][2 * s:2 * s + 2] if s < 4 else A[t][8:]) + ([Bf[j][s]] if Bf[j] else []): dl.setdefault(x, k)
        for g in range(4):
            for s in range(4):
                for u in range(3 * g, 3 * g + 3) if g < 3 else []:
                    t, j = units[u]
                    d = vr(ACC + 4 * u, 4)
                    use(t, j, s, len(seq))
                    seq.append((f"v_mfma_f32_16x16x32_bf16 {d}, {rf(AF+18*t+4*s,4)}, {bs(j,4*s,4)}, {'0' if s == 0 else d}", None))
                if s == 0 and g > 0:
                    for u in range(3 * g - 3, 3 * g):
                        use(units[u][0], units[u][1], 4, len(seq)); seq.append(rem(u))
        last = seq[-3:]; seq = seq[:-3]
        ds = sorted(dl.items(), key=lambda e: e[1]) + [(x, 99) for x in other]
        vm_items = list(vm_items)
        lastvm = vm0 - vmsp
        order, ready, q, done = [], [], [], 0

        def issue():
            x, k_ = ds.pop(0); a(x); order.append(k_)

        def wait(k):
            nonlocal done
            idx = [i_ for i_, k_ in enumerate(order) if k_ <= k]
            if idx and max(idx) + 1 > done:
                a(f"s_waitcnt lgkmcnt({min(15, len(order) - 1 - max(idx))})"); done = max(idx) + 1
        while ds and ds[0][1] < 6: issue()
        for k, (m, fin) in enumerate(seq):
            assert not ds or ds[0][1] > k, (k, ds[0])
            wait(k)
            a(m)
            for u_, kk in list(ready):
                if k - kk >= 4: q += post(u_); ready.remove((u_, kk))
            if fin is not None: ready.append((fin, k))
            if k in at: at[k]()
            due = sum(1 for x, k_ in ds if k_ <= k + lead)
            if due == 0 and vm_items and k >= lastvm + vmsp and (len(vm_items) > 1 or k >= lastk):
                a(vm_items.pop(0)); lastvm = k; continue
            cap = 2
            for _ in range(min(due, 3)): issue(); cap -= 1
            if cap == 2:
                if q and q[0].startswith("ds_"): a(q.pop(0)); order.append(99); cap -= 1
                elif ds: issue(); cap -= 1
            while cap > 0 and q and not q[0].startswith("ds_"):
                a(q.pop(0)); cap -= 1
        assert not ready
        while ds: issue()
        wait(98)
        for x in vm_items: a(x)
        for x in q[:4]: a(x)
        a(f"s_nop {max(0, 4 - len(q[:4]))}")
        for m, _ in last: a(m)
        for x in q[4:]: a(x)
        a(f"s_nop {max(0, 6 - len(q[4:]))}")
        for u in range(6, 9):
            for x in post(u): a(x)

    def gemm(self, reads, B, ACC, AF, late=(), at={}, per=2):
        a = self.a
        buf = lambda T: 18 * (T % 6)
        ng = 3 * (4 * per + 1)

        def grp(g):
            r = [reads(T, buf(T)) for T in range(3 * g, 3 * g + 3)]
            return [r[t][per * s + u] for s in range(4) for t in range(3) for u in range(per)] + [r[t][4 * per] for t in range(3)]
        rem = lambda T: f"v_mfma_f32_16x16x16_bf16 {vr(ACC+4*T,4)}, {ar(buf(T)+16,2)}, {vr(B+16,2)}, {vr(ACC+4*T,4)}"
        pend = grp(0) + grp(1) + grp(2) + list(late)
        issued = k = 0

        def issue(n):
            nonlocal issued
            for _ in range(n):
                if issued < len(pend): a(pend[issued]); issued += 1

        def mf(x):
            nonlocal k
            a(x); issue(per if per == 2 else (2 if k % 4 == 0 else 1))
            if k in at: a(at[k])
            k += 1
        issue(self.o.get('look', 12) if per == 2 else self.o.get('look1', 8))
        for g in range(3):
            for s in range(4):
                need = ng * g + 3 * per * (s + 1)
                a(f"s_waitcnt lgkmcnt({min(15, issued - need)})")
                for T in range(3 * g, 3 * g + 3):
                    d = vr(ACC + 4 * T, 4)
                    mf(f"v_mfma_f32_16x16x32_bf16 {d}, {ar(buf(T)+4*s,4)}, {vr(B+4*s,4)}, {'0' if s == 0 else d}")
                if s == 0 and g > 0:
                    for T in range(3 * g - 3, 3 * g): mf(rem(T))
                if g == 1 and s == 0: assert issued <= 2 * ng + 6 * per, "group 2 overwrites group 0 too early"
        issue(99)
        a(f"s_waitcnt lgkmcnt({len(late)})\ns_nop 2")
        for T in range(6, 9): a(rem(T))
        a("s_nop 7")

    def tr_reads(self, ad, rf=ar):
        def f(T, dst):
            out = []
            for s in range(4):
                for u in range(2):
                    out.append(f"ds_read_b64_tr_b16 {rf(dst+4*s+2*u,2)}, {vr(ad+u)} offset:{9216*s + 32*T}")
            out.append(f"ds_read_b64_tr_b16 {rf(dst+16,2)}, {vr(ad+2)} offset:{36864 + 32*T}")
            return out
        return f

    def row_reads(self, ad, sw=None):
        def f(T, dst):
            r = ad if sw is None or T == 8 else sw[T & 1]
            out = []
            for s in range(4):
                for u in range(2):
                    out.append(f"ds_read_b64 {ar(dst+4*s+2*u,2)}, {vr(r)} offset:{4864*T + 64*s + 32*u}")
            out.append(f"ds_read_b64 {ar(dst+16,2)}, {vr(r)} offset:{4864*T + 256}")
            return out
        return f

    def dma_rows(self, jobs, cpr, rstride, vo, vc, n_first, first_waves, lab):
        a = self.a
        mul = {18: 3641, 19: 3450}[cpr]
        dr, dc = 256 // cpr, 256 % cpr
        a(f"s_lshl_b32 {sr(S_T)}, {sr(S_W)}, 6")
        a(f"v_add_u32 {vr(vc)}, {sr(S_T)}, v0")
        a(f"v_mul_u32_u24 {vr(vo)}, {mul}, {vr(vc)}")
        a(f"v_lshrrev_b32 {vr(vo)}, 16, {vr(vo)}")
        a(f"v_mul_u32_u24 {vr(vc+1)}, {cpr}, {vr(vo)}")
        a(f"v_sub_u32 {vr(vc)}, {vr(vc)}, {vr(vc+1)}")
        a(f"v_mul_u32_u24 {vr(vo)}, {rstride}, {vr(vo)}")
        a(f"v_lshl_add_u32 {vr(vo)}, {vr(vc)}, 4, {vr(vo)}")
        a(f"s_lshl_b32 {sr(S_T)}, {sr(S_W)}, 10")
        a(f"v_mov_b32 {vr(vc+1)}, {rstride - 16*cpr}")
        for k in range(n_first):
            if k == n_first - 1:
                a(f"s_cmp_ge_u32 {sr(S_W)}, {first_waves}\ns_cbranch_scc1 {lab}")
            for srd, so, lb in jobs:
                a(f"s_add_u32 m0, {sr(S_T)}, {lb + 4096*k}")
                a("s_nop 0")
                a(f"buffer_load_dwordx4 {vr(vo)}, {sr(srd,4)}, {so} offen lds")
            if k < n_first - 1:
                a(f"v_add_u32 {vr(vc)}, {dc}, {vr(vc)}")
                a(f"v_cmp_le_u32 vcc, {cpr}, {vr(vc)}")
                a(f"v_add_u32 {vr(vo)}, {dr*rstride + 16*dc}, {vr(vo)}")
                a(f"v_subrev_u32 {vr(vc+2)}, {cpr}, {vr(vc)}")
                a(f"v_cndmask_b32 {vr(vc)}, {vr(vc)}, {vr(vc+2)}, vcc")
                a(f"v_cndmask_b32 {vr(vc+2)}, 0, {vr(vc+1)}, vcc")
                a(f"v_add_u32 {vr(vo)}, {vr(vo)}, {vr(vc+2)}")
        a.label(lab)

    def voff_table(self, dst, cpr, rstride, vc, step=256):
        a = self.a
        mul = {18: 29128, 19: 27595}[cpr]
        n = len(dst)
        a(f"s_mov_b32 {sr(S_T)}, {rstride - 16*cpr}")
        a(f"v_mul_u32_u24 {vr(dst[0])}, {mul}, {vr(vc)}")
        for k in range(1, n): a(f"v_add_u32 {vr(dst[k])}, {(step*k % cpr)*mul}, {vr(dst[0])}")
        for k in range(n): a(f"v_lshrrev_b32 {vr(dst[k])}, 19, {vr(dst[k])}")
        for k in range(n): a(f"v_mad_i32_i24 {vr(dst[k])}, {vr(dst[k])}, {sr(S_T)}, {vr(vc+1)}")

    def dma_lin(self, srd, soff, lb, v16, lab):
        a = self.a
        a(f"s_lshl_b32 {sr(S_T)}, {sr(S_W)}, 10")
        for k in range(11):
            if k == 10:
                a(f"s_cmp_ge_u32 {sr(S_W)}, 1\ns_cbranch_scc1 {lab}")
            a(f"s_add_u32 m0, {sr(S_T)}, {lb + 4096*k}")
            a(f"s_add_u32 {sr(S_T+1)}, {sr(S_T)}, {soff + 4096*k}")
            a(f"buffer_load_dwordx4 {vr(v16)}, {sr(srd,4)}, {sr(S_T+1)} offen lds")
        a.label(lab)

    def tr_addr(self, ad, base, swapped, t):
        a = self.a
        a(f"v_lshrrev_b32 {vr(t)}, 2, v0")
        a(f"v_mul_u32_u24 {vr(t)}, 288, {vr(t)}")
        a(f"v_and_b32 {vr(t+1)}, 3, v0")
        a(f"v_lshl_add_u32 {vr(t)}, {vr(t+1)}, 3, {vr(t)}")
        a(f"v_add_u32 {vr(ad+2)}, {base}, {vr(t)}")
        if swapped:
            a(f"v_bfe_u32 {vr(t)}, v0, 4, 1")
            a(f"v_mul_u32_u24 {vr(t)}, {16*288}, {vr(t)}")
            a(f"v_add_u32 {vr(ad)}, {vr(ad+2)}, {vr(t)}")
            a(f"v_sub_u32 {vr(ad+1)}, {vr(ad+2)}, {vr(t)}")
            a(f"v_add_u32 {vr(ad+1)}, {16*288}, {vr(ad+1)}")
        else:
            a(f"v_mov_b32 {vr(ad)}, {vr(ad+2)}")
            a(f"v_add_u32 {vr(ad+1)}, {16*288}, {vr(ad+2)}")

    def row_addr(self, ad, base, t):
        a = self.a
        a(f"v_and_b32 {vr(t)}, 15, v0")
        a(f"v_mul_u32_u24 {vr(t)}, 304, {vr(t)}")
        a(f"v_lshrrev_b32 {vr(t+1)}, 4, v0")
        a(f"v_lshl_add_u32 {vr(t)}, {vr(t+1)}, 3, {vr(t)}")
        a(f"v_add_u32 {vr(ad)}, {base}, {vr(t)}")

    def store_block(self, src, v16, v8, srd, soff, soff2, flags=""):
        a = self.a
        for s in range(4):
            a(f"buffer_store_dwordx4 {vr(src+4*s,4)}, {vr(v16)}, {sr(srd,4)}, {sr(soff)} offen offset:{1024*s} {flags}")
        a(f"buffer_store_dwordx2 {vr(src+16,2)}, {vr(v8)}, {sr(srd,4)}, {sr(soff2)} offen {flags}")

    def entry(self):
        a = self.a
        kernel_header(a, NAME)
        a(f"s_load_dwordx16 s[56:71], s[0:1], 0")
        a(f"s_load_dwordx8 s[72:79], s[0:1], 64")
        a(f"s_getpc_b64 {sr(S_W1,2)}")
        a.label("L_pf")
        a(f"""s_mov_b32 {sr(S_W1+2)}, L_dummy-L_pf
        s_mov_b32 {sr(S_W1+3)}, 0x20000
        v_lshlrev_b32 v2, 4, v0
        buffer_load_dwordx4 v[252:255], v2, {sr(S_W1,4)}, 0 offen
        s_lshl_b32 s3, s2, 9
        s_and_b32 s3, s3, 0x7000
        buffer_load_dwordx4 v[252:255], v2, {sr(S_W1,4)}, s3 offen
        v_lshrrev_b32 v1, 6, v0
        s_sub_u32 s2, s2, {NH}
        v_readfirstlane_b32 {sr(S_W)}, v1
        s_memrealtime s[4:5]
        s_cmp_ge_u32 s2, {NWG - NH}
        s_cbranch_scc1 L_wfuse""")
        if self.o.get("late"):
            m_, v_, n_ = self.o["late"]
            a(f"""s_and_b32 s3, s2, {m_}
            s_cmp_lg_u32 s3, {v_}
            s_cbranch_scc1 L_nl
            s_memrealtime s[4:5]
            s_waitcnt lgkmcnt(0)
            s_add_u32 s6, s4, {n_}
            L_lt:
            s_memrealtime s[4:5]
            s_waitcnt lgkmcnt(0)
            s_sub_u32 s7, s6, s4
            s_cmp_gt_i32 s7, 0
            s_cbranch_scc1 L_lt
            L_nl:""")
        if self.o.get("stamps"):
            a("s_memrealtime s[100:101]" if not self.o.get("cyc") else "s_memtime s[100:101]")
        self.mp = 2

    def vm_since(self, mark):
        return sum(1 for l in self.a.lines[mark:] if l.strip().startswith("buffer_"))

    def phase_a(self):
        a, o = self.a, self.o
        XR, XF, XA, ACC, G_, PK = 16, 34, 146, 110, 16, 164
        B4, XD = 16, 88
        VS, VSW, VR4, MXA, MXR, L8, TRU, TRQ, TRQ8, RK, TM = 200, 204, 208, 212, 213, 214, 215, 218, 221, 224, 228
        VK, VU = list(range(182, 193)), list(range(193, 200)) + list(range(104, 108))
        AQ1 = 200
        t0, t1, t2 = 250, 251, 227
        T = S_T
        WV, W10, UOFF, M1, PUB, M3 = 72, 70, 71, 69, 68, 65
        a(f"""v_and_b32 v0, 63, v0
        s_bfe_u32 {sr(S_B)}, s2, 0x10001
        s_lshr_b32 {sr(S_QB)}, s2, 2
        s_lshr_b32 {sr(T)}, {sr(S_W)}, 1
        s_xor_b32 {sr(T)}, {sr(T)}, s2
        s_andn2_b32 {sr(T)}, 1, {sr(T)}
        s_lshl1_add_u32 {sr(T+3)}, {sr(S_QB)}, {sr(T)}
        s_mul_i32 {sr(T)}, {sr(S_B)}, {NT}
        s_add_u32 {sr(T+1)}, {sr(T+3)}, {sr(T)}
        s_and_b32 {sr(T+2)}, {sr(S_W)}, 1
        s_lshl1_add_u32 {sr(T+2)}, {sr(T+1)}, {sr(T+2)}
        v_lshlrev_b32 {vr(V_DMA)}, 4, v0
        s_mul_i32 {sr(T+1)}, {sr(T+2)}, {16*288}
        s_mul_i32 {sr(S_LB)}, {sr(S_W)}, {BLK}
        s_add_u32 m0, {sr(S_LB)}, {L_XS}
        s_mov_b32 {sr(S_X+2)}, 2304000
        s_mov_b32 {sr(S_X+3)}, {sr(S_W1+3)}
        s_add_u32 {sr(S_CNT)}, {sr(T+1)}, 4096
        s_waitcnt lgkmcnt(0)
        s_mov_b64 {sr(S_X,2)}, s[56:57]""")
        for k in range(4): a(f"buffer_load_dwordx4 {vr(V_DMA)}, {sr(S_X,4)}, {sr(T+1)} offen offset:{1024*k} lds")
        a(f"s_add_u32 m0, {sr(S_LB)}, {L_XS + 4096}\ns_mov_b32 exec_hi, 0\nbuffer_load_dwordx4 {vr(V_DMA)}, {sr(S_X,4)}, {sr(S_CNT)} offen lds\ns_mov_b32 exec_hi, -1")
        mx = len(a.lines)
        a(f"""s_add_u32 {sr(S_LB)}, {sr(S_LB)}, {L_XS}
        s_and_b32 {sr(S_H)}, s2, 1
        s_lshl1_add_u32 {sr(S_TOWN)}, {sr(S_QB)}, {sr(S_H)}
        s_cmp_lt_u32 {sr(S_TOWN)}, {NT}
        s_cselect_b32 {sr(S_VAL)}, 1, 0
        s_add_u32 {sr(S_TOWN)}, {sr(S_TOWN)}, {sr(T)}""")
        SQ, SK, SU = S_W2, S_W1, S_XA
        self.srd(SU, 66, 67, 82944)
        self.srd(SQ, 58, 59, 41472)
        self.srd(SK, 60, 61, 41472)
        a(f"s_lshr_b32 {sr(T)}, s2, 3\ns_lshl_b32 {sr(T)}, {sr(T)}, 12\ns_lshl_b32 {sr(W10)}, {sr(S_W)}, 10\ns_add_u32 {sr(T)}, {sr(T)}, {sr(W10)}")
        a(f"buffer_load_dwordx4 v[252:255], {vr(V_DMA)}, {sr(SU,4)}, {sr(T)} offen")
        for srd_, rot in ((SQ, 82), (SK, 41)):
            a(f"s_add_u32 {sr(T+1)}, {sr(T)}, {(128 - rot) * 1024}\ns_and_b32 {sr(T+1)}, {sr(T+1)}, {127 * 1024}")
            a(f"buffer_load_dwordx4 v[252:255], {vr(V_DMA)}, {sr(srd_,4)}, {sr(T+1)} offen")
        self.srd(S_OUT, 74, 75, 2304000)
        self.srd(S_DB, 76, 77, 256)
        self.srd(S_WS, 78, 79, WS_END)
        def tlb():
            a(f"v_lshlrev_b32 v249, 21, v0")
            for ch in o.get("tlbw", "wdo"): a(f"buffer_load_dword v252, v249, {sr(dict(w=S_WS, d=S_DB, o=S_OUT)[ch],4)}, 0 offen")
        if o.get("tlb", 0) == 1: tlb()
        if o.get("tlb", 3) == 3:
            a(f"""s_bfe_u32 {sr(T)}, s2, 0x30003
            s_lshl_b32 {sr(T)}, {sr(T)}, 21
            v_mov_b32 v249, 0
            s_cmp_lt_u32 {sr(T)}, {5 << 21}
            s_cbranch_scc0 L_tl1
            buffer_load_dword v252, v249, {sr(S_WS,4)}, {sr(T)} offen
            s_branch L_tl3
            L_tl1:
            s_sub_u32 {sr(T)}, {sr(T)}, {5 << 21}
            s_cmp_lt_u32 {sr(T)}, {2 << 21}
            s_cbranch_scc0 L_tl2
            buffer_load_dword v252, v249, {sr(S_OUT,4)}, {sr(T)} offen
            s_branch L_tl3
            L_tl2:
            s_or_b32 s4, s4, 1
            v_lshlrev_b32 v249, 8, v0
            v_mov_b32 v250, s4
            s_lshl2_add_u32 s5, s2, {sr(S_W)}
            s_cmp_eq_u32 s5, {56 * 4}
            s_cbranch_scc0 L_tl4
            buffer_store_dword v250, v249, {sr(S_DB,4)}, 0 offen sc1
            s_branch L_tl3
            L_tl4:
            buffer_load_dword v252, v249, {sr(S_DB,4)}, 0 offen offset:128
            L_tl3:""")
            self.vm_adj = -3
        if o.get("tl4"):
            a(f"""s_mul_i32 {sr(T)}, {sr(S_TOWN)}, {TILE}
            v_lshlrev_b32 v249, 12, v0
            v_add_u32 v249, {sr(T)}, v249
            s_mov_b64 exec, 7
            buffer_load_dword v252, v249, {sr(S_WS,4)}, 0 offen
            s_mov_b64 exec, -1""")
        if o.get("stamps"): a(f"s_mov_b64 {sr(S_ST,2)}, s[100:101]"); self.stnames.append("start"); self.nst = 1
        self.stamp("xiss")
        a(f"""s_cmp_lt_u32 {sr(T+3)}, {NT}
        s_cselect_b32 {sr(WV)}, 1, 0
        s_mov_b32 {sr(WV+1)}, {sr(T+2)}
        s_mul_i32 {sr(UOFF)}, {sr(S_H)}, 288
        s_cmp_eq_u32 {sr(S_W)}, 0
        s_cselect_b32 {sr(M1)}, 0, {L_DUMP}
        s_cmp_lt_u32 {sr(S_W)}, 3
        s_cselect_b32 {sr(M3)}, {sr(W10)}, {L_DUMP}""")
        half = lambda g_: "s_mov_b32 exec_hi, 0\n" + g_ + "\ns_mov_b32 exec_hi, -1"
        gu = [f"s_add_u32 m0, {sr(W10 if k < 10 else M1)}, {L_WU + 4096*k}\ns_add_u32 {sr(S_CNT)}, {sr(UOFF)}, {4096*k + 288*(256*k//18)}\nbuffer_load_dwordx4 {vr(VU[k])}, {sr(SU,4)}, {sr(S_CNT)} offen lds" for k in range(11)]
        gu[10] = half(gu[10])
        gq = [f"s_add_u32 m0, {sr(W10 if k < 10 else M1)}, {L_WQ + 4096*k}\ns_add_u32 {sr(S_CNT)}, {sr(W10)}, {4096*k}\nbuffer_load_dwordx4 {vr(V_DMA)}, {sr(SQ,4)}, {sr(S_CNT)} offen lds" for k in range(11)]
        gq[10] = half(gq[10])
        gk = [f"s_add_u32 m0, {sr(W10 if k < 10 else M3)}, {L_WK + 4096*k}\ns_mov_b32 {sr(S_CNT)}, {4096*k - 16*(256*k//19)}\nbuffer_load_dwordx4 {vr(VK[k])}, {sr(SK,4)}, {sr(S_CNT)} offen lds" for k in range(11)]
        a(f"s_lshl_b32 {sr(T)}, {sr(S_W)}, 6\nv_add_u32 {vr(t0)}, {sr(T)}, v0\nv_lshlrev_b32 {vr(t1)}, 4, {vr(t0)}")
        self.voff_table(VU, 18, 576, t0)
        npre = o.get("npre", 3)
        a.bg, a.every, a.cnt = gu[:npre], o.get("evpre", 40), 0
        self.voff_table(VK, 19, 288, t0)
        xa0, xa1, xa2 = TM, TM + 1, TM + 2
        a(f"""v_and_b32 {vr(t0)}, 15, v0
        v_lshrrev_b32 {vr(t1)}, 5, v0
        v_lshlrev_b32 {vr(t1)}, 3, {vr(t1)}
        v_xor_b32 {vr(t1)}, {vr(t0)}, {vr(t1)}
        v_lshlrev_b32 {vr(t1)}, 4, {vr(t1)}
        v_lshrrev_b32 {vr(t2)}, 4, v0
        v_lshl_add_u32 {vr(V_KA)}, {vr(t2)}, 9, {vr(t1)}
        v_lshrrev_b32 {vr(t1)}, 3, {vr(t0)}
        v_lshlrev_b32 {vr(t1)}, 1, {vr(t1)}
        v_xor_b32 {vr(t1)}, {vr(t2)}, {vr(t1)}
        v_lshl_add_u32 {vr(t1)}, {vr(t0)}, 2, {vr(t1)}
        v_lshlrev_b32 {vr(V_KA+1)}, 3, {vr(t1)}
        v_lshlrev_b32 {vr(L8)}, 3, v0
        v_lshlrev_b32 {vr(MXR)}, 4, {vr(t0)}
        v_add_u32 {vr(MXR)}, {L_MX}, {vr(MXR)}
        v_add_u32 {vr(MXA)}, {sr(S_W)}, {vr(t2)}
        v_and_b32 {vr(MXA)}, 3, {vr(MXA)}
        v_lshl_add_u32 {vr(MXA)}, {vr(MXA)}, 8, {vr(MXR)}
        s_lshl_b32 {sr(T)}, {sr(S_W)}, 2
        v_add_u32 {vr(MXA)}, {sr(T)}, {vr(MXA)}
        v_mul_u32_u24 {vr(xa2)}, 288, {vr(t0)}
        v_lshl_add_u32 {vr(xa2)}, {vr(t2)}, 3, {vr(xa2)}
        v_add_u32 {vr(xa2)}, {sr(S_LB)}, {vr(xa2)}
        v_and_b32 {vr(t1)}, 1, {vr(t2)}
        v_lshlrev_b32 {vr(t1)}, 5, {vr(t1)}
        v_add_u32 {vr(xa0)}, {vr(xa2)}, {vr(t1)}
        v_xor_b32 {vr(t1)}, 32, {vr(t1)}
        v_add_u32 {vr(xa1)}, {vr(xa2)}, {vr(t1)}
        s_mul_i32 {sr(S_LB)}, {sr(S_W)}, {TILE}
        v_lshrrev_b32 {vr(t0)}, 2, v0
        v_bfe_u32 {vr(t1)}, v0, 1, 1
        v_lshlrev_b32 {vr(t1)}, 3, {vr(t1)}
        v_xor_b32 {vr(t1)}, {vr(t0)}, {vr(t1)}
        v_lshlrev_b32 {vr(t1)}, 4, {vr(t1)}
        v_and_b32 {vr(t2)}, 3, v0
        v_lshl_add_u32 {vr(t1)}, {vr(t2)}, 9, {vr(t1)}
        v_and_b32 {vr(V_VA)}, 1, v0
        v_lshl_add_u32 {vr(t1)}, {vr(V_VA)}, 3, {vr(t1)}
        s_and_b32 {sr(T)}, {sr(S_W)}, 1
        s_lshl_b32 {sr(T)}, {sr(T)}, 12
        s_add_u32 {sr(T+1)}, {sr(T)}, {sr(S_LB)}
        s_xor_b32 {sr(T)}, {sr(T)}, 4096
        s_add_u32 {sr(T)}, {sr(T)}, {sr(S_LB)}
        v_add_u32 {vr(V_VA)}, {sr(T)}, {vr(t1)}
        v_add_u32 {vr(V_VB)}, {sr(T+1)}, {vr(t1)}
        v_xor_b32 {vr(V_VA+1)}, 8, {vr(V_VA)}
        v_xor_b32 {vr(V_VB+1)}, 8, {vr(V_VB)}
        v_lshrrev_b32 {vr(t1)}, 5, v0
        v_lshlrev_b32 {vr(t1)}, 1, {vr(t1)}
        v_xor_b32 {vr(t1)}, {vr(t2)}, {vr(t1)}
        v_lshl_add_u32 {vr(t1)}, {vr(t0)}, 2, {vr(t1)}
        v_lshlrev_b32 {vr(t1)}, 3, {vr(t1)}
        v_add_u32 {vr(V_VR)}, {sr(S_LB)}, {vr(t1)}
        v_add_u32 {vr(V_DMA+1)}, 4096, {vr(V_DMA)}
        v_add_u32 {vr(V_DMA+2)}, 8192, {vr(V_DMA)}""")
        self.tr_addr(TRU, L_WU, True, t0)
        a(f"s_lshl_b32 {sr(T)}, {sr(S_W)}, 6\ns_add_u32 {sr(T)}, {sr(T)}, {L_WQ - L_WU}")
        for k in range(3):
            a(f"v_add_u32 {vr(TRQ+k)}, {sr(T)}, {vr(TRU+k)}\nv_add_u32 {vr(TRQ8+k)}, {L_WQ - L_WU + 256}, {vr(TRU+k)}")
        self.row_addr(RK + 2, L_WK + 8 * 4864, t0)
        a(f"""s_mul_i32 {sr(T)}, {sr(S_W)}, {2*4864}
        s_sub_u32 {sr(T)}, {sr(T)}, {8*4864}
        v_add_u32 {vr(t1)}, {sr(T)}, {vr(RK+2)}
        v_bfe_u32 {vr(t0)}, v0, 2, 1
        v_mul_u32_u24 {vr(t0)}, 4864, {vr(t0)}
        v_add_u32 {vr(RK)}, {vr(t1)}, {vr(t0)}
        v_sub_u32 {vr(RK+1)}, {vr(t1)}, {vr(t0)}""")
        for j in range(4):
            a(f"""s_add_u32 {sr(T)}, {sr(S_W)}, {j}
            s_and_b32 {sr(T)}, {sr(T)}, 3
            s_lshl_b32 {sr(T+1)}, {sr(T)}, 12
            s_add_u32 {sr(T+1)}, {sr(T+1)}, {L_XX}
            v_add_u32 {vr(VS+j)}, {sr(T+1)}, {vr(V_DMA)}
            s_lshl_b32 {sr(T+1)}, {sr(T)}, 9
            s_add_u32 {sr(T+1)}, {sr(T+1)}, {L_XR}
            v_add_u32 {vr(VR4+j)}, {sr(T+1)}, {vr(L8)}
            v_add_u32 {vr(VSW+j)}, {sr(W10)}, {vr(VS+j)}""")
        a(f"""s_sub_u32 {sr(T+2)}, 63, {sr(S_H)}
        s_add_u32 {sr(T+3)}, {sr(S_W)}, 60
        s_cmp_ge_u32 {sr(T+3)}, {sr(T+2)}
        s_cselect_b32 {sr(S_DUM)}, 4, 99
        s_mov_b32 {sr(S_REDO)}, 0
        s_mov_b32 {sr(S_TOFF)}, {sr(S_LB)}
        s_lshl_b32 {sr(PUB)}, {sr(S_TOWN)}, 8
        s_add_u32 {sr(PUB)}, {sr(PUB)}, {WS_F}
        s_and_b32 {sr(T)}, {sr(S_W)}, 1
        s_lshl_b32 {sr(T)}, {sr(T)}, 7
        s_add_u32 {sr(PUB)}, {sr(PUB)}, {sr(T)}
        s_lshr_b32 {sr(T)}, {sr(S_W)}, 1
        s_and_b32 {sr(T)}, {sr(T)}, {sr(S_VAL)}
        s_cmp_eq_u32 {sr(T)}, 1
        s_cselect_b32 {sr(PUB)}, {sr(PUB)}, 0x40000000
        s_lshl_b32 {sr(S_FB)}, s2, 8
        s_add_u32 {sr(S_FB)}, {sr(S_FB)}, {WS_F + 250*256}
        s_mul_i32 {sr(T)}, {sr(S_H)}, 1792
        s_sub_u32 {sr(T)}, {sr(T)}, 768
        s_mul_i32 {sr(T+1)}, {sr(S_H)}, 62
        s_cmp_eq_u32 {sr(S_QB)}, {sr(T+1)}
        s_cselect_b32 {sr(T)}, 0, {sr(T)}
        v_mov_b32 {vr(self.VPL)}, 0x40000000
        s_xor_b32 {sr(T+1)}, {sr(S_FB)}, 256
        s_add_u32 {sr(T)}, {sr(T)}, {sr(S_FB)}
        v_writelane_b32 {vr(self.VPL)}, {sr(S_FB)}, 0
        v_writelane_b32 {vr(self.VPL)}, {sr(T+1)}, 1
        v_writelane_b32 {vr(self.VPL)}, {sr(T)}, 2
        s_mov_b32 {sr(T)}, {WS_F + 502*256}
        s_mov_b32 {sr(T+1)}, {WS_F + 503*256}
        v_writelane_b32 {vr(self.VPL)}, {sr(T)}, 3
        v_writelane_b32 {vr(self.VPL)}, {sr(T+1)}, 4
        s_sub_u32 {sr(S_FB)}, {sr(S_FB)}, {L_PC}""")
        a.flush()
        if o.get("tlb", 0) == 2: tlb()
        self.stamp("pre")
        if o.get("es", 0) == 0: self.epi_setup()
        self.stamp("es")
        nx = self.vm_since(mx) + getattr(self, "vm_adj", 0)
        if o.get("touch", 1):
            a(f"""s_mov_b64 exec, 0
            s_cmp_eq_u32 {sr(S_W)}, 0
            s_cbranch_scc1 L_tr
            s_cmp_eq_u32 {sr(S_W)}, 1
            s_cbranch_scc1 L_t0
            s_cmp_eq_u32 {sr(S_W)}, 2
            s_cbranch_scc1 L_t1
            s_branch L_t2""")
            self.rare()
            a.raw(".p2align 12")
            a.label("L_tr")
            a("s_mov_b64 exec, -1")
        nlate = o.get("nlate", 0)
        for g_ in gu[npre:npre + nlate]: a(g_)
        a(f"s_waitcnt vmcnt({nx + nlate})")
        self.stamp("xarr")
        for s in range(4):
            a(f"ds_read_b64 {vr(XR+4*s,2)}, {vr(xa0)} offset:{64*s}\nds_read_b64 {vr(XR+4*s+2,2)}, {vr(xa1)} offset:{64*s}")
        a(f"ds_read_b64 {vr(XR+16,2)}, {vr(xa2)} offset:256")
        a(f"""s_and_b32 {sr(T)}, {sr(S_W)}, 1
        s_mul_i32 {sr(T+2)}, {sr(S_TOWN)}, {TILE}
        s_cmp_eq_u32 {sr(S_VAL)}, 1
        s_cselect_b32 {sr(T+2)}, {sr(T+2)}, 0x40000000
        s_lshl_b32 {sr(T+3)}, {sr(T)}, 8
        s_add_u32 {sr(T+3)}, {sr(T+3)}, {sr(T+2)}
        s_add_u32 {sr(T+4)}, {sr(T+3)}, 4096
        s_lshl_b32 {sr(T+5)}, {sr(T)}, 9
        s_add_u32 {sr(T+5)}, {sr(T+5)}, {sr(T+2)}
        s_add_u32 {sr(T+5)}, {sr(T+5)}, 8192
        s_waitcnt lgkmcnt(0)""")
        wl = gq + gk
        a.bg, a.every, a.cnt = gu[npre + nlate:] + [wl.pop(0) for _ in range(o.get("nql", 11))], o.get("evln", 5), 0
        self.ln_packed(XR, XF, XA, TM)
        a.flush()
        self.stamp("ln")
        a(f"s_cmp_lt_u32 {sr(S_W)}, 2\ns_cbranch_scc1 L_nop")
        for s in range(4):
            a(f"buffer_store_dwordx4 {vr(XA+4*s,4)}, {vr(V_KA)}, {sr(S_WS,4)}, {sr(T+3+(s>>1))} offen offset:{2048*(s&1)} {o.get('pfl', 'sc1')}")
        a(f"buffer_store_dwordx2 {vr(XA+16,2)}, {vr(V_KA+1)}, {sr(S_WS,4)}, {sr(T+5)} offen {o.get('pfl', 'sc1')}\ns_waitcnt vmcnt({5 + o.get('nql', 11)})\ns_branch L_bar1")
        a.label("L_nop")
        if o.get("touch", 1):
            a(f"s_mov_b64 exec, 0\ns_cmp_eq_u32 {sr(S_W)}, 0\ns_cbranch_scc1 L_t3\ns_branch L_t4")
            a.label("L_tr2")
            a("s_mov_b64 exec, -1")
        a(f"s_waitcnt vmcnt({o.get('nql', 11)})")
        a.label("L_bar1")
        self.stamp("pub")
        xw = [f"ds_write_b128 {vr(VS)}, {vr(XA+4*s,4)} offset:{1024*s}" for s in range(4)] + [f"ds_write_b64 {vr(VR4)}, {vr(XA+16,2)}"]
        self.stamp("tch")
        PA = 249
        a(f"""v_add_u32 {vr(V_KA)}, {sr(S_LB)}, {vr(V_KA)}
        v_add_u32 {vr(V_KA+1)}, {sr(S_LB)}, {vr(V_KA+1)}
        s_mul_i32 {sr(T)}, {sr(S_B)}, {NT}
        s_mul_i32 {sr(T+1)}, {sr(S_H)}, 63
        s_add_u32 {sr(T)}, {sr(T)}, {sr(T+1)}
        s_lshl_b32 {sr(T)}, {sr(T)}, 8
        s_add_u32 {sr(T)}, {sr(T)}, {WS_F}
        s_cmp_eq_u32 {sr(S_W)}, 0
        {"" if o.get("gatepos", 0) else f"s_cselect_b32 {sr(T)}, {sr(T)}, 0x40000000"}
        v_lshl_add_u32 {vr(PA)}, v0, 8, {sr(T)}
        {self.xa_srd()}
        s_waitcnt lgkmcnt(0)""")
        self.stamp("w1")
        a("s_barrier")
        self.stamp("bar1")
        m_b1 = len(a.lines)
        poll = lambda r: f"buffer_load_dword {vr(r)}, {vr(PA)}, {sr(S_WS,4)}, 0 offen sc1\nbuffer_load_dword {vr(r+2)}, {vr(PA)}, {sr(S_WS,4)}, 0 offen offset:128 sc1"

        def gate(lab, r, mask, younger):
            a(f"s_mov_b32 {sr(T+2)}, 0\ns_waitcnt vmcnt({younger})")
            a.label(lab)
            a(f"""v_cmp_ne_u32 vcc, {sr(S_N)}, {vr(r)}
            v_cmp_ne_u32 {sr(T+10,2)}, {sr(S_N)}, {vr(r+2)}
            s_add_u32 {sr(T+2)}, {sr(T+2)}, 1
            s_or_b64 vcc, vcc, {sr(T+10,2)}
            s_and_b64 vcc, vcc, {mask}
            s_cbranch_scc0 {lab}_ok
            s_sleep {o.get("slp", 4)}
            {poll(r)}
            s_waitcnt vmcnt(0)
            s_cmp_lt_u32 {sr(T+2)}, 0x40000
            s_cbranch_scc1 {lab}""")
            a.label(lab + "_ok")

        H, G_, UG, MS, CL = 16, 52, 208, 110, 104
        nup = o.get("nup", 5)
        at = {o.get("u0", 6) + o.get("usp", 6) * i: wl.pop(0) for i in range(nup)}
        for i in range(5): at[i] = xw[i]
        tagld = f"buffer_load_dword v253, off, {sr(S_DB,4)}, 0 sc1"
        tag1 = tagld.replace("sc1", o.get("tgf", "sc1")).strip()
        at[o.get("tgp", 5)] = tag1
        if o.get("es", 0) == 1:
            n_ = len(a.lines); self.epi_setup()
            el = [l.strip() for l in a.lines[n_:]]; del a.lines[n_:]
            for k in range(5, 42):
                if k in at: continue
                c_ = 0
                while el and c_ < o.get("esn", 2):
                    x = el.pop(0); at[k] = at.get(k, "") + x + "\n"; c_ += 1 if x.startswith("v_") else 0.5
            self.es_left = el
        self.gemm(self.tr_reads(TRU), XA, H, None, at=at)
        if o.get("es", 0) == 1:
            for x in self.es_left: a(x)
        self.stamp("up")
        last = lambda srd: max(i for i, l in enumerate(a.lines) if l.strip().startswith("buffer_load") and sr(srd, 4) in l) + 1
        assert not any(sr(SQ, 4) in x for x in wl)
        nq_ = self.vm_since(m_b1) + (5 if last(SQ) < m_b1 else 0) if last(SQ) < m_b1 else self.vm_since(last(SQ))
        a(f"s_waitcnt vmcnt({self.vm_since(m_b1) if last(SQ) < m_b1 else nq_}) lgkmcnt(0)" if False else "")
        if last(SQ) < m_b1:
            a(f"s_cmp_lt_u32 {sr(S_W)}, 2\ns_cbranch_scc1 L_bg0\ns_waitcnt vmcnt({5 + self.vm_since(m_b1)})\ns_branch L_bg1\nL_bg0:\ns_waitcnt vmcnt({self.vm_since(m_b1)})\nL_bg1:\ns_waitcnt lgkmcnt(0)\ns_barrier")
        else: a(f"s_waitcnt vmcnt({self.vm_since(last(SQ))}) lgkmcnt(0)\ns_barrier")

        def flag():
            n_ = self.vm_since(max(i for i, l in enumerate(a.lines) if l.strip() == tag1) + 1)
            a(f"v_lshrrev_b32 {vr(t0)}, 5, v0\nv_lshlrev_b32 {vr(t0)}, 30, {vr(t0)}\nv_lshl_add_u32 {vr(t0)}, v0, 2, {vr(t0)}\ns_mov_b32 {sr(T+5)}, 0\ns_waitcnt vmcnt({n_})")
            a.label("L_tag")
            a(f"""v_readfirstlane_b32 {sr(S_N)}, v253
            s_add_u32 {sr(T+5)}, {sr(T+5)}, 1
            s_cmp_lg_u32 {sr(S_N)}, 0
            s_cbranch_scc1 L_tag_ok
            {tagld}
            s_waitcnt vmcnt(0)
            s_cmp_lt_u32 {sr(T+5)}, 0x40000
            s_cbranch_scc1 L_tag""")
            a.label("L_tag_ok")
            a(f"v_mov_b32 {vr(t1)}, {sr(S_N)}\nbuffer_store_dword {vr(t1)}, {vr(t0)}, {sr(S_WS,4)}, {sr(PUB)} offen sc1")
            self.m_fl = len(a.lines)
            self.stamp("flag")
        self.stamp("barG")
        if o.get("atw"):
            a("s_waitcnt vmcnt(0)")
            self.stamp("ack")
        if o.get("census"):
            k_ = S_ST + 2 * self.stnames.index(o["census"][0])
            a(f"s_waitcnt lgkmcnt(0)\nv_mov_b32 v252, {sr(k_)}\ns_lshl_b32 {sr(T)}, s2, 2\ns_add_u32 {sr(T)}, {sr(T)}, {WS_DBG}\nv_mov_b32 v253, 0\nbuffer_store_dword v252, v253, {sr(S_WS,4)}, {sr(T)} offen sc1")

        def a_tr(t):
            ad, off = (TRQ, 32 * t) if t < 2 else (TRQ8, 0)
            return [f"ds_read_b64_tr_b16 {ar(AQ1+18*t+4*s+2*u,2)}, {vr(ad+u)} offset:{9216*s + off}" for s in range(4) for u in range(2)] + \
                   [f"ds_read_b64_tr_b16 {ar(AQ1+18*t+16,2)}, {vr(ad+2)} offset:{36864 + off}"]

        def a_row(t):
            off = 4864 * t if t < 2 else 0
            return [f"ds_read_b64 {ar(A_Q+18*t+4*s+2*u,2)}, {vr(RK+t)} offset:{off + 64*s + 32*u}" for s in range(4) for u in range(2)] + \
                   [f"ds_read_b64 {ar(A_Q+18*t+16,2)}, {vr(RK+t)} offset:{off + 256}"]
        bq = lambda j, d=0: [f"ds_read_b128 {ar(18*j+4*s,4)}, {vr(VS+j)} offset:{d + 1024*s}" for s in range(4)] + [f"ds_read_b64 {ar(18*j+16,2)}, {vr(VR4+j)} offset:{d}"]

        def post(u, scale, d):
            L = [f"v_mul_f32 {vr(ACC+4*u+i)}, {sr(T+4)}, {vr(ACC+4*u+i)}" for i in range(4)] if scale else []
            L += [f"v_cvt_pk_bf16_f32 {vr(PK + (4*(u&3) + 2*(u>>2) if u < 8 else 16) + h)}, {vr(ACC+4*u+2*h)}, {vr(ACC+4*u+2*h+1)}" for h in range(2)]
            if 4 <= u < 8: L.append(f"ds_write_b128 {vr(VSW+u-4)}, {vr(PK+4*(u-4),4)} offset:{d}")
            if u == 8: L.append(f"ds_write_b64 {vr(VR4)}, {vr(PK+16,2)} offset:{d}")
            return L
        fl2 = o.get("fl2", 1)
        self.m_fl = 0
        xd = [f"ds_read_b128 {vr(XD+4*j,4)}, {vr(VSW+j)}" for j in range(4)]
        self.gemm_u(AQ1, ar, [("v", XA), ("a", 18), ("a", 36), ("a", 54)], ACC, a_tr, lambda j: bq(j) if j else None, lambda u: post(u, False, L_QD),
                    vm_items=wl, other=xd, vmsp=o.get("vmsp", 3), at={o.get("flp", 22): flag} if fl2 < 0 else {})
        self.stamp("g1")
        for i in range(4): a(f"v_mov_b32 {vr(CL+i)}, -1")
        a(f"s_lshl2_add_u32 {sr(T+2)}, s2, {sr(S_W)}\ns_mul_i32 {sr(T+2)}, {sr(T+2)}, 2560\ns_add_u32 {sr(T+2)}, {sr(T+2)}, {WS_IB}")
        a(f"s_mov_b32 {sr(T+4)}, {f32(LOG2E / 12.0)}\ns_waitcnt vmcnt({self.vm_since(max(last(SK), self.m_fl)) + (last(SK) < self.m_fl)}) lgkmcnt(0)\ns_barrier")
        T2 = T + 2
        clr = [f"buffer_store_dwordx4 {vr(CL,4)}, {vr(V_DMA)}, {sr(S_WS,4)}, {sr(T+2)} offen sc1",
               f"buffer_store_dwordx4 {vr(CL,4)}, {vr(V_DMA)}, {sr(S_WS,4)}, {sr(T+2)} offen offset:1024 sc1",
               f"buffer_store_dwordx2 {vr(CL,2)}, {vr(L8)}, {sr(S_WS,4)}, {sr(T+2)} offen offset:2048 sc1"]
        self.stamp("bar2")
        gp_ = o.get("gatepos", 0)
        cl1 = not o.get("cll", 1)
        self.gemm_u(A_Q, ar, [("a", 18 * j) for j in range(4)], ACC, a_row, lambda j: bq(j, L_QD), lambda u: post(u, True, 0), vm_items=((clr if cl1 else []) + [poll(252)] if gp_ == 0 else clr if cl1 else []), vm0=o.get("pg", 6), vmsp=o.get("csp", 3),
                    lastk=o.get("plk", 26) if gp_ == 0 else 0, at={fl2: flag} if fl2 >= 0 else {})
        self.stamp("g2")
        p = lambda r: vr(r, 2)
        CC = TM
        for j in range(4): a(f"v_dot2_f32_bf16 {vr(CC+j)}, {vr(PK+4*j)}, {vr(XD+4*j)}, 0")
        for i in range(2): a(f"v_dot2_f32_bf16 {vr(CC)}, {vr(PK+16+i)}, {vr(XA+16+i)}, {vr(CC)}")
        for i in range(1, 4):
            for j in range(4): a(f"v_dot2_f32_bf16 {vr(CC+j)}, {vr(PK+4*j+i)}, {vr(XD+4*j+i)}, {vr(CC+j)}")
        QE = TRQ
        a(f"""s_xor_b32 {sr(T+1)}, {sr(self.NB)}, 1
        v_add_u32 {vr(t0)}, {L_XX}, {vr(V_DMA)}
        v_lshl_add_u32 {vr(QE)}, {sr(T+1)}, 12, {vr(t0)}
        v_lshl_add_u32 {vr(QE+1)}, {sr(self.NB)}, 12, {vr(t0)}""")
        self.treduce(CC)
        a(f"""ds_write_b32 {vr(MXA)}, {vr(CC)}
        v_add_u32 {vr(t0)}, {L_XR}, {vr(L8)}
        v_lshl_add_u32 {vr(QE+2)}, {sr(T+1)}, 9, {vr(t0)}
        v_lshl_add_u32 {vr(QE+3)}, {sr(self.NB)}, 9, {vr(t0)}
        v_lshl_add_u32 {vr(QE+4)}, {sr(T+1)}, 8, {vr(MXR)}
        v_lshl_add_u32 {vr(QE+5)}, {sr(self.NB)}, 8, {vr(MXR)}
        s_sub_u32 {sr(T+5)}, 63, {sr(S_H)}
        s_bfm_b64 {sr(T+8,2)}, {sr(T+5)}, 0
""")
        if gp_ == 0:
            a(f"s_cmp_lg_u32 {sr(S_W)}, 0\ns_cbranch_scc1 L_ga_ok")
            gate("L_ga", 252, sr(T + 8, 2), 0)
        else: a(poll(252))
        a("s_waitcnt lgkmcnt(0)\ns_barrier")
        self.stamp("bar3")
        c1 = -2.0 * math.sqrt(2.0 / math.pi) * LOG2E
        c2 = c1 * 0.044715
        qrd = [f"ds_read_b128 {vr(MS+4*qb,4)}, {vr(QE+4+(qb&1))} offset:{512*(qb>>1)}" for qb in range(4)]
        for qb in range(4):
            qrd += [f"ds_read_b128 {ar(A_Q+18*qb+4*s,4)}, {vr(QE+(qb&1))} offset:{8192*(qb>>1) + 1024*s}" for s in range(4)]
            qrd.append(f"ds_read_b64 {ar(A_Q+18*qb+16,2)}, {vr(QE+2+(qb&1))} offset:{1024*(qb>>1)}")
        tg = self.tile_groups(0) + self.tile_groups(1) + self.tile_groups(2)[:8]
        n0 = o.get("n0", 3) if gp_ == 0 else 0
        for x in tg[:n0]: a(x)
        a(f"v_mov_b32 {vr(CC)}, {f32(c1)}\nv_mov_b32 {vr(CC+2)}, {f32(c2)}\nv_mov_b32 {vr(CC+4)}, 1.0")
        nq1, nt1 = (o.get("nq1", 8), o.get("nt1", 5)) if gp_ == 0 else (o.get("nq1", 16), 0)
        bgl = []
        for i in range(max(nq1 // 2, nt1)):
            if 2 * i < nq1: bgl.append(qrd[2 * i] + "\n" + qrd[2 * i + 1])
            if i < nt1: bgl.append(tg[n0 + i])
        tg, qrd = tg[n0 + nt1:], qrd[nq1:]
        a.bg, a.every, a.cnt = bgl, 54 // (len(bgl) + 1), 0
        for i in range(18): a(f"v_pk_mul_f32 {p(G_+2*i)}, {p(H+2*i)}, {p(H+2*i)}")
        for i in range(18): a(f"v_pk_fma_f32 {p(G_+2*i)}, {p(G_+2*i)}, {p(CC+2)}, {p(CC)} op_sel_hi:[1,0,0]")
        for i in range(18): a(f"v_pk_mul_f32 {p(G_+2*i)}, {p(G_+2*i)}, {p(H+2*i)}")
        a.flush()
        if gp_:
            self.stamp("ge0")
            gate("L_ga", 252, sr(T + 8, 2), 0)
            for x in tg[:2]: a(x)
            tg = tg[2:]
        self.stamp("ge1")
        esp = o.get("esp", 3 if gp_ else 4)
        for i in range(36):
            a(f"v_exp_f32 {vr(G_+i)}, {vr(G_+i)}")
            if i % esp == 1 and tg: a(tg.pop(0))
            if i % 8 == 3 and qrd: a(qrd.pop(0)); a(qrd.pop(0))
        self.stamp("ge2")
        for i in range(18): a(f"v_pk_add_f32 {p(G_+2*i)}, {p(G_+2*i)}, {p(CC+4)} op_sel_hi:[1,0]")
        for i in range(36):
            a(f"v_rcp_f32 {vr(G_+i)}, {vr(G_+i)}")
            if i % esp == 1 and tg: a(tg.pop(0))
            if i % 8 == 3 and qrd: a(qrd.pop(0)); a(qrd.pop(0))
        assert not tg and not qrd
        idx = [i for i, l in enumerate(a.lines) if l.strip().startswith("buffer_load") and l.rstrip().endswith("lds")]
        m_t0, m_t1 = idx[-18] + 1, idx[-9] + 1
        for i in range(18): a(f"v_pk_mul_f32 {p(H+2*i)}, {p(G_+2*i)}, {p(H+2*i)}")
        a(f"""s_mul_i32 {sr(T)}, {sr(WV+1)}, {BLK}
        s_cmp_eq_u32 {sr(S_H)}, 1
        s_cbranch_scc1 L_ln2
        s_add_u32 {sr(T)}, {sr(T)}, {WS_U}""")
        for i in range(18): a(f"v_cvt_pk_bf16_f32 {vr(UG+i)}, {vr(H+2*i)}, {vr(H+2*i+1)}")
        a("s_branch L_ug")
        a.label("L_ln2")
        a(f"s_add_u32 {sr(T)}, {sr(T)}, {WS_G}")
        self.ln_f32(H, UG, TM)
        a.label("L_ug")
        self.stamp("ge3")
        a(f"""s_cmp_eq_u32 {sr(WV)}, 1
        s_cselect_b32 {sr(S_UG)}, {sr(T)}, 0x40000000
        s_waitcnt vmcnt({self.vm_since(m_t0)}) lgkmcnt(0)""")
        for x in self.k_reads(0, V_V): a(x)
        self.ugs = [f"buffer_store_dwordx4 {vr(UG+4*s,4)}, {vr(V_DMA)}, {sr(S_WS,4)}, {sr(S_UG)} offen offset:{1024*s} sc1" for s in range(4)]
        self.ugs.append(f"buffer_store_dwordx2 {vr(UG+16,2)}, {vr(self.VL8)}, {sr(S_WS,4)}, {sr(S_UG)} offen sc1")
        for qb in range(4): a(f"v_pk_add_f32 {p(MS+4*qb)}, {p(MS+4*qb)}, {p(MS+4*qb+2)} neg_lo:[1,1] neg_hi:[1,1]")
        for qb in range(4): a(f"v_add_f32 {vr(self.MK+qb)}, {vr(MS+4*qb)}, {vr(MS+4*qb+1)}")
        a(f"v_lshlrev_b32 {vr(t1)}, 8, v0\nv_lshlrev_b32 v231, 2, v0\nv_add_u32 v231, {L_PC}, v231\nds_write_b32 v231, {vr(t1)}")
        self.loop_init(False)
        self.n_t1 = self.vm_since(m_t1)
        self.stamp("ug")

    def loop_init(self, part):
        a = self.a
        if part:
            for qb in range(4):
                for i in range(4): a(f"v_mov_b32 {vr(V_CI+4*qb+i)}, {vr(self.MK+qb)}")
            return
        for k in range(7): a(f"v_add_u32 {vr(V_HI+k)}, {2*SLOT}, {vr(V_KA+k if k < 5 else V_VB+k-5)}")
        a(f"v_add_u32 {vr(self.VS0)}, {sr(S_LB)}, {vr(V_DMA)}\nv_add_u32 {vr(self.VS0R)}, {sr(S_LB)}, {vr(self.VL8)}\ns_mov_b32 {sr(S_CNT)}, 0\ns_mov_b32 {sr(S_INC)}, {4*TILE}")
        for i in range(4): a(f"v_mov_b32 {vr(V_L+i)}, 0")
        for i in range(4): a(f"v_mov_b32 {vr(226+i)}, -1")
        a(f"""s_lshl2_add_u32 {sr(S_CL)}, s2, {sr(S_W)}
        s_mul_i32 {sr(S_CL)}, {sr(S_CL)}, 2560
        s_lshl_b32 {sr(S_CL+1)}, {sr(S_REDO)}, 30
        s_add_u32 {sr(S_CL)}, {sr(S_CL)}, {sr(S_CL+1)}
        s_add_u32 {sr(S_CL)}, {sr(S_CL)}, {WS_IB}
        s_sub_u32 {sr(S_CL+1)}, {sr(S_CL)}, 2048""")
        a(f"v_mov_b32 v207, {sr(S_N)}\nv_mov_b32 {vr(self.VPL+1)}, 1\nv_lshlrev_b32 v231, 2, v0\nv_add_u32 v231, {L_PC}, v231")

    def head(self):
        a, o = self.a, self.o
        a.label("L_go")
        self.loop_init(True)
        a("s_waitcnt lgkmcnt(0)\ns_barrier")
        self.stamp("bar5")
        base = self.qk_mfmas(0)
        pick = lambda s_, kb, qb: base[8 * s_ + 4 * kb + qb].replace(vr(V_K + 8 * s_ + 4 * kb, 4) + ",", vr(V_V + 8 * s_ + 4 * kb, 4) + ",").replace(vr(V_K + 32 + 2 * kb, 2) + ",", vr(V_V + 32 + 2 * kb, 2) + ",")
        mf, fin = [], {}
        for qb, s_ in [(0, 0), (0, 1), (0, 2), (0, 3), (1, 0), (1, 1), (0, 4), (1, 2), (1, 3), (2, 0), (2, 1), (1, 4), (2, 2), (2, 3), (3, 0), (3, 1), (2, 4),
                       (3, 2), (3, 3), (3, 4)]:
            for kb in range(2):
                fin[qb, kb] = len(mf)
                mf.append(("s_nop 3\n" if (qb, s_, kb) == (3, 4, 0) else "") + pick(s_, kb, qb))
        enew = [e[1] for g in range(40, 76) for e in self.gaps[g] if e[0] == "E"]
        items = self.e_items(0, enew, lambda qb, j: 0, lambda qb: 999)
        for it, e in zip(items, enew):
            if e[0] == "e": it["am"] = fin[e[1], e[2] // 4]
        dm = []
        for k, (slot, j) in enumerate([(2, 8)] + [(3, j) for j in range(9)]):
            g_ = 1 + o.get("hsp", 4) * k
            if j % 4 == 0: dm.append(dict(t=f"s_add_u32 m0, {sr(S_LB)}, {slot*SLOT + 4096*(j//4)}", c=0, lo=g_ - 1, hi=g_ - 1))
            dm.append(dict(t=f"buffer_load_dwordx4 {vr(V_DMA + j//4)}, {sr(S_XA,4)}, {sr(S_TOFF)} offen offset:{1024*(j%4)} lds", c=8, lo=g_, hi=g_))
            if j == 8: dm.append(dict(t=f"s_add_u32 {sr(S_TOFF)}, {sr(S_TOFF)}, {4*TILE}", c=0, lo=g_ + 1, hi=g_ + 1))
        nh = o.get("ugh", 2) if not o.get("ugl", 1) else 0
        for k in range(nh): dm.append(dict(t=self.ugs[k], c=8, lo=3 + 16 * k, hi=3 + 16 * k))
        a(f"s_waitcnt vmcnt({self.n_t1})")
        left = self.pack(mf, items + dm + [dict(t=x, c=4, lo=i // 2, nds=2) for i, x in enumerate(self.k_reads(1))])
        print("head overflow", self.over, "left", len(left))
        left.sort(key=lambda x: not x.startswith("v_exp"))
        last = a.lines[-1].strip()
        for x in left:
            if last.startswith("v_exp") and not x.startswith("v_exp") and (last.split()[1].rstrip(",") + ",") in (x + ","): a("s_nop 0")
            a(x); last = x
        a("s_waitcnt lgkmcnt(0)")

    def tile_groups(self, slot):
        out = []
        for j in range(9):
            g = ""
            if j % 4 == 0: g = f"s_add_u32 m0, {sr(S_LB)}, {slot*SLOT + 4096*(j//4)}\ns_nop 0\n"
            g += f"buffer_load_dwordx4 {vr(V_DMA + j//4)}, {sr(S_XA,4)}, {sr(S_TOFF)} offen offset:{1024*(j%4)} lds"
            if j == 8: g += f"\ns_add_u32 {sr(S_TOFF)}, {sr(S_TOFF)}, {4*TILE}"
            out.append(g)
        return out

    def first_tiles(self):
        pass

    def wfuse(self):
        a = self.a
        BF, ACC, AF, TM, AD = 88, 108, 144, 208, 240
        LA, LB_, LM = 0, 44032, 88064
        T = S_T
        a.label("L_wfuse")
        a(f"s_add_u32 s2, s2, {NH}\ns_cmp_ge_u32 s2, {NH}\ns_cbranch_scc1 L_end")
        a(f"v_lshrrev_b32 v1, 6, v0\nv_and_b32 v0, 63, v0\nv_readfirstlane_b32 {sr(S_W)}, v1\nv_lshlrev_b32 {vr(V_DMA)}, 4, v0\ns_waitcnt lgkmcnt(0)")
        self.srd(S_WS, 78, 79, WS_END)
        self.srd(S_DB, 76, 77, 256)
        self.wf0 = 0
        self.srd(S_X, 72, 73, 82944)
        self.srd(S_W2, 62, 63, 41472)
        a(f"""s_cmp_eq_u32 s2, {self.wf0}
        s_cselect_b32 {sr(S_W1)}, s64, s70
        s_cselect_b32 {sr(S_W1+1)}, s65, s71
        s_mov_b32 {sr(S_W1+2)}, 41472
        s_mov_b32 {sr(S_W1+3)}, 0x20000
        s_cselect_b32 {sr(T+4)}, 0, 41472""")
        self.dma_rows([(S_W1, "0", LA), (S_W2, "0", LB_)], 19, 288, TM + 4, TM + 5, 11, 3, "L_wf1")
        a(f"s_lshl_b32 {sr(T)}, {sr(S_W)}, 10\ns_add_u32 {sr(T+2)}, {sr(T)}, {sr(T+4)}")
        for k in range(11):
            if k == 10: a(f"s_cmp_ge_u32 {sr(S_W)}, 1\ns_cbranch_scc1 L_wf2")
            a(f"s_add_u32 m0, {sr(T)}, {LM + 4096*k}\ns_add_u32 {sr(T+1)}, {sr(T+2)}, {4096*k}")
            a(f"buffer_load_dwordx4 {vr(V_DMA)}, {sr(S_X,4)}, {sr(T+1)} offen lds")
        a.label("L_wf2")
        self.srd(S_DW, 68, 69, 864)
        a(f"""v_and_b32 {vr(TM)}, 15, v0
        v_lshlrev_b32 {vr(TM+2)}, 4, {vr(TM)}
        v_lshlrev_b32 {vr(TM)}, 1, {vr(TM)}
        v_bfe_u32 {vr(TM+3)}, v0, 4, 1
        v_lshl_add_u32 {vr(TM+1)}, {vr(TM+3)}, 7, {vr(TM)}
        v_lshl_add_u32 {vr(TM+2)}, {vr(TM+3)}, 11, {vr(TM+2)}
        v_and_b32 {vr(TM+3)}, 1, v0
        v_lshlrev_b32 {vr(TM+3)}, 4, {vr(TM+3)}
        v_bfe_i32 {vr(TM+4)}, v0, 1, 1
        v_not_b32 {vr(TM+5)}, {vr(TM+4)}""")
        for k in range(3):
            for i in range(5): a(f"buffer_load_ushort {vr(16+5*k+i)}, {vr(TM+1 if i < 4 else TM)}, {sr(S_DW,4)}, 0 offen offset:{288*k + (32*i if i < 4 else 256)}")
        a(f"s_mov_b32 {sr(T+1)}, {WS_DWF}\ns_waitcnt vmcnt(0)")
        for f in range(15):
            a(f"v_lshlrev_b32 {vr(16+f)}, {vr(TM+3)}, {vr(16+f)}\nv_and_b32 {vr(32+2*f)}, {vr(TM+5)}, {vr(16+f)}\nv_and_b32 {vr(33+2*f)}, {vr(TM+4)}, {vr(16+f)}")
        for r_ in range(8): a(f"buffer_store_dwordx{4 if r_ < 7 else 2} {vr(32+4*r_, 4 if r_ < 7 else 2)}, {vr(TM+2)}, {sr(S_WS,4)}, {sr(T+1)} offen offset:{256*r_} sc1")
        self.tr_addr(AD, LM, False, TM + 8)
        self.row_addr(AD + 3, LA, TM + 8)
        a(f"v_add_u32 {vr(AD+5)}, {LB_}, {vr(AD+3)}")
        a(f"v_lshlrev_b32 {vr(AD+4)}, 3, v0")
        a(f"""s_lshr_b32 {sr(T)}, {sr(S_W)}, 1
        s_lshl_b32 {sr(T)}, {sr(T)}, 6
        s_and_b32 {sr(T+1)}, {sr(S_W)}, 1
        s_lshl_b32 {sr(T+1)}, {sr(T+1)}, 3
        s_add_u32 {sr(T)}, {sr(T)}, {sr(T+1)}
        v_and_b32 {vr(AD+6)}, 3, v0
        v_lshlrev_b32 {vr(AD+6)}, 3, {vr(AD+6)}
        v_add_u32 {vr(AD+7)}, {sr(T)}, {vr(AD+6)}""")
        for k in range(3): a(f"v_add_u32 {vr(AD+k)}, {vr(AD+7)}, {vr(AD+k)}")
        a(f"s_mov_b32 {sr(S_CNT)}, {sr(S_W)}")
        a("s_waitcnt vmcnt(0)\ns_barrier")
        a.label("L_wfl")
        for s in self.tr_reads(AD, vr)(0, BF): a(s)
        a("s_waitcnt lgkmcnt(0)")
        self.gemm(self.row_reads(AD + 3), BF, ACC, AF)
        for i in range(18): a(f"v_cvt_pk_bf16_f32 {vr(BF+i)}, {vr(ACC+2*i)}, {vr(ACC+2*i+1)}")
        a(f"s_cmp_eq_u32 s2, {self.wf0}\ns_cbranch_scc0 L_wf3")
        self.gemm(self.row_reads(AD + 5), BF, ACC, AF)
        for i in range(18): a(f"v_cvt_pk_bf16_f32 {vr(BF+i)}, {vr(ACC+2*i)}, {vr(ACC+2*i+1)}")
        a.label("L_wf3")
        a(f"""s_mul_i32 {sr(T)}, {sr(S_CNT)}, {BLK}
        s_add_u32 {sr(T)}, {sr(T)}, {sr(T+4)}
        s_add_u32 {sr(T)}, {sr(T)}, {WS_WF}
        s_add_u32 {sr(T+1)}, {sr(T)}, 4096""")
        self.store_block(BF, V_DMA, AD + 4, S_WS, T, T + 1, "sc1")
        for k in range(3): a(f"v_add_u32 {vr(AD+k)}, 128, {vr(AD+k)}")
        a(f"s_add_u32 {sr(S_CNT)}, {sr(S_CNT)}, 4\ns_cmp_lt_u32 {sr(S_CNT)}, 8\ns_cbranch_scc1 L_wfl")
        for k in range(3): a(f"v_sub_u32 {vr(AD+k)}, {vr(AD+k)}, {vr(AD+6)}")
        a(f"s_cmp_eq_u32 {sr(S_CNT)}, 8\ns_cbranch_scc1 L_wfl")
        a(f"""s_waitcnt vmcnt(0)
        s_barrier
        s_cmp_lg_u32 {sr(S_W)}, 0
        s_cbranch_scc1 L_end
        s_mov_b32 {sr(T+2)}, 0""")
        a.label("L_wtag")
        a(f"""buffer_load_dword {vr(TM)}, off, {sr(S_DB,4)}, 0 sc1
        s_add_u32 {sr(T+2)}, {sr(T+2)}, 1
        s_waitcnt vmcnt(0)
        v_readfirstlane_b32 {sr(T)}, {vr(TM)}
        s_cmp_lt_u32 {sr(T+2)}, 0x40000
        s_cselect_b32 {sr(T)}, {sr(T)}, 1
        s_cmp_eq_u32 {sr(T)}, 0
        s_cbranch_scc1 L_wtag
        v_lshlrev_b32 {vr(TM+1)}, 2, v0
        s_lshl_b32 {sr(T)}, s2, 8
        s_add_u32 {sr(T)}, {sr(T)}, {WS_F + 502*256}
        buffer_store_dword {vr(TM)}, {vr(TM+1)}, {sr(S_WS,4)}, {sr(T)} offen sc1
        s_endpgm""")

    def dump_stamps(self):
        a = self.a
        if self.o.get("census"):
            key, mode, m_, v_ = self.o["census"]
            a(f"""s_cmp_lg_u32 s2, 100
            s_cbranch_scc1 L_end
            v_lshlrev_b32 v16, 2, v0
            s_mov_b32 s4, {WS_DBG}""")
            for k in range(4): a(f"buffer_load_dword v{20+k}, v16, {sr(S_WS,4)}, s4 offen offset:{256*k} sc1")
            a(f"s_waitcnt vmcnt(0)\nv_readlane_b32 s8, v21, 36\ns_mov_b32 s9, 0x80000000\ns_mov_b32 s10, 0x7fffffff\ns_mov_b32 s11, 0\ns_mov_b32 s17, 0")
            for k in range(4):
                a(f"s_mov_b32 s5, 0")
                a.label(f"L_cs{k}")
                a(f"""v_readlane_b32 s6, v{20+k}, s5
                s_add_u32 s7, s5, {64*k}
                s_sub_u32 s6, s6, s8
                s_and_b32 s16, s7, {m_}
                s_cmp_lg_u32 s16, {v_}
                s_cbranch_scc1 L_cn{k}
                s_min_i32 s10, s10, s6
                s_cmp_gt_i32 s6, {self.o.get("thr", 150)}
                s_addc_u32 s17, s17, 0
                s_cmp_gt_i32 s6, s9
                s_cselect_b32 s9, s6, s9
                s_cselect_b32 s11, s7, s11""")
                a.label(f"L_cn{k}")
                a(f"s_add_u32 s5, s5, 1\ns_cmp_lt_u32 s5, {64 if k < 3 else 60}\ns_cbranch_scc1 L_cs{k}")
            a({"arg": "s_lshl_b32 s6, s11, 3", "range": "s_sub_u32 s6, s9, s10\ns_lshl_b32 s6, s6, 1", "zero": "s_mov_b32 s6, 0", "cnt": "s_lshl_b32 s6, s17, 4",
               "max": "s_lshl_b32 s6, s9, 1"}[mode])
            a("s_add_u32 s6, s6, 1000\ns_memrealtime s[4:5]\ns_waitcnt lgkmcnt(0)\ns_add_u32 s6, s6, s4")
            a.label("L_echo")
            a("s_memrealtime s[4:5]\ns_waitcnt lgkmcnt(0)\ns_sub_u32 s7, s6, s4\ns_cmp_gt_i32 s7, 0\ns_cbranch_scc1 L_echo")
            return
        if self.o.get("echo"):
            if self.o["echo"][0] == "skew":
                a(f"v_mov_b32 v16, 4\nbuffer_load_dword v17, v16, {sr(S_DB,4)}, 0 offen sc1\ns_waitcnt vmcnt(0)\nv_readfirstlane_b32 s98, v17\ns_not_b32 s98, s98")
                x, y = 98, S_ST + 2 * self.stnames.index(self.o["echo"][1])
            else:
                x, y = [S_ST + 2 * self.stnames.index(n) for n in self.o["echo"]]
            lo, hi = self.o.get("echo_ids", (0, 999))
            a(f"""s_cmp_eq_u32 {sr(S_VAL)}, 0
            s_cbranch_scc1 L_end
            s_cmp_lt_u32 s2, {lo}
            s_cbranch_scc1 L_end
            s_cmp_ge_u32 s2, {hi}
            s_cbranch_scc1 L_end
            s_and_b32 s6, s2, {self.o.get("echo_m", 0)}
            s_cmp_lg_u32 s6, {self.o.get("echo_v", 0)}
            s_cbranch_scc1 L_end
            s_memrealtime s[4:5]
            s_waitcnt lgkmcnt(0)
            s_sub_u32 s6, {sr(y)}, {sr(x)}
            s_mul_i32 s6, s6, {self.o.get("echo_mul", 1)}
            s_lshr_b32 s6, s6, {self.o.get("echo_shr", 0)}
            s_add_u32 s6, s6, {self.o.get("echo_add", 0)}
            s_add_u32 s6, s6, s4""")
            a.label("L_echo")
            a("s_memrealtime s[4:5]\ns_waitcnt lgkmcnt(0)\ns_sub_u32 s7, s6, s4\ns_cmp_gt_i32 s7, 0\ns_cbranch_scc1 L_echo")
            return
        if self.o.get("dbgst"):
            a("s_waitcnt vmcnt(0)")
            self.stamp("done")
            a("s_waitcnt lgkmcnt(0)\ns_mov_b64 exec, 1")
            slots = [1, 2, 3, 4, 5, 6, 7, 9, 11, 12, 13, 14, 15]
            a(f"s_not_b32 {sr(S_T)}, {sr(S_ST)}\nv_mov_b32 v16, {sr(S_T)}\nv_mov_b32 v17, 4\nbuffer_atomic_umax v16, v17, {sr(S_DB,4)}, 0 offen sc1")
            for i in range(min(self.nst, 12)):
                a(f"v_mov_b32 v{18+2*i}, {sr(S_ST+2*i)}\nv_mov_b32 v{19+2*i}, {4*slots[i+1]}\nbuffer_atomic_umax v{18+2*i}, v{19+2*i}, {sr(S_DB,4)}, 0 offen sc1")
            return
        if not self.o.get("stamps"): return
        T = S_T
        a(f"""s_waitcnt lgkmcnt(0)
        s_lshl_b32 {sr(T)}, s2, 2
        s_add_u32 {sr(T)}, {sr(T)}, {sr(S_W)}
        s_lshl_b32 {sr(T)}, {sr(T)}, 7
        s_add_u32 {sr(T)}, {sr(T)}, {WS_DBG}
        v_mov_b32 v1, 0""")
        for i in range(26): a(f"v_mov_b32 {vr(16+i)}, {sr(S_ST+i)}")
        for i in range(7): a(f"buffer_store_dwordx4 {vr(16+4*i,4)}, v1, {sr(S_WS,4)}, {sr(T)} offen offset:{16*i}")

    def build(self):
        a = self.a
        self.stnames = []
        a.raw(f"; @launch grid=({NWG},1,1) block=(256,1,1) lds={LDS_TOTAL}")
        a.raw('.amdgcn_target "amdgcn-amd-amdhsa--gfx950"')
        a.raw(".text")
        a.raw(f".globl {NAME}")
        a.raw(".p2align 12")
        self.entry()
        self.phase_a()
        self.rest()
        a.label("L_fin")
        self.dump_stamps()
        a.label("L_end")
        a("s_endpgm")
        self.poll2()
        if not self.o.get("touch", 1): self.rare()
        a.label("L_dummy")
        self.fallback()
        self.wfuse()
        a.raw('.section .rodata,"a"')
        a.raw(".p2align 6")
        a.raw(kernel_desc(NAME, 512, 102, 256))
        return a.text()

    def S(self, buf, qb, i=0): return V_S + buf * 32 + qb * 8 + i
    def P(self, buf, qb, i=0): return V_P + buf * 16 + qb * 4 + i

    def k_reads(self, slot, V_K=V_K):
        ka, so = (V_KA, slot * SLOT) if slot < 2 else (V_HI, (slot - 2) * SLOT)
        out = [f"ds_read_b128 {vr(V_K+8*s+4*kb,4)}, {vr(ka)} offset:{so + 2048*s + 256*kb}" for s in range(4) for kb in range(2)]
        out += [f"ds_read_b64 {vr(V_K+32+2*kb,2)}, {vr(ka+1)} offset:{so + 8192 + 512*kb}" for kb in range(2)]
        return out

    def v_reads(self, slot, dst=V_V):
        (va, vr_, vb), so = ((V_VA, V_VR, V_VB), slot * SLOT) if slot < 2 else ((V_HI + 2, V_HI + 4, V_HI + 5), (slot - 2) * SLOT)
        out = []
        for T in range(9):
            for u in range(2):
                if T < 8: out.append(f"ds_read_b64_tr_b16 {vr(dst+4*T+2*u,2)}, {vr((va if T < 4 else vb)+(T&1))} offset:{so + 2048*((T>>1)&1) + 256*u}")
                else: out.append(f"ds_read_b64_tr_b16 {vr(dst+4*T+2*u,2)}, {vr(vr_)} offset:{so + 8192 + 512*u}")
        return out

    def qk_mfmas(self, buf, czero=False):
        out = []
        for s in range(5):
            for kb in range(2):
                for qb in range(4):
                    d = vr(self.S(buf, qb, 4 * kb), 4)
                    c = ("0" if czero else vr(V_CI + 4 * qb, 4)) if s == 0 else d
                    if s < 4: out.append(f"v_mfma_f32_16x16x32_bf16 {d}, {vr(V_K+8*s+4*kb,4)}, {ar(A_Q+18*qb+4*s,4)}, {c}")
                    else: out.append(f"v_mfma_f32_16x16x16_bf16 {d}, {vr(V_K+32+2*kb,2)}, {ar(A_Q+18*qb+16,2)}, {c}")
        return out

    def pv_mfmas(self, buf, czero=False):
        out = []
        for T in range(9):
            for qb in range(4):
                o = ar(A_O + 36 * qb + 4 * T, 4)
                out.append(f"v_mfma_f32_16x16x32_bf16 {o}, {vr(V_V+4*T,4)}, {vr(self.P(buf,qb),4)}, {'0' if czero else o}")
        return out

    def plan(self):
        o = self.o
        n = 76
        fixed = [None] * n
        for i, g in enumerate(range(1, 36, 2)): fixed[g] = ("V", i)
        for i, g in enumerate([41, 44, 47, 50, 53, 56, 59, 62, 65, 68]): fixed[g] = ("K", i)
        for i, g in enumerate([42, 46, 49, 52, 55, 58, 61, 64, 67]): fixed[g] = ("D", i)
        exps = [(qb, j) for qb in range(4) for j in range(8)]
        start = 40
        order = [(start + k) % n for k in range(n)]
        free_idx = [k for k, g in enumerate(order) if fixed[g] is None]
        nsm = len(free_idx) - 32
        cand = free_idx[6:-2]
        sm_set = set(free_idx[-2:]) | {cand[int((i + 0.5) * len(cand) / (nsm - 2))] for i in range(nsm - 2)}
        nds = sum(1 for f in fixed if f is not None and f[0] != "D")
        ls = o.get("lsum", "add")
        over = max(0, (48 if ls == "add" else 32) - nds - 2 * nsm)
        ocand = [k for k, g in enumerate(order) if k >= 20 and (fixed[g] is None or fixed[g][0] != "D")]
        o_set = {ocand[int((i + 0.5) * len(ocand) / over)] for i in range(over)}
        later = []
        gaps = [[] for _ in range(n)]
        small, pend, ei = [], [], 0
        for k, g in enumerate(order):
            new = (start + k) < n
            small.extend(pend); pend = later; later = []
            small.sort(key=lambda t: 0 if t[0] == "c" else 1)
            f = fixed[g]
            want = 0
            if f is not None:
                gaps[g].append((f[0], f[1], None))
                if f[0] == "D": continue
                want = 1
            elif k in sm_set: want = 2
            else:
                qb, j = exps[ei]; ei += 1
                gaps[g].append(("E", ("e", qb, j), new))
                if j & 1: pend.append(("c", qb, j // 2))
                if ls == "add": pend.append(("a", qb, j))
                elif j & 1 and ls == "pk": pend.append(("p", qb, j // 2))
            if k in o_set: want += 1
            if k == n - 1: want = 99
            for _ in range(want):
                if small:
                    it = small.pop(0)
                    gaps[g].append(("E", it, new))
                    if it[0] == "c" and ls == "dot": (small if k == n - 1 else pend).append(("d", it[1], it[2]))
        assert not small and not pend and ei == 32
        self.gaps = gaps

    def pack(self, mf, items):
        a = self.a
        where, order, done, nvm, mpos = {}, [], 0, 0, []
        isds = lambda it: "ds_" in it["t"]
        self.over = 0
        for g, m in enumerate(mf):
            assert not any(it.get("need", 999) <= g and i not in where for i, it in enumerate(items)), g
            idx = [k for k, n_ in enumerate(order) if n_ <= g]
            if idx and max(idx) + 1 > done:
                a(f"s_waitcnt lgkmcnt({min(15, len(order) - 1 - max(idx))})"); done = max(idx) + 1
            if m.startswith("@W"):
                w_, m = m.split("\n", 1)
                a(f"s_waitcnt lgkmcnt({min(15, int(w_[2:]) + len(order))})")
            a(m)
            mpos.append(len(a.lines))
            cap, pick = 8, []
            for phase in (0, 1):
                for i, it in enumerate(items):
                    if i in where or it.get("lo", 0) > g: continue
                    if "am" in it and (it["am"] >= g or len(a.lines) - mpos[it["am"]] < 8): continue
                    d = it.get("dep")
                    if d is not None and not all(where.get(x, 999) < g for x in d): continue
                    if (phase == 0 and it.get("hi", 999) <= g) or (phase == 1 and it["c"] <= cap):
                        if it["t"].startswith("buffer") and pick and any(items[x]["c"] for x in pick) and phase == 1: continue
                        if isds(it) and sum(isds(items[x]) for x in pick) >= it.get("nds", 1) and phase == 1: continue
                        pick.append(i); where[i] = g; cap -= it["c"]
            key = lambda i: 0 if items[i]["c"] == 0 else 1 if isds(items[i]) else 2 if items[i]["t"].startswith("buffer") else 3
            for i in sorted(pick, key=key):
                a(items[i]["t"].replace("@VM", f"s_waitcnt vmcnt({nvm})"))
                nvm += items[i]["t"].startswith("buffer")
                if isds(items[i]): order.append(items[i].get("need", 999))
            self.over += max(0, -cap)
        return [it["t"] for i, it in enumerate(items) if i not in where]

    def e_items(self, buf, lst, lo, hi):
        items, idx = [], {}
        for it in lst:
            kind, qb, j = it
            d = dict(t=self.etext(buf, it), c=8 if kind == "e" else 4)
            if kind == "e": d["lo"] = lo(qb, j); d["hi"] = hi(qb) - 2 - (7 - j)
            else:
                need = [("e", qb, j)] if kind == "a" else [("c", qb, j)] if kind == "d" else [("e", qb, 2 * j), ("e", qb, 2 * j + 1)]
                d["dep"] = [idx[x] for x in need if x in idx]
                if kind == "c": d["hi"] = hi(qb) - (3 - j) // 2
            idx[it] = len(items); items.append(d)
        return items

    def etext(self, buf, it):
        kind, qb, j = it
        s = self.S(buf, qb)
        if kind == "e": return f"v_exp_f32 {vr(s+j)}, {vr(s+j)}"
        if kind == "d": return f"v_dot2_f32_bf16 {vr(V_L+qb)}, {vr(self.P(buf, qb, j))}, v227, {vr(V_L+qb)}"
        if kind == "p": return f"v_pk_add_f32 {vr(208+2*qb,2)}, {vr(208+2*qb,2)}, {vr(s+2*j,2)}"
        if kind == "a": return f"v_add_f32 {vr(V_L+qb)}, {vr(V_L+qb)}, {vr(s+j)}"
        return f"v_cvt_pk_bf16_f32 {vr(self.P(buf, qb, j))}, {vr(s+2*j)}, {vr(s+2*j+1)}"

    def period(self, p, qk=True, pv=True, e_old=True, e_new=True, kread=True, vread=True, dma=True, extra={}, dsub=None, ksub=None, vm=9, halves=(0, 1), inc=None):
        a = self.a
        bn, bo = (p + 1) & 1, p & 1
        qk_, pv_ = self.qk_mfmas(bn), self.pv_mfmas(bo, czero=(p == 0))
        qo, po = self.o.get("qkord", 1), self.o.get("pvord", 0)
        if qo == 1: qk_ = [qk_[8 * s_ + 4 * kb + qb] for kb in range(2) for qb in range(4) for s_ in range(4)] + qk_[32:]
        if qo == 2: qk_ = [qk_[8 * s_ + 4 * kb + qb] for qb in range(4) for kb in range(2) for s_ in range(4)] + qk_[32:]
        if qo == 3: qk_ = [qk_[8 * s_ + 4 * kb + qb] for qb in range(4) for s_ in range(4) for kb in range(2)] + qk_[32:]
        if po == 1: pv_ = [pv_[4 * T_ + qb] for qb in range(4) for T_ in range(9)]
        mf = qk_ + pv_
        kr, vrd = self.k_reads((p + 2) % RING), self.v_reads(p % RING)
        slot = p % RING
        n = 76
        sc = [[] for _ in range(n)]
        dgs = [g for g in range(n) if any(e[0] == "D" for e in self.gaps[g])]
        if dma:
            for j, g in enumerate(dgs):
                if j % 4 == 0: sc[g - 1].append(f"s_add_u32 m0, {sr(S_LB)}, {slot*SLOT + 4096*(j//4)}")
            sc[dgs[-1] + 1].append(f"s_add_u32 {sr(S_TOFF)}, {sr(S_TOFF)}, {inc or 4*TILE}")
        w = []
        if kread: w.append(f"vmcnt({vm})")
        if pv: w.append("lgkmcnt(0)")
        if w: sc[39].append("s_waitcnt " + " ".join(w))
        if kread: sc[75].append("s_waitcnt lgkmcnt(0)")
        for half in halves:
            rng = range(0, 40) if half == 0 else range(40, 76)
            on = qk if half == 0 else pv
            if not on:
                ds, mem, val, post = [], [], [], []
                for g in rng:
                    for s_ in sc[g]:
                        (post if s_.startswith("s_waitcnt") else mem).append(s_)
                    if g in extra: mem.append(extra[g])
                    for kind, d, new in self.gaps[g]:
                        if kind == "V" and vread: ds.append(vrd[d])
                        elif kind == "K" and kread: ds.append(kr[d])
                        elif kind == "D" and dma: mem.append(f"buffer_load_dwordx4 {vr(V_DMA + d//4)}, {sr(S_XA,4)}, {sr(S_TOFF)} offen offset:{1024*(d%4)} lds")
                        elif kind == "E" and ((new and e_new) or (not new and e_old)): val.append((d, self.etext(bn if new else bo, d)))
                if half == 1: a("s_nop 3")
                seq, pend = [], list(val)
                while pend:
                    k = 0
                    if seq and seq[-1][0][0] == "e":
                        le = seq[-1][0]
                        dep = lambda it: it[0][1] == le[1] and ((it[0][0] == "a" and it[0][2] == le[2]) or (it[0][0] == "c" and it[0][2] == le[2] // 2))
                        have = {x[0] for x in seq}
                        ok = lambda it: it[0][0] == "e" or (("e", it[0][1], it[0][2]) in have if it[0][0] == "a" else (("e", it[0][1], 2*it[0][2]+1) in have)) or not any(x[0][0] == "e" and x[0][1] == it[0][1] and (x[0][2] == it[0][2] if it[0][0] == "a" else x[0][2] // 2 == it[0][2]) for x in pend)
                        while k < len(pend) and (dep(pend[k]) or not ok(pend[k])): k += 1
                        if k == len(pend): seq.append((("n", 0, 0), "s_nop 0")); k = 0
                    seq.append(pend.pop(k))
                step = max(1, len(seq) // (len(mem) + len(ds) + 1))
                allm = ds + mem
                for x in allm[:6]: a(x)
                allm = allm[6:]
                for i_, (d, t_) in enumerate(seq):
                    a(t_)
                    if allm and i_ % step == step - 1:
                        x = allm.pop(0); a(x)
                        if x.startswith("s_add_u32 m0"): a("s_nop 0")
                for x in allm:
                    a(x)
                    if x.startswith("s_add_u32 m0"): a("s_nop 0")
                for x in post: a(x)
                if half == 0: a("s_nop 1")
                continue
            for g in rng:
                a(mf[g])
                for s_ in sc[g]: a(s_)
                if g in extra: a(extra[g])
                for kind, d, new in self.gaps[g]:
                    if kind == "V":
                        if vread: a(vrd[d])
                    elif kind == "K":
                        if kread: a(kr[d])
                        elif ksub: a(ksub.pop(0))
                    elif kind == "D":
                        if dma: a(f"buffer_load_dwordx4 {vr(V_DMA + d//4)}, {sr(S_XA,4)}, {sr(S_TOFF)} offen offset:{1024*(d%4)} lds")
                        elif dsub: a(dsub.pop(0))
                    elif (new and e_new) or (not new and e_old):
                        a(self.etext(bn if new else bo, d))

    MK, VO, VO8, GA, VS0, VS0R, VDW, VLW, VL8, VST, VPL = 232, 236, 9, 238, 250, 251, 244, 245, 246, 247, 248
    NB, PT, E_U, E_G, RS3, E_COL, RS1, RS2, MP1 = 3, 4, 5, 6, 7, 43, 36, 37, 38
    G0, GM, GP, U, DWT = 16, 26, 36, 80, (90, 252, 96, 100, 112, 116, 104, 94)
    XRS = (192, 196, 46)
    frag = staticmethod(lambda f, b: [(f, b + 4 * s) for s in range(5)])
    WD = [[("a", 216 + 4 * s) for s in range(5)], [("a", 234 + 4 * s) for s in range(5)], [("v", 208 + 4 * s) for s in range(5)]]
    WO = [[("a", 4 * s) for s in range(5)], [("a", 18 + 4 * s) for s in range(5)], [("a", 36), ("a", 40), ("a", 44), ("a", 48), ("a", 252)]]
    X1B = 98304
    X2O = L_SP - X1B
    L_L = L_SP + 9216

    def epi_setup(self):
        a = self.a
        T = S_T
        NB, PT, VO, GA = self.NB, self.PT, self.VO, self.GA
        r, g4, x, y, big, r0 = 52, 53, 54, 55, 56, 57
        a(f"""s_lshr_b32 {sr(NB)}, {sr(S_W)}, 1
        s_and_b32 {sr(PT)}, {sr(S_W)}, 1
        v_and_b32 {vr(r0)}, 15, v0
        v_lshrrev_b32 {vr(g4)}, 4, v0
        v_mul_u32_u24 {vr(x)}, 288, {vr(r0)}
        v_mov_b32 {vr(big)}, 0x40000000
        s_lshl_b32 {sr(T)}, {sr(S_TOWN)}, 1
        s_add_u32 {sr(T)}, {sr(T)}, {sr(NB)}
        s_lshl_b32 {sr(T)}, {sr(T)}, 4
        v_add_u32 {vr(r)}, {sr(T)}, {vr(r0)}
        s_mul_i32 {sr(T+1)}, {sr(S_TOWN)}, {TILE}
        s_mul_i32 {sr(T+2)}, {sr(PT)}, {BLK}
        v_add_u32 {vr(x)}, {sr(T+1)}, {vr(x)}
        s_sub_u32 {sr(T+3)}, {BLK}, {sr(T+2)}
        v_add_u32 {vr(y)}, {sr(T+3)}, {vr(x)}
        v_add_u32 {vr(x)}, {sr(T+2)}, {vr(x)}
        v_lshl_add_u32 {vr(VO)}, {vr(g4)}, 4, {vr(x)}
        v_lshl_add_u32 {vr(VO+1)}, {vr(g4)}, 4, {vr(y)}
        v_lshl_add_u32 {vr(self.VO8)}, {vr(g4)}, 3, {vr(x)}
        s_lshl_b32 {sr(T+3)}, {sr(PT)}, 11
        s_add_u32 {sr(self.E_U)}, {sr(T+3)}, {WS_U}
        s_add_u32 {sr(self.E_G)}, {sr(T+3)}, {WS_G}
        s_sub_u32 {sr(T+3)}, 4096, {sr(T+3)}
        s_lshl_b32 {sr(T)}, {sr(PT)}, 11
        s_add_u32 {sr(T)}, {sr(T)}, {WS_DWF}
        v_lshrrev_b32 {vr(x)}, 2, {vr(r0)}
        v_cmp_eq_u32 vcc, {vr(x)}, {vr(g4)}
        v_lshl_add_u32 {vr(self.VDW)}, {vr(r0)}, 4, {sr(T)}
        s_nop 0
        v_cndmask_b32 {vr(self.VDW)}, {vr(big)}, {vr(self.VDW)}, vcc
        s_lshl_b32 {sr(self.E_COL)}, {sr(S_W)}, 6
        v_lshlrev_b32 {vr(self.VL8)}, 3, v0
        v_add_u32 {vr(self.VL8)}, 4096, {vr(self.VL8)}
        v_add_u32 {vr(self.VST)}, {sr(S_LB)}, {vr(V_DMA)}
        v_add_u32 {vr(self.VST)}, {2*SLOT}, {vr(self.VST)}
        s_xor_b32 {sr(T)}, {sr(NB)}, 1
        v_xor_b32 {vr(x)}, {sr(T)}, {vr(g4)}
        v_lshl_add_u32 {vr(x)}, {vr(x)}, 4, {vr(r0)}
        s_lshl_b32 {sr(T)}, {sr(S_W)}, 2
        s_add_u32 {sr(T)}, {sr(T)}, {self.L_L}
        v_lshl_add_u32 {vr(self.VLW)}, {vr(x)}, 4, {sr(T)}
        s_sub_u32 {sr(self.MP1)}, 0, {sr(PT)}
        s_mov_b32 {sr(self.MP1+1)}, {sr(self.MP1)}""")
        for k, (d, base) in enumerate(((self.RS1, 3 * SLOT), (self.RS2, 2 * SLOT), (self.RS3, 2 * SLOT))):
            a(f"s_xor_b32 {sr(T)}, {sr(S_W)}, {k+1}\ns_mul_i32 {sr(T)}, {sr(T)}, {TILE}\ns_add_u32 {sr(d)}, {sr(T)}, {base}")
        a(f"""s_mul_i32 {sr(T)}, {sr(S_B)}, 4000
        s_add_u32 {sr(T+1)}, {sr(T)}, 3999
        s_mov_b32 {sr(T+2)}, {BLK}""")
        for k, dr in enumerate((0, -1, 1)):
            m = GA + 2 * k
            if dr: a(f"v_add_u32 {vr(m)}, {dr}, {vr(r)}\nv_cmp_eq_u32 vcc, {sr(T if dr < 0 else T+1)}, {vr(r)}")
            src = m if dr else r
            a(f"""v_lshrrev_b32 {vr(x)}, 4, {vr(src)}
            v_and_b32 {vr(y)}, 15, {vr(src)}
            v_mul_lo_u32 {vr(x)}, {vr(x)}, {sr(T+2)}
            v_lshl_add_u32 {vr(y)}, {vr(g4)}, 4, {vr(y)}
            v_lshl_add_u32 {vr(m)}, {vr(y)}, 4, {vr(x)}
            v_lshl_add_u32 {vr(m+1)}, {vr(y)}, 3, {vr(x)}
            v_add_u32 {vr(m+1)}, {sr(T+3)}, {vr(m+1)}""")
            if dr: a(f"v_cndmask_b32 {vr(m)}, {vr(m)}, {vr(big)}, vcc\nv_cndmask_b32 {vr(m+1)}, {vr(m+1)}, {vr(big)}, vcc")

    def conv_loads(self):
        GA = self.GA
        L = []
        for dst, m, so in ((self.GM, GA + 2, 1), (self.G0, GA, 1), (self.GP, GA + 4, 1), (self.U, GA, 0)):
            for k in range(2): L.append(f"buffer_load_dwordx4 {vr(dst+4*k,4)}, {vr(m)}, {sr(S_WS,4)}, {sr(self.E_U+so)} offen offset:{1024*k}")
            L.append(f"buffer_load_dwordx2 {vr(dst+8,2)}, {vr(m+1)}, {sr(S_WS,4)}, {sr(self.E_U+so)} offen")
        return L

    def rg(self, e, n): return (ar if e[0] == "a" else vr)(e[1], n)

    def w8_loads(self, regs, so):
        return [f"buffer_load_dwordx4 {self.rg(regs[s],4)}, {vr(V_DMA)}, {sr(S_WS,4)}, {sr(so)} offen offset:{1024*s}" for s in range(4)] + \
               [f"buffer_load_dwordx2 {self.rg(regs[4],2)}, {vr(self.VL8)}, {sr(S_WS,4)}, {sr(so)} offen"]

    def w_reads(self, regs, off):
        L = []
        for tt in range(2):
            L += [f"ds_read_b128 {self.rg(regs[tt][s],4)}, {vr(self.VS0)} offset:{off + BLK*tt + 1024*s}" for s in range(4)]
            L.append(f"ds_read_b64 {self.rg(regs[tt][4],2)}, {vr(self.VS0R)} offset:{off + BLK*tt}")
        return L

    def xa_srd(self):
        T = S_T
        return f"""s_mul_i32 {sr(T)}, {sr(S_B)}, {NT}
        s_mul_i32 {sr(T+1)}, {sr(S_H)}, 63
        s_add_u32 {sr(T+1)}, {sr(T+1)}, {sr(T)}
        s_mul_i32 {sr(T+1)}, {sr(T+1)}, {TILE}
        s_add_u32 {sr(S_XA)}, {sr(S_WS)}, {sr(T+1)}
        s_addc_u32 {sr(S_XA+1)}, {sr(S_WS+1)}, 0
        s_sub_u32 {sr(T+2)}, 63, {sr(S_H)}
        s_mul_i32 {sr(S_XA+2)}, {sr(T+2)}, {TILE}
        s_mov_b32 {sr(S_XA+3)}, 0x20000"""

    def rest(self):
        a, o = self.a, self.o
        T = S_T
        VPL = self.VPL
        self.plan()
        self.head()
        self.stamp("loop")
        if o.get("sktest") or o.get("echo") and o["echo"][0] == "skew":
            a(f"s_waitcnt lgkmcnt(0)\ns_mov_b64 exec, 1\ns_not_b32 s98, {sr(S_ST)}\nv_mov_b32 v226, s98\nv_mov_b32 v227, 4\ns_cmp_lg_u32 {sr(S_W)}, 0\ns_cbranch_scc1 L_sk\nbuffer_atomic_umax v226, v227, {sr(S_DB,4)}, 0 offen sc1\ns_waitcnt vmcnt(0)\nL_sk:\ns_mov_b64 exec, -1\ns_nop 3")
            self.stamp("sk")
        nh = o.get("ugh", 2)
        ex = {2 + 12 * k: x for k, x in enumerate(self.ugs[nh:])}
        ugl = o.get("ugl", 1)
        CL = 226
        clr = [f"buffer_store_dwordx4 {vr(CL,4)}, {vr(V_DMA)}, {sr(S_WS,4)}, {sr(S_CL)} offen sc1",
               f"buffer_store_dwordx4 {vr(CL,4)}, {vr(V_DMA)}, {sr(S_WS,4)}, {sr(S_CL)} offen offset:1024 sc1",
               f"buffer_store_dwordx2 {vr(CL,2)}, {vr(self.VL8)}, {sr(S_WS,4)}, {sr(S_CL+1)} offen sc1"]
        cll = o.get("cll", 1)
        if ugl: self.period(0, extra={69: self.ugs[0], 71: clr[0]} if cll else {69: self.ugs[0]})
        else: self.period(0, vm=9 + 5, extra=ex)
        self.stamp("l0")
        a.raw(".p2align 6")
        a.label("L_loop")
        self.stamp("q1")
        for p in range(1, 5):
            ex = {}
            vm = 9
            if p == 1: ex = {73: f"s_cmp_eq_u32 {sr(S_CNT)}, 3"}
            if p == 2: ex = {70: f"buffer_load_dword v252, {vr(VPL)}, {sr(S_WS,4)}, 0 offen sc1"}
            if p == 3:
                ex = {73: f"s_cmp_eq_u32 {sr(S_CNT)}, 2", 45: f"ds_add_rtn_u32 v230, v231, {vr(VPL+1)}"}
            if p == 4:
                self.stamp("la0")
                a(f"s_cbranch_scc1 L_last")
                a.label("L_lastb")
                self.stamp("la1")
                ex = {72: f"s_add_u32 {sr(S_CNT)}, {sr(S_CNT)}, 1", 1: f"v_readfirstlane_b32 {sr(T)}, v230", 3: f"s_cmp_eq_u32 {sr(T)}, 3",
                      4: f"s_cselect_b32 {sr(T)}, {sr(S_FB)}, 2.0", 6: f"buffer_store_dword v207, v231, {sr(S_WS,4)}, {sr(T)} offen sc1"}
            if ugl:
                ex[69] = self.ugs[p]
                if p < 3 and cll: ex[72] = clr[p]
                if p == 3 and cll: ex.update({70: f"s_mov_b32 {sr(S_CL)}, 2.0", 71: f"s_mov_b32 {sr(S_CL+1)}, 2.0"})
                if p == 4: ex.update({71: f"s_mov_b32 {sr(S_UG)}, 2.0", 2: f"s_lshl2_add_u32 {sr(T)}, {sr(S_CNT)}, {sr(T)}", 3: f"s_cmp_eq_u32 {sr(T)}, 7"})
                if p == 3: ex.update({43: f"s_and_b32 {sr(T)}, {sr(S_CNT)}, 1", 44: f"v_mov_b32 {vr(VPL+1)}, {sr(T)}", 48: ex.pop(45)})
            for k_ in range(o.get("pad", 0)): ex[10 + 7 * k_] = ex.get(10 + 7 * k_, "s_nop 0") + "\ns_nop 7"
            self.period(p, extra=ex, inc=sr(S_INC) if p == 4 else None)
            if p == 1: a("s_cbranch_scc1 L_p14")
        a("s_branch L_loop")
        a.label("L_p14")
        SW = 66
        self.stamp("p14")
        a(f"s_cmp_eq_u32 {sr(S_DUM)}, 4\ns_cbranch_scc0 L_dummyb")
        for i in range(16): a(f"v_mov_b32 {vr(V_CI+i)}, 0xff800000")
        a("s_nop 1")
        a.label("L_dummyb")
        ex = dict(zip([2, 6, 8, 12, 14, 18, 20, 24, 26, 30], self.w_reads(self.WD, 0)))
        ex[0] = "s_waitcnt vmcnt(9)"
        ex.update(dict(zip([4, 10, 16, 22, 28], self.w8_loads(self.WD[2], SW))))
        self.period(14, dma=False, kread=False, extra=ex, halves=(0,))
        self.stamp("tail")
        self.tail(SW)
        self.stamp("end")
        self.epilogue(SW)

    def rare(self):
        a = self.a
        T = S_T
        SW = 66
        a.label("L_last")
        a(f"s_waitcnt vmcnt(9)\ns_mov_b32 {sr(T+2)}, 0")
        a.label("L_late")
        a(f"""v_cmp_ne_u32 vcc, {sr(S_N)}, v252
        s_add_u32 {sr(S_XA)}, {sr(S_WS)}, {WS_WF}
        s_addc_u32 {sr(S_XA+1)}, {sr(S_WS+1)}, 0
        s_mov_b32 {sr(S_XA+2)}, {18*BLK}
        s_add_u32 {sr(S_TOFF)}, {sr(S_LB)}, {9*BLK}
        s_mov_b32 {sr(S_INC)}, {-9*BLK}
        s_lshr_b32 {sr(SW)}, {sr(S_W)}, 1
        s_lshl_b32 {sr(SW)}, {sr(SW)}, 30
        s_add_u32 {sr(SW+1)}, {sr(SW)}, {WS_WF + 8*BLK}
        s_add_u32 {sr(SW)}, {sr(SW)}, {WS_WF + 17*BLK}
        s_and_b32 {sr(T)}, vcc_lo, 31
        s_cbranch_scc0 L_lastb
        buffer_load_dword v252, {vr(self.VPL)}, {sr(S_WS,4)}, 0 offen sc1
        s_add_u32 {sr(T+2)}, {sr(T+2)}, 1
        s_waitcnt vmcnt(0)
        s_cmp_lt_u32 {sr(T+2)}, 0x40000
        s_cbranch_scc1 L_late
        s_branch L_lastb""")

    units = [(0, 0), (0, 1), (1, 0), (1, 1), (2, 0)]
    V15 = V_K

    def stage(self, slot, T):
        src = ar(A_O + 36 * slot + 4 * T, 4)
        if slot == 0: return f"ds_write_b128 {vr(self.VST)}, {src} offset:{1024*T}"
        if slot == 2: return f"ds_write_b128 {vr(self.VS0)}, {src} offset:{1024*T}"
        if T < 4: return f"ds_write_b128 {vr(self.VST)}, {src} offset:{SLOT + 1024*T + (4096 if slot == 3 else 0)}"
        return f"{'s_not_b64' if slot == 1 else 's_mov_b64'} exec, {sr(self.MP1,2)}\nds_write_b128 {vr(self.VST)}, {src} offset:{SLOT + 8192}\ns_mov_b64 exec, -1"

    def dwf(self, k, i):
        f = 5 * k + i
        return self.DWT[f >> 1] + 2 * (f & 1)

    def tail(self, SW):
        a, o = self.a, self.o
        mf, pos, start = [], {}, {}
        for t_, qb in ((14, 0), (14, 1), (15, 0), (15, 1), (14, 2), (15, 2), (14, 3), (15, 3)):
            start[t_, qb] = len(mf)
            for Tt in ([0, 1, 2, 3, 8, 4, 5, 6, 7] if qb & 1 else range(9)):
                o_ = ar(A_O + 36 * qb + 4 * Tt, 4)
                pos[t_, qb, Tt] = len(mf)
                mf.append(f"v_mfma_f32_16x16x32_bf16 {o_}, {vr((V_V if t_ == 14 else self.V15)+4*Tt,4)}, {vr(self.P(t_ & 1,qb),4)}, {o_}")
        lst = []
        for qb in range(4):
            for j in range(8):
                lst.append(("e", qb, j))
                if j & 1: lst.append(("c", qb, j // 2))
        lst += [("a", qb, j) for qb in range(4) for j in range(8)]
        items = self.e_items(1, lst, lambda qb, j: 0 if j < 4 else 1, lambda qb: start[15, qb] - 2)
        for it in items[48:]: it["lo"] = o.get("alo", 26)
        v15 = [dict(t=x, c=4, need=pos[15, 0, i // 2], hi=pos[15, 0, i // 2] - o.get("vlead", 7), lo=0 if i < 16 else 2) for i, x in enumerate(self.v_reads(3, self.V15))]
        wr = []
        nown = o.get("nown", 4)
        self.own = [(2, T_) for T_ in range(nown, 9)] + [(3, T_) for T_ in (0, 1, 2, 3, 8)]
        g = o.get("w0", 23)
        for k, (sl, Tt) in enumerate([(0, T_) for T_ in range(9)] + [(1, T_) for T_ in (0, 1, 2, 3, 8)] + [(2, T_) for T_ in range(nown)]):
            g = max(pos[15, sl, Tt] + 5, g)
            wr.append(dict(t=self.stage(sl, Tt), c=o.get("wc", 20), lo=int(g), hi=int(g)) if g < 72 else dict(t=self.stage(sl, Tt), c=4, lo=999))
            g += o.get("wsp", 2.7)
        n0 = len(items) + len(v15)
        wo = []
        for i, x in enumerate(self.w_reads(self.WO, SLOT)):
            r0 = self.WO[i // 5][i % 5][1]
            wo.append(dict(t=("@VM\n" if i == 0 else "") + x, c=4, dep=sorted({n0 + r0 // 4, n0 + (r0 + 3) // 4 if (r0 + 3) // 4 < 9 else n0 + 8}), lo=o.get("wo0", 40) + 3 * i, hi=o.get("wo0", 40) + 3 * i + 2))
        cl = self.conv_loads()
        dl = [f"buffer_load_dwordx4 {vr(self.DWT[r],4)}, {vr(self.VDW)}, {sr(S_WS,4)}, 0 offen offset:{256*r}" for r in range(7)]
        dl.append(f"buffer_load_dwordx2 {vr(self.DWT[7],2)}, {vr(self.VDW)}, {sr(S_WS,4)}, 0 offen offset:{256*7}")
        fr = {96: 9, 100: 18, 104: 45, 112: 27, 116: 36}
        vm = [(x, 0) for x in cl] + [(x, fr.get(self.DWT[r], 0)) for r, x in enumerate(dl)]
        used = {w["lo"] for w in wr}
        vi, g = [], o.get("m0", 24)
        for x, lo in vm:
            g = max(g, lo)
            while int(g) in used: g += 1
            vi.append(dict(t=x, c=8, lo=int(g), hi=int(g)) if g < 72 else dict(t=x, c=8, lo=999))
            g += o.get("msp", 2.2)
        left = self.pack(mf, items + v15 + wr + wo + vi)
        self.done_a = {(qb, j) for qb in range(4) for j in range(8) if self.etext(1, ("a", qb, j)) not in left}
        left = [x for x in left if not x.startswith("v_add_f32")]
        print("tail overflow", self.over, "left", len(left), "adds done", len(self.done_a))
        self.left = left

    def epilogue(self, SW):
        a, o = self.a, self.o
        T = S_T
        p = lambda r: vr(r, 2)
        NB, PT, MK, VO, units, MP1 = self.NB, self.PT, self.MK, self.VO, self.units, self.MP1
        U, GM, G0, GP = self.U, self.GM, self.G0, self.GP
        X2O = self.X2O
        R1, R2, R3 = 230, 231, 249
        LA, LS, M = 10, 226, 48

        def weave(main, fill, per):
            fill = list(fill)
            for x in main:
                a(x)
                for _ in range(per):
                    if fill: a(fill.pop(0))
            return fill
        for x in self.left:
            if not x.startswith("buffer"): a(x)
        lv = [x for x in self.left if x.startswith("buffer")]
        lv += [f"buffer_load_dwordx4 {vr(self.XRS[j],4)}, {vr(VO+j)}, {sr(S_X,4)}, {sr(self.E_COL)} offen" for j in range(2)]
        lv.append(f"buffer_load_dwordx2 {vr(self.XRS[2],2)}, {vr(self.VO8)}, {sr(S_X,4)}, 0 offen offset:256")
        S1 = lambda qb, j: self.S(1, qb, j)
        rounds = [[] for _ in range(6)]
        for qb in range(4):
            rem = [j for j in range(8) if (qb, j) not in self.done_a]
            prs = [j for j in rem if j % 2 == 0 and j + 1 in rem]
            sing = [j for j in rem if (j & ~1) not in prs]
            r_ = 0
            while len(prs) > 1:
                for x, y in zip(prs[0::2], prs[1::2]): rounds[r_].append(f"v_pk_add_f32 {p(S1(qb,x))}, {p(S1(qb,x))}, {p(S1(qb,y))}")
                prs = prs[0::2]; r_ += 1
            for k_, j in enumerate(sing + ([prs[0], prs[0] + 1] if prs else [])): rounds[min(5, max(r_, 2) + k_)].append(f"v_add_f32 {vr(V_L+qb)}, {vr(V_L+qb)}, {vr(S1(qb,j))}")
        for r_ in rounds:
            for x in r_: a(x)
        a(f"v_add_u32 {vr(R1)}, {sr(self.RS1)}, {vr(V_DMA)}\nv_add_u32 {vr(R2)}, {sr(self.RS2)}, {vr(V_DMA)}")
        self.treduce(V_L)
        a(f"ds_write_b32 {vr(self.VLW)}, {vr(V_L)}")
        acc = lambda slot: [f"v_accvgpr_read_b32 {vr(M+i)}, {ar(A_O+36*slot+16+i)}" for i in range(20)]
        a(f"""v_add_u32 {vr(R3)}, {sr(self.RS3)}, {vr(V_DMA)}
        v_add_u32 {vr(LA+1)}, {self.L_L}, {vr(V_DMA)}
        v_and_b32 {vr(LS+1)}, 0xf0, {vr(V_DMA)}
        s_lshl_b32 {sr(T)}, {sr(NB)}, 8
        s_add_u32 {sr(T+8)}, {sr(T)}, {self.L_L}
        v_add_u32 {vr(LS)}, {sr(T+8)}, {vr(LS+1)}""")
        for x in lv: a(x)
        a(f"""s_xor_b32 {sr(T)}, s2, 1
        s_mul_i32 {sr(T)}, {sr(T)}, {IB}
        s_mul_i32 {sr(T+9)}, {sr(NB)}, 5120
        s_add_u32 {sr(T+9)}, {sr(T+9)}, {WS_IB}
        s_add_u32 {sr(T)}, {sr(T)}, {sr(T+9)}
        s_lshl_b32 {sr(T+10)}, {sr(PT)}, 11
        s_add_u32 {sr(T+1)}, {sr(T+10)}, {sr(T)}
        s_add_u32 {sr(T)}, {sr(T)}, 4096
        s_cmp_eq_u32 {sr(PT)}, 0
        s_cselect_b32 {sr(T)}, 0x40000000, {sr(T)}
        s_mov_b32 {sr(T+2)}, {f32(2.0**100)}
        s_mul_i32 {sr(T+12)}, s2, {IB}
        s_add_u32 {sr(T+12)}, {sr(T+12)}, {sr(T+9)}
        s_add_u32 {sr(T+13)}, {sr(T+12)}, {sr(T+10)}
        s_waitcnt lgkmcnt(0)
        s_barrier""")
        self.stamp("B1")

        def rd(X, offs):
            L = [[f"ds_read_b128 {vr(X[k][i],4)}, {vr((R1, R2, R3)[k])} offset:{offs[k] + 1024*i}" for i in range(4)] for k in range(3)]
            L8 = [f"ds_read_b128 {vr(X[k][4],4)}, {vr((R1, R2, R3)[k])} offset:8192" for k in range(3)]
            return L, L8

        def adds(X, k, rng):
            return [f"v_pk_add_f32 {p(M+4*i+2*h)}, {p(M+4*i+2*h)}, {p(X[k][i]+2*h)}" for i in rng for h in range(2)]
        X = [[128, 132, 136, 140, 144], [148, 152, 156, 160, 68], [72, 76, 200, 204, 108]]
        PK = 128
        L, L8 = rd(X, (0, 4096, 0))
        a(f"ds_read_b128 {vr(LA,4)}, {vr(LA+1)}\nds_read_b128 {vr(LS,4)}, {vr(LS)}")
        rest = weave(L[0] + L[1] + L[2], acc(1), 2)
        assert not rest
        a(f"s_mov_b64 exec, {sr(MP1,2)}")
        for x in L8: a(x)
        a(f"""s_mov_b64 exec, -1
        s_waitcnt lgkmcnt(11)
        v_add_f32 {vr(LA)}, {vr(LA)}, {vr(LA+1)}
        v_add_f32 {vr(LA+2)}, {vr(LA+2)}, {vr(LA+3)}
        v_add_f32 {vr(LS)}, {vr(LS)}, {vr(LS+1)}
        v_add_f32 {vr(LA)}, {vr(LA)}, {vr(LA+2)}
        v_add_f32 {vr(LS+2)}, {vr(LS+2)}, {vr(LS+3)}
        v_cmp_nge_f32 vcc, {sr(T+2)}, {vr(LA)}""")
        for x in adds(X, 0, range(4)): a(x)
        a(f"""s_cmp_lg_u64 vcc, 0
        s_cselect_b32 {sr(T+2)}, 1, 0
        s_andn2_b32 {sr(T+2)}, {sr(T+2)}, {sr(S_REDO)}
        s_cbranch_scc1 L_fallback
        v_add_f32 {vr(PK+10)}, {vr(LS)}, {vr(LS+2)}
        v_mov_b32 {vr(PK+11)}, {vr(MK+1)}
        s_waitcnt lgkmcnt(7)""")
        for x in adds(X, 1, range(4)): a(x)
        a("s_waitcnt lgkmcnt(3)")
        a3 = adds(X, 2, range(4))
        cv = [f"v_cvt_pk_bf16_f32 {vr(PK+i)}, {vr(M+2*i)}, {vr(M+2*i+1)}" for i in range(10)]
        for x in a3[:4] + a3[4:6] + cv[:4]: a(x)
        a(f"buffer_store_dwordx4 {vr(PK,4)}, {vr(V_DMA)}, {sr(S_WS,4)}, {sr(T+1)} offen sc1")
        for x in a3[6:] + cv[4:8]: a(x)
        a(f"buffer_store_dwordx4 {vr(PK+4,4)}, {vr(V_DMA)}, {sr(S_WS,4)}, {sr(T+1)} offen offset:1024 sc1")
        a("s_waitcnt lgkmcnt(0)")
        for kk in range(3):
            for x in adds(X, kk, [4]): a(x)
        for x in cv[8:]: a(x)
        a(f"buffer_store_dwordx4 {vr(PK+8,4)}, {vr(V_DMA)}, {sr(S_WS,4)}, {sr(T)} offen sc1")
        self.stamp("sent")
        a(f"s_cmp_eq_u32 {sr(S_VAL)}, 0\ns_cbranch_scc1 L_fin")
        C, UP = 140, 68
        IN = [(200, 204, 226), (164, 168, 252), (192, 196, 172)]
        VXW, VXR, VF, LO = 78, 79, 10, 36
        wr = [self.stage(*e) for e in self.own]

        def inbox(k):
            return [f"buffer_load_dwordx4 {vr(IN[k][0],4)}, {vr(V_DMA)}, {sr(S_WS,4)}, {sr(T+13)} offen sc1",
                    f"buffer_load_dwordx4 {vr(IN[k][1],4)}, {vr(V_DMA)}, {sr(S_WS,4)}, {sr(T+13)} offen offset:1024 sc1",
                    f"buffer_load_dwordx4 {vr(IN[k][2],4)}, {vr(V_DMA+1)}, {sr(S_WS,4)}, {sr(T+12)} offen sc1"]
        for x in inbox(0): a(x)
        n0 = len(a.lines)
        a(f"""s_lshl_b32 {sr(T)}, {sr(NB)}, 12
        s_add_u32 {sr(T)}, {sr(T)}, {sr(T+10)}
        s_add_u32 {sr(T)}, {sr(T)}, {self.X1B}
        v_add_u32 {vr(VXW)}, {sr(T)}, {vr(V_DMA)}
        s_lshl_b32 {sr(T)}, {sr(NB)}, 9
        s_add_u32 {sr(T)}, {sr(T)}, {self.X1B + 4096}
        v_add_u32 {vr(VXR)}, {sr(T)}, {vr(self.VL8)}
        s_lshl_b32 {sr(T)}, {sr(PT)}, 12
        s_add_u32 {sr(T)}, {sr(T)}, {self.X1B}
        v_add_u32 {vr(VF)}, {sr(T)}, {vr(V_DMA)}
        v_xor_b32 {vr(VF+1)}, 4096, {vr(VF)}
        s_lshl_b32 {sr(T)}, {sr(PT)}, 9
        s_add_u32 {sr(T)}, {sr(T)}, {self.X1B + 4096}
        v_add_u32 {vr(VF+2)}, {sr(T)}, {vr(self.VL8)}
        v_xor_b32 {vr(VF+3)}, 512, {vr(VF+2)}
        v_subrev_u32 {vr(R2)}, {2*SLOT}, {vr(R2)}
        v_subrev_u32 {vr(R3)}, {2*SLOT}, {vr(R3)}
        s_waitcnt vmcnt(9)""")
        self.stamp("cv0")
        un = [f"v_lshlrev_b32 {vr(M+2*i)}, 16, {vr(U+i)}\nv_and_b32 {vr(M+1+2*i)}, 0xffff0000, {vr(U+i)}" for i in range(10)]
        w8 = self.w8_loads(self.WO[2], SW + 1)
        for k, src in enumerate((GM, G0, GP)):
            for i in range(5):
                d = vr(C + 4 * i, 4)
                a(f"v_mfma_f32_16x16x16_bf16 {d}, {vr(self.dwf(k, i),2)}, {vr(src+2*i,2)}, {'0' if k == 0 else d}")
                a(w8.pop(0) if i in (0, 3) and w8 else un.pop(0))
        self.stamp("cv1")
        a(f"v_and_b32 {vr(LO+1)}, 0xf0, {vr(V_DMA)}\nv_add_u32 {vr(LO)}, {sr(T+8)}, {vr(LO+1)}\ns_nop 1")
        for i in range(10): a(f"v_pk_mul_f32 {p(C+2*i)}, {p(C+2*i)}, {p(M+2*i)}")
        for i in range(10):
            a(f"v_cvt_pk_bf16_f32 {vr(UP+i)}, {vr(C+2*i)}, {vr(C+2*i+1)}")
        body = a.lines[n0:]; del a.lines[n0:]
        step = max(1, len(body) // len(wr))
        for i, l in enumerate(body):
            if i % o.get("wstep", step) == 0 and wr: a(wr.pop(0))
            a.lines.append(l)
        for x in wr: a(x)
        ac = acc(3)
        a(f"ds_write_b128 {vr(VXW)}, {vr(UP,4)} offset:{X2O}")
        for x in ac[:6]: a(x)
        a(f"ds_write_b128 {vr(VXW)}, {vr(UP+4,4)} offset:{X2O + 1024}")
        for x in ac[6:12]: a(x)
        a(f"""s_mov_b64 exec, {sr(MP1,2)}
        ds_write_b64 {vr(VXR)}, {vr(UP+8,2)} offset:{X2O}
        s_mov_b64 exec, -1""")
        self.stamp("x2")
        for x in inbox(1): a(x)
        for x in ac[12:]: a(x)
        a("s_waitcnt lgkmcnt(0)\ns_barrier")
        self.stamp("B2")
        X = [[128, 132, 136, 140, 144], [148, 152, 156, 160, 188], [16, 20, 24, 28, 32]]
        L, L8 = rd(X, (4096, 4096, 0))
        BU = [[("v", r) for r in (100, 104, 108, 112, 116)], [("v", r) for r in (118, 122, 180, 184, 126)]]
        BO = [self.frag("v", 128), self.frag("v", 146)]
        AB = 80

        def bfrags(dst, off):
            out = []
            for s in range(5):
                for j in range(2):
                    out.append(f"ds_read_b128 {self.rg(dst[j][s],4)}, {vr(VF+j)} offset:{off + 1024*s}" if s < 4 else f"ds_read_b64 {self.rg(dst[j][4],2)}, {vr(VF+2+j)} offset:{off}")
            return out

        def fg(W, Bf):
            out = []
            for s in range(5):
                for u, (tt, j) in enumerate(units):
                    d = vr(AB + 4 * u, 4)
                    if s < 4: out.append(f"v_mfma_f32_16x16x32_bf16 {d}, {self.rg(W[tt][s],4)}, {self.rg(Bf[j][s],4)}, {d}")
                    else: out.append(f"v_mfma_f32_16x16x16_bf16 {d}, {self.rg(W[tt][4],2)}, {self.rg(Bf[j][4],2)}, {d}")
            return out
        xu = []
        for u, (tt, j) in enumerate(units):
            for h in range(2):
                x = self.XRS[j] + 2 * tt + h if tt < 2 else self.XRS[2] + h
                xu += [f"v_lshlrev_b32 {vr(AB+4*u+2*h)}, 16, {vr(x)}", f"v_and_b32 {vr(AB+1+4*u+2*h)}, 0xffff0000, {vr(x)}"]
        a("s_waitcnt vmcnt(14)")
        weave(bfrags(BU, X2O), xu, 2)
        pl = lambda k, i, e: f"v_add_f32 {vr(M+4*i+e)}, {vr(M+4*i+e)}, {vr(X[k][i]+e)}"
        ds = L[0] + L[1] + L[2] + [f"s_not_b64 exec, {sr(MP1,2)}\n" + "\n".join(L8) + "\ns_mov_b64 exec, -1", f"ds_read_b128 {vr(LO,4)}, {vr(LO)} offset:512"]
        nis = [1] * 12 + [3, 1]
        gap = [[] for _ in range(25)]
        tot = [10]
        for g in range(25): tot.append(tot[-1] + (nis[g] if g < 14 else 0))
        A0 = [pl(0, i, e) for i in range(4) for e in range(4)]
        A1 = [pl(1, i, e) for i in range(4) for e in range(4)]
        ib = inbox(2)
        for g, m in enumerate(fg(self.WD, BU)):
            if g % 5 == 0: a(f"s_waitcnt lgkmcnt({min(15, tot[g] - 2 * (g // 5 + 1))})")
            a(m)
            if g == 8: a(f"s_waitcnt lgkmcnt({tot[g] - 14})")
            if g == 16: a(f"s_waitcnt lgkmcnt({tot[g] - 18})")
            if g < 14: a(ds[g])
            if 8 <= g < 14: a(A0.pop(0))
            elif g in (14, 18, 22): a(ib.pop(0))
            elif g >= 14:
                for _ in range(2): a(A0.pop(0) if A0 else A1.pop(0))
        assert not A0 and len(A1) % 2 == 0
        n1 = 16 - len(A1)
        for e in range(n1, 16, 2): a(f"v_pk_add_f32 {p(M+e)}, {p(M+e)}, {p(X[1][e//4]+e%4)}")
        a("s_waitcnt lgkmcnt(0)")
        for x in adds(X, 2, range(4)): a(x)
        a(f"v_add_f32 {vr(LO)}, {vr(LO)}, {vr(LO+1)}\nv_add_f32 {vr(LO+2)}, {vr(LO+2)}, {vr(LO+3)}")
        for kk in range(3):
            for x in adds(X, kk, [4]): a(x)
        a(f"s_mov_b32 {sr(T+2)}, 0\nv_add_f32 {vr(LO)}, {vr(LO)}, {vr(LO+2)}")
        self.stamp("own")
        w, PU = 40, 128
        mo = MK + 3

        def chk(k):
            r = [IN[k][q] + i for q in range(3) for i in range(4)]
            c = [f"v_max3_u32 v46, {vr(r[0])}, {vr(r[1])}, {vr(r[2])}", f"v_max3_u32 v47, {vr(r[3])}, {vr(r[4])}, {vr(r[5])}"]
            for q in range(3): c.append(f"v_max3_u32 v{46+(q&1)}, v{46+(q&1)}, {vr(r[6+2*q])}, {vr(r[7+2*q])}")
            return c + ["v_max_u32 v46, v46, v47", "v_cmp_eq_u32 vcc, -1, v46"]

        def take(k, with_chk):
            r = [IN[k][q] + i for q in range(3) for i in range(4)]
            lp_, mp = r[10], r[11]
            wt = [f"v_min_f32 {vr(w)}, {vr(mo)}, {vr(mp)}", f"v_sub_f32 {vr(w+2)}, {vr(w)}, {vr(mp)}", f"v_sub_f32 {vr(w)}, {vr(w)}, {vr(mo)}",
                  f"v_exp_f32 {vr(w+2)}, {vr(w+2)}", f"v_exp_f32 {vr(w)}, {vr(w)}", f"v_mul_f32 {vr(w+4)}, {vr(w+2)}, {vr(lp_)}",
                  f"v_fmac_f32 {vr(w+4)}, {vr(w)}, {vr(LO)}", f"v_rcp_f32 {vr(w+4)}, {vr(w+4)}", f"v_mul_f32 {vr(w)}, {vr(w)}, {vr(w+4)}",
                  f"v_mul_f32 {vr(w+2)}, {vr(w+2)}, {vr(w+4)}"]
            un = []
            for i in range(10): un += [f"v_lshlrev_b32 {vr(PU+2*i)}, 16, {vr(r[i])}", f"v_and_b32 {vr(PU+1+2*i)}, 0xffff0000, {vr(r[i])}"]
            c = chk(k) if with_chk else []
            for i in range(10):
                a(wt[i])
                if c: a(c.pop(0))
                a(un.pop(0)); a(un.pop(0))
        a("s_waitcnt vmcnt(6)")
        take(0, True)
        a("s_cmp_eq_u64 vcc, 0\ns_cbranch_scc0 L_poll2")
        a.label("L_got")
        self.stamp("got")
        for i in range(10): a(f"v_pk_mul_f32 {p(M+2*i)}, {p(M+2*i)}, {p(w)} op_sel_hi:[1,0]")
        for i in range(10): a(f"v_pk_fma_f32 {p(M+2*i)}, {p(PU+2*i)}, {p(w+2)}, {p(M+2*i)} op_sel_hi:[1,0,1]")
        for i in range(10):
            a(f"v_cvt_pk_bf16_f32 {vr(UP+i)}, {vr(M+2*i)}, {vr(M+2*i+1)}")
            if i == 3: a(f"ds_write_b128 {vr(VXW)}, {vr(UP,4)}")
            if i == 7: a(f"ds_write_b128 {vr(VXW)}, {vr(UP+4,4)} offset:1024")
        a(f"""s_not_b64 exec, {sr(MP1,2)}
        ds_write_b64 {vr(VXR)}, {vr(UP+8,2)}
        s_mov_b64 exec, -1
        s_waitcnt lgkmcnt(0)
        s_barrier""")
        self.stamp("B3")
        for x in bfrags(BO, 0): a(x)
        for g, m in enumerate(fg(self.WO, BO)):
            if g % 5 == 0: a(f"s_waitcnt lgkmcnt({8 - 2 * (g // 5)})" + ("\ns_nop 0" if g == 20 else ""))
            a(m)
        self.stamp("gem")
        a("s_nop 3")
        for j in range(2):
            for tt in range(2):
                u = 2 * tt + j
                for h in range(2): a(f"v_cvt_pk_bf16_f32 {vr(16+4*j+2*tt+h)}, {vr(AB+4*u+2*h)}, {vr(AB+4*u+2*h+1)}")
            a(f"buffer_store_dwordx4 {vr(16+4*j,4)}, {vr(VO+j)}, {sr(S_OUT,4)}, {sr(self.E_COL)} offen {o.get('ofl', '')}")
        a(f"s_cmp_ge_u32 {sr(S_W)}, 2\ns_cbranch_scc1 L_fin")
        for h in range(2): a(f"v_cvt_pk_bf16_f32 {vr(24+h)}, {vr(AB+16+2*h)}, {vr(AB+16+2*h+1)}")
        a(f"buffer_store_dwordx2 v[24:25], {vr(self.VO8)}, {sr(S_OUT,4)}, 0 offen offset:256 {o.get('ofl', '')}")
        self.stamp("fin")

        def poll2():
            a.label("L_poll2")
            for k in (1, 2, 0):
                for x in inbox((k + 2) % 3): a(x)
                a("s_waitcnt vmcnt(6)")
                for x in chk(k): a(x)
                a(f"s_add_u32 {sr(T+2)}, {sr(T+2)}, 1\ns_cmp_eq_u64 vcc, 0\ns_cbranch_scc1 L_take{k}")
            a(f"s_cmp_lt_u32 {sr(T+2)}, 0x10000\ns_cbranch_scc1 L_poll2")
            for k in (0, 1, 2):
                a.label(f"L_take{k}")
                take(k, False)
                a("s_branch L_got")
        self.poll2 = poll2

    def fallback(self):
        a = self.a
        T = S_T
        MXR = 208
        a.label("L_fallback")
        a(f"""s_waitcnt vmcnt(0) lgkmcnt(0)
        s_barrier
        s_mov_b32 {sr(S_REDO)}, 1
        s_mov_b32 {sr(S_UG)}, 0x40000000
        {self.xa_srd()}
        s_mov_b32 {sr(S_TOFF)}, {sr(S_LB)}
        s_cmp_eq_u32 {sr(S_DUM)}, 4
        s_cselect_b32 {sr(S_CNT)}, 15, 16""")
        for i in range(4): a(f"v_mov_b32 {vr(MXR+i)}, 0xff800000")
        a.label("L_fb1")
        for g in self.tile_groups(0): a(g)
        a("s_waitcnt vmcnt(0)")
        for x in self.k_reads(0): a(x)
        a("s_waitcnt lgkmcnt(0)")
        for m in self.qk_mfmas(0, czero=True): a(m)
        a("s_nop 7")
        for qb in range(4):
            for i in range(0, 8, 2): a(f"v_max3_f32 {vr(MXR+qb)}, {vr(MXR+qb)}, {vr(self.S(0,qb,i))}, {vr(self.S(0,qb,i+1))}")
        a(f"s_sub_u32 {sr(S_CNT)}, {sr(S_CNT)}, 1\ns_cmp_lg_u32 {sr(S_CNT)}, 0\ns_cbranch_scc1 L_fb1")
        self.greduce([MXR + i for i in range(4)], MXR + 4, "v_max_f32")
        a(f"""v_and_b32 {vr(MXR+4)}, 15, v0
        v_lshlrev_b32 {vr(MXR+4)}, 4, {vr(MXR+4)}
        v_add_u32 {vr(MXR+4)}, {L_SP}, {vr(MXR+4)}
        s_lshl_b32 {sr(T)}, {sr(S_W)}, 2
        s_xor_b32 {sr(T+1)}, {sr(self.NB)}, 1
        v_lshl_add_u32 {vr(MXR+5)}, {sr(self.NB)}, 8, {vr(MXR+4)}
        v_lshl_add_u32 {vr(MXR+4)}, {sr(T+1)}, 8, {vr(MXR+4)}
        v_add_u32 {vr(MXR+6)}, {sr(T)}, {vr(MXR+4)}
        v_add_u32 {vr(MXR+7)}, {sr(T)}, {vr(MXR+5)}""")
        for qb in range(4): a(f"ds_write_b32 {vr(MXR+6+(qb&1))}, {vr(MXR+qb)} offset:{512*(qb>>1)}")
        a("s_waitcnt lgkmcnt(0)\ns_barrier")
        for qb in range(4): a(f"ds_read_b128 {vr(16+4*qb,4)}, {vr(MXR+4+(qb&1))} offset:{512*(qb>>1)}")
        a(f"s_mov_b32 {sr(S_TOFF)}, {sr(S_LB)}")
        for g in self.tile_groups(0) + self.tile_groups(1) + self.tile_groups(2)[:8]: a(g)
        a("s_waitcnt lgkmcnt(0)")
        for qb in range(4):
            r = 16 + 4 * qb
            a(f"v_max_f32 {vr(r)}, {vr(r)}, {vr(r+1)}\nv_max3_f32 {vr(r)}, {vr(r)}, {vr(r+2)}, {vr(r+3)}")
            a(f"v_sub_f32 {vr(self.MK+qb)}, 0, {vr(r)}")
        a("s_waitcnt vmcnt(0)")
        for x in self.k_reads(0, V_V): a(x)
        self.loop_init(False)
        a("s_branch L_go")


if __name__ == "__main__":
    opt = json.loads(sys.argv[2]) if len(sys.argv) > 2 else {}
    g = G(opt)
    txt = g.build()
    if opt.get("align", 1):
        from align import align
        for n2 in (1, 2):
            try:
                txt, st = align(txt, chains=[(1, "L_tr")] * 3 + [(1, "L_tr2"), (n2, "L_tr2")] if opt.get("touch", 1) else None)
                break
            except AssertionError as e:
                if n2 == 2: raise
        print("align: promoted %d, padded %d, left %d" % st)
    txt = txt.replace("\n", "\n; stamps " + json.dumps(g.stnames) + "\n; map %d\n" % g.mp, 1)
    open(sys.argv[1], "w").write(txt)
```

```python
import sys, json, math
from common import Asm, vr, ar, sr, kernel_header, kernel_desc
from lay import *

NAME = "standalone__conformer_family_branchformer__speech_kernel"
NH = 2
NWG = 252 + NH
CHAINS = (3, 3)
RING = 4
LDS_RING = RING * TILE
LDS_TOTAL = 163840
SLOT = 4 * TILE
L_WU, L_WQ, L_WK = 0, 41472, 82944
L_XX, L_XR = 126976, 143360
L_QD = 18432
L_XS = L_XX + L_QD
L_MX = 81920
L_PC = LDS_TOTAL - 256
L_DUMP = 123904
L_SP = 147456

S_X, S_WS, S_XA, S_DB, S_W1, S_W2, S_OUT, S_DW = 8, 12, 16, 20, 24, 28, 32, 36
S_W, S_B, S_H, S_QB, S_TOFF, S_CNT, S_DUM, S_LB, S_TOWN, S_TSND, S_VAL, S_REDO = range(40, 52)
S_UG, S_CL = 25, 26
S_N, S_FB = 98, 99
S_INC = 24
S_T = 52
S_ST = 76

V_KA, V_VA, V_VR, V_DMA, V_L, V_VB = 1, 3, 5, 6, 10, 14
V_S, V_CI, V_P, V_K, V_V = 16, 80, 96, 128, 164
V_HI = 200
V_X = 208
A_O, A_Q, A_F = 0, 144, 216

LOG2E = 1.4426950408889634
import struct
def f32(x): return "0x%08x" % struct.unpack("<I", struct.pack("<f", x))[0]


class BAsm(Asm):
    def __init__(self):
        super().__init__()
        self.bg, self.every, self.cnt, self.skip = [], 0, 0, 0

    def __call__(self, s):
        for l in s.split("\n"):
            l = l.strip()
            if not l: continue
            self.lines.append("    " + l)
            if self.bg and self.every and not l.startswith(("s_nop", "v_mov_b32", "v_exp", "v_rcp", "v_rsq", "v_sqrt", "s_add_u32 m0")):
                self.cnt += 1
                if self.cnt >= self.every:
                    self.cnt = 0
                    self.pop()

    def pop(self):
        for x in self.bg.pop(0).split("\n"): self.lines.append("    " + x)

    def flush(self):
        while self.bg: self.pop()
        self.every = 0


class G:
    def __init__(self, opt):
        self.o = opt
        self.a = BAsm()
        self.nst = 0
        self.fill = []

    def stamp(self, name):
        if self.o.get("stamps"):
            if name in self.o.get("skipst", []): return
            if "only" in self.o and name not in self.o["only"]: return
            if self.nst >= 11: return
            self.a(f"{'s_memtime' if self.o.get('cyc') else 's_memrealtime'} {sr(S_ST + 2*self.nst, 2)}")
            self.stnames.append(name)
            self.nst += 1

    def srd(self, dst, lo, hi, n):
        if dst == S_WS and self.o.get("wsoff"):
            self.a(f"s_add_u32 {sr(dst)}, {sr(lo)}, {self.o['wsoff']}\ns_addc_u32 {sr(dst+1)}, {sr(hi)}, 0\ns_mov_b32 {sr(dst+2)}, {n}\ns_mov_b32 {sr(dst+3)}, 0x20000")
            return
        self.a(f"s_mov_b32 {sr(dst)}, {sr(lo)}\ns_mov_b32 {sr(dst+1)}, {sr(hi)}\ns_mov_b32 {sr(dst+2)}, {n}\ns_mov_b32 {sr(dst+3)}, 0x20000")

    def greduce(self, regs, tmp, op="v_add_f32"):
        a = self.a
        for sw in ("32", "16"):
            for i, r in enumerate(regs): a(f"v_mov_b32 {vr(tmp+i)}, {vr(r)}")
            if len(regs) < 3: a("s_nop 1" if len(regs) == 1 else "s_nop 0")
            for i, r in enumerate(regs): a(f"v_permlane{sw}_swap_b32 {vr(r)}, {vr(tmp+i)}")
            for i, r in enumerate(regs): a(f"{op} {vr(r)}, {vr(r)}, {vr(tmp+i)}")

    def treduce(self, r, op="v_add_f32"):
        a = self.a
        a(f"v_permlane32_swap_b32 {vr(r)}, {vr(r+2)}\nv_permlane32_swap_b32 {vr(r+1)}, {vr(r+3)}")
        a(f"{op} {vr(r)}, {vr(r)}, {vr(r+2)}\n{op} {vr(r+1)}, {vr(r+1)}, {vr(r+3)}\ns_nop 1")
        a(f"v_permlane16_swap_b32 {vr(r)}, {vr(r+1)}\n{op} {vr(r)}, {vr(r)}, {vr(r+1)}")

    def rbf(self, r):
        self.a(f"v_cvt_pk_bf16_f32 {vr(r)}, {vr(r)}, {vr(r)}\nv_lshlrev_b32 {vr(r)}, 16, {vr(r)}")

    def ln_tail(self, F, out, t, mimic):
        a = self.a
        p = lambda r: vr(r, 2)
        self.greduce([t, t + 1], t + 2)
        a(f"v_mul_f32 {vr(t+2)}, {f32(1.0/144)}, {vr(t)}")
        a(f"v_mul_f32 {vr(t+3)}, {vr(t+2)}, {vr(t+2)}")
        a(f"v_mov_b32 {vr(t+4)}, {f32(1.0/144)}")
        a(f"v_fma_f32 {vr(t)}, {vr(t+1)}, {vr(t+4)}, -{vr(t+3)}")
        a(f"v_max_f32 {vr(t)}, 0, {vr(t)}")
        if mimic:
            self.rbf(t)
            self.rbf(t + 2)
            a(f"v_add_f32 {vr(t)}, {f32(1e-5)}, {vr(t)}")
            self.rbf(t)
            a(f"v_sqrt_f32 {vr(t)}, {vr(t)}\ns_nop 0")
            self.rbf(t)
            a(f"v_rcp_f32 {vr(t)}, {vr(t)}\ns_nop 0")
        else:
            a(f"v_add_f32 {vr(t)}, {f32(1e-5)}, {vr(t)}")
            a(f"v_rsq_f32 {vr(t)}, {vr(t)}\ns_nop 0")
        a(f"v_mul_f32 {vr(t+2)}, -{vr(t+2)}, {vr(t)}")
        for i in range(18):
            a(f"v_pk_fma_f32 {p(F+2*i)}, {p(F+2*i)}, {p(t)}, {p(t+2)} op_sel_hi:[1,0,0]")
        for i in range(18):
            a(f"v_cvt_pk_bf16_f32 {vr(out+i)}, {vr(F+2*i)}, {vr(F+2*i+1)}")

    def ln_packed(self, X, F, out, t):
        a = self.a
        a(f"v_mov_b32 {vr(t+6)}, 0x3f803f80")
        for k in range(4): a(f"v_mov_b32 {vr(t+k)}, 0")
        for i in range(18):
            a(f"v_dot2_f32_bf16 {vr(t+2*(i&1))}, {vr(X+i)}, {vr(t+6)}, {vr(t+2*(i&1))}")
            a(f"v_dot2_f32_bf16 {vr(t+1+2*(i&1))}, {vr(X+i)}, {vr(X+i)}, {vr(t+1+2*(i&1))}")
        for i in range(2):
            a(f"v_lshlrev_b32 {vr(F+2*i)}, 16, {vr(X+i)}\nv_and_b32 {vr(F+2*i+1)}, 0xffff0000, {vr(X+i)}")
        a(f"v_pk_add_f32 {vr(t,2)}, {vr(t,2)}, {vr(t+2,2)}")
        un = []
        for i in range(2, 18):
            un.append(f"v_lshlrev_b32 {vr(F+2*i)}, 16, {vr(X+i)}\nv_and_b32 {vr(F+2*i+1)}, 0xffff0000, {vr(X+i)}")
        sv = (a.bg, a.every, a.cnt, a.skip)
        n0 = len(a.lines)
        a.bg, a.every = [], 0
        self.ln_tail(F, out, t, True)
        tail = a.lines[n0:]
        del a.lines[n0:]
        a.bg, a.every, a.cnt, a.skip = sv
        k = next(i for i, l in enumerate(tail) if "v_pk_fma" in l)
        for i, l in enumerate(tail[:k]):
            if "s_nop" in l and un: continue_nop = True
            a(l)
            if un and not l.strip().startswith("s_nop"): a(un.pop(0))
        while un: a(un.pop(0))
        for l in tail[k:]: a(l)

    def ln_f32(self, F, out, t):
        a = self.a
        p = lambda r: vr(r, 2)
        a(f"v_pk_add_f32 {p(t)}, {p(F)}, {p(F+2)}\nv_pk_add_f32 {p(t+2)}, {p(F+4)}, {p(F+6)}")
        a(f"v_pk_mul_f32 {p(t+4)}, {p(F)}, {p(F)}\nv_pk_mul_f32 {p(t+6)}, {p(F+2)}, {p(F+2)}")
        for i in range(2, 18):
            if i >= 4: a(f"v_pk_add_f32 {p(t+2*(i&1))}, {p(t+2*(i&1))}, {p(F+2*i)}")
            a(f"v_pk_fma_f32 {p(t+4+2*(i&1))}, {p(F+2*i)}, {p(F+2*i)}, {p(t+4+2*(i&1))}")
        a(f"v_pk_add_f32 {p(t)}, {p(t)}, {p(t+2)}\nv_pk_add_f32 {p(t+4)}, {p(t+4)}, {p(t+6)}")
        a(f"v_add_f32 {vr(t)}, {vr(t)}, {vr(t+1)}\nv_add_f32 {vr(t+1)}, {vr(t+4)}, {vr(t+5)}")
        self.ln_tail(F, out, t, False)

    def gemm_u(self, AF, rf, Bs, ACC, afr, bfr, post, vm_items=(), other=(), lead=7, vm0=0, vmsp=4, at={}, lastk=0):
        a = self.a
        units = [(0, j) for j in range(4)] + [(1, j) for j in range(4)] + [(2, 0)]
        seq, dl = [], {}
        bs = lambda j, o_, n: self.rg((Bs[j][0], Bs[j][1] + o_), n)
        rem = lambda u: (f"v_mfma_f32_16x16x16_bf16 {vr(ACC+4*u,4)}, {rf(AF+18*units[u][0]+16,2)}, {bs(units[u][1],16,2)}, {vr(ACC+4*u,4)}", u)
        A = [afr(t) for t in range(3)]
        Bf = [bfr(j) for j in range(4)]

        def use(t, j, s, k):
            for x in (A[t][2 * s:2 * s + 2] if s < 4 else A[t][8:]) + ([Bf[j][s]] if Bf[j] else []): dl.setdefault(x, k)
        for g in range(4):
            for s in range(4):
                for u in range(3 * g, 3 * g + 3) if g < 3 else []:
                    t, j = units[u]
                    d = vr(ACC + 4 * u, 4)
                    use(t, j, s, len(seq))
                    seq.append((f"v_mfma_f32_16x16x32_bf16 {d}, {rf(AF+18*t+4*s,4)}, {bs(j,4*s,4)}, {'0' if s == 0 else d}", None))
                if s == 0 and g > 0:
                    for u in range(3 * g - 3, 3 * g):
                        use(units[u][0], units[u][1], 4, len(seq)); seq.append(rem(u))
        last = seq[-3:]; seq = seq[:-3]
        ds = sorted(dl.items(), key=lambda e: e[1]) + [(x, 99) for x in other]
        vm_items = list(vm_items)
        lastvm = vm0 - vmsp
        order, ready, q, done = [], [], [], 0

        def issue():
            x, k_ = ds.pop(0); a(x); order.append(k_)

        def wait(k):
            nonlocal done
            idx = [i_ for i_, k_ in enumerate(order) if k_ <= k]
            if idx and max(idx) + 1 > done:
                a(f"s_waitcnt lgkmcnt({min(15, len(order) - 1 - max(idx))})"); done = max(idx) + 1
        while ds and ds[0][1] < 6: issue()
        for k, (m, fin) in enumerate(seq):
            assert not ds or ds[0][1] > k, (k, ds[0])
            wait(k)
            a(m)
            for u_, kk in list(ready):
                if k - kk >= 4: q += post(u_); ready.remove((u_, kk))
            if fin is not None: ready.append((fin, k))
            if k in at: at[k]()
            due = sum(1 for x, k_ in ds if k_ <= k + lead)
            if due == 0 and vm_items and k >= lastvm + vmsp and (len(vm_items) > 1 or k >= lastk):
                a(vm_items.pop(0)); lastvm = k; continue
            cap = 2
            for _ in range(min(due, 3)): issue(); cap -= 1
            if cap == 2:
                if q and q[0].startswith("ds_"): a(q.pop(0)); order.append(99); cap -= 1
                elif ds: issue(); cap -= 1
            while cap > 0 and q and not q[0].startswith("ds_"):
                a(q.pop(0)); cap -= 1
        assert not ready
        while ds: issue()
        wait(98)
        for x in vm_items: a(x)
        for x in q[:4]: a(x)
        a(f"s_nop {max(0, 4 - len(q[:4]))}")
        for m, _ in last: a(m)
        for x in q[4:]: a(x)
        a(f"s_nop {max(0, 6 - len(q[4:]))}")
        for u in range(6, 9):
            for x in post(u): a(x)

    def gemm(self, reads, B, ACC, AF, late=(), at={}, per=2):
        a = self.a
        buf = lambda T: 18 * (T % 6)
        ng = 3 * (4 * per + 1)

        def grp(g):
            r = [reads(T, buf(T)) for T in range(3 * g, 3 * g + 3)]
            return [r[t][per * s + u] for s in range(4) for t in range(3) for u in range(per)] + [r[t][4 * per] for t in range(3)]
        rem = lambda T: f"v_mfma_f32_16x16x16_bf16 {vr(ACC+4*T,4)}, {ar(buf(T)+16,2)}, {vr(B+16,2)}, {vr(ACC+4*T,4)}"
        pend = grp(0) + grp(1) + grp(2) + list(late)
        issued = k = 0

        def issue(n):
            nonlocal issued
            for _ in range(n):
                if issued < len(pend): a(pend[issued]); issued += 1

        def mf(x):
            nonlocal k
            a(x); issue(per if per == 2 else (2 if k % 4 == 0 else 1))
            if k in at: a(at[k])
            k += 1
        issue(self.o.get('look', 12) if per == 2 else self.o.get('look1', 8))
        for g in range(3):
            for s in range(4):
                need = ng * g + 3 * per * (s + 1)
                a(f"s_waitcnt lgkmcnt({min(15, issued - need)})")
                for T in range(3 * g, 3 * g + 3):
                    d = vr(ACC + 4 * T, 4)
                    mf(f"v_mfma_f32_16x16x32_bf16 {d}, {ar(buf(T)+4*s,4)}, {vr(B+4*s,4)}, {'0' if s == 0 else d}")
                if s == 0 and g > 0:
                    for T in range(3 * g - 3, 3 * g): mf(rem(T))
                if g == 1 and s == 0: assert issued <= 2 * ng + 6 * per, "group 2 overwrites group 0 too early"
        issue(99)
        a(f"s_waitcnt lgkmcnt({len(late)})\ns_nop 2")
        for T in range(6, 9): a(rem(T))
        a("s_nop 7")

    def tr_reads(self, ad, rf=ar):
        def f(T, dst):
            out = []
            for s in range(4):
                for u in range(2):
                    out.append(f"ds_read_b64_tr_b16 {rf(dst+4*s+2*u,2)}, {vr(ad+u)} offset:{9216*s + 32*T}")
            out.append(f"ds_read_b64_tr_b16 {rf(dst+16,2)}, {vr(ad+2)} offset:{36864 + 32*T}")
            return out
        return f

    def row_reads(self, ad, sw=None):
        def f(T, dst):
            r = ad if sw is None or T == 8 else sw[T & 1]
            out = []
            for s in range(4):
                for u in range(2):
                    out.append(f"ds_read_b64 {ar(dst+4*s+2*u,2)}, {vr(r)} offset:{4864*T + 64*s + 32*u}")
            out.append(f"ds_read_b64 {ar(dst+16,2)}, {vr(r)} offset:{4864*T + 256}")
            return out
        return f

    def dma_rows(self, jobs, cpr, rstride, vo, vc, n_first, first_waves, lab):
        a = self.a
        mul = {18: 3641, 19: 3450}[cpr]
        dr, dc = 256 // cpr, 256 % cpr
        a(f"s_lshl_b32 {sr(S_T)}, {sr(S_W)}, 6")
        a(f"v_add_u32 {vr(vc)}, {sr(S_T)}, v0")
        a(f"v_mul_u32_u24 {vr(vo)}, {mul}, {vr(vc)}")
        a(f"v_lshrrev_b32 {vr(vo)}, 16, {vr(vo)}")
        a(f"v_mul_u32_u24 {vr(vc+1)}, {cpr}, {vr(vo)}")
        a(f"v_sub_u32 {vr(vc)}, {vr(vc)}, {vr(vc+1)}")
        a(f"v_mul_u32_u24 {vr(vo)}, {rstride}, {vr(vo)}")
        a(f"v_lshl_add_u32 {vr(vo)}, {vr(vc)}, 4, {vr(vo)}")
        a(f"s_lshl_b32 {sr(S_T)}, {sr(S_W)}, 10")
        a(f"v_mov_b32 {vr(vc+1)}, {rstride - 16*cpr}")
        for k in range(n_first):
            if k == n_first - 1:
                a(f"s_cmp_ge_u32 {sr(S_W)}, {first_waves}\ns_cbranch_scc1 {lab}")
            for srd, so, lb in jobs:
                a(f"s_add_u32 m0, {sr(S_T)}, {lb + 4096*k}")
                a("s_nop 0")
                a(f"buffer_load_dwordx4 {vr(vo)}, {sr(srd,4)}, {so} offen lds")
            if k < n_first - 1:
                a(f"v_add_u32 {vr(vc)}, {dc}, {vr(vc)}")
                a(f"v_cmp_le_u32 vcc, {cpr}, {vr(vc)}")
                a(f"v_add_u32 {vr(vo)}, {dr*rstride + 16*dc}, {vr(vo)}")
                a(f"v_subrev_u32 {vr(vc+2)}, {cpr}, {vr(vc)}")
                a(f"v_cndmask_b32 {vr(vc)}, {vr(vc)}, {vr(vc+2)}, vcc")
                a(f"v_cndmask_b32 {vr(vc+2)}, 0, {vr(vc+1)}, vcc")
                a(f"v_add_u32 {vr(vo)}, {vr(vo)}, {vr(vc+2)}")
        a.label(lab)

    def voff_table(self, dst, cpr, rstride, vc, step=256):
        a = self.a
        mul = {18: 29128, 19: 27595}[cpr]
        n = len(dst)
        a(f"s_mov_b32 {sr(S_T)}, {rstride - 16*cpr}")
        a(f"v_mul_u32_u24 {vr(dst[0])}, {mul}, {vr(vc)}")
        for k in range(1, n): a(f"v_add_u32 {vr(dst[k])}, {(step*k % cpr)*mul}, {vr(dst[0])}")
        for k in range(n): a(f"v_lshrrev_b32 {vr(dst[k])}, 19, {vr(dst[k])}")
        for k in range(n): a(f"v_mad_i32_i24 {vr(dst[k])}, {vr(dst[k])}, {sr(S_T)}, {vr(vc+1)}")

    def dma_lin(self, srd, soff, lb, v16, lab):
        a = self.a
        a(f"s_lshl_b32 {sr(S_T)}, {sr(S_W)}, 10")
        for k in range(11):
            if k == 10:
                a(f"s_cmp_ge_u32 {sr(S_W)}, 1\ns_cbranch_scc1 {lab}")
            a(f"s_add_u32 m0, {sr(S_T)}, {lb + 4096*k}")
            a(f"s_add_u32 {sr(S_T+1)}, {sr(S_T)}, {soff + 4096*k}")
            a(f"buffer_load_dwordx4 {vr(v16)}, {sr(srd,4)}, {sr(S_T+1)} offen lds")
        a.label(lab)

    def tr_addr(self, ad, base, swapped, t):
        a = self.a
        a(f"v_lshrrev_b32 {vr(t)}, 2, v0")
        a(f"v_mul_u32_u24 {vr(t)}, 288, {vr(t)}")
        a(f"v_and_b32 {vr(t+1)}, 3, v0")
        a(f"v_lshl_add_u32 {vr(t)}, {vr(t+1)}, 3, {vr(t)}")
        a(f"v_add_u32 {vr(ad+2)}, {base}, {vr(t)}")
        if swapped:
            a(f"v_bfe_u32 {vr(t)}, v0, 4, 1")
            a(f"v_mul_u32_u24 {vr(t)}, {16*288}, {vr(t)}")
            a(f"v_add_u32 {vr(ad)}, {vr(ad+2)}, {vr(t)}")
            a(f"v_sub_u32 {vr(ad+1)}, {vr(ad+2)}, {vr(t)}")
            a(f"v_add_u32 {vr(ad+1)}, {16*288}, {vr(ad+1)}")
        else:
            a(f"v_mov_b32 {vr(ad)}, {vr(ad+2)}")
            a(f"v_add_u32 {vr(ad+1)}, {16*288}, {vr(ad+2)}")

    def row_addr(self, ad, base, t):
        a = self.a
        a(f"v_and_b32 {vr(t)}, 15, v0")
        a(f"v_mul_u32_u24 {vr(t)}, 304, {vr(t)}")
        a(f"v_lshrrev_b32 {vr(t+1)}, 4, v0")
        a(f"v_lshl_add_u32 {vr(t)}, {vr(t+1)}, 3, {vr(t)}")
        a(f"v_add_u32 {vr(ad)}, {base}, {vr(t)}")

    def store_block(self, src, v16, v8, srd, soff, soff2, flags=""):
        a = self.a
        for s in range(4):
            a(f"buffer_store_dwordx4 {vr(src+4*s,4)}, {vr(v16)}, {sr(srd,4)}, {sr(soff)} offen offset:{1024*s} {flags}")
        a(f"buffer_store_dwordx2 {vr(src+16,2)}, {vr(v8)}, {sr(srd,4)}, {sr(soff2)} offen {flags}")

    def entry(self):
        a = self.a
        kernel_header(a, NAME)
        a(f"s_load_dwordx16 s[56:71], s[0:1], 0")
        a(f"s_load_dwordx8 s[72:79], s[0:1], 64")
        a(f"s_getpc_b64 {sr(S_W1,2)}")
        a.label("L_pf")
        a(f"""s_mov_b32 {sr(S_W1+2)}, L_dummy-L_pf
        s_mov_b32 {sr(S_W1+3)}, 0x20000
        v_lshlrev_b32 v2, 4, v0
        buffer_load_dwordx4 v[252:255], v2, {sr(S_W1,4)}, 0 offen
        s_lshl_b32 s3, s2, 9
        s_and_b32 s3, s3, 0x7000
        buffer_load_dwordx4 v[252:255], v2, {sr(S_W1,4)}, s3 offen
        v_lshrrev_b32 v1, 6, v0
        s_sub_u32 s2, s2, {NH}
        v_readfirstlane_b32 {sr(S_W)}, v1
        s_memrealtime s[4:5]
        s_cmp_ge_u32 s2, {NWG - NH}
        s_cbranch_scc1 L_wfuse""")
        if self.o.get("late"):
            m_, v_, n_ = self.o["late"]
            a(f"""s_and_b32 s3, s2, {m_}
            s_cmp_lg_u32 s3, {v_}
            s_cbranch_scc1 L_nl
            s_memrealtime s[4:5]
            s_waitcnt lgkmcnt(0)
            s_add_u32 s6, s4, {n_}
            L_lt:
            s_memrealtime s[4:5]
            s_waitcnt lgkmcnt(0)
            s_sub_u32 s7, s6, s4
            s_cmp_gt_i32 s7, 0
            s_cbranch_scc1 L_lt
            L_nl:""")
        if self.o.get("stamps"):
            a("s_memrealtime s[100:101]" if not self.o.get("cyc") else "s_memtime s[100:101]")
        self.mp = 2

    def vm_since(self, mark):
        return sum(1 for l in self.a.lines[mark:] if l.strip().startswith("buffer_"))

    def phase_a(self):
        a, o = self.a, self.o
        XR, XF, XA, ACC, G_, PK = 16, 34, 146, 110, 16, 164
        B4, XD = 16, 88
        VS, VSW, VR4, MXA, MXR, L8, TRU, TRQ, TRQ8, RK, TM = 200, 204, 208, 212, 213, 214, 215, 218, 221, 224, 228
        VK, VU = list(range(182, 193)), list(range(193, 200)) + list(range(104, 108))
        AQ1 = 200
        t0, t1, t2 = 250, 251, 227
        T = S_T
        WV, W10, UOFF, M1, PUB, M3 = 72, 70, 71, 69, 68, 65
        a(f"""v_and_b32 v0, 63, v0
        s_bfe_u32 {sr(S_B)}, s2, 0x10001
        s_lshr_b32 {sr(S_QB)}, s2, 2
        s_lshr_b32 {sr(T)}, {sr(S_W)}, 1
        s_xor_b32 {sr(T)}, {sr(T)}, s2
        s_andn2_b32 {sr(T)}, 1, {sr(T)}
        s_lshl1_add_u32 {sr(T+3)}, {sr(S_QB)}, {sr(T)}
        s_mul_i32 {sr(T)}, {sr(S_B)}, {NT}
        s_add_u32 {sr(T+1)}, {sr(T+3)}, {sr(T)}
        s_and_b32 {sr(T+2)}, {sr(S_W)}, 1
        s_lshl1_add_u32 {sr(T+2)}, {sr(T+1)}, {sr(T+2)}
        v_lshlrev_b32 {vr(V_DMA)}, 4, v0
        s_mul_i32 {sr(T+1)}, {sr(T+2)}, {16*288}
        s_mul_i32 {sr(S_LB)}, {sr(S_W)}, {BLK}
        s_add_u32 m0, {sr(S_LB)}, {L_XS}
        s_mov_b32 {sr(S_X+2)}, 2304000
        s_mov_b32 {sr(S_X+3)}, {sr(S_W1+3)}
        s_add_u32 {sr(S_CNT)}, {sr(T+1)}, 4096
        s_waitcnt lgkmcnt(0)
        s_mov_b64 {sr(S_X,2)}, s[56:57]""")
        for k in range(4): a(f"buffer_load_dwordx4 {vr(V_DMA)}, {sr(S_X,4)}, {sr(T+1)} offen offset:{1024*k} lds")
        a(f"s_add_u32 m0, {sr(S_LB)}, {L_XS + 4096}\ns_mov_b32 exec_hi, 0\nbuffer_load_dwordx4 {vr(V_DMA)}, {sr(S_X,4)}, {sr(S_CNT)} offen lds\ns_mov_b32 exec_hi, -1")
        mx = len(a.lines)
        a(f"""s_add_u32 {sr(S_LB)}, {sr(S_LB)}, {L_XS}
        s_and_b32 {sr(S_H)}, s2, 1
        s_lshl1_add_u32 {sr(S_TOWN)}, {sr(S_QB)}, {sr(S_H)}
        s_cmp_lt_u32 {sr(S_TOWN)}, {NT}
        s_cselect_b32 {sr(S_VAL)}, 1, 0
        s_add_u32 {sr(S_TOWN)}, {sr(S_TOWN)}, {sr(T)}""")
        SQ, SK, SU = S_W2, S_W1, S_XA
        self.srd(SU, 66, 67, 82944)
        self.srd(SQ, 58, 59, 41472)
        self.srd(SK, 60, 61, 41472)
        a(f"s_lshr_b32 {sr(T)}, s2, 3\ns_lshl_b32 {sr(T)}, {sr(T)}, 12\ns_lshl_b32 {sr(W10)}, {sr(S_W)}, 10\ns_add_u32 {sr(T)}, {sr(T)}, {sr(W10)}")
        a(f"buffer_load_dwordx4 v[252:255], {vr(V_DMA)}, {sr(SU,4)}, {sr(T)} offen")
        for srd_, rot in ((SQ, 82), (SK, 41)):
            a(f"s_add_u32 {sr(T+1)}, {sr(T)}, {(128 - rot) * 1024}\ns_and_b32 {sr(T+1)}, {sr(T+1)}, {127 * 1024}")
            a(f"buffer_load_dwordx4 v[252:255], {vr(V_DMA)}, {sr(srd_,4)}, {sr(T+1)} offen")
        self.srd(S_OUT, 74, 75, 2304000)
        self.srd(S_DB, 76, 77, 256)
        self.srd(S_WS, 78, 79, WS_END)
        def tlb():
            a(f"v_lshlrev_b32 v249, 21, v0")
            for ch in o.get("tlbw", "wdo"): a(f"buffer_load_dword v252, v249, {sr(dict(w=S_WS, d=S_DB, o=S_OUT)[ch],4)}, 0 offen")
        if o.get("tlb", 0) == 1: tlb()
        if o.get("tlb", 3) == 3:
            a(f"""s_bfe_u32 {sr(T)}, s2, 0x30003
            s_lshl_b32 {sr(T)}, {sr(T)}, 21
            v_mov_b32 v249, 0
            s_cmp_lt_u32 {sr(T)}, {5 << 21}
            s_cbranch_scc0 L_tl1
            buffer_load_dword v252, v249, {sr(S_WS,4)}, {sr(T)} offen
            s_branch L_tl3
            L_tl1:
            s_sub_u32 {sr(T)}, {sr(T)}, {5 << 21}
            s_cmp_lt_u32 {sr(T)}, {2 << 21}
            s_cbranch_scc0 L_tl2
            buffer_load_dword v252, v249, {sr(S_OUT,4)}, {sr(T)} offen
            s_branch L_tl3
            L_tl2:
            s_or_b32 s4, s4, 1
            v_lshlrev_b32 v249, 8, v0
            v_mov_b32 v250, s4
            s_lshl2_add_u32 s5, s2, {sr(S_W)}
            s_cmp_eq_u32 s5, {56 * 4}
            s_cbranch_scc0 L_tl4
            buffer_store_dword v250, v249, {sr(S_DB,4)}, 0 offen sc1
            s_branch L_tl3
            L_tl4:
            buffer_load_dword v252, v249, {sr(S_DB,4)}, 0 offen offset:128
            L_tl3:""")
            self.vm_adj = -3
        if o.get("tl4"):
            a(f"""s_mul_i32 {sr(T)}, {sr(S_TOWN)}, {TILE}
            v_lshlrev_b32 v249, 12, v0
            v_add_u32 v249, {sr(T)}, v249
            s_mov_b64 exec, 7
            buffer_load_dword v252, v249, {sr(S_WS,4)}, 0 offen
            s_mov_b64 exec, -1""")
        if o.get("stamps"): a(f"s_mov_b64 {sr(S_ST,2)}, s[100:101]"); self.stnames.append("start"); self.nst = 1
        self.stamp("xiss")
        a(f"""s_cmp_lt_u32 {sr(T+3)}, {NT}
        s_cselect_b32 {sr(WV)}, 1, 0
        s_mov_b32 {sr(WV+1)}, {sr(T+2)}
        s_mul_i32 {sr(UOFF)}, {sr(S_H)}, 288
        s_cmp_eq_u32 {sr(S_W)}, 0
        s_cselect_b32 {sr(M1)}, 0, {L_DUMP}
        s_cmp_lt_u32 {sr(S_W)}, 3
        s_cselect_b32 {sr(M3)}, {sr(W10)}, {L_DUMP}""")
        half = lambda g_: "s_mov_b32 exec_hi, 0\n" + g_ + "\ns_mov_b32 exec_hi, -1"
        gu = [f"s_add_u32 m0, {sr(W10 if k < 10 else M1)}, {L_WU + 4096*k}\ns_add_u32 {sr(S_CNT)}, {sr(UOFF)}, {4096*k + 288*(256*k//18)}\nbuffer_load_dwordx4 {vr(VU[k])}, {sr(SU,4)}, {sr(S_CNT)} offen lds" for k in range(11)]
        gu[10] = half(gu[10])
        gq = [f"s_add_u32 m0, {sr(W10 if k < 10 else M1)}, {L_WQ + 4096*k}\ns_add_u32 {sr(S_CNT)}, {sr(W10)}, {4096*k}\nbuffer_load_dwordx4 {vr(V_DMA)}, {sr(SQ,4)}, {sr(S_CNT)} offen lds" for k in range(11)]
        gq[10] = half(gq[10])
        gk = [f"s_add_u32 m0, {sr(W10 if k < 10 else M3)}, {L_WK + 4096*k}\ns_mov_b32 {sr(S_CNT)}, {4096*k - 16*(256*k//19)}\nbuffer_load_dwordx4 {vr(VK[k])}, {sr(SK,4)}, {sr(S_CNT)} offen lds" for k in range(11)]
        a(f"s_lshl_b32 {sr(T)}, {sr(S_W)}, 6\nv_add_u32 {vr(t0)}, {sr(T)}, v0\nv_lshlrev_b32 {vr(t1)}, 4, {vr(t0)}")
        self.voff_table(VU, 18, 576, t0)
        npre = o.get("npre", 3)
        a.bg, a.every, a.cnt = gu[:npre], o.get("evpre", 40), 0
        self.voff_table(VK, 19, 288, t0)
        xa0, xa1, xa2 = TM, TM + 1, TM + 2
        a(f"""v_and_b32 {vr(t0)}, 15, v0
        v_lshrrev_b32 {vr(t1)}, 5, v0
        v_lshlrev_b32 {vr(t1)}, 3, {vr(t1)}
        v_xor_b32 {vr(t1)}, {vr(t0)}, {vr(t1)}
        v_lshlrev_b32 {vr(t1)}, 4, {vr(t1)}
        v_lshrrev_b32 {vr(t2)}, 4, v0
        v_lshl_add_u32 {vr(V_KA)}, {vr(t2)}, 9, {vr(t1)}
        v_lshrrev_b32 {vr(t1)}, 3, {vr(t0)}
        v_lshlrev_b32 {vr(t1)}, 1, {vr(t1)}
        v_xor_b32 {vr(t1)}, {vr(t2)}, {vr(t1)}
        v_lshl_add_u32 {vr(t1)}, {vr(t0)}, 2, {vr(t1)}
        v_lshlrev_b32 {vr(V_KA+1)}, 3, {vr(t1)}
        v_lshlrev_b32 {vr(L8)}, 3, v0
        v_lshlrev_b32 {vr(MXR)}, 4, {vr(t0)}
        v_add_u32 {vr(MXR)}, {L_MX}, {vr(MXR)}
        v_add_u32 {vr(MXA)}, {sr(S_W)}, {vr(t2)}
        v_and_b32 {vr(MXA)}, 3, {vr(MXA)}
        v_lshl_add_u32 {vr(MXA)}, {vr(MXA)}, 8, {vr(MXR)}
        s_lshl_b32 {sr(T)}, {sr(S_W)}, 2
        v_add_u32 {vr(MXA)}, {sr(T)}, {vr(MXA)}
        v_mul_u32_u24 {vr(xa2)}, 288, {vr(t0)}
        v_lshl_add_u32 {vr(xa2)}, {vr(t2)}, 3, {vr(xa2)}
        v_add_u32 {vr(xa2)}, {sr(S_LB)}, {vr(xa2)}
        v_and_b32 {vr(t1)}, 1, {vr(t2)}
        v_lshlrev_b32 {vr(t1)}, 5, {vr(t1)}
        v_add_u32 {vr(xa0)}, {vr(xa2)}, {vr(t1)}
        v_xor_b32 {vr(t1)}, 32, {vr(t1)}
        v_add_u32 {vr(xa1)}, {vr(xa2)}, {vr(t1)}
        s_mul_i32 {sr(S_LB)}, {sr(S_W)}, {TILE}
        v_lshrrev_b32 {vr(t0)}, 2, v0
        v_bfe_u32 {vr(t1)}, v0, 1, 1
        v_lshlrev_b32 {vr(t1)}, 3, {vr(t1)}
        v_xor_b32 {vr(t1)}, {vr(t0)}, {vr(t1)}
        v_lshlrev_b32 {vr(t1)}, 4, {vr(t1)}
        v_and_b32 {vr(t2)}, 3, v0
        v_lshl_add_u32 {vr(t1)}, {vr(t2)}, 9, {vr(t1)}
        v_and_b32 {vr(V_VA)}, 1, v0
        v_lshl_add_u32 {vr(t1)}, {vr(V_VA)}, 3, {vr(t1)}
        s_and_b32 {sr(T)}, {sr(S_W)}, 1
        s_lshl_b32 {sr(T)}, {sr(T)}, 12
        s_add_u32 {sr(T+1)}, {sr(T)}, {sr(S_LB)}
        s_xor_b32 {sr(T)}, {sr(T)}, 4096
        s_add_u32 {sr(T)}, {sr(T)}, {sr(S_LB)}
        v_add_u32 {vr(V_VA)}, {sr(T)}, {vr(t1)}
        v_add_u32 {vr(V_VB)}, {sr(T+1)}, {vr(t1)}
        v_xor_b32 {vr(V_VA+1)}, 8, {vr(V_VA)}
        v_xor_b32 {vr(V_VB+1)}, 8, {vr(V_VB)}
        v_lshrrev_b32 {vr(t1)}, 5, v0
        v_lshlrev_b32 {vr(t1)}, 1, {vr(t1)}
        v_xor_b32 {vr(t1)}, {vr(t2)}, {vr(t1)}
        v_lshl_add_u32 {vr(t1)}, {vr(t0)}, 2, {vr(t1)}
        v_lshlrev_b32 {vr(t1)}, 3, {vr(t1)}
        v_add_u32 {vr(V_VR)}, {sr(S_LB)}, {vr(t1)}
        v_add_u32 {vr(V_DMA+1)}, 4096, {vr(V_DMA)}
        v_add_u32 {vr(V_DMA+2)}, 8192, {vr(V_DMA)}""")
        self.tr_addr(TRU, L_WU, True, t0)
        a(f"s_lshl_b32 {sr(T)}, {sr(S_W)}, 6\ns_add_u32 {sr(T)}, {sr(T)}, {L_WQ - L_WU}")
        for k in range(3):
            a(f"v_add_u32 {vr(TRQ+k)}, {sr(T)}, {vr(TRU+k)}\nv_add_u32 {vr(TRQ8+k)}, {L_WQ - L_WU + 256}, {vr(TRU+k)}")
        self.row_addr(RK + 2, L_WK + 8 * 4864, t0)
        a(f"""s_mul_i32 {sr(T)}, {sr(S_W)}, {2*4864}
        s_sub_u32 {sr(T)}, {sr(T)}, {8*4864}
        v_add_u32 {vr(t1)}, {sr(T)}, {vr(RK+2)}
        v_bfe_u32 {vr(t0)}, v0, 2, 1
        v_mul_u32_u24 {vr(t0)}, 4864, {vr(t0)}
        v_add_u32 {vr(RK)}, {vr(t1)}, {vr(t0)}
        v_sub_u32 {vr(RK+1)}, {vr(t1)}, {vr(t0)}""")
        for j in range(4):
            a(f"""s_add_u32 {sr(T)}, {sr(S_W)}, {j}
            s_and_b32 {sr(T)}, {sr(T)}, 3
            s_lshl_b32 {sr(T+1)}, {sr(T)}, 12
            s_add_u32 {sr(T+1)}, {sr(T+1)}, {L_XX}
            v_add_u32 {vr(VS+j)}, {sr(T+1)}, {vr(V_DMA)}
            s_lshl_b32 {sr(T+1)}, {sr(T)}, 9
            s_add_u32 {sr(T+1)}, {sr(T+1)}, {L_XR}
            v_add_u32 {vr(VR4+j)}, {sr(T+1)}, {vr(L8)}
            v_add_u32 {vr(VSW+j)}, {sr(W10)}, {vr(VS+j)}""")
        a(f"""s_sub_u32 {sr(T+2)}, 63, {sr(S_H)}
        s_add_u32 {sr(T+3)}, {sr(S_W)}, 60
        s_cmp_ge_u32 {sr(T+3)}, {sr(T+2)}
        s_cselect_b32 {sr(S_DUM)}, 4, 99
        s_mov_b32 {sr(S_REDO)}, 0
        s_mov_b32 {sr(S_TOFF)}, {sr(S_LB)}
        s_lshl_b32 {sr(PUB)}, {sr(S_TOWN)}, 8
        s_add_u32 {sr(PUB)}, {sr(PUB)}, {WS_F}
        s_and_b32 {sr(T)}, {sr(S_W)}, 1
        s_lshl_b32 {sr(T)}, {sr(T)}, 7
        s_add_u32 {sr(PUB)}, {sr(PUB)}, {sr(T)}
        s_lshr_b32 {sr(T)}, {sr(S_W)}, 1
        s_and_b32 {sr(T)}, {sr(T)}, {sr(S_VAL)}
        s_cmp_eq_u32 {sr(T)}, 1
        s_cselect_b32 {sr(PUB)}, {sr(PUB)}, 0x40000000
        s_lshl_b32 {sr(S_FB)}, s2, 8
        s_add_u32 {sr(S_FB)}, {sr(S_FB)}, {WS_F + 250*256}
        s_mul_i32 {sr(T)}, {sr(S_H)}, 1792
        s_sub_u32 {sr(T)}, {sr(T)}, 768
        s_mul_i32 {sr(T+1)}, {sr(S_H)}, 62
        s_cmp_eq_u32 {sr(S_QB)}, {sr(T+1)}
        s_cselect_b32 {sr(T)}, 0, {sr(T)}
        v_mov_b32 {vr(self.VPL)}, 0x40000000
        s_xor_b32 {sr(T+1)}, {sr(S_FB)}, 256
        s_add_u32 {sr(T)}, {sr(T)}, {sr(S_FB)}
        v_writelane_b32 {vr(self.VPL)}, {sr(S_FB)}, 0
        v_writelane_b32 {vr(self.VPL)}, {sr(T+1)}, 1
        v_writelane_b32 {vr(self.VPL)}, {sr(T)}, 2
        s_mov_b32 {sr(T)}, {WS_F + 502*256}
        s_mov_b32 {sr(T+1)}, {WS_F + 503*256}
        v_writelane_b32 {vr(self.VPL)}, {sr(T)}, 3
        v_writelane_b32 {vr(self.VPL)}, {sr(T+1)}, 4
        s_sub_u32 {sr(S_FB)}, {sr(S_FB)}, {L_PC}""")
        a.flush()
        if o.get("tlb", 0) == 2: tlb()
        self.stamp("pre")
        if o.get("es", 0) == 0: self.epi_setup()
        self.stamp("es")
        nx = self.vm_since(mx) + getattr(self, "vm_adj", 0)
        if o.get("touch", 1):
            a(f"""s_mov_b64 exec, 0
            s_cmp_eq_u32 {sr(S_W)}, 0
            s_cbranch_scc1 L_tr
            s_cmp_eq_u32 {sr(S_W)}, 1
            s_cbranch_scc1 L_t0
            s_cmp_eq_u32 {sr(S_W)}, 2
            s_cbranch_scc1 L_t1
            s_branch L_t2""")
            self.rare()
            a.raw(".p2align 12")
            a.label("L_tr")
            a("s_mov_b64 exec, -1")
        nlate = o.get("nlate", 0)
        for g_ in gu[npre:npre + nlate]: a(g_)
        a(f"s_waitcnt vmcnt({nx + nlate})")
        self.stamp("xarr")
        for s in range(4):
            a(f"ds_read_b64 {vr(XR+4*s,2)}, {vr(xa0)} offset:{64*s}\nds_read_b64 {vr(XR+4*s+2,2)}, {vr(xa1)} offset:{64*s}")
        a(f"ds_read_b64 {vr(XR+16,2)}, {vr(xa2)} offset:256")
        a(f"""s_and_b32 {sr(T)}, {sr(S_W)}, 1
        s_mul_i32 {sr(T+2)}, {sr(S_TOWN)}, {TILE}
        s_cmp_eq_u32 {sr(S_VAL)}, 1
        s_cselect_b32 {sr(T+2)}, {sr(T+2)}, 0x40000000
        s_lshl_b32 {sr(T+3)}, {sr(T)}, 8
        s_add_u32 {sr(T+3)}, {sr(T+3)}, {sr(T+2)}
        s_add_u32 {sr(T+4)}, {sr(T+3)}, 4096
        s_lshl_b32 {sr(T+5)}, {sr(T)}, 9
        s_add_u32 {sr(T+5)}, {sr(T+5)}, {sr(T+2)}
        s_add_u32 {sr(T+5)}, {sr(T+5)}, 8192
        s_waitcnt lgkmcnt(0)""")
        wl = gq + gk
        a.bg, a.every, a.cnt = gu[npre + nlate:] + [wl.pop(0) for _ in range(o.get("nql", 11))], o.get("evln", 5), 0
        self.ln_packed(XR, XF, XA, TM)
        a.flush()
        self.stamp("ln")
        a(f"s_cmp_lt_u32 {sr(S_W)}, 2\ns_cbranch_scc1 L_nop")
        for s in range(4):
            a(f"buffer_store_dwordx4 {vr(XA+4*s,4)}, {vr(V_KA)}, {sr(S_WS,4)}, {sr(T+3+(s>>1))} offen offset:{2048*(s&1)} {o.get('pfl', 'sc1')}")
        a(f"buffer_store_dwordx2 {vr(XA+16,2)}, {vr(V_KA+1)}, {sr(S_WS,4)}, {sr(T+5)} offen {o.get('pfl', 'sc1')}\ns_waitcnt vmcnt({5 + o.get('nql', 11)})\ns_branch L_bar1")
        a.label("L_nop")
        if o.get("touch", 1):
            a(f"s_mov_b64 exec, 0\ns_cmp_eq_u32 {sr(S_W)}, 0\ns_cbranch_scc1 L_t3\ns_branch L_t4")
            a.label("L_tr2")
            a("s_mov_b64 exec, -1")
        a(f"s_waitcnt vmcnt({o.get('nql', 11)})")
        a.label("L_bar1")
        self.stamp("pub")
        xw = [f"ds_write_b128 {vr(VS)}, {vr(XA+4*s,4)} offset:{1024*s}" for s in range(4)] + [f"ds_write_b64 {vr(VR4)}, {vr(XA+16,2)}"]
        self.stamp("tch")
        PA = 249
        a(f"""v_add_u32 {vr(V_KA)}, {sr(S_LB)}, {vr(V_KA)}
        v_add_u32 {vr(V_KA+1)}, {sr(S_LB)}, {vr(V_KA+1)}
        s_mul_i32 {sr(T)}, {sr(S_B)}, {NT}
        s_mul_i32 {sr(T+1)}, {sr(S_H)}, 63
        s_add_u32 {sr(T)}, {sr(T)}, {sr(T+1)}
        s_lshl_b32 {sr(T)}, {sr(T)}, 8
        s_add_u32 {sr(T)}, {sr(T)}, {WS_F}
        s_cmp_eq_u32 {sr(S_W)}, 0
        {"" if o.get("gatepos", 0) else f"s_cselect_b32 {sr(T)}, {sr(T)}, 0x40000000"}
        v_lshl_add_u32 {vr(PA)}, v0, 8, {sr(T)}
        {self.xa_srd()}
        s_waitcnt lgkmcnt(0)""")
        self.stamp("w1")
        a("s_barrier")
        self.stamp("bar1")
        m_b1 = len(a.lines)
        poll = lambda r: f"buffer_load_dword {vr(r)}, {vr(PA)}, {sr(S_WS,4)}, 0 offen sc1\nbuffer_load_dword {vr(r+2)}, {vr(PA)}, {sr(S_WS,4)}, 0 offen offset:128 sc1"

        def gate(lab, r, mask, younger):
            a(f"s_mov_b32 {sr(T+2)}, 0\ns_waitcnt vmcnt({younger})")
            a.label(lab)
            a(f"""v_cmp_ne_u32 vcc, {sr(S_N)}, {vr(r)}
            v_cmp_ne_u32 {sr(T+10,2)}, {sr(S_N)}, {vr(r+2)}
            s_add_u32 {sr(T+2)}, {sr(T+2)}, 1
            s_or_b64 vcc, vcc, {sr(T+10,2)}
            s_and_b64 vcc, vcc, {mask}
            s_cbranch_scc0 {lab}_ok
            s_sleep {o.get("slp", 4)}
            {poll(r)}
            s_waitcnt vmcnt(0)
            s_cmp_lt_u32 {sr(T+2)}, 0x40000
            s_cbranch_scc1 {lab}""")
            a.label(lab + "_ok")

        H, G_, UG, MS, CL = 16, 52, 208, 110, 104
        nup = o.get("nup", 5)
        at = {o.get("u0", 6) + o.get("usp", 6) * i: wl.pop(0) for i in range(nup)}
        for i in range(5): at[i] = xw[i]
        tagld = f"buffer_load_dword v253, off, {sr(S_DB,4)}, 0 sc1"
        tag1 = tagld.replace("sc1", o.get("tgf", "sc1")).strip()
        at[o.get("tgp", 5)] = tag1
        if o.get("es", 0) == 1:
            n_ = len(a.lines); self.epi_setup()
            el = [l.strip() for l in a.lines[n_:]]; del a.lines[n_:]
            for k in range(5, 42):
                if k in at: continue
                c_ = 0
                while el and c_ < o.get("esn", 2):
                    x = el.pop(0); at[k] = at.get(k, "") + x + "\n"; c_ += 1 if x.startswith("v_") else 0.5
            self.es_left = el
        self.gemm(self.tr_reads(TRU), XA, H, None, at=at)
        if o.get("es", 0) == 1:
            for x in self.es_left: a(x)
        self.stamp("up")
        p = lambda r: vr(r, 2)
        CC = TM
        c1 = -2.0 * math.sqrt(2.0 / math.pi) * LOG2E
        c2 = c1 * 0.044715
        gst = [[f"v_pk_mul_f32 {p(G_+2*i)}, {p(H+2*i)}, {p(H+2*i)}" for i in range(18)] +
               [f"v_pk_fma_f32 {p(G_+2*i)}, {p(G_+2*i)}, {p(CC+2)}, {p(CC)} op_sel_hi:[1,0,0]" for i in range(18)] +
               [f"v_pk_mul_f32 {p(G_+2*i)}, {p(G_+2*i)}, {p(H+2*i)}" for i in range(18)],
               [f"v_exp_f32 {vr(G_+i)}, {vr(G_+i)}" for i in range(36)],
               [f"v_pk_add_f32 {p(G_+2*i)}, {p(G_+2*i)}, {p(CC+4)} op_sel_hi:[1,0]" for i in range(18)],
               [f"v_rcp_f32 {vr(G_+i)}, {vr(G_+i)}" for i in range(36)],
               [f"v_pk_mul_f32 {p(H+2*i)}, {p(G_+2*i)}, {p(H+2*i)}" for i in range(18)]]
        gs = o.get("gs", 0)
        if gs:
            a(f"v_mov_b32 {vr(CC)}, {f32(c1)}\nv_mov_b32 {vr(CC+2)}, {f32(c2)}\nv_mov_b32 {vr(CC+4)}, 1.0")
            pre = [x for st_ in gst[:gs] for x in st_]
            ngw = o.get("ngw", 0)
            for i, x in enumerate(pre):
                a(x)
                if ngw and i % o.get("gwsp", 8) == 2 and wl: a(wl.pop(0)); ngw -= 1
            self.stamp("gea")
        last = lambda srd: max(i for i, l in enumerate(a.lines) if l.strip().startswith("buffer_load") and sr(srd, 4) in l) + 1
        assert not any(sr(SQ, 4) in x for x in wl)
        nq_ = self.vm_since(m_b1) + (5 if last(SQ) < m_b1 else 0) if last(SQ) < m_b1 else self.vm_since(last(SQ))
        a(f"s_waitcnt vmcnt({self.vm_since(m_b1) if last(SQ) < m_b1 else nq_}) lgkmcnt(0)" if False else "")
        if last(SQ) < m_b1:
            a(f"s_cmp_lt_u32 {sr(S_W)}, 2\ns_cbranch_scc1 L_bg0\ns_waitcnt vmcnt({5 + self.vm_since(m_b1)})\ns_branch L_bg1\nL_bg0:\ns_waitcnt vmcnt({self.vm_since(m_b1)})\nL_bg1:\ns_waitcnt lgkmcnt(0)\ns_barrier")
        else: a(f"s_waitcnt vmcnt({self.vm_since(last(SQ))}) lgkmcnt(0)\ns_barrier")

        def flag():
            n_ = self.vm_since(max(i for i, l in enumerate(a.lines) if l.strip() == tag1) + 1)
            a(f"v_lshrrev_b32 {vr(t0)}, 5, v0\nv_lshlrev_b32 {vr(t0)}, 30, {vr(t0)}\nv_lshl_add_u32 {vr(t0)}, v0, 2, {vr(t0)}\ns_mov_b32 {sr(T+5)}, 0\ns_waitcnt vmcnt({n_})")
            a.label("L_tag")
            a(f"""v_readfirstlane_b32 {sr(S_N)}, v253
            s_add_u32 {sr(T+5)}, {sr(T+5)}, 1
            s_cmp_lg_u32 {sr(S_N)}, 0
            s_cbranch_scc1 L_tag_ok
            {tagld}
            s_waitcnt vmcnt(0)
            s_cmp_lt_u32 {sr(T+5)}, 0x40000
            s_cbranch_scc1 L_tag""")
            a.label("L_tag_ok")
            a(f"v_mov_b32 {vr(t1)}, {sr(S_N)}\nbuffer_store_dword {vr(t1)}, {vr(t0)}, {sr(S_WS,4)}, {sr(PUB)} offen sc1")
            self.m_fl = len(a.lines)
            self.stamp("flag")
        self.stamp("barG")
        if o.get("atw"):
            a("s_waitcnt vmcnt(0)")
            self.stamp("ack")
        if o.get("census"):
            k_ = S_ST + 2 * self.stnames.index(o["census"][0])
            a(f"s_waitcnt lgkmcnt(0)\nv_mov_b32 v252, {sr(k_)}\ns_lshl_b32 {sr(T)}, s2, 2\ns_add_u32 {sr(T)}, {sr(T)}, {WS_DBG}\nv_mov_b32 v253, 0\nbuffer_store_dword v252, v253, {sr(S_WS,4)}, {sr(T)} offen sc1")

        def a_tr(t):
            ad, off = (TRQ, 32 * t) if t < 2 else (TRQ8, 0)
            return [f"ds_read_b64_tr_b16 {ar(AQ1+18*t+4*s+2*u,2)}, {vr(ad+u)} offset:{9216*s + off}" for s in range(4) for u in range(2)] + \
                   [f"ds_read_b64_tr_b16 {ar(AQ1+18*t+16,2)}, {vr(ad+2)} offset:{36864 + off}"]

        def a_row(t):
            off = 4864 * t if t < 2 else 0
            return [f"ds_read_b64 {ar(A_Q+18*t+4*s+2*u,2)}, {vr(RK+t)} offset:{off + 64*s + 32*u}" for s in range(4) for u in range(2)] + \
                   [f"ds_read_b64 {ar(A_Q+18*t+16,2)}, {vr(RK+t)} offset:{off + 256}"]
        bq = lambda j, d=0: [f"ds_read_b128 {ar(18*j+4*s,4)}, {vr(VS+j)} offset:{d + 1024*s}" for s in range(4)] + [f"ds_read_b64 {ar(18*j+16,2)}, {vr(VR4+j)} offset:{d}"]

        def post(u, scale, d):
            L = [f"v_mul_f32 {vr(ACC+4*u+i)}, {sr(T+4)}, {vr(ACC+4*u+i)}" for i in range(4)] if scale else []
            L += [f"v_cvt_pk_bf16_f32 {vr(PK + (4*(u&3) + 2*(u>>2) if u < 8 else 16) + h)}, {vr(ACC+4*u+2*h)}, {vr(ACC+4*u+2*h+1)}" for h in range(2)]
            if 4 <= u < 8: L.append(f"ds_write_b128 {vr(VSW+u-4)}, {vr(PK+4*(u-4),4)} offset:{d}")
            if u == 8: L.append(f"ds_write_b64 {vr(VR4)}, {vr(PK+16,2)} offset:{d}")
            return L
        fl2 = o.get("fl2", 1)
        self.m_fl = 0
        xd = [f"ds_read_b128 {vr(XD+4*j,4)}, {vr(VSW+j)}" for j in range(4)]
        self.gemm_u(AQ1, ar, [("v", XA), ("a", 18), ("a", 36), ("a", 54)], ACC, a_tr, lambda j: bq(j) if j else None, lambda u: post(u, False, L_QD),
                    vm_items=wl, other=xd, vmsp=o.get("vmsp", 3), at={o.get("flp", 22): flag} if fl2 < 0 else {})
        self.stamp("g1")
        for i in range(4): a(f"v_mov_b32 {vr(CL+i)}, -1")
        a(f"s_lshl2_add_u32 {sr(T+2)}, s2, {sr(S_W)}\ns_mul_i32 {sr(T+2)}, {sr(T+2)}, 2560\ns_add_u32 {sr(T+2)}, {sr(T+2)}, {WS_IB}")
        a(f"s_mov_b32 {sr(T+4)}, {f32(LOG2E / 12.0)}\ns_waitcnt vmcnt({self.vm_since(max(last(SK), self.m_fl)) + (last(SK) < self.m_fl)}) lgkmcnt(0)\ns_barrier")
        T2 = T + 2
        clr = [f"buffer_store_dwordx4 {vr(CL,4)}, {vr(V_DMA)}, {sr(S_WS,4)}, {sr(T+2)} offen sc1",
               f"buffer_store_dwordx4 {vr(CL,4)}, {vr(V_DMA)}, {sr(S_WS,4)}, {sr(T+2)} offen offset:1024 sc1",
               f"buffer_store_dwordx2 {vr(CL,2)}, {vr(L8)}, {sr(S_WS,4)}, {sr(T+2)} offen offset:2048 sc1"]
        self.stamp("bar2")
        gp_ = o.get("gatepos", 0)
        cl1 = not o.get("cll", 1)
        self.gemm_u(A_Q, ar, [("a", 18 * j) for j in range(4)], ACC, a_row, lambda j: bq(j, L_QD), lambda u: post(u, True, 0), vm_items=((clr if cl1 else []) + [poll(252)] if gp_ == 0 else clr if cl1 else []), vm0=o.get("pg", 6), vmsp=o.get("csp", 3),
                    lastk=o.get("plk", 26) if gp_ == 0 else 0, at={fl2: flag} if fl2 >= 0 else {})
        self.stamp("g2")
        p = lambda r: vr(r, 2)
        CC = TM
        for j in range(4): a(f"v_dot2_f32_bf16 {vr(CC+j)}, {vr(PK+4*j)}, {vr(XD+4*j)}, 0")
        for i in range(2): a(f"v_dot2_f32_bf16 {vr(CC)}, {vr(PK+16+i)}, {vr(XA+16+i)}, {vr(CC)}")
        for i in range(1, 4):
            for j in range(4): a(f"v_dot2_f32_bf16 {vr(CC+j)}, {vr(PK+4*j+i)}, {vr(XD+4*j+i)}, {vr(CC+j)}")
        QE = VS if gs else TRQ
        a(f"""s_xor_b32 {sr(T+1)}, {sr(self.NB)}, 1
        v_add_u32 {vr(t0)}, {L_XX}, {vr(V_DMA)}
        v_lshl_add_u32 {vr(QE)}, {sr(T+1)}, 12, {vr(t0)}
        v_lshl_add_u32 {vr(QE+1)}, {sr(self.NB)}, 12, {vr(t0)}""")
        self.treduce(CC)
        a(f"""ds_write_b32 {vr(MXA)}, {vr(CC)}
        v_add_u32 {vr(t0)}, {L_XR}, {vr(L8)}
        v_lshl_add_u32 {vr(QE+2)}, {sr(T+1)}, 9, {vr(t0)}
        v_lshl_add_u32 {vr(QE+3)}, {sr(self.NB)}, 9, {vr(t0)}
        v_lshl_add_u32 {vr(QE+4)}, {sr(T+1)}, 8, {vr(MXR)}
        v_lshl_add_u32 {vr(QE+5)}, {sr(self.NB)}, 8, {vr(MXR)}
        s_sub_u32 {sr(T+5)}, 63, {sr(S_H)}
        s_bfm_b64 {sr(T+8,2)}, {sr(T+5)}, 0
""")
        if gp_ == 0:
            a(f"s_cmp_lg_u32 {sr(S_W)}, 0\ns_cbranch_scc1 L_ga_ok")
            gate("L_ga", 252, sr(T + 8, 2), 0)
        else: a(poll(252))
        a("s_waitcnt lgkmcnt(0)\ns_barrier")
        self.stamp("bar3")
        qrd = [f"ds_read_b128 {vr(MS+4*qb,4)}, {vr(QE+4+(qb&1))} offset:{512*(qb>>1)}" for qb in range(4)]
        for qb in range(4):
            qrd += [f"ds_read_b128 {ar(A_Q+18*qb+4*s,4)}, {vr(QE+(qb&1))} offset:{8192*(qb>>1) + 1024*s}" for s in range(4)]
            qrd.append(f"ds_read_b64 {ar(A_Q+18*qb+16,2)}, {vr(QE+2+(qb&1))} offset:{1024*(qb>>1)}")
        if gs:
            tg = self.tile_groups(0) + self.tile_groups(1)
            n0 = o.get("n0", 3)
            for x in tg[:n0]: a(x)
            tg = tg[n0:]
            if gs < 3: a(f"v_mov_b32 {vr(CC+4)}, 1.0")
            mem = []
            qpd = o.get("qpd", 2)
            while tg or qrd:
                it = []
                if tg: it.append(tg.pop(0))
                it += [qrd.pop(0) for _ in range(min(qpd, len(qrd)))]
                mem.append("\n".join(it))
            com = [x for st_ in gst[gs:] for x in st_]
            ev = o.get("gev", 3)
            for i, x in enumerate(com):
                a(x)
                if i % ev == ev - 1 and mem: a(mem.pop(0))
            a(f"""s_mul_i32 {sr(T)}, {sr(WV+1)}, {BLK}
            s_cmp_eq_u32 {sr(S_H)}, 1
            s_cbranch_scc1 L_ln2
            s_add_u32 {sr(T)}, {sr(T)}, {WS_U}""")
            m0_ = list(mem)
            for i in range(18):
                a(f"v_cvt_pk_bf16_f32 {vr(UG+i)}, {vr(H+2*i)}, {vr(H+2*i+1)}")
                if i % o.get("gev0", 2) == 1 and m0_: a(m0_.pop(0))
            for x in m0_: a(x)
            a("s_branch L_ug")
            a.label("L_ln2")
            a(f"s_add_u32 {sr(T)}, {sr(T)}, {WS_G}")
            a.bg, a.every, a.cnt = list(mem), o.get("gev1", 6), 0
            self.ln_f32(H, UG, TM)
            a.flush()
            a.label("L_ug")
            m_t0 = m_t1 = None
        else:
            tg = self.tile_groups(0) + self.tile_groups(1) + self.tile_groups(2)[:8]
            n0 = o.get("n0", 3) if gp_ == 0 else 0
            for x in tg[:n0]: a(x)
            a(f"v_mov_b32 {vr(CC)}, {f32(c1)}\nv_mov_b32 {vr(CC+2)}, {f32(c2)}\nv_mov_b32 {vr(CC+4)}, 1.0")
            nq1, nt1 = (o.get("nq1", 8), o.get("nt1", 5)) if gp_ == 0 else (o.get("nq1", 16), 0)
            bgl = []
            for i in range(max(nq1 // 2, nt1)):
                if 2 * i < nq1: bgl.append(qrd[2 * i] + "\n" + qrd[2 * i + 1])
                if i < nt1: bgl.append(tg[n0 + i])
            tg, qrd = tg[n0 + nt1:], qrd[nq1:]
            a.bg, a.every, a.cnt = bgl, 54 // (len(bgl) + 1), 0
            for x in gst[0]: a(x)
            a.flush()
            if gp_:
                self.stamp("ge0")
                gate("L_ga", 252, sr(T + 8, 2), 0)
                for x in tg[:2]: a(x)
                tg = tg[2:]
            self.stamp("ge1")
            esp = o.get("esp", 3 if gp_ else 4)
            for i in range(36):
                a(gst[1][i])
                if i % esp == 1 and tg: a(tg.pop(0))
                if i % 8 == 3 and qrd: a(qrd.pop(0)); a(qrd.pop(0))
            self.stamp("ge2")
            for x in gst[2]: a(x)
            for i in range(36):
                a(gst[3][i])
                if i % esp == 1 and tg: a(tg.pop(0))
                if i % 8 == 3 and qrd: a(qrd.pop(0)); a(qrd.pop(0))
            assert not tg and not qrd
            idx = [i for i, l in enumerate(a.lines) if l.strip().startswith("buffer_load") and l.rstrip().endswith("lds")]
            m_t0, m_t1 = idx[-18] + 1, idx[-9] + 1
            for x in gst[4]: a(x)
            a(f"""s_mul_i32 {sr(T)}, {sr(WV+1)}, {BLK}
            s_cmp_eq_u32 {sr(S_H)}, 1
            s_cbranch_scc1 L_ln2
            s_add_u32 {sr(T)}, {sr(T)}, {WS_U}""")
            for i in range(18): a(f"v_cvt_pk_bf16_f32 {vr(UG+i)}, {vr(H+2*i)}, {vr(H+2*i+1)}")
            a("s_branch L_ug")
            a.label("L_ln2")
            a(f"s_add_u32 {sr(T)}, {sr(T)}, {WS_G}")
            self.ln_f32(H, UG, TM)
            a.label("L_ug")
        self.stamp("ge3")
        a(f"""s_cmp_eq_u32 {sr(WV)}, 1
        s_cselect_b32 {sr(S_UG)}, {sr(T)}, 0x40000000
        s_waitcnt lgkmcnt(0)""")
        kz = [f"s_waitcnt vmcnt({9 if gs else self.vm_since(m_t0)})"] + self.k_reads(0, V_V)
        if not gs:
            for x in kz: a(x)
        self.ugs = [f"buffer_store_dwordx4 {vr(UG+4*s,4)}, {vr(V_DMA)}, {sr(S_WS,4)}, {sr(S_UG)} offen offset:{1024*s} sc1" for s in range(4)]
        self.ugs.append(f"buffer_store_dwordx2 {vr(UG+16,2)}, {vr(self.VL8)}, {sr(S_WS,4)}, {sr(S_UG)} offen sc1")
        for qb in range(4): a(f"v_pk_add_f32 {p(MS+4*qb)}, {p(MS+4*qb)}, {p(MS+4*qb+2)} neg_lo:[1,1] neg_hi:[1,1]")
        for qb in range(4): a(f"v_add_f32 {vr(self.MK+qb)}, {vr(MS+4*qb)}, {vr(MS+4*qb+1)}")
        a(f"v_lshlrev_b32 {vr(t1)}, 8, v0\nv_lshlrev_b32 v231, 2, v0\nv_add_u32 v231, {L_PC}, v231\nds_write_b32 v231, {vr(t1)}")
        self.loop_init(False)
        if gs:
            self.loop_init(True)
            self.stamp("ug0")
            for x in kz: a(x)
        else: self.n_t1 = self.vm_since(m_t1)
        self.stamp("ug")

    def loop_init(self, part):
        a = self.a
        if part:
            for qb in range(4):
                for i in range(4): a(f"v_mov_b32 {vr(V_CI+4*qb+i)}, {vr(self.MK+qb)}")
            return
        for k in range(7): a(f"v_add_u32 {vr(V_HI+k)}, {2*SLOT}, {vr(V_KA+k if k < 5 else V_VB+k-5)}")
        a(f"v_add_u32 {vr(self.VS0)}, {sr(S_LB)}, {vr(V_DMA)}\nv_add_u32 {vr(self.VS0R)}, {sr(S_LB)}, {vr(self.VL8)}\ns_mov_b32 {sr(S_CNT)}, 0\ns_mov_b32 {sr(S_INC)}, {4*TILE}")
        for i in range(4): a(f"v_mov_b32 {vr(V_L+i)}, 0")
        for i in range(4): a(f"v_mov_b32 {vr(226+i)}, -1")
        a(f"""s_lshl2_add_u32 {sr(S_CL)}, s2, {sr(S_W)}
        s_mul_i32 {sr(S_CL)}, {sr(S_CL)}, 2560
        s_lshl_b32 {sr(S_CL+1)}, {sr(S_REDO)}, 30
        s_add_u32 {sr(S_CL)}, {sr(S_CL)}, {sr(S_CL+1)}
        s_add_u32 {sr(S_CL)}, {sr(S_CL)}, {WS_IB}
        s_sub_u32 {sr(S_CL+1)}, {sr(S_CL)}, 2048""")
        a(f"v_mov_b32 v207, {sr(S_N)}\nv_mov_b32 {vr(self.VPL+1)}, 1\nv_lshlrev_b32 v231, 2, v0\nv_add_u32 v231, {L_PC}, v231")

    def head(self):
        a, o = self.a, self.o
        gs = o.get("gs", 0)
        a.label("L_go")
        if not gs: self.loop_init(True)
        a("s_waitcnt lgkmcnt(0)\ns_barrier")
        self.stamp("bar5")
        base = self.qk_mfmas(0)
        pick = lambda s_, kb, qb: base[8 * s_ + 4 * kb + qb].replace(vr(V_K + 8 * s_ + 4 * kb, 4) + ",", vr(V_V + 8 * s_ + 4 * kb, 4) + ",").replace(vr(V_K + 32 + 2 * kb, 2) + ",", vr(V_V + 32 + 2 * kb, 2) + ",")
        mf, fin = [], {}
        for qb, s_ in [(0, 0), (0, 1), (0, 2), (0, 3), (1, 0), (1, 1), (0, 4), (1, 2), (1, 3), (2, 0), (2, 1), (1, 4), (2, 2), (2, 3), (3, 0), (3, 1), (2, 4),
                       (3, 2), (3, 3), (3, 4)]:
            for kb in range(2):
                fin[qb, kb] = len(mf)
                mf.append(("s_nop 3\n" if (qb, s_, kb) == (3, 4, 0) else "") + pick(s_, kb, qb))
        enew = [e[1] for g in range(40, 76) for e in self.gaps[g] if e[0] == "E"]
        items = self.e_items(0, enew, lambda qb, j: 0, lambda qb: 999)
        for it, e in zip(items, enew):
            if e[0] == "e": it["am"] = fin[e[1], e[2] // 4]
        dm = []
        for k, (slot, j) in enumerate([(2, j) for j in range(9)] if gs else [(2, 8)] + [(3, j) for j in range(9)]):
            g_ = 1 + o.get("hsp", 4) * k
            if j % 4 == 0: dm.append(dict(t=f"s_add_u32 m0, {sr(S_LB)}, {slot*SLOT + 4096*(j//4)}", c=0, lo=g_ - 1, hi=g_ - 1))
            dm.append(dict(t=f"buffer_load_dwordx4 {vr(V_DMA + j//4)}, {sr(S_XA,4)}, {sr(S_TOFF)} offen offset:{1024*(j%4)} lds", c=8, lo=g_, hi=g_))
            if j == 8: dm.append(dict(t=f"s_add_u32 {sr(S_TOFF)}, {sr(S_TOFF)}, {4*TILE}", c=0, lo=g_ + 1, hi=g_ + 1))
        nh = o.get("ugh", 2) if not o.get("ugl", 1) else 0
        for k in range(nh): dm.append(dict(t=self.ugs[k], c=8, lo=3 + 16 * k, hi=3 + 16 * k))
        if gs:
            k1 = o.get("k1lo", 22)
            kr = [dict(t=("@VM\n" if i == 0 else "") + x, c=4, lo=k1 + i // 2, hi=k1 + i // 2, nds=2) for i, x in enumerate(self.k_reads(1))]
        else:
            a(f"s_waitcnt vmcnt({self.n_t1})")
            kr = [dict(t=x, c=4, lo=i // 2, nds=2) for i, x in enumerate(self.k_reads(1))]
        left = self.pack(mf, items + dm + kr)
        print("head overflow", self.over, "left", len(left))
        left.sort(key=lambda x: not x.startswith("v_exp"))
        last = a.lines[-1].strip()
        for x in left:
            if last.startswith("v_exp") and not x.startswith("v_exp") and (last.split()[1].rstrip(",") + ",") in (x + ","): a("s_nop 0")
            a(x); last = x
        a("s_waitcnt lgkmcnt(0)")

    def tile_groups(self, slot):
        out = []
        for j in range(9):
            g = ""
            if j % 4 == 0: g = f"s_add_u32 m0, {sr(S_LB)}, {slot*SLOT + 4096*(j//4)}\ns_nop 0\n"
            g += f"buffer_load_dwordx4 {vr(V_DMA + j//4)}, {sr(S_XA,4)}, {sr(S_TOFF)} offen offset:{1024*(j%4)} lds"
            if j == 8: g += f"\ns_add_u32 {sr(S_TOFF)}, {sr(S_TOFF)}, {4*TILE}"
            out.append(g)
        return out

    def first_tiles(self):
        pass

    def wfuse(self):
        a = self.a
        BF, ACC, AF, TM, AD = 88, 108, 144, 208, 240
        LA, LB_, LM = 0, 44032, 88064
        T = S_T
        a.label("L_wfuse")
        a(f"s_add_u32 s2, s2, {NH}\ns_cmp_ge_u32 s2, {NH}\ns_cbranch_scc1 L_end")
        a(f"v_lshrrev_b32 v1, 6, v0\nv_and_b32 v0, 63, v0\nv_readfirstlane_b32 {sr(S_W)}, v1\nv_lshlrev_b32 {vr(V_DMA)}, 4, v0\ns_waitcnt lgkmcnt(0)")
        self.srd(S_WS, 78, 79, WS_END)
        self.srd(S_DB, 76, 77, 256)
        self.wf0 = 0
        self.srd(S_X, 72, 73, 82944)
        self.srd(S_W2, 62, 63, 41472)
        a(f"""s_cmp_eq_u32 s2, {self.wf0}
        s_cselect_b32 {sr(S_W1)}, s64, s70
        s_cselect_b32 {sr(S_W1+1)}, s65, s71
        s_mov_b32 {sr(S_W1+2)}, 41472
        s_mov_b32 {sr(S_W1+3)}, 0x20000
        s_cselect_b32 {sr(T+4)}, 0, 41472""")
        self.dma_rows([(S_W1, "0", LA), (S_W2, "0", LB_)], 19, 288, TM + 4, TM + 5, 11, 3, "L_wf1")
        a(f"s_lshl_b32 {sr(T)}, {sr(S_W)}, 10\ns_add_u32 {sr(T+2)}, {sr(T)}, {sr(T+4)}")
        for k in range(11):
            if k == 10: a(f"s_cmp_ge_u32 {sr(S_W)}, 1\ns_cbranch_scc1 L_wf2")
            a(f"s_add_u32 m0, {sr(T)}, {LM + 4096*k}\ns_add_u32 {sr(T+1)}, {sr(T+2)}, {4096*k}")
            a(f"buffer_load_dwordx4 {vr(V_DMA)}, {sr(S_X,4)}, {sr(T+1)} offen lds")
        a.label("L_wf2")
        self.srd(S_DW, 68, 69, 864)
        a(f"""v_and_b32 {vr(TM)}, 15, v0
        v_lshlrev_b32 {vr(TM+2)}, 4, {vr(TM)}
        v_lshlrev_b32 {vr(TM)}, 1, {vr(TM)}
        v_bfe_u32 {vr(TM+3)}, v0, 4, 1
        v_lshl_add_u32 {vr(TM+1)}, {vr(TM+3)}, 7, {vr(TM)}
        v_lshl_add_u32 {vr(TM+2)}, {vr(TM+3)}, 11, {vr(TM+2)}
        v_and_b32 {vr(TM+3)}, 1, v0
        v_lshlrev_b32 {vr(TM+3)}, 4, {vr(TM+3)}
        v_bfe_i32 {vr(TM+4)}, v0, 1, 1
        v_not_b32 {vr(TM+5)}, {vr(TM+4)}""")
        for k in range(3):
            for i in range(5): a(f"buffer_load_ushort {vr(16+5*k+i)}, {vr(TM+1 if i < 4 else TM)}, {sr(S_DW,4)}, 0 offen offset:{288*k + (32*i if i < 4 else 256)}")
        a(f"s_mov_b32 {sr(T+1)}, {WS_DWF}\ns_waitcnt vmcnt(0)")
        for f in range(15):
            a(f"v_lshlrev_b32 {vr(16+f)}, {vr(TM+3)}, {vr(16+f)}\nv_and_b32 {vr(32+2*f)}, {vr(TM+5)}, {vr(16+f)}\nv_and_b32 {vr(33+2*f)}, {vr(TM+4)}, {vr(16+f)}")
        for r_ in range(8): a(f"buffer_store_dwordx{4 if r_ < 7 else 2} {vr(32+4*r_, 4 if r_ < 7 else 2)}, {vr(TM+2)}, {sr(S_WS,4)}, {sr(T+1)} offen offset:{256*r_} sc1")
        self.tr_addr(AD, LM, False, TM + 8)
        self.row_addr(AD + 3, LA, TM + 8)
        a(f"v_add_u32 {vr(AD+5)}, {LB_}, {vr(AD+3)}")
        a(f"v_lshlrev_b32 {vr(AD+4)}, 3, v0")
        a(f"""s_lshr_b32 {sr(T)}, {sr(S_W)}, 1
        s_lshl_b32 {sr(T)}, {sr(T)}, 6
        s_and_b32 {sr(T+1)}, {sr(S_W)}, 1
        s_lshl_b32 {sr(T+1)}, {sr(T+1)}, 3
        s_add_u32 {sr(T)}, {sr(T)}, {sr(T+1)}
        v_and_b32 {vr(AD+6)}, 3, v0
        v_lshlrev_b32 {vr(AD+6)}, 3, {vr(AD+6)}
        v_add_u32 {vr(AD+7)}, {sr(T)}, {vr(AD+6)}""")
        for k in range(3): a(f"v_add_u32 {vr(AD+k)}, {vr(AD+7)}, {vr(AD+k)}")
        a(f"s_mov_b32 {sr(S_CNT)}, {sr(S_W)}")
        a("s_waitcnt vmcnt(0)\ns_barrier")
        a.label("L_wfl")
        for s in self.tr_reads(AD, vr)(0, BF): a(s)
        a("s_waitcnt lgkmcnt(0)")
        self.gemm(self.row_reads(AD + 3), BF, ACC, AF)
        for i in range(18): a(f"v_cvt_pk_bf16_f32 {vr(BF+i)}, {vr(ACC+2*i)}, {vr(ACC+2*i+1)}")
        a(f"s_cmp_eq_u32 s2, {self.wf0}\ns_cbranch_scc0 L_wf3")
        self.gemm(self.row_reads(AD + 5), BF, ACC, AF)
        for i in range(18): a(f"v_cvt_pk_bf16_f32 {vr(BF+i)}, {vr(ACC+2*i)}, {vr(ACC+2*i+1)}")
        a.label("L_wf3")
        a(f"""s_mul_i32 {sr(T)}, {sr(S_CNT)}, {BLK}
        s_add_u32 {sr(T)}, {sr(T)}, {sr(T+4)}
        s_add_u32 {sr(T)}, {sr(T)}, {WS_WF}
        s_add_u32 {sr(T+1)}, {sr(T)}, 4096""")
        self.store_block(BF, V_DMA, AD + 4, S_WS, T, T + 1, "sc1")
        for k in range(3): a(f"v_add_u32 {vr(AD+k)}, 128, {vr(AD+k)}")
        a(f"s_add_u32 {sr(S_CNT)}, {sr(S_CNT)}, 4\ns_cmp_lt_u32 {sr(S_CNT)}, 8\ns_cbranch_scc1 L_wfl")
        for k in range(3): a(f"v_sub_u32 {vr(AD+k)}, {vr(AD+k)}, {vr(AD+6)}")
        a(f"s_cmp_eq_u32 {sr(S_CNT)}, 8\ns_cbranch_scc1 L_wfl")
        a(f"""s_waitcnt vmcnt(0)
        s_barrier
        s_cmp_lg_u32 {sr(S_W)}, 0
        s_cbranch_scc1 L_end
        s_mov_b32 {sr(T+2)}, 0""")
        a.label("L_wtag")
        a(f"""buffer_load_dword {vr(TM)}, off, {sr(S_DB,4)}, 0 sc1
        s_add_u32 {sr(T+2)}, {sr(T+2)}, 1
        s_waitcnt vmcnt(0)
        v_readfirstlane_b32 {sr(T)}, {vr(TM)}
        s_cmp_lt_u32 {sr(T+2)}, 0x40000
        s_cselect_b32 {sr(T)}, {sr(T)}, 1
        s_cmp_eq_u32 {sr(T)}, 0
        s_cbranch_scc1 L_wtag
        v_lshlrev_b32 {vr(TM+1)}, 2, v0
        s_lshl_b32 {sr(T)}, s2, 8
        s_add_u32 {sr(T)}, {sr(T)}, {WS_F + 502*256}
        buffer_store_dword {vr(TM)}, {vr(TM+1)}, {sr(S_WS,4)}, {sr(T)} offen sc1
        s_endpgm""")

    def dump_stamps(self):
        a = self.a
        if self.o.get("census"):
            key, mode, m_, v_ = self.o["census"]
            a(f"""s_cmp_lg_u32 s2, 100
            s_cbranch_scc1 L_end
            v_lshlrev_b32 v16, 2, v0
            s_mov_b32 s4, {WS_DBG}""")
            for k in range(4): a(f"buffer_load_dword v{20+k}, v16, {sr(S_WS,4)}, s4 offen offset:{256*k} sc1")
            a(f"s_waitcnt vmcnt(0)\nv_readlane_b32 s8, v21, 36\ns_mov_b32 s9, 0x80000000\ns_mov_b32 s10, 0x7fffffff\ns_mov_b32 s11, 0\ns_mov_b32 s17, 0")
            for k in range(4):
                a(f"s_mov_b32 s5, 0")
                a.label(f"L_cs{k}")
                a(f"""v_readlane_b32 s6, v{20+k}, s5
                s_add_u32 s7, s5, {64*k}
                s_sub_u32 s6, s6, s8
                s_and_b32 s16, s7, {m_}
                s_cmp_lg_u32 s16, {v_}
                s_cbranch_scc1 L_cn{k}
                s_min_i32 s10, s10, s6
                s_cmp_gt_i32 s6, {self.o.get("thr", 150)}
                s_addc_u32 s17, s17, 0
                s_cmp_gt_i32 s6, s9
                s_cselect_b32 s9, s6, s9
                s_cselect_b32 s11, s7, s11""")
                a.label(f"L_cn{k}")
                a(f"s_add_u32 s5, s5, 1\ns_cmp_lt_u32 s5, {64 if k < 3 else 60}\ns_cbranch_scc1 L_cs{k}")
            a({"arg": "s_lshl_b32 s6, s11, 3", "range": "s_sub_u32 s6, s9, s10\ns_lshl_b32 s6, s6, 1", "zero": "s_mov_b32 s6, 0", "cnt": "s_lshl_b32 s6, s17, 4",
               "max": "s_lshl_b32 s6, s9, 1"}[mode])
            a("s_add_u32 s6, s6, 1000\ns_memrealtime s[4:5]\ns_waitcnt lgkmcnt(0)\ns_add_u32 s6, s6, s4")
            a.label("L_echo")
            a("s_memrealtime s[4:5]\ns_waitcnt lgkmcnt(0)\ns_sub_u32 s7, s6, s4\ns_cmp_gt_i32 s7, 0\ns_cbranch_scc1 L_echo")
            return
        if self.o.get("echo"):
            if self.o["echo"][0] == "skew":
                a(f"v_mov_b32 v16, 4\nbuffer_load_dword v17, v16, {sr(S_DB,4)}, 0 offen sc1\ns_waitcnt vmcnt(0)\nv_readfirstlane_b32 s98, v17\ns_not_b32 s98, s98")
                x, y = 98, S_ST + 2 * self.stnames.index(self.o["echo"][1])
            else:
                x, y = [S_ST + 2 * self.stnames.index(n) for n in self.o["echo"]]
            lo, hi = self.o.get("echo_ids", (0, 999))
            a(f"""s_cmp_eq_u32 {sr(S_VAL)}, 0
            s_cbranch_scc1 L_end
            s_cmp_lt_u32 s2, {lo}
            s_cbranch_scc1 L_end
            s_cmp_ge_u32 s2, {hi}
            s_cbranch_scc1 L_end
            s_and_b32 s6, s2, {self.o.get("echo_m", 0)}
            s_cmp_lg_u32 s6, {self.o.get("echo_v", 0)}
            s_cbranch_scc1 L_end
            s_memrealtime s[4:5]
            s_waitcnt lgkmcnt(0)
            s_sub_u32 s6, {sr(y)}, {sr(x)}
            s_mul_i32 s6, s6, {self.o.get("echo_mul", 1)}
            s_lshr_b32 s6, s6, {self.o.get("echo_shr", 0)}
            s_add_u32 s6, s6, {self.o.get("echo_add", 0)}
            s_add_u32 s6, s6, s4""")
            a.label("L_echo")
            a("s_memrealtime s[4:5]\ns_waitcnt lgkmcnt(0)\ns_sub_u32 s7, s6, s4\ns_cmp_gt_i32 s7, 0\ns_cbranch_scc1 L_echo")
            return
        if self.o.get("dbgst"):
            a("s_waitcnt vmcnt(0)")
            self.stamp("done")
            a("s_waitcnt lgkmcnt(0)\ns_mov_b64 exec, 1")
            slots = [1, 2, 3, 4, 5, 6, 7, 9, 11, 12, 13, 14, 15]
            a(f"s_not_b32 {sr(S_T)}, {sr(S_ST)}\nv_mov_b32 v16, {sr(S_T)}\nv_mov_b32 v17, 4\nbuffer_atomic_umax v16, v17, {sr(S_DB,4)}, 0 offen sc1")
            for i in range(min(self.nst, 12)):
                a(f"v_mov_b32 v{18+2*i}, {sr(S_ST+2*i)}\nv_mov_b32 v{19+2*i}, {4*slots[i+1]}\nbuffer_atomic_umax v{18+2*i}, v{19+2*i}, {sr(S_DB,4)}, 0 offen sc1")
            return
        if not self.o.get("stamps"): return
        T = S_T
        a(f"""s_waitcnt lgkmcnt(0)
        s_lshl_b32 {sr(T)}, s2, 2
        s_add_u32 {sr(T)}, {sr(T)}, {sr(S_W)}
        s_lshl_b32 {sr(T)}, {sr(T)}, 7
        s_add_u32 {sr(T)}, {sr(T)}, {WS_DBG}
        v_mov_b32 v1, 0""")
        for i in range(26): a(f"v_mov_b32 {vr(16+i)}, {sr(S_ST+i)}")
        for i in range(7): a(f"buffer_store_dwordx4 {vr(16+4*i,4)}, v1, {sr(S_WS,4)}, {sr(T)} offen offset:{16*i}")

    def build(self):
        a = self.a
        self.stnames = []
        a.raw(f"; @launch grid=({NWG},1,1) block=(256,1,1) lds={LDS_TOTAL}")
        a.raw('.amdgcn_target "amdgcn-amd-amdhsa--gfx950"')
        a.raw(".text")
        a.raw(f".globl {NAME}")
        a.raw(".p2align 12")
        self.entry()
        self.phase_a()
        self.rest()
        a.label("L_fin")
        self.dump_stamps()
        a.label("L_end")
        a("s_endpgm")
        self.poll2()
        if not self.o.get("touch", 1): self.rare()
        a.label("L_dummy")
        self.fallback()
        self.wfuse()
        a.raw('.section .rodata,"a"')
        a.raw(".p2align 6")
        a.raw(kernel_desc(NAME, 512, 102, 256))
        return a.text()

    def S(self, buf, qb, i=0): return V_S + buf * 32 + qb * 8 + i
    def P(self, buf, qb, i=0): return V_P + buf * 16 + qb * 4 + i

    def k_reads(self, slot, V_K=V_K):
        ka, so = (V_KA, slot * SLOT) if slot < 2 else (V_HI, (slot - 2) * SLOT)
        out = [f"ds_read_b128 {vr(V_K+8*s+4*kb,4)}, {vr(ka)} offset:{so + 2048*s + 256*kb}" for s in range(4) for kb in range(2)]
        out += [f"ds_read_b64 {vr(V_K+32+2*kb,2)}, {vr(ka+1)} offset:{so + 8192 + 512*kb}" for kb in range(2)]
        return out

    def v_reads(self, slot, dst=V_V):
        (va, vr_, vb), so = ((V_VA, V_VR, V_VB), slot * SLOT) if slot < 2 else ((V_HI + 2, V_HI + 4, V_HI + 5), (slot - 2) * SLOT)
        out = []
        for T in range(9):
            for u in range(2):
                if T < 8: out.append(f"ds_read_b64_tr_b16 {vr(dst+4*T+2*u,2)}, {vr((va if T < 4 else vb)+(T&1))} offset:{so + 2048*((T>>1)&1) + 256*u}")
                else: out.append(f"ds_read_b64_tr_b16 {vr(dst+4*T+2*u,2)}, {vr(vr_)} offset:{so + 8192 + 512*u}")
        return out

    def qk_mfmas(self, buf, czero=False):
        out = []
        for s in range(5):
            for kb in range(2):
                for qb in range(4):
                    d = vr(self.S(buf, qb, 4 * kb), 4)
                    c = ("0" if czero else vr(V_CI + 4 * qb, 4)) if s == 0 else d
                    if s < 4: out.append(f"v_mfma_f32_16x16x32_bf16 {d}, {vr(V_K+8*s+4*kb,4)}, {ar(A_Q+18*qb+4*s,4)}, {c}")
                    else: out.append(f"v_mfma_f32_16x16x16_bf16 {d}, {vr(V_K+32+2*kb,2)}, {ar(A_Q+18*qb+16,2)}, {c}")
        return out

    def pv_mfmas(self, buf, czero=False):
        out = []
        for T in range(9):
            for qb in range(4):
                o = ar(A_O + 36 * qb + 4 * T, 4)
                out.append(f"v_mfma_f32_16x16x32_bf16 {o}, {vr(V_V+4*T,4)}, {vr(self.P(buf,qb),4)}, {'0' if czero else o}")
        return out

    def plan(self):
        o = self.o
        n = 76
        fixed = [None] * n
        for i, g in enumerate(range(1, 36, 2)): fixed[g] = ("V", i)
        for i, g in enumerate([41, 44, 47, 50, 53, 56, 59, 62, 65, 68]): fixed[g] = ("K", i)
        for i, g in enumerate([42, 46, 49, 52, 55, 58, 61, 64, 67]): fixed[g] = ("D", i)
        exps = [(qb, j) for qb in range(4) for j in range(8)]
        start = 40
        order = [(start + k) % n for k in range(n)]
        free_idx = [k for k, g in enumerate(order) if fixed[g] is None]
        nsm = len(free_idx) - 32
        cand = free_idx[6:-2]
        sm_set = set(free_idx[-2:]) | {cand[int((i + 0.5) * len(cand) / (nsm - 2))] for i in range(nsm - 2)}
        nds = sum(1 for f in fixed if f is not None and f[0] != "D")
        ls = o.get("lsum", "add")
        over = max(0, (48 if ls == "add" else 32) - nds - 2 * nsm)
        ocand = [k for k, g in enumerate(order) if k >= 20 and (fixed[g] is None or fixed[g][0] != "D")]
        o_set = {ocand[int((i + 0.5) * len(ocand) / over)] for i in range(over)}
        later = []
        gaps = [[] for _ in range(n)]
        small, pend, ei = [], [], 0
        for k, g in enumerate(order):
            new = (start + k) < n
            small.extend(pend); pend = later; later = []
            small.sort(key=lambda t: 0 if t[0] == "c" else 1)
            f = fixed[g]
            want = 0
            if f is not None:
                gaps[g].append((f[0], f[1], None))
                if f[0] == "D": continue
                want = 1
            elif k in sm_set: want = 2
            else:
                qb, j = exps[ei]; ei += 1
                gaps[g].append(("E", ("e", qb, j), new))
                if j & 1: pend.append(("c", qb, j // 2))
                if ls == "add": pend.append(("a", qb, j))
                elif j & 1 and ls == "pk": pend.append(("p", qb, j // 2))
            if k in o_set: want += 1
            if k == n - 1: want = 99
            for _ in range(want):
                if small:
                    it = small.pop(0)
                    gaps[g].append(("E", it, new))
                    if it[0] == "c" and ls == "dot": (small if k == n - 1 else pend).append(("d", it[1], it[2]))
        assert not small and not pend and ei == 32
        self.gaps = gaps

    def pack(self, mf, items):
        a = self.a
        where, order, done, nvm, mpos = {}, [], 0, 0, []
        isds = lambda it: "ds_" in it["t"]
        self.over = 0
        for g, m in enumerate(mf):
            assert not any(it.get("need", 999) <= g and i not in where for i, it in enumerate(items)), g
            idx = [k for k, n_ in enumerate(order) if n_ <= g]
            if idx and max(idx) + 1 > done:
                a(f"s_waitcnt lgkmcnt({min(15, len(order) - 1 - max(idx))})"); done = max(idx) + 1
            if m.startswith("@W"):
                w_, m = m.split("\n", 1)
                a(f"s_waitcnt lgkmcnt({min(15, int(w_[2:]) + len(order))})")
            a(m)
            mpos.append(len(a.lines))
            cap, pick = 8, []
            for phase in (0, 1):
                for i, it in enumerate(items):
                    if i in where or it.get("lo", 0) > g: continue
                    if "am" in it and (it["am"] >= g or len(a.lines) - mpos[it["am"]] < 8): continue
                    d = it.get("dep")
                    if d is not None and not all(where.get(x, 999) < g for x in d): continue
                    if (phase == 0 and it.get("hi", 999) <= g) or (phase == 1 and it["c"] <= cap):
                        if it["t"].startswith("buffer") and pick and any(items[x]["c"] for x in pick) and phase == 1: continue
                        if isds(it) and sum(isds(items[x]) for x in pick) >= it.get("nds", 1) and phase == 1: continue
                        pick.append(i); where[i] = g; cap -= it["c"]
            key = lambda i: 0 if items[i]["c"] == 0 else 1 if isds(items[i]) else 2 if items[i]["t"].startswith("buffer") else 3
            for i in sorted(pick, key=key):
                a(items[i]["t"].replace("@VM", f"s_waitcnt vmcnt({nvm})"))
                nvm += items[i]["t"].startswith("buffer")
                if isds(items[i]): order.append(items[i].get("need", 999))
            self.over += max(0, -cap)
        return [it["t"] for i, it in enumerate(items) if i not in where]

    def e_items(self, buf, lst, lo, hi):
        items, idx = [], {}
        for it in lst:
            kind, qb, j = it
            d = dict(t=self.etext(buf, it), c=8 if kind == "e" else 4)
            if kind == "e": d["lo"] = lo(qb, j); d["hi"] = hi(qb) - 2 - (7 - j)
            else:
                need = [("e", qb, j)] if kind == "a" else [("c", qb, j)] if kind == "d" else [("e", qb, 2 * j), ("e", qb, 2 * j + 1)]
                d["dep"] = [idx[x] for x in need if x in idx]
                if kind == "c": d["hi"] = hi(qb) - (3 - j) // 2
            idx[it] = len(items); items.append(d)
        return items

    def etext(self, buf, it):
        kind, qb, j = it
        s = self.S(buf, qb)
        if kind == "e": return f"v_exp_f32 {vr(s+j)}, {vr(s+j)}"
        if kind == "d": return f"v_dot2_f32_bf16 {vr(V_L+qb)}, {vr(self.P(buf, qb, j))}, v227, {vr(V_L+qb)}"
        if kind == "p": return f"v_pk_add_f32 {vr(208+2*qb,2)}, {vr(208+2*qb,2)}, {vr(s+2*j,2)}"
        if kind == "a": return f"v_add_f32 {vr(V_L+qb)}, {vr(V_L+qb)}, {vr(s+j)}"
        return f"v_cvt_pk_bf16_f32 {vr(self.P(buf, qb, j))}, {vr(s+2*j)}, {vr(s+2*j+1)}"

    def period(self, p, qk=True, pv=True, e_old=True, e_new=True, kread=True, vread=True, dma=True, extra={}, dsub=None, ksub=None, vm=9, halves=(0, 1), inc=None):
        a = self.a
        bn, bo = (p + 1) & 1, p & 1
        qk_, pv_ = self.qk_mfmas(bn), self.pv_mfmas(bo, czero=(p == 0))
        qo, po = self.o.get("qkord", 1), self.o.get("pvord", 0)
        if qo == 1: qk_ = [qk_[8 * s_ + 4 * kb + qb] for kb in range(2) for qb in range(4) for s_ in range(4)] + qk_[32:]
        if qo == 2: qk_ = [qk_[8 * s_ + 4 * kb + qb] for qb in range(4) for kb in range(2) for s_ in range(4)] + qk_[32:]
        if qo == 3: qk_ = [qk_[8 * s_ + 4 * kb + qb] for qb in range(4) for s_ in range(4) for kb in range(2)] + qk_[32:]
        if po == 1: pv_ = [pv_[4 * T_ + qb] for qb in range(4) for T_ in range(9)]
        mf = qk_ + pv_
        kr, vrd = self.k_reads((p + 2) % RING), self.v_reads(p % RING)
        slot = p % RING
        n = 76
        sc = [[] for _ in range(n)]
        dgs = [g for g in range(n) if any(e[0] == "D" for e in self.gaps[g])]
        if dma:
            for j, g in enumerate(dgs):
                if j % 4 == 0: sc[g - 1].append(f"s_add_u32 m0, {sr(S_LB)}, {slot*SLOT + 4096*(j//4)}")
            sc[dgs[-1] + 1].append(f"s_add_u32 {sr(S_TOFF)}, {sr(S_TOFF)}, {inc or 4*TILE}")
        w = []
        if kread: w.append(f"vmcnt({vm})")
        if pv: w.append("lgkmcnt(0)")
        if w: sc[39].append("s_waitcnt " + " ".join(w))
        if kread: sc[75].append("s_waitcnt lgkmcnt(0)")
        for half in halves:
            rng = range(0, 40) if half == 0 else range(40, 76)
            on = qk if half == 0 else pv
            if not on:
                ds, mem, val, post = [], [], [], []
                for g in rng:
                    for s_ in sc[g]:
                        (post if s_.startswith("s_waitcnt") else mem).append(s_)
                    if g in extra: mem.append(extra[g])
                    for kind, d, new in self.gaps[g]:
                        if kind == "V" and vread: ds.append(vrd[d])
                        elif kind == "K" and kread: ds.append(kr[d])
                        elif kind == "D" and dma: mem.append(f"buffer_load_dwordx4 {vr(V_DMA + d//4)}, {sr(S_XA,4)}, {sr(S_TOFF)} offen offset:{1024*(d%4)} lds")
                        elif kind == "E" and ((new and e_new) or (not new and e_old)): val.append((d, self.etext(bn if new else bo, d)))
                if half == 1: a("s_nop 3")
                seq, pend = [], list(val)
                while pend:
                    k = 0
                    if seq and seq[-1][0][0] == "e":
                        le = seq[-1][0]
                        dep = lambda it: it[0][1] == le[1] and ((it[0][0] == "a" and it[0][2] == le[2]) or (it[0][0] == "c" and it[0][2] == le[2] // 2))
                        have = {x[0] for x in seq}
                        ok = lambda it: it[0][0] == "e" or (("e", it[0][1], it[0][2]) in have if it[0][0] == "a" else (("e", it[0][1], 2*it[0][2]+1) in have)) or not any(x[0][0] == "e" and x[0][1] == it[0][1] and (x[0][2] == it[0][2] if it[0][0] == "a" else x[0][2] // 2 == it[0][2]) for x in pend)
                        while k < len(pend) and (dep(pend[k]) or not ok(pend[k])): k += 1
                        if k == len(pend): seq.append((("n", 0, 0), "s_nop 0")); k = 0
                    seq.append(pend.pop(k))
                step = max(1, len(seq) // (len(mem) + len(ds) + 1))
                allm = ds + mem
                for x in allm[:6]: a(x)
                allm = allm[6:]
                for i_, (d, t_) in enumerate(seq):
                    a(t_)
                    if allm and i_ % step == step - 1:
                        x = allm.pop(0); a(x)
                        if x.startswith("s_add_u32 m0"): a("s_nop 0")
                for x in allm:
                    a(x)
                    if x.startswith("s_add_u32 m0"): a("s_nop 0")
                for x in post: a(x)
                if half == 0: a("s_nop 1")
                continue
            abl = self.o.get("abl", "") if 1 <= p <= 4 else ""
            for g in rng:
                if not ("Q" in abl and g < 40 or "P" in abl and g >= 40): a(mf[g])
                for s_ in sc[g]: a(s_)
                if g in extra: a(extra[g])
                for kind, d, new in self.gaps[g]:
                    if kind in abl or (kind == "E" and d[0] in abl): continue
                    if kind == "V":
                        if vread: a(vrd[d])
                    elif kind == "K":
                        if kread: a(kr[d])
                        elif ksub: a(ksub.pop(0))
                    elif kind == "D":
                        if dma: a(f"buffer_load_dwordx4 {vr(V_DMA + d//4)}, {sr(S_XA,4)}, {sr(S_TOFF)} offen offset:{1024*(d%4)} lds")
                        elif dsub: a(dsub.pop(0))
                    elif (new and e_new) or (not new and e_old):
                        a(self.etext(bn if new else bo, d))

    MK, VO, VO8, GA, VS0, VS0R, VDW, VLW, VL8, VST, VPL = 232, 236, 9, 238, 250, 251, 244, 245, 246, 247, 248
    NB, PT, E_U, E_G, RS3, E_COL, RS1, RS2, MP1 = 3, 4, 5, 6, 7, 43, 36, 37, 38
    G0, GM, GP, U, DWT = 16, 26, 36, 80, (90, 252, 96, 100, 112, 116, 104, 94)
    XRS = (192, 196, 46)
    frag = staticmethod(lambda f, b: [(f, b + 4 * s) for s in range(5)])
    WD = [[("a", 216 + 4 * s) for s in range(5)], [("a", 234 + 4 * s) for s in range(5)], [("v", 208 + 4 * s) for s in range(5)]]
    WO = [[("a", 4 * s) for s in range(5)], [("a", 18 + 4 * s) for s in range(5)], [("a", 36), ("a", 40), ("a", 44), ("a", 48), ("a", 252)]]
    X1B = 98304
    X2O = L_SP - X1B
    L_L = L_SP + 9216

    def epi_setup(self):
        a = self.a
        T = S_T
        NB, PT, VO, GA = self.NB, self.PT, self.VO, self.GA
        r, g4, x, y, big, r0 = 52, 53, 54, 55, 56, 57
        a(f"""s_lshr_b32 {sr(NB)}, {sr(S_W)}, 1
        s_and_b32 {sr(PT)}, {sr(S_W)}, 1
        v_and_b32 {vr(r0)}, 15, v0
        v_lshrrev_b32 {vr(g4)}, 4, v0
        v_mul_u32_u24 {vr(x)}, 288, {vr(r0)}
        v_mov_b32 {vr(big)}, 0x40000000
        s_lshl_b32 {sr(T)}, {sr(S_TOWN)}, 1
        s_add_u32 {sr(T)}, {sr(T)}, {sr(NB)}
        s_lshl_b32 {sr(T)}, {sr(T)}, 4
        v_add_u32 {vr(r)}, {sr(T)}, {vr(r0)}
        s_mul_i32 {sr(T+1)}, {sr(S_TOWN)}, {TILE}
        s_mul_i32 {sr(T+2)}, {sr(PT)}, {BLK}
        v_add_u32 {vr(x)}, {sr(T+1)}, {vr(x)}
        s_sub_u32 {sr(T+3)}, {BLK}, {sr(T+2)}
        v_add_u32 {vr(y)}, {sr(T+3)}, {vr(x)}
        v_add_u32 {vr(x)}, {sr(T+2)}, {vr(x)}
        v_lshl_add_u32 {vr(VO)}, {vr(g4)}, 4, {vr(x)}
        v_lshl_add_u32 {vr(VO+1)}, {vr(g4)}, 4, {vr(y)}
        v_lshl_add_u32 {vr(self.VO8)}, {vr(g4)}, 3, {vr(x)}
        s_lshl_b32 {sr(T+3)}, {sr(PT)}, 11
        s_add_u32 {sr(self.E_U)}, {sr(T+3)}, {WS_U}
        s_add_u32 {sr(self.E_G)}, {sr(T+3)}, {WS_G}
        s_sub_u32 {sr(T+3)}, 4096, {sr(T+3)}
        s_lshl_b32 {sr(T)}, {sr(PT)}, 11
        s_add_u32 {sr(T)}, {sr(T)}, {WS_DWF}
        v_lshrrev_b32 {vr(x)}, 2, {vr(r0)}
        v_cmp_eq_u32 vcc, {vr(x)}, {vr(g4)}
        v_lshl_add_u32 {vr(self.VDW)}, {vr(r0)}, 4, {sr(T)}
        s_nop 0
        v_cndmask_b32 {vr(self.VDW)}, {vr(big)}, {vr(self.VDW)}, vcc
        s_lshl_b32 {sr(self.E_COL)}, {sr(S_W)}, 6
        v_lshlrev_b32 {vr(self.VL8)}, 3, v0
        v_add_u32 {vr(self.VL8)}, 4096, {vr(self.VL8)}
        v_add_u32 {vr(self.VST)}, {sr(S_LB)}, {vr(V_DMA)}
        v_add_u32 {vr(self.VST)}, {2*SLOT}, {vr(self.VST)}
        s_xor_b32 {sr(T)}, {sr(NB)}, 1
        v_xor_b32 {vr(x)}, {sr(T)}, {vr(g4)}
        v_lshl_add_u32 {vr(x)}, {vr(x)}, 4, {vr(r0)}
        s_lshl_b32 {sr(T)}, {sr(S_W)}, 2
        s_add_u32 {sr(T)}, {sr(T)}, {self.L_L}
        v_lshl_add_u32 {vr(self.VLW)}, {vr(x)}, 4, {sr(T)}
        s_sub_u32 {sr(self.MP1)}, 0, {sr(PT)}
        s_mov_b32 {sr(self.MP1+1)}, {sr(self.MP1)}""")
        for k, (d, base) in enumerate(((self.RS1, 3 * SLOT), (self.RS2, 2 * SLOT), (self.RS3, 2 * SLOT))):
            a(f"s_xor_b32 {sr(T)}, {sr(S_W)}, {k+1}\ns_mul_i32 {sr(T)}, {sr(T)}, {TILE}\ns_add_u32 {sr(d)}, {sr(T)}, {base}")
        a(f"""s_mul_i32 {sr(T)}, {sr(S_B)}, 4000
        s_add_u32 {sr(T+1)}, {sr(T)}, 3999
        s_mov_b32 {sr(T+2)}, {BLK}""")
        for k, dr in enumerate((0, -1, 1)):
            m = GA + 2 * k
            if dr: a(f"v_add_u32 {vr(m)}, {dr}, {vr(r)}\nv_cmp_eq_u32 vcc, {sr(T if dr < 0 else T+1)}, {vr(r)}")
            src = m if dr else r
            a(f"""v_lshrrev_b32 {vr(x)}, 4, {vr(src)}
            v_and_b32 {vr(y)}, 15, {vr(src)}
            v_mul_lo_u32 {vr(x)}, {vr(x)}, {sr(T+2)}
            v_lshl_add_u32 {vr(y)}, {vr(g4)}, 4, {vr(y)}
            v_lshl_add_u32 {vr(m)}, {vr(y)}, 4, {vr(x)}
            v_lshl_add_u32 {vr(m+1)}, {vr(y)}, 3, {vr(x)}
            v_add_u32 {vr(m+1)}, {sr(T+3)}, {vr(m+1)}""")
            if dr: a(f"v_cndmask_b32 {vr(m)}, {vr(m)}, {vr(big)}, vcc\nv_cndmask_b32 {vr(m+1)}, {vr(m+1)}, {vr(big)}, vcc")

    def conv_loads(self):
        GA = self.GA
        L = []
        for dst, m, so in ((self.GM, GA + 2, 1), (self.G0, GA, 1), (self.GP, GA + 4, 1), (self.U, GA, 0)):
            for k in range(2): L.append(f"buffer_load_dwordx4 {vr(dst+4*k,4)}, {vr(m)}, {sr(S_WS,4)}, {sr(self.E_U+so)} offen offset:{1024*k}")
            L.append(f"buffer_load_dwordx2 {vr(dst+8,2)}, {vr(m+1)}, {sr(S_WS,4)}, {sr(self.E_U+so)} offen")
        return L

    def rg(self, e, n): return (ar if e[0] == "a" else vr)(e[1], n)

    def w8_loads(self, regs, so):
        return [f"buffer_load_dwordx4 {self.rg(regs[s],4)}, {vr(V_DMA)}, {sr(S_WS,4)}, {sr(so)} offen offset:{1024*s}" for s in range(4)] + \
               [f"buffer_load_dwordx2 {self.rg(regs[4],2)}, {vr(self.VL8)}, {sr(S_WS,4)}, {sr(so)} offen"]

    def w_reads(self, regs, off):
        L = []
        for tt in range(2):
            L += [f"ds_read_b128 {self.rg(regs[tt][s],4)}, {vr(self.VS0)} offset:{off + BLK*tt + 1024*s}" for s in range(4)]
            L.append(f"ds_read_b64 {self.rg(regs[tt][4],2)}, {vr(self.VS0R)} offset:{off + BLK*tt}")
        return L

    def xa_srd(self):
        T = S_T
        return f"""s_mul_i32 {sr(T)}, {sr(S_B)}, {NT}
        s_mul_i32 {sr(T+1)}, {sr(S_H)}, 63
        s_add_u32 {sr(T+1)}, {sr(T+1)}, {sr(T)}
        s_mul_i32 {sr(T+1)}, {sr(T+1)}, {TILE}
        s_add_u32 {sr(S_XA)}, {sr(S_WS)}, {sr(T+1)}
        s_addc_u32 {sr(S_XA+1)}, {sr(S_WS+1)}, 0
        s_sub_u32 {sr(T+2)}, 63, {sr(S_H)}
        s_mul_i32 {sr(S_XA+2)}, {sr(T+2)}, {TILE}
        s_mov_b32 {sr(S_XA+3)}, 0x20000"""

    def rest(self):
        a, o = self.a, self.o
        T = S_T
        VPL = self.VPL
        self.plan()
        self.head()
        self.stamp("loop")
        if o.get("sktest") or o.get("echo") and o["echo"][0] == "skew":
            a(f"s_waitcnt lgkmcnt(0)\ns_mov_b64 exec, 1\ns_not_b32 s98, {sr(S_ST)}\nv_mov_b32 v226, s98\nv_mov_b32 v227, 4\ns_cmp_lg_u32 {sr(S_W)}, 0\ns_cbranch_scc1 L_sk\nbuffer_atomic_umax v226, v227, {sr(S_DB,4)}, 0 offen sc1\ns_waitcnt vmcnt(0)\nL_sk:\ns_mov_b64 exec, -1\ns_nop 3")
            self.stamp("sk")
        nh = o.get("ugh", 2)
        ex = {2 + 12 * k: x for k, x in enumerate(self.ugs[nh:])}
        ugl = o.get("ugl", 1)
        CL = 226
        clr = [f"buffer_store_dwordx4 {vr(CL,4)}, {vr(V_DMA)}, {sr(S_WS,4)}, {sr(S_CL)} offen sc1",
               f"buffer_store_dwordx4 {vr(CL,4)}, {vr(V_DMA)}, {sr(S_WS,4)}, {sr(S_CL)} offen offset:1024 sc1",
               f"buffer_store_dwordx2 {vr(CL,2)}, {vr(self.VL8)}, {sr(S_WS,4)}, {sr(S_CL+1)} offen sc1"]
        cll = o.get("cll", 1)
        ex0 = {69: self.ugs[0], 71: clr[0]} if cll else {69: self.ugs[0]}
        if o.get("gs", 0):
            for j, x in enumerate(self.tile_groups(3)):
                g_ = o.get("t3g", 2) + 4 * j
                x = x.split("\n")
                if x[0].startswith("s_add_u32 m0"): ex0[g_ - 1] = x[0]; x = x[2:]
                ex0[g_] = "\n".join(x)
        if ugl: self.period(0, extra=ex0)
        else: self.period(0, vm=9 + 5, extra=ex)
        self.stamp("l0")
        a.raw(".p2align 6")
        a.label("L_loop")
        self.stamp("q1")
        for p in range(1, 5):
            ex = {}
            vm = 9
            if p == 1: ex = {73: f"s_cmp_eq_u32 {sr(S_CNT)}, 3"}
            if p == 2: ex = {70: f"buffer_load_dword v252, {vr(VPL)}, {sr(S_WS,4)}, 0 offen sc1"}
            if p == 3:
                ex = {73: f"s_cmp_eq_u32 {sr(S_CNT)}, 2", 45: f"ds_add_rtn_u32 v230, v231, {vr(VPL+1)}"}
            if p == 4:
                self.stamp("la0")
                a(f"s_cbranch_scc1 L_last")
                a.label("L_lastb")
                self.stamp("la1")
                ex = {72: f"s_add_u32 {sr(S_CNT)}, {sr(S_CNT)}, 1", 1: f"v_readfirstlane_b32 {sr(T)}, v230", 3: f"s_cmp_eq_u32 {sr(T)}, 3",
                      4: f"s_cselect_b32 {sr(T)}, {sr(S_FB)}, 2.0", 6: f"buffer_store_dword v207, v231, {sr(S_WS,4)}, {sr(T)} offen sc1"}
            if ugl:
                ex[69] = self.ugs[p]
                if p < 3 and cll: ex[72] = clr[p]
                if p == 3 and cll: ex.update({70: f"s_mov_b32 {sr(S_CL)}, 2.0", 71: f"s_mov_b32 {sr(S_CL+1)}, 2.0"})
                if p == 4: ex.update({71: f"s_mov_b32 {sr(S_UG)}, 2.0", 2: f"s_lshl2_add_u32 {sr(T)}, {sr(S_CNT)}, {sr(T)}", 3: f"s_cmp_eq_u32 {sr(T)}, 7"})
                if p == 3: ex.update({43: f"s_and_b32 {sr(T)}, {sr(S_CNT)}, 1", 44: f"v_mov_b32 {vr(VPL+1)}, {sr(T)}", 48: ex.pop(45)})
            for k_ in range(o.get("pad", 0)): ex[10 + 7 * k_] = ex.get(10 + 7 * k_, "s_nop 0") + "\ns_nop 7"
            self.period(p, extra=ex, inc=sr(S_INC) if p == 4 else None)
            if p == 1: a("s_cbranch_scc1 L_p14")
        a("s_branch L_loop")
        a.label("L_p14")
        SW = 66
        self.stamp("p14")
        a(f"s_cmp_eq_u32 {sr(S_DUM)}, 4\ns_cbranch_scc0 L_dummyb")
        for i in range(16): a(f"v_mov_b32 {vr(V_CI+i)}, 0xff800000")
        a("s_nop 1")
        a.label("L_dummyb")
        ex = dict(zip([2, 6, 8, 12, 14, 18, 20, 24, 26, 30], self.w_reads(self.WD, 0)))
        ex[0] = "s_waitcnt vmcnt(9)"
        ex.update(dict(zip([4, 10, 16, 22, 28], self.w8_loads(self.WD[2], SW))))
        self.period(14, dma=False, kread=False, extra=ex, halves=(0,))
        self.stamp("tail")
        self.tail(SW)
        self.stamp("end")
        self.epilogue(SW)

    def rare(self):
        a = self.a
        T = S_T
        SW = 66
        a.label("L_last")
        a(f"s_waitcnt vmcnt(9)\ns_mov_b32 {sr(T+2)}, 0")
        a.label("L_late")
        a(f"""v_cmp_ne_u32 vcc, {sr(S_N)}, v252
        s_add_u32 {sr(S_XA)}, {sr(S_WS)}, {WS_WF}
        s_addc_u32 {sr(S_XA+1)}, {sr(S_WS+1)}, 0
        s_mov_b32 {sr(S_XA+2)}, {18*BLK}
        s_add_u32 {sr(S_TOFF)}, {sr(S_LB)}, {9*BLK}
        s_mov_b32 {sr(S_INC)}, {-9*BLK}
        s_lshr_b32 {sr(SW)}, {sr(S_W)}, 1
        s_lshl_b32 {sr(SW)}, {sr(SW)}, 30
        s_add_u32 {sr(SW+1)}, {sr(SW)}, {WS_WF + 8*BLK}
        s_add_u32 {sr(SW)}, {sr(SW)}, {WS_WF + 17*BLK}
        s_and_b32 {sr(T)}, vcc_lo, 31
        s_cbranch_scc0 L_lastb
        buffer_load_dword v252, {vr(self.VPL)}, {sr(S_WS,4)}, 0 offen sc1
        s_add_u32 {sr(T+2)}, {sr(T+2)}, 1
        s_waitcnt vmcnt(0)
        s_cmp_lt_u32 {sr(T+2)}, 0x40000
        s_cbranch_scc1 L_late
        s_branch L_lastb""")

    units = [(0, 0), (0, 1), (1, 0), (1, 1), (2, 0)]
    V15 = V_K

    def stage(self, slot, T):
        src = ar(A_O + 36 * slot + 4 * T, 4)
        if slot == 0: return f"ds_write_b128 {vr(self.VST)}, {src} offset:{1024*T}"
        if slot == 2: return f"ds_write_b128 {vr(self.VS0)}, {src} offset:{1024*T}"
        if T < 4: return f"ds_write_b128 {vr(self.VST)}, {src} offset:{SLOT + 1024*T + (4096 if slot == 3 else 0)}"
        return f"{'s_not_b64' if slot == 1 else 's_mov_b64'} exec, {sr(self.MP1,2)}\nds_write_b128 {vr(self.VST)}, {src} offset:{SLOT + 8192}\ns_mov_b64 exec, -1"

    def dwf(self, k, i):
        f = 5 * k + i
        return self.DWT[f >> 1] + 2 * (f & 1)

    def tail(self, SW):
        a, o = self.a, self.o
        mf, pos, start = [], {}, {}
        for t_, qb in ((14, 0), (14, 1), (15, 0), (15, 1), (14, 2), (15, 2), (14, 3), (15, 3)):
            start[t_, qb] = len(mf)
            for Tt in ([0, 1, 2, 3, 8, 4, 5, 6, 7] if qb & 1 else range(9)):
                o_ = ar(A_O + 36 * qb + 4 * Tt, 4)
                pos[t_, qb, Tt] = len(mf)
                mf.append(f"v_mfma_f32_16x16x32_bf16 {o_}, {vr((V_V if t_ == 14 else self.V15)+4*Tt,4)}, {vr(self.P(t_ & 1,qb),4)}, {o_}")
        lst = []
        for qb in range(4):
            for j in range(8):
                lst.append(("e", qb, j))
                if j & 1: lst.append(("c", qb, j // 2))
        lst += [("a", qb, j) for qb in range(4) for j in range(8)]
        items = self.e_items(1, lst, lambda qb, j: 0 if j < 4 else 1, lambda qb: start[15, qb] - 2)
        for it in items[48:]: it["lo"] = o.get("alo", 26)
        v15 = [dict(t=x, c=4, need=pos[15, 0, i // 2], hi=pos[15, 0, i // 2] - o.get("vlead", 7), lo=0 if i < 16 else 2) for i, x in enumerate(self.v_reads(3, self.V15))]
        wr = []
        nown = o.get("nown", 4)
        self.own = [(2, T_) for T_ in range(nown, 9)] + [(3, T_) for T_ in (0, 1, 2, 3, 8)]
        g = o.get("w0", 23)
        for k, (sl, Tt) in enumerate([(0, T_) for T_ in range(9)] + [(1, T_) for T_ in (0, 1, 2, 3, 8)] + [(2, T_) for T_ in range(nown)]):
            g = max(pos[15, sl, Tt] + 5, g)
            wr.append(dict(t=self.stage(sl, Tt), c=o.get("wc", 20), lo=int(g), hi=int(g)) if g < 72 else dict(t=self.stage(sl, Tt), c=4, lo=999))
            g += o.get("wsp", 2.7)
        n0 = len(items) + len(v15)
        wo = []
        for i, x in enumerate(self.w_reads(self.WO, SLOT)):
            r0 = self.WO[i // 5][i % 5][1]
            wo.append(dict(t=("@VM\n" if i == 0 else "") + x, c=4, dep=sorted({n0 + r0 // 4, n0 + (r0 + 3) // 4 if (r0 + 3) // 4 < 9 else n0 + 8}), lo=o.get("wo0", 40) + 3 * i, hi=o.get("wo0", 40) + 3 * i + 2))
        cl = self.conv_loads()
        dl = [f"buffer_load_dwordx4 {vr(self.DWT[r],4)}, {vr(self.VDW)}, {sr(S_WS,4)}, 0 offen offset:{256*r}" for r in range(7)]
        dl.append(f"buffer_load_dwordx2 {vr(self.DWT[7],2)}, {vr(self.VDW)}, {sr(S_WS,4)}, 0 offen offset:{256*7}")
        fr = {96: 9, 100: 18, 104: 45, 112: 27, 116: 36}
        vm = [(x, 0) for x in cl] + [(x, fr.get(self.DWT[r], 0)) for r, x in enumerate(dl)]
        used = {w["lo"] for w in wr}
        vi, g = [], o.get("m0", 24)
        for x, lo in vm:
            g = max(g, lo)
            while int(g) in used: g += 1
            vi.append(dict(t=x, c=8, lo=int(g), hi=int(g)) if g < 72 else dict(t=x, c=8, lo=999))
            g += o.get("msp", 2.2)
        left = self.pack(mf, items + v15 + wr + wo + vi)
        self.done_a = {(qb, j) for qb in range(4) for j in range(8) if self.etext(1, ("a", qb, j)) not in left}
        left = [x for x in left if not x.startswith("v_add_f32")]
        print("tail overflow", self.over, "left", len(left), "adds done", len(self.done_a))
        self.left = left

    def epilogue(self, SW):
        a, o = self.a, self.o
        T = S_T
        p = lambda r: vr(r, 2)
        NB, PT, MK, VO, units, MP1 = self.NB, self.PT, self.MK, self.VO, self.units, self.MP1
        U, GM, G0, GP = self.U, self.GM, self.G0, self.GP
        X2O = self.X2O
        R1, R2, R3 = 230, 231, 249
        LA, LS, M = 10, 226, 48

        def weave(main, fill, per):
            fill = list(fill)
            for x in main:
                a(x)
                for _ in range(per):
                    if fill: a(fill.pop(0))
            return fill
        for x in self.left:
            if not x.startswith("buffer"): a(x)
        lv = [x for x in self.left if x.startswith("buffer")]
        lv += [f"buffer_load_dwordx4 {vr(self.XRS[j],4)}, {vr(VO+j)}, {sr(S_X,4)}, {sr(self.E_COL)} offen" for j in range(2)]
        lv.append(f"buffer_load_dwordx2 {vr(self.XRS[2],2)}, {vr(self.VO8)}, {sr(S_X,4)}, 0 offen offset:256")
        S1 = lambda qb, j: self.S(1, qb, j)
        rounds = [[] for _ in range(6)]
        for qb in range(4):
            rem = [j for j in range(8) if (qb, j) not in self.done_a]
            prs = [j for j in rem if j % 2 == 0 and j + 1 in rem]
            sing = [j for j in rem if (j & ~1) not in prs]
            r_ = 0
            while len(prs) > 1:
                for x, y in zip(prs[0::2], prs[1::2]): rounds[r_].append(f"v_pk_add_f32 {p(S1(qb,x))}, {p(S1(qb,x))}, {p(S1(qb,y))}")
                prs = prs[0::2]; r_ += 1
            for k_, j in enumerate(sing + ([prs[0], prs[0] + 1] if prs else [])): rounds[min(5, max(r_, 2) + k_)].append(f"v_add_f32 {vr(V_L+qb)}, {vr(V_L+qb)}, {vr(S1(qb,j))}")
        for r_ in rounds:
            for x in r_: a(x)
        a(f"v_add_u32 {vr(R1)}, {sr(self.RS1)}, {vr(V_DMA)}\nv_add_u32 {vr(R2)}, {sr(self.RS2)}, {vr(V_DMA)}")
        self.treduce(V_L)
        a(f"ds_write_b32 {vr(self.VLW)}, {vr(V_L)}")
        acc = lambda slot: [f"v_accvgpr_read_b32 {vr(M+i)}, {ar(A_O+36*slot+16+i)}" for i in range(20)]
        a(f"""v_add_u32 {vr(R3)}, {sr(self.RS3)}, {vr(V_DMA)}
        v_add_u32 {vr(LA+1)}, {self.L_L}, {vr(V_DMA)}
        v_and_b32 {vr(LS+1)}, 0xf0, {vr(V_DMA)}
        s_lshl_b32 {sr(T)}, {sr(NB)}, 8
        s_add_u32 {sr(T+8)}, {sr(T)}, {self.L_L}
        v_add_u32 {vr(LS)}, {sr(T+8)}, {vr(LS+1)}""")
        for x in lv: a(x)
        a(f"""s_xor_b32 {sr(T)}, s2, 1
        s_mul_i32 {sr(T)}, {sr(T)}, {IB}
        s_mul_i32 {sr(T+9)}, {sr(NB)}, 5120
        s_add_u32 {sr(T+9)}, {sr(T+9)}, {WS_IB}
        s_add_u32 {sr(T)}, {sr(T)}, {sr(T+9)}
        s_lshl_b32 {sr(T+10)}, {sr(PT)}, 11
        s_add_u32 {sr(T+1)}, {sr(T+10)}, {sr(T)}
        s_add_u32 {sr(T)}, {sr(T)}, 4096
        s_cmp_eq_u32 {sr(PT)}, 0
        s_cselect_b32 {sr(T)}, 0x40000000, {sr(T)}
        s_mov_b32 {sr(T+2)}, {f32(2.0**100)}
        s_mul_i32 {sr(T+12)}, s2, {IB}
        s_add_u32 {sr(T+12)}, {sr(T+12)}, {sr(T+9)}
        s_add_u32 {sr(T+13)}, {sr(T+12)}, {sr(T+10)}
        s_waitcnt lgkmcnt(0)
        s_barrier""")
        self.stamp("B1")

        def rd(X, offs):
            L = [[f"ds_read_b128 {vr(X[k][i],4)}, {vr((R1, R2, R3)[k])} offset:{offs[k] + 1024*i}" for i in range(4)] for k in range(3)]
            L8 = [f"ds_read_b128 {vr(X[k][4],4)}, {vr((R1, R2, R3)[k])} offset:8192" for k in range(3)]
            return L, L8

        def adds(X, k, rng):
            return [f"v_pk_add_f32 {p(M+4*i+2*h)}, {p(M+4*i+2*h)}, {p(X[k][i]+2*h)}" for i in rng for h in range(2)]
        X = [[128, 132, 136, 140, 144], [148, 152, 156, 160, 68], [72, 76, 200, 204, 108]]
        PK = 128
        L, L8 = rd(X, (0, 4096, 0))
        a(f"ds_read_b128 {vr(LA,4)}, {vr(LA+1)}\nds_read_b128 {vr(LS,4)}, {vr(LS)}")
        rest = weave(L[0] + L[1] + L[2], acc(1), 2)
        assert not rest
        a(f"s_mov_b64 exec, {sr(MP1,2)}")
        for x in L8: a(x)
        a(f"""s_mov_b64 exec, -1
        s_waitcnt lgkmcnt(11)
        v_add_f32 {vr(LA)}, {vr(LA)}, {vr(LA+1)}
        v_add_f32 {vr(LA+2)}, {vr(LA+2)}, {vr(LA+3)}
        v_add_f32 {vr(LS)}, {vr(LS)}, {vr(LS+1)}
        v_add_f32 {vr(LA)}, {vr(LA)}, {vr(LA+2)}
        v_add_f32 {vr(LS+2)}, {vr(LS+2)}, {vr(LS+3)}
        v_cmp_nge_f32 vcc, {sr(T+2)}, {vr(LA)}""")
        for x in adds(X, 0, range(4)): a(x)
        a(f"""s_cmp_lg_u64 vcc, 0
        s_cselect_b32 {sr(T+2)}, 1, 0
        s_andn2_b32 {sr(T+2)}, {sr(T+2)}, {sr(S_REDO)}
        s_cbranch_scc1 L_fallback
        v_add_f32 {vr(PK+10)}, {vr(LS)}, {vr(LS+2)}
        v_mov_b32 {vr(PK+11)}, {vr(MK+1)}
        s_waitcnt lgkmcnt(7)""")
        for x in adds(X, 1, range(4)): a(x)
        a("s_waitcnt lgkmcnt(3)")
        a3 = adds(X, 2, range(4))
        cv = [f"v_cvt_pk_bf16_f32 {vr(PK+i)}, {vr(M+2*i)}, {vr(M+2*i+1)}" for i in range(10)]
        for x in a3[:4] + a3[4:6] + cv[:4]: a(x)
        a(f"buffer_store_dwordx4 {vr(PK,4)}, {vr(V_DMA)}, {sr(S_WS,4)}, {sr(T+1)} offen sc1")
        for x in a3[6:] + cv[4:8]: a(x)
        a(f"buffer_store_dwordx4 {vr(PK+4,4)}, {vr(V_DMA)}, {sr(S_WS,4)}, {sr(T+1)} offen offset:1024 sc1")
        a("s_waitcnt lgkmcnt(0)")
        for kk in range(3):
            for x in adds(X, kk, [4]): a(x)
        for x in cv[8:]: a(x)
        a(f"buffer_store_dwordx4 {vr(PK+8,4)}, {vr(V_DMA)}, {sr(S_WS,4)}, {sr(T)} offen sc1")
        self.stamp("sent")
        a(f"s_cmp_eq_u32 {sr(S_VAL)}, 0\ns_cbranch_scc1 L_fin")
        C, UP = 140, 68
        IN = [(200, 204, 226), (164, 168, 252), (192, 196, 172)]
        VXW, VXR, VF, LO = 78, 79, 10, 36
        wr = [self.stage(*e) for e in self.own]

        def inbox(k):
            return [f"buffer_load_dwordx4 {vr(IN[k][0],4)}, {vr(V_DMA)}, {sr(S_WS,4)}, {sr(T+13)} offen sc1",
                    f"buffer_load_dwordx4 {vr(IN[k][1],4)}, {vr(V_DMA)}, {sr(S_WS,4)}, {sr(T+13)} offen offset:1024 sc1",
                    f"buffer_load_dwordx4 {vr(IN[k][2],4)}, {vr(V_DMA+1)}, {sr(S_WS,4)}, {sr(T+12)} offen sc1"]
        for x in inbox(0): a(x)
        n0 = len(a.lines)
        a(f"""s_lshl_b32 {sr(T)}, {sr(NB)}, 12
        s_add_u32 {sr(T)}, {sr(T)}, {sr(T+10)}
        s_add_u32 {sr(T)}, {sr(T)}, {self.X1B}
        v_add_u32 {vr(VXW)}, {sr(T)}, {vr(V_DMA)}
        s_lshl_b32 {sr(T)}, {sr(NB)}, 9
        s_add_u32 {sr(T)}, {sr(T)}, {self.X1B + 4096}
        v_add_u32 {vr(VXR)}, {sr(T)}, {vr(self.VL8)}
        s_lshl_b32 {sr(T)}, {sr(PT)}, 12
        s_add_u32 {sr(T)}, {sr(T)}, {self.X1B}
        v_add_u32 {vr(VF)}, {sr(T)}, {vr(V_DMA)}
        v_xor_b32 {vr(VF+1)}, 4096, {vr(VF)}
        s_lshl_b32 {sr(T)}, {sr(PT)}, 9
        s_add_u32 {sr(T)}, {sr(T)}, {self.X1B + 4096}
        v_add_u32 {vr(VF+2)}, {sr(T)}, {vr(self.VL8)}
        v_xor_b32 {vr(VF+3)}, 512, {vr(VF+2)}
        v_subrev_u32 {vr(R2)}, {2*SLOT}, {vr(R2)}
        v_subrev_u32 {vr(R3)}, {2*SLOT}, {vr(R3)}
        s_waitcnt vmcnt(9)""")
        self.stamp("cv0")
        un = [f"v_lshlrev_b32 {vr(M+2*i)}, 16, {vr(U+i)}\nv_and_b32 {vr(M+1+2*i)}, 0xffff0000, {vr(U+i)}" for i in range(10)]
        w8 = self.w8_loads(self.WO[2], SW + 1)
        for k, src in enumerate((GM, G0, GP)):
            for i in range(5):
                d = vr(C + 4 * i, 4)
                a(f"v_mfma_f32_16x16x16_bf16 {d}, {vr(self.dwf(k, i),2)}, {vr(src+2*i,2)}, {'0' if k == 0 else d}")
                a(w8.pop(0) if i in (0, 3) and w8 else un.pop(0))
        self.stamp("cv1")
        a(f"v_and_b32 {vr(LO+1)}, 0xf0, {vr(V_DMA)}\nv_add_u32 {vr(LO)}, {sr(T+8)}, {vr(LO+1)}\ns_nop 1")
        for i in range(10): a(f"v_pk_mul_f32 {p(C+2*i)}, {p(C+2*i)}, {p(M+2*i)}")
        for i in range(10):
            a(f"v_cvt_pk_bf16_f32 {vr(UP+i)}, {vr(C+2*i)}, {vr(C+2*i+1)}")
        body = a.lines[n0:]; del a.lines[n0:]
        step = max(1, len(body) // len(wr))
        for i, l in enumerate(body):
            if i % o.get("wstep", step) == 0 and wr: a(wr.pop(0))
            a.lines.append(l)
        for x in wr: a(x)
        ac = acc(3)
        a(f"ds_write_b128 {vr(VXW)}, {vr(UP,4)} offset:{X2O}")
        for x in ac[:6]: a(x)
        a(f"ds_write_b128 {vr(VXW)}, {vr(UP+4,4)} offset:{X2O + 1024}")
        for x in ac[6:12]: a(x)
        a(f"""s_mov_b64 exec, {sr(MP1,2)}
        ds_write_b64 {vr(VXR)}, {vr(UP+8,2)} offset:{X2O}
        s_mov_b64 exec, -1""")
        self.stamp("x2")
        for x in inbox(1): a(x)
        for x in ac[12:]: a(x)
        a("s_waitcnt lgkmcnt(0)\ns_barrier")
        self.stamp("B2")
        X = [[128, 132, 136, 140, 144], [148, 152, 156, 160, 188], [16, 20, 24, 28, 32]]
        L, L8 = rd(X, (4096, 4096, 0))
        BU = [[("v", r) for r in (100, 104, 108, 112, 116)], [("v", r) for r in (118, 122, 180, 184, 126)]]
        BO = [self.frag("v", 128), self.frag("v", 146)]
        AB = 80

        def bfrags(dst, off):
            out = []
            for s in range(5):
                for j in range(2):
                    out.append(f"ds_read_b128 {self.rg(dst[j][s],4)}, {vr(VF+j)} offset:{off + 1024*s}" if s < 4 else f"ds_read_b64 {self.rg(dst[j][4],2)}, {vr(VF+2+j)} offset:{off}")
            return out

        def fg(W, Bf):
            out = []
            for s in range(5):
                for u, (tt, j) in enumerate(units):
                    d = vr(AB + 4 * u, 4)
                    if s < 4: out.append(f"v_mfma_f32_16x16x32_bf16 {d}, {self.rg(W[tt][s],4)}, {self.rg(Bf[j][s],4)}, {d}")
                    else: out.append(f"v_mfma_f32_16x16x16_bf16 {d}, {self.rg(W[tt][4],2)}, {self.rg(Bf[j][4],2)}, {d}")
            return out
        xu = []
        for u, (tt, j) in enumerate(units):
            for h in range(2):
                x = self.XRS[j] + 2 * tt + h if tt < 2 else self.XRS[2] + h
                xu += [f"v_lshlrev_b32 {vr(AB+4*u+2*h)}, 16, {vr(x)}", f"v_and_b32 {vr(AB+1+4*u+2*h)}, 0xffff0000, {vr(x)}"]
        a("s_waitcnt vmcnt(14)")
        weave(bfrags(BU, X2O), xu, 2)
        pl = lambda k, i, e: f"v_add_f32 {vr(M+4*i+e)}, {vr(M+4*i+e)}, {vr(X[k][i]+e)}"
        ds = L[0] + L[1] + L[2] + [f"s_not_b64 exec, {sr(MP1,2)}\n" + "\n".join(L8) + "\ns_mov_b64 exec, -1", f"ds_read_b128 {vr(LO,4)}, {vr(LO)} offset:512"]
        nis = [1] * 12 + [3, 1]
        gap = [[] for _ in range(25)]
        tot = [10]
        for g in range(25): tot.append(tot[-1] + (nis[g] if g < 14 else 0))
        A0 = [pl(0, i, e) for i in range(4) for e in range(4)]
        A1 = [pl(1, i, e) for i in range(4) for e in range(4)]
        ib = inbox(2)
        for g, m in enumerate(fg(self.WD, BU)):
            if g % 5 == 0: a(f"s_waitcnt lgkmcnt({min(15, tot[g] - 2 * (g // 5 + 1))})")
            a(m)
            if g == 8: a(f"s_waitcnt lgkmcnt({tot[g] - 14})")
            if g == 16: a(f"s_waitcnt lgkmcnt({tot[g] - 18})")
            if g < 14: a(ds[g])
            if 8 <= g < 14: a(A0.pop(0))
            elif g in (14, 18, 22): a(ib.pop(0))
            elif g >= 14:
                for _ in range(2): a(A0.pop(0) if A0 else A1.pop(0))
        assert not A0 and len(A1) % 2 == 0
        n1 = 16 - len(A1)
        for e in range(n1, 16, 2): a(f"v_pk_add_f32 {p(M+e)}, {p(M+e)}, {p(X[1][e//4]+e%4)}")
        a("s_waitcnt lgkmcnt(0)")
        for x in adds(X, 2, range(4)): a(x)
        a(f"v_add_f32 {vr(LO)}, {vr(LO)}, {vr(LO+1)}\nv_add_f32 {vr(LO+2)}, {vr(LO+2)}, {vr(LO+3)}")
        for kk in range(3):
            for x in adds(X, kk, [4]): a(x)
        a(f"s_mov_b32 {sr(T+2)}, 0\nv_add_f32 {vr(LO)}, {vr(LO)}, {vr(LO+2)}")
        self.stamp("own")
        w, PU = 40, 128
        mo = MK + 3

        def chk(k):
            r = [IN[k][q] + i for q in range(3) for i in range(4)]
            c = [f"v_max3_u32 v46, {vr(r[0])}, {vr(r[1])}, {vr(r[2])}", f"v_max3_u32 v47, {vr(r[3])}, {vr(r[4])}, {vr(r[5])}"]
            for q in range(3): c.append(f"v_max3_u32 v{46+(q&1)}, v{46+(q&1)}, {vr(r[6+2*q])}, {vr(r[7+2*q])}")
            return c + ["v_max_u32 v46, v46, v47", "v_cmp_eq_u32 vcc, -1, v46"]

        def take(k, with_chk):
            r = [IN[k][q] + i for q in range(3) for i in range(4)]
            lp_, mp = r[10], r[11]
            wt = [f"v_min_f32 {vr(w)}, {vr(mo)}, {vr(mp)}", f"v_sub_f32 {vr(w+2)}, {vr(w)}, {vr(mp)}", f"v_sub_f32 {vr(w)}, {vr(w)}, {vr(mo)}",
                  f"v_exp_f32 {vr(w+2)}, {vr(w+2)}", f"v_exp_f32 {vr(w)}, {vr(w)}", f"v_mul_f32 {vr(w+4)}, {vr(w+2)}, {vr(lp_)}",
                  f"v_fmac_f32 {vr(w+4)}, {vr(w)}, {vr(LO)}", f"v_rcp_f32 {vr(w+4)}, {vr(w+4)}", f"v_mul_f32 {vr(w)}, {vr(w)}, {vr(w+4)}",
                  f"v_mul_f32 {vr(w+2)}, {vr(w+2)}, {vr(w+4)}"]
            un = []
            for i in range(10): un += [f"v_lshlrev_b32 {vr(PU+2*i)}, 16, {vr(r[i])}", f"v_and_b32 {vr(PU+1+2*i)}, 0xffff0000, {vr(r[i])}"]
            c = chk(k) if with_chk else []
            for i in range(10):
                a(wt[i])
                if c: a(c.pop(0))
                a(un.pop(0)); a(un.pop(0))
        a("s_waitcnt vmcnt(6)")
        take(0, True)
        a("s_cmp_eq_u64 vcc, 0\ns_cbranch_scc0 L_poll2")
        a.label("L_got")
        self.stamp("got")
        for i in range(10): a(f"v_pk_mul_f32 {p(M+2*i)}, {p(M+2*i)}, {p(w)} op_sel_hi:[1,0]")
        for i in range(10): a(f"v_pk_fma_f32 {p(M+2*i)}, {p(PU+2*i)}, {p(w+2)}, {p(M+2*i)} op_sel_hi:[1,0,1]")
        for i in range(10):
            a(f"v_cvt_pk_bf16_f32 {vr(UP+i)}, {vr(M+2*i)}, {vr(M+2*i+1)}")
            if i == 3: a(f"ds_write_b128 {vr(VXW)}, {vr(UP,4)}")
            if i == 7: a(f"ds_write_b128 {vr(VXW)}, {vr(UP+4,4)} offset:1024")
        a(f"""s_not_b64 exec, {sr(MP1,2)}
        ds_write_b64 {vr(VXR)}, {vr(UP+8,2)}
        s_mov_b64 exec, -1
        s_waitcnt lgkmcnt(0)
        s_barrier""")
        self.stamp("B3")
        for x in bfrags(BO, 0): a(x)
        for g, m in enumerate(fg(self.WO, BO)):
            if g % 5 == 0: a(f"s_waitcnt lgkmcnt({8 - 2 * (g // 5)})" + ("\ns_nop 0" if g == 20 else ""))
            a(m)
        self.stamp("gem")
        a("s_nop 3")
        for j in range(2):
            for tt in range(2):
                u = 2 * tt + j
                for h in range(2): a(f"v_cvt_pk_bf16_f32 {vr(16+4*j+2*tt+h)}, {vr(AB+4*u+2*h)}, {vr(AB+4*u+2*h+1)}")
            a(f"buffer_store_dwordx4 {vr(16+4*j,4)}, {vr(VO+j)}, {sr(S_OUT,4)}, {sr(self.E_COL)} offen {o.get('ofl', '')}")
        a(f"s_cmp_ge_u32 {sr(S_W)}, 2\ns_cbranch_scc1 L_fin")
        for h in range(2): a(f"v_cvt_pk_bf16_f32 {vr(24+h)}, {vr(AB+16+2*h)}, {vr(AB+16+2*h+1)}")
        a(f"buffer_store_dwordx2 v[24:25], {vr(self.VO8)}, {sr(S_OUT,4)}, 0 offen offset:256 {o.get('ofl', '')}")
        self.stamp("fin")

        def poll2():
            a.label("L_poll2")
            for k in (1, 2, 0):
                for x in inbox((k + 2) % 3): a(x)
                a("s_waitcnt vmcnt(6)")
                for x in chk(k): a(x)
                a(f"s_add_u32 {sr(T+2)}, {sr(T+2)}, 1\ns_cmp_eq_u64 vcc, 0\ns_cbranch_scc1 L_take{k}")
            a(f"s_cmp_lt_u32 {sr(T+2)}, 0x10000\ns_cbranch_scc1 L_poll2")
            for k in (0, 1, 2):
                a.label(f"L_take{k}")
                take(k, False)
                a("s_branch L_got")
        self.poll2 = poll2

    def fallback(self):
        a = self.a
        T = S_T
        MXR = 208
        a.label("L_fallback")
        a(f"""s_waitcnt vmcnt(0) lgkmcnt(0)
        s_barrier
        s_mov_b32 {sr(S_REDO)}, 1
        s_mov_b32 {sr(S_UG)}, 0x40000000
        {self.xa_srd()}
        s_mov_b32 {sr(S_TOFF)}, {sr(S_LB)}
        s_cmp_eq_u32 {sr(S_DUM)}, 4
        s_cselect_b32 {sr(S_CNT)}, 15, 16""")
        for i in range(4): a(f"v_mov_b32 {vr(MXR+i)}, 0xff800000")
        a.label("L_fb1")
        for g in self.tile_groups(0): a(g)
        a("s_waitcnt vmcnt(0)")
        for x in self.k_reads(0): a(x)
        a("s_waitcnt lgkmcnt(0)")
        for m in self.qk_mfmas(0, czero=True): a(m)
        a("s_nop 7")
        for qb in range(4):
            for i in range(0, 8, 2): a(f"v_max3_f32 {vr(MXR+qb)}, {vr(MXR+qb)}, {vr(self.S(0,qb,i))}, {vr(self.S(0,qb,i+1))}")
        a(f"s_sub_u32 {sr(S_CNT)}, {sr(S_CNT)}, 1\ns_cmp_lg_u32 {sr(S_CNT)}, 0\ns_cbranch_scc1 L_fb1")
        self.greduce([MXR + i for i in range(4)], MXR + 4, "v_max_f32")
        a(f"""v_and_b32 {vr(MXR+4)}, 15, v0
        v_lshlrev_b32 {vr(MXR+4)}, 4, {vr(MXR+4)}
        v_add_u32 {vr(MXR+4)}, {L_SP}, {vr(MXR+4)}
        s_lshl_b32 {sr(T)}, {sr(S_W)}, 2
        s_xor_b32 {sr(T+1)}, {sr(self.NB)}, 1
        v_lshl_add_u32 {vr(MXR+5)}, {sr(self.NB)}, 8, {vr(MXR+4)}
        v_lshl_add_u32 {vr(MXR+4)}, {sr(T+1)}, 8, {vr(MXR+4)}
        v_add_u32 {vr(MXR+6)}, {sr(T)}, {vr(MXR+4)}
        v_add_u32 {vr(MXR+7)}, {sr(T)}, {vr(MXR+5)}""")
        for qb in range(4): a(f"ds_write_b32 {vr(MXR+6+(qb&1))}, {vr(MXR+qb)} offset:{512*(qb>>1)}")
        a("s_waitcnt lgkmcnt(0)\ns_barrier")
        for qb in range(4): a(f"ds_read_b128 {vr(16+4*qb,4)}, {vr(MXR+4+(qb&1))} offset:{512*(qb>>1)}")
        a(f"s_mov_b32 {sr(S_TOFF)}, {sr(S_LB)}")
        for g in self.tile_groups(0) + self.tile_groups(1) + ([] if self.o.get("gs", 0) else self.tile_groups(2)[:8]): a(g)
        a("s_waitcnt lgkmcnt(0)")
        for qb in range(4):
            r = 16 + 4 * qb
            a(f"v_max_f32 {vr(r)}, {vr(r)}, {vr(r+1)}\nv_max3_f32 {vr(r)}, {vr(r)}, {vr(r+2)}, {vr(r+3)}")
            a(f"v_sub_f32 {vr(self.MK+qb)}, 0, {vr(r)}")
        a("s_waitcnt vmcnt(0)")
        for x in self.k_reads(0, V_V): a(x)
        self.loop_init(False)
        if self.o.get("gs", 0): self.loop_init(True)
        a("s_branch L_go")


if __name__ == "__main__":
    opt = json.loads(sys.argv[2]) if len(sys.argv) > 2 else {}
    g = G(opt)
    txt = g.build()
    if opt.get("align", 1):
        from align import align
        for n2 in (1, 2):
            try:
                txt, st = align(txt, chains=[(1, "L_tr")] * 3 + [(1, "L_tr2"), (n2, "L_tr2")] if opt.get("touch", 1) else None)
                break
            except AssertionError as e:
                if n2 == 2: raise
        print("align: promoted %d, padded %d, left %d" % st)
    txt = txt.replace("\n", "\n; stamps " + json.dumps(g.stnames) + "\n; map %d\n" % g.mp, 1)
    open(sys.argv[1], "w").write(txt)
```

```python
import sys, json, math
from common import Asm, vr, ar, sr, kernel_header, kernel_desc
from lay import *

NAME = "standalone__conformer_family_branchformer__speech_kernel"
NH = 2
NWG = 252 + NH
CHAINS = (3, 3)
RING = 4
LDS_RING = RING * TILE
LDS_TOTAL = 163840
SLOT = 4 * TILE
L_WU, L_WQ, L_WK = 0, 41472, 82944
L_XX, L_XR = 126976, 143360
L_QD = 18432
L_XS = L_XX + L_QD
L_MX = 81920
L_PC = LDS_TOTAL - 256
L_DUMP = 123904
L_SP = 147456

S_X, S_WS, S_XA, S_DB, S_W1, S_W2, S_OUT, S_DW = 8, 12, 16, 20, 24, 28, 32, 36
S_W, S_B, S_H, S_QB, S_TOFF, S_CNT, S_DUM, S_LB, S_TOWN, S_TSND, S_VAL, S_REDO = range(40, 52)
S_UG, S_CL = 25, 26
S_PH, S_XC, S_SX = 6, 74, 75
S_N, S_FB = 98, 99
S_INC = 24
S_T = 52
S_ST = 76

V_KA, V_VA, V_VR, V_DMA, V_L, V_VB = 1, 3, 5, 6, 10, 14
V_S, V_CI, V_P, V_K, V_V = 16, 80, 96, 128, 164
V_HI = 200
V_X = 208
A_O, A_Q, A_F = 0, 144, 216

LOG2E = 1.4426950408889634
import struct
def f32(x): return "0x%08x" % struct.unpack("<I", struct.pack("<f", x))[0]


class BAsm(Asm):
    def __init__(self):
        super().__init__()
        self.bg, self.every, self.cnt, self.skip = [], 0, 0, 0

    def __call__(self, s):
        for l in s.split("\n"):
            l = l.strip()
            if not l: continue
            self.lines.append("    " + l)
            if self.bg and self.every and not l.startswith(("s_nop", "v_mov_b32", "v_exp", "v_rcp", "v_rsq", "v_sqrt", "s_add_u32 m0")):
                self.cnt += 1
                if self.cnt >= self.every:
                    self.cnt = 0
                    self.pop()

    def pop(self):
        for x in self.bg.pop(0).split("\n"): self.lines.append("    " + x)

    def flush(self):
        while self.bg: self.pop()
        self.every = 0


class G:
    def __init__(self, opt):
        self.o = opt
        self.a = BAsm()
        self.nst = 0
        self.fill = []

    def stamp(self, name):
        if self.o.get("stamps"):
            if name in self.o.get("skipst", []): return
            if "only" in self.o and name not in self.o["only"]: return
            if self.nst >= 11: return
            self.a(f"{'s_memtime' if self.o.get('cyc') else 's_memrealtime'} {sr(S_ST + 2*self.nst, 2)}")
            self.stnames.append(name)
            self.nst += 1

    def srd(self, dst, lo, hi, n):
        if dst == S_WS and self.o.get("wsoff"):
            self.a(f"s_add_u32 {sr(dst)}, {sr(lo)}, {self.o['wsoff']}\ns_addc_u32 {sr(dst+1)}, {sr(hi)}, 0\ns_mov_b32 {sr(dst+2)}, {n}\ns_mov_b32 {sr(dst+3)}, 0x20000")
            return
        self.a(f"s_mov_b32 {sr(dst)}, {sr(lo)}\ns_mov_b32 {sr(dst+1)}, {sr(hi)}\ns_mov_b32 {sr(dst+2)}, {n}\ns_mov_b32 {sr(dst+3)}, 0x20000")

    def greduce(self, regs, tmp, op="v_add_f32"):
        a = self.a
        for sw in ("32", "16"):
            for i, r in enumerate(regs): a(f"v_mov_b32 {vr(tmp+i)}, {vr(r)}")
            if len(regs) < 3: a("s_nop 1" if len(regs) == 1 else "s_nop 0")
            for i, r in enumerate(regs): a(f"v_permlane{sw}_swap_b32 {vr(r)}, {vr(tmp+i)}")
            for i, r in enumerate(regs): a(f"{op} {vr(r)}, {vr(r)}, {vr(tmp+i)}")

    def treduce(self, r, op="v_add_f32"):
        a = self.a
        a(f"v_permlane32_swap_b32 {vr(r)}, {vr(r+2)}\nv_permlane32_swap_b32 {vr(r+1)}, {vr(r+3)}")
        a(f"{op} {vr(r)}, {vr(r)}, {vr(r+2)}\n{op} {vr(r+1)}, {vr(r+1)}, {vr(r+3)}\ns_nop 1")
        a(f"v_permlane16_swap_b32 {vr(r)}, {vr(r+1)}\n{op} {vr(r)}, {vr(r)}, {vr(r+1)}")

    def rbf(self, r):
        self.a(f"v_cvt_pk_bf16_f32 {vr(r)}, {vr(r)}, {vr(r)}\nv_lshlrev_b32 {vr(r)}, 16, {vr(r)}")

    def ln_tail(self, F, out, t, mimic):
        a = self.a
        p = lambda r: vr(r, 2)
        self.greduce([t, t + 1], t + 2)
        a(f"v_mul_f32 {vr(t+2)}, {f32(1.0/144)}, {vr(t)}")
        a(f"v_mul_f32 {vr(t+3)}, {vr(t+2)}, {vr(t+2)}")
        a(f"v_mov_b32 {vr(t+4)}, {f32(1.0/144)}")
        a(f"v_fma_f32 {vr(t)}, {vr(t+1)}, {vr(t+4)}, -{vr(t+3)}")
        a(f"v_max_f32 {vr(t)}, 0, {vr(t)}")
        if mimic:
            self.rbf(t)
            self.rbf(t + 2)
            a(f"v_add_f32 {vr(t)}, {f32(1e-5)}, {vr(t)}")
            self.rbf(t)
            a(f"v_sqrt_f32 {vr(t)}, {vr(t)}\ns_nop 0")
            self.rbf(t)
            a(f"v_rcp_f32 {vr(t)}, {vr(t)}\ns_nop 0")
        else:
            a(f"v_add_f32 {vr(t)}, {f32(1e-5)}, {vr(t)}")
            a(f"v_rsq_f32 {vr(t)}, {vr(t)}\ns_nop 0")
        a(f"v_mul_f32 {vr(t+2)}, -{vr(t+2)}, {vr(t)}")
        for i in range(18):
            a(f"v_pk_fma_f32 {p(F+2*i)}, {p(F+2*i)}, {p(t)}, {p(t+2)} op_sel_hi:[1,0,0]")
        for i in range(18):
            a(f"v_cvt_pk_bf16_f32 {vr(out+i)}, {vr(F+2*i)}, {vr(F+2*i+1)}")

    def ln_packed(self, X, F, out, t):
        a = self.a
        a(f"v_mov_b32 {vr(t+6)}, 0x3f803f80")
        for k in range(4): a(f"v_mov_b32 {vr(t+k)}, 0")
        for i in range(18):
            a(f"v_dot2_f32_bf16 {vr(t+2*(i&1))}, {vr(X+i)}, {vr(t+6)}, {vr(t+2*(i&1))}")
            a(f"v_dot2_f32_bf16 {vr(t+1+2*(i&1))}, {vr(X+i)}, {vr(X+i)}, {vr(t+1+2*(i&1))}")
        for i in range(2):
            a(f"v_lshlrev_b32 {vr(F+2*i)}, 16, {vr(X+i)}\nv_and_b32 {vr(F+2*i+1)}, 0xffff0000, {vr(X+i)}")
        a(f"v_pk_add_f32 {vr(t,2)}, {vr(t,2)}, {vr(t+2,2)}")
        un = []
        for i in range(2, 18):
            un.append(f"v_lshlrev_b32 {vr(F+2*i)}, 16, {vr(X+i)}\nv_and_b32 {vr(F+2*i+1)}, 0xffff0000, {vr(X+i)}")
        sv = (a.bg, a.every, a.cnt, a.skip)
        n0 = len(a.lines)
        a.bg, a.every = [], 0
        self.ln_tail(F, out, t, True)
        tail = a.lines[n0:]
        del a.lines[n0:]
        a.bg, a.every, a.cnt, a.skip = sv
        k = next(i for i, l in enumerate(tail) if "v_pk_fma" in l)
        for i, l in enumerate(tail[:k]):
            if "s_nop" in l and un: continue_nop = True
            a(l)
            if un and not l.strip().startswith("s_nop"): a(un.pop(0))
        while un: a(un.pop(0))
        for l in tail[k:]: a(l)

    def ln_f32(self, F, out, t):
        a = self.a
        p = lambda r: vr(r, 2)
        a(f"v_pk_add_f32 {p(t)}, {p(F)}, {p(F+2)}\nv_pk_add_f32 {p(t+2)}, {p(F+4)}, {p(F+6)}")
        a(f"v_pk_mul_f32 {p(t+4)}, {p(F)}, {p(F)}\nv_pk_mul_f32 {p(t+6)}, {p(F+2)}, {p(F+2)}")
        for i in range(2, 18):
            if i >= 4: a(f"v_pk_add_f32 {p(t+2*(i&1))}, {p(t+2*(i&1))}, {p(F+2*i)}")
            a(f"v_pk_fma_f32 {p(t+4+2*(i&1))}, {p(F+2*i)}, {p(F+2*i)}, {p(t+4+2*(i&1))}")
        a(f"v_pk_add_f32 {p(t)}, {p(t)}, {p(t+2)}\nv_pk_add_f32 {p(t+4)}, {p(t+4)}, {p(t+6)}")
        a(f"v_add_f32 {vr(t)}, {vr(t)}, {vr(t+1)}\nv_add_f32 {vr(t+1)}, {vr(t+4)}, {vr(t+5)}")
        self.ln_tail(F, out, t, False)

    def gemm_u(self, AF, rf, Bs, ACC, afr, bfr, post, vm_items=(), other=(), lead=7, vm0=0, vmsp=4, at={}, lastk=0):
        a = self.a
        units = [(0, j) for j in range(4)] + [(1, j) for j in range(4)] + [(2, 0)]
        seq, dl = [], {}
        bs = lambda j, o_, n: self.rg((Bs[j][0], Bs[j][1] + o_), n)
        rem = lambda u: (f"v_mfma_f32_16x16x16_bf16 {vr(ACC+4*u,4)}, {rf(AF+18*units[u][0]+16,2)}, {bs(units[u][1],16,2)}, {vr(ACC+4*u,4)}", u)
        A = [afr(t) for t in range(3)]
        Bf = [bfr(j) for j in range(4)]

        def use(t, j, s, k):
            for x in (A[t][2 * s:2 * s + 2] if s < 4 else A[t][8:]) + ([Bf[j][s]] if Bf[j] else []): dl.setdefault(x, k)
        for g in range(4):
            for s in range(4):
                for u in range(3 * g, 3 * g + 3) if g < 3 else []:
                    t, j = units[u]
                    d = vr(ACC + 4 * u, 4)
                    use(t, j, s, len(seq))
                    seq.append((f"v_mfma_f32_16x16x32_bf16 {d}, {rf(AF+18*t+4*s,4)}, {bs(j,4*s,4)}, {'0' if s == 0 else d}", None))
                if s == 0 and g > 0:
                    for u in range(3 * g - 3, 3 * g):
                        use(units[u][0], units[u][1], 4, len(seq)); seq.append(rem(u))
        last = seq[-3:]; seq = seq[:-3]
        ds = sorted(dl.items(), key=lambda e: e[1]) + [(x, 99) for x in other]
        vm_items = list(vm_items)
        lastvm = vm0 - vmsp
        order, ready, q, done = [], [], [], 0

        def issue():
            x, k_ = ds.pop(0); a(x); order.append(k_)

        def wait(k):
            nonlocal done
            idx = [i_ for i_, k_ in enumerate(order) if k_ <= k]
            if idx and max(idx) + 1 > done:
                a(f"s_waitcnt lgkmcnt({min(15, len(order) - 1 - max(idx))})"); done = max(idx) + 1
        while ds and ds[0][1] < 6: issue()
        for k, (m, fin) in enumerate(seq):
            assert not ds or ds[0][1] > k, (k, ds[0])
            wait(k)
            a(m)
            for u_, kk in list(ready):
                if k - kk >= 4: q += post(u_); ready.remove((u_, kk))
            if fin is not None: ready.append((fin, k))
            if k in at: at[k]()
            due = sum(1 for x, k_ in ds if k_ <= k + lead)
            if due == 0 and vm_items and k >= lastvm + vmsp and (len(vm_items) > 1 or k >= lastk):
                a(vm_items.pop(0)); lastvm = k; continue
            cap = 2
            for _ in range(min(due, 3)): issue(); cap -= 1
            if cap == 2:
                if q and q[0].startswith("ds_"): a(q.pop(0)); order.append(99); cap -= 1
                elif ds: issue(); cap -= 1
            while cap > 0 and q and not q[0].startswith("ds_"):
                a(q.pop(0)); cap -= 1
        assert not ready
        while ds: issue()
        wait(98)
        for x in vm_items: a(x)
        for x in q[:4]: a(x)
        a(f"s_nop {max(0, 4 - len(q[:4]))}")
        for m, _ in last: a(m)
        for x in q[4:]: a(x)
        a(f"s_nop {max(0, 6 - len(q[4:]))}")
        for u in range(6, 9):
            for x in post(u): a(x)

    def gemm(self, reads, B, ACC, AF, late=(), at={}, per=2):
        a = self.a
        buf = lambda T: 18 * (T % 6)
        ng = 3 * (4 * per + 1)

        def grp(g):
            r = [reads(T, buf(T)) for T in range(3 * g, 3 * g + 3)]
            return [r[t][per * s + u] for s in range(4) for t in range(3) for u in range(per)] + [r[t][4 * per] for t in range(3)]
        rem = lambda T: f"v_mfma_f32_16x16x16_bf16 {vr(ACC+4*T,4)}, {ar(buf(T)+16,2)}, {vr(B+16,2)}, {vr(ACC+4*T,4)}"
        pend = grp(0) + grp(1) + grp(2) + list(late)
        issued = k = 0

        def issue(n):
            nonlocal issued
            for _ in range(n):
                if issued < len(pend): a(pend[issued]); issued += 1

        def mf(x):
            nonlocal k
            a(x); issue(per if per == 2 else (2 if k % 4 == 0 else 1))
            if k in at: a(at[k])
            k += 1
        issue(self.o.get('look', 12) if per == 2 else self.o.get('look1', 8))
        for g in range(3):
            for s in range(4):
                need = ng * g + 3 * per * (s + 1)
                a(f"s_waitcnt lgkmcnt({min(15, issued - need)})")
                for T in range(3 * g, 3 * g + 3):
                    d = vr(ACC + 4 * T, 4)
                    mf(f"v_mfma_f32_16x16x32_bf16 {d}, {ar(buf(T)+4*s,4)}, {vr(B+4*s,4)}, {'0' if s == 0 else d}")
                if s == 0 and g > 0:
                    for T in range(3 * g - 3, 3 * g): mf(rem(T))
                if g == 1 and s == 0: assert issued <= 2 * ng + 6 * per, "group 2 overwrites group 0 too early"
        issue(99)
        a(f"s_waitcnt lgkmcnt({len(late)})\ns_nop 2")
        for T in range(6, 9): a(rem(T))
        a("s_nop 7")

    def tr_reads(self, ad, rf=ar):
        def f(T, dst):
            out = []
            for s in range(4):
                for u in range(2):
                    out.append(f"ds_read_b64_tr_b16 {rf(dst+4*s+2*u,2)}, {vr(ad+u)} offset:{9216*s + 32*T}")
            out.append(f"ds_read_b64_tr_b16 {rf(dst+16,2)}, {vr(ad+2)} offset:{36864 + 32*T}")
            return out
        return f

    def row_reads(self, ad, sw=None):
        def f(T, dst):
            r = ad if sw is None or T == 8 else sw[T & 1]
            out = []
            for s in range(4):
                for u in range(2):
                    out.append(f"ds_read_b64 {ar(dst+4*s+2*u,2)}, {vr(r)} offset:{4864*T + 64*s + 32*u}")
            out.append(f"ds_read_b64 {ar(dst+16,2)}, {vr(r)} offset:{4864*T + 256}")
            return out
        return f

    def dma_rows(self, jobs, cpr, rstride, vo, vc, n_first, first_waves, lab):
        a = self.a
        mul = {18: 3641, 19: 3450}[cpr]
        dr, dc = 256 // cpr, 256 % cpr
        a(f"s_lshl_b32 {sr(S_T)}, {sr(S_W)}, 6")
        a(f"v_add_u32 {vr(vc)}, {sr(S_T)}, v0")
        a(f"v_mul_u32_u24 {vr(vo)}, {mul}, {vr(vc)}")
        a(f"v_lshrrev_b32 {vr(vo)}, 16, {vr(vo)}")
        a(f"v_mul_u32_u24 {vr(vc+1)}, {cpr}, {vr(vo)}")
        a(f"v_sub_u32 {vr(vc)}, {vr(vc)}, {vr(vc+1)}")
        a(f"v_mul_u32_u24 {vr(vo)}, {rstride}, {vr(vo)}")
        a(f"v_lshl_add_u32 {vr(vo)}, {vr(vc)}, 4, {vr(vo)}")
        a(f"s_lshl_b32 {sr(S_T)}, {sr(S_W)}, 10")
        a(f"v_mov_b32 {vr(vc+1)}, {rstride - 16*cpr}")
        for k in range(n_first):
            if k == n_first - 1:
                a(f"s_cmp_ge_u32 {sr(S_W)}, {first_waves}\ns_cbranch_scc1 {lab}")
            for srd, so, lb in jobs:
                a(f"s_add_u32 m0, {sr(S_T)}, {lb + 4096*k}")
                a("s_nop 0")
                a(f"buffer_load_dwordx4 {vr(vo)}, {sr(srd,4)}, {so} offen lds")
            if k < n_first - 1:
                a(f"v_add_u32 {vr(vc)}, {dc}, {vr(vc)}")
                a(f"v_cmp_le_u32 vcc, {cpr}, {vr(vc)}")
                a(f"v_add_u32 {vr(vo)}, {dr*rstride + 16*dc}, {vr(vo)}")
                a(f"v_subrev_u32 {vr(vc+2)}, {cpr}, {vr(vc)}")
                a(f"v_cndmask_b32 {vr(vc)}, {vr(vc)}, {vr(vc+2)}, vcc")
                a(f"v_cndmask_b32 {vr(vc+2)}, 0, {vr(vc+1)}, vcc")
                a(f"v_add_u32 {vr(vo)}, {vr(vo)}, {vr(vc+2)}")
        a.label(lab)

    def voff_table(self, dst, cpr, rstride, vc, step=256):
        a = self.a
        mul = {18: 29128, 19: 27595}[cpr]
        n = len(dst)
        a(f"s_mov_b32 {sr(S_T)}, {rstride - 16*cpr}")
        a(f"v_mul_u32_u24 {vr(dst[0])}, {mul}, {vr(vc)}")
        for k in range(1, n): a(f"v_add_u32 {vr(dst[k])}, {(step*k % cpr)*mul}, {vr(dst[0])}")
        for k in range(n): a(f"v_lshrrev_b32 {vr(dst[k])}, 19, {vr(dst[k])}")
        for k in range(n): a(f"v_mad_i32_i24 {vr(dst[k])}, {vr(dst[k])}, {sr(S_T)}, {vr(vc+1)}")

    def dma_lin(self, srd, soff, lb, v16, lab):
        a = self.a
        a(f"s_lshl_b32 {sr(S_T)}, {sr(S_W)}, 10")
        for k in range(11):
            if k == 10:
                a(f"s_cmp_ge_u32 {sr(S_W)}, 1\ns_cbranch_scc1 {lab}")
            a(f"s_add_u32 m0, {sr(S_T)}, {lb + 4096*k}")
            a(f"s_add_u32 {sr(S_T+1)}, {sr(S_T)}, {soff + 4096*k}")
            a(f"buffer_load_dwordx4 {vr(v16)}, {sr(srd,4)}, {sr(S_T+1)} offen lds")
        a.label(lab)

    def tr_addr(self, ad, base, swapped, t):
        a = self.a
        a(f"v_lshrrev_b32 {vr(t)}, 2, v0")
        a(f"v_mul_u32_u24 {vr(t)}, 288, {vr(t)}")
        a(f"v_and_b32 {vr(t+1)}, 3, v0")
        a(f"v_lshl_add_u32 {vr(t)}, {vr(t+1)}, 3, {vr(t)}")
        a(f"v_add_u32 {vr(ad+2)}, {base}, {vr(t)}")
        if swapped:
            a(f"v_bfe_u32 {vr(t)}, v0, 4, 1")
            a(f"v_mul_u32_u24 {vr(t)}, {16*288}, {vr(t)}")
            a(f"v_add_u32 {vr(ad)}, {vr(ad+2)}, {vr(t)}")
            a(f"v_sub_u32 {vr(ad+1)}, {vr(ad+2)}, {vr(t)}")
            a(f"v_add_u32 {vr(ad+1)}, {16*288}, {vr(ad+1)}")
        else:
            a(f"v_mov_b32 {vr(ad)}, {vr(ad+2)}")
            a(f"v_add_u32 {vr(ad+1)}, {16*288}, {vr(ad+2)}")

    def row_addr(self, ad, base, t):
        a = self.a
        a(f"v_and_b32 {vr(t)}, 15, v0")
        a(f"v_mul_u32_u24 {vr(t)}, 304, {vr(t)}")
        a(f"v_lshrrev_b32 {vr(t+1)}, 4, v0")
        a(f"v_lshl_add_u32 {vr(t)}, {vr(t+1)}, 3, {vr(t)}")
        a(f"v_add_u32 {vr(ad)}, {base}, {vr(t)}")

    def store_block(self, src, v16, v8, srd, soff, soff2, flags=""):
        a = self.a
        for s in range(4):
            a(f"buffer_store_dwordx4 {vr(src+4*s,4)}, {vr(v16)}, {sr(srd,4)}, {sr(soff)} offen offset:{1024*s} {flags}")
        a(f"buffer_store_dwordx2 {vr(src+16,2)}, {vr(v8)}, {sr(srd,4)}, {sr(soff2)} offen {flags}")

    def entry(self):
        a = self.a
        kernel_header(a, NAME)
        a(f"s_load_dwordx16 s[56:71], s[0:1], 0")
        a(f"s_load_dwordx8 s[72:79], s[0:1], 64")
        a(f"s_getpc_b64 {sr(S_W1,2)}")
        a.label("L_pf")
        a(f"""s_mov_b32 {sr(S_W1+2)}, L_dummy-L_pf
        s_mov_b32 {sr(S_W1+3)}, 0x20000
        v_lshlrev_b32 v2, 4, v0
        buffer_load_dwordx4 v[252:255], v2, {sr(S_W1,4)}, 0 offen
        s_lshl_b32 s3, s2, 9
        s_and_b32 s3, s3, 0x7000
        buffer_load_dwordx4 v[252:255], v2, {sr(S_W1,4)}, s3 offen
        v_lshrrev_b32 v1, 6, v0
        s_sub_u32 s2, s2, {NH}
        v_readfirstlane_b32 {sr(S_W)}, v1
        s_memrealtime s[4:5]
        s_cmp_ge_u32 s2, {NWG - NH}
        s_cbranch_scc1 L_wfuse""")
        if self.o.get("late"):
            m_, v_, n_ = self.o["late"]
            a(f"""s_and_b32 s3, s2, {m_}
            s_cmp_lg_u32 s3, {v_}
            s_cbranch_scc1 L_nl
            s_memrealtime s[4:5]
            s_waitcnt lgkmcnt(0)
            s_add_u32 s6, s4, {n_}
            L_lt:
            s_memrealtime s[4:5]
            s_waitcnt lgkmcnt(0)
            s_sub_u32 s7, s6, s4
            s_cmp_gt_i32 s7, 0
            s_cbranch_scc1 L_lt
            L_nl:""")
        if self.o.get("stamps"):
            a("s_memrealtime s[100:101]" if not self.o.get("cyc") else "s_memtime s[100:101]")
        self.mp = 2

    def vm_since(self, mark):
        return sum(1 for l in self.a.lines[mark:] if l.strip().startswith("buffer_"))

    def phase_a(self):
        a, o = self.a, self.o
        XR, XF, XA, ACC, G_, PK = 16, 34, 146, 110, 16, 164
        B4, XD = 16, 88
        VS, VSW, VR4, MXA, MXR, L8, TRU, TRQ, TRQ8, RK, TM = 200, 204, 208, 212, 213, 214, 215, 218, 221, 224, 228
        VK, VU = list(range(182, 193)), list(range(193, 200)) + list(range(104, 108))
        AQ1 = 200
        t0, t1, t2 = 250, 251, 227
        T = S_T
        WV, W10, UOFF, M1, PUB, M3 = 72, 70, 71, 69, 68, 65
        PH = 2
        if o.get("xm", 0):
            PH = S_PH
            a(f"""s_mov_b32 {sr(PH)}, s2
            s_bfe_u32 {sr(T)}, s2, 0x10003
            s_and_b32 {sr(T+1)}, s2, 7
            s_lshl1_add_u32 {sr(T)}, {sr(T+1)}, {sr(T)}
            s_and_b32 {sr(T+1)}, s2, 0xf0
            s_or_b32 {sr(T)}, {sr(T)}, {sr(T+1)}
            s_add_u32 s2, s2, 4
            s_cmp_lt_u32 {sr(T)}, 248
            s_cselect_b32 s2, {sr(T)}, s2""")
        a(f"""v_and_b32 v0, 63, v0
        s_bfe_u32 {sr(S_B)}, s2, 0x10001
        s_lshr_b32 {sr(S_QB)}, s2, 2
        s_lshr_b32 {sr(T)}, {sr(S_W)}, 1
        s_xor_b32 {sr(T)}, {sr(T)}, s2
        s_andn2_b32 {sr(T)}, 1, {sr(T)}
        s_lshl1_add_u32 {sr(T+3)}, {sr(S_QB)}, {sr(T)}
        s_mul_i32 {sr(T)}, {sr(S_B)}, {NT}
        s_add_u32 {sr(T+1)}, {sr(T+3)}, {sr(T)}
        s_and_b32 {sr(T+2)}, {sr(S_W)}, 1
        s_lshl1_add_u32 {sr(T+2)}, {sr(T+1)}, {sr(T+2)}
        v_lshlrev_b32 {vr(V_DMA)}, 4, v0
        s_mul_i32 {sr(T+1)}, {sr(T+2)}, {16*288}
        s_mul_i32 {sr(S_LB)}, {sr(S_W)}, {BLK}
        s_add_u32 m0, {sr(S_LB)}, {L_XS}
        s_mov_b32 {sr(S_X+2)}, 2304000
        s_mov_b32 {sr(S_X+3)}, {sr(S_W1+3)}
        s_add_u32 {sr(S_CNT)}, {sr(T+1)}, 4096
        s_waitcnt lgkmcnt(0)
        s_mov_b64 {sr(S_X,2)}, s[56:57]""")
        for k in range(4): a(f"buffer_load_dwordx4 {vr(V_DMA)}, {sr(S_X,4)}, {sr(T+1)} offen offset:{1024*k} lds")
        a(f"s_add_u32 m0, {sr(S_LB)}, {L_XS + 4096}\ns_mov_b32 exec_hi, 0\nbuffer_load_dwordx4 {vr(V_DMA)}, {sr(S_X,4)}, {sr(S_CNT)} offen lds\ns_mov_b32 exec_hi, -1")
        mx = len(a.lines)
        a(f"""s_add_u32 {sr(S_LB)}, {sr(S_LB)}, {L_XS}
        s_and_b32 {sr(S_H)}, s2, 1
        s_lshl1_add_u32 {sr(S_TOWN)}, {sr(S_QB)}, {sr(S_H)}
        s_cmp_lt_u32 {sr(S_TOWN)}, {NT}
        s_cselect_b32 {sr(S_VAL)}, 1, 0
        s_add_u32 {sr(S_TOWN)}, {sr(S_TOWN)}, {sr(T)}""")
        SQ, SK, SU = S_W2, S_W1, S_XA
        self.srd(SU, 66, 67, 82944)
        self.srd(SQ, 58, 59, 41472)
        self.srd(SK, 60, 61, 41472)
        a(f"s_lshr_b32 {sr(T)}, {sr(PH)}, 3\ns_lshl_b32 {sr(T)}, {sr(T)}, 12\ns_lshl_b32 {sr(W10)}, {sr(S_W)}, 10\ns_add_u32 {sr(T)}, {sr(T)}, {sr(W10)}")
        a(f"buffer_load_dwordx4 v[252:255], {vr(V_DMA)}, {sr(SU,4)}, {sr(T)} offen")
        for srd_, rot in ((SQ, 82), (SK, 41)):
            a(f"s_add_u32 {sr(T+1)}, {sr(T)}, {(128 - rot) * 1024}\ns_and_b32 {sr(T+1)}, {sr(T+1)}, {127 * 1024}")
            a(f"buffer_load_dwordx4 v[252:255], {vr(V_DMA)}, {sr(srd_,4)}, {sr(T+1)} offen")
        self.srd(S_OUT, 74, 75, 2304000)
        self.srd(S_DB, 76, 77, 256)
        self.srd(S_WS, 78, 79, WS_END)
        def tlb():
            a(f"v_lshlrev_b32 v249, 21, v0")
            for ch in o.get("tlbw", "wdo"): a(f"buffer_load_dword v252, v249, {sr(dict(w=S_WS, d=S_DB, o=S_OUT)[ch],4)}, 0 offen")
        if o.get("tlb", 0) == 1: tlb()
        if o.get("tlb", 3) == 3:
            a(f"""s_bfe_u32 {sr(T)}, {sr(PH)}, 0x30003
            s_lshl_b32 {sr(T)}, {sr(T)}, 21
            v_mov_b32 v249, 0
            s_cmp_lt_u32 {sr(T)}, {5 << 21}
            s_cbranch_scc0 L_tl1
            buffer_load_dword v252, v249, {sr(S_WS,4)}, {sr(T)} offen
            s_branch L_tl3
            L_tl1:
            s_sub_u32 {sr(T)}, {sr(T)}, {5 << 21}
            s_cmp_lt_u32 {sr(T)}, {2 << 21}
            s_cbranch_scc0 L_tl2
            buffer_load_dword v252, v249, {sr(S_OUT,4)}, {sr(T)} offen
            s_branch L_tl3
            L_tl2:
            s_or_b32 s4, s4, 1
            v_lshlrev_b32 v249, 8, v0
            v_mov_b32 v250, s4
            s_lshl2_add_u32 s5, {sr(PH)}, {sr(S_W)}
            s_cmp_eq_u32 s5, {56 * 4}
            s_cbranch_scc0 L_tl4
            buffer_store_dword v250, v249, {sr(S_DB,4)}, 0 offen sc1
            s_branch L_tl3
            L_tl4:
            buffer_load_dword v252, v249, {sr(S_DB,4)}, 0 offen offset:128
            L_tl3:""")
            self.vm_adj = -3
        if o.get("tl4"):
            a(f"""s_mul_i32 {sr(T)}, {sr(S_TOWN)}, {TILE}
            v_lshlrev_b32 v249, 12, v0
            v_add_u32 v249, {sr(T)}, v249
            s_mov_b64 exec, 7
            buffer_load_dword v252, v249, {sr(S_WS,4)}, 0 offen
            s_mov_b64 exec, -1""")
        if o.get("stamps"): a(f"s_mov_b64 {sr(S_ST,2)}, s[100:101]"); self.stnames.append("start"); self.nst = 1
        self.stamp("xiss")
        a(f"""s_cmp_lt_u32 {sr(T+3)}, {NT}
        s_cselect_b32 {sr(WV)}, 1, 0
        s_mov_b32 {sr(WV+1)}, {sr(T+2)}
        s_mul_i32 {sr(UOFF)}, {sr(S_H)}, 288
        s_cmp_eq_u32 {sr(S_W)}, 0
        s_cselect_b32 {sr(M1)}, 0, {L_DUMP}
        s_cmp_lt_u32 {sr(S_W)}, 3
        s_cselect_b32 {sr(M3)}, {sr(W10)}, {L_DUMP}""")
        half = lambda g_: "s_mov_b32 exec_hi, 0\n" + g_ + "\ns_mov_b32 exec_hi, -1"
        gu = [f"s_add_u32 m0, {sr(W10 if k < 10 else M1)}, {L_WU + 4096*k}\ns_add_u32 {sr(S_CNT)}, {sr(UOFF)}, {4096*k + 288*(256*k//18)}\nbuffer_load_dwordx4 {vr(VU[k])}, {sr(SU,4)}, {sr(S_CNT)} offen lds" for k in range(11)]
        gu[10] = half(gu[10])
        gq = [f"s_add_u32 m0, {sr(W10 if k < 10 else M1)}, {L_WQ + 4096*k}\ns_add_u32 {sr(S_CNT)}, {sr(W10)}, {4096*k}\nbuffer_load_dwordx4 {vr(V_DMA)}, {sr(SQ,4)}, {sr(S_CNT)} offen lds" for k in range(11)]
        gq[10] = half(gq[10])
        gk = [f"s_add_u32 m0, {sr(W10 if k < 10 else M3)}, {L_WK + 4096*k}\ns_mov_b32 {sr(S_CNT)}, {4096*k - 16*(256*k//19)}\nbuffer_load_dwordx4 {vr(VK[k])}, {sr(SK,4)}, {sr(S_CNT)} offen lds" for k in range(11)]
        a(f"s_lshl_b32 {sr(T)}, {sr(S_W)}, 6\nv_add_u32 {vr(t0)}, {sr(T)}, v0\nv_lshlrev_b32 {vr(t1)}, 4, {vr(t0)}")
        self.voff_table(VU, 18, 576, t0)
        npre = o.get("npre", 3)
        a.bg, a.every, a.cnt = gu[:npre], o.get("evpre", 40), 0
        self.voff_table(VK, 19, 288, t0)
        xa0, xa1, xa2 = TM, TM + 1, TM + 2
        a(f"""v_and_b32 {vr(t0)}, 15, v0
        v_lshrrev_b32 {vr(t1)}, 5, v0
        v_lshlrev_b32 {vr(t1)}, 3, {vr(t1)}
        v_xor_b32 {vr(t1)}, {vr(t0)}, {vr(t1)}
        v_lshlrev_b32 {vr(t1)}, 4, {vr(t1)}
        v_lshrrev_b32 {vr(t2)}, 4, v0
        v_lshl_add_u32 {vr(V_KA)}, {vr(t2)}, 9, {vr(t1)}
        v_lshrrev_b32 {vr(t1)}, 3, {vr(t0)}
        v_lshlrev_b32 {vr(t1)}, 1, {vr(t1)}
        v_xor_b32 {vr(t1)}, {vr(t2)}, {vr(t1)}
        v_lshl_add_u32 {vr(t1)}, {vr(t0)}, 2, {vr(t1)}
        v_lshlrev_b32 {vr(V_KA+1)}, 3, {vr(t1)}
        v_lshlrev_b32 {vr(L8)}, 3, v0
        v_lshlrev_b32 {vr(MXR)}, 4, {vr(t0)}
        v_add_u32 {vr(MXR)}, {L_MX}, {vr(MXR)}
        v_add_u32 {vr(MXA)}, {sr(S_W)}, {vr(t2)}
        v_and_b32 {vr(MXA)}, 3, {vr(MXA)}
        v_lshl_add_u32 {vr(MXA)}, {vr(MXA)}, 8, {vr(MXR)}
        s_lshl_b32 {sr(T)}, {sr(S_W)}, 2
        v_add_u32 {vr(MXA)}, {sr(T)}, {vr(MXA)}
        v_mul_u32_u24 {vr(xa2)}, 288, {vr(t0)}
        v_lshl_add_u32 {vr(xa2)}, {vr(t2)}, 3, {vr(xa2)}
        v_add_u32 {vr(xa2)}, {sr(S_LB)}, {vr(xa2)}
        v_and_b32 {vr(t1)}, 1, {vr(t2)}
        v_lshlrev_b32 {vr(t1)}, 5, {vr(t1)}
        v_add_u32 {vr(xa0)}, {vr(xa2)}, {vr(t1)}
        v_xor_b32 {vr(t1)}, 32, {vr(t1)}
        v_add_u32 {vr(xa1)}, {vr(xa2)}, {vr(t1)}
        s_mul_i32 {sr(S_LB)}, {sr(S_W)}, {TILE}
        v_lshrrev_b32 {vr(t0)}, 2, v0
        v_bfe_u32 {vr(t1)}, v0, 1, 1
        v_lshlrev_b32 {vr(t1)}, 3, {vr(t1)}
        v_xor_b32 {vr(t1)}, {vr(t0)}, {vr(t1)}
        v_lshlrev_b32 {vr(t1)}, 4, {vr(t1)}
        v_and_b32 {vr(t2)}, 3, v0
        v_lshl_add_u32 {vr(t1)}, {vr(t2)}, 9, {vr(t1)}
        v_and_b32 {vr(V_VA)}, 1, v0
        v_lshl_add_u32 {vr(t1)}, {vr(V_VA)}, 3, {vr(t1)}
        s_and_b32 {sr(T)}, {sr(S_W)}, 1
        s_lshl_b32 {sr(T)}, {sr(T)}, 12
        s_add_u32 {sr(T+1)}, {sr(T)}, {sr(S_LB)}
        s_xor_b32 {sr(T)}, {sr(T)}, 4096
        s_add_u32 {sr(T)}, {sr(T)}, {sr(S_LB)}
        v_add_u32 {vr(V_VA)}, {sr(T)}, {vr(t1)}
        v_add_u32 {vr(V_VB)}, {sr(T+1)}, {vr(t1)}
        v_xor_b32 {vr(V_VA+1)}, 8, {vr(V_VA)}
        v_xor_b32 {vr(V_VB+1)}, 8, {vr(V_VB)}
        v_lshrrev_b32 {vr(t1)}, 5, v0
        v_lshlrev_b32 {vr(t1)}, 1, {vr(t1)}
        v_xor_b32 {vr(t1)}, {vr(t2)}, {vr(t1)}
        v_lshl_add_u32 {vr(t1)}, {vr(t0)}, 2, {vr(t1)}
        v_lshlrev_b32 {vr(t1)}, 3, {vr(t1)}
        v_add_u32 {vr(V_VR)}, {sr(S_LB)}, {vr(t1)}
        v_add_u32 {vr(V_DMA+1)}, 4096, {vr(V_DMA)}
        v_add_u32 {vr(V_DMA+2)}, 8192, {vr(V_DMA)}""")
        self.tr_addr(TRU, L_WU, True, t0)
        a(f"s_lshl_b32 {sr(T)}, {sr(S_W)}, 6\ns_add_u32 {sr(T)}, {sr(T)}, {L_WQ - L_WU}")
        for k in range(3):
            a(f"v_add_u32 {vr(TRQ+k)}, {sr(T)}, {vr(TRU+k)}\nv_add_u32 {vr(TRQ8+k)}, {L_WQ - L_WU + 256}, {vr(TRU+k)}")
        self.row_addr(RK + 2, L_WK + 8 * 4864, t0)
        a(f"""s_mul_i32 {sr(T)}, {sr(S_W)}, {2*4864}
        s_sub_u32 {sr(T)}, {sr(T)}, {8*4864}
        v_add_u32 {vr(t1)}, {sr(T)}, {vr(RK+2)}
        v_bfe_u32 {vr(t0)}, v0, 2, 1
        v_mul_u32_u24 {vr(t0)}, 4864, {vr(t0)}
        v_add_u32 {vr(RK)}, {vr(t1)}, {vr(t0)}
        v_sub_u32 {vr(RK+1)}, {vr(t1)}, {vr(t0)}""")
        for j in range(4):
            a(f"""s_add_u32 {sr(T)}, {sr(S_W)}, {j}
            s_and_b32 {sr(T)}, {sr(T)}, 3
            s_lshl_b32 {sr(T+1)}, {sr(T)}, 12
            s_add_u32 {sr(T+1)}, {sr(T+1)}, {L_XX}
            v_add_u32 {vr(VS+j)}, {sr(T+1)}, {vr(V_DMA)}
            s_lshl_b32 {sr(T+1)}, {sr(T)}, 9
            s_add_u32 {sr(T+1)}, {sr(T+1)}, {L_XR}
            v_add_u32 {vr(VR4+j)}, {sr(T+1)}, {vr(L8)}
            v_add_u32 {vr(VSW+j)}, {sr(W10)}, {vr(VS+j)}""")
        a(f"""s_sub_u32 {sr(T+2)}, 63, {sr(S_H)}
        s_add_u32 {sr(T+3)}, {sr(S_W)}, 60
        s_cmp_ge_u32 {sr(T+3)}, {sr(T+2)}
        s_cselect_b32 {sr(S_DUM)}, 4, 99
        s_mov_b32 {sr(S_REDO)}, 0
        s_mov_b32 {sr(S_TOFF)}, {sr(S_LB)}
        s_lshl_b32 {sr(PUB)}, {sr(S_TOWN)}, 8
        s_add_u32 {sr(PUB)}, {sr(PUB)}, {WS_F}
        s_and_b32 {sr(T)}, {sr(S_W)}, 1
        s_lshl_b32 {sr(T)}, {sr(T)}, 7
        s_add_u32 {sr(PUB)}, {sr(PUB)}, {sr(T)}
        s_lshr_b32 {sr(T)}, {sr(S_W)}, 1
        s_and_b32 {sr(T)}, {sr(T)}, {sr(S_VAL)}
        s_cmp_eq_u32 {sr(T)}, 1
        s_cselect_b32 {sr(PUB)}, {sr(PUB)}, 0x40000000
        s_lshl_b32 {sr(S_FB)}, s2, 8
        s_add_u32 {sr(S_FB)}, {sr(S_FB)}, {WS_F + 250*256}
        s_mul_i32 {sr(T)}, {sr(S_H)}, 1792
        s_sub_u32 {sr(T)}, {sr(T)}, 768
        s_mul_i32 {sr(T+1)}, {sr(S_H)}, 62
        s_cmp_eq_u32 {sr(S_QB)}, {sr(T+1)}
        s_cselect_b32 {sr(T)}, 0, {sr(T)}
        v_mov_b32 {vr(self.VPL)}, 0x40000000
        s_xor_b32 {sr(T+1)}, {sr(S_FB)}, 256
        s_add_u32 {sr(T)}, {sr(T)}, {sr(S_FB)}
        v_writelane_b32 {vr(self.VPL)}, {sr(S_FB)}, 0
        v_writelane_b32 {vr(self.VPL)}, {sr(T+1)}, 1
        v_writelane_b32 {vr(self.VPL)}, {sr(T)}, 2
        s_mov_b32 {sr(T)}, {WS_F + 502*256}
        s_mov_b32 {sr(T+1)}, {WS_F + 503*256}
        v_writelane_b32 {vr(self.VPL)}, {sr(T)}, 3
        v_writelane_b32 {vr(self.VPL)}, {sr(T+1)}, 4
        s_sub_u32 {sr(S_FB)}, {sr(S_FB)}, {L_PC}""")
        if o.get("xm", 0):
            a(f"""s_getreg_b32 {sr(S_XC)}, hwreg(HW_REG_XCC_ID, 0, 4)
            s_xor_b32 {sr(T)}, s2, 1
            s_lshl_b32 {sr(T)}, {sr(T)}, 8
            s_add_u32 {sr(T)}, {sr(T)}, {WS_F + 250*256 + 4}
            v_writelane_b32 {vr(self.VPL)}, {sr(T)}, 5""")
        a.flush()
        if o.get("tlb", 0) == 2: tlb()
        self.stamp("pre")
        if o.get("es", 0) == 0: self.epi_setup()
        self.stamp("es")
        nx = self.vm_since(mx) + getattr(self, "vm_adj", 0)
        if o.get("touch", 1):
            a(f"""s_mov_b64 exec, 0
            s_cmp_eq_u32 {sr(S_W)}, 0
            s_cbranch_scc1 L_tr
            s_cmp_eq_u32 {sr(S_W)}, 1
            s_cbranch_scc1 L_t0
            s_cmp_eq_u32 {sr(S_W)}, 2
            s_cbranch_scc1 L_t1
            s_branch L_t2""")
            self.rare()
            a.raw(".p2align 12")
            a.label("L_tr")
            a("s_mov_b64 exec, -1")
        nlate = o.get("nlate", 0)
        for g_ in gu[npre:npre + nlate]: a(g_)
        a(f"s_waitcnt vmcnt({nx + nlate})")
        self.stamp("xarr")
        for s in range(4):
            a(f"ds_read_b64 {vr(XR+4*s,2)}, {vr(xa0)} offset:{64*s}\nds_read_b64 {vr(XR+4*s+2,2)}, {vr(xa1)} offset:{64*s}")
        a(f"ds_read_b64 {vr(XR+16,2)}, {vr(xa2)} offset:256")
        a(f"""s_and_b32 {sr(T)}, {sr(S_W)}, 1
        s_mul_i32 {sr(T+2)}, {sr(S_TOWN)}, {TILE}
        s_cmp_eq_u32 {sr(S_VAL)}, 1
        s_cselect_b32 {sr(T+2)}, {sr(T+2)}, 0x40000000
        s_lshl_b32 {sr(T+3)}, {sr(T)}, 8
        s_add_u32 {sr(T+3)}, {sr(T+3)}, {sr(T+2)}
        s_add_u32 {sr(T+4)}, {sr(T+3)}, 4096
        s_lshl_b32 {sr(T+5)}, {sr(T)}, 9
        s_add_u32 {sr(T+5)}, {sr(T+5)}, {sr(T+2)}
        s_add_u32 {sr(T+5)}, {sr(T+5)}, 8192
        s_waitcnt lgkmcnt(0)""")
        wl = gq + gk
        a.bg, a.every, a.cnt = gu[npre + nlate:] + [wl.pop(0) for _ in range(o.get("nql", 11))], o.get("evln", 5), 0
        self.ln_packed(XR, XF, XA, TM)
        a.flush()
        self.stamp("ln")
        a(f"s_cmp_lt_u32 {sr(S_W)}, 2\ns_cbranch_scc1 L_nop")
        for s in range(4):
            a(f"buffer_store_dwordx4 {vr(XA+4*s,4)}, {vr(V_KA)}, {sr(S_WS,4)}, {sr(T+3+(s>>1))} offen offset:{2048*(s&1)} {o.get('pfl', 'sc1')}")
        a(f"buffer_store_dwordx2 {vr(XA+16,2)}, {vr(V_KA+1)}, {sr(S_WS,4)}, {sr(T+5)} offen {o.get('pfl', 'sc1')}\ns_waitcnt vmcnt({5 + o.get('nql', 11)})\ns_branch L_bar1")
        a.label("L_nop")
        if o.get("touch", 1):
            a(f"s_mov_b64 exec, 0\ns_cmp_eq_u32 {sr(S_W)}, 0\ns_cbranch_scc1 L_t3\ns_branch L_t4")
            a.label("L_tr2")
            a("s_mov_b64 exec, -1")
        a(f"s_waitcnt vmcnt({o.get('nql', 11)})")
        a.label("L_bar1")
        self.stamp("pub")
        xw = [f"ds_write_b128 {vr(VS)}, {vr(XA+4*s,4)} offset:{1024*s}" for s in range(4)] + [f"ds_write_b64 {vr(VR4)}, {vr(XA+16,2)}"]
        self.stamp("tch")
        PA = 249
        a(f"""v_add_u32 {vr(V_KA)}, {sr(S_LB)}, {vr(V_KA)}
        v_add_u32 {vr(V_KA+1)}, {sr(S_LB)}, {vr(V_KA+1)}
        s_mul_i32 {sr(T)}, {sr(S_B)}, {NT}
        s_mul_i32 {sr(T+1)}, {sr(S_H)}, 63
        s_add_u32 {sr(T)}, {sr(T)}, {sr(T+1)}
        s_lshl_b32 {sr(T)}, {sr(T)}, 8
        s_add_u32 {sr(T)}, {sr(T)}, {WS_F}
        s_cmp_eq_u32 {sr(S_W)}, 0
        {"" if o.get("gatepos", 0) else f"s_cselect_b32 {sr(T)}, {sr(T)}, 0x40000000"}
        v_lshl_add_u32 {vr(PA)}, v0, 8, {sr(T)}
        {self.xa_srd()}
        s_waitcnt lgkmcnt(0)""")
        self.stamp("w1")
        a("s_barrier")
        self.stamp("bar1")
        m_b1 = len(a.lines)
        poll = lambda r: f"buffer_load_dword {vr(r)}, {vr(PA)}, {sr(S_WS,4)}, 0 offen sc1\nbuffer_load_dword {vr(r+2)}, {vr(PA)}, {sr(S_WS,4)}, 0 offen offset:128 sc1"

        def gate(lab, r, mask, younger):
            a(f"s_mov_b32 {sr(T+2)}, 0\ns_waitcnt vmcnt({younger})")
            a.label(lab)
            a(f"""v_cmp_ne_u32 vcc, {sr(S_N)}, {vr(r)}
            v_cmp_ne_u32 {sr(T+10,2)}, {sr(S_N)}, {vr(r+2)}
            s_add_u32 {sr(T+2)}, {sr(T+2)}, 1
            s_or_b64 vcc, vcc, {sr(T+10,2)}
            s_and_b64 vcc, vcc, {mask}
            s_cbranch_scc0 {lab}_ok
            s_sleep {o.get("slp", 4)}
            {poll(r)}
            s_waitcnt vmcnt(0)
            s_cmp_lt_u32 {sr(T+2)}, 0x40000
            s_cbranch_scc1 {lab}""")
            a.label(lab + "_ok")

        H, G_, UG, MS, CL = 16, 52, 208, 110, 104
        nup = o.get("nup", 5)
        at = {o.get("u0", 6) + o.get("usp", 6) * i: wl.pop(0) for i in range(nup)}
        for i in range(5): at[i] = xw[i]
        tagld = f"buffer_load_dword v253, off, {sr(S_DB,4)}, 0 sc1"
        tag1 = tagld.replace("sc1", o.get("tgf", "sc1")).strip()
        at[o.get("tgp", 5)] = tag1
        if o.get("es", 0) == 1:
            n_ = len(a.lines); self.epi_setup()
            el = [l.strip() for l in a.lines[n_:]]; del a.lines[n_:]
            for k in range(5, 42):
                if k in at: continue
                c_ = 0
                while el and c_ < o.get("esn", 2):
                    x = el.pop(0); at[k] = at.get(k, "") + x + "\n"; c_ += 1 if x.startswith("v_") else 0.5
            self.es_left = el
        self.gemm(self.tr_reads(TRU), XA, H, None, at=at)
        if o.get("es", 0) == 1:
            for x in self.es_left: a(x)
        self.stamp("up")
        p = lambda r: vr(r, 2)
        CC = TM
        c1 = -2.0 * math.sqrt(2.0 / math.pi) * LOG2E
        c2 = c1 * 0.044715
        gst = [[f"v_pk_mul_f32 {p(G_+2*i)}, {p(H+2*i)}, {p(H+2*i)}" for i in range(18)] +
               [f"v_pk_fma_f32 {p(G_+2*i)}, {p(G_+2*i)}, {p(CC+2)}, {p(CC)} op_sel_hi:[1,0,0]" for i in range(18)] +
               [f"v_pk_mul_f32 {p(G_+2*i)}, {p(G_+2*i)}, {p(H+2*i)}" for i in range(18)],
               [f"v_exp_f32 {vr(G_+i)}, {vr(G_+i)}" for i in range(36)],
               [f"v_pk_add_f32 {p(G_+2*i)}, {p(G_+2*i)}, {p(CC+4)} op_sel_hi:[1,0]" for i in range(18)],
               [f"v_rcp_f32 {vr(G_+i)}, {vr(G_+i)}" for i in range(36)],
               [f"v_pk_mul_f32 {p(H+2*i)}, {p(G_+2*i)}, {p(H+2*i)}" for i in range(18)]]
        gs = o.get("gs", 0)
        if gs:
            a(f"v_mov_b32 {vr(CC)}, {f32(c1)}\nv_mov_b32 {vr(CC+2)}, {f32(c2)}\nv_mov_b32 {vr(CC+4)}, 1.0")
            pre = [x for st_ in gst[:gs] for x in st_]
            ngw = o.get("ngw", 0)
            for i, x in enumerate(pre):
                a(x)
                if ngw and i % o.get("gwsp", 8) == 2 and wl: a(wl.pop(0)); ngw -= 1
            self.stamp("gea")
        last = lambda srd: max(i for i, l in enumerate(a.lines) if l.strip().startswith("buffer_load") and sr(srd, 4) in l) + 1
        assert not any(sr(SQ, 4) in x for x in wl)
        nq_ = self.vm_since(m_b1) + (5 if last(SQ) < m_b1 else 0) if last(SQ) < m_b1 else self.vm_since(last(SQ))
        a(f"s_waitcnt vmcnt({self.vm_since(m_b1) if last(SQ) < m_b1 else nq_}) lgkmcnt(0)" if False else "")
        if last(SQ) < m_b1:
            a(f"s_cmp_lt_u32 {sr(S_W)}, 2\ns_cbranch_scc1 L_bg0\ns_waitcnt vmcnt({5 + self.vm_since(m_b1)})\ns_branch L_bg1\nL_bg0:\ns_waitcnt vmcnt({self.vm_since(m_b1)})\nL_bg1:\ns_waitcnt lgkmcnt(0)\ns_barrier")
        else: a(f"s_waitcnt vmcnt({self.vm_since(last(SQ))}) lgkmcnt(0)\ns_barrier")

        def flag():
            n_ = self.vm_since(max(i for i, l in enumerate(a.lines) if l.strip() == tag1) + 1)
            a(f"v_lshrrev_b32 {vr(t0)}, 5, v0\nv_lshlrev_b32 {vr(t0)}, 30, {vr(t0)}\nv_lshl_add_u32 {vr(t0)}, v0, 2, {vr(t0)}\ns_mov_b32 {sr(T+5)}, 0\ns_waitcnt vmcnt({n_})")
            a.label("L_tag")
            a(f"""v_readfirstlane_b32 {sr(S_N)}, v253
            s_add_u32 {sr(T+5)}, {sr(T+5)}, 1
            s_cmp_lg_u32 {sr(S_N)}, 0
            s_cbranch_scc1 L_tag_ok
            {tagld}
            s_waitcnt vmcnt(0)
            s_cmp_lt_u32 {sr(T+5)}, 0x40000
            s_cbranch_scc1 L_tag""")
            a.label("L_tag_ok")
            a(f"v_mov_b32 {vr(t1)}, {sr(S_N)}\nbuffer_store_dword {vr(t1)}, {vr(t0)}, {sr(S_WS,4)}, {sr(PUB)} offen sc1")
            self.m_fl = len(a.lines)
            self.stamp("flag")
        self.stamp("barG")
        if o.get("atw"):
            a("s_waitcnt vmcnt(0)")
            self.stamp("ack")
        if o.get("census"):
            k_ = S_ST + 2 * self.stnames.index(o["census"][0])
            a(f"s_waitcnt lgkmcnt(0)\nv_mov_b32 v252, {sr(k_)}\ns_lshl_b32 {sr(T)}, s2, 2\ns_add_u32 {sr(T)}, {sr(T)}, {WS_DBG}\nv_mov_b32 v253, 0\nbuffer_store_dword v252, v253, {sr(S_WS,4)}, {sr(T)} offen sc1")

        def a_tr(t):
            ad, off = (TRQ, 32 * t) if t < 2 else (TRQ8, 0)
            return [f"ds_read_b64_tr_b16 {ar(AQ1+18*t+4*s+2*u,2)}, {vr(ad+u)} offset:{9216*s + off}" for s in range(4) for u in range(2)] + \
                   [f"ds_read_b64_tr_b16 {ar(AQ1+18*t+16,2)}, {vr(ad+2)} offset:{36864 + off}"]

        def a_row(t):
            off = 4864 * t if t < 2 else 0
            return [f"ds_read_b64 {ar(A_Q+18*t+4*s+2*u,2)}, {vr(RK+t)} offset:{off + 64*s + 32*u}" for s in range(4) for u in range(2)] + \
                   [f"ds_read_b64 {ar(A_Q+18*t+16,2)}, {vr(RK+t)} offset:{off + 256}"]
        bq = lambda j, d=0: [f"ds_read_b128 {ar(18*j+4*s,4)}, {vr(VS+j)} offset:{d + 1024*s}" for s in range(4)] + [f"ds_read_b64 {ar(18*j+16,2)}, {vr(VR4+j)} offset:{d}"]

        def post(u, scale, d):
            L = [f"v_mul_f32 {vr(ACC+4*u+i)}, {sr(T+4)}, {vr(ACC+4*u+i)}" for i in range(4)] if scale else []
            L += [f"v_cvt_pk_bf16_f32 {vr(PK + (4*(u&3) + 2*(u>>2) if u < 8 else 16) + h)}, {vr(ACC+4*u+2*h)}, {vr(ACC+4*u+2*h+1)}" for h in range(2)]
            if 4 <= u < 8: L.append(f"ds_write_b128 {vr(VSW+u-4)}, {vr(PK+4*(u-4),4)} offset:{d}")
            if u == 8: L.append(f"ds_write_b64 {vr(VR4)}, {vr(PK+16,2)} offset:{d}")
            return L
        fl2 = o.get("fl2", 1)
        self.m_fl = 0
        xd = [f"ds_read_b128 {vr(XD+4*j,4)}, {vr(VSW+j)}" for j in range(4)]
        self.gemm_u(AQ1, ar, [("v", XA), ("a", 18), ("a", 36), ("a", 54)], ACC, a_tr, lambda j: bq(j) if j else None, lambda u: post(u, False, L_QD),
                    vm_items=wl, other=xd, vmsp=o.get("vmsp", 3), at={o.get("flp", 22): flag} if fl2 < 0 else {})
        self.stamp("g1")
        for i in range(4): a(f"v_mov_b32 {vr(CL+i)}, -1")
        a(f"s_lshl2_add_u32 {sr(T+2)}, s2, {sr(S_W)}\ns_mul_i32 {sr(T+2)}, {sr(T+2)}, 2560\ns_add_u32 {sr(T+2)}, {sr(T+2)}, {WS_IB}")
        a(f"s_mov_b32 {sr(T+4)}, {f32(LOG2E / 12.0)}\ns_waitcnt vmcnt({self.vm_since(max(last(SK), self.m_fl)) + (last(SK) < self.m_fl)}) lgkmcnt(0)\ns_barrier")
        T2 = T + 2
        clr = [f"buffer_store_dwordx4 {vr(CL,4)}, {vr(V_DMA)}, {sr(S_WS,4)}, {sr(T+2)} offen sc1",
               f"buffer_store_dwordx4 {vr(CL,4)}, {vr(V_DMA)}, {sr(S_WS,4)}, {sr(T+2)} offen offset:1024 sc1",
               f"buffer_store_dwordx2 {vr(CL,2)}, {vr(L8)}, {sr(S_WS,4)}, {sr(T+2)} offen offset:2048 sc1"]
        self.stamp("bar2")
        gp_ = o.get("gatepos", 0)
        cl1 = not o.get("cll", 1)
        self.gemm_u(A_Q, ar, [("a", 18 * j) for j in range(4)], ACC, a_row, lambda j: bq(j, L_QD), lambda u: post(u, True, 0), vm_items=((clr if cl1 else []) + [poll(252)] if gp_ == 0 else clr if cl1 else []), vm0=o.get("pg", 6), vmsp=o.get("csp", 3),
                    lastk=o.get("plk", 26) if gp_ == 0 else 0, at={fl2: flag} if fl2 >= 0 else {})
        self.stamp("g2")
        p = lambda r: vr(r, 2)
        CC = TM
        for j in range(4): a(f"v_dot2_f32_bf16 {vr(CC+j)}, {vr(PK+4*j)}, {vr(XD+4*j)}, 0")
        for i in range(2): a(f"v_dot2_f32_bf16 {vr(CC)}, {vr(PK+16+i)}, {vr(XA+16+i)}, {vr(CC)}")
        for i in range(1, 4):
            for j in range(4): a(f"v_dot2_f32_bf16 {vr(CC+j)}, {vr(PK+4*j+i)}, {vr(XD+4*j+i)}, {vr(CC+j)}")
        QE = VS if gs else TRQ
        a(f"""s_xor_b32 {sr(T+1)}, {sr(self.NB)}, 1
        v_add_u32 {vr(t0)}, {L_XX}, {vr(V_DMA)}
        v_lshl_add_u32 {vr(QE)}, {sr(T+1)}, 12, {vr(t0)}
        v_lshl_add_u32 {vr(QE+1)}, {sr(self.NB)}, 12, {vr(t0)}""")
        self.treduce(CC)
        a(f"""ds_write_b32 {vr(MXA)}, {vr(CC)}
        v_add_u32 {vr(t0)}, {L_XR}, {vr(L8)}
        v_lshl_add_u32 {vr(QE+2)}, {sr(T+1)}, 9, {vr(t0)}
        v_lshl_add_u32 {vr(QE+3)}, {sr(self.NB)}, 9, {vr(t0)}
        v_lshl_add_u32 {vr(QE+4)}, {sr(T+1)}, 8, {vr(MXR)}
        v_lshl_add_u32 {vr(QE+5)}, {sr(self.NB)}, 8, {vr(MXR)}
        s_sub_u32 {sr(T+5)}, 63, {sr(S_H)}
        s_bfm_b64 {sr(T+8,2)}, {sr(T+5)}, 0
""")
        if gp_ == 0:
            a(f"s_cmp_lg_u32 {sr(S_W)}, 0\ns_cbranch_scc1 L_ga_ok")
            gate("L_ga", 252, sr(T + 8, 2), 0)
        else: a(poll(252))
        a("s_waitcnt lgkmcnt(0)\ns_barrier")
        self.stamp("bar3")
        qrd = [f"ds_read_b128 {vr(MS+4*qb,4)}, {vr(QE+4+(qb&1))} offset:{512*(qb>>1)}" for qb in range(4)]
        for qb in range(4):
            qrd += [f"ds_read_b128 {ar(A_Q+18*qb+4*s,4)}, {vr(QE+(qb&1))} offset:{8192*(qb>>1) + 1024*s}" for s in range(4)]
            qrd.append(f"ds_read_b64 {ar(A_Q+18*qb+16,2)}, {vr(QE+2+(qb&1))} offset:{1024*(qb>>1)}")
        if gs:
            tg = self.tile_groups(0) + self.tile_groups(1)
            n0 = o.get("n0", 3)
            for x in tg[:n0]: a(x)
            tg = tg[n0:]
            if gs < 3: a(f"v_mov_b32 {vr(CC+4)}, 1.0")
            mem = []
            qpd = o.get("qpd", 2)
            while tg or qrd:
                it = []
                if tg: it.append(tg.pop(0))
                it += [qrd.pop(0) for _ in range(min(qpd, len(qrd)))]
                mem.append("\n".join(it))
            com = [x for st_ in gst[gs:] for x in st_]
            ev = o.get("gev", 3)
            for i, x in enumerate(com):
                a(x)
                if i % ev == ev - 1 and mem: a(mem.pop(0))
            a(f"""s_mul_i32 {sr(T)}, {sr(WV+1)}, {BLK}
            s_cmp_eq_u32 {sr(S_H)}, 1
            s_cbranch_scc1 L_ln2
            s_add_u32 {sr(T)}, {sr(T)}, {WS_U}""")
            m0_ = list(mem)
            for i in range(18):
                a(f"v_cvt_pk_bf16_f32 {vr(UG+i)}, {vr(H+2*i)}, {vr(H+2*i+1)}")
                if i % o.get("gev0", 2) == 1 and m0_: a(m0_.pop(0))
            for x in m0_: a(x)
            a("s_branch L_ug")
            a.label("L_ln2")
            a(f"s_add_u32 {sr(T)}, {sr(T)}, {WS_G}")
            a.bg, a.every, a.cnt = list(mem), o.get("gev1", 6), 0
            self.ln_f32(H, UG, TM)
            a.flush()
            a.label("L_ug")
            m_t0 = m_t1 = None
        else:
            tg = self.tile_groups(0) + self.tile_groups(1) + self.tile_groups(2)[:8]
            n0 = o.get("n0", 3) if gp_ == 0 else 0
            for x in tg[:n0]: a(x)
            a(f"v_mov_b32 {vr(CC)}, {f32(c1)}\nv_mov_b32 {vr(CC+2)}, {f32(c2)}\nv_mov_b32 {vr(CC+4)}, 1.0")
            nq1, nt1 = (o.get("nq1", 8), o.get("nt1", 5)) if gp_ == 0 else (o.get("nq1", 16), 0)
            bgl = []
            for i in range(max(nq1 // 2, nt1)):
                if 2 * i < nq1: bgl.append(qrd[2 * i] + "\n" + qrd[2 * i + 1])
                if i < nt1: bgl.append(tg[n0 + i])
            tg, qrd = tg[n0 + nt1:], qrd[nq1:]
            a.bg, a.every, a.cnt = bgl, 54 // (len(bgl) + 1), 0
            for x in gst[0]: a(x)
            a.flush()
            if gp_:
                self.stamp("ge0")
                gate("L_ga", 252, sr(T + 8, 2), 0)
                for x in tg[:2]: a(x)
                tg = tg[2:]
            self.stamp("ge1")
            esp = o.get("esp", 3 if gp_ else 4)
            for i in range(36):
                a(gst[1][i])
                if i % esp == 1 and tg: a(tg.pop(0))
                if i % 8 == 3 and qrd: a(qrd.pop(0)); a(qrd.pop(0))
            self.stamp("ge2")
            for x in gst[2]: a(x)
            for i in range(36):
                a(gst[3][i])
                if i % esp == 1 and tg: a(tg.pop(0))
                if i % 8 == 3 and qrd: a(qrd.pop(0)); a(qrd.pop(0))
            assert not tg and not qrd
            idx = [i for i, l in enumerate(a.lines) if l.strip().startswith("buffer_load") and l.rstrip().endswith("lds")]
            m_t0, m_t1 = idx[-18] + 1, idx[-9] + 1
            for x in gst[4]: a(x)
            a(f"""s_mul_i32 {sr(T)}, {sr(WV+1)}, {BLK}
            s_cmp_eq_u32 {sr(S_H)}, 1
            s_cbranch_scc1 L_ln2
            s_add_u32 {sr(T)}, {sr(T)}, {WS_U}""")
            for i in range(18): a(f"v_cvt_pk_bf16_f32 {vr(UG+i)}, {vr(H+2*i)}, {vr(H+2*i+1)}")
            a("s_branch L_ug")
            a.label("L_ln2")
            a(f"s_add_u32 {sr(T)}, {sr(T)}, {WS_G}")
            self.ln_f32(H, UG, TM)
            a.label("L_ug")
        self.stamp("ge3")
        a(f"""s_cmp_eq_u32 {sr(WV)}, 1
        s_cselect_b32 {sr(S_UG)}, {sr(T)}, 0x40000000
        s_waitcnt lgkmcnt(0)""")
        kz = [f"s_waitcnt vmcnt({9 if gs else self.vm_since(m_t0)})"] + self.k_reads(0, V_V)
        if not gs:
            for x in kz: a(x)
        self.ugs = [f"buffer_store_dwordx4 {vr(UG+4*s,4)}, {vr(V_DMA)}, {sr(S_WS,4)}, {sr(S_UG)} offen offset:{1024*s} sc1" for s in range(4)]
        self.ugs.append(f"buffer_store_dwordx2 {vr(UG+16,2)}, {vr(self.VL8)}, {sr(S_WS,4)}, {sr(S_UG)} offen sc1")
        for qb in range(4): a(f"v_pk_add_f32 {p(MS+4*qb)}, {p(MS+4*qb)}, {p(MS+4*qb+2)} neg_lo:[1,1] neg_hi:[1,1]")
        for qb in range(4): a(f"v_add_f32 {vr(self.MK+qb)}, {vr(MS+4*qb)}, {vr(MS+4*qb+1)}")
        a(f"v_lshlrev_b32 {vr(t1)}, 8, v0\nv_lshlrev_b32 v231, 2, v0\nv_add_u32 v231, {L_PC}, v231\nds_write_b32 v231, {vr(t1)}")
        self.loop_init(False)
        if gs:
            self.loop_init(True)
            self.stamp("ug0")
            for x in kz: a(x)
        else: self.n_t1 = self.vm_since(m_t1)
        self.stamp("ug")

    def loop_init(self, part):
        a = self.a
        if part:
            for qb in range(4):
                for i in range(4): a(f"v_mov_b32 {vr(V_CI+4*qb+i)}, {vr(self.MK+qb)}")
            return
        for k in range(7): a(f"v_add_u32 {vr(V_HI+k)}, {2*SLOT}, {vr(V_KA+k if k < 5 else V_VB+k-5)}")
        a(f"v_add_u32 {vr(self.VS0)}, {sr(S_LB)}, {vr(V_DMA)}\nv_add_u32 {vr(self.VS0R)}, {sr(S_LB)}, {vr(self.VL8)}\ns_mov_b32 {sr(S_CNT)}, 0\ns_mov_b32 {sr(S_INC)}, {4*TILE}")
        for i in range(4): a(f"v_mov_b32 {vr(V_L+i)}, 0")
        for i in range(4): a(f"v_mov_b32 {vr(226+i)}, -1")
        a(f"""s_lshl2_add_u32 {sr(S_CL)}, s2, {sr(S_W)}
        s_mul_i32 {sr(S_CL)}, {sr(S_CL)}, 2560
        s_lshl_b32 {sr(S_CL+1)}, {sr(S_REDO)}, 30
        s_add_u32 {sr(S_CL)}, {sr(S_CL)}, {sr(S_CL+1)}
        s_add_u32 {sr(S_CL)}, {sr(S_CL)}, {WS_IB}
        s_sub_u32 {sr(S_CL+1)}, {sr(S_CL)}, 2048""")
        a(f"v_mov_b32 v207, {sr(S_N)}\nv_mov_b32 {vr(self.VPL+1)}, 1\nv_lshlrev_b32 v231, 2, v0\nv_add_u32 v231, {L_PC}, v231")
        if self.o.get("xm", 0): a(f"s_add_u32 {sr(S_T)}, {sr(S_N)}, {sr(S_XC)}\nv_writelane_b32 v207, {sr(S_T)}, 1")

    def head(self):
        a, o = self.a, self.o
        gs = o.get("gs", 0)
        a.label("L_go")
        if not gs: self.loop_init(True)
        a("s_waitcnt lgkmcnt(0)\ns_barrier")
        self.stamp("bar5")
        base = self.qk_mfmas(0)
        pick = lambda s_, kb, qb: base[8 * s_ + 4 * kb + qb].replace(vr(V_K + 8 * s_ + 4 * kb, 4) + ",", vr(V_V + 8 * s_ + 4 * kb, 4) + ",").replace(vr(V_K + 32 + 2 * kb, 2) + ",", vr(V_V + 32 + 2 * kb, 2) + ",")
        mf, fin = [], {}
        for qb, s_ in [(0, 0), (0, 1), (0, 2), (0, 3), (1, 0), (1, 1), (0, 4), (1, 2), (1, 3), (2, 0), (2, 1), (1, 4), (2, 2), (2, 3), (3, 0), (3, 1), (2, 4),
                       (3, 2), (3, 3), (3, 4)]:
            for kb in range(2):
                fin[qb, kb] = len(mf)
                mf.append(("s_nop 3\n" if (qb, s_, kb) == (3, 4, 0) else "") + pick(s_, kb, qb))
        enew = [e[1] for g in range(40, 76) for e in self.gaps[g] if e[0] == "E"]
        items = self.e_items(0, enew, lambda qb, j: 0, lambda qb: 999)
        for it, e in zip(items, enew):
            if e[0] == "e": it["am"] = fin[e[1], e[2] // 4]
        dm = []
        for k, (slot, j) in enumerate([(2, j) for j in range(9)] if gs else [(2, 8)] + [(3, j) for j in range(9)]):
            g_ = 1 + o.get("hsp", 4) * k
            if j % 4 == 0: dm.append(dict(t=f"s_add_u32 m0, {sr(S_LB)}, {slot*SLOT + 4096*(j//4)}", c=0, lo=g_ - 1, hi=g_ - 1))
            dm.append(dict(t=f"buffer_load_dwordx4 {vr(V_DMA + j//4)}, {sr(S_XA,4)}, {sr(S_TOFF)} offen offset:{1024*(j%4)} lds", c=8, lo=g_, hi=g_))
            if j == 8: dm.append(dict(t=f"s_add_u32 {sr(S_TOFF)}, {sr(S_TOFF)}, {4*TILE}", c=0, lo=g_ + 1, hi=g_ + 1))
        nh = o.get("ugh", 2) if not o.get("ugl", 1) else 0
        for k in range(nh): dm.append(dict(t=self.ugs[k], c=8, lo=3 + 16 * k, hi=3 + 16 * k))
        if gs:
            k1 = o.get("k1lo", 22)
            kr = [dict(t=("@VM\n" if i == 0 else "") + x, c=4, lo=k1 + i // 2, hi=k1 + i // 2, nds=2) for i, x in enumerate(self.k_reads(1))]
        else:
            a(f"s_waitcnt vmcnt({self.n_t1})")
            kr = [dict(t=x, c=4, lo=i // 2, nds=2) for i, x in enumerate(self.k_reads(1))]
        left = self.pack(mf, items + dm + kr)
        print("head overflow", self.over, "left", len(left))
        left.sort(key=lambda x: not x.startswith("v_exp"))
        last = a.lines[-1].strip()
        for x in left:
            if last.startswith("v_exp") and not x.startswith("v_exp") and (last.split()[1].rstrip(",") + ",") in (x + ","): a("s_nop 0")
            a(x); last = x
        a("s_waitcnt lgkmcnt(0)")

    def tile_groups(self, slot):
        out = []
        for j in range(9):
            g = ""
            if j % 4 == 0: g = f"s_add_u32 m0, {sr(S_LB)}, {slot*SLOT + 4096*(j//4)}\ns_nop 0\n"
            g += f"buffer_load_dwordx4 {vr(V_DMA + j//4)}, {sr(S_XA,4)}, {sr(S_TOFF)} offen offset:{1024*(j%4)} lds"
            if j == 8: g += f"\ns_add_u32 {sr(S_TOFF)}, {sr(S_TOFF)}, {4*TILE}"
            out.append(g)
        return out

    def first_tiles(self):
        pass

    def wfuse(self):
        a = self.a
        BF, ACC, AF, TM, AD = 88, 108, 144, 208, 240
        LA, LB_, LM = 0, 44032, 88064
        T = S_T
        a.label("L_wfuse")
        a(f"s_add_u32 s2, s2, {NH}\ns_cmp_ge_u32 s2, {NH}\ns_cbranch_scc1 L_end")
        a(f"v_lshrrev_b32 v1, 6, v0\nv_and_b32 v0, 63, v0\nv_readfirstlane_b32 {sr(S_W)}, v1\nv_lshlrev_b32 {vr(V_DMA)}, 4, v0\ns_waitcnt lgkmcnt(0)")
        self.srd(S_WS, 78, 79, WS_END)
        self.srd(S_DB, 76, 77, 256)
        self.wf0 = 0
        self.srd(S_X, 72, 73, 82944)
        self.srd(S_W2, 62, 63, 41472)
        a(f"""s_cmp_eq_u32 s2, {self.wf0}
        s_cselect_b32 {sr(S_W1)}, s64, s70
        s_cselect_b32 {sr(S_W1+1)}, s65, s71
        s_mov_b32 {sr(S_W1+2)}, 41472
        s_mov_b32 {sr(S_W1+3)}, 0x20000
        s_cselect_b32 {sr(T+4)}, 0, 41472""")
        self.dma_rows([(S_W1, "0", LA), (S_W2, "0", LB_)], 19, 288, TM + 4, TM + 5, 11, 3, "L_wf1")
        a(f"s_lshl_b32 {sr(T)}, {sr(S_W)}, 10\ns_add_u32 {sr(T+2)}, {sr(T)}, {sr(T+4)}")
        for k in range(11):
            if k == 10: a(f"s_cmp_ge_u32 {sr(S_W)}, 1\ns_cbranch_scc1 L_wf2")
            a(f"s_add_u32 m0, {sr(T)}, {LM + 4096*k}\ns_add_u32 {sr(T+1)}, {sr(T+2)}, {4096*k}")
            a(f"buffer_load_dwordx4 {vr(V_DMA)}, {sr(S_X,4)}, {sr(T+1)} offen lds")
        a.label("L_wf2")
        self.srd(S_DW, 68, 69, 864)
        a(f"""v_and_b32 {vr(TM)}, 15, v0
        v_lshlrev_b32 {vr(TM+2)}, 4, {vr(TM)}
        v_lshlrev_b32 {vr(TM)}, 1, {vr(TM)}
        v_bfe_u32 {vr(TM+3)}, v0, 4, 1
        v_lshl_add_u32 {vr(TM+1)}, {vr(TM+3)}, 7, {vr(TM)}
        v_lshl_add_u32 {vr(TM+2)}, {vr(TM+3)}, 11, {vr(TM+2)}
        v_and_b32 {vr(TM+3)}, 1, v0
        v_lshlrev_b32 {vr(TM+3)}, 4, {vr(TM+3)}
        v_bfe_i32 {vr(TM+4)}, v0, 1, 1
        v_not_b32 {vr(TM+5)}, {vr(TM+4)}""")
        for k in range(3):
            for i in range(5): a(f"buffer_load_ushort {vr(16+5*k+i)}, {vr(TM+1 if i < 4 else TM)}, {sr(S_DW,4)}, 0 offen offset:{288*k + (32*i if i < 4 else 256)}")
        a(f"s_mov_b32 {sr(T+1)}, {WS_DWF}\ns_waitcnt vmcnt(0)")
        for f in range(15):
            a(f"v_lshlrev_b32 {vr(16+f)}, {vr(TM+3)}, {vr(16+f)}\nv_and_b32 {vr(32+2*f)}, {vr(TM+5)}, {vr(16+f)}\nv_and_b32 {vr(33+2*f)}, {vr(TM+4)}, {vr(16+f)}")
        for r_ in range(8): a(f"buffer_store_dwordx{4 if r_ < 7 else 2} {vr(32+4*r_, 4 if r_ < 7 else 2)}, {vr(TM+2)}, {sr(S_WS,4)}, {sr(T+1)} offen offset:{256*r_} sc1")
        self.tr_addr(AD, LM, False, TM + 8)
        self.row_addr(AD + 3, LA, TM + 8)
        a(f"v_add_u32 {vr(AD+5)}, {LB_}, {vr(AD+3)}")
        a(f"v_lshlrev_b32 {vr(AD+4)}, 3, v0")
        a(f"""s_lshr_b32 {sr(T)}, {sr(S_W)}, 1
        s_lshl_b32 {sr(T)}, {sr(T)}, 6
        s_and_b32 {sr(T+1)}, {sr(S_W)}, 1
        s_lshl_b32 {sr(T+1)}, {sr(T+1)}, 3
        s_add_u32 {sr(T)}, {sr(T)}, {sr(T+1)}
        v_and_b32 {vr(AD+6)}, 3, v0
        v_lshlrev_b32 {vr(AD+6)}, 3, {vr(AD+6)}
        v_add_u32 {vr(AD+7)}, {sr(T)}, {vr(AD+6)}""")
        for k in range(3): a(f"v_add_u32 {vr(AD+k)}, {vr(AD+7)}, {vr(AD+k)}")
        a(f"s_mov_b32 {sr(S_CNT)}, {sr(S_W)}")
        a("s_waitcnt vmcnt(0)\ns_barrier")
        a.label("L_wfl")
        for s in self.tr_reads(AD, vr)(0, BF): a(s)
        a("s_waitcnt lgkmcnt(0)")
        self.gemm(self.row_reads(AD + 3), BF, ACC, AF)
        for i in range(18): a(f"v_cvt_pk_bf16_f32 {vr(BF+i)}, {vr(ACC+2*i)}, {vr(ACC+2*i+1)}")
        a(f"s_cmp_eq_u32 s2, {self.wf0}\ns_cbranch_scc0 L_wf3")
        self.gemm(self.row_reads(AD + 5), BF, ACC, AF)
        for i in range(18): a(f"v_cvt_pk_bf16_f32 {vr(BF+i)}, {vr(ACC+2*i)}, {vr(ACC+2*i+1)}")
        a.label("L_wf3")
        a(f"""s_mul_i32 {sr(T)}, {sr(S_CNT)}, {BLK}
        s_add_u32 {sr(T)}, {sr(T)}, {sr(T+4)}
        s_add_u32 {sr(T)}, {sr(T)}, {WS_WF}
        s_add_u32 {sr(T+1)}, {sr(T)}, 4096""")
        self.store_block(BF, V_DMA, AD + 4, S_WS, T, T + 1, "sc1")
        for k in range(3): a(f"v_add_u32 {vr(AD+k)}, 128, {vr(AD+k)}")
        a(f"s_add_u32 {sr(S_CNT)}, {sr(S_CNT)}, 4\ns_cmp_lt_u32 {sr(S_CNT)}, 8\ns_cbranch_scc1 L_wfl")
        for k in range(3): a(f"v_sub_u32 {vr(AD+k)}, {vr(AD+k)}, {vr(AD+6)}")
        a(f"s_cmp_eq_u32 {sr(S_CNT)}, 8\ns_cbranch_scc1 L_wfl")
        a(f"""s_waitcnt vmcnt(0)
        s_barrier
        s_cmp_lg_u32 {sr(S_W)}, 0
        s_cbranch_scc1 L_end
        s_mov_b32 {sr(T+2)}, 0""")
        a.label("L_wtag")
        a(f"""buffer_load_dword {vr(TM)}, off, {sr(S_DB,4)}, 0 sc1
        s_add_u32 {sr(T+2)}, {sr(T+2)}, 1
        s_waitcnt vmcnt(0)
        v_readfirstlane_b32 {sr(T)}, {vr(TM)}
        s_cmp_lt_u32 {sr(T+2)}, 0x40000
        s_cselect_b32 {sr(T)}, {sr(T)}, 1
        s_cmp_eq_u32 {sr(T)}, 0
        s_cbranch_scc1 L_wtag
        v_lshlrev_b32 {vr(TM+1)}, 2, v0
        s_lshl_b32 {sr(T)}, s2, 8
        s_add_u32 {sr(T)}, {sr(T)}, {WS_F + 502*256}
        buffer_store_dword {vr(TM)}, {vr(TM+1)}, {sr(S_WS,4)}, {sr(T)} offen sc1
        s_endpgm""")

    def dump_stamps(self):
        a = self.a
        if self.o.get("census"):
            key, mode, m_, v_ = self.o["census"]
            a(f"""s_cmp_lg_u32 s2, 100
            s_cbranch_scc1 L_end
            v_lshlrev_b32 v16, 2, v0
            s_mov_b32 s4, {WS_DBG}""")
            for k in range(4): a(f"buffer_load_dword v{20+k}, v16, {sr(S_WS,4)}, s4 offen offset:{256*k} sc1")
            a(f"s_waitcnt vmcnt(0)\nv_readlane_b32 s8, v21, 36\ns_mov_b32 s9, 0x80000000\ns_mov_b32 s10, 0x7fffffff\ns_mov_b32 s11, 0\ns_mov_b32 s17, 0")
            for k in range(4):
                a(f"s_mov_b32 s5, 0")
                a.label(f"L_cs{k}")
                a(f"""v_readlane_b32 s6, v{20+k}, s5
                s_add_u32 s7, s5, {64*k}
                s_sub_u32 s6, s6, s8
                s_and_b32 s16, s7, {m_}
                s_cmp_lg_u32 s16, {v_}
                s_cbranch_scc1 L_cn{k}
                s_min_i32 s10, s10, s6
                s_cmp_gt_i32 s6, {self.o.get("thr", 150)}
                s_addc_u32 s17, s17, 0
                s_cmp_gt_i32 s6, s9
                s_cselect_b32 s9, s6, s9
                s_cselect_b32 s11, s7, s11""")
                a.label(f"L_cn{k}")
                a(f"s_add_u32 s5, s5, 1\ns_cmp_lt_u32 s5, {64 if k < 3 else 60}\ns_cbranch_scc1 L_cs{k}")
            a({"arg": "s_lshl_b32 s6, s11, 3", "range": "s_sub_u32 s6, s9, s10\ns_lshl_b32 s6, s6, 1", "zero": "s_mov_b32 s6, 0", "cnt": "s_lshl_b32 s6, s17, 4",
               "max": "s_lshl_b32 s6, s9, 1"}[mode])
            a("s_add_u32 s6, s6, 1000\ns_memrealtime s[4:5]\ns_waitcnt lgkmcnt(0)\ns_add_u32 s6, s6, s4")
            a.label("L_echo")
            a("s_memrealtime s[4:5]\ns_waitcnt lgkmcnt(0)\ns_sub_u32 s7, s6, s4\ns_cmp_gt_i32 s7, 0\ns_cbranch_scc1 L_echo")
            return
        if self.o.get("echo"):
            if self.o["echo"][0] == "skew":
                a(f"v_mov_b32 v16, 4\nbuffer_load_dword v17, v16, {sr(S_DB,4)}, 0 offen sc1\ns_waitcnt vmcnt(0)\nv_readfirstlane_b32 s98, v17\ns_not_b32 s98, s98")
                x, y = 98, S_ST + 2 * self.stnames.index(self.o["echo"][1])
            else:
                x, y = [S_ST + 2 * self.stnames.index(n) for n in self.o["echo"]]
            lo, hi = self.o.get("echo_ids", (0, 999))
            a(f"""s_cmp_eq_u32 {sr(S_VAL)}, 0
            s_cbranch_scc1 L_end
            s_cmp_lt_u32 s2, {lo}
            s_cbranch_scc1 L_end
            s_cmp_ge_u32 s2, {hi}
            s_cbranch_scc1 L_end
            s_and_b32 s6, s2, {self.o.get("echo_m", 0)}
            s_cmp_lg_u32 s6, {self.o.get("echo_v", 0)}
            s_cbranch_scc1 L_end
            s_memrealtime s[4:5]
            s_waitcnt lgkmcnt(0)
            s_sub_u32 s6, {sr(y)}, {sr(x)}
            s_mul_i32 s6, s6, {self.o.get("echo_mul", 1)}
            s_lshr_b32 s6, s6, {self.o.get("echo_shr", 0)}
            s_add_u32 s6, s6, {self.o.get("echo_add", 0)}
            s_add_u32 s6, s6, s4""")
            a.label("L_echo")
            a("s_memrealtime s[4:5]\ns_waitcnt lgkmcnt(0)\ns_sub_u32 s7, s6, s4\ns_cmp_gt_i32 s7, 0\ns_cbranch_scc1 L_echo")
            return
        if self.o.get("dbgst"):
            a("s_waitcnt vmcnt(0)")
            self.stamp("done")
            a("s_waitcnt lgkmcnt(0)\ns_mov_b64 exec, 1")
            slots = [1, 2, 3, 4, 5, 6, 7, 9, 11, 12, 13, 14, 15]
            a(f"s_not_b32 {sr(S_T)}, {sr(S_ST)}\nv_mov_b32 v16, {sr(S_T)}\nv_mov_b32 v17, 4\nbuffer_atomic_umax v16, v17, {sr(S_DB,4)}, 0 offen sc1")
            for i in range(min(self.nst, 12)):
                a(f"v_mov_b32 v{18+2*i}, {sr(S_ST+2*i)}\nv_mov_b32 v{19+2*i}, {4*slots[i+1]}\nbuffer_atomic_umax v{18+2*i}, v{19+2*i}, {sr(S_DB,4)}, 0 offen sc1")
            return
        if not self.o.get("stamps"): return
        T = S_T
        a(f"""s_waitcnt lgkmcnt(0)
        s_lshl_b32 {sr(T)}, s2, 2
        s_add_u32 {sr(T)}, {sr(T)}, {sr(S_W)}
        s_lshl_b32 {sr(T)}, {sr(T)}, 7
        s_add_u32 {sr(T)}, {sr(T)}, {WS_DBG}
        v_mov_b32 v1, 0""")
        for i in range(26): a(f"v_mov_b32 {vr(16+i)}, {sr(S_ST+i)}")
        for i in range(7): a(f"buffer_store_dwordx4 {vr(16+4*i,4)}, v1, {sr(S_WS,4)}, {sr(T)} offen offset:{16*i}")

    def build(self):
        a = self.a
        self.stnames = []
        a.raw(f"; @launch grid=({NWG},1,1) block=(256,1,1) lds={LDS_TOTAL}")
        a.raw('.amdgcn_target "amdgcn-amd-amdhsa--gfx950"')
        a.raw(".text")
        a.raw(f".globl {NAME}")
        a.raw(".p2align 12")
        self.entry()
        self.phase_a()
        self.rest()
        a.label("L_fin")
        self.dump_stamps()
        a.label("L_end")
        a("s_endpgm")
        self.poll2()
        if not self.o.get("touch", 1): self.rare()
        a.label("L_dummy")
        self.fallback()
        self.wfuse()
        a.raw('.section .rodata,"a"')
        a.raw(".p2align 6")
        a.raw(kernel_desc(NAME, 512, 102, 256))
        return a.text()

    def S(self, buf, qb, i=0): return V_S + buf * 32 + qb * 8 + i
    def P(self, buf, qb, i=0): return V_P + buf * 16 + qb * 4 + i

    def k_reads(self, slot, V_K=V_K):
        ka, so = (V_KA, slot * SLOT) if slot < 2 else (V_HI, (slot - 2) * SLOT)
        out = [f"ds_read_b128 {vr(V_K+8*s+4*kb,4)}, {vr(ka)} offset:{so + 2048*s + 256*kb}" for s in range(4) for kb in range(2)]
        out += [f"ds_read_b64 {vr(V_K+32+2*kb,2)}, {vr(ka+1)} offset:{so + 8192 + 512*kb}" for kb in range(2)]
        return out

    def v_reads(self, slot, dst=V_V):
        (va, vr_, vb), so = ((V_VA, V_VR, V_VB), slot * SLOT) if slot < 2 else ((V_HI + 2, V_HI + 4, V_HI + 5), (slot - 2) * SLOT)
        out = []
        for T in range(9):
            for u in range(2):
                if T < 8: out.append(f"ds_read_b64_tr_b16 {vr(dst+4*T+2*u,2)}, {vr((va if T < 4 else vb)+(T&1))} offset:{so + 2048*((T>>1)&1) + 256*u}")
                else: out.append(f"ds_read_b64_tr_b16 {vr(dst+4*T+2*u,2)}, {vr(vr_)} offset:{so + 8192 + 512*u}")
        return out

    def qk_mfmas(self, buf, czero=False):
        out = []
        for s in range(5):
            for kb in range(2):
                for qb in range(4):
                    d = vr(self.S(buf, qb, 4 * kb), 4)
                    c = ("0" if czero else vr(V_CI + 4 * qb, 4)) if s == 0 else d
                    if s < 4: out.append(f"v_mfma_f32_16x16x32_bf16 {d}, {vr(V_K+8*s+4*kb,4)}, {ar(A_Q+18*qb+4*s,4)}, {c}")
                    else: out.append(f"v_mfma_f32_16x16x16_bf16 {d}, {vr(V_K+32+2*kb,2)}, {ar(A_Q+18*qb+16,2)}, {c}")
        return out

    def pv_mfmas(self, buf, czero=False):
        out = []
        for T in range(9):
            for qb in range(4):
                o = ar(A_O + 36 * qb + 4 * T, 4)
                out.append(f"v_mfma_f32_16x16x32_bf16 {o}, {vr(V_V+4*T,4)}, {vr(self.P(buf,qb),4)}, {'0' if czero else o}")
        return out

    def plan(self):
        o = self.o
        n = 76
        fixed = [None] * n
        for i, g in enumerate(range(1, 36, 2)): fixed[g] = ("V", i)
        for i, g in enumerate([41, 44, 47, 50, 53, 56, 59, 62, 65, 68]): fixed[g] = ("K", i)
        for i, g in enumerate([42, 46, 49, 52, 55, 58, 61, 64, 67]): fixed[g] = ("D", i)
        exps = [(qb, j) for qb in range(4) for j in range(8)]
        start = 40
        order = [(start + k) % n for k in range(n)]
        free_idx = [k for k, g in enumerate(order) if fixed[g] is None]
        nsm = len(free_idx) - 32
        cand = free_idx[6:-2]
        sm_set = set(free_idx[-2:]) | {cand[int((i + 0.5) * len(cand) / (nsm - 2))] for i in range(nsm - 2)}
        nds = sum(1 for f in fixed if f is not None and f[0] != "D")
        ls = o.get("lsum", "add")
        over = max(0, (48 if ls == "add" else 32) - nds - 2 * nsm)
        ocand = [k for k, g in enumerate(order) if k >= 20 and (fixed[g] is None or fixed[g][0] != "D")]
        o_set = {ocand[int((i + 0.5) * len(ocand) / over)] for i in range(over)}
        later = []
        gaps = [[] for _ in range(n)]
        small, pend, ei = [], [], 0
        for k, g in enumerate(order):
            new = (start + k) < n
            small.extend(pend); pend = later; later = []
            small.sort(key=lambda t: 0 if t[0] == "c" else 1)
            f = fixed[g]
            want = 0
            if f is not None:
                gaps[g].append((f[0], f[1], None))
                if f[0] == "D": continue
                want = 1
            elif k in sm_set: want = 2
            else:
                qb, j = exps[ei]; ei += 1
                gaps[g].append(("E", ("e", qb, j), new))
                if j & 1: pend.append(("c", qb, j // 2))
                if ls == "add": pend.append(("a", qb, j))
                elif j & 1 and ls == "pk": pend.append(("p", qb, j // 2))
            if k in o_set: want += 1
            if k == n - 1: want = 99
            for _ in range(want):
                if small:
                    it = small.pop(0)
                    gaps[g].append(("E", it, new))
                    if it[0] == "c" and ls == "dot": (small if k == n - 1 else pend).append(("d", it[1], it[2]))
        assert not small and not pend and ei == 32
        self.gaps = gaps

    def pack(self, mf, items):
        a = self.a
        where, order, done, nvm, mpos = {}, [], 0, 0, []
        isds = lambda it: "ds_" in it["t"]
        self.over = 0
        for g, m in enumerate(mf):
            assert not any(it.get("need", 999) <= g and i not in where for i, it in enumerate(items)), g
            idx = [k for k, n_ in enumerate(order) if n_ <= g]
            if idx and max(idx) + 1 > done:
                a(f"s_waitcnt lgkmcnt({min(15, len(order) - 1 - max(idx))})"); done = max(idx) + 1
            if m.startswith("@W"):
                w_, m = m.split("\n", 1)
                a(f"s_waitcnt lgkmcnt({min(15, int(w_[2:]) + len(order))})")
            a(m)
            mpos.append(len(a.lines))
            cap, pick = 8, []
            for phase in (0, 1):
                for i, it in enumerate(items):
                    if i in where or it.get("lo", 0) > g: continue
                    if "am" in it and (it["am"] >= g or len(a.lines) - mpos[it["am"]] < 8): continue
                    d = it.get("dep")
                    if d is not None and not all(where.get(x, 999) < g for x in d): continue
                    if (phase == 0 and it.get("hi", 999) <= g) or (phase == 1 and it["c"] <= cap):
                        if it["t"].startswith("buffer") and pick and any(items[x]["c"] for x in pick) and phase == 1: continue
                        if isds(it) and sum(isds(items[x]) for x in pick) >= it.get("nds", 1) and phase == 1: continue
                        pick.append(i); where[i] = g; cap -= it["c"]
            key = lambda i: 0 if items[i]["c"] == 0 else 1 if isds(items[i]) else 2 if items[i]["t"].startswith("buffer") else 3
            for i in sorted(pick, key=key):
                a(items[i]["t"].replace("@VM", f"s_waitcnt vmcnt({nvm})"))
                nvm += items[i]["t"].startswith("buffer")
                if isds(items[i]): order.append(items[i].get("need", 999))
            self.over += max(0, -cap)
        return [it["t"] for i, it in enumerate(items) if i not in where]

    def e_items(self, buf, lst, lo, hi):
        items, idx = [], {}
        for it in lst:
            kind, qb, j = it
            d = dict(t=self.etext(buf, it), c=8 if kind == "e" else 4)
            if kind == "e": d["lo"] = lo(qb, j); d["hi"] = hi(qb) - 2 - (7 - j)
            else:
                need = [("e", qb, j)] if kind == "a" else [("c", qb, j)] if kind == "d" else [("e", qb, 2 * j), ("e", qb, 2 * j + 1)]
                d["dep"] = [idx[x] for x in need if x in idx]
                if kind == "c": d["hi"] = hi(qb) - (3 - j) // 2
            idx[it] = len(items); items.append(d)
        return items

    def etext(self, buf, it):
        kind, qb, j = it
        s = self.S(buf, qb)
        if kind == "e": return f"v_exp_f32 {vr(s+j)}, {vr(s+j)}"
        if kind == "d": return f"v_dot2_f32_bf16 {vr(V_L+qb)}, {vr(self.P(buf, qb, j))}, v227, {vr(V_L+qb)}"
        if kind == "p": return f"v_pk_add_f32 {vr(208+2*qb,2)}, {vr(208+2*qb,2)}, {vr(s+2*j,2)}"
        if kind == "a": return f"v_add_f32 {vr(V_L+qb)}, {vr(V_L+qb)}, {vr(s+j)}"
        return f"v_cvt_pk_bf16_f32 {vr(self.P(buf, qb, j))}, {vr(s+2*j)}, {vr(s+2*j+1)}"

    def period(self, p, qk=True, pv=True, e_old=True, e_new=True, kread=True, vread=True, dma=True, extra={}, dsub=None, ksub=None, vm=9, halves=(0, 1), inc=None):
        a = self.a
        bn, bo = (p + 1) & 1, p & 1
        qk_, pv_ = self.qk_mfmas(bn), self.pv_mfmas(bo, czero=(p == 0))
        qo, po = self.o.get("qkord", 1), self.o.get("pvord", 0)
        if qo == 1: qk_ = [qk_[8 * s_ + 4 * kb + qb] for kb in range(2) for qb in range(4) for s_ in range(4)] + qk_[32:]
        if qo == 2: qk_ = [qk_[8 * s_ + 4 * kb + qb] for qb in range(4) for kb in range(2) for s_ in range(4)] + qk_[32:]
        if qo == 3: qk_ = [qk_[8 * s_ + 4 * kb + qb] for qb in range(4) for s_ in range(4) for kb in range(2)] + qk_[32:]
        if po == 1: pv_ = [pv_[4 * T_ + qb] for qb in range(4) for T_ in range(9)]
        mf = qk_ + pv_
        kr, vrd = self.k_reads((p + 2) % RING), self.v_reads(p % RING)
        slot = p % RING
        n = 76
        sc = [[] for _ in range(n)]
        dgs = [g for g in range(n) if any(e[0] == "D" for e in self.gaps[g])]
        if dma:
            for j, g in enumerate(dgs):
                if j % 4 == 0: sc[g - 1].append(f"s_add_u32 m0, {sr(S_LB)}, {slot*SLOT + 4096*(j//4)}")
            sc[dgs[-1] + 1].append(f"s_add_u32 {sr(S_TOFF)}, {sr(S_TOFF)}, {inc or 4*TILE}")
        w = []
        if kread: w.append(f"vmcnt({vm})")
        if pv: w.append("lgkmcnt(0)")
        if w: sc[39].append("s_waitcnt " + " ".join(w))
        if kread: sc[75].append("s_waitcnt lgkmcnt(0)")
        for half in halves:
            rng = range(0, 40) if half == 0 else range(40, 76)
            on = qk if half == 0 else pv
            if not on:
                ds, mem, val, post = [], [], [], []
                for g in rng:
                    for s_ in sc[g]:
                        (post if s_.startswith("s_waitcnt") else mem).append(s_)
                    if g in extra: mem.append(extra[g])
                    for kind, d, new in self.gaps[g]:
                        if kind == "V" and vread: ds.append(vrd[d])
                        elif kind == "K" and kread: ds.append(kr[d])
                        elif kind == "D" and dma: mem.append(f"buffer_load_dwordx4 {vr(V_DMA + d//4)}, {sr(S_XA,4)}, {sr(S_TOFF)} offen offset:{1024*(d%4)} lds")
                        elif kind == "E" and ((new and e_new) or (not new and e_old)): val.append((d, self.etext(bn if new else bo, d)))
                if half == 1: a("s_nop 3")
                seq, pend = [], list(val)
                while pend:
                    k = 0
                    if seq and seq[-1][0][0] == "e":
                        le = seq[-1][0]
                        dep = lambda it: it[0][1] == le[1] and ((it[0][0] == "a" and it[0][2] == le[2]) or (it[0][0] == "c" and it[0][2] == le[2] // 2))
                        have = {x[0] for x in seq}
                        ok = lambda it: it[0][0] == "e" or (("e", it[0][1], it[0][2]) in have if it[0][0] == "a" else (("e", it[0][1], 2*it[0][2]+1) in have)) or not any(x[0][0] == "e" and x[0][1] == it[0][1] and (x[0][2] == it[0][2] if it[0][0] == "a" else x[0][2] // 2 == it[0][2]) for x in pend)
                        while k < len(pend) and (dep(pend[k]) or not ok(pend[k])): k += 1
                        if k == len(pend): seq.append((("n", 0, 0), "s_nop 0")); k = 0
                    seq.append(pend.pop(k))
                step = max(1, len(seq) // (len(mem) + len(ds) + 1))
                allm = ds + mem
                for x in allm[:6]: a(x)
                allm = allm[6:]
                for i_, (d, t_) in enumerate(seq):
                    a(t_)
                    if allm and i_ % step == step - 1:
                        x = allm.pop(0); a(x)
                        if x.startswith("s_add_u32 m0"): a("s_nop 0")
                for x in allm:
                    a(x)
                    if x.startswith("s_add_u32 m0"): a("s_nop 0")
                for x in post: a(x)
                if half == 0: a("s_nop 1")
                continue
            abl = self.o.get("abl", "") if 1 <= p <= 4 else ""
            for g in rng:
                if not ("Q" in abl and g < 40 or "P" in abl and g >= 40): a(mf[g])
                for s_ in sc[g]: a(s_)
                if g in extra: a(extra[g])
                for kind, d, new in self.gaps[g]:
                    if kind in abl or (kind == "E" and d[0] in abl): continue
                    if kind == "V":
                        if vread: a(vrd[d])
                    elif kind == "K":
                        if kread: a(kr[d])
                        elif ksub: a(ksub.pop(0))
                    elif kind == "D":
                        if dma: a(f"buffer_load_dwordx4 {vr(V_DMA + d//4)}, {sr(S_XA,4)}, {sr(S_TOFF)} offen offset:{1024*(d%4)} lds")
                        elif dsub: a(dsub.pop(0))
                    elif (new and e_new) or (not new and e_old):
                        a(self.etext(bn if new else bo, d))

    MK, VO, VO8, GA, VS0, VS0R, VDW, VLW, VL8, VST, VPL = 232, 236, 9, 238, 250, 251, 244, 245, 246, 247, 248
    NB, PT, E_U, E_G, RS3, E_COL, RS1, RS2, MP1 = 3, 4, 5, 6, 7, 43, 36, 37, 38
    G0, GM, GP, U, DWT = 16, 26, 36, 80, (90, 252, 96, 100, 112, 116, 104, 94)
    XRS = (192, 196, 46)
    frag = staticmethod(lambda f, b: [(f, b + 4 * s) for s in range(5)])
    WD = [[("a", 216 + 4 * s) for s in range(5)], [("a", 234 + 4 * s) for s in range(5)], [("v", 208 + 4 * s) for s in range(5)]]
    WO = [[("a", 4 * s) for s in range(5)], [("a", 18 + 4 * s) for s in range(5)], [("a", 36), ("a", 40), ("a", 44), ("a", 48), ("a", 252)]]
    X1B = 98304
    X2O = L_SP - X1B
    L_L = L_SP + 9216

    def epi_setup(self):
        a = self.a
        T = S_T
        NB, PT, VO, GA = self.NB, self.PT, self.VO, self.GA
        r, g4, x, y, big, r0 = 52, 53, 54, 55, 56, 57
        a(f"""s_lshr_b32 {sr(NB)}, {sr(S_W)}, 1
        s_and_b32 {sr(PT)}, {sr(S_W)}, 1
        v_and_b32 {vr(r0)}, 15, v0
        v_lshrrev_b32 {vr(g4)}, 4, v0
        v_mul_u32_u24 {vr(x)}, 288, {vr(r0)}
        v_mov_b32 {vr(big)}, 0x40000000
        s_lshl_b32 {sr(T)}, {sr(S_TOWN)}, 1
        s_add_u32 {sr(T)}, {sr(T)}, {sr(NB)}
        s_lshl_b32 {sr(T)}, {sr(T)}, 4
        v_add_u32 {vr(r)}, {sr(T)}, {vr(r0)}
        s_mul_i32 {sr(T+1)}, {sr(S_TOWN)}, {TILE}
        s_mul_i32 {sr(T+2)}, {sr(PT)}, {BLK}
        v_add_u32 {vr(x)}, {sr(T+1)}, {vr(x)}
        s_sub_u32 {sr(T+3)}, {BLK}, {sr(T+2)}
        v_add_u32 {vr(y)}, {sr(T+3)}, {vr(x)}
        v_add_u32 {vr(x)}, {sr(T+2)}, {vr(x)}
        v_lshl_add_u32 {vr(VO)}, {vr(g4)}, 4, {vr(x)}
        v_lshl_add_u32 {vr(VO+1)}, {vr(g4)}, 4, {vr(y)}
        v_lshl_add_u32 {vr(self.VO8)}, {vr(g4)}, 3, {vr(x)}
        s_lshl_b32 {sr(T+3)}, {sr(PT)}, 11
        s_add_u32 {sr(self.E_U)}, {sr(T+3)}, {WS_U}
        s_add_u32 {sr(self.E_G)}, {sr(T+3)}, {WS_G}
        s_sub_u32 {sr(T+3)}, 4096, {sr(T+3)}
        s_lshl_b32 {sr(T)}, {sr(PT)}, 11
        s_add_u32 {sr(T)}, {sr(T)}, {WS_DWF}
        v_lshrrev_b32 {vr(x)}, 2, {vr(r0)}
        v_cmp_eq_u32 vcc, {vr(x)}, {vr(g4)}
        v_lshl_add_u32 {vr(self.VDW)}, {vr(r0)}, 4, {sr(T)}
        s_nop 0
        v_cndmask_b32 {vr(self.VDW)}, {vr(big)}, {vr(self.VDW)}, vcc
        s_lshl_b32 {sr(self.E_COL)}, {sr(S_W)}, 6
        v_lshlrev_b32 {vr(self.VL8)}, 3, v0
        v_add_u32 {vr(self.VL8)}, 4096, {vr(self.VL8)}
        v_add_u32 {vr(self.VST)}, {sr(S_LB)}, {vr(V_DMA)}
        v_add_u32 {vr(self.VST)}, {2*SLOT}, {vr(self.VST)}
        s_xor_b32 {sr(T)}, {sr(NB)}, 1
        v_xor_b32 {vr(x)}, {sr(T)}, {vr(g4)}
        v_lshl_add_u32 {vr(x)}, {vr(x)}, 4, {vr(r0)}
        s_lshl_b32 {sr(T)}, {sr(S_W)}, 2
        s_add_u32 {sr(T)}, {sr(T)}, {self.L_L}
        v_lshl_add_u32 {vr(self.VLW)}, {vr(x)}, 4, {sr(T)}
        s_sub_u32 {sr(self.MP1)}, 0, {sr(PT)}
        s_mov_b32 {sr(self.MP1+1)}, {sr(self.MP1)}""")
        for k, (d, base) in enumerate(((self.RS1, 3 * SLOT), (self.RS2, 2 * SLOT), (self.RS3, 2 * SLOT))):
            a(f"s_xor_b32 {sr(T)}, {sr(S_W)}, {k+1}\ns_mul_i32 {sr(T)}, {sr(T)}, {TILE}\ns_add_u32 {sr(d)}, {sr(T)}, {base}")
        a(f"""s_mul_i32 {sr(T)}, {sr(S_B)}, 4000
        s_add_u32 {sr(T+1)}, {sr(T)}, 3999
        s_mov_b32 {sr(T+2)}, {BLK}""")
        for k, dr in enumerate((0, -1, 1)):
            m = GA + 2 * k
            if dr: a(f"v_add_u32 {vr(m)}, {dr}, {vr(r)}\nv_cmp_eq_u32 vcc, {sr(T if dr < 0 else T+1)}, {vr(r)}")
            src = m if dr else r
            a(f"""v_lshrrev_b32 {vr(x)}, 4, {vr(src)}
            v_and_b32 {vr(y)}, 15, {vr(src)}
            v_mul_lo_u32 {vr(x)}, {vr(x)}, {sr(T+2)}
            v_lshl_add_u32 {vr(y)}, {vr(g4)}, 4, {vr(y)}
            v_lshl_add_u32 {vr(m)}, {vr(y)}, 4, {vr(x)}
            v_lshl_add_u32 {vr(m+1)}, {vr(y)}, 3, {vr(x)}
            v_add_u32 {vr(m+1)}, {sr(T+3)}, {vr(m+1)}""")
            if dr: a(f"v_cndmask_b32 {vr(m)}, {vr(m)}, {vr(big)}, vcc\nv_cndmask_b32 {vr(m+1)}, {vr(m+1)}, {vr(big)}, vcc")

    def conv_loads(self):
        GA = self.GA
        L = []
        for dst, m, so in ((self.GM, GA + 2, 1), (self.G0, GA, 1), (self.GP, GA + 4, 1), (self.U, GA, 0)):
            for k in range(2): L.append(f"buffer_load_dwordx4 {vr(dst+4*k,4)}, {vr(m)}, {sr(S_WS,4)}, {sr(self.E_U+so)} offen offset:{1024*k}")
            L.append(f"buffer_load_dwordx2 {vr(dst+8,2)}, {vr(m+1)}, {sr(S_WS,4)}, {sr(self.E_U+so)} offen")
        return L

    def rg(self, e, n): return (ar if e[0] == "a" else vr)(e[1], n)

    def w8_loads(self, regs, so):
        return [f"buffer_load_dwordx4 {self.rg(regs[s],4)}, {vr(V_DMA)}, {sr(S_WS,4)}, {sr(so)} offen offset:{1024*s}" for s in range(4)] + \
               [f"buffer_load_dwordx2 {self.rg(regs[4],2)}, {vr(self.VL8)}, {sr(S_WS,4)}, {sr(so)} offen"]

    def w_reads(self, regs, off):
        L = []
        for tt in range(2):
            L += [f"ds_read_b128 {self.rg(regs[tt][s],4)}, {vr(self.VS0)} offset:{off + BLK*tt + 1024*s}" for s in range(4)]
            L.append(f"ds_read_b64 {self.rg(regs[tt][4],2)}, {vr(self.VS0R)} offset:{off + BLK*tt}")
        return L

    def xa_srd(self):
        T = S_T
        return f"""s_mul_i32 {sr(T)}, {sr(S_B)}, {NT}
        s_mul_i32 {sr(T+1)}, {sr(S_H)}, 63
        s_add_u32 {sr(T+1)}, {sr(T+1)}, {sr(T)}
        s_mul_i32 {sr(T+1)}, {sr(T+1)}, {TILE}
        s_add_u32 {sr(S_XA)}, {sr(S_WS)}, {sr(T+1)}
        s_addc_u32 {sr(S_XA+1)}, {sr(S_WS+1)}, 0
        s_sub_u32 {sr(T+2)}, 63, {sr(S_H)}
        s_mul_i32 {sr(S_XA+2)}, {sr(T+2)}, {TILE}
        s_mov_b32 {sr(S_XA+3)}, 0x20000"""

    def rest(self):
        a, o = self.a, self.o
        T = S_T
        VPL = self.VPL
        self.plan()
        self.head()
        self.stamp("loop")
        if o.get("sktest") or o.get("echo") and o["echo"][0] == "skew":
            a(f"s_waitcnt lgkmcnt(0)\ns_mov_b64 exec, 1\ns_not_b32 s98, {sr(S_ST)}\nv_mov_b32 v226, s98\nv_mov_b32 v227, 4\ns_cmp_lg_u32 {sr(S_W)}, 0\ns_cbranch_scc1 L_sk\nbuffer_atomic_umax v226, v227, {sr(S_DB,4)}, 0 offen sc1\ns_waitcnt vmcnt(0)\nL_sk:\ns_mov_b64 exec, -1\ns_nop 3")
            self.stamp("sk")
        nh = o.get("ugh", 2)
        ex = {2 + 12 * k: x for k, x in enumerate(self.ugs[nh:])}
        ugl = o.get("ugl", 1)
        CL = 226
        clr = [f"buffer_store_dwordx4 {vr(CL,4)}, {vr(V_DMA)}, {sr(S_WS,4)}, {sr(S_CL)} offen sc1",
               f"buffer_store_dwordx4 {vr(CL,4)}, {vr(V_DMA)}, {sr(S_WS,4)}, {sr(S_CL)} offen offset:1024 sc1",
               f"buffer_store_dwordx2 {vr(CL,2)}, {vr(self.VL8)}, {sr(S_WS,4)}, {sr(S_CL+1)} offen sc1"]
        cll = o.get("cll", 1)
        ex0 = {69: self.ugs[0], 71: clr[0]} if cll else {69: self.ugs[0]}
        if o.get("gs", 0):
            for j, x in enumerate(self.tile_groups(3)):
                g_ = o.get("t3g", 2) + 4 * j
                x = x.split("\n")
                if x[0].startswith("s_add_u32 m0"): ex0[g_ - 1] = x[0]; x = x[2:]
                ex0[g_] = "\n".join(x)
        if ugl: self.period(0, extra=ex0)
        else: self.period(0, vm=9 + 5, extra=ex)
        self.stamp("l0")
        a.raw(".p2align 6")
        a.label("L_loop")
        self.stamp("q1")
        for p in range(1, 5):
            ex = {}
            vm = 9
            if p == 1: ex = {73: f"s_cmp_eq_u32 {sr(S_CNT)}, 3"}
            if p == 2: ex = {70: f"buffer_load_dword v252, {vr(VPL)}, {sr(S_WS,4)}, 0 offen sc1"}
            if p == 3:
                ex = {73: f"s_cmp_eq_u32 {sr(S_CNT)}, 2", 45: f"ds_add_rtn_u32 v230, v231, {vr(VPL+1)}"}
            if p == 4:
                self.stamp("la0")
                a(f"s_cbranch_scc1 L_last")
                a.label("L_lastb")
                self.stamp("la1")
                ex = {72: f"s_add_u32 {sr(S_CNT)}, {sr(S_CNT)}, 1", 1: f"v_readfirstlane_b32 {sr(T)}, v230", 3: f"s_cmp_eq_u32 {sr(T)}, 3",
                      4: f"s_cselect_b32 {sr(T)}, {sr(S_FB)}, 2.0", 6: f"buffer_store_dword v207, v231, {sr(S_WS,4)}, {sr(T)} offen sc1"}
            if ugl:
                ex[69] = self.ugs[p]
                if p < 3 and cll: ex[72] = clr[p]
                if p == 3 and cll: ex.update({70: f"s_mov_b32 {sr(S_CL)}, 2.0", 71: f"s_mov_b32 {sr(S_CL+1)}, 2.0"})
                if p == 4: ex.update({71: f"s_mov_b32 {sr(S_UG)}, 2.0", 2: f"s_lshl2_add_u32 {sr(T)}, {sr(S_CNT)}, {sr(T)}", 3: f"s_cmp_eq_u32 {sr(T)}, 7"})
                if p == 3: ex.update({43: f"s_and_b32 {sr(T)}, {sr(S_CNT)}, 1", 44: f"v_mov_b32 {vr(VPL+1)}, {sr(T)}", 48: ex.pop(45)})
            for k_ in range(o.get("pad", 0)): ex[10 + 7 * k_] = ex.get(10 + 7 * k_, "s_nop 0") + "\ns_nop 7"
            self.period(p, extra=ex, inc=sr(S_INC) if p == 4 else None)
            if p == 1: a("s_cbranch_scc1 L_p14")
        a("s_branch L_loop")
        a.label("L_p14")
        SW = 66
        self.stamp("p14")
        a(f"s_cmp_eq_u32 {sr(S_DUM)}, 4\ns_cbranch_scc0 L_dummyb")
        for i in range(16): a(f"v_mov_b32 {vr(V_CI+i)}, 0xff800000")
        a("s_nop 1")
        a.label("L_dummyb")
        ex = dict(zip([2, 6, 8, 12, 14, 18, 20, 24, 26, 30], self.w_reads(self.WD, 0)))
        ex[0] = "s_waitcnt vmcnt(9)"
        ex.update(dict(zip([4, 10, 16, 22, 28], self.w8_loads(self.WD[2], SW))))
        self.period(14, dma=False, kread=False, extra=ex, halves=(0,))
        self.stamp("tail")
        self.tail(SW)
        self.stamp("end")
        self.epilogue(SW)

    def rare(self):
        a = self.a
        T = S_T
        SW = 66
        a.label("L_last")
        a(f"s_waitcnt vmcnt(9)\ns_mov_b32 {sr(T+2)}, 0")
        a.label("L_late")
        xc = f"v_readlane_b32 {sr(S_SX)}, v252, 5\ns_sub_u32 {sr(S_SX)}, {sr(S_SX)}, {sr(S_N)}" if self.o.get("xm", 0) else ""
        a(f"""v_cmp_ne_u32 vcc, {sr(S_N)}, v252
        s_add_u32 {sr(S_XA)}, {sr(S_WS)}, {WS_WF}
        s_addc_u32 {sr(S_XA+1)}, {sr(S_WS+1)}, 0
        s_mov_b32 {sr(S_XA+2)}, {18*BLK}
        s_add_u32 {sr(S_TOFF)}, {sr(S_LB)}, {9*BLK}
        s_mov_b32 {sr(S_INC)}, {-9*BLK}
        s_lshr_b32 {sr(SW)}, {sr(S_W)}, 1
        s_lshl_b32 {sr(SW)}, {sr(SW)}, 30
        s_add_u32 {sr(SW+1)}, {sr(SW)}, {WS_WF + 8*BLK}
        s_add_u32 {sr(SW)}, {sr(SW)}, {WS_WF + 17*BLK}
        {xc}
        s_and_b32 {sr(T)}, vcc_lo, 31
        s_cbranch_scc0 L_lastb
        buffer_load_dword v252, {vr(self.VPL)}, {sr(S_WS,4)}, 0 offen sc1
        s_add_u32 {sr(T+2)}, {sr(T+2)}, 1
        s_waitcnt vmcnt(0)
        s_cmp_lt_u32 {sr(T+2)}, 0x40000
        s_cbranch_scc1 L_late
        s_branch L_lastb""")

    units = [(0, 0), (0, 1), (1, 0), (1, 1), (2, 0)]
    V15 = V_K

    def stage(self, slot, T):
        src = ar(A_O + 36 * slot + 4 * T, 4)
        if slot == 0: return f"ds_write_b128 {vr(self.VST)}, {src} offset:{1024*T}"
        if slot == 2: return f"ds_write_b128 {vr(self.VS0)}, {src} offset:{1024*T}"
        if T < 4: return f"ds_write_b128 {vr(self.VST)}, {src} offset:{SLOT + 1024*T + (4096 if slot == 3 else 0)}"
        return f"{'s_not_b64' if slot == 1 else 's_mov_b64'} exec, {sr(self.MP1,2)}\nds_write_b128 {vr(self.VST)}, {src} offset:{SLOT + 8192}\ns_mov_b64 exec, -1"

    def dwf(self, k, i):
        f = 5 * k + i
        return self.DWT[f >> 1] + 2 * (f & 1)

    def tail(self, SW):
        a, o = self.a, self.o
        mf, pos, start = [], {}, {}
        for t_, qb in ((14, 0), (14, 1), (15, 0), (15, 1), (14, 2), (15, 2), (14, 3), (15, 3)):
            start[t_, qb] = len(mf)
            for Tt in ([0, 1, 2, 3, 8, 4, 5, 6, 7] if qb & 1 else range(9)):
                o_ = ar(A_O + 36 * qb + 4 * Tt, 4)
                pos[t_, qb, Tt] = len(mf)
                mf.append(f"v_mfma_f32_16x16x32_bf16 {o_}, {vr((V_V if t_ == 14 else self.V15)+4*Tt,4)}, {vr(self.P(t_ & 1,qb),4)}, {o_}")
        lst = []
        for qb in range(4):
            for j in range(8):
                lst.append(("e", qb, j))
                if j & 1: lst.append(("c", qb, j // 2))
        lst += [("a", qb, j) for qb in range(4) for j in range(8)]
        items = self.e_items(1, lst, lambda qb, j: 0 if j < 4 else 1, lambda qb: start[15, qb] - 2)
        for it in items[48:]: it["lo"] = o.get("alo", 26)
        v15 = [dict(t=x, c=4, need=pos[15, 0, i // 2], hi=pos[15, 0, i // 2] - o.get("vlead", 7), lo=0 if i < 16 else 2) for i, x in enumerate(self.v_reads(3, self.V15))]
        wr = []
        nown = o.get("nown", 4)
        self.own = [(2, T_) for T_ in range(nown, 9)] + [(3, T_) for T_ in (0, 1, 2, 3, 8)]
        g = o.get("w0", 23)
        for k, (sl, Tt) in enumerate([(0, T_) for T_ in range(9)] + [(1, T_) for T_ in (0, 1, 2, 3, 8)] + [(2, T_) for T_ in range(nown)]):
            g = max(pos[15, sl, Tt] + 5, g)
            wr.append(dict(t=self.stage(sl, Tt), c=o.get("wc", 20), lo=int(g), hi=int(g)) if g < 72 else dict(t=self.stage(sl, Tt), c=4, lo=999))
            g += o.get("wsp", 2.7)
        n0 = len(items) + len(v15)
        wo = []
        for i, x in enumerate(self.w_reads(self.WO, SLOT)):
            r0 = self.WO[i // 5][i % 5][1]
            wo.append(dict(t=("@VM\n" if i == 0 else "") + x, c=4, dep=sorted({n0 + r0 // 4, n0 + (r0 + 3) // 4 if (r0 + 3) // 4 < 9 else n0 + 8}), lo=o.get("wo0", 40) + 3 * i, hi=o.get("wo0", 40) + 3 * i + 2))
        cl = self.conv_loads()
        dl = [f"buffer_load_dwordx4 {vr(self.DWT[r],4)}, {vr(self.VDW)}, {sr(S_WS,4)}, 0 offen offset:{256*r}" for r in range(7)]
        dl.append(f"buffer_load_dwordx2 {vr(self.DWT[7],2)}, {vr(self.VDW)}, {sr(S_WS,4)}, 0 offen offset:{256*7}")
        fr = {96: 9, 100: 18, 104: 45, 112: 27, 116: 36}
        vm = [(x, 0) for x in cl] + [(x, fr.get(self.DWT[r], 0)) for r, x in enumerate(dl)]
        used = {w["lo"] for w in wr}
        vi, g = [], o.get("m0", 24)
        for x, lo in vm:
            g = max(g, lo)
            while int(g) in used: g += 1
            vi.append(dict(t=x, c=8, lo=int(g), hi=int(g)) if g < 72 else dict(t=x, c=8, lo=999))
            g += o.get("msp", 2.2)
        left = self.pack(mf, items + v15 + wr + wo + vi)
        self.done_a = {(qb, j) for qb in range(4) for j in range(8) if self.etext(1, ("a", qb, j)) not in left}
        left = [x for x in left if not x.startswith("v_add_f32")]
        print("tail overflow", self.over, "left", len(left), "adds done", len(self.done_a))
        self.left = left

    def epilogue(self, SW):
        a, o = self.a, self.o
        T = S_T
        p = lambda r: vr(r, 2)
        NB, PT, MK, VO, units, MP1 = self.NB, self.PT, self.MK, self.VO, self.units, self.MP1
        U, GM, G0, GP = self.U, self.GM, self.G0, self.GP
        X2O = self.X2O
        R1, R2, R3 = 230, 231, 249
        LA, LS, M = 10, 226, 48

        def weave(main, fill, per):
            fill = list(fill)
            for x in main:
                a(x)
                for _ in range(per):
                    if fill: a(fill.pop(0))
            return fill
        for x in self.left:
            if not x.startswith("buffer"): a(x)
        lv = [x for x in self.left if x.startswith("buffer")]
        lv += [f"buffer_load_dwordx4 {vr(self.XRS[j],4)}, {vr(VO+j)}, {sr(S_X,4)}, {sr(self.E_COL)} offen" for j in range(2)]
        lv.append(f"buffer_load_dwordx2 {vr(self.XRS[2],2)}, {vr(self.VO8)}, {sr(S_X,4)}, 0 offen offset:256")
        S1 = lambda qb, j: self.S(1, qb, j)
        rounds = [[] for _ in range(6)]
        for qb in range(4):
            rem = [j for j in range(8) if (qb, j) not in self.done_a]
            prs = [j for j in rem if j % 2 == 0 and j + 1 in rem]
            sing = [j for j in rem if (j & ~1) not in prs]
            r_ = 0
            while len(prs) > 1:
                for x, y in zip(prs[0::2], prs[1::2]): rounds[r_].append(f"v_pk_add_f32 {p(S1(qb,x))}, {p(S1(qb,x))}, {p(S1(qb,y))}")
                prs = prs[0::2]; r_ += 1
            for k_, j in enumerate(sing + ([prs[0], prs[0] + 1] if prs else [])): rounds[min(5, max(r_, 2) + k_)].append(f"v_add_f32 {vr(V_L+qb)}, {vr(V_L+qb)}, {vr(S1(qb,j))}")
        for r_ in rounds:
            for x in r_: a(x)
        a(f"v_add_u32 {vr(R1)}, {sr(self.RS1)}, {vr(V_DMA)}\nv_add_u32 {vr(R2)}, {sr(self.RS2)}, {vr(V_DMA)}")
        self.treduce(V_L)
        a(f"ds_write_b32 {vr(self.VLW)}, {vr(V_L)}")
        acc = lambda slot: [f"v_accvgpr_read_b32 {vr(M+i)}, {ar(A_O+36*slot+16+i)}" for i in range(20)]
        a(f"""v_add_u32 {vr(R3)}, {sr(self.RS3)}, {vr(V_DMA)}
        v_add_u32 {vr(LA+1)}, {self.L_L}, {vr(V_DMA)}
        v_and_b32 {vr(LS+1)}, 0xf0, {vr(V_DMA)}
        s_lshl_b32 {sr(T)}, {sr(NB)}, 8
        s_add_u32 {sr(T+8)}, {sr(T)}, {self.L_L}
        v_add_u32 {vr(LS)}, {sr(T+8)}, {vr(LS+1)}""")
        for x in lv: a(x)
        a(f"""s_xor_b32 {sr(T)}, s2, 1
        s_mul_i32 {sr(T)}, {sr(T)}, {IB}
        s_mul_i32 {sr(T+9)}, {sr(NB)}, 5120
        s_add_u32 {sr(T+9)}, {sr(T+9)}, {WS_IB}
        s_add_u32 {sr(T)}, {sr(T)}, {sr(T+9)}
        s_lshl_b32 {sr(T+10)}, {sr(PT)}, 11
        s_add_u32 {sr(T+1)}, {sr(T+10)}, {sr(T)}
        s_add_u32 {sr(T)}, {sr(T)}, 4096
        s_cmp_eq_u32 {sr(PT)}, 0
        s_cselect_b32 {sr(T)}, 0x40000000, {sr(T)}
        s_mov_b32 {sr(T+2)}, {f32(2.0**100)}
        s_mul_i32 {sr(T+12)}, s2, {IB}
        s_add_u32 {sr(T+12)}, {sr(T+12)}, {sr(T+9)}
        s_add_u32 {sr(T+13)}, {sr(T+12)}, {sr(T+10)}
        s_waitcnt lgkmcnt(0)
        s_barrier""")
        self.stamp("B1")

        def rd(X, offs):
            L = [[f"ds_read_b128 {vr(X[k][i],4)}, {vr((R1, R2, R3)[k])} offset:{offs[k] + 1024*i}" for i in range(4)] for k in range(3)]
            L8 = [f"ds_read_b128 {vr(X[k][4],4)}, {vr((R1, R2, R3)[k])} offset:8192" for k in range(3)]
            return L, L8

        def adds(X, k, rng):
            return [f"v_pk_add_f32 {p(M+4*i+2*h)}, {p(M+4*i+2*h)}, {p(X[k][i]+2*h)}" for i in rng for h in range(2)]
        X = [[128, 132, 136, 140, 144], [148, 152, 156, 160, 68], [72, 76, 200, 204, 108]]
        PK = 128
        sfl = o.get("sfl", "")
        L, L8 = rd(X, (0, 4096, 0))
        a(f"ds_read_b128 {vr(LA,4)}, {vr(LA+1)}\nds_read_b128 {vr(LS,4)}, {vr(LS)}")
        rest = weave(L[0] + L[1] + L[2], acc(1), 2)
        assert not rest
        a(f"s_mov_b64 exec, {sr(MP1,2)}")
        for x in L8: a(x)
        a(f"""s_mov_b64 exec, -1
        s_waitcnt lgkmcnt(11)
        v_add_f32 {vr(LA)}, {vr(LA)}, {vr(LA+1)}
        v_add_f32 {vr(LA+2)}, {vr(LA+2)}, {vr(LA+3)}
        v_add_f32 {vr(LS)}, {vr(LS)}, {vr(LS+1)}
        v_add_f32 {vr(LA)}, {vr(LA)}, {vr(LA+2)}
        v_add_f32 {vr(LS+2)}, {vr(LS+2)}, {vr(LS+3)}
        v_cmp_nge_f32 vcc, {sr(T+2)}, {vr(LA)}""")
        for x in adds(X, 0, range(4)): a(x)
        a(f"""s_cmp_lg_u64 vcc, 0
        s_cselect_b32 {sr(T+2)}, 1, 0
        s_andn2_b32 {sr(T+2)}, {sr(T+2)}, {sr(S_REDO)}
        s_cbranch_scc1 L_fallback
        v_add_f32 {vr(PK+10)}, {vr(LS)}, {vr(LS+2)}
        v_mov_b32 {vr(PK+11)}, {vr(MK+1)}
        s_waitcnt lgkmcnt(7)""")
        for x in adds(X, 1, range(4)): a(x)
        a("s_waitcnt lgkmcnt(3)")
        a3 = adds(X, 2, range(4))
        cv = [f"v_cvt_pk_bf16_f32 {vr(PK+i)}, {vr(M+2*i)}, {vr(M+2*i+1)}" for i in range(10)]
        for x in a3[:4] + a3[4:6] + cv[:4]: a(x)

        def send(fl):
            a(f"buffer_store_dwordx4 {vr(PK,4)}, {vr(V_DMA)}, {sr(S_WS,4)}, {sr(T+1)} offen {fl}")
            for x in a3[6:] + cv[4:8]: a(x)
            a(f"buffer_store_dwordx4 {vr(PK+4,4)}, {vr(V_DMA)}, {sr(S_WS,4)}, {sr(T+1)} offen offset:1024 {fl}")
            a("s_waitcnt lgkmcnt(0)")
            for kk in range(3):
                for x in adds(XS, kk, [4]): a(x)
            for x in cv[8:]: a(x)
            a(f"buffer_store_dwordx4 {vr(PK+8,4)}, {vr(V_DMA)}, {sr(S_WS,4)}, {sr(T)} offen {fl}")
        XS = X
        self.send = send
        if o.get("xm", 0) and o.get("l2s", 1):
            a(f"s_cmp_eq_u32 {sr(S_SX)}, {sr(S_XC)}\ns_cbranch_scc0 L_far")
            send(sfl)
            a.label("L_sent")
        else: send("sc1")
        self.stamp("sent")
        a(f"s_cmp_eq_u32 {sr(S_VAL)}, 0\ns_cbranch_scc1 L_fin")
        C, UP = 140, 68
        IN = [(200, 204, 226), (164, 168, 252), (192, 196, 172)]
        VXW, VXR, VF, LO = 78, 79, 10, 36
        wr = [self.stage(*e) for e in self.own]

        def inbox(k):
            return [f"buffer_load_dwordx4 {vr(IN[k][0],4)}, {vr(V_DMA)}, {sr(S_WS,4)}, {sr(T+13)} offen sc1",
                    f"buffer_load_dwordx4 {vr(IN[k][1],4)}, {vr(V_DMA)}, {sr(S_WS,4)}, {sr(T+13)} offen offset:1024 sc1",
                    f"buffer_load_dwordx4 {vr(IN[k][2],4)}, {vr(V_DMA+1)}, {sr(S_WS,4)}, {sr(T+12)} offen sc1"]
        for x in inbox(0): a(x)
        n0 = len(a.lines)
        a(f"""s_lshl_b32 {sr(T)}, {sr(NB)}, 12
        s_add_u32 {sr(T)}, {sr(T)}, {sr(T+10)}
        s_add_u32 {sr(T)}, {sr(T)}, {self.X1B}
        v_add_u32 {vr(VXW)}, {sr(T)}, {vr(V_DMA)}
        s_lshl_b32 {sr(T)}, {sr(NB)}, 9
        s_add_u32 {sr(T)}, {sr(T)}, {self.X1B + 4096}
        v_add_u32 {vr(VXR)}, {sr(T)}, {vr(self.VL8)}
        s_lshl_b32 {sr(T)}, {sr(PT)}, 12
        s_add_u32 {sr(T)}, {sr(T)}, {self.X1B}
        v_add_u32 {vr(VF)}, {sr(T)}, {vr(V_DMA)}
        v_xor_b32 {vr(VF+1)}, 4096, {vr(VF)}
        s_lshl_b32 {sr(T)}, {sr(PT)}, 9
        s_add_u32 {sr(T)}, {sr(T)}, {self.X1B + 4096}
        v_add_u32 {vr(VF+2)}, {sr(T)}, {vr(self.VL8)}
        v_xor_b32 {vr(VF+3)}, 512, {vr(VF+2)}
        v_subrev_u32 {vr(R2)}, {2*SLOT}, {vr(R2)}
        v_subrev_u32 {vr(R3)}, {2*SLOT}, {vr(R3)}
        s_waitcnt vmcnt(9)""")
        self.stamp("cv0")
        un = [f"v_lshlrev_b32 {vr(M+2*i)}, 16, {vr(U+i)}\nv_and_b32 {vr(M+1+2*i)}, 0xffff0000, {vr(U+i)}" for i in range(10)]
        w8 = self.w8_loads(self.WO[2], SW + 1)
        for k, src in enumerate((GM, G0, GP)):
            for i in range(5):
                d = vr(C + 4 * i, 4)
                a(f"v_mfma_f32_16x16x16_bf16 {d}, {vr(self.dwf(k, i),2)}, {vr(src+2*i,2)}, {'0' if k == 0 else d}")
                a(w8.pop(0) if i in (0, 3) and w8 else un.pop(0))
        self.stamp("cv1")
        a(f"v_and_b32 {vr(LO+1)}, 0xf0, {vr(V_DMA)}\nv_add_u32 {vr(LO)}, {sr(T+8)}, {vr(LO+1)}\ns_nop 1")
        for i in range(10): a(f"v_pk_mul_f32 {p(C+2*i)}, {p(C+2*i)}, {p(M+2*i)}")
        for i in range(10):
            a(f"v_cvt_pk_bf16_f32 {vr(UP+i)}, {vr(C+2*i)}, {vr(C+2*i+1)}")
        body = a.lines[n0:]; del a.lines[n0:]
        step = max(1, len(body) // len(wr))
        for i, l in enumerate(body):
            if i % o.get("wstep", step) == 0 and wr: a(wr.pop(0))
            a.lines.append(l)
        for x in wr: a(x)
        ac = acc(3)
        a(f"ds_write_b128 {vr(VXW)}, {vr(UP,4)} offset:{X2O}")
        for x in ac[:6]: a(x)
        a(f"ds_write_b128 {vr(VXW)}, {vr(UP+4,4)} offset:{X2O + 1024}")
        for x in ac[6:12]: a(x)
        a(f"""s_mov_b64 exec, {sr(MP1,2)}
        ds_write_b64 {vr(VXR)}, {vr(UP+8,2)} offset:{X2O}
        s_mov_b64 exec, -1""")
        self.stamp("x2")
        for x in inbox(1): a(x)
        for x in ac[12:]: a(x)
        a("s_waitcnt lgkmcnt(0)\ns_barrier")
        self.stamp("B2")
        X = [[128, 132, 136, 140, 144], [148, 152, 156, 160, 188], [16, 20, 24, 28, 32]]
        L, L8 = rd(X, (4096, 4096, 0))
        BU = [[("v", r) for r in (100, 104, 108, 112, 116)], [("v", r) for r in (118, 122, 180, 184, 126)]]
        BO = [self.frag("v", 128), self.frag("v", 146)]
        AB = 80

        def bfrags(dst, off):
            out = []
            for s in range(5):
                for j in range(2):
                    out.append(f"ds_read_b128 {self.rg(dst[j][s],4)}, {vr(VF+j)} offset:{off + 1024*s}" if s < 4 else f"ds_read_b64 {self.rg(dst[j][4],2)}, {vr(VF+2+j)} offset:{off}")
            return out

        def fg(W, Bf):
            out = []
            for s in range(5):
                for u, (tt, j) in enumerate(units):
                    d = vr(AB + 4 * u, 4)
                    if s < 4: out.append(f"v_mfma_f32_16x16x32_bf16 {d}, {self.rg(W[tt][s],4)}, {self.rg(Bf[j][s],4)}, {d}")
                    else: out.append(f"v_mfma_f32_16x16x16_bf16 {d}, {self.rg(W[tt][4],2)}, {self.rg(Bf[j][4],2)}, {d}")
            return out
        xu = []
        for u, (tt, j) in enumerate(units):
            for h in range(2):
                x = self.XRS[j] + 2 * tt + h if tt < 2 else self.XRS[2] + h
                xu += [f"v_lshlrev_b32 {vr(AB+4*u+2*h)}, 16, {vr(x)}", f"v_and_b32 {vr(AB+1+4*u+2*h)}, 0xffff0000, {vr(x)}"]
        a("s_waitcnt vmcnt(14)")
        weave(bfrags(BU, X2O), xu, 2)
        pl = lambda k, i, e: f"v_add_f32 {vr(M+4*i+e)}, {vr(M+4*i+e)}, {vr(X[k][i]+e)}"
        ds = L[0] + L[1] + L[2] + [f"s_not_b64 exec, {sr(MP1,2)}\n" + "\n".join(L8) + "\ns_mov_b64 exec, -1", f"ds_read_b128 {vr(LO,4)}, {vr(LO)} offset:512"]
        nis = [1] * 12 + [3, 1]
        gap = [[] for _ in range(25)]
        tot = [10]
        for g in range(25): tot.append(tot[-1] + (nis[g] if g < 14 else 0))
        A0 = [pl(0, i, e) for i in range(4) for e in range(4)]
        A1 = [pl(1, i, e) for i in range(4) for e in range(4)]
        ib = inbox(2)
        for g, m in enumerate(fg(self.WD, BU)):
            if g % 5 == 0: a(f"s_waitcnt lgkmcnt({min(15, tot[g] - 2 * (g // 5 + 1))})")
            a(m)
            if g == 8: a(f"s_waitcnt lgkmcnt({tot[g] - 14})")
            if g == 16: a(f"s_waitcnt lgkmcnt({tot[g] - 18})")
            if g < 14: a(ds[g])
            if 8 <= g < 14: a(A0.pop(0))
            elif g in (14, 18, 22): a(ib.pop(0))
            elif g >= 14:
                for _ in range(2): a(A0.pop(0) if A0 else A1.pop(0))
        assert not A0 and len(A1) % 2 == 0
        n1 = 16 - len(A1)
        for e in range(n1, 16, 2): a(f"v_pk_add_f32 {p(M+e)}, {p(M+e)}, {p(X[1][e//4]+e%4)}")
        a("s_waitcnt lgkmcnt(0)")
        for x in adds(X, 2, range(4)): a(x)
        a(f"v_add_f32 {vr(LO)}, {vr(LO)}, {vr(LO+1)}\nv_add_f32 {vr(LO+2)}, {vr(LO+2)}, {vr(LO+3)}")
        for kk in range(3):
            for x in adds(X, kk, [4]): a(x)
        a(f"s_mov_b32 {sr(T+2)}, 0\nv_add_f32 {vr(LO)}, {vr(LO)}, {vr(LO+2)}")
        self.stamp("own")
        w, PU = 40, 128
        mo = MK + 3

        def chk(k):
            r = [IN[k][q] + i for q in range(3) for i in range(4)]
            c = [f"v_max3_u32 v46, {vr(r[0])}, {vr(r[1])}, {vr(r[2])}", f"v_max3_u32 v47, {vr(r[3])}, {vr(r[4])}, {vr(r[5])}"]
            for q in range(3): c.append(f"v_max3_u32 v{46+(q&1)}, v{46+(q&1)}, {vr(r[6+2*q])}, {vr(r[7+2*q])}")
            return c + ["v_max_u32 v46, v46, v47", "v_cmp_eq_u32 vcc, -1, v46"]

        def take(k, with_chk):
            r = [IN[k][q] + i for q in range(3) for i in range(4)]
            lp_, mp = r[10], r[11]
            wt = [f"v_min_f32 {vr(w)}, {vr(mo)}, {vr(mp)}", f"v_sub_f32 {vr(w+2)}, {vr(w)}, {vr(mp)}", f"v_sub_f32 {vr(w)}, {vr(w)}, {vr(mo)}",
                  f"v_exp_f32 {vr(w+2)}, {vr(w+2)}", f"v_exp_f32 {vr(w)}, {vr(w)}", f"v_mul_f32 {vr(w+4)}, {vr(w+2)}, {vr(lp_)}",
                  f"v_fmac_f32 {vr(w+4)}, {vr(w)}, {vr(LO)}", f"v_rcp_f32 {vr(w+4)}, {vr(w+4)}", f"v_mul_f32 {vr(w)}, {vr(w)}, {vr(w+4)}",
                  f"v_mul_f32 {vr(w+2)}, {vr(w+2)}, {vr(w+4)}"]
            un = []
            for i in range(10): un += [f"v_lshlrev_b32 {vr(PU+2*i)}, 16, {vr(r[i])}", f"v_and_b32 {vr(PU+1+2*i)}, 0xffff0000, {vr(r[i])}"]
            c = chk(k) if with_chk else []
            for i in range(10):
                a(wt[i])
                if c: a(c.pop(0))
                a(un.pop(0)); a(un.pop(0))
        a("s_waitcnt vmcnt(6)")
        take(0, True)
        a("s_cmp_eq_u64 vcc, 0\ns_cbranch_scc0 L_poll2")
        a.label("L_got")
        self.stamp("got")
        for i in range(10): a(f"v_pk_mul_f32 {p(M+2*i)}, {p(M+2*i)}, {p(w)} op_sel_hi:[1,0]")
        for i in range(10): a(f"v_pk_fma_f32 {p(M+2*i)}, {p(PU+2*i)}, {p(w+2)}, {p(M+2*i)} op_sel_hi:[1,0,1]")
        for i in range(10):
            a(f"v_cvt_pk_bf16_f32 {vr(UP+i)}, {vr(M+2*i)}, {vr(M+2*i+1)}")
            if i == 3: a(f"ds_write_b128 {vr(VXW)}, {vr(UP,4)}")
            if i == 7: a(f"ds_write_b128 {vr(VXW)}, {vr(UP+4,4)} offset:1024")
        a(f"""s_not_b64 exec, {sr(MP1,2)}
        ds_write_b64 {vr(VXR)}, {vr(UP+8,2)}
        s_mov_b64 exec, -1
        s_waitcnt lgkmcnt(0)
        s_barrier""")
        self.stamp("B3")
        for x in bfrags(BO, 0): a(x)
        for g, m in enumerate(fg(self.WO, BO)):
            if g % 5 == 0: a(f"s_waitcnt lgkmcnt({8 - 2 * (g // 5)})" + ("\ns_nop 0" if g == 20 else ""))
            a(m)
        self.stamp("gem")
        a("s_nop 3")
        for j in range(2):
            for tt in range(2):
                u = 2 * tt + j
                for h in range(2): a(f"v_cvt_pk_bf16_f32 {vr(16+4*j+2*tt+h)}, {vr(AB+4*u+2*h)}, {vr(AB+4*u+2*h+1)}")
            a(f"buffer_store_dwordx4 {vr(16+4*j,4)}, {vr(VO+j)}, {sr(S_OUT,4)}, {sr(self.E_COL)} offen {o.get('ofl', '')}")
        a(f"s_cmp_ge_u32 {sr(S_W)}, 2\ns_cbranch_scc1 L_fin")
        for h in range(2): a(f"v_cvt_pk_bf16_f32 {vr(24+h)}, {vr(AB+16+2*h)}, {vr(AB+16+2*h+1)}")
        a(f"buffer_store_dwordx2 v[24:25], {vr(self.VO8)}, {sr(S_OUT,4)}, 0 offen offset:256 {o.get('ofl', '')}")
        self.stamp("fin")

        def poll2():
            a.label("L_poll2")
            for k in (1, 2, 0):
                for x in inbox((k + 2) % 3): a(x)
                a("s_waitcnt vmcnt(6)")
                for x in chk(k): a(x)
                a(f"s_add_u32 {sr(T+2)}, {sr(T+2)}, 1\ns_cmp_eq_u64 vcc, 0\ns_cbranch_scc1 L_take{k}")
            a(f"s_cmp_lt_u32 {sr(T+2)}, 0x10000\ns_cbranch_scc1 L_poll2")
            for k in (0, 1, 2):
                a.label(f"L_take{k}")
                take(k, False)
                a("s_branch L_got")
            if o.get("xm", 0) and o.get("l2s", 1):
                a.label("L_far")
                send("sc1")
                a("s_branch L_sent")
        self.poll2 = poll2

    def fallback(self):
        a = self.a
        T = S_T
        MXR = 208
        a.label("L_fallback")
        a(f"""s_waitcnt vmcnt(0) lgkmcnt(0)
        s_barrier
        s_mov_b32 {sr(S_REDO)}, 1
        s_mov_b32 {sr(S_UG)}, 0x40000000
        {self.xa_srd()}
        s_mov_b32 {sr(S_TOFF)}, {sr(S_LB)}
        s_cmp_eq_u32 {sr(S_DUM)}, 4
        s_cselect_b32 {sr(S_CNT)}, 15, 16""")
        for i in range(4): a(f"v_mov_b32 {vr(MXR+i)}, 0xff800000")
        a.label("L_fb1")
        for g in self.tile_groups(0): a(g)
        a("s_waitcnt vmcnt(0)")
        for x in self.k_reads(0): a(x)
        a("s_waitcnt lgkmcnt(0)")
        for m in self.qk_mfmas(0, czero=True): a(m)
        a("s_nop 7")
        for qb in range(4):
            for i in range(0, 8, 2): a(f"v_max3_f32 {vr(MXR+qb)}, {vr(MXR+qb)}, {vr(self.S(0,qb,i))}, {vr(self.S(0,qb,i+1))}")
        a(f"s_sub_u32 {sr(S_CNT)}, {sr(S_CNT)}, 1\ns_cmp_lg_u32 {sr(S_CNT)}, 0\ns_cbranch_scc1 L_fb1")
        self.greduce([MXR + i for i in range(4)], MXR + 4, "v_max_f32")
        a(f"""v_and_b32 {vr(MXR+4)}, 15, v0
        v_lshlrev_b32 {vr(MXR+4)}, 4, {vr(MXR+4)}
        v_add_u32 {vr(MXR+4)}, {L_SP}, {vr(MXR+4)}
        s_lshl_b32 {sr(T)}, {sr(S_W)}, 2
        s_xor_b32 {sr(T+1)}, {sr(self.NB)}, 1
        v_lshl_add_u32 {vr(MXR+5)}, {sr(self.NB)}, 8, {vr(MXR+4)}
        v_lshl_add_u32 {vr(MXR+4)}, {sr(T+1)}, 8, {vr(MXR+4)}
        v_add_u32 {vr(MXR+6)}, {sr(T)}, {vr(MXR+4)}
        v_add_u32 {vr(MXR+7)}, {sr(T)}, {vr(MXR+5)}""")
        for qb in range(4): a(f"ds_write_b32 {vr(MXR+6+(qb&1))}, {vr(MXR+qb)} offset:{512*(qb>>1)}")
        a("s_waitcnt lgkmcnt(0)\ns_barrier")
        for qb in range(4): a(f"ds_read_b128 {vr(16+4*qb,4)}, {vr(MXR+4+(qb&1))} offset:{512*(qb>>1)}")
        a(f"s_mov_b32 {sr(S_TOFF)}, {sr(S_LB)}")
        for g in self.tile_groups(0) + self.tile_groups(1) + ([] if self.o.get("gs", 0) else self.tile_groups(2)[:8]): a(g)
        a("s_waitcnt lgkmcnt(0)")
        for qb in range(4):
            r = 16 + 4 * qb
            a(f"v_max_f32 {vr(r)}, {vr(r)}, {vr(r+1)}\nv_max3_f32 {vr(r)}, {vr(r)}, {vr(r+2)}, {vr(r+3)}")
            a(f"v_sub_f32 {vr(self.MK+qb)}, 0, {vr(r)}")
        a("s_waitcnt vmcnt(0)")
        for x in self.k_reads(0, V_V): a(x)
        self.loop_init(False)
        if self.o.get("gs", 0): self.loop_init(True)
        a("s_branch L_go")


if __name__ == "__main__":
    opt = json.loads(sys.argv[2]) if len(sys.argv) > 2 else {}
    g = G(opt)
    txt = g.build()
    if opt.get("align", 1):
        from align import align
        for n2 in (1, 2):
            try:
                txt, st = align(txt, chains=[(1, "L_tr")] * 3 + [(1, "L_tr2"), (n2, "L_tr2")] if opt.get("touch", 1) else None)
                break
            except AssertionError as e:
                if n2 == 2: raise
        print("align: promoted %d, padded %d, left %d" % st)
    txt = txt.replace("\n", "\n; stamps " + json.dumps(g.stnames) + "\n; map %d\n" % g.mp, 1)
    open(sys.argv[1], "w").write(txt)
```

```python
import sys, json, math
from common import Asm, vr, ar, sr, kernel_header, kernel_desc
from lay import *

NAME = "standalone__conformer_family_branchformer__speech_kernel"
NH = 2
NWG = 252 + NH
CHAINS = (3, 3)
RING = 4
LDS_RING = RING * TILE
LDS_TOTAL = 163840
SLOT = 4 * TILE
L_WU, L_WQ, L_WK = 0, 41472, 82944
L_XX, L_XR = 126976, 143360
L_QD = 18432
L_XS = L_XX + L_QD
L_MX = 81920
L_PC = LDS_TOTAL - 256
L_DUMP = 123904
L_SP = 147456

S_X, S_WS, S_XA, S_DB, S_W1, S_W2, S_OUT, S_DW = 8, 12, 16, 20, 24, 28, 32, 36
S_W, S_B, S_H, S_QB, S_TOFF, S_CNT, S_DUM, S_LB, S_TOWN, S_TSND, S_VAL, S_REDO = range(40, 52)
S_UG, S_CL = 25, 26
S_PH, S_XC, S_SX = 6, 74, 75
S_N, S_FB = 98, 99
S_INC = 24
S_T = 52
S_ST = 76

V_KA, V_VA, V_VR, V_DMA, V_L, V_VB = 1, 3, 5, 6, 10, 14
V_S, V_CI, V_P, V_K, V_V = 16, 80, 96, 128, 164
V_HI = 200
V_X = 208
A_O, A_Q, A_F = 0, 144, 216

LOG2E = 1.4426950408889634
import struct
def f32(x): return "0x%08x" % struct.unpack("<I", struct.pack("<f", x))[0]


class BAsm(Asm):
    def __init__(self):
        super().__init__()
        self.bg, self.every, self.cnt, self.skip = [], 0, 0, 0

    def __call__(self, s):
        for l in s.split("\n"):
            l = l.strip()
            if not l: continue
            self.lines.append("    " + l)
            if self.bg and self.every and not l.startswith(("s_nop", "v_mov_b32", "v_exp", "v_rcp", "v_rsq", "v_sqrt", "s_add_u32 m0")):
                self.cnt += 1
                if self.cnt >= self.every:
                    self.cnt = 0
                    self.pop()

    def pop(self):
        for x in self.bg.pop(0).split("\n"): self.lines.append("    " + x)

    def flush(self):
        while self.bg: self.pop()
        self.every = 0


class G:
    def __init__(self, opt):
        self.o = opt
        self.a = BAsm()
        self.nst = 0
        self.fill = []

    def stamp(self, name):
        if self.o.get("stamps"):
            if name in self.o.get("skipst", []): return
            if "only" in self.o and name not in self.o["only"]: return
            if self.nst >= 11: return
            self.a(f"{'s_memtime' if self.o.get('cyc') else 's_memrealtime'} {sr(S_ST + 2*self.nst, 2)}")
            self.stnames.append(name)
            self.nst += 1

    def srd(self, dst, lo, hi, n):
        if dst == S_WS and self.o.get("wsoff"):
            self.a(f"s_add_u32 {sr(dst)}, {sr(lo)}, {self.o['wsoff']}\ns_addc_u32 {sr(dst+1)}, {sr(hi)}, 0\ns_mov_b32 {sr(dst+2)}, {n}\ns_mov_b32 {sr(dst+3)}, 0x20000")
            return
        self.a(f"s_mov_b32 {sr(dst)}, {sr(lo)}\ns_mov_b32 {sr(dst+1)}, {sr(hi)}\ns_mov_b32 {sr(dst+2)}, {n}\ns_mov_b32 {sr(dst+3)}, 0x20000")

    def greduce(self, regs, tmp, op="v_add_f32"):
        a = self.a
        for sw in ("32", "16"):
            for i, r in enumerate(regs): a(f"v_mov_b32 {vr(tmp+i)}, {vr(r)}")
            if len(regs) < 3: a("s_nop 1" if len(regs) == 1 else "s_nop 0")
            for i, r in enumerate(regs): a(f"v_permlane{sw}_swap_b32 {vr(r)}, {vr(tmp+i)}")
            for i, r in enumerate(regs): a(f"{op} {vr(r)}, {vr(r)}, {vr(tmp+i)}")

    def treduce(self, r, op="v_add_f32"):
        a = self.a
        a(f"v_permlane32_swap_b32 {vr(r)}, {vr(r+2)}\nv_permlane32_swap_b32 {vr(r+1)}, {vr(r+3)}")
        a(f"{op} {vr(r)}, {vr(r)}, {vr(r+2)}\n{op} {vr(r+1)}, {vr(r+1)}, {vr(r+3)}\ns_nop 1")
        a(f"v_permlane16_swap_b32 {vr(r)}, {vr(r+1)}\n{op} {vr(r)}, {vr(r)}, {vr(r+1)}")

    def rbf(self, r):
        self.a(f"v_cvt_pk_bf16_f32 {vr(r)}, {vr(r)}, {vr(r)}\nv_lshlrev_b32 {vr(r)}, 16, {vr(r)}")

    def ln_tail(self, F, out, t, mimic):
        a = self.a
        p = lambda r: vr(r, 2)
        self.greduce([t, t + 1], t + 2)
        a(f"v_mul_f32 {vr(t+2)}, {f32(1.0/144)}, {vr(t)}")
        a(f"v_mul_f32 {vr(t+3)}, {vr(t+2)}, {vr(t+2)}")
        a(f"v_mov_b32 {vr(t+4)}, {f32(1.0/144)}")
        a(f"v_fma_f32 {vr(t)}, {vr(t+1)}, {vr(t+4)}, -{vr(t+3)}")
        a(f"v_max_f32 {vr(t)}, 0, {vr(t)}")
        if mimic:
            self.rbf(t)
            self.rbf(t + 2)
            a(f"v_add_f32 {vr(t)}, {f32(1e-5)}, {vr(t)}")
            self.rbf(t)
            a(f"v_sqrt_f32 {vr(t)}, {vr(t)}\ns_nop 0")
            self.rbf(t)
            a(f"v_rcp_f32 {vr(t)}, {vr(t)}\ns_nop 0")
        else:
            a(f"v_add_f32 {vr(t)}, {f32(1e-5)}, {vr(t)}")
            a(f"v_rsq_f32 {vr(t)}, {vr(t)}\ns_nop 0")
        a(f"v_mul_f32 {vr(t+2)}, -{vr(t+2)}, {vr(t)}")
        for i in range(18):
            a(f"v_pk_fma_f32 {p(F+2*i)}, {p(F+2*i)}, {p(t)}, {p(t+2)} op_sel_hi:[1,0,0]")
        for i in range(18):
            a(f"v_cvt_pk_bf16_f32 {vr(out+i)}, {vr(F+2*i)}, {vr(F+2*i+1)}")

    def ln_packed(self, X, F, out, t):
        a = self.a
        a(f"v_mov_b32 {vr(t+6)}, 0x3f803f80")
        for k in range(4): a(f"v_mov_b32 {vr(t+k)}, 0")
        for i in range(18):
            a(f"v_dot2_f32_bf16 {vr(t+2*(i&1))}, {vr(X+i)}, {vr(t+6)}, {vr(t+2*(i&1))}")
            a(f"v_dot2_f32_bf16 {vr(t+1+2*(i&1))}, {vr(X+i)}, {vr(X+i)}, {vr(t+1+2*(i&1))}")
        for i in range(2):
            a(f"v_lshlrev_b32 {vr(F+2*i)}, 16, {vr(X+i)}\nv_and_b32 {vr(F+2*i+1)}, 0xffff0000, {vr(X+i)}")
        a(f"v_pk_add_f32 {vr(t,2)}, {vr(t,2)}, {vr(t+2,2)}")
        un = []
        for i in range(2, 18):
            un.append(f"v_lshlrev_b32 {vr(F+2*i)}, 16, {vr(X+i)}\nv_and_b32 {vr(F+2*i+1)}, 0xffff0000, {vr(X+i)}")
        sv = (a.bg, a.every, a.cnt, a.skip)
        n0 = len(a.lines)
        a.bg, a.every = [], 0
        self.ln_tail(F, out, t, True)
        tail = a.lines[n0:]
        del a.lines[n0:]
        a.bg, a.every, a.cnt, a.skip = sv
        k = next(i for i, l in enumerate(tail) if "v_pk_fma" in l)
        for i, l in enumerate(tail[:k]):
            if "s_nop" in l and un: continue_nop = True
            a(l)
            if un and not l.strip().startswith("s_nop"): a(un.pop(0))
        while un: a(un.pop(0))
        for l in tail[k:]: a(l)

    def ln_f32(self, F, out, t):
        a = self.a
        p = lambda r: vr(r, 2)
        a(f"v_pk_add_f32 {p(t)}, {p(F)}, {p(F+2)}\nv_pk_add_f32 {p(t+2)}, {p(F+4)}, {p(F+6)}")
        a(f"v_pk_mul_f32 {p(t+4)}, {p(F)}, {p(F)}\nv_pk_mul_f32 {p(t+6)}, {p(F+2)}, {p(F+2)}")
        for i in range(2, 18):
            if i >= 4: a(f"v_pk_add_f32 {p(t+2*(i&1))}, {p(t+2*(i&1))}, {p(F+2*i)}")
            a(f"v_pk_fma_f32 {p(t+4+2*(i&1))}, {p(F+2*i)}, {p(F+2*i)}, {p(t+4+2*(i&1))}")
        a(f"v_pk_add_f32 {p(t)}, {p(t)}, {p(t+2)}\nv_pk_add_f32 {p(t+4)}, {p(t+4)}, {p(t+6)}")
        a(f"v_add_f32 {vr(t)}, {vr(t)}, {vr(t+1)}\nv_add_f32 {vr(t+1)}, {vr(t+4)}, {vr(t+5)}")
        self.ln_tail(F, out, t, False)

    def gemm_u(self, AF, rf, Bs, ACC, afr, bfr, post, vm_items=(), other=(), lead=7, vm0=0, vmsp=4, at={}, lastk=0):
        a = self.a
        units = [(0, j) for j in range(4)] + [(1, j) for j in range(4)] + [(2, 0)]
        seq, dl = [], {}
        bs = lambda j, o_, n: self.rg((Bs[j][0], Bs[j][1] + o_), n)
        rem = lambda u: (f"v_mfma_f32_16x16x16_bf16 {vr(ACC+4*u,4)}, {rf(AF+18*units[u][0]+16,2)}, {bs(units[u][1],16,2)}, {vr(ACC+4*u,4)}", u)
        A = [afr(t) for t in range(3)]
        Bf = [bfr(j) for j in range(4)]

        def use(t, j, s, k):
            for x in (A[t][2 * s:2 * s + 2] if s < 4 else A[t][8:]) + ([Bf[j][s]] if Bf[j] else []): dl.setdefault(x, k)
        for g in range(4):
            for s in range(4):
                for u in range(3 * g, 3 * g + 3) if g < 3 else []:
                    t, j = units[u]
                    d = vr(ACC + 4 * u, 4)
                    use(t, j, s, len(seq))
                    seq.append((f"v_mfma_f32_16x16x32_bf16 {d}, {rf(AF+18*t+4*s,4)}, {bs(j,4*s,4)}, {'0' if s == 0 else d}", None))
                if s == 0 and g > 0:
                    for u in range(3 * g - 3, 3 * g):
                        use(units[u][0], units[u][1], 4, len(seq)); seq.append(rem(u))
        last = seq[-3:]; seq = seq[:-3]
        ds = sorted(dl.items(), key=lambda e: e[1]) + [(x, 99) for x in other]
        vm_items = list(vm_items)
        lastvm = vm0 - vmsp
        order, ready, q, done = [], [], [], 0

        def issue():
            x, k_ = ds.pop(0); a(x); order.append(k_)

        def wait(k):
            nonlocal done
            idx = [i_ for i_, k_ in enumerate(order) if k_ <= k]
            if idx and max(idx) + 1 > done:
                a(f"s_waitcnt lgkmcnt({min(15, len(order) - 1 - max(idx))})"); done = max(idx) + 1
        while ds and ds[0][1] < 6: issue()
        for k, (m, fin) in enumerate(seq):
            assert not ds or ds[0][1] > k, (k, ds[0])
            wait(k)
            a(m)
            for u_, kk in list(ready):
                if k - kk >= 4: q += post(u_); ready.remove((u_, kk))
            if fin is not None: ready.append((fin, k))
            if k in at: at[k]()
            due = sum(1 for x, k_ in ds if k_ <= k + lead)
            if due == 0 and vm_items and k >= lastvm + vmsp and (len(vm_items) > 1 or k >= lastk):
                a(vm_items.pop(0)); lastvm = k; continue
            cap = 2
            for _ in range(min(due, 3)): issue(); cap -= 1
            if cap == 2:
                if q and q[0].startswith("ds_"): a(q.pop(0)); order.append(99); cap -= 1
                elif ds: issue(); cap -= 1
            while cap > 0 and q and not q[0].startswith("ds_"):
                a(q.pop(0)); cap -= 1
        assert not ready
        while ds: issue()
        wait(98)
        for x in vm_items: a(x)
        for x in q[:4]: a(x)
        a(f"s_nop {max(0, 4 - len(q[:4]))}")
        for m, _ in last: a(m)
        for x in q[4:]: a(x)
        a(f"s_nop {max(0, 6 - len(q[4:]))}")
        for u in range(6, 9):
            for x in post(u): a(x)

    def gemm(self, reads, B, ACC, AF, late=(), at={}, per=2):
        a = self.a
        buf = lambda T: 18 * (T % 6)
        ng = 3 * (4 * per + 1)

        def grp(g):
            r = [reads(T, buf(T)) for T in range(3 * g, 3 * g + 3)]
            return [r[t][per * s + u] for s in range(4) for t in range(3) for u in range(per)] + [r[t][4 * per] for t in range(3)]
        rem = lambda T: f"v_mfma_f32_16x16x16_bf16 {vr(ACC+4*T,4)}, {ar(buf(T)+16,2)}, {vr(B+16,2)}, {vr(ACC+4*T,4)}"
        pend = grp(0) + grp(1) + grp(2) + list(late)
        issued = k = 0

        def issue(n):
            nonlocal issued
            for _ in range(n):
                if issued < len(pend): a(pend[issued]); issued += 1

        def mf(x):
            nonlocal k
            a(x); issue(per if per == 2 else (2 if k % 4 == 0 else 1))
            if k in at: a(at[k])
            k += 1
        issue(self.o.get('look', 12) if per == 2 else self.o.get('look1', 8))
        for g in range(3):
            for s in range(4):
                need = ng * g + 3 * per * (s + 1)
                a(f"s_waitcnt lgkmcnt({min(15, issued - need)})")
                for T in range(3 * g, 3 * g + 3):
                    d = vr(ACC + 4 * T, 4)
                    mf(f"v_mfma_f32_16x16x32_bf16 {d}, {ar(buf(T)+4*s,4)}, {vr(B+4*s,4)}, {'0' if s == 0 else d}")
                if s == 0 and g > 0:
                    for T in range(3 * g - 3, 3 * g): mf(rem(T))
                if g == 1 and s == 0: assert issued <= 2 * ng + 6 * per, "group 2 overwrites group 0 too early"
        issue(99)
        a(f"s_waitcnt lgkmcnt({len(late)})\ns_nop 2")
        for T in range(6, 9): a(rem(T))
        a("s_nop 7")

    def tr_reads(self, ad, rf=ar):
        def f(T, dst):
            out = []
            for s in range(4):
                for u in range(2):
                    out.append(f"ds_read_b64_tr_b16 {rf(dst+4*s+2*u,2)}, {vr(ad+u)} offset:{9216*s + 32*T}")
            out.append(f"ds_read_b64_tr_b16 {rf(dst+16,2)}, {vr(ad+2)} offset:{36864 + 32*T}")
            return out
        return f

    def row_reads(self, ad, sw=None):
        def f(T, dst):
            r = ad if sw is None or T == 8 else sw[T & 1]
            out = []
            for s in range(4):
                for u in range(2):
                    out.append(f"ds_read_b64 {ar(dst+4*s+2*u,2)}, {vr(r)} offset:{4864*T + 64*s + 32*u}")
            out.append(f"ds_read_b64 {ar(dst+16,2)}, {vr(r)} offset:{4864*T + 256}")
            return out
        return f

    def dma_rows(self, jobs, cpr, rstride, vo, vc, n_first, first_waves, lab):
        a = self.a
        mul = {18: 3641, 19: 3450}[cpr]
        dr, dc = 256 // cpr, 256 % cpr
        a(f"s_lshl_b32 {sr(S_T)}, {sr(S_W)}, 6")
        a(f"v_add_u32 {vr(vc)}, {sr(S_T)}, v0")
        a(f"v_mul_u32_u24 {vr(vo)}, {mul}, {vr(vc)}")
        a(f"v_lshrrev_b32 {vr(vo)}, 16, {vr(vo)}")
        a(f"v_mul_u32_u24 {vr(vc+1)}, {cpr}, {vr(vo)}")
        a(f"v_sub_u32 {vr(vc)}, {vr(vc)}, {vr(vc+1)}")
        a(f"v_mul_u32_u24 {vr(vo)}, {rstride}, {vr(vo)}")
        a(f"v_lshl_add_u32 {vr(vo)}, {vr(vc)}, 4, {vr(vo)}")
        a(f"s_lshl_b32 {sr(S_T)}, {sr(S_W)}, 10")
        a(f"v_mov_b32 {vr(vc+1)}, {rstride - 16*cpr}")
        for k in range(n_first):
            if k == n_first - 1:
                a(f"s_cmp_ge_u32 {sr(S_W)}, {first_waves}\ns_cbranch_scc1 {lab}")
            for srd, so, lb in jobs:
                a(f"s_add_u32 m0, {sr(S_T)}, {lb + 4096*k}")
                a("s_nop 0")
                a(f"buffer_load_dwordx4 {vr(vo)}, {sr(srd,4)}, {so} offen lds")
            if k < n_first - 1:
                a(f"v_add_u32 {vr(vc)}, {dc}, {vr(vc)}")
                a(f"v_cmp_le_u32 vcc, {cpr}, {vr(vc)}")
                a(f"v_add_u32 {vr(vo)}, {dr*rstride + 16*dc}, {vr(vo)}")
                a(f"v_subrev_u32 {vr(vc+2)}, {cpr}, {vr(vc)}")
                a(f"v_cndmask_b32 {vr(vc)}, {vr(vc)}, {vr(vc+2)}, vcc")
                a(f"v_cndmask_b32 {vr(vc+2)}, 0, {vr(vc+1)}, vcc")
                a(f"v_add_u32 {vr(vo)}, {vr(vo)}, {vr(vc+2)}")
        a.label(lab)

    def voff_table(self, dst, cpr, rstride, vc, step=256):
        a = self.a
        mul = {18: 29128, 19: 27595}[cpr]
        n = len(dst)
        a(f"s_mov_b32 {sr(S_T)}, {rstride - 16*cpr}")
        a(f"v_mul_u32_u24 {vr(dst[0])}, {mul}, {vr(vc)}")
        for k in range(1, n): a(f"v_add_u32 {vr(dst[k])}, {(step*k % cpr)*mul}, {vr(dst[0])}")
        for k in range(n): a(f"v_lshrrev_b32 {vr(dst[k])}, 19, {vr(dst[k])}")
        for k in range(n): a(f"v_mad_i32_i24 {vr(dst[k])}, {vr(dst[k])}, {sr(S_T)}, {vr(vc+1)}")

    def dma_lin(self, srd, soff, lb, v16, lab):
        a = self.a
        a(f"s_lshl_b32 {sr(S_T)}, {sr(S_W)}, 10")
        for k in range(11):
            if k == 10:
                a(f"s_cmp_ge_u32 {sr(S_W)}, 1\ns_cbranch_scc1 {lab}")
            a(f"s_add_u32 m0, {sr(S_T)}, {lb + 4096*k}")
            a(f"s_add_u32 {sr(S_T+1)}, {sr(S_T)}, {soff + 4096*k}")
            a(f"buffer_load_dwordx4 {vr(v16)}, {sr(srd,4)}, {sr(S_T+1)} offen lds")
        a.label(lab)

    def tr_addr(self, ad, base, swapped, t):
        a = self.a
        a(f"v_lshrrev_b32 {vr(t)}, 2, v0")
        a(f"v_mul_u32_u24 {vr(t)}, 288, {vr(t)}")
        a(f"v_and_b32 {vr(t+1)}, 3, v0")
        a(f"v_lshl_add_u32 {vr(t)}, {vr(t+1)}, 3, {vr(t)}")
        a(f"v_add_u32 {vr(ad+2)}, {base}, {vr(t)}")
        if swapped:
            a(f"v_bfe_u32 {vr(t)}, v0, 4, 1")
            a(f"v_mul_u32_u24 {vr(t)}, {16*288}, {vr(t)}")
            a(f"v_add_u32 {vr(ad)}, {vr(ad+2)}, {vr(t)}")
            a(f"v_sub_u32 {vr(ad+1)}, {vr(ad+2)}, {vr(t)}")
            a(f"v_add_u32 {vr(ad+1)}, {16*288}, {vr(ad+1)}")
        else:
            a(f"v_mov_b32 {vr(ad)}, {vr(ad+2)}")
            a(f"v_add_u32 {vr(ad+1)}, {16*288}, {vr(ad+2)}")

    def row_addr(self, ad, base, t):
        a = self.a
        a(f"v_and_b32 {vr(t)}, 15, v0")
        a(f"v_mul_u32_u24 {vr(t)}, 304, {vr(t)}")
        a(f"v_lshrrev_b32 {vr(t+1)}, 4, v0")
        a(f"v_lshl_add_u32 {vr(t)}, {vr(t+1)}, 3, {vr(t)}")
        a(f"v_add_u32 {vr(ad)}, {base}, {vr(t)}")

    def store_block(self, src, v16, v8, srd, soff, soff2, flags=""):
        a = self.a
        for s in range(4):
            a(f"buffer_store_dwordx4 {vr(src+4*s,4)}, {vr(v16)}, {sr(srd,4)}, {sr(soff)} offen offset:{1024*s} {flags}")
        a(f"buffer_store_dwordx2 {vr(src+16,2)}, {vr(v8)}, {sr(srd,4)}, {sr(soff2)} offen {flags}")

    def entry(self):
        a = self.a
        xm2 = self.o.get("xm", 0) == 2
        kernel_header(a, NAME)
        a(f"s_load_dwordx16 s[56:71], s[0:1], 0")
        a(f"s_load_dwordx8 s[72:79], s[0:1], 64")
        a(f"s_getpc_b64 {sr(S_W1,2)}")
        a.label("L_pf")
        a(f"""s_mov_b32 {sr(S_W1+2)}, L_dummy-L_pf
        s_mov_b32 {sr(S_W1+3)}, 0x20000
        v_lshlrev_b32 v2, 4, v0
        buffer_load_dwordx4 v[252:255], v2, {sr(S_W1,4)}, 0 offen
        s_lshl_b32 s3, s2, 9
        s_and_b32 s3, s3, 0x7000
        buffer_load_dwordx4 v[252:255], v2, {sr(S_W1,4)}, s3 offen
        v_lshrrev_b32 v1, 6, v0
        {"s_bfe_u32 s6, s2, 0x10003" if xm2 else f"s_sub_u32 s2, s2, {NH}"}
        v_readfirstlane_b32 {sr(S_W)}, v1
        s_memrealtime s[4:5]""")
        if xm2:
            a(f"""s_and_b32 s7, s2, 7
            s_lshl1_add_u32 s7, s7, s6
            s_mov_b32 s6, s2
            s_andn2_b32 s2, s2, 15
            s_or_b32 s2, s2, s7""")
        a(f"""s_cmp_ge_u32 s2, {NWG - NH}
        s_cbranch_scc1 L_wfuse""")
        if self.o.get("late"):
            m_, v_, n_ = self.o["late"]
            a(f"""s_and_b32 s3, s2, {m_}
            s_cmp_lg_u32 s3, {v_}
            s_cbranch_scc1 L_nl
            s_memrealtime s[4:5]
            s_waitcnt lgkmcnt(0)
            s_add_u32 s6, s4, {n_}
            L_lt:
            s_memrealtime s[4:5]
            s_waitcnt lgkmcnt(0)
            s_sub_u32 s7, s6, s4
            s_cmp_gt_i32 s7, 0
            s_cbranch_scc1 L_lt
            L_nl:""")
        if self.o.get("stamps"):
            a("s_memrealtime s[100:101]" if not self.o.get("cyc") else "s_memtime s[100:101]")
        self.mp = 2

    def vm_since(self, mark):
        return sum(1 for l in self.a.lines[mark:] if l.strip().startswith("buffer_"))

    def phase_a(self):
        a, o = self.a, self.o
        XR, XF, XA, ACC, G_, PK = 16, 34, 146, 110, 16, 164
        B4, XD = 16, 88
        VS, VSW, VR4, MXA, MXR, L8, TRU, TRQ, TRQ8, RK, TM = 200, 204, 208, 212, 213, 214, 215, 218, 221, 224, 228
        VK, VU = list(range(182, 193)), list(range(193, 200)) + list(range(104, 108))
        AQ1 = 200
        t0, t1, t2 = 250, 251, 227
        T = S_T
        WV, W10, UOFF, M1, PUB, M3 = 72, 70, 71, 69, 68, 65
        PH = 2
        if o.get("xm", 0) == 2: PH = S_PH
        if o.get("xm", 0) == 1:
            PH = S_PH
            a(f"""s_mov_b32 {sr(PH)}, s2
            s_bfe_u32 {sr(T)}, s2, 0x10003
            s_and_b32 {sr(T+1)}, s2, 7
            s_lshl1_add_u32 {sr(T)}, {sr(T+1)}, {sr(T)}
            s_and_b32 {sr(T+1)}, s2, 0xf0
            s_or_b32 {sr(T)}, {sr(T)}, {sr(T+1)}
            s_add_u32 s2, s2, 4
            s_cmp_lt_u32 {sr(T)}, 248
            s_cselect_b32 s2, {sr(T)}, s2""")
        a(f"""v_and_b32 v0, 63, v0
        s_bfe_u32 {sr(S_B)}, s2, 0x10001
        s_lshr_b32 {sr(S_QB)}, s2, 2
        s_lshr_b32 {sr(T)}, {sr(S_W)}, 1
        s_xor_b32 {sr(T)}, {sr(T)}, s2
        s_andn2_b32 {sr(T)}, 1, {sr(T)}
        s_lshl1_add_u32 {sr(T+3)}, {sr(S_QB)}, {sr(T)}
        s_mul_i32 {sr(T)}, {sr(S_B)}, {NT}
        s_add_u32 {sr(T+1)}, {sr(T+3)}, {sr(T)}
        s_and_b32 {sr(T+2)}, {sr(S_W)}, 1
        s_lshl1_add_u32 {sr(T+2)}, {sr(T+1)}, {sr(T+2)}
        v_lshlrev_b32 {vr(V_DMA)}, 4, v0
        s_mul_i32 {sr(T+1)}, {sr(T+2)}, {16*288}
        s_mul_i32 {sr(S_LB)}, {sr(S_W)}, {BLK}
        s_add_u32 m0, {sr(S_LB)}, {L_XS}
        s_mov_b32 {sr(S_X+2)}, 2304000
        s_mov_b32 {sr(S_X+3)}, {sr(S_W1+3)}
        s_add_u32 {sr(S_CNT)}, {sr(T+1)}, 4096
        s_waitcnt lgkmcnt(0)
        s_mov_b64 {sr(S_X,2)}, s[56:57]""")
        for k in range(4): a(f"buffer_load_dwordx4 {vr(V_DMA)}, {sr(S_X,4)}, {sr(T+1)} offen offset:{1024*k} lds")
        a(f"s_add_u32 m0, {sr(S_LB)}, {L_XS + 4096}\ns_mov_b32 exec_hi, 0\nbuffer_load_dwordx4 {vr(V_DMA)}, {sr(S_X,4)}, {sr(S_CNT)} offen lds\ns_mov_b32 exec_hi, -1")
        mx = len(a.lines)
        a(f"""s_add_u32 {sr(S_LB)}, {sr(S_LB)}, {L_XS}
        s_and_b32 {sr(S_H)}, s2, 1
        s_lshl1_add_u32 {sr(S_TOWN)}, {sr(S_QB)}, {sr(S_H)}
        s_cmp_lt_u32 {sr(S_TOWN)}, {NT}
        s_cselect_b32 {sr(S_VAL)}, 1, 0
        s_add_u32 {sr(S_TOWN)}, {sr(S_TOWN)}, {sr(T)}""")
        SQ, SK, SU = S_W2, S_W1, S_XA
        self.srd(SU, 66, 67, 82944)
        self.srd(SQ, 58, 59, 41472)
        self.srd(SK, 60, 61, 41472)
        a(f"s_lshr_b32 {sr(T)}, {sr(PH)}, 3\ns_lshl_b32 {sr(T)}, {sr(T)}, 12\ns_lshl_b32 {sr(W10)}, {sr(S_W)}, 10\ns_add_u32 {sr(T)}, {sr(T)}, {sr(W10)}")
        a(f"buffer_load_dwordx4 v[252:255], {vr(V_DMA)}, {sr(SU,4)}, {sr(T)} offen")
        for srd_, rot in ((SQ, 82), (SK, 41)):
            a(f"s_add_u32 {sr(T+1)}, {sr(T)}, {(128 - rot) * 1024}\ns_and_b32 {sr(T+1)}, {sr(T+1)}, {127 * 1024}")
            a(f"buffer_load_dwordx4 v[252:255], {vr(V_DMA)}, {sr(srd_,4)}, {sr(T+1)} offen")
        self.srd(S_OUT, 74, 75, 2304000)
        self.srd(S_DB, 76, 77, 256)
        self.srd(S_WS, 78, 79, WS_END)
        def tlb():
            a(f"v_lshlrev_b32 v249, 21, v0")
            for ch in o.get("tlbw", "wdo"): a(f"buffer_load_dword v252, v249, {sr(dict(w=S_WS, d=S_DB, o=S_OUT)[ch],4)}, 0 offen")
        if o.get("tlb", 0) == 1: tlb()
        if o.get("tlb", 3) == 3:
            a(f"""s_bfe_u32 {sr(T)}, {sr(PH)}, 0x30003
            s_lshl_b32 {sr(T)}, {sr(T)}, 21
            v_mov_b32 v249, 0
            s_cmp_lt_u32 {sr(T)}, {5 << 21}
            s_cbranch_scc0 L_tl1
            buffer_load_dword v252, v249, {sr(S_WS,4)}, {sr(T)} offen
            s_branch L_tl3
            L_tl1:
            s_sub_u32 {sr(T)}, {sr(T)}, {5 << 21}
            s_cmp_lt_u32 {sr(T)}, {2 << 21}
            s_cbranch_scc0 L_tl2
            buffer_load_dword v252, v249, {sr(S_OUT,4)}, {sr(T)} offen
            s_branch L_tl3
            L_tl2:
            s_or_b32 s4, s4, 1
            v_lshlrev_b32 v249, 8, v0
            v_mov_b32 v250, s4
            s_lshl2_add_u32 s5, {sr(PH)}, {sr(S_W)}
            s_cmp_eq_u32 s5, {56 * 4}
            s_cbranch_scc0 L_tl4
            buffer_store_dword v250, v249, {sr(S_DB,4)}, 0 offen sc1
            s_branch L_tl3
            L_tl4:
            buffer_load_dword v252, v249, {sr(S_DB,4)}, 0 offen offset:128
            L_tl3:""")
            self.vm_adj = -3
        if o.get("tl4"):
            a(f"""s_mul_i32 {sr(T)}, {sr(S_TOWN)}, {TILE}
            v_lshlrev_b32 v249, 12, v0
            v_add_u32 v249, {sr(T)}, v249
            s_mov_b64 exec, 7
            buffer_load_dword v252, v249, {sr(S_WS,4)}, 0 offen
            s_mov_b64 exec, -1""")
        if o.get("stamps"): a(f"s_mov_b64 {sr(S_ST,2)}, s[100:101]"); self.stnames.append("start"); self.nst = 1
        self.stamp("xiss")
        a(f"""s_cmp_lt_u32 {sr(T+3)}, {NT}
        s_cselect_b32 {sr(WV)}, 1, 0
        s_mov_b32 {sr(WV+1)}, {sr(T+2)}
        s_mul_i32 {sr(UOFF)}, {sr(S_H)}, 288
        s_cmp_eq_u32 {sr(S_W)}, 0
        s_cselect_b32 {sr(M1)}, 0, {L_DUMP}
        s_cmp_lt_u32 {sr(S_W)}, 3
        s_cselect_b32 {sr(M3)}, {sr(W10)}, {L_DUMP}""")
        half = lambda g_: "s_mov_b32 exec_hi, 0\n" + g_ + "\ns_mov_b32 exec_hi, -1"
        gu = [f"s_add_u32 m0, {sr(W10 if k < 10 else M1)}, {L_WU + 4096*k}\ns_add_u32 {sr(S_CNT)}, {sr(UOFF)}, {4096*k + 288*(256*k//18)}\nbuffer_load_dwordx4 {vr(VU[k])}, {sr(SU,4)}, {sr(S_CNT)} offen lds" for k in range(11)]
        gu[10] = half(gu[10])
        gq = [f"s_add_u32 m0, {sr(W10 if k < 10 else M1)}, {L_WQ + 4096*k}\ns_add_u32 {sr(S_CNT)}, {sr(W10)}, {4096*k}\nbuffer_load_dwordx4 {vr(V_DMA)}, {sr(SQ,4)}, {sr(S_CNT)} offen lds" for k in range(11)]
        gq[10] = half(gq[10])
        gk = [f"s_add_u32 m0, {sr(W10 if k < 10 else M3)}, {L_WK + 4096*k}\ns_mov_b32 {sr(S_CNT)}, {4096*k - 16*(256*k//19)}\nbuffer_load_dwordx4 {vr(VK[k])}, {sr(SK,4)}, {sr(S_CNT)} offen lds" for k in range(11)]
        a(f"s_lshl_b32 {sr(T)}, {sr(S_W)}, 6\nv_add_u32 {vr(t0)}, {sr(T)}, v0\nv_lshlrev_b32 {vr(t1)}, 4, {vr(t0)}")
        self.voff_table(VU, 18, 576, t0)
        npre = o.get("npre", 3)
        a.bg, a.every, a.cnt = gu[:npre], o.get("evpre", 40), 0
        self.voff_table(VK, 19, 288, t0)
        xa0, xa1, xa2 = TM, TM + 1, TM + 2
        a(f"""v_and_b32 {vr(t0)}, 15, v0
        v_lshrrev_b32 {vr(t1)}, 5, v0
        v_lshlrev_b32 {vr(t1)}, 3, {vr(t1)}
        v_xor_b32 {vr(t1)}, {vr(t0)}, {vr(t1)}
        v_lshlrev_b32 {vr(t1)}, 4, {vr(t1)}
        v_lshrrev_b32 {vr(t2)}, 4, v0
        v_lshl_add_u32 {vr(V_KA)}, {vr(t2)}, 9, {vr(t1)}
        v_lshrrev_b32 {vr(t1)}, 3, {vr(t0)}
        v_lshlrev_b32 {vr(t1)}, 1, {vr(t1)}
        v_xor_b32 {vr(t1)}, {vr(t2)}, {vr(t1)}
        v_lshl_add_u32 {vr(t1)}, {vr(t0)}, 2, {vr(t1)}
        v_lshlrev_b32 {vr(V_KA+1)}, 3, {vr(t1)}
        v_lshlrev_b32 {vr(L8)}, 3, v0
        v_lshlrev_b32 {vr(MXR)}, 4, {vr(t0)}
        v_add_u32 {vr(MXR)}, {L_MX}, {vr(MXR)}
        v_add_u32 {vr(MXA)}, {sr(S_W)}, {vr(t2)}
        v_and_b32 {vr(MXA)}, 3, {vr(MXA)}
        v_lshl_add_u32 {vr(MXA)}, {vr(MXA)}, 8, {vr(MXR)}
        s_lshl_b32 {sr(T)}, {sr(S_W)}, 2
        v_add_u32 {vr(MXA)}, {sr(T)}, {vr(MXA)}
        v_mul_u32_u24 {vr(xa2)}, 288, {vr(t0)}
        v_lshl_add_u32 {vr(xa2)}, {vr(t2)}, 3, {vr(xa2)}
        v_add_u32 {vr(xa2)}, {sr(S_LB)}, {vr(xa2)}
        v_and_b32 {vr(t1)}, 1, {vr(t2)}
        v_lshlrev_b32 {vr(t1)}, 5, {vr(t1)}
        v_add_u32 {vr(xa0)}, {vr(xa2)}, {vr(t1)}
        v_xor_b32 {vr(t1)}, 32, {vr(t1)}
        v_add_u32 {vr(xa1)}, {vr(xa2)}, {vr(t1)}
        s_mul_i32 {sr(S_LB)}, {sr(S_W)}, {TILE}
        v_lshrrev_b32 {vr(t0)}, 2, v0
        v_bfe_u32 {vr(t1)}, v0, 1, 1
        v_lshlrev_b32 {vr(t1)}, 3, {vr(t1)}
        v_xor_b32 {vr(t1)}, {vr(t0)}, {vr(t1)}
        v_lshlrev_b32 {vr(t1)}, 4, {vr(t1)}
        v_and_b32 {vr(t2)}, 3, v0
        v_lshl_add_u32 {vr(t1)}, {vr(t2)}, 9, {vr(t1)}
        v_and_b32 {vr(V_VA)}, 1, v0
        v_lshl_add_u32 {vr(t1)}, {vr(V_VA)}, 3, {vr(t1)}
        s_and_b32 {sr(T)}, {sr(S_W)}, 1
        s_lshl_b32 {sr(T)}, {sr(T)}, 12
        s_add_u32 {sr(T+1)}, {sr(T)}, {sr(S_LB)}
        s_xor_b32 {sr(T)}, {sr(T)}, 4096
        s_add_u32 {sr(T)}, {sr(T)}, {sr(S_LB)}
        v_add_u32 {vr(V_VA)}, {sr(T)}, {vr(t1)}
        v_add_u32 {vr(V_VB)}, {sr(T+1)}, {vr(t1)}
        v_xor_b32 {vr(V_VA+1)}, 8, {vr(V_VA)}
        v_xor_b32 {vr(V_VB+1)}, 8, {vr(V_VB)}
        v_lshrrev_b32 {vr(t1)}, 5, v0
        v_lshlrev_b32 {vr(t1)}, 1, {vr(t1)}
        v_xor_b32 {vr(t1)}, {vr(t2)}, {vr(t1)}
        v_lshl_add_u32 {vr(t1)}, {vr(t0)}, 2, {vr(t1)}
        v_lshlrev_b32 {vr(t1)}, 3, {vr(t1)}
        v_add_u32 {vr(V_VR)}, {sr(S_LB)}, {vr(t1)}
        v_add_u32 {vr(V_DMA+1)}, 4096, {vr(V_DMA)}
        v_add_u32 {vr(V_DMA+2)}, 8192, {vr(V_DMA)}""")
        self.tr_addr(TRU, L_WU, True, t0)
        a(f"s_lshl_b32 {sr(T)}, {sr(S_W)}, 6\ns_add_u32 {sr(T)}, {sr(T)}, {L_WQ - L_WU}")
        for k in range(3):
            a(f"v_add_u32 {vr(TRQ+k)}, {sr(T)}, {vr(TRU+k)}\nv_add_u32 {vr(TRQ8+k)}, {L_WQ - L_WU + 256}, {vr(TRU+k)}")
        self.row_addr(RK + 2, L_WK + 8 * 4864, t0)
        a(f"""s_mul_i32 {sr(T)}, {sr(S_W)}, {2*4864}
        s_sub_u32 {sr(T)}, {sr(T)}, {8*4864}
        v_add_u32 {vr(t1)}, {sr(T)}, {vr(RK+2)}
        v_bfe_u32 {vr(t0)}, v0, 2, 1
        v_mul_u32_u24 {vr(t0)}, 4864, {vr(t0)}
        v_add_u32 {vr(RK)}, {vr(t1)}, {vr(t0)}
        v_sub_u32 {vr(RK+1)}, {vr(t1)}, {vr(t0)}""")
        for j in range(4):
            a(f"""s_add_u32 {sr(T)}, {sr(S_W)}, {j}
            s_and_b32 {sr(T)}, {sr(T)}, 3
            s_lshl_b32 {sr(T+1)}, {sr(T)}, 12
            s_add_u32 {sr(T+1)}, {sr(T+1)}, {L_XX}
            v_add_u32 {vr(VS+j)}, {sr(T+1)}, {vr(V_DMA)}
            s_lshl_b32 {sr(T+1)}, {sr(T)}, 9
            s_add_u32 {sr(T+1)}, {sr(T+1)}, {L_XR}
            v_add_u32 {vr(VR4+j)}, {sr(T+1)}, {vr(L8)}
            v_add_u32 {vr(VSW+j)}, {sr(W10)}, {vr(VS+j)}""")
        a(f"""s_sub_u32 {sr(T+2)}, 63, {sr(S_H)}
        s_add_u32 {sr(T+3)}, {sr(S_W)}, 60
        s_cmp_ge_u32 {sr(T+3)}, {sr(T+2)}
        s_cselect_b32 {sr(S_DUM)}, 4, 99
        s_mov_b32 {sr(S_REDO)}, 0
        s_mov_b32 {sr(S_TOFF)}, {sr(S_LB)}
        s_lshl_b32 {sr(PUB)}, {sr(S_TOWN)}, 8
        s_add_u32 {sr(PUB)}, {sr(PUB)}, {WS_F}
        s_and_b32 {sr(T)}, {sr(S_W)}, 1
        s_lshl_b32 {sr(T)}, {sr(T)}, 7
        s_add_u32 {sr(PUB)}, {sr(PUB)}, {sr(T)}
        s_lshr_b32 {sr(T)}, {sr(S_W)}, 1
        s_and_b32 {sr(T)}, {sr(T)}, {sr(S_VAL)}
        s_cmp_eq_u32 {sr(T)}, 1
        s_cselect_b32 {sr(PUB)}, {sr(PUB)}, 0x40000000
        s_lshl_b32 {sr(S_FB)}, s2, 8
        s_add_u32 {sr(S_FB)}, {sr(S_FB)}, {WS_F + 250*256}
        s_mul_i32 {sr(T)}, {sr(S_H)}, 1792
        s_sub_u32 {sr(T)}, {sr(T)}, 768
        s_mul_i32 {sr(T+1)}, {sr(S_H)}, 62
        s_cmp_eq_u32 {sr(S_QB)}, {sr(T+1)}
        s_cselect_b32 {sr(T)}, 0, {sr(T)}
        v_mov_b32 {vr(self.VPL)}, 0x40000000
        s_xor_b32 {sr(T+1)}, {sr(S_FB)}, 256
        s_add_u32 {sr(T)}, {sr(T)}, {sr(S_FB)}
        v_writelane_b32 {vr(self.VPL)}, {sr(S_FB)}, 0
        v_writelane_b32 {vr(self.VPL)}, {sr(T+1)}, 1
        v_writelane_b32 {vr(self.VPL)}, {sr(T)}, 2
        s_mov_b32 {sr(T)}, {WS_F + 502*256}
        s_mov_b32 {sr(T+1)}, {WS_F + 503*256}
        v_writelane_b32 {vr(self.VPL)}, {sr(T)}, 3
        v_writelane_b32 {vr(self.VPL)}, {sr(T+1)}, 4
        s_sub_u32 {sr(S_FB)}, {sr(S_FB)}, {L_PC}""")
        if o.get("xm", 0):
            a(f"""s_getreg_b32 {sr(S_XC)}, hwreg(HW_REG_XCC_ID, 0, 4)
            s_xor_b32 {sr(T)}, s2, 1
            s_lshl_b32 {sr(T)}, {sr(T)}, 8
            s_add_u32 {sr(T)}, {sr(T)}, {WS_F + 250*256 + 4}
            v_writelane_b32 {vr(self.VPL)}, {sr(T)}, 5""")
        a.flush()
        if o.get("tlb", 0) == 2: tlb()
        self.stamp("pre")
        if o.get("es", 0) == 0: self.epi_setup()
        self.stamp("es")
        nx = self.vm_since(mx) + getattr(self, "vm_adj", 0)
        if o.get("touch", 1):
            a(f"""s_mov_b64 exec, 0
            s_cmp_eq_u32 {sr(S_W)}, 0
            s_cbranch_scc1 L_tr
            s_cmp_eq_u32 {sr(S_W)}, 1
            s_cbranch_scc1 L_t0
            s_cmp_eq_u32 {sr(S_W)}, 2
            s_cbranch_scc1 L_t1
            s_branch L_t2""")
            self.rare()
            a.raw(".p2align 12")
            a.label("L_tr")
            a("s_mov_b64 exec, -1")
        nlate = o.get("nlate", 0)
        for g_ in gu[npre:npre + nlate]: a(g_)
        a(f"s_waitcnt vmcnt({nx + nlate})")
        self.stamp("xarr")
        for s in range(4):
            a(f"ds_read_b64 {vr(XR+4*s,2)}, {vr(xa0)} offset:{64*s}\nds_read_b64 {vr(XR+4*s+2,2)}, {vr(xa1)} offset:{64*s}")
        a(f"ds_read_b64 {vr(XR+16,2)}, {vr(xa2)} offset:256")
        a(f"""s_and_b32 {sr(T)}, {sr(S_W)}, 1
        s_mul_i32 {sr(T+2)}, {sr(S_TOWN)}, {TILE}
        s_cmp_eq_u32 {sr(S_VAL)}, 1
        s_cselect_b32 {sr(T+2)}, {sr(T+2)}, 0x40000000
        s_lshl_b32 {sr(T+3)}, {sr(T)}, 8
        s_add_u32 {sr(T+3)}, {sr(T+3)}, {sr(T+2)}
        s_add_u32 {sr(T+4)}, {sr(T+3)}, 4096
        s_lshl_b32 {sr(T+5)}, {sr(T)}, 9
        s_add_u32 {sr(T+5)}, {sr(T+5)}, {sr(T+2)}
        s_add_u32 {sr(T+5)}, {sr(T+5)}, 8192
        s_waitcnt lgkmcnt(0)""")
        wl = gq + gk
        a.bg, a.every, a.cnt = gu[npre + nlate:] + [wl.pop(0) for _ in range(o.get("nql", 11))], o.get("evln", 5), 0
        self.ln_packed(XR, XF, XA, TM)
        a.flush()
        self.stamp("ln")
        a(f"s_cmp_lt_u32 {sr(S_W)}, 2\ns_cbranch_scc1 L_nop")
        for s in range(4):
            a(f"buffer_store_dwordx4 {vr(XA+4*s,4)}, {vr(V_KA)}, {sr(S_WS,4)}, {sr(T+3+(s>>1))} offen offset:{2048*(s&1)} {o.get('pfl', 'sc1')}")
        a(f"buffer_store_dwordx2 {vr(XA+16,2)}, {vr(V_KA+1)}, {sr(S_WS,4)}, {sr(T+5)} offen {o.get('pfl', 'sc1')}\ns_waitcnt vmcnt({5 + o.get('nql', 11)})\ns_branch L_bar1")
        a.label("L_nop")
        if o.get("touch", 1):
            a(f"s_mov_b64 exec, 0\ns_cmp_eq_u32 {sr(S_W)}, 0\ns_cbranch_scc1 L_t3\ns_branch L_t4")
            a.label("L_tr2")
            a("s_mov_b64 exec, -1")
        a(f"s_waitcnt vmcnt({o.get('nql', 11)})")
        a.label("L_bar1")
        self.stamp("pub")
        xw = [f"ds_write_b128 {vr(VS)}, {vr(XA+4*s,4)} offset:{1024*s}" for s in range(4)] + [f"ds_write_b64 {vr(VR4)}, {vr(XA+16,2)}"]
        self.stamp("tch")
        PA = 249
        a(f"""v_add_u32 {vr(V_KA)}, {sr(S_LB)}, {vr(V_KA)}
        v_add_u32 {vr(V_KA+1)}, {sr(S_LB)}, {vr(V_KA+1)}
        s_mul_i32 {sr(T)}, {sr(S_B)}, {NT}
        s_mul_i32 {sr(T+1)}, {sr(S_H)}, 63
        s_add_u32 {sr(T)}, {sr(T)}, {sr(T+1)}
        s_lshl_b32 {sr(T)}, {sr(T)}, 8
        s_add_u32 {sr(T)}, {sr(T)}, {WS_F}
        s_cmp_eq_u32 {sr(S_W)}, 0
        {"" if o.get("gatepos", 0) else f"s_cselect_b32 {sr(T)}, {sr(T)}, 0x40000000"}
        v_lshl_add_u32 {vr(PA)}, v0, 8, {sr(T)}
        {self.xa_srd()}
        s_waitcnt lgkmcnt(0)""")
        self.stamp("w1")
        a("s_barrier")
        self.stamp("bar1")
        m_b1 = len(a.lines)
        poll = lambda r: f"buffer_load_dword {vr(r)}, {vr(PA)}, {sr(S_WS,4)}, 0 offen sc1\nbuffer_load_dword {vr(r+2)}, {vr(PA)}, {sr(S_WS,4)}, 0 offen offset:128 sc1"

        def gate(lab, r, mask, younger):
            a(f"s_mov_b32 {sr(T+2)}, 0\ns_waitcnt vmcnt({younger})")
            a.label(lab)
            a(f"""v_cmp_ne_u32 vcc, {sr(S_N)}, {vr(r)}
            v_cmp_ne_u32 {sr(T+10,2)}, {sr(S_N)}, {vr(r+2)}
            s_add_u32 {sr(T+2)}, {sr(T+2)}, 1
            s_or_b64 vcc, vcc, {sr(T+10,2)}
            s_and_b64 vcc, vcc, {mask}
            s_cbranch_scc0 {lab}_ok
            s_sleep {o.get("slp", 4)}
            {poll(r)}
            s_waitcnt vmcnt(0)
            s_cmp_lt_u32 {sr(T+2)}, 0x40000
            s_cbranch_scc1 {lab}""")
            a.label(lab + "_ok")

        H, G_, UG, MS, CL = 16, 52, 208, 110, 104
        nup = o.get("nup", 5)
        at = {o.get("u0", 6) + o.get("usp", 6) * i: wl.pop(0) for i in range(nup)}
        for i in range(5): at[i] = xw[i]
        tagld = f"buffer_load_dword v253, off, {sr(S_DB,4)}, 0 sc1"
        tag1 = tagld.replace("sc1", o.get("tgf", "sc1")).strip()
        at[o.get("tgp", 5)] = tag1
        if o.get("es", 0) == 1:
            n_ = len(a.lines); self.epi_setup()
            el = [l.strip() for l in a.lines[n_:]]; del a.lines[n_:]
            for k in range(5, 42):
                if k in at: continue
                c_ = 0
                while el and c_ < o.get("esn", 2):
                    x = el.pop(0); at[k] = at.get(k, "") + x + "\n"; c_ += 1 if x.startswith("v_") else 0.5
            self.es_left = el
        self.gemm(self.tr_reads(TRU), XA, H, None, at=at)
        if o.get("es", 0) == 1:
            for x in self.es_left: a(x)
        self.stamp("up")
        p = lambda r: vr(r, 2)
        CC = TM
        c1 = -2.0 * math.sqrt(2.0 / math.pi) * LOG2E
        c2 = c1 * 0.044715
        gst = [[f"v_pk_mul_f32 {p(G_+2*i)}, {p(H+2*i)}, {p(H+2*i)}" for i in range(18)] +
               [f"v_pk_fma_f32 {p(G_+2*i)}, {p(G_+2*i)}, {p(CC+2)}, {p(CC)} op_sel_hi:[1,0,0]" for i in range(18)] +
               [f"v_pk_mul_f32 {p(G_+2*i)}, {p(G_+2*i)}, {p(H+2*i)}" for i in range(18)],
               [f"v_exp_f32 {vr(G_+i)}, {vr(G_+i)}" for i in range(36)],
               [f"v_pk_add_f32 {p(G_+2*i)}, {p(G_+2*i)}, {p(CC+4)} op_sel_hi:[1,0]" for i in range(18)],
               [f"v_rcp_f32 {vr(G_+i)}, {vr(G_+i)}" for i in range(36)],
               [f"v_pk_mul_f32 {p(H+2*i)}, {p(G_+2*i)}, {p(H+2*i)}" for i in range(18)]]
        gs = o.get("gs", 0)
        if gs:
            a(f"v_mov_b32 {vr(CC)}, {f32(c1)}\nv_mov_b32 {vr(CC+2)}, {f32(c2)}\nv_mov_b32 {vr(CC+4)}, 1.0")
            pre = [x for st_ in gst[:gs] for x in st_]
            ngw = o.get("ngw", 0)
            for i, x in enumerate(pre):
                a(x)
                if ngw and i % o.get("gwsp", 8) == 2 and wl: a(wl.pop(0)); ngw -= 1
            self.stamp("gea")
        last = lambda srd: max(i for i, l in enumerate(a.lines) if l.strip().startswith("buffer_load") and sr(srd, 4) in l) + 1
        assert not any(sr(SQ, 4) in x for x in wl)
        nq_ = self.vm_since(m_b1) + (5 if last(SQ) < m_b1 else 0) if last(SQ) < m_b1 else self.vm_since(last(SQ))
        a(f"s_waitcnt vmcnt({self.vm_since(m_b1) if last(SQ) < m_b1 else nq_}) lgkmcnt(0)" if False else "")
        if last(SQ) < m_b1:
            a(f"s_cmp_lt_u32 {sr(S_W)}, 2\ns_cbranch_scc1 L_bg0\ns_waitcnt vmcnt({5 + self.vm_since(m_b1)})\ns_branch L_bg1\nL_bg0:\ns_waitcnt vmcnt({self.vm_since(m_b1)})\nL_bg1:\ns_waitcnt lgkmcnt(0)\ns_barrier")
        else: a(f"s_waitcnt vmcnt({self.vm_since(last(SQ))}) lgkmcnt(0)\ns_barrier")

        def flag():
            n_ = self.vm_since(max(i for i, l in enumerate(a.lines) if l.strip() == tag1) + 1)
            a(f"v_lshrrev_b32 {vr(t0)}, 5, v0\nv_lshlrev_b32 {vr(t0)}, 30, {vr(t0)}\nv_lshl_add_u32 {vr(t0)}, v0, 2, {vr(t0)}\ns_mov_b32 {sr(T+5)}, 0\ns_waitcnt vmcnt({n_})")
            a.label("L_tag")
            a(f"""v_readfirstlane_b32 {sr(S_N)}, v253
            s_add_u32 {sr(T+5)}, {sr(T+5)}, 1
            s_cmp_lg_u32 {sr(S_N)}, 0
            s_cbranch_scc1 L_tag_ok
            {tagld}
            s_waitcnt vmcnt(0)
            s_cmp_lt_u32 {sr(T+5)}, 0x40000
            s_cbranch_scc1 L_tag""")
            a.label("L_tag_ok")
            a(f"v_mov_b32 {vr(t1)}, {sr(S_N)}\nbuffer_store_dword {vr(t1)}, {vr(t0)}, {sr(S_WS,4)}, {sr(PUB)} offen sc1")
            self.m_fl = len(a.lines)
            self.stamp("flag")
        self.stamp("barG")
        if o.get("atw"):
            a("s_waitcnt vmcnt(0)")
            self.stamp("ack")
        if o.get("census"):
            k_ = S_ST + 2 * self.stnames.index(o["census"][0])
            a(f"s_waitcnt lgkmcnt(0)\nv_mov_b32 v252, {sr(k_)}\ns_lshl_b32 {sr(T)}, s2, 2\ns_add_u32 {sr(T)}, {sr(T)}, {WS_DBG}\nv_mov_b32 v253, 0\nbuffer_store_dword v252, v253, {sr(S_WS,4)}, {sr(T)} offen sc1")

        def a_tr(t):
            ad, off = (TRQ, 32 * t) if t < 2 else (TRQ8, 0)
            return [f"ds_read_b64_tr_b16 {ar(AQ1+18*t+4*s+2*u,2)}, {vr(ad+u)} offset:{9216*s + off}" for s in range(4) for u in range(2)] + \
                   [f"ds_read_b64_tr_b16 {ar(AQ1+18*t+16,2)}, {vr(ad+2)} offset:{36864 + off}"]

        def a_row(t):
            off = 4864 * t if t < 2 else 0
            return [f"ds_read_b64 {ar(A_Q+18*t+4*s+2*u,2)}, {vr(RK+t)} offset:{off + 64*s + 32*u}" for s in range(4) for u in range(2)] + \
                   [f"ds_read_b64 {ar(A_Q+18*t+16,2)}, {vr(RK+t)} offset:{off + 256}"]
        bq = lambda j, d=0: [f"ds_read_b128 {ar(18*j+4*s,4)}, {vr(VS+j)} offset:{d + 1024*s}" for s in range(4)] + [f"ds_read_b64 {ar(18*j+16,2)}, {vr(VR4+j)} offset:{d}"]

        def post(u, scale, d):
            L = [f"v_mul_f32 {vr(ACC+4*u+i)}, {sr(T+4)}, {vr(ACC+4*u+i)}" for i in range(4)] if scale else []
            L += [f"v_cvt_pk_bf16_f32 {vr(PK + (4*(u&3) + 2*(u>>2) if u < 8 else 16) + h)}, {vr(ACC+4*u+2*h)}, {vr(ACC+4*u+2*h+1)}" for h in range(2)]
            if 4 <= u < 8: L.append(f"ds_write_b128 {vr(VSW+u-4)}, {vr(PK+4*(u-4),4)} offset:{d}")
            if u == 8: L.append(f"ds_write_b64 {vr(VR4)}, {vr(PK+16,2)} offset:{d}")
            return L
        fl2 = o.get("fl2", 1)
        self.m_fl = 0
        xd = [f"ds_read_b128 {vr(XD+4*j,4)}, {vr(VSW+j)}" for j in range(4)]
        self.gemm_u(AQ1, ar, [("v", XA), ("a", 18), ("a", 36), ("a", 54)], ACC, a_tr, lambda j: bq(j) if j else None, lambda u: post(u, False, L_QD),
                    vm_items=wl, other=xd, vmsp=o.get("vmsp", 3), at={o.get("flp", 22): flag} if fl2 < 0 else {})
        self.stamp("g1")
        for i in range(4): a(f"v_mov_b32 {vr(CL+i)}, -1")
        a(f"s_lshl2_add_u32 {sr(T+2)}, s2, {sr(S_W)}\ns_mul_i32 {sr(T+2)}, {sr(T+2)}, 2560\ns_add_u32 {sr(T+2)}, {sr(T+2)}, {WS_IB}")
        a(f"s_mov_b32 {sr(T+4)}, {f32(LOG2E / 12.0)}\ns_waitcnt vmcnt({self.vm_since(max(last(SK), self.m_fl)) + (last(SK) < self.m_fl)}) lgkmcnt(0)\ns_barrier")
        T2 = T + 2
        clr = [f"buffer_store_dwordx4 {vr(CL,4)}, {vr(V_DMA)}, {sr(S_WS,4)}, {sr(T+2)} offen sc1",
               f"buffer_store_dwordx4 {vr(CL,4)}, {vr(V_DMA)}, {sr(S_WS,4)}, {sr(T+2)} offen offset:1024 sc1",
               f"buffer_store_dwordx2 {vr(CL,2)}, {vr(L8)}, {sr(S_WS,4)}, {sr(T+2)} offen offset:2048 sc1"]
        self.stamp("bar2")
        gp_ = o.get("gatepos", 0)
        cl1 = not o.get("cll", 1)
        self.gemm_u(A_Q, ar, [("a", 18 * j) for j in range(4)], ACC, a_row, lambda j: bq(j, L_QD), lambda u: post(u, True, 0), vm_items=((clr if cl1 else []) + [poll(252)] if gp_ == 0 else clr if cl1 else []), vm0=o.get("pg", 6), vmsp=o.get("csp", 3),
                    lastk=o.get("plk", 26) if gp_ == 0 else 0, at={fl2: flag} if fl2 >= 0 else {})
        self.stamp("g2")
        p = lambda r: vr(r, 2)
        CC = TM
        for j in range(4): a(f"v_dot2_f32_bf16 {vr(CC+j)}, {vr(PK+4*j)}, {vr(XD+4*j)}, 0")
        for i in range(2): a(f"v_dot2_f32_bf16 {vr(CC)}, {vr(PK+16+i)}, {vr(XA+16+i)}, {vr(CC)}")
        for i in range(1, 4):
            for j in range(4): a(f"v_dot2_f32_bf16 {vr(CC+j)}, {vr(PK+4*j+i)}, {vr(XD+4*j+i)}, {vr(CC+j)}")
        QE = VS if gs else TRQ
        a(f"""s_xor_b32 {sr(T+1)}, {sr(self.NB)}, 1
        v_add_u32 {vr(t0)}, {L_XX}, {vr(V_DMA)}
        v_lshl_add_u32 {vr(QE)}, {sr(T+1)}, 12, {vr(t0)}
        v_lshl_add_u32 {vr(QE+1)}, {sr(self.NB)}, 12, {vr(t0)}""")
        self.treduce(CC)
        a(f"""ds_write_b32 {vr(MXA)}, {vr(CC)}
        v_add_u32 {vr(t0)}, {L_XR}, {vr(L8)}
        v_lshl_add_u32 {vr(QE+2)}, {sr(T+1)}, 9, {vr(t0)}
        v_lshl_add_u32 {vr(QE+3)}, {sr(self.NB)}, 9, {vr(t0)}
        v_lshl_add_u32 {vr(QE+4)}, {sr(T+1)}, 8, {vr(MXR)}
        v_lshl_add_u32 {vr(QE+5)}, {sr(self.NB)}, 8, {vr(MXR)}
        s_sub_u32 {sr(T+5)}, 63, {sr(S_H)}
        s_bfm_b64 {sr(T+8,2)}, {sr(T+5)}, 0
""")
        if gp_ == 0:
            a(f"s_cmp_lg_u32 {sr(S_W)}, 0\ns_cbranch_scc1 L_ga_ok")
            gate("L_ga", 252, sr(T + 8, 2), 0)
        else: a(poll(252))
        a("s_waitcnt lgkmcnt(0)\ns_barrier")
        self.stamp("bar3")
        qrd = [f"ds_read_b128 {vr(MS+4*qb,4)}, {vr(QE+4+(qb&1))} offset:{512*(qb>>1)}" for qb in range(4)]
        for qb in range(4):
            qrd += [f"ds_read_b128 {ar(A_Q+18*qb+4*s,4)}, {vr(QE+(qb&1))} offset:{8192*(qb>>1) + 1024*s}" for s in range(4)]
            qrd.append(f"ds_read_b64 {ar(A_Q+18*qb+16,2)}, {vr(QE+2+(qb&1))} offset:{1024*(qb>>1)}")
        if gs:
            tg = self.tile_groups(0) + self.tile_groups(1)
            n0 = o.get("n0", 3)
            for x in tg[:n0]: a(x)
            tg = tg[n0:]
            if gs < 3: a(f"v_mov_b32 {vr(CC+4)}, 1.0")
            mem = []
            qpd = o.get("qpd", 2)
            while tg or qrd:
                it = []
                if tg: it.append(tg.pop(0))
                it += [qrd.pop(0) for _ in range(min(qpd, len(qrd)))]
                mem.append("\n".join(it))
            com = [x for st_ in gst[gs:] for x in st_]
            ev = o.get("gev", 3)
            for i, x in enumerate(com):
                a(x)
                if i % ev == ev - 1 and mem: a(mem.pop(0))
            a(f"""s_mul_i32 {sr(T)}, {sr(WV+1)}, {BLK}
            s_cmp_eq_u32 {sr(S_H)}, 1
            s_cbranch_scc1 L_ln2
            s_add_u32 {sr(T)}, {sr(T)}, {WS_U}""")
            m0_ = list(mem)
            for i in range(18):
                a(f"v_cvt_pk_bf16_f32 {vr(UG+i)}, {vr(H+2*i)}, {vr(H+2*i+1)}")
                if i % o.get("gev0", 2) == 1 and m0_: a(m0_.pop(0))
            for x in m0_: a(x)
            a("s_branch L_ug")
            a.label("L_ln2")
            a(f"s_add_u32 {sr(T)}, {sr(T)}, {WS_G}")
            a.bg, a.every, a.cnt = list(mem), o.get("gev1", 6), 0
            self.ln_f32(H, UG, TM)
            a.flush()
            a.label("L_ug")
            m_t0 = m_t1 = None
        else:
            tg = self.tile_groups(0) + self.tile_groups(1) + self.tile_groups(2)[:8]
            n0 = o.get("n0", 3) if gp_ == 0 else 0
            for x in tg[:n0]: a(x)
            a(f"v_mov_b32 {vr(CC)}, {f32(c1)}\nv_mov_b32 {vr(CC+2)}, {f32(c2)}\nv_mov_b32 {vr(CC+4)}, 1.0")
            nq1, nt1 = (o.get("nq1", 8), o.get("nt1", 5)) if gp_ == 0 else (o.get("nq1", 16), 0)
            bgl = []
            for i in range(max(nq1 // 2, nt1)):
                if 2 * i < nq1: bgl.append(qrd[2 * i] + "\n" + qrd[2 * i + 1])
                if i < nt1: bgl.append(tg[n0 + i])
            tg, qrd = tg[n0 + nt1:], qrd[nq1:]
            a.bg, a.every, a.cnt = bgl, 54 // (len(bgl) + 1), 0
            for x in gst[0]: a(x)
            a.flush()
            if gp_:
                self.stamp("ge0")
                gate("L_ga", 252, sr(T + 8, 2), 0)
                for x in tg[:2]: a(x)
                tg = tg[2:]
            self.stamp("ge1")
            esp = o.get("esp", 3 if gp_ else 4)
            for i in range(36):
                a(gst[1][i])
                if i % esp == 1 and tg: a(tg.pop(0))
                if i % 8 == 3 and qrd: a(qrd.pop(0)); a(qrd.pop(0))
            self.stamp("ge2")
            for x in gst[2]: a(x)
            for i in range(36):
                a(gst[3][i])
                if i % esp == 1 and tg: a(tg.pop(0))
                if i % 8 == 3 and qrd: a(qrd.pop(0)); a(qrd.pop(0))
            assert not tg and not qrd
            idx = [i for i, l in enumerate(a.lines) if l.strip().startswith("buffer_load") and l.rstrip().endswith("lds")]
            m_t0, m_t1 = idx[-18] + 1, idx[-9] + 1
            for x in gst[4]: a(x)
            a(f"""s_mul_i32 {sr(T)}, {sr(WV+1)}, {BLK}
            s_cmp_eq_u32 {sr(S_H)}, 1
            s_cbranch_scc1 L_ln2
            s_add_u32 {sr(T)}, {sr(T)}, {WS_U}""")
            for i in range(18): a(f"v_cvt_pk_bf16_f32 {vr(UG+i)}, {vr(H+2*i)}, {vr(H+2*i+1)}")
            a("s_branch L_ug")
            a.label("L_ln2")
            a(f"s_add_u32 {sr(T)}, {sr(T)}, {WS_G}")
            self.ln_f32(H, UG, TM)
            a.label("L_ug")
        self.stamp("ge3")
        a(f"""s_cmp_eq_u32 {sr(WV)}, 1
        s_cselect_b32 {sr(S_UG)}, {sr(T)}, 0x40000000
        s_waitcnt lgkmcnt(0)""")
        kz = [f"s_waitcnt vmcnt({9 if gs else self.vm_since(m_t0)})"] + self.k_reads(0, V_V)
        if not gs:
            for x in kz: a(x)
        self.ugs = [f"buffer_store_dwordx4 {vr(UG+4*s,4)}, {vr(V_DMA)}, {sr(S_WS,4)}, {sr(S_UG)} offen offset:{1024*s} sc1" for s in range(4)]
        self.ugs.append(f"buffer_store_dwordx2 {vr(UG+16,2)}, {vr(self.VL8)}, {sr(S_WS,4)}, {sr(S_UG)} offen sc1")
        for qb in range(4): a(f"v_pk_add_f32 {p(MS+4*qb)}, {p(MS+4*qb)}, {p(MS+4*qb+2)} neg_lo:[1,1] neg_hi:[1,1]")
        for qb in range(4): a(f"v_add_f32 {vr(self.MK+qb)}, {vr(MS+4*qb)}, {vr(MS+4*qb+1)}")
        a(f"v_lshlrev_b32 {vr(t1)}, 8, v0\nv_lshlrev_b32 v231, 2, v0\nv_add_u32 v231, {L_PC}, v231\nds_write_b32 v231, {vr(t1)}")
        self.loop_init(False)
        if gs:
            self.loop_init(True)
            self.stamp("ug0")
            for x in kz: a(x)
        else: self.n_t1 = self.vm_since(m_t1)
        self.stamp("ug")

    def loop_init(self, part):
        a = self.a
        if part:
            for qb in range(4):
                for i in range(4): a(f"v_mov_b32 {vr(V_CI+4*qb+i)}, {vr(self.MK+qb)}")
            return
        for k in range(7): a(f"v_add_u32 {vr(V_HI+k)}, {2*SLOT}, {vr(V_KA+k if k < 5 else V_VB+k-5)}")
        a(f"v_add_u32 {vr(self.VS0)}, {sr(S_LB)}, {vr(V_DMA)}\nv_add_u32 {vr(self.VS0R)}, {sr(S_LB)}, {vr(self.VL8)}\ns_mov_b32 {sr(S_CNT)}, 0\ns_mov_b32 {sr(S_INC)}, {4*TILE}")
        for i in range(4): a(f"v_mov_b32 {vr(V_L+i)}, 0")
        for i in range(4): a(f"v_mov_b32 {vr(226+i)}, -1")
        a(f"""s_lshl2_add_u32 {sr(S_CL)}, s2, {sr(S_W)}
        s_mul_i32 {sr(S_CL)}, {sr(S_CL)}, 2560
        s_lshl_b32 {sr(S_CL+1)}, {sr(S_REDO)}, 30
        s_add_u32 {sr(S_CL)}, {sr(S_CL)}, {sr(S_CL+1)}
        s_add_u32 {sr(S_CL)}, {sr(S_CL)}, {WS_IB}
        s_sub_u32 {sr(S_CL+1)}, {sr(S_CL)}, 2048""")
        a(f"v_mov_b32 v207, {sr(S_N)}\nv_mov_b32 {vr(self.VPL+1)}, 1\nv_lshlrev_b32 v231, 2, v0\nv_add_u32 v231, {L_PC}, v231")
        if self.o.get("xm", 0): a(f"s_add_u32 {sr(S_T)}, {sr(S_N)}, {sr(S_XC)}\nv_writelane_b32 v207, {sr(S_T)}, 1")

    def head(self):
        a, o = self.a, self.o
        gs = o.get("gs", 0)
        a.label("L_go")
        if not gs: self.loop_init(True)
        a("s_waitcnt lgkmcnt(0)\ns_barrier")
        self.stamp("bar5")
        base = self.qk_mfmas(0)
        pick = lambda s_, kb, qb: base[8 * s_ + 4 * kb + qb].replace(vr(V_K + 8 * s_ + 4 * kb, 4) + ",", vr(V_V + 8 * s_ + 4 * kb, 4) + ",").replace(vr(V_K + 32 + 2 * kb, 2) + ",", vr(V_V + 32 + 2 * kb, 2) + ",")
        mf, fin = [], {}
        for qb, s_ in [(0, 0), (0, 1), (0, 2), (0, 3), (1, 0), (1, 1), (0, 4), (1, 2), (1, 3), (2, 0), (2, 1), (1, 4), (2, 2), (2, 3), (3, 0), (3, 1), (2, 4),
                       (3, 2), (3, 3), (3, 4)]:
            for kb in range(2):
                fin[qb, kb] = len(mf)
                mf.append(("s_nop 3\n" if (qb, s_, kb) == (3, 4, 0) else "") + pick(s_, kb, qb))
        enew = [e[1] for g in range(40, 76) for e in self.gaps[g] if e[0] == "E"]
        items = self.e_items(0, enew, lambda qb, j: 0, lambda qb: 999)
        for it, e in zip(items, enew):
            if e[0] == "e": it["am"] = fin[e[1], e[2] // 4]
        dm = []
        for k, (slot, j) in enumerate([(2, j) for j in range(9)] if gs else [(2, 8)] + [(3, j) for j in range(9)]):
            g_ = 1 + o.get("hsp", 4) * k
            if j % 4 == 0: dm.append(dict(t=f"s_add_u32 m0, {sr(S_LB)}, {slot*SLOT + 4096*(j//4)}", c=0, lo=g_ - 1, hi=g_ - 1))
            dm.append(dict(t=f"buffer_load_dwordx4 {vr(V_DMA + j//4)}, {sr(S_XA,4)}, {sr(S_TOFF)} offen offset:{1024*(j%4)} lds", c=8, lo=g_, hi=g_))
            if j == 8: dm.append(dict(t=f"s_add_u32 {sr(S_TOFF)}, {sr(S_TOFF)}, {4*TILE}", c=0, lo=g_ + 1, hi=g_ + 1))
        nh = o.get("ugh", 2) if not o.get("ugl", 1) else 0
        for k in range(nh): dm.append(dict(t=self.ugs[k], c=8, lo=3 + 16 * k, hi=3 + 16 * k))
        if gs:
            k1 = o.get("k1lo", 22)
            kr = [dict(t=("@VM\n" if i == 0 else "") + x, c=4, lo=k1 + i // 2, hi=k1 + i // 2, nds=2) for i, x in enumerate(self.k_reads(1))]
        else:
            a(f"s_waitcnt vmcnt({self.n_t1})")
            kr = [dict(t=x, c=4, lo=i // 2, nds=2) for i, x in enumerate(self.k_reads(1))]
        left = self.pack(mf, items + dm + kr)
        print("head overflow", self.over, "left", len(left))
        left.sort(key=lambda x: not x.startswith("v_exp"))
        last = a.lines[-1].strip()
        for x in left:
            if last.startswith("v_exp") and not x.startswith("v_exp") and (last.split()[1].rstrip(",") + ",") in (x + ","): a("s_nop 0")
            a(x); last = x
        a("s_waitcnt lgkmcnt(0)")

    def tile_groups(self, slot):
        out = []
        for j in range(9):
            g = ""
            if j % 4 == 0: g = f"s_add_u32 m0, {sr(S_LB)}, {slot*SLOT + 4096*(j//4)}\ns_nop 0\n"
            g += f"buffer_load_dwordx4 {vr(V_DMA + j//4)}, {sr(S_XA,4)}, {sr(S_TOFF)} offen offset:{1024*(j%4)} lds"
            if j == 8: g += f"\ns_add_u32 {sr(S_TOFF)}, {sr(S_TOFF)}, {4*TILE}"
            out.append(g)
        return out

    def first_tiles(self):
        pass

    def wfuse(self):
        a = self.a
        BF, ACC, AF, TM, AD = 88, 108, 144, 208, 240
        LA, LB_, LM = 0, 44032, 88064
        T = S_T
        a.label("L_wfuse")
        a(f"{'s_sub_u32 s2, s6, 246' if self.o.get('xm', 0) == 2 else f's_add_u32 s2, s2, {NH}'}\ns_cmp_ge_u32 s2, {NH}\ns_cbranch_scc1 L_end")
        a(f"v_lshrrev_b32 v1, 6, v0\nv_and_b32 v0, 63, v0\nv_readfirstlane_b32 {sr(S_W)}, v1\nv_lshlrev_b32 {vr(V_DMA)}, 4, v0\ns_waitcnt lgkmcnt(0)")
        self.srd(S_WS, 78, 79, WS_END)
        self.srd(S_DB, 76, 77, 256)
        self.wf0 = 0
        self.srd(S_X, 72, 73, 82944)
        self.srd(S_W2, 62, 63, 41472)
        a(f"""s_cmp_eq_u32 s2, {self.wf0}
        s_cselect_b32 {sr(S_W1)}, s64, s70
        s_cselect_b32 {sr(S_W1+1)}, s65, s71
        s_mov_b32 {sr(S_W1+2)}, 41472
        s_mov_b32 {sr(S_W1+3)}, 0x20000
        s_cselect_b32 {sr(T+4)}, 0, 41472""")
        self.dma_rows([(S_W1, "0", LA), (S_W2, "0", LB_)], 19, 288, TM + 4, TM + 5, 11, 3, "L_wf1")
        a(f"s_lshl_b32 {sr(T)}, {sr(S_W)}, 10\ns_add_u32 {sr(T+2)}, {sr(T)}, {sr(T+4)}")
        for k in range(11):
            if k == 10: a(f"s_cmp_ge_u32 {sr(S_W)}, 1\ns_cbranch_scc1 L_wf2")
            a(f"s_add_u32 m0, {sr(T)}, {LM + 4096*k}\ns_add_u32 {sr(T+1)}, {sr(T+2)}, {4096*k}")
            a(f"buffer_load_dwordx4 {vr(V_DMA)}, {sr(S_X,4)}, {sr(T+1)} offen lds")
        a.label("L_wf2")
        self.srd(S_DW, 68, 69, 864)
        a(f"""v_and_b32 {vr(TM)}, 15, v0
        v_lshlrev_b32 {vr(TM+2)}, 4, {vr(TM)}
        v_lshlrev_b32 {vr(TM)}, 1, {vr(TM)}
        v_bfe_u32 {vr(TM+3)}, v0, 4, 1
        v_lshl_add_u32 {vr(TM+1)}, {vr(TM+3)}, 7, {vr(TM)}
        v_lshl_add_u32 {vr(TM+2)}, {vr(TM+3)}, 11, {vr(TM+2)}
        v_and_b32 {vr(TM+3)}, 1, v0
        v_lshlrev_b32 {vr(TM+3)}, 4, {vr(TM+3)}
        v_bfe_i32 {vr(TM+4)}, v0, 1, 1
        v_not_b32 {vr(TM+5)}, {vr(TM+4)}""")
        for k in range(3):
            for i in range(5): a(f"buffer_load_ushort {vr(16+5*k+i)}, {vr(TM+1 if i < 4 else TM)}, {sr(S_DW,4)}, 0 offen offset:{288*k + (32*i if i < 4 else 256)}")
        a(f"s_mov_b32 {sr(T+1)}, {WS_DWF}\ns_waitcnt vmcnt(0)")
        for f in range(15):
            a(f"v_lshlrev_b32 {vr(16+f)}, {vr(TM+3)}, {vr(16+f)}\nv_and_b32 {vr(32+2*f)}, {vr(TM+5)}, {vr(16+f)}\nv_and_b32 {vr(33+2*f)}, {vr(TM+4)}, {vr(16+f)}")
        for r_ in range(8): a(f"buffer_store_dwordx{4 if r_ < 7 else 2} {vr(32+4*r_, 4 if r_ < 7 else 2)}, {vr(TM+2)}, {sr(S_WS,4)}, {sr(T+1)} offen offset:{256*r_} sc1")
        self.tr_addr(AD, LM, False, TM + 8)
        self.row_addr(AD + 3, LA, TM + 8)
        a(f"v_add_u32 {vr(AD+5)}, {LB_}, {vr(AD+3)}")
        a(f"v_lshlrev_b32 {vr(AD+4)}, 3, v0")
        a(f"""s_lshr_b32 {sr(T)}, {sr(S_W)}, 1
        s_lshl_b32 {sr(T)}, {sr(T)}, 6
        s_and_b32 {sr(T+1)}, {sr(S_W)}, 1
        s_lshl_b32 {sr(T+1)}, {sr(T+1)}, 3
        s_add_u32 {sr(T)}, {sr(T)}, {sr(T+1)}
        v_and_b32 {vr(AD+6)}, 3, v0
        v_lshlrev_b32 {vr(AD+6)}, 3, {vr(AD+6)}
        v_add_u32 {vr(AD+7)}, {sr(T)}, {vr(AD+6)}""")
        for k in range(3): a(f"v_add_u32 {vr(AD+k)}, {vr(AD+7)}, {vr(AD+k)}")
        a(f"s_mov_b32 {sr(S_CNT)}, {sr(S_W)}")
        a("s_waitcnt vmcnt(0)\ns_barrier")
        a.label("L_wfl")
        for s in self.tr_reads(AD, vr)(0, BF): a(s)
        a("s_waitcnt lgkmcnt(0)")
        self.gemm(self.row_reads(AD + 3), BF, ACC, AF)
        for i in range(18): a(f"v_cvt_pk_bf16_f32 {vr(BF+i)}, {vr(ACC+2*i)}, {vr(ACC+2*i+1)}")
        a(f"s_cmp_eq_u32 s2, {self.wf0}\ns_cbranch_scc0 L_wf3")
        self.gemm(self.row_reads(AD + 5), BF, ACC, AF)
        for i in range(18): a(f"v_cvt_pk_bf16_f32 {vr(BF+i)}, {vr(ACC+2*i)}, {vr(ACC+2*i+1)}")
        a.label("L_wf3")
        a(f"""s_mul_i32 {sr(T)}, {sr(S_CNT)}, {BLK}
        s_add_u32 {sr(T)}, {sr(T)}, {sr(T+4)}
        s_add_u32 {sr(T)}, {sr(T)}, {WS_WF}
        s_add_u32 {sr(T+1)}, {sr(T)}, 4096""")
        self.store_block(BF, V_DMA, AD + 4, S_WS, T, T + 1, "sc1")
        for k in range(3): a(f"v_add_u32 {vr(AD+k)}, 128, {vr(AD+k)}")
        a(f"s_add_u32 {sr(S_CNT)}, {sr(S_CNT)}, 4\ns_cmp_lt_u32 {sr(S_CNT)}, 8\ns_cbranch_scc1 L_wfl")
        for k in range(3): a(f"v_sub_u32 {vr(AD+k)}, {vr(AD+k)}, {vr(AD+6)}")
        a(f"s_cmp_eq_u32 {sr(S_CNT)}, 8\ns_cbranch_scc1 L_wfl")
        a(f"""s_waitcnt vmcnt(0)
        s_barrier
        s_cmp_lg_u32 {sr(S_W)}, 0
        s_cbranch_scc1 L_end
        s_mov_b32 {sr(T+2)}, 0""")
        a.label("L_wtag")
        a(f"""buffer_load_dword {vr(TM)}, off, {sr(S_DB,4)}, 0 sc1
        s_add_u32 {sr(T+2)}, {sr(T+2)}, 1
        s_waitcnt vmcnt(0)
        v_readfirstlane_b32 {sr(T)}, {vr(TM)}
        s_cmp_lt_u32 {sr(T+2)}, 0x40000
        s_cselect_b32 {sr(T)}, {sr(T)}, 1
        s_cmp_eq_u32 {sr(T)}, 0
        s_cbranch_scc1 L_wtag
        v_lshlrev_b32 {vr(TM+1)}, 2, v0
        s_lshl_b32 {sr(T)}, s2, 8
        s_add_u32 {sr(T)}, {sr(T)}, {WS_F + 502*256}
        buffer_store_dword {vr(TM)}, {vr(TM+1)}, {sr(S_WS,4)}, {sr(T)} offen sc1
        s_endpgm""")

    def dump_stamps(self):
        a = self.a
        if self.o.get("census"):
            key, mode, m_, v_ = self.o["census"]
            a(f"""s_cmp_lg_u32 s2, 100
            s_cbranch_scc1 L_end
            v_lshlrev_b32 v16, 2, v0
            s_mov_b32 s4, {WS_DBG}""")
            for k in range(4): a(f"buffer_load_dword v{20+k}, v16, {sr(S_WS,4)}, s4 offen offset:{256*k} sc1")
            a(f"s_waitcnt vmcnt(0)\nv_readlane_b32 s8, v21, 36\ns_mov_b32 s9, 0x80000000\ns_mov_b32 s10, 0x7fffffff\ns_mov_b32 s11, 0\ns_mov_b32 s17, 0")
            for k in range(4):
                a(f"s_mov_b32 s5, 0")
                a.label(f"L_cs{k}")
                a(f"""v_readlane_b32 s6, v{20+k}, s5
                s_add_u32 s7, s5, {64*k}
                s_sub_u32 s6, s6, s8
                s_and_b32 s16, s7, {m_}
                s_cmp_lg_u32 s16, {v_}
                s_cbranch_scc1 L_cn{k}
                s_min_i32 s10, s10, s6
                s_cmp_gt_i32 s6, {self.o.get("thr", 150)}
                s_addc_u32 s17, s17, 0
                s_cmp_gt_i32 s6, s9
                s_cselect_b32 s9, s6, s9
                s_cselect_b32 s11, s7, s11""")
                a.label(f"L_cn{k}")
                a(f"s_add_u32 s5, s5, 1\ns_cmp_lt_u32 s5, {64 if k < 3 else 60}\ns_cbranch_scc1 L_cs{k}")
            a({"arg": "s_lshl_b32 s6, s11, 3", "range": "s_sub_u32 s6, s9, s10\ns_lshl_b32 s6, s6, 1", "zero": "s_mov_b32 s6, 0", "cnt": "s_lshl_b32 s6, s17, 4",
               "max": "s_lshl_b32 s6, s9, 1"}[mode])
            a("s_add_u32 s6, s6, 1000\ns_memrealtime s[4:5]\ns_waitcnt lgkmcnt(0)\ns_add_u32 s6, s6, s4")
            a.label("L_echo")
            a("s_memrealtime s[4:5]\ns_waitcnt lgkmcnt(0)\ns_sub_u32 s7, s6, s4\ns_cmp_gt_i32 s7, 0\ns_cbranch_scc1 L_echo")
            return
        if self.o.get("echo"):
            if self.o["echo"][0] == "skew":
                a(f"v_mov_b32 v16, 4\nbuffer_load_dword v17, v16, {sr(S_DB,4)}, 0 offen sc1\ns_waitcnt vmcnt(0)\nv_readfirstlane_b32 s98, v17\ns_not_b32 s98, s98")
                x, y = 98, S_ST + 2 * self.stnames.index(self.o["echo"][1])
            else:
                x, y = [S_ST + 2 * self.stnames.index(n) for n in self.o["echo"]]
            lo, hi = self.o.get("echo_ids", (0, 999))
            a(f"""s_cmp_eq_u32 {sr(S_VAL)}, 0
            s_cbranch_scc1 L_end
            s_cmp_lt_u32 s2, {lo}
            s_cbranch_scc1 L_end
            s_cmp_ge_u32 s2, {hi}
            s_cbranch_scc1 L_end
            s_and_b32 s6, s2, {self.o.get("echo_m", 0)}
            s_cmp_lg_u32 s6, {self.o.get("echo_v", 0)}
            s_cbranch_scc1 L_end
            s_memrealtime s[4:5]
            s_waitcnt lgkmcnt(0)
            s_sub_u32 s6, {sr(y)}, {sr(x)}
            s_mul_i32 s6, s6, {self.o.get("echo_mul", 1)}
            s_lshr_b32 s6, s6, {self.o.get("echo_shr", 0)}
            s_add_u32 s6, s6, {self.o.get("echo_add", 0)}
            s_add_u32 s6, s6, s4""")
            a.label("L_echo")
            a("s_memrealtime s[4:5]\ns_waitcnt lgkmcnt(0)\ns_sub_u32 s7, s6, s4\ns_cmp_gt_i32 s7, 0\ns_cbranch_scc1 L_echo")
            return
        if self.o.get("dbgst"):
            a("s_waitcnt vmcnt(0)")
            self.stamp("done")
            a("s_waitcnt lgkmcnt(0)\ns_mov_b64 exec, 1")
            slots = [1, 2, 3, 4, 5, 6, 7, 9, 11, 12, 13, 14, 15]
            a(f"s_not_b32 {sr(S_T)}, {sr(S_ST)}\nv_mov_b32 v16, {sr(S_T)}\nv_mov_b32 v17, 4\nbuffer_atomic_umax v16, v17, {sr(S_DB,4)}, 0 offen sc1")
            for i in range(min(self.nst, 12)):
                a(f"v_mov_b32 v{18+2*i}, {sr(S_ST+2*i)}\nv_mov_b32 v{19+2*i}, {4*slots[i+1]}\nbuffer_atomic_umax v{18+2*i}, v{19+2*i}, {sr(S_DB,4)}, 0 offen sc1")
            return
        if not self.o.get("stamps"): return
        T = S_T
        a(f"""s_waitcnt lgkmcnt(0)
        s_lshl_b32 {sr(T)}, s2, 2
        s_add_u32 {sr(T)}, {sr(T)}, {sr(S_W)}
        s_lshl_b32 {sr(T)}, {sr(T)}, 7
        s_add_u32 {sr(T)}, {sr(T)}, {WS_DBG}
        v_mov_b32 v1, 0""")
        for i in range(26): a(f"v_mov_b32 {vr(16+i)}, {sr(S_ST+i)}")
        for i in range(7): a(f"buffer_store_dwordx4 {vr(16+4*i,4)}, v1, {sr(S_WS,4)}, {sr(T)} offen offset:{16*i}")

    def build(self):
        a = self.a
        self.stnames = []
        a.raw(f"; @launch grid=({NWG},1,1) block=(256,1,1) lds={LDS_TOTAL}")
        a.raw('.amdgcn_target "amdgcn-amd-amdhsa--gfx950"')
        a.raw(".text")
        a.raw(f".globl {NAME}")
        a.raw(".p2align 12")
        self.entry()
        self.phase_a()
        self.rest()
        a.label("L_fin")
        self.dump_stamps()
        a.label("L_end")
        a("s_endpgm")
        self.poll2()
        if not self.o.get("touch", 1): self.rare()
        a.label("L_dummy")
        self.fallback()
        self.wfuse()
        a.raw('.section .rodata,"a"')
        a.raw(".p2align 6")
        a.raw(kernel_desc(NAME, 512, 102, 256))
        return a.text()

    def S(self, buf, qb, i=0): return V_S + buf * 32 + qb * 8 + i
    def P(self, buf, qb, i=0): return V_P + buf * 16 + qb * 4 + i

    def k_reads(self, slot, V_K=V_K):
        ka, so = (V_KA, slot * SLOT) if slot < 2 else (V_HI, (slot - 2) * SLOT)
        out = [f"ds_read_b128 {vr(V_K+8*s+4*kb,4)}, {vr(ka)} offset:{so + 2048*s + 256*kb}" for s in range(4) for kb in range(2)]
        out += [f"ds_read_b64 {vr(V_K+32+2*kb,2)}, {vr(ka+1)} offset:{so + 8192 + 512*kb}" for kb in range(2)]
        return out

    def v_reads(self, slot, dst=V_V):
        (va, vr_, vb), so = ((V_VA, V_VR, V_VB), slot * SLOT) if slot < 2 else ((V_HI + 2, V_HI + 4, V_HI + 5), (slot - 2) * SLOT)
        out = []
        for T in range(9):
            for u in range(2):
                if T < 8: out.append(f"ds_read_b64_tr_b16 {vr(dst+4*T+2*u,2)}, {vr((va if T < 4 else vb)+(T&1))} offset:{so + 2048*((T>>1)&1) + 256*u}")
                else: out.append(f"ds_read_b64_tr_b16 {vr(dst+4*T+2*u,2)}, {vr(vr_)} offset:{so + 8192 + 512*u}")
        return out

    def qk_mfmas(self, buf, czero=False):
        out = []
        for s in range(5):
            for kb in range(2):
                for qb in range(4):
                    d = vr(self.S(buf, qb, 4 * kb), 4)
                    c = ("0" if czero else vr(V_CI + 4 * qb, 4)) if s == 0 else d
                    if s < 4: out.append(f"v_mfma_f32_16x16x32_bf16 {d}, {vr(V_K+8*s+4*kb,4)}, {ar(A_Q+18*qb+4*s,4)}, {c}")
                    else: out.append(f"v_mfma_f32_16x16x16_bf16 {d}, {vr(V_K+32+2*kb,2)}, {ar(A_Q+18*qb+16,2)}, {c}")
        return out

    def pv_mfmas(self, buf, czero=False):
        out = []
        for T in range(9):
            for qb in range(4):
                o = ar(A_O + 36 * qb + 4 * T, 4)
                out.append(f"v_mfma_f32_16x16x32_bf16 {o}, {vr(V_V+4*T,4)}, {vr(self.P(buf,qb),4)}, {'0' if czero else o}")
        return out

    def plan(self):
        o = self.o
        n = 76
        fixed = [None] * n
        for i, g in enumerate(range(1, 36, 2)): fixed[g] = ("V", i)
        for i, g in enumerate([41, 44, 47, 50, 53, 56, 59, 62, 65, 68]): fixed[g] = ("K", i)
        for i, g in enumerate([42, 46, 49, 52, 55, 58, 61, 64, 67]): fixed[g] = ("D", i)
        exps = [(qb, j) for qb in range(4) for j in range(8)]
        start = 40
        order = [(start + k) % n for k in range(n)]
        free_idx = [k for k, g in enumerate(order) if fixed[g] is None]
        nsm = len(free_idx) - 32
        cand = free_idx[6:-2]
        sm_set = set(free_idx[-2:]) | {cand[int((i + 0.5) * len(cand) / (nsm - 2))] for i in range(nsm - 2)}
        nds = sum(1 for f in fixed if f is not None and f[0] != "D")
        ls = o.get("lsum", "add")
        over = max(0, (48 if ls == "add" else 32) - nds - 2 * nsm)
        ocand = [k for k, g in enumerate(order) if k >= 20 and (fixed[g] is None or fixed[g][0] != "D")]
        o_set = {ocand[int((i + 0.5) * len(ocand) / over)] for i in range(over)}
        later = []
        gaps = [[] for _ in range(n)]
        small, pend, ei = [], [], 0
        for k, g in enumerate(order):
            new = (start + k) < n
            small.extend(pend); pend = later; later = []
            small.sort(key=lambda t: 0 if t[0] == "c" else 1)
            f = fixed[g]
            want = 0
            if f is not None:
                gaps[g].append((f[0], f[1], None))
                if f[0] == "D": continue
                want = 1
            elif k in sm_set: want = 2
            else:
                qb, j = exps[ei]; ei += 1
                gaps[g].append(("E", ("e", qb, j), new))
                if j & 1: pend.append(("c", qb, j // 2))
                if ls == "add": pend.append(("a", qb, j))
                elif j & 1 and ls == "pk": pend.append(("p", qb, j // 2))
            if k in o_set: want += 1
            if k == n - 1: want = 99
            for _ in range(want):
                if small:
                    it = small.pop(0)
                    gaps[g].append(("E", it, new))
                    if it[0] == "c" and ls == "dot": (small if k == n - 1 else pend).append(("d", it[1], it[2]))
        assert not small and not pend and ei == 32
        self.gaps = gaps

    def pack(self, mf, items):
        a = self.a
        where, order, done, nvm, mpos = {}, [], 0, 0, []
        isds = lambda it: "ds_" in it["t"]
        self.over = 0
        for g, m in enumerate(mf):
            assert not any(it.get("need", 999) <= g and i not in where for i, it in enumerate(items)), g
            idx = [k for k, n_ in enumerate(order) if n_ <= g]
            if idx and max(idx) + 1 > done:
                a(f"s_waitcnt lgkmcnt({min(15, len(order) - 1 - max(idx))})"); done = max(idx) + 1
            if m.startswith("@W"):
                w_, m = m.split("\n", 1)
                a(f"s_waitcnt lgkmcnt({min(15, int(w_[2:]) + len(order))})")
            a(m)
            mpos.append(len(a.lines))
            cap, pick = 8, []
            for phase in (0, 1):
                for i, it in enumerate(items):
                    if i in where or it.get("lo", 0) > g: continue
                    if "am" in it and (it["am"] >= g or len(a.lines) - mpos[it["am"]] < 8): continue
                    d = it.get("dep")
                    if d is not None and not all(where.get(x, 999) < g for x in d): continue
                    if (phase == 0 and it.get("hi", 999) <= g) or (phase == 1 and it["c"] <= cap):
                        if it["t"].startswith("buffer") and pick and any(items[x]["c"] for x in pick) and phase == 1: continue
                        if isds(it) and sum(isds(items[x]) for x in pick) >= it.get("nds", 1) and phase == 1: continue
                        pick.append(i); where[i] = g; cap -= it["c"]
            key = lambda i: 0 if items[i]["c"] == 0 else 1 if isds(items[i]) else 2 if items[i]["t"].startswith("buffer") else 3
            for i in sorted(pick, key=key):
                a(items[i]["t"].replace("@VM", f"s_waitcnt vmcnt({nvm})"))
                nvm += items[i]["t"].startswith("buffer")
                if isds(items[i]): order.append(items[i].get("need", 999))
            self.over += max(0, -cap)
        return [it["t"] for i, it in enumerate(items) if i not in where]

    def e_items(self, buf, lst, lo, hi):
        items, idx = [], {}
        for it in lst:
            kind, qb, j = it
            d = dict(t=self.etext(buf, it), c=8 if kind == "e" else 4)
            if kind == "e": d["lo"] = lo(qb, j); d["hi"] = hi(qb) - 2 - (7 - j)
            else:
                need = [("e", qb, j)] if kind == "a" else [("c", qb, j)] if kind == "d" else [("e", qb, 2 * j), ("e", qb, 2 * j + 1)]
                d["dep"] = [idx[x] for x in need if x in idx]
                if kind == "c": d["hi"] = hi(qb) - (3 - j) // 2
            idx[it] = len(items); items.append(d)
        return items

    def etext(self, buf, it):
        kind, qb, j = it
        s = self.S(buf, qb)
        if kind == "e": return f"v_exp_f32 {vr(s+j)}, {vr(s+j)}"
        if kind == "d": return f"v_dot2_f32_bf16 {vr(V_L+qb)}, {vr(self.P(buf, qb, j))}, v227, {vr(V_L+qb)}"
        if kind == "p": return f"v_pk_add_f32 {vr(208+2*qb,2)}, {vr(208+2*qb,2)}, {vr(s+2*j,2)}"
        if kind == "a": return f"v_add_f32 {vr(V_L+qb)}, {vr(V_L+qb)}, {vr(s+j)}"
        return f"v_cvt_pk_bf16_f32 {vr(self.P(buf, qb, j))}, {vr(s+2*j)}, {vr(s+2*j+1)}"

    def period(self, p, qk=True, pv=True, e_old=True, e_new=True, kread=True, vread=True, dma=True, extra={}, dsub=None, ksub=None, vm=9, halves=(0, 1), inc=None):
        a = self.a
        bn, bo = (p + 1) & 1, p & 1
        qk_, pv_ = self.qk_mfmas(bn), self.pv_mfmas(bo, czero=(p == 0))
        qo, po = self.o.get("qkord", 1), self.o.get("pvord", 0)
        if qo == 1: qk_ = [qk_[8 * s_ + 4 * kb + qb] for kb in range(2) for qb in range(4) for s_ in range(4)] + qk_[32:]
        if qo == 2: qk_ = [qk_[8 * s_ + 4 * kb + qb] for qb in range(4) for kb in range(2) for s_ in range(4)] + qk_[32:]
        if qo == 3: qk_ = [qk_[8 * s_ + 4 * kb + qb] for qb in range(4) for s_ in range(4) for kb in range(2)] + qk_[32:]
        if po == 1: pv_ = [pv_[4 * T_ + qb] for qb in range(4) for T_ in range(9)]
        mf = qk_ + pv_
        kr, vrd = self.k_reads((p + 2) % RING), self.v_reads(p % RING)
        slot = p % RING
        n = 76
        sc = [[] for _ in range(n)]
        dgs = [g for g in range(n) if any(e[0] == "D" for e in self.gaps[g])]
        if dma:
            for j, g in enumerate(dgs):
                if j % 4 == 0: sc[g - 1].append(f"s_add_u32 m0, {sr(S_LB)}, {slot*SLOT + 4096*(j//4)}")
            sc[dgs[-1] + 1].append(f"s_add_u32 {sr(S_TOFF)}, {sr(S_TOFF)}, {inc or 4*TILE}")
        w = []
        if kread: w.append(f"vmcnt({vm})")
        if pv: w.append("lgkmcnt(0)")
        if w: sc[39].append("s_waitcnt " + " ".join(w))
        if kread: sc[75].append("s_waitcnt lgkmcnt(0)")
        for half in halves:
            rng = range(0, 40) if half == 0 else range(40, 76)
            on = qk if half == 0 else pv
            if not on:
                ds, mem, val, post = [], [], [], []
                for g in rng:
                    for s_ in sc[g]:
                        (post if s_.startswith("s_waitcnt") else mem).append(s_)
                    if g in extra: mem.append(extra[g])
                    for kind, d, new in self.gaps[g]:
                        if kind == "V" and vread: ds.append(vrd[d])
                        elif kind == "K" and kread: ds.append(kr[d])
                        elif kind == "D" and dma: mem.append(f"buffer_load_dwordx4 {vr(V_DMA + d//4)}, {sr(S_XA,4)}, {sr(S_TOFF)} offen offset:{1024*(d%4)} lds")
                        elif kind == "E" and ((new and e_new) or (not new and e_old)): val.append((d, self.etext(bn if new else bo, d)))
                if half == 1: a("s_nop 3")
                seq, pend = [], list(val)
                while pend:
                    k = 0
                    if seq and seq[-1][0][0] == "e":
                        le = seq[-1][0]
                        dep = lambda it: it[0][1] == le[1] and ((it[0][0] == "a" and it[0][2] == le[2]) or (it[0][0] == "c" and it[0][2] == le[2] // 2))
                        have = {x[0] for x in seq}
                        ok = lambda it: it[0][0] == "e" or (("e", it[0][1], it[0][2]) in have if it[0][0] == "a" else (("e", it[0][1], 2*it[0][2]+1) in have)) or not any(x[0][0] == "e" and x[0][1] == it[0][1] and (x[0][2] == it[0][2] if it[0][0] == "a" else x[0][2] // 2 == it[0][2]) for x in pend)
                        while k < len(pend) and (dep(pend[k]) or not ok(pend[k])): k += 1
                        if k == len(pend): seq.append((("n", 0, 0), "s_nop 0")); k = 0
                    seq.append(pend.pop(k))
                step = max(1, len(seq) // (len(mem) + len(ds) + 1))
                allm = ds + mem
                for x in allm[:6]: a(x)
                allm = allm[6:]
                for i_, (d, t_) in enumerate(seq):
                    a(t_)
                    if allm and i_ % step == step - 1:
                        x = allm.pop(0); a(x)
                        if x.startswith("s_add_u32 m0"): a("s_nop 0")
                for x in allm:
                    a(x)
                    if x.startswith("s_add_u32 m0"): a("s_nop 0")
                for x in post: a(x)
                if half == 0: a("s_nop 1")
                continue
            abl = self.o.get("abl", "") if 1 <= p <= 4 else ""
            for g in rng:
                if not ("Q" in abl and g < 40 or "P" in abl and g >= 40): a(mf[g])
                for s_ in sc[g]: a(s_)
                if g in extra: a(extra[g])
                for kind, d, new in self.gaps[g]:
                    if kind in abl or (kind == "E" and d[0] in abl): continue
                    if kind == "V":
                        if vread: a(vrd[d])
                    elif kind == "K":
                        if kread: a(kr[d])
                        elif ksub: a(ksub.pop(0))
                    elif kind == "D":
                        if dma: a(f"buffer_load_dwordx4 {vr(V_DMA + d//4)}, {sr(S_XA,4)}, {sr(S_TOFF)} offen offset:{1024*(d%4)} lds")
                        elif dsub: a(dsub.pop(0))
                    elif (new and e_new) or (not new and e_old):
                        a(self.etext(bn if new else bo, d))

    MK, VO, VO8, GA, VS0, VS0R, VDW, VLW, VL8, VST, VPL = 232, 236, 9, 238, 250, 251, 244, 245, 246, 247, 248
    NB, PT, E_U, E_G, RS3, E_COL, RS1, RS2, MP1 = 3, 4, 5, 6, 7, 43, 36, 37, 38
    G0, GM, GP, U, DWT = 16, 26, 36, 80, (90, 252, 96, 100, 112, 116, 104, 94)
    XRS = (192, 196, 46)
    frag = staticmethod(lambda f, b: [(f, b + 4 * s) for s in range(5)])
    WD = [[("a", 216 + 4 * s) for s in range(5)], [("a", 234 + 4 * s) for s in range(5)], [("v", 208 + 4 * s) for s in range(5)]]
    WO = [[("a", 4 * s) for s in range(5)], [("a", 18 + 4 * s) for s in range(5)], [("a", 36), ("a", 40), ("a", 44), ("a", 48), ("a", 252)]]
    X1B = 98304
    X2O = L_SP - X1B
    L_L = L_SP + 9216

    def epi_setup(self):
        a = self.a
        T = S_T
        NB, PT, VO, GA = self.NB, self.PT, self.VO, self.GA
        r, g4, x, y, big, r0 = 52, 53, 54, 55, 56, 57
        a(f"""s_lshr_b32 {sr(NB)}, {sr(S_W)}, 1
        s_and_b32 {sr(PT)}, {sr(S_W)}, 1
        v_and_b32 {vr(r0)}, 15, v0
        v_lshrrev_b32 {vr(g4)}, 4, v0
        v_mul_u32_u24 {vr(x)}, 288, {vr(r0)}
        v_mov_b32 {vr(big)}, 0x40000000
        s_lshl_b32 {sr(T)}, {sr(S_TOWN)}, 1
        s_add_u32 {sr(T)}, {sr(T)}, {sr(NB)}
        s_lshl_b32 {sr(T)}, {sr(T)}, 4
        v_add_u32 {vr(r)}, {sr(T)}, {vr(r0)}
        s_mul_i32 {sr(T+1)}, {sr(S_TOWN)}, {TILE}
        s_mul_i32 {sr(T+2)}, {sr(PT)}, {BLK}
        v_add_u32 {vr(x)}, {sr(T+1)}, {vr(x)}
        s_sub_u32 {sr(T+3)}, {BLK}, {sr(T+2)}
        v_add_u32 {vr(y)}, {sr(T+3)}, {vr(x)}
        v_add_u32 {vr(x)}, {sr(T+2)}, {vr(x)}
        v_lshl_add_u32 {vr(VO)}, {vr(g4)}, 4, {vr(x)}
        v_lshl_add_u32 {vr(VO+1)}, {vr(g4)}, 4, {vr(y)}
        v_lshl_add_u32 {vr(self.VO8)}, {vr(g4)}, 3, {vr(x)}
        s_lshl_b32 {sr(T+3)}, {sr(PT)}, 11
        s_add_u32 {sr(self.E_U)}, {sr(T+3)}, {WS_U}
        s_add_u32 {sr(self.E_G)}, {sr(T+3)}, {WS_G}
        s_sub_u32 {sr(T+3)}, 4096, {sr(T+3)}
        s_lshl_b32 {sr(T)}, {sr(PT)}, 11
        s_add_u32 {sr(T)}, {sr(T)}, {WS_DWF}
        v_lshrrev_b32 {vr(x)}, 2, {vr(r0)}
        v_cmp_eq_u32 vcc, {vr(x)}, {vr(g4)}
        v_lshl_add_u32 {vr(self.VDW)}, {vr(r0)}, 4, {sr(T)}
        s_nop 0
        v_cndmask_b32 {vr(self.VDW)}, {vr(big)}, {vr(self.VDW)}, vcc
        s_lshl_b32 {sr(self.E_COL)}, {sr(S_W)}, 6
        v_lshlrev_b32 {vr(self.VL8)}, 3, v0
        v_add_u32 {vr(self.VL8)}, 4096, {vr(self.VL8)}
        v_add_u32 {vr(self.VST)}, {sr(S_LB)}, {vr(V_DMA)}
        v_add_u32 {vr(self.VST)}, {2*SLOT}, {vr(self.VST)}
        s_xor_b32 {sr(T)}, {sr(NB)}, 1
        v_xor_b32 {vr(x)}, {sr(T)}, {vr(g4)}
        v_lshl_add_u32 {vr(x)}, {vr(x)}, 4, {vr(r0)}
        s_lshl_b32 {sr(T)}, {sr(S_W)}, 2
        s_add_u32 {sr(T)}, {sr(T)}, {self.L_L}
        v_lshl_add_u32 {vr(self.VLW)}, {vr(x)}, 4, {sr(T)}
        s_sub_u32 {sr(self.MP1)}, 0, {sr(PT)}
        s_mov_b32 {sr(self.MP1+1)}, {sr(self.MP1)}""")
        for k, (d, base) in enumerate(((self.RS1, 3 * SLOT), (self.RS2, 2 * SLOT), (self.RS3, 2 * SLOT))):
            a(f"s_xor_b32 {sr(T)}, {sr(S_W)}, {k+1}\ns_mul_i32 {sr(T)}, {sr(T)}, {TILE}\ns_add_u32 {sr(d)}, {sr(T)}, {base}")
        a(f"""s_mul_i32 {sr(T)}, {sr(S_B)}, 4000
        s_add_u32 {sr(T+1)}, {sr(T)}, 3999
        s_mov_b32 {sr(T+2)}, {BLK}""")
        for k, dr in enumerate((0, -1, 1)):
            m = GA + 2 * k
            if dr: a(f"v_add_u32 {vr(m)}, {dr}, {vr(r)}\nv_cmp_eq_u32 vcc, {sr(T if dr < 0 else T+1)}, {vr(r)}")
            src = m if dr else r
            a(f"""v_lshrrev_b32 {vr(x)}, 4, {vr(src)}
            v_and_b32 {vr(y)}, 15, {vr(src)}
            v_mul_lo_u32 {vr(x)}, {vr(x)}, {sr(T+2)}
            v_lshl_add_u32 {vr(y)}, {vr(g4)}, 4, {vr(y)}
            v_lshl_add_u32 {vr(m)}, {vr(y)}, 4, {vr(x)}
            v_lshl_add_u32 {vr(m+1)}, {vr(y)}, 3, {vr(x)}
            v_add_u32 {vr(m+1)}, {sr(T+3)}, {vr(m+1)}""")
            if dr: a(f"v_cndmask_b32 {vr(m)}, {vr(m)}, {vr(big)}, vcc\nv_cndmask_b32 {vr(m+1)}, {vr(m+1)}, {vr(big)}, vcc")

    def conv_loads(self):
        GA = self.GA
        L = []
        for dst, m, so in ((self.GM, GA + 2, 1), (self.G0, GA, 1), (self.GP, GA + 4, 1), (self.U, GA, 0)):
            for k in range(2): L.append(f"buffer_load_dwordx4 {vr(dst+4*k,4)}, {vr(m)}, {sr(S_WS,4)}, {sr(self.E_U+so)} offen offset:{1024*k}")
            L.append(f"buffer_load_dwordx2 {vr(dst+8,2)}, {vr(m+1)}, {sr(S_WS,4)}, {sr(self.E_U+so)} offen")
        return L

    def rg(self, e, n): return (ar if e[0] == "a" else vr)(e[1], n)

    def w8_loads(self, regs, so):
        return [f"buffer_load_dwordx4 {self.rg(regs[s],4)}, {vr(V_DMA)}, {sr(S_WS,4)}, {sr(so)} offen offset:{1024*s}" for s in range(4)] + \
               [f"buffer_load_dwordx2 {self.rg(regs[4],2)}, {vr(self.VL8)}, {sr(S_WS,4)}, {sr(so)} offen"]

    def w_reads(self, regs, off):
        L = []
        for tt in range(2):
            L += [f"ds_read_b128 {self.rg(regs[tt][s],4)}, {vr(self.VS0)} offset:{off + BLK*tt + 1024*s}" for s in range(4)]
            L.append(f"ds_read_b64 {self.rg(regs[tt][4],2)}, {vr(self.VS0R)} offset:{off + BLK*tt}")
        return L

    def xa_srd(self):
        T = S_T
        return f"""s_mul_i32 {sr(T)}, {sr(S_B)}, {NT}
        s_mul_i32 {sr(T+1)}, {sr(S_H)}, 63
        s_add_u32 {sr(T+1)}, {sr(T+1)}, {sr(T)}
        s_mul_i32 {sr(T+1)}, {sr(T+1)}, {TILE}
        s_add_u32 {sr(S_XA)}, {sr(S_WS)}, {sr(T+1)}
        s_addc_u32 {sr(S_XA+1)}, {sr(S_WS+1)}, 0
        s_sub_u32 {sr(T+2)}, 63, {sr(S_H)}
        s_mul_i32 {sr(S_XA+2)}, {sr(T+2)}, {TILE}
        s_mov_b32 {sr(S_XA+3)}, 0x20000"""

    def rest(self):
        a, o = self.a, self.o
        T = S_T
        VPL = self.VPL
        self.plan()
        self.head()
        self.stamp("loop")
        if o.get("sktest") or o.get("echo") and o["echo"][0] == "skew":
            a(f"s_waitcnt lgkmcnt(0)\ns_mov_b64 exec, 1\ns_not_b32 s98, {sr(S_ST)}\nv_mov_b32 v226, s98\nv_mov_b32 v227, 4\ns_cmp_lg_u32 {sr(S_W)}, 0\ns_cbranch_scc1 L_sk\nbuffer_atomic_umax v226, v227, {sr(S_DB,4)}, 0 offen sc1\ns_waitcnt vmcnt(0)\nL_sk:\ns_mov_b64 exec, -1\ns_nop 3")
            self.stamp("sk")
        nh = o.get("ugh", 2)
        ex = {2 + 12 * k: x for k, x in enumerate(self.ugs[nh:])}
        ugl = o.get("ugl", 1)
        CL = 226
        clr = [f"buffer_store_dwordx4 {vr(CL,4)}, {vr(V_DMA)}, {sr(S_WS,4)}, {sr(S_CL)} offen sc1",
               f"buffer_store_dwordx4 {vr(CL,4)}, {vr(V_DMA)}, {sr(S_WS,4)}, {sr(S_CL)} offen offset:1024 sc1",
               f"buffer_store_dwordx2 {vr(CL,2)}, {vr(self.VL8)}, {sr(S_WS,4)}, {sr(S_CL+1)} offen sc1"]
        cll = o.get("cll", 1)
        ex0 = {69: self.ugs[0], 71: clr[0]} if cll else {69: self.ugs[0]}
        if o.get("gs", 0):
            for j, x in enumerate(self.tile_groups(3)):
                g_ = o.get("t3g", 2) + 4 * j
                x = x.split("\n")
                if x[0].startswith("s_add_u32 m0"): ex0[g_ - 1] = x[0]; x = x[2:]
                ex0[g_] = "\n".join(x)
        if ugl: self.period(0, extra=ex0)
        else: self.period(0, vm=9 + 5, extra=ex)
        self.stamp("l0")
        a.raw(".p2align 6")
        a.label("L_loop")
        self.stamp("q1")
        for p in range(1, 5):
            ex = {}
            vm = 9
            if p == 1: ex = {73: f"s_cmp_eq_u32 {sr(S_CNT)}, 3"}
            if p == 2: ex = {70: f"buffer_load_dword v252, {vr(VPL)}, {sr(S_WS,4)}, 0 offen sc1"}
            if p == 3:
                ex = {73: f"s_cmp_eq_u32 {sr(S_CNT)}, 2", 45: f"ds_add_rtn_u32 v230, v231, {vr(VPL+1)}"}
            if p == 4:
                self.stamp("la0")
                a(f"s_cbranch_scc1 L_last")
                a.label("L_lastb")
                self.stamp("la1")
                ex = {72: f"s_add_u32 {sr(S_CNT)}, {sr(S_CNT)}, 1", 1: f"v_readfirstlane_b32 {sr(T)}, v230", 3: f"s_cmp_eq_u32 {sr(T)}, 3",
                      4: f"s_cselect_b32 {sr(T)}, {sr(S_FB)}, 2.0", 6: f"buffer_store_dword v207, v231, {sr(S_WS,4)}, {sr(T)} offen sc1"}
            if ugl:
                ex[69] = self.ugs[p]
                if p < 3 and cll: ex[72] = clr[p]
                if p == 3 and cll: ex.update({70: f"s_mov_b32 {sr(S_CL)}, 2.0", 71: f"s_mov_b32 {sr(S_CL+1)}, 2.0"})
                if p == 4: ex.update({71: f"s_mov_b32 {sr(S_UG)}, 2.0", 2: f"s_lshl2_add_u32 {sr(T)}, {sr(S_CNT)}, {sr(T)}", 3: f"s_cmp_eq_u32 {sr(T)}, 7"})
                if p == 3: ex.update({43: f"s_and_b32 {sr(T)}, {sr(S_CNT)}, 1", 44: f"v_mov_b32 {vr(VPL+1)}, {sr(T)}", 48: ex.pop(45)})
            for k_ in range(o.get("pad", 0)): ex[10 + 7 * k_] = ex.get(10 + 7 * k_, "s_nop 0") + "\ns_nop 7"
            self.period(p, extra=ex, inc=sr(S_INC) if p == 4 else None)
            if p == 1: a("s_cbranch_scc1 L_p14")
        a("s_branch L_loop")
        a.label("L_p14")
        SW = 66
        self.stamp("p14")
        a(f"s_cmp_eq_u32 {sr(S_DUM)}, 4\ns_cbranch_scc0 L_dummyb")
        for i in range(16): a(f"v_mov_b32 {vr(V_CI+i)}, 0xff800000")
        a("s_nop 1")
        a.label("L_dummyb")
        ex = dict(zip([2, 6, 8, 12, 14, 18, 20, 24, 26, 30], self.w_reads(self.WD, 0)))
        ex[0] = "s_waitcnt vmcnt(9)"
        ex.update(dict(zip([4, 10, 16, 22, 28], self.w8_loads(self.WD[2], SW))))
        self.period(14, dma=False, kread=False, extra=ex, halves=(0,))
        self.stamp("tail")
        self.tail(SW)
        self.stamp("end")
        self.epilogue(SW)

    def rare(self):
        a = self.a
        T = S_T
        SW = 66
        a.label("L_last")
        a(f"s_waitcnt vmcnt(9)\ns_mov_b32 {sr(T+2)}, 0")
        a.label("L_late")
        xc = f"v_readlane_b32 {sr(S_SX)}, v252, 5\ns_sub_u32 {sr(S_SX)}, {sr(S_SX)}, {sr(S_N)}" if self.o.get("xm", 0) else ""
        a(f"""v_cmp_ne_u32 vcc, {sr(S_N)}, v252
        s_add_u32 {sr(S_XA)}, {sr(S_WS)}, {WS_WF}
        s_addc_u32 {sr(S_XA+1)}, {sr(S_WS+1)}, 0
        s_mov_b32 {sr(S_XA+2)}, {18*BLK}
        s_add_u32 {sr(S_TOFF)}, {sr(S_LB)}, {9*BLK}
        s_mov_b32 {sr(S_INC)}, {-9*BLK}
        s_lshr_b32 {sr(SW)}, {sr(S_W)}, 1
        s_lshl_b32 {sr(SW)}, {sr(SW)}, 30
        s_add_u32 {sr(SW+1)}, {sr(SW)}, {WS_WF + 8*BLK}
        s_add_u32 {sr(SW)}, {sr(SW)}, {WS_WF + 17*BLK}
        {xc}
        s_and_b32 {sr(T)}, vcc_lo, 31
        s_cbranch_scc0 L_lastb
        buffer_load_dword v252, {vr(self.VPL)}, {sr(S_WS,4)}, 0 offen sc1
        s_add_u32 {sr(T+2)}, {sr(T+2)}, 1
        s_waitcnt vmcnt(0)
        s_cmp_lt_u32 {sr(T+2)}, 0x40000
        s_cbranch_scc1 L_late
        s_branch L_lastb""")

    units = [(0, 0), (0, 1), (1, 0), (1, 1), (2, 0)]
    V15 = V_K

    def stage(self, slot, T):
        src = ar(A_O + 36 * slot + 4 * T, 4)
        if slot == 0: return f"ds_write_b128 {vr(self.VST)}, {src} offset:{1024*T}"
        if slot == 2: return f"ds_write_b128 {vr(self.VS0)}, {src} offset:{1024*T}"
        if T < 4: return f"ds_write_b128 {vr(self.VST)}, {src} offset:{SLOT + 1024*T + (4096 if slot == 3 else 0)}"
        return f"{'s_not_b64' if slot == 1 else 's_mov_b64'} exec, {sr(self.MP1,2)}\nds_write_b128 {vr(self.VST)}, {src} offset:{SLOT + 8192}\ns_mov_b64 exec, -1"

    def dwf(self, k, i):
        f = 5 * k + i
        return self.DWT[f >> 1] + 2 * (f & 1)

    def tail(self, SW):
        a, o = self.a, self.o
        mf, pos, start = [], {}, {}
        for t_, qb in ((14, 0), (14, 1), (15, 0), (15, 1), (14, 2), (15, 2), (14, 3), (15, 3)):
            start[t_, qb] = len(mf)
            for Tt in ([0, 1, 2, 3, 8, 4, 5, 6, 7] if qb & 1 else range(9)):
                o_ = ar(A_O + 36 * qb + 4 * Tt, 4)
                pos[t_, qb, Tt] = len(mf)
                mf.append(f"v_mfma_f32_16x16x32_bf16 {o_}, {vr((V_V if t_ == 14 else self.V15)+4*Tt,4)}, {vr(self.P(t_ & 1,qb),4)}, {o_}")
        lst = []
        for qb in range(4):
            for j in range(8):
                lst.append(("e", qb, j))
                if j & 1: lst.append(("c", qb, j // 2))
        lst += [("a", qb, j) for qb in range(4) for j in range(8)]
        items = self.e_items(1, lst, lambda qb, j: 0 if j < 4 else 1, lambda qb: start[15, qb] - 2)
        for it in items[48:]: it["lo"] = o.get("alo", 26)
        v15 = [dict(t=x, c=4, need=pos[15, 0, i // 2], hi=pos[15, 0, i // 2] - o.get("vlead", 7), lo=0 if i < 16 else 2) for i, x in enumerate(self.v_reads(3, self.V15))]
        wr = []
        nown = o.get("nown", 4)
        self.own = [(2, T_) for T_ in range(nown, 9)] + [(3, T_) for T_ in (0, 1, 2, 3, 8)]
        g = o.get("w0", 23)
        for k, (sl, Tt) in enumerate([(0, T_) for T_ in range(9)] + [(1, T_) for T_ in (0, 1, 2, 3, 8)] + [(2, T_) for T_ in range(nown)]):
            g = max(pos[15, sl, Tt] + 5, g)
            wr.append(dict(t=self.stage(sl, Tt), c=o.get("wc", 20), lo=int(g), hi=int(g)) if g < 72 else dict(t=self.stage(sl, Tt), c=4, lo=999))
            g += o.get("wsp", 2.7)
        n0 = len(items) + len(v15)
        wo = []
        for i, x in enumerate(self.w_reads(self.WO, SLOT)):
            r0 = self.WO[i // 5][i % 5][1]
            wo.append(dict(t=("@VM\n" if i == 0 else "") + x, c=4, dep=sorted({n0 + r0 // 4, n0 + (r0 + 3) // 4 if (r0 + 3) // 4 < 9 else n0 + 8}), lo=o.get("wo0", 40) + 3 * i, hi=o.get("wo0", 40) + 3 * i + 2))
        cl = self.conv_loads()
        dl = [f"buffer_load_dwordx4 {vr(self.DWT[r],4)}, {vr(self.VDW)}, {sr(S_WS,4)}, 0 offen offset:{256*r}" for r in range(7)]
        dl.append(f"buffer_load_dwordx2 {vr(self.DWT[7],2)}, {vr(self.VDW)}, {sr(S_WS,4)}, 0 offen offset:{256*7}")
        fr = {96: 9, 100: 18, 104: 45, 112: 27, 116: 36}
        vm = [(x, 0) for x in cl] + [(x, fr.get(self.DWT[r], 0)) for r, x in enumerate(dl)]
        used = {w["lo"] for w in wr}
        vi, g = [], o.get("m0", 24)
        for x, lo in vm:
            g = max(g, lo)
            while int(g) in used: g += 1
            vi.append(dict(t=x, c=8, lo=int(g), hi=int(g)) if g < 72 else dict(t=x, c=8, lo=999))
            g += o.get("msp", 2.2)
        left = self.pack(mf, items + v15 + wr + wo + vi)
        self.done_a = {(qb, j) for qb in range(4) for j in range(8) if self.etext(1, ("a", qb, j)) not in left}
        left = [x for x in left if not x.startswith("v_add_f32")]
        print("tail overflow", self.over, "left", len(left), "adds done", len(self.done_a))
        self.left = left

    def epilogue(self, SW):
        a, o = self.a, self.o
        T = S_T
        p = lambda r: vr(r, 2)
        NB, PT, MK, VO, units, MP1 = self.NB, self.PT, self.MK, self.VO, self.units, self.MP1
        U, GM, G0, GP = self.U, self.GM, self.G0, self.GP
        X2O = self.X2O
        R1, R2, R3 = 230, 231, 249
        LA, LS, M = 10, 226, 48

        def weave(main, fill, per):
            fill = list(fill)
            for x in main:
                a(x)
                for _ in range(per):
                    if fill: a(fill.pop(0))
            return fill
        for x in self.left:
            if not x.startswith("buffer"): a(x)
        lv = [x for x in self.left if x.startswith("buffer")]
        lv += [f"buffer_load_dwordx4 {vr(self.XRS[j],4)}, {vr(VO+j)}, {sr(S_X,4)}, {sr(self.E_COL)} offen" for j in range(2)]
        lv.append(f"buffer_load_dwordx2 {vr(self.XRS[2],2)}, {vr(self.VO8)}, {sr(S_X,4)}, 0 offen offset:256")
        S1 = lambda qb, j: self.S(1, qb, j)
        rounds = [[] for _ in range(6)]
        for qb in range(4):
            rem = [j for j in range(8) if (qb, j) not in self.done_a]
            prs = [j for j in rem if j % 2 == 0 and j + 1 in rem]
            sing = [j for j in rem if (j & ~1) not in prs]
            r_ = 0
            while len(prs) > 1:
                for x, y in zip(prs[0::2], prs[1::2]): rounds[r_].append(f"v_pk_add_f32 {p(S1(qb,x))}, {p(S1(qb,x))}, {p(S1(qb,y))}")
                prs = prs[0::2]; r_ += 1
            for k_, j in enumerate(sing + ([prs[0], prs[0] + 1] if prs else [])): rounds[min(5, max(r_, 2) + k_)].append(f"v_add_f32 {vr(V_L+qb)}, {vr(V_L+qb)}, {vr(S1(qb,j))}")
        for r_ in rounds:
            for x in r_: a(x)
        a(f"v_add_u32 {vr(R1)}, {sr(self.RS1)}, {vr(V_DMA)}\nv_add_u32 {vr(R2)}, {sr(self.RS2)}, {vr(V_DMA)}")
        self.treduce(V_L)
        a(f"ds_write_b32 {vr(self.VLW)}, {vr(V_L)}")
        acc = lambda slot: [f"v_accvgpr_read_b32 {vr(M+i)}, {ar(A_O+36*slot+16+i)}" for i in range(20)]
        a(f"""v_add_u32 {vr(R3)}, {sr(self.RS3)}, {vr(V_DMA)}
        v_add_u32 {vr(LA+1)}, {self.L_L}, {vr(V_DMA)}
        v_and_b32 {vr(LS+1)}, 0xf0, {vr(V_DMA)}
        s_lshl_b32 {sr(T)}, {sr(NB)}, 8
        s_add_u32 {sr(T+8)}, {sr(T)}, {self.L_L}
        v_add_u32 {vr(LS)}, {sr(T+8)}, {vr(LS+1)}""")
        for x in lv: a(x)
        a(f"""s_xor_b32 {sr(T)}, s2, 1
        s_mul_i32 {sr(T)}, {sr(T)}, {IB}
        s_mul_i32 {sr(T+9)}, {sr(NB)}, 5120
        s_add_u32 {sr(T+9)}, {sr(T+9)}, {WS_IB}
        s_add_u32 {sr(T)}, {sr(T)}, {sr(T+9)}
        s_lshl_b32 {sr(T+10)}, {sr(PT)}, 11
        s_add_u32 {sr(T+1)}, {sr(T+10)}, {sr(T)}
        s_add_u32 {sr(T)}, {sr(T)}, 4096
        s_cmp_eq_u32 {sr(PT)}, 0
        s_cselect_b32 {sr(T)}, 0x40000000, {sr(T)}
        s_mov_b32 {sr(T+2)}, {f32(2.0**100)}
        s_mul_i32 {sr(T+12)}, s2, {IB}
        s_add_u32 {sr(T+12)}, {sr(T+12)}, {sr(T+9)}
        s_add_u32 {sr(T+13)}, {sr(T+12)}, {sr(T+10)}
        s_waitcnt lgkmcnt(0)
        s_barrier""")
        self.stamp("B1")

        def rd(X, offs):
            L = [[f"ds_read_b128 {vr(X[k][i],4)}, {vr((R1, R2, R3)[k])} offset:{offs[k] + 1024*i}" for i in range(4)] for k in range(3)]
            L8 = [f"ds_read_b128 {vr(X[k][4],4)}, {vr((R1, R2, R3)[k])} offset:8192" for k in range(3)]
            return L, L8

        def adds(X, k, rng):
            return [f"v_pk_add_f32 {p(M+4*i+2*h)}, {p(M+4*i+2*h)}, {p(X[k][i]+2*h)}" for i in rng for h in range(2)]
        X = [[128, 132, 136, 140, 144], [148, 152, 156, 160, 68], [72, 76, 200, 204, 108]]
        PK = 128
        sfl = o.get("sfl", "")
        L, L8 = rd(X, (0, 4096, 0))
        a(f"ds_read_b128 {vr(LA,4)}, {vr(LA+1)}\nds_read_b128 {vr(LS,4)}, {vr(LS)}")
        rest = weave(L[0] + L[1] + L[2], acc(1), 2)
        assert not rest
        a(f"s_mov_b64 exec, {sr(MP1,2)}")
        for x in L8: a(x)
        a(f"""s_mov_b64 exec, -1
        s_waitcnt lgkmcnt(11)
        v_add_f32 {vr(LA)}, {vr(LA)}, {vr(LA+1)}
        v_add_f32 {vr(LA+2)}, {vr(LA+2)}, {vr(LA+3)}
        v_add_f32 {vr(LS)}, {vr(LS)}, {vr(LS+1)}
        v_add_f32 {vr(LA)}, {vr(LA)}, {vr(LA+2)}
        v_add_f32 {vr(LS+2)}, {vr(LS+2)}, {vr(LS+3)}
        v_cmp_nge_f32 vcc, {sr(T+2)}, {vr(LA)}""")
        for x in adds(X, 0, range(4)): a(x)
        a(f"""s_cmp_lg_u64 vcc, 0
        s_cselect_b32 {sr(T+2)}, 1, 0
        s_andn2_b32 {sr(T+2)}, {sr(T+2)}, {sr(S_REDO)}
        s_cbranch_scc1 L_fallback
        v_add_f32 {vr(PK+10)}, {vr(LS)}, {vr(LS+2)}
        v_mov_b32 {vr(PK+11)}, {vr(MK+1)}
        s_waitcnt lgkmcnt(7)""")
        for x in adds(X, 1, range(4)): a(x)
        a("s_waitcnt lgkmcnt(3)")
        a3 = adds(X, 2, range(4))
        cv = [f"v_cvt_pk_bf16_f32 {vr(PK+i)}, {vr(M+2*i)}, {vr(M+2*i+1)}" for i in range(10)]
        for x in a3[:4] + a3[4:6] + cv[:4]: a(x)

        def send(fl):
            a(f"buffer_store_dwordx4 {vr(PK,4)}, {vr(V_DMA)}, {sr(S_WS,4)}, {sr(T+1)} offen {fl}")
            for x in a3[6:] + cv[4:8]: a(x)
            a(f"buffer_store_dwordx4 {vr(PK+4,4)}, {vr(V_DMA)}, {sr(S_WS,4)}, {sr(T+1)} offen offset:1024 {fl}")
            a("s_waitcnt lgkmcnt(0)")
            for kk in range(3):
                for x in adds(XS, kk, [4]): a(x)
            for x in cv[8:]: a(x)
            a(f"buffer_store_dwordx4 {vr(PK+8,4)}, {vr(V_DMA)}, {sr(S_WS,4)}, {sr(T)} offen {fl}")
        XS = X
        self.send = send
        if o.get("xm", 0) and o.get("l2s", 1):
            a(f"s_cmp_eq_u32 {sr(S_SX)}, {sr(S_XC)}\ns_cbranch_scc0 L_far")
            send(sfl)
            a.label("L_sent")
        else: send("sc1")
        self.stamp("sent")
        a(f"s_cmp_eq_u32 {sr(S_VAL)}, 0\ns_cbranch_scc1 L_fin")
        C, UP = 140, 68
        IN = [(200, 204, 226), (164, 168, 252), (192, 196, 172)]
        VXW, VXR, VF, LO = 78, 79, 10, 36
        wr = [self.stage(*e) for e in self.own]

        def inbox(k):
            return [f"buffer_load_dwordx4 {vr(IN[k][0],4)}, {vr(V_DMA)}, {sr(S_WS,4)}, {sr(T+13)} offen sc1",
                    f"buffer_load_dwordx4 {vr(IN[k][1],4)}, {vr(V_DMA)}, {sr(S_WS,4)}, {sr(T+13)} offen offset:1024 sc1",
                    f"buffer_load_dwordx4 {vr(IN[k][2],4)}, {vr(V_DMA+1)}, {sr(S_WS,4)}, {sr(T+12)} offen sc1"]
        for x in inbox(0): a(x)
        n0 = len(a.lines)
        a(f"""s_lshl_b32 {sr(T)}, {sr(NB)}, 12
        s_add_u32 {sr(T)}, {sr(T)}, {sr(T+10)}
        s_add_u32 {sr(T)}, {sr(T)}, {self.X1B}
        v_add_u32 {vr(VXW)}, {sr(T)}, {vr(V_DMA)}
        s_lshl_b32 {sr(T)}, {sr(NB)}, 9
        s_add_u32 {sr(T)}, {sr(T)}, {self.X1B + 4096}
        v_add_u32 {vr(VXR)}, {sr(T)}, {vr(self.VL8)}
        s_lshl_b32 {sr(T)}, {sr(PT)}, 12
        s_add_u32 {sr(T)}, {sr(T)}, {self.X1B}
        v_add_u32 {vr(VF)}, {sr(T)}, {vr(V_DMA)}
        v_xor_b32 {vr(VF+1)}, 4096, {vr(VF)}
        s_lshl_b32 {sr(T)}, {sr(PT)}, 9
        s_add_u32 {sr(T)}, {sr(T)}, {self.X1B + 4096}
        v_add_u32 {vr(VF+2)}, {sr(T)}, {vr(self.VL8)}
        v_xor_b32 {vr(VF+3)}, 512, {vr(VF+2)}
        v_subrev_u32 {vr(R2)}, {2*SLOT}, {vr(R2)}
        v_subrev_u32 {vr(R3)}, {2*SLOT}, {vr(R3)}
        s_waitcnt vmcnt(9)""")
        self.stamp("cv0")
        un = [f"v_lshlrev_b32 {vr(M+2*i)}, 16, {vr(U+i)}\nv_and_b32 {vr(M+1+2*i)}, 0xffff0000, {vr(U+i)}" for i in range(10)]
        w8 = self.w8_loads(self.WO[2], SW + 1)
        for k, src in enumerate((GM, G0, GP)):
            for i in range(5):
                d = vr(C + 4 * i, 4)
                a(f"v_mfma_f32_16x16x16_bf16 {d}, {vr(self.dwf(k, i),2)}, {vr(src+2*i,2)}, {'0' if k == 0 else d}")
                a(w8.pop(0) if i in (0, 3) and w8 else un.pop(0))
        self.stamp("cv1")
        a(f"v_and_b32 {vr(LO+1)}, 0xf0, {vr(V_DMA)}\nv_add_u32 {vr(LO)}, {sr(T+8)}, {vr(LO+1)}\ns_nop 1")
        for i in range(10): a(f"v_pk_mul_f32 {p(C+2*i)}, {p(C+2*i)}, {p(M+2*i)}")
        for i in range(10):
            a(f"v_cvt_pk_bf16_f32 {vr(UP+i)}, {vr(C+2*i)}, {vr(C+2*i+1)}")
        body = a.lines[n0:]; del a.lines[n0:]
        step = max(1, len(body) // len(wr))
        for i, l in enumerate(body):
            if i % o.get("wstep", step) == 0 and wr: a(wr.pop(0))
            a.lines.append(l)
        for x in wr: a(x)
        ac = acc(3)
        a(f"ds_write_b128 {vr(VXW)}, {vr(UP,4)} offset:{X2O}")
        for x in ac[:6]: a(x)
        a(f"ds_write_b128 {vr(VXW)}, {vr(UP+4,4)} offset:{X2O + 1024}")
        for x in ac[6:12]: a(x)
        a(f"""s_mov_b64 exec, {sr(MP1,2)}
        ds_write_b64 {vr(VXR)}, {vr(UP+8,2)} offset:{X2O}
        s_mov_b64 exec, -1""")
        self.stamp("x2")
        for x in inbox(1): a(x)
        for x in ac[12:]: a(x)
        a("s_waitcnt lgkmcnt(0)\ns_barrier")
        self.stamp("B2")
        X = [[128, 132, 136, 140, 144], [148, 152, 156, 160, 188], [16, 20, 24, 28, 32]]
        L, L8 = rd(X, (4096, 4096, 0))
        BU = [[("v", r) for r in (100, 104, 108, 112, 116)], [("v", r) for r in (118, 122, 180, 184, 126)]]
        BO = [self.frag("v", 128), self.frag("v", 146)]
        AB = 80

        def bfrags(dst, off):
            out = []
            for s in range(5):
                for j in range(2):
                    out.append(f"ds_read_b128 {self.rg(dst[j][s],4)}, {vr(VF+j)} offset:{off + 1024*s}" if s < 4 else f"ds_read_b64 {self.rg(dst[j][4],2)}, {vr(VF+2+j)} offset:{off}")
            return out

        def fg(W, Bf):
            out = []
            for s in range(5):
                for u, (tt, j) in enumerate(units):
                    d = vr(AB + 4 * u, 4)
                    if s < 4: out.append(f"v_mfma_f32_16x16x32_bf16 {d}, {self.rg(W[tt][s],4)}, {self.rg(Bf[j][s],4)}, {d}")
                    else: out.append(f"v_mfma_f32_16x16x16_bf16 {d}, {self.rg(W[tt][4],2)}, {self.rg(Bf[j][4],2)}, {d}")
            return out
        xu = []
        for u, (tt, j) in enumerate(units):
            for h in range(2):
                x = self.XRS[j] + 2 * tt + h if tt < 2 else self.XRS[2] + h
                xu += [f"v_lshlrev_b32 {vr(AB+4*u+2*h)}, 16, {vr(x)}", f"v_and_b32 {vr(AB+1+4*u+2*h)}, 0xffff0000, {vr(x)}"]
        a("s_waitcnt vmcnt(14)")
        weave(bfrags(BU, X2O), xu, 2)
        pl = lambda k, i, e: f"v_add_f32 {vr(M+4*i+e)}, {vr(M+4*i+e)}, {vr(X[k][i]+e)}"
        ds = L[0] + L[1] + L[2] + [f"s_not_b64 exec, {sr(MP1,2)}\n" + "\n".join(L8) + "\ns_mov_b64 exec, -1", f"ds_read_b128 {vr(LO,4)}, {vr(LO)} offset:512"]
        nis = [1] * 12 + [3, 1]
        gap = [[] for _ in range(25)]
        tot = [10]
        for g in range(25): tot.append(tot[-1] + (nis[g] if g < 14 else 0))
        A0 = [pl(0, i, e) for i in range(4) for e in range(4)]
        A1 = [pl(1, i, e) for i in range(4) for e in range(4)]
        ib = inbox(2)
        for g, m in enumerate(fg(self.WD, BU)):
            if g % 5 == 0: a(f"s_waitcnt lgkmcnt({min(15, tot[g] - 2 * (g // 5 + 1))})")
            a(m)
            if g == 8: a(f"s_waitcnt lgkmcnt({tot[g] - 14})")
            if g == 16: a(f"s_waitcnt lgkmcnt({tot[g] - 18})")
            if g < 14: a(ds[g])
            if 8 <= g < 14: a(A0.pop(0))
            elif g in (14, 18, 22): a(ib.pop(0))
            elif g >= 14:
                for _ in range(2): a(A0.pop(0) if A0 else A1.pop(0))
        assert not A0 and len(A1) % 2 == 0
        n1 = 16 - len(A1)
        for e in range(n1, 16, 2): a(f"v_pk_add_f32 {p(M+e)}, {p(M+e)}, {p(X[1][e//4]+e%4)}")
        a("s_waitcnt lgkmcnt(0)")
        for x in adds(X, 2, range(4)): a(x)
        a(f"v_add_f32 {vr(LO)}, {vr(LO)}, {vr(LO+1)}\nv_add_f32 {vr(LO+2)}, {vr(LO+2)}, {vr(LO+3)}")
        for kk in range(3):
            for x in adds(X, kk, [4]): a(x)
        a(f"s_mov_b32 {sr(T+2)}, 0\nv_add_f32 {vr(LO)}, {vr(LO)}, {vr(LO+2)}")
        self.stamp("own")
        w, PU = 40, 128
        mo = MK + 3

        def chk(k):
            r = [IN[k][q] + i for q in range(3) for i in range(4)]
            c = [f"v_max3_u32 v46, {vr(r[0])}, {vr(r[1])}, {vr(r[2])}", f"v_max3_u32 v47, {vr(r[3])}, {vr(r[4])}, {vr(r[5])}"]
            for q in range(3): c.append(f"v_max3_u32 v{46+(q&1)}, v{46+(q&1)}, {vr(r[6+2*q])}, {vr(r[7+2*q])}")
            return c + ["v_max_u32 v46, v46, v47", "v_cmp_eq_u32 vcc, -1, v46"]

        def take(k, with_chk):
            r = [IN[k][q] + i for q in range(3) for i in range(4)]
            lp_, mp = r[10], r[11]
            wt = [f"v_min_f32 {vr(w)}, {vr(mo)}, {vr(mp)}", f"v_sub_f32 {vr(w+2)}, {vr(w)}, {vr(mp)}", f"v_sub_f32 {vr(w)}, {vr(w)}, {vr(mo)}",
                  f"v_exp_f32 {vr(w+2)}, {vr(w+2)}", f"v_exp_f32 {vr(w)}, {vr(w)}", f"v_mul_f32 {vr(w+4)}, {vr(w+2)}, {vr(lp_)}",
                  f"v_fmac_f32 {vr(w+4)}, {vr(w)}, {vr(LO)}", f"v_rcp_f32 {vr(w+4)}, {vr(w+4)}", f"v_mul_f32 {vr(w)}, {vr(w)}, {vr(w+4)}",
                  f"v_mul_f32 {vr(w+2)}, {vr(w+2)}, {vr(w+4)}"]
            un = []
            for i in range(10): un += [f"v_lshlrev_b32 {vr(PU+2*i)}, 16, {vr(r[i])}", f"v_and_b32 {vr(PU+1+2*i)}, 0xffff0000, {vr(r[i])}"]
            c = chk(k) if with_chk else []
            for i in range(10):
                a(wt[i])
                if c: a(c.pop(0))
                a(un.pop(0)); a(un.pop(0))
        a("s_waitcnt vmcnt(6)")
        take(0, True)
        a("s_cmp_eq_u64 vcc, 0\ns_cbranch_scc0 L_poll2")
        a.label("L_got")
        self.stamp("got")
        for i in range(10): a(f"v_pk_mul_f32 {p(M+2*i)}, {p(M+2*i)}, {p(w)} op_sel_hi:[1,0]")
        for i in range(10): a(f"v_pk_fma_f32 {p(M+2*i)}, {p(PU+2*i)}, {p(w+2)}, {p(M+2*i)} op_sel_hi:[1,0,1]")
        for i in range(10):
            a(f"v_cvt_pk_bf16_f32 {vr(UP+i)}, {vr(M+2*i)}, {vr(M+2*i+1)}")
            if i == 3: a(f"ds_write_b128 {vr(VXW)}, {vr(UP,4)}")
            if i == 7: a(f"ds_write_b128 {vr(VXW)}, {vr(UP+4,4)} offset:1024")
        a(f"""s_not_b64 exec, {sr(MP1,2)}
        ds_write_b64 {vr(VXR)}, {vr(UP+8,2)}
        s_mov_b64 exec, -1
        s_waitcnt lgkmcnt(0)
        s_barrier""")
        self.stamp("B3")
        for x in bfrags(BO, 0): a(x)
        for g, m in enumerate(fg(self.WO, BO)):
            if g % 5 == 0: a(f"s_waitcnt lgkmcnt({8 - 2 * (g // 5)})" + ("\ns_nop 0" if g == 20 else ""))
            a(m)
        self.stamp("gem")
        a("s_nop 3")
        for j in range(2):
            for tt in range(2):
                u = 2 * tt + j
                for h in range(2): a(f"v_cvt_pk_bf16_f32 {vr(16+4*j+2*tt+h)}, {vr(AB+4*u+2*h)}, {vr(AB+4*u+2*h+1)}")
            a(f"buffer_store_dwordx4 {vr(16+4*j,4)}, {vr(VO+j)}, {sr(S_OUT,4)}, {sr(self.E_COL)} offen {o.get('ofl', '')}")
        a(f"s_cmp_ge_u32 {sr(S_W)}, 2\ns_cbranch_scc1 L_fin")
        for h in range(2): a(f"v_cvt_pk_bf16_f32 {vr(24+h)}, {vr(AB+16+2*h)}, {vr(AB+16+2*h+1)}")
        a(f"buffer_store_dwordx2 v[24:25], {vr(self.VO8)}, {sr(S_OUT,4)}, 0 offen offset:256 {o.get('ofl', '')}")
        self.stamp("fin")

        def poll2():
            a.label("L_poll2")
            for k in (1, 2, 0):
                for x in inbox((k + 2) % 3): a(x)
                a("s_waitcnt vmcnt(6)")
                for x in chk(k): a(x)
                a(f"s_add_u32 {sr(T+2)}, {sr(T+2)}, 1\ns_cmp_eq_u64 vcc, 0\ns_cbranch_scc1 L_take{k}")
            a(f"s_cmp_lt_u32 {sr(T+2)}, 0x10000\ns_cbranch_scc1 L_poll2")
            for k in (0, 1, 2):
                a.label(f"L_take{k}")
                take(k, False)
                a("s_branch L_got")
            if o.get("xm", 0) and o.get("l2s", 1):
                a.label("L_far")
                send("sc1")
                a("s_branch L_sent")
        self.poll2 = poll2

    def fallback(self):
        a = self.a
        T = S_T
        MXR = 208
        a.label("L_fallback")
        a(f"""s_waitcnt vmcnt(0) lgkmcnt(0)
        s_barrier
        s_mov_b32 {sr(S_REDO)}, 1
        s_mov_b32 {sr(S_UG)}, 0x40000000
        {self.xa_srd()}
        s_mov_b32 {sr(S_TOFF)}, {sr(S_LB)}
        s_cmp_eq_u32 {sr(S_DUM)}, 4
        s_cselect_b32 {sr(S_CNT)}, 15, 16""")
        for i in range(4): a(f"v_mov_b32 {vr(MXR+i)}, 0xff800000")
        a.label("L_fb1")
        for g in self.tile_groups(0): a(g)
        a("s_waitcnt vmcnt(0)")
        for x in self.k_reads(0): a(x)
        a("s_waitcnt lgkmcnt(0)")
        for m in self.qk_mfmas(0, czero=True): a(m)
        a("s_nop 7")
        for qb in range(4):
            for i in range(0, 8, 2): a(f"v_max3_f32 {vr(MXR+qb)}, {vr(MXR+qb)}, {vr(self.S(0,qb,i))}, {vr(self.S(0,qb,i+1))}")
        a(f"s_sub_u32 {sr(S_CNT)}, {sr(S_CNT)}, 1\ns_cmp_lg_u32 {sr(S_CNT)}, 0\ns_cbranch_scc1 L_fb1")
        self.greduce([MXR + i for i in range(4)], MXR + 4, "v_max_f32")
        a(f"""v_and_b32 {vr(MXR+4)}, 15, v0
        v_lshlrev_b32 {vr(MXR+4)}, 4, {vr(MXR+4)}
        v_add_u32 {vr(MXR+4)}, {L_SP}, {vr(MXR+4)}
        s_lshl_b32 {sr(T)}, {sr(S_W)}, 2
        s_xor_b32 {sr(T+1)}, {sr(self.NB)}, 1
        v_lshl_add_u32 {vr(MXR+5)}, {sr(self.NB)}, 8, {vr(MXR+4)}
        v_lshl_add_u32 {vr(MXR+4)}, {sr(T+1)}, 8, {vr(MXR+4)}
        v_add_u32 {vr(MXR+6)}, {sr(T)}, {vr(MXR+4)}
        v_add_u32 {vr(MXR+7)}, {sr(T)}, {vr(MXR+5)}""")
        for qb in range(4): a(f"ds_write_b32 {vr(MXR+6+(qb&1))}, {vr(MXR+qb)} offset:{512*(qb>>1)}")
        a("s_waitcnt lgkmcnt(0)\ns_barrier")
        for qb in range(4): a(f"ds_read_b128 {vr(16+4*qb,4)}, {vr(MXR+4+(qb&1))} offset:{512*(qb>>1)}")
        a(f"s_mov_b32 {sr(S_TOFF)}, {sr(S_LB)}")
        for g in self.tile_groups(0) + self.tile_groups(1) + ([] if self.o.get("gs", 0) else self.tile_groups(2)[:8]): a(g)
        a("s_waitcnt lgkmcnt(0)")
        for qb in range(4):
            r = 16 + 4 * qb
            a(f"v_max_f32 {vr(r)}, {vr(r)}, {vr(r+1)}\nv_max3_f32 {vr(r)}, {vr(r)}, {vr(r+2)}, {vr(r+3)}")
            a(f"v_sub_f32 {vr(self.MK+qb)}, 0, {vr(r)}")
        a("s_waitcnt vmcnt(0)")
        for x in self.k_reads(0, V_V): a(x)
        self.loop_init(False)
        if self.o.get("gs", 0): self.loop_init(True)
        a("s_branch L_go")


if __name__ == "__main__":
    opt = json.loads(sys.argv[2]) if len(sys.argv) > 2 else {}
    g = G(opt)
    txt = g.build()
    if opt.get("align", 1):
        from align import align
        for n2 in (1, 2):
            try:
                txt, st = align(txt, chains=[(1, "L_tr")] * 3 + [(1, "L_tr2"), (n2, "L_tr2")] if opt.get("touch", 1) else None)
                break
            except AssertionError as e:
                if n2 == 2: raise
        print("align: promoted %d, padded %d, left %d" % st)
    txt = txt.replace("\n", "\n; stamps " + json.dumps(g.stnames) + "\n; map %d\n" % g.mp, 1)
    open(sys.argv[1], "w").write(txt)
```

```python
import sys, json, math
from common import Asm, vr, ar, sr, kernel_header, kernel_desc
from lay import *

NAME = "standalone__conformer_family_branchformer__speech_kernel"
NH = 2
NWG = 252 + NH
CHAINS = (3, 3)
RING = 4
LDS_RING = RING * TILE
LDS_TOTAL = 163840
SLOT = 4 * TILE
L_WU, L_WQ, L_WK = 0, 41472, 82944
L_XX, L_XR = 126976, 143360
L_QD = 18432
L_XS = L_XX + L_QD
L_MX = 81920
L_PC = LDS_TOTAL - 256
L_DUMP = 123904
L_SP = 147456

S_X, S_WS, S_XA, S_DB, S_W1, S_W2, S_OUT, S_DW = 8, 12, 16, 20, 24, 28, 32, 36
S_W, S_B, S_H, S_QB, S_TOFF, S_CNT, S_DUM, S_LB, S_TOWN, S_TSND, S_VAL, S_REDO = range(40, 52)
S_UG, S_CL = 25, 26
S_PH, S_XC, S_SX = 6, 74, 75
S_OS, S_OR = 28, 29
S_N, S_FB = 98, 99
S_INC = 24
S_T = 52
S_ST = 76

V_KA, V_VA, V_VR, V_DMA, V_L, V_VB = 1, 3, 5, 6, 10, 14
V_S, V_CI, V_P, V_K, V_V = 16, 80, 96, 128, 164
V_HI = 200
V_X = 208
A_O, A_Q, A_F = 0, 144, 216

LOG2E = 1.4426950408889634
import struct
def f32(x): return "0x%08x" % struct.unpack("<I", struct.pack("<f", x))[0]


class BAsm(Asm):
    def __init__(self):
        super().__init__()
        self.bg, self.every, self.cnt, self.skip = [], 0, 0, 0

    def __call__(self, s):
        for l in s.split("\n"):
            l = l.strip()
            if not l: continue
            self.lines.append("    " + l)
            if self.bg and self.every and not l.startswith(("s_nop", "v_mov_b32", "v_exp", "v_rcp", "v_rsq", "v_sqrt", "s_add_u32 m0")):
                self.cnt += 1
                if self.cnt >= self.every:
                    self.cnt = 0
                    self.pop()

    def pop(self):
        for x in self.bg.pop(0).split("\n"): self.lines.append("    " + x)

    def flush(self):
        while self.bg: self.pop()
        self.every = 0


class G:
    def __init__(self, opt):
        self.o = opt
        self.a = BAsm()
        self.nst = 0
        self.fill = []

    def stamp(self, name):
        if self.o.get("stamps"):
            if name in self.o.get("skipst", []): return
            if "only" in self.o and name not in self.o["only"]: return
            if self.nst >= 11: return
            self.a(f"{'s_memtime' if self.o.get('cyc') else 's_memrealtime'} {sr(S_ST + 2*self.nst, 2)}")
            self.stnames.append(name)
            self.nst += 1

    def srd(self, dst, lo, hi, n):
        if dst == S_WS and self.o.get("wsoff"):
            self.a(f"s_add_u32 {sr(dst)}, {sr(lo)}, {self.o['wsoff']}\ns_addc_u32 {sr(dst+1)}, {sr(hi)}, 0\ns_mov_b32 {sr(dst+2)}, {n}\ns_mov_b32 {sr(dst+3)}, 0x20000")
            return
        self.a(f"s_mov_b32 {sr(dst)}, {sr(lo)}\ns_mov_b32 {sr(dst+1)}, {sr(hi)}\ns_mov_b32 {sr(dst+2)}, {n}\ns_mov_b32 {sr(dst+3)}, 0x20000")

    def greduce(self, regs, tmp, op="v_add_f32"):
        a = self.a
        for sw in ("32", "16"):
            for i, r in enumerate(regs): a(f"v_mov_b32 {vr(tmp+i)}, {vr(r)}")
            if len(regs) < 3: a("s_nop 1" if len(regs) == 1 else "s_nop 0")
            for i, r in enumerate(regs): a(f"v_permlane{sw}_swap_b32 {vr(r)}, {vr(tmp+i)}")
            for i, r in enumerate(regs): a(f"{op} {vr(r)}, {vr(r)}, {vr(tmp+i)}")

    def treduce(self, r, op="v_add_f32"):
        a = self.a
        a(f"v_permlane32_swap_b32 {vr(r)}, {vr(r+2)}\nv_permlane32_swap_b32 {vr(r+1)}, {vr(r+3)}")
        a(f"{op} {vr(r)}, {vr(r)}, {vr(r+2)}\n{op} {vr(r+1)}, {vr(r+1)}, {vr(r+3)}\ns_nop 1")
        a(f"v_permlane16_swap_b32 {vr(r)}, {vr(r+1)}\n{op} {vr(r)}, {vr(r)}, {vr(r+1)}")

    def rbf(self, r):
        self.a(f"v_cvt_pk_bf16_f32 {vr(r)}, {vr(r)}, {vr(r)}\nv_lshlrev_b32 {vr(r)}, 16, {vr(r)}")

    def ln_tail(self, F, out, t, mimic):
        a = self.a
        p = lambda r: vr(r, 2)
        self.greduce([t, t + 1], t + 2)
        a(f"v_mul_f32 {vr(t+2)}, {f32(1.0/144)}, {vr(t)}")
        a(f"v_mul_f32 {vr(t+3)}, {vr(t+2)}, {vr(t+2)}")
        a(f"v_mov_b32 {vr(t+4)}, {f32(1.0/144)}")
        a(f"v_fma_f32 {vr(t)}, {vr(t+1)}, {vr(t+4)}, -{vr(t+3)}")
        a(f"v_max_f32 {vr(t)}, 0, {vr(t)}")
        if mimic:
            self.rbf(t)
            self.rbf(t + 2)
            a(f"v_add_f32 {vr(t)}, {f32(1e-5)}, {vr(t)}")
            self.rbf(t)
            a(f"v_sqrt_f32 {vr(t)}, {vr(t)}\ns_nop 0")
            self.rbf(t)
            a(f"v_rcp_f32 {vr(t)}, {vr(t)}\ns_nop 0")
        else:
            a(f"v_add_f32 {vr(t)}, {f32(1e-5)}, {vr(t)}")
            a(f"v_rsq_f32 {vr(t)}, {vr(t)}\ns_nop 0")
        a(f"v_mul_f32 {vr(t+2)}, -{vr(t+2)}, {vr(t)}")
        for i in range(18):
            a(f"v_pk_fma_f32 {p(F+2*i)}, {p(F+2*i)}, {p(t)}, {p(t+2)} op_sel_hi:[1,0,0]")
        for i in range(18):
            a(f"v_cvt_pk_bf16_f32 {vr(out+i)}, {vr(F+2*i)}, {vr(F+2*i+1)}")

    def ln_packed(self, X, F, out, t):
        a = self.a
        a(f"v_mov_b32 {vr(t+6)}, 0x3f803f80")
        for k in range(4): a(f"v_mov_b32 {vr(t+k)}, 0")
        for i in range(18):
            a(f"v_dot2_f32_bf16 {vr(t+2*(i&1))}, {vr(X+i)}, {vr(t+6)}, {vr(t+2*(i&1))}")
            a(f"v_dot2_f32_bf16 {vr(t+1+2*(i&1))}, {vr(X+i)}, {vr(X+i)}, {vr(t+1+2*(i&1))}")
        for i in range(2):
            a(f"v_lshlrev_b32 {vr(F+2*i)}, 16, {vr(X+i)}\nv_and_b32 {vr(F+2*i+1)}, 0xffff0000, {vr(X+i)}")
        a(f"v_pk_add_f32 {vr(t,2)}, {vr(t,2)}, {vr(t+2,2)}")
        un = []
        for i in range(2, 18):
            un.append(f"v_lshlrev_b32 {vr(F+2*i)}, 16, {vr(X+i)}\nv_and_b32 {vr(F+2*i+1)}, 0xffff0000, {vr(X+i)}")
        sv = (a.bg, a.every, a.cnt, a.skip)
        n0 = len(a.lines)
        a.bg, a.every = [], 0
        self.ln_tail(F, out, t, True)
        tail = a.lines[n0:]
        del a.lines[n0:]
        a.bg, a.every, a.cnt, a.skip = sv
        k = next(i for i, l in enumerate(tail) if "v_pk_fma" in l)
        for i, l in enumerate(tail[:k]):
            if "s_nop" in l and un: continue_nop = True
            a(l)
            if un and not l.strip().startswith("s_nop"): a(un.pop(0))
        while un: a(un.pop(0))
        for l in tail[k:]: a(l)

    def ln_f32(self, F, out, t):
        a = self.a
        p = lambda r: vr(r, 2)
        a(f"v_pk_add_f32 {p(t)}, {p(F)}, {p(F+2)}\nv_pk_add_f32 {p(t+2)}, {p(F+4)}, {p(F+6)}")
        a(f"v_pk_mul_f32 {p(t+4)}, {p(F)}, {p(F)}\nv_pk_mul_f32 {p(t+6)}, {p(F+2)}, {p(F+2)}")
        for i in range(2, 18):
            if i >= 4: a(f"v_pk_add_f32 {p(t+2*(i&1))}, {p(t+2*(i&1))}, {p(F+2*i)}")
            a(f"v_pk_fma_f32 {p(t+4+2*(i&1))}, {p(F+2*i)}, {p(F+2*i)}, {p(t+4+2*(i&1))}")
        a(f"v_pk_add_f32 {p(t)}, {p(t)}, {p(t+2)}\nv_pk_add_f32 {p(t+4)}, {p(t+4)}, {p(t+6)}")
        a(f"v_add_f32 {vr(t)}, {vr(t)}, {vr(t+1)}\nv_add_f32 {vr(t+1)}, {vr(t+4)}, {vr(t+5)}")
        self.ln_tail(F, out, t, False)

    def gemm_u(self, AF, rf, Bs, ACC, afr, bfr, post, vm_items=(), other=(), lead=7, vm0=0, vmsp=4, at={}, lastk=0):
        a = self.a
        units = [(0, j) for j in range(4)] + [(1, j) for j in range(4)] + [(2, 0)]
        seq, dl = [], {}
        bs = lambda j, o_, n: self.rg((Bs[j][0], Bs[j][1] + o_), n)
        rem = lambda u: (f"v_mfma_f32_16x16x16_bf16 {vr(ACC+4*u,4)}, {rf(AF+18*units[u][0]+16,2)}, {bs(units[u][1],16,2)}, {vr(ACC+4*u,4)}", u)
        A = [afr(t) for t in range(3)]
        Bf = [bfr(j) for j in range(4)]

        def use(t, j, s, k):
            for x in (A[t][2 * s:2 * s + 2] if s < 4 else A[t][8:]) + ([Bf[j][s]] if Bf[j] else []): dl.setdefault(x, k)
        for g in range(4):
            for s in range(4):
                for u in range(3 * g, 3 * g + 3) if g < 3 else []:
                    t, j = units[u]
                    d = vr(ACC + 4 * u, 4)
                    use(t, j, s, len(seq))
                    seq.append((f"v_mfma_f32_16x16x32_bf16 {d}, {rf(AF+18*t+4*s,4)}, {bs(j,4*s,4)}, {'0' if s == 0 else d}", None))
                if s == 0 and g > 0:
                    for u in range(3 * g - 3, 3 * g):
                        use(units[u][0], units[u][1], 4, len(seq)); seq.append(rem(u))
        last = seq[-3:]; seq = seq[:-3]
        ds = sorted(dl.items(), key=lambda e: e[1]) + [(x, 99) for x in other]
        vm_items = list(vm_items)
        lastvm = vm0 - vmsp
        order, ready, q, done = [], [], [], 0

        def issue():
            x, k_ = ds.pop(0); a(x); order.append(k_)

        def wait(k):
            nonlocal done
            idx = [i_ for i_, k_ in enumerate(order) if k_ <= k]
            if idx and max(idx) + 1 > done:
                a(f"s_waitcnt lgkmcnt({min(15, len(order) - 1 - max(idx))})"); done = max(idx) + 1
        while ds and ds[0][1] < 6: issue()
        for k, (m, fin) in enumerate(seq):
            assert not ds or ds[0][1] > k, (k, ds[0])
            wait(k)
            a(m)
            for u_, kk in list(ready):
                if k - kk >= 4: q += post(u_); ready.remove((u_, kk))
            if fin is not None: ready.append((fin, k))
            if k in at: at[k]()
            due = sum(1 for x, k_ in ds if k_ <= k + lead)
            if due == 0 and vm_items and k >= lastvm + vmsp and (len(vm_items) > 1 or k >= lastk):
                a(vm_items.pop(0)); lastvm = k; continue
            cap = 2
            for _ in range(min(due, 3)): issue(); cap -= 1
            if cap == 2:
                if q and q[0].startswith("ds_"): a(q.pop(0)); order.append(99); cap -= 1
                elif ds: issue(); cap -= 1
            while cap > 0 and q and not q[0].startswith("ds_"):
                a(q.pop(0)); cap -= 1
        assert not ready
        while ds: issue()
        wait(98)
        for x in vm_items: a(x)
        for x in q[:4]: a(x)
        a(f"s_nop {max(0, 4 - len(q[:4]))}")
        for m, _ in last: a(m)
        for x in q[4:]: a(x)
        a(f"s_nop {max(0, 6 - len(q[4:]))}")
        for u in range(6, 9):
            for x in post(u): a(x)

    def gemm(self, reads, B, ACC, AF, late=(), at={}, per=2):
        a = self.a
        buf = lambda T: 18 * (T % 6)
        ng = 3 * (4 * per + 1)

        def grp(g):
            r = [reads(T, buf(T)) for T in range(3 * g, 3 * g + 3)]
            return [r[t][per * s + u] for s in range(4) for t in range(3) for u in range(per)] + [r[t][4 * per] for t in range(3)]
        rem = lambda T: f"v_mfma_f32_16x16x16_bf16 {vr(ACC+4*T,4)}, {ar(buf(T)+16,2)}, {vr(B+16,2)}, {vr(ACC+4*T,4)}"
        pend = grp(0) + grp(1) + grp(2) + list(late)
        issued = k = 0

        def issue(n):
            nonlocal issued
            for _ in range(n):
                if issued < len(pend): a(pend[issued]); issued += 1

        def mf(x):
            nonlocal k
            a(x); issue(per if per == 2 else (2 if k % 4 == 0 else 1))
            if k in at: a(at[k])
            k += 1
        issue(self.o.get('look', 12) if per == 2 else self.o.get('look1', 8))
        for g in range(3):
            for s in range(4):
                need = ng * g + 3 * per * (s + 1)
                a(f"s_waitcnt lgkmcnt({min(15, issued - need)})")
                for T in range(3 * g, 3 * g + 3):
                    d = vr(ACC + 4 * T, 4)
                    mf(f"v_mfma_f32_16x16x32_bf16 {d}, {ar(buf(T)+4*s,4)}, {vr(B+4*s,4)}, {'0' if s == 0 else d}")
                if s == 0 and g > 0:
                    for T in range(3 * g - 3, 3 * g): mf(rem(T))
                if g == 1 and s == 0: assert issued <= 2 * ng + 6 * per, "group 2 overwrites group 0 too early"
        issue(99)
        a(f"s_waitcnt lgkmcnt({len(late)})\ns_nop 2")
        for T in range(6, 9): a(rem(T))
        a("s_nop 7")

    def tr_reads(self, ad, rf=ar):
        def f(T, dst):
            out = []
            for s in range(4):
                for u in range(2):
                    out.append(f"ds_read_b64_tr_b16 {rf(dst+4*s+2*u,2)}, {vr(ad+u)} offset:{9216*s + 32*T}")
            out.append(f"ds_read_b64_tr_b16 {rf(dst+16,2)}, {vr(ad+2)} offset:{36864 + 32*T}")
            return out
        return f

    def row_reads(self, ad, sw=None):
        def f(T, dst):
            r = ad if sw is None or T == 8 else sw[T & 1]
            out = []
            for s in range(4):
                for u in range(2):
                    out.append(f"ds_read_b64 {ar(dst+4*s+2*u,2)}, {vr(r)} offset:{4864*T + 64*s + 32*u}")
            out.append(f"ds_read_b64 {ar(dst+16,2)}, {vr(r)} offset:{4864*T + 256}")
            return out
        return f

    def dma_rows(self, jobs, cpr, rstride, vo, vc, n_first, first_waves, lab):
        a = self.a
        mul = {18: 3641, 19: 3450}[cpr]
        dr, dc = 256 // cpr, 256 % cpr
        a(f"s_lshl_b32 {sr(S_T)}, {sr(S_W)}, 6")
        a(f"v_add_u32 {vr(vc)}, {sr(S_T)}, v0")
        a(f"v_mul_u32_u24 {vr(vo)}, {mul}, {vr(vc)}")
        a(f"v_lshrrev_b32 {vr(vo)}, 16, {vr(vo)}")
        a(f"v_mul_u32_u24 {vr(vc+1)}, {cpr}, {vr(vo)}")
        a(f"v_sub_u32 {vr(vc)}, {vr(vc)}, {vr(vc+1)}")
        a(f"v_mul_u32_u24 {vr(vo)}, {rstride}, {vr(vo)}")
        a(f"v_lshl_add_u32 {vr(vo)}, {vr(vc)}, 4, {vr(vo)}")
        a(f"s_lshl_b32 {sr(S_T)}, {sr(S_W)}, 10")
        a(f"v_mov_b32 {vr(vc+1)}, {rstride - 16*cpr}")
        for k in range(n_first):
            if k == n_first - 1:
                a(f"s_cmp_ge_u32 {sr(S_W)}, {first_waves}\ns_cbranch_scc1 {lab}")
            for srd, so, lb in jobs:
                a(f"s_add_u32 m0, {sr(S_T)}, {lb + 4096*k}")
                a("s_nop 0")
                a(f"buffer_load_dwordx4 {vr(vo)}, {sr(srd,4)}, {so} offen lds")
            if k < n_first - 1:
                a(f"v_add_u32 {vr(vc)}, {dc}, {vr(vc)}")
                a(f"v_cmp_le_u32 vcc, {cpr}, {vr(vc)}")
                a(f"v_add_u32 {vr(vo)}, {dr*rstride + 16*dc}, {vr(vo)}")
                a(f"v_subrev_u32 {vr(vc+2)}, {cpr}, {vr(vc)}")
                a(f"v_cndmask_b32 {vr(vc)}, {vr(vc)}, {vr(vc+2)}, vcc")
                a(f"v_cndmask_b32 {vr(vc+2)}, 0, {vr(vc+1)}, vcc")
                a(f"v_add_u32 {vr(vo)}, {vr(vo)}, {vr(vc+2)}")
        a.label(lab)

    def voff_table(self, dst, cpr, rstride, vc, step=256):
        a = self.a
        mul = {18: 29128, 19: 27595}[cpr]
        n = len(dst)
        a(f"s_mov_b32 {sr(S_T)}, {rstride - 16*cpr}")
        a(f"v_mul_u32_u24 {vr(dst[0])}, {mul}, {vr(vc)}")
        for k in range(1, n): a(f"v_add_u32 {vr(dst[k])}, {(step*k % cpr)*mul}, {vr(dst[0])}")
        for k in range(n): a(f"v_lshrrev_b32 {vr(dst[k])}, 19, {vr(dst[k])}")
        for k in range(n): a(f"v_mad_i32_i24 {vr(dst[k])}, {vr(dst[k])}, {sr(S_T)}, {vr(vc+1)}")

    def dma_lin(self, srd, soff, lb, v16, lab):
        a = self.a
        a(f"s_lshl_b32 {sr(S_T)}, {sr(S_W)}, 10")
        for k in range(11):
            if k == 10:
                a(f"s_cmp_ge_u32 {sr(S_W)}, 1\ns_cbranch_scc1 {lab}")
            a(f"s_add_u32 m0, {sr(S_T)}, {lb + 4096*k}")
            a(f"s_add_u32 {sr(S_T+1)}, {sr(S_T)}, {soff + 4096*k}")
            a(f"buffer_load_dwordx4 {vr(v16)}, {sr(srd,4)}, {sr(S_T+1)} offen lds")
        a.label(lab)

    def tr_addr(self, ad, base, swapped, t):
        a = self.a
        a(f"v_lshrrev_b32 {vr(t)}, 2, v0")
        a(f"v_mul_u32_u24 {vr(t)}, 288, {vr(t)}")
        a(f"v_and_b32 {vr(t+1)}, 3, v0")
        a(f"v_lshl_add_u32 {vr(t)}, {vr(t+1)}, 3, {vr(t)}")
        a(f"v_add_u32 {vr(ad+2)}, {base}, {vr(t)}")
        if swapped:
            a(f"v_bfe_u32 {vr(t)}, v0, 4, 1")
            a(f"v_mul_u32_u24 {vr(t)}, {16*288}, {vr(t)}")
            a(f"v_add_u32 {vr(ad)}, {vr(ad+2)}, {vr(t)}")
            a(f"v_sub_u32 {vr(ad+1)}, {vr(ad+2)}, {vr(t)}")
            a(f"v_add_u32 {vr(ad+1)}, {16*288}, {vr(ad+1)}")
        else:
            a(f"v_mov_b32 {vr(ad)}, {vr(ad+2)}")
            a(f"v_add_u32 {vr(ad+1)}, {16*288}, {vr(ad+2)}")

    def row_addr(self, ad, base, t):
        a = self.a
        a(f"v_and_b32 {vr(t)}, 15, v0")
        a(f"v_mul_u32_u24 {vr(t)}, 304, {vr(t)}")
        a(f"v_lshrrev_b32 {vr(t+1)}, 4, v0")
        a(f"v_lshl_add_u32 {vr(t)}, {vr(t+1)}, 3, {vr(t)}")
        a(f"v_add_u32 {vr(ad)}, {base}, {vr(t)}")

    def store_block(self, src, v16, v8, srd, soff, soff2, flags=""):
        a = self.a
        for s in range(4):
            a(f"buffer_store_dwordx4 {vr(src+4*s,4)}, {vr(v16)}, {sr(srd,4)}, {sr(soff)} offen offset:{1024*s} {flags}")
        a(f"buffer_store_dwordx2 {vr(src+16,2)}, {vr(v8)}, {sr(srd,4)}, {sr(soff2)} offen {flags}")

    def entry(self):
        a = self.a
        xm2 = self.o.get("xm", 0) == 2
        kernel_header(a, NAME)
        a(f"s_load_dwordx16 s[56:71], s[0:1], 0")
        a(f"s_load_dwordx8 s[72:79], s[0:1], 64")
        a(f"s_getpc_b64 {sr(S_W1,2)}")
        a.label("L_pf")
        a(f"""s_mov_b32 {sr(S_W1+2)}, L_dummy-L_pf
        s_mov_b32 {sr(S_W1+3)}, 0x20000
        v_lshlrev_b32 v2, 4, v0
        buffer_load_dwordx4 v[252:255], v2, {sr(S_W1,4)}, 0 offen
        s_lshl_b32 s3, s2, 9
        s_and_b32 s3, s3, 0x7000
        buffer_load_dwordx4 v[252:255], v2, {sr(S_W1,4)}, s3 offen
        v_lshrrev_b32 v1, 6, v0
        {"s_bfe_u32 s6, s2, 0x10003" if xm2 else f"s_sub_u32 s2, s2, {NH}"}
        v_readfirstlane_b32 {sr(S_W)}, v1
        s_memrealtime s[4:5]""")
        if xm2:
            a(f"""s_and_b32 s7, s2, 7
            s_lshl1_add_u32 s7, s7, s6
            s_mov_b32 s6, s2
            s_andn2_b32 s2, s2, 15
            s_or_b32 s2, s2, s7""")
        a(f"""s_cmp_ge_u32 s2, {NWG - NH}
        s_cbranch_scc1 L_wfuse""")
        if self.o.get("late"):
            m_, v_, n_ = self.o["late"]
            a(f"""s_and_b32 s3, s2, {m_}
            s_cmp_lg_u32 s3, {v_}
            s_cbranch_scc1 L_nl
            s_memrealtime s[4:5]
            s_waitcnt lgkmcnt(0)
            s_add_u32 s6, s4, {n_}
            L_lt:
            s_memrealtime s[4:5]
            s_waitcnt lgkmcnt(0)
            s_sub_u32 s7, s6, s4
            s_cmp_gt_i32 s7, 0
            s_cbranch_scc1 L_lt
            L_nl:""")
        if self.o.get("stamps"):
            a("s_memrealtime s[100:101]" if not self.o.get("cyc") else "s_memtime s[100:101]")
        self.mp = 2

    def vm_since(self, mark):
        return sum(1 for l in self.a.lines[mark:] if l.strip().startswith("buffer_"))

    def phase_a(self):
        a, o = self.a, self.o
        XR, XF, XA, ACC, G_, PK = 16, 34, 146, 110, 16, 164
        B4, XD = 16, 88
        VS, VSW, VR4, MXA, MXR, L8, TRU, TRQ, TRQ8, RK, TM = 200, 204, 208, 212, 213, 214, 215, 218, 221, 224, 228
        VK, VU = list(range(182, 193)), list(range(193, 200)) + list(range(104, 108))
        AQ1 = 200
        t0, t1, t2 = 250, 251, 227
        T = S_T
        WV, W10, UOFF, M1, PUB, M3 = 72, 70, 71, 69, 68, 65
        PH = 2
        if o.get("xm", 0) == 2: PH = S_PH
        if o.get("xm", 0) == 1:
            PH = S_PH
            a(f"""s_mov_b32 {sr(PH)}, s2
            s_bfe_u32 {sr(T)}, s2, 0x10003
            s_and_b32 {sr(T+1)}, s2, 7
            s_lshl1_add_u32 {sr(T)}, {sr(T+1)}, {sr(T)}
            s_and_b32 {sr(T+1)}, s2, 0xf0
            s_or_b32 {sr(T)}, {sr(T)}, {sr(T+1)}
            s_add_u32 s2, s2, 4
            s_cmp_lt_u32 {sr(T)}, 248
            s_cselect_b32 s2, {sr(T)}, s2""")
        a(f"""v_and_b32 v0, 63, v0
        s_bfe_u32 {sr(S_B)}, s2, 0x10001
        s_lshr_b32 {sr(S_QB)}, s2, 2
        s_lshr_b32 {sr(T)}, {sr(S_W)}, 1
        s_xor_b32 {sr(T)}, {sr(T)}, s2
        s_andn2_b32 {sr(T)}, 1, {sr(T)}
        s_lshl1_add_u32 {sr(T+3)}, {sr(S_QB)}, {sr(T)}
        s_mul_i32 {sr(T)}, {sr(S_B)}, {NT}
        s_add_u32 {sr(T+1)}, {sr(T+3)}, {sr(T)}
        s_and_b32 {sr(T+2)}, {sr(S_W)}, 1
        s_lshl1_add_u32 {sr(T+2)}, {sr(T+1)}, {sr(T+2)}
        v_lshlrev_b32 {vr(V_DMA)}, 4, v0
        s_mul_i32 {sr(T+1)}, {sr(T+2)}, {16*288}
        s_mul_i32 {sr(S_LB)}, {sr(S_W)}, {BLK}
        s_add_u32 m0, {sr(S_LB)}, {L_XS}
        s_mov_b32 {sr(S_X+2)}, 2304000
        s_mov_b32 {sr(S_X+3)}, {sr(S_W1+3)}
        s_add_u32 {sr(S_CNT)}, {sr(T+1)}, 4096
        s_waitcnt lgkmcnt(0)
        s_mov_b64 {sr(S_X,2)}, s[56:57]""")
        for k in range(4): a(f"buffer_load_dwordx4 {vr(V_DMA)}, {sr(S_X,4)}, {sr(T+1)} offen offset:{1024*k} lds")
        a(f"s_add_u32 m0, {sr(S_LB)}, {L_XS + 4096}\ns_mov_b32 exec_hi, 0\nbuffer_load_dwordx4 {vr(V_DMA)}, {sr(S_X,4)}, {sr(S_CNT)} offen lds\ns_mov_b32 exec_hi, -1")
        mx = len(a.lines)
        a(f"""s_add_u32 {sr(S_LB)}, {sr(S_LB)}, {L_XS}
        s_and_b32 {sr(S_H)}, s2, 1
        s_lshl1_add_u32 {sr(S_TOWN)}, {sr(S_QB)}, {sr(S_H)}
        s_cmp_lt_u32 {sr(S_TOWN)}, {NT}
        s_cselect_b32 {sr(S_VAL)}, 1, 0
        s_add_u32 {sr(S_TOWN)}, {sr(S_TOWN)}, {sr(T)}""")
        SQ, SK, SU = S_W2, S_W1, S_XA
        self.srd(SU, 66, 67, 82944)
        self.srd(SQ, 58, 59, 41472)
        self.srd(SK, 60, 61, 41472)
        a(f"s_lshr_b32 {sr(T)}, {sr(PH)}, 3\ns_lshl_b32 {sr(T)}, {sr(T)}, 12\ns_lshl_b32 {sr(W10)}, {sr(S_W)}, 10\ns_add_u32 {sr(T)}, {sr(T)}, {sr(W10)}")
        a(f"buffer_load_dwordx4 v[252:255], {vr(V_DMA)}, {sr(SU,4)}, {sr(T)} offen")
        for srd_, rot in ((SQ, 82), (SK, 41)):
            a(f"s_add_u32 {sr(T+1)}, {sr(T)}, {(128 - rot) * 1024}\ns_and_b32 {sr(T+1)}, {sr(T+1)}, {127 * 1024}")
            a(f"buffer_load_dwordx4 v[252:255], {vr(V_DMA)}, {sr(srd_,4)}, {sr(T+1)} offen")
        self.srd(S_OUT, 74, 75, 2304000)
        self.srd(S_DB, 76, 77, 256)
        self.srd(S_WS, 78, 79, WS_END)
        def tlb():
            a(f"v_lshlrev_b32 v249, 21, v0")
            for ch in o.get("tlbw", "wdo"): a(f"buffer_load_dword v252, v249, {sr(dict(w=S_WS, d=S_DB, o=S_OUT)[ch],4)}, 0 offen")
        if o.get("tlb", 0) == 1: tlb()
        if o.get("tlb", 3) == 3:
            a(f"""s_bfe_u32 {sr(T)}, {sr(PH)}, 0x30003
            s_lshl_b32 {sr(T)}, {sr(T)}, 21
            v_mov_b32 v249, 0
            s_cmp_lt_u32 {sr(T)}, {5 << 21}
            s_cbranch_scc0 L_tl1
            buffer_load_dword v252, v249, {sr(S_WS,4)}, {sr(T)} offen
            s_branch L_tl3
            L_tl1:
            s_sub_u32 {sr(T)}, {sr(T)}, {5 << 21}
            s_cmp_lt_u32 {sr(T)}, {2 << 21}
            s_cbranch_scc0 L_tl2
            buffer_load_dword v252, v249, {sr(S_OUT,4)}, {sr(T)} offen
            s_branch L_tl3
            L_tl2:
            s_or_b32 s4, s4, 1
            v_lshlrev_b32 v249, 8, v0
            v_mov_b32 v250, s4
            s_lshl2_add_u32 s5, {sr(PH)}, {sr(S_W)}
            s_cmp_eq_u32 s5, {56 * 4}
            s_cbranch_scc0 L_tl4
            buffer_store_dword v250, v249, {sr(S_DB,4)}, 0 offen sc1
            s_branch L_tl3
            L_tl4:
            buffer_load_dword v252, v249, {sr(S_DB,4)}, 0 offen offset:128
            L_tl3:""")
            self.vm_adj = -3
        if o.get("tl4"):
            a(f"""s_mul_i32 {sr(T)}, {sr(S_TOWN)}, {TILE}
            v_lshlrev_b32 v249, 12, v0
            v_add_u32 v249, {sr(T)}, v249
            s_mov_b64 exec, 7
            buffer_load_dword v252, v249, {sr(S_WS,4)}, 0 offen
            s_mov_b64 exec, -1""")
        if o.get("stamps"): a(f"s_mov_b64 {sr(S_ST,2)}, s[100:101]"); self.stnames.append("start"); self.nst = 1
        self.stamp("xiss")
        a(f"""s_cmp_lt_u32 {sr(T+3)}, {NT}
        s_cselect_b32 {sr(WV)}, 1, 0
        s_mov_b32 {sr(WV+1)}, {sr(T+2)}
        s_mul_i32 {sr(UOFF)}, {sr(S_H)}, 288
        s_cmp_eq_u32 {sr(S_W)}, 0
        s_cselect_b32 {sr(M1)}, 0, {L_DUMP}
        s_cmp_lt_u32 {sr(S_W)}, 3
        s_cselect_b32 {sr(M3)}, {sr(W10)}, {L_DUMP}""")
        half = lambda g_: "s_mov_b32 exec_hi, 0\n" + g_ + "\ns_mov_b32 exec_hi, -1"
        gu = [f"s_add_u32 m0, {sr(W10 if k < 10 else M1)}, {L_WU + 4096*k}\ns_add_u32 {sr(S_CNT)}, {sr(UOFF)}, {4096*k + 288*(256*k//18)}\nbuffer_load_dwordx4 {vr(VU[k])}, {sr(SU,4)}, {sr(S_CNT)} offen lds" for k in range(11)]
        gu[10] = half(gu[10])
        gq = [f"s_add_u32 m0, {sr(W10 if k < 10 else M1)}, {L_WQ + 4096*k}\ns_add_u32 {sr(S_CNT)}, {sr(W10)}, {4096*k}\nbuffer_load_dwordx4 {vr(V_DMA)}, {sr(SQ,4)}, {sr(S_CNT)} offen lds" for k in range(11)]
        gq[10] = half(gq[10])
        gk = [f"s_add_u32 m0, {sr(W10 if k < 10 else M3)}, {L_WK + 4096*k}\ns_mov_b32 {sr(S_CNT)}, {4096*k - 16*(256*k//19)}\nbuffer_load_dwordx4 {vr(VK[k])}, {sr(SK,4)}, {sr(S_CNT)} offen lds" for k in range(11)]
        a(f"s_lshl_b32 {sr(T)}, {sr(S_W)}, 6\nv_add_u32 {vr(t0)}, {sr(T)}, v0\nv_lshlrev_b32 {vr(t1)}, 4, {vr(t0)}")
        self.voff_table(VU, 18, 576, t0)
        npre = o.get("npre", 3)
        a.bg, a.every, a.cnt = gu[:npre], o.get("evpre", 40), 0
        self.voff_table(VK, 19, 288, t0)
        xa0, xa1, xa2 = TM, TM + 1, TM + 2
        a(f"""v_and_b32 {vr(t0)}, 15, v0
        v_lshrrev_b32 {vr(t1)}, 5, v0
        v_lshlrev_b32 {vr(t1)}, 3, {vr(t1)}
        v_xor_b32 {vr(t1)}, {vr(t0)}, {vr(t1)}
        v_lshlrev_b32 {vr(t1)}, 4, {vr(t1)}
        v_lshrrev_b32 {vr(t2)}, 4, v0
        v_lshl_add_u32 {vr(V_KA)}, {vr(t2)}, 9, {vr(t1)}
        v_lshrrev_b32 {vr(t1)}, 3, {vr(t0)}
        v_lshlrev_b32 {vr(t1)}, 1, {vr(t1)}
        v_xor_b32 {vr(t1)}, {vr(t2)}, {vr(t1)}
        v_lshl_add_u32 {vr(t1)}, {vr(t0)}, 2, {vr(t1)}
        v_lshlrev_b32 {vr(V_KA+1)}, 3, {vr(t1)}
        v_lshlrev_b32 {vr(L8)}, 3, v0
        v_lshlrev_b32 {vr(MXR)}, 4, {vr(t0)}
        v_add_u32 {vr(MXR)}, {L_MX}, {vr(MXR)}
        v_add_u32 {vr(MXA)}, {sr(S_W)}, {vr(t2)}
        v_and_b32 {vr(MXA)}, 3, {vr(MXA)}
        v_lshl_add_u32 {vr(MXA)}, {vr(MXA)}, 8, {vr(MXR)}
        s_lshl_b32 {sr(T)}, {sr(S_W)}, 2
        v_add_u32 {vr(MXA)}, {sr(T)}, {vr(MXA)}
        v_mul_u32_u24 {vr(xa2)}, 288, {vr(t0)}
        v_lshl_add_u32 {vr(xa2)}, {vr(t2)}, 3, {vr(xa2)}
        v_add_u32 {vr(xa2)}, {sr(S_LB)}, {vr(xa2)}
        v_and_b32 {vr(t1)}, 1, {vr(t2)}
        v_lshlrev_b32 {vr(t1)}, 5, {vr(t1)}
        v_add_u32 {vr(xa0)}, {vr(xa2)}, {vr(t1)}
        v_xor_b32 {vr(t1)}, 32, {vr(t1)}
        v_add_u32 {vr(xa1)}, {vr(xa2)}, {vr(t1)}
        s_mul_i32 {sr(S_LB)}, {sr(S_W)}, {TILE}
        v_lshrrev_b32 {vr(t0)}, 2, v0
        v_bfe_u32 {vr(t1)}, v0, 1, 1
        v_lshlrev_b32 {vr(t1)}, 3, {vr(t1)}
        v_xor_b32 {vr(t1)}, {vr(t0)}, {vr(t1)}
        v_lshlrev_b32 {vr(t1)}, 4, {vr(t1)}
        v_and_b32 {vr(t2)}, 3, v0
        v_lshl_add_u32 {vr(t1)}, {vr(t2)}, 9, {vr(t1)}
        v_and_b32 {vr(V_VA)}, 1, v0
        v_lshl_add_u32 {vr(t1)}, {vr(V_VA)}, 3, {vr(t1)}
        s_and_b32 {sr(T)}, {sr(S_W)}, 1
        s_lshl_b32 {sr(T)}, {sr(T)}, 12
        s_add_u32 {sr(T+1)}, {sr(T)}, {sr(S_LB)}
        s_xor_b32 {sr(T)}, {sr(T)}, 4096
        s_add_u32 {sr(T)}, {sr(T)}, {sr(S_LB)}
        v_add_u32 {vr(V_VA)}, {sr(T)}, {vr(t1)}
        v_add_u32 {vr(V_VB)}, {sr(T+1)}, {vr(t1)}
        v_xor_b32 {vr(V_VA+1)}, 8, {vr(V_VA)}
        v_xor_b32 {vr(V_VB+1)}, 8, {vr(V_VB)}
        v_lshrrev_b32 {vr(t1)}, 5, v0
        v_lshlrev_b32 {vr(t1)}, 1, {vr(t1)}
        v_xor_b32 {vr(t1)}, {vr(t2)}, {vr(t1)}
        v_lshl_add_u32 {vr(t1)}, {vr(t0)}, 2, {vr(t1)}
        v_lshlrev_b32 {vr(t1)}, 3, {vr(t1)}
        v_add_u32 {vr(V_VR)}, {sr(S_LB)}, {vr(t1)}
        v_add_u32 {vr(V_DMA+1)}, 4096, {vr(V_DMA)}
        v_add_u32 {vr(V_DMA+2)}, 8192, {vr(V_DMA)}""")
        self.tr_addr(TRU, L_WU, True, t0)
        a(f"s_lshl_b32 {sr(T)}, {sr(S_W)}, 6\ns_add_u32 {sr(T)}, {sr(T)}, {L_WQ - L_WU}")
        for k in range(3):
            a(f"v_add_u32 {vr(TRQ+k)}, {sr(T)}, {vr(TRU+k)}\nv_add_u32 {vr(TRQ8+k)}, {L_WQ - L_WU + 256}, {vr(TRU+k)}")
        self.row_addr(RK + 2, L_WK + 8 * 4864, t0)
        a(f"""s_mul_i32 {sr(T)}, {sr(S_W)}, {2*4864}
        s_sub_u32 {sr(T)}, {sr(T)}, {8*4864}
        v_add_u32 {vr(t1)}, {sr(T)}, {vr(RK+2)}
        v_bfe_u32 {vr(t0)}, v0, 2, 1
        v_mul_u32_u24 {vr(t0)}, 4864, {vr(t0)}
        v_add_u32 {vr(RK)}, {vr(t1)}, {vr(t0)}
        v_sub_u32 {vr(RK+1)}, {vr(t1)}, {vr(t0)}""")
        for j in range(4):
            a(f"""s_add_u32 {sr(T)}, {sr(S_W)}, {j}
            s_and_b32 {sr(T)}, {sr(T)}, 3
            s_lshl_b32 {sr(T+1)}, {sr(T)}, 12
            s_add_u32 {sr(T+1)}, {sr(T+1)}, {L_XX}
            v_add_u32 {vr(VS+j)}, {sr(T+1)}, {vr(V_DMA)}
            s_lshl_b32 {sr(T+1)}, {sr(T)}, 9
            s_add_u32 {sr(T+1)}, {sr(T+1)}, {L_XR}
            v_add_u32 {vr(VR4+j)}, {sr(T+1)}, {vr(L8)}
            v_add_u32 {vr(VSW+j)}, {sr(W10)}, {vr(VS+j)}""")
        a(f"""s_sub_u32 {sr(T+2)}, 63, {sr(S_H)}
        s_add_u32 {sr(T+3)}, {sr(S_W)}, 60
        s_cmp_ge_u32 {sr(T+3)}, {sr(T+2)}
        s_cselect_b32 {sr(S_DUM)}, 4, 99
        s_mov_b32 {sr(S_REDO)}, 0
        s_mov_b32 {sr(S_TOFF)}, {sr(S_LB)}
        s_lshl_b32 {sr(PUB)}, {sr(S_TOWN)}, 8
        s_add_u32 {sr(PUB)}, {sr(PUB)}, {WS_F}
        s_and_b32 {sr(T)}, {sr(S_W)}, 1
        s_lshl_b32 {sr(T)}, {sr(T)}, 7
        s_add_u32 {sr(PUB)}, {sr(PUB)}, {sr(T)}
        s_lshr_b32 {sr(T)}, {sr(S_W)}, 1
        s_and_b32 {sr(T)}, {sr(T)}, {sr(S_VAL)}
        s_cmp_eq_u32 {sr(T)}, 1
        s_cselect_b32 {sr(PUB)}, {sr(PUB)}, 0x40000000
        s_lshl_b32 {sr(S_FB)}, s2, 8
        s_add_u32 {sr(S_FB)}, {sr(S_FB)}, {WS_F + 250*256}
        s_mul_i32 {sr(T)}, {sr(S_H)}, 1792
        s_sub_u32 {sr(T)}, {sr(T)}, 768
        s_mul_i32 {sr(T+1)}, {sr(S_H)}, 62
        s_cmp_eq_u32 {sr(S_QB)}, {sr(T+1)}
        s_cselect_b32 {sr(T)}, 0, {sr(T)}
        v_mov_b32 {vr(self.VPL)}, 0x40000000
        s_xor_b32 {sr(T+1)}, {sr(S_FB)}, 256
        s_add_u32 {sr(T)}, {sr(T)}, {sr(S_FB)}
        v_writelane_b32 {vr(self.VPL)}, {sr(S_FB)}, 0
        v_writelane_b32 {vr(self.VPL)}, {sr(T+1)}, 1
        v_writelane_b32 {vr(self.VPL)}, {sr(T)}, 2
        s_mov_b32 {sr(T)}, {WS_F + 502*256}
        s_mov_b32 {sr(T+1)}, {WS_F + 503*256}
        v_writelane_b32 {vr(self.VPL)}, {sr(T)}, 3
        v_writelane_b32 {vr(self.VPL)}, {sr(T+1)}, 4
        s_sub_u32 {sr(S_FB)}, {sr(S_FB)}, {L_PC}""")
        if o.get("xm", 0):
            a(f"""s_getreg_b32 {sr(S_XC)}, hwreg(HW_REG_XCC_ID, 0, 4)
            s_xor_b32 {sr(T)}, s2, 1
            s_lshl_b32 {sr(T)}, {sr(T)}, 8
            s_add_u32 {sr(T)}, {sr(T)}, {WS_F + 250*256 + 4}
            v_writelane_b32 {vr(self.VPL)}, {sr(T)}, 5""")
        a.flush()
        if o.get("tlb", 0) == 2: tlb()
        self.stamp("pre")
        if o.get("es", 0) == 0: self.epi_setup()
        self.stamp("es")
        nx = self.vm_since(mx) + getattr(self, "vm_adj", 0)
        if o.get("touch", 1):
            a(f"""s_mov_b64 exec, 0
            s_cmp_eq_u32 {sr(S_W)}, 0
            s_cbranch_scc1 L_tr
            s_cmp_eq_u32 {sr(S_W)}, 1
            s_cbranch_scc1 L_t0
            s_cmp_eq_u32 {sr(S_W)}, 2
            s_cbranch_scc1 L_t1
            s_branch L_t2""")
            self.rare()
            a.raw(".p2align 12")
            a.label("L_tr")
            a("s_mov_b64 exec, -1")
        nlate = o.get("nlate", 0)
        for g_ in gu[npre:npre + nlate]: a(g_)
        a(f"s_waitcnt vmcnt({nx + nlate})")
        self.stamp("xarr")
        for s in range(4):
            a(f"ds_read_b64 {vr(XR+4*s,2)}, {vr(xa0)} offset:{64*s}\nds_read_b64 {vr(XR+4*s+2,2)}, {vr(xa1)} offset:{64*s}")
        a(f"ds_read_b64 {vr(XR+16,2)}, {vr(xa2)} offset:256")
        a(f"""s_and_b32 {sr(T)}, {sr(S_W)}, 1
        s_mul_i32 {sr(T+2)}, {sr(S_TOWN)}, {TILE}
        s_cmp_eq_u32 {sr(S_VAL)}, 1
        s_cselect_b32 {sr(T+2)}, {sr(T+2)}, 0x40000000
        s_lshl_b32 {sr(T+3)}, {sr(T)}, 8
        s_add_u32 {sr(T+3)}, {sr(T+3)}, {sr(T+2)}
        s_add_u32 {sr(T+4)}, {sr(T+3)}, 4096
        s_lshl_b32 {sr(T+5)}, {sr(T)}, 9
        s_add_u32 {sr(T+5)}, {sr(T+5)}, {sr(T+2)}
        s_add_u32 {sr(T+5)}, {sr(T+5)}, 8192
        s_waitcnt lgkmcnt(0)""")
        wl = gq + gk
        a.bg, a.every, a.cnt = gu[npre + nlate:] + [wl.pop(0) for _ in range(o.get("nql", 11))], o.get("evln", 5), 0
        self.ln_packed(XR, XF, XA, TM)
        a.flush()
        self.stamp("ln")
        a(f"s_cmp_lt_u32 {sr(S_W)}, 2\ns_cbranch_scc1 L_nop")
        for s in range(4):
            a(f"buffer_store_dwordx4 {vr(XA+4*s,4)}, {vr(V_KA)}, {sr(S_WS,4)}, {sr(T+3+(s>>1))} offen offset:{2048*(s&1)} {o.get('pfl', 'sc1')}")
        a(f"buffer_store_dwordx2 {vr(XA+16,2)}, {vr(V_KA+1)}, {sr(S_WS,4)}, {sr(T+5)} offen {o.get('pfl', 'sc1')}\ns_waitcnt vmcnt({5 + o.get('nql', 11)})\ns_branch L_bar1")
        a.label("L_nop")
        if o.get("touch", 1):
            a(f"s_mov_b64 exec, 0\ns_cmp_eq_u32 {sr(S_W)}, 0\ns_cbranch_scc1 L_t3\ns_branch L_t4")
            a.label("L_tr2")
            a("s_mov_b64 exec, -1")
        a(f"s_waitcnt vmcnt({o.get('nql', 11)})")
        a.label("L_bar1")
        self.stamp("pub")
        xw = [f"ds_write_b128 {vr(VS)}, {vr(XA+4*s,4)} offset:{1024*s}" for s in range(4)] + [f"ds_write_b64 {vr(VR4)}, {vr(XA+16,2)}"]
        self.stamp("tch")
        PA = 249
        a(f"""v_add_u32 {vr(V_KA)}, {sr(S_LB)}, {vr(V_KA)}
        v_add_u32 {vr(V_KA+1)}, {sr(S_LB)}, {vr(V_KA+1)}
        s_mul_i32 {sr(T)}, {sr(S_B)}, {NT}
        s_mul_i32 {sr(T+1)}, {sr(S_H)}, 63
        s_add_u32 {sr(T)}, {sr(T)}, {sr(T+1)}
        s_lshl_b32 {sr(T)}, {sr(T)}, 8
        s_add_u32 {sr(T)}, {sr(T)}, {WS_F}
        s_cmp_eq_u32 {sr(S_W)}, 0
        {"" if o.get("gatepos", 0) else f"s_cselect_b32 {sr(T)}, {sr(T)}, 0x40000000"}
        v_lshl_add_u32 {vr(PA)}, v0, 8, {sr(T)}
        {self.xa_srd()}
        s_waitcnt lgkmcnt(0)""")
        self.stamp("w1")
        a("s_barrier")
        self.stamp("bar1")
        m_b1 = len(a.lines)
        poll = lambda r: f"buffer_load_dword {vr(r)}, {vr(PA)}, {sr(S_WS,4)}, 0 offen sc1\nbuffer_load_dword {vr(r+2)}, {vr(PA)}, {sr(S_WS,4)}, 0 offen offset:128 sc1"

        def gate(lab, r, mask, younger):
            a(f"s_mov_b32 {sr(T+2)}, 0\ns_waitcnt vmcnt({younger})")
            a.label(lab)
            a(f"""v_cmp_ne_u32 vcc, {sr(S_N)}, {vr(r)}
            v_cmp_ne_u32 {sr(T+10,2)}, {sr(S_N)}, {vr(r+2)}
            s_add_u32 {sr(T+2)}, {sr(T+2)}, 1
            s_or_b64 vcc, vcc, {sr(T+10,2)}
            s_and_b64 vcc, vcc, {mask}
            s_cbranch_scc0 {lab}_ok
            s_sleep {o.get("slp", 4)}
            {poll(r)}
            s_waitcnt vmcnt(0)
            s_cmp_lt_u32 {sr(T+2)}, 0x40000
            s_cbranch_scc1 {lab}""")
            a.label(lab + "_ok")

        H, G_, UG, MS, CL = 16, 52, 208, 110, 104
        nup = o.get("nup", 5)
        at = {o.get("u0", 6) + o.get("usp", 6) * i: wl.pop(0) for i in range(nup)}
        for i in range(5): at[i] = xw[i]
        tagld = f"buffer_load_dword v253, off, {sr(S_DB,4)}, 0 sc1"
        tag1 = tagld.replace("sc1", o.get("tgf", "sc1")).strip()
        at[o.get("tgp", 5)] = tag1
        if o.get("es", 0) == 1:
            n_ = len(a.lines); self.epi_setup()
            el = [l.strip() for l in a.lines[n_:]]; del a.lines[n_:]
            for k in range(5, 42):
                if k in at: continue
                c_ = 0
                while el and c_ < o.get("esn", 2):
                    x = el.pop(0); at[k] = at.get(k, "") + x + "\n"; c_ += 1 if x.startswith("v_") else 0.5
            self.es_left = el
        self.gemm(self.tr_reads(TRU), XA, H, None, at=at)
        if o.get("es", 0) == 1:
            for x in self.es_left: a(x)
        self.stamp("up")
        p = lambda r: vr(r, 2)
        CC = TM
        c1 = -2.0 * math.sqrt(2.0 / math.pi) * LOG2E
        c2 = c1 * 0.044715
        gst = [[f"v_pk_mul_f32 {p(G_+2*i)}, {p(H+2*i)}, {p(H+2*i)}" for i in range(18)] +
               [f"v_pk_fma_f32 {p(G_+2*i)}, {p(G_+2*i)}, {p(CC+2)}, {p(CC)} op_sel_hi:[1,0,0]" for i in range(18)] +
               [f"v_pk_mul_f32 {p(G_+2*i)}, {p(G_+2*i)}, {p(H+2*i)}" for i in range(18)],
               [f"v_exp_f32 {vr(G_+i)}, {vr(G_+i)}" for i in range(36)],
               [f"v_pk_add_f32 {p(G_+2*i)}, {p(G_+2*i)}, {p(CC+4)} op_sel_hi:[1,0]" for i in range(18)],
               [f"v_rcp_f32 {vr(G_+i)}, {vr(G_+i)}" for i in range(36)],
               [f"v_pk_mul_f32 {p(H+2*i)}, {p(G_+2*i)}, {p(H+2*i)}" for i in range(18)]]
        gs = o.get("gs", 0)
        if gs:
            a(f"v_mov_b32 {vr(CC)}, {f32(c1)}\nv_mov_b32 {vr(CC+2)}, {f32(c2)}\nv_mov_b32 {vr(CC+4)}, 1.0")
            pre = [x for st_ in gst[:gs] for x in st_]
            ngw = o.get("ngw", 0)
            for i, x in enumerate(pre):
                a(x)
                if ngw and i % o.get("gwsp", 8) == 2 and wl: a(wl.pop(0)); ngw -= 1
            self.stamp("gea")
        last = lambda srd: max(i for i, l in enumerate(a.lines) if l.strip().startswith("buffer_load") and sr(srd, 4) in l) + 1
        assert not any(sr(SQ, 4) in x for x in wl)
        nq_ = self.vm_since(m_b1) + (5 if last(SQ) < m_b1 else 0) if last(SQ) < m_b1 else self.vm_since(last(SQ))
        a(f"s_waitcnt vmcnt({self.vm_since(m_b1) if last(SQ) < m_b1 else nq_}) lgkmcnt(0)" if False else "")
        if last(SQ) < m_b1:
            a(f"s_cmp_lt_u32 {sr(S_W)}, 2\ns_cbranch_scc1 L_bg0\ns_waitcnt vmcnt({5 + self.vm_since(m_b1)})\ns_branch L_bg1\nL_bg0:\ns_waitcnt vmcnt({self.vm_since(m_b1)})\nL_bg1:\ns_waitcnt lgkmcnt(0)\ns_barrier")
        else: a(f"s_waitcnt vmcnt({self.vm_since(last(SQ))}) lgkmcnt(0)\ns_barrier")

        def flag():
            n_ = self.vm_since(max(i for i, l in enumerate(a.lines) if l.strip() == tag1) + 1)
            a(f"v_lshrrev_b32 {vr(t0)}, 5, v0\nv_lshlrev_b32 {vr(t0)}, 30, {vr(t0)}\nv_lshl_add_u32 {vr(t0)}, v0, 2, {vr(t0)}\ns_mov_b32 {sr(T+5)}, 0\ns_waitcnt vmcnt({n_})")
            a.label("L_tag")
            a(f"""v_readfirstlane_b32 {sr(S_N)}, v253
            s_add_u32 {sr(T+5)}, {sr(T+5)}, 1
            s_cmp_lg_u32 {sr(S_N)}, 0
            s_cbranch_scc1 L_tag_ok
            {tagld}
            s_waitcnt vmcnt(0)
            s_cmp_lt_u32 {sr(T+5)}, 0x40000
            s_cbranch_scc1 L_tag""")
            a.label("L_tag_ok")
            a(f"v_mov_b32 {vr(t1)}, {sr(S_N)}\nbuffer_store_dword {vr(t1)}, {vr(t0)}, {sr(S_WS,4)}, {sr(PUB)} offen sc1")
            self.m_fl = len(a.lines)
            self.stamp("flag")
        self.stamp("barG")
        if o.get("atw"):
            a("s_waitcnt vmcnt(0)")
            self.stamp("ack")
        if o.get("census"):
            k_ = S_ST + 2 * self.stnames.index(o["census"][0])
            a(f"s_waitcnt lgkmcnt(0)\nv_mov_b32 v252, {sr(k_)}\ns_lshl_b32 {sr(T)}, s2, 2\ns_add_u32 {sr(T)}, {sr(T)}, {WS_DBG}\nv_mov_b32 v253, 0\nbuffer_store_dword v252, v253, {sr(S_WS,4)}, {sr(T)} offen sc1")

        def a_tr(t):
            ad, off = (TRQ, 32 * t) if t < 2 else (TRQ8, 0)
            return [f"ds_read_b64_tr_b16 {ar(AQ1+18*t+4*s+2*u,2)}, {vr(ad+u)} offset:{9216*s + off}" for s in range(4) for u in range(2)] + \
                   [f"ds_read_b64_tr_b16 {ar(AQ1+18*t+16,2)}, {vr(ad+2)} offset:{36864 + off}"]

        def a_row(t):
            off = 4864 * t if t < 2 else 0
            return [f"ds_read_b64 {ar(A_Q+18*t+4*s+2*u,2)}, {vr(RK+t)} offset:{off + 64*s + 32*u}" for s in range(4) for u in range(2)] + \
                   [f"ds_read_b64 {ar(A_Q+18*t+16,2)}, {vr(RK+t)} offset:{off + 256}"]
        bq = lambda j, d=0: [f"ds_read_b128 {ar(18*j+4*s,4)}, {vr(VS+j)} offset:{d + 1024*s}" for s in range(4)] + [f"ds_read_b64 {ar(18*j+16,2)}, {vr(VR4+j)} offset:{d}"]

        def post(u, scale, d):
            L = [f"v_mul_f32 {vr(ACC+4*u+i)}, {sr(T+4)}, {vr(ACC+4*u+i)}" for i in range(4)] if scale else []
            L += [f"v_cvt_pk_bf16_f32 {vr(PK + (4*(u&3) + 2*(u>>2) if u < 8 else 16) + h)}, {vr(ACC+4*u+2*h)}, {vr(ACC+4*u+2*h+1)}" for h in range(2)]
            if 4 <= u < 8: L.append(f"ds_write_b128 {vr(VSW+u-4)}, {vr(PK+4*(u-4),4)} offset:{d}")
            if u == 8: L.append(f"ds_write_b64 {vr(VR4)}, {vr(PK+16,2)} offset:{d}")
            return L
        fl2 = o.get("fl2", 1)
        self.m_fl = 0
        xd = [f"ds_read_b128 {vr(XD+4*j,4)}, {vr(VSW+j)}" for j in range(4)]
        self.gemm_u(AQ1, ar, [("v", XA), ("a", 18), ("a", 36), ("a", 54)], ACC, a_tr, lambda j: bq(j) if j else None, lambda u: post(u, False, L_QD),
                    vm_items=wl, other=xd, vmsp=o.get("vmsp", 3), at={o.get("flp", 22): flag} if fl2 < 0 else {})
        self.stamp("g1")
        for i in range(4): a(f"v_mov_b32 {vr(CL+i)}, -1")
        a(f"s_lshl2_add_u32 {sr(T+2)}, s2, {sr(S_W)}\ns_mul_i32 {sr(T+2)}, {sr(T+2)}, 2560\ns_add_u32 {sr(T+2)}, {sr(T+2)}, {WS_IB}")
        a(f"s_mov_b32 {sr(T+4)}, {f32(LOG2E / 12.0)}\ns_waitcnt vmcnt({self.vm_since(max(last(SK), self.m_fl)) + (last(SK) < self.m_fl)}) lgkmcnt(0)\ns_barrier")
        T2 = T + 2
        clr = [f"buffer_store_dwordx4 {vr(CL,4)}, {vr(V_DMA)}, {sr(S_WS,4)}, {sr(T+2)} offen sc1",
               f"buffer_store_dwordx4 {vr(CL,4)}, {vr(V_DMA)}, {sr(S_WS,4)}, {sr(T+2)} offen offset:1024 sc1",
               f"buffer_store_dwordx2 {vr(CL,2)}, {vr(L8)}, {sr(S_WS,4)}, {sr(T+2)} offen offset:2048 sc1"]
        self.stamp("bar2")
        gp_ = o.get("gatepos", 0)
        cl1 = not o.get("cll", 1)
        self.gemm_u(A_Q, ar, [("a", 18 * j) for j in range(4)], ACC, a_row, lambda j: bq(j, L_QD), lambda u: post(u, True, 0), vm_items=((clr if cl1 else []) + [poll(252)] if gp_ == 0 else clr if cl1 else []), vm0=o.get("pg", 6), vmsp=o.get("csp", 3),
                    lastk=o.get("plk", 26) if gp_ == 0 else 0, at={fl2: flag} if fl2 >= 0 else {})
        self.stamp("g2")
        p = lambda r: vr(r, 2)
        CC = TM
        for j in range(4): a(f"v_dot2_f32_bf16 {vr(CC+j)}, {vr(PK+4*j)}, {vr(XD+4*j)}, 0")
        for i in range(2): a(f"v_dot2_f32_bf16 {vr(CC)}, {vr(PK+16+i)}, {vr(XA+16+i)}, {vr(CC)}")
        for i in range(1, 4):
            for j in range(4): a(f"v_dot2_f32_bf16 {vr(CC+j)}, {vr(PK+4*j+i)}, {vr(XD+4*j+i)}, {vr(CC+j)}")
        QE = VS if gs else TRQ
        a(f"""s_xor_b32 {sr(T+1)}, {sr(self.NB)}, 1
        v_add_u32 {vr(t0)}, {L_XX}, {vr(V_DMA)}
        v_lshl_add_u32 {vr(QE)}, {sr(T+1)}, 12, {vr(t0)}
        v_lshl_add_u32 {vr(QE+1)}, {sr(self.NB)}, 12, {vr(t0)}""")
        self.treduce(CC)
        a(f"""ds_write_b32 {vr(MXA)}, {vr(CC)}
        v_add_u32 {vr(t0)}, {L_XR}, {vr(L8)}
        v_lshl_add_u32 {vr(QE+2)}, {sr(T+1)}, 9, {vr(t0)}
        v_lshl_add_u32 {vr(QE+3)}, {sr(self.NB)}, 9, {vr(t0)}
        v_lshl_add_u32 {vr(QE+4)}, {sr(T+1)}, 8, {vr(MXR)}
        v_lshl_add_u32 {vr(QE+5)}, {sr(self.NB)}, 8, {vr(MXR)}
        s_sub_u32 {sr(T+5)}, 63, {sr(S_H)}
        s_bfm_b64 {sr(T+8,2)}, {sr(T+5)}, 0
""")
        if gp_ == 0:
            a(f"s_cmp_lg_u32 {sr(S_W)}, 0\ns_cbranch_scc1 L_ga_ok")
            gate("L_ga", 252, sr(T + 8, 2), 0)
        else: a(poll(252))
        a("s_waitcnt lgkmcnt(0)\ns_barrier")
        self.stamp("bar3")
        qrd = [f"ds_read_b128 {vr(MS+4*qb,4)}, {vr(QE+4+(qb&1))} offset:{512*(qb>>1)}" for qb in range(4)]
        for qb in range(4):
            qrd += [f"ds_read_b128 {ar(A_Q+18*qb+4*s,4)}, {vr(QE+(qb&1))} offset:{8192*(qb>>1) + 1024*s}" for s in range(4)]
            qrd.append(f"ds_read_b64 {ar(A_Q+18*qb+16,2)}, {vr(QE+2+(qb&1))} offset:{1024*(qb>>1)}")
        if gs:
            tg = self.tile_groups(0) + self.tile_groups(1)
            n0 = o.get("n0", 3)
            for x in tg[:n0]: a(x)
            tg = tg[n0:]
            if gs < 3: a(f"v_mov_b32 {vr(CC+4)}, 1.0")
            mem = []
            qpd = o.get("qpd", 2)
            while tg or qrd:
                it = []
                if tg: it.append(tg.pop(0))
                it += [qrd.pop(0) for _ in range(min(qpd, len(qrd)))]
                mem.append("\n".join(it))
            com = [x for st_ in gst[gs:] for x in st_]
            ev = o.get("gev", 3)
            for i, x in enumerate(com):
                a(x)
                if i % ev == ev - 1 and mem: a(mem.pop(0))
            a(f"""s_mul_i32 {sr(T)}, {sr(WV+1)}, {BLK}
            s_cmp_eq_u32 {sr(S_H)}, 1
            s_cbranch_scc1 L_ln2
            s_add_u32 {sr(T)}, {sr(T)}, {WS_U}""")
            m0_ = list(mem)
            for i in range(18):
                a(f"v_cvt_pk_bf16_f32 {vr(UG+i)}, {vr(H+2*i)}, {vr(H+2*i+1)}")
                if i % o.get("gev0", 2) == 1 and m0_: a(m0_.pop(0))
            for x in m0_: a(x)
            a("s_branch L_ug")
            a.label("L_ln2")
            a(f"s_add_u32 {sr(T)}, {sr(T)}, {WS_G}")
            a.bg, a.every, a.cnt = list(mem), o.get("gev1", 6), 0
            self.ln_f32(H, UG, TM)
            a.flush()
            a.label("L_ug")
            m_t0 = m_t1 = None
        else:
            tg = self.tile_groups(0) + self.tile_groups(1) + self.tile_groups(2)[:8]
            n0 = o.get("n0", 3) if gp_ == 0 else 0
            for x in tg[:n0]: a(x)
            a(f"v_mov_b32 {vr(CC)}, {f32(c1)}\nv_mov_b32 {vr(CC+2)}, {f32(c2)}\nv_mov_b32 {vr(CC+4)}, 1.0")
            nq1, nt1 = (o.get("nq1", 8), o.get("nt1", 5)) if gp_ == 0 else (o.get("nq1", 16), 0)
            bgl = []
            for i in range(max(nq1 // 2, nt1)):
                if 2 * i < nq1: bgl.append(qrd[2 * i] + "\n" + qrd[2 * i + 1])
                if i < nt1: bgl.append(tg[n0 + i])
            tg, qrd = tg[n0 + nt1:], qrd[nq1:]
            a.bg, a.every, a.cnt = bgl, 54 // (len(bgl) + 1), 0
            for x in gst[0]: a(x)
            a.flush()
            if gp_:
                self.stamp("ge0")
                gate("L_ga", 252, sr(T + 8, 2), 0)
                for x in tg[:2]: a(x)
                tg = tg[2:]
            self.stamp("ge1")
            esp = o.get("esp", 3 if gp_ else 4)
            for i in range(36):
                a(gst[1][i])
                if i % esp == 1 and tg: a(tg.pop(0))
                if i % 8 == 3 and qrd: a(qrd.pop(0)); a(qrd.pop(0))
            self.stamp("ge2")
            for x in gst[2]: a(x)
            for i in range(36):
                a(gst[3][i])
                if i % esp == 1 and tg: a(tg.pop(0))
                if i % 8 == 3 and qrd: a(qrd.pop(0)); a(qrd.pop(0))
            assert not tg and not qrd
            idx = [i for i, l in enumerate(a.lines) if l.strip().startswith("buffer_load") and l.rstrip().endswith("lds")]
            m_t0, m_t1 = idx[-18] + 1, idx[-9] + 1
            for x in gst[4]: a(x)
            a(f"""s_mul_i32 {sr(T)}, {sr(WV+1)}, {BLK}
            s_cmp_eq_u32 {sr(S_H)}, 1
            s_cbranch_scc1 L_ln2
            s_add_u32 {sr(T)}, {sr(T)}, {WS_U}""")
            for i in range(18): a(f"v_cvt_pk_bf16_f32 {vr(UG+i)}, {vr(H+2*i)}, {vr(H+2*i+1)}")
            a("s_branch L_ug")
            a.label("L_ln2")
            a(f"s_add_u32 {sr(T)}, {sr(T)}, {WS_G}")
            self.ln_f32(H, UG, TM)
            a.label("L_ug")
        self.stamp("ge3")
        a(f"""s_cmp_eq_u32 {sr(WV)}, 1
        s_cselect_b32 {sr(S_UG)}, {sr(T)}, 0x40000000
        s_waitcnt lgkmcnt(0)""")
        kz = [f"s_waitcnt vmcnt({9 if gs else self.vm_since(m_t0)})"] + self.k_reads(0, V_V)
        if not gs:
            for x in kz: a(x)
        self.ugs = [f"buffer_store_dwordx4 {vr(UG+4*s,4)}, {vr(V_DMA)}, {sr(S_WS,4)}, {sr(S_UG)} offen offset:{1024*s} sc1" for s in range(4)]
        self.ugs.append(f"buffer_store_dwordx2 {vr(UG+16,2)}, {vr(self.VL8)}, {sr(S_WS,4)}, {sr(S_UG)} offen sc1")
        for qb in range(4): a(f"v_pk_add_f32 {p(MS+4*qb)}, {p(MS+4*qb)}, {p(MS+4*qb+2)} neg_lo:[1,1] neg_hi:[1,1]")
        for qb in range(4): a(f"v_add_f32 {vr(self.MK+qb)}, {vr(MS+4*qb)}, {vr(MS+4*qb+1)}")
        a(f"v_lshlrev_b32 {vr(t1)}, 8, v0\nv_lshlrev_b32 v231, 2, v0\nv_add_u32 v231, {L_PC}, v231\nds_write_b32 v231, {vr(t1)}")
        self.loop_init(False)
        if gs:
            self.loop_init(True)
            self.stamp("ug0")
            for x in kz: a(x)
        else: self.n_t1 = self.vm_since(m_t1)
        self.stamp("ug")

    def loop_init(self, part):
        a = self.a
        if part:
            for qb in range(4):
                for i in range(4): a(f"v_mov_b32 {vr(V_CI+4*qb+i)}, {vr(self.MK+qb)}")
            return
        for k in range(7): a(f"v_add_u32 {vr(V_HI+k)}, {2*SLOT}, {vr(V_KA+k if k < 5 else V_VB+k-5)}")
        a(f"v_add_u32 {vr(self.VS0)}, {sr(S_LB)}, {vr(V_DMA)}\nv_add_u32 {vr(self.VS0R)}, {sr(S_LB)}, {vr(self.VL8)}\ns_mov_b32 {sr(S_CNT)}, 0\ns_mov_b32 {sr(S_INC)}, {4*TILE}")
        for i in range(4): a(f"v_mov_b32 {vr(V_L+i)}, 0")
        for i in range(4): a(f"v_mov_b32 {vr(226+i)}, -1")
        if self.o.get("oib", 0):
            T = S_T
            a(f"""s_mul_i32 {sr(S_CL)}, {sr(S_TOWN)}, {TILE}
            s_mul_i32 {sr(T)}, {sr(self.NB)}, {BLK}
            s_lshl_b32 {sr(T+1)}, {sr(self.PT)}, 11
            s_add_u32 {sr(T)}, {sr(T)}, {sr(T+1)}
            s_add_u32 {sr(S_CL)}, {sr(S_CL)}, {sr(T)}
            s_xor_b32 {sr(T+1)}, {sr(S_H)}, 1
            s_sub_u32 {sr(T+1)}, {sr(T+1)}, {sr(S_H)}
            s_mul_i32 {sr(T+1)}, {sr(T+1)}, {TILE}
            s_add_u32 {sr(S_OS)}, {sr(S_CL)}, {sr(T+1)}
            s_cmp_ge_u32 s2, 248
            s_cselect_b32 {sr(T)}, 2.0, 0
            s_mul_i32 {sr(T+1)}, {sr(T)}, {sr(S_H)}
            s_sub_u32 {sr(T)}, {sr(T)}, {sr(T+1)}
            s_add_u32 {sr(S_OS)}, {sr(S_OS)}, {sr(T)}
            s_add_u32 {sr(S_OR)}, {sr(S_CL)}, {sr(T+1)}
            s_lshl_b32 {sr(T)}, {sr(S_REDO)}, 30
            s_or_b32 {sr(S_CL)}, {sr(S_OR)}, {sr(T)}
            s_lshl1_add_u32 {sr(S_CL+1)}, s2, {sr(self.NB)}
            s_mul_i32 {sr(S_CL+1)}, {sr(S_CL+1)}, 5120
            s_add_u32 {sr(S_CL+1)}, {sr(S_CL+1)}, {sr(T)}
            s_lshl_b32 {sr(T)}, {sr(self.PT)}, 9
            s_add_u32 {sr(T)}, {sr(T)}, {WS_IB}
            s_add_u32 {sr(S_CL+1)}, {sr(S_CL+1)}, {sr(T)}""")
        else:
            a(f"""s_lshl2_add_u32 {sr(S_CL)}, s2, {sr(S_W)}
            s_mul_i32 {sr(S_CL)}, {sr(S_CL)}, 2560
            s_lshl_b32 {sr(S_CL+1)}, {sr(S_REDO)}, 30
            s_add_u32 {sr(S_CL)}, {sr(S_CL)}, {sr(S_CL+1)}
            s_add_u32 {sr(S_CL)}, {sr(S_CL)}, {WS_IB}
            s_sub_u32 {sr(S_CL+1)}, {sr(S_CL)}, 2048""")
        a(f"v_mov_b32 v207, {sr(S_N)}\nv_mov_b32 {vr(self.VPL+1)}, 1\nv_lshlrev_b32 v231, 2, v0\nv_add_u32 v231, {L_PC}, v231")
        if self.o.get("xm", 0): a(f"s_add_u32 {sr(S_T)}, {sr(S_N)}, {sr(S_XC)}\nv_writelane_b32 v207, {sr(S_T)}, 1")

    def head(self):
        a, o = self.a, self.o
        gs = o.get("gs", 0)
        a.label("L_go")
        if not gs: self.loop_init(True)
        a("s_waitcnt lgkmcnt(0)\ns_barrier")
        self.stamp("bar5")
        base = self.qk_mfmas(0)
        pick = lambda s_, kb, qb: base[8 * s_ + 4 * kb + qb].replace(vr(V_K + 8 * s_ + 4 * kb, 4) + ",", vr(V_V + 8 * s_ + 4 * kb, 4) + ",").replace(vr(V_K + 32 + 2 * kb, 2) + ",", vr(V_V + 32 + 2 * kb, 2) + ",")
        mf, fin = [], {}
        for qb, s_ in [(0, 0), (0, 1), (0, 2), (0, 3), (1, 0), (1, 1), (0, 4), (1, 2), (1, 3), (2, 0), (2, 1), (1, 4), (2, 2), (2, 3), (3, 0), (3, 1), (2, 4),
                       (3, 2), (3, 3), (3, 4)]:
            for kb in range(2):
                fin[qb, kb] = len(mf)
                mf.append(("s_nop 3\n" if (qb, s_, kb) == (3, 4, 0) else "") + pick(s_, kb, qb))
        enew = [e[1] for g in range(40, 76) for e in self.gaps[g] if e[0] == "E"]
        items = self.e_items(0, enew, lambda qb, j: 0, lambda qb: 999)
        for it, e in zip(items, enew):
            if e[0] == "e": it["am"] = fin[e[1], e[2] // 4]
        dm = []
        for k, (slot, j) in enumerate([(2, j) for j in range(9)] if gs else [(2, 8)] + [(3, j) for j in range(9)]):
            g_ = 1 + o.get("hsp", 4) * k
            if j % 4 == 0: dm.append(dict(t=f"s_add_u32 m0, {sr(S_LB)}, {slot*SLOT + 4096*(j//4)}", c=0, lo=g_ - 1, hi=g_ - 1))
            dm.append(dict(t=f"buffer_load_dwordx4 {vr(V_DMA + j//4)}, {sr(S_XA,4)}, {sr(S_TOFF)} offen offset:{1024*(j%4)} lds", c=8, lo=g_, hi=g_))
            if j == 8: dm.append(dict(t=f"s_add_u32 {sr(S_TOFF)}, {sr(S_TOFF)}, {4*TILE}", c=0, lo=g_ + 1, hi=g_ + 1))
        nh = o.get("ugh", 2) if not o.get("ugl", 1) else 0
        for k in range(nh): dm.append(dict(t=self.ugs[k], c=8, lo=3 + 16 * k, hi=3 + 16 * k))
        if gs:
            k1 = o.get("k1lo", 22)
            kr = [dict(t=("@VM\n" if i == 0 else "") + x, c=4, lo=k1 + i // 2, hi=k1 + i // 2, nds=2) for i, x in enumerate(self.k_reads(1))]
        else:
            a(f"s_waitcnt vmcnt({self.n_t1})")
            kr = [dict(t=x, c=4, lo=i // 2, nds=2) for i, x in enumerate(self.k_reads(1))]
        left = self.pack(mf, items + dm + kr)
        print("head overflow", self.over, "left", len(left))
        left.sort(key=lambda x: not x.startswith("v_exp"))
        last = a.lines[-1].strip()
        for x in left:
            if last.startswith("v_exp") and not x.startswith("v_exp") and (last.split()[1].rstrip(",") + ",") in (x + ","): a("s_nop 0")
            a(x); last = x
        a("s_waitcnt lgkmcnt(0)")

    def tile_groups(self, slot):
        out = []
        for j in range(9):
            g = ""
            if j % 4 == 0: g = f"s_add_u32 m0, {sr(S_LB)}, {slot*SLOT + 4096*(j//4)}\ns_nop 0\n"
            g += f"buffer_load_dwordx4 {vr(V_DMA + j//4)}, {sr(S_XA,4)}, {sr(S_TOFF)} offen offset:{1024*(j%4)} lds"
            if j == 8: g += f"\ns_add_u32 {sr(S_TOFF)}, {sr(S_TOFF)}, {4*TILE}"
            out.append(g)
        return out

    def first_tiles(self):
        pass

    def wfuse(self):
        a = self.a
        BF, ACC, AF, TM, AD = 88, 108, 144, 208, 240
        LA, LB_, LM = 0, 44032, 88064
        T = S_T
        a.label("L_wfuse")
        a(f"{'s_sub_u32 s2, s6, 246' if self.o.get('xm', 0) == 2 else f's_add_u32 s2, s2, {NH}'}\ns_cmp_ge_u32 s2, {NH}\ns_cbranch_scc1 L_end")
        a(f"v_lshrrev_b32 v1, 6, v0\nv_and_b32 v0, 63, v0\nv_readfirstlane_b32 {sr(S_W)}, v1\nv_lshlrev_b32 {vr(V_DMA)}, 4, v0\ns_waitcnt lgkmcnt(0)")
        self.srd(S_WS, 78, 79, WS_END)
        self.srd(S_DB, 76, 77, 256)
        self.wf0 = 0
        self.srd(S_X, 72, 73, 82944)
        self.srd(S_W2, 62, 63, 41472)
        a(f"""s_cmp_eq_u32 s2, {self.wf0}
        s_cselect_b32 {sr(S_W1)}, s64, s70
        s_cselect_b32 {sr(S_W1+1)}, s65, s71
        s_mov_b32 {sr(S_W1+2)}, 41472
        s_mov_b32 {sr(S_W1+3)}, 0x20000
        s_cselect_b32 {sr(T+4)}, 0, 41472""")
        self.dma_rows([(S_W1, "0", LA), (S_W2, "0", LB_)], 19, 288, TM + 4, TM + 5, 11, 3, "L_wf1")
        a(f"s_lshl_b32 {sr(T)}, {sr(S_W)}, 10\ns_add_u32 {sr(T+2)}, {sr(T)}, {sr(T+4)}")
        for k in range(11):
            if k == 10: a(f"s_cmp_ge_u32 {sr(S_W)}, 1\ns_cbranch_scc1 L_wf2")
            a(f"s_add_u32 m0, {sr(T)}, {LM + 4096*k}\ns_add_u32 {sr(T+1)}, {sr(T+2)}, {4096*k}")
            a(f"buffer_load_dwordx4 {vr(V_DMA)}, {sr(S_X,4)}, {sr(T+1)} offen lds")
        a.label("L_wf2")
        self.srd(S_DW, 68, 69, 864)
        a(f"""v_and_b32 {vr(TM)}, 15, v0
        v_lshlrev_b32 {vr(TM+2)}, 4, {vr(TM)}
        v_lshlrev_b32 {vr(TM)}, 1, {vr(TM)}
        v_bfe_u32 {vr(TM+3)}, v0, 4, 1
        v_lshl_add_u32 {vr(TM+1)}, {vr(TM+3)}, 7, {vr(TM)}
        v_lshl_add_u32 {vr(TM+2)}, {vr(TM+3)}, 11, {vr(TM+2)}
        v_and_b32 {vr(TM+3)}, 1, v0
        v_lshlrev_b32 {vr(TM+3)}, 4, {vr(TM+3)}
        v_bfe_i32 {vr(TM+4)}, v0, 1, 1
        v_not_b32 {vr(TM+5)}, {vr(TM+4)}""")
        for k in range(3):
            for i in range(5): a(f"buffer_load_ushort {vr(16+5*k+i)}, {vr(TM+1 if i < 4 else TM)}, {sr(S_DW,4)}, 0 offen offset:{288*k + (32*i if i < 4 else 256)}")
        a(f"s_mov_b32 {sr(T+1)}, {WS_DWF}\ns_waitcnt vmcnt(0)")
        for f in range(15):
            a(f"v_lshlrev_b32 {vr(16+f)}, {vr(TM+3)}, {vr(16+f)}\nv_and_b32 {vr(32+2*f)}, {vr(TM+5)}, {vr(16+f)}\nv_and_b32 {vr(33+2*f)}, {vr(TM+4)}, {vr(16+f)}")
        for r_ in range(8): a(f"buffer_store_dwordx{4 if r_ < 7 else 2} {vr(32+4*r_, 4 if r_ < 7 else 2)}, {vr(TM+2)}, {sr(S_WS,4)}, {sr(T+1)} offen offset:{256*r_} sc1")
        self.tr_addr(AD, LM, False, TM + 8)
        self.row_addr(AD + 3, LA, TM + 8)
        a(f"v_add_u32 {vr(AD+5)}, {LB_}, {vr(AD+3)}")
        a(f"v_lshlrev_b32 {vr(AD+4)}, 3, v0")
        a(f"""s_lshr_b32 {sr(T)}, {sr(S_W)}, 1
        s_lshl_b32 {sr(T)}, {sr(T)}, 6
        s_and_b32 {sr(T+1)}, {sr(S_W)}, 1
        s_lshl_b32 {sr(T+1)}, {sr(T+1)}, 3
        s_add_u32 {sr(T)}, {sr(T)}, {sr(T+1)}
        v_and_b32 {vr(AD+6)}, 3, v0
        v_lshlrev_b32 {vr(AD+6)}, 3, {vr(AD+6)}
        v_add_u32 {vr(AD+7)}, {sr(T)}, {vr(AD+6)}""")
        for k in range(3): a(f"v_add_u32 {vr(AD+k)}, {vr(AD+7)}, {vr(AD+k)}")
        a(f"s_mov_b32 {sr(S_CNT)}, {sr(S_W)}")
        a("s_waitcnt vmcnt(0)\ns_barrier")
        a.label("L_wfl")
        for s in self.tr_reads(AD, vr)(0, BF): a(s)
        a("s_waitcnt lgkmcnt(0)")
        self.gemm(self.row_reads(AD + 3), BF, ACC, AF)
        for i in range(18): a(f"v_cvt_pk_bf16_f32 {vr(BF+i)}, {vr(ACC+2*i)}, {vr(ACC+2*i+1)}")
        a(f"s_cmp_eq_u32 s2, {self.wf0}\ns_cbranch_scc0 L_wf3")
        self.gemm(self.row_reads(AD + 5), BF, ACC, AF)
        for i in range(18): a(f"v_cvt_pk_bf16_f32 {vr(BF+i)}, {vr(ACC+2*i)}, {vr(ACC+2*i+1)}")
        a.label("L_wf3")
        a(f"""s_mul_i32 {sr(T)}, {sr(S_CNT)}, {BLK}
        s_add_u32 {sr(T)}, {sr(T)}, {sr(T+4)}
        s_add_u32 {sr(T)}, {sr(T)}, {WS_WF}
        s_add_u32 {sr(T+1)}, {sr(T)}, 4096""")
        self.store_block(BF, V_DMA, AD + 4, S_WS, T, T + 1, "sc1")
        for k in range(3): a(f"v_add_u32 {vr(AD+k)}, 128, {vr(AD+k)}")
        a(f"s_add_u32 {sr(S_CNT)}, {sr(S_CNT)}, 4\ns_cmp_lt_u32 {sr(S_CNT)}, 8\ns_cbranch_scc1 L_wfl")
        for k in range(3): a(f"v_sub_u32 {vr(AD+k)}, {vr(AD+k)}, {vr(AD+6)}")
        a(f"s_cmp_eq_u32 {sr(S_CNT)}, 8\ns_cbranch_scc1 L_wfl")
        a(f"""s_waitcnt vmcnt(0)
        s_barrier
        s_cmp_lg_u32 {sr(S_W)}, 0
        s_cbranch_scc1 L_end
        s_mov_b32 {sr(T+2)}, 0""")
        a.label("L_wtag")
        a(f"""buffer_load_dword {vr(TM)}, off, {sr(S_DB,4)}, 0 sc1
        s_add_u32 {sr(T+2)}, {sr(T+2)}, 1
        s_waitcnt vmcnt(0)
        v_readfirstlane_b32 {sr(T)}, {vr(TM)}
        s_cmp_lt_u32 {sr(T+2)}, 0x40000
        s_cselect_b32 {sr(T)}, {sr(T)}, 1
        s_cmp_eq_u32 {sr(T)}, 0
        s_cbranch_scc1 L_wtag
        v_lshlrev_b32 {vr(TM+1)}, 2, v0
        s_lshl_b32 {sr(T)}, s2, 8
        s_add_u32 {sr(T)}, {sr(T)}, {WS_F + 502*256}
        buffer_store_dword {vr(TM)}, {vr(TM+1)}, {sr(S_WS,4)}, {sr(T)} offen sc1
        s_endpgm""")

    def dump_stamps(self):
        a = self.a
        if self.o.get("census"):
            key, mode, m_, v_ = self.o["census"]
            a(f"""s_cmp_lg_u32 s2, 100
            s_cbranch_scc1 L_end
            v_lshlrev_b32 v16, 2, v0
            s_mov_b32 s4, {WS_DBG}""")
            for k in range(4): a(f"buffer_load_dword v{20+k}, v16, {sr(S_WS,4)}, s4 offen offset:{256*k} sc1")
            a(f"s_waitcnt vmcnt(0)\nv_readlane_b32 s8, v21, 36\ns_mov_b32 s9, 0x80000000\ns_mov_b32 s10, 0x7fffffff\ns_mov_b32 s11, 0\ns_mov_b32 s17, 0")
            for k in range(4):
                a(f"s_mov_b32 s5, 0")
                a.label(f"L_cs{k}")
                a(f"""v_readlane_b32 s6, v{20+k}, s5
                s_add_u32 s7, s5, {64*k}
                s_sub_u32 s6, s6, s8
                s_and_b32 s16, s7, {m_}
                s_cmp_lg_u32 s16, {v_}
                s_cbranch_scc1 L_cn{k}
                s_min_i32 s10, s10, s6
                s_cmp_gt_i32 s6, {self.o.get("thr", 150)}
                s_addc_u32 s17, s17, 0
                s_cmp_gt_i32 s6, s9
                s_cselect_b32 s9, s6, s9
                s_cselect_b32 s11, s7, s11""")
                a.label(f"L_cn{k}")
                a(f"s_add_u32 s5, s5, 1\ns_cmp_lt_u32 s5, {64 if k < 3 else 60}\ns_cbranch_scc1 L_cs{k}")
            a({"arg": "s_lshl_b32 s6, s11, 3", "range": "s_sub_u32 s6, s9, s10\ns_lshl_b32 s6, s6, 1", "zero": "s_mov_b32 s6, 0", "cnt": "s_lshl_b32 s6, s17, 4",
               "max": "s_lshl_b32 s6, s9, 1"}[mode])
            a("s_add_u32 s6, s6, 1000\ns_memrealtime s[4:5]\ns_waitcnt lgkmcnt(0)\ns_add_u32 s6, s6, s4")
            a.label("L_echo")
            a("s_memrealtime s[4:5]\ns_waitcnt lgkmcnt(0)\ns_sub_u32 s7, s6, s4\ns_cmp_gt_i32 s7, 0\ns_cbranch_scc1 L_echo")
            return
        if self.o.get("echo"):
            if self.o["echo"][0] == "skew":
                a(f"v_mov_b32 v16, 4\nbuffer_load_dword v17, v16, {sr(S_DB,4)}, 0 offen sc1\ns_waitcnt vmcnt(0)\nv_readfirstlane_b32 s98, v17\ns_not_b32 s98, s98")
                x, y = 98, S_ST + 2 * self.stnames.index(self.o["echo"][1])
            else:
                x, y = [S_ST + 2 * self.stnames.index(n) for n in self.o["echo"]]
            lo, hi = self.o.get("echo_ids", (0, 999))
            a(f"""s_cmp_eq_u32 {sr(S_VAL)}, 0
            s_cbranch_scc1 L_end
            s_cmp_lt_u32 s2, {lo}
            s_cbranch_scc1 L_end
            s_cmp_ge_u32 s2, {hi}
            s_cbranch_scc1 L_end
            s_and_b32 s6, s2, {self.o.get("echo_m", 0)}
            s_cmp_lg_u32 s6, {self.o.get("echo_v", 0)}
            s_cbranch_scc1 L_end
            s_memrealtime s[4:5]
            s_waitcnt lgkmcnt(0)
            s_sub_u32 s6, {sr(y)}, {sr(x)}
            s_mul_i32 s6, s6, {self.o.get("echo_mul", 1)}
            s_lshr_b32 s6, s6, {self.o.get("echo_shr", 0)}
            s_add_u32 s6, s6, {self.o.get("echo_add", 0)}
            s_add_u32 s6, s6, s4""")
            a.label("L_echo")
            a("s_memrealtime s[4:5]\ns_waitcnt lgkmcnt(0)\ns_sub_u32 s7, s6, s4\ns_cmp_gt_i32 s7, 0\ns_cbranch_scc1 L_echo")
            return
        if self.o.get("dbgst"):
            a("s_waitcnt vmcnt(0)")
            self.stamp("done")
            a("s_waitcnt lgkmcnt(0)\ns_mov_b64 exec, 1")
            slots = [1, 2, 3, 4, 5, 6, 7, 9, 11, 12, 13, 14, 15]
            a(f"s_not_b32 {sr(S_T)}, {sr(S_ST)}\nv_mov_b32 v16, {sr(S_T)}\nv_mov_b32 v17, 4\nbuffer_atomic_umax v16, v17, {sr(S_DB,4)}, 0 offen sc1")
            for i in range(min(self.nst, 12)):
                a(f"v_mov_b32 v{18+2*i}, {sr(S_ST+2*i)}\nv_mov_b32 v{19+2*i}, {4*slots[i+1]}\nbuffer_atomic_umax v{18+2*i}, v{19+2*i}, {sr(S_DB,4)}, 0 offen sc1")
            return
        if not self.o.get("stamps"): return
        T = S_T
        a(f"""s_waitcnt lgkmcnt(0)
        s_lshl_b32 {sr(T)}, s2, 2
        s_add_u32 {sr(T)}, {sr(T)}, {sr(S_W)}
        s_lshl_b32 {sr(T)}, {sr(T)}, 7
        s_add_u32 {sr(T)}, {sr(T)}, {WS_DBG}
        v_mov_b32 v1, 0""")
        for i in range(26): a(f"v_mov_b32 {vr(16+i)}, {sr(S_ST+i)}")
        for i in range(7): a(f"buffer_store_dwordx4 {vr(16+4*i,4)}, v1, {sr(S_WS,4)}, {sr(T)} offen offset:{16*i}")

    def build(self):
        a = self.a
        self.stnames = []
        a.raw(f"; @launch grid=({NWG},1,1) block=(256,1,1) lds={LDS_TOTAL}")
        a.raw('.amdgcn_target "amdgcn-amd-amdhsa--gfx950"')
        a.raw(".text")
        a.raw(f".globl {NAME}")
        a.raw(".p2align 12")
        self.entry()
        self.phase_a()
        self.rest()
        a.label("L_fin")
        self.dump_stamps()
        a.label("L_end")
        a("s_endpgm")
        self.poll2()
        if not self.o.get("touch", 1): self.rare()
        a.label("L_dummy")
        self.fallback()
        self.wfuse()
        a.raw('.section .rodata,"a"')
        a.raw(".p2align 6")
        a.raw(kernel_desc(NAME, 512, 102, 256))
        return a.text()

    def S(self, buf, qb, i=0): return V_S + buf * 32 + qb * 8 + i
    def P(self, buf, qb, i=0): return V_P + buf * 16 + qb * 4 + i

    def k_reads(self, slot, V_K=V_K):
        ka, so = (V_KA, slot * SLOT) if slot < 2 else (V_HI, (slot - 2) * SLOT)
        out = [f"ds_read_b128 {vr(V_K+8*s+4*kb,4)}, {vr(ka)} offset:{so + 2048*s + 256*kb}" for s in range(4) for kb in range(2)]
        out += [f"ds_read_b64 {vr(V_K+32+2*kb,2)}, {vr(ka+1)} offset:{so + 8192 + 512*kb}" for kb in range(2)]
        return out

    def v_reads(self, slot, dst=V_V):
        (va, vr_, vb), so = ((V_VA, V_VR, V_VB), slot * SLOT) if slot < 2 else ((V_HI + 2, V_HI + 4, V_HI + 5), (slot - 2) * SLOT)
        out = []
        for T in range(9):
            for u in range(2):
                if T < 8: out.append(f"ds_read_b64_tr_b16 {vr(dst+4*T+2*u,2)}, {vr((va if T < 4 else vb)+(T&1))} offset:{so + 2048*((T>>1)&1) + 256*u}")
                else: out.append(f"ds_read_b64_tr_b16 {vr(dst+4*T+2*u,2)}, {vr(vr_)} offset:{so + 8192 + 512*u}")
        return out

    def qk_mfmas(self, buf, czero=False):
        out = []
        for s in range(5):
            for kb in range(2):
                for qb in range(4):
                    d = vr(self.S(buf, qb, 4 * kb), 4)
                    c = ("0" if czero else vr(V_CI + 4 * qb, 4)) if s == 0 else d
                    if s < 4: out.append(f"v_mfma_f32_16x16x32_bf16 {d}, {vr(V_K+8*s+4*kb,4)}, {ar(A_Q+18*qb+4*s,4)}, {c}")
                    else: out.append(f"v_mfma_f32_16x16x16_bf16 {d}, {vr(V_K+32+2*kb,2)}, {ar(A_Q+18*qb+16,2)}, {c}")
        return out

    def pv_mfmas(self, buf, czero=False):
        out = []
        for T in range(9):
            for qb in range(4):
                o = ar(A_O + 36 * qb + 4 * T, 4)
                out.append(f"v_mfma_f32_16x16x32_bf16 {o}, {vr(V_V+4*T,4)}, {vr(self.P(buf,qb),4)}, {'0' if czero else o}")
        return out

    def plan(self):
        o = self.o
        n = 76
        fixed = [None] * n
        for i, g in enumerate(range(1, 36, 2)): fixed[g] = ("V", i)
        for i, g in enumerate([41, 44, 47, 50, 53, 56, 59, 62, 65, 68]): fixed[g] = ("K", i)
        for i, g in enumerate([42, 46, 49, 52, 55, 58, 61, 64, 67]): fixed[g] = ("D", i)
        exps = [(qb, j) for qb in range(4) for j in range(8)]
        start = 40
        order = [(start + k) % n for k in range(n)]
        free_idx = [k for k, g in enumerate(order) if fixed[g] is None]
        nsm = len(free_idx) - 32
        cand = free_idx[6:-2]
        sm_set = set(free_idx[-2:]) | {cand[int((i + 0.5) * len(cand) / (nsm - 2))] for i in range(nsm - 2)}
        nds = sum(1 for f in fixed if f is not None and f[0] != "D")
        ls = o.get("lsum", "add")
        over = max(0, (48 if ls == "add" else 32) - nds - 2 * nsm)
        ocand = [k for k, g in enumerate(order) if k >= 20 and (fixed[g] is None or fixed[g][0] != "D")]
        o_set = {ocand[int((i + 0.5) * len(ocand) / over)] for i in range(over)}
        later = []
        gaps = [[] for _ in range(n)]
        small, pend, ei = [], [], 0
        for k, g in enumerate(order):
            new = (start + k) < n
            small.extend(pend); pend = later; later = []
            small.sort(key=lambda t: 0 if t[0] == "c" else 1)
            f = fixed[g]
            want = 0
            if f is not None:
                gaps[g].append((f[0], f[1], None))
                if f[0] == "D": continue
                want = 1
            elif k in sm_set: want = 2
            else:
                qb, j = exps[ei]; ei += 1
                gaps[g].append(("E", ("e", qb, j), new))
                if j & 1: pend.append(("c", qb, j // 2))
                if ls == "add": pend.append(("a", qb, j))
                elif j & 1 and ls == "pk": pend.append(("p", qb, j // 2))
            if k in o_set: want += 1
            if k == n - 1: want = 99
            for _ in range(want):
                if small:
                    it = small.pop(0)
                    gaps[g].append(("E", it, new))
                    if it[0] == "c" and ls == "dot": (small if k == n - 1 else pend).append(("d", it[1], it[2]))
        assert not small and not pend and ei == 32
        self.gaps = gaps

    def pack(self, mf, items):
        a = self.a
        where, order, done, nvm, mpos = {}, [], 0, 0, []
        isds = lambda it: "ds_" in it["t"]
        self.over = 0
        for g, m in enumerate(mf):
            assert not any(it.get("need", 999) <= g and i not in where for i, it in enumerate(items)), g
            idx = [k for k, n_ in enumerate(order) if n_ <= g]
            if idx and max(idx) + 1 > done:
                a(f"s_waitcnt lgkmcnt({min(15, len(order) - 1 - max(idx))})"); done = max(idx) + 1
            if m.startswith("@W"):
                w_, m = m.split("\n", 1)
                a(f"s_waitcnt lgkmcnt({min(15, int(w_[2:]) + len(order))})")
            a(m)
            mpos.append(len(a.lines))
            cap, pick = 8, []
            for phase in (0, 1):
                for i, it in enumerate(items):
                    if i in where or it.get("lo", 0) > g: continue
                    if "am" in it and (it["am"] >= g or len(a.lines) - mpos[it["am"]] < 8): continue
                    d = it.get("dep")
                    if d is not None and not all(where.get(x, 999) < g for x in d): continue
                    if (phase == 0 and it.get("hi", 999) <= g) or (phase == 1 and it["c"] <= cap):
                        if it["t"].startswith("buffer") and pick and any(items[x]["c"] for x in pick) and phase == 1: continue
                        if isds(it) and sum(isds(items[x]) for x in pick) >= it.get("nds", 1) and phase == 1: continue
                        pick.append(i); where[i] = g; cap -= it["c"]
            key = lambda i: 0 if items[i]["c"] == 0 else 1 if isds(items[i]) else 2 if items[i]["t"].startswith("buffer") else 3
            for i in sorted(pick, key=key):
                a(items[i]["t"].replace("@VM", f"s_waitcnt vmcnt({nvm})"))
                nvm += items[i]["t"].startswith("buffer")
                if isds(items[i]): order.append(items[i].get("need", 999))
            self.over += max(0, -cap)
        return [it["t"] for i, it in enumerate(items) if i not in where]

    def e_items(self, buf, lst, lo, hi):
        items, idx = [], {}
        for it in lst:
            kind, qb, j = it
            d = dict(t=self.etext(buf, it), c=8 if kind == "e" else 4)
            if kind == "e": d["lo"] = lo(qb, j); d["hi"] = hi(qb) - 2 - (7 - j)
            else:
                need = [("e", qb, j)] if kind == "a" else [("c", qb, j)] if kind == "d" else [("e", qb, 2 * j), ("e", qb, 2 * j + 1)]
                d["dep"] = [idx[x] for x in need if x in idx]
                if kind == "c": d["hi"] = hi(qb) - (3 - j) // 2
            idx[it] = len(items); items.append(d)
        return items

    def etext(self, buf, it):
        kind, qb, j = it
        s = self.S(buf, qb)
        if kind == "e": return f"v_exp_f32 {vr(s+j)}, {vr(s+j)}"
        if kind == "d": return f"v_dot2_f32_bf16 {vr(V_L+qb)}, {vr(self.P(buf, qb, j))}, v227, {vr(V_L+qb)}"
        if kind == "p": return f"v_pk_add_f32 {vr(208+2*qb,2)}, {vr(208+2*qb,2)}, {vr(s+2*j,2)}"
        if kind == "a": return f"v_add_f32 {vr(V_L+qb)}, {vr(V_L+qb)}, {vr(s+j)}"
        return f"v_cvt_pk_bf16_f32 {vr(self.P(buf, qb, j))}, {vr(s+2*j)}, {vr(s+2*j+1)}"

    def period(self, p, qk=True, pv=True, e_old=True, e_new=True, kread=True, vread=True, dma=True, extra={}, dsub=None, ksub=None, vm=9, halves=(0, 1), inc=None):
        a = self.a
        bn, bo = (p + 1) & 1, p & 1
        qk_, pv_ = self.qk_mfmas(bn), self.pv_mfmas(bo, czero=(p == 0))
        qo, po = self.o.get("qkord", 1), self.o.get("pvord", 0)
        if qo == 1: qk_ = [qk_[8 * s_ + 4 * kb + qb] for kb in range(2) for qb in range(4) for s_ in range(4)] + qk_[32:]
        if qo == 2: qk_ = [qk_[8 * s_ + 4 * kb + qb] for qb in range(4) for kb in range(2) for s_ in range(4)] + qk_[32:]
        if qo == 3: qk_ = [qk_[8 * s_ + 4 * kb + qb] for qb in range(4) for s_ in range(4) for kb in range(2)] + qk_[32:]
        if po == 1: pv_ = [pv_[4 * T_ + qb] for qb in range(4) for T_ in range(9)]
        mf = qk_ + pv_
        kr, vrd = self.k_reads((p + 2) % RING), self.v_reads(p % RING)
        slot = p % RING
        n = 76
        sc = [[] for _ in range(n)]
        dgs = [g for g in range(n) if any(e[0] == "D" for e in self.gaps[g])]
        if dma:
            for j, g in enumerate(dgs):
                if j % 4 == 0: sc[g - 1].append(f"s_add_u32 m0, {sr(S_LB)}, {slot*SLOT + 4096*(j//4)}")
            sc[dgs[-1] + 1].append(f"s_add_u32 {sr(S_TOFF)}, {sr(S_TOFF)}, {inc or 4*TILE}")
        w = []
        if kread: w.append(f"vmcnt({vm})")
        if pv: w.append("lgkmcnt(0)")
        if w: sc[39].append("s_waitcnt " + " ".join(w))
        if kread: sc[75].append("s_waitcnt lgkmcnt(0)")
        for half in halves:
            rng = range(0, 40) if half == 0 else range(40, 76)
            on = qk if half == 0 else pv
            if not on:
                ds, mem, val, post = [], [], [], []
                for g in rng:
                    for s_ in sc[g]:
                        (post if s_.startswith("s_waitcnt") else mem).append(s_)
                    if g in extra: mem.append(extra[g])
                    for kind, d, new in self.gaps[g]:
                        if kind == "V" and vread: ds.append(vrd[d])
                        elif kind == "K" and kread: ds.append(kr[d])
                        elif kind == "D" and dma: mem.append(f"buffer_load_dwordx4 {vr(V_DMA + d//4)}, {sr(S_XA,4)}, {sr(S_TOFF)} offen offset:{1024*(d%4)} lds")
                        elif kind == "E" and ((new and e_new) or (not new and e_old)): val.append((d, self.etext(bn if new else bo, d)))
                if half == 1: a("s_nop 3")
                seq, pend = [], list(val)
                while pend:
                    k = 0
                    if seq and seq[-1][0][0] == "e":
                        le = seq[-1][0]
                        dep = lambda it: it[0][1] == le[1] and ((it[0][0] == "a" and it[0][2] == le[2]) or (it[0][0] == "c" and it[0][2] == le[2] // 2))
                        have = {x[0] for x in seq}
                        ok = lambda it: it[0][0] == "e" or (("e", it[0][1], it[0][2]) in have if it[0][0] == "a" else (("e", it[0][1], 2*it[0][2]+1) in have)) or not any(x[0][0] == "e" and x[0][1] == it[0][1] and (x[0][2] == it[0][2] if it[0][0] == "a" else x[0][2] // 2 == it[0][2]) for x in pend)
                        while k < len(pend) and (dep(pend[k]) or not ok(pend[k])): k += 1
                        if k == len(pend): seq.append((("n", 0, 0), "s_nop 0")); k = 0
                    seq.append(pend.pop(k))
                step = max(1, len(seq) // (len(mem) + len(ds) + 1))
                allm = ds + mem
                for x in allm[:6]: a(x)
                allm = allm[6:]
                for i_, (d, t_) in enumerate(seq):
                    a(t_)
                    if allm and i_ % step == step - 1:
                        x = allm.pop(0); a(x)
                        if x.startswith("s_add_u32 m0"): a("s_nop 0")
                for x in allm:
                    a(x)
                    if x.startswith("s_add_u32 m0"): a("s_nop 0")
                for x in post: a(x)
                if half == 0: a("s_nop 1")
                continue
            abl = self.o.get("abl", "") if 1 <= p <= 4 else ""
            for g in rng:
                if not ("Q" in abl and g < 40 or "P" in abl and g >= 40): a(mf[g])
                for s_ in sc[g]: a(s_)
                if g in extra: a(extra[g])
                for kind, d, new in self.gaps[g]:
                    if kind in abl or (kind == "E" and d[0] in abl): continue
                    if kind == "V":
                        if vread: a(vrd[d])
                    elif kind == "K":
                        if kread: a(kr[d])
                        elif ksub: a(ksub.pop(0))
                    elif kind == "D":
                        if dma: a(f"buffer_load_dwordx4 {vr(V_DMA + d//4)}, {sr(S_XA,4)}, {sr(S_TOFF)} offen offset:{1024*(d%4)} lds")
                        elif dsub: a(dsub.pop(0))
                    elif (new and e_new) or (not new and e_old):
                        a(self.etext(bn if new else bo, d))

    MK, VO, VO8, GA, VS0, VS0R, VDW, VLW, VL8, VST, VPL = 232, 236, 9, 238, 250, 251, 244, 245, 246, 247, 248
    NB, PT, E_U, E_G, RS3, E_COL, RS1, RS2, MP1 = 3, 4, 5, 6, 7, 43, 36, 37, 38
    G0, GM, GP, U, DWT = 16, 26, 36, 80, (90, 252, 96, 100, 112, 116, 104, 94)
    XRS = (192, 196, 46)
    frag = staticmethod(lambda f, b: [(f, b + 4 * s) for s in range(5)])
    WD = [[("a", 216 + 4 * s) for s in range(5)], [("a", 234 + 4 * s) for s in range(5)], [("v", 208 + 4 * s) for s in range(5)]]
    WO = [[("a", 4 * s) for s in range(5)], [("a", 18 + 4 * s) for s in range(5)], [("a", 36), ("a", 40), ("a", 44), ("a", 48), ("a", 252)]]
    X1B = 98304
    X2O = L_SP - X1B
    L_L = L_SP + 9216

    def epi_setup(self):
        a = self.a
        T = S_T
        NB, PT, VO, GA = self.NB, self.PT, self.VO, self.GA
        r, g4, x, y, big, r0 = 52, 53, 54, 55, 56, 57
        a(f"""s_lshr_b32 {sr(NB)}, {sr(S_W)}, 1
        s_and_b32 {sr(PT)}, {sr(S_W)}, 1
        v_and_b32 {vr(r0)}, 15, v0
        v_lshrrev_b32 {vr(g4)}, 4, v0
        v_mul_u32_u24 {vr(x)}, 288, {vr(r0)}
        v_mov_b32 {vr(big)}, 0x40000000
        s_lshl_b32 {sr(T)}, {sr(S_TOWN)}, 1
        s_add_u32 {sr(T)}, {sr(T)}, {sr(NB)}
        s_lshl_b32 {sr(T)}, {sr(T)}, 4
        v_add_u32 {vr(r)}, {sr(T)}, {vr(r0)}
        s_mul_i32 {sr(T+1)}, {sr(S_TOWN)}, {TILE}
        s_mul_i32 {sr(T+2)}, {sr(PT)}, {BLK}
        v_add_u32 {vr(x)}, {sr(T+1)}, {vr(x)}
        s_sub_u32 {sr(T+3)}, {BLK}, {sr(T+2)}
        v_add_u32 {vr(y)}, {sr(T+3)}, {vr(x)}
        v_add_u32 {vr(x)}, {sr(T+2)}, {vr(x)}
        v_lshl_add_u32 {vr(VO)}, {vr(g4)}, 4, {vr(x)}
        v_lshl_add_u32 {vr(VO+1)}, {vr(g4)}, 4, {vr(y)}
        v_lshl_add_u32 {vr(self.VO8)}, {vr(g4)}, 3, {vr(x)}
        s_lshl_b32 {sr(T+3)}, {sr(PT)}, 11
        s_add_u32 {sr(self.E_U)}, {sr(T+3)}, {WS_U}
        s_add_u32 {sr(self.E_G)}, {sr(T+3)}, {WS_G}
        s_sub_u32 {sr(T+3)}, 4096, {sr(T+3)}
        s_lshl_b32 {sr(T)}, {sr(PT)}, 11
        s_add_u32 {sr(T)}, {sr(T)}, {WS_DWF}
        v_lshrrev_b32 {vr(x)}, 2, {vr(r0)}
        v_cmp_eq_u32 vcc, {vr(x)}, {vr(g4)}
        v_lshl_add_u32 {vr(self.VDW)}, {vr(r0)}, 4, {sr(T)}
        s_nop 0
        v_cndmask_b32 {vr(self.VDW)}, {vr(big)}, {vr(self.VDW)}, vcc
        s_lshl_b32 {sr(self.E_COL)}, {sr(S_W)}, 6
        v_lshlrev_b32 {vr(self.VL8)}, 3, v0
        v_add_u32 {vr(self.VL8)}, 4096, {vr(self.VL8)}
        v_add_u32 {vr(self.VST)}, {sr(S_LB)}, {vr(V_DMA)}
        v_add_u32 {vr(self.VST)}, {2*SLOT}, {vr(self.VST)}
        s_xor_b32 {sr(T)}, {sr(NB)}, 1
        v_xor_b32 {vr(x)}, {sr(T)}, {vr(g4)}
        v_lshl_add_u32 {vr(x)}, {vr(x)}, 4, {vr(r0)}
        s_lshl_b32 {sr(T)}, {sr(S_W)}, 2
        s_add_u32 {sr(T)}, {sr(T)}, {self.L_L}
        v_lshl_add_u32 {vr(self.VLW)}, {vr(x)}, 4, {sr(T)}
        s_sub_u32 {sr(self.MP1)}, 0, {sr(PT)}
        s_mov_b32 {sr(self.MP1+1)}, {sr(self.MP1)}""")
        for k, (d, base) in enumerate(((self.RS1, 3 * SLOT), (self.RS2, 2 * SLOT), (self.RS3, 2 * SLOT))):
            a(f"s_xor_b32 {sr(T)}, {sr(S_W)}, {k+1}\ns_mul_i32 {sr(T)}, {sr(T)}, {TILE}\ns_add_u32 {sr(d)}, {sr(T)}, {base}")
        a(f"""s_mul_i32 {sr(T)}, {sr(S_B)}, 4000
        s_add_u32 {sr(T+1)}, {sr(T)}, 3999
        s_mov_b32 {sr(T+2)}, {BLK}""")
        for k, dr in enumerate((0, -1, 1)):
            m = GA + 2 * k
            if dr: a(f"v_add_u32 {vr(m)}, {dr}, {vr(r)}\nv_cmp_eq_u32 vcc, {sr(T if dr < 0 else T+1)}, {vr(r)}")
            src = m if dr else r
            a(f"""v_lshrrev_b32 {vr(x)}, 4, {vr(src)}
            v_and_b32 {vr(y)}, 15, {vr(src)}
            v_mul_lo_u32 {vr(x)}, {vr(x)}, {sr(T+2)}
            v_lshl_add_u32 {vr(y)}, {vr(g4)}, 4, {vr(y)}
            v_lshl_add_u32 {vr(m)}, {vr(y)}, 4, {vr(x)}
            v_lshl_add_u32 {vr(m+1)}, {vr(y)}, 3, {vr(x)}
            v_add_u32 {vr(m+1)}, {sr(T+3)}, {vr(m+1)}""")
            if dr: a(f"v_cndmask_b32 {vr(m)}, {vr(m)}, {vr(big)}, vcc\nv_cndmask_b32 {vr(m+1)}, {vr(m+1)}, {vr(big)}, vcc")

    def conv_loads(self):
        GA = self.GA
        L = []
        for dst, m, so in ((self.GM, GA + 2, 1), (self.G0, GA, 1), (self.GP, GA + 4, 1), (self.U, GA, 0)):
            for k in range(2): L.append(f"buffer_load_dwordx4 {vr(dst+4*k,4)}, {vr(m)}, {sr(S_WS,4)}, {sr(self.E_U+so)} offen offset:{1024*k}")
            L.append(f"buffer_load_dwordx2 {vr(dst+8,2)}, {vr(m+1)}, {sr(S_WS,4)}, {sr(self.E_U+so)} offen")
        return L

    def rg(self, e, n): return (ar if e[0] == "a" else vr)(e[1], n)

    def w8_loads(self, regs, so):
        return [f"buffer_load_dwordx4 {self.rg(regs[s],4)}, {vr(V_DMA)}, {sr(S_WS,4)}, {sr(so)} offen offset:{1024*s}" for s in range(4)] + \
               [f"buffer_load_dwordx2 {self.rg(regs[4],2)}, {vr(self.VL8)}, {sr(S_WS,4)}, {sr(so)} offen"]

    def w_reads(self, regs, off):
        L = []
        for tt in range(2):
            L += [f"ds_read_b128 {self.rg(regs[tt][s],4)}, {vr(self.VS0)} offset:{off + BLK*tt + 1024*s}" for s in range(4)]
            L.append(f"ds_read_b64 {self.rg(regs[tt][4],2)}, {vr(self.VS0R)} offset:{off + BLK*tt}")
        return L

    def xa_srd(self):
        T = S_T
        return f"""s_mul_i32 {sr(T)}, {sr(S_B)}, {NT}
        s_mul_i32 {sr(T+1)}, {sr(S_H)}, 63
        s_add_u32 {sr(T+1)}, {sr(T+1)}, {sr(T)}
        s_mul_i32 {sr(T+1)}, {sr(T+1)}, {TILE}
        s_add_u32 {sr(S_XA)}, {sr(S_WS)}, {sr(T+1)}
        s_addc_u32 {sr(S_XA+1)}, {sr(S_WS+1)}, 0
        s_sub_u32 {sr(T+2)}, 63, {sr(S_H)}
        s_mul_i32 {sr(S_XA+2)}, {sr(T+2)}, {TILE}
        s_mov_b32 {sr(S_XA+3)}, 0x20000"""

    def rest(self):
        a, o = self.a, self.o
        T = S_T
        VPL = self.VPL
        self.plan()
        self.head()
        self.stamp("loop")
        if o.get("sktest") or o.get("echo") and o["echo"][0] == "skew":
            a(f"s_waitcnt lgkmcnt(0)\ns_mov_b64 exec, 1\ns_not_b32 s98, {sr(S_ST)}\nv_mov_b32 v226, s98\nv_mov_b32 v227, 4\ns_cmp_lg_u32 {sr(S_W)}, 0\ns_cbranch_scc1 L_sk\nbuffer_atomic_umax v226, v227, {sr(S_DB,4)}, 0 offen sc1\ns_waitcnt vmcnt(0)\nL_sk:\ns_mov_b64 exec, -1\ns_nop 3")
            self.stamp("sk")
        nh = o.get("ugh", 2)
        ex = {2 + 12 * k: x for k, x in enumerate(self.ugs[nh:])}
        ugl = o.get("ugl", 1)
        CL = 226
        SI = S_OUT if o.get("oib", 0) else S_WS
        clr = [f"buffer_store_dwordx4 {vr(CL,4)}, {vr(V_DMA)}, {sr(SI,4)}, {sr(S_CL)} offen sc1",
               f"buffer_store_dwordx4 {vr(CL,4)}, {vr(V_DMA)}, {sr(SI,4)}, {sr(S_CL)} offen offset:1024 sc1",
               f"buffer_store_dwordx2 {vr(CL,2)}, {vr(self.VL8)}, {sr(S_WS,4)}, {sr(S_CL+1)} offen sc1"]
        cll = o.get("cll", 1)
        ex0 = {69: self.ugs[0], 71: clr[0]} if cll else {69: self.ugs[0]}
        if o.get("gs", 0):
            for j, x in enumerate(self.tile_groups(3)):
                g_ = o.get("t3g", 2) + 4 * j
                x = x.split("\n")
                if x[0].startswith("s_add_u32 m0"): ex0[g_ - 1] = x[0]; x = x[2:]
                ex0[g_] = "\n".join(x)
        if ugl: self.period(0, extra=ex0)
        else: self.period(0, vm=9 + 5, extra=ex)
        self.stamp("l0")
        a.raw(".p2align 6")
        a.label("L_loop")
        self.stamp("q1")
        for p in range(1, 5):
            ex = {}
            vm = 9
            if p == 1: ex = {73: f"s_cmp_eq_u32 {sr(S_CNT)}, 3"}
            if p == 2: ex = {70: f"buffer_load_dword v252, {vr(VPL)}, {sr(S_WS,4)}, 0 offen sc1"}
            if p == 3:
                ex = {73: f"s_cmp_eq_u32 {sr(S_CNT)}, 2", 45: f"ds_add_rtn_u32 v230, v231, {vr(VPL+1)}"}
            if p == 4:
                self.stamp("la0")
                a(f"s_cbranch_scc1 L_last")
                a.label("L_lastb")
                self.stamp("la1")
                ex = {72: f"s_add_u32 {sr(S_CNT)}, {sr(S_CNT)}, 1", 1: f"v_readfirstlane_b32 {sr(T)}, v230", 3: f"s_cmp_eq_u32 {sr(T)}, 3",
                      4: f"s_cselect_b32 {sr(T)}, {sr(S_FB)}, 2.0", 6: f"buffer_store_dword v207, v231, {sr(S_WS,4)}, {sr(T)} offen sc1"}
            if ugl:
                ex[69] = self.ugs[p]
                if p < 3 and cll: ex[72] = clr[p]
                if p == 3 and cll: ex.update({70: f"s_mov_b32 {sr(S_CL)}, 2.0", 71: f"s_mov_b32 {sr(S_CL+1)}, 2.0"})
                if p == 4: ex.update({71: f"s_mov_b32 {sr(S_UG)}, 2.0", 2: f"s_lshl2_add_u32 {sr(T)}, {sr(S_CNT)}, {sr(T)}", 3: f"s_cmp_eq_u32 {sr(T)}, 7"})
                if p == 3: ex.update({43: f"s_and_b32 {sr(T)}, {sr(S_CNT)}, 1", 44: f"v_mov_b32 {vr(VPL+1)}, {sr(T)}", 48: ex.pop(45)})
            for k_ in range(o.get("pad", 0)): ex[10 + 7 * k_] = ex.get(10 + 7 * k_, "s_nop 0") + "\ns_nop 7"
            self.period(p, extra=ex, inc=sr(S_INC) if p == 4 else None)
            if p == 1: a("s_cbranch_scc1 L_p14")
        a("s_branch L_loop")
        a.label("L_p14")
        SW = 66
        self.stamp("p14")
        a(f"s_cmp_eq_u32 {sr(S_DUM)}, 4\ns_cbranch_scc0 L_dummyb")
        for i in range(16): a(f"v_mov_b32 {vr(V_CI+i)}, 0xff800000")
        a("s_nop 1")
        a.label("L_dummyb")
        ex = dict(zip([2, 6, 8, 12, 14, 18, 20, 24, 26, 30], self.w_reads(self.WD, 0)))
        ex[0] = "s_waitcnt vmcnt(9)"
        ex.update(dict(zip([4, 10, 16, 22, 28], self.w8_loads(self.WD[2], SW))))
        self.period(14, dma=False, kread=False, extra=ex, halves=(0,))
        self.stamp("tail")
        self.tail(SW)
        self.stamp("end")
        self.epilogue(SW)

    def rare(self):
        a = self.a
        T = S_T
        SW = 66
        a.label("L_last")
        a(f"s_waitcnt vmcnt(9)\ns_mov_b32 {sr(T+2)}, 0")
        a.label("L_late")
        xc = f"v_readlane_b32 {sr(S_SX)}, v252, 5\ns_sub_u32 {sr(S_SX)}, {sr(S_SX)}, {sr(S_N)}" if self.o.get("xm", 0) else ""
        a(f"""v_cmp_ne_u32 vcc, {sr(S_N)}, v252
        s_add_u32 {sr(S_XA)}, {sr(S_WS)}, {WS_WF}
        s_addc_u32 {sr(S_XA+1)}, {sr(S_WS+1)}, 0
        s_mov_b32 {sr(S_XA+2)}, {18*BLK}
        s_add_u32 {sr(S_TOFF)}, {sr(S_LB)}, {9*BLK}
        s_mov_b32 {sr(S_INC)}, {-9*BLK}
        s_lshr_b32 {sr(SW)}, {sr(S_W)}, 1
        s_lshl_b32 {sr(SW)}, {sr(SW)}, 30
        s_add_u32 {sr(SW+1)}, {sr(SW)}, {WS_WF + 8*BLK}
        s_add_u32 {sr(SW)}, {sr(SW)}, {WS_WF + 17*BLK}
        {xc}
        s_and_b32 {sr(T)}, vcc_lo, 31
        s_cbranch_scc0 L_lastb
        buffer_load_dword v252, {vr(self.VPL)}, {sr(S_WS,4)}, 0 offen sc1
        s_add_u32 {sr(T+2)}, {sr(T+2)}, 1
        s_waitcnt vmcnt(0)
        s_cmp_lt_u32 {sr(T+2)}, 0x40000
        s_cbranch_scc1 L_late
        s_branch L_lastb""")

    units = [(0, 0), (0, 1), (1, 0), (1, 1), (2, 0)]
    V15 = V_K

    def stage(self, slot, T):
        src = ar(A_O + 36 * slot + 4 * T, 4)
        if slot == 0: return f"ds_write_b128 {vr(self.VST)}, {src} offset:{1024*T}"
        if slot == 2: return f"ds_write_b128 {vr(self.VS0)}, {src} offset:{1024*T}"
        if T < 4: return f"ds_write_b128 {vr(self.VST)}, {src} offset:{SLOT + 1024*T + (4096 if slot == 3 else 0)}"
        return f"{'s_not_b64' if slot == 1 else 's_mov_b64'} exec, {sr(self.MP1,2)}\nds_write_b128 {vr(self.VST)}, {src} offset:{SLOT + 8192}\ns_mov_b64 exec, -1"

    def dwf(self, k, i):
        f = 5 * k + i
        return self.DWT[f >> 1] + 2 * (f & 1)

    def tail(self, SW):
        a, o = self.a, self.o
        mf, pos, start = [], {}, {}
        for t_, qb in ((14, 0), (14, 1), (15, 0), (15, 1), (14, 2), (15, 2), (14, 3), (15, 3)):
            start[t_, qb] = len(mf)
            for Tt in ([0, 1, 2, 3, 8, 4, 5, 6, 7] if qb & 1 else range(9)):
                o_ = ar(A_O + 36 * qb + 4 * Tt, 4)
                pos[t_, qb, Tt] = len(mf)
                mf.append(f"v_mfma_f32_16x16x32_bf16 {o_}, {vr((V_V if t_ == 14 else self.V15)+4*Tt,4)}, {vr(self.P(t_ & 1,qb),4)}, {o_}")
        lst = []
        for qb in range(4):
            for j in range(8):
                lst.append(("e", qb, j))
                if j & 1: lst.append(("c", qb, j // 2))
        lst += [("a", qb, j) for qb in range(4) for j in range(8)]
        items = self.e_items(1, lst, lambda qb, j: 0 if j < 4 else 1, lambda qb: start[15, qb] - 2)
        for it in items[48:]: it["lo"] = o.get("alo", 26)
        v15 = [dict(t=x, c=4, need=pos[15, 0, i // 2], hi=pos[15, 0, i // 2] - o.get("vlead", 7), lo=0 if i < 16 else 2) for i, x in enumerate(self.v_reads(3, self.V15))]
        wr = []
        nown = o.get("nown", 4)
        self.own = [(2, T_) for T_ in range(nown, 9)] + [(3, T_) for T_ in (0, 1, 2, 3, 8)]
        g = o.get("w0", 23)
        for k, (sl, Tt) in enumerate([(0, T_) for T_ in range(9)] + [(1, T_) for T_ in (0, 1, 2, 3, 8)] + [(2, T_) for T_ in range(nown)]):
            g = max(pos[15, sl, Tt] + 5, g)
            wr.append(dict(t=self.stage(sl, Tt), c=o.get("wc", 20), lo=int(g), hi=int(g)) if g < 72 else dict(t=self.stage(sl, Tt), c=4, lo=999))
            g += o.get("wsp", 2.7)
        n0 = len(items) + len(v15)
        wo = []
        for i, x in enumerate(self.w_reads(self.WO, SLOT)):
            r0 = self.WO[i // 5][i % 5][1]
            wo.append(dict(t=("@VM\n" if i == 0 else "") + x, c=4, dep=sorted({n0 + r0 // 4, n0 + (r0 + 3) // 4 if (r0 + 3) // 4 < 9 else n0 + 8}), lo=o.get("wo0", 40) + 3 * i, hi=o.get("wo0", 40) + 3 * i + 2))
        cl = self.conv_loads()
        dl = [f"buffer_load_dwordx4 {vr(self.DWT[r],4)}, {vr(self.VDW)}, {sr(S_WS,4)}, 0 offen offset:{256*r}" for r in range(7)]
        dl.append(f"buffer_load_dwordx2 {vr(self.DWT[7],2)}, {vr(self.VDW)}, {sr(S_WS,4)}, 0 offen offset:{256*7}")
        fr = {96: 9, 100: 18, 104: 45, 112: 27, 116: 36}
        vm = [(x, 0) for x in cl] + [(x, fr.get(self.DWT[r], 0)) for r, x in enumerate(dl)]
        used = {w["lo"] for w in wr}
        vi, g = [], o.get("m0", 24)
        for x, lo in vm:
            g = max(g, lo)
            while int(g) in used: g += 1
            vi.append(dict(t=x, c=8, lo=int(g), hi=int(g)) if g < 72 else dict(t=x, c=8, lo=999))
            g += o.get("msp", 2.2)
        left = self.pack(mf, items + v15 + wr + wo + vi)
        self.done_a = {(qb, j) for qb in range(4) for j in range(8) if self.etext(1, ("a", qb, j)) not in left}
        left = [x for x in left if not x.startswith("v_add_f32")]
        print("tail overflow", self.over, "left", len(left), "adds done", len(self.done_a))
        self.left = left

    def epilogue(self, SW):
        a, o = self.a, self.o
        T = S_T
        p = lambda r: vr(r, 2)
        NB, PT, MK, VO, units, MP1 = self.NB, self.PT, self.MK, self.VO, self.units, self.MP1
        U, GM, G0, GP = self.U, self.GM, self.G0, self.GP
        X2O = self.X2O
        R1, R2, R3 = 230, 231, 249
        LA, LS, M = 10, 226, 48

        def weave(main, fill, per):
            fill = list(fill)
            for x in main:
                a(x)
                for _ in range(per):
                    if fill: a(fill.pop(0))
            return fill
        for x in self.left:
            if not x.startswith("buffer"): a(x)
        lv = [x for x in self.left if x.startswith("buffer")]
        lv += [f"buffer_load_dwordx4 {vr(self.XRS[j],4)}, {vr(VO+j)}, {sr(S_X,4)}, {sr(self.E_COL)} offen" for j in range(2)]
        lv.append(f"buffer_load_dwordx2 {vr(self.XRS[2],2)}, {vr(self.VO8)}, {sr(S_X,4)}, 0 offen offset:256")
        S1 = lambda qb, j: self.S(1, qb, j)
        rounds = [[] for _ in range(6)]
        for qb in range(4):
            rem = [j for j in range(8) if (qb, j) not in self.done_a]
            prs = [j for j in rem if j % 2 == 0 and j + 1 in rem]
            sing = [j for j in rem if (j & ~1) not in prs]
            r_ = 0
            while len(prs) > 1:
                for x, y in zip(prs[0::2], prs[1::2]): rounds[r_].append(f"v_pk_add_f32 {p(S1(qb,x))}, {p(S1(qb,x))}, {p(S1(qb,y))}")
                prs = prs[0::2]; r_ += 1
            for k_, j in enumerate(sing + ([prs[0], prs[0] + 1] if prs else [])): rounds[min(5, max(r_, 2) + k_)].append(f"v_add_f32 {vr(V_L+qb)}, {vr(V_L+qb)}, {vr(S1(qb,j))}")
        for r_ in rounds:
            for x in r_: a(x)
        a(f"v_add_u32 {vr(R1)}, {sr(self.RS1)}, {vr(V_DMA)}\nv_add_u32 {vr(R2)}, {sr(self.RS2)}, {vr(V_DMA)}")
        self.treduce(V_L)
        a(f"ds_write_b32 {vr(self.VLW)}, {vr(V_L)}")
        acc = lambda slot: [f"v_accvgpr_read_b32 {vr(M+i)}, {ar(A_O+36*slot+16+i)}" for i in range(20)]
        a(f"""v_add_u32 {vr(R3)}, {sr(self.RS3)}, {vr(V_DMA)}
        v_add_u32 {vr(LA+1)}, {self.L_L}, {vr(V_DMA)}
        v_and_b32 {vr(LS+1)}, 0xf0, {vr(V_DMA)}
        s_lshl_b32 {sr(T)}, {sr(NB)}, 8
        s_add_u32 {sr(T+8)}, {sr(T)}, {self.L_L}
        v_add_u32 {vr(LS)}, {sr(T+8)}, {vr(LS+1)}""")
        for x in lv: a(x)
        a(f"""s_xor_b32 {sr(T)}, s2, 1
        s_mul_i32 {sr(T)}, {sr(T)}, {IB}
        s_mul_i32 {sr(T+9)}, {sr(NB)}, 5120
        s_add_u32 {sr(T+9)}, {sr(T+9)}, {WS_IB}
        s_add_u32 {sr(T)}, {sr(T)}, {sr(T+9)}
        s_lshl_b32 {sr(T+10)}, {sr(PT)}, 11
        {"" if o.get("oib", 0) else f"s_add_u32 {sr(T+1)}, {sr(T+10)}, {sr(T)}"}
        s_add_u32 {sr(T)}, {sr(T)}, 4096
        s_cmp_eq_u32 {sr(PT)}, 0
        s_cselect_b32 {sr(T)}, 0x40000000, {sr(T)}
        s_mov_b32 {sr(T+2)}, {f32(2.0**100)}
        s_mul_i32 {sr(T+12)}, s2, {IB}
        s_add_u32 {sr(T+12)}, {sr(T+12)}, {sr(T+9)}
        {"" if o.get("oib", 0) else f"s_add_u32 {sr(T+13)}, {sr(T+12)}, {sr(T+10)}"}
        s_waitcnt lgkmcnt(0)
        s_barrier""")
        self.stamp("B1")

        def rd(X, offs):
            L = [[f"ds_read_b128 {vr(X[k][i],4)}, {vr((R1, R2, R3)[k])} offset:{offs[k] + 1024*i}" for i in range(4)] for k in range(3)]
            L8 = [f"ds_read_b128 {vr(X[k][4],4)}, {vr((R1, R2, R3)[k])} offset:8192" for k in range(3)]
            return L, L8

        def adds(X, k, rng):
            return [f"v_pk_add_f32 {p(M+4*i+2*h)}, {p(M+4*i+2*h)}, {p(X[k][i]+2*h)}" for i in rng for h in range(2)]
        X = [[128, 132, 136, 140, 144], [148, 152, 156, 160, 68], [72, 76, 200, 204, 108]]
        PK = 128
        sfl = o.get("sfl", "")
        oib = o.get("oib", 0)
        SI = S_OUT if oib else S_WS
        L, L8 = rd(X, (0, 4096, 0))
        a(f"ds_read_b128 {vr(LA,4)}, {vr(LA+1)}\nds_read_b128 {vr(LS,4)}, {vr(LS)}")
        rest = weave(L[0] + L[1] + L[2], acc(1), 2)
        assert not rest
        a(f"s_mov_b64 exec, {sr(MP1,2)}")
        for x in L8: a(x)
        a(f"""s_mov_b64 exec, -1
        s_waitcnt lgkmcnt(11)
        v_add_f32 {vr(LA)}, {vr(LA)}, {vr(LA+1)}
        v_add_f32 {vr(LA+2)}, {vr(LA+2)}, {vr(LA+3)}
        v_add_f32 {vr(LS)}, {vr(LS)}, {vr(LS+1)}
        v_add_f32 {vr(LA)}, {vr(LA)}, {vr(LA+2)}
        v_add_f32 {vr(LS+2)}, {vr(LS+2)}, {vr(LS+3)}
        v_cmp_nge_f32 vcc, {sr(T+2)}, {vr(LA)}""")
        for x in adds(X, 0, range(4)): a(x)
        a(f"""s_cmp_lg_u64 vcc, 0
        s_cselect_b32 {sr(T+2)}, 1, 0
        s_andn2_b32 {sr(T+2)}, {sr(T+2)}, {sr(S_REDO)}
        s_cbranch_scc1 L_fallback
        v_add_f32 {vr(PK+10)}, {vr(LS)}, {vr(LS+2)}
        v_mov_b32 {vr(PK+11)}, {vr(MK+1)}
        s_waitcnt lgkmcnt(7)""")
        for x in adds(X, 1, range(4)): a(x)
        a("s_waitcnt lgkmcnt(3)")
        a3 = adds(X, 2, range(4))
        cv = [f"v_cvt_pk_bf16_f32 {vr(PK+i)}, {vr(M+2*i)}, {vr(M+2*i+1)}" for i in range(10)]
        for x in a3[:4] + a3[4:6] + cv[:4]: a(x)

        def send(fl):
            a(f"buffer_store_dwordx4 {vr(PK,4)}, {vr(V_DMA)}, {sr(SI,4)}, {sr(S_OS if oib else T+1)} offen {fl}")
            for x in a3[6:] + cv[4:8]: a(x)
            a(f"buffer_store_dwordx4 {vr(PK+4,4)}, {vr(V_DMA)}, {sr(SI,4)}, {sr(S_OS if oib else T+1)} offen offset:1024 {fl}")
            a("s_waitcnt lgkmcnt(0)")
            for kk in range(3):
                for x in adds(XS, kk, [4]): a(x)
            for x in cv[8:]: a(x)
            a(f"buffer_store_dwordx4 {vr(PK+8,4)}, {vr(V_DMA)}, {sr(S_WS,4)}, {sr(T)} offen {fl}")
        XS = X
        self.send = send
        if o.get("xm", 0) and o.get("l2s", 1):
            a(f"s_cmp_eq_u32 {sr(S_SX)}, {sr(S_XC)}\ns_cbranch_scc0 L_far")
            send(sfl)
            a.label("L_sent")
        else: send("sc1")
        self.stamp("sent")
        a(f"s_cmp_eq_u32 {sr(S_VAL)}, 0\ns_cbranch_scc1 L_fin")
        C, UP = 140, 68
        IN = [(200, 204, 226), (164, 168, 252), (192, 196, 172)]
        VXW, VXR, VF, LO = 78, 79, 10, 36
        wr = [self.stage(*e) for e in self.own]

        def inbox(k):
            return [f"buffer_load_dwordx4 {vr(IN[k][0],4)}, {vr(V_DMA)}, {sr(SI,4)}, {sr(S_OR if oib else T+13)} offen sc1",
                    f"buffer_load_dwordx4 {vr(IN[k][1],4)}, {vr(V_DMA)}, {sr(SI,4)}, {sr(S_OR if oib else T+13)} offen offset:1024 sc1",
                    f"buffer_load_dwordx4 {vr(IN[k][2],4)}, {vr(V_DMA+1)}, {sr(S_WS,4)}, {sr(T+12)} offen sc1"]
        for x in inbox(0): a(x)
        n0 = len(a.lines)
        a(f"""s_lshl_b32 {sr(T)}, {sr(NB)}, 12
        s_add_u32 {sr(T)}, {sr(T)}, {sr(T+10)}
        s_add_u32 {sr(T)}, {sr(T)}, {self.X1B}
        v_add_u32 {vr(VXW)}, {sr(T)}, {vr(V_DMA)}
        s_lshl_b32 {sr(T)}, {sr(NB)}, 9
        s_add_u32 {sr(T)}, {sr(T)}, {self.X1B + 4096}
        v_add_u32 {vr(VXR)}, {sr(T)}, {vr(self.VL8)}
        s_lshl_b32 {sr(T)}, {sr(PT)}, 12
        s_add_u32 {sr(T)}, {sr(T)}, {self.X1B}
        v_add_u32 {vr(VF)}, {sr(T)}, {vr(V_DMA)}
        v_xor_b32 {vr(VF+1)}, 4096, {vr(VF)}
        s_lshl_b32 {sr(T)}, {sr(PT)}, 9
        s_add_u32 {sr(T)}, {sr(T)}, {self.X1B + 4096}
        v_add_u32 {vr(VF+2)}, {sr(T)}, {vr(self.VL8)}
        v_xor_b32 {vr(VF+3)}, 512, {vr(VF+2)}
        v_subrev_u32 {vr(R2)}, {2*SLOT}, {vr(R2)}
        v_subrev_u32 {vr(R3)}, {2*SLOT}, {vr(R3)}
        s_waitcnt vmcnt(9)""")
        self.stamp("cv0")
        un = [f"v_lshlrev_b32 {vr(M+2*i)}, 16, {vr(U+i)}\nv_and_b32 {vr(M+1+2*i)}, 0xffff0000, {vr(U+i)}" for i in range(10)]
        w8 = self.w8_loads(self.WO[2], SW + 1)
        for k, src in enumerate((GM, G0, GP)):
            for i in range(5):
                d = vr(C + 4 * i, 4)
                a(f"v_mfma_f32_16x16x16_bf16 {d}, {vr(self.dwf(k, i),2)}, {vr(src+2*i,2)}, {'0' if k == 0 else d}")
                a(w8.pop(0) if i in (0, 3) and w8 else un.pop(0))
        self.stamp("cv1")
        a(f"v_and_b32 {vr(LO+1)}, 0xf0, {vr(V_DMA)}\nv_add_u32 {vr(LO)}, {sr(T+8)}, {vr(LO+1)}\ns_nop 1")
        for i in range(10): a(f"v_pk_mul_f32 {p(C+2*i)}, {p(C+2*i)}, {p(M+2*i)}")
        for i in range(10):
            a(f"v_cvt_pk_bf16_f32 {vr(UP+i)}, {vr(C+2*i)}, {vr(C+2*i+1)}")
        body = a.lines[n0:]; del a.lines[n0:]
        step = max(1, len(body) // len(wr))
        for i, l in enumerate(body):
            if i % o.get("wstep", step) == 0 and wr: a(wr.pop(0))
            a.lines.append(l)
        for x in wr: a(x)
        ac = acc(3)
        a(f"ds_write_b128 {vr(VXW)}, {vr(UP,4)} offset:{X2O}")
        for x in ac[:6]: a(x)
        a(f"ds_write_b128 {vr(VXW)}, {vr(UP+4,4)} offset:{X2O + 1024}")
        for x in ac[6:12]: a(x)
        a(f"""s_mov_b64 exec, {sr(MP1,2)}
        ds_write_b64 {vr(VXR)}, {vr(UP+8,2)} offset:{X2O}
        s_mov_b64 exec, -1""")
        self.stamp("x2")
        for x in inbox(1): a(x)
        for x in ac[12:]: a(x)
        a("s_waitcnt lgkmcnt(0)\ns_barrier")
        self.stamp("B2")
        X = [[128, 132, 136, 140, 144], [148, 152, 156, 160, 188], [16, 20, 24, 28, 32]]
        L, L8 = rd(X, (4096, 4096, 0))
        BU = [[("v", r) for r in (100, 104, 108, 112, 116)], [("v", r) for r in (118, 122, 180, 184, 126)]]
        BO = [self.frag("v", 128), self.frag("v", 146)]
        AB = 80

        def bfrags(dst, off):
            out = []
            for s in range(5):
                for j in range(2):
                    out.append(f"ds_read_b128 {self.rg(dst[j][s],4)}, {vr(VF+j)} offset:{off + 1024*s}" if s < 4 else f"ds_read_b64 {self.rg(dst[j][4],2)}, {vr(VF+2+j)} offset:{off}")
            return out

        def fg(W, Bf):
            out = []
            for s in range(5):
                for u, (tt, j) in enumerate(units):
                    d = vr(AB + 4 * u, 4)
                    if s < 4: out.append(f"v_mfma_f32_16x16x32_bf16 {d}, {self.rg(W[tt][s],4)}, {self.rg(Bf[j][s],4)}, {d}")
                    else: out.append(f"v_mfma_f32_16x16x16_bf16 {d}, {self.rg(W[tt][4],2)}, {self.rg(Bf[j][4],2)}, {d}")
            return out
        xu = []
        for u, (tt, j) in enumerate(units):
            for h in range(2):
                x = self.XRS[j] + 2 * tt + h if tt < 2 else self.XRS[2] + h
                xu += [f"v_lshlrev_b32 {vr(AB+4*u+2*h)}, 16, {vr(x)}", f"v_and_b32 {vr(AB+1+4*u+2*h)}, 0xffff0000, {vr(x)}"]
        a("s_waitcnt vmcnt(14)")
        weave(bfrags(BU, X2O), xu, 2)
        pl = lambda k, i, e: f"v_add_f32 {vr(M+4*i+e)}, {vr(M+4*i+e)}, {vr(X[k][i]+e)}"
        ds = L[0] + L[1] + L[2] + [f"s_not_b64 exec, {sr(MP1,2)}\n" + "\n".join(L8) + "\ns_mov_b64 exec, -1", f"ds_read_b128 {vr(LO,4)}, {vr(LO)} offset:512"]
        nis = [1] * 12 + [3, 1]
        gap = [[] for _ in range(25)]
        tot = [10]
        for g in range(25): tot.append(tot[-1] + (nis[g] if g < 14 else 0))
        A0 = [pl(0, i, e) for i in range(4) for e in range(4)]
        A1 = [pl(1, i, e) for i in range(4) for e in range(4)]
        ib = inbox(2)
        for g, m in enumerate(fg(self.WD, BU)):
            if g % 5 == 0: a(f"s_waitcnt lgkmcnt({min(15, tot[g] - 2 * (g // 5 + 1))})")
            a(m)
            if g == 8: a(f"s_waitcnt lgkmcnt({tot[g] - 14})")
            if g == 16: a(f"s_waitcnt lgkmcnt({tot[g] - 18})")
            if g < 14: a(ds[g])
            if 8 <= g < 14: a(A0.pop(0))
            elif g in (14, 18, 22): a(ib.pop(0))
            elif g >= 14:
                for _ in range(2): a(A0.pop(0) if A0 else A1.pop(0))
        assert not A0 and len(A1) % 2 == 0
        n1 = 16 - len(A1)
        for e in range(n1, 16, 2): a(f"v_pk_add_f32 {p(M+e)}, {p(M+e)}, {p(X[1][e//4]+e%4)}")
        a("s_waitcnt lgkmcnt(0)")
        for x in adds(X, 2, range(4)): a(x)
        a(f"v_add_f32 {vr(LO)}, {vr(LO)}, {vr(LO+1)}\nv_add_f32 {vr(LO+2)}, {vr(LO+2)}, {vr(LO+3)}")
        for kk in range(3):
            for x in adds(X, kk, [4]): a(x)
        a(f"s_mov_b32 {sr(T+2)}, 0\nv_add_f32 {vr(LO)}, {vr(LO)}, {vr(LO+2)}")
        self.stamp("own")
        w, PU = 40, 128
        mo = MK + 3

        def chk(k):
            r = [IN[k][q] + i for q in range(3) for i in range(4)]
            c = [f"v_max3_u32 v46, {vr(r[0])}, {vr(r[1])}, {vr(r[2])}", f"v_max3_u32 v47, {vr(r[3])}, {vr(r[4])}, {vr(r[5])}"]
            for q in range(3): c.append(f"v_max3_u32 v{46+(q&1)}, v{46+(q&1)}, {vr(r[6+2*q])}, {vr(r[7+2*q])}")
            return c + ["v_max_u32 v46, v46, v47", "v_cmp_eq_u32 vcc, -1, v46"]

        def take(k, with_chk):
            r = [IN[k][q] + i for q in range(3) for i in range(4)]
            lp_, mp = r[10], r[11]
            wt = [f"v_min_f32 {vr(w)}, {vr(mo)}, {vr(mp)}", f"v_sub_f32 {vr(w+2)}, {vr(w)}, {vr(mp)}", f"v_sub_f32 {vr(w)}, {vr(w)}, {vr(mo)}",
                  f"v_exp_f32 {vr(w+2)}, {vr(w+2)}", f"v_exp_f32 {vr(w)}, {vr(w)}", f"v_mul_f32 {vr(w+4)}, {vr(w+2)}, {vr(lp_)}",
                  f"v_fmac_f32 {vr(w+4)}, {vr(w)}, {vr(LO)}", f"v_rcp_f32 {vr(w+4)}, {vr(w+4)}", f"v_mul_f32 {vr(w)}, {vr(w)}, {vr(w+4)}",
                  f"v_mul_f32 {vr(w+2)}, {vr(w+2)}, {vr(w+4)}"]
            un = []
            for i in range(10): un += [f"v_lshlrev_b32 {vr(PU+2*i)}, 16, {vr(r[i])}", f"v_and_b32 {vr(PU+1+2*i)}, 0xffff0000, {vr(r[i])}"]
            c = chk(k) if with_chk else []
            for i in range(10):
                a(wt[i])
                if c: a(c.pop(0))
                a(un.pop(0)); a(un.pop(0))
        a("s_waitcnt vmcnt(6)")
        take(0, True)
        a("s_cmp_eq_u64 vcc, 0\ns_cbranch_scc0 L_poll2")
        a.label("L_got")
        self.stamp("got")
        for i in range(10): a(f"v_pk_mul_f32 {p(M+2*i)}, {p(M+2*i)}, {p(w)} op_sel_hi:[1,0]")
        for i in range(10): a(f"v_pk_fma_f32 {p(M+2*i)}, {p(PU+2*i)}, {p(w+2)}, {p(M+2*i)} op_sel_hi:[1,0,1]")
        for i in range(10):
            a(f"v_cvt_pk_bf16_f32 {vr(UP+i)}, {vr(M+2*i)}, {vr(M+2*i+1)}")
            if i == 3: a(f"ds_write_b128 {vr(VXW)}, {vr(UP,4)}")
            if i == 7: a(f"ds_write_b128 {vr(VXW)}, {vr(UP+4,4)} offset:1024")
        a(f"""s_not_b64 exec, {sr(MP1,2)}
        ds_write_b64 {vr(VXR)}, {vr(UP+8,2)}
        s_mov_b64 exec, -1
        s_waitcnt lgkmcnt(0)
        s_barrier""")
        self.stamp("B3")
        for x in bfrags(BO, 0): a(x)
        for g, m in enumerate(fg(self.WO, BO)):
            if g % 5 == 0: a(f"s_waitcnt lgkmcnt({8 - 2 * (g // 5)})" + ("\ns_nop 0" if g == 20 else ""))
            a(m)
        self.stamp("gem")
        a("s_nop 3")
        for j in range(2):
            for tt in range(2):
                u = 2 * tt + j
                for h in range(2): a(f"v_cvt_pk_bf16_f32 {vr(16+4*j+2*tt+h)}, {vr(AB+4*u+2*h)}, {vr(AB+4*u+2*h+1)}")
            a(f"buffer_store_dwordx4 {vr(16+4*j,4)}, {vr(VO+j)}, {sr(S_OUT,4)}, {sr(self.E_COL)} offen {o.get('ofl', '')}")
        a(f"s_cmp_ge_u32 {sr(S_W)}, 2\ns_cbranch_scc1 L_fin")
        for h in range(2): a(f"v_cvt_pk_bf16_f32 {vr(24+h)}, {vr(AB+16+2*h)}, {vr(AB+16+2*h+1)}")
        a(f"buffer_store_dwordx2 v[24:25], {vr(self.VO8)}, {sr(S_OUT,4)}, 0 offen offset:256 {o.get('ofl', '')}")
        self.stamp("fin")

        def poll2():
            a.label("L_poll2")
            for k in (1, 2, 0):
                for x in inbox((k + 2) % 3): a(x)
                a("s_waitcnt vmcnt(6)")
                for x in chk(k): a(x)
                a(f"s_add_u32 {sr(T+2)}, {sr(T+2)}, 1\ns_cmp_eq_u64 vcc, 0\ns_cbranch_scc1 L_take{k}")
            a(f"s_cmp_lt_u32 {sr(T+2)}, 0x10000\ns_cbranch_scc1 L_poll2")
            for k in (0, 1, 2):
                a.label(f"L_take{k}")
                take(k, False)
                a("s_branch L_got")
            if o.get("xm", 0) and o.get("l2s", 1):
                a.label("L_far")
                send("sc1")
                a("s_branch L_sent")
        self.poll2 = poll2

    def fallback(self):
        a = self.a
        T = S_T
        MXR = 208
        a.label("L_fallback")
        a(f"""s_waitcnt vmcnt(0) lgkmcnt(0)
        s_barrier
        s_mov_b32 {sr(S_REDO)}, 1
        s_mov_b32 {sr(S_UG)}, 0x40000000
        {self.xa_srd()}
        s_mov_b32 {sr(S_TOFF)}, {sr(S_LB)}
        s_cmp_eq_u32 {sr(S_DUM)}, 4
        s_cselect_b32 {sr(S_CNT)}, 15, 16""")
        for i in range(4): a(f"v_mov_b32 {vr(MXR+i)}, 0xff800000")
        a.label("L_fb1")
        for g in self.tile_groups(0): a(g)
        a("s_waitcnt vmcnt(0)")
        for x in self.k_reads(0): a(x)
        a("s_waitcnt lgkmcnt(0)")
        for m in self.qk_mfmas(0, czero=True): a(m)
        a("s_nop 7")
        for qb in range(4):
            for i in range(0, 8, 2): a(f"v_max3_f32 {vr(MXR+qb)}, {vr(MXR+qb)}, {vr(self.S(0,qb,i))}, {vr(self.S(0,qb,i+1))}")
        a(f"s_sub_u32 {sr(S_CNT)}, {sr(S_CNT)}, 1\ns_cmp_lg_u32 {sr(S_CNT)}, 0\ns_cbranch_scc1 L_fb1")
        self.greduce([MXR + i for i in range(4)], MXR + 4, "v_max_f32")
        a(f"""v_and_b32 {vr(MXR+4)}, 15, v0
        v_lshlrev_b32 {vr(MXR+4)}, 4, {vr(MXR+4)}
        v_add_u32 {vr(MXR+4)}, {L_SP}, {vr(MXR+4)}
        s_lshl_b32 {sr(T)}, {sr(S_W)}, 2
        s_xor_b32 {sr(T+1)}, {sr(self.NB)}, 1
        v_lshl_add_u32 {vr(MXR+5)}, {sr(self.NB)}, 8, {vr(MXR+4)}
        v_lshl_add_u32 {vr(MXR+4)}, {sr(T+1)}, 8, {vr(MXR+4)}
        v_add_u32 {vr(MXR+6)}, {sr(T)}, {vr(MXR+4)}
        v_add_u32 {vr(MXR+7)}, {sr(T)}, {vr(MXR+5)}""")
        for qb in range(4): a(f"ds_write_b32 {vr(MXR+6+(qb&1))}, {vr(MXR+qb)} offset:{512*(qb>>1)}")
        a("s_waitcnt lgkmcnt(0)\ns_barrier")
        for qb in range(4): a(f"ds_read_b128 {vr(16+4*qb,4)}, {vr(MXR+4+(qb&1))} offset:{512*(qb>>1)}")
        a(f"s_mov_b32 {sr(S_TOFF)}, {sr(S_LB)}")
        for g in self.tile_groups(0) + self.tile_groups(1) + ([] if self.o.get("gs", 0) else self.tile_groups(2)[:8]): a(g)
        a("s_waitcnt lgkmcnt(0)")
        for qb in range(4):
            r = 16 + 4 * qb
            a(f"v_max_f32 {vr(r)}, {vr(r)}, {vr(r+1)}\nv_max3_f32 {vr(r)}, {vr(r)}, {vr(r+2)}, {vr(r+3)}")
            a(f"v_sub_f32 {vr(self.MK+qb)}, 0, {vr(r)}")
        a("s_waitcnt vmcnt(0)")
        for x in self.k_reads(0, V_V): a(x)
        self.loop_init(False)
        if self.o.get("gs", 0): self.loop_init(True)
        a("s_branch L_go")


if __name__ == "__main__":
    opt = json.loads(sys.argv[2]) if len(sys.argv) > 2 else {}
    g = G(opt)
    txt = g.build()
    if opt.get("align", 1):
        from align import align
        for n2 in (1, 2):
            try:
                txt, st = align(txt, chains=[(1, "L_tr")] * 3 + [(1, "L_tr2"), (n2, "L_tr2")] if opt.get("touch", 1) else None)
                break
            except AssertionError as e:
                if n2 == 2: raise
        print("align: promoted %d, padded %d, left %d" % st)
    txt = txt.replace("\n", "\n; stamps " + json.dumps(g.stnames) + "\n; map %d\n" % g.mp, 1)
    open(sys.argv[1], "w").write(txt)
```

```python
import sys, json, math
from common import Asm, vr, ar, sr, kernel_header, kernel_desc
from lay import *

NAME = "standalone__conformer_family_branchformer__speech_kernel"
NH = 2
NWG = 252 + NH
CHAINS = (3, 3)
RING = 4
LDS_RING = RING * TILE
LDS_TOTAL = 163840
SLOT = 4 * TILE
L_WU, L_WQ, L_WK = 0, 41472, 82944
L_XX, L_XR = 126976, 143360
L_QD = 18432
L_XS = L_XX + L_QD
L_MX = 81920
L_PC = LDS_TOTAL - 256
L_DUMP = 123904
L_SP = 147456

S_X, S_WS, S_XA, S_DB, S_W1, S_W2, S_OUT, S_DW = 8, 12, 16, 20, 24, 28, 32, 36
S_W, S_B, S_H, S_QB, S_TOFF, S_CNT, S_DUM, S_LB, S_TOWN, S_TSND, S_VAL, S_REDO = range(40, 52)
S_UG, S_CL = 25, 26
S_PH, S_XC, S_SX = 6, 74, 75
S_OS, S_OR = 28, 29
S_N, S_FB = 98, 99
S_INC = 24
S_T = 52
S_ST = 76

V_KA, V_VA, V_VR, V_DMA, V_L, V_VB = 1, 3, 5, 6, 10, 14
V_S, V_CI, V_P, V_K, V_V = 16, 80, 96, 128, 164
V_HI = 200
V_X = 208
A_O, A_Q, A_F = 0, 144, 216

LOG2E = 1.4426950408889634
import struct
def f32(x): return "0x%08x" % struct.unpack("<I", struct.pack("<f", x))[0]


class BAsm(Asm):
    def __init__(self):
        super().__init__()
        self.bg, self.every, self.cnt, self.skip = [], 0, 0, 0

    def __call__(self, s):
        for l in s.split("\n"):
            l = l.strip()
            if not l: continue
            self.lines.append("    " + l)
            if self.bg and self.every and not l.startswith(("s_nop", "v_mov_b32", "v_exp", "v_rcp", "v_rsq", "v_sqrt", "s_add_u32 m0")):
                self.cnt += 1
                if self.cnt >= self.every:
                    self.cnt = 0
                    self.pop()

    def pop(self):
        for x in self.bg.pop(0).split("\n"): self.lines.append("    " + x)

    def flush(self):
        while self.bg: self.pop()
        self.every = 0


class G:
    def __init__(self, opt):
        self.o = opt
        self.a = BAsm()
        self.nst = 0
        self.fill = []

    def stamp(self, name):
        if self.o.get("stamps"):
            if name in self.o.get("skipst", []): return
            if "only" in self.o and name not in self.o["only"]: return
            if self.nst >= 11: return
            self.a(f"{'s_memtime' if self.o.get('cyc') else 's_memrealtime'} {sr(S_ST + 2*self.nst, 2)}")
            self.stnames.append(name)
            self.nst += 1

    def srd(self, dst, lo, hi, n):
        if dst == S_WS and self.o.get("wsoff"):
            self.a(f"s_add_u32 {sr(dst)}, {sr(lo)}, {self.o['wsoff']}\ns_addc_u32 {sr(dst+1)}, {sr(hi)}, 0\ns_mov_b32 {sr(dst+2)}, {n}\ns_mov_b32 {sr(dst+3)}, 0x20000")
            return
        self.a(f"s_mov_b32 {sr(dst)}, {sr(lo)}\ns_mov_b32 {sr(dst+1)}, {sr(hi)}\ns_mov_b32 {sr(dst+2)}, {n}\ns_mov_b32 {sr(dst+3)}, 0x20000")

    def greduce(self, regs, tmp, op="v_add_f32"):
        a = self.a
        for sw in ("32", "16"):
            for i, r in enumerate(regs): a(f"v_mov_b32 {vr(tmp+i)}, {vr(r)}")
            if len(regs) < 3: a("s_nop 1" if len(regs) == 1 else "s_nop 0")
            for i, r in enumerate(regs): a(f"v_permlane{sw}_swap_b32 {vr(r)}, {vr(tmp+i)}")
            for i, r in enumerate(regs): a(f"{op} {vr(r)}, {vr(r)}, {vr(tmp+i)}")

    def treduce(self, r, op="v_add_f32"):
        a = self.a
        a(f"v_permlane32_swap_b32 {vr(r)}, {vr(r+2)}\nv_permlane32_swap_b32 {vr(r+1)}, {vr(r+3)}")
        a(f"{op} {vr(r)}, {vr(r)}, {vr(r+2)}\n{op} {vr(r+1)}, {vr(r+1)}, {vr(r+3)}\ns_nop 1")
        a(f"v_permlane16_swap_b32 {vr(r)}, {vr(r+1)}\n{op} {vr(r)}, {vr(r)}, {vr(r+1)}")

    def rbf(self, r):
        self.a(f"v_cvt_pk_bf16_f32 {vr(r)}, {vr(r)}, {vr(r)}\nv_lshlrev_b32 {vr(r)}, 16, {vr(r)}")

    def ln_tail(self, F, out, t, mimic):
        a = self.a
        p = lambda r: vr(r, 2)
        self.greduce([t, t + 1], t + 2)
        a(f"v_mul_f32 {vr(t+2)}, {f32(1.0/144)}, {vr(t)}")
        a(f"v_mul_f32 {vr(t+3)}, {vr(t+2)}, {vr(t+2)}")
        a(f"v_mov_b32 {vr(t+4)}, {f32(1.0/144)}")
        a(f"v_fma_f32 {vr(t)}, {vr(t+1)}, {vr(t+4)}, -{vr(t+3)}")
        a(f"v_max_f32 {vr(t)}, 0, {vr(t)}")
        if mimic:
            self.rbf(t)
            self.rbf(t + 2)
            a(f"v_add_f32 {vr(t)}, {f32(1e-5)}, {vr(t)}")
            self.rbf(t)
            a(f"v_sqrt_f32 {vr(t)}, {vr(t)}\ns_nop 0")
            self.rbf(t)
            a(f"v_rcp_f32 {vr(t)}, {vr(t)}\ns_nop 0")
        else:
            a(f"v_add_f32 {vr(t)}, {f32(1e-5)}, {vr(t)}")
            a(f"v_rsq_f32 {vr(t)}, {vr(t)}\ns_nop 0")
        a(f"v_mul_f32 {vr(t+2)}, -{vr(t+2)}, {vr(t)}")
        for i in range(18):
            a(f"v_pk_fma_f32 {p(F+2*i)}, {p(F+2*i)}, {p(t)}, {p(t+2)} op_sel_hi:[1,0,0]")
        for i in range(18):
            a(f"v_cvt_pk_bf16_f32 {vr(out+i)}, {vr(F+2*i)}, {vr(F+2*i+1)}")

    def ln_packed(self, X, F, out, t):
        a = self.a
        a(f"v_mov_b32 {vr(t+6)}, 0x3f803f80")
        for k in range(4): a(f"v_mov_b32 {vr(t+k)}, 0")
        for i in range(18):
            a(f"v_dot2_f32_bf16 {vr(t+2*(i&1))}, {vr(X+i)}, {vr(t+6)}, {vr(t+2*(i&1))}")
            a(f"v_dot2_f32_bf16 {vr(t+1+2*(i&1))}, {vr(X+i)}, {vr(X+i)}, {vr(t+1+2*(i&1))}")
        for i in range(2):
            a(f"v_lshlrev_b32 {vr(F+2*i)}, 16, {vr(X+i)}\nv_and_b32 {vr(F+2*i+1)}, 0xffff0000, {vr(X+i)}")
        a(f"v_pk_add_f32 {vr(t,2)}, {vr(t,2)}, {vr(t+2,2)}")
        un = []
        for i in range(2, 18):
            un.append(f"v_lshlrev_b32 {vr(F+2*i)}, 16, {vr(X+i)}\nv_and_b32 {vr(F+2*i+1)}, 0xffff0000, {vr(X+i)}")
        sv = (a.bg, a.every, a.cnt, a.skip)
        n0 = len(a.lines)
        a.bg, a.every = [], 0
        self.ln_tail(F, out, t, True)
        tail = a.lines[n0:]
        del a.lines[n0:]
        a.bg, a.every, a.cnt, a.skip = sv
        k = next(i for i, l in enumerate(tail) if "v_pk_fma" in l)
        for i, l in enumerate(tail[:k]):
            if "s_nop" in l and un: continue_nop = True
            a(l)
            if un and not l.strip().startswith("s_nop"): a(un.pop(0))
        while un: a(un.pop(0))
        for l in tail[k:]: a(l)

    def ln_f32(self, F, out, t):
        a = self.a
        p = lambda r: vr(r, 2)
        a(f"v_pk_add_f32 {p(t)}, {p(F)}, {p(F+2)}\nv_pk_add_f32 {p(t+2)}, {p(F+4)}, {p(F+6)}")
        a(f"v_pk_mul_f32 {p(t+4)}, {p(F)}, {p(F)}\nv_pk_mul_f32 {p(t+6)}, {p(F+2)}, {p(F+2)}")
        for i in range(2, 18):
            if i >= 4: a(f"v_pk_add_f32 {p(t+2*(i&1))}, {p(t+2*(i&1))}, {p(F+2*i)}")
            a(f"v_pk_fma_f32 {p(t+4+2*(i&1))}, {p(F+2*i)}, {p(F+2*i)}, {p(t+4+2*(i&1))}")
        a(f"v_pk_add_f32 {p(t)}, {p(t)}, {p(t+2)}\nv_pk_add_f32 {p(t+4)}, {p(t+4)}, {p(t+6)}")
        a(f"v_add_f32 {vr(t)}, {vr(t)}, {vr(t+1)}\nv_add_f32 {vr(t+1)}, {vr(t+4)}, {vr(t+5)}")
        self.ln_tail(F, out, t, False)

    def gemm_u(self, AF, rf, Bs, ACC, afr, bfr, post, vm_items=(), other=(), lead=7, vm0=0, vmsp=4, at={}, lastk=0):
        a = self.a
        units = [(0, j) for j in range(4)] + [(1, j) for j in range(4)] + [(2, 0)]
        seq, dl = [], {}
        bs = lambda j, o_, n: self.rg((Bs[j][0], Bs[j][1] + o_), n)
        rem = lambda u: (f"v_mfma_f32_16x16x16_bf16 {vr(ACC+4*u,4)}, {rf(AF+18*units[u][0]+16,2)}, {bs(units[u][1],16,2)}, {vr(ACC+4*u,4)}", u)
        A = [afr(t) for t in range(3)]
        Bf = [bfr(j) for j in range(4)]

        def use(t, j, s, k):
            for x in (A[t][2 * s:2 * s + 2] if s < 4 else A[t][8:]) + ([Bf[j][s]] if Bf[j] else []): dl.setdefault(x, k)
        for g in range(4):
            for s in range(4):
                for u in range(3 * g, 3 * g + 3) if g < 3 else []:
                    t, j = units[u]
                    d = vr(ACC + 4 * u, 4)
                    use(t, j, s, len(seq))
                    seq.append((f"v_mfma_f32_16x16x32_bf16 {d}, {rf(AF+18*t+4*s,4)}, {bs(j,4*s,4)}, {'0' if s == 0 else d}", None))
                if s == 0 and g > 0:
                    for u in range(3 * g - 3, 3 * g):
                        use(units[u][0], units[u][1], 4, len(seq)); seq.append(rem(u))
        last = seq[-3:]; seq = seq[:-3]
        ds = sorted(dl.items(), key=lambda e: e[1]) + [(x, 99) for x in other]
        vm_items = list(vm_items)
        lastvm = vm0 - vmsp
        order, ready, q, done = [], [], [], 0

        def issue():
            x, k_ = ds.pop(0); a(x); order.append(k_)

        def wait(k):
            nonlocal done
            idx = [i_ for i_, k_ in enumerate(order) if k_ <= k]
            if idx and max(idx) + 1 > done:
                a(f"s_waitcnt lgkmcnt({min(15, len(order) - 1 - max(idx))})"); done = max(idx) + 1
        while ds and ds[0][1] < 6: issue()
        for k, (m, fin) in enumerate(seq):
            assert not ds or ds[0][1] > k, (k, ds[0])
            wait(k)
            a(m)
            for u_, kk in list(ready):
                if k - kk >= 4: q += post(u_); ready.remove((u_, kk))
            if fin is not None: ready.append((fin, k))
            if k in at: at[k]()
            due = sum(1 for x, k_ in ds if k_ <= k + lead)
            if due == 0 and vm_items and k >= lastvm + vmsp and (len(vm_items) > 1 or k >= lastk):
                a(vm_items.pop(0)); lastvm = k; continue
            cap = 2
            for _ in range(min(due, 3)): issue(); cap -= 1
            if cap == 2:
                if q and q[0].startswith("ds_"): a(q.pop(0)); order.append(99); cap -= 1
                elif ds: issue(); cap -= 1
            while cap > 0 and q and not q[0].startswith("ds_"):
                a(q.pop(0)); cap -= 1
        assert not ready
        while ds: issue()
        wait(98)
        for x in vm_items: a(x)
        for x in q[:4]: a(x)
        a(f"s_nop {max(0, 4 - len(q[:4]))}")
        for m, _ in last: a(m)
        for x in q[4:]: a(x)
        a(f"s_nop {max(0, 6 - len(q[4:]))}")
        for u in range(6, 9):
            for x in post(u): a(x)

    def gemm(self, reads, B, ACC, AF, late=(), at={}, per=2):
        a = self.a
        buf = lambda T: 18 * (T % 6)
        ng = 3 * (4 * per + 1)

        def grp(g):
            r = [reads(T, buf(T)) for T in range(3 * g, 3 * g + 3)]
            return [r[t][per * s + u] for s in range(4) for t in range(3) for u in range(per)] + [r[t][4 * per] for t in range(3)]
        rem = lambda T: f"v_mfma_f32_16x16x16_bf16 {vr(ACC+4*T,4)}, {ar(buf(T)+16,2)}, {vr(B+16,2)}, {vr(ACC+4*T,4)}"
        pend = grp(0) + grp(1) + grp(2) + list(late)
        issued = k = 0

        def issue(n):
            nonlocal issued
            for _ in range(n):
                if issued < len(pend): a(pend[issued]); issued += 1

        def mf(x):
            nonlocal k
            a(x); issue(per if per == 2 else (2 if k % 4 == 0 else 1))
            if k in at: a(at[k])
            k += 1
        issue(self.o.get('look', 12) if per == 2 else self.o.get('look1', 8))
        for g in range(3):
            for s in range(4):
                need = ng * g + 3 * per * (s + 1)
                a(f"s_waitcnt lgkmcnt({min(15, issued - need)})")
                for T in range(3 * g, 3 * g + 3):
                    d = vr(ACC + 4 * T, 4)
                    mf(f"v_mfma_f32_16x16x32_bf16 {d}, {ar(buf(T)+4*s,4)}, {vr(B+4*s,4)}, {'0' if s == 0 else d}")
                if s == 0 and g > 0:
                    for T in range(3 * g - 3, 3 * g): mf(rem(T))
                if g == 1 and s == 0: assert issued <= 2 * ng + 6 * per, "group 2 overwrites group 0 too early"
        issue(99)
        a(f"s_waitcnt lgkmcnt({len(late)})\ns_nop 2")
        for T in range(6, 9): a(rem(T))
        a("s_nop 7")

    def tr_reads(self, ad, rf=ar):
        def f(T, dst):
            out = []
            for s in range(4):
                for u in range(2):
                    out.append(f"ds_read_b64_tr_b16 {rf(dst+4*s+2*u,2)}, {vr(ad+u)} offset:{9216*s + 32*T}")
            out.append(f"ds_read_b64_tr_b16 {rf(dst+16,2)}, {vr(ad+2)} offset:{36864 + 32*T}")
            return out
        return f

    def row_reads(self, ad, sw=None):
        def f(T, dst):
            r = ad if sw is None or T == 8 else sw[T & 1]
            out = []
            for s in range(4):
                for u in range(2):
                    out.append(f"ds_read_b64 {ar(dst+4*s+2*u,2)}, {vr(r)} offset:{4864*T + 64*s + 32*u}")
            out.append(f"ds_read_b64 {ar(dst+16,2)}, {vr(r)} offset:{4864*T + 256}")
            return out
        return f

    def dma_rows(self, jobs, cpr, rstride, vo, vc, n_first, first_waves, lab):
        a = self.a
        mul = {18: 3641, 19: 3450}[cpr]
        dr, dc = 256 // cpr, 256 % cpr
        a(f"s_lshl_b32 {sr(S_T)}, {sr(S_W)}, 6")
        a(f"v_add_u32 {vr(vc)}, {sr(S_T)}, v0")
        a(f"v_mul_u32_u24 {vr(vo)}, {mul}, {vr(vc)}")
        a(f"v_lshrrev_b32 {vr(vo)}, 16, {vr(vo)}")
        a(f"v_mul_u32_u24 {vr(vc+1)}, {cpr}, {vr(vo)}")
        a(f"v_sub_u32 {vr(vc)}, {vr(vc)}, {vr(vc+1)}")
        a(f"v_mul_u32_u24 {vr(vo)}, {rstride}, {vr(vo)}")
        a(f"v_lshl_add_u32 {vr(vo)}, {vr(vc)}, 4, {vr(vo)}")
        a(f"s_lshl_b32 {sr(S_T)}, {sr(S_W)}, 10")
        a(f"v_mov_b32 {vr(vc+1)}, {rstride - 16*cpr}")
        for k in range(n_first):
            if k == n_first - 1:
                a(f"s_cmp_ge_u32 {sr(S_W)}, {first_waves}\ns_cbranch_scc1 {lab}")
            for srd, so, lb in jobs:
                a(f"s_add_u32 m0, {sr(S_T)}, {lb + 4096*k}")
                a("s_nop 0")
                a(f"buffer_load_dwordx4 {vr(vo)}, {sr(srd,4)}, {so} offen lds")
            if k < n_first - 1:
                a(f"v_add_u32 {vr(vc)}, {dc}, {vr(vc)}")
                a(f"v_cmp_le_u32 vcc, {cpr}, {vr(vc)}")
                a(f"v_add_u32 {vr(vo)}, {dr*rstride + 16*dc}, {vr(vo)}")
                a(f"v_subrev_u32 {vr(vc+2)}, {cpr}, {vr(vc)}")
                a(f"v_cndmask_b32 {vr(vc)}, {vr(vc)}, {vr(vc+2)}, vcc")
                a(f"v_cndmask_b32 {vr(vc+2)}, 0, {vr(vc+1)}, vcc")
                a(f"v_add_u32 {vr(vo)}, {vr(vo)}, {vr(vc+2)}")
        a.label(lab)

    def voff_table(self, dst, cpr, rstride, vc, step=256):
        a = self.a
        mul = {18: 29128, 19: 27595}[cpr]
        n = len(dst)
        a(f"s_mov_b32 {sr(S_T)}, {rstride - 16*cpr}")
        a(f"v_mul_u32_u24 {vr(dst[0])}, {mul}, {vr(vc)}")
        for k in range(1, n): a(f"v_add_u32 {vr(dst[k])}, {(step*k % cpr)*mul}, {vr(dst[0])}")
        for k in range(n): a(f"v_lshrrev_b32 {vr(dst[k])}, 19, {vr(dst[k])}")
        for k in range(n): a(f"v_mad_i32_i24 {vr(dst[k])}, {vr(dst[k])}, {sr(S_T)}, {vr(vc+1)}")

    def dma_lin(self, srd, soff, lb, v16, lab):
        a = self.a
        a(f"s_lshl_b32 {sr(S_T)}, {sr(S_W)}, 10")
        for k in range(11):
            if k == 10:
                a(f"s_cmp_ge_u32 {sr(S_W)}, 1\ns_cbranch_scc1 {lab}")
            a(f"s_add_u32 m0, {sr(S_T)}, {lb + 4096*k}")
            a(f"s_add_u32 {sr(S_T+1)}, {sr(S_T)}, {soff + 4096*k}")
            a(f"buffer_load_dwordx4 {vr(v16)}, {sr(srd,4)}, {sr(S_T+1)} offen lds")
        a.label(lab)

    def tr_addr(self, ad, base, swapped, t):
        a = self.a
        a(f"v_lshrrev_b32 {vr(t)}, 2, v0")
        a(f"v_mul_u32_u24 {vr(t)}, 288, {vr(t)}")
        a(f"v_and_b32 {vr(t+1)}, 3, v0")
        a(f"v_lshl_add_u32 {vr(t)}, {vr(t+1)}, 3, {vr(t)}")
        a(f"v_add_u32 {vr(ad+2)}, {base}, {vr(t)}")
        if swapped:
            a(f"v_bfe_u32 {vr(t)}, v0, 4, 1")
            a(f"v_mul_u32_u24 {vr(t)}, {16*288}, {vr(t)}")
            a(f"v_add_u32 {vr(ad)}, {vr(ad+2)}, {vr(t)}")
            a(f"v_sub_u32 {vr(ad+1)}, {vr(ad+2)}, {vr(t)}")
            a(f"v_add_u32 {vr(ad+1)}, {16*288}, {vr(ad+1)}")
        else:
            a(f"v_mov_b32 {vr(ad)}, {vr(ad+2)}")
            a(f"v_add_u32 {vr(ad+1)}, {16*288}, {vr(ad+2)}")

    def row_addr(self, ad, base, t):
        a = self.a
        a(f"v_and_b32 {vr(t)}, 15, v0")
        a(f"v_mul_u32_u24 {vr(t)}, 304, {vr(t)}")
        a(f"v_lshrrev_b32 {vr(t+1)}, 4, v0")
        a(f"v_lshl_add_u32 {vr(t)}, {vr(t+1)}, 3, {vr(t)}")
        a(f"v_add_u32 {vr(ad)}, {base}, {vr(t)}")

    def store_block(self, src, v16, v8, srd, soff, soff2, flags=""):
        a = self.a
        for s in range(4):
            a(f"buffer_store_dwordx4 {vr(src+4*s,4)}, {vr(v16)}, {sr(srd,4)}, {sr(soff)} offen offset:{1024*s} {flags}")
        a(f"buffer_store_dwordx2 {vr(src+16,2)}, {vr(v8)}, {sr(srd,4)}, {sr(soff2)} offen {flags}")

    def entry(self):
        a = self.a
        xm2 = self.o.get("xm", 0) == 2
        kernel_header(a, NAME)
        a(f"s_load_dwordx16 s[56:71], s[0:1], 0")
        a(f"s_load_dwordx8 s[72:79], s[0:1], 64")
        a(f"s_getpc_b64 {sr(S_W1,2)}")
        a.label("L_pf")
        a(f"""s_mov_b32 {sr(S_W1+2)}, L_dummy-L_pf
        s_mov_b32 {sr(S_W1+3)}, 0x20000
        v_lshlrev_b32 v2, 4, v0
        buffer_load_dwordx4 v[252:255], v2, {sr(S_W1,4)}, 0 offen
        s_lshl_b32 s3, s2, 9
        s_and_b32 s3, s3, 0x7000
        buffer_load_dwordx4 v[252:255], v2, {sr(S_W1,4)}, s3 offen
        v_lshrrev_b32 v1, 6, v0
        {"s_bfe_u32 s6, s2, 0x10003" if xm2 else f"s_sub_u32 s2, s2, {NH}"}
        v_readfirstlane_b32 {sr(S_W)}, v1
        s_memrealtime s[4:5]""")
        if xm2:
            a(f"""s_and_b32 s7, s2, 7
            s_lshl1_add_u32 s7, s7, s6
            s_mov_b32 s6, s2
            s_andn2_b32 s2, s2, 15
            s_or_b32 s2, s2, s7""")
        a(f"""s_cmp_ge_u32 s2, {NWG - NH}
        s_cbranch_scc1 L_wfuse""")
        if self.o.get("late"):
            m_, v_, n_ = self.o["late"]
            a(f"""s_and_b32 s3, s2, {m_}
            s_cmp_lg_u32 s3, {v_}
            s_cbranch_scc1 L_nl
            s_memrealtime s[4:5]
            s_waitcnt lgkmcnt(0)
            s_add_u32 s6, s4, {n_}
            L_lt:
            s_memrealtime s[4:5]
            s_waitcnt lgkmcnt(0)
            s_sub_u32 s7, s6, s4
            s_cmp_gt_i32 s7, 0
            s_cbranch_scc1 L_lt
            L_nl:""")
        if self.o.get("stamps"):
            a("s_memrealtime s[100:101]" if not self.o.get("cyc") else "s_memtime s[100:101]")
        self.mp = 2

    def vm_since(self, mark):
        return sum(1 for l in self.a.lines[mark:] if l.strip().startswith("buffer_"))

    def phase_a(self):
        a, o = self.a, self.o
        XR, XF, XA, ACC, G_, PK = 16, 34, 146, 110, 16, 164
        B4, XD = 16, 88
        VS, VSW, VR4, MXA, MXR, L8, TRU, TRQ, TRQ8, RK, TM = 200, 204, 208, 212, 213, 214, 215, 218, 221, 224, 228
        VK, VU = list(range(182, 193)), list(range(193, 200)) + list(range(104, 108))
        AQ1 = 200
        t0, t1, t2 = 250, 251, 227
        T = S_T
        WV, W10, UOFF, M1, PUB, M3 = 72, 70, 71, 69, 68, 65
        PH = 2
        if o.get("xm", 0) == 2: PH = S_PH
        if o.get("xm", 0) == 1:
            PH = S_PH
            a(f"""s_mov_b32 {sr(PH)}, s2
            s_bfe_u32 {sr(T)}, s2, 0x10003
            s_and_b32 {sr(T+1)}, s2, 7
            s_lshl1_add_u32 {sr(T)}, {sr(T+1)}, {sr(T)}
            s_and_b32 {sr(T+1)}, s2, 0xf0
            s_or_b32 {sr(T)}, {sr(T)}, {sr(T+1)}
            s_add_u32 s2, s2, 4
            s_cmp_lt_u32 {sr(T)}, 248
            s_cselect_b32 s2, {sr(T)}, s2""")
        a(f"""v_and_b32 v0, 63, v0
        s_bfe_u32 {sr(S_B)}, s2, 0x10001
        s_lshr_b32 {sr(S_QB)}, s2, 2
        s_lshr_b32 {sr(T)}, {sr(S_W)}, 1
        s_xor_b32 {sr(T)}, {sr(T)}, s2
        s_andn2_b32 {sr(T)}, 1, {sr(T)}
        s_lshl1_add_u32 {sr(T+3)}, {sr(S_QB)}, {sr(T)}
        s_mul_i32 {sr(T)}, {sr(S_B)}, {NT}
        s_add_u32 {sr(T+1)}, {sr(T+3)}, {sr(T)}
        s_and_b32 {sr(T+2)}, {sr(S_W)}, 1
        s_lshl1_add_u32 {sr(T+2)}, {sr(T+1)}, {sr(T+2)}
        v_lshlrev_b32 {vr(V_DMA)}, 4, v0
        s_mul_i32 {sr(T+1)}, {sr(T+2)}, {16*288}
        s_mul_i32 {sr(S_LB)}, {sr(S_W)}, {BLK}
        s_add_u32 m0, {sr(S_LB)}, {L_XS}
        s_mov_b32 {sr(S_X+2)}, 2304000
        s_mov_b32 {sr(S_X+3)}, {sr(S_W1+3)}
        s_add_u32 {sr(S_CNT)}, {sr(T+1)}, 4096
        s_waitcnt lgkmcnt(0)
        s_mov_b64 {sr(S_X,2)}, s[56:57]""")
        for k in range(4): a(f"buffer_load_dwordx4 {vr(V_DMA)}, {sr(S_X,4)}, {sr(T+1)} offen offset:{1024*k} lds")
        a(f"s_add_u32 m0, {sr(S_LB)}, {L_XS + 4096}\ns_mov_b32 exec_hi, 0\nbuffer_load_dwordx4 {vr(V_DMA)}, {sr(S_X,4)}, {sr(S_CNT)} offen lds\ns_mov_b32 exec_hi, -1")
        mx = len(a.lines)
        a(f"""s_add_u32 {sr(S_LB)}, {sr(S_LB)}, {L_XS}
        s_and_b32 {sr(S_H)}, s2, 1
        s_lshl1_add_u32 {sr(S_TOWN)}, {sr(S_QB)}, {sr(S_H)}
        s_cmp_lt_u32 {sr(S_TOWN)}, {NT}
        s_cselect_b32 {sr(S_VAL)}, 1, 0
        s_add_u32 {sr(S_TOWN)}, {sr(S_TOWN)}, {sr(T)}""")
        SQ, SK, SU = S_W2, S_W1, S_XA
        self.srd(SU, 66, 67, 82944)
        self.srd(SQ, 58, 59, 41472)
        self.srd(SK, 60, 61, 41472)
        a(f"s_lshr_b32 {sr(T)}, {sr(PH)}, 3\ns_lshl_b32 {sr(T)}, {sr(T)}, 12\ns_lshl_b32 {sr(W10)}, {sr(S_W)}, 10\ns_add_u32 {sr(T)}, {sr(T)}, {sr(W10)}")
        a(f"buffer_load_dwordx4 v[252:255], {vr(V_DMA)}, {sr(SU,4)}, {sr(T)} offen")
        for srd_, rot in ((SQ, 82), (SK, 41)):
            a(f"s_add_u32 {sr(T+1)}, {sr(T)}, {(128 - rot) * 1024}\ns_and_b32 {sr(T+1)}, {sr(T+1)}, {127 * 1024}")
            a(f"buffer_load_dwordx4 v[252:255], {vr(V_DMA)}, {sr(srd_,4)}, {sr(T+1)} offen")
        self.srd(S_OUT, 74, 75, 2304000)
        self.srd(S_DB, 76, 77, 256)
        self.srd(S_WS, 78, 79, WS_END)
        def tlb():
            a(f"v_lshlrev_b32 v249, 21, v0")
            for ch in o.get("tlbw", "wdo"): a(f"buffer_load_dword v252, v249, {sr(dict(w=S_WS, d=S_DB, o=S_OUT)[ch],4)}, 0 offen")
        if o.get("tlb", 0) == 1: tlb()
        if o.get("tlb", 3) == 3:
            a(f"""s_bfe_u32 {sr(T)}, {sr(PH)}, 0x30003
            s_lshl_b32 {sr(T)}, {sr(T)}, 21
            v_mov_b32 v249, 0
            s_cmp_lt_u32 {sr(T)}, {5 << 21}
            s_cbranch_scc0 L_tl1
            buffer_load_dword v252, v249, {sr(S_WS,4)}, {sr(T)} offen
            s_branch L_tl3
            L_tl1:
            s_sub_u32 {sr(T)}, {sr(T)}, {5 << 21}
            s_cmp_lt_u32 {sr(T)}, {2 << 21}
            s_cbranch_scc0 L_tl2
            buffer_load_dword v252, v249, {sr(S_OUT,4)}, {sr(T)} offen
            s_branch L_tl3
            L_tl2:
            s_or_b32 s4, s4, 1
            v_lshlrev_b32 v249, 8, v0
            v_mov_b32 v250, s4
            s_lshl2_add_u32 s5, {sr(PH)}, {sr(S_W)}
            s_cmp_eq_u32 s5, {56 * 4}
            s_cbranch_scc0 L_tl4
            buffer_store_dword v250, v249, {sr(S_DB,4)}, 0 offen sc1
            s_branch L_tl3
            L_tl4:
            buffer_load_dword v252, v249, {sr(S_DB,4)}, 0 offen offset:128
            L_tl3:""")
            self.vm_adj = -3
        if o.get("tst") and o["tst"][0] == "beg": self.tstore()
        if o.get("tl4"):
            a(f"""s_mul_i32 {sr(T)}, {sr(S_TOWN)}, {TILE}
            v_lshlrev_b32 v249, 12, v0
            v_add_u32 v249, {sr(T)}, v249
            s_mov_b64 exec, 7
            buffer_load_dword v252, v249, {sr(S_WS,4)}, 0 offen
            s_mov_b64 exec, -1""")
        if o.get("stamps"): a(f"s_mov_b64 {sr(S_ST,2)}, s[100:101]"); self.stnames.append("start"); self.nst = 1
        self.stamp("xiss")
        a(f"""s_cmp_lt_u32 {sr(T+3)}, {NT}
        s_cselect_b32 {sr(WV)}, 1, 0
        s_mov_b32 {sr(WV+1)}, {sr(T+2)}
        s_mul_i32 {sr(UOFF)}, {sr(S_H)}, 288
        s_cmp_eq_u32 {sr(S_W)}, 0
        s_cselect_b32 {sr(M1)}, 0, {L_DUMP}
        s_cmp_lt_u32 {sr(S_W)}, 3
        s_cselect_b32 {sr(M3)}, {sr(W10)}, {L_DUMP}""")
        half = lambda g_: "s_mov_b32 exec_hi, 0\n" + g_ + "\ns_mov_b32 exec_hi, -1"
        gu = [f"s_add_u32 m0, {sr(W10 if k < 10 else M1)}, {L_WU + 4096*k}\ns_add_u32 {sr(S_CNT)}, {sr(UOFF)}, {4096*k + 288*(256*k//18)}\nbuffer_load_dwordx4 {vr(VU[k])}, {sr(SU,4)}, {sr(S_CNT)} offen lds" for k in range(11)]
        gu[10] = half(gu[10])
        gq = [f"s_add_u32 m0, {sr(W10 if k < 10 else M1)}, {L_WQ + 4096*k}\ns_add_u32 {sr(S_CNT)}, {sr(W10)}, {4096*k}\nbuffer_load_dwordx4 {vr(V_DMA)}, {sr(SQ,4)}, {sr(S_CNT)} offen lds" for k in range(11)]
        gq[10] = half(gq[10])
        gk = [f"s_add_u32 m0, {sr(W10 if k < 10 else M3)}, {L_WK + 4096*k}\ns_mov_b32 {sr(S_CNT)}, {4096*k - 16*(256*k//19)}\nbuffer_load_dwordx4 {vr(VK[k])}, {sr(SK,4)}, {sr(S_CNT)} offen lds" for k in range(11)]
        a(f"s_lshl_b32 {sr(T)}, {sr(S_W)}, 6\nv_add_u32 {vr(t0)}, {sr(T)}, v0\nv_lshlrev_b32 {vr(t1)}, 4, {vr(t0)}")
        self.voff_table(VU, 18, 576, t0)
        npre = o.get("npre", 3)
        a.bg, a.every, a.cnt = gu[:npre], o.get("evpre", 40), 0
        self.voff_table(VK, 19, 288, t0)
        xa0, xa1, xa2 = TM, TM + 1, TM + 2
        a(f"""v_and_b32 {vr(t0)}, 15, v0
        v_lshrrev_b32 {vr(t1)}, 5, v0
        v_lshlrev_b32 {vr(t1)}, 3, {vr(t1)}
        v_xor_b32 {vr(t1)}, {vr(t0)}, {vr(t1)}
        v_lshlrev_b32 {vr(t1)}, 4, {vr(t1)}
        v_lshrrev_b32 {vr(t2)}, 4, v0
        v_lshl_add_u32 {vr(V_KA)}, {vr(t2)}, 9, {vr(t1)}
        v_lshrrev_b32 {vr(t1)}, 3, {vr(t0)}
        v_lshlrev_b32 {vr(t1)}, 1, {vr(t1)}
        v_xor_b32 {vr(t1)}, {vr(t2)}, {vr(t1)}
        v_lshl_add_u32 {vr(t1)}, {vr(t0)}, 2, {vr(t1)}
        v_lshlrev_b32 {vr(V_KA+1)}, 3, {vr(t1)}
        v_lshlrev_b32 {vr(L8)}, 3, v0
        v_lshlrev_b32 {vr(MXR)}, 4, {vr(t0)}
        v_add_u32 {vr(MXR)}, {L_MX}, {vr(MXR)}
        v_add_u32 {vr(MXA)}, {sr(S_W)}, {vr(t2)}
        v_and_b32 {vr(MXA)}, 3, {vr(MXA)}
        v_lshl_add_u32 {vr(MXA)}, {vr(MXA)}, 8, {vr(MXR)}
        s_lshl_b32 {sr(T)}, {sr(S_W)}, 2
        v_add_u32 {vr(MXA)}, {sr(T)}, {vr(MXA)}
        v_mul_u32_u24 {vr(xa2)}, 288, {vr(t0)}
        v_lshl_add_u32 {vr(xa2)}, {vr(t2)}, 3, {vr(xa2)}
        v_add_u32 {vr(xa2)}, {sr(S_LB)}, {vr(xa2)}
        v_and_b32 {vr(t1)}, 1, {vr(t2)}
        v_lshlrev_b32 {vr(t1)}, 5, {vr(t1)}
        v_add_u32 {vr(xa0)}, {vr(xa2)}, {vr(t1)}
        v_xor_b32 {vr(t1)}, 32, {vr(t1)}
        v_add_u32 {vr(xa1)}, {vr(xa2)}, {vr(t1)}
        s_mul_i32 {sr(S_LB)}, {sr(S_W)}, {TILE}
        v_lshrrev_b32 {vr(t0)}, 2, v0
        v_bfe_u32 {vr(t1)}, v0, 1, 1
        v_lshlrev_b32 {vr(t1)}, 3, {vr(t1)}
        v_xor_b32 {vr(t1)}, {vr(t0)}, {vr(t1)}
        v_lshlrev_b32 {vr(t1)}, 4, {vr(t1)}
        v_and_b32 {vr(t2)}, 3, v0
        v_lshl_add_u32 {vr(t1)}, {vr(t2)}, 9, {vr(t1)}
        v_and_b32 {vr(V_VA)}, 1, v0
        v_lshl_add_u32 {vr(t1)}, {vr(V_VA)}, 3, {vr(t1)}
        s_and_b32 {sr(T)}, {sr(S_W)}, 1
        s_lshl_b32 {sr(T)}, {sr(T)}, 12
        s_add_u32 {sr(T+1)}, {sr(T)}, {sr(S_LB)}
        s_xor_b32 {sr(T)}, {sr(T)}, 4096
        s_add_u32 {sr(T)}, {sr(T)}, {sr(S_LB)}
        v_add_u32 {vr(V_VA)}, {sr(T)}, {vr(t1)}
        v_add_u32 {vr(V_VB)}, {sr(T+1)}, {vr(t1)}
        v_xor_b32 {vr(V_VA+1)}, 8, {vr(V_VA)}
        v_xor_b32 {vr(V_VB+1)}, 8, {vr(V_VB)}
        v_lshrrev_b32 {vr(t1)}, 5, v0
        v_lshlrev_b32 {vr(t1)}, 1, {vr(t1)}
        v_xor_b32 {vr(t1)}, {vr(t2)}, {vr(t1)}
        v_lshl_add_u32 {vr(t1)}, {vr(t0)}, 2, {vr(t1)}
        v_lshlrev_b32 {vr(t1)}, 3, {vr(t1)}
        v_add_u32 {vr(V_VR)}, {sr(S_LB)}, {vr(t1)}
        v_add_u32 {vr(V_DMA+1)}, 4096, {vr(V_DMA)}
        v_add_u32 {vr(V_DMA+2)}, 8192, {vr(V_DMA)}""")
        self.tr_addr(TRU, L_WU, True, t0)
        a(f"s_lshl_b32 {sr(T)}, {sr(S_W)}, 6\ns_add_u32 {sr(T)}, {sr(T)}, {L_WQ - L_WU}")
        for k in range(3):
            a(f"v_add_u32 {vr(TRQ+k)}, {sr(T)}, {vr(TRU+k)}\nv_add_u32 {vr(TRQ8+k)}, {L_WQ - L_WU + 256}, {vr(TRU+k)}")
        self.row_addr(RK + 2, L_WK + 8 * 4864, t0)
        a(f"""s_mul_i32 {sr(T)}, {sr(S_W)}, {2*4864}
        s_sub_u32 {sr(T)}, {sr(T)}, {8*4864}
        v_add_u32 {vr(t1)}, {sr(T)}, {vr(RK+2)}
        v_bfe_u32 {vr(t0)}, v0, 2, 1
        v_mul_u32_u24 {vr(t0)}, 4864, {vr(t0)}
        v_add_u32 {vr(RK)}, {vr(t1)}, {vr(t0)}
        v_sub_u32 {vr(RK+1)}, {vr(t1)}, {vr(t0)}""")
        for j in range(4):
            a(f"""s_add_u32 {sr(T)}, {sr(S_W)}, {j}
            s_and_b32 {sr(T)}, {sr(T)}, 3
            s_lshl_b32 {sr(T+1)}, {sr(T)}, 12
            s_add_u32 {sr(T+1)}, {sr(T+1)}, {L_XX}
            v_add_u32 {vr(VS+j)}, {sr(T+1)}, {vr(V_DMA)}
            s_lshl_b32 {sr(T+1)}, {sr(T)}, 9
            s_add_u32 {sr(T+1)}, {sr(T+1)}, {L_XR}
            v_add_u32 {vr(VR4+j)}, {sr(T+1)}, {vr(L8)}
            v_add_u32 {vr(VSW+j)}, {sr(W10)}, {vr(VS+j)}""")
        a(f"""s_sub_u32 {sr(T+2)}, 63, {sr(S_H)}
        s_add_u32 {sr(T+3)}, {sr(S_W)}, 60
        s_cmp_ge_u32 {sr(T+3)}, {sr(T+2)}
        s_cselect_b32 {sr(S_DUM)}, 4, 99
        s_mov_b32 {sr(S_REDO)}, 0
        s_mov_b32 {sr(S_TOFF)}, {sr(S_LB)}
        s_lshl_b32 {sr(PUB)}, {sr(S_TOWN)}, 8
        s_add_u32 {sr(PUB)}, {sr(PUB)}, {WS_F}
        s_and_b32 {sr(T)}, {sr(S_W)}, 1
        s_lshl_b32 {sr(T)}, {sr(T)}, 7
        s_add_u32 {sr(PUB)}, {sr(PUB)}, {sr(T)}
        s_lshr_b32 {sr(T)}, {sr(S_W)}, 1
        s_and_b32 {sr(T)}, {sr(T)}, {sr(S_VAL)}
        s_cmp_eq_u32 {sr(T)}, 1
        s_cselect_b32 {sr(PUB)}, {sr(PUB)}, 0x40000000
        s_lshl_b32 {sr(S_FB)}, s2, 8
        s_add_u32 {sr(S_FB)}, {sr(S_FB)}, {WS_F + 250*256}
        s_mul_i32 {sr(T)}, {sr(S_H)}, 1792
        s_sub_u32 {sr(T)}, {sr(T)}, 768
        s_mul_i32 {sr(T+1)}, {sr(S_H)}, 62
        s_cmp_eq_u32 {sr(S_QB)}, {sr(T+1)}
        s_cselect_b32 {sr(T)}, 0, {sr(T)}
        v_mov_b32 {vr(self.VPL)}, 0x40000000
        s_xor_b32 {sr(T+1)}, {sr(S_FB)}, 256
        s_add_u32 {sr(T)}, {sr(T)}, {sr(S_FB)}
        v_writelane_b32 {vr(self.VPL)}, {sr(S_FB)}, 0
        v_writelane_b32 {vr(self.VPL)}, {sr(T+1)}, 1
        v_writelane_b32 {vr(self.VPL)}, {sr(T)}, 2
        s_mov_b32 {sr(T)}, {WS_F + 502*256}
        s_mov_b32 {sr(T+1)}, {WS_F + 503*256}
        v_writelane_b32 {vr(self.VPL)}, {sr(T)}, 3
        v_writelane_b32 {vr(self.VPL)}, {sr(T+1)}, 4
        s_sub_u32 {sr(S_FB)}, {sr(S_FB)}, {L_PC}""")
        if o.get("xm", 0):
            a(f"""s_getreg_b32 {sr(S_XC)}, hwreg(HW_REG_XCC_ID, 0, 4)
            s_xor_b32 {sr(T)}, s2, 1
            s_lshl_b32 {sr(T)}, {sr(T)}, 8
            s_add_u32 {sr(T)}, {sr(T)}, {WS_F + 250*256 + 4}
            v_writelane_b32 {vr(self.VPL)}, {sr(T)}, 5""")
        a.flush()
        if o.get("tlb", 0) == 2: tlb()
        self.stamp("pre")
        if o.get("es", 0) == 0: self.epi_setup()
        self.stamp("es")
        nx = self.vm_since(mx) + getattr(self, "vm_adj", 0)
        if o.get("touch", 1):
            a(f"""s_mov_b64 exec, 0
            s_cmp_eq_u32 {sr(S_W)}, 0
            s_cbranch_scc1 L_tr
            s_cmp_eq_u32 {sr(S_W)}, 1
            s_cbranch_scc1 L_t0
            s_cmp_eq_u32 {sr(S_W)}, 2
            s_cbranch_scc1 L_t1
            s_branch L_t2""")
            self.rare()
            a.raw(".p2align 12")
            a.label("L_tr")
            a("s_mov_b64 exec, -1")
        nlate = o.get("nlate", 0)
        for g_ in gu[npre:npre + nlate]: a(g_)
        a(f"s_waitcnt vmcnt({nx + nlate})")
        self.stamp("xarr")
        for s in range(4):
            a(f"ds_read_b64 {vr(XR+4*s,2)}, {vr(xa0)} offset:{64*s}\nds_read_b64 {vr(XR+4*s+2,2)}, {vr(xa1)} offset:{64*s}")
        a(f"ds_read_b64 {vr(XR+16,2)}, {vr(xa2)} offset:256")
        a(f"""s_and_b32 {sr(T)}, {sr(S_W)}, 1
        s_mul_i32 {sr(T+2)}, {sr(S_TOWN)}, {TILE}
        s_cmp_eq_u32 {sr(S_VAL)}, 1
        s_cselect_b32 {sr(T+2)}, {sr(T+2)}, 0x40000000
        s_lshl_b32 {sr(T+3)}, {sr(T)}, 8
        s_add_u32 {sr(T+3)}, {sr(T+3)}, {sr(T+2)}
        s_add_u32 {sr(T+4)}, {sr(T+3)}, 4096
        s_lshl_b32 {sr(T+5)}, {sr(T)}, 9
        s_add_u32 {sr(T+5)}, {sr(T+5)}, {sr(T+2)}
        s_add_u32 {sr(T+5)}, {sr(T+5)}, 8192
        s_waitcnt lgkmcnt(0)""")
        wl = gq + gk
        a.bg, a.every, a.cnt = gu[npre + nlate:] + [wl.pop(0) for _ in range(o.get("nql", 11))], o.get("evln", 5), 0
        self.ln_packed(XR, XF, XA, TM)
        a.flush()
        self.stamp("ln")
        a(f"s_cmp_lt_u32 {sr(S_W)}, 2\ns_cbranch_scc1 L_nop")
        for s in range(4):
            a(f"buffer_store_dwordx4 {vr(XA+4*s,4)}, {vr(V_KA)}, {sr(S_WS,4)}, {sr(T+3+(s>>1))} offen offset:{2048*(s&1)} {o.get('pfl', 'sc1')}")
        a(f"buffer_store_dwordx2 {vr(XA+16,2)}, {vr(V_KA+1)}, {sr(S_WS,4)}, {sr(T+5)} offen {o.get('pfl', 'sc1')}\ns_waitcnt vmcnt({5 + o.get('nql', 11)})\ns_branch L_bar1")
        a.label("L_nop")
        if o.get("touch", 1):
            a(f"s_mov_b64 exec, 0\ns_cmp_eq_u32 {sr(S_W)}, 0\ns_cbranch_scc1 L_t3\ns_branch L_t4")
            a.label("L_tr2")
            a("s_mov_b64 exec, -1")
        a(f"s_waitcnt vmcnt({o.get('nql', 11)})")
        a.label("L_bar1")
        self.stamp("pub")
        xw = [f"ds_write_b128 {vr(VS)}, {vr(XA+4*s,4)} offset:{1024*s}" for s in range(4)] + [f"ds_write_b64 {vr(VR4)}, {vr(XA+16,2)}"]
        self.stamp("tch")
        PA = 249
        a(f"""v_add_u32 {vr(V_KA)}, {sr(S_LB)}, {vr(V_KA)}
        v_add_u32 {vr(V_KA+1)}, {sr(S_LB)}, {vr(V_KA+1)}
        s_mul_i32 {sr(T)}, {sr(S_B)}, {NT}
        s_mul_i32 {sr(T+1)}, {sr(S_H)}, 63
        s_add_u32 {sr(T)}, {sr(T)}, {sr(T+1)}
        s_lshl_b32 {sr(T)}, {sr(T)}, 8
        s_add_u32 {sr(T)}, {sr(T)}, {WS_F}
        s_cmp_eq_u32 {sr(S_W)}, 0
        {"" if o.get("gatepos", 0) else f"s_cselect_b32 {sr(T)}, {sr(T)}, 0x40000000"}
        v_lshl_add_u32 {vr(PA)}, v0, 8, {sr(T)}
        {self.xa_srd()}
        s_waitcnt lgkmcnt(0)""")
        self.stamp("w1")
        a("s_barrier")
        self.stamp("bar1")
        m_b1 = len(a.lines)
        poll = lambda r: f"buffer_load_dword {vr(r)}, {vr(PA)}, {sr(S_WS,4)}, 0 offen sc1\nbuffer_load_dword {vr(r+2)}, {vr(PA)}, {sr(S_WS,4)}, 0 offen offset:128 sc1"

        def gate(lab, r, mask, younger):
            a(f"s_mov_b32 {sr(T+2)}, 0\ns_waitcnt vmcnt({younger})")
            a.label(lab)
            a(f"""v_cmp_ne_u32 vcc, {sr(S_N)}, {vr(r)}
            v_cmp_ne_u32 {sr(T+10,2)}, {sr(S_N)}, {vr(r+2)}
            s_add_u32 {sr(T+2)}, {sr(T+2)}, 1
            s_or_b64 vcc, vcc, {sr(T+10,2)}
            s_and_b64 vcc, vcc, {mask}
            s_cbranch_scc0 {lab}_ok
            s_sleep {o.get("slp", 4)}
            {poll(r)}
            s_waitcnt vmcnt(0)
            s_cmp_lt_u32 {sr(T+2)}, 0x40000
            s_cbranch_scc1 {lab}""")
            a.label(lab + "_ok")

        H, G_, UG, MS, CL = 16, 52, 208, 110, 104
        nup = o.get("nup", 5)
        at = {o.get("u0", 6) + o.get("usp", 6) * i: wl.pop(0) for i in range(nup)}
        for i in range(5): at[i] = xw[i]
        tagld = f"buffer_load_dword v253, off, {sr(S_DB,4)}, 0 sc1"
        tag1 = tagld.replace("sc1", o.get("tgf", "sc1")).strip()
        at[o.get("tgp", 5)] = tag1
        if o.get("es", 0) == 1:
            n_ = len(a.lines); self.epi_setup()
            el = [l.strip() for l in a.lines[n_:]]; del a.lines[n_:]
            for k in range(5, 42):
                if k in at: continue
                c_ = 0
                while el and c_ < o.get("esn", 2):
                    x = el.pop(0); at[k] = at.get(k, "") + x + "\n"; c_ += 1 if x.startswith("v_") else 0.5
            self.es_left = el
        self.gemm(self.tr_reads(TRU), XA, H, None, at=at)
        if o.get("es", 0) == 1:
            for x in self.es_left: a(x)
        self.stamp("up")
        p = lambda r: vr(r, 2)
        CC = TM
        c1 = -2.0 * math.sqrt(2.0 / math.pi) * LOG2E
        c2 = c1 * 0.044715
        gst = [[f"v_pk_mul_f32 {p(G_+2*i)}, {p(H+2*i)}, {p(H+2*i)}" for i in range(18)] +
               [f"v_pk_fma_f32 {p(G_+2*i)}, {p(G_+2*i)}, {p(CC+2)}, {p(CC)} op_sel_hi:[1,0,0]" for i in range(18)] +
               [f"v_pk_mul_f32 {p(G_+2*i)}, {p(G_+2*i)}, {p(H+2*i)}" for i in range(18)],
               [f"v_exp_f32 {vr(G_+i)}, {vr(G_+i)}" for i in range(36)],
               [f"v_pk_add_f32 {p(G_+2*i)}, {p(G_+2*i)}, {p(CC+4)} op_sel_hi:[1,0]" for i in range(18)],
               [f"v_rcp_f32 {vr(G_+i)}, {vr(G_+i)}" for i in range(36)],
               [f"v_pk_mul_f32 {p(H+2*i)}, {p(G_+2*i)}, {p(H+2*i)}" for i in range(18)]]
        gs = o.get("gs", 0)
        if gs:
            a(f"v_mov_b32 {vr(CC)}, {f32(c1)}\nv_mov_b32 {vr(CC+2)}, {f32(c2)}\nv_mov_b32 {vr(CC+4)}, 1.0")
            pre = [x for st_ in gst[:gs] for x in st_]
            ngw = o.get("ngw", 0)
            for i, x in enumerate(pre):
                a(x)
                if ngw and i % o.get("gwsp", 8) == 2 and wl: a(wl.pop(0)); ngw -= 1
            self.stamp("gea")
        last = lambda srd: max(i for i, l in enumerate(a.lines) if l.strip().startswith("buffer_load") and sr(srd, 4) in l) + 1
        assert not any(sr(SQ, 4) in x for x in wl)
        nq_ = self.vm_since(m_b1) + (5 if last(SQ) < m_b1 else 0) if last(SQ) < m_b1 else self.vm_since(last(SQ))
        a(f"s_waitcnt vmcnt({self.vm_since(m_b1) if last(SQ) < m_b1 else nq_}) lgkmcnt(0)" if False else "")
        if last(SQ) < m_b1:
            a(f"s_cmp_lt_u32 {sr(S_W)}, 2\ns_cbranch_scc1 L_bg0\ns_waitcnt vmcnt({5 + self.vm_since(m_b1)})\ns_branch L_bg1\nL_bg0:\ns_waitcnt vmcnt({self.vm_since(m_b1)})\nL_bg1:\ns_waitcnt lgkmcnt(0)\ns_barrier")
        else: a(f"s_waitcnt vmcnt({self.vm_since(last(SQ))}) lgkmcnt(0)\ns_barrier")

        def flag():
            n_ = self.vm_since(max(i for i, l in enumerate(a.lines) if l.strip() == tag1) + 1)
            a(f"v_lshrrev_b32 {vr(t0)}, 5, v0\nv_lshlrev_b32 {vr(t0)}, 30, {vr(t0)}\nv_lshl_add_u32 {vr(t0)}, v0, 2, {vr(t0)}\ns_mov_b32 {sr(T+5)}, 0\ns_waitcnt vmcnt({n_})")
            a.label("L_tag")
            a(f"""v_readfirstlane_b32 {sr(S_N)}, v253
            s_add_u32 {sr(T+5)}, {sr(T+5)}, 1
            s_cmp_lg_u32 {sr(S_N)}, 0
            s_cbranch_scc1 L_tag_ok
            {tagld}
            s_waitcnt vmcnt(0)
            s_cmp_lt_u32 {sr(T+5)}, 0x40000
            s_cbranch_scc1 L_tag""")
            a.label("L_tag_ok")
            a(f"v_mov_b32 {vr(t1)}, {sr(S_N)}\nbuffer_store_dword {vr(t1)}, {vr(t0)}, {sr(S_WS,4)}, {sr(PUB)} offen sc1")
            self.m_fl = len(a.lines)
            self.stamp("flag")
        self.stamp("barG")
        if o.get("atw"):
            a("s_waitcnt vmcnt(1)")
            self.stamp("ack1")
            a("s_waitcnt vmcnt(0)")
            self.stamp("ack")
        if o.get("census"):
            k_ = S_ST + 2 * self.stnames.index(o["census"][0])
            a(f"s_waitcnt lgkmcnt(0)\nv_mov_b32 v252, {sr(k_)}\ns_lshl_b32 {sr(T)}, s2, 2\ns_add_u32 {sr(T)}, {sr(T)}, {WS_DBG}\nv_mov_b32 v253, 0\nbuffer_store_dword v252, v253, {sr(S_WS,4)}, {sr(T)} offen sc1")

        def a_tr(t):
            ad, off = (TRQ, 32 * t) if t < 2 else (TRQ8, 0)
            return [f"ds_read_b64_tr_b16 {ar(AQ1+18*t+4*s+2*u,2)}, {vr(ad+u)} offset:{9216*s + off}" for s in range(4) for u in range(2)] + \
                   [f"ds_read_b64_tr_b16 {ar(AQ1+18*t+16,2)}, {vr(ad+2)} offset:{36864 + off}"]

        def a_row(t):
            off = 4864 * t if t < 2 else 0
            return [f"ds_read_b64 {ar(A_Q+18*t+4*s+2*u,2)}, {vr(RK+t)} offset:{off + 64*s + 32*u}" for s in range(4) for u in range(2)] + \
                   [f"ds_read_b64 {ar(A_Q+18*t+16,2)}, {vr(RK+t)} offset:{off + 256}"]
        bq = lambda j, d=0: [f"ds_read_b128 {ar(18*j+4*s,4)}, {vr(VS+j)} offset:{d + 1024*s}" for s in range(4)] + [f"ds_read_b64 {ar(18*j+16,2)}, {vr(VR4+j)} offset:{d}"]

        def post(u, scale, d):
            L = [f"v_mul_f32 {vr(ACC+4*u+i)}, {sr(T+4)}, {vr(ACC+4*u+i)}" for i in range(4)] if scale else []
            L += [f"v_cvt_pk_bf16_f32 {vr(PK + (4*(u&3) + 2*(u>>2) if u < 8 else 16) + h)}, {vr(ACC+4*u+2*h)}, {vr(ACC+4*u+2*h+1)}" for h in range(2)]
            if 4 <= u < 8: L.append(f"ds_write_b128 {vr(VSW+u-4)}, {vr(PK+4*(u-4),4)} offset:{d}")
            if u == 8: L.append(f"ds_write_b64 {vr(VR4)}, {vr(PK+16,2)} offset:{d}")
            return L
        fl2 = o.get("fl2", 1)
        self.m_fl = 0
        xd = [f"ds_read_b128 {vr(XD+4*j,4)}, {vr(VSW+j)}" for j in range(4)]
        self.gemm_u(AQ1, ar, [("v", XA), ("a", 18), ("a", 36), ("a", 54)], ACC, a_tr, lambda j: bq(j) if j else None, lambda u: post(u, False, L_QD),
                    vm_items=wl, other=xd, vmsp=o.get("vmsp", 3), at={o.get("flp", 22): flag} if fl2 < 0 else {})
        self.stamp("g1")
        for i in range(4): a(f"v_mov_b32 {vr(CL+i)}, -1")
        a(f"s_lshl2_add_u32 {sr(T+2)}, s2, {sr(S_W)}\ns_mul_i32 {sr(T+2)}, {sr(T+2)}, 2560\ns_add_u32 {sr(T+2)}, {sr(T+2)}, {WS_IB}")
        a(f"s_mov_b32 {sr(T+4)}, {f32(LOG2E / 12.0)}\ns_waitcnt vmcnt({self.vm_since(max(last(SK), self.m_fl)) + (last(SK) < self.m_fl)}) lgkmcnt(0)\ns_barrier")
        T2 = T + 2
        clr = [f"buffer_store_dwordx4 {vr(CL,4)}, {vr(V_DMA)}, {sr(S_WS,4)}, {sr(T+2)} offen sc1",
               f"buffer_store_dwordx4 {vr(CL,4)}, {vr(V_DMA)}, {sr(S_WS,4)}, {sr(T+2)} offen offset:1024 sc1",
               f"buffer_store_dwordx2 {vr(CL,2)}, {vr(L8)}, {sr(S_WS,4)}, {sr(T+2)} offen offset:2048 sc1"]
        self.stamp("bar2")
        gp_ = o.get("gatepos", 0)
        cl1 = not o.get("cll", 1)
        self.gemm_u(A_Q, ar, [("a", 18 * j) for j in range(4)], ACC, a_row, lambda j: bq(j, L_QD), lambda u: post(u, True, 0), vm_items=((clr if cl1 else []) + [poll(252)] if gp_ == 0 else clr if cl1 else []), vm0=o.get("pg", 6), vmsp=o.get("csp", 3),
                    lastk=o.get("plk", 26) if gp_ == 0 else 0, at={fl2: flag} if fl2 >= 0 else {})
        self.stamp("g2")
        p = lambda r: vr(r, 2)
        CC = TM
        for j in range(4): a(f"v_dot2_f32_bf16 {vr(CC+j)}, {vr(PK+4*j)}, {vr(XD+4*j)}, 0")
        for i in range(2): a(f"v_dot2_f32_bf16 {vr(CC)}, {vr(PK+16+i)}, {vr(XA+16+i)}, {vr(CC)}")
        for i in range(1, 4):
            for j in range(4): a(f"v_dot2_f32_bf16 {vr(CC+j)}, {vr(PK+4*j+i)}, {vr(XD+4*j+i)}, {vr(CC+j)}")
        QE = VS if gs else TRQ
        a(f"""s_xor_b32 {sr(T+1)}, {sr(self.NB)}, 1
        v_add_u32 {vr(t0)}, {L_XX}, {vr(V_DMA)}
        v_lshl_add_u32 {vr(QE)}, {sr(T+1)}, 12, {vr(t0)}
        v_lshl_add_u32 {vr(QE+1)}, {sr(self.NB)}, 12, {vr(t0)}""")
        self.treduce(CC)
        a(f"""ds_write_b32 {vr(MXA)}, {vr(CC)}
        v_add_u32 {vr(t0)}, {L_XR}, {vr(L8)}
        v_lshl_add_u32 {vr(QE+2)}, {sr(T+1)}, 9, {vr(t0)}
        v_lshl_add_u32 {vr(QE+3)}, {sr(self.NB)}, 9, {vr(t0)}
        v_lshl_add_u32 {vr(QE+4)}, {sr(T+1)}, 8, {vr(MXR)}
        v_lshl_add_u32 {vr(QE+5)}, {sr(self.NB)}, 8, {vr(MXR)}
        s_sub_u32 {sr(T+5)}, 63, {sr(S_H)}
        s_bfm_b64 {sr(T+8,2)}, {sr(T+5)}, 0
""")
        if gp_ == 0:
            a(f"s_cmp_lg_u32 {sr(S_W)}, 0\ns_cbranch_scc1 L_ga_ok")
            gate("L_ga", 252, sr(T + 8, 2), 0)
        else: a(poll(252))
        a("s_waitcnt lgkmcnt(0)\ns_barrier")
        self.stamp("bar3")
        qrd = [f"ds_read_b128 {vr(MS+4*qb,4)}, {vr(QE+4+(qb&1))} offset:{512*(qb>>1)}" for qb in range(4)]
        for qb in range(4):
            qrd += [f"ds_read_b128 {ar(A_Q+18*qb+4*s,4)}, {vr(QE+(qb&1))} offset:{8192*(qb>>1) + 1024*s}" for s in range(4)]
            qrd.append(f"ds_read_b64 {ar(A_Q+18*qb+16,2)}, {vr(QE+2+(qb&1))} offset:{1024*(qb>>1)}")
        if gs:
            tg = self.tile_groups(0) + self.tile_groups(1)
            n0 = o.get("n0", 3)
            for x in tg[:n0]: a(x)
            tg = tg[n0:]
            if gs < 3: a(f"v_mov_b32 {vr(CC+4)}, 1.0")
            mem = []
            qpd = o.get("qpd", 2)
            while tg or qrd:
                it = []
                if tg: it.append(tg.pop(0))
                it += [qrd.pop(0) for _ in range(min(qpd, len(qrd)))]
                mem.append("\n".join(it))
            com = [x for st_ in gst[gs:] for x in st_]
            ev = o.get("gev", 3)
            for i, x in enumerate(com):
                a(x)
                if i % ev == ev - 1 and mem: a(mem.pop(0))
            a(f"""s_mul_i32 {sr(T)}, {sr(WV+1)}, {BLK}
            s_cmp_eq_u32 {sr(S_H)}, 1
            s_cbranch_scc1 L_ln2
            s_add_u32 {sr(T)}, {sr(T)}, {WS_U}""")
            m0_ = list(mem)
            for i in range(18):
                a(f"v_cvt_pk_bf16_f32 {vr(UG+i)}, {vr(H+2*i)}, {vr(H+2*i+1)}")
                if i % o.get("gev0", 2) == 1 and m0_: a(m0_.pop(0))
            for x in m0_: a(x)
            a("s_branch L_ug")
            a.label("L_ln2")
            a(f"s_add_u32 {sr(T)}, {sr(T)}, {WS_G}")
            a.bg, a.every, a.cnt = list(mem), o.get("gev1", 6), 0
            self.ln_f32(H, UG, TM)
            a.flush()
            a.label("L_ug")
            m_t0 = m_t1 = None
        else:
            tg = self.tile_groups(0) + self.tile_groups(1) + self.tile_groups(2)[:8]
            n0 = o.get("n0", 3) if gp_ == 0 else 0
            for x in tg[:n0]: a(x)
            a(f"v_mov_b32 {vr(CC)}, {f32(c1)}\nv_mov_b32 {vr(CC+2)}, {f32(c2)}\nv_mov_b32 {vr(CC+4)}, 1.0")
            nq1, nt1 = (o.get("nq1", 8), o.get("nt1", 5)) if gp_ == 0 else (o.get("nq1", 16), 0)
            bgl = []
            for i in range(max(nq1 // 2, nt1)):
                if 2 * i < nq1: bgl.append(qrd[2 * i] + "\n" + qrd[2 * i + 1])
                if i < nt1: bgl.append(tg[n0 + i])
            tg, qrd = tg[n0 + nt1:], qrd[nq1:]
            a.bg, a.every, a.cnt = bgl, 54 // (len(bgl) + 1), 0
            for x in gst[0]: a(x)
            a.flush()
            if gp_:
                self.stamp("ge0")
                gate("L_ga", 252, sr(T + 8, 2), 0)
                for x in tg[:2]: a(x)
                tg = tg[2:]
            self.stamp("ge1")
            esp = o.get("esp", 3 if gp_ else 4)
            for i in range(36):
                a(gst[1][i])
                if i % esp == 1 and tg: a(tg.pop(0))
                if i % 8 == 3 and qrd: a(qrd.pop(0)); a(qrd.pop(0))
            self.stamp("ge2")
            for x in gst[2]: a(x)
            for i in range(36):
                a(gst[3][i])
                if i % esp == 1 and tg: a(tg.pop(0))
                if i % 8 == 3 and qrd: a(qrd.pop(0)); a(qrd.pop(0))
            assert not tg and not qrd
            idx = [i for i, l in enumerate(a.lines) if l.strip().startswith("buffer_load") and l.rstrip().endswith("lds")]
            m_t0, m_t1 = idx[-18] + 1, idx[-9] + 1
            for x in gst[4]: a(x)
            a(f"""s_mul_i32 {sr(T)}, {sr(WV+1)}, {BLK}
            s_cmp_eq_u32 {sr(S_H)}, 1
            s_cbranch_scc1 L_ln2
            s_add_u32 {sr(T)}, {sr(T)}, {WS_U}""")
            for i in range(18): a(f"v_cvt_pk_bf16_f32 {vr(UG+i)}, {vr(H+2*i)}, {vr(H+2*i+1)}")
            a("s_branch L_ug")
            a.label("L_ln2")
            a(f"s_add_u32 {sr(T)}, {sr(T)}, {WS_G}")
            self.ln_f32(H, UG, TM)
            a.label("L_ug")
        self.stamp("ge3")
        a(f"""s_cmp_eq_u32 {sr(WV)}, 1
        s_cselect_b32 {sr(S_UG)}, {sr(T)}, 0x40000000
        s_waitcnt lgkmcnt(0)""")
        kz = [f"s_waitcnt vmcnt({9 if gs else self.vm_since(m_t0)})"] + self.k_reads(0, V_V)
        if not gs:
            for x in kz: a(x)
        self.ugs = [f"buffer_store_dwordx4 {vr(UG+4*s,4)}, {vr(V_DMA)}, {sr(S_WS,4)}, {sr(S_UG)} offen offset:{1024*s} sc1" for s in range(4)]
        self.ugs.append(f"buffer_store_dwordx2 {vr(UG+16,2)}, {vr(self.VL8)}, {sr(S_WS,4)}, {sr(S_UG)} offen sc1")
        for qb in range(4): a(f"v_pk_add_f32 {p(MS+4*qb)}, {p(MS+4*qb)}, {p(MS+4*qb+2)} neg_lo:[1,1] neg_hi:[1,1]")
        for qb in range(4): a(f"v_add_f32 {vr(self.MK+qb)}, {vr(MS+4*qb)}, {vr(MS+4*qb+1)}")
        a(f"v_lshlrev_b32 {vr(t1)}, 8, v0\nv_lshlrev_b32 v231, 2, v0\nv_add_u32 v231, {L_PC}, v231\nds_write_b32 v231, {vr(t1)}")
        self.loop_init(False)
        if gs:
            self.loop_init(True)
            self.stamp("ug0")
            for x in kz: a(x)
        else: self.n_t1 = self.vm_since(m_t1)
        self.stamp("ug")

    def loop_init(self, part):
        a = self.a
        if part:
            for qb in range(4):
                for i in range(4): a(f"v_mov_b32 {vr(V_CI+4*qb+i)}, {vr(self.MK+qb)}")
            return
        for k in range(7): a(f"v_add_u32 {vr(V_HI+k)}, {2*SLOT}, {vr(V_KA+k if k < 5 else V_VB+k-5)}")
        a(f"v_add_u32 {vr(self.VS0)}, {sr(S_LB)}, {vr(V_DMA)}\nv_add_u32 {vr(self.VS0R)}, {sr(S_LB)}, {vr(self.VL8)}\ns_mov_b32 {sr(S_CNT)}, 0\ns_mov_b32 {sr(S_INC)}, {4*TILE}")
        for i in range(4): a(f"v_mov_b32 {vr(V_L+i)}, 0")
        for i in range(4): a(f"v_mov_b32 {vr(226+i)}, -1")
        if self.o.get("oib", 0):
            T = S_T
            a(f"""s_mul_i32 {sr(S_CL)}, {sr(S_TOWN)}, {TILE}
            s_mul_i32 {sr(T)}, {sr(self.NB)}, {BLK}
            s_lshl_b32 {sr(T+1)}, {sr(self.PT)}, 11
            s_add_u32 {sr(T)}, {sr(T)}, {sr(T+1)}
            s_add_u32 {sr(S_CL)}, {sr(S_CL)}, {sr(T)}
            s_xor_b32 {sr(T+1)}, {sr(S_H)}, 1
            s_sub_u32 {sr(T+1)}, {sr(T+1)}, {sr(S_H)}
            s_mul_i32 {sr(T+1)}, {sr(T+1)}, {TILE}
            s_add_u32 {sr(S_OS)}, {sr(S_CL)}, {sr(T+1)}
            s_cmp_ge_u32 s2, 248
            s_cselect_b32 {sr(T)}, 2.0, 0
            s_mul_i32 {sr(T+1)}, {sr(T)}, {sr(S_H)}
            s_sub_u32 {sr(T)}, {sr(T)}, {sr(T+1)}
            s_add_u32 {sr(S_OS)}, {sr(S_OS)}, {sr(T)}
            s_add_u32 {sr(S_OR)}, {sr(S_CL)}, {sr(T+1)}
            s_lshl_b32 {sr(T)}, {sr(S_REDO)}, 30
            s_or_b32 {sr(S_CL)}, {sr(S_OR)}, {sr(T)}
            s_lshl1_add_u32 {sr(S_CL+1)}, s2, {sr(self.NB)}
            s_mul_i32 {sr(S_CL+1)}, {sr(S_CL+1)}, 5120
            s_add_u32 {sr(S_CL+1)}, {sr(S_CL+1)}, {sr(T)}
            s_lshl_b32 {sr(T)}, {sr(self.PT)}, 9
            s_add_u32 {sr(T)}, {sr(T)}, {WS_IB}
            s_add_u32 {sr(S_CL+1)}, {sr(S_CL+1)}, {sr(T)}""")
        else:
            a(f"""s_lshl2_add_u32 {sr(S_CL)}, s2, {sr(S_W)}
            s_mul_i32 {sr(S_CL)}, {sr(S_CL)}, 2560
            s_lshl_b32 {sr(S_CL+1)}, {sr(S_REDO)}, 30
            s_add_u32 {sr(S_CL)}, {sr(S_CL)}, {sr(S_CL+1)}
            s_add_u32 {sr(S_CL)}, {sr(S_CL)}, {WS_IB}
            s_sub_u32 {sr(S_CL+1)}, {sr(S_CL)}, 2048""")
        a(f"v_mov_b32 v207, {sr(S_N)}\nv_mov_b32 {vr(self.VPL+1)}, 1\nv_lshlrev_b32 v231, 2, v0\nv_add_u32 v231, {L_PC}, v231")
        if self.o.get("xm", 0): a(f"s_add_u32 {sr(S_T)}, {sr(S_N)}, {sr(S_XC)}\nv_writelane_b32 v207, {sr(S_T)}, 1")

    def head(self):
        a, o = self.a, self.o
        gs = o.get("gs", 0)
        a.label("L_go")
        if not gs: self.loop_init(True)
        a("s_waitcnt lgkmcnt(0)\ns_barrier")
        self.stamp("bar5")
        base = self.qk_mfmas(0)
        pick = lambda s_, kb, qb: base[8 * s_ + 4 * kb + qb].replace(vr(V_K + 8 * s_ + 4 * kb, 4) + ",", vr(V_V + 8 * s_ + 4 * kb, 4) + ",").replace(vr(V_K + 32 + 2 * kb, 2) + ",", vr(V_V + 32 + 2 * kb, 2) + ",")
        mf, fin = [], {}
        for qb, s_ in [(0, 0), (0, 1), (0, 2), (0, 3), (1, 0), (1, 1), (0, 4), (1, 2), (1, 3), (2, 0), (2, 1), (1, 4), (2, 2), (2, 3), (3, 0), (3, 1), (2, 4),
                       (3, 2), (3, 3), (3, 4)]:
            for kb in range(2):
                fin[qb, kb] = len(mf)
                mf.append(("s_nop 3\n" if (qb, s_, kb) == (3, 4, 0) else "") + pick(s_, kb, qb))
        enew = [e[1] for g in range(40, 76) for e in self.gaps[g] if e[0] == "E"]
        items = self.e_items(0, enew, lambda qb, j: 0, lambda qb: 999)
        for it, e in zip(items, enew):
            if e[0] == "e": it["am"] = fin[e[1], e[2] // 4]
        dm = []
        for k, (slot, j) in enumerate([(2, j) for j in range(9)] if gs else [(2, 8)] + [(3, j) for j in range(9)]):
            g_ = 1 + o.get("hsp", 4) * k
            if j % 4 == 0: dm.append(dict(t=f"s_add_u32 m0, {sr(S_LB)}, {slot*SLOT + 4096*(j//4)}", c=0, lo=g_ - 1, hi=g_ - 1))
            dm.append(dict(t=f"buffer_load_dwordx4 {vr(V_DMA + j//4)}, {sr(S_XA,4)}, {sr(S_TOFF)} offen offset:{1024*(j%4)} lds", c=8, lo=g_, hi=g_))
            if j == 8: dm.append(dict(t=f"s_add_u32 {sr(S_TOFF)}, {sr(S_TOFF)}, {4*TILE}", c=0, lo=g_ + 1, hi=g_ + 1))
        nh = o.get("ugh", 2) if not o.get("ugl", 1) else 0
        for k in range(nh): dm.append(dict(t=self.ugs[k], c=8, lo=3 + 16 * k, hi=3 + 16 * k))
        if gs:
            k1 = o.get("k1lo", 22)
            kr = [dict(t=("@VM\n" if i == 0 else "") + x, c=4, lo=k1 + i // 2, hi=k1 + i // 2, nds=2) for i, x in enumerate(self.k_reads(1))]
        else:
            a(f"s_waitcnt vmcnt({self.n_t1})")
            kr = [dict(t=x, c=4, lo=i // 2, nds=2) for i, x in enumerate(self.k_reads(1))]
        left = self.pack(mf, items + dm + kr)
        print("head overflow", self.over, "left", len(left))
        left.sort(key=lambda x: not x.startswith("v_exp"))
        last = a.lines[-1].strip()
        for x in left:
            if last.startswith("v_exp") and not x.startswith("v_exp") and (last.split()[1].rstrip(",") + ",") in (x + ","): a("s_nop 0")
            a(x); last = x
        a("s_waitcnt lgkmcnt(0)")

    def tile_groups(self, slot):
        out = []
        for j in range(9):
            g = ""
            if j % 4 == 0: g = f"s_add_u32 m0, {sr(S_LB)}, {slot*SLOT + 4096*(j//4)}\ns_nop 0\n"
            g += f"buffer_load_dwordx4 {vr(V_DMA + j//4)}, {sr(S_XA,4)}, {sr(S_TOFF)} offen offset:{1024*(j%4)} lds"
            if j == 8: g += f"\ns_add_u32 {sr(S_TOFF)}, {sr(S_TOFF)}, {4*TILE}"
            out.append(g)
        return out

    def first_tiles(self):
        pass

    def wfuse(self):
        a = self.a
        BF, ACC, AF, TM, AD = 88, 108, 144, 208, 240
        LA, LB_, LM = 0, 44032, 88064
        T = S_T
        a.label("L_wfuse")
        a(f"{'s_sub_u32 s2, s6, 246' if self.o.get('xm', 0) == 2 else f's_add_u32 s2, s2, {NH}'}\ns_cmp_ge_u32 s2, {NH}\ns_cbranch_scc1 L_end")
        a(f"v_lshrrev_b32 v1, 6, v0\nv_and_b32 v0, 63, v0\nv_readfirstlane_b32 {sr(S_W)}, v1\nv_lshlrev_b32 {vr(V_DMA)}, 4, v0\ns_waitcnt lgkmcnt(0)")
        self.srd(S_WS, 78, 79, WS_END)
        self.srd(S_DB, 76, 77, 256)
        self.wf0 = 0
        self.srd(S_X, 72, 73, 82944)
        self.srd(S_W2, 62, 63, 41472)
        a(f"""s_cmp_eq_u32 s2, {self.wf0}
        s_cselect_b32 {sr(S_W1)}, s64, s70
        s_cselect_b32 {sr(S_W1+1)}, s65, s71
        s_mov_b32 {sr(S_W1+2)}, 41472
        s_mov_b32 {sr(S_W1+3)}, 0x20000
        s_cselect_b32 {sr(T+4)}, 0, 41472""")
        self.dma_rows([(S_W1, "0", LA), (S_W2, "0", LB_)], 19, 288, TM + 4, TM + 5, 11, 3, "L_wf1")
        a(f"s_lshl_b32 {sr(T)}, {sr(S_W)}, 10\ns_add_u32 {sr(T+2)}, {sr(T)}, {sr(T+4)}")
        for k in range(11):
            if k == 10: a(f"s_cmp_ge_u32 {sr(S_W)}, 1\ns_cbranch_scc1 L_wf2")
            a(f"s_add_u32 m0, {sr(T)}, {LM + 4096*k}\ns_add_u32 {sr(T+1)}, {sr(T+2)}, {4096*k}")
            a(f"buffer_load_dwordx4 {vr(V_DMA)}, {sr(S_X,4)}, {sr(T+1)} offen lds")
        a.label("L_wf2")
        self.srd(S_DW, 68, 69, 864)
        a(f"""v_and_b32 {vr(TM)}, 15, v0
        v_lshlrev_b32 {vr(TM+2)}, 4, {vr(TM)}
        v_lshlrev_b32 {vr(TM)}, 1, {vr(TM)}
        v_bfe_u32 {vr(TM+3)}, v0, 4, 1
        v_lshl_add_u32 {vr(TM+1)}, {vr(TM+3)}, 7, {vr(TM)}
        v_lshl_add_u32 {vr(TM+2)}, {vr(TM+3)}, 11, {vr(TM+2)}
        v_and_b32 {vr(TM+3)}, 1, v0
        v_lshlrev_b32 {vr(TM+3)}, 4, {vr(TM+3)}
        v_bfe_i32 {vr(TM+4)}, v0, 1, 1
        v_not_b32 {vr(TM+5)}, {vr(TM+4)}""")
        for k in range(3):
            for i in range(5): a(f"buffer_load_ushort {vr(16+5*k+i)}, {vr(TM+1 if i < 4 else TM)}, {sr(S_DW,4)}, 0 offen offset:{288*k + (32*i if i < 4 else 256)}")
        a(f"s_mov_b32 {sr(T+1)}, {WS_DWF}\ns_waitcnt vmcnt(0)")
        for f in range(15):
            a(f"v_lshlrev_b32 {vr(16+f)}, {vr(TM+3)}, {vr(16+f)}\nv_and_b32 {vr(32+2*f)}, {vr(TM+5)}, {vr(16+f)}\nv_and_b32 {vr(33+2*f)}, {vr(TM+4)}, {vr(16+f)}")
        for r_ in range(8): a(f"buffer_store_dwordx{4 if r_ < 7 else 2} {vr(32+4*r_, 4 if r_ < 7 else 2)}, {vr(TM+2)}, {sr(S_WS,4)}, {sr(T+1)} offen offset:{256*r_} sc1")
        self.tr_addr(AD, LM, False, TM + 8)
        self.row_addr(AD + 3, LA, TM + 8)
        a(f"v_add_u32 {vr(AD+5)}, {LB_}, {vr(AD+3)}")
        a(f"v_lshlrev_b32 {vr(AD+4)}, 3, v0")
        a(f"""s_lshr_b32 {sr(T)}, {sr(S_W)}, 1
        s_lshl_b32 {sr(T)}, {sr(T)}, 6
        s_and_b32 {sr(T+1)}, {sr(S_W)}, 1
        s_lshl_b32 {sr(T+1)}, {sr(T+1)}, 3
        s_add_u32 {sr(T)}, {sr(T)}, {sr(T+1)}
        v_and_b32 {vr(AD+6)}, 3, v0
        v_lshlrev_b32 {vr(AD+6)}, 3, {vr(AD+6)}
        v_add_u32 {vr(AD+7)}, {sr(T)}, {vr(AD+6)}""")
        for k in range(3): a(f"v_add_u32 {vr(AD+k)}, {vr(AD+7)}, {vr(AD+k)}")
        a(f"s_mov_b32 {sr(S_CNT)}, {sr(S_W)}")
        a("s_waitcnt vmcnt(0)\ns_barrier")
        a.label("L_wfl")
        for s in self.tr_reads(AD, vr)(0, BF): a(s)
        a("s_waitcnt lgkmcnt(0)")
        self.gemm(self.row_reads(AD + 3), BF, ACC, AF)
        for i in range(18): a(f"v_cvt_pk_bf16_f32 {vr(BF+i)}, {vr(ACC+2*i)}, {vr(ACC+2*i+1)}")
        a(f"s_cmp_eq_u32 s2, {self.wf0}\ns_cbranch_scc0 L_wf3")
        self.gemm(self.row_reads(AD + 5), BF, ACC, AF)
        for i in range(18): a(f"v_cvt_pk_bf16_f32 {vr(BF+i)}, {vr(ACC+2*i)}, {vr(ACC+2*i+1)}")
        a.label("L_wf3")
        a(f"""s_mul_i32 {sr(T)}, {sr(S_CNT)}, {BLK}
        s_add_u32 {sr(T)}, {sr(T)}, {sr(T+4)}
        s_add_u32 {sr(T)}, {sr(T)}, {WS_WF}
        s_add_u32 {sr(T+1)}, {sr(T)}, 4096""")
        self.store_block(BF, V_DMA, AD + 4, S_WS, T, T + 1, "sc1")
        for k in range(3): a(f"v_add_u32 {vr(AD+k)}, 128, {vr(AD+k)}")
        a(f"s_add_u32 {sr(S_CNT)}, {sr(S_CNT)}, 4\ns_cmp_lt_u32 {sr(S_CNT)}, 8\ns_cbranch_scc1 L_wfl")
        for k in range(3): a(f"v_sub_u32 {vr(AD+k)}, {vr(AD+k)}, {vr(AD+6)}")
        a(f"s_cmp_eq_u32 {sr(S_CNT)}, 8\ns_cbranch_scc1 L_wfl")
        a(f"""s_waitcnt vmcnt(0)
        s_barrier
        s_cmp_lg_u32 {sr(S_W)}, 0
        s_cbranch_scc1 L_end
        s_mov_b32 {sr(T+2)}, 0""")
        a.label("L_wtag")
        a(f"""buffer_load_dword {vr(TM)}, off, {sr(S_DB,4)}, 0 sc1
        s_add_u32 {sr(T+2)}, {sr(T+2)}, 1
        s_waitcnt vmcnt(0)
        v_readfirstlane_b32 {sr(T)}, {vr(TM)}
        s_cmp_lt_u32 {sr(T+2)}, 0x40000
        s_cselect_b32 {sr(T)}, {sr(T)}, 1
        s_cmp_eq_u32 {sr(T)}, 0
        s_cbranch_scc1 L_wtag
        v_lshlrev_b32 {vr(TM+1)}, 2, v0
        s_lshl_b32 {sr(T)}, s2, 8
        s_add_u32 {sr(T)}, {sr(T)}, {WS_F + 502*256}
        buffer_store_dword {vr(TM)}, {vr(TM+1)}, {sr(S_WS,4)}, {sr(T)} offen sc1
        s_endpgm""")

    def tstore(self):
        a = self.a
        _, n, fl, allwg, off = self.o["tst"]
        if not allwg: a(f"s_cmp_lg_u32 s2, 101\ns_cbranch_scc1 L_tst")
        a(f"s_waitcnt vmcnt(0)\ns_lshl2_add_u32 s96, s2, {sr(S_W)}\ns_mul_i32 s96, s96, {1024*max(n,1)}\ns_add_u32 s96, s96, {off}")
        k = len(self.stnames)
        a(f"s_memtime s[92:93]")
        for i in range(n): a(f"buffer_store_dwordx4 v[252:255], {vr(V_DMA)}, {sr(S_WS,4)}, s96 offen offset:{1024*i} {fl}")
        if n == 0: a(f"buffer_load_dwordx4 v[252:255], {vr(V_DMA)}, {sr(S_WS,4)}, s96 offen {fl}")
        a(f"s_waitcnt vmcnt(0)\ns_memtime s[94:95]\ns_waitcnt lgkmcnt(0)")
        a.label("L_tst")

    def dump_stamps(self):
        a = self.a
        if self.o.get("tst") and self.o["tst"][0] == "end": self.tstore()
        if self.o.get("census"):
            key, mode, m_, v_ = self.o["census"]
            a(f"""s_cmp_lg_u32 s2, 100
            s_cbranch_scc1 L_end
            v_lshlrev_b32 v16, 2, v0
            s_mov_b32 s4, {WS_DBG}""")
            for k in range(4): a(f"buffer_load_dword v{20+k}, v16, {sr(S_WS,4)}, s4 offen offset:{256*k} sc1")
            a(f"s_waitcnt vmcnt(0)\nv_readlane_b32 s8, v21, 36\ns_mov_b32 s9, 0x80000000\ns_mov_b32 s10, 0x7fffffff\ns_mov_b32 s11, 0\ns_mov_b32 s17, 0")
            for k in range(4):
                a(f"s_mov_b32 s5, 0")
                a.label(f"L_cs{k}")
                a(f"""v_readlane_b32 s6, v{20+k}, s5
                s_add_u32 s7, s5, {64*k}
                s_sub_u32 s6, s6, s8
                s_and_b32 s16, s7, {m_}
                s_cmp_lg_u32 s16, {v_}
                s_cbranch_scc1 L_cn{k}
                s_min_i32 s10, s10, s6
                s_cmp_gt_i32 s6, {self.o.get("thr", 150)}
                s_addc_u32 s17, s17, 0
                s_cmp_gt_i32 s6, s9
                s_cselect_b32 s9, s6, s9
                s_cselect_b32 s11, s7, s11""")
                a.label(f"L_cn{k}")
                a(f"s_add_u32 s5, s5, 1\ns_cmp_lt_u32 s5, {64 if k < 3 else 60}\ns_cbranch_scc1 L_cs{k}")
            a({"arg": "s_lshl_b32 s6, s11, 3", "range": "s_sub_u32 s6, s9, s10\ns_lshl_b32 s6, s6, 1", "zero": "s_mov_b32 s6, 0", "cnt": "s_lshl_b32 s6, s17, 4",
               "max": "s_lshl_b32 s6, s9, 1"}[mode])
            a("s_add_u32 s6, s6, 1000\ns_memrealtime s[4:5]\ns_waitcnt lgkmcnt(0)\ns_add_u32 s6, s6, s4")
            a.label("L_echo")
            a("s_memrealtime s[4:5]\ns_waitcnt lgkmcnt(0)\ns_sub_u32 s7, s6, s4\ns_cmp_gt_i32 s7, 0\ns_cbranch_scc1 L_echo")
            return
        if self.o.get("echo"):
            if self.o["echo"][0] == "skew":
                a(f"v_mov_b32 v16, 4\nbuffer_load_dword v17, v16, {sr(S_DB,4)}, 0 offen sc1\ns_waitcnt vmcnt(0)\nv_readfirstlane_b32 s98, v17\ns_not_b32 s98, s98")
                x, y = 98, S_ST + 2 * self.stnames.index(self.o["echo"][1])
            elif self.o.get("tst"): x, y = 92, 94
            else:
                x, y = [S_ST + 2 * self.stnames.index(n) for n in self.o["echo"]]
            lo, hi = self.o.get("echo_ids", (0, 999))
            a(f"""s_cmp_eq_u32 {sr(S_VAL)}, 0
            s_cbranch_scc1 L_end
            s_cmp_lt_u32 s2, {lo}
            s_cbranch_scc1 L_end
            s_cmp_ge_u32 s2, {hi}
            s_cbranch_scc1 L_end
            s_and_b32 s6, s2, {self.o.get("echo_m", 0)}
            s_cmp_lg_u32 s6, {self.o.get("echo_v", 0)}
            s_cbranch_scc1 L_end
            s_memrealtime s[4:5]
            s_waitcnt lgkmcnt(0)
            s_sub_u32 s6, {sr(y)}, {sr(x)}
            s_mul_i32 s6, s6, {self.o.get("echo_mul", 1)}
            s_lshr_b32 s6, s6, {self.o.get("echo_shr", 0)}
            s_add_u32 s6, s6, {self.o.get("echo_add", 0)}
            s_add_u32 s6, s6, s4""")
            a.label("L_echo")
            a("s_memrealtime s[4:5]\ns_waitcnt lgkmcnt(0)\ns_sub_u32 s7, s6, s4\ns_cmp_gt_i32 s7, 0\ns_cbranch_scc1 L_echo")
            return
        if self.o.get("dbgst"):
            a("s_waitcnt vmcnt(0)")
            self.stamp("done")
            a("s_waitcnt lgkmcnt(0)\ns_mov_b64 exec, 1")
            slots = [1, 2, 3, 4, 5, 6, 7, 9, 11, 12, 13, 14, 15]
            a(f"s_not_b32 {sr(S_T)}, {sr(S_ST)}\nv_mov_b32 v16, {sr(S_T)}\nv_mov_b32 v17, 4\nbuffer_atomic_umax v16, v17, {sr(S_DB,4)}, 0 offen sc1")
            for i in range(min(self.nst, 12)):
                a(f"v_mov_b32 v{18+2*i}, {sr(S_ST+2*i)}\nv_mov_b32 v{19+2*i}, {4*slots[i+1]}\nbuffer_atomic_umax v{18+2*i}, v{19+2*i}, {sr(S_DB,4)}, 0 offen sc1")
            return
        if not self.o.get("stamps"): return
        T = S_T
        a(f"""s_waitcnt lgkmcnt(0)
        s_lshl_b32 {sr(T)}, s2, 2
        s_add_u32 {sr(T)}, {sr(T)}, {sr(S_W)}
        s_lshl_b32 {sr(T)}, {sr(T)}, 7
        s_add_u32 {sr(T)}, {sr(T)}, {WS_DBG}
        v_mov_b32 v1, 0""")
        for i in range(26): a(f"v_mov_b32 {vr(16+i)}, {sr(S_ST+i)}")
        for i in range(7): a(f"buffer_store_dwordx4 {vr(16+4*i,4)}, v1, {sr(S_WS,4)}, {sr(T)} offen offset:{16*i}")

    def build(self):
        a = self.a
        self.stnames = []
        a.raw(f"; @launch grid=({NWG},1,1) block=(256,1,1) lds={LDS_TOTAL}")
        a.raw('.amdgcn_target "amdgcn-amd-amdhsa--gfx950"')
        a.raw(".text")
        a.raw(f".globl {NAME}")
        a.raw(".p2align 12")
        self.entry()
        self.phase_a()
        self.rest()
        a.label("L_fin")
        self.dump_stamps()
        a.label("L_end")
        a("s_endpgm")
        self.poll2()
        if not self.o.get("touch", 1): self.rare()
        a.label("L_dummy")
        self.fallback()
        self.wfuse()
        a.raw('.section .rodata,"a"')
        a.raw(".p2align 6")
        a.raw(kernel_desc(NAME, 512, 102, 256))
        return a.text()

    def S(self, buf, qb, i=0): return V_S + buf * 32 + qb * 8 + i
    def P(self, buf, qb, i=0): return V_P + buf * 16 + qb * 4 + i

    def k_reads(self, slot, V_K=V_K):
        ka, so = (V_KA, slot * SLOT) if slot < 2 else (V_HI, (slot - 2) * SLOT)
        out = [f"ds_read_b128 {vr(V_K+8*s+4*kb,4)}, {vr(ka)} offset:{so + 2048*s + 256*kb}" for s in range(4) for kb in range(2)]
        out += [f"ds_read_b64 {vr(V_K+32+2*kb,2)}, {vr(ka+1)} offset:{so + 8192 + 512*kb}" for kb in range(2)]
        return out

    def v_reads(self, slot, dst=V_V):
        (va, vr_, vb), so = ((V_VA, V_VR, V_VB), slot * SLOT) if slot < 2 else ((V_HI + 2, V_HI + 4, V_HI + 5), (slot - 2) * SLOT)
        out = []
        for T in range(9):
            for u in range(2):
                if T < 8: out.append(f"ds_read_b64_tr_b16 {vr(dst+4*T+2*u,2)}, {vr((va if T < 4 else vb)+(T&1))} offset:{so + 2048*((T>>1)&1) + 256*u}")
                else: out.append(f"ds_read_b64_tr_b16 {vr(dst+4*T+2*u,2)}, {vr(vr_)} offset:{so + 8192 + 512*u}")
        return out

    def qk_mfmas(self, buf, czero=False):
        out = []
        for s in range(5):
            for kb in range(2):
                for qb in range(4):
                    d = vr(self.S(buf, qb, 4 * kb), 4)
                    c = ("0" if czero else vr(V_CI + 4 * qb, 4)) if s == 0 else d
                    if s < 4: out.append(f"v_mfma_f32_16x16x32_bf16 {d}, {vr(V_K+8*s+4*kb,4)}, {ar(A_Q+18*qb+4*s,4)}, {c}")
                    else: out.append(f"v_mfma_f32_16x16x16_bf16 {d}, {vr(V_K+32+2*kb,2)}, {ar(A_Q+18*qb+16,2)}, {c}")
        return out

    def pv_mfmas(self, buf, czero=False):
        out = []
        for T in range(9):
            for qb in range(4):
                o = ar(A_O + 36 * qb + 4 * T, 4)
                out.append(f"v_mfma_f32_16x16x32_bf16 {o}, {vr(V_V+4*T,4)}, {vr(self.P(buf,qb),4)}, {'0' if czero else o}")
        return out

    def plan(self):
        o = self.o
        n = 76
        fixed = [None] * n
        for i, g in enumerate(range(1, 36, 2)): fixed[g] = ("V", i)
        for i, g in enumerate([41, 44, 47, 50, 53, 56, 59, 62, 65, 68]): fixed[g] = ("K", i)
        for i, g in enumerate([42, 46, 49, 52, 55, 58, 61, 64, 67]): fixed[g] = ("D", i)
        exps = [(qb, j) for qb in range(4) for j in range(8)]
        start = 40
        order = [(start + k) % n for k in range(n)]
        free_idx = [k for k, g in enumerate(order) if fixed[g] is None]
        nsm = len(free_idx) - 32
        cand = free_idx[6:-2]
        sm_set = set(free_idx[-2:]) | {cand[int((i + 0.5) * len(cand) / (nsm - 2))] for i in range(nsm - 2)}
        nds = sum(1 for f in fixed if f is not None and f[0] != "D")
        ls = o.get("lsum", "add")
        over = max(0, (48 if ls == "add" else 32) - nds - 2 * nsm)
        ocand = [k for k, g in enumerate(order) if k >= 20 and (fixed[g] is None or fixed[g][0] != "D")]
        o_set = {ocand[int((i + 0.5) * len(ocand) / over)] for i in range(over)}
        later = []
        gaps = [[] for _ in range(n)]
        small, pend, ei = [], [], 0
        for k, g in enumerate(order):
            new = (start + k) < n
            small.extend(pend); pend = later; later = []
            small.sort(key=lambda t: 0 if t[0] == "c" else 1)
            f = fixed[g]
            want = 0
            if f is not None:
                gaps[g].append((f[0], f[1], None))
                if f[0] == "D": continue
                want = 1
            elif k in sm_set: want = 2
            else:
                qb, j = exps[ei]; ei += 1
                gaps[g].append(("E", ("e", qb, j), new))
                if j & 1: pend.append(("c", qb, j // 2))
                if ls == "add": pend.append(("a", qb, j))
                elif j & 1 and ls == "pk": pend.append(("p", qb, j // 2))
            if k in o_set: want += 1
            if k == n - 1: want = 99
            for _ in range(want):
                if small:
                    it = small.pop(0)
                    gaps[g].append(("E", it, new))
                    if it[0] == "c" and ls == "dot": (small if k == n - 1 else pend).append(("d", it[1], it[2]))
        assert not small and not pend and ei == 32
        self.gaps = gaps

    def pack(self, mf, items):
        a = self.a
        where, order, done, nvm, mpos = {}, [], 0, 0, []
        isds = lambda it: "ds_" in it["t"]
        self.over = 0
        for g, m in enumerate(mf):
            assert not any(it.get("need", 999) <= g and i not in where for i, it in enumerate(items)), g
            idx = [k for k, n_ in enumerate(order) if n_ <= g]
            if idx and max(idx) + 1 > done:
                a(f"s_waitcnt lgkmcnt({min(15, len(order) - 1 - max(idx))})"); done = max(idx) + 1
            if m.startswith("@W"):
                w_, m = m.split("\n", 1)
                a(f"s_waitcnt lgkmcnt({min(15, int(w_[2:]) + len(order))})")
            a(m)
            mpos.append(len(a.lines))
            cap, pick = 8, []
            for phase in (0, 1):
                for i, it in enumerate(items):
                    if i in where or it.get("lo", 0) > g: continue
                    if "am" in it and (it["am"] >= g or len(a.lines) - mpos[it["am"]] < 8): continue
                    d = it.get("dep")
                    if d is not None and not all(where.get(x, 999) < g for x in d): continue
                    if (phase == 0 and it.get("hi", 999) <= g) or (phase == 1 and it["c"] <= cap):
                        if it["t"].startswith("buffer") and pick and any(items[x]["c"] for x in pick) and phase == 1: continue
                        if isds(it) and sum(isds(items[x]) for x in pick) >= it.get("nds", 1) and phase == 1: continue
                        pick.append(i); where[i] = g; cap -= it["c"]
            key = lambda i: 0 if items[i]["c"] == 0 else 1 if isds(items[i]) else 2 if items[i]["t"].startswith("buffer") else 3
            for i in sorted(pick, key=key):
                a(items[i]["t"].replace("@VM", f"s_waitcnt vmcnt({nvm})"))
                nvm += items[i]["t"].startswith("buffer")
                if isds(items[i]): order.append(items[i].get("need", 999))
            self.over += max(0, -cap)
        return [it["t"] for i, it in enumerate(items) if i not in where]

    def e_items(self, buf, lst, lo, hi):
        items, idx = [], {}
        for it in lst:
            kind, qb, j = it
            d = dict(t=self.etext(buf, it), c=8 if kind == "e" else 4)
            if kind == "e": d["lo"] = lo(qb, j); d["hi"] = hi(qb) - 2 - (7 - j)
            else:
                need = [("e", qb, j)] if kind == "a" else [("c", qb, j)] if kind == "d" else [("e", qb, 2 * j), ("e", qb, 2 * j + 1)]
                d["dep"] = [idx[x] for x in need if x in idx]
                if kind == "c": d["hi"] = hi(qb) - (3 - j) // 2
            idx[it] = len(items); items.append(d)
        return items

    def etext(self, buf, it):
        kind, qb, j = it
        s = self.S(buf, qb)
        if kind == "e": return f"v_exp_f32 {vr(s+j)}, {vr(s+j)}"
        if kind == "d": return f"v_dot2_f32_bf16 {vr(V_L+qb)}, {vr(self.P(buf, qb, j))}, v227, {vr(V_L+qb)}"
        if kind == "p": return f"v_pk_add_f32 {vr(208+2*qb,2)}, {vr(208+2*qb,2)}, {vr(s+2*j,2)}"
        if kind == "a": return f"v_add_f32 {vr(V_L+qb)}, {vr(V_L+qb)}, {vr(s+j)}"
        return f"v_cvt_pk_bf16_f32 {vr(self.P(buf, qb, j))}, {vr(s+2*j)}, {vr(s+2*j+1)}"

    def period(self, p, qk=True, pv=True, e_old=True, e_new=True, kread=True, vread=True, dma=True, extra={}, dsub=None, ksub=None, vm=9, halves=(0, 1), inc=None):
        a = self.a
        bn, bo = (p + 1) & 1, p & 1
        qk_, pv_ = self.qk_mfmas(bn), self.pv_mfmas(bo, czero=(p == 0))
        qo, po = self.o.get("qkord", 1), self.o.get("pvord", 0)
        if qo == 1: qk_ = [qk_[8 * s_ + 4 * kb + qb] for kb in range(2) for qb in range(4) for s_ in range(4)] + qk_[32:]
        if qo == 2: qk_ = [qk_[8 * s_ + 4 * kb + qb] for qb in range(4) for kb in range(2) for s_ in range(4)] + qk_[32:]
        if qo == 3: qk_ = [qk_[8 * s_ + 4 * kb + qb] for qb in range(4) for s_ in range(4) for kb in range(2)] + qk_[32:]
        if po == 1: pv_ = [pv_[4 * T_ + qb] for qb in range(4) for T_ in range(9)]
        mf = qk_ + pv_
        kr, vrd = self.k_reads((p + 2) % RING), self.v_reads(p % RING)
        slot = p % RING
        n = 76
        sc = [[] for _ in range(n)]
        dgs = [g for g in range(n) if any(e[0] == "D" for e in self.gaps[g])]
        if dma:
            for j, g in enumerate(dgs):
                if j % 4 == 0: sc[g - 1].append(f"s_add_u32 m0, {sr(S_LB)}, {slot*SLOT + 4096*(j//4)}")
            sc[dgs[-1] + 1].append(f"s_add_u32 {sr(S_TOFF)}, {sr(S_TOFF)}, {inc or 4*TILE}")
        w = []
        if kread: w.append(f"vmcnt({vm})")
        if pv: w.append("lgkmcnt(0)")
        if w: sc[39].append("s_waitcnt " + " ".join(w))
        if kread: sc[75].append("s_waitcnt lgkmcnt(0)")
        for half in halves:
            rng = range(0, 40) if half == 0 else range(40, 76)
            on = qk if half == 0 else pv
            if not on:
                ds, mem, val, post = [], [], [], []
                for g in rng:
                    for s_ in sc[g]:
                        (post if s_.startswith("s_waitcnt") else mem).append(s_)
                    if g in extra: mem.append(extra[g])
                    for kind, d, new in self.gaps[g]:
                        if kind == "V" and vread: ds.append(vrd[d])
                        elif kind == "K" and kread: ds.append(kr[d])
                        elif kind == "D" and dma: mem.append(f"buffer_load_dwordx4 {vr(V_DMA + d//4)}, {sr(S_XA,4)}, {sr(S_TOFF)} offen offset:{1024*(d%4)} lds")
                        elif kind == "E" and ((new and e_new) or (not new and e_old)): val.append((d, self.etext(bn if new else bo, d)))
                if half == 1: a("s_nop 3")
                seq, pend = [], list(val)
                while pend:
                    k = 0
                    if seq and seq[-1][0][0] == "e":
                        le = seq[-1][0]
                        dep = lambda it: it[0][1] == le[1] and ((it[0][0] == "a" and it[0][2] == le[2]) or (it[0][0] == "c" and it[0][2] == le[2] // 2))
                        have = {x[0] for x in seq}
                        ok = lambda it: it[0][0] == "e" or (("e", it[0][1], it[0][2]) in have if it[0][0] == "a" else (("e", it[0][1], 2*it[0][2]+1) in have)) or not any(x[0][0] == "e" and x[0][1] == it[0][1] and (x[0][2] == it[0][2] if it[0][0] == "a" else x[0][2] // 2 == it[0][2]) for x in pend)
                        while k < len(pend) and (dep(pend[k]) or not ok(pend[k])): k += 1
                        if k == len(pend): seq.append((("n", 0, 0), "s_nop 0")); k = 0
                    seq.append(pend.pop(k))
                step = max(1, len(seq) // (len(mem) + len(ds) + 1))
                allm = ds + mem
                for x in allm[:6]: a(x)
                allm = allm[6:]
                for i_, (d, t_) in enumerate(seq):
                    a(t_)
                    if allm and i_ % step == step - 1:
                        x = allm.pop(0); a(x)
                        if x.startswith("s_add_u32 m0"): a("s_nop 0")
                for x in allm:
                    a(x)
                    if x.startswith("s_add_u32 m0"): a("s_nop 0")
                for x in post: a(x)
                if half == 0: a("s_nop 1")
                continue
            abl = self.o.get("abl", "") if 1 <= p <= 4 else ""
            for g in rng:
                if not ("Q" in abl and g < 40 or "P" in abl and g >= 40): a(mf[g])
                for s_ in sc[g]: a(s_)
                if g in extra: a(extra[g])
                for kind, d, new in self.gaps[g]:
                    if kind in abl or (kind == "E" and d[0] in abl): continue
                    if kind == "V":
                        if vread: a(vrd[d])
                    elif kind == "K":
                        if kread: a(kr[d])
                        elif ksub: a(ksub.pop(0))
                    elif kind == "D":
                        if dma: a(f"buffer_load_dwordx4 {vr(V_DMA + d//4)}, {sr(S_XA,4)}, {sr(S_TOFF)} offen offset:{1024*(d%4)} lds")
                        elif dsub: a(dsub.pop(0))
                    elif (new and e_new) or (not new and e_old):
                        a(self.etext(bn if new else bo, d))

    MK, VO, VO8, GA, VS0, VS0R, VDW, VLW, VL8, VST, VPL = 232, 236, 9, 238, 250, 251, 244, 245, 246, 247, 248
    NB, PT, E_U, E_G, RS3, E_COL, RS1, RS2, MP1 = 3, 4, 5, 6, 7, 43, 36, 37, 38
    G0, GM, GP, U, DWT = 16, 26, 36, 80, (90, 252, 96, 100, 112, 116, 104, 94)
    XRS = (192, 196, 46)
    frag = staticmethod(lambda f, b: [(f, b + 4 * s) for s in range(5)])
    WD = [[("a", 216 + 4 * s) for s in range(5)], [("a", 234 + 4 * s) for s in range(5)], [("v", 208 + 4 * s) for s in range(5)]]
    WO = [[("a", 4 * s) for s in range(5)], [("a", 18 + 4 * s) for s in range(5)], [("a", 36), ("a", 40), ("a", 44), ("a", 48), ("a", 252)]]
    X1B = 98304
    X2O = L_SP - X1B
    L_L = L_SP + 9216

    def epi_setup(self):
        a = self.a
        T = S_T
        NB, PT, VO, GA = self.NB, self.PT, self.VO, self.GA
        r, g4, x, y, big, r0 = 52, 53, 54, 55, 56, 57
        a(f"""s_lshr_b32 {sr(NB)}, {sr(S_W)}, 1
        s_and_b32 {sr(PT)}, {sr(S_W)}, 1
        v_and_b32 {vr(r0)}, 15, v0
        v_lshrrev_b32 {vr(g4)}, 4, v0
        v_mul_u32_u24 {vr(x)}, 288, {vr(r0)}
        v_mov_b32 {vr(big)}, 0x40000000
        s_lshl_b32 {sr(T)}, {sr(S_TOWN)}, 1
        s_add_u32 {sr(T)}, {sr(T)}, {sr(NB)}
        s_lshl_b32 {sr(T)}, {sr(T)}, 4
        v_add_u32 {vr(r)}, {sr(T)}, {vr(r0)}
        s_mul_i32 {sr(T+1)}, {sr(S_TOWN)}, {TILE}
        s_mul_i32 {sr(T+2)}, {sr(PT)}, {BLK}
        v_add_u32 {vr(x)}, {sr(T+1)}, {vr(x)}
        s_sub_u32 {sr(T+3)}, {BLK}, {sr(T+2)}
        v_add_u32 {vr(y)}, {sr(T+3)}, {vr(x)}
        v_add_u32 {vr(x)}, {sr(T+2)}, {vr(x)}
        v_lshl_add_u32 {vr(VO)}, {vr(g4)}, 4, {vr(x)}
        v_lshl_add_u32 {vr(VO+1)}, {vr(g4)}, 4, {vr(y)}
        v_lshl_add_u32 {vr(self.VO8)}, {vr(g4)}, 3, {vr(x)}
        s_lshl_b32 {sr(T+3)}, {sr(PT)}, 11
        s_add_u32 {sr(self.E_U)}, {sr(T+3)}, {WS_U}
        s_add_u32 {sr(self.E_G)}, {sr(T+3)}, {WS_G}
        s_sub_u32 {sr(T+3)}, 4096, {sr(T+3)}
        s_lshl_b32 {sr(T)}, {sr(PT)}, 11
        s_add_u32 {sr(T)}, {sr(T)}, {WS_DWF}
        v_lshrrev_b32 {vr(x)}, 2, {vr(r0)}
        v_cmp_eq_u32 vcc, {vr(x)}, {vr(g4)}
        v_lshl_add_u32 {vr(self.VDW)}, {vr(r0)}, 4, {sr(T)}
        s_nop 0
        v_cndmask_b32 {vr(self.VDW)}, {vr(big)}, {vr(self.VDW)}, vcc
        s_lshl_b32 {sr(self.E_COL)}, {sr(S_W)}, 6
        v_lshlrev_b32 {vr(self.VL8)}, 3, v0
        v_add_u32 {vr(self.VL8)}, 4096, {vr(self.VL8)}
        v_add_u32 {vr(self.VST)}, {sr(S_LB)}, {vr(V_DMA)}
        v_add_u32 {vr(self.VST)}, {2*SLOT}, {vr(self.VST)}
        s_xor_b32 {sr(T)}, {sr(NB)}, 1
        v_xor_b32 {vr(x)}, {sr(T)}, {vr(g4)}
        v_lshl_add_u32 {vr(x)}, {vr(x)}, 4, {vr(r0)}
        s_lshl_b32 {sr(T)}, {sr(S_W)}, 2
        s_add_u32 {sr(T)}, {sr(T)}, {self.L_L}
        v_lshl_add_u32 {vr(self.VLW)}, {vr(x)}, 4, {sr(T)}
        s_sub_u32 {sr(self.MP1)}, 0, {sr(PT)}
        s_mov_b32 {sr(self.MP1+1)}, {sr(self.MP1)}""")
        for k, (d, base) in enumerate(((self.RS1, 3 * SLOT), (self.RS2, 2 * SLOT), (self.RS3, 2 * SLOT))):
            a(f"s_xor_b32 {sr(T)}, {sr(S_W)}, {k+1}\ns_mul_i32 {sr(T)}, {sr(T)}, {TILE}\ns_add_u32 {sr(d)}, {sr(T)}, {base}")
        a(f"""s_mul_i32 {sr(T)}, {sr(S_B)}, 4000
        s_add_u32 {sr(T+1)}, {sr(T)}, 3999
        s_mov_b32 {sr(T+2)}, {BLK}""")
        for k, dr in enumerate((0, -1, 1)):
            m = GA + 2 * k
            if dr: a(f"v_add_u32 {vr(m)}, {dr}, {vr(r)}\nv_cmp_eq_u32 vcc, {sr(T if dr < 0 else T+1)}, {vr(r)}")
            src = m if dr else r
            a(f"""v_lshrrev_b32 {vr(x)}, 4, {vr(src)}
            v_and_b32 {vr(y)}, 15, {vr(src)}
            v_mul_lo_u32 {vr(x)}, {vr(x)}, {sr(T+2)}
            v_lshl_add_u32 {vr(y)}, {vr(g4)}, 4, {vr(y)}
            v_lshl_add_u32 {vr(m)}, {vr(y)}, 4, {vr(x)}
            v_lshl_add_u32 {vr(m+1)}, {vr(y)}, 3, {vr(x)}
            v_add_u32 {vr(m+1)}, {sr(T+3)}, {vr(m+1)}""")
            if dr: a(f"v_cndmask_b32 {vr(m)}, {vr(m)}, {vr(big)}, vcc\nv_cndmask_b32 {vr(m+1)}, {vr(m+1)}, {vr(big)}, vcc")

    def conv_loads(self):
        GA = self.GA
        L = []
        for dst, m, so in ((self.GM, GA + 2, 1), (self.G0, GA, 1), (self.GP, GA + 4, 1), (self.U, GA, 0)):
            for k in range(2): L.append(f"buffer_load_dwordx4 {vr(dst+4*k,4)}, {vr(m)}, {sr(S_WS,4)}, {sr(self.E_U+so)} offen offset:{1024*k}")
            L.append(f"buffer_load_dwordx2 {vr(dst+8,2)}, {vr(m+1)}, {sr(S_WS,4)}, {sr(self.E_U+so)} offen")
        return L

    def rg(self, e, n): return (ar if e[0] == "a" else vr)(e[1], n)

    def w8_loads(self, regs, so):
        return [f"buffer_load_dwordx4 {self.rg(regs[s],4)}, {vr(V_DMA)}, {sr(S_WS,4)}, {sr(so)} offen offset:{1024*s}" for s in range(4)] + \
               [f"buffer_load_dwordx2 {self.rg(regs[4],2)}, {vr(self.VL8)}, {sr(S_WS,4)}, {sr(so)} offen"]

    def w_reads(self, regs, off):
        L = []
        for tt in range(2):
            L += [f"ds_read_b128 {self.rg(regs[tt][s],4)}, {vr(self.VS0)} offset:{off + BLK*tt + 1024*s}" for s in range(4)]
            L.append(f"ds_read_b64 {self.rg(regs[tt][4],2)}, {vr(self.VS0R)} offset:{off + BLK*tt}")
        return L

    def xa_srd(self):
        T = S_T
        return f"""s_mul_i32 {sr(T)}, {sr(S_B)}, {NT}
        s_mul_i32 {sr(T+1)}, {sr(S_H)}, 63
        s_add_u32 {sr(T+1)}, {sr(T+1)}, {sr(T)}
        s_mul_i32 {sr(T+1)}, {sr(T+1)}, {TILE}
        s_add_u32 {sr(S_XA)}, {sr(S_WS)}, {sr(T+1)}
        s_addc_u32 {sr(S_XA+1)}, {sr(S_WS+1)}, 0
        s_sub_u32 {sr(T+2)}, 63, {sr(S_H)}
        s_mul_i32 {sr(S_XA+2)}, {sr(T+2)}, {TILE}
        s_mov_b32 {sr(S_XA+3)}, 0x20000"""

    def rest(self):
        a, o = self.a, self.o
        T = S_T
        VPL = self.VPL
        self.plan()
        self.head()
        self.stamp("loop")
        if o.get("sktest") or o.get("echo") and o["echo"][0] == "skew":
            a(f"s_waitcnt lgkmcnt(0)\ns_mov_b64 exec, 1\ns_not_b32 s98, {sr(S_ST)}\nv_mov_b32 v226, s98\nv_mov_b32 v227, 4\ns_cmp_lg_u32 {sr(S_W)}, 0\ns_cbranch_scc1 L_sk\nbuffer_atomic_umax v226, v227, {sr(S_DB,4)}, 0 offen sc1\ns_waitcnt vmcnt(0)\nL_sk:\ns_mov_b64 exec, -1\ns_nop 3")
            self.stamp("sk")
        nh = o.get("ugh", 2)
        ex = {2 + 12 * k: x for k, x in enumerate(self.ugs[nh:])}
        ugl = o.get("ugl", 1)
        CL = 226
        SI = S_OUT if o.get("oib", 0) else S_WS
        clr = [f"buffer_store_dwordx4 {vr(CL,4)}, {vr(V_DMA)}, {sr(SI,4)}, {sr(S_CL)} offen sc1",
               f"buffer_store_dwordx4 {vr(CL,4)}, {vr(V_DMA)}, {sr(SI,4)}, {sr(S_CL)} offen offset:1024 sc1",
               f"buffer_store_dwordx2 {vr(CL,2)}, {vr(self.VL8)}, {sr(S_WS,4)}, {sr(S_CL+1)} offen sc1"]
        cll = o.get("cll", 1)
        ex0 = {69: self.ugs[0], 71: clr[0]} if cll else {69: self.ugs[0]}
        if o.get("gs", 0):
            for j, x in enumerate(self.tile_groups(3)):
                g_ = o.get("t3g", 2) + 4 * j
                x = x.split("\n")
                if x[0].startswith("s_add_u32 m0"): ex0[g_ - 1] = x[0]; x = x[2:]
                ex0[g_] = "\n".join(x)
        if ugl: self.period(0, extra=ex0)
        else: self.period(0, vm=9 + 5, extra=ex)
        self.stamp("l0")
        a.raw(".p2align 6")
        a.label("L_loop")
        self.stamp("q1")
        for p in range(1, 5):
            ex = {}
            vm = 9
            if p == 1: ex = {73: f"s_cmp_eq_u32 {sr(S_CNT)}, 3"}
            if p == 2: ex = {70: f"buffer_load_dword v252, {vr(VPL)}, {sr(S_WS,4)}, 0 offen sc1"}
            if p == 3:
                ex = {73: f"s_cmp_eq_u32 {sr(S_CNT)}, 2", 45: f"ds_add_rtn_u32 v230, v231, {vr(VPL+1)}"}
            if p == 4:
                self.stamp("la0")
                a(f"s_cbranch_scc1 L_last")
                a.label("L_lastb")
                self.stamp("la1")
                ex = {72: f"s_add_u32 {sr(S_CNT)}, {sr(S_CNT)}, 1", 1: f"v_readfirstlane_b32 {sr(T)}, v230", 3: f"s_cmp_eq_u32 {sr(T)}, 3",
                      4: f"s_cselect_b32 {sr(T)}, {sr(S_FB)}, 2.0", 6: f"buffer_store_dword v207, v231, {sr(S_WS,4)}, {sr(T)} offen sc1"}
            if ugl:
                ex[69] = self.ugs[p]
                if p < 3 and cll: ex[72] = clr[p]
                if p == 3 and cll: ex.update({70: f"s_mov_b32 {sr(S_CL)}, 2.0", 71: f"s_mov_b32 {sr(S_CL+1)}, 2.0"})
                if p == 4: ex.update({71: f"s_mov_b32 {sr(S_UG)}, 2.0", 2: f"s_lshl2_add_u32 {sr(T)}, {sr(S_CNT)}, {sr(T)}", 3: f"s_cmp_eq_u32 {sr(T)}, 7"})
                if p == 3: ex.update({43: f"s_and_b32 {sr(T)}, {sr(S_CNT)}, 1", 44: f"v_mov_b32 {vr(VPL+1)}, {sr(T)}", 48: ex.pop(45)})
            for k_ in range(o.get("pad", 0)): ex[10 + 7 * k_] = ex.get(10 + 7 * k_, "s_nop 0") + "\ns_nop 7"
            self.period(p, extra=ex, inc=sr(S_INC) if p == 4 else None)
            if p == 1: a("s_cbranch_scc1 L_p14")
        a("s_branch L_loop")
        a.label("L_p14")
        SW = 66
        self.stamp("p14")
        a(f"s_cmp_eq_u32 {sr(S_DUM)}, 4\ns_cbranch_scc0 L_dummyb")
        for i in range(16): a(f"v_mov_b32 {vr(V_CI+i)}, 0xff800000")
        a("s_nop 1")
        a.label("L_dummyb")
        ex = dict(zip([2, 6, 8, 12, 14, 18, 20, 24, 26, 30], self.w_reads(self.WD, 0)))
        ex[0] = "s_waitcnt vmcnt(9)"
        ex.update(dict(zip([4, 10, 16, 22, 28], self.w8_loads(self.WD[2], SW))))
        self.period(14, dma=False, kread=False, extra=ex, halves=(0,))
        self.stamp("tail")
        self.tail(SW)
        self.stamp("end")
        self.epilogue(SW)

    def rare(self):
        a = self.a
        T = S_T
        SW = 66
        a.label("L_last")
        a(f"s_waitcnt vmcnt(9)\ns_mov_b32 {sr(T+2)}, 0")
        a.label("L_late")
        xc = f"v_readlane_b32 {sr(S_SX)}, v252, 5\ns_sub_u32 {sr(S_SX)}, {sr(S_SX)}, {sr(S_N)}" if self.o.get("xm", 0) else ""
        a(f"""v_cmp_ne_u32 vcc, {sr(S_N)}, v252
        s_add_u32 {sr(S_XA)}, {sr(S_WS)}, {WS_WF}
        s_addc_u32 {sr(S_XA+1)}, {sr(S_WS+1)}, 0
        s_mov_b32 {sr(S_XA+2)}, {18*BLK}
        s_add_u32 {sr(S_TOFF)}, {sr(S_LB)}, {9*BLK}
        s_mov_b32 {sr(S_INC)}, {-9*BLK}
        s_lshr_b32 {sr(SW)}, {sr(S_W)}, 1
        s_lshl_b32 {sr(SW)}, {sr(SW)}, 30
        s_add_u32 {sr(SW+1)}, {sr(SW)}, {WS_WF + 8*BLK}
        s_add_u32 {sr(SW)}, {sr(SW)}, {WS_WF + 17*BLK}
        {xc}
        s_and_b32 {sr(T)}, vcc_lo, 31
        s_cbranch_scc0 L_lastb
        buffer_load_dword v252, {vr(self.VPL)}, {sr(S_WS,4)}, 0 offen sc1
        s_add_u32 {sr(T+2)}, {sr(T+2)}, 1
        s_waitcnt vmcnt(0)
        s_cmp_lt_u32 {sr(T+2)}, 0x40000
        s_cbranch_scc1 L_late
        s_branch L_lastb""")

    units = [(0, 0), (0, 1), (1, 0), (1, 1), (2, 0)]
    V15 = V_K

    def stage(self, slot, T):
        src = ar(A_O + 36 * slot + 4 * T, 4)
        if slot == 0: return f"ds_write_b128 {vr(self.VST)}, {src} offset:{1024*T}"
        if slot == 2: return f"ds_write_b128 {vr(self.VS0)}, {src} offset:{1024*T}"
        if T < 4: return f"ds_write_b128 {vr(self.VST)}, {src} offset:{SLOT + 1024*T + (4096 if slot == 3 else 0)}"
        return f"{'s_not_b64' if slot == 1 else 's_mov_b64'} exec, {sr(self.MP1,2)}\nds_write_b128 {vr(self.VST)}, {src} offset:{SLOT + 8192}\ns_mov_b64 exec, -1"

    def dwf(self, k, i):
        f = 5 * k + i
        return self.DWT[f >> 1] + 2 * (f & 1)

    def tail(self, SW):
        a, o = self.a, self.o
        mf, pos, start = [], {}, {}
        for t_, qb in ((14, 0), (14, 1), (15, 0), (15, 1), (14, 2), (15, 2), (14, 3), (15, 3)):
            start[t_, qb] = len(mf)
            for Tt in ([0, 1, 2, 3, 8, 4, 5, 6, 7] if qb & 1 else range(9)):
                o_ = ar(A_O + 36 * qb + 4 * Tt, 4)
                pos[t_, qb, Tt] = len(mf)
                mf.append(f"v_mfma_f32_16x16x32_bf16 {o_}, {vr((V_V if t_ == 14 else self.V15)+4*Tt,4)}, {vr(self.P(t_ & 1,qb),4)}, {o_}")
        lst = []
        for qb in range(4):
            for j in range(8):
                lst.append(("e", qb, j))
                if j & 1: lst.append(("c", qb, j // 2))
        lst += [("a", qb, j) for qb in range(4) for j in range(8)]
        items = self.e_items(1, lst, lambda qb, j: 0 if j < 4 else 1, lambda qb: start[15, qb] - 2)
        for it in items[48:]: it["lo"] = o.get("alo", 26)
        v15 = [dict(t=x, c=4, need=pos[15, 0, i // 2], hi=pos[15, 0, i // 2] - o.get("vlead", 7), lo=0 if i < 16 else 2) for i, x in enumerate(self.v_reads(3, self.V15))]
        wr = []
        nown = o.get("nown", 4)
        self.own = [(2, T_) for T_ in range(nown, 9)] + [(3, T_) for T_ in (0, 1, 2, 3, 8)]
        g = o.get("w0", 23)
        for k, (sl, Tt) in enumerate([(0, T_) for T_ in range(9)] + [(1, T_) for T_ in (0, 1, 2, 3, 8)] + [(2, T_) for T_ in range(nown)]):
            g = max(pos[15, sl, Tt] + 5, g)
            wr.append(dict(t=self.stage(sl, Tt), c=o.get("wc", 20), lo=int(g), hi=int(g)) if g < 72 else dict(t=self.stage(sl, Tt), c=4, lo=999))
            g += o.get("wsp", 2.7)
        n0 = len(items) + len(v15)
        wo = []
        for i, x in enumerate(self.w_reads(self.WO, SLOT)):
            r0 = self.WO[i // 5][i % 5][1]
            wo.append(dict(t=("@VM\n" if i == 0 else "") + x, c=4, dep=sorted({n0 + r0 // 4, n0 + (r0 + 3) // 4 if (r0 + 3) // 4 < 9 else n0 + 8}), lo=o.get("wo0", 40) + 3 * i, hi=o.get("wo0", 40) + 3 * i + 2))
        cl = self.conv_loads()
        dl = [f"buffer_load_dwordx4 {vr(self.DWT[r],4)}, {vr(self.VDW)}, {sr(S_WS,4)}, 0 offen offset:{256*r}" for r in range(7)]
        dl.append(f"buffer_load_dwordx2 {vr(self.DWT[7],2)}, {vr(self.VDW)}, {sr(S_WS,4)}, 0 offen offset:{256*7}")
        fr = {96: 9, 100: 18, 104: 45, 112: 27, 116: 36}
        vm = [(x, 0) for x in cl] + [(x, fr.get(self.DWT[r], 0)) for r, x in enumerate(dl)]
        used = {w["lo"] for w in wr}
        vi, g = [], o.get("m0", 24)
        for x, lo in vm:
            g = max(g, lo)
            while int(g) in used: g += 1
            vi.append(dict(t=x, c=8, lo=int(g), hi=int(g)) if g < 72 else dict(t=x, c=8, lo=999))
            g += o.get("msp", 2.2)
        left = self.pack(mf, items + v15 + wr + wo + vi)
        self.done_a = {(qb, j) for qb in range(4) for j in range(8) if self.etext(1, ("a", qb, j)) not in left}
        left = [x for x in left if not x.startswith("v_add_f32")]
        print("tail overflow", self.over, "left", len(left), "adds done", len(self.done_a))
        self.left = left

    def epilogue(self, SW):
        a, o = self.a, self.o
        T = S_T
        p = lambda r: vr(r, 2)
        NB, PT, MK, VO, units, MP1 = self.NB, self.PT, self.MK, self.VO, self.units, self.MP1
        U, GM, G0, GP = self.U, self.GM, self.G0, self.GP
        X2O = self.X2O
        R1, R2, R3 = 230, 231, 249
        LA, LS, M = 10, 226, 48

        def weave(main, fill, per):
            fill = list(fill)
            for x in main:
                a(x)
                for _ in range(per):
                    if fill: a(fill.pop(0))
            return fill
        for x in self.left:
            if not x.startswith("buffer"): a(x)
        lv = [x for x in self.left if x.startswith("buffer")]
        lv += [f"buffer_load_dwordx4 {vr(self.XRS[j],4)}, {vr(VO+j)}, {sr(S_X,4)}, {sr(self.E_COL)} offen" for j in range(2)]
        lv.append(f"buffer_load_dwordx2 {vr(self.XRS[2],2)}, {vr(self.VO8)}, {sr(S_X,4)}, 0 offen offset:256")
        S1 = lambda qb, j: self.S(1, qb, j)
        rounds = [[] for _ in range(6)]
        for qb in range(4):
            rem = [j for j in range(8) if (qb, j) not in self.done_a]
            prs = [j for j in rem if j % 2 == 0 and j + 1 in rem]
            sing = [j for j in rem if (j & ~1) not in prs]
            r_ = 0
            while len(prs) > 1:
                for x, y in zip(prs[0::2], prs[1::2]): rounds[r_].append(f"v_pk_add_f32 {p(S1(qb,x))}, {p(S1(qb,x))}, {p(S1(qb,y))}")
                prs = prs[0::2]; r_ += 1
            for k_, j in enumerate(sing + ([prs[0], prs[0] + 1] if prs else [])): rounds[min(5, max(r_, 2) + k_)].append(f"v_add_f32 {vr(V_L+qb)}, {vr(V_L+qb)}, {vr(S1(qb,j))}")
        for r_ in rounds:
            for x in r_: a(x)
        a(f"v_add_u32 {vr(R1)}, {sr(self.RS1)}, {vr(V_DMA)}\nv_add_u32 {vr(R2)}, {sr(self.RS2)}, {vr(V_DMA)}")
        self.treduce(V_L)
        a(f"ds_write_b32 {vr(self.VLW)}, {vr(V_L)}")
        acc = lambda slot: [f"v_accvgpr_read_b32 {vr(M+i)}, {ar(A_O+36*slot+16+i)}" for i in range(20)]
        a(f"""v_add_u32 {vr(R3)}, {sr(self.RS3)}, {vr(V_DMA)}
        v_add_u32 {vr(LA+1)}, {self.L_L}, {vr(V_DMA)}
        v_and_b32 {vr(LS+1)}, 0xf0, {vr(V_DMA)}
        s_lshl_b32 {sr(T)}, {sr(NB)}, 8
        s_add_u32 {sr(T+8)}, {sr(T)}, {self.L_L}
        v_add_u32 {vr(LS)}, {sr(T+8)}, {vr(LS+1)}""")
        for x in lv: a(x)
        a(f"""s_xor_b32 {sr(T)}, s2, 1
        s_mul_i32 {sr(T)}, {sr(T)}, {IB}
        s_mul_i32 {sr(T+9)}, {sr(NB)}, 5120
        s_add_u32 {sr(T+9)}, {sr(T+9)}, {WS_IB}
        s_add_u32 {sr(T)}, {sr(T)}, {sr(T+9)}
        s_lshl_b32 {sr(T+10)}, {sr(PT)}, 11
        {"" if o.get("oib", 0) else f"s_add_u32 {sr(T+1)}, {sr(T+10)}, {sr(T)}"}
        s_add_u32 {sr(T)}, {sr(T)}, 4096
        s_cmp_eq_u32 {sr(PT)}, 0
        s_cselect_b32 {sr(T)}, 0x40000000, {sr(T)}
        s_mov_b32 {sr(T+2)}, {f32(2.0**100)}
        s_mul_i32 {sr(T+12)}, s2, {IB}
        s_add_u32 {sr(T+12)}, {sr(T+12)}, {sr(T+9)}
        {"" if o.get("oib", 0) else f"s_add_u32 {sr(T+13)}, {sr(T+12)}, {sr(T+10)}"}
        s_waitcnt lgkmcnt(0)
        s_barrier""")
        self.stamp("B1")

        def rd(X, offs):
            L = [[f"ds_read_b128 {vr(X[k][i],4)}, {vr((R1, R2, R3)[k])} offset:{offs[k] + 1024*i}" for i in range(4)] for k in range(3)]
            L8 = [f"ds_read_b128 {vr(X[k][4],4)}, {vr((R1, R2, R3)[k])} offset:8192" for k in range(3)]
            return L, L8

        def adds(X, k, rng):
            return [f"v_pk_add_f32 {p(M+4*i+2*h)}, {p(M+4*i+2*h)}, {p(X[k][i]+2*h)}" for i in rng for h in range(2)]
        X = [[128, 132, 136, 140, 144], [148, 152, 156, 160, 68], [72, 76, 200, 204, 108]]
        PK = 128
        sfl = o.get("sfl", "")
        oib = o.get("oib", 0)
        SI = S_OUT if oib else S_WS
        L, L8 = rd(X, (0, 4096, 0))
        a(f"ds_read_b128 {vr(LA,4)}, {vr(LA+1)}\nds_read_b128 {vr(LS,4)}, {vr(LS)}")
        rest = weave(L[0] + L[1] + L[2], acc(1), 2)
        assert not rest
        a(f"s_mov_b64 exec, {sr(MP1,2)}")
        for x in L8: a(x)
        a(f"""s_mov_b64 exec, -1
        s_waitcnt lgkmcnt(11)
        v_add_f32 {vr(LA)}, {vr(LA)}, {vr(LA+1)}
        v_add_f32 {vr(LA+2)}, {vr(LA+2)}, {vr(LA+3)}
        v_add_f32 {vr(LS)}, {vr(LS)}, {vr(LS+1)}
        v_add_f32 {vr(LA)}, {vr(LA)}, {vr(LA+2)}
        v_add_f32 {vr(LS+2)}, {vr(LS+2)}, {vr(LS+3)}
        v_cmp_nge_f32 vcc, {sr(T+2)}, {vr(LA)}""")
        for x in adds(X, 0, range(4)): a(x)
        a(f"""s_cmp_lg_u64 vcc, 0
        s_cselect_b32 {sr(T+2)}, 1, 0
        s_andn2_b32 {sr(T+2)}, {sr(T+2)}, {sr(S_REDO)}
        s_cbranch_scc1 L_fallback
        v_add_f32 {vr(PK+10)}, {vr(LS)}, {vr(LS+2)}
        v_mov_b32 {vr(PK+11)}, {vr(MK+1)}
        s_waitcnt lgkmcnt(7)""")
        for x in adds(X, 1, range(4)): a(x)
        a("s_waitcnt lgkmcnt(3)")
        a3 = adds(X, 2, range(4))
        cv = [f"v_cvt_pk_bf16_f32 {vr(PK+i)}, {vr(M+2*i)}, {vr(M+2*i+1)}" for i in range(10)]
        for x in a3[:4] + a3[4:6] + cv[:4]: a(x)

        def send(fl):
            a(f"buffer_store_dwordx4 {vr(PK,4)}, {vr(V_DMA)}, {sr(SI,4)}, {sr(S_OS if oib else T+1)} offen {fl}")
            for x in a3[6:] + cv[4:8]: a(x)
            a(f"buffer_store_dwordx4 {vr(PK+4,4)}, {vr(V_DMA)}, {sr(SI,4)}, {sr(S_OS if oib else T+1)} offen offset:1024 {fl}")
            a("s_waitcnt lgkmcnt(0)")
            for kk in range(3):
                for x in adds(XS, kk, [4]): a(x)
            for x in cv[8:]: a(x)
            a(f"buffer_store_dwordx4 {vr(PK+8,4)}, {vr(V_DMA)}, {sr(S_WS,4)}, {sr(T)} offen {fl}")
        XS = X
        self.send = send
        if o.get("xm", 0) and o.get("l2s", 1):
            a(f"s_cmp_eq_u32 {sr(S_SX)}, {sr(S_XC)}\ns_cbranch_scc0 L_far")
            send(sfl)
            a.label("L_sent")
        else: send("sc1")
        self.stamp("sent")
        a(f"s_cmp_eq_u32 {sr(S_VAL)}, 0\ns_cbranch_scc1 L_fin")
        C, UP = 140, 68
        IN = [(200, 204, 226), (164, 168, 252), (192, 196, 172)]
        VXW, VXR, VF, LO = 78, 79, 10, 36
        wr = [self.stage(*e) for e in self.own]

        def inbox(k):
            return [f"buffer_load_dwordx4 {vr(IN[k][0],4)}, {vr(V_DMA)}, {sr(SI,4)}, {sr(S_OR if oib else T+13)} offen sc1",
                    f"buffer_load_dwordx4 {vr(IN[k][1],4)}, {vr(V_DMA)}, {sr(SI,4)}, {sr(S_OR if oib else T+13)} offen offset:1024 sc1",
                    f"buffer_load_dwordx4 {vr(IN[k][2],4)}, {vr(V_DMA+1)}, {sr(S_WS,4)}, {sr(T+12)} offen sc1"]
        for x in inbox(0): a(x)
        n0 = len(a.lines)
        a(f"""s_lshl_b32 {sr(T)}, {sr(NB)}, 12
        s_add_u32 {sr(T)}, {sr(T)}, {sr(T+10)}
        s_add_u32 {sr(T)}, {sr(T)}, {self.X1B}
        v_add_u32 {vr(VXW)}, {sr(T)}, {vr(V_DMA)}
        s_lshl_b32 {sr(T)}, {sr(NB)}, 9
        s_add_u32 {sr(T)}, {sr(T)}, {self.X1B + 4096}
        v_add_u32 {vr(VXR)}, {sr(T)}, {vr(self.VL8)}
        s_lshl_b32 {sr(T)}, {sr(PT)}, 12
        s_add_u32 {sr(T)}, {sr(T)}, {self.X1B}
        v_add_u32 {vr(VF)}, {sr(T)}, {vr(V_DMA)}
        v_xor_b32 {vr(VF+1)}, 4096, {vr(VF)}
        s_lshl_b32 {sr(T)}, {sr(PT)}, 9
        s_add_u32 {sr(T)}, {sr(T)}, {self.X1B + 4096}
        v_add_u32 {vr(VF+2)}, {sr(T)}, {vr(self.VL8)}
        v_xor_b32 {vr(VF+3)}, 512, {vr(VF+2)}
        v_subrev_u32 {vr(R2)}, {2*SLOT}, {vr(R2)}
        v_subrev_u32 {vr(R3)}, {2*SLOT}, {vr(R3)}
        s_waitcnt vmcnt(9)""")
        self.stamp("cv0")
        un = [f"v_lshlrev_b32 {vr(M+2*i)}, 16, {vr(U+i)}\nv_and_b32 {vr(M+1+2*i)}, 0xffff0000, {vr(U+i)}" for i in range(10)]
        w8 = self.w8_loads(self.WO[2], SW + 1)
        for k, src in enumerate((GM, G0, GP)):
            for i in range(5):
                d = vr(C + 4 * i, 4)
                a(f"v_mfma_f32_16x16x16_bf16 {d}, {vr(self.dwf(k, i),2)}, {vr(src+2*i,2)}, {'0' if k == 0 else d}")
                a(w8.pop(0) if i in (0, 3) and w8 else un.pop(0))
        self.stamp("cv1")
        a(f"v_and_b32 {vr(LO+1)}, 0xf0, {vr(V_DMA)}\nv_add_u32 {vr(LO)}, {sr(T+8)}, {vr(LO+1)}\ns_nop 1")
        for i in range(10): a(f"v_pk_mul_f32 {p(C+2*i)}, {p(C+2*i)}, {p(M+2*i)}")
        for i in range(10):
            a(f"v_cvt_pk_bf16_f32 {vr(UP+i)}, {vr(C+2*i)}, {vr(C+2*i+1)}")
        body = a.lines[n0:]; del a.lines[n0:]
        step = max(1, len(body) // len(wr))
        for i, l in enumerate(body):
            if i % o.get("wstep", step) == 0 and wr: a(wr.pop(0))
            a.lines.append(l)
        for x in wr: a(x)
        ac = acc(3)
        a(f"ds_write_b128 {vr(VXW)}, {vr(UP,4)} offset:{X2O}")
        for x in ac[:6]: a(x)
        a(f"ds_write_b128 {vr(VXW)}, {vr(UP+4,4)} offset:{X2O + 1024}")
        for x in ac[6:12]: a(x)
        a(f"""s_mov_b64 exec, {sr(MP1,2)}
        ds_write_b64 {vr(VXR)}, {vr(UP+8,2)} offset:{X2O}
        s_mov_b64 exec, -1""")
        self.stamp("x2")
        for x in inbox(1): a(x)
        for x in ac[12:]: a(x)
        a("s_waitcnt lgkmcnt(0)\ns_barrier")
        self.stamp("B2")
        X = [[128, 132, 136, 140, 144], [148, 152, 156, 160, 188], [16, 20, 24, 28, 32]]
        L, L8 = rd(X, (4096, 4096, 0))
        BU = [[("v", r) for r in (100, 104, 108, 112, 116)], [("v", r) for r in (118, 122, 180, 184, 126)]]
        BO = [self.frag("v", 128), self.frag("v", 146)]
        AB = 80

        def bfrags(dst, off):
            out = []
            for s in range(5):
                for j in range(2):
                    out.append(f"ds_read_b128 {self.rg(dst[j][s],4)}, {vr(VF+j)} offset:{off + 1024*s}" if s < 4 else f"ds_read_b64 {self.rg(dst[j][4],2)}, {vr(VF+2+j)} offset:{off}")
            return out

        def fg(W, Bf):
            out = []
            for s in range(5):
                for u, (tt, j) in enumerate(units):
                    d = vr(AB + 4 * u, 4)
                    if s < 4: out.append(f"v_mfma_f32_16x16x32_bf16 {d}, {self.rg(W[tt][s],4)}, {self.rg(Bf[j][s],4)}, {d}")
                    else: out.append(f"v_mfma_f32_16x16x16_bf16 {d}, {self.rg(W[tt][4],2)}, {self.rg(Bf[j][4],2)}, {d}")
            return out
        xu = []
        for u, (tt, j) in enumerate(units):
            for h in range(2):
                x = self.XRS[j] + 2 * tt + h if tt < 2 else self.XRS[2] + h
                xu += [f"v_lshlrev_b32 {vr(AB+4*u+2*h)}, 16, {vr(x)}", f"v_and_b32 {vr(AB+1+4*u+2*h)}, 0xffff0000, {vr(x)}"]
        a("s_waitcnt vmcnt(14)")
        weave(bfrags(BU, X2O), xu, 2)
        pl = lambda k, i, e: f"v_add_f32 {vr(M+4*i+e)}, {vr(M+4*i+e)}, {vr(X[k][i]+e)}"
        ds = L[0] + L[1] + L[2] + [f"s_not_b64 exec, {sr(MP1,2)}\n" + "\n".join(L8) + "\ns_mov_b64 exec, -1", f"ds_read_b128 {vr(LO,4)}, {vr(LO)} offset:512"]
        nis = [1] * 12 + [3, 1]
        gap = [[] for _ in range(25)]
        tot = [10]
        for g in range(25): tot.append(tot[-1] + (nis[g] if g < 14 else 0))
        A0 = [pl(0, i, e) for i in range(4) for e in range(4)]
        A1 = [pl(1, i, e) for i in range(4) for e in range(4)]
        ib = inbox(2)
        for g, m in enumerate(fg(self.WD, BU)):
            if g % 5 == 0: a(f"s_waitcnt lgkmcnt({min(15, tot[g] - 2 * (g // 5 + 1))})")
            a(m)
            if g == 8: a(f"s_waitcnt lgkmcnt({tot[g] - 14})")
            if g == 16: a(f"s_waitcnt lgkmcnt({tot[g] - 18})")
            if g < 14: a(ds[g])
            if 8 <= g < 14: a(A0.pop(0))
            elif g in (14, 18, 22): a(ib.pop(0))
            elif g >= 14:
                for _ in range(2): a(A0.pop(0) if A0 else A1.pop(0))
        assert not A0 and len(A1) % 2 == 0
        n1 = 16 - len(A1)
        for e in range(n1, 16, 2): a(f"v_pk_add_f32 {p(M+e)}, {p(M+e)}, {p(X[1][e//4]+e%4)}")
        a("s_waitcnt lgkmcnt(0)")
        for x in adds(X, 2, range(4)): a(x)
        a(f"v_add_f32 {vr(LO)}, {vr(LO)}, {vr(LO+1)}\nv_add_f32 {vr(LO+2)}, {vr(LO+2)}, {vr(LO+3)}")
        for kk in range(3):
            for x in adds(X, kk, [4]): a(x)
        a(f"s_mov_b32 {sr(T+2)}, 0\nv_add_f32 {vr(LO)}, {vr(LO)}, {vr(LO+2)}")
        self.stamp("own")
        w, PU = 40, 128
        mo = MK + 3

        def chk(k):
            r = [IN[k][q] + i for q in range(3) for i in range(4)]
            c = [f"v_max3_u32 v46, {vr(r[0])}, {vr(r[1])}, {vr(r[2])}", f"v_max3_u32 v47, {vr(r[3])}, {vr(r[4])}, {vr(r[5])}"]
            for q in range(3): c.append(f"v_max3_u32 v{46+(q&1)}, v{46+(q&1)}, {vr(r[6+2*q])}, {vr(r[7+2*q])}")
            return c + ["v_max_u32 v46, v46, v47", "v_cmp_eq_u32 vcc, -1, v46"]

        def take(k, with_chk):
            r = [IN[k][q] + i for q in range(3) for i in range(4)]
            lp_, mp = r[10], r[11]
            wt = [f"v_min_f32 {vr(w)}, {vr(mo)}, {vr(mp)}", f"v_sub_f32 {vr(w+2)}, {vr(w)}, {vr(mp)}", f"v_sub_f32 {vr(w)}, {vr(w)}, {vr(mo)}",
                  f"v_exp_f32 {vr(w+2)}, {vr(w+2)}", f"v_exp_f32 {vr(w)}, {vr(w)}", f"v_mul_f32 {vr(w+4)}, {vr(w+2)}, {vr(lp_)}",
                  f"v_fmac_f32 {vr(w+4)}, {vr(w)}, {vr(LO)}", f"v_rcp_f32 {vr(w+4)}, {vr(w+4)}", f"v_mul_f32 {vr(w)}, {vr(w)}, {vr(w+4)}",
                  f"v_mul_f32 {vr(w+2)}, {vr(w+2)}, {vr(w+4)}"]
            un = []
            for i in range(10): un += [f"v_lshlrev_b32 {vr(PU+2*i)}, 16, {vr(r[i])}", f"v_and_b32 {vr(PU+1+2*i)}, 0xffff0000, {vr(r[i])}"]
            c = chk(k) if with_chk else []
            for i in range(10):
                a(wt[i])
                if c: a(c.pop(0))
                a(un.pop(0)); a(un.pop(0))
        a("s_waitcnt vmcnt(6)")
        take(0, True)
        a("s_cmp_eq_u64 vcc, 0\ns_cbranch_scc0 L_poll2")
        a.label("L_got")
        self.stamp("got")
        for i in range(10): a(f"v_pk_mul_f32 {p(M+2*i)}, {p(M+2*i)}, {p(w)} op_sel_hi:[1,0]")
        for i in range(10): a(f"v_pk_fma_f32 {p(M+2*i)}, {p(PU+2*i)}, {p(w+2)}, {p(M+2*i)} op_sel_hi:[1,0,1]")
        for i in range(10):
            a(f"v_cvt_pk_bf16_f32 {vr(UP+i)}, {vr(M+2*i)}, {vr(M+2*i+1)}")
            if i == 3: a(f"ds_write_b128 {vr(VXW)}, {vr(UP,4)}")
            if i == 7: a(f"ds_write_b128 {vr(VXW)}, {vr(UP+4,4)} offset:1024")
        a(f"""s_not_b64 exec, {sr(MP1,2)}
        ds_write_b64 {vr(VXR)}, {vr(UP+8,2)}
        s_mov_b64 exec, -1
        s_waitcnt lgkmcnt(0)
        s_barrier""")
        self.stamp("B3")
        for x in bfrags(BO, 0): a(x)
        for g, m in enumerate(fg(self.WO, BO)):
            if g % 5 == 0: a(f"s_waitcnt lgkmcnt({8 - 2 * (g // 5)})" + ("\ns_nop 0" if g == 20 else ""))
            a(m)
        self.stamp("gem")
        a("s_nop 3")
        for j in range(2):
            for tt in range(2):
                u = 2 * tt + j
                for h in range(2): a(f"v_cvt_pk_bf16_f32 {vr(16+4*j+2*tt+h)}, {vr(AB+4*u+2*h)}, {vr(AB+4*u+2*h+1)}")
            a(f"buffer_store_dwordx4 {vr(16+4*j,4)}, {vr(VO+j)}, {sr(S_OUT,4)}, {sr(self.E_COL)} offen {o.get('ofl', '')}")
        a(f"s_cmp_ge_u32 {sr(S_W)}, 2\ns_cbranch_scc1 L_fin")
        for h in range(2): a(f"v_cvt_pk_bf16_f32 {vr(24+h)}, {vr(AB+16+2*h)}, {vr(AB+16+2*h+1)}")
        a(f"buffer_store_dwordx2 v[24:25], {vr(self.VO8)}, {sr(S_OUT,4)}, 0 offen offset:256 {o.get('ofl', '')}")
        self.stamp("fin")

        def poll2():
            a.label("L_poll2")
            for k in (1, 2, 0):
                for x in inbox((k + 2) % 3): a(x)
                a("s_waitcnt vmcnt(6)")
                for x in chk(k): a(x)
                a(f"s_add_u32 {sr(T+2)}, {sr(T+2)}, 1\ns_cmp_eq_u64 vcc, 0\ns_cbranch_scc1 L_take{k}")
            a(f"s_cmp_lt_u32 {sr(T+2)}, 0x10000\ns_cbranch_scc1 L_poll2")
            for k in (0, 1, 2):
                a.label(f"L_take{k}")
                take(k, False)
                a("s_branch L_got")
            if o.get("xm", 0) and o.get("l2s", 1):
                a.label("L_far")
                send("sc1")
                a("s_branch L_sent")
        self.poll2 = poll2

    def fallback(self):
        a = self.a
        T = S_T
        MXR = 208
        a.label("L_fallback")
        a(f"""s_waitcnt vmcnt(0) lgkmcnt(0)
        s_barrier
        s_mov_b32 {sr(S_REDO)}, 1
        s_mov_b32 {sr(S_UG)}, 0x40000000
        {self.xa_srd()}
        s_mov_b32 {sr(S_TOFF)}, {sr(S_LB)}
        s_cmp_eq_u32 {sr(S_DUM)}, 4
        s_cselect_b32 {sr(S_CNT)}, 15, 16""")
        for i in range(4): a(f"v_mov_b32 {vr(MXR+i)}, 0xff800000")
        a.label("L_fb1")
        for g in self.tile_groups(0): a(g)
        a("s_waitcnt vmcnt(0)")
        for x in self.k_reads(0): a(x)
        a("s_waitcnt lgkmcnt(0)")
        for m in self.qk_mfmas(0, czero=True): a(m)
        a("s_nop 7")
        for qb in range(4):
            for i in range(0, 8, 2): a(f"v_max3_f32 {vr(MXR+qb)}, {vr(MXR+qb)}, {vr(self.S(0,qb,i))}, {vr(self.S(0,qb,i+1))}")
        a(f"s_sub_u32 {sr(S_CNT)}, {sr(S_CNT)}, 1\ns_cmp_lg_u32 {sr(S_CNT)}, 0\ns_cbranch_scc1 L_fb1")
        self.greduce([MXR + i for i in range(4)], MXR + 4, "v_max_f32")
        a(f"""v_and_b32 {vr(MXR+4)}, 15, v0
        v_lshlrev_b32 {vr(MXR+4)}, 4, {vr(MXR+4)}
        v_add_u32 {vr(MXR+4)}, {L_SP}, {vr(MXR+4)}
        s_lshl_b32 {sr(T)}, {sr(S_W)}, 2
        s_xor_b32 {sr(T+1)}, {sr(self.NB)}, 1
        v_lshl_add_u32 {vr(MXR+5)}, {sr(self.NB)}, 8, {vr(MXR+4)}
        v_lshl_add_u32 {vr(MXR+4)}, {sr(T+1)}, 8, {vr(MXR+4)}
        v_add_u32 {vr(MXR+6)}, {sr(T)}, {vr(MXR+4)}
        v_add_u32 {vr(MXR+7)}, {sr(T)}, {vr(MXR+5)}""")
        for qb in range(4): a(f"ds_write_b32 {vr(MXR+6+(qb&1))}, {vr(MXR+qb)} offset:{512*(qb>>1)}")
        a("s_waitcnt lgkmcnt(0)\ns_barrier")
        for qb in range(4): a(f"ds_read_b128 {vr(16+4*qb,4)}, {vr(MXR+4+(qb&1))} offset:{512*(qb>>1)}")
        a(f"s_mov_b32 {sr(S_TOFF)}, {sr(S_LB)}")
        for g in self.tile_groups(0) + self.tile_groups(1) + ([] if self.o.get("gs", 0) else self.tile_groups(2)[:8]): a(g)
        a("s_waitcnt lgkmcnt(0)")
        for qb in range(4):
            r = 16 + 4 * qb
            a(f"v_max_f32 {vr(r)}, {vr(r)}, {vr(r+1)}\nv_max3_f32 {vr(r)}, {vr(r)}, {vr(r+2)}, {vr(r+3)}")
            a(f"v_sub_f32 {vr(self.MK+qb)}, 0, {vr(r)}")
        a("s_waitcnt vmcnt(0)")
        for x in self.k_reads(0, V_V): a(x)
        self.loop_init(False)
        if self.o.get("gs", 0): self.loop_init(True)
        a("s_branch L_go")


if __name__ == "__main__":
    opt = json.loads(sys.argv[2]) if len(sys.argv) > 2 else {}
    g = G(opt)
    txt = g.build()
    if opt.get("align", 1):
        from align import align
        for n2 in (1, 2):
            try:
                txt, st = align(txt, chains=[(1, "L_tr")] * 3 + [(1, "L_tr2"), (n2, "L_tr2")] if opt.get("touch", 1) else None)
                break
            except AssertionError as e:
                if n2 == 2: raise
        print("align: promoted %d, padded %d, left %d" % st)
    txt = txt.replace("\n", "\n; stamps " + json.dumps(g.stnames) + "\n; map %d\n" % g.mp, 1)
    open(sys.argv[1], "w").write(txt)
```

```python
import sys, json, math
from common import Asm, vr, ar, sr, kernel_header, kernel_desc
from lay import *

NAME = "standalone__conformer_family_branchformer__speech_kernel"
NH = 2
NWG = 252 + NH
CHAINS = (3, 3)
RING = 4
LDS_RING = RING * TILE
LDS_TOTAL = 163840
SLOT = 4 * TILE
L_WU, L_WQ, L_WK = 0, 41472, 82944
L_XX, L_XR = 126976, 143360
L_QD = 18432
L_XS = L_XX + L_QD
L_MX = 81920
L_PC = LDS_TOTAL - 256
L_DUMP = 123904
L_SP = 147456

S_X, S_WS, S_XA, S_DB, S_W1, S_W2, S_OUT, S_DW = 8, 12, 16, 20, 24, 28, 32, 36
S_W, S_B, S_H, S_QB, S_TOFF, S_CNT, S_DUM, S_LB, S_TOWN, S_TSND, S_VAL, S_REDO = range(40, 52)
S_UG, S_CL = 25, 26
S_PH, S_XC, S_SX = 6, 74, 75
S_OS, S_OR = 28, 29
S_N, S_FB = 98, 99
S_INC = 24
S_T = 52
S_ST = 76

V_KA, V_VA, V_VR, V_DMA, V_L, V_VB = 1, 3, 5, 6, 10, 14
V_S, V_CI, V_P, V_K, V_V = 16, 80, 96, 128, 164
V_HI = 200
V_X = 208
A_O, A_Q, A_F = 0, 144, 216

LOG2E = 1.4426950408889634
import struct
def f32(x): return "0x%08x" % struct.unpack("<I", struct.pack("<f", x))[0]


class BAsm(Asm):
    def __init__(self):
        super().__init__()
        self.bg, self.every, self.cnt, self.skip = [], 0, 0, 0

    def __call__(self, s):
        for l in s.split("\n"):
            l = l.strip()
            if not l: continue
            self.lines.append("    " + l)
            if self.bg and self.every and not l.startswith(("s_nop", "v_mov_b32", "v_exp", "v_rcp", "v_rsq", "v_sqrt", "s_add_u32 m0")):
                self.cnt += 1
                if self.cnt >= self.every:
                    self.cnt = 0
                    self.pop()

    def pop(self):
        for x in self.bg.pop(0).split("\n"): self.lines.append("    " + x)

    def flush(self):
        while self.bg: self.pop()
        self.every = 0


class G:
    def __init__(self, opt):
        self.o = opt
        self.a = BAsm()
        self.nst = 0
        self.fill = []

    def stamp(self, name):
        if self.o.get("stamps"):
            if name in self.o.get("skipst", []): return
            if "only" in self.o and name not in self.o["only"]: return
            if self.nst >= 11: return
            self.a(f"{'s_memtime' if self.o.get('cyc') else 's_memrealtime'} {sr(S_ST + 2*self.nst, 2)}")
            self.stnames.append(name)
            self.nst += 1

    def srd(self, dst, lo, hi, n):
        if dst == S_WS and self.o.get("wsoff"):
            self.a(f"s_add_u32 {sr(dst)}, {sr(lo)}, {self.o['wsoff']}\ns_addc_u32 {sr(dst+1)}, {sr(hi)}, 0\ns_mov_b32 {sr(dst+2)}, {n}\ns_mov_b32 {sr(dst+3)}, 0x20000")
            return
        self.a(f"s_mov_b32 {sr(dst)}, {sr(lo)}\ns_mov_b32 {sr(dst+1)}, {sr(hi)}\ns_mov_b32 {sr(dst+2)}, {n}\ns_mov_b32 {sr(dst+3)}, 0x20000")

    def greduce(self, regs, tmp, op="v_add_f32"):
        a = self.a
        for sw in ("32", "16"):
            for i, r in enumerate(regs): a(f"v_mov_b32 {vr(tmp+i)}, {vr(r)}")
            if len(regs) < 3: a("s_nop 1" if len(regs) == 1 else "s_nop 0")
            for i, r in enumerate(regs): a(f"v_permlane{sw}_swap_b32 {vr(r)}, {vr(tmp+i)}")
            for i, r in enumerate(regs): a(f"{op} {vr(r)}, {vr(r)}, {vr(tmp+i)}")

    def treduce(self, r, op="v_add_f32"):
        a = self.a
        a(f"v_permlane32_swap_b32 {vr(r)}, {vr(r+2)}\nv_permlane32_swap_b32 {vr(r+1)}, {vr(r+3)}")
        a(f"{op} {vr(r)}, {vr(r)}, {vr(r+2)}\n{op} {vr(r+1)}, {vr(r+1)}, {vr(r+3)}\ns_nop 1")
        a(f"v_permlane16_swap_b32 {vr(r)}, {vr(r+1)}\n{op} {vr(r)}, {vr(r)}, {vr(r+1)}")

    def rbf(self, r):
        self.a(f"v_cvt_pk_bf16_f32 {vr(r)}, {vr(r)}, {vr(r)}\nv_lshlrev_b32 {vr(r)}, 16, {vr(r)}")

    def ln_tail(self, F, out, t, mimic):
        a = self.a
        p = lambda r: vr(r, 2)
        self.greduce([t, t + 1], t + 2)
        a(f"v_mul_f32 {vr(t+2)}, {f32(1.0/144)}, {vr(t)}")
        a(f"v_mul_f32 {vr(t+3)}, {vr(t+2)}, {vr(t+2)}")
        a(f"v_mov_b32 {vr(t+4)}, {f32(1.0/144)}")
        a(f"v_fma_f32 {vr(t)}, {vr(t+1)}, {vr(t+4)}, -{vr(t+3)}")
        a(f"v_max_f32 {vr(t)}, 0, {vr(t)}")
        if mimic:
            self.rbf(t)
            self.rbf(t + 2)
            a(f"v_add_f32 {vr(t)}, {f32(1e-5)}, {vr(t)}")
            self.rbf(t)
            a(f"v_sqrt_f32 {vr(t)}, {vr(t)}\ns_nop 0")
            self.rbf(t)
            a(f"v_rcp_f32 {vr(t)}, {vr(t)}\ns_nop 0")
        else:
            a(f"v_add_f32 {vr(t)}, {f32(1e-5)}, {vr(t)}")
            a(f"v_rsq_f32 {vr(t)}, {vr(t)}\ns_nop 0")
        a(f"v_mul_f32 {vr(t+2)}, -{vr(t+2)}, {vr(t)}")
        for i in range(18):
            a(f"v_pk_fma_f32 {p(F+2*i)}, {p(F+2*i)}, {p(t)}, {p(t+2)} op_sel_hi:[1,0,0]")
        for i in range(18):
            a(f"v_cvt_pk_bf16_f32 {vr(out+i)}, {vr(F+2*i)}, {vr(F+2*i+1)}")

    def ln_packed(self, X, F, out, t):
        a = self.a
        a(f"v_mov_b32 {vr(t+6)}, 0x3f803f80")
        for k in range(4): a(f"v_mov_b32 {vr(t+k)}, 0")
        for i in range(18):
            a(f"v_dot2_f32_bf16 {vr(t+2*(i&1))}, {vr(X+i)}, {vr(t+6)}, {vr(t+2*(i&1))}")
            a(f"v_dot2_f32_bf16 {vr(t+1+2*(i&1))}, {vr(X+i)}, {vr(X+i)}, {vr(t+1+2*(i&1))}")
        for i in range(2):
            a(f"v_lshlrev_b32 {vr(F+2*i)}, 16, {vr(X+i)}\nv_and_b32 {vr(F+2*i+1)}, 0xffff0000, {vr(X+i)}")
        a(f"v_pk_add_f32 {vr(t,2)}, {vr(t,2)}, {vr(t+2,2)}")
        un = []
        for i in range(2, 18):
            un.append(f"v_lshlrev_b32 {vr(F+2*i)}, 16, {vr(X+i)}\nv_and_b32 {vr(F+2*i+1)}, 0xffff0000, {vr(X+i)}")
        sv = (a.bg, a.every, a.cnt, a.skip)
        n0 = len(a.lines)
        a.bg, a.every = [], 0
        self.ln_tail(F, out, t, True)
        tail = a.lines[n0:]
        del a.lines[n0:]
        a.bg, a.every, a.cnt, a.skip = sv
        k = next(i for i, l in enumerate(tail) if "v_pk_fma" in l)
        for i, l in enumerate(tail[:k]):
            if "s_nop" in l and un: continue_nop = True
            a(l)
            if un and not l.strip().startswith("s_nop"): a(un.pop(0))
        while un: a(un.pop(0))
        for l in tail[k:]: a(l)

    def ln_f32(self, F, out, t):
        a = self.a
        p = lambda r: vr(r, 2)
        a(f"v_pk_add_f32 {p(t)}, {p(F)}, {p(F+2)}\nv_pk_add_f32 {p(t+2)}, {p(F+4)}, {p(F+6)}")
        a(f"v_pk_mul_f32 {p(t+4)}, {p(F)}, {p(F)}\nv_pk_mul_f32 {p(t+6)}, {p(F+2)}, {p(F+2)}")
        for i in range(2, 18):
            if i >= 4: a(f"v_pk_add_f32 {p(t+2*(i&1))}, {p(t+2*(i&1))}, {p(F+2*i)}")
            a(f"v_pk_fma_f32 {p(t+4+2*(i&1))}, {p(F+2*i)}, {p(F+2*i)}, {p(t+4+2*(i&1))}")
        a(f"v_pk_add_f32 {p(t)}, {p(t)}, {p(t+2)}\nv_pk_add_f32 {p(t+4)}, {p(t+4)}, {p(t+6)}")
        a(f"v_add_f32 {vr(t)}, {vr(t)}, {vr(t+1)}\nv_add_f32 {vr(t+1)}, {vr(t+4)}, {vr(t+5)}")
        self.ln_tail(F, out, t, False)

    def gemm_u(self, AF, rf, Bs, ACC, afr, bfr, post, vm_items=(), other=(), lead=7, vm0=0, vmsp=4, at={}, lastk=0):
        a = self.a
        units = [(0, j) for j in range(4)] + [(1, j) for j in range(4)] + [(2, 0)]
        seq, dl = [], {}
        bs = lambda j, o_, n: self.rg((Bs[j][0], Bs[j][1] + o_), n)
        rem = lambda u: (f"v_mfma_f32_16x16x16_bf16 {vr(ACC+4*u,4)}, {rf(AF+18*units[u][0]+16,2)}, {bs(units[u][1],16,2)}, {vr(ACC+4*u,4)}", u)
        A = [afr(t) for t in range(3)]
        Bf = [bfr(j) for j in range(4)]

        def use(t, j, s, k):
            for x in (A[t][2 * s:2 * s + 2] if s < 4 else A[t][8:]) + ([Bf[j][s]] if Bf[j] else []): dl.setdefault(x, k)
        for g in range(4):
            for s in range(4):
                for u in range(3 * g, 3 * g + 3) if g < 3 else []:
                    t, j = units[u]
                    d = vr(ACC + 4 * u, 4)
                    use(t, j, s, len(seq))
                    seq.append((f"v_mfma_f32_16x16x32_bf16 {d}, {rf(AF+18*t+4*s,4)}, {bs(j,4*s,4)}, {'0' if s == 0 else d}", None))
                if s == 0 and g > 0:
                    for u in range(3 * g - 3, 3 * g):
                        use(units[u][0], units[u][1], 4, len(seq)); seq.append(rem(u))
        last = seq[-3:]; seq = seq[:-3]
        ds = sorted(dl.items(), key=lambda e: e[1]) + [(x, 99) for x in other]
        vm_items = list(vm_items)
        lastvm = vm0 - vmsp
        order, ready, q, done = [], [], [], 0

        def issue():
            x, k_ = ds.pop(0); a(x); order.append(k_)

        def wait(k):
            nonlocal done
            idx = [i_ for i_, k_ in enumerate(order) if k_ <= k]
            if idx and max(idx) + 1 > done:
                a(f"s_waitcnt lgkmcnt({min(15, len(order) - 1 - max(idx))})"); done = max(idx) + 1
        while ds and ds[0][1] < 6: issue()
        for k, (m, fin) in enumerate(seq):
            assert not ds or ds[0][1] > k, (k, ds[0])
            wait(k)
            a(m)
            for u_, kk in list(ready):
                if k - kk >= 4: q += post(u_); ready.remove((u_, kk))
            if fin is not None: ready.append((fin, k))
            if k in at: at[k]()
            due = sum(1 for x, k_ in ds if k_ <= k + lead)
            if due == 0 and vm_items and k >= lastvm + vmsp and (len(vm_items) > 1 or k >= lastk):
                a(vm_items.pop(0)); lastvm = k; continue
            cap = 2
            for _ in range(min(due, 3)): issue(); cap -= 1
            if cap == 2:
                if q and q[0].startswith("ds_"): a(q.pop(0)); order.append(99); cap -= 1
                elif ds: issue(); cap -= 1
            while cap > 0 and q and not q[0].startswith("ds_"):
                a(q.pop(0)); cap -= 1
        assert not ready
        while ds: issue()
        wait(98)
        for x in vm_items: a(x)
        for x in q[:4]: a(x)
        a(f"s_nop {max(0, 4 - len(q[:4]))}")
        for m, _ in last: a(m)
        for x in q[4:]: a(x)
        a(f"s_nop {max(0, 6 - len(q[4:]))}")
        for u in range(6, 9):
            for x in post(u): a(x)

    def gemm(self, reads, B, ACC, AF, late=(), at={}, per=2):
        a = self.a
        buf = lambda T: 18 * (T % 6)
        ng = 3 * (4 * per + 1)

        def grp(g):
            r = [reads(T, buf(T)) for T in range(3 * g, 3 * g + 3)]
            return [r[t][per * s + u] for s in range(4) for t in range(3) for u in range(per)] + [r[t][4 * per] for t in range(3)]
        rem = lambda T: f"v_mfma_f32_16x16x16_bf16 {vr(ACC+4*T,4)}, {ar(buf(T)+16,2)}, {vr(B+16,2)}, {vr(ACC+4*T,4)}"
        pend = grp(0) + grp(1) + grp(2) + list(late)
        issued = k = 0

        def issue(n):
            nonlocal issued
            for _ in range(n):
                if issued < len(pend): a(pend[issued]); issued += 1

        def mf(x):
            nonlocal k
            a(x); issue(per if per == 2 else (2 if k % 4 == 0 else 1))
            if k in at: a(at[k])
            k += 1
        issue(self.o.get('look', 12) if per == 2 else self.o.get('look1', 8))
        for g in range(3):
            for s in range(4):
                need = ng * g + 3 * per * (s + 1)
                a(f"s_waitcnt lgkmcnt({min(15, issued - need)})")
                for T in range(3 * g, 3 * g + 3):
                    d = vr(ACC + 4 * T, 4)
                    mf(f"v_mfma_f32_16x16x32_bf16 {d}, {ar(buf(T)+4*s,4)}, {vr(B+4*s,4)}, {'0' if s == 0 else d}")
                if s == 0 and g > 0:
                    for T in range(3 * g - 3, 3 * g): mf(rem(T))
                if g == 1 and s == 0: assert issued <= 2 * ng + 6 * per, "group 2 overwrites group 0 too early"
        issue(99)
        a(f"s_waitcnt lgkmcnt({len(late)})\ns_nop 2")
        for T in range(6, 9): a(rem(T))
        a("s_nop 7")

    def tr_reads(self, ad, rf=ar):
        def f(T, dst):
            out = []
            for s in range(4):
                for u in range(2):
                    out.append(f"ds_read_b64_tr_b16 {rf(dst+4*s+2*u,2)}, {vr(ad+u)} offset:{9216*s + 32*T}")
            out.append(f"ds_read_b64_tr_b16 {rf(dst+16,2)}, {vr(ad+2)} offset:{36864 + 32*T}")
            return out
        return f

    def row_reads(self, ad, sw=None):
        def f(T, dst):
            r = ad if sw is None or T == 8 else sw[T & 1]
            out = []
            for s in range(4):
                for u in range(2):
                    out.append(f"ds_read_b64 {ar(dst+4*s+2*u,2)}, {vr(r)} offset:{4864*T + 64*s + 32*u}")
            out.append(f"ds_read_b64 {ar(dst+16,2)}, {vr(r)} offset:{4864*T + 256}")
            return out
        return f

    def dma_rows(self, jobs, cpr, rstride, vo, vc, n_first, first_waves, lab):
        a = self.a
        mul = {18: 3641, 19: 3450}[cpr]
        dr, dc = 256 // cpr, 256 % cpr
        a(f"s_lshl_b32 {sr(S_T)}, {sr(S_W)}, 6")
        a(f"v_add_u32 {vr(vc)}, {sr(S_T)}, v0")
        a(f"v_mul_u32_u24 {vr(vo)}, {mul}, {vr(vc)}")
        a(f"v_lshrrev_b32 {vr(vo)}, 16, {vr(vo)}")
        a(f"v_mul_u32_u24 {vr(vc+1)}, {cpr}, {vr(vo)}")
        a(f"v_sub_u32 {vr(vc)}, {vr(vc)}, {vr(vc+1)}")
        a(f"v_mul_u32_u24 {vr(vo)}, {rstride}, {vr(vo)}")
        a(f"v_lshl_add_u32 {vr(vo)}, {vr(vc)}, 4, {vr(vo)}")
        a(f"s_lshl_b32 {sr(S_T)}, {sr(S_W)}, 10")
        a(f"v_mov_b32 {vr(vc+1)}, {rstride - 16*cpr}")
        for k in range(n_first):
            if k == n_first - 1:
                a(f"s_cmp_ge_u32 {sr(S_W)}, {first_waves}\ns_cbranch_scc1 {lab}")
            for srd, so, lb in jobs:
                a(f"s_add_u32 m0, {sr(S_T)}, {lb + 4096*k}")
                a("s_nop 0")
                a(f"buffer_load_dwordx4 {vr(vo)}, {sr(srd,4)}, {so} offen lds")
            if k < n_first - 1:
                a(f"v_add_u32 {vr(vc)}, {dc}, {vr(vc)}")
                a(f"v_cmp_le_u32 vcc, {cpr}, {vr(vc)}")
                a(f"v_add_u32 {vr(vo)}, {dr*rstride + 16*dc}, {vr(vo)}")
                a(f"v_subrev_u32 {vr(vc+2)}, {cpr}, {vr(vc)}")
                a(f"v_cndmask_b32 {vr(vc)}, {vr(vc)}, {vr(vc+2)}, vcc")
                a(f"v_cndmask_b32 {vr(vc+2)}, 0, {vr(vc+1)}, vcc")
                a(f"v_add_u32 {vr(vo)}, {vr(vo)}, {vr(vc+2)}")
        a.label(lab)

    def voff_table(self, dst, cpr, rstride, vc, step=256):
        a = self.a
        mul = {18: 29128, 19: 27595}[cpr]
        n = len(dst)
        a(f"s_mov_b32 {sr(S_T)}, {rstride - 16*cpr}")
        a(f"v_mul_u32_u24 {vr(dst[0])}, {mul}, {vr(vc)}")
        for k in range(1, n): a(f"v_add_u32 {vr(dst[k])}, {(step*k % cpr)*mul}, {vr(dst[0])}")
        for k in range(n): a(f"v_lshrrev_b32 {vr(dst[k])}, 19, {vr(dst[k])}")
        for k in range(n): a(f"v_mad_i32_i24 {vr(dst[k])}, {vr(dst[k])}, {sr(S_T)}, {vr(vc+1)}")

    def dma_lin(self, srd, soff, lb, v16, lab):
        a = self.a
        a(f"s_lshl_b32 {sr(S_T)}, {sr(S_W)}, 10")
        for k in range(11):
            if k == 10:
                a(f"s_cmp_ge_u32 {sr(S_W)}, 1\ns_cbranch_scc1 {lab}")
            a(f"s_add_u32 m0, {sr(S_T)}, {lb + 4096*k}")
            a(f"s_add_u32 {sr(S_T+1)}, {sr(S_T)}, {soff + 4096*k}")
            a(f"buffer_load_dwordx4 {vr(v16)}, {sr(srd,4)}, {sr(S_T+1)} offen lds")
        a.label(lab)

    def tr_addr(self, ad, base, swapped, t):
        a = self.a
        a(f"v_lshrrev_b32 {vr(t)}, 2, v0")
        a(f"v_mul_u32_u24 {vr(t)}, 288, {vr(t)}")
        a(f"v_and_b32 {vr(t+1)}, 3, v0")
        a(f"v_lshl_add_u32 {vr(t)}, {vr(t+1)}, 3, {vr(t)}")
        a(f"v_add_u32 {vr(ad+2)}, {base}, {vr(t)}")
        if swapped:
            a(f"v_bfe_u32 {vr(t)}, v0, 4, 1")
            a(f"v_mul_u32_u24 {vr(t)}, {16*288}, {vr(t)}")
            a(f"v_add_u32 {vr(ad)}, {vr(ad+2)}, {vr(t)}")
            a(f"v_sub_u32 {vr(ad+1)}, {vr(ad+2)}, {vr(t)}")
            a(f"v_add_u32 {vr(ad+1)}, {16*288}, {vr(ad+1)}")
        else:
            a(f"v_mov_b32 {vr(ad)}, {vr(ad+2)}")
            a(f"v_add_u32 {vr(ad+1)}, {16*288}, {vr(ad+2)}")

    def row_addr(self, ad, base, t):
        a = self.a
        a(f"v_and_b32 {vr(t)}, 15, v0")
        a(f"v_mul_u32_u24 {vr(t)}, 304, {vr(t)}")
        a(f"v_lshrrev_b32 {vr(t+1)}, 4, v0")
        a(f"v_lshl_add_u32 {vr(t)}, {vr(t+1)}, 3, {vr(t)}")
        a(f"v_add_u32 {vr(ad)}, {base}, {vr(t)}")

    def store_block(self, src, v16, v8, srd, soff, soff2, flags=""):
        a = self.a
        for s in range(4):
            a(f"buffer_store_dwordx4 {vr(src+4*s,4)}, {vr(v16)}, {sr(srd,4)}, {sr(soff)} offen offset:{1024*s} {flags}")
        a(f"buffer_store_dwordx2 {vr(src+16,2)}, {vr(v8)}, {sr(srd,4)}, {sr(soff2)} offen {flags}")

    def entry(self):
        a = self.a
        xm2 = self.o.get("xm", 0) == 2
        kernel_header(a, NAME)
        a(f"s_load_dwordx16 s[56:71], s[0:1], 0")
        a(f"s_load_dwordx8 s[72:79], s[0:1], 64")
        a(f"s_getpc_b64 {sr(S_W1,2)}")
        a.label("L_pf")
        a(f"""s_mov_b32 {sr(S_W1+2)}, L_dummy-L_pf
        s_mov_b32 {sr(S_W1+3)}, 0x20000
        v_lshlrev_b32 v2, 4, v0
        buffer_load_dwordx4 v[252:255], v2, {sr(S_W1,4)}, 0 offen
        s_lshl_b32 s3, s2, 9
        s_and_b32 s3, s3, 0x7000
        buffer_load_dwordx4 v[252:255], v2, {sr(S_W1,4)}, s3 offen
        v_lshrrev_b32 v1, 6, v0
        {"s_bfe_u32 s6, s2, 0x10003" if xm2 else f"s_sub_u32 s2, s2, {NH}"}
        v_readfirstlane_b32 {sr(S_W)}, v1
        s_memrealtime s[4:5]""")
        if xm2:
            a(f"""s_and_b32 s7, s2, 7
            s_lshl1_add_u32 s7, s7, s6
            s_mov_b32 s6, s2
            s_andn2_b32 s2, s2, 15
            s_or_b32 s2, s2, s7""")
        a(f"""s_cmp_ge_u32 s2, {NWG - NH}
        s_cbranch_scc1 L_wfuse""")
        if self.o.get("late"):
            m_, v_, n_ = self.o["late"]
            a(f"""s_and_b32 s3, s2, {m_}
            s_cmp_lg_u32 s3, {v_}
            s_cbranch_scc1 L_nl
            s_memrealtime s[4:5]
            s_waitcnt lgkmcnt(0)
            s_add_u32 s6, s4, {n_}
            L_lt:
            s_memrealtime s[4:5]
            s_waitcnt lgkmcnt(0)
            s_sub_u32 s7, s6, s4
            s_cmp_gt_i32 s7, 0
            s_cbranch_scc1 L_lt
            L_nl:""")
        if self.o.get("stamps"):
            a("s_memrealtime s[100:101]" if not self.o.get("cyc") else "s_memtime s[100:101]")
        self.mp = 2

    def vm_since(self, mark):
        return sum(1 for l in self.a.lines[mark:] if l.strip().startswith("buffer_"))

    def phase_a(self):
        a, o = self.a, self.o
        XR, XF, XA, ACC, G_, PK = 16, 34, 146, 110, 16, 164
        B4, XD = 16, 88
        VS, VSW, VR4, MXA, MXR, L8, TRU, TRQ, TRQ8, RK, TM = 200, 204, 208, 212, 213, 214, 215, 218, 221, 224, 228
        VK, VU = list(range(182, 193)), list(range(193, 200)) + list(range(104, 108))
        AQ1 = 200
        t0, t1, t2 = 250, 251, 227
        T = S_T
        WV, W10, UOFF, M1, PUB, M3 = 72, 70, 71, 69, 68, 65
        PH = 2
        if o.get("xm", 0) == 2: PH = S_PH
        if o.get("xm", 0) == 1:
            PH = S_PH
            a(f"""s_mov_b32 {sr(PH)}, s2
            s_bfe_u32 {sr(T)}, s2, 0x10003
            s_and_b32 {sr(T+1)}, s2, 7
            s_lshl1_add_u32 {sr(T)}, {sr(T+1)}, {sr(T)}
            s_and_b32 {sr(T+1)}, s2, 0xf0
            s_or_b32 {sr(T)}, {sr(T)}, {sr(T+1)}
            s_add_u32 s2, s2, 4
            s_cmp_lt_u32 {sr(T)}, 248
            s_cselect_b32 s2, {sr(T)}, s2""")
        a(f"""v_and_b32 v0, 63, v0
        s_bfe_u32 {sr(S_B)}, s2, 0x10001
        s_lshr_b32 {sr(S_QB)}, s2, 2
        s_lshr_b32 {sr(T)}, {sr(S_W)}, 1
        s_xor_b32 {sr(T)}, {sr(T)}, s2
        s_andn2_b32 {sr(T)}, 1, {sr(T)}
        s_lshl1_add_u32 {sr(T+3)}, {sr(S_QB)}, {sr(T)}
        s_mul_i32 {sr(T)}, {sr(S_B)}, {NT}
        s_add_u32 {sr(T+1)}, {sr(T+3)}, {sr(T)}
        s_and_b32 {sr(T+2)}, {sr(S_W)}, 1
        s_lshl1_add_u32 {sr(T+2)}, {sr(T+1)}, {sr(T+2)}
        v_lshlrev_b32 {vr(V_DMA)}, 4, v0
        s_mul_i32 {sr(T+1)}, {sr(T+2)}, {16*288}
        s_mul_i32 {sr(S_LB)}, {sr(S_W)}, {BLK}
        s_add_u32 m0, {sr(S_LB)}, {L_XS}
        s_mov_b32 {sr(S_X+2)}, 2304000
        s_mov_b32 {sr(S_X+3)}, {sr(S_W1+3)}
        s_add_u32 {sr(S_CNT)}, {sr(T+1)}, 4096
        s_waitcnt lgkmcnt(0)
        s_mov_b64 {sr(S_X,2)}, s[56:57]""")
        for k in range(4): a(f"buffer_load_dwordx4 {vr(V_DMA)}, {sr(S_X,4)}, {sr(T+1)} offen offset:{1024*k} lds")
        a(f"s_add_u32 m0, {sr(S_LB)}, {L_XS + 4096}\ns_mov_b32 exec_hi, 0\nbuffer_load_dwordx4 {vr(V_DMA)}, {sr(S_X,4)}, {sr(S_CNT)} offen lds\ns_mov_b32 exec_hi, -1")
        mx = len(a.lines)
        a(f"""s_add_u32 {sr(S_LB)}, {sr(S_LB)}, {L_XS}
        s_and_b32 {sr(S_H)}, s2, 1
        s_lshl1_add_u32 {sr(S_TOWN)}, {sr(S_QB)}, {sr(S_H)}
        s_cmp_lt_u32 {sr(S_TOWN)}, {NT}
        s_cselect_b32 {sr(S_VAL)}, 1, 0
        s_add_u32 {sr(S_TOWN)}, {sr(S_TOWN)}, {sr(T)}""")
        SQ, SK, SU = S_W2, S_W1, S_XA
        self.srd(SU, 66, 67, 82944)
        self.srd(SQ, 58, 59, 41472)
        self.srd(SK, 60, 61, 41472)
        a(f"s_lshr_b32 {sr(T)}, {sr(PH)}, 3\ns_lshl_b32 {sr(T)}, {sr(T)}, 12\ns_lshl_b32 {sr(W10)}, {sr(S_W)}, 10\ns_add_u32 {sr(T)}, {sr(T)}, {sr(W10)}")
        a(f"buffer_load_dwordx4 v[252:255], {vr(V_DMA)}, {sr(SU,4)}, {sr(T)} offen")
        for srd_, rot in ((SQ, 82), (SK, 41)):
            a(f"s_add_u32 {sr(T+1)}, {sr(T)}, {(128 - rot) * 1024}\ns_and_b32 {sr(T+1)}, {sr(T+1)}, {127 * 1024}")
            a(f"buffer_load_dwordx4 v[252:255], {vr(V_DMA)}, {sr(srd_,4)}, {sr(T+1)} offen")
        self.srd(S_OUT, 74, 75, 2304000)
        self.srd(S_DB, 76, 77, 256)
        self.srd(S_WS, 78, 79, WS_END)
        def tlb():
            a(f"v_lshlrev_b32 v249, 21, v0")
            for ch in o.get("tlbw", "wdo"): a(f"buffer_load_dword v252, v249, {sr(dict(w=S_WS, d=S_DB, o=S_OUT)[ch],4)}, 0 offen")
        if o.get("tlb", 0) == 1: tlb()
        if o.get("tlb", 3) == 3:
            a(f"""s_bfe_u32 {sr(T)}, {sr(PH)}, 0x30003
            s_lshl_b32 {sr(T)}, {sr(T)}, 21
            v_mov_b32 v249, 0
            s_cmp_lt_u32 {sr(T)}, {5 << 21}
            s_cbranch_scc0 L_tl1
            buffer_load_dword v252, v249, {sr(S_WS,4)}, {sr(T)} offen
            s_branch L_tl3
            L_tl1:
            s_sub_u32 {sr(T)}, {sr(T)}, {5 << 21}
            s_cmp_lt_u32 {sr(T)}, {2 << 21}
            s_cbranch_scc0 L_tl2
            buffer_load_dword v252, v249, {sr(S_OUT,4)}, {sr(T)} offen
            s_branch L_tl3
            L_tl2:
            s_or_b32 s4, s4, 1
            v_lshlrev_b32 v249, 8, v0
            v_mov_b32 v250, s4
            s_lshl2_add_u32 s5, {sr(PH)}, {sr(S_W)}
            s_cmp_eq_u32 s5, {56 * 4}
            s_cbranch_scc0 L_tl4
            buffer_store_dword v250, v249, {sr(S_DB,4)}, 0 offen sc1
            s_branch L_tl3
            L_tl4:
            buffer_load_dword v252, v249, {sr(S_DB,4)}, 0 offen offset:128
            L_tl3:""")
            self.vm_adj = -3
        if o.get("tst") and o["tst"][0] == "beg": self.tstore()
        if o.get("tl4"):
            a(f"""s_mul_i32 {sr(T)}, {sr(S_TOWN)}, {TILE}
            v_lshlrev_b32 v249, 12, v0
            v_add_u32 v249, {sr(T)}, v249
            s_mov_b64 exec, 7
            buffer_load_dword v252, v249, {sr(S_WS,4)}, 0 offen
            s_mov_b64 exec, -1""")
        if o.get("stamps"): a(f"s_mov_b64 {sr(S_ST,2)}, s[100:101]"); self.stnames.append("start"); self.nst = 1
        self.stamp("xiss")
        a(f"""s_cmp_lt_u32 {sr(T+3)}, {NT}
        s_cselect_b32 {sr(WV)}, 1, 0
        s_mov_b32 {sr(WV+1)}, {sr(T+2)}
        s_mul_i32 {sr(UOFF)}, {sr(S_H)}, 288
        s_cmp_eq_u32 {sr(S_W)}, 0
        s_cselect_b32 {sr(M1)}, 0, {L_DUMP}
        s_cmp_lt_u32 {sr(S_W)}, 3
        s_cselect_b32 {sr(M3)}, {sr(W10)}, {L_DUMP}""")
        half = lambda g_: "s_mov_b32 exec_hi, 0\n" + g_ + "\ns_mov_b32 exec_hi, -1"
        gu = [f"s_add_u32 m0, {sr(W10 if k < 10 else M1)}, {L_WU + 4096*k}\ns_add_u32 {sr(S_CNT)}, {sr(UOFF)}, {4096*k + 288*(256*k//18)}\nbuffer_load_dwordx4 {vr(VU[k])}, {sr(SU,4)}, {sr(S_CNT)} offen lds" for k in range(11)]
        gu[10] = half(gu[10])
        gq = [f"s_add_u32 m0, {sr(W10 if k < 10 else M1)}, {L_WQ + 4096*k}\ns_add_u32 {sr(S_CNT)}, {sr(W10)}, {4096*k}\nbuffer_load_dwordx4 {vr(V_DMA)}, {sr(SQ,4)}, {sr(S_CNT)} offen lds" for k in range(11)]
        gq[10] = half(gq[10])
        gk = [f"s_add_u32 m0, {sr(W10 if k < 10 else M3)}, {L_WK + 4096*k}\ns_mov_b32 {sr(S_CNT)}, {4096*k - 16*(256*k//19)}\nbuffer_load_dwordx4 {vr(VK[k])}, {sr(SK,4)}, {sr(S_CNT)} offen lds" for k in range(11)]
        a(f"s_lshl_b32 {sr(T)}, {sr(S_W)}, 6\nv_add_u32 {vr(t0)}, {sr(T)}, v0\nv_lshlrev_b32 {vr(t1)}, 4, {vr(t0)}")
        self.voff_table(VU, 18, 576, t0)
        npre = o.get("npre", 3)
        a.bg, a.every, a.cnt = gu[:npre], o.get("evpre", 40), 0
        self.voff_table(VK, 19, 288, t0)
        xa0, xa1, xa2 = TM, TM + 1, TM + 2
        a(f"""v_and_b32 {vr(t0)}, 15, v0
        v_lshrrev_b32 {vr(t1)}, 5, v0
        v_lshlrev_b32 {vr(t1)}, 3, {vr(t1)}
        v_xor_b32 {vr(t1)}, {vr(t0)}, {vr(t1)}
        v_lshlrev_b32 {vr(t1)}, 4, {vr(t1)}
        v_lshrrev_b32 {vr(t2)}, 4, v0
        v_lshl_add_u32 {vr(V_KA)}, {vr(t2)}, 9, {vr(t1)}
        v_lshrrev_b32 {vr(t1)}, 3, {vr(t0)}
        v_lshlrev_b32 {vr(t1)}, 1, {vr(t1)}
        v_xor_b32 {vr(t1)}, {vr(t2)}, {vr(t1)}
        v_lshl_add_u32 {vr(t1)}, {vr(t0)}, 2, {vr(t1)}
        v_lshlrev_b32 {vr(V_KA+1)}, 3, {vr(t1)}
        v_lshlrev_b32 {vr(L8)}, 3, v0
        v_lshlrev_b32 {vr(MXR)}, 4, {vr(t0)}
        v_add_u32 {vr(MXR)}, {L_MX}, {vr(MXR)}
        v_add_u32 {vr(MXA)}, {sr(S_W)}, {vr(t2)}
        v_and_b32 {vr(MXA)}, 3, {vr(MXA)}
        v_lshl_add_u32 {vr(MXA)}, {vr(MXA)}, 8, {vr(MXR)}
        s_lshl_b32 {sr(T)}, {sr(S_W)}, 2
        v_add_u32 {vr(MXA)}, {sr(T)}, {vr(MXA)}
        v_mul_u32_u24 {vr(xa2)}, 288, {vr(t0)}
        v_lshl_add_u32 {vr(xa2)}, {vr(t2)}, 3, {vr(xa2)}
        v_add_u32 {vr(xa2)}, {sr(S_LB)}, {vr(xa2)}
        v_and_b32 {vr(t1)}, 1, {vr(t2)}
        v_lshlrev_b32 {vr(t1)}, 5, {vr(t1)}
        v_add_u32 {vr(xa0)}, {vr(xa2)}, {vr(t1)}
        v_xor_b32 {vr(t1)}, 32, {vr(t1)}
        v_add_u32 {vr(xa1)}, {vr(xa2)}, {vr(t1)}
        s_mul_i32 {sr(S_LB)}, {sr(S_W)}, {TILE}
        v_lshrrev_b32 {vr(t0)}, 2, v0
        v_bfe_u32 {vr(t1)}, v0, 1, 1
        v_lshlrev_b32 {vr(t1)}, 3, {vr(t1)}
        v_xor_b32 {vr(t1)}, {vr(t0)}, {vr(t1)}
        v_lshlrev_b32 {vr(t1)}, 4, {vr(t1)}
        v_and_b32 {vr(t2)}, 3, v0
        v_lshl_add_u32 {vr(t1)}, {vr(t2)}, 9, {vr(t1)}
        v_and_b32 {vr(V_VA)}, 1, v0
        v_lshl_add_u32 {vr(t1)}, {vr(V_VA)}, 3, {vr(t1)}
        s_and_b32 {sr(T)}, {sr(S_W)}, 1
        s_lshl_b32 {sr(T)}, {sr(T)}, 12
        s_add_u32 {sr(T+1)}, {sr(T)}, {sr(S_LB)}
        s_xor_b32 {sr(T)}, {sr(T)}, 4096
        s_add_u32 {sr(T)}, {sr(T)}, {sr(S_LB)}
        v_add_u32 {vr(V_VA)}, {sr(T)}, {vr(t1)}
        v_add_u32 {vr(V_VB)}, {sr(T+1)}, {vr(t1)}
        v_xor_b32 {vr(V_VA+1)}, 8, {vr(V_VA)}
        v_xor_b32 {vr(V_VB+1)}, 8, {vr(V_VB)}
        v_lshrrev_b32 {vr(t1)}, 5, v0
        v_lshlrev_b32 {vr(t1)}, 1, {vr(t1)}
        v_xor_b32 {vr(t1)}, {vr(t2)}, {vr(t1)}
        v_lshl_add_u32 {vr(t1)}, {vr(t0)}, 2, {vr(t1)}
        v_lshlrev_b32 {vr(t1)}, 3, {vr(t1)}
        v_add_u32 {vr(V_VR)}, {sr(S_LB)}, {vr(t1)}
        v_add_u32 {vr(V_DMA+1)}, 4096, {vr(V_DMA)}
        v_add_u32 {vr(V_DMA+2)}, 8192, {vr(V_DMA)}""")
        self.tr_addr(TRU, L_WU, True, t0)
        a(f"s_lshl_b32 {sr(T)}, {sr(S_W)}, 6\ns_add_u32 {sr(T)}, {sr(T)}, {L_WQ - L_WU}")
        for k in range(3):
            a(f"v_add_u32 {vr(TRQ+k)}, {sr(T)}, {vr(TRU+k)}\nv_add_u32 {vr(TRQ8+k)}, {L_WQ - L_WU + 256}, {vr(TRU+k)}")
        self.row_addr(RK + 2, L_WK + 8 * 4864, t0)
        a(f"""s_mul_i32 {sr(T)}, {sr(S_W)}, {2*4864}
        s_sub_u32 {sr(T)}, {sr(T)}, {8*4864}
        v_add_u32 {vr(t1)}, {sr(T)}, {vr(RK+2)}
        v_bfe_u32 {vr(t0)}, v0, 2, 1
        v_mul_u32_u24 {vr(t0)}, 4864, {vr(t0)}
        v_add_u32 {vr(RK)}, {vr(t1)}, {vr(t0)}
        v_sub_u32 {vr(RK+1)}, {vr(t1)}, {vr(t0)}""")
        for j in range(4):
            a(f"""s_add_u32 {sr(T)}, {sr(S_W)}, {j}
            s_and_b32 {sr(T)}, {sr(T)}, 3
            s_lshl_b32 {sr(T+1)}, {sr(T)}, 12
            s_add_u32 {sr(T+1)}, {sr(T+1)}, {L_XX}
            v_add_u32 {vr(VS+j)}, {sr(T+1)}, {vr(V_DMA)}
            s_lshl_b32 {sr(T+1)}, {sr(T)}, 9
            s_add_u32 {sr(T+1)}, {sr(T+1)}, {L_XR}
            v_add_u32 {vr(VR4+j)}, {sr(T+1)}, {vr(L8)}
            v_add_u32 {vr(VSW+j)}, {sr(W10)}, {vr(VS+j)}""")
        a(f"""s_sub_u32 {sr(T+2)}, 63, {sr(S_H)}
        s_add_u32 {sr(T+3)}, {sr(S_W)}, 60
        s_cmp_ge_u32 {sr(T+3)}, {sr(T+2)}
        s_cselect_b32 {sr(S_DUM)}, 4, 99
        s_mov_b32 {sr(S_REDO)}, 0
        s_mov_b32 {sr(S_TOFF)}, {sr(S_LB)}
        s_lshl_b32 {sr(PUB)}, {sr(S_TOWN)}, 8
        s_add_u32 {sr(PUB)}, {sr(PUB)}, {WS_F}
        s_and_b32 {sr(T)}, {sr(S_W)}, 1
        s_lshl_b32 {sr(T)}, {sr(T)}, 7
        s_add_u32 {sr(PUB)}, {sr(PUB)}, {sr(T)}
        s_lshr_b32 {sr(T)}, {sr(S_W)}, 1
        s_and_b32 {sr(T)}, {sr(T)}, {sr(S_VAL)}
        s_cmp_eq_u32 {sr(T)}, 1
        s_cselect_b32 {sr(PUB)}, {sr(PUB)}, 0x40000000
        s_lshl_b32 {sr(S_FB)}, s2, 8
        s_add_u32 {sr(S_FB)}, {sr(S_FB)}, {WS_F + 250*256}
        s_mul_i32 {sr(T)}, {sr(S_H)}, 1792
        s_sub_u32 {sr(T)}, {sr(T)}, 768
        s_mul_i32 {sr(T+1)}, {sr(S_H)}, 62
        s_cmp_eq_u32 {sr(S_QB)}, {sr(T+1)}
        s_cselect_b32 {sr(T)}, 0, {sr(T)}
        v_mov_b32 {vr(self.VPL)}, 0x40000000
        s_xor_b32 {sr(T+1)}, {sr(S_FB)}, 256
        s_add_u32 {sr(T)}, {sr(T)}, {sr(S_FB)}
        v_writelane_b32 {vr(self.VPL)}, {sr(S_FB)}, 0
        v_writelane_b32 {vr(self.VPL)}, {sr(T+1)}, 1
        v_writelane_b32 {vr(self.VPL)}, {sr(T)}, 2
        s_mov_b32 {sr(T)}, {WS_F + 502*256}
        s_mov_b32 {sr(T+1)}, {WS_F + 503*256}
        v_writelane_b32 {vr(self.VPL)}, {sr(T)}, 3
        v_writelane_b32 {vr(self.VPL)}, {sr(T+1)}, 4
        s_sub_u32 {sr(S_FB)}, {sr(S_FB)}, {L_PC}""")
        if o.get("xm", 0):
            a(f"""s_getreg_b32 {sr(S_XC)}, hwreg(HW_REG_XCC_ID, 0, 4)
            s_xor_b32 {sr(T)}, s2, 1
            s_lshl_b32 {sr(T)}, {sr(T)}, 8
            s_add_u32 {sr(T)}, {sr(T)}, {WS_F + 250*256 + 4}
            v_writelane_b32 {vr(self.VPL)}, {sr(T)}, 5""")
        a.flush()
        if o.get("tlb", 0) == 2: tlb()
        self.stamp("pre")
        if o.get("es", 0) == 0: self.epi_setup()
        self.stamp("es")
        nx = self.vm_since(mx) + getattr(self, "vm_adj", 0)
        if o.get("touch", 1):
            a(f"""s_mov_b64 exec, 0
            s_cmp_eq_u32 {sr(S_W)}, 0
            s_cbranch_scc1 L_tr
            s_cmp_eq_u32 {sr(S_W)}, 1
            s_cbranch_scc1 L_t0
            s_cmp_eq_u32 {sr(S_W)}, 2
            s_cbranch_scc1 L_t1
            s_branch L_t2""")
            self.rare()
            a.raw(".p2align 12")
            a.label("L_tr")
            a("s_mov_b64 exec, -1")
        nlate = o.get("nlate", 0)
        for g_ in gu[npre:npre + nlate]: a(g_)
        a(f"s_waitcnt vmcnt({nx + nlate})")
        self.stamp("xarr")
        for s in range(4):
            a(f"ds_read_b64 {vr(XR+4*s,2)}, {vr(xa0)} offset:{64*s}\nds_read_b64 {vr(XR+4*s+2,2)}, {vr(xa1)} offset:{64*s}")
        a(f"ds_read_b64 {vr(XR+16,2)}, {vr(xa2)} offset:256")
        a(f"""s_and_b32 {sr(T)}, {sr(S_W)}, 1
        s_mul_i32 {sr(T+2)}, {sr(S_TOWN)}, {TILE}
        s_cmp_eq_u32 {sr(S_VAL)}, 1
        s_cselect_b32 {sr(T+2)}, {sr(T+2)}, 0x40000000
        s_lshl_b32 {sr(T+3)}, {sr(T)}, 8
        s_add_u32 {sr(T+3)}, {sr(T+3)}, {sr(T+2)}
        s_add_u32 {sr(T+4)}, {sr(T+3)}, 4096
        s_lshl_b32 {sr(T+5)}, {sr(T)}, 9
        s_add_u32 {sr(T+5)}, {sr(T+5)}, {sr(T+2)}
        s_add_u32 {sr(T+5)}, {sr(T+5)}, 8192
        s_waitcnt lgkmcnt(0)""")
        wl = gq + gk
        a.bg, a.every, a.cnt = gu[npre + nlate:] + [wl.pop(0) for _ in range(o.get("nql", 11))], o.get("evln", 5), 0
        self.ln_packed(XR, XF, XA, TM)
        a.flush()
        self.stamp("ln")
        if o.get("tst") and o["tst"][0].startswith("pub"): self.tstore()
        a(f"s_cmp_lt_u32 {sr(S_W)}, 2\ns_cbranch_scc1 L_nop")
        w16 = o.get("w16", 0)
        pair = lambda d, src: [f"v_mov_b32 {vr(d)}, {vr(src)}\nv_mov_b32 {vr(d+1)}, {vr(src+1)}", f"v_mov_b32 {vr(d+2)}, {vr(src)}\nv_mov_b32 {vr(d+3)}, {vr(src+1)}", "",
                               f"v_permlane16_swap_b32 {vr(d)}, {vr(d+2)}\nv_permlane16_swap_b32 {vr(d+1)}, {vr(d+3)}"]
        pr = pair(XR, XA + 16)
        for s in range(4):
            a(f"buffer_store_dwordx4 {vr(XA+4*s,4)}, {vr(V_KA)}, {sr(S_WS,4)}, {sr(T+3+(s>>1))} offen offset:{2048*(s&1)} {o.get('pfl', 'sc1')}")
            if w16 & 1: a(pr[s])
        if w16 & 1:
            a(f"s_mov_b32 exec_lo, 0xffff\ns_mov_b32 exec_hi, 0xffff\nbuffer_store_dwordx4 {vr(XR,4)}, {vr(V_KA+1)}, {sr(S_WS,4)}, {sr(T+5)} offen {o.get('pfl', 'sc1')}\ns_mov_b64 exec, -1")
        else: a(f"buffer_store_dwordx2 {vr(XA+16,2)}, {vr(V_KA+1)}, {sr(S_WS,4)}, {sr(T+5)} offen {o.get('pfl', 'sc1')}")
        a(f"s_waitcnt vmcnt({5 + o.get('nql', 11)})\ns_branch L_bar1")
        a.label("L_nop")
        if o.get("touch", 1):
            a(f"s_mov_b64 exec, 0\ns_cmp_eq_u32 {sr(S_W)}, 0\ns_cbranch_scc1 L_t3\ns_branch L_t4")
            a.label("L_tr2")
            a("s_mov_b64 exec, -1")
        a(f"s_waitcnt vmcnt({o.get('nql', 11)})")
        a.label("L_bar1")
        self.stamp("pub")
        xw = [f"ds_write_b128 {vr(VS)}, {vr(XA+4*s,4)} offset:{1024*s}" for s in range(4)] + [f"ds_write_b64 {vr(VR4)}, {vr(XA+16,2)}"]
        self.stamp("tch")
        PA = 249
        a(f"""v_add_u32 {vr(V_KA)}, {sr(S_LB)}, {vr(V_KA)}
        v_add_u32 {vr(V_KA+1)}, {sr(S_LB)}, {vr(V_KA+1)}
        s_mul_i32 {sr(T)}, {sr(S_B)}, {NT}
        s_mul_i32 {sr(T+1)}, {sr(S_H)}, 63
        s_add_u32 {sr(T)}, {sr(T)}, {sr(T+1)}
        s_lshl_b32 {sr(T)}, {sr(T)}, 8
        s_add_u32 {sr(T)}, {sr(T)}, {WS_F}
        s_cmp_eq_u32 {sr(S_W)}, 0
        {"" if o.get("gatepos", 0) else f"s_cselect_b32 {sr(T)}, {sr(T)}, 0x40000000"}
        v_lshl_add_u32 {vr(PA)}, v0, 8, {sr(T)}
        {self.xa_srd()}
        s_waitcnt lgkmcnt(0)""")
        self.stamp("w1")
        a("s_barrier")
        self.stamp("bar1")
        m_b1 = len(a.lines)
        poll = lambda r: f"buffer_load_dword {vr(r)}, {vr(PA)}, {sr(S_WS,4)}, 0 offen sc1\nbuffer_load_dword {vr(r+2)}, {vr(PA)}, {sr(S_WS,4)}, 0 offen offset:128 sc1"

        def gate(lab, r, mask, younger):
            a(f"s_mov_b32 {sr(T+2)}, 0\ns_waitcnt vmcnt({younger})")
            a.label(lab)
            a(f"""v_cmp_ne_u32 vcc, {sr(S_N)}, {vr(r)}
            v_cmp_ne_u32 {sr(T+10,2)}, {sr(S_N)}, {vr(r+2)}
            s_add_u32 {sr(T+2)}, {sr(T+2)}, 1
            s_or_b64 vcc, vcc, {sr(T+10,2)}
            s_and_b64 vcc, vcc, {mask}
            s_cbranch_scc0 {lab}_ok
            s_sleep {o.get("slp", 4)}
            {poll(r)}
            s_waitcnt vmcnt(0)
            s_cmp_lt_u32 {sr(T+2)}, 0x40000
            s_cbranch_scc1 {lab}""")
            a.label(lab + "_ok")

        H, G_, UG, MS, CL = 16, 52, 208, 110, 104
        nup = o.get("nup", 5)
        at = {o.get("u0", 6) + o.get("usp", 6) * i: wl.pop(0) for i in range(nup)}
        for i in range(5): at[i] = xw[i]
        tagld = f"buffer_load_dword v253, off, {sr(S_DB,4)}, 0 sc1"
        tag1 = tagld.replace("sc1", o.get("tgf", "sc1")).strip()
        at[o.get("tgp", 5)] = tag1
        if o.get("es", 0) == 1:
            n_ = len(a.lines); self.epi_setup()
            el = [l.strip() for l in a.lines[n_:]]; del a.lines[n_:]
            for k in range(5, 42):
                if k in at: continue
                c_ = 0
                while el and c_ < o.get("esn", 2):
                    x = el.pop(0); at[k] = at.get(k, "") + x + "\n"; c_ += 1 if x.startswith("v_") else 0.5
            self.es_left = el
        self.gemm(self.tr_reads(TRU), XA, H, None, at=at)
        if o.get("es", 0) == 1:
            for x in self.es_left: a(x)
        self.stamp("up")
        p = lambda r: vr(r, 2)
        CC = TM
        c1 = -2.0 * math.sqrt(2.0 / math.pi) * LOG2E
        c2 = c1 * 0.044715
        gst = [[f"v_pk_mul_f32 {p(G_+2*i)}, {p(H+2*i)}, {p(H+2*i)}" for i in range(18)] +
               [f"v_pk_fma_f32 {p(G_+2*i)}, {p(G_+2*i)}, {p(CC+2)}, {p(CC)} op_sel_hi:[1,0,0]" for i in range(18)] +
               [f"v_pk_mul_f32 {p(G_+2*i)}, {p(G_+2*i)}, {p(H+2*i)}" for i in range(18)],
               [f"v_exp_f32 {vr(G_+i)}, {vr(G_+i)}" for i in range(36)],
               [f"v_pk_add_f32 {p(G_+2*i)}, {p(G_+2*i)}, {p(CC+4)} op_sel_hi:[1,0]" for i in range(18)],
               [f"v_rcp_f32 {vr(G_+i)}, {vr(G_+i)}" for i in range(36)],
               [f"v_pk_mul_f32 {p(H+2*i)}, {p(G_+2*i)}, {p(H+2*i)}" for i in range(18)]]
        gs = o.get("gs", 0)
        if gs:
            a(f"v_mov_b32 {vr(CC)}, {f32(c1)}\nv_mov_b32 {vr(CC+2)}, {f32(c2)}\nv_mov_b32 {vr(CC+4)}, 1.0")
            pre = [x for st_ in gst[:gs] for x in st_]
            ngw = o.get("ngw", 0)
            for i, x in enumerate(pre):
                a(x)
                if ngw and i % o.get("gwsp", 8) == 2 and wl: a(wl.pop(0)); ngw -= 1
            self.stamp("gea")
        last = lambda srd: max(i for i, l in enumerate(a.lines) if l.strip().startswith("buffer_load") and sr(srd, 4) in l) + 1
        assert not any(sr(SQ, 4) in x for x in wl)
        nq_ = self.vm_since(m_b1) + (5 if last(SQ) < m_b1 else 0) if last(SQ) < m_b1 else self.vm_since(last(SQ))
        a(f"s_waitcnt vmcnt({self.vm_since(m_b1) if last(SQ) < m_b1 else nq_}) lgkmcnt(0)" if False else "")
        if last(SQ) < m_b1:
            a(f"s_cmp_lt_u32 {sr(S_W)}, 2\ns_cbranch_scc1 L_bg0\ns_waitcnt vmcnt({5 + self.vm_since(m_b1)})\ns_branch L_bg1\nL_bg0:\ns_waitcnt vmcnt({self.vm_since(m_b1)})\nL_bg1:\ns_waitcnt lgkmcnt(0)\ns_barrier")
        else: a(f"s_waitcnt vmcnt({self.vm_since(last(SQ))}) lgkmcnt(0)\ns_barrier")

        def flag():
            n_ = self.vm_since(max(i for i, l in enumerate(a.lines) if l.strip() == tag1) + 1)
            if w16 & 2: a(self.a8() + f"\ns_mov_b32 {sr(T+5)}, 0\ns_waitcnt vmcnt({n_})")
            else: a(f"v_lshrrev_b32 {vr(t0)}, 5, v0\nv_lshlrev_b32 {vr(t0)}, 30, {vr(t0)}\nv_lshl_add_u32 {vr(t0)}, v0, 2, {vr(t0)}\ns_mov_b32 {sr(T+5)}, 0\ns_waitcnt vmcnt({n_})")
            a.label("L_tag")
            a(f"""v_readfirstlane_b32 {sr(S_N)}, v253
            s_add_u32 {sr(T+5)}, {sr(T+5)}, 1
            s_cmp_lg_u32 {sr(S_N)}, 0
            s_cbranch_scc1 L_tag_ok
            {tagld}
            s_waitcnt vmcnt(0)
            s_cmp_lt_u32 {sr(T+5)}, 0x40000
            s_cbranch_scc1 L_tag""")
            a.label("L_tag_ok")
            if w16 & 2:
                for i in range(4): a(f"v_mov_b32 {vr(CL+i)}, {sr(S_N)}")
                a(f"buffer_store_dwordx4 {vr(CL,4)}, v255, {sr(S_WS,4)}, {sr(PUB)} offen sc1")
            else: a(f"v_mov_b32 {vr(t1)}, {sr(S_N)}\nbuffer_store_dword {vr(t1)}, {vr(t0)}, {sr(S_WS,4)}, {sr(PUB)} offen sc1")
            self.m_fl = len(a.lines)
            self.stamp("flag")
        self.stamp("barG")
        if o.get("atw"):
            a("s_waitcnt vmcnt(1)")
            self.stamp("ack1")
            a("s_waitcnt vmcnt(0)")
            self.stamp("ack")
        if o.get("census"):
            k_ = S_ST + 2 * self.stnames.index(o["census"][0])
            a(f"s_waitcnt lgkmcnt(0)\nv_mov_b32 v252, {sr(k_)}\ns_lshl_b32 {sr(T)}, s2, 2\ns_add_u32 {sr(T)}, {sr(T)}, {WS_DBG}\nv_mov_b32 v253, 0\nbuffer_store_dword v252, v253, {sr(S_WS,4)}, {sr(T)} offen sc1")

        def a_tr(t):
            ad, off = (TRQ, 32 * t) if t < 2 else (TRQ8, 0)
            return [f"ds_read_b64_tr_b16 {ar(AQ1+18*t+4*s+2*u,2)}, {vr(ad+u)} offset:{9216*s + off}" for s in range(4) for u in range(2)] + \
                   [f"ds_read_b64_tr_b16 {ar(AQ1+18*t+16,2)}, {vr(ad+2)} offset:{36864 + off}"]

        def a_row(t):
            off = 4864 * t if t < 2 else 0
            return [f"ds_read_b64 {ar(A_Q+18*t+4*s+2*u,2)}, {vr(RK+t)} offset:{off + 64*s + 32*u}" for s in range(4) for u in range(2)] + \
                   [f"ds_read_b64 {ar(A_Q+18*t+16,2)}, {vr(RK+t)} offset:{off + 256}"]
        bq = lambda j, d=0: [f"ds_read_b128 {ar(18*j+4*s,4)}, {vr(VS+j)} offset:{d + 1024*s}" for s in range(4)] + [f"ds_read_b64 {ar(18*j+16,2)}, {vr(VR4+j)} offset:{d}"]

        def post(u, scale, d):
            L = [f"v_mul_f32 {vr(ACC+4*u+i)}, {sr(T+4)}, {vr(ACC+4*u+i)}" for i in range(4)] if scale else []
            L += [f"v_cvt_pk_bf16_f32 {vr(PK + (4*(u&3) + 2*(u>>2) if u < 8 else 16) + h)}, {vr(ACC+4*u+2*h)}, {vr(ACC+4*u+2*h+1)}" for h in range(2)]
            if 4 <= u < 8: L.append(f"ds_write_b128 {vr(VSW+u-4)}, {vr(PK+4*(u-4),4)} offset:{d}")
            if u == 8: L.append(f"ds_write_b64 {vr(VR4)}, {vr(PK+16,2)} offset:{d}")
            return L
        fl2 = o.get("fl2", 1)
        self.m_fl = 0
        xd = [f"ds_read_b128 {vr(XD+4*j,4)}, {vr(VSW+j)}" for j in range(4)]
        self.gemm_u(AQ1, ar, [("v", XA), ("a", 18), ("a", 36), ("a", 54)], ACC, a_tr, lambda j: bq(j) if j else None, lambda u: post(u, False, L_QD),
                    vm_items=wl, other=xd, vmsp=o.get("vmsp", 3), at={o.get("flp", 22): flag} if fl2 < 0 else {})
        self.stamp("g1")
        for i in range(4): a(f"v_mov_b32 {vr(CL+i)}, -1")
        a(f"s_lshl2_add_u32 {sr(T+2)}, s2, {sr(S_W)}\ns_mul_i32 {sr(T+2)}, {sr(T+2)}, 2560\ns_add_u32 {sr(T+2)}, {sr(T+2)}, {WS_IB}")
        a(f"s_mov_b32 {sr(T+4)}, {f32(LOG2E / 12.0)}\ns_waitcnt vmcnt({self.vm_since(max(last(SK), self.m_fl)) + (last(SK) < self.m_fl)}) lgkmcnt(0)\ns_barrier")
        T2 = T + 2
        clr = [f"buffer_store_dwordx4 {vr(CL,4)}, {vr(V_DMA)}, {sr(S_WS,4)}, {sr(T+2)} offen sc1",
               f"buffer_store_dwordx4 {vr(CL,4)}, {vr(V_DMA)}, {sr(S_WS,4)}, {sr(T+2)} offen offset:1024 sc1",
               f"buffer_store_dwordx2 {vr(CL,2)}, {vr(L8)}, {sr(S_WS,4)}, {sr(T+2)} offen offset:2048 sc1"]
        self.stamp("bar2")
        gp_ = o.get("gatepos", 0)
        cl1 = not o.get("cll", 1)
        self.gemm_u(A_Q, ar, [("a", 18 * j) for j in range(4)], ACC, a_row, lambda j: bq(j, L_QD), lambda u: post(u, True, 0), vm_items=((clr if cl1 else []) + [poll(252)] if gp_ == 0 else clr if cl1 else []), vm0=o.get("pg", 6), vmsp=o.get("csp", 3),
                    lastk=o.get("plk", 26) if gp_ == 0 else 0, at={fl2: flag} if fl2 >= 0 else {})
        self.stamp("g2")
        p = lambda r: vr(r, 2)
        CC = TM
        for j in range(4): a(f"v_dot2_f32_bf16 {vr(CC+j)}, {vr(PK+4*j)}, {vr(XD+4*j)}, 0")
        for i in range(2): a(f"v_dot2_f32_bf16 {vr(CC)}, {vr(PK+16+i)}, {vr(XA+16+i)}, {vr(CC)}")
        for i in range(1, 4):
            for j in range(4): a(f"v_dot2_f32_bf16 {vr(CC+j)}, {vr(PK+4*j+i)}, {vr(XD+4*j+i)}, {vr(CC+j)}")
        QE = VS if gs else TRQ
        a(f"""s_xor_b32 {sr(T+1)}, {sr(self.NB)}, 1
        v_add_u32 {vr(t0)}, {L_XX}, {vr(V_DMA)}
        v_lshl_add_u32 {vr(QE)}, {sr(T+1)}, 12, {vr(t0)}
        v_lshl_add_u32 {vr(QE+1)}, {sr(self.NB)}, 12, {vr(t0)}""")
        self.treduce(CC)
        a(f"""ds_write_b32 {vr(MXA)}, {vr(CC)}
        v_add_u32 {vr(t0)}, {L_XR}, {vr(L8)}
        v_lshl_add_u32 {vr(QE+2)}, {sr(T+1)}, 9, {vr(t0)}
        v_lshl_add_u32 {vr(QE+3)}, {sr(self.NB)}, 9, {vr(t0)}
        v_lshl_add_u32 {vr(QE+4)}, {sr(T+1)}, 8, {vr(MXR)}
        v_lshl_add_u32 {vr(QE+5)}, {sr(self.NB)}, 8, {vr(MXR)}
        s_sub_u32 {sr(T+5)}, 63, {sr(S_H)}
        s_bfm_b64 {sr(T+8,2)}, {sr(T+5)}, 0
""")
        if gp_ == 0:
            a(f"s_cmp_lg_u32 {sr(S_W)}, 0\ns_cbranch_scc1 L_ga_ok")
            gate("L_ga", 252, sr(T + 8, 2), 0)
        else: a(poll(252))
        a("s_waitcnt lgkmcnt(0)\ns_barrier")
        self.stamp("bar3")
        qrd = [f"ds_read_b128 {vr(MS+4*qb,4)}, {vr(QE+4+(qb&1))} offset:{512*(qb>>1)}" for qb in range(4)]
        for qb in range(4):
            qrd += [f"ds_read_b128 {ar(A_Q+18*qb+4*s,4)}, {vr(QE+(qb&1))} offset:{8192*(qb>>1) + 1024*s}" for s in range(4)]
            qrd.append(f"ds_read_b64 {ar(A_Q+18*qb+16,2)}, {vr(QE+2+(qb&1))} offset:{1024*(qb>>1)}")
        if gs:
            tg = self.tile_groups(0) + self.tile_groups(1)
            n0 = o.get("n0", 3)
            for x in tg[:n0]: a(x)
            tg = tg[n0:]
            if gs < 3: a(f"v_mov_b32 {vr(CC+4)}, 1.0")
            mem = []
            qpd = o.get("qpd", 2)
            while tg or qrd:
                it = []
                if tg: it.append(tg.pop(0))
                it += [qrd.pop(0) for _ in range(min(qpd, len(qrd)))]
                mem.append("\n".join(it))
            com = [x for st_ in gst[gs:] for x in st_]
            ev = o.get("gev", 3)
            for i, x in enumerate(com):
                a(x)
                if i % ev == ev - 1 and mem: a(mem.pop(0))
            a(f"""s_mul_i32 {sr(T)}, {sr(WV+1)}, {BLK}
            s_cmp_eq_u32 {sr(S_H)}, 1
            s_cbranch_scc1 L_ln2
            s_add_u32 {sr(T)}, {sr(T)}, {WS_U}""")
            m0_ = list(mem)
            for i in range(18):
                a(f"v_cvt_pk_bf16_f32 {vr(UG+i)}, {vr(H+2*i)}, {vr(H+2*i+1)}")
                if i % o.get("gev0", 2) == 1 and m0_: a(m0_.pop(0))
            for x in m0_: a(x)
            a("s_branch L_ug")
            a.label("L_ln2")
            a(f"s_add_u32 {sr(T)}, {sr(T)}, {WS_G}")
            a.bg, a.every, a.cnt = list(mem), o.get("gev1", 6), 0
            self.ln_f32(H, UG, TM)
            a.flush()
            a.label("L_ug")
            m_t0 = m_t1 = None
        else:
            tg = self.tile_groups(0) + self.tile_groups(1) + self.tile_groups(2)[:8]
            n0 = o.get("n0", 3) if gp_ == 0 else 0
            for x in tg[:n0]: a(x)
            a(f"v_mov_b32 {vr(CC)}, {f32(c1)}\nv_mov_b32 {vr(CC+2)}, {f32(c2)}\nv_mov_b32 {vr(CC+4)}, 1.0")
            nq1, nt1 = (o.get("nq1", 8), o.get("nt1", 5)) if gp_ == 0 else (o.get("nq1", 16), 0)
            bgl = []
            for i in range(max(nq1 // 2, nt1)):
                if 2 * i < nq1: bgl.append(qrd[2 * i] + "\n" + qrd[2 * i + 1])
                if i < nt1: bgl.append(tg[n0 + i])
            tg, qrd = tg[n0 + nt1:], qrd[nq1:]
            a.bg, a.every, a.cnt = bgl, 54 // (len(bgl) + 1), 0
            for x in gst[0]: a(x)
            a.flush()
            if gp_:
                self.stamp("ge0")
                gate("L_ga", 252, sr(T + 8, 2), 0)
                for x in tg[:2]: a(x)
                tg = tg[2:]
            self.stamp("ge1")
            esp = o.get("esp", 3 if gp_ else 4)
            for i in range(36):
                a(gst[1][i])
                if i % esp == 1 and tg: a(tg.pop(0))
                if i % 8 == 3 and qrd: a(qrd.pop(0)); a(qrd.pop(0))
            self.stamp("ge2")
            for x in gst[2]: a(x)
            for i in range(36):
                a(gst[3][i])
                if i % esp == 1 and tg: a(tg.pop(0))
                if i % 8 == 3 and qrd: a(qrd.pop(0)); a(qrd.pop(0))
            assert not tg and not qrd
            idx = [i for i, l in enumerate(a.lines) if l.strip().startswith("buffer_load") and l.rstrip().endswith("lds")]
            m_t0, m_t1 = idx[-18] + 1, idx[-9] + 1
            for x in gst[4]: a(x)
            a(f"""s_mul_i32 {sr(T)}, {sr(WV+1)}, {BLK}
            s_cmp_eq_u32 {sr(S_H)}, 1
            s_cbranch_scc1 L_ln2
            s_add_u32 {sr(T)}, {sr(T)}, {WS_U}""")
            for i in range(18): a(f"v_cvt_pk_bf16_f32 {vr(UG+i)}, {vr(H+2*i)}, {vr(H+2*i+1)}")
            a("s_branch L_ug")
            a.label("L_ln2")
            a(f"s_add_u32 {sr(T)}, {sr(T)}, {WS_G}")
            self.ln_f32(H, UG, TM)
            a.label("L_ug")
        self.stamp("ge3")
        a(f"""s_cmp_eq_u32 {sr(WV)}, 1
        s_cselect_b32 {sr(S_UG)}, {sr(T)}, 0x40000000
        s_waitcnt lgkmcnt(0)""")
        kz = [f"s_waitcnt vmcnt({9 if gs else self.vm_since(m_t0)})"] + self.k_reads(0, V_V)
        if not gs:
            for x in kz: a(x)
        self.ugs = [f"buffer_store_dwordx4 {vr(UG+4*s,4)}, {vr(V_DMA)}, {sr(S_WS,4)}, {sr(S_UG)} offen offset:{1024*s} sc1" for s in range(4)]
        self.ugs.append(f"buffer_store_dwordx2 {vr(UG+16,2)}, {vr(self.VL8)}, {sr(S_WS,4)}, {sr(S_UG)} offen sc1")
        for qb in range(4): a(f"v_pk_add_f32 {p(MS+4*qb)}, {p(MS+4*qb)}, {p(MS+4*qb+2)} neg_lo:[1,1] neg_hi:[1,1]")
        for qb in range(4): a(f"v_add_f32 {vr(self.MK+qb)}, {vr(MS+4*qb)}, {vr(MS+4*qb+1)}")
        a(f"v_lshlrev_b32 {vr(t1)}, 8, v0\nv_lshlrev_b32 v231, 2, v0\nv_add_u32 v231, {L_PC}, v231\nds_write_b32 v231, {vr(t1)}")
        self.loop_init(False)
        if gs:
            self.loop_init(True)
            self.stamp("ug0")
            for x in kz: a(x)
        else: self.n_t1 = self.vm_since(m_t1)
        self.stamp("ug")

    def a8(self):
        return f"v_lshrrev_b32 v255, 3, v0\nv_min_u32 v255, 1, v255\nv_lshlrev_b32 v255, 30, v255\nv_add_u32 v255, v255, {vr(V_DMA)}"

    def loop_init(self, part):
        a = self.a
        if part:
            for qb in range(4):
                for i in range(4): a(f"v_mov_b32 {vr(V_CI+4*qb+i)}, {vr(self.MK+qb)}")
            return
        for k in range(7): a(f"v_add_u32 {vr(V_HI+k)}, {2*SLOT}, {vr(V_KA+k if k < 5 else V_VB+k-5)}")
        a(f"v_add_u32 {vr(self.VS0)}, {sr(S_LB)}, {vr(V_DMA)}\nv_add_u32 {vr(self.VS0R)}, {sr(S_LB)}, {vr(self.VL8)}\ns_mov_b32 {sr(S_CNT)}, 0\ns_mov_b32 {sr(S_INC)}, {4*TILE}")
        for i in range(4): a(f"v_mov_b32 {vr(V_L+i)}, 0")
        for i in range(4): a(f"v_mov_b32 {vr(226+i)}, -1")
        if self.o.get("oib", 0):
            T = S_T
            a(f"""s_mul_i32 {sr(S_CL)}, {sr(S_TOWN)}, {TILE}
            s_mul_i32 {sr(T)}, {sr(self.NB)}, {BLK}
            s_lshl_b32 {sr(T+1)}, {sr(self.PT)}, 11
            s_add_u32 {sr(T)}, {sr(T)}, {sr(T+1)}
            s_add_u32 {sr(S_CL)}, {sr(S_CL)}, {sr(T)}
            s_xor_b32 {sr(T+1)}, {sr(S_H)}, 1
            s_sub_u32 {sr(T+1)}, {sr(T+1)}, {sr(S_H)}
            s_mul_i32 {sr(T+1)}, {sr(T+1)}, {TILE}
            s_add_u32 {sr(S_OS)}, {sr(S_CL)}, {sr(T+1)}
            s_cmp_ge_u32 s2, 248
            s_cselect_b32 {sr(T)}, 2.0, 0
            s_mul_i32 {sr(T+1)}, {sr(T)}, {sr(S_H)}
            s_sub_u32 {sr(T)}, {sr(T)}, {sr(T+1)}
            s_add_u32 {sr(S_OS)}, {sr(S_OS)}, {sr(T)}
            s_add_u32 {sr(S_OR)}, {sr(S_CL)}, {sr(T+1)}
            s_lshl_b32 {sr(T)}, {sr(S_REDO)}, 30
            s_or_b32 {sr(S_CL)}, {sr(S_OR)}, {sr(T)}
            s_lshl1_add_u32 {sr(S_CL+1)}, s2, {sr(self.NB)}
            s_mul_i32 {sr(S_CL+1)}, {sr(S_CL+1)}, 5120
            s_add_u32 {sr(S_CL+1)}, {sr(S_CL+1)}, {sr(T)}
            s_lshl_b32 {sr(T)}, {sr(self.PT)}, 9
            s_add_u32 {sr(T)}, {sr(T)}, {WS_IB}
            s_add_u32 {sr(S_CL+1)}, {sr(S_CL+1)}, {sr(T)}""")
        else:
            a(f"""s_lshl2_add_u32 {sr(S_CL)}, s2, {sr(S_W)}
            s_mul_i32 {sr(S_CL)}, {sr(S_CL)}, 2560
            s_lshl_b32 {sr(S_CL+1)}, {sr(S_REDO)}, 30
            s_add_u32 {sr(S_CL)}, {sr(S_CL)}, {sr(S_CL+1)}
            s_add_u32 {sr(S_CL)}, {sr(S_CL)}, {WS_IB}
            s_sub_u32 {sr(S_CL+1)}, {sr(S_CL)}, 2048""")
        a(f"v_mov_b32 v207, {sr(S_N)}\nv_mov_b32 {vr(self.VPL+1)}, 1\nv_lshlrev_b32 v231, 2, v0\nv_add_u32 v231, {L_PC}, v231")
        if self.o.get("xm", 0): a(f"s_add_u32 {sr(S_T)}, {sr(S_N)}, {sr(S_XC)}\nv_writelane_b32 v207, {sr(S_T)}, 1")

    def head(self):
        a, o = self.a, self.o
        gs = o.get("gs", 0)
        a.label("L_go")
        if not gs: self.loop_init(True)
        a("s_waitcnt lgkmcnt(0)\ns_barrier")
        self.stamp("bar5")
        base = self.qk_mfmas(0)
        pick = lambda s_, kb, qb: base[8 * s_ + 4 * kb + qb].replace(vr(V_K + 8 * s_ + 4 * kb, 4) + ",", vr(V_V + 8 * s_ + 4 * kb, 4) + ",").replace(vr(V_K + 32 + 2 * kb, 2) + ",", vr(V_V + 32 + 2 * kb, 2) + ",")
        mf, fin = [], {}
        for qb, s_ in [(0, 0), (0, 1), (0, 2), (0, 3), (1, 0), (1, 1), (0, 4), (1, 2), (1, 3), (2, 0), (2, 1), (1, 4), (2, 2), (2, 3), (3, 0), (3, 1), (2, 4),
                       (3, 2), (3, 3), (3, 4)]:
            for kb in range(2):
                fin[qb, kb] = len(mf)
                mf.append(("s_nop 3\n" if (qb, s_, kb) == (3, 4, 0) else "") + pick(s_, kb, qb))
        enew = [e[1] for g in range(40, 76) for e in self.gaps[g] if e[0] == "E"]
        items = self.e_items(0, enew, lambda qb, j: 0, lambda qb: 999)
        for it, e in zip(items, enew):
            if e[0] == "e": it["am"] = fin[e[1], e[2] // 4]
        dm = []
        for k, (slot, j) in enumerate([(2, j) for j in range(9)] if gs else [(2, 8)] + [(3, j) for j in range(9)]):
            g_ = 1 + o.get("hsp", 4) * k
            if j % 4 == 0: dm.append(dict(t=f"s_add_u32 m0, {sr(S_LB)}, {slot*SLOT + 4096*(j//4)}", c=0, lo=g_ - 1, hi=g_ - 1))
            dm.append(dict(t=f"buffer_load_dwordx4 {vr(V_DMA + j//4)}, {sr(S_XA,4)}, {sr(S_TOFF)} offen offset:{1024*(j%4)} lds", c=8, lo=g_, hi=g_))
            if j == 8: dm.append(dict(t=f"s_add_u32 {sr(S_TOFF)}, {sr(S_TOFF)}, {4*TILE}", c=0, lo=g_ + 1, hi=g_ + 1))
        nh = o.get("ugh", 2) if not o.get("ugl", 1) else 0
        for k in range(nh): dm.append(dict(t=self.ugs[k], c=8, lo=3 + 16 * k, hi=3 + 16 * k))
        if gs:
            k1 = o.get("k1lo", 22)
            kr = [dict(t=("@VM\n" if i == 0 else "") + x, c=4, lo=k1 + i // 2, hi=k1 + i // 2, nds=2) for i, x in enumerate(self.k_reads(1))]
        else:
            a(f"s_waitcnt vmcnt({self.n_t1})")
            kr = [dict(t=x, c=4, lo=i // 2, nds=2) for i, x in enumerate(self.k_reads(1))]
        left = self.pack(mf, items + dm + kr)
        print("head overflow", self.over, "left", len(left))
        left.sort(key=lambda x: not x.startswith("v_exp"))
        last = a.lines[-1].strip()
        for x in left:
            if last.startswith("v_exp") and not x.startswith("v_exp") and (last.split()[1].rstrip(",") + ",") in (x + ","): a("s_nop 0")
            a(x); last = x
        a("s_waitcnt lgkmcnt(0)")

    def tile_groups(self, slot):
        out = []
        for j in range(9):
            g = ""
            if j % 4 == 0: g = f"s_add_u32 m0, {sr(S_LB)}, {slot*SLOT + 4096*(j//4)}\ns_nop 0\n"
            g += f"buffer_load_dwordx4 {vr(V_DMA + j//4)}, {sr(S_XA,4)}, {sr(S_TOFF)} offen offset:{1024*(j%4)} lds"
            if j == 8: g += f"\ns_add_u32 {sr(S_TOFF)}, {sr(S_TOFF)}, {4*TILE}"
            out.append(g)
        return out

    def first_tiles(self):
        pass

    def wfuse(self):
        a = self.a
        BF, ACC, AF, TM, AD = 88, 108, 144, 208, 240
        LA, LB_, LM = 0, 44032, 88064
        T = S_T
        a.label("L_wfuse")
        a(f"{'s_sub_u32 s2, s6, 246' if self.o.get('xm', 0) == 2 else f's_add_u32 s2, s2, {NH}'}\ns_cmp_ge_u32 s2, {NH}\ns_cbranch_scc1 L_end")
        a(f"v_lshrrev_b32 v1, 6, v0\nv_and_b32 v0, 63, v0\nv_readfirstlane_b32 {sr(S_W)}, v1\nv_lshlrev_b32 {vr(V_DMA)}, 4, v0\ns_waitcnt lgkmcnt(0)")
        self.srd(S_WS, 78, 79, WS_END)
        self.srd(S_DB, 76, 77, 256)
        self.wf0 = 0
        self.srd(S_X, 72, 73, 82944)
        self.srd(S_W2, 62, 63, 41472)
        a(f"""s_cmp_eq_u32 s2, {self.wf0}
        s_cselect_b32 {sr(S_W1)}, s64, s70
        s_cselect_b32 {sr(S_W1+1)}, s65, s71
        s_mov_b32 {sr(S_W1+2)}, 41472
        s_mov_b32 {sr(S_W1+3)}, 0x20000
        s_cselect_b32 {sr(T+4)}, 0, 41472""")
        self.dma_rows([(S_W1, "0", LA), (S_W2, "0", LB_)], 19, 288, TM + 4, TM + 5, 11, 3, "L_wf1")
        a(f"s_lshl_b32 {sr(T)}, {sr(S_W)}, 10\ns_add_u32 {sr(T+2)}, {sr(T)}, {sr(T+4)}")
        for k in range(11):
            if k == 10: a(f"s_cmp_ge_u32 {sr(S_W)}, 1\ns_cbranch_scc1 L_wf2")
            a(f"s_add_u32 m0, {sr(T)}, {LM + 4096*k}\ns_add_u32 {sr(T+1)}, {sr(T+2)}, {4096*k}")
            a(f"buffer_load_dwordx4 {vr(V_DMA)}, {sr(S_X,4)}, {sr(T+1)} offen lds")
        a.label("L_wf2")
        self.srd(S_DW, 68, 69, 864)
        a(f"""v_and_b32 {vr(TM)}, 15, v0
        v_lshlrev_b32 {vr(TM+2)}, 4, {vr(TM)}
        v_lshlrev_b32 {vr(TM)}, 1, {vr(TM)}
        v_bfe_u32 {vr(TM+3)}, v0, 4, 1
        v_lshl_add_u32 {vr(TM+1)}, {vr(TM+3)}, 7, {vr(TM)}
        v_lshl_add_u32 {vr(TM+2)}, {vr(TM+3)}, 11, {vr(TM+2)}
        v_and_b32 {vr(TM+3)}, 1, v0
        v_lshlrev_b32 {vr(TM+3)}, 4, {vr(TM+3)}
        v_bfe_i32 {vr(TM+4)}, v0, 1, 1
        v_not_b32 {vr(TM+5)}, {vr(TM+4)}""")
        for k in range(3):
            for i in range(5): a(f"buffer_load_ushort {vr(16+5*k+i)}, {vr(TM+1 if i < 4 else TM)}, {sr(S_DW,4)}, 0 offen offset:{288*k + (32*i if i < 4 else 256)}")
        a(f"s_mov_b32 {sr(T+1)}, {WS_DWF}\ns_waitcnt vmcnt(0)")
        for f in range(15):
            a(f"v_lshlrev_b32 {vr(16+f)}, {vr(TM+3)}, {vr(16+f)}\nv_and_b32 {vr(32+2*f)}, {vr(TM+5)}, {vr(16+f)}\nv_and_b32 {vr(33+2*f)}, {vr(TM+4)}, {vr(16+f)}")
        for r_ in range(8): a(f"buffer_store_dwordx{4 if r_ < 7 else 2} {vr(32+4*r_, 4 if r_ < 7 else 2)}, {vr(TM+2)}, {sr(S_WS,4)}, {sr(T+1)} offen offset:{256*r_} sc1")
        self.tr_addr(AD, LM, False, TM + 8)
        self.row_addr(AD + 3, LA, TM + 8)
        a(f"v_add_u32 {vr(AD+5)}, {LB_}, {vr(AD+3)}")
        a(f"v_lshlrev_b32 {vr(AD+4)}, 3, v0")
        a(f"""s_lshr_b32 {sr(T)}, {sr(S_W)}, 1
        s_lshl_b32 {sr(T)}, {sr(T)}, 6
        s_and_b32 {sr(T+1)}, {sr(S_W)}, 1
        s_lshl_b32 {sr(T+1)}, {sr(T+1)}, 3
        s_add_u32 {sr(T)}, {sr(T)}, {sr(T+1)}
        v_and_b32 {vr(AD+6)}, 3, v0
        v_lshlrev_b32 {vr(AD+6)}, 3, {vr(AD+6)}
        v_add_u32 {vr(AD+7)}, {sr(T)}, {vr(AD+6)}""")
        for k in range(3): a(f"v_add_u32 {vr(AD+k)}, {vr(AD+7)}, {vr(AD+k)}")
        a(f"s_mov_b32 {sr(S_CNT)}, {sr(S_W)}")
        a("s_waitcnt vmcnt(0)\ns_barrier")
        a.label("L_wfl")
        for s in self.tr_reads(AD, vr)(0, BF): a(s)
        a("s_waitcnt lgkmcnt(0)")
        self.gemm(self.row_reads(AD + 3), BF, ACC, AF)
        for i in range(18): a(f"v_cvt_pk_bf16_f32 {vr(BF+i)}, {vr(ACC+2*i)}, {vr(ACC+2*i+1)}")
        a(f"s_cmp_eq_u32 s2, {self.wf0}\ns_cbranch_scc0 L_wf3")
        self.gemm(self.row_reads(AD + 5), BF, ACC, AF)
        for i in range(18): a(f"v_cvt_pk_bf16_f32 {vr(BF+i)}, {vr(ACC+2*i)}, {vr(ACC+2*i+1)}")
        a.label("L_wf3")
        a(f"""s_mul_i32 {sr(T)}, {sr(S_CNT)}, {BLK}
        s_add_u32 {sr(T)}, {sr(T)}, {sr(T+4)}
        s_add_u32 {sr(T)}, {sr(T)}, {WS_WF}
        s_add_u32 {sr(T+1)}, {sr(T)}, 4096""")
        self.store_block(BF, V_DMA, AD + 4, S_WS, T, T + 1, "sc1")
        for k in range(3): a(f"v_add_u32 {vr(AD+k)}, 128, {vr(AD+k)}")
        a(f"s_add_u32 {sr(S_CNT)}, {sr(S_CNT)}, 4\ns_cmp_lt_u32 {sr(S_CNT)}, 8\ns_cbranch_scc1 L_wfl")
        for k in range(3): a(f"v_sub_u32 {vr(AD+k)}, {vr(AD+k)}, {vr(AD+6)}")
        a(f"s_cmp_eq_u32 {sr(S_CNT)}, 8\ns_cbranch_scc1 L_wfl")
        a(f"""s_waitcnt vmcnt(0)
        s_barrier
        s_cmp_lg_u32 {sr(S_W)}, 0
        s_cbranch_scc1 L_end
        s_mov_b32 {sr(T+2)}, 0""")
        a.label("L_wtag")
        a(f"""buffer_load_dword {vr(TM)}, off, {sr(S_DB,4)}, 0 sc1
        s_add_u32 {sr(T+2)}, {sr(T+2)}, 1
        s_waitcnt vmcnt(0)
        v_readfirstlane_b32 {sr(T)}, {vr(TM)}
        s_cmp_lt_u32 {sr(T+2)}, 0x40000
        s_cselect_b32 {sr(T)}, {sr(T)}, 1
        s_cmp_eq_u32 {sr(T)}, 0
        s_cbranch_scc1 L_wtag
        v_lshlrev_b32 {vr(TM+1)}, 2, v0
        s_lshl_b32 {sr(T)}, s2, 8
        s_add_u32 {sr(T)}, {sr(T)}, {WS_F + 502*256}
        buffer_store_dword {vr(TM)}, {vr(TM+1)}, {sr(S_WS,4)}, {sr(T)} offen sc1
        s_endpgm""")

    def tstore(self):
        a = self.a
        _, n, fl, allwg, off = self.o["tst"]
        if not allwg: a(f"s_cmp_lg_u32 s2, 101\ns_cbranch_scc1 L_tst")
        a(f"s_waitcnt vmcnt(0)\ns_lshl2_add_u32 s96, s2, {sr(S_W)}\ns_mul_i32 s96, s96, {1024*max(n,1)}\ns_add_u32 s96, s96, {off}")
        k = len(self.stnames)
        a(f"s_memtime s[92:93]")
        if _[-1] == "k":
            a(f"s_lshr_b32 s97, {sr(S_W)}, 1\ns_lshl1_add_u32 s96, s2, s97\ns_mul_i32 s96, s96, {2048*n}\ns_and_b32 s97, {sr(S_W)}, 1\ns_lshl_b32 s97, s97, 8\ns_add_u32 s96, s96, s97\ns_add_u32 s96, s96, {off}")
            for i in range(n): a(f"buffer_store_dwordx4 v[252:255], {vr(V_KA)}, {sr(S_WS,4)}, s96 offen offset:{2048*i} {fl}")
            n = -1
        for i in range(n): a(f"buffer_store_dwordx4 v[252:255], {vr(V_DMA)}, {sr(S_WS,4)}, s96 offen offset:{1024*i} {fl}")
        if n == 0: a(f"buffer_load_dwordx4 v[252:255], {vr(V_DMA)}, {sr(S_WS,4)}, s96 offen {fl}")
        a(f"s_waitcnt vmcnt(0)\ns_memtime s[94:95]\ns_waitcnt lgkmcnt(0)")
        a.label("L_tst")

    def dump_stamps(self):
        a = self.a
        if self.o.get("tst") and self.o["tst"][0] == "end": self.tstore()
        if self.o.get("census"):
            key, mode, m_, v_ = self.o["census"]
            a(f"""s_cmp_lg_u32 s2, 100
            s_cbranch_scc1 L_end
            v_lshlrev_b32 v16, 2, v0
            s_mov_b32 s4, {WS_DBG}""")
            for k in range(4): a(f"buffer_load_dword v{20+k}, v16, {sr(S_WS,4)}, s4 offen offset:{256*k} sc1")
            a(f"s_waitcnt vmcnt(0)\nv_readlane_b32 s8, v21, 36\ns_mov_b32 s9, 0x80000000\ns_mov_b32 s10, 0x7fffffff\ns_mov_b32 s11, 0\ns_mov_b32 s17, 0")
            for k in range(4):
                a(f"s_mov_b32 s5, 0")
                a.label(f"L_cs{k}")
                a(f"""v_readlane_b32 s6, v{20+k}, s5
                s_add_u32 s7, s5, {64*k}
                s_sub_u32 s6, s6, s8
                s_and_b32 s16, s7, {m_}
                s_cmp_lg_u32 s16, {v_}
                s_cbranch_scc1 L_cn{k}
                s_min_i32 s10, s10, s6
                s_cmp_gt_i32 s6, {self.o.get("thr", 150)}
                s_addc_u32 s17, s17, 0
                s_cmp_gt_i32 s6, s9
                s_cselect_b32 s9, s6, s9
                s_cselect_b32 s11, s7, s11""")
                a.label(f"L_cn{k}")
                a(f"s_add_u32 s5, s5, 1\ns_cmp_lt_u32 s5, {64 if k < 3 else 60}\ns_cbranch_scc1 L_cs{k}")
            a({"arg": "s_lshl_b32 s6, s11, 3", "range": "s_sub_u32 s6, s9, s10\ns_lshl_b32 s6, s6, 1", "zero": "s_mov_b32 s6, 0", "cnt": "s_lshl_b32 s6, s17, 4",
               "max": "s_lshl_b32 s6, s9, 1"}[mode])
            a("s_add_u32 s6, s6, 1000\ns_memrealtime s[4:5]\ns_waitcnt lgkmcnt(0)\ns_add_u32 s6, s6, s4")
            a.label("L_echo")
            a("s_memrealtime s[4:5]\ns_waitcnt lgkmcnt(0)\ns_sub_u32 s7, s6, s4\ns_cmp_gt_i32 s7, 0\ns_cbranch_scc1 L_echo")
            return
        if self.o.get("echo"):
            if self.o["echo"][0] == "skew":
                a(f"v_mov_b32 v16, 4\nbuffer_load_dword v17, v16, {sr(S_DB,4)}, 0 offen sc1\ns_waitcnt vmcnt(0)\nv_readfirstlane_b32 s98, v17\ns_not_b32 s98, s98")
                x, y = 98, S_ST + 2 * self.stnames.index(self.o["echo"][1])
            elif self.o.get("tst"): x, y = 92, 94
            else:
                x, y = [S_ST + 2 * self.stnames.index(n) for n in self.o["echo"]]
            lo, hi = self.o.get("echo_ids", (0, 999))
            a(f"""s_cmp_eq_u32 {sr(S_VAL)}, 0
            s_cbranch_scc1 L_end
            s_cmp_lt_u32 s2, {lo}
            s_cbranch_scc1 L_end
            s_cmp_ge_u32 s2, {hi}
            s_cbranch_scc1 L_end
            s_and_b32 s6, s2, {self.o.get("echo_m", 0)}
            s_cmp_lg_u32 s6, {self.o.get("echo_v", 0)}
            s_cbranch_scc1 L_end
            s_memrealtime s[4:5]
            s_waitcnt lgkmcnt(0)
            s_sub_u32 s6, {sr(y)}, {sr(x)}
            s_mul_i32 s6, s6, {self.o.get("echo_mul", 1)}
            s_lshr_b32 s6, s6, {self.o.get("echo_shr", 0)}
            s_add_u32 s6, s6, {self.o.get("echo_add", 0)}
            s_add_u32 s6, s6, s4""")
            a.label("L_echo")
            a("s_memrealtime s[4:5]\ns_waitcnt lgkmcnt(0)\ns_sub_u32 s7, s6, s4\ns_cmp_gt_i32 s7, 0\ns_cbranch_scc1 L_echo")
            return
        if self.o.get("dbgst"):
            a("s_waitcnt vmcnt(0)")
            self.stamp("done")
            a("s_waitcnt lgkmcnt(0)\ns_mov_b64 exec, 1")
            slots = [1, 2, 3, 4, 5, 6, 7, 9, 11, 12, 13, 14, 15]
            a(f"s_not_b32 {sr(S_T)}, {sr(S_ST)}\nv_mov_b32 v16, {sr(S_T)}\nv_mov_b32 v17, 4\nbuffer_atomic_umax v16, v17, {sr(S_DB,4)}, 0 offen sc1")
            for i in range(min(self.nst, 12)):
                a(f"v_mov_b32 v{18+2*i}, {sr(S_ST+2*i)}\nv_mov_b32 v{19+2*i}, {4*slots[i+1]}\nbuffer_atomic_umax v{18+2*i}, v{19+2*i}, {sr(S_DB,4)}, 0 offen sc1")
            return
        if not self.o.get("stamps"): return
        T = S_T
        a(f"""s_waitcnt lgkmcnt(0)
        s_lshl_b32 {sr(T)}, s2, 2
        s_add_u32 {sr(T)}, {sr(T)}, {sr(S_W)}
        s_lshl_b32 {sr(T)}, {sr(T)}, 7
        s_add_u32 {sr(T)}, {sr(T)}, {WS_DBG}
        v_mov_b32 v1, 0""")
        for i in range(26): a(f"v_mov_b32 {vr(16+i)}, {sr(S_ST+i)}")
        for i in range(7): a(f"buffer_store_dwordx4 {vr(16+4*i,4)}, v1, {sr(S_WS,4)}, {sr(T)} offen offset:{16*i}")

    def build(self):
        a = self.a
        self.stnames = []
        a.raw(f"; @launch grid=({NWG},1,1) block=(256,1,1) lds={LDS_TOTAL}")
        a.raw('.amdgcn_target "amdgcn-amd-amdhsa--gfx950"')
        a.raw(".text")
        a.raw(f".globl {NAME}")
        a.raw(".p2align 12")
        self.entry()
        self.phase_a()
        self.rest()
        a.label("L_fin")
        self.dump_stamps()
        a.label("L_end")
        a("s_endpgm")
        self.poll2()
        if not self.o.get("touch", 1): self.rare()
        a.label("L_dummy")
        self.fallback()
        self.wfuse()
        a.raw('.section .rodata,"a"')
        a.raw(".p2align 6")
        a.raw(kernel_desc(NAME, 512, 102, 256))
        return a.text()

    def S(self, buf, qb, i=0): return V_S + buf * 32 + qb * 8 + i
    def P(self, buf, qb, i=0): return V_P + buf * 16 + qb * 4 + i

    def k_reads(self, slot, V_K=V_K):
        ka, so = (V_KA, slot * SLOT) if slot < 2 else (V_HI, (slot - 2) * SLOT)
        out = [f"ds_read_b128 {vr(V_K+8*s+4*kb,4)}, {vr(ka)} offset:{so + 2048*s + 256*kb}" for s in range(4) for kb in range(2)]
        out += [f"ds_read_b64 {vr(V_K+32+2*kb,2)}, {vr(ka+1)} offset:{so + 8192 + 512*kb}" for kb in range(2)]
        return out

    def v_reads(self, slot, dst=V_V):
        (va, vr_, vb), so = ((V_VA, V_VR, V_VB), slot * SLOT) if slot < 2 else ((V_HI + 2, V_HI + 4, V_HI + 5), (slot - 2) * SLOT)
        out = []
        for T in range(9):
            for u in range(2):
                if T < 8: out.append(f"ds_read_b64_tr_b16 {vr(dst+4*T+2*u,2)}, {vr((va if T < 4 else vb)+(T&1))} offset:{so + 2048*((T>>1)&1) + 256*u}")
                else: out.append(f"ds_read_b64_tr_b16 {vr(dst+4*T+2*u,2)}, {vr(vr_)} offset:{so + 8192 + 512*u}")
        return out

    def qk_mfmas(self, buf, czero=False):
        out = []
        for s in range(5):
            for kb in range(2):
                for qb in range(4):
                    d = vr(self.S(buf, qb, 4 * kb), 4)
                    c = ("0" if czero else vr(V_CI + 4 * qb, 4)) if s == 0 else d
                    if s < 4: out.append(f"v_mfma_f32_16x16x32_bf16 {d}, {vr(V_K+8*s+4*kb,4)}, {ar(A_Q+18*qb+4*s,4)}, {c}")
                    else: out.append(f"v_mfma_f32_16x16x16_bf16 {d}, {vr(V_K+32+2*kb,2)}, {ar(A_Q+18*qb+16,2)}, {c}")
        return out

    def pv_mfmas(self, buf, czero=False):
        out = []
        for T in range(9):
            for qb in range(4):
                o = ar(A_O + 36 * qb + 4 * T, 4)
                out.append(f"v_mfma_f32_16x16x32_bf16 {o}, {vr(V_V+4*T,4)}, {vr(self.P(buf,qb),4)}, {'0' if czero else o}")
        return out

    def plan(self):
        o = self.o
        n = 76
        fixed = [None] * n
        for i, g in enumerate(range(1, 36, 2)): fixed[g] = ("V", i)
        for i, g in enumerate([41, 44, 47, 50, 53, 56, 59, 62, 65, 68]): fixed[g] = ("K", i)
        for i, g in enumerate([42, 46, 49, 52, 55, 58, 61, 64, 67]): fixed[g] = ("D", i)
        exps = [(qb, j) for qb in range(4) for j in range(8)]
        start = 40
        order = [(start + k) % n for k in range(n)]
        free_idx = [k for k, g in enumerate(order) if fixed[g] is None]
        nsm = len(free_idx) - 32
        cand = free_idx[6:-2]
        sm_set = set(free_idx[-2:]) | {cand[int((i + 0.5) * len(cand) / (nsm - 2))] for i in range(nsm - 2)}
        nds = sum(1 for f in fixed if f is not None and f[0] != "D")
        ls = o.get("lsum", "add")
        over = max(0, (48 if ls == "add" else 32) - nds - 2 * nsm)
        ocand = [k for k, g in enumerate(order) if k >= 20 and (fixed[g] is None or fixed[g][0] != "D")]
        o_set = {ocand[int((i + 0.5) * len(ocand) / over)] for i in range(over)}
        later = []
        gaps = [[] for _ in range(n)]
        small, pend, ei = [], [], 0
        for k, g in enumerate(order):
            new = (start + k) < n
            small.extend(pend); pend = later; later = []
            small.sort(key=lambda t: 0 if t[0] == "c" else 1)
            f = fixed[g]
            want = 0
            if f is not None:
                gaps[g].append((f[0], f[1], None))
                if f[0] == "D": continue
                want = 1
            elif k in sm_set: want = 2
            else:
                qb, j = exps[ei]; ei += 1
                gaps[g].append(("E", ("e", qb, j), new))
                if j & 1: pend.append(("c", qb, j // 2))
                if ls == "add": pend.append(("a", qb, j))
                elif j & 1 and ls == "pk": pend.append(("p", qb, j // 2))
            if k in o_set: want += 1
            if k == n - 1: want = 99
            for _ in range(want):
                if small:
                    it = small.pop(0)
                    gaps[g].append(("E", it, new))
                    if it[0] == "c" and ls == "dot": (small if k == n - 1 else pend).append(("d", it[1], it[2]))
        assert not small and not pend and ei == 32
        self.gaps = gaps

    def pack(self, mf, items):
        a = self.a
        where, order, done, nvm, mpos = {}, [], 0, 0, []
        isds = lambda it: "ds_" in it["t"]
        self.over = 0
        for g, m in enumerate(mf):
            assert not any(it.get("need", 999) <= g and i not in where for i, it in enumerate(items)), g
            idx = [k for k, n_ in enumerate(order) if n_ <= g]
            if idx and max(idx) + 1 > done:
                a(f"s_waitcnt lgkmcnt({min(15, len(order) - 1 - max(idx))})"); done = max(idx) + 1
            if m.startswith("@W"):
                w_, m = m.split("\n", 1)
                a(f"s_waitcnt lgkmcnt({min(15, int(w_[2:]) + len(order))})")
            a(m)
            mpos.append(len(a.lines))
            cap, pick = 8, []
            for phase in (0, 1):
                for i, it in enumerate(items):
                    if i in where or it.get("lo", 0) > g: continue
                    if "am" in it and (it["am"] >= g or len(a.lines) - mpos[it["am"]] < 8): continue
                    d = it.get("dep")
                    if d is not None and not all(where.get(x, 999) < g for x in d): continue
                    if (phase == 0 and it.get("hi", 999) <= g) or (phase == 1 and it["c"] <= cap):
                        if it["t"].startswith("buffer") and pick and any(items[x]["c"] for x in pick) and phase == 1: continue
                        if isds(it) and sum(isds(items[x]) for x in pick) >= it.get("nds", 1) and phase == 1: continue
                        pick.append(i); where[i] = g; cap -= it["c"]
            key = lambda i: 0 if items[i]["c"] == 0 else 1 if isds(items[i]) else 2 if items[i]["t"].startswith("buffer") else 3
            for i in sorted(pick, key=key):
                a(items[i]["t"].replace("@VM", f"s_waitcnt vmcnt({nvm})"))
                nvm += items[i]["t"].startswith("buffer")
                if isds(items[i]): order.append(items[i].get("need", 999))
            self.over += max(0, -cap)
        return [it["t"] for i, it in enumerate(items) if i not in where]

    def e_items(self, buf, lst, lo, hi):
        items, idx = [], {}
        for it in lst:
            kind, qb, j = it
            d = dict(t=self.etext(buf, it), c=8 if kind == "e" else 4)
            if kind == "e": d["lo"] = lo(qb, j); d["hi"] = hi(qb) - 2 - (7 - j)
            else:
                need = [("e", qb, j)] if kind == "a" else [("c", qb, j)] if kind == "d" else [("e", qb, 2 * j), ("e", qb, 2 * j + 1)]
                d["dep"] = [idx[x] for x in need if x in idx]
                if kind == "c": d["hi"] = hi(qb) - (3 - j) // 2
            idx[it] = len(items); items.append(d)
        return items

    def etext(self, buf, it):
        kind, qb, j = it
        s = self.S(buf, qb)
        if kind == "e": return f"v_exp_f32 {vr(s+j)}, {vr(s+j)}"
        if kind == "d": return f"v_dot2_f32_bf16 {vr(V_L+qb)}, {vr(self.P(buf, qb, j))}, v227, {vr(V_L+qb)}"
        if kind == "p": return f"v_pk_add_f32 {vr(208+2*qb,2)}, {vr(208+2*qb,2)}, {vr(s+2*j,2)}"
        if kind == "a": return f"v_add_f32 {vr(V_L+qb)}, {vr(V_L+qb)}, {vr(s+j)}"
        return f"v_cvt_pk_bf16_f32 {vr(self.P(buf, qb, j))}, {vr(s+2*j)}, {vr(s+2*j+1)}"

    def period(self, p, qk=True, pv=True, e_old=True, e_new=True, kread=True, vread=True, dma=True, extra={}, dsub=None, ksub=None, vm=9, halves=(0, 1), inc=None):
        a = self.a
        bn, bo = (p + 1) & 1, p & 1
        qk_, pv_ = self.qk_mfmas(bn), self.pv_mfmas(bo, czero=(p == 0))
        qo, po = self.o.get("qkord", 1), self.o.get("pvord", 0)
        if qo == 1: qk_ = [qk_[8 * s_ + 4 * kb + qb] for kb in range(2) for qb in range(4) for s_ in range(4)] + qk_[32:]
        if qo == 2: qk_ = [qk_[8 * s_ + 4 * kb + qb] for qb in range(4) for kb in range(2) for s_ in range(4)] + qk_[32:]
        if qo == 3: qk_ = [qk_[8 * s_ + 4 * kb + qb] for qb in range(4) for s_ in range(4) for kb in range(2)] + qk_[32:]
        if po == 1: pv_ = [pv_[4 * T_ + qb] for qb in range(4) for T_ in range(9)]
        mf = qk_ + pv_
        kr, vrd = self.k_reads((p + 2) % RING), self.v_reads(p % RING)
        slot = p % RING
        n = 76
        sc = [[] for _ in range(n)]
        dgs = [g for g in range(n) if any(e[0] == "D" for e in self.gaps[g])]
        if dma:
            for j, g in enumerate(dgs):
                if j % 4 == 0: sc[g - 1].append(f"s_add_u32 m0, {sr(S_LB)}, {slot*SLOT + 4096*(j//4)}")
            sc[dgs[-1] + 1].append(f"s_add_u32 {sr(S_TOFF)}, {sr(S_TOFF)}, {inc or 4*TILE}")
        w = []
        if kread: w.append(f"vmcnt({vm})")
        if pv: w.append("lgkmcnt(0)")
        if w: sc[39].append("s_waitcnt " + " ".join(w))
        if kread: sc[75].append("s_waitcnt lgkmcnt(0)")
        for half in halves:
            rng = range(0, 40) if half == 0 else range(40, 76)
            on = qk if half == 0 else pv
            if not on:
                ds, mem, val, post = [], [], [], []
                for g in rng:
                    for s_ in sc[g]:
                        (post if s_.startswith("s_waitcnt") else mem).append(s_)
                    if g in extra: mem.append(extra[g])
                    for kind, d, new in self.gaps[g]:
                        if kind == "V" and vread: ds.append(vrd[d])
                        elif kind == "K" and kread: ds.append(kr[d])
                        elif kind == "D" and dma: mem.append(f"buffer_load_dwordx4 {vr(V_DMA + d//4)}, {sr(S_XA,4)}, {sr(S_TOFF)} offen offset:{1024*(d%4)} lds")
                        elif kind == "E" and ((new and e_new) or (not new and e_old)): val.append((d, self.etext(bn if new else bo, d)))
                if half == 1: a("s_nop 3")
                seq, pend = [], list(val)
                while pend:
                    k = 0
                    if seq and seq[-1][0][0] == "e":
                        le = seq[-1][0]
                        dep = lambda it: it[0][1] == le[1] and ((it[0][0] == "a" and it[0][2] == le[2]) or (it[0][0] == "c" and it[0][2] == le[2] // 2))
                        have = {x[0] for x in seq}
                        ok = lambda it: it[0][0] == "e" or (("e", it[0][1], it[0][2]) in have if it[0][0] == "a" else (("e", it[0][1], 2*it[0][2]+1) in have)) or not any(x[0][0] == "e" and x[0][1] == it[0][1] and (x[0][2] == it[0][2] if it[0][0] == "a" else x[0][2] // 2 == it[0][2]) for x in pend)
                        while k < len(pend) and (dep(pend[k]) or not ok(pend[k])): k += 1
                        if k == len(pend): seq.append((("n", 0, 0), "s_nop 0")); k = 0
                    seq.append(pend.pop(k))
                step = max(1, len(seq) // (len(mem) + len(ds) + 1))
                allm = ds + mem
                for x in allm[:6]: a(x)
                allm = allm[6:]
                for i_, (d, t_) in enumerate(seq):
                    a(t_)
                    if allm and i_ % step == step - 1:
                        x = allm.pop(0); a(x)
                        if x.startswith("s_add_u32 m0"): a("s_nop 0")
                for x in allm:
                    a(x)
                    if x.startswith("s_add_u32 m0"): a("s_nop 0")
                for x in post: a(x)
                if half == 0: a("s_nop 1")
                continue
            abl = self.o.get("abl", "") if 1 <= p <= 4 else ""
            for g in rng:
                if not ("Q" in abl and g < 40 or "P" in abl and g >= 40): a(mf[g])
                for s_ in sc[g]: a(s_)
                if g in extra: a(extra[g])
                for kind, d, new in self.gaps[g]:
                    if kind in abl or (kind == "E" and d[0] in abl): continue
                    if kind == "V":
                        if vread: a(vrd[d])
                    elif kind == "K":
                        if kread: a(kr[d])
                        elif ksub: a(ksub.pop(0))
                    elif kind == "D":
                        if dma: a(f"buffer_load_dwordx4 {vr(V_DMA + d//4)}, {sr(S_XA,4)}, {sr(S_TOFF)} offen offset:{1024*(d%4)} lds")
                        elif dsub: a(dsub.pop(0))
                    elif (new and e_new) or (not new and e_old):
                        a(self.etext(bn if new else bo, d))

    MK, VO, VO8, GA, VS0, VS0R, VDW, VLW, VL8, VST, VPL = 232, 236, 9, 238, 250, 251, 244, 245, 246, 247, 248
    NB, PT, E_U, E_G, RS3, E_COL, RS1, RS2, MP1 = 3, 4, 5, 6, 7, 43, 36, 37, 38
    G0, GM, GP, U, DWT = 16, 26, 36, 80, (90, 252, 96, 100, 112, 116, 104, 94)
    XRS = (192, 196, 46)
    frag = staticmethod(lambda f, b: [(f, b + 4 * s) for s in range(5)])
    WD = [[("a", 216 + 4 * s) for s in range(5)], [("a", 234 + 4 * s) for s in range(5)], [("v", 208 + 4 * s) for s in range(5)]]
    WO = [[("a", 4 * s) for s in range(5)], [("a", 18 + 4 * s) for s in range(5)], [("a", 36), ("a", 40), ("a", 44), ("a", 48), ("a", 252)]]
    X1B = 98304
    X2O = L_SP - X1B
    L_L = L_SP + 9216

    def epi_setup(self):
        a = self.a
        T = S_T
        NB, PT, VO, GA = self.NB, self.PT, self.VO, self.GA
        r, g4, x, y, big, r0 = 52, 53, 54, 55, 56, 57
        a(f"""s_lshr_b32 {sr(NB)}, {sr(S_W)}, 1
        s_and_b32 {sr(PT)}, {sr(S_W)}, 1
        v_and_b32 {vr(r0)}, 15, v0
        v_lshrrev_b32 {vr(g4)}, 4, v0
        v_mul_u32_u24 {vr(x)}, 288, {vr(r0)}
        v_mov_b32 {vr(big)}, 0x40000000
        s_lshl_b32 {sr(T)}, {sr(S_TOWN)}, 1
        s_add_u32 {sr(T)}, {sr(T)}, {sr(NB)}
        s_lshl_b32 {sr(T)}, {sr(T)}, 4
        v_add_u32 {vr(r)}, {sr(T)}, {vr(r0)}
        s_mul_i32 {sr(T+1)}, {sr(S_TOWN)}, {TILE}
        s_mul_i32 {sr(T+2)}, {sr(PT)}, {BLK}
        v_add_u32 {vr(x)}, {sr(T+1)}, {vr(x)}
        s_sub_u32 {sr(T+3)}, {BLK}, {sr(T+2)}
        v_add_u32 {vr(y)}, {sr(T+3)}, {vr(x)}
        v_add_u32 {vr(x)}, {sr(T+2)}, {vr(x)}
        v_lshl_add_u32 {vr(VO)}, {vr(g4)}, 4, {vr(x)}
        v_lshl_add_u32 {vr(VO+1)}, {vr(g4)}, 4, {vr(y)}
        v_lshl_add_u32 {vr(self.VO8)}, {vr(g4)}, 3, {vr(x)}
        s_lshl_b32 {sr(T+3)}, {sr(PT)}, 11
        s_add_u32 {sr(self.E_U)}, {sr(T+3)}, {WS_U}
        s_add_u32 {sr(self.E_G)}, {sr(T+3)}, {WS_G}
        s_sub_u32 {sr(T+3)}, 4096, {sr(T+3)}
        s_lshl_b32 {sr(T)}, {sr(PT)}, 11
        s_add_u32 {sr(T)}, {sr(T)}, {WS_DWF}
        v_lshrrev_b32 {vr(x)}, 2, {vr(r0)}
        v_cmp_eq_u32 vcc, {vr(x)}, {vr(g4)}
        v_lshl_add_u32 {vr(self.VDW)}, {vr(r0)}, 4, {sr(T)}
        s_nop 0
        v_cndmask_b32 {vr(self.VDW)}, {vr(big)}, {vr(self.VDW)}, vcc
        s_lshl_b32 {sr(self.E_COL)}, {sr(S_W)}, 6
        v_lshlrev_b32 {vr(self.VL8)}, 3, v0
        v_add_u32 {vr(self.VL8)}, 4096, {vr(self.VL8)}
        v_add_u32 {vr(self.VST)}, {sr(S_LB)}, {vr(V_DMA)}
        v_add_u32 {vr(self.VST)}, {2*SLOT}, {vr(self.VST)}
        s_xor_b32 {sr(T)}, {sr(NB)}, 1
        v_xor_b32 {vr(x)}, {sr(T)}, {vr(g4)}
        v_lshl_add_u32 {vr(x)}, {vr(x)}, 4, {vr(r0)}
        s_lshl_b32 {sr(T)}, {sr(S_W)}, 2
        s_add_u32 {sr(T)}, {sr(T)}, {self.L_L}
        v_lshl_add_u32 {vr(self.VLW)}, {vr(x)}, 4, {sr(T)}
        s_sub_u32 {sr(self.MP1)}, 0, {sr(PT)}
        s_mov_b32 {sr(self.MP1+1)}, {sr(self.MP1)}""")
        for k, (d, base) in enumerate(((self.RS1, 3 * SLOT), (self.RS2, 2 * SLOT), (self.RS3, 2 * SLOT))):
            a(f"s_xor_b32 {sr(T)}, {sr(S_W)}, {k+1}\ns_mul_i32 {sr(T)}, {sr(T)}, {TILE}\ns_add_u32 {sr(d)}, {sr(T)}, {base}")
        a(f"""s_mul_i32 {sr(T)}, {sr(S_B)}, 4000
        s_add_u32 {sr(T+1)}, {sr(T)}, 3999
        s_mov_b32 {sr(T+2)}, {BLK}""")
        for k, dr in enumerate((0, -1, 1)):
            m = GA + 2 * k
            if dr: a(f"v_add_u32 {vr(m)}, {dr}, {vr(r)}\nv_cmp_eq_u32 vcc, {sr(T if dr < 0 else T+1)}, {vr(r)}")
            src = m if dr else r
            a(f"""v_lshrrev_b32 {vr(x)}, 4, {vr(src)}
            v_and_b32 {vr(y)}, 15, {vr(src)}
            v_mul_lo_u32 {vr(x)}, {vr(x)}, {sr(T+2)}
            v_lshl_add_u32 {vr(y)}, {vr(g4)}, 4, {vr(y)}
            v_lshl_add_u32 {vr(m)}, {vr(y)}, 4, {vr(x)}
            v_lshl_add_u32 {vr(m+1)}, {vr(y)}, 3, {vr(x)}
            v_add_u32 {vr(m+1)}, {sr(T+3)}, {vr(m+1)}""")
            if dr: a(f"v_cndmask_b32 {vr(m)}, {vr(m)}, {vr(big)}, vcc\nv_cndmask_b32 {vr(m+1)}, {vr(m+1)}, {vr(big)}, vcc")

    def conv_loads(self):
        GA = self.GA
        L = []
        for dst, m, so in ((self.GM, GA + 2, 1), (self.G0, GA, 1), (self.GP, GA + 4, 1), (self.U, GA, 0)):
            for k in range(2): L.append(f"buffer_load_dwordx4 {vr(dst+4*k,4)}, {vr(m)}, {sr(S_WS,4)}, {sr(self.E_U+so)} offen offset:{1024*k}")
            L.append(f"buffer_load_dwordx2 {vr(dst+8,2)}, {vr(m+1)}, {sr(S_WS,4)}, {sr(self.E_U+so)} offen")
        return L

    def rg(self, e, n): return (ar if e[0] == "a" else vr)(e[1], n)

    def w8_loads(self, regs, so):
        return [f"buffer_load_dwordx4 {self.rg(regs[s],4)}, {vr(V_DMA)}, {sr(S_WS,4)}, {sr(so)} offen offset:{1024*s}" for s in range(4)] + \
               [f"buffer_load_dwordx2 {self.rg(regs[4],2)}, {vr(self.VL8)}, {sr(S_WS,4)}, {sr(so)} offen"]

    def w_reads(self, regs, off):
        L = []
        for tt in range(2):
            L += [f"ds_read_b128 {self.rg(regs[tt][s],4)}, {vr(self.VS0)} offset:{off + BLK*tt + 1024*s}" for s in range(4)]
            L.append(f"ds_read_b64 {self.rg(regs[tt][4],2)}, {vr(self.VS0R)} offset:{off + BLK*tt}")
        return L

    def xa_srd(self):
        T = S_T
        return f"""s_mul_i32 {sr(T)}, {sr(S_B)}, {NT}
        s_mul_i32 {sr(T+1)}, {sr(S_H)}, 63
        s_add_u32 {sr(T+1)}, {sr(T+1)}, {sr(T)}
        s_mul_i32 {sr(T+1)}, {sr(T+1)}, {TILE}
        s_add_u32 {sr(S_XA)}, {sr(S_WS)}, {sr(T+1)}
        s_addc_u32 {sr(S_XA+1)}, {sr(S_WS+1)}, 0
        s_sub_u32 {sr(T+2)}, 63, {sr(S_H)}
        s_mul_i32 {sr(S_XA+2)}, {sr(T+2)}, {TILE}
        s_mov_b32 {sr(S_XA+3)}, 0x20000"""

    def rest(self):
        a, o = self.a, self.o
        T = S_T
        VPL = self.VPL
        self.plan()
        self.head()
        self.stamp("loop")
        if o.get("sktest") or o.get("echo") and o["echo"][0] == "skew":
            a(f"s_waitcnt lgkmcnt(0)\ns_mov_b64 exec, 1\ns_not_b32 s98, {sr(S_ST)}\nv_mov_b32 v226, s98\nv_mov_b32 v227, 4\ns_cmp_lg_u32 {sr(S_W)}, 0\ns_cbranch_scc1 L_sk\nbuffer_atomic_umax v226, v227, {sr(S_DB,4)}, 0 offen sc1\ns_waitcnt vmcnt(0)\nL_sk:\ns_mov_b64 exec, -1\ns_nop 3")
            self.stamp("sk")
        nh = o.get("ugh", 2)
        ex = {2 + 12 * k: x for k, x in enumerate(self.ugs[nh:])}
        ugl = o.get("ugl", 1)
        CL = 226
        SI = S_OUT if o.get("oib", 0) else S_WS
        clr = [f"buffer_store_dwordx4 {vr(CL,4)}, {vr(V_DMA)}, {sr(SI,4)}, {sr(S_CL)} offen sc1",
               f"buffer_store_dwordx4 {vr(CL,4)}, {vr(V_DMA)}, {sr(SI,4)}, {sr(S_CL)} offen offset:1024 sc1",
               f"buffer_store_dwordx2 {vr(CL,2)}, {vr(self.VL8)}, {sr(S_WS,4)}, {sr(S_CL+1)} offen sc1"]
        cll = o.get("cll", 1)
        ex0 = {69: self.ugs[0], 71: clr[0]} if cll else {69: self.ugs[0]}
        if o.get("gs", 0):
            for j, x in enumerate(self.tile_groups(3)):
                g_ = o.get("t3g", 2) + 4 * j
                x = x.split("\n")
                if x[0].startswith("s_add_u32 m0"): ex0[g_ - 1] = x[0]; x = x[2:]
                ex0[g_] = "\n".join(x)
        if ugl: self.period(0, extra=ex0)
        else: self.period(0, vm=9 + 5, extra=ex)
        self.stamp("l0")
        a.raw(".p2align 6")
        a.label("L_loop")
        self.stamp("q1")
        for p in range(1, 5):
            ex = {}
            vm = 9
            if p == 1: ex = {73: f"s_cmp_eq_u32 {sr(S_CNT)}, 3"}
            if p == 2: ex = {70: f"buffer_load_dword v252, {vr(VPL)}, {sr(S_WS,4)}, 0 offen sc1"}
            if p == 3:
                ex = {73: f"s_cmp_eq_u32 {sr(S_CNT)}, 2", 45: f"ds_add_rtn_u32 v230, v231, {vr(VPL+1)}"}
            if p == 4:
                self.stamp("la0")
                a(f"s_cbranch_scc1 L_last")
                a.label("L_lastb")
                self.stamp("la1")
                ex = {72: f"s_add_u32 {sr(S_CNT)}, {sr(S_CNT)}, 1", 1: f"v_readfirstlane_b32 {sr(T)}, v230", 3: f"s_cmp_eq_u32 {sr(T)}, 3",
                      4: f"s_cselect_b32 {sr(T)}, {sr(S_FB)}, 2.0", 6: f"buffer_store_dword v207, v231, {sr(S_WS,4)}, {sr(T)} offen sc1"}
            if ugl:
                ex[69] = self.ugs[p]
                if p < 3 and cll: ex[72] = clr[p]
                if p == 3 and cll: ex.update({70: f"s_mov_b32 {sr(S_CL)}, 2.0", 71: f"s_mov_b32 {sr(S_CL+1)}, 2.0"})
                if p == 4: ex.update({71: f"s_mov_b32 {sr(S_UG)}, 2.0", 2: f"s_lshl2_add_u32 {sr(T)}, {sr(S_CNT)}, {sr(T)}", 3: f"s_cmp_eq_u32 {sr(T)}, 7"})
                if p == 3: ex.update({43: f"s_and_b32 {sr(T)}, {sr(S_CNT)}, 1", 44: f"v_mov_b32 {vr(VPL+1)}, {sr(T)}", 48: ex.pop(45)})
            for k_ in range(o.get("pad", 0)): ex[10 + 7 * k_] = ex.get(10 + 7 * k_, "s_nop 0") + "\ns_nop 7"
            self.period(p, extra=ex, inc=sr(S_INC) if p == 4 else None)
            if p == 1: a("s_cbranch_scc1 L_p14")
        a("s_branch L_loop")
        a.label("L_p14")
        SW = 66
        self.stamp("p14")
        a(f"s_cmp_eq_u32 {sr(S_DUM)}, 4\ns_cbranch_scc0 L_dummyb")
        for i in range(16): a(f"v_mov_b32 {vr(V_CI+i)}, 0xff800000")
        a("s_nop 1")
        a.label("L_dummyb")
        ex = dict(zip([2, 6, 8, 12, 14, 18, 20, 24, 26, 30], self.w_reads(self.WD, 0)))
        ex[0] = "s_waitcnt vmcnt(9)"
        ex.update(dict(zip([4, 10, 16, 22, 28], self.w8_loads(self.WD[2], SW))))
        self.period(14, dma=False, kread=False, extra=ex, halves=(0,))
        self.stamp("tail")
        self.tail(SW)
        self.stamp("end")
        self.epilogue(SW)

    def rare(self):
        a = self.a
        T = S_T
        SW = 66
        a.label("L_last")
        a(f"s_waitcnt vmcnt(9)\ns_mov_b32 {sr(T+2)}, 0")
        a.label("L_late")
        xc = f"v_readlane_b32 {sr(S_SX)}, v252, 5\ns_sub_u32 {sr(S_SX)}, {sr(S_SX)}, {sr(S_N)}" if self.o.get("xm", 0) else ""
        a(f"""v_cmp_ne_u32 vcc, {sr(S_N)}, v252
        s_add_u32 {sr(S_XA)}, {sr(S_WS)}, {WS_WF}
        s_addc_u32 {sr(S_XA+1)}, {sr(S_WS+1)}, 0
        s_mov_b32 {sr(S_XA+2)}, {18*BLK}
        s_add_u32 {sr(S_TOFF)}, {sr(S_LB)}, {9*BLK}
        s_mov_b32 {sr(S_INC)}, {-9*BLK}
        s_lshr_b32 {sr(SW)}, {sr(S_W)}, 1
        s_lshl_b32 {sr(SW)}, {sr(SW)}, 30
        s_add_u32 {sr(SW+1)}, {sr(SW)}, {WS_WF + 8*BLK}
        s_add_u32 {sr(SW)}, {sr(SW)}, {WS_WF + 17*BLK}
        {xc}
        s_and_b32 {sr(T)}, vcc_lo, 31
        s_cbranch_scc0 L_lastb
        buffer_load_dword v252, {vr(self.VPL)}, {sr(S_WS,4)}, 0 offen sc1
        s_add_u32 {sr(T+2)}, {sr(T+2)}, 1
        s_waitcnt vmcnt(0)
        s_cmp_lt_u32 {sr(T+2)}, 0x40000
        s_cbranch_scc1 L_late
        s_branch L_lastb""")

    units = [(0, 0), (0, 1), (1, 0), (1, 1), (2, 0)]
    V15 = V_K

    def stage(self, slot, T):
        src = ar(A_O + 36 * slot + 4 * T, 4)
        if slot == 0: return f"ds_write_b128 {vr(self.VST)}, {src} offset:{1024*T}"
        if slot == 2: return f"ds_write_b128 {vr(self.VS0)}, {src} offset:{1024*T}"
        if T < 4: return f"ds_write_b128 {vr(self.VST)}, {src} offset:{SLOT + 1024*T + (4096 if slot == 3 else 0)}"
        return f"{'s_not_b64' if slot == 1 else 's_mov_b64'} exec, {sr(self.MP1,2)}\nds_write_b128 {vr(self.VST)}, {src} offset:{SLOT + 8192}\ns_mov_b64 exec, -1"

    def dwf(self, k, i):
        f = 5 * k + i
        return self.DWT[f >> 1] + 2 * (f & 1)

    def tail(self, SW):
        a, o = self.a, self.o
        mf, pos, start = [], {}, {}
        for t_, qb in ((14, 0), (14, 1), (15, 0), (15, 1), (14, 2), (15, 2), (14, 3), (15, 3)):
            start[t_, qb] = len(mf)
            for Tt in ([0, 1, 2, 3, 8, 4, 5, 6, 7] if qb & 1 else range(9)):
                o_ = ar(A_O + 36 * qb + 4 * Tt, 4)
                pos[t_, qb, Tt] = len(mf)
                mf.append(f"v_mfma_f32_16x16x32_bf16 {o_}, {vr((V_V if t_ == 14 else self.V15)+4*Tt,4)}, {vr(self.P(t_ & 1,qb),4)}, {o_}")
        lst = []
        for qb in range(4):
            for j in range(8):
                lst.append(("e", qb, j))
                if j & 1: lst.append(("c", qb, j // 2))
        lst += [("a", qb, j) for qb in range(4) for j in range(8)]
        items = self.e_items(1, lst, lambda qb, j: 0 if j < 4 else 1, lambda qb: start[15, qb] - 2)
        for it in items[48:]: it["lo"] = o.get("alo", 26)
        v15 = [dict(t=x, c=4, need=pos[15, 0, i // 2], hi=pos[15, 0, i // 2] - o.get("vlead", 7), lo=0 if i < 16 else 2) for i, x in enumerate(self.v_reads(3, self.V15))]
        wr = []
        nown = o.get("nown", 4)
        self.own = [(2, T_) for T_ in range(nown, 9)] + [(3, T_) for T_ in (0, 1, 2, 3, 8)]
        g = o.get("w0", 23)
        for k, (sl, Tt) in enumerate([(0, T_) for T_ in range(9)] + [(1, T_) for T_ in (0, 1, 2, 3, 8)] + [(2, T_) for T_ in range(nown)]):
            g = max(pos[15, sl, Tt] + 5, g)
            wr.append(dict(t=self.stage(sl, Tt), c=o.get("wc", 20), lo=int(g), hi=int(g)) if g < 72 else dict(t=self.stage(sl, Tt), c=4, lo=999))
            g += o.get("wsp", 2.7)
        n0 = len(items) + len(v15)
        wo = []
        for i, x in enumerate(self.w_reads(self.WO, SLOT)):
            r0 = self.WO[i // 5][i % 5][1]
            wo.append(dict(t=("@VM\n" if i == 0 else "") + x, c=4, dep=sorted({n0 + r0 // 4, n0 + (r0 + 3) // 4 if (r0 + 3) // 4 < 9 else n0 + 8}), lo=o.get("wo0", 40) + 3 * i, hi=o.get("wo0", 40) + 3 * i + 2))
        cl = self.conv_loads()
        dl = [f"buffer_load_dwordx4 {vr(self.DWT[r],4)}, {vr(self.VDW)}, {sr(S_WS,4)}, 0 offen offset:{256*r}" for r in range(7)]
        dl.append(f"buffer_load_dwordx2 {vr(self.DWT[7],2)}, {vr(self.VDW)}, {sr(S_WS,4)}, 0 offen offset:{256*7}")
        fr = {96: 9, 100: 18, 104: 45, 112: 27, 116: 36}
        vm = [(x, 0) for x in cl] + [(x, fr.get(self.DWT[r], 0)) for r, x in enumerate(dl)]
        used = {w["lo"] for w in wr}
        vi, g = [], o.get("m0", 24)
        for x, lo in vm:
            g = max(g, lo)
            while int(g) in used: g += 1
            vi.append(dict(t=x, c=8, lo=int(g), hi=int(g)) if g < 72 else dict(t=x, c=8, lo=999))
            g += o.get("msp", 2.2)
        left = self.pack(mf, items + v15 + wr + wo + vi)
        self.done_a = {(qb, j) for qb in range(4) for j in range(8) if self.etext(1, ("a", qb, j)) not in left}
        left = [x for x in left if not x.startswith("v_add_f32")]
        print("tail overflow", self.over, "left", len(left), "adds done", len(self.done_a))
        self.left = left

    def epilogue(self, SW):
        a, o = self.a, self.o
        T = S_T
        p = lambda r: vr(r, 2)
        NB, PT, MK, VO, units, MP1 = self.NB, self.PT, self.MK, self.VO, self.units, self.MP1
        U, GM, G0, GP = self.U, self.GM, self.G0, self.GP
        X2O = self.X2O
        R1, R2, R3 = 230, 231, 249
        LA, LS, M = 10, 226, 48

        def weave(main, fill, per):
            fill = list(fill)
            for x in main:
                a(x)
                for _ in range(per):
                    if fill: a(fill.pop(0))
            return fill
        for x in self.left:
            if not x.startswith("buffer"): a(x)
        lv = [x for x in self.left if x.startswith("buffer")]
        lv += [f"buffer_load_dwordx4 {vr(self.XRS[j],4)}, {vr(VO+j)}, {sr(S_X,4)}, {sr(self.E_COL)} offen" for j in range(2)]
        lv.append(f"buffer_load_dwordx2 {vr(self.XRS[2],2)}, {vr(self.VO8)}, {sr(S_X,4)}, 0 offen offset:256")
        S1 = lambda qb, j: self.S(1, qb, j)
        rounds = [[] for _ in range(6)]
        for qb in range(4):
            rem = [j for j in range(8) if (qb, j) not in self.done_a]
            prs = [j for j in rem if j % 2 == 0 and j + 1 in rem]
            sing = [j for j in rem if (j & ~1) not in prs]
            r_ = 0
            while len(prs) > 1:
                for x, y in zip(prs[0::2], prs[1::2]): rounds[r_].append(f"v_pk_add_f32 {p(S1(qb,x))}, {p(S1(qb,x))}, {p(S1(qb,y))}")
                prs = prs[0::2]; r_ += 1
            for k_, j in enumerate(sing + ([prs[0], prs[0] + 1] if prs else [])): rounds[min(5, max(r_, 2) + k_)].append(f"v_add_f32 {vr(V_L+qb)}, {vr(V_L+qb)}, {vr(S1(qb,j))}")
        for r_ in rounds:
            for x in r_: a(x)
        a(f"v_add_u32 {vr(R1)}, {sr(self.RS1)}, {vr(V_DMA)}\nv_add_u32 {vr(R2)}, {sr(self.RS2)}, {vr(V_DMA)}")
        self.treduce(V_L)
        a(f"ds_write_b32 {vr(self.VLW)}, {vr(V_L)}")
        acc = lambda slot: [f"v_accvgpr_read_b32 {vr(M+i)}, {ar(A_O+36*slot+16+i)}" for i in range(20)]
        a(f"""v_add_u32 {vr(R3)}, {sr(self.RS3)}, {vr(V_DMA)}
        v_add_u32 {vr(LA+1)}, {self.L_L}, {vr(V_DMA)}
        v_and_b32 {vr(LS+1)}, 0xf0, {vr(V_DMA)}
        s_lshl_b32 {sr(T)}, {sr(NB)}, 8
        s_add_u32 {sr(T+8)}, {sr(T)}, {self.L_L}
        v_add_u32 {vr(LS)}, {sr(T+8)}, {vr(LS+1)}""")
        for x in lv: a(x)
        a(f"""s_xor_b32 {sr(T)}, s2, 1
        s_mul_i32 {sr(T)}, {sr(T)}, {IB}
        s_mul_i32 {sr(T+9)}, {sr(NB)}, 5120
        s_add_u32 {sr(T+9)}, {sr(T+9)}, {WS_IB}
        s_add_u32 {sr(T)}, {sr(T)}, {sr(T+9)}
        s_lshl_b32 {sr(T+10)}, {sr(PT)}, 11
        {"" if o.get("oib", 0) else f"s_add_u32 {sr(T+1)}, {sr(T+10)}, {sr(T)}"}
        s_add_u32 {sr(T)}, {sr(T)}, 4096
        s_cmp_eq_u32 {sr(PT)}, 0
        s_cselect_b32 {sr(T)}, 0x40000000, {sr(T)}
        s_mov_b32 {sr(T+2)}, {f32(2.0**100)}
        s_mul_i32 {sr(T+12)}, s2, {IB}
        s_add_u32 {sr(T+12)}, {sr(T+12)}, {sr(T+9)}
        {"" if o.get("oib", 0) else f"s_add_u32 {sr(T+13)}, {sr(T+12)}, {sr(T+10)}"}
        s_waitcnt lgkmcnt(0)
        s_barrier""")
        self.stamp("B1")

        def rd(X, offs):
            L = [[f"ds_read_b128 {vr(X[k][i],4)}, {vr((R1, R2, R3)[k])} offset:{offs[k] + 1024*i}" for i in range(4)] for k in range(3)]
            L8 = [f"ds_read_b128 {vr(X[k][4],4)}, {vr((R1, R2, R3)[k])} offset:8192" for k in range(3)]
            return L, L8

        def adds(X, k, rng):
            return [f"v_pk_add_f32 {p(M+4*i+2*h)}, {p(M+4*i+2*h)}, {p(X[k][i]+2*h)}" for i in rng for h in range(2)]
        X = [[128, 132, 136, 140, 144], [148, 152, 156, 160, 68], [72, 76, 200, 204, 108]]
        PK = 128
        sfl = o.get("sfl", "")
        oib = o.get("oib", 0)
        SI = S_OUT if oib else S_WS
        L, L8 = rd(X, (0, 4096, 0))
        a(f"ds_read_b128 {vr(LA,4)}, {vr(LA+1)}\nds_read_b128 {vr(LS,4)}, {vr(LS)}")
        rest = weave(L[0] + L[1] + L[2], acc(1), 2)
        assert not rest
        a(f"s_mov_b64 exec, {sr(MP1,2)}")
        for x in L8: a(x)
        a(f"""s_mov_b64 exec, -1
        s_waitcnt lgkmcnt(11)
        v_add_f32 {vr(LA)}, {vr(LA)}, {vr(LA+1)}
        v_add_f32 {vr(LA+2)}, {vr(LA+2)}, {vr(LA+3)}
        v_add_f32 {vr(LS)}, {vr(LS)}, {vr(LS+1)}
        v_add_f32 {vr(LA)}, {vr(LA)}, {vr(LA+2)}
        v_add_f32 {vr(LS+2)}, {vr(LS+2)}, {vr(LS+3)}
        v_cmp_nge_f32 vcc, {sr(T+2)}, {vr(LA)}""")
        for x in adds(X, 0, range(4)): a(x)
        a(f"""s_cmp_lg_u64 vcc, 0
        s_cselect_b32 {sr(T+2)}, 1, 0
        s_andn2_b32 {sr(T+2)}, {sr(T+2)}, {sr(S_REDO)}
        s_cbranch_scc1 L_fallback
        v_add_f32 {vr(PK+10)}, {vr(LS)}, {vr(LS+2)}
        v_mov_b32 {vr(PK+11)}, {vr(MK+1)}
        s_waitcnt lgkmcnt(7)""")
        for x in adds(X, 1, range(4)): a(x)
        a("s_waitcnt lgkmcnt(3)")
        a3 = adds(X, 2, range(4))
        cv = [f"v_cvt_pk_bf16_f32 {vr(PK+i)}, {vr(M+2*i)}, {vr(M+2*i+1)}" for i in range(10)]
        for x in a3[:4] + a3[4:6] + cv[:4]: a(x)

        def send(fl):
            a(f"buffer_store_dwordx4 {vr(PK,4)}, {vr(V_DMA)}, {sr(SI,4)}, {sr(S_OS if oib else T+1)} offen {fl}")
            for x in a3[6:] + cv[4:8]: a(x)
            a(f"buffer_store_dwordx4 {vr(PK+4,4)}, {vr(V_DMA)}, {sr(SI,4)}, {sr(S_OS if oib else T+1)} offen offset:1024 {fl}")
            a("s_waitcnt lgkmcnt(0)")
            for kk in range(3):
                for x in adds(XS, kk, [4]): a(x)
            for x in cv[8:]: a(x)
            a(f"buffer_store_dwordx4 {vr(PK+8,4)}, {vr(V_DMA)}, {sr(S_WS,4)}, {sr(T)} offen {fl}")
        XS = X
        self.send = send
        if o.get("xm", 0) and o.get("l2s", 1):
            a(f"s_cmp_eq_u32 {sr(S_SX)}, {sr(S_XC)}\ns_cbranch_scc0 L_far")
            send(sfl)
            a.label("L_sent")
        else: send("sc1")
        self.stamp("sent")
        a(f"s_cmp_eq_u32 {sr(S_VAL)}, 0\ns_cbranch_scc1 L_fin")
        C, UP = 140, 68
        IN = [(200, 204, 226), (164, 168, 252), (192, 196, 172)]
        VXW, VXR, VF, LO = 78, 79, 10, 36
        wr = [self.stage(*e) for e in self.own]

        def inbox(k):
            return [f"buffer_load_dwordx4 {vr(IN[k][0],4)}, {vr(V_DMA)}, {sr(SI,4)}, {sr(S_OR if oib else T+13)} offen sc1",
                    f"buffer_load_dwordx4 {vr(IN[k][1],4)}, {vr(V_DMA)}, {sr(SI,4)}, {sr(S_OR if oib else T+13)} offen offset:1024 sc1",
                    f"buffer_load_dwordx4 {vr(IN[k][2],4)}, {vr(V_DMA+1)}, {sr(S_WS,4)}, {sr(T+12)} offen sc1"]
        for x in inbox(0): a(x)
        n0 = len(a.lines)
        a(f"""s_lshl_b32 {sr(T)}, {sr(NB)}, 12
        s_add_u32 {sr(T)}, {sr(T)}, {sr(T+10)}
        s_add_u32 {sr(T)}, {sr(T)}, {self.X1B}
        v_add_u32 {vr(VXW)}, {sr(T)}, {vr(V_DMA)}
        s_lshl_b32 {sr(T)}, {sr(NB)}, 9
        s_add_u32 {sr(T)}, {sr(T)}, {self.X1B + 4096}
        v_add_u32 {vr(VXR)}, {sr(T)}, {vr(self.VL8)}
        s_lshl_b32 {sr(T)}, {sr(PT)}, 12
        s_add_u32 {sr(T)}, {sr(T)}, {self.X1B}
        v_add_u32 {vr(VF)}, {sr(T)}, {vr(V_DMA)}
        v_xor_b32 {vr(VF+1)}, 4096, {vr(VF)}
        s_lshl_b32 {sr(T)}, {sr(PT)}, 9
        s_add_u32 {sr(T)}, {sr(T)}, {self.X1B + 4096}
        v_add_u32 {vr(VF+2)}, {sr(T)}, {vr(self.VL8)}
        v_xor_b32 {vr(VF+3)}, 512, {vr(VF+2)}
        v_subrev_u32 {vr(R2)}, {2*SLOT}, {vr(R2)}
        v_subrev_u32 {vr(R3)}, {2*SLOT}, {vr(R3)}
        s_waitcnt vmcnt(9)""")
        self.stamp("cv0")
        un = [f"v_lshlrev_b32 {vr(M+2*i)}, 16, {vr(U+i)}\nv_and_b32 {vr(M+1+2*i)}, 0xffff0000, {vr(U+i)}" for i in range(10)]
        w8 = self.w8_loads(self.WO[2], SW + 1)
        for k, src in enumerate((GM, G0, GP)):
            for i in range(5):
                d = vr(C + 4 * i, 4)
                a(f"v_mfma_f32_16x16x16_bf16 {d}, {vr(self.dwf(k, i),2)}, {vr(src+2*i,2)}, {'0' if k == 0 else d}")
                a(w8.pop(0) if i in (0, 3) and w8 else un.pop(0))
        self.stamp("cv1")
        a(f"v_and_b32 {vr(LO+1)}, 0xf0, {vr(V_DMA)}\nv_add_u32 {vr(LO)}, {sr(T+8)}, {vr(LO+1)}\ns_nop 1")
        for i in range(10): a(f"v_pk_mul_f32 {p(C+2*i)}, {p(C+2*i)}, {p(M+2*i)}")
        for i in range(10):
            a(f"v_cvt_pk_bf16_f32 {vr(UP+i)}, {vr(C+2*i)}, {vr(C+2*i+1)}")
        body = a.lines[n0:]; del a.lines[n0:]
        step = max(1, len(body) // len(wr))
        for i, l in enumerate(body):
            if i % o.get("wstep", step) == 0 and wr: a(wr.pop(0))
            a.lines.append(l)
        for x in wr: a(x)
        ac = acc(3)
        a(f"ds_write_b128 {vr(VXW)}, {vr(UP,4)} offset:{X2O}")
        for x in ac[:6]: a(x)
        a(f"ds_write_b128 {vr(VXW)}, {vr(UP+4,4)} offset:{X2O + 1024}")
        for x in ac[6:12]: a(x)
        a(f"""s_mov_b64 exec, {sr(MP1,2)}
        ds_write_b64 {vr(VXR)}, {vr(UP+8,2)} offset:{X2O}
        s_mov_b64 exec, -1""")
        self.stamp("x2")
        for x in inbox(1): a(x)
        for x in ac[12:]: a(x)
        a("s_waitcnt lgkmcnt(0)\ns_barrier")
        self.stamp("B2")
        X = [[128, 132, 136, 140, 144], [148, 152, 156, 160, 188], [16, 20, 24, 28, 32]]
        L, L8 = rd(X, (4096, 4096, 0))
        BU = [[("v", r) for r in (100, 104, 108, 112, 116)], [("v", r) for r in (118, 122, 180, 184, 126)]]
        BO = [self.frag("v", 128), self.frag("v", 146)]
        AB = 80

        def bfrags(dst, off):
            out = []
            for s in range(5):
                for j in range(2):
                    out.append(f"ds_read_b128 {self.rg(dst[j][s],4)}, {vr(VF+j)} offset:{off + 1024*s}" if s < 4 else f"ds_read_b64 {self.rg(dst[j][4],2)}, {vr(VF+2+j)} offset:{off}")
            return out

        def fg(W, Bf):
            out = []
            for s in range(5):
                for u, (tt, j) in enumerate(units):
                    d = vr(AB + 4 * u, 4)
                    if s < 4: out.append(f"v_mfma_f32_16x16x32_bf16 {d}, {self.rg(W[tt][s],4)}, {self.rg(Bf[j][s],4)}, {d}")
                    else: out.append(f"v_mfma_f32_16x16x16_bf16 {d}, {self.rg(W[tt][4],2)}, {self.rg(Bf[j][4],2)}, {d}")
            return out
        xu = []
        for u, (tt, j) in enumerate(units):
            for h in range(2):
                x = self.XRS[j] + 2 * tt + h if tt < 2 else self.XRS[2] + h
                xu += [f"v_lshlrev_b32 {vr(AB+4*u+2*h)}, 16, {vr(x)}", f"v_and_b32 {vr(AB+1+4*u+2*h)}, 0xffff0000, {vr(x)}"]
        a("s_waitcnt vmcnt(14)")
        weave(bfrags(BU, X2O), xu, 2)
        pl = lambda k, i, e: f"v_add_f32 {vr(M+4*i+e)}, {vr(M+4*i+e)}, {vr(X[k][i]+e)}"
        ds = L[0] + L[1] + L[2] + [f"s_not_b64 exec, {sr(MP1,2)}\n" + "\n".join(L8) + "\ns_mov_b64 exec, -1", f"ds_read_b128 {vr(LO,4)}, {vr(LO)} offset:512"]
        nis = [1] * 12 + [3, 1]
        gap = [[] for _ in range(25)]
        tot = [10]
        for g in range(25): tot.append(tot[-1] + (nis[g] if g < 14 else 0))
        A0 = [pl(0, i, e) for i in range(4) for e in range(4)]
        A1 = [pl(1, i, e) for i in range(4) for e in range(4)]
        ib = inbox(2)
        for g, m in enumerate(fg(self.WD, BU)):
            if g % 5 == 0: a(f"s_waitcnt lgkmcnt({min(15, tot[g] - 2 * (g // 5 + 1))})")
            a(m)
            if g == 8: a(f"s_waitcnt lgkmcnt({tot[g] - 14})")
            if g == 16: a(f"s_waitcnt lgkmcnt({tot[g] - 18})")
            if g < 14: a(ds[g])
            if 8 <= g < 14: a(A0.pop(0))
            elif g in (14, 18, 22): a(ib.pop(0))
            elif g >= 14:
                for _ in range(2): a(A0.pop(0) if A0 else A1.pop(0))
        assert not A0 and len(A1) % 2 == 0
        n1 = 16 - len(A1)
        for e in range(n1, 16, 2): a(f"v_pk_add_f32 {p(M+e)}, {p(M+e)}, {p(X[1][e//4]+e%4)}")
        a("s_waitcnt lgkmcnt(0)")
        for x in adds(X, 2, range(4)): a(x)
        a(f"v_add_f32 {vr(LO)}, {vr(LO)}, {vr(LO+1)}\nv_add_f32 {vr(LO+2)}, {vr(LO+2)}, {vr(LO+3)}")
        for kk in range(3):
            for x in adds(X, kk, [4]): a(x)
        a(f"s_mov_b32 {sr(T+2)}, 0\nv_add_f32 {vr(LO)}, {vr(LO)}, {vr(LO+2)}")
        self.stamp("own")
        w, PU = 40, 128
        mo = MK + 3

        def chk(k):
            r = [IN[k][q] + i for q in range(3) for i in range(4)]
            c = [f"v_max3_u32 v46, {vr(r[0])}, {vr(r[1])}, {vr(r[2])}", f"v_max3_u32 v47, {vr(r[3])}, {vr(r[4])}, {vr(r[5])}"]
            for q in range(3): c.append(f"v_max3_u32 v{46+(q&1)}, v{46+(q&1)}, {vr(r[6+2*q])}, {vr(r[7+2*q])}")
            return c + ["v_max_u32 v46, v46, v47", "v_cmp_eq_u32 vcc, -1, v46"]

        def take(k, with_chk):
            r = [IN[k][q] + i for q in range(3) for i in range(4)]
            lp_, mp = r[10], r[11]
            wt = [f"v_min_f32 {vr(w)}, {vr(mo)}, {vr(mp)}", f"v_sub_f32 {vr(w+2)}, {vr(w)}, {vr(mp)}", f"v_sub_f32 {vr(w)}, {vr(w)}, {vr(mo)}",
                  f"v_exp_f32 {vr(w+2)}, {vr(w+2)}", f"v_exp_f32 {vr(w)}, {vr(w)}", f"v_mul_f32 {vr(w+4)}, {vr(w+2)}, {vr(lp_)}",
                  f"v_fmac_f32 {vr(w+4)}, {vr(w)}, {vr(LO)}", f"v_rcp_f32 {vr(w+4)}, {vr(w+4)}", f"v_mul_f32 {vr(w)}, {vr(w)}, {vr(w+4)}",
                  f"v_mul_f32 {vr(w+2)}, {vr(w+2)}, {vr(w+4)}"]
            un = []
            for i in range(10): un += [f"v_lshlrev_b32 {vr(PU+2*i)}, 16, {vr(r[i])}", f"v_and_b32 {vr(PU+1+2*i)}, 0xffff0000, {vr(r[i])}"]
            c = chk(k) if with_chk else []
            for i in range(10):
                a(wt[i])
                if c: a(c.pop(0))
                a(un.pop(0)); a(un.pop(0))
        a("s_waitcnt vmcnt(6)")
        take(0, True)
        a("s_cmp_eq_u64 vcc, 0\ns_cbranch_scc0 L_poll2")
        a.label("L_got")
        self.stamp("got")
        for i in range(10): a(f"v_pk_mul_f32 {p(M+2*i)}, {p(M+2*i)}, {p(w)} op_sel_hi:[1,0]")
        for i in range(10): a(f"v_pk_fma_f32 {p(M+2*i)}, {p(PU+2*i)}, {p(w+2)}, {p(M+2*i)} op_sel_hi:[1,0,1]")
        for i in range(10):
            a(f"v_cvt_pk_bf16_f32 {vr(UP+i)}, {vr(M+2*i)}, {vr(M+2*i+1)}")
            if i == 3: a(f"ds_write_b128 {vr(VXW)}, {vr(UP,4)}")
            if i == 7: a(f"ds_write_b128 {vr(VXW)}, {vr(UP+4,4)} offset:1024")
        a(f"""s_not_b64 exec, {sr(MP1,2)}
        ds_write_b64 {vr(VXR)}, {vr(UP+8,2)}
        s_mov_b64 exec, -1
        s_waitcnt lgkmcnt(0)
        s_barrier""")
        self.stamp("B3")
        for x in bfrags(BO, 0): a(x)
        for g, m in enumerate(fg(self.WO, BO)):
            if g % 5 == 0: a(f"s_waitcnt lgkmcnt({8 - 2 * (g // 5)})" + ("\ns_nop 0" if g == 20 else ""))
            a(m)
        self.stamp("gem")
        a("s_nop 3")
        for j in range(2):
            for tt in range(2):
                u = 2 * tt + j
                for h in range(2): a(f"v_cvt_pk_bf16_f32 {vr(16+4*j+2*tt+h)}, {vr(AB+4*u+2*h)}, {vr(AB+4*u+2*h+1)}")
            a(f"buffer_store_dwordx4 {vr(16+4*j,4)}, {vr(VO+j)}, {sr(S_OUT,4)}, {sr(self.E_COL)} offen {o.get('ofl', '')}")
        a(f"s_cmp_ge_u32 {sr(S_W)}, 2\ns_cbranch_scc1 L_fin")
        for h in range(2): a(f"v_cvt_pk_bf16_f32 {vr(24+h)}, {vr(AB+16+2*h)}, {vr(AB+16+2*h+1)}")
        a(f"buffer_store_dwordx2 v[24:25], {vr(self.VO8)}, {sr(S_OUT,4)}, 0 offen offset:256 {o.get('ofl', '')}")
        self.stamp("fin")

        def poll2():
            a.label("L_poll2")
            for k in (1, 2, 0):
                for x in inbox((k + 2) % 3): a(x)
                a("s_waitcnt vmcnt(6)")
                for x in chk(k): a(x)
                a(f"s_add_u32 {sr(T+2)}, {sr(T+2)}, 1\ns_cmp_eq_u64 vcc, 0\ns_cbranch_scc1 L_take{k}")
            a(f"s_cmp_lt_u32 {sr(T+2)}, 0x10000\ns_cbranch_scc1 L_poll2")
            for k in (0, 1, 2):
                a.label(f"L_take{k}")
                take(k, False)
                a("s_branch L_got")
            if o.get("xm", 0) and o.get("l2s", 1):
                a.label("L_far")
                send("sc1")
                a("s_branch L_sent")
        self.poll2 = poll2

    def fallback(self):
        a = self.a
        T = S_T
        MXR = 208
        a.label("L_fallback")
        a(f"""s_waitcnt vmcnt(0) lgkmcnt(0)
        s_barrier
        s_mov_b32 {sr(S_REDO)}, 1
        s_mov_b32 {sr(S_UG)}, 0x40000000
        {self.xa_srd()}
        s_mov_b32 {sr(S_TOFF)}, {sr(S_LB)}
        s_cmp_eq_u32 {sr(S_DUM)}, 4
        s_cselect_b32 {sr(S_CNT)}, 15, 16""")
        for i in range(4): a(f"v_mov_b32 {vr(MXR+i)}, 0xff800000")
        a.label("L_fb1")
        for g in self.tile_groups(0): a(g)
        a("s_waitcnt vmcnt(0)")
        for x in self.k_reads(0): a(x)
        a("s_waitcnt lgkmcnt(0)")
        for m in self.qk_mfmas(0, czero=True): a(m)
        a("s_nop 7")
        for qb in range(4):
            for i in range(0, 8, 2): a(f"v_max3_f32 {vr(MXR+qb)}, {vr(MXR+qb)}, {vr(self.S(0,qb,i))}, {vr(self.S(0,qb,i+1))}")
        a(f"s_sub_u32 {sr(S_CNT)}, {sr(S_CNT)}, 1\ns_cmp_lg_u32 {sr(S_CNT)}, 0\ns_cbranch_scc1 L_fb1")
        self.greduce([MXR + i for i in range(4)], MXR + 4, "v_max_f32")
        a(f"""v_and_b32 {vr(MXR+4)}, 15, v0
        v_lshlrev_b32 {vr(MXR+4)}, 4, {vr(MXR+4)}
        v_add_u32 {vr(MXR+4)}, {L_SP}, {vr(MXR+4)}
        s_lshl_b32 {sr(T)}, {sr(S_W)}, 2
        s_xor_b32 {sr(T+1)}, {sr(self.NB)}, 1
        v_lshl_add_u32 {vr(MXR+5)}, {sr(self.NB)}, 8, {vr(MXR+4)}
        v_lshl_add_u32 {vr(MXR+4)}, {sr(T+1)}, 8, {vr(MXR+4)}
        v_add_u32 {vr(MXR+6)}, {sr(T)}, {vr(MXR+4)}
        v_add_u32 {vr(MXR+7)}, {sr(T)}, {vr(MXR+5)}""")
        for qb in range(4): a(f"ds_write_b32 {vr(MXR+6+(qb&1))}, {vr(MXR+qb)} offset:{512*(qb>>1)}")
        a("s_waitcnt lgkmcnt(0)\ns_barrier")
        for qb in range(4): a(f"ds_read_b128 {vr(16+4*qb,4)}, {vr(MXR+4+(qb&1))} offset:{512*(qb>>1)}")
        a(f"s_mov_b32 {sr(S_TOFF)}, {sr(S_LB)}")
        for g in self.tile_groups(0) + self.tile_groups(1) + ([] if self.o.get("gs", 0) else self.tile_groups(2)[:8]): a(g)
        a("s_waitcnt lgkmcnt(0)")
        for qb in range(4):
            r = 16 + 4 * qb
            a(f"v_max_f32 {vr(r)}, {vr(r)}, {vr(r+1)}\nv_max3_f32 {vr(r)}, {vr(r)}, {vr(r+2)}, {vr(r+3)}")
            a(f"v_sub_f32 {vr(self.MK+qb)}, 0, {vr(r)}")
        a("s_waitcnt vmcnt(0)")
        for x in self.k_reads(0, V_V): a(x)
        self.loop_init(False)
        if self.o.get("gs", 0): self.loop_init(True)
        a("s_branch L_go")


if __name__ == "__main__":
    opt = json.loads(sys.argv[2]) if len(sys.argv) > 2 else {}
    g = G(opt)
    txt = g.build()
    if opt.get("align", 1):
        from align import align
        for n2 in (1, 2):
            try:
                txt, st = align(txt, chains=[(1, "L_tr")] * 3 + [(1, "L_tr2"), (n2, "L_tr2")] if opt.get("touch", 1) else None)
                break
            except AssertionError as e:
                if n2 == 2: raise
        print("align: promoted %d, padded %d, left %d" % st)
    txt = txt.replace("\n", "\n; stamps " + json.dumps(g.stnames) + "\n; map %d\n" % g.mp, 1)
    open(sys.argv[1], "w").write(txt)
```

```python
import sys, json, math
from common import Asm, vr, ar, sr, kernel_header, kernel_desc
from lay import *

NAME = "standalone__conformer_family_branchformer__speech_kernel"
NH = 2
NWG = 252 + NH
CHAINS = (3, 3)
RING = 4
LDS_RING = RING * TILE
LDS_TOTAL = 163840
SLOT = 4 * TILE
L_WU, L_WQ, L_WK = 0, 41472, 82944
L_XX, L_XR = 126976, 143360
L_QD = 18432
L_XS = L_XX + L_QD
L_MX = 81920
L_PC = LDS_TOTAL - 256
L_DUMP = 123904
L_SP = 147456

S_X, S_WS, S_XA, S_DB, S_W1, S_W2, S_OUT, S_DW = 8, 12, 16, 20, 24, 28, 32, 36
S_W, S_B, S_H, S_QB, S_TOFF, S_CNT, S_DUM, S_LB, S_TOWN, S_TSND, S_VAL, S_REDO = range(40, 52)
S_UG, S_CL = 25, 26
S_PH, S_XC, S_SX = 6, 74, 75
S_RO = 75
S_OS, S_OR = 28, 29
S_N, S_FB = 98, 99
S_INC = 24
S_T = 52
S_ST = 76

V_KA, V_VA, V_VR, V_DMA, V_L, V_VB = 1, 3, 5, 6, 10, 14
V_S, V_CI, V_P, V_K, V_V = 16, 80, 96, 128, 164
V_HI = 200
V_X = 208
A_O, A_Q, A_F = 0, 144, 216

LOG2E = 1.4426950408889634
import struct
def f32(x): return "0x%08x" % struct.unpack("<I", struct.pack("<f", x))[0]


class BAsm(Asm):
    def __init__(self):
        super().__init__()
        self.bg, self.every, self.cnt, self.skip = [], 0, 0, 0

    def __call__(self, s):
        for l in s.split("\n"):
            l = l.strip()
            if not l: continue
            self.lines.append("    " + l)
            if self.bg and self.every and not l.startswith(("s_nop", "v_mov_b32", "v_exp", "v_rcp", "v_rsq", "v_sqrt", "s_add_u32 m0")):
                self.cnt += 1
                if self.cnt >= self.every:
                    self.cnt = 0
                    self.pop()

    def pop(self):
        for x in self.bg.pop(0).split("\n"): self.lines.append("    " + x)

    def flush(self):
        while self.bg: self.pop()
        self.every = 0


class G:
    def __init__(self, opt):
        self.o = opt
        self.a = BAsm()
        self.nst = 0
        self.fill = []

    def stamp(self, name):
        if self.o.get("stamps"):
            if name in self.o.get("skipst", []): return
            if "only" in self.o and name not in self.o["only"]: return
            if self.nst >= 11: return
            self.a(f"{'s_memtime' if self.o.get('cyc') else 's_memrealtime'} {sr(S_ST + 2*self.nst, 2)}")
            self.stnames.append(name)
            self.nst += 1

    def srd(self, dst, lo, hi, n):
        if dst == S_WS and self.o.get("wsoff"):
            self.a(f"s_add_u32 {sr(dst)}, {sr(lo)}, {self.o['wsoff']}\ns_addc_u32 {sr(dst+1)}, {sr(hi)}, 0\ns_mov_b32 {sr(dst+2)}, {n}\ns_mov_b32 {sr(dst+3)}, 0x20000")
            return
        self.a(f"s_mov_b32 {sr(dst)}, {sr(lo)}\ns_mov_b32 {sr(dst+1)}, {sr(hi)}\ns_mov_b32 {sr(dst+2)}, {n}\ns_mov_b32 {sr(dst+3)}, 0x20000")

    def greduce(self, regs, tmp, op="v_add_f32"):
        a = self.a
        for sw in ("32", "16"):
            for i, r in enumerate(regs): a(f"v_mov_b32 {vr(tmp+i)}, {vr(r)}")
            if len(regs) < 3: a("s_nop 1" if len(regs) == 1 else "s_nop 0")
            for i, r in enumerate(regs): a(f"v_permlane{sw}_swap_b32 {vr(r)}, {vr(tmp+i)}")
            for i, r in enumerate(regs): a(f"{op} {vr(r)}, {vr(r)}, {vr(tmp+i)}")

    def treduce(self, r, op="v_add_f32"):
        a = self.a
        a(f"v_permlane32_swap_b32 {vr(r)}, {vr(r+2)}\nv_permlane32_swap_b32 {vr(r+1)}, {vr(r+3)}")
        a(f"{op} {vr(r)}, {vr(r)}, {vr(r+2)}\n{op} {vr(r+1)}, {vr(r+1)}, {vr(r+3)}\ns_nop 1")
        a(f"v_permlane16_swap_b32 {vr(r)}, {vr(r+1)}\n{op} {vr(r)}, {vr(r)}, {vr(r+1)}")

    def rbf(self, r):
        self.a(f"v_cvt_pk_bf16_f32 {vr(r)}, {vr(r)}, {vr(r)}\nv_lshlrev_b32 {vr(r)}, 16, {vr(r)}")

    def ln_tail(self, F, out, t, mimic):
        a = self.a
        p = lambda r: vr(r, 2)
        self.greduce([t, t + 1], t + 2)
        a(f"v_mul_f32 {vr(t+2)}, {f32(1.0/144)}, {vr(t)}")
        a(f"v_mul_f32 {vr(t+3)}, {vr(t+2)}, {vr(t+2)}")
        a(f"v_mov_b32 {vr(t+4)}, {f32(1.0/144)}")
        a(f"v_fma_f32 {vr(t)}, {vr(t+1)}, {vr(t+4)}, -{vr(t+3)}")
        a(f"v_max_f32 {vr(t)}, 0, {vr(t)}")
        if mimic:
            self.rbf(t)
            self.rbf(t + 2)
            a(f"v_add_f32 {vr(t)}, {f32(1e-5)}, {vr(t)}")
            self.rbf(t)
            a(f"v_sqrt_f32 {vr(t)}, {vr(t)}\ns_nop 0")
            self.rbf(t)
            a(f"v_rcp_f32 {vr(t)}, {vr(t)}\ns_nop 0")
        else:
            a(f"v_add_f32 {vr(t)}, {f32(1e-5)}, {vr(t)}")
            a(f"v_rsq_f32 {vr(t)}, {vr(t)}\ns_nop 0")
        a(f"v_mul_f32 {vr(t+2)}, -{vr(t+2)}, {vr(t)}")
        for i in range(18):
            a(f"v_pk_fma_f32 {p(F+2*i)}, {p(F+2*i)}, {p(t)}, {p(t+2)} op_sel_hi:[1,0,0]")
        for i in range(18):
            a(f"v_cvt_pk_bf16_f32 {vr(out+i)}, {vr(F+2*i)}, {vr(F+2*i+1)}")

    def ln_packed(self, X, F, out, t):
        a = self.a
        a(f"v_mov_b32 {vr(t+6)}, 0x3f803f80")
        for k in range(4): a(f"v_mov_b32 {vr(t+k)}, 0")
        for i in range(18):
            a(f"v_dot2_f32_bf16 {vr(t+2*(i&1))}, {vr(X+i)}, {vr(t+6)}, {vr(t+2*(i&1))}")
            a(f"v_dot2_f32_bf16 {vr(t+1+2*(i&1))}, {vr(X+i)}, {vr(X+i)}, {vr(t+1+2*(i&1))}")
        for i in range(2):
            a(f"v_lshlrev_b32 {vr(F+2*i)}, 16, {vr(X+i)}\nv_and_b32 {vr(F+2*i+1)}, 0xffff0000, {vr(X+i)}")
        a(f"v_pk_add_f32 {vr(t,2)}, {vr(t,2)}, {vr(t+2,2)}")
        un = []
        for i in range(2, 18):
            un.append(f"v_lshlrev_b32 {vr(F+2*i)}, 16, {vr(X+i)}\nv_and_b32 {vr(F+2*i+1)}, 0xffff0000, {vr(X+i)}")
        sv = (a.bg, a.every, a.cnt, a.skip)
        n0 = len(a.lines)
        a.bg, a.every = [], 0
        self.ln_tail(F, out, t, True)
        tail = a.lines[n0:]
        del a.lines[n0:]
        a.bg, a.every, a.cnt, a.skip = sv
        k = next(i for i, l in enumerate(tail) if "v_pk_fma" in l)
        for i, l in enumerate(tail[:k]):
            if "s_nop" in l and un: continue_nop = True
            a(l)
            if un and not l.strip().startswith("s_nop"): a(un.pop(0))
        while un: a(un.pop(0))
        for l in tail[k:]: a(l)

    def ln_f32(self, F, out, t):
        a = self.a
        p = lambda r: vr(r, 2)
        a(f"v_pk_add_f32 {p(t)}, {p(F)}, {p(F+2)}\nv_pk_add_f32 {p(t+2)}, {p(F+4)}, {p(F+6)}")
        a(f"v_pk_mul_f32 {p(t+4)}, {p(F)}, {p(F)}\nv_pk_mul_f32 {p(t+6)}, {p(F+2)}, {p(F+2)}")
        for i in range(2, 18):
            if i >= 4: a(f"v_pk_add_f32 {p(t+2*(i&1))}, {p(t+2*(i&1))}, {p(F+2*i)}")
            a(f"v_pk_fma_f32 {p(t+4+2*(i&1))}, {p(F+2*i)}, {p(F+2*i)}, {p(t+4+2*(i&1))}")
        a(f"v_pk_add_f32 {p(t)}, {p(t)}, {p(t+2)}\nv_pk_add_f32 {p(t+4)}, {p(t+4)}, {p(t+6)}")
        a(f"v_add_f32 {vr(t)}, {vr(t)}, {vr(t+1)}\nv_add_f32 {vr(t+1)}, {vr(t+4)}, {vr(t+5)}")
        self.ln_tail(F, out, t, False)

    def gemm_u(self, AF, rf, Bs, ACC, afr, bfr, post, vm_items=(), other=(), lead=7, vm0=0, vmsp=4, at={}, lastk=0):
        a = self.a
        units = [(0, j) for j in range(4)] + [(1, j) for j in range(4)] + [(2, 0)]
        seq, dl = [], {}
        bs = lambda j, o_, n: self.rg((Bs[j][0], Bs[j][1] + o_), n)
        rem = lambda u: (f"v_mfma_f32_16x16x16_bf16 {vr(ACC+4*u,4)}, {rf(AF+18*units[u][0]+16,2)}, {bs(units[u][1],16,2)}, {vr(ACC+4*u,4)}", u)
        A = [afr(t) for t in range(3)]
        Bf = [bfr(j) for j in range(4)]

        def use(t, j, s, k):
            for x in (A[t][2 * s:2 * s + 2] if s < 4 else A[t][8:]) + ([Bf[j][s]] if Bf[j] else []): dl.setdefault(x, k)
        for g in range(4):
            for s in range(4):
                for u in range(3 * g, 3 * g + 3) if g < 3 else []:
                    t, j = units[u]
                    d = vr(ACC + 4 * u, 4)
                    use(t, j, s, len(seq))
                    seq.append((f"v_mfma_f32_16x16x32_bf16 {d}, {rf(AF+18*t+4*s,4)}, {bs(j,4*s,4)}, {'0' if s == 0 else d}", None))
                if s == 0 and g > 0:
                    for u in range(3 * g - 3, 3 * g):
                        use(units[u][0], units[u][1], 4, len(seq)); seq.append(rem(u))
        last = seq[-3:]; seq = seq[:-3]
        ds = sorted(dl.items(), key=lambda e: e[1]) + [(x, 99) for x in other]
        vm_items = list(vm_items)
        lastvm = vm0 - vmsp
        order, ready, q, done = [], [], [], 0

        def issue():
            x, k_ = ds.pop(0); a(x); order.append(k_)

        def wait(k):
            nonlocal done
            idx = [i_ for i_, k_ in enumerate(order) if k_ <= k]
            if idx and max(idx) + 1 > done:
                a(f"s_waitcnt lgkmcnt({min(15, len(order) - 1 - max(idx))})"); done = max(idx) + 1
        while ds and ds[0][1] < 6: issue()
        for k, (m, fin) in enumerate(seq):
            assert not ds or ds[0][1] > k, (k, ds[0])
            wait(k)
            a(m)
            for u_, kk in list(ready):
                if k - kk >= 4: q += post(u_); ready.remove((u_, kk))
            if fin is not None: ready.append((fin, k))
            if k in at: at[k]()
            due = sum(1 for x, k_ in ds if k_ <= k + lead)
            if due == 0 and vm_items and k >= lastvm + vmsp and (len(vm_items) > 1 or k >= lastk):
                a(vm_items.pop(0)); lastvm = k; continue
            cap = 2
            for _ in range(min(due, 3)): issue(); cap -= 1
            if cap == 2:
                if q and q[0].startswith("ds_"): a(q.pop(0)); order.append(99); cap -= 1
                elif ds: issue(); cap -= 1
            while cap > 0 and q and not q[0].startswith("ds_"):
                a(q.pop(0)); cap -= 1
        assert not ready
        while ds: issue()
        wait(98)
        for x in vm_items: a(x)
        for x in q[:4]: a(x)
        a(f"s_nop {max(0, 4 - len(q[:4]))}")
        for m, _ in last: a(m)
        for x in q[4:]: a(x)
        a(f"s_nop {max(0, 6 - len(q[4:]))}")
        for u in range(6, 9):
            for x in post(u): a(x)

    def gemm(self, reads, B, ACC, AF, late=(), at={}, per=2):
        a = self.a
        buf = lambda T: 18 * (T % 6)
        ng = 3 * (4 * per + 1)

        def grp(g):
            r = [reads(T, buf(T)) for T in range(3 * g, 3 * g + 3)]
            return [r[t][per * s + u] for s in range(4) for t in range(3) for u in range(per)] + [r[t][4 * per] for t in range(3)]
        rem = lambda T: f"v_mfma_f32_16x16x16_bf16 {vr(ACC+4*T,4)}, {ar(buf(T)+16,2)}, {vr(B+16,2)}, {vr(ACC+4*T,4)}"
        pend = grp(0) + grp(1) + grp(2) + list(late)
        issued = k = 0

        def issue(n):
            nonlocal issued
            for _ in range(n):
                if issued < len(pend): a(pend[issued]); issued += 1

        def mf(x):
            nonlocal k
            a(x); issue(per if per == 2 else (2 if k % 4 == 0 else 1))
            if k in at: a(at[k])
            k += 1
        issue(self.o.get('look', 12) if per == 2 else self.o.get('look1', 8))
        for g in range(3):
            for s in range(4):
                need = ng * g + 3 * per * (s + 1)
                a(f"s_waitcnt lgkmcnt({min(15, issued - need)})")
                for T in range(3 * g, 3 * g + 3):
                    d = vr(ACC + 4 * T, 4)
                    mf(f"v_mfma_f32_16x16x32_bf16 {d}, {ar(buf(T)+4*s,4)}, {vr(B+4*s,4)}, {'0' if s == 0 else d}")
                if s == 0 and g > 0:
                    for T in range(3 * g - 3, 3 * g): mf(rem(T))
                if g == 1 and s == 0: assert issued <= 2 * ng + 6 * per, "group 2 overwrites group 0 too early"
        issue(99)
        a(f"s_waitcnt lgkmcnt({len(late)})\ns_nop 2")
        for T in range(6, 9): a(rem(T))
        a("s_nop 7")

    def tr_reads(self, ad, rf=ar):
        def f(T, dst):
            out = []
            for s in range(4):
                for u in range(2):
                    out.append(f"ds_read_b64_tr_b16 {rf(dst+4*s+2*u,2)}, {vr(ad+u)} offset:{9216*s + 32*T}")
            out.append(f"ds_read_b64_tr_b16 {rf(dst+16,2)}, {vr(ad+2)} offset:{36864 + 32*T}")
            return out
        return f

    def row_reads(self, ad, sw=None):
        def f(T, dst):
            r = ad if sw is None or T == 8 else sw[T & 1]
            out = []
            for s in range(4):
                for u in range(2):
                    out.append(f"ds_read_b64 {ar(dst+4*s+2*u,2)}, {vr(r)} offset:{4864*T + 64*s + 32*u}")
            out.append(f"ds_read_b64 {ar(dst+16,2)}, {vr(r)} offset:{4864*T + 256}")
            return out
        return f

    def dma_rows(self, jobs, cpr, rstride, vo, vc, n_first, first_waves, lab):
        a = self.a
        mul = {18: 3641, 19: 3450}[cpr]
        dr, dc = 256 // cpr, 256 % cpr
        a(f"s_lshl_b32 {sr(S_T)}, {sr(S_W)}, 6")
        a(f"v_add_u32 {vr(vc)}, {sr(S_T)}, v0")
        a(f"v_mul_u32_u24 {vr(vo)}, {mul}, {vr(vc)}")
        a(f"v_lshrrev_b32 {vr(vo)}, 16, {vr(vo)}")
        a(f"v_mul_u32_u24 {vr(vc+1)}, {cpr}, {vr(vo)}")
        a(f"v_sub_u32 {vr(vc)}, {vr(vc)}, {vr(vc+1)}")
        a(f"v_mul_u32_u24 {vr(vo)}, {rstride}, {vr(vo)}")
        a(f"v_lshl_add_u32 {vr(vo)}, {vr(vc)}, 4, {vr(vo)}")
        a(f"s_lshl_b32 {sr(S_T)}, {sr(S_W)}, 10")
        a(f"v_mov_b32 {vr(vc+1)}, {rstride - 16*cpr}")
        for k in range(n_first):
            if k == n_first - 1:
                a(f"s_cmp_ge_u32 {sr(S_W)}, {first_waves}\ns_cbranch_scc1 {lab}")
            for srd, so, lb in jobs:
                a(f"s_add_u32 m0, {sr(S_T)}, {lb + 4096*k}")
                a("s_nop 0")
                a(f"buffer_load_dwordx4 {vr(vo)}, {sr(srd,4)}, {so} offen lds")
            if k < n_first - 1:
                a(f"v_add_u32 {vr(vc)}, {dc}, {vr(vc)}")
                a(f"v_cmp_le_u32 vcc, {cpr}, {vr(vc)}")
                a(f"v_add_u32 {vr(vo)}, {dr*rstride + 16*dc}, {vr(vo)}")
                a(f"v_subrev_u32 {vr(vc+2)}, {cpr}, {vr(vc)}")
                a(f"v_cndmask_b32 {vr(vc)}, {vr(vc)}, {vr(vc+2)}, vcc")
                a(f"v_cndmask_b32 {vr(vc+2)}, 0, {vr(vc+1)}, vcc")
                a(f"v_add_u32 {vr(vo)}, {vr(vo)}, {vr(vc+2)}")
        a.label(lab)

    def voff_table(self, dst, cpr, rstride, vc, step=256):
        a = self.a
        mul = {18: 29128, 19: 27595}[cpr]
        n = len(dst)
        a(f"s_mov_b32 {sr(S_T)}, {rstride - 16*cpr}")
        a(f"v_mul_u32_u24 {vr(dst[0])}, {mul}, {vr(vc)}")
        for k in range(1, n): a(f"v_add_u32 {vr(dst[k])}, {(step*k % cpr)*mul}, {vr(dst[0])}")
        for k in range(n): a(f"v_lshrrev_b32 {vr(dst[k])}, 19, {vr(dst[k])}")
        for k in range(n): a(f"v_mad_i32_i24 {vr(dst[k])}, {vr(dst[k])}, {sr(S_T)}, {vr(vc+1)}")

    def dma_lin(self, srd, soff, lb, v16, lab):
        a = self.a
        a(f"s_lshl_b32 {sr(S_T)}, {sr(S_W)}, 10")
        for k in range(11):
            if k == 10:
                a(f"s_cmp_ge_u32 {sr(S_W)}, 1\ns_cbranch_scc1 {lab}")
            a(f"s_add_u32 m0, {sr(S_T)}, {lb + 4096*k}")
            a(f"s_add_u32 {sr(S_T+1)}, {sr(S_T)}, {soff + 4096*k}")
            a(f"buffer_load_dwordx4 {vr(v16)}, {sr(srd,4)}, {sr(S_T+1)} offen lds")
        a.label(lab)

    def tr_addr(self, ad, base, swapped, t):
        a = self.a
        a(f"v_lshrrev_b32 {vr(t)}, 2, v0")
        a(f"v_mul_u32_u24 {vr(t)}, 288, {vr(t)}")
        a(f"v_and_b32 {vr(t+1)}, 3, v0")
        a(f"v_lshl_add_u32 {vr(t)}, {vr(t+1)}, 3, {vr(t)}")
        a(f"v_add_u32 {vr(ad+2)}, {base}, {vr(t)}")
        if swapped:
            a(f"v_bfe_u32 {vr(t)}, v0, 4, 1")
            a(f"v_mul_u32_u24 {vr(t)}, {16*288}, {vr(t)}")
            a(f"v_add_u32 {vr(ad)}, {vr(ad+2)}, {vr(t)}")
            a(f"v_sub_u32 {vr(ad+1)}, {vr(ad+2)}, {vr(t)}")
            a(f"v_add_u32 {vr(ad+1)}, {16*288}, {vr(ad+1)}")
        else:
            a(f"v_mov_b32 {vr(ad)}, {vr(ad+2)}")
            a(f"v_add_u32 {vr(ad+1)}, {16*288}, {vr(ad+2)}")

    def row_addr(self, ad, base, t):
        a = self.a
        a(f"v_and_b32 {vr(t)}, 15, v0")
        a(f"v_mul_u32_u24 {vr(t)}, 304, {vr(t)}")
        a(f"v_lshrrev_b32 {vr(t+1)}, 4, v0")
        a(f"v_lshl_add_u32 {vr(t)}, {vr(t+1)}, 3, {vr(t)}")
        a(f"v_add_u32 {vr(ad)}, {base}, {vr(t)}")

    def store_block(self, src, v16, v8, srd, soff, soff2, flags=""):
        a = self.a
        for s in range(4):
            a(f"buffer_store_dwordx4 {vr(src+4*s,4)}, {vr(v16)}, {sr(srd,4)}, {sr(soff)} offen offset:{1024*s} {flags}")
        a(f"buffer_store_dwordx2 {vr(src+16,2)}, {vr(v8)}, {sr(srd,4)}, {sr(soff2)} offen {flags}")

    def entry(self):
        a = self.a
        xm2 = self.o.get("xm", 0) == 2
        kernel_header(a, NAME)
        a(f"s_load_dwordx16 s[56:71], s[0:1], 0")
        a(f"s_load_dwordx8 s[72:79], s[0:1], 64")
        a(f"s_getpc_b64 {sr(S_W1,2)}")
        a.label("L_pf")
        a(f"""s_mov_b32 {sr(S_W1+2)}, L_dummy-L_pf
        s_mov_b32 {sr(S_W1+3)}, 0x20000
        v_lshlrev_b32 v2, 4, v0
        buffer_load_dwordx4 v[252:255], v2, {sr(S_W1,4)}, 0 offen
        s_lshl_b32 s3, s2, 9
        s_and_b32 s3, s3, 0x7000
        buffer_load_dwordx4 v[252:255], v2, {sr(S_W1,4)}, s3 offen
        v_lshrrev_b32 v1, 6, v0
        {"s_bfe_u32 s6, s2, 0x10003" if xm2 else f"s_sub_u32 s2, s2, {NH}"}
        v_readfirstlane_b32 {sr(S_W)}, v1
        s_memrealtime s[4:5]""")
        if xm2:
            a(f"""s_and_b32 s7, s2, 7
            s_lshl1_add_u32 s7, s7, s6
            s_mov_b32 s6, s2
            s_andn2_b32 s2, s2, 15
            s_or_b32 s2, s2, s7""")
        a(f"""s_cmp_ge_u32 s2, {NWG - NH}
        s_cbranch_scc1 L_wfuse""")
        if self.o.get("late"):
            m_, v_, n_ = self.o["late"]
            a(f"""s_and_b32 s3, s2, {m_}
            s_cmp_lg_u32 s3, {v_}
            s_cbranch_scc1 L_nl
            s_memrealtime s[4:5]
            s_waitcnt lgkmcnt(0)
            s_add_u32 s6, s4, {n_}
            L_lt:
            s_memrealtime s[4:5]
            s_waitcnt lgkmcnt(0)
            s_sub_u32 s7, s6, s4
            s_cmp_gt_i32 s7, 0
            s_cbranch_scc1 L_lt
            L_nl:""")
        if self.o.get("stamps"):
            a("s_memrealtime s[100:101]" if not self.o.get("cyc") else "s_memtime s[100:101]")
        self.mp = 2

    def vm_since(self, mark):
        return sum(1 for l in self.a.lines[mark:] if l.strip().startswith("buffer_"))

    def phase_a(self):
        a, o = self.a, self.o
        XR, XF, XA, ACC, G_, PK = 16, 34, 146, 110, 16, 164
        B4, XD = 16, 88
        VS, VSW, VR4, MXA, MXR, L8, TRU, TRQ, TRQ8, RK, TM = 200, 204, 208, 212, 213, 214, 215, 218, 221, 224, 228
        VK, VU = list(range(182, 193)), list(range(193, 200)) + list(range(104, 108))
        AQ1 = 200
        t0, t1, t2 = 250, 251, 227
        T = S_T
        WV, W10, UOFF, M1, PUB, M3 = 72, 70, 71, 69, 68, 65
        PH = 2
        if o.get("xm", 0) == 2: PH = S_PH
        if o.get("xm", 0) == 1:
            PH = S_PH
            a(f"""s_mov_b32 {sr(PH)}, s2
            s_bfe_u32 {sr(T)}, s2, 0x10003
            s_and_b32 {sr(T+1)}, s2, 7
            s_lshl1_add_u32 {sr(T)}, {sr(T+1)}, {sr(T)}
            s_and_b32 {sr(T+1)}, s2, 0xf0
            s_or_b32 {sr(T)}, {sr(T)}, {sr(T+1)}
            s_add_u32 s2, s2, 4
            s_cmp_lt_u32 {sr(T)}, 248
            s_cselect_b32 s2, {sr(T)}, s2""")
        a(f"""v_and_b32 v0, 63, v0
        s_bfe_u32 {sr(S_B)}, s2, 0x10001
        s_lshr_b32 {sr(S_QB)}, s2, 2
        s_lshr_b32 {sr(T)}, {sr(S_W)}, 1
        s_xor_b32 {sr(T)}, {sr(T)}, s2
        s_andn2_b32 {sr(T)}, 1, {sr(T)}
        s_lshl1_add_u32 {sr(T+3)}, {sr(S_QB)}, {sr(T)}
        s_mul_i32 {sr(T)}, {sr(S_B)}, {NT}
        s_add_u32 {sr(T+1)}, {sr(T+3)}, {sr(T)}
        s_and_b32 {sr(T+2)}, {sr(S_W)}, 1
        s_lshl1_add_u32 {sr(T+2)}, {sr(T+1)}, {sr(T+2)}
        v_lshlrev_b32 {vr(V_DMA)}, 4, v0
        s_mul_i32 {sr(T+1)}, {sr(T+2)}, {16*288}
        s_mul_i32 {sr(S_LB)}, {sr(S_W)}, {BLK}
        s_add_u32 m0, {sr(S_LB)}, {L_XS}
        s_mov_b32 {sr(S_X+2)}, 2304000
        s_mov_b32 {sr(S_X+3)}, {sr(S_W1+3)}
        s_add_u32 {sr(S_CNT)}, {sr(T+1)}, 4096
        s_waitcnt lgkmcnt(0)
        s_mov_b64 {sr(S_X,2)}, s[56:57]""")
        for k in range(4): a(f"buffer_load_dwordx4 {vr(V_DMA)}, {sr(S_X,4)}, {sr(T+1)} offen offset:{1024*k} lds")
        a(f"s_add_u32 m0, {sr(S_LB)}, {L_XS + 4096}\ns_mov_b32 exec_hi, 0\nbuffer_load_dwordx4 {vr(V_DMA)}, {sr(S_X,4)}, {sr(S_CNT)} offen lds\ns_mov_b32 exec_hi, -1")
        mx = len(a.lines)
        a(f"""s_add_u32 {sr(S_LB)}, {sr(S_LB)}, {L_XS}
        s_and_b32 {sr(S_H)}, s2, 1
        s_lshl1_add_u32 {sr(S_TOWN)}, {sr(S_QB)}, {sr(S_H)}
        s_cmp_lt_u32 {sr(S_TOWN)}, {NT}
        s_cselect_b32 {sr(S_VAL)}, 1, 0
        s_add_u32 {sr(S_TOWN)}, {sr(S_TOWN)}, {sr(T)}""")
        SQ, SK, SU = S_W2, S_W1, S_XA
        self.srd(SU, 66, 67, 82944)
        self.srd(SQ, 58, 59, 41472)
        self.srd(SK, 60, 61, 41472)
        a(f"s_lshr_b32 {sr(T)}, {sr(PH)}, 3\ns_lshl_b32 {sr(T)}, {sr(T)}, 12\ns_lshl_b32 {sr(W10)}, {sr(S_W)}, 10\ns_add_u32 {sr(T)}, {sr(T)}, {sr(W10)}")
        a(f"buffer_load_dwordx4 v[252:255], {vr(V_DMA)}, {sr(SU,4)}, {sr(T)} offen")
        for srd_, rot in ((SQ, 82), (SK, 41)):
            a(f"s_add_u32 {sr(T+1)}, {sr(T)}, {(128 - rot) * 1024}\ns_and_b32 {sr(T+1)}, {sr(T+1)}, {127 * 1024}")
            a(f"buffer_load_dwordx4 v[252:255], {vr(V_DMA)}, {sr(srd_,4)}, {sr(T+1)} offen")
        self.srd(S_OUT, 74, 75, 2304000)
        self.srd(S_DB, 76, 77, 256)
        if o.get("rot", 0):
            a(f"""s_lshl_b32 {sr(S_RO)}, s4, {24 - o.get('rsh', 14)}
            s_and_b32 {sr(S_RO)}, {sr(S_RO)}, 0x0f000000
            {f"s_xor_b32 {sr(S_RO)}, {sr(S_RO)}, {o['rbad']}" if o.get('rbad') else ""}
            s_add_u32 {sr(S_WS)}, s78, {sr(S_RO)}
            s_addc_u32 {sr(S_WS+1)}, s79, 0
            s_mov_b32 {sr(S_WS+2)}, {self.wsn()}
            s_mov_b32 {sr(S_WS+3)}, 0x20000""")
        else: self.srd(S_WS, 78, 79, WS_END)
        def tlb():
            a(f"v_lshlrev_b32 v249, 21, v0")
            for ch in o.get("tlbw", "wdo"): a(f"buffer_load_dword v252, v249, {sr(dict(w=S_WS, d=S_DB, o=S_OUT)[ch],4)}, 0 offen")
        if o.get("tlb", 0) == 1: tlb()
        if o.get("tlb", 3) == 3:
            a(f"""s_bfe_u32 {sr(T)}, {sr(PH)}, 0x30003
            s_lshl_b32 {sr(T)}, {sr(T)}, 21
            v_mov_b32 v249, 0
            s_cmp_lt_u32 {sr(T)}, {5 << 21}
            s_cbranch_scc0 L_tl1
            buffer_load_dword v252, v249, {sr(S_WS,4)}, {sr(T)} offen
            s_branch L_tl3
            L_tl1:
            s_sub_u32 {sr(T)}, {sr(T)}, {5 << 21}
            s_cmp_lt_u32 {sr(T)}, {2 << 21}
            s_cbranch_scc0 L_tl2
            buffer_load_dword v252, v249, {sr(S_OUT,4)}, {sr(T)} offen
            s_branch L_tl3
            L_tl2:
            s_or_b32 s4, s4, 1
            v_lshlrev_b32 v249, 8, v0
            v_mov_b32 v250, s4
            s_lshl2_add_u32 s5, {sr(PH)}, {sr(S_W)}
            s_cmp_eq_u32 s5, {56 * 4}
            s_cbranch_scc0 L_tl4
            buffer_store_dword v250, v249, {sr(S_DB,4)}, 0 offen sc1
            s_branch L_tl3
            L_tl4:
            buffer_load_dword v252, v249, {sr(S_DB,4)}, 0 offen offset:128
            L_tl3:""")
            self.vm_adj = -3
        if o.get("tst") and o["tst"][0] == "beg": self.tstore()
        if o.get("tl4"):
            a(f"""s_mul_i32 {sr(T)}, {sr(S_TOWN)}, {TILE}
            v_lshlrev_b32 v249, 12, v0
            v_add_u32 v249, {sr(T)}, v249
            s_mov_b64 exec, 7
            buffer_load_dword v252, v249, {sr(S_WS,4)}, 0 offen
            s_mov_b64 exec, -1""")
        if o.get("stamps"): a(f"s_mov_b64 {sr(S_ST,2)}, s[100:101]"); self.stnames.append("start"); self.nst = 1
        self.stamp("xiss")
        a(f"""s_cmp_lt_u32 {sr(T+3)}, {NT}
        s_cselect_b32 {sr(WV)}, 1, 0
        s_mov_b32 {sr(WV+1)}, {sr(T+2)}
        s_mul_i32 {sr(UOFF)}, {sr(S_H)}, 288
        s_cmp_eq_u32 {sr(S_W)}, 0
        s_cselect_b32 {sr(M1)}, 0, {L_DUMP}
        s_cmp_lt_u32 {sr(S_W)}, 3
        s_cselect_b32 {sr(M3)}, {sr(W10)}, {L_DUMP}""")
        half = lambda g_: "s_mov_b32 exec_hi, 0\n" + g_ + "\ns_mov_b32 exec_hi, -1"
        gu = [f"s_add_u32 m0, {sr(W10 if k < 10 else M1)}, {L_WU + 4096*k}\ns_add_u32 {sr(S_CNT)}, {sr(UOFF)}, {4096*k + 288*(256*k//18)}\nbuffer_load_dwordx4 {vr(VU[k])}, {sr(SU,4)}, {sr(S_CNT)} offen lds" for k in range(11)]
        gu[10] = half(gu[10])
        gq = [f"s_add_u32 m0, {sr(W10 if k < 10 else M1)}, {L_WQ + 4096*k}\ns_add_u32 {sr(S_CNT)}, {sr(W10)}, {4096*k}\nbuffer_load_dwordx4 {vr(V_DMA)}, {sr(SQ,4)}, {sr(S_CNT)} offen lds" for k in range(11)]
        gq[10] = half(gq[10])
        gk = [f"s_add_u32 m0, {sr(W10 if k < 10 else M3)}, {L_WK + 4096*k}\ns_mov_b32 {sr(S_CNT)}, {4096*k - 16*(256*k//19)}\nbuffer_load_dwordx4 {vr(VK[k])}, {sr(SK,4)}, {sr(S_CNT)} offen lds" for k in range(11)]
        a(f"s_lshl_b32 {sr(T)}, {sr(S_W)}, 6\nv_add_u32 {vr(t0)}, {sr(T)}, v0\nv_lshlrev_b32 {vr(t1)}, 4, {vr(t0)}")
        self.voff_table(VU, 18, 576, t0)
        npre = o.get("npre", 3)
        a.bg, a.every, a.cnt = gu[:npre], o.get("evpre", 40), 0
        self.voff_table(VK, 19, 288, t0)
        xa0, xa1, xa2 = TM, TM + 1, TM + 2
        a(f"""v_and_b32 {vr(t0)}, 15, v0
        v_lshrrev_b32 {vr(t1)}, 5, v0
        v_lshlrev_b32 {vr(t1)}, 3, {vr(t1)}
        v_xor_b32 {vr(t1)}, {vr(t0)}, {vr(t1)}
        v_lshlrev_b32 {vr(t1)}, 4, {vr(t1)}
        v_lshrrev_b32 {vr(t2)}, 4, v0
        v_lshl_add_u32 {vr(V_KA)}, {vr(t2)}, 9, {vr(t1)}
        v_lshrrev_b32 {vr(t1)}, 3, {vr(t0)}
        v_lshlrev_b32 {vr(t1)}, 1, {vr(t1)}
        v_xor_b32 {vr(t1)}, {vr(t2)}, {vr(t1)}
        v_lshl_add_u32 {vr(t1)}, {vr(t0)}, 2, {vr(t1)}
        v_lshlrev_b32 {vr(V_KA+1)}, 3, {vr(t1)}
        v_lshlrev_b32 {vr(L8)}, 3, v0
        v_lshlrev_b32 {vr(MXR)}, 4, {vr(t0)}
        v_add_u32 {vr(MXR)}, {L_MX}, {vr(MXR)}
        v_add_u32 {vr(MXA)}, {sr(S_W)}, {vr(t2)}
        v_and_b32 {vr(MXA)}, 3, {vr(MXA)}
        v_lshl_add_u32 {vr(MXA)}, {vr(MXA)}, 8, {vr(MXR)}
        s_lshl_b32 {sr(T)}, {sr(S_W)}, 2
        v_add_u32 {vr(MXA)}, {sr(T)}, {vr(MXA)}
        v_mul_u32_u24 {vr(xa2)}, 288, {vr(t0)}
        v_lshl_add_u32 {vr(xa2)}, {vr(t2)}, 3, {vr(xa2)}
        v_add_u32 {vr(xa2)}, {sr(S_LB)}, {vr(xa2)}
        v_and_b32 {vr(t1)}, 1, {vr(t2)}
        v_lshlrev_b32 {vr(t1)}, 5, {vr(t1)}
        v_add_u32 {vr(xa0)}, {vr(xa2)}, {vr(t1)}
        v_xor_b32 {vr(t1)}, 32, {vr(t1)}
        v_add_u32 {vr(xa1)}, {vr(xa2)}, {vr(t1)}
        s_mul_i32 {sr(S_LB)}, {sr(S_W)}, {TILE}
        v_lshrrev_b32 {vr(t0)}, 2, v0
        v_bfe_u32 {vr(t1)}, v0, 1, 1
        v_lshlrev_b32 {vr(t1)}, 3, {vr(t1)}
        v_xor_b32 {vr(t1)}, {vr(t0)}, {vr(t1)}
        v_lshlrev_b32 {vr(t1)}, 4, {vr(t1)}
        v_and_b32 {vr(t2)}, 3, v0
        v_lshl_add_u32 {vr(t1)}, {vr(t2)}, 9, {vr(t1)}
        v_and_b32 {vr(V_VA)}, 1, v0
        v_lshl_add_u32 {vr(t1)}, {vr(V_VA)}, 3, {vr(t1)}
        s_and_b32 {sr(T)}, {sr(S_W)}, 1
        s_lshl_b32 {sr(T)}, {sr(T)}, 12
        s_add_u32 {sr(T+1)}, {sr(T)}, {sr(S_LB)}
        s_xor_b32 {sr(T)}, {sr(T)}, 4096
        s_add_u32 {sr(T)}, {sr(T)}, {sr(S_LB)}
        v_add_u32 {vr(V_VA)}, {sr(T)}, {vr(t1)}
        v_add_u32 {vr(V_VB)}, {sr(T+1)}, {vr(t1)}
        v_xor_b32 {vr(V_VA+1)}, 8, {vr(V_VA)}
        v_xor_b32 {vr(V_VB+1)}, 8, {vr(V_VB)}
        v_lshrrev_b32 {vr(t1)}, 5, v0
        v_lshlrev_b32 {vr(t1)}, 1, {vr(t1)}
        v_xor_b32 {vr(t1)}, {vr(t2)}, {vr(t1)}
        v_lshl_add_u32 {vr(t1)}, {vr(t0)}, 2, {vr(t1)}
        v_lshlrev_b32 {vr(t1)}, 3, {vr(t1)}
        v_add_u32 {vr(V_VR)}, {sr(S_LB)}, {vr(t1)}
        v_add_u32 {vr(V_DMA+1)}, 4096, {vr(V_DMA)}
        v_add_u32 {vr(V_DMA+2)}, 8192, {vr(V_DMA)}""")
        self.tr_addr(TRU, L_WU, True, t0)
        a(f"s_lshl_b32 {sr(T)}, {sr(S_W)}, 6\ns_add_u32 {sr(T)}, {sr(T)}, {L_WQ - L_WU}")
        for k in range(3):
            a(f"v_add_u32 {vr(TRQ+k)}, {sr(T)}, {vr(TRU+k)}\nv_add_u32 {vr(TRQ8+k)}, {L_WQ - L_WU + 256}, {vr(TRU+k)}")
        self.row_addr(RK + 2, L_WK + 8 * 4864, t0)
        a(f"""s_mul_i32 {sr(T)}, {sr(S_W)}, {2*4864}
        s_sub_u32 {sr(T)}, {sr(T)}, {8*4864}
        v_add_u32 {vr(t1)}, {sr(T)}, {vr(RK+2)}
        v_bfe_u32 {vr(t0)}, v0, 2, 1
        v_mul_u32_u24 {vr(t0)}, 4864, {vr(t0)}
        v_add_u32 {vr(RK)}, {vr(t1)}, {vr(t0)}
        v_sub_u32 {vr(RK+1)}, {vr(t1)}, {vr(t0)}""")
        for j in range(4):
            a(f"""s_add_u32 {sr(T)}, {sr(S_W)}, {j}
            s_and_b32 {sr(T)}, {sr(T)}, 3
            s_lshl_b32 {sr(T+1)}, {sr(T)}, 12
            s_add_u32 {sr(T+1)}, {sr(T+1)}, {L_XX}
            v_add_u32 {vr(VS+j)}, {sr(T+1)}, {vr(V_DMA)}
            s_lshl_b32 {sr(T+1)}, {sr(T)}, 9
            s_add_u32 {sr(T+1)}, {sr(T+1)}, {L_XR}
            v_add_u32 {vr(VR4+j)}, {sr(T+1)}, {vr(L8)}
            v_add_u32 {vr(VSW+j)}, {sr(W10)}, {vr(VS+j)}""")
        a(f"""s_sub_u32 {sr(T+2)}, 63, {sr(S_H)}
        s_add_u32 {sr(T+3)}, {sr(S_W)}, 60
        s_cmp_ge_u32 {sr(T+3)}, {sr(T+2)}
        s_cselect_b32 {sr(S_DUM)}, 4, 99
        s_mov_b32 {sr(S_REDO)}, 0
        s_mov_b32 {sr(S_TOFF)}, {sr(S_LB)}
        s_lshl_b32 {sr(PUB)}, {sr(S_TOWN)}, 8
        s_add_u32 {sr(PUB)}, {sr(PUB)}, {WS_F}
        s_and_b32 {sr(T)}, {sr(S_W)}, 1
        s_lshl_b32 {sr(T)}, {sr(T)}, 7
        s_add_u32 {sr(PUB)}, {sr(PUB)}, {sr(T)}
        s_lshr_b32 {sr(T)}, {sr(S_W)}, 1
        s_and_b32 {sr(T)}, {sr(T)}, {sr(S_VAL)}
        s_cmp_eq_u32 {sr(T)}, 1
        s_cselect_b32 {sr(PUB)}, {sr(PUB)}, 0x40000000
        s_lshl_b32 {sr(S_FB)}, s2, 8
        s_add_u32 {sr(S_FB)}, {sr(S_FB)}, {WS_F + 250*256}
        s_mul_i32 {sr(T)}, {sr(S_H)}, 1792
        s_sub_u32 {sr(T)}, {sr(T)}, 768
        s_mul_i32 {sr(T+1)}, {sr(S_H)}, 62
        s_cmp_eq_u32 {sr(S_QB)}, {sr(T+1)}
        s_cselect_b32 {sr(T)}, 0, {sr(T)}
        v_mov_b32 {vr(self.VPL)}, 0x40000000
        s_xor_b32 {sr(T+1)}, {sr(S_FB)}, 256
        s_add_u32 {sr(T)}, {sr(T)}, {sr(S_FB)}
        v_writelane_b32 {vr(self.VPL)}, {sr(S_FB)}, 0
        v_writelane_b32 {vr(self.VPL)}, {sr(T+1)}, 1
        v_writelane_b32 {vr(self.VPL)}, {sr(T)}, 2
        s_mov_b32 {sr(T)}, {WS_F + 502*256}
        s_mov_b32 {sr(T+1)}, {WS_F + 503*256}
        v_writelane_b32 {vr(self.VPL)}, {sr(T)}, 3
        v_writelane_b32 {vr(self.VPL)}, {sr(T+1)}, 4
        s_sub_u32 {sr(S_FB)}, {sr(S_FB)}, {L_PC}""")
        if o.get("xm", 0):
            a(f"""s_getreg_b32 {sr(S_XC)}, hwreg(HW_REG_XCC_ID, 0, 4)
            s_xor_b32 {sr(T)}, s2, 1
            s_lshl_b32 {sr(T)}, {sr(T)}, 8
            s_add_u32 {sr(T)}, {sr(T)}, {WS_F + 250*256 + 4}
            v_writelane_b32 {vr(self.VPL)}, {sr(T)}, 5""")
        a.flush()
        if o.get("tlb", 0) == 2: tlb()
        self.stamp("pre")
        if o.get("es", 0) == 0: self.epi_setup()
        self.stamp("es")
        nx = self.vm_since(mx) + getattr(self, "vm_adj", 0)
        if o.get("touch", 1):
            a(f"""s_mov_b64 exec, 0
            s_cmp_eq_u32 {sr(S_W)}, 0
            s_cbranch_scc1 L_tr
            s_cmp_eq_u32 {sr(S_W)}, 1
            s_cbranch_scc1 L_t0
            s_cmp_eq_u32 {sr(S_W)}, 2
            s_cbranch_scc1 L_t1
            s_branch L_t2""")
            self.rare()
            a.raw(".p2align 12")
            a.label("L_tr")
            a("s_mov_b64 exec, -1")
        nlate = o.get("nlate", 0)
        for g_ in gu[npre:npre + nlate]: a(g_)
        a(f"s_waitcnt vmcnt({nx + nlate})")
        self.stamp("xarr")
        for s in range(4):
            a(f"ds_read_b64 {vr(XR+4*s,2)}, {vr(xa0)} offset:{64*s}\nds_read_b64 {vr(XR+4*s+2,2)}, {vr(xa1)} offset:{64*s}")
        a(f"ds_read_b64 {vr(XR+16,2)}, {vr(xa2)} offset:256")
        a(f"""s_and_b32 {sr(T)}, {sr(S_W)}, 1
        s_mul_i32 {sr(T+2)}, {sr(S_TOWN)}, {TILE}
        s_cmp_eq_u32 {sr(S_VAL)}, 1
        s_cselect_b32 {sr(T+2)}, {sr(T+2)}, 0x40000000
        s_lshl_b32 {sr(T+3)}, {sr(T)}, 8
        s_add_u32 {sr(T+3)}, {sr(T+3)}, {sr(T+2)}
        s_add_u32 {sr(T+4)}, {sr(T+3)}, 4096
        s_lshl_b32 {sr(T+5)}, {sr(T)}, 9
        s_add_u32 {sr(T+5)}, {sr(T+5)}, {sr(T+2)}
        s_add_u32 {sr(T+5)}, {sr(T+5)}, 8192
        s_waitcnt lgkmcnt(0)""")
        wl = gq + gk
        a.bg, a.every, a.cnt = gu[npre + nlate:] + [wl.pop(0) for _ in range(o.get("nql", 11))], o.get("evln", 5), 0
        self.ln_packed(XR, XF, XA, TM)
        a.flush()
        self.stamp("ln")
        if o.get("tst") and o["tst"][0].startswith("pub"): self.tstore()
        a(f"s_cmp_lt_u32 {sr(S_W)}, 2\ns_cbranch_scc1 L_nop")
        w16 = o.get("w16", 0)
        pair = lambda d, src: [f"v_mov_b32 {vr(d)}, {vr(src)}\nv_mov_b32 {vr(d+1)}, {vr(src+1)}", f"v_mov_b32 {vr(d+2)}, {vr(src)}\nv_mov_b32 {vr(d+3)}, {vr(src+1)}", "",
                               f"v_permlane16_swap_b32 {vr(d)}, {vr(d+2)}\nv_permlane16_swap_b32 {vr(d+1)}, {vr(d+3)}"]
        pr = pair(XR, XA + 16)
        for s in range(4):
            a(f"buffer_store_dwordx4 {vr(XA+4*s,4)}, {vr(V_KA)}, {sr(S_WS,4)}, {sr(T+3+(s>>1))} offen offset:{2048*(s&1)} {o.get('pfl', 'sc1')}")
            if w16 & 1: a(pr[s])
        if w16 & 1:
            a(f"s_mov_b32 exec_lo, 0xffff\ns_mov_b32 exec_hi, 0xffff\nbuffer_store_dwordx4 {vr(XR,4)}, {vr(V_KA+1)}, {sr(S_WS,4)}, {sr(T+5)} offen {o.get('pfl', 'sc1')}\ns_mov_b64 exec, -1")
        else: a(f"buffer_store_dwordx2 {vr(XA+16,2)}, {vr(V_KA+1)}, {sr(S_WS,4)}, {sr(T+5)} offen {o.get('pfl', 'sc1')}")
        a(f"s_waitcnt vmcnt({5 + o.get('nql', 11)})\ns_branch L_bar1")
        a.label("L_nop")
        if o.get("touch", 1):
            a(f"s_mov_b64 exec, 0\ns_cmp_eq_u32 {sr(S_W)}, 0\ns_cbranch_scc1 L_t3\ns_branch L_t4")
            a.label("L_tr2")
            a("s_mov_b64 exec, -1")
        a(f"s_waitcnt vmcnt({o.get('nql', 11)})")
        a.label("L_bar1")
        self.stamp("pub")
        xw = [f"ds_write_b128 {vr(VS)}, {vr(XA+4*s,4)} offset:{1024*s}" for s in range(4)] + [f"ds_write_b64 {vr(VR4)}, {vr(XA+16,2)}"]
        self.stamp("tch")
        PA = 249
        a(f"""v_add_u32 {vr(V_KA)}, {sr(S_LB)}, {vr(V_KA)}
        v_add_u32 {vr(V_KA+1)}, {sr(S_LB)}, {vr(V_KA+1)}
        s_mul_i32 {sr(T)}, {sr(S_B)}, {NT}
        s_mul_i32 {sr(T+1)}, {sr(S_H)}, 63
        s_add_u32 {sr(T)}, {sr(T)}, {sr(T+1)}
        s_lshl_b32 {sr(T)}, {sr(T)}, 8
        s_add_u32 {sr(T)}, {sr(T)}, {WS_F}
        s_cmp_eq_u32 {sr(S_W)}, 0
        {"" if o.get("gatepos", 0) else f"s_cselect_b32 {sr(T)}, {sr(T)}, 0x40000000"}
        v_lshl_add_u32 {vr(PA)}, v0, 8, {sr(T)}
        {"" if o.get("rot", 0) else self.xa_srd()}
        s_waitcnt lgkmcnt(0)""")
        self.stamp("w1")
        a("s_barrier")
        self.stamp("bar1")
        m_b1 = len(a.lines)
        poll = lambda r: f"buffer_load_dword {vr(r)}, {vr(PA)}, {sr(S_WS,4)}, 0 offen sc1\nbuffer_load_dword {vr(r+2)}, {vr(PA)}, {sr(S_WS,4)}, 0 offen offset:128 sc1"

        def gate(lab, r, mask, younger):
            a(f"s_mov_b32 {sr(T+2)}, 0\ns_waitcnt vmcnt({younger})")
            a.label(lab)
            a(f"""v_cmp_ne_u32 vcc, {sr(S_N)}, {vr(r)}
            v_cmp_ne_u32 {sr(T+10,2)}, {sr(S_N)}, {vr(r+2)}
            s_add_u32 {sr(T+2)}, {sr(T+2)}, 1
            s_or_b64 vcc, vcc, {sr(T+10,2)}
            s_and_b64 vcc, vcc, {mask}
            s_cbranch_scc0 {lab}_ok
            s_sleep {o.get("slp", 4)}
            {poll(r)}
            s_waitcnt vmcnt(0)
            s_cmp_lt_u32 {sr(T+2)}, 0x40000
            s_cbranch_scc1 {lab}""")
            a.label(lab + "_ok")

        H, G_, UG, MS, CL = 16, 52, 208, 110, 104
        nup = o.get("nup", 5)
        at = {o.get("u0", 6) + o.get("usp", 6) * i: wl.pop(0) for i in range(nup)}
        for i in range(5): at[i] = xw[i]
        tagld = f"buffer_load_dword v253, off, {sr(S_DB,4)}, 0 sc1"
        tag1 = tagld.replace("sc1", o.get("tgf", "sc1")).strip()
        at[o.get("tgp", 5)] = tag1
        if o.get("es", 0) == 1:
            n_ = len(a.lines); self.epi_setup()
            el = [l.strip() for l in a.lines[n_:]]; del a.lines[n_:]
            for k in range(5, 42):
                if k in at: continue
                c_ = 0
                while el and c_ < o.get("esn", 2):
                    x = el.pop(0); at[k] = at.get(k, "") + x + "\n"; c_ += 1 if x.startswith("v_") else 0.5
            self.es_left = el
        self.gemm(self.tr_reads(TRU), XA, H, None, at=at)
        if o.get("es", 0) == 1:
            for x in self.es_left: a(x)
        self.stamp("up")
        p = lambda r: vr(r, 2)
        CC = TM
        c1 = -2.0 * math.sqrt(2.0 / math.pi) * LOG2E
        c2 = c1 * 0.044715
        gst = [[f"v_pk_mul_f32 {p(G_+2*i)}, {p(H+2*i)}, {p(H+2*i)}" for i in range(18)] +
               [f"v_pk_fma_f32 {p(G_+2*i)}, {p(G_+2*i)}, {p(CC+2)}, {p(CC)} op_sel_hi:[1,0,0]" for i in range(18)] +
               [f"v_pk_mul_f32 {p(G_+2*i)}, {p(G_+2*i)}, {p(H+2*i)}" for i in range(18)],
               [f"v_exp_f32 {vr(G_+i)}, {vr(G_+i)}" for i in range(36)],
               [f"v_pk_add_f32 {p(G_+2*i)}, {p(G_+2*i)}, {p(CC+4)} op_sel_hi:[1,0]" for i in range(18)],
               [f"v_rcp_f32 {vr(G_+i)}, {vr(G_+i)}" for i in range(36)],
               [f"v_pk_mul_f32 {p(H+2*i)}, {p(G_+2*i)}, {p(H+2*i)}" for i in range(18)]]
        gs = o.get("gs", 0)
        if gs:
            a(f"v_mov_b32 {vr(CC)}, {f32(c1)}\nv_mov_b32 {vr(CC+2)}, {f32(c2)}\nv_mov_b32 {vr(CC+4)}, 1.0")
            pre = [x for st_ in gst[:gs] for x in st_]
            ngw = o.get("ngw", 0)
            for i, x in enumerate(pre):
                a(x)
                if ngw and i % o.get("gwsp", 8) == 2 and wl: a(wl.pop(0)); ngw -= 1
            self.stamp("gea")
        last = lambda srd: max(i for i, l in enumerate(a.lines) if l.strip().startswith("buffer_load") and sr(srd, 4) in l) + 1
        assert not any(sr(SQ, 4) in x for x in wl)
        nq_ = self.vm_since(m_b1) + (5 if last(SQ) < m_b1 else 0) if last(SQ) < m_b1 else self.vm_since(last(SQ))
        a(f"s_waitcnt vmcnt({self.vm_since(m_b1) if last(SQ) < m_b1 else nq_}) lgkmcnt(0)" if False else "")
        if last(SQ) < m_b1:
            a(f"s_cmp_lt_u32 {sr(S_W)}, 2\ns_cbranch_scc1 L_bg0\ns_waitcnt vmcnt({5 + self.vm_since(m_b1)})\ns_branch L_bg1\nL_bg0:\ns_waitcnt vmcnt({self.vm_since(m_b1)})\nL_bg1:\ns_waitcnt lgkmcnt(0)\ns_barrier")
        else: a(f"s_waitcnt vmcnt({self.vm_since(last(SQ))}) lgkmcnt(0)\ns_barrier")

        def flag():
            n_ = self.vm_since(max(i for i, l in enumerate(a.lines) if l.strip() == tag1) + 1)
            if w16 & 2: a(self.a8() + f"\ns_mov_b32 {sr(T+5)}, 0\ns_waitcnt vmcnt({n_})")
            else: a(f"v_lshrrev_b32 {vr(t0)}, 5, v0\nv_lshlrev_b32 {vr(t0)}, 30, {vr(t0)}\nv_lshl_add_u32 {vr(t0)}, v0, 2, {vr(t0)}\ns_mov_b32 {sr(T+5)}, 0\ns_waitcnt vmcnt({n_})")
            a.label("L_tag")
            a(f"""v_readfirstlane_b32 {sr(S_N)}, v253
            s_add_u32 {sr(T+5)}, {sr(T+5)}, 1
            s_cmp_lg_u32 {sr(S_N)}, 0
            s_cbranch_scc1 L_tag_ok
            {tagld}
            s_waitcnt vmcnt(0)
            s_cmp_lt_u32 {sr(T+5)}, 0x40000
            s_cbranch_scc1 L_tag""")
            a.label("L_tag_ok")
            if o.get("rot", 0):
                a(f"""s_lshl_b32 {sr(T+5)}, {sr(S_N)}, {24 - o.get('rsh', 14)}
                s_and_b32 {sr(T+5)}, {sr(T+5)}, 0x0f000000
                s_cmp_lg_u32 {sr(T+5)}, {sr(S_RO)}
                s_cbranch_scc1 L_moved""")
                a.label("L_movedb")

                def moved():
                    a.label("L_moved")
                    a(f"""s_sub_u32 {sr(T+5)}, {sr(T+5)}, {sr(S_RO)}
                    s_ashr_i32 {sr(T+6)}, {sr(T+5)}, 31
                    s_add_u32 {sr(S_WS)}, {sr(S_WS)}, {sr(T+5)}
                    s_addc_u32 {sr(S_WS+1)}, {sr(S_WS+1)}, {sr(T+6)}
                    s_lshr_b32 {sr(T+5)}, {sr(S_W)}, 1
                    s_and_b32 {sr(T+5)}, {sr(T+5)}, {sr(S_VAL)}
                    s_cbranch_scc0 L_movedb
                    s_mul_i32 {sr(T+5)}, {sr(S_TOWN)}, {TILE}
                    s_and_b32 {sr(T+6)}, {sr(S_W)}, 1
                    s_lshl_b32 {sr(T+7)}, {sr(T+6)}, 9
                    s_add_u32 {sr(T+7)}, {sr(T+7)}, {sr(T+5)}
                    s_add_u32 {sr(T+7)}, {sr(T+7)}, 8192
                    s_lshl_b32 {sr(T+6)}, {sr(T+6)}, 8
                    s_add_u32 {sr(T+5)}, {sr(T+5)}, {sr(T+6)}
                    s_add_u32 {sr(T+6)}, {sr(T+5)}, 4096
                    v_subrev_u32 {vr(t0)}, {sr(S_LB)}, {vr(V_KA)}
                    v_subrev_u32 {vr(t1)}, {sr(S_LB)}, {vr(V_KA+1)}""")
                    for s_ in range(4): a(f"buffer_store_dwordx4 {vr(XA+4*s_,4)}, {vr(t0)}, {sr(S_WS,4)}, {sr(T+5+(s_>>1))} offen offset:{2048*(s_&1)} sc1")
                    a(f"buffer_store_dwordx2 {vr(XA+16,2)}, {vr(t1)}, {sr(S_WS,4)}, {sr(T+7)} offen sc1\ns_waitcnt vmcnt(0)\ns_branch L_movedb")
                self.moved = moved
                assert w16 & 2
            if w16 & 2:
                for i in range(4): a(f"v_mov_b32 {vr(CL+i)}, {sr(S_N)}")
                a(f"buffer_store_dwordx4 {vr(CL,4)}, v255, {sr(S_WS,4)}, {sr(PUB)} offen sc1")
            else: a(f"v_mov_b32 {vr(t1)}, {sr(S_N)}\nbuffer_store_dword {vr(t1)}, {vr(t0)}, {sr(S_WS,4)}, {sr(PUB)} offen sc1")
            self.m_fl = len(a.lines)
            if o.get("rot", 0): a(self.xa_srd(T + 5))
            self.stamp("flag")
        self.stamp("barG")
        if o.get("atw"):
            a("s_waitcnt vmcnt(1)")
            self.stamp("ack1")
            a("s_waitcnt vmcnt(0)")
            self.stamp("ack")
        if o.get("census"):
            k_ = S_ST + 2 * self.stnames.index(o["census"][0])
            a(f"s_waitcnt lgkmcnt(0)\nv_mov_b32 v252, {sr(k_)}\ns_lshl_b32 {sr(T)}, s2, 2\ns_add_u32 {sr(T)}, {sr(T)}, {WS_DBG}\nv_mov_b32 v253, 0\nbuffer_store_dword v252, v253, {sr(S_WS,4)}, {sr(T)} offen sc1")

        def a_tr(t):
            ad, off = (TRQ, 32 * t) if t < 2 else (TRQ8, 0)
            return [f"ds_read_b64_tr_b16 {ar(AQ1+18*t+4*s+2*u,2)}, {vr(ad+u)} offset:{9216*s + off}" for s in range(4) for u in range(2)] + \
                   [f"ds_read_b64_tr_b16 {ar(AQ1+18*t+16,2)}, {vr(ad+2)} offset:{36864 + off}"]

        def a_row(t):
            off = 4864 * t if t < 2 else 0
            return [f"ds_read_b64 {ar(A_Q+18*t+4*s+2*u,2)}, {vr(RK+t)} offset:{off + 64*s + 32*u}" for s in range(4) for u in range(2)] + \
                   [f"ds_read_b64 {ar(A_Q+18*t+16,2)}, {vr(RK+t)} offset:{off + 256}"]
        bq = lambda j, d=0: [f"ds_read_b128 {ar(18*j+4*s,4)}, {vr(VS+j)} offset:{d + 1024*s}" for s in range(4)] + [f"ds_read_b64 {ar(18*j+16,2)}, {vr(VR4+j)} offset:{d}"]

        def post(u, scale, d):
            L = [f"v_mul_f32 {vr(ACC+4*u+i)}, {sr(T+4)}, {vr(ACC+4*u+i)}" for i in range(4)] if scale else []
            L += [f"v_cvt_pk_bf16_f32 {vr(PK + (4*(u&3) + 2*(u>>2) if u < 8 else 16) + h)}, {vr(ACC+4*u+2*h)}, {vr(ACC+4*u+2*h+1)}" for h in range(2)]
            if 4 <= u < 8: L.append(f"ds_write_b128 {vr(VSW+u-4)}, {vr(PK+4*(u-4),4)} offset:{d}")
            if u == 8: L.append(f"ds_write_b64 {vr(VR4)}, {vr(PK+16,2)} offset:{d}")
            return L
        fl2 = o.get("fl2", 1)
        self.m_fl = 0
        xd = [f"ds_read_b128 {vr(XD+4*j,4)}, {vr(VSW+j)}" for j in range(4)]
        self.gemm_u(AQ1, ar, [("v", XA), ("a", 18), ("a", 36), ("a", 54)], ACC, a_tr, lambda j: bq(j) if j else None, lambda u: post(u, False, L_QD),
                    vm_items=wl, other=xd, vmsp=o.get("vmsp", 3), at={o.get("flp", 22): flag} if fl2 < 0 else {})
        self.stamp("g1")
        for i in range(4): a(f"v_mov_b32 {vr(CL+i)}, -1")
        a(f"s_lshl2_add_u32 {sr(T+2)}, s2, {sr(S_W)}\ns_mul_i32 {sr(T+2)}, {sr(T+2)}, 2560\ns_add_u32 {sr(T+2)}, {sr(T+2)}, {WS_IB}")
        a(f"s_mov_b32 {sr(T+4)}, {f32(LOG2E / 12.0)}\ns_waitcnt vmcnt({self.vm_since(max(last(SK), self.m_fl)) + (last(SK) < self.m_fl)}) lgkmcnt(0)\ns_barrier")
        T2 = T + 2
        clr = [f"buffer_store_dwordx4 {vr(CL,4)}, {vr(V_DMA)}, {sr(S_WS,4)}, {sr(T+2)} offen sc1",
               f"buffer_store_dwordx4 {vr(CL,4)}, {vr(V_DMA)}, {sr(S_WS,4)}, {sr(T+2)} offen offset:1024 sc1",
               f"buffer_store_dwordx2 {vr(CL,2)}, {vr(L8)}, {sr(S_WS,4)}, {sr(T+2)} offen offset:2048 sc1"]
        self.stamp("bar2")
        gp_ = o.get("gatepos", 0)
        cl1 = not o.get("cll", 1)
        self.gemm_u(A_Q, ar, [("a", 18 * j) for j in range(4)], ACC, a_row, lambda j: bq(j, L_QD), lambda u: post(u, True, 0), vm_items=((clr if cl1 else []) + [poll(252)] if gp_ == 0 else clr if cl1 else []), vm0=o.get("pg", 6), vmsp=o.get("csp", 3),
                    lastk=o.get("plk", 26) if gp_ == 0 else 0, at={fl2: flag} if fl2 >= 0 else {})
        self.stamp("g2")
        p = lambda r: vr(r, 2)
        CC = TM
        for j in range(4): a(f"v_dot2_f32_bf16 {vr(CC+j)}, {vr(PK+4*j)}, {vr(XD+4*j)}, 0")
        for i in range(2): a(f"v_dot2_f32_bf16 {vr(CC)}, {vr(PK+16+i)}, {vr(XA+16+i)}, {vr(CC)}")
        for i in range(1, 4):
            for j in range(4): a(f"v_dot2_f32_bf16 {vr(CC+j)}, {vr(PK+4*j+i)}, {vr(XD+4*j+i)}, {vr(CC+j)}")
        QE = VS if gs else TRQ
        a(f"""s_xor_b32 {sr(T+1)}, {sr(self.NB)}, 1
        v_add_u32 {vr(t0)}, {L_XX}, {vr(V_DMA)}
        v_lshl_add_u32 {vr(QE)}, {sr(T+1)}, 12, {vr(t0)}
        v_lshl_add_u32 {vr(QE+1)}, {sr(self.NB)}, 12, {vr(t0)}""")
        self.treduce(CC)
        a(f"""ds_write_b32 {vr(MXA)}, {vr(CC)}
        v_add_u32 {vr(t0)}, {L_XR}, {vr(L8)}
        v_lshl_add_u32 {vr(QE+2)}, {sr(T+1)}, 9, {vr(t0)}
        v_lshl_add_u32 {vr(QE+3)}, {sr(self.NB)}, 9, {vr(t0)}
        v_lshl_add_u32 {vr(QE+4)}, {sr(T+1)}, 8, {vr(MXR)}
        v_lshl_add_u32 {vr(QE+5)}, {sr(self.NB)}, 8, {vr(MXR)}
        s_sub_u32 {sr(T+5)}, 63, {sr(S_H)}
        s_bfm_b64 {sr(T+8,2)}, {sr(T+5)}, 0
""")
        if gp_ == 0:
            a(f"s_cmp_lg_u32 {sr(S_W)}, 0\ns_cbranch_scc1 L_ga_ok")
            gate("L_ga", 252, sr(T + 8, 2), 0)
        else: a(poll(252))
        a("s_waitcnt lgkmcnt(0)\ns_barrier")
        self.stamp("bar3")
        qrd = [f"ds_read_b128 {vr(MS+4*qb,4)}, {vr(QE+4+(qb&1))} offset:{512*(qb>>1)}" for qb in range(4)]
        for qb in range(4):
            qrd += [f"ds_read_b128 {ar(A_Q+18*qb+4*s,4)}, {vr(QE+(qb&1))} offset:{8192*(qb>>1) + 1024*s}" for s in range(4)]
            qrd.append(f"ds_read_b64 {ar(A_Q+18*qb+16,2)}, {vr(QE+2+(qb&1))} offset:{1024*(qb>>1)}")
        if gs:
            tg = self.tile_groups(0) + self.tile_groups(1)
            n0 = o.get("n0", 3)
            for x in tg[:n0]: a(x)
            tg = tg[n0:]
            if gs < 3: a(f"v_mov_b32 {vr(CC+4)}, 1.0")
            mem = []
            qpd = o.get("qpd", 2)
            while tg or qrd:
                it = []
                if tg: it.append(tg.pop(0))
                it += [qrd.pop(0) for _ in range(min(qpd, len(qrd)))]
                mem.append("\n".join(it))
            com = [x for st_ in gst[gs:] for x in st_]
            ev = o.get("gev", 3)
            for i, x in enumerate(com):
                a(x)
                if i % ev == ev - 1 and mem: a(mem.pop(0))
            a(f"""s_mul_i32 {sr(T)}, {sr(WV+1)}, {BLK}
            s_cmp_eq_u32 {sr(S_H)}, 1
            s_cbranch_scc1 L_ln2
            s_add_u32 {sr(T)}, {sr(T)}, {WS_U}""")
            m0_ = list(mem)
            for i in range(18):
                a(f"v_cvt_pk_bf16_f32 {vr(UG+i)}, {vr(H+2*i)}, {vr(H+2*i+1)}")
                if i % o.get("gev0", 2) == 1 and m0_: a(m0_.pop(0))
            for x in m0_: a(x)
            a("s_branch L_ug")
            a.label("L_ln2")
            a(f"s_add_u32 {sr(T)}, {sr(T)}, {WS_G}")
            a.bg, a.every, a.cnt = list(mem), o.get("gev1", 6), 0
            self.ln_f32(H, UG, TM)
            a.flush()
            a.label("L_ug")
            m_t0 = m_t1 = None
        else:
            tg = self.tile_groups(0) + self.tile_groups(1) + self.tile_groups(2)[:8]
            n0 = o.get("n0", 3) if gp_ == 0 else 0
            for x in tg[:n0]: a(x)
            a(f"v_mov_b32 {vr(CC)}, {f32(c1)}\nv_mov_b32 {vr(CC+2)}, {f32(c2)}\nv_mov_b32 {vr(CC+4)}, 1.0")
            nq1, nt1 = (o.get("nq1", 8), o.get("nt1", 5)) if gp_ == 0 else (o.get("nq1", 16), 0)
            bgl = []
            for i in range(max(nq1 // 2, nt1)):
                if 2 * i < nq1: bgl.append(qrd[2 * i] + "\n" + qrd[2 * i + 1])
                if i < nt1: bgl.append(tg[n0 + i])
            tg, qrd = tg[n0 + nt1:], qrd[nq1:]
            a.bg, a.every, a.cnt = bgl, 54 // (len(bgl) + 1), 0
            for x in gst[0]: a(x)
            a.flush()
            if gp_:
                self.stamp("ge0")
                gate("L_ga", 252, sr(T + 8, 2), 0)
                for x in tg[:2]: a(x)
                tg = tg[2:]
            self.stamp("ge1")
            esp = o.get("esp", 3 if gp_ else 4)
            for i in range(36):
                a(gst[1][i])
                if i % esp == 1 and tg: a(tg.pop(0))
                if i % 8 == 3 and qrd: a(qrd.pop(0)); a(qrd.pop(0))
            self.stamp("ge2")
            for x in gst[2]: a(x)
            for i in range(36):
                a(gst[3][i])
                if i % esp == 1 and tg: a(tg.pop(0))
                if i % 8 == 3 and qrd: a(qrd.pop(0)); a(qrd.pop(0))
            assert not tg and not qrd
            idx = [i for i, l in enumerate(a.lines) if l.strip().startswith("buffer_load") and l.rstrip().endswith("lds")]
            m_t0, m_t1 = idx[-18] + 1, idx[-9] + 1
            for x in gst[4]: a(x)
            a(f"""s_mul_i32 {sr(T)}, {sr(WV+1)}, {BLK}
            s_cmp_eq_u32 {sr(S_H)}, 1
            s_cbranch_scc1 L_ln2
            s_add_u32 {sr(T)}, {sr(T)}, {WS_U}""")
            for i in range(18): a(f"v_cvt_pk_bf16_f32 {vr(UG+i)}, {vr(H+2*i)}, {vr(H+2*i+1)}")
            a("s_branch L_ug")
            a.label("L_ln2")
            a(f"s_add_u32 {sr(T)}, {sr(T)}, {WS_G}")
            self.ln_f32(H, UG, TM)
            a.label("L_ug")
        self.stamp("ge3")
        a(f"""s_cmp_eq_u32 {sr(WV)}, 1
        s_cselect_b32 {sr(S_UG)}, {sr(T)}, 0x40000000
        s_waitcnt lgkmcnt(0)""")
        kz = [f"s_waitcnt vmcnt({9 if gs else self.vm_since(m_t0)})"] + self.k_reads(0, V_V)
        if not gs:
            for x in kz: a(x)
        self.ugs = [f"buffer_store_dwordx4 {vr(UG+4*s,4)}, {vr(V_DMA)}, {sr(S_WS,4)}, {sr(S_UG)} offen offset:{1024*s} sc1" for s in range(4)]
        self.ugs.append(f"buffer_store_dwordx2 {vr(UG+16,2)}, {vr(self.VL8)}, {sr(S_WS,4)}, {sr(S_UG)} offen sc1")
        for qb in range(4): a(f"v_pk_add_f32 {p(MS+4*qb)}, {p(MS+4*qb)}, {p(MS+4*qb+2)} neg_lo:[1,1] neg_hi:[1,1]")
        for qb in range(4): a(f"v_add_f32 {vr(self.MK+qb)}, {vr(MS+4*qb)}, {vr(MS+4*qb+1)}")
        a(f"v_lshlrev_b32 {vr(t1)}, 8, v0\nv_lshlrev_b32 v231, 2, v0\nv_add_u32 v231, {L_PC}, v231\nds_write_b32 v231, {vr(t1)}")
        self.loop_init(False)
        if gs:
            self.loop_init(True)
            self.stamp("ug0")
            for x in kz: a(x)
        else: self.n_t1 = self.vm_since(m_t1)
        self.stamp("ug")

    def a8(self):
        return f"v_lshrrev_b32 v255, 3, v0\nv_min_u32 v255, 1, v255\nv_lshlrev_b32 v255, 30, v255\nv_add_u32 v255, v255, {vr(V_DMA)}"

    def loop_init(self, part):
        a = self.a
        if part:
            for qb in range(4):
                for i in range(4): a(f"v_mov_b32 {vr(V_CI+4*qb+i)}, {vr(self.MK+qb)}")
            return
        for k in range(7): a(f"v_add_u32 {vr(V_HI+k)}, {2*SLOT}, {vr(V_KA+k if k < 5 else V_VB+k-5)}")
        a(f"v_add_u32 {vr(self.VS0)}, {sr(S_LB)}, {vr(V_DMA)}\nv_add_u32 {vr(self.VS0R)}, {sr(S_LB)}, {vr(self.VL8)}\ns_mov_b32 {sr(S_CNT)}, 0\ns_mov_b32 {sr(S_INC)}, {4*TILE}")
        for i in range(4): a(f"v_mov_b32 {vr(V_L+i)}, 0")
        for i in range(4): a(f"v_mov_b32 {vr(226+i)}, -1")
        if self.o.get("oib", 0):
            T = S_T
            a(f"""s_mul_i32 {sr(S_CL)}, {sr(S_TOWN)}, {TILE}
            s_mul_i32 {sr(T)}, {sr(self.NB)}, {BLK}
            s_lshl_b32 {sr(T+1)}, {sr(self.PT)}, 11
            s_add_u32 {sr(T)}, {sr(T)}, {sr(T+1)}
            s_add_u32 {sr(S_CL)}, {sr(S_CL)}, {sr(T)}
            s_xor_b32 {sr(T+1)}, {sr(S_H)}, 1
            s_sub_u32 {sr(T+1)}, {sr(T+1)}, {sr(S_H)}
            s_mul_i32 {sr(T+1)}, {sr(T+1)}, {TILE}
            s_add_u32 {sr(S_OS)}, {sr(S_CL)}, {sr(T+1)}
            s_cmp_ge_u32 s2, 248
            s_cselect_b32 {sr(T)}, 2.0, 0
            s_mul_i32 {sr(T+1)}, {sr(T)}, {sr(S_H)}
            s_sub_u32 {sr(T)}, {sr(T)}, {sr(T+1)}
            s_add_u32 {sr(S_OS)}, {sr(S_OS)}, {sr(T)}
            s_add_u32 {sr(S_OR)}, {sr(S_CL)}, {sr(T+1)}
            s_lshl_b32 {sr(T)}, {sr(S_REDO)}, 30
            s_or_b32 {sr(S_CL)}, {sr(S_OR)}, {sr(T)}
            s_lshl1_add_u32 {sr(S_CL+1)}, s2, {sr(self.NB)}
            s_mul_i32 {sr(S_CL+1)}, {sr(S_CL+1)}, 5120
            s_add_u32 {sr(S_CL+1)}, {sr(S_CL+1)}, {sr(T)}
            s_lshl_b32 {sr(T)}, {sr(self.PT)}, 9
            s_add_u32 {sr(T)}, {sr(T)}, {WS_IB}
            s_add_u32 {sr(S_CL+1)}, {sr(S_CL+1)}, {sr(T)}""")
        else:
            a(f"""s_lshl2_add_u32 {sr(S_CL)}, s2, {sr(S_W)}
            s_mul_i32 {sr(S_CL)}, {sr(S_CL)}, 2560
            s_lshl_b32 {sr(S_CL+1)}, {sr(S_REDO)}, 30
            s_add_u32 {sr(S_CL)}, {sr(S_CL)}, {sr(S_CL+1)}
            s_add_u32 {sr(S_CL)}, {sr(S_CL)}, {WS_IB}
            s_sub_u32 {sr(S_CL+1)}, {sr(S_CL)}, 2048""")
        a(f"v_mov_b32 v207, {sr(S_N)}\nv_mov_b32 {vr(self.VPL+1)}, 1\nv_lshlrev_b32 v231, 2, v0\nv_add_u32 v231, {L_PC}, v231")
        if self.o.get("xm", 0): a(f"s_add_u32 {sr(S_T)}, {sr(S_N)}, {sr(S_XC)}\nv_writelane_b32 v207, {sr(S_T)}, 1")

    def head(self):
        a, o = self.a, self.o
        gs = o.get("gs", 0)
        a.label("L_go")
        if not gs: self.loop_init(True)
        a("s_waitcnt lgkmcnt(0)\ns_barrier")
        self.stamp("bar5")
        base = self.qk_mfmas(0)
        pick = lambda s_, kb, qb: base[8 * s_ + 4 * kb + qb].replace(vr(V_K + 8 * s_ + 4 * kb, 4) + ",", vr(V_V + 8 * s_ + 4 * kb, 4) + ",").replace(vr(V_K + 32 + 2 * kb, 2) + ",", vr(V_V + 32 + 2 * kb, 2) + ",")
        mf, fin = [], {}
        for qb, s_ in [(0, 0), (0, 1), (0, 2), (0, 3), (1, 0), (1, 1), (0, 4), (1, 2), (1, 3), (2, 0), (2, 1), (1, 4), (2, 2), (2, 3), (3, 0), (3, 1), (2, 4),
                       (3, 2), (3, 3), (3, 4)]:
            for kb in range(2):
                fin[qb, kb] = len(mf)
                mf.append(("s_nop 3\n" if (qb, s_, kb) == (3, 4, 0) else "") + pick(s_, kb, qb))
        enew = [e[1] for g in range(40, 76) for e in self.gaps[g] if e[0] == "E"]
        items = self.e_items(0, enew, lambda qb, j: 0, lambda qb: 999)
        for it, e in zip(items, enew):
            if e[0] == "e": it["am"] = fin[e[1], e[2] // 4]
        dm = []
        for k, (slot, j) in enumerate([(2, j) for j in range(9)] if gs else [(2, 8)] + [(3, j) for j in range(9)]):
            g_ = 1 + o.get("hsp", 4) * k
            if j % 4 == 0: dm.append(dict(t=f"s_add_u32 m0, {sr(S_LB)}, {slot*SLOT + 4096*(j//4)}", c=0, lo=g_ - 1, hi=g_ - 1))
            dm.append(dict(t=f"buffer_load_dwordx4 {vr(V_DMA + j//4)}, {sr(S_XA,4)}, {sr(S_TOFF)} offen offset:{1024*(j%4)} lds", c=8, lo=g_, hi=g_))
            if j == 8: dm.append(dict(t=f"s_add_u32 {sr(S_TOFF)}, {sr(S_TOFF)}, {4*TILE}", c=0, lo=g_ + 1, hi=g_ + 1))
        nh = o.get("ugh", 2) if not o.get("ugl", 1) else 0
        for k in range(nh): dm.append(dict(t=self.ugs[k], c=8, lo=3 + 16 * k, hi=3 + 16 * k))
        if gs:
            k1 = o.get("k1lo", 22)
            kr = [dict(t=("@VM\n" if i == 0 else "") + x, c=4, lo=k1 + i // 2, hi=k1 + i // 2, nds=2) for i, x in enumerate(self.k_reads(1))]
        else:
            a(f"s_waitcnt vmcnt({self.n_t1})")
            kr = [dict(t=x, c=4, lo=i // 2, nds=2) for i, x in enumerate(self.k_reads(1))]
        left = self.pack(mf, items + dm + kr)
        print("head overflow", self.over, "left", len(left))
        left.sort(key=lambda x: not x.startswith("v_exp"))
        last = a.lines[-1].strip()
        for x in left:
            if last.startswith("v_exp") and not x.startswith("v_exp") and (last.split()[1].rstrip(",") + ",") in (x + ","): a("s_nop 0")
            a(x); last = x
        a("s_waitcnt lgkmcnt(0)")

    def tile_groups(self, slot):
        out = []
        for j in range(9):
            g = ""
            if j % 4 == 0: g = f"s_add_u32 m0, {sr(S_LB)}, {slot*SLOT + 4096*(j//4)}\ns_nop 0\n"
            g += f"buffer_load_dwordx4 {vr(V_DMA + j//4)}, {sr(S_XA,4)}, {sr(S_TOFF)} offen offset:{1024*(j%4)} lds"
            if j == 8: g += f"\ns_add_u32 {sr(S_TOFF)}, {sr(S_TOFF)}, {4*TILE}"
            out.append(g)
        return out

    def first_tiles(self):
        pass

    def wfuse(self):
        a = self.a
        BF, ACC, AF, TM, AD = 88, 108, 144, 208, 240
        LA, LB_, LM = 0, 44032, 88064
        T = S_T
        a.label("L_wfuse")
        a(f"{'s_sub_u32 s2, s6, 246' if self.o.get('xm', 0) == 2 else f's_add_u32 s2, s2, {NH}'}\ns_cmp_ge_u32 s2, {NH}\ns_cbranch_scc1 L_end")
        a(f"v_lshrrev_b32 v1, 6, v0\nv_and_b32 v0, 63, v0\nv_readfirstlane_b32 {sr(S_W)}, v1\nv_lshlrev_b32 {vr(V_DMA)}, 4, v0\ns_waitcnt lgkmcnt(0)")
        rot = self.o.get("rot", 0)
        if not rot: self.srd(S_WS, 78, 79, WS_END)
        self.srd(S_DB, 76, 77, 256)
        self.wf0 = 0
        self.srd(S_X, 72, 73, 82944)
        self.srd(S_W2, 62, 63, 41472)
        a(f"""s_cmp_eq_u32 s2, {self.wf0}
        s_cselect_b32 {sr(S_W1)}, s64, s70
        s_cselect_b32 {sr(S_W1+1)}, s65, s71
        s_mov_b32 {sr(S_W1+2)}, 41472
        s_mov_b32 {sr(S_W1+3)}, 0x20000
        s_cselect_b32 {sr(T+4)}, 0, 41472""")
        self.dma_rows([(S_W1, "0", LA), (S_W2, "0", LB_)], 19, 288, TM + 4, TM + 5, 11, 3, "L_wf1")
        a(f"s_lshl_b32 {sr(T)}, {sr(S_W)}, 10\ns_add_u32 {sr(T+2)}, {sr(T)}, {sr(T+4)}")
        for k in range(11):
            if k == 10: a(f"s_cmp_ge_u32 {sr(S_W)}, 1\ns_cbranch_scc1 L_wf2")
            a(f"s_add_u32 m0, {sr(T)}, {LM + 4096*k}\ns_add_u32 {sr(T+1)}, {sr(T+2)}, {4096*k}")
            a(f"buffer_load_dwordx4 {vr(V_DMA)}, {sr(S_X,4)}, {sr(T+1)} offen lds")
        a.label("L_wf2")
        self.srd(S_DW, 68, 69, 864)
        a(f"""v_and_b32 {vr(TM)}, 15, v0
        v_lshlrev_b32 {vr(TM+2)}, 4, {vr(TM)}
        v_lshlrev_b32 {vr(TM)}, 1, {vr(TM)}
        v_bfe_u32 {vr(TM+3)}, v0, 4, 1
        v_lshl_add_u32 {vr(TM+1)}, {vr(TM+3)}, 7, {vr(TM)}
        v_lshl_add_u32 {vr(TM+2)}, {vr(TM+3)}, 11, {vr(TM+2)}
        v_and_b32 {vr(TM+3)}, 1, v0
        v_lshlrev_b32 {vr(TM+3)}, 4, {vr(TM+3)}
        v_bfe_i32 {vr(TM+4)}, v0, 1, 1
        v_not_b32 {vr(TM+5)}, {vr(TM+4)}""")
        for k in range(3):
            for i in range(5): a(f"buffer_load_ushort {vr(16+5*k+i)}, {vr(TM+1 if i < 4 else TM)}, {sr(S_DW,4)}, 0 offen offset:{288*k + (32*i if i < 4 else 256)}")
        def wtag():
            a(f"s_mov_b32 {sr(T+2)}, 0")
            a.label("L_wtag")
            a(f"""buffer_load_dword {vr(TM+6)}, off, {sr(S_DB,4)}, 0 sc1
            s_add_u32 {sr(T+2)}, {sr(T+2)}, 1
            s_waitcnt vmcnt(0)
            v_readfirstlane_b32 {sr(S_N)}, {vr(TM+6)}
            s_cmp_lt_u32 {sr(T+2)}, 0x40000
            s_cselect_b32 {sr(T)}, {sr(S_N)}, 1
            s_cmp_eq_u32 {sr(T)}, 0
            s_cbranch_scc1 L_wtag""")
        if rot:
            wtag()
            a(f"""s_lshl_b32 {sr(T)}, {sr(S_N)}, {24 - self.o.get('rsh', 14)}
            s_and_b32 {sr(T)}, {sr(T)}, 0x0f000000
            s_add_u32 {sr(S_WS)}, s78, {sr(T)}
            s_addc_u32 {sr(S_WS+1)}, s79, 0
            s_mov_b32 {sr(S_WS+2)}, {self.wsn()}
            s_mov_b32 {sr(S_WS+3)}, 0x20000""")
        a(f"s_mov_b32 {sr(T+1)}, {WS_DWF}\ns_waitcnt vmcnt(0)")
        for f in range(15):
            a(f"v_lshlrev_b32 {vr(16+f)}, {vr(TM+3)}, {vr(16+f)}\nv_and_b32 {vr(32+2*f)}, {vr(TM+5)}, {vr(16+f)}\nv_and_b32 {vr(33+2*f)}, {vr(TM+4)}, {vr(16+f)}")
        for r_ in range(8): a(f"buffer_store_dwordx{4 if r_ < 7 else 2} {vr(32+4*r_, 4 if r_ < 7 else 2)}, {vr(TM+2)}, {sr(S_WS,4)}, {sr(T+1)} offen offset:{256*r_} sc1")
        self.tr_addr(AD, LM, False, TM + 8)
        self.row_addr(AD + 3, LA, TM + 8)
        a(f"v_add_u32 {vr(AD+5)}, {LB_}, {vr(AD+3)}")
        a(f"v_lshlrev_b32 {vr(AD+4)}, 3, v0")
        a(f"""s_lshr_b32 {sr(T)}, {sr(S_W)}, 1
        s_lshl_b32 {sr(T)}, {sr(T)}, 6
        s_and_b32 {sr(T+1)}, {sr(S_W)}, 1
        s_lshl_b32 {sr(T+1)}, {sr(T+1)}, 3
        s_add_u32 {sr(T)}, {sr(T)}, {sr(T+1)}
        v_and_b32 {vr(AD+6)}, 3, v0
        v_lshlrev_b32 {vr(AD+6)}, 3, {vr(AD+6)}
        v_add_u32 {vr(AD+7)}, {sr(T)}, {vr(AD+6)}""")
        for k in range(3): a(f"v_add_u32 {vr(AD+k)}, {vr(AD+7)}, {vr(AD+k)}")
        a(f"s_mov_b32 {sr(S_CNT)}, {sr(S_W)}")
        a("s_waitcnt vmcnt(0)\ns_barrier")
        a.label("L_wfl")
        for s in self.tr_reads(AD, vr)(0, BF): a(s)
        a("s_waitcnt lgkmcnt(0)")
        self.gemm(self.row_reads(AD + 3), BF, ACC, AF)
        for i in range(18): a(f"v_cvt_pk_bf16_f32 {vr(BF+i)}, {vr(ACC+2*i)}, {vr(ACC+2*i+1)}")
        a(f"s_cmp_eq_u32 s2, {self.wf0}\ns_cbranch_scc0 L_wf3")
        self.gemm(self.row_reads(AD + 5), BF, ACC, AF)
        for i in range(18): a(f"v_cvt_pk_bf16_f32 {vr(BF+i)}, {vr(ACC+2*i)}, {vr(ACC+2*i+1)}")
        a.label("L_wf3")
        a(f"""s_mul_i32 {sr(T)}, {sr(S_CNT)}, {BLK}
        s_add_u32 {sr(T)}, {sr(T)}, {sr(T+4)}
        s_add_u32 {sr(T)}, {sr(T)}, {WS_WF}
        s_add_u32 {sr(T+1)}, {sr(T)}, 4096""")
        self.store_block(BF, V_DMA, AD + 4, S_WS, T, T + 1, "sc1")
        for k in range(3): a(f"v_add_u32 {vr(AD+k)}, 128, {vr(AD+k)}")
        a(f"s_add_u32 {sr(S_CNT)}, {sr(S_CNT)}, 4\ns_cmp_lt_u32 {sr(S_CNT)}, 8\ns_cbranch_scc1 L_wfl")
        for k in range(3): a(f"v_sub_u32 {vr(AD+k)}, {vr(AD+k)}, {vr(AD+6)}")
        a(f"s_cmp_eq_u32 {sr(S_CNT)}, 8\ns_cbranch_scc1 L_wfl")
        a(f"""s_waitcnt vmcnt(0)
        s_barrier
        s_cmp_lg_u32 {sr(S_W)}, 0
        s_cbranch_scc1 L_end""")
        if not rot: wtag()
        a(f"""v_mov_b32 {vr(TM)}, {sr(S_N)}
        v_lshlrev_b32 {vr(TM+1)}, 2, v0
        s_lshl_b32 {sr(T)}, s2, 8
        s_add_u32 {sr(T)}, {sr(T)}, {WS_F + 502*256}
        buffer_store_dword {vr(TM)}, {vr(TM+1)}, {sr(S_WS,4)}, {sr(T)} offen sc1
        s_endpgm""")

    def tstore(self):
        a = self.a
        _, n, fl, allwg, off = self.o["tst"]
        if not allwg: a(f"s_cmp_lg_u32 s2, 101\ns_cbranch_scc1 L_tst")
        a(f"s_waitcnt vmcnt(0)\ns_lshl2_add_u32 s96, s2, {sr(S_W)}\ns_mul_i32 s96, s96, {1024*max(n,1)}\ns_add_u32 s96, s96, {off}")
        k = len(self.stnames)
        a(f"s_memtime s[92:93]")
        if _[-1] == "x":
            a(f"s_cmp_lt_u32 {sr(S_W)}, 2\ns_cselect_b32 s96, 2.0, {off}\ns_add_u32 s97, s96, s56\ns_add_u32 s96, s96, s55")
            for i in range(4): a(f"buffer_store_dwordx4 v[252:255], {vr(V_KA)}, {sr(S_WS,4)}, s{96+(i>>1)} offen offset:{2048*(i&1)} {fl}")
            n = -1
        if _[-1] == "k":
            a(f"s_lshr_b32 s97, {sr(S_W)}, 1\ns_lshl1_add_u32 s96, s2, s97\ns_mul_i32 s96, s96, {2048*n}\ns_and_b32 s97, {sr(S_W)}, 1\ns_lshl_b32 s97, s97, 8\ns_add_u32 s96, s96, s97\ns_add_u32 s96, s96, {off}")
            for i in range(n): a(f"buffer_store_dwordx4 v[252:255], {vr(V_KA)}, {sr(S_WS,4)}, s96 offen offset:{2048*i} {fl}")
            n = -1
        for i in range(n): a(f"buffer_store_dwordx4 v[252:255], {vr(V_DMA)}, {sr(S_WS,4)}, s96 offen offset:{1024*i} {fl}")
        if n == 0: a(f"buffer_load_dwordx4 v[252:255], {vr(V_DMA)}, {sr(S_WS,4)}, s96 offen {fl}")
        a(f"s_waitcnt vmcnt(0)\ns_memtime s[94:95]\ns_waitcnt lgkmcnt(0)")
        a.label("L_tst")

    def dump_stamps(self):
        a = self.a
        if self.o.get("tst") and self.o["tst"][0] == "end": self.tstore()
        if self.o.get("census"):
            key, mode, m_, v_ = self.o["census"]
            a(f"""s_cmp_lg_u32 s2, 100
            s_cbranch_scc1 L_end
            v_lshlrev_b32 v16, 2, v0
            s_mov_b32 s4, {WS_DBG}""")
            for k in range(4): a(f"buffer_load_dword v{20+k}, v16, {sr(S_WS,4)}, s4 offen offset:{256*k} sc1")
            a(f"s_waitcnt vmcnt(0)\nv_readlane_b32 s8, v21, 36\ns_mov_b32 s9, 0x80000000\ns_mov_b32 s10, 0x7fffffff\ns_mov_b32 s11, 0\ns_mov_b32 s17, 0")
            for k in range(4):
                a(f"s_mov_b32 s5, 0")
                a.label(f"L_cs{k}")
                a(f"""v_readlane_b32 s6, v{20+k}, s5
                s_add_u32 s7, s5, {64*k}
                s_sub_u32 s6, s6, s8
                s_and_b32 s16, s7, {m_}
                s_cmp_lg_u32 s16, {v_}
                s_cbranch_scc1 L_cn{k}
                s_min_i32 s10, s10, s6
                s_cmp_gt_i32 s6, {self.o.get("thr", 150)}
                s_addc_u32 s17, s17, 0
                s_cmp_gt_i32 s6, s9
                s_cselect_b32 s9, s6, s9
                s_cselect_b32 s11, s7, s11""")
                a.label(f"L_cn{k}")
                a(f"s_add_u32 s5, s5, 1\ns_cmp_lt_u32 s5, {64 if k < 3 else 60}\ns_cbranch_scc1 L_cs{k}")
            a({"arg": "s_lshl_b32 s6, s11, 3", "range": "s_sub_u32 s6, s9, s10\ns_lshl_b32 s6, s6, 1", "zero": "s_mov_b32 s6, 0", "cnt": "s_lshl_b32 s6, s17, 4",
               "max": "s_lshl_b32 s6, s9, 1"}[mode])
            a("s_add_u32 s6, s6, 1000\ns_memrealtime s[4:5]\ns_waitcnt lgkmcnt(0)\ns_add_u32 s6, s6, s4")
            a.label("L_echo")
            a("s_memrealtime s[4:5]\ns_waitcnt lgkmcnt(0)\ns_sub_u32 s7, s6, s4\ns_cmp_gt_i32 s7, 0\ns_cbranch_scc1 L_echo")
            return
        if self.o.get("echo"):
            if self.o["echo"][0] == "skew":
                a(f"v_mov_b32 v16, 4\nbuffer_load_dword v17, v16, {sr(S_DB,4)}, 0 offen sc1\ns_waitcnt vmcnt(0)\nv_readfirstlane_b32 s98, v17\ns_not_b32 s98, s98")
                x, y = 98, S_ST + 2 * self.stnames.index(self.o["echo"][1])
            elif self.o.get("tst") and self.o["echo"][0] == self.o["echo"][1]: x, y = 92, 94
            else:
                x, y = [S_ST + 2 * self.stnames.index(n) for n in self.o["echo"]]
            lo, hi = self.o.get("echo_ids", (0, 999))
            a(f"""s_cmp_eq_u32 {sr(S_VAL)}, 0
            s_cbranch_scc1 L_end
            s_cmp_lt_u32 s2, {lo}
            s_cbranch_scc1 L_end
            s_cmp_ge_u32 s2, {hi}
            s_cbranch_scc1 L_end
            s_and_b32 s6, s2, {self.o.get("echo_m", 0)}
            s_cmp_lg_u32 s6, {self.o.get("echo_v", 0)}
            s_cbranch_scc1 L_end
            s_memrealtime s[4:5]
            s_waitcnt lgkmcnt(0)
            s_sub_u32 s6, {sr(y)}, {sr(x)}
            s_mul_i32 s6, s6, {self.o.get("echo_mul", 1)}
            s_lshr_b32 s6, s6, {self.o.get("echo_shr", 0)}
            s_add_u32 s6, s6, {self.o.get("echo_add", 0)}
            s_add_u32 s6, s6, s4""")
            a.label("L_echo")
            a("s_memrealtime s[4:5]\ns_waitcnt lgkmcnt(0)\ns_sub_u32 s7, s6, s4\ns_cmp_gt_i32 s7, 0\ns_cbranch_scc1 L_echo")
            return
        if self.o.get("dbgst"):
            a("s_waitcnt vmcnt(0)")
            self.stamp("done")
            a("s_waitcnt lgkmcnt(0)\ns_mov_b64 exec, 1")
            slots = [1, 2, 3, 4, 5, 6, 7, 9, 11, 12, 13, 14, 15]
            a(f"s_not_b32 {sr(S_T)}, {sr(S_ST)}\nv_mov_b32 v16, {sr(S_T)}\nv_mov_b32 v17, 4\nbuffer_atomic_umax v16, v17, {sr(S_DB,4)}, 0 offen sc1")
            for i in range(min(self.nst, 12)):
                a(f"v_mov_b32 v{18+2*i}, {sr(S_ST+2*i)}\nv_mov_b32 v{19+2*i}, {4*slots[i+1]}\nbuffer_atomic_umax v{18+2*i}, v{19+2*i}, {sr(S_DB,4)}, 0 offen sc1")
            return
        if not self.o.get("stamps"): return
        T = S_T
        a(f"""s_waitcnt lgkmcnt(0)
        s_lshl_b32 {sr(T)}, s2, 2
        s_add_u32 {sr(T)}, {sr(T)}, {sr(S_W)}
        s_lshl_b32 {sr(T)}, {sr(T)}, 7
        s_add_u32 {sr(T)}, {sr(T)}, {WS_DBG}
        v_mov_b32 v1, 0""")
        for i in range(26): a(f"v_mov_b32 {vr(16+i)}, {sr(S_ST+i)}")
        for i in range(7): a(f"buffer_store_dwordx4 {vr(16+4*i,4)}, v1, {sr(S_WS,4)}, {sr(T)} offen offset:{16*i}")

    def build(self):
        a = self.a
        self.stnames = []
        a.raw(f"; @launch grid=({NWG},1,1) block=(256,1,1) lds={LDS_TOTAL}")
        a.raw('.amdgcn_target "amdgcn-amd-amdhsa--gfx950"')
        a.raw(".text")
        a.raw(f".globl {NAME}")
        a.raw(".p2align 12")
        self.entry()
        self.phase_a()
        self.rest()
        a.label("L_fin")
        self.dump_stamps()
        a.label("L_end")
        a("s_endpgm")
        self.poll2()
        if not self.o.get("touch", 1): self.rare()
        a.label("L_dummy")
        if self.o.get("rot", 0): self.moved()
        self.fallback()
        self.wfuse()
        a.raw('.section .rodata,"a"')
        a.raw(".p2align 6")
        a.raw(kernel_desc(NAME, 512, 102, 256))
        return a.text()

    def S(self, buf, qb, i=0): return V_S + buf * 32 + qb * 8 + i
    def P(self, buf, qb, i=0): return V_P + buf * 16 + qb * 4 + i

    def k_reads(self, slot, V_K=V_K):
        ka, so = (V_KA, slot * SLOT) if slot < 2 else (V_HI, (slot - 2) * SLOT)
        out = [f"ds_read_b128 {vr(V_K+8*s+4*kb,4)}, {vr(ka)} offset:{so + 2048*s + 256*kb}" for s in range(4) for kb in range(2)]
        out += [f"ds_read_b64 {vr(V_K+32+2*kb,2)}, {vr(ka+1)} offset:{so + 8192 + 512*kb}" for kb in range(2)]
        return out

    def v_reads(self, slot, dst=V_V):
        (va, vr_, vb), so = ((V_VA, V_VR, V_VB), slot * SLOT) if slot < 2 else ((V_HI + 2, V_HI + 4, V_HI + 5), (slot - 2) * SLOT)
        out = []
        for T in range(9):
            for u in range(2):
                if T < 8: out.append(f"ds_read_b64_tr_b16 {vr(dst+4*T+2*u,2)}, {vr((va if T < 4 else vb)+(T&1))} offset:{so + 2048*((T>>1)&1) + 256*u}")
                else: out.append(f"ds_read_b64_tr_b16 {vr(dst+4*T+2*u,2)}, {vr(vr_)} offset:{so + 8192 + 512*u}")
        return out

    def qk_mfmas(self, buf, czero=False):
        out = []
        for s in range(5):
            for kb in range(2):
                for qb in range(4):
                    d = vr(self.S(buf, qb, 4 * kb), 4)
                    c = ("0" if czero else vr(V_CI + 4 * qb, 4)) if s == 0 else d
                    if s < 4: out.append(f"v_mfma_f32_16x16x32_bf16 {d}, {vr(V_K+8*s+4*kb,4)}, {ar(A_Q+18*qb+4*s,4)}, {c}")
                    else: out.append(f"v_mfma_f32_16x16x16_bf16 {d}, {vr(V_K+32+2*kb,2)}, {ar(A_Q+18*qb+16,2)}, {c}")
        return out

    def pv_mfmas(self, buf, czero=False):
        out = []
        for T in range(9):
            for qb in range(4):
                o = ar(A_O + 36 * qb + 4 * T, 4)
                out.append(f"v_mfma_f32_16x16x32_bf16 {o}, {vr(V_V+4*T,4)}, {vr(self.P(buf,qb),4)}, {'0' if czero else o}")
        return out

    def plan(self):
        o = self.o
        n = 76
        fixed = [None] * n
        for i, g in enumerate(range(1, 36, 2)): fixed[g] = ("V", i)
        for i, g in enumerate([41, 44, 47, 50, 53, 56, 59, 62, 65, 68]): fixed[g] = ("K", i)
        for i, g in enumerate([42, 46, 49, 52, 55, 58, 61, 64, 67]): fixed[g] = ("D", i)
        exps = [(qb, j) for qb in range(4) for j in range(8)]
        start = 40
        order = [(start + k) % n for k in range(n)]
        free_idx = [k for k, g in enumerate(order) if fixed[g] is None]
        nsm = len(free_idx) - 32
        cand = free_idx[6:-2]
        sm_set = set(free_idx[-2:]) | {cand[int((i + 0.5) * len(cand) / (nsm - 2))] for i in range(nsm - 2)}
        nds = sum(1 for f in fixed if f is not None and f[0] != "D")
        ls = o.get("lsum", "add")
        over = max(0, (48 if ls == "add" else 32) - nds - 2 * nsm)
        ocand = [k for k, g in enumerate(order) if k >= 20 and (fixed[g] is None or fixed[g][0] != "D")]
        o_set = {ocand[int((i + 0.5) * len(ocand) / over)] for i in range(over)}
        later = []
        gaps = [[] for _ in range(n)]
        small, pend, ei = [], [], 0
        for k, g in enumerate(order):
            new = (start + k) < n
            small.extend(pend); pend = later; later = []
            small.sort(key=lambda t: 0 if t[0] == "c" else 1)
            f = fixed[g]
            want = 0
            if f is not None:
                gaps[g].append((f[0], f[1], None))
                if f[0] == "D": continue
                want = 1
            elif k in sm_set: want = 2
            else:
                qb, j = exps[ei]; ei += 1
                gaps[g].append(("E", ("e", qb, j), new))
                if j & 1: pend.append(("c", qb, j // 2))
                if ls == "add": pend.append(("a", qb, j))
                elif j & 1 and ls == "pk": pend.append(("p", qb, j // 2))
            if k in o_set: want += 1
            if k == n - 1: want = 99
            for _ in range(want):
                if small:
                    it = small.pop(0)
                    gaps[g].append(("E", it, new))
                    if it[0] == "c" and ls == "dot": (small if k == n - 1 else pend).append(("d", it[1], it[2]))
        assert not small and not pend and ei == 32
        self.gaps = gaps

    def pack(self, mf, items):
        a = self.a
        where, order, done, nvm, mpos = {}, [], 0, 0, []
        isds = lambda it: "ds_" in it["t"]
        self.over = 0
        for g, m in enumerate(mf):
            assert not any(it.get("need", 999) <= g and i not in where for i, it in enumerate(items)), g
            idx = [k for k, n_ in enumerate(order) if n_ <= g]
            if idx and max(idx) + 1 > done:
                a(f"s_waitcnt lgkmcnt({min(15, len(order) - 1 - max(idx))})"); done = max(idx) + 1
            if m.startswith("@W"):
                w_, m = m.split("\n", 1)
                a(f"s_waitcnt lgkmcnt({min(15, int(w_[2:]) + len(order))})")
            a(m)
            mpos.append(len(a.lines))
            cap, pick = 8, []
            for phase in (0, 1):
                for i, it in enumerate(items):
                    if i in where or it.get("lo", 0) > g: continue
                    if "am" in it and (it["am"] >= g or len(a.lines) - mpos[it["am"]] < 8): continue
                    d = it.get("dep")
                    if d is not None and not all(where.get(x, 999) < g for x in d): continue
                    if (phase == 0 and it.get("hi", 999) <= g) or (phase == 1 and it["c"] <= cap):
                        if it["t"].startswith("buffer") and pick and any(items[x]["c"] for x in pick) and phase == 1: continue
                        if isds(it) and sum(isds(items[x]) for x in pick) >= it.get("nds", 1) and phase == 1: continue
                        pick.append(i); where[i] = g; cap -= it["c"]
            key = lambda i: 0 if items[i]["c"] == 0 else 1 if isds(items[i]) else 2 if items[i]["t"].startswith("buffer") else 3
            for i in sorted(pick, key=key):
                a(items[i]["t"].replace("@VM", f"s_waitcnt vmcnt({nvm})"))
                nvm += items[i]["t"].startswith("buffer")
                if isds(items[i]): order.append(items[i].get("need", 999))
            self.over += max(0, -cap)
        return [it["t"] for i, it in enumerate(items) if i not in where]

    def e_items(self, buf, lst, lo, hi):
        items, idx = [], {}
        for it in lst:
            kind, qb, j = it
            d = dict(t=self.etext(buf, it), c=8 if kind == "e" else 4)
            if kind == "e": d["lo"] = lo(qb, j); d["hi"] = hi(qb) - 2 - (7 - j)
            else:
                need = [("e", qb, j)] if kind == "a" else [("c", qb, j)] if kind == "d" else [("e", qb, 2 * j), ("e", qb, 2 * j + 1)]
                d["dep"] = [idx[x] for x in need if x in idx]
                if kind == "c": d["hi"] = hi(qb) - (3 - j) // 2
            idx[it] = len(items); items.append(d)
        return items

    def etext(self, buf, it):
        kind, qb, j = it
        s = self.S(buf, qb)
        if kind == "e": return f"v_exp_f32 {vr(s+j)}, {vr(s+j)}"
        if kind == "d": return f"v_dot2_f32_bf16 {vr(V_L+qb)}, {vr(self.P(buf, qb, j))}, v227, {vr(V_L+qb)}"
        if kind == "p": return f"v_pk_add_f32 {vr(208+2*qb,2)}, {vr(208+2*qb,2)}, {vr(s+2*j,2)}"
        if kind == "a": return f"v_add_f32 {vr(V_L+qb)}, {vr(V_L+qb)}, {vr(s+j)}"
        return f"v_cvt_pk_bf16_f32 {vr(self.P(buf, qb, j))}, {vr(s+2*j)}, {vr(s+2*j+1)}"

    def period(self, p, qk=True, pv=True, e_old=True, e_new=True, kread=True, vread=True, dma=True, extra={}, dsub=None, ksub=None, vm=9, halves=(0, 1), inc=None):
        a = self.a
        bn, bo = (p + 1) & 1, p & 1
        qk_, pv_ = self.qk_mfmas(bn), self.pv_mfmas(bo, czero=(p == 0))
        qo, po = self.o.get("qkord", 1), self.o.get("pvord", 0)
        if qo == 1: qk_ = [qk_[8 * s_ + 4 * kb + qb] for kb in range(2) for qb in range(4) for s_ in range(4)] + qk_[32:]
        if qo == 2: qk_ = [qk_[8 * s_ + 4 * kb + qb] for qb in range(4) for kb in range(2) for s_ in range(4)] + qk_[32:]
        if qo == 3: qk_ = [qk_[8 * s_ + 4 * kb + qb] for qb in range(4) for s_ in range(4) for kb in range(2)] + qk_[32:]
        if po == 1: pv_ = [pv_[4 * T_ + qb] for qb in range(4) for T_ in range(9)]
        mf = qk_ + pv_
        kr, vrd = self.k_reads((p + 2) % RING), self.v_reads(p % RING)
        slot = p % RING
        n = 76
        sc = [[] for _ in range(n)]
        dgs = [g for g in range(n) if any(e[0] == "D" for e in self.gaps[g])]
        if dma:
            for j, g in enumerate(dgs):
                if j % 4 == 0: sc[g - 1].append(f"s_add_u32 m0, {sr(S_LB)}, {slot*SLOT + 4096*(j//4)}")
            sc[dgs[-1] + 1].append(f"s_add_u32 {sr(S_TOFF)}, {sr(S_TOFF)}, {inc or 4*TILE}")
        w = []
        if kread: w.append(f"vmcnt({vm})")
        if pv: w.append("lgkmcnt(0)")
        if w: sc[39].append("s_waitcnt " + " ".join(w))
        if kread: sc[75].append("s_waitcnt lgkmcnt(0)")
        for half in halves:
            rng = range(0, 40) if half == 0 else range(40, 76)
            on = qk if half == 0 else pv
            if not on:
                ds, mem, val, post = [], [], [], []
                for g in rng:
                    for s_ in sc[g]:
                        (post if s_.startswith("s_waitcnt") else mem).append(s_)
                    if g in extra: mem.append(extra[g])
                    for kind, d, new in self.gaps[g]:
                        if kind == "V" and vread: ds.append(vrd[d])
                        elif kind == "K" and kread: ds.append(kr[d])
                        elif kind == "D" and dma: mem.append(f"buffer_load_dwordx4 {vr(V_DMA + d//4)}, {sr(S_XA,4)}, {sr(S_TOFF)} offen offset:{1024*(d%4)} lds")
                        elif kind == "E" and ((new and e_new) or (not new and e_old)): val.append((d, self.etext(bn if new else bo, d)))
                if half == 1: a("s_nop 3")
                seq, pend = [], list(val)
                while pend:
                    k = 0
                    if seq and seq[-1][0][0] == "e":
                        le = seq[-1][0]
                        dep = lambda it: it[0][1] == le[1] and ((it[0][0] == "a" and it[0][2] == le[2]) or (it[0][0] == "c" and it[0][2] == le[2] // 2))
                        have = {x[0] for x in seq}
                        ok = lambda it: it[0][0] == "e" or (("e", it[0][1], it[0][2]) in have if it[0][0] == "a" else (("e", it[0][1], 2*it[0][2]+1) in have)) or not any(x[0][0] == "e" and x[0][1] == it[0][1] and (x[0][2] == it[0][2] if it[0][0] == "a" else x[0][2] // 2 == it[0][2]) for x in pend)
                        while k < len(pend) and (dep(pend[k]) or not ok(pend[k])): k += 1
                        if k == len(pend): seq.append((("n", 0, 0), "s_nop 0")); k = 0
                    seq.append(pend.pop(k))
                step = max(1, len(seq) // (len(mem) + len(ds) + 1))
                allm = ds + mem
                for x in allm[:6]: a(x)
                allm = allm[6:]
                for i_, (d, t_) in enumerate(seq):
                    a(t_)
                    if allm and i_ % step == step - 1:
                        x = allm.pop(0); a(x)
                        if x.startswith("s_add_u32 m0"): a("s_nop 0")
                for x in allm:
                    a(x)
                    if x.startswith("s_add_u32 m0"): a("s_nop 0")
                for x in post: a(x)
                if half == 0: a("s_nop 1")
                continue
            abl = self.o.get("abl", "") if 1 <= p <= 4 else ""
            for g in rng:
                if not ("Q" in abl and g < 40 or "P" in abl and g >= 40): a(mf[g])
                for s_ in sc[g]: a(s_)
                if g in extra: a(extra[g])
                for kind, d, new in self.gaps[g]:
                    if kind in abl or (kind == "E" and d[0] in abl): continue
                    if kind == "V":
                        if vread: a(vrd[d])
                    elif kind == "K":
                        if kread: a(kr[d])
                        elif ksub: a(ksub.pop(0))
                    elif kind == "D":
                        if dma: a(f"buffer_load_dwordx4 {vr(V_DMA + d//4)}, {sr(S_XA,4)}, {sr(S_TOFF)} offen offset:{1024*(d%4)} lds")
                        elif dsub: a(dsub.pop(0))
                    elif (new and e_new) or (not new and e_old):
                        a(self.etext(bn if new else bo, d))

    MK, VO, VO8, GA, VS0, VS0R, VDW, VLW, VL8, VST, VPL = 232, 236, 9, 238, 250, 251, 244, 245, 246, 247, 248
    NB, PT, E_U, E_G, RS3, E_COL, RS1, RS2, MP1 = 3, 4, 5, 6, 7, 43, 36, 37, 38
    G0, GM, GP, U, DWT = 16, 26, 36, 80, (90, 252, 96, 100, 112, 116, 104, 94)
    XRS = (192, 196, 46)
    frag = staticmethod(lambda f, b: [(f, b + 4 * s) for s in range(5)])
    WD = [[("a", 216 + 4 * s) for s in range(5)], [("a", 234 + 4 * s) for s in range(5)], [("v", 208 + 4 * s) for s in range(5)]]
    WO = [[("a", 4 * s) for s in range(5)], [("a", 18 + 4 * s) for s in range(5)], [("a", 36), ("a", 40), ("a", 44), ("a", 48), ("a", 252)]]
    X1B = 98304
    X2O = L_SP - X1B
    L_L = L_SP + 9216

    def epi_setup(self):
        a = self.a
        T = S_T
        NB, PT, VO, GA = self.NB, self.PT, self.VO, self.GA
        r, g4, x, y, big, r0 = 52, 53, 54, 55, 56, 57
        a(f"""s_lshr_b32 {sr(NB)}, {sr(S_W)}, 1
        s_and_b32 {sr(PT)}, {sr(S_W)}, 1
        v_and_b32 {vr(r0)}, 15, v0
        v_lshrrev_b32 {vr(g4)}, 4, v0
        v_mul_u32_u24 {vr(x)}, 288, {vr(r0)}
        v_mov_b32 {vr(big)}, 0x40000000
        s_lshl_b32 {sr(T)}, {sr(S_TOWN)}, 1
        s_add_u32 {sr(T)}, {sr(T)}, {sr(NB)}
        s_lshl_b32 {sr(T)}, {sr(T)}, 4
        v_add_u32 {vr(r)}, {sr(T)}, {vr(r0)}
        s_mul_i32 {sr(T+1)}, {sr(S_TOWN)}, {TILE}
        s_mul_i32 {sr(T+2)}, {sr(PT)}, {BLK}
        v_add_u32 {vr(x)}, {sr(T+1)}, {vr(x)}
        s_sub_u32 {sr(T+3)}, {BLK}, {sr(T+2)}
        v_add_u32 {vr(y)}, {sr(T+3)}, {vr(x)}
        v_add_u32 {vr(x)}, {sr(T+2)}, {vr(x)}
        v_lshl_add_u32 {vr(VO)}, {vr(g4)}, 4, {vr(x)}
        v_lshl_add_u32 {vr(VO+1)}, {vr(g4)}, 4, {vr(y)}
        v_lshl_add_u32 {vr(self.VO8)}, {vr(g4)}, 3, {vr(x)}
        s_lshl_b32 {sr(T+3)}, {sr(PT)}, 11
        s_add_u32 {sr(self.E_U)}, {sr(T+3)}, {WS_U}
        s_add_u32 {sr(self.E_G)}, {sr(T+3)}, {WS_G}
        s_sub_u32 {sr(T+3)}, 4096, {sr(T+3)}
        s_lshl_b32 {sr(T)}, {sr(PT)}, 11
        s_add_u32 {sr(T)}, {sr(T)}, {WS_DWF}
        v_lshrrev_b32 {vr(x)}, 2, {vr(r0)}
        v_cmp_eq_u32 vcc, {vr(x)}, {vr(g4)}
        v_lshl_add_u32 {vr(self.VDW)}, {vr(r0)}, 4, {sr(T)}
        s_nop 0
        v_cndmask_b32 {vr(self.VDW)}, {vr(big)}, {vr(self.VDW)}, vcc
        s_lshl_b32 {sr(self.E_COL)}, {sr(S_W)}, 6
        v_lshlrev_b32 {vr(self.VL8)}, 3, v0
        v_add_u32 {vr(self.VL8)}, 4096, {vr(self.VL8)}
        v_add_u32 {vr(self.VST)}, {sr(S_LB)}, {vr(V_DMA)}
        v_add_u32 {vr(self.VST)}, {2*SLOT}, {vr(self.VST)}
        s_xor_b32 {sr(T)}, {sr(NB)}, 1
        v_xor_b32 {vr(x)}, {sr(T)}, {vr(g4)}
        v_lshl_add_u32 {vr(x)}, {vr(x)}, 4, {vr(r0)}
        s_lshl_b32 {sr(T)}, {sr(S_W)}, 2
        s_add_u32 {sr(T)}, {sr(T)}, {self.L_L}
        v_lshl_add_u32 {vr(self.VLW)}, {vr(x)}, 4, {sr(T)}
        s_sub_u32 {sr(self.MP1)}, 0, {sr(PT)}
        s_mov_b32 {sr(self.MP1+1)}, {sr(self.MP1)}""")
        for k, (d, base) in enumerate(((self.RS1, 3 * SLOT), (self.RS2, 2 * SLOT), (self.RS3, 2 * SLOT))):
            a(f"s_xor_b32 {sr(T)}, {sr(S_W)}, {k+1}\ns_mul_i32 {sr(T)}, {sr(T)}, {TILE}\ns_add_u32 {sr(d)}, {sr(T)}, {base}")
        a(f"""s_mul_i32 {sr(T)}, {sr(S_B)}, 4000
        s_add_u32 {sr(T+1)}, {sr(T)}, 3999
        s_mov_b32 {sr(T+2)}, {BLK}""")
        for k, dr in enumerate((0, -1, 1)):
            m = GA + 2 * k
            if dr: a(f"v_add_u32 {vr(m)}, {dr}, {vr(r)}\nv_cmp_eq_u32 vcc, {sr(T if dr < 0 else T+1)}, {vr(r)}")
            src = m if dr else r
            a(f"""v_lshrrev_b32 {vr(x)}, 4, {vr(src)}
            v_and_b32 {vr(y)}, 15, {vr(src)}
            v_mul_lo_u32 {vr(x)}, {vr(x)}, {sr(T+2)}
            v_lshl_add_u32 {vr(y)}, {vr(g4)}, 4, {vr(y)}
            v_lshl_add_u32 {vr(m)}, {vr(y)}, 4, {vr(x)}
            v_lshl_add_u32 {vr(m+1)}, {vr(y)}, 3, {vr(x)}
            v_add_u32 {vr(m+1)}, {sr(T+3)}, {vr(m+1)}""")
            if dr: a(f"v_cndmask_b32 {vr(m)}, {vr(m)}, {vr(big)}, vcc\nv_cndmask_b32 {vr(m+1)}, {vr(m+1)}, {vr(big)}, vcc")

    def conv_loads(self):
        GA = self.GA
        L = []
        for dst, m, so in ((self.GM, GA + 2, 1), (self.G0, GA, 1), (self.GP, GA + 4, 1), (self.U, GA, 0)):
            for k in range(2): L.append(f"buffer_load_dwordx4 {vr(dst+4*k,4)}, {vr(m)}, {sr(S_WS,4)}, {sr(self.E_U+so)} offen offset:{1024*k}")
            L.append(f"buffer_load_dwordx2 {vr(dst+8,2)}, {vr(m+1)}, {sr(S_WS,4)}, {sr(self.E_U+so)} offen")
        return L

    def rg(self, e, n): return (ar if e[0] == "a" else vr)(e[1], n)

    def w8_loads(self, regs, so):
        return [f"buffer_load_dwordx4 {self.rg(regs[s],4)}, {vr(V_DMA)}, {sr(S_WS,4)}, {sr(so)} offen offset:{1024*s}" for s in range(4)] + \
               [f"buffer_load_dwordx2 {self.rg(regs[4],2)}, {vr(self.VL8)}, {sr(S_WS,4)}, {sr(so)} offen"]

    def w_reads(self, regs, off):
        L = []
        for tt in range(2):
            L += [f"ds_read_b128 {self.rg(regs[tt][s],4)}, {vr(self.VS0)} offset:{off + BLK*tt + 1024*s}" for s in range(4)]
            L.append(f"ds_read_b64 {self.rg(regs[tt][4],2)}, {vr(self.VS0R)} offset:{off + BLK*tt}")
        return L

    def wsn(self): return WS_DBG + (1 << 20 if self.o.get("stamps") else 0)

    def xa_srd(self, T=S_T):
        return f"""s_mul_i32 {sr(T)}, {sr(S_B)}, {NT}
        s_mul_i32 {sr(T+1)}, {sr(S_H)}, 63
        s_add_u32 {sr(T+1)}, {sr(T+1)}, {sr(T)}
        s_mul_i32 {sr(T+1)}, {sr(T+1)}, {TILE}
        s_add_u32 {sr(S_XA)}, {sr(S_WS)}, {sr(T+1)}
        s_addc_u32 {sr(S_XA+1)}, {sr(S_WS+1)}, 0
        s_sub_u32 {sr(T+2)}, 63, {sr(S_H)}
        s_mul_i32 {sr(S_XA+2)}, {sr(T+2)}, {TILE}
        s_mov_b32 {sr(S_XA+3)}, 0x20000"""

    def rest(self):
        a, o = self.a, self.o
        T = S_T
        VPL = self.VPL
        self.plan()
        self.head()
        self.stamp("loop")
        if o.get("sktest") or o.get("echo") and o["echo"][0] == "skew":
            a(f"s_waitcnt lgkmcnt(0)\ns_mov_b64 exec, 1\ns_not_b32 s98, {sr(S_ST)}\nv_mov_b32 v226, s98\nv_mov_b32 v227, 4\ns_cmp_lg_u32 {sr(S_W)}, 0\ns_cbranch_scc1 L_sk\nbuffer_atomic_umax v226, v227, {sr(S_DB,4)}, 0 offen sc1\ns_waitcnt vmcnt(0)\nL_sk:\ns_mov_b64 exec, -1\ns_nop 3")
            self.stamp("sk")
        nh = o.get("ugh", 2)
        ex = {2 + 12 * k: x for k, x in enumerate(self.ugs[nh:])}
        ugl = o.get("ugl", 1)
        CL = 226
        SI = S_OUT if o.get("oib", 0) else S_WS
        clr = [f"buffer_store_dwordx4 {vr(CL,4)}, {vr(V_DMA)}, {sr(SI,4)}, {sr(S_CL)} offen sc1",
               f"buffer_store_dwordx4 {vr(CL,4)}, {vr(V_DMA)}, {sr(SI,4)}, {sr(S_CL)} offen offset:1024 sc1",
               f"buffer_store_dwordx2 {vr(CL,2)}, {vr(self.VL8)}, {sr(S_WS,4)}, {sr(S_CL+1)} offen sc1"]
        cll = o.get("cll", 1)
        ex0 = {69: self.ugs[0], 71: clr[0]} if cll else {69: self.ugs[0]}
        if o.get("gs", 0):
            for j, x in enumerate(self.tile_groups(3)):
                g_ = o.get("t3g", 2) + 4 * j
                x = x.split("\n")
                if x[0].startswith("s_add_u32 m0"): ex0[g_ - 1] = x[0]; x = x[2:]
                ex0[g_] = "\n".join(x)
        if ugl: self.period(0, extra=ex0)
        else: self.period(0, vm=9 + 5, extra=ex)
        self.stamp("l0")
        a.raw(".p2align 6")
        a.label("L_loop")
        self.stamp("q1")
        for p in range(1, 5):
            ex = {}
            vm = 9
            if p == 1: ex = {73: f"s_cmp_eq_u32 {sr(S_CNT)}, 3"}
            if p == 2: ex = {70: f"buffer_load_dword v252, {vr(VPL)}, {sr(S_WS,4)}, 0 offen sc1"}
            if p == 3:
                ex = {73: f"s_cmp_eq_u32 {sr(S_CNT)}, 2", 45: f"ds_add_rtn_u32 v230, v231, {vr(VPL+1)}"}
            if p == 4:
                self.stamp("la0")
                a(f"s_cbranch_scc1 L_last")
                a.label("L_lastb")
                self.stamp("la1")
                ex = {72: f"s_add_u32 {sr(S_CNT)}, {sr(S_CNT)}, 1", 1: f"v_readfirstlane_b32 {sr(T)}, v230", 3: f"s_cmp_eq_u32 {sr(T)}, 3",
                      4: f"s_cselect_b32 {sr(T)}, {sr(S_FB)}, 2.0", 6: f"buffer_store_dword v207, v231, {sr(S_WS,4)}, {sr(T)} offen sc1"}
            if ugl:
                ex[69] = self.ugs[p]
                if p < 3 and cll: ex[72] = clr[p]
                if p == 3 and cll: ex.update({70: f"s_mov_b32 {sr(S_CL)}, 2.0", 71: f"s_mov_b32 {sr(S_CL+1)}, 2.0"})
                if p == 4: ex.update({71: f"s_mov_b32 {sr(S_UG)}, 2.0", 2: f"s_lshl2_add_u32 {sr(T)}, {sr(S_CNT)}, {sr(T)}", 3: f"s_cmp_eq_u32 {sr(T)}, 7"})
                if p == 3: ex.update({43: f"s_and_b32 {sr(T)}, {sr(S_CNT)}, 1", 44: f"v_mov_b32 {vr(VPL+1)}, {sr(T)}", 48: ex.pop(45)})
            for k_ in range(o.get("pad", 0)): ex[10 + 7 * k_] = ex.get(10 + 7 * k_, "s_nop 0") + "\ns_nop 7"
            self.period(p, extra=ex, inc=sr(S_INC) if p == 4 else None)
            if p == 1: a("s_cbranch_scc1 L_p14")
        a("s_branch L_loop")
        a.label("L_p14")
        SW = 66
        self.stamp("p14")
        a(f"s_cmp_eq_u32 {sr(S_DUM)}, 4\ns_cbranch_scc0 L_dummyb")
        for i in range(16): a(f"v_mov_b32 {vr(V_CI+i)}, 0xff800000")
        a("s_nop 1")
        a.label("L_dummyb")
        ex = dict(zip([2, 6, 8, 12, 14, 18, 20, 24, 26, 30], self.w_reads(self.WD, 0)))
        ex[0] = "s_waitcnt vmcnt(9)"
        ex.update(dict(zip([4, 10, 16, 22, 28], self.w8_loads(self.WD[2], SW))))
        self.period(14, dma=False, kread=False, extra=ex, halves=(0,))
        self.stamp("tail")
        self.tail(SW)
        self.stamp("end")
        self.epilogue(SW)

    def rare(self):
        a = self.a
        T = S_T
        SW = 66
        a.label("L_last")
        a(f"s_waitcnt vmcnt(9)\ns_mov_b32 {sr(T+2)}, 0")
        a.label("L_late")
        xc = f"v_readlane_b32 {sr(S_SX)}, v252, 5\ns_sub_u32 {sr(S_SX)}, {sr(S_SX)}, {sr(S_N)}" if self.o.get("xm", 0) else ""
        a(f"""v_cmp_ne_u32 vcc, {sr(S_N)}, v252
        s_add_u32 {sr(S_XA)}, {sr(S_WS)}, {WS_WF}
        s_addc_u32 {sr(S_XA+1)}, {sr(S_WS+1)}, 0
        s_mov_b32 {sr(S_XA+2)}, {18*BLK}
        s_add_u32 {sr(S_TOFF)}, {sr(S_LB)}, {9*BLK}
        s_mov_b32 {sr(S_INC)}, {-9*BLK}
        s_lshr_b32 {sr(SW)}, {sr(S_W)}, 1
        s_lshl_b32 {sr(SW)}, {sr(SW)}, 30
        s_add_u32 {sr(SW+1)}, {sr(SW)}, {WS_WF + 8*BLK}
        s_add_u32 {sr(SW)}, {sr(SW)}, {WS_WF + 17*BLK}
        {xc}
        s_and_b32 {sr(T)}, vcc_lo, 31
        s_cbranch_scc0 L_lastb
        buffer_load_dword v252, {vr(self.VPL)}, {sr(S_WS,4)}, 0 offen sc1
        s_add_u32 {sr(T+2)}, {sr(T+2)}, 1
        s_waitcnt vmcnt(0)
        s_cmp_lt_u32 {sr(T+2)}, 0x40000
        s_cbranch_scc1 L_late
        s_branch L_lastb""")

    units = [(0, 0), (0, 1), (1, 0), (1, 1), (2, 0)]
    V15 = V_K

    def stage(self, slot, T):
        src = ar(A_O + 36 * slot + 4 * T, 4)
        if slot == 0: return f"ds_write_b128 {vr(self.VST)}, {src} offset:{1024*T}"
        if slot == 2: return f"ds_write_b128 {vr(self.VS0)}, {src} offset:{1024*T}"
        if T < 4: return f"ds_write_b128 {vr(self.VST)}, {src} offset:{SLOT + 1024*T + (4096 if slot == 3 else 0)}"
        return f"{'s_not_b64' if slot == 1 else 's_mov_b64'} exec, {sr(self.MP1,2)}\nds_write_b128 {vr(self.VST)}, {src} offset:{SLOT + 8192}\ns_mov_b64 exec, -1"

    def dwf(self, k, i):
        f = 5 * k + i
        return self.DWT[f >> 1] + 2 * (f & 1)

    def tail(self, SW):
        a, o = self.a, self.o
        mf, pos, start = [], {}, {}
        for t_, qb in ((14, 0), (14, 1), (15, 0), (15, 1), (14, 2), (15, 2), (14, 3), (15, 3)):
            start[t_, qb] = len(mf)
            for Tt in ([0, 1, 2, 3, 8, 4, 5, 6, 7] if qb & 1 else range(9)):
                o_ = ar(A_O + 36 * qb + 4 * Tt, 4)
                pos[t_, qb, Tt] = len(mf)
                mf.append(f"v_mfma_f32_16x16x32_bf16 {o_}, {vr((V_V if t_ == 14 else self.V15)+4*Tt,4)}, {vr(self.P(t_ & 1,qb),4)}, {o_}")
        lst = []
        for qb in range(4):
            for j in range(8):
                lst.append(("e", qb, j))
                if j & 1: lst.append(("c", qb, j // 2))
        lst += [("a", qb, j) for qb in range(4) for j in range(8)]
        items = self.e_items(1, lst, lambda qb, j: 0 if j < 4 else 1, lambda qb: start[15, qb] - 2)
        for it in items[48:]: it["lo"] = o.get("alo", 26)
        v15 = [dict(t=x, c=4, need=pos[15, 0, i // 2], hi=pos[15, 0, i // 2] - o.get("vlead", 7), lo=0 if i < 16 else 2) for i, x in enumerate(self.v_reads(3, self.V15))]
        wr = []
        nown = o.get("nown", 4)
        self.own = [(2, T_) for T_ in range(nown, 9)] + [(3, T_) for T_ in (0, 1, 2, 3, 8)]
        g = o.get("w0", 23)
        for k, (sl, Tt) in enumerate([(0, T_) for T_ in range(9)] + [(1, T_) for T_ in (0, 1, 2, 3, 8)] + [(2, T_) for T_ in range(nown)]):
            g = max(pos[15, sl, Tt] + 5, g)
            wr.append(dict(t=self.stage(sl, Tt), c=o.get("wc", 20), lo=int(g), hi=int(g)) if g < 72 else dict(t=self.stage(sl, Tt), c=4, lo=999))
            g += o.get("wsp", 2.7)
        n0 = len(items) + len(v15)
        wo = []
        for i, x in enumerate(self.w_reads(self.WO, SLOT)):
            r0 = self.WO[i // 5][i % 5][1]
            wo.append(dict(t=("@VM\n" if i == 0 else "") + x, c=4, dep=sorted({n0 + r0 // 4, n0 + (r0 + 3) // 4 if (r0 + 3) // 4 < 9 else n0 + 8}), lo=o.get("wo0", 40) + 3 * i, hi=o.get("wo0", 40) + 3 * i + 2))
        cl = self.conv_loads()
        dl = [f"buffer_load_dwordx4 {vr(self.DWT[r],4)}, {vr(self.VDW)}, {sr(S_WS,4)}, 0 offen offset:{256*r}" for r in range(7)]
        dl.append(f"buffer_load_dwordx2 {vr(self.DWT[7],2)}, {vr(self.VDW)}, {sr(S_WS,4)}, 0 offen offset:{256*7}")
        fr = {96: 9, 100: 18, 104: 45, 112: 27, 116: 36}
        vm = [(x, 0) for x in cl] + [(x, fr.get(self.DWT[r], 0)) for r, x in enumerate(dl)]
        used = {w["lo"] for w in wr}
        vi, g = [], o.get("m0", 24)
        for x, lo in vm:
            g = max(g, lo)
            while int(g) in used: g += 1
            vi.append(dict(t=x, c=8, lo=int(g), hi=int(g)) if g < 72 else dict(t=x, c=8, lo=999))
            g += o.get("msp", 2.2)
        left = self.pack(mf, items + v15 + wr + wo + vi)
        self.done_a = {(qb, j) for qb in range(4) for j in range(8) if self.etext(1, ("a", qb, j)) not in left}
        left = [x for x in left if not x.startswith("v_add_f32")]
        print("tail overflow", self.over, "left", len(left), "adds done", len(self.done_a))
        self.left = left

    def epilogue(self, SW):
        a, o = self.a, self.o
        T = S_T
        p = lambda r: vr(r, 2)
        NB, PT, MK, VO, units, MP1 = self.NB, self.PT, self.MK, self.VO, self.units, self.MP1
        U, GM, G0, GP = self.U, self.GM, self.G0, self.GP
        X2O = self.X2O
        R1, R2, R3 = 230, 231, 249
        LA, LS, M = 10, 226, 48

        def weave(main, fill, per):
            fill = list(fill)
            for x in main:
                a(x)
                for _ in range(per):
                    if fill: a(fill.pop(0))
            return fill
        for x in self.left:
            if not x.startswith("buffer"): a(x)
        lv = [x for x in self.left if x.startswith("buffer")]
        lv += [f"buffer_load_dwordx4 {vr(self.XRS[j],4)}, {vr(VO+j)}, {sr(S_X,4)}, {sr(self.E_COL)} offen" for j in range(2)]
        lv.append(f"buffer_load_dwordx2 {vr(self.XRS[2],2)}, {vr(self.VO8)}, {sr(S_X,4)}, 0 offen offset:256")
        S1 = lambda qb, j: self.S(1, qb, j)
        rounds = [[] for _ in range(6)]
        for qb in range(4):
            rem = [j for j in range(8) if (qb, j) not in self.done_a]
            prs = [j for j in rem if j % 2 == 0 and j + 1 in rem]
            sing = [j for j in rem if (j & ~1) not in prs]
            r_ = 0
            while len(prs) > 1:
                for x, y in zip(prs[0::2], prs[1::2]): rounds[r_].append(f"v_pk_add_f32 {p(S1(qb,x))}, {p(S1(qb,x))}, {p(S1(qb,y))}")
                prs = prs[0::2]; r_ += 1
            for k_, j in enumerate(sing + ([prs[0], prs[0] + 1] if prs else [])): rounds[min(5, max(r_, 2) + k_)].append(f"v_add_f32 {vr(V_L+qb)}, {vr(V_L+qb)}, {vr(S1(qb,j))}")
        for r_ in rounds:
            for x in r_: a(x)
        a(f"v_add_u32 {vr(R1)}, {sr(self.RS1)}, {vr(V_DMA)}\nv_add_u32 {vr(R2)}, {sr(self.RS2)}, {vr(V_DMA)}")
        self.treduce(V_L)
        a(f"ds_write_b32 {vr(self.VLW)}, {vr(V_L)}")
        acc = lambda slot: [f"v_accvgpr_read_b32 {vr(M+i)}, {ar(A_O+36*slot+16+i)}" for i in range(20)]
        a(f"""v_add_u32 {vr(R3)}, {sr(self.RS3)}, {vr(V_DMA)}
        v_add_u32 {vr(LA+1)}, {self.L_L}, {vr(V_DMA)}
        v_and_b32 {vr(LS+1)}, 0xf0, {vr(V_DMA)}
        s_lshl_b32 {sr(T)}, {sr(NB)}, 8
        s_add_u32 {sr(T+8)}, {sr(T)}, {self.L_L}
        v_add_u32 {vr(LS)}, {sr(T+8)}, {vr(LS+1)}""")
        for x in lv: a(x)
        a(f"""s_xor_b32 {sr(T)}, s2, 1
        s_mul_i32 {sr(T)}, {sr(T)}, {IB}
        s_mul_i32 {sr(T+9)}, {sr(NB)}, 5120
        s_add_u32 {sr(T+9)}, {sr(T+9)}, {WS_IB}
        s_add_u32 {sr(T)}, {sr(T)}, {sr(T+9)}
        s_lshl_b32 {sr(T+10)}, {sr(PT)}, 11
        {"" if o.get("oib", 0) else f"s_add_u32 {sr(T+1)}, {sr(T+10)}, {sr(T)}"}
        s_add_u32 {sr(T)}, {sr(T)}, 4096
        s_cmp_eq_u32 {sr(PT)}, 0
        s_cselect_b32 {sr(T)}, 0x40000000, {sr(T)}
        s_mov_b32 {sr(T+2)}, {f32(2.0**100)}
        s_mul_i32 {sr(T+12)}, s2, {IB}
        s_add_u32 {sr(T+12)}, {sr(T+12)}, {sr(T+9)}
        {"" if o.get("oib", 0) else f"s_add_u32 {sr(T+13)}, {sr(T+12)}, {sr(T+10)}"}
        s_waitcnt lgkmcnt(0)
        s_barrier""")
        self.stamp("B1")

        def rd(X, offs):
            L = [[f"ds_read_b128 {vr(X[k][i],4)}, {vr((R1, R2, R3)[k])} offset:{offs[k] + 1024*i}" for i in range(4)] for k in range(3)]
            L8 = [f"ds_read_b128 {vr(X[k][4],4)}, {vr((R1, R2, R3)[k])} offset:8192" for k in range(3)]
            return L, L8

        def adds(X, k, rng):
            return [f"v_pk_add_f32 {p(M+4*i+2*h)}, {p(M+4*i+2*h)}, {p(X[k][i]+2*h)}" for i in rng for h in range(2)]
        X = [[128, 132, 136, 140, 144], [148, 152, 156, 160, 68], [72, 76, 200, 204, 108]]
        PK = 128
        sfl = o.get("sfl", "")
        oib = o.get("oib", 0)
        SI = S_OUT if oib else S_WS
        L, L8 = rd(X, (0, 4096, 0))
        a(f"ds_read_b128 {vr(LA,4)}, {vr(LA+1)}\nds_read_b128 {vr(LS,4)}, {vr(LS)}")
        rest = weave(L[0] + L[1] + L[2], acc(1), 2)
        assert not rest
        a(f"s_mov_b64 exec, {sr(MP1,2)}")
        for x in L8: a(x)
        a(f"""s_mov_b64 exec, -1
        s_waitcnt lgkmcnt(11)
        v_add_f32 {vr(LA)}, {vr(LA)}, {vr(LA+1)}
        v_add_f32 {vr(LA+2)}, {vr(LA+2)}, {vr(LA+3)}
        v_add_f32 {vr(LS)}, {vr(LS)}, {vr(LS+1)}
        v_add_f32 {vr(LA)}, {vr(LA)}, {vr(LA+2)}
        v_add_f32 {vr(LS+2)}, {vr(LS+2)}, {vr(LS+3)}
        v_cmp_nge_f32 vcc, {sr(T+2)}, {vr(LA)}""")
        for x in adds(X, 0, range(4)): a(x)
        a(f"""s_cmp_lg_u64 vcc, 0
        s_cselect_b32 {sr(T+2)}, 1, 0
        s_andn2_b32 {sr(T+2)}, {sr(T+2)}, {sr(S_REDO)}
        s_cbranch_scc1 L_fallback
        v_add_f32 {vr(PK+10)}, {vr(LS)}, {vr(LS+2)}
        v_mov_b32 {vr(PK+11)}, {vr(MK+1)}
        s_waitcnt lgkmcnt(7)""")
        for x in adds(X, 1, range(4)): a(x)
        a("s_waitcnt lgkmcnt(3)")
        a3 = adds(X, 2, range(4))
        cv = [f"v_cvt_pk_bf16_f32 {vr(PK+i)}, {vr(M+2*i)}, {vr(M+2*i+1)}" for i in range(10)]
        for x in a3[:4] + a3[4:6] + cv[:4]: a(x)

        def send(fl):
            a(f"buffer_store_dwordx4 {vr(PK,4)}, {vr(V_DMA)}, {sr(SI,4)}, {sr(S_OS if oib else T+1)} offen {fl}")
            for x in a3[6:] + cv[4:8]: a(x)
            a(f"buffer_store_dwordx4 {vr(PK+4,4)}, {vr(V_DMA)}, {sr(SI,4)}, {sr(S_OS if oib else T+1)} offen offset:1024 {fl}")
            a("s_waitcnt lgkmcnt(0)")
            for kk in range(3):
                for x in adds(XS, kk, [4]): a(x)
            for x in cv[8:]: a(x)
            a(f"buffer_store_dwordx4 {vr(PK+8,4)}, {vr(V_DMA)}, {sr(S_WS,4)}, {sr(T)} offen {fl}")
        XS = X
        self.send = send
        if o.get("xm", 0) and o.get("l2s", 1):
            a(f"s_cmp_eq_u32 {sr(S_SX)}, {sr(S_XC)}\ns_cbranch_scc0 L_far")
            send(sfl)
            a.label("L_sent")
        else: send("sc1")
        self.stamp("sent")
        a(f"s_cmp_eq_u32 {sr(S_VAL)}, 0\ns_cbranch_scc1 L_fin")
        C, UP = 140, 68
        IN = [(200, 204, 226), (164, 168, 252), (192, 196, 172)]
        VXW, VXR, VF, LO = 78, 79, 10, 36
        wr = [self.stage(*e) for e in self.own]

        def inbox(k):
            return [f"buffer_load_dwordx4 {vr(IN[k][0],4)}, {vr(V_DMA)}, {sr(SI,4)}, {sr(S_OR if oib else T+13)} offen sc1",
                    f"buffer_load_dwordx4 {vr(IN[k][1],4)}, {vr(V_DMA)}, {sr(SI,4)}, {sr(S_OR if oib else T+13)} offen offset:1024 sc1",
                    f"buffer_load_dwordx4 {vr(IN[k][2],4)}, {vr(V_DMA+1)}, {sr(S_WS,4)}, {sr(T+12)} offen sc1"]
        for x in inbox(0): a(x)
        n0 = len(a.lines)
        a(f"""s_lshl_b32 {sr(T)}, {sr(NB)}, 12
        s_add_u32 {sr(T)}, {sr(T)}, {sr(T+10)}
        s_add_u32 {sr(T)}, {sr(T)}, {self.X1B}
        v_add_u32 {vr(VXW)}, {sr(T)}, {vr(V_DMA)}
        s_lshl_b32 {sr(T)}, {sr(NB)}, 9
        s_add_u32 {sr(T)}, {sr(T)}, {self.X1B + 4096}
        v_add_u32 {vr(VXR)}, {sr(T)}, {vr(self.VL8)}
        s_lshl_b32 {sr(T)}, {sr(PT)}, 12
        s_add_u32 {sr(T)}, {sr(T)}, {self.X1B}
        v_add_u32 {vr(VF)}, {sr(T)}, {vr(V_DMA)}
        v_xor_b32 {vr(VF+1)}, 4096, {vr(VF)}
        s_lshl_b32 {sr(T)}, {sr(PT)}, 9
        s_add_u32 {sr(T)}, {sr(T)}, {self.X1B + 4096}
        v_add_u32 {vr(VF+2)}, {sr(T)}, {vr(self.VL8)}
        v_xor_b32 {vr(VF+3)}, 512, {vr(VF+2)}
        v_subrev_u32 {vr(R2)}, {2*SLOT}, {vr(R2)}
        v_subrev_u32 {vr(R3)}, {2*SLOT}, {vr(R3)}
        s_waitcnt vmcnt(9)""")
        self.stamp("cv0")
        un = [f"v_lshlrev_b32 {vr(M+2*i)}, 16, {vr(U+i)}\nv_and_b32 {vr(M+1+2*i)}, 0xffff0000, {vr(U+i)}" for i in range(10)]
        w8 = self.w8_loads(self.WO[2], SW + 1)
        for k, src in enumerate((GM, G0, GP)):
            for i in range(5):
                d = vr(C + 4 * i, 4)
                a(f"v_mfma_f32_16x16x16_bf16 {d}, {vr(self.dwf(k, i),2)}, {vr(src+2*i,2)}, {'0' if k == 0 else d}")
                a(w8.pop(0) if i in (0, 3) and w8 else un.pop(0))
        self.stamp("cv1")
        a(f"v_and_b32 {vr(LO+1)}, 0xf0, {vr(V_DMA)}\nv_add_u32 {vr(LO)}, {sr(T+8)}, {vr(LO+1)}\ns_nop 1")
        for i in range(10): a(f"v_pk_mul_f32 {p(C+2*i)}, {p(C+2*i)}, {p(M+2*i)}")
        for i in range(10):
            a(f"v_cvt_pk_bf16_f32 {vr(UP+i)}, {vr(C+2*i)}, {vr(C+2*i+1)}")
        body = a.lines[n0:]; del a.lines[n0:]
        step = max(1, len(body) // len(wr))
        for i, l in enumerate(body):
            if i % o.get("wstep", step) == 0 and wr: a(wr.pop(0))
            a.lines.append(l)
        for x in wr: a(x)
        ac = acc(3)
        a(f"ds_write_b128 {vr(VXW)}, {vr(UP,4)} offset:{X2O}")
        for x in ac[:6]: a(x)
        a(f"ds_write_b128 {vr(VXW)}, {vr(UP+4,4)} offset:{X2O + 1024}")
        for x in ac[6:12]: a(x)
        a(f"""s_mov_b64 exec, {sr(MP1,2)}
        ds_write_b64 {vr(VXR)}, {vr(UP+8,2)} offset:{X2O}
        s_mov_b64 exec, -1""")
        self.stamp("x2")
        for x in inbox(1): a(x)
        for x in ac[12:]: a(x)
        a("s_waitcnt lgkmcnt(0)\ns_barrier")
        self.stamp("B2")
        X = [[128, 132, 136, 140, 144], [148, 152, 156, 160, 188], [16, 20, 24, 28, 32]]
        L, L8 = rd(X, (4096, 4096, 0))
        BU = [[("v", r) for r in (100, 104, 108, 112, 116)], [("v", r) for r in (118, 122, 180, 184, 126)]]
        BO = [self.frag("v", 128), self.frag("v", 146)]
        AB = 80

        def bfrags(dst, off):
            out = []
            for s in range(5):
                for j in range(2):
                    out.append(f"ds_read_b128 {self.rg(dst[j][s],4)}, {vr(VF+j)} offset:{off + 1024*s}" if s < 4 else f"ds_read_b64 {self.rg(dst[j][4],2)}, {vr(VF+2+j)} offset:{off}")
            return out

        def fg(W, Bf):
            out = []
            for s in range(5):
                for u, (tt, j) in enumerate(units):
                    d = vr(AB + 4 * u, 4)
                    if s < 4: out.append(f"v_mfma_f32_16x16x32_bf16 {d}, {self.rg(W[tt][s],4)}, {self.rg(Bf[j][s],4)}, {d}")
                    else: out.append(f"v_mfma_f32_16x16x16_bf16 {d}, {self.rg(W[tt][4],2)}, {self.rg(Bf[j][4],2)}, {d}")
            return out
        xu = []
        for u, (tt, j) in enumerate(units):
            for h in range(2):
                x = self.XRS[j] + 2 * tt + h if tt < 2 else self.XRS[2] + h
                xu += [f"v_lshlrev_b32 {vr(AB+4*u+2*h)}, 16, {vr(x)}", f"v_and_b32 {vr(AB+1+4*u+2*h)}, 0xffff0000, {vr(x)}"]
        a("s_waitcnt vmcnt(14)")
        weave(bfrags(BU, X2O), xu, 2)
        pl = lambda k, i, e: f"v_add_f32 {vr(M+4*i+e)}, {vr(M+4*i+e)}, {vr(X[k][i]+e)}"
        ds = L[0] + L[1] + L[2] + [f"s_not_b64 exec, {sr(MP1,2)}\n" + "\n".join(L8) + "\ns_mov_b64 exec, -1", f"ds_read_b128 {vr(LO,4)}, {vr(LO)} offset:512"]
        nis = [1] * 12 + [3, 1]
        gap = [[] for _ in range(25)]
        tot = [10]
        for g in range(25): tot.append(tot[-1] + (nis[g] if g < 14 else 0))
        A0 = [pl(0, i, e) for i in range(4) for e in range(4)]
        A1 = [pl(1, i, e) for i in range(4) for e in range(4)]
        ib = inbox(2)
        for g, m in enumerate(fg(self.WD, BU)):
            if g % 5 == 0: a(f"s_waitcnt lgkmcnt({min(15, tot[g] - 2 * (g // 5 + 1))})")
            a(m)
            if g == 8: a(f"s_waitcnt lgkmcnt({tot[g] - 14})")
            if g == 16: a(f"s_waitcnt lgkmcnt({tot[g] - 18})")
            if g < 14: a(ds[g])
            if 8 <= g < 14: a(A0.pop(0))
            elif g in (14, 18, 22): a(ib.pop(0))
            elif g >= 14:
                for _ in range(2): a(A0.pop(0) if A0 else A1.pop(0))
        assert not A0 and len(A1) % 2 == 0
        n1 = 16 - len(A1)
        for e in range(n1, 16, 2): a(f"v_pk_add_f32 {p(M+e)}, {p(M+e)}, {p(X[1][e//4]+e%4)}")
        a("s_waitcnt lgkmcnt(0)")
        for x in adds(X, 2, range(4)): a(x)
        a(f"v_add_f32 {vr(LO)}, {vr(LO)}, {vr(LO+1)}\nv_add_f32 {vr(LO+2)}, {vr(LO+2)}, {vr(LO+3)}")
        for kk in range(3):
            for x in adds(X, kk, [4]): a(x)
        a(f"s_mov_b32 {sr(T+2)}, 0\nv_add_f32 {vr(LO)}, {vr(LO)}, {vr(LO+2)}")
        self.stamp("own")
        w, PU = 40, 128
        mo = MK + 3

        def chk(k):
            r = [IN[k][q] + i for q in range(3) for i in range(4)]
            c = [f"v_max3_u32 v46, {vr(r[0])}, {vr(r[1])}, {vr(r[2])}", f"v_max3_u32 v47, {vr(r[3])}, {vr(r[4])}, {vr(r[5])}"]
            for q in range(3): c.append(f"v_max3_u32 v{46+(q&1)}, v{46+(q&1)}, {vr(r[6+2*q])}, {vr(r[7+2*q])}")
            return c + ["v_max_u32 v46, v46, v47", "v_cmp_eq_u32 vcc, -1, v46"]

        def take(k, with_chk):
            r = [IN[k][q] + i for q in range(3) for i in range(4)]
            lp_, mp = r[10], r[11]
            wt = [f"v_min_f32 {vr(w)}, {vr(mo)}, {vr(mp)}", f"v_sub_f32 {vr(w+2)}, {vr(w)}, {vr(mp)}", f"v_sub_f32 {vr(w)}, {vr(w)}, {vr(mo)}",
                  f"v_exp_f32 {vr(w+2)}, {vr(w+2)}", f"v_exp_f32 {vr(w)}, {vr(w)}", f"v_mul_f32 {vr(w+4)}, {vr(w+2)}, {vr(lp_)}",
                  f"v_fmac_f32 {vr(w+4)}, {vr(w)}, {vr(LO)}", f"v_rcp_f32 {vr(w+4)}, {vr(w+4)}", f"v_mul_f32 {vr(w)}, {vr(w)}, {vr(w+4)}",
                  f"v_mul_f32 {vr(w+2)}, {vr(w+2)}, {vr(w+4)}"]
            un = []
            for i in range(10): un += [f"v_lshlrev_b32 {vr(PU+2*i)}, 16, {vr(r[i])}", f"v_and_b32 {vr(PU+1+2*i)}, 0xffff0000, {vr(r[i])}"]
            c = chk(k) if with_chk else []
            for i in range(10):
                a(wt[i])
                if c: a(c.pop(0))
                a(un.pop(0)); a(un.pop(0))
        a("s_waitcnt vmcnt(6)")
        take(0, True)
        a("s_cmp_eq_u64 vcc, 0\ns_cbranch_scc0 L_poll2")
        a.label("L_got")
        self.stamp("got")
        for i in range(10): a(f"v_pk_mul_f32 {p(M+2*i)}, {p(M+2*i)}, {p(w)} op_sel_hi:[1,0]")
        for i in range(10): a(f"v_pk_fma_f32 {p(M+2*i)}, {p(PU+2*i)}, {p(w+2)}, {p(M+2*i)} op_sel_hi:[1,0,1]")
        for i in range(10):
            a(f"v_cvt_pk_bf16_f32 {vr(UP+i)}, {vr(M+2*i)}, {vr(M+2*i+1)}")
            if i == 3: a(f"ds_write_b128 {vr(VXW)}, {vr(UP,4)}")
            if i == 7: a(f"ds_write_b128 {vr(VXW)}, {vr(UP+4,4)} offset:1024")
        a(f"""s_not_b64 exec, {sr(MP1,2)}
        ds_write_b64 {vr(VXR)}, {vr(UP+8,2)}
        s_mov_b64 exec, -1
        s_waitcnt lgkmcnt(0)
        s_barrier""")
        self.stamp("B3")
        for x in bfrags(BO, 0): a(x)
        for g, m in enumerate(fg(self.WO, BO)):
            if g % 5 == 0: a(f"s_waitcnt lgkmcnt({8 - 2 * (g // 5)})" + ("\ns_nop 0" if g == 20 else ""))
            a(m)
        self.stamp("gem")
        a("s_nop 3")
        for j in range(2):
            for tt in range(2):
                u = 2 * tt + j
                for h in range(2): a(f"v_cvt_pk_bf16_f32 {vr(16+4*j+2*tt+h)}, {vr(AB+4*u+2*h)}, {vr(AB+4*u+2*h+1)}")
            a(f"buffer_store_dwordx4 {vr(16+4*j,4)}, {vr(VO+j)}, {sr(S_OUT,4)}, {sr(self.E_COL)} offen {o.get('ofl', '')}")
        a(f"s_cmp_ge_u32 {sr(S_W)}, 2\ns_cbranch_scc1 L_fin")
        for h in range(2): a(f"v_cvt_pk_bf16_f32 {vr(24+h)}, {vr(AB+16+2*h)}, {vr(AB+16+2*h+1)}")
        a(f"buffer_store_dwordx2 v[24:25], {vr(self.VO8)}, {sr(S_OUT,4)}, 0 offen offset:256 {o.get('ofl', '')}")
        self.stamp("fin")

        def poll2():
            a.label("L_poll2")
            for k in (1, 2, 0):
                for x in inbox((k + 2) % 3): a(x)
                a("s_waitcnt vmcnt(6)")
                for x in chk(k): a(x)
                a(f"s_add_u32 {sr(T+2)}, {sr(T+2)}, 1\ns_cmp_eq_u64 vcc, 0\ns_cbranch_scc1 L_take{k}")
            a(f"s_cmp_lt_u32 {sr(T+2)}, 0x10000\ns_cbranch_scc1 L_poll2")
            for k in (0, 1, 2):
                a.label(f"L_take{k}")
                take(k, False)
                a("s_branch L_got")
            if o.get("xm", 0) and o.get("l2s", 1):
                a.label("L_far")
                send("sc1")
                a("s_branch L_sent")
        self.poll2 = poll2

    def fallback(self):
        a = self.a
        T = S_T
        MXR = 208
        a.label("L_fallback")
        a(f"""s_waitcnt vmcnt(0) lgkmcnt(0)
        s_barrier
        s_mov_b32 {sr(S_REDO)}, 1
        s_mov_b32 {sr(S_UG)}, 0x40000000
        {self.xa_srd()}
        s_mov_b32 {sr(S_TOFF)}, {sr(S_LB)}
        s_cmp_eq_u32 {sr(S_DUM)}, 4
        s_cselect_b32 {sr(S_CNT)}, 15, 16""")
        for i in range(4): a(f"v_mov_b32 {vr(MXR+i)}, 0xff800000")
        a.label("L_fb1")
        for g in self.tile_groups(0): a(g)
        a("s_waitcnt vmcnt(0)")
        for x in self.k_reads(0): a(x)
        a("s_waitcnt lgkmcnt(0)")
        for m in self.qk_mfmas(0, czero=True): a(m)
        a("s_nop 7")
        for qb in range(4):
            for i in range(0, 8, 2): a(f"v_max3_f32 {vr(MXR+qb)}, {vr(MXR+qb)}, {vr(self.S(0,qb,i))}, {vr(self.S(0,qb,i+1))}")
        a(f"s_sub_u32 {sr(S_CNT)}, {sr(S_CNT)}, 1\ns_cmp_lg_u32 {sr(S_CNT)}, 0\ns_cbranch_scc1 L_fb1")
        self.greduce([MXR + i for i in range(4)], MXR + 4, "v_max_f32")
        a(f"""v_and_b32 {vr(MXR+4)}, 15, v0
        v_lshlrev_b32 {vr(MXR+4)}, 4, {vr(MXR+4)}
        v_add_u32 {vr(MXR+4)}, {L_SP}, {vr(MXR+4)}
        s_lshl_b32 {sr(T)}, {sr(S_W)}, 2
        s_xor_b32 {sr(T+1)}, {sr(self.NB)}, 1
        v_lshl_add_u32 {vr(MXR+5)}, {sr(self.NB)}, 8, {vr(MXR+4)}
        v_lshl_add_u32 {vr(MXR+4)}, {sr(T+1)}, 8, {vr(MXR+4)}
        v_add_u32 {vr(MXR+6)}, {sr(T)}, {vr(MXR+4)}
        v_add_u32 {vr(MXR+7)}, {sr(T)}, {vr(MXR+5)}""")
        for qb in range(4): a(f"ds_write_b32 {vr(MXR+6+(qb&1))}, {vr(MXR+qb)} offset:{512*(qb>>1)}")
        a("s_waitcnt lgkmcnt(0)\ns_barrier")
        for qb in range(4): a(f"ds_read_b128 {vr(16+4*qb,4)}, {vr(MXR+4+(qb&1))} offset:{512*(qb>>1)}")
        a(f"s_mov_b32 {sr(S_TOFF)}, {sr(S_LB)}")
        for g in self.tile_groups(0) + self.tile_groups(1) + ([] if self.o.get("gs", 0) else self.tile_groups(2)[:8]): a(g)
        a("s_waitcnt lgkmcnt(0)")
        for qb in range(4):
            r = 16 + 4 * qb
            a(f"v_max_f32 {vr(r)}, {vr(r)}, {vr(r+1)}\nv_max3_f32 {vr(r)}, {vr(r)}, {vr(r+2)}, {vr(r+3)}")
            a(f"v_sub_f32 {vr(self.MK+qb)}, 0, {vr(r)}")
        a("s_waitcnt vmcnt(0)")
        for x in self.k_reads(0, V_V): a(x)
        self.loop_init(False)
        if self.o.get("gs", 0): self.loop_init(True)
        a("s_branch L_go")


if __name__ == "__main__":
    opt = json.loads(sys.argv[2]) if len(sys.argv) > 2 else {}
    g = G(opt)
    txt = g.build()
    if opt.get("align", 1):
        from align import align
        for n2 in (1, 2):
            try:
                txt, st = align(txt, chains=[(1, "L_tr")] * 3 + [(1, "L_tr2"), (n2, "L_tr2")] if opt.get("touch", 1) else None)
                break
            except AssertionError as e:
                if n2 == 2: raise
        print("align: promoted %d, padded %d, left %d" % st)
    txt = txt.replace("\n", "\n; stamps " + json.dumps(g.stnames) + "\n; map %d rot %d\n" % (g.mp, opt.get("rsh", 14) if opt.get("rot") else 0), 1)
    open(sys.argv[1], "w").write(txt)
```

```python
import sys, json, math
from common import Asm, vr, ar, sr, kernel_header, kernel_desc
from lay import *

NAME = "standalone__conformer_family_branchformer__speech_kernel"
NH = 2
NWG = 252 + NH
CHAINS = (3, 3)
RING = 4
LDS_RING = RING * TILE
LDS_TOTAL = 163840
SLOT = 4 * TILE
L_WU, L_WQ, L_WK = 0, 41472, 82944
L_XX, L_XR = 126976, 143360
L_QD = 18432
L_XS = L_XX + L_QD
L_MX = 81920
L_PC = LDS_TOTAL - 256
L_DUMP = 123904
L_SP = 147456

S_X, S_WS, S_XA, S_DB, S_W1, S_W2, S_OUT, S_DW = 8, 12, 16, 20, 24, 28, 32, 36
S_W, S_B, S_H, S_QB, S_TOFF, S_CNT, S_DUM, S_LB, S_TOWN, S_TSND, S_VAL, S_REDO = range(40, 52)
S_UG, S_CL = 25, 26
S_PH, S_XC, S_SX = 6, 74, 73
RBASE, RSTR = 12 << 20, 5 << 19
S_RO = 75
S_OS, S_OR = 28, 29
S_N, S_FB = 98, 99
S_INC = 24
S_T = 52
S_ST = 76

V_KA, V_VA, V_VR, V_DMA, V_L, V_VB = 1, 3, 5, 6, 10, 14
V_S, V_CI, V_P, V_K, V_V = 16, 80, 96, 128, 164
V_HI = 200
V_X = 208
A_O, A_Q, A_F = 0, 144, 216

LOG2E = 1.4426950408889634
import struct
def f32(x): return "0x%08x" % struct.unpack("<I", struct.pack("<f", x))[0]


class BAsm(Asm):
    def __init__(self):
        super().__init__()
        self.bg, self.every, self.cnt, self.skip = [], 0, 0, 0

    def __call__(self, s):
        for l in s.split("\n"):
            l = l.strip()
            if not l: continue
            self.lines.append("    " + l)
            if self.bg and self.every and not l.startswith(("s_nop", "v_mov_b32", "v_exp", "v_rcp", "v_rsq", "v_sqrt", "s_add_u32 m0")):
                self.cnt += 1
                if self.cnt >= self.every:
                    self.cnt = 0
                    self.pop()

    def pop(self):
        for x in self.bg.pop(0).split("\n"): self.lines.append("    " + x)

    def flush(self):
        while self.bg: self.pop()
        self.every = 0


class G:
    def __init__(self, opt):
        self.o = opt
        self.a = BAsm()
        self.nst = 0
        self.fill = []

    def stamp(self, name):
        if self.o.get("stamps"):
            if name in self.o.get("skipst", []): return
            if "only" in self.o and name not in self.o["only"]: return
            if self.nst >= 11: return
            self.a(f"{'s_memtime' if self.o.get('cyc') else 's_memrealtime'} {sr(S_ST + 2*self.nst, 2)}")
            self.stnames.append(name)
            self.nst += 1

    def srd(self, dst, lo, hi, n):
        if dst == S_WS and self.o.get("wsoff"):
            self.a(f"s_add_u32 {sr(dst)}, {sr(lo)}, {self.o['wsoff']}\ns_addc_u32 {sr(dst+1)}, {sr(hi)}, 0\ns_mov_b32 {sr(dst+2)}, {n}\ns_mov_b32 {sr(dst+3)}, 0x20000")
            return
        self.a(f"s_mov_b32 {sr(dst)}, {sr(lo)}\ns_mov_b32 {sr(dst+1)}, {sr(hi)}\ns_mov_b32 {sr(dst+2)}, {n}\ns_mov_b32 {sr(dst+3)}, 0x20000")

    def greduce(self, regs, tmp, op="v_add_f32"):
        a = self.a
        for sw in ("32", "16"):
            for i, r in enumerate(regs): a(f"v_mov_b32 {vr(tmp+i)}, {vr(r)}")
            if len(regs) < 3: a("s_nop 1" if len(regs) == 1 else "s_nop 0")
            for i, r in enumerate(regs): a(f"v_permlane{sw}_swap_b32 {vr(r)}, {vr(tmp+i)}")
            for i, r in enumerate(regs): a(f"{op} {vr(r)}, {vr(r)}, {vr(tmp+i)}")

    def treduce(self, r, op="v_add_f32"):
        a = self.a
        a(f"v_permlane32_swap_b32 {vr(r)}, {vr(r+2)}\nv_permlane32_swap_b32 {vr(r+1)}, {vr(r+3)}")
        a(f"{op} {vr(r)}, {vr(r)}, {vr(r+2)}\n{op} {vr(r+1)}, {vr(r+1)}, {vr(r+3)}\ns_nop 1")
        a(f"v_permlane16_swap_b32 {vr(r)}, {vr(r+1)}\n{op} {vr(r)}, {vr(r)}, {vr(r+1)}")

    def rbf(self, r):
        self.a(f"v_cvt_pk_bf16_f32 {vr(r)}, {vr(r)}, {vr(r)}\nv_lshlrev_b32 {vr(r)}, 16, {vr(r)}")

    def ln_tail(self, F, out, t, mimic):
        a = self.a
        p = lambda r: vr(r, 2)
        self.greduce([t, t + 1], t + 2)
        a(f"v_mul_f32 {vr(t+2)}, {f32(1.0/144)}, {vr(t)}")
        a(f"v_mul_f32 {vr(t+3)}, {vr(t+2)}, {vr(t+2)}")
        a(f"v_mov_b32 {vr(t+4)}, {f32(1.0/144)}")
        a(f"v_fma_f32 {vr(t)}, {vr(t+1)}, {vr(t+4)}, -{vr(t+3)}")
        a(f"v_max_f32 {vr(t)}, 0, {vr(t)}")
        if mimic:
            self.rbf(t)
            self.rbf(t + 2)
            a(f"v_add_f32 {vr(t)}, {f32(1e-5)}, {vr(t)}")
            self.rbf(t)
            a(f"v_sqrt_f32 {vr(t)}, {vr(t)}\ns_nop 0")
            self.rbf(t)
            a(f"v_rcp_f32 {vr(t)}, {vr(t)}\ns_nop 0")
        else:
            a(f"v_add_f32 {vr(t)}, {f32(1e-5)}, {vr(t)}")
            a(f"v_rsq_f32 {vr(t)}, {vr(t)}\ns_nop 0")
        a(f"v_mul_f32 {vr(t+2)}, -{vr(t+2)}, {vr(t)}")
        for i in range(18):
            a(f"v_pk_fma_f32 {p(F+2*i)}, {p(F+2*i)}, {p(t)}, {p(t+2)} op_sel_hi:[1,0,0]")
        for i in range(18):
            a(f"v_cvt_pk_bf16_f32 {vr(out+i)}, {vr(F+2*i)}, {vr(F+2*i+1)}")

    def ln_packed(self, X, F, out, t):
        a = self.a
        a(f"v_mov_b32 {vr(t+6)}, 0x3f803f80")
        for k in range(4): a(f"v_mov_b32 {vr(t+k)}, 0")
        for i in range(18):
            a(f"v_dot2_f32_bf16 {vr(t+2*(i&1))}, {vr(X+i)}, {vr(t+6)}, {vr(t+2*(i&1))}")
            a(f"v_dot2_f32_bf16 {vr(t+1+2*(i&1))}, {vr(X+i)}, {vr(X+i)}, {vr(t+1+2*(i&1))}")
        for i in range(2):
            a(f"v_lshlrev_b32 {vr(F+2*i)}, 16, {vr(X+i)}\nv_and_b32 {vr(F+2*i+1)}, 0xffff0000, {vr(X+i)}")
        a(f"v_pk_add_f32 {vr(t,2)}, {vr(t,2)}, {vr(t+2,2)}")
        un = []
        for i in range(2, 18):
            un.append(f"v_lshlrev_b32 {vr(F+2*i)}, 16, {vr(X+i)}\nv_and_b32 {vr(F+2*i+1)}, 0xffff0000, {vr(X+i)}")
        sv = (a.bg, a.every, a.cnt, a.skip)
        n0 = len(a.lines)
        a.bg, a.every = [], 0
        self.ln_tail(F, out, t, True)
        tail = a.lines[n0:]
        del a.lines[n0:]
        a.bg, a.every, a.cnt, a.skip = sv
        k = next(i for i, l in enumerate(tail) if "v_pk_fma" in l)
        for i, l in enumerate(tail[:k]):
            if "s_nop" in l and un: continue_nop = True
            a(l)
            if un and not l.strip().startswith("s_nop"): a(un.pop(0))
        while un: a(un.pop(0))
        for l in tail[k:]: a(l)

    def ln_f32(self, F, out, t):
        a = self.a
        p = lambda r: vr(r, 2)
        a(f"v_pk_add_f32 {p(t)}, {p(F)}, {p(F+2)}\nv_pk_add_f32 {p(t+2)}, {p(F+4)}, {p(F+6)}")
        a(f"v_pk_mul_f32 {p(t+4)}, {p(F)}, {p(F)}\nv_pk_mul_f32 {p(t+6)}, {p(F+2)}, {p(F+2)}")
        for i in range(2, 18):
            if i >= 4: a(f"v_pk_add_f32 {p(t+2*(i&1))}, {p(t+2*(i&1))}, {p(F+2*i)}")
            a(f"v_pk_fma_f32 {p(t+4+2*(i&1))}, {p(F+2*i)}, {p(F+2*i)}, {p(t+4+2*(i&1))}")
        a(f"v_pk_add_f32 {p(t)}, {p(t)}, {p(t+2)}\nv_pk_add_f32 {p(t+4)}, {p(t+4)}, {p(t+6)}")
        a(f"v_add_f32 {vr(t)}, {vr(t)}, {vr(t+1)}\nv_add_f32 {vr(t+1)}, {vr(t+4)}, {vr(t+5)}")
        self.ln_tail(F, out, t, False)

    def gemm_u(self, AF, rf, Bs, ACC, afr, bfr, post, vm_items=(), other=(), lead=7, vm0=0, vmsp=4, at={}, lastk=0):
        a = self.a
        units = [(0, j) for j in range(4)] + [(1, j) for j in range(4)] + [(2, 0)]
        seq, dl = [], {}
        bs = lambda j, o_, n: self.rg((Bs[j][0], Bs[j][1] + o_), n)
        rem = lambda u: (f"v_mfma_f32_16x16x16_bf16 {vr(ACC+4*u,4)}, {rf(AF+18*units[u][0]+16,2)}, {bs(units[u][1],16,2)}, {vr(ACC+4*u,4)}", u)
        A = [afr(t) for t in range(3)]
        Bf = [bfr(j) for j in range(4)]

        def use(t, j, s, k):
            for x in (A[t][2 * s:2 * s + 2] if s < 4 else A[t][8:]) + ([Bf[j][s]] if Bf[j] else []): dl.setdefault(x, k)
        for g in range(4):
            for s in range(4):
                for u in range(3 * g, 3 * g + 3) if g < 3 else []:
                    t, j = units[u]
                    d = vr(ACC + 4 * u, 4)
                    use(t, j, s, len(seq))
                    seq.append((f"v_mfma_f32_16x16x32_bf16 {d}, {rf(AF+18*t+4*s,4)}, {bs(j,4*s,4)}, {'0' if s == 0 else d}", None))
                if s == 0 and g > 0:
                    for u in range(3 * g - 3, 3 * g):
                        use(units[u][0], units[u][1], 4, len(seq)); seq.append(rem(u))
        last = seq[-3:]; seq = seq[:-3]
        ds = sorted(dl.items(), key=lambda e: e[1]) + [(x, 99) for x in other]
        vm_items = list(vm_items)
        lastvm = vm0 - vmsp
        order, ready, q, done = [], [], [], 0

        def issue():
            x, k_ = ds.pop(0); a(x); order.append(k_)

        def wait(k):
            nonlocal done
            idx = [i_ for i_, k_ in enumerate(order) if k_ <= k]
            if idx and max(idx) + 1 > done:
                a(f"s_waitcnt lgkmcnt({min(15, len(order) - 1 - max(idx))})"); done = max(idx) + 1
        while ds and ds[0][1] < 6: issue()
        for k, (m, fin) in enumerate(seq):
            assert not ds or ds[0][1] > k, (k, ds[0])
            wait(k)
            a(m)
            for u_, kk in list(ready):
                if k - kk >= 4: q += post(u_); ready.remove((u_, kk))
            if fin is not None: ready.append((fin, k))
            if k in at: at[k]()
            due = sum(1 for x, k_ in ds if k_ <= k + lead)
            if due == 0 and vm_items and k >= lastvm + vmsp and (len(vm_items) > 1 or k >= lastk):
                a(vm_items.pop(0)); lastvm = k; continue
            cap = 2
            for _ in range(min(due, 3)): issue(); cap -= 1
            if cap == 2:
                if q and q[0].startswith("ds_"): a(q.pop(0)); order.append(99); cap -= 1
                elif ds: issue(); cap -= 1
            while cap > 0 and q and not q[0].startswith("ds_"):
                a(q.pop(0)); cap -= 1
        assert not ready
        while ds: issue()
        wait(98)
        for x in vm_items: a(x)
        for x in q[:4]: a(x)
        a(f"s_nop {max(0, 4 - len(q[:4]))}")
        for m, _ in last: a(m)
        for x in q[4:]: a(x)
        a(f"s_nop {max(0, 6 - len(q[4:]))}")
        for u in range(6, 9):
            for x in post(u): a(x)

    def gemm(self, reads, B, ACC, AF, late=(), at={}, per=2):
        a = self.a
        buf = lambda T: 18 * (T % 6)
        ng = 3 * (4 * per + 1)

        def grp(g):
            r = [reads(T, buf(T)) for T in range(3 * g, 3 * g + 3)]
            return [r[t][per * s + u] for s in range(4) for t in range(3) for u in range(per)] + [r[t][4 * per] for t in range(3)]
        rem = lambda T: f"v_mfma_f32_16x16x16_bf16 {vr(ACC+4*T,4)}, {ar(buf(T)+16,2)}, {vr(B+16,2)}, {vr(ACC+4*T,4)}"
        pend = grp(0) + grp(1) + grp(2) + list(late)
        issued = k = 0

        def issue(n):
            nonlocal issued
            for _ in range(n):
                if issued < len(pend): a(pend[issued]); issued += 1

        def mf(x):
            nonlocal k
            a(x); issue(per if per == 2 else (2 if k % 4 == 0 else 1))
            if k in at: a(at[k])
            k += 1
        issue(self.o.get('look', 12) if per == 2 else self.o.get('look1', 8))
        for g in range(3):
            for s in range(4):
                need = ng * g + 3 * per * (s + 1)
                a(f"s_waitcnt lgkmcnt({min(15, issued - need)})")
                for T in range(3 * g, 3 * g + 3):
                    d = vr(ACC + 4 * T, 4)
                    mf(f"v_mfma_f32_16x16x32_bf16 {d}, {ar(buf(T)+4*s,4)}, {vr(B+4*s,4)}, {'0' if s == 0 else d}")
                if s == 0 and g > 0:
                    for T in range(3 * g - 3, 3 * g): mf(rem(T))
                if g == 1 and s == 0: assert issued <= 2 * ng + 6 * per, "group 2 overwrites group 0 too early"
        issue(99)
        a(f"s_waitcnt lgkmcnt({len(late)})\ns_nop 2")
        for T in range(6, 9): a(rem(T))
        a("s_nop 7")

    def tr_reads(self, ad, rf=ar):
        def f(T, dst):
            out = []
            for s in range(4):
                for u in range(2):
                    out.append(f"ds_read_b64_tr_b16 {rf(dst+4*s+2*u,2)}, {vr(ad+u)} offset:{9216*s + 32*T}")
            out.append(f"ds_read_b64_tr_b16 {rf(dst+16,2)}, {vr(ad+2)} offset:{36864 + 32*T}")
            return out
        return f

    def row_reads(self, ad, sw=None):
        def f(T, dst):
            r = ad if sw is None or T == 8 else sw[T & 1]
            out = []
            for s in range(4):
                for u in range(2):
                    out.append(f"ds_read_b64 {ar(dst+4*s+2*u,2)}, {vr(r)} offset:{4864*T + 64*s + 32*u}")
            out.append(f"ds_read_b64 {ar(dst+16,2)}, {vr(r)} offset:{4864*T + 256}")
            return out
        return f

    def dma_rows(self, jobs, cpr, rstride, vo, vc, n_first, first_waves, lab):
        a = self.a
        mul = {18: 3641, 19: 3450}[cpr]
        dr, dc = 256 // cpr, 256 % cpr
        a(f"s_lshl_b32 {sr(S_T)}, {sr(S_W)}, 6")
        a(f"v_add_u32 {vr(vc)}, {sr(S_T)}, v0")
        a(f"v_mul_u32_u24 {vr(vo)}, {mul}, {vr(vc)}")
        a(f"v_lshrrev_b32 {vr(vo)}, 16, {vr(vo)}")
        a(f"v_mul_u32_u24 {vr(vc+1)}, {cpr}, {vr(vo)}")
        a(f"v_sub_u32 {vr(vc)}, {vr(vc)}, {vr(vc+1)}")
        a(f"v_mul_u32_u24 {vr(vo)}, {rstride}, {vr(vo)}")
        a(f"v_lshl_add_u32 {vr(vo)}, {vr(vc)}, 4, {vr(vo)}")
        a(f"s_lshl_b32 {sr(S_T)}, {sr(S_W)}, 10")
        a(f"v_mov_b32 {vr(vc+1)}, {rstride - 16*cpr}")
        for k in range(n_first):
            if k == n_first - 1:
                a(f"s_cmp_ge_u32 {sr(S_W)}, {first_waves}\ns_cbranch_scc1 {lab}")
            for srd, so, lb in jobs:
                a(f"s_add_u32 m0, {sr(S_T)}, {lb + 4096*k}")
                a("s_nop 0")
                a(f"buffer_load_dwordx4 {vr(vo)}, {sr(srd,4)}, {so} offen lds")
            if k < n_first - 1:
                a(f"v_add_u32 {vr(vc)}, {dc}, {vr(vc)}")
                a(f"v_cmp_le_u32 vcc, {cpr}, {vr(vc)}")
                a(f"v_add_u32 {vr(vo)}, {dr*rstride + 16*dc}, {vr(vo)}")
                a(f"v_subrev_u32 {vr(vc+2)}, {cpr}, {vr(vc)}")
                a(f"v_cndmask_b32 {vr(vc)}, {vr(vc)}, {vr(vc+2)}, vcc")
                a(f"v_cndmask_b32 {vr(vc+2)}, 0, {vr(vc+1)}, vcc")
                a(f"v_add_u32 {vr(vo)}, {vr(vo)}, {vr(vc+2)}")
        a.label(lab)

    def voff_table(self, dst, cpr, rstride, vc, step=256):
        a = self.a
        mul = {18: 29128, 19: 27595}[cpr]
        n = len(dst)
        a(f"s_mov_b32 {sr(S_T)}, {rstride - 16*cpr}")
        a(f"v_mul_u32_u24 {vr(dst[0])}, {mul}, {vr(vc)}")
        for k in range(1, n): a(f"v_add_u32 {vr(dst[k])}, {(step*k % cpr)*mul}, {vr(dst[0])}")
        for k in range(n): a(f"v_lshrrev_b32 {vr(dst[k])}, 19, {vr(dst[k])}")
        for k in range(n): a(f"v_mad_i32_i24 {vr(dst[k])}, {vr(dst[k])}, {sr(S_T)}, {vr(vc+1)}")

    def dma_lin(self, srd, soff, lb, v16, lab):
        a = self.a
        a(f"s_lshl_b32 {sr(S_T)}, {sr(S_W)}, 10")
        for k in range(11):
            if k == 10:
                a(f"s_cmp_ge_u32 {sr(S_W)}, 1\ns_cbranch_scc1 {lab}")
            a(f"s_add_u32 m0, {sr(S_T)}, {lb + 4096*k}")
            a(f"s_add_u32 {sr(S_T+1)}, {sr(S_T)}, {soff + 4096*k}")
            a(f"buffer_load_dwordx4 {vr(v16)}, {sr(srd,4)}, {sr(S_T+1)} offen lds")
        a.label(lab)

    def tr_addr(self, ad, base, swapped, t):
        a = self.a
        a(f"v_lshrrev_b32 {vr(t)}, 2, v0")
        a(f"v_mul_u32_u24 {vr(t)}, 288, {vr(t)}")
        a(f"v_and_b32 {vr(t+1)}, 3, v0")
        a(f"v_lshl_add_u32 {vr(t)}, {vr(t+1)}, 3, {vr(t)}")
        a(f"v_add_u32 {vr(ad+2)}, {base}, {vr(t)}")
        if swapped:
            a(f"v_bfe_u32 {vr(t)}, v0, 4, 1")
            a(f"v_mul_u32_u24 {vr(t)}, {16*288}, {vr(t)}")
            a(f"v_add_u32 {vr(ad)}, {vr(ad+2)}, {vr(t)}")
            a(f"v_sub_u32 {vr(ad+1)}, {vr(ad+2)}, {vr(t)}")
            a(f"v_add_u32 {vr(ad+1)}, {16*288}, {vr(ad+1)}")
        else:
            a(f"v_mov_b32 {vr(ad)}, {vr(ad+2)}")
            a(f"v_add_u32 {vr(ad+1)}, {16*288}, {vr(ad+2)}")

    def row_addr(self, ad, base, t):
        a = self.a
        a(f"v_and_b32 {vr(t)}, 15, v0")
        a(f"v_mul_u32_u24 {vr(t)}, 304, {vr(t)}")
        a(f"v_lshrrev_b32 {vr(t+1)}, 4, v0")
        a(f"v_lshl_add_u32 {vr(t)}, {vr(t+1)}, 3, {vr(t)}")
        a(f"v_add_u32 {vr(ad)}, {base}, {vr(t)}")

    def store_block(self, src, v16, v8, srd, soff, soff2, flags=""):
        a = self.a
        for s in range(4):
            a(f"buffer_store_dwordx4 {vr(src+4*s,4)}, {vr(v16)}, {sr(srd,4)}, {sr(soff)} offen offset:{1024*s} {flags}")
        a(f"buffer_store_dwordx2 {vr(src+16,2)}, {vr(v8)}, {sr(srd,4)}, {sr(soff2)} offen {flags}")

    def entry(self):
        a = self.a
        xm2 = self.o.get("xm", 0) == 2
        kernel_header(a, NAME)
        a(f"s_load_dwordx16 s[56:71], s[0:1], 0")
        a(f"s_load_dwordx8 s[72:79], s[0:1], 64")
        a(f"s_getpc_b64 {sr(S_W1,2)}")
        a.label("L_pf")
        a(f"""s_mov_b32 {sr(S_W1+2)}, L_dummy-L_pf
        s_mov_b32 {sr(S_W1+3)}, 0x20000
        v_lshlrev_b32 v2, 4, v0
        buffer_load_dwordx4 v[252:255], v2, {sr(S_W1,4)}, 0 offen
        s_lshl_b32 s3, s2, 9
        s_and_b32 s3, s3, 0x7000
        buffer_load_dwordx4 v[252:255], v2, {sr(S_W1,4)}, s3 offen
        v_lshrrev_b32 v1, 6, v0
        {"s_bfe_u32 s6, s2, 0x10003" if xm2 else f"s_sub_u32 s2, s2, {NH}"}
        v_readfirstlane_b32 {sr(S_W)}, v1
        s_memrealtime s[4:5]""")
        if xm2:
            a(f"""s_and_b32 s7, s2, 7
            s_lshl1_add_u32 s7, s7, s6
            s_mov_b32 s6, s2
            s_andn2_b32 s2, s2, 15
            s_or_b32 s2, s2, s7""")
        a(f"""s_cmp_ge_u32 s2, {NWG - NH}
        s_cbranch_scc1 L_wfuse""")
        if self.o.get("late"):
            m_, v_, n_ = self.o["late"]
            a(f"""s_and_b32 s3, s2, {m_}
            s_cmp_lg_u32 s3, {v_}
            s_cbranch_scc1 L_nl
            s_memrealtime s[4:5]
            s_waitcnt lgkmcnt(0)
            s_add_u32 s6, s4, {n_}
            L_lt:
            s_memrealtime s[4:5]
            s_waitcnt lgkmcnt(0)
            s_sub_u32 s7, s6, s4
            s_cmp_gt_i32 s7, 0
            s_cbranch_scc1 L_lt
            L_nl:""")
        if self.o.get("stamps"):
            a("s_memrealtime s[100:101]" if not self.o.get("cyc") else "s_memtime s[100:101]")
        self.mp = 2

    def vm_since(self, mark):
        return sum(1 for l in self.a.lines[mark:] if l.strip().startswith("buffer_"))

    def phase_a(self):
        a, o = self.a, self.o
        XR, XF, XA, ACC, G_, PK = 16, 34, 146, 110, 16, 164
        B4, XD = 16, 88
        VS, VSW, VR4, MXA, MXR, L8, TRU, TRQ, TRQ8, RK, TM = 200, 204, 208, 212, 213, 214, 215, 218, 221, 224, 228
        VK, VU = list(range(182, 193)), list(range(193, 200)) + list(range(104, 108))
        AQ1 = 200
        t0, t1, t2 = 250, 251, 227
        T = S_T
        WV, W10, UOFF, M1, PUB, M3 = 72, 70, 71, 69, 68, 65
        PH = 2
        FA0 = 250 * TILE if o.get("rot", 0) == 2 else WS_F
        if o.get("xm", 0) == 2: PH = S_PH
        if o.get("xm", 0) == 1:
            PH = S_PH
            a(f"""s_mov_b32 {sr(PH)}, s2
            s_bfe_u32 {sr(T)}, s2, 0x10003
            s_and_b32 {sr(T+1)}, s2, 7
            s_lshl1_add_u32 {sr(T)}, {sr(T+1)}, {sr(T)}
            s_and_b32 {sr(T+1)}, s2, 0xf0
            s_or_b32 {sr(T)}, {sr(T)}, {sr(T+1)}
            s_add_u32 s2, s2, 4
            s_cmp_lt_u32 {sr(T)}, 248
            s_cselect_b32 s2, {sr(T)}, s2""")
        a(f"""v_and_b32 v0, 63, v0
        s_bfe_u32 {sr(S_B)}, s2, 0x10001
        s_lshr_b32 {sr(S_QB)}, s2, 2
        s_lshr_b32 {sr(T)}, {sr(S_W)}, 1
        s_xor_b32 {sr(T)}, {sr(T)}, s2
        s_andn2_b32 {sr(T)}, 1, {sr(T)}
        s_lshl1_add_u32 {sr(T+3)}, {sr(S_QB)}, {sr(T)}
        s_mul_i32 {sr(T)}, {sr(S_B)}, {NT}
        s_add_u32 {sr(T+1)}, {sr(T+3)}, {sr(T)}
        s_and_b32 {sr(T+2)}, {sr(S_W)}, 1
        s_lshl1_add_u32 {sr(T+2)}, {sr(T+1)}, {sr(T+2)}
        v_lshlrev_b32 {vr(V_DMA)}, 4, v0
        s_mul_i32 {sr(T+1)}, {sr(T+2)}, {16*288}
        s_mul_i32 {sr(S_LB)}, {sr(S_W)}, {BLK}
        s_add_u32 m0, {sr(S_LB)}, {L_XS}
        s_mov_b32 {sr(S_X+2)}, 2304000
        s_mov_b32 {sr(S_X+3)}, {sr(S_W1+3)}
        s_add_u32 {sr(S_CNT)}, {sr(T+1)}, 4096
        s_waitcnt lgkmcnt(0)
        s_mov_b64 {sr(S_X,2)}, s[56:57]""")
        for k in range(4): a(f"buffer_load_dwordx4 {vr(V_DMA)}, {sr(S_X,4)}, {sr(T+1)} offen offset:{1024*k} lds")
        a(f"s_add_u32 m0, {sr(S_LB)}, {L_XS + 4096}\ns_mov_b32 exec_hi, 0\nbuffer_load_dwordx4 {vr(V_DMA)}, {sr(S_X,4)}, {sr(S_CNT)} offen lds\ns_mov_b32 exec_hi, -1")
        mx = len(a.lines)
        a(f"""s_add_u32 {sr(S_LB)}, {sr(S_LB)}, {L_XS}
        s_and_b32 {sr(S_H)}, s2, 1
        s_lshl1_add_u32 {sr(S_TOWN)}, {sr(S_QB)}, {sr(S_H)}
        s_cmp_lt_u32 {sr(S_TOWN)}, {NT}
        s_cselect_b32 {sr(S_VAL)}, 1, 0
        s_add_u32 {sr(S_TOWN)}, {sr(S_TOWN)}, {sr(T)}""")
        SQ, SK, SU = S_W2, S_W1, S_XA
        self.srd(SU, 66, 67, 82944)
        self.srd(SQ, 58, 59, 41472)
        self.srd(SK, 60, 61, 41472)
        a(f"s_lshr_b32 {sr(T)}, {sr(PH)}, 3\ns_lshl_b32 {sr(T)}, {sr(T)}, 12\ns_lshl_b32 {sr(W10)}, {sr(S_W)}, 10\ns_add_u32 {sr(T)}, {sr(T)}, {sr(W10)}")
        a(f"buffer_load_dwordx4 v[252:255], {vr(V_DMA)}, {sr(SU,4)}, {sr(T)} offen")
        for srd_, rot in ((SQ, 82), (SK, 41)):
            a(f"s_add_u32 {sr(T+1)}, {sr(T)}, {(128 - rot) * 1024}\ns_and_b32 {sr(T+1)}, {sr(T+1)}, {127 * 1024}")
            a(f"buffer_load_dwordx4 v[252:255], {vr(V_DMA)}, {sr(srd_,4)}, {sr(T+1)} offen")
        self.srd(S_OUT, 74, 75, 2304000)
        self.srd(S_DB, 76, 77, 256)
        if o.get("rot", 0):
            a(self.region(S_RO, 4))
            if o.get('rbad'): a(f"s_add_u32 {sr(S_RO)}, {sr(S_RO)}, {o['rbad']}")
            if o["rot"] == 1:
                a(f"""s_add_u32 {sr(S_WS)}, s78, {sr(S_RO)}
                s_addc_u32 {sr(S_WS+1)}, s79, 0
                s_mov_b32 {sr(S_WS+2)}, {self.wsn()}
                s_mov_b32 {sr(S_WS+3)}, 0x20000""")
            else: self.srd(S_WS, 78, 79, 256 << 20)
        else: self.srd(S_WS, 78, 79, WS_END)
        def tlb():
            a(f"v_lshlrev_b32 v249, 21, v0")
            for ch in o.get("tlbw", "wdo"): a(f"buffer_load_dword v252, v249, {sr(dict(w=S_WS, d=S_DB, o=S_OUT)[ch],4)}, 0 offen")
        if o.get("tlb", 0) == 1: tlb()
        if o.get("tlb", 3) == 3:
            if o.get("rot", 0) == 2:
                a(f"""s_bfe_u32 {sr(T)}, {sr(PH)}, 0x40003
                s_sub_u32 {sr(T+1)}, {sr(T)}, 9
                s_cselect_b32 {sr(T)}, {sr(T)}, {sr(T+1)}
                v_mov_b32 v249, 0
                s_lshl_b32 {sr(T+1)}, {sr(T)}, 21
                s_cmp_lt_u32 {sr(T)}, 6
                s_cbranch_scc0 L_tl1
                s_sub_u32 {sr(T+4)}, {sr(S_RO)}, {4 << 21}
                s_cmp_lt_u32 {sr(T)}, 4
                s_cselect_b32 {sr(T+4)}, {1 << 21}, {sr(T+4)}
                s_add_u32 {sr(T+1)}, {sr(T+1)}, {sr(T+4)}
                buffer_load_dword v252, v249, {sr(S_WS,4)}, {sr(T+1)} offen
                s_branch L_tl3
                L_tl1:
                s_cmp_eq_u32 {sr(T)}, 7
                s_cbranch_scc1 L_tl2
                s_and_b32 {sr(T)}, {sr(T)}, 8
                s_lshl_b32 {sr(T)}, {sr(T)}, 18
                buffer_load_dword v252, v249, {sr(S_OUT,4)}, {sr(T)} offen
                s_branch L_tl3""")
            else:
                a(f"""s_bfe_u32 {sr(T)}, {sr(PH)}, 0x30003
                s_lshl_b32 {sr(T)}, {sr(T)}, 21
                v_mov_b32 v249, 0
                s_cmp_lt_u32 {sr(T)}, {5 << 21}
                s_cbranch_scc0 L_tl1
                buffer_load_dword v252, v249, {sr(S_WS,4)}, {sr(T)} offen
                s_branch L_tl3
                L_tl1:
                s_sub_u32 {sr(T)}, {sr(T)}, {5 << 21}
                s_cmp_lt_u32 {sr(T)}, {2 << 21}
                s_cbranch_scc0 L_tl2
                buffer_load_dword v252, v249, {sr(S_OUT,4)}, {sr(T)} offen
                s_branch L_tl3""")
            a(f"""L_tl2:
            s_or_b32 s4, s4, 1
            v_lshlrev_b32 v249, 8, v0
            v_mov_b32 v250, s4
            s_lshl2_add_u32 s5, {sr(PH)}, {sr(S_W)}
            s_cmp_eq_u32 s5, {56 * 4}
            s_cbranch_scc0 L_tl4
            buffer_store_dword v250, v249, {sr(S_DB,4)}, 0 offen sc1
            s_branch L_tl3
            L_tl4:
            buffer_load_dword v252, v249, {sr(S_DB,4)}, 0 offen offset:128
            L_tl3:""")
            self.vm_adj = -3
        if o.get("tst") and o["tst"][0] == "beg": self.tstore()
        if o.get("tl4"):
            a(f"""s_mul_i32 {sr(T)}, {sr(S_TOWN)}, {TILE}
            v_lshlrev_b32 v249, 12, v0
            v_add_u32 v249, {sr(T)}, v249
            s_mov_b64 exec, 7
            buffer_load_dword v252, v249, {sr(S_WS,4)}, 0 offen
            s_mov_b64 exec, -1""")
        if o.get("stamps"): a(f"s_mov_b64 {sr(S_ST,2)}, s[100:101]"); self.stnames.append("start"); self.nst = 1
        self.stamp("xiss")
        a(f"""s_cmp_lt_u32 {sr(T+3)}, {NT}
        s_cselect_b32 {sr(WV)}, 1, 0
        s_mov_b32 {sr(WV+1)}, {sr(T+2)}
        s_mul_i32 {sr(UOFF)}, {sr(S_H)}, 288
        s_cmp_eq_u32 {sr(S_W)}, 0
        s_cselect_b32 {sr(M1)}, 0, {L_DUMP}
        s_cmp_lt_u32 {sr(S_W)}, 3
        s_cselect_b32 {sr(M3)}, {sr(W10)}, {L_DUMP}""")
        half = lambda g_: "s_mov_b32 exec_hi, 0\n" + g_ + "\ns_mov_b32 exec_hi, -1"
        gu = [f"s_add_u32 m0, {sr(W10 if k < 10 else M1)}, {L_WU + 4096*k}\ns_add_u32 {sr(S_CNT)}, {sr(UOFF)}, {4096*k + 288*(256*k//18)}\nbuffer_load_dwordx4 {vr(VU[k])}, {sr(SU,4)}, {sr(S_CNT)} offen lds" for k in range(11)]
        gu[10] = half(gu[10])
        gq = [f"s_add_u32 m0, {sr(W10 if k < 10 else M1)}, {L_WQ + 4096*k}\ns_add_u32 {sr(S_CNT)}, {sr(W10)}, {4096*k}\nbuffer_load_dwordx4 {vr(V_DMA)}, {sr(SQ,4)}, {sr(S_CNT)} offen lds" for k in range(11)]
        gq[10] = half(gq[10])
        gk = [f"s_add_u32 m0, {sr(W10 if k < 10 else M3)}, {L_WK + 4096*k}\ns_mov_b32 {sr(S_CNT)}, {4096*k - 16*(256*k//19)}\nbuffer_load_dwordx4 {vr(VK[k])}, {sr(SK,4)}, {sr(S_CNT)} offen lds" for k in range(11)]
        a(f"s_lshl_b32 {sr(T)}, {sr(S_W)}, 6\nv_add_u32 {vr(t0)}, {sr(T)}, v0\nv_lshlrev_b32 {vr(t1)}, 4, {vr(t0)}")
        self.voff_table(VU, 18, 576, t0)
        npre = o.get("npre", 3)
        a.bg, a.every, a.cnt = gu[:npre], o.get("evpre", 40), 0
        self.voff_table(VK, 19, 288, t0)
        xa0, xa1, xa2 = TM, TM + 1, TM + 2
        a(f"""v_and_b32 {vr(t0)}, 15, v0
        v_lshrrev_b32 {vr(t1)}, 5, v0
        v_lshlrev_b32 {vr(t1)}, 3, {vr(t1)}
        v_xor_b32 {vr(t1)}, {vr(t0)}, {vr(t1)}
        v_lshlrev_b32 {vr(t1)}, 4, {vr(t1)}
        v_lshrrev_b32 {vr(t2)}, 4, v0
        v_lshl_add_u32 {vr(V_KA)}, {vr(t2)}, 9, {vr(t1)}
        v_lshrrev_b32 {vr(t1)}, 3, {vr(t0)}
        v_lshlrev_b32 {vr(t1)}, 1, {vr(t1)}
        v_xor_b32 {vr(t1)}, {vr(t2)}, {vr(t1)}
        v_lshl_add_u32 {vr(t1)}, {vr(t0)}, 2, {vr(t1)}
        v_lshlrev_b32 {vr(V_KA+1)}, 3, {vr(t1)}
        v_lshlrev_b32 {vr(L8)}, 3, v0
        v_lshlrev_b32 {vr(MXR)}, 4, {vr(t0)}
        v_add_u32 {vr(MXR)}, {L_MX}, {vr(MXR)}
        v_add_u32 {vr(MXA)}, {sr(S_W)}, {vr(t2)}
        v_and_b32 {vr(MXA)}, 3, {vr(MXA)}
        v_lshl_add_u32 {vr(MXA)}, {vr(MXA)}, 8, {vr(MXR)}
        s_lshl_b32 {sr(T)}, {sr(S_W)}, 2
        v_add_u32 {vr(MXA)}, {sr(T)}, {vr(MXA)}
        v_mul_u32_u24 {vr(xa2)}, 288, {vr(t0)}
        v_lshl_add_u32 {vr(xa2)}, {vr(t2)}, 3, {vr(xa2)}
        v_add_u32 {vr(xa2)}, {sr(S_LB)}, {vr(xa2)}
        v_and_b32 {vr(t1)}, 1, {vr(t2)}
        v_lshlrev_b32 {vr(t1)}, 5, {vr(t1)}
        v_add_u32 {vr(xa0)}, {vr(xa2)}, {vr(t1)}
        v_xor_b32 {vr(t1)}, 32, {vr(t1)}
        v_add_u32 {vr(xa1)}, {vr(xa2)}, {vr(t1)}
        s_mul_i32 {sr(S_LB)}, {sr(S_W)}, {TILE}
        v_lshrrev_b32 {vr(t0)}, 2, v0
        v_bfe_u32 {vr(t1)}, v0, 1, 1
        v_lshlrev_b32 {vr(t1)}, 3, {vr(t1)}
        v_xor_b32 {vr(t1)}, {vr(t0)}, {vr(t1)}
        v_lshlrev_b32 {vr(t1)}, 4, {vr(t1)}
        v_and_b32 {vr(t2)}, 3, v0
        v_lshl_add_u32 {vr(t1)}, {vr(t2)}, 9, {vr(t1)}
        v_and_b32 {vr(V_VA)}, 1, v0
        v_lshl_add_u32 {vr(t1)}, {vr(V_VA)}, 3, {vr(t1)}
        s_and_b32 {sr(T)}, {sr(S_W)}, 1
        s_lshl_b32 {sr(T)}, {sr(T)}, 12
        s_add_u32 {sr(T+1)}, {sr(T)}, {sr(S_LB)}
        s_xor_b32 {sr(T)}, {sr(T)}, 4096
        s_add_u32 {sr(T)}, {sr(T)}, {sr(S_LB)}
        v_add_u32 {vr(V_VA)}, {sr(T)}, {vr(t1)}
        v_add_u32 {vr(V_VB)}, {sr(T+1)}, {vr(t1)}
        v_xor_b32 {vr(V_VA+1)}, 8, {vr(V_VA)}
        v_xor_b32 {vr(V_VB+1)}, 8, {vr(V_VB)}
        v_lshrrev_b32 {vr(t1)}, 5, v0
        v_lshlrev_b32 {vr(t1)}, 1, {vr(t1)}
        v_xor_b32 {vr(t1)}, {vr(t2)}, {vr(t1)}
        v_lshl_add_u32 {vr(t1)}, {vr(t0)}, 2, {vr(t1)}
        v_lshlrev_b32 {vr(t1)}, 3, {vr(t1)}
        v_add_u32 {vr(V_VR)}, {sr(S_LB)}, {vr(t1)}
        v_add_u32 {vr(V_DMA+1)}, 4096, {vr(V_DMA)}
        v_add_u32 {vr(V_DMA+2)}, 8192, {vr(V_DMA)}""")
        self.tr_addr(TRU, L_WU, True, t0)
        a(f"s_lshl_b32 {sr(T)}, {sr(S_W)}, 6\ns_add_u32 {sr(T)}, {sr(T)}, {L_WQ - L_WU}")
        for k in range(3):
            a(f"v_add_u32 {vr(TRQ+k)}, {sr(T)}, {vr(TRU+k)}\nv_add_u32 {vr(TRQ8+k)}, {L_WQ - L_WU + 256}, {vr(TRU+k)}")
        self.row_addr(RK + 2, L_WK + 8 * 4864, t0)
        a(f"""s_mul_i32 {sr(T)}, {sr(S_W)}, {2*4864}
        s_sub_u32 {sr(T)}, {sr(T)}, {8*4864}
        v_add_u32 {vr(t1)}, {sr(T)}, {vr(RK+2)}
        v_bfe_u32 {vr(t0)}, v0, 2, 1
        v_mul_u32_u24 {vr(t0)}, 4864, {vr(t0)}
        v_add_u32 {vr(RK)}, {vr(t1)}, {vr(t0)}
        v_sub_u32 {vr(RK+1)}, {vr(t1)}, {vr(t0)}""")
        for j in range(4):
            a(f"""s_add_u32 {sr(T)}, {sr(S_W)}, {j}
            s_and_b32 {sr(T)}, {sr(T)}, 3
            s_lshl_b32 {sr(T+1)}, {sr(T)}, 12
            s_add_u32 {sr(T+1)}, {sr(T+1)}, {L_XX}
            v_add_u32 {vr(VS+j)}, {sr(T+1)}, {vr(V_DMA)}
            s_lshl_b32 {sr(T+1)}, {sr(T)}, 9
            s_add_u32 {sr(T+1)}, {sr(T+1)}, {L_XR}
            v_add_u32 {vr(VR4+j)}, {sr(T+1)}, {vr(L8)}
            v_add_u32 {vr(VSW+j)}, {sr(W10)}, {vr(VS+j)}""")
        a(f"""s_sub_u32 {sr(T+2)}, 63, {sr(S_H)}
        s_add_u32 {sr(T+3)}, {sr(S_W)}, 60
        s_cmp_ge_u32 {sr(T+3)}, {sr(T+2)}
        s_cselect_b32 {sr(S_DUM)}, 4, 99
        s_mov_b32 {sr(S_REDO)}, 0
        s_mov_b32 {sr(S_TOFF)}, {sr(S_LB)}
        s_lshl_b32 {sr(PUB)}, {sr(S_TOWN)}, 8
        s_add_u32 {sr(PUB)}, {sr(PUB)}, {FA0}
        s_and_b32 {sr(T)}, {sr(S_W)}, 1
        s_lshl_b32 {sr(T)}, {sr(T)}, 7
        s_add_u32 {sr(PUB)}, {sr(PUB)}, {sr(T)}
        s_lshr_b32 {sr(T)}, {sr(S_W)}, 1
        s_and_b32 {sr(T)}, {sr(T)}, {sr(S_VAL)}
        s_cmp_eq_u32 {sr(T)}, 1
        s_cselect_b32 {sr(PUB)}, {sr(PUB)}, 0x40000000
        s_lshl_b32 {sr(S_FB)}, s2, 8
        s_add_u32 {sr(S_FB)}, {sr(S_FB)}, {WS_F + 250*256}
        s_mul_i32 {sr(T)}, {sr(S_H)}, 1792
        s_sub_u32 {sr(T)}, {sr(T)}, 768
        s_mul_i32 {sr(T+1)}, {sr(S_H)}, 62
        s_cmp_eq_u32 {sr(S_QB)}, {sr(T+1)}
        s_cselect_b32 {sr(T)}, 0, {sr(T)}
        v_mov_b32 {vr(self.VPL)}, 0x40000000
        s_xor_b32 {sr(T+1)}, {sr(S_FB)}, 256
        s_add_u32 {sr(T)}, {sr(T)}, {sr(S_FB)}
        v_writelane_b32 {vr(self.VPL)}, {sr(S_FB)}, 0
        v_writelane_b32 {vr(self.VPL)}, {sr(T+1)}, 1
        v_writelane_b32 {vr(self.VPL)}, {sr(T)}, 2
        s_mov_b32 {sr(T)}, {WS_F + 502*256}
        s_mov_b32 {sr(T+1)}, {WS_F + 503*256}
        v_writelane_b32 {vr(self.VPL)}, {sr(T)}, 3
        v_writelane_b32 {vr(self.VPL)}, {sr(T+1)}, 4
        s_sub_u32 {sr(S_FB)}, {sr(S_FB)}, {L_PC}""")
        if o.get("xm", 0):
            a(f"""s_getreg_b32 {sr(S_XC)}, hwreg(HW_REG_XCC_ID, 0, 4)
            s_xor_b32 {sr(T)}, s2, 1
            s_lshl_b32 {sr(T)}, {sr(T)}, 8
            s_add_u32 {sr(T)}, {sr(T)}, {WS_F + 250*256 + 4}
            v_writelane_b32 {vr(self.VPL)}, {sr(T)}, 5""")
        a.flush()
        if o.get("tlb", 0) == 2: tlb()
        self.stamp("pre")
        if o.get("es", 0) == 0: self.epi_setup()
        self.stamp("es")
        nx = self.vm_since(mx) + getattr(self, "vm_adj", 0)
        if o.get("touch", 1):
            a(f"""s_mov_b64 exec, 0
            s_cmp_eq_u32 {sr(S_W)}, 0
            s_cbranch_scc1 L_tr
            s_cmp_eq_u32 {sr(S_W)}, 1
            s_cbranch_scc1 L_t0
            s_cmp_eq_u32 {sr(S_W)}, 2
            s_cbranch_scc1 L_t1
            s_branch L_t2""")
            self.rare()
            a.raw(".p2align 12")
            a.label("L_tr")
            a("s_mov_b64 exec, -1")
        nlate = o.get("nlate", 0)
        for g_ in gu[npre:npre + nlate]: a(g_)
        a(f"s_waitcnt vmcnt({nx + nlate})")
        self.stamp("xarr")
        for s in range(4):
            a(f"ds_read_b64 {vr(XR+4*s,2)}, {vr(xa0)} offset:{64*s}\nds_read_b64 {vr(XR+4*s+2,2)}, {vr(xa1)} offset:{64*s}")
        a(f"ds_read_b64 {vr(XR+16,2)}, {vr(xa2)} offset:256")
        a(f"""s_and_b32 {sr(T)}, {sr(S_W)}, 1
        s_mul_i32 {sr(T+2)}, {sr(S_TOWN)}, {TILE}
        {f"s_add_u32 {sr(T+2)}, {sr(T+2)}, {sr(S_RO)}" if o.get("rot", 0) == 2 else ""}
        s_cmp_eq_u32 {sr(S_VAL)}, 1
        s_cselect_b32 {sr(T+2)}, {sr(T+2)}, 0x40000000
        s_lshl_b32 {sr(T+3)}, {sr(T)}, 8
        s_add_u32 {sr(T+3)}, {sr(T+3)}, {sr(T+2)}
        s_add_u32 {sr(T+4)}, {sr(T+3)}, 4096
        s_lshl_b32 {sr(T+5)}, {sr(T)}, 9
        s_add_u32 {sr(T+5)}, {sr(T+5)}, {sr(T+2)}
        s_add_u32 {sr(T+5)}, {sr(T+5)}, 8192
        s_waitcnt lgkmcnt(0)""")
        wl = gq + gk
        a.bg, a.every, a.cnt = gu[npre + nlate:] + [wl.pop(0) for _ in range(o.get("nql", 11))], o.get("evln", 5), 0
        self.ln_packed(XR, XF, XA, TM)
        a.flush()
        self.stamp("ln")
        if o.get("tst") and o["tst"][0].startswith("pub"): self.tstore()
        a(f"s_cmp_lt_u32 {sr(S_W)}, 2\ns_cbranch_scc1 L_nop")
        w16 = o.get("w16", 0)
        pair = lambda d, src: [f"v_mov_b32 {vr(d)}, {vr(src)}\nv_mov_b32 {vr(d+1)}, {vr(src+1)}", f"v_mov_b32 {vr(d+2)}, {vr(src)}\nv_mov_b32 {vr(d+3)}, {vr(src+1)}", "",
                               f"v_permlane16_swap_b32 {vr(d)}, {vr(d+2)}\nv_permlane16_swap_b32 {vr(d+1)}, {vr(d+3)}"]
        pr = pair(XR, XA + 16)
        for s in range(4):
            a(f"buffer_store_dwordx4 {vr(XA+4*s,4)}, {vr(V_KA)}, {sr(S_WS,4)}, {sr(T+3+(s>>1))} offen offset:{2048*(s&1)} {o.get('pfl', 'sc1')}")
            if w16 & 1: a(pr[s])
        if w16 & 1:
            a(f"s_mov_b32 exec_lo, 0xffff\ns_mov_b32 exec_hi, 0xffff\nbuffer_store_dwordx4 {vr(XR,4)}, {vr(V_KA+1)}, {sr(S_WS,4)}, {sr(T+5)} offen {o.get('pfl', 'sc1')}\ns_mov_b64 exec, -1")
        else: a(f"buffer_store_dwordx2 {vr(XA+16,2)}, {vr(V_KA+1)}, {sr(S_WS,4)}, {sr(T+5)} offen {o.get('pfl', 'sc1')}")
        a(f"s_waitcnt vmcnt({5 + o.get('nql', 11)})\ns_branch L_bar1")
        a.label("L_nop")
        if o.get("touch", 1):
            a(f"s_mov_b64 exec, 0\ns_cmp_eq_u32 {sr(S_W)}, 0\ns_cbranch_scc1 L_t3\ns_branch L_t4")
            a.label("L_tr2")
            a("s_mov_b64 exec, -1")
        a(f"s_waitcnt vmcnt({o.get('nql', 11)})")
        a.label("L_bar1")
        self.stamp("pub")
        xw = [f"ds_write_b128 {vr(VS)}, {vr(XA+4*s,4)} offset:{1024*s}" for s in range(4)] + [f"ds_write_b64 {vr(VR4)}, {vr(XA+16,2)}"]
        self.stamp("tch")
        PA = 249
        a(f"""v_add_u32 {vr(V_KA)}, {sr(S_LB)}, {vr(V_KA)}
        v_add_u32 {vr(V_KA+1)}, {sr(S_LB)}, {vr(V_KA+1)}
        s_mul_i32 {sr(T)}, {sr(S_B)}, {NT}
        s_mul_i32 {sr(T+1)}, {sr(S_H)}, 63
        s_add_u32 {sr(T)}, {sr(T)}, {sr(T+1)}
        s_lshl_b32 {sr(T)}, {sr(T)}, 8
        s_add_u32 {sr(T)}, {sr(T)}, {FA0}
        s_cmp_eq_u32 {sr(S_W)}, 0
        {"" if o.get("gatepos", 0) else f"s_cselect_b32 {sr(T)}, {sr(T)}, 0x40000000"}
        v_lshl_add_u32 {vr(PA)}, v0, 8, {sr(T)}
        {"" if o.get("rot", 0) else self.xa_srd()}
        s_waitcnt lgkmcnt(0)""")
        self.stamp("w1")
        a("s_barrier")
        self.stamp("bar1")
        m_b1 = len(a.lines)
        ro = sr(S_RO) if o.get("rot", 0) == 2 else "0"
        poll = lambda r: f"buffer_load_dword {vr(r)}, {vr(PA)}, {sr(S_WS,4)}, {ro} offen sc1\nbuffer_load_dword {vr(r+2)}, {vr(PA)}, {sr(S_WS,4)}, {ro} offen offset:128 sc1"

        def gate(lab, r, mask, younger):
            a(f"s_mov_b32 {sr(T+2)}, 0\ns_waitcnt vmcnt({younger})")
            a.label(lab)
            a(f"""v_cmp_ne_u32 vcc, {sr(S_N)}, {vr(r)}
            v_cmp_ne_u32 {sr(T+10,2)}, {sr(S_N)}, {vr(r+2)}
            s_add_u32 {sr(T+2)}, {sr(T+2)}, 1
            s_or_b64 vcc, vcc, {sr(T+10,2)}
            s_and_b64 vcc, vcc, {mask}
            s_cbranch_scc0 {lab}_ok
            s_sleep {o.get("slp", 4)}
            {poll(r)}
            s_waitcnt vmcnt(0)
            s_cmp_lt_u32 {sr(T+2)}, 0x40000
            s_cbranch_scc1 {lab}""")
            a.label(lab + "_ok")

        H, G_, UG, MS, CL = 16, 52, 208, 110, 104
        nup = o.get("nup", 5)
        at = {o.get("u0", 6) + o.get("usp", 6) * i: wl.pop(0) for i in range(nup)}
        for i in range(5): at[i] = xw[i]
        tagld = f"buffer_load_dword v253, off, {sr(S_DB,4)}, 0 sc1"
        tag1 = tagld.replace("sc1", o.get("tgf", "sc1")).strip()
        at[o.get("tgp", 5)] = tag1
        if o.get("es", 0) == 1:
            n_ = len(a.lines); self.epi_setup()
            el = [l.strip() for l in a.lines[n_:]]; del a.lines[n_:]
            for k in range(5, 42):
                if k in at: continue
                c_ = 0
                while el and c_ < o.get("esn", 2):
                    x = el.pop(0); at[k] = at.get(k, "") + x + "\n"; c_ += 1 if x.startswith("v_") else 0.5
            self.es_left = el
        self.gemm(self.tr_reads(TRU), XA, H, None, at=at)
        if o.get("es", 0) == 1:
            for x in self.es_left: a(x)
        self.stamp("up")
        p = lambda r: vr(r, 2)
        CC = TM
        c1 = -2.0 * math.sqrt(2.0 / math.pi) * LOG2E
        c2 = c1 * 0.044715
        gst = [[f"v_pk_mul_f32 {p(G_+2*i)}, {p(H+2*i)}, {p(H+2*i)}" for i in range(18)] +
               [f"v_pk_fma_f32 {p(G_+2*i)}, {p(G_+2*i)}, {p(CC+2)}, {p(CC)} op_sel_hi:[1,0,0]" for i in range(18)] +
               [f"v_pk_mul_f32 {p(G_+2*i)}, {p(G_+2*i)}, {p(H+2*i)}" for i in range(18)],
               [f"v_exp_f32 {vr(G_+i)}, {vr(G_+i)}" for i in range(36)],
               [f"v_pk_add_f32 {p(G_+2*i)}, {p(G_+2*i)}, {p(CC+4)} op_sel_hi:[1,0]" for i in range(18)],
               [f"v_rcp_f32 {vr(G_+i)}, {vr(G_+i)}" for i in range(36)],
               [f"v_pk_mul_f32 {p(H+2*i)}, {p(G_+2*i)}, {p(H+2*i)}" for i in range(18)]]
        gs = o.get("gs", 0)
        if gs:
            a(f"v_mov_b32 {vr(CC)}, {f32(c1)}\nv_mov_b32 {vr(CC+2)}, {f32(c2)}\nv_mov_b32 {vr(CC+4)}, 1.0")
            pre = [x for st_ in gst[:gs] for x in st_]
            ngw = o.get("ngw", 0)
            for i, x in enumerate(pre):
                a(x)
                if ngw and i % o.get("gwsp", 8) == 2 and wl: a(wl.pop(0)); ngw -= 1
            self.stamp("gea")
        last = lambda srd: max(i for i, l in enumerate(a.lines) if l.strip().startswith("buffer_load") and sr(srd, 4) in l) + 1
        assert not any(sr(SQ, 4) in x for x in wl)
        nq_ = self.vm_since(m_b1) + (5 if last(SQ) < m_b1 else 0) if last(SQ) < m_b1 else self.vm_since(last(SQ))
        a(f"s_waitcnt vmcnt({self.vm_since(m_b1) if last(SQ) < m_b1 else nq_}) lgkmcnt(0)" if False else "")
        if last(SQ) < m_b1:
            a(f"s_cmp_lt_u32 {sr(S_W)}, 2\ns_cbranch_scc1 L_bg0\ns_waitcnt vmcnt({5 + self.vm_since(m_b1)})\ns_branch L_bg1\nL_bg0:\ns_waitcnt vmcnt({self.vm_since(m_b1)})\nL_bg1:\ns_waitcnt lgkmcnt(0)\ns_barrier")
        else: a(f"s_waitcnt vmcnt({self.vm_since(last(SQ))}) lgkmcnt(0)\ns_barrier")

        def flag():
            n_ = self.vm_since(max(i for i, l in enumerate(a.lines) if l.strip() == tag1) + 1)
            if w16 & 2: a(self.a8() + f"\ns_mov_b32 {sr(T+5)}, 0\ns_waitcnt vmcnt({n_})")
            else: a(f"v_lshrrev_b32 {vr(t0)}, 5, v0\nv_lshlrev_b32 {vr(t0)}, 30, {vr(t0)}\nv_lshl_add_u32 {vr(t0)}, v0, 2, {vr(t0)}\ns_mov_b32 {sr(T+5)}, 0\ns_waitcnt vmcnt({n_})")
            a.label("L_tag")
            a(f"""v_readfirstlane_b32 {sr(S_N)}, v253
            s_add_u32 {sr(T+5)}, {sr(T+5)}, 1
            s_cmp_lg_u32 {sr(S_N)}, 0
            s_cbranch_scc1 L_tag_ok
            {tagld}
            s_waitcnt vmcnt(0)
            s_cmp_lt_u32 {sr(T+5)}, 0x40000
            s_cbranch_scc1 L_tag""")
            a.label("L_tag_ok")
            if o.get("rot", 0):
                a(f"""{self.region(T+5, S_N)}
                s_cmp_lg_u32 {sr(T+5)}, {sr(S_RO)}
                s_cbranch_scc1 L_moved""")
                a.label("L_movedb")
                if o["rot"] == 2: a(f"s_add_u32 {sr(PUB)}, {sr(PUB)}, {sr(S_RO)}")

                def moved():
                    a.label("L_moved")
                    if o["rot"] == 2: a(f"s_mov_b32 {sr(S_RO)}, {sr(T+5)}")
                    else:
                        a(f"""s_sub_u32 {sr(T+5)}, {sr(T+5)}, {sr(S_RO)}
                        s_ashr_i32 {sr(T+6)}, {sr(T+5)}, 31
                        s_add_u32 {sr(S_WS)}, {sr(S_WS)}, {sr(T+5)}
                        s_addc_u32 {sr(S_WS+1)}, {sr(S_WS+1)}, {sr(T+6)}""")
                    a(f"""s_lshr_b32 {sr(T+5)}, {sr(S_W)}, 1
                    s_and_b32 {sr(T+5)}, {sr(T+5)}, {sr(S_VAL)}
                    s_cbranch_scc0 L_movedb
                    s_mul_i32 {sr(T+5)}, {sr(S_TOWN)}, {TILE}
                    {f"s_add_u32 {sr(T+5)}, {sr(T+5)}, {sr(S_RO)}" if o["rot"] == 2 else ""}
                    s_and_b32 {sr(T+6)}, {sr(S_W)}, 1
                    s_lshl_b32 {sr(T+7)}, {sr(T+6)}, 9
                    s_add_u32 {sr(T+7)}, {sr(T+7)}, {sr(T+5)}
                    s_add_u32 {sr(T+7)}, {sr(T+7)}, 8192
                    s_lshl_b32 {sr(T+6)}, {sr(T+6)}, 8
                    s_add_u32 {sr(T+5)}, {sr(T+5)}, {sr(T+6)}
                    s_add_u32 {sr(T+6)}, {sr(T+5)}, 4096
                    v_subrev_u32 {vr(t0)}, {sr(S_LB)}, {vr(V_KA)}
                    v_subrev_u32 {vr(t1)}, {sr(S_LB)}, {vr(V_KA+1)}""")
                    for s_ in range(4): a(f"buffer_store_dwordx4 {vr(XA+4*s_,4)}, {vr(t0)}, {sr(S_WS,4)}, {sr(T+5+(s_>>1))} offen offset:{2048*(s_&1)} sc1")
                    a(f"buffer_store_dwordx2 {vr(XA+16,2)}, {vr(t1)}, {sr(S_WS,4)}, {sr(T+7)} offen sc1\ns_waitcnt vmcnt(0)\ns_branch L_movedb")
                self.moved = moved
                assert w16 & 2
            if w16 & 2:
                for i in range(4): a(f"v_mov_b32 {vr(CL+i)}, {sr(S_N)}")
                a(f"buffer_store_dwordx4 {vr(CL,4)}, v255, {sr(S_WS,4)}, {sr(PUB)} offen sc1")
            else: a(f"v_mov_b32 {vr(t1)}, {sr(S_N)}\nbuffer_store_dword {vr(t1)}, {vr(t0)}, {sr(S_WS,4)}, {sr(PUB)} offen sc1")
            self.m_fl = len(a.lines)
            if o.get("rot", 0): a(self.xa_srd(T + 5))
            self.stamp("flag")
        self.stamp("barG")
        if o.get("atw"):
            a("s_waitcnt vmcnt(1)")
            self.stamp("ack1")
            a("s_waitcnt vmcnt(0)")
            self.stamp("ack")
        if o.get("census"):
            k_ = S_ST + 2 * self.stnames.index(o["census"][0])
            a(f"s_waitcnt lgkmcnt(0)\nv_mov_b32 v252, {sr(k_)}\ns_lshl_b32 {sr(T)}, s2, 2\ns_add_u32 {sr(T)}, {sr(T)}, {WS_DBG}\nv_mov_b32 v253, 0\nbuffer_store_dword v252, v253, {sr(S_WS,4)}, {sr(T)} offen sc1")

        def a_tr(t):
            ad, off = (TRQ, 32 * t) if t < 2 else (TRQ8, 0)
            return [f"ds_read_b64_tr_b16 {ar(AQ1+18*t+4*s+2*u,2)}, {vr(ad+u)} offset:{9216*s + off}" for s in range(4) for u in range(2)] + \
                   [f"ds_read_b64_tr_b16 {ar(AQ1+18*t+16,2)}, {vr(ad+2)} offset:{36864 + off}"]

        def a_row(t):
            off = 4864 * t if t < 2 else 0
            return [f"ds_read_b64 {ar(A_Q+18*t+4*s+2*u,2)}, {vr(RK+t)} offset:{off + 64*s + 32*u}" for s in range(4) for u in range(2)] + \
                   [f"ds_read_b64 {ar(A_Q+18*t+16,2)}, {vr(RK+t)} offset:{off + 256}"]
        bq = lambda j, d=0: [f"ds_read_b128 {ar(18*j+4*s,4)}, {vr(VS+j)} offset:{d + 1024*s}" for s in range(4)] + [f"ds_read_b64 {ar(18*j+16,2)}, {vr(VR4+j)} offset:{d}"]

        def post(u, scale, d):
            L = [f"v_mul_f32 {vr(ACC+4*u+i)}, {sr(T+4)}, {vr(ACC+4*u+i)}" for i in range(4)] if scale else []
            L += [f"v_cvt_pk_bf16_f32 {vr(PK + (4*(u&3) + 2*(u>>2) if u < 8 else 16) + h)}, {vr(ACC+4*u+2*h)}, {vr(ACC+4*u+2*h+1)}" for h in range(2)]
            if 4 <= u < 8: L.append(f"ds_write_b128 {vr(VSW+u-4)}, {vr(PK+4*(u-4),4)} offset:{d}")
            if u == 8: L.append(f"ds_write_b64 {vr(VR4)}, {vr(PK+16,2)} offset:{d}")
            return L
        fl2 = o.get("fl2", 1)
        self.m_fl = 0
        xd = [f"ds_read_b128 {vr(XD+4*j,4)}, {vr(VSW+j)}" for j in range(4)]
        self.gemm_u(AQ1, ar, [("v", XA), ("a", 18), ("a", 36), ("a", 54)], ACC, a_tr, lambda j: bq(j) if j else None, lambda u: post(u, False, L_QD),
                    vm_items=wl, other=xd, vmsp=o.get("vmsp", 3), at={o.get("flp", 22): flag} if fl2 < 0 else {})
        self.stamp("g1")
        for i in range(4): a(f"v_mov_b32 {vr(CL+i)}, -1")
        a(f"s_lshl2_add_u32 {sr(T+2)}, s2, {sr(S_W)}\ns_mul_i32 {sr(T+2)}, {sr(T+2)}, 2560\ns_add_u32 {sr(T+2)}, {sr(T+2)}, {WS_IB}")
        a(f"s_mov_b32 {sr(T+4)}, {f32(LOG2E / 12.0)}\ns_waitcnt vmcnt({self.vm_since(max(last(SK), self.m_fl)) + (last(SK) < self.m_fl)}) lgkmcnt(0)\ns_barrier")
        T2 = T + 2
        clr = [f"buffer_store_dwordx4 {vr(CL,4)}, {vr(V_DMA)}, {sr(S_WS,4)}, {sr(T+2)} offen sc1",
               f"buffer_store_dwordx4 {vr(CL,4)}, {vr(V_DMA)}, {sr(S_WS,4)}, {sr(T+2)} offen offset:1024 sc1",
               f"buffer_store_dwordx2 {vr(CL,2)}, {vr(L8)}, {sr(S_WS,4)}, {sr(T+2)} offen offset:2048 sc1"]
        self.stamp("bar2")
        gp_ = o.get("gatepos", 0)
        cl1 = not o.get("cll", 1)
        self.gemm_u(A_Q, ar, [("a", 18 * j) for j in range(4)], ACC, a_row, lambda j: bq(j, L_QD), lambda u: post(u, True, 0), vm_items=((clr if cl1 else []) + [poll(252)] if gp_ == 0 else clr if cl1 else []), vm0=o.get("pg", 6), vmsp=o.get("csp", 3),
                    lastk=o.get("plk", 26) if gp_ == 0 else 0, at={fl2: flag} if fl2 >= 0 else {})
        self.stamp("g2")
        p = lambda r: vr(r, 2)
        CC = TM
        for j in range(4): a(f"v_dot2_f32_bf16 {vr(CC+j)}, {vr(PK+4*j)}, {vr(XD+4*j)}, 0")
        for i in range(2): a(f"v_dot2_f32_bf16 {vr(CC)}, {vr(PK+16+i)}, {vr(XA+16+i)}, {vr(CC)}")
        for i in range(1, 4):
            for j in range(4): a(f"v_dot2_f32_bf16 {vr(CC+j)}, {vr(PK+4*j+i)}, {vr(XD+4*j+i)}, {vr(CC+j)}")
        QE = VS if gs else TRQ
        a(f"""s_xor_b32 {sr(T+1)}, {sr(self.NB)}, 1
        v_add_u32 {vr(t0)}, {L_XX}, {vr(V_DMA)}
        v_lshl_add_u32 {vr(QE)}, {sr(T+1)}, 12, {vr(t0)}
        v_lshl_add_u32 {vr(QE+1)}, {sr(self.NB)}, 12, {vr(t0)}""")
        self.treduce(CC)
        a(f"""ds_write_b32 {vr(MXA)}, {vr(CC)}
        v_add_u32 {vr(t0)}, {L_XR}, {vr(L8)}
        v_lshl_add_u32 {vr(QE+2)}, {sr(T+1)}, 9, {vr(t0)}
        v_lshl_add_u32 {vr(QE+3)}, {sr(self.NB)}, 9, {vr(t0)}
        v_lshl_add_u32 {vr(QE+4)}, {sr(T+1)}, 8, {vr(MXR)}
        v_lshl_add_u32 {vr(QE+5)}, {sr(self.NB)}, 8, {vr(MXR)}
        s_sub_u32 {sr(T+5)}, 63, {sr(S_H)}
        s_bfm_b64 {sr(T+8,2)}, {sr(T+5)}, 0
""")
        if gp_ == 0:
            a(f"s_cmp_lg_u32 {sr(S_W)}, 0\ns_cbranch_scc1 L_ga_ok")
            gate("L_ga", 252, sr(T + 8, 2), 0)
        else: a(poll(252))
        a("s_waitcnt lgkmcnt(0)\ns_barrier")
        self.stamp("bar3")
        qrd = [f"ds_read_b128 {vr(MS+4*qb,4)}, {vr(QE+4+(qb&1))} offset:{512*(qb>>1)}" for qb in range(4)]
        for qb in range(4):
            qrd += [f"ds_read_b128 {ar(A_Q+18*qb+4*s,4)}, {vr(QE+(qb&1))} offset:{8192*(qb>>1) + 1024*s}" for s in range(4)]
            qrd.append(f"ds_read_b64 {ar(A_Q+18*qb+16,2)}, {vr(QE+2+(qb&1))} offset:{1024*(qb>>1)}")
        if gs:
            tg = self.tile_groups(0) + self.tile_groups(1)
            n0 = o.get("n0", 3)
            for x in tg[:n0]: a(x)
            tg = tg[n0:]
            if gs < 3: a(f"v_mov_b32 {vr(CC+4)}, 1.0")
            mem = []
            qpd = o.get("qpd", 2)
            while tg or qrd:
                it = []
                if tg: it.append(tg.pop(0))
                it += [qrd.pop(0) for _ in range(min(qpd, len(qrd)))]
                mem.append("\n".join(it))
            com = [x for st_ in gst[gs:] for x in st_]
            ev = o.get("gev", 3)
            for i, x in enumerate(com):
                a(x)
                if i % ev == ev - 1 and mem: a(mem.pop(0))
            a(f"""s_mul_i32 {sr(T)}, {sr(WV+1)}, {BLK}
            s_cmp_eq_u32 {sr(S_H)}, 1
            s_cbranch_scc1 L_ln2
            s_add_u32 {sr(T)}, {sr(T)}, {WS_U}""")
            m0_ = list(mem)
            for i in range(18):
                a(f"v_cvt_pk_bf16_f32 {vr(UG+i)}, {vr(H+2*i)}, {vr(H+2*i+1)}")
                if i % o.get("gev0", 2) == 1 and m0_: a(m0_.pop(0))
            for x in m0_: a(x)
            a("s_branch L_ug")
            a.label("L_ln2")
            a(f"s_add_u32 {sr(T)}, {sr(T)}, {WS_G}")
            a.bg, a.every, a.cnt = list(mem), o.get("gev1", 6), 0
            self.ln_f32(H, UG, TM)
            a.flush()
            a.label("L_ug")
            m_t0 = m_t1 = None
        else:
            tg = self.tile_groups(0) + self.tile_groups(1) + self.tile_groups(2)[:8]
            n0 = o.get("n0", 3) if gp_ == 0 else 0
            for x in tg[:n0]: a(x)
            a(f"v_mov_b32 {vr(CC)}, {f32(c1)}\nv_mov_b32 {vr(CC+2)}, {f32(c2)}\nv_mov_b32 {vr(CC+4)}, 1.0")
            nq1, nt1 = (o.get("nq1", 8), o.get("nt1", 5)) if gp_ == 0 else (o.get("nq1", 16), 0)
            bgl = []
            for i in range(max(nq1 // 2, nt1)):
                if 2 * i < nq1: bgl.append(qrd[2 * i] + "\n" + qrd[2 * i + 1])
                if i < nt1: bgl.append(tg[n0 + i])
            tg, qrd = tg[n0 + nt1:], qrd[nq1:]
            a.bg, a.every, a.cnt = bgl, 54 // (len(bgl) + 1), 0
            for x in gst[0]: a(x)
            a.flush()
            if gp_:
                self.stamp("ge0")
                gate("L_ga", 252, sr(T + 8, 2), 0)
                for x in tg[:2]: a(x)
                tg = tg[2:]
            self.stamp("ge1")
            esp = o.get("esp", 3 if gp_ else 4)
            for i in range(36):
                a(gst[1][i])
                if i % esp == 1 and tg: a(tg.pop(0))
                if i % 8 == 3 and qrd: a(qrd.pop(0)); a(qrd.pop(0))
            self.stamp("ge2")
            for x in gst[2]: a(x)
            for i in range(36):
                a(gst[3][i])
                if i % esp == 1 and tg: a(tg.pop(0))
                if i % 8 == 3 and qrd: a(qrd.pop(0)); a(qrd.pop(0))
            assert not tg and not qrd
            idx = [i for i, l in enumerate(a.lines) if l.strip().startswith("buffer_load") and l.rstrip().endswith("lds")]
            m_t0, m_t1 = idx[-18] + 1, idx[-9] + 1
            for x in gst[4]: a(x)
            a(f"""s_mul_i32 {sr(T)}, {sr(WV+1)}, {BLK}
            s_cmp_eq_u32 {sr(S_H)}, 1
            s_cbranch_scc1 L_ln2
            s_add_u32 {sr(T)}, {sr(T)}, {WS_U}""")
            for i in range(18): a(f"v_cvt_pk_bf16_f32 {vr(UG+i)}, {vr(H+2*i)}, {vr(H+2*i+1)}")
            a("s_branch L_ug")
            a.label("L_ln2")
            a(f"s_add_u32 {sr(T)}, {sr(T)}, {WS_G}")
            self.ln_f32(H, UG, TM)
            a.label("L_ug")
        self.stamp("ge3")
        a(f"""s_cmp_eq_u32 {sr(WV)}, 1
        s_cselect_b32 {sr(S_UG)}, {sr(T)}, 0x40000000
        s_waitcnt lgkmcnt(0)""")
        kz = [f"s_waitcnt vmcnt({9 if gs else self.vm_since(m_t0)})"] + self.k_reads(0, V_V)
        if not gs:
            for x in kz: a(x)
        self.ugs = [f"buffer_store_dwordx4 {vr(UG+4*s,4)}, {vr(V_DMA)}, {sr(S_WS,4)}, {sr(S_UG)} offen offset:{1024*s} sc1" for s in range(4)]
        self.ugs.append(f"buffer_store_dwordx2 {vr(UG+16,2)}, {vr(self.VL8)}, {sr(S_WS,4)}, {sr(S_UG)} offen sc1")
        for qb in range(4): a(f"v_pk_add_f32 {p(MS+4*qb)}, {p(MS+4*qb)}, {p(MS+4*qb+2)} neg_lo:[1,1] neg_hi:[1,1]")
        for qb in range(4): a(f"v_add_f32 {vr(self.MK+qb)}, {vr(MS+4*qb)}, {vr(MS+4*qb+1)}")
        a(f"v_lshlrev_b32 {vr(t1)}, 8, v0\nv_lshlrev_b32 v231, 2, v0\nv_add_u32 v231, {L_PC}, v231\nds_write_b32 v231, {vr(t1)}")
        self.loop_init(False)
        if gs:
            self.loop_init(True)
            self.stamp("ug0")
            for x in kz: a(x)
        else: self.n_t1 = self.vm_since(m_t1)
        self.stamp("ug")

    def a8(self):
        return f"v_lshrrev_b32 v255, 3, v0\nv_min_u32 v255, 1, v255\nv_lshlrev_b32 v255, 30, v255\nv_add_u32 v255, v255, {vr(V_DMA)}"

    def loop_init(self, part):
        a = self.a
        if part:
            for qb in range(4):
                for i in range(4): a(f"v_mov_b32 {vr(V_CI+4*qb+i)}, {vr(self.MK+qb)}")
            return
        for k in range(7): a(f"v_add_u32 {vr(V_HI+k)}, {2*SLOT}, {vr(V_KA+k if k < 5 else V_VB+k-5)}")
        a(f"v_add_u32 {vr(self.VS0)}, {sr(S_LB)}, {vr(V_DMA)}\nv_add_u32 {vr(self.VS0R)}, {sr(S_LB)}, {vr(self.VL8)}\ns_mov_b32 {sr(S_CNT)}, 0\ns_mov_b32 {sr(S_INC)}, {4*TILE}")
        for i in range(4): a(f"v_mov_b32 {vr(V_L+i)}, 0")
        for i in range(4): a(f"v_mov_b32 {vr(226+i)}, -1")
        if self.o.get("oib", 0):
            T = S_T
            a(f"""s_mul_i32 {sr(S_CL)}, {sr(S_TOWN)}, {TILE}
            s_mul_i32 {sr(T)}, {sr(self.NB)}, {BLK}
            s_lshl_b32 {sr(T+1)}, {sr(self.PT)}, 11
            s_add_u32 {sr(T)}, {sr(T)}, {sr(T+1)}
            s_add_u32 {sr(S_CL)}, {sr(S_CL)}, {sr(T)}
            s_xor_b32 {sr(T+1)}, {sr(S_H)}, 1
            s_sub_u32 {sr(T+1)}, {sr(T+1)}, {sr(S_H)}
            s_mul_i32 {sr(T+1)}, {sr(T+1)}, {TILE}
            s_add_u32 {sr(S_OS)}, {sr(S_CL)}, {sr(T+1)}
            s_cmp_ge_u32 s2, 248
            s_cselect_b32 {sr(T)}, 2.0, 0
            s_mul_i32 {sr(T+1)}, {sr(T)}, {sr(S_H)}
            s_sub_u32 {sr(T)}, {sr(T)}, {sr(T+1)}
            s_add_u32 {sr(S_OS)}, {sr(S_OS)}, {sr(T)}
            s_add_u32 {sr(S_OR)}, {sr(S_CL)}, {sr(T+1)}
            s_lshl_b32 {sr(T)}, {sr(S_REDO)}, 30
            s_or_b32 {sr(S_CL)}, {sr(S_OR)}, {sr(T)}
            s_lshl1_add_u32 {sr(S_CL+1)}, s2, {sr(self.NB)}
            s_mul_i32 {sr(S_CL+1)}, {sr(S_CL+1)}, 5120
            s_add_u32 {sr(S_CL+1)}, {sr(S_CL+1)}, {sr(T)}
            s_lshl_b32 {sr(T)}, {sr(self.PT)}, 9
            s_add_u32 {sr(T)}, {sr(T)}, {WS_IB}
            s_add_u32 {sr(S_CL+1)}, {sr(S_CL+1)}, {sr(T)}""")
        else:
            a(f"""s_lshl2_add_u32 {sr(S_CL)}, s2, {sr(S_W)}
            s_mul_i32 {sr(S_CL)}, {sr(S_CL)}, 2560
            s_lshl_b32 {sr(S_CL+1)}, {sr(S_REDO)}, 30
            s_add_u32 {sr(S_CL)}, {sr(S_CL)}, {sr(S_CL+1)}
            s_add_u32 {sr(S_CL)}, {sr(S_CL)}, {WS_IB}
            s_sub_u32 {sr(S_CL+1)}, {sr(S_CL)}, 2048""")
        a(f"v_mov_b32 v207, {sr(S_N)}\nv_mov_b32 {vr(self.VPL+1)}, 1\nv_lshlrev_b32 v231, 2, v0\nv_add_u32 v231, {L_PC}, v231")
        if self.o.get("xm", 0): a(f"s_add_u32 {sr(S_T)}, {sr(S_N)}, {sr(S_XC)}\nv_writelane_b32 v207, {sr(S_T)}, 1")

    def head(self):
        a, o = self.a, self.o
        gs = o.get("gs", 0)
        a.label("L_go")
        if not gs: self.loop_init(True)
        a("s_waitcnt lgkmcnt(0)\ns_barrier")
        self.stamp("bar5")
        base = self.qk_mfmas(0)
        pick = lambda s_, kb, qb: base[8 * s_ + 4 * kb + qb].replace(vr(V_K + 8 * s_ + 4 * kb, 4) + ",", vr(V_V + 8 * s_ + 4 * kb, 4) + ",").replace(vr(V_K + 32 + 2 * kb, 2) + ",", vr(V_V + 32 + 2 * kb, 2) + ",")
        mf, fin = [], {}
        for qb, s_ in [(0, 0), (0, 1), (0, 2), (0, 3), (1, 0), (1, 1), (0, 4), (1, 2), (1, 3), (2, 0), (2, 1), (1, 4), (2, 2), (2, 3), (3, 0), (3, 1), (2, 4),
                       (3, 2), (3, 3), (3, 4)]:
            for kb in range(2):
                fin[qb, kb] = len(mf)
                mf.append(("s_nop 3\n" if (qb, s_, kb) == (3, 4, 0) else "") + pick(s_, kb, qb))
        enew = [e[1] for g in range(40, 76) for e in self.gaps[g] if e[0] == "E"]
        items = self.e_items(0, enew, lambda qb, j: 0, lambda qb: 999)
        for it, e in zip(items, enew):
            if e[0] == "e": it["am"] = fin[e[1], e[2] // 4]
        dm = []
        for k, (slot, j) in enumerate([(2, j) for j in range(9)] if gs else [(2, 8)] + [(3, j) for j in range(9)]):
            g_ = 1 + o.get("hsp", 4) * k
            if j % 4 == 0: dm.append(dict(t=f"s_add_u32 m0, {sr(S_LB)}, {slot*SLOT + 4096*(j//4)}", c=0, lo=g_ - 1, hi=g_ - 1))
            dm.append(dict(t=f"buffer_load_dwordx4 {vr(V_DMA + j//4)}, {sr(S_XA,4)}, {sr(S_TOFF)} offen offset:{1024*(j%4)} lds", c=8, lo=g_, hi=g_))
            if j == 8: dm.append(dict(t=f"s_add_u32 {sr(S_TOFF)}, {sr(S_TOFF)}, {4*TILE}", c=0, lo=g_ + 1, hi=g_ + 1))
        nh = o.get("ugh", 2) if not o.get("ugl", 1) else 0
        for k in range(nh): dm.append(dict(t=self.ugs[k], c=8, lo=3 + 16 * k, hi=3 + 16 * k))
        if gs:
            k1 = o.get("k1lo", 22)
            kr = [dict(t=("@VM\n" if i == 0 else "") + x, c=4, lo=k1 + i // 2, hi=k1 + i // 2, nds=2) for i, x in enumerate(self.k_reads(1))]
        else:
            a(f"s_waitcnt vmcnt({self.n_t1})")
            kr = [dict(t=x, c=4, lo=i // 2, nds=2) for i, x in enumerate(self.k_reads(1))]
        left = self.pack(mf, items + dm + kr)
        print("head overflow", self.over, "left", len(left))
        left.sort(key=lambda x: not x.startswith("v_exp"))
        last = a.lines[-1].strip()
        for x in left:
            if last.startswith("v_exp") and not x.startswith("v_exp") and (last.split()[1].rstrip(",") + ",") in (x + ","): a("s_nop 0")
            a(x); last = x
        a("s_waitcnt lgkmcnt(0)")

    def tile_groups(self, slot):
        out = []
        for j in range(9):
            g = ""
            if j % 4 == 0: g = f"s_add_u32 m0, {sr(S_LB)}, {slot*SLOT + 4096*(j//4)}\ns_nop 0\n"
            g += f"buffer_load_dwordx4 {vr(V_DMA + j//4)}, {sr(S_XA,4)}, {sr(S_TOFF)} offen offset:{1024*(j%4)} lds"
            if j == 8: g += f"\ns_add_u32 {sr(S_TOFF)}, {sr(S_TOFF)}, {4*TILE}"
            out.append(g)
        return out

    def first_tiles(self):
        pass

    def wfuse(self):
        a = self.a
        BF, ACC, AF, TM, AD = 88, 108, 144, 208, 240
        LA, LB_, LM = 0, 44032, 88064
        T = S_T
        a.label("L_wfuse")
        a(f"{'s_sub_u32 s2, s6, 246' if self.o.get('xm', 0) == 2 else f's_add_u32 s2, s2, {NH}'}\ns_cmp_ge_u32 s2, {NH}\ns_cbranch_scc1 L_end")
        a(f"v_lshrrev_b32 v1, 6, v0\nv_and_b32 v0, 63, v0\nv_readfirstlane_b32 {sr(S_W)}, v1\nv_lshlrev_b32 {vr(V_DMA)}, 4, v0\ns_waitcnt lgkmcnt(0)")
        rot = self.o.get("rot", 0) == 1
        if not rot: self.srd(S_WS, 78, 79, WS_END)
        self.srd(S_DB, 76, 77, 256)
        self.wf0 = 0
        self.srd(S_X, 72, 73, 82944)
        self.srd(S_W2, 62, 63, 41472)
        a(f"""s_cmp_eq_u32 s2, {self.wf0}
        s_cselect_b32 {sr(S_W1)}, s64, s70
        s_cselect_b32 {sr(S_W1+1)}, s65, s71
        s_mov_b32 {sr(S_W1+2)}, 41472
        s_mov_b32 {sr(S_W1+3)}, 0x20000
        s_cselect_b32 {sr(T+4)}, 0, 41472""")
        self.dma_rows([(S_W1, "0", LA), (S_W2, "0", LB_)], 19, 288, TM + 4, TM + 5, 11, 3, "L_wf1")
        a(f"s_lshl_b32 {sr(T)}, {sr(S_W)}, 10\ns_add_u32 {sr(T+2)}, {sr(T)}, {sr(T+4)}")
        for k in range(11):
            if k == 10: a(f"s_cmp_ge_u32 {sr(S_W)}, 1\ns_cbranch_scc1 L_wf2")
            a(f"s_add_u32 m0, {sr(T)}, {LM + 4096*k}\ns_add_u32 {sr(T+1)}, {sr(T+2)}, {4096*k}")
            a(f"buffer_load_dwordx4 {vr(V_DMA)}, {sr(S_X,4)}, {sr(T+1)} offen lds")
        a.label("L_wf2")
        self.srd(S_DW, 68, 69, 864)
        a(f"""v_and_b32 {vr(TM)}, 15, v0
        v_lshlrev_b32 {vr(TM+2)}, 4, {vr(TM)}
        v_lshlrev_b32 {vr(TM)}, 1, {vr(TM)}
        v_bfe_u32 {vr(TM+3)}, v0, 4, 1
        v_lshl_add_u32 {vr(TM+1)}, {vr(TM+3)}, 7, {vr(TM)}
        v_lshl_add_u32 {vr(TM+2)}, {vr(TM+3)}, 11, {vr(TM+2)}
        v_and_b32 {vr(TM+3)}, 1, v0
        v_lshlrev_b32 {vr(TM+3)}, 4, {vr(TM+3)}
        v_bfe_i32 {vr(TM+4)}, v0, 1, 1
        v_not_b32 {vr(TM+5)}, {vr(TM+4)}""")
        for k in range(3):
            for i in range(5): a(f"buffer_load_ushort {vr(16+5*k+i)}, {vr(TM+1 if i < 4 else TM)}, {sr(S_DW,4)}, 0 offen offset:{288*k + (32*i if i < 4 else 256)}")
        def wtag():
            a(f"s_mov_b32 {sr(T+2)}, 0")
            a.label("L_wtag")
            a(f"""buffer_load_dword {vr(TM+6)}, off, {sr(S_DB,4)}, 0 sc1
            s_add_u32 {sr(T+2)}, {sr(T+2)}, 1
            s_waitcnt vmcnt(0)
            v_readfirstlane_b32 {sr(S_N)}, {vr(TM+6)}
            s_cmp_lt_u32 {sr(T+2)}, 0x40000
            s_cselect_b32 {sr(T)}, {sr(S_N)}, 1
            s_cmp_eq_u32 {sr(T)}, 0
            s_cbranch_scc1 L_wtag""")
        if rot:
            wtag()
            a(f"""s_lshl_b32 {sr(T)}, {sr(S_N)}, {24 - self.o.get('rsh', 14)}
            s_and_b32 {sr(T)}, {sr(T)}, 0x0f000000
            s_add_u32 {sr(S_WS)}, s78, {sr(T)}
            s_addc_u32 {sr(S_WS+1)}, s79, 0
            s_mov_b32 {sr(S_WS+2)}, {self.wsn()}
            s_mov_b32 {sr(S_WS+3)}, 0x20000""")
        a(f"s_mov_b32 {sr(T+1)}, {WS_DWF}\ns_waitcnt vmcnt(0)")
        for f in range(15):
            a(f"v_lshlrev_b32 {vr(16+f)}, {vr(TM+3)}, {vr(16+f)}\nv_and_b32 {vr(32+2*f)}, {vr(TM+5)}, {vr(16+f)}\nv_and_b32 {vr(33+2*f)}, {vr(TM+4)}, {vr(16+f)}")
        for r_ in range(8): a(f"buffer_store_dwordx{4 if r_ < 7 else 2} {vr(32+4*r_, 4 if r_ < 7 else 2)}, {vr(TM+2)}, {sr(S_WS,4)}, {sr(T+1)} offen offset:{256*r_} sc1")
        self.tr_addr(AD, LM, False, TM + 8)
        self.row_addr(AD + 3, LA, TM + 8)
        a(f"v_add_u32 {vr(AD+5)}, {LB_}, {vr(AD+3)}")
        a(f"v_lshlrev_b32 {vr(AD+4)}, 3, v0")
        a(f"""s_lshr_b32 {sr(T)}, {sr(S_W)}, 1
        s_lshl_b32 {sr(T)}, {sr(T)}, 6
        s_and_b32 {sr(T+1)}, {sr(S_W)}, 1
        s_lshl_b32 {sr(T+1)}, {sr(T+1)}, 3
        s_add_u32 {sr(T)}, {sr(T)}, {sr(T+1)}
        v_and_b32 {vr(AD+6)}, 3, v0
        v_lshlrev_b32 {vr(AD+6)}, 3, {vr(AD+6)}
        v_add_u32 {vr(AD+7)}, {sr(T)}, {vr(AD+6)}""")
        for k in range(3): a(f"v_add_u32 {vr(AD+k)}, {vr(AD+7)}, {vr(AD+k)}")
        a(f"s_mov_b32 {sr(S_CNT)}, {sr(S_W)}")
        a("s_waitcnt vmcnt(0)\ns_barrier")
        a.label("L_wfl")
        for s in self.tr_reads(AD, vr)(0, BF): a(s)
        a("s_waitcnt lgkmcnt(0)")
        self.gemm(self.row_reads(AD + 3), BF, ACC, AF)
        for i in range(18): a(f"v_cvt_pk_bf16_f32 {vr(BF+i)}, {vr(ACC+2*i)}, {vr(ACC+2*i+1)}")
        a(f"s_cmp_eq_u32 s2, {self.wf0}\ns_cbranch_scc0 L_wf3")
        self.gemm(self.row_reads(AD + 5), BF, ACC, AF)
        for i in range(18): a(f"v_cvt_pk_bf16_f32 {vr(BF+i)}, {vr(ACC+2*i)}, {vr(ACC+2*i+1)}")
        a.label("L_wf3")
        a(f"""s_mul_i32 {sr(T)}, {sr(S_CNT)}, {BLK}
        s_add_u32 {sr(T)}, {sr(T)}, {sr(T+4)}
        s_add_u32 {sr(T)}, {sr(T)}, {WS_WF}
        s_add_u32 {sr(T+1)}, {sr(T)}, 4096""")
        self.store_block(BF, V_DMA, AD + 4, S_WS, T, T + 1, "sc1")
        for k in range(3): a(f"v_add_u32 {vr(AD+k)}, 128, {vr(AD+k)}")
        a(f"s_add_u32 {sr(S_CNT)}, {sr(S_CNT)}, 4\ns_cmp_lt_u32 {sr(S_CNT)}, 8\ns_cbranch_scc1 L_wfl")
        for k in range(3): a(f"v_sub_u32 {vr(AD+k)}, {vr(AD+k)}, {vr(AD+6)}")
        a(f"s_cmp_eq_u32 {sr(S_CNT)}, 8\ns_cbranch_scc1 L_wfl")
        a(f"""s_waitcnt vmcnt(0)
        s_barrier
        s_cmp_lg_u32 {sr(S_W)}, 0
        s_cbranch_scc1 L_end""")
        if not rot: wtag()
        a(f"""v_mov_b32 {vr(TM)}, {sr(S_N)}
        v_lshlrev_b32 {vr(TM+1)}, 2, v0
        s_lshl_b32 {sr(T)}, s2, 8
        s_add_u32 {sr(T)}, {sr(T)}, {WS_F + 502*256}
        buffer_store_dword {vr(TM)}, {vr(TM+1)}, {sr(S_WS,4)}, {sr(T)} offen sc1
        s_endpgm""")

    def tstore(self):
        a = self.a
        _, n, fl, allwg, off = self.o["tst"]
        if not allwg: a(f"s_cmp_lg_u32 s2, 101\ns_cbranch_scc1 L_tst")
        a(f"s_waitcnt vmcnt(0)\ns_lshl2_add_u32 s96, s2, {sr(S_W)}\ns_mul_i32 s96, s96, {1024*max(n,1)}\ns_add_u32 s96, s96, {off}")
        k = len(self.stnames)
        a(f"s_memtime s[92:93]")
        if _[-1] == "x":
            a(f"s_cmp_lt_u32 {sr(S_W)}, 2\ns_cselect_b32 s96, 2.0, {off}\ns_add_u32 s97, s96, s56\ns_add_u32 s96, s96, s55")
            for i in range(4): a(f"buffer_store_dwordx4 v[252:255], {vr(V_KA)}, {sr(S_WS,4)}, s{96+(i>>1)} offen offset:{2048*(i&1)} {fl}")
            n = -1
        if _[-1] == "k":
            a(f"s_lshr_b32 s97, {sr(S_W)}, 1\ns_lshl1_add_u32 s96, s2, s97\ns_mul_i32 s96, s96, {2048*n}\ns_and_b32 s97, {sr(S_W)}, 1\ns_lshl_b32 s97, s97, 8\ns_add_u32 s96, s96, s97\ns_add_u32 s96, s96, {off}")
            for i in range(n): a(f"buffer_store_dwordx4 v[252:255], {vr(V_KA)}, {sr(S_WS,4)}, s96 offen offset:{2048*i} {fl}")
            n = -1
        for i in range(n): a(f"buffer_store_dwordx4 v[252:255], {vr(V_DMA)}, {sr(S_WS,4)}, s96 offen offset:{1024*i} {fl}")
        if n == 0: a(f"buffer_load_dwordx4 v[252:255], {vr(V_DMA)}, {sr(S_WS,4)}, s96 offen {fl}")
        a(f"s_waitcnt vmcnt(0)\ns_memtime s[94:95]\ns_waitcnt lgkmcnt(0)")
        a.label("L_tst")

    def dump_stamps(self):
        a = self.a
        if self.o.get("tst") and self.o["tst"][0] == "end": self.tstore()
        if self.o.get("census"):
            key, mode, m_, v_ = self.o["census"]
            a(f"""s_cmp_lg_u32 s2, 100
            s_cbranch_scc1 L_end
            v_lshlrev_b32 v16, 2, v0
            s_mov_b32 s4, {WS_DBG}""")
            for k in range(4): a(f"buffer_load_dword v{20+k}, v16, {sr(S_WS,4)}, s4 offen offset:{256*k} sc1")
            a(f"s_waitcnt vmcnt(0)\nv_readlane_b32 s8, v21, 36\ns_mov_b32 s9, 0x80000000\ns_mov_b32 s10, 0x7fffffff\ns_mov_b32 s11, 0\ns_mov_b32 s17, 0")
            for k in range(4):
                a(f"s_mov_b32 s5, 0")
                a.label(f"L_cs{k}")
                a(f"""v_readlane_b32 s6, v{20+k}, s5
                s_add_u32 s7, s5, {64*k}
                s_sub_u32 s6, s6, s8
                s_and_b32 s16, s7, {m_}
                s_cmp_lg_u32 s16, {v_}
                s_cbranch_scc1 L_cn{k}
                s_min_i32 s10, s10, s6
                s_cmp_gt_i32 s6, {self.o.get("thr", 150)}
                s_addc_u32 s17, s17, 0
                s_cmp_gt_i32 s6, s9
                s_cselect_b32 s9, s6, s9
                s_cselect_b32 s11, s7, s11""")
                a.label(f"L_cn{k}")
                a(f"s_add_u32 s5, s5, 1\ns_cmp_lt_u32 s5, {64 if k < 3 else 60}\ns_cbranch_scc1 L_cs{k}")
            a({"arg": "s_lshl_b32 s6, s11, 3", "range": "s_sub_u32 s6, s9, s10\ns_lshl_b32 s6, s6, 1", "zero": "s_mov_b32 s6, 0", "cnt": "s_lshl_b32 s6, s17, 4",
               "max": "s_lshl_b32 s6, s9, 1"}[mode])
            a("s_add_u32 s6, s6, 1000\ns_memrealtime s[4:5]\ns_waitcnt lgkmcnt(0)\ns_add_u32 s6, s6, s4")
            a.label("L_echo")
            a("s_memrealtime s[4:5]\ns_waitcnt lgkmcnt(0)\ns_sub_u32 s7, s6, s4\ns_cmp_gt_i32 s7, 0\ns_cbranch_scc1 L_echo")
            return
        if self.o.get("echo"):
            if self.o["echo"][0] == "skew":
                a(f"v_mov_b32 v16, 4\nbuffer_load_dword v17, v16, {sr(S_DB,4)}, 0 offen sc1\ns_waitcnt vmcnt(0)\nv_readfirstlane_b32 s98, v17\ns_not_b32 s98, s98")
                x, y = 98, S_ST + 2 * self.stnames.index(self.o["echo"][1])
            elif self.o.get("tst") and self.o["echo"][0] == self.o["echo"][1]: x, y = 92, 94
            else:
                x, y = [S_ST + 2 * self.stnames.index(n) for n in self.o["echo"]]
            lo, hi = self.o.get("echo_ids", (0, 999))
            a(f"""s_cmp_eq_u32 {sr(S_VAL)}, 0
            s_cbranch_scc1 L_end
            s_cmp_lt_u32 s2, {lo}
            s_cbranch_scc1 L_end
            s_cmp_ge_u32 s2, {hi}
            s_cbranch_scc1 L_end
            s_and_b32 s6, s2, {self.o.get("echo_m", 0)}
            s_cmp_lg_u32 s6, {self.o.get("echo_v", 0)}
            s_cbranch_scc1 L_end
            s_memrealtime s[4:5]
            s_waitcnt lgkmcnt(0)
            s_sub_u32 s6, {sr(y)}, {sr(x)}
            s_mul_i32 s6, s6, {self.o.get("echo_mul", 1)}
            s_lshr_b32 s6, s6, {self.o.get("echo_shr", 0)}
            s_add_u32 s6, s6, {self.o.get("echo_add", 0)}
            s_add_u32 s6, s6, s4""")
            a.label("L_echo")
            a("s_memrealtime s[4:5]\ns_waitcnt lgkmcnt(0)\ns_sub_u32 s7, s6, s4\ns_cmp_gt_i32 s7, 0\ns_cbranch_scc1 L_echo")
            return
        if self.o.get("dbgst"):
            a("s_waitcnt vmcnt(0)")
            self.stamp("done")
            a("s_waitcnt lgkmcnt(0)\ns_mov_b64 exec, 1")
            slots = [1, 2, 3, 4, 5, 6, 7, 9, 11, 12, 13, 14, 15]
            a(f"s_not_b32 {sr(S_T)}, {sr(S_ST)}\nv_mov_b32 v16, {sr(S_T)}\nv_mov_b32 v17, 4\nbuffer_atomic_umax v16, v17, {sr(S_DB,4)}, 0 offen sc1")
            for i in range(min(self.nst, 12)):
                a(f"v_mov_b32 v{18+2*i}, {sr(S_ST+2*i)}\nv_mov_b32 v{19+2*i}, {4*slots[i+1]}\nbuffer_atomic_umax v{18+2*i}, v{19+2*i}, {sr(S_DB,4)}, 0 offen sc1")
            return
        if not self.o.get("stamps"): return
        T = S_T
        a(f"""s_waitcnt lgkmcnt(0)
        s_lshl_b32 {sr(T)}, s2, 2
        s_add_u32 {sr(T)}, {sr(T)}, {sr(S_W)}
        s_lshl_b32 {sr(T)}, {sr(T)}, 7
        s_add_u32 {sr(T)}, {sr(T)}, {WS_DBG}
        v_mov_b32 v1, 0""")
        for i in range(26): a(f"v_mov_b32 {vr(16+i)}, {sr(S_ST+i)}")
        for i in range(7): a(f"buffer_store_dwordx4 {vr(16+4*i,4)}, v1, {sr(S_WS,4)}, {sr(T)} offen offset:{16*i}")

    def build(self):
        a = self.a
        self.stnames = []
        a.raw(f"; @launch grid=({NWG},1,1) block=(256,1,1) lds={LDS_TOTAL}")
        a.raw('.amdgcn_target "amdgcn-amd-amdhsa--gfx950"')
        a.raw(".text")
        a.raw(f".globl {NAME}")
        a.raw(".p2align 12")
        self.entry()
        self.phase_a()
        self.rest()
        a.label("L_fin")
        self.dump_stamps()
        a.label("L_end")
        a("s_endpgm")
        self.poll2()
        if not self.o.get("touch", 1): self.rare()
        a.label("L_dummy")
        if self.o.get("rot", 0): self.moved()
        self.fallback()
        self.wfuse()
        a.raw('.section .rodata,"a"')
        a.raw(".p2align 6")
        a.raw(kernel_desc(NAME, 512, 102, 256))
        return a.text()

    def S(self, buf, qb, i=0): return V_S + buf * 32 + qb * 8 + i
    def P(self, buf, qb, i=0): return V_P + buf * 16 + qb * 4 + i

    def k_reads(self, slot, V_K=V_K):
        ka, so = (V_KA, slot * SLOT) if slot < 2 else (V_HI, (slot - 2) * SLOT)
        out = [f"ds_read_b128 {vr(V_K+8*s+4*kb,4)}, {vr(ka)} offset:{so + 2048*s + 256*kb}" for s in range(4) for kb in range(2)]
        out += [f"ds_read_b64 {vr(V_K+32+2*kb,2)}, {vr(ka+1)} offset:{so + 8192 + 512*kb}" for kb in range(2)]
        return out

    def v_reads(self, slot, dst=V_V):
        (va, vr_, vb), so = ((V_VA, V_VR, V_VB), slot * SLOT) if slot < 2 else ((V_HI + 2, V_HI + 4, V_HI + 5), (slot - 2) * SLOT)
        out = []
        for T in range(9):
            for u in range(2):
                if T < 8: out.append(f"ds_read_b64_tr_b16 {vr(dst+4*T+2*u,2)}, {vr((va if T < 4 else vb)+(T&1))} offset:{so + 2048*((T>>1)&1) + 256*u}")
                else: out.append(f"ds_read_b64_tr_b16 {vr(dst+4*T+2*u,2)}, {vr(vr_)} offset:{so + 8192 + 512*u}")
        return out

    def qk_mfmas(self, buf, czero=False):
        out = []
        for s in range(5):
            for kb in range(2):
                for qb in range(4):
                    d = vr(self.S(buf, qb, 4 * kb), 4)
                    c = ("0" if czero else vr(V_CI + 4 * qb, 4)) if s == 0 else d
                    if s < 4: out.append(f"v_mfma_f32_16x16x32_bf16 {d}, {vr(V_K+8*s+4*kb,4)}, {ar(A_Q+18*qb+4*s,4)}, {c}")
                    else: out.append(f"v_mfma_f32_16x16x16_bf16 {d}, {vr(V_K+32+2*kb,2)}, {ar(A_Q+18*qb+16,2)}, {c}")
        return out

    def pv_mfmas(self, buf, czero=False):
        out = []
        for T in range(9):
            for qb in range(4):
                o = ar(A_O + 36 * qb + 4 * T, 4)
                out.append(f"v_mfma_f32_16x16x32_bf16 {o}, {vr(V_V+4*T,4)}, {vr(self.P(buf,qb),4)}, {'0' if czero else o}")
        return out

    def plan(self):
        o = self.o
        n = 76
        fixed = [None] * n
        for i, g in enumerate(range(1, 36, 2)): fixed[g] = ("V", i)
        for i, g in enumerate([41, 44, 47, 50, 53, 56, 59, 62, 65, 68]): fixed[g] = ("K", i)
        for i, g in enumerate([42, 46, 49, 52, 55, 58, 61, 64, 67]): fixed[g] = ("D", i)
        exps = [(qb, j) for qb in range(4) for j in range(8)]
        start = 40
        order = [(start + k) % n for k in range(n)]
        free_idx = [k for k, g in enumerate(order) if fixed[g] is None]
        nsm = len(free_idx) - 32
        cand = free_idx[6:-2]
        sm_set = set(free_idx[-2:]) | {cand[int((i + 0.5) * len(cand) / (nsm - 2))] for i in range(nsm - 2)}
        nds = sum(1 for f in fixed if f is not None and f[0] != "D")
        ls = o.get("lsum", "add")
        over = max(0, (48 if ls == "add" else 32) - nds - 2 * nsm)
        ocand = [k for k, g in enumerate(order) if k >= 20 and (fixed[g] is None or fixed[g][0] != "D")]
        o_set = {ocand[int((i + 0.5) * len(ocand) / over)] for i in range(over)}
        later = []
        gaps = [[] for _ in range(n)]
        small, pend, ei = [], [], 0
        for k, g in enumerate(order):
            new = (start + k) < n
            small.extend(pend); pend = later; later = []
            small.sort(key=lambda t: 0 if t[0] == "c" else 1)
            f = fixed[g]
            want = 0
            if f is not None:
                gaps[g].append((f[0], f[1], None))
                if f[0] == "D": continue
                want = 1
            elif k in sm_set: want = 2
            else:
                qb, j = exps[ei]; ei += 1
                gaps[g].append(("E", ("e", qb, j), new))
                if j & 1: pend.append(("c", qb, j // 2))
                if ls == "add": pend.append(("a", qb, j))
                elif j & 1 and ls == "pk": pend.append(("p", qb, j // 2))
            if k in o_set: want += 1
            if k == n - 1: want = 99
            for _ in range(want):
                if small:
                    it = small.pop(0)
                    gaps[g].append(("E", it, new))
                    if it[0] == "c" and ls == "dot": (small if k == n - 1 else pend).append(("d", it[1], it[2]))
        assert not small and not pend and ei == 32
        self.gaps = gaps

    def pack(self, mf, items):
        a = self.a
        where, order, done, nvm, mpos = {}, [], 0, 0, []
        isds = lambda it: "ds_" in it["t"]
        self.over = 0
        for g, m in enumerate(mf):
            assert not any(it.get("need", 999) <= g and i not in where for i, it in enumerate(items)), g
            idx = [k for k, n_ in enumerate(order) if n_ <= g]
            if idx and max(idx) + 1 > done:
                a(f"s_waitcnt lgkmcnt({min(15, len(order) - 1 - max(idx))})"); done = max(idx) + 1
            if m.startswith("@W"):
                w_, m = m.split("\n", 1)
                a(f"s_waitcnt lgkmcnt({min(15, int(w_[2:]) + len(order))})")
            a(m)
            mpos.append(len(a.lines))
            cap, pick = 8, []
            for phase in (0, 1):
                for i, it in enumerate(items):
                    if i in where or it.get("lo", 0) > g: continue
                    if "am" in it and (it["am"] >= g or len(a.lines) - mpos[it["am"]] < 8): continue
                    d = it.get("dep")
                    if d is not None and not all(where.get(x, 999) < g for x in d): continue
                    if (phase == 0 and it.get("hi", 999) <= g) or (phase == 1 and it["c"] <= cap):
                        if it["t"].startswith("buffer") and pick and any(items[x]["c"] for x in pick) and phase == 1: continue
                        if isds(it) and sum(isds(items[x]) for x in pick) >= it.get("nds", 1) and phase == 1: continue
                        pick.append(i); where[i] = g; cap -= it["c"]
            key = lambda i: 0 if items[i]["c"] == 0 else 1 if isds(items[i]) else 2 if items[i]["t"].startswith("buffer") else 3
            for i in sorted(pick, key=key):
                a(items[i]["t"].replace("@VM", f"s_waitcnt vmcnt({nvm})"))
                nvm += items[i]["t"].startswith("buffer")
                if isds(items[i]): order.append(items[i].get("need", 999))
            self.over += max(0, -cap)
        return [it["t"] for i, it in enumerate(items) if i not in where]

    def e_items(self, buf, lst, lo, hi):
        items, idx = [], {}
        for it in lst:
            kind, qb, j = it
            d = dict(t=self.etext(buf, it), c=8 if kind == "e" else 4)
            if kind == "e": d["lo"] = lo(qb, j); d["hi"] = hi(qb) - 2 - (7 - j)
            else:
                need = [("e", qb, j)] if kind == "a" else [("c", qb, j)] if kind == "d" else [("e", qb, 2 * j), ("e", qb, 2 * j + 1)]
                d["dep"] = [idx[x] for x in need if x in idx]
                if kind == "c": d["hi"] = hi(qb) - (3 - j) // 2
            idx[it] = len(items); items.append(d)
        return items

    def etext(self, buf, it):
        kind, qb, j = it
        s = self.S(buf, qb)
        if kind == "e": return f"v_exp_f32 {vr(s+j)}, {vr(s+j)}"
        if kind == "d": return f"v_dot2_f32_bf16 {vr(V_L+qb)}, {vr(self.P(buf, qb, j))}, v227, {vr(V_L+qb)}"
        if kind == "p": return f"v_pk_add_f32 {vr(208+2*qb,2)}, {vr(208+2*qb,2)}, {vr(s+2*j,2)}"
        if kind == "a": return f"v_add_f32 {vr(V_L+qb)}, {vr(V_L+qb)}, {vr(s+j)}"
        return f"v_cvt_pk_bf16_f32 {vr(self.P(buf, qb, j))}, {vr(s+2*j)}, {vr(s+2*j+1)}"

    def period(self, p, qk=True, pv=True, e_old=True, e_new=True, kread=True, vread=True, dma=True, extra={}, dsub=None, ksub=None, vm=9, halves=(0, 1), inc=None):
        a = self.a
        bn, bo = (p + 1) & 1, p & 1
        qk_, pv_ = self.qk_mfmas(bn), self.pv_mfmas(bo, czero=(p == 0))
        qo, po = self.o.get("qkord", 1), self.o.get("pvord", 0)
        if qo == 1: qk_ = [qk_[8 * s_ + 4 * kb + qb] for kb in range(2) for qb in range(4) for s_ in range(4)] + qk_[32:]
        if qo == 2: qk_ = [qk_[8 * s_ + 4 * kb + qb] for qb in range(4) for kb in range(2) for s_ in range(4)] + qk_[32:]
        if qo == 3: qk_ = [qk_[8 * s_ + 4 * kb + qb] for qb in range(4) for s_ in range(4) for kb in range(2)] + qk_[32:]
        if po == 1: pv_ = [pv_[4 * T_ + qb] for qb in range(4) for T_ in range(9)]
        mf = qk_ + pv_
        kr, vrd = self.k_reads((p + 2) % RING), self.v_reads(p % RING)
        slot = p % RING
        n = 76
        sc = [[] for _ in range(n)]
        dgs = [g for g in range(n) if any(e[0] == "D" for e in self.gaps[g])]
        if dma:
            for j, g in enumerate(dgs):
                if j % 4 == 0: sc[g - 1].append(f"s_add_u32 m0, {sr(S_LB)}, {slot*SLOT + 4096*(j//4)}")
            sc[dgs[-1] + 1].append(f"s_add_u32 {sr(S_TOFF)}, {sr(S_TOFF)}, {inc or 4*TILE}")
        w = []
        if kread: w.append(f"vmcnt({vm})")
        if pv: w.append("lgkmcnt(0)")
        if w: sc[39].append("s_waitcnt " + " ".join(w))
        if kread: sc[75].append("s_waitcnt lgkmcnt(0)")
        for half in halves:
            rng = range(0, 40) if half == 0 else range(40, 76)
            on = qk if half == 0 else pv
            if not on:
                ds, mem, val, post = [], [], [], []
                for g in rng:
                    for s_ in sc[g]:
                        (post if s_.startswith("s_waitcnt") else mem).append(s_)
                    if g in extra: mem.append(extra[g])
                    for kind, d, new in self.gaps[g]:
                        if kind == "V" and vread: ds.append(vrd[d])
                        elif kind == "K" and kread: ds.append(kr[d])
                        elif kind == "D" and dma: mem.append(f"buffer_load_dwordx4 {vr(V_DMA + d//4)}, {sr(S_XA,4)}, {sr(S_TOFF)} offen offset:{1024*(d%4)} lds")
                        elif kind == "E" and ((new and e_new) or (not new and e_old)): val.append((d, self.etext(bn if new else bo, d)))
                if half == 1: a("s_nop 3")
                seq, pend = [], list(val)
                while pend:
                    k = 0
                    if seq and seq[-1][0][0] == "e":
                        le = seq[-1][0]
                        dep = lambda it: it[0][1] == le[1] and ((it[0][0] == "a" and it[0][2] == le[2]) or (it[0][0] == "c" and it[0][2] == le[2] // 2))
                        have = {x[0] for x in seq}
                        ok = lambda it: it[0][0] == "e" or (("e", it[0][1], it[0][2]) in have if it[0][0] == "a" else (("e", it[0][1], 2*it[0][2]+1) in have)) or not any(x[0][0] == "e" and x[0][1] == it[0][1] and (x[0][2] == it[0][2] if it[0][0] == "a" else x[0][2] // 2 == it[0][2]) for x in pend)
                        while k < len(pend) and (dep(pend[k]) or not ok(pend[k])): k += 1
                        if k == len(pend): seq.append((("n", 0, 0), "s_nop 0")); k = 0
                    seq.append(pend.pop(k))
                step = max(1, len(seq) // (len(mem) + len(ds) + 1))
                allm = ds + mem
                for x in allm[:6]: a(x)
                allm = allm[6:]
                for i_, (d, t_) in enumerate(seq):
                    a(t_)
                    if allm and i_ % step == step - 1:
                        x = allm.pop(0); a(x)
                        if x.startswith("s_add_u32 m0"): a("s_nop 0")
                for x in allm:
                    a(x)
                    if x.startswith("s_add_u32 m0"): a("s_nop 0")
                for x in post: a(x)
                if half == 0: a("s_nop 1")
                continue
            abl = self.o.get("abl", "") if 1 <= p <= 4 else ""
            for g in rng:
                if not ("Q" in abl and g < 40 or "P" in abl and g >= 40): a(mf[g])
                for s_ in sc[g]: a(s_)
                if g in extra: a(extra[g])
                for kind, d, new in self.gaps[g]:
                    if kind in abl or (kind == "E" and d[0] in abl): continue
                    if kind == "V":
                        if vread: a(vrd[d])
                    elif kind == "K":
                        if kread: a(kr[d])
                        elif ksub: a(ksub.pop(0))
                    elif kind == "D":
                        if dma: a(f"buffer_load_dwordx4 {vr(V_DMA + d//4)}, {sr(S_XA,4)}, {sr(S_TOFF)} offen offset:{1024*(d%4)} lds")
                        elif dsub: a(dsub.pop(0))
                    elif (new and e_new) or (not new and e_old):
                        a(self.etext(bn if new else bo, d))

    MK, VO, VO8, GA, VS0, VS0R, VDW, VLW, VL8, VST, VPL = 232, 236, 9, 238, 250, 251, 244, 245, 246, 247, 248
    NB, PT, E_U, E_G, RS3, E_COL, RS1, RS2, MP1 = 3, 4, 5, 6, 7, 43, 36, 37, 38
    G0, GM, GP, U, DWT = 16, 26, 36, 80, (90, 252, 96, 100, 112, 116, 104, 94)
    XRS = (192, 196, 46)
    frag = staticmethod(lambda f, b: [(f, b + 4 * s) for s in range(5)])
    WD = [[("a", 216 + 4 * s) for s in range(5)], [("a", 234 + 4 * s) for s in range(5)], [("v", 208 + 4 * s) for s in range(5)]]
    WO = [[("a", 4 * s) for s in range(5)], [("a", 18 + 4 * s) for s in range(5)], [("a", 36), ("a", 40), ("a", 44), ("a", 48), ("a", 252)]]
    X1B = 98304
    X2O = L_SP - X1B
    L_L = L_SP + 9216

    def epi_setup(self):
        a = self.a
        T = S_T
        NB, PT, VO, GA = self.NB, self.PT, self.VO, self.GA
        r, g4, x, y, big, r0 = 52, 53, 54, 55, 56, 57
        a(f"""s_lshr_b32 {sr(NB)}, {sr(S_W)}, 1
        s_and_b32 {sr(PT)}, {sr(S_W)}, 1
        v_and_b32 {vr(r0)}, 15, v0
        v_lshrrev_b32 {vr(g4)}, 4, v0
        v_mul_u32_u24 {vr(x)}, 288, {vr(r0)}
        v_mov_b32 {vr(big)}, 0x40000000
        s_lshl_b32 {sr(T)}, {sr(S_TOWN)}, 1
        s_add_u32 {sr(T)}, {sr(T)}, {sr(NB)}
        s_lshl_b32 {sr(T)}, {sr(T)}, 4
        v_add_u32 {vr(r)}, {sr(T)}, {vr(r0)}
        s_mul_i32 {sr(T+1)}, {sr(S_TOWN)}, {TILE}
        s_mul_i32 {sr(T+2)}, {sr(PT)}, {BLK}
        v_add_u32 {vr(x)}, {sr(T+1)}, {vr(x)}
        s_sub_u32 {sr(T+3)}, {BLK}, {sr(T+2)}
        v_add_u32 {vr(y)}, {sr(T+3)}, {vr(x)}
        v_add_u32 {vr(x)}, {sr(T+2)}, {vr(x)}
        v_lshl_add_u32 {vr(VO)}, {vr(g4)}, 4, {vr(x)}
        v_lshl_add_u32 {vr(VO+1)}, {vr(g4)}, 4, {vr(y)}
        v_lshl_add_u32 {vr(self.VO8)}, {vr(g4)}, 3, {vr(x)}
        s_lshl_b32 {sr(T+3)}, {sr(PT)}, 11
        s_add_u32 {sr(self.E_U)}, {sr(T+3)}, {WS_U}
        s_add_u32 {sr(self.E_G)}, {sr(T+3)}, {WS_G}
        s_sub_u32 {sr(T+3)}, 4096, {sr(T+3)}
        s_lshl_b32 {sr(T)}, {sr(PT)}, 11
        s_add_u32 {sr(T)}, {sr(T)}, {WS_DWF}
        v_lshrrev_b32 {vr(x)}, 2, {vr(r0)}
        v_cmp_eq_u32 vcc, {vr(x)}, {vr(g4)}
        v_lshl_add_u32 {vr(self.VDW)}, {vr(r0)}, 4, {sr(T)}
        s_nop 0
        v_cndmask_b32 {vr(self.VDW)}, {vr(big)}, {vr(self.VDW)}, vcc
        s_lshl_b32 {sr(self.E_COL)}, {sr(S_W)}, 6
        v_lshlrev_b32 {vr(self.VL8)}, 3, v0
        v_add_u32 {vr(self.VL8)}, 4096, {vr(self.VL8)}
        v_add_u32 {vr(self.VST)}, {sr(S_LB)}, {vr(V_DMA)}
        v_add_u32 {vr(self.VST)}, {2*SLOT}, {vr(self.VST)}
        s_xor_b32 {sr(T)}, {sr(NB)}, 1
        v_xor_b32 {vr(x)}, {sr(T)}, {vr(g4)}
        v_lshl_add_u32 {vr(x)}, {vr(x)}, 4, {vr(r0)}
        s_lshl_b32 {sr(T)}, {sr(S_W)}, 2
        s_add_u32 {sr(T)}, {sr(T)}, {self.L_L}
        v_lshl_add_u32 {vr(self.VLW)}, {vr(x)}, 4, {sr(T)}
        s_sub_u32 {sr(self.MP1)}, 0, {sr(PT)}
        s_mov_b32 {sr(self.MP1+1)}, {sr(self.MP1)}""")
        for k, (d, base) in enumerate(((self.RS1, 3 * SLOT), (self.RS2, 2 * SLOT), (self.RS3, 2 * SLOT))):
            a(f"s_xor_b32 {sr(T)}, {sr(S_W)}, {k+1}\ns_mul_i32 {sr(T)}, {sr(T)}, {TILE}\ns_add_u32 {sr(d)}, {sr(T)}, {base}")
        a(f"""s_mul_i32 {sr(T)}, {sr(S_B)}, 4000
        s_add_u32 {sr(T+1)}, {sr(T)}, 3999
        s_mov_b32 {sr(T+2)}, {BLK}""")
        for k, dr in enumerate((0, -1, 1)):
            m = GA + 2 * k
            if dr: a(f"v_add_u32 {vr(m)}, {dr}, {vr(r)}\nv_cmp_eq_u32 vcc, {sr(T if dr < 0 else T+1)}, {vr(r)}")
            src = m if dr else r
            a(f"""v_lshrrev_b32 {vr(x)}, 4, {vr(src)}
            v_and_b32 {vr(y)}, 15, {vr(src)}
            v_mul_lo_u32 {vr(x)}, {vr(x)}, {sr(T+2)}
            v_lshl_add_u32 {vr(y)}, {vr(g4)}, 4, {vr(y)}
            v_lshl_add_u32 {vr(m)}, {vr(y)}, 4, {vr(x)}
            v_lshl_add_u32 {vr(m+1)}, {vr(y)}, 3, {vr(x)}
            v_add_u32 {vr(m+1)}, {sr(T+3)}, {vr(m+1)}""")
            if dr: a(f"v_cndmask_b32 {vr(m)}, {vr(m)}, {vr(big)}, vcc\nv_cndmask_b32 {vr(m+1)}, {vr(m+1)}, {vr(big)}, vcc")

    def conv_loads(self):
        GA = self.GA
        L = []
        for dst, m, so in ((self.GM, GA + 2, 1), (self.G0, GA, 1), (self.GP, GA + 4, 1), (self.U, GA, 0)):
            for k in range(2): L.append(f"buffer_load_dwordx4 {vr(dst+4*k,4)}, {vr(m)}, {sr(S_WS,4)}, {sr(self.E_U+so)} offen offset:{1024*k}")
            L.append(f"buffer_load_dwordx2 {vr(dst+8,2)}, {vr(m+1)}, {sr(S_WS,4)}, {sr(self.E_U+so)} offen")
        return L

    def rg(self, e, n): return (ar if e[0] == "a" else vr)(e[1], n)

    def w8_loads(self, regs, so):
        return [f"buffer_load_dwordx4 {self.rg(regs[s],4)}, {vr(V_DMA)}, {sr(S_WS,4)}, {sr(so)} offen offset:{1024*s}" for s in range(4)] + \
               [f"buffer_load_dwordx2 {self.rg(regs[4],2)}, {vr(self.VL8)}, {sr(S_WS,4)}, {sr(so)} offen"]

    def w_reads(self, regs, off):
        L = []
        for tt in range(2):
            L += [f"ds_read_b128 {self.rg(regs[tt][s],4)}, {vr(self.VS0)} offset:{off + BLK*tt + 1024*s}" for s in range(4)]
            L.append(f"ds_read_b64 {self.rg(regs[tt][4],2)}, {vr(self.VS0R)} offset:{off + BLK*tt}")
        return L

    def wsn(self): return WS_DBG + (1 << 20 if self.o.get("stamps") else 0)

    def region(self, d, src):
        o = self.o
        if o["rot"] == 1: return f"s_lshl_b32 {sr(d)}, {sr(src)}, {24 - o.get('rsh', 14)}\ns_and_b32 {sr(d)}, {sr(d)}, 0x0f000000"
        return f"s_bfe_u32 {sr(d)}, {sr(src)}, {(o.get('rbits', 6) << 16) | o.get('rsh', 14)}\ns_mul_i32 {sr(d)}, {sr(d)}, {RSTR}\ns_add_u32 {sr(d)}, {sr(d)}, {RBASE}"

    def xa_srd(self, T=S_T):
        return f"""s_mul_i32 {sr(T)}, {sr(S_B)}, {NT}
        s_mul_i32 {sr(T+1)}, {sr(S_H)}, 63
        s_add_u32 {sr(T+1)}, {sr(T+1)}, {sr(T)}
        s_mul_i32 {sr(T+1)}, {sr(T+1)}, {TILE}
        {f"s_add_u32 {sr(T+1)}, {sr(T+1)}, {sr(S_RO)}" if self.o.get("rot", 0) == 2 else ""}
        s_add_u32 {sr(S_XA)}, {sr(S_WS)}, {sr(T+1)}
        s_addc_u32 {sr(S_XA+1)}, {sr(S_WS+1)}, 0
        s_sub_u32 {sr(T+2)}, 63, {sr(S_H)}
        s_mul_i32 {sr(S_XA+2)}, {sr(T+2)}, {TILE}
        s_mov_b32 {sr(S_XA+3)}, 0x20000"""

    def rest(self):
        a, o = self.a, self.o
        T = S_T
        VPL = self.VPL
        self.plan()
        self.head()
        self.stamp("loop")
        if o.get("sktest") or o.get("echo") and o["echo"][0] == "skew":
            a(f"s_waitcnt lgkmcnt(0)\ns_mov_b64 exec, 1\ns_not_b32 s98, {sr(S_ST)}\nv_mov_b32 v226, s98\nv_mov_b32 v227, 4\ns_cmp_lg_u32 {sr(S_W)}, 0\ns_cbranch_scc1 L_sk\nbuffer_atomic_umax v226, v227, {sr(S_DB,4)}, 0 offen sc1\ns_waitcnt vmcnt(0)\nL_sk:\ns_mov_b64 exec, -1\ns_nop 3")
            self.stamp("sk")
        nh = o.get("ugh", 2)
        ex = {2 + 12 * k: x for k, x in enumerate(self.ugs[nh:])}
        ugl = o.get("ugl", 1)
        CL = 226
        SI = S_OUT if o.get("oib", 0) else S_WS
        clr = [f"buffer_store_dwordx4 {vr(CL,4)}, {vr(V_DMA)}, {sr(SI,4)}, {sr(S_CL)} offen sc1",
               f"buffer_store_dwordx4 {vr(CL,4)}, {vr(V_DMA)}, {sr(SI,4)}, {sr(S_CL)} offen offset:1024 sc1",
               f"buffer_store_dwordx2 {vr(CL,2)}, {vr(self.VL8)}, {sr(S_WS,4)}, {sr(S_CL+1)} offen sc1"]
        cll = o.get("cll", 1)
        ex0 = {69: self.ugs[0], 71: clr[0]} if cll else {69: self.ugs[0]}
        if o.get("gs", 0):
            for j, x in enumerate(self.tile_groups(3)):
                g_ = o.get("t3g", 2) + 4 * j
                x = x.split("\n")
                if x[0].startswith("s_add_u32 m0"): ex0[g_ - 1] = x[0]; x = x[2:]
                ex0[g_] = "\n".join(x)
        if ugl: self.period(0, extra=ex0)
        else: self.period(0, vm=9 + 5, extra=ex)
        self.stamp("l0")
        a.raw(".p2align 6")
        a.label("L_loop")
        self.stamp("q1")
        for p in range(1, 5):
            ex = {}
            vm = 9
            if p == 1: ex = {73: f"s_cmp_eq_u32 {sr(S_CNT)}, 3"}
            if p == 2: ex = {70: f"buffer_load_dword v252, {vr(VPL)}, {sr(S_WS,4)}, 0 offen sc1"}
            if p == 3:
                ex = {73: f"s_cmp_eq_u32 {sr(S_CNT)}, 2", 45: f"ds_add_rtn_u32 v230, v231, {vr(VPL+1)}"}
            if p == 4:
                self.stamp("la0")
                a(f"s_cbranch_scc1 L_last")
                a.label("L_lastb")
                self.stamp("la1")
                ex = {72: f"s_add_u32 {sr(S_CNT)}, {sr(S_CNT)}, 1", 1: f"v_readfirstlane_b32 {sr(T)}, v230", 3: f"s_cmp_eq_u32 {sr(T)}, 3",
                      4: f"s_cselect_b32 {sr(T)}, {sr(S_FB)}, 2.0", 6: f"buffer_store_dword v207, v231, {sr(S_WS,4)}, {sr(T)} offen sc1"}
            if ugl:
                ex[69] = self.ugs[p]
                if p < 3 and cll: ex[72] = clr[p]
                if p == 3 and cll: ex.update({70: f"s_mov_b32 {sr(S_CL)}, 2.0", 71: f"s_mov_b32 {sr(S_CL+1)}, 2.0"})
                if p == 4: ex.update({71: f"s_mov_b32 {sr(S_UG)}, 2.0", 2: f"s_lshl2_add_u32 {sr(T)}, {sr(S_CNT)}, {sr(T)}", 3: f"s_cmp_eq_u32 {sr(T)}, 7"})
                if p == 3: ex.update({43: f"s_and_b32 {sr(T)}, {sr(S_CNT)}, 1", 44: f"v_mov_b32 {vr(VPL+1)}, {sr(T)}", 48: ex.pop(45)})
            for k_ in range(o.get("pad", 0)): ex[10 + 7 * k_] = ex.get(10 + 7 * k_, "s_nop 0") + "\ns_nop 7"
            self.period(p, extra=ex, inc=sr(S_INC) if p == 4 else None)
            if p == 1: a("s_cbranch_scc1 L_p14")
        a("s_branch L_loop")
        a.label("L_p14")
        SW = 66
        self.stamp("p14")
        a(f"s_cmp_eq_u32 {sr(S_DUM)}, 4\ns_cbranch_scc0 L_dummyb")
        for i in range(16): a(f"v_mov_b32 {vr(V_CI+i)}, 0xff800000")
        a("s_nop 1")
        a.label("L_dummyb")
        ex = dict(zip([2, 6, 8, 12, 14, 18, 20, 24, 26, 30], self.w_reads(self.WD, 0)))
        ex[0] = "s_waitcnt vmcnt(9)"
        ex.update(dict(zip([4, 10, 16, 22, 28], self.w8_loads(self.WD[2], SW))))
        self.period(14, dma=False, kread=False, extra=ex, halves=(0,))
        self.stamp("tail")
        self.tail(SW)
        self.stamp("end")
        self.epilogue(SW)

    def rare(self):
        a = self.a
        T = S_T
        SW = 66
        a.label("L_last")
        a(f"s_waitcnt vmcnt(9)\ns_mov_b32 {sr(T+2)}, 0")
        a.label("L_late")
        xc = f"v_readlane_b32 {sr(S_SX)}, v252, 5\ns_sub_u32 {sr(S_SX)}, {sr(S_SX)}, {sr(S_N)}" if self.o.get("xm", 0) else ""
        a(f"""v_cmp_ne_u32 vcc, {sr(S_N)}, v252
        s_add_u32 {sr(S_XA)}, {sr(S_WS)}, {WS_WF}
        s_addc_u32 {sr(S_XA+1)}, {sr(S_WS+1)}, 0
        s_mov_b32 {sr(S_XA+2)}, {18*BLK}
        s_add_u32 {sr(S_TOFF)}, {sr(S_LB)}, {9*BLK}
        s_mov_b32 {sr(S_INC)}, {-9*BLK}
        s_lshr_b32 {sr(SW)}, {sr(S_W)}, 1
        s_lshl_b32 {sr(SW)}, {sr(SW)}, 30
        s_add_u32 {sr(SW+1)}, {sr(SW)}, {WS_WF + 8*BLK}
        s_add_u32 {sr(SW)}, {sr(SW)}, {WS_WF + 17*BLK}
        {xc}
        s_and_b32 {sr(T)}, vcc_lo, 31
        s_cbranch_scc0 L_lastb
        buffer_load_dword v252, {vr(self.VPL)}, {sr(S_WS,4)}, 0 offen sc1
        s_add_u32 {sr(T+2)}, {sr(T+2)}, 1
        s_waitcnt vmcnt(0)
        s_cmp_lt_u32 {sr(T+2)}, 0x40000
        s_cbranch_scc1 L_late
        s_branch L_lastb""")

    units = [(0, 0), (0, 1), (1, 0), (1, 1), (2, 0)]
    V15 = V_K

    def stage(self, slot, T):
        src = ar(A_O + 36 * slot + 4 * T, 4)
        if slot == 0: return f"ds_write_b128 {vr(self.VST)}, {src} offset:{1024*T}"
        if slot == 2: return f"ds_write_b128 {vr(self.VS0)}, {src} offset:{1024*T}"
        if T < 4: return f"ds_write_b128 {vr(self.VST)}, {src} offset:{SLOT + 1024*T + (4096 if slot == 3 else 0)}"
        return f"{'s_not_b64' if slot == 1 else 's_mov_b64'} exec, {sr(self.MP1,2)}\nds_write_b128 {vr(self.VST)}, {src} offset:{SLOT + 8192}\ns_mov_b64 exec, -1"

    def dwf(self, k, i):
        f = 5 * k + i
        return self.DWT[f >> 1] + 2 * (f & 1)

    def tail(self, SW):
        a, o = self.a, self.o
        mf, pos, start = [], {}, {}
        for t_, qb in ((14, 0), (14, 1), (15, 0), (15, 1), (14, 2), (15, 2), (14, 3), (15, 3)):
            start[t_, qb] = len(mf)
            for Tt in ([0, 1, 2, 3, 8, 4, 5, 6, 7] if qb & 1 else range(9)):
                o_ = ar(A_O + 36 * qb + 4 * Tt, 4)
                pos[t_, qb, Tt] = len(mf)
                mf.append(f"v_mfma_f32_16x16x32_bf16 {o_}, {vr((V_V if t_ == 14 else self.V15)+4*Tt,4)}, {vr(self.P(t_ & 1,qb),4)}, {o_}")
        lst = []
        for qb in range(4):
            for j in range(8):
                lst.append(("e", qb, j))
                if j & 1: lst.append(("c", qb, j // 2))
        lst += [("a", qb, j) for qb in range(4) for j in range(8)]
        items = self.e_items(1, lst, lambda qb, j: 0 if j < 4 else 1, lambda qb: start[15, qb] - 2)
        for it in items[48:]: it["lo"] = o.get("alo", 26)
        v15 = [dict(t=x, c=4, need=pos[15, 0, i // 2], hi=pos[15, 0, i // 2] - o.get("vlead", 7), lo=0 if i < 16 else 2) for i, x in enumerate(self.v_reads(3, self.V15))]
        wr = []
        nown = o.get("nown", 4)
        self.own = [(2, T_) for T_ in range(nown, 9)] + [(3, T_) for T_ in (0, 1, 2, 3, 8)]
        g = o.get("w0", 23)
        for k, (sl, Tt) in enumerate([(0, T_) for T_ in range(9)] + [(1, T_) for T_ in (0, 1, 2, 3, 8)] + [(2, T_) for T_ in range(nown)]):
            g = max(pos[15, sl, Tt] + 5, g)
            wr.append(dict(t=self.stage(sl, Tt), c=o.get("wc", 20), lo=int(g), hi=int(g)) if g < 72 else dict(t=self.stage(sl, Tt), c=4, lo=999))
            g += o.get("wsp", 2.7)
        n0 = len(items) + len(v15)
        wo = []
        for i, x in enumerate(self.w_reads(self.WO, SLOT)):
            r0 = self.WO[i // 5][i % 5][1]
            wo.append(dict(t=("@VM\n" if i == 0 else "") + x, c=4, dep=sorted({n0 + r0 // 4, n0 + (r0 + 3) // 4 if (r0 + 3) // 4 < 9 else n0 + 8}), lo=o.get("wo0", 40) + 3 * i, hi=o.get("wo0", 40) + 3 * i + 2))
        cl = self.conv_loads()
        dl = [f"buffer_load_dwordx4 {vr(self.DWT[r],4)}, {vr(self.VDW)}, {sr(S_WS,4)}, 0 offen offset:{256*r}" for r in range(7)]
        dl.append(f"buffer_load_dwordx2 {vr(self.DWT[7],2)}, {vr(self.VDW)}, {sr(S_WS,4)}, 0 offen offset:{256*7}")
        fr = {96: 9, 100: 18, 104: 45, 112: 27, 116: 36}
        vm = [(x, 0) for x in cl] + [(x, fr.get(self.DWT[r], 0)) for r, x in enumerate(dl)]
        used = {w["lo"] for w in wr}
        vi, g = [], o.get("m0", 24)
        for x, lo in vm:
            g = max(g, lo)
            while int(g) in used: g += 1
            vi.append(dict(t=x, c=8, lo=int(g), hi=int(g)) if g < 72 else dict(t=x, c=8, lo=999))
            g += o.get("msp", 2.2)
        left = self.pack(mf, items + v15 + wr + wo + vi)
        self.done_a = {(qb, j) for qb in range(4) for j in range(8) if self.etext(1, ("a", qb, j)) not in left}
        left = [x for x in left if not x.startswith("v_add_f32")]
        print("tail overflow", self.over, "left", len(left), "adds done", len(self.done_a))
        self.left = left

    def epilogue(self, SW):
        a, o = self.a, self.o
        T = S_T
        p = lambda r: vr(r, 2)
        NB, PT, MK, VO, units, MP1 = self.NB, self.PT, self.MK, self.VO, self.units, self.MP1
        U, GM, G0, GP = self.U, self.GM, self.G0, self.GP
        X2O = self.X2O
        R1, R2, R3 = 230, 231, 249
        LA, LS, M = 10, 226, 48

        def weave(main, fill, per):
            fill = list(fill)
            for x in main:
                a(x)
                for _ in range(per):
                    if fill: a(fill.pop(0))
            return fill
        for x in self.left:
            if not x.startswith("buffer"): a(x)
        lv = [x for x in self.left if x.startswith("buffer")]
        lv += [f"buffer_load_dwordx4 {vr(self.XRS[j],4)}, {vr(VO+j)}, {sr(S_X,4)}, {sr(self.E_COL)} offen" for j in range(2)]
        lv.append(f"buffer_load_dwordx2 {vr(self.XRS[2],2)}, {vr(self.VO8)}, {sr(S_X,4)}, 0 offen offset:256")
        S1 = lambda qb, j: self.S(1, qb, j)
        rounds = [[] for _ in range(6)]
        for qb in range(4):
            rem = [j for j in range(8) if (qb, j) not in self.done_a]
            prs = [j for j in rem if j % 2 == 0 and j + 1 in rem]
            sing = [j for j in rem if (j & ~1) not in prs]
            r_ = 0
            while len(prs) > 1:
                for x, y in zip(prs[0::2], prs[1::2]): rounds[r_].append(f"v_pk_add_f32 {p(S1(qb,x))}, {p(S1(qb,x))}, {p(S1(qb,y))}")
                prs = prs[0::2]; r_ += 1
            for k_, j in enumerate(sing + ([prs[0], prs[0] + 1] if prs else [])): rounds[min(5, max(r_, 2) + k_)].append(f"v_add_f32 {vr(V_L+qb)}, {vr(V_L+qb)}, {vr(S1(qb,j))}")
        for r_ in rounds:
            for x in r_: a(x)
        a(f"v_add_u32 {vr(R1)}, {sr(self.RS1)}, {vr(V_DMA)}\nv_add_u32 {vr(R2)}, {sr(self.RS2)}, {vr(V_DMA)}")
        self.treduce(V_L)
        a(f"ds_write_b32 {vr(self.VLW)}, {vr(V_L)}")
        acc = lambda slot: [f"v_accvgpr_read_b32 {vr(M+i)}, {ar(A_O+36*slot+16+i)}" for i in range(20)]
        a(f"""v_add_u32 {vr(R3)}, {sr(self.RS3)}, {vr(V_DMA)}
        v_add_u32 {vr(LA+1)}, {self.L_L}, {vr(V_DMA)}
        v_and_b32 {vr(LS+1)}, 0xf0, {vr(V_DMA)}
        s_lshl_b32 {sr(T)}, {sr(NB)}, 8
        s_add_u32 {sr(T+8)}, {sr(T)}, {self.L_L}
        v_add_u32 {vr(LS)}, {sr(T+8)}, {vr(LS+1)}""")
        for x in lv: a(x)
        a(f"""s_xor_b32 {sr(T)}, s2, 1
        s_mul_i32 {sr(T)}, {sr(T)}, {IB}
        s_mul_i32 {sr(T+9)}, {sr(NB)}, 5120
        s_add_u32 {sr(T+9)}, {sr(T+9)}, {WS_IB}
        s_add_u32 {sr(T)}, {sr(T)}, {sr(T+9)}
        s_lshl_b32 {sr(T+10)}, {sr(PT)}, 11
        {"" if o.get("oib", 0) else f"s_add_u32 {sr(T+1)}, {sr(T+10)}, {sr(T)}"}
        s_add_u32 {sr(T)}, {sr(T)}, 4096
        s_cmp_eq_u32 {sr(PT)}, 0
        s_cselect_b32 {sr(T)}, 0x40000000, {sr(T)}
        s_mov_b32 {sr(T+2)}, {f32(2.0**100)}
        s_mul_i32 {sr(T+12)}, s2, {IB}
        s_add_u32 {sr(T+12)}, {sr(T+12)}, {sr(T+9)}
        {"" if o.get("oib", 0) else f"s_add_u32 {sr(T+13)}, {sr(T+12)}, {sr(T+10)}"}
        s_waitcnt lgkmcnt(0)
        s_barrier""")
        self.stamp("B1")

        def rd(X, offs):
            L = [[f"ds_read_b128 {vr(X[k][i],4)}, {vr((R1, R2, R3)[k])} offset:{offs[k] + 1024*i}" for i in range(4)] for k in range(3)]
            L8 = [f"ds_read_b128 {vr(X[k][4],4)}, {vr((R1, R2, R3)[k])} offset:8192" for k in range(3)]
            return L, L8

        def adds(X, k, rng):
            return [f"v_pk_add_f32 {p(M+4*i+2*h)}, {p(M+4*i+2*h)}, {p(X[k][i]+2*h)}" for i in rng for h in range(2)]
        X = [[128, 132, 136, 140, 144], [148, 152, 156, 160, 68], [72, 76, 200, 204, 108]]
        PK = 128
        sfl = o.get("sfl", "")
        oib = o.get("oib", 0)
        SI = S_OUT if oib else S_WS
        L, L8 = rd(X, (0, 4096, 0))
        a(f"ds_read_b128 {vr(LA,4)}, {vr(LA+1)}\nds_read_b128 {vr(LS,4)}, {vr(LS)}")
        rest = weave(L[0] + L[1] + L[2], acc(1), 2)
        assert not rest
        a(f"s_mov_b64 exec, {sr(MP1,2)}")
        for x in L8: a(x)
        a(f"""s_mov_b64 exec, -1
        s_waitcnt lgkmcnt(11)
        v_add_f32 {vr(LA)}, {vr(LA)}, {vr(LA+1)}
        v_add_f32 {vr(LA+2)}, {vr(LA+2)}, {vr(LA+3)}
        v_add_f32 {vr(LS)}, {vr(LS)}, {vr(LS+1)}
        v_add_f32 {vr(LA)}, {vr(LA)}, {vr(LA+2)}
        v_add_f32 {vr(LS+2)}, {vr(LS+2)}, {vr(LS+3)}
        v_cmp_nge_f32 vcc, {sr(T+2)}, {vr(LA)}""")
        for x in adds(X, 0, range(4)): a(x)
        a(f"""s_cmp_lg_u64 vcc, 0
        s_cselect_b32 {sr(T+2)}, 1, 0
        s_andn2_b32 {sr(T+2)}, {sr(T+2)}, {sr(S_REDO)}
        s_cbranch_scc1 L_fallback
        v_add_f32 {vr(PK+10)}, {vr(LS)}, {vr(LS+2)}
        v_mov_b32 {vr(PK+11)}, {vr(MK+1)}
        s_waitcnt lgkmcnt(7)""")
        for x in adds(X, 1, range(4)): a(x)
        a("s_waitcnt lgkmcnt(3)")
        a3 = adds(X, 2, range(4))
        cv = [f"v_cvt_pk_bf16_f32 {vr(PK+i)}, {vr(M+2*i)}, {vr(M+2*i+1)}" for i in range(10)]
        for x in a3[:4] + a3[4:6] + cv[:4]: a(x)

        def send(fl):
            a(f"buffer_store_dwordx4 {vr(PK,4)}, {vr(V_DMA)}, {sr(SI,4)}, {sr(S_OS if oib else T+1)} offen {fl}")
            for x in a3[6:] + cv[4:8]: a(x)
            a(f"buffer_store_dwordx4 {vr(PK+4,4)}, {vr(V_DMA)}, {sr(SI,4)}, {sr(S_OS if oib else T+1)} offen offset:1024 {fl}")
            a("s_waitcnt lgkmcnt(0)")
            for kk in range(3):
                for x in adds(XS, kk, [4]): a(x)
            for x in cv[8:]: a(x)
            a(f"buffer_store_dwordx4 {vr(PK+8,4)}, {vr(V_DMA)}, {sr(S_WS,4)}, {sr(T)} offen {fl}")
        XS = X
        self.send = send
        if o.get("xm", 0) and o.get("l2s", 1):
            a(f"s_cmp_eq_u32 {sr(S_SX)}, {sr(S_XC)}\ns_cbranch_scc0 L_far")
            send(sfl)
            a.label("L_sent")
        else: send("sc1")
        self.stamp("sent")
        a(f"s_cmp_eq_u32 {sr(S_VAL)}, 0\ns_cbranch_scc1 L_fin")
        C, UP = 140, 68
        IN = [(200, 204, 226), (164, 168, 252), (192, 196, 172)]
        VXW, VXR, VF, LO = 78, 79, 10, 36
        wr = [self.stage(*e) for e in self.own]

        def inbox(k):
            return [f"buffer_load_dwordx4 {vr(IN[k][0],4)}, {vr(V_DMA)}, {sr(SI,4)}, {sr(S_OR if oib else T+13)} offen sc1",
                    f"buffer_load_dwordx4 {vr(IN[k][1],4)}, {vr(V_DMA)}, {sr(SI,4)}, {sr(S_OR if oib else T+13)} offen offset:1024 sc1",
                    f"buffer_load_dwordx4 {vr(IN[k][2],4)}, {vr(V_DMA+1)}, {sr(S_WS,4)}, {sr(T+12)} offen sc1"]
        for x in inbox(0): a(x)
        n0 = len(a.lines)
        a(f"""s_lshl_b32 {sr(T)}, {sr(NB)}, 12
        s_add_u32 {sr(T)}, {sr(T)}, {sr(T+10)}
        s_add_u32 {sr(T)}, {sr(T)}, {self.X1B}
        v_add_u32 {vr(VXW)}, {sr(T)}, {vr(V_DMA)}
        s_lshl_b32 {sr(T)}, {sr(NB)}, 9
        s_add_u32 {sr(T)}, {sr(T)}, {self.X1B + 4096}
        v_add_u32 {vr(VXR)}, {sr(T)}, {vr(self.VL8)}
        s_lshl_b32 {sr(T)}, {sr(PT)}, 12
        s_add_u32 {sr(T)}, {sr(T)}, {self.X1B}
        v_add_u32 {vr(VF)}, {sr(T)}, {vr(V_DMA)}
        v_xor_b32 {vr(VF+1)}, 4096, {vr(VF)}
        s_lshl_b32 {sr(T)}, {sr(PT)}, 9
        s_add_u32 {sr(T)}, {sr(T)}, {self.X1B + 4096}
        v_add_u32 {vr(VF+2)}, {sr(T)}, {vr(self.VL8)}
        v_xor_b32 {vr(VF+3)}, 512, {vr(VF+2)}
        v_subrev_u32 {vr(R2)}, {2*SLOT}, {vr(R2)}
        v_subrev_u32 {vr(R3)}, {2*SLOT}, {vr(R3)}
        s_waitcnt vmcnt(9)""")
        self.stamp("cv0")
        un = [f"v_lshlrev_b32 {vr(M+2*i)}, 16, {vr(U+i)}\nv_and_b32 {vr(M+1+2*i)}, 0xffff0000, {vr(U+i)}" for i in range(10)]
        w8 = self.w8_loads(self.WO[2], SW + 1)
        for k, src in enumerate((GM, G0, GP)):
            for i in range(5):
                d = vr(C + 4 * i, 4)
                a(f"v_mfma_f32_16x16x16_bf16 {d}, {vr(self.dwf(k, i),2)}, {vr(src+2*i,2)}, {'0' if k == 0 else d}")
                a(w8.pop(0) if i in (0, 3) and w8 else un.pop(0))
        self.stamp("cv1")
        a(f"v_and_b32 {vr(LO+1)}, 0xf0, {vr(V_DMA)}\nv_add_u32 {vr(LO)}, {sr(T+8)}, {vr(LO+1)}\ns_nop 1")
        for i in range(10): a(f"v_pk_mul_f32 {p(C+2*i)}, {p(C+2*i)}, {p(M+2*i)}")
        for i in range(10):
            a(f"v_cvt_pk_bf16_f32 {vr(UP+i)}, {vr(C+2*i)}, {vr(C+2*i+1)}")
        body = a.lines[n0:]; del a.lines[n0:]
        step = max(1, len(body) // len(wr))
        for i, l in enumerate(body):
            if i % o.get("wstep", step) == 0 and wr: a(wr.pop(0))
            a.lines.append(l)
        for x in wr: a(x)
        ac = acc(3)
        a(f"ds_write_b128 {vr(VXW)}, {vr(UP,4)} offset:{X2O}")
        for x in ac[:6]: a(x)
        a(f"ds_write_b128 {vr(VXW)}, {vr(UP+4,4)} offset:{X2O + 1024}")
        for x in ac[6:12]: a(x)
        a(f"""s_mov_b64 exec, {sr(MP1,2)}
        ds_write_b64 {vr(VXR)}, {vr(UP+8,2)} offset:{X2O}
        s_mov_b64 exec, -1""")
        self.stamp("x2")
        for x in inbox(1): a(x)
        for x in ac[12:]: a(x)
        a("s_waitcnt lgkmcnt(0)\ns_barrier")
        self.stamp("B2")
        X = [[128, 132, 136, 140, 144], [148, 152, 156, 160, 188], [16, 20, 24, 28, 32]]
        L, L8 = rd(X, (4096, 4096, 0))
        BU = [[("v", r) for r in (100, 104, 108, 112, 116)], [("v", r) for r in (118, 122, 180, 184, 126)]]
        BO = [self.frag("v", 128), self.frag("v", 146)]
        AB = 80

        def bfrags(dst, off):
            out = []
            for s in range(5):
                for j in range(2):
                    out.append(f"ds_read_b128 {self.rg(dst[j][s],4)}, {vr(VF+j)} offset:{off + 1024*s}" if s < 4 else f"ds_read_b64 {self.rg(dst[j][4],2)}, {vr(VF+2+j)} offset:{off}")
            return out

        def fg(W, Bf):
            out = []
            for s in range(5):
                for u, (tt, j) in enumerate(units):
                    d = vr(AB + 4 * u, 4)
                    if s < 4: out.append(f"v_mfma_f32_16x16x32_bf16 {d}, {self.rg(W[tt][s],4)}, {self.rg(Bf[j][s],4)}, {d}")
                    else: out.append(f"v_mfma_f32_16x16x16_bf16 {d}, {self.rg(W[tt][4],2)}, {self.rg(Bf[j][4],2)}, {d}")
            return out
        xu = []
        for u, (tt, j) in enumerate(units):
            for h in range(2):
                x = self.XRS[j] + 2 * tt + h if tt < 2 else self.XRS[2] + h
                xu += [f"v_lshlrev_b32 {vr(AB+4*u+2*h)}, 16, {vr(x)}", f"v_and_b32 {vr(AB+1+4*u+2*h)}, 0xffff0000, {vr(x)}"]
        a("s_waitcnt vmcnt(14)")
        weave(bfrags(BU, X2O), xu, 2)
        pl = lambda k, i, e: f"v_add_f32 {vr(M+4*i+e)}, {vr(M+4*i+e)}, {vr(X[k][i]+e)}"
        ds = L[0] + L[1] + L[2] + [f"s_not_b64 exec, {sr(MP1,2)}\n" + "\n".join(L8) + "\ns_mov_b64 exec, -1", f"ds_read_b128 {vr(LO,4)}, {vr(LO)} offset:512"]
        nis = [1] * 12 + [3, 1]
        gap = [[] for _ in range(25)]
        tot = [10]
        for g in range(25): tot.append(tot[-1] + (nis[g] if g < 14 else 0))
        A0 = [pl(0, i, e) for i in range(4) for e in range(4)]
        A1 = [pl(1, i, e) for i in range(4) for e in range(4)]
        ib = inbox(2)
        for g, m in enumerate(fg(self.WD, BU)):
            if g % 5 == 0: a(f"s_waitcnt lgkmcnt({min(15, tot[g] - 2 * (g // 5 + 1))})")
            a(m)
            if g == 8: a(f"s_waitcnt lgkmcnt({tot[g] - 14})")
            if g == 16: a(f"s_waitcnt lgkmcnt({tot[g] - 18})")
            if g < 14: a(ds[g])
            if 8 <= g < 14: a(A0.pop(0))
            elif g in (14, 18, 22): a(ib.pop(0))
            elif g >= 14:
                for _ in range(2): a(A0.pop(0) if A0 else A1.pop(0))
        assert not A0 and len(A1) % 2 == 0
        n1 = 16 - len(A1)
        for e in range(n1, 16, 2): a(f"v_pk_add_f32 {p(M+e)}, {p(M+e)}, {p(X[1][e//4]+e%4)}")
        a("s_waitcnt lgkmcnt(0)")
        for x in adds(X, 2, range(4)): a(x)
        a(f"v_add_f32 {vr(LO)}, {vr(LO)}, {vr(LO+1)}\nv_add_f32 {vr(LO+2)}, {vr(LO+2)}, {vr(LO+3)}")
        for kk in range(3):
            for x in adds(X, kk, [4]): a(x)
        a(f"s_mov_b32 {sr(T+2)}, 0\nv_add_f32 {vr(LO)}, {vr(LO)}, {vr(LO+2)}")
        self.stamp("own")
        w, PU = 40, 128
        mo = MK + 3

        def chk(k):
            r = [IN[k][q] + i for q in range(3) for i in range(4)]
            c = [f"v_max3_u32 v46, {vr(r[0])}, {vr(r[1])}, {vr(r[2])}", f"v_max3_u32 v47, {vr(r[3])}, {vr(r[4])}, {vr(r[5])}"]
            for q in range(3): c.append(f"v_max3_u32 v{46+(q&1)}, v{46+(q&1)}, {vr(r[6+2*q])}, {vr(r[7+2*q])}")
            return c + ["v_max_u32 v46, v46, v47", "v_cmp_eq_u32 vcc, -1, v46"]

        def take(k, with_chk):
            r = [IN[k][q] + i for q in range(3) for i in range(4)]
            lp_, mp = r[10], r[11]
            wt = [f"v_min_f32 {vr(w)}, {vr(mo)}, {vr(mp)}", f"v_sub_f32 {vr(w+2)}, {vr(w)}, {vr(mp)}", f"v_sub_f32 {vr(w)}, {vr(w)}, {vr(mo)}",
                  f"v_exp_f32 {vr(w+2)}, {vr(w+2)}", f"v_exp_f32 {vr(w)}, {vr(w)}", f"v_mul_f32 {vr(w+4)}, {vr(w+2)}, {vr(lp_)}",
                  f"v_fmac_f32 {vr(w+4)}, {vr(w)}, {vr(LO)}", f"v_rcp_f32 {vr(w+4)}, {vr(w+4)}", f"v_mul_f32 {vr(w)}, {vr(w)}, {vr(w+4)}",
                  f"v_mul_f32 {vr(w+2)}, {vr(w+2)}, {vr(w+4)}"]
            un = []
            for i in range(10): un += [f"v_lshlrev_b32 {vr(PU+2*i)}, 16, {vr(r[i])}", f"v_and_b32 {vr(PU+1+2*i)}, 0xffff0000, {vr(r[i])}"]
            c = chk(k) if with_chk else []
            for i in range(10):
                a(wt[i])
                if c: a(c.pop(0))
                a(un.pop(0)); a(un.pop(0))
        a("s_waitcnt vmcnt(6)")
        take(0, True)
        a("s_cmp_eq_u64 vcc, 0\ns_cbranch_scc0 L_poll2")
        a.label("L_got")
        self.stamp("got")
        for i in range(10): a(f"v_pk_mul_f32 {p(M+2*i)}, {p(M+2*i)}, {p(w)} op_sel_hi:[1,0]")
        for i in range(10): a(f"v_pk_fma_f32 {p(M+2*i)}, {p(PU+2*i)}, {p(w+2)}, {p(M+2*i)} op_sel_hi:[1,0,1]")
        for i in range(10):
            a(f"v_cvt_pk_bf16_f32 {vr(UP+i)}, {vr(M+2*i)}, {vr(M+2*i+1)}")
            if i == 3: a(f"ds_write_b128 {vr(VXW)}, {vr(UP,4)}")
            if i == 7: a(f"ds_write_b128 {vr(VXW)}, {vr(UP+4,4)} offset:1024")
        a(f"""s_not_b64 exec, {sr(MP1,2)}
        ds_write_b64 {vr(VXR)}, {vr(UP+8,2)}
        s_mov_b64 exec, -1
        s_waitcnt lgkmcnt(0)
        s_barrier""")
        self.stamp("B3")
        for x in bfrags(BO, 0): a(x)
        for g, m in enumerate(fg(self.WO, BO)):
            if g % 5 == 0: a(f"s_waitcnt lgkmcnt({8 - 2 * (g // 5)})" + ("\ns_nop 0" if g == 20 else ""))
            a(m)
        self.stamp("gem")
        a("s_nop 3")
        for j in range(2):
            for tt in range(2):
                u = 2 * tt + j
                for h in range(2): a(f"v_cvt_pk_bf16_f32 {vr(16+4*j+2*tt+h)}, {vr(AB+4*u+2*h)}, {vr(AB+4*u+2*h+1)}")
            a(f"buffer_store_dwordx4 {vr(16+4*j,4)}, {vr(VO+j)}, {sr(S_OUT,4)}, {sr(self.E_COL)} offen {o.get('ofl', '')}")
        a(f"s_cmp_ge_u32 {sr(S_W)}, 2\ns_cbranch_scc1 L_fin")
        for h in range(2): a(f"v_cvt_pk_bf16_f32 {vr(24+h)}, {vr(AB+16+2*h)}, {vr(AB+16+2*h+1)}")
        a(f"buffer_store_dwordx2 v[24:25], {vr(self.VO8)}, {sr(S_OUT,4)}, 0 offen offset:256 {o.get('ofl', '')}")
        self.stamp("fin")

        def poll2():
            a.label("L_poll2")
            for k in (1, 2, 0):
                for x in inbox((k + 2) % 3): a(x)
                a("s_waitcnt vmcnt(6)")
                for x in chk(k): a(x)
                a(f"s_add_u32 {sr(T+2)}, {sr(T+2)}, 1\ns_cmp_eq_u64 vcc, 0\ns_cbranch_scc1 L_take{k}")
            a(f"s_cmp_lt_u32 {sr(T+2)}, 0x10000\ns_cbranch_scc1 L_poll2")
            for k in (0, 1, 2):
                a.label(f"L_take{k}")
                take(k, False)
                a("s_branch L_got")
            if o.get("xm", 0) and o.get("l2s", 1):
                a.label("L_far")
                send("sc1")
                a("s_branch L_sent")
        self.poll2 = poll2

    def fallback(self):
        a = self.a
        T = S_T
        MXR = 208
        a.label("L_fallback")
        a(f"""s_waitcnt vmcnt(0) lgkmcnt(0)
        s_barrier
        s_mov_b32 {sr(S_REDO)}, 1
        s_mov_b32 {sr(S_UG)}, 0x40000000
        {self.xa_srd()}
        s_mov_b32 {sr(S_TOFF)}, {sr(S_LB)}
        s_cmp_eq_u32 {sr(S_DUM)}, 4
        s_cselect_b32 {sr(S_CNT)}, 15, 16""")
        for i in range(4): a(f"v_mov_b32 {vr(MXR+i)}, 0xff800000")
        a.label("L_fb1")
        for g in self.tile_groups(0): a(g)
        a("s_waitcnt vmcnt(0)")
        for x in self.k_reads(0): a(x)
        a("s_waitcnt lgkmcnt(0)")
        for m in self.qk_mfmas(0, czero=True): a(m)
        a("s_nop 7")
        for qb in range(4):
            for i in range(0, 8, 2): a(f"v_max3_f32 {vr(MXR+qb)}, {vr(MXR+qb)}, {vr(self.S(0,qb,i))}, {vr(self.S(0,qb,i+1))}")
        a(f"s_sub_u32 {sr(S_CNT)}, {sr(S_CNT)}, 1\ns_cmp_lg_u32 {sr(S_CNT)}, 0\ns_cbranch_scc1 L_fb1")
        self.greduce([MXR + i for i in range(4)], MXR + 4, "v_max_f32")
        a(f"""v_and_b32 {vr(MXR+4)}, 15, v0
        v_lshlrev_b32 {vr(MXR+4)}, 4, {vr(MXR+4)}
        v_add_u32 {vr(MXR+4)}, {L_SP}, {vr(MXR+4)}
        s_lshl_b32 {sr(T)}, {sr(S_W)}, 2
        s_xor_b32 {sr(T+1)}, {sr(self.NB)}, 1
        v_lshl_add_u32 {vr(MXR+5)}, {sr(self.NB)}, 8, {vr(MXR+4)}
        v_lshl_add_u32 {vr(MXR+4)}, {sr(T+1)}, 8, {vr(MXR+4)}
        v_add_u32 {vr(MXR+6)}, {sr(T)}, {vr(MXR+4)}
        v_add_u32 {vr(MXR+7)}, {sr(T)}, {vr(MXR+5)}""")
        for qb in range(4): a(f"ds_write_b32 {vr(MXR+6+(qb&1))}, {vr(MXR+qb)} offset:{512*(qb>>1)}")
        a("s_waitcnt lgkmcnt(0)\ns_barrier")
        for qb in range(4): a(f"ds_read_b128 {vr(16+4*qb,4)}, {vr(MXR+4+(qb&1))} offset:{512*(qb>>1)}")
        a(f"s_mov_b32 {sr(S_TOFF)}, {sr(S_LB)}")
        for g in self.tile_groups(0) + self.tile_groups(1) + ([] if self.o.get("gs", 0) else self.tile_groups(2)[:8]): a(g)
        a("s_waitcnt lgkmcnt(0)")
        for qb in range(4):
            r = 16 + 4 * qb
            a(f"v_max_f32 {vr(r)}, {vr(r)}, {vr(r+1)}\nv_max3_f32 {vr(r)}, {vr(r)}, {vr(r+2)}, {vr(r+3)}")
            a(f"v_sub_f32 {vr(self.MK+qb)}, 0, {vr(r)}")
        a("s_waitcnt vmcnt(0)")
        for x in self.k_reads(0, V_V): a(x)
        self.loop_init(False)
        if self.o.get("gs", 0): self.loop_init(True)
        a("s_branch L_go")


if __name__ == "__main__":
    opt = json.loads(sys.argv[2]) if len(sys.argv) > 2 else {}
    g = G(opt)
    txt = g.build()
    if opt.get("align", 1):
        from align import align
        for n2 in (1, 2):
            try:
                txt, st = align(txt, chains=[(1, "L_tr")] * 3 + [(1, "L_tr2"), (n2, "L_tr2")] if opt.get("touch", 1) else None)
                break
            except AssertionError as e:
                if n2 == 2: raise
        print("align: promoted %d, padded %d, left %d" % st)
    txt = txt.replace("\n", "\n; stamps " + json.dumps(g.stnames) + "\n; map %d rot %d\n" % (g.mp, opt.get("rsh", 14) if opt.get("rot") == 1 else 0), 1)
    open(sys.argv[1], "w").write(txt)
```

```python
import sys, json, math
from common import Asm, vr, ar, sr, kernel_header, kernel_desc
from lay import *

NAME = "standalone__conformer_family_branchformer__speech_kernel"
NH = 2
NWG = 252 + NH
CHAINS = (3, 3)
RING = 4
LDS_RING = RING * TILE
LDS_TOTAL = 163840
SLOT = 4 * TILE
L_WU, L_WQ, L_WK = 0, 41472, 82944
L_XX, L_XR = 126976, 143360
L_QD = 18432
L_XS = L_XX + L_QD
L_MX = 81920
L_PC = LDS_TOTAL - 256
L_DUMP = 123904
L_SP = 147456

S_X, S_WS, S_XA, S_DB, S_W1, S_W2, S_OUT, S_DW = 8, 12, 16, 20, 24, 28, 32, 36
S_W, S_B, S_H, S_QB, S_TOFF, S_CNT, S_DUM, S_LB, S_TOWN, S_TSND, S_VAL, S_REDO = range(40, 52)
S_UG, S_CL = 25, 26
S_PH, S_XC, S_SX = 6, 74, 73
RBASE, RSTR = 12 << 20, 5 << 19
S_RO = 75
S_OS, S_OR = 28, 29
S_N, S_FB = 98, 99
S_INC = 24
S_T = 52
S_ST = 76

V_KA, V_VA, V_VR, V_DMA, V_L, V_VB = 1, 3, 5, 6, 10, 14
V_S, V_CI, V_P, V_K, V_V = 16, 80, 96, 128, 164
V_HI = 200
V_X = 208
A_O, A_Q, A_F = 0, 144, 216

LOG2E = 1.4426950408889634
import struct
def f32(x): return "0x%08x" % struct.unpack("<I", struct.pack("<f", x))[0]


class BAsm(Asm):
    def __init__(self):
        super().__init__()
        self.bg, self.every, self.cnt, self.skip = [], 0, 0, 0

    def __call__(self, s):
        for l in s.split("\n"):
            l = l.strip()
            if not l: continue
            self.lines.append("    " + l)
            if self.bg and self.every and not l.startswith(("s_nop", "v_mov_b32", "v_exp", "v_rcp", "v_rsq", "v_sqrt", "s_add_u32 m0")):
                self.cnt += 1
                if self.cnt >= self.every:
                    self.cnt = 0
                    self.pop()

    def pop(self):
        for x in self.bg.pop(0).split("\n"): self.lines.append("    " + x)

    def flush(self):
        while self.bg: self.pop()
        self.every = 0


class G:
    def __init__(self, opt):
        self.o = opt
        self.a = BAsm()
        self.nst = 0
        self.fill = []

    def stamp(self, name):
        if self.o.get("stamps"):
            if name in self.o.get("skipst", []): return
            if "only" in self.o and name not in self.o["only"]: return
            if self.nst >= 11: return
            self.a(f"{'s_memtime' if self.o.get('cyc') else 's_memrealtime'} {sr(S_ST + 2*self.nst, 2)}")
            self.stnames.append(name)
            self.nst += 1

    def srd(self, dst, lo, hi, n):
        if dst == S_WS and self.o.get("wsoff"):
            self.a(f"s_add_u32 {sr(dst)}, {sr(lo)}, {self.o['wsoff']}\ns_addc_u32 {sr(dst+1)}, {sr(hi)}, 0\ns_mov_b32 {sr(dst+2)}, {n}\ns_mov_b32 {sr(dst+3)}, 0x20000")
            return
        self.a(f"s_mov_b32 {sr(dst)}, {sr(lo)}\ns_mov_b32 {sr(dst+1)}, {sr(hi)}\ns_mov_b32 {sr(dst+2)}, {n}\ns_mov_b32 {sr(dst+3)}, 0x20000")

    def greduce(self, regs, tmp, op="v_add_f32"):
        a = self.a
        for sw in ("32", "16"):
            for i, r in enumerate(regs): a(f"v_mov_b32 {vr(tmp+i)}, {vr(r)}")
            if len(regs) < 3: a("s_nop 1" if len(regs) == 1 else "s_nop 0")
            for i, r in enumerate(regs): a(f"v_permlane{sw}_swap_b32 {vr(r)}, {vr(tmp+i)}")
            for i, r in enumerate(regs): a(f"{op} {vr(r)}, {vr(r)}, {vr(tmp+i)}")

    def treduce(self, r, op="v_add_f32"):
        a = self.a
        a(f"v_permlane32_swap_b32 {vr(r)}, {vr(r+2)}\nv_permlane32_swap_b32 {vr(r+1)}, {vr(r+3)}")
        a(f"{op} {vr(r)}, {vr(r)}, {vr(r+2)}\n{op} {vr(r+1)}, {vr(r+1)}, {vr(r+3)}\ns_nop 1")
        a(f"v_permlane16_swap_b32 {vr(r)}, {vr(r+1)}\n{op} {vr(r)}, {vr(r)}, {vr(r+1)}")

    def rbf(self, r):
        self.a(f"v_cvt_pk_bf16_f32 {vr(r)}, {vr(r)}, {vr(r)}\nv_lshlrev_b32 {vr(r)}, 16, {vr(r)}")

    def ln_tail(self, F, out, t, mimic):
        a = self.a
        p = lambda r: vr(r, 2)
        self.greduce([t, t + 1], t + 2)
        a(f"v_mul_f32 {vr(t+2)}, {f32(1.0/144)}, {vr(t)}")
        a(f"v_mul_f32 {vr(t+3)}, {vr(t+2)}, {vr(t+2)}")
        a(f"v_mov_b32 {vr(t+4)}, {f32(1.0/144)}")
        a(f"v_fma_f32 {vr(t)}, {vr(t+1)}, {vr(t+4)}, -{vr(t+3)}")
        a(f"v_max_f32 {vr(t)}, 0, {vr(t)}")
        if mimic:
            self.rbf(t)
            self.rbf(t + 2)
            a(f"v_add_f32 {vr(t)}, {f32(1e-5)}, {vr(t)}")
            self.rbf(t)
            a(f"v_sqrt_f32 {vr(t)}, {vr(t)}\ns_nop 0")
            self.rbf(t)
            a(f"v_rcp_f32 {vr(t)}, {vr(t)}\ns_nop 0")
        else:
            a(f"v_add_f32 {vr(t)}, {f32(1e-5)}, {vr(t)}")
            a(f"v_rsq_f32 {vr(t)}, {vr(t)}\ns_nop 0")
        a(f"v_mul_f32 {vr(t+2)}, -{vr(t+2)}, {vr(t)}")
        for i in range(18):
            a(f"v_pk_fma_f32 {p(F+2*i)}, {p(F+2*i)}, {p(t)}, {p(t+2)} op_sel_hi:[1,0,0]")
        for i in range(18):
            a(f"v_cvt_pk_bf16_f32 {vr(out+i)}, {vr(F+2*i)}, {vr(F+2*i+1)}")

    def ln_packed(self, X, F, out, t):
        a = self.a
        a(f"v_mov_b32 {vr(t+6)}, 0x3f803f80")
        for k in range(4): a(f"v_mov_b32 {vr(t+k)}, 0")
        for i in range(18):
            a(f"v_dot2_f32_bf16 {vr(t+2*(i&1))}, {vr(X+i)}, {vr(t+6)}, {vr(t+2*(i&1))}")
            a(f"v_dot2_f32_bf16 {vr(t+1+2*(i&1))}, {vr(X+i)}, {vr(X+i)}, {vr(t+1+2*(i&1))}")
        for i in range(2):
            a(f"v_lshlrev_b32 {vr(F+2*i)}, 16, {vr(X+i)}\nv_and_b32 {vr(F+2*i+1)}, 0xffff0000, {vr(X+i)}")
        a(f"v_pk_add_f32 {vr(t,2)}, {vr(t,2)}, {vr(t+2,2)}")
        un = []
        for i in range(2, 18):
            un.append(f"v_lshlrev_b32 {vr(F+2*i)}, 16, {vr(X+i)}\nv_and_b32 {vr(F+2*i+1)}, 0xffff0000, {vr(X+i)}")
        sv = (a.bg, a.every, a.cnt, a.skip)
        n0 = len(a.lines)
        a.bg, a.every = [], 0
        self.ln_tail(F, out, t, True)
        tail = a.lines[n0:]
        del a.lines[n0:]
        a.bg, a.every, a.cnt, a.skip = sv
        k = next(i for i, l in enumerate(tail) if "v_pk_fma" in l)
        for i, l in enumerate(tail[:k]):
            if "s_nop" in l and un: continue_nop = True
            a(l)
            if un and not l.strip().startswith("s_nop"): a(un.pop(0))
        while un: a(un.pop(0))
        for l in tail[k:]: a(l)

    def ln_f32(self, F, out, t):
        a = self.a
        p = lambda r: vr(r, 2)
        a(f"v_pk_add_f32 {p(t)}, {p(F)}, {p(F+2)}\nv_pk_add_f32 {p(t+2)}, {p(F+4)}, {p(F+6)}")
        a(f"v_pk_mul_f32 {p(t+4)}, {p(F)}, {p(F)}\nv_pk_mul_f32 {p(t+6)}, {p(F+2)}, {p(F+2)}")
        for i in range(2, 18):
            if i >= 4: a(f"v_pk_add_f32 {p(t+2*(i&1))}, {p(t+2*(i&1))}, {p(F+2*i)}")
            a(f"v_pk_fma_f32 {p(t+4+2*(i&1))}, {p(F+2*i)}, {p(F+2*i)}, {p(t+4+2*(i&1))}")
        a(f"v_pk_add_f32 {p(t)}, {p(t)}, {p(t+2)}\nv_pk_add_f32 {p(t+4)}, {p(t+4)}, {p(t+6)}")
        a(f"v_add_f32 {vr(t)}, {vr(t)}, {vr(t+1)}\nv_add_f32 {vr(t+1)}, {vr(t+4)}, {vr(t+5)}")
        self.ln_tail(F, out, t, False)

    def gemm_u(self, AF, rf, Bs, ACC, afr, bfr, post, vm_items=(), other=(), lead=7, vm0=0, vmsp=4, at={}, lastk=0):
        a = self.a
        units = [(0, j) for j in range(4)] + [(1, j) for j in range(4)] + [(2, 0)]
        seq, dl = [], {}
        bs = lambda j, o_, n: self.rg((Bs[j][0], Bs[j][1] + o_), n)
        rem = lambda u: (f"v_mfma_f32_16x16x16_bf16 {vr(ACC+4*u,4)}, {rf(AF+18*units[u][0]+16,2)}, {bs(units[u][1],16,2)}, {vr(ACC+4*u,4)}", u)
        A = [afr(t) for t in range(3)]
        Bf = [bfr(j) for j in range(4)]

        def use(t, j, s, k):
            for x in (A[t][2 * s:2 * s + 2] if s < 4 else A[t][8:]) + ([Bf[j][s]] if Bf[j] else []): dl.setdefault(x, k)
        for g in range(4):
            for s in range(4):
                for u in range(3 * g, 3 * g + 3) if g < 3 else []:
                    t, j = units[u]
                    d = vr(ACC + 4 * u, 4)
                    use(t, j, s, len(seq))
                    seq.append((f"v_mfma_f32_16x16x32_bf16 {d}, {rf(AF+18*t+4*s,4)}, {bs(j,4*s,4)}, {'0' if s == 0 else d}", None))
                if s == 0 and g > 0:
                    for u in range(3 * g - 3, 3 * g):
                        use(units[u][0], units[u][1], 4, len(seq)); seq.append(rem(u))
        last = seq[-3:]; seq = seq[:-3]
        ds = sorted(dl.items(), key=lambda e: e[1]) + [(x, 99) for x in other]
        vm_items = list(vm_items)
        lastvm = vm0 - vmsp
        order, ready, q, done = [], [], [], 0

        def issue():
            x, k_ = ds.pop(0); a(x); order.append(k_)

        def wait(k):
            nonlocal done
            idx = [i_ for i_, k_ in enumerate(order) if k_ <= k]
            if idx and max(idx) + 1 > done:
                a(f"s_waitcnt lgkmcnt({min(15, len(order) - 1 - max(idx))})"); done = max(idx) + 1
        while ds and ds[0][1] < 6: issue()
        for k, (m, fin) in enumerate(seq):
            assert not ds or ds[0][1] > k, (k, ds[0])
            wait(k)
            a(m)
            for u_, kk in list(ready):
                if k - kk >= 4: q += post(u_); ready.remove((u_, kk))
            if fin is not None: ready.append((fin, k))
            if k in at: at[k]()
            due = sum(1 for x, k_ in ds if k_ <= k + lead)
            if due == 0 and vm_items and k >= lastvm + vmsp and (len(vm_items) > 1 or k >= lastk):
                a(vm_items.pop(0)); lastvm = k; continue
            cap = 2
            for _ in range(min(due, 3)): issue(); cap -= 1
            if cap == 2:
                if q and q[0].startswith("ds_"): a(q.pop(0)); order.append(99); cap -= 1
                elif ds: issue(); cap -= 1
            while cap > 0 and q and not q[0].startswith("ds_"):
                a(q.pop(0)); cap -= 1
        assert not ready
        while ds: issue()
        wait(98)
        for x in vm_items: a(x)
        for x in q[:4]: a(x)
        a(f"s_nop {max(0, 4 - len(q[:4]))}")
        for m, _ in last: a(m)
        for x in q[4:]: a(x)
        a(f"s_nop {max(0, 6 - len(q[4:]))}")
        for u in range(6, 9):
            for x in post(u): a(x)

    def gemm(self, reads, B, ACC, AF, late=(), at={}, per=2):
        a = self.a
        buf = lambda T: 18 * (T % 6)
        ng = 3 * (4 * per + 1)

        def grp(g):
            r = [reads(T, buf(T)) for T in range(3 * g, 3 * g + 3)]
            return [r[t][per * s + u] for s in range(4) for t in range(3) for u in range(per)] + [r[t][4 * per] for t in range(3)]
        rem = lambda T: f"v_mfma_f32_16x16x16_bf16 {vr(ACC+4*T,4)}, {ar(buf(T)+16,2)}, {vr(B+16,2)}, {vr(ACC+4*T,4)}"
        pend = grp(0) + grp(1) + grp(2) + list(late)
        issued = k = 0

        def issue(n):
            nonlocal issued
            for _ in range(n):
                if issued < len(pend): a(pend[issued]); issued += 1

        def mf(x):
            nonlocal k
            a(x); issue(per if per == 2 else (2 if k % 4 == 0 else 1))
            if k in at: a(at[k])
            k += 1
        issue(self.o.get('look', 12) if per == 2 else self.o.get('look1', 8))
        for g in range(3):
            for s in range(4):
                need = ng * g + 3 * per * (s + 1)
                a(f"s_waitcnt lgkmcnt({min(15, issued - need)})")
                for T in range(3 * g, 3 * g + 3):
                    d = vr(ACC + 4 * T, 4)
                    mf(f"v_mfma_f32_16x16x32_bf16 {d}, {ar(buf(T)+4*s,4)}, {vr(B+4*s,4)}, {'0' if s == 0 else d}")
                if s == 0 and g > 0:
                    for T in range(3 * g - 3, 3 * g): mf(rem(T))
                if g == 1 and s == 0: assert issued <= 2 * ng + 6 * per, "group 2 overwrites group 0 too early"
        issue(99)
        a(f"s_waitcnt lgkmcnt({len(late)})\ns_nop 2")
        for T in range(6, 9): a(rem(T))
        a("s_nop 7")

    def tr_reads(self, ad, rf=ar):
        def f(T, dst):
            out = []
            for s in range(4):
                for u in range(2):
                    out.append(f"ds_read_b64_tr_b16 {rf(dst+4*s+2*u,2)}, {vr(ad+u)} offset:{9216*s + 32*T}")
            out.append(f"ds_read_b64_tr_b16 {rf(dst+16,2)}, {vr(ad+2)} offset:{36864 + 32*T}")
            return out
        return f

    def row_reads(self, ad, sw=None):
        def f(T, dst):
            r = ad if sw is None or T == 8 else sw[T & 1]
            out = []
            for s in range(4):
                for u in range(2):
                    out.append(f"ds_read_b64 {ar(dst+4*s+2*u,2)}, {vr(r)} offset:{4864*T + 64*s + 32*u}")
            out.append(f"ds_read_b64 {ar(dst+16,2)}, {vr(r)} offset:{4864*T + 256}")
            return out
        return f

    def dma_rows(self, jobs, cpr, rstride, vo, vc, n_first, first_waves, lab):
        a = self.a
        mul = {18: 3641, 19: 3450}[cpr]
        dr, dc = 256 // cpr, 256 % cpr
        a(f"s_lshl_b32 {sr(S_T)}, {sr(S_W)}, 6")
        a(f"v_add_u32 {vr(vc)}, {sr(S_T)}, v0")
        a(f"v_mul_u32_u24 {vr(vo)}, {mul}, {vr(vc)}")
        a(f"v_lshrrev_b32 {vr(vo)}, 16, {vr(vo)}")
        a(f"v_mul_u32_u24 {vr(vc+1)}, {cpr}, {vr(vo)}")
        a(f"v_sub_u32 {vr(vc)}, {vr(vc)}, {vr(vc+1)}")
        a(f"v_mul_u32_u24 {vr(vo)}, {rstride}, {vr(vo)}")
        a(f"v_lshl_add_u32 {vr(vo)}, {vr(vc)}, 4, {vr(vo)}")
        a(f"s_lshl_b32 {sr(S_T)}, {sr(S_W)}, 10")
        a(f"v_mov_b32 {vr(vc+1)}, {rstride - 16*cpr}")
        for k in range(n_first):
            if k == n_first - 1:
                a(f"s_cmp_ge_u32 {sr(S_W)}, {first_waves}\ns_cbranch_scc1 {lab}")
            for srd, so, lb in jobs:
                a(f"s_add_u32 m0, {sr(S_T)}, {lb + 4096*k}")
                a("s_nop 0")
                a(f"buffer_load_dwordx4 {vr(vo)}, {sr(srd,4)}, {so} offen lds")
            if k < n_first - 1:
                a(f"v_add_u32 {vr(vc)}, {dc}, {vr(vc)}")
                a(f"v_cmp_le_u32 vcc, {cpr}, {vr(vc)}")
                a(f"v_add_u32 {vr(vo)}, {dr*rstride + 16*dc}, {vr(vo)}")
                a(f"v_subrev_u32 {vr(vc+2)}, {cpr}, {vr(vc)}")
                a(f"v_cndmask_b32 {vr(vc)}, {vr(vc)}, {vr(vc+2)}, vcc")
                a(f"v_cndmask_b32 {vr(vc+2)}, 0, {vr(vc+1)}, vcc")
                a(f"v_add_u32 {vr(vo)}, {vr(vo)}, {vr(vc+2)}")
        a.label(lab)

    def voff_table(self, dst, cpr, rstride, vc, step=256):
        a = self.a
        mul = {18: 29128, 19: 27595}[cpr]
        n = len(dst)
        a(f"s_mov_b32 {sr(S_T)}, {rstride - 16*cpr}")
        a(f"v_mul_u32_u24 {vr(dst[0])}, {mul}, {vr(vc)}")
        for k in range(1, n): a(f"v_add_u32 {vr(dst[k])}, {(step*k % cpr)*mul}, {vr(dst[0])}")
        for k in range(n): a(f"v_lshrrev_b32 {vr(dst[k])}, 19, {vr(dst[k])}")
        for k in range(n): a(f"v_mad_i32_i24 {vr(dst[k])}, {vr(dst[k])}, {sr(S_T)}, {vr(vc+1)}")

    def dma_lin(self, srd, soff, lb, v16, lab):
        a = self.a
        a(f"s_lshl_b32 {sr(S_T)}, {sr(S_W)}, 10")
        for k in range(11):
            if k == 10:
                a(f"s_cmp_ge_u32 {sr(S_W)}, 1\ns_cbranch_scc1 {lab}")
            a(f"s_add_u32 m0, {sr(S_T)}, {lb + 4096*k}")
            a(f"s_add_u32 {sr(S_T+1)}, {sr(S_T)}, {soff + 4096*k}")
            a(f"buffer_load_dwordx4 {vr(v16)}, {sr(srd,4)}, {sr(S_T+1)} offen lds")
        a.label(lab)

    def tr_addr(self, ad, base, swapped, t):
        a = self.a
        a(f"v_lshrrev_b32 {vr(t)}, 2, v0")
        a(f"v_mul_u32_u24 {vr(t)}, 288, {vr(t)}")
        a(f"v_and_b32 {vr(t+1)}, 3, v0")
        a(f"v_lshl_add_u32 {vr(t)}, {vr(t+1)}, 3, {vr(t)}")
        a(f"v_add_u32 {vr(ad+2)}, {base}, {vr(t)}")
        if swapped:
            a(f"v_bfe_u32 {vr(t)}, v0, 4, 1")
            a(f"v_mul_u32_u24 {vr(t)}, {16*288}, {vr(t)}")
            a(f"v_add_u32 {vr(ad)}, {vr(ad+2)}, {vr(t)}")
            a(f"v_sub_u32 {vr(ad+1)}, {vr(ad+2)}, {vr(t)}")
            a(f"v_add_u32 {vr(ad+1)}, {16*288}, {vr(ad+1)}")
        else:
            a(f"v_mov_b32 {vr(ad)}, {vr(ad+2)}")
            a(f"v_add_u32 {vr(ad+1)}, {16*288}, {vr(ad+2)}")

    def row_addr(self, ad, base, t):
        a = self.a
        a(f"v_and_b32 {vr(t)}, 15, v0")
        a(f"v_mul_u32_u24 {vr(t)}, 304, {vr(t)}")
        a(f"v_lshrrev_b32 {vr(t+1)}, 4, v0")
        a(f"v_lshl_add_u32 {vr(t)}, {vr(t+1)}, 3, {vr(t)}")
        a(f"v_add_u32 {vr(ad)}, {base}, {vr(t)}")

    def store_block(self, src, v16, v8, srd, soff, soff2, flags=""):
        a = self.a
        for s in range(4):
            a(f"buffer_store_dwordx4 {vr(src+4*s,4)}, {vr(v16)}, {sr(srd,4)}, {sr(soff)} offen offset:{1024*s} {flags}")
        a(f"buffer_store_dwordx2 {vr(src+16,2)}, {vr(v8)}, {sr(srd,4)}, {sr(soff2)} offen {flags}")

    def entry(self):
        a = self.a
        xm2 = self.o.get("xm", 0) == 2
        kernel_header(a, NAME)
        a(f"s_load_dwordx16 s[56:71], s[0:1], 0")
        a(f"s_load_dwordx8 s[72:79], s[0:1], 64")
        a(f"s_getpc_b64 {sr(S_W1,2)}")
        a.label("L_pf")
        a(f"""s_mov_b32 {sr(S_W1+2)}, L_dummy-L_pf
        s_mov_b32 {sr(S_W1+3)}, 0x20000
        v_lshlrev_b32 v2, 4, v0
        buffer_load_dwordx4 v[252:255], v2, {sr(S_W1,4)}, 0 offen
        s_lshl_b32 s3, s2, 9
        s_and_b32 s3, s3, 0x7000
        buffer_load_dwordx4 v[252:255], v2, {sr(S_W1,4)}, s3 offen
        v_lshrrev_b32 v1, 6, v0
        {"s_bfe_u32 s6, s2, 0x10003" if xm2 else f"s_sub_u32 s2, s2, {NH}"}
        v_readfirstlane_b32 {sr(S_W)}, v1
        s_memrealtime s[4:5]""")
        if xm2:
            a(f"""s_and_b32 s7, s2, 7
            s_lshl1_add_u32 s7, s7, s6
            s_mov_b32 s6, s2
            s_andn2_b32 s2, s2, 15
            s_or_b32 s2, s2, s7""")
        a(f"""s_cmp_ge_u32 s2, {NWG - NH}
        s_cbranch_scc1 L_wfuse""")
        if self.o.get("late"):
            m_, v_, n_ = self.o["late"]
            a(f"""s_and_b32 s3, s2, {m_}
            s_cmp_lg_u32 s3, {v_}
            s_cbranch_scc1 L_nl
            s_memrealtime s[4:5]
            s_waitcnt lgkmcnt(0)
            s_add_u32 s6, s4, {n_}
            L_lt:
            s_memrealtime s[4:5]
            s_waitcnt lgkmcnt(0)
            s_sub_u32 s7, s6, s4
            s_cmp_gt_i32 s7, 0
            s_cbranch_scc1 L_lt
            L_nl:""")
        if self.o.get("stamps"):
            a("s_memrealtime s[100:101]" if not self.o.get("cyc") else "s_memtime s[100:101]")
        self.mp = 2

    def vm_since(self, mark):
        return sum(1 for l in self.a.lines[mark:] if l.strip().startswith("buffer_"))

    def phase_a(self):
        a, o = self.a, self.o
        XR, XF, XA, ACC, G_, PK = 16, 34, 146, 110, 16, 164
        B4, XD = 16, 88
        VS, VSW, VR4, MXA, MXR, L8, TRU, TRQ, TRQ8, RK, TM = 200, 204, 208, 212, 213, 214, 215, 218, 221, 224, 228
        VK, VU = list(range(182, 193)), list(range(193, 200)) + list(range(104, 108))
        AQ1 = 200
        t0, t1, t2 = 250, 251, 227
        T = S_T
        WV, W10, UOFF, M1, PUB, M3 = 72, 70, 71, 69, 68, 65
        PH = 2
        FA0 = 250 * TILE if o.get("rot", 0) == 2 else WS_F
        if o.get("xm", 0) == 2: PH = S_PH
        if o.get("xm", 0) == 1:
            PH = S_PH
            a(f"""s_mov_b32 {sr(PH)}, s2
            s_bfe_u32 {sr(T)}, s2, 0x10003
            s_and_b32 {sr(T+1)}, s2, 7
            s_lshl1_add_u32 {sr(T)}, {sr(T+1)}, {sr(T)}
            s_and_b32 {sr(T+1)}, s2, 0xf0
            s_or_b32 {sr(T)}, {sr(T)}, {sr(T+1)}
            s_add_u32 s2, s2, 4
            s_cmp_lt_u32 {sr(T)}, 248
            s_cselect_b32 s2, {sr(T)}, s2""")
        a(f"""v_and_b32 v0, 63, v0
        s_bfe_u32 {sr(S_B)}, s2, 0x10001
        s_lshr_b32 {sr(S_QB)}, s2, 2
        s_lshr_b32 {sr(T)}, {sr(S_W)}, 1
        s_xor_b32 {sr(T)}, {sr(T)}, s2
        s_andn2_b32 {sr(T)}, 1, {sr(T)}
        s_lshl1_add_u32 {sr(T+3)}, {sr(S_QB)}, {sr(T)}
        s_mul_i32 {sr(T)}, {sr(S_B)}, {NT}
        s_add_u32 {sr(T+1)}, {sr(T+3)}, {sr(T)}
        s_and_b32 {sr(T+2)}, {sr(S_W)}, 1
        s_lshl1_add_u32 {sr(T+2)}, {sr(T+1)}, {sr(T+2)}
        v_lshlrev_b32 {vr(V_DMA)}, 4, v0
        s_mul_i32 {sr(T+1)}, {sr(T+2)}, {16*288}
        s_mul_i32 {sr(S_LB)}, {sr(S_W)}, {BLK}
        s_add_u32 m0, {sr(S_LB)}, {L_XS}
        s_mov_b32 {sr(S_X+2)}, 2304000
        s_mov_b32 {sr(S_X+3)}, {sr(S_W1+3)}
        s_add_u32 {sr(S_CNT)}, {sr(T+1)}, 4096
        s_waitcnt lgkmcnt(0)
        s_mov_b64 {sr(S_X,2)}, s[56:57]""")
        for k in range(4): a(f"buffer_load_dwordx4 {vr(V_DMA)}, {sr(S_X,4)}, {sr(T+1)} offen offset:{1024*k} lds")
        a(f"s_add_u32 m0, {sr(S_LB)}, {L_XS + 4096}\ns_mov_b32 exec_hi, 0\nbuffer_load_dwordx4 {vr(V_DMA)}, {sr(S_X,4)}, {sr(S_CNT)} offen lds\ns_mov_b32 exec_hi, -1")
        mx = len(a.lines)
        a(f"""s_add_u32 {sr(S_LB)}, {sr(S_LB)}, {L_XS}
        s_and_b32 {sr(S_H)}, s2, 1
        s_lshl1_add_u32 {sr(S_TOWN)}, {sr(S_QB)}, {sr(S_H)}
        s_cmp_lt_u32 {sr(S_TOWN)}, {NT}
        s_cselect_b32 {sr(S_VAL)}, 1, 0
        s_add_u32 {sr(S_TOWN)}, {sr(S_TOWN)}, {sr(T)}""")
        SQ, SK, SU = S_W2, S_W1, S_XA
        self.srd(SU, 66, 67, 82944)
        self.srd(SQ, 58, 59, 41472)
        self.srd(SK, 60, 61, 41472)
        a(f"s_lshr_b32 {sr(T)}, {sr(PH)}, 3\ns_lshl_b32 {sr(T)}, {sr(T)}, 12\ns_lshl_b32 {sr(W10)}, {sr(S_W)}, 10\ns_add_u32 {sr(T)}, {sr(T)}, {sr(W10)}")
        a(f"buffer_load_dwordx4 v[252:255], {vr(V_DMA)}, {sr(SU,4)}, {sr(T)} offen")
        for srd_, rot in ((SQ, 82), (SK, 41)):
            a(f"s_add_u32 {sr(T+1)}, {sr(T)}, {(128 - rot) * 1024}\ns_and_b32 {sr(T+1)}, {sr(T+1)}, {127 * 1024}")
            a(f"buffer_load_dwordx4 v[252:255], {vr(V_DMA)}, {sr(srd_,4)}, {sr(T+1)} offen")
        self.srd(S_OUT, 74, 75, 2304000)
        self.srd(S_DB, 76, 77, 256)
        if o.get("rot", 0):
            a(self.region(S_RO, 4))
            if o.get('rbad'): a(f"s_add_u32 {sr(S_RO)}, {sr(S_RO)}, {o['rbad']}")
            if o["rot"] == 1:
                a(f"""s_add_u32 {sr(S_WS)}, s78, {sr(S_RO)}
                s_addc_u32 {sr(S_WS+1)}, s79, 0
                s_mov_b32 {sr(S_WS+2)}, {self.wsn()}
                s_mov_b32 {sr(S_WS+3)}, 0x20000""")
            else: self.srd(S_WS, 78, 79, 256 << 20)
        else: self.srd(S_WS, 78, 79, WS_END)
        def tlb():
            a(f"v_lshlrev_b32 v249, 21, v0")
            for ch in o.get("tlbw", "wdo"): a(f"buffer_load_dword v252, v249, {sr(dict(w=S_WS, d=S_DB, o=S_OUT)[ch],4)}, 0 offen")
        if o.get("tlb", 0) == 1: tlb()
        if o.get("tlb", 3) == 3:
            if o.get("rot", 0) == 2:
                a(f"""s_bfe_u32 {sr(T)}, {sr(PH)}, 0x40003
                s_sub_u32 {sr(T+1)}, {sr(T)}, 9
                s_cselect_b32 {sr(T)}, {sr(T)}, {sr(T+1)}
                v_mov_b32 v249, 0
                s_lshl_b32 {sr(T+1)}, {sr(T)}, 21
                s_cmp_lt_u32 {sr(T)}, 6
                s_cbranch_scc0 L_tl1
                s_sub_u32 {sr(T+4)}, {sr(S_RO)}, {4 << 21}
                s_cmp_lt_u32 {sr(T)}, 4
                s_cselect_b32 {sr(T+4)}, {1 << 21}, {sr(T+4)}
                s_add_u32 {sr(T+1)}, {sr(T+1)}, {sr(T+4)}
                buffer_load_dword v252, v249, {sr(S_WS,4)}, {sr(T+1)} offen
                s_branch L_tl3
                L_tl1:
                s_cmp_eq_u32 {sr(T)}, 7
                s_cbranch_scc1 L_tl2
                s_and_b32 {sr(T)}, {sr(T)}, 8
                s_lshl_b32 {sr(T)}, {sr(T)}, 18
                buffer_load_dword v252, v249, {sr(S_OUT,4)}, {sr(T)} offen
                s_branch L_tl3""")
            else:
                a(f"""s_bfe_u32 {sr(T)}, {sr(PH)}, 0x30003
                s_lshl_b32 {sr(T)}, {sr(T)}, 21
                v_mov_b32 v249, 0
                s_cmp_lt_u32 {sr(T)}, {5 << 21}
                s_cbranch_scc0 L_tl1
                buffer_load_dword v252, v249, {sr(S_WS,4)}, {sr(T)} offen
                s_branch L_tl3
                L_tl1:
                s_sub_u32 {sr(T)}, {sr(T)}, {5 << 21}
                s_cmp_lt_u32 {sr(T)}, {2 << 21}
                s_cbranch_scc0 L_tl2
                buffer_load_dword v252, v249, {sr(S_OUT,4)}, {sr(T)} offen
                s_branch L_tl3""")
            a(f"""L_tl2:
            s_or_b32 s4, s4, 1
            v_lshlrev_b32 v249, 8, v0
            v_mov_b32 v250, s4
            s_lshl2_add_u32 s5, {sr(PH)}, {sr(S_W)}
            s_cmp_eq_u32 s5, {56 * 4}
            s_cbranch_scc0 L_tl4
            buffer_store_dword v250, v249, {sr(S_DB,4)}, 0 offen sc1
            s_branch L_tl3
            L_tl4:
            buffer_load_dword v252, v249, {sr(S_DB,4)}, 0 offen offset:128
            L_tl3:""")
            self.vm_adj = -3
        if o.get("tst") and o["tst"][0] == "beg": self.tstore()
        if o.get("tl4"):
            a(f"""s_mul_i32 {sr(T)}, {sr(S_TOWN)}, {TILE}
            v_lshlrev_b32 v249, 12, v0
            v_add_u32 v249, {sr(T)}, v249
            s_mov_b64 exec, 7
            buffer_load_dword v252, v249, {sr(S_WS,4)}, 0 offen
            s_mov_b64 exec, -1""")
        if o.get("stamps"): a(f"s_mov_b64 {sr(S_ST,2)}, s[100:101]"); self.stnames.append("start"); self.nst = 1
        self.stamp("xiss")
        a(f"""s_cmp_lt_u32 {sr(T+3)}, {NT}
        s_cselect_b32 {sr(WV)}, 1, 0
        s_mov_b32 {sr(WV+1)}, {sr(T+2)}
        s_mul_i32 {sr(UOFF)}, {sr(S_H)}, 288
        s_cmp_eq_u32 {sr(S_W)}, 0
        s_cselect_b32 {sr(M1)}, 0, {L_DUMP}
        s_cmp_lt_u32 {sr(S_W)}, 3
        s_cselect_b32 {sr(M3)}, {sr(W10)}, {L_DUMP}""")
        half = lambda g_: "s_mov_b32 exec_hi, 0\n" + g_ + "\ns_mov_b32 exec_hi, -1"
        gu = [f"s_add_u32 m0, {sr(W10 if k < 10 else M1)}, {L_WU + 4096*k}\ns_add_u32 {sr(S_CNT)}, {sr(UOFF)}, {4096*k + 288*(256*k//18)}\nbuffer_load_dwordx4 {vr(VU[k])}, {sr(SU,4)}, {sr(S_CNT)} offen lds" for k in range(11)]
        gu[10] = half(gu[10])
        gq = [f"s_add_u32 m0, {sr(W10 if k < 10 else M1)}, {L_WQ + 4096*k}\ns_add_u32 {sr(S_CNT)}, {sr(W10)}, {4096*k}\nbuffer_load_dwordx4 {vr(V_DMA)}, {sr(SQ,4)}, {sr(S_CNT)} offen lds" for k in range(11)]
        gq[10] = half(gq[10])
        gk = [f"s_add_u32 m0, {sr(W10 if k < 10 else M3)}, {L_WK + 4096*k}\ns_mov_b32 {sr(S_CNT)}, {4096*k - 16*(256*k//19)}\nbuffer_load_dwordx4 {vr(VK[k])}, {sr(SK,4)}, {sr(S_CNT)} offen lds" for k in range(11)]
        a(f"s_lshl_b32 {sr(T)}, {sr(S_W)}, 6\nv_add_u32 {vr(t0)}, {sr(T)}, v0\nv_lshlrev_b32 {vr(t1)}, 4, {vr(t0)}")
        self.voff_table(VU, 18, 576, t0)
        npre = o.get("npre", 3)
        a.bg, a.every, a.cnt = gu[:npre], o.get("evpre", 40), 0
        self.voff_table(VK, 19, 288, t0)
        xa0, xa1, xa2 = TM, TM + 1, TM + 2
        a(f"""v_and_b32 {vr(t0)}, 15, v0
        v_lshrrev_b32 {vr(t1)}, 5, v0
        v_lshlrev_b32 {vr(t1)}, 3, {vr(t1)}
        v_xor_b32 {vr(t1)}, {vr(t0)}, {vr(t1)}
        v_lshlrev_b32 {vr(t1)}, 4, {vr(t1)}
        v_lshrrev_b32 {vr(t2)}, 4, v0
        v_lshl_add_u32 {vr(V_KA)}, {vr(t2)}, 9, {vr(t1)}
        v_lshrrev_b32 {vr(t1)}, 3, {vr(t0)}
        v_lshlrev_b32 {vr(t1)}, 1, {vr(t1)}
        v_xor_b32 {vr(t1)}, {vr(t2)}, {vr(t1)}
        v_lshl_add_u32 {vr(t1)}, {vr(t0)}, 2, {vr(t1)}
        v_lshlrev_b32 {vr(V_KA+1)}, 3, {vr(t1)}
        v_lshlrev_b32 {vr(L8)}, 3, v0
        v_lshlrev_b32 {vr(MXR)}, 4, {vr(t0)}
        v_add_u32 {vr(MXR)}, {L_MX}, {vr(MXR)}
        v_add_u32 {vr(MXA)}, {sr(S_W)}, {vr(t2)}
        v_and_b32 {vr(MXA)}, 3, {vr(MXA)}
        v_lshl_add_u32 {vr(MXA)}, {vr(MXA)}, 8, {vr(MXR)}
        s_lshl_b32 {sr(T)}, {sr(S_W)}, 2
        v_add_u32 {vr(MXA)}, {sr(T)}, {vr(MXA)}
        v_mul_u32_u24 {vr(xa2)}, 288, {vr(t0)}
        v_lshl_add_u32 {vr(xa2)}, {vr(t2)}, 3, {vr(xa2)}
        v_add_u32 {vr(xa2)}, {sr(S_LB)}, {vr(xa2)}
        v_and_b32 {vr(t1)}, 1, {vr(t2)}
        v_lshlrev_b32 {vr(t1)}, 5, {vr(t1)}
        v_add_u32 {vr(xa0)}, {vr(xa2)}, {vr(t1)}
        v_xor_b32 {vr(t1)}, 32, {vr(t1)}
        v_add_u32 {vr(xa1)}, {vr(xa2)}, {vr(t1)}
        s_mul_i32 {sr(S_LB)}, {sr(S_W)}, {TILE}
        v_lshrrev_b32 {vr(t0)}, 2, v0
        v_bfe_u32 {vr(t1)}, v0, 1, 1
        v_lshlrev_b32 {vr(t1)}, 3, {vr(t1)}
        v_xor_b32 {vr(t1)}, {vr(t0)}, {vr(t1)}
        v_lshlrev_b32 {vr(t1)}, 4, {vr(t1)}
        v_and_b32 {vr(t2)}, 3, v0
        v_lshl_add_u32 {vr(t1)}, {vr(t2)}, 9, {vr(t1)}
        v_and_b32 {vr(V_VA)}, 1, v0
        v_lshl_add_u32 {vr(t1)}, {vr(V_VA)}, 3, {vr(t1)}
        s_and_b32 {sr(T)}, {sr(S_W)}, 1
        s_lshl_b32 {sr(T)}, {sr(T)}, 12
        s_add_u32 {sr(T+1)}, {sr(T)}, {sr(S_LB)}
        s_xor_b32 {sr(T)}, {sr(T)}, 4096
        s_add_u32 {sr(T)}, {sr(T)}, {sr(S_LB)}
        v_add_u32 {vr(V_VA)}, {sr(T)}, {vr(t1)}
        v_add_u32 {vr(V_VB)}, {sr(T+1)}, {vr(t1)}
        v_xor_b32 {vr(V_VA+1)}, 8, {vr(V_VA)}
        v_xor_b32 {vr(V_VB+1)}, 8, {vr(V_VB)}
        v_lshrrev_b32 {vr(t1)}, 5, v0
        v_lshlrev_b32 {vr(t1)}, 1, {vr(t1)}
        v_xor_b32 {vr(t1)}, {vr(t2)}, {vr(t1)}
        v_lshl_add_u32 {vr(t1)}, {vr(t0)}, 2, {vr(t1)}
        v_lshlrev_b32 {vr(t1)}, 3, {vr(t1)}
        v_add_u32 {vr(V_VR)}, {sr(S_LB)}, {vr(t1)}
        v_add_u32 {vr(V_DMA+1)}, 4096, {vr(V_DMA)}
        v_add_u32 {vr(V_DMA+2)}, 8192, {vr(V_DMA)}""")
        self.tr_addr(TRU, L_WU, True, t0)
        a(f"s_lshl_b32 {sr(T)}, {sr(S_W)}, 6\ns_add_u32 {sr(T)}, {sr(T)}, {L_WQ - L_WU}")
        for k in range(3):
            a(f"v_add_u32 {vr(TRQ+k)}, {sr(T)}, {vr(TRU+k)}\nv_add_u32 {vr(TRQ8+k)}, {L_WQ - L_WU + 256}, {vr(TRU+k)}")
        self.row_addr(RK + 2, L_WK + 8 * 4864, t0)
        a(f"""s_mul_i32 {sr(T)}, {sr(S_W)}, {2*4864}
        s_sub_u32 {sr(T)}, {sr(T)}, {8*4864}
        v_add_u32 {vr(t1)}, {sr(T)}, {vr(RK+2)}
        v_bfe_u32 {vr(t0)}, v0, 2, 1
        v_mul_u32_u24 {vr(t0)}, 4864, {vr(t0)}
        v_add_u32 {vr(RK)}, {vr(t1)}, {vr(t0)}
        v_sub_u32 {vr(RK+1)}, {vr(t1)}, {vr(t0)}""")
        for j in range(4):
            a(f"""s_add_u32 {sr(T)}, {sr(S_W)}, {j}
            s_and_b32 {sr(T)}, {sr(T)}, 3
            s_lshl_b32 {sr(T+1)}, {sr(T)}, 12
            s_add_u32 {sr(T+1)}, {sr(T+1)}, {L_XX}
            v_add_u32 {vr(VS+j)}, {sr(T+1)}, {vr(V_DMA)}
            s_lshl_b32 {sr(T+1)}, {sr(T)}, 9
            s_add_u32 {sr(T+1)}, {sr(T+1)}, {L_XR}
            v_add_u32 {vr(VR4+j)}, {sr(T+1)}, {vr(L8)}
            v_add_u32 {vr(VSW+j)}, {sr(W10)}, {vr(VS+j)}""")
        a(f"""s_sub_u32 {sr(T+2)}, 63, {sr(S_H)}
        s_add_u32 {sr(T+3)}, {sr(S_W)}, 60
        s_cmp_ge_u32 {sr(T+3)}, {sr(T+2)}
        s_cselect_b32 {sr(S_DUM)}, 4, 99
        s_mov_b32 {sr(S_REDO)}, 0
        s_mov_b32 {sr(S_TOFF)}, {sr(S_LB)}
        s_lshl_b32 {sr(PUB)}, {sr(S_TOWN)}, 8
        s_add_u32 {sr(PUB)}, {sr(PUB)}, {FA0}
        s_and_b32 {sr(T)}, {sr(S_W)}, 1
        s_lshl_b32 {sr(T)}, {sr(T)}, 7
        s_add_u32 {sr(PUB)}, {sr(PUB)}, {sr(T)}
        s_lshr_b32 {sr(T)}, {sr(S_W)}, 1
        s_and_b32 {sr(T)}, {sr(T)}, {sr(S_VAL)}
        s_cmp_eq_u32 {sr(T)}, 1
        s_cselect_b32 {sr(PUB)}, {sr(PUB)}, 0x40000000
        s_lshl_b32 {sr(S_FB)}, s2, 8
        s_add_u32 {sr(S_FB)}, {sr(S_FB)}, {WS_F + 250*256}
        s_mul_i32 {sr(T)}, {sr(S_H)}, 1792
        s_sub_u32 {sr(T)}, {sr(T)}, 768
        s_mul_i32 {sr(T+1)}, {sr(S_H)}, 62
        s_cmp_eq_u32 {sr(S_QB)}, {sr(T+1)}
        s_cselect_b32 {sr(T)}, 0, {sr(T)}
        v_mov_b32 {vr(self.VPL)}, 0x40000000
        s_xor_b32 {sr(T+1)}, {sr(S_FB)}, 256
        s_add_u32 {sr(T)}, {sr(T)}, {sr(S_FB)}
        v_writelane_b32 {vr(self.VPL)}, {sr(S_FB)}, 0
        v_writelane_b32 {vr(self.VPL)}, {sr(T+1)}, 1
        v_writelane_b32 {vr(self.VPL)}, {sr(T)}, 2
        s_mov_b32 {sr(T)}, {WS_F + 502*256}
        s_mov_b32 {sr(T+1)}, {WS_F + 503*256}
        v_writelane_b32 {vr(self.VPL)}, {sr(T)}, 3
        v_writelane_b32 {vr(self.VPL)}, {sr(T+1)}, 4
        s_sub_u32 {sr(S_FB)}, {sr(S_FB)}, {L_PC}""")
        if o.get("xm", 0):
            a(f"""s_getreg_b32 {sr(S_XC)}, hwreg(HW_REG_XCC_ID, 0, 4)
            s_xor_b32 {sr(T)}, s2, 1
            s_lshl_b32 {sr(T)}, {sr(T)}, 8
            s_add_u32 {sr(T)}, {sr(T)}, {WS_F + 250*256 + 4}
            v_writelane_b32 {vr(self.VPL)}, {sr(T)}, 5""")
        a.flush()
        if o.get("tlb", 0) == 2: tlb()
        self.stamp("pre")
        if o.get("es", 0) == 0: self.epi_setup()
        self.stamp("es")
        nx = self.vm_since(mx) + getattr(self, "vm_adj", 0)
        if o.get("touch", 1):
            a(f"""s_mov_b64 exec, 0
            s_cmp_eq_u32 {sr(S_W)}, 0
            s_cbranch_scc1 L_tr
            s_cmp_eq_u32 {sr(S_W)}, 1
            s_cbranch_scc1 L_t0
            s_cmp_eq_u32 {sr(S_W)}, 2
            s_cbranch_scc1 L_t1
            s_branch L_t2""")
            self.rare()
            a.raw(".p2align 12")
            a.label("L_tr")
            a("s_mov_b64 exec, -1")
        nlate = o.get("nlate", 0)
        for g_ in gu[npre:npre + nlate]: a(g_)
        a(f"s_waitcnt vmcnt({nx + nlate})")
        self.stamp("xarr")
        for s in range(4):
            a(f"ds_read_b64 {vr(XR+4*s,2)}, {vr(xa0)} offset:{64*s}\nds_read_b64 {vr(XR+4*s+2,2)}, {vr(xa1)} offset:{64*s}")
        a(f"ds_read_b64 {vr(XR+16,2)}, {vr(xa2)} offset:256")
        a(f"""s_and_b32 {sr(T)}, {sr(S_W)}, 1
        s_mul_i32 {sr(T+2)}, {sr(S_TOWN)}, {TILE}
        {f"s_add_u32 {sr(T+2)}, {sr(T+2)}, {sr(S_RO)}" if o.get("rot", 0) == 2 else ""}
        s_cmp_eq_u32 {sr(S_VAL)}, 1
        s_cselect_b32 {sr(T+2)}, {sr(T+2)}, 0x40000000
        s_lshl_b32 {sr(T+3)}, {sr(T)}, 8
        s_add_u32 {sr(T+3)}, {sr(T+3)}, {sr(T+2)}
        s_add_u32 {sr(T+4)}, {sr(T+3)}, 4096
        s_lshl_b32 {sr(T+5)}, {sr(T)}, 9
        s_add_u32 {sr(T+5)}, {sr(T+5)}, {sr(T+2)}
        s_add_u32 {sr(T+5)}, {sr(T+5)}, 8192
        s_waitcnt lgkmcnt(0)""")
        wl = gq + gk
        a.bg, a.every, a.cnt = gu[npre + nlate:] + [wl.pop(0) for _ in range(o.get("nql", 11))], o.get("evln", 5), 0
        self.ln_packed(XR, XF, XA, TM)
        a.flush()
        self.stamp("ln")
        if o.get("tst") and o["tst"][0].startswith("pub"): self.tstore()
        a(f"s_cmp_lt_u32 {sr(S_W)}, 2\ns_cbranch_scc1 L_nop")
        w16 = o.get("w16", 0)
        pair = lambda d, src: [f"v_mov_b32 {vr(d)}, {vr(src)}\nv_mov_b32 {vr(d+1)}, {vr(src+1)}", f"v_mov_b32 {vr(d+2)}, {vr(src)}\nv_mov_b32 {vr(d+3)}, {vr(src+1)}", "",
                               f"v_permlane16_swap_b32 {vr(d)}, {vr(d+2)}\nv_permlane16_swap_b32 {vr(d+1)}, {vr(d+3)}"]
        pr = pair(XR, XA + 16)
        if o.get("pw") == 2: a("s_waitcnt vmcnt(0)")
        self.stamp("pb0")
        for s in range(4):
            a(f"buffer_store_dwordx4 {vr(XA+4*s,4)}, {vr(V_KA)}, {sr(S_WS,4)}, {sr(T+3+(s>>1))} offen offset:{2048*(s&1)} {o.get('pfl', 'sc1')}")
            if w16 & 1: a(pr[s])
        if w16 & 1:
            a(f"s_mov_b32 exec_lo, 0xffff\ns_mov_b32 exec_hi, 0xffff\nbuffer_store_dwordx4 {vr(XR,4)}, {vr(V_KA+1)}, {sr(S_WS,4)}, {sr(T+5)} offen {o.get('pfl', 'sc1')}\ns_mov_b64 exec, -1")
        else: a(f"buffer_store_dwordx2 {vr(XA+16,2)}, {vr(V_KA+1)}, {sr(S_WS,4)}, {sr(T+5)} offen {o.get('pfl', 'sc1')}")
        if o.get("pw"):
            a("s_waitcnt vmcnt(0)")
            self.stamp("pb1")
        a(f"s_waitcnt vmcnt({5 + o.get('nql', 11)})\ns_branch L_bar1")
        a.label("L_nop")
        if o.get("touch", 1):
            a(f"s_mov_b64 exec, 0\ns_cmp_eq_u32 {sr(S_W)}, 0\ns_cbranch_scc1 L_t3\ns_branch L_t4")
            a.label("L_tr2")
            a("s_mov_b64 exec, -1")
        a(f"s_waitcnt vmcnt({o.get('nql', 11)})")
        a.label("L_bar1")
        self.stamp("pub")
        xw = [f"ds_write_b128 {vr(VS)}, {vr(XA+4*s,4)} offset:{1024*s}" for s in range(4)] + [f"ds_write_b64 {vr(VR4)}, {vr(XA+16,2)}"]
        self.stamp("tch")
        PA = 249
        a(f"""v_add_u32 {vr(V_KA)}, {sr(S_LB)}, {vr(V_KA)}
        v_add_u32 {vr(V_KA+1)}, {sr(S_LB)}, {vr(V_KA+1)}
        s_mul_i32 {sr(T)}, {sr(S_B)}, {NT}
        s_mul_i32 {sr(T+1)}, {sr(S_H)}, 63
        s_add_u32 {sr(T)}, {sr(T)}, {sr(T+1)}
        s_lshl_b32 {sr(T)}, {sr(T)}, 8
        s_add_u32 {sr(T)}, {sr(T)}, {FA0}
        s_cmp_eq_u32 {sr(S_W)}, 0
        {"" if o.get("gatepos", 0) else f"s_cselect_b32 {sr(T)}, {sr(T)}, 0x40000000"}
        v_lshl_add_u32 {vr(PA)}, v0, 8, {sr(T)}
        {"" if o.get("rot", 0) else self.xa_srd()}
        s_waitcnt lgkmcnt(0)""")
        self.stamp("w1")
        a("s_barrier")
        self.stamp("bar1")
        m_b1 = len(a.lines)
        ro = sr(S_RO) if o.get("rot", 0) == 2 else "0"
        poll = lambda r: f"buffer_load_dword {vr(r)}, {vr(PA)}, {sr(S_WS,4)}, {ro} offen sc1\nbuffer_load_dword {vr(r+2)}, {vr(PA)}, {sr(S_WS,4)}, {ro} offen offset:128 sc1"

        def gate(lab, r, mask, younger):
            a(f"s_mov_b32 {sr(T+2)}, 0\ns_waitcnt vmcnt({younger})")
            a.label(lab)
            a(f"""v_cmp_ne_u32 vcc, {sr(S_N)}, {vr(r)}
            v_cmp_ne_u32 {sr(T+10,2)}, {sr(S_N)}, {vr(r+2)}
            s_add_u32 {sr(T+2)}, {sr(T+2)}, 1
            s_or_b64 vcc, vcc, {sr(T+10,2)}
            s_and_b64 vcc, vcc, {mask}
            s_cbranch_scc0 {lab}_ok
            s_sleep {o.get("slp", 4)}
            {poll(r)}
            s_waitcnt vmcnt(0)
            s_cmp_lt_u32 {sr(T+2)}, 0x40000
            s_cbranch_scc1 {lab}""")
            a.label(lab + "_ok")

        H, G_, UG, MS, CL = 16, 52, 208, 110, 104
        nup = o.get("nup", 5)
        at = {o.get("u0", 6) + o.get("usp", 6) * i: wl.pop(0) for i in range(nup)}
        for i in range(5): at[i] = xw[i]
        tagld = f"buffer_load_dword v253, off, {sr(S_DB,4)}, 0 sc1"
        tag1 = tagld.replace("sc1", o.get("tgf", "sc1")).strip()
        at[o.get("tgp", 5)] = tag1
        if o.get("es", 0) == 1:
            n_ = len(a.lines); self.epi_setup()
            el = [l.strip() for l in a.lines[n_:]]; del a.lines[n_:]
            for k in range(5, 42):
                if k in at: continue
                c_ = 0
                while el and c_ < o.get("esn", 2):
                    x = el.pop(0); at[k] = at.get(k, "") + x + "\n"; c_ += 1 if x.startswith("v_") else 0.5
            self.es_left = el
        self.gemm(self.tr_reads(TRU), XA, H, None, at=at)
        if o.get("es", 0) == 1:
            for x in self.es_left: a(x)
        self.stamp("up")
        p = lambda r: vr(r, 2)
        CC = TM
        c1 = -2.0 * math.sqrt(2.0 / math.pi) * LOG2E
        c2 = c1 * 0.044715
        gst = [[f"v_pk_mul_f32 {p(G_+2*i)}, {p(H+2*i)}, {p(H+2*i)}" for i in range(18)] +
               [f"v_pk_fma_f32 {p(G_+2*i)}, {p(G_+2*i)}, {p(CC+2)}, {p(CC)} op_sel_hi:[1,0,0]" for i in range(18)] +
               [f"v_pk_mul_f32 {p(G_+2*i)}, {p(G_+2*i)}, {p(H+2*i)}" for i in range(18)],
               [f"v_exp_f32 {vr(G_+i)}, {vr(G_+i)}" for i in range(36)],
               [f"v_pk_add_f32 {p(G_+2*i)}, {p(G_+2*i)}, {p(CC+4)} op_sel_hi:[1,0]" for i in range(18)],
               [f"v_rcp_f32 {vr(G_+i)}, {vr(G_+i)}" for i in range(36)],
               [f"v_pk_mul_f32 {p(H+2*i)}, {p(G_+2*i)}, {p(H+2*i)}" for i in range(18)]]
        gs = o.get("gs", 0)
        if gs:
            a(f"v_mov_b32 {vr(CC)}, {f32(c1)}\nv_mov_b32 {vr(CC+2)}, {f32(c2)}\nv_mov_b32 {vr(CC+4)}, 1.0")
            pre = [x for st_ in gst[:gs] for x in st_]
            ngw = o.get("ngw", 0)
            for i, x in enumerate(pre):
                a(x)
                if ngw and i % o.get("gwsp", 8) == 2 and wl: a(wl.pop(0)); ngw -= 1
            self.stamp("gea")
        last = lambda srd: max(i for i, l in enumerate(a.lines) if l.strip().startswith("buffer_load") and sr(srd, 4) in l) + 1
        assert not any(sr(SQ, 4) in x for x in wl)
        nq_ = self.vm_since(m_b1) + (5 if last(SQ) < m_b1 else 0) if last(SQ) < m_b1 else self.vm_since(last(SQ))
        a(f"s_waitcnt vmcnt({self.vm_since(m_b1) if last(SQ) < m_b1 else nq_}) lgkmcnt(0)" if False else "")
        if last(SQ) < m_b1:
            a(f"s_cmp_lt_u32 {sr(S_W)}, 2\ns_cbranch_scc1 L_bg0\ns_waitcnt vmcnt({5 + self.vm_since(m_b1)})\ns_branch L_bg1\nL_bg0:\ns_waitcnt vmcnt({self.vm_since(m_b1)})\nL_bg1:\ns_waitcnt lgkmcnt(0)\ns_barrier")
        else: a(f"s_waitcnt vmcnt({self.vm_since(last(SQ))}) lgkmcnt(0)\ns_barrier")

        def flag():
            n_ = self.vm_since(max(i for i, l in enumerate(a.lines) if l.strip() == tag1) + 1)
            if w16 & 2: a(self.a8() + f"\ns_mov_b32 {sr(T+5)}, 0\ns_waitcnt vmcnt({n_})")
            else: a(f"v_lshrrev_b32 {vr(t0)}, 5, v0\nv_lshlrev_b32 {vr(t0)}, 30, {vr(t0)}\nv_lshl_add_u32 {vr(t0)}, v0, 2, {vr(t0)}\ns_mov_b32 {sr(T+5)}, 0\ns_waitcnt vmcnt({n_})")
            a.label("L_tag")
            a(f"""v_readfirstlane_b32 {sr(S_N)}, v253
            s_add_u32 {sr(T+5)}, {sr(T+5)}, 1
            s_cmp_lg_u32 {sr(S_N)}, 0
            s_cbranch_scc1 L_tag_ok
            {tagld}
            s_waitcnt vmcnt(0)
            s_cmp_lt_u32 {sr(T+5)}, 0x40000
            s_cbranch_scc1 L_tag""")
            a.label("L_tag_ok")
            if o.get("rot", 0):
                a(f"""{self.region(T+5, S_N)}
                s_cmp_lg_u32 {sr(T+5)}, {sr(S_RO)}
                s_cbranch_scc1 L_moved""")
                a.label("L_movedb")
                if o["rot"] == 2: a(f"s_add_u32 {sr(PUB)}, {sr(PUB)}, {sr(S_RO)}")

                def moved():
                    a.label("L_moved")
                    if o["rot"] == 2: a(f"s_mov_b32 {sr(S_RO)}, {sr(T+5)}")
                    else:
                        a(f"""s_sub_u32 {sr(T+5)}, {sr(T+5)}, {sr(S_RO)}
                        s_ashr_i32 {sr(T+6)}, {sr(T+5)}, 31
                        s_add_u32 {sr(S_WS)}, {sr(S_WS)}, {sr(T+5)}
                        s_addc_u32 {sr(S_WS+1)}, {sr(S_WS+1)}, {sr(T+6)}""")
                    a(f"""s_lshr_b32 {sr(T+5)}, {sr(S_W)}, 1
                    s_and_b32 {sr(T+5)}, {sr(T+5)}, {sr(S_VAL)}
                    s_cbranch_scc0 L_movedb
                    s_mul_i32 {sr(T+5)}, {sr(S_TOWN)}, {TILE}
                    {f"s_add_u32 {sr(T+5)}, {sr(T+5)}, {sr(S_RO)}" if o["rot"] == 2 else ""}
                    s_and_b32 {sr(T+6)}, {sr(S_W)}, 1
                    s_lshl_b32 {sr(T+7)}, {sr(T+6)}, 9
                    s_add_u32 {sr(T+7)}, {sr(T+7)}, {sr(T+5)}
                    s_add_u32 {sr(T+7)}, {sr(T+7)}, 8192
                    s_lshl_b32 {sr(T+6)}, {sr(T+6)}, 8
                    s_add_u32 {sr(T+5)}, {sr(T+5)}, {sr(T+6)}
                    s_add_u32 {sr(T+6)}, {sr(T+5)}, 4096
                    v_subrev_u32 {vr(t0)}, {sr(S_LB)}, {vr(V_KA)}
                    v_subrev_u32 {vr(t1)}, {sr(S_LB)}, {vr(V_KA+1)}""")
                    for s_ in range(4): a(f"buffer_store_dwordx4 {vr(XA+4*s_,4)}, {vr(t0)}, {sr(S_WS,4)}, {sr(T+5+(s_>>1))} offen offset:{2048*(s_&1)} sc1")
                    a(f"buffer_store_dwordx2 {vr(XA+16,2)}, {vr(t1)}, {sr(S_WS,4)}, {sr(T+7)} offen sc1\ns_waitcnt vmcnt(0)\ns_branch L_movedb")
                self.moved = moved
                assert w16 & 2
            if w16 & 2:
                for i in range(4): a(f"v_mov_b32 {vr(CL+i)}, {sr(S_N)}")
                a(f"buffer_store_dwordx4 {vr(CL,4)}, v255, {sr(S_WS,4)}, {sr(PUB)} offen sc1")
            else: a(f"v_mov_b32 {vr(t1)}, {sr(S_N)}\nbuffer_store_dword {vr(t1)}, {vr(t0)}, {sr(S_WS,4)}, {sr(PUB)} offen sc1")
            self.m_fl = len(a.lines)
            if o.get("rot", 0): a(self.xa_srd(T + 5))
            self.stamp("flag")
        self.stamp("barG")
        if o.get("atw"):
            a("s_waitcnt vmcnt(1)")
            self.stamp("ack1")
            a("s_waitcnt vmcnt(0)")
            self.stamp("ack")
        if o.get("census"):
            k_ = S_ST + 2 * self.stnames.index(o["census"][0])
            a(f"s_waitcnt lgkmcnt(0)\nv_mov_b32 v252, {sr(k_)}\ns_lshl_b32 {sr(T)}, s2, 2\ns_add_u32 {sr(T)}, {sr(T)}, {WS_DBG}\nv_mov_b32 v253, 0\nbuffer_store_dword v252, v253, {sr(S_WS,4)}, {sr(T)} offen sc1")

        def a_tr(t):
            ad, off = (TRQ, 32 * t) if t < 2 else (TRQ8, 0)
            return [f"ds_read_b64_tr_b16 {ar(AQ1+18*t+4*s+2*u,2)}, {vr(ad+u)} offset:{9216*s + off}" for s in range(4) for u in range(2)] + \
                   [f"ds_read_b64_tr_b16 {ar(AQ1+18*t+16,2)}, {vr(ad+2)} offset:{36864 + off}"]

        def a_row(t):
            off = 4864 * t if t < 2 else 0
            return [f"ds_read_b64 {ar(A_Q+18*t+4*s+2*u,2)}, {vr(RK+t)} offset:{off + 64*s + 32*u}" for s in range(4) for u in range(2)] + \
                   [f"ds_read_b64 {ar(A_Q+18*t+16,2)}, {vr(RK+t)} offset:{off + 256}"]
        bq = lambda j, d=0: [f"ds_read_b128 {ar(18*j+4*s,4)}, {vr(VS+j)} offset:{d + 1024*s}" for s in range(4)] + [f"ds_read_b64 {ar(18*j+16,2)}, {vr(VR4+j)} offset:{d}"]

        def post(u, scale, d):
            L = [f"v_mul_f32 {vr(ACC+4*u+i)}, {sr(T+4)}, {vr(ACC+4*u+i)}" for i in range(4)] if scale else []
            L += [f"v_cvt_pk_bf16_f32 {vr(PK + (4*(u&3) + 2*(u>>2) if u < 8 else 16) + h)}, {vr(ACC+4*u+2*h)}, {vr(ACC+4*u+2*h+1)}" for h in range(2)]
            if 4 <= u < 8: L.append(f"ds_write_b128 {vr(VSW+u-4)}, {vr(PK+4*(u-4),4)} offset:{d}")
            if u == 8: L.append(f"ds_write_b64 {vr(VR4)}, {vr(PK+16,2)} offset:{d}")
            return L
        fl2 = o.get("fl2", 1)
        self.m_fl = 0
        xd = [f"ds_read_b128 {vr(XD+4*j,4)}, {vr(VSW+j)}" for j in range(4)]
        self.gemm_u(AQ1, ar, [("v", XA), ("a", 18), ("a", 36), ("a", 54)], ACC, a_tr, lambda j: bq(j) if j else None, lambda u: post(u, False, L_QD),
                    vm_items=wl, other=xd, vmsp=o.get("vmsp", 3), at={o.get("flp", 22): flag} if fl2 < 0 else {})
        self.stamp("g1")
        for i in range(4): a(f"v_mov_b32 {vr(CL+i)}, -1")
        a(f"s_lshl2_add_u32 {sr(T+2)}, s2, {sr(S_W)}\ns_mul_i32 {sr(T+2)}, {sr(T+2)}, 2560\ns_add_u32 {sr(T+2)}, {sr(T+2)}, {WS_IB}")
        a(f"s_mov_b32 {sr(T+4)}, {f32(LOG2E / 12.0)}\ns_waitcnt vmcnt({self.vm_since(max(last(SK), self.m_fl)) + (last(SK) < self.m_fl)}) lgkmcnt(0)\ns_barrier")
        T2 = T + 2
        clr = [f"buffer_store_dwordx4 {vr(CL,4)}, {vr(V_DMA)}, {sr(S_WS,4)}, {sr(T+2)} offen sc1",
               f"buffer_store_dwordx4 {vr(CL,4)}, {vr(V_DMA)}, {sr(S_WS,4)}, {sr(T+2)} offen offset:1024 sc1",
               f"buffer_store_dwordx2 {vr(CL,2)}, {vr(L8)}, {sr(S_WS,4)}, {sr(T+2)} offen offset:2048 sc1"]
        self.stamp("bar2")
        gp_ = o.get("gatepos", 0)
        cl1 = not o.get("cll", 1)
        self.gemm_u(A_Q, ar, [("a", 18 * j) for j in range(4)], ACC, a_row, lambda j: bq(j, L_QD), lambda u: post(u, True, 0), vm_items=((clr if cl1 else []) + [poll(252)] if gp_ == 0 else clr if cl1 else []), vm0=o.get("pg", 6), vmsp=o.get("csp", 3),
                    lastk=o.get("plk", 26) if gp_ == 0 else 0, at={fl2: flag} if fl2 >= 0 else {})
        self.stamp("g2")
        p = lambda r: vr(r, 2)
        CC = TM
        for j in range(4): a(f"v_dot2_f32_bf16 {vr(CC+j)}, {vr(PK+4*j)}, {vr(XD+4*j)}, 0")
        for i in range(2): a(f"v_dot2_f32_bf16 {vr(CC)}, {vr(PK+16+i)}, {vr(XA+16+i)}, {vr(CC)}")
        for i in range(1, 4):
            for j in range(4): a(f"v_dot2_f32_bf16 {vr(CC+j)}, {vr(PK+4*j+i)}, {vr(XD+4*j+i)}, {vr(CC+j)}")
        QE = VS if gs else TRQ
        a(f"""s_xor_b32 {sr(T+1)}, {sr(self.NB)}, 1
        v_add_u32 {vr(t0)}, {L_XX}, {vr(V_DMA)}
        v_lshl_add_u32 {vr(QE)}, {sr(T+1)}, 12, {vr(t0)}
        v_lshl_add_u32 {vr(QE+1)}, {sr(self.NB)}, 12, {vr(t0)}""")
        self.treduce(CC)
        a(f"""ds_write_b32 {vr(MXA)}, {vr(CC)}
        v_add_u32 {vr(t0)}, {L_XR}, {vr(L8)}
        v_lshl_add_u32 {vr(QE+2)}, {sr(T+1)}, 9, {vr(t0)}
        v_lshl_add_u32 {vr(QE+3)}, {sr(self.NB)}, 9, {vr(t0)}
        v_lshl_add_u32 {vr(QE+4)}, {sr(T+1)}, 8, {vr(MXR)}
        v_lshl_add_u32 {vr(QE+5)}, {sr(self.NB)}, 8, {vr(MXR)}
        s_sub_u32 {sr(T+5)}, 63, {sr(S_H)}
        s_bfm_b64 {sr(T+8,2)}, {sr(T+5)}, 0
""")
        if gp_ == 0:
            a(f"s_cmp_lg_u32 {sr(S_W)}, 0\ns_cbranch_scc1 L_ga_ok")
            gate("L_ga", 252, sr(T + 8, 2), 0)
        else: a(poll(252))
        a("s_waitcnt lgkmcnt(0)\ns_barrier")
        self.stamp("bar3")
        qrd = [f"ds_read_b128 {vr(MS+4*qb,4)}, {vr(QE+4+(qb&1))} offset:{512*(qb>>1)}" for qb in range(4)]
        for qb in range(4):
            qrd += [f"ds_read_b128 {ar(A_Q+18*qb+4*s,4)}, {vr(QE+(qb&1))} offset:{8192*(qb>>1) + 1024*s}" for s in range(4)]
            qrd.append(f"ds_read_b64 {ar(A_Q+18*qb+16,2)}, {vr(QE+2+(qb&1))} offset:{1024*(qb>>1)}")
        if gs:
            tg = self.tile_groups(0) + self.tile_groups(1)
            n0 = o.get("n0", 3)
            for x in tg[:n0]: a(x)
            tg = tg[n0:]
            if gs < 3: a(f"v_mov_b32 {vr(CC+4)}, 1.0")
            mem = []
            qpd = o.get("qpd", 2)
            while tg or qrd:
                it = []
                if tg: it.append(tg.pop(0))
                it += [qrd.pop(0) for _ in range(min(qpd, len(qrd)))]
                mem.append("\n".join(it))
            com = [x for st_ in gst[gs:] for x in st_]
            ev = o.get("gev", 3)
            for i, x in enumerate(com):
                a(x)
                if i % ev == ev - 1 and mem: a(mem.pop(0))
            a(f"""s_mul_i32 {sr(T)}, {sr(WV+1)}, {BLK}
            s_cmp_eq_u32 {sr(S_H)}, 1
            s_cbranch_scc1 L_ln2
            s_add_u32 {sr(T)}, {sr(T)}, {WS_U}""")
            m0_ = list(mem)
            for i in range(18):
                a(f"v_cvt_pk_bf16_f32 {vr(UG+i)}, {vr(H+2*i)}, {vr(H+2*i+1)}")
                if i % o.get("gev0", 2) == 1 and m0_: a(m0_.pop(0))
            for x in m0_: a(x)
            a("s_branch L_ug")
            a.label("L_ln2")
            a(f"s_add_u32 {sr(T)}, {sr(T)}, {WS_G}")
            a.bg, a.every, a.cnt = list(mem), o.get("gev1", 6), 0
            self.ln_f32(H, UG, TM)
            a.flush()
            a.label("L_ug")
            m_t0 = m_t1 = None
        else:
            tg = self.tile_groups(0) + self.tile_groups(1) + self.tile_groups(2)[:8]
            n0 = o.get("n0", 3) if gp_ == 0 else 0
            for x in tg[:n0]: a(x)
            a(f"v_mov_b32 {vr(CC)}, {f32(c1)}\nv_mov_b32 {vr(CC+2)}, {f32(c2)}\nv_mov_b32 {vr(CC+4)}, 1.0")
            nq1, nt1 = (o.get("nq1", 8), o.get("nt1", 5)) if gp_ == 0 else (o.get("nq1", 16), 0)
            bgl = []
            for i in range(max(nq1 // 2, nt1)):
                if 2 * i < nq1: bgl.append(qrd[2 * i] + "\n" + qrd[2 * i + 1])
                if i < nt1: bgl.append(tg[n0 + i])
            tg, qrd = tg[n0 + nt1:], qrd[nq1:]
            a.bg, a.every, a.cnt = bgl, 54 // (len(bgl) + 1), 0
            for x in gst[0]: a(x)
            a.flush()
            if gp_:
                self.stamp("ge0")
                gate("L_ga", 252, sr(T + 8, 2), 0)
                for x in tg[:2]: a(x)
                tg = tg[2:]
            self.stamp("ge1")
            esp = o.get("esp", 3 if gp_ else 4)
            for i in range(36):
                a(gst[1][i])
                if i % esp == 1 and tg: a(tg.pop(0))
                if i % 8 == 3 and qrd: a(qrd.pop(0)); a(qrd.pop(0))
            self.stamp("ge2")
            for x in gst[2]: a(x)
            for i in range(36):
                a(gst[3][i])
                if i % esp == 1 and tg: a(tg.pop(0))
                if i % 8 == 3 and qrd: a(qrd.pop(0)); a(qrd.pop(0))
            assert not tg and not qrd
            idx = [i for i, l in enumerate(a.lines) if l.strip().startswith("buffer_load") and l.rstrip().endswith("lds")]
            m_t0, m_t1 = idx[-18] + 1, idx[-9] + 1
            for x in gst[4]: a(x)
            a(f"""s_mul_i32 {sr(T)}, {sr(WV+1)}, {BLK}
            s_cmp_eq_u32 {sr(S_H)}, 1
            s_cbranch_scc1 L_ln2
            s_add_u32 {sr(T)}, {sr(T)}, {WS_U}""")
            for i in range(18): a(f"v_cvt_pk_bf16_f32 {vr(UG+i)}, {vr(H+2*i)}, {vr(H+2*i+1)}")
            a("s_branch L_ug")
            a.label("L_ln2")
            a(f"s_add_u32 {sr(T)}, {sr(T)}, {WS_G}")
            self.ln_f32(H, UG, TM)
            a.label("L_ug")
        self.stamp("ge3")
        a(f"""s_cmp_eq_u32 {sr(WV)}, 1
        s_cselect_b32 {sr(S_UG)}, {sr(T)}, 0x40000000
        s_waitcnt lgkmcnt(0)""")
        kz = [f"s_waitcnt vmcnt({9 if gs else self.vm_since(m_t0)})"] + self.k_reads(0, V_V)
        if not gs:
            for x in kz: a(x)
        self.ugs = [f"buffer_store_dwordx4 {vr(UG+4*s,4)}, {vr(V_DMA)}, {sr(S_WS,4)}, {sr(S_UG)} offen offset:{1024*s} sc1" for s in range(4)]
        self.ugs.append(f"buffer_store_dwordx2 {vr(UG+16,2)}, {vr(self.VL8)}, {sr(S_WS,4)}, {sr(S_UG)} offen sc1")
        for qb in range(4): a(f"v_pk_add_f32 {p(MS+4*qb)}, {p(MS+4*qb)}, {p(MS+4*qb+2)} neg_lo:[1,1] neg_hi:[1,1]")
        for qb in range(4): a(f"v_add_f32 {vr(self.MK+qb)}, {vr(MS+4*qb)}, {vr(MS+4*qb+1)}")
        a(f"v_lshlrev_b32 {vr(t1)}, 8, v0\nv_lshlrev_b32 v231, 2, v0\nv_add_u32 v231, {L_PC}, v231\nds_write_b32 v231, {vr(t1)}")
        self.loop_init(False)
        if gs:
            self.loop_init(True)
            self.stamp("ug0")
            for x in kz: a(x)
        else: self.n_t1 = self.vm_since(m_t1)
        self.stamp("ug")

    def a8(self):
        return f"v_lshrrev_b32 v255, 3, v0\nv_min_u32 v255, 1, v255\nv_lshlrev_b32 v255, 30, v255\nv_add_u32 v255, v255, {vr(V_DMA)}"

    def loop_init(self, part):
        a = self.a
        if part:
            for qb in range(4):
                for i in range(4): a(f"v_mov_b32 {vr(V_CI+4*qb+i)}, {vr(self.MK+qb)}")
            return
        for k in range(7): a(f"v_add_u32 {vr(V_HI+k)}, {2*SLOT}, {vr(V_KA+k if k < 5 else V_VB+k-5)}")
        a(f"v_add_u32 {vr(self.VS0)}, {sr(S_LB)}, {vr(V_DMA)}\nv_add_u32 {vr(self.VS0R)}, {sr(S_LB)}, {vr(self.VL8)}\ns_mov_b32 {sr(S_CNT)}, 0\ns_mov_b32 {sr(S_INC)}, {4*TILE}")
        for i in range(4): a(f"v_mov_b32 {vr(V_L+i)}, 0")
        for i in range(4): a(f"v_mov_b32 {vr(226+i)}, -1")
        if self.o.get("oib", 0):
            T = S_T
            a(f"""s_mul_i32 {sr(S_CL)}, {sr(S_TOWN)}, {TILE}
            s_mul_i32 {sr(T)}, {sr(self.NB)}, {BLK}
            s_lshl_b32 {sr(T+1)}, {sr(self.PT)}, 11
            s_add_u32 {sr(T)}, {sr(T)}, {sr(T+1)}
            s_add_u32 {sr(S_CL)}, {sr(S_CL)}, {sr(T)}
            s_xor_b32 {sr(T+1)}, {sr(S_H)}, 1
            s_sub_u32 {sr(T+1)}, {sr(T+1)}, {sr(S_H)}
            s_mul_i32 {sr(T+1)}, {sr(T+1)}, {TILE}
            s_add_u32 {sr(S_OS)}, {sr(S_CL)}, {sr(T+1)}
            s_cmp_ge_u32 s2, 248
            s_cselect_b32 {sr(T)}, 2.0, 0
            s_mul_i32 {sr(T+1)}, {sr(T)}, {sr(S_H)}
            s_sub_u32 {sr(T)}, {sr(T)}, {sr(T+1)}
            s_add_u32 {sr(S_OS)}, {sr(S_OS)}, {sr(T)}
            s_add_u32 {sr(S_OR)}, {sr(S_CL)}, {sr(T+1)}
            s_lshl_b32 {sr(T)}, {sr(S_REDO)}, 30
            s_or_b32 {sr(S_CL)}, {sr(S_OR)}, {sr(T)}
            s_lshl1_add_u32 {sr(S_CL+1)}, s2, {sr(self.NB)}
            s_mul_i32 {sr(S_CL+1)}, {sr(S_CL+1)}, 5120
            s_add_u32 {sr(S_CL+1)}, {sr(S_CL+1)}, {sr(T)}
            s_lshl_b32 {sr(T)}, {sr(self.PT)}, 9
            s_add_u32 {sr(T)}, {sr(T)}, {WS_IB}
            s_add_u32 {sr(S_CL+1)}, {sr(S_CL+1)}, {sr(T)}""")
        else:
            a(f"""s_lshl2_add_u32 {sr(S_CL)}, s2, {sr(S_W)}
            s_mul_i32 {sr(S_CL)}, {sr(S_CL)}, 2560
            s_lshl_b32 {sr(S_CL+1)}, {sr(S_REDO)}, 30
            s_add_u32 {sr(S_CL)}, {sr(S_CL)}, {sr(S_CL+1)}
            s_add_u32 {sr(S_CL)}, {sr(S_CL)}, {WS_IB}
            s_sub_u32 {sr(S_CL+1)}, {sr(S_CL)}, 2048""")
        a(f"v_mov_b32 v207, {sr(S_N)}\nv_mov_b32 {vr(self.VPL+1)}, 1\nv_lshlrev_b32 v231, 2, v0\nv_add_u32 v231, {L_PC}, v231")
        if self.o.get("xm", 0): a(f"s_add_u32 {sr(S_T)}, {sr(S_N)}, {sr(S_XC)}\nv_writelane_b32 v207, {sr(S_T)}, 1")

    def head(self):
        a, o = self.a, self.o
        gs = o.get("gs", 0)
        a.label("L_go")
        if not gs: self.loop_init(True)
        a("s_waitcnt lgkmcnt(0)\ns_barrier")
        self.stamp("bar5")
        base = self.qk_mfmas(0)
        pick = lambda s_, kb, qb: base[8 * s_ + 4 * kb + qb].replace(vr(V_K + 8 * s_ + 4 * kb, 4) + ",", vr(V_V + 8 * s_ + 4 * kb, 4) + ",").replace(vr(V_K + 32 + 2 * kb, 2) + ",", vr(V_V + 32 + 2 * kb, 2) + ",")
        mf, fin = [], {}
        for qb, s_ in [(0, 0), (0, 1), (0, 2), (0, 3), (1, 0), (1, 1), (0, 4), (1, 2), (1, 3), (2, 0), (2, 1), (1, 4), (2, 2), (2, 3), (3, 0), (3, 1), (2, 4),
                       (3, 2), (3, 3), (3, 4)]:
            for kb in range(2):
                fin[qb, kb] = len(mf)
                mf.append(("s_nop 3\n" if (qb, s_, kb) == (3, 4, 0) else "") + pick(s_, kb, qb))
        enew = [e[1] for g in range(40, 76) for e in self.gaps[g] if e[0] == "E"]
        items = self.e_items(0, enew, lambda qb, j: 0, lambda qb: 999)
        for it, e in zip(items, enew):
            if e[0] == "e": it["am"] = fin[e[1], e[2] // 4]
        dm = []
        for k, (slot, j) in enumerate([(2, j) for j in range(9)] if gs else [(2, 8)] + [(3, j) for j in range(9)]):
            g_ = 1 + o.get("hsp", 4) * k
            if j % 4 == 0: dm.append(dict(t=f"s_add_u32 m0, {sr(S_LB)}, {slot*SLOT + 4096*(j//4)}", c=0, lo=g_ - 1, hi=g_ - 1))
            dm.append(dict(t=f"buffer_load_dwordx4 {vr(V_DMA + j//4)}, {sr(S_XA,4)}, {sr(S_TOFF)} offen offset:{1024*(j%4)} lds", c=8, lo=g_, hi=g_))
            if j == 8: dm.append(dict(t=f"s_add_u32 {sr(S_TOFF)}, {sr(S_TOFF)}, {4*TILE}", c=0, lo=g_ + 1, hi=g_ + 1))
        nh = o.get("ugh", 2) if not o.get("ugl", 1) else 0
        for k in range(nh): dm.append(dict(t=self.ugs[k], c=8, lo=3 + 16 * k, hi=3 + 16 * k))
        if gs:
            k1 = o.get("k1lo", 22)
            kr = [dict(t=("@VM\n" if i == 0 else "") + x, c=4, lo=k1 + i // 2, hi=k1 + i // 2, nds=2) for i, x in enumerate(self.k_reads(1))]
        else:
            a(f"s_waitcnt vmcnt({self.n_t1})")
            kr = [dict(t=x, c=4, lo=i // 2, nds=2) for i, x in enumerate(self.k_reads(1))]
        left = self.pack(mf, items + dm + kr)
        print("head overflow", self.over, "left", len(left))
        left.sort(key=lambda x: not x.startswith("v_exp"))
        last = a.lines[-1].strip()
        for x in left:
            if last.startswith("v_exp") and not x.startswith("v_exp") and (last.split()[1].rstrip(",") + ",") in (x + ","): a("s_nop 0")
            a(x); last = x
        a("s_waitcnt lgkmcnt(0)")

    def tile_groups(self, slot):
        out = []
        for j in range(9):
            g = ""
            if j % 4 == 0: g = f"s_add_u32 m0, {sr(S_LB)}, {slot*SLOT + 4096*(j//4)}\ns_nop 0\n"
            g += f"buffer_load_dwordx4 {vr(V_DMA + j//4)}, {sr(S_XA,4)}, {sr(S_TOFF)} offen offset:{1024*(j%4)} lds"
            if j == 8: g += f"\ns_add_u32 {sr(S_TOFF)}, {sr(S_TOFF)}, {4*TILE}"
            out.append(g)
        return out

    def first_tiles(self):
        pass

    def wfuse(self):
        a = self.a
        BF, ACC, AF, TM, AD = 88, 108, 144, 208, 240
        LA, LB_, LM = 0, 44032, 88064
        T = S_T
        a.label("L_wfuse")
        a(f"{'s_sub_u32 s2, s6, 246' if self.o.get('xm', 0) == 2 else f's_add_u32 s2, s2, {NH}'}\ns_cmp_ge_u32 s2, {NH}\ns_cbranch_scc1 L_end")
        a(f"v_lshrrev_b32 v1, 6, v0\nv_and_b32 v0, 63, v0\nv_readfirstlane_b32 {sr(S_W)}, v1\nv_lshlrev_b32 {vr(V_DMA)}, 4, v0\ns_waitcnt lgkmcnt(0)")
        rot = self.o.get("rot", 0) == 1
        if not rot: self.srd(S_WS, 78, 79, WS_END)
        self.srd(S_DB, 76, 77, 256)
        self.wf0 = 0
        self.srd(S_X, 72, 73, 82944)
        self.srd(S_W2, 62, 63, 41472)
        a(f"""s_cmp_eq_u32 s2, {self.wf0}
        s_cselect_b32 {sr(S_W1)}, s64, s70
        s_cselect_b32 {sr(S_W1+1)}, s65, s71
        s_mov_b32 {sr(S_W1+2)}, 41472
        s_mov_b32 {sr(S_W1+3)}, 0x20000
        s_cselect_b32 {sr(T+4)}, 0, 41472""")
        self.dma_rows([(S_W1, "0", LA), (S_W2, "0", LB_)], 19, 288, TM + 4, TM + 5, 11, 3, "L_wf1")
        a(f"s_lshl_b32 {sr(T)}, {sr(S_W)}, 10\ns_add_u32 {sr(T+2)}, {sr(T)}, {sr(T+4)}")
        for k in range(11):
            if k == 10: a(f"s_cmp_ge_u32 {sr(S_W)}, 1\ns_cbranch_scc1 L_wf2")
            a(f"s_add_u32 m0, {sr(T)}, {LM + 4096*k}\ns_add_u32 {sr(T+1)}, {sr(T+2)}, {4096*k}")
            a(f"buffer_load_dwordx4 {vr(V_DMA)}, {sr(S_X,4)}, {sr(T+1)} offen lds")
        a.label("L_wf2")
        self.srd(S_DW, 68, 69, 864)
        a(f"""v_and_b32 {vr(TM)}, 15, v0
        v_lshlrev_b32 {vr(TM+2)}, 4, {vr(TM)}
        v_lshlrev_b32 {vr(TM)}, 1, {vr(TM)}
        v_bfe_u32 {vr(TM+3)}, v0, 4, 1
        v_lshl_add_u32 {vr(TM+1)}, {vr(TM+3)}, 7, {vr(TM)}
        v_lshl_add_u32 {vr(TM+2)}, {vr(TM+3)}, 11, {vr(TM+2)}
        v_and_b32 {vr(TM+3)}, 1, v0
        v_lshlrev_b32 {vr(TM+3)}, 4, {vr(TM+3)}
        v_bfe_i32 {vr(TM+4)}, v0, 1, 1
        v_not_b32 {vr(TM+5)}, {vr(TM+4)}""")
        for k in range(3):
            for i in range(5): a(f"buffer_load_ushort {vr(16+5*k+i)}, {vr(TM+1 if i < 4 else TM)}, {sr(S_DW,4)}, 0 offen offset:{288*k + (32*i if i < 4 else 256)}")
        def wtag():
            a(f"s_mov_b32 {sr(T+2)}, 0")
            a.label("L_wtag")
            a(f"""buffer_load_dword {vr(TM+6)}, off, {sr(S_DB,4)}, 0 sc1
            s_add_u32 {sr(T+2)}, {sr(T+2)}, 1
            s_waitcnt vmcnt(0)
            v_readfirstlane_b32 {sr(S_N)}, {vr(TM+6)}
            s_cmp_lt_u32 {sr(T+2)}, 0x40000
            s_cselect_b32 {sr(T)}, {sr(S_N)}, 1
            s_cmp_eq_u32 {sr(T)}, 0
            s_cbranch_scc1 L_wtag""")
        if rot:
            wtag()
            a(f"""s_lshl_b32 {sr(T)}, {sr(S_N)}, {24 - self.o.get('rsh', 14)}
            s_and_b32 {sr(T)}, {sr(T)}, 0x0f000000
            s_add_u32 {sr(S_WS)}, s78, {sr(T)}
            s_addc_u32 {sr(S_WS+1)}, s79, 0
            s_mov_b32 {sr(S_WS+2)}, {self.wsn()}
            s_mov_b32 {sr(S_WS+3)}, 0x20000""")
        a(f"s_mov_b32 {sr(T+1)}, {WS_DWF}\ns_waitcnt vmcnt(0)")
        for f in range(15):
            a(f"v_lshlrev_b32 {vr(16+f)}, {vr(TM+3)}, {vr(16+f)}\nv_and_b32 {vr(32+2*f)}, {vr(TM+5)}, {vr(16+f)}\nv_and_b32 {vr(33+2*f)}, {vr(TM+4)}, {vr(16+f)}")
        for r_ in range(8): a(f"buffer_store_dwordx{4 if r_ < 7 else 2} {vr(32+4*r_, 4 if r_ < 7 else 2)}, {vr(TM+2)}, {sr(S_WS,4)}, {sr(T+1)} offen offset:{256*r_} sc1")
        self.tr_addr(AD, LM, False, TM + 8)
        self.row_addr(AD + 3, LA, TM + 8)
        a(f"v_add_u32 {vr(AD+5)}, {LB_}, {vr(AD+3)}")
        a(f"v_lshlrev_b32 {vr(AD+4)}, 3, v0")
        a(f"""s_lshr_b32 {sr(T)}, {sr(S_W)}, 1
        s_lshl_b32 {sr(T)}, {sr(T)}, 6
        s_and_b32 {sr(T+1)}, {sr(S_W)}, 1
        s_lshl_b32 {sr(T+1)}, {sr(T+1)}, 3
        s_add_u32 {sr(T)}, {sr(T)}, {sr(T+1)}
        v_and_b32 {vr(AD+6)}, 3, v0
        v_lshlrev_b32 {vr(AD+6)}, 3, {vr(AD+6)}
        v_add_u32 {vr(AD+7)}, {sr(T)}, {vr(AD+6)}""")
        for k in range(3): a(f"v_add_u32 {vr(AD+k)}, {vr(AD+7)}, {vr(AD+k)}")
        a(f"s_mov_b32 {sr(S_CNT)}, {sr(S_W)}")
        a("s_waitcnt vmcnt(0)\ns_barrier")
        a.label("L_wfl")
        for s in self.tr_reads(AD, vr)(0, BF): a(s)
        a("s_waitcnt lgkmcnt(0)")
        self.gemm(self.row_reads(AD + 3), BF, ACC, AF)
        for i in range(18): a(f"v_cvt_pk_bf16_f32 {vr(BF+i)}, {vr(ACC+2*i)}, {vr(ACC+2*i+1)}")
        a(f"s_cmp_eq_u32 s2, {self.wf0}\ns_cbranch_scc0 L_wf3")
        self.gemm(self.row_reads(AD + 5), BF, ACC, AF)
        for i in range(18): a(f"v_cvt_pk_bf16_f32 {vr(BF+i)}, {vr(ACC+2*i)}, {vr(ACC+2*i+1)}")
        a.label("L_wf3")
        a(f"""s_mul_i32 {sr(T)}, {sr(S_CNT)}, {BLK}
        s_add_u32 {sr(T)}, {sr(T)}, {sr(T+4)}
        s_add_u32 {sr(T)}, {sr(T)}, {WS_WF}
        s_add_u32 {sr(T+1)}, {sr(T)}, 4096""")
        self.store_block(BF, V_DMA, AD + 4, S_WS, T, T + 1, "sc1")
        for k in range(3): a(f"v_add_u32 {vr(AD+k)}, 128, {vr(AD+k)}")
        a(f"s_add_u32 {sr(S_CNT)}, {sr(S_CNT)}, 4\ns_cmp_lt_u32 {sr(S_CNT)}, 8\ns_cbranch_scc1 L_wfl")
        for k in range(3): a(f"v_sub_u32 {vr(AD+k)}, {vr(AD+k)}, {vr(AD+6)}")
        a(f"s_cmp_eq_u32 {sr(S_CNT)}, 8\ns_cbranch_scc1 L_wfl")
        a(f"""s_waitcnt vmcnt(0)
        s_barrier
        s_cmp_lg_u32 {sr(S_W)}, 0
        s_cbranch_scc1 L_end""")
        if not rot: wtag()
        a(f"""v_mov_b32 {vr(TM)}, {sr(S_N)}
        v_lshlrev_b32 {vr(TM+1)}, 2, v0
        s_lshl_b32 {sr(T)}, s2, 8
        s_add_u32 {sr(T)}, {sr(T)}, {WS_F + 502*256}
        buffer_store_dword {vr(TM)}, {vr(TM+1)}, {sr(S_WS,4)}, {sr(T)} offen sc1
        s_endpgm""")

    def tstore(self):
        a = self.a
        _, n, fl, allwg, off = self.o["tst"]
        if not allwg: a(f"s_cmp_lg_u32 s2, 101\ns_cbranch_scc1 L_tst")
        a(f"s_waitcnt vmcnt(0)\ns_lshl2_add_u32 s96, s2, {sr(S_W)}\ns_mul_i32 s96, s96, {1024*max(n,1)}\ns_add_u32 s96, s96, {off}")
        k = len(self.stnames)
        a(f"s_memtime s[92:93]")
        if _[-1] == "x":
            a(f"s_cmp_lt_u32 {sr(S_W)}, 2\ns_cselect_b32 s96, 2.0, {off}\ns_add_u32 s97, s96, s56\ns_add_u32 s96, s96, s55")
            for i in range(4): a(f"buffer_store_dwordx4 v[252:255], {vr(V_KA)}, {sr(S_WS,4)}, s{96+(i>>1)} offen offset:{2048*(i&1)} {fl}")
            n = -1
        if _[-1] == "k":
            a(f"s_lshr_b32 s97, {sr(S_W)}, 1\ns_lshl1_add_u32 s96, s2, s97\ns_mul_i32 s96, s96, {2048*n}\ns_and_b32 s97, {sr(S_W)}, 1\ns_lshl_b32 s97, s97, 8\ns_add_u32 s96, s96, s97\ns_add_u32 s96, s96, {off}")
            for i in range(n): a(f"buffer_store_dwordx4 v[252:255], {vr(V_KA)}, {sr(S_WS,4)}, s96 offen offset:{2048*i} {fl}")
            n = -1
        for i in range(n): a(f"buffer_store_dwordx4 v[252:255], {vr(V_DMA)}, {sr(S_WS,4)}, s96 offen offset:{1024*i} {fl}")
        if n == 0: a(f"buffer_load_dwordx4 v[252:255], {vr(V_DMA)}, {sr(S_WS,4)}, s96 offen {fl}")
        a(f"s_waitcnt vmcnt(0)\ns_memtime s[94:95]\ns_waitcnt lgkmcnt(0)")
        a.label("L_tst")

    def dump_stamps(self):
        a = self.a
        if self.o.get("tst") and self.o["tst"][0] == "end": self.tstore()
        if self.o.get("census"):
            key, mode, m_, v_ = self.o["census"]
            a(f"""s_cmp_lg_u32 s2, 100
            s_cbranch_scc1 L_end
            v_lshlrev_b32 v16, 2, v0
            s_mov_b32 s4, {WS_DBG}""")
            for k in range(4): a(f"buffer_load_dword v{20+k}, v16, {sr(S_WS,4)}, s4 offen offset:{256*k} sc1")
            a(f"s_waitcnt vmcnt(0)\nv_readlane_b32 s8, v21, 36\ns_mov_b32 s9, 0x80000000\ns_mov_b32 s10, 0x7fffffff\ns_mov_b32 s11, 0\ns_mov_b32 s17, 0")
            for k in range(4):
                a(f"s_mov_b32 s5, 0")
                a.label(f"L_cs{k}")
                a(f"""v_readlane_b32 s6, v{20+k}, s5
                s_add_u32 s7, s5, {64*k}
                s_sub_u32 s6, s6, s8
                s_and_b32 s16, s7, {m_}
                s_cmp_lg_u32 s16, {v_}
                s_cbranch_scc1 L_cn{k}
                s_min_i32 s10, s10, s6
                s_cmp_gt_i32 s6, {self.o.get("thr", 150)}
                s_addc_u32 s17, s17, 0
                s_cmp_gt_i32 s6, s9
                s_cselect_b32 s9, s6, s9
                s_cselect_b32 s11, s7, s11""")
                a.label(f"L_cn{k}")
                a(f"s_add_u32 s5, s5, 1\ns_cmp_lt_u32 s5, {64 if k < 3 else 60}\ns_cbranch_scc1 L_cs{k}")
            a({"arg": "s_lshl_b32 s6, s11, 3", "range": "s_sub_u32 s6, s9, s10\ns_lshl_b32 s6, s6, 1", "zero": "s_mov_b32 s6, 0", "cnt": "s_lshl_b32 s6, s17, 4",
               "max": "s_lshl_b32 s6, s9, 1"}[mode])
            a("s_add_u32 s6, s6, 1000\ns_memrealtime s[4:5]\ns_waitcnt lgkmcnt(0)\ns_add_u32 s6, s6, s4")
            a.label("L_echo")
            a("s_memrealtime s[4:5]\ns_waitcnt lgkmcnt(0)\ns_sub_u32 s7, s6, s4\ns_cmp_gt_i32 s7, 0\ns_cbranch_scc1 L_echo")
            return
        if self.o.get("echo"):
            if self.o["echo"][0] == "skew":
                a(f"v_mov_b32 v16, 4\nbuffer_load_dword v17, v16, {sr(S_DB,4)}, 0 offen sc1\ns_waitcnt vmcnt(0)\nv_readfirstlane_b32 s98, v17\ns_not_b32 s98, s98")
                x, y = 98, S_ST + 2 * self.stnames.index(self.o["echo"][1])
            elif self.o.get("tst") and self.o["echo"][0] == self.o["echo"][1]: x, y = 92, 94
            else:
                x, y = [S_ST + 2 * self.stnames.index(n) for n in self.o["echo"]]
            lo, hi = self.o.get("echo_ids", (0, 999))
            a(f"""s_cmp_eq_u32 {sr(S_VAL)}, 0
            s_cbranch_scc1 L_end
            s_cmp_lt_u32 s2, {lo}
            s_cbranch_scc1 L_end
            s_cmp_ge_u32 s2, {hi}
            s_cbranch_scc1 L_end
            s_and_b32 s6, s2, {self.o.get("echo_m", 0)}
            s_cmp_lg_u32 s6, {self.o.get("echo_v", 0)}
            s_cbranch_scc1 L_end
            s_cmp_lt_u32 {sr(S_W)}, {self.o.get("echo_w", 0)}
            s_cbranch_scc1 L_end
            s_memrealtime s[4:5]
            s_waitcnt lgkmcnt(0)
            s_sub_u32 s6, {sr(y)}, {sr(x)}
            s_mul_i32 s6, s6, {self.o.get("echo_mul", 1)}
            s_lshr_b32 s6, s6, {self.o.get("echo_shr", 0)}
            s_add_u32 s6, s6, {self.o.get("echo_add", 0)}
            s_add_u32 s6, s6, s4""")
            a.label("L_echo")
            a("s_memrealtime s[4:5]\ns_waitcnt lgkmcnt(0)\ns_sub_u32 s7, s6, s4\ns_cmp_gt_i32 s7, 0\ns_cbranch_scc1 L_echo")
            return
        if self.o.get("dbgst"):
            a("s_waitcnt vmcnt(0)")
            self.stamp("done")
            a("s_waitcnt lgkmcnt(0)\ns_mov_b64 exec, 1")
            slots = [1, 2, 3, 4, 5, 6, 7, 9, 11, 12, 13, 14, 15]
            a(f"s_not_b32 {sr(S_T)}, {sr(S_ST)}\nv_mov_b32 v16, {sr(S_T)}\nv_mov_b32 v17, 4\nbuffer_atomic_umax v16, v17, {sr(S_DB,4)}, 0 offen sc1")
            for i in range(min(self.nst, 12)):
                a(f"v_mov_b32 v{18+2*i}, {sr(S_ST+2*i)}\nv_mov_b32 v{19+2*i}, {4*slots[i+1]}\nbuffer_atomic_umax v{18+2*i}, v{19+2*i}, {sr(S_DB,4)}, 0 offen sc1")
            return
        if not self.o.get("stamps"): return
        T = S_T
        a(f"""s_waitcnt lgkmcnt(0)
        s_lshl_b32 {sr(T)}, s2, 2
        s_add_u32 {sr(T)}, {sr(T)}, {sr(S_W)}
        s_lshl_b32 {sr(T)}, {sr(T)}, 7
        s_add_u32 {sr(T)}, {sr(T)}, {WS_DBG}
        v_mov_b32 v1, 0""")
        for i in range(26): a(f"v_mov_b32 {vr(16+i)}, {sr(S_ST+i)}")
        for i in range(7): a(f"buffer_store_dwordx4 {vr(16+4*i,4)}, v1, {sr(S_WS,4)}, {sr(T)} offen offset:{16*i}")

    def build(self):
        a = self.a
        self.stnames = []
        a.raw(f"; @launch grid=({NWG},1,1) block=(256,1,1) lds={LDS_TOTAL}")
        a.raw('.amdgcn_target "amdgcn-amd-amdhsa--gfx950"')
        a.raw(".text")
        a.raw(f".globl {NAME}")
        a.raw(".p2align 12")
        self.entry()
        self.phase_a()
        self.rest()
        a.label("L_fin")
        self.dump_stamps()
        a.label("L_end")
        a("s_endpgm")
        self.poll2()
        if not self.o.get("touch", 1): self.rare()
        a.label("L_dummy")
        if self.o.get("rot", 0): self.moved()
        self.fallback()
        self.wfuse()
        a.raw('.section .rodata,"a"')
        a.raw(".p2align 6")
        a.raw(kernel_desc(NAME, 512, 102, 256))
        return a.text()

    def S(self, buf, qb, i=0): return V_S + buf * 32 + qb * 8 + i
    def P(self, buf, qb, i=0): return V_P + buf * 16 + qb * 4 + i

    def k_reads(self, slot, V_K=V_K):
        ka, so = (V_KA, slot * SLOT) if slot < 2 else (V_HI, (slot - 2) * SLOT)
        out = [f"ds_read_b128 {vr(V_K+8*s+4*kb,4)}, {vr(ka)} offset:{so + 2048*s + 256*kb}" for s in range(4) for kb in range(2)]
        out += [f"ds_read_b64 {vr(V_K+32+2*kb,2)}, {vr(ka+1)} offset:{so + 8192 + 512*kb}" for kb in range(2)]
        return out

    def v_reads(self, slot, dst=V_V):
        (va, vr_, vb), so = ((V_VA, V_VR, V_VB), slot * SLOT) if slot < 2 else ((V_HI + 2, V_HI + 4, V_HI + 5), (slot - 2) * SLOT)
        out = []
        for T in range(9):
            for u in range(2):
                if T < 8: out.append(f"ds_read_b64_tr_b16 {vr(dst+4*T+2*u,2)}, {vr((va if T < 4 else vb)+(T&1))} offset:{so + 2048*((T>>1)&1) + 256*u}")
                else: out.append(f"ds_read_b64_tr_b16 {vr(dst+4*T+2*u,2)}, {vr(vr_)} offset:{so + 8192 + 512*u}")
        return out

    def qk_mfmas(self, buf, czero=False):
        out = []
        for s in range(5):
            for kb in range(2):
                for qb in range(4):
                    d = vr(self.S(buf, qb, 4 * kb), 4)
                    c = ("0" if czero else vr(V_CI + 4 * qb, 4)) if s == 0 else d
                    if s < 4: out.append(f"v_mfma_f32_16x16x32_bf16 {d}, {vr(V_K+8*s+4*kb,4)}, {ar(A_Q+18*qb+4*s,4)}, {c}")
                    else: out.append(f"v_mfma_f32_16x16x16_bf16 {d}, {vr(V_K+32+2*kb,2)}, {ar(A_Q+18*qb+16,2)}, {c}")
        return out

    def pv_mfmas(self, buf, czero=False):
        out = []
        for T in range(9):
            for qb in range(4):
                o = ar(A_O + 36 * qb + 4 * T, 4)
                out.append(f"v_mfma_f32_16x16x32_bf16 {o}, {vr(V_V+4*T,4)}, {vr(self.P(buf,qb),4)}, {'0' if czero else o}")
        return out

    def plan(self):
        o = self.o
        n = 76
        fixed = [None] * n
        for i, g in enumerate(range(1, 36, 2)): fixed[g] = ("V", i)
        for i, g in enumerate([41, 44, 47, 50, 53, 56, 59, 62, 65, 68]): fixed[g] = ("K", i)
        for i, g in enumerate([42, 46, 49, 52, 55, 58, 61, 64, 67]): fixed[g] = ("D", i)
        exps = [(qb, j) for qb in range(4) for j in range(8)]
        start = 40
        order = [(start + k) % n for k in range(n)]
        free_idx = [k for k, g in enumerate(order) if fixed[g] is None]
        nsm = len(free_idx) - 32
        cand = free_idx[6:-2]
        sm_set = set(free_idx[-2:]) | {cand[int((i + 0.5) * len(cand) / (nsm - 2))] for i in range(nsm - 2)}
        nds = sum(1 for f in fixed if f is not None and f[0] != "D")
        ls = o.get("lsum", "add")
        over = max(0, (48 if ls == "add" else 32) - nds - 2 * nsm)
        ocand = [k for k, g in enumerate(order) if k >= 20 and (fixed[g] is None or fixed[g][0] != "D")]
        o_set = {ocand[int((i + 0.5) * len(ocand) / over)] for i in range(over)}
        later = []
        gaps = [[] for _ in range(n)]
        small, pend, ei = [], [], 0
        for k, g in enumerate(order):
            new = (start + k) < n
            small.extend(pend); pend = later; later = []
            small.sort(key=lambda t: 0 if t[0] == "c" else 1)
            f = fixed[g]
            want = 0
            if f is not None:
                gaps[g].append((f[0], f[1], None))
                if f[0] == "D": continue
                want = 1
            elif k in sm_set: want = 2
            else:
                qb, j = exps[ei]; ei += 1
                gaps[g].append(("E", ("e", qb, j), new))
                if j & 1: pend.append(("c", qb, j // 2))
                if ls == "add": pend.append(("a", qb, j))
                elif j & 1 and ls == "pk": pend.append(("p", qb, j // 2))
            if k in o_set: want += 1
            if k == n - 1: want = 99
            for _ in range(want):
                if small:
                    it = small.pop(0)
                    gaps[g].append(("E", it, new))
                    if it[0] == "c" and ls == "dot": (small if k == n - 1 else pend).append(("d", it[1], it[2]))
        assert not small and not pend and ei == 32
        self.gaps = gaps

    def pack(self, mf, items):
        a = self.a
        where, order, done, nvm, mpos = {}, [], 0, 0, []
        isds = lambda it: "ds_" in it["t"]
        self.over = 0
        for g, m in enumerate(mf):
            assert not any(it.get("need", 999) <= g and i not in where for i, it in enumerate(items)), g
            idx = [k for k, n_ in enumerate(order) if n_ <= g]
            if idx and max(idx) + 1 > done:
                a(f"s_waitcnt lgkmcnt({min(15, len(order) - 1 - max(idx))})"); done = max(idx) + 1
            if m.startswith("@W"):
                w_, m = m.split("\n", 1)
                a(f"s_waitcnt lgkmcnt({min(15, int(w_[2:]) + len(order))})")
            a(m)
            mpos.append(len(a.lines))
            cap, pick = 8, []
            for phase in (0, 1):
                for i, it in enumerate(items):
                    if i in where or it.get("lo", 0) > g: continue
                    if "am" in it and (it["am"] >= g or len(a.lines) - mpos[it["am"]] < 8): continue
                    d = it.get("dep")
                    if d is not None and not all(where.get(x, 999) < g for x in d): continue
                    if (phase == 0 and it.get("hi", 999) <= g) or (phase == 1 and it["c"] <= cap):
                        if it["t"].startswith("buffer") and pick and any(items[x]["c"] for x in pick) and phase == 1: continue
                        if isds(it) and sum(isds(items[x]) for x in pick) >= it.get("nds", 1) and phase == 1: continue
                        pick.append(i); where[i] = g; cap -= it["c"]
            key = lambda i: 0 if items[i]["c"] == 0 else 1 if isds(items[i]) else 2 if items[i]["t"].startswith("buffer") else 3
            for i in sorted(pick, key=key):
                a(items[i]["t"].replace("@VM", f"s_waitcnt vmcnt({nvm})"))
                nvm += items[i]["t"].startswith("buffer")
                if isds(items[i]): order.append(items[i].get("need", 999))
            self.over += max(0, -cap)
        return [it["t"] for i, it in enumerate(items) if i not in where]

    def e_items(self, buf, lst, lo, hi):
        items, idx = [], {}
        for it in lst:
            kind, qb, j = it
            d = dict(t=self.etext(buf, it), c=8 if kind == "e" else 4)
            if kind == "e": d["lo"] = lo(qb, j); d["hi"] = hi(qb) - 2 - (7 - j)
            else:
                need = [("e", qb, j)] if kind == "a" else [("c", qb, j)] if kind == "d" else [("e", qb, 2 * j), ("e", qb, 2 * j + 1)]
                d["dep"] = [idx[x] for x in need if x in idx]
                if kind == "c": d["hi"] = hi(qb) - (3 - j) // 2
            idx[it] = len(items); items.append(d)
        return items

    def etext(self, buf, it):
        kind, qb, j = it
        s = self.S(buf, qb)
        if kind == "e": return f"v_exp_f32 {vr(s+j)}, {vr(s+j)}"
        if kind == "d": return f"v_dot2_f32_bf16 {vr(V_L+qb)}, {vr(self.P(buf, qb, j))}, v227, {vr(V_L+qb)}"
        if kind == "p": return f"v_pk_add_f32 {vr(208+2*qb,2)}, {vr(208+2*qb,2)}, {vr(s+2*j,2)}"
        if kind == "a": return f"v_add_f32 {vr(V_L+qb)}, {vr(V_L+qb)}, {vr(s+j)}"
        return f"v_cvt_pk_bf16_f32 {vr(self.P(buf, qb, j))}, {vr(s+2*j)}, {vr(s+2*j+1)}"

    def period(self, p, qk=True, pv=True, e_old=True, e_new=True, kread=True, vread=True, dma=True, extra={}, dsub=None, ksub=None, vm=9, halves=(0, 1), inc=None):
        a = self.a
        bn, bo = (p + 1) & 1, p & 1
        qk_, pv_ = self.qk_mfmas(bn), self.pv_mfmas(bo, czero=(p == 0))
        qo, po = self.o.get("qkord", 1), self.o.get("pvord", 0)
        if qo == 1: qk_ = [qk_[8 * s_ + 4 * kb + qb] for kb in range(2) for qb in range(4) for s_ in range(4)] + qk_[32:]
        if qo == 2: qk_ = [qk_[8 * s_ + 4 * kb + qb] for qb in range(4) for kb in range(2) for s_ in range(4)] + qk_[32:]
        if qo == 3: qk_ = [qk_[8 * s_ + 4 * kb + qb] for qb in range(4) for s_ in range(4) for kb in range(2)] + qk_[32:]
        if po == 1: pv_ = [pv_[4 * T_ + qb] for qb in range(4) for T_ in range(9)]
        mf = qk_ + pv_
        kr, vrd = self.k_reads((p + 2) % RING), self.v_reads(p % RING)
        slot = p % RING
        n = 76
        sc = [[] for _ in range(n)]
        dgs = [g for g in range(n) if any(e[0] == "D" for e in self.gaps[g])]
        if dma:
            for j, g in enumerate(dgs):
                if j % 4 == 0: sc[g - 1].append(f"s_add_u32 m0, {sr(S_LB)}, {slot*SLOT + 4096*(j//4)}")
            sc[dgs[-1] + 1].append(f"s_add_u32 {sr(S_TOFF)}, {sr(S_TOFF)}, {inc or 4*TILE}")
        w = []
        if kread: w.append(f"vmcnt({vm})")
        if pv: w.append("lgkmcnt(0)")
        if w: sc[39].append("s_waitcnt " + " ".join(w))
        if kread: sc[75].append("s_waitcnt lgkmcnt(0)")
        for half in halves:
            rng = range(0, 40) if half == 0 else range(40, 76)
            on = qk if half == 0 else pv
            if not on:
                ds, mem, val, post = [], [], [], []
                for g in rng:
                    for s_ in sc[g]:
                        (post if s_.startswith("s_waitcnt") else mem).append(s_)
                    if g in extra: mem.append(extra[g])
                    for kind, d, new in self.gaps[g]:
                        if kind == "V" and vread: ds.append(vrd[d])
                        elif kind == "K" and kread: ds.append(kr[d])
                        elif kind == "D" and dma: mem.append(f"buffer_load_dwordx4 {vr(V_DMA + d//4)}, {sr(S_XA,4)}, {sr(S_TOFF)} offen offset:{1024*(d%4)} lds")
                        elif kind == "E" and ((new and e_new) or (not new and e_old)): val.append((d, self.etext(bn if new else bo, d)))
                if half == 1: a("s_nop 3")
                seq, pend = [], list(val)
                while pend:
                    k = 0
                    if seq and seq[-1][0][0] == "e":
                        le = seq[-1][0]
                        dep = lambda it: it[0][1] == le[1] and ((it[0][0] == "a" and it[0][2] == le[2]) or (it[0][0] == "c" and it[0][2] == le[2] // 2))
                        have = {x[0] for x in seq}
                        ok = lambda it: it[0][0] == "e" or (("e", it[0][1], it[0][2]) in have if it[0][0] == "a" else (("e", it[0][1], 2*it[0][2]+1) in have)) or not any(x[0][0] == "e" and x[0][1] == it[0][1] and (x[0][2] == it[0][2] if it[0][0] == "a" else x[0][2] // 2 == it[0][2]) for x in pend)
                        while k < len(pend) and (dep(pend[k]) or not ok(pend[k])): k += 1
                        if k == len(pend): seq.append((("n", 0, 0), "s_nop 0")); k = 0
                    seq.append(pend.pop(k))
                step = max(1, len(seq) // (len(mem) + len(ds) + 1))
                allm = ds + mem
                for x in allm[:6]: a(x)
                allm = allm[6:]
                for i_, (d, t_) in enumerate(seq):
                    a(t_)
                    if allm and i_ % step == step - 1:
                        x = allm.pop(0); a(x)
                        if x.startswith("s_add_u32 m0"): a("s_nop 0")
                for x in allm:
                    a(x)
                    if x.startswith("s_add_u32 m0"): a("s_nop 0")
                for x in post: a(x)
                if half == 0: a("s_nop 1")
                continue
            abl = self.o.get("abl", "") if 1 <= p <= 4 else ""
            for g in rng:
                if not ("Q" in abl and g < 40 or "P" in abl and g >= 40): a(mf[g])
                for s_ in sc[g]: a(s_)
                if g in extra: a(extra[g])
                for kind, d, new in self.gaps[g]:
                    if kind in abl or (kind == "E" and d[0] in abl): continue
                    if kind == "V":
                        if vread: a(vrd[d])
                    elif kind == "K":
                        if kread: a(kr[d])
                        elif ksub: a(ksub.pop(0))
                    elif kind == "D":
                        if dma: a(f"buffer_load_dwordx4 {vr(V_DMA + d//4)}, {sr(S_XA,4)}, {sr(S_TOFF)} offen offset:{1024*(d%4)} lds")
                        elif dsub: a(dsub.pop(0))
                    elif (new and e_new) or (not new and e_old):
                        a(self.etext(bn if new else bo, d))

    MK, VO, VO8, GA, VS0, VS0R, VDW, VLW, VL8, VST, VPL = 232, 236, 9, 238, 250, 251, 244, 245, 246, 247, 248
    NB, PT, E_U, E_G, RS3, E_COL, RS1, RS2, MP1 = 3, 4, 5, 6, 7, 43, 36, 37, 38
    G0, GM, GP, U, DWT = 16, 26, 36, 80, (90, 252, 96, 100, 112, 116, 104, 94)
    XRS = (192, 196, 46)
    frag = staticmethod(lambda f, b: [(f, b + 4 * s) for s in range(5)])
    WD = [[("a", 216 + 4 * s) for s in range(5)], [("a", 234 + 4 * s) for s in range(5)], [("v", 208 + 4 * s) for s in range(5)]]
    WO = [[("a", 4 * s) for s in range(5)], [("a", 18 + 4 * s) for s in range(5)], [("a", 36), ("a", 40), ("a", 44), ("a", 48), ("a", 252)]]
    X1B = 98304
    X2O = L_SP - X1B
    L_L = L_SP + 9216

    def epi_setup(self):
        a = self.a
        T = S_T
        NB, PT, VO, GA = self.NB, self.PT, self.VO, self.GA
        r, g4, x, y, big, r0 = 52, 53, 54, 55, 56, 57
        a(f"""s_lshr_b32 {sr(NB)}, {sr(S_W)}, 1
        s_and_b32 {sr(PT)}, {sr(S_W)}, 1
        v_and_b32 {vr(r0)}, 15, v0
        v_lshrrev_b32 {vr(g4)}, 4, v0
        v_mul_u32_u24 {vr(x)}, 288, {vr(r0)}
        v_mov_b32 {vr(big)}, 0x40000000
        s_lshl_b32 {sr(T)}, {sr(S_TOWN)}, 1
        s_add_u32 {sr(T)}, {sr(T)}, {sr(NB)}
        s_lshl_b32 {sr(T)}, {sr(T)}, 4
        v_add_u32 {vr(r)}, {sr(T)}, {vr(r0)}
        s_mul_i32 {sr(T+1)}, {sr(S_TOWN)}, {TILE}
        s_mul_i32 {sr(T+2)}, {sr(PT)}, {BLK}
        v_add_u32 {vr(x)}, {sr(T+1)}, {vr(x)}
        s_sub_u32 {sr(T+3)}, {BLK}, {sr(T+2)}
        v_add_u32 {vr(y)}, {sr(T+3)}, {vr(x)}
        v_add_u32 {vr(x)}, {sr(T+2)}, {vr(x)}
        v_lshl_add_u32 {vr(VO)}, {vr(g4)}, 4, {vr(x)}
        v_lshl_add_u32 {vr(VO+1)}, {vr(g4)}, 4, {vr(y)}
        v_lshl_add_u32 {vr(self.VO8)}, {vr(g4)}, 3, {vr(x)}
        s_lshl_b32 {sr(T+3)}, {sr(PT)}, 11
        s_add_u32 {sr(self.E_U)}, {sr(T+3)}, {WS_U}
        s_add_u32 {sr(self.E_G)}, {sr(T+3)}, {WS_G}
        s_sub_u32 {sr(T+3)}, 4096, {sr(T+3)}
        s_lshl_b32 {sr(T)}, {sr(PT)}, 11
        s_add_u32 {sr(T)}, {sr(T)}, {WS_DWF}
        v_lshrrev_b32 {vr(x)}, 2, {vr(r0)}
        v_cmp_eq_u32 vcc, {vr(x)}, {vr(g4)}
        v_lshl_add_u32 {vr(self.VDW)}, {vr(r0)}, 4, {sr(T)}
        s_nop 0
        v_cndmask_b32 {vr(self.VDW)}, {vr(big)}, {vr(self.VDW)}, vcc
        s_lshl_b32 {sr(self.E_COL)}, {sr(S_W)}, 6
        v_lshlrev_b32 {vr(self.VL8)}, 3, v0
        v_add_u32 {vr(self.VL8)}, 4096, {vr(self.VL8)}
        v_add_u32 {vr(self.VST)}, {sr(S_LB)}, {vr(V_DMA)}
        v_add_u32 {vr(self.VST)}, {2*SLOT}, {vr(self.VST)}
        s_xor_b32 {sr(T)}, {sr(NB)}, 1
        v_xor_b32 {vr(x)}, {sr(T)}, {vr(g4)}
        v_lshl_add_u32 {vr(x)}, {vr(x)}, 4, {vr(r0)}
        s_lshl_b32 {sr(T)}, {sr(S_W)}, 2
        s_add_u32 {sr(T)}, {sr(T)}, {self.L_L}
        v_lshl_add_u32 {vr(self.VLW)}, {vr(x)}, 4, {sr(T)}
        s_sub_u32 {sr(self.MP1)}, 0, {sr(PT)}
        s_mov_b32 {sr(self.MP1+1)}, {sr(self.MP1)}""")
        for k, (d, base) in enumerate(((self.RS1, 3 * SLOT), (self.RS2, 2 * SLOT), (self.RS3, 2 * SLOT))):
            a(f"s_xor_b32 {sr(T)}, {sr(S_W)}, {k+1}\ns_mul_i32 {sr(T)}, {sr(T)}, {TILE}\ns_add_u32 {sr(d)}, {sr(T)}, {base}")
        a(f"""s_mul_i32 {sr(T)}, {sr(S_B)}, 4000
        s_add_u32 {sr(T+1)}, {sr(T)}, 3999
        s_mov_b32 {sr(T+2)}, {BLK}""")
        for k, dr in enumerate((0, -1, 1)):
            m = GA + 2 * k
            if dr: a(f"v_add_u32 {vr(m)}, {dr}, {vr(r)}\nv_cmp_eq_u32 vcc, {sr(T if dr < 0 else T+1)}, {vr(r)}")
            src = m if dr else r
            a(f"""v_lshrrev_b32 {vr(x)}, 4, {vr(src)}
            v_and_b32 {vr(y)}, 15, {vr(src)}
            v_mul_lo_u32 {vr(x)}, {vr(x)}, {sr(T+2)}
            v_lshl_add_u32 {vr(y)}, {vr(g4)}, 4, {vr(y)}
            v_lshl_add_u32 {vr(m)}, {vr(y)}, 4, {vr(x)}
            v_lshl_add_u32 {vr(m+1)}, {vr(y)}, 3, {vr(x)}
            v_add_u32 {vr(m+1)}, {sr(T+3)}, {vr(m+1)}""")
            if dr: a(f"v_cndmask_b32 {vr(m)}, {vr(m)}, {vr(big)}, vcc\nv_cndmask_b32 {vr(m+1)}, {vr(m+1)}, {vr(big)}, vcc")

    def conv_loads(self):
        GA = self.GA
        L = []
        for dst, m, so in ((self.GM, GA + 2, 1), (self.G0, GA, 1), (self.GP, GA + 4, 1), (self.U, GA, 0)):
            for k in range(2): L.append(f"buffer_load_dwordx4 {vr(dst+4*k,4)}, {vr(m)}, {sr(S_WS,4)}, {sr(self.E_U+so)} offen offset:{1024*k}")
            L.append(f"buffer_load_dwordx2 {vr(dst+8,2)}, {vr(m+1)}, {sr(S_WS,4)}, {sr(self.E_U+so)} offen")
        return L

    def rg(self, e, n): return (ar if e[0] == "a" else vr)(e[1], n)

    def w8_loads(self, regs, so):
        return [f"buffer_load_dwordx4 {self.rg(regs[s],4)}, {vr(V_DMA)}, {sr(S_WS,4)}, {sr(so)} offen offset:{1024*s}" for s in range(4)] + \
               [f"buffer_load_dwordx2 {self.rg(regs[4],2)}, {vr(self.VL8)}, {sr(S_WS,4)}, {sr(so)} offen"]

    def w_reads(self, regs, off):
        L = []
        for tt in range(2):
            L += [f"ds_read_b128 {self.rg(regs[tt][s],4)}, {vr(self.VS0)} offset:{off + BLK*tt + 1024*s}" for s in range(4)]
            L.append(f"ds_read_b64 {self.rg(regs[tt][4],2)}, {vr(self.VS0R)} offset:{off + BLK*tt}")
        return L

    def wsn(self): return WS_DBG + (1 << 20 if self.o.get("stamps") else 0)

    def region(self, d, src):
        o = self.o
        if o["rot"] == 1: return f"s_lshl_b32 {sr(d)}, {sr(src)}, {24 - o.get('rsh', 14)}\ns_and_b32 {sr(d)}, {sr(d)}, 0x0f000000"
        return f"s_bfe_u32 {sr(d)}, {sr(src)}, {(o.get('rbits', 6) << 16) | o.get('rsh', 14)}\ns_mul_i32 {sr(d)}, {sr(d)}, {RSTR}\ns_add_u32 {sr(d)}, {sr(d)}, {RBASE}"

    def xa_srd(self, T=S_T):
        return f"""s_mul_i32 {sr(T)}, {sr(S_B)}, {NT}
        s_mul_i32 {sr(T+1)}, {sr(S_H)}, 63
        s_add_u32 {sr(T+1)}, {sr(T+1)}, {sr(T)}
        s_mul_i32 {sr(T+1)}, {sr(T+1)}, {TILE}
        {f"s_add_u32 {sr(T+1)}, {sr(T+1)}, {sr(S_RO)}" if self.o.get("rot", 0) == 2 else ""}
        s_add_u32 {sr(S_XA)}, {sr(S_WS)}, {sr(T+1)}
        s_addc_u32 {sr(S_XA+1)}, {sr(S_WS+1)}, 0
        s_sub_u32 {sr(T+2)}, 63, {sr(S_H)}
        s_mul_i32 {sr(S_XA+2)}, {sr(T+2)}, {TILE}
        s_mov_b32 {sr(S_XA+3)}, 0x20000"""

    def rest(self):
        a, o = self.a, self.o
        T = S_T
        VPL = self.VPL
        self.plan()
        self.head()
        self.stamp("loop")
        if o.get("sktest") or o.get("echo") and o["echo"][0] == "skew":
            a(f"s_waitcnt lgkmcnt(0)\ns_mov_b64 exec, 1\ns_not_b32 s98, {sr(S_ST)}\nv_mov_b32 v226, s98\nv_mov_b32 v227, 4\ns_cmp_lg_u32 {sr(S_W)}, 0\ns_cbranch_scc1 L_sk\nbuffer_atomic_umax v226, v227, {sr(S_DB,4)}, 0 offen sc1\ns_waitcnt vmcnt(0)\nL_sk:\ns_mov_b64 exec, -1\ns_nop 3")
            self.stamp("sk")
        nh = o.get("ugh", 2)
        ex = {2 + 12 * k: x for k, x in enumerate(self.ugs[nh:])}
        ugl = o.get("ugl", 1)
        CL = 226
        SI = S_OUT if o.get("oib", 0) else S_WS
        clr = [f"buffer_store_dwordx4 {vr(CL,4)}, {vr(V_DMA)}, {sr(SI,4)}, {sr(S_CL)} offen sc1",
               f"buffer_store_dwordx4 {vr(CL,4)}, {vr(V_DMA)}, {sr(SI,4)}, {sr(S_CL)} offen offset:1024 sc1",
               f"buffer_store_dwordx2 {vr(CL,2)}, {vr(self.VL8)}, {sr(S_WS,4)}, {sr(S_CL+1)} offen sc1"]
        cll = o.get("cll", 1)
        ex0 = {69: self.ugs[0], 71: clr[0]} if cll else {69: self.ugs[0]}
        if o.get("gs", 0):
            for j, x in enumerate(self.tile_groups(3)):
                g_ = o.get("t3g", 2) + 4 * j
                x = x.split("\n")
                if x[0].startswith("s_add_u32 m0"): ex0[g_ - 1] = x[0]; x = x[2:]
                ex0[g_] = "\n".join(x)
        if ugl: self.period(0, extra=ex0)
        else: self.period(0, vm=9 + 5, extra=ex)
        self.stamp("l0")
        a.raw(".p2align 6")
        a.label("L_loop")
        self.stamp("q1")
        for p in range(1, 5):
            ex = {}
            vm = 9
            if p == 1: ex = {73: f"s_cmp_eq_u32 {sr(S_CNT)}, 3"}
            if p == 2: ex = {70: f"buffer_load_dword v252, {vr(VPL)}, {sr(S_WS,4)}, 0 offen sc1"}
            if p == 3:
                ex = {73: f"s_cmp_eq_u32 {sr(S_CNT)}, 2", 45: f"ds_add_rtn_u32 v230, v231, {vr(VPL+1)}"}
            if p == 4:
                self.stamp("la0")
                a(f"s_cbranch_scc1 L_last")
                a.label("L_lastb")
                self.stamp("la1")
                ex = {72: f"s_add_u32 {sr(S_CNT)}, {sr(S_CNT)}, 1", 1: f"v_readfirstlane_b32 {sr(T)}, v230", 3: f"s_cmp_eq_u32 {sr(T)}, 3",
                      4: f"s_cselect_b32 {sr(T)}, {sr(S_FB)}, 2.0", 6: f"buffer_store_dword v207, v231, {sr(S_WS,4)}, {sr(T)} offen sc1"}
            if ugl:
                ex[69] = self.ugs[p]
                if p < 3 and cll: ex[72] = clr[p]
                if p == 3 and cll: ex.update({70: f"s_mov_b32 {sr(S_CL)}, 2.0", 71: f"s_mov_b32 {sr(S_CL+1)}, 2.0"})
                if p == 4: ex.update({71: f"s_mov_b32 {sr(S_UG)}, 2.0", 2: f"s_lshl2_add_u32 {sr(T)}, {sr(S_CNT)}, {sr(T)}", 3: f"s_cmp_eq_u32 {sr(T)}, 7"})
                if p == 3: ex.update({43: f"s_and_b32 {sr(T)}, {sr(S_CNT)}, 1", 44: f"v_mov_b32 {vr(VPL+1)}, {sr(T)}", 48: ex.pop(45)})
            for k_ in range(o.get("pad", 0)): ex[10 + 7 * k_] = ex.get(10 + 7 * k_, "s_nop 0") + "\ns_nop 7"
            self.period(p, extra=ex, inc=sr(S_INC) if p == 4 else None)
            if p == 1: a("s_cbranch_scc1 L_p14")
        a("s_branch L_loop")
        a.label("L_p14")
        SW = 66
        self.stamp("p14")
        a(f"s_cmp_eq_u32 {sr(S_DUM)}, 4\ns_cbranch_scc0 L_dummyb")
        for i in range(16): a(f"v_mov_b32 {vr(V_CI+i)}, 0xff800000")
        a("s_nop 1")
        a.label("L_dummyb")
        ex = dict(zip([2, 6, 8, 12, 14, 18, 20, 24, 26, 30], self.w_reads(self.WD, 0)))
        ex[0] = "s_waitcnt vmcnt(9)"
        ex.update(dict(zip([4, 10, 16, 22, 28], self.w8_loads(self.WD[2], SW))))
        self.period(14, dma=False, kread=False, extra=ex, halves=(0,))
        self.stamp("tail")
        self.tail(SW)
        self.stamp("end")
        self.epilogue(SW)

    def rare(self):
        a = self.a
        T = S_T
        SW = 66
        a.label("L_last")
        a(f"s_waitcnt vmcnt(9)\ns_mov_b32 {sr(T+2)}, 0")
        a.label("L_late")
        xc = f"v_readlane_b32 {sr(S_SX)}, v252, 5\ns_sub_u32 {sr(S_SX)}, {sr(S_SX)}, {sr(S_N)}" if self.o.get("xm", 0) else ""
        a(f"""v_cmp_ne_u32 vcc, {sr(S_N)}, v252
        s_add_u32 {sr(S_XA)}, {sr(S_WS)}, {WS_WF}
        s_addc_u32 {sr(S_XA+1)}, {sr(S_WS+1)}, 0
        s_mov_b32 {sr(S_XA+2)}, {18*BLK}
        s_add_u32 {sr(S_TOFF)}, {sr(S_LB)}, {9*BLK}
        s_mov_b32 {sr(S_INC)}, {-9*BLK}
        s_lshr_b32 {sr(SW)}, {sr(S_W)}, 1
        s_lshl_b32 {sr(SW)}, {sr(SW)}, 30
        s_add_u32 {sr(SW+1)}, {sr(SW)}, {WS_WF + 8*BLK}
        s_add_u32 {sr(SW)}, {sr(SW)}, {WS_WF + 17*BLK}
        {xc}
        s_and_b32 {sr(T)}, vcc_lo, 31
        s_cbranch_scc0 L_lastb
        buffer_load_dword v252, {vr(self.VPL)}, {sr(S_WS,4)}, 0 offen sc1
        s_add_u32 {sr(T+2)}, {sr(T+2)}, 1
        s_waitcnt vmcnt(0)
        s_cmp_lt_u32 {sr(T+2)}, 0x40000
        s_cbranch_scc1 L_late
        s_branch L_lastb""")

    units = [(0, 0), (0, 1), (1, 0), (1, 1), (2, 0)]
    V15 = V_K

    def stage(self, slot, T):
        src = ar(A_O + 36 * slot + 4 * T, 4)
        if slot == 0: return f"ds_write_b128 {vr(self.VST)}, {src} offset:{1024*T}"
        if slot == 2: return f"ds_write_b128 {vr(self.VS0)}, {src} offset:{1024*T}"
        if T < 4: return f"ds_write_b128 {vr(self.VST)}, {src} offset:{SLOT + 1024*T + (4096 if slot == 3 else 0)}"
        return f"{'s_not_b64' if slot == 1 else 's_mov_b64'} exec, {sr(self.MP1,2)}\nds_write_b128 {vr(self.VST)}, {src} offset:{SLOT + 8192}\ns_mov_b64 exec, -1"

    def dwf(self, k, i):
        f = 5 * k + i
        return self.DWT[f >> 1] + 2 * (f & 1)

    def tail(self, SW):
        a, o = self.a, self.o
        mf, pos, start = [], {}, {}
        for t_, qb in ((14, 0), (14, 1), (15, 0), (15, 1), (14, 2), (15, 2), (14, 3), (15, 3)):
            start[t_, qb] = len(mf)
            for Tt in ([0, 1, 2, 3, 8, 4, 5, 6, 7] if qb & 1 else range(9)):
                o_ = ar(A_O + 36 * qb + 4 * Tt, 4)
                pos[t_, qb, Tt] = len(mf)
                mf.append(f"v_mfma_f32_16x16x32_bf16 {o_}, {vr((V_V if t_ == 14 else self.V15)+4*Tt,4)}, {vr(self.P(t_ & 1,qb),4)}, {o_}")
        lst = []
        for qb in range(4):
            for j in range(8):
                lst.append(("e", qb, j))
                if j & 1: lst.append(("c", qb, j // 2))
        lst += [("a", qb, j) for qb in range(4) for j in range(8)]
        items = self.e_items(1, lst, lambda qb, j: 0 if j < 4 else 1, lambda qb: start[15, qb] - 2)
        for it in items[48:]: it["lo"] = o.get("alo", 26)
        v15 = [dict(t=x, c=4, need=pos[15, 0, i // 2], hi=pos[15, 0, i // 2] - o.get("vlead", 7), lo=0 if i < 16 else 2) for i, x in enumerate(self.v_reads(3, self.V15))]
        wr = []
        nown = o.get("nown", 4)
        self.own = [(2, T_) for T_ in range(nown, 9)] + [(3, T_) for T_ in (0, 1, 2, 3, 8)]
        g = o.get("w0", 23)
        for k, (sl, Tt) in enumerate([(0, T_) for T_ in range(9)] + [(1, T_) for T_ in (0, 1, 2, 3, 8)] + [(2, T_) for T_ in range(nown)]):
            g = max(pos[15, sl, Tt] + 5, g)
            wr.append(dict(t=self.stage(sl, Tt), c=o.get("wc", 20), lo=int(g), hi=int(g)) if g < 72 else dict(t=self.stage(sl, Tt), c=4, lo=999))
            g += o.get("wsp", 2.7)
        n0 = len(items) + len(v15)
        wo = []
        for i, x in enumerate(self.w_reads(self.WO, SLOT)):
            r0 = self.WO[i // 5][i % 5][1]
            wo.append(dict(t=("@VM\n" if i == 0 else "") + x, c=4, dep=sorted({n0 + r0 // 4, n0 + (r0 + 3) // 4 if (r0 + 3) // 4 < 9 else n0 + 8}), lo=o.get("wo0", 40) + 3 * i, hi=o.get("wo0", 40) + 3 * i + 2))
        cl = self.conv_loads()
        dl = [f"buffer_load_dwordx4 {vr(self.DWT[r],4)}, {vr(self.VDW)}, {sr(S_WS,4)}, 0 offen offset:{256*r}" for r in range(7)]
        dl.append(f"buffer_load_dwordx2 {vr(self.DWT[7],2)}, {vr(self.VDW)}, {sr(S_WS,4)}, 0 offen offset:{256*7}")
        fr = {96: 9, 100: 18, 104: 45, 112: 27, 116: 36}
        vm = [(x, 0) for x in cl] + [(x, fr.get(self.DWT[r], 0)) for r, x in enumerate(dl)]
        used = {w["lo"] for w in wr}
        vi, g = [], o.get("m0", 24)
        for x, lo in vm:
            g = max(g, lo)
            while int(g) in used: g += 1
            vi.append(dict(t=x, c=8, lo=int(g), hi=int(g)) if g < 72 else dict(t=x, c=8, lo=999))
            g += o.get("msp", 2.2)
        left = self.pack(mf, items + v15 + wr + wo + vi)
        self.done_a = {(qb, j) for qb in range(4) for j in range(8) if self.etext(1, ("a", qb, j)) not in left}
        left = [x for x in left if not x.startswith("v_add_f32")]
        print("tail overflow", self.over, "left", len(left), "adds done", len(self.done_a))
        self.left = left

    def epilogue(self, SW):
        a, o = self.a, self.o
        T = S_T
        p = lambda r: vr(r, 2)
        NB, PT, MK, VO, units, MP1 = self.NB, self.PT, self.MK, self.VO, self.units, self.MP1
        U, GM, G0, GP = self.U, self.GM, self.G0, self.GP
        X2O = self.X2O
        R1, R2, R3 = 230, 231, 249
        LA, LS, M = 10, 226, 48

        def weave(main, fill, per):
            fill = list(fill)
            for x in main:
                a(x)
                for _ in range(per):
                    if fill: a(fill.pop(0))
            return fill
        for x in self.left:
            if not x.startswith("buffer"): a(x)
        lv = [x for x in self.left if x.startswith("buffer")]
        lv += [f"buffer_load_dwordx4 {vr(self.XRS[j],4)}, {vr(VO+j)}, {sr(S_X,4)}, {sr(self.E_COL)} offen" for j in range(2)]
        lv.append(f"buffer_load_dwordx2 {vr(self.XRS[2],2)}, {vr(self.VO8)}, {sr(S_X,4)}, 0 offen offset:256")
        S1 = lambda qb, j: self.S(1, qb, j)
        rounds = [[] for _ in range(6)]
        for qb in range(4):
            rem = [j for j in range(8) if (qb, j) not in self.done_a]
            prs = [j for j in rem if j % 2 == 0 and j + 1 in rem]
            sing = [j for j in rem if (j & ~1) not in prs]
            r_ = 0
            while len(prs) > 1:
                for x, y in zip(prs[0::2], prs[1::2]): rounds[r_].append(f"v_pk_add_f32 {p(S1(qb,x))}, {p(S1(qb,x))}, {p(S1(qb,y))}")
                prs = prs[0::2]; r_ += 1
            for k_, j in enumerate(sing + ([prs[0], prs[0] + 1] if prs else [])): rounds[min(5, max(r_, 2) + k_)].append(f"v_add_f32 {vr(V_L+qb)}, {vr(V_L+qb)}, {vr(S1(qb,j))}")
        for r_ in rounds:
            for x in r_: a(x)
        a(f"v_add_u32 {vr(R1)}, {sr(self.RS1)}, {vr(V_DMA)}\nv_add_u32 {vr(R2)}, {sr(self.RS2)}, {vr(V_DMA)}")
        self.treduce(V_L)
        a(f"ds_write_b32 {vr(self.VLW)}, {vr(V_L)}")
        acc = lambda slot: [f"v_accvgpr_read_b32 {vr(M+i)}, {ar(A_O+36*slot+16+i)}" for i in range(20)]
        a(f"""v_add_u32 {vr(R3)}, {sr(self.RS3)}, {vr(V_DMA)}
        v_add_u32 {vr(LA+1)}, {self.L_L}, {vr(V_DMA)}
        v_and_b32 {vr(LS+1)}, 0xf0, {vr(V_DMA)}
        s_lshl_b32 {sr(T)}, {sr(NB)}, 8
        s_add_u32 {sr(T+8)}, {sr(T)}, {self.L_L}
        v_add_u32 {vr(LS)}, {sr(T+8)}, {vr(LS+1)}""")
        for x in lv: a(x)
        a(f"""s_xor_b32 {sr(T)}, s2, 1
        s_mul_i32 {sr(T)}, {sr(T)}, {IB}
        s_mul_i32 {sr(T+9)}, {sr(NB)}, 5120
        s_add_u32 {sr(T+9)}, {sr(T+9)}, {WS_IB}
        s_add_u32 {sr(T)}, {sr(T)}, {sr(T+9)}
        s_lshl_b32 {sr(T+10)}, {sr(PT)}, 11
        {"" if o.get("oib", 0) else f"s_add_u32 {sr(T+1)}, {sr(T+10)}, {sr(T)}"}
        s_add_u32 {sr(T)}, {sr(T)}, 4096
        s_cmp_eq_u32 {sr(PT)}, 0
        s_cselect_b32 {sr(T)}, 0x40000000, {sr(T)}
        s_mov_b32 {sr(T+2)}, {f32(2.0**100)}
        s_mul_i32 {sr(T+12)}, s2, {IB}
        s_add_u32 {sr(T+12)}, {sr(T+12)}, {sr(T+9)}
        {"" if o.get("oib", 0) else f"s_add_u32 {sr(T+13)}, {sr(T+12)}, {sr(T+10)}"}
        s_waitcnt lgkmcnt(0)
        s_barrier""")
        self.stamp("B1")

        def rd(X, offs):
            L = [[f"ds_read_b128 {vr(X[k][i],4)}, {vr((R1, R2, R3)[k])} offset:{offs[k] + 1024*i}" for i in range(4)] for k in range(3)]
            L8 = [f"ds_read_b128 {vr(X[k][4],4)}, {vr((R1, R2, R3)[k])} offset:8192" for k in range(3)]
            return L, L8

        def adds(X, k, rng):
            return [f"v_pk_add_f32 {p(M+4*i+2*h)}, {p(M+4*i+2*h)}, {p(X[k][i]+2*h)}" for i in rng for h in range(2)]
        X = [[128, 132, 136, 140, 144], [148, 152, 156, 160, 68], [72, 76, 200, 204, 108]]
        PK = 128
        sfl = o.get("sfl", "")
        oib = o.get("oib", 0)
        SI = S_OUT if oib else S_WS
        L, L8 = rd(X, (0, 4096, 0))
        a(f"ds_read_b128 {vr(LA,4)}, {vr(LA+1)}\nds_read_b128 {vr(LS,4)}, {vr(LS)}")
        rest = weave(L[0] + L[1] + L[2], acc(1), 2)
        assert not rest
        a(f"s_mov_b64 exec, {sr(MP1,2)}")
        for x in L8: a(x)
        a(f"""s_mov_b64 exec, -1
        s_waitcnt lgkmcnt(11)
        v_add_f32 {vr(LA)}, {vr(LA)}, {vr(LA+1)}
        v_add_f32 {vr(LA+2)}, {vr(LA+2)}, {vr(LA+3)}
        v_add_f32 {vr(LS)}, {vr(LS)}, {vr(LS+1)}
        v_add_f32 {vr(LA)}, {vr(LA)}, {vr(LA+2)}
        v_add_f32 {vr(LS+2)}, {vr(LS+2)}, {vr(LS+3)}
        v_cmp_nge_f32 vcc, {sr(T+2)}, {vr(LA)}""")
        for x in adds(X, 0, range(4)): a(x)
        a(f"""s_cmp_lg_u64 vcc, 0
        s_cselect_b32 {sr(T+2)}, 1, 0
        s_andn2_b32 {sr(T+2)}, {sr(T+2)}, {sr(S_REDO)}
        s_cbranch_scc1 L_fallback
        v_add_f32 {vr(PK+10)}, {vr(LS)}, {vr(LS+2)}
        v_mov_b32 {vr(PK+11)}, {vr(MK+1)}
        s_waitcnt lgkmcnt(7)""")
        for x in adds(X, 1, range(4)): a(x)
        a("s_waitcnt lgkmcnt(3)")
        a3 = adds(X, 2, range(4))
        cv = [f"v_cvt_pk_bf16_f32 {vr(PK+i)}, {vr(M+2*i)}, {vr(M+2*i+1)}" for i in range(10)]
        for x in a3[:4] + a3[4:6] + cv[:4]: a(x)

        def send(fl):
            a(f"buffer_store_dwordx4 {vr(PK,4)}, {vr(V_DMA)}, {sr(SI,4)}, {sr(S_OS if oib else T+1)} offen {fl}")
            for x in a3[6:] + cv[4:8]: a(x)
            a(f"buffer_store_dwordx4 {vr(PK+4,4)}, {vr(V_DMA)}, {sr(SI,4)}, {sr(S_OS if oib else T+1)} offen offset:1024 {fl}")
            a("s_waitcnt lgkmcnt(0)")
            for kk in range(3):
                for x in adds(XS, kk, [4]): a(x)
            for x in cv[8:]: a(x)
            a(f"buffer_store_dwordx4 {vr(PK+8,4)}, {vr(V_DMA)}, {sr(S_WS,4)}, {sr(T)} offen {fl}")
        XS = X
        self.send = send
        if o.get("xm", 0) and o.get("l2s", 1):
            a(f"s_cmp_eq_u32 {sr(S_SX)}, {sr(S_XC)}\ns_cbranch_scc0 L_far")
            send(sfl)
            a.label("L_sent")
        else: send("sc1")
        self.stamp("sent")
        a(f"s_cmp_eq_u32 {sr(S_VAL)}, 0\ns_cbranch_scc1 L_fin")
        C, UP = 140, 68
        IN = [(200, 204, 226), (164, 168, 252), (192, 196, 172)]
        VXW, VXR, VF, LO = 78, 79, 10, 36
        wr = [self.stage(*e) for e in self.own]

        def inbox(k):
            return [f"buffer_load_dwordx4 {vr(IN[k][0],4)}, {vr(V_DMA)}, {sr(SI,4)}, {sr(S_OR if oib else T+13)} offen sc1",
                    f"buffer_load_dwordx4 {vr(IN[k][1],4)}, {vr(V_DMA)}, {sr(SI,4)}, {sr(S_OR if oib else T+13)} offen offset:1024 sc1",
                    f"buffer_load_dwordx4 {vr(IN[k][2],4)}, {vr(V_DMA+1)}, {sr(S_WS,4)}, {sr(T+12)} offen sc1"]
        for x in inbox(0): a(x)
        n0 = len(a.lines)
        a(f"""s_lshl_b32 {sr(T)}, {sr(NB)}, 12
        s_add_u32 {sr(T)}, {sr(T)}, {sr(T+10)}
        s_add_u32 {sr(T)}, {sr(T)}, {self.X1B}
        v_add_u32 {vr(VXW)}, {sr(T)}, {vr(V_DMA)}
        s_lshl_b32 {sr(T)}, {sr(NB)}, 9
        s_add_u32 {sr(T)}, {sr(T)}, {self.X1B + 4096}
        v_add_u32 {vr(VXR)}, {sr(T)}, {vr(self.VL8)}
        s_lshl_b32 {sr(T)}, {sr(PT)}, 12
        s_add_u32 {sr(T)}, {sr(T)}, {self.X1B}
        v_add_u32 {vr(VF)}, {sr(T)}, {vr(V_DMA)}
        v_xor_b32 {vr(VF+1)}, 4096, {vr(VF)}
        s_lshl_b32 {sr(T)}, {sr(PT)}, 9
        s_add_u32 {sr(T)}, {sr(T)}, {self.X1B + 4096}
        v_add_u32 {vr(VF+2)}, {sr(T)}, {vr(self.VL8)}
        v_xor_b32 {vr(VF+3)}, 512, {vr(VF+2)}
        v_subrev_u32 {vr(R2)}, {2*SLOT}, {vr(R2)}
        v_subrev_u32 {vr(R3)}, {2*SLOT}, {vr(R3)}
        s_waitcnt vmcnt(9)""")
        self.stamp("cv0")
        un = [f"v_lshlrev_b32 {vr(M+2*i)}, 16, {vr(U+i)}\nv_and_b32 {vr(M+1+2*i)}, 0xffff0000, {vr(U+i)}" for i in range(10)]
        w8 = self.w8_loads(self.WO[2], SW + 1)
        for k, src in enumerate((GM, G0, GP)):
            for i in range(5):
                d = vr(C + 4 * i, 4)
                a(f"v_mfma_f32_16x16x16_bf16 {d}, {vr(self.dwf(k, i),2)}, {vr(src+2*i,2)}, {'0' if k == 0 else d}")
                a(w8.pop(0) if i in (0, 3) and w8 else un.pop(0))
        self.stamp("cv1")
        a(f"v_and_b32 {vr(LO+1)}, 0xf0, {vr(V_DMA)}\nv_add_u32 {vr(LO)}, {sr(T+8)}, {vr(LO+1)}\ns_nop 1")
        for i in range(10): a(f"v_pk_mul_f32 {p(C+2*i)}, {p(C+2*i)}, {p(M+2*i)}")
        for i in range(10):
            a(f"v_cvt_pk_bf16_f32 {vr(UP+i)}, {vr(C+2*i)}, {vr(C+2*i+1)}")
        body = a.lines[n0:]; del a.lines[n0:]
        step = max(1, len(body) // len(wr))
        for i, l in enumerate(body):
            if i % o.get("wstep", step) == 0 and wr: a(wr.pop(0))
            a.lines.append(l)
        for x in wr: a(x)
        ac = acc(3)
        a(f"ds_write_b128 {vr(VXW)}, {vr(UP,4)} offset:{X2O}")
        for x in ac[:6]: a(x)
        a(f"ds_write_b128 {vr(VXW)}, {vr(UP+4,4)} offset:{X2O + 1024}")
        for x in ac[6:12]: a(x)
        a(f"""s_mov_b64 exec, {sr(MP1,2)}
        ds_write_b64 {vr(VXR)}, {vr(UP+8,2)} offset:{X2O}
        s_mov_b64 exec, -1""")
        self.stamp("x2")
        for x in inbox(1): a(x)
        for x in ac[12:]: a(x)
        a("s_waitcnt lgkmcnt(0)\ns_barrier")
        self.stamp("B2")
        X = [[128, 132, 136, 140, 144], [148, 152, 156, 160, 188], [16, 20, 24, 28, 32]]
        L, L8 = rd(X, (4096, 4096, 0))
        BU = [[("v", r) for r in (100, 104, 108, 112, 116)], [("v", r) for r in (118, 122, 180, 184, 126)]]
        BO = [self.frag("v", 128), self.frag("v", 146)]
        AB = 80

        def bfrags(dst, off):
            out = []
            for s in range(5):
                for j in range(2):
                    out.append(f"ds_read_b128 {self.rg(dst[j][s],4)}, {vr(VF+j)} offset:{off + 1024*s}" if s < 4 else f"ds_read_b64 {self.rg(dst[j][4],2)}, {vr(VF+2+j)} offset:{off}")
            return out

        def fg(W, Bf):
            out = []
            for s in range(5):
                for u, (tt, j) in enumerate(units):
                    d = vr(AB + 4 * u, 4)
                    if s < 4: out.append(f"v_mfma_f32_16x16x32_bf16 {d}, {self.rg(W[tt][s],4)}, {self.rg(Bf[j][s],4)}, {d}")
                    else: out.append(f"v_mfma_f32_16x16x16_bf16 {d}, {self.rg(W[tt][4],2)}, {self.rg(Bf[j][4],2)}, {d}")
            return out
        xu = []
        for u, (tt, j) in enumerate(units):
            for h in range(2):
                x = self.XRS[j] + 2 * tt + h if tt < 2 else self.XRS[2] + h
                xu += [f"v_lshlrev_b32 {vr(AB+4*u+2*h)}, 16, {vr(x)}", f"v_and_b32 {vr(AB+1+4*u+2*h)}, 0xffff0000, {vr(x)}"]
        a("s_waitcnt vmcnt(14)")
        weave(bfrags(BU, X2O), xu, 2)
        pl = lambda k, i, e: f"v_add_f32 {vr(M+4*i+e)}, {vr(M+4*i+e)}, {vr(X[k][i]+e)}"
        ds = L[0] + L[1] + L[2] + [f"s_not_b64 exec, {sr(MP1,2)}\n" + "\n".join(L8) + "\ns_mov_b64 exec, -1", f"ds_read_b128 {vr(LO,4)}, {vr(LO)} offset:512"]
        nis = [1] * 12 + [3, 1]
        gap = [[] for _ in range(25)]
        tot = [10]
        for g in range(25): tot.append(tot[-1] + (nis[g] if g < 14 else 0))
        A0 = [pl(0, i, e) for i in range(4) for e in range(4)]
        A1 = [pl(1, i, e) for i in range(4) for e in range(4)]
        ib = inbox(2)
        for g, m in enumerate(fg(self.WD, BU)):
            if g % 5 == 0: a(f"s_waitcnt lgkmcnt({min(15, tot[g] - 2 * (g // 5 + 1))})")
            a(m)
            if g == 8: a(f"s_waitcnt lgkmcnt({tot[g] - 14})")
            if g == 16: a(f"s_waitcnt lgkmcnt({tot[g] - 18})")
            if g < 14: a(ds[g])
            if 8 <= g < 14: a(A0.pop(0))
            elif g in (14, 18, 22): a(ib.pop(0))
            elif g >= 14:
                for _ in range(2): a(A0.pop(0) if A0 else A1.pop(0))
        assert not A0 and len(A1) % 2 == 0
        n1 = 16 - len(A1)
        for e in range(n1, 16, 2): a(f"v_pk_add_f32 {p(M+e)}, {p(M+e)}, {p(X[1][e//4]+e%4)}")
        a("s_waitcnt lgkmcnt(0)")
        for x in adds(X, 2, range(4)): a(x)
        a(f"v_add_f32 {vr(LO)}, {vr(LO)}, {vr(LO+1)}\nv_add_f32 {vr(LO+2)}, {vr(LO+2)}, {vr(LO+3)}")
        for kk in range(3):
            for x in adds(X, kk, [4]): a(x)
        a(f"s_mov_b32 {sr(T+2)}, 0\nv_add_f32 {vr(LO)}, {vr(LO)}, {vr(LO+2)}")
        self.stamp("own")
        w, PU = 40, 128
        mo = MK + 3

        def chk(k):
            r = [IN[k][q] + i for q in range(3) for i in range(4)]
            c = [f"v_max3_u32 v46, {vr(r[0])}, {vr(r[1])}, {vr(r[2])}", f"v_max3_u32 v47, {vr(r[3])}, {vr(r[4])}, {vr(r[5])}"]
            for q in range(3): c.append(f"v_max3_u32 v{46+(q&1)}, v{46+(q&1)}, {vr(r[6+2*q])}, {vr(r[7+2*q])}")
            return c + ["v_max_u32 v46, v46, v47", "v_cmp_eq_u32 vcc, -1, v46"]

        def take(k, with_chk):
            r = [IN[k][q] + i for q in range(3) for i in range(4)]
            lp_, mp = r[10], r[11]
            wt = [f"v_min_f32 {vr(w)}, {vr(mo)}, {vr(mp)}", f"v_sub_f32 {vr(w+2)}, {vr(w)}, {vr(mp)}", f"v_sub_f32 {vr(w)}, {vr(w)}, {vr(mo)}",
                  f"v_exp_f32 {vr(w+2)}, {vr(w+2)}", f"v_exp_f32 {vr(w)}, {vr(w)}", f"v_mul_f32 {vr(w+4)}, {vr(w+2)}, {vr(lp_)}",
                  f"v_fmac_f32 {vr(w+4)}, {vr(w)}, {vr(LO)}", f"v_rcp_f32 {vr(w+4)}, {vr(w+4)}", f"v_mul_f32 {vr(w)}, {vr(w)}, {vr(w+4)}",
                  f"v_mul_f32 {vr(w+2)}, {vr(w+2)}, {vr(w+4)}"]
            un = []
            for i in range(10): un += [f"v_lshlrev_b32 {vr(PU+2*i)}, 16, {vr(r[i])}", f"v_and_b32 {vr(PU+1+2*i)}, 0xffff0000, {vr(r[i])}"]
            c = chk(k) if with_chk else []
            for i in range(10):
                a(wt[i])
                if c: a(c.pop(0))
                a(un.pop(0)); a(un.pop(0))
        a("s_waitcnt vmcnt(6)")
        take(0, True)
        a("s_cmp_eq_u64 vcc, 0\ns_cbranch_scc0 L_poll2")
        a.label("L_got")
        self.stamp("got")
        for i in range(10): a(f"v_pk_mul_f32 {p(M+2*i)}, {p(M+2*i)}, {p(w)} op_sel_hi:[1,0]")
        for i in range(10): a(f"v_pk_fma_f32 {p(M+2*i)}, {p(PU+2*i)}, {p(w+2)}, {p(M+2*i)} op_sel_hi:[1,0,1]")
        for i in range(10):
            a(f"v_cvt_pk_bf16_f32 {vr(UP+i)}, {vr(M+2*i)}, {vr(M+2*i+1)}")
            if i == 3: a(f"ds_write_b128 {vr(VXW)}, {vr(UP,4)}")
            if i == 7: a(f"ds_write_b128 {vr(VXW)}, {vr(UP+4,4)} offset:1024")
        a(f"""s_not_b64 exec, {sr(MP1,2)}
        ds_write_b64 {vr(VXR)}, {vr(UP+8,2)}
        s_mov_b64 exec, -1
        s_waitcnt lgkmcnt(0)
        s_barrier""")
        self.stamp("B3")
        for x in bfrags(BO, 0): a(x)
        for g, m in enumerate(fg(self.WO, BO)):
            if g % 5 == 0: a(f"s_waitcnt lgkmcnt({8 - 2 * (g // 5)})" + ("\ns_nop 0" if g == 20 else ""))
            a(m)
        self.stamp("gem")
        a("s_nop 3")
        for j in range(2):
            for tt in range(2):
                u = 2 * tt + j
                for h in range(2): a(f"v_cvt_pk_bf16_f32 {vr(16+4*j+2*tt+h)}, {vr(AB+4*u+2*h)}, {vr(AB+4*u+2*h+1)}")
            a(f"buffer_store_dwordx4 {vr(16+4*j,4)}, {vr(VO+j)}, {sr(S_OUT,4)}, {sr(self.E_COL)} offen {o.get('ofl', '')}")
        a(f"s_cmp_ge_u32 {sr(S_W)}, 2\ns_cbranch_scc1 L_fin")
        for h in range(2): a(f"v_cvt_pk_bf16_f32 {vr(24+h)}, {vr(AB+16+2*h)}, {vr(AB+16+2*h+1)}")
        a(f"buffer_store_dwordx2 v[24:25], {vr(self.VO8)}, {sr(S_OUT,4)}, 0 offen offset:256 {o.get('ofl', '')}")
        self.stamp("fin")

        def poll2():
            a.label("L_poll2")
            for k in (1, 2, 0):
                for x in inbox((k + 2) % 3): a(x)
                a("s_waitcnt vmcnt(6)")
                for x in chk(k): a(x)
                a(f"s_add_u32 {sr(T+2)}, {sr(T+2)}, 1\ns_cmp_eq_u64 vcc, 0\ns_cbranch_scc1 L_take{k}")
            a(f"s_cmp_lt_u32 {sr(T+2)}, 0x10000\ns_cbranch_scc1 L_poll2")
            for k in (0, 1, 2):
                a.label(f"L_take{k}")
                take(k, False)
                a("s_branch L_got")
            if o.get("xm", 0) and o.get("l2s", 1):
                a.label("L_far")
                send("sc1")
                a("s_branch L_sent")
        self.poll2 = poll2

    def fallback(self):
        a = self.a
        T = S_T
        MXR = 208
        a.label("L_fallback")
        a(f"""s_waitcnt vmcnt(0) lgkmcnt(0)
        s_barrier
        s_mov_b32 {sr(S_REDO)}, 1
        s_mov_b32 {sr(S_UG)}, 0x40000000
        {self.xa_srd()}
        s_mov_b32 {sr(S_TOFF)}, {sr(S_LB)}
        s_cmp_eq_u32 {sr(S_DUM)}, 4
        s_cselect_b32 {sr(S_CNT)}, 15, 16""")
        for i in range(4): a(f"v_mov_b32 {vr(MXR+i)}, 0xff800000")
        a.label("L_fb1")
        for g in self.tile_groups(0): a(g)
        a("s_waitcnt vmcnt(0)")
        for x in self.k_reads(0): a(x)
        a("s_waitcnt lgkmcnt(0)")
        for m in self.qk_mfmas(0, czero=True): a(m)
        a("s_nop 7")
        for qb in range(4):
            for i in range(0, 8, 2): a(f"v_max3_f32 {vr(MXR+qb)}, {vr(MXR+qb)}, {vr(self.S(0,qb,i))}, {vr(self.S(0,qb,i+1))}")
        a(f"s_sub_u32 {sr(S_CNT)}, {sr(S_CNT)}, 1\ns_cmp_lg_u32 {sr(S_CNT)}, 0\ns_cbranch_scc1 L_fb1")
        self.greduce([MXR + i for i in range(4)], MXR + 4, "v_max_f32")
        a(f"""v_and_b32 {vr(MXR+4)}, 15, v0
        v_lshlrev_b32 {vr(MXR+4)}, 4, {vr(MXR+4)}
        v_add_u32 {vr(MXR+4)}, {L_SP}, {vr(MXR+4)}
        s_lshl_b32 {sr(T)}, {sr(S_W)}, 2
        s_xor_b32 {sr(T+1)}, {sr(self.NB)}, 1
        v_lshl_add_u32 {vr(MXR+5)}, {sr(self.NB)}, 8, {vr(MXR+4)}
        v_lshl_add_u32 {vr(MXR+4)}, {sr(T+1)}, 8, {vr(MXR+4)}
        v_add_u32 {vr(MXR+6)}, {sr(T)}, {vr(MXR+4)}
        v_add_u32 {vr(MXR+7)}, {sr(T)}, {vr(MXR+5)}""")
        for qb in range(4): a(f"ds_write_b32 {vr(MXR+6+(qb&1))}, {vr(MXR+qb)} offset:{512*(qb>>1)}")
        a("s_waitcnt lgkmcnt(0)\ns_barrier")
        for qb in range(4): a(f"ds_read_b128 {vr(16+4*qb,4)}, {vr(MXR+4+(qb&1))} offset:{512*(qb>>1)}")
        a(f"s_mov_b32 {sr(S_TOFF)}, {sr(S_LB)}")
        for g in self.tile_groups(0) + self.tile_groups(1) + ([] if self.o.get("gs", 0) else self.tile_groups(2)[:8]): a(g)
        a("s_waitcnt lgkmcnt(0)")
        for qb in range(4):
            r = 16 + 4 * qb
            a(f"v_max_f32 {vr(r)}, {vr(r)}, {vr(r+1)}\nv_max3_f32 {vr(r)}, {vr(r)}, {vr(r+2)}, {vr(r+3)}")
            a(f"v_sub_f32 {vr(self.MK+qb)}, 0, {vr(r)}")
        a("s_waitcnt vmcnt(0)")
        for x in self.k_reads(0, V_V): a(x)
        self.loop_init(False)
        if self.o.get("gs", 0): self.loop_init(True)
        a("s_branch L_go")


if __name__ == "__main__":
    opt = json.loads(sys.argv[2]) if len(sys.argv) > 2 else {}
    g = G(opt)
    txt = g.build()
    if opt.get("align", 1):
        from align import align
        for n2 in (1, 2):
            try:
                txt, st = align(txt, chains=[(1, "L_tr")] * 3 + [(1, "L_tr2"), (n2, "L_tr2")] if opt.get("touch", 1) else None)
                break
            except AssertionError as e:
                if n2 == 2: raise
        print("align: promoted %d, padded %d, left %d" % st)
    txt = txt.replace("\n", "\n; stamps " + json.dumps(g.stnames) + "\n; map %d rot %d\n" % (g.mp, opt.get("rsh", 14) if opt.get("rot") == 1 else 0), 1)
    open(sys.argv[1], "w").write(txt)
```

```python
import sys, json, math
from common import Asm, vr, ar, sr, kernel_header, kernel_desc
from lay import *

NAME = "standalone__conformer_family_branchformer__speech_kernel"
NH = 2
NWG = 252 + NH
CHAINS = (3, 3)
RING = 4
LDS_RING = RING * TILE
LDS_TOTAL = 163840
SLOT = 4 * TILE
L_WU, L_WQ, L_WK = 0, 41472, 82944
L_XX, L_XR = 126976, 143360
L_QD = 18432
L_XS = L_XX + L_QD
L_MX = 81920
L_PC = LDS_TOTAL - 256
L_DUMP = 123904
L_SP = 147456

S_X, S_WS, S_XA, S_DB, S_W1, S_W2, S_OUT, S_DW = 8, 12, 16, 20, 24, 28, 32, 36
S_W, S_B, S_H, S_QB, S_TOFF, S_CNT, S_DUM, S_LB, S_TOWN, S_TSND, S_VAL, S_REDO = range(40, 52)
S_UG, S_CL = 25, 26
S_PH, S_XC, S_SX = 6, 74, 73
RBASE, RSTR = 12 << 20, 5 << 19
S_RO = 75
S_OS, S_OR = 28, 29
S_N, S_FB = 98, 99
S_INC = 24
S_T = 52
S_ST = 76

V_KA, V_VA, V_VR, V_DMA, V_L, V_VB = 1, 3, 5, 6, 10, 14
V_S, V_CI, V_P, V_K, V_V = 16, 80, 96, 128, 164
V_HI = 200
V_X = 208
A_O, A_Q, A_F = 0, 144, 216

LOG2E = 1.4426950408889634
import struct
def f32(x): return "0x%08x" % struct.unpack("<I", struct.pack("<f", x))[0]


class BAsm(Asm):
    def __init__(self):
        super().__init__()
        self.bg, self.every, self.cnt, self.skip = [], 0, 0, 0

    def __call__(self, s):
        for l in s.split("\n"):
            l = l.strip()
            if not l: continue
            self.lines.append("    " + l)
            if self.bg and self.every and not l.startswith(("s_nop", "v_mov_b32", "v_exp", "v_rcp", "v_rsq", "v_sqrt", "s_add_u32 m0")):
                self.cnt += 1
                if self.cnt >= self.every:
                    self.cnt = 0
                    self.pop()

    def pop(self):
        for x in self.bg.pop(0).split("\n"): self.lines.append("    " + x)

    def flush(self):
        while self.bg: self.pop()
        self.every = 0


class G:
    def __init__(self, opt):
        self.o = opt
        self.a = BAsm()
        self.nst = 0
        self.fill = []

    def stamp(self, name):
        if self.o.get("stamps"):
            if name in self.o.get("skipst", []): return
            if "only" in self.o and name not in self.o["only"]: return
            if self.nst >= 11: return
            self.a(f"{'s_memtime' if self.o.get('cyc') else 's_memrealtime'} {sr(S_ST + 2*self.nst, 2)}")
            self.stnames.append(name)
            self.nst += 1

    def srd(self, dst, lo, hi, n):
        if dst == S_WS and self.o.get("wsoff"):
            self.a(f"s_add_u32 {sr(dst)}, {sr(lo)}, {self.o['wsoff']}\ns_addc_u32 {sr(dst+1)}, {sr(hi)}, 0\ns_mov_b32 {sr(dst+2)}, {n}\ns_mov_b32 {sr(dst+3)}, 0x20000")
            return
        self.a(f"s_mov_b32 {sr(dst)}, {sr(lo)}\ns_mov_b32 {sr(dst+1)}, {sr(hi)}\ns_mov_b32 {sr(dst+2)}, {n}\ns_mov_b32 {sr(dst+3)}, 0x20000")

    def greduce(self, regs, tmp, op="v_add_f32"):
        a = self.a
        for sw in ("32", "16"):
            for i, r in enumerate(regs): a(f"v_mov_b32 {vr(tmp+i)}, {vr(r)}")
            if len(regs) < 3: a("s_nop 1" if len(regs) == 1 else "s_nop 0")
            for i, r in enumerate(regs): a(f"v_permlane{sw}_swap_b32 {vr(r)}, {vr(tmp+i)}")
            for i, r in enumerate(regs): a(f"{op} {vr(r)}, {vr(r)}, {vr(tmp+i)}")

    def treduce(self, r, op="v_add_f32"):
        a = self.a
        a(f"v_permlane32_swap_b32 {vr(r)}, {vr(r+2)}\nv_permlane32_swap_b32 {vr(r+1)}, {vr(r+3)}")
        a(f"{op} {vr(r)}, {vr(r)}, {vr(r+2)}\n{op} {vr(r+1)}, {vr(r+1)}, {vr(r+3)}\ns_nop 1")
        a(f"v_permlane16_swap_b32 {vr(r)}, {vr(r+1)}\n{op} {vr(r)}, {vr(r)}, {vr(r+1)}")

    def rbf(self, r):
        self.a(f"v_cvt_pk_bf16_f32 {vr(r)}, {vr(r)}, {vr(r)}\nv_lshlrev_b32 {vr(r)}, 16, {vr(r)}")

    def ln_tail(self, F, out, t, mimic):
        a = self.a
        p = lambda r: vr(r, 2)
        self.greduce([t, t + 1], t + 2)
        a(f"v_mul_f32 {vr(t+2)}, {f32(1.0/144)}, {vr(t)}")
        a(f"v_mul_f32 {vr(t+3)}, {vr(t+2)}, {vr(t+2)}")
        a(f"v_mov_b32 {vr(t+4)}, {f32(1.0/144)}")
        a(f"v_fma_f32 {vr(t)}, {vr(t+1)}, {vr(t+4)}, -{vr(t+3)}")
        a(f"v_max_f32 {vr(t)}, 0, {vr(t)}")
        if mimic:
            self.rbf(t)
            self.rbf(t + 2)
            a(f"v_add_f32 {vr(t)}, {f32(1e-5)}, {vr(t)}")
            self.rbf(t)
            a(f"v_sqrt_f32 {vr(t)}, {vr(t)}\ns_nop 0")
            self.rbf(t)
            a(f"v_rcp_f32 {vr(t)}, {vr(t)}\ns_nop 0")
        else:
            a(f"v_add_f32 {vr(t)}, {f32(1e-5)}, {vr(t)}")
            a(f"v_rsq_f32 {vr(t)}, {vr(t)}\ns_nop 0")
        a(f"v_mul_f32 {vr(t+2)}, -{vr(t+2)}, {vr(t)}")
        for i in range(18):
            a(f"v_pk_fma_f32 {p(F+2*i)}, {p(F+2*i)}, {p(t)}, {p(t+2)} op_sel_hi:[1,0,0]")
        for i in range(18):
            a(f"v_cvt_pk_bf16_f32 {vr(out+i)}, {vr(F+2*i)}, {vr(F+2*i+1)}")

    def ln_packed(self, X, F, out, t):
        a = self.a
        a(f"v_mov_b32 {vr(t+6)}, 0x3f803f80")
        for k in range(4): a(f"v_mov_b32 {vr(t+k)}, 0")
        for i in range(18):
            a(f"v_dot2_f32_bf16 {vr(t+2*(i&1))}, {vr(X+i)}, {vr(t+6)}, {vr(t+2*(i&1))}")
            a(f"v_dot2_f32_bf16 {vr(t+1+2*(i&1))}, {vr(X+i)}, {vr(X+i)}, {vr(t+1+2*(i&1))}")
        for i in range(2):
            a(f"v_lshlrev_b32 {vr(F+2*i)}, 16, {vr(X+i)}\nv_and_b32 {vr(F+2*i+1)}, 0xffff0000, {vr(X+i)}")
        a(f"v_pk_add_f32 {vr(t,2)}, {vr(t,2)}, {vr(t+2,2)}")
        un = []
        for i in range(2, 18):
            un.append(f"v_lshlrev_b32 {vr(F+2*i)}, 16, {vr(X+i)}\nv_and_b32 {vr(F+2*i+1)}, 0xffff0000, {vr(X+i)}")
        sv = (a.bg, a.every, a.cnt, a.skip)
        n0 = len(a.lines)
        a.bg, a.every = [], 0
        self.ln_tail(F, out, t, True)
        tail = a.lines[n0:]
        del a.lines[n0:]
        a.bg, a.every, a.cnt, a.skip = sv
        k = next(i for i, l in enumerate(tail) if "v_pk_fma" in l)
        for i, l in enumerate(tail[:k]):
            if "s_nop" in l and un: continue_nop = True
            a(l)
            if un and not l.strip().startswith("s_nop"): a(un.pop(0))
        while un: a(un.pop(0))
        for l in tail[k:]: a(l)

    def ln_f32(self, F, out, t):
        a = self.a
        p = lambda r: vr(r, 2)
        a(f"v_pk_add_f32 {p(t)}, {p(F)}, {p(F+2)}\nv_pk_add_f32 {p(t+2)}, {p(F+4)}, {p(F+6)}")
        a(f"v_pk_mul_f32 {p(t+4)}, {p(F)}, {p(F)}\nv_pk_mul_f32 {p(t+6)}, {p(F+2)}, {p(F+2)}")
        for i in range(2, 18):
            if i >= 4: a(f"v_pk_add_f32 {p(t+2*(i&1))}, {p(t+2*(i&1))}, {p(F+2*i)}")
            a(f"v_pk_fma_f32 {p(t+4+2*(i&1))}, {p(F+2*i)}, {p(F+2*i)}, {p(t+4+2*(i&1))}")
        a(f"v_pk_add_f32 {p(t)}, {p(t)}, {p(t+2)}\nv_pk_add_f32 {p(t+4)}, {p(t+4)}, {p(t+6)}")
        a(f"v_add_f32 {vr(t)}, {vr(t)}, {vr(t+1)}\nv_add_f32 {vr(t+1)}, {vr(t+4)}, {vr(t+5)}")
        self.ln_tail(F, out, t, False)

    def gemm_u(self, AF, rf, Bs, ACC, afr, bfr, post, vm_items=(), other=(), lead=7, vm0=0, vmsp=4, at={}, lastk=0):
        a = self.a
        units = [(0, j) for j in range(4)] + [(1, j) for j in range(4)] + [(2, 0)]
        seq, dl = [], {}
        bs = lambda j, o_, n: self.rg((Bs[j][0], Bs[j][1] + o_), n)
        rem = lambda u: (f"v_mfma_f32_16x16x16_bf16 {vr(ACC+4*u,4)}, {rf(AF+18*units[u][0]+16,2)}, {bs(units[u][1],16,2)}, {vr(ACC+4*u,4)}", u)
        A = [afr(t) for t in range(3)]
        Bf = [bfr(j) for j in range(4)]

        def use(t, j, s, k):
            for x in (A[t][2 * s:2 * s + 2] if s < 4 else A[t][8:]) + ([Bf[j][s]] if Bf[j] else []): dl.setdefault(x, k)
        for g in range(4):
            for s in range(4):
                for u in range(3 * g, 3 * g + 3) if g < 3 else []:
                    t, j = units[u]
                    d = vr(ACC + 4 * u, 4)
                    use(t, j, s, len(seq))
                    seq.append((f"v_mfma_f32_16x16x32_bf16 {d}, {rf(AF+18*t+4*s,4)}, {bs(j,4*s,4)}, {'0' if s == 0 else d}", None))
                if s == 0 and g > 0:
                    for u in range(3 * g - 3, 3 * g):
                        use(units[u][0], units[u][1], 4, len(seq)); seq.append(rem(u))
        last = seq[-3:]; seq = seq[:-3]
        ds = sorted(dl.items(), key=lambda e: e[1]) + [(x, 99) for x in other]
        vm_items = list(vm_items)
        lastvm = vm0 - vmsp
        order, ready, q, done = [], [], [], 0

        def issue():
            x, k_ = ds.pop(0); a(x); order.append(k_)

        def wait(k):
            nonlocal done
            idx = [i_ for i_, k_ in enumerate(order) if k_ <= k]
            if idx and max(idx) + 1 > done:
                a(f"s_waitcnt lgkmcnt({min(15, len(order) - 1 - max(idx))})"); done = max(idx) + 1
        while ds and ds[0][1] < 6: issue()
        for k, (m, fin) in enumerate(seq):
            assert not ds or ds[0][1] > k, (k, ds[0])
            wait(k)
            a(m)
            for u_, kk in list(ready):
                if k - kk >= 4: q += post(u_); ready.remove((u_, kk))
            if fin is not None: ready.append((fin, k))
            if k in at: at[k]()
            due = sum(1 for x, k_ in ds if k_ <= k + lead)
            if due == 0 and vm_items and k >= lastvm + vmsp and (len(vm_items) > 1 or k >= lastk):
                a(vm_items.pop(0)); lastvm = k; continue
            cap = 2
            for _ in range(min(due, 3)): issue(); cap -= 1
            if cap == 2:
                if q and q[0].startswith("ds_"): a(q.pop(0)); order.append(99); cap -= 1
                elif ds: issue(); cap -= 1
            while cap > 0 and q and not q[0].startswith("ds_"):
                a(q.pop(0)); cap -= 1
        assert not ready
        while ds: issue()
        wait(98)
        for x in vm_items: a(x)
        for x in q[:4]: a(x)
        a(f"s_nop {max(0, 4 - len(q[:4]))}")
        for m, _ in last: a(m)
        for x in q[4:]: a(x)
        a(f"s_nop {max(0, 6 - len(q[4:]))}")
        for u in range(6, 9):
            for x in post(u): a(x)

    def gemm(self, reads, B, ACC, AF, late=(), at={}, per=2):
        a = self.a
        buf = lambda T: 18 * (T % 6)
        ng = 3 * (4 * per + 1)

        def grp(g):
            r = [reads(T, buf(T)) for T in range(3 * g, 3 * g + 3)]
            return [r[t][per * s + u] for s in range(4) for t in range(3) for u in range(per)] + [r[t][4 * per] for t in range(3)]
        rem = lambda T: f"v_mfma_f32_16x16x16_bf16 {vr(ACC+4*T,4)}, {ar(buf(T)+16,2)}, {vr(B+16,2)}, {vr(ACC+4*T,4)}"
        pend = grp(0) + grp(1) + grp(2) + list(late)
        issued = k = 0

        def issue(n):
            nonlocal issued
            for _ in range(n):
                if issued < len(pend): a(pend[issued]); issued += 1

        def mf(x):
            nonlocal k
            a(x); issue(per if per == 2 else (2 if k % 4 == 0 else 1))
            if k in at: a(at[k])
            k += 1
        issue(self.o.get('look', 12) if per == 2 else self.o.get('look1', 8))
        for g in range(3):
            for s in range(4):
                need = ng * g + 3 * per * (s + 1)
                a(f"s_waitcnt lgkmcnt({min(15, issued - need)})")
                for T in range(3 * g, 3 * g + 3):
                    d = vr(ACC + 4 * T, 4)
                    mf(f"v_mfma_f32_16x16x32_bf16 {d}, {ar(buf(T)+4*s,4)}, {vr(B+4*s,4)}, {'0' if s == 0 else d}")
                if s == 0 and g > 0:
                    for T in range(3 * g - 3, 3 * g): mf(rem(T))
                if g == 1 and s == 0: assert issued <= 2 * ng + 6 * per, "group 2 overwrites group 0 too early"
        issue(99)
        a(f"s_waitcnt lgkmcnt({len(late)})\ns_nop 2")
        for T in range(6, 9): a(rem(T))
        a("s_nop 7")

    def tr_reads(self, ad, rf=ar):
        def f(T, dst):
            out = []
            for s in range(4):
                for u in range(2):
                    out.append(f"ds_read_b64_tr_b16 {rf(dst+4*s+2*u,2)}, {vr(ad+u)} offset:{9216*s + 32*T}")
            out.append(f"ds_read_b64_tr_b16 {rf(dst+16,2)}, {vr(ad+2)} offset:{36864 + 32*T}")
            return out
        return f

    def row_reads(self, ad, sw=None):
        def f(T, dst):
            r = ad if sw is None or T == 8 else sw[T & 1]
            out = []
            for s in range(4):
                for u in range(2):
                    out.append(f"ds_read_b64 {ar(dst+4*s+2*u,2)}, {vr(r)} offset:{4864*T + 64*s + 32*u}")
            out.append(f"ds_read_b64 {ar(dst+16,2)}, {vr(r)} offset:{4864*T + 256}")
            return out
        return f

    def dma_rows(self, jobs, cpr, rstride, vo, vc, n_first, first_waves, lab):
        a = self.a
        mul = {18: 3641, 19: 3450}[cpr]
        dr, dc = 256 // cpr, 256 % cpr
        a(f"s_lshl_b32 {sr(S_T)}, {sr(S_W)}, 6")
        a(f"v_add_u32 {vr(vc)}, {sr(S_T)}, v0")
        a(f"v_mul_u32_u24 {vr(vo)}, {mul}, {vr(vc)}")
        a(f"v_lshrrev_b32 {vr(vo)}, 16, {vr(vo)}")
        a(f"v_mul_u32_u24 {vr(vc+1)}, {cpr}, {vr(vo)}")
        a(f"v_sub_u32 {vr(vc)}, {vr(vc)}, {vr(vc+1)}")
        a(f"v_mul_u32_u24 {vr(vo)}, {rstride}, {vr(vo)}")
        a(f"v_lshl_add_u32 {vr(vo)}, {vr(vc)}, 4, {vr(vo)}")
        a(f"s_lshl_b32 {sr(S_T)}, {sr(S_W)}, 10")
        a(f"v_mov_b32 {vr(vc+1)}, {rstride - 16*cpr}")
        for k in range(n_first):
            if k == n_first - 1:
                a(f"s_cmp_ge_u32 {sr(S_W)}, {first_waves}\ns_cbranch_scc1 {lab}")
            for srd, so, lb in jobs:
                a(f"s_add_u32 m0, {sr(S_T)}, {lb + 4096*k}")
                a("s_nop 0")
                a(f"buffer_load_dwordx4 {vr(vo)}, {sr(srd,4)}, {so} offen lds")
            if k < n_first - 1:
                a(f"v_add_u32 {vr(vc)}, {dc}, {vr(vc)}")
                a(f"v_cmp_le_u32 vcc, {cpr}, {vr(vc)}")
                a(f"v_add_u32 {vr(vo)}, {dr*rstride + 16*dc}, {vr(vo)}")
                a(f"v_subrev_u32 {vr(vc+2)}, {cpr}, {vr(vc)}")
                a(f"v_cndmask_b32 {vr(vc)}, {vr(vc)}, {vr(vc+2)}, vcc")
                a(f"v_cndmask_b32 {vr(vc+2)}, 0, {vr(vc+1)}, vcc")
                a(f"v_add_u32 {vr(vo)}, {vr(vo)}, {vr(vc+2)}")
        a.label(lab)

    def voff_table(self, dst, cpr, rstride, vc, step=256):
        a = self.a
        mul = {18: 29128, 19: 27595}[cpr]
        n = len(dst)
        a(f"s_mov_b32 {sr(S_T)}, {rstride - 16*cpr}")
        a(f"v_mul_u32_u24 {vr(dst[0])}, {mul}, {vr(vc)}")
        for k in range(1, n): a(f"v_add_u32 {vr(dst[k])}, {(step*k % cpr)*mul}, {vr(dst[0])}")
        for k in range(n): a(f"v_lshrrev_b32 {vr(dst[k])}, 19, {vr(dst[k])}")
        for k in range(n): a(f"v_mad_i32_i24 {vr(dst[k])}, {vr(dst[k])}, {sr(S_T)}, {vr(vc+1)}")

    def dma_lin(self, srd, soff, lb, v16, lab):
        a = self.a
        a(f"s_lshl_b32 {sr(S_T)}, {sr(S_W)}, 10")
        for k in range(11):
            if k == 10:
                a(f"s_cmp_ge_u32 {sr(S_W)}, 1\ns_cbranch_scc1 {lab}")
            a(f"s_add_u32 m0, {sr(S_T)}, {lb + 4096*k}")
            a(f"s_add_u32 {sr(S_T+1)}, {sr(S_T)}, {soff + 4096*k}")
            a(f"buffer_load_dwordx4 {vr(v16)}, {sr(srd,4)}, {sr(S_T+1)} offen lds")
        a.label(lab)

    def tr_addr(self, ad, base, swapped, t):
        a = self.a
        a(f"v_lshrrev_b32 {vr(t)}, 2, v0")
        a(f"v_mul_u32_u24 {vr(t)}, 288, {vr(t)}")
        a(f"v_and_b32 {vr(t+1)}, 3, v0")
        a(f"v_lshl_add_u32 {vr(t)}, {vr(t+1)}, 3, {vr(t)}")
        a(f"v_add_u32 {vr(ad+2)}, {base}, {vr(t)}")
        if swapped:
            a(f"v_bfe_u32 {vr(t)}, v0, 4, 1")
            a(f"v_mul_u32_u24 {vr(t)}, {16*288}, {vr(t)}")
            a(f"v_add_u32 {vr(ad)}, {vr(ad+2)}, {vr(t)}")
            a(f"v_sub_u32 {vr(ad+1)}, {vr(ad+2)}, {vr(t)}")
            a(f"v_add_u32 {vr(ad+1)}, {16*288}, {vr(ad+1)}")
        else:
            a(f"v_mov_b32 {vr(ad)}, {vr(ad+2)}")
            a(f"v_add_u32 {vr(ad+1)}, {16*288}, {vr(ad+2)}")

    def row_addr(self, ad, base, t):
        a = self.a
        a(f"v_and_b32 {vr(t)}, 15, v0")
        a(f"v_mul_u32_u24 {vr(t)}, 304, {vr(t)}")
        a(f"v_lshrrev_b32 {vr(t+1)}, 4, v0")
        a(f"v_lshl_add_u32 {vr(t)}, {vr(t+1)}, 3, {vr(t)}")
        a(f"v_add_u32 {vr(ad)}, {base}, {vr(t)}")

    def store_block(self, src, v16, v8, srd, soff, soff2, flags=""):
        a = self.a
        for s in range(4):
            a(f"buffer_store_dwordx4 {vr(src+4*s,4)}, {vr(v16)}, {sr(srd,4)}, {sr(soff)} offen offset:{1024*s} {flags}")
        a(f"buffer_store_dwordx2 {vr(src+16,2)}, {vr(v8)}, {sr(srd,4)}, {sr(soff2)} offen {flags}")

    def entry(self):
        a = self.a
        xm2 = self.o.get("xm", 0) == 2
        kernel_header(a, NAME)
        a(f"s_load_dwordx16 s[56:71], s[0:1], 0")
        a(f"s_load_dwordx8 s[72:79], s[0:1], 64")
        a(f"s_getpc_b64 {sr(S_W1,2)}")
        a.label("L_pf")
        a(f"""s_mov_b32 {sr(S_W1+2)}, L_dummy-L_pf
        s_mov_b32 {sr(S_W1+3)}, 0x20000
        v_lshlrev_b32 v2, 4, v0
        buffer_load_dwordx4 v[252:255], v2, {sr(S_W1,4)}, 0 offen
        s_lshl_b32 s3, s2, 9
        s_and_b32 s3, s3, 0x7000
        buffer_load_dwordx4 v[252:255], v2, {sr(S_W1,4)}, s3 offen
        v_lshrrev_b32 v1, 6, v0
        {"s_bfe_u32 s6, s2, 0x10003" if xm2 else f"s_sub_u32 s2, s2, {NH}"}
        v_readfirstlane_b32 {sr(S_W)}, v1
        s_memrealtime s[4:5]""")
        if xm2:
            a(f"""s_and_b32 s7, s2, 7
            s_lshl1_add_u32 s7, s7, s6
            s_mov_b32 s6, s2
            s_andn2_b32 s2, s2, 15
            s_or_b32 s2, s2, s7""")
        a(f"""s_cmp_ge_u32 s2, {NWG - NH}
        s_cbranch_scc1 L_wfuse""")
        if self.o.get("late"):
            m_, v_, n_ = self.o["late"]
            a(f"""s_and_b32 s3, s2, {m_}
            s_cmp_lg_u32 s3, {v_}
            s_cbranch_scc1 L_nl
            s_memrealtime s[4:5]
            s_waitcnt lgkmcnt(0)
            s_add_u32 s6, s4, {n_}
            L_lt:
            s_memrealtime s[4:5]
            s_waitcnt lgkmcnt(0)
            s_sub_u32 s7, s6, s4
            s_cmp_gt_i32 s7, 0
            s_cbranch_scc1 L_lt
            L_nl:""")
        if self.o.get("stamps"):
            a("s_memrealtime s[100:101]" if not self.o.get("cyc") else "s_memtime s[100:101]")
        self.mp = 2

    def vm_since(self, mark):
        return sum(1 for l in self.a.lines[mark:] if l.strip().startswith("buffer_"))

    def phase_a(self):
        a, o = self.a, self.o
        XR, XF, XA, ACC, G_, PK = 16, 34, 146, 110, 16, 164
        B4, XD = 16, 88
        VS, VSW, VR4, MXA, MXR, L8, TRU, TRQ, TRQ8, RK, TM = 200, 204, 208, 212, 213, 214, 215, 218, 221, 224, 228
        VK, VU = list(range(182, 193)), list(range(193, 200)) + list(range(104, 108))
        AQ1 = 200
        t0, t1, t2 = 250, 251, 227
        T = S_T
        WV, W10, UOFF, M1, PUB, M3 = 72, 70, 71, 69, 68, 65
        PH = 2
        FA0 = 250 * TILE if o.get("rot", 0) == 2 else WS_F
        if o.get("xm", 0) == 2: PH = S_PH
        if o.get("xm", 0) == 1:
            PH = S_PH
            a(f"""s_mov_b32 {sr(PH)}, s2
            s_bfe_u32 {sr(T)}, s2, 0x10003
            s_and_b32 {sr(T+1)}, s2, 7
            s_lshl1_add_u32 {sr(T)}, {sr(T+1)}, {sr(T)}
            s_and_b32 {sr(T+1)}, s2, 0xf0
            s_or_b32 {sr(T)}, {sr(T)}, {sr(T+1)}
            s_add_u32 s2, s2, 4
            s_cmp_lt_u32 {sr(T)}, 248
            s_cselect_b32 s2, {sr(T)}, s2""")
        a(f"""v_and_b32 v0, 63, v0
        s_bfe_u32 {sr(S_B)}, s2, 0x10001
        s_lshr_b32 {sr(S_QB)}, s2, 2
        s_lshr_b32 {sr(T)}, {sr(S_W)}, 1
        s_xor_b32 {sr(T)}, {sr(T)}, s2
        s_andn2_b32 {sr(T)}, 1, {sr(T)}
        s_lshl1_add_u32 {sr(T+3)}, {sr(S_QB)}, {sr(T)}
        s_mul_i32 {sr(T)}, {sr(S_B)}, {NT}
        s_add_u32 {sr(T+1)}, {sr(T+3)}, {sr(T)}
        s_and_b32 {sr(T+2)}, {sr(S_W)}, 1
        s_lshl1_add_u32 {sr(T+2)}, {sr(T+1)}, {sr(T+2)}
        v_lshlrev_b32 {vr(V_DMA)}, 4, v0
        s_mul_i32 {sr(T+1)}, {sr(T+2)}, {16*288}
        s_mul_i32 {sr(S_LB)}, {sr(S_W)}, {BLK}
        s_add_u32 m0, {sr(S_LB)}, {L_XS}
        s_mov_b32 {sr(S_X+2)}, 2304000
        s_mov_b32 {sr(S_X+3)}, {sr(S_W1+3)}
        s_add_u32 {sr(S_CNT)}, {sr(T+1)}, 4096
        s_waitcnt lgkmcnt(0)
        s_mov_b64 {sr(S_X,2)}, s[56:57]""")
        for k in range(4): a(f"buffer_load_dwordx4 {vr(V_DMA)}, {sr(S_X,4)}, {sr(T+1)} offen offset:{1024*k} lds")
        a(f"s_add_u32 m0, {sr(S_LB)}, {L_XS + 4096}\ns_mov_b32 exec_hi, 0\nbuffer_load_dwordx4 {vr(V_DMA)}, {sr(S_X,4)}, {sr(S_CNT)} offen lds\ns_mov_b32 exec_hi, -1")
        mx = len(a.lines)
        a(f"""s_add_u32 {sr(S_LB)}, {sr(S_LB)}, {L_XS}
        s_and_b32 {sr(S_H)}, s2, 1
        s_lshl1_add_u32 {sr(S_TOWN)}, {sr(S_QB)}, {sr(S_H)}
        s_cmp_lt_u32 {sr(S_TOWN)}, {NT}
        s_cselect_b32 {sr(S_VAL)}, 1, 0
        s_add_u32 {sr(S_TOWN)}, {sr(S_TOWN)}, {sr(T)}""")
        SQ, SK, SU = S_W2, S_W1, S_XA
        self.srd(SU, 66, 67, 82944)
        self.srd(SQ, 58, 59, 41472)
        self.srd(SK, 60, 61, 41472)
        a(f"s_lshr_b32 {sr(T)}, {sr(PH)}, 3\ns_lshl_b32 {sr(T)}, {sr(T)}, 12\ns_lshl_b32 {sr(W10)}, {sr(S_W)}, 10\ns_add_u32 {sr(T)}, {sr(T)}, {sr(W10)}")
        a(f"buffer_load_dwordx4 v[252:255], {vr(V_DMA)}, {sr(SU,4)}, {sr(T)} offen")
        for srd_, rot in ((SQ, 82), (SK, 41)):
            a(f"s_add_u32 {sr(T+1)}, {sr(T)}, {(128 - rot) * 1024}\ns_and_b32 {sr(T+1)}, {sr(T+1)}, {127 * 1024}")
            a(f"buffer_load_dwordx4 v[252:255], {vr(V_DMA)}, {sr(srd_,4)}, {sr(T+1)} offen")
        self.srd(S_OUT, 74, 75, 2304000)
        self.srd(S_DB, 76, 77, 256)
        if o.get("rot", 0):
            a(self.region(S_RO, 4))
            if o.get('rbad'): a(f"s_add_u32 {sr(S_RO)}, {sr(S_RO)}, {o['rbad']}")
            if o["rot"] == 1:
                a(f"""s_add_u32 {sr(S_WS)}, s78, {sr(S_RO)}
                s_addc_u32 {sr(S_WS+1)}, s79, 0
                s_mov_b32 {sr(S_WS+2)}, {self.wsn()}
                s_mov_b32 {sr(S_WS+3)}, 0x20000""")
            else: self.srd(S_WS, 78, 79, 256 << 20)
        else: self.srd(S_WS, 78, 79, WS_END)
        def tlb():
            a(f"v_lshlrev_b32 v249, 21, v0")
            for ch in o.get("tlbw", "wdo"): a(f"buffer_load_dword v252, v249, {sr(dict(w=S_WS, d=S_DB, o=S_OUT)[ch],4)}, 0 offen")
        if o.get("tlb", 0) == 1: tlb()
        if o.get("tlb", 3) == 3:
            if o.get("rot", 0) == 2:
                a(f"""s_bfe_u32 {sr(T)}, {sr(PH)}, 0x40003
                s_sub_u32 {sr(T+1)}, {sr(T)}, 9
                s_cselect_b32 {sr(T)}, {sr(T)}, {sr(T+1)}
                v_mov_b32 v249, 0
                s_lshl_b32 {sr(T+1)}, {sr(T)}, 21
                s_cmp_lt_u32 {sr(T)}, 6
                s_cbranch_scc0 L_tl1
                s_sub_u32 {sr(T+4)}, {sr(S_RO)}, {4 << 21}
                s_cmp_lt_u32 {sr(T)}, 4
                s_cselect_b32 {sr(T+4)}, {1 << 21}, {sr(T+4)}
                s_add_u32 {sr(T+1)}, {sr(T+1)}, {sr(T+4)}
                buffer_load_dword v252, v249, {sr(S_WS,4)}, {sr(T+1)} offen
                s_branch L_tl3
                L_tl1:
                s_cmp_eq_u32 {sr(T)}, 7
                s_cbranch_scc1 L_tl2
                s_and_b32 {sr(T)}, {sr(T)}, 8
                s_lshl_b32 {sr(T)}, {sr(T)}, 18
                buffer_load_dword v252, v249, {sr(S_OUT,4)}, {sr(T)} offen
                s_branch L_tl3""")
            else:
                a(f"""s_bfe_u32 {sr(T)}, {sr(PH)}, 0x30003
                s_lshl_b32 {sr(T)}, {sr(T)}, 21
                v_mov_b32 v249, 0
                s_cmp_lt_u32 {sr(T)}, {5 << 21}
                s_cbranch_scc0 L_tl1
                buffer_load_dword v252, v249, {sr(S_WS,4)}, {sr(T)} offen
                s_branch L_tl3
                L_tl1:
                s_sub_u32 {sr(T)}, {sr(T)}, {5 << 21}
                s_cmp_lt_u32 {sr(T)}, {2 << 21}
                s_cbranch_scc0 L_tl2
                buffer_load_dword v252, v249, {sr(S_OUT,4)}, {sr(T)} offen
                s_branch L_tl3""")
            a(f"""L_tl2:
            s_or_b32 s4, s4, 1
            v_lshlrev_b32 v249, 8, v0
            v_mov_b32 v250, s4
            s_lshl2_add_u32 s5, {sr(PH)}, {sr(S_W)}
            s_cmp_eq_u32 s5, {56 * 4}
            s_cbranch_scc0 L_tl4
            buffer_store_dword v250, v249, {sr(S_DB,4)}, 0 offen sc1
            s_branch L_tl3
            L_tl4:
            buffer_load_dword v252, v249, {sr(S_DB,4)}, 0 offen offset:128
            L_tl3:""")
            self.vm_adj = -3
        if o.get("tst") and o["tst"][0] == "beg": self.tstore()
        if o.get("tl4"):
            a(f"""s_mul_i32 {sr(T)}, {sr(S_TOWN)}, {TILE}
            v_lshlrev_b32 v249, 12, v0
            v_add_u32 v249, {sr(T)}, v249
            s_mov_b64 exec, 7
            buffer_load_dword v252, v249, {sr(S_WS,4)}, 0 offen
            s_mov_b64 exec, -1""")
        if o.get("stamps"): a(f"s_mov_b64 {sr(S_ST,2)}, s[100:101]"); self.stnames.append("start"); self.nst = 1
        self.stamp("xiss")
        a(f"""s_cmp_lt_u32 {sr(T+3)}, {NT}
        s_cselect_b32 {sr(WV)}, 1, 0
        s_mov_b32 {sr(WV+1)}, {sr(T+2)}
        s_mul_i32 {sr(UOFF)}, {sr(S_H)}, 288
        s_cmp_eq_u32 {sr(S_W)}, 0
        s_cselect_b32 {sr(M1)}, 0, {L_DUMP}
        s_cmp_lt_u32 {sr(S_W)}, 3
        s_cselect_b32 {sr(M3)}, {sr(W10)}, {L_DUMP}""")
        half = lambda g_: "s_mov_b32 exec_hi, 0\n" + g_ + "\ns_mov_b32 exec_hi, -1"
        gu = [f"s_add_u32 m0, {sr(W10 if k < 10 else M1)}, {L_WU + 4096*k}\ns_add_u32 {sr(S_CNT)}, {sr(UOFF)}, {4096*k + 288*(256*k//18)}\nbuffer_load_dwordx4 {vr(VU[k])}, {sr(SU,4)}, {sr(S_CNT)} offen lds" for k in range(11)]
        gu[10] = half(gu[10])
        gq = [f"s_add_u32 m0, {sr(W10 if k < 10 else M1)}, {L_WQ + 4096*k}\ns_add_u32 {sr(S_CNT)}, {sr(W10)}, {4096*k}\nbuffer_load_dwordx4 {vr(V_DMA)}, {sr(SQ,4)}, {sr(S_CNT)} offen lds" for k in range(11)]
        gq[10] = half(gq[10])
        gk = [f"s_add_u32 m0, {sr(W10 if k < 10 else M3)}, {L_WK + 4096*k}\ns_mov_b32 {sr(S_CNT)}, {4096*k - 16*(256*k//19)}\nbuffer_load_dwordx4 {vr(VK[k])}, {sr(SK,4)}, {sr(S_CNT)} offen lds" for k in range(11)]
        a(f"s_lshl_b32 {sr(T)}, {sr(S_W)}, 6\nv_add_u32 {vr(t0)}, {sr(T)}, v0\nv_lshlrev_b32 {vr(t1)}, 4, {vr(t0)}")
        self.voff_table(VU, 18, 576, t0)
        npre = o.get("npre", 3)
        a.bg, a.every, a.cnt = gu[:npre], o.get("evpre", 40), 0
        self.voff_table(VK, 19, 288, t0)
        xa0, xa1, xa2 = TM, TM + 1, TM + 2
        a(f"""v_and_b32 {vr(t0)}, 15, v0
        v_lshrrev_b32 {vr(t1)}, 5, v0
        v_lshlrev_b32 {vr(t1)}, 3, {vr(t1)}
        v_xor_b32 {vr(t1)}, {vr(t0)}, {vr(t1)}
        v_lshlrev_b32 {vr(t1)}, 4, {vr(t1)}
        v_lshrrev_b32 {vr(t2)}, 4, v0
        v_lshl_add_u32 {vr(V_KA)}, {vr(t2)}, 9, {vr(t1)}
        v_lshrrev_b32 {vr(t1)}, 3, {vr(t0)}
        v_lshlrev_b32 {vr(t1)}, 1, {vr(t1)}
        v_xor_b32 {vr(t1)}, {vr(t2)}, {vr(t1)}
        v_lshl_add_u32 {vr(t1)}, {vr(t0)}, 2, {vr(t1)}
        v_lshlrev_b32 {vr(V_KA+1)}, 3, {vr(t1)}
        v_lshlrev_b32 {vr(L8)}, 3, v0
        v_lshlrev_b32 {vr(MXR)}, 4, {vr(t0)}
        v_add_u32 {vr(MXR)}, {L_MX}, {vr(MXR)}
        v_add_u32 {vr(MXA)}, {sr(S_W)}, {vr(t2)}
        v_and_b32 {vr(MXA)}, 3, {vr(MXA)}
        v_lshl_add_u32 {vr(MXA)}, {vr(MXA)}, 8, {vr(MXR)}
        s_lshl_b32 {sr(T)}, {sr(S_W)}, 2
        v_add_u32 {vr(MXA)}, {sr(T)}, {vr(MXA)}
        v_mul_u32_u24 {vr(xa2)}, 288, {vr(t0)}
        v_lshl_add_u32 {vr(xa2)}, {vr(t2)}, 3, {vr(xa2)}
        v_add_u32 {vr(xa2)}, {sr(S_LB)}, {vr(xa2)}
        v_and_b32 {vr(t1)}, 1, {vr(t2)}
        v_lshlrev_b32 {vr(t1)}, 5, {vr(t1)}
        v_add_u32 {vr(xa0)}, {vr(xa2)}, {vr(t1)}
        v_xor_b32 {vr(t1)}, 32, {vr(t1)}
        v_add_u32 {vr(xa1)}, {vr(xa2)}, {vr(t1)}
        s_mul_i32 {sr(S_LB)}, {sr(S_W)}, {TILE}
        v_lshrrev_b32 {vr(t0)}, 2, v0
        v_bfe_u32 {vr(t1)}, v0, 1, 1
        v_lshlrev_b32 {vr(t1)}, 3, {vr(t1)}
        v_xor_b32 {vr(t1)}, {vr(t0)}, {vr(t1)}
        v_lshlrev_b32 {vr(t1)}, 4, {vr(t1)}
        v_and_b32 {vr(t2)}, 3, v0
        v_lshl_add_u32 {vr(t1)}, {vr(t2)}, 9, {vr(t1)}
        v_and_b32 {vr(V_VA)}, 1, v0
        v_lshl_add_u32 {vr(t1)}, {vr(V_VA)}, 3, {vr(t1)}
        s_and_b32 {sr(T)}, {sr(S_W)}, 1
        s_lshl_b32 {sr(T)}, {sr(T)}, 12
        s_add_u32 {sr(T+1)}, {sr(T)}, {sr(S_LB)}
        s_xor_b32 {sr(T)}, {sr(T)}, 4096
        s_add_u32 {sr(T)}, {sr(T)}, {sr(S_LB)}
        v_add_u32 {vr(V_VA)}, {sr(T)}, {vr(t1)}
        v_add_u32 {vr(V_VB)}, {sr(T+1)}, {vr(t1)}
        v_xor_b32 {vr(V_VA+1)}, 8, {vr(V_VA)}
        v_xor_b32 {vr(V_VB+1)}, 8, {vr(V_VB)}
        v_lshrrev_b32 {vr(t1)}, 5, v0
        v_lshlrev_b32 {vr(t1)}, 1, {vr(t1)}
        v_xor_b32 {vr(t1)}, {vr(t2)}, {vr(t1)}
        v_lshl_add_u32 {vr(t1)}, {vr(t0)}, 2, {vr(t1)}
        v_lshlrev_b32 {vr(t1)}, 3, {vr(t1)}
        v_add_u32 {vr(V_VR)}, {sr(S_LB)}, {vr(t1)}
        v_add_u32 {vr(V_DMA+1)}, 4096, {vr(V_DMA)}
        v_add_u32 {vr(V_DMA+2)}, 8192, {vr(V_DMA)}""")
        self.tr_addr(TRU, L_WU, True, t0)
        a(f"s_lshl_b32 {sr(T)}, {sr(S_W)}, 6\ns_add_u32 {sr(T)}, {sr(T)}, {L_WQ - L_WU}")
        for k in range(3):
            a(f"v_add_u32 {vr(TRQ+k)}, {sr(T)}, {vr(TRU+k)}\nv_add_u32 {vr(TRQ8+k)}, {L_WQ - L_WU + 256}, {vr(TRU+k)}")
        self.row_addr(RK + 2, L_WK + 8 * 4864, t0)
        a(f"""s_mul_i32 {sr(T)}, {sr(S_W)}, {2*4864}
        s_sub_u32 {sr(T)}, {sr(T)}, {8*4864}
        v_add_u32 {vr(t1)}, {sr(T)}, {vr(RK+2)}
        v_bfe_u32 {vr(t0)}, v0, 2, 1
        v_mul_u32_u24 {vr(t0)}, 4864, {vr(t0)}
        v_add_u32 {vr(RK)}, {vr(t1)}, {vr(t0)}
        v_sub_u32 {vr(RK+1)}, {vr(t1)}, {vr(t0)}""")
        for j in range(4):
            a(f"""s_add_u32 {sr(T)}, {sr(S_W)}, {j}
            s_and_b32 {sr(T)}, {sr(T)}, 3
            s_lshl_b32 {sr(T+1)}, {sr(T)}, 12
            s_add_u32 {sr(T+1)}, {sr(T+1)}, {L_XX}
            v_add_u32 {vr(VS+j)}, {sr(T+1)}, {vr(V_DMA)}
            s_lshl_b32 {sr(T+1)}, {sr(T)}, 9
            s_add_u32 {sr(T+1)}, {sr(T+1)}, {L_XR}
            v_add_u32 {vr(VR4+j)}, {sr(T+1)}, {vr(L8)}
            v_add_u32 {vr(VSW+j)}, {sr(W10)}, {vr(VS+j)}""")
        a(f"""s_sub_u32 {sr(T+2)}, 63, {sr(S_H)}
        s_add_u32 {sr(T+3)}, {sr(S_W)}, 60
        s_cmp_ge_u32 {sr(T+3)}, {sr(T+2)}
        s_cselect_b32 {sr(S_DUM)}, 4, 99
        s_mov_b32 {sr(S_REDO)}, 0
        s_mov_b32 {sr(S_TOFF)}, {sr(S_LB)}
        s_lshl_b32 {sr(PUB)}, {sr(S_TOWN)}, 8
        s_add_u32 {sr(PUB)}, {sr(PUB)}, {FA0}
        s_and_b32 {sr(T)}, {sr(S_W)}, 1
        s_lshl_b32 {sr(T)}, {sr(T)}, 7
        s_add_u32 {sr(PUB)}, {sr(PUB)}, {sr(T)}
        s_lshr_b32 {sr(T)}, {sr(S_W)}, 1
        s_and_b32 {sr(T)}, {sr(T)}, {sr(S_VAL)}
        s_cmp_eq_u32 {sr(T)}, 1
        s_cselect_b32 {sr(PUB)}, {sr(PUB)}, 0x40000000
        s_lshl_b32 {sr(S_FB)}, s2, 8
        s_add_u32 {sr(S_FB)}, {sr(S_FB)}, {WS_F + 250*256}
        s_mul_i32 {sr(T)}, {sr(S_H)}, 1792
        s_sub_u32 {sr(T)}, {sr(T)}, 768
        s_mul_i32 {sr(T+1)}, {sr(S_H)}, 62
        s_cmp_eq_u32 {sr(S_QB)}, {sr(T+1)}
        s_cselect_b32 {sr(T)}, 0, {sr(T)}
        v_mov_b32 {vr(self.VPL)}, 0x40000000
        s_xor_b32 {sr(T+1)}, {sr(S_FB)}, 256
        s_add_u32 {sr(T)}, {sr(T)}, {sr(S_FB)}
        v_writelane_b32 {vr(self.VPL)}, {sr(S_FB)}, 0
        v_writelane_b32 {vr(self.VPL)}, {sr(T+1)}, 1
        v_writelane_b32 {vr(self.VPL)}, {sr(T)}, 2
        s_mov_b32 {sr(T)}, {WS_F + 502*256}
        s_mov_b32 {sr(T+1)}, {WS_F + 503*256}
        v_writelane_b32 {vr(self.VPL)}, {sr(T)}, 3
        v_writelane_b32 {vr(self.VPL)}, {sr(T+1)}, 4
        s_sub_u32 {sr(S_FB)}, {sr(S_FB)}, {L_PC}""")
        if o.get("xm", 0):
            a(f"""s_getreg_b32 {sr(S_XC)}, hwreg(HW_REG_XCC_ID, 0, 4)
            s_xor_b32 {sr(T)}, s2, 1
            s_lshl_b32 {sr(T)}, {sr(T)}, 8
            s_add_u32 {sr(T)}, {sr(T)}, {WS_F + 250*256 + 4}
            v_writelane_b32 {vr(self.VPL)}, {sr(T)}, 5""")
        a.flush()
        if o.get("tlb", 0) == 2: tlb()
        self.stamp("pre")
        if o.get("es", 0) == 0: self.epi_setup()
        self.stamp("es")
        nx = self.vm_since(mx) + getattr(self, "vm_adj", 0)
        if o.get("touch", 1):
            a(f"""s_mov_b64 exec, 0
            s_cmp_eq_u32 {sr(S_W)}, 0
            s_cbranch_scc1 L_tr
            s_cmp_eq_u32 {sr(S_W)}, 1
            s_cbranch_scc1 L_t0
            s_cmp_eq_u32 {sr(S_W)}, 2
            s_cbranch_scc1 L_t1
            s_branch L_t2""")
            self.rare()
            a.raw(".p2align 12")
            a.label("L_tr")
            a("s_mov_b64 exec, -1")
        nlate = o.get("nlate", 0)
        for g_ in gu[npre:npre + nlate]: a(g_)
        a(f"s_waitcnt vmcnt({nx + nlate})")
        self.stamp("xarr")
        for s in range(4):
            a(f"ds_read_b64 {vr(XR+4*s,2)}, {vr(xa0)} offset:{64*s}\nds_read_b64 {vr(XR+4*s+2,2)}, {vr(xa1)} offset:{64*s}")
        a(f"ds_read_b64 {vr(XR+16,2)}, {vr(xa2)} offset:256")
        a(f"""s_and_b32 {sr(T)}, {sr(S_W)}, 1
        s_mul_i32 {sr(T+2)}, {sr(S_TOWN)}, {TILE}
        {f"s_add_u32 {sr(T+2)}, {sr(T+2)}, {sr(S_RO)}" if o.get("rot", 0) == 2 else ""}
        s_cmp_eq_u32 {sr(S_VAL)}, 1
        s_cselect_b32 {sr(T+2)}, {sr(T+2)}, 0x40000000
        s_lshl_b32 {sr(T+3)}, {sr(T)}, 8
        s_add_u32 {sr(T+3)}, {sr(T+3)}, {sr(T+2)}
        s_add_u32 {sr(T+4)}, {sr(T+3)}, 4096
        s_lshl_b32 {sr(T+5)}, {sr(T)}, 9
        s_add_u32 {sr(T+5)}, {sr(T+5)}, {sr(T+2)}
        s_add_u32 {sr(T+5)}, {sr(T+5)}, 8192
        s_waitcnt lgkmcnt(0)""")
        wl = gq + gk
        a.bg, a.every, a.cnt = gu[npre + nlate:] + [wl.pop(0) for _ in range(o.get("nql", 11))], o.get("evln", 5), 0
        self.ln_packed(XR, XF, XA, TM)
        a.flush()
        self.stamp("ln")
        if o.get("tst") and o["tst"][0].startswith("pub"): self.tstore()
        a(f"s_cmp_lt_u32 {sr(S_W)}, 2\ns_cbranch_scc1 L_nop")
        w16 = o.get("w16", 0)
        pair = lambda d, src: [f"v_mov_b32 {vr(d)}, {vr(src)}\nv_mov_b32 {vr(d+1)}, {vr(src+1)}", f"v_mov_b32 {vr(d+2)}, {vr(src)}\nv_mov_b32 {vr(d+3)}, {vr(src+1)}", "",
                               f"v_permlane16_swap_b32 {vr(d)}, {vr(d+2)}\nv_permlane16_swap_b32 {vr(d+1)}, {vr(d+3)}"]
        pr = pair(XR, XA + 16)
        if o.get("pw") == 2: a("s_waitcnt vmcnt(0)")
        self.stamp("pb0")
        for s in range(4):
            a(f"buffer_store_dwordx4 {vr(XA+4*s,4)}, {vr(V_KA)}, {sr(S_WS,4)}, {sr(T+3+(s>>1))} offen offset:{2048*(s&1)} {o.get('pfl', 'sc1')}")
            if w16 & 1: a(pr[s])
        if w16 & 1:
            a(f"s_mov_b32 exec_lo, 0xffff\ns_mov_b32 exec_hi, 0xffff\nbuffer_store_dwordx4 {vr(XR,4)}, {vr(V_KA+1)}, {sr(S_WS,4)}, {sr(T+5)} offen {o.get('pfl', 'sc1')}\ns_mov_b64 exec, -1")
        else: a(f"buffer_store_dwordx2 {vr(XA+16,2)}, {vr(V_KA+1)}, {sr(S_WS,4)}, {sr(T+5)} offen {o.get('pfl', 'sc1')}")
        if o.get("pw"):
            a("s_waitcnt vmcnt(0)")
            self.stamp("pb1")
        a(f"s_waitcnt vmcnt({5 + o.get('nql', 11)})\ns_branch L_bar1")
        a.label("L_nop")
        if o.get("touch", 1):
            a(f"s_mov_b64 exec, 0\ns_cmp_eq_u32 {sr(S_W)}, 0\ns_cbranch_scc1 L_t3\ns_branch L_t4")
            a.label("L_tr2")
            a("s_mov_b64 exec, -1")
        a(f"s_waitcnt vmcnt({o.get('nql', 11)})")
        a.label("L_bar1")
        self.stamp("pub")
        xw = [f"ds_write_b128 {vr(VS)}, {vr(XA+4*s,4)} offset:{1024*s}" for s in range(4)] + [f"ds_write_b64 {vr(VR4)}, {vr(XA+16,2)}"]
        self.stamp("tch")
        PA = 249
        a(f"""v_add_u32 {vr(V_KA)}, {sr(S_LB)}, {vr(V_KA)}
        v_add_u32 {vr(V_KA+1)}, {sr(S_LB)}, {vr(V_KA+1)}
        s_mul_i32 {sr(T)}, {sr(S_B)}, {NT}
        s_mul_i32 {sr(T+1)}, {sr(S_H)}, 63
        s_add_u32 {sr(T)}, {sr(T)}, {sr(T+1)}
        s_lshl_b32 {sr(T)}, {sr(T)}, 8
        s_add_u32 {sr(T)}, {sr(T)}, {FA0}
        s_cmp_eq_u32 {sr(S_W)}, 0
        {"" if o.get("gatepos", 0) else f"s_cselect_b32 {sr(T)}, {sr(T)}, 0x40000000"}
        v_lshl_add_u32 {vr(PA)}, v0, 8, {sr(T)}
        {"" if o.get("rot", 0) else self.xa_srd()}
        s_waitcnt lgkmcnt(0)""")
        self.stamp("w1")
        a("s_barrier")
        self.stamp("bar1")
        m_b1 = len(a.lines)
        ro = sr(S_RO) if o.get("rot", 0) == 2 else "0"
        poll = lambda r: f"buffer_load_dword {vr(r)}, {vr(PA)}, {sr(S_WS,4)}, {ro} offen sc1\nbuffer_load_dword {vr(r+2)}, {vr(PA)}, {sr(S_WS,4)}, {ro} offen offset:128 sc1"

        def gate(lab, r, mask, younger):
            a(f"s_mov_b32 {sr(T+2)}, 0\ns_waitcnt vmcnt({younger})")
            a.label(lab)
            a(f"""v_cmp_ne_u32 vcc, {sr(S_N)}, {vr(r)}
            v_cmp_ne_u32 {sr(T+10,2)}, {sr(S_N)}, {vr(r+2)}
            s_add_u32 {sr(T+2)}, {sr(T+2)}, 1
            s_or_b64 vcc, vcc, {sr(T+10,2)}
            s_and_b64 vcc, vcc, {mask}
            s_cbranch_scc0 {lab}_ok
            s_sleep {o.get("slp", 4)}
            {poll(r)}
            s_waitcnt vmcnt(0)
            s_cmp_lt_u32 {sr(T+2)}, 0x40000
            s_cbranch_scc1 {lab}""")
            a.label(lab + "_ok")

        H, G_, UG, MS, CL = 16, 52, 208, 110, 104
        nup = o.get("nup", 5)
        at = {o.get("u0", 6) + o.get("usp", 6) * i: wl.pop(0) for i in range(nup)}
        for i in range(5): at[i] = xw[i]
        tagld = f"buffer_load_dword v253, off, {sr(S_DB,4)}, 0 sc1"
        tag1 = tagld.replace("sc1", o.get("tgf", "sc1")).strip()
        at[o.get("tgp", 5)] = tag1
        if o.get("es", 0) == 1:
            n_ = len(a.lines); self.epi_setup()
            el = [l.strip() for l in a.lines[n_:]]; del a.lines[n_:]
            for k in range(5, 42):
                if k in at: continue
                c_ = 0
                while el and c_ < o.get("esn", 2):
                    x = el.pop(0); at[k] = at.get(k, "") + x + "\n"; c_ += 1 if x.startswith("v_") else 0.5
            self.es_left = el
        self.gemm(self.tr_reads(TRU), XA, H, None, at=at)
        if o.get("es", 0) == 1:
            for x in self.es_left: a(x)
        self.stamp("up")
        p = lambda r: vr(r, 2)
        CC = TM
        c1 = -2.0 * math.sqrt(2.0 / math.pi) * LOG2E
        c2 = c1 * 0.044715
        gst = [[f"v_pk_mul_f32 {p(G_+2*i)}, {p(H+2*i)}, {p(H+2*i)}" for i in range(18)] +
               [f"v_pk_fma_f32 {p(G_+2*i)}, {p(G_+2*i)}, {p(CC+2)}, {p(CC)} op_sel_hi:[1,0,0]" for i in range(18)] +
               [f"v_pk_mul_f32 {p(G_+2*i)}, {p(G_+2*i)}, {p(H+2*i)}" for i in range(18)],
               [f"v_exp_f32 {vr(G_+i)}, {vr(G_+i)}" for i in range(36)],
               [f"v_pk_add_f32 {p(G_+2*i)}, {p(G_+2*i)}, {p(CC+4)} op_sel_hi:[1,0]" for i in range(18)],
               [f"v_rcp_f32 {vr(G_+i)}, {vr(G_+i)}" for i in range(36)],
               [f"v_pk_mul_f32 {p(H+2*i)}, {p(G_+2*i)}, {p(H+2*i)}" for i in range(18)]]
        gs = o.get("gs", 0)
        if gs:
            a(f"v_mov_b32 {vr(CC)}, {f32(c1)}\nv_mov_b32 {vr(CC+2)}, {f32(c2)}\nv_mov_b32 {vr(CC+4)}, 1.0")
            pre = [x for st_ in gst[:gs] for x in st_]
            ngw = o.get("ngw", 0)
            for i, x in enumerate(pre):
                a(x)
                if ngw and i % o.get("gwsp", 8) == 2 and wl: a(wl.pop(0)); ngw -= 1
            self.stamp("gea")
        last = lambda srd: max(i for i, l in enumerate(a.lines) if l.strip().startswith("buffer_load") and sr(srd, 4) in l) + 1
        assert not any(sr(SQ, 4) in x for x in wl)
        nq_ = self.vm_since(m_b1) + (5 if last(SQ) < m_b1 else 0) if last(SQ) < m_b1 else self.vm_since(last(SQ))
        a(f"s_waitcnt vmcnt({self.vm_since(m_b1) if last(SQ) < m_b1 else nq_}) lgkmcnt(0)" if False else "")
        if last(SQ) < m_b1:
            a(f"s_cmp_lt_u32 {sr(S_W)}, 2\ns_cbranch_scc1 L_bg0\ns_waitcnt vmcnt({5 + self.vm_since(m_b1)})\ns_branch L_bg1\nL_bg0:\ns_waitcnt vmcnt({self.vm_since(m_b1)})\nL_bg1:\ns_waitcnt lgkmcnt(0)\ns_barrier")
        else: a(f"s_waitcnt vmcnt({self.vm_since(last(SQ))}) lgkmcnt(0)\ns_barrier")

        def flag():
            n_ = self.vm_since(max(i for i, l in enumerate(a.lines) if l.strip() == tag1) + 1)
            if w16 & 2: a(self.a8() + f"\ns_mov_b32 {sr(T+5)}, 0\ns_waitcnt vmcnt({n_})")
            else: a(f"v_lshrrev_b32 {vr(t0)}, 5, v0\nv_lshlrev_b32 {vr(t0)}, 30, {vr(t0)}\nv_lshl_add_u32 {vr(t0)}, v0, 2, {vr(t0)}\ns_mov_b32 {sr(T+5)}, 0\ns_waitcnt vmcnt({n_})")
            a.label("L_tag")
            a(f"""v_readfirstlane_b32 {sr(S_N)}, v253
            s_add_u32 {sr(T+5)}, {sr(T+5)}, 1
            s_cmp_lg_u32 {sr(S_N)}, 0
            s_cbranch_scc1 L_tag_ok
            {tagld}
            s_waitcnt vmcnt(0)
            s_cmp_lt_u32 {sr(T+5)}, 0x40000
            s_cbranch_scc1 L_tag""")
            a.label("L_tag_ok")
            if o.get("rot", 0):
                a(f"""{self.region(T+5, S_N)}
                s_cmp_lg_u32 {sr(T+5)}, {sr(S_RO)}
                s_cbranch_scc1 L_moved""")
                a.label("L_movedb")
                if o["rot"] == 2: a(f"s_add_u32 {sr(PUB)}, {sr(PUB)}, {sr(S_RO)}")

                def moved():
                    a.label("L_moved")
                    if o["rot"] == 2: a(f"s_mov_b32 {sr(S_RO)}, {sr(T+5)}")
                    else:
                        a(f"""s_sub_u32 {sr(T+5)}, {sr(T+5)}, {sr(S_RO)}
                        s_ashr_i32 {sr(T+6)}, {sr(T+5)}, 31
                        s_add_u32 {sr(S_WS)}, {sr(S_WS)}, {sr(T+5)}
                        s_addc_u32 {sr(S_WS+1)}, {sr(S_WS+1)}, {sr(T+6)}""")
                    a(f"""s_lshr_b32 {sr(T+5)}, {sr(S_W)}, 1
                    s_and_b32 {sr(T+5)}, {sr(T+5)}, {sr(S_VAL)}
                    s_cbranch_scc0 L_movedb
                    s_mul_i32 {sr(T+5)}, {sr(S_TOWN)}, {TILE}
                    {f"s_add_u32 {sr(T+5)}, {sr(T+5)}, {sr(S_RO)}" if o["rot"] == 2 else ""}
                    s_and_b32 {sr(T+6)}, {sr(S_W)}, 1
                    s_lshl_b32 {sr(T+7)}, {sr(T+6)}, 9
                    s_add_u32 {sr(T+7)}, {sr(T+7)}, {sr(T+5)}
                    s_add_u32 {sr(T+7)}, {sr(T+7)}, 8192
                    s_lshl_b32 {sr(T+6)}, {sr(T+6)}, 8
                    s_add_u32 {sr(T+5)}, {sr(T+5)}, {sr(T+6)}
                    s_add_u32 {sr(T+6)}, {sr(T+5)}, 4096
                    v_subrev_u32 {vr(t0)}, {sr(S_LB)}, {vr(V_KA)}
                    v_subrev_u32 {vr(t1)}, {sr(S_LB)}, {vr(V_KA+1)}""")
                    for s_ in range(4): a(f"buffer_store_dwordx4 {vr(XA+4*s_,4)}, {vr(t0)}, {sr(S_WS,4)}, {sr(T+5+(s_>>1))} offen offset:{2048*(s_&1)} sc1")
                    a(f"buffer_store_dwordx2 {vr(XA+16,2)}, {vr(t1)}, {sr(S_WS,4)}, {sr(T+7)} offen sc1\ns_waitcnt vmcnt(0)\ns_branch L_movedb")
                self.moved = moved
                assert w16 & 2
            if w16 & 2:
                for i in range(4): a(f"v_mov_b32 {vr(CL+i)}, {sr(S_N)}")
                a(f"buffer_store_dwordx4 {vr(CL,4)}, v255, {sr(S_WS,4)}, {sr(PUB)} offen sc1")
            else: a(f"v_mov_b32 {vr(t1)}, {sr(S_N)}\nbuffer_store_dword {vr(t1)}, {vr(t0)}, {sr(S_WS,4)}, {sr(PUB)} offen sc1")
            self.m_fl = len(a.lines)
            if o.get("rot", 0): a(self.xa_srd(T + 5))
            self.stamp("flag")
        self.stamp("barG")
        if o.get("atw"):
            a("s_waitcnt vmcnt(1)")
            self.stamp("ack1")
            a("s_waitcnt vmcnt(0)")
            self.stamp("ack")
        if o.get("census"):
            k_ = S_ST + 2 * self.stnames.index(o["census"][0])
            a(f"s_waitcnt lgkmcnt(0)\nv_mov_b32 v252, {sr(k_)}\ns_lshl_b32 {sr(T)}, s2, 2\ns_add_u32 {sr(T)}, {sr(T)}, {WS_DBG}\nv_mov_b32 v253, 0\nbuffer_store_dword v252, v253, {sr(S_WS,4)}, {sr(T)} offen sc1")

        def a_tr(t):
            ad, off = (TRQ, 32 * t) if t < 2 else (TRQ8, 0)
            return [f"ds_read_b64_tr_b16 {ar(AQ1+18*t+4*s+2*u,2)}, {vr(ad+u)} offset:{9216*s + off}" for s in range(4) for u in range(2)] + \
                   [f"ds_read_b64_tr_b16 {ar(AQ1+18*t+16,2)}, {vr(ad+2)} offset:{36864 + off}"]

        def a_row(t):
            off = 4864 * t if t < 2 else 0
            return [f"ds_read_b64 {ar(A_Q+18*t+4*s+2*u,2)}, {vr(RK+t)} offset:{off + 64*s + 32*u}" for s in range(4) for u in range(2)] + \
                   [f"ds_read_b64 {ar(A_Q+18*t+16,2)}, {vr(RK+t)} offset:{off + 256}"]
        bq = lambda j, d=0: [f"ds_read_b128 {ar(18*j+4*s,4)}, {vr(VS+j)} offset:{d + 1024*s}" for s in range(4)] + [f"ds_read_b64 {ar(18*j+16,2)}, {vr(VR4+j)} offset:{d}"]

        def post(u, scale, d):
            L = [f"v_mul_f32 {vr(ACC+4*u+i)}, {sr(T+4)}, {vr(ACC+4*u+i)}" for i in range(4)] if scale else []
            L += [f"v_cvt_pk_bf16_f32 {vr(PK + (4*(u&3) + 2*(u>>2) if u < 8 else 16) + h)}, {vr(ACC+4*u+2*h)}, {vr(ACC+4*u+2*h+1)}" for h in range(2)]
            if 4 <= u < 8: L.append(f"ds_write_b128 {vr(VSW+u-4)}, {vr(PK+4*(u-4),4)} offset:{d}")
            if u == 8: L.append(f"ds_write_b64 {vr(VR4)}, {vr(PK+16,2)} offset:{d}")
            return L
        fl2 = o.get("fl2", 1)
        self.m_fl = 0
        xd = [f"ds_read_b128 {vr(XD+4*j,4)}, {vr(VSW+j)}" for j in range(4)]
        n_g1 = len(a.lines)
        self.gemm_u(AQ1, ar, [("v", XA), ("a", 18), ("a", 36), ("a", 54)], ACC, a_tr, lambda j: bq(j) if j else None, lambda u: post(u, False, L_QD),
                    vm_items=wl, other=xd, vmsp=o.get("vmsp", 3), at={o.get("flp", 22): flag} if fl2 < 0 else {})
        for _ in range(o.get("dup1", 0)):
            self.gemm_u(AQ1, ar, [("v", XA), ("a", 18), ("a", 36), ("a", 54)], ACC, a_tr, lambda j: bq(j) if j else None, lambda u: post(u, False, L_QD))
        for _ in range(o.get("nop1", 0)): a("s_sleep 15")
        if "1" in o.get("abA", ""):
            a.lines[n_g1:] = [l for l in a.lines[n_g1:] if not l.strip().startswith(("v_mfma", "ds_read_b64_tr", "v_cvt_pk", "ds_write", "s_nop"))]
            self.m_fl = max(i for i, l in enumerate(a.lines) if "buffer_store" in l) + 1
        self.stamp("g1")
        for i in range(4): a(f"v_mov_b32 {vr(CL+i)}, -1")
        a(f"s_lshl2_add_u32 {sr(T+2)}, s2, {sr(S_W)}\ns_mul_i32 {sr(T+2)}, {sr(T+2)}, 2560\ns_add_u32 {sr(T+2)}, {sr(T+2)}, {WS_IB}")
        a(f"s_mov_b32 {sr(T+4)}, {f32(LOG2E / 12.0)}\ns_waitcnt vmcnt({self.vm_since(max(last(SK), self.m_fl)) + (last(SK) < self.m_fl)}) lgkmcnt(0)\ns_barrier")
        T2 = T + 2
        clr = [f"buffer_store_dwordx4 {vr(CL,4)}, {vr(V_DMA)}, {sr(S_WS,4)}, {sr(T+2)} offen sc1",
               f"buffer_store_dwordx4 {vr(CL,4)}, {vr(V_DMA)}, {sr(S_WS,4)}, {sr(T+2)} offen offset:1024 sc1",
               f"buffer_store_dwordx2 {vr(CL,2)}, {vr(L8)}, {sr(S_WS,4)}, {sr(T+2)} offen offset:2048 sc1"]
        self.stamp("bar2")
        gp_ = o.get("gatepos", 0)
        cl1 = not o.get("cll", 1)
        self.gemm_u(A_Q, ar, [("a", 18 * j) for j in range(4)], ACC, a_row, lambda j: bq(j, L_QD), lambda u: post(u, True, 0), vm_items=((clr if cl1 else []) + [poll(252)] if gp_ == 0 else clr if cl1 else []), vm0=o.get("pg", 6), vmsp=o.get("csp", 3),
                    lastk=o.get("plk", 26) if gp_ == 0 else 0, at={fl2: flag} if fl2 >= 0 else {})
        if "2" in o.get("abA", ""):
            n_g2 = max(i for i, l in enumerate(a.lines) if "s_barrier" in l) + 1
            k_ = [0]
            def keep(l):
                if l.strip().startswith("v_mfma"):
                    k_[0] += 1; return k_[0] % 2 == 0
                return True
            a.lines[n_g2:] = [l for l in a.lines[n_g2:] if keep(l)]
        self.stamp("g2")
        p = lambda r: vr(r, 2)
        CC = TM
        for j in range(4): a(f"v_dot2_f32_bf16 {vr(CC+j)}, {vr(PK+4*j)}, {vr(XD+4*j)}, 0")
        for i in range(2): a(f"v_dot2_f32_bf16 {vr(CC)}, {vr(PK+16+i)}, {vr(XA+16+i)}, {vr(CC)}")
        for i in range(1, 4):
            for j in range(4): a(f"v_dot2_f32_bf16 {vr(CC+j)}, {vr(PK+4*j+i)}, {vr(XD+4*j+i)}, {vr(CC+j)}")
        QE = VS if gs else TRQ
        a(f"""s_xor_b32 {sr(T+1)}, {sr(self.NB)}, 1
        v_add_u32 {vr(t0)}, {L_XX}, {vr(V_DMA)}
        v_lshl_add_u32 {vr(QE)}, {sr(T+1)}, 12, {vr(t0)}
        v_lshl_add_u32 {vr(QE+1)}, {sr(self.NB)}, 12, {vr(t0)}""")
        self.treduce(CC)
        a(f"""ds_write_b32 {vr(MXA)}, {vr(CC)}
        v_add_u32 {vr(t0)}, {L_XR}, {vr(L8)}
        v_lshl_add_u32 {vr(QE+2)}, {sr(T+1)}, 9, {vr(t0)}
        v_lshl_add_u32 {vr(QE+3)}, {sr(self.NB)}, 9, {vr(t0)}
        v_lshl_add_u32 {vr(QE+4)}, {sr(T+1)}, 8, {vr(MXR)}
        v_lshl_add_u32 {vr(QE+5)}, {sr(self.NB)}, 8, {vr(MXR)}
        s_sub_u32 {sr(T+5)}, 63, {sr(S_H)}
        s_bfm_b64 {sr(T+8,2)}, {sr(T+5)}, 0
""")
        if gp_ == 0:
            a(f"s_cmp_lg_u32 {sr(S_W)}, 0\ns_cbranch_scc1 L_ga_ok")
            gate("L_ga", 252, sr(T + 8, 2), 0)
        else: a(poll(252))
        a("s_waitcnt lgkmcnt(0)\ns_barrier")
        self.stamp("bar3")
        qrd = [f"ds_read_b128 {vr(MS+4*qb,4)}, {vr(QE+4+(qb&1))} offset:{512*(qb>>1)}" for qb in range(4)]
        for qb in range(4):
            qrd += [f"ds_read_b128 {ar(A_Q+18*qb+4*s,4)}, {vr(QE+(qb&1))} offset:{8192*(qb>>1) + 1024*s}" for s in range(4)]
            qrd.append(f"ds_read_b64 {ar(A_Q+18*qb+16,2)}, {vr(QE+2+(qb&1))} offset:{1024*(qb>>1)}")
        if gs:
            tg = self.tile_groups(0) + self.tile_groups(1)
            n0 = o.get("n0", 3)
            for x in tg[:n0]: a(x)
            tg = tg[n0:]
            if gs < 3: a(f"v_mov_b32 {vr(CC+4)}, 1.0")
            mem = []
            qpd = o.get("qpd", 2)
            while tg or qrd:
                it = []
                if tg: it.append(tg.pop(0))
                it += [qrd.pop(0) for _ in range(min(qpd, len(qrd)))]
                mem.append("\n".join(it))
            com = [x for st_ in gst[gs:] for x in st_]
            ev = o.get("gev", 3)
            for i, x in enumerate(com):
                a(x)
                if i % ev == ev - 1 and mem: a(mem.pop(0))
            a(f"""s_mul_i32 {sr(T)}, {sr(WV+1)}, {BLK}
            s_cmp_eq_u32 {sr(S_H)}, 1
            s_cbranch_scc1 L_ln2
            s_add_u32 {sr(T)}, {sr(T)}, {WS_U}""")
            m0_ = list(mem)
            for i in range(18):
                a(f"v_cvt_pk_bf16_f32 {vr(UG+i)}, {vr(H+2*i)}, {vr(H+2*i+1)}")
                if i % o.get("gev0", 2) == 1 and m0_: a(m0_.pop(0))
            for x in m0_: a(x)
            a("s_branch L_ug")
            a.label("L_ln2")
            a(f"s_add_u32 {sr(T)}, {sr(T)}, {WS_G}")
            a.bg, a.every, a.cnt = list(mem), o.get("gev1", 6), 0
            self.ln_f32(H, UG, TM)
            a.flush()
            a.label("L_ug")
            m_t0 = m_t1 = None
        else:
            tg = self.tile_groups(0) + self.tile_groups(1) + self.tile_groups(2)[:8]
            n0 = o.get("n0", 3) if gp_ == 0 else 0
            for x in tg[:n0]: a(x)
            a(f"v_mov_b32 {vr(CC)}, {f32(c1)}\nv_mov_b32 {vr(CC+2)}, {f32(c2)}\nv_mov_b32 {vr(CC+4)}, 1.0")
            nq1, nt1 = (o.get("nq1", 8), o.get("nt1", 5)) if gp_ == 0 else (o.get("nq1", 16), 0)
            bgl = []
            for i in range(max(nq1 // 2, nt1)):
                if 2 * i < nq1: bgl.append(qrd[2 * i] + "\n" + qrd[2 * i + 1])
                if i < nt1: bgl.append(tg[n0 + i])
            tg, qrd = tg[n0 + nt1:], qrd[nq1:]
            a.bg, a.every, a.cnt = bgl, 54 // (len(bgl) + 1), 0
            for x in gst[0]: a(x)
            a.flush()
            if gp_:
                self.stamp("ge0")
                gate("L_ga", 252, sr(T + 8, 2), 0)
                for x in tg[:2]: a(x)
                tg = tg[2:]
            self.stamp("ge1")
            esp = o.get("esp", 3 if gp_ else 4)
            for i in range(36):
                a(gst[1][i])
                if i % esp == 1 and tg: a(tg.pop(0))
                if i % 8 == 3 and qrd: a(qrd.pop(0)); a(qrd.pop(0))
            self.stamp("ge2")
            for x in gst[2]: a(x)
            for i in range(36):
                a(gst[3][i])
                if i % esp == 1 and tg: a(tg.pop(0))
                if i % 8 == 3 and qrd: a(qrd.pop(0)); a(qrd.pop(0))
            assert not tg and not qrd
            idx = [i for i, l in enumerate(a.lines) if l.strip().startswith("buffer_load") and l.rstrip().endswith("lds")]
            m_t0, m_t1 = idx[-18] + 1, idx[-9] + 1
            for x in gst[4]: a(x)
            a(f"""s_mul_i32 {sr(T)}, {sr(WV+1)}, {BLK}
            s_cmp_eq_u32 {sr(S_H)}, 1
            s_cbranch_scc1 L_ln2
            s_add_u32 {sr(T)}, {sr(T)}, {WS_U}""")
            for i in range(18): a(f"v_cvt_pk_bf16_f32 {vr(UG+i)}, {vr(H+2*i)}, {vr(H+2*i+1)}")
            a("s_branch L_ug")
            a.label("L_ln2")
            a(f"s_add_u32 {sr(T)}, {sr(T)}, {WS_G}")
            self.ln_f32(H, UG, TM)
            a.label("L_ug")
        self.stamp("ge3")
        a(f"""s_cmp_eq_u32 {sr(WV)}, 1
        s_cselect_b32 {sr(S_UG)}, {sr(T)}, 0x40000000
        s_waitcnt lgkmcnt(0)""")
        kz = [f"s_waitcnt vmcnt({9 if gs else self.vm_since(m_t0)})"] + self.k_reads(0, V_V)
        if not gs:
            for x in kz: a(x)
        self.ugs = [f"buffer_store_dwordx4 {vr(UG+4*s,4)}, {vr(V_DMA)}, {sr(S_WS,4)}, {sr(S_UG)} offen offset:{1024*s} sc1" for s in range(4)]
        self.ugs.append(f"buffer_store_dwordx2 {vr(UG+16,2)}, {vr(self.VL8)}, {sr(S_WS,4)}, {sr(S_UG)} offen sc1")
        for qb in range(4): a(f"v_pk_add_f32 {p(MS+4*qb)}, {p(MS+4*qb)}, {p(MS+4*qb+2)} neg_lo:[1,1] neg_hi:[1,1]")
        for qb in range(4): a(f"v_add_f32 {vr(self.MK+qb)}, {vr(MS+4*qb)}, {vr(MS+4*qb+1)}")
        a(f"v_lshlrev_b32 {vr(t1)}, 8, v0\nv_lshlrev_b32 v231, 2, v0\nv_add_u32 v231, {L_PC}, v231\nds_write_b32 v231, {vr(t1)}")
        self.loop_init(False)
        if gs:
            self.loop_init(True)
            self.stamp("ug0")
            for x in kz: a(x)
        else: self.n_t1 = self.vm_since(m_t1)
        self.stamp("ug")

    def a8(self):
        return f"v_lshrrev_b32 v255, 3, v0\nv_min_u32 v255, 1, v255\nv_lshlrev_b32 v255, 30, v255\nv_add_u32 v255, v255, {vr(V_DMA)}"

    def loop_init(self, part):
        a = self.a
        if part:
            for qb in range(4):
                for i in range(4): a(f"v_mov_b32 {vr(V_CI+4*qb+i)}, {vr(self.MK+qb)}")
            return
        for k in range(7): a(f"v_add_u32 {vr(V_HI+k)}, {2*SLOT}, {vr(V_KA+k if k < 5 else V_VB+k-5)}")
        a(f"v_add_u32 {vr(self.VS0)}, {sr(S_LB)}, {vr(V_DMA)}\nv_add_u32 {vr(self.VS0R)}, {sr(S_LB)}, {vr(self.VL8)}\ns_mov_b32 {sr(S_CNT)}, 0\ns_mov_b32 {sr(S_INC)}, {4*TILE}")
        for i in range(4): a(f"v_mov_b32 {vr(V_L+i)}, 0")
        for i in range(4): a(f"v_mov_b32 {vr(226+i)}, -1")
        if self.o.get("oib", 0):
            T = S_T
            a(f"""s_mul_i32 {sr(S_CL)}, {sr(S_TOWN)}, {TILE}
            s_mul_i32 {sr(T)}, {sr(self.NB)}, {BLK}
            s_lshl_b32 {sr(T+1)}, {sr(self.PT)}, 11
            s_add_u32 {sr(T)}, {sr(T)}, {sr(T+1)}
            s_add_u32 {sr(S_CL)}, {sr(S_CL)}, {sr(T)}
            s_xor_b32 {sr(T+1)}, {sr(S_H)}, 1
            s_sub_u32 {sr(T+1)}, {sr(T+1)}, {sr(S_H)}
            s_mul_i32 {sr(T+1)}, {sr(T+1)}, {TILE}
            s_add_u32 {sr(S_OS)}, {sr(S_CL)}, {sr(T+1)}
            s_cmp_ge_u32 s2, 248
            s_cselect_b32 {sr(T)}, 2.0, 0
            s_mul_i32 {sr(T+1)}, {sr(T)}, {sr(S_H)}
            s_sub_u32 {sr(T)}, {sr(T)}, {sr(T+1)}
            s_add_u32 {sr(S_OS)}, {sr(S_OS)}, {sr(T)}
            s_add_u32 {sr(S_OR)}, {sr(S_CL)}, {sr(T+1)}
            s_lshl_b32 {sr(T)}, {sr(S_REDO)}, 30
            s_or_b32 {sr(S_CL)}, {sr(S_OR)}, {sr(T)}
            s_lshl1_add_u32 {sr(S_CL+1)}, s2, {sr(self.NB)}
            s_mul_i32 {sr(S_CL+1)}, {sr(S_CL+1)}, 5120
            s_add_u32 {sr(S_CL+1)}, {sr(S_CL+1)}, {sr(T)}
            s_lshl_b32 {sr(T)}, {sr(self.PT)}, 9
            s_add_u32 {sr(T)}, {sr(T)}, {WS_IB}
            s_add_u32 {sr(S_CL+1)}, {sr(S_CL+1)}, {sr(T)}""")
        else:
            a(f"""s_lshl2_add_u32 {sr(S_CL)}, s2, {sr(S_W)}
            s_mul_i32 {sr(S_CL)}, {sr(S_CL)}, 2560
            s_lshl_b32 {sr(S_CL+1)}, {sr(S_REDO)}, 30
            s_add_u32 {sr(S_CL)}, {sr(S_CL)}, {sr(S_CL+1)}
            s_add_u32 {sr(S_CL)}, {sr(S_CL)}, {WS_IB}
            s_sub_u32 {sr(S_CL+1)}, {sr(S_CL)}, 2048""")
        a(f"v_mov_b32 v207, {sr(S_N)}\nv_mov_b32 {vr(self.VPL+1)}, 1\nv_lshlrev_b32 v231, 2, v0\nv_add_u32 v231, {L_PC}, v231")
        if self.o.get("xm", 0): a(f"s_add_u32 {sr(S_T)}, {sr(S_N)}, {sr(S_XC)}\nv_writelane_b32 v207, {sr(S_T)}, 1")

    def head(self):
        a, o = self.a, self.o
        gs = o.get("gs", 0)
        a.label("L_go")
        if not gs: self.loop_init(True)
        a("s_waitcnt lgkmcnt(0)\ns_barrier")
        self.stamp("bar5")
        base = self.qk_mfmas(0)
        pick = lambda s_, kb, qb: base[8 * s_ + 4 * kb + qb].replace(vr(V_K + 8 * s_ + 4 * kb, 4) + ",", vr(V_V + 8 * s_ + 4 * kb, 4) + ",").replace(vr(V_K + 32 + 2 * kb, 2) + ",", vr(V_V + 32 + 2 * kb, 2) + ",")
        mf, fin = [], {}
        for qb, s_ in [(0, 0), (0, 1), (0, 2), (0, 3), (1, 0), (1, 1), (0, 4), (1, 2), (1, 3), (2, 0), (2, 1), (1, 4), (2, 2), (2, 3), (3, 0), (3, 1), (2, 4),
                       (3, 2), (3, 3), (3, 4)]:
            for kb in range(2):
                fin[qb, kb] = len(mf)
                mf.append(("s_nop 3\n" if (qb, s_, kb) == (3, 4, 0) else "") + pick(s_, kb, qb))
        enew = [e[1] for g in range(40, 76) for e in self.gaps[g] if e[0] == "E"]
        items = self.e_items(0, enew, lambda qb, j: 0, lambda qb: 999)
        for it, e in zip(items, enew):
            if e[0] == "e": it["am"] = fin[e[1], e[2] // 4]
        dm = []
        for k, (slot, j) in enumerate([(2, j) for j in range(9)] if gs else [(2, 8)] + [(3, j) for j in range(9)]):
            g_ = 1 + o.get("hsp", 4) * k
            if j % 4 == 0: dm.append(dict(t=f"s_add_u32 m0, {sr(S_LB)}, {slot*SLOT + 4096*(j//4)}", c=0, lo=g_ - 1, hi=g_ - 1))
            dm.append(dict(t=f"buffer_load_dwordx4 {vr(V_DMA + j//4)}, {sr(S_XA,4)}, {sr(S_TOFF)} offen offset:{1024*(j%4)} lds", c=8, lo=g_, hi=g_))
            if j == 8: dm.append(dict(t=f"s_add_u32 {sr(S_TOFF)}, {sr(S_TOFF)}, {4*TILE}", c=0, lo=g_ + 1, hi=g_ + 1))
        nh = o.get("ugh", 2) if not o.get("ugl", 1) else 0
        for k in range(nh): dm.append(dict(t=self.ugs[k], c=8, lo=3 + 16 * k, hi=3 + 16 * k))
        if gs:
            k1 = o.get("k1lo", 22)
            kr = [dict(t=("@VM\n" if i == 0 else "") + x, c=4, lo=k1 + i // 2, hi=k1 + i // 2, nds=2) for i, x in enumerate(self.k_reads(1))]
        else:
            a(f"s_waitcnt vmcnt({self.n_t1})")
            kr = [dict(t=x, c=4, lo=i // 2, nds=2) for i, x in enumerate(self.k_reads(1))]
        left = self.pack(mf, items + dm + kr)
        print("head overflow", self.over, "left", len(left))
        left.sort(key=lambda x: not x.startswith("v_exp"))
        last = a.lines[-1].strip()
        for x in left:
            if last.startswith("v_exp") and not x.startswith("v_exp") and (last.split()[1].rstrip(",") + ",") in (x + ","): a("s_nop 0")
            a(x); last = x
        a("s_waitcnt lgkmcnt(0)")

    def tile_groups(self, slot):
        out = []
        for j in range(9):
            g = ""
            if j % 4 == 0: g = f"s_add_u32 m0, {sr(S_LB)}, {slot*SLOT + 4096*(j//4)}\ns_nop 0\n"
            g += f"buffer_load_dwordx4 {vr(V_DMA + j//4)}, {sr(S_XA,4)}, {sr(S_TOFF)} offen offset:{1024*(j%4)} lds"
            if j == 8: g += f"\ns_add_u32 {sr(S_TOFF)}, {sr(S_TOFF)}, {4*TILE}"
            out.append(g)
        return out

    def first_tiles(self):
        pass

    def wfuse(self):
        a = self.a
        BF, ACC, AF, TM, AD = 88, 108, 144, 208, 240
        LA, LB_, LM = 0, 44032, 88064
        T = S_T
        a.label("L_wfuse")
        a(f"{'s_sub_u32 s2, s6, 246' if self.o.get('xm', 0) == 2 else f's_add_u32 s2, s2, {NH}'}\ns_cmp_ge_u32 s2, {NH}\ns_cbranch_scc1 L_end")
        a(f"v_lshrrev_b32 v1, 6, v0\nv_and_b32 v0, 63, v0\nv_readfirstlane_b32 {sr(S_W)}, v1\nv_lshlrev_b32 {vr(V_DMA)}, 4, v0\ns_waitcnt lgkmcnt(0)")
        rot = self.o.get("rot", 0) == 1
        if not rot: self.srd(S_WS, 78, 79, WS_END)
        self.srd(S_DB, 76, 77, 256)
        self.wf0 = 0
        self.srd(S_X, 72, 73, 82944)
        self.srd(S_W2, 62, 63, 41472)
        a(f"""s_cmp_eq_u32 s2, {self.wf0}
        s_cselect_b32 {sr(S_W1)}, s64, s70
        s_cselect_b32 {sr(S_W1+1)}, s65, s71
        s_mov_b32 {sr(S_W1+2)}, 41472
        s_mov_b32 {sr(S_W1+3)}, 0x20000
        s_cselect_b32 {sr(T+4)}, 0, 41472""")
        self.dma_rows([(S_W1, "0", LA), (S_W2, "0", LB_)], 19, 288, TM + 4, TM + 5, 11, 3, "L_wf1")
        a(f"s_lshl_b32 {sr(T)}, {sr(S_W)}, 10\ns_add_u32 {sr(T+2)}, {sr(T)}, {sr(T+4)}")
        for k in range(11):
            if k == 10: a(f"s_cmp_ge_u32 {sr(S_W)}, 1\ns_cbranch_scc1 L_wf2")
            a(f"s_add_u32 m0, {sr(T)}, {LM + 4096*k}\ns_add_u32 {sr(T+1)}, {sr(T+2)}, {4096*k}")
            a(f"buffer_load_dwordx4 {vr(V_DMA)}, {sr(S_X,4)}, {sr(T+1)} offen lds")
        a.label("L_wf2")
        self.srd(S_DW, 68, 69, 864)
        a(f"""v_and_b32 {vr(TM)}, 15, v0
        v_lshlrev_b32 {vr(TM+2)}, 4, {vr(TM)}
        v_lshlrev_b32 {vr(TM)}, 1, {vr(TM)}
        v_bfe_u32 {vr(TM+3)}, v0, 4, 1
        v_lshl_add_u32 {vr(TM+1)}, {vr(TM+3)}, 7, {vr(TM)}
        v_lshl_add_u32 {vr(TM+2)}, {vr(TM+3)}, 11, {vr(TM+2)}
        v_and_b32 {vr(TM+3)}, 1, v0
        v_lshlrev_b32 {vr(TM+3)}, 4, {vr(TM+3)}
        v_bfe_i32 {vr(TM+4)}, v0, 1, 1
        v_not_b32 {vr(TM+5)}, {vr(TM+4)}""")
        for k in range(3):
            for i in range(5): a(f"buffer_load_ushort {vr(16+5*k+i)}, {vr(TM+1 if i < 4 else TM)}, {sr(S_DW,4)}, 0 offen offset:{288*k + (32*i if i < 4 else 256)}")
        def wtag():
            a(f"s_mov_b32 {sr(T+2)}, 0")
            a.label("L_wtag")
            a(f"""buffer_load_dword {vr(TM+6)}, off, {sr(S_DB,4)}, 0 sc1
            s_add_u32 {sr(T+2)}, {sr(T+2)}, 1
            s_waitcnt vmcnt(0)
            v_readfirstlane_b32 {sr(S_N)}, {vr(TM+6)}
            s_cmp_lt_u32 {sr(T+2)}, 0x40000
            s_cselect_b32 {sr(T)}, {sr(S_N)}, 1
            s_cmp_eq_u32 {sr(T)}, 0
            s_cbranch_scc1 L_wtag""")
        if rot:
            wtag()
            a(f"""s_lshl_b32 {sr(T)}, {sr(S_N)}, {24 - self.o.get('rsh', 14)}
            s_and_b32 {sr(T)}, {sr(T)}, 0x0f000000
            s_add_u32 {sr(S_WS)}, s78, {sr(T)}
            s_addc_u32 {sr(S_WS+1)}, s79, 0
            s_mov_b32 {sr(S_WS+2)}, {self.wsn()}
            s_mov_b32 {sr(S_WS+3)}, 0x20000""")
        a(f"s_mov_b32 {sr(T+1)}, {WS_DWF}\ns_waitcnt vmcnt(0)")
        for f in range(15):
            a(f"v_lshlrev_b32 {vr(16+f)}, {vr(TM+3)}, {vr(16+f)}\nv_and_b32 {vr(32+2*f)}, {vr(TM+5)}, {vr(16+f)}\nv_and_b32 {vr(33+2*f)}, {vr(TM+4)}, {vr(16+f)}")
        for r_ in range(8): a(f"buffer_store_dwordx{4 if r_ < 7 else 2} {vr(32+4*r_, 4 if r_ < 7 else 2)}, {vr(TM+2)}, {sr(S_WS,4)}, {sr(T+1)} offen offset:{256*r_} sc1")
        self.tr_addr(AD, LM, False, TM + 8)
        self.row_addr(AD + 3, LA, TM + 8)
        a(f"v_add_u32 {vr(AD+5)}, {LB_}, {vr(AD+3)}")
        a(f"v_lshlrev_b32 {vr(AD+4)}, 3, v0")
        a(f"""s_lshr_b32 {sr(T)}, {sr(S_W)}, 1
        s_lshl_b32 {sr(T)}, {sr(T)}, 6
        s_and_b32 {sr(T+1)}, {sr(S_W)}, 1
        s_lshl_b32 {sr(T+1)}, {sr(T+1)}, 3
        s_add_u32 {sr(T)}, {sr(T)}, {sr(T+1)}
        v_and_b32 {vr(AD+6)}, 3, v0
        v_lshlrev_b32 {vr(AD+6)}, 3, {vr(AD+6)}
        v_add_u32 {vr(AD+7)}, {sr(T)}, {vr(AD+6)}""")
        for k in range(3): a(f"v_add_u32 {vr(AD+k)}, {vr(AD+7)}, {vr(AD+k)}")
        a(f"s_mov_b32 {sr(S_CNT)}, {sr(S_W)}")
        a("s_waitcnt vmcnt(0)\ns_barrier")
        a.label("L_wfl")
        for s in self.tr_reads(AD, vr)(0, BF): a(s)
        a("s_waitcnt lgkmcnt(0)")
        self.gemm(self.row_reads(AD + 3), BF, ACC, AF)
        for i in range(18): a(f"v_cvt_pk_bf16_f32 {vr(BF+i)}, {vr(ACC+2*i)}, {vr(ACC+2*i+1)}")
        a(f"s_cmp_eq_u32 s2, {self.wf0}\ns_cbranch_scc0 L_wf3")
        self.gemm(self.row_reads(AD + 5), BF, ACC, AF)
        for i in range(18): a(f"v_cvt_pk_bf16_f32 {vr(BF+i)}, {vr(ACC+2*i)}, {vr(ACC+2*i+1)}")
        a.label("L_wf3")
        a(f"""s_mul_i32 {sr(T)}, {sr(S_CNT)}, {BLK}
        s_add_u32 {sr(T)}, {sr(T)}, {sr(T+4)}
        s_add_u32 {sr(T)}, {sr(T)}, {WS_WF}
        s_add_u32 {sr(T+1)}, {sr(T)}, 4096""")
        self.store_block(BF, V_DMA, AD + 4, S_WS, T, T + 1, "sc1")
        for k in range(3): a(f"v_add_u32 {vr(AD+k)}, 128, {vr(AD+k)}")
        a(f"s_add_u32 {sr(S_CNT)}, {sr(S_CNT)}, 4\ns_cmp_lt_u32 {sr(S_CNT)}, 8\ns_cbranch_scc1 L_wfl")
        for k in range(3): a(f"v_sub_u32 {vr(AD+k)}, {vr(AD+k)}, {vr(AD+6)}")
        a(f"s_cmp_eq_u32 {sr(S_CNT)}, 8\ns_cbranch_scc1 L_wfl")
        a(f"""s_waitcnt vmcnt(0)
        s_barrier
        s_cmp_lg_u32 {sr(S_W)}, 0
        s_cbranch_scc1 L_end""")
        if not rot: wtag()
        a(f"""v_mov_b32 {vr(TM)}, {sr(S_N)}
        v_lshlrev_b32 {vr(TM+1)}, 2, v0
        s_lshl_b32 {sr(T)}, s2, 8
        s_add_u32 {sr(T)}, {sr(T)}, {WS_F + 502*256}
        buffer_store_dword {vr(TM)}, {vr(TM+1)}, {sr(S_WS,4)}, {sr(T)} offen sc1
        s_endpgm""")

    def tstore(self):
        a = self.a
        _, n, fl, allwg, off = self.o["tst"]
        if not allwg: a(f"s_cmp_lg_u32 s2, 101\ns_cbranch_scc1 L_tst")
        a(f"s_waitcnt vmcnt(0)\ns_lshl2_add_u32 s96, s2, {sr(S_W)}\ns_mul_i32 s96, s96, {1024*max(n,1)}\ns_add_u32 s96, s96, {off}")
        k = len(self.stnames)
        a(f"s_memtime s[92:93]")
        if _[-1] == "x":
            a(f"s_cmp_lt_u32 {sr(S_W)}, 2\ns_cselect_b32 s96, 2.0, {off}\ns_add_u32 s97, s96, s56\ns_add_u32 s96, s96, s55")
            for i in range(4): a(f"buffer_store_dwordx4 v[252:255], {vr(V_KA)}, {sr(S_WS,4)}, s{96+(i>>1)} offen offset:{2048*(i&1)} {fl}")
            n = -1
        if _[-1] == "k":
            a(f"s_lshr_b32 s97, {sr(S_W)}, 1\ns_lshl1_add_u32 s96, s2, s97\ns_mul_i32 s96, s96, {2048*n}\ns_and_b32 s97, {sr(S_W)}, 1\ns_lshl_b32 s97, s97, 8\ns_add_u32 s96, s96, s97\ns_add_u32 s96, s96, {off}")
            for i in range(n): a(f"buffer_store_dwordx4 v[252:255], {vr(V_KA)}, {sr(S_WS,4)}, s96 offen offset:{2048*i} {fl}")
            n = -1
        for i in range(n): a(f"buffer_store_dwordx4 v[252:255], {vr(V_DMA)}, {sr(S_WS,4)}, s96 offen offset:{1024*i} {fl}")
        if n == 0: a(f"buffer_load_dwordx4 v[252:255], {vr(V_DMA)}, {sr(S_WS,4)}, s96 offen {fl}")
        a(f"s_waitcnt vmcnt(0)\ns_memtime s[94:95]\ns_waitcnt lgkmcnt(0)")
        a.label("L_tst")

    def dump_stamps(self):
        a = self.a
        if self.o.get("tst") and self.o["tst"][0] == "end": self.tstore()
        if self.o.get("census"):
            key, mode, m_, v_ = self.o["census"]
            a(f"""s_cmp_lg_u32 s2, 100
            s_cbranch_scc1 L_end
            v_lshlrev_b32 v16, 2, v0
            s_mov_b32 s4, {WS_DBG}""")
            for k in range(4): a(f"buffer_load_dword v{20+k}, v16, {sr(S_WS,4)}, s4 offen offset:{256*k} sc1")
            a(f"s_waitcnt vmcnt(0)\nv_readlane_b32 s8, v21, 36\ns_mov_b32 s9, 0x80000000\ns_mov_b32 s10, 0x7fffffff\ns_mov_b32 s11, 0\ns_mov_b32 s17, 0")
            for k in range(4):
                a(f"s_mov_b32 s5, 0")
                a.label(f"L_cs{k}")
                a(f"""v_readlane_b32 s6, v{20+k}, s5
                s_add_u32 s7, s5, {64*k}
                s_sub_u32 s6, s6, s8
                s_and_b32 s16, s7, {m_}
                s_cmp_lg_u32 s16, {v_}
                s_cbranch_scc1 L_cn{k}
                s_min_i32 s10, s10, s6
                s_cmp_gt_i32 s6, {self.o.get("thr", 150)}
                s_addc_u32 s17, s17, 0
                s_cmp_gt_i32 s6, s9
                s_cselect_b32 s9, s6, s9
                s_cselect_b32 s11, s7, s11""")
                a.label(f"L_cn{k}")
                a(f"s_add_u32 s5, s5, 1\ns_cmp_lt_u32 s5, {64 if k < 3 else 60}\ns_cbranch_scc1 L_cs{k}")
            a({"arg": "s_lshl_b32 s6, s11, 3", "range": "s_sub_u32 s6, s9, s10\ns_lshl_b32 s6, s6, 1", "zero": "s_mov_b32 s6, 0", "cnt": "s_lshl_b32 s6, s17, 4",
               "max": "s_lshl_b32 s6, s9, 1"}[mode])
            a("s_add_u32 s6, s6, 1000\ns_memrealtime s[4:5]\ns_waitcnt lgkmcnt(0)\ns_add_u32 s6, s6, s4")
            a.label("L_echo")
            a("s_memrealtime s[4:5]\ns_waitcnt lgkmcnt(0)\ns_sub_u32 s7, s6, s4\ns_cmp_gt_i32 s7, 0\ns_cbranch_scc1 L_echo")
            return
        if self.o.get("echo"):
            if self.o["echo"][0] == "skew":
                a(f"v_mov_b32 v16, 4\nbuffer_load_dword v17, v16, {sr(S_DB,4)}, 0 offen sc1\ns_waitcnt vmcnt(0)\nv_readfirstlane_b32 s98, v17\ns_not_b32 s98, s98")
                x, y = 98, S_ST + 2 * self.stnames.index(self.o["echo"][1])
            elif self.o.get("tst") and self.o["echo"][0] == self.o["echo"][1]: x, y = 92, 94
            else:
                x, y = [S_ST + 2 * self.stnames.index(n) for n in self.o["echo"]]
            lo, hi = self.o.get("echo_ids", (0, 999))
            a(f"""s_cmp_eq_u32 {sr(S_VAL)}, 0
            s_cbranch_scc1 L_end
            s_cmp_lt_u32 s2, {lo}
            s_cbranch_scc1 L_end
            s_cmp_ge_u32 s2, {hi}
            s_cbranch_scc1 L_end
            s_and_b32 s6, s2, {self.o.get("echo_m", 0)}
            s_cmp_lg_u32 s6, {self.o.get("echo_v", 0)}
            s_cbranch_scc1 L_end
            s_cmp_lt_u32 {sr(S_W)}, {self.o.get("echo_w", 0)}
            s_cbranch_scc1 L_end
            s_memrealtime s[4:5]
            s_waitcnt lgkmcnt(0)
            s_sub_u32 s6, {sr(y)}, {sr(x)}
            s_mul_i32 s6, s6, {self.o.get("echo_mul", 1)}
            s_lshr_b32 s6, s6, {self.o.get("echo_shr", 0)}
            s_add_u32 s6, s6, {self.o.get("echo_add", 0)}
            s_add_u32 s6, s6, s4""")
            a.label("L_echo")
            a("s_memrealtime s[4:5]\ns_waitcnt lgkmcnt(0)\ns_sub_u32 s7, s6, s4\ns_cmp_gt_i32 s7, 0\ns_cbranch_scc1 L_echo")
            return
        if self.o.get("dbgst"):
            a("s_waitcnt vmcnt(0)")
            self.stamp("done")
            a("s_waitcnt lgkmcnt(0)\ns_mov_b64 exec, 1")
            slots = [1, 2, 3, 4, 5, 6, 7, 9, 11, 12, 13, 14, 15]
            a(f"s_not_b32 {sr(S_T)}, {sr(S_ST)}\nv_mov_b32 v16, {sr(S_T)}\nv_mov_b32 v17, 4\nbuffer_atomic_umax v16, v17, {sr(S_DB,4)}, 0 offen sc1")
            for i in range(min(self.nst, 12)):
                a(f"v_mov_b32 v{18+2*i}, {sr(S_ST+2*i)}\nv_mov_b32 v{19+2*i}, {4*slots[i+1]}\nbuffer_atomic_umax v{18+2*i}, v{19+2*i}, {sr(S_DB,4)}, 0 offen sc1")
            return
        if not self.o.get("stamps"): return
        T = S_T
        a(f"""s_waitcnt lgkmcnt(0)
        s_lshl_b32 {sr(T)}, s2, 2
        s_add_u32 {sr(T)}, {sr(T)}, {sr(S_W)}
        s_lshl_b32 {sr(T)}, {sr(T)}, 7
        s_add_u32 {sr(T)}, {sr(T)}, {WS_DBG}
        v_mov_b32 v1, 0""")
        for i in range(26): a(f"v_mov_b32 {vr(16+i)}, {sr(S_ST+i)}")
        for i in range(7): a(f"buffer_store_dwordx4 {vr(16+4*i,4)}, v1, {sr(S_WS,4)}, {sr(T)} offen offset:{16*i}")

    def build(self):
        a = self.a
        self.stnames = []
        a.raw(f"; @launch grid=({NWG},1,1) block=(256,1,1) lds={LDS_TOTAL}")
        a.raw('.amdgcn_target "amdgcn-amd-amdhsa--gfx950"')
        a.raw(".text")
        a.raw(f".globl {NAME}")
        a.raw(".p2align 12")
        self.entry()
        self.phase_a()
        self.rest()
        a.label("L_fin")
        self.dump_stamps()
        a.label("L_end")
        a("s_endpgm")
        self.poll2()
        if not self.o.get("touch", 1): self.rare()
        a.label("L_dummy")
        if self.o.get("rot", 0): self.moved()
        self.fallback()
        self.wfuse()
        a.raw('.section .rodata,"a"')
        a.raw(".p2align 6")
        a.raw(kernel_desc(NAME, 512, 102, 256))
        return a.text()

    def S(self, buf, qb, i=0): return V_S + buf * 32 + qb * 8 + i
    def P(self, buf, qb, i=0): return V_P + buf * 16 + qb * 4 + i

    def k_reads(self, slot, V_K=V_K):
        ka, so = (V_KA, slot * SLOT) if slot < 2 else (V_HI, (slot - 2) * SLOT)
        out = [f"ds_read_b128 {vr(V_K+8*s+4*kb,4)}, {vr(ka)} offset:{so + 2048*s + 256*kb}" for s in range(4) for kb in range(2)]
        out += [f"ds_read_b64 {vr(V_K+32+2*kb,2)}, {vr(ka+1)} offset:{so + 8192 + 512*kb}" for kb in range(2)]
        return out

    def v_reads(self, slot, dst=V_V):
        (va, vr_, vb), so = ((V_VA, V_VR, V_VB), slot * SLOT) if slot < 2 else ((V_HI + 2, V_HI + 4, V_HI + 5), (slot - 2) * SLOT)
        out = []
        for T in range(9):
            for u in range(2):
                if T < 8: out.append(f"ds_read_b64_tr_b16 {vr(dst+4*T+2*u,2)}, {vr((va if T < 4 else vb)+(T&1))} offset:{so + 2048*((T>>1)&1) + 256*u}")
                else: out.append(f"ds_read_b64_tr_b16 {vr(dst+4*T+2*u,2)}, {vr(vr_)} offset:{so + 8192 + 512*u}")
        return out

    def qk_mfmas(self, buf, czero=False):
        out = []
        for s in range(5):
            for kb in range(2):
                for qb in range(4):
                    d = vr(self.S(buf, qb, 4 * kb), 4)
                    c = ("0" if czero else vr(V_CI + 4 * qb, 4)) if s == 0 else d
                    if s < 4: out.append(f"v_mfma_f32_16x16x32_bf16 {d}, {vr(V_K+8*s+4*kb,4)}, {ar(A_Q+18*qb+4*s,4)}, {c}")
                    else: out.append(f"v_mfma_f32_16x16x16_bf16 {d}, {vr(V_K+32+2*kb,2)}, {ar(A_Q+18*qb+16,2)}, {c}")
        return out

    def pv_mfmas(self, buf, czero=False):
        out = []
        for T in range(9):
            for qb in range(4):
                o = ar(A_O + 36 * qb + 4 * T, 4)
                out.append(f"v_mfma_f32_16x16x32_bf16 {o}, {vr(V_V+4*T,4)}, {vr(self.P(buf,qb),4)}, {'0' if czero else o}")
        return out

    def plan(self):
        o = self.o
        n = 76
        fixed = [None] * n
        for i, g in enumerate(range(1, 36, 2)): fixed[g] = ("V", i)
        for i, g in enumerate([41, 44, 47, 50, 53, 56, 59, 62, 65, 68]): fixed[g] = ("K", i)
        for i, g in enumerate([42, 46, 49, 52, 55, 58, 61, 64, 67]): fixed[g] = ("D", i)
        exps = [(qb, j) for qb in range(4) for j in range(8)]
        start = 40
        order = [(start + k) % n for k in range(n)]
        free_idx = [k for k, g in enumerate(order) if fixed[g] is None]
        nsm = len(free_idx) - 32
        cand = free_idx[6:-2]
        sm_set = set(free_idx[-2:]) | {cand[int((i + 0.5) * len(cand) / (nsm - 2))] for i in range(nsm - 2)}
        nds = sum(1 for f in fixed if f is not None and f[0] != "D")
        ls = o.get("lsum", "add")
        over = max(0, (48 if ls == "add" else 32) - nds - 2 * nsm)
        ocand = [k for k, g in enumerate(order) if k >= 20 and (fixed[g] is None or fixed[g][0] != "D")]
        o_set = {ocand[int((i + 0.5) * len(ocand) / over)] for i in range(over)}
        later = []
        gaps = [[] for _ in range(n)]
        small, pend, ei = [], [], 0
        for k, g in enumerate(order):
            new = (start + k) < n
            small.extend(pend); pend = later; later = []
            small.sort(key=lambda t: 0 if t[0] == "c" else 1)
            f = fixed[g]
            want = 0
            if f is not None:
                gaps[g].append((f[0], f[1], None))
                if f[0] == "D": continue
                want = 1
            elif k in sm_set: want = 2
            else:
                qb, j = exps[ei]; ei += 1
                gaps[g].append(("E", ("e", qb, j), new))
                if j & 1: pend.append(("c", qb, j // 2))
                if ls == "add": pend.append(("a", qb, j))
                elif j & 1 and ls == "pk": pend.append(("p", qb, j // 2))
            if k in o_set: want += 1
            if k == n - 1: want = 99
            for _ in range(want):
                if small:
                    it = small.pop(0)
                    gaps[g].append(("E", it, new))
                    if it[0] == "c" and ls == "dot": (small if k == n - 1 else pend).append(("d", it[1], it[2]))
        assert not small and not pend and ei == 32
        self.gaps = gaps

    def pack(self, mf, items):
        a = self.a
        where, order, done, nvm, mpos = {}, [], 0, 0, []
        isds = lambda it: "ds_" in it["t"]
        self.over = 0
        for g, m in enumerate(mf):
            assert not any(it.get("need", 999) <= g and i not in where for i, it in enumerate(items)), g
            idx = [k for k, n_ in enumerate(order) if n_ <= g]
            if idx and max(idx) + 1 > done:
                a(f"s_waitcnt lgkmcnt({min(15, len(order) - 1 - max(idx))})"); done = max(idx) + 1
            if m.startswith("@W"):
                w_, m = m.split("\n", 1)
                a(f"s_waitcnt lgkmcnt({min(15, int(w_[2:]) + len(order))})")
            a(m)
            mpos.append(len(a.lines))
            cap, pick = 8, []
            for phase in (0, 1):
                for i, it in enumerate(items):
                    if i in where or it.get("lo", 0) > g: continue
                    if "am" in it and (it["am"] >= g or len(a.lines) - mpos[it["am"]] < 8): continue
                    d = it.get("dep")
                    if d is not None and not all(where.get(x, 999) < g for x in d): continue
                    if (phase == 0 and it.get("hi", 999) <= g) or (phase == 1 and it["c"] <= cap):
                        if it["t"].startswith("buffer") and pick and any(items[x]["c"] for x in pick) and phase == 1: continue
                        if isds(it) and sum(isds(items[x]) for x in pick) >= it.get("nds", 1) and phase == 1: continue
                        pick.append(i); where[i] = g; cap -= it["c"]
            key = lambda i: 0 if items[i]["c"] == 0 else 1 if isds(items[i]) else 2 if items[i]["t"].startswith("buffer") else 3
            for i in sorted(pick, key=key):
                a(items[i]["t"].replace("@VM", f"s_waitcnt vmcnt({nvm})"))
                nvm += items[i]["t"].startswith("buffer")
                if isds(items[i]): order.append(items[i].get("need", 999))
            self.over += max(0, -cap)
        return [it["t"] for i, it in enumerate(items) if i not in where]

    def e_items(self, buf, lst, lo, hi):
        items, idx = [], {}
        for it in lst:
            kind, qb, j = it
            d = dict(t=self.etext(buf, it), c=8 if kind == "e" else 4)
            if kind == "e": d["lo"] = lo(qb, j); d["hi"] = hi(qb) - 2 - (7 - j)
            else:
                need = [("e", qb, j)] if kind == "a" else [("c", qb, j)] if kind == "d" else [("e", qb, 2 * j), ("e", qb, 2 * j + 1)]
                d["dep"] = [idx[x] for x in need if x in idx]
                if kind == "c": d["hi"] = hi(qb) - (3 - j) // 2
            idx[it] = len(items); items.append(d)
        return items

    def etext(self, buf, it):
        kind, qb, j = it
        s = self.S(buf, qb)
        if kind == "e": return f"v_exp_f32 {vr(s+j)}, {vr(s+j)}"
        if kind == "d": return f"v_dot2_f32_bf16 {vr(V_L+qb)}, {vr(self.P(buf, qb, j))}, v227, {vr(V_L+qb)}"
        if kind == "p": return f"v_pk_add_f32 {vr(208+2*qb,2)}, {vr(208+2*qb,2)}, {vr(s+2*j,2)}"
        if kind == "a": return f"v_add_f32 {vr(V_L+qb)}, {vr(V_L+qb)}, {vr(s+j)}"
        return f"v_cvt_pk_bf16_f32 {vr(self.P(buf, qb, j))}, {vr(s+2*j)}, {vr(s+2*j+1)}"

    def period(self, p, qk=True, pv=True, e_old=True, e_new=True, kread=True, vread=True, dma=True, extra={}, dsub=None, ksub=None, vm=9, halves=(0, 1), inc=None):
        a = self.a
        bn, bo = (p + 1) & 1, p & 1
        qk_, pv_ = self.qk_mfmas(bn), self.pv_mfmas(bo, czero=(p == 0))
        qo, po = self.o.get("qkord", 1), self.o.get("pvord", 0)
        if qo == 1: qk_ = [qk_[8 * s_ + 4 * kb + qb] for kb in range(2) for qb in range(4) for s_ in range(4)] + qk_[32:]
        if qo == 2: qk_ = [qk_[8 * s_ + 4 * kb + qb] for qb in range(4) for kb in range(2) for s_ in range(4)] + qk_[32:]
        if qo == 3: qk_ = [qk_[8 * s_ + 4 * kb + qb] for qb in range(4) for s_ in range(4) for kb in range(2)] + qk_[32:]
        if po == 1: pv_ = [pv_[4 * T_ + qb] for qb in range(4) for T_ in range(9)]
        mf = qk_ + pv_
        kr, vrd = self.k_reads((p + 2) % RING), self.v_reads(p % RING)
        slot = p % RING
        n = 76
        sc = [[] for _ in range(n)]
        dgs = [g for g in range(n) if any(e[0] == "D" for e in self.gaps[g])]
        if dma:
            for j, g in enumerate(dgs):
                if j % 4 == 0: sc[g - 1].append(f"s_add_u32 m0, {sr(S_LB)}, {slot*SLOT + 4096*(j//4)}")
            sc[dgs[-1] + 1].append(f"s_add_u32 {sr(S_TOFF)}, {sr(S_TOFF)}, {inc or 4*TILE}")
        w = []
        if kread: w.append(f"vmcnt({vm})")
        if pv: w.append("lgkmcnt(0)")
        if w: sc[39].append("s_waitcnt " + " ".join(w))
        if kread: sc[75].append("s_waitcnt lgkmcnt(0)")
        for half in halves:
            rng = range(0, 40) if half == 0 else range(40, 76)
            on = qk if half == 0 else pv
            if not on:
                ds, mem, val, post = [], [], [], []
                for g in rng:
                    for s_ in sc[g]:
                        (post if s_.startswith("s_waitcnt") else mem).append(s_)
                    if g in extra: mem.append(extra[g])
                    for kind, d, new in self.gaps[g]:
                        if kind == "V" and vread: ds.append(vrd[d])
                        elif kind == "K" and kread: ds.append(kr[d])
                        elif kind == "D" and dma: mem.append(f"buffer_load_dwordx4 {vr(V_DMA + d//4)}, {sr(S_XA,4)}, {sr(S_TOFF)} offen offset:{1024*(d%4)} lds")
                        elif kind == "E" and ((new and e_new) or (not new and e_old)): val.append((d, self.etext(bn if new else bo, d)))
                if half == 1: a("s_nop 3")
                seq, pend = [], list(val)
                while pend:
                    k = 0
                    if seq and seq[-1][0][0] == "e":
                        le = seq[-1][0]
                        dep = lambda it: it[0][1] == le[1] and ((it[0][0] == "a" and it[0][2] == le[2]) or (it[0][0] == "c" and it[0][2] == le[2] // 2))
                        have = {x[0] for x in seq}
                        ok = lambda it: it[0][0] == "e" or (("e", it[0][1], it[0][2]) in have if it[0][0] == "a" else (("e", it[0][1], 2*it[0][2]+1) in have)) or not any(x[0][0] == "e" and x[0][1] == it[0][1] and (x[0][2] == it[0][2] if it[0][0] == "a" else x[0][2] // 2 == it[0][2]) for x in pend)
                        while k < len(pend) and (dep(pend[k]) or not ok(pend[k])): k += 1
                        if k == len(pend): seq.append((("n", 0, 0), "s_nop 0")); k = 0
                    seq.append(pend.pop(k))
                step = max(1, len(seq) // (len(mem) + len(ds) + 1))
                allm = ds + mem
                for x in allm[:6]: a(x)
                allm = allm[6:]
                for i_, (d, t_) in enumerate(seq):
                    a(t_)
                    if allm and i_ % step == step - 1:
                        x = allm.pop(0); a(x)
                        if x.startswith("s_add_u32 m0"): a("s_nop 0")
                for x in allm:
                    a(x)
                    if x.startswith("s_add_u32 m0"): a("s_nop 0")
                for x in post: a(x)
                if half == 0: a("s_nop 1")
                continue
            abl = self.o.get("abl", "") if 1 <= p <= 4 else ""
            for g in rng:
                if not ("Q" in abl and g < 40 or "P" in abl and g >= 40): a(mf[g])
                for s_ in sc[g]: a(s_)
                if g in extra: a(extra[g])
                for kind, d, new in self.gaps[g]:
                    if kind in abl or (kind == "E" and d[0] in abl): continue
                    if kind == "V":
                        if vread: a(vrd[d])
                    elif kind == "K":
                        if kread: a(kr[d])
                        elif ksub: a(ksub.pop(0))
                    elif kind == "D":
                        if dma: a(f"buffer_load_dwordx4 {vr(V_DMA + d//4)}, {sr(S_XA,4)}, {sr(S_TOFF)} offen offset:{1024*(d%4)} lds")
                        elif dsub: a(dsub.pop(0))
                    elif (new and e_new) or (not new and e_old):
                        a(self.etext(bn if new else bo, d))

    MK, VO, VO8, GA, VS0, VS0R, VDW, VLW, VL8, VST, VPL = 232, 236, 9, 238, 250, 251, 244, 245, 246, 247, 248
    NB, PT, E_U, E_G, RS3, E_COL, RS1, RS2, MP1 = 3, 4, 5, 6, 7, 43, 36, 37, 38
    G0, GM, GP, U, DWT = 16, 26, 36, 80, (90, 252, 96, 100, 112, 116, 104, 94)
    XRS = (192, 196, 46)
    frag = staticmethod(lambda f, b: [(f, b + 4 * s) for s in range(5)])
    WD = [[("a", 216 + 4 * s) for s in range(5)], [("a", 234 + 4 * s) for s in range(5)], [("v", 208 + 4 * s) for s in range(5)]]
    WO = [[("a", 4 * s) for s in range(5)], [("a", 18 + 4 * s) for s in range(5)], [("a", 36), ("a", 40), ("a", 44), ("a", 48), ("a", 252)]]
    X1B = 98304
    X2O = L_SP - X1B
    L_L = L_SP + 9216

    def epi_setup(self):
        a = self.a
        T = S_T
        NB, PT, VO, GA = self.NB, self.PT, self.VO, self.GA
        r, g4, x, y, big, r0 = 52, 53, 54, 55, 56, 57
        a(f"""s_lshr_b32 {sr(NB)}, {sr(S_W)}, 1
        s_and_b32 {sr(PT)}, {sr(S_W)}, 1
        v_and_b32 {vr(r0)}, 15, v0
        v_lshrrev_b32 {vr(g4)}, 4, v0
        v_mul_u32_u24 {vr(x)}, 288, {vr(r0)}
        v_mov_b32 {vr(big)}, 0x40000000
        s_lshl_b32 {sr(T)}, {sr(S_TOWN)}, 1
        s_add_u32 {sr(T)}, {sr(T)}, {sr(NB)}
        s_lshl_b32 {sr(T)}, {sr(T)}, 4
        v_add_u32 {vr(r)}, {sr(T)}, {vr(r0)}
        s_mul_i32 {sr(T+1)}, {sr(S_TOWN)}, {TILE}
        s_mul_i32 {sr(T+2)}, {sr(PT)}, {BLK}
        v_add_u32 {vr(x)}, {sr(T+1)}, {vr(x)}
        s_sub_u32 {sr(T+3)}, {BLK}, {sr(T+2)}
        v_add_u32 {vr(y)}, {sr(T+3)}, {vr(x)}
        v_add_u32 {vr(x)}, {sr(T+2)}, {vr(x)}
        v_lshl_add_u32 {vr(VO)}, {vr(g4)}, 4, {vr(x)}
        v_lshl_add_u32 {vr(VO+1)}, {vr(g4)}, 4, {vr(y)}
        v_lshl_add_u32 {vr(self.VO8)}, {vr(g4)}, 3, {vr(x)}
        s_lshl_b32 {sr(T+3)}, {sr(PT)}, 11
        s_add_u32 {sr(self.E_U)}, {sr(T+3)}, {WS_U}
        s_add_u32 {sr(self.E_G)}, {sr(T+3)}, {WS_G}
        s_sub_u32 {sr(T+3)}, 4096, {sr(T+3)}
        s_lshl_b32 {sr(T)}, {sr(PT)}, 11
        s_add_u32 {sr(T)}, {sr(T)}, {WS_DWF}
        v_lshrrev_b32 {vr(x)}, 2, {vr(r0)}
        v_cmp_eq_u32 vcc, {vr(x)}, {vr(g4)}
        v_lshl_add_u32 {vr(self.VDW)}, {vr(r0)}, 4, {sr(T)}
        s_nop 0
        v_cndmask_b32 {vr(self.VDW)}, {vr(big)}, {vr(self.VDW)}, vcc
        s_lshl_b32 {sr(self.E_COL)}, {sr(S_W)}, 6
        v_lshlrev_b32 {vr(self.VL8)}, 3, v0
        v_add_u32 {vr(self.VL8)}, 4096, {vr(self.VL8)}
        v_add_u32 {vr(self.VST)}, {sr(S_LB)}, {vr(V_DMA)}
        v_add_u32 {vr(self.VST)}, {2*SLOT}, {vr(self.VST)}
        s_xor_b32 {sr(T)}, {sr(NB)}, 1
        v_xor_b32 {vr(x)}, {sr(T)}, {vr(g4)}
        v_lshl_add_u32 {vr(x)}, {vr(x)}, 4, {vr(r0)}
        s_lshl_b32 {sr(T)}, {sr(S_W)}, 2
        s_add_u32 {sr(T)}, {sr(T)}, {self.L_L}
        v_lshl_add_u32 {vr(self.VLW)}, {vr(x)}, 4, {sr(T)}
        s_sub_u32 {sr(self.MP1)}, 0, {sr(PT)}
        s_mov_b32 {sr(self.MP1+1)}, {sr(self.MP1)}""")
        for k, (d, base) in enumerate(((self.RS1, 3 * SLOT), (self.RS2, 2 * SLOT), (self.RS3, 2 * SLOT))):
            a(f"s_xor_b32 {sr(T)}, {sr(S_W)}, {k+1}\ns_mul_i32 {sr(T)}, {sr(T)}, {TILE}\ns_add_u32 {sr(d)}, {sr(T)}, {base}")
        a(f"""s_mul_i32 {sr(T)}, {sr(S_B)}, 4000
        s_add_u32 {sr(T+1)}, {sr(T)}, 3999
        s_mov_b32 {sr(T+2)}, {BLK}""")
        for k, dr in enumerate((0, -1, 1)):
            m = GA + 2 * k
            if dr: a(f"v_add_u32 {vr(m)}, {dr}, {vr(r)}\nv_cmp_eq_u32 vcc, {sr(T if dr < 0 else T+1)}, {vr(r)}")
            src = m if dr else r
            a(f"""v_lshrrev_b32 {vr(x)}, 4, {vr(src)}
            v_and_b32 {vr(y)}, 15, {vr(src)}
            v_mul_lo_u32 {vr(x)}, {vr(x)}, {sr(T+2)}
            v_lshl_add_u32 {vr(y)}, {vr(g4)}, 4, {vr(y)}
            v_lshl_add_u32 {vr(m)}, {vr(y)}, 4, {vr(x)}
            v_lshl_add_u32 {vr(m+1)}, {vr(y)}, 3, {vr(x)}
            v_add_u32 {vr(m+1)}, {sr(T+3)}, {vr(m+1)}""")
            if dr: a(f"v_cndmask_b32 {vr(m)}, {vr(m)}, {vr(big)}, vcc\nv_cndmask_b32 {vr(m+1)}, {vr(m+1)}, {vr(big)}, vcc")

    def conv_loads(self):
        GA = self.GA
        L = []
        for dst, m, so in ((self.GM, GA + 2, 1), (self.G0, GA, 1), (self.GP, GA + 4, 1), (self.U, GA, 0)):
            for k in range(2): L.append(f"buffer_load_dwordx4 {vr(dst+4*k,4)}, {vr(m)}, {sr(S_WS,4)}, {sr(self.E_U+so)} offen offset:{1024*k}")
            L.append(f"buffer_load_dwordx2 {vr(dst+8,2)}, {vr(m+1)}, {sr(S_WS,4)}, {sr(self.E_U+so)} offen")
        return L

    def rg(self, e, n): return (ar if e[0] == "a" else vr)(e[1], n)

    def w8_loads(self, regs, so):
        return [f"buffer_load_dwordx4 {self.rg(regs[s],4)}, {vr(V_DMA)}, {sr(S_WS,4)}, {sr(so)} offen offset:{1024*s}" for s in range(4)] + \
               [f"buffer_load_dwordx2 {self.rg(regs[4],2)}, {vr(self.VL8)}, {sr(S_WS,4)}, {sr(so)} offen"]

    def w_reads(self, regs, off):
        L = []
        for tt in range(2):
            L += [f"ds_read_b128 {self.rg(regs[tt][s],4)}, {vr(self.VS0)} offset:{off + BLK*tt + 1024*s}" for s in range(4)]
            L.append(f"ds_read_b64 {self.rg(regs[tt][4],2)}, {vr(self.VS0R)} offset:{off + BLK*tt}")
        return L

    def wsn(self): return WS_DBG + (1 << 20 if self.o.get("stamps") else 0)

    def region(self, d, src):
        o = self.o
        if o["rot"] == 1: return f"s_lshl_b32 {sr(d)}, {sr(src)}, {24 - o.get('rsh', 14)}\ns_and_b32 {sr(d)}, {sr(d)}, 0x0f000000"
        return f"s_bfe_u32 {sr(d)}, {sr(src)}, {(o.get('rbits', 6) << 16) | o.get('rsh', 14)}\ns_mul_i32 {sr(d)}, {sr(d)}, {RSTR}\ns_add_u32 {sr(d)}, {sr(d)}, {RBASE}"

    def xa_srd(self, T=S_T):
        return f"""s_mul_i32 {sr(T)}, {sr(S_B)}, {NT}
        s_mul_i32 {sr(T+1)}, {sr(S_H)}, 63
        s_add_u32 {sr(T+1)}, {sr(T+1)}, {sr(T)}
        s_mul_i32 {sr(T+1)}, {sr(T+1)}, {TILE}
        {f"s_add_u32 {sr(T+1)}, {sr(T+1)}, {sr(S_RO)}" if self.o.get("rot", 0) == 2 else ""}
        s_add_u32 {sr(S_XA)}, {sr(S_WS)}, {sr(T+1)}
        s_addc_u32 {sr(S_XA+1)}, {sr(S_WS+1)}, 0
        s_sub_u32 {sr(T+2)}, 63, {sr(S_H)}
        s_mul_i32 {sr(S_XA+2)}, {sr(T+2)}, {TILE}
        s_mov_b32 {sr(S_XA+3)}, 0x20000"""

    def rest(self):
        a, o = self.a, self.o
        T = S_T
        VPL = self.VPL
        self.plan()
        self.head()
        self.stamp("loop")
        if o.get("sktest") or o.get("echo") and o["echo"][0] == "skew":
            a(f"s_waitcnt lgkmcnt(0)\ns_mov_b64 exec, 1\ns_not_b32 s98, {sr(S_ST)}\nv_mov_b32 v226, s98\nv_mov_b32 v227, 4\ns_cmp_lg_u32 {sr(S_W)}, 0\ns_cbranch_scc1 L_sk\nbuffer_atomic_umax v226, v227, {sr(S_DB,4)}, 0 offen sc1\ns_waitcnt vmcnt(0)\nL_sk:\ns_mov_b64 exec, -1\ns_nop 3")
            self.stamp("sk")
        nh = o.get("ugh", 2)
        ex = {2 + 12 * k: x for k, x in enumerate(self.ugs[nh:])}
        ugl = o.get("ugl", 1)
        CL = 226
        SI = S_OUT if o.get("oib", 0) else S_WS
        clr = [f"buffer_store_dwordx4 {vr(CL,4)}, {vr(V_DMA)}, {sr(SI,4)}, {sr(S_CL)} offen sc1",
               f"buffer_store_dwordx4 {vr(CL,4)}, {vr(V_DMA)}, {sr(SI,4)}, {sr(S_CL)} offen offset:1024 sc1",
               f"buffer_store_dwordx2 {vr(CL,2)}, {vr(self.VL8)}, {sr(S_WS,4)}, {sr(S_CL+1)} offen sc1"]
        cll = o.get("cll", 1)
        ex0 = {69: self.ugs[0], 71: clr[0]} if cll else {69: self.ugs[0]}
        if o.get("gs", 0):
            for j, x in enumerate(self.tile_groups(3)):
                g_ = o.get("t3g", 2) + 4 * j
                x = x.split("\n")
                if x[0].startswith("s_add_u32 m0"): ex0[g_ - 1] = x[0]; x = x[2:]
                ex0[g_] = "\n".join(x)
        if ugl: self.period(0, extra=ex0)
        else: self.period(0, vm=9 + 5, extra=ex)
        self.stamp("l0")
        a.raw(".p2align 6")
        a.label("L_loop")
        self.stamp("q1")
        for p in range(1, 5):
            ex = {}
            vm = 9
            if p == 1: ex = {73: f"s_cmp_eq_u32 {sr(S_CNT)}, 3"}
            if p == 2: ex = {70: f"buffer_load_dword v252, {vr(VPL)}, {sr(S_WS,4)}, 0 offen sc1"}
            if p == 3:
                ex = {73: f"s_cmp_eq_u32 {sr(S_CNT)}, 2", 45: f"ds_add_rtn_u32 v230, v231, {vr(VPL+1)}"}
            if p == 4:
                self.stamp("la0")
                a(f"s_cbranch_scc1 L_last")
                a.label("L_lastb")
                self.stamp("la1")
                ex = {72: f"s_add_u32 {sr(S_CNT)}, {sr(S_CNT)}, 1", 1: f"v_readfirstlane_b32 {sr(T)}, v230", 3: f"s_cmp_eq_u32 {sr(T)}, 3",
                      4: f"s_cselect_b32 {sr(T)}, {sr(S_FB)}, 2.0", 6: f"buffer_store_dword v207, v231, {sr(S_WS,4)}, {sr(T)} offen sc1"}
            if ugl:
                ex[69] = self.ugs[p]
                if p < 3 and cll: ex[72] = clr[p]
                if p == 3 and cll: ex.update({70: f"s_mov_b32 {sr(S_CL)}, 2.0", 71: f"s_mov_b32 {sr(S_CL+1)}, 2.0"})
                if p == 4: ex.update({71: f"s_mov_b32 {sr(S_UG)}, 2.0", 2: f"s_lshl2_add_u32 {sr(T)}, {sr(S_CNT)}, {sr(T)}", 3: f"s_cmp_eq_u32 {sr(T)}, 7"})
                if p == 3: ex.update({43: f"s_and_b32 {sr(T)}, {sr(S_CNT)}, 1", 44: f"v_mov_b32 {vr(VPL+1)}, {sr(T)}", 48: ex.pop(45)})
            for k_ in range(o.get("pad", 0)): ex[10 + 7 * k_] = ex.get(10 + 7 * k_, "s_nop 0") + "\ns_nop 7"
            self.period(p, extra=ex, inc=sr(S_INC) if p == 4 else None)
            if p == 1: a("s_cbranch_scc1 L_p14")
        a("s_branch L_loop")
        a.label("L_p14")
        SW = 66
        self.stamp("p14")
        a(f"s_cmp_eq_u32 {sr(S_DUM)}, 4\ns_cbranch_scc0 L_dummyb")
        for i in range(16): a(f"v_mov_b32 {vr(V_CI+i)}, 0xff800000")
        a("s_nop 1")
        a.label("L_dummyb")
        ex = dict(zip([2, 6, 8, 12, 14, 18, 20, 24, 26, 30], self.w_reads(self.WD, 0)))
        ex[0] = "s_waitcnt vmcnt(9)"
        ex.update(dict(zip([4, 10, 16, 22, 28], self.w8_loads(self.WD[2], SW))))
        self.period(14, dma=False, kread=False, extra=ex, halves=(0,))
        self.stamp("tail")
        self.tail(SW)
        self.stamp("end")
        self.epilogue(SW)

    def rare(self):
        a = self.a
        T = S_T
        SW = 66
        a.label("L_last")
        a(f"s_waitcnt vmcnt(9)\ns_mov_b32 {sr(T+2)}, 0")
        a.label("L_late")
        xc = f"v_readlane_b32 {sr(S_SX)}, v252, 5\ns_sub_u32 {sr(S_SX)}, {sr(S_SX)}, {sr(S_N)}" if self.o.get("xm", 0) else ""
        a(f"""v_cmp_ne_u32 vcc, {sr(S_N)}, v252
        s_add_u32 {sr(S_XA)}, {sr(S_WS)}, {WS_WF}
        s_addc_u32 {sr(S_XA+1)}, {sr(S_WS+1)}, 0
        s_mov_b32 {sr(S_XA+2)}, {18*BLK}
        s_add_u32 {sr(S_TOFF)}, {sr(S_LB)}, {9*BLK}
        s_mov_b32 {sr(S_INC)}, {-9*BLK}
        s_lshr_b32 {sr(SW)}, {sr(S_W)}, 1
        s_lshl_b32 {sr(SW)}, {sr(SW)}, 30
        s_add_u32 {sr(SW+1)}, {sr(SW)}, {WS_WF + 8*BLK}
        s_add_u32 {sr(SW)}, {sr(SW)}, {WS_WF + 17*BLK}
        {xc}
        s_and_b32 {sr(T)}, vcc_lo, 31
        s_cbranch_scc0 L_lastb
        buffer_load_dword v252, {vr(self.VPL)}, {sr(S_WS,4)}, 0 offen sc1
        s_add_u32 {sr(T+2)}, {sr(T+2)}, 1
        s_waitcnt vmcnt(0)
        s_cmp_lt_u32 {sr(T+2)}, 0x40000
        s_cbranch_scc1 L_late
        s_branch L_lastb""")

    units = [(0, 0), (0, 1), (1, 0), (1, 1), (2, 0)]
    V15 = V_K

    def stage(self, slot, T):
        src = ar(A_O + 36 * slot + 4 * T, 4)
        if slot == 0: return f"ds_write_b128 {vr(self.VST)}, {src} offset:{1024*T}"
        if slot == 2: return f"ds_write_b128 {vr(self.VS0)}, {src} offset:{1024*T}"
        if T < 4: return f"ds_write_b128 {vr(self.VST)}, {src} offset:{SLOT + 1024*T + (4096 if slot == 3 else 0)}"
        return f"{'s_not_b64' if slot == 1 else 's_mov_b64'} exec, {sr(self.MP1,2)}\nds_write_b128 {vr(self.VST)}, {src} offset:{SLOT + 8192}\ns_mov_b64 exec, -1"

    def dwf(self, k, i):
        f = 5 * k + i
        return self.DWT[f >> 1] + 2 * (f & 1)

    def tail(self, SW):
        a, o = self.a, self.o
        mf, pos, start = [], {}, {}
        for t_, qb in ((14, 0), (14, 1), (15, 0), (15, 1), (14, 2), (15, 2), (14, 3), (15, 3)):
            start[t_, qb] = len(mf)
            for Tt in ([0, 1, 2, 3, 8, 4, 5, 6, 7] if qb & 1 else range(9)):
                o_ = ar(A_O + 36 * qb + 4 * Tt, 4)
                pos[t_, qb, Tt] = len(mf)
                mf.append(f"v_mfma_f32_16x16x32_bf16 {o_}, {vr((V_V if t_ == 14 else self.V15)+4*Tt,4)}, {vr(self.P(t_ & 1,qb),4)}, {o_}")
        lst = []
        for qb in range(4):
            for j in range(8):
                lst.append(("e", qb, j))
                if j & 1: lst.append(("c", qb, j // 2))
        lst += [("a", qb, j) for qb in range(4) for j in range(8)]
        items = self.e_items(1, lst, lambda qb, j: 0 if j < 4 else 1, lambda qb: start[15, qb] - 2)
        for it in items[48:]: it["lo"] = o.get("alo", 26)
        v15 = [dict(t=x, c=4, need=pos[15, 0, i // 2], hi=pos[15, 0, i // 2] - o.get("vlead", 7), lo=0 if i < 16 else 2) for i, x in enumerate(self.v_reads(3, self.V15))]
        wr = []
        nown = o.get("nown", 4)
        self.own = [(2, T_) for T_ in range(nown, 9)] + [(3, T_) for T_ in (0, 1, 2, 3, 8)]
        g = o.get("w0", 23)
        for k, (sl, Tt) in enumerate([(0, T_) for T_ in range(9)] + [(1, T_) for T_ in (0, 1, 2, 3, 8)] + [(2, T_) for T_ in range(nown)]):
            g = max(pos[15, sl, Tt] + 5, g)
            wr.append(dict(t=self.stage(sl, Tt), c=o.get("wc", 20), lo=int(g), hi=int(g)) if g < 72 else dict(t=self.stage(sl, Tt), c=4, lo=999))
            g += o.get("wsp", 2.7)
        n0 = len(items) + len(v15)
        wo = []
        for i, x in enumerate(self.w_reads(self.WO, SLOT)):
            r0 = self.WO[i // 5][i % 5][1]
            wo.append(dict(t=("@VM\n" if i == 0 else "") + x, c=4, dep=sorted({n0 + r0 // 4, n0 + (r0 + 3) // 4 if (r0 + 3) // 4 < 9 else n0 + 8}), lo=o.get("wo0", 40) + 3 * i, hi=o.get("wo0", 40) + 3 * i + 2))
        cl = self.conv_loads()
        dl = [f"buffer_load_dwordx4 {vr(self.DWT[r],4)}, {vr(self.VDW)}, {sr(S_WS,4)}, 0 offen offset:{256*r}" for r in range(7)]
        dl.append(f"buffer_load_dwordx2 {vr(self.DWT[7],2)}, {vr(self.VDW)}, {sr(S_WS,4)}, 0 offen offset:{256*7}")
        fr = {96: 9, 100: 18, 104: 45, 112: 27, 116: 36}
        vm = [(x, 0) for x in cl] + [(x, fr.get(self.DWT[r], 0)) for r, x in enumerate(dl)]
        used = {w["lo"] for w in wr}
        vi, g = [], o.get("m0", 24)
        for x, lo in vm:
            g = max(g, lo)
            while int(g) in used: g += 1
            vi.append(dict(t=x, c=8, lo=int(g), hi=int(g)) if g < 72 else dict(t=x, c=8, lo=999))
            g += o.get("msp", 2.2)
        left = self.pack(mf, items + v15 + wr + wo + vi)
        self.done_a = {(qb, j) for qb in range(4) for j in range(8) if self.etext(1, ("a", qb, j)) not in left}
        left = [x for x in left if not x.startswith("v_add_f32")]
        print("tail overflow", self.over, "left", len(left), "adds done", len(self.done_a))
        self.left = left

    def epilogue(self, SW):
        a, o = self.a, self.o
        T = S_T
        p = lambda r: vr(r, 2)
        NB, PT, MK, VO, units, MP1 = self.NB, self.PT, self.MK, self.VO, self.units, self.MP1
        U, GM, G0, GP = self.U, self.GM, self.G0, self.GP
        X2O = self.X2O
        R1, R2, R3 = 230, 231, 249
        LA, LS, M = 10, 226, 48

        def weave(main, fill, per):
            fill = list(fill)
            for x in main:
                a(x)
                for _ in range(per):
                    if fill: a(fill.pop(0))
            return fill
        for x in self.left:
            if not x.startswith("buffer"): a(x)
        lv = [x for x in self.left if x.startswith("buffer")]
        lv += [f"buffer_load_dwordx4 {vr(self.XRS[j],4)}, {vr(VO+j)}, {sr(S_X,4)}, {sr(self.E_COL)} offen" for j in range(2)]
        lv.append(f"buffer_load_dwordx2 {vr(self.XRS[2],2)}, {vr(self.VO8)}, {sr(S_X,4)}, 0 offen offset:256")
        S1 = lambda qb, j: self.S(1, qb, j)
        rounds = [[] for _ in range(6)]
        for qb in range(4):
            rem = [j for j in range(8) if (qb, j) not in self.done_a]
            prs = [j for j in rem if j % 2 == 0 and j + 1 in rem]
            sing = [j for j in rem if (j & ~1) not in prs]
            r_ = 0
            while len(prs) > 1:
                for x, y in zip(prs[0::2], prs[1::2]): rounds[r_].append(f"v_pk_add_f32 {p(S1(qb,x))}, {p(S1(qb,x))}, {p(S1(qb,y))}")
                prs = prs[0::2]; r_ += 1
            for k_, j in enumerate(sing + ([prs[0], prs[0] + 1] if prs else [])): rounds[min(5, max(r_, 2) + k_)].append(f"v_add_f32 {vr(V_L+qb)}, {vr(V_L+qb)}, {vr(S1(qb,j))}")
        for r_ in rounds:
            for x in r_: a(x)
        a(f"v_add_u32 {vr(R1)}, {sr(self.RS1)}, {vr(V_DMA)}\nv_add_u32 {vr(R2)}, {sr(self.RS2)}, {vr(V_DMA)}")
        self.treduce(V_L)
        a(f"ds_write_b32 {vr(self.VLW)}, {vr(V_L)}")
        acc = lambda slot: [f"v_accvgpr_read_b32 {vr(M+i)}, {ar(A_O+36*slot+16+i)}" for i in range(20)]
        a(f"""v_add_u32 {vr(R3)}, {sr(self.RS3)}, {vr(V_DMA)}
        v_add_u32 {vr(LA+1)}, {self.L_L}, {vr(V_DMA)}
        v_and_b32 {vr(LS+1)}, 0xf0, {vr(V_DMA)}
        s_lshl_b32 {sr(T)}, {sr(NB)}, 8
        s_add_u32 {sr(T+8)}, {sr(T)}, {self.L_L}
        v_add_u32 {vr(LS)}, {sr(T+8)}, {vr(LS+1)}""")
        for x in lv: a(x)
        a(f"""s_xor_b32 {sr(T)}, s2, 1
        s_mul_i32 {sr(T)}, {sr(T)}, {IB}
        s_mul_i32 {sr(T+9)}, {sr(NB)}, 5120
        s_add_u32 {sr(T+9)}, {sr(T+9)}, {WS_IB}
        s_add_u32 {sr(T)}, {sr(T)}, {sr(T+9)}
        s_lshl_b32 {sr(T+10)}, {sr(PT)}, 11
        {"" if o.get("oib", 0) else f"s_add_u32 {sr(T+1)}, {sr(T+10)}, {sr(T)}"}
        s_add_u32 {sr(T)}, {sr(T)}, 4096
        s_cmp_eq_u32 {sr(PT)}, 0
        s_cselect_b32 {sr(T)}, 0x40000000, {sr(T)}
        s_mov_b32 {sr(T+2)}, {f32(2.0**100)}
        s_mul_i32 {sr(T+12)}, s2, {IB}
        s_add_u32 {sr(T+12)}, {sr(T+12)}, {sr(T+9)}
        {"" if o.get("oib", 0) else f"s_add_u32 {sr(T+13)}, {sr(T+12)}, {sr(T+10)}"}
        s_waitcnt lgkmcnt(0)
        s_barrier""")
        self.stamp("B1")

        def rd(X, offs):
            L = [[f"ds_read_b128 {vr(X[k][i],4)}, {vr((R1, R2, R3)[k])} offset:{offs[k] + 1024*i}" for i in range(4)] for k in range(3)]
            L8 = [f"ds_read_b128 {vr(X[k][4],4)}, {vr((R1, R2, R3)[k])} offset:8192" for k in range(3)]
            return L, L8

        def adds(X, k, rng):
            return [f"v_pk_add_f32 {p(M+4*i+2*h)}, {p(M+4*i+2*h)}, {p(X[k][i]+2*h)}" for i in rng for h in range(2)]
        X = [[128, 132, 136, 140, 144], [148, 152, 156, 160, 68], [72, 76, 200, 204, 108]]
        PK = 128
        sfl = o.get("sfl", "")
        oib = o.get("oib", 0)
        SI = S_OUT if oib else S_WS
        L, L8 = rd(X, (0, 4096, 0))
        a(f"ds_read_b128 {vr(LA,4)}, {vr(LA+1)}\nds_read_b128 {vr(LS,4)}, {vr(LS)}")
        rest = weave(L[0] + L[1] + L[2], acc(1), 2)
        assert not rest
        a(f"s_mov_b64 exec, {sr(MP1,2)}")
        for x in L8: a(x)
        a(f"""s_mov_b64 exec, -1
        s_waitcnt lgkmcnt(11)
        v_add_f32 {vr(LA)}, {vr(LA)}, {vr(LA+1)}
        v_add_f32 {vr(LA+2)}, {vr(LA+2)}, {vr(LA+3)}
        v_add_f32 {vr(LS)}, {vr(LS)}, {vr(LS+1)}
        v_add_f32 {vr(LA)}, {vr(LA)}, {vr(LA+2)}
        v_add_f32 {vr(LS+2)}, {vr(LS+2)}, {vr(LS+3)}
        v_cmp_nge_f32 vcc, {sr(T+2)}, {vr(LA)}""")
        for x in adds(X, 0, range(4)): a(x)
        a(f"""s_cmp_lg_u64 vcc, 0
        s_cselect_b32 {sr(T+2)}, 1, 0
        s_andn2_b32 {sr(T+2)}, {sr(T+2)}, {sr(S_REDO)}
        s_cbranch_scc1 L_fallback
        v_add_f32 {vr(PK+10)}, {vr(LS)}, {vr(LS+2)}
        v_mov_b32 {vr(PK+11)}, {vr(MK+1)}
        s_waitcnt lgkmcnt(7)""")
        for x in adds(X, 1, range(4)): a(x)
        a("s_waitcnt lgkmcnt(3)")
        a3 = adds(X, 2, range(4))
        cv = [f"v_cvt_pk_bf16_f32 {vr(PK+i)}, {vr(M+2*i)}, {vr(M+2*i+1)}" for i in range(10)]
        for x in a3[:4] + a3[4:6] + cv[:4]: a(x)

        def send(fl):
            a(f"buffer_store_dwordx4 {vr(PK,4)}, {vr(V_DMA)}, {sr(SI,4)}, {sr(S_OS if oib else T+1)} offen {fl}")
            for x in a3[6:] + cv[4:8]: a(x)
            a(f"buffer_store_dwordx4 {vr(PK+4,4)}, {vr(V_DMA)}, {sr(SI,4)}, {sr(S_OS if oib else T+1)} offen offset:1024 {fl}")
            a("s_waitcnt lgkmcnt(0)")
            for kk in range(3):
                for x in adds(XS, kk, [4]): a(x)
            for x in cv[8:]: a(x)
            a(f"buffer_store_dwordx4 {vr(PK+8,4)}, {vr(V_DMA)}, {sr(S_WS,4)}, {sr(T)} offen {fl}")
        XS = X
        self.send = send
        if o.get("xm", 0) and o.get("l2s", 1):
            a(f"s_cmp_eq_u32 {sr(S_SX)}, {sr(S_XC)}\ns_cbranch_scc0 L_far")
            send(sfl)
            a.label("L_sent")
        else: send("sc1")
        self.stamp("sent")
        a(f"s_cmp_eq_u32 {sr(S_VAL)}, 0\ns_cbranch_scc1 L_fin")
        C, UP = 140, 68
        IN = [(200, 204, 226), (164, 168, 252), (192, 196, 172)]
        VXW, VXR, VF, LO = 78, 79, 10, 36
        wr = [self.stage(*e) for e in self.own]

        def inbox(k):
            return [f"buffer_load_dwordx4 {vr(IN[k][0],4)}, {vr(V_DMA)}, {sr(SI,4)}, {sr(S_OR if oib else T+13)} offen sc1",
                    f"buffer_load_dwordx4 {vr(IN[k][1],4)}, {vr(V_DMA)}, {sr(SI,4)}, {sr(S_OR if oib else T+13)} offen offset:1024 sc1",
                    f"buffer_load_dwordx4 {vr(IN[k][2],4)}, {vr(V_DMA+1)}, {sr(S_WS,4)}, {sr(T+12)} offen sc1"]
        for x in inbox(0): a(x)
        n0 = len(a.lines)
        a(f"""s_lshl_b32 {sr(T)}, {sr(NB)}, 12
        s_add_u32 {sr(T)}, {sr(T)}, {sr(T+10)}
        s_add_u32 {sr(T)}, {sr(T)}, {self.X1B}
        v_add_u32 {vr(VXW)}, {sr(T)}, {vr(V_DMA)}
        s_lshl_b32 {sr(T)}, {sr(NB)}, 9
        s_add_u32 {sr(T)}, {sr(T)}, {self.X1B + 4096}
        v_add_u32 {vr(VXR)}, {sr(T)}, {vr(self.VL8)}
        s_lshl_b32 {sr(T)}, {sr(PT)}, 12
        s_add_u32 {sr(T)}, {sr(T)}, {self.X1B}
        v_add_u32 {vr(VF)}, {sr(T)}, {vr(V_DMA)}
        v_xor_b32 {vr(VF+1)}, 4096, {vr(VF)}
        s_lshl_b32 {sr(T)}, {sr(PT)}, 9
        s_add_u32 {sr(T)}, {sr(T)}, {self.X1B + 4096}
        v_add_u32 {vr(VF+2)}, {sr(T)}, {vr(self.VL8)}
        v_xor_b32 {vr(VF+3)}, 512, {vr(VF+2)}
        v_subrev_u32 {vr(R2)}, {2*SLOT}, {vr(R2)}
        v_subrev_u32 {vr(R3)}, {2*SLOT}, {vr(R3)}
        s_waitcnt vmcnt(9)""")
        self.stamp("cv0")
        un = [f"v_lshlrev_b32 {vr(M+2*i)}, 16, {vr(U+i)}\nv_and_b32 {vr(M+1+2*i)}, 0xffff0000, {vr(U+i)}" for i in range(10)]
        w8 = self.w8_loads(self.WO[2], SW + 1)
        for k, src in enumerate((GM, G0, GP)):
            for i in range(5):
                d = vr(C + 4 * i, 4)
                a(f"v_mfma_f32_16x16x16_bf16 {d}, {vr(self.dwf(k, i),2)}, {vr(src+2*i,2)}, {'0' if k == 0 else d}")
                a(w8.pop(0) if i in (0, 3) and w8 else un.pop(0))
        self.stamp("cv1")
        a(f"v_and_b32 {vr(LO+1)}, 0xf0, {vr(V_DMA)}\nv_add_u32 {vr(LO)}, {sr(T+8)}, {vr(LO+1)}\ns_nop 1")
        for i in range(10): a(f"v_pk_mul_f32 {p(C+2*i)}, {p(C+2*i)}, {p(M+2*i)}")
        for i in range(10):
            a(f"v_cvt_pk_bf16_f32 {vr(UP+i)}, {vr(C+2*i)}, {vr(C+2*i+1)}")
        body = a.lines[n0:]; del a.lines[n0:]
        step = max(1, len(body) // len(wr))
        for i, l in enumerate(body):
            if i % o.get("wstep", step) == 0 and wr: a(wr.pop(0))
            a.lines.append(l)
        for x in wr: a(x)
        ac = acc(3)
        a(f"ds_write_b128 {vr(VXW)}, {vr(UP,4)} offset:{X2O}")
        for x in ac[:6]: a(x)
        a(f"ds_write_b128 {vr(VXW)}, {vr(UP+4,4)} offset:{X2O + 1024}")
        for x in ac[6:12]: a(x)
        a(f"""s_mov_b64 exec, {sr(MP1,2)}
        ds_write_b64 {vr(VXR)}, {vr(UP+8,2)} offset:{X2O}
        s_mov_b64 exec, -1""")
        self.stamp("x2")
        for x in inbox(1): a(x)
        for x in ac[12:]: a(x)
        a("s_waitcnt lgkmcnt(0)\ns_barrier")
        self.stamp("B2")
        X = [[128, 132, 136, 140, 144], [148, 152, 156, 160, 188], [16, 20, 24, 28, 32]]
        L, L8 = rd(X, (4096, 4096, 0))
        BU = [[("v", r) for r in (100, 104, 108, 112, 116)], [("v", r) for r in (118, 122, 180, 184, 126)]]
        BO = [self.frag("v", 128), self.frag("v", 146)]
        AB = 80

        def bfrags(dst, off):
            out = []
            for s in range(5):
                for j in range(2):
                    out.append(f"ds_read_b128 {self.rg(dst[j][s],4)}, {vr(VF+j)} offset:{off + 1024*s}" if s < 4 else f"ds_read_b64 {self.rg(dst[j][4],2)}, {vr(VF+2+j)} offset:{off}")
            return out

        def fg(W, Bf):
            out = []
            for s in range(5):
                for u, (tt, j) in enumerate(units):
                    d = vr(AB + 4 * u, 4)
                    if s < 4: out.append(f"v_mfma_f32_16x16x32_bf16 {d}, {self.rg(W[tt][s],4)}, {self.rg(Bf[j][s],4)}, {d}")
                    else: out.append(f"v_mfma_f32_16x16x16_bf16 {d}, {self.rg(W[tt][4],2)}, {self.rg(Bf[j][4],2)}, {d}")
            return out
        xu = []
        for u, (tt, j) in enumerate(units):
            for h in range(2):
                x = self.XRS[j] + 2 * tt + h if tt < 2 else self.XRS[2] + h
                xu += [f"v_lshlrev_b32 {vr(AB+4*u+2*h)}, 16, {vr(x)}", f"v_and_b32 {vr(AB+1+4*u+2*h)}, 0xffff0000, {vr(x)}"]
        a("s_waitcnt vmcnt(14)")
        weave(bfrags(BU, X2O), xu, 2)
        pl = lambda k, i, e: f"v_add_f32 {vr(M+4*i+e)}, {vr(M+4*i+e)}, {vr(X[k][i]+e)}"
        ds = L[0] + L[1] + L[2] + [f"s_not_b64 exec, {sr(MP1,2)}\n" + "\n".join(L8) + "\ns_mov_b64 exec, -1", f"ds_read_b128 {vr(LO,4)}, {vr(LO)} offset:512"]
        nis = [1] * 12 + [3, 1]
        gap = [[] for _ in range(25)]
        tot = [10]
        for g in range(25): tot.append(tot[-1] + (nis[g] if g < 14 else 0))
        A0 = [pl(0, i, e) for i in range(4) for e in range(4)]
        A1 = [pl(1, i, e) for i in range(4) for e in range(4)]
        ib = inbox(2)
        for g, m in enumerate(fg(self.WD, BU)):
            if g % 5 == 0: a(f"s_waitcnt lgkmcnt({min(15, tot[g] - 2 * (g // 5 + 1))})")
            a(m)
            if g == 8: a(f"s_waitcnt lgkmcnt({tot[g] - 14})")
            if g == 16: a(f"s_waitcnt lgkmcnt({tot[g] - 18})")
            if g < 14: a(ds[g])
            if 8 <= g < 14: a(A0.pop(0))
            elif g in (14, 18, 22): a(ib.pop(0))
            elif g >= 14:
                for _ in range(2): a(A0.pop(0) if A0 else A1.pop(0))
        assert not A0 and len(A1) % 2 == 0
        n1 = 16 - len(A1)
        for e in range(n1, 16, 2): a(f"v_pk_add_f32 {p(M+e)}, {p(M+e)}, {p(X[1][e//4]+e%4)}")
        a("s_waitcnt lgkmcnt(0)")
        for x in adds(X, 2, range(4)): a(x)
        a(f"v_add_f32 {vr(LO)}, {vr(LO)}, {vr(LO+1)}\nv_add_f32 {vr(LO+2)}, {vr(LO+2)}, {vr(LO+3)}")
        for kk in range(3):
            for x in adds(X, kk, [4]): a(x)
        a(f"s_mov_b32 {sr(T+2)}, 0\nv_add_f32 {vr(LO)}, {vr(LO)}, {vr(LO+2)}")
        self.stamp("own")
        w, PU = 40, 128
        mo = MK + 3

        def chk(k):
            r = [IN[k][q] + i for q in range(3) for i in range(4)]
            c = [f"v_max3_u32 v46, {vr(r[0])}, {vr(r[1])}, {vr(r[2])}", f"v_max3_u32 v47, {vr(r[3])}, {vr(r[4])}, {vr(r[5])}"]
            for q in range(3): c.append(f"v_max3_u32 v{46+(q&1)}, v{46+(q&1)}, {vr(r[6+2*q])}, {vr(r[7+2*q])}")
            return c + ["v_max_u32 v46, v46, v47", "v_cmp_eq_u32 vcc, -1, v46"]

        def take(k, with_chk):
            r = [IN[k][q] + i for q in range(3) for i in range(4)]
            lp_, mp = r[10], r[11]
            wt = [f"v_min_f32 {vr(w)}, {vr(mo)}, {vr(mp)}", f"v_sub_f32 {vr(w+2)}, {vr(w)}, {vr(mp)}", f"v_sub_f32 {vr(w)}, {vr(w)}, {vr(mo)}",
                  f"v_exp_f32 {vr(w+2)}, {vr(w+2)}", f"v_exp_f32 {vr(w)}, {vr(w)}", f"v_mul_f32 {vr(w+4)}, {vr(w+2)}, {vr(lp_)}",
                  f"v_fmac_f32 {vr(w+4)}, {vr(w)}, {vr(LO)}", f"v_rcp_f32 {vr(w+4)}, {vr(w+4)}", f"v_mul_f32 {vr(w)}, {vr(w)}, {vr(w+4)}",
                  f"v_mul_f32 {vr(w+2)}, {vr(w+2)}, {vr(w+4)}"]
            un = []
            for i in range(10): un += [f"v_lshlrev_b32 {vr(PU+2*i)}, 16, {vr(r[i])}", f"v_and_b32 {vr(PU+1+2*i)}, 0xffff0000, {vr(r[i])}"]
            c = chk(k) if with_chk else []
            for i in range(10):
                a(wt[i])
                if c: a(c.pop(0))
                a(un.pop(0)); a(un.pop(0))
        a("s_waitcnt vmcnt(6)")
        take(0, True)
        a("s_cmp_eq_u64 vcc, 0\ns_cbranch_scc0 L_poll2")
        a.label("L_got")
        self.stamp("got")
        for i in range(10): a(f"v_pk_mul_f32 {p(M+2*i)}, {p(M+2*i)}, {p(w)} op_sel_hi:[1,0]")
        for i in range(10): a(f"v_pk_fma_f32 {p(M+2*i)}, {p(PU+2*i)}, {p(w+2)}, {p(M+2*i)} op_sel_hi:[1,0,1]")
        for i in range(10):
            a(f"v_cvt_pk_bf16_f32 {vr(UP+i)}, {vr(M+2*i)}, {vr(M+2*i+1)}")
            if i == 3: a(f"ds_write_b128 {vr(VXW)}, {vr(UP,4)}")
            if i == 7: a(f"ds_write_b128 {vr(VXW)}, {vr(UP+4,4)} offset:1024")
        a(f"""s_not_b64 exec, {sr(MP1,2)}
        ds_write_b64 {vr(VXR)}, {vr(UP+8,2)}
        s_mov_b64 exec, -1
        s_waitcnt lgkmcnt(0)
        s_barrier""")
        self.stamp("B3")
        for x in bfrags(BO, 0): a(x)
        for g, m in enumerate(fg(self.WO, BO)):
            if g % 5 == 0: a(f"s_waitcnt lgkmcnt({8 - 2 * (g // 5)})" + ("\ns_nop 0" if g == 20 else ""))
            a(m)
        self.stamp("gem")
        a("s_nop 3")
        for j in range(2):
            for tt in range(2):
                u = 2 * tt + j
                for h in range(2): a(f"v_cvt_pk_bf16_f32 {vr(16+4*j+2*tt+h)}, {vr(AB+4*u+2*h)}, {vr(AB+4*u+2*h+1)}")
            a(f"buffer_store_dwordx4 {vr(16+4*j,4)}, {vr(VO+j)}, {sr(S_OUT,4)}, {sr(self.E_COL)} offen {o.get('ofl', '')}")
        a(f"s_cmp_ge_u32 {sr(S_W)}, 2\ns_cbranch_scc1 L_fin")
        for h in range(2): a(f"v_cvt_pk_bf16_f32 {vr(24+h)}, {vr(AB+16+2*h)}, {vr(AB+16+2*h+1)}")
        a(f"buffer_store_dwordx2 v[24:25], {vr(self.VO8)}, {sr(S_OUT,4)}, 0 offen offset:256 {o.get('ofl', '')}")
        self.stamp("fin")

        def poll2():
            a.label("L_poll2")
            for k in (1, 2, 0):
                for x in inbox((k + 2) % 3): a(x)
                a("s_waitcnt vmcnt(6)")
                for x in chk(k): a(x)
                a(f"s_add_u32 {sr(T+2)}, {sr(T+2)}, 1\ns_cmp_eq_u64 vcc, 0\ns_cbranch_scc1 L_take{k}")
            a(f"s_cmp_lt_u32 {sr(T+2)}, 0x10000\ns_cbranch_scc1 L_poll2")
            for k in (0, 1, 2):
                a.label(f"L_take{k}")
                take(k, False)
                a("s_branch L_got")
            if o.get("xm", 0) and o.get("l2s", 1):
                a.label("L_far")
                send("sc1")
                a("s_branch L_sent")
        self.poll2 = poll2

    def fallback(self):
        a = self.a
        T = S_T
        MXR = 208
        a.label("L_fallback")
        a(f"""s_waitcnt vmcnt(0) lgkmcnt(0)
        s_barrier
        s_mov_b32 {sr(S_REDO)}, 1
        s_mov_b32 {sr(S_UG)}, 0x40000000
        {self.xa_srd()}
        s_mov_b32 {sr(S_TOFF)}, {sr(S_LB)}
        s_cmp_eq_u32 {sr(S_DUM)}, 4
        s_cselect_b32 {sr(S_CNT)}, 15, 16""")
        for i in range(4): a(f"v_mov_b32 {vr(MXR+i)}, 0xff800000")
        a.label("L_fb1")
        for g in self.tile_groups(0): a(g)
        a("s_waitcnt vmcnt(0)")
        for x in self.k_reads(0): a(x)
        a("s_waitcnt lgkmcnt(0)")
        for m in self.qk_mfmas(0, czero=True): a(m)
        a("s_nop 7")
        for qb in range(4):
            for i in range(0, 8, 2): a(f"v_max3_f32 {vr(MXR+qb)}, {vr(MXR+qb)}, {vr(self.S(0,qb,i))}, {vr(self.S(0,qb,i+1))}")
        a(f"s_sub_u32 {sr(S_CNT)}, {sr(S_CNT)}, 1\ns_cmp_lg_u32 {sr(S_CNT)}, 0\ns_cbranch_scc1 L_fb1")
        self.greduce([MXR + i for i in range(4)], MXR + 4, "v_max_f32")
        a(f"""v_and_b32 {vr(MXR+4)}, 15, v0
        v_lshlrev_b32 {vr(MXR+4)}, 4, {vr(MXR+4)}
        v_add_u32 {vr(MXR+4)}, {L_SP}, {vr(MXR+4)}
        s_lshl_b32 {sr(T)}, {sr(S_W)}, 2
        s_xor_b32 {sr(T+1)}, {sr(self.NB)}, 1
        v_lshl_add_u32 {vr(MXR+5)}, {sr(self.NB)}, 8, {vr(MXR+4)}
        v_lshl_add_u32 {vr(MXR+4)}, {sr(T+1)}, 8, {vr(MXR+4)}
        v_add_u32 {vr(MXR+6)}, {sr(T)}, {vr(MXR+4)}
        v_add_u32 {vr(MXR+7)}, {sr(T)}, {vr(MXR+5)}""")
        for qb in range(4): a(f"ds_write_b32 {vr(MXR+6+(qb&1))}, {vr(MXR+qb)} offset:{512*(qb>>1)}")
        a("s_waitcnt lgkmcnt(0)\ns_barrier")
        for qb in range(4): a(f"ds_read_b128 {vr(16+4*qb,4)}, {vr(MXR+4+(qb&1))} offset:{512*(qb>>1)}")
        a(f"s_mov_b32 {sr(S_TOFF)}, {sr(S_LB)}")
        for g in self.tile_groups(0) + self.tile_groups(1) + ([] if self.o.get("gs", 0) else self.tile_groups(2)[:8]): a(g)
        a("s_waitcnt lgkmcnt(0)")
        for qb in range(4):
            r = 16 + 4 * qb
            a(f"v_max_f32 {vr(r)}, {vr(r)}, {vr(r+1)}\nv_max3_f32 {vr(r)}, {vr(r)}, {vr(r+2)}, {vr(r+3)}")
            a(f"v_sub_f32 {vr(self.MK+qb)}, 0, {vr(r)}")
        a("s_waitcnt vmcnt(0)")
        for x in self.k_reads(0, V_V): a(x)
        self.loop_init(False)
        if self.o.get("gs", 0): self.loop_init(True)
        a("s_branch L_go")


if __name__ == "__main__":
    opt = json.loads(sys.argv[2]) if len(sys.argv) > 2 else {}
    g = G(opt)
    txt = g.build()
    if opt.get("align", 1):
        from align import align
        for n2 in (1, 2):
            try:
                txt, st = align(txt, chains=[(1, "L_tr")] * 3 + [(1, "L_tr2"), (n2, "L_tr2")] if opt.get("touch", 1) else None)
                break
            except AssertionError as e:
                if n2 == 2: raise
        print("align: promoted %d, padded %d, left %d" % st)
    txt = txt.replace("\n", "\n; stamps " + json.dumps(g.stnames) + "\n; map %d rot %d\n" % (g.mp, opt.get("rsh", 14) if opt.get("rot") == 1 else 0), 1)
    open(sys.argv[1], "w").write(txt)
```

```python
import sys, json, math
from common import Asm, vr, ar, sr, kernel_header, kernel_desc
from lay import *

NAME = "standalone__conformer_family_branchformer__speech_kernel"
NH = 2
NWG = 252 + NH
CHAINS = (3, 3)
RING = 4
LDS_RING = RING * TILE
LDS_TOTAL = 163840
SLOT = 4 * TILE
L_WU, L_WQ, L_WK = 0, 41472, 82944
L_XX, L_XR = 126976, 143360
L_QD = 18432
L_XS = L_XX + L_QD
L_MX = 81920
L_PC = LDS_TOTAL - 256
L_DUMP = 123904
L_SP = 147456

S_X, S_WS, S_XA, S_DB, S_W1, S_W2, S_OUT, S_DW = 8, 12, 16, 20, 24, 28, 32, 36
S_W, S_B, S_H, S_QB, S_TOFF, S_CNT, S_DUM, S_LB, S_TOWN, S_TSND, S_VAL, S_REDO = range(40, 52)
S_UG, S_CL = 25, 26
S_PH, S_XC, S_SX = 6, 74, 73
RBASE, RSTR = 12 << 20, 5 << 19
S_RO = 75
S_OS, S_OR = 28, 29
S_N, S_FB = 98, 99
S_INC = 24
S_T = 52
S_ST = 76

V_KA, V_VA, V_VR, V_DMA, V_L, V_VB = 1, 3, 5, 6, 10, 14
V_S, V_CI, V_P, V_K, V_V = 16, 80, 96, 128, 164
V_HI = 200
V_X = 208
A_O, A_Q, A_F = 0, 144, 216

LOG2E = 1.4426950408889634
import struct
def f32(x): return "0x%08x" % struct.unpack("<I", struct.pack("<f", x))[0]


class BAsm(Asm):
    def __init__(self):
        super().__init__()
        self.bg, self.every, self.cnt, self.skip = [], 0, 0, 0

    def __call__(self, s):
        for l in s.split("\n"):
            l = l.strip()
            if not l: continue
            self.lines.append("    " + l)
            if self.bg and self.every and not l.startswith(("s_nop", "v_mov_b32", "v_exp", "v_rcp", "v_rsq", "v_sqrt", "s_add_u32 m0")):
                self.cnt += 1
                if self.cnt >= self.every:
                    self.cnt = 0
                    self.pop()

    def pop(self):
        for x in self.bg.pop(0).split("\n"): self.lines.append("    " + x)

    def flush(self):
        while self.bg: self.pop()
        self.every = 0


WS_FM, WS_M = 250 * TILE + 250 * 256, 250 * TILE + 260 * 256


class G:
    def __init__(self, opt):
        global NH, NWG, L_XX, L_XR, L_XS, L_MX
        if opt.get("mh"):
            NH, NWG = 4, 256
            L_XX, L_XR, L_MX = 2 * SLOT, 2 * SLOT + 16384, 3 * SLOT
            L_XS = L_XX + L_QD
        self.o = opt
        self.a = BAsm()
        self.nst = 0
        self.fill = []

    def stamp(self, name):
        if self.o.get("stamps"):
            if name in self.o.get("skipst", []): return
            if "only" in self.o and name not in self.o["only"]: return
            if self.nst >= 11: return
            self.a(f"{'s_memtime' if self.o.get('cyc') else 's_memrealtime'} {sr(S_ST + 2*self.nst, 2)}")
            self.stnames.append(name)
            self.nst += 1

    def srd(self, dst, lo, hi, n):
        if dst == S_WS and self.o.get("wsoff"):
            self.a(f"s_add_u32 {sr(dst)}, {sr(lo)}, {self.o['wsoff']}\ns_addc_u32 {sr(dst+1)}, {sr(hi)}, 0\ns_mov_b32 {sr(dst+2)}, {n}\ns_mov_b32 {sr(dst+3)}, 0x20000")
            return
        self.a(f"s_mov_b32 {sr(dst)}, {sr(lo)}\ns_mov_b32 {sr(dst+1)}, {sr(hi)}\ns_mov_b32 {sr(dst+2)}, {n}\ns_mov_b32 {sr(dst+3)}, 0x20000")

    def greduce(self, regs, tmp, op="v_add_f32"):
        a = self.a
        for sw in ("32", "16"):
            for i, r in enumerate(regs): a(f"v_mov_b32 {vr(tmp+i)}, {vr(r)}")
            if len(regs) < 3: a("s_nop 1" if len(regs) == 1 else "s_nop 0")
            for i, r in enumerate(regs): a(f"v_permlane{sw}_swap_b32 {vr(r)}, {vr(tmp+i)}")
            for i, r in enumerate(regs): a(f"{op} {vr(r)}, {vr(r)}, {vr(tmp+i)}")

    def treduce(self, r, op="v_add_f32"):
        a = self.a
        a(f"v_permlane32_swap_b32 {vr(r)}, {vr(r+2)}\nv_permlane32_swap_b32 {vr(r+1)}, {vr(r+3)}")
        a(f"{op} {vr(r)}, {vr(r)}, {vr(r+2)}\n{op} {vr(r+1)}, {vr(r+1)}, {vr(r+3)}\ns_nop 1")
        a(f"v_permlane16_swap_b32 {vr(r)}, {vr(r+1)}\n{op} {vr(r)}, {vr(r)}, {vr(r+1)}")

    def rbf(self, r):
        self.a(f"v_cvt_pk_bf16_f32 {vr(r)}, {vr(r)}, {vr(r)}\nv_lshlrev_b32 {vr(r)}, 16, {vr(r)}")

    def ln_tail(self, F, out, t, mimic):
        a = self.a
        p = lambda r: vr(r, 2)
        self.greduce([t, t + 1], t + 2)
        a(f"v_mul_f32 {vr(t+2)}, {f32(1.0/144)}, {vr(t)}")
        a(f"v_mul_f32 {vr(t+3)}, {vr(t+2)}, {vr(t+2)}")
        a(f"v_mov_b32 {vr(t+4)}, {f32(1.0/144)}")
        a(f"v_fma_f32 {vr(t)}, {vr(t+1)}, {vr(t+4)}, -{vr(t+3)}")
        a(f"v_max_f32 {vr(t)}, 0, {vr(t)}")
        if mimic:
            self.rbf(t)
            self.rbf(t + 2)
            a(f"v_add_f32 {vr(t)}, {f32(1e-5)}, {vr(t)}")
            self.rbf(t)
            a(f"v_sqrt_f32 {vr(t)}, {vr(t)}\ns_nop 0")
            self.rbf(t)
            a(f"v_rcp_f32 {vr(t)}, {vr(t)}\ns_nop 0")
        else:
            a(f"v_add_f32 {vr(t)}, {f32(1e-5)}, {vr(t)}")
            a(f"v_rsq_f32 {vr(t)}, {vr(t)}\ns_nop 0")
        a(f"v_mul_f32 {vr(t+2)}, -{vr(t+2)}, {vr(t)}")
        for i in range(18):
            a(f"v_pk_fma_f32 {p(F+2*i)}, {p(F+2*i)}, {p(t)}, {p(t+2)} op_sel_hi:[1,0,0]")
        for i in range(18):
            a(f"v_cvt_pk_bf16_f32 {vr(out+i)}, {vr(F+2*i)}, {vr(F+2*i+1)}")

    def ln_packed(self, X, F, out, t):
        a = self.a
        a(f"v_mov_b32 {vr(t+6)}, 0x3f803f80")
        for k in range(4): a(f"v_mov_b32 {vr(t+k)}, 0")
        for i in range(18):
            a(f"v_dot2_f32_bf16 {vr(t+2*(i&1))}, {vr(X+i)}, {vr(t+6)}, {vr(t+2*(i&1))}")
            a(f"v_dot2_f32_bf16 {vr(t+1+2*(i&1))}, {vr(X+i)}, {vr(X+i)}, {vr(t+1+2*(i&1))}")
        for i in range(2):
            a(f"v_lshlrev_b32 {vr(F+2*i)}, 16, {vr(X+i)}\nv_and_b32 {vr(F+2*i+1)}, 0xffff0000, {vr(X+i)}")
        a(f"v_pk_add_f32 {vr(t,2)}, {vr(t,2)}, {vr(t+2,2)}")
        un = []
        for i in range(2, 18):
            un.append(f"v_lshlrev_b32 {vr(F+2*i)}, 16, {vr(X+i)}\nv_and_b32 {vr(F+2*i+1)}, 0xffff0000, {vr(X+i)}")
        sv = (a.bg, a.every, a.cnt, a.skip)
        n0 = len(a.lines)
        a.bg, a.every = [], 0
        self.ln_tail(F, out, t, True)
        tail = a.lines[n0:]
        del a.lines[n0:]
        a.bg, a.every, a.cnt, a.skip = sv
        k = next(i for i, l in enumerate(tail) if "v_pk_fma" in l)
        for i, l in enumerate(tail[:k]):
            if "s_nop" in l and un: continue_nop = True
            a(l)
            if un and not l.strip().startswith("s_nop"): a(un.pop(0))
        while un: a(un.pop(0))
        for l in tail[k:]: a(l)

    def ln_f32(self, F, out, t):
        a = self.a
        p = lambda r: vr(r, 2)
        a(f"v_pk_add_f32 {p(t)}, {p(F)}, {p(F+2)}\nv_pk_add_f32 {p(t+2)}, {p(F+4)}, {p(F+6)}")
        a(f"v_pk_mul_f32 {p(t+4)}, {p(F)}, {p(F)}\nv_pk_mul_f32 {p(t+6)}, {p(F+2)}, {p(F+2)}")
        for i in range(2, 18):
            if i >= 4: a(f"v_pk_add_f32 {p(t+2*(i&1))}, {p(t+2*(i&1))}, {p(F+2*i)}")
            a(f"v_pk_fma_f32 {p(t+4+2*(i&1))}, {p(F+2*i)}, {p(F+2*i)}, {p(t+4+2*(i&1))}")
        a(f"v_pk_add_f32 {p(t)}, {p(t)}, {p(t+2)}\nv_pk_add_f32 {p(t+4)}, {p(t+4)}, {p(t+6)}")
        a(f"v_add_f32 {vr(t)}, {vr(t)}, {vr(t+1)}\nv_add_f32 {vr(t+1)}, {vr(t+4)}, {vr(t+5)}")
        self.ln_tail(F, out, t, False)

    def gemm_u(self, AF, rf, Bs, ACC, afr, bfr, post, vm_items=(), other=(), lead=7, vm0=0, vmsp=4, at={}, lastk=0, pre={}):
        a = self.a
        units = [(0, j) for j in range(4)] + [(1, j) for j in range(4)] + [(2, 0)]
        seq, dl = [], {}
        bs = lambda j, o_, n: self.rg((Bs[j][0], Bs[j][1] + o_), n)
        rem = lambda u: (f"v_mfma_f32_16x16x16_bf16 {vr(ACC+4*u,4)}, {rf(AF+18*units[u][0]+16,2)}, {bs(units[u][1],16,2)}, {vr(ACC+4*u,4)}", u)
        A = [afr(t) for t in range(3)]
        Bf = [bfr(j) for j in range(4)]

        def use(t, j, s, k):
            for x in (A[t][2 * s:2 * s + 2] if s < 4 else A[t][8:]) + ([Bf[j][s]] if Bf[j] else []): dl.setdefault(x, k)
        for g in range(4):
            for s in range(4):
                for u in range(3 * g, 3 * g + 3) if g < 3 else []:
                    t, j = units[u]
                    d = vr(ACC + 4 * u, 4)
                    use(t, j, s, len(seq))
                    seq.append((f"v_mfma_f32_16x16x32_bf16 {d}, {rf(AF+18*t+4*s,4)}, {bs(j,4*s,4)}, {'0' if s == 0 else d}", None))
                if s == 0 and g > 0:
                    for u in range(3 * g - 3, 3 * g):
                        use(units[u][0], units[u][1], 4, len(seq)); seq.append(rem(u))
        last = seq[-3:]; seq = seq[:-3]
        ds = sorted(dl.items(), key=lambda e: e[1]) + [(x, 99) for x in other]
        vm_items = list(vm_items)
        lastvm = vm0 - vmsp
        order, ready, q, done = [], [], [], 0

        def issue():
            x, k_ = ds.pop(0); a(x); order.append(k_)

        def wait(k):
            nonlocal done
            idx = [i_ for i_, k_ in enumerate(order) if k_ <= k]
            if idx and max(idx) + 1 > done:
                a(f"s_waitcnt lgkmcnt({min(15, len(order) - 1 - max(idx))})"); done = max(idx) + 1
        while ds and ds[0][1] < 6: issue()
        for k, (m, fin) in enumerate(seq):
            assert not ds or ds[0][1] > k, (k, ds[0])
            wait(k)
            if k in pre: pre[k]()
            a(m)
            for u_, kk, ln in list(ready):
                if k - kk >= 4 and sum(1 for l in a.lines[ln:] if not l.strip().startswith("s_waitcnt")) >= 8: q += post(u_); ready.remove((u_, kk, ln))
            if fin is not None: ready.append((fin, k, len(a.lines)))
            if k in at: at[k]()
            due = sum(1 for x, k_ in ds if k_ <= k + lead)
            if due == 0 and vm_items and k >= lastvm + vmsp and (len(vm_items) > 1 or k >= lastk):
                a(vm_items.pop(0)); lastvm = k; continue
            cap = 2
            for _ in range(min(due, 3)): issue(); cap -= 1
            if cap == 2:
                if q and q[0].startswith("ds_"): a(q.pop(0)); order.append(99); cap -= 1
                elif ds: issue(); cap -= 1
            while cap > 0 and q and not q[0].startswith("ds_"):
                a(q.pop(0)); cap -= 1
        assert not ready
        while ds: issue()
        wait(98)
        for x in vm_items: a(x)
        for x in q[:4]: a(x)
        a(f"s_nop {max(0, 4 - len(q[:4]))}")
        for m, _ in last: a(m)
        for x in q[4:]: a(x)
        a(f"s_nop {max(0, 6 - len(q[4:]))}")
        for u in range(6, 9):
            for x in post(u): a(x)

    def gemm(self, reads, B, ACC, AF, late=(), at={}, per=2):
        a = self.a
        buf = lambda T: 18 * (T % 6)
        ng = 3 * (4 * per + 1)

        def grp(g):
            r = [reads(T, buf(T)) for T in range(3 * g, 3 * g + 3)]
            return [r[t][per * s + u] for s in range(4) for t in range(3) for u in range(per)] + [r[t][4 * per] for t in range(3)]
        rem = lambda T: f"v_mfma_f32_16x16x16_bf16 {vr(ACC+4*T,4)}, {ar(buf(T)+16,2)}, {vr(B+16,2)}, {vr(ACC+4*T,4)}"
        pend = grp(0) + grp(1) + grp(2) + list(late)
        issued = k = 0

        def issue(n):
            nonlocal issued
            for _ in range(n):
                if issued < len(pend): a(pend[issued]); issued += 1

        def mf(x):
            nonlocal k
            a(x); issue(per if per == 2 else (2 if k % 4 == 0 else 1))
            if k in at: a(at[k])
            k += 1
        issue(self.o.get('look', 12) if per == 2 else self.o.get('look1', 8))
        for g in range(3):
            for s in range(4):
                need = ng * g + 3 * per * (s + 1)
                a(f"s_waitcnt lgkmcnt({min(15, issued - need)})")
                for T in range(3 * g, 3 * g + 3):
                    d = vr(ACC + 4 * T, 4)
                    mf(f"v_mfma_f32_16x16x32_bf16 {d}, {ar(buf(T)+4*s,4)}, {vr(B+4*s,4)}, {'0' if s == 0 else d}")
                if s == 0 and g > 0:
                    for T in range(3 * g - 3, 3 * g): mf(rem(T))
                if g == 1 and s == 0: assert issued <= 2 * ng + 6 * per, "group 2 overwrites group 0 too early"
        issue(99)
        a(f"s_waitcnt lgkmcnt({len(late)})\ns_nop 2")
        for T in range(6, 9): a(rem(T))
        a("s_nop 7")

    def tr_reads(self, ad, rf=ar):
        def f(T, dst):
            out = []
            for s in range(4):
                for u in range(2):
                    out.append(f"ds_read_b64_tr_b16 {rf(dst+4*s+2*u,2)}, {vr(ad+u)} offset:{9216*s + 32*T}")
            out.append(f"ds_read_b64_tr_b16 {rf(dst+16,2)}, {vr(ad+2)} offset:{36864 + 32*T}")
            return out
        return f

    def row_reads(self, ad, sw=None):
        def f(T, dst):
            r = ad if sw is None or T == 8 else sw[T & 1]
            out = []
            for s in range(4):
                for u in range(2):
                    out.append(f"ds_read_b64 {ar(dst+4*s+2*u,2)}, {vr(r)} offset:{4864*T + 64*s + 32*u}")
            out.append(f"ds_read_b64 {ar(dst+16,2)}, {vr(r)} offset:{4864*T + 256}")
            return out
        return f

    def dma_rows(self, jobs, cpr, rstride, vo, vc, n_first, first_waves, lab):
        a = self.a
        mul = {18: 3641, 19: 3450}[cpr]
        dr, dc = 256 // cpr, 256 % cpr
        a(f"s_lshl_b32 {sr(S_T)}, {sr(S_W)}, 6")
        a(f"v_add_u32 {vr(vc)}, {sr(S_T)}, v0")
        a(f"v_mul_u32_u24 {vr(vo)}, {mul}, {vr(vc)}")
        a(f"v_lshrrev_b32 {vr(vo)}, 16, {vr(vo)}")
        a(f"v_mul_u32_u24 {vr(vc+1)}, {cpr}, {vr(vo)}")
        a(f"v_sub_u32 {vr(vc)}, {vr(vc)}, {vr(vc+1)}")
        a(f"v_mul_u32_u24 {vr(vo)}, {rstride}, {vr(vo)}")
        a(f"v_lshl_add_u32 {vr(vo)}, {vr(vc)}, 4, {vr(vo)}")
        a(f"s_lshl_b32 {sr(S_T)}, {sr(S_W)}, 10")
        a(f"v_mov_b32 {vr(vc+1)}, {rstride - 16*cpr}")
        for k in range(n_first):
            if k == n_first - 1:
                a(f"s_cmp_ge_u32 {sr(S_W)}, {first_waves}\ns_cbranch_scc1 {lab}")
            for srd, so, lb in jobs:
                a(f"s_add_u32 m0, {sr(S_T)}, {lb + 4096*k}")
                a("s_nop 0")
                a(f"buffer_load_dwordx4 {vr(vo)}, {sr(srd,4)}, {so} offen lds")
            if k < n_first - 1:
                a(f"v_add_u32 {vr(vc)}, {dc}, {vr(vc)}")
                a(f"v_cmp_le_u32 vcc, {cpr}, {vr(vc)}")
                a(f"v_add_u32 {vr(vo)}, {dr*rstride + 16*dc}, {vr(vo)}")
                a(f"v_subrev_u32 {vr(vc+2)}, {cpr}, {vr(vc)}")
                a(f"v_cndmask_b32 {vr(vc)}, {vr(vc)}, {vr(vc+2)}, vcc")
                a(f"v_cndmask_b32 {vr(vc+2)}, 0, {vr(vc+1)}, vcc")
                a(f"v_add_u32 {vr(vo)}, {vr(vo)}, {vr(vc+2)}")
        a.label(lab)

    def voff_table(self, dst, cpr, rstride, vc, step=256):
        a = self.a
        mul = {18: 29128, 19: 27595}[cpr]
        n = len(dst)
        a(f"s_mov_b32 {sr(S_T)}, {rstride - 16*cpr}")
        a(f"v_mul_u32_u24 {vr(dst[0])}, {mul}, {vr(vc)}")
        for k in range(1, n): a(f"v_add_u32 {vr(dst[k])}, {(step*k % cpr)*mul}, {vr(dst[0])}")
        for k in range(n): a(f"v_lshrrev_b32 {vr(dst[k])}, 19, {vr(dst[k])}")
        for k in range(n): a(f"v_mad_i32_i24 {vr(dst[k])}, {vr(dst[k])}, {sr(S_T)}, {vr(vc+1)}")

    def dma_lin(self, srd, soff, lb, v16, lab):
        a = self.a
        a(f"s_lshl_b32 {sr(S_T)}, {sr(S_W)}, 10")
        for k in range(11):
            if k == 10:
                a(f"s_cmp_ge_u32 {sr(S_W)}, 1\ns_cbranch_scc1 {lab}")
            a(f"s_add_u32 m0, {sr(S_T)}, {lb + 4096*k}")
            a(f"s_add_u32 {sr(S_T+1)}, {sr(S_T)}, {soff + 4096*k}")
            a(f"buffer_load_dwordx4 {vr(v16)}, {sr(srd,4)}, {sr(S_T+1)} offen lds")
        a.label(lab)

    def tr_addr(self, ad, base, swapped, t):
        a = self.a
        a(f"v_lshrrev_b32 {vr(t)}, 2, v0")
        a(f"v_mul_u32_u24 {vr(t)}, 288, {vr(t)}")
        a(f"v_and_b32 {vr(t+1)}, 3, v0")
        a(f"v_lshl_add_u32 {vr(t)}, {vr(t+1)}, 3, {vr(t)}")
        a(f"v_add_u32 {vr(ad+2)}, {base}, {vr(t)}")
        if swapped:
            a(f"v_bfe_u32 {vr(t)}, v0, 4, 1")
            a(f"v_mul_u32_u24 {vr(t)}, {16*288}, {vr(t)}")
            a(f"v_add_u32 {vr(ad)}, {vr(ad+2)}, {vr(t)}")
            a(f"v_sub_u32 {vr(ad+1)}, {vr(ad+2)}, {vr(t)}")
            a(f"v_add_u32 {vr(ad+1)}, {16*288}, {vr(ad+1)}")
        else:
            a(f"v_mov_b32 {vr(ad)}, {vr(ad+2)}")
            a(f"v_add_u32 {vr(ad+1)}, {16*288}, {vr(ad+2)}")

    def row_addr(self, ad, base, t):
        a = self.a
        a(f"v_and_b32 {vr(t)}, 15, v0")
        a(f"v_mul_u32_u24 {vr(t)}, 304, {vr(t)}")
        a(f"v_lshrrev_b32 {vr(t+1)}, 4, v0")
        a(f"v_lshl_add_u32 {vr(t)}, {vr(t+1)}, 3, {vr(t)}")
        a(f"v_add_u32 {vr(ad)}, {base}, {vr(t)}")

    def store_block(self, src, v16, v8, srd, soff, soff2, flags=""):
        a = self.a
        for s in range(4):
            a(f"buffer_store_dwordx4 {vr(src+4*s,4)}, {vr(v16)}, {sr(srd,4)}, {sr(soff)} offen offset:{1024*s} {flags}")
        a(f"buffer_store_dwordx2 {vr(src+16,2)}, {vr(v8)}, {sr(srd,4)}, {sr(soff2)} offen {flags}")

    def entry(self):
        a = self.a
        xm2 = self.o.get("xm", 0) == 2
        kernel_header(a, NAME)
        a(f"s_load_dwordx16 s[56:71], s[0:1], 0")
        a(f"s_load_dwordx8 s[72:79], s[0:1], 64")
        a(f"s_getpc_b64 {sr(S_W1,2)}")
        a.label("L_pf")
        mh = self.o.get("mh", 0)
        a(f"""s_mov_b32 {sr(S_W1+2)}, {"L_mf6" if mh else "L_dummy"}-L_pf
        s_mov_b32 {sr(S_W1+3)}, 0x20000
        v_lshlrev_b32 v2, 4, v0
        buffer_load_dwordx4 v[252:255], v2, {sr(S_W1,4)}, 0 offen
        s_lshl_b32 s3, s2, 9
        s_and_b32 s3, s3, {0xf000 if mh else 0x7000}
        buffer_load_dwordx4 v[252:255], v2, {sr(S_W1,4)}, s3 offen
        v_lshrrev_b32 v1, 6, v0
        {"s_bfe_u32 s6, s2, 0x10003" if xm2 else f"s_sub_u32 s2, s2, {NH}"}
        v_readfirstlane_b32 {sr(S_W)}, v1
        s_memrealtime s[4:5]""")
        if xm2:
            a(f"""s_and_b32 s7, s2, 7
            s_lshl1_add_u32 s7, s7, s6
            s_mov_b32 s6, s2
            s_andn2_b32 s2, s2, 15
            s_or_b32 s2, s2, s7""")
        a(f"""s_cmp_ge_u32 s2, {NWG - NH}
        s_cbranch_scc1 L_wfuse""")
        if self.o.get("late"):
            m_, v_, n_ = self.o["late"]
            a(f"""s_and_b32 s3, s2, {m_}
            s_cmp_lg_u32 s3, {v_}
            s_cbranch_scc1 L_nl
            s_memrealtime s[4:5]
            s_waitcnt lgkmcnt(0)
            s_add_u32 s6, s4, {n_}
            L_lt:
            s_memrealtime s[4:5]
            s_waitcnt lgkmcnt(0)
            s_sub_u32 s7, s6, s4
            s_cmp_gt_i32 s7, 0
            s_cbranch_scc1 L_lt
            L_nl:""")
        if self.o.get("stamps"):
            a("s_memrealtime s[100:101]" if not self.o.get("cyc") else "s_memtime s[100:101]")
        self.mp = 2

    def vm_since(self, mark):
        return sum(1 for l in self.a.lines[mark:] if l.strip().startswith("buffer_"))

    def phase_a(self):
        a, o = self.a, self.o
        XR, XF, XA, ACC, G_, PK = 16, 34, 146, 110, 16, 164
        B4, XD = 16, 88
        VS, VSW, VR4, MXA, MXR, L8, TRU, TRQ, TRQ8, RK, TM = 200, 204, 208, 212, 213, 214, 215, 218, 221, 224, 228
        VK, VU = list(range(182, 193)), list(range(193, 200)) + list(range(104, 108))
        if o.get("mh"): VR4, MXA, MXR, L8, TRU = 182, 186, 187, 188, 189
        AQ1 = 200
        t0, t1, t2 = 250, 251, 227
        T = S_T
        WV, W10, UOFF, M1, PUB, M3 = 72, 70, 71, 69, 68, 65
        PH = 2
        FA0 = 250 * TILE if o.get("rot", 0) == 2 else WS_F
        if o.get("xm", 0) == 2: PH = S_PH
        if o.get("xm", 0) == 1:
            PH = S_PH
            a(f"""s_mov_b32 {sr(PH)}, s2
            s_bfe_u32 {sr(T)}, s2, 0x10003
            s_and_b32 {sr(T+1)}, s2, 7
            s_lshl1_add_u32 {sr(T)}, {sr(T+1)}, {sr(T)}
            s_and_b32 {sr(T+1)}, s2, 0xf0
            s_or_b32 {sr(T)}, {sr(T)}, {sr(T+1)}
            s_add_u32 s2, s2, 4
            s_cmp_lt_u32 {sr(T)}, 248
            s_cselect_b32 s2, {sr(T)}, s2""")
        a(f"""v_and_b32 v0, 63, v0
        s_bfe_u32 {sr(S_B)}, s2, 0x10001
        s_lshr_b32 {sr(S_QB)}, s2, 2
        s_lshr_b32 {sr(T)}, {sr(S_W)}, 1
        s_xor_b32 {sr(T)}, {sr(T)}, s2
        s_andn2_b32 {sr(T)}, 1, {sr(T)}
        s_lshl1_add_u32 {sr(T+3)}, {sr(S_QB)}, {sr(T)}
        s_mul_i32 {sr(T)}, {sr(S_B)}, {NT}
        s_add_u32 {sr(T+1)}, {sr(T+3)}, {sr(T)}
        s_and_b32 {sr(T+2)}, {sr(S_W)}, 1
        s_lshl1_add_u32 {sr(T+2)}, {sr(T+1)}, {sr(T+2)}
        v_lshlrev_b32 {vr(V_DMA)}, 4, v0
        s_mul_i32 {sr(T+1)}, {sr(T+2)}, {16*288}
        s_mul_i32 {sr(S_LB)}, {sr(S_W)}, {BLK}
        s_add_u32 m0, {sr(S_LB)}, {L_XS}
        s_mov_b32 {sr(S_X+2)}, 2304000
        s_mov_b32 {sr(S_X+3)}, {sr(S_W1+3)}
        s_add_u32 {sr(S_CNT)}, {sr(T+1)}, 4096
        s_waitcnt lgkmcnt(0)
        s_mov_b64 {sr(S_X,2)}, s[56:57]""")
        for k in range(4): a(f"buffer_load_dwordx4 {vr(V_DMA)}, {sr(S_X,4)}, {sr(T+1)} offen offset:{1024*k} lds")
        a(f"s_add_u32 m0, {sr(S_LB)}, {L_XS + 4096}\ns_mov_b32 exec_hi, 0\nbuffer_load_dwordx4 {vr(V_DMA)}, {sr(S_X,4)}, {sr(S_CNT)} offen lds\ns_mov_b32 exec_hi, -1")
        mx = len(a.lines)
        a(f"""s_add_u32 {sr(S_LB)}, {sr(S_LB)}, {L_XS}
        s_and_b32 {sr(S_H)}, s2, 1
        s_lshl1_add_u32 {sr(S_TOWN)}, {sr(S_QB)}, {sr(S_H)}
        s_cmp_lt_u32 {sr(S_TOWN)}, {NT}
        s_cselect_b32 {sr(S_VAL)}, 1, 0
        s_add_u32 {sr(S_TOWN)}, {sr(S_TOWN)}, {sr(T)}""")
        SQ, SK, SU = S_W2, S_W1, S_XA
        self.srd(SU, 66, 67, 82944)
        mh = o.get("mh", 0)
        wpf = o.get("wpf", 1)
        if not mh or wpf:
            self.srd(SQ, 58, 59, 41472)
            self.srd(SK, 60, 61, 41472)
        a(f"s_lshr_b32 {sr(T)}, {sr(PH)}, 3\ns_lshl_b32 {sr(T)}, {sr(T)}, 12\ns_lshl_b32 {sr(W10)}, {sr(S_W)}, 10\ns_add_u32 {sr(T)}, {sr(T)}, {sr(W10)}")
        if not mh: a(f"buffer_load_dwordx4 v[252:255], {vr(V_DMA)}, {sr(SU,4)}, {sr(T)} offen")
        for srd_, rot in ((SQ, 82), (SK, 41)) if not mh else ((SQ, 0), (SK, 41), (SU, 41)) if wpf else ((SU, 0),):
            if rot == 0:
                a(f"buffer_load_dwordx4 v[252:255], {vr(V_DMA)}, {sr(srd_,4)}, {sr(T)} offen")
                continue
            a(f"s_add_u32 {sr(T+1)}, {sr(T)}, {(128 - rot) * 1024}\ns_and_b32 {sr(T+1)}, {sr(T+1)}, {127 * 1024}")
            a(f"buffer_load_dwordx4 v[252:255], {vr(V_DMA)}, {sr(srd_,4)}, {sr(T+1)} offen")
        self.srd(S_OUT, 74, 75, 2304000)
        self.srd(S_DB, 76, 77, 256)
        if o.get("rot", 0):
            a(self.region(S_RO, 4))
            if o.get('rbad'): a(f"s_add_u32 {sr(S_RO)}, {sr(S_RO)}, {o['rbad']}")
            if o["rot"] == 1:
                a(f"""s_add_u32 {sr(S_WS)}, s78, {sr(S_RO)}
                s_addc_u32 {sr(S_WS+1)}, s79, 0
                s_mov_b32 {sr(S_WS+2)}, {self.wsn()}
                s_mov_b32 {sr(S_WS+3)}, 0x20000""")
            else: self.srd(S_WS, 78, 79, 256 << 20)
        else: self.srd(S_WS, 78, 79, WS_END)
        def tlb():
            a(f"v_lshlrev_b32 v249, 21, v0")
            for ch in o.get("tlbw", "wdo"): a(f"buffer_load_dword v252, v249, {sr(dict(w=S_WS, d=S_DB, o=S_OUT)[ch],4)}, 0 offen")
        if o.get("tlb", 0) == 1: tlb()
        if o.get("tlb", 3) == 3:
            if o.get("rot", 0) == 2:
                a(f"""s_bfe_u32 {sr(T)}, {sr(PH)}, 0x40003
                s_sub_u32 {sr(T+1)}, {sr(T)}, 9
                s_cselect_b32 {sr(T)}, {sr(T)}, {sr(T+1)}
                v_mov_b32 v249, 0
                s_lshl_b32 {sr(T+1)}, {sr(T)}, 21
                s_cmp_lt_u32 {sr(T)}, 6
                s_cbranch_scc0 L_tl1
                s_sub_u32 {sr(T+4)}, {sr(S_RO)}, {4 << 21}
                s_cmp_lt_u32 {sr(T)}, 4
                s_cselect_b32 {sr(T+4)}, {1 << 21}, {sr(T+4)}
                s_add_u32 {sr(T+1)}, {sr(T+1)}, {sr(T+4)}
                buffer_load_dword v252, v249, {sr(S_WS,4)}, {sr(T+1)} offen
                s_branch L_tl3
                L_tl1:
                s_cmp_eq_u32 {sr(T)}, 7
                s_cbranch_scc1 L_tl2
                s_and_b32 {sr(T)}, {sr(T)}, 8
                s_lshl_b32 {sr(T)}, {sr(T)}, 18
                buffer_load_dword v252, v249, {sr(S_OUT,4)}, {sr(T)} offen
                s_branch L_tl3""")
            else:
                a(f"""s_bfe_u32 {sr(T)}, {sr(PH)}, 0x30003
                s_lshl_b32 {sr(T)}, {sr(T)}, 21
                v_mov_b32 v249, 0
                s_cmp_lt_u32 {sr(T)}, {5 << 21}
                s_cbranch_scc0 L_tl1
                buffer_load_dword v252, v249, {sr(S_WS,4)}, {sr(T)} offen
                s_branch L_tl3
                L_tl1:
                s_sub_u32 {sr(T)}, {sr(T)}, {5 << 21}
                s_cmp_lt_u32 {sr(T)}, {2 << 21}
                s_cbranch_scc0 L_tl2
                buffer_load_dword v252, v249, {sr(S_OUT,4)}, {sr(T)} offen
                s_branch L_tl3""")
            if mh and o.get("tgw", -1) >= 0:
                a(f"L_tl2:\nbuffer_load_dword v252, v249, {sr(S_DB,4)}, 0 offen offset:128\nL_tl3:")
            else: a(f"""L_tl2:
            s_or_b32 s4, s4, 1
            v_lshlrev_b32 v249, 8, v0
            v_mov_b32 v250, s4
            s_lshl2_add_u32 s5, {sr(PH)}, {sr(S_W)}
            s_cmp_eq_u32 s5, {56 * 4}
            s_cbranch_scc0 L_tl4
            buffer_store_dword v250, v249, {sr(S_DB,4)}, 0 offen sc1
            s_branch L_tl3
            L_tl4:
            buffer_load_dword v252, v249, {sr(S_DB,4)}, 0 offen offset:128
            L_tl3:""")
            self.vm_adj = -2 if mh and o.get("tgw", -1) >= 0 else -3
        if o.get("tst") and o["tst"][0] == "beg": self.tstore()
        if o.get("tl4"):
            a(f"""s_mul_i32 {sr(T)}, {sr(S_TOWN)}, {TILE}
            v_lshlrev_b32 v249, 12, v0
            v_add_u32 v249, {sr(T)}, v249
            s_mov_b64 exec, 7
            buffer_load_dword v252, v249, {sr(S_WS,4)}, 0 offen
            s_mov_b64 exec, -1""")
        if o.get("stamps"): a(f"s_mov_b64 {sr(S_ST,2)}, s[100:101]"); self.stnames.append("start"); self.nst = 1
        self.stamp("xiss")
        a(f"""s_cmp_lt_u32 {sr(T+3)}, {NT}
        s_cselect_b32 {sr(WV)}, 1, 0
        s_mov_b32 {sr(WV+1)}, {sr(T+2)}
        s_mul_i32 {sr(UOFF)}, {sr(S_H)}, 288
        s_cmp_eq_u32 {sr(S_W)}, 0
        s_cselect_b32 {sr(M1)}, 0, {L_DUMP}""")
        if not mh: a(f"s_cmp_lt_u32 {sr(S_W)}, 3\ns_cselect_b32 {sr(M3)}, {sr(W10)}, {L_DUMP}")
        half = lambda g_: "s_mov_b32 exec_hi, 0\n" + g_ + "\ns_mov_b32 exec_hi, -1"
        gu = [f"s_add_u32 m0, {sr(W10 if k < 10 else M1)}, {L_WU + 4096*k}\ns_add_u32 {sr(S_CNT)}, {sr(UOFF)}, {4096*k + 288*(256*k//18)}\nbuffer_load_dwordx4 {vr(VU[k])}, {sr(SU,4)}, {sr(S_CNT)} offen lds" for k in range(11)]
        gu[10] = half(gu[10])
        gq = [f"s_add_u32 m0, {sr(W10 if k < 10 else M1)}, {L_WQ + 4096*k}\ns_add_u32 {sr(S_CNT)}, {sr(W10)}, {4096*k}\nbuffer_load_dwordx4 {vr(V_DMA)}, {sr(SQ,4)}, {sr(S_CNT)} offen lds" for k in range(11)]
        gq[10] = half(gq[10])
        gk = [f"s_add_u32 m0, {sr(W10 if k < 10 else M3)}, {L_WK + 4096*k}\ns_mov_b32 {sr(S_CNT)}, {4096*k - 16*(256*k//19)}\nbuffer_load_dwordx4 {vr(VK[k])}, {sr(SK,4)}, {sr(S_CNT)} offen lds" for k in range(11)]
        a(f"s_lshl_b32 {sr(T)}, {sr(S_W)}, 6\nv_add_u32 {vr(t0)}, {sr(T)}, v0\nv_lshlrev_b32 {vr(t1)}, 4, {vr(t0)}")
        self.voff_table(VU, 18, 576, t0)
        npre = o.get("npre", 3)
        a.bg, a.every, a.cnt = gu[:npre], o.get("evpre", 40), 0
        if not mh: self.voff_table(VK, 19, 288, t0)
        xa0, xa1, xa2 = TM, TM + 1, TM + 2
        a(f"""v_and_b32 {vr(t0)}, 15, v0
        v_lshrrev_b32 {vr(t1)}, 5, v0
        v_lshlrev_b32 {vr(t1)}, 3, {vr(t1)}
        v_xor_b32 {vr(t1)}, {vr(t0)}, {vr(t1)}
        v_lshlrev_b32 {vr(t1)}, 4, {vr(t1)}
        v_lshrrev_b32 {vr(t2)}, 4, v0
        v_lshl_add_u32 {vr(V_KA)}, {vr(t2)}, 9, {vr(t1)}
        v_lshrrev_b32 {vr(t1)}, 3, {vr(t0)}
        v_lshlrev_b32 {vr(t1)}, 1, {vr(t1)}
        v_xor_b32 {vr(t1)}, {vr(t2)}, {vr(t1)}
        v_lshl_add_u32 {vr(t1)}, {vr(t0)}, 2, {vr(t1)}
        v_lshlrev_b32 {vr(V_KA+1)}, 3, {vr(t1)}
        v_lshlrev_b32 {vr(L8)}, 3, v0
        v_lshlrev_b32 {vr(MXR)}, 4, {vr(t0)}
        v_add_u32 {vr(MXR)}, {L_MX}, {vr(MXR)}
        v_add_u32 {vr(MXA)}, {sr(S_W)}, {vr(t2)}
        v_and_b32 {vr(MXA)}, 3, {vr(MXA)}
        v_lshl_add_u32 {vr(MXA)}, {vr(MXA)}, 8, {vr(MXR)}
        s_lshl_b32 {sr(T)}, {sr(S_W)}, 2
        v_add_u32 {vr(MXA)}, {sr(T)}, {vr(MXA)}
        v_mul_u32_u24 {vr(xa2)}, 288, {vr(t0)}
        v_lshl_add_u32 {vr(xa2)}, {vr(t2)}, 3, {vr(xa2)}
        v_add_u32 {vr(xa2)}, {sr(S_LB)}, {vr(xa2)}
        v_and_b32 {vr(t1)}, 1, {vr(t2)}
        v_lshlrev_b32 {vr(t1)}, 5, {vr(t1)}
        v_add_u32 {vr(xa0)}, {vr(xa2)}, {vr(t1)}
        v_xor_b32 {vr(t1)}, 32, {vr(t1)}
        v_add_u32 {vr(xa1)}, {vr(xa2)}, {vr(t1)}
        s_mul_i32 {sr(S_LB)}, {sr(S_W)}, {TILE}
        v_lshrrev_b32 {vr(t0)}, 2, v0
        v_bfe_u32 {vr(t1)}, v0, 1, 1
        v_lshlrev_b32 {vr(t1)}, 3, {vr(t1)}
        v_xor_b32 {vr(t1)}, {vr(t0)}, {vr(t1)}
        v_lshlrev_b32 {vr(t1)}, 4, {vr(t1)}
        v_and_b32 {vr(t2)}, 3, v0
        v_lshl_add_u32 {vr(t1)}, {vr(t2)}, 9, {vr(t1)}
        v_and_b32 {vr(V_VA)}, 1, v0
        v_lshl_add_u32 {vr(t1)}, {vr(V_VA)}, 3, {vr(t1)}
        s_and_b32 {sr(T)}, {sr(S_W)}, 1
        s_lshl_b32 {sr(T)}, {sr(T)}, 12
        s_add_u32 {sr(T+1)}, {sr(T)}, {sr(S_LB)}
        s_xor_b32 {sr(T)}, {sr(T)}, 4096
        s_add_u32 {sr(T)}, {sr(T)}, {sr(S_LB)}
        v_add_u32 {vr(V_VA)}, {sr(T)}, {vr(t1)}
        v_add_u32 {vr(V_VB)}, {sr(T+1)}, {vr(t1)}
        v_xor_b32 {vr(V_VA+1)}, 8, {vr(V_VA)}
        v_xor_b32 {vr(V_VB+1)}, 8, {vr(V_VB)}
        v_lshrrev_b32 {vr(t1)}, 5, v0
        v_lshlrev_b32 {vr(t1)}, 1, {vr(t1)}
        v_xor_b32 {vr(t1)}, {vr(t2)}, {vr(t1)}
        v_lshl_add_u32 {vr(t1)}, {vr(t0)}, 2, {vr(t1)}
        v_lshlrev_b32 {vr(t1)}, 3, {vr(t1)}
        v_add_u32 {vr(V_VR)}, {sr(S_LB)}, {vr(t1)}
        v_add_u32 {vr(V_DMA+1)}, 4096, {vr(V_DMA)}
        v_add_u32 {vr(V_DMA+2)}, 8192, {vr(V_DMA)}""")
        self.tr_addr(TRU, L_WU, True, t0)
        if not mh:
            a(f"s_lshl_b32 {sr(T)}, {sr(S_W)}, 6\ns_add_u32 {sr(T)}, {sr(T)}, {L_WQ - L_WU}")
            for k in range(3):
                a(f"v_add_u32 {vr(TRQ+k)}, {sr(T)}, {vr(TRU+k)}\nv_add_u32 {vr(TRQ8+k)}, {L_WQ - L_WU + 256}, {vr(TRU+k)}")
            self.row_addr(RK + 2, L_WK + 8 * 4864, t0)
            a(f"""s_mul_i32 {sr(T)}, {sr(S_W)}, {2*4864}
            s_sub_u32 {sr(T)}, {sr(T)}, {8*4864}
            v_add_u32 {vr(t1)}, {sr(T)}, {vr(RK+2)}
            v_bfe_u32 {vr(t0)}, v0, 2, 1
            v_mul_u32_u24 {vr(t0)}, 4864, {vr(t0)}
            v_add_u32 {vr(RK)}, {vr(t1)}, {vr(t0)}
            v_sub_u32 {vr(RK+1)}, {vr(t1)}, {vr(t0)}""")
        for j in range(4):
            a(f"""s_add_u32 {sr(T)}, {sr(S_W)}, {j}
            s_and_b32 {sr(T)}, {sr(T)}, 3
            s_lshl_b32 {sr(T+1)}, {sr(T)}, 12
            s_add_u32 {sr(T+1)}, {sr(T+1)}, {L_XX}
            v_add_u32 {vr(VS+j)}, {sr(T+1)}, {vr(V_DMA)}
            s_lshl_b32 {sr(T+1)}, {sr(T)}, 9
            s_add_u32 {sr(T+1)}, {sr(T+1)}, {L_XR}
            v_add_u32 {vr(VR4+j)}, {sr(T+1)}, {vr(L8)}
            v_add_u32 {vr(VSW+j)}, {sr(W10)}, {vr(VS+j)}""")
        a(f"""s_sub_u32 {sr(T+2)}, 63, {sr(S_H)}
        s_add_u32 {sr(T+3)}, {sr(S_W)}, 60
        s_cmp_ge_u32 {sr(T+3)}, {sr(T+2)}
        s_cselect_b32 {sr(S_DUM)}, 4, 99
        s_mov_b32 {sr(S_REDO)}, 0
        s_mov_b32 {sr(S_TOFF)}, {sr(S_LB)}
        s_lshl_b32 {sr(PUB)}, {sr(S_TOWN)}, 8
        s_add_u32 {sr(PUB)}, {sr(PUB)}, {FA0}
        s_and_b32 {sr(T)}, {sr(S_W)}, 1
        s_lshl_b32 {sr(T)}, {sr(T)}, 7
        s_add_u32 {sr(PUB)}, {sr(PUB)}, {sr(T)}
        s_lshr_b32 {sr(T)}, {sr(S_W)}, 1
        s_and_b32 {sr(T)}, {sr(T)}, {sr(S_VAL)}
        s_cmp_eq_u32 {sr(T)}, 1
        s_cselect_b32 {sr(PUB)}, {sr(PUB)}, 0x40000000
        s_lshl_b32 {sr(S_FB)}, s2, 8
        s_add_u32 {sr(S_FB)}, {sr(S_FB)}, {WS_F + 250*256}
        s_mul_i32 {sr(T)}, {sr(S_H)}, 1792
        s_sub_u32 {sr(T)}, {sr(T)}, 768
        s_mul_i32 {sr(T+1)}, {sr(S_H)}, 62
        s_cmp_eq_u32 {sr(S_QB)}, {sr(T+1)}
        s_cselect_b32 {sr(T)}, 0, {sr(T)}
        v_mov_b32 {vr(self.VPL)}, 0x40000000
        s_xor_b32 {sr(T+1)}, {sr(S_FB)}, 256
        s_add_u32 {sr(T)}, {sr(T)}, {sr(S_FB)}
        v_writelane_b32 {vr(self.VPL)}, {sr(S_FB)}, 0
        v_writelane_b32 {vr(self.VPL)}, {sr(T+1)}, 1
        v_writelane_b32 {vr(self.VPL)}, {sr(T)}, 2
        s_mov_b32 {sr(T)}, {WS_F + 502*256}
        s_mov_b32 {sr(T+1)}, {WS_F + 503*256}
        v_writelane_b32 {vr(self.VPL)}, {sr(T)}, 3
        v_writelane_b32 {vr(self.VPL)}, {sr(T+1)}, 4
        s_sub_u32 {sr(S_FB)}, {sr(S_FB)}, {L_PC}""")
        PM = 226
        if mh: a(f"v_lshrrev_b32 {vr(PM)}, 4, v0\nv_min_u32 {vr(PM)}, 1, {vr(PM)}\nv_lshlrev_b32 {vr(PM)}, 23, {vr(PM)}\nv_add_u32 {vr(PM)}, {vr(PM)}, v0\nv_lshlrev_b32 {vr(PM)}, 7, {vr(PM)}\nv_add_u32 {vr(PM)}, {WS_FM}, {vr(PM)}")
        if o.get("xm", 0):
            a(f"""s_getreg_b32 {sr(S_XC)}, hwreg(HW_REG_XCC_ID, 0, 4)
            s_xor_b32 {sr(T)}, s2, 1
            s_lshl_b32 {sr(T)}, {sr(T)}, 8
            s_add_u32 {sr(T)}, {sr(T)}, {WS_F + 250*256 + 4}
            v_writelane_b32 {vr(self.VPL)}, {sr(T)}, 5""")
        a.flush()
        if o.get("tlb", 0) == 2: tlb()
        self.stamp("pre")
        if o.get("es", 0) == 0: self.epi_setup()
        self.stamp("es")
        nx = self.vm_since(mx) + getattr(self, "vm_adj", 0)
        if o.get("touch", 1):
            a(f"""s_mov_b64 exec, 0
            s_cmp_eq_u32 {sr(S_W)}, 0
            s_cbranch_scc1 L_tr
            s_cmp_eq_u32 {sr(S_W)}, 1
            s_cbranch_scc1 L_t0
            s_cmp_eq_u32 {sr(S_W)}, 2
            s_cbranch_scc1 L_t1
            s_branch L_t2""")
            self.rare()
            a.raw(".p2align 12")
            a.label("L_tr")
            a("s_mov_b64 exec, -1")
        nlate = o.get("nlate", 0)
        for g_ in gu[npre:npre + nlate]: a(g_)
        a(f"s_waitcnt vmcnt({nx + nlate})")
        self.stamp("xarr")
        for s in range(4):
            a(f"ds_read_b64 {vr(XR+4*s,2)}, {vr(xa0)} offset:{64*s}\nds_read_b64 {vr(XR+4*s+2,2)}, {vr(xa1)} offset:{64*s}")
        a(f"ds_read_b64 {vr(XR+16,2)}, {vr(xa2)} offset:256")
        a(f"""s_and_b32 {sr(T)}, {sr(S_W)}, 1
        s_mul_i32 {sr(T+2)}, {sr(S_TOWN)}, {TILE}
        {f"s_add_u32 {sr(T+2)}, {sr(T+2)}, {sr(S_RO)}" if o.get("rot", 0) == 2 else ""}
        s_cmp_eq_u32 {sr(S_VAL)}, 1
        s_cselect_b32 {sr(T+2)}, {sr(T+2)}, 0x40000000
        s_lshl_b32 {sr(T+3)}, {sr(T)}, 8
        s_add_u32 {sr(T+3)}, {sr(T+3)}, {sr(T+2)}
        s_add_u32 {sr(T+4)}, {sr(T+3)}, 4096
        s_lshl_b32 {sr(T+5)}, {sr(T)}, 9
        s_add_u32 {sr(T+5)}, {sr(T+5)}, {sr(T+2)}
        s_add_u32 {sr(T+5)}, {sr(T+5)}, 8192
        s_waitcnt lgkmcnt(0)""")
        wl = gq + gk if not mh else []
        if mh: o["nql"] = o["nup"] = 0
        a.bg, a.every, a.cnt = gu[npre + nlate:] + [wl.pop(0) for _ in range(o.get("nql", 11))], o.get("evln", 5), 0
        self.ln_packed(XR, XF, XA, TM)
        a.flush()
        self.stamp("ln")
        if o.get("tst") and o["tst"][0].startswith("pub"): self.tstore()
        a(f"s_cmp_lt_u32 {sr(S_W)}, 2\ns_cbranch_scc1 L_nop")
        w16 = o.get("w16", 0)
        pair = lambda d, src: [f"v_mov_b32 {vr(d)}, {vr(src)}\nv_mov_b32 {vr(d+1)}, {vr(src+1)}", f"v_mov_b32 {vr(d+2)}, {vr(src)}\nv_mov_b32 {vr(d+3)}, {vr(src+1)}", "",
                               f"v_permlane16_swap_b32 {vr(d)}, {vr(d+2)}\nv_permlane16_swap_b32 {vr(d+1)}, {vr(d+3)}"]
        pr = pair(XR, XA + 16)
        if o.get("pw") == 2: a("s_waitcnt vmcnt(0)")
        self.stamp("pb0")
        for s in range(4):
            a(f"buffer_store_dwordx4 {vr(XA+4*s,4)}, {vr(V_KA)}, {sr(S_WS,4)}, {sr(T+3+(s>>1))} offen offset:{2048*(s&1)} {o.get('pfl', 'sc1')}")
            if w16 & 1: a(pr[s])
        if w16 & 1:
            a(f"s_mov_b32 exec_lo, 0xffff\ns_mov_b32 exec_hi, 0xffff\nbuffer_store_dwordx4 {vr(XR,4)}, {vr(V_KA+1)}, {sr(S_WS,4)}, {sr(T+5)} offen {o.get('pfl', 'sc1')}\ns_mov_b64 exec, -1")
        else: a(f"buffer_store_dwordx2 {vr(XA+16,2)}, {vr(V_KA+1)}, {sr(S_WS,4)}, {sr(T+5)} offen {o.get('pfl', 'sc1')}")
        if o.get("pw"):
            a("s_waitcnt vmcnt(0)")
            self.stamp("pb1")
        a(f"s_waitcnt vmcnt({5 + o.get('nql', 11)})\ns_branch L_bar1")
        a.label("L_nop")
        if o.get("touch", 1):
            a(f"s_mov_b64 exec, 0\ns_cmp_eq_u32 {sr(S_W)}, 0\ns_cbranch_scc1 L_t3\ns_branch L_t4")
            a.label("L_tr2")
            a("s_mov_b64 exec, -1")
        a(f"s_waitcnt vmcnt({o.get('nql', 11)})")
        a.label("L_bar1")
        self.stamp("pub")
        xw = [f"ds_write_b128 {vr(VS)}, {vr(XA+4*s,4)} offset:{1024*s}" for s in range(4)] + [f"ds_write_b64 {vr(VR4)}, {vr(XA+16,2)}"]
        self.stamp("tch")
        PA = 249
        a(f"""v_add_u32 {vr(V_KA)}, {sr(S_LB)}, {vr(V_KA)}
        v_add_u32 {vr(V_KA+1)}, {sr(S_LB)}, {vr(V_KA+1)}
        s_mul_i32 {sr(T)}, {sr(S_B)}, {NT}
        s_mul_i32 {sr(T+1)}, {sr(S_H)}, 63
        s_add_u32 {sr(T)}, {sr(T)}, {sr(T+1)}
        s_lshl_b32 {sr(T)}, {sr(T)}, 8
        s_add_u32 {sr(T)}, {sr(T)}, {FA0}
        s_cmp_eq_u32 {sr(S_W)}, 0
        {"" if o.get("gatepos", 0) else f"s_cselect_b32 {sr(T)}, {sr(T)}, 0x40000000"}
        v_lshl_add_u32 {vr(PA)}, v0, 8, {sr(T)}
        {"" if o.get("rot", 0) else self.xa_srd()}
        s_waitcnt lgkmcnt(0)""")
        self.stamp("w1")
        a("s_barrier")
        self.stamp("bar1")
        m_b1 = len(a.lines)
        ro = sr(S_RO) if o.get("rot", 0) == 2 else "0"
        poll = lambda r: f"buffer_load_dword {vr(r)}, {vr(PA)}, {sr(S_WS,4)}, {ro} offen sc1\nbuffer_load_dword {vr(r+2)}, {vr(PA)}, {sr(S_WS,4)}, {ro} offen offset:128 sc1"

        def gate(lab, r, mask, younger):
            a(f"s_mov_b32 {sr(T+2)}, 0\ns_waitcnt vmcnt({younger})")
            a.label(lab)
            a(f"""v_cmp_ne_u32 vcc, {sr(S_N)}, {vr(r)}
            v_cmp_ne_u32 {sr(T+10,2)}, {sr(S_N)}, {vr(r+2)}
            s_add_u32 {sr(T+2)}, {sr(T+2)}, 1
            s_or_b64 vcc, vcc, {sr(T+10,2)}
            s_and_b64 vcc, vcc, {mask}
            s_cbranch_scc0 {lab}_ok
            s_sleep {o.get("slp", 4)}
            {poll(r)}
            s_waitcnt vmcnt(0)
            s_cmp_lt_u32 {sr(T+2)}, 0x40000
            s_cbranch_scc1 {lab}""")
            a.label(lab + "_ok")

        H, G_, UG, MS, CL = 16, 52, 208, 110, 104
        nup = o.get("nup", 5)
        at = {o.get("u0", 6) + o.get("usp", 6) * i: wl.pop(0) for i in range(nup)}
        for i in range(5): at[i] = xw[i]
        tagld = f"buffer_load_dword v253, off, {sr(S_DB,4)}, 0 sc1"
        tag1 = tagld.replace("sc1", o.get("tgf", "sc1")).strip()
        at[o.get("tgp", 5)] = tag1
        pollm = f"buffer_load_dword v254, {vr(PM)}, {sr(S_WS,4)}, {sr(S_RO)} offen sc1"
        if mh and o.get("fmp", -1) >= 0: at[o["fmp"]] = pollm
        if o.get("es", 0) == 1:
            n_ = len(a.lines); self.epi_setup()
            el = [l.strip() for l in a.lines[n_:]]; del a.lines[n_:]
            for k in range(5, 42):
                if k in at: continue
                c_ = 0
                while el and c_ < o.get("esn", 2):
                    x = el.pop(0); at[k] = at.get(k, "") + x + "\n"; c_ += 1 if x.startswith("v_") else 0.5
            self.es_left = el
        self.gemm(self.tr_reads(TRU), XA, H, None, at=at)
        if o.get("es", 0) == 1:
            for x in self.es_left: a(x)
        self.stamp("up")
        p = lambda r: vr(r, 2)
        CC = TM
        c1 = -2.0 * math.sqrt(2.0 / math.pi) * LOG2E
        c2 = c1 * 0.044715
        gst = [[f"v_pk_mul_f32 {p(G_+2*i)}, {p(H+2*i)}, {p(H+2*i)}" for i in range(18)] +
               [f"v_pk_fma_f32 {p(G_+2*i)}, {p(G_+2*i)}, {p(CC+2)}, {p(CC)} op_sel_hi:[1,0,0]" for i in range(18)] +
               [f"v_pk_mul_f32 {p(G_+2*i)}, {p(G_+2*i)}, {p(H+2*i)}" for i in range(18)],
               [f"v_exp_f32 {vr(G_+i)}, {vr(G_+i)}" for i in range(36)],
               [f"v_pk_add_f32 {p(G_+2*i)}, {p(G_+2*i)}, {p(CC+4)} op_sel_hi:[1,0]" for i in range(18)],
               [f"v_rcp_f32 {vr(G_+i)}, {vr(G_+i)}" for i in range(36)],
               [f"v_pk_mul_f32 {p(H+2*i)}, {p(G_+2*i)}, {p(H+2*i)}" for i in range(18)]]
        def flag():
            n_ = self.vm_since(max(i for i, l in enumerate(a.lines) if l.strip() == tag1) + 1) if not mh else 0
            if w16 & 2: a(self.a8() + f"\ns_mov_b32 {sr(T+5)}, 0\ns_waitcnt vmcnt({n_})")
            else: a(f"v_lshrrev_b32 {vr(t0)}, 5, v0\nv_lshlrev_b32 {vr(t0)}, 30, {vr(t0)}\nv_lshl_add_u32 {vr(t0)}, v0, 2, {vr(t0)}\ns_mov_b32 {sr(T+5)}, 0\ns_waitcnt vmcnt({n_})")
            a.label("L_tag")
            a(f"""v_readfirstlane_b32 {sr(S_N)}, v253
            s_add_u32 {sr(T+5)}, {sr(T+5)}, 1
            s_cmp_lg_u32 {sr(S_N)}, 0
            s_cbranch_scc1 L_tag_ok
            {tagld}
            s_waitcnt vmcnt(0)
            s_cmp_lt_u32 {sr(T+5)}, 0x40000
            s_cbranch_scc1 L_tag""")
            a.label("L_tag_ok")
            if o.get("rot", 0):
                a(f"""{self.region(T+5, S_N)}
                s_cmp_lg_u32 {sr(T+5)}, {sr(S_RO)}
                s_cbranch_scc1 L_moved""")
                a.label("L_movedb")
                if o["rot"] == 2: a(f"s_add_u32 {sr(PUB)}, {sr(PUB)}, {sr(S_RO)}")

                def moved():
                    a.label("L_moved")
                    if o["rot"] == 2: a(f"s_mov_b32 {sr(S_RO)}, {sr(T+5)}")
                    else:
                        a(f"""s_sub_u32 {sr(T+5)}, {sr(T+5)}, {sr(S_RO)}
                        s_ashr_i32 {sr(T+6)}, {sr(T+5)}, 31
                        s_add_u32 {sr(S_WS)}, {sr(S_WS)}, {sr(T+5)}
                        s_addc_u32 {sr(S_WS+1)}, {sr(S_WS+1)}, {sr(T+6)}""")
                    a(f"""s_lshr_b32 {sr(T+5)}, {sr(S_W)}, 1
                    s_and_b32 {sr(T+5)}, {sr(T+5)}, {sr(S_VAL)}
                    s_cbranch_scc0 L_movedb
                    s_mul_i32 {sr(T+5)}, {sr(S_TOWN)}, {TILE}
                    {f"s_add_u32 {sr(T+5)}, {sr(T+5)}, {sr(S_RO)}" if o["rot"] == 2 else ""}
                    s_and_b32 {sr(T+6)}, {sr(S_W)}, 1
                    s_lshl_b32 {sr(T+7)}, {sr(T+6)}, 9
                    s_add_u32 {sr(T+7)}, {sr(T+7)}, {sr(T+5)}
                    s_add_u32 {sr(T+7)}, {sr(T+7)}, 8192
                    s_lshl_b32 {sr(T+6)}, {sr(T+6)}, 8
                    s_add_u32 {sr(T+5)}, {sr(T+5)}, {sr(T+6)}
                    s_add_u32 {sr(T+6)}, {sr(T+5)}, 4096
                    v_subrev_u32 {vr(t0)}, {sr(S_LB)}, {vr(V_KA)}
                    v_subrev_u32 {vr(t1)}, {sr(S_LB)}, {vr(V_KA+1)}""")
                    for s_ in range(4): a(f"buffer_store_dwordx4 {vr(XA+4*s_,4)}, {vr(t0)}, {sr(S_WS,4)}, {sr(T+5+(s_>>1))} offen offset:{2048*(s_&1)} sc1")
                    a(f"buffer_store_dwordx2 {vr(XA+16,2)}, {vr(t1)}, {sr(S_WS,4)}, {sr(T+7)} offen sc1\ns_waitcnt vmcnt(0)\ns_branch L_movedb")
                self.moved = moved
                assert w16 & 2
            if w16 & 2:
                for i in range(4): a(f"v_mov_b32 {vr(CL+i)}, {sr(S_N)}")
                a(f"buffer_store_dwordx4 {vr(CL,4)}, v255, {sr(S_WS,4)}, {sr(PUB)} offen sc1")
            else: a(f"v_mov_b32 {vr(t1)}, {sr(S_N)}\nbuffer_store_dword {vr(t1)}, {vr(t0)}, {sr(S_WS,4)}, {sr(PUB)} offen sc1")
            self.m_fl = len(a.lines)
            if o.get("rot", 0): a(self.xa_srd(T + 5))
            self.stamp("flag")
        gs = o.get("gs", 0)
        if mh:
            a(f"v_mov_b32 {vr(CC)}, {f32(c1)}\nv_mov_b32 {vr(CC+2)}, {f32(c2)}\nv_mov_b32 {vr(CC+4)}, 1.0")
            pre = [x for st_ in gst[:gs] for x in st_]
            n0_, nf_, np_ = o.get("mg0", 0), o.get("mgf", 0), o.get("mgp", -1)
            for i, x in enumerate(pre[:n0_] + [""]):
                if i == nf_: flag()
                if i == np_: a(pollm)
                a(x)
            pre = pre[n0_:]
            if np_ >= 0: a("s_waitcnt vmcnt(0)")
            a(f"s_mov_b32 {sr(T+5)}, 0")
            a.label("L_gm")
            a(f"""v_cmp_ne_u32 vcc, {sr(S_N)}, v254
            s_mul_i32 {sr(T+6)}, {sr(S_W)}, {2*BLK}
            s_add_u32 {sr(T+8)}, {sr(S_RO)}, {WS_M + 8*BLK}
            s_add_u32 {sr(T+6)}, {sr(T+6)}, {WS_M}
            s_add_u32 {sr(T+6)}, {sr(T+6)}, {sr(S_RO)}
            s_add_u32 {sr(T+7)}, {sr(T+6)}, {BLK}
            s_and_b32 vcc_lo, vcc_lo, 0xffff
            s_cbranch_scc0 L_gm_ok
            s_sleep {o.get("slm", 4)}
            {pollm}
            s_add_u32 {sr(T+5)}, {sr(T+5)}, 1
            s_waitcnt vmcnt(0)
            s_cmp_lt_u32 {sr(T+5)}, 0x40000
            s_cbranch_scc1 L_gm""")
            a.label("L_gm_ok")
            self.stamp("gm")
            ml = []
            for t in range(3): ml += self.w8_loads([("a", A_Q + 18 * t + 4 * s_) for s_ in range(5)], T + 6 + t)
            mk = []
            sp = o.get("mlsp", 4)
            for i, x in enumerate(pre):
                if i % sp == 0 and ml: a(ml.pop(0)); mk.append(len(a.lines))
                a(x)
            for x in ml: a(x); mk.append(len(a.lines))
            if gs == 6:
                a(f"s_mul_i32 {sr(T)}, {sr(WV+1)}, {BLK}\ns_cmp_eq_u32 {sr(S_H)}, 1\ns_cbranch_scc1 L_ln2\ns_add_u32 {sr(T)}, {sr(T)}, {WS_U}")
                for i in range(18): a(f"v_cvt_pk_bf16_f32 {vr(UG+i)}, {vr(H+2*i)}, {vr(H+2*i+1)}")
                a("s_branch L_ug")
                a.label("L_ln2")
                a(f"s_add_u32 {sr(T)}, {sr(T)}, {WS_G}")
                self.ln_f32(H, UG, TM)
                a.label("L_ug")
                a(f"s_cmp_eq_u32 {sr(WV)}, 1\ns_cselect_b32 {sr(S_UG)}, {sr(T)}, 0x40000000")
            self.stamp("gea")
            a("s_waitcnt lgkmcnt(0)\ns_barrier")
        else:
            if gs:
                a(f"v_mov_b32 {vr(CC)}, {f32(c1)}\nv_mov_b32 {vr(CC+2)}, {f32(c2)}\nv_mov_b32 {vr(CC+4)}, 1.0")
                pre = [x for st_ in gst[:gs] for x in st_]
                ngw = o.get("ngw", 0)
                for i, x in enumerate(pre):
                    a(x)
                    if ngw and i % o.get("gwsp", 8) == 2 and wl: a(wl.pop(0)); ngw -= 1
                self.stamp("gea")
            last = lambda srd: max(i for i, l in enumerate(a.lines) if l.strip().startswith("buffer_load") and sr(srd, 4) in l) + 1
            assert not any(sr(SQ, 4) in x for x in wl)
            nq_ = self.vm_since(m_b1) + (5 if last(SQ) < m_b1 else 0) if last(SQ) < m_b1 else self.vm_since(last(SQ))
            a(f"s_waitcnt vmcnt({self.vm_since(m_b1) if last(SQ) < m_b1 else nq_}) lgkmcnt(0)" if False else "")
            if last(SQ) < m_b1:
                a(f"s_cmp_lt_u32 {sr(S_W)}, 2\ns_cbranch_scc1 L_bg0\ns_waitcnt vmcnt({5 + self.vm_since(m_b1)})\ns_branch L_bg1\nL_bg0:\ns_waitcnt vmcnt({self.vm_since(m_b1)})\nL_bg1:\ns_waitcnt lgkmcnt(0)\ns_barrier")
            else: a(f"s_waitcnt vmcnt({self.vm_since(last(SQ))}) lgkmcnt(0)\ns_barrier")

        self.stamp("barG")
        if o.get("atw"):
            a("s_waitcnt vmcnt(1)")
            self.stamp("ack1")
            a("s_waitcnt vmcnt(0)")
            self.stamp("ack")
        if o.get("census"):
            k_ = S_ST + 2 * self.stnames.index(o["census"][0])
            a(f"s_waitcnt lgkmcnt(0)\nv_mov_b32 v252, {sr(k_)}\ns_lshl_b32 {sr(T)}, s2, 2\ns_add_u32 {sr(T)}, {sr(T)}, {WS_DBG}\nv_mov_b32 v253, 0\nbuffer_store_dword v252, v253, {sr(S_WS,4)}, {sr(T)} offen sc1")

        def a_tr(t):
            ad, off = (TRQ, 32 * t) if t < 2 else (TRQ8, 0)
            return [f"ds_read_b64_tr_b16 {ar(AQ1+18*t+4*s+2*u,2)}, {vr(ad+u)} offset:{9216*s + off}" for s in range(4) for u in range(2)] + \
                   [f"ds_read_b64_tr_b16 {ar(AQ1+18*t+16,2)}, {vr(ad+2)} offset:{36864 + off}"]

        def a_row(t):
            off = 4864 * t if t < 2 else 0
            return [f"ds_read_b64 {ar(A_Q+18*t+4*s+2*u,2)}, {vr(RK+t)} offset:{off + 64*s + 32*u}" for s in range(4) for u in range(2)] + \
                   [f"ds_read_b64 {ar(A_Q+18*t+16,2)}, {vr(RK+t)} offset:{off + 256}"]
        bq = lambda j, d=0: [f"ds_read_b128 {ar(18*j+4*s,4)}, {vr(VS+j)} offset:{d + 1024*s}" for s in range(4)] + [f"ds_read_b64 {ar(18*j+16,2)}, {vr(VR4+j)} offset:{d}"]

        def post(u, scale, d):
            L = [f"v_mul_f32 {vr(ACC+4*u+i)}, {sr(T+4)}, {vr(ACC+4*u+i)}" for i in range(4)] if scale else []
            L += [f"v_cvt_pk_bf16_f32 {vr(PK + (4*(u&3) + 2*(u>>2) if u < 8 else 16) + h)}, {vr(ACC+4*u+2*h)}, {vr(ACC+4*u+2*h+1)}" for h in range(2)]
            if 4 <= u < 8: L.append(f"ds_write_b128 {vr(VSW+u-4)}, {vr(PK+4*(u-4),4)} offset:{d}")
            if u == 8: L.append(f"ds_write_b64 {vr(VR4)}, {vr(PK+16,2)} offset:{d}")
            return L
        fl2 = o.get("fl2", 1)
        self.m_fl = 0
        xd = [f"ds_read_b128 {vr(XD+4*j,4)}, {vr(VSW+j)}" for j in range(4)]
        gp_ = o.get("gatepos", 0)
        if mh:
            vw = lambda i: (lambda: a(f"s_waitcnt vmcnt({self.vm_since(mk[i])})"))
            self.gemm_u(A_Q, ar, [("v", XA), ("a", 18), ("a", 36), ("a", 54)], ACC, lambda t: [], lambda j: bq(j) if j else None, lambda u: post(u, False, L_QD),
                        vm_items=[poll(252)], other=xd, lastk=o.get("plk", 26), pre={0: vw(3), 13: vw(8), 29: vw(14)})
            a("s_waitcnt lgkmcnt(5)")
        else:
            n_g1 = len(a.lines)
            self.gemm_u(AQ1, ar, [("v", XA), ("a", 18), ("a", 36), ("a", 54)], ACC, a_tr, lambda j: bq(j) if j else None, lambda u: post(u, False, L_QD),
                        vm_items=wl, other=xd, vmsp=o.get("vmsp", 3), at={o.get("flp", 22): flag} if fl2 < 0 else {})
            for _ in range(o.get("dup1", 0)):
                self.gemm_u(AQ1, ar, [("v", XA), ("a", 18), ("a", 36), ("a", 54)], ACC, a_tr, lambda j: bq(j) if j else None, lambda u: post(u, False, L_QD))
            for _ in range(o.get("nop1", 0)): a("s_sleep 15")
            if "1" in o.get("abA", ""):
                a.lines[n_g1:] = [l for l in a.lines[n_g1:] if not l.strip().startswith(("v_mfma", "ds_read_b64_tr", "v_cvt_pk", "ds_write", "s_nop"))]
                self.m_fl = max(i for i, l in enumerate(a.lines) if "buffer_store" in l) + 1
            self.stamp("g1")
            for i in range(4): a(f"v_mov_b32 {vr(CL+i)}, -1")
            a(f"s_lshl2_add_u32 {sr(T+2)}, s2, {sr(S_W)}\ns_mul_i32 {sr(T+2)}, {sr(T+2)}, 2560\ns_add_u32 {sr(T+2)}, {sr(T+2)}, {WS_IB}")
            a(f"s_mov_b32 {sr(T+4)}, {f32(LOG2E / 12.0)}\ns_waitcnt vmcnt({self.vm_since(max(last(SK), self.m_fl)) + (last(SK) < self.m_fl)}) lgkmcnt(0)\ns_barrier")
            T2 = T + 2
            clr = [f"buffer_store_dwordx4 {vr(CL,4)}, {vr(V_DMA)}, {sr(S_WS,4)}, {sr(T+2)} offen sc1",
                   f"buffer_store_dwordx4 {vr(CL,4)}, {vr(V_DMA)}, {sr(S_WS,4)}, {sr(T+2)} offen offset:1024 sc1",
                   f"buffer_store_dwordx2 {vr(CL,2)}, {vr(L8)}, {sr(S_WS,4)}, {sr(T+2)} offen offset:2048 sc1"]
            self.stamp("bar2")
            gp_ = o.get("gatepos", 0)
            cl1 = not o.get("cll", 1)
            self.gemm_u(A_Q, ar, [("a", 18 * j) for j in range(4)], ACC, a_row, lambda j: bq(j, L_QD), lambda u: post(u, True, 0), vm_items=((clr if cl1 else []) + [poll(252)] if gp_ == 0 else clr if cl1 else []), vm0=o.get("pg", 6), vmsp=o.get("csp", 3),
                        lastk=o.get("plk", 26) if gp_ == 0 else 0, at={fl2: flag} if fl2 >= 0 else {})
            if "2" in o.get("abA", ""):
                n_g2 = max(i for i, l in enumerate(a.lines) if "s_barrier" in l) + 1
                k_ = [0]
                def keep(l):
                    if l.strip().startswith("v_mfma"):
                        k_[0] += 1; return k_[0] % 2 == 0
                    return True
                a.lines[n_g2:] = [l for l in a.lines[n_g2:] if keep(l)]
        self.stamp("g2")
        p = lambda r: vr(r, 2)
        CC = TM
        for j in range(4): a(f"v_dot2_f32_bf16 {vr(CC+j)}, {vr(PK+4*j)}, {vr(XD+4*j)}, 0")
        for i in range(2): a(f"v_dot2_f32_bf16 {vr(CC)}, {vr(PK+16+i)}, {vr(XA+16+i)}, {vr(CC)}")
        for i in range(1, 4):
            for j in range(4): a(f"v_dot2_f32_bf16 {vr(CC+j)}, {vr(PK+4*j+i)}, {vr(XD+4*j+i)}, {vr(CC+j)}")
        QE = VS if gs else TRQ
        a(f"""s_xor_b32 {sr(T+1)}, {sr(self.NB)}, 1
        v_add_u32 {vr(t0)}, {L_XX + (L_QD if mh else 0)}, {vr(V_DMA)}
        v_lshl_add_u32 {vr(QE)}, {sr(T+1)}, 12, {vr(t0)}
        v_lshl_add_u32 {vr(QE+1)}, {sr(self.NB)}, 12, {vr(t0)}""")
        self.treduce(CC)
        a(f"""ds_write_b32 {vr(MXA)}, {vr(CC)}
        v_add_u32 {vr(t0)}, {L_XR + (L_QD if mh else 0)}, {vr(L8)}
        v_lshl_add_u32 {vr(QE+2)}, {sr(T+1)}, 9, {vr(t0)}
        v_lshl_add_u32 {vr(QE+3)}, {sr(self.NB)}, 9, {vr(t0)}
        v_lshl_add_u32 {vr(QE+4)}, {sr(T+1)}, 8, {vr(MXR)}
        v_lshl_add_u32 {vr(QE+5)}, {sr(self.NB)}, 8, {vr(MXR)}
        s_sub_u32 {sr(T+5)}, 63, {sr(S_H)}
        s_bfm_b64 {sr(T+8,2)}, {sr(T+5)}, 0
""")
        if gp_ == 0:
            a(f"s_cmp_lg_u32 {sr(S_W)}, 0\ns_cbranch_scc1 L_ga_ok")
            gate("L_ga", 252, sr(T + 8, 2), 0)
        else: a(poll(252))
        a("s_waitcnt lgkmcnt(0)\ns_barrier")
        self.stamp("bar3")
        qrd = [f"ds_read_b128 {vr(MS+4*qb,4)}, {vr(QE+4+(qb&1))} offset:{512*(qb>>1)}" for qb in range(4)]
        for qb in range(4):
            qrd += [f"ds_read_b128 {ar(A_Q+18*qb+4*s,4)}, {vr(QE+(qb&1))} offset:{8192*(qb>>1) + 1024*s}" for s in range(4)]
            qrd.append(f"ds_read_b64 {ar(A_Q+18*qb+16,2)}, {vr(QE+2+(qb&1))} offset:{1024*(qb>>1)}")
        if gs:
            tg = self.tile_groups(0) + self.tile_groups(1)
            n0 = o.get("n0", 3)
            for x in tg[:n0]: a(x)
            tg = tg[n0:]
            if gs < 3: a(f"v_mov_b32 {vr(CC+4)}, 1.0")
            mem = []
            qpd = o.get("qpd", 2)
            while tg or qrd:
                it = []
                if tg: it.append(tg.pop(0))
                it += [qrd.pop(0) for _ in range(min(qpd, len(qrd)))]
                mem.append("\n".join(it))
            com = [x for st_ in gst[gs:] for x in st_]
            ev = o.get("gev", 3)
            for i, x in enumerate(com):
                a(x)
                if i % ev == ev - 1 and mem: a(mem.pop(0))
            if gs == 6:
                for x in mem: a(x)
        if gs and gs < 6:
            a(f"""s_mul_i32 {sr(T)}, {sr(WV+1)}, {BLK}
            s_cmp_eq_u32 {sr(S_H)}, 1
            s_cbranch_scc1 L_ln2
            s_add_u32 {sr(T)}, {sr(T)}, {WS_U}""")
            m0_ = list(mem)
            for i in range(18):
                a(f"v_cvt_pk_bf16_f32 {vr(UG+i)}, {vr(H+2*i)}, {vr(H+2*i+1)}")
                if i % o.get("gev0", 2) == 1 and m0_: a(m0_.pop(0))
            for x in m0_: a(x)
            a("s_branch L_ug")
            a.label("L_ln2")
            a(f"s_add_u32 {sr(T)}, {sr(T)}, {WS_G}")
            a.bg, a.every, a.cnt = list(mem), o.get("gev1", 6), 0
            self.ln_f32(H, UG, TM)
            a.flush()
            a.label("L_ug")
            m_t0 = m_t1 = None
        if not gs:
            tg = self.tile_groups(0) + self.tile_groups(1) + self.tile_groups(2)[:8]
            n0 = o.get("n0", 3) if gp_ == 0 else 0
            for x in tg[:n0]: a(x)
            a(f"v_mov_b32 {vr(CC)}, {f32(c1)}\nv_mov_b32 {vr(CC+2)}, {f32(c2)}\nv_mov_b32 {vr(CC+4)}, 1.0")
            nq1, nt1 = (o.get("nq1", 8), o.get("nt1", 5)) if gp_ == 0 else (o.get("nq1", 16), 0)
            bgl = []
            for i in range(max(nq1 // 2, nt1)):
                if 2 * i < nq1: bgl.append(qrd[2 * i] + "\n" + qrd[2 * i + 1])
                if i < nt1: bgl.append(tg[n0 + i])
            tg, qrd = tg[n0 + nt1:], qrd[nq1:]
            a.bg, a.every, a.cnt = bgl, 54 // (len(bgl) + 1), 0
            for x in gst[0]: a(x)
            a.flush()
            if gp_:
                self.stamp("ge0")
                gate("L_ga", 252, sr(T + 8, 2), 0)
                for x in tg[:2]: a(x)
                tg = tg[2:]
            self.stamp("ge1")
            esp = o.get("esp", 3 if gp_ else 4)
            for i in range(36):
                a(gst[1][i])
                if i % esp == 1 and tg: a(tg.pop(0))
                if i % 8 == 3 and qrd: a(qrd.pop(0)); a(qrd.pop(0))
            self.stamp("ge2")
            for x in gst[2]: a(x)
            for i in range(36):
                a(gst[3][i])
                if i % esp == 1 and tg: a(tg.pop(0))
                if i % 8 == 3 and qrd: a(qrd.pop(0)); a(qrd.pop(0))
            assert not tg and not qrd
            idx = [i for i, l in enumerate(a.lines) if l.strip().startswith("buffer_load") and l.rstrip().endswith("lds")]
            m_t0, m_t1 = idx[-18] + 1, idx[-9] + 1
            for x in gst[4]: a(x)
            a(f"""s_mul_i32 {sr(T)}, {sr(WV+1)}, {BLK}
            s_cmp_eq_u32 {sr(S_H)}, 1
            s_cbranch_scc1 L_ln2
            s_add_u32 {sr(T)}, {sr(T)}, {WS_U}""")
            for i in range(18): a(f"v_cvt_pk_bf16_f32 {vr(UG+i)}, {vr(H+2*i)}, {vr(H+2*i+1)}")
            a("s_branch L_ug")
            a.label("L_ln2")
            a(f"s_add_u32 {sr(T)}, {sr(T)}, {WS_G}")
            self.ln_f32(H, UG, TM)
            a.label("L_ug")
        self.stamp("ge3")
        if gs < 6: a(f"s_cmp_eq_u32 {sr(WV)}, 1\ns_cselect_b32 {sr(S_UG)}, {sr(T)}, 0x40000000")
        a("s_waitcnt lgkmcnt(0)")
        kz = [f"s_waitcnt vmcnt({9 if gs else self.vm_since(m_t0)})"] + self.k_reads(0, V_V)
        if not gs:
            for x in kz: a(x)
        self.ugs = [f"buffer_store_dwordx4 {vr(UG+4*s,4)}, {vr(V_DMA)}, {sr(S_WS,4)}, {sr(S_UG)} offen offset:{1024*s} sc1" for s in range(4)]
        self.ugs.append(f"buffer_store_dwordx2 {vr(UG+16,2)}, {vr(self.VL8)}, {sr(S_WS,4)}, {sr(S_UG)} offen sc1")
        for qb in range(4): a(f"v_pk_add_f32 {p(MS+4*qb)}, {p(MS+4*qb)}, {p(MS+4*qb+2)} neg_lo:[1,1] neg_hi:[1,1]")
        for qb in range(4): a(f"v_add_f32 {vr(self.MK+qb)}, {vr(MS+4*qb)}, {vr(MS+4*qb+1)}")
        a(f"v_lshlrev_b32 {vr(t1)}, 8, v0\nv_lshlrev_b32 v231, 2, v0\nv_add_u32 v231, {L_PC}, v231\nds_write_b32 v231, {vr(t1)}")
        self.loop_init(False)
        if gs:
            self.loop_init(True)
            self.stamp("ug0")
            for x in kz: a(x)
        else: self.n_t1 = self.vm_since(m_t1)
        self.stamp("ug")

    def a8(self):
        return f"v_lshrrev_b32 v255, 3, v0\nv_min_u32 v255, 1, v255\nv_lshlrev_b32 v255, 30, v255\nv_add_u32 v255, v255, {vr(V_DMA)}"

    def loop_init(self, part):
        a = self.a
        if part:
            for qb in range(4):
                for i in range(4): a(f"v_mov_b32 {vr(V_CI+4*qb+i)}, {vr(self.MK+qb)}")
            return
        for k in range(7): a(f"v_add_u32 {vr(V_HI+k)}, {2*SLOT}, {vr(V_KA+k if k < 5 else V_VB+k-5)}")
        a(f"v_add_u32 {vr(self.VS0)}, {sr(S_LB)}, {vr(V_DMA)}\nv_add_u32 {vr(self.VS0R)}, {sr(S_LB)}, {vr(self.VL8)}\ns_mov_b32 {sr(S_CNT)}, 0\ns_mov_b32 {sr(S_INC)}, {4*TILE}")
        for i in range(4): a(f"v_mov_b32 {vr(V_L+i)}, 0")
        for i in range(4): a(f"v_mov_b32 {vr(226+i)}, -1")
        if self.o.get("oib", 0):
            T = S_T
            a(f"""s_mul_i32 {sr(S_CL)}, {sr(S_TOWN)}, {TILE}
            s_mul_i32 {sr(T)}, {sr(self.NB)}, {BLK}
            s_lshl_b32 {sr(T+1)}, {sr(self.PT)}, 11
            s_add_u32 {sr(T)}, {sr(T)}, {sr(T+1)}
            s_add_u32 {sr(S_CL)}, {sr(S_CL)}, {sr(T)}
            s_xor_b32 {sr(T+1)}, {sr(S_H)}, 1
            s_sub_u32 {sr(T+1)}, {sr(T+1)}, {sr(S_H)}
            s_mul_i32 {sr(T+1)}, {sr(T+1)}, {TILE}
            s_add_u32 {sr(S_OS)}, {sr(S_CL)}, {sr(T+1)}
            s_cmp_ge_u32 s2, 248
            s_cselect_b32 {sr(T)}, 2.0, 0
            s_mul_i32 {sr(T+1)}, {sr(T)}, {sr(S_H)}
            s_sub_u32 {sr(T)}, {sr(T)}, {sr(T+1)}
            s_add_u32 {sr(S_OS)}, {sr(S_OS)}, {sr(T)}
            s_add_u32 {sr(S_OR)}, {sr(S_CL)}, {sr(T+1)}
            s_lshl_b32 {sr(T)}, {sr(S_REDO)}, 30
            s_or_b32 {sr(S_CL)}, {sr(S_OR)}, {sr(T)}
            s_lshl1_add_u32 {sr(S_CL+1)}, s2, {sr(self.NB)}
            s_mul_i32 {sr(S_CL+1)}, {sr(S_CL+1)}, 5120
            s_add_u32 {sr(S_CL+1)}, {sr(S_CL+1)}, {sr(T)}
            s_lshl_b32 {sr(T)}, {sr(self.PT)}, 9
            s_add_u32 {sr(T)}, {sr(T)}, {WS_IB}
            s_add_u32 {sr(S_CL+1)}, {sr(S_CL+1)}, {sr(T)}""")
        else:
            a(f"""s_lshl2_add_u32 {sr(S_CL)}, s2, {sr(S_W)}
            s_mul_i32 {sr(S_CL)}, {sr(S_CL)}, 2560
            s_lshl_b32 {sr(S_CL+1)}, {sr(S_REDO)}, 30
            s_add_u32 {sr(S_CL)}, {sr(S_CL)}, {sr(S_CL+1)}
            s_add_u32 {sr(S_CL)}, {sr(S_CL)}, {WS_IB}
            s_sub_u32 {sr(S_CL+1)}, {sr(S_CL)}, 2048""")
        a(f"v_mov_b32 v207, {sr(S_N)}\nv_mov_b32 {vr(self.VPL+1)}, 1\nv_lshlrev_b32 v231, 2, v0\nv_add_u32 v231, {L_PC}, v231")
        if self.o.get("xm", 0): a(f"s_add_u32 {sr(S_T)}, {sr(S_N)}, {sr(S_XC)}\nv_writelane_b32 v207, {sr(S_T)}, 1")

    def head(self):
        a, o = self.a, self.o
        gs = o.get("gs", 0)
        a.label("L_go")
        if not gs: self.loop_init(True)
        a("s_waitcnt lgkmcnt(0)\ns_barrier")
        self.stamp("bar5")
        base = self.qk_mfmas(0)
        pick = lambda s_, kb, qb: base[8 * s_ + 4 * kb + qb].replace(vr(V_K + 8 * s_ + 4 * kb, 4) + ",", vr(V_V + 8 * s_ + 4 * kb, 4) + ",").replace(vr(V_K + 32 + 2 * kb, 2) + ",", vr(V_V + 32 + 2 * kb, 2) + ",")
        mf, fin = [], {}
        for qb, s_ in [(0, 0), (0, 1), (0, 2), (0, 3), (1, 0), (1, 1), (0, 4), (1, 2), (1, 3), (2, 0), (2, 1), (1, 4), (2, 2), (2, 3), (3, 0), (3, 1), (2, 4),
                       (3, 2), (3, 3), (3, 4)]:
            for kb in range(2):
                fin[qb, kb] = len(mf)
                mf.append(("s_nop 3\n" if (qb, s_, kb) == (3, 4, 0) else "") + pick(s_, kb, qb))
        enew = [e[1] for g in range(40, 76) for e in self.gaps[g] if e[0] == "E"]
        items = self.e_items(0, enew, lambda qb, j: 0, lambda qb: 999)
        for it, e in zip(items, enew):
            if e[0] == "e": it["am"] = fin[e[1], e[2] // 4]
        dm = []
        for k, (slot, j) in enumerate([(2, j) for j in range(9)] if gs else [(2, 8)] + [(3, j) for j in range(9)]):
            g_ = 1 + o.get("hsp", 4) * k
            if j % 4 == 0: dm.append(dict(t=f"s_add_u32 m0, {sr(S_LB)}, {slot*SLOT + 4096*(j//4)}", c=0, lo=g_ - 1, hi=g_ - 1))
            dm.append(dict(t=f"buffer_load_dwordx4 {vr(V_DMA + j//4)}, {sr(S_XA,4)}, {sr(S_TOFF)} offen offset:{1024*(j%4)} {self.o.get('dfl', '')} lds", c=8, lo=g_, hi=g_))
            if j == 8: dm.append(dict(t=f"s_add_u32 {sr(S_TOFF)}, {sr(S_TOFF)}, {4*TILE}", c=0, lo=g_ + 1, hi=g_ + 1))
        nh = o.get("ugh", 2) if not o.get("ugl", 1) else 0
        for k in range(nh): dm.append(dict(t=self.ugs[k], c=8, lo=3 + 16 * k, hi=3 + 16 * k))
        if gs:
            k1 = o.get("k1lo", 22)
            kr = [dict(t=("@VM\n" if i == 0 else "") + x, c=4, lo=k1 + i // 2, hi=k1 + i // 2, nds=2) for i, x in enumerate(self.k_reads(1))]
        else:
            a(f"s_waitcnt vmcnt({self.n_t1})")
            kr = [dict(t=x, c=4, lo=i // 2, nds=2) for i, x in enumerate(self.k_reads(1))]
        left = self.pack(mf, items + dm + kr)
        print("head overflow", self.over, "left", len(left))
        left.sort(key=lambda x: not x.startswith("v_exp"))
        last = a.lines[-1].strip()
        for x in left:
            if last.startswith("v_exp") and not x.startswith("v_exp") and (last.split()[1].rstrip(",") + ",") in (x + ","): a("s_nop 0")
            a(x); last = x
        a("s_waitcnt lgkmcnt(0)")

    def tile_groups(self, slot):
        out = []
        for j in range(9):
            g = ""
            if j % 4 == 0: g = f"s_add_u32 m0, {sr(S_LB)}, {slot*SLOT + 4096*(j//4)}\ns_nop 0\n"
            g += f"buffer_load_dwordx4 {vr(V_DMA + j//4)}, {sr(S_XA,4)}, {sr(S_TOFF)} offen offset:{1024*(j%4)} {self.o.get('dfl', '')} lds"
            if j == 8: g += f"\ns_add_u32 {sr(S_TOFF)}, {sr(S_TOFF)}, {4*TILE}"
            out.append(g)
        return out

    def first_tiles(self):
        pass

    def mfuse(self):
        a = self.a
        T = S_T
        A0, B0, X8, Y8, ACC, AD, PK = 16, 52, 88, 106, 124, 160, 168
        hs = lambda i: a(f"s_memrealtime s[{80+2*i}:{81+2*i}]") if self.o.get("stamps") else None
        hs(0)
        LK = 41984
        R = 44
        tgw = self.o.get("tgw", -1)
        nd = self.o.get("ndma", 4)
        a(f"""s_sub_u32 s2, s2, 252
        s_cmp_ge_u32 s2, {NH}
        s_cbranch_scc1 L_end
        s_mov_b32 s3, L_wfuse-L_pf
        buffer_load_dwordx4 v[252:255], v2, {sr(S_W1,4)}, s3 offen
        v_and_b32 v0, 63, v0
        v_lshlrev_b32 {vr(V_DMA)}, 4, v0
        s_mul_i32 {sr(T+2)}, s2, {TILE}""")
        AA = 180
        a(f"""v_and_b32 {vr(AD+4)}, 15, v0
        v_mul_u32_u24 {vr(AD+4)}, 288, {vr(AD+4)}
        v_lshrrev_b32 {vr(AD+6)}, 4, v0
        v_lshl_add_u32 {vr(AD+5)}, {vr(AD+6)}, 3, {vr(AD+4)}
        v_lshl_add_u32 {vr(AD+4)}, {vr(AD+6)}, 4, {vr(AD+4)}
        v_bfe_u32 {vr(AD+6)}, v0, 2, 1
        v_mul_u32_u24 {vr(AD+6)}, {BLK}, {vr(AD+6)}
        v_sub_u32 {vr(AD+7)}, {BLK}, {vr(AD+6)}
        v_add_u32 {vr(AD)}, {vr(AD+4)}, {vr(AD+6)}
        v_add_u32 {vr(AD+1)}, {vr(AD+5)}, {vr(AD+6)}
        v_add_u32 {vr(AD+2)}, {vr(AD+4)}, {vr(AD+7)}
        v_add_u32 {vr(AD+3)}, {vr(AD+5)}, {vr(AD+7)}
        v_lshlrev_b32 {vr(AD+6)}, 3, v0
        s_and_b32 {sr(T)}, s2, 1
        s_lshl1_add_u32 {sr(T)}, {sr(T)}, {sr(S_W)}
        s_and_b32 {sr(T)}, {sr(T)}, 3
        s_mul_i32 {sr(T+1)}, {sr(T)}, {TILE}""")
        for i in range(4): a(f"v_add_u32 {vr(AA+i)}, {sr(T+1)}, {vr(AD+i)}")
        a("s_mov_b64 vcc, 0xff\nv_mov_b32 v248, 2.0\nv_cndmask_b32 v248, v248, " + vr(V_DMA) + ", vcc")
        a("s_waitcnt lgkmcnt(0)")
        hs(1)
        self.srd(S_W1, 58, 59, 41472)
        self.srd(S_W2, 60, 61, 41472)
        self.srd(S_DB, 76, 77, 256)
        self.srd(S_WS, 78, 79, 256 << 20)
        n1 = self.o.get("md1", 3)
        a(f"s_lshl_b32 {sr(T+6)}, {sr(S_W)}, 10\ns_mov_b32 m0, {sr(T+6)}\ns_mov_b32 {sr(T+7)}, {sr(T+6)}")
        for k in range(n1): a(f"buffer_load_dwordx4 {vr(V_DMA)}, {sr(S_W1,4)}, {sr(T+7)} offen lds\ns_add_u32 m0, m0, 4096\ns_add_u32 {sr(T+7)}, {sr(T+7)}, 4096")
        a(f"""s_lshl2_add_u32 {sr(R+2)}, s2, {sr(S_W)}
        s_mov_b32 {sr(R+1)}, {f32(LOG2E / 12.0)}
        s_mov_b32 {sr(R)}, 0
        s_mov_b32 {sr(R+4)}, 15
        s_mov_b32 {sr(R+3)}, 0x40000
        s_mov_b32 {sr(S_RO)}, 0
        s_mov_b64 exec, 0
        s_cmp_eq_u32 {sr(S_W)}, 0
        s_cbranch_scc1 L_mf0
        s_cmp_eq_u32 {sr(S_W)}, 1
        s_cbranch_scc1 L_mfb
        s_cmp_eq_u32 {sr(S_W)}, 2
        s_cbranch_scc1 L_mf3
        s_branch L_mfa""")
        a.label("L_mf9")
        a("s_mov_b64 exec, -1")
        hs(2)
        a.label("L_mq")
        a(f"""buffer_load_dwordx4 {vr(V_DMA)}, {sr(S_W1,4)}, {sr(T+7)} offen lds
        s_add_u32 m0, m0, {1024*nd}
        s_add_u32 {sr(T+7)}, {sr(T+7)}, {1024*nd}
        s_cmp_lt_u32 {sr(T+7)}, 41472
        s_cbranch_scc1 L_mq
        s_add_u32 m0, {sr(T+6)}, {LK}
        s_add_u32 {sr(T+7)}, {sr(T+6)}, {sr(T+2)}
        s_add_u32 {sr(T+3)}, {sr(T+2)}, {TILE}""")
        a.label("L_mk")
        a(f"""buffer_load_dwordx4 {vr(V_DMA)}, {sr(S_W2,4)}, {sr(T+7)} offen lds
        s_add_u32 m0, m0, {1024*nd}
        s_add_u32 {sr(T+7)}, {sr(T+7)}, {1024*nd}
        s_cmp_lt_u32 {sr(T+7)}, {sr(T+3)}
        s_cbranch_scc1 L_mk
        s_add_u32 m0, {sr(T+6)}, {LK + TILE}
        s_add_u32 {sr(T+7)}, {sr(T+6)}, {8*BLK}""")
        a.label("L_mk8")
        a(f"""buffer_load_dwordx4 {vr(V_DMA)}, {sr(S_W2,4)}, {sr(T+7)} offen lds
        s_add_u32 m0, m0, {1024*nd}
        s_add_u32 {sr(T+7)}, {sr(T+7)}, {1024*nd}
        s_cmp_lt_u32 {sr(T+7)}, 41472
        s_cbranch_scc1 L_mk8""")
        a("s_waitcnt vmcnt(0)")
        a(f"""s_lshl_b32 {sr(R)}, {sr(R+2)}, 1
        s_lshr_b32 {sr(R)}, {hex(sum(r << (2*i) for i, r in enumerate([1,3,2,2, 1,0,2,2, 1,0,0,0, 1,0,0,0])))}, {sr(R)}
        s_and_b32 {sr(R)}, {sr(R)}, 3
        s_lshl_b32 {sr(R+4)}, 1, {sr(R)}
        {self.region(S_RO, 4)}
        s_mov_b32 {sr(R+3)}, 0""")
        hs(3)
        a("s_barrier")
        if self.o.get("hsx"): hs(0); a("s_waitcnt lgkmcnt(0)")
        a.label("L_mf0")

        def prod(units, pk, waits=None):
            for s in range(5):
                if waits and s == self.o.get("msp", 1): a("s_cbranch_execz L_mf9\nL_mfa:")
                if waits: a(f"s_waitcnt lgkmcnt({waits[s]})")
                if waits and s == 4 and self.o.get("hsx"): hs(1)
                if s == 4: a(f"s_nop {max(0, 6 - len(units))}")
                for d, x, y in units:
                    if s < 4: a(f"v_mfma_f32_16x16x32_bf16 {vr(d,4)}, {vr(x+4*s,4)}, {vr(y+4*s,4)}, {'0' if s == 0 else vr(d,4)}")
                    else: a(f"v_mfma_f32_16x16x16_bf16 {vr(d,4)}, {vr(x+16,2)}, {vr(y+16,2)}, {vr(d,4)}")
            if waits:
                a(f"s_bitcmp1_b32 {sr(R)}, 0\ns_cbranch_scc0 L_mf1")
                for x in rd(X8, AD + 4, 8 * BLK): a(x)
                a.label("L_mf1")
                a(f"s_bitcmp1_b32 {sr(R)}, 1\ns_cbranch_scc0 L_mf2")
                for x in rd(Y8, AD + 4, LK + TILE): a(x)
                a.label("L_mf2")
                a("s_nop 3")
            else: a("s_nop 7")
            for k, (d, x, y) in enumerate(units):
                for i in range(0, 4, 2): a(f"v_pk_mul_f32 {vr(d+i,2)}, {vr(d+i,2)}, {sr(R+1-1+1,1) if False else 'v[246:247]'} op_sel_hi:[1,0]")
                for h in range(2): a(f"v_cvt_pk_bf16_f32 {vr(pk+2*k+h)}, {vr(d+2*h)}, {vr(d+2*h+1)}")
        rd = lambda dst, ad, off: [f"ds_read_b128 {vr(dst+4*s,4)}, {vr(ad)} offset:{off + 64*s}" for s in range(4)] + [f"ds_read_b64 {vr(dst+16,2)}, {vr(ad+1)} offset:{off + 256}"]
        L4 = [rd(A0, AA, 0), rd(B0, AD, LK), rd(A0 + 18, AA + 2, 0), rd(B0 + 18, AD + 2, LK)]
        for s_ in range(5):
            for l in L4: a(l[s_])
        a(f"v_mov_b32 v246, {sr(R+1)}\nbuffer_load_dword v253, off, {sr(S_DB,4)}, 0 sc1")
        prod([(ACC + 8 * e + 4 * k, A0 + 18 * k, B0 + 18 * e) for e in range(2) for k in range(2)], PK, [15, 12, 8, 4, 0])
        a(f"s_cbranch_execz L_mst")
        if self.o.get("hsx"): hs(2)
        a.label("L_mfb")
        a(f"s_waitcnt lgkmcnt(0)\ns_bitcmp1_b32 {sr(R+4)}, 1\ns_cbranch_scc0 L_mf3")
        prod([(ACC + 4 * e, X8, B0 + 18 * e) for e in range(2)], PK + 8)
        a(f"s_cbranch_execz L_mf9")
        a.label("L_mf3")
        a(f"s_bitcmp1_b32 {sr(R+4)}, 2\ns_cbranch_scc0 L_mf4")
        prod([(ACC + 4 * k, A0 + 18 * k, Y8) for k in range(2)], PK + 8)
        a.label("L_mf4")
        a(f"s_bitcmp1_b32 {sr(R+4)}, 3\ns_cbranch_scc0 L_mf5")
        prod([(ACC, X8, Y8)], PK + 8)
        a(f"s_cbranch_execz L_mf9")
        a.label("L_mf5")
        hs(4)
        a(f"""s_waitcnt vmcnt(0)
        v_readfirstlane_b32 {sr(S_N)}, v253
        {self.region(T+4, S_N)}
        s_cmp_lg_u32 {sr(S_N)}, 0
        s_cselect_b32 {sr(S_RO)}, {sr(T+4)}, {sr(S_RO)}""")
        a.label("L_mst")
        a(f"""s_lshl_b32 {sr(T+1)}, {sr(T)}, 10
        s_add_u32 {sr(T+1)}, {sr(T+1)}, {WS_M}
        s_add_u32 {sr(T+1)}, {sr(T+1)}, {sr(S_RO)}
        s_add_u32 {sr(T+4)}, {sr(T+1)}, {sr(T+2)}
        s_add_u32 {sr(T+5)}, {sr(T+4)}, {BLK}
        buffer_store_dwordx4 {vr(PK,4)}, {vr(V_DMA)}, {sr(S_WS,4)}, {sr(T+4)} offen sc1
        buffer_store_dwordx4 {vr(PK+4,4)}, {vr(V_DMA)}, {sr(S_WS,4)}, {sr(T+5)} offen sc1
        s_add_u32 {sr(T+1)}, {sr(T+1)}, {8*BLK}
        s_cmp_eq_u32 {sr(R)}, 2
        s_cselect_b32 {sr(T+1)}, {sr(T+1)}, 2.0
        buffer_store_dwordx4 {vr(PK+8,4)}, {vr(V_DMA)}, {sr(S_WS,4)}, {sr(T+1)} offen sc1
        s_cmp_eq_u32 {sr(R)}, 3
        s_cselect_b32 {sr(T+4)}, {8*BLK}, {sr(T+2)}
        s_add_u32 {sr(T+4)}, {sr(T+4)}, {WS_M + 4096}
        s_add_u32 {sr(T+4)}, {sr(T+4)}, {sr(S_RO)}
        s_add_u32 {sr(T+5)}, {sr(T+4)}, {BLK}
        s_cmp_eq_u32 {sr(R)}, 1
        s_cselect_b32 {sr(T+5)}, {sr(T+5)}, 2.0
        s_bitcmp1_b32 {sr(R)}, 0
        s_cselect_b32 {sr(T+4)}, {sr(T+4)}, 2.0
        buffer_store_dwordx2 {vr(PK+8,2)}, {vr(AD+6)}, {sr(S_WS,4)}, {sr(T+4)} offen sc1
        buffer_store_dwordx2 {vr(PK+10,2)}, {vr(AD+6)}, {sr(S_WS,4)}, {sr(T+5)} offen sc1
        s_mov_b32 {sr(T+1)}, {sr(R+3)}
        s_or_b32 {sr(T+4)}, {sr(S_N)}, {sr(R+3)}
        s_cbranch_scc1 L_mfl""")
        a.label("L_mtag")
        a(f"""buffer_load_dword v253, off, {sr(S_DB,4)}, 0 sc1
        s_add_u32 {sr(T+1)}, {sr(T+1)}, 1
        s_waitcnt vmcnt(0)
        v_readfirstlane_b32 {sr(S_N)}, v253
        s_cmp_lt_u32 {sr(T+1)}, 0x40000
        s_cselect_b32 {sr(T+4)}, {sr(S_N)}, 1
        s_cmp_eq_u32 {sr(T+4)}, 0
        s_cbranch_scc1 L_mtag
        {self.region(T+4, S_N)}
        s_cmp_lg_u32 {sr(T+4)}, {sr(S_RO)}
        s_mov_b32 {sr(S_RO)}, {sr(T+4)}
        s_cbranch_scc1 L_mst""")
        a.label("L_mfl")
        a(f"""s_lshl_b32 {sr(T+1)}, {sr(R+2)}, 7
        s_add_u32 {sr(T+1)}, {sr(T+1)}, {WS_FM}
        s_add_u32 {sr(T+1)}, {sr(T+1)}, {sr(S_RO)}""")
        for i in range(4): a(f"v_mov_b32 {vr(16+i)}, {sr(S_N)}")
        a("s_cbranch_execz L_mf9\ns_waitcnt vmcnt(0)")
        hs(5)
        a(f"""buffer_store_dwordx4 v[16:19], v248, {sr(S_WS,4)}, {sr(T+1)} offen sc1
        s_barrier""")
        a.label("L_mf6")
        if self.o.get("stamps"):
            a("s_waitcnt vmcnt(0)")
            hs(6)
            a(f"s_waitcnt lgkmcnt(0)\ns_lshl2_add_u32 {sr(T)}, s2, {sr(S_W)}\ns_lshl_b32 {sr(T)}, {sr(T)}, 7\ns_add_u32 {sr(T)}, {sr(T)}, {WS_DBG + 252*512}\nv_mov_b32 v1, 0")
            for i in range(16): a(f"v_mov_b32 {vr(16+i)}, s{80+i}")
            for i in range(4): a(f"buffer_store_dwordx4 {vr(16+4*i,4)}, v1, {sr(S_WS,4)}, {sr(T)} offen offset:{16*i}")
        a("s_cmp_ge_u32 s2, 2\ns_cbranch_scc1 L_end")

    def wfuse(self):
        a = self.a
        BF, ACC, AF, TM, AD = 88, 108, 144, 208, 240
        LA, LB_, LM = 0, 44032, 88064
        T = S_T
        a.label("L_wfuse")
        mh = self.o.get("mh", 0)
        if mh: self.mfuse()
        else:
            a(f"{'s_sub_u32 s2, s6, 246' if self.o.get('xm', 0) == 2 else f's_add_u32 s2, s2, {NH}'}\ns_cmp_ge_u32 s2, {NH}\ns_cbranch_scc1 L_end")
            a(f"v_lshrrev_b32 v1, 6, v0\nv_and_b32 v0, 63, v0\nv_readfirstlane_b32 {sr(S_W)}, v1\nv_lshlrev_b32 {vr(V_DMA)}, 4, v0\ns_waitcnt lgkmcnt(0)")
        rot = self.o.get("rot", 0) == 1
        if not rot and not mh: self.srd(S_WS, 78, 79, WS_END)
        self.srd(S_DB, 76, 77, 256)
        self.wf0 = 0
        self.srd(S_X, 72, 73, 82944)
        self.srd(S_W2, 62, 63, 41472)
        a(f"""s_cmp_eq_u32 s2, {self.wf0}
        s_cselect_b32 {sr(S_W1)}, s64, s70
        s_cselect_b32 {sr(S_W1+1)}, s65, s71
        s_mov_b32 {sr(S_W1+2)}, 41472
        s_mov_b32 {sr(S_W1+3)}, 0x20000
        s_cselect_b32 {sr(T+4)}, 0, 41472""")
        self.dma_rows([(S_W1, "0", LA), (S_W2, "0", LB_)], 19, 288, TM + 4, TM + 5, 11, 3, "L_wf1")
        a(f"s_lshl_b32 {sr(T)}, {sr(S_W)}, 10\ns_add_u32 {sr(T+2)}, {sr(T)}, {sr(T+4)}")
        for k in range(11):
            if k == 10: a(f"s_cmp_ge_u32 {sr(S_W)}, 1\ns_cbranch_scc1 L_wf2")
            a(f"s_add_u32 m0, {sr(T)}, {LM + 4096*k}\ns_add_u32 {sr(T+1)}, {sr(T+2)}, {4096*k}")
            a(f"buffer_load_dwordx4 {vr(V_DMA)}, {sr(S_X,4)}, {sr(T+1)} offen lds")
        a.label("L_wf2")
        self.srd(S_DW, 68, 69, 864)
        a(f"""v_and_b32 {vr(TM)}, 15, v0
        v_lshlrev_b32 {vr(TM+2)}, 4, {vr(TM)}
        v_lshlrev_b32 {vr(TM)}, 1, {vr(TM)}
        v_bfe_u32 {vr(TM+3)}, v0, 4, 1
        v_lshl_add_u32 {vr(TM+1)}, {vr(TM+3)}, 7, {vr(TM)}
        v_lshl_add_u32 {vr(TM+2)}, {vr(TM+3)}, 11, {vr(TM+2)}
        v_and_b32 {vr(TM+3)}, 1, v0
        v_lshlrev_b32 {vr(TM+3)}, 4, {vr(TM+3)}
        v_bfe_i32 {vr(TM+4)}, v0, 1, 1
        v_not_b32 {vr(TM+5)}, {vr(TM+4)}""")
        for k in range(3):
            for i in range(5): a(f"buffer_load_ushort {vr(16+5*k+i)}, {vr(TM+1 if i < 4 else TM)}, {sr(S_DW,4)}, 0 offen offset:{288*k + (32*i if i < 4 else 256)}")
        def wtag():
            a(f"s_mov_b32 {sr(T+2)}, 0")
            a.label("L_wtag")
            a(f"""buffer_load_dword {vr(TM+6)}, off, {sr(S_DB,4)}, 0 sc1
            s_add_u32 {sr(T+2)}, {sr(T+2)}, 1
            s_waitcnt vmcnt(0)
            v_readfirstlane_b32 {sr(S_N)}, {vr(TM+6)}
            s_cmp_lt_u32 {sr(T+2)}, 0x40000
            s_cselect_b32 {sr(T)}, {sr(S_N)}, 1
            s_cmp_eq_u32 {sr(T)}, 0
            s_cbranch_scc1 L_wtag""")
        if rot:
            wtag()
            a(f"""s_lshl_b32 {sr(T)}, {sr(S_N)}, {24 - self.o.get('rsh', 14)}
            s_and_b32 {sr(T)}, {sr(T)}, 0x0f000000
            s_add_u32 {sr(S_WS)}, s78, {sr(T)}
            s_addc_u32 {sr(S_WS+1)}, s79, 0
            s_mov_b32 {sr(S_WS+2)}, {self.wsn()}
            s_mov_b32 {sr(S_WS+3)}, 0x20000""")
        a(f"s_mov_b32 {sr(T+1)}, {WS_DWF}\ns_waitcnt vmcnt(0)")
        for f in range(15):
            a(f"v_lshlrev_b32 {vr(16+f)}, {vr(TM+3)}, {vr(16+f)}\nv_and_b32 {vr(32+2*f)}, {vr(TM+5)}, {vr(16+f)}\nv_and_b32 {vr(33+2*f)}, {vr(TM+4)}, {vr(16+f)}")
        for r_ in range(8): a(f"buffer_store_dwordx{4 if r_ < 7 else 2} {vr(32+4*r_, 4 if r_ < 7 else 2)}, {vr(TM+2)}, {sr(S_WS,4)}, {sr(T+1)} offen offset:{256*r_} sc1")
        self.tr_addr(AD, LM, False, TM + 8)
        self.row_addr(AD + 3, LA, TM + 8)
        a(f"v_add_u32 {vr(AD+5)}, {LB_}, {vr(AD+3)}")
        a(f"v_lshlrev_b32 {vr(AD+4)}, 3, v0")
        a(f"""s_lshr_b32 {sr(T)}, {sr(S_W)}, 1
        s_lshl_b32 {sr(T)}, {sr(T)}, 6
        s_and_b32 {sr(T+1)}, {sr(S_W)}, 1
        s_lshl_b32 {sr(T+1)}, {sr(T+1)}, 3
        s_add_u32 {sr(T)}, {sr(T)}, {sr(T+1)}
        v_and_b32 {vr(AD+6)}, 3, v0
        v_lshlrev_b32 {vr(AD+6)}, 3, {vr(AD+6)}
        v_add_u32 {vr(AD+7)}, {sr(T)}, {vr(AD+6)}""")
        for k in range(3): a(f"v_add_u32 {vr(AD+k)}, {vr(AD+7)}, {vr(AD+k)}")
        a(f"s_mov_b32 {sr(S_CNT)}, {sr(S_W)}")
        a("s_waitcnt vmcnt(0)\ns_barrier")
        a.label("L_wfl")
        for s in self.tr_reads(AD, vr)(0, BF): a(s)
        a("s_waitcnt lgkmcnt(0)")
        self.gemm(self.row_reads(AD + 3), BF, ACC, AF)
        for i in range(18): a(f"v_cvt_pk_bf16_f32 {vr(BF+i)}, {vr(ACC+2*i)}, {vr(ACC+2*i+1)}")
        a(f"s_cmp_eq_u32 s2, {self.wf0}\ns_cbranch_scc0 L_wf3")
        self.gemm(self.row_reads(AD + 5), BF, ACC, AF)
        for i in range(18): a(f"v_cvt_pk_bf16_f32 {vr(BF+i)}, {vr(ACC+2*i)}, {vr(ACC+2*i+1)}")
        a.label("L_wf3")
        a(f"""s_mul_i32 {sr(T)}, {sr(S_CNT)}, {BLK}
        s_add_u32 {sr(T)}, {sr(T)}, {sr(T+4)}
        s_add_u32 {sr(T)}, {sr(T)}, {WS_WF}
        s_add_u32 {sr(T+1)}, {sr(T)}, 4096""")
        self.store_block(BF, V_DMA, AD + 4, S_WS, T, T + 1, "sc1")
        for k in range(3): a(f"v_add_u32 {vr(AD+k)}, 128, {vr(AD+k)}")
        a(f"s_add_u32 {sr(S_CNT)}, {sr(S_CNT)}, 4\ns_cmp_lt_u32 {sr(S_CNT)}, 8\ns_cbranch_scc1 L_wfl")
        for k in range(3): a(f"v_sub_u32 {vr(AD+k)}, {vr(AD+k)}, {vr(AD+6)}")
        a(f"s_cmp_eq_u32 {sr(S_CNT)}, 8\ns_cbranch_scc1 L_wfl")
        a(f"""s_waitcnt vmcnt(0)
        s_barrier
        s_cmp_lg_u32 {sr(S_W)}, 0
        s_cbranch_scc1 L_end""")
        if not rot and not mh: wtag()
        a(f"""v_mov_b32 {vr(TM)}, {sr(S_N)}
        v_lshlrev_b32 {vr(TM+1)}, 2, v0
        s_lshl_b32 {sr(T)}, s2, 8
        s_add_u32 {sr(T)}, {sr(T)}, {WS_F + 502*256}
        buffer_store_dword {vr(TM)}, {vr(TM+1)}, {sr(S_WS,4)}, {sr(T)} offen sc1
        s_endpgm""")

    def tstore(self):
        a = self.a
        _, n, fl, allwg, off = self.o["tst"]
        if not allwg: a(f"s_cmp_lg_u32 s2, 101\ns_cbranch_scc1 L_tst")
        a(f"s_waitcnt vmcnt(0)\ns_lshl2_add_u32 s96, s2, {sr(S_W)}\ns_mul_i32 s96, s96, {1024*max(n,1)}\ns_add_u32 s96, s96, {off}")
        k = len(self.stnames)
        a(f"s_memtime s[92:93]")
        if _[-1] == "x":
            a(f"s_cmp_lt_u32 {sr(S_W)}, 2\ns_cselect_b32 s96, 2.0, {off}\ns_add_u32 s97, s96, s56\ns_add_u32 s96, s96, s55")
            for i in range(4): a(f"buffer_store_dwordx4 v[252:255], {vr(V_KA)}, {sr(S_WS,4)}, s{96+(i>>1)} offen offset:{2048*(i&1)} {fl}")
            n = -1
        if _[-1] == "k":
            a(f"s_lshr_b32 s97, {sr(S_W)}, 1\ns_lshl1_add_u32 s96, s2, s97\ns_mul_i32 s96, s96, {2048*n}\ns_and_b32 s97, {sr(S_W)}, 1\ns_lshl_b32 s97, s97, 8\ns_add_u32 s96, s96, s97\ns_add_u32 s96, s96, {off}")
            for i in range(n): a(f"buffer_store_dwordx4 v[252:255], {vr(V_KA)}, {sr(S_WS,4)}, s96 offen offset:{2048*i} {fl}")
            n = -1
        for i in range(n): a(f"buffer_store_dwordx4 v[252:255], {vr(V_DMA)}, {sr(S_WS,4)}, s96 offen offset:{1024*i} {fl}")
        if n == 0: a(f"buffer_load_dwordx4 v[252:255], {vr(V_DMA)}, {sr(S_WS,4)}, s96 offen {fl}")
        a(f"s_waitcnt vmcnt(0)\ns_memtime s[94:95]\ns_waitcnt lgkmcnt(0)")
        a.label("L_tst")

    def dump_stamps(self):
        a = self.a
        if self.o.get("tst") and self.o["tst"][0] == "end": self.tstore()
        if self.o.get("census"):
            key, mode, m_, v_ = self.o["census"]
            a(f"""s_cmp_lg_u32 s2, 100
            s_cbranch_scc1 L_end
            v_lshlrev_b32 v16, 2, v0
            s_mov_b32 s4, {WS_DBG}""")
            for k in range(4): a(f"buffer_load_dword v{20+k}, v16, {sr(S_WS,4)}, s4 offen offset:{256*k} sc1")
            a(f"s_waitcnt vmcnt(0)\nv_readlane_b32 s8, v21, 36\ns_mov_b32 s9, 0x80000000\ns_mov_b32 s10, 0x7fffffff\ns_mov_b32 s11, 0\ns_mov_b32 s17, 0")
            for k in range(4):
                a(f"s_mov_b32 s5, 0")
                a.label(f"L_cs{k}")
                a(f"""v_readlane_b32 s6, v{20+k}, s5
                s_add_u32 s7, s5, {64*k}
                s_sub_u32 s6, s6, s8
                s_and_b32 s16, s7, {m_}
                s_cmp_lg_u32 s16, {v_}
                s_cbranch_scc1 L_cn{k}
                s_min_i32 s10, s10, s6
                s_cmp_gt_i32 s6, {self.o.get("thr", 150)}
                s_addc_u32 s17, s17, 0
                s_cmp_gt_i32 s6, s9
                s_cselect_b32 s9, s6, s9
                s_cselect_b32 s11, s7, s11""")
                a.label(f"L_cn{k}")
                a(f"s_add_u32 s5, s5, 1\ns_cmp_lt_u32 s5, {64 if k < 3 else 60}\ns_cbranch_scc1 L_cs{k}")
            a({"arg": "s_lshl_b32 s6, s11, 3", "range": "s_sub_u32 s6, s9, s10\ns_lshl_b32 s6, s6, 1", "zero": "s_mov_b32 s6, 0", "cnt": "s_lshl_b32 s6, s17, 4",
               "max": "s_lshl_b32 s6, s9, 1"}[mode])
            a("s_add_u32 s6, s6, 1000\ns_memrealtime s[4:5]\ns_waitcnt lgkmcnt(0)\ns_add_u32 s6, s6, s4")
            a.label("L_echo")
            a("s_memrealtime s[4:5]\ns_waitcnt lgkmcnt(0)\ns_sub_u32 s7, s6, s4\ns_cmp_gt_i32 s7, 0\ns_cbranch_scc1 L_echo")
            return
        if self.o.get("echo"):
            if self.o["echo"][0] == "skew":
                a(f"v_mov_b32 v16, 4\nbuffer_load_dword v17, v16, {sr(S_DB,4)}, 0 offen sc1\ns_waitcnt vmcnt(0)\nv_readfirstlane_b32 s98, v17\ns_not_b32 s98, s98")
                x, y = 98, S_ST + 2 * self.stnames.index(self.o["echo"][1])
            elif self.o.get("tst") and self.o["echo"][0] == self.o["echo"][1]: x, y = 92, 94
            else:
                x, y = [S_ST + 2 * self.stnames.index(n) for n in self.o["echo"]]
            lo, hi = self.o.get("echo_ids", (0, 999))
            a(f"""s_cmp_eq_u32 {sr(S_VAL)}, 0
            s_cbranch_scc1 L_end
            s_cmp_lt_u32 s2, {lo}
            s_cbranch_scc1 L_end
            s_cmp_ge_u32 s2, {hi}
            s_cbranch_scc1 L_end
            s_and_b32 s6, s2, {self.o.get("echo_m", 0)}
            s_cmp_lg_u32 s6, {self.o.get("echo_v", 0)}
            s_cbranch_scc1 L_end
            s_cmp_lt_u32 {sr(S_W)}, {self.o.get("echo_w", 0)}
            s_cbranch_scc1 L_end
            s_memrealtime s[4:5]
            s_waitcnt lgkmcnt(0)
            s_sub_u32 s6, {sr(y)}, {sr(x)}
            s_mul_i32 s6, s6, {self.o.get("echo_mul", 1)}
            s_lshr_b32 s6, s6, {self.o.get("echo_shr", 0)}
            s_add_u32 s6, s6, {self.o.get("echo_add", 0)}
            s_add_u32 s6, s6, s4""")
            a.label("L_echo")
            a("s_memrealtime s[4:5]\ns_waitcnt lgkmcnt(0)\ns_sub_u32 s7, s6, s4\ns_cmp_gt_i32 s7, 0\ns_cbranch_scc1 L_echo")
            return
        if self.o.get("dbgst"):
            a("s_waitcnt vmcnt(0)")
            self.stamp("done")
            a("s_waitcnt lgkmcnt(0)\ns_mov_b64 exec, 1")
            slots = [1, 2, 3, 4, 5, 6, 7, 9, 11, 12, 13, 14, 15]
            a(f"s_not_b32 {sr(S_T)}, {sr(S_ST)}\nv_mov_b32 v16, {sr(S_T)}\nv_mov_b32 v17, 4\nbuffer_atomic_umax v16, v17, {sr(S_DB,4)}, 0 offen sc1")
            for i in range(min(self.nst, 12)):
                a(f"v_mov_b32 v{18+2*i}, {sr(S_ST+2*i)}\nv_mov_b32 v{19+2*i}, {4*slots[i+1]}\nbuffer_atomic_umax v{18+2*i}, v{19+2*i}, {sr(S_DB,4)}, 0 offen sc1")
            return
        if not self.o.get("stamps"): return
        T = S_T
        a(f"""s_waitcnt lgkmcnt(0)
        s_lshl_b32 {sr(T)}, s2, 2
        s_add_u32 {sr(T)}, {sr(T)}, {sr(S_W)}
        s_lshl_b32 {sr(T)}, {sr(T)}, 7
        s_add_u32 {sr(T)}, {sr(T)}, {WS_DBG}
        v_mov_b32 v1, 0""")
        for i in range(26): a(f"v_mov_b32 {vr(16+i)}, {sr(S_ST+i)}")
        for i in range(7): a(f"buffer_store_dwordx4 {vr(16+4*i,4)}, v1, {sr(S_WS,4)}, {sr(T)} offen offset:{16*i}")

    def build(self):
        a = self.a
        self.stnames = []
        a.raw(f"; @launch grid=({NWG},1,1) block=(256,1,1) lds={LDS_TOTAL}")
        a.raw('.amdgcn_target "amdgcn-amd-amdhsa--gfx950"')
        a.raw(".text")
        a.raw(f".globl {NAME}")
        a.raw(".p2align 12")
        self.entry()
        self.phase_a()
        self.rest()
        a.label("L_fin")
        self.dump_stamps()
        a.label("L_end")
        a("s_endpgm")
        self.poll2()
        if not self.o.get("touch", 1): self.rare()
        a.label("L_dummy")
        if self.o.get("mh"): self.wfuse()
        if self.o.get("rot", 0): self.moved()
        self.fallback()
        if not self.o.get("mh"): self.wfuse()
        a.label("L_cend")
        a.raw('.section .rodata,"a"')
        a.raw(".p2align 6")
        a.raw(kernel_desc(NAME, 512, 102, 256))
        return a.text()

    def S(self, buf, qb, i=0): return V_S + buf * 32 + qb * 8 + i
    def P(self, buf, qb, i=0): return V_P + buf * 16 + qb * 4 + i

    def k_reads(self, slot, V_K=V_K):
        ka, so = (V_KA, slot * SLOT) if slot < 2 else (V_HI, (slot - 2) * SLOT)
        out = [f"ds_read_b128 {vr(V_K+8*s+4*kb,4)}, {vr(ka)} offset:{so + 2048*s + 256*kb}" for s in range(4) for kb in range(2)]
        out += [f"ds_read_b64 {vr(V_K+32+2*kb,2)}, {vr(ka+1)} offset:{so + 8192 + 512*kb}" for kb in range(2)]
        return out

    def v_reads(self, slot, dst=V_V):
        (va, vr_, vb), so = ((V_VA, V_VR, V_VB), slot * SLOT) if slot < 2 else ((V_HI + 2, V_HI + 4, V_HI + 5), (slot - 2) * SLOT)
        out = []
        for T in range(9):
            for u in range(2):
                if T < 8: out.append(f"ds_read_b64_tr_b16 {vr(dst+4*T+2*u,2)}, {vr((va if T < 4 else vb)+(T&1))} offset:{so + 2048*((T>>1)&1) + 256*u}")
                else: out.append(f"ds_read_b64_tr_b16 {vr(dst+4*T+2*u,2)}, {vr(vr_)} offset:{so + 8192 + 512*u}")
        return out

    def qk_mfmas(self, buf, czero=False):
        out = []
        for s in range(5):
            for kb in range(2):
                for qb in range(4):
                    d = vr(self.S(buf, qb, 4 * kb), 4)
                    c = ("0" if czero else vr(V_CI + 4 * qb, 4)) if s == 0 else d
                    if s < 4: out.append(f"v_mfma_f32_16x16x32_bf16 {d}, {vr(V_K+8*s+4*kb,4)}, {ar(A_Q+18*qb+4*s,4)}, {c}")
                    else: out.append(f"v_mfma_f32_16x16x16_bf16 {d}, {vr(V_K+32+2*kb,2)}, {ar(A_Q+18*qb+16,2)}, {c}")
        return out

    def pv_mfmas(self, buf, czero=False):
        out = []
        for T in range(9):
            for qb in range(4):
                o = ar(A_O + 36 * qb + 4 * T, 4)
                out.append(f"v_mfma_f32_16x16x32_bf16 {o}, {vr(V_V+4*T,4)}, {vr(self.P(buf,qb),4)}, {'0' if czero else o}")
        return out

    def plan(self):
        o = self.o
        n = 76
        fixed = [None] * n
        for i, g in enumerate(range(1, 36, 2)): fixed[g] = ("V", i)
        for i, g in enumerate([41, 44, 47, 50, 53, 56, 59, 62, 65, 68]): fixed[g] = ("K", i)
        for i, g in enumerate([42, 46, 49, 52, 55, 58, 61, 64, 67]): fixed[g] = ("D", i)
        exps = [(qb, j) for qb in range(4) for j in range(8)]
        start = 40
        order = [(start + k) % n for k in range(n)]
        free_idx = [k for k, g in enumerate(order) if fixed[g] is None]
        nsm = len(free_idx) - 32
        cand = free_idx[6:-2]
        sm_set = set(free_idx[-2:]) | {cand[int((i + 0.5) * len(cand) / (nsm - 2))] for i in range(nsm - 2)}
        nds = sum(1 for f in fixed if f is not None and f[0] != "D")
        ls = o.get("lsum", "add")
        over = max(0, (48 if ls == "add" else 32) - nds - 2 * nsm)
        ocand = [k for k, g in enumerate(order) if k >= 20 and (fixed[g] is None or fixed[g][0] != "D")]
        o_set = {ocand[int((i + 0.5) * len(ocand) / over)] for i in range(over)}
        later = []
        gaps = [[] for _ in range(n)]
        small, pend, ei = [], [], 0
        for k, g in enumerate(order):
            new = (start + k) < n
            small.extend(pend); pend = later; later = []
            small.sort(key=lambda t: 0 if t[0] == "c" else 1)
            f = fixed[g]
            want = 0
            if f is not None:
                gaps[g].append((f[0], f[1], None))
                if f[0] == "D": continue
                want = 1
            elif k in sm_set: want = 2
            else:
                qb, j = exps[ei]; ei += 1
                gaps[g].append(("E", ("e", qb, j), new))
                if j & 1: pend.append(("c", qb, j // 2))
                if ls == "add": pend.append(("a", qb, j))
                elif j & 1 and ls == "pk": pend.append(("p", qb, j // 2))
            if k in o_set: want += 1
            if k == n - 1: want = 99
            for _ in range(want):
                if small:
                    it = small.pop(0)
                    gaps[g].append(("E", it, new))
                    if it[0] == "c" and ls == "dot": (small if k == n - 1 else pend).append(("d", it[1], it[2]))
        assert not small and not pend and ei == 32
        self.gaps = gaps

    def pack(self, mf, items):
        a = self.a
        where, order, done, nvm, mpos = {}, [], 0, 0, []
        isds = lambda it: "ds_" in it["t"]
        self.over = 0
        for g, m in enumerate(mf):
            assert not any(it.get("need", 999) <= g and i not in where for i, it in enumerate(items)), g
            idx = [k for k, n_ in enumerate(order) if n_ <= g]
            if idx and max(idx) + 1 > done:
                a(f"s_waitcnt lgkmcnt({min(15, len(order) - 1 - max(idx))})"); done = max(idx) + 1
            if m.startswith("@W"):
                w_, m = m.split("\n", 1)
                a(f"s_waitcnt lgkmcnt({min(15, int(w_[2:]) + len(order))})")
            a(m)
            mpos.append(len(a.lines))
            cap, pick = 8, []
            for phase in (0, 1):
                for i, it in enumerate(items):
                    if i in where or it.get("lo", 0) > g: continue
                    if "am" in it and (it["am"] >= g or len(a.lines) - mpos[it["am"]] < 8): continue
                    d = it.get("dep")
                    if d is not None and not all(where.get(x, 999) < g for x in d): continue
                    if (phase == 0 and it.get("hi", 999) <= g) or (phase == 1 and it["c"] <= cap):
                        if it["t"].startswith("buffer") and pick and any(items[x]["c"] for x in pick) and phase == 1: continue
                        if isds(it) and sum(isds(items[x]) for x in pick) >= it.get("nds", 1) and phase == 1: continue
                        pick.append(i); where[i] = g; cap -= it["c"]
            key = lambda i: 0 if items[i]["c"] == 0 else 1 if isds(items[i]) else 2 if items[i]["t"].startswith("buffer") else 3
            for i in sorted(pick, key=key):
                a(items[i]["t"].replace("@VM", f"s_waitcnt vmcnt({nvm})"))
                nvm += items[i]["t"].startswith("buffer")
                if isds(items[i]): order.append(items[i].get("need", 999))
            self.over += max(0, -cap)
        return [it["t"] for i, it in enumerate(items) if i not in where]

    def e_items(self, buf, lst, lo, hi):
        items, idx = [], {}
        for it in lst:
            kind, qb, j = it
            d = dict(t=self.etext(buf, it), c=8 if kind == "e" else 4)
            if kind == "e": d["lo"] = lo(qb, j); d["hi"] = hi(qb) - 2 - (7 - j)
            else:
                need = [("e", qb, j)] if kind == "a" else [("c", qb, j)] if kind == "d" else [("e", qb, 2 * j), ("e", qb, 2 * j + 1)]
                d["dep"] = [idx[x] for x in need if x in idx]
                if kind == "c": d["hi"] = hi(qb) - (3 - j) // 2
            idx[it] = len(items); items.append(d)
        return items

    def etext(self, buf, it):
        kind, qb, j = it
        s = self.S(buf, qb)
        if kind == "e": return f"v_exp_f32 {vr(s+j)}, {vr(s+j)}"
        if kind == "d": return f"v_dot2_f32_bf16 {vr(V_L+qb)}, {vr(self.P(buf, qb, j))}, v227, {vr(V_L+qb)}"
        if kind == "p": return f"v_pk_add_f32 {vr(208+2*qb,2)}, {vr(208+2*qb,2)}, {vr(s+2*j,2)}"
        if kind == "a": return f"v_add_f32 {vr(V_L+qb)}, {vr(V_L+qb)}, {vr(s+j)}"
        return f"v_cvt_pk_bf16_f32 {vr(self.P(buf, qb, j))}, {vr(s+2*j)}, {vr(s+2*j+1)}"

    def period(self, p, qk=True, pv=True, e_old=True, e_new=True, kread=True, vread=True, dma=True, extra={}, dsub=None, ksub=None, vm=9, halves=(0, 1), inc=None):
        a = self.a
        bn, bo = (p + 1) & 1, p & 1
        qk_, pv_ = self.qk_mfmas(bn), self.pv_mfmas(bo, czero=(p == 0))
        qo, po = self.o.get("qkord", 1), self.o.get("pvord", 0)
        if qo == 1: qk_ = [qk_[8 * s_ + 4 * kb + qb] for kb in range(2) for qb in range(4) for s_ in range(4)] + qk_[32:]
        if qo == 2: qk_ = [qk_[8 * s_ + 4 * kb + qb] for qb in range(4) for kb in range(2) for s_ in range(4)] + qk_[32:]
        if qo == 3: qk_ = [qk_[8 * s_ + 4 * kb + qb] for qb in range(4) for s_ in range(4) for kb in range(2)] + qk_[32:]
        if po == 1: pv_ = [pv_[4 * T_ + qb] for qb in range(4) for T_ in range(9)]
        mf = qk_ + pv_
        kr, vrd = self.k_reads((p + 2) % RING), self.v_reads(p % RING)
        slot = p % RING
        n = 76
        sc = [[] for _ in range(n)]
        dgs = [g for g in range(n) if any(e[0] == "D" for e in self.gaps[g])]
        if dma:
            for j, g in enumerate(dgs):
                if j % 4 == 0: sc[g - 1].append(f"s_add_u32 m0, {sr(S_LB)}, {slot*SLOT + 4096*(j//4)}")
            sc[dgs[-1] + 1].append(f"s_add_u32 {sr(S_TOFF)}, {sr(S_TOFF)}, {inc or 4*TILE}")
        w = []
        if kread: w.append(f"vmcnt({vm})")
        if pv: w.append("lgkmcnt(0)")
        if w: sc[39].append("s_waitcnt " + " ".join(w))
        if kread: sc[75].append("s_waitcnt lgkmcnt(0)")
        for half in halves:
            rng = range(0, 40) if half == 0 else range(40, 76)
            on = qk if half == 0 else pv
            if not on:
                ds, mem, val, post = [], [], [], []
                for g in rng:
                    for s_ in sc[g]:
                        (post if s_.startswith("s_waitcnt") else mem).append(s_)
                    if g in extra: mem.append(extra[g])
                    for kind, d, new in self.gaps[g]:
                        if kind == "V" and vread: ds.append(vrd[d])
                        elif kind == "K" and kread: ds.append(kr[d])
                        elif kind == "D" and dma: mem.append(f"buffer_load_dwordx4 {vr(V_DMA + d//4)}, {sr(S_XA,4)}, {sr(S_TOFF)} offen offset:{1024*(d%4)} {self.o.get('dfl', '')} lds")
                        elif kind == "E" and ((new and e_new) or (not new and e_old)): val.append((d, self.etext(bn if new else bo, d)))
                if half == 1: a("s_nop 3")
                seq, pend = [], list(val)
                while pend:
                    k = 0
                    if seq and seq[-1][0][0] == "e":
                        le = seq[-1][0]
                        dep = lambda it: it[0][1] == le[1] and ((it[0][0] == "a" and it[0][2] == le[2]) or (it[0][0] == "c" and it[0][2] == le[2] // 2))
                        have = {x[0] for x in seq}
                        ok = lambda it: it[0][0] == "e" or (("e", it[0][1], it[0][2]) in have if it[0][0] == "a" else (("e", it[0][1], 2*it[0][2]+1) in have)) or not any(x[0][0] == "e" and x[0][1] == it[0][1] and (x[0][2] == it[0][2] if it[0][0] == "a" else x[0][2] // 2 == it[0][2]) for x in pend)
                        while k < len(pend) and (dep(pend[k]) or not ok(pend[k])): k += 1
                        if k == len(pend): seq.append((("n", 0, 0), "s_nop 0")); k = 0
                    seq.append(pend.pop(k))
                step = max(1, len(seq) // (len(mem) + len(ds) + 1))
                allm = ds + mem
                for x in allm[:6]: a(x)
                allm = allm[6:]
                for i_, (d, t_) in enumerate(seq):
                    a(t_)
                    if allm and i_ % step == step - 1:
                        x = allm.pop(0); a(x)
                        if x.startswith("s_add_u32 m0"): a("s_nop 0")
                for x in allm:
                    a(x)
                    if x.startswith("s_add_u32 m0"): a("s_nop 0")
                for x in post: a(x)
                if half == 0: a("s_nop 1")
                continue
            abl = self.o.get("abl", "") if 1 <= p <= 4 else ""
            for g in rng:
                if not ("Q" in abl and g < 40 or "P" in abl and g >= 40): a(mf[g])
                for s_ in sc[g]: a(s_)
                if g in extra: a(extra[g])
                for kind, d, new in self.gaps[g]:
                    if kind in abl or (kind == "E" and d[0] in abl): continue
                    if kind == "V":
                        if vread: a(vrd[d])
                    elif kind == "K":
                        if kread: a(kr[d])
                        elif ksub: a(ksub.pop(0))
                    elif kind == "D":
                        if dma: a(f"buffer_load_dwordx4 {vr(V_DMA + d//4)}, {sr(S_XA,4)}, {sr(S_TOFF)} offen offset:{1024*(d%4)} {self.o.get('dfl', '')} lds")
                        elif dsub: a(dsub.pop(0))
                    elif (new and e_new) or (not new and e_old):
                        a(self.etext(bn if new else bo, d))

    MK, VO, VO8, GA, VS0, VS0R, VDW, VLW, VL8, VST, VPL = 232, 236, 9, 238, 250, 251, 244, 245, 246, 247, 248
    NB, PT, E_U, E_G, RS3, E_COL, RS1, RS2, MP1 = 3, 4, 5, 6, 7, 43, 36, 37, 38
    G0, GM, GP, U, DWT = 16, 26, 36, 80, (90, 252, 96, 100, 112, 116, 104, 94)
    XRS = (192, 196, 46)
    frag = staticmethod(lambda f, b: [(f, b + 4 * s) for s in range(5)])
    WD = [[("a", 216 + 4 * s) for s in range(5)], [("a", 234 + 4 * s) for s in range(5)], [("v", 208 + 4 * s) for s in range(5)]]
    WO = [[("a", 4 * s) for s in range(5)], [("a", 18 + 4 * s) for s in range(5)], [("a", 36), ("a", 40), ("a", 44), ("a", 48), ("a", 252)]]
    X1B = 98304
    X2O = L_SP - X1B
    L_L = L_SP + 9216

    def epi_setup(self):
        a = self.a
        T = S_T
        NB, PT, VO, GA = self.NB, self.PT, self.VO, self.GA
        r, g4, x, y, big, r0 = 52, 53, 54, 55, 56, 57
        a(f"""s_lshr_b32 {sr(NB)}, {sr(S_W)}, 1
        s_and_b32 {sr(PT)}, {sr(S_W)}, 1
        v_and_b32 {vr(r0)}, 15, v0
        v_lshrrev_b32 {vr(g4)}, 4, v0
        v_mul_u32_u24 {vr(x)}, 288, {vr(r0)}
        v_mov_b32 {vr(big)}, 0x40000000
        s_lshl_b32 {sr(T)}, {sr(S_TOWN)}, 1
        s_add_u32 {sr(T)}, {sr(T)}, {sr(NB)}
        s_lshl_b32 {sr(T)}, {sr(T)}, 4
        v_add_u32 {vr(r)}, {sr(T)}, {vr(r0)}
        s_mul_i32 {sr(T+1)}, {sr(S_TOWN)}, {TILE}
        s_mul_i32 {sr(T+2)}, {sr(PT)}, {BLK}
        v_add_u32 {vr(x)}, {sr(T+1)}, {vr(x)}
        s_sub_u32 {sr(T+3)}, {BLK}, {sr(T+2)}
        v_add_u32 {vr(y)}, {sr(T+3)}, {vr(x)}
        v_add_u32 {vr(x)}, {sr(T+2)}, {vr(x)}
        v_lshl_add_u32 {vr(VO)}, {vr(g4)}, 4, {vr(x)}
        v_lshl_add_u32 {vr(VO+1)}, {vr(g4)}, 4, {vr(y)}
        v_lshl_add_u32 {vr(self.VO8)}, {vr(g4)}, 3, {vr(x)}
        s_lshl_b32 {sr(T+3)}, {sr(PT)}, 11
        s_add_u32 {sr(self.E_U)}, {sr(T+3)}, {WS_U}
        s_add_u32 {sr(self.E_G)}, {sr(T+3)}, {WS_G}
        s_sub_u32 {sr(T+3)}, 4096, {sr(T+3)}
        s_lshl_b32 {sr(T)}, {sr(PT)}, 11
        s_add_u32 {sr(T)}, {sr(T)}, {WS_DWF}
        v_lshrrev_b32 {vr(x)}, 2, {vr(r0)}
        v_cmp_eq_u32 vcc, {vr(x)}, {vr(g4)}
        v_lshl_add_u32 {vr(self.VDW)}, {vr(r0)}, 4, {sr(T)}
        s_nop 0
        v_cndmask_b32 {vr(self.VDW)}, {vr(big)}, {vr(self.VDW)}, vcc
        s_lshl_b32 {sr(self.E_COL)}, {sr(S_W)}, 6
        v_lshlrev_b32 {vr(self.VL8)}, 3, v0
        v_add_u32 {vr(self.VL8)}, 4096, {vr(self.VL8)}
        v_add_u32 {vr(self.VST)}, {sr(S_LB)}, {vr(V_DMA)}
        v_add_u32 {vr(self.VST)}, {2*SLOT}, {vr(self.VST)}
        s_xor_b32 {sr(T)}, {sr(NB)}, 1
        v_xor_b32 {vr(x)}, {sr(T)}, {vr(g4)}
        v_lshl_add_u32 {vr(x)}, {vr(x)}, 4, {vr(r0)}
        s_lshl_b32 {sr(T)}, {sr(S_W)}, 2
        s_add_u32 {sr(T)}, {sr(T)}, {self.L_L}
        v_lshl_add_u32 {vr(self.VLW)}, {vr(x)}, 4, {sr(T)}
        s_sub_u32 {sr(self.MP1)}, 0, {sr(PT)}
        s_mov_b32 {sr(self.MP1+1)}, {sr(self.MP1)}""")
        for k, (d, base) in enumerate(((self.RS1, 3 * SLOT), (self.RS2, 2 * SLOT), (self.RS3, 2 * SLOT))):
            a(f"s_xor_b32 {sr(T)}, {sr(S_W)}, {k+1}\ns_mul_i32 {sr(T)}, {sr(T)}, {TILE}\ns_add_u32 {sr(d)}, {sr(T)}, {base}")
        a(f"""s_mul_i32 {sr(T)}, {sr(S_B)}, 4000
        s_add_u32 {sr(T+1)}, {sr(T)}, 3999
        s_mov_b32 {sr(T+2)}, {BLK}""")
        for k, dr in enumerate((0, -1, 1)):
            m = GA + 2 * k
            if dr: a(f"v_add_u32 {vr(m)}, {dr}, {vr(r)}\nv_cmp_eq_u32 vcc, {sr(T if dr < 0 else T+1)}, {vr(r)}")
            src = m if dr else r
            a(f"""v_lshrrev_b32 {vr(x)}, 4, {vr(src)}
            v_and_b32 {vr(y)}, 15, {vr(src)}
            v_mul_lo_u32 {vr(x)}, {vr(x)}, {sr(T+2)}
            v_lshl_add_u32 {vr(y)}, {vr(g4)}, 4, {vr(y)}
            v_lshl_add_u32 {vr(m)}, {vr(y)}, 4, {vr(x)}
            v_lshl_add_u32 {vr(m+1)}, {vr(y)}, 3, {vr(x)}
            v_add_u32 {vr(m+1)}, {sr(T+3)}, {vr(m+1)}""")
            if dr: a(f"v_cndmask_b32 {vr(m)}, {vr(m)}, {vr(big)}, vcc\nv_cndmask_b32 {vr(m+1)}, {vr(m+1)}, {vr(big)}, vcc")

    def conv_loads(self):
        GA = self.GA
        L = []
        for dst, m, so in ((self.GM, GA + 2, 1), (self.G0, GA, 1), (self.GP, GA + 4, 1), (self.U, GA, 0)):
            for k in range(2): L.append(f"buffer_load_dwordx4 {vr(dst+4*k,4)}, {vr(m)}, {sr(S_WS,4)}, {sr(self.E_U+so)} offen offset:{1024*k}")
            L.append(f"buffer_load_dwordx2 {vr(dst+8,2)}, {vr(m+1)}, {sr(S_WS,4)}, {sr(self.E_U+so)} offen")
        return L

    def rg(self, e, n): return (ar if e[0] == "a" else vr)(e[1], n)

    def w8_loads(self, regs, so):
        return [f"buffer_load_dwordx4 {self.rg(regs[s],4)}, {vr(V_DMA)}, {sr(S_WS,4)}, {sr(so)} offen offset:{1024*s}" for s in range(4)] + \
               [f"buffer_load_dwordx2 {self.rg(regs[4],2)}, {vr(self.VL8)}, {sr(S_WS,4)}, {sr(so)} offen"]

    def w_reads(self, regs, off):
        L = []
        for tt in range(2):
            L += [f"ds_read_b128 {self.rg(regs[tt][s],4)}, {vr(self.VS0)} offset:{off + BLK*tt + 1024*s}" for s in range(4)]
            L.append(f"ds_read_b64 {self.rg(regs[tt][4],2)}, {vr(self.VS0R)} offset:{off + BLK*tt}")
        return L

    def wsn(self): return WS_DBG + (1 << 20 if self.o.get("stamps") else 0)

    def region(self, d, src):
        o = self.o
        if o["rot"] == 1: return f"s_lshl_b32 {sr(d)}, {sr(src)}, {24 - o.get('rsh', 14)}\ns_and_b32 {sr(d)}, {sr(d)}, 0x0f000000"
        return f"s_bfe_u32 {sr(d)}, {sr(src)}, {(o.get('rbits', 6) << 16) | o.get('rsh', 14)}\ns_mul_i32 {sr(d)}, {sr(d)}, {RSTR}\ns_add_u32 {sr(d)}, {sr(d)}, {RBASE}"

    def xa_srd(self, T=S_T):
        return f"""s_mul_i32 {sr(T)}, {sr(S_B)}, {NT}
        s_mul_i32 {sr(T+1)}, {sr(S_H)}, 63
        s_add_u32 {sr(T+1)}, {sr(T+1)}, {sr(T)}
        s_mul_i32 {sr(T+1)}, {sr(T+1)}, {TILE}
        {f"s_add_u32 {sr(T+1)}, {sr(T+1)}, {sr(S_RO)}" if self.o.get("rot", 0) == 2 else ""}
        s_add_u32 {sr(S_XA)}, {sr(S_WS)}, {sr(T+1)}
        s_addc_u32 {sr(S_XA+1)}, {sr(S_WS+1)}, 0
        s_sub_u32 {sr(T+2)}, 63, {sr(S_H)}
        s_mul_i32 {sr(S_XA+2)}, {sr(T+2)}, {TILE}
        s_mov_b32 {sr(S_XA+3)}, 0x20000"""

    def rest(self):
        a, o = self.a, self.o
        T = S_T
        VPL = self.VPL
        self.plan()
        self.head()
        self.stamp("loop")
        if o.get("sktest") or o.get("echo") and o["echo"][0] == "skew":
            a(f"s_waitcnt lgkmcnt(0)\ns_mov_b64 exec, 1\ns_not_b32 s98, {sr(S_ST)}\nv_mov_b32 v226, s98\nv_mov_b32 v227, 4\ns_cmp_lg_u32 {sr(S_W)}, 0\ns_cbranch_scc1 L_sk\nbuffer_atomic_umax v226, v227, {sr(S_DB,4)}, 0 offen sc1\ns_waitcnt vmcnt(0)\nL_sk:\ns_mov_b64 exec, -1\ns_nop 3")
            self.stamp("sk")
        nh = o.get("ugh", 2)
        ex = {2 + 12 * k: x for k, x in enumerate(self.ugs[nh:])}
        ugl = o.get("ugl", 1)
        CL = 226
        SI = S_OUT if o.get("oib", 0) else S_WS
        clr = [f"buffer_store_dwordx4 {vr(CL,4)}, {vr(V_DMA)}, {sr(SI,4)}, {sr(S_CL)} offen sc1",
               f"buffer_store_dwordx4 {vr(CL,4)}, {vr(V_DMA)}, {sr(SI,4)}, {sr(S_CL)} offen offset:1024 sc1",
               f"buffer_store_dwordx2 {vr(CL,2)}, {vr(self.VL8)}, {sr(S_WS,4)}, {sr(S_CL+1)} offen sc1"]
        cll = o.get("cll", 1)
        ex0 = {69: self.ugs[0], 71: clr[0]} if cll else {69: self.ugs[0]}
        if o.get("gs", 0):
            for j, x in enumerate(self.tile_groups(3)):
                g_ = o.get("t3g", 2) + 4 * j
                x = x.split("\n")
                if x[0].startswith("s_add_u32 m0"): ex0[g_ - 1] = x[0]; x = x[2:]
                ex0[g_] = "\n".join(x)
        if ugl: self.period(0, extra=ex0)
        else: self.period(0, vm=9 + 5, extra=ex)
        self.stamp("l0")
        a.raw(".p2align 6")
        a.label("L_loop")
        self.stamp("q1")
        for p in range(1, 5):
            ex = {}
            vm = 9
            if p == 1: ex = {73: f"s_cmp_eq_u32 {sr(S_CNT)}, 3"}
            if p == 2: ex = {70: f"buffer_load_dword v252, {vr(VPL)}, {sr(S_WS,4)}, 0 offen sc1"}
            if p == 3:
                ex = {73: f"s_cmp_eq_u32 {sr(S_CNT)}, 2", 45: f"ds_add_rtn_u32 v230, v231, {vr(VPL+1)}"}
            if p == 4:
                self.stamp("la0")
                a(f"s_cbranch_scc1 L_last")
                a.label("L_lastb")
                self.stamp("la1")
                ex = {72: f"s_add_u32 {sr(S_CNT)}, {sr(S_CNT)}, 1", 1: f"v_readfirstlane_b32 {sr(T)}, v230", 3: f"s_cmp_eq_u32 {sr(T)}, 3",
                      4: f"s_cselect_b32 {sr(T)}, {sr(S_FB)}, 2.0", 6: f"buffer_store_dword v207, v231, {sr(S_WS,4)}, {sr(T)} offen sc1"}
            if ugl:
                ex[69] = self.ugs[p]
                if p < 3 and cll: ex[72] = clr[p]
                if p == 3 and cll: ex.update({70: f"s_mov_b32 {sr(S_CL)}, 2.0", 71: f"s_mov_b32 {sr(S_CL+1)}, 2.0"})
                if p == 4: ex.update({71: f"s_mov_b32 {sr(S_UG)}, 2.0", 2: f"s_lshl2_add_u32 {sr(T)}, {sr(S_CNT)}, {sr(T)}", 3: f"s_cmp_eq_u32 {sr(T)}, 7"})
                if p == 3: ex.update({43: f"s_and_b32 {sr(T)}, {sr(S_CNT)}, 1", 44: f"v_mov_b32 {vr(VPL+1)}, {sr(T)}", 48: ex.pop(45)})
            for k_ in range(o.get("pad", 0)): ex[10 + 7 * k_] = ex.get(10 + 7 * k_, "s_nop 0") + "\ns_nop 7"
            self.period(p, extra=ex, inc=sr(S_INC) if p == 4 else None)
            if p == 1: a("s_cbranch_scc1 L_p14")
        a("s_branch L_loop")
        a.label("L_p14")
        SW = 66
        self.stamp("p14")
        a(f"s_cmp_eq_u32 {sr(S_DUM)}, 4\ns_cbranch_scc0 L_dummyb")
        for i in range(16): a(f"v_mov_b32 {vr(V_CI+i)}, 0xff800000")
        a("s_nop 1")
        a.label("L_dummyb")
        ex = dict(zip([2, 6, 8, 12, 14, 18, 20, 24, 26, 30], self.w_reads(self.WD, 0)))
        ex[0] = "s_waitcnt vmcnt(9)"
        ex.update(dict(zip([4, 10, 16, 22, 28], self.w8_loads(self.WD[2], SW))))
        self.period(14, dma=False, kread=False, extra=ex, halves=(0,))
        self.stamp("tail")
        self.tail(SW)
        self.stamp("end")
        self.epilogue(SW)

    def rare(self):
        a = self.a
        T = S_T
        SW = 66
        a.label("L_last")
        a(f"s_waitcnt vmcnt(9)\ns_mov_b32 {sr(T+2)}, 0")
        a.label("L_late")
        xc = f"v_readlane_b32 {sr(S_SX)}, v252, 5\ns_sub_u32 {sr(S_SX)}, {sr(S_SX)}, {sr(S_N)}" if self.o.get("xm", 0) else ""
        a(f"""v_cmp_ne_u32 vcc, {sr(S_N)}, v252
        s_add_u32 {sr(S_XA)}, {sr(S_WS)}, {WS_WF}
        s_addc_u32 {sr(S_XA+1)}, {sr(S_WS+1)}, 0
        s_mov_b32 {sr(S_XA+2)}, {18*BLK}
        s_add_u32 {sr(S_TOFF)}, {sr(S_LB)}, {9*BLK}
        s_mov_b32 {sr(S_INC)}, {-9*BLK}
        s_lshr_b32 {sr(SW)}, {sr(S_W)}, 1
        s_lshl_b32 {sr(SW)}, {sr(SW)}, 30
        s_add_u32 {sr(SW+1)}, {sr(SW)}, {WS_WF + 8*BLK}
        s_add_u32 {sr(SW)}, {sr(SW)}, {WS_WF + 17*BLK}
        {xc}
        s_and_b32 {sr(T)}, vcc_lo, 31
        s_cbranch_scc0 L_lastb
        buffer_load_dword v252, {vr(self.VPL)}, {sr(S_WS,4)}, 0 offen sc1
        s_add_u32 {sr(T+2)}, {sr(T+2)}, 1
        s_waitcnt vmcnt(0)
        s_cmp_lt_u32 {sr(T+2)}, 0x40000
        s_cbranch_scc1 L_late
        s_branch L_lastb""")

    units = [(0, 0), (0, 1), (1, 0), (1, 1), (2, 0)]
    V15 = V_K

    def stage(self, slot, T):
        src = ar(A_O + 36 * slot + 4 * T, 4)
        if slot == 0: return f"ds_write_b128 {vr(self.VST)}, {src} offset:{1024*T}"
        if slot == 2: return f"ds_write_b128 {vr(self.VS0)}, {src} offset:{1024*T}"
        if T < 4: return f"ds_write_b128 {vr(self.VST)}, {src} offset:{SLOT + 1024*T + (4096 if slot == 3 else 0)}"
        return f"{'s_not_b64' if slot == 1 else 's_mov_b64'} exec, {sr(self.MP1,2)}\nds_write_b128 {vr(self.VST)}, {src} offset:{SLOT + 8192}\ns_mov_b64 exec, -1"

    def dwf(self, k, i):
        f = 5 * k + i
        return self.DWT[f >> 1] + 2 * (f & 1)

    def tail(self, SW):
        a, o = self.a, self.o
        mf, pos, start = [], {}, {}
        for t_, qb in ((14, 0), (14, 1), (15, 0), (15, 1), (14, 2), (15, 2), (14, 3), (15, 3)):
            start[t_, qb] = len(mf)
            for Tt in ([0, 1, 2, 3, 8, 4, 5, 6, 7] if qb & 1 else range(9)):
                o_ = ar(A_O + 36 * qb + 4 * Tt, 4)
                pos[t_, qb, Tt] = len(mf)
                mf.append(f"v_mfma_f32_16x16x32_bf16 {o_}, {vr((V_V if t_ == 14 else self.V15)+4*Tt,4)}, {vr(self.P(t_ & 1,qb),4)}, {o_}")
        lst = []
        for qb in range(4):
            for j in range(8):
                lst.append(("e", qb, j))
                if j & 1: lst.append(("c", qb, j // 2))
        lst += [("a", qb, j) for qb in range(4) for j in range(8)]
        items = self.e_items(1, lst, lambda qb, j: 0 if j < 4 else 1, lambda qb: start[15, qb] - 2)
        for it in items[48:]: it["lo"] = o.get("alo", 26)
        v15 = [dict(t=x, c=4, need=pos[15, 0, i // 2], hi=pos[15, 0, i // 2] - o.get("vlead", 7), lo=0 if i < 16 else 2) for i, x in enumerate(self.v_reads(3, self.V15))]
        wr = []
        nown = o.get("nown", 4)
        self.own = [(2, T_) for T_ in range(nown, 9)] + [(3, T_) for T_ in (0, 1, 2, 3, 8)]
        g = o.get("w0", 23)
        for k, (sl, Tt) in enumerate([(0, T_) for T_ in range(9)] + [(1, T_) for T_ in (0, 1, 2, 3, 8)] + [(2, T_) for T_ in range(nown)]):
            g = max(pos[15, sl, Tt] + 5, g)
            wr.append(dict(t=self.stage(sl, Tt), c=o.get("wc", 20), lo=int(g), hi=int(g)) if g < 72 else dict(t=self.stage(sl, Tt), c=4, lo=999))
            g += o.get("wsp", 2.7)
        n0 = len(items) + len(v15)
        wo = []
        for i, x in enumerate(self.w_reads(self.WO, SLOT)):
            r0 = self.WO[i // 5][i % 5][1]
            wo.append(dict(t=("@VM\n" if i == 0 else "") + x, c=4, dep=sorted({n0 + r0 // 4, n0 + (r0 + 3) // 4 if (r0 + 3) // 4 < 9 else n0 + 8}), lo=o.get("wo0", 40) + 3 * i, hi=o.get("wo0", 40) + 3 * i + 2))
        cl = self.conv_loads()
        dl = [f"buffer_load_dwordx4 {vr(self.DWT[r],4)}, {vr(self.VDW)}, {sr(S_WS,4)}, 0 offen offset:{256*r}" for r in range(7)]
        dl.append(f"buffer_load_dwordx2 {vr(self.DWT[7],2)}, {vr(self.VDW)}, {sr(S_WS,4)}, 0 offen offset:{256*7}")
        fr = {96: 9, 100: 18, 104: 45, 112: 27, 116: 36}
        vm = [(x, 0) for x in cl] + [(x, fr.get(self.DWT[r], 0)) for r, x in enumerate(dl)]
        used = {w["lo"] for w in wr}
        vi, g = [], o.get("m0", 24)
        for x, lo in vm:
            g = max(g, lo)
            while int(g) in used: g += 1
            vi.append(dict(t=x, c=8, lo=int(g), hi=int(g)) if g < 72 else dict(t=x, c=8, lo=999))
            g += o.get("msp", 2.2)
        left = self.pack(mf, items + v15 + wr + wo + vi)
        self.done_a = {(qb, j) for qb in range(4) for j in range(8) if self.etext(1, ("a", qb, j)) not in left}
        left = [x for x in left if not x.startswith("v_add_f32")]
        print("tail overflow", self.over, "left", len(left), "adds done", len(self.done_a))
        self.left = left

    def epilogue(self, SW):
        a, o = self.a, self.o
        T = S_T
        p = lambda r: vr(r, 2)
        NB, PT, MK, VO, units, MP1 = self.NB, self.PT, self.MK, self.VO, self.units, self.MP1
        U, GM, G0, GP = self.U, self.GM, self.G0, self.GP
        X2O = self.X2O
        R1, R2, R3 = 230, 231, 249
        LA, LS, M = 10, 226, 48

        def weave(main, fill, per):
            fill = list(fill)
            for x in main:
                a(x)
                for _ in range(per):
                    if fill: a(fill.pop(0))
            return fill
        for x in self.left:
            if not x.startswith("buffer"): a(x)
        lv = [x for x in self.left if x.startswith("buffer")]
        lv += [f"buffer_load_dwordx4 {vr(self.XRS[j],4)}, {vr(VO+j)}, {sr(S_X,4)}, {sr(self.E_COL)} offen" for j in range(2)]
        lv.append(f"buffer_load_dwordx2 {vr(self.XRS[2],2)}, {vr(self.VO8)}, {sr(S_X,4)}, 0 offen offset:256")
        S1 = lambda qb, j: self.S(1, qb, j)
        rounds = [[] for _ in range(6)]
        for qb in range(4):
            rem = [j for j in range(8) if (qb, j) not in self.done_a]
            prs = [j for j in rem if j % 2 == 0 and j + 1 in rem]
            sing = [j for j in rem if (j & ~1) not in prs]
            r_ = 0
            while len(prs) > 1:
                for x, y in zip(prs[0::2], prs[1::2]): rounds[r_].append(f"v_pk_add_f32 {p(S1(qb,x))}, {p(S1(qb,x))}, {p(S1(qb,y))}")
                prs = prs[0::2]; r_ += 1
            for k_, j in enumerate(sing + ([prs[0], prs[0] + 1] if prs else [])): rounds[min(5, max(r_, 2) + k_)].append(f"v_add_f32 {vr(V_L+qb)}, {vr(V_L+qb)}, {vr(S1(qb,j))}")
        for r_ in rounds:
            for x in r_: a(x)
        a(f"v_add_u32 {vr(R1)}, {sr(self.RS1)}, {vr(V_DMA)}\nv_add_u32 {vr(R2)}, {sr(self.RS2)}, {vr(V_DMA)}")
        self.treduce(V_L)
        a(f"ds_write_b32 {vr(self.VLW)}, {vr(V_L)}")
        acc = lambda slot: [f"v_accvgpr_read_b32 {vr(M+i)}, {ar(A_O+36*slot+16+i)}" for i in range(20)]
        a(f"""v_add_u32 {vr(R3)}, {sr(self.RS3)}, {vr(V_DMA)}
        v_add_u32 {vr(LA+1)}, {self.L_L}, {vr(V_DMA)}
        v_and_b32 {vr(LS+1)}, 0xf0, {vr(V_DMA)}
        s_lshl_b32 {sr(T)}, {sr(NB)}, 8
        s_add_u32 {sr(T+8)}, {sr(T)}, {self.L_L}
        v_add_u32 {vr(LS)}, {sr(T+8)}, {vr(LS+1)}""")
        for x in lv: a(x)
        a(f"""s_xor_b32 {sr(T)}, s2, 1
        s_mul_i32 {sr(T)}, {sr(T)}, {IB}
        s_mul_i32 {sr(T+9)}, {sr(NB)}, 5120
        s_add_u32 {sr(T+9)}, {sr(T+9)}, {WS_IB}
        s_add_u32 {sr(T)}, {sr(T)}, {sr(T+9)}
        s_lshl_b32 {sr(T+10)}, {sr(PT)}, 11
        {"" if o.get("oib", 0) else f"s_add_u32 {sr(T+1)}, {sr(T+10)}, {sr(T)}"}
        s_add_u32 {sr(T)}, {sr(T)}, 4096
        s_cmp_eq_u32 {sr(PT)}, 0
        s_cselect_b32 {sr(T)}, 0x40000000, {sr(T)}
        s_mov_b32 {sr(T+2)}, {f32(2.0**100)}
        s_mul_i32 {sr(T+12)}, s2, {IB}
        s_add_u32 {sr(T+12)}, {sr(T+12)}, {sr(T+9)}
        {"" if o.get("oib", 0) else f"s_add_u32 {sr(T+13)}, {sr(T+12)}, {sr(T+10)}"}
        s_waitcnt lgkmcnt(0)
        s_barrier""")
        self.stamp("B1")

        def rd(X, offs):
            L = [[f"ds_read_b128 {vr(X[k][i],4)}, {vr((R1, R2, R3)[k])} offset:{offs[k] + 1024*i}" for i in range(4)] for k in range(3)]
            L8 = [f"ds_read_b128 {vr(X[k][4],4)}, {vr((R1, R2, R3)[k])} offset:8192" for k in range(3)]
            return L, L8

        def adds(X, k, rng):
            return [f"v_pk_add_f32 {p(M+4*i+2*h)}, {p(M+4*i+2*h)}, {p(X[k][i]+2*h)}" for i in rng for h in range(2)]
        X = [[128, 132, 136, 140, 144], [148, 152, 156, 160, 68], [72, 76, 200, 204, 108]]
        PK = 128
        sfl = o.get("sfl", "")
        oib = o.get("oib", 0)
        SI = S_OUT if oib else S_WS
        L, L8 = rd(X, (0, 4096, 0))
        a(f"ds_read_b128 {vr(LA,4)}, {vr(LA+1)}\nds_read_b128 {vr(LS,4)}, {vr(LS)}")
        rest = weave(L[0] + L[1] + L[2], acc(1), 2)
        assert not rest
        a(f"s_mov_b64 exec, {sr(MP1,2)}")
        for x in L8: a(x)
        a(f"""s_mov_b64 exec, -1
        s_waitcnt lgkmcnt(11)
        v_add_f32 {vr(LA)}, {vr(LA)}, {vr(LA+1)}
        v_add_f32 {vr(LA+2)}, {vr(LA+2)}, {vr(LA+3)}
        v_add_f32 {vr(LS)}, {vr(LS)}, {vr(LS+1)}
        v_add_f32 {vr(LA)}, {vr(LA)}, {vr(LA+2)}
        v_add_f32 {vr(LS+2)}, {vr(LS+2)}, {vr(LS+3)}
        v_cmp_nge_f32 vcc, {sr(T+2)}, {vr(LA)}""")
        for x in adds(X, 0, range(4)): a(x)
        a(f"""s_cmp_lg_u64 vcc, 0
        s_cselect_b32 {sr(T+2)}, 1, 0
        s_andn2_b32 {sr(T+2)}, {sr(T+2)}, {sr(S_REDO)}
        s_cbranch_scc1 L_fallback
        v_add_f32 {vr(PK+10)}, {vr(LS)}, {vr(LS+2)}
        v_mov_b32 {vr(PK+11)}, {vr(MK+1)}
        s_waitcnt lgkmcnt(7)""")
        for x in adds(X, 1, range(4)): a(x)
        a("s_waitcnt lgkmcnt(3)")
        a3 = adds(X, 2, range(4))
        cv = [f"v_cvt_pk_bf16_f32 {vr(PK+i)}, {vr(M+2*i)}, {vr(M+2*i+1)}" for i in range(10)]
        for x in a3[:4] + a3[4:6] + cv[:4]: a(x)

        def send(fl):
            a(f"buffer_store_dwordx4 {vr(PK,4)}, {vr(V_DMA)}, {sr(SI,4)}, {sr(S_OS if oib else T+1)} offen {fl}")
            for x in a3[6:] + cv[4:8]: a(x)
            a(f"buffer_store_dwordx4 {vr(PK+4,4)}, {vr(V_DMA)}, {sr(SI,4)}, {sr(S_OS if oib else T+1)} offen offset:1024 {fl}")
            a("s_waitcnt lgkmcnt(0)")
            for kk in range(3):
                for x in adds(XS, kk, [4]): a(x)
            for x in cv[8:]: a(x)
            a(f"buffer_store_dwordx4 {vr(PK+8,4)}, {vr(V_DMA)}, {sr(S_WS,4)}, {sr(T)} offen {fl}")
        XS = X
        self.send = send
        if o.get("xm", 0) and o.get("l2s", 1):
            a(f"s_cmp_eq_u32 {sr(S_SX)}, {sr(S_XC)}\ns_cbranch_scc0 L_far")
            send(sfl)
            a.label("L_sent")
        else: send("sc1")
        self.stamp("sent")
        a(f"s_cmp_eq_u32 {sr(S_VAL)}, 0\ns_cbranch_scc1 L_fin")
        C, UP = 140, 68
        IN = [(200, 204, 226), (164, 168, 252), (192, 196, 172)]
        VXW, VXR, VF, LO = 78, 79, 10, 36
        wr = [self.stage(*e) for e in self.own]

        def inbox(k):
            return [f"buffer_load_dwordx4 {vr(IN[k][0],4)}, {vr(V_DMA)}, {sr(SI,4)}, {sr(S_OR if oib else T+13)} offen sc1",
                    f"buffer_load_dwordx4 {vr(IN[k][1],4)}, {vr(V_DMA)}, {sr(SI,4)}, {sr(S_OR if oib else T+13)} offen offset:1024 sc1",
                    f"buffer_load_dwordx4 {vr(IN[k][2],4)}, {vr(V_DMA+1)}, {sr(S_WS,4)}, {sr(T+12)} offen sc1"]
        for x in inbox(0): a(x)
        n0 = len(a.lines)
        a(f"""s_lshl_b32 {sr(T)}, {sr(NB)}, 12
        s_add_u32 {sr(T)}, {sr(T)}, {sr(T+10)}
        s_add_u32 {sr(T)}, {sr(T)}, {self.X1B}
        v_add_u32 {vr(VXW)}, {sr(T)}, {vr(V_DMA)}
        s_lshl_b32 {sr(T)}, {sr(NB)}, 9
        s_add_u32 {sr(T)}, {sr(T)}, {self.X1B + 4096}
        v_add_u32 {vr(VXR)}, {sr(T)}, {vr(self.VL8)}
        s_lshl_b32 {sr(T)}, {sr(PT)}, 12
        s_add_u32 {sr(T)}, {sr(T)}, {self.X1B}
        v_add_u32 {vr(VF)}, {sr(T)}, {vr(V_DMA)}
        v_xor_b32 {vr(VF+1)}, 4096, {vr(VF)}
        s_lshl_b32 {sr(T)}, {sr(PT)}, 9
        s_add_u32 {sr(T)}, {sr(T)}, {self.X1B + 4096}
        v_add_u32 {vr(VF+2)}, {sr(T)}, {vr(self.VL8)}
        v_xor_b32 {vr(VF+3)}, 512, {vr(VF+2)}
        v_subrev_u32 {vr(R2)}, {2*SLOT}, {vr(R2)}
        v_subrev_u32 {vr(R3)}, {2*SLOT}, {vr(R3)}
        s_waitcnt vmcnt(9)""")
        self.stamp("cv0")
        un = [f"v_lshlrev_b32 {vr(M+2*i)}, 16, {vr(U+i)}\nv_and_b32 {vr(M+1+2*i)}, 0xffff0000, {vr(U+i)}" for i in range(10)]
        w8 = self.w8_loads(self.WO[2], SW + 1)
        for k, src in enumerate((GM, G0, GP)):
            for i in range(5):
                d = vr(C + 4 * i, 4)
                a(f"v_mfma_f32_16x16x16_bf16 {d}, {vr(self.dwf(k, i),2)}, {vr(src+2*i,2)}, {'0' if k == 0 else d}")
                a(w8.pop(0) if i in (0, 3) and w8 else un.pop(0))
        self.stamp("cv1")
        a(f"v_and_b32 {vr(LO+1)}, 0xf0, {vr(V_DMA)}\nv_add_u32 {vr(LO)}, {sr(T+8)}, {vr(LO+1)}\ns_nop 1")
        for i in range(10): a(f"v_pk_mul_f32 {p(C+2*i)}, {p(C+2*i)}, {p(M+2*i)}")
        for i in range(10):
            a(f"v_cvt_pk_bf16_f32 {vr(UP+i)}, {vr(C+2*i)}, {vr(C+2*i+1)}")
        body = a.lines[n0:]; del a.lines[n0:]
        step = max(1, len(body) // len(wr))
        for i, l in enumerate(body):
            if i % o.get("wstep", step) == 0 and wr: a(wr.pop(0))
            a.lines.append(l)
        for x in wr: a(x)
        ac = acc(3)
        a(f"ds_write_b128 {vr(VXW)}, {vr(UP,4)} offset:{X2O}")
        for x in ac[:6]: a(x)
        a(f"ds_write_b128 {vr(VXW)}, {vr(UP+4,4)} offset:{X2O + 1024}")
        for x in ac[6:12]: a(x)
        a(f"""s_mov_b64 exec, {sr(MP1,2)}
        ds_write_b64 {vr(VXR)}, {vr(UP+8,2)} offset:{X2O}
        s_mov_b64 exec, -1""")
        self.stamp("x2")
        for x in inbox(1): a(x)
        for x in ac[12:]: a(x)
        a("s_waitcnt lgkmcnt(0)\ns_barrier")
        self.stamp("B2")
        X = [[128, 132, 136, 140, 144], [148, 152, 156, 160, 188], [16, 20, 24, 28, 32]]
        L, L8 = rd(X, (4096, 4096, 0))
        BU = [[("v", r) for r in (100, 104, 108, 112, 116)], [("v", r) for r in (118, 122, 180, 184, 126)]]
        BO = [self.frag("v", 128), self.frag("v", 146)]
        AB = 80

        def bfrags(dst, off):
            out = []
            for s in range(5):
                for j in range(2):
                    out.append(f"ds_read_b128 {self.rg(dst[j][s],4)}, {vr(VF+j)} offset:{off + 1024*s}" if s < 4 else f"ds_read_b64 {self.rg(dst[j][4],2)}, {vr(VF+2+j)} offset:{off}")
            return out

        def fg(W, Bf):
            out = []
            for s in range(5):
                for u, (tt, j) in enumerate(units):
                    d = vr(AB + 4 * u, 4)
                    if s < 4: out.append(f"v_mfma_f32_16x16x32_bf16 {d}, {self.rg(W[tt][s],4)}, {self.rg(Bf[j][s],4)}, {d}")
                    else: out.append(f"v_mfma_f32_16x16x16_bf16 {d}, {self.rg(W[tt][4],2)}, {self.rg(Bf[j][4],2)}, {d}")
            return out
        xu = []
        for u, (tt, j) in enumerate(units):
            for h in range(2):
                x = self.XRS[j] + 2 * tt + h if tt < 2 else self.XRS[2] + h
                xu += [f"v_lshlrev_b32 {vr(AB+4*u+2*h)}, 16, {vr(x)}", f"v_and_b32 {vr(AB+1+4*u+2*h)}, 0xffff0000, {vr(x)}"]
        a("s_waitcnt vmcnt(14)")
        weave(bfrags(BU, X2O), xu, 2)
        pl = lambda k, i, e: f"v_add_f32 {vr(M+4*i+e)}, {vr(M+4*i+e)}, {vr(X[k][i]+e)}"
        ds = L[0] + L[1] + L[2] + [f"s_not_b64 exec, {sr(MP1,2)}\n" + "\n".join(L8) + "\ns_mov_b64 exec, -1", f"ds_read_b128 {vr(LO,4)}, {vr(LO)} offset:512"]
        nis = [1] * 12 + [3, 1]
        gap = [[] for _ in range(25)]
        tot = [10]
        for g in range(25): tot.append(tot[-1] + (nis[g] if g < 14 else 0))
        A0 = [pl(0, i, e) for i in range(4) for e in range(4)]
        A1 = [pl(1, i, e) for i in range(4) for e in range(4)]
        ib = inbox(2)
        for g, m in enumerate(fg(self.WD, BU)):
            if g % 5 == 0: a(f"s_waitcnt lgkmcnt({min(15, tot[g] - 2 * (g // 5 + 1))})")
            a(m)
            if g == 8: a(f"s_waitcnt lgkmcnt({tot[g] - 14})")
            if g == 16: a(f"s_waitcnt lgkmcnt({tot[g] - 18})")
            if g < 14: a(ds[g])
            if 8 <= g < 14: a(A0.pop(0))
            elif g in (14, 18, 22): a(ib.pop(0))
            elif g >= 14:
                for _ in range(2): a(A0.pop(0) if A0 else A1.pop(0))
        assert not A0 and len(A1) % 2 == 0
        n1 = 16 - len(A1)
        for e in range(n1, 16, 2): a(f"v_pk_add_f32 {p(M+e)}, {p(M+e)}, {p(X[1][e//4]+e%4)}")
        a("s_waitcnt lgkmcnt(0)")
        for x in adds(X, 2, range(4)): a(x)
        a(f"v_add_f32 {vr(LO)}, {vr(LO)}, {vr(LO+1)}\nv_add_f32 {vr(LO+2)}, {vr(LO+2)}, {vr(LO+3)}")
        for kk in range(3):
            for x in adds(X, kk, [4]): a(x)
        a(f"s_mov_b32 {sr(T+2)}, 0\nv_add_f32 {vr(LO)}, {vr(LO)}, {vr(LO+2)}")
        self.stamp("own")
        w, PU = 40, 128
        mo = MK + 3

        def chk(k):
            r = [IN[k][q] + i for q in range(3) for i in range(4)]
            c = [f"v_max3_u32 v46, {vr(r[0])}, {vr(r[1])}, {vr(r[2])}", f"v_max3_u32 v47, {vr(r[3])}, {vr(r[4])}, {vr(r[5])}"]
            for q in range(3): c.append(f"v_max3_u32 v{46+(q&1)}, v{46+(q&1)}, {vr(r[6+2*q])}, {vr(r[7+2*q])}")
            return c + ["v_max_u32 v46, v46, v47", "v_cmp_eq_u32 vcc, -1, v46"]

        def take(k, with_chk):
            r = [IN[k][q] + i for q in range(3) for i in range(4)]
            lp_, mp = r[10], r[11]
            wt = [f"v_min_f32 {vr(w)}, {vr(mo)}, {vr(mp)}", f"v_sub_f32 {vr(w+2)}, {vr(w)}, {vr(mp)}", f"v_sub_f32 {vr(w)}, {vr(w)}, {vr(mo)}",
                  f"v_exp_f32 {vr(w+2)}, {vr(w+2)}", f"v_exp_f32 {vr(w)}, {vr(w)}", f"v_mul_f32 {vr(w+4)}, {vr(w+2)}, {vr(lp_)}",
                  f"v_fmac_f32 {vr(w+4)}, {vr(w)}, {vr(LO)}", f"v_rcp_f32 {vr(w+4)}, {vr(w+4)}", f"v_mul_f32 {vr(w)}, {vr(w)}, {vr(w+4)}",
                  f"v_mul_f32 {vr(w+2)}, {vr(w+2)}, {vr(w+4)}"]
            un = []
            for i in range(10): un += [f"v_lshlrev_b32 {vr(PU+2*i)}, 16, {vr(r[i])}", f"v_and_b32 {vr(PU+1+2*i)}, 0xffff0000, {vr(r[i])}"]
            c = chk(k) if with_chk else []
            for i in range(10):
                a(wt[i])
                if c: a(c.pop(0))
                a(un.pop(0)); a(un.pop(0))
        a("s_waitcnt vmcnt(6)")
        take(0, True)
        a("s_cmp_eq_u64 vcc, 0\ns_cbranch_scc0 L_poll2")
        a.label("L_got")
        self.stamp("got")
        for i in range(10): a(f"v_pk_mul_f32 {p(M+2*i)}, {p(M+2*i)}, {p(w)} op_sel_hi:[1,0]")
        for i in range(10): a(f"v_pk_fma_f32 {p(M+2*i)}, {p(PU+2*i)}, {p(w+2)}, {p(M+2*i)} op_sel_hi:[1,0,1]")
        for i in range(10):
            a(f"v_cvt_pk_bf16_f32 {vr(UP+i)}, {vr(M+2*i)}, {vr(M+2*i+1)}")
            if i == 3: a(f"ds_write_b128 {vr(VXW)}, {vr(UP,4)}")
            if i == 7: a(f"ds_write_b128 {vr(VXW)}, {vr(UP+4,4)} offset:1024")
        a(f"""s_not_b64 exec, {sr(MP1,2)}
        ds_write_b64 {vr(VXR)}, {vr(UP+8,2)}
        s_mov_b64 exec, -1
        s_waitcnt lgkmcnt(0)
        s_barrier""")
        self.stamp("B3")
        for x in bfrags(BO, 0): a(x)
        for g, m in enumerate(fg(self.WO, BO)):
            if g % 5 == 0: a(f"s_waitcnt lgkmcnt({8 - 2 * (g // 5)})" + ("\ns_nop 0" if g == 20 else ""))
            a(m)
        self.stamp("gem")
        a("s_nop 3")
        for j in range(2):
            for tt in range(2):
                u = 2 * tt + j
                for h in range(2): a(f"v_cvt_pk_bf16_f32 {vr(16+4*j+2*tt+h)}, {vr(AB+4*u+2*h)}, {vr(AB+4*u+2*h+1)}")
            a(f"buffer_store_dwordx4 {vr(16+4*j,4)}, {vr(VO+j)}, {sr(S_OUT,4)}, {sr(self.E_COL)} offen {o.get('ofl', '')}")
        a(f"s_cmp_ge_u32 {sr(S_W)}, 2\ns_cbranch_scc1 L_fin")
        for h in range(2): a(f"v_cvt_pk_bf16_f32 {vr(24+h)}, {vr(AB+16+2*h)}, {vr(AB+16+2*h+1)}")
        a(f"buffer_store_dwordx2 v[24:25], {vr(self.VO8)}, {sr(S_OUT,4)}, 0 offen offset:256 {o.get('ofl', '')}")
        self.stamp("fin")

        def poll2():
            a.label("L_poll2")
            for k in (1, 2, 0):
                for x in inbox((k + 2) % 3): a(x)
                a("s_waitcnt vmcnt(6)")
                for x in chk(k): a(x)
                a(f"s_add_u32 {sr(T+2)}, {sr(T+2)}, 1\ns_cmp_eq_u64 vcc, 0\ns_cbranch_scc1 L_take{k}")
            a(f"s_cmp_lt_u32 {sr(T+2)}, 0x10000\ns_cbranch_scc1 L_poll2")
            for k in (0, 1, 2):
                a.label(f"L_take{k}")
                take(k, False)
                a("s_branch L_got")
            if o.get("xm", 0) and o.get("l2s", 1):
                a.label("L_far")
                send("sc1")
                a("s_branch L_sent")
        self.poll2 = poll2

    def fallback(self):
        a = self.a
        T = S_T
        MXR = 208
        a.label("L_fallback")
        a(f"""s_waitcnt vmcnt(0) lgkmcnt(0)
        s_barrier
        s_mov_b32 {sr(S_REDO)}, 1
        s_mov_b32 {sr(S_UG)}, 0x40000000
        {self.xa_srd()}
        s_mov_b32 {sr(S_TOFF)}, {sr(S_LB)}
        s_cmp_eq_u32 {sr(S_DUM)}, 4
        s_cselect_b32 {sr(S_CNT)}, 15, 16""")
        for i in range(4): a(f"v_mov_b32 {vr(MXR+i)}, 0xff800000")
        a.label("L_fb1")
        for g in self.tile_groups(0): a(g)
        a("s_waitcnt vmcnt(0)")
        for x in self.k_reads(0): a(x)
        a("s_waitcnt lgkmcnt(0)")
        for m in self.qk_mfmas(0, czero=True): a(m)
        a("s_nop 7")
        for qb in range(4):
            for i in range(0, 8, 2): a(f"v_max3_f32 {vr(MXR+qb)}, {vr(MXR+qb)}, {vr(self.S(0,qb,i))}, {vr(self.S(0,qb,i+1))}")
        a(f"s_sub_u32 {sr(S_CNT)}, {sr(S_CNT)}, 1\ns_cmp_lg_u32 {sr(S_CNT)}, 0\ns_cbranch_scc1 L_fb1")
        self.greduce([MXR + i for i in range(4)], MXR + 4, "v_max_f32")
        a(f"""v_and_b32 {vr(MXR+4)}, 15, v0
        v_lshlrev_b32 {vr(MXR+4)}, 4, {vr(MXR+4)}
        v_add_u32 {vr(MXR+4)}, {L_SP}, {vr(MXR+4)}
        s_lshl_b32 {sr(T)}, {sr(S_W)}, 2
        s_xor_b32 {sr(T+1)}, {sr(self.NB)}, 1
        v_lshl_add_u32 {vr(MXR+5)}, {sr(self.NB)}, 8, {vr(MXR+4)}
        v_lshl_add_u32 {vr(MXR+4)}, {sr(T+1)}, 8, {vr(MXR+4)}
        v_add_u32 {vr(MXR+6)}, {sr(T)}, {vr(MXR+4)}
        v_add_u32 {vr(MXR+7)}, {sr(T)}, {vr(MXR+5)}""")
        for qb in range(4): a(f"ds_write_b32 {vr(MXR+6+(qb&1))}, {vr(MXR+qb)} offset:{512*(qb>>1)}")
        a("s_waitcnt lgkmcnt(0)\ns_barrier")
        for qb in range(4): a(f"ds_read_b128 {vr(16+4*qb,4)}, {vr(MXR+4+(qb&1))} offset:{512*(qb>>1)}")
        a(f"s_mov_b32 {sr(S_TOFF)}, {sr(S_LB)}")
        for g in self.tile_groups(0) + self.tile_groups(1) + ([] if self.o.get("gs", 0) else self.tile_groups(2)[:8]): a(g)
        a("s_waitcnt lgkmcnt(0)")
        for qb in range(4):
            r = 16 + 4 * qb
            a(f"v_max_f32 {vr(r)}, {vr(r)}, {vr(r+1)}\nv_max3_f32 {vr(r)}, {vr(r)}, {vr(r+2)}, {vr(r+3)}")
            a(f"v_sub_f32 {vr(self.MK+qb)}, 0, {vr(r)}")
        a("s_waitcnt vmcnt(0)")
        for x in self.k_reads(0, V_V): a(x)
        self.loop_init(False)
        if self.o.get("gs", 0): self.loop_init(True)
        a("s_branch L_go")


if __name__ == "__main__":
    opt = json.loads(sys.argv[2]) if len(sys.argv) > 2 else {}
    g = G(opt)
    txt = g.build()
    if opt.get("align", 1):
        from align import align
        for n2 in (1, 2):
            try:
                txt, st = align(txt, chains=[(1, "L_tr")] * 3 + [(1, "L_tr2"), (n2, "L_tr2")] if opt.get("touch", 1) else None)
                break
            except AssertionError as e:
                if n2 == 2: raise
        print("align: promoted %d, padded %d, left %d" % st)
    txt = txt.replace("\n", "\n; stamps " + json.dumps(g.stnames) + "\n; map %d rot %d\n" % (g.mp, opt.get("rsh", 14) if opt.get("rot") == 1 else 0), 1)
    open(sys.argv[1], "w").write(txt)
```

```python
import sys, json, math
from common import Asm, vr, ar, sr, kernel_header, kernel_desc
from lay import *

NAME = "standalone__conformer_family_branchformer__speech_kernel"
NH = 2
NWG = 252 + NH
CHAINS = (3, 3)
RING = 4
LDS_RING = RING * TILE
LDS_TOTAL = 163840
SLOT = 4 * TILE
L_WU, L_WQ, L_WK = 0, 41472, 82944
L_XX, L_XR = 126976, 143360
L_QD = 18432
L_XS = L_XX + L_QD
L_MX = 81920
L_PC = LDS_TOTAL - 256
L_DUMP = 123904
L_SP = 147456

S_X, S_WS, S_XA, S_DB, S_W1, S_W2, S_OUT, S_DW = 8, 12, 16, 20, 24, 28, 32, 36
S_W, S_B, S_H, S_QB, S_TOFF, S_CNT, S_DUM, S_LB, S_TOWN, S_TSND, S_VAL, S_REDO = range(40, 52)
S_UG, S_CL = 25, 26
S_PH, S_XC, S_SX = 6, 74, 73
RBASE, RSTR = 12 << 20, 5 << 19
S_RO = 75
S_OS, S_OR = 28, 29
S_N, S_FB = 98, 99
S_INC = 24
S_T = 52
S_ST = 76

V_KA, V_VA, V_VR, V_DMA, V_L, V_VB = 1, 3, 5, 6, 10, 14
V_S, V_CI, V_P, V_K, V_V = 16, 80, 96, 128, 164
V_HI = 200
V_X = 208
A_O, A_Q, A_F = 0, 144, 216

LOG2E = 1.4426950408889634
import struct
def f32(x): return "0x%08x" % struct.unpack("<I", struct.pack("<f", x))[0]


class BAsm(Asm):
    def __init__(self):
        super().__init__()
        self.bg, self.every, self.cnt, self.skip = [], 0, 0, 0

    def __call__(self, s):
        for l in s.split("\n"):
            l = l.strip()
            if not l: continue
            self.lines.append("    " + l)
            if self.bg and self.every and not l.startswith(("s_nop", "v_mov_b32", "v_exp", "v_rcp", "v_rsq", "v_sqrt", "s_add_u32 m0")):
                self.cnt += 1
                if self.cnt >= self.every:
                    self.cnt = 0
                    self.pop()

    def pop(self):
        for x in self.bg.pop(0).split("\n"): self.lines.append("    " + x)

    def flush(self):
        while self.bg: self.pop()
        self.every = 0


WS_FM, WS_M = 250 * TILE + 250 * 256, 250 * TILE + 260 * 256


class G:
    def __init__(self, opt):
        global NH, NWG, L_XX, L_XR, L_XS, L_MX
        if opt.get("mh"):
            NH, NWG = 4, 256
            L_XX, L_XR, L_MX = 2 * SLOT, 2 * SLOT + 16384, 3 * SLOT
            L_XS = L_XX + L_QD
        self.o = opt
        self.a = BAsm()
        self.nst = 0
        self.fill = []

    def stamp(self, name):
        if self.o.get("stamps"):
            if name in self.o.get("skipst", []): return
            if "only" in self.o and name not in self.o["only"]: return
            if self.nst >= 11: return
            self.a(f"{'s_memtime' if self.o.get('cyc') else 's_memrealtime'} {sr(S_ST + 2*self.nst, 2)}")
            self.stnames.append(name)
            self.nst += 1

    def srd(self, dst, lo, hi, n):
        if dst == S_WS and self.o.get("wsoff"):
            self.a(f"s_add_u32 {sr(dst)}, {sr(lo)}, {self.o['wsoff']}\ns_addc_u32 {sr(dst+1)}, {sr(hi)}, 0\ns_mov_b32 {sr(dst+2)}, {n}\ns_mov_b32 {sr(dst+3)}, 0x20000")
            return
        self.a(f"s_mov_b32 {sr(dst)}, {sr(lo)}\ns_mov_b32 {sr(dst+1)}, {sr(hi)}\ns_mov_b32 {sr(dst+2)}, {n}\ns_mov_b32 {sr(dst+3)}, 0x20000")

    def greduce(self, regs, tmp, op="v_add_f32"):
        a = self.a
        for sw in ("32", "16"):
            for i, r in enumerate(regs): a(f"v_mov_b32 {vr(tmp+i)}, {vr(r)}")
            if len(regs) < 3: a("s_nop 1" if len(regs) == 1 else "s_nop 0")
            for i, r in enumerate(regs): a(f"v_permlane{sw}_swap_b32 {vr(r)}, {vr(tmp+i)}")
            for i, r in enumerate(regs): a(f"{op} {vr(r)}, {vr(r)}, {vr(tmp+i)}")

    def treduce(self, r, op="v_add_f32"):
        a = self.a
        a(f"v_permlane32_swap_b32 {vr(r)}, {vr(r+2)}\nv_permlane32_swap_b32 {vr(r+1)}, {vr(r+3)}")
        a(f"{op} {vr(r)}, {vr(r)}, {vr(r+2)}\n{op} {vr(r+1)}, {vr(r+1)}, {vr(r+3)}\ns_nop 1")
        a(f"v_permlane16_swap_b32 {vr(r)}, {vr(r+1)}\n{op} {vr(r)}, {vr(r)}, {vr(r+1)}")

    def rbf(self, r):
        self.a(f"v_cvt_pk_bf16_f32 {vr(r)}, {vr(r)}, {vr(r)}\nv_lshlrev_b32 {vr(r)}, 16, {vr(r)}")

    def ln_tail(self, F, out, t, mimic):
        a = self.a
        p = lambda r: vr(r, 2)
        self.greduce([t, t + 1], t + 2)
        a(f"v_mul_f32 {vr(t+2)}, {f32(1.0/144)}, {vr(t)}")
        a(f"v_mul_f32 {vr(t+3)}, {vr(t+2)}, {vr(t+2)}")
        a(f"v_mov_b32 {vr(t+4)}, {f32(1.0/144)}")
        a(f"v_fma_f32 {vr(t)}, {vr(t+1)}, {vr(t+4)}, -{vr(t+3)}")
        a(f"v_max_f32 {vr(t)}, 0, {vr(t)}")
        if mimic:
            self.rbf(t)
            self.rbf(t + 2)
            a(f"v_add_f32 {vr(t)}, {f32(1e-5)}, {vr(t)}")
            self.rbf(t)
            a(f"v_sqrt_f32 {vr(t)}, {vr(t)}\ns_nop 0")
            self.rbf(t)
            a(f"v_rcp_f32 {vr(t)}, {vr(t)}\ns_nop 0")
        else:
            a(f"v_add_f32 {vr(t)}, {f32(1e-5)}, {vr(t)}")
            a(f"v_rsq_f32 {vr(t)}, {vr(t)}\ns_nop 0")
        a(f"v_mul_f32 {vr(t+2)}, -{vr(t+2)}, {vr(t)}")
        for i in range(18):
            a(f"v_pk_fma_f32 {p(F+2*i)}, {p(F+2*i)}, {p(t)}, {p(t+2)} op_sel_hi:[1,0,0]")
        for i in range(18):
            a(f"v_cvt_pk_bf16_f32 {vr(out+i)}, {vr(F+2*i)}, {vr(F+2*i+1)}")

    def ln_packed(self, X, F, out, t):
        a = self.a
        a(f"v_mov_b32 {vr(t+6)}, 0x3f803f80")
        for k in range(4): a(f"v_mov_b32 {vr(t+k)}, 0")
        for i in range(18):
            a(f"v_dot2_f32_bf16 {vr(t+2*(i&1))}, {vr(X+i)}, {vr(t+6)}, {vr(t+2*(i&1))}")
            a(f"v_dot2_f32_bf16 {vr(t+1+2*(i&1))}, {vr(X+i)}, {vr(X+i)}, {vr(t+1+2*(i&1))}")
        for i in range(2):
            a(f"v_lshlrev_b32 {vr(F+2*i)}, 16, {vr(X+i)}\nv_and_b32 {vr(F+2*i+1)}, 0xffff0000, {vr(X+i)}")
        a(f"v_pk_add_f32 {vr(t,2)}, {vr(t,2)}, {vr(t+2,2)}")
        un = []
        for i in range(2, 18):
            un.append(f"v_lshlrev_b32 {vr(F+2*i)}, 16, {vr(X+i)}\nv_and_b32 {vr(F+2*i+1)}, 0xffff0000, {vr(X+i)}")
        sv = (a.bg, a.every, a.cnt, a.skip)
        n0 = len(a.lines)
        a.bg, a.every = [], 0
        self.ln_tail(F, out, t, True)
        tail = a.lines[n0:]
        del a.lines[n0:]
        a.bg, a.every, a.cnt, a.skip = sv
        k = next(i for i, l in enumerate(tail) if "v_pk_fma" in l)
        for i, l in enumerate(tail[:k]):
            if "s_nop" in l and un: continue_nop = True
            a(l)
            if un and not l.strip().startswith("s_nop"): a(un.pop(0))
        while un: a(un.pop(0))
        for l in tail[k:]: a(l)

    def ln_f32(self, F, out, t):
        a = self.a
        p = lambda r: vr(r, 2)
        a(f"v_pk_add_f32 {p(t)}, {p(F)}, {p(F+2)}\nv_pk_add_f32 {p(t+2)}, {p(F+4)}, {p(F+6)}")
        a(f"v_pk_mul_f32 {p(t+4)}, {p(F)}, {p(F)}\nv_pk_mul_f32 {p(t+6)}, {p(F+2)}, {p(F+2)}")
        for i in range(2, 18):
            if i >= 4: a(f"v_pk_add_f32 {p(t+2*(i&1))}, {p(t+2*(i&1))}, {p(F+2*i)}")
            a(f"v_pk_fma_f32 {p(t+4+2*(i&1))}, {p(F+2*i)}, {p(F+2*i)}, {p(t+4+2*(i&1))}")
        a(f"v_pk_add_f32 {p(t)}, {p(t)}, {p(t+2)}\nv_pk_add_f32 {p(t+4)}, {p(t+4)}, {p(t+6)}")
        a(f"v_add_f32 {vr(t)}, {vr(t)}, {vr(t+1)}\nv_add_f32 {vr(t+1)}, {vr(t+4)}, {vr(t+5)}")
        self.ln_tail(F, out, t, False)

    def gemm_u(self, AF, rf, Bs, ACC, afr, bfr, post, vm_items=(), other=(), lead=7, vm0=0, vmsp=4, at={}, lastk=0, pre={}):
        a = self.a
        units = [(0, j) for j in range(4)] + [(1, j) for j in range(4)] + [(2, 0)]
        seq, dl = [], {}
        bs = lambda j, o_, n: self.rg((Bs[j][0], Bs[j][1] + o_), n)
        rem = lambda u: (f"v_mfma_f32_16x16x16_bf16 {vr(ACC+4*u,4)}, {rf(AF+18*units[u][0]+16,2)}, {bs(units[u][1],16,2)}, {vr(ACC+4*u,4)}", u)
        A = [afr(t) for t in range(3)]
        Bf = [bfr(j) for j in range(4)]

        def use(t, j, s, k):
            for x in (A[t][2 * s:2 * s + 2] if s < 4 else A[t][8:]) + ([Bf[j][s]] if Bf[j] else []): dl.setdefault(x, k)
        for g in range(4):
            for s in range(4):
                for u in range(3 * g, 3 * g + 3) if g < 3 else []:
                    t, j = units[u]
                    d = vr(ACC + 4 * u, 4)
                    use(t, j, s, len(seq))
                    seq.append((f"v_mfma_f32_16x16x32_bf16 {d}, {rf(AF+18*t+4*s,4)}, {bs(j,4*s,4)}, {'0' if s == 0 else d}", None))
                if s == 0 and g > 0:
                    for u in range(3 * g - 3, 3 * g):
                        use(units[u][0], units[u][1], 4, len(seq)); seq.append(rem(u))
        last = seq[-3:]; seq = seq[:-3]
        ds = sorted(dl.items(), key=lambda e: e[1]) + [(x, 99) for x in other]
        vm_items = list(vm_items)
        lastvm = vm0 - vmsp
        order, ready, q, done = [], [], [], 0

        def issue():
            x, k_ = ds.pop(0); a(x); order.append(k_)

        def wait(k):
            nonlocal done
            idx = [i_ for i_, k_ in enumerate(order) if k_ <= k]
            if idx and max(idx) + 1 > done:
                a(f"s_waitcnt lgkmcnt({min(15, len(order) - 1 - max(idx))})"); done = max(idx) + 1
        while ds and ds[0][1] < 6: issue()
        for k, (m, fin) in enumerate(seq):
            assert not ds or ds[0][1] > k, (k, ds[0])
            wait(k)
            if k in pre: pre[k]()
            a(m)
            for u_, kk, ln in list(ready):
                if k - kk >= 4 and sum(1 for l in a.lines[ln:] if not l.strip().startswith("s_waitcnt")) >= 8: q += post(u_); ready.remove((u_, kk, ln))
            if fin is not None: ready.append((fin, k, len(a.lines)))
            if k in at: at[k]()
            due = sum(1 for x, k_ in ds if k_ <= k + lead)
            if due == 0 and vm_items and k >= lastvm + vmsp and (len(vm_items) > 1 or k >= lastk):
                a(vm_items.pop(0)); lastvm = k; continue
            cap = 2
            for _ in range(min(due, 3)): issue(); cap -= 1
            if cap == 2:
                if q and q[0].startswith("ds_"): a(q.pop(0)); order.append(99); cap -= 1
                elif ds: issue(); cap -= 1
            while cap > 0 and q and not q[0].startswith("ds_"):
                a(q.pop(0)); cap -= 1
        assert not ready
        while ds: issue()
        wait(98)
        for x in vm_items: a(x)
        for x in q[:4]: a(x)
        a(f"s_nop {max(0, 4 - len(q[:4]))}")
        for m, _ in last: a(m)
        for x in q[4:]: a(x)
        a(f"s_nop {max(0, 6 - len(q[4:]))}")
        for u in range(6, 9):
            for x in post(u): a(x)

    def gemm(self, reads, B, ACC, AF, late=(), at={}, per=2):
        a = self.a
        buf = lambda T: 18 * (T % 6)
        ng = 3 * (4 * per + 1)

        def grp(g):
            r = [reads(T, buf(T)) for T in range(3 * g, 3 * g + 3)]
            return [r[t][per * s + u] for s in range(4) for t in range(3) for u in range(per)] + [r[t][4 * per] for t in range(3)]
        rem = lambda T: f"v_mfma_f32_16x16x16_bf16 {vr(ACC+4*T,4)}, {ar(buf(T)+16,2)}, {vr(B+16,2)}, {vr(ACC+4*T,4)}"
        pend = grp(0) + grp(1) + grp(2) + list(late)
        issued = k = 0

        def issue(n):
            nonlocal issued
            for _ in range(n):
                if issued < len(pend): a(pend[issued]); issued += 1

        def mf(x):
            nonlocal k
            a(x); issue(per if per == 2 else (2 if k % 4 == 0 else 1))
            if k in at: a(at[k])
            k += 1
        issue(self.o.get('look', 12) if per == 2 else self.o.get('look1', 8))
        for g in range(3):
            for s in range(4):
                need = ng * g + 3 * per * (s + 1)
                a(f"s_waitcnt lgkmcnt({min(15, issued - need)})")
                for T in range(3 * g, 3 * g + 3):
                    d = vr(ACC + 4 * T, 4)
                    mf(f"v_mfma_f32_16x16x32_bf16 {d}, {ar(buf(T)+4*s,4)}, {vr(B+4*s,4)}, {'0' if s == 0 else d}")
                if s == 0 and g > 0:
                    for T in range(3 * g - 3, 3 * g): mf(rem(T))
                if g == 1 and s == 0: assert issued <= 2 * ng + 6 * per, "group 2 overwrites group 0 too early"
        issue(99)
        a(f"s_waitcnt lgkmcnt({len(late)})\ns_nop 2")
        for T in range(6, 9): a(rem(T))
        a("s_nop 7")

    def tr_reads(self, ad, rf=ar):
        def f(T, dst):
            out = []
            for s in range(4):
                for u in range(2):
                    out.append(f"ds_read_b64_tr_b16 {rf(dst+4*s+2*u,2)}, {vr(ad+u)} offset:{9216*s + 32*T}")
            out.append(f"ds_read_b64_tr_b16 {rf(dst+16,2)}, {vr(ad+2)} offset:{36864 + 32*T}")
            return out
        return f

    def row_reads(self, ad, sw=None):
        def f(T, dst):
            r = ad if sw is None or T == 8 else sw[T & 1]
            out = []
            for s in range(4):
                for u in range(2):
                    out.append(f"ds_read_b64 {ar(dst+4*s+2*u,2)}, {vr(r)} offset:{4864*T + 64*s + 32*u}")
            out.append(f"ds_read_b64 {ar(dst+16,2)}, {vr(r)} offset:{4864*T + 256}")
            return out
        return f

    def dma_rows(self, jobs, cpr, rstride, vo, vc, n_first, first_waves, lab):
        a = self.a
        mul = {18: 3641, 19: 3450}[cpr]
        dr, dc = 256 // cpr, 256 % cpr
        a(f"s_lshl_b32 {sr(S_T)}, {sr(S_W)}, 6")
        a(f"v_add_u32 {vr(vc)}, {sr(S_T)}, v0")
        a(f"v_mul_u32_u24 {vr(vo)}, {mul}, {vr(vc)}")
        a(f"v_lshrrev_b32 {vr(vo)}, 16, {vr(vo)}")
        a(f"v_mul_u32_u24 {vr(vc+1)}, {cpr}, {vr(vo)}")
        a(f"v_sub_u32 {vr(vc)}, {vr(vc)}, {vr(vc+1)}")
        a(f"v_mul_u32_u24 {vr(vo)}, {rstride}, {vr(vo)}")
        a(f"v_lshl_add_u32 {vr(vo)}, {vr(vc)}, 4, {vr(vo)}")
        a(f"s_lshl_b32 {sr(S_T)}, {sr(S_W)}, 10")
        a(f"v_mov_b32 {vr(vc+1)}, {rstride - 16*cpr}")
        for k in range(n_first):
            if k == n_first - 1:
                a(f"s_cmp_ge_u32 {sr(S_W)}, {first_waves}\ns_cbranch_scc1 {lab}")
            for srd, so, lb in jobs:
                a(f"s_add_u32 m0, {sr(S_T)}, {lb + 4096*k}")
                a("s_nop 0")
                a(f"buffer_load_dwordx4 {vr(vo)}, {sr(srd,4)}, {so} offen lds")
            if k < n_first - 1:
                a(f"v_add_u32 {vr(vc)}, {dc}, {vr(vc)}")
                a(f"v_cmp_le_u32 vcc, {cpr}, {vr(vc)}")
                a(f"v_add_u32 {vr(vo)}, {dr*rstride + 16*dc}, {vr(vo)}")
                a(f"v_subrev_u32 {vr(vc+2)}, {cpr}, {vr(vc)}")
                a(f"v_cndmask_b32 {vr(vc)}, {vr(vc)}, {vr(vc+2)}, vcc")
                a(f"v_cndmask_b32 {vr(vc+2)}, 0, {vr(vc+1)}, vcc")
                a(f"v_add_u32 {vr(vo)}, {vr(vo)}, {vr(vc+2)}")
        a.label(lab)

    def voff_table(self, dst, cpr, rstride, vc, step=256):
        a = self.a
        mul = {18: 29128, 19: 27595}[cpr]
        n = len(dst)
        a(f"s_mov_b32 {sr(S_T)}, {rstride - 16*cpr}")
        a(f"v_mul_u32_u24 {vr(dst[0])}, {mul}, {vr(vc)}")
        for k in range(1, n): a(f"v_add_u32 {vr(dst[k])}, {(step*k % cpr)*mul}, {vr(dst[0])}")
        for k in range(n): a(f"v_lshrrev_b32 {vr(dst[k])}, 19, {vr(dst[k])}")
        for k in range(n): a(f"v_mad_i32_i24 {vr(dst[k])}, {vr(dst[k])}, {sr(S_T)}, {vr(vc+1)}")

    def dma_lin(self, srd, soff, lb, v16, lab):
        a = self.a
        a(f"s_lshl_b32 {sr(S_T)}, {sr(S_W)}, 10")
        for k in range(11):
            if k == 10:
                a(f"s_cmp_ge_u32 {sr(S_W)}, 1\ns_cbranch_scc1 {lab}")
            a(f"s_add_u32 m0, {sr(S_T)}, {lb + 4096*k}")
            a(f"s_add_u32 {sr(S_T+1)}, {sr(S_T)}, {soff + 4096*k}")
            a(f"buffer_load_dwordx4 {vr(v16)}, {sr(srd,4)}, {sr(S_T+1)} offen lds")
        a.label(lab)

    def tr_addr(self, ad, base, swapped, t):
        a = self.a
        a(f"v_lshrrev_b32 {vr(t)}, 2, v0")
        a(f"v_mul_u32_u24 {vr(t)}, 288, {vr(t)}")
        a(f"v_and_b32 {vr(t+1)}, 3, v0")
        a(f"v_lshl_add_u32 {vr(t)}, {vr(t+1)}, 3, {vr(t)}")
        a(f"v_add_u32 {vr(ad+2)}, {base}, {vr(t)}")
        if swapped:
            a(f"v_bfe_u32 {vr(t)}, v0, 4, 1")
            a(f"v_mul_u32_u24 {vr(t)}, {16*288}, {vr(t)}")
            a(f"v_add_u32 {vr(ad)}, {vr(ad+2)}, {vr(t)}")
            a(f"v_sub_u32 {vr(ad+1)}, {vr(ad+2)}, {vr(t)}")
            a(f"v_add_u32 {vr(ad+1)}, {16*288}, {vr(ad+1)}")
        else:
            a(f"v_mov_b32 {vr(ad)}, {vr(ad+2)}")
            a(f"v_add_u32 {vr(ad+1)}, {16*288}, {vr(ad+2)}")

    def row_addr(self, ad, base, t):
        a = self.a
        a(f"v_and_b32 {vr(t)}, 15, v0")
        a(f"v_mul_u32_u24 {vr(t)}, 304, {vr(t)}")
        a(f"v_lshrrev_b32 {vr(t+1)}, 4, v0")
        a(f"v_lshl_add_u32 {vr(t)}, {vr(t+1)}, 3, {vr(t)}")
        a(f"v_add_u32 {vr(ad)}, {base}, {vr(t)}")

    def store_block(self, src, v16, v8, srd, soff, soff2, flags=""):
        a = self.a
        for s in range(4):
            a(f"buffer_store_dwordx4 {vr(src+4*s,4)}, {vr(v16)}, {sr(srd,4)}, {sr(soff)} offen offset:{1024*s} {flags}")
        a(f"buffer_store_dwordx2 {vr(src+16,2)}, {vr(v8)}, {sr(srd,4)}, {sr(soff2)} offen {flags}")

    def entry(self):
        a = self.a
        xm2 = self.o.get("xm", 0) == 2
        kernel_header(a, NAME)
        a(f"s_load_dwordx16 s[56:71], s[0:1], 0")
        a(f"s_load_dwordx8 s[72:79], s[0:1], 64")
        a(f"s_getpc_b64 {sr(S_W1,2)}")
        a.label("L_pf")
        mh = self.o.get("mh", 0)
        a(f"""s_mov_b32 {sr(S_W1+2)}, {"L_mf6" if mh else "L_dummy"}-L_pf
        s_mov_b32 {sr(S_W1+3)}, 0x20000
        v_lshlrev_b32 v2, 4, v0
        buffer_load_dwordx4 v[252:255], v2, {sr(S_W1,4)}, 0 offen
        s_lshl_b32 s3, s2, 9
        s_and_b32 s3, s3, {0xf000 if mh else 0x7000}
        buffer_load_dwordx4 v[252:255], v2, {sr(S_W1,4)}, s3 offen
        v_lshrrev_b32 v1, 6, v0
        {"s_bfe_u32 s6, s2, 0x10003" if xm2 else f"s_sub_u32 s2, s2, {NH}"}
        v_readfirstlane_b32 {sr(S_W)}, v1
        s_memrealtime s[4:5]""")
        if xm2:
            a(f"""s_and_b32 s7, s2, 7
            s_lshl1_add_u32 s7, s7, s6
            s_mov_b32 s6, s2
            s_andn2_b32 s2, s2, 15
            s_or_b32 s2, s2, s7""")
        a(f"""s_cmp_ge_u32 s2, {NWG - NH}
        s_cbranch_scc1 L_wfuse""")
        if self.o.get("late"):
            m_, v_, n_ = self.o["late"]
            a(f"""s_and_b32 s3, s2, {m_}
            s_cmp_lg_u32 s3, {v_}
            s_cbranch_scc1 L_nl
            s_memrealtime s[4:5]
            s_waitcnt lgkmcnt(0)
            s_add_u32 s6, s4, {n_}
            L_lt:
            s_memrealtime s[4:5]
            s_waitcnt lgkmcnt(0)
            s_sub_u32 s7, s6, s4
            s_cmp_gt_i32 s7, 0
            s_cbranch_scc1 L_lt
            L_nl:""")
        if self.o.get("stamps"):
            a("s_memrealtime s[100:101]" if not self.o.get("cyc") else "s_memtime s[100:101]")
        self.mp = 2

    def vm_since(self, mark):
        return sum(1 for l in self.a.lines[mark:] if l.strip().startswith("buffer_"))

    def phase_a(self):
        a, o = self.a, self.o
        XR, XF, XA, ACC, G_, PK = 16, 34, 146, 110, 16, 164
        B4, XD = 16, 88
        VS, VSW, VR4, MXA, MXR, L8, TRU, TRQ, TRQ8, RK, TM = 200, 204, 208, 212, 213, 214, 215, 218, 221, 224, 228
        VK, VU = list(range(182, 193)), list(range(193, 200)) + list(range(104, 108))
        if o.get("mh"): VR4, MXA, MXR, L8, TRU = 182, 186, 187, 188, 189
        AQ1 = 200
        t0, t1, t2 = 250, 251, 227
        T = S_T
        WV, W10, UOFF, M1, PUB, M3 = 72, 70, 71, 69, 68, 65
        PH = 2
        FA0 = 250 * TILE if o.get("rot", 0) == 2 else WS_F
        if o.get("xm", 0) == 2: PH = S_PH
        if o.get("xm", 0) == 1:
            PH = S_PH
            a(f"""s_mov_b32 {sr(PH)}, s2
            s_bfe_u32 {sr(T)}, s2, 0x10003
            s_and_b32 {sr(T+1)}, s2, 7
            s_lshl1_add_u32 {sr(T)}, {sr(T+1)}, {sr(T)}
            s_and_b32 {sr(T+1)}, s2, 0xf0
            s_or_b32 {sr(T)}, {sr(T)}, {sr(T+1)}
            s_add_u32 s2, s2, 4
            s_cmp_lt_u32 {sr(T)}, 248
            s_cselect_b32 s2, {sr(T)}, s2""")
        a(f"""v_and_b32 v0, 63, v0
        s_bfe_u32 {sr(S_B)}, s2, 0x10001
        s_lshr_b32 {sr(S_QB)}, s2, 2
        s_lshr_b32 {sr(T)}, {sr(S_W)}, 1
        s_xor_b32 {sr(T)}, {sr(T)}, s2
        s_andn2_b32 {sr(T)}, 1, {sr(T)}
        s_lshl1_add_u32 {sr(T+3)}, {sr(S_QB)}, {sr(T)}
        s_mul_i32 {sr(T)}, {sr(S_B)}, {NT}
        s_add_u32 {sr(T+1)}, {sr(T+3)}, {sr(T)}
        s_and_b32 {sr(T+2)}, {sr(S_W)}, 1
        s_lshl1_add_u32 {sr(T+2)}, {sr(T+1)}, {sr(T+2)}
        v_lshlrev_b32 {vr(V_DMA)}, 4, v0
        s_mul_i32 {sr(T+1)}, {sr(T+2)}, {16*288}
        s_mul_i32 {sr(S_LB)}, {sr(S_W)}, {BLK}
        s_add_u32 m0, {sr(S_LB)}, {L_XS}
        s_mov_b32 {sr(S_X+2)}, 2304000
        s_mov_b32 {sr(S_X+3)}, {sr(S_W1+3)}
        s_add_u32 {sr(S_CNT)}, {sr(T+1)}, 4096
        s_waitcnt lgkmcnt(0)
        s_mov_b64 {sr(S_X,2)}, s[56:57]""")
        for k in range(4): a(f"buffer_load_dwordx4 {vr(V_DMA)}, {sr(S_X,4)}, {sr(T+1)} offen offset:{1024*k} lds")
        a(f"s_add_u32 m0, {sr(S_LB)}, {L_XS + 4096}\ns_mov_b32 exec_hi, 0\nbuffer_load_dwordx4 {vr(V_DMA)}, {sr(S_X,4)}, {sr(S_CNT)} offen lds\ns_mov_b32 exec_hi, -1")
        mx = len(a.lines)
        a(f"""s_add_u32 {sr(S_LB)}, {sr(S_LB)}, {L_XS}
        s_and_b32 {sr(S_H)}, s2, 1
        s_lshl1_add_u32 {sr(S_TOWN)}, {sr(S_QB)}, {sr(S_H)}
        s_cmp_lt_u32 {sr(S_TOWN)}, {NT}
        s_cselect_b32 {sr(S_VAL)}, 1, 0
        s_add_u32 {sr(S_TOWN)}, {sr(S_TOWN)}, {sr(T)}""")
        SQ, SK, SU = S_W2, S_W1, S_XA
        self.srd(SU, 66, 67, 82944)
        mh = o.get("mh", 0)
        wpf = o.get("wpf", 1)
        if not mh or wpf:
            self.srd(SQ, 58, 59, 41472)
            self.srd(SK, 60, 61, 41472)
        a(f"s_lshr_b32 {sr(T)}, {sr(PH)}, 3\ns_lshl_b32 {sr(T)}, {sr(T)}, 12\ns_lshl_b32 {sr(W10)}, {sr(S_W)}, 10\ns_add_u32 {sr(T)}, {sr(T)}, {sr(W10)}")
        if not mh: a(f"buffer_load_dwordx4 v[252:255], {vr(V_DMA)}, {sr(SU,4)}, {sr(T)} offen")
        for srd_, rot in ((SQ, 82), (SK, 41)) if not mh else ((SQ, 0), (SK, 41), (SU, 41)) if wpf else ((SU, 0),):
            if rot == 0:
                a(f"buffer_load_dwordx4 v[252:255], {vr(V_DMA)}, {sr(srd_,4)}, {sr(T)} offen")
                continue
            a(f"s_add_u32 {sr(T+1)}, {sr(T)}, {(128 - rot) * 1024}\ns_and_b32 {sr(T+1)}, {sr(T+1)}, {127 * 1024}")
            a(f"buffer_load_dwordx4 v[252:255], {vr(V_DMA)}, {sr(srd_,4)}, {sr(T+1)} offen")
        self.srd(S_OUT, 74, 75, 2304000)
        self.srd(S_DB, 76, 77, 256)
        if o.get("rot", 0):
            a(self.region(S_RO, 4))
            if o.get('rbad'): a(f"s_add_u32 {sr(S_RO)}, {sr(S_RO)}, {o['rbad']}")
            if o["rot"] == 1:
                a(f"""s_add_u32 {sr(S_WS)}, s78, {sr(S_RO)}
                s_addc_u32 {sr(S_WS+1)}, s79, 0
                s_mov_b32 {sr(S_WS+2)}, {self.wsn()}
                s_mov_b32 {sr(S_WS+3)}, 0x20000""")
            else: self.srd(S_WS, 78, 79, 256 << 20)
        else: self.srd(S_WS, 78, 79, WS_END)
        def tlb():
            a(f"v_lshlrev_b32 v249, 21, v0")
            for ch in o.get("tlbw", "wdo"): a(f"buffer_load_dword v252, v249, {sr(dict(w=S_WS, d=S_DB, o=S_OUT)[ch],4)}, 0 offen")
        if o.get("tlb", 0) == 1: tlb()
        if o.get("tlb", 3) == 3:
            if o.get("rot", 0) == 2:
                a(f"""s_bfe_u32 {sr(T)}, {sr(PH)}, 0x40003
                s_sub_u32 {sr(T+1)}, {sr(T)}, 9
                s_cselect_b32 {sr(T)}, {sr(T)}, {sr(T+1)}
                v_mov_b32 v249, 0
                s_lshl_b32 {sr(T+1)}, {sr(T)}, 21
                s_cmp_lt_u32 {sr(T)}, 6
                s_cbranch_scc0 L_tl1
                s_sub_u32 {sr(T+4)}, {sr(S_RO)}, {(5 << 21) - FA0 if o.get("xfix") else 4 << 21}
                s_cmp_lt_u32 {sr(T)}, {5 if o.get("xfix") else 4}
                s_cselect_b32 {sr(T+4)}, {0 if o.get("xfix") else 1 << 21}, {sr(T+4)}
                s_add_u32 {sr(T+1)}, {sr(T+1)}, {sr(T+4)}
                buffer_load_dword v252, v249, {sr(S_WS,4)}, {sr(T+1)} offen
                s_branch L_tl3
                L_tl1:
                s_cmp_eq_u32 {sr(T)}, 7
                s_cbranch_scc1 L_tl2
                s_and_b32 {sr(T)}, {sr(T)}, 8
                s_lshl_b32 {sr(T)}, {sr(T)}, 18
                buffer_load_dword v252, v249, {sr(S_OUT,4)}, {sr(T)} offen
                s_branch L_tl3""")
            else:
                a(f"""s_bfe_u32 {sr(T)}, {sr(PH)}, 0x30003
                s_lshl_b32 {sr(T)}, {sr(T)}, 21
                v_mov_b32 v249, 0
                s_cmp_lt_u32 {sr(T)}, {5 << 21}
                s_cbranch_scc0 L_tl1
                buffer_load_dword v252, v249, {sr(S_WS,4)}, {sr(T)} offen
                s_branch L_tl3
                L_tl1:
                s_sub_u32 {sr(T)}, {sr(T)}, {5 << 21}
                s_cmp_lt_u32 {sr(T)}, {2 << 21}
                s_cbranch_scc0 L_tl2
                buffer_load_dword v252, v249, {sr(S_OUT,4)}, {sr(T)} offen
                s_branch L_tl3""")
            if mh and o.get("tgw", -1) >= 0:
                a(f"L_tl2:\nbuffer_load_dword v252, v249, {sr(S_DB,4)}, 0 offen offset:128\nL_tl3:")
            else: a(f"""L_tl2:
            s_or_b32 s4, s4, 1
            v_lshlrev_b32 v249, 8, v0
            v_mov_b32 v250, s4
            s_lshl2_add_u32 s5, {sr(PH)}, {sr(S_W)}
            s_cmp_eq_u32 s5, {56 * 4}
            s_cbranch_scc0 L_tl4
            buffer_store_dword v250, v249, {sr(S_DB,4)}, 0 offen sc1
            s_branch L_tl3
            L_tl4:
            buffer_load_dword v252, v249, {sr(S_DB,4)}, 0 offen offset:128
            L_tl3:""")
            self.vm_adj = -2 if mh and o.get("tgw", -1) >= 0 else -3
        if o.get("tst") and o["tst"][0] == "beg": self.tstore()
        if o.get("tl4"):
            a(f"""s_mul_i32 {sr(T)}, {sr(S_TOWN)}, {TILE}
            v_lshlrev_b32 v249, 12, v0
            v_add_u32 v249, {sr(T)}, v249
            s_mov_b64 exec, 7
            buffer_load_dword v252, v249, {sr(S_WS,4)}, 0 offen
            s_mov_b64 exec, -1""")
        if o.get("stamps"): a(f"s_mov_b64 {sr(S_ST,2)}, s[100:101]"); self.stnames.append("start"); self.nst = 1
        self.stamp("xiss")
        a(f"""s_cmp_lt_u32 {sr(T+3)}, {NT}
        s_cselect_b32 {sr(WV)}, 1, 0
        s_mov_b32 {sr(WV+1)}, {sr(T+2)}
        s_mul_i32 {sr(UOFF)}, {sr(S_H)}, 288
        s_cmp_eq_u32 {sr(S_W)}, 0
        s_cselect_b32 {sr(M1)}, 0, {L_DUMP}""")
        if not mh: a(f"s_cmp_lt_u32 {sr(S_W)}, 3\ns_cselect_b32 {sr(M3)}, {sr(W10)}, {L_DUMP}")
        half = lambda g_: "s_mov_b32 exec_hi, 0\n" + g_ + "\ns_mov_b32 exec_hi, -1"
        gu = [f"s_add_u32 m0, {sr(W10 if k < 10 else M1)}, {L_WU + 4096*k}\ns_add_u32 {sr(S_CNT)}, {sr(UOFF)}, {4096*k + 288*(256*k//18)}\nbuffer_load_dwordx4 {vr(VU[k])}, {sr(SU,4)}, {sr(S_CNT)} offen lds" for k in range(11)]
        gu[10] = half(gu[10])
        gq = [f"s_add_u32 m0, {sr(W10 if k < 10 else M1)}, {L_WQ + 4096*k}\ns_add_u32 {sr(S_CNT)}, {sr(W10)}, {4096*k}\nbuffer_load_dwordx4 {vr(V_DMA)}, {sr(SQ,4)}, {sr(S_CNT)} offen lds" for k in range(11)]
        gq[10] = half(gq[10])
        gk = [f"s_add_u32 m0, {sr(W10 if k < 10 else M3)}, {L_WK + 4096*k}\ns_mov_b32 {sr(S_CNT)}, {4096*k - 16*(256*k//19)}\nbuffer_load_dwordx4 {vr(VK[k])}, {sr(SK,4)}, {sr(S_CNT)} offen lds" for k in range(11)]
        a(f"s_lshl_b32 {sr(T)}, {sr(S_W)}, 6\nv_add_u32 {vr(t0)}, {sr(T)}, v0\nv_lshlrev_b32 {vr(t1)}, 4, {vr(t0)}")
        self.voff_table(VU, 18, 576, t0)
        npre = o.get("npre", 3)
        a.bg, a.every, a.cnt = gu[:npre], o.get("evpre", 40), 0
        if not mh: self.voff_table(VK, 19, 288, t0)
        xa0, xa1, xa2 = TM, TM + 1, TM + 2
        a(f"""v_and_b32 {vr(t0)}, 15, v0
        v_lshrrev_b32 {vr(t1)}, 5, v0
        v_lshlrev_b32 {vr(t1)}, 3, {vr(t1)}
        v_xor_b32 {vr(t1)}, {vr(t0)}, {vr(t1)}
        v_lshlrev_b32 {vr(t1)}, 4, {vr(t1)}
        v_lshrrev_b32 {vr(t2)}, 4, v0
        v_lshl_add_u32 {vr(V_KA)}, {vr(t2)}, 9, {vr(t1)}
        v_lshrrev_b32 {vr(t1)}, 3, {vr(t0)}
        v_lshlrev_b32 {vr(t1)}, 1, {vr(t1)}
        v_xor_b32 {vr(t1)}, {vr(t2)}, {vr(t1)}
        v_lshl_add_u32 {vr(t1)}, {vr(t0)}, 2, {vr(t1)}
        v_lshlrev_b32 {vr(V_KA+1)}, 3, {vr(t1)}
        v_lshlrev_b32 {vr(L8)}, 3, v0
        v_lshlrev_b32 {vr(MXR)}, 4, {vr(t0)}
        v_add_u32 {vr(MXR)}, {L_MX}, {vr(MXR)}
        v_add_u32 {vr(MXA)}, {sr(S_W)}, {vr(t2)}
        v_and_b32 {vr(MXA)}, 3, {vr(MXA)}
        v_lshl_add_u32 {vr(MXA)}, {vr(MXA)}, 8, {vr(MXR)}
        s_lshl_b32 {sr(T)}, {sr(S_W)}, 2
        v_add_u32 {vr(MXA)}, {sr(T)}, {vr(MXA)}
        v_mul_u32_u24 {vr(xa2)}, 288, {vr(t0)}
        v_lshl_add_u32 {vr(xa2)}, {vr(t2)}, 3, {vr(xa2)}
        v_add_u32 {vr(xa2)}, {sr(S_LB)}, {vr(xa2)}
        v_and_b32 {vr(t1)}, 1, {vr(t2)}
        v_lshlrev_b32 {vr(t1)}, 5, {vr(t1)}
        v_add_u32 {vr(xa0)}, {vr(xa2)}, {vr(t1)}
        v_xor_b32 {vr(t1)}, 32, {vr(t1)}
        v_add_u32 {vr(xa1)}, {vr(xa2)}, {vr(t1)}
        s_mul_i32 {sr(S_LB)}, {sr(S_W)}, {TILE}
        v_lshrrev_b32 {vr(t0)}, 2, v0
        v_bfe_u32 {vr(t1)}, v0, 1, 1
        v_lshlrev_b32 {vr(t1)}, 3, {vr(t1)}
        v_xor_b32 {vr(t1)}, {vr(t0)}, {vr(t1)}
        v_lshlrev_b32 {vr(t1)}, 4, {vr(t1)}
        v_and_b32 {vr(t2)}, 3, v0
        v_lshl_add_u32 {vr(t1)}, {vr(t2)}, 9, {vr(t1)}
        v_and_b32 {vr(V_VA)}, 1, v0
        v_lshl_add_u32 {vr(t1)}, {vr(V_VA)}, 3, {vr(t1)}
        s_and_b32 {sr(T)}, {sr(S_W)}, 1
        s_lshl_b32 {sr(T)}, {sr(T)}, 12
        s_add_u32 {sr(T+1)}, {sr(T)}, {sr(S_LB)}
        s_xor_b32 {sr(T)}, {sr(T)}, 4096
        s_add_u32 {sr(T)}, {sr(T)}, {sr(S_LB)}
        v_add_u32 {vr(V_VA)}, {sr(T)}, {vr(t1)}
        v_add_u32 {vr(V_VB)}, {sr(T+1)}, {vr(t1)}
        v_xor_b32 {vr(V_VA+1)}, 8, {vr(V_VA)}
        v_xor_b32 {vr(V_VB+1)}, 8, {vr(V_VB)}
        v_lshrrev_b32 {vr(t1)}, 5, v0
        v_lshlrev_b32 {vr(t1)}, 1, {vr(t1)}
        v_xor_b32 {vr(t1)}, {vr(t2)}, {vr(t1)}
        v_lshl_add_u32 {vr(t1)}, {vr(t0)}, 2, {vr(t1)}
        v_lshlrev_b32 {vr(t1)}, 3, {vr(t1)}
        v_add_u32 {vr(V_VR)}, {sr(S_LB)}, {vr(t1)}
        v_add_u32 {vr(V_DMA+1)}, 4096, {vr(V_DMA)}
        v_add_u32 {vr(V_DMA+2)}, 8192, {vr(V_DMA)}""")
        self.tr_addr(TRU, L_WU, True, t0)
        if not mh:
            a(f"s_lshl_b32 {sr(T)}, {sr(S_W)}, 6\ns_add_u32 {sr(T)}, {sr(T)}, {L_WQ - L_WU}")
            for k in range(3):
                a(f"v_add_u32 {vr(TRQ+k)}, {sr(T)}, {vr(TRU+k)}\nv_add_u32 {vr(TRQ8+k)}, {L_WQ - L_WU + 256}, {vr(TRU+k)}")
            self.row_addr(RK + 2, L_WK + 8 * 4864, t0)
            a(f"""s_mul_i32 {sr(T)}, {sr(S_W)}, {2*4864}
            s_sub_u32 {sr(T)}, {sr(T)}, {8*4864}
            v_add_u32 {vr(t1)}, {sr(T)}, {vr(RK+2)}
            v_bfe_u32 {vr(t0)}, v0, 2, 1
            v_mul_u32_u24 {vr(t0)}, 4864, {vr(t0)}
            v_add_u32 {vr(RK)}, {vr(t1)}, {vr(t0)}
            v_sub_u32 {vr(RK+1)}, {vr(t1)}, {vr(t0)}""")
        for j in range(4):
            a(f"""s_add_u32 {sr(T)}, {sr(S_W)}, {j}
            s_and_b32 {sr(T)}, {sr(T)}, 3
            s_lshl_b32 {sr(T+1)}, {sr(T)}, 12
            s_add_u32 {sr(T+1)}, {sr(T+1)}, {L_XX}
            v_add_u32 {vr(VS+j)}, {sr(T+1)}, {vr(V_DMA)}
            s_lshl_b32 {sr(T+1)}, {sr(T)}, 9
            s_add_u32 {sr(T+1)}, {sr(T+1)}, {L_XR}
            v_add_u32 {vr(VR4+j)}, {sr(T+1)}, {vr(L8)}
            v_add_u32 {vr(VSW+j)}, {sr(W10)}, {vr(VS+j)}""")
        a(f"""s_sub_u32 {sr(T+2)}, 63, {sr(S_H)}
        s_add_u32 {sr(T+3)}, {sr(S_W)}, 60
        s_cmp_ge_u32 {sr(T+3)}, {sr(T+2)}
        s_cselect_b32 {sr(S_DUM)}, 4, 99
        s_mov_b32 {sr(S_REDO)}, 0
        s_mov_b32 {sr(S_TOFF)}, {sr(S_LB)}
        s_lshl_b32 {sr(PUB)}, {sr(S_TOWN)}, 8
        s_add_u32 {sr(PUB)}, {sr(PUB)}, {FA0}
        s_and_b32 {sr(T)}, {sr(S_W)}, 1
        s_lshl_b32 {sr(T)}, {sr(T)}, 7
        s_add_u32 {sr(PUB)}, {sr(PUB)}, {sr(T)}
        s_lshr_b32 {sr(T)}, {sr(S_W)}, 1
        s_and_b32 {sr(T)}, {sr(T)}, {sr(S_VAL)}
        s_cmp_eq_u32 {sr(T)}, 1
        s_cselect_b32 {sr(PUB)}, {sr(PUB)}, 0x40000000
        s_lshl_b32 {sr(S_FB)}, s2, 8
        s_add_u32 {sr(S_FB)}, {sr(S_FB)}, {WS_F + 250*256}
        s_mul_i32 {sr(T)}, {sr(S_H)}, 1792
        s_sub_u32 {sr(T)}, {sr(T)}, 768
        s_mul_i32 {sr(T+1)}, {sr(S_H)}, 62
        s_cmp_eq_u32 {sr(S_QB)}, {sr(T+1)}
        s_cselect_b32 {sr(T)}, 0, {sr(T)}
        v_mov_b32 {vr(self.VPL)}, 0x40000000
        s_xor_b32 {sr(T+1)}, {sr(S_FB)}, 256
        s_add_u32 {sr(T)}, {sr(T)}, {sr(S_FB)}
        v_writelane_b32 {vr(self.VPL)}, {sr(S_FB)}, 0
        v_writelane_b32 {vr(self.VPL)}, {sr(T+1)}, 1
        v_writelane_b32 {vr(self.VPL)}, {sr(T)}, 2
        s_mov_b32 {sr(T)}, {WS_F + 502*256}
        s_mov_b32 {sr(T+1)}, {WS_F + 503*256}
        v_writelane_b32 {vr(self.VPL)}, {sr(T)}, 3
        v_writelane_b32 {vr(self.VPL)}, {sr(T+1)}, 4
        s_sub_u32 {sr(S_FB)}, {sr(S_FB)}, {L_PC}""")
        PM = 226
        if mh: a(f"v_lshrrev_b32 {vr(PM)}, 4, v0\nv_min_u32 {vr(PM)}, 1, {vr(PM)}\nv_lshlrev_b32 {vr(PM)}, 23, {vr(PM)}\nv_add_u32 {vr(PM)}, {vr(PM)}, v0\nv_lshlrev_b32 {vr(PM)}, 7, {vr(PM)}\nv_add_u32 {vr(PM)}, {WS_FM}, {vr(PM)}")
        if o.get("xm", 0):
            a(f"""s_getreg_b32 {sr(S_XC)}, hwreg(HW_REG_XCC_ID, 0, 4)
            s_xor_b32 {sr(T)}, s2, 1
            s_lshl_b32 {sr(T)}, {sr(T)}, 8
            s_add_u32 {sr(T)}, {sr(T)}, {WS_F + 250*256 + 4}
            v_writelane_b32 {vr(self.VPL)}, {sr(T)}, 5""")
        a.flush()
        if o.get("tlb", 0) == 2: tlb()
        self.stamp("pre")
        if o.get("es", 0) == 0: self.epi_setup()
        self.stamp("es")
        nx = self.vm_since(mx) + getattr(self, "vm_adj", 0)
        if o.get("touch", 1):
            a(f"""s_mov_b64 exec, 0
            s_cmp_eq_u32 {sr(S_W)}, 0
            s_cbranch_scc1 L_tr
            s_cmp_eq_u32 {sr(S_W)}, 1
            s_cbranch_scc1 L_t0
            s_cmp_eq_u32 {sr(S_W)}, 2
            s_cbranch_scc1 L_t1
            s_branch L_t2""")
            self.rare()
            a.raw(".p2align 12")
            a.label("L_tr")
            a("s_mov_b64 exec, -1")
        nlate = o.get("nlate", 0)
        for g_ in gu[npre:npre + nlate]: a(g_)
        a(f"s_waitcnt vmcnt({nx + nlate})")
        self.stamp("xarr")
        for s in range(4):
            a(f"ds_read_b64 {vr(XR+4*s,2)}, {vr(xa0)} offset:{64*s}\nds_read_b64 {vr(XR+4*s+2,2)}, {vr(xa1)} offset:{64*s}")
        a(f"ds_read_b64 {vr(XR+16,2)}, {vr(xa2)} offset:256")
        a(f"""s_and_b32 {sr(T)}, {sr(S_W)}, 1
        s_mul_i32 {sr(T+2)}, {sr(S_TOWN)}, {TILE}
        {f"s_add_u32 {sr(T+2)}, {sr(T+2)}, {sr(S_RO)}" if o.get("rot", 0) == 2 and not o.get("xfix") else ""}
        s_cmp_eq_u32 {sr(S_VAL)}, 1
        s_cselect_b32 {sr(T+2)}, {sr(T+2)}, 0x40000000
        s_lshl_b32 {sr(T+3)}, {sr(T)}, 8
        s_add_u32 {sr(T+3)}, {sr(T+3)}, {sr(T+2)}
        s_add_u32 {sr(T+4)}, {sr(T+3)}, 4096
        s_lshl_b32 {sr(T+5)}, {sr(T)}, 9
        s_add_u32 {sr(T+5)}, {sr(T+5)}, {sr(T+2)}
        s_add_u32 {sr(T+5)}, {sr(T+5)}, 8192
        s_waitcnt lgkmcnt(0)""")
        wl = gq + gk if not mh else []
        if mh: o["nql"] = o["nup"] = 0
        a.bg, a.every, a.cnt = gu[npre + nlate:] + [wl.pop(0) for _ in range(o.get("nql", 11))], o.get("evln", 5), 0
        self.ln_packed(XR, XF, XA, TM)
        a.flush()
        self.stamp("ln")
        if o.get("tst") and o["tst"][0].startswith("pub"): self.tstore()
        a(f"s_cmp_lt_u32 {sr(S_W)}, 2\ns_cbranch_scc1 L_nop")
        w16 = o.get("w16", 0)
        pair = lambda d, src: [f"v_mov_b32 {vr(d)}, {vr(src)}\nv_mov_b32 {vr(d+1)}, {vr(src+1)}", f"v_mov_b32 {vr(d+2)}, {vr(src)}\nv_mov_b32 {vr(d+3)}, {vr(src+1)}", "",
                               f"v_permlane16_swap_b32 {vr(d)}, {vr(d+2)}\nv_permlane16_swap_b32 {vr(d+1)}, {vr(d+3)}"]
        pr = pair(XR, XA + 16)
        if o.get("pw") == 2: a("s_waitcnt vmcnt(0)")
        self.stamp("pb0")
        for s in range(4):
            a(f"buffer_store_dwordx4 {vr(XA+4*s,4)}, {vr(V_KA)}, {sr(S_WS,4)}, {sr(T+3+(s>>1))} offen offset:{2048*(s&1)} {o.get('pfl', 'sc1')}")
            if w16 & 1: a(pr[s])
        if w16 & 1:
            a(f"s_mov_b32 exec_lo, 0xffff\ns_mov_b32 exec_hi, 0xffff\nbuffer_store_dwordx4 {vr(XR,4)}, {vr(V_KA+1)}, {sr(S_WS,4)}, {sr(T+5)} offen {o.get('pfl', 'sc1')}\ns_mov_b64 exec, -1")
        else: a(f"buffer_store_dwordx2 {vr(XA+16,2)}, {vr(V_KA+1)}, {sr(S_WS,4)}, {sr(T+5)} offen {o.get('pfl', 'sc1')}")
        if o.get("pw"):
            a("s_waitcnt vmcnt(0)")
            self.stamp("pb1")
        a(f"s_waitcnt vmcnt({5 + o.get('nql', 11)})\ns_branch L_bar1")
        a.label("L_nop")
        if o.get("touch", 1):
            a(f"s_mov_b64 exec, 0\ns_cmp_eq_u32 {sr(S_W)}, 0\ns_cbranch_scc1 L_t3\ns_branch L_t4")
            a.label("L_tr2")
            a("s_mov_b64 exec, -1")
        a(f"s_waitcnt vmcnt({o.get('nql', 11)})")
        a.label("L_bar1")
        self.stamp("pub")
        xw = [f"ds_write_b128 {vr(VS)}, {vr(XA+4*s,4)} offset:{1024*s}" for s in range(4)] + [f"ds_write_b64 {vr(VR4)}, {vr(XA+16,2)}"]
        self.stamp("tch")
        PA = 249
        a(f"""v_add_u32 {vr(V_KA)}, {sr(S_LB)}, {vr(V_KA)}
        v_add_u32 {vr(V_KA+1)}, {sr(S_LB)}, {vr(V_KA+1)}
        s_mul_i32 {sr(T)}, {sr(S_B)}, {NT}
        s_mul_i32 {sr(T+1)}, {sr(S_H)}, 63
        s_add_u32 {sr(T)}, {sr(T)}, {sr(T+1)}
        s_lshl_b32 {sr(T)}, {sr(T)}, 8
        s_add_u32 {sr(T)}, {sr(T)}, {FA0}
        s_cmp_eq_u32 {sr(S_W)}, 0
        {"" if o.get("gatepos", 0) else f"s_cselect_b32 {sr(T)}, {sr(T)}, 0x40000000"}
        v_lshl_add_u32 {vr(PA)}, v0, 8, {sr(T)}
        {"" if o.get("rot", 0) else self.xa_srd()}
        s_waitcnt lgkmcnt(0)""")
        self.stamp("w1")
        a("s_barrier")
        self.stamp("bar1")
        m_b1 = len(a.lines)
        ro = sr(S_RO) if o.get("rot", 0) == 2 else "0"
        poll = lambda r: f"buffer_load_dword {vr(r)}, {vr(PA)}, {sr(S_WS,4)}, {ro} offen sc1\nbuffer_load_dword {vr(r+2)}, {vr(PA)}, {sr(S_WS,4)}, {ro} offen offset:128 sc1"

        def gate(lab, r, mask, younger):
            a(f"s_mov_b32 {sr(T+2)}, 0\ns_waitcnt vmcnt({younger})")
            a.label(lab)
            a(f"""v_cmp_ne_u32 vcc, {sr(S_N)}, {vr(r)}
            v_cmp_ne_u32 {sr(T+10,2)}, {sr(S_N)}, {vr(r+2)}
            s_add_u32 {sr(T+2)}, {sr(T+2)}, 1
            s_or_b64 vcc, vcc, {sr(T+10,2)}
            s_and_b64 vcc, vcc, {mask}
            s_cbranch_scc0 {lab}_ok
            s_sleep {o.get("slp", 4)}
            {poll(r)}
            s_waitcnt vmcnt(0)
            s_cmp_lt_u32 {sr(T+2)}, 0x40000
            s_cbranch_scc1 {lab}""")
            a.label(lab + "_ok")

        H, G_, UG, MS, CL = 16, 52, 208, 110, 104
        nup = o.get("nup", 5)
        at = {o.get("u0", 6) + o.get("usp", 6) * i: wl.pop(0) for i in range(nup)}
        for i in range(5): at[i] = xw[i]
        tagld = f"buffer_load_dword v253, off, {sr(S_DB,4)}, 0 sc1"
        tag1 = tagld.replace("sc1", o.get("tgf", "sc1")).strip()
        at[o.get("tgp", 5)] = tag1
        pollm = f"buffer_load_dword v254, {vr(PM)}, {sr(S_WS,4)}, {sr(S_RO)} offen sc1"
        if mh and o.get("fmp", -1) >= 0: at[o["fmp"]] = pollm
        if o.get("es", 0) == 1:
            n_ = len(a.lines); self.epi_setup()
            el = [l.strip() for l in a.lines[n_:]]; del a.lines[n_:]
            for k in range(5, 42):
                if k in at: continue
                c_ = 0
                while el and c_ < o.get("esn", 2):
                    x = el.pop(0); at[k] = at.get(k, "") + x + "\n"; c_ += 1 if x.startswith("v_") else 0.5
            self.es_left = el
        self.gemm(self.tr_reads(TRU), XA, H, None, at=at)
        if o.get("es", 0) == 1:
            for x in self.es_left: a(x)
        self.stamp("up")
        p = lambda r: vr(r, 2)
        CC = TM
        c1 = -2.0 * math.sqrt(2.0 / math.pi) * LOG2E
        c2 = c1 * 0.044715
        gst = [[f"v_pk_mul_f32 {p(G_+2*i)}, {p(H+2*i)}, {p(H+2*i)}" for i in range(18)] +
               [f"v_pk_fma_f32 {p(G_+2*i)}, {p(G_+2*i)}, {p(CC+2)}, {p(CC)} op_sel_hi:[1,0,0]" for i in range(18)] +
               [f"v_pk_mul_f32 {p(G_+2*i)}, {p(G_+2*i)}, {p(H+2*i)}" for i in range(18)],
               [f"v_exp_f32 {vr(G_+i)}, {vr(G_+i)}" for i in range(36)],
               [f"v_pk_add_f32 {p(G_+2*i)}, {p(G_+2*i)}, {p(CC+4)} op_sel_hi:[1,0]" for i in range(18)],
               [f"v_rcp_f32 {vr(G_+i)}, {vr(G_+i)}" for i in range(36)],
               [f"v_pk_mul_f32 {p(H+2*i)}, {p(G_+2*i)}, {p(H+2*i)}" for i in range(18)]]
        def flag():
            n_ = self.vm_since(max(i for i, l in enumerate(a.lines) if l.strip() == tag1) + 1) if not mh else 0
            if w16 & 2: a(self.a8() + f"\ns_mov_b32 {sr(T+5)}, 0\ns_waitcnt vmcnt({n_})")
            else: a(f"v_lshrrev_b32 {vr(t0)}, 5, v0\nv_lshlrev_b32 {vr(t0)}, 30, {vr(t0)}\nv_lshl_add_u32 {vr(t0)}, v0, 2, {vr(t0)}\ns_mov_b32 {sr(T+5)}, 0\ns_waitcnt vmcnt({n_})")
            a.label("L_tag")
            a(f"""v_readfirstlane_b32 {sr(S_N)}, v253
            s_add_u32 {sr(T+5)}, {sr(T+5)}, 1
            s_cmp_lg_u32 {sr(S_N)}, 0
            s_cbranch_scc1 L_tag_ok
            {tagld}
            s_waitcnt vmcnt(0)
            s_cmp_lt_u32 {sr(T+5)}, 0x40000
            s_cbranch_scc1 L_tag""")
            a.label("L_tag_ok")
            if o.get("rot", 0):
                if o.get("xfix"): a(self.region(S_RO, S_N))
                else: a(f"""{self.region(T+5, S_N)}
                s_cmp_lg_u32 {sr(T+5)}, {sr(S_RO)}
                s_cbranch_scc1 L_moved""")
                a.label("L_movedb")
                if o["rot"] == 2: a(f"s_add_u32 {sr(PUB)}, {sr(PUB)}, {sr(S_RO)}")

                def moved():
                    a.label("L_moved")
                    if o["rot"] == 2: a(f"s_mov_b32 {sr(S_RO)}, {sr(T+5)}")
                    else:
                        a(f"""s_sub_u32 {sr(T+5)}, {sr(T+5)}, {sr(S_RO)}
                        s_ashr_i32 {sr(T+6)}, {sr(T+5)}, 31
                        s_add_u32 {sr(S_WS)}, {sr(S_WS)}, {sr(T+5)}
                        s_addc_u32 {sr(S_WS+1)}, {sr(S_WS+1)}, {sr(T+6)}""")
                    a(f"""s_lshr_b32 {sr(T+5)}, {sr(S_W)}, 1
                    s_and_b32 {sr(T+5)}, {sr(T+5)}, {sr(S_VAL)}
                    s_cbranch_scc0 L_movedb
                    s_mul_i32 {sr(T+5)}, {sr(S_TOWN)}, {TILE}
                    {f"s_add_u32 {sr(T+5)}, {sr(T+5)}, {sr(S_RO)}" if o["rot"] == 2 else ""}
                    s_and_b32 {sr(T+6)}, {sr(S_W)}, 1
                    s_lshl_b32 {sr(T+7)}, {sr(T+6)}, 9
                    s_add_u32 {sr(T+7)}, {sr(T+7)}, {sr(T+5)}
                    s_add_u32 {sr(T+7)}, {sr(T+7)}, 8192
                    s_lshl_b32 {sr(T+6)}, {sr(T+6)}, 8
                    s_add_u32 {sr(T+5)}, {sr(T+5)}, {sr(T+6)}
                    s_add_u32 {sr(T+6)}, {sr(T+5)}, 4096
                    v_subrev_u32 {vr(t0)}, {sr(S_LB)}, {vr(V_KA)}
                    v_subrev_u32 {vr(t1)}, {sr(S_LB)}, {vr(V_KA+1)}""")
                    for s_ in range(4): a(f"buffer_store_dwordx4 {vr(XA+4*s_,4)}, {vr(t0)}, {sr(S_WS,4)}, {sr(T+5+(s_>>1))} offen offset:{2048*(s_&1)} sc1")
                    a(f"buffer_store_dwordx2 {vr(XA+16,2)}, {vr(t1)}, {sr(S_WS,4)}, {sr(T+7)} offen sc1\ns_waitcnt vmcnt(0)\ns_branch L_movedb")
                self.moved = moved
                assert w16 & 2
            if w16 & 2:
                for i in range(4): a(f"v_mov_b32 {vr(CL+i)}, {sr(S_N)}")
                a(f"buffer_store_dwordx4 {vr(CL,4)}, v255, {sr(S_WS,4)}, {sr(PUB)} offen sc1")
            else: a(f"v_mov_b32 {vr(t1)}, {sr(S_N)}\nbuffer_store_dword {vr(t1)}, {vr(t0)}, {sr(S_WS,4)}, {sr(PUB)} offen sc1")
            self.m_fl = len(a.lines)
            if o.get("rot", 0): a(self.xa_srd(T + 5))
            self.stamp("flag")
        gs = o.get("gs", 0)
        if mh:
            a(f"v_mov_b32 {vr(CC)}, {f32(c1)}\nv_mov_b32 {vr(CC+2)}, {f32(c2)}\nv_mov_b32 {vr(CC+4)}, 1.0")
            pre = [x for st_ in gst[:gs] for x in st_]
            n0_, nf_, np_ = o.get("mg0", 0), o.get("mgf", 0), o.get("mgp", -1)
            for i, x in enumerate(pre[:n0_] + [""]):
                if i == nf_: flag()
                if i == np_: a(pollm)
                a(x)
            pre = pre[n0_:]
            if np_ >= 0: a("s_waitcnt vmcnt(0)")
            a(f"s_mov_b32 {sr(T+5)}, 0")
            a.label("L_gm")
            a(f"""v_cmp_ne_u32 vcc, {sr(S_N)}, v254
            s_mul_i32 {sr(T+6)}, {sr(S_W)}, {2*BLK}
            s_add_u32 {sr(T+8)}, {sr(S_RO)}, {WS_M + 8*BLK}
            s_add_u32 {sr(T+6)}, {sr(T+6)}, {WS_M}
            s_add_u32 {sr(T+6)}, {sr(T+6)}, {sr(S_RO)}
            s_add_u32 {sr(T+7)}, {sr(T+6)}, {BLK}
            s_and_b32 vcc_lo, vcc_lo, 0xffff
            s_cbranch_scc0 L_gm_ok
            s_sleep {o.get("slm", 4)}
            {pollm}
            s_add_u32 {sr(T+5)}, {sr(T+5)}, 1
            s_waitcnt vmcnt(0)
            s_cmp_lt_u32 {sr(T+5)}, 0x40000
            s_cbranch_scc1 L_gm""")
            a.label("L_gm_ok")
            self.stamp("gm")
            ml = []
            for t in range(3): ml += self.w8_loads([("a", A_Q + 18 * t + 4 * s_) for s_ in range(5)], T + 6 + t)
            mk = []
            sp = o.get("mlsp", 4)
            for i, x in enumerate(pre):
                if i % sp == 0 and ml: a(ml.pop(0)); mk.append(len(a.lines))
                a(x)
            for x in ml: a(x); mk.append(len(a.lines))
            if gs == 6:
                a(f"s_mul_i32 {sr(T)}, {sr(WV+1)}, {BLK}\ns_cmp_eq_u32 {sr(S_H)}, 1\ns_cbranch_scc1 L_ln2\ns_add_u32 {sr(T)}, {sr(T)}, {WS_U}")
                for i in range(18): a(f"v_cvt_pk_bf16_f32 {vr(UG+i)}, {vr(H+2*i)}, {vr(H+2*i+1)}")
                a("s_branch L_ug")
                a.label("L_ln2")
                a(f"s_add_u32 {sr(T)}, {sr(T)}, {WS_G}")
                self.ln_f32(H, UG, TM)
                a.label("L_ug")
                a(f"s_cmp_eq_u32 {sr(WV)}, 1\ns_cselect_b32 {sr(S_UG)}, {sr(T)}, 0x40000000")
            self.stamp("gea")
            a("s_waitcnt lgkmcnt(0)\ns_barrier")
        else:
            if gs:
                a(f"v_mov_b32 {vr(CC)}, {f32(c1)}\nv_mov_b32 {vr(CC+2)}, {f32(c2)}\nv_mov_b32 {vr(CC+4)}, 1.0")
                pre = [x for st_ in gst[:gs] for x in st_]
                ngw = o.get("ngw", 0)
                for i, x in enumerate(pre):
                    a(x)
                    if ngw and i % o.get("gwsp", 8) == 2 and wl: a(wl.pop(0)); ngw -= 1
                self.stamp("gea")
            last = lambda srd: max(i for i, l in enumerate(a.lines) if l.strip().startswith("buffer_load") and sr(srd, 4) in l) + 1
            assert not any(sr(SQ, 4) in x for x in wl)
            nq_ = self.vm_since(m_b1) + (5 if last(SQ) < m_b1 else 0) if last(SQ) < m_b1 else self.vm_since(last(SQ))
            a(f"s_waitcnt vmcnt({self.vm_since(m_b1) if last(SQ) < m_b1 else nq_}) lgkmcnt(0)" if False else "")
            if last(SQ) < m_b1:
                a(f"s_cmp_lt_u32 {sr(S_W)}, 2\ns_cbranch_scc1 L_bg0\ns_waitcnt vmcnt({5 + self.vm_since(m_b1)})\ns_branch L_bg1\nL_bg0:\ns_waitcnt vmcnt({self.vm_since(m_b1)})\nL_bg1:\ns_waitcnt lgkmcnt(0)\ns_barrier")
            else: a(f"s_waitcnt vmcnt({self.vm_since(last(SQ))}) lgkmcnt(0)\ns_barrier")

        self.stamp("barG")
        if o.get("atw"):
            a("s_waitcnt vmcnt(1)")
            self.stamp("ack1")
            a("s_waitcnt vmcnt(0)")
            self.stamp("ack")
        if o.get("census"):
            k_ = S_ST + 2 * self.stnames.index(o["census"][0])
            a(f"s_waitcnt lgkmcnt(0)\nv_mov_b32 v252, {sr(k_)}\ns_lshl_b32 {sr(T)}, s2, 2\ns_add_u32 {sr(T)}, {sr(T)}, {WS_DBG}\nv_mov_b32 v253, 0\nbuffer_store_dword v252, v253, {sr(S_WS,4)}, {sr(T)} offen sc1")

        def a_tr(t):
            ad, off = (TRQ, 32 * t) if t < 2 else (TRQ8, 0)
            return [f"ds_read_b64_tr_b16 {ar(AQ1+18*t+4*s+2*u,2)}, {vr(ad+u)} offset:{9216*s + off}" for s in range(4) for u in range(2)] + \
                   [f"ds_read_b64_tr_b16 {ar(AQ1+18*t+16,2)}, {vr(ad+2)} offset:{36864 + off}"]

        def a_row(t):
            off = 4864 * t if t < 2 else 0
            return [f"ds_read_b64 {ar(A_Q+18*t+4*s+2*u,2)}, {vr(RK+t)} offset:{off + 64*s + 32*u}" for s in range(4) for u in range(2)] + \
                   [f"ds_read_b64 {ar(A_Q+18*t+16,2)}, {vr(RK+t)} offset:{off + 256}"]
        bq = lambda j, d=0: [f"ds_read_b128 {ar(18*j+4*s,4)}, {vr(VS+j)} offset:{d + 1024*s}" for s in range(4)] + [f"ds_read_b64 {ar(18*j+16,2)}, {vr(VR4+j)} offset:{d}"]

        def post(u, scale, d):
            L = [f"v_mul_f32 {vr(ACC+4*u+i)}, {sr(T+4)}, {vr(ACC+4*u+i)}" for i in range(4)] if scale else []
            L += [f"v_cvt_pk_bf16_f32 {vr(PK + (4*(u&3) + 2*(u>>2) if u < 8 else 16) + h)}, {vr(ACC+4*u+2*h)}, {vr(ACC+4*u+2*h+1)}" for h in range(2)]
            if 4 <= u < 8: L.append(f"ds_write_b128 {vr(VSW+u-4)}, {vr(PK+4*(u-4),4)} offset:{d}")
            if u == 8: L.append(f"ds_write_b64 {vr(VR4)}, {vr(PK+16,2)} offset:{d}")
            return L
        fl2 = o.get("fl2", 1)
        self.m_fl = 0
        xd = [f"ds_read_b128 {vr(XD+4*j,4)}, {vr(VSW+j)}" for j in range(4)]
        gp_ = o.get("gatepos", 0)
        if mh:
            vw = lambda i: (lambda: a(f"s_waitcnt vmcnt({self.vm_since(mk[i])})"))
            self.gemm_u(A_Q, ar, [("v", XA), ("a", 18), ("a", 36), ("a", 54)], ACC, lambda t: [], lambda j: bq(j) if j else None, lambda u: post(u, False, L_QD),
                        vm_items=[poll(252)], other=xd, lastk=o.get("plk", 26), pre={0: vw(3), 13: vw(8), 29: vw(14)})
            a("s_waitcnt lgkmcnt(5)")
        else:
            n_g1 = len(a.lines)
            self.gemm_u(AQ1, ar, [("v", XA), ("a", 18), ("a", 36), ("a", 54)], ACC, a_tr, lambda j: bq(j) if j else None, lambda u: post(u, False, L_QD),
                        vm_items=wl, other=xd, vmsp=o.get("vmsp", 3), at={o.get("flp", 22): flag} if fl2 < 0 else {})
            for _ in range(o.get("dup1", 0)):
                self.gemm_u(AQ1, ar, [("v", XA), ("a", 18), ("a", 36), ("a", 54)], ACC, a_tr, lambda j: bq(j) if j else None, lambda u: post(u, False, L_QD))
            for _ in range(o.get("nop1", 0)): a("s_sleep 15")
            if "1" in o.get("abA", ""):
                a.lines[n_g1:] = [l for l in a.lines[n_g1:] if not l.strip().startswith(("v_mfma", "ds_read_b64_tr", "v_cvt_pk", "ds_write", "s_nop"))]
                self.m_fl = max(i for i, l in enumerate(a.lines) if "buffer_store" in l) + 1
            self.stamp("g1")
            for i in range(4): a(f"v_mov_b32 {vr(CL+i)}, -1")
            a(f"s_lshl2_add_u32 {sr(T+2)}, s2, {sr(S_W)}\ns_mul_i32 {sr(T+2)}, {sr(T+2)}, 2560\ns_add_u32 {sr(T+2)}, {sr(T+2)}, {WS_IB}")
            a(f"s_mov_b32 {sr(T+4)}, {f32(LOG2E / 12.0)}\ns_waitcnt vmcnt({self.vm_since(max(last(SK), self.m_fl)) + (last(SK) < self.m_fl)}) lgkmcnt(0)\ns_barrier")
            T2 = T + 2
            clr = [f"buffer_store_dwordx4 {vr(CL,4)}, {vr(V_DMA)}, {sr(S_WS,4)}, {sr(T+2)} offen sc1",
                   f"buffer_store_dwordx4 {vr(CL,4)}, {vr(V_DMA)}, {sr(S_WS,4)}, {sr(T+2)} offen offset:1024 sc1",
                   f"buffer_store_dwordx2 {vr(CL,2)}, {vr(L8)}, {sr(S_WS,4)}, {sr(T+2)} offen offset:2048 sc1"]
            self.stamp("bar2")
            gp_ = o.get("gatepos", 0)
            cl1 = not o.get("cll", 1)
            self.gemm_u(A_Q, ar, [("a", 18 * j) for j in range(4)], ACC, a_row, lambda j: bq(j, L_QD), lambda u: post(u, True, 0), vm_items=((clr if cl1 else []) + [poll(252)] if gp_ == 0 else clr if cl1 else []), vm0=o.get("pg", 6), vmsp=o.get("csp", 3),
                        lastk=o.get("plk", 26) if gp_ == 0 else 0, at={fl2: flag} if fl2 >= 0 else {})
            if "2" in o.get("abA", ""):
                n_g2 = max(i for i, l in enumerate(a.lines) if "s_barrier" in l) + 1
                k_ = [0]
                def keep(l):
                    if l.strip().startswith("v_mfma"):
                        k_[0] += 1; return k_[0] % 2 == 0
                    return True
                a.lines[n_g2:] = [l for l in a.lines[n_g2:] if keep(l)]
        self.stamp("g2")
        p = lambda r: vr(r, 2)
        CC = TM
        for j in range(4): a(f"v_dot2_f32_bf16 {vr(CC+j)}, {vr(PK+4*j)}, {vr(XD+4*j)}, 0")
        for i in range(2): a(f"v_dot2_f32_bf16 {vr(CC)}, {vr(PK+16+i)}, {vr(XA+16+i)}, {vr(CC)}")
        for i in range(1, 4):
            for j in range(4): a(f"v_dot2_f32_bf16 {vr(CC+j)}, {vr(PK+4*j+i)}, {vr(XD+4*j+i)}, {vr(CC+j)}")
        QE = VS if gs else TRQ
        a(f"""s_xor_b32 {sr(T+1)}, {sr(self.NB)}, 1
        v_add_u32 {vr(t0)}, {L_XX + (L_QD if mh else 0)}, {vr(V_DMA)}
        v_lshl_add_u32 {vr(QE)}, {sr(T+1)}, 12, {vr(t0)}
        v_lshl_add_u32 {vr(QE+1)}, {sr(self.NB)}, 12, {vr(t0)}""")
        self.treduce(CC)
        a(f"""ds_write_b32 {vr(MXA)}, {vr(CC)}
        v_add_u32 {vr(t0)}, {L_XR + (L_QD if mh else 0)}, {vr(L8)}
        v_lshl_add_u32 {vr(QE+2)}, {sr(T+1)}, 9, {vr(t0)}
        v_lshl_add_u32 {vr(QE+3)}, {sr(self.NB)}, 9, {vr(t0)}
        v_lshl_add_u32 {vr(QE+4)}, {sr(T+1)}, 8, {vr(MXR)}
        v_lshl_add_u32 {vr(QE+5)}, {sr(self.NB)}, 8, {vr(MXR)}
        s_sub_u32 {sr(T+5)}, 63, {sr(S_H)}
        s_bfm_b64 {sr(T+8,2)}, {sr(T+5)}, 0
""")
        if gp_ == 0:
            a(f"s_cmp_lg_u32 {sr(S_W)}, 0\ns_cbranch_scc1 L_ga_ok")
            gate("L_ga", 252, sr(T + 8, 2), 0)
        else: a(poll(252))
        a("s_waitcnt lgkmcnt(0)\ns_barrier")
        self.stamp("bar3")
        qrd = [f"ds_read_b128 {vr(MS+4*qb,4)}, {vr(QE+4+(qb&1))} offset:{512*(qb>>1)}" for qb in range(4)]
        for qb in range(4):
            qrd += [f"ds_read_b128 {ar(A_Q+18*qb+4*s,4)}, {vr(QE+(qb&1))} offset:{8192*(qb>>1) + 1024*s}" for s in range(4)]
            qrd.append(f"ds_read_b64 {ar(A_Q+18*qb+16,2)}, {vr(QE+2+(qb&1))} offset:{1024*(qb>>1)}")
        if gs:
            tg = self.tile_groups(0) + self.tile_groups(1)
            n0 = o.get("n0", 3)
            for x in tg[:n0]: a(x)
            tg = tg[n0:]
            if gs < 3: a(f"v_mov_b32 {vr(CC+4)}, 1.0")
            mem = []
            qpd = o.get("qpd", 2)
            while tg or qrd:
                it = []
                if tg: it.append(tg.pop(0))
                it += [qrd.pop(0) for _ in range(min(qpd, len(qrd)))]
                mem.append("\n".join(it))
            com = [x for st_ in gst[gs:] for x in st_]
            ev = o.get("gev", 3)
            for i, x in enumerate(com):
                a(x)
                if i % ev == ev - 1 and mem: a(mem.pop(0))
            if gs == 6:
                for x in mem: a(x)
        if gs and gs < 6:
            a(f"""s_mul_i32 {sr(T)}, {sr(WV+1)}, {BLK}
            s_cmp_eq_u32 {sr(S_H)}, 1
            s_cbranch_scc1 L_ln2
            s_add_u32 {sr(T)}, {sr(T)}, {WS_U}""")
            m0_ = list(mem)
            for i in range(18):
                a(f"v_cvt_pk_bf16_f32 {vr(UG+i)}, {vr(H+2*i)}, {vr(H+2*i+1)}")
                if i % o.get("gev0", 2) == 1 and m0_: a(m0_.pop(0))
            for x in m0_: a(x)
            a("s_branch L_ug")
            a.label("L_ln2")
            a(f"s_add_u32 {sr(T)}, {sr(T)}, {WS_G}")
            a.bg, a.every, a.cnt = list(mem), o.get("gev1", 6), 0
            self.ln_f32(H, UG, TM)
            a.flush()
            a.label("L_ug")
            m_t0 = m_t1 = None
        if not gs:
            tg = self.tile_groups(0) + self.tile_groups(1) + self.tile_groups(2)[:8]
            n0 = o.get("n0", 3) if gp_ == 0 else 0
            for x in tg[:n0]: a(x)
            a(f"v_mov_b32 {vr(CC)}, {f32(c1)}\nv_mov_b32 {vr(CC+2)}, {f32(c2)}\nv_mov_b32 {vr(CC+4)}, 1.0")
            nq1, nt1 = (o.get("nq1", 8), o.get("nt1", 5)) if gp_ == 0 else (o.get("nq1", 16), 0)
            bgl = []
            for i in range(max(nq1 // 2, nt1)):
                if 2 * i < nq1: bgl.append(qrd[2 * i] + "\n" + qrd[2 * i + 1])
                if i < nt1: bgl.append(tg[n0 + i])
            tg, qrd = tg[n0 + nt1:], qrd[nq1:]
            a.bg, a.every, a.cnt = bgl, 54 // (len(bgl) + 1), 0
            for x in gst[0]: a(x)
            a.flush()
            if gp_:
                self.stamp("ge0")
                gate("L_ga", 252, sr(T + 8, 2), 0)
                for x in tg[:2]: a(x)
                tg = tg[2:]
            self.stamp("ge1")
            esp = o.get("esp", 3 if gp_ else 4)
            for i in range(36):
                a(gst[1][i])
                if i % esp == 1 and tg: a(tg.pop(0))
                if i % 8 == 3 and qrd: a(qrd.pop(0)); a(qrd.pop(0))
            self.stamp("ge2")
            for x in gst[2]: a(x)
            for i in range(36):
                a(gst[3][i])
                if i % esp == 1 and tg: a(tg.pop(0))
                if i % 8 == 3 and qrd: a(qrd.pop(0)); a(qrd.pop(0))
            assert not tg and not qrd
            idx = [i for i, l in enumerate(a.lines) if l.strip().startswith("buffer_load") and l.rstrip().endswith("lds")]
            m_t0, m_t1 = idx[-18] + 1, idx[-9] + 1
            for x in gst[4]: a(x)
            a(f"""s_mul_i32 {sr(T)}, {sr(WV+1)}, {BLK}
            s_cmp_eq_u32 {sr(S_H)}, 1
            s_cbranch_scc1 L_ln2
            s_add_u32 {sr(T)}, {sr(T)}, {WS_U}""")
            for i in range(18): a(f"v_cvt_pk_bf16_f32 {vr(UG+i)}, {vr(H+2*i)}, {vr(H+2*i+1)}")
            a("s_branch L_ug")
            a.label("L_ln2")
            a(f"s_add_u32 {sr(T)}, {sr(T)}, {WS_G}")
            self.ln_f32(H, UG, TM)
            a.label("L_ug")
        self.stamp("ge3")
        if gs < 6: a(f"s_cmp_eq_u32 {sr(WV)}, 1\ns_cselect_b32 {sr(S_UG)}, {sr(T)}, 0x40000000")
        a("s_waitcnt lgkmcnt(0)")
        kz = [f"s_waitcnt vmcnt({9 if gs else self.vm_since(m_t0)})"] + self.k_reads(0, V_V)
        if not gs:
            for x in kz: a(x)
        self.ugs = [f"buffer_store_dwordx4 {vr(UG+4*s,4)}, {vr(V_DMA)}, {sr(S_WS,4)}, {sr(S_UG)} offen offset:{1024*s} sc1" for s in range(4)]
        self.ugs.append(f"buffer_store_dwordx2 {vr(UG+16,2)}, {vr(self.VL8)}, {sr(S_WS,4)}, {sr(S_UG)} offen sc1")
        for qb in range(4): a(f"v_pk_add_f32 {p(MS+4*qb)}, {p(MS+4*qb)}, {p(MS+4*qb+2)} neg_lo:[1,1] neg_hi:[1,1]")
        for qb in range(4): a(f"v_add_f32 {vr(self.MK+qb)}, {vr(MS+4*qb)}, {vr(MS+4*qb+1)}")
        a(f"v_lshlrev_b32 {vr(t1)}, 8, v0\nv_lshlrev_b32 v231, 2, v0\nv_add_u32 v231, {L_PC}, v231\nds_write_b32 v231, {vr(t1)}")
        self.loop_init(False)
        if gs:
            self.loop_init(True)
            self.stamp("ug0")
            for x in kz: a(x)
        else: self.n_t1 = self.vm_since(m_t1)
        self.stamp("ug")

    def a8(self):
        return f"v_lshrrev_b32 v255, 3, v0\nv_min_u32 v255, 1, v255\nv_lshlrev_b32 v255, 30, v255\nv_add_u32 v255, v255, {vr(V_DMA)}"

    def loop_init(self, part):
        a = self.a
        if part:
            for qb in range(4):
                for i in range(4): a(f"v_mov_b32 {vr(V_CI+4*qb+i)}, {vr(self.MK+qb)}")
            return
        for k in range(7): a(f"v_add_u32 {vr(V_HI+k)}, {2*SLOT}, {vr(V_KA+k if k < 5 else V_VB+k-5)}")
        a(f"v_add_u32 {vr(self.VS0)}, {sr(S_LB)}, {vr(V_DMA)}\nv_add_u32 {vr(self.VS0R)}, {sr(S_LB)}, {vr(self.VL8)}\ns_mov_b32 {sr(S_CNT)}, 0\ns_mov_b32 {sr(S_INC)}, {4*TILE}")
        for i in range(4): a(f"v_mov_b32 {vr(V_L+i)}, 0")
        for i in range(4): a(f"v_mov_b32 {vr(226+i)}, -1")
        if self.o.get("oib", 0):
            T = S_T
            a(f"""s_mul_i32 {sr(S_CL)}, {sr(S_TOWN)}, {TILE}
            s_mul_i32 {sr(T)}, {sr(self.NB)}, {BLK}
            s_lshl_b32 {sr(T+1)}, {sr(self.PT)}, 11
            s_add_u32 {sr(T)}, {sr(T)}, {sr(T+1)}
            s_add_u32 {sr(S_CL)}, {sr(S_CL)}, {sr(T)}
            s_xor_b32 {sr(T+1)}, {sr(S_H)}, 1
            s_sub_u32 {sr(T+1)}, {sr(T+1)}, {sr(S_H)}
            s_mul_i32 {sr(T+1)}, {sr(T+1)}, {TILE}
            s_add_u32 {sr(S_OS)}, {sr(S_CL)}, {sr(T+1)}
            s_cmp_ge_u32 s2, 248
            s_cselect_b32 {sr(T)}, 2.0, 0
            s_mul_i32 {sr(T+1)}, {sr(T)}, {sr(S_H)}
            s_sub_u32 {sr(T)}, {sr(T)}, {sr(T+1)}
            s_add_u32 {sr(S_OS)}, {sr(S_OS)}, {sr(T)}
            s_add_u32 {sr(S_OR)}, {sr(S_CL)}, {sr(T+1)}
            s_lshl_b32 {sr(T)}, {sr(S_REDO)}, 30
            s_or_b32 {sr(S_CL)}, {sr(S_OR)}, {sr(T)}
            s_lshl1_add_u32 {sr(S_CL+1)}, s2, {sr(self.NB)}
            s_mul_i32 {sr(S_CL+1)}, {sr(S_CL+1)}, 5120
            s_add_u32 {sr(S_CL+1)}, {sr(S_CL+1)}, {sr(T)}
            s_lshl_b32 {sr(T)}, {sr(self.PT)}, 9
            s_add_u32 {sr(T)}, {sr(T)}, {WS_IB}
            s_add_u32 {sr(S_CL+1)}, {sr(S_CL+1)}, {sr(T)}""")
        else:
            a(f"""s_lshl2_add_u32 {sr(S_CL)}, s2, {sr(S_W)}
            s_mul_i32 {sr(S_CL)}, {sr(S_CL)}, 2560
            s_lshl_b32 {sr(S_CL+1)}, {sr(S_REDO)}, 30
            s_add_u32 {sr(S_CL)}, {sr(S_CL)}, {sr(S_CL+1)}
            s_add_u32 {sr(S_CL)}, {sr(S_CL)}, {WS_IB}
            s_sub_u32 {sr(S_CL+1)}, {sr(S_CL)}, 2048""")
        a(f"v_mov_b32 v207, {sr(S_N)}\nv_mov_b32 {vr(self.VPL+1)}, 1\nv_lshlrev_b32 v231, 2, v0\nv_add_u32 v231, {L_PC}, v231")
        if self.o.get("xm", 0): a(f"s_add_u32 {sr(S_T)}, {sr(S_N)}, {sr(S_XC)}\nv_writelane_b32 v207, {sr(S_T)}, 1")

    def head(self):
        a, o = self.a, self.o
        gs = o.get("gs", 0)
        a.label("L_go")
        if not gs: self.loop_init(True)
        a("s_waitcnt lgkmcnt(0)\ns_barrier")
        self.stamp("bar5")
        base = self.qk_mfmas(0)
        pick = lambda s_, kb, qb: base[8 * s_ + 4 * kb + qb].replace(vr(V_K + 8 * s_ + 4 * kb, 4) + ",", vr(V_V + 8 * s_ + 4 * kb, 4) + ",").replace(vr(V_K + 32 + 2 * kb, 2) + ",", vr(V_V + 32 + 2 * kb, 2) + ",")
        mf, fin = [], {}
        for qb, s_ in [(0, 0), (0, 1), (0, 2), (0, 3), (1, 0), (1, 1), (0, 4), (1, 2), (1, 3), (2, 0), (2, 1), (1, 4), (2, 2), (2, 3), (3, 0), (3, 1), (2, 4),
                       (3, 2), (3, 3), (3, 4)]:
            for kb in range(2):
                fin[qb, kb] = len(mf)
                mf.append(("s_nop 3\n" if (qb, s_, kb) == (3, 4, 0) else "") + pick(s_, kb, qb))
        enew = [e[1] for g in range(40, 76) for e in self.gaps[g] if e[0] == "E"]
        items = self.e_items(0, enew, lambda qb, j: 0, lambda qb: 999)
        for it, e in zip(items, enew):
            if e[0] == "e": it["am"] = fin[e[1], e[2] // 4]
        dm = []
        for k, (slot, j) in enumerate([(2, j) for j in range(9)] if gs else [(2, 8)] + [(3, j) for j in range(9)]):
            g_ = 1 + o.get("hsp", 4) * k
            if j % 4 == 0: dm.append(dict(t=f"s_add_u32 m0, {sr(S_LB)}, {slot*SLOT + 4096*(j//4)}", c=0, lo=g_ - 1, hi=g_ - 1))
            dm.append(dict(t=f"buffer_load_dwordx4 {vr(V_DMA + j//4)}, {sr(S_XA,4)}, {sr(S_TOFF)} offen offset:{1024*(j%4)} {self.o.get('dfl', '')} lds", c=8, lo=g_, hi=g_))
            if j == 8: dm.append(dict(t=f"s_add_u32 {sr(S_TOFF)}, {sr(S_TOFF)}, {4*TILE}", c=0, lo=g_ + 1, hi=g_ + 1))
        nh = o.get("ugh", 2) if not o.get("ugl", 1) else 0
        for k in range(nh): dm.append(dict(t=self.ugs[k], c=8, lo=3 + 16 * k, hi=3 + 16 * k))
        if gs:
            k1 = o.get("k1lo", 22)
            kr = [dict(t=("@VM\n" if i == 0 else "") + x, c=4, lo=k1 + i // 2, hi=k1 + i // 2, nds=2) for i, x in enumerate(self.k_reads(1))]
        else:
            a(f"s_waitcnt vmcnt({self.n_t1})")
            kr = [dict(t=x, c=4, lo=i // 2, nds=2) for i, x in enumerate(self.k_reads(1))]
        left = self.pack(mf, items + dm + kr)
        print("head overflow", self.over, "left", len(left))
        left.sort(key=lambda x: not x.startswith("v_exp"))
        last = a.lines[-1].strip()
        for x in left:
            if last.startswith("v_exp") and not x.startswith("v_exp") and (last.split()[1].rstrip(",") + ",") in (x + ","): a("s_nop 0")
            a(x); last = x
        a("s_waitcnt lgkmcnt(0)")

    def tile_groups(self, slot):
        out = []
        for j in range(9):
            g = ""
            if j % 4 == 0: g = f"s_add_u32 m0, {sr(S_LB)}, {slot*SLOT + 4096*(j//4)}\ns_nop 0\n"
            g += f"buffer_load_dwordx4 {vr(V_DMA + j//4)}, {sr(S_XA,4)}, {sr(S_TOFF)} offen offset:{1024*(j%4)} {self.o.get('dfl', '')} lds"
            if j == 8: g += f"\ns_add_u32 {sr(S_TOFF)}, {sr(S_TOFF)}, {4*TILE}"
            out.append(g)
        return out

    def first_tiles(self):
        pass

    def mfuse(self):
        a = self.a
        T = S_T
        A0, B0, X8, Y8, ACC, AD, PK = 16, 52, 88, 106, 124, 160, 168
        hs = lambda i: a(f"s_memrealtime s[{80+2*i}:{81+2*i}]") if self.o.get("stamps") else None
        hs(0)
        LK = 41984
        R = 44
        tgw = self.o.get("tgw", -1)
        nd = self.o.get("ndma", 4)
        a(f"""s_sub_u32 s2, s2, 252
        s_cmp_ge_u32 s2, {NH}
        s_cbranch_scc1 L_end
        s_mov_b32 s3, L_wfuse-L_pf
        buffer_load_dwordx4 v[252:255], v2, {sr(S_W1,4)}, s3 offen
        v_and_b32 v0, 63, v0
        v_lshlrev_b32 {vr(V_DMA)}, 4, v0
        s_mul_i32 {sr(T+2)}, s2, {TILE}""")
        AA = 180
        a(f"""v_and_b32 {vr(AD+4)}, 15, v0
        v_mul_u32_u24 {vr(AD+4)}, 288, {vr(AD+4)}
        v_lshrrev_b32 {vr(AD+6)}, 4, v0
        v_lshl_add_u32 {vr(AD+5)}, {vr(AD+6)}, 3, {vr(AD+4)}
        v_lshl_add_u32 {vr(AD+4)}, {vr(AD+6)}, 4, {vr(AD+4)}
        v_bfe_u32 {vr(AD+6)}, v0, 2, 1
        v_mul_u32_u24 {vr(AD+6)}, {BLK}, {vr(AD+6)}
        v_sub_u32 {vr(AD+7)}, {BLK}, {vr(AD+6)}
        v_add_u32 {vr(AD)}, {vr(AD+4)}, {vr(AD+6)}
        v_add_u32 {vr(AD+1)}, {vr(AD+5)}, {vr(AD+6)}
        v_add_u32 {vr(AD+2)}, {vr(AD+4)}, {vr(AD+7)}
        v_add_u32 {vr(AD+3)}, {vr(AD+5)}, {vr(AD+7)}
        v_lshlrev_b32 {vr(AD+6)}, 3, v0
        s_and_b32 {sr(T)}, s2, 1
        s_lshl1_add_u32 {sr(T)}, {sr(T)}, {sr(S_W)}
        s_and_b32 {sr(T)}, {sr(T)}, 3
        s_mul_i32 {sr(T+1)}, {sr(T)}, {TILE}""")
        for i in range(4): a(f"v_add_u32 {vr(AA+i)}, {sr(T+1)}, {vr(AD+i)}")
        a("s_mov_b64 vcc, 0xff\nv_mov_b32 v248, 2.0\nv_cndmask_b32 v248, v248, " + vr(V_DMA) + ", vcc")
        a("s_waitcnt lgkmcnt(0)")
        hs(1)
        self.srd(S_W1, 58, 59, 41472)
        self.srd(S_W2, 60, 61, 41472)
        self.srd(S_DB, 76, 77, 256)
        self.srd(S_WS, 78, 79, 256 << 20)
        n1 = self.o.get("md1", 3)
        a(f"s_lshl_b32 {sr(T+6)}, {sr(S_W)}, 10\ns_mov_b32 m0, {sr(T+6)}\ns_mov_b32 {sr(T+7)}, {sr(T+6)}")
        for k in range(n1): a(f"buffer_load_dwordx4 {vr(V_DMA)}, {sr(S_W1,4)}, {sr(T+7)} offen lds\ns_add_u32 m0, m0, 4096\ns_add_u32 {sr(T+7)}, {sr(T+7)}, 4096")
        a(f"""s_lshl2_add_u32 {sr(R+2)}, s2, {sr(S_W)}
        s_mov_b32 {sr(R+1)}, {f32(LOG2E / 12.0)}
        s_mov_b32 {sr(R)}, 0
        s_mov_b32 {sr(R+4)}, 15
        s_mov_b32 {sr(R+3)}, 0x40000
        s_mov_b32 {sr(S_RO)}, 0
        s_mov_b64 exec, 0
        s_cmp_eq_u32 {sr(S_W)}, 0
        s_cbranch_scc1 L_mf0
        s_cmp_eq_u32 {sr(S_W)}, 1
        s_cbranch_scc1 L_mfb
        s_cmp_eq_u32 {sr(S_W)}, 2
        s_cbranch_scc1 L_mf3
        s_branch L_mfa""")
        a.label("L_mf9")
        a("s_mov_b64 exec, -1")
        hs(2)
        a.label("L_mq")
        a(f"""buffer_load_dwordx4 {vr(V_DMA)}, {sr(S_W1,4)}, {sr(T+7)} offen lds
        s_add_u32 m0, m0, {1024*nd}
        s_add_u32 {sr(T+7)}, {sr(T+7)}, {1024*nd}
        s_cmp_lt_u32 {sr(T+7)}, 41472
        s_cbranch_scc1 L_mq
        s_add_u32 m0, {sr(T+6)}, {LK}
        s_add_u32 {sr(T+7)}, {sr(T+6)}, {sr(T+2)}
        s_add_u32 {sr(T+3)}, {sr(T+2)}, {TILE}""")
        a.label("L_mk")
        a(f"""buffer_load_dwordx4 {vr(V_DMA)}, {sr(S_W2,4)}, {sr(T+7)} offen lds
        s_add_u32 m0, m0, {1024*nd}
        s_add_u32 {sr(T+7)}, {sr(T+7)}, {1024*nd}
        s_cmp_lt_u32 {sr(T+7)}, {sr(T+3)}
        s_cbranch_scc1 L_mk
        s_add_u32 m0, {sr(T+6)}, {LK + TILE}
        s_add_u32 {sr(T+7)}, {sr(T+6)}, {8*BLK}""")
        a.label("L_mk8")
        a(f"""buffer_load_dwordx4 {vr(V_DMA)}, {sr(S_W2,4)}, {sr(T+7)} offen lds
        s_add_u32 m0, m0, {1024*nd}
        s_add_u32 {sr(T+7)}, {sr(T+7)}, {1024*nd}
        s_cmp_lt_u32 {sr(T+7)}, 41472
        s_cbranch_scc1 L_mk8""")
        a("s_waitcnt vmcnt(0)")
        a(f"""s_lshl_b32 {sr(R)}, {sr(R+2)}, 1
        s_lshr_b32 {sr(R)}, {hex(sum(r << (2*i) for i, r in enumerate([1,3,2,2, 1,0,2,2, 1,0,0,0, 1,0,0,0])))}, {sr(R)}
        s_and_b32 {sr(R)}, {sr(R)}, 3
        s_lshl_b32 {sr(R+4)}, 1, {sr(R)}
        {self.region(S_RO, 4)}
        s_mov_b32 {sr(R+3)}, 0""")
        hs(3)
        a("s_barrier")
        if self.o.get("hsx"): hs(0); a("s_waitcnt lgkmcnt(0)")
        a.label("L_mf0")

        def prod(units, pk, waits=None):
            for s in range(5):
                if waits and s == self.o.get("msp", 1): a("s_cbranch_execz L_mf9\nL_mfa:")
                if waits: a(f"s_waitcnt lgkmcnt({waits[s]})")
                if waits and s == 4 and self.o.get("hsx"): hs(1)
                if s == 4: a(f"s_nop {max(0, 6 - len(units))}")
                for d, x, y in units:
                    if s < 4: a(f"v_mfma_f32_16x16x32_bf16 {vr(d,4)}, {vr(x+4*s,4)}, {vr(y+4*s,4)}, {'0' if s == 0 else vr(d,4)}")
                    else: a(f"v_mfma_f32_16x16x16_bf16 {vr(d,4)}, {vr(x+16,2)}, {vr(y+16,2)}, {vr(d,4)}")
            if waits:
                a(f"s_bitcmp1_b32 {sr(R)}, 0\ns_cbranch_scc0 L_mf1")
                for x in rd(X8, AD + 4, 8 * BLK): a(x)
                a.label("L_mf1")
                a(f"s_bitcmp1_b32 {sr(R)}, 1\ns_cbranch_scc0 L_mf2")
                for x in rd(Y8, AD + 4, LK + TILE): a(x)
                a.label("L_mf2")
                a("s_nop 3")
            else: a("s_nop 7")
            for k, (d, x, y) in enumerate(units):
                for i in range(0, 4, 2): a(f"v_pk_mul_f32 {vr(d+i,2)}, {vr(d+i,2)}, {sr(R+1-1+1,1) if False else 'v[246:247]'} op_sel_hi:[1,0]")
                for h in range(2): a(f"v_cvt_pk_bf16_f32 {vr(pk+2*k+h)}, {vr(d+2*h)}, {vr(d+2*h+1)}")
        rd = lambda dst, ad, off: [f"ds_read_b128 {vr(dst+4*s,4)}, {vr(ad)} offset:{off + 64*s}" for s in range(4)] + [f"ds_read_b64 {vr(dst+16,2)}, {vr(ad+1)} offset:{off + 256}"]
        L4 = [rd(A0, AA, 0), rd(B0, AD, LK), rd(A0 + 18, AA + 2, 0), rd(B0 + 18, AD + 2, LK)]
        for s_ in range(5):
            for l in L4: a(l[s_])
        a(f"v_mov_b32 v246, {sr(R+1)}\nbuffer_load_dword v253, off, {sr(S_DB,4)}, 0 sc1")
        prod([(ACC + 8 * e + 4 * k, A0 + 18 * k, B0 + 18 * e) for e in range(2) for k in range(2)], PK, [15, 12, 8, 4, 0])
        a(f"s_cbranch_execz L_mst")
        if self.o.get("hsx"): hs(2)
        a.label("L_mfb")
        a(f"s_waitcnt lgkmcnt(0)\ns_bitcmp1_b32 {sr(R+4)}, 1\ns_cbranch_scc0 L_mf3")
        prod([(ACC + 4 * e, X8, B0 + 18 * e) for e in range(2)], PK + 8)
        a(f"s_cbranch_execz L_mf9")
        a.label("L_mf3")
        a(f"s_bitcmp1_b32 {sr(R+4)}, 2\ns_cbranch_scc0 L_mf4")
        prod([(ACC + 4 * k, A0 + 18 * k, Y8) for k in range(2)], PK + 8)
        a.label("L_mf4")
        a(f"s_bitcmp1_b32 {sr(R+4)}, 3\ns_cbranch_scc0 L_mf5")
        prod([(ACC, X8, Y8)], PK + 8)
        a(f"s_cbranch_execz L_mf9")
        a.label("L_mf5")
        hs(4)
        a(f"""s_waitcnt vmcnt(0)
        v_readfirstlane_b32 {sr(S_N)}, v253
        {self.region(T+4, S_N)}
        s_cmp_lg_u32 {sr(S_N)}, 0
        s_cselect_b32 {sr(S_RO)}, {sr(T+4)}, {sr(S_RO)}""")
        a.label("L_mst")
        a(f"""s_lshl_b32 {sr(T+1)}, {sr(T)}, 10
        s_add_u32 {sr(T+1)}, {sr(T+1)}, {WS_M}
        s_add_u32 {sr(T+1)}, {sr(T+1)}, {sr(S_RO)}
        s_add_u32 {sr(T+4)}, {sr(T+1)}, {sr(T+2)}
        s_add_u32 {sr(T+5)}, {sr(T+4)}, {BLK}
        buffer_store_dwordx4 {vr(PK,4)}, {vr(V_DMA)}, {sr(S_WS,4)}, {sr(T+4)} offen sc1
        buffer_store_dwordx4 {vr(PK+4,4)}, {vr(V_DMA)}, {sr(S_WS,4)}, {sr(T+5)} offen sc1
        s_add_u32 {sr(T+1)}, {sr(T+1)}, {8*BLK}
        s_cmp_eq_u32 {sr(R)}, 2
        s_cselect_b32 {sr(T+1)}, {sr(T+1)}, 2.0
        buffer_store_dwordx4 {vr(PK+8,4)}, {vr(V_DMA)}, {sr(S_WS,4)}, {sr(T+1)} offen sc1
        s_cmp_eq_u32 {sr(R)}, 3
        s_cselect_b32 {sr(T+4)}, {8*BLK}, {sr(T+2)}
        s_add_u32 {sr(T+4)}, {sr(T+4)}, {WS_M + 4096}
        s_add_u32 {sr(T+4)}, {sr(T+4)}, {sr(S_RO)}
        s_add_u32 {sr(T+5)}, {sr(T+4)}, {BLK}
        s_cmp_eq_u32 {sr(R)}, 1
        s_cselect_b32 {sr(T+5)}, {sr(T+5)}, 2.0
        s_bitcmp1_b32 {sr(R)}, 0
        s_cselect_b32 {sr(T+4)}, {sr(T+4)}, 2.0
        buffer_store_dwordx2 {vr(PK+8,2)}, {vr(AD+6)}, {sr(S_WS,4)}, {sr(T+4)} offen sc1
        buffer_store_dwordx2 {vr(PK+10,2)}, {vr(AD+6)}, {sr(S_WS,4)}, {sr(T+5)} offen sc1
        s_mov_b32 {sr(T+1)}, {sr(R+3)}
        s_or_b32 {sr(T+4)}, {sr(S_N)}, {sr(R+3)}
        s_cbranch_scc1 L_mfl""")
        a.label("L_mtag")
        a(f"""buffer_load_dword v253, off, {sr(S_DB,4)}, 0 sc1
        s_add_u32 {sr(T+1)}, {sr(T+1)}, 1
        s_waitcnt vmcnt(0)
        v_readfirstlane_b32 {sr(S_N)}, v253
        s_cmp_lt_u32 {sr(T+1)}, 0x40000
        s_cselect_b32 {sr(T+4)}, {sr(S_N)}, 1
        s_cmp_eq_u32 {sr(T+4)}, 0
        s_cbranch_scc1 L_mtag
        {self.region(T+4, S_N)}
        s_cmp_lg_u32 {sr(T+4)}, {sr(S_RO)}
        s_mov_b32 {sr(S_RO)}, {sr(T+4)}
        s_cbranch_scc1 L_mst""")
        a.label("L_mfl")
        a(f"""s_lshl_b32 {sr(T+1)}, {sr(R+2)}, 7
        s_add_u32 {sr(T+1)}, {sr(T+1)}, {WS_FM}
        s_add_u32 {sr(T+1)}, {sr(T+1)}, {sr(S_RO)}""")
        for i in range(4): a(f"v_mov_b32 {vr(16+i)}, {sr(S_N)}")
        a("s_cbranch_execz L_mf9\ns_waitcnt vmcnt(0)")
        hs(5)
        a(f"""buffer_store_dwordx4 v[16:19], v248, {sr(S_WS,4)}, {sr(T+1)} offen sc1
        s_barrier""")
        a.label("L_mf6")
        if self.o.get("stamps"):
            a("s_waitcnt vmcnt(0)")
            hs(6)
            a(f"s_waitcnt lgkmcnt(0)\ns_lshl2_add_u32 {sr(T)}, s2, {sr(S_W)}\ns_lshl_b32 {sr(T)}, {sr(T)}, 7\ns_add_u32 {sr(T)}, {sr(T)}, {WS_DBG + 252*512}\nv_mov_b32 v1, 0")
            for i in range(16): a(f"v_mov_b32 {vr(16+i)}, s{80+i}")
            for i in range(4): a(f"buffer_store_dwordx4 {vr(16+4*i,4)}, v1, {sr(S_WS,4)}, {sr(T)} offen offset:{16*i}")
        a("s_cmp_ge_u32 s2, 2\ns_cbranch_scc1 L_end")

    def wfuse(self):
        a = self.a
        BF, ACC, AF, TM, AD = 88, 108, 144, 208, 240
        LA, LB_, LM = 0, 44032, 88064
        T = S_T
        a.label("L_wfuse")
        mh = self.o.get("mh", 0)
        if mh: self.mfuse()
        else:
            a(f"{'s_sub_u32 s2, s6, 246' if self.o.get('xm', 0) == 2 else f's_add_u32 s2, s2, {NH}'}\ns_cmp_ge_u32 s2, {NH}\ns_cbranch_scc1 L_end")
            a(f"v_lshrrev_b32 v1, 6, v0\nv_and_b32 v0, 63, v0\nv_readfirstlane_b32 {sr(S_W)}, v1\nv_lshlrev_b32 {vr(V_DMA)}, 4, v0\ns_waitcnt lgkmcnt(0)")
        rot = self.o.get("rot", 0) == 1
        if not rot and not mh: self.srd(S_WS, 78, 79, WS_END)
        self.srd(S_DB, 76, 77, 256)
        self.wf0 = 0
        self.srd(S_X, 72, 73, 82944)
        self.srd(S_W2, 62, 63, 41472)
        a(f"""s_cmp_eq_u32 s2, {self.wf0}
        s_cselect_b32 {sr(S_W1)}, s64, s70
        s_cselect_b32 {sr(S_W1+1)}, s65, s71
        s_mov_b32 {sr(S_W1+2)}, 41472
        s_mov_b32 {sr(S_W1+3)}, 0x20000
        s_cselect_b32 {sr(T+4)}, 0, 41472""")
        self.dma_rows([(S_W1, "0", LA), (S_W2, "0", LB_)], 19, 288, TM + 4, TM + 5, 11, 3, "L_wf1")
        a(f"s_lshl_b32 {sr(T)}, {sr(S_W)}, 10\ns_add_u32 {sr(T+2)}, {sr(T)}, {sr(T+4)}")
        for k in range(11):
            if k == 10: a(f"s_cmp_ge_u32 {sr(S_W)}, 1\ns_cbranch_scc1 L_wf2")
            a(f"s_add_u32 m0, {sr(T)}, {LM + 4096*k}\ns_add_u32 {sr(T+1)}, {sr(T+2)}, {4096*k}")
            a(f"buffer_load_dwordx4 {vr(V_DMA)}, {sr(S_X,4)}, {sr(T+1)} offen lds")
        a.label("L_wf2")
        self.srd(S_DW, 68, 69, 864)
        a(f"""v_and_b32 {vr(TM)}, 15, v0
        v_lshlrev_b32 {vr(TM+2)}, 4, {vr(TM)}
        v_lshlrev_b32 {vr(TM)}, 1, {vr(TM)}
        v_bfe_u32 {vr(TM+3)}, v0, 4, 1
        v_lshl_add_u32 {vr(TM+1)}, {vr(TM+3)}, 7, {vr(TM)}
        v_lshl_add_u32 {vr(TM+2)}, {vr(TM+3)}, 11, {vr(TM+2)}
        v_and_b32 {vr(TM+3)}, 1, v0
        v_lshlrev_b32 {vr(TM+3)}, 4, {vr(TM+3)}
        v_bfe_i32 {vr(TM+4)}, v0, 1, 1
        v_not_b32 {vr(TM+5)}, {vr(TM+4)}""")
        for k in range(3):
            for i in range(5): a(f"buffer_load_ushort {vr(16+5*k+i)}, {vr(TM+1 if i < 4 else TM)}, {sr(S_DW,4)}, 0 offen offset:{288*k + (32*i if i < 4 else 256)}")
        def wtag():
            a(f"s_mov_b32 {sr(T+2)}, 0")
            a.label("L_wtag")
            a(f"""buffer_load_dword {vr(TM+6)}, off, {sr(S_DB,4)}, 0 sc1
            s_add_u32 {sr(T+2)}, {sr(T+2)}, 1
            s_waitcnt vmcnt(0)
            v_readfirstlane_b32 {sr(S_N)}, {vr(TM+6)}
            s_cmp_lt_u32 {sr(T+2)}, 0x40000
            s_cselect_b32 {sr(T)}, {sr(S_N)}, 1
            s_cmp_eq_u32 {sr(T)}, 0
            s_cbranch_scc1 L_wtag""")
        if rot:
            wtag()
            a(f"""s_lshl_b32 {sr(T)}, {sr(S_N)}, {24 - self.o.get('rsh', 14)}
            s_and_b32 {sr(T)}, {sr(T)}, 0x0f000000
            s_add_u32 {sr(S_WS)}, s78, {sr(T)}
            s_addc_u32 {sr(S_WS+1)}, s79, 0
            s_mov_b32 {sr(S_WS+2)}, {self.wsn()}
            s_mov_b32 {sr(S_WS+3)}, 0x20000""")
        a(f"s_mov_b32 {sr(T+1)}, {WS_DWF}\ns_waitcnt vmcnt(0)")
        for f in range(15):
            a(f"v_lshlrev_b32 {vr(16+f)}, {vr(TM+3)}, {vr(16+f)}\nv_and_b32 {vr(32+2*f)}, {vr(TM+5)}, {vr(16+f)}\nv_and_b32 {vr(33+2*f)}, {vr(TM+4)}, {vr(16+f)}")
        for r_ in range(8): a(f"buffer_store_dwordx{4 if r_ < 7 else 2} {vr(32+4*r_, 4 if r_ < 7 else 2)}, {vr(TM+2)}, {sr(S_WS,4)}, {sr(T+1)} offen offset:{256*r_} sc1")
        self.tr_addr(AD, LM, False, TM + 8)
        self.row_addr(AD + 3, LA, TM + 8)
        a(f"v_add_u32 {vr(AD+5)}, {LB_}, {vr(AD+3)}")
        a(f"v_lshlrev_b32 {vr(AD+4)}, 3, v0")
        a(f"""s_lshr_b32 {sr(T)}, {sr(S_W)}, 1
        s_lshl_b32 {sr(T)}, {sr(T)}, 6
        s_and_b32 {sr(T+1)}, {sr(S_W)}, 1
        s_lshl_b32 {sr(T+1)}, {sr(T+1)}, 3
        s_add_u32 {sr(T)}, {sr(T)}, {sr(T+1)}
        v_and_b32 {vr(AD+6)}, 3, v0
        v_lshlrev_b32 {vr(AD+6)}, 3, {vr(AD+6)}
        v_add_u32 {vr(AD+7)}, {sr(T)}, {vr(AD+6)}""")
        for k in range(3): a(f"v_add_u32 {vr(AD+k)}, {vr(AD+7)}, {vr(AD+k)}")
        a(f"s_mov_b32 {sr(S_CNT)}, {sr(S_W)}")
        a("s_waitcnt vmcnt(0)\ns_barrier")
        a.label("L_wfl")
        for s in self.tr_reads(AD, vr)(0, BF): a(s)
        a("s_waitcnt lgkmcnt(0)")
        self.gemm(self.row_reads(AD + 3), BF, ACC, AF)
        for i in range(18): a(f"v_cvt_pk_bf16_f32 {vr(BF+i)}, {vr(ACC+2*i)}, {vr(ACC+2*i+1)}")
        a(f"s_cmp_eq_u32 s2, {self.wf0}\ns_cbranch_scc0 L_wf3")
        self.gemm(self.row_reads(AD + 5), BF, ACC, AF)
        for i in range(18): a(f"v_cvt_pk_bf16_f32 {vr(BF+i)}, {vr(ACC+2*i)}, {vr(ACC+2*i+1)}")
        a.label("L_wf3")
        a(f"""s_mul_i32 {sr(T)}, {sr(S_CNT)}, {BLK}
        s_add_u32 {sr(T)}, {sr(T)}, {sr(T+4)}
        s_add_u32 {sr(T)}, {sr(T)}, {WS_WF}
        s_add_u32 {sr(T+1)}, {sr(T)}, 4096""")
        self.store_block(BF, V_DMA, AD + 4, S_WS, T, T + 1, "sc1")
        for k in range(3): a(f"v_add_u32 {vr(AD+k)}, 128, {vr(AD+k)}")
        a(f"s_add_u32 {sr(S_CNT)}, {sr(S_CNT)}, 4\ns_cmp_lt_u32 {sr(S_CNT)}, 8\ns_cbranch_scc1 L_wfl")
        for k in range(3): a(f"v_sub_u32 {vr(AD+k)}, {vr(AD+k)}, {vr(AD+6)}")
        a(f"s_cmp_eq_u32 {sr(S_CNT)}, 8\ns_cbranch_scc1 L_wfl")
        a(f"""s_waitcnt vmcnt(0)
        s_barrier
        s_cmp_lg_u32 {sr(S_W)}, 0
        s_cbranch_scc1 L_end""")
        if not rot and not mh: wtag()
        a(f"""v_mov_b32 {vr(TM)}, {sr(S_N)}
        v_lshlrev_b32 {vr(TM+1)}, 2, v0
        s_lshl_b32 {sr(T)}, s2, 8
        s_add_u32 {sr(T)}, {sr(T)}, {WS_F + 502*256}
        buffer_store_dword {vr(TM)}, {vr(TM+1)}, {sr(S_WS,4)}, {sr(T)} offen sc1
        s_endpgm""")

    def tstore(self):
        a = self.a
        _, n, fl, allwg, off = self.o["tst"]
        if not allwg: a(f"s_cmp_lg_u32 s2, 101\ns_cbranch_scc1 L_tst")
        a(f"s_waitcnt vmcnt(0)\ns_lshl2_add_u32 s96, s2, {sr(S_W)}\ns_mul_i32 s96, s96, {1024*max(n,1)}\ns_add_u32 s96, s96, {off}")
        k = len(self.stnames)
        a(f"s_memtime s[92:93]")
        if _[-1] == "x":
            a(f"s_cmp_lt_u32 {sr(S_W)}, 2\ns_cselect_b32 s96, 2.0, {off}\ns_add_u32 s97, s96, s56\ns_add_u32 s96, s96, s55")
            for i in range(4): a(f"buffer_store_dwordx4 v[252:255], {vr(V_KA)}, {sr(S_WS,4)}, s{96+(i>>1)} offen offset:{2048*(i&1)} {fl}")
            n = -1
        if _[-1] == "k":
            a(f"s_lshr_b32 s97, {sr(S_W)}, 1\ns_lshl1_add_u32 s96, s2, s97\ns_mul_i32 s96, s96, {2048*n}\ns_and_b32 s97, {sr(S_W)}, 1\ns_lshl_b32 s97, s97, 8\ns_add_u32 s96, s96, s97\ns_add_u32 s96, s96, {off}")
            for i in range(n): a(f"buffer_store_dwordx4 v[252:255], {vr(V_KA)}, {sr(S_WS,4)}, s96 offen offset:{2048*i} {fl}")
            n = -1
        for i in range(n): a(f"buffer_store_dwordx4 v[252:255], {vr(V_DMA)}, {sr(S_WS,4)}, s96 offen offset:{1024*i} {fl}")
        if n == 0: a(f"buffer_load_dwordx4 v[252:255], {vr(V_DMA)}, {sr(S_WS,4)}, s96 offen {fl}")
        a(f"s_waitcnt vmcnt(0)\ns_memtime s[94:95]\ns_waitcnt lgkmcnt(0)")
        a.label("L_tst")

    def dump_stamps(self):
        a = self.a
        if self.o.get("tst") and self.o["tst"][0] == "end": self.tstore()
        if self.o.get("census"):
            key, mode, m_, v_ = self.o["census"]
            a(f"""s_cmp_lg_u32 s2, 100
            s_cbranch_scc1 L_end
            v_lshlrev_b32 v16, 2, v0
            s_mov_b32 s4, {WS_DBG}""")
            for k in range(4): a(f"buffer_load_dword v{20+k}, v16, {sr(S_WS,4)}, s4 offen offset:{256*k} sc1")
            a(f"s_waitcnt vmcnt(0)\nv_readlane_b32 s8, v21, 36\ns_mov_b32 s9, 0x80000000\ns_mov_b32 s10, 0x7fffffff\ns_mov_b32 s11, 0\ns_mov_b32 s17, 0")
            for k in range(4):
                a(f"s_mov_b32 s5, 0")
                a.label(f"L_cs{k}")
                a(f"""v_readlane_b32 s6, v{20+k}, s5
                s_add_u32 s7, s5, {64*k}
                s_sub_u32 s6, s6, s8
                s_and_b32 s16, s7, {m_}
                s_cmp_lg_u32 s16, {v_}
                s_cbranch_scc1 L_cn{k}
                s_min_i32 s10, s10, s6
                s_cmp_gt_i32 s6, {self.o.get("thr", 150)}
                s_addc_u32 s17, s17, 0
                s_cmp_gt_i32 s6, s9
                s_cselect_b32 s9, s6, s9
                s_cselect_b32 s11, s7, s11""")
                a.label(f"L_cn{k}")
                a(f"s_add_u32 s5, s5, 1\ns_cmp_lt_u32 s5, {64 if k < 3 else 60}\ns_cbranch_scc1 L_cs{k}")
            a({"arg": "s_lshl_b32 s6, s11, 3", "range": "s_sub_u32 s6, s9, s10\ns_lshl_b32 s6, s6, 1", "zero": "s_mov_b32 s6, 0", "cnt": "s_lshl_b32 s6, s17, 4",
               "max": "s_lshl_b32 s6, s9, 1"}[mode])
            a("s_add_u32 s6, s6, 1000\ns_memrealtime s[4:5]\ns_waitcnt lgkmcnt(0)\ns_add_u32 s6, s6, s4")
            a.label("L_echo")
            a("s_memrealtime s[4:5]\ns_waitcnt lgkmcnt(0)\ns_sub_u32 s7, s6, s4\ns_cmp_gt_i32 s7, 0\ns_cbranch_scc1 L_echo")
            return
        if self.o.get("echo"):
            if self.o["echo"][0] == "skew":
                a(f"v_mov_b32 v16, 4\nbuffer_load_dword v17, v16, {sr(S_DB,4)}, 0 offen sc1\ns_waitcnt vmcnt(0)\nv_readfirstlane_b32 s98, v17\ns_not_b32 s98, s98")
                x, y = 98, S_ST + 2 * self.stnames.index(self.o["echo"][1])
            elif self.o.get("tst") and self.o["echo"][0] == self.o["echo"][1]: x, y = 92, 94
            else:
                x, y = [S_ST + 2 * self.stnames.index(n) for n in self.o["echo"]]
            lo, hi = self.o.get("echo_ids", (0, 999))
            a(f"""s_cmp_eq_u32 {sr(S_VAL)}, 0
            s_cbranch_scc1 L_end
            s_cmp_lt_u32 s2, {lo}
            s_cbranch_scc1 L_end
            s_cmp_ge_u32 s2, {hi}
            s_cbranch_scc1 L_end
            s_and_b32 s6, s2, {self.o.get("echo_m", 0)}
            s_cmp_lg_u32 s6, {self.o.get("echo_v", 0)}
            s_cbranch_scc1 L_end
            s_cmp_lt_u32 {sr(S_W)}, {self.o.get("echo_w", 0)}
            s_cbranch_scc1 L_end
            s_memrealtime s[4:5]
            s_waitcnt lgkmcnt(0)
            s_sub_u32 s6, {sr(y)}, {sr(x)}
            s_mul_i32 s6, s6, {self.o.get("echo_mul", 1)}
            s_lshr_b32 s6, s6, {self.o.get("echo_shr", 0)}
            s_add_u32 s6, s6, {self.o.get("echo_add", 0)}
            s_add_u32 s6, s6, {sr(S_ST) if self.o.get("echo_abs") else "s4"}""")
            a.label("L_echo")
            a("s_memrealtime s[4:5]\ns_waitcnt lgkmcnt(0)\ns_sub_u32 s7, s6, s4\ns_cmp_gt_i32 s7, 0\ns_cbranch_scc1 L_echo")
            return
        if self.o.get("dbgst"):
            a("s_waitcnt vmcnt(0)")
            self.stamp("done")
            a("s_waitcnt lgkmcnt(0)\ns_mov_b64 exec, 1")
            slots = [1, 2, 3, 4, 5, 6, 7, 9, 11, 12, 13, 14, 15]
            a(f"s_not_b32 {sr(S_T)}, {sr(S_ST)}\nv_mov_b32 v16, {sr(S_T)}\nv_mov_b32 v17, 4\nbuffer_atomic_umax v16, v17, {sr(S_DB,4)}, 0 offen sc1")
            for i in range(min(self.nst, 12)):
                a(f"v_mov_b32 v{18+2*i}, {sr(S_ST+2*i)}\nv_mov_b32 v{19+2*i}, {4*slots[i+1]}\nbuffer_atomic_umax v{18+2*i}, v{19+2*i}, {sr(S_DB,4)}, 0 offen sc1")
            return
        if not self.o.get("stamps"): return
        T = S_T
        a(f"""s_waitcnt lgkmcnt(0)
        s_lshl_b32 {sr(T)}, s2, 2
        s_add_u32 {sr(T)}, {sr(T)}, {sr(S_W)}
        s_lshl_b32 {sr(T)}, {sr(T)}, 7
        s_add_u32 {sr(T)}, {sr(T)}, {WS_DBG}
        v_mov_b32 v1, 0""")
        for i in range(26): a(f"v_mov_b32 {vr(16+i)}, {sr(S_ST+i)}")
        for i in range(7): a(f"buffer_store_dwordx4 {vr(16+4*i,4)}, v1, {sr(S_WS,4)}, {sr(T)} offen offset:{16*i}")

    def build(self):
        a = self.a
        self.stnames = []
        a.raw(f"; @launch grid=({NWG},1,1) block=(256,1,1) lds={LDS_TOTAL}")
        a.raw('.amdgcn_target "amdgcn-amd-amdhsa--gfx950"')
        a.raw(".text")
        a.raw(f".globl {NAME}")
        a.raw(".p2align 12")
        self.entry()
        self.phase_a()
        self.rest()
        a.label("L_fin")
        self.dump_stamps()
        a.label("L_end")
        a("s_endpgm")
        self.poll2()
        if not self.o.get("touch", 1): self.rare()
        a.label("L_dummy")
        if self.o.get("mh"): self.wfuse()
        if self.o.get("rot", 0) and not self.o.get("xfix"): self.moved()
        self.fallback()
        if not self.o.get("mh"): self.wfuse()
        a.label("L_cend")
        a.raw('.section .rodata,"a"')
        a.raw(".p2align 6")
        a.raw(kernel_desc(NAME, 512, 102, 256))
        return a.text()

    def S(self, buf, qb, i=0): return V_S + buf * 32 + qb * 8 + i
    def P(self, buf, qb, i=0): return V_P + buf * 16 + qb * 4 + i

    def k_reads(self, slot, V_K=V_K):
        ka, so = (V_KA, slot * SLOT) if slot < 2 else (V_HI, (slot - 2) * SLOT)
        out = [f"ds_read_b128 {vr(V_K+8*s+4*kb,4)}, {vr(ka)} offset:{so + 2048*s + 256*kb}" for s in range(4) for kb in range(2)]
        out += [f"ds_read_b64 {vr(V_K+32+2*kb,2)}, {vr(ka+1)} offset:{so + 8192 + 512*kb}" for kb in range(2)]
        return out

    def v_reads(self, slot, dst=V_V):
        (va, vr_, vb), so = ((V_VA, V_VR, V_VB), slot * SLOT) if slot < 2 else ((V_HI + 2, V_HI + 4, V_HI + 5), (slot - 2) * SLOT)
        out = []
        for T in range(9):
            for u in range(2):
                if T < 8: out.append(f"ds_read_b64_tr_b16 {vr(dst+4*T+2*u,2)}, {vr((va if T < 4 else vb)+(T&1))} offset:{so + 2048*((T>>1)&1) + 256*u}")
                else: out.append(f"ds_read_b64_tr_b16 {vr(dst+4*T+2*u,2)}, {vr(vr_)} offset:{so + 8192 + 512*u}")
        return out

    def qk_mfmas(self, buf, czero=False):
        out = []
        for s in range(5):
            for kb in range(2):
                for qb in range(4):
                    d = vr(self.S(buf, qb, 4 * kb), 4)
                    c = ("0" if czero else vr(V_CI + 4 * qb, 4)) if s == 0 else d
                    if s < 4: out.append(f"v_mfma_f32_16x16x32_bf16 {d}, {vr(V_K+8*s+4*kb,4)}, {ar(A_Q+18*qb+4*s,4)}, {c}")
                    else: out.append(f"v_mfma_f32_16x16x16_bf16 {d}, {vr(V_K+32+2*kb,2)}, {ar(A_Q+18*qb+16,2)}, {c}")
        return out

    def pv_mfmas(self, buf, czero=False):
        out = []
        for T in range(9):
            for qb in range(4):
                o = ar(A_O + 36 * qb + 4 * T, 4)
                out.append(f"v_mfma_f32_16x16x32_bf16 {o}, {vr(V_V+4*T,4)}, {vr(self.P(buf,qb),4)}, {'0' if czero else o}")
        return out

    def plan(self):
        o = self.o
        n = 76
        fixed = [None] * n
        for i, g in enumerate(range(1, 36, 2)): fixed[g] = ("V", i)
        for i, g in enumerate([41, 44, 47, 50, 53, 56, 59, 62, 65, 68]): fixed[g] = ("K", i)
        for i, g in enumerate([42, 46, 49, 52, 55, 58, 61, 64, 67]): fixed[g] = ("D", i)
        exps = [(qb, j) for qb in range(4) for j in range(8)]
        start = 40
        order = [(start + k) % n for k in range(n)]
        free_idx = [k for k, g in enumerate(order) if fixed[g] is None]
        nsm = len(free_idx) - 32
        cand = free_idx[6:-2]
        sm_set = set(free_idx[-2:]) | {cand[int((i + 0.5) * len(cand) / (nsm - 2))] for i in range(nsm - 2)}
        nds = sum(1 for f in fixed if f is not None and f[0] != "D")
        ls = o.get("lsum", "add")
        over = max(0, (48 if ls == "add" else 32) - nds - 2 * nsm)
        ocand = [k for k, g in enumerate(order) if k >= 20 and (fixed[g] is None or fixed[g][0] != "D")]
        o_set = {ocand[int((i + 0.5) * len(ocand) / over)] for i in range(over)}
        later = []
        gaps = [[] for _ in range(n)]
        small, pend, ei = [], [], 0
        for k, g in enumerate(order):
            new = (start + k) < n
            small.extend(pend); pend = later; later = []
            small.sort(key=lambda t: 0 if t[0] == "c" else 1)
            f = fixed[g]
            want = 0
            if f is not None:
                gaps[g].append((f[0], f[1], None))
                if f[0] == "D": continue
                want = 1
            elif k in sm_set: want = 2
            else:
                qb, j = exps[ei]; ei += 1
                gaps[g].append(("E", ("e", qb, j), new))
                if j & 1: pend.append(("c", qb, j // 2))
                if ls == "add": pend.append(("a", qb, j))
                elif j & 1 and ls == "pk": pend.append(("p", qb, j // 2))
            if k in o_set: want += 1
            if k == n - 1: want = 99
            for _ in range(want):
                if small:
                    it = small.pop(0)
                    gaps[g].append(("E", it, new))
                    if it[0] == "c" and ls == "dot": (small if k == n - 1 else pend).append(("d", it[1], it[2]))
        assert not small and not pend and ei == 32
        self.gaps = gaps

    def pack(self, mf, items):
        a = self.a
        where, order, done, nvm, mpos = {}, [], 0, 0, []
        isds = lambda it: "ds_" in it["t"]
        self.over = 0
        for g, m in enumerate(mf):
            assert not any(it.get("need", 999) <= g and i not in where for i, it in enumerate(items)), g
            idx = [k for k, n_ in enumerate(order) if n_ <= g]
            if idx and max(idx) + 1 > done:
                a(f"s_waitcnt lgkmcnt({min(15, len(order) - 1 - max(idx))})"); done = max(idx) + 1
            if m.startswith("@W"):
                w_, m = m.split("\n", 1)
                a(f"s_waitcnt lgkmcnt({min(15, int(w_[2:]) + len(order))})")
            a(m)
            mpos.append(len(a.lines))
            cap, pick = 8, []
            for phase in (0, 1):
                for i, it in enumerate(items):
                    if i in where or it.get("lo", 0) > g: continue
                    if "am" in it and (it["am"] >= g or len(a.lines) - mpos[it["am"]] < 8): continue
                    d = it.get("dep")
                    if d is not None and not all(where.get(x, 999) < g for x in d): continue
                    if (phase == 0 and it.get("hi", 999) <= g) or (phase == 1 and it["c"] <= cap):
                        if it["t"].startswith("buffer") and pick and any(items[x]["c"] for x in pick) and phase == 1: continue
                        if isds(it) and sum(isds(items[x]) for x in pick) >= it.get("nds", 1) and phase == 1: continue
                        pick.append(i); where[i] = g; cap -= it["c"]
            key = lambda i: 0 if items[i]["c"] == 0 else 1 if isds(items[i]) else 2 if items[i]["t"].startswith("buffer") else 3
            for i in sorted(pick, key=key):
                a(items[i]["t"].replace("@VM", f"s_waitcnt vmcnt({nvm})"))
                nvm += items[i]["t"].startswith("buffer")
                if isds(items[i]): order.append(items[i].get("need", 999))
            self.over += max(0, -cap)
        return [it["t"] for i, it in enumerate(items) if i not in where]

    def e_items(self, buf, lst, lo, hi):
        items, idx = [], {}
        for it in lst:
            kind, qb, j = it
            d = dict(t=self.etext(buf, it), c=8 if kind == "e" else 4)
            if kind == "e": d["lo"] = lo(qb, j); d["hi"] = hi(qb) - 2 - (7 - j)
            else:
                need = [("e", qb, j)] if kind == "a" else [("c", qb, j)] if kind == "d" else [("e", qb, 2 * j), ("e", qb, 2 * j + 1)]
                d["dep"] = [idx[x] for x in need if x in idx]
                if kind == "c": d["hi"] = hi(qb) - (3 - j) // 2
            idx[it] = len(items); items.append(d)
        return items

    def etext(self, buf, it):
        kind, qb, j = it
        s = self.S(buf, qb)
        if kind == "e": return f"v_exp_f32 {vr(s+j)}, {vr(s+j)}"
        if kind == "d": return f"v_dot2_f32_bf16 {vr(V_L+qb)}, {vr(self.P(buf, qb, j))}, v227, {vr(V_L+qb)}"
        if kind == "p": return f"v_pk_add_f32 {vr(208+2*qb,2)}, {vr(208+2*qb,2)}, {vr(s+2*j,2)}"
        if kind == "a": return f"v_add_f32 {vr(V_L+qb)}, {vr(V_L+qb)}, {vr(s+j)}"
        return f"v_cvt_pk_bf16_f32 {vr(self.P(buf, qb, j))}, {vr(s+2*j)}, {vr(s+2*j+1)}"

    def period(self, p, qk=True, pv=True, e_old=True, e_new=True, kread=True, vread=True, dma=True, extra={}, dsub=None, ksub=None, vm=9, halves=(0, 1), inc=None):
        a = self.a
        bn, bo = (p + 1) & 1, p & 1
        qk_, pv_ = self.qk_mfmas(bn), self.pv_mfmas(bo, czero=(p == 0))
        qo, po = self.o.get("qkord", 1), self.o.get("pvord", 0)
        if qo == 1: qk_ = [qk_[8 * s_ + 4 * kb + qb] for kb in range(2) for qb in range(4) for s_ in range(4)] + qk_[32:]
        if qo == 2: qk_ = [qk_[8 * s_ + 4 * kb + qb] for qb in range(4) for kb in range(2) for s_ in range(4)] + qk_[32:]
        if qo == 3: qk_ = [qk_[8 * s_ + 4 * kb + qb] for qb in range(4) for s_ in range(4) for kb in range(2)] + qk_[32:]
        if po == 1: pv_ = [pv_[4 * T_ + qb] for qb in range(4) for T_ in range(9)]
        mf = qk_ + pv_
        kr, vrd = self.k_reads((p + 2) % RING), self.v_reads(p % RING)
        slot = p % RING
        n = 76
        sc = [[] for _ in range(n)]
        dgs = [g for g in range(n) if any(e[0] == "D" for e in self.gaps[g])]
        if dma:
            for j, g in enumerate(dgs):
                if j % 4 == 0: sc[g - 1].append(f"s_add_u32 m0, {sr(S_LB)}, {slot*SLOT + 4096*(j//4)}")
            sc[dgs[-1] + 1].append(f"s_add_u32 {sr(S_TOFF)}, {sr(S_TOFF)}, {inc or 4*TILE}")
        w = []
        if kread: w.append(f"vmcnt({vm})")
        if pv: w.append("lgkmcnt(0)")
        if w: sc[39].append("s_waitcnt " + " ".join(w))
        if kread: sc[75].append("s_waitcnt lgkmcnt(0)")
        for half in halves:
            rng = range(0, 40) if half == 0 else range(40, 76)
            on = qk if half == 0 else pv
            if not on:
                ds, mem, val, post = [], [], [], []
                for g in rng:
                    for s_ in sc[g]:
                        (post if s_.startswith("s_waitcnt") else mem).append(s_)
                    if g in extra: mem.append(extra[g])
                    for kind, d, new in self.gaps[g]:
                        if kind == "V" and vread: ds.append(vrd[d])
                        elif kind == "K" and kread: ds.append(kr[d])
                        elif kind == "D" and dma: mem.append(f"buffer_load_dwordx4 {vr(V_DMA + d//4)}, {sr(S_XA,4)}, {sr(S_TOFF)} offen offset:{1024*(d%4)} {self.o.get('dfl', '')} lds")
                        elif kind == "E" and ((new and e_new) or (not new and e_old)): val.append((d, self.etext(bn if new else bo, d)))
                if half == 1: a("s_nop 3")
                seq, pend = [], list(val)
                while pend:
                    k = 0
                    if seq and seq[-1][0][0] == "e":
                        le = seq[-1][0]
                        dep = lambda it: it[0][1] == le[1] and ((it[0][0] == "a" and it[0][2] == le[2]) or (it[0][0] == "c" and it[0][2] == le[2] // 2))
                        have = {x[0] for x in seq}
                        ok = lambda it: it[0][0] == "e" or (("e", it[0][1], it[0][2]) in have if it[0][0] == "a" else (("e", it[0][1], 2*it[0][2]+1) in have)) or not any(x[0][0] == "e" and x[0][1] == it[0][1] and (x[0][2] == it[0][2] if it[0][0] == "a" else x[0][2] // 2 == it[0][2]) for x in pend)
                        while k < len(pend) and (dep(pend[k]) or not ok(pend[k])): k += 1
                        if k == len(pend): seq.append((("n", 0, 0), "s_nop 0")); k = 0
                    seq.append(pend.pop(k))
                step = max(1, len(seq) // (len(mem) + len(ds) + 1))
                allm = ds + mem
                for x in allm[:6]: a(x)
                allm = allm[6:]
                for i_, (d, t_) in enumerate(seq):
                    a(t_)
                    if allm and i_ % step == step - 1:
                        x = allm.pop(0); a(x)
                        if x.startswith("s_add_u32 m0"): a("s_nop 0")
                for x in allm:
                    a(x)
                    if x.startswith("s_add_u32 m0"): a("s_nop 0")
                for x in post: a(x)
                if half == 0: a("s_nop 1")
                continue
            abl = self.o.get("abl", "") if 1 <= p <= 4 else ""
            for g in rng:
                if not ("Q" in abl and g < 40 or "P" in abl and g >= 40): a(mf[g])
                for s_ in sc[g]: a(s_)
                if g in extra: a(extra[g])
                for kind, d, new in self.gaps[g]:
                    if kind in abl or (kind == "E" and d[0] in abl): continue
                    if kind == "V":
                        if vread: a(vrd[d])
                    elif kind == "K":
                        if kread: a(kr[d])
                        elif ksub: a(ksub.pop(0))
                    elif kind == "D":
                        if dma: a(f"buffer_load_dwordx4 {vr(V_DMA + d//4)}, {sr(S_XA,4)}, {sr(S_TOFF)} offen offset:{1024*(d%4)} {self.o.get('dfl', '')} lds")
                        elif dsub: a(dsub.pop(0))
                    elif (new and e_new) or (not new and e_old):
                        a(self.etext(bn if new else bo, d))

    MK, VO, VO8, GA, VS0, VS0R, VDW, VLW, VL8, VST, VPL = 232, 236, 9, 238, 250, 251, 244, 245, 246, 247, 248
    NB, PT, E_U, E_G, RS3, E_COL, RS1, RS2, MP1 = 3, 4, 5, 6, 7, 43, 36, 37, 38
    G0, GM, GP, U, DWT = 16, 26, 36, 80, (90, 252, 96, 100, 112, 116, 104, 94)
    XRS = (192, 196, 46)
    frag = staticmethod(lambda f, b: [(f, b + 4 * s) for s in range(5)])
    WD = [[("a", 216 + 4 * s) for s in range(5)], [("a", 234 + 4 * s) for s in range(5)], [("v", 208 + 4 * s) for s in range(5)]]
    WO = [[("a", 4 * s) for s in range(5)], [("a", 18 + 4 * s) for s in range(5)], [("a", 36), ("a", 40), ("a", 44), ("a", 48), ("a", 252)]]
    X1B = 98304
    X2O = L_SP - X1B
    L_L = L_SP + 9216

    def epi_setup(self):
        a = self.a
        T = S_T
        NB, PT, VO, GA = self.NB, self.PT, self.VO, self.GA
        r, g4, x, y, big, r0 = 52, 53, 54, 55, 56, 57
        a(f"""s_lshr_b32 {sr(NB)}, {sr(S_W)}, 1
        s_and_b32 {sr(PT)}, {sr(S_W)}, 1
        v_and_b32 {vr(r0)}, 15, v0
        v_lshrrev_b32 {vr(g4)}, 4, v0
        v_mul_u32_u24 {vr(x)}, 288, {vr(r0)}
        v_mov_b32 {vr(big)}, 0x40000000
        s_lshl_b32 {sr(T)}, {sr(S_TOWN)}, 1
        s_add_u32 {sr(T)}, {sr(T)}, {sr(NB)}
        s_lshl_b32 {sr(T)}, {sr(T)}, 4
        v_add_u32 {vr(r)}, {sr(T)}, {vr(r0)}
        s_mul_i32 {sr(T+1)}, {sr(S_TOWN)}, {TILE}
        s_mul_i32 {sr(T+2)}, {sr(PT)}, {BLK}
        v_add_u32 {vr(x)}, {sr(T+1)}, {vr(x)}
        s_sub_u32 {sr(T+3)}, {BLK}, {sr(T+2)}
        v_add_u32 {vr(y)}, {sr(T+3)}, {vr(x)}
        v_add_u32 {vr(x)}, {sr(T+2)}, {vr(x)}
        v_lshl_add_u32 {vr(VO)}, {vr(g4)}, 4, {vr(x)}
        v_lshl_add_u32 {vr(VO+1)}, {vr(g4)}, 4, {vr(y)}
        v_lshl_add_u32 {vr(self.VO8)}, {vr(g4)}, 3, {vr(x)}
        s_lshl_b32 {sr(T+3)}, {sr(PT)}, 11
        s_add_u32 {sr(self.E_U)}, {sr(T+3)}, {WS_U}
        s_add_u32 {sr(self.E_G)}, {sr(T+3)}, {WS_G}
        s_sub_u32 {sr(T+3)}, 4096, {sr(T+3)}
        s_lshl_b32 {sr(T)}, {sr(PT)}, 11
        s_add_u32 {sr(T)}, {sr(T)}, {WS_DWF}
        v_lshrrev_b32 {vr(x)}, 2, {vr(r0)}
        v_cmp_eq_u32 vcc, {vr(x)}, {vr(g4)}
        v_lshl_add_u32 {vr(self.VDW)}, {vr(r0)}, 4, {sr(T)}
        s_nop 0
        v_cndmask_b32 {vr(self.VDW)}, {vr(big)}, {vr(self.VDW)}, vcc
        s_lshl_b32 {sr(self.E_COL)}, {sr(S_W)}, 6
        v_lshlrev_b32 {vr(self.VL8)}, 3, v0
        v_add_u32 {vr(self.VL8)}, 4096, {vr(self.VL8)}
        v_add_u32 {vr(self.VST)}, {sr(S_LB)}, {vr(V_DMA)}
        v_add_u32 {vr(self.VST)}, {2*SLOT}, {vr(self.VST)}
        s_xor_b32 {sr(T)}, {sr(NB)}, 1
        v_xor_b32 {vr(x)}, {sr(T)}, {vr(g4)}
        v_lshl_add_u32 {vr(x)}, {vr(x)}, 4, {vr(r0)}
        s_lshl_b32 {sr(T)}, {sr(S_W)}, 2
        s_add_u32 {sr(T)}, {sr(T)}, {self.L_L}
        v_lshl_add_u32 {vr(self.VLW)}, {vr(x)}, 4, {sr(T)}
        s_sub_u32 {sr(self.MP1)}, 0, {sr(PT)}
        s_mov_b32 {sr(self.MP1+1)}, {sr(self.MP1)}""")
        for k, (d, base) in enumerate(((self.RS1, 3 * SLOT), (self.RS2, 2 * SLOT), (self.RS3, 2 * SLOT))):
            a(f"s_xor_b32 {sr(T)}, {sr(S_W)}, {k+1}\ns_mul_i32 {sr(T)}, {sr(T)}, {TILE}\ns_add_u32 {sr(d)}, {sr(T)}, {base}")
        a(f"""s_mul_i32 {sr(T)}, {sr(S_B)}, 4000
        s_add_u32 {sr(T+1)}, {sr(T)}, 3999
        s_mov_b32 {sr(T+2)}, {BLK}""")
        for k, dr in enumerate((0, -1, 1)):
            m = GA + 2 * k
            if dr: a(f"v_add_u32 {vr(m)}, {dr}, {vr(r)}\nv_cmp_eq_u32 vcc, {sr(T if dr < 0 else T+1)}, {vr(r)}")
            src = m if dr else r
            a(f"""v_lshrrev_b32 {vr(x)}, 4, {vr(src)}
            v_and_b32 {vr(y)}, 15, {vr(src)}
            v_mul_lo_u32 {vr(x)}, {vr(x)}, {sr(T+2)}
            v_lshl_add_u32 {vr(y)}, {vr(g4)}, 4, {vr(y)}
            v_lshl_add_u32 {vr(m)}, {vr(y)}, 4, {vr(x)}
            v_lshl_add_u32 {vr(m+1)}, {vr(y)}, 3, {vr(x)}
            v_add_u32 {vr(m+1)}, {sr(T+3)}, {vr(m+1)}""")
            if dr: a(f"v_cndmask_b32 {vr(m)}, {vr(m)}, {vr(big)}, vcc\nv_cndmask_b32 {vr(m+1)}, {vr(m+1)}, {vr(big)}, vcc")

    def conv_loads(self):
        GA = self.GA
        L = []
        for dst, m, so in ((self.GM, GA + 2, 1), (self.G0, GA, 1), (self.GP, GA + 4, 1), (self.U, GA, 0)):
            for k in range(2): L.append(f"buffer_load_dwordx4 {vr(dst+4*k,4)}, {vr(m)}, {sr(S_WS,4)}, {sr(self.E_U+so)} offen offset:{1024*k}")
            L.append(f"buffer_load_dwordx2 {vr(dst+8,2)}, {vr(m+1)}, {sr(S_WS,4)}, {sr(self.E_U+so)} offen")
        return L

    def rg(self, e, n): return (ar if e[0] == "a" else vr)(e[1], n)

    def w8_loads(self, regs, so):
        return [f"buffer_load_dwordx4 {self.rg(regs[s],4)}, {vr(V_DMA)}, {sr(S_WS,4)}, {sr(so)} offen offset:{1024*s}" for s in range(4)] + \
               [f"buffer_load_dwordx2 {self.rg(regs[4],2)}, {vr(self.VL8)}, {sr(S_WS,4)}, {sr(so)} offen"]

    def w_reads(self, regs, off):
        L = []
        for tt in range(2):
            L += [f"ds_read_b128 {self.rg(regs[tt][s],4)}, {vr(self.VS0)} offset:{off + BLK*tt + 1024*s}" for s in range(4)]
            L.append(f"ds_read_b64 {self.rg(regs[tt][4],2)}, {vr(self.VS0R)} offset:{off + BLK*tt}")
        return L

    def wsn(self): return WS_DBG + (1 << 20 if self.o.get("stamps") else 0)

    def region(self, d, src):
        o = self.o
        if o["rot"] == 1: return f"s_lshl_b32 {sr(d)}, {sr(src)}, {24 - o.get('rsh', 14)}\ns_and_b32 {sr(d)}, {sr(d)}, 0x0f000000"
        return f"s_bfe_u32 {sr(d)}, {sr(src)}, {(o.get('rbits', 6) << 16) | o.get('rsh', 14)}\ns_mul_i32 {sr(d)}, {sr(d)}, {RSTR}\ns_add_u32 {sr(d)}, {sr(d)}, {RBASE}"

    def xa_srd(self, T=S_T):
        return f"""s_mul_i32 {sr(T)}, {sr(S_B)}, {NT}
        s_mul_i32 {sr(T+1)}, {sr(S_H)}, 63
        s_add_u32 {sr(T+1)}, {sr(T+1)}, {sr(T)}
        s_mul_i32 {sr(T+1)}, {sr(T+1)}, {TILE}
        {f"s_add_u32 {sr(T+1)}, {sr(T+1)}, {sr(S_RO)}" if self.o.get("rot", 0) == 2 and not self.o.get("xfix") else ""}
        s_add_u32 {sr(S_XA)}, {sr(S_WS)}, {sr(T+1)}
        s_addc_u32 {sr(S_XA+1)}, {sr(S_WS+1)}, 0
        s_sub_u32 {sr(T+2)}, 63, {sr(S_H)}
        s_mul_i32 {sr(S_XA+2)}, {sr(T+2)}, {TILE}
        s_mov_b32 {sr(S_XA+3)}, 0x20000"""

    def rest(self):
        a, o = self.a, self.o
        T = S_T
        VPL = self.VPL
        self.plan()
        self.head()
        self.stamp("loop")
        if o.get("sktest") or o.get("echo") and o["echo"][0] == "skew":
            a(f"s_waitcnt lgkmcnt(0)\ns_mov_b64 exec, 1\ns_not_b32 s98, {sr(S_ST)}\nv_mov_b32 v226, s98\nv_mov_b32 v227, 4\ns_cmp_lg_u32 {sr(S_W)}, 0\ns_cbranch_scc1 L_sk\nbuffer_atomic_umax v226, v227, {sr(S_DB,4)}, 0 offen sc1\ns_waitcnt vmcnt(0)\nL_sk:\ns_mov_b64 exec, -1\ns_nop 3")
            self.stamp("sk")
        nh = o.get("ugh", 2)
        ex = {2 + 12 * k: x for k, x in enumerate(self.ugs[nh:])}
        ugl = o.get("ugl", 1)
        CL = 226
        SI = S_OUT if o.get("oib", 0) else S_WS
        clr = [f"buffer_store_dwordx4 {vr(CL,4)}, {vr(V_DMA)}, {sr(SI,4)}, {sr(S_CL)} offen sc1",
               f"buffer_store_dwordx4 {vr(CL,4)}, {vr(V_DMA)}, {sr(SI,4)}, {sr(S_CL)} offen offset:1024 sc1",
               f"buffer_store_dwordx2 {vr(CL,2)}, {vr(self.VL8)}, {sr(S_WS,4)}, {sr(S_CL+1)} offen sc1"]
        cll = o.get("cll", 1)
        ex0 = {69: self.ugs[0], 71: clr[0]} if cll else {69: self.ugs[0]}
        if o.get("gs", 0):
            for j, x in enumerate(self.tile_groups(3)):
                g_ = o.get("t3g", 2) + 4 * j
                x = x.split("\n")
                if x[0].startswith("s_add_u32 m0"): ex0[g_ - 1] = x[0]; x = x[2:]
                ex0[g_] = "\n".join(x)
        if ugl: self.period(0, extra=ex0)
        else: self.period(0, vm=9 + 5, extra=ex)
        self.stamp("l0")
        a.raw(".p2align 6")
        a.label("L_loop")
        self.stamp("q1")
        for p in range(1, 5):
            ex = {}
            vm = 9
            if p == 1: ex = {73: f"s_cmp_eq_u32 {sr(S_CNT)}, 3"}
            if p == 2: ex = {70: f"buffer_load_dword v252, {vr(VPL)}, {sr(S_WS,4)}, 0 offen sc1"}
            if p == 3:
                ex = {73: f"s_cmp_eq_u32 {sr(S_CNT)}, 2", 45: f"ds_add_rtn_u32 v230, v231, {vr(VPL+1)}"}
            if p == 4:
                self.stamp("la0")
                a(f"s_cbranch_scc1 L_last")
                a.label("L_lastb")
                self.stamp("la1")
                ex = {72: f"s_add_u32 {sr(S_CNT)}, {sr(S_CNT)}, 1", 1: f"v_readfirstlane_b32 {sr(T)}, v230", 3: f"s_cmp_eq_u32 {sr(T)}, 3",
                      4: f"s_cselect_b32 {sr(T)}, {sr(S_FB)}, 2.0", 6: f"buffer_store_dword v207, v231, {sr(S_WS,4)}, {sr(T)} offen sc1"}
            if ugl:
                ex[69] = self.ugs[p]
                if p < 3 and cll: ex[72] = clr[p]
                if p == 3 and cll: ex.update({70: f"s_mov_b32 {sr(S_CL)}, 2.0", 71: f"s_mov_b32 {sr(S_CL+1)}, 2.0"})
                if p == 4: ex.update({71: f"s_mov_b32 {sr(S_UG)}, 2.0", 2: f"s_lshl2_add_u32 {sr(T)}, {sr(S_CNT)}, {sr(T)}", 3: f"s_cmp_eq_u32 {sr(T)}, 7"})
                if p == 3: ex.update({43: f"s_and_b32 {sr(T)}, {sr(S_CNT)}, 1", 44: f"v_mov_b32 {vr(VPL+1)}, {sr(T)}", 48: ex.pop(45)})
            for k_ in range(o.get("pad", 0)): ex[10 + 7 * k_] = ex.get(10 + 7 * k_, "s_nop 0") + "\ns_nop 7"
            self.period(p, extra=ex, inc=sr(S_INC) if p == 4 else None)
            if p == 1: a("s_cbranch_scc1 L_p14")
        a("s_branch L_loop")
        a.label("L_p14")
        SW = 66
        self.stamp("p14")
        a(f"s_cmp_eq_u32 {sr(S_DUM)}, 4\ns_cbranch_scc0 L_dummyb")
        for i in range(16): a(f"v_mov_b32 {vr(V_CI+i)}, 0xff800000")
        a("s_nop 1")
        a.label("L_dummyb")
        ex = dict(zip([2, 6, 8, 12, 14, 18, 20, 24, 26, 30], self.w_reads(self.WD, 0)))
        ex[0] = "s_waitcnt vmcnt(9)"
        ex.update(dict(zip([4, 10, 16, 22, 28], self.w8_loads(self.WD[2], SW))))
        self.period(14, dma=False, kread=False, extra=ex, halves=(0,))
        self.stamp("tail")
        self.tail(SW)
        self.stamp("end")
        self.epilogue(SW)

    def rare(self):
        a = self.a
        T = S_T
        SW = 66
        a.label("L_last")
        a(f"s_waitcnt vmcnt(9)\ns_mov_b32 {sr(T+2)}, 0")
        a.label("L_late")
        xc = f"v_readlane_b32 {sr(S_SX)}, v252, 5\ns_sub_u32 {sr(S_SX)}, {sr(S_SX)}, {sr(S_N)}" if self.o.get("xm", 0) else ""
        a(f"""v_cmp_ne_u32 vcc, {sr(S_N)}, v252
        s_add_u32 {sr(S_XA)}, {sr(S_WS)}, {WS_WF}
        s_addc_u32 {sr(S_XA+1)}, {sr(S_WS+1)}, 0
        s_mov_b32 {sr(S_XA+2)}, {18*BLK}
        s_add_u32 {sr(S_TOFF)}, {sr(S_LB)}, {9*BLK}
        s_mov_b32 {sr(S_INC)}, {-9*BLK}
        s_lshr_b32 {sr(SW)}, {sr(S_W)}, 1
        s_lshl_b32 {sr(SW)}, {sr(SW)}, 30
        s_add_u32 {sr(SW+1)}, {sr(SW)}, {WS_WF + 8*BLK}
        s_add_u32 {sr(SW)}, {sr(SW)}, {WS_WF + 17*BLK}
        {xc}
        s_and_b32 {sr(T)}, vcc_lo, 31
        s_cbranch_scc0 L_lastb
        buffer_load_dword v252, {vr(self.VPL)}, {sr(S_WS,4)}, 0 offen sc1
        s_add_u32 {sr(T+2)}, {sr(T+2)}, 1
        s_waitcnt vmcnt(0)
        s_cmp_lt_u32 {sr(T+2)}, 0x40000
        s_cbranch_scc1 L_late
        s_branch L_lastb""")

    units = [(0, 0), (0, 1), (1, 0), (1, 1), (2, 0)]
    V15 = V_K

    def stage(self, slot, T):
        src = ar(A_O + 36 * slot + 4 * T, 4)
        if slot == 0: return f"ds_write_b128 {vr(self.VST)}, {src} offset:{1024*T}"
        if slot == 2: return f"ds_write_b128 {vr(self.VS0)}, {src} offset:{1024*T}"
        if T < 4: return f"ds_write_b128 {vr(self.VST)}, {src} offset:{SLOT + 1024*T + (4096 if slot == 3 else 0)}"
        return f"{'s_not_b64' if slot == 1 else 's_mov_b64'} exec, {sr(self.MP1,2)}\nds_write_b128 {vr(self.VST)}, {src} offset:{SLOT + 8192}\ns_mov_b64 exec, -1"

    def dwf(self, k, i):
        f = 5 * k + i
        return self.DWT[f >> 1] + 2 * (f & 1)

    def tail(self, SW):
        a, o = self.a, self.o
        mf, pos, start = [], {}, {}
        for t_, qb in ((14, 0), (14, 1), (15, 0), (15, 1), (14, 2), (15, 2), (14, 3), (15, 3)):
            start[t_, qb] = len(mf)
            for Tt in ([0, 1, 2, 3, 8, 4, 5, 6, 7] if qb & 1 else range(9)):
                o_ = ar(A_O + 36 * qb + 4 * Tt, 4)
                pos[t_, qb, Tt] = len(mf)
                mf.append(f"v_mfma_f32_16x16x32_bf16 {o_}, {vr((V_V if t_ == 14 else self.V15)+4*Tt,4)}, {vr(self.P(t_ & 1,qb),4)}, {o_}")
        lst = []
        for qb in range(4):
            for j in range(8):
                lst.append(("e", qb, j))
                if j & 1: lst.append(("c", qb, j // 2))
        lst += [("a", qb, j) for qb in range(4) for j in range(8)]
        items = self.e_items(1, lst, lambda qb, j: 0 if j < 4 else 1, lambda qb: start[15, qb] - 2)
        for it in items[48:]: it["lo"] = o.get("alo", 26)
        v15 = [dict(t=x, c=4, need=pos[15, 0, i // 2], hi=pos[15, 0, i // 2] - o.get("vlead", 7), lo=0 if i < 16 else 2) for i, x in enumerate(self.v_reads(3, self.V15))]
        wr = []
        nown = o.get("nown", 4)
        self.own = [(2, T_) for T_ in range(nown, 9)] + [(3, T_) for T_ in (0, 1, 2, 3, 8)]
        g = o.get("w0", 23)
        for k, (sl, Tt) in enumerate([(0, T_) for T_ in range(9)] + [(1, T_) for T_ in (0, 1, 2, 3, 8)] + [(2, T_) for T_ in range(nown)]):
            g = max(pos[15, sl, Tt] + 5, g)
            wr.append(dict(t=self.stage(sl, Tt), c=o.get("wc", 20), lo=int(g), hi=int(g)) if g < 72 else dict(t=self.stage(sl, Tt), c=4, lo=999))
            g += o.get("wsp", 2.7)
        n0 = len(items) + len(v15)
        wo = []
        for i, x in enumerate(self.w_reads(self.WO, SLOT)):
            r0 = self.WO[i // 5][i % 5][1]
            wo.append(dict(t=("@VM\n" if i == 0 else "") + x, c=4, dep=sorted({n0 + r0 // 4, n0 + (r0 + 3) // 4 if (r0 + 3) // 4 < 9 else n0 + 8}), lo=o.get("wo0", 40) + 3 * i, hi=o.get("wo0", 40) + 3 * i + 2))
        cl = self.conv_loads()
        dl = [f"buffer_load_dwordx4 {vr(self.DWT[r],4)}, {vr(self.VDW)}, {sr(S_WS,4)}, 0 offen offset:{256*r}" for r in range(7)]
        dl.append(f"buffer_load_dwordx2 {vr(self.DWT[7],2)}, {vr(self.VDW)}, {sr(S_WS,4)}, 0 offen offset:{256*7}")
        fr = {96: 9, 100: 18, 104: 45, 112: 27, 116: 36}
        vm = [(x, 0) for x in cl] + [(x, fr.get(self.DWT[r], 0)) for r, x in enumerate(dl)]
        used = {w["lo"] for w in wr}
        vi, g = [], o.get("m0", 24)
        for x, lo in vm:
            g = max(g, lo)
            while int(g) in used: g += 1
            vi.append(dict(t=x, c=8, lo=int(g), hi=int(g)) if g < 72 else dict(t=x, c=8, lo=999))
            g += o.get("msp", 2.2)
        left = self.pack(mf, items + v15 + wr + wo + vi)
        self.done_a = {(qb, j) for qb in range(4) for j in range(8) if self.etext(1, ("a", qb, j)) not in left}
        left = [x for x in left if not x.startswith("v_add_f32")]
        print("tail overflow", self.over, "left", len(left), "adds done", len(self.done_a))
        self.left = left

    def epilogue(self, SW):
        a, o = self.a, self.o
        T = S_T
        p = lambda r: vr(r, 2)
        NB, PT, MK, VO, units, MP1 = self.NB, self.PT, self.MK, self.VO, self.units, self.MP1
        U, GM, G0, GP = self.U, self.GM, self.G0, self.GP
        X2O = self.X2O
        R1, R2, R3 = 230, 231, 249
        LA, LS, M = 10, 226, 48

        def weave(main, fill, per):
            fill = list(fill)
            for x in main:
                a(x)
                for _ in range(per):
                    if fill: a(fill.pop(0))
            return fill
        for x in self.left:
            if not x.startswith("buffer"): a(x)
        lv = [x for x in self.left if x.startswith("buffer")]
        lv += [f"buffer_load_dwordx4 {vr(self.XRS[j],4)}, {vr(VO+j)}, {sr(S_X,4)}, {sr(self.E_COL)} offen" for j in range(2)]
        lv.append(f"buffer_load_dwordx2 {vr(self.XRS[2],2)}, {vr(self.VO8)}, {sr(S_X,4)}, 0 offen offset:256")
        S1 = lambda qb, j: self.S(1, qb, j)
        rounds = [[] for _ in range(6)]
        for qb in range(4):
            rem = [j for j in range(8) if (qb, j) not in self.done_a]
            prs = [j for j in rem if j % 2 == 0 and j + 1 in rem]
            sing = [j for j in rem if (j & ~1) not in prs]
            r_ = 0
            while len(prs) > 1:
                for x, y in zip(prs[0::2], prs[1::2]): rounds[r_].append(f"v_pk_add_f32 {p(S1(qb,x))}, {p(S1(qb,x))}, {p(S1(qb,y))}")
                prs = prs[0::2]; r_ += 1
            for k_, j in enumerate(sing + ([prs[0], prs[0] + 1] if prs else [])): rounds[min(5, max(r_, 2) + k_)].append(f"v_add_f32 {vr(V_L+qb)}, {vr(V_L+qb)}, {vr(S1(qb,j))}")
        for r_ in rounds:
            for x in r_: a(x)
        a(f"v_add_u32 {vr(R1)}, {sr(self.RS1)}, {vr(V_DMA)}\nv_add_u32 {vr(R2)}, {sr(self.RS2)}, {vr(V_DMA)}")
        self.treduce(V_L)
        a(f"ds_write_b32 {vr(self.VLW)}, {vr(V_L)}")
        acc = lambda slot: [f"v_accvgpr_read_b32 {vr(M+i)}, {ar(A_O+36*slot+16+i)}" for i in range(20)]
        a(f"""v_add_u32 {vr(R3)}, {sr(self.RS3)}, {vr(V_DMA)}
        v_add_u32 {vr(LA+1)}, {self.L_L}, {vr(V_DMA)}
        v_and_b32 {vr(LS+1)}, 0xf0, {vr(V_DMA)}
        s_lshl_b32 {sr(T)}, {sr(NB)}, 8
        s_add_u32 {sr(T+8)}, {sr(T)}, {self.L_L}
        v_add_u32 {vr(LS)}, {sr(T+8)}, {vr(LS+1)}""")
        for x in lv: a(x)
        a(f"""s_xor_b32 {sr(T)}, s2, 1
        s_mul_i32 {sr(T)}, {sr(T)}, {IB}
        s_mul_i32 {sr(T+9)}, {sr(NB)}, 5120
        s_add_u32 {sr(T+9)}, {sr(T+9)}, {WS_IB}
        s_add_u32 {sr(T)}, {sr(T)}, {sr(T+9)}
        s_lshl_b32 {sr(T+10)}, {sr(PT)}, 11
        {"" if o.get("oib", 0) else f"s_add_u32 {sr(T+1)}, {sr(T+10)}, {sr(T)}"}
        s_add_u32 {sr(T)}, {sr(T)}, 4096
        s_cmp_eq_u32 {sr(PT)}, 0
        s_cselect_b32 {sr(T)}, 0x40000000, {sr(T)}
        s_mov_b32 {sr(T+2)}, {f32(2.0**100)}
        s_mul_i32 {sr(T+12)}, s2, {IB}
        s_add_u32 {sr(T+12)}, {sr(T+12)}, {sr(T+9)}
        {"" if o.get("oib", 0) else f"s_add_u32 {sr(T+13)}, {sr(T+12)}, {sr(T+10)}"}
        s_waitcnt lgkmcnt(0)
        s_barrier""")
        self.stamp("B1")

        def rd(X, offs):
            L = [[f"ds_read_b128 {vr(X[k][i],4)}, {vr((R1, R2, R3)[k])} offset:{offs[k] + 1024*i}" for i in range(4)] for k in range(3)]
            L8 = [f"ds_read_b128 {vr(X[k][4],4)}, {vr((R1, R2, R3)[k])} offset:8192" for k in range(3)]
            return L, L8

        def adds(X, k, rng):
            return [f"v_pk_add_f32 {p(M+4*i+2*h)}, {p(M+4*i+2*h)}, {p(X[k][i]+2*h)}" for i in rng for h in range(2)]
        X = [[128, 132, 136, 140, 144], [148, 152, 156, 160, 68], [72, 76, 200, 204, 108]]
        PK = 128
        sfl = o.get("sfl", "")
        oib = o.get("oib", 0)
        SI = S_OUT if oib else S_WS
        L, L8 = rd(X, (0, 4096, 0))
        a(f"ds_read_b128 {vr(LA,4)}, {vr(LA+1)}\nds_read_b128 {vr(LS,4)}, {vr(LS)}")
        rest = weave(L[0] + L[1] + L[2], acc(1), 2)
        assert not rest
        a(f"s_mov_b64 exec, {sr(MP1,2)}")
        for x in L8: a(x)
        a(f"""s_mov_b64 exec, -1
        s_waitcnt lgkmcnt(11)
        v_add_f32 {vr(LA)}, {vr(LA)}, {vr(LA+1)}
        v_add_f32 {vr(LA+2)}, {vr(LA+2)}, {vr(LA+3)}
        v_add_f32 {vr(LS)}, {vr(LS)}, {vr(LS+1)}
        v_add_f32 {vr(LA)}, {vr(LA)}, {vr(LA+2)}
        v_add_f32 {vr(LS+2)}, {vr(LS+2)}, {vr(LS+3)}
        v_cmp_nge_f32 vcc, {sr(T+2)}, {vr(LA)}""")
        for x in adds(X, 0, range(4)): a(x)
        a(f"""s_cmp_lg_u64 vcc, 0
        s_cselect_b32 {sr(T+2)}, 1, 0
        s_andn2_b32 {sr(T+2)}, {sr(T+2)}, {sr(S_REDO)}
        s_cbranch_scc1 L_fallback
        v_add_f32 {vr(PK+10)}, {vr(LS)}, {vr(LS+2)}
        v_mov_b32 {vr(PK+11)}, {vr(MK+1)}
        s_waitcnt lgkmcnt(7)""")
        for x in adds(X, 1, range(4)): a(x)
        a("s_waitcnt lgkmcnt(3)")
        a3 = adds(X, 2, range(4))
        cv = [f"v_cvt_pk_bf16_f32 {vr(PK+i)}, {vr(M+2*i)}, {vr(M+2*i+1)}" for i in range(10)]
        for x in a3[:4] + a3[4:6] + cv[:4]: a(x)

        def send(fl):
            a(f"buffer_store_dwordx4 {vr(PK,4)}, {vr(V_DMA)}, {sr(SI,4)}, {sr(S_OS if oib else T+1)} offen {fl}")
            for x in a3[6:] + cv[4:8]: a(x)
            a(f"buffer_store_dwordx4 {vr(PK+4,4)}, {vr(V_DMA)}, {sr(SI,4)}, {sr(S_OS if oib else T+1)} offen offset:1024 {fl}")
            a("s_waitcnt lgkmcnt(0)")
            for kk in range(3):
                for x in adds(XS, kk, [4]): a(x)
            for x in cv[8:]: a(x)
            a(f"buffer_store_dwordx4 {vr(PK+8,4)}, {vr(V_DMA)}, {sr(S_WS,4)}, {sr(T)} offen {fl}")
        XS = X
        self.send = send
        if o.get("xm", 0) and o.get("l2s", 1):
            a(f"s_cmp_eq_u32 {sr(S_SX)}, {sr(S_XC)}\ns_cbranch_scc0 L_far")
            send(sfl)
            a.label("L_sent")
        else: send("sc1")
        self.stamp("sent")
        a(f"s_cmp_eq_u32 {sr(S_VAL)}, 0\ns_cbranch_scc1 L_fin")
        C, UP = 140, 68
        IN = [(200, 204, 226), (164, 168, 252), (192, 196, 172)]
        VXW, VXR, VF, LO = 78, 79, 10, 36
        wr = [self.stage(*e) for e in self.own]

        def inbox(k):
            return [f"buffer_load_dwordx4 {vr(IN[k][0],4)}, {vr(V_DMA)}, {sr(SI,4)}, {sr(S_OR if oib else T+13)} offen sc1",
                    f"buffer_load_dwordx4 {vr(IN[k][1],4)}, {vr(V_DMA)}, {sr(SI,4)}, {sr(S_OR if oib else T+13)} offen offset:1024 sc1",
                    f"buffer_load_dwordx4 {vr(IN[k][2],4)}, {vr(V_DMA+1)}, {sr(S_WS,4)}, {sr(T+12)} offen sc1"]
        for x in inbox(0): a(x)
        n0 = len(a.lines)
        a(f"""s_lshl_b32 {sr(T)}, {sr(NB)}, 12
        s_add_u32 {sr(T)}, {sr(T)}, {sr(T+10)}
        s_add_u32 {sr(T)}, {sr(T)}, {self.X1B}
        v_add_u32 {vr(VXW)}, {sr(T)}, {vr(V_DMA)}
        s_lshl_b32 {sr(T)}, {sr(NB)}, 9
        s_add_u32 {sr(T)}, {sr(T)}, {self.X1B + 4096}
        v_add_u32 {vr(VXR)}, {sr(T)}, {vr(self.VL8)}
        s_lshl_b32 {sr(T)}, {sr(PT)}, 12
        s_add_u32 {sr(T)}, {sr(T)}, {self.X1B}
        v_add_u32 {vr(VF)}, {sr(T)}, {vr(V_DMA)}
        v_xor_b32 {vr(VF+1)}, 4096, {vr(VF)}
        s_lshl_b32 {sr(T)}, {sr(PT)}, 9
        s_add_u32 {sr(T)}, {sr(T)}, {self.X1B + 4096}
        v_add_u32 {vr(VF+2)}, {sr(T)}, {vr(self.VL8)}
        v_xor_b32 {vr(VF+3)}, 512, {vr(VF+2)}
        v_subrev_u32 {vr(R2)}, {2*SLOT}, {vr(R2)}
        v_subrev_u32 {vr(R3)}, {2*SLOT}, {vr(R3)}
        s_waitcnt vmcnt(9)""")
        self.stamp("cv0")
        un = [f"v_lshlrev_b32 {vr(M+2*i)}, 16, {vr(U+i)}\nv_and_b32 {vr(M+1+2*i)}, 0xffff0000, {vr(U+i)}" for i in range(10)]
        w8 = self.w8_loads(self.WO[2], SW + 1)
        for k, src in enumerate((GM, G0, GP)):
            for i in range(5):
                d = vr(C + 4 * i, 4)
                a(f"v_mfma_f32_16x16x16_bf16 {d}, {vr(self.dwf(k, i),2)}, {vr(src+2*i,2)}, {'0' if k == 0 else d}")
                a(w8.pop(0) if i in (0, 3) and w8 else un.pop(0))
        self.stamp("cv1")
        a(f"v_and_b32 {vr(LO+1)}, 0xf0, {vr(V_DMA)}\nv_add_u32 {vr(LO)}, {sr(T+8)}, {vr(LO+1)}\ns_nop 1")
        for i in range(10): a(f"v_pk_mul_f32 {p(C+2*i)}, {p(C+2*i)}, {p(M+2*i)}")
        for i in range(10):
            a(f"v_cvt_pk_bf16_f32 {vr(UP+i)}, {vr(C+2*i)}, {vr(C+2*i+1)}")
        body = a.lines[n0:]; del a.lines[n0:]
        step = max(1, len(body) // len(wr))
        for i, l in enumerate(body):
            if i % o.get("wstep", step) == 0 and wr: a(wr.pop(0))
            a.lines.append(l)
        for x in wr: a(x)
        ac = acc(3)
        a(f"ds_write_b128 {vr(VXW)}, {vr(UP,4)} offset:{X2O}")
        for x in ac[:6]: a(x)
        a(f"ds_write_b128 {vr(VXW)}, {vr(UP+4,4)} offset:{X2O + 1024}")
        for x in ac[6:12]: a(x)
        a(f"""s_mov_b64 exec, {sr(MP1,2)}
        ds_write_b64 {vr(VXR)}, {vr(UP+8,2)} offset:{X2O}
        s_mov_b64 exec, -1""")
        self.stamp("x2")
        for x in inbox(1): a(x)
        for x in ac[12:]: a(x)
        a("s_waitcnt lgkmcnt(0)\ns_barrier")
        self.stamp("B2")
        X = [[128, 132, 136, 140, 144], [148, 152, 156, 160, 188], [16, 20, 24, 28, 32]]
        L, L8 = rd(X, (4096, 4096, 0))
        BU = [[("v", r) for r in (100, 104, 108, 112, 116)], [("v", r) for r in (118, 122, 180, 184, 126)]]
        BO = [self.frag("v", 128), self.frag("v", 146)]
        AB = 80

        def bfrags(dst, off):
            out = []
            for s in range(5):
                for j in range(2):
                    out.append(f"ds_read_b128 {self.rg(dst[j][s],4)}, {vr(VF+j)} offset:{off + 1024*s}" if s < 4 else f"ds_read_b64 {self.rg(dst[j][4],2)}, {vr(VF+2+j)} offset:{off}")
            return out

        def fg(W, Bf):
            out = []
            for s in range(5):
                for u, (tt, j) in enumerate(units):
                    d = vr(AB + 4 * u, 4)
                    if s < 4: out.append(f"v_mfma_f32_16x16x32_bf16 {d}, {self.rg(W[tt][s],4)}, {self.rg(Bf[j][s],4)}, {d}")
                    else: out.append(f"v_mfma_f32_16x16x16_bf16 {d}, {self.rg(W[tt][4],2)}, {self.rg(Bf[j][4],2)}, {d}")
            return out
        xu = []
        for u, (tt, j) in enumerate(units):
            for h in range(2):
                x = self.XRS[j] + 2 * tt + h if tt < 2 else self.XRS[2] + h
                xu += [f"v_lshlrev_b32 {vr(AB+4*u+2*h)}, 16, {vr(x)}", f"v_and_b32 {vr(AB+1+4*u+2*h)}, 0xffff0000, {vr(x)}"]
        a("s_waitcnt vmcnt(14)")
        weave(bfrags(BU, X2O), xu, 2)
        pl = lambda k, i, e: f"v_add_f32 {vr(M+4*i+e)}, {vr(M+4*i+e)}, {vr(X[k][i]+e)}"
        ds = L[0] + L[1] + L[2] + [f"s_not_b64 exec, {sr(MP1,2)}\n" + "\n".join(L8) + "\ns_mov_b64 exec, -1", f"ds_read_b128 {vr(LO,4)}, {vr(LO)} offset:512"]
        nis = [1] * 12 + [3, 1]
        gap = [[] for _ in range(25)]
        tot = [10]
        for g in range(25): tot.append(tot[-1] + (nis[g] if g < 14 else 0))
        A0 = [pl(0, i, e) for i in range(4) for e in range(4)]
        A1 = [pl(1, i, e) for i in range(4) for e in range(4)]
        ib = inbox(2)
        for g, m in enumerate(fg(self.WD, BU)):
            if g % 5 == 0: a(f"s_waitcnt lgkmcnt({min(15, tot[g] - 2 * (g // 5 + 1))})")
            a(m)
            if g == 8: a(f"s_waitcnt lgkmcnt({tot[g] - 14})")
            if g == 16: a(f"s_waitcnt lgkmcnt({tot[g] - 18})")
            if g < 14: a(ds[g])
            if 8 <= g < 14: a(A0.pop(0))
            elif g in (14, 18, 22): a(ib.pop(0))
            elif g >= 14:
                for _ in range(2): a(A0.pop(0) if A0 else A1.pop(0))
        assert not A0 and len(A1) % 2 == 0
        n1 = 16 - len(A1)
        for e in range(n1, 16, 2): a(f"v_pk_add_f32 {p(M+e)}, {p(M+e)}, {p(X[1][e//4]+e%4)}")
        a("s_waitcnt lgkmcnt(0)")
        for x in adds(X, 2, range(4)): a(x)
        a(f"v_add_f32 {vr(LO)}, {vr(LO)}, {vr(LO+1)}\nv_add_f32 {vr(LO+2)}, {vr(LO+2)}, {vr(LO+3)}")
        for kk in range(3):
            for x in adds(X, kk, [4]): a(x)
        a(f"s_mov_b32 {sr(T+2)}, 0\nv_add_f32 {vr(LO)}, {vr(LO)}, {vr(LO+2)}")
        self.stamp("own")
        w, PU = 40, 128
        mo = MK + 3

        def chk(k):
            r = [IN[k][q] + i for q in range(3) for i in range(4)]
            c = [f"v_max3_u32 v46, {vr(r[0])}, {vr(r[1])}, {vr(r[2])}", f"v_max3_u32 v47, {vr(r[3])}, {vr(r[4])}, {vr(r[5])}"]
            for q in range(3): c.append(f"v_max3_u32 v{46+(q&1)}, v{46+(q&1)}, {vr(r[6+2*q])}, {vr(r[7+2*q])}")
            return c + ["v_max_u32 v46, v46, v47", "v_cmp_eq_u32 vcc, -1, v46"]

        def take(k, with_chk):
            r = [IN[k][q] + i for q in range(3) for i in range(4)]
            lp_, mp = r[10], r[11]
            wt = [f"v_min_f32 {vr(w)}, {vr(mo)}, {vr(mp)}", f"v_sub_f32 {vr(w+2)}, {vr(w)}, {vr(mp)}", f"v_sub_f32 {vr(w)}, {vr(w)}, {vr(mo)}",
                  f"v_exp_f32 {vr(w+2)}, {vr(w+2)}", f"v_exp_f32 {vr(w)}, {vr(w)}", f"v_mul_f32 {vr(w+4)}, {vr(w+2)}, {vr(lp_)}",
                  f"v_fmac_f32 {vr(w+4)}, {vr(w)}, {vr(LO)}", f"v_rcp_f32 {vr(w+4)}, {vr(w+4)}", f"v_mul_f32 {vr(w)}, {vr(w)}, {vr(w+4)}",
                  f"v_mul_f32 {vr(w+2)}, {vr(w+2)}, {vr(w+4)}"]
            un = []
            for i in range(10): un += [f"v_lshlrev_b32 {vr(PU+2*i)}, 16, {vr(r[i])}", f"v_and_b32 {vr(PU+1+2*i)}, 0xffff0000, {vr(r[i])}"]
            c = chk(k) if with_chk else []
            for i in range(10):
                a(wt[i])
                if c: a(c.pop(0))
                a(un.pop(0)); a(un.pop(0))
        a("s_waitcnt vmcnt(6)")
        take(0, True)
        a("s_cmp_eq_u64 vcc, 0\ns_cbranch_scc0 L_poll2")
        a.label("L_got")
        self.stamp("got")
        for i in range(10): a(f"v_pk_mul_f32 {p(M+2*i)}, {p(M+2*i)}, {p(w)} op_sel_hi:[1,0]")
        for i in range(10): a(f"v_pk_fma_f32 {p(M+2*i)}, {p(PU+2*i)}, {p(w+2)}, {p(M+2*i)} op_sel_hi:[1,0,1]")
        for i in range(10):
            a(f"v_cvt_pk_bf16_f32 {vr(UP+i)}, {vr(M+2*i)}, {vr(M+2*i+1)}")
            if i == 3: a(f"ds_write_b128 {vr(VXW)}, {vr(UP,4)}")
            if i == 7: a(f"ds_write_b128 {vr(VXW)}, {vr(UP+4,4)} offset:1024")
        a(f"""s_not_b64 exec, {sr(MP1,2)}
        ds_write_b64 {vr(VXR)}, {vr(UP+8,2)}
        s_mov_b64 exec, -1
        s_waitcnt lgkmcnt(0)
        s_barrier""")
        self.stamp("B3")
        for x in bfrags(BO, 0): a(x)
        for g, m in enumerate(fg(self.WO, BO)):
            if g % 5 == 0: a(f"s_waitcnt lgkmcnt({8 - 2 * (g // 5)})" + ("\ns_nop 0" if g == 20 else ""))
            a(m)
        self.stamp("gem")
        a("s_nop 3")
        for j in range(2):
            for tt in range(2):
                u = 2 * tt + j
                for h in range(2): a(f"v_cvt_pk_bf16_f32 {vr(16+4*j+2*tt+h)}, {vr(AB+4*u+2*h)}, {vr(AB+4*u+2*h+1)}")
            a(f"buffer_store_dwordx4 {vr(16+4*j,4)}, {vr(VO+j)}, {sr(S_OUT,4)}, {sr(self.E_COL)} offen {o.get('ofl', '')}")
        a(f"s_cmp_ge_u32 {sr(S_W)}, 2\ns_cbranch_scc1 L_fin")
        for h in range(2): a(f"v_cvt_pk_bf16_f32 {vr(24+h)}, {vr(AB+16+2*h)}, {vr(AB+16+2*h+1)}")
        a(f"buffer_store_dwordx2 v[24:25], {vr(self.VO8)}, {sr(S_OUT,4)}, 0 offen offset:256 {o.get('ofl', '')}")
        self.stamp("fin")

        def poll2():
            a.label("L_poll2")
            for k in (1, 2, 0):
                for x in inbox((k + 2) % 3): a(x)
                a("s_waitcnt vmcnt(6)")
                for x in chk(k): a(x)
                a(f"s_add_u32 {sr(T+2)}, {sr(T+2)}, 1\ns_cmp_eq_u64 vcc, 0\ns_cbranch_scc1 L_take{k}")
            a(f"s_cmp_lt_u32 {sr(T+2)}, 0x10000\ns_cbranch_scc1 L_poll2")
            for k in (0, 1, 2):
                a.label(f"L_take{k}")
                take(k, False)
                a("s_branch L_got")
            if o.get("xm", 0) and o.get("l2s", 1):
                a.label("L_far")
                send("sc1")
                a("s_branch L_sent")
        self.poll2 = poll2

    def fallback(self):
        a = self.a
        T = S_T
        MXR = 208
        a.label("L_fallback")
        a(f"""s_waitcnt vmcnt(0) lgkmcnt(0)
        s_barrier
        s_mov_b32 {sr(S_REDO)}, 1
        s_mov_b32 {sr(S_UG)}, 0x40000000
        {self.xa_srd()}
        s_mov_b32 {sr(S_TOFF)}, {sr(S_LB)}
        s_cmp_eq_u32 {sr(S_DUM)}, 4
        s_cselect_b32 {sr(S_CNT)}, 15, 16""")
        for i in range(4): a(f"v_mov_b32 {vr(MXR+i)}, 0xff800000")
        a.label("L_fb1")
        for g in self.tile_groups(0): a(g)
        a("s_waitcnt vmcnt(0)")
        for x in self.k_reads(0): a(x)
        a("s_waitcnt lgkmcnt(0)")
        for m in self.qk_mfmas(0, czero=True): a(m)
        a("s_nop 7")
        for qb in range(4):
            for i in range(0, 8, 2): a(f"v_max3_f32 {vr(MXR+qb)}, {vr(MXR+qb)}, {vr(self.S(0,qb,i))}, {vr(self.S(0,qb,i+1))}")
        a(f"s_sub_u32 {sr(S_CNT)}, {sr(S_CNT)}, 1\ns_cmp_lg_u32 {sr(S_CNT)}, 0\ns_cbranch_scc1 L_fb1")
        self.greduce([MXR + i for i in range(4)], MXR + 4, "v_max_f32")
        a(f"""v_and_b32 {vr(MXR+4)}, 15, v0
        v_lshlrev_b32 {vr(MXR+4)}, 4, {vr(MXR+4)}
        v_add_u32 {vr(MXR+4)}, {L_SP}, {vr(MXR+4)}
        s_lshl_b32 {sr(T)}, {sr(S_W)}, 2
        s_xor_b32 {sr(T+1)}, {sr(self.NB)}, 1
        v_lshl_add_u32 {vr(MXR+5)}, {sr(self.NB)}, 8, {vr(MXR+4)}
        v_lshl_add_u32 {vr(MXR+4)}, {sr(T+1)}, 8, {vr(MXR+4)}
        v_add_u32 {vr(MXR+6)}, {sr(T)}, {vr(MXR+4)}
        v_add_u32 {vr(MXR+7)}, {sr(T)}, {vr(MXR+5)}""")
        for qb in range(4): a(f"ds_write_b32 {vr(MXR+6+(qb&1))}, {vr(MXR+qb)} offset:{512*(qb>>1)}")
        a("s_waitcnt lgkmcnt(0)\ns_barrier")
        for qb in range(4): a(f"ds_read_b128 {vr(16+4*qb,4)}, {vr(MXR+4+(qb&1))} offset:{512*(qb>>1)}")
        a(f"s_mov_b32 {sr(S_TOFF)}, {sr(S_LB)}")
        for g in self.tile_groups(0) + self.tile_groups(1) + ([] if self.o.get("gs", 0) else self.tile_groups(2)[:8]): a(g)
        a("s_waitcnt lgkmcnt(0)")
        for qb in range(4):
            r = 16 + 4 * qb
            a(f"v_max_f32 {vr(r)}, {vr(r)}, {vr(r+1)}\nv_max3_f32 {vr(r)}, {vr(r)}, {vr(r+2)}, {vr(r+3)}")
            a(f"v_sub_f32 {vr(self.MK+qb)}, 0, {vr(r)}")
        a("s_waitcnt vmcnt(0)")
        for x in self.k_reads(0, V_V): a(x)
        self.loop_init(False)
        if self.o.get("gs", 0): self.loop_init(True)
        a("s_branch L_go")


if __name__ == "__main__":
    opt = json.loads(sys.argv[2]) if len(sys.argv) > 2 else {}
    g = G(opt)
    txt = g.build()
    if opt.get("align", 1):
        from align import align
        for n2 in (1, 2):
            try:
                txt, st = align(txt, chains=[(1, "L_tr")] * 3 + [(1, "L_tr2"), (n2, "L_tr2")] if opt.get("touch", 1) else None)
                break
            except AssertionError as e:
                if n2 == 2: raise
        print("align: promoted %d, padded %d, left %d" % st)
    txt = txt.replace("\n", "\n; stamps " + json.dumps(g.stnames) + "\n; map %d rot %d\n" % (g.mp, opt.get("rsh", 14) if opt.get("rot") == 1 else 0), 1)
    open(sys.argv[1], "w").write(txt)
```
